```python
import torch

def _softmax(x, axis=-1):
    return torch.softmax(x, dim=axis)
def _gelu(x):
    return torch.nn.functional.gelu(x, approximate="tanh")
def _silu(x):
    return torch.nn.functional.silu(x)
def _sigmoid(x):
    return torch.sigmoid(x)
def _layernorm(x, axis=-1, eps=1e-5):
    m = x.mean(dim=axis, keepdim=True)
    v = x.var(dim=axis, keepdim=True, unbiased=False)
    return (x - m) / torch.sqrt(v + eps)
def _scatter_add(tgt, idx, src, axis=0):
    return tgt.clone().index_add_(axis, idx, src)
def _segment_sum(src, seg, n):
    out = torch.zeros((n,) + src.shape[1:], dtype=src.dtype)
    return out.index_add_(0, seg, src)
def _pad(x, pw):
    flat = tuple(v for pair in reversed(pw) for v in pair)
    return torch.nn.functional.pad(x, flat)

kernel_name = 'interleave_layers__sliding_local_dilated__dense_activation_gelu__prompt'

def setup_inputs():

    _w = (lambda a: (lambda t: t.to(torch.bfloat16) if t.is_floating_point() else t)(torch.as_tensor(a)))
    def _A_setup():
        B, S, D = 1, 2048, 1024
        return {
            "x": _w((lambda *s: torch.randn(*s, dtype=torch.bfloat16) * 0.05)(B, S, D)),
            "wqkv": _w((lambda *s: torch.randn(*s, dtype=torch.bfloat16) * 0.05)(D, 3 * D)),
            "wo": _w((lambda *s: torch.randn(*s, dtype=torch.bfloat16) * 0.05)(D, D)),
        }
    _A_in = _A_setup()

    def _B_setup():
        B, S, D, F = 1, 2048, 1024, 3584
        return {
            "x": _w((lambda *s: torch.randn(*s, dtype=torch.bfloat16) * 0.05)(B, S, D)),
            "w1": _w((lambda *s: torch.randn(*s, dtype=torch.bfloat16) * 1.6)(D, F) * (D ** -0.5)),
            "b1": _w((lambda *s: torch.randn(*s, dtype=torch.bfloat16) * 1.6)(F) * 0.01),
            "w2": _w((lambda *s: torch.randn(*s, dtype=torch.bfloat16) * 1.6)(F, D) * (F ** -0.5)),
            "b2": _w((lambda *s: torch.randn(*s, dtype=torch.bfloat16) * 1.6)(D) * 0.01),
        }
    _B_in = _B_setup()

    return {
        "A_x": _A_in["x"],
        "A_wqkv": _A_in["wqkv"],
        "A_wo": _A_in["wo"],
        "B_x": _B_in["x"],
        "B_w1": _B_in["w1"],
        "B_b1": _B_in["b1"],
        "B_w2": _B_in["w2"],
        "B_b2": _B_in["b2"],
    }

def reference(A_x, A_wqkv, A_wo, B_x, B_w1, B_b1, B_w2, B_b2):
    def _A_ref(x, wqkv, wo):
        B, S, D = x.shape
        H = 32; Dh = D // H
        W, dil = 8, 2
        qkv = (lambda x, *d: x.permute(*d))((x @ wqkv).reshape(B, S, 3, H, Dh), 2, 0, 3, 1, 4)
        q, k, v = qkv[0], qkv[1], qkv[2]
        scale = Dh ** -0.5
        pos = torch.arange(S)
        off = torch.arange(W) * dil
        idx = pos[:, None] - off[None, :]
        mask = idx >= 0
        idx_c = torch.where(mask, idx, 0).reshape(-1)
        kg = k[:, :, idx_c, :].reshape(B, H, S, W, Dh)
        vg = v[:, :, idx_c, :].reshape(B, H, S, W, Dh)
        logits = torch.einsum("bhsd,bhswd->bhsw", q, kg) * scale
        logits = torch.where(mask[None, None, :, :], logits, -1e9)
        attn = _softmax(logits, axis=-1)
        o = torch.einsum("bhsw,bhswd->bhsd", attn, vg)
        return (lambda x, *d: x.permute(*d))(o, 0, 2, 1, 3).reshape(B, S, D) @ wo

    def _B_ref(x, w1, b1, w2, b2):
        h = torch.einsum("bsd,df->bsf", x, w1) + b1
        h = _gelu(h)
        return torch.einsum("bsf,fd->bsd", h, w2) + b2

    x = A_x
    x = x + _A_ref(_layernorm(x, axis=-1), A_wqkv, A_wo)
    x = x + _B_ref(_layernorm(x, axis=-1), B_w1, B_b1, B_w2, B_b2)
    x = x + _A_ref(_layernorm(x, axis=-1), A_wqkv, A_wo)
    x = x + _B_ref(_layernorm(x, axis=-1), B_w1, B_b1, B_w2, B_b2)
    return x
```

```python
class Asm:
    def __init__(self):
        self.lines = []
    def __call__(self, s):
        for l in s.strip('\n').split('\n'):
            self.lines.append(l.rstrip())
    def emit(self, s):
        self.lines.append('  ' + s)
    def label(self, s):
        self.lines.append(s + ':')
    def comment(self, s):
        self.lines.append('  ; ' + s)
    def text(self):
        return '\n'.join(self.lines) + '\n'

def v(i, n=1):
    return f'v{i}' if n == 1 else f'v[{i}:{i+n-1}]'
def s(i, n=1):
    return f's{i}' if n == 1 else f's[{i}:{i+n-1}]'

KD_TMPL = '''.section .rodata,"a"
.p2align 6
.amdhsa_kernel {name}
  .amdhsa_next_free_vgpr {nvgpr}
  .amdhsa_next_free_sgpr {nsgpr}
  .amdhsa_accum_offset {accum}
  .amdhsa_group_segment_fixed_size 0
  .amdhsa_kernarg_size 88
  .amdhsa_user_sgpr_count 2
  .amdhsa_user_sgpr_kernarg_segment_ptr 1
  .amdhsa_system_sgpr_workgroup_id_x 1
  .amdhsa_float_denorm_mode_32 3
  .amdhsa_float_denorm_mode_16_64 3
.end_amdhsa_kernel
.text
'''

def kernel_begin(a, name):
    a(f'.text\n.globl {name}\n.p2align 8\n.type {name},@function\n{name}:')

def kernel_end(a, name, nvgpr, nsgpr=102):
    accum = (nvgpr + 3) // 4 * 4
    a('  s_endpgm')
    a(KD_TMPL.format(name=name, nvgpr=nvgpr, nsgpr=nsgpr, accum=accum))

KA_AX, KA_WQKV, KA_WO, KA_BX, KA_W1, KA_B1, KA_W2, KA_B2, KA_OUT, KA_DBG, KA_WS = [8*i for i in range(11)]

def load_kernargs(a):
    a.emit('s_load_dwordx16 s[16:31], s[0:1], 0')
    a.emit('s_load_dwordx2 s[32:33], s[0:1], 64')
    a.emit('s_load_dwordx2 s[34:35], s[0:1], 80')

def ptr_of(which):
    return {'A_x':16,'wqkv':18,'wo':20,'B_x':22,'w1':24,'b1':26,'w2':28,'b2':30,'out':32,'ws':34}[which]

def make_srd(a, sd, which, off, size):
    p = ptr_of(which)
    if off:
        a.emit(f's_add_u32 s{sd}, s{p}, {off}')
        a.emit(f's_addc_u32 s{sd+1}, s{p+1}, 0')
    else:
        a.emit(f's_mov_b32 s{sd}, s{p}')
        a.emit(f's_mov_b32 s{sd+1}, s{p+1}')
    a.emit(f's_and_b32 s{sd+1}, s{sd+1}, 0xffff')
    a.emit(f's_mov_b32 s{sd+2}, {size}')
    a.emit(f's_mov_b32 s{sd+3}, 0x00020000')

import re as _re
def check_offsets(text):
    for i, l in enumerate(text.split('\n')):
        if 'buffer_' in l and 's_buffer_' not in l:
            m = _re.search(r'offset:(\d+)', l)
            if m and int(m.group(1)) > 4095:
                raise SystemExit(f'buffer offset too large line {i}: {l}')
```

```python
import sys, os, struct
sys.path.insert(0, os.path.join(os.path.dirname(os.path.abspath(__file__)), '..'))
from asmlib import Asm, check_offsets
MB = 1 << 20
WS_O   = 0
WS_X1  = 4 * MB
WS_H   = 8 * MB
WS_ST  = 23 * MB
WS_CS  = 23 * MB + 512 * 1024
WS_TS  = 60 * MB
f2u = lambda f: struct.unpack('<I', struct.pack('<f', f))[0]
ENV = os.environ.get
TS = ENV('TS', '')
DBG = ENV('DBG', '').split(',')
STF = ' sc0 sc1' if ENV('WT', '0') == '1' else ''

KA = {'A_x': 0, 'wqkv': 8, 'wo': 16, 'w1': 32, 'b1': 40, 'w2': 48, 'b2': 56, 'out': 64, 'ws': 80}
P_IN = 16
P_OUT = 32; P_WS = 34
P_XS = 12
PTR = {'A_x': 16, 'wqkv': 18, 'wo': 20, 'w1': 24, 'b1': 26, 'w2': 28, 'b2': 30, 'out': 32, 'ws': 34, 'xs': 12}
SX, SW, SO, SR, SB, ST, SP, SC = 36, 40, 44, 48, 52, 56, 60, 64
S_MT, S_NT, S_WV, S_WM, S_WN = 68, 69, 70, 71, 72
S_KX, S_KW, S_SLOT, S_XD, S_WD, S_HD, S_CNT = 73, 74, 75, 76, 77, 78, 79
S_LAYER = 96; S_TSI = 97; S_T = 98; S_CU = 99; S_XG = 100

KD = '''.section .rodata,"a"
.p2align 6
.amdhsa_kernel {name}
  .amdhsa_next_free_vgpr 256
  .amdhsa_next_free_sgpr 102
  .amdhsa_accum_offset 256
  .amdhsa_group_segment_fixed_size 0
  .amdhsa_kernarg_size 88
  .amdhsa_user_sgpr_count 2
  .amdhsa_user_sgpr_kernarg_segment_ptr 1
  .amdhsa_system_sgpr_workgroup_id_x 1
  .amdhsa_float_denorm_mode_32 3
  .amdhsa_float_denorm_mode_16_64 3
.end_amdhsa_kernel
.text
'''

def srd(a, sd, which, off, size):
    p = PTR[which]
    if off:
        a.emit(f's_add_u32 s{sd}, s{p}, {off}')
        a.emit(f's_addc_u32 s{sd+1}, s{p+1}, 0')
        a.emit(f's_and_b32 s{sd+1}, s{sd+1}, 0xffff')
    else:
        a.emit(f's_mov_b32 s{sd}, s{p}')
        a.emit(f's_and_b32 s{sd+1}, s{p+1}, 0xffff')
    a.emit(f's_mov_b32 s{sd+2}, {size}')
    a.emit(f's_mov_b32 s{sd+3}, 0x00020000')

def stub(a, name, body, layer, tsidx, first):
    a(f'.text\n.globl {name}\n.p2align 8\n.type {name},@function\n{name}:')
    if TS:
        stamp(a, 0, nowait=True)
    a.emit('s_load_dwordx16 s[16:31], s[0:1], 0')
    a.emit('s_load_dwordx2 s[32:33], s[0:1], 64')
    a.emit('s_load_dwordx2 s[34:35], s[0:1], 80')
    a.emit(f's_load_dwordx2 s[12:13], s[0:1], {0 if layer == 0 else 64}')
    a.emit(f's_mov_b32 s{S_LAYER}, {layer}')
    if TS: a.emit(f's_mov_b32 s{S_TSI}, {tsidx}')
    if not first:
        a.emit(f's_branch {body}')

def stamp(a, n, nowait=False):
    if not TS: return
    a.emit(f's_memrealtime s[{80+4*n}:{81+4*n}]')
    a.emit(f's_memtime s[{82+4*n}:{83+4*n}]')
    if not nowait: a.emit('s_waitcnt lgkmcnt(0)')

def stamps_out(a, tag):
    if not TS: return
    a.emit('s_waitcnt vmcnt(0)')
    stamp(a, 3)
    srd(a, SP, 'ws', WS_TS, 1 << 20)
    a.emit('s_lshl_b32 s4, s2, 6')
    a.emit(f's_lshl_b32 s5, s{S_TSI}, 16')
    a.emit('s_add_u32 s4, s4, s5')
    a.emit('v_mov_b32 v1, s4')
    for i in range(16): a.emit(f'v_mov_b32 v{4+i}, s{80+i}')
    a.emit('v_cmp_eq_u32 vcc, 0, v0')
    a.emit('s_and_saveexec_b64 s[6:7], vcc')
    a.emit(f's_cbranch_execz L_tsskip_{tag}')
    for j in range(4):
        a.emit(f'buffer_store_dwordx4 v[{4+4*j}:{7+4*j}], v1, s[{SP}:{SP+3}], 0 offen offset:{16*j}')
    a.emit('s_waitcnt vmcnt(0)')
    a.label(f'L_tsskip_{tag}')

def tile_map(a, LM, endlab):
    a.emit('s_cmp_ge_u32 s2, 256')
    a.emit(f's_cbranch_scc1 {endlab}')
    a.emit('v_lshrrev_b32 v2, 6, v0')
    a.emit('v_and_b32 v1, 63, v0')
    a.emit(f'v_readfirstlane_b32 s{S_WV}, v2')
    a.emit('s_and_b32 s3, s2, 7')
    a.emit(f's_lshr_b32 s{S_CU}, s2, 3')
    a.emit(f's_and_b32 s5, s3, {(1 << (4 - LM)) - 1}')
    a.emit(f's_lshl_b32 s5, s5, {LM}')
    a.emit(f's_and_b32 s6, s{S_CU}, {(1 << LM) - 1}')
    a.emit(f's_add_u32 s{S_MT}, s5, s6')
    a.emit(f's_lshr_b32 s5, s3, {4 - LM}')
    a.emit(f's_lshl_b32 s5, s5, {5 - LM}')
    a.emit(f's_lshr_b32 s6, s{S_CU}, {LM}')
    a.emit(f's_add_u32 s{S_NT}, s5, s6')

def interleave(a, main, side, lead=1, per=1):
    si = 0
    for i, m in enumerate(main):
        a.emit(m)
        if i + 1 >= lead:
            for _ in range(per):
                if si < len(side): a.emit(side[si]); si += 1
    while si < len(side): a.emit(side[si]); si += 1

class Loader:
    VXD = 4; VWD = 8; VXH = 9
    def __init__(self, a, tag, K, lda2, ldw2, panels, colbase, S, STAGE, halo=None, delta=0):
        self.a = a; self.tag = tag; self.K = K; self.lda2 = lda2; self.ldw2 = ldw2; self.panels = panels
        self.colbase = colbase; self.S = S; self.STAGE = STAGE; self.halo = halo; self.delta = delta
        self.NSTEP = K // 64
        self.per = 4 + len(panels) + (1 if halo is not None else 0)
    def setup(self):
        a = self.a
        a.emit(f's_add_u32 s8, s{S_WV}, s{S_NT}')
        a.emit('s_and_b32 s8, s8, 3')
        a.emit(f's_add_u32 s9, s{S_WV}, s{S_MT}')
        a.emit('s_and_b32 s9, s9, 3')
        a.emit(f's_lshl_b32 s{S_XD}, s8, 12')
        a.emit(f's_lshl_b32 s{S_WD}, s9, 10')
        a.emit(f's_add_u32 s{S_WD}, s{S_WD}, 16384')
        a.emit('v_lshrrev_b32 v3, 3, v1')
        a.emit('s_lshl_b32 s10, s8, 5')
        a.emit(f's_lshl_b32 s11, s{S_MT}, 7')
        a.emit('s_add_u32 s10, s10, s11')
        a.emit('v_add_u32 v3, s10, v3')
        a.emit(f'v_mul_u32_u24 v3, {self.lda2}, v3')
        a.emit('v_lshrrev_b32 v2, 4, v1')
        a.emit('v_and_b32 v10, 7, v1')
        for j in range(4):
            d = self.VXD + j
            if j & 1:
                a.emit(f'v_add_u32 v{d}, 4, v2')
                a.emit(f'v_xor_b32 v{d}, v{d}, v10')
            else:
                a.emit(f'v_xor_b32 v{d}, v2, v10')
            a.emit(f'v_lshl_add_u32 v{d}, v{d}, 4, v3')
            if j < 3: a.emit(f'v_add_u32 v3, {8*self.lda2}, v3')
        a.emit('v_lshrrev_b32 v3, 2, v1')
        a.emit('s_lshl_b32 s10, s9, 4')
        a.emit('v_add_u32 v3, s10, v3')
        a.emit(f'v_mul_u32_u24 v3, {self.ldw2}, v3')
        a.emit('v_lshrrev_b32 v2, 5, v1')
        a.emit('v_lshlrev_b32 v2, 1, v2')
        a.emit('v_and_b32 v11, 3, v1')
        a.emit('v_xor_b32 v2, v2, v11')
        a.emit(f'v_lshl_add_u32 v{self.VWD}, v2, 4, v3')
        a.emit(f's_mul_i32 s10, s{S_NT}, {self.colbase}')
        a.emit(f'v_add_u32 v{self.VWD}, s10, v{self.VWD}')
        if self.halo is not None:
            a.emit(f's_and_b32 s10, s{S_WV}, 3')
            a.emit(f's_lshl_b32 s{S_HD}, s10, 9')
            a.emit(f's_add_u32 s{S_HD}, s{S_HD}, {self.halo}')
            a.emit('s_lshl_b32 s14, s10, 2')
            a.emit('s_add_u32 s14, s14, s11')
            a.emit('s_sub_u32 s14, s14, 16')
            a.emit('v_lshrrev_b32 v3, 3, v1')
            a.emit('v_add_u32 v3, s14, v3')
            a.emit('v_max_i32 v3, 0, v3')
            a.emit(f'v_mul_u32_u24 v3, {self.lda2}, v3')
            a.emit('s_lshl_b32 s14, s10, 1')
            a.emit('v_lshrrev_b32 v2, 4, v1')
            a.emit('v_add_u32 v2, s14, v2')
            a.emit('v_and_b32 v2, 7, v2')
            a.emit('v_xor_b32 v2, v2, v10')
            a.emit(f'v_lshl_add_u32 v{self.VXH}, v2, 4, v3')
            a.emit('s_cmp_eq_u32 s10, 0')
            a.emit('s_cselect_b32 s14, 0xffffff00, -1')
            a.emit('s_mov_b32 s15, 0')
        a.emit(f's_mov_b32 s{S_KX}, 0')
        a.emit(f's_mov_b32 s{S_KW}, 0')
        a.emit(f's_mov_b32 s{S_SLOT}, 0')
    def issue(self):
        o = []
        if 'nodma' in DBG: return o
        o.append(f's_add_u32 s3, s{S_SLOT}, s{S_XD}')
        for j in range(4):
            o.append(f's_add_u32 m0, s3, {j*1024}')
            o.append('s_nop 0')
            o.append(f'buffer_load_dwordx4 v{self.VXD+j}, s[{SX}:{SX+3}], s{S_KX} offen lds')
        if self.halo is not None:
            o.append(f's_add_u32 m0, s{S_SLOT}, s{S_HD}')
            o.append('s_mov_b64 exec, s[14:15]')
            o.append(f'buffer_load_dwordx4 v{self.VXH}, s[{SX}:{SX+3}], s{S_KX} offen lds')
            o.append('s_mov_b64 exec, -1')
        o.append(f's_add_u32 s3, s{S_SLOT}, s{S_WD}')
        for pn, goff in enumerate(self.panels):
            o.append(f's_add_u32 m0, s3, {pn*4096}')
            o.append(f's_add_u32 s4, s{S_KW}, {goff}')
            o.append(f'buffer_load_dwordx4 v{self.VWD}, s[{SW}:{SW+3}], s4 offen lds')
        o.append(f's_add_u32 s{S_KX}, s{S_KX}, 128')
        o.append(f's_add_u32 s{S_KW}, s{S_KW}, {64*self.ldw2}')
        o.append(f's_add_u32 s{S_SLOT}, s{S_SLOT}, {self.STAGE}')
        o.append(f's_cmp_eq_u32 s{S_SLOT}, {self.S*self.STAGE}')
        o.append(f's_cselect_b32 s{S_SLOT}, 0, s{S_SLOT}')
        return o
    def run(self, variant='', d=None, per_stage=None, tail_issue=None, ntail_vm=0, final=None):
        a = self.a; per = self.per; N = self.NSTEP
        if d is None: d = self.S - 1
        tag = self.tag + variant
        def iss():
            for x in self.issue(): a.emit(x)
        def wait(n):
            assert n <= 63, n
            a.emit(f's_waitcnt vmcnt({n})' + (' lgkmcnt(0)' if per_stage else ''))
        pre = min(2, d)
        for _ in range(pre): iss()
        wait((pre - 1) * per)
        a.emit('s_barrier')
        for _ in range(pre, d): iss()
        nmain = N - d
        a.emit(f's_mov_b32 s{S_CNT}, {nmain - 1}')
        a.label(f'L_{tag}_ld')
        iss()
        if per_stage: per_stage()
        wait((d - 1) * per)
        a.emit('s_barrier')
        a.emit(f's_sub_u32 s{S_CNT}, s{S_CNT}, 1')
        a.emit(f's_cmp_lg_u32 s{S_CNT}, 0')
        a.emit(f's_cbranch_scc1 L_{tag}_ld')
        iss()
        if tail_issue: tail_issue()
        for i in range(N - 1 - d, N):
            if per_stage: per_stage()
            if i + 1 < N:
                wait((N - 1 - (i + 1)) * per + ntail_vm)
            else:
                if final: final()
            a.emit('s_barrier')

def pf_weights(a, sd, which, size, ldw2, R, sh, L, LMn, tilebytes, NI, vd, row0=0, qkv=False):
    if 'nopf' in DBG: return 0
    srd(a, sd, which, 0, size)
    a.emit(f's_and_b32 s3, s{S_WV}, 3')
    a.emit(f's_mul_i32 s3, s3, {NI * (64 >> sh)}')
    a.emit(f's_mul_i32 s4, s{S_CU}, {R}')
    a.emit('s_add_u32 s3, s3, s4')
    if row0: a.emit(f's_add_u32 s3, s3, {row0}')
    a.emit(f'v_lshrrev_b32 v2, {sh}, v1')
    a.emit('v_add_u32 v2, s3, v2')
    a.emit(f'v_mul_u32_u24 v2, {ldw2}, v2')
    a.emit(f'v_and_b32 v3, {(1 << sh) - 1}, v1')
    if L < (1 << sh): a.emit(f'v_min_u32 v3, {L-1}, v3')
    if qkv:
        a.emit('v_lshrrev_b32 v12, 2, v3')
        a.emit('v_lshl_add_u32 v2, v12, 11, v2')
        a.emit('v_and_b32 v3, 3, v3')
    a.emit('v_lshl_add_u32 v2, v3, 7, v2')
    a.emit('s_and_b32 s3, s2, 7')
    a.emit(f's_lshr_b32 s3, s3, {4 - LMn}')
    a.emit(f's_mul_i32 s3, s3, {(1 << (5 - LMn)) * tilebytes}')
    for i in range(NI):
        a.emit(f'buffer_load_dword v{vd+i}, v2, s[{sd}:{sd+3}], s3 offen')
        if i + 1 < NI: a.emit(f's_add_u32 s3, s3, {(64 >> sh) * ldw2}')
    return NI

_pfc = [0]
def pf_code(a, start, end, vd, forward=True):
    if 'nopfc' in DBG: return 0
    _pfc[0] += 1
    lab = f'L_pfc{_pfc[0]}'
    a.emit('s_getpc_b64 s[4:5]')
    a.label(lab)
    if forward:
        a.emit(f's_add_u32 s4, s4, {start}-{lab}')
        a.emit('s_addc_u32 s5, s5, 0')
    else:
        a.emit(f's_sub_u32 s4, s4, {lab}-{start}')
        a.emit('s_subb_u32 s5, s5, 0')
    a.emit(f's_and_b32 s3, s{S_WV}, 3')
    a.emit('s_lshl_b32 s3, s3, 13')
    a.emit('v_lshl_add_u32 v2, v1, 7, s3')
    a.emit(f'v_min_u32 v2, {end}-{start}-4, v2')
    a.emit(f'global_load_dword v{vd}, v2, s[4:5]')
    return 1
```

```python
from common import *

def gen_gemm64(a, kind, tsidx, side):
    K = 1024 if kind == 'wo' else 3584
    lda2 = K * 2; ldw2 = 2048
    S = int(ENV('S64', '6')); DELTA = int(ENV('DELTA', '2'))
    LM = int(ENV('LM_' + kind.upper(), '2'))
    STAGE = 16384 + 8192
    N = K // 64
    body = f'L_{kind}_body'; end = f'L_{kind}_end'
    VXB, VWB, VXA, VWA, VO = 4, 6, 8, 10, 12
    F = [32, 80]; ACC = 128; RES = 160; BIA = 176
    acc = lambda jn, jm: ACC + (jn * 2 + jm) * 4
    fx = lambda s, ks, jm: F[s] + (ks * 2 + jm) * 4
    fw = lambda s, ks, jn: F[s] + 16 + (ks * 4 + jn) * 4
    a.label(f'L_{kind}_c0')
    stub(a, f'{kind}l0_kernel', body, 0, tsidx, True)
    a.label(body)
    tile_map(a, LM, end)
    a.emit(f's_cmp_ge_u32 s{S_WV}, 4')
    a.emit(f's_cbranch_scc1 L_{kind}_loader')
    a.emit('v_and_b32 v3, 15, v1')
    a.emit('v_lshrrev_b32 v2, 4, v1')
    a.emit(f's_lshl_b32 s8, s{S_MT}, 7')
    a.emit(f's_lshl_b32 s9, s{S_WV}, 5')
    a.emit('s_add_u32 s8, s8, s9')
    a.emit('v_add_u32 v13, s8, v3')
    a.emit(f's_lshl_b32 s10, s{S_NT}, 7')
    a.emit('v_lshl_add_u32 v14, v2, 3, s10')
    a.emit('v_lshl_add_u32 v15, v13, 11, v14')
    a.emit('v_and_b32 v16, 1, v2')
    a.emit('v_lshlrev_b32 v16, 5, v16')
    a.emit('v_lshrrev_b32 v17, 1, v2')
    a.emit('v_lshl_add_u32 v16, v17, 4, v16')
    a.emit('v_add_u32 v16, s10, v16')
    a.emit(f'v_lshl_add_u32 v{VO}, v13, 11, v16')
    a.emit('v_lshl_add_u32 v18, v17, 4, v13')
    a.emit('v_lshlrev_b32 v18, 3, v18')
    a.emit('v_and_b32 v16, 1, v2')
    a.emit('v_lshl_add_u32 v18, v16, 2, v18')
    a.emit(f's_lshl_b32 s10, s{S_NT}, 14')
    a.emit('v_add_u32 v18, s10, v18')
    a.emit('v_lshrrev_b32 v17, 1, v3')
    a.emit(f's_lshl_b32 s8, s{S_WV}, 12')
    for ks in range(2):
        if ks: a.emit(f'v_add_u32 v{VXB+ks}, 4, v2')
        a.emit(f'v_xor_b32 v{VXB+ks}, v{VXB+ks if ks else 2}, v17')
        a.emit(f'v_lshlrev_b32 v{VXB+ks}, 4, v{VXB+ks}')
        a.emit(f'v_lshl_add_u32 v{VXB+ks}, v3, 7, v{VXB+ks}')
        a.emit(f'v_add_u32 v{VXB+ks}, s8, v{VXB+ks}')
    a.emit('v_bfe_u32 v3, v1, 2, 2')
    a.emit('v_lshl_add_u32 v3, v2, 3, v3')
    a.emit('v_lshlrev_b32 v3, 6, v3')
    a.emit('v_and_b32 v17, 3, v1')
    a.emit('v_lshl_add_u32 v3, v17, 3, v3')
    a.emit('v_add_u32 v3, 16384, v3')
    a.emit(f'v_lshl_add_u32 v{VWB}, v16, 5, v3')
    a.emit(f'v_xor_b32 v{VWB+1}, 32, v{VWB}')
    a.emit('s_waitcnt lgkmcnt(0)')
    if kind == 'wo':
        srd(a, SR, 'xs', 0, 4 * MB); srd(a, SO, 'ws', WS_X1, 4 * MB)
    else:
        srd(a, SR, 'ws', WS_X1, 4 * MB); srd(a, SO, 'out', 0, 4 * MB); srd(a, SB, 'b2', 0, 2048)
    srd(a, ST, 'ws', WS_ST, 16 * 16384)
    a.emit(f's_mov_b32 s3, {16*2048}')
    for jm in range(2):
        for jn in range(4):
            r = RES + (jn * 2 + jm) * 2
            a.emit(f'buffer_load_dwordx2 v[{r}:{r+1}], v15, s[{SR}:{SR+3}], {"s3" if jm else "0"} offen offset:{jn*32}')
    if kind == 'w2':
        for jn in range(4):
            a.emit(f'buffer_load_dwordx2 v[{BIA+2*jn}:{BIA+2*jn+1}], v14, s[{SB}:{SB+3}], 0 offen offset:{jn*32}')
    a.emit('s_mov_b32 s11, 0xffff0000')
    a.emit(f's_mov_b32 s{S_SLOT}, 0')
    a.emit('s_waitcnt vmcnt(0)')
    if kind == 'w2':
        for jn in range(4):
            for h in range(2):
                a.emit(f'v_lshlrev_b32 v{184+4*jn+2*h}, 16, v{BIA+2*jn+h}')
                a.emit(f'v_and_b32 v{185+4*jn+2*h}, s11, v{BIA+2*jn+h}')
    for jn in range(4):
        for jm in range(2):
            r = RES + (jn * 2 + jm) * 2; c = acc(jn, jm)
            for h in range(2):
                a.emit(f'v_lshlrev_b32 v{c+2*h}, 16, v{r+h}')
                a.emit(f'v_and_b32 v{c+2*h+1}, s11, v{r+h}')
                if kind == 'w2':
                    a.emit(f'v_pk_add_f32 v[{c+2*h}:{c+2*h+1}], v[{c+2*h}:{c+2*h+1}], v[{184+4*jn+2*h}:{185+4*jn+2*h}]')
    def addr():
        o = [f'v_add_u32 v{VXA+i}, s{S_SLOT}, v{VXB+i}' for i in range(4)]
        o += [f's_add_u32 s{S_SLOT}, s{S_SLOT}, {STAGE}', f's_cmp_eq_u32 s{S_SLOT}, {S*STAGE}', f's_cselect_b32 s{S_SLOT}, 0, s{S_SLOT}']
        return o
    def reads(s):
        o = []
        if 'noread' in DBG: return o
        for ks in range(2):
            for jm in range(2):
                o.append(f'ds_read_b128 v[{fx(s,ks,jm)}:{fx(s,ks,jm)+3}], v{VXA+ks} offset:{jm*2048}')
            for jn in range(4):
                for h in range(2):
                    r = fw(s, ks, jn) + 2 * h
                    o.append(f'ds_read_b64_tr_b16 v[{r}:{r+1}], v{VWA+(jn&1)} offset:{(jn>>1)*4096+ks*2048+h*256}')
        return o
    def mf(s):
        o = []
        if 'nomfma' in DBG: return ['s_nop 0']
        for ks in range(2):
            for jn in range(4):
                for jm in range(2):
                    c = acc(jn, jm)
                    o.append(f'v_mfma_f32_16x16x32_bf16 v[{c}:{c+3}], v[{fw(s,ks,jn)}:{fw(s,ks,jn)+3}], v[{fx(s,ks,jm)}:{fx(s,ks,jm)+3}], v[{c}:{c+3}]')
        return o
    for x in addr(): a.emit(x)
    a.emit('s_barrier')
    stamp(a, 1)
    for x in reads(0): a.emit(x)
    a.emit(f's_mov_b32 s{S_CNT}, {N//2}')
    for x in addr(): a.emit(x)
    a.emit('s_waitcnt lgkmcnt(0)')
    a('.p2align 3')
    a.label(f'L_{kind}_loop')
    for s in range(2):
        a.emit('s_barrier')
        interleave(a, mf(s), reads(1 - s) + addr(), lead=1, per=2)
        if s == 1:
            a.emit(f's_sub_u32 s{S_CNT}, s{S_CNT}, 1')
            a.emit(f's_cmp_lg_u32 s{S_CNT}, 0')
        a.emit('s_waitcnt lgkmcnt(0)')
    a.emit(f's_cbranch_scc1 L_{kind}_loop')
    stamp(a, 2)
    a.emit('s_mov_b32 s11, 0x3f803f80')
    for i in range(4): a.emit(f'v_mov_b32 v{20+i}, 0')
    a.emit(f's_mov_b32 s3, {16*2048}')
    a.emit('s_nop 4')
    D = 32
    for jm in range(2):
        for p in range(2):
            d = D + (jm * 2 + p) * 4
            for q in range(2):
                c = acc(2 * p + q, jm)
                a.emit(f'v_cvt_pk_bf16_f32 v{d+2*q}, v{c}, v{c+1}')
                a.emit(f'v_cvt_pk_bf16_f32 v{d+2*q+1}, v{c+2}, v{c+3}')
            a.emit('s_nop 1')
            a.emit(f'v_permlane16_swap_b32 v{d}, v{d+2}')
            a.emit(f'v_permlane16_swap_b32 v{d+1}, v{d+3}')
            a.emit(f'buffer_store_dwordx4 v[{d}:{d+3}], v{VO}, s[{SO}:{SO+3}], {"s3" if jm else "0"} offen offset:{p*64}{STF}')
    for jm in range(2):
        for i in range(8):
            d = D + jm * 8 + i
            a.emit(f'v_dot2_f32_bf16 v{20+jm}, v{d}, s11, v{20+jm}')
            a.emit(f'v_dot2_f32_bf16 v{22+jm}, v{d}, v{d}, v{22+jm}')
    a.emit('s_nop 2')
    a.emit('v_permlane32_swap_b32 v20, v21')
    a.emit('v_permlane32_swap_b32 v22, v23')
    a.emit('v_add_f32 v20, v20, v21')
    a.emit('v_add_f32 v22, v22, v23')
    a.emit('s_nop 1')
    a.emit('v_permlane16_swap_b32 v20, v22')
    a.emit('v_add_f32 v20, v20, v22')
    a.emit(f'buffer_store_dword v20, v18, s[{ST}:{ST+3}], 0 offen{STF}')
    stamps_out(a, kind)
    a.emit('s_endpgm')
    a.label(f'L_{kind}_loader')
    L = Loader(a, kind, K, lda2, ldw2, [0, 64], 128, S, STAGE)
    L.setup()
    a.emit('s_waitcnt lgkmcnt(0)')
    if kind == 'wo':
        srd(a, SX, 'ws', WS_O, 4 * MB); srd(a, SW, 'wo', 0, 2 * MB)
    else:
        srd(a, SX, 'ws', WS_H, 2048 * 7168); srd(a, SW, 'w2', 0, 3584 * 2048)
    if DELTA:
        a.emit(f's_cmp_eq_u32 s{S_WV}, 4')
        a.emit(f's_cbranch_scc1 L_{kind}_lead')
        L.run('f', d=S - 1 - DELTA)
        a.emit(f's_branch L_{kind}_side')
        a.label(f'L_{kind}_lead')
    L.run('l', d=S - 1)
    a.label(f'L_{kind}_side')
    side(a)
    a.label(end)
    a.emit('s_endpgm')
    a(KD.format(name=f'{kind}l0_kernel'))
    stub(a, f'{kind}l1_kernel', body, 1, tsidx + 4, False)
    a.label(f'L_{kind}_c1')
    a(KD.format(name=f'{kind}l1_kernel'))
    return S * STAGE
```

```python
from common import *

def big_loop(a, tag, N, S, STAGE, naddr, VB, VA, reads, mf):
    def addr():
        o = [f'v_add_u32 v{VA+i}, s{S_SLOT}, v{VB+i}' for i in range(naddr)]
        o += [f's_add_u32 s{S_SLOT}, s{S_SLOT}, {STAGE}', f's_cmp_eq_u32 s{S_SLOT}, {S*STAGE}', f's_cselect_b32 s{S_SLOT}, 0, s{S_SLOT}']
        return o
    a.emit(f's_mov_b32 s{S_SLOT}, 0')
    for x in addr(): a.emit(x)
    a.emit(f's_mov_b32 s{S_CNT}, {N}')
    a.emit('s_barrier')
    stamp(a, 1)
    for x in reads(0, 0): a.emit(x)
    a.emit('s_waitcnt lgkmcnt(0)')
    a('.p2align 3')
    a.label(f'L_{tag}_loop')
    interleave(a, mf(0), reads(1, 1) + addr(), lead=1, per=1)
    a.emit('s_waitcnt lgkmcnt(0)')
    a.emit('s_barrier')
    interleave(a, mf(1), reads(0, 0) + [f's_sub_u32 s{S_CNT}, s{S_CNT}, 1', f's_cmp_lg_u32 s{S_CNT}, 0'], lead=1, per=1)
    a.emit('s_waitcnt lgkmcnt(0)')
    a.emit(f's_cbranch_scc1 L_{tag}_loop')
    stamp(a, 2)

def stats_loads(a, vd, halo):
    a.emit(f's_and_b32 s3, s{S_WV}, 3')
    a.emit(f's_lshl_b32 s4, s{S_MT}, 7')
    a.emit('s_lshl_b32 s5, s3, 6')
    a.emit('s_add_u32 s5, s5, s4')
    a.emit('v_add_u32 v2, s5, v1')
    a.emit('s_sub_u32 s4, s4, 16')
    a.emit('v_and_b32 v3, 15, v1')
    a.emit('v_add_u32 v3, s4, v3')
    a.emit('v_max_i32 v3, 0, v3')
    a.emit('s_cmp_ge_u32 s3, 2')
    a.emit('s_cselect_b64 vcc, -1, 0')
    a.emit('v_cndmask_b32 v2, v2, v3, vcc')
    a.emit('v_lshlrev_b32 v2, 3, v2')
    a.emit('s_mov_b32 s3, 0')
    for j in range(16):
        a.emit(f'buffer_load_dwordx2 v[{vd+2*j}:{vd+2*j+1}], v2, s[{ST}:{ST+3}], s3 offen')
        if j < 15: a.emit('s_add_u32 s3, s3, 16384')
    return 16

def stats_finish(a, vs):
    a.emit(f'v_mul_f32 v{vs}, 0x3a800000, v{vs}')
    a.emit(f'v_mul_f32 v{vs+1}, 0x3a800000, v{vs+1}')
    a.emit(f'v_fma_f32 v{vs+1}, -v{vs}, v{vs}, v{vs+1}')
    a.emit(f'v_max_f32 v{vs+1}, 0, v{vs+1}')
    a.emit(f'v_add_f32 v{vs+1}, 0x3727c5ac, v{vs+1}')
    a.emit(f'v_rsq_f32 v{vs+1}, v{vs+1}')
    a.emit('s_nop 0')

def stats_reduce_store(a, vd, LST):
    for j in range(1, 8):
        a.emit(f'v_add_f32 v{vd}, v{vd}, v{vd+2*j}')
        a.emit(f'v_add_f32 v{vd+1}, v{vd+1}, v{vd+2*j+1}')
        a.emit(f'v_add_f32 v{vd+16}, v{vd+16}, v{vd+16+2*j}')
        a.emit(f'v_add_f32 v{vd+17}, v{vd+17}, v{vd+17+2*j}')
    a.emit(f'v_add_f32 v{vd}, v{vd}, v{vd+16}')
    a.emit(f'v_add_f32 v{vd+1}, v{vd+1}, v{vd+17}')
    stats_finish(a, vd)
    a.emit(f's_and_b32 s3, s{S_WV}, 3')
    a.emit('s_lshl_b32 s5, s3, 6')
    a.emit('s_add_u32 s5, s5, 16')
    a.emit('v_add_u32 v2, s5, v1')
    a.emit('v_and_b32 v3, 15, v1')
    a.emit('s_cmp_ge_u32 s3, 2')
    a.emit('s_cselect_b64 vcc, -1, 0')
    a.emit('v_cndmask_b32 v2, v2, v3, vcc')
    a.emit('v_lshlrev_b32 v2, 2, v2')
    a.emit(f'v_add_u32 v2, {LST}, v2')
    a.emit(f'ds_write2_b32 v2, v{vd}, v{vd+1} offset0:0 offset1:160')

def gen_w1(a, tsidx, side, cs=(16, 16384, 0)):
    kind = 'w1'
    K = 1024; lda2 = 2048; ldw2 = 7168; ldo2 = 7168
    S = 3; LM = int(ENV('LM_W1', '3'))
    STAGE = 16384 + 7 * 4096
    LST = S * STAGE
    LCS = LST + 1280
    N = 16
    body = f'L_{kind}_body'; end = f'L_{kind}_end'
    VB, VA, VO = 4, 8, 12
    F = [32, 80]; ACC = 128
    acc = lambda jn, jm: ACC + (jn * 4 + jm) * 4
    fx = lambda s, jm: F[s] + jm * 4
    fw = lambda s, jn: F[s] + 16 + jn * 4
    a.label(f'L_{kind}_c0')
    stub(a, f'{kind}l0_kernel', body, 0, tsidx, True)
    a.label(body)
    tile_map(a, LM, end)
    a.emit(f's_cmp_ge_u32 s{S_WV}, 4')
    a.emit(f's_cbranch_scc1 L_{kind}_loader')
    a.emit(f's_and_b32 s{S_WM}, s{S_WV}, 1')
    a.emit(f's_lshr_b32 s{S_WN}, s{S_WV}, 1')
    a.emit('v_and_b32 v3, 15, v1')
    a.emit('v_lshrrev_b32 v2, 4, v1')
    a.emit('v_lshrrev_b32 v17, 1, v3')
    a.emit(f's_lshl_b32 s8, s{S_WM}, 13')
    for ks in range(2):
        if ks: a.emit(f'v_add_u32 v{VB+ks}, 4, v2')
        a.emit(f'v_xor_b32 v{VB+ks}, v{VB+ks if ks else 2}, v17')
        a.emit(f'v_lshlrev_b32 v{VB+ks}, 4, v{VB+ks}')
        a.emit(f'v_lshl_add_u32 v{VB+ks}, v3, 7, v{VB+ks}')
        a.emit(f'v_add_u32 v{VB+ks}, s8, v{VB+ks}')
    a.emit('v_bfe_u32 v13, v1, 2, 2')
    a.emit('v_lshl_add_u32 v13, v2, 3, v13')
    a.emit('v_lshlrev_b32 v13, 6, v13')
    a.emit('v_and_b32 v17, 3, v1')
    a.emit('v_lshl_add_u32 v13, v17, 3, v13')
    a.emit('v_and_b32 v16, 1, v2')
    a.emit(f'v_xor_b32 v16, s{S_WN}, v16')
    a.emit('v_lshl_add_u32 v13, v16, 5, v13')
    a.emit(f's_mul_i32 s8, s{S_WN}, {3*4096}')
    a.emit('s_add_u32 s8, s8, 16384')
    a.emit(f'v_add_u32 v{VB+2}, s8, v13')
    a.emit('v_xor_b32 v13, 32, v13')
    a.emit(f's_lshl_b32 s8, s{S_WN}, 14')
    a.emit('s_add_u32 s8, s8, 16384')
    a.emit(f'v_add_u32 v{VB+3}, s8, v13')
    a.emit(f's_lshl_b32 s8, s{S_MT}, 7')
    a.emit(f's_lshl_b32 s9, s{S_WM}, 6')
    a.emit('s_add_u32 s8, s8, s9')
    a.emit('v_add_u32 v13, s8, v3')
    a.emit(f's_mul_i32 s10, s{S_NT}, 448')
    a.emit(f's_mul_i32 s9, s{S_WN}, 224')
    a.emit('s_add_u32 s10, s10, s9')
    a.emit('v_and_b32 v16, 1, v2')
    a.emit('v_lshrrev_b32 v17, 1, v2')
    a.emit(f'v_mul_u32_u24 v14, {ldo2}, v13')
    a.emit('v_lshl_add_u32 v14, v17, 4, v14')
    a.emit('v_add_u32 v14, s10, v14')
    a.emit(f'v_lshl_add_u32 v{VO}, v16, 5, v14')
    a.emit(f'v_mul_u32_u24 v16, {16*ldo2}, v16')
    a.emit(f'v_add_u32 v{VO+1}, v16, v14')
    a.emit(f's_lshl_b32 s9, s{S_WM}, 8')
    a.emit(f's_add_u32 s9, s9, {LST + 64}')
    a.emit('v_lshl_add_u32 v14, v3, 2, s9')
    a.emit(f's_mul_i32 s9, s{S_WN}, 448')
    a.emit(f's_add_u32 s9, s9, {LCS}')
    a.emit('v_lshl_add_u32 v15, v2, 4, s9')
    for i in range(112): a.emit(f'v_mov_b32 v{ACC+i}, 0')
    a.emit('s_waitcnt lgkmcnt(0)')
    srd(a, SO, 'ws', WS_H, 2048 * 7168)
    def reads(s, ks):
        o = []
        if 'noread' in DBG: return o
        for jm in range(4):
            o.append(f'ds_read_b128 v[{fx(s,jm)}:{fx(s,jm)+3}], v{VA+ks} offset:{jm*2048}')
        for jn in range(7):
            for h in range(2):
                r = fw(s, jn) + 2 * h
                o.append(f'ds_read_b64_tr_b16 v[{r}:{r+1}], v{VA+2+(jn&1)} offset:{(jn>>1)*4096+ks*2048+h*256}')
        return o
    def mf(s):
        o = []
        if 'nomfma' in DBG: return ['s_nop 0']
        for jn in range(7):
            for jm in range(4):
                c = acc(jn, jm)
                o.append(f'v_mfma_f32_16x16x32_bf16 v[{c}:{c+3}], v[{fw(s,jn)}:{fw(s,jn)+3}], v[{fx(s,jm)}:{fx(s,jm)+3}], v[{c}:{c+3}]')
        return o
    big_loop(a, kind, N, S, STAGE, 4, VB, VA, reads, mf)
    CS = 32; BI = 60; STT = 88; CK = 96; T = 100; D = 108
    for jm in range(4):
        a.emit(f'ds_read2_b32 v[{STT+2*jm}:{STT+2*jm+1}], v14 offset0:{16*jm} offset1:{160+16*jm}')
    for jn in range(7):
        a.emit(f'ds_read_b128 v[{CS+4*jn}:{CS+4*jn+3}], v15 offset:{jn*64}')
        a.emit(f'ds_read_b128 v[{BI+4*jn}:{BI+4*jn+3}], v15 offset:{1024+jn*64}')
    c0 = -2.0 * 0.7978845608028654 * 1.4426950408889634
    c1 = c0 * 0.044715
    a.emit(f'v_mov_b32 v{CK}, {f2u(c0):#x}')
    a.emit(f'v_mov_b32 v{CK+1}, {f2u(c1):#x}')
    a.emit(f'v_mov_b32 v{CK+2}, 1.0')
    a.emit('s_waitcnt lgkmcnt(0)')
    for jm in range(4):
        a.emit(f'v_mul_f32 v{STT+2*jm}, v{STT+2*jm}, v{STT+2*jm+1}')
    def tile_math(jn, jm, d):
        c = acc(jn, jm)
        seqs = []
        ST2 = f'v[{STT+2*jm}:{STT+2*jm+1}]'
        for q in range(2):
            x = c + 2 * q; t = T + 2 * q + 4 * (jn & 1)
            X = f'v[{x}:{x+1}]'; TT = f'v[{t}:{t+1}]'
            seqs.append([
              f'v_pk_fma_f32 {TT}, v[{CS+4*jn+2*q}:{CS+4*jn+2*q+1}], {ST2}, v[{BI+4*jn+2*q}:{BI+4*jn+2*q+1}] op_sel:[0,0,0] op_sel_hi:[1,0,1] neg_lo:[0,1,0] neg_hi:[0,1,0]',
              f'v_pk_fma_f32 {X}, {X}, {ST2}, {TT} op_sel:[0,1,0] op_sel_hi:[1,1,1]',
              f'v_pk_mul_f32 {TT}, {X}, {X}',
              f'v_pk_fma_f32 {TT}, {TT}, v[{CK}:{CK+1}], v[{CK}:{CK+1}] op_sel:[0,1,0] op_sel_hi:[1,1,0]',
              f'v_pk_mul_f32 {TT}, {TT}, {X}',
              f'v_exp_f32 v{t}, v{t}\n  v_exp_f32 v{t+1}, v{t+1}',
              f'v_pk_add_f32 {TT}, {TT}, v[{CK+2}:{CK+3}] op_sel_hi:[1,0]',
              f'v_rcp_f32 v{t}, v{t}\n  v_rcp_f32 v{t+1}, v{t+1}',
              f'v_pk_mul_f32 {X}, {X}, {TT}',
              f'v_cvt_pk_bf16_f32 v{d+q}, v{x}, v{x+1}'])
        for ia, ib in zip(*seqs):
            a.emit(ia); a.emit(ib)
    cnt = [0]
    def pair(t0, t1, vo, soff):
        d = D + 4 * (cnt[0] % 4); cnt[0] += 1
        tile_math(*t0, d); tile_math(*t1, d + 2)
        a.emit(f's_mov_b32 s3, {soff}')
        a.emit('s_nop 0')
        a.emit(f'v_permlane16_swap_b32 v{d}, v{d+2}')
        a.emit(f'v_permlane16_swap_b32 v{d+1}, v{d+3}')
        a.emit(f'buffer_store_dwordx4 v[{d}:{d+3}], v{vo}, s[{SO}:{SO+3}], s3 offen{STF}')
    for jm in range(4):
        for p in range(3):
            pair((2 * p, jm), (2 * p + 1, jm), VO, jm * 16 * ldo2 + p * 64)
        if jm & 1:
            pair((6, jm - 1), (6, jm), VO + 1, (jm - 1) * 16 * ldo2 + 192)
    stamps_out(a, kind)
    a.emit('s_endpgm')
    a.label(f'L_{kind}_loader')
    L = Loader(a, kind, K, lda2, ldw2, [64 * i for i in range(7)], 448, S, STAGE)
    L.setup()
    a.emit('s_waitcnt lgkmcnt(0)')
    srd(a, SX, 'ws', WS_X1, 4 * MB); srd(a, SW, 'w1', 0, 1024 * 7168)
    srd(a, ST, 'ws', WS_ST, 16 * 16384); srd(a, SC, 'ws', WS_CS, 16 * 16384); srd(a, SB, 'b1', 0, 7168)
    def tail():
        stats_loads(a, 32, False)
        a.emit(f's_mul_i32 s4, s{S_NT}, 224')
        a.emit('s_sub_u32 s4, s4, 256')
        a.emit('v_add_u32 v3, s4, v0')
        a.emit('v_lshlrev_b32 v2, 2, v3')
        a.emit('v_lshlrev_b32 v3, 1, v3')
        a.emit(f's_mov_b32 s3, {cs[2]}')
        for j in range(16):
            if j < cs[0]:
                a.emit(f'buffer_load_dword v{64+j}, v2, s[{SC}:{SC+3}], s3 offen')
                if j < cs[0] - 1: a.emit(f's_add_u32 s3, s3, {cs[1]}')
            else:
                a.emit(f'v_mov_b32 v{64+j}, 0')
        a.emit(f'buffer_load_ushort v80, v3, s[{SB}:{SB+3}], 0 offen')
    def final():
        a.emit('s_waitcnt vmcnt(0)')
        stats_reduce_store(a, 32, LST)
        for j in range(8): a.emit(f'v_add_f32 v{64+j}, v{64+j}, v{72+j}')
        for j in range(4): a.emit(f'v_add_f32 v{64+j}, v{64+j}, v{68+j}')
        a.emit('v_add_f32 v64, v64, v65')
        a.emit('v_add_f32 v66, v66, v67')
        a.emit('v_add_f32 v64, v64, v66')
        a.emit('v_lshlrev_b32 v80, 16, v80')
        a.emit('v_lshlrev_b32 v2, 2, v0')
        a.emit(f'v_add_u32 v2, {LCS - 1024}, v2')
        a.emit('ds_write_b32 v2, v64')
        a.emit('ds_write_b32 v2, v80 offset:1024')
        a.emit('s_waitcnt lgkmcnt(0)')
    L.run(tail_issue=tail, ntail_vm=17 + cs[0], final=final)
    side(a)
    a.label(end)
    a.emit('s_endpgm')
    a(KD.format(name=f'{kind}l0_kernel'))
    stub(a, f'{kind}l1_kernel', body, 1, tsidx + 4, False)
    a.label(f'L_{kind}_c1')
    a(KD.format(name=f'{kind}l1_kernel'))
    return LCS + 2048
```

```python
import sys, os, struct
sys.path.insert(0, os.path.dirname(__file__))
from asmlib import *
from qkvattn7 import gen_qkv_attn

S_, D_, F_, H_ = 2048, 1024, 3584, 32
MB = 1 << 20
WS_QKV  = 4 * MB
WS_O    = 16 * MB
WS_X1   = 20 * MB
WS_H    = 24 * MB
WS_X2   = 40 * MB
WS_X3   = 44 * MB
WS_ST   = 48 * MB
WS_CS   = 49 * MB
CS_W1   = 16384
TSIDX = [0]
f2u = lambda f: struct.unpack('<I', struct.pack('<f', f))[0]

def wave_reduce_add(a, vv, vt):
    dpp = 'row_mask:0xf bank_mask:0xf'
    a.emit('s_nop 1')
    a.emit(f'v_add_f32_dpp v{vt}, v{vv}, v{vv} quad_perm:[1,0,3,2] {dpp}')
    a.emit('s_nop 1')
    a.emit(f'v_add_f32_dpp v{vv}, v{vt}, v{vt} quad_perm:[2,3,0,1] {dpp}')
    a.emit('s_nop 1')
    a.emit(f'v_add_f32_dpp v{vt}, v{vv}, v{vv} row_half_mirror {dpp}')
    a.emit('s_nop 1')
    a.emit(f'v_add_f32_dpp v{vv}, v{vt}, v{vt} row_mirror {dpp}')
    a.emit(f'v_mov_b32 v{vt}, v{vv}')
    a.emit('s_nop 1')
    a.emit(f'v_permlane16_swap_b32 v{vv}, v{vt}')
    a.emit(f'v_add_f32 v{vv}, v{vv}, v{vt}')
    a.emit(f'v_mov_b32 v{vt}, v{vv}')
    a.emit('s_nop 1')
    a.emit(f'v_permlane32_swap_b32 v{vv}, v{vt}')
    a.emit(f'v_add_f32 v{vv}, v{vv}, v{vt}')

def gen_prep(a, name):
    kernel_begin(a, name)
    a.emit('s_cmp_ge_u32 s2, 688')
    a.emit(f's_cbranch_scc1 L_{name}_end')
    load_kernargs(a)
    a.emit('v_and_b32 v1, 63, v0')
    a.emit('v_lshrrev_b32 v2, 6, v0')
    a.emit('s_cmp_lt_u32 s2, 416')
    a.emit(f's_cbranch_scc1 L_{name}_cs')
    a.emit('s_cmp_ge_u32 s2, 544')
    a.emit(f's_cbranch_scc1 L_{name}_pf')
    a.emit('s_sub_u32 s3, s2, 416')
    a.emit('s_lshl_b32 s3, s3, 4')
    a.emit('v_lshl_add_u32 v2, v2, 2, s3')
    a.emit('v_lshlrev_b32 v3, 11, v2')
    a.emit('v_lshl_add_u32 v3, v1, 5, v3')
    a.emit('s_waitcnt lgkmcnt(0)')
    make_srd(a, 36, 'A_x', 0, S_*D_*2)
    make_srd(a, 40, 'ws', WS_ST, 2048*128)
    for r in range(4):
        a.emit(f's_movk_i32 s5, {r*2048}')
        a.emit(f'buffer_load_dwordx4 v[{8+8*r}:{11+8*r}], v3, s[36:39], s5 offen')
        a.emit(f'buffer_load_dwordx4 v[{12+8*r}:{15+8*r}], v3, s[36:39], s5 offen offset:16')
    a.emit('s_mov_b32 s4, 0xffff0000')
    a.emit('s_waitcnt vmcnt(0)')
    for r in range(4):
        a.emit('v_mov_b32 v48, 0')
        a.emit('v_mov_b32 v49, 0')
        for i in range(8):
            a.emit(f'v_lshlrev_b32 v50, 16, v{8+8*r+i}')
            a.emit(f'v_and_b32 v51, s4, v{8+8*r+i}')
            a.emit('v_add_f32 v48, v48, v50')
            a.emit('v_fmac_f32 v49, v50, v50')
            a.emit('v_add_f32 v48, v48, v51')
            a.emit('v_fmac_f32 v49, v51, v51')
        wave_reduce_add(a, 48, 52)
        wave_reduce_add(a, 49, 52)
        a.emit('v_cmp_eq_u32 vcc, 0, v1')
        a.emit('v_cndmask_b32 v53, 0, v48, vcc')
        a.emit('v_cmp_eq_u32 vcc, 1, v1')
        a.emit('v_cndmask_b32 v53, v53, v49, vcc')
        a.emit('v_lshlrev_b32 v54, 3, v2')
        a.emit(f'v_add_u32 v54, {r*8}, v54')
        a.emit('v_lshrrev_b32 v55, 1, v1')
        a.emit('v_lshl_add_u32 v54, v55, 14, v54')
        a.emit('v_and_b32 v55, 1, v1')
        a.emit('v_lshl_add_u32 v54, v55, 2, v54')
        a.emit('v_cmp_gt_u32 vcc, 32, v1')
        a.emit('s_and_saveexec_b64 s[6:7], vcc')
        a.emit('buffer_store_dword v53, v54, s[40:43], 0 offen')
        a.emit('s_mov_b64 exec, s[6:7]')
    a.emit(f's_branch L_{name}_end')
    a.label(f'L_{name}_pf')
    a.emit('s_waitcnt lgkmcnt(0)')
    a.emit('s_sub_u32 s3, s2, 544')
    a.emit('s_lshr_b32 s3, s3, 3')
    a.emit('s_cmp_ge_u32 s3, 14')
    a.emit(f's_cbranch_scc1 L_{name}_pf1')
    make_srd(a, 36, 'w2', 0, 3584*1024*2)
    a.emit(f's_branch L_{name}_pf2')
    a.label(f'L_{name}_pf1')
    a.emit('s_sub_u32 s3, s3, 14')
    make_srd(a, 36, 'wo', 0, 1024*1024*2)
    a.label(f'L_{name}_pf2')
    a.emit('s_lshl_b32 s3, s3, 19')
    a.emit('s_and_b32 s4, s2, 7')
    a.emit('s_lshl_b32 s4, s4, 9')
    a.emit('s_add_u32 s3, s3, s4')
    a.emit('v_lshrrev_b32 v3, 5, v1')
    a.emit('v_lshl_add_u32 v3, v2, 5, v3')
    a.emit('v_lshlrev_b32 v3, 12, v3')
    a.emit('v_and_b32 v4, 31, v1')
    a.emit('v_lshl_add_u32 v3, v4, 4, v3')
    a.emit('v_add_u32 v3, s3, v3')
    for j in range(16):
        a.emit(f's_mov_b32 s5, {j*8192}')
        a.emit(f'buffer_load_dwordx4 v[{8+4*j}:{11+4*j}], v3, s[36:39], s5 offen')
    a.emit('s_waitcnt vmcnt(0)')
    a.emit(f's_branch L_{name}_end')
    a.label(f'L_{name}_cs')
    a.emit('s_waitcnt lgkmcnt(0)')
    a.emit('s_and_b32 s13, s2, 3')
    a.emit('s_lshr_b32 s3, s2, 2')
    a.emit('s_cmp_ge_u32 s3, 48')
    a.emit(f's_cbranch_scc1 L_{name}_cs1')
    make_srd(a, 36, 'wqkv', 0, 1024*3072*2)
    a.emit('s_movk_i32 s8, 6144')
    a.emit('s_mov_b32 s9, 0')
    a.emit(f's_branch L_{name}_cs2')
    a.label(f'L_{name}_cs1')
    a.emit('s_sub_u32 s3, s3, 48')
    make_srd(a, 36, 'w1', 0, 1024*3584*2)
    a.emit('s_movk_i32 s8, 7168')
    a.emit(f's_mov_b32 s9, {CS_W1}')
    a.label(f'L_{name}_cs2')
    make_srd(a, 40, 'ws', WS_CS, 131072)
    a.emit('s_lshl_b32 s10, s13, 15')
    a.emit('s_add_u32 s9, s9, s10')
    a.emit('v_lshrrev_b32 v3, 3, v1')
    a.emit('v_lshl_add_u32 v3, v2, 3, v3')
    a.emit('s_lshl_b32 s10, s13, 8')
    a.emit('v_add_u32 v3, s10, v3')
    a.emit('v_mul_lo_u32 v3, v3, s8')
    a.emit('v_and_b32 v4, 7, v1')
    a.emit('v_lshl_add_u32 v3, v4, 4, v3')
    a.emit('s_lshl_b32 s10, s3, 7')
    a.emit('v_add_u32 v3, s10, v3')
    a.emit('s_lshl_b32 s11, s8, 5')
    a.emit('s_mov_b32 s12, 0')
    for j in range(8):
        a.emit(f'buffer_load_dwordx4 v[{8+4*j}:{11+4*j}], v3, s[36:39], s12 offen')
        a.emit('s_add_u32 s12, s12, s11')
    for i in range(8):
        a.emit(f'v_mov_b32 v{140+i}, 0')
    a.emit('s_mov_b32 s4, 0xffff0000')
    for j in range(8):
        a.emit(f's_waitcnt vmcnt({7-j})')
        for i in range(4):
            a.emit(f'v_lshlrev_b32 v150, 16, v{8+4*j+i}')
            a.emit(f'v_and_b32 v151, s4, v{8+4*j+i}')
            a.emit(f'v_add_f32 v{140+2*i}, v{140+2*i}, v150')
            a.emit(f'v_add_f32 v{141+2*i}, v{141+2*i}, v151')
    dpp = 'row_mask:0xf bank_mask:0xf'
    for i in range(8):
        a.emit('s_nop 1')
        a.emit(f'v_add_f32_dpp v{140+i}, v{140+i}, v{140+i} row_ror:8 {dpp}')
        a.emit(f'v_mov_b32 v152, v{140+i}')
        a.emit('s_nop 1')
        a.emit(f'v_permlane16_swap_b32 v{140+i}, v152')
        a.emit(f'v_add_f32 v{140+i}, v{140+i}, v152')
        a.emit(f'v_mov_b32 v152, v{140+i}')
        a.emit('s_nop 1')
        a.emit(f'v_permlane32_swap_b32 v{140+i}, v152')
        a.emit(f'v_add_f32 v{140+i}, v{140+i}, v152')
    a.emit('v_lshlrev_b32 v5, 5, v4')
    a.emit('v_lshl_add_u32 v5, v2, 8, v5')
    a.emit('ds_write_b128 v5, v[140:143]')
    a.emit('ds_write_b128 v5, v[144:147] offset:16')
    a.emit('s_waitcnt lgkmcnt(0)')
    a.emit('s_barrier')
    a.emit('v_lshlrev_b32 v5, 5, v4')
    for w in range(4):
        a.emit(f'ds_read_b128 v[{8+8*w}:{11+8*w}], v5 offset:{w*256}')
        a.emit(f'ds_read_b128 v[{12+8*w}:{15+8*w}], v5 offset:{w*256+16}')
    a.emit('s_waitcnt lgkmcnt(0)')
    for i in range(8):
        a.emit(f'v_add_f32 v{8+i}, v{8+i}, v{16+i}')
        a.emit(f'v_add_f32 v{24+i}, v{24+i}, v{32+i}')
        a.emit(f'v_add_f32 v{8+i}, v{8+i}, v{24+i}')
    a.emit('s_lshl_b32 s10, s3, 8')
    a.emit('s_add_u32 s10, s10, s9')
    a.emit('v_lshlrev_b32 v5, 5, v4')
    a.emit('v_add_u32 v5, s10, v5')
    a.emit('v_cmp_gt_u32 vcc, 8, v0')
    a.emit('s_and_saveexec_b64 s[6:7], vcc')
    a.emit('buffer_store_dwordx4 v[8:11], v5, s[40:43], 0 offen')
    a.emit('buffer_store_dwordx4 v[12:15], v5, s[40:43], 0 offen offset:16')
    a.emit('s_mov_b64 exec, s[6:7]')
    a.label(f'L_{name}_end')
    kernel_end(a, name, 160)

def round_bf16(a, vd, vs, vt):
    a.emit(f'v_cvt_pk_bf16_f32 v{vt}, v{vs}, v{vs}')
    a.emit(f'v_lshlrev_b32 v{vd}, 16, v{vt}')

def gen_attn(a, name):
    kernel_begin(a, name)
    a.emit('s_cmp_ge_u32 s2, 256')
    a.emit(f's_cbranch_scc1 L_{name}_end')
    load_kernargs(a)
    a.emit('v_and_b32 v1, 31, v0')
    a.emit('v_lshrrev_b32 v2, 5, v0')
    a.emit('s_lshl_b32 s3, s2, 3')
    a.emit('v_add_u32 v3, s3, v2')
    a.emit('v_lshlrev_b32 v4, 6, v1')
    a.emit('s_movk_i32 s5, 6144')
    a.emit('v_mul_lo_u32 v2, v3, s5')
    a.emit('v_add_u32 v4, v4, v2')
    for w in range(8):
        a.emit(f'v_subrev_u32 v2, {2*w}, v3')
        a.emit('v_max_i32 v2, 0, v2')
        a.emit('v_mul_lo_u32 v2, v2, s5')
        a.emit(f'v_lshl_add_u32 v{5+w}, v1, 6, v2')
    a.emit('v_lshlrev_b32 v13, 11, v3')
    a.emit('v_lshl_add_u32 v13, v1, 6, v13')
    a.emit('s_waitcnt lgkmcnt(0)')
    make_srd(a, 36, 'ws', WS_QKV, S_*3*D_*2)
    make_srd(a, 40, 'ws', WS_O, S_*D_*2)
    a.emit('s_movk_i32 s11, 0x1000')
    for j in range(4):
        a.emit(f'buffer_load_dwordx4 v[{16+4*j}:{19+4*j}], v4, s[36:39], 0 offen offset:{16*j}')
    for w in range(8):
        for j in range(4):
            a.emit(f'buffer_load_dwordx4 v[{32+16*w+4*j}:{35+16*w+4*j}], v{5+w}, s[36:39], 0 offen offset:{2048+16*j}')
    for w in range(8):
        a.emit(f'v_mov_b32 v{160+w}, 0')
    a.emit('s_waitcnt vmcnt(0)')
    for i in range(16):
        for w in range(8):
            a.emit(f'v_dot2_f32_bf16 v{160+w}, v{16+i}, v{32+16*w+i}, v{160+w}')
    a.emit('s_nop 3')
    for w in range(8):
        for j in range(4):
            a.emit(f'buffer_load_dwordx4 v[{32+16*w+4*j}:{35+16*w+4*j}], v{5+w}, s[36:39], s11 offen offset:{16*j}')
    a.emit('s_mov_b32 s6, 0x3e3504f3')
    a.emit('s_mov_b32 s7, 0xce6e6b28')
    for w in range(8):
        round_bf16(a, 160+w, 160+w, 1)
        a.emit(f'v_mul_f32 v{160+w}, s6, v{160+w}')
        round_bf16(a, 160+w, 160+w, 1)
        if w > 0:
            a.emit(f'v_cmp_gt_i32 vcc, {2*w}, v3')
            a.emit('v_mov_b32 v2, s7')
            a.emit(f'v_cndmask_b32 v{160+w}, v{160+w}, v2, vcc')
    a.emit('v_max_f32 v168, v160, v161')
    for w in range(2, 8):
        a.emit(f'v_max_f32 v168, v168, v{160+w}')
    a.emit('s_mov_b32 s8, 0x3fb8aa3b')
    for w in range(8):
        a.emit(f'v_sub_f32 v{160+w}, v{160+w}, v168')
        a.emit(f'v_mul_f32 v{160+w}, s8, v{160+w}')
        a.emit(f'v_exp_f32 v{160+w}, v{160+w}')
    a.emit('s_nop 0')
    a.emit('v_add_f32 v169, v160, v161')
    for w in range(2, 8):
        a.emit(f'v_add_f32 v169, v169, v{160+w}')
    a.emit('v_rcp_f32 v169, v169')
    a.emit('s_nop 0')
    for w in range(8):
        a.emit(f'v_mul_f32 v{160+w}, v{160+w}, v169')
    for p in range(4):
        a.emit(f'v_cvt_pk_bf16_f32 v{170+p}, v{160+2*p}, v{161+2*p}')
    for d in range(32):
        a.emit(f'v_mov_b32 v{176+d}, 0')
    a.emit('s_mov_b32 s9, 0x05040100')
    a.emit('s_mov_b32 s10, 0x07060302')
    a.emit('s_waitcnt vmcnt(0)')
    for i in range(16):
        for p in range(4):
            w = 2*p
            a.emit(f'v_perm_b32 v1, v{32+16*(w+1)+i}, v{32+16*w+i}, s9')
            a.emit(f'v_perm_b32 v2, v{32+16*(w+1)+i}, v{32+16*w+i}, s10')
            a.emit(f'v_dot2_f32_bf16 v{176+2*i}, v1, v{170+p}, v{176+2*i}')
            a.emit(f'v_dot2_f32_bf16 v{177+2*i}, v2, v{170+p}, v{177+2*i}')
    a.emit('s_nop 3')
    for i in range(16):
        a.emit(f'v_cvt_pk_bf16_f32 v{16+i}, v{176+2*i}, v{177+2*i}')
    for j in range(4):
        a.emit(f'buffer_store_dwordx4 v[{16+4*j}:{19+4*j}], v13, s[40:43], 0 offen offset:{16*j}')
    a.label(f'L_{name}_end')
    kernel_end(a, name, 208)

def gen_gemm(a, name, K, N, BN, S, xsrc, wsrc, dst, ln=None, gelu=False, res=None, bias=None, stats_out=False):
    BM = 128
    NJ = BN // 32
    NP = BN // 32
    NSTEP = K // 64
    STAGE = 16384 + BN * 128
    RING = S * STAGE
    LDS_X = RING
    lda2 = K * 2; ldw2 = N * 2; ldo2 = dst[2] * 2
    DMA_N = 4 + NP
    assert DMA_N * (S - 1) <= 63
    VXD = 4; VWD = 8; VXA_B = 10; VXA = 12; VWA_B = 16; VWA = 24
    FA_X = 32; FA_W = 48; FB_X = 80; FB_W = 96
    ACC = 128
    VT = 240
    VST = 248
    RESR = 200
    nacc = 4 * NJ * 4
    assert ACC + nacc <= VT
    if res: assert ACC + nacc <= RESR
    def acc(jn, jm): return ACC + (jn * 4 + jm) * 4
    SX, SW, SO, SR, SB, SC, ST = 36, 40, 44, 48, 52, 72, 76
    S_KX, S_KW, S_DBUF, S_RBUF, S_CNT, S_XD, S_WD, S_T0, S_T1 = 56, 57, 58, 59, 60, 61, 62, 63, 64
    S_MT, S_NT, S_WM, S_WN = 65, 66, 67, 68
    TS = os.environ.get('GEMM_TS', '')
    DBG = os.environ.get('GEMM_DBG', '')
    TSR = 80
    tsn = [0]
    def ts():
        if TS:
            a.emit(f'{"s_memrealtime" if TS == "2" else "s_memtime"} s[{TSR+2*tsn[0]}:{TSR+2*tsn[0]+1}]')
            a.emit('s_waitcnt lgkmcnt(0)')
            tsn[0] += 1

    kernel_begin(a, name)
    a.emit('s_cmp_ge_u32 s2, 256')
    a.emit(f's_cbranch_scc1 L_{name}_end')
    ts()
    load_kernargs(a)
    a.emit('s_and_b32 s3, s2, 7')
    a.emit('s_lshr_b32 s4, s2, 3')
    LM = int(os.environ.get('MAP64', '3')) if BN == 64 else 3
    a.emit(f's_and_b32 s5, s3, {(1 << (4 - LM)) - 1}')
    a.emit(f's_lshl_b32 s5, s5, {LM}')
    a.emit(f's_and_b32 s6, s4, {(1 << LM) - 1}')
    a.emit(f's_add_u32 s{S_MT}, s5, s6')
    a.emit(f's_lshr_b32 s5, s3, {4 - LM}')
    a.emit(f's_lshl_b32 s5, s5, {5 - LM}')
    a.emit(f's_lshr_b32 s6, s4, {LM}')
    a.emit(f's_add_u32 s{S_NT}, s5, s6')
    a.emit('v_and_b32 v1, 63, v0')
    a.emit('v_lshrrev_b32 v2, 6, v0')
    a.emit('s_nop 0')
    a.emit('v_readfirstlane_b32 s7, v2')
    a.emit('s_nop 3')
    a.emit(f's_and_b32 s{S_WM}, s7, 1')
    a.emit(f's_lshr_b32 s{S_WN}, s7, 1')
    a.emit(f's_lshl_b32 s{S_XD}, s7, 12')
    a.emit(f's_lshl_b32 s{S_WD}, s7, 10')
    a.emit(f's_add_u32 s{S_WD}, s{S_WD}, 16384')
    a.emit('v_lshrrev_b32 v3, 3, v1')
    a.emit('s_lshl_b32 s8, s7, 5')
    a.emit(f's_lshl_b32 s9, s{S_MT}, 7')
    a.emit('s_add_u32 s8, s8, s9')
    a.emit('v_add_u32 v3, s8, v3')
    a.emit(f's_mov_b32 s10, {lda2}')
    a.emit('v_mul_lo_u32 v3, v3, s10')
    a.emit('v_lshrrev_b32 v2, 4, v1')
    a.emit('v_and_b32 v9, 7, v1')
    for j in range(4):
        a.emit(f'v_add_u32 v{VXD+j}, {(j*4)&7}, v2')
        a.emit(f'v_and_b32 v{VXD+j}, 7, v{VXD+j}')
        a.emit(f'v_xor_b32 v{VXD+j}, v{VXD+j}, v9')
        a.emit(f'v_lshl_add_u32 v{VXD+j}, v{VXD+j}, 4, v3')
        if j < 3:
            a.emit(f'v_add_u32 v3, {8*lda2}, v3')
    a.emit('v_lshrrev_b32 v3, 2, v1')
    a.emit('s_lshl_b32 s8, s7, 4')
    a.emit('v_add_u32 v3, s8, v3')
    a.emit(f's_mov_b32 s10, {ldw2}')
    a.emit('v_mul_lo_u32 v3, v3, s10')
    a.emit('v_lshrrev_b32 v2, 5, v1')
    a.emit('v_lshlrev_b32 v2, 1, v2')
    a.emit('v_and_b32 v9, 3, v1')
    a.emit('v_xor_b32 v2, v2, v9')
    a.emit(f'v_lshl_add_u32 v{VWD}, v2, 4, v3')
    a.emit(f's_mul_i32 s8, s{S_NT}, {BN*2}')
    a.emit(f'v_add_u32 v{VWD}, s8, v{VWD}')
    if 'w128' in DBG:
        a.emit('v_lshrrev_b32 v3, 3, v1')
        a.emit('s_lshl_b32 s8, s7, 4')
        a.emit('v_add_u32 v3, s8, v3')
        a.emit(f's_mov_b32 s10, {ldw2}')
        a.emit('v_mul_lo_u32 v3, v3, s10')
        a.emit('v_and_b32 v9, 7, v1')
        a.emit(f'v_lshl_add_u32 v{VWD}, v9, 4, v3')
        a.emit(f's_mul_i32 s8, s{S_NT}, {BN*2}')
        a.emit(f'v_add_u32 v{VWD}, s8, v{VWD}')
        a.emit(f'v_add_u32 v9, {8*ldw2}, v{VWD}')
    a.emit('v_and_b32 v3, 15, v1')
    a.emit('v_lshrrev_b32 v2, 4, v1')
    a.emit('v_lshrrev_b32 v9, 1, v3')
    a.emit(f's_lshl_b32 s8, s{S_WM}, 13')
    for ks in range(2):
        a.emit(f'v_add_u32 v{VXA_B+ks}, {ks*4}, v2')
        a.emit(f'v_xor_b32 v{VXA_B+ks}, v{VXA_B+ks}, v9')
        a.emit(f'v_lshlrev_b32 v{VXA_B+ks}, 4, v{VXA_B+ks}')
        a.emit(f'v_lshl_add_u32 v{VXA_B+ks}, v3, 7, v{VXA_B+ks}')
        a.emit(f'v_add_u32 v{VXA_B+ks}, s8, v{VXA_B+ks}')
    a.emit('v_lshrrev_b32 v2, 4, v1')
    a.emit('v_bfe_u32 v3, v1, 2, 2')
    a.emit('v_lshl_add_u32 v3, v2, 3, v3')
    a.emit('v_lshlrev_b32 v3, 6, v3')
    a.emit('v_and_b32 v9, 3, v1')
    a.emit('v_lshl_add_u32 v3, v9, 3, v3')
    a.emit('v_and_b32 v2, 1, v2')
    a.emit(f's_mul_i32 s8, s{S_WN}, {NJ}')
    for jn in range(NJ):
        a.emit(f's_add_u32 s9, s8, {jn}')
        a.emit('s_and_b32 s10, s9, 1')
        a.emit('s_lshr_b32 s9, s9, 1')
        a.emit('s_lshl_b32 s9, s9, 12')
        a.emit('s_add_u32 s9, s9, 16384')
        a.emit('v_xor_b32 v9, s10, v2')
        a.emit(f'v_lshl_add_u32 v{VWA_B+jn}, v9, 5, v3')
        a.emit(f'v_add_u32 v{VWA_B+jn}, s9, v{VWA_B+jn}')
    def coords():
        a.emit('v_and_b32 v28, 15, v1')
        a.emit(f's_lshl_b32 s8, s{S_MT}, 7')
        a.emit(f's_lshl_b32 s9, s{S_WM}, 6')
        a.emit('s_add_u32 s8, s8, s9')
        a.emit('v_add_u32 v28, s8, v28')
        a.emit('v_lshrrev_b32 v2, 4, v1')
        a.emit('v_and_b32 v29, 1, v2')
        a.emit('v_lshlrev_b32 v29, 4, v29')
        a.emit('v_lshrrev_b32 v2, 1, v2')
        a.emit('v_lshl_add_u32 v29, v2, 3, v29')
        a.emit(f's_mul_i32 s8, s{S_NT}, {BN}')
        a.emit(f's_mul_i32 s9, s{S_WN}, {BN//2}')
        a.emit('s_add_u32 s14, s8, s9')
        a.emit('v_add_u32 v29, s14, v29')
        a.emit(f's_mov_b32 s10, {ldo2}')
        a.emit('v_mul_lo_u32 v30, v28, s10')
        a.emit('v_lshl_add_u32 v30, v29, 1, v30')
    coords()
    a.emit('s_waitcnt lgkmcnt(0)')
    make_srd(a, SX, xsrc[0], xsrc[1], 2048 * K * 2)
    make_srd(a, SW, wsrc[0], wsrc[1], K * N * 2)
    make_srd(a, SO, dst[0], dst[1], 2048 * dst[2] * 2)
    if res:
        make_srd(a, SR, res[0], res[1], 2048 * 1024 * 2)
    if bias:
        make_srd(a, SB, bias, 0, N * 2)
    if ln is not None:
        make_srd(a, SC, 'ws', WS_CS + ln, 3 * 32768 + N * 4)
    if ln is not None or stats_out:
        make_srd(a, ST, 'ws', WS_ST, 2048 * 128)
    if res:
        a.emit('v_lshlrev_b32 v31, 11, v28')
        a.emit('v_lshl_add_u32 v31, v29, 1, v31')
        for jm in range(4):
            a.emit(f's_mov_b32 s15, {jm*16*2048}')
            a.emit(f'buffer_load_dwordx4 v[{RESR+4*jm}:{RESR+4*jm+3}], v31, s[{SR}:{SR+3}], s15 offen')
    if ln is not None:
        a.emit(f's_lshl_b32 s8, s{S_MT}, 7')
        a.emit(f's_lshl_b32 s9, s{S_WM}, 6')
        a.emit('s_add_u32 s8, s8, s9')
        a.emit('v_add_u32 v3, s8, v1')
        a.emit('v_lshlrev_b32 v3, 3, v3')
        for j in range(16):
            a.emit(f's_mov_b32 s8, {j*16384}')
            a.emit(f'buffer_load_dwordx2 v[{FB_X+2*j}:{FB_X+2*j+1}], v3, s[{ST}:{ST+3}], s8 offen')
    if ln is not None or bias:
        a.emit(f's_mul_i32 s8, s{S_NT}, {BN}')
        a.emit('v_add_u32 v3, s8, v0')
    if ln is not None:
        a.emit('v_lshlrev_b32 v2, 2, v3')
        for j in range(4):
            a.emit(f's_mov_b32 s8, {j*32768}')
            a.emit(f'buffer_load_dword v{124+j}, v2, s[{SC}:{SC+3}], s8 offen')
    if bias:
        a.emit('v_lshlrev_b32 v2, 1, v3')
        a.emit(f'buffer_load_ushort v76, v2, s[{SB}:{SB+3}], 0 offen')
    for i in range(nacc):
        a.emit(f'v_mov_b32 v{ACC+i}, 0')
    a.emit(f's_mov_b32 s{S_KX}, 0')
    a.emit(f's_mov_b32 s{S_KW}, 0')
    a.emit(f's_mov_b32 s{S_DBUF}, 0')
    a.emit(f's_mov_b32 s{S_RBUF}, 0')

    def dma_issue():
        out = []
        out.append(f's_add_u32 s{S_T0}, s{S_DBUF}, s{S_XD}')
        out.append(f's_add_u32 s{S_T1}, s{S_DBUF}, s{S_WD}')
        for j in range(4):
            out.append(f's_add_u32 m0, s{S_T0}, {j*1024}')
            out.append('NOP')
            if 'vload' in DBG and BN == 64:
                out.append(f'buffer_load_dwordx4 v[{160+4*j}:{163+4*j}], v{VXD+j}, s[{SX}:{SX+3}], s{S_KX} offen')
            else:
                out.append(f'buffer_load_dwordx4 v{VXD+j}, s[{SX}:{SX+3}], s{S_KX} offen lds')
        for pn in range(NP):
            out.append(f's_add_u32 m0, s{S_T1}, {pn*(4096-64)}')
            out.append('NOP')
            if 'vload' in DBG and BN == 64:
                out.append(f'buffer_load_dwordx4 v[{176+4*pn}:{179+4*pn}], v{VWD}, s[{SW}:{SW+3}], s{S_KW} offen offset:{pn*64}')
            elif 'w128' in DBG:
                out.append(f'buffer_load_dwordx4 v{VWD+(pn&1)}, s[{SW}:{SW+3}], s{S_KW} offen offset:{(pn//2)*128} lds')
            else:
                out.append(f'buffer_load_dwordx4 v{VWD}, s[{SW}:{SW+3}], s{S_KW} offen offset:{pn*64} lds')
        out.append(f's_add_u32 s{S_KX}, s{S_KX}, 128')
        out.append(f's_add_u32 s{S_KW}, s{S_KW}, {64*ldw2}')
        out.append(f's_add_u32 s{S_DBUF}, s{S_DBUF}, {STAGE}')
        out.append(f's_cmp_eq_u32 s{S_DBUF}, {S*STAGE}')
        out.append(f's_cselect_b32 s{S_DBUF}, 0, s{S_DBUF}')
        return out

    def rd_addr_update():
        out = []
        for ks in range(2):
            out.append(f'v_add_u32 v{VXA+ks}, s{S_RBUF}, v{VXA_B+ks}')
        for jn in range(NJ):
            out.append(f'v_add_u32 v{VWA+jn}, s{S_RBUF}, v{VWA_B+jn}')
        out.append(f's_add_u32 s{S_RBUF}, s{S_RBUF}, {STAGE}')
        out.append(f's_cmp_eq_u32 s{S_RBUF}, {S*STAGE}')
        out.append(f's_cselect_b32 s{S_RBUF}, 0, s{S_RBUF}')
        return out

    def frag_reads(fx, fw, ks):
        if 'noread' in DBG: return []
        out = []
        for jm in range(4):
            out.append(f'ds_read_b128 v[{fx+4*jm}:{fx+4*jm+3}], v{VXA+ks} offset:{jm*2048}')
        for jn in range(NJ):
            for h in range(2):
                out.append(f'ds_read_b64_tr_b16 v[{fw+4*jn+2*h}:{fw+4*jn+2*h+1}], v{VWA+jn} offset:{ks*2048+h*256}')
        return out

    def mfmas(fx, fw):
        if 'nomfma' in DBG: return ['s_nop 0']
        out = []
        for jn in range(NJ):
            for jm in range(4):
                c = acc(jn, jm)
                out.append(f'v_mfma_f32_16x16x32_bf16 v[{c}:{c+3}], v[{fw+4*jn}:{fw+4*jn+3}], v[{fx+4*jm}:{fx+4*jm+3}], v[{c}:{c+3}]')
        return out

    def em(ins):
        a.emit('s_nop 0' if ins == 'NOP' else ins)

    def interleave(main, side):
        n = len(main)
        si = 0
        for i, m in enumerate(main):
            a.emit(m)
            tgt = (len(side) * (i + 1) + n - 1) // n
            while si < tgt:
                em(side[si]); si += 1
        while si < len(side):
            em(side[si]); si += 1

    def split_dma():
        d = dma_issue()
        nb = 2 + 3 * (DMA_N // 2)
        return d[:nb], d[nb:]

    for st in range(S):
        for ins in dma_issue():
            em(ins)
    if ln is not None or bias:
        a.emit(f's_waitcnt vmcnt({S*DMA_N})')
        a.emit('v_lshlrev_b32 v3, 2, v0')
        a.emit(f'v_add_u32 v3, {LDS_X}, v3')
        if ln is not None:
            a.emit('v_add_f32 v124, v124, v125')
            a.emit('v_add_f32 v126, v126, v127')
            a.emit('v_add_f32 v124, v124, v126')
            a.emit(f'ds_write_b32 v3, v124 offset:2048')
        if bias:
            a.emit('v_lshlrev_b32 v76, 16, v76')
            a.emit(f'ds_write_b32 v3, v76 offset:3072')
            a.emit('s_waitcnt lgkmcnt(0)')
    if ln is not None:
        for j in range(1, 8):
            a.emit(f'v_pk_add_f32 v[{FB_X}:{FB_X+1}], v[{FB_X}:{FB_X+1}], v[{FB_X+2*j}:{FB_X+2*j+1}]')
            a.emit(f'v_pk_add_f32 v[{FB_X+16}:{FB_X+17}], v[{FB_X+16}:{FB_X+17}], v[{FB_X+16+2*j}:{FB_X+17+2*j}]')
        a.emit(f'v_pk_add_f32 v[{FB_X}:{FB_X+1}], v[{FB_X}:{FB_X+1}], v[{FB_X+16}:{FB_X+17}]')
        a.emit(f'v_mul_f32 v{FB_X}, 0x3a800000, v{FB_X}')
        a.emit(f'v_mul_f32 v{FB_X+1}, 0x3a800000, v{FB_X+1}')
        a.emit(f'v_fma_f32 v{FB_X+1}, -v{FB_X}, v{FB_X}, v{FB_X+1}')
        a.emit(f'v_max_f32 v{FB_X+1}, 0, v{FB_X+1}')
        a.emit(f'v_add_f32 v{FB_X+1}, 0x3727c5ac, v{FB_X+1}')
        a.emit(f'v_rsq_f32 v{FB_X+1}, v{FB_X+1}')
        a.emit('s_nop 0')
        a.emit(f'v_mul_f32 v{FB_X}, v{FB_X}, v{FB_X+1}')
        a.emit(f'v_lshlrev_b32 v3, 3, v1')
        a.emit(f's_lshl_b32 s8, s7, 9')
        a.emit(f's_add_u32 s8, s8, {LDS_X}')
        a.emit(f'v_add_u32 v3, s8, v3')
        a.emit(f'ds_write_b64 v3, v[{FB_X}:{FB_X+1}]')
        a.emit('v_and_b32 v3, 15, v1')
        a.emit('v_lshlrev_b32 v3, 3, v3')
        a.emit('v_add_u32 v3, s8, v3')
        a.emit('s_waitcnt lgkmcnt(0)')
        for jm in range(4):
            a.emit(f'ds_read_b64 v[{VST+2*jm}:{VST+2*jm+1}], v3 offset:{jm*128}')
        a.emit('s_waitcnt lgkmcnt(0)')
    a.emit(f's_waitcnt vmcnt({(S-1)*DMA_N})')
    a.emit('s_barrier')
    ts()
    for ins in rd_addr_update():
        a.emit(ins)
    for ins in frag_reads(FA_X, FA_W, 0):
        a.emit(ins)

    def iteration(issue_dma, issue_prev, last, vm_allowed):
        if 'nodma' in DBG: issue_dma = issue_prev = False
        a.emit('s_waitcnt lgkmcnt(0)')
        side = frag_reads(FB_X, FB_W, 1)
        if issue_prev:
            side = side + split_dma()[1]
        interleave(mfmas(FA_X, FA_W), side)
        if not last:
            a.emit(f's_waitcnt vmcnt({vm_allowed}) lgkmcnt(0)')
            a.emit('s_barrier')
        else:
            a.emit('s_waitcnt lgkmcnt(0)')
        side = []
        if not last:
            side += rd_addr_update()
            side += frag_reads(FA_X, FA_W, 0)
        if issue_dma:
            side += split_dma()[0]
        interleave(mfmas(FB_X, FB_W), side)

    nmain = NSTEP - S
    iteration(True, False, False, (S - 2) * DMA_N)
    a.emit(f's_mov_b32 s{S_CNT}, {nmain - 1}')
    a.label(f'L_{name}_loop')
    iteration(True, True, False, (S - 2) * DMA_N)
    a.emit(f's_sub_u32 s{S_CNT}, s{S_CNT}, 1')
    a.emit(f's_cmp_lg_u32 s{S_CNT}, 0')
    a.emit(f's_cbranch_scc1 L_{name}_loop')
    for t in range(S):
        i = nmain + t
        allowed = (NSTEP - 1) - (i + 1)
        iteration(False, t == 0, i == NSTEP - 1, max(allowed, 0) * DMA_N)

    ts()
    coords()
    npair = NJ // 2
    odd = NJ % 2
    BR = 32
    CS = 52
    BF = 96
    if odd:
        a.emit('v_lshrrev_b32 v2, 4, v1')
        a.emit('v_lshl_add_u32 v7, v2, 2, s14')
        a.emit(f'v_add_u32 v7, {(NJ-1)*16}, v7')
        a.emit(f's_mov_b32 s10, {ldo2}')
        a.emit('v_mul_lo_u32 v8, v28, s10')
        a.emit('v_lshl_add_u32 v8, v7, 1, v8')
    if bias or ln is not None:
        a.emit(f's_mul_i32 s8, s{S_NT}, {BN}')
        a.emit('v_subrev_u32 v6, s8, v29')
        a.emit('v_lshlrev_b32 v6, 2, v6')
        a.emit(f'v_add_u32 v6, {LDS_X}, v6')
        if odd:
            a.emit('v_subrev_u32 v9, s8, v7')
            a.emit('v_lshlrev_b32 v9, 2, v9')
            a.emit(f'v_add_u32 v9, {LDS_X}, v9')
    if bias:
        for p in range(npair):
            a.emit(f'ds_read_b128 v[{BF+8*p}:{BF+8*p+3}], v6 offset:{3072+p*128}')
            a.emit(f'ds_read_b128 v[{BF+8*p+4}:{BF+8*p+7}], v6 offset:{3072+p*128+16}')
        if odd:
            a.emit(f'ds_read_b128 v[{BF+8*npair}:{BF+8*npair+3}], v9 offset:{3072}')
    if ln is not None:
        for p in range(npair):
            a.emit(f'ds_read_b128 v[{CS+8*p}:{CS+8*p+3}], v6 offset:{2048+p*128}')
            a.emit(f'ds_read_b128 v[{CS+8*p+4}:{CS+8*p+7}], v6 offset:{2048+p*128+16}')
        if odd:
            a.emit(f'ds_read_b128 v[{CS+8*npair}:{CS+8*npair+3}], v9 offset:{2048}')
    a.emit('s_mov_b32 s11, 0xffff0000')
    if gelu:
        c0 = -2.0 * 0.7978845608028654 * 1.4426950408889634
        c1 = c0 * 0.044715
        a.emit(f's_mov_b32 s12, {f2u(c0):#x}')
        a.emit(f's_mov_b32 s13, {f2u(c1):#x}')
    a.emit('s_waitcnt vmcnt(0) lgkmcnt(0)')
    SSUM = 240
    if stats_out:
        for jm in range(4):
            a.emit(f'v_mov_b32 v{SSUM+2*jm}, 0')
            a.emit(f'v_mov_b32 v{SSUM+2*jm+1}, 0')

    def epi_math(vals, p, jm):
        n = len(vals)
        T = 10
        for i0 in range(0, n, 4):
            seqs = []
            for q in range(2):
                i = i0 + 2 * q
                x = vals[i]
                assert vals[i+1] == x + 1 and x % 2 == 0
                Tq = T + 2 * q
                X = f'v[{x}:{x+1}]'; TT = f'v[{Tq}:{Tq+1}]'
                ST2 = f'v[{VST+2*jm}:{VST+2*jm+1}]'
                sq = []
                if ln is not None:
                    assert bias
                    sq.append(f'v_pk_fma_f32 {TT}, v[{CS+8*p+i}:{CS+8*p+i+1}], {ST2}, v[{BF+8*p+i}:{BF+8*p+i+1}] op_sel:[0,0,0] op_sel_hi:[1,0,1] neg_lo:[0,1,0] neg_hi:[0,1,0]')
                    sq.append(f'v_pk_fma_f32 {X}, {X}, {ST2}, {TT} op_sel:[0,1,0] op_sel_hi:[1,1,1]')
                elif bias:
                    sq.append(f'v_pk_add_f32 {X}, {X}, v[{BF+8*p+i}:{BF+8*p+i+1}]')
                if gelu:
                    sq.append(f'v_pk_mul_f32 {TT}, {X}, {X}')
                    sq.append(f'v_pk_fma_f32 {TT}, {TT}, v[{VT+4}:{VT+5}], v[{VT+4}:{VT+5}] op_sel:[0,1,0] op_sel_hi:[1,1,0]')
                    sq.append(f'v_pk_mul_f32 {TT}, {TT}, {X}')
                    sq.append(f'v_exp_f32 v{Tq}, v{Tq}\n  v_exp_f32 v{Tq+1}, v{Tq+1}')
                    sq.append(f'v_pk_add_f32 {TT}, {TT}, v[{VT+6}:{VT+7}] op_sel_hi:[1,0]')
                    sq.append(f'v_rcp_f32 v{Tq}, v{Tq}\n  v_rcp_f32 v{Tq+1}, v{Tq+1}')
                    sq.append(f'v_pk_mul_f32 {X}, {X}, {TT}')
                seqs.append(sq)
            for ia, ib in zip(*seqs):
                a.emit(ia); a.emit(ib)
            if gelu: a.emit('s_nop 0')
        if res:
            for i in range(0, n, 2):
                a.emit(f'v_cvt_pk_bf16_f32 v{T}, v{vals[i]}, v{vals[i+1]}')
                a.emit(f'v_lshlrev_b32 v{T+1}, 16, v{RESR+4*jm+i//2}')
                a.emit(f'v_and_b32 v{T+2}, s11, v{RESR+4*jm+i//2}')
                a.emit(f'v_lshlrev_b32 v{vals[i]}, 16, v{T}')
                a.emit(f'v_and_b32 v{vals[i+1]}, s11, v{T}')
                a.emit(f'v_add_f32 v{vals[i]}, v{vals[i]}, v{T+1}')
                a.emit(f'v_add_f32 v{vals[i+1]}, v{vals[i+1]}, v{T+2}')
        if stats_out:
            for i in range(n):
                a.emit(f'v_add_f32 v{SSUM+2*jm}, v{SSUM+2*jm}, v{vals[i]}')
                a.emit(f'v_fmac_f32 v{SSUM+2*jm+1}, v{vals[i]}, v{vals[i]}')

    if gelu:
        a.emit(f'v_mov_b32 v{VT+4}, s12')
        a.emit(f'v_mov_b32 v{VT+5}, s13')
        a.emit(f'v_mov_b32 v{VT+6}, 1.0')
    for jm in range(4):
        for p in range(npair):
            P = acc(2*p, jm); Q = acc(2*p+1, jm)
            for r in range(4):
                a.emit(f'v_permlane16_swap_b32 v{P+r}, v{Q+r}')
            vals = [P, P+1, P+2, P+3, Q, Q+1, Q+2, Q+3]
            a.emit(f's_mov_b32 s15, {jm * 16 * ldo2 + p * 64}')
            epi_math(vals, p, jm)
            for i in range(4):
                a.emit(f'v_cvt_pk_bf16_f32 v{P+i}, v{vals[2*i]}, v{vals[2*i+1]}')
            a.emit(f'buffer_store_dwordx4 v[{P}:{P+3}], v30, s[{SO}:{SO+3}], s15 offen')
        if odd:
            Tt = acc(NJ-1, jm)
            vals = [Tt, Tt+1, Tt+2, Tt+3]
            a.emit(f's_mov_b32 s15, {jm*16*ldo2}')
            epi_math(vals, npair, jm)
            for i in range(2):
                a.emit(f'v_cvt_pk_bf16_f32 v{Tt+i}, v{vals[2*i]}, v{vals[2*i+1]}')
            a.emit(f'buffer_store_dwordx2 v[{Tt}:{Tt+1}], v8, s[{SO}:{SO+3}], s15 offen')
    if stats_out:
        for r in range(8):
            a.emit(f'v_mov_b32 v10, v{SSUM+r}')
            a.emit('s_nop 1')
            a.emit(f'v_permlane16_swap_b32 v{SSUM+r}, v10')
            a.emit(f'v_add_f32 v{SSUM+r}, v{SSUM+r}, v10')
            a.emit(f'v_mov_b32 v10, v{SSUM+r}')
            a.emit('s_nop 1')
            a.emit(f'v_permlane32_swap_b32 v{SSUM+r}, v10')
            a.emit(f'v_add_f32 v{SSUM+r}, v{SSUM+r}, v10')
        a.emit('v_and_b32 v3, 15, v1')
        a.emit('v_lshlrev_b32 v3, 3, v3')
        a.emit('s_lshl_b32 s8, s7, 9')
        a.emit(f's_add_u32 s8, s8, {LDS_X}')
        a.emit('v_add_u32 v3, s8, v3')
        a.emit('s_barrier')
        for jm in range(4):
            a.emit(f'ds_write_b64 v3, v[{SSUM+2*jm}:{SSUM+2*jm+1}] offset:{jm*128}')
        a.emit('s_waitcnt lgkmcnt(0)')
        a.emit('s_barrier')
        a.emit('v_lshrrev_b32 v4, 6, v0')
        a.emit('v_and_b32 v5, 63, v0')
        a.emit('v_lshlrev_b32 v5, 3, v5')
        a.emit('v_lshl_add_u32 v5, v4, 9, v5')
        a.emit(f'v_add_u32 v5, {LDS_X}, v5')
        a.emit('v_cmp_gt_u32 vcc, 128, v0')
        a.emit('s_and_saveexec_b64 s[8:9], vcc')
        a.emit('ds_read_b64 v[10:11], v5')
        a.emit('ds_read_b64 v[12:13], v5 offset:1024')
        a.emit(f's_lshl_b32 s10, s{S_MT}, 7')
        a.emit('v_add_u32 v6, s10, v0')
        a.emit('v_lshlrev_b32 v6, 3, v6')
        a.emit(f's_lshl_b32 s10, s{S_NT}, 14')
        a.emit('v_add_u32 v6, s10, v6')
        a.emit('s_waitcnt lgkmcnt(0)')
        a.emit('v_add_f32 v10, v10, v12')
        a.emit('v_add_f32 v11, v11, v13')
        a.emit(f'buffer_store_dwordx2 v[10:11], v6, s[{ST}:{ST+3}], 0 offen')
        a.emit('s_mov_b64 exec, s[8:9]')
    if TS:
        a.emit('s_waitcnt vmcnt(0)')
        ts()
        make_srd(a, 36, 'ws', 60 * MB, 1 << 20)
        a.emit('s_lshl_b32 s4, s2, 6')
        a.emit('v_mov_b32 v1, s4')
        a.emit(f'v_add_u32 v1, {TSIDX[0]*65536}, v1')
        for i in range(8):
            a.emit(f'v_mov_b32 v{2+i}, s{TSR+i}')
        a.emit('v_cmp_eq_u32 vcc, 0, v0')
        a.emit('s_and_saveexec_b64 s[6:7], vcc')
        a.emit('buffer_store_dwordx4 v[2:5], v1, s[36:39], 0 offen')
        a.emit('buffer_store_dwordx4 v[6:9], v1, s[36:39], 0 offen offset:16')
        a.emit('s_waitcnt vmcnt(0)')
        TSIDX[0] += 1
    a.label(f'L_{name}_end')
    kernel_end(a, name, 256)
    return RING + 4096

def main():
    launches = []
    body = Asm()
    def add(name, grid, lds):
        launches.append(f'; @launch kernel={name} grid=({grid},1,1) block=(256,1,1) lds={lds}')
    gen_prep(body, 'prep_kernel'); add('prep_kernel', 688, 2048)
    xin = ('A_x', 0)
    for layer in range(2):
        xa = xin
        x1 = ('ws', WS_X1) if layer == 0 else ('ws', WS_X3)
        x2 = ('ws', WS_X2) if layer == 0 else ('out', 0)
        L = f'l{layer}'
        lds = gen_qkv_attn(body, f'attn{L}_kernel', xa, WS_O, WS_ST, WS_CS)
        add(f'attn{L}_kernel', 256, lds)
        lds = gen_gemm(body, f'wo{L}_kernel', 1024, 1024, 64, 4, ('ws', WS_O), ('wo', 0), (x1[0], x1[1], 1024), res=xa, stats_out=True)
        add(f'wo{L}_kernel', 256, lds)
        lds = gen_gemm(body, f'w1{L}_kernel', 1024, 3584, 224, 3, x1, ('w1', 0), ('ws', WS_H, 3584), ln=CS_W1, gelu=True, bias='b1')
        add(f'w1{L}_kernel', 256, lds)
        lds = gen_gemm(body, f'w2{L}_kernel', 3584, 1024, 64, 4, ('ws', WS_H), ('w2', 0), (x2[0], x2[1], 1024), res=x1, bias='b2', stats_out=(layer == 0))
        add(f'w2{L}_kernel', 256, lds)
        xin = x2
    hdr = open('header.txt').read()
    out = hdr + '\n'.join(launches) + '\n.amdgcn_target "amdgcn-amd-amdhsa--gfx950"\n' + body.text()
    path = sys.argv[1] if len(sys.argv) > 1 else 'interleave_layers__sliding_local_dilated__dense_activation_gelu__prompt.s'
    check_offsets(out)
    open(path, 'w').write(out)
    print('wrote', path, len(out))

if __name__ == '__main__':
    main()
```

```python
import os, struct
from asmlib import *
MB = 1 << 20
def gen_qkv_attn(a, name, xsrc, WS_O, WS_ST, WS_CS):
    K = 1024; N = 3072; NJ = 6; NP = 6; S = 3; NSTEP = 16
    XH = 16384 + 192 * 128
    STAGE = XH + 2048
    RING = S * STAGE
    lda2 = 2048; ldw2 = 6144
    DMA_N = 4 + NP + 1
    VXD = 4; VWD = 8; VXH = 11
    VXA_B = 12; VXA = 14; VWA_B = 16; VWA = 22; VHA_B = 28; VHA = 30
    FA_X = 32; FA_W = 52; FB_X = 76; FB_W = 96
    ACC = 128; HACC = 224; VHS = 236; VST = 248
    def acc(jn, jm): return ACC + (jn * 4 + jm) * 4
    SX, SW, SO, SC, ST = 36, 40, 44, 72, 76
    S_KX, S_KW, S_DBUF, S_RBUF, S_CNT, S_XD, S_WD, S_T0, S_T1 = 56, 57, 58, 59, 60, 61, 62, 63, 64
    S_MT, S_NT, S_WM, S_WN, S_HD = 65, 66, 67, 68, 69
    TS = os.environ.get('ATT_TS', '')
    tsn = [0]
    def ts():
        if TS:
            a.emit(f's_memrealtime s[{80+2*tsn[0]}:{81+2*tsn[0]}]')
            a.emit('s_waitcnt lgkmcnt(0)')
            tsn[0] += 1
    kernel_begin(a, name)
    a.emit('s_cmp_ge_u32 s2, 256')
    a.emit(f's_cbranch_scc1 L_{name}_end')
    ts()
    load_kernargs(a)
    a("""  s_and_b32 s3, s2, 7
  s_lshr_b32 s4, s2, 3
  s_and_b32 s5, s3, 1
  s_lshl_b32 s5, s5, 3
  s_and_b32 s6, s4, 7""")
    a.emit(f's_add_u32 s{S_MT}, s5, s6')
    a("""  s_lshr_b32 s5, s3, 1
  s_lshl_b32 s5, s5, 2
  s_lshr_b32 s6, s4, 3""")
    a.emit(f's_add_u32 s{S_NT}, s5, s6')
    a("""  v_and_b32 v1, 63, v0
  v_lshrrev_b32 v2, 6, v0
  s_nop 0
  v_readfirstlane_b32 s7, v2
  s_nop 3""")
    a.emit(f's_and_b32 s{S_WM}, s7, 1')
    a.emit(f's_lshr_b32 s{S_WN}, s7, 1')
    a.emit(f's_lshl_b32 s{S_XD}, s7, 12')
    a.emit(f's_lshl_b32 s{S_WD}, s7, 10')
    a.emit(f's_add_u32 s{S_WD}, s{S_WD}, 16384')
    a.emit(f's_and_b32 s{S_HD}, s7, 1')
    a.emit(f's_lshl_b32 s{S_HD}, s{S_HD}, 10')
    a.emit(f's_add_u32 s{S_HD}, s{S_HD}, {XH}')
    a.emit('v_lshrrev_b32 v3, 3, v1')
    a.emit('s_lshl_b32 s8, s7, 5')
    a.emit(f's_lshl_b32 s9, s{S_MT}, 7')
    a.emit('s_add_u32 s8, s8, s9')
    a.emit('v_add_u32 v3, s8, v3')
    a.emit('v_lshlrev_b32 v3, 11, v3')
    a.emit('v_lshrrev_b32 v2, 4, v1')
    a.emit('v_and_b32 v9, 7, v1')
    for j in range(4):
        a.emit(f'v_add_u32 v{VXD+j}, {(j*4)&7}, v2')
        a.emit(f'v_and_b32 v{VXD+j}, 7, v{VXD+j}')
        a.emit(f'v_xor_b32 v{VXD+j}, v{VXD+j}, v9')
        a.emit(f'v_lshl_add_u32 v{VXD+j}, v{VXD+j}, 4, v3')
        if j < 3: a.emit(f'v_add_u32 v3, {8*lda2}, v3')
    a.emit('v_lshrrev_b32 v3, 3, v1')
    a.emit('s_and_b32 s8, s7, 1')
    a.emit('s_lshl_b32 s10, s8, 3')
    a.emit('s_sub_u32 s9, s9, 16')
    a.emit('s_add_u32 s9, s9, s10')
    a.emit('v_add_u32 v3, s9, v3')
    a.emit('v_max_i32 v3, 0, v3')
    a.emit('v_lshlrev_b32 v3, 11, v3')
    a.emit('s_lshl_b32 s8, s8, 2')
    a.emit('v_add_u32 v10, s8, v2')
    a.emit('v_xor_b32 v10, v10, v9')
    a.emit(f'v_lshl_add_u32 v{VXH}, v10, 4, v3')
    a.emit('v_lshrrev_b32 v3, 2, v1')
    a.emit('s_lshl_b32 s8, s7, 4')
    a.emit('v_add_u32 v3, s8, v3')
    a.emit(f's_mov_b32 s10, {ldw2}')
    a.emit('v_mul_lo_u32 v3, v3, s10')
    a.emit('v_lshrrev_b32 v2, 5, v1')
    a.emit('v_lshlrev_b32 v2, 1, v2')
    a.emit('v_and_b32 v9, 3, v1')
    a.emit('v_xor_b32 v2, v2, v9')
    a.emit(f'v_lshl_add_u32 v{VWD}, v2, 4, v3')
    a.emit(f's_lshl_b32 s8, s{S_NT}, 7')
    a.emit(f'v_add_u32 v{VWD}, s8, v{VWD}')
    a.emit(f'v_add_u32 v238, 2048, v{VWD}')
    a.emit(f'v_add_u32 v239, 2048, v238')
    a.emit('v_and_b32 v3, 15, v1')
    a.emit('v_lshrrev_b32 v2, 4, v1')
    a.emit('v_lshrrev_b32 v9, 1, v3')
    a.emit(f's_lshl_b32 s8, s{S_WM}, 13')
    for ks in range(2):
        a.emit(f'v_add_u32 v{VXA_B+ks}, {ks*4}, v2')
        a.emit(f'v_xor_b32 v{VXA_B+ks}, v{VXA_B+ks}, v9')
        a.emit(f'v_lshlrev_b32 v{VXA_B+ks}, 4, v{VXA_B+ks}')
        a.emit(f'v_lshl_add_u32 v{VXA_B+ks}, v3, 7, v{VXA_B+ks}')
        a.emit(f'v_add_u32 v{VHA_B+ks}, {XH}, v{VXA_B+ks}')
        a.emit(f'v_add_u32 v{VXA_B+ks}, s8, v{VXA_B+ks}')
    a("""  v_lshrrev_b32 v2, 4, v1
  v_bfe_u32 v3, v1, 2, 2
  v_lshl_add_u32 v3, v2, 3, v3
  v_lshlrev_b32 v3, 6, v3
  v_and_b32 v9, 3, v1
  v_lshl_add_u32 v3, v9, 3, v3
  v_and_b32 v2, 1, v2""")
    a.emit(f's_mul_i32 s8, s{S_WN}, {NJ}')
    for jn in range(NJ):
        a.emit(f's_add_u32 s9, s8, {jn}')
        a("""  s_and_b32 s10, s9, 1
  s_lshr_b32 s9, s9, 1
  s_lshl_b32 s9, s9, 12
  s_add_u32 s9, s9, 16384
  v_xor_b32 v9, s10, v2""")
        a.emit(f'v_lshl_add_u32 v{VWA_B+jn}, v9, 5, v3')
        a.emit(f'v_add_u32 v{VWA_B+jn}, s9, v{VWA_B+jn}')
    a.emit('s_waitcnt lgkmcnt(0)')
    make_srd(a, SX, xsrc[0], xsrc[1], 2048 * K * 2)
    make_srd(a, SW, 'wqkv', 0, K * N * 2)
    make_srd(a, SO, 'ws', WS_O, 2048 * 1024 * 2)
    make_srd(a, SC, 'ws', WS_CS, 3 * 32768 + N * 4)
    make_srd(a, ST, 'ws', WS_ST, 2048 * 128)
    a.emit(f's_lshl_b32 s8, s{S_MT}, 7')
    a.emit(f's_lshl_b32 s9, s{S_WM}, 6')
    a.emit('s_add_u32 s9, s8, s9')
    a.emit('v_add_u32 v3, s9, v1')
    a.emit('v_lshlrev_b32 v3, 3, v3')
    a.emit('s_sub_u32 s8, s8, 16')
    a.emit('v_and_b32 v2, 15, v1')
    a.emit('v_add_u32 v2, s8, v2')
    a.emit('v_max_i32 v2, 0, v2')
    a.emit('v_lshlrev_b32 v2, 3, v2')
    for j in range(16):
        a.emit(f's_mov_b32 s8, {j*16384}')
        a.emit(f'buffer_load_dwordx2 v[{76+2*j}:{77+2*j}], v3, s[{ST}:{ST+3}], s8 offen')
        a.emit(f'buffer_load_dwordx2 v[{32+2*j}:{33+2*j}], v2, s[{ST}:{ST+3}], s8 offen')
    a.emit('v_lshrrev_b32 v2, 6, v0')
    a.emit('v_lshlrev_b32 v2, 10, v2')
    a.emit('v_and_b32 v3, 63, v0')
    a.emit('v_add_u32 v2, v2, v3')
    a.emit(f's_lshl_b32 s8, s{S_NT}, 6')
    a.emit('v_add_u32 v2, s8, v2')
    a.emit('v_lshlrev_b32 v2, 2, v2')
    for j in range(4):
        a.emit(f's_mov_b32 s8, {j*32768}')
        a.emit(f'buffer_load_dword v{120+j}, v2, s[{SC}:{SC+3}], s8 offen')
    for i in range(96 + 12):
        a.emit(f'v_mov_b32 v{ACC+i}, 0')
    for r in (S_KX, S_KW, S_DBUF, S_RBUF):
        a.emit(f's_mov_b32 s{r}, 0')

    def dma_issue():
        out = [f's_add_u32 s{S_T0}, s{S_DBUF}, s{S_XD}', f's_add_u32 s{S_T1}, s{S_DBUF}, s{S_WD}']
        for j in range(4):
            out += [f's_add_u32 m0, s{S_T0}, {j*1024}', 'NOP', f'buffer_load_dwordx4 v{VXD+j}, s[{SX}:{SX+3}], s{S_KX} offen lds']
        out += [f's_add_u32 m0, s{S_DBUF}, s{S_HD}', 'NOP', f'buffer_load_dwordx4 v{VXH}, s[{SX}:{SX+3}], s{S_KX} offen lds']
        for pn in range(NP):
            out += [f's_add_u32 m0, s{S_T1}, {pn*4096-(pn&1)*64}', 'NOP',
                    f'buffer_load_dwordx4 v{[VWD,238,239][pn>>1]}, s[{SW}:{SW+3}], s{S_KW} offen offset:{(pn&1)*64} lds']
        out += [f's_add_u32 s{S_KX}, s{S_KX}, 128', f's_add_u32 s{S_KW}, s{S_KW}, {64*ldw2}',
                f's_add_u32 s{S_DBUF}, s{S_DBUF}, {STAGE}', f's_cmp_eq_u32 s{S_DBUF}, {S*STAGE}',
                f's_cselect_b32 s{S_DBUF}, 0, s{S_DBUF}']
        return out
    def rd_addr_update():
        out = []
        for ks in range(2):
            out.append(f'v_add_u32 v{VXA+ks}, s{S_RBUF}, v{VXA_B+ks}')
            out.append(f'v_add_u32 v{VHA+ks}, s{S_RBUF}, v{VHA_B+ks}')
        for jn in range(NJ):
            out.append(f'v_add_u32 v{VWA+jn}, s{S_RBUF}, v{VWA_B+jn}')
        out += [f's_add_u32 s{S_RBUF}, s{S_RBUF}, {STAGE}', f's_cmp_eq_u32 s{S_RBUF}, {S*STAGE}', f's_cselect_b32 s{S_RBUF}, 0, s{S_RBUF}']
        return out
    def frag_reads(fx, fw, ks):
        out = [f'ds_read_b128 v[{fx+4*jm}:{fx+4*jm+3}], v{VXA+ks} offset:{jm*2048}' for jm in range(4)]
        out.append(f'ds_read_b128 v[{fx+16}:{fx+19}], v{VHA+ks}')
        for jn in range(NJ):
            for h in range(2):
                out.append(f'ds_read_b64_tr_b16 v[{fw+4*jn+2*h}:{fw+4*jn+2*h+1}], v{VWA+jn} offset:{ks*2048+h*256}')
        return out
    def mfmas(fx, fw, hj):
        out = []
        for jn in range(NJ):
            for jm in range(4):
                c = acc(jn, jm)
                out.append(f'v_mfma_f32_16x16x32_bf16 v[{c}:{c+3}], v[{fw+4*jn}:{fw+4*jn+3}], v[{fx+4*jm}:{fx+4*jm+3}], v[{c}:{c+3}]')
            if jn in hj:
                c = HACC + 4 * hj.index(jn)
                out.append(f'v_mfma_f32_16x16x32_bf16 v[{c}:{c+3}], v[{fw+4*jn}:{fw+4*jn+3}], v[{fx+16}:{fx+19}], v[{c}:{c+3}]')
        return out
    def em(ins): a.emit('s_nop 0' if ins == 'NOP' else ins)
    def interleave(main, side):
        n = len(main); si = 0
        for i, m in enumerate(main):
            a.emit(m)
            tgt = (len(side) * (i + 1) + n - 1) // n
            while si < tgt: em(side[si]); si += 1
        while si < len(side): em(side[si]); si += 1
    def split_dma():
        d = dma_issue(); nb = 2 + 3 * (DMA_N // 2)
        return d[:nb], d[nb:]
    def stats_reduce(b):
        for j in range(1, 8):
            a.emit(f'v_pk_add_f32 v[{b}:{b+1}], v[{b}:{b+1}], v[{b+2*j}:{b+2*j+1}]')
            a.emit(f'v_pk_add_f32 v[{b+16}:{b+17}], v[{b+16}:{b+17}], v[{b+16+2*j}:{b+17+2*j}]')
        a.emit(f'v_pk_add_f32 v[{b}:{b+1}], v[{b}:{b+1}], v[{b+16}:{b+17}]')
        a.emit(f'v_mul_f32 v{b}, 0x3a800000, v{b}')
        a.emit(f'v_mul_f32 v{b+1}, 0x3a800000, v{b+1}')
        a.emit(f'v_fma_f32 v{b+1}, -v{b}, v{b}, v{b+1}')
        a.emit(f'v_max_f32 v{b+1}, 0, v{b+1}')
        a.emit(f'v_add_f32 v{b+1}, 0x3727c5ac, v{b+1}')
        a.emit(f'v_rsq_f32 v{b+1}, v{b+1}')
        a.emit('s_nop 0')
        a.emit(f'v_mul_f32 v{b}, v{b}, v{b+1}')

    for st in range(S):
        for ins in dma_issue(): em(ins)
    a.emit(f's_waitcnt vmcnt({S*DMA_N})')
    a.emit('v_add_f32 v120, v120, v121')
    a.emit('v_add_f32 v122, v122, v123')
    a.emit('v_add_f32 v120, v120, v122')
    a.emit('v_lshlrev_b32 v3, 2, v0')
    a.emit(f'v_add_u32 v3, {RING+2048}, v3')
    a.emit(f'ds_write_b32 v3, v120')
    stats_reduce(76); stats_reduce(32)
    a.emit(f'v_mov_b32 v{VHS}, v32')
    a.emit(f'v_mov_b32 v{VHS+1}, v33')
    a.emit('v_lshlrev_b32 v3, 3, v1')
    a.emit('s_lshl_b32 s8, s7, 9')
    a.emit(f's_add_u32 s8, s8, {RING}')
    a.emit('v_add_u32 v3, s8, v3')
    a.emit('ds_write_b64 v3, v[76:77]')
    a.emit('v_and_b32 v3, 15, v1')
    a.emit('v_lshlrev_b32 v3, 3, v3')
    a.emit('v_add_u32 v3, s8, v3')
    a.emit('s_waitcnt lgkmcnt(0)')
    for jm in range(4):
        a.emit(f'ds_read_b64 v[{VST+2*jm}:{VST+2*jm+1}], v3 offset:{jm*128}')
    a.emit('s_waitcnt lgkmcnt(0)')
    a.emit(f's_waitcnt vmcnt({(S-1)*DMA_N})')
    a.emit('s_barrier')
    ts()
    for ins in rd_addr_update(): a.emit(ins)
    for ins in frag_reads(FA_X, FA_W, 0): a.emit(ins)

    def iteration(hj, issue_dma, issue_prev, last, vm_allowed):
        a.emit('s_waitcnt lgkmcnt(0)')
        side = frag_reads(FB_X, FB_W, 1)
        if issue_prev: side = side + split_dma()[1]
        interleave(mfmas(FA_X, FA_W, hj), side)
        if not last:
            a.emit(f's_waitcnt vmcnt({vm_allowed}) lgkmcnt(0)')
            a.emit('s_barrier')
        else:
            a.emit('s_waitcnt lgkmcnt(0)')
        side = []
        if not last: side += rd_addr_update() + frag_reads(FA_X, FA_W, 0)
        if issue_dma: side += split_dma()[0]
        interleave(mfmas(FB_X, FB_W, hj), side)
    nmain = NSTEP - S
    a.emit(f's_cmp_eq_u32 s{S_WM}, 1')
    a.emit(f's_cbranch_scc1 L_{name}_v1')
    for v, hj in ((0, [0, 1, 2]), (1, [3, 4, 5])):
        if v: a.label(f'L_{name}_v1')
        iteration(hj, True, False, False, (S - 2) * DMA_N)
        a.emit(f's_mov_b32 s{S_CNT}, {nmain - 1}')
        a.label(f'L_{name}_loop{v}')
        iteration(hj, True, True, False, (S - 2) * DMA_N)
        a.emit(f's_sub_u32 s{S_CNT}, s{S_CNT}, 1')
        a.emit(f's_cmp_lg_u32 s{S_CNT}, 0')
        a.emit(f's_cbranch_scc1 L_{name}_loop{v}')
        for t in range(S):
            i = nmain + t
            iteration(hj, False, t == 0, i == NSTEP - 1, max((NSTEP - 1) - (i + 1), 0) * DMA_N)
        if not v: a.emit(f's_branch L_{name}_epi')
    a.label(f'L_{name}_epi')
    ts()
    RS = 144; REG = 144 * RS
    a.emit('v_lshrrev_b32 v2, 4, v1')
    a.emit('v_and_b32 v29, 1, v2')
    a.emit('v_lshlrev_b32 v29, 4, v29')
    a.emit('v_lshrrev_b32 v2, 1, v2')
    a.emit('v_lshl_add_u32 v29, v2, 3, v29')
    a.emit('v_lshrrev_b32 v2, 4, v1')
    a.emit('v_lshlrev_b32 v28, 2, v2')
    CS = 32
    a.emit(f's_mul_i32 s8, s{S_WN}, 96')
    a.emit(f's_lshl_b32 s9, s{S_NT}, 6')
    for p in range(3):
        a.emit(f's_add_u32 s10, s8, {32*p}')
        a.emit('s_lshr_b32 s11, s10, 6')
        a.emit(f's_mul_i32 s{90+p}, s11, {REG}')
        a.emit('s_and_b32 s12, s10, 63')
        a.emit(f's_lshl_b32 s{93+p}, s12, 1')
        a.emit('s_lshl_b32 s11, s11, 10')
        a.emit('s_add_u32 s11, s11, s9')
        a.emit('s_add_u32 s11, s11, s12')
        a.emit('v_add_u32 v3, s10, v29')
        a.emit('v_lshlrev_b32 v3, 2, v3')
        a.emit(f'v_add_u32 v3, {RING+2048}, v3')
        a.emit(f'ds_read_b128 v[{CS+8*p}:{CS+8*p+3}], v3')
        a.emit(f'ds_read_b128 v[{CS+8*p+4}:{CS+8*p+7}], v3 offset:16')
    a.emit(f's_mul_i32 s13, s{S_WM}, 48')
    a.emit('s_add_u32 s13, s13, s8')
    for t in range(3):
        a.emit(f's_add_u32 s10, s13, {16*t}')
        a.emit('s_lshr_b32 s11, s10, 6')
        a.emit(f's_mul_i32 s{96+t}, s11, {REG}')
        a.emit('s_and_b32 s12, s10, 63')
        a.emit('s_lshl_b32 s14, s12, 1')
        a.emit(f's_add_u32 s{96+t}, s{96+t}, s14')
        a.emit('s_lshl_b32 s11, s11, 10')
        a.emit('s_add_u32 s11, s11, s9')
        a.emit('s_add_u32 s11, s11, s12')
        a.emit('v_add_u32 v3, s10, v28')
        a.emit('v_lshlrev_b32 v3, 2, v3')
        a.emit(f'v_add_u32 v3, {RING+2048}, v3')
        a.emit(f'ds_read_b128 v[{64+4*t}:{67+4*t}], v3')
    a.emit('v_and_b32 v4, 15, v1')
    a.emit(f's_lshl_b32 s10, s{S_WM}, 6')
    a.emit('v_add_u32 v5, s10, v4')
    a.emit(f'v_mul_u32_u24 v5, {RS}, v5')
    a.emit(f'v_add_u32 v5, {16*RS}, v5')
    a.emit('v_lshl_add_u32 v5, v29, 1, v5')
    a.emit(f'v_mul_u32_u24 v6, {RS}, v4')
    a.emit('v_lshl_add_u32 v6, v28, 1, v6')
    a.emit('s_waitcnt vmcnt(0) lgkmcnt(0)')
    a.emit('s_barrier')
    for jm in range(4):
        for p in range(3):
            P = acc(2*p, jm); Q = acc(2*p+1, jm)
            for r in range(4): a.emit(f'v_permlane16_swap_b32 v{P+r}, v{Q+r}')
            vals = [P, P+1, P+2, P+3, Q, Q+1, Q+2, Q+3]
            for i, x in enumerate(vals):
                a.emit(f'v_mul_f32 v10, v{VST+2*jm}, v{CS+8*p+i}')
                a.emit(f'v_fma_f32 v{x}, v{x}, v{VST+2*jm+1}, -v10')
            for i in range(4): a.emit(f'v_cvt_pk_bf16_f32 v{P+i}, v{vals[2*i]}, v{vals[2*i+1]}')
            a.emit(f's_add_u32 s10, s{90+p}, s{93+p}')
            a.emit(f's_add_u32 s10, s10, {jm*16*RS}')
            a.emit('v_add_u32 v7, s10, v5')
            a.emit(f'ds_write_b128 v7, v[{P}:{P+3}]')
    for t in range(3):
        T = HACC + 4 * t
        for i in range(4):
            a.emit(f'v_mul_f32 v10, v{VHS}, v{64+4*t+i}')
            a.emit(f'v_fma_f32 v{T+i}, v{T+i}, v{VHS+1}, -v10')
        a.emit(f'v_cvt_pk_bf16_f32 v{T}, v{T}, v{T+1}')
        a.emit(f'v_cvt_pk_bf16_f32 v{T+1}, v{T+2}, v{T+3}')
        a.emit(f'v_add_u32 v7, s{96+t}, v6')
        a.emit(f'ds_write_b64 v7, v[{T}:{T+1}]')
    a.emit('s_waitcnt lgkmcnt(0)')
    a.emit('s_barrier')
    a.emit('v_lshrrev_b32 v2, 1, v0')
    a.emit('v_and_b32 v1, 1, v0')
    a.emit(f's_lshl_b32 s8, s{S_MT}, 7')
    a.emit('v_add_u32 v3, s8, v2')
    a.emit(f'v_mul_u32_u24 v4, {RS}, v2')
    a.emit('v_lshl_add_u32 v4, v1, 6, v4')
    a.emit('v_lshlrev_b32 v13, 11, v3')
    a.emit('v_lshl_add_u32 v13, v1, 6, v13')
    a.emit(f's_lshl_b32 s9, s{S_NT}, 7')
    a.emit('v_add_u32 v13, s9, v13')
    for j in range(4):
        a.emit(f'ds_read_b128 v[{16+4*j}:{19+4*j}], v4 offset:{16*RS+16*j}')
    for w in range(8):
        for j in range(4):
            a.emit(f'ds_read_b128 v[{32+16*w+4*j}:{35+16*w+4*j}], v4 offset:{REG+(16-2*w)*RS+16*j}')
    for w in range(8): a.emit(f'v_mov_b32 v{160+w}, 0')
    a.emit('s_waitcnt lgkmcnt(0)')
    for i in range(16):
        for w in range(8):
            a.emit(f'v_dot2_f32_bf16 v{160+w}, v{16+i}, v{32+16*w+i}, v{160+w}')
    a.emit('s_nop 3')
    for w in range(8):
        for j in range(4):
            a.emit(f'ds_read_b128 v[{32+16*w+4*j}:{35+16*w+4*j}], v4 offset:{2*REG+(16-2*w)*RS+16*j}')
    a.emit('s_mov_b32 s6, 0x3e3504f3')
    a.emit('s_mov_b32 s7, 0xce6e6b28')
    for w in range(8):
        a.emit(f'v_mul_f32 v{160+w}, s6, v{160+w}')
        if w > 0:
            a.emit(f'v_cmp_gt_i32 vcc, {2*w}, v3')
            a.emit('v_mov_b32 v2, s7')
            a.emit(f'v_cndmask_b32 v{160+w}, v{160+w}, v2, vcc')
    a.emit('v_max_f32 v168, v160, v161')
    for w in range(2, 8): a.emit(f'v_max_f32 v168, v168, v{160+w}')
    a.emit('s_mov_b32 s8, 0x3fb8aa3b')
    for w in range(8):
        a.emit(f'v_sub_f32 v{160+w}, v{160+w}, v168')
        a.emit(f'v_mul_f32 v{160+w}, s8, v{160+w}')
        a.emit(f'v_exp_f32 v{160+w}, v{160+w}')
    a.emit('s_nop 0')
    a.emit('v_add_f32 v169, v160, v161')
    for w in range(2, 8): a.emit(f'v_add_f32 v169, v169, v{160+w}')
    a.emit('v_rcp_f32 v169, v169')
    a.emit('s_nop 0')
    for w in range(8): a.emit(f'v_mul_f32 v{160+w}, v{160+w}, v169')
    for p in range(4): a.emit(f'v_cvt_pk_bf16_f32 v{170+p}, v{160+2*p}, v{161+2*p}')
    for d in range(32): a.emit(f'v_mov_b32 v{176+d}, 0')
    a.emit('s_mov_b32 s9, 0x05040100')
    a.emit('s_mov_b32 s10, 0x07060302')
    a.emit('s_waitcnt lgkmcnt(0)')
    for i in range(16):
        for p in range(4):
            w = 2*p
            a.emit(f'v_perm_b32 v1, v{32+16*(w+1)+i}, v{32+16*w+i}, s9')
            a.emit(f'v_perm_b32 v2, v{32+16*(w+1)+i}, v{32+16*w+i}, s10')
            a.emit(f'v_dot2_f32_bf16 v{176+2*i}, v1, v{170+p}, v{176+2*i}')
            a.emit(f'v_dot2_f32_bf16 v{177+2*i}, v2, v{170+p}, v{177+2*i}')
    a.emit('s_nop 3')
    for i in range(16): a.emit(f'v_cvt_pk_bf16_f32 v{16+i}, v{176+2*i}, v{177+2*i}')
    for j in range(4):
        a.emit(f'buffer_store_dwordx4 v[{16+4*j}:{19+4*j}], v13, s[{SO}:{SO+3}], 0 offen offset:{16*j}')
    if TS:
        a.emit('s_waitcnt vmcnt(0)')
        ts()
        make_srd(a, 36, 'ws', 60 * MB, 1 << 20)
        a.emit('s_lshl_b32 s4, s2, 6')
        a.emit('v_mov_b32 v1, s4')
        a.emit(f'v_add_u32 v1, {(6 + int(name[5]))*65536}, v1')
        for i in range(8):
            a.emit(f'v_mov_b32 v{2+i}, s{80+i}')
        a.emit('v_cmp_eq_u32 vcc, 0, v0')
        a.emit('s_and_saveexec_b64 s[6:7], vcc')
        a.emit('buffer_store_dwordx4 v[2:5], v1, s[36:39], 0 offen')
        a.emit('buffer_store_dwordx4 v[6:9], v1, s[36:39], 0 offen offset:16')
        a.emit('s_waitcnt vmcnt(0)')
    a.label(f'L_{name}_end')
    kernel_end(a, name, 256)
    return RING + 3072
```

```python
from common import *
from gemm64 import gen_gemm64
from gemmw1 import gen_w1
HYB = ENV('HYB', '0') == '1'

def main():
    launches = []
    a = Asm()
    def add(name, grid, lds, blk=512):
        launches.append(f'; @launch kernel={name} grid=({grid},1,1) block=({blk},1,1) lds={lds}')
    nos = lambda a: None
    if HYB:
        import gen7
        from qkvattn7 import gen_qkv_attn
        gen7.WS_ST = WS_ST; gen7.WS_CS = WS_CS
        gen7.gen_prep(a, 'prep_kernel')
        lq = gen_qkv_attn(a, 'attnl0_kernel', ('A_x', 0), WS_O, WS_ST, WS_CS)
        gen_qkv_attn(a, 'attnl1_kernel', ('out', 0), WS_O, WS_ST, WS_CS)
        lo = gen_gemm64(a, 'wo', 1, nos)
        l1 = gen_w1(a, 2, nos, cs=(4, 32768, 16384))
        l2 = gen_gemm64(a, 'w2', 3, nos)
        add('prep_kernel', 688, 2048, 256)
        for L in range(2):
            add(f'attnl{L}_kernel', 256, lq, 256)
            add(f'wol{L}_kernel', 256, lo); add(f'w1l{L}_kernel', 256, l1); add(f'w2l{L}_kernel', 256, l2)
    else:
        from qkv import gen_qkv
        import sides
        lq = gen_qkv(a, 0, sides.qkv)
        lo = gen_gemm64(a, 'wo', 1, sides.wo)
        l1 = gen_w1(a, 2, sides.w1)
        l2 = gen_gemm64(a, 'w2', 3, sides.w2)
        for L in range(2):
            add(f'attnl{L}_kernel', 256, lq)
            add(f'wol{L}_kernel', 256, lo); add(f'w1l{L}_kernel', 256, l1); add(f'w2l{L}_kernel', 256, l2)
    hdr = open(os.path.join(os.path.dirname(os.path.abspath(__file__)), '..', 'header.txt')).read()
    out = hdr + '\n'.join(launches) + '\n.amdgcn_target "amdgcn-amd-amdhsa--gfx950"\n' + a.text()
    check_offsets(out)
    path = sys.argv[1]
    open(path, 'w').write(out)
    print('wrote', path, len(out))
main()
```

```python
import sys, os, struct
sys.path.insert(0, os.path.join(os.path.dirname(os.path.abspath(__file__)), '..'))
from asmlib import Asm, check_offsets
MB = 1 << 20
WS_O   = 0
WS_X1  = 4 * MB
WS_H   = 8 * MB
WS_ST  = 23 * MB
WS_CS  = 23 * MB + 512 * 1024
WS_TS  = 60 * MB
f2u = lambda f: struct.unpack('<I', struct.pack('<f', f))[0]
ENV = os.environ.get
TS = ENV('TS', '')
DBG = ENV('DBG', '').split(',')
STF = ' sc0 sc1' if ENV('WT', '0') == '1' else ''

KA = {'A_x': 0, 'wqkv': 8, 'wo': 16, 'w1': 32, 'b1': 40, 'w2': 48, 'b2': 56, 'out': 64, 'ws': 80}
P_IN = 16
P_OUT = 32; P_WS = 34
P_XS = 12
PTR = {'A_x': 16, 'wqkv': 18, 'wo': 20, 'w1': 24, 'b1': 26, 'w2': 28, 'b2': 30, 'out': 32, 'ws': 34, 'xs': 12}
SX, SW, SO, SR, SB, ST, SP, SC = 36, 40, 44, 48, 52, 56, 60, 64
S_MT, S_NT, S_WV, S_WM, S_WN = 68, 69, 70, 71, 72
S_KX, S_KW, S_SLOT, S_XD, S_WD, S_HD, S_CNT = 73, 74, 75, 76, 77, 78, 79
S_LAYER = 96; S_TSI = 97; S_T = 98; S_CU = 99; S_XG = 100; S_KT = 101

KD = '''.section .rodata,"a"
.p2align 6
.amdhsa_kernel {name}
  .amdhsa_next_free_vgpr 256
  .amdhsa_next_free_sgpr 102
  .amdhsa_accum_offset 256
  .amdhsa_group_segment_fixed_size 0
  .amdhsa_kernarg_size 88
  .amdhsa_user_sgpr_count 2
  .amdhsa_user_sgpr_kernarg_segment_ptr 1
  .amdhsa_system_sgpr_workgroup_id_x 1
  .amdhsa_float_denorm_mode_32 3
  .amdhsa_float_denorm_mode_16_64 3
.end_amdhsa_kernel
.text
'''

def srd(a, sd, which, off, size):
    p = PTR[which]
    if off:
        a.emit(f's_add_u32 s{sd}, s{p}, {off}')
        a.emit(f's_addc_u32 s{sd+1}, s{p+1}, 0')
        a.emit(f's_and_b32 s{sd+1}, s{sd+1}, 0xffff')
    else:
        a.emit(f's_mov_b32 s{sd}, s{p}')
        a.emit(f's_and_b32 s{sd+1}, s{p+1}, 0xffff')
    a.emit(f's_mov_b32 s{sd+2}, {size}')
    a.emit(f's_mov_b32 s{sd+3}, 0x00020000')

def stub(a, name, body, layer, tsidx, first):
    a(f'.text\n.globl {name}\n.p2align 8\n.type {name},@function\n{name}:')
    if TS:
        stamp(a, 0, nowait=True)
    a.emit('s_load_dwordx16 s[16:31], s[0:1], 0')
    a.emit('s_load_dwordx2 s[32:33], s[0:1], 64')
    a.emit('s_load_dwordx2 s[34:35], s[0:1], 80')
    a.emit(f's_load_dwordx2 s[12:13], s[0:1], {0 if layer == 0 else 64}')
    a.emit(f's_mov_b32 s{S_LAYER}, {layer}')
    if TS: a.emit(f's_mov_b32 s{S_TSI}, {tsidx}')
    if not first:
        a.emit(f's_branch {body}')

def stamp(a, n, nowait=False):
    if not TS: return
    a.emit(f's_memrealtime s[{80+4*n}:{81+4*n}]')
    a.emit(f's_memtime s[{82+4*n}:{83+4*n}]')
    if not nowait: a.emit('s_waitcnt lgkmcnt(0)')

def stamps_out(a, tag):
    if not TS: return
    a.emit('s_waitcnt vmcnt(0)')
    stamp(a, 3)
    srd(a, SP, 'ws', WS_TS, 1 << 20)
    a.emit('s_lshl_b32 s4, s2, 6')
    a.emit(f's_lshl_b32 s5, s{S_TSI}, 16')
    a.emit('s_add_u32 s4, s4, s5')
    a.emit('v_mov_b32 v1, s4')
    for i in range(16): a.emit(f'v_mov_b32 v{4+i}, s{80+i}')
    a.emit('v_cmp_eq_u32 vcc, 0, v0')
    a.emit('s_and_saveexec_b64 s[6:7], vcc')
    a.emit(f's_cbranch_execz L_tsskip_{tag}')
    for j in range(4):
        a.emit(f'buffer_store_dwordx4 v[{4+4*j}:{7+4*j}], v1, s[{SP}:{SP+3}], 0 offen offset:{16*j}')
    a.emit('s_waitcnt vmcnt(0)')
    a.label(f'L_tsskip_{tag}')

def tile_map(a, LM, endlab):
    a.emit('s_cmp_ge_u32 s2, 256')
    a.emit(f's_cbranch_scc1 {endlab}')
    a.emit('v_lshrrev_b32 v2, 6, v0')
    a.emit('v_and_b32 v1, 63, v0')
    a.emit(f'v_readfirstlane_b32 s{S_WV}, v2')
    a.emit('s_and_b32 s3, s2, 7')
    a.emit(f's_lshr_b32 s{S_CU}, s2, 3')
    a.emit(f's_and_b32 s5, s3, {(1 << (4 - LM)) - 1}')
    a.emit(f's_lshl_b32 s5, s5, {LM}')
    a.emit(f's_and_b32 s6, s{S_CU}, {(1 << LM) - 1}')
    a.emit(f's_add_u32 s{S_MT}, s5, s6')
    a.emit(f's_lshr_b32 s5, s3, {4 - LM}')
    a.emit(f's_lshl_b32 s5, s5, {5 - LM}')
    a.emit(f's_lshr_b32 s6, s{S_CU}, {LM}')
    a.emit(f's_add_u32 s{S_NT}, s5, s6')
    if 'smallm' in DBG: a.emit(f's_and_b32 s{S_MT}, s{S_MT}, 1')
    if 'smalln' in DBG: a.emit(f's_and_b32 s{S_NT}, s{S_NT}, 1')

def interleave(a, main, side, lead=1, per=1):
    si = 0
    for i, m in enumerate(main):
        a.emit(m)
        if i + 1 >= lead:
            for _ in range(per):
                if si < len(side): a.emit(side[si]); si += 1
    while si < len(side): a.emit(side[si]); si += 1

class Loader:
    VXD = 4; VWD = 8; VXH = 28
    def __init__(self, a, tag, K, lda2, ldw2, panels, colbase, S, STAGE, halo=None, delta=0, rot=None):
        self.a = a; self.tag = tag; self.K = K; self.lda2 = lda2; self.ldw2 = ldw2; self.panels = panels
        self.colbase = colbase; self.S = S; self.STAGE = STAGE; self.halo = halo; self.delta = delta; self.rot = rot if rot is not None and rot >= 0 else None
        self.NSTEP = K // 64
        self.per = 4 + 2 * len(panels) + (1 if halo is not None else 0)
    def setup(self):
        a = self.a
        a.emit(f's_add_u32 s8, s{S_WV}, s{S_NT}')
        a.emit('s_and_b32 s8, s8, 3')
        a.emit(f's_add_u32 s9, s{S_WV}, s{S_MT}')
        a.emit('s_and_b32 s9, s9, 3')
        a.emit(f's_lshl_b32 s{S_XD}, s8, 12')
        a.emit(f's_lshl_b32 s{S_WD}, s9, 11')
        a.emit(f's_add_u32 s{S_WD}, s{S_WD}, 16384')
        a.emit('v_lshrrev_b32 v3, 3, v1')
        a.emit('s_lshl_b32 s10, s8, 5')
        a.emit(f's_lshl_b32 s11, s{S_MT}, 7')
        a.emit('s_add_u32 s10, s10, s11')
        a.emit('v_add_u32 v3, s10, v3')
        a.emit(f'v_mul_u32_u24 v3, {self.lda2}, v3')
        a.emit('v_lshrrev_b32 v2, 4, v1')
        a.emit('v_and_b32 v10, 7, v1')
        for j in range(4):
            d = self.VXD + j
            if j & 1:
                a.emit(f'v_add_u32 v{d}, 4, v2')
                a.emit(f'v_xor_b32 v{d}, v{d}, v10')
            else:
                a.emit(f'v_xor_b32 v{d}, v2, v10')
            a.emit(f'v_lshl_add_u32 v{d}, v{d}, 4, v3')
            if j < 3: a.emit(f'v_add_u32 v3, {8*self.lda2}, v3')
        a.emit('v_lshrrev_b32 v3, 3, v1')
        a.emit('s_lshl_b32 s10, s9, 4')
        a.emit('v_add_u32 v3, s10, v3')
        a.emit(f'v_mul_u32_u24 v3, {self.ldw2}, v3')
        a.emit('v_lshrrev_b32 v2, 3, v1')
        a.emit('v_and_b32 v2, 2, v2')
        a.emit('v_xor_b32 v2, v2, v10')
        a.emit(f's_mul_i32 s10, s{S_NT}, {self.colbase}')
        if self.colbase & 127: a.emit('s_andn2_b32 s10, s10, 127')
        a.emit('v_add_u32 v3, s10, v3')
        a.emit(f'v_lshl_add_u32 v{self.VWD}, v2, 4, v3')
        a.emit('v_xor_b32 v2, 4, v2')
        a.emit(f'v_add_u32 v3, {8*self.ldw2}, v3')
        a.emit(f'v_lshl_add_u32 v{self.VWD+1}, v2, 4, v3')
        if self.halo is not None:
            a.emit(f's_and_b32 s10, s{S_WV}, 3')
            a.emit(f's_lshl_b32 s{S_HD}, s10, 9')
            a.emit(f's_add_u32 s{S_HD}, s{S_HD}, {self.halo}')
            a.emit('s_lshl_b32 s14, s10, 2')
            a.emit('s_add_u32 s14, s14, s11')
            a.emit('s_sub_u32 s14, s14, 16')
            a.emit('v_lshrrev_b32 v3, 3, v1')
            a.emit('v_add_u32 v3, s14, v3')
            a.emit('v_max_i32 v3, 0, v3')
            a.emit(f'v_mul_u32_u24 v3, {self.lda2}, v3')
            a.emit('s_lshl_b32 s14, s10, 1')
            a.emit('v_lshrrev_b32 v2, 4, v1')
            a.emit('v_add_u32 v2, s14, v2')
            a.emit('v_and_b32 v2, 7, v2')
            a.emit('v_xor_b32 v2, v2, v10')
            a.emit(f'v_lshl_add_u32 v{self.VXH}, v2, 4, v3')
            a.emit('s_cmp_eq_u32 s10, 0')
            a.emit('s_cselect_b32 s14, 0xffffff00, -1')
            a.emit('s_mov_b32 s15, 0')
        a.emit(f's_mov_b32 s{S_SLOT}, 0')
        if self.rot is None:
            a.emit(f's_mov_b32 s{S_KX}, 0')
            a.emit(f's_mov_b32 s{S_KW}, 0')
        else:
            a.emit(f's_add_u32 s{S_XG}, s{S_MT}, s{S_NT}')
            a.emit(f's_mov_b32 s{S_KT}, -1')
            for x in self.knext(): a.emit(x)
    def knext(self):
        if self.rot is None:
            return [f's_add_u32 s{S_KX}, s{S_KX}, 128', f's_add_u32 s{S_KW}, s{S_KW}, {64*self.ldw2}']
        lc = self.rot; C = 1 << lc; N = self.NSTEP
        o = [f's_add_u32 s{S_KT}, s{S_KT}, 1']
        if lc: o += [f's_lshr_b32 s{S_KX}, s{S_KT}, {lc}', f's_xor_b32 s{S_KX}, s{S_KX}, s{S_XG}']
        else: o += [f's_xor_b32 s{S_KX}, s{S_KT}, s{S_XG}']
        o += [f's_and_b32 s{S_KX}, s{S_KX}, 3',
              f's_cselect_b32 s{S_KX}, {N - C}, {3 * C}',
              f's_add_u32 s{S_KX}, s{S_KX}, s{S_KT}']
        if N & (N - 1) == 0: o += [f's_and_b32 s{S_KX}, s{S_KX}, {N - 1}']
        else: o += [f's_sub_u32 s{S_KW}, s{S_KX}, {N}', f's_cselect_b32 s{S_KX}, s{S_KX}, s{S_KW}']
        o += [f's_mul_i32 s{S_KW}, s{S_KX}, {64*self.ldw2}', f's_lshl_b32 s{S_KX}, s{S_KX}, 7']
        return o
    def issue(self):
        o = []
        if 'nodma' in DBG: return o
        o.append(f's_add_u32 s3, s{S_SLOT}, s{S_XD}')
        for j in range(4):
            o.append(f's_add_u32 m0, s3, {j*1024}')
            o.append('s_nop 0')
            o.append(f'buffer_load_dwordx4 v{self.VXD+j}, s[{SX}:{SX+3}], s{S_KX} offen lds')
        if self.halo is not None:
            o.append(f's_add_u32 m0, s{S_SLOT}, s{S_HD}')
            o.append('s_mov_b64 exec, s[14:15]')
            o.append(f'buffer_load_dwordx4 v{self.VXH}, s[{SX}:{SX+3}], s{S_KX} offen lds')
            o.append('s_mov_b64 exec, -1')
        o.append(f's_add_u32 s3, s{S_SLOT}, s{S_WD}')
        for pn, goff in enumerate(self.panels):
            for i in range(2):
                o.append(f's_add_u32 m0, s3, {pn*8192+i*1024}')
                o.append(f's_add_u32 s4, s{S_KW}, {goff}' if i == 0 else 's_nop 0')
                o.append(f'buffer_load_dwordx4 v{self.VWD+i}, s[{SW}:{SW+3}], s4 offen lds')
        o += self.knext()
        o.append(f's_add_u32 s{S_SLOT}, s{S_SLOT}, {self.STAGE}')
        o.append(f's_cmp_eq_u32 s{S_SLOT}, {self.S*self.STAGE}')
        o.append(f's_cselect_b32 s{S_SLOT}, 0, s{S_SLOT}')
        return o
    def run(self, variant='', d=None, per_stage=None, tail_issue=None, ntail_vm=0, final=None):
        a = self.a; per = self.per; N = self.NSTEP
        if d is None: d = self.S - 1
        tag = self.tag + variant
        def iss():
            for x in self.issue(): a.emit(x)
        def wait(n):
            assert n <= 63, n
            a.emit(f's_waitcnt vmcnt({n})' + (' lgkmcnt(0)' if per_stage else ''))
        pre = min(2, d)
        for _ in range(pre): iss()
        wait((pre - 1) * per)
        a.emit('s_barrier')
        for _ in range(pre, d): iss()
        nmain = N - d
        a.emit(f's_mov_b32 s{S_CNT}, {nmain - 1}')
        a.label(f'L_{tag}_ld')
        iss()
        if per_stage: per_stage()
        wait((d - 1) * per)
        a.emit('s_barrier')
        a.emit(f's_sub_u32 s{S_CNT}, s{S_CNT}, 1')
        a.emit(f's_cmp_lg_u32 s{S_CNT}, 0')
        a.emit(f's_cbranch_scc1 L_{tag}_ld')
        iss()
        if tail_issue: tail_issue()
        for i in range(N - 1 - d, N):
            if per_stage: per_stage()
            if i + 1 < N:
                wait((N - 1 - (i + 1)) * per + ntail_vm)
            else:
                if final: final()
            a.emit('s_barrier')

def pf_weights(a, sd, which, size, ldw2, R, sh, L, LMn, tilebytes, NI, vd, row0=0, qkv=False):
    if 'nopf' in DBG: return 0
    srd(a, sd, which, 0, size)
    a.emit(f's_and_b32 s3, s{S_WV}, 3')
    a.emit(f's_mul_i32 s3, s3, {NI * (64 >> sh)}')
    a.emit(f's_mul_i32 s4, s{S_CU}, {R}')
    a.emit('s_add_u32 s3, s3, s4')
    if row0: a.emit(f's_add_u32 s3, s3, {row0}')
    a.emit(f'v_lshrrev_b32 v2, {sh}, v1')
    a.emit('v_add_u32 v2, s3, v2')
    a.emit(f'v_mul_u32_u24 v2, {ldw2}, v2')
    a.emit(f'v_and_b32 v3, {(1 << sh) - 1}, v1')
    if L < (1 << sh): a.emit(f'v_min_u32 v3, {L-1}, v3')
    if qkv:
        a.emit('v_lshrrev_b32 v12, 2, v3')
        a.emit('v_lshl_add_u32 v2, v12, 11, v2')
        a.emit('v_and_b32 v3, 3, v3')
    a.emit('v_lshl_add_u32 v2, v3, 7, v2')
    a.emit('s_and_b32 s3, s2, 7')
    a.emit(f's_lshr_b32 s3, s3, {4 - LMn}')
    a.emit(f's_mul_i32 s3, s3, {(1 << (5 - LMn)) * tilebytes}')
    for i in range(NI):
        a.emit(f'buffer_load_dword v{vd+i}, v2, s[{sd}:{sd+3}], s3 offen')
        if i + 1 < NI: a.emit(f's_add_u32 s3, s3, {(64 >> sh) * ldw2}')
    return NI

_pfc = [0]
def pf_code(a, start, end, vd, forward=True):
    if 'nopfc' in DBG: return 0
    _pfc[0] += 1
    lab = f'L_pfc{_pfc[0]}'
    a.emit('s_getpc_b64 s[4:5]')
    a.label(lab)
    if forward:
        a.emit(f's_add_u32 s4, s4, {start}-{lab}')
        a.emit('s_addc_u32 s5, s5, 0')
    else:
        a.emit(f's_sub_u32 s4, s4, {lab}-{start}')
        a.emit('s_subb_u32 s5, s5, 0')
    a.emit(f's_and_b32 s3, s{S_WV}, 3')
    a.emit('s_lshl_b32 s3, s3, 13')
    a.emit('v_lshl_add_u32 v2, v1, 7, s3')
    a.emit(f'v_min_u32 v2, {end}-{start}-4, v2')
    a.emit(f'global_load_dword v{vd}, v2, s[4:5]')
    return 1

def wbase(a, vd, vt, g='v2'):
    a.emit(f'v_bfe_u32 v{vd}, v1, 2, 2')
    a.emit(f'v_lshl_add_u32 v{vd}, {g}, 3, v{vd}')
    a.emit(f'v_lshlrev_b32 v{vd}, 7, v{vd}')
    a.emit(f'v_and_b32 v{vt}, 3, v1')
    a.emit(f'v_lshl_add_u32 v{vd}, v{vt}, 3, v{vd}')
    a.emit(f'v_bfe_u32 v{vt}, v1, 3, 2')
    a.emit(f'v_lshl_add_u32 v{vd}, v{vt}, 5, v{vd}')
```

```python
from common import *

def gen_gemm64(a, kind, tsidx, side):
    K = 1024 if kind == 'wo' else 3584
    lda2 = K * 2; ldw2 = 2048
    S = int(ENV('S64', '6')); DELTA = int(ENV('DELTA', '0'))
    LM = int(ENV('LM_' + kind.upper(), '2'))
    STAGE = 16384 + 8192
    N = K // 64
    body = f'L_{kind}_body'; end = f'L_{kind}_end'
    VXB, VWB, VXA, VWA, VO = 4, 6, 24, 26, 12
    F = [32, 80]; ACC = 128; RES = 160; BIA = 176
    acc = lambda jn, jm: ACC + (jn * 2 + jm) * 4
    fx = lambda s, ks, jm: F[s] + (ks * 2 + jm) * 4
    fw = lambda s, ks, jn: F[s] + 16 + (ks * 4 + jn) * 4
    a.label(f'L_{kind}_c0')
    stub(a, f'{kind}l0_kernel', body, 0, tsidx, True)
    a.label(body)
    tile_map(a, LM, end)
    a.emit(f's_cmp_ge_u32 s{S_WV}, 4')
    a.emit(f's_cbranch_scc1 L_{kind}_loader')
    a.emit('v_and_b32 v3, 15, v1')
    a.emit('v_lshrrev_b32 v2, 4, v1')
    a.emit(f's_lshl_b32 s8, s{S_MT}, 7')
    a.emit(f's_lshl_b32 s9, s{S_WV}, 5')
    a.emit('s_add_u32 s8, s8, s9')
    a.emit('v_add_u32 v13, s8, v3')
    a.emit(f's_lshl_b32 s10, s{S_NT}, 7')
    a.emit('v_lshl_add_u32 v14, v2, 3, s10')
    a.emit('v_lshl_add_u32 v15, v13, 11, v14')
    a.emit('v_and_b32 v16, 1, v2')
    a.emit('v_lshlrev_b32 v16, 5, v16')
    a.emit('v_lshrrev_b32 v17, 1, v2')
    a.emit('v_lshl_add_u32 v16, v17, 4, v16')
    a.emit('v_add_u32 v16, s10, v16')
    a.emit(f'v_lshl_add_u32 v{VO}, v13, 11, v16')
    a.emit('v_lshl_add_u32 v18, v17, 4, v13')
    a.emit('v_lshlrev_b32 v18, 3, v18')
    a.emit('v_and_b32 v16, 1, v2')
    a.emit('v_lshl_add_u32 v18, v16, 2, v18')
    a.emit(f's_lshl_b32 s10, s{S_NT}, 14')
    a.emit('v_add_u32 v18, s10, v18')
    a.emit('v_lshrrev_b32 v17, 1, v3')
    a.emit(f's_lshl_b32 s8, s{S_WV}, 12')
    for ks in range(2):
        if ks: a.emit(f'v_add_u32 v{VXB+ks}, 4, v2')
        a.emit(f'v_xor_b32 v{VXB+ks}, v{VXB+ks if ks else 2}, v17')
        a.emit(f'v_lshlrev_b32 v{VXB+ks}, 4, v{VXB+ks}')
        a.emit(f'v_lshl_add_u32 v{VXB+ks}, v3, 7, v{VXB+ks}')
        a.emit(f'v_add_u32 v{VXB+ks}, s8, v{VXB+ks}')
    wbase(a, VWB, 17)
    a.emit(f'v_add_u32 v{VWB}, 16384, v{VWB}')
    for i in range(1, 4): a.emit(f'v_xor_b32 v{VWB+i}, {32*i}, v{VWB}')
    a.emit('s_waitcnt lgkmcnt(0)')
    if kind == 'wo':
        srd(a, SR, 'xs', 0, 4 * MB); srd(a, SO, 'ws', WS_X1, 4 * MB)
    else:
        srd(a, SR, 'ws', WS_X1, 4 * MB); srd(a, SO, 'out', 0, 4 * MB); srd(a, SB, 'b2', 0, 2048)
    srd(a, ST, 'ws', WS_ST, 16 * 16384)
    a.emit(f's_mov_b32 s3, {16*2048}')
    for jm in range(2):
        for jn in range(4):
            r = RES + (jn * 2 + jm) * 2
            a.emit(f'buffer_load_dwordx2 v[{r}:{r+1}], v15, s[{SR}:{SR+3}], {"s3" if jm else "0"} offen offset:{jn*32}')
    if kind == 'w2':
        for jn in range(4):
            a.emit(f'buffer_load_dwordx2 v[{BIA+2*jn}:{BIA+2*jn+1}], v14, s[{SB}:{SB+3}], 0 offen offset:{jn*32}')
    a.emit('s_mov_b32 s11, 0xffff0000')
    a.emit(f's_mov_b32 s{S_SLOT}, 0')
    a.emit('s_waitcnt vmcnt(0)')
    if kind == 'w2':
        for jn in range(4):
            for h in range(2):
                a.emit(f'v_lshlrev_b32 v{184+4*jn+2*h}, 16, v{BIA+2*jn+h}')
                a.emit(f'v_and_b32 v{185+4*jn+2*h}, s11, v{BIA+2*jn+h}')
    for jn in range(4):
        for jm in range(2):
            r = RES + (jn * 2 + jm) * 2; c = acc(jn, jm)
            for h in range(2):
                a.emit(f'v_lshlrev_b32 v{c+2*h}, 16, v{r+h}')
                a.emit(f'v_and_b32 v{c+2*h+1}, s11, v{r+h}')
                if kind == 'w2':
                    a.emit(f'v_pk_add_f32 v[{c+2*h}:{c+2*h+1}], v[{c+2*h}:{c+2*h+1}], v[{184+4*jn+2*h}:{185+4*jn+2*h}]')
    def addr():
        o = [f'v_add_u32 v{VXA+i}, s{S_SLOT}, v{VXB+i}' for i in range(6)]
        o += [f's_add_u32 s{S_SLOT}, s{S_SLOT}, {STAGE}', f's_cmp_eq_u32 s{S_SLOT}, {S*STAGE}', f's_cselect_b32 s{S_SLOT}, 0, s{S_SLOT}']
        return o
    def reads(s):
        o = []
        if 'noread' in DBG: return o
        for ks in range(2):
            for jm in range(2):
                o.append(f'ds_read_b128 v[{fx(s,ks,jm)}:{fx(s,ks,jm)+3}], v{VXA+ks} offset:{jm*2048}')
            for jn in range(4):
                for h in range(2):
                    r = fw(s, ks, jn) + 2 * h
                    o.append(f'ds_read_b64_tr_b16 v[{r}:{r+1}], v{VWA+jn} offset:{ks*4096+h*512}')
        return o
    def mf(s):
        o = []
        if 'nomfma' in DBG: return ['s_nop 0']
        for ks in range(2):
            for jn in range(4):
                for jm in range(2):
                    c = acc(jn, jm)
                    o.append(f'v_mfma_f32_16x16x32_bf16 v[{c}:{c+3}], v[{fw(s,ks,jn)}:{fw(s,ks,jn)+3}], v[{fx(s,ks,jm)}:{fx(s,ks,jm)+3}], v[{c}:{c+3}]')
        return o
    for x in addr(): a.emit(x)
    a.emit('s_barrier')
    stamp(a, 1)
    for x in reads(0): a.emit(x)
    a.emit(f's_mov_b32 s{S_CNT}, {N//2}')
    for x in addr(): a.emit(x)
    a.emit('s_waitcnt lgkmcnt(0)')
    a('.p2align 3')
    a.label(f'L_{kind}_loop')
    for s in range(2):
        a.emit('s_barrier')
        interleave(a, mf(s), reads(1 - s) + addr(), lead=1, per=2)
        if s == 1:
            a.emit(f's_sub_u32 s{S_CNT}, s{S_CNT}, 1')
            a.emit(f's_cmp_lg_u32 s{S_CNT}, 0')
        a.emit('s_waitcnt lgkmcnt(0)')
    a.emit(f's_cbranch_scc1 L_{kind}_loop')
    stamp(a, 2)
    a.emit('s_mov_b32 s11, 0x3f803f80')
    for i in range(4): a.emit(f'v_mov_b32 v{20+i}, 0')
    a.emit(f's_mov_b32 s3, {16*2048}')
    a.emit('s_nop 4')
    D = 32
    for jm in range(2):
        for p in range(2):
            d = D + (jm * 2 + p) * 4
            for q in range(2):
                c = acc(2 * p + q, jm)
                a.emit(f'v_cvt_pk_bf16_f32 v{d+2*q}, v{c}, v{c+1}')
                a.emit(f'v_cvt_pk_bf16_f32 v{d+2*q+1}, v{c+2}, v{c+3}')
            a.emit('s_nop 1')
            a.emit(f'v_permlane16_swap_b32 v{d}, v{d+2}')
            a.emit(f'v_permlane16_swap_b32 v{d+1}, v{d+3}')
            a.emit(f'buffer_store_dwordx4 v[{d}:{d+3}], v{VO}, s[{SO}:{SO+3}], {"s3" if jm else "0"} offen offset:{p*64}{STF}')
    for jm in range(2):
        for i in range(8):
            d = D + jm * 8 + i
            a.emit(f'v_dot2_f32_bf16 v{20+jm}, v{d}, s11, v{20+jm}')
            a.emit(f'v_dot2_f32_bf16 v{22+jm}, v{d}, v{d}, v{22+jm}')
    a.emit('s_nop 2')
    a.emit('v_permlane32_swap_b32 v20, v21')
    a.emit('v_permlane32_swap_b32 v22, v23')
    a.emit('v_add_f32 v20, v20, v21')
    a.emit('v_add_f32 v22, v22, v23')
    a.emit('s_nop 1')
    a.emit('v_permlane16_swap_b32 v20, v22')
    a.emit('v_add_f32 v20, v20, v22')
    a.emit(f'buffer_store_dword v20, v18, s[{ST}:{ST+3}], 0 offen{STF}')
    stamps_out(a, kind)
    a.emit('s_endpgm')
    a.label(f'L_{kind}_loader')
    L = Loader(a, kind, K, lda2, ldw2, [0], 128, S, STAGE, rot=int(ENV('ROT_' + kind.upper(), '1')))
    L.setup()
    a.emit('s_waitcnt lgkmcnt(0)')
    if kind == 'wo':
        srd(a, SX, 'ws', WS_O, 4 * MB); srd(a, SW, 'wo', 0, 2 * MB)
    else:
        srd(a, SX, 'ws', WS_H, 2048 * 7168); srd(a, SW, 'w2', 0, 3584 * 2048)
    ns = side(Asm(), 'issue')
    tail = lambda: side(a, 'issue')
    if DELTA:
        a.emit(f's_cmp_eq_u32 s{S_WV}, 4')
        a.emit(f's_cbranch_scc1 L_{kind}_lead')
        L.run('f', d=S - 1 - DELTA, tail_issue=tail, ntail_vm=ns)
        a.emit(f's_branch L_{kind}_side')
        a.label(f'L_{kind}_lead')
    L.run('l', d=S - 1, tail_issue=tail, ntail_vm=ns)
    a.label(f'L_{kind}_side')
    side(a, 'finish')
    a.label(end)
    a.emit('s_endpgm')
    a(KD.format(name=f'{kind}l0_kernel'))
    stub(a, f'{kind}l1_kernel', body, 1, tsidx + 4, False)
    a.label(f'L_{kind}_c1')
    a(KD.format(name=f'{kind}l1_kernel'))
    return S * STAGE
```

```python
from common import *

def big_loop(a, tag, N, S, STAGE, naddr, VB, VA, reads, mf):
    def addr():
        o = [f'v_add_u32 v{VA+i}, s{S_SLOT}, v{VB+i}' for i in range(naddr)]
        o += [f's_add_u32 s{S_SLOT}, s{S_SLOT}, {STAGE}', f's_cmp_eq_u32 s{S_SLOT}, {S*STAGE}', f's_cselect_b32 s{S_SLOT}, 0, s{S_SLOT}']
        return o
    a.emit(f's_mov_b32 s{S_SLOT}, 0')
    for x in addr(): a.emit(x)
    a.emit(f's_mov_b32 s{S_CNT}, {N}')
    a.emit('s_barrier')
    stamp(a, 1)
    for x in reads(0, 0): a.emit(x)
    a.emit('s_waitcnt lgkmcnt(0)')
    a('.p2align 3')
    a.label(f'L_{tag}_loop')
    interleave(a, mf(0), reads(1, 1) + addr(), lead=1, per=1)
    a.emit('s_waitcnt lgkmcnt(0)')
    a.emit('s_barrier')
    interleave(a, mf(1), reads(0, 0) + [f's_sub_u32 s{S_CNT}, s{S_CNT}, 1', f's_cmp_lg_u32 s{S_CNT}, 0'], lead=1, per=1)
    a.emit('s_waitcnt lgkmcnt(0)')
    a.emit(f's_cbranch_scc1 L_{tag}_loop')
    stamp(a, 2)

def stats_loads(a, vd, halo):
    a.emit(f's_and_b32 s3, s{S_WV}, 3')
    a.emit(f's_lshl_b32 s4, s{S_MT}, 7')
    a.emit('s_lshl_b32 s5, s3, 6')
    a.emit('s_add_u32 s5, s5, s4')
    a.emit('v_add_u32 v2, s5, v1')
    a.emit('s_sub_u32 s4, s4, 16')
    a.emit('v_and_b32 v3, 15, v1')
    a.emit('v_add_u32 v3, s4, v3')
    a.emit('v_max_i32 v3, 0, v3')
    a.emit('s_cmp_ge_u32 s3, 2')
    a.emit('s_cselect_b64 vcc, -1, 0')
    a.emit('v_cndmask_b32 v2, v2, v3, vcc')
    a.emit('v_lshlrev_b32 v2, 3, v2')
    a.emit('s_mov_b32 s3, 0')
    for j in range(16):
        a.emit(f'buffer_load_dwordx2 v[{vd+2*j}:{vd+2*j+1}], v2, s[{ST}:{ST+3}], s3 offen')
        if j < 15: a.emit('s_add_u32 s3, s3, 16384')
    return 16

def stats_finish(a, vs):
    a.emit(f'v_mul_f32 v{vs}, 0x3a800000, v{vs}')
    a.emit(f'v_mul_f32 v{vs+1}, 0x3a800000, v{vs+1}')
    a.emit(f'v_fma_f32 v{vs+1}, -v{vs}, v{vs}, v{vs+1}')
    a.emit(f'v_max_f32 v{vs+1}, 0, v{vs+1}')
    a.emit(f'v_add_f32 v{vs+1}, 0x3727c5ac, v{vs+1}')
    a.emit(f'v_rsq_f32 v{vs+1}, v{vs+1}')
    a.emit('s_nop 0')

def stats_reduce_store(a, vd, LST):
    for j in range(1, 8):
        a.emit(f'v_add_f32 v{vd}, v{vd}, v{vd+2*j}')
        a.emit(f'v_add_f32 v{vd+1}, v{vd+1}, v{vd+2*j+1}')
        a.emit(f'v_add_f32 v{vd+16}, v{vd+16}, v{vd+16+2*j}')
        a.emit(f'v_add_f32 v{vd+17}, v{vd+17}, v{vd+17+2*j}')
    a.emit(f'v_add_f32 v{vd}, v{vd}, v{vd+16}')
    a.emit(f'v_add_f32 v{vd+1}, v{vd+1}, v{vd+17}')
    stats_finish(a, vd)
    a.emit(f's_and_b32 s3, s{S_WV}, 3')
    a.emit('s_lshl_b32 s5, s3, 6')
    a.emit('s_add_u32 s5, s5, 16')
    a.emit('v_add_u32 v2, s5, v1')
    a.emit('v_and_b32 v3, 15, v1')
    a.emit('s_cmp_ge_u32 s3, 2')
    a.emit('s_cselect_b64 vcc, -1, 0')
    a.emit('v_cndmask_b32 v2, v2, v3, vcc')
    a.emit('v_lshlrev_b32 v2, 2, v2')
    a.emit(f'v_add_u32 v2, {LST}, v2')
    a.emit(f'ds_write2_b32 v2, v{vd}, v{vd+1} offset0:0 offset1:160')

def gen_w1(a, tsidx, side, cs=(16, 16384, 0)):
    kind = 'w1'
    K = 1024; lda2 = 2048; ldw2 = 7168; ldo2 = 7168
    S = 3; LM = int(ENV('LM_W1', '3'))
    STAGE = 16384 + 4 * 8192
    LST = S * STAGE
    LCS = LST + 1280
    N = 16
    body = f'L_{kind}_body'; end = f'L_{kind}_end'
    VB, VA, VO = 4, 20, 12
    F = [32, 80]; ACC = 128
    acc = lambda jn, jm: ACC + (jn * 4 + jm) * 4
    fx = lambda s, jm: F[s] + jm * 4
    fw = lambda s, jn: F[s] + 16 + jn * 4
    a.label(f'L_{kind}_c0')
    stub(a, f'{kind}l0_kernel', body, 0, tsidx, True)
    a.label(body)
    tile_map(a, LM, end)
    a.emit(f's_cmp_ge_u32 s{S_WV}, 4')
    a.emit(f's_cbranch_scc1 L_{kind}_loader')
    a.emit(f's_and_b32 s{S_WM}, s{S_WV}, 1')
    a.emit(f's_lshr_b32 s{S_WN}, s{S_WV}, 1')
    a.emit('v_and_b32 v3, 15, v1')
    a.emit('v_lshrrev_b32 v2, 4, v1')
    a.emit('v_lshrrev_b32 v17, 1, v3')
    a.emit(f's_lshl_b32 s8, s{S_WM}, 13')
    for ks in range(2):
        if ks: a.emit(f'v_add_u32 v{VB+ks}, 4, v2')
        a.emit(f'v_xor_b32 v{VB+ks}, v{VB+ks if ks else 2}, v17')
        a.emit(f'v_lshlrev_b32 v{VB+ks}, 4, v{VB+ks}')
        a.emit(f'v_lshl_add_u32 v{VB+ks}, v3, 7, v{VB+ks}')
        a.emit(f'v_add_u32 v{VB+ks}, s8, v{VB+ks}')
    wbase(a, 13, 17)
    a.emit(f's_and_b32 s8, s{S_NT}, 1')
    a.emit('s_lshl_b32 s8, s8, 1')
    a.emit(f's_mul_i32 s9, s{S_WN}, 7')
    a.emit('s_add_u32 s8, s8, s9')
    for r in range(4):
        a.emit(f's_add_u32 s9, s8, {r}')
        a.emit('s_and_b32 s10, s9, 3')
        a.emit('s_lshl_b32 s10, s10, 5')
        a.emit('s_lshr_b32 s9, s9, 2')
        a.emit('s_lshl_b32 s9, s9, 13')
        a.emit('s_add_u32 s9, s9, 16384')
        a.emit(f'v_xor_b32 v{VB+2+r}, s10, v13')
        a.emit(f'v_add_u32 v{VB+2+r}, s9, v{VB+2+r}')
    a.emit(f's_lshl_b32 s8, s{S_MT}, 7')
    a.emit(f's_lshl_b32 s9, s{S_WM}, 6')
    a.emit('s_add_u32 s8, s8, s9')
    a.emit('v_add_u32 v13, s8, v3')
    a.emit(f's_mul_i32 s10, s{S_NT}, 448')
    a.emit(f's_mul_i32 s9, s{S_WN}, 224')
    a.emit('s_add_u32 s10, s10, s9')
    a.emit('v_and_b32 v16, 1, v2')
    a.emit('v_lshrrev_b32 v17, 1, v2')
    a.emit(f'v_mul_u32_u24 v14, {ldo2}, v13')
    a.emit('v_lshl_add_u32 v14, v17, 4, v14')
    a.emit('v_add_u32 v14, s10, v14')
    a.emit(f'v_lshl_add_u32 v{VO}, v16, 5, v14')
    a.emit(f'v_mul_u32_u24 v16, {16*ldo2}, v16')
    a.emit(f'v_add_u32 v{VO+1}, v16, v14')
    a.emit(f's_lshl_b32 s9, s{S_WM}, 8')
    a.emit(f's_add_u32 s9, s9, {LST + 64}')
    a.emit('v_lshl_add_u32 v14, v3, 2, s9')
    a.emit(f's_mul_i32 s9, s{S_WN}, 448')
    a.emit(f's_add_u32 s9, s9, {LCS}')
    a.emit('v_lshl_add_u32 v15, v2, 4, s9')
    for i in range(112): a.emit(f'v_mov_b32 v{ACC+i}, 0')
    a.emit('s_waitcnt lgkmcnt(0)')
    srd(a, SO, 'ws', WS_H, 2048 * 7168)
    def reads(s, ks):
        o = []
        if 'noread' in DBG: return o
        for jm in range(4):
            o.append(f'ds_read_b128 v[{fx(s,jm)}:{fx(s,jm)+3}], v{VA+ks} offset:{jm*2048}')
        for jn in range(7):
            for h in range(2):
                r = fw(s, jn) + 2 * h
                o.append(f'ds_read_b64_tr_b16 v[{r}:{r+1}], v{VA+2+(jn&3)} offset:{(jn>>2)*8192+ks*4096+h*512}')
        return o
    def mf(s):
        o = []
        if 'nomfma' in DBG: return ['s_nop 0']
        for jn in range(7):
            for jm in range(4):
                c = acc(jn, jm)
                o.append(f'v_mfma_f32_16x16x32_bf16 v[{c}:{c+3}], v[{fw(s,jn)}:{fw(s,jn)+3}], v[{fx(s,jm)}:{fx(s,jm)+3}], v[{c}:{c+3}]')
        return o
    big_loop(a, kind, N, S, STAGE, 6, VB, VA, reads, mf)
    CS = 32; BI = 60; STT = 88; CK = 96; T = 100; D = 108
    for jm in range(4):
        a.emit(f'ds_read2_b32 v[{STT+2*jm}:{STT+2*jm+1}], v14 offset0:{16*jm} offset1:{160+16*jm}')
    for jn in range(7):
        a.emit(f'ds_read_b128 v[{CS+4*jn}:{CS+4*jn+3}], v15 offset:{jn*64}')
        a.emit(f'ds_read_b128 v[{BI+4*jn}:{BI+4*jn+3}], v15 offset:{1024+jn*64}')
    c0 = -2.0 * 0.7978845608028654 * 1.4426950408889634
    c1 = c0 * 0.044715
    a.emit(f'v_mov_b32 v{CK}, {f2u(c0):#x}')
    a.emit(f'v_mov_b32 v{CK+1}, {f2u(c1):#x}')
    a.emit(f'v_mov_b32 v{CK+2}, 1.0')
    a.emit('s_waitcnt lgkmcnt(0)')
    for jm in range(4):
        a.emit(f'v_mul_f32 v{STT+2*jm}, v{STT+2*jm}, v{STT+2*jm+1}')
    def tile_math(jn, jm, d):
        c = acc(jn, jm)
        seqs = []
        ST2 = f'v[{STT+2*jm}:{STT+2*jm+1}]'
        for q in range(2):
            x = c + 2 * q; t = T + 2 * q + 4 * (jn & 1)
            X = f'v[{x}:{x+1}]'; TT = f'v[{t}:{t+1}]'
            seqs.append([
              f'v_pk_fma_f32 {TT}, v[{CS+4*jn+2*q}:{CS+4*jn+2*q+1}], {ST2}, v[{BI+4*jn+2*q}:{BI+4*jn+2*q+1}] op_sel:[0,0,0] op_sel_hi:[1,0,1] neg_lo:[0,1,0] neg_hi:[0,1,0]',
              f'v_pk_fma_f32 {X}, {X}, {ST2}, {TT} op_sel:[0,1,0] op_sel_hi:[1,1,1]',
              f'v_pk_mul_f32 {TT}, {X}, {X}',
              f'v_pk_fma_f32 {TT}, {TT}, v[{CK}:{CK+1}], v[{CK}:{CK+1}] op_sel:[0,1,0] op_sel_hi:[1,1,0]',
              f'v_pk_mul_f32 {TT}, {TT}, {X}',
              f'v_exp_f32 v{t}, v{t}\n  v_exp_f32 v{t+1}, v{t+1}',
              f'v_pk_add_f32 {TT}, {TT}, v[{CK+2}:{CK+3}] op_sel_hi:[1,0]',
              f'v_rcp_f32 v{t}, v{t}\n  v_rcp_f32 v{t+1}, v{t+1}',
              f'v_pk_mul_f32 {X}, {X}, {TT}',
              f'v_cvt_pk_bf16_f32 v{d+q}, v{x}, v{x+1}'])
        for ia, ib in zip(*seqs):
            a.emit(ia); a.emit(ib)
    cnt = [0]
    def pair(t0, t1, vo, soff):
        d = D + 4 * (cnt[0] % 4); cnt[0] += 1
        tile_math(*t0, d); tile_math(*t1, d + 2)
        a.emit(f's_mov_b32 s3, {soff}')
        a.emit('s_nop 0')
        a.emit(f'v_permlane16_swap_b32 v{d}, v{d+2}')
        a.emit(f'v_permlane16_swap_b32 v{d+1}, v{d+3}')
        a.emit(f'buffer_store_dwordx4 v[{d}:{d+3}], v{vo}, s[{SO}:{SO+3}], s3 offen{STF}')
    for jm in range(4):
        for p in range(3):
            pair((2 * p, jm), (2 * p + 1, jm), VO, jm * 16 * ldo2 + p * 64)
        if jm & 1:
            pair((6, jm - 1), (6, jm), VO + 1, (jm - 1) * 16 * ldo2 + 192)
    stamps_out(a, kind)
    a.emit('s_endpgm')
    a.label(f'L_{kind}_loader')
    L = Loader(a, kind, K, lda2, ldw2, [128 * i for i in range(4)], 448, S, STAGE, rot=int(ENV('ROT_W1', '0')))
    L.setup()
    a.emit('s_waitcnt lgkmcnt(0)')
    srd(a, SX, 'ws', WS_X1, 4 * MB); srd(a, SW, 'w1', 0, 1024 * 7168)
    srd(a, ST, 'ws', WS_ST, 16 * 16384); srd(a, SC, 'ws', WS_CS, 16 * 16384); srd(a, SB, 'b1', 0, 7168)
    def tail():
        stats_loads(a, 32, False)
        a.emit(f's_mul_i32 s4, s{S_NT}, 224')
        a.emit('s_sub_u32 s4, s4, 256')
        a.emit('v_add_u32 v3, s4, v0')
        a.emit('v_lshlrev_b32 v2, 2, v3')
        a.emit('v_lshlrev_b32 v3, 1, v3')
        a.emit(f's_mov_b32 s3, {cs[2]}')
        for j in range(16):
            if j < cs[0]:
                a.emit(f'buffer_load_dword v{64+j}, v2, s[{SC}:{SC+3}], s3 offen')
                if j < cs[0] - 1: a.emit(f's_add_u32 s3, s3, {cs[1]}')
            else:
                a.emit(f'v_mov_b32 v{64+j}, 0')
        a.emit(f'buffer_load_ushort v80, v3, s[{SB}:{SB+3}], 0 offen')
        side(a, 'issue')
    ns = side(Asm(), 'issue')
    def final():
        a.emit(f's_waitcnt vmcnt({ns})')
        stats_reduce_store(a, 32, LST)
        for j in range(8): a.emit(f'v_add_f32 v{64+j}, v{64+j}, v{72+j}')
        for j in range(4): a.emit(f'v_add_f32 v{64+j}, v{64+j}, v{68+j}')
        a.emit('v_add_f32 v64, v64, v65')
        a.emit('v_add_f32 v66, v66, v67')
        a.emit('v_add_f32 v64, v64, v66')
        a.emit('v_lshlrev_b32 v80, 16, v80')
        a.emit('v_lshlrev_b32 v2, 2, v0')
        a.emit(f'v_add_u32 v2, {LCS - 1024}, v2')
        a.emit('ds_write_b32 v2, v64')
        a.emit('ds_write_b32 v2, v80 offset:1024')
        a.emit('s_waitcnt lgkmcnt(0)')
    L.run(tail_issue=tail, ntail_vm=17 + cs[0] + ns, final=final)
    side(a, 'finish')
    a.label(end)
    a.emit('s_endpgm')
    a(KD.format(name=f'{kind}l0_kernel'))
    stub(a, f'{kind}l1_kernel', body, 1, tsidx + 4, False)
    a.label(f'L_{kind}_c1')
    a(KD.format(name=f'{kind}l1_kernel'))
    return LCS + 2048
```

```python
from common import *
from gemmw1 import big_loop, stats_loads, stats_finish, stats_reduce_store

def gen_qkv(a, tsidx, side):
    kind = 'attn'
    K = 1024; lda2 = 2048; ldw2 = 6144
    S = 3; LM = int(ENV('LM_QKV', '3'))
    XH = 16384 + 6 * 4096
    STAGE = XH + 2048
    LST = S * STAGE
    EX = 1024
    N = 16
    body = f'L_{kind}_body'; end = f'L_{kind}_end'
    VB, VA = 4, 10
    VXW, VPE, VPO, VCE, VCO, VVE, VVO, VS1, VS4, VKA, VKB, MAP, MAC, MBP, MBC, VO = range(16, 32)
    M_ODD, M_UPA, M_UPB, M_FA, M_FB = 48, 50, 52, 54, 14
    F = [32, 76]; ACC = 128; HACC = 224; ONES = 236
    acc = lambda jn, jm: ACC + (jn * 4 + jm) * 4
    fx = lambda s, jm: F[s] + jm * 4
    fw = lambda s, jn: F[s] + 20 + jn * 4
    a.label(f'L_{kind}_c0')
    stub(a, f'{kind}l0_kernel', body, 0, tsidx, True)
    a.label(body)
    tile_map(a, LM, end)
    a.emit(f's_cmp_ge_u32 s{S_WV}, 4')
    a.emit(f's_cbranch_scc1 L_{kind}_loader')
    a.emit(f's_and_b32 s{S_WM}, s{S_WV}, 1')
    a.emit(f's_lshr_b32 s{S_WN}, s{S_WV}, 1')
    a.emit('v_and_b32 v3, 31, v1')
    a.emit('v_lshlrev_b32 v3, 2, v3')
    a.emit(f'v_add_u32 v3, {XH}, v3')
    for i in range(4): a.emit(f'v_mov_b32 v{ONES+i}, 0x3f803f80')
    a.emit(f'ds_write_b32 v3, v{ONES}')
    a.emit(f'ds_write_b32 v3, v{ONES} offset:{STAGE}')
    a.emit(f'v_add_u32 v3, {2*STAGE}, v3')
    a.emit(f'ds_write_b32 v3, v{ONES}')
    a.emit('v_and_b32 v3, 15, v1')
    a.emit('v_lshrrev_b32 v2, 4, v1')
    a.emit('v_lshrrev_b32 v33, 1, v3')
    a.emit(f's_lshl_b32 s8, s{S_WM}, 13')
    for ks in range(2):
        if ks: a.emit(f'v_add_u32 v{VB+ks}, 4, v2')
        a.emit(f'v_xor_b32 v{VB+ks}, v{VB+ks if ks else 2}, v33')
        a.emit(f'v_lshlrev_b32 v{VB+ks}, 4, v{VB+ks}')
        a.emit(f'v_lshl_add_u32 v{VB+ks}, v3, 7, v{VB+ks}')
        a.emit(f'v_add_u32 v{VB+4+ks}, {XH}, v{VB+ks}')
        a.emit(f'v_add_u32 v{VB+ks}, s8, v{VB+ks}')
    wbase(a, 34, 33)
    a.emit('v_and_b32 v35, 1, v2')
    a.emit(f'v_xor_b32 v35, s{S_WM}, v35')
    a.emit(f's_lshl_b32 s8, s{S_WV}, 5')
    a.emit('v_xor_b32 v34, s8, v34')
    a.emit(f'v_add_u32 v{VB+2}, 16384, v34')
    a.emit(f'v_xor_b32 v{VB+3}, 32, v{VB+2}')
    a.emit(f's_lshl_b32 s8, s{S_MT}, 7')
    a.emit(f's_lshl_b32 s9, s{S_WM}, 6')
    a.emit('s_add_u32 s8, s8, s9')
    a.emit('v_add_u32 v33, s8, v3')
    a.emit(f's_lshl_b32 s10, s{S_NT}, 7')
    a.emit(f's_lshl_b32 s11, s{S_WN}, 6')
    a.emit('s_add_u32 s10, s10, s11')
    a.emit('v_lshl_add_u32 v33, v33, 11, s10')
    a.emit('v_lshl_add_u32 v33, v35, 5, v33')
    a.emit('v_lshrrev_b32 v34, 1, v2')
    a.emit(f'v_lshl_add_u32 v{VO}, v34, 4, v33')
    a.emit(f's_mul_i32 s10, s{S_WN}, 12288')
    a.emit(f's_add_u32 s10, s10, {EX}')
    a.emit(f's_lshl_b32 s11, s{S_WM}, 10')
    a.emit('s_add_u32 s4, s10, s11')
    a.emit('s_sub_u32 s5, s10, s11')
    a.emit(f's_mul_i32 s6, s{S_WM}, 6144')
    a.emit(f'v_lshl_add_u32 v{VXW}, v1, 4, s4')
    a.emit(f'v_add_u32 v{VPE}, s6, v{VXW}')
    a.emit(f'v_lshl_add_u32 v{VPO}, v1, 4, s5')
    a.emit(f'v_add_u32 v{VPO}, s6, v{VPO}')
    a.emit(f'v_lshl_add_u32 v{VCE}, v2, 8, s4')
    a.emit(f'v_lshl_add_u32 v{VCO}, v2, 8, s5')
    a.emit(f'v_lshl_add_u32 v{VVE}, v3, 4, s4')
    a.emit(f'v_lshl_add_u32 v{VVO}, v3, 4, s5')
    a.emit(f's_lshl_b32 s10, s{S_WM}, 8')
    a.emit(f's_add_u32 s10, s10, {LST}')
    a.emit(f'v_lshl_add_u32 v{VS1}, v3, 2, s10')
    a.emit(f'v_lshl_add_u32 v{VS4}, v2, 4, s10')
    a.emit('v_and_b32 v33, 1, v3')
    a.emit(f'v_cmp_eq_u32 s[{M_ODD}:{M_ODD+1}], 1, v33')
    a.emit('v_lshl_add_u32 v34, v2, 2, v33')
    a.emit('v_add_u32 v35, 2, v34')
    a.emit(f'v_cmp_gt_u32 s[{M_UPA}:{M_UPA+1}], v34, v3')
    a.emit(f'v_cmp_gt_u32 s[{M_UPB}:{M_UPB+1}], v35, v3')
    a.emit('v_mov_b32 v36, 0xffff')
    a.emit('v_mov_b32 v37, 0xffff0000')
    a.emit(f'v_cndmask_b32 v36, v36, v37, s[{M_ODD}:{M_ODD+1}]')
    a.emit(f's_add_u32 s10, s10, {640 + 64}')
    a.emit('v_lshl_add_u32 v34, v34, 2, s10')
    a.emit('v_lshl_add_u32 v35, v35, 2, s10')
    a.emit('v_subrev_u32 v38, 64, v34')
    a.emit('v_subrev_u32 v39, 64, v35')
    a.emit(f'v_cndmask_b32 v{VKA}, v34, v38, s[{M_UPA}:{M_UPA+1}]')
    a.emit(f'v_cndmask_b32 v{VKB}, v35, v39, s[{M_UPB}:{M_UPB+1}]')
    a.emit(f'v_cndmask_b32 v{MAP}, 0, v36, s[{M_UPA}:{M_UPA+1}]')
    a.emit(f'v_cndmask_b32 v{MBP}, 0, v36, s[{M_UPB}:{M_UPB+1}]')
    a.emit(f'v_xor_b32 v{MAC}, v{MAP}, v36')
    a.emit(f'v_xor_b32 v{MBC}, v{MBP}, v36')
    a.emit('s_cmp_eq_u32 s8, 0')
    a.emit(f's_cselect_b64 s[{M_FA}:{M_FA+1}], s[{M_UPA}:{M_UPA+1}], 0')
    a.emit(f's_cselect_b64 s[{M_FB}:{M_FB+1}], s[{M_UPB}:{M_UPB+1}], 0')
    for i in range(108): a.emit(f'v_mov_b32 v{ACC+i}, 0')
    a.emit('s_waitcnt lgkmcnt(0)')
    srd(a, SO, 'ws', WS_O, 4 * MB)
    def reads(s, ks):
        o = []
        if 'noread' in DBG: return o
        for jm in range(4):
            o.append(f'ds_read_b128 v[{fx(s,jm)}:{fx(s,jm)+3}], v{VA+ks} offset:{jm*2048}')
        o.append(f'ds_read_b128 v[{fx(s,4)}:{fx(s,4)+3}], v{VA+4+ks}')
        for jn in range(6):
            for h in range(2):
                r = fw(s, jn) + 2 * h
                o.append(f'ds_read_b64_tr_b16 v[{r}:{r+1}], v{VA+2+(jn&1)} offset:{(jn>>1)*8192+ks*4096+h*512}')
        return o
    def mfma(c, x, y, cin=None):
        return f'v_mfma_f32_16x16x32_bf16 v[{c}:{c+3}], v[{x}:{x+3}], v[{y}:{y+3}], ' + (f'v[{c}:{c+3}]' if cin is None else cin)
    def mf(s):
        o = []
        if 'nomfma' in DBG: return ['s_nop 0']
        for jn in range(6):
            for jm in range(5):
                if jm == 4 and jn & 1: continue
                c = acc(jn, jm) if jm < 4 else HACC + (jn >> 1) * 4
                o.append(mfma(c, fw(s, jn), fx(s, jm)) if jn < 4 else mfma(c, fx(s, jm), fw(s, jn)))
        return o
    big_loop(a, kind, N, S, STAGE, 6, VB, VA, reads, mf)
    PR = 32
    CS = 48
    CV = 64
    MS = 66
    RK = 76
    M4 = 84
    R4 = 104
    VV = [240, 224]
    for b in range(5):
        a.emit(f'ds_read2_b32 v[{MS+2*b}:{MS+2*b+1}], v{VS1} offset0:{16*b} offset1:{160+16*b}')
    for p in range(2):
        a.emit(f'ds_read2_b32 v[{RK+2*p}:{RK+2*p+1}], v{VKA} offset0:{32*p} offset1:{32*p+16}')
        a.emit(f'ds_read2_b32 v[{RK+4+2*p}:{RK+5+2*p}], v{VKB} offset0:{32*p} offset1:{32*p+16}')
    for c in range(3):
        a.emit(f'ds_write_b128 v{VXW}, v[{HACC+4*c}:{HACC+4*c+3}] offset:{2048*c}')
    a.emit(f's_cmp_eq_u32 s{S_WM}, 1')
    a.emit(f's_cbranch_scc1 L_{kind}_nop3')
    for t in range(2, 6):
        a.emit(f'ds_write_b128 v{VXW}, v[{acc(t,3)}:{acc(t,3)+3}] offset:{6144+1024*t}')
    a.label(f'L_{kind}_nop3')
    for b in range(5):
        a.emit(f'ds_read_b128 v[{M4+4*b}:{M4+4*b+3}], v{VS4} offset:{64*b}')
        a.emit(f'ds_read_b128 v[{R4+4*b}:{R4+4*b+3}], v{VS4} offset:{640+64*b}')
    a.emit('s_waitcnt lgkmcnt(10)')
    a.emit('s_barrier')
    for t in range(4):
        a.emit(f'ds_read_b128 v[{CS+4*t}:{CS+4*t+3}], v{VCO if t&1 else VCE} offset:{1024*t}')
    for t in range(2):
        a.emit(f'ds_read_b32 v{CV+t}, v{VVO if t else VVE} offset:{4096+1024*t}')
    for t in range(4):
        a.emit(f'ds_read_b128 v[{PR+4*t}:{PR+4*t+3}], v{VPO if t&1 else VPE} offset:{2048+1024*t}')
    sc = 32 ** -0.5 * 1.4426950408889634
    for b in range(4):
        a.emit(f'v_mul_f32 v{MS+2*b+3}, {f2u(sc):#x}, v{MS+2*b+3}')
    for b in range(4):
        a.emit(f'v_mul_f32 v{RK+b}, v{RK+b}, v{MS+2*b+3}')
        a.emit(f'v_mul_f32 v{RK+4+b}, v{RK+4+b}, v{MS+2*b+3}')
    a.emit('s_waitcnt lgkmcnt(6)')
    def qk(x, y, cs, b, d):
        m = f'v[{MS+2*b}:{MS+2*b+1}]'
        for (z, c) in ((x, cs), (y, cs + 4)):
            for h in range(2):
                a.emit(f'v_pk_fma_f32 v[{z+2*h}:{z+2*h+1}], v[{c+2*h}:{c+2*h+1}], {m}, v[{z+2*h}:{z+2*h+1}] op_sel:[0,0,0] op_sel_hi:[1,0,1] neg_lo:[0,1,0] neg_hi:[0,1,0]')
        a.emit(f'v_cvt_pk_bf16_f32 v{d}, v{x}, v{x+1}')
        a.emit(f'v_cvt_pk_bf16_f32 v{d+1}, v{x+2}, v{x+3}')
        a.emit(f'v_cvt_pk_bf16_f32 v{d+2}, v{y}, v{y+1}')
        a.emit(f'v_cvt_pk_bf16_f32 v{d+3}, v{y+2}, v{y+3}')
    Q = lambda b: acc(0, b); Kf = lambda b: acc(2, b) if b >= 0 else PR
    Sc = lambda b: acc(1, b); Sp = lambda b: acc(3, b)
    for b in range(4):
        qk(acc(0, b), acc(1, b), CS, b + 1, Q(b))
        qk(acc(2, b), acc(3, b), CS + 8, b + 1, Kf(b))
        if b == 3:
            a.emit('s_waitcnt lgkmcnt(0)')
            qk(PR, PR + 4, CS + 8, 0, PR)
        if b >= 1:
            a.emit(mfma(Sc(b - 1), Kf(b - 1), Q(b - 1), '0'))
            if b >= 2: a.emit(mfma(Sp(b - 1), Kf(b - 2), Q(b - 1), '0'))
    a.emit(mfma(Sc(3), Kf(3), Q(3), '0'))
    a.emit(mfma(Sp(3), Kf(2), Q(3), '0'))
    a.emit(mfma(Sp(0), Kf(-1), Q(0), '0'))
    def vconv(x, t, b):
        cv = f'v[{CV}:{CV+1}]'
        for h in range(2):
            a.emit(f'v_pk_fma_f32 v[{x+2*h}:{x+2*h+1}], v[{M4+4*b+2*h}:{M4+4*b+2*h+1}], {cv}, v[{x+2*h}:{x+2*h+1}] op_sel:[0,{t},0] op_sel_hi:[1,{t},1] neg_lo:[1,0,0] neg_hi:[1,0,0]')
        for h in range(2):
            a.emit(f'v_pk_mul_f32 v[{x+2*h}:{x+2*h+1}], v[{x+2*h}:{x+2*h+1}], v[{R4+4*b+2*h}:{R4+4*b+2*h+1}]')
        for h in range(2):
            a.emit(f'v_cvt_pk_bf16_f32 v{VV[t]+2*b+h}, v{x+2*h}, v{x+2*h+1}')
    for t in range(2):
        vconv(PR + 8 + 4 * t, t, 0)
        for b in range(4): vconv(acc(4 + t, b), t, b + 1)
    T = lambda b: 32 + 4 * b
    odd = f's[{M_ODD}:{M_ODD+1}]'
    for b in (1, 2, 3, 0):
        a.emit(f'v_cndmask_b32 v{Sc(b)}, v{Sc(b)}, v{Sc(b)+1}, {odd}')
        a.emit(f'v_cndmask_b32 v{Sp(b)}, v{Sp(b)}, v{Sp(b)+1}, {odd}')
        a.emit(f'v_cndmask_b32 v{Sc(b)+2}, v{Sc(b)+2}, v{Sc(b)+3}, {odd}')
        a.emit(f'v_cndmask_b32 v{Sp(b)+2}, v{Sp(b)+2}, v{Sp(b)+3}, {odd}')
        a.emit(f'v_cndmask_b32 v{T(b)}, v{Sc(b)}, v{Sp(b)}, s[{M_UPA}:{M_UPA+1}]')
        a.emit(f'v_cndmask_b32 v{T(b)+1}, v{Sc(b)+2}, v{Sp(b)+2}, s[{M_UPB}:{M_UPB+1}]')
        a.emit(f'v_mul_f32 v{T(b)}, v{T(b)}, v{RK+b}')
        a.emit(f'v_mul_f32 v{T(b)+1}, v{T(b)+1}, v{RK+4+b}')
    a.emit(f'v_mov_b32 v48, {f2u(-1e9 * 1.4426950408889634):#x}')
    a.emit(f'v_cndmask_b32 v{T(0)}, v{T(0)}, v48, s[{M_FA}:{M_FA+1}]')
    a.emit(f'v_cndmask_b32 v{T(0)+1}, v{T(0)+1}, v48, s[{M_FB}:{M_FB+1}]')
    for b in range(4): a.emit(f'v_max_f32 v{T(b)+2}, v{T(b)}, v{T(b)+1}')
    for op in ('32', '16'):
        for b in range(4): a.emit(f'v_mov_b32 v{T(b)+3}, v{T(b)+2}')
        for b in range(4): a.emit(f'v_permlane{op}_swap_b32 v{T(b)+2}, v{T(b)+3}')
        for b in range(4): a.emit(f'v_max_f32 v{T(b)+2}, v{T(b)+2}, v{T(b)+3}')
    for b in range(4):
        a.emit(f'v_sub_f32 v{T(b)}, v{T(b)}, v{T(b)+2}')
        a.emit(f'v_sub_f32 v{T(b)+1}, v{T(b)+1}, v{T(b)+2}')
    for b in range(4):
        a.emit(f'v_exp_f32 v{T(b)}, v{T(b)}')
        a.emit(f'v_exp_f32 v{T(b)+1}, v{T(b)+1}')
    P = lambda b: acc(0, b)
    for b in range(4):
        a.emit(f'v_cvt_pk_bf16_f32 v{T(b)}, v{T(b)}, v{T(b)}')
        a.emit(f'v_cvt_pk_bf16_f32 v{T(b)+1}, v{T(b)+1}, v{T(b)+1}')
        a.emit(f'v_and_b32 v{P(b)}, v{T(b)}, v{MAP}')
        a.emit(f'v_and_b32 v{P(b)+1}, v{T(b)+1}, v{MBP}')
        a.emit(f'v_and_b32 v{P(b)+2}, v{T(b)}, v{MAC}')
        a.emit(f'v_and_b32 v{P(b)+3}, v{T(b)+1}, v{MBC}')
        if b >= 1:
            q = b - 1
            a.emit(mfma(acc(1, q), ONES, P(q), '0'))
            a.emit(mfma(acc(4, q), VV[0] + 2 * q, P(q), '0'))
            a.emit(mfma(acc(5, q), VV[1] + 2 * q, P(q), '0'))
    q = 3
    a.emit(mfma(acc(1, q), ONES, P(q), '0'))
    a.emit(mfma(acc(4, q), VV[0] + 2 * q, P(q), '0'))
    a.emit(mfma(acc(5, q), VV[1] + 2 * q, P(q), '0'))
    for b in range(4):
        r = acc(1, b); d = 48 + 4 * b
        a.emit(f'v_rcp_f32 v{r}, v{r}')
        a.emit(f's_mov_b32 s3, {b * 16 * 2048}')
        for t in range(2):
            x = acc(4 + t, b)
            for h in range(2):
                a.emit(f'v_pk_mul_f32 v[{x+2*h}:{x+2*h+1}], v[{x+2*h}:{x+2*h+1}], v[{r}:{r+1}] op_sel_hi:[1,0]')
        for t in range(2):
            x = acc(4 + t, b)
            for h in range(2):
                a.emit(f'v_cvt_pk_bf16_f32 v{d+2*t+h}, v{x+2*h}, v{x+2*h+1}')
        a.emit('s_nop 1')
        a.emit(f'v_permlane16_swap_b32 v{d}, v{d+2}')
        a.emit(f'v_permlane16_swap_b32 v{d+1}, v{d+3}')
        a.emit(f'buffer_store_dwordx4 v[{d}:{d+3}], v{VO}, s[{SO}:{SO+3}], s3 offen{STF}')
    stamps_out(a, kind)
    a.emit('s_endpgm')
    a.label(f'L_{kind}_loader')
    L = Loader(a, kind, K, lda2, ldw2, [0, 2048, 4096], 128, S, STAGE, halo=XH, rot=int(ENV('ROT_QKV', '0')))
    L.setup()
    a.emit('s_waitcnt lgkmcnt(0)')
    srd(a, SX, 'xs', 0, 4 * MB); srd(a, SW, 'wqkv', 0, 1024 * 6144)
    a.emit(f's_cmp_eq_u32 s{S_LAYER}, 0')
    a.emit(f's_cbranch_scc1 L_{kind}_ld0')
    srd(a, ST, 'ws', WS_ST, 16 * 16384)
    n1 = side(Asm(), 1, 'issue')
    def tail1():
        stats_loads(a, 32, True)
        side(a, 1, 'issue')
    def final1():
        a.emit(f's_waitcnt vmcnt({n1})')
        stats_reduce_store(a, 32, LST)
        a.emit('s_waitcnt lgkmcnt(0)')
    L.run('1', tail_issue=tail1, ntail_vm=16 + n1, final=final1)
    a.emit('s_barrier')
    side(a, 1, 'finish')
    a.emit('s_endpgm')
    a.label(f'L_{kind}_ld0')
    A0 = 16
    a.emit(f'v_lshl_add_u32 v12, v1, 4, s{S_XD}')
    a.emit('v_and_b32 v13, 31, v1')
    a.emit(f'v_lshl_add_u32 v13, v13, 4, s{S_HD}')
    for i in range(10): a.emit(f'v_mov_b32 v{A0+i}, 0')
    a.emit(f's_mov_b32 s{S_T}, 0')
    a.emit('s_mov_b32 s7, 0xffff0000')
    a.emit('s_mov_b32 s6, 0x3f803f80')
    SM = ENV('STATMODE', 'valu')
    def per0():
        a.emit(f'v_add_u32 v14, s{S_T}, v12')
        a.emit(f'v_add_u32 v15, s{S_T}, v13')
        for j in range(4):
            a.emit(f'ds_read_b128 v[{32+4*j}:{35+4*j}], v14 offset:{1024*j}')
        a.emit('ds_read_b128 v[48:51], v15')
        a.emit(f's_add_u32 s{S_T}, s{S_T}, {STAGE}')
        a.emit(f's_cmp_eq_u32 s{S_T}, {S*STAGE}')
        a.emit(f's_cselect_b32 s{S_T}, 0, s{S_T}')
        for j in range(5):
            a.emit(f's_waitcnt lgkmcnt({4-j})')
            for i in range(4):
                x = 32 + 4 * j + i
                if SM == 'dot2':
                    a.emit(f'v_dot2_f32_bf16 v{A0+2*j}, v{x}, s6, v{A0+2*j}')
                    a.emit(f'v_dot2_f32_bf16 v{A0+2*j+1}, v{x}, v{x}, v{A0+2*j+1}')
                else:
                    a.emit(f'v_lshlrev_b32 v52, 16, v{x}')
                    a.emit(f'v_and_b32 v53, s7, v{x}')
                    a.emit(f'v_add_f32 v{A0+2*j}, v{A0+2*j}, v52')
                    a.emit(f'v_fmac_f32 v{A0+2*j+1}, v52, v52')
                    a.emit(f'v_add_f32 v{A0+2*j}, v{A0+2*j}, v53')
                    a.emit(f'v_fmac_f32 v{A0+2*j+1}, v53, v53')
    def tail0():
        side(a, 0, 'issue')
    def final0():
        a.emit('s_nop 2')
        for ctl in ('quad_perm:[1,0,3,2]', 'quad_perm:[2,3,0,1]', 'row_half_mirror'):
            for i in range(10):
                a.emit(f'v_add_f32_dpp v{A0+i}, v{A0+i}, v{A0+i} {ctl} row_mask:0xf bank_mask:0xf')
        for j in range(5): stats_finish(a, A0 + 2 * j)
        a.emit('v_lshrrev_b32 v2, 3, v1')
        a.emit(f's_lshr_b32 s3, s{S_XD}, 5')
        a.emit(f's_add_u32 s3, s3, {LST + 64}')
        a.emit('v_lshl_add_u32 v3, v2, 2, s3')
        for j in range(4):
            a.emit(f'ds_write2_b32 v3, v{A0+2*j}, v{A0+2*j+1} offset0:{8*j} offset1:{160+8*j}')
        a.emit('v_and_b32 v2, 3, v2')
        a.emit(f's_and_b32 s3, s{S_WV}, 3')
        a.emit('s_lshl_b32 s3, s3, 4')
        a.emit(f's_add_u32 s3, s3, {LST}')
        a.emit('v_lshl_add_u32 v3, v2, 2, s3')
        a.emit(f'ds_write2_b32 v3, v{A0+8}, v{A0+9} offset0:0 offset1:160')
        a.emit('s_waitcnt lgkmcnt(0)')
    L.run('0', per_stage=per0, tail_issue=tail0, ntail_vm=side(Asm(), 0, 'issue'), final=final0)
    a.emit('s_barrier')
    side(a, 0, 'finish')
    a.label(end)
    a.emit('s_endpgm')
    a(KD.format(name=f'{kind}l0_kernel'))
    stub(a, f'{kind}l1_kernel', body, 1, tsidx + 4, False)
    a.label(f'L_{kind}_c1')
    a(KD.format(name=f'{kind}l1_kernel'))
    return LST + 1280
```

```python
from common import *
LM_WO = int(ENV('LM_WO', '2')); LM_W1 = int(ENV('LM_W1', '3')); LM_W2 = int(ENV('LM_W2', '2')); LM_QKV = int(ENV('LM_QKV', '3'))
PV = 96

def fin(a):
    a.emit('s_waitcnt vmcnt(0)')

def pf_wo(a):
    L = 1 << (5 - LM_WO)
    sh = 5 - LM_WO
    return pf_weights(a, SP, 'wo', 2 * MB, 2048, 32, sh, L, LM_WO, 128, max(1, (8 << sh) // 64), PV)

def qkv(a, layer, phase):
    if phase == 'issue':
        n = 0
        if layer == 0:
            srd(a, SC, 'w1', 0, 1024 * 7168)
            a.emit('s_min_u32 s3, s2, 223')
            a.emit('s_mul_i32 s4, s3, 4682')
            a.emit('s_lshr_b32 s4, s4, 16')
            a.emit('s_mul_i32 s5, s4, 14')
            a.emit('s_sub_u32 s3, s3, s5')
            a.emit('s_lshl_b32 s3, s3, 2')
            a.emit(f's_and_b32 s5, s{S_WV}, 3')
            a.emit('s_add_u32 s3, s3, s5')
            a.emit(f's_mul_i32 s5, s4, {64 * 7168}')
            a.emit('s_lshl_b32 s8, s3, 7')
            a.emit('s_add_u32 s5, s5, s8')
            a.emit('s_lshl_b32 s9, s4, 14')
            a.emit('s_lshl_b32 s8, s3, 8')
            a.emit('s_add_u32 s9, s9, s8')
            a.emit('v_lshrrev_b32 v2, 3, v1')
            a.emit('v_mul_u32_u24 v2, 7168, v2')
            a.emit('v_and_b32 v3, 7, v1')
            a.emit('v_lshl_add_u32 v2, v3, 4, v2')
            for j in range(8):
                a.emit(f'buffer_load_dwordx4 v[{64+4*j}:{67+4*j}], v2, s[{SC}:{SC+3}], s5 offen')
                if j < 7: a.emit(f's_add_u32 s5, s5, {8 * 7168}')
            n += 8
        n += pf_wo(a)
        if layer == 0:
            n += pf_code(a, 'L_wo_c0', 'L_wo_c1', PV + 8)
        return n
    if layer == 0:
        a.emit('s_waitcnt vmcnt(0)')
        a.emit('s_mov_b32 s7, 0xffff0000')
        for i in range(4):
            a.emit(f'v_lshlrev_b32 v{32+2*i}, 16, v{64+i}')
            a.emit(f'v_and_b32 v{33+2*i}, s7, v{64+i}')
        for j in range(1, 8):
            for i in range(4):
                a.emit(f'v_lshlrev_b32 v40, 16, v{64+4*j+i}')
                a.emit(f'v_and_b32 v41, s7, v{64+4*j+i}')
                a.emit(f'v_pk_add_f32 v[{32+2*i}:{33+2*i}], v[{32+2*i}:{33+2*i}], v[40:41]')
        srd(a, SC, 'ws', WS_CS, 16 * 16384)
        for i in range(4): a.emit(f'v_permlane32_swap_b32 v{32+i}, v{36+i}')
        for i in range(4): a.emit(f'v_add_f32 v{32+i}, v{32+i}, v{36+i}')
        a.emit('v_and_b32 v2, 7, v1')
        a.emit('v_lshlrev_b32 v2, 5, v2')
        for i in range(2): a.emit(f'v_permlane16_swap_b32 v{32+i}, v{34+i}')
        for i in range(2): a.emit(f'v_add_f32 v{32+i}, v{32+i}, v{34+i}')
        a.emit('v_lshrrev_b32 v3, 4, v1')
        a.emit('v_lshl_add_u32 v2, v3, 3, v2')
        for i in range(2): a.emit(f'v_add_f32_dpp v{32+i}, v{32+i}, v{32+i} row_ror:8 row_mask:0xf bank_mask:0xf')
        a.emit(f'buffer_store_dwordx2 v[32:33], v2, s[{SC}:{SC+3}], s9 offen{STF}')
    else:
        fin(a)

def wo(a, phase):
    if phase == 'issue':
        assert LM_W1 == 3
        n = pf_weights(a, SP, 'w1', 1024 * 7168, 7168, 32, 4, 14, LM_W1, 448, 2, PV)
        n += pf_code(a, 'L_w1_c0', 'L_w1_c1', PV + 8)
        return n
    fin(a)

def w1(a, phase):
    if phase == 'issue':
        assert LM_W2 == 2
        NI = int(ENV('PFW2', '2'))
        n = pf_weights(a, SP, 'w2', 3584 * 2048, 2048, 32 * NI, 3, 8, LM_W2, 128, NI, PV) if NI else 0
        n += pf_code(a, 'L_w2_c0', 'L_w2_c1', PV + 8)
        return n
    fin(a)

def w2(a, phase):
    if phase == 'issue':
        assert LM_QKV == 3
        n = pf_weights(a, SP, 'wqkv', 1024 * 6144, 6144, 32, 4, 12, LM_QKV, 128, 2, PV, qkv=True)
        n += pf_code(a, 'L_attn_c0', 'L_attn_c1', PV + 8, forward=False)
        return n
    fin(a)
```

```python
from common import *
from gemm64 import gen_gemm64
from gemmw1 import gen_w1
HYB = ENV('HYB', '0') == '1'

def main():
    launches = []
    a = Asm()
    def add(name, grid, lds, blk=512):
        launches.append(f'; @launch kernel={name} grid=({grid},1,1) block=({blk},1,1) lds={lds}')
    nos = lambda a, ph: 0
    if HYB:
        import gen7
        from qkvattn7 import gen_qkv_attn
        gen7.WS_ST = WS_ST; gen7.WS_CS = WS_CS
        gen7.gen_prep(a, 'prep_kernel')
        lq = gen_qkv_attn(a, 'attnl0_kernel', ('A_x', 0), WS_O, WS_ST, WS_CS)
        gen_qkv_attn(a, 'attnl1_kernel', ('out', 0), WS_O, WS_ST, WS_CS)
        lo = gen_gemm64(a, 'wo', 1, nos)
        l1 = gen_w1(a, 2, nos, cs=(4, 32768, 16384))
        l2 = gen_gemm64(a, 'w2', 3, nos)
        add('prep_kernel', 688, 2048, 256)
        for L in range(2):
            add(f'attnl{L}_kernel', 256, lq, 256)
            add(f'wol{L}_kernel', 256, lo); add(f'w1l{L}_kernel', 256, l1); add(f'w2l{L}_kernel', 256, l2)
    else:
        from qkv import gen_qkv
        import sides
        lq = gen_qkv(a, 0, sides.qkv)
        lo = gen_gemm64(a, 'wo', 1, sides.wo)
        l1 = gen_w1(a, 2, sides.w1)
        l2 = gen_gemm64(a, 'w2', 3, sides.w2)
        for L in range(2):
            add(f'attnl{L}_kernel', 256, lq)
            add(f'wol{L}_kernel', 256, lo); add(f'w1l{L}_kernel', 256, l1); add(f'w2l{L}_kernel', 256, l2)
    if ENV('LIST'):
        m = {l.split('kernel=')[1].split('_kernel')[0]: l for l in launches}
        launches = [m[x] for x in ENV('LIST').split(',')]
    if 'nostore' in DBG:
        a.lines = [l for l in a.lines if not ('buffer_store' in l and f's[{SO}:{SO+3}]' in l)]
    hdr = open(os.path.join(os.path.dirname(os.path.abspath(__file__)), '..', 'header.txt')).read()
    out = hdr + '\n'.join(launches) + '\n.amdgcn_target "amdgcn-amd-amdhsa--gfx950"\n' + a.text()
    check_offsets(out)
    path = sys.argv[1]
    open(path, 'w').write(out)
    print('wrote', path, len(out))
main()
```

```python
import sys, os, struct
sys.path.insert(0, os.path.join(os.path.dirname(os.path.abspath(__file__)), '..'))
from asmlib import Asm, check_offsets
MB = 1 << 20
WS_O   = 0
WS_X1  = 4 * MB
WS_H   = 8 * MB
WS_ST  = 23 * MB
WS_CS  = 23 * MB + 512 * 1024
WS_TS  = 60 * MB
f2u = lambda f: struct.unpack('<I', struct.pack('<f', f))[0]
ENV = os.environ.get
TS = ENV('TS', '')
DBG = ENV('DBG', '').split(',')
def stf(kind): return (' ' + ENV('WTF', 'sc0 sc1')) if kind in ENV('WT', '').split(',') else ''

KA = {'A_x': 0, 'wqkv': 8, 'wo': 16, 'w1': 32, 'b1': 40, 'w2': 48, 'b2': 56, 'out': 64, 'ws': 80}
P_IN = 16
P_OUT = 32; P_WS = 34
P_XS = 12
PTR = {'A_x': 16, 'wqkv': 18, 'wo': 20, 'w1': 24, 'b1': 26, 'w2': 28, 'b2': 30, 'out': 32, 'ws': 34, 'xs': 12}
SX, SW, SO, SR, SB, ST, SP, SC = 36, 40, 44, 48, 52, 56, 60, 64
S_MT, S_NT, S_WV, S_WM, S_WN = 68, 69, 70, 71, 72
S_KX, S_KW, S_SLOT, S_XD, S_WD, S_HD, S_CNT = 73, 74, 75, 76, 77, 78, 79
S_LAYER = 96; S_TSI = 97; S_T = 98; S_CU = 99; S_XG = 100; S_KT = 101

KD = '''.section .rodata,"a"
.p2align 6
.amdhsa_kernel {name}
  .amdhsa_next_free_vgpr 256
  .amdhsa_next_free_sgpr 102
  .amdhsa_accum_offset 256
  .amdhsa_group_segment_fixed_size 0
  .amdhsa_kernarg_size 88
  .amdhsa_user_sgpr_count 2
  .amdhsa_user_sgpr_kernarg_segment_ptr 1
  .amdhsa_system_sgpr_workgroup_id_x 1
  .amdhsa_float_denorm_mode_32 3
  .amdhsa_float_denorm_mode_16_64 3
.end_amdhsa_kernel
.text
'''

def srd(a, sd, which, off, size):
    p = PTR[which]
    if off:
        a.emit(f's_add_u32 s{sd}, s{p}, {off}')
        a.emit(f's_addc_u32 s{sd+1}, s{p+1}, 0')
        a.emit(f's_and_b32 s{sd+1}, s{sd+1}, 0xffff')
    else:
        a.emit(f's_mov_b32 s{sd}, s{p}')
        a.emit(f's_and_b32 s{sd+1}, s{p+1}, 0xffff')
    a.emit(f's_mov_b32 s{sd+2}, {size}')
    a.emit(f's_mov_b32 s{sd+3}, 0x00020000')

def stub(a, name, body, layer, tsidx, first):
    a(f'.text\n.globl {name}\n.p2align 8\n.type {name},@function\n{name}:')
    if TS:
        stamp(a, 0, nowait=True)
    a.emit('s_load_dwordx16 s[16:31], s[0:1], 0')
    a.emit('s_load_dwordx2 s[32:33], s[0:1], 64')
    a.emit('s_load_dwordx2 s[34:35], s[0:1], 80')
    a.emit(f's_load_dwordx2 s[12:13], s[0:1], {0 if layer == 0 else 64}')
    a.emit(f's_mov_b32 s{S_LAYER}, {layer}')
    if TS: a.emit(f's_mov_b32 s{S_TSI}, {tsidx}')
    if not first:
        a.emit(f's_branch {body}')

def stamp(a, n, nowait=False):
    if not TS: return
    a.emit(f's_memrealtime s[{80+4*n}:{81+4*n}]')
    a.emit(f's_memtime s[{82+4*n}:{83+4*n}]')
    if not nowait: a.emit('s_waitcnt lgkmcnt(0)')

def stamps_out(a, tag):
    if not TS: return
    a.emit('s_waitcnt vmcnt(0)')
    stamp(a, 3)
    srd(a, SP, 'ws', WS_TS, 1 << 20)
    a.emit('s_lshl_b32 s4, s2, 6')
    a.emit(f's_lshl_b32 s5, s{S_TSI}, 16')
    a.emit('s_add_u32 s4, s4, s5')
    a.emit('v_mov_b32 v1, s4')
    for i in range(16): a.emit(f'v_mov_b32 v{4+i}, s{80+i}')
    a.emit('v_cmp_eq_u32 vcc, 0, v0')
    a.emit('s_and_saveexec_b64 s[6:7], vcc')
    a.emit(f's_cbranch_execz L_tsskip_{tag}')
    for j in range(4):
        a.emit(f'buffer_store_dwordx4 v[{4+4*j}:{7+4*j}], v1, s[{SP}:{SP+3}], 0 offen offset:{16*j}')
    a.emit('s_waitcnt vmcnt(0)')
    a.label(f'L_tsskip_{tag}')

def tile_map(a, LM, endlab):
    a.emit('s_cmp_ge_u32 s2, 256')
    a.emit(f's_cbranch_scc1 {endlab}')
    a.emit('v_lshrrev_b32 v2, 6, v0')
    a.emit('v_and_b32 v1, 63, v0')
    a.emit(f'v_readfirstlane_b32 s{S_WV}, v2')
    a.emit('s_and_b32 s3, s2, 7')
    a.emit(f's_lshr_b32 s{S_CU}, s2, 3')
    a.emit(f's_and_b32 s5, s3, {(1 << (4 - LM)) - 1}')
    a.emit(f's_lshl_b32 s5, s5, {LM}')
    a.emit(f's_and_b32 s6, s{S_CU}, {(1 << LM) - 1}')
    a.emit(f's_add_u32 s{S_MT}, s5, s6')
    a.emit(f's_lshr_b32 s5, s3, {4 - LM}')
    a.emit(f's_lshl_b32 s5, s5, {5 - LM}')
    a.emit(f's_lshr_b32 s6, s{S_CU}, {LM}')
    a.emit(f's_add_u32 s{S_NT}, s5, s6')
    if 'smallm' in DBG: a.emit(f's_and_b32 s{S_MT}, s{S_MT}, 1')
    if 'smalln' in DBG: a.emit(f's_and_b32 s{S_NT}, s{S_NT}, 1')

def interleave(a, main, side, lead=1, per=1):
    si = 0
    for i, m in enumerate(main):
        a.emit(m)
        if i + 1 >= lead:
            for _ in range(per):
                if si < len(side): a.emit(side[si]); si += 1
    while si < len(side): a.emit(side[si]); si += 1

class Loader:
    VXD = 4; VWD = 8; VXH = 28
    def __init__(self, a, tag, K, lda2, ldw2, panels, colbase, S, STAGE, halo=None, delta=0, rot=None):
        self.a = a; self.tag = tag; self.K = K; self.lda2 = lda2; self.ldw2 = ldw2; self.panels = panels
        self.colbase = colbase; self.S = S; self.STAGE = STAGE; self.halo = halo; self.delta = delta; self.rot = rot if rot is not None and rot >= 0 else None
        self.NSTEP = K // 64
        self.per = 4 + 2 * len(panels) + (1 if halo is not None else 0)
    def setup(self):
        a = self.a
        if ENV('PRIO', '0') != '0': a.emit(f"s_setprio {ENV('PRIO')}")
        a.emit(f's_add_u32 s8, s{S_WV}, s{S_NT}')
        a.emit('s_and_b32 s8, s8, 3')
        a.emit(f's_add_u32 s9, s{S_WV}, s{S_MT}')
        a.emit('s_and_b32 s9, s9, 3')
        a.emit(f's_lshl_b32 s{S_XD}, s8, 12')
        a.emit(f's_lshl_b32 s{S_WD}, s9, 11')
        a.emit(f's_add_u32 s{S_WD}, s{S_WD}, 16384')
        a.emit('v_lshrrev_b32 v3, 3, v1')
        a.emit('s_lshl_b32 s10, s8, 5')
        a.emit(f's_lshl_b32 s11, s{S_MT}, 7')
        a.emit('s_add_u32 s10, s10, s11')
        a.emit('v_add_u32 v3, s10, v3')
        a.emit(f'v_mul_u32_u24 v3, {self.lda2}, v3')
        a.emit('v_lshrrev_b32 v2, 4, v1')
        a.emit('v_and_b32 v10, 7, v1')
        for j in range(4):
            d = self.VXD + j
            if j & 1:
                a.emit(f'v_add_u32 v{d}, 4, v2')
                a.emit(f'v_xor_b32 v{d}, v{d}, v10')
            else:
                a.emit(f'v_xor_b32 v{d}, v2, v10')
            a.emit(f'v_lshl_add_u32 v{d}, v{d}, 4, v3')
            if j < 3: a.emit(f'v_add_u32 v3, {8*self.lda2}, v3')
        a.emit('v_lshrrev_b32 v3, 3, v1')
        a.emit('s_lshl_b32 s10, s9, 4')
        a.emit('v_add_u32 v3, s10, v3')
        a.emit(f'v_mul_u32_u24 v3, {self.ldw2}, v3')
        a.emit('v_lshrrev_b32 v2, 3, v1')
        a.emit('v_and_b32 v2, 2, v2')
        a.emit('v_xor_b32 v2, v2, v10')
        a.emit(f's_mul_i32 s10, s{S_NT}, {self.colbase}')
        if self.colbase & 127: a.emit('s_andn2_b32 s10, s10, 127')
        a.emit('v_add_u32 v3, s10, v3')
        a.emit(f'v_lshl_add_u32 v{self.VWD}, v2, 4, v3')
        a.emit('v_xor_b32 v2, 4, v2')
        a.emit(f'v_add_u32 v3, {8*self.ldw2}, v3')
        a.emit(f'v_lshl_add_u32 v{self.VWD+1}, v2, 4, v3')
        if self.halo is not None:
            a.emit(f's_and_b32 s10, s{S_WV}, 3')
            a.emit(f's_lshl_b32 s{S_HD}, s10, 9')
            a.emit(f's_add_u32 s{S_HD}, s{S_HD}, {self.halo}')
            a.emit('s_lshl_b32 s14, s10, 2')
            a.emit('s_add_u32 s14, s14, s11')
            a.emit('s_sub_u32 s14, s14, 16')
            a.emit('v_lshrrev_b32 v3, 3, v1')
            a.emit('v_add_u32 v3, s14, v3')
            a.emit('v_max_i32 v3, 0, v3')
            a.emit(f'v_mul_u32_u24 v3, {self.lda2}, v3')
            a.emit('s_lshl_b32 s14, s10, 1')
            a.emit('v_lshrrev_b32 v2, 4, v1')
            a.emit('v_add_u32 v2, s14, v2')
            a.emit('v_and_b32 v2, 7, v2')
            a.emit('v_xor_b32 v2, v2, v10')
            a.emit(f'v_lshl_add_u32 v{self.VXH}, v2, 4, v3')
            a.emit('s_cmp_eq_u32 s10, 0')
            a.emit('s_cselect_b32 s14, 0xffffff00, -1')
            a.emit('s_mov_b32 s15, 0')
        a.emit(f's_mov_b32 s{S_SLOT}, 0')
        if self.rot is None:
            a.emit(f's_mov_b32 s{S_KX}, 0')
            a.emit(f's_mov_b32 s{S_KW}, 0')
        else:
            a.emit(f's_add_u32 s{S_XG}, s{S_MT}, s{S_NT}')
            a.emit(f's_mov_b32 s{S_KT}, -1')
            for x in self.knext(): a.emit(x)
    def knext(self):
        if self.rot is None:
            return [f's_add_u32 s{S_KX}, s{S_KX}, 128', f's_add_u32 s{S_KW}, s{S_KW}, {64*self.ldw2}']
        lc = self.rot; C = 1 << lc; N = self.NSTEP
        o = [f's_add_u32 s{S_KT}, s{S_KT}, 1']
        D = int(ENV('ROTD_' + self.tag.upper(), ENV('ROTD', '2')))
        dl = {3: [3, -1, -1, -1], 2: [2, -1, -1, 0], 1: [1, -1, 0, 0]}[D]
        tbl = sum((((d * C) % N) << (8 * i)) for i, d in enumerate(dl))
        if lc: o += [f's_lshr_b32 s{S_KX}, s{S_KT}, {lc}', f's_sub_u32 s{S_KX}, s{S_KX}, s{S_XG}']
        else: o += [f's_sub_u32 s{S_KX}, s{S_KT}, s{S_XG}']
        o += [f's_lshl_b32 s{S_KX}, s{S_KX}, 3',
              f's_lshr_b32 s{S_KX}, {tbl:#x}, s{S_KX}',
              f's_and_b32 s{S_KX}, s{S_KX}, 255',
              f's_add_u32 s{S_KX}, s{S_KX}, s{S_KT}']
        if N & (N - 1) == 0: o += [f's_and_b32 s{S_KX}, s{S_KX}, {N - 1}']
        else: o += [f's_sub_u32 s{S_KW}, s{S_KX}, {N}', f's_cselect_b32 s{S_KX}, s{S_KX}, s{S_KW}']
        o += [f's_mul_i32 s{S_KW}, s{S_KX}, {64*self.ldw2}', f's_lshl_b32 s{S_KX}, s{S_KX}, 7']
        return o
    def issue(self):
        o = []
        if 'nodma' in DBG: return o
        o.append(f's_add_u32 s3, s{S_SLOT}, s{S_XD}')
        for j in range(4):
            o.append(f's_add_u32 m0, s3, {j*1024}')
            o.append('s_nop 0')
            o.append(f'buffer_load_dwordx4 v{self.VXD+j}, s[{SX}:{SX+3}], s{S_KX} offen lds')
        if self.halo is not None:
            o.append(f's_add_u32 m0, s{S_SLOT}, s{S_HD}')
            o.append('s_mov_b64 exec, s[14:15]')
            o.append(f'buffer_load_dwordx4 v{self.VXH}, s[{SX}:{SX+3}], s{S_KX} offen lds')
            o.append('s_mov_b64 exec, -1')
        o.append(f's_add_u32 s3, s{S_SLOT}, s{S_WD}')
        for pn, goff in enumerate(self.panels):
            for i in range(2):
                o.append(f's_add_u32 m0, s3, {pn*8192+i*1024}')
                o.append(f's_add_u32 s4, s{S_KW}, {goff}' if i == 0 else 's_nop 0')
                o.append(f'buffer_load_dwordx4 v{self.VWD+i}, s[{SW}:{SW+3}], s4 offen lds')
        o += self.knext()
        o.append(f's_add_u32 s{S_SLOT}, s{S_SLOT}, {self.STAGE}')
        o.append(f's_cmp_eq_u32 s{S_SLOT}, {self.S*self.STAGE}')
        o.append(f's_cselect_b32 s{S_SLOT}, 0, s{S_SLOT}')
        return o
    def run(self, variant='', d=None, per_stage=None, tail_issue=None, ntail_vm=0, final=None):
        a = self.a; per = self.per; N = self.NSTEP
        if d is None: d = self.S - 1
        tag = self.tag + variant
        def iss(ps=False):
            ins = self.issue()
            if not (ps and per_stage):
                for x in ins: a.emit(x)
                return
            pre, work = per_stage()
            for x in pre: a.emit(x)
            nd = max(1, sum(1 for x in ins if 'buffer_load' in x)); k = 0; wi = 0
            for x in ins:
                a.emit(x)
                if 'buffer_load' in x: k += 1
                if 'buffer_load' in x and f'v{self.VXH},' not in x:
                    tgt = len(work) * k // nd
                    while wi < tgt: a.emit(work[wi]); wi += 1
            while wi < len(work): a.emit(work[wi]); wi += 1
        def only_ps():
            if per_stage:
                pre, work = per_stage()
                for x in pre + work: a.emit(x)
        def wait(n):
            assert n <= 63, n
            a.emit(f's_waitcnt vmcnt({n})')
        pre = min(2, d)
        for _ in range(pre): iss()
        wait((pre - 1) * per)
        a.emit('s_barrier')
        for _ in range(pre, d): iss()
        nmain = N - d
        a.emit(f's_mov_b32 s{S_CNT}, {nmain - 1}')
        a.label(f'L_{tag}_ld')
        iss(True)
        wait((d - 1) * per)
        a.emit('s_barrier')
        a.emit(f's_sub_u32 s{S_CNT}, s{S_CNT}, 1')
        a.emit(f's_cmp_lg_u32 s{S_CNT}, 0')
        a.emit(f's_cbranch_scc1 L_{tag}_ld')
        iss(True)
        if tail_issue: tail_issue()
        for i in range(N - 1 - d, N):
            if i > N - 1 - d: only_ps()
            if i + 1 < N:
                wait((N - 1 - (i + 1)) * per + ntail_vm)
            else:
                if final: final()
            a.emit('s_barrier')

def pf_weights(a, sd, which, size, ldw2, R, sh, L, LMn, tilebytes, NI, vd, row0=0, qkv=False):
    if 'nopf' in DBG: return 0
    srd(a, sd, which, 0, size)
    a.emit(f's_and_b32 s3, s{S_WV}, 3')
    a.emit(f's_mul_i32 s3, s3, {NI * (64 >> sh)}')
    a.emit(f's_mul_i32 s4, s{S_CU}, {R}')
    a.emit('s_add_u32 s3, s3, s4')
    if row0: a.emit(f's_add_u32 s3, s3, {row0}')
    a.emit(f'v_lshrrev_b32 v2, {sh}, v1')
    a.emit('v_add_u32 v2, s3, v2')
    a.emit(f'v_mul_u32_u24 v2, {ldw2}, v2')
    a.emit(f'v_and_b32 v3, {(1 << sh) - 1}, v1')
    if L < (1 << sh): a.emit(f'v_min_u32 v3, {L-1}, v3')
    if qkv:
        a.emit('v_lshrrev_b32 v12, 2, v3')
        a.emit('v_lshl_add_u32 v2, v12, 11, v2')
        a.emit('v_and_b32 v3, 3, v3')
    a.emit('v_lshl_add_u32 v2, v3, 7, v2')
    a.emit('s_and_b32 s3, s2, 7')
    a.emit(f's_lshr_b32 s3, s3, {4 - LMn}')
    a.emit(f's_mul_i32 s3, s3, {(1 << (5 - LMn)) * tilebytes}')
    for i in range(NI):
        a.emit(f'buffer_load_dword v{vd+i}, v2, s[{sd}:{sd+3}], s3 offen')
        if i + 1 < NI: a.emit(f's_add_u32 s3, s3, {(64 >> sh) * ldw2}')
    return NI

_pfc = [0]
def pf_code(a, start, end, vd, forward=True):
    if 'nopfc' in DBG: return 0
    _pfc[0] += 1
    lab = f'L_pfc{_pfc[0]}'
    a.emit('s_getpc_b64 s[4:5]')
    a.label(lab)
    if forward:
        a.emit(f's_add_u32 s4, s4, {start}-{lab}')
        a.emit('s_addc_u32 s5, s5, 0')
    else:
        a.emit(f's_sub_u32 s4, s4, {lab}-{start}')
        a.emit('s_subb_u32 s5, s5, 0')
    a.emit(f's_and_b32 s3, s{S_WV}, 3')
    a.emit('s_lshl_b32 s3, s3, 13')
    a.emit('v_lshl_add_u32 v2, v1, 7, s3')
    a.emit(f'v_min_u32 v2, {end}-{start}-4, v2')
    a.emit(f'global_load_dword v{vd}, v2, s[4:5]')
    return 1

def wbase(a, vd, vt, g='v2'):
    a.emit(f'v_bfe_u32 v{vd}, v1, 2, 2')
    a.emit(f'v_lshl_add_u32 v{vd}, {g}, 3, v{vd}')
    a.emit(f'v_lshlrev_b32 v{vd}, 7, v{vd}')
    a.emit(f'v_and_b32 v{vt}, 3, v1')
    a.emit(f'v_lshl_add_u32 v{vd}, v{vt}, 3, v{vd}')
    a.emit(f'v_bfe_u32 v{vt}, v1, 3, 2')
    a.emit(f'v_lshl_add_u32 v{vd}, v{vt}, 5, v{vd}')
```

```python
from common import *

def gen_gemm64(a, kind, tsidx, side):
    K = 1024 if kind == 'wo' else 3584
    lda2 = K * 2; ldw2 = 2048
    S = int(ENV('S64', '6')); DELTA = int(ENV('DELTA', '0'))
    LM = int(ENV('LM_' + kind.upper(), '2'))
    STAGE = 16384 + 8192
    N = K // 64
    LRES = S * STAGE
    body = f'L_{kind}_body'; end = f'L_{kind}_end'
    VXB, VWB, VXA, VWA, VO = 4, 6, 24, 26, 12
    F = [32, 80]; ACC = 128; RES = 160; BIA = 176
    acc = lambda jn, jm: ACC + (jn * 2 + jm) * 4
    fx = lambda s, ks, jm: F[s] + (ks * 2 + jm) * 4
    fw = lambda s, ks, jn: F[s] + 16 + (ks * 4 + jn) * 4
    a.label(f'L_{kind}_c0')
    stub(a, f'{kind}l0_kernel', body, 0, tsidx, True)
    a.label(body)
    tile_map(a, LM, end)
    a.emit(f's_cmp_ge_u32 s{S_WV}, 4')
    a.emit(f's_cbranch_scc1 L_{kind}_loader')
    a.emit('v_and_b32 v3, 15, v1')
    a.emit('v_lshrrev_b32 v2, 4, v1')
    a.emit(f's_lshl_b32 s8, s{S_MT}, 7')
    a.emit(f's_lshl_b32 s9, s{S_WV}, 5')
    a.emit('s_add_u32 s8, s8, s9')
    a.emit('v_add_u32 v13, s8, v3')
    a.emit(f's_lshl_b32 s10, s{S_NT}, 7')
    a.emit('v_lshl_add_u32 v14, v2, 3, s10')
    a.emit('v_and_b32 v16, 1, v2')
    a.emit('v_lshlrev_b32 v16, 5, v16')
    a.emit('v_lshrrev_b32 v17, 1, v2')
    a.emit('v_lshl_add_u32 v16, v17, 4, v16')
    a.emit('v_add_u32 v16, s10, v16')
    a.emit(f'v_lshl_add_u32 v{VO}, v13, 11, v16')
    a.emit('v_lshl_add_u32 v18, v17, 4, v13')
    a.emit('v_lshlrev_b32 v18, 3, v18')
    a.emit('v_and_b32 v16, 1, v2')
    a.emit('v_lshl_add_u32 v18, v16, 2, v18')
    a.emit(f's_lshl_b32 s10, s{S_NT}, 14')
    a.emit('v_add_u32 v18, s10, v18')
    a.emit('v_lshrrev_b32 v17, 1, v3')
    a.emit(f's_lshl_b32 s8, s{S_WV}, 12')
    for ks in range(2):
        if ks: a.emit(f'v_add_u32 v{VXB+ks}, 4, v2')
        a.emit(f'v_xor_b32 v{VXB+ks}, v{VXB+ks if ks else 2}, v17')
        a.emit(f'v_lshlrev_b32 v{VXB+ks}, 4, v{VXB+ks}')
        a.emit(f'v_lshl_add_u32 v{VXB+ks}, v3, 7, v{VXB+ks}')
        a.emit(f'v_add_u32 v{VXB+ks}, s8, v{VXB+ks}')
    wbase(a, VWB, 17)
    a.emit(f'v_add_u32 v{VWB}, 16384, v{VWB}')
    for i in range(1, 4): a.emit(f'v_xor_b32 v{VWB+i}, {32*i}, v{VWB}')
    a.emit('v_lshrrev_b32 v17, 1, v3')
    a.emit('v_lshrrev_b32 v15, 1, v2')
    a.emit('v_xor_b32 v15, v15, v17')
    a.emit('v_lshlrev_b32 v15, 4, v15')
    a.emit('v_lshl_add_u32 v15, v3, 7, v15')
    a.emit('v_lshl_add_u32 v15, v16, 3, v15')
    a.emit(f's_add_u32 s8, s8, {LRES}')
    a.emit('v_add_u32 v15, s8, v15')
    a.emit('s_mov_b32 s11, 0xffff0000')
    a.emit(f's_mov_b32 s{S_SLOT}, 0')
    if kind == 'wo':
        for i in range(32): a.emit(f'v_mov_b32 v{ACC+i}, 0')
    a.emit('s_waitcnt lgkmcnt(0)')
    if kind == 'w2':
        srd(a, SB, 'b2', 0, 2048)
        for jn in range(4):
            a.emit(f'buffer_load_dwordx2 v[{BIA+2*jn}:{BIA+2*jn+1}], v14, s[{SB}:{SB+3}], 0 offen offset:{jn*32}')
        srd(a, SO, 'out', 0, 4 * MB)
    else:
        srd(a, SO, 'ws', WS_X1, 4 * MB)
    srd(a, ST, 'ws', WS_ST, 16 * 16384)
    if kind == 'w2':
        a.emit('s_waitcnt vmcnt(0)')
        for jn in range(4):
            for jm in range(2):
                c = acc(jn, jm)
                for h in range(2):
                    a.emit(f'v_lshlrev_b32 v{c+2*h}, 16, v{BIA+2*jn+h}')
                    a.emit(f'v_and_b32 v{c+2*h+1}, s11, v{BIA+2*jn+h}')
    def addr():
        o = [f'v_add_u32_e64 v{VXA+i}, s{S_SLOT}, v{VXB+i}' for i in range(6)]
        o += [f's_add_u32 s{S_SLOT}, s{S_SLOT}, {STAGE}', f's_cmp_eq_u32 s{S_SLOT}, {S*STAGE}', f's_cselect_b32 s{S_SLOT}, 0, s{S_SLOT}']
        return o
    def reads(s):
        o = []
        if 'noread' in DBG: return o
        for ks in range(2):
            for jm in range(2):
                o.append(f'ds_read_b128 v[{fx(s,ks,jm)}:{fx(s,ks,jm)+3}], v{VXA+ks} offset:{jm*2048}')
            for jn in range(4):
                for h in range(2):
                    r = fw(s, ks, jn) + 2 * h
                    o.append(f'ds_read_b64_tr_b16 v[{r}:{r+1}], v{VWA+jn} offset:{ks*4096+h*512}')
        return o
    def mf(s):
        o = []
        if 'nomfma' in DBG: return ['s_nop 0']
        for ks in range(2):
            for jn in range(4):
                for jm in range(2):
                    c = acc(jn, jm)
                    o.append(f'v_mfma_f32_16x16x32_bf16 v[{c}:{c+3}], v[{fw(s,ks,jn)}:{fw(s,ks,jn)+3}], v[{fx(s,ks,jm)}:{fx(s,ks,jm)+3}], v[{c}:{c+3}]')
        return o
    for x in addr(): a.emit(x)
    a.emit('s_barrier')
    stamp(a, 1)
    for x in reads(0): a.emit(x)
    a.emit(f's_mov_b32 s{S_CNT}, {N//2}')
    for x in addr(): a.emit(x)
    a.emit('s_waitcnt lgkmcnt(0)')
    a('.p2align 3')
    a.label(f'L_{kind}_loop')
    for s in range(2):
        a.emit('s_barrier')
        if s == 0: a.emit(f's_sub_u32 s{S_CNT}, s{S_CNT}, 1')
        ad = addr()
        ad[-1] += '\n  s_nop 0' if s == 0 else f'\n  s_cmp_lg_u32 s{S_CNT}, 0'
        interleave(a, mf(s), reads(1 - s) + ad, lead=1, per=2)
        a.emit('s_waitcnt lgkmcnt(0)')
    a.emit(f's_cbranch_scc1 L_{kind}_loop')
    stamp(a, 2)
    for jn in range(4):
        if jn: a.emit(f'v_xor_b32 v{VXA+jn}, {32*jn}, v15')
    for jm in range(2):
        for jn in range(4):
            r = RES + (jn * 2 + jm) * 2
            a.emit(f'ds_read_b64 v[{r}:{r+1}], v{VXA+jn if jn else 15} offset:{jm*2048}')
    for i in range(4): a.emit(f'v_mov_b32 v{20+i}, 0')
    a.emit(f's_mov_b32 s3, {16*2048}')
    a.emit('s_mov_b32 s10, 0x3f803f80')
    D = 32
    for jm in range(2):
        for p in range(2):
            d = D + (jm * 2 + p) * 4
            for q in range(2):
                c = acc(2 * p + q, jm); r = RES + ((2 * p + q) * 2 + jm) * 2
                a.emit(f's_waitcnt lgkmcnt({7 - (jm * 4 + 2 * p + q)})')
                for h in range(2):
                    a.emit(f'v_lshlrev_b32 v{184+2*h}, 16, v{r+h}')
                    a.emit(f'v_and_b32 v{185+2*h}, s11, v{r+h}')
                for h in range(2):
                    a.emit(f'v_pk_add_f32 v[{c+2*h}:{c+2*h+1}], v[{c+2*h}:{c+2*h+1}], v[{184+2*h}:{185+2*h}]')
                a.emit(f'v_cvt_pk_bf16_f32 v{d+2*q}, v{c}, v{c+1}')
                a.emit(f'v_cvt_pk_bf16_f32 v{d+2*q+1}, v{c+2}, v{c+3}')
            a.emit('s_nop 1')
            a.emit(f'v_permlane16_swap_b32 v{d}, v{d+2}')
            a.emit(f'v_permlane16_swap_b32 v{d+1}, v{d+3}')
            a.emit(f'buffer_store_dwordx4 v[{d}:{d+3}], v{VO}, s[{SO}:{SO+3}], {"s3" if jm else "0"} offen offset:{p*64}{stf(kind)}')
    for jm in range(2):
        for i in range(8):
            d = D + jm * 8 + i
            a.emit(f'v_dot2_f32_bf16 v{20+jm}, v{d}, s10, v{20+jm}')
            a.emit(f'v_dot2_f32_bf16 v{22+jm}, v{d}, v{d}, v{22+jm}')
    a.emit('s_nop 2')
    a.emit('v_permlane32_swap_b32 v20, v21')
    a.emit('v_permlane32_swap_b32 v22, v23')
    a.emit('v_add_f32 v20, v20, v21')
    a.emit('v_add_f32 v22, v22, v23')
    a.emit('s_nop 1')
    a.emit('v_permlane16_swap_b32 v20, v22')
    a.emit('v_add_f32 v20, v20, v22')
    a.emit(f'buffer_store_dword v20, v18, s[{ST}:{ST+3}], 0 offen{stf(kind)}')
    stamps_out(a, kind)
    a.emit('s_endpgm')
    a.label(f'L_{kind}_loader')
    L = Loader(a, kind, K, lda2, ldw2, [0], 128, S, STAGE, rot=int(ENV('ROT_' + kind.upper(), '0')))
    L.setup()
    a.emit('s_waitcnt lgkmcnt(0)')
    if kind == 'wo':
        srd(a, SX, 'ws', WS_O, 4 * MB); srd(a, SW, 'wo', 0, 2 * MB)
    else:
        srd(a, SX, 'ws', WS_H, 2048 * 7168); srd(a, SW, 'w2', 0, 3584 * 2048)
    ns = side(Asm(), 'issue')
    def tail():
        if kind == 'wo': srd(a, SR, 'xs', 0, 4 * MB)
        else:
            srd(a, SR, 'ws', WS_X1, 4 * MB)
            a.emit(f's_lshr_b32 s3, s{S_XD}, 7')
            a.emit(f's_lshl_b32 s4, s{S_MT}, 7')
            a.emit('s_add_u32 s3, s3, s4')
            a.emit('v_lshrrev_b32 v2, 3, v1')
            a.emit('v_add_u32 v2, s3, v2')
            for j in range(4):
                a.emit(f'v_mul_u32_u24 v3, {lda2 - 2048}, v2')
                a.emit(f'v_sub_u32 v{L.VXD+j}, v{L.VXD+j}, v3')
                if j < 3: a.emit('v_add_u32 v2, 8, v2')
        a.emit(f's_lshl_b32 s4, s{S_NT}, 7')
        for j in range(4):
            a.emit(f's_add_u32 m0, s{S_XD}, {LRES + j*1024}')
            a.emit('s_nop 0')
            a.emit(f'buffer_load_dwordx4 v{L.VXD+j}, s[{SR}:{SR+3}], s4 offen lds')
        side(a, 'issue')
    final = lambda: a.emit(f's_waitcnt vmcnt({ns})')
    if DELTA:
        a.emit(f's_cmp_eq_u32 s{S_WV}, 4')
        a.emit(f's_cbranch_scc1 L_{kind}_lead')
        L.run('f', d=S - 1 - DELTA, tail_issue=tail, ntail_vm=ns + 4, final=final)
        a.emit(f's_branch L_{kind}_side')
        a.label(f'L_{kind}_lead')
    L.run('l', d=S - 1, tail_issue=tail, ntail_vm=ns + 4, final=final)
    a.label(f'L_{kind}_side')
    side(a, 'finish')
    a.label(end)
    a.emit('s_endpgm')
    a(KD.format(name=f'{kind}l0_kernel'))
    stub(a, f'{kind}l1_kernel', body, 1, tsidx + 4, False)
    a.label(f'L_{kind}_c1')
    a(KD.format(name=f'{kind}l1_kernel'))
    return S * STAGE + 16384
```

```python
from common import *

def big_loop(a, tag, N, S, STAGE, naddr, VB, VA, reads, mf, variants=None, select=None, post=None):
    def addr():
        o = [f'v_add_u32_e64 v{VA+i}, s{S_SLOT}, v{VB+i}' for i in range(naddr)]
        o += [f's_add_u32 s{S_SLOT}, s{S_SLOT}, {STAGE}', f's_cmp_eq_u32 s{S_SLOT}, {S*STAGE}', f's_cselect_b32 s{S_SLOT}, 0, s{S_SLOT}']
        return o
    a.emit(f's_mov_b32 s{S_SLOT}, 0')
    for x in addr(): a.emit(x)
    a.emit(f's_mov_b32 s{S_CNT}, {N}')
    a.emit('s_barrier')
    stamp(a, 1)
    for x in reads(0, 0): a.emit(x)
    a.emit('s_waitcnt lgkmcnt(0)')
    def loop(nm, m):
        a('.p2align 3')
        a.label(f'L_{tag}_loop{nm}')
        ad = addr()
        ad[-1] += f'\n  s_sub_u32 s{S_CNT}, s{S_CNT}, 1'
        interleave(a, m(0), reads(1, 1) + ad, lead=1, per=1)
        a.emit('s_waitcnt lgkmcnt(0)')
        a.emit('s_barrier')
        interleave(a, m(1), reads(0, 0) + [f's_cmp_lg_u32 s{S_CNT}, 0\n  s_nop 0'], lead=1, per=1)
        a.emit('s_waitcnt lgkmcnt(0)')
        a.emit(f's_cbranch_scc1 L_{tag}_loop{nm}')
    if variants:
        select()
        vs = list(variants.items())
        for i, (nm, m) in enumerate(vs):
            loop(nm, m)
            if i + 1 < len(vs): a.emit(f's_branch L_{tag}_post')
        a.label(f'L_{tag}_post')
        post()
        a.emit(f's_branch L_{tag}_exit')
    loop('', mf)
    a.label(f'L_{tag}_exit')
    stamp(a, 2)

def stats_loads(a, vd, halo):
    a.emit(f's_and_b32 s3, s{S_WV}, 3')
    a.emit(f's_lshl_b32 s4, s{S_MT}, 7')
    a.emit('s_lshl_b32 s5, s3, 6')
    a.emit('s_add_u32 s5, s5, s4')
    a.emit('v_add_u32 v2, s5, v1')
    a.emit('s_sub_u32 s4, s4, 16')
    a.emit('v_and_b32 v3, 15, v1')
    a.emit('v_add_u32 v3, s4, v3')
    a.emit('v_max_i32 v3, 0, v3')
    a.emit('s_cmp_ge_u32 s3, 2')
    a.emit('s_cselect_b64 vcc, -1, 0')
    a.emit('v_cndmask_b32 v2, v2, v3, vcc')
    a.emit('v_lshlrev_b32 v2, 3, v2')
    a.emit('s_mov_b32 s3, 0')
    for j in range(16):
        a.emit(f'buffer_load_dwordx2 v[{vd+2*j}:{vd+2*j+1}], v2, s[{ST}:{ST+3}], s3 offen')
        if j < 15: a.emit('s_add_u32 s3, s3, 16384')
    return 16

def stats_finish(a, vs):
    a.emit(f'v_mul_f32 v{vs}, 0x3a800000, v{vs}')
    a.emit(f'v_mul_f32 v{vs+1}, 0x3a800000, v{vs+1}')
    a.emit(f'v_fma_f32 v{vs+1}, -v{vs}, v{vs}, v{vs+1}')
    a.emit(f'v_max_f32 v{vs+1}, 0, v{vs+1}')
    a.emit(f'v_add_f32 v{vs+1}, 0x3727c5ac, v{vs+1}')
    a.emit(f'v_rsq_f32 v{vs+1}, v{vs+1}')
    a.emit('s_nop 0')

def stats_reduce_store(a, vd, LST):
    for j in range(1, 8):
        a.emit(f'v_add_f32 v{vd}, v{vd}, v{vd+2*j}')
        a.emit(f'v_add_f32 v{vd+1}, v{vd+1}, v{vd+2*j+1}')
        a.emit(f'v_add_f32 v{vd+16}, v{vd+16}, v{vd+16+2*j}')
        a.emit(f'v_add_f32 v{vd+17}, v{vd+17}, v{vd+17+2*j}')
    a.emit(f'v_add_f32 v{vd}, v{vd}, v{vd+16}')
    a.emit(f'v_add_f32 v{vd+1}, v{vd+1}, v{vd+17}')
    stats_finish(a, vd)
    a.emit(f's_and_b32 s3, s{S_WV}, 3')
    a.emit('s_lshl_b32 s5, s3, 6')
    a.emit('s_add_u32 s5, s5, 16')
    a.emit('v_add_u32 v2, s5, v1')
    a.emit('v_and_b32 v3, 15, v1')
    a.emit('s_cmp_ge_u32 s3, 2')
    a.emit('s_cselect_b64 vcc, -1, 0')
    a.emit('v_cndmask_b32 v2, v2, v3, vcc')
    a.emit('v_lshlrev_b32 v2, 2, v2')
    a.emit(f'v_add_u32 v2, {LST}, v2')
    a.emit(f'ds_write2_b32 v2, v{vd}, v{vd+1} offset0:0 offset1:160')

def gen_w1(a, tsidx, side, cs=(16, 16384, 0)):
    kind = 'w1'
    K = 1024; lda2 = 2048; ldw2 = 7168; ldo2 = 7168
    S = 3; LM = int(ENV('LM_W1', '3'))
    STAGE = 16384 + 4 * 8192
    LST = S * STAGE
    LCS = LST + 1280
    N = 16
    body = f'L_{kind}_body'; end = f'L_{kind}_end'
    VB, VA, VO = 4, 20, 12
    F = [32, 80]; ACC = 128
    acc = lambda jn, jm: ACC + (jn * 4 + jm) * 4
    fx = lambda s, jm: F[s] + jm * 4
    fw = lambda s, jn: F[s] + 16 + jn * 4
    a.label(f'L_{kind}_c0')
    stub(a, f'{kind}l0_kernel', body, 0, tsidx, True)
    a.label(body)
    tile_map(a, LM, end)
    a.emit(f's_cmp_ge_u32 s{S_WV}, 4')
    a.emit(f's_cbranch_scc1 L_{kind}_loader')
    a.emit(f's_and_b32 s{S_WM}, s{S_WV}, 1')
    a.emit(f's_lshr_b32 s{S_WN}, s{S_WV}, 1')
    a.emit('v_and_b32 v3, 15, v1')
    a.emit('v_lshrrev_b32 v2, 4, v1')
    a.emit('v_lshrrev_b32 v17, 1, v3')
    a.emit(f's_lshl_b32 s8, s{S_WM}, 13')
    for ks in range(2):
        if ks: a.emit(f'v_add_u32 v{VB+ks}, 4, v2')
        a.emit(f'v_xor_b32 v{VB+ks}, v{VB+ks if ks else 2}, v17')
        a.emit(f'v_lshlrev_b32 v{VB+ks}, 4, v{VB+ks}')
        a.emit(f'v_lshl_add_u32 v{VB+ks}, v3, 7, v{VB+ks}')
        a.emit(f'v_add_u32 v{VB+ks}, s8, v{VB+ks}')
    wbase(a, 13, 17)
    a.emit(f's_and_b32 s8, s{S_NT}, 1')
    a.emit('s_lshl_b32 s8, s8, 1')
    a.emit(f's_mul_i32 s9, s{S_WN}, 7')
    a.emit('s_add_u32 s8, s8, s9')
    for r in range(4):
        a.emit(f's_add_u32 s9, s8, {r}')
        a.emit('s_and_b32 s10, s9, 3')
        a.emit('s_lshl_b32 s10, s10, 5')
        a.emit('s_lshr_b32 s9, s9, 2')
        a.emit('s_lshl_b32 s9, s9, 13')
        a.emit('s_add_u32 s9, s9, 16384')
        a.emit(f'v_xor_b32 v{VB+2+r}, s10, v13')
        a.emit(f'v_add_u32 v{VB+2+r}, s9, v{VB+2+r}')
    a.emit(f's_lshl_b32 s8, s{S_MT}, 7')
    a.emit(f's_lshl_b32 s9, s{S_WM}, 6')
    a.emit('s_add_u32 s8, s8, s9')
    a.emit('v_add_u32 v13, s8, v3')
    a.emit(f's_mul_i32 s10, s{S_NT}, 448')
    a.emit(f's_mul_i32 s9, s{S_WN}, 224')
    a.emit('s_add_u32 s10, s10, s9')
    a.emit('v_and_b32 v16, 1, v2')
    a.emit('v_lshrrev_b32 v17, 1, v2')
    a.emit(f'v_mul_u32_u24 v14, {ldo2}, v13')
    a.emit('v_lshl_add_u32 v14, v17, 4, v14')
    a.emit('v_add_u32 v14, s10, v14')
    a.emit(f'v_lshl_add_u32 v{VO}, v16, 5, v14')
    a.emit(f'v_mul_u32_u24 v16, {16*ldo2}, v16')
    a.emit(f'v_add_u32 v{VO+1}, v16, v14')
    a.emit(f's_lshl_b32 s9, s{S_WM}, 8')
    a.emit(f's_add_u32 s9, s9, {LST + 64}')
    a.emit('v_lshl_add_u32 v14, v3, 2, s9')
    a.emit(f's_mul_i32 s9, s{S_WN}, 448')
    a.emit(f's_add_u32 s9, s9, {LCS}')
    a.emit('v_lshl_add_u32 v15, v2, 4, s9')
    for i in range(112): a.emit(f'v_mov_b32 v{ACC+i}, 0')
    a.emit('s_waitcnt lgkmcnt(0)')
    srd(a, SO, 'ws', WS_H, 2048 * 7168)
    def reads(s, ks):
        o = []
        if 'noread' in DBG: return o
        for jm in range(4):
            o.append(f'ds_read_b128 v[{fx(s,jm)}:{fx(s,jm)+3}], v{VA+ks} offset:{jm*2048}')
        for jn in range(7):
            for h in range(2):
                r = fw(s, jn) + 2 * h
                o.append(f'ds_read_b64_tr_b16 v[{r}:{r+1}], v{VA+2+(jn&3)} offset:{(jn>>2)*8192+ks*4096+h*512}')
        return o
    def mf(s):
        o = []
        if 'nomfma' in DBG: return ['s_nop 0']
        for jn in range(7):
            for jm in range(4):
                c = acc(jn, jm)
                o.append(f'v_mfma_f32_16x16x32_bf16 v[{c}:{c+3}], v[{fw(s,jn)}:{fw(s,jn)+3}], v[{fx(s,jm)}:{fx(s,jm)+3}], v[{c}:{c+3}]')
        return o
    big_loop(a, kind, N, S, STAGE, 6, VB, VA, reads, mf)
    CS = 32; BI = 60; STT = 88; CK = 96; T = 100; D = 108
    for jm in range(4):
        a.emit(f'ds_read2_b32 v[{STT+2*jm}:{STT+2*jm+1}], v14 offset0:{16*jm} offset1:{160+16*jm}')
    for jn in range(7):
        a.emit(f'ds_read_b128 v[{CS+4*jn}:{CS+4*jn+3}], v15 offset:{jn*64}')
        a.emit(f'ds_read_b128 v[{BI+4*jn}:{BI+4*jn+3}], v15 offset:{1024+jn*64}')
    c0 = -2.0 * 0.7978845608028654 * 1.4426950408889634
    c1 = c0 * 0.044715
    a.emit(f'v_mov_b32 v{CK}, {f2u(c0):#x}')
    a.emit(f'v_mov_b32 v{CK+1}, {f2u(c1):#x}')
    a.emit(f'v_mov_b32 v{CK+2}, 1.0')
    a.emit('s_waitcnt lgkmcnt(0)')
    for jm in range(4):
        a.emit(f'v_mul_f32 v{STT+2*jm}, v{STT+2*jm}, v{STT+2*jm+1}')
    def tile_math(jn, jm, d):
        c = acc(jn, jm)
        seqs = []
        ST2 = f'v[{STT+2*jm}:{STT+2*jm+1}]'
        for q in range(2):
            x = c + 2 * q; t = T + 2 * q + 4 * (jn & 1)
            X = f'v[{x}:{x+1}]'; TT = f'v[{t}:{t+1}]'
            seqs.append([
              f'v_pk_fma_f32 {TT}, v[{CS+4*jn+2*q}:{CS+4*jn+2*q+1}], {ST2}, v[{BI+4*jn+2*q}:{BI+4*jn+2*q+1}] op_sel:[0,0,0] op_sel_hi:[1,0,1] neg_lo:[0,1,0] neg_hi:[0,1,0]',
              f'v_pk_fma_f32 {X}, {X}, {ST2}, {TT} op_sel:[0,1,0] op_sel_hi:[1,1,1]',
              f'v_pk_mul_f32 {TT}, {X}, {X}',
              f'v_pk_fma_f32 {TT}, {TT}, v[{CK}:{CK+1}], v[{CK}:{CK+1}] op_sel:[0,1,0] op_sel_hi:[1,1,0]',
              f'v_pk_mul_f32 {TT}, {TT}, {X}',
              f'v_exp_f32 v{t}, v{t}\n  v_exp_f32 v{t+1}, v{t+1}',
              f'v_pk_add_f32 {TT}, {TT}, v[{CK+2}:{CK+3}] op_sel_hi:[1,0]',
              f'v_rcp_f32 v{t}, v{t}\n  v_rcp_f32 v{t+1}, v{t+1}',
              f'v_pk_mul_f32 {X}, {X}, {TT}',
              f'v_cvt_pk_bf16_f32 v{d+q}, v{x}, v{x+1}'])
        for ia, ib in zip(*seqs):
            a.emit(ia); a.emit(ib)
    cnt = [0]
    def pair(t0, t1, vo, soff):
        d = D + 4 * (cnt[0] % 4); cnt[0] += 1
        tile_math(*t0, d); tile_math(*t1, d + 2)
        a.emit(f's_mov_b32 s3, {soff}')
        a.emit('s_nop 0')
        a.emit(f'v_permlane16_swap_b32 v{d}, v{d+2}')
        a.emit(f'v_permlane16_swap_b32 v{d+1}, v{d+3}')
        a.emit(f'buffer_store_dwordx4 v[{d}:{d+3}], v{vo}, s[{SO}:{SO+3}], s3 offen{stf(kind)}')
    for jm in range(4):
        for p in range(3):
            pair((2 * p, jm), (2 * p + 1, jm), VO, jm * 16 * ldo2 + p * 64)
        if jm & 1:
            pair((6, jm - 1), (6, jm), VO + 1, (jm - 1) * 16 * ldo2 + 192)
    stamps_out(a, kind)
    a.emit('s_endpgm')
    a.label(f'L_{kind}_loader')
    L = Loader(a, kind, K, lda2, ldw2, [128 * i for i in range(4)], 448, S, STAGE, rot=int(ENV('ROT_W1', '0')))
    L.setup()
    a.emit('s_waitcnt lgkmcnt(0)')
    srd(a, SX, 'ws', WS_X1, 4 * MB); srd(a, SW, 'w1', 0, 1024 * 7168)
    srd(a, ST, 'ws', WS_ST, 16 * 16384); srd(a, SC, 'ws', WS_CS, 16 * 16384); srd(a, SB, 'b1', 0, 7168)
    def tail():
        stats_loads(a, 32, False)
        a.emit(f's_mul_i32 s4, s{S_NT}, 224')
        a.emit('s_sub_u32 s4, s4, 256')
        a.emit('v_add_u32 v3, s4, v0')
        a.emit('v_lshlrev_b32 v2, 2, v3')
        a.emit('v_lshlrev_b32 v3, 1, v3')
        a.emit(f's_mov_b32 s3, {cs[2]}')
        for j in range(16):
            if j < cs[0]:
                a.emit(f'buffer_load_dword v{64+j}, v2, s[{SC}:{SC+3}], s3 offen')
                if j < cs[0] - 1: a.emit(f's_add_u32 s3, s3, {cs[1]}')
            else:
                a.emit(f'v_mov_b32 v{64+j}, 0')
        a.emit(f'buffer_load_ushort v80, v3, s[{SB}:{SB+3}], 0 offen')
        side(a, 'issue')
    ns = side(Asm(), 'issue')
    def final():
        a.emit(f's_waitcnt vmcnt({ns})')
        stats_reduce_store(a, 32, LST)
        for j in range(8): a.emit(f'v_add_f32 v{64+j}, v{64+j}, v{72+j}')
        for j in range(4): a.emit(f'v_add_f32 v{64+j}, v{64+j}, v{68+j}')
        a.emit('v_add_f32 v64, v64, v65')
        a.emit('v_add_f32 v66, v66, v67')
        a.emit('v_add_f32 v64, v64, v66')
        a.emit('v_lshlrev_b32 v80, 16, v80')
        a.emit('v_lshlrev_b32 v2, 2, v0')
        a.emit(f'v_add_u32 v2, {LCS - 1024}, v2')
        a.emit('ds_write_b32 v2, v64')
        a.emit('ds_write_b32 v2, v80 offset:1024')
        a.emit('s_waitcnt lgkmcnt(0)')
    L.run(tail_issue=tail, ntail_vm=17 + cs[0] + ns, final=final)
    side(a, 'finish')
    a.label(end)
    a.emit('s_endpgm')
    a(KD.format(name=f'{kind}l0_kernel'))
    stub(a, f'{kind}l1_kernel', body, 1, tsidx + 4, False)
    a.label(f'L_{kind}_c1')
    a(KD.format(name=f'{kind}l1_kernel'))
    return LCS + 2048
```

```python
from common import *
from gemmw1 import big_loop, stats_loads, stats_finish, stats_reduce_store

def gen_qkv(a, tsidx, side):
    kind = 'attn'
    K = 1024; lda2 = 2048; ldw2 = 6144
    S = 3; LM = int(ENV('LM_QKV', '3'))
    XH = 16384 + 6 * 4096
    STAGE = XH + 2048
    LST = S * STAGE
    EX = 1024
    N = 16
    body = f'L_{kind}_body'; end = f'L_{kind}_end'
    VB, VA = 4, 10
    VXW, VPE, VPO, VCE, VCO, VVE, VVO, VS1, VS4, VKA, VKB, MAP, MAC, MBP, MBC, VO = range(16, 32)
    M_ODD, M_UPA, M_UPB, M_FA, M_FB = 48, 50, 52, 54, 14
    F = [32, 76]; ACC = 128; HACC = 224; ONES = 236
    acc = lambda jn, jm: ACC + (jn * 4 + jm) * 4
    fx = lambda s, jm: F[s] + jm * 4
    fw = lambda s, jn: F[s] + 20 + jn * 4
    a.label(f'L_{kind}_c0')
    stub(a, f'{kind}l0_kernel', body, 0, tsidx, True)
    a.label(body)
    tile_map(a, LM, end)
    a.emit(f's_cmp_ge_u32 s{S_WV}, 4')
    a.emit(f's_cbranch_scc1 L_{kind}_loader')
    a.emit(f's_and_b32 s{S_WM}, s{S_WV}, 1')
    a.emit(f's_lshr_b32 s{S_WN}, s{S_WV}, 1')
    a.emit('v_and_b32 v3, 31, v1')
    a.emit('v_lshlrev_b32 v3, 2, v3')
    a.emit(f'v_add_u32 v3, {XH}, v3')
    for i in range(4): a.emit(f'v_mov_b32 v{ONES+i}, 0x3f803f80')
    a.emit(f'ds_write_b32 v3, v{ONES}')
    a.emit(f'ds_write_b32 v3, v{ONES} offset:{STAGE}')
    a.emit(f'v_add_u32 v3, {2*STAGE}, v3')
    a.emit(f'ds_write_b32 v3, v{ONES}')
    a.emit('v_and_b32 v3, 15, v1')
    a.emit('v_lshrrev_b32 v2, 4, v1')
    a.emit('v_lshrrev_b32 v33, 1, v3')
    a.emit(f's_lshl_b32 s8, s{S_WM}, 13')
    for ks in range(2):
        if ks: a.emit(f'v_add_u32 v{VB+ks}, 4, v2')
        a.emit(f'v_xor_b32 v{VB+ks}, v{VB+ks if ks else 2}, v33')
        a.emit(f'v_lshlrev_b32 v{VB+ks}, 4, v{VB+ks}')
        a.emit(f'v_lshl_add_u32 v{VB+ks}, v3, 7, v{VB+ks}')
        a.emit(f'v_add_u32 v{VB+4+ks}, {XH}, v{VB+ks}')
        a.emit(f'v_add_u32 v{VB+ks}, s8, v{VB+ks}')
    wbase(a, 34, 33)
    a.emit('v_and_b32 v35, 1, v2')
    a.emit(f'v_xor_b32 v35, s{S_WM}, v35')
    a.emit(f's_lshl_b32 s8, s{S_WV}, 5')
    a.emit('v_xor_b32 v34, s8, v34')
    a.emit(f'v_add_u32 v{VB+2}, 16384, v34')
    a.emit(f'v_xor_b32 v{VB+3}, 32, v{VB+2}')
    a.emit(f's_lshl_b32 s8, s{S_MT}, 7')
    a.emit(f's_lshl_b32 s9, s{S_WM}, 6')
    a.emit('s_add_u32 s8, s8, s9')
    a.emit('v_add_u32 v33, s8, v3')
    a.emit(f's_lshl_b32 s10, s{S_NT}, 7')
    a.emit(f's_lshl_b32 s11, s{S_WN}, 6')
    a.emit('s_add_u32 s10, s10, s11')
    a.emit('v_lshl_add_u32 v33, v33, 11, s10')
    a.emit('v_lshl_add_u32 v33, v35, 5, v33')
    a.emit('v_lshrrev_b32 v34, 1, v2')
    a.emit(f'v_lshl_add_u32 v{VO}, v34, 4, v33')
    a.emit(f's_mul_i32 s10, s{S_WN}, 12288')
    a.emit(f's_add_u32 s10, s10, {EX}')
    a.emit(f's_lshl_b32 s11, s{S_WM}, 10')
    a.emit('s_add_u32 s4, s10, s11')
    a.emit('s_sub_u32 s5, s10, s11')
    a.emit(f's_mul_i32 s6, s{S_WM}, 6144')
    a.emit(f'v_lshl_add_u32 v{VXW}, v1, 4, s4')
    a.emit(f'v_add_u32 v{VPE}, s6, v{VXW}')
    a.emit(f'v_lshl_add_u32 v{VPO}, v1, 4, s5')
    a.emit(f'v_add_u32 v{VPO}, s6, v{VPO}')
    a.emit(f'v_lshl_add_u32 v{VCE}, v2, 8, s4')
    a.emit(f'v_lshl_add_u32 v{VCO}, v2, 8, s5')
    a.emit(f'v_lshl_add_u32 v{VVE}, v3, 4, s4')
    a.emit(f'v_lshl_add_u32 v{VVO}, v3, 4, s5')
    a.emit(f's_lshl_b32 s10, s{S_WM}, 8')
    a.emit(f's_add_u32 s10, s10, {LST}')
    a.emit(f'v_lshl_add_u32 v{VS1}, v3, 2, s10')
    a.emit(f'v_lshl_add_u32 v{VS4}, v2, 4, s10')
    a.emit('v_and_b32 v33, 1, v3')
    a.emit(f'v_cmp_eq_u32 s[{M_ODD}:{M_ODD+1}], 1, v33')
    a.emit('v_lshl_add_u32 v34, v2, 2, v33')
    a.emit('v_add_u32 v35, 2, v34')
    a.emit(f'v_cmp_gt_u32 s[{M_UPA}:{M_UPA+1}], v34, v3')
    a.emit(f'v_cmp_gt_u32 s[{M_UPB}:{M_UPB+1}], v35, v3')
    a.emit('v_mov_b32 v36, 0xffff')
    a.emit('v_mov_b32 v37, 0xffff0000')
    a.emit(f'v_cndmask_b32 v36, v36, v37, s[{M_ODD}:{M_ODD+1}]')
    a.emit(f's_add_u32 s10, s10, {640 + 64}')
    a.emit('v_lshl_add_u32 v34, v34, 2, s10')
    a.emit('v_lshl_add_u32 v35, v35, 2, s10')
    a.emit('v_subrev_u32 v38, 64, v34')
    a.emit('v_subrev_u32 v39, 64, v35')
    a.emit(f'v_cndmask_b32 v{VKA}, v34, v38, s[{M_UPA}:{M_UPA+1}]')
    a.emit(f'v_cndmask_b32 v{VKB}, v35, v39, s[{M_UPB}:{M_UPB+1}]')
    a.emit(f'v_cndmask_b32 v{MAP}, 0, v36, s[{M_UPA}:{M_UPA+1}]')
    a.emit(f'v_cndmask_b32 v{MBP}, 0, v36, s[{M_UPB}:{M_UPB+1}]')
    a.emit(f'v_xor_b32 v{MAC}, v{MAP}, v36')
    a.emit(f'v_xor_b32 v{MBC}, v{MBP}, v36')
    a.emit('s_cmp_eq_u32 s8, 0')
    a.emit(f's_cselect_b64 s[{M_FA}:{M_FA+1}], s[{M_UPA}:{M_UPA+1}], 0')
    a.emit(f's_cselect_b64 s[{M_FB}:{M_FB+1}], s[{M_UPB}:{M_UPB+1}], 0')
    for i in list(range(120, 236)) + list(range(240, 256)): a.emit(f'v_mov_b32 v{i}, 0')
    a.emit('s_waitcnt lgkmcnt(0)')
    srd(a, SO, 'ws', WS_O, 4 * MB)
    def reads(s, ks):
        o = []
        if 'noread' in DBG: return o
        for jm in range(4):
            o.append(f'ds_read_b128 v[{fx(s,jm)}:{fx(s,jm)+3}], v{VA+ks} offset:{jm*2048}')
        o.append(f'ds_read_b128 v[{fx(s,4)}:{fx(s,4)+3}], v{VA+4+ks}')
        for jn in range(6):
            for h in range(2):
                r = fw(s, jn) + 2 * h
                o.append(f'ds_read_b64_tr_b16 v[{r}:{r+1}], v{VA+2+(jn&1)} offset:{(jn>>1)*8192+ks*4096+h*512}')
        return o
    def mfma(c, x, y, cin=None):
        return f'v_mfma_f32_16x16x32_bf16 v[{c}:{c+3}], v[{x}:{x+3}], v[{y}:{y+3}], ' + (f'v[{c}:{c+3}]' if cin is None else cin)
    def mf(s):
        o = []
        if 'nomfma' in DBG: return ['s_nop 0']
        for jn in range(6):
            for jm in range(5):
                if jm == 4 and jn & 1: continue
                c = acc(jn, jm) if jm < 4 else HACC + (jn >> 1) * 4
                o.append(mfma(c, fw(s, jn), fx(s, jm)) if jn < 4 else mfma(c, fx(s, jm), fw(s, jn)))
        return o
    SA = [(240, 244), (248, 252), (120, 124)]
    def mfv(hh):
        def f(s):
            o = mf(s)
            ex = []
            for i, jm in enumerate([2 * hh, 2 * hh + 1] + ([4] if hh == 0 else [])):
                ex.append(mfma(SA[i][0], ONES, fx(s, jm)))
                ex.append(mfma(SA[i][1], fx(s, jm), fx(s, jm)))
            return ex + o
        return f
    def select():
        a.emit(f's_cmp_lg_u32 s{S_LAYER}, 0')
        a.emit(f's_cbranch_scc1 L_{kind}_loop')
        a.emit(f's_cmp_lg_u32 s{S_WN}, 0')
        a.emit(f's_cbranch_scc1 L_{kind}_loopb')
    def post():
        a.emit('v_and_b32 v32, 3, v1')
        a.emit('v_cmp_eq_u32 s[4:5], 1, v32')
        a.emit('v_cmp_eq_u32 s[6:7], 2, v32')
        a.emit('v_cmp_eq_u32 s[8:9], 3, v32')
        a.emit('v_bfe_u32 v33, v1, 2, 2')
        a.emit('v_lshrrev_b32 v34, 4, v1')
        a.emit('v_cmp_eq_u32 s[10:11], v33, v34')
        a.emit(f's_lshl_b32 s3, s{S_WN}, 7')
        a.emit(f'v_add_u32 v35, s3, v{VS1}')
        a.emit('v_and_b32 v36, 15, v1')
        a.emit(f's_cmp_eq_u32 s{S_WV}, 0')
        a.emit('s_cselect_b32 s3, 0, 576')
        a.emit(f's_add_u32 s3, s3, {LST}')
        a.emit('v_lshl_add_u32 v36, v36, 2, s3')
        for (sm, sq) in SA:
            a.emit(f'v_cndmask_b32 v{sm+1}, v{sq}, v{sq+1}, s[4:5]')
        for (sm, sq) in SA:
            a.emit(f'v_cndmask_b32 v{sm+1}, v{sm+1}, v{sq+2}, s[6:7]')
        for (sm, sq) in SA:
            a.emit(f'v_cndmask_b32 v{sm+1}, v{sm+1}, v{sq+3}, s[8:9]')
        for (sm, sq) in SA: stats_finish(a, sm)
        a.emit('s_mov_b64 exec, s[10:11]')
        a.emit(f'ds_write2_b32 v35, v{SA[0][0]}, v{SA[0][0]+1} offset0:16 offset1:176')
        a.emit(f'ds_write2_b32 v35, v{SA[1][0]}, v{SA[1][0]+1} offset0:32 offset1:192')
        a.emit(f'ds_write2_b32 v36, v{SA[2][0]}, v{SA[2][0]+1} offset0:0 offset1:160')
        a.emit('s_mov_b64 exec, -1')
        a.emit('s_waitcnt lgkmcnt(0)')
        a.emit('s_barrier')
    big_loop(a, kind, N, S, STAGE, 6, VB, VA, reads, mf, variants={'a': mfv(0), 'b': mfv(1)}, select=select, post=post)
    PR = 32
    CS = 48
    CV = 64
    MS = 66
    RK = 76
    M4 = 84
    R4 = 104
    VV = [240, 224]
    for b in range(5):
        a.emit(f'ds_read2_b32 v[{MS+2*b}:{MS+2*b+1}], v{VS1} offset0:{16*b} offset1:{160+16*b}')
    for p in range(2):
        a.emit(f'ds_read2_b32 v[{RK+2*p}:{RK+2*p+1}], v{VKA} offset0:{32*p} offset1:{32*p+16}')
        a.emit(f'ds_read2_b32 v[{RK+4+2*p}:{RK+5+2*p}], v{VKB} offset0:{32*p} offset1:{32*p+16}')
    for c in range(3):
        a.emit(f'ds_write_b128 v{VXW}, v[{HACC+4*c}:{HACC+4*c+3}] offset:{2048*c}')
    a.emit(f's_cmp_eq_u32 s{S_WM}, 1')
    a.emit(f's_cbranch_scc1 L_{kind}_nop3')
    for t in range(2, 6):
        a.emit(f'ds_write_b128 v{VXW}, v[{acc(t,3)}:{acc(t,3)+3}] offset:{6144+1024*t}')
    a.label(f'L_{kind}_nop3')
    for b in range(5):
        a.emit(f'ds_read_b128 v[{M4+4*b}:{M4+4*b+3}], v{VS4} offset:{64*b}')
        a.emit(f'ds_read_b128 v[{R4+4*b}:{R4+4*b+3}], v{VS4} offset:{640+64*b}')
    a.emit('s_waitcnt lgkmcnt(10)')
    a.emit('s_barrier')
    for t in range(4):
        a.emit(f'ds_read_b128 v[{CS+4*t}:{CS+4*t+3}], v{VCO if t&1 else VCE} offset:{1024*t}')
    for t in range(2):
        a.emit(f'ds_read_b32 v{CV+t}, v{VVO if t else VVE} offset:{4096+1024*t}')
    for t in range(4):
        a.emit(f'ds_read_b128 v[{PR+4*t}:{PR+4*t+3}], v{VPO if t&1 else VPE} offset:{2048+1024*t}')
    sc = 32 ** -0.5 * 1.4426950408889634
    for b in range(4):
        a.emit(f'v_mul_f32 v{MS+2*b+3}, {f2u(sc):#x}, v{MS+2*b+3}')
    for b in range(4):
        a.emit(f'v_mul_f32 v{RK+b}, v{RK+b}, v{MS+2*b+3}')
        a.emit(f'v_mul_f32 v{RK+4+b}, v{RK+4+b}, v{MS+2*b+3}')
    a.emit('s_waitcnt lgkmcnt(6)')
    def qk(x, y, cs, b, d):
        m = f'v[{MS+2*b}:{MS+2*b+1}]'
        for (z, c) in ((x, cs), (y, cs + 4)):
            for h in range(2):
                a.emit(f'v_pk_fma_f32 v[{z+2*h}:{z+2*h+1}], v[{c+2*h}:{c+2*h+1}], {m}, v[{z+2*h}:{z+2*h+1}] op_sel:[0,0,0] op_sel_hi:[1,0,1] neg_lo:[0,1,0] neg_hi:[0,1,0]')
        a.emit(f'v_cvt_pk_bf16_f32 v{d}, v{x}, v{x+1}')
        a.emit(f'v_cvt_pk_bf16_f32 v{d+1}, v{x+2}, v{x+3}')
        a.emit(f'v_cvt_pk_bf16_f32 v{d+2}, v{y}, v{y+1}')
        a.emit(f'v_cvt_pk_bf16_f32 v{d+3}, v{y+2}, v{y+3}')
    Q = lambda b: acc(0, b); Kf = lambda b: acc(2, b) if b >= 0 else PR
    Sc = lambda b: acc(1, b); Sp = lambda b: acc(3, b)
    for b in range(4):
        qk(acc(0, b), acc(1, b), CS, b + 1, Q(b))
        qk(acc(2, b), acc(3, b), CS + 8, b + 1, Kf(b))
        if b == 3:
            a.emit('s_waitcnt lgkmcnt(0)')
            qk(PR, PR + 4, CS + 8, 0, PR)
        if b >= 1:
            a.emit(mfma(Sc(b - 1), Kf(b - 1), Q(b - 1), '0'))
            if b >= 2: a.emit(mfma(Sp(b - 1), Kf(b - 2), Q(b - 1), '0'))
    a.emit(mfma(Sc(3), Kf(3), Q(3), '0'))
    a.emit(mfma(Sp(3), Kf(2), Q(3), '0'))
    a.emit(mfma(Sp(0), Kf(-1), Q(0), '0'))
    def vconv(x, t, b):
        cv = f'v[{CV}:{CV+1}]'
        for h in range(2):
            a.emit(f'v_pk_fma_f32 v[{x+2*h}:{x+2*h+1}], v[{M4+4*b+2*h}:{M4+4*b+2*h+1}], {cv}, v[{x+2*h}:{x+2*h+1}] op_sel:[0,{t},0] op_sel_hi:[1,{t},1] neg_lo:[1,0,0] neg_hi:[1,0,0]')
        for h in range(2):
            a.emit(f'v_pk_mul_f32 v[{x+2*h}:{x+2*h+1}], v[{x+2*h}:{x+2*h+1}], v[{R4+4*b+2*h}:{R4+4*b+2*h+1}]')
        for h in range(2):
            a.emit(f'v_cvt_pk_bf16_f32 v{VV[t]+2*b+h}, v{x+2*h}, v{x+2*h+1}')
    for t in range(2):
        vconv(PR + 8 + 4 * t, t, 0)
        for b in range(4): vconv(acc(4 + t, b), t, b + 1)
    T = lambda b: 32 + 4 * b
    odd = f's[{M_ODD}:{M_ODD+1}]'
    for b in (1, 2, 3, 0):
        a.emit(f'v_cndmask_b32 v{Sc(b)}, v{Sc(b)}, v{Sc(b)+1}, {odd}')
        a.emit(f'v_cndmask_b32 v{Sp(b)}, v{Sp(b)}, v{Sp(b)+1}, {odd}')
        a.emit(f'v_cndmask_b32 v{Sc(b)+2}, v{Sc(b)+2}, v{Sc(b)+3}, {odd}')
        a.emit(f'v_cndmask_b32 v{Sp(b)+2}, v{Sp(b)+2}, v{Sp(b)+3}, {odd}')
        a.emit(f'v_cndmask_b32 v{T(b)}, v{Sc(b)}, v{Sp(b)}, s[{M_UPA}:{M_UPA+1}]')
        a.emit(f'v_cndmask_b32 v{T(b)+1}, v{Sc(b)+2}, v{Sp(b)+2}, s[{M_UPB}:{M_UPB+1}]')
        a.emit(f'v_mul_f32 v{T(b)}, v{T(b)}, v{RK+b}')
        a.emit(f'v_mul_f32 v{T(b)+1}, v{T(b)+1}, v{RK+4+b}')
    a.emit(f'v_mov_b32 v48, {f2u(-1e9 * 1.4426950408889634):#x}')
    a.emit(f'v_cndmask_b32 v{T(0)}, v{T(0)}, v48, s[{M_FA}:{M_FA+1}]')
    a.emit(f'v_cndmask_b32 v{T(0)+1}, v{T(0)+1}, v48, s[{M_FB}:{M_FB+1}]')
    for b in range(4): a.emit(f'v_max_f32 v{T(b)+2}, v{T(b)}, v{T(b)+1}')
    for op in ('32', '16'):
        for b in range(4): a.emit(f'v_mov_b32 v{T(b)+3}, v{T(b)+2}')
        for b in range(4): a.emit(f'v_permlane{op}_swap_b32 v{T(b)+2}, v{T(b)+3}')
        for b in range(4): a.emit(f'v_max_f32 v{T(b)+2}, v{T(b)+2}, v{T(b)+3}')
    for b in range(4):
        a.emit(f'v_sub_f32 v{T(b)}, v{T(b)}, v{T(b)+2}')
        a.emit(f'v_sub_f32 v{T(b)+1}, v{T(b)+1}, v{T(b)+2}')
    for b in range(4):
        a.emit(f'v_exp_f32 v{T(b)}, v{T(b)}')
        a.emit(f'v_exp_f32 v{T(b)+1}, v{T(b)+1}')
    P = lambda b: acc(0, b)
    for b in range(4):
        a.emit(f'v_cvt_pk_bf16_f32 v{T(b)}, v{T(b)}, v{T(b)}')
        a.emit(f'v_cvt_pk_bf16_f32 v{T(b)+1}, v{T(b)+1}, v{T(b)+1}')
        a.emit(f'v_and_b32 v{P(b)}, v{T(b)}, v{MAP}')
        a.emit(f'v_and_b32 v{P(b)+1}, v{T(b)+1}, v{MBP}')
        a.emit(f'v_and_b32 v{P(b)+2}, v{T(b)}, v{MAC}')
        a.emit(f'v_and_b32 v{P(b)+3}, v{T(b)+1}, v{MBC}')
        if b >= 1:
            q = b - 1
            a.emit(mfma(acc(1, q), ONES, P(q), '0'))
            a.emit(mfma(acc(4, q), VV[0] + 2 * q, P(q), '0'))
            a.emit(mfma(acc(5, q), VV[1] + 2 * q, P(q), '0'))
    q = 3
    a.emit(mfma(acc(1, q), ONES, P(q), '0'))
    a.emit(mfma(acc(4, q), VV[0] + 2 * q, P(q), '0'))
    a.emit(mfma(acc(5, q), VV[1] + 2 * q, P(q), '0'))
    for b in range(4):
        r = acc(1, b); d = 48 + 4 * b
        a.emit(f'v_rcp_f32 v{r}, v{r}')
        a.emit(f's_mov_b32 s3, {b * 16 * 2048}')
        for t in range(2):
            x = acc(4 + t, b)
            for h in range(2):
                a.emit(f'v_pk_mul_f32 v[{x+2*h}:{x+2*h+1}], v[{x+2*h}:{x+2*h+1}], v[{r}:{r+1}] op_sel_hi:[1,0]')
        for t in range(2):
            x = acc(4 + t, b)
            for h in range(2):
                a.emit(f'v_cvt_pk_bf16_f32 v{d+2*t+h}, v{x+2*h}, v{x+2*h+1}')
        a.emit('s_nop 1')
        a.emit(f'v_permlane16_swap_b32 v{d}, v{d+2}')
        a.emit(f'v_permlane16_swap_b32 v{d+1}, v{d+3}')
        a.emit(f'buffer_store_dwordx4 v[{d}:{d+3}], v{VO}, s[{SO}:{SO+3}], s3 offen{stf(kind)}')
    stamps_out(a, kind)
    a.emit('s_endpgm')
    a.label(f'L_{kind}_loader')
    L = Loader(a, kind, K, lda2, ldw2, [0, 2048, 4096], 128, S, STAGE, halo=XH, rot=int(ENV('ROT_QKV', '0')))
    L.setup()
    a.emit('s_waitcnt lgkmcnt(0)')
    srd(a, SX, 'xs', 0, 4 * MB); srd(a, SW, 'wqkv', 0, 1024 * 6144)
    a.emit(f's_cmp_eq_u32 s{S_LAYER}, 0')
    a.emit(f's_cbranch_scc1 L_{kind}_ld0')
    srd(a, ST, 'ws', WS_ST, 16 * 16384)
    n1 = side(Asm(), 1, 'issue')
    def tail1():
        stats_loads(a, 32, True)
        side(a, 1, 'issue')
    def final1():
        a.emit(f's_waitcnt vmcnt({n1})')
        stats_reduce_store(a, 32, LST)
        a.emit('s_waitcnt lgkmcnt(0)')
    L.run('1', tail_issue=tail1, ntail_vm=16 + n1, final=final1)
    a.emit('s_barrier')
    side(a, 1, 'finish')
    a.emit('s_endpgm')
    a.label(f'L_{kind}_ld0')
    L.run('0', tail_issue=lambda: side(a, 0, 'issue'), ntail_vm=side(Asm(), 0, 'issue'))
    a.emit('s_barrier')
    a.emit('s_barrier')
    side(a, 0, 'finish')
    a.label(end)
    a.emit('s_endpgm')
    a(KD.format(name=f'{kind}l0_kernel'))
    stub(a, f'{kind}l1_kernel', body, 1, tsidx + 4, False)
    a.label(f'L_{kind}_c1')
    a(KD.format(name=f'{kind}l1_kernel'))
    return LST + 1280
```

```python
from common import *
LM_WO = int(ENV('LM_WO', '2')); LM_W1 = int(ENV('LM_W1', '3')); LM_W2 = int(ENV('LM_W2', '2')); LM_QKV = int(ENV('LM_QKV', '3'))
PV = 96

def fin(a):
    a.emit('s_waitcnt vmcnt(0)')

def pf_wo(a):
    L = 1 << (5 - LM_WO)
    sh = 5 - LM_WO
    return pf_weights(a, SP, 'wo', 2 * MB, 2048, 32, sh, L, LM_WO, 128, max(1, (8 << sh) // 64), PV)

def touch(a, which, size, vd, l0only=True):
    if 'nopf' in DBG: return 0
    per = size // 128 // 1024
    assert per <= 64
    srd(a, SP, which, 0, size)
    a.emit(f's_and_b32 s3, s{S_WV}, 3')
    a.emit('s_lshl_b32 s4, s2, 2')
    a.emit('s_add_u32 s3, s3, s4')
    a.emit(f's_mul_i32 s3, s3, {per * 128}')
    a.emit(f'v_min_u32 v2, {per - 1}, v1')
    a.emit('v_lshlrev_b32 v2, 7, v2')
    if l0only:
        a.emit(f's_sub_u32 s4, s{S_LAYER}, 1')
        a.emit('v_and_b32 v2, s4, v2')
    a.emit(f'buffer_load_dword v{vd}, v2, s[{SP}:{SP+3}], s3 offen')
    return 1

def qkv(a, layer, phase):
    if phase == 'issue':
        n = 0
        if layer == 0:
            srd(a, SC, 'w1', 0, 1024 * 7168)
            a.emit('s_min_u32 s3, s2, 223')
            a.emit('s_mul_i32 s4, s3, 4682')
            a.emit('s_lshr_b32 s4, s4, 16')
            a.emit('s_mul_i32 s5, s4, 14')
            a.emit('s_sub_u32 s3, s3, s5')
            a.emit('s_lshl_b32 s3, s3, 2')
            a.emit(f's_and_b32 s5, s{S_WV}, 3')
            a.emit('s_add_u32 s3, s3, s5')
            a.emit(f's_mul_i32 s5, s4, {64 * 7168}')
            a.emit('s_lshl_b32 s8, s3, 7')
            a.emit('s_add_u32 s5, s5, s8')
            a.emit('s_lshl_b32 s9, s4, 14')
            a.emit('s_lshl_b32 s8, s3, 8')
            a.emit('s_add_u32 s9, s9, s8')
            a.emit('v_lshrrev_b32 v2, 3, v1')
            a.emit('v_mul_u32_u24 v2, 7168, v2')
            a.emit('v_and_b32 v3, 7, v1')
            a.emit('v_lshl_add_u32 v2, v3, 4, v2')
            for j in range(8):
                a.emit(f'buffer_load_dwordx4 v[{64+4*j}:{67+4*j}], v2, s[{SC}:{SC+3}], s5 offen')
                if j < 7: a.emit(f's_add_u32 s5, s5, {8 * 7168}')
            n += 8
            if ENV('TW2') == 'qkv': n += touch(a, 'w2', 3584 * 2048, PV + 2, False)
        n += pf_wo(a)
        return n
    if layer == 0:
        a.emit('s_waitcnt vmcnt(0)')
        a.emit('s_mov_b32 s7, 0xffff0000')
        for i in range(4):
            a.emit(f'v_lshlrev_b32 v{32+2*i}, 16, v{64+i}')
            a.emit(f'v_and_b32 v{33+2*i}, s7, v{64+i}')
        for j in range(1, 8):
            for i in range(4):
                a.emit(f'v_lshlrev_b32 v40, 16, v{64+4*j+i}')
                a.emit(f'v_and_b32 v41, s7, v{64+4*j+i}')
                a.emit(f'v_pk_add_f32 v[{32+2*i}:{33+2*i}], v[{32+2*i}:{33+2*i}], v[40:41]')
        srd(a, SC, 'ws', WS_CS, 16 * 16384)
        for i in range(4): a.emit(f'v_permlane32_swap_b32 v{32+i}, v{36+i}')
        for i in range(4): a.emit(f'v_add_f32 v{32+i}, v{32+i}, v{36+i}')
        a.emit('v_and_b32 v2, 7, v1')
        a.emit('v_lshlrev_b32 v2, 5, v2')
        for i in range(2): a.emit(f'v_permlane16_swap_b32 v{32+i}, v{34+i}')
        for i in range(2): a.emit(f'v_add_f32 v{32+i}, v{32+i}, v{34+i}')
        a.emit('v_lshrrev_b32 v3, 4, v1')
        a.emit('v_lshl_add_u32 v2, v3, 3, v2')
        for i in range(2): a.emit(f'v_add_f32_dpp v{32+i}, v{32+i}, v{32+i} row_ror:8 row_mask:0xf bank_mask:0xf')
        a.emit(f'buffer_store_dwordx2 v[32:33], v2, s[{SC}:{SC+3}], s9 offen')
    else:
        fin(a)

def wo(a, phase):
    if phase == 'issue':
        return touch(a, 'w2', 3584 * 2048, PV) if ENV('TW2') == 'wo' else 0
    fin(a)

def w1(a, phase):
    if phase == 'issue':
        return touch(a, 'w2', 3584 * 2048, PV) if ENV('TW2', 'w1') == 'w1' else 0
    fin(a)

def w2(a, phase):
    return 0
```

```python
import sys, os, struct
sys.path.insert(0, os.path.join(os.path.dirname(os.path.abspath(__file__)), '..'))
from asmlib import Asm, check_offsets
MB = 1 << 20
WSB = int(os.environ.get('WSB', '0')) * MB
WS_O   = WSB
WS_X1  = WSB + 4 * MB
WS_H   = WSB + 8 * MB
WS_ST  = WSB + 23 * MB
WS_CS  = WSB + 23 * MB + 512 * 1024
WS_TS  = 60 * MB
f2u = lambda f: struct.unpack('<I', struct.pack('<f', f))[0]
ENV = os.environ.get
TS = ENV('TS', '')
DBG = ENV('DBG', '').split(',')
def stf(kind): return (' ' + ENV('WTF', 'sc1')) if kind in ENV('WT', 'attn,wo,w2').split(',') else ''

KA = {'A_x': 0, 'wqkv': 8, 'wo': 16, 'w1': 32, 'b1': 40, 'w2': 48, 'b2': 56, 'out': 64, 'ws': 80}
P_IN = 16
P_OUT = 32; P_WS = 34
P_XS = 12
PTR = {'A_x': 16, 'wqkv': 18, 'wo': 20, 'w1': 24, 'b1': 26, 'w2': 28, 'b2': 30, 'out': 32, 'ws': 34, 'xs': 12}
SX, SW, SO, SR, SB, ST, SP, SC = 36, 40, 44, 48, 52, 56, 60, 64
S_MT, S_NT, S_WV, S_WM, S_WN = 68, 69, 70, 71, 72
S_KX, S_KW, S_SLOT, S_XD, S_WD, S_HD, S_CNT = 73, 74, 75, 76, 77, 78, 79
S_LAYER = 96; S_TSI = 97; S_T = 98; S_CU = 99; S_XG = 100; S_KT = 101

KD = '''.section .rodata,"a"
.p2align 6
.amdhsa_kernel {name}
  .amdhsa_next_free_vgpr 256
  .amdhsa_next_free_sgpr 102
  .amdhsa_accum_offset 256
  .amdhsa_group_segment_fixed_size 0
  .amdhsa_kernarg_size 88
  .amdhsa_user_sgpr_count 2
  .amdhsa_user_sgpr_kernarg_segment_ptr 1
  .amdhsa_system_sgpr_workgroup_id_x 1
  .amdhsa_float_denorm_mode_32 3
  .amdhsa_float_denorm_mode_16_64 3
.end_amdhsa_kernel
.text
'''

def srd(a, sd, which, off, size):
    p = PTR[which]
    if off:
        a.emit(f's_add_u32 s{sd}, s{p}, {off}')
        a.emit(f's_addc_u32 s{sd+1}, s{p+1}, 0')
        a.emit(f's_and_b32 s{sd+1}, s{sd+1}, 0xffff')
    else:
        a.emit(f's_mov_b32 s{sd}, s{p}')
        a.emit(f's_and_b32 s{sd+1}, s{p+1}, 0xffff')
    a.emit(f's_mov_b32 s{sd+2}, {size}')
    a.emit(f's_mov_b32 s{sd+3}, 0x00020000')

def stub(a, name, body, layer, tsidx, first):
    a(f'.text\n.globl {name}\n.p2align 8\n.type {name},@function\n{name}:')
    if TS:
        stamp(a, 0, nowait=True)
    a.emit('s_load_dwordx16 s[16:31], s[0:1], 0')
    a.emit('s_load_dwordx2 s[32:33], s[0:1], 64')
    a.emit('s_load_dwordx2 s[34:35], s[0:1], 80')
    a.emit(f's_load_dwordx2 s[12:13], s[0:1], {0 if layer == 0 else 64}')
    a.emit(f's_mov_b32 s{S_LAYER}, {layer}')
    if TS: a.emit(f's_mov_b32 s{S_TSI}, {tsidx}')
    if not first:
        a.emit(f's_branch {body}')

def stamp(a, n, nowait=False):
    if not TS: return
    a.emit(f's_memrealtime s[{80+4*n}:{81+4*n}]')
    a.emit(f's_memtime s[{82+4*n}:{83+4*n}]')
    if not nowait: a.emit('s_waitcnt lgkmcnt(0)')

def stamps_out(a, tag):
    if not TS: return
    a.emit('s_waitcnt vmcnt(0)')
    stamp(a, 3)
    srd(a, SP, 'ws', WS_TS, 1 << 20)
    a.emit('s_lshl_b32 s4, s2, 6')
    a.emit(f's_lshl_b32 s5, s{S_TSI}, 16')
    a.emit('s_add_u32 s4, s4, s5')
    a.emit('v_mov_b32 v1, s4')
    for i in range(16): a.emit(f'v_mov_b32 v{4+i}, s{80+i}')
    a.emit('v_cmp_eq_u32 vcc, 0, v0')
    a.emit('s_and_saveexec_b64 s[6:7], vcc')
    a.emit(f's_cbranch_execz L_tsskip_{tag}')
    for j in range(4):
        a.emit(f'buffer_store_dwordx4 v[{4+4*j}:{7+4*j}], v1, s[{SP}:{SP+3}], 0 offen offset:{16*j}')
    a.emit('s_waitcnt vmcnt(0)')
    a.label(f'L_tsskip_{tag}')

def tile_map(a, LM, endlab):
    a.emit('s_cmp_ge_u32 s2, 256')
    a.emit(f's_cbranch_scc1 {endlab}')
    a.emit('v_lshrrev_b32 v2, 6, v0')
    a.emit('v_and_b32 v1, 63, v0')
    a.emit(f'v_readfirstlane_b32 s{S_WV}, v2')
    a.emit('s_and_b32 s3, s2, 7')
    a.emit(f's_lshr_b32 s{S_CU}, s2, 3')
    a.emit(f's_and_b32 s5, s3, {(1 << (4 - LM)) - 1}')
    a.emit(f's_lshl_b32 s5, s5, {LM}')
    a.emit(f's_and_b32 s6, s{S_CU}, {(1 << LM) - 1}')
    a.emit(f's_add_u32 s{S_MT}, s5, s6')
    a.emit(f's_lshr_b32 s5, s3, {4 - LM}')
    a.emit(f's_lshl_b32 s5, s5, {5 - LM}')
    a.emit(f's_lshr_b32 s6, s{S_CU}, {LM}')
    a.emit(f's_add_u32 s{S_NT}, s5, s6')
    if 'smallm' in DBG: a.emit(f's_and_b32 s{S_MT}, s{S_MT}, 1')
    if 'smalln' in DBG: a.emit(f's_and_b32 s{S_NT}, s{S_NT}, 1')

def interleave(a, main, side, lead=1, per=1):
    si = 0
    for i, m in enumerate(main):
        a.emit(m)
        if i + 1 >= lead:
            for _ in range(per):
                if si < len(side): a.emit(side[si]); si += 1
    while si < len(side): a.emit(side[si]); si += 1

class Loader:
    VXD = 4; VWD = 8; VXH = 28
    def __init__(self, a, tag, K, lda2, ldw2, panels, colbase, S, STAGE, halo=None, delta=0, rot=None):
        self.a = a; self.tag = tag; self.K = K; self.lda2 = lda2; self.ldw2 = ldw2; self.panels = panels
        self.colbase = colbase; self.S = S; self.STAGE = STAGE; self.halo = halo; self.delta = delta; self.rot = rot if rot is not None and rot >= 0 else None
        self.NSTEP = K // 64
        self.per = 4 + 2 * len(panels) + (1 if halo is not None else 0)
    def setup(self):
        a = self.a
        if ENV('PRIO', '0') != '0': a.emit(f"s_setprio {ENV('PRIO')}")
        a.emit(f's_add_u32 s8, s{S_WV}, s{S_NT}')
        a.emit('s_and_b32 s8, s8, 3')
        a.emit(f's_add_u32 s9, s{S_WV}, s{S_MT}')
        a.emit('s_and_b32 s9, s9, 3')
        a.emit(f's_lshl_b32 s{S_XD}, s8, 12')
        a.emit(f's_lshl_b32 s{S_WD}, s9, 11')
        a.emit(f's_add_u32 s{S_WD}, s{S_WD}, 16384')
        a.emit('v_lshrrev_b32 v3, 3, v1')
        a.emit('s_lshl_b32 s10, s8, 5')
        a.emit(f's_lshl_b32 s11, s{S_MT}, 7')
        a.emit('s_add_u32 s10, s10, s11')
        a.emit('v_add_u32 v3, s10, v3')
        a.emit(f'v_mul_u32_u24 v3, {self.lda2}, v3')
        a.emit('v_lshrrev_b32 v2, 4, v1')
        a.emit('v_and_b32 v10, 7, v1')
        for j in range(4):
            d = self.VXD + j
            if j & 1:
                a.emit(f'v_add_u32 v{d}, 4, v2')
                a.emit(f'v_xor_b32 v{d}, v{d}, v10')
            else:
                a.emit(f'v_xor_b32 v{d}, v2, v10')
            a.emit(f'v_lshl_add_u32 v{d}, v{d}, 4, v3')
            if j < 3: a.emit(f'v_add_u32 v3, {8*self.lda2}, v3')
        a.emit('v_lshrrev_b32 v3, 3, v1')
        a.emit('s_lshl_b32 s10, s9, 4')
        a.emit('v_add_u32 v3, s10, v3')
        a.emit(f'v_mul_u32_u24 v3, {self.ldw2}, v3')
        a.emit('v_lshrrev_b32 v2, 3, v1')
        a.emit('v_and_b32 v2, 2, v2')
        a.emit('v_xor_b32 v2, v2, v10')
        a.emit(f's_mul_i32 s10, s{S_NT}, {self.colbase}')
        if self.colbase & 127: a.emit('s_andn2_b32 s10, s10, 127')
        a.emit('v_add_u32 v3, s10, v3')
        a.emit(f'v_lshl_add_u32 v{self.VWD}, v2, 4, v3')
        a.emit('v_xor_b32 v2, 4, v2')
        a.emit(f'v_add_u32 v3, {8*self.ldw2}, v3')
        a.emit(f'v_lshl_add_u32 v{self.VWD+1}, v2, 4, v3')
        if self.halo is not None:
            a.emit(f's_and_b32 s10, s{S_WV}, 3')
            a.emit(f's_lshl_b32 s{S_HD}, s10, 9')
            a.emit(f's_add_u32 s{S_HD}, s{S_HD}, {self.halo}')
            a.emit('s_lshl_b32 s14, s10, 2')
            a.emit('s_add_u32 s14, s14, s11')
            a.emit('s_sub_u32 s14, s14, 16')
            a.emit('v_lshrrev_b32 v3, 3, v1')
            a.emit('v_add_u32 v3, s14, v3')
            a.emit('v_max_i32 v3, 0, v3')
            a.emit(f'v_mul_u32_u24 v3, {self.lda2}, v3')
            a.emit('s_lshl_b32 s14, s10, 1')
            a.emit('v_lshrrev_b32 v2, 4, v1')
            a.emit('v_add_u32 v2, s14, v2')
            a.emit('v_and_b32 v2, 7, v2')
            a.emit('v_xor_b32 v2, v2, v10')
            a.emit(f'v_lshl_add_u32 v{self.VXH}, v2, 4, v3')
            a.emit('s_cmp_eq_u32 s10, 0')
            a.emit('s_cselect_b32 s14, 0xffffff00, -1')
            a.emit('s_mov_b32 s15, 0')
        a.emit(f's_mov_b32 s{S_SLOT}, 0')
        if self.rot is None:
            a.emit(f's_mov_b32 s{S_KX}, 0')
            a.emit(f's_mov_b32 s{S_KW}, 0')
        else:
            a.emit(f's_add_u32 s{S_XG}, s{S_MT}, s{S_NT}')
            a.emit(f's_mov_b32 s{S_KT}, -1')
            for x in self.knext(): a.emit(x)
    def knext(self):
        if self.rot is None:
            return [f's_add_u32 s{S_KX}, s{S_KX}, 128', f's_add_u32 s{S_KW}, s{S_KW}, {64*self.ldw2}']
        lc = self.rot; C = 1 << lc; N = self.NSTEP
        o = [f's_add_u32 s{S_KT}, s{S_KT}, 1']
        D = int(ENV('ROTD_' + self.tag.upper(), ENV('ROTD', '2')))
        dl = {3: [3, -1, -1, -1], 2: [2, -1, -1, 0], 1: [1, -1, 0, 0]}[D]
        tbl = sum((((d * C) % N) << (8 * i)) for i, d in enumerate(dl))
        if lc: o += [f's_lshr_b32 s{S_KX}, s{S_KT}, {lc}', f's_sub_u32 s{S_KX}, s{S_KX}, s{S_XG}']
        else: o += [f's_sub_u32 s{S_KX}, s{S_KT}, s{S_XG}']
        o += [f's_lshl_b32 s{S_KX}, s{S_KX}, 3',
              f's_lshr_b32 s{S_KX}, {tbl:#x}, s{S_KX}',
              f's_and_b32 s{S_KX}, s{S_KX}, 255',
              f's_add_u32 s{S_KX}, s{S_KX}, s{S_KT}']
        if N & (N - 1) == 0: o += [f's_and_b32 s{S_KX}, s{S_KX}, {N - 1}']
        else: o += [f's_sub_u32 s{S_KW}, s{S_KX}, {N}', f's_cselect_b32 s{S_KX}, s{S_KX}, s{S_KW}']
        o += [f's_mul_i32 s{S_KW}, s{S_KX}, {64*self.ldw2}', f's_lshl_b32 s{S_KX}, s{S_KX}, 7']
        return o
    def issue(self):
        o = []
        if 'nodma' in DBG: return o
        o.append(f's_add_u32 s3, s{S_SLOT}, s{S_XD}')
        for j in range(4):
            o.append(f's_add_u32 m0, s3, {j*1024}')
            o.append('s_nop 0')
            o.append(f'buffer_load_dwordx4 v{self.VXD+j}, s[{SX}:{SX+3}], s{S_KX} offen lds')
        if self.halo is not None:
            o.append(f's_add_u32 m0, s{S_SLOT}, s{S_HD}')
            o.append('s_mov_b64 exec, s[14:15]')
            o.append(f'buffer_load_dwordx4 v{self.VXH}, s[{SX}:{SX+3}], s{S_KX} offen lds')
            o.append('s_mov_b64 exec, -1')
        o.append(f's_add_u32 s3, s{S_SLOT}, s{S_WD}')
        for pn, goff in enumerate(self.panels):
            for i in range(2):
                o.append(f's_add_u32 m0, s3, {pn*8192+i*1024}')
                o.append(f's_add_u32 s4, s{S_KW}, {goff}' if i == 0 else 's_nop 0')
                o.append(f'buffer_load_dwordx4 v{self.VWD+i}, s[{SW}:{SW+3}], s4 offen lds')
        o += self.knext()
        o.append(f's_add_u32 s{S_SLOT}, s{S_SLOT}, {self.STAGE}')
        o.append(f's_cmp_eq_u32 s{S_SLOT}, {self.S*self.STAGE}')
        o.append(f's_cselect_b32 s{S_SLOT}, 0, s{S_SLOT}')
        return o
    def run(self, variant='', d=None, per_stage=None, tail_issue=None, ntail_vm=0, final=None):
        a = self.a; per = self.per; N = self.NSTEP
        if d is None: d = self.S - 1
        tag = self.tag + variant
        def iss(ps=False):
            ins = self.issue()
            if not (ps and per_stage):
                for x in ins: a.emit(x)
                return
            pre, work = per_stage()
            for x in pre: a.emit(x)
            nd = max(1, sum(1 for x in ins if 'buffer_load' in x)); k = 0; wi = 0
            for x in ins:
                a.emit(x)
                if 'buffer_load' in x: k += 1
                if 'buffer_load' in x and f'v{self.VXH},' not in x:
                    tgt = len(work) * k // nd
                    while wi < tgt: a.emit(work[wi]); wi += 1
            while wi < len(work): a.emit(work[wi]); wi += 1
        def only_ps():
            if per_stage:
                pre, work = per_stage()
                for x in pre + work: a.emit(x)
        def wait(n):
            assert n <= 63, n
            a.emit(f's_waitcnt vmcnt({n})')
        pre = min(2, d)
        for _ in range(pre): iss()
        wait((pre - 1) * per)
        a.emit('s_barrier')
        for _ in range(pre, d): iss()
        nmain = N - d
        a.emit(f's_mov_b32 s{S_CNT}, {nmain - 1}')
        a.label(f'L_{tag}_ld')
        iss(True)
        wait((d - 1) * per)
        a.emit('s_barrier')
        a.emit(f's_sub_u32 s{S_CNT}, s{S_CNT}, 1')
        a.emit(f's_cmp_lg_u32 s{S_CNT}, 0')
        a.emit(f's_cbranch_scc1 L_{tag}_ld')
        iss(True)
        if tail_issue: tail_issue()
        for i in range(N - 1 - d, N):
            if i > N - 1 - d: only_ps()
            if i + 1 < N:
                wait((N - 1 - (i + 1)) * per + ntail_vm)
            else:
                if final: final()
            a.emit('s_barrier')

def pf_weights(a, sd, which, size, ldw2, R, sh, L, LMn, tilebytes, NI, vd, row0=0, qkv=False):
    if 'nopf' in DBG: return 0
    srd(a, sd, which, 0, size)
    a.emit(f's_and_b32 s3, s{S_WV}, 3')
    a.emit(f's_mul_i32 s3, s3, {NI * (64 >> sh)}')
    a.emit(f's_mul_i32 s4, s{S_CU}, {R}')
    a.emit('s_add_u32 s3, s3, s4')
    if row0: a.emit(f's_add_u32 s3, s3, {row0}')
    a.emit(f'v_lshrrev_b32 v2, {sh}, v1')
    a.emit('v_add_u32 v2, s3, v2')
    a.emit(f'v_mul_u32_u24 v2, {ldw2}, v2')
    a.emit(f'v_and_b32 v3, {(1 << sh) - 1}, v1')
    if L < (1 << sh): a.emit(f'v_min_u32 v3, {L-1}, v3')
    if qkv:
        a.emit('v_lshrrev_b32 v12, 2, v3')
        a.emit('v_lshl_add_u32 v2, v12, 11, v2')
        a.emit('v_and_b32 v3, 3, v3')
    a.emit('v_lshl_add_u32 v2, v3, 7, v2')
    a.emit('s_and_b32 s3, s2, 7')
    a.emit(f's_lshr_b32 s3, s3, {4 - LMn}')
    a.emit(f's_mul_i32 s3, s3, {(1 << (5 - LMn)) * tilebytes}')
    for i in range(NI):
        a.emit(f'buffer_load_dword v{vd+i}, v2, s[{sd}:{sd+3}], s3 offen')
        if i + 1 < NI: a.emit(f's_add_u32 s3, s3, {(64 >> sh) * ldw2}')
    return NI

_pfc = [0]
def pf_code(a, start, end, vd, forward=True):
    if 'nopfc' in DBG: return 0
    _pfc[0] += 1
    lab = f'L_pfc{_pfc[0]}'
    a.emit('s_getpc_b64 s[4:5]')
    a.label(lab)
    if forward:
        a.emit(f's_add_u32 s4, s4, {start}-{lab}')
        a.emit('s_addc_u32 s5, s5, 0')
    else:
        a.emit(f's_sub_u32 s4, s4, {lab}-{start}')
        a.emit('s_subb_u32 s5, s5, 0')
    a.emit(f's_and_b32 s3, s{S_WV}, 3')
    a.emit('s_lshl_b32 s3, s3, 13')
    a.emit('v_lshl_add_u32 v2, v1, 7, s3')
    a.emit(f'v_min_u32 v2, {end}-{start}-4, v2')
    a.emit(f'global_load_dword v{vd}, v2, s[4:5]')
    return 1

def wbase(a, vd, vt, g='v2'):
    a.emit(f'v_bfe_u32 v{vd}, v1, 2, 2')
    a.emit(f'v_lshl_add_u32 v{vd}, {g}, 3, v{vd}')
    a.emit(f'v_lshlrev_b32 v{vd}, 7, v{vd}')
    a.emit(f'v_and_b32 v{vt}, 3, v1')
    a.emit(f'v_lshl_add_u32 v{vd}, v{vt}, 3, v{vd}')
    a.emit(f'v_bfe_u32 v{vt}, v1, 3, 2')
    a.emit(f'v_lshl_add_u32 v{vd}, v{vt}, 5, v{vd}')
```

```python
from common import *
from gemmw1 import big_loop, stats_loads, stats_finish, stats_reduce_store

def gen_qkv(a, tsidx, side):
    kind = 'attn'
    K = 1024; lda2 = 2048; ldw2 = 6144
    S = 3; LM = int(ENV('LM_QKV', '3'))
    XH = 16384 + 6 * 4096
    STAGE = XH + 2048
    LST = S * STAGE
    EX = 1024
    N = 16
    body = f'L_{kind}_body'; end = f'L_{kind}_end'
    VB, VA = 4, 10
    VXW, VPE, VPO, VCE, VCO, VVE, VVO, VS1, VS4, VKA, VKB, MAP, MAC, MBP, MBC, VO = range(16, 32)
    M_ODD, M_UPA, M_UPB, M_FA, M_FB = 48, 50, 52, 54, 14
    F = [32, 76]; ACC = 128; HACC = 224; ONES = 236
    acc = lambda jn, jm: ACC + (jn * 4 + jm) * 4
    fx = lambda s, jm: F[s] + jm * 4
    fw = lambda s, jn: F[s] + 20 + jn * 4
    a.label(f'L_{kind}_c0')
    stub(a, f'{kind}l0_kernel', body, 0, tsidx, True)
    a.label(body)
    tile_map(a, LM, end)
    a.emit(f's_cmp_ge_u32 s{S_WV}, 4')
    a.emit(f's_cbranch_scc1 L_{kind}_loader')
    a.emit(f's_and_b32 s{S_WM}, s{S_WV}, 1')
    a.emit(f's_lshr_b32 s{S_WN}, s{S_WV}, 1')
    a.emit('v_and_b32 v3, 31, v1')
    a.emit('v_lshlrev_b32 v3, 2, v3')
    a.emit(f'v_add_u32 v3, {XH}, v3')
    for i in range(4): a.emit(f'v_mov_b32 v{ONES+i}, 0x3f803f80')
    a.emit(f'ds_write_b32 v3, v{ONES}')
    a.emit(f'ds_write_b32 v3, v{ONES} offset:{STAGE}')
    a.emit(f'v_add_u32 v3, {2*STAGE}, v3')
    a.emit(f'ds_write_b32 v3, v{ONES}')
    a.emit('v_and_b32 v3, 15, v1')
    a.emit('v_lshrrev_b32 v2, 4, v1')
    a.emit('v_lshrrev_b32 v33, 1, v3')
    a.emit(f's_lshl_b32 s8, s{S_WM}, 13')
    for ks in range(2):
        if ks: a.emit(f'v_add_u32 v{VB+ks}, 4, v2')
        a.emit(f'v_xor_b32 v{VB+ks}, v{VB+ks if ks else 2}, v33')
        a.emit(f'v_lshlrev_b32 v{VB+ks}, 4, v{VB+ks}')
        a.emit(f'v_lshl_add_u32 v{VB+ks}, v3, 7, v{VB+ks}')
        a.emit(f'v_add_u32 v{VB+4+ks}, {XH}, v{VB+ks}')
        a.emit(f'v_add_u32 v{VB+ks}, s8, v{VB+ks}')
    wbase(a, 34, 33)
    a.emit('v_and_b32 v35, 1, v2')
    a.emit(f'v_xor_b32 v35, s{S_WM}, v35')
    a.emit(f's_lshl_b32 s8, s{S_WV}, 5')
    a.emit('v_xor_b32 v34, s8, v34')
    a.emit(f'v_add_u32 v{VB+2}, 16384, v34')
    a.emit(f'v_xor_b32 v{VB+3}, 32, v{VB+2}')
    a.emit(f's_lshl_b32 s8, s{S_MT}, 7')
    a.emit(f's_lshl_b32 s9, s{S_WM}, 6')
    a.emit('s_add_u32 s8, s8, s9')
    a.emit('v_add_u32 v33, s8, v3')
    a.emit(f's_lshl_b32 s10, s{S_NT}, 7')
    a.emit(f's_lshl_b32 s11, s{S_WN}, 6')
    a.emit('s_add_u32 s10, s10, s11')
    a.emit('v_lshl_add_u32 v33, v33, 11, s10')
    a.emit('v_lshl_add_u32 v33, v35, 5, v33')
    a.emit('v_lshrrev_b32 v34, 1, v2')
    a.emit(f'v_lshl_add_u32 v{VO}, v34, 4, v33')
    a.emit(f's_mul_i32 s10, s{S_WN}, 12288')
    a.emit(f's_add_u32 s10, s10, {EX}')
    a.emit(f's_lshl_b32 s11, s{S_WM}, 10')
    a.emit('s_add_u32 s4, s10, s11')
    a.emit('s_sub_u32 s5, s10, s11')
    a.emit(f's_mul_i32 s6, s{S_WM}, 6144')
    a.emit(f'v_lshl_add_u32 v{VXW}, v1, 4, s4')
    a.emit(f'v_add_u32 v{VPE}, s6, v{VXW}')
    a.emit(f'v_lshl_add_u32 v{VPO}, v1, 4, s5')
    a.emit(f'v_add_u32 v{VPO}, s6, v{VPO}')
    a.emit(f'v_lshl_add_u32 v{VCE}, v2, 8, s4')
    a.emit(f'v_lshl_add_u32 v{VCO}, v2, 8, s5')
    a.emit(f'v_lshl_add_u32 v{VVE}, v3, 4, s4')
    a.emit(f'v_lshl_add_u32 v{VVO}, v3, 4, s5')
    a.emit(f's_lshl_b32 s10, s{S_WM}, 8')
    a.emit(f's_add_u32 s10, s10, {LST}')
    a.emit(f'v_lshl_add_u32 v{VS1}, v3, 2, s10')
    a.emit(f'v_lshl_add_u32 v{VS4}, v2, 4, s10')
    a.emit('v_and_b32 v33, 1, v3')
    a.emit(f'v_cmp_eq_u32 s[{M_ODD}:{M_ODD+1}], 1, v33')
    a.emit('v_lshl_add_u32 v34, v2, 2, v33')
    a.emit('v_add_u32 v35, 2, v34')
    a.emit(f'v_cmp_gt_u32 s[{M_UPA}:{M_UPA+1}], v34, v3')
    a.emit(f'v_cmp_gt_u32 s[{M_UPB}:{M_UPB+1}], v35, v3')
    a.emit('v_mov_b32 v36, 0xffff')
    a.emit('v_mov_b32 v37, 0xffff0000')
    a.emit(f'v_cndmask_b32 v36, v36, v37, s[{M_ODD}:{M_ODD+1}]')
    a.emit(f's_add_u32 s10, s10, {640 + 64}')
    a.emit('v_lshl_add_u32 v34, v34, 2, s10')
    a.emit('v_lshl_add_u32 v35, v35, 2, s10')
    a.emit('v_subrev_u32 v38, 64, v34')
    a.emit('v_subrev_u32 v39, 64, v35')
    a.emit(f'v_cndmask_b32 v{VKA}, v34, v38, s[{M_UPA}:{M_UPA+1}]')
    a.emit(f'v_cndmask_b32 v{VKB}, v35, v39, s[{M_UPB}:{M_UPB+1}]')
    a.emit(f'v_cndmask_b32 v{MAP}, 0, v36, s[{M_UPA}:{M_UPA+1}]')
    a.emit(f'v_cndmask_b32 v{MBP}, 0, v36, s[{M_UPB}:{M_UPB+1}]')
    a.emit(f'v_xor_b32 v{MAC}, v{MAP}, v36')
    a.emit(f'v_xor_b32 v{MBC}, v{MBP}, v36')
    a.emit('s_cmp_eq_u32 s8, 0')
    a.emit(f's_cselect_b64 s[{M_FA}:{M_FA+1}], s[{M_UPA}:{M_UPA+1}], 0')
    a.emit(f's_cselect_b64 s[{M_FB}:{M_FB+1}], s[{M_UPB}:{M_UPB+1}], 0')
    for i in list(range(120, 236)) + list(range(240, 256)): a.emit(f'v_mov_b32 v{i}, 0')
    a.emit('s_waitcnt lgkmcnt(0)')
    srd(a, SO, 'ws', WS_O, 4 * MB)
    def warm():
        a.emit(f's_cmp_lg_u32 s{S_LAYER}, 0')
        a.emit(f's_cbranch_scc1 L_{kind}_nowarm')
        a.emit('s_lshl_b32 s3, s2, 2')
        a.emit(f's_add_u32 s3, s3, s{S_WV}')
        srd(a, SX, 'xs', 0, 4 * MB); srd(a, SW, 'wqkv', 0, 6 * MB)
        a.emit('v_min_u32 v126, 31, v1')
        a.emit('v_min_u32 v127, 47, v1')
        a.emit('v_lshlrev_b32 v126, 7, v126')
        a.emit('v_lshlrev_b32 v127, 7, v127')
        a.emit('s_lshl_b32 s4, s3, 12')
        a.emit(f's_mul_i32 s5, s3, {48 * 128}')
        a.emit(f'buffer_load_dword v2, v126, s[{SX}:{SX+3}], s4 offen')
        a.emit(f'buffer_load_dword v3, v127, s[{SW}:{SW+3}], s5 offen')
        a.emit('v_mov_b32 v126, 0')
        a.emit('v_mov_b32 v127, 0')
        a.label(f'L_{kind}_nowarm')
    WARM = ENV('WARM', '0')
    if WARM == '1': warm()
    def reads(s, ks):
        o = []
        if 'noread' in DBG: return o
        for jm in range(4):
            o.append(f'ds_read_b128 v[{fx(s,jm)}:{fx(s,jm)+3}], v{VA+ks} offset:{jm*2048}')
        o.append(f'ds_read_b128 v[{fx(s,4)}:{fx(s,4)+3}], v{VA+4+ks}')
        for jn in range(6):
            for h in range(2):
                r = fw(s, jn) + 2 * h
                o.append(f'ds_read_b64_tr_b16 v[{r}:{r+1}], v{VA+2+(jn&1)} offset:{(jn>>1)*8192+ks*4096+h*512}')
        return o
    def mfma(c, x, y, cin=None):
        return f'v_mfma_f32_16x16x32_bf16 v[{c}:{c+3}], v[{x}:{x+3}], v[{y}:{y+3}], ' + (f'v[{c}:{c+3}]' if cin is None else cin)
    def mf(s):
        o = []
        if 'nomfma' in DBG: return ['s_nop 0']
        for jn in range(6):
            for jm in range(5):
                if jm == 4 and jn & 1: continue
                c = acc(jn, jm) if jm < 4 else HACC + (jn >> 1) * 4
                o.append(mfma(c, fw(s, jn), fx(s, jm)) if jn < 4 else mfma(c, fx(s, jm), fw(s, jn)))
        return o
    SA = [(240, 244), (248, 252), (120, 124)]
    def mfv(hh):
        def f(s):
            o = mf(s)
            ex = []
            for i, jm in enumerate([2 * hh, 2 * hh + 1] + ([4] if hh == 0 else [])):
                ex.append(mfma(SA[i][0], ONES, fx(s, jm)))
                ex.append(mfma(SA[i][1], fx(s, jm), fx(s, jm)))
            return ex + o
        return f
    def select():
        if WARM == '2': warm(); a.emit('s_nop 1')
        a.emit(f's_cmp_lg_u32 s{S_LAYER}, 0')
        a.emit(f's_cbranch_scc1 L_{kind}_loop')
        a.emit(f's_cmp_lg_u32 s{S_WN}, 0')
        a.emit(f's_cbranch_scc1 L_{kind}_loopb')
    def post():
        a.emit('v_and_b32 v32, 3, v1')
        a.emit('v_cmp_eq_u32 s[4:5], 1, v32')
        a.emit('v_cmp_eq_u32 s[6:7], 2, v32')
        a.emit('v_cmp_eq_u32 s[8:9], 3, v32')
        a.emit('v_bfe_u32 v33, v1, 2, 2')
        a.emit('v_lshrrev_b32 v34, 4, v1')
        a.emit('v_cmp_eq_u32 s[10:11], v33, v34')
        a.emit(f's_lshl_b32 s3, s{S_WN}, 7')
        a.emit(f'v_add_u32 v35, s3, v{VS1}')
        a.emit('v_and_b32 v36, 15, v1')
        a.emit(f's_cmp_eq_u32 s{S_WV}, 0')
        a.emit('s_cselect_b32 s3, 0, 576')
        a.emit(f's_add_u32 s3, s3, {LST}')
        a.emit('v_lshl_add_u32 v36, v36, 2, s3')
        for (sm, sq) in SA:
            a.emit(f'v_cndmask_b32 v{sm+1}, v{sq}, v{sq+1}, s[4:5]')
        for (sm, sq) in SA:
            a.emit(f'v_cndmask_b32 v{sm+1}, v{sm+1}, v{sq+2}, s[6:7]')
        for (sm, sq) in SA:
            a.emit(f'v_cndmask_b32 v{sm+1}, v{sm+1}, v{sq+3}, s[8:9]')
        for (sm, sq) in SA: stats_finish(a, sm)
        a.emit('s_mov_b64 exec, s[10:11]')
        a.emit(f'ds_write2_b32 v35, v{SA[0][0]}, v{SA[0][0]+1} offset0:16 offset1:176')
        a.emit(f'ds_write2_b32 v35, v{SA[1][0]}, v{SA[1][0]+1} offset0:32 offset1:192')
        a.emit(f'ds_write2_b32 v36, v{SA[2][0]}, v{SA[2][0]+1} offset0:0 offset1:160')
        a.emit('s_mov_b64 exec, -1')
        a.emit('s_waitcnt lgkmcnt(0)')
        a.emit('s_barrier')
    big_loop(a, kind, N, S, STAGE, 6, VB, VA, reads, mf, variants={'a': mfv(0), 'b': mfv(1)}, select=select, post=post)
    PR = 32
    CS = 48
    CV = 64
    MS = 66
    RK = 76
    M4 = 84
    R4 = 104
    VV = [240, 224]
    for b in range(5):
        a.emit(f'ds_read2_b32 v[{MS+2*b}:{MS+2*b+1}], v{VS1} offset0:{16*b} offset1:{160+16*b}')
    for p in range(2):
        a.emit(f'ds_read2_b32 v[{RK+2*p}:{RK+2*p+1}], v{VKA} offset0:{32*p} offset1:{32*p+16}')
        a.emit(f'ds_read2_b32 v[{RK+4+2*p}:{RK+5+2*p}], v{VKB} offset0:{32*p} offset1:{32*p+16}')
    for c in range(3):
        a.emit(f'ds_write_b128 v{VXW}, v[{HACC+4*c}:{HACC+4*c+3}] offset:{2048*c}')
    a.emit(f's_cmp_eq_u32 s{S_WM}, 1')
    a.emit(f's_cbranch_scc1 L_{kind}_nop3')
    for t in range(2, 6):
        a.emit(f'ds_write_b128 v{VXW}, v[{acc(t,3)}:{acc(t,3)+3}] offset:{6144+1024*t}')
    a.label(f'L_{kind}_nop3')
    for b in range(5):
        a.emit(f'ds_read_b128 v[{M4+4*b}:{M4+4*b+3}], v{VS4} offset:{64*b}')
        a.emit(f'ds_read_b128 v[{R4+4*b}:{R4+4*b+3}], v{VS4} offset:{640+64*b}')
    a.emit('s_waitcnt lgkmcnt(10)')
    a.emit('s_barrier')
    for t in range(4):
        a.emit(f'ds_read_b128 v[{CS+4*t}:{CS+4*t+3}], v{VCO if t&1 else VCE} offset:{1024*t}')
    for t in range(2):
        a.emit(f'ds_read_b32 v{CV+t}, v{VVO if t else VVE} offset:{4096+1024*t}')
    for t in range(4):
        a.emit(f'ds_read_b128 v[{PR+4*t}:{PR+4*t+3}], v{VPO if t&1 else VPE} offset:{2048+1024*t}')
    sc = 32 ** -0.5 * 1.4426950408889634
    for b in range(4):
        a.emit(f'v_mul_f32 v{MS+2*b+3}, {f2u(sc):#x}, v{MS+2*b+3}')
    for b in range(4):
        a.emit(f'v_mul_f32 v{RK+b}, v{RK+b}, v{MS+2*b+3}')
        a.emit(f'v_mul_f32 v{RK+4+b}, v{RK+4+b}, v{MS+2*b+3}')
    a.emit('s_waitcnt lgkmcnt(6)')
    def qk(x, y, cs, b, d):
        m = f'v[{MS+2*b}:{MS+2*b+1}]'
        for (z, c) in ((x, cs), (y, cs + 4)):
            for h in range(2):
                a.emit(f'v_pk_fma_f32 v[{z+2*h}:{z+2*h+1}], v[{c+2*h}:{c+2*h+1}], {m}, v[{z+2*h}:{z+2*h+1}] op_sel:[0,0,0] op_sel_hi:[1,0,1] neg_lo:[0,1,0] neg_hi:[0,1,0]')
        a.emit(f'v_cvt_pk_bf16_f32 v{d}, v{x}, v{x+1}')
        a.emit(f'v_cvt_pk_bf16_f32 v{d+1}, v{x+2}, v{x+3}')
        a.emit(f'v_cvt_pk_bf16_f32 v{d+2}, v{y}, v{y+1}')
        a.emit(f'v_cvt_pk_bf16_f32 v{d+3}, v{y+2}, v{y+3}')
    Q = lambda b: acc(0, b); Kf = lambda b: acc(2, b) if b >= 0 else PR
    Sc = lambda b: acc(1, b); Sp = lambda b: acc(3, b)
    for b in range(4):
        qk(acc(0, b), acc(1, b), CS, b + 1, Q(b))
        qk(acc(2, b), acc(3, b), CS + 8, b + 1, Kf(b))
        if b == 3:
            a.emit('s_waitcnt lgkmcnt(0)')
            qk(PR, PR + 4, CS + 8, 0, PR)
        if b >= 1:
            a.emit(mfma(Sc(b - 1), Kf(b - 1), Q(b - 1), '0'))
            if b >= 2: a.emit(mfma(Sp(b - 1), Kf(b - 2), Q(b - 1), '0'))
    a.emit(mfma(Sc(3), Kf(3), Q(3), '0'))
    a.emit(mfma(Sp(3), Kf(2), Q(3), '0'))
    a.emit(mfma(Sp(0), Kf(-1), Q(0), '0'))
    def vconv(x, t, b):
        cv = f'v[{CV}:{CV+1}]'
        for h in range(2):
            a.emit(f'v_pk_fma_f32 v[{x+2*h}:{x+2*h+1}], v[{M4+4*b+2*h}:{M4+4*b+2*h+1}], {cv}, v[{x+2*h}:{x+2*h+1}] op_sel:[0,{t},0] op_sel_hi:[1,{t},1] neg_lo:[1,0,0] neg_hi:[1,0,0]')
        for h in range(2):
            a.emit(f'v_pk_mul_f32 v[{x+2*h}:{x+2*h+1}], v[{x+2*h}:{x+2*h+1}], v[{R4+4*b+2*h}:{R4+4*b+2*h+1}]')
        for h in range(2):
            a.emit(f'v_cvt_pk_bf16_f32 v{VV[t]+2*b+h}, v{x+2*h}, v{x+2*h+1}')
    for t in range(2):
        vconv(PR + 8 + 4 * t, t, 0)
        for b in range(4): vconv(acc(4 + t, b), t, b + 1)
    T = lambda b: 32 + 4 * b
    odd = f's[{M_ODD}:{M_ODD+1}]'
    for b in (1, 2, 3, 0):
        a.emit(f'v_cndmask_b32 v{Sc(b)}, v{Sc(b)}, v{Sc(b)+1}, {odd}')
        a.emit(f'v_cndmask_b32 v{Sp(b)}, v{Sp(b)}, v{Sp(b)+1}, {odd}')
        a.emit(f'v_cndmask_b32 v{Sc(b)+2}, v{Sc(b)+2}, v{Sc(b)+3}, {odd}')
        a.emit(f'v_cndmask_b32 v{Sp(b)+2}, v{Sp(b)+2}, v{Sp(b)+3}, {odd}')
        a.emit(f'v_cndmask_b32 v{T(b)}, v{Sc(b)}, v{Sp(b)}, s[{M_UPA}:{M_UPA+1}]')
        a.emit(f'v_cndmask_b32 v{T(b)+1}, v{Sc(b)+2}, v{Sp(b)+2}, s[{M_UPB}:{M_UPB+1}]')
        a.emit(f'v_mul_f32 v{T(b)}, v{T(b)}, v{RK+b}')
        a.emit(f'v_mul_f32 v{T(b)+1}, v{T(b)+1}, v{RK+4+b}')
    a.emit(f'v_mov_b32 v48, {f2u(-1e9 * 1.4426950408889634):#x}')
    a.emit(f'v_cndmask_b32 v{T(0)}, v{T(0)}, v48, s[{M_FA}:{M_FA+1}]')
    a.emit(f'v_cndmask_b32 v{T(0)+1}, v{T(0)+1}, v48, s[{M_FB}:{M_FB+1}]')
    for b in range(4): a.emit(f'v_max_f32 v{T(b)+2}, v{T(b)}, v{T(b)+1}')
    for op in ('32', '16'):
        for b in range(4): a.emit(f'v_mov_b32 v{T(b)+3}, v{T(b)+2}')
        for b in range(4): a.emit(f'v_permlane{op}_swap_b32 v{T(b)+2}, v{T(b)+3}')
        for b in range(4): a.emit(f'v_max_f32 v{T(b)+2}, v{T(b)+2}, v{T(b)+3}')
    for b in range(4):
        a.emit(f'v_sub_f32 v{T(b)}, v{T(b)}, v{T(b)+2}')
        a.emit(f'v_sub_f32 v{T(b)+1}, v{T(b)+1}, v{T(b)+2}')
    for b in range(4):
        a.emit(f'v_exp_f32 v{T(b)}, v{T(b)}')
        a.emit(f'v_exp_f32 v{T(b)+1}, v{T(b)+1}')
    P = lambda b: acc(0, b)
    for b in range(4):
        a.emit(f'v_cvt_pk_bf16_f32 v{T(b)}, v{T(b)}, v{T(b)}')
        a.emit(f'v_cvt_pk_bf16_f32 v{T(b)+1}, v{T(b)+1}, v{T(b)+1}')
        a.emit(f'v_and_b32 v{P(b)}, v{T(b)}, v{MAP}')
        a.emit(f'v_and_b32 v{P(b)+1}, v{T(b)+1}, v{MBP}')
        a.emit(f'v_and_b32 v{P(b)+2}, v{T(b)}, v{MAC}')
        a.emit(f'v_and_b32 v{P(b)+3}, v{T(b)+1}, v{MBC}')
        if b >= 1:
            q = b - 1
            a.emit(mfma(acc(1, q), ONES, P(q), '0'))
            a.emit(mfma(acc(4, q), VV[0] + 2 * q, P(q), '0'))
            a.emit(mfma(acc(5, q), VV[1] + 2 * q, P(q), '0'))
    q = 3
    a.emit(mfma(acc(1, q), ONES, P(q), '0'))
    a.emit(mfma(acc(4, q), VV[0] + 2 * q, P(q), '0'))
    a.emit(mfma(acc(5, q), VV[1] + 2 * q, P(q), '0'))
    for b in range(4):
        r = acc(1, b); d = 48 + 4 * b
        a.emit(f'v_rcp_f32 v{r}, v{r}')
        a.emit(f's_mov_b32 s3, {b * 16 * 2048}')
        for t in range(2):
            x = acc(4 + t, b)
            for h in range(2):
                a.emit(f'v_pk_mul_f32 v[{x+2*h}:{x+2*h+1}], v[{x+2*h}:{x+2*h+1}], v[{r}:{r+1}] op_sel_hi:[1,0]')
        for t in range(2):
            x = acc(4 + t, b)
            for h in range(2):
                a.emit(f'v_cvt_pk_bf16_f32 v{d+2*t+h}, v{x+2*h}, v{x+2*h+1}')
        a.emit('s_nop 1')
        a.emit(f'v_permlane16_swap_b32 v{d}, v{d+2}')
        a.emit(f'v_permlane16_swap_b32 v{d+1}, v{d+3}')
        a.emit(f'buffer_store_dwordx4 v[{d}:{d+3}], v{VO}, s[{SO}:{SO+3}], s3 offen{stf(kind)}')
    stamps_out(a, kind)
    a.emit('s_endpgm')
    a.label(f'L_{kind}_loader')
    L = Loader(a, kind, K, lda2, ldw2, [0, 2048, 4096], 128, S, STAGE, halo=XH, rot=int(ENV('ROT_QKV', '0')))
    L.setup()
    a.emit('s_waitcnt lgkmcnt(0)')
    srd(a, SX, 'xs', 0, 4 * MB); srd(a, SW, 'wqkv', 0, 1024 * 6144)
    a.emit(f's_cmp_eq_u32 s{S_LAYER}, 0')
    a.emit(f's_cbranch_scc1 L_{kind}_ld0')
    srd(a, ST, 'ws', WS_ST, 16 * 16384)
    n1 = side(Asm(), 1, 'issue')
    def tail1():
        stats_loads(a, 32, True)
        side(a, 1, 'issue')
    def final1():
        a.emit(f's_waitcnt vmcnt({n1})')
        stats_reduce_store(a, 32, LST)
        a.emit('s_waitcnt lgkmcnt(0)')
    L.run('1', tail_issue=tail1, ntail_vm=16 + n1, final=final1)
    a.emit('s_barrier')
    side(a, 1, 'finish')
    a.emit('s_endpgm')
    a.label(f'L_{kind}_ld0')
    L.run('0', tail_issue=lambda: side(a, 0, 'issue'), ntail_vm=side(Asm(), 0, 'issue'))
    a.emit('s_barrier')
    a.emit('s_barrier')
    side(a, 0, 'finish')
    a.label(end)
    a.emit('s_endpgm')
    a(KD.format(name=f'{kind}l0_kernel'))
    stub(a, f'{kind}l1_kernel', body, 1, tsidx + 4, False)
    a.label(f'L_{kind}_c1')
    a(KD.format(name=f'{kind}l1_kernel'))
    return LST + 1280
```

```python
import sys, os, struct
sys.path.insert(0, os.path.join(os.path.dirname(os.path.abspath(__file__)), '..'))
from asmlib import Asm, check_offsets
MB = 1 << 20
WSB = int(os.environ.get('WSB', '0')) * MB
WS_O   = WSB
WS_X1  = WSB + 4 * MB
WS_H   = WSB + 8 * MB
WS_ST  = WSB + 23 * MB
WS_CS  = WSB + 23 * MB + 512 * 1024
WS_TS  = 60 * MB
f2u = lambda f: struct.unpack('<I', struct.pack('<f', f))[0]
ENV = os.environ.get
TS = ENV('TS', '')
DBG = ENV('DBG', '').split(',')
def stf(kind): return (' ' + ENV('WTF', 'sc1')) if kind in ENV('WT', 'attn,wo,w2,w1').split(',') else ''

KA = {'A_x': 0, 'wqkv': 8, 'wo': 16, 'w1': 32, 'b1': 40, 'w2': 48, 'b2': 56, 'out': 64, 'ws': 80}
P_IN = 16
P_OUT = 32; P_WS = 34
P_XS = 12
PTR = {'A_x': 16, 'wqkv': 18, 'wo': 20, 'w1': 24, 'b1': 26, 'w2': 28, 'b2': 30, 'out': 32, 'ws': 34, 'xs': 12}
SX, SW, SO, SR, SB, ST, SP, SC = 36, 40, 44, 48, 52, 56, 60, 64
S_MT, S_NT, S_WV, S_WM, S_WN = 68, 69, 70, 71, 72
S_KX, S_KW, S_SLOT, S_XD, S_WD, S_HD, S_CNT = 73, 74, 75, 76, 77, 78, 79
S_LAYER = 96; S_TSI = 97; S_T = 98; S_CU = 99; S_XG = 100; S_KT = 101

KD = '''.section .rodata,"a"
.p2align 6
.amdhsa_kernel {name}
  .amdhsa_next_free_vgpr 256
  .amdhsa_next_free_sgpr 102
  .amdhsa_accum_offset 256
  .amdhsa_group_segment_fixed_size 0
  .amdhsa_kernarg_size 88
  .amdhsa_user_sgpr_count 2
  .amdhsa_user_sgpr_kernarg_segment_ptr 1
  .amdhsa_system_sgpr_workgroup_id_x 1
  .amdhsa_float_denorm_mode_32 3
  .amdhsa_float_denorm_mode_16_64 3
.end_amdhsa_kernel
.text
'''

def srd(a, sd, which, off, size):
    p = PTR[which]
    if off:
        a.emit(f's_add_u32 s{sd}, s{p}, {off}')
        a.emit(f's_addc_u32 s{sd+1}, s{p+1}, 0')
        a.emit(f's_and_b32 s{sd+1}, s{sd+1}, 0xffff')
    else:
        a.emit(f's_mov_b32 s{sd}, s{p}')
        a.emit(f's_and_b32 s{sd+1}, s{p+1}, 0xffff')
    a.emit(f's_mov_b32 s{sd+2}, {size}')
    a.emit(f's_mov_b32 s{sd+3}, 0x00020000')

def stub(a, name, body, layer, tsidx, first):
    a(f'.text\n.globl {name}\n.p2align 8\n.type {name},@function\n{name}:')
    if TS:
        stamp(a, 0, nowait=True)
    a.emit('s_load_dwordx16 s[16:31], s[0:1], 0')
    a.emit('s_load_dwordx2 s[32:33], s[0:1], 64')
    a.emit('s_load_dwordx2 s[34:35], s[0:1], 80')
    a.emit(f's_load_dwordx2 s[12:13], s[0:1], {0 if layer == 0 else 64}')
    a.emit(f's_mov_b32 s{S_LAYER}, {layer}')
    if TS: a.emit(f's_mov_b32 s{S_TSI}, {tsidx}')
    if not first:
        a.emit(f's_branch {body}')

def stamp(a, n, nowait=False):
    if not TS: return
    a.emit(f's_memrealtime s[{80+4*n}:{81+4*n}]')
    a.emit(f's_memtime s[{82+4*n}:{83+4*n}]')
    if not nowait: a.emit('s_waitcnt lgkmcnt(0)')

def stamps_out(a, tag):
    if not TS: return
    a.emit('s_waitcnt vmcnt(0)')
    stamp(a, 3)
    srd(a, SP, 'ws', WS_TS, 1 << 20)
    a.emit('s_lshl_b32 s4, s2, 6')
    a.emit(f's_lshl_b32 s5, s{S_TSI}, 16')
    a.emit('s_add_u32 s4, s4, s5')
    a.emit('v_mov_b32 v1, s4')
    for i in range(16): a.emit(f'v_mov_b32 v{4+i}, s{80+i}')
    a.emit('v_cmp_eq_u32 vcc, 0, v0')
    a.emit('s_and_saveexec_b64 s[6:7], vcc')
    a.emit(f's_cbranch_execz L_tsskip_{tag}')
    for j in range(4):
        a.emit(f'buffer_store_dwordx4 v[{4+4*j}:{7+4*j}], v1, s[{SP}:{SP+3}], 0 offen offset:{16*j}')
    a.emit('s_waitcnt vmcnt(0)')
    a.label(f'L_tsskip_{tag}')

def tile_map(a, LM, endlab):
    a.emit('s_cmp_ge_u32 s2, 256')
    a.emit(f's_cbranch_scc1 {endlab}')
    a.emit('v_lshrrev_b32 v2, 6, v0')
    a.emit('v_and_b32 v1, 63, v0')
    a.emit(f'v_readfirstlane_b32 s{S_WV}, v2')
    a.emit('s_and_b32 s3, s2, 7')
    a.emit(f's_lshr_b32 s{S_CU}, s2, 3')
    a.emit(f's_and_b32 s5, s3, {(1 << (4 - LM)) - 1}')
    a.emit(f's_lshl_b32 s5, s5, {LM}')
    a.emit(f's_and_b32 s6, s{S_CU}, {(1 << LM) - 1}')
    a.emit(f's_add_u32 s{S_MT}, s5, s6')
    a.emit(f's_lshr_b32 s5, s3, {4 - LM}')
    a.emit(f's_lshl_b32 s5, s5, {5 - LM}')
    a.emit(f's_lshr_b32 s6, s{S_CU}, {LM}')
    a.emit(f's_add_u32 s{S_NT}, s5, s6')
    if 'smallm' in DBG: a.emit(f's_and_b32 s{S_MT}, s{S_MT}, 1')
    if 'smalln' in DBG: a.emit(f's_and_b32 s{S_NT}, s{S_NT}, 1')

def interleave(a, main, side, lead=1, per=1):
    si = 0
    for i, m in enumerate(main):
        a.emit(m)
        if i + 1 >= lead:
            for _ in range(per):
                if si < len(side): a.emit(side[si]); si += 1
    while si < len(side): a.emit(side[si]); si += 1

class Loader:
    VXD = 4; VWD = 8; VXH = 28
    def __init__(self, a, tag, K, lda2, ldw2, panels, colbase, S, STAGE, halo=None, delta=0, rot=None, xblk=False):
        self.a = a; self.tag = tag; self.K = K; self.lda2 = lda2; self.ldw2 = ldw2; self.panels = panels
        self.colbase = colbase; self.S = S; self.STAGE = STAGE; self.halo = halo; self.delta = delta; self.xblk = xblk; self.rot = rot if rot is not None and rot >= 0 else None
        self.NSTEP = K // 64
        self.per = 4 + 2 * len(panels) + (1 if halo is not None else 0)
    def setup(self):
        a = self.a
        if ENV('PRIO', '0') != '0': a.emit(f"s_setprio {ENV('PRIO')}")
        a.emit(f's_add_u32 s8, s{S_WV}, s{S_NT}')
        a.emit('s_and_b32 s8, s8, 3')
        a.emit(f's_add_u32 s9, s{S_WV}, s{S_MT}')
        a.emit('s_and_b32 s9, s9, 3')
        a.emit(f's_lshl_b32 s{S_XD}, s8, 12')
        a.emit(f's_lshl_b32 s{S_WD}, s9, 11')
        a.emit(f's_add_u32 s{S_WD}, s{S_WD}, 16384')
        a.emit(f's_lshl_b32 s11, s{S_MT}, 7')
        a.emit('v_and_b32 v10, 7, v1')
        if self.xblk: self.xoff_blk(self.lda2)
        else: self.xoff_rows(self.lda2)
        a.emit('v_lshrrev_b32 v3, 3, v1')
        a.emit('s_lshl_b32 s10, s9, 4')
        a.emit('v_add_u32 v3, s10, v3')
        a.emit(f'v_mul_u32_u24 v3, {self.ldw2}, v3')
        a.emit('v_lshrrev_b32 v2, 3, v1')
        a.emit('v_and_b32 v2, 2, v2')
        a.emit('v_xor_b32 v2, v2, v10')
        a.emit(f's_mul_i32 s10, s{S_NT}, {self.colbase}')
        if self.colbase & 127: a.emit('s_andn2_b32 s10, s10, 127')
        a.emit('v_add_u32 v3, s10, v3')
        a.emit(f'v_lshl_add_u32 v{self.VWD}, v2, 4, v3')
        a.emit('v_xor_b32 v2, 4, v2')
        a.emit(f'v_add_u32 v3, {8*self.ldw2}, v3')
        a.emit(f'v_lshl_add_u32 v{self.VWD+1}, v2, 4, v3')
        if self.halo is not None:
            a.emit(f's_and_b32 s10, s{S_WV}, 3')
            a.emit(f's_lshl_b32 s{S_HD}, s10, 9')
            a.emit(f's_add_u32 s{S_HD}, s{S_HD}, {self.halo}')
            a.emit('s_lshl_b32 s14, s10, 2')
            a.emit('s_add_u32 s14, s14, s11')
            a.emit('s_sub_u32 s14, s14, 16')
            a.emit('v_lshrrev_b32 v3, 3, v1')
            a.emit('v_add_u32 v3, s14, v3')
            a.emit('v_max_i32 v3, 0, v3')
            a.emit(f'v_mul_u32_u24 v3, {self.lda2}, v3')
            a.emit('s_lshl_b32 s14, s10, 1')
            a.emit('v_lshrrev_b32 v2, 4, v1')
            a.emit('v_add_u32 v2, s14, v2')
            a.emit('v_and_b32 v2, 7, v2')
            a.emit('v_xor_b32 v2, v2, v10')
            a.emit(f'v_lshl_add_u32 v{self.VXH}, v2, 4, v3')
            a.emit('s_cmp_eq_u32 s10, 0')
            a.emit('s_cselect_b32 s14, 0xffffff00, -1')
            a.emit('s_mov_b32 s15, 0')
        a.emit(f's_mov_b32 s{S_SLOT}, 0')
        if self.rot is None:
            a.emit(f's_mov_b32 s{S_KX}, 0')
            a.emit(f's_mov_b32 s{S_KW}, 0')
        else:
            a.emit(f's_add_u32 s{S_XG}, s{S_MT}, s{S_NT}')
            a.emit(f's_mov_b32 s{S_KT}, -1')
            for x in self.knext(): a.emit(x)
    def xoff_rows(self, ld):
        a = self.a
        a.emit('v_lshrrev_b32 v3, 3, v1')
        a.emit(f's_lshr_b32 s10, s{S_XD}, 7')
        a.emit(f's_lshl_b32 s3, s{S_MT}, 7')
        a.emit('s_add_u32 s10, s10, s3')
        a.emit('v_add_u32 v3, s10, v3')
        a.emit(f'v_mul_u32_u24 v3, {ld}, v3')
        a.emit('v_lshrrev_b32 v2, 4, v1')
        for j in range(4):
            d = self.VXD + j
            if j & 1:
                a.emit(f'v_add_u32 v{d}, 4, v2')
                a.emit(f'v_xor_b32 v{d}, v{d}, v10')
            else:
                a.emit(f'v_xor_b32 v{d}, v2, v10')
            a.emit(f'v_lshl_add_u32 v{d}, v{d}, 4, v3')
            if j < 3: a.emit(f'v_add_u32 v3, {8*ld}, v3')
    def xoff_blk(self, ld):
        a = self.a
        a.emit(f's_lshr_b32 s10, s{S_XD}, 11')
        a.emit(f's_lshl_b32 s3, s{S_MT}, 3')
        a.emit('s_add_u32 s10, s10, s3')
        a.emit(f's_mul_i32 s10, s10, {16*ld}')
        a.emit(f'v_lshl_add_u32 v{self.VXD}, v1, 4, s10')
        a.emit(f'v_add_u32 v{self.VXD+1}, {16*ld}, v{self.VXD}')
    def xdma(self, base, imm, sd, soff, blk):
        o = []
        for j in range(4):
            if blk:
                if not j & 1: o += [f's_add_u32 m0, s{base}, {imm + j*1024}', 's_nop 0']
                o.append(f'buffer_load_dwordx4 v{self.VXD+(j>>1)}, s[{sd}:{sd+3}], s{soff} offen offset:{(j&1)*1024} lds')
            else:
                o += [f's_add_u32 m0, s{base}, {imm + j*1024}', 's_nop 0', f'buffer_load_dwordx4 v{self.VXD+j}, s[{sd}:{sd+3}], s{soff} offen lds']
        return o
    def knext(self):
        if self.rot is None:
            return [f's_add_u32 s{S_KX}, s{S_KX}, {2048 if self.xblk else 128}', f's_add_u32 s{S_KW}, s{S_KW}, {64*self.ldw2}']
        lc = self.rot; C = 1 << lc; N = self.NSTEP
        o = [f's_add_u32 s{S_KT}, s{S_KT}, 1']
        D = int(ENV('ROTD_' + self.tag.upper(), ENV('ROTD', '2')))
        dl = {3: [3, -1, -1, -1], 2: [2, -1, -1, 0], 1: [1, -1, 0, 0]}[D]
        tbl = sum((((d * C) % N) << (8 * i)) for i, d in enumerate(dl))
        if lc: o += [f's_lshr_b32 s{S_KX}, s{S_KT}, {lc}', f's_sub_u32 s{S_KX}, s{S_KX}, s{S_XG}']
        else: o += [f's_sub_u32 s{S_KX}, s{S_KT}, s{S_XG}']
        o += [f's_lshl_b32 s{S_KX}, s{S_KX}, 3',
              f's_lshr_b32 s{S_KX}, {tbl:#x}, s{S_KX}',
              f's_and_b32 s{S_KX}, s{S_KX}, 255',
              f's_add_u32 s{S_KX}, s{S_KX}, s{S_KT}']
        if N & (N - 1) == 0: o += [f's_and_b32 s{S_KX}, s{S_KX}, {N - 1}']
        else: o += [f's_sub_u32 s{S_KW}, s{S_KX}, {N}', f's_cselect_b32 s{S_KX}, s{S_KX}, s{S_KW}']
        o += [f's_mul_i32 s{S_KW}, s{S_KX}, {64*self.ldw2}', f's_lshl_b32 s{S_KX}, s{S_KX}, {11 if self.xblk else 7}']
        return o
    def issue(self):
        o = []
        if 'nodma' in DBG: return o
        o.append(f's_add_u32 s3, s{S_SLOT}, s{S_XD}')
        o += self.xdma(3, 0, SX, S_KX, self.xblk)
        if self.halo is not None:
            o.append(f's_add_u32 m0, s{S_SLOT}, s{S_HD}')
            o.append('s_mov_b64 exec, s[14:15]')
            o.append(f'buffer_load_dwordx4 v{self.VXH}, s[{SX}:{SX+3}], s{S_KX} offen lds')
            o.append('s_mov_b64 exec, -1')
        o.append(f's_add_u32 s3, s{S_SLOT}, s{S_WD}')
        for pn, goff in enumerate(self.panels):
            for i in range(2):
                o.append(f's_add_u32 m0, s3, {pn*8192+i*1024}')
                o.append(f's_add_u32 s4, s{S_KW}, {goff}' if i == 0 else 's_nop 0')
                o.append(f'buffer_load_dwordx4 v{self.VWD+i}, s[{SW}:{SW+3}], s4 offen lds')
        o += self.knext()
        o.append(f's_add_u32 s{S_SLOT}, s{S_SLOT}, {self.STAGE}')
        o.append(f's_cmp_eq_u32 s{S_SLOT}, {self.S*self.STAGE}')
        o.append(f's_cselect_b32 s{S_SLOT}, 0, s{S_SLOT}')
        return o
    def run(self, variant='', d=None, per_stage=None, tail_issue=None, ntail_vm=0, final=None):
        a = self.a; per = self.per; N = self.NSTEP
        if d is None: d = self.S - 1
        tag = self.tag + variant
        def iss(ps=False):
            ins = self.issue()
            if not (ps and per_stage):
                for x in ins: a.emit(x)
                return
            pre, work = per_stage()
            for x in pre: a.emit(x)
            nd = max(1, sum(1 for x in ins if 'buffer_load' in x)); k = 0; wi = 0
            for x in ins:
                a.emit(x)
                if 'buffer_load' in x: k += 1
                if 'buffer_load' in x and f'v{self.VXH},' not in x:
                    tgt = len(work) * k // nd
                    while wi < tgt: a.emit(work[wi]); wi += 1
            while wi < len(work): a.emit(work[wi]); wi += 1
        def only_ps():
            if per_stage:
                pre, work = per_stage()
                for x in pre + work: a.emit(x)
        def wait(n):
            assert n <= 63, n
            a.emit(f's_waitcnt vmcnt({n})')
        pre = min(2, d)
        for _ in range(pre): iss()
        wait((pre - 1) * per)
        a.emit('s_barrier')
        for _ in range(pre, d): iss()
        nmain = N - d
        a.emit(f's_mov_b32 s{S_CNT}, {nmain - 1}')
        a.label(f'L_{tag}_ld')
        iss(True)
        wait((d - 1) * per)
        a.emit('s_barrier')
        a.emit(f's_sub_u32 s{S_CNT}, s{S_CNT}, 1')
        a.emit(f's_cmp_lg_u32 s{S_CNT}, 0')
        a.emit(f's_cbranch_scc1 L_{tag}_ld')
        iss(True)
        if tail_issue: tail_issue()
        for i in range(N - 1 - d, N):
            if i > N - 1 - d: only_ps()
            if i + 1 < N:
                wait((N - 1 - (i + 1)) * per + ntail_vm)
            else:
                if final: final()
            a.emit('s_barrier')

def pf_weights(a, sd, which, size, ldw2, R, sh, L, LMn, tilebytes, NI, vd, row0=0, qkv=False):
    if 'nopf' in DBG: return 0
    srd(a, sd, which, 0, size)
    a.emit(f's_and_b32 s3, s{S_WV}, 3')
    a.emit(f's_mul_i32 s3, s3, {NI * (64 >> sh)}')
    a.emit(f's_mul_i32 s4, s{S_CU}, {R}')
    a.emit('s_add_u32 s3, s3, s4')
    if row0: a.emit(f's_add_u32 s3, s3, {row0}')
    a.emit(f'v_lshrrev_b32 v2, {sh}, v1')
    a.emit('v_add_u32 v2, s3, v2')
    a.emit(f'v_mul_u32_u24 v2, {ldw2}, v2')
    a.emit(f'v_and_b32 v3, {(1 << sh) - 1}, v1')
    if L < (1 << sh): a.emit(f'v_min_u32 v3, {L-1}, v3')
    if qkv:
        a.emit('v_lshrrev_b32 v12, 2, v3')
        a.emit('v_lshl_add_u32 v2, v12, 11, v2')
        a.emit('v_and_b32 v3, 3, v3')
    a.emit('v_lshl_add_u32 v2, v3, 7, v2')
    a.emit('s_and_b32 s3, s2, 7')
    a.emit(f's_lshr_b32 s3, s3, {4 - LMn}')
    a.emit(f's_mul_i32 s3, s3, {(1 << (5 - LMn)) * tilebytes}')
    for i in range(NI):
        a.emit(f'buffer_load_dword v{vd+i}, v2, s[{sd}:{sd+3}], s3 offen')
        if i + 1 < NI: a.emit(f's_add_u32 s3, s3, {(64 >> sh) * ldw2}')
    return NI

_pfc = [0]
def pf_code(a, start, end, vd, forward=True):
    if 'nopfc' in DBG: return 0
    _pfc[0] += 1
    lab = f'L_pfc{_pfc[0]}'
    a.emit('s_getpc_b64 s[4:5]')
    a.label(lab)
    if forward:
        a.emit(f's_add_u32 s4, s4, {start}-{lab}')
        a.emit('s_addc_u32 s5, s5, 0')
    else:
        a.emit(f's_sub_u32 s4, s4, {lab}-{start}')
        a.emit('s_subb_u32 s5, s5, 0')
    a.emit(f's_and_b32 s3, s{S_WV}, 3')
    a.emit('s_lshl_b32 s3, s3, 13')
    a.emit('v_lshl_add_u32 v2, v1, 7, s3')
    a.emit(f'v_min_u32 v2, {end}-{start}-4, v2')
    a.emit(f'global_load_dword v{vd}, v2, s[4:5]')
    return 1

def wbase(a, vd, vt, g='v2'):
    a.emit(f'v_bfe_u32 v{vd}, v1, 2, 2')
    a.emit(f'v_lshl_add_u32 v{vd}, {g}, 3, v{vd}')
    a.emit(f'v_lshlrev_b32 v{vd}, 7, v{vd}')
    a.emit(f'v_and_b32 v{vt}, 3, v1')
    a.emit(f'v_lshl_add_u32 v{vd}, v{vt}, 3, v{vd}')
    a.emit(f'v_bfe_u32 v{vt}, v1, 3, 2')
    a.emit(f'v_lshl_add_u32 v{vd}, v{vt}, 5, v{vd}')
```

```python
from common import *

def gen_gemm64(a, kind, tsidx, side):
    K = 1024 if kind == 'wo' else 3584
    lda2 = K * 2; ldw2 = 2048
    S = int(ENV('S64', '6')); DELTA = int(ENV('DELTA', '0'))
    LM = int(ENV('LM_' + kind.upper(), '2'))
    STAGE = 16384 + 8192
    N = K // 64
    LRES = S * STAGE; PSTEP = 64 if kind == 'w2' else 1024
    body = f'L_{kind}_body'; end = f'L_{kind}_end'
    VXB, VWB, VXA, VWA, VO = 5, 6, 25, 26, 12
    F = [32, 80]; ACC = 128; RES = 160; BIA = 176
    acc = lambda jn, jm: ACC + (jn * 2 + jm) * 4
    fx = lambda s, ks, jm: F[s] + (ks * 2 + jm) * 4
    fw = lambda s, ks, jn: F[s] + 16 + (ks * 4 + jn) * 4
    a.label(f'L_{kind}_c0')
    stub(a, f'{kind}l0_kernel', body, 0, tsidx, True)
    a.label(body)
    tile_map(a, LM, end)
    a.emit(f's_cmp_ge_u32 s{S_WV}, 4')
    a.emit(f's_cbranch_scc1 L_{kind}_loader')
    a.emit('v_and_b32 v3, 15, v1')
    a.emit('v_lshrrev_b32 v2, 4, v1')
    a.emit(f's_lshl_b32 s8, s{S_MT}, 7')
    a.emit(f's_lshl_b32 s9, s{S_WV}, 5')
    a.emit('s_add_u32 s8, s8, s9')
    a.emit('v_add_u32 v13, s8, v3')
    a.emit(f's_lshl_b32 s10, s{S_NT}, 7')
    a.emit('v_lshl_add_u32 v14, v2, 3, s10')
    a.emit('v_and_b32 v16, 1, v2')
    a.emit('v_lshrrev_b32 v17, 1, v2')
    if kind == 'w2':
        a.emit('v_lshlrev_b32 v16, 5, v16')
        a.emit('v_lshl_add_u32 v16, v17, 4, v16')
        a.emit('v_add_u32 v16, s10, v16')
        a.emit(f'v_lshl_add_u32 v{VO}, v13, 11, v16')
    else:
        a.emit('v_lshl_add_u32 v16, v16, 1, v17')
        a.emit('v_lshlrev_b32 v16, 8, v16')
        a.emit('v_lshl_add_u32 v16, v3, 4, v16')
        a.emit(f's_add_u32 s9, s8, s{S_NT}')
        a.emit('s_lshl_b32 s9, s9, 11')
        a.emit(f'v_add_u32 v{VO}, s9, v16')
    a.emit('v_lshl_add_u32 v18, v17, 4, v13')
    a.emit('v_lshlrev_b32 v18, 3, v18')
    a.emit('v_and_b32 v16, 1, v2')
    a.emit('v_lshl_add_u32 v18, v16, 2, v18')
    a.emit(f's_lshl_b32 s10, s{S_NT}, 14')
    a.emit('v_add_u32 v18, s10, v18')
    a.emit(f's_lshl_b32 s8, s{S_WV}, 12')
    a.emit(f'v_lshl_add_u32 v{VXB}, v1, 4, s8')
    wbase(a, VWB, 17)
    a.emit(f'v_add_u32 v{VWB}, 16384, v{VWB}')
    for i in range(1, 4): a.emit(f'v_xor_b32 v{VWB+i}, {32*i}, v{VWB}')
    a.emit('v_lshrrev_b32 v15, 1, v2')
    if kind == 'wo':
        a.emit('v_lshrrev_b32 v17, 1, v3')
        a.emit('v_xor_b32 v15, v15, v17')
        a.emit('v_lshlrev_b32 v15, 4, v15')
        a.emit('v_lshl_add_u32 v15, v3, 7, v15')
    else:
        a.emit('v_lshlrev_b32 v15, 8, v15')
        a.emit('v_lshl_add_u32 v15, v3, 4, v15')
    a.emit('v_lshl_add_u32 v15, v16, 3, v15')
    a.emit(f's_add_u32 s8, s8, {LRES}')
    a.emit('v_add_u32 v15, s8, v15')
    a.emit('s_mov_b32 s11, 0xffff0000')
    a.emit(f's_mov_b32 s{S_SLOT}, 0')
    if kind == 'wo':
        for i in range(32): a.emit(f'v_mov_b32 v{ACC+i}, 0')
    a.emit('s_waitcnt lgkmcnt(0)')
    if kind == 'w2':
        srd(a, SB, 'b2', 0, 2048)
        for jn in range(4):
            a.emit(f'buffer_load_dwordx2 v[{BIA+2*jn}:{BIA+2*jn+1}], v14, s[{SB}:{SB+3}], 0 offen offset:{jn*32}')
        srd(a, SO, 'out', 0, 4 * MB)
    else:
        srd(a, SO, 'ws', WS_X1, 4 * MB)
    srd(a, ST, 'ws', WS_ST, 16 * 16384)
    if kind == 'wo': code_touch(a, 'L_w1_c0', 'L_w1_c1', 128)
    if kind == 'w2':
        a.emit('s_waitcnt vmcnt(0)')
        for jn in range(4):
            for jm in range(2):
                c = acc(jn, jm)
                for h in range(2):
                    a.emit(f'v_lshlrev_b32 v{c+2*h}, 16, v{BIA+2*jn+h}')
                    a.emit(f'v_and_b32 v{c+2*h+1}, s11, v{BIA+2*jn+h}')
    def addr():
        o = [f'v_add_u32_e64 v{VXA+i}, s{S_SLOT}, v{VXB+i}' for i in range(5)]
        o += [f's_add_u32 s{S_SLOT}, s{S_SLOT}, {STAGE}', f's_cmp_eq_u32 s{S_SLOT}, {S*STAGE}', f's_cselect_b32 s{S_SLOT}, 0, s{S_SLOT}']
        return o
    def reads(s):
        o = []
        if 'noread' in DBG: return o
        for ks in range(2):
            for jm in range(2):
                o.append(f'ds_read_b128 v[{fx(s,ks,jm)}:{fx(s,ks,jm)+3}], v{VXA} offset:{jm*2048+ks*1024}')
            for jn in range(4):
                for h in range(2):
                    r = fw(s, ks, jn) + 2 * h
                    o.append(f'ds_read_b64_tr_b16 v[{r}:{r+1}], v{VWA+jn} offset:{ks*4096+h*512}')
        return o
    def mf(s):
        o = []
        if 'nomfma' in DBG: return ['s_nop 0']
        for ks in range(2):
            for jn in range(4):
                for jm in range(2):
                    c = acc(jn, jm)
                    o.append(f'v_mfma_f32_16x16x32_bf16 v[{c}:{c+3}], v[{fw(s,ks,jn)}:{fw(s,ks,jn)+3}], v[{fx(s,ks,jm)}:{fx(s,ks,jm)+3}], v[{c}:{c+3}]')
        return o
    for x in addr(): a.emit(x)
    a.emit('s_barrier')
    stamp(a, 1)
    for x in reads(0): a.emit(x)
    a.emit(f's_mov_b32 s{S_CNT}, {N//2}')
    for x in addr(): a.emit(x)
    a.emit('s_waitcnt lgkmcnt(0)')
    a('.p2align 3')
    a.label(f'L_{kind}_loop')
    for s in range(2):
        a.emit('s_barrier')
        if s == 0: a.emit(f's_sub_u32 s{S_CNT}, s{S_CNT}, 1')
        ad = addr()
        ad[-1] += '\n  s_nop 0' if s == 0 else f'\n  s_cmp_lg_u32 s{S_CNT}, 0'
        interleave(a, mf(s), reads(1 - s) + ad, lead=1, per=2)
        a.emit('s_waitcnt lgkmcnt(0)')
    a.emit(f's_cbranch_scc1 L_{kind}_loop')
    stamp(a, 2)
    if kind == 'wo':
        for jn in range(1, 4): a.emit(f'v_xor_b32 v{VXA+jn}, {32*jn}, v15')
    for jm in range(2):
        for jn in range(4):
            r = RES + (jn * 2 + jm) * 2
            if kind == 'wo': a.emit(f'ds_read_b64 v[{r}:{r+1}], v{VXA+jn if jn else 15} offset:{jm*2048}')
            else: a.emit(f'ds_read_b64 v[{r}:{r+1}], v15 offset:{jm*2048+jn*512}')
    for i in range(4): a.emit(f'v_mov_b32 v{20+i}, 0')
    a.emit(f's_mov_b32 s3, {16*2048}')
    a.emit('s_mov_b32 s10, 0x3f803f80')
    D = 32
    for jm in range(2):
        for p in range(2):
            d = D + (jm * 2 + p) * 4
            for q in range(2):
                c = acc(2 * p + q, jm); r = RES + ((2 * p + q) * 2 + jm) * 2
                a.emit(f's_waitcnt lgkmcnt({7 - (jm * 4 + 2 * p + q)})')
                for h in range(2):
                    a.emit(f'v_lshlrev_b32 v{184+2*h}, 16, v{r+h}')
                    a.emit(f'v_and_b32 v{185+2*h}, s11, v{r+h}')
                for h in range(2):
                    a.emit(f'v_pk_add_f32 v[{c+2*h}:{c+2*h+1}], v[{c+2*h}:{c+2*h+1}], v[{184+2*h}:{185+2*h}]')
                a.emit(f'v_cvt_pk_bf16_f32 v{d+2*q}, v{c}, v{c+1}')
                a.emit(f'v_cvt_pk_bf16_f32 v{d+2*q+1}, v{c+2}, v{c+3}')
            a.emit('s_nop 1')
            a.emit(f'v_permlane16_swap_b32 v{d}, v{d+2}')
            a.emit(f'v_permlane16_swap_b32 v{d+1}, v{d+3}')
            a.emit(f'buffer_store_dwordx4 v[{d}:{d+3}], v{VO}, s[{SO}:{SO+3}], {"s3" if jm else "0"} offen offset:{p*PSTEP}{stf(kind)}')
    for jm in range(2):
        for i in range(8):
            d = D + jm * 8 + i
            a.emit(f'v_dot2_f32_bf16 v{20+jm}, v{d}, s10, v{20+jm}')
            a.emit(f'v_dot2_f32_bf16 v{22+jm}, v{d}, v{d}, v{22+jm}')
    a.emit('s_nop 2')
    a.emit('v_permlane32_swap_b32 v20, v21')
    a.emit('v_permlane32_swap_b32 v22, v23')
    a.emit('v_add_f32 v20, v20, v21')
    a.emit('v_add_f32 v22, v22, v23')
    a.emit('s_nop 1')
    a.emit('v_permlane16_swap_b32 v20, v22')
    a.emit('v_add_f32 v20, v20, v22')
    a.emit(f'buffer_store_dword v20, v18, s[{ST}:{ST+3}], 0 offen{stf(kind)}')
    stamps_out(a, kind)
    a.emit('s_endpgm')
    a.label(f'L_{kind}_loader')
    L = Loader(a, kind, K, lda2, ldw2, [0], 128, S, STAGE, rot=int(ENV('ROT_' + kind.upper(), '0')), xblk=True)
    L.setup()
    a.emit('s_waitcnt lgkmcnt(0)')
    if kind == 'wo':
        srd(a, SX, 'ws', WS_O, 4 * MB); srd(a, SW, 'wo', 0, 2 * MB)
    else:
        srd(a, SX, 'ws', WS_H, 2048 * 7168); srd(a, SW, 'w2', 0, 3584 * 2048)
    ns = side(Asm(), 'issue')
    def tail():
        if kind == 'wo':
            srd(a, SR, 'xs', 0, 4 * MB)
            L.xoff_rows(2048)
        else:
            srd(a, SR, 'ws', WS_X1, 4 * MB)
            L.xoff_blk(2048)
        a.emit(f's_lshl_b32 s4, s{S_NT}, {7 if kind == "wo" else 11}')
        for x in L.xdma(S_XD, LRES, SR, 4, kind == 'w2'): a.emit(x)
        side(a, 'issue')
    final = lambda: a.emit(f's_waitcnt vmcnt({ns})')
    if DELTA:
        a.emit(f's_cmp_eq_u32 s{S_WV}, 4')
        a.emit(f's_cbranch_scc1 L_{kind}_lead')
        L.run('f', d=S - 1 - DELTA, tail_issue=tail, ntail_vm=ns + 4, final=final)
        a.emit(f's_branch L_{kind}_side')
        a.label(f'L_{kind}_lead')
    L.run('l', d=S - 1, tail_issue=tail, ntail_vm=ns + 4, final=final)
    a.label(f'L_{kind}_side')
    side(a, 'finish')
    a.label(end)
    a.emit('s_endpgm')
    loader_first(a, kind)
    a(KD.format(name=f'{kind}l0_kernel'))
    stub(a, f'{kind}l1_kernel', body, 1, tsidx + 4, False)
    a.label(f'L_{kind}_c1')
    a(KD.format(name=f'{kind}l1_kernel'))
    return S * STAGE + 16384
```

```python
from common import *

def big_loop(a, tag, N, S, STAGE, naddr, VB, VA, reads, mf, variants=None, select=None, post=None):
    def addr():
        o = [f'v_add_u32_e64 v{VA+i}, s{S_SLOT}, v{VB+i}' for i in range(naddr)]
        o += [f's_add_u32 s{S_SLOT}, s{S_SLOT}, {STAGE}', f's_cmp_eq_u32 s{S_SLOT}, {S*STAGE}', f's_cselect_b32 s{S_SLOT}, 0, s{S_SLOT}']
        return o
    a.emit(f's_mov_b32 s{S_SLOT}, 0')
    for x in addr(): a.emit(x)
    a.emit(f's_mov_b32 s{S_CNT}, {N}')
    a.emit('s_barrier')
    stamp(a, 1)
    for x in reads(0, 0): a.emit(x)
    a.emit('s_waitcnt lgkmcnt(0)')
    def loop(nm, m):
        a('.p2align 3')
        a.label(f'L_{tag}_loop{nm}')
        ad = addr()
        ad[-1] += f'\n  s_sub_u32 s{S_CNT}, s{S_CNT}, 1'
        interleave(a, m(0), reads(1, 1) + ad, lead=1, per=1)
        a.emit('s_waitcnt lgkmcnt(0)')
        a.emit('s_barrier')
        interleave(a, m(1), reads(0, 0) + [f's_cmp_lg_u32 s{S_CNT}, 0\n  s_nop 0'], lead=1, per=1)
        a.emit('s_waitcnt lgkmcnt(0)')
        a.emit(f's_cbranch_scc1 L_{tag}_loop{nm}')
    if variants:
        select()
        vs = list(variants.items())
        for i, (nm, m) in enumerate(vs):
            loop(nm, m)
            if i + 1 < len(vs): a.emit(f's_branch L_{tag}_post')
        a.label(f'L_{tag}_post')
        post()
        a.emit(f's_branch L_{tag}_exit')
    loop('', mf)
    a.label(f'L_{tag}_exit')
    stamp(a, 2)

def stats_loads(a, vd, halo):
    a.emit(f's_and_b32 s3, s{S_WV}, 3')
    a.emit(f's_lshl_b32 s4, s{S_MT}, 7')
    a.emit('s_lshl_b32 s5, s3, 6')
    a.emit('s_add_u32 s5, s5, s4')
    a.emit('v_add_u32 v2, s5, v1')
    a.emit('s_sub_u32 s4, s4, 16')
    a.emit('v_and_b32 v3, 15, v1')
    a.emit('v_add_u32 v3, s4, v3')
    a.emit('v_max_i32 v3, 0, v3')
    a.emit('s_cmp_ge_u32 s3, 2')
    a.emit('s_cselect_b64 vcc, -1, 0')
    a.emit('v_cndmask_b32 v2, v2, v3, vcc')
    a.emit('v_lshlrev_b32 v2, 3, v2')
    a.emit('s_mov_b32 s3, 0')
    for j in range(16):
        a.emit(f'buffer_load_dwordx2 v[{vd+2*j}:{vd+2*j+1}], v2, s[{ST}:{ST+3}], s3 offen')
        if j < 15: a.emit('s_add_u32 s3, s3, 16384')
    return 16

def stats_finish(a, vs):
    a.emit(f'v_mul_f32 v{vs}, 0x3a800000, v{vs}')
    a.emit(f'v_mul_f32 v{vs+1}, 0x3a800000, v{vs+1}')
    a.emit(f'v_fma_f32 v{vs+1}, -v{vs}, v{vs}, v{vs+1}')
    a.emit(f'v_max_f32 v{vs+1}, 0, v{vs+1}')
    a.emit(f'v_add_f32 v{vs+1}, 0x3727c5ac, v{vs+1}')
    a.emit(f'v_rsq_f32 v{vs+1}, v{vs+1}')
    a.emit('s_nop 0')

def stats_reduce_store(a, vd, LST):
    for j in range(1, 8):
        a.emit(f'v_add_f32 v{vd}, v{vd}, v{vd+2*j}')
        a.emit(f'v_add_f32 v{vd+1}, v{vd+1}, v{vd+2*j+1}')
        a.emit(f'v_add_f32 v{vd+16}, v{vd+16}, v{vd+16+2*j}')
        a.emit(f'v_add_f32 v{vd+17}, v{vd+17}, v{vd+17+2*j}')
    a.emit(f'v_add_f32 v{vd}, v{vd}, v{vd+16}')
    a.emit(f'v_add_f32 v{vd+1}, v{vd+1}, v{vd+17}')
    stats_finish(a, vd)
    a.emit(f's_and_b32 s3, s{S_WV}, 3')
    a.emit('s_lshl_b32 s5, s3, 6')
    a.emit('s_add_u32 s5, s5, 16')
    a.emit('v_add_u32 v2, s5, v1')
    a.emit('v_and_b32 v3, 15, v1')
    a.emit('s_cmp_ge_u32 s3, 2')
    a.emit('s_cselect_b64 vcc, -1, 0')
    a.emit('v_cndmask_b32 v2, v2, v3, vcc')
    a.emit('v_lshlrev_b32 v2, 2, v2')
    a.emit(f'v_add_u32 v2, {LST}, v2')
    a.emit(f'ds_write2_b32 v2, v{vd}, v{vd+1} offset0:0 offset1:160')

def gen_w1(a, tsidx, side, cs=(16, 16384, 0)):
    kind = 'w1'
    K = 1024; lda2 = 2048; ldw2 = 7168; ldo2 = 7168
    S = 3; LM = int(ENV('LM_W1', '3'))
    STAGE = 16384 + 4 * 8192
    LST = S * STAGE
    LCS = LST + 1280
    N = 16
    body = f'L_{kind}_body'; end = f'L_{kind}_end'
    VB, VA, VO = 4, 20, 12
    F = [32, 80]; ACC = 128
    acc = lambda jn, jm: ACC + (jn * 4 + jm) * 4
    fx = lambda s, jm: F[s] + jm * 4
    fw = lambda s, jn: F[s] + 16 + jn * 4
    a.label(f'L_{kind}_c0')
    stub(a, f'{kind}l0_kernel', body, 0, tsidx, True)
    a.label(body)
    tile_map(a, LM, end)
    a.emit(f's_cmp_ge_u32 s{S_WV}, 4')
    a.emit(f's_cbranch_scc1 L_{kind}_loader')
    a.emit(f's_and_b32 s{S_WM}, s{S_WV}, 1')
    a.emit(f's_lshr_b32 s{S_WN}, s{S_WV}, 1')
    a.emit('v_and_b32 v3, 15, v1')
    a.emit('v_lshrrev_b32 v2, 4, v1')
    a.emit(f's_lshl_b32 s8, s{S_WM}, 13')
    a.emit(f'v_lshl_add_u32 v{VB}, v1, 4, s8')
    wbase(a, 13, 17)
    a.emit(f's_and_b32 s8, s{S_NT}, 1')
    a.emit('s_lshl_b32 s8, s8, 1')
    a.emit(f's_lshl_b32 s9, s{S_WN}, 3')
    a.emit(f's_add_u32 s11, s8, s{S_WN}')
    a.emit('s_add_u32 s8, s8, s9')
    for r in range(5):
        a.emit(f's_add_u32 s9, s8, {r}' if r < 4 else 's_add_u32 s9, s11, 6')
        a.emit('s_and_b32 s10, s9, 3')
        a.emit('s_lshl_b32 s10, s10, 5')
        a.emit('s_lshr_b32 s9, s9, 2')
        a.emit('s_lshl_b32 s9, s9, 13')
        a.emit('s_add_u32 s9, s9, 16384')
        a.emit(f'v_xor_b32 v{VB+1+r}, s10, v13')
        a.emit(f'v_add_u32 v{VB+1+r}, s9, v{VB+1+r}')
    a.emit(f's_lshl_b32 s8, s{S_MT}, 7')
    a.emit(f's_lshl_b32 s9, s{S_WM}, 6')
    a.emit('s_add_u32 s8, s8, s9')
    a.emit(f's_add_u32 s8, s8, s{S_NT}')
    a.emit(f's_mul_i32 s8, s8, {ldo2}')
    a.emit('v_and_b32 v16, 1, v2')
    a.emit('v_lshrrev_b32 v17, 1, v2')
    a.emit('v_lshlrev_b32 v14, 8, v17')
    a.emit('v_lshl_add_u32 v14, v3, 4, v14')
    a.emit('v_add_u32 v14, s8, v14')
    a.emit(f's_lshl_b32 s9, s{S_WN}, 12')
    a.emit(f'v_lshl_add_u32 v{VO}, v16, 9, v14')
    a.emit(f'v_add_u32 v{VO}, s9, v{VO}')
    a.emit(f'v_mul_u32_u24 v16, {16*ldo2}, v16')
    a.emit(f's_lshl_b32 s9, s{S_WN}, 9')
    a.emit(f'v_add3_u32 v{VO+1}, v16, v14, s9')
    a.emit(f's_lshl_b32 s9, s{S_WM}, 8')
    a.emit(f's_add_u32 s9, s9, {LST + 64}')
    a.emit('v_lshl_add_u32 v14, v3, 2, s9')
    a.emit(f's_lshl_b32 s9, s{S_WN}, 9')
    a.emit(f's_add_u32 s9, s9, {LCS}')
    a.emit('v_lshl_add_u32 v15, v2, 4, s9')
    a.emit(f's_lshl_b32 s9, s{S_WN}, 6')
    a.emit(f's_add_u32 s9, s9, {LCS}')
    a.emit('v_lshl_add_u32 v16, v2, 4, s9')
    for i in range(112): a.emit(f'v_mov_b32 v{ACC+i}, 0')
    a.emit('s_waitcnt lgkmcnt(0)')
    srd(a, SO, 'ws', WS_H, 2048 * 7168)
    code_touch(a, 'L_w2_c0', 'L_w2_c1', 64)
    def reads(s, ks):
        o = []
        if 'noread' in DBG: return o
        for jm in range(4):
            o.append(f'ds_read_b128 v[{fx(s,jm)}:{fx(s,jm)+3}], v{VA} offset:{jm*2048+ks*1024}')
        for jn in range(7):
            for h in range(2):
                r = fw(s, jn) + 2 * h
                o.append(f'ds_read_b64_tr_b16 v[{r}:{r+1}], v{VA+1+(jn&3 if jn < 6 else 4)} offset:{(jn>>2 if jn < 6 else 0)*8192+ks*4096+h*512}')
        return o
    def mf(s):
        o = []
        if 'nomfma' in DBG: return ['s_nop 0']
        for jn in range(7):
            for jm in range(4):
                c = acc(jn, jm)
                o.append(f'v_mfma_f32_16x16x32_bf16 v[{c}:{c+3}], v[{fw(s,jn)}:{fw(s,jn)+3}], v[{fx(s,jm)}:{fx(s,jm)+3}], v[{c}:{c+3}]')
        return o
    big_loop(a, kind, N, S, STAGE, 6, VB, VA, reads, mf)
    CS = 32; BI = 60; STT = 88; CK = 96; T = 100; D = 108
    for jm in range(4):
        a.emit(f'ds_read2_b32 v[{STT+2*jm}:{STT+2*jm+1}], v14 offset0:{16*jm} offset1:{160+16*jm}')
    for jn in range(7):
        a.emit(f'ds_read_b128 v[{CS+4*jn}:{CS+4*jn+3}], v{15 if jn < 6 else 16} offset:{jn*64}')
        a.emit(f'ds_read_b128 v[{BI+4*jn}:{BI+4*jn+3}], v{15 if jn < 6 else 16} offset:{1024+jn*64}')
    c0 = -2.0 * 0.7978845608028654 * 1.4426950408889634
    c1 = c0 * 0.044715
    a.emit(f'v_mov_b32 v{CK}, {f2u(c0):#x}')
    a.emit(f'v_mov_b32 v{CK+1}, {f2u(c1):#x}')
    a.emit(f'v_mov_b32 v{CK+2}, 1.0')
    a.emit('s_waitcnt lgkmcnt(0)')
    for jm in range(4):
        a.emit(f'v_mul_f32 v{STT+2*jm}, v{STT+2*jm}, v{STT+2*jm+1}')
    def tile_math(jn, jm, d):
        c = acc(jn, jm)
        seqs = []
        ST2 = f'v[{STT+2*jm}:{STT+2*jm+1}]'
        for q in range(2):
            x = c + 2 * q; t = T + 2 * q + 4 * (jn & 1)
            X = f'v[{x}:{x+1}]'; TT = f'v[{t}:{t+1}]'
            seqs.append([
              f'v_pk_fma_f32 {TT}, v[{CS+4*jn+2*q}:{CS+4*jn+2*q+1}], {ST2}, v[{BI+4*jn+2*q}:{BI+4*jn+2*q+1}] op_sel:[0,0,0] op_sel_hi:[1,0,1] neg_lo:[0,1,0] neg_hi:[0,1,0]',
              f'v_pk_fma_f32 {X}, {X}, {ST2}, {TT} op_sel:[0,1,0] op_sel_hi:[1,1,1]',
              f'v_pk_mul_f32 {TT}, {X}, {X}',
              f'v_pk_fma_f32 {TT}, {TT}, v[{CK}:{CK+1}], v[{CK}:{CK+1}] op_sel:[0,1,0] op_sel_hi:[1,1,0]',
              f'v_pk_mul_f32 {TT}, {TT}, {X}',
              f'v_exp_f32 v{t}, v{t}\n  v_exp_f32 v{t+1}, v{t+1}',
              f'v_pk_add_f32 {TT}, {TT}, v[{CK+2}:{CK+3}] op_sel_hi:[1,0]',
              f'v_rcp_f32 v{t}, v{t}\n  v_rcp_f32 v{t+1}, v{t+1}',
              f'v_pk_mul_f32 {X}, {X}, {TT}',
              f'v_cvt_pk_bf16_f32 v{d+q}, v{x}, v{x+1}'])
        for ia, ib in zip(*seqs):
            a.emit(ia); a.emit(ib)
    cnt = [0]
    def pair(t0, t1, vo, soff):
        d = D + 4 * (cnt[0] % 4); cnt[0] += 1
        tile_math(*t0, d); tile_math(*t1, d + 2)
        a.emit(f's_mov_b32 s3, {soff}')
        a.emit('s_nop 0')
        a.emit(f'v_permlane16_swap_b32 v{d}, v{d+2}')
        a.emit(f'v_permlane16_swap_b32 v{d+1}, v{d+3}')
        a.emit(f'buffer_store_dwordx4 v[{d}:{d+3}], v{vo}, s[{SO}:{SO+3}], s3 offen{stf(kind)}')
    for jm in range(4):
        for p in range(3):
            pair((2 * p, jm), (2 * p + 1, jm), VO, jm * 16 * ldo2 + p * 1024)
        if jm & 1:
            pair((6, jm - 1), (6, jm), VO + 1, (jm - 1) * 16 * ldo2 + 3072)
    stamps_out(a, kind)
    a.emit('s_endpgm')
    a.label(f'L_{kind}_loader')
    L = Loader(a, kind, K, lda2, ldw2, [128 * i for i in range(4)], 448, S, STAGE, rot=int(ENV('ROT_W1', '0')), xblk=True)
    L.setup()
    a.emit('s_waitcnt lgkmcnt(0)')
    srd(a, SX, 'ws', WS_X1, 4 * MB); srd(a, SW, 'w1', 0, 1024 * 7168)
    srd(a, ST, 'ws', WS_ST, 16 * 16384); srd(a, SC, 'ws', WS_CS, 16 * 16384); srd(a, SB, 'b1', 0, 7168)
    def tail():
        stats_loads(a, 32, False)
        a.emit(f's_mul_i32 s4, s{S_NT}, 224')
        a.emit('s_sub_u32 s4, s4, 256')
        a.emit('v_add_u32 v3, s4, v0')
        a.emit('v_lshlrev_b32 v2, 2, v3')
        a.emit('v_lshlrev_b32 v3, 1, v3')
        a.emit(f's_mov_b32 s3, {cs[2]}')
        for j in range(16):
            if j < cs[0]:
                a.emit(f'buffer_load_dword v{64+j}, v2, s[{SC}:{SC+3}], s3 offen')
                if j < cs[0] - 1: a.emit(f's_add_u32 s3, s3, {cs[1]}')
            else:
                a.emit(f'v_mov_b32 v{64+j}, 0')
        a.emit(f'buffer_load_ushort v80, v3, s[{SB}:{SB+3}], 0 offen')
        side(a, 'issue')
    ns = side(Asm(), 'issue')
    def final():
        a.emit(f's_waitcnt vmcnt({ns})')
        stats_reduce_store(a, 32, LST)
        for j in range(8): a.emit(f'v_add_f32 v{64+j}, v{64+j}, v{72+j}')
        for j in range(4): a.emit(f'v_add_f32 v{64+j}, v{64+j}, v{68+j}')
        a.emit('v_add_f32 v64, v64, v65')
        a.emit('v_add_f32 v66, v66, v67')
        a.emit('v_add_f32 v64, v64, v66')
        a.emit('v_lshlrev_b32 v80, 16, v80')
        a.emit('v_lshlrev_b32 v2, 2, v0')
        a.emit(f'v_add_u32 v2, {LCS - 1024}, v2')
        a.emit('ds_write_b32 v2, v64')
        a.emit('ds_write_b32 v2, v80 offset:1024')
        a.emit('s_waitcnt lgkmcnt(0)')
    import sides
    L.run(tail_issue=tail, ntail_vm=17 + cs[0] + ns, final=final, post=sides.stouch_post(a, kind))
    side(a, 'finish')
    a.label(end)
    a.emit('s_endpgm')
    loader_first(a, kind)
    a(KD.format(name=f'{kind}l0_kernel'))
    stub(a, f'{kind}l1_kernel', body, 1, tsidx + 4, False)
    a.label(f'L_{kind}_c1')
    a(KD.format(name=f'{kind}l1_kernel'))
    return LCS + 2048
```

```python
from common import *
from gemmw1 import big_loop, stats_loads, stats_finish, stats_reduce_store

def gen_qkv(a, tsidx, side):
    kind = 'attn'
    K = 1024; lda2 = 2048; ldw2 = 6144
    S = 3; LM = int(ENV('LM_QKV', '3'))
    XH = 16384 + 6 * 4096
    STAGE = XH + 2048
    LST = S * STAGE
    EX = 1024
    N = 16
    body = f'L_{kind}_body'; end = f'L_{kind}_end'
    VB, VA = 4, 10
    VXW, VPE, VPO, VCE, VCO, VVE, VVO, VS1, VS4, VKA, VKB, MAP, MAC, MBP, MBC, VO = range(16, 32)
    M_ODD, M_UPA, M_UPB, M_FA, M_FB = 48, 50, 52, 54, 14
    F = [32, 76]; ACC = 128; HACC = 224; ONES = 236
    acc = lambda jn, jm: ACC + (jn * 4 + jm) * 4
    fx = lambda s, jm: F[s] + jm * 4
    fw = lambda s, jn: F[s] + 20 + jn * 4
    a.label(f'L_{kind}_c0')
    stub(a, f'{kind}l0_kernel', body, 0, tsidx, True)
    a.label(body)
    tile_map(a, LM, end)
    a.emit(f's_cmp_ge_u32 s{S_WV}, 4')
    a.emit(f's_cbranch_scc1 L_{kind}_loader')
    a.emit(f's_and_b32 s{S_WM}, s{S_WV}, 1')
    a.emit(f's_lshr_b32 s{S_WN}, s{S_WV}, 1')
    a.emit('v_and_b32 v3, 31, v1')
    a.emit('v_lshlrev_b32 v3, 2, v3')
    a.emit(f'v_add_u32 v3, {XH}, v3')
    for i in range(4): a.emit(f'v_mov_b32 v{ONES+i}, 0x3f803f80')
    a.emit(f'ds_write_b32 v3, v{ONES}')
    a.emit(f'ds_write_b32 v3, v{ONES} offset:{STAGE}')
    a.emit(f'v_add_u32 v3, {2*STAGE}, v3')
    a.emit(f'ds_write_b32 v3, v{ONES}')
    a.emit('v_and_b32 v3, 15, v1')
    a.emit('v_lshrrev_b32 v2, 4, v1')
    a.emit('v_lshrrev_b32 v33, 1, v3')
    a.emit(f's_lshl_b32 s8, s{S_WM}, 13')
    for ks in range(2):
        if ks: a.emit(f'v_add_u32 v{VB+ks}, 4, v2')
        a.emit(f'v_xor_b32 v{VB+ks}, v{VB+ks if ks else 2}, v33')
        a.emit(f'v_lshlrev_b32 v{VB+ks}, 4, v{VB+ks}')
        a.emit(f'v_lshl_add_u32 v{VB+ks}, v3, 7, v{VB+ks}')
        a.emit(f'v_add_u32 v{VB+4+ks}, {XH}, v{VB+ks}')
        a.emit(f'v_add_u32 v{VB+ks}, s8, v{VB+ks}')
    wbase(a, 34, 33)
    a.emit('v_and_b32 v35, 1, v2')
    a.emit(f'v_xor_b32 v35, s{S_WM}, v35')
    a.emit(f's_lshl_b32 s8, s{S_WV}, 5')
    a.emit('v_xor_b32 v34, s8, v34')
    a.emit(f'v_add_u32 v{VB+2}, 16384, v34')
    a.emit(f'v_xor_b32 v{VB+3}, 32, v{VB+2}')
    a.emit(f's_lshl_b32 s8, s{S_MT}, 7')
    a.emit(f's_lshl_b32 s9, s{S_WM}, 6')
    a.emit('s_add_u32 s8, s8, s9')
    a.emit(f's_add_u32 s10, s8, s{S_NT}')
    a.emit('s_lshl_b32 s10, s10, 11')
    a.emit(f's_lshl_b32 s11, s{S_WN}, 10')
    a.emit('s_add_u32 s10, s10, s11')
    a.emit('v_lshl_add_u32 v33, v3, 4, s10')
    a.emit('v_lshl_add_u32 v33, v35, 9, v33')
    a.emit('v_lshrrev_b32 v34, 1, v2')
    a.emit(f'v_lshl_add_u32 v{VO}, v34, 8, v33')
    a.emit(f's_mul_i32 s10, s{S_WN}, 12288')
    a.emit(f's_add_u32 s10, s10, {EX}')
    a.emit(f's_lshl_b32 s11, s{S_WM}, 10')
    a.emit('s_add_u32 s4, s10, s11')
    a.emit('s_sub_u32 s5, s10, s11')
    a.emit(f's_mul_i32 s6, s{S_WM}, 6144')
    a.emit(f'v_lshl_add_u32 v{VXW}, v1, 4, s4')
    a.emit(f'v_add_u32 v{VPE}, s6, v{VXW}')
    a.emit(f'v_lshl_add_u32 v{VPO}, v1, 4, s5')
    a.emit(f'v_add_u32 v{VPO}, s6, v{VPO}')
    a.emit(f'v_lshl_add_u32 v{VCE}, v2, 8, s4')
    a.emit(f'v_lshl_add_u32 v{VCO}, v2, 8, s5')
    a.emit(f'v_lshl_add_u32 v{VVE}, v3, 4, s4')
    a.emit(f'v_lshl_add_u32 v{VVO}, v3, 4, s5')
    a.emit(f's_lshl_b32 s10, s{S_WM}, 8')
    a.emit(f's_add_u32 s10, s10, {LST}')
    a.emit(f'v_lshl_add_u32 v{VS1}, v3, 2, s10')
    a.emit(f'v_lshl_add_u32 v{VS4}, v2, 4, s10')
    a.emit('v_and_b32 v33, 1, v3')
    a.emit(f'v_cmp_eq_u32 s[{M_ODD}:{M_ODD+1}], 1, v33')
    a.emit('v_lshl_add_u32 v34, v2, 2, v33')
    a.emit('v_add_u32 v35, 2, v34')
    a.emit(f'v_cmp_gt_u32 s[{M_UPA}:{M_UPA+1}], v34, v3')
    a.emit(f'v_cmp_gt_u32 s[{M_UPB}:{M_UPB+1}], v35, v3')
    a.emit('v_mov_b32 v36, 0xffff')
    a.emit('v_mov_b32 v37, 0xffff0000')
    a.emit(f'v_cndmask_b32 v36, v36, v37, s[{M_ODD}:{M_ODD+1}]')
    a.emit(f's_add_u32 s10, s10, {640 + 64}')
    a.emit('v_lshl_add_u32 v34, v34, 2, s10')
    a.emit('v_lshl_add_u32 v35, v35, 2, s10')
    a.emit('v_subrev_u32 v38, 64, v34')
    a.emit('v_subrev_u32 v39, 64, v35')
    a.emit(f'v_cndmask_b32 v{VKA}, v34, v38, s[{M_UPA}:{M_UPA+1}]')
    a.emit(f'v_cndmask_b32 v{VKB}, v35, v39, s[{M_UPB}:{M_UPB+1}]')
    a.emit(f'v_cndmask_b32 v{MAP}, 0, v36, s[{M_UPA}:{M_UPA+1}]')
    a.emit(f'v_cndmask_b32 v{MBP}, 0, v36, s[{M_UPB}:{M_UPB+1}]')
    a.emit(f'v_xor_b32 v{MAC}, v{MAP}, v36')
    a.emit(f'v_xor_b32 v{MBC}, v{MBP}, v36')
    a.emit('s_cmp_eq_u32 s8, 0')
    a.emit(f's_cselect_b64 s[{M_FA}:{M_FA+1}], s[{M_UPA}:{M_UPA+1}], 0')
    a.emit(f's_cselect_b64 s[{M_FB}:{M_FB+1}], s[{M_UPB}:{M_UPB+1}], 0')
    for i in list(range(120, 236)) + list(range(240, 256)): a.emit(f'v_mov_b32 v{i}, 0')
    a.emit('s_waitcnt lgkmcnt(0)')
    srd(a, SO, 'ws', WS_O, 4 * MB)
    def warm():
        a.emit(f's_cmp_lg_u32 s{S_LAYER}, 0')
        a.emit(f's_cbranch_scc1 L_{kind}_nowarm')
        a.emit('s_lshl_b32 s3, s2, 2')
        a.emit(f's_add_u32 s3, s3, s{S_WV}')
        srd(a, SX, 'xs', 0, 4 * MB); srd(a, SW, 'wqkv', 0, 6 * MB)
        a.emit('v_min_u32 v126, 31, v1')
        a.emit('v_min_u32 v127, 47, v1')
        a.emit('v_lshlrev_b32 v126, 7, v126')
        a.emit('v_lshlrev_b32 v127, 7, v127')
        a.emit('s_lshl_b32 s4, s3, 12')
        a.emit(f's_mul_i32 s5, s3, {48 * 128}')
        a.emit(f'buffer_load_dword v2, v126, s[{SX}:{SX+3}], s4 offen')
        a.emit(f'buffer_load_dword v3, v127, s[{SW}:{SW+3}], s5 offen')
        a.emit('v_mov_b32 v126, 0')
        a.emit('v_mov_b32 v127, 0')
        a.label(f'L_{kind}_nowarm')
    WARM = ENV('WARM', '0')
    if WARM == '1': warm()
    def reads(s, ks):
        o = []
        if 'noread' in DBG: return o
        for jm in range(4):
            o.append(f'ds_read_b128 v[{fx(s,jm)}:{fx(s,jm)+3}], v{VA+ks} offset:{jm*2048}')
        o.append(f'ds_read_b128 v[{fx(s,4)}:{fx(s,4)+3}], v{VA+4+ks}')
        for jn in range(6):
            for h in range(2):
                r = fw(s, jn) + 2 * h
                o.append(f'ds_read_b64_tr_b16 v[{r}:{r+1}], v{VA+2+(jn&1)} offset:{(jn>>1)*8192+ks*4096+h*512}')
        return o
    def mfma(c, x, y, cin=None):
        return f'v_mfma_f32_16x16x32_bf16 v[{c}:{c+3}], v[{x}:{x+3}], v[{y}:{y+3}], ' + (f'v[{c}:{c+3}]' if cin is None else cin)
    def mf(s):
        o = []
        if 'nomfma' in DBG: return ['s_nop 0']
        for jn in range(6):
            for jm in range(5):
                if jm == 4 and jn & 1: continue
                c = acc(jn, jm) if jm < 4 else HACC + (jn >> 1) * 4
                o.append(mfma(c, fw(s, jn), fx(s, jm)) if jn < 4 else mfma(c, fx(s, jm), fw(s, jn)))
        return o
    SA = [(240, 244), (248, 252), (120, 124)]
    def mfv(hh):
        def f(s):
            o = mf(s)
            ex = []
            for i, jm in enumerate([2 * hh, 2 * hh + 1] + ([4] if hh == 0 else [])):
                ex.append(mfma(SA[i][0], ONES, fx(s, jm)))
                ex.append(mfma(SA[i][1], fx(s, jm), fx(s, jm)))
            return ex + o
        return f
    def select():
        if WARM == '2': warm(); a.emit('s_nop 1')
        a.emit(f's_cmp_lg_u32 s{S_LAYER}, 0')
        a.emit(f's_cbranch_scc1 L_{kind}_loop')
        a.emit(f's_cmp_lg_u32 s{S_WN}, 0')
        a.emit(f's_cbranch_scc1 L_{kind}_loopb')
    def post():
        a.emit('v_and_b32 v32, 3, v1')
        a.emit('v_cmp_eq_u32 s[4:5], 1, v32')
        a.emit('v_cmp_eq_u32 s[6:7], 2, v32')
        a.emit('v_cmp_eq_u32 s[8:9], 3, v32')
        a.emit('v_bfe_u32 v33, v1, 2, 2')
        a.emit('v_lshrrev_b32 v34, 4, v1')
        a.emit('v_cmp_eq_u32 s[10:11], v33, v34')
        a.emit(f's_lshl_b32 s3, s{S_WN}, 7')
        a.emit(f'v_add_u32 v35, s3, v{VS1}')
        a.emit('v_and_b32 v36, 15, v1')
        a.emit(f's_cmp_eq_u32 s{S_WV}, 0')
        a.emit('s_cselect_b32 s3, 0, 576')
        a.emit(f's_add_u32 s3, s3, {LST}')
        a.emit('v_lshl_add_u32 v36, v36, 2, s3')
        for (sm, sq) in SA:
            a.emit(f'v_cndmask_b32 v{sm+1}, v{sq}, v{sq+1}, s[4:5]')
        for (sm, sq) in SA:
            a.emit(f'v_cndmask_b32 v{sm+1}, v{sm+1}, v{sq+2}, s[6:7]')
        for (sm, sq) in SA:
            a.emit(f'v_cndmask_b32 v{sm+1}, v{sm+1}, v{sq+3}, s[8:9]')
        for (sm, sq) in SA: stats_finish(a, sm)
        a.emit('s_mov_b64 exec, s[10:11]')
        a.emit(f'ds_write2_b32 v35, v{SA[0][0]}, v{SA[0][0]+1} offset0:16 offset1:176')
        a.emit(f'ds_write2_b32 v35, v{SA[1][0]}, v{SA[1][0]+1} offset0:32 offset1:192')
        a.emit(f'ds_write2_b32 v36, v{SA[2][0]}, v{SA[2][0]+1} offset0:0 offset1:160')
        a.emit('s_mov_b64 exec, -1')
        a.emit('s_waitcnt lgkmcnt(0)')
        a.emit('s_barrier')
    big_loop(a, kind, N, S, STAGE, 6, VB, VA, reads, mf, variants={'a': mfv(0), 'b': mfv(1)}, select=select, post=post)
    PR = 32
    CS = 48
    CV = 64
    MS = 66
    RK = 76
    M4 = 84
    R4 = 104
    VV = [240, 224]
    for b in range(5):
        a.emit(f'ds_read2_b32 v[{MS+2*b}:{MS+2*b+1}], v{VS1} offset0:{16*b} offset1:{160+16*b}')
    for p in range(2):
        a.emit(f'ds_read2_b32 v[{RK+2*p}:{RK+2*p+1}], v{VKA} offset0:{32*p} offset1:{32*p+16}')
        a.emit(f'ds_read2_b32 v[{RK+4+2*p}:{RK+5+2*p}], v{VKB} offset0:{32*p} offset1:{32*p+16}')
    for c in range(3):
        a.emit(f'ds_write_b128 v{VXW}, v[{HACC+4*c}:{HACC+4*c+3}] offset:{2048*c}')
    a.emit(f's_cmp_eq_u32 s{S_WM}, 1')
    a.emit(f's_cbranch_scc1 L_{kind}_nop3')
    for t in range(2, 6):
        a.emit(f'ds_write_b128 v{VXW}, v[{acc(t,3)}:{acc(t,3)+3}] offset:{6144+1024*t}')
    a.label(f'L_{kind}_nop3')
    for b in range(5):
        a.emit(f'ds_read_b128 v[{M4+4*b}:{M4+4*b+3}], v{VS4} offset:{64*b}')
        a.emit(f'ds_read_b128 v[{R4+4*b}:{R4+4*b+3}], v{VS4} offset:{640+64*b}')
    a.emit('s_waitcnt lgkmcnt(10)')
    a.emit('s_barrier')
    for t in range(4):
        a.emit(f'ds_read_b128 v[{CS+4*t}:{CS+4*t+3}], v{VCO if t&1 else VCE} offset:{1024*t}')
    for t in range(2):
        a.emit(f'ds_read_b32 v{CV+t}, v{VVO if t else VVE} offset:{4096+1024*t}')
    for t in range(4):
        a.emit(f'ds_read_b128 v[{PR+4*t}:{PR+4*t+3}], v{VPO if t&1 else VPE} offset:{2048+1024*t}')
    sc = 32 ** -0.5 * 1.4426950408889634
    for b in range(4):
        a.emit(f'v_mul_f32 v{MS+2*b+3}, {f2u(sc):#x}, v{MS+2*b+3}')
    for b in range(4):
        a.emit(f'v_mul_f32 v{RK+b}, v{RK+b}, v{MS+2*b+3}')
        a.emit(f'v_mul_f32 v{RK+4+b}, v{RK+4+b}, v{MS+2*b+3}')
    a.emit('s_waitcnt lgkmcnt(6)')
    def qk(x, y, cs, b, d):
        m = f'v[{MS+2*b}:{MS+2*b+1}]'
        for (z, c) in ((x, cs), (y, cs + 4)):
            for h in range(2):
                a.emit(f'v_pk_fma_f32 v[{z+2*h}:{z+2*h+1}], v[{c+2*h}:{c+2*h+1}], {m}, v[{z+2*h}:{z+2*h+1}] op_sel:[0,0,0] op_sel_hi:[1,0,1] neg_lo:[0,1,0] neg_hi:[0,1,0]')
        a.emit(f'v_cvt_pk_bf16_f32 v{d}, v{x}, v{x+1}')
        a.emit(f'v_cvt_pk_bf16_f32 v{d+1}, v{x+2}, v{x+3}')
        a.emit(f'v_cvt_pk_bf16_f32 v{d+2}, v{y}, v{y+1}')
        a.emit(f'v_cvt_pk_bf16_f32 v{d+3}, v{y+2}, v{y+3}')
    Q = lambda b: acc(0, b); Kf = lambda b: acc(2, b) if b >= 0 else PR
    Sc = lambda b: acc(1, b); Sp = lambda b: acc(3, b)
    for b in range(4):
        qk(acc(0, b), acc(1, b), CS, b + 1, Q(b))
        qk(acc(2, b), acc(3, b), CS + 8, b + 1, Kf(b))
        if b == 3:
            a.emit('s_waitcnt lgkmcnt(0)')
            qk(PR, PR + 4, CS + 8, 0, PR)
        if b >= 1:
            a.emit(mfma(Sc(b - 1), Kf(b - 1), Q(b - 1), '0'))
            if b >= 2: a.emit(mfma(Sp(b - 1), Kf(b - 2), Q(b - 1), '0'))
    a.emit(mfma(Sc(3), Kf(3), Q(3), '0'))
    a.emit(mfma(Sp(3), Kf(2), Q(3), '0'))
    a.emit(mfma(Sp(0), Kf(-1), Q(0), '0'))
    def vconv(x, t, b):
        cv = f'v[{CV}:{CV+1}]'
        for h in range(2):
            a.emit(f'v_pk_fma_f32 v[{x+2*h}:{x+2*h+1}], v[{M4+4*b+2*h}:{M4+4*b+2*h+1}], {cv}, v[{x+2*h}:{x+2*h+1}] op_sel:[0,{t},0] op_sel_hi:[1,{t},1] neg_lo:[1,0,0] neg_hi:[1,0,0]')
        for h in range(2):
            a.emit(f'v_pk_mul_f32 v[{x+2*h}:{x+2*h+1}], v[{x+2*h}:{x+2*h+1}], v[{R4+4*b+2*h}:{R4+4*b+2*h+1}]')
        for h in range(2):
            a.emit(f'v_cvt_pk_bf16_f32 v{VV[t]+2*b+h}, v{x+2*h}, v{x+2*h+1}')
    for t in range(2):
        vconv(PR + 8 + 4 * t, t, 0)
        for b in range(4): vconv(acc(4 + t, b), t, b + 1)
    T = lambda b: 32 + 4 * b
    odd = f's[{M_ODD}:{M_ODD+1}]'
    for b in (1, 2, 3, 0):
        a.emit(f'v_cndmask_b32 v{Sc(b)}, v{Sc(b)}, v{Sc(b)+1}, {odd}')
        a.emit(f'v_cndmask_b32 v{Sp(b)}, v{Sp(b)}, v{Sp(b)+1}, {odd}')
        a.emit(f'v_cndmask_b32 v{Sc(b)+2}, v{Sc(b)+2}, v{Sc(b)+3}, {odd}')
        a.emit(f'v_cndmask_b32 v{Sp(b)+2}, v{Sp(b)+2}, v{Sp(b)+3}, {odd}')
        a.emit(f'v_cndmask_b32 v{T(b)}, v{Sc(b)}, v{Sp(b)}, s[{M_UPA}:{M_UPA+1}]')
        a.emit(f'v_cndmask_b32 v{T(b)+1}, v{Sc(b)+2}, v{Sp(b)+2}, s[{M_UPB}:{M_UPB+1}]')
        a.emit(f'v_mul_f32 v{T(b)}, v{T(b)}, v{RK+b}')
        a.emit(f'v_mul_f32 v{T(b)+1}, v{T(b)+1}, v{RK+4+b}')
    a.emit(f'v_mov_b32 v48, {f2u(-1e9 * 1.4426950408889634):#x}')
    a.emit(f'v_cndmask_b32 v{T(0)}, v{T(0)}, v48, s[{M_FA}:{M_FA+1}]')
    a.emit(f'v_cndmask_b32 v{T(0)+1}, v{T(0)+1}, v48, s[{M_FB}:{M_FB+1}]')
    for b in range(4): a.emit(f'v_max_f32 v{T(b)+2}, v{T(b)}, v{T(b)+1}')
    for op in ('32', '16'):
        for b in range(4): a.emit(f'v_mov_b32 v{T(b)+3}, v{T(b)+2}')
        for b in range(4): a.emit(f'v_permlane{op}_swap_b32 v{T(b)+2}, v{T(b)+3}')
        for b in range(4): a.emit(f'v_max_f32 v{T(b)+2}, v{T(b)+2}, v{T(b)+3}')
    for b in range(4):
        a.emit(f'v_sub_f32 v{T(b)}, v{T(b)}, v{T(b)+2}')
        a.emit(f'v_sub_f32 v{T(b)+1}, v{T(b)+1}, v{T(b)+2}')
    for b in range(4):
        a.emit(f'v_exp_f32 v{T(b)}, v{T(b)}')
        a.emit(f'v_exp_f32 v{T(b)+1}, v{T(b)+1}')
    P = lambda b: acc(0, b)
    for b in range(4):
        a.emit(f'v_cvt_pk_bf16_f32 v{T(b)}, v{T(b)}, v{T(b)}')
        a.emit(f'v_cvt_pk_bf16_f32 v{T(b)+1}, v{T(b)+1}, v{T(b)+1}')
        a.emit(f'v_and_b32 v{P(b)}, v{T(b)}, v{MAP}')
        a.emit(f'v_and_b32 v{P(b)+1}, v{T(b)+1}, v{MBP}')
        a.emit(f'v_and_b32 v{P(b)+2}, v{T(b)}, v{MAC}')
        a.emit(f'v_and_b32 v{P(b)+3}, v{T(b)+1}, v{MBC}')
        if b >= 1:
            q = b - 1
            a.emit(mfma(acc(1, q), ONES, P(q), '0'))
            a.emit(mfma(acc(4, q), VV[0] + 2 * q, P(q), '0'))
            a.emit(mfma(acc(5, q), VV[1] + 2 * q, P(q), '0'))
    q = 3
    a.emit(mfma(acc(1, q), ONES, P(q), '0'))
    a.emit(mfma(acc(4, q), VV[0] + 2 * q, P(q), '0'))
    a.emit(mfma(acc(5, q), VV[1] + 2 * q, P(q), '0'))
    for b in range(4):
        r = acc(1, b); d = 48 + 4 * b
        a.emit(f'v_rcp_f32 v{r}, v{r}')
        a.emit(f's_mov_b32 s3, {b * 16 * 2048}')
        for t in range(2):
            x = acc(4 + t, b)
            for h in range(2):
                a.emit(f'v_pk_mul_f32 v[{x+2*h}:{x+2*h+1}], v[{x+2*h}:{x+2*h+1}], v[{r}:{r+1}] op_sel_hi:[1,0]')
        for t in range(2):
            x = acc(4 + t, b)
            for h in range(2):
                a.emit(f'v_cvt_pk_bf16_f32 v{d+2*t+h}, v{x+2*h}, v{x+2*h+1}')
        a.emit('s_nop 1')
        a.emit(f'v_permlane16_swap_b32 v{d}, v{d+2}')
        a.emit(f'v_permlane16_swap_b32 v{d+1}, v{d+3}')
        a.emit(f'buffer_store_dwordx4 v[{d}:{d+3}], v{VO}, s[{SO}:{SO+3}], s3 offen{stf(kind)}')
    stamps_out(a, kind)
    a.emit('s_endpgm')
    a.label(f'L_{kind}_loader')
    L = Loader(a, kind, K, lda2, ldw2, [0, 2048, 4096], 128, S, STAGE, halo=XH, rot=int(ENV('ROT_QKV', '0')))
    L.setup()
    a.emit('s_waitcnt lgkmcnt(0)')
    srd(a, SX, 'xs', 0, 4 * MB); srd(a, SW, 'wqkv', 0, 1024 * 6144)
    a.emit(f's_cmp_eq_u32 s{S_LAYER}, 0')
    a.emit(f's_cbranch_scc1 L_{kind}_ld0')
    srd(a, ST, 'ws', WS_ST, 16 * 16384)
    n1 = side(Asm(), 1, 'issue')
    def tail1():
        stats_loads(a, 32, True)
        side(a, 1, 'issue')
    def final1():
        a.emit(f's_waitcnt vmcnt({n1})')
        stats_reduce_store(a, 32, LST)
        a.emit('s_waitcnt lgkmcnt(0)')
    L.run('1', tail_issue=tail1, ntail_vm=16 + n1, final=final1)
    a.emit('s_barrier')
    side(a, 1, 'finish')
    a.emit('s_endpgm')
    a.label(f'L_{kind}_ld0')
    L.run('0', tail_issue=lambda: side(a, 0, 'issue'), ntail_vm=side(Asm(), 0, 'issue'))
    a.emit('s_barrier')
    a.emit('s_barrier')
    side(a, 0, 'finish')
    a.label(end)
    a.emit('s_endpgm')
    a(KD.format(name=f'{kind}l0_kernel'))
    stub(a, f'{kind}l1_kernel', body, 1, tsidx + 4, False)
    a.label(f'L_{kind}_c1')
    a(KD.format(name=f'{kind}l1_kernel'))
    return LST + 1280
```

```python
import sys, os, struct
sys.path.insert(0, os.path.join(os.path.dirname(os.path.abspath(__file__)), '..'))
from asmlib import Asm, check_offsets
MB = 1 << 20
WSB = int(os.environ.get('WSB', '0')) * MB
WS_O   = WSB
WS_X1  = WSB + 4 * MB
WS_H   = WSB + 8 * MB
WS_ST  = WSB + 23 * MB
WS_CS  = WSB + 23 * MB + 512 * 1024
WS_TS  = 60 * MB
f2u = lambda f: struct.unpack('<I', struct.pack('<f', f))[0]
ENV = os.environ.get
TS = ENV('TS', '')
DBG = ENV('DBG', '').split(',')
def stf(kind): return (' ' + ENV('WTF', 'sc1')) if kind in ENV('WT', 'attn,wo,w2,w1').split(',') else ''

KA = {'A_x': 0, 'wqkv': 8, 'wo': 16, 'w1': 32, 'b1': 40, 'w2': 48, 'b2': 56, 'out': 64, 'ws': 80}
P_IN = 16
P_OUT = 32; P_WS = 34
P_XS = 12
PTR = {'A_x': 16, 'wqkv': 18, 'wo': 20, 'w1': 24, 'b1': 26, 'w2': 28, 'b2': 30, 'out': 32, 'ws': 34, 'xs': 12}
SX, SW, SO, SR, SB, ST, SP, SC = 36, 40, 44, 48, 52, 56, 60, 64
S_MT, S_NT, S_WV, S_WM, S_WN = 68, 69, 70, 71, 72
S_KX, S_KW, S_SLOT, S_XD, S_WD, S_HD, S_CNT = 73, 74, 75, 76, 77, 78, 79
S_LAYER = 96; S_TSI = 97; S_T = 98; S_CU = 99; S_XG = 100; S_KT = 101

KD = '''.section .rodata,"a"
.p2align 6
.amdhsa_kernel {name}
  .amdhsa_next_free_vgpr 256
  .amdhsa_next_free_sgpr 102
  .amdhsa_accum_offset 256
  .amdhsa_group_segment_fixed_size 0
  .amdhsa_kernarg_size 88
  .amdhsa_user_sgpr_count 2
  .amdhsa_user_sgpr_kernarg_segment_ptr 1
  .amdhsa_system_sgpr_workgroup_id_x 1
  .amdhsa_float_denorm_mode_32 3
  .amdhsa_float_denorm_mode_16_64 3
.end_amdhsa_kernel
.text
'''

def srd(a, sd, which, off, size):
    p = PTR[which]
    if off:
        a.emit(f's_add_u32 s{sd}, s{p}, {off}')
        a.emit(f's_addc_u32 s{sd+1}, s{p+1}, 0')
        a.emit(f's_and_b32 s{sd+1}, s{sd+1}, 0xffff')
    else:
        a.emit(f's_mov_b32 s{sd}, s{p}')
        a.emit(f's_and_b32 s{sd+1}, s{p+1}, 0xffff')
    a.emit(f's_mov_b32 s{sd+2}, {size}')
    a.emit(f's_mov_b32 s{sd+3}, 0x00020000')

def stub(a, name, body, layer, tsidx, first):
    a(f'.text\n.globl {name}\n.p2align 8\n.type {name},@function\n{name}:')
    if TS:
        stamp(a, 0, nowait=True)
    a.emit('s_load_dwordx16 s[16:31], s[0:1], 0')
    a.emit('s_load_dwordx2 s[32:33], s[0:1], 64')
    a.emit('s_load_dwordx2 s[34:35], s[0:1], 80')
    a.emit(f's_load_dwordx2 s[12:13], s[0:1], {0 if layer == 0 else 64}')
    a.emit(f's_mov_b32 s{S_LAYER}, {layer}')
    if TS: a.emit(f's_mov_b32 s{S_TSI}, {tsidx}')
    if not first:
        a.emit(f's_branch {body}')

def stamp(a, n, nowait=False):
    if not TS: return
    a.emit(f's_memrealtime s[{80+4*n}:{81+4*n}]')
    a.emit(f's_memtime s[{82+4*n}:{83+4*n}]')
    if not nowait: a.emit('s_waitcnt lgkmcnt(0)')

def stamps_out(a, tag):
    if not TS: return
    a.emit('s_waitcnt vmcnt(0)')
    stamp(a, 3)
    srd(a, SP, 'ws', WS_TS, 1 << 20)
    a.emit('s_lshl_b32 s4, s2, 6')
    a.emit(f's_lshl_b32 s5, s{S_TSI}, 16')
    a.emit('s_add_u32 s4, s4, s5')
    a.emit('v_mov_b32 v1, s4')
    for i in range(16): a.emit(f'v_mov_b32 v{4+i}, s{80+i}')
    a.emit('v_cmp_eq_u32 vcc, 0, v0')
    a.emit('s_and_saveexec_b64 s[6:7], vcc')
    a.emit(f's_cbranch_execz L_tsskip_{tag}')
    for j in range(4):
        a.emit(f'buffer_store_dwordx4 v[{4+4*j}:{7+4*j}], v1, s[{SP}:{SP+3}], 0 offen offset:{16*j}')
    a.emit('s_waitcnt vmcnt(0)')
    a.label(f'L_tsskip_{tag}')

def tile_map(a, LM, endlab):
    a.emit('s_cmp_ge_u32 s2, 256')
    a.emit(f's_cbranch_scc1 {endlab}')
    a.emit('v_lshrrev_b32 v2, 6, v0')
    a.emit('v_and_b32 v1, 63, v0')
    a.emit(f'v_readfirstlane_b32 s{S_WV}, v2')
    a.emit('s_and_b32 s3, s2, 7')
    a.emit(f's_lshr_b32 s{S_CU}, s2, 3')
    a.emit(f's_and_b32 s5, s3, {(1 << (4 - LM)) - 1}')
    a.emit(f's_lshl_b32 s5, s5, {LM}')
    a.emit(f's_and_b32 s6, s{S_CU}, {(1 << LM) - 1}')
    a.emit(f's_add_u32 s{S_MT}, s5, s6')
    a.emit(f's_lshr_b32 s5, s3, {4 - LM}')
    a.emit(f's_lshl_b32 s5, s5, {5 - LM}')
    a.emit(f's_lshr_b32 s6, s{S_CU}, {LM}')
    a.emit(f's_add_u32 s{S_NT}, s5, s6')
    if 'smallm' in DBG: a.emit(f's_and_b32 s{S_MT}, s{S_MT}, 1')
    if 'smalln' in DBG: a.emit(f's_and_b32 s{S_NT}, s{S_NT}, 1')

def interleave(a, main, side, lead=1, per=1):
    si = 0
    for i, m in enumerate(main):
        a.emit(m)
        if i + 1 >= lead:
            for _ in range(per):
                if si < len(side): a.emit(side[si]); si += 1
    while si < len(side): a.emit(side[si]); si += 1

class Loader:
    VXD = 4; VWD = 8; VXH = 28
    def __init__(self, a, tag, K, lda2, ldw2, panels, colbase, S, STAGE, halo=None, delta=0, rot=None, xblk=False):
        self.a = a; self.tag = tag; self.K = K; self.lda2 = lda2; self.ldw2 = ldw2; self.panels = panels
        self.colbase = colbase; self.S = S; self.STAGE = STAGE; self.halo = halo; self.delta = delta; self.xblk = xblk; self.rot = rot if rot is not None and rot >= 0 else None
        self.NSTEP = K // 64
        self.per = 4 + 2 * len(panels) + (1 if halo is not None else 0)
    def setup(self):
        a = self.a
        if ENV('PRIO', '0') != '0': a.emit(f"s_setprio {ENV('PRIO')}")
        a.emit(f's_add_u32 s8, s{S_WV}, s{S_NT}')
        a.emit('s_and_b32 s8, s8, 3')
        a.emit(f's_add_u32 s9, s{S_WV}, s{S_MT}')
        a.emit('s_and_b32 s9, s9, 3')
        a.emit(f's_lshl_b32 s{S_XD}, s8, 12')
        a.emit(f's_lshl_b32 s{S_WD}, s9, 11')
        a.emit(f's_add_u32 s{S_WD}, s{S_WD}, 16384')
        a.emit(f's_lshl_b32 s11, s{S_MT}, 7')
        a.emit('v_and_b32 v10, 7, v1')
        if self.xblk: self.xoff_blk(self.lda2)
        else: self.xoff_rows(self.lda2)
        a.emit('v_lshrrev_b32 v3, 3, v1')
        a.emit('s_lshl_b32 s10, s9, 4')
        a.emit('v_add_u32 v3, s10, v3')
        a.emit(f'v_mul_u32_u24 v3, {self.ldw2}, v3')
        a.emit('v_lshrrev_b32 v2, 3, v1')
        a.emit('v_and_b32 v2, 2, v2')
        a.emit('v_xor_b32 v2, v2, v10')
        a.emit(f's_mul_i32 s10, s{S_NT}, {self.colbase}')
        if self.colbase & 127: a.emit('s_andn2_b32 s10, s10, 127')
        a.emit('v_add_u32 v3, s10, v3')
        a.emit(f'v_lshl_add_u32 v{self.VWD}, v2, 4, v3')
        a.emit('v_xor_b32 v2, 4, v2')
        a.emit(f'v_add_u32 v3, {8*self.ldw2}, v3')
        a.emit(f'v_lshl_add_u32 v{self.VWD+1}, v2, 4, v3')
        if self.halo is not None:
            a.emit(f's_and_b32 s10, s{S_WV}, 3')
            a.emit(f's_lshl_b32 s{S_HD}, s10, 9')
            a.emit(f's_add_u32 s{S_HD}, s{S_HD}, {self.halo}')
            a.emit('s_lshl_b32 s14, s10, 2')
            a.emit('s_add_u32 s14, s14, s11')
            a.emit('s_sub_u32 s14, s14, 16')
            a.emit('v_lshrrev_b32 v3, 3, v1')
            a.emit('v_add_u32 v3, s14, v3')
            a.emit('v_max_i32 v3, 0, v3')
            a.emit(f'v_mul_u32_u24 v3, {self.lda2}, v3')
            a.emit('s_lshl_b32 s14, s10, 1')
            a.emit('v_lshrrev_b32 v2, 4, v1')
            a.emit('v_add_u32 v2, s14, v2')
            a.emit('v_and_b32 v2, 7, v2')
            a.emit('v_xor_b32 v2, v2, v10')
            a.emit(f'v_lshl_add_u32 v{self.VXH}, v2, 4, v3')
            a.emit('s_cmp_eq_u32 s10, 0')
            a.emit('s_cselect_b32 s14, 0xffffff00, -1')
            a.emit('s_mov_b32 s15, 0')
        a.emit(f's_mov_b32 s{S_SLOT}, 0')
        if self.rot is None:
            a.emit(f's_mov_b32 s{S_KX}, 0')
            a.emit(f's_mov_b32 s{S_KW}, 0')
        else:
            a.emit(f's_add_u32 s{S_XG}, s{S_MT}, s{S_NT}')
            a.emit(f's_mov_b32 s{S_KT}, -1')
            for x in self.knext(): a.emit(x)
    def xoff_rows(self, ld):
        a = self.a
        a.emit('v_lshrrev_b32 v3, 3, v1')
        a.emit(f's_lshr_b32 s10, s{S_XD}, 7')
        a.emit(f's_lshl_b32 s3, s{S_MT}, 7')
        a.emit('s_add_u32 s10, s10, s3')
        a.emit('v_add_u32 v3, s10, v3')
        a.emit(f'v_mul_u32_u24 v3, {ld}, v3')
        a.emit('v_lshrrev_b32 v2, 4, v1')
        for j in range(4):
            d = self.VXD + j
            if j & 1:
                a.emit(f'v_add_u32 v{d}, 4, v2')
                a.emit(f'v_xor_b32 v{d}, v{d}, v10')
            else:
                a.emit(f'v_xor_b32 v{d}, v2, v10')
            a.emit(f'v_lshl_add_u32 v{d}, v{d}, 4, v3')
            if j < 3: a.emit(f'v_add_u32 v3, {8*ld}, v3')
    def xoff_blk(self, ld):
        a = self.a
        a.emit(f's_lshr_b32 s10, s{S_XD}, 11')
        a.emit(f's_lshl_b32 s3, s{S_MT}, 3')
        a.emit('s_add_u32 s10, s10, s3')
        a.emit(f's_mul_i32 s10, s10, {16*ld}')
        a.emit(f'v_lshl_add_u32 v{self.VXD}, v1, 4, s10')
        a.emit(f'v_add_u32 v{self.VXD+1}, {16*ld}, v{self.VXD}')
    def xdma(self, base, imm, sd, soff, blk):
        o = []
        for j in range(4):
            if blk:
                if not j & 1: o += [f's_add_u32 m0, s{base}, {imm + j*1024}', 's_nop 0']
                o.append(f'buffer_load_dwordx4 v{self.VXD+(j>>1)}, s[{sd}:{sd+3}], s{soff} offen offset:{(j&1)*1024} lds')
            else:
                o += [f's_add_u32 m0, s{base}, {imm + j*1024}', 's_nop 0', f'buffer_load_dwordx4 v{self.VXD+j}, s[{sd}:{sd+3}], s{soff} offen lds']
        return o
    def knext(self):
        if self.rot is None:
            return [f's_add_u32 s{S_KX}, s{S_KX}, {2048 if self.xblk else 128}', f's_add_u32 s{S_KW}, s{S_KW}, {64*self.ldw2}']
        lc = self.rot; C = 1 << lc; N = self.NSTEP
        o = [f's_add_u32 s{S_KT}, s{S_KT}, 1']
        D = int(ENV('ROTD_' + self.tag.upper(), ENV('ROTD', '2')))
        dl = {3: [3, -1, -1, -1], 2: [2, -1, -1, 0], 1: [1, -1, 0, 0]}[D]
        tbl = sum((((d * C) % N) << (8 * i)) for i, d in enumerate(dl))
        if lc: o += [f's_lshr_b32 s{S_KX}, s{S_KT}, {lc}', f's_sub_u32 s{S_KX}, s{S_KX}, s{S_XG}']
        else: o += [f's_sub_u32 s{S_KX}, s{S_KT}, s{S_XG}']
        o += [f's_lshl_b32 s{S_KX}, s{S_KX}, 3',
              f's_lshr_b32 s{S_KX}, {tbl:#x}, s{S_KX}',
              f's_and_b32 s{S_KX}, s{S_KX}, 255',
              f's_add_u32 s{S_KX}, s{S_KX}, s{S_KT}']
        if N & (N - 1) == 0: o += [f's_and_b32 s{S_KX}, s{S_KX}, {N - 1}']
        else: o += [f's_sub_u32 s{S_KW}, s{S_KX}, {N}', f's_cselect_b32 s{S_KX}, s{S_KX}, s{S_KW}']
        o += [f's_mul_i32 s{S_KW}, s{S_KX}, {64*self.ldw2}', f's_lshl_b32 s{S_KX}, s{S_KX}, {11 if self.xblk else 7}']
        return o
    def issue(self):
        o = []
        if 'nodma' in DBG: return o
        o.append(f's_add_u32 s3, s{S_SLOT}, s{S_XD}')
        o += self.xdma(3, 0, SX, S_KX, self.xblk)
        if self.halo is not None:
            o.append(f's_add_u32 m0, s{S_SLOT}, s{S_HD}')
            o.append('s_mov_b64 exec, s[14:15]')
            o.append(f'buffer_load_dwordx4 v{self.VXH}, s[{SX}:{SX+3}], s{S_KX} offen lds')
            o.append('s_mov_b64 exec, -1')
        o.append(f's_add_u32 s3, s{S_SLOT}, s{S_WD}')
        for pn, goff in enumerate(self.panels):
            for i in range(2):
                o.append(f's_add_u32 m0, s3, {pn*8192+i*1024}')
                o.append(f's_add_u32 s4, s{S_KW}, {goff}' if i == 0 else 's_nop 0')
                o.append(f'buffer_load_dwordx4 v{self.VWD+i}, s[{SW}:{SW+3}], s4 offen lds')
        o += self.knext()
        o.append(f's_add_u32 s{S_SLOT}, s{S_SLOT}, {self.STAGE}')
        o.append(f's_cmp_eq_u32 s{S_SLOT}, {self.S*self.STAGE}')
        o.append(f's_cselect_b32 s{S_SLOT}, 0, s{S_SLOT}')
        return o
    def run(self, variant='', d=None, per_stage=None, tail_issue=None, ntail_vm=0, final=None):
        a = self.a; per = self.per; N = self.NSTEP
        if d is None: d = self.S - 1
        tag = self.tag + variant
        def iss(ps=False):
            ins = self.issue()
            if not (ps and per_stage):
                for x in ins: a.emit(x)
                return
            pre, work = per_stage()
            for x in pre: a.emit(x)
            nd = max(1, sum(1 for x in ins if 'buffer_load' in x)); k = 0; wi = 0
            for x in ins:
                a.emit(x)
                if 'buffer_load' in x: k += 1
                if 'buffer_load' in x and f'v{self.VXH},' not in x:
                    tgt = len(work) * k // nd
                    while wi < tgt: a.emit(work[wi]); wi += 1
            while wi < len(work): a.emit(work[wi]); wi += 1
        def only_ps():
            if per_stage:
                pre, work = per_stage()
                for x in pre + work: a.emit(x)
        def wait(n):
            assert n <= 63, n
            a.emit(f's_waitcnt vmcnt({n})')
        pre = min(2, d)
        for _ in range(pre): iss()
        wait((pre - 1) * per)
        a.emit('s_barrier')
        for _ in range(pre, d): iss()
        nmain = N - d
        a.emit(f's_mov_b32 s{S_CNT}, {nmain - 1}')
        a.label(f'L_{tag}_ld')
        iss(True)
        wait((d - 1) * per)
        a.emit('s_barrier')
        a.emit(f's_sub_u32 s{S_CNT}, s{S_CNT}, 1')
        a.emit(f's_cmp_lg_u32 s{S_CNT}, 0')
        a.emit(f's_cbranch_scc1 L_{tag}_ld')
        iss(True)
        if tail_issue: tail_issue()
        for i in range(N - 1 - d, N):
            if i > N - 1 - d: only_ps()
            if i + 1 < N:
                wait((N - 1 - (i + 1)) * per + ntail_vm)
            else:
                if final: final()
            a.emit('s_barrier')

def pf_weights(a, sd, which, size, ldw2, R, sh, L, LMn, tilebytes, NI, vd, row0=0, qkv=False):
    if 'nopf' in DBG: return 0
    srd(a, sd, which, 0, size)
    a.emit(f's_and_b32 s3, s{S_WV}, 3')
    a.emit(f's_mul_i32 s3, s3, {NI * (64 >> sh)}')
    a.emit(f's_mul_i32 s4, s{S_CU}, {R}')
    a.emit('s_add_u32 s3, s3, s4')
    if row0: a.emit(f's_add_u32 s3, s3, {row0}')
    a.emit(f'v_lshrrev_b32 v2, {sh}, v1')
    a.emit('v_add_u32 v2, s3, v2')
    a.emit(f'v_mul_u32_u24 v2, {ldw2}, v2')
    a.emit(f'v_and_b32 v3, {(1 << sh) - 1}, v1')
    if L < (1 << sh): a.emit(f'v_min_u32 v3, {L-1}, v3')
    if qkv:
        a.emit('v_lshrrev_b32 v12, 2, v3')
        a.emit('v_lshl_add_u32 v2, v12, 11, v2')
        a.emit('v_and_b32 v3, 3, v3')
    a.emit('v_lshl_add_u32 v2, v3, 7, v2')
    a.emit('s_and_b32 s3, s2, 7')
    a.emit(f's_lshr_b32 s3, s3, {4 - LMn}')
    a.emit(f's_mul_i32 s3, s3, {(1 << (5 - LMn)) * tilebytes}')
    for i in range(NI):
        a.emit(f'buffer_load_dword v{vd+i}, v2, s[{sd}:{sd+3}], s3 offen')
        if i + 1 < NI: a.emit(f's_add_u32 s3, s3, {(64 >> sh) * ldw2}')
    return NI

_pfc = [0]
def pf_code(a, start, end, vd, forward=True):
    if 'nopfc' in DBG: return 0
    _pfc[0] += 1
    lab = f'L_pfc{_pfc[0]}'
    a.emit('s_getpc_b64 s[4:5]')
    a.label(lab)
    if forward:
        a.emit(f's_add_u32 s4, s4, {start}-{lab}')
        a.emit('s_addc_u32 s5, s5, 0')
    else:
        a.emit(f's_sub_u32 s4, s4, {lab}-{start}')
        a.emit('s_subb_u32 s5, s5, 0')
    a.emit(f's_and_b32 s3, s{S_WV}, 3')
    a.emit('s_lshl_b32 s3, s3, 13')
    a.emit('v_lshl_add_u32 v2, v1, 7, s3')
    a.emit(f'v_min_u32 v2, {end}-{start}-4, v2')
    a.emit(f'global_load_dword v{vd}, v2, s[4:5]')
    return 1

def wbase(a, vd, vt, g='v2'):
    a.emit(f'v_bfe_u32 v{vd}, v1, 2, 2')
    a.emit(f'v_lshl_add_u32 v{vd}, {g}, 3, v{vd}')
    a.emit(f'v_lshlrev_b32 v{vd}, 7, v{vd}')
    a.emit(f'v_and_b32 v{vt}, 3, v1')
    a.emit(f'v_lshl_add_u32 v{vd}, v{vt}, 3, v{vd}')
    a.emit(f'v_bfe_u32 v{vt}, v1, 3, 2')
    a.emit(f'v_lshl_add_u32 v{vd}, v{vt}, 5, v{vd}')


def code_touch(a, start, end, nb):
    if ENV('CT', '1') == '0': return
    _pfc[0] += 1
    lab = f'L_pfc{_pfc[0]}'
    a.emit('s_getpc_b64 s[4:5]')
    a.label(lab)
    a.emit(f's_lshl_b32 s3, s{S_CU}, 2')
    a.emit(f's_add_u32 s3, s3, s{S_WV}')
    a.emit(f's_mul_i32 s3, s3, {nb}')
    a.emit(f's_min_u32 s3, s3, {end}-{start}-{nb}')
    a.emit(f's_add_i32 s3, s3, {start}-{lab}')
    a.emit('s_ashr_i32 s6, s3, 31')
    a.emit('s_add_u32 s4, s4, s3')
    a.emit('s_addc_u32 s5, s5, s6')
    for i in range(nb // 64):
        a.emit(f's_load_dword s{SX+i}, s[4:5], {64*i}')

def loader_first(a, kind):
    if ENV('LF', '1') == '0': return
    L = a.lines
    ib = max(i for i, l in enumerate(L) if l.strip() == f's_cbranch_scc1 L_{kind}_loader')
    il = L.index(f'L_{kind}_loader:')
    ie = L.index(f'L_{kind}_end:') + 2
    assert L[ie - 1].strip() == 's_endpgm' and L[ib - 1].strip().startswith('s_cmp_ge_u32')
    L[ib - 1] = L[ib - 1].replace('s_cmp_ge_u32', 's_cmp_lt_u32')
    L[ib] = f'  s_cbranch_scc1 L_{kind}_compute'
    a.lines = L[:ib + 1] + L[il:ie] + [f'L_{kind}_compute:'] + L[ib + 1:il] + L[ie:]
```

```python
from common import *
from gemmw1 import big_loop, stats_loads, stats_finish, stats_reduce_store

def gen_qkv(a, tsidx, side):
    kind = 'attn'
    K = 1024; lda2 = 2048; ldw2 = 6144
    S = 3; LM = int(ENV('LM_QKV', '3'))
    XH = 16384 + 6 * 4096
    STAGE = XH + 2048
    LST = S * STAGE
    EX = 1024
    N = 16
    body = f'L_{kind}_body'; end = f'L_{kind}_end'
    VB, VA = 4, 10
    VXW, VPE, VPO, VCE, VCO, VVE, VVO, VS1, VS4, VKA, VKB, MAP, MAC, MBP, MBC, VO = range(16, 32)
    M_ODD, M_UPA, M_UPB, M_FA, M_FB = 48, 50, 52, 54, 14
    F = [32, 76]; ACC = 128; HACC = 224; ONES = 236
    acc = lambda jn, jm: ACC + (jn * 4 + jm) * 4
    fx = lambda s, jm: F[s] + jm * 4
    fw = lambda s, jn: F[s] + 20 + jn * 4
    a.label(f'L_{kind}_c0')
    stub(a, f'{kind}l0_kernel', body, 0, tsidx, True)
    a.label(body)
    tile_map(a, LM, end)
    a.emit(f's_cmp_ge_u32 s{S_WV}, 4')
    a.emit(f's_cbranch_scc1 L_{kind}_loader')
    if ENV('CTQ', 'all') == 'all': code_touch(a, 'L_attn_c0', 'L_w2_c1', 256)
    else: code_touch(a, 'L_attn_c0', 'L_wo_c1', 128)
    a.emit(f's_and_b32 s{S_WM}, s{S_WV}, 1')
    a.emit(f's_lshr_b32 s{S_WN}, s{S_WV}, 1')
    a.emit('v_and_b32 v3, 31, v1')
    a.emit('v_lshlrev_b32 v3, 2, v3')
    a.emit(f'v_add_u32 v3, {XH}, v3')
    for i in range(4): a.emit(f'v_mov_b32 v{ONES+i}, 0x3f803f80')
    a.emit(f'ds_write_b32 v3, v{ONES}')
    a.emit(f'ds_write_b32 v3, v{ONES} offset:{STAGE}')
    a.emit(f'v_add_u32 v3, {2*STAGE}, v3')
    a.emit(f'ds_write_b32 v3, v{ONES}')
    a.emit('v_and_b32 v3, 15, v1')
    a.emit('v_lshrrev_b32 v2, 4, v1')
    a.emit('v_lshrrev_b32 v33, 1, v3')
    a.emit(f's_lshl_b32 s8, s{S_WM}, 13')
    for ks in range(2):
        if ks: a.emit(f'v_add_u32 v{VB+ks}, 4, v2')
        a.emit(f'v_xor_b32 v{VB+ks}, v{VB+ks if ks else 2}, v33')
        a.emit(f'v_lshlrev_b32 v{VB+ks}, 4, v{VB+ks}')
        a.emit(f'v_lshl_add_u32 v{VB+ks}, v3, 7, v{VB+ks}')
        a.emit(f'v_add_u32 v{VB+4+ks}, {XH}, v{VB+ks}')
        a.emit(f'v_add_u32 v{VB+ks}, s8, v{VB+ks}')
    wbase(a, 34, 33)
    a.emit('v_and_b32 v35, 1, v2')
    a.emit(f'v_xor_b32 v35, s{S_WM}, v35')
    a.emit(f's_lshl_b32 s8, s{S_WV}, 5')
    a.emit('v_xor_b32 v34, s8, v34')
    a.emit(f'v_add_u32 v{VB+2}, 16384, v34')
    a.emit(f'v_xor_b32 v{VB+3}, 32, v{VB+2}')
    a.emit(f's_lshl_b32 s8, s{S_MT}, 7')
    a.emit(f's_lshl_b32 s9, s{S_WM}, 6')
    a.emit('s_add_u32 s8, s8, s9')
    a.emit(f's_add_u32 s10, s8, s{S_NT}')
    a.emit('s_lshl_b32 s10, s10, 11')
    a.emit(f's_lshl_b32 s11, s{S_WN}, 10')
    a.emit('s_add_u32 s10, s10, s11')
    a.emit('v_lshl_add_u32 v33, v3, 4, s10')
    a.emit('v_lshl_add_u32 v33, v35, 9, v33')
    a.emit('v_lshrrev_b32 v34, 1, v2')
    a.emit(f'v_lshl_add_u32 v{VO}, v34, 8, v33')
    a.emit(f's_mul_i32 s10, s{S_WN}, 12288')
    a.emit(f's_add_u32 s10, s10, {EX}')
    a.emit(f's_lshl_b32 s11, s{S_WM}, 10')
    a.emit('s_add_u32 s4, s10, s11')
    a.emit('s_sub_u32 s5, s10, s11')
    a.emit(f's_mul_i32 s6, s{S_WM}, 6144')
    a.emit(f'v_lshl_add_u32 v{VXW}, v1, 4, s4')
    a.emit(f'v_add_u32 v{VPE}, s6, v{VXW}')
    a.emit(f'v_lshl_add_u32 v{VPO}, v1, 4, s5')
    a.emit(f'v_add_u32 v{VPO}, s6, v{VPO}')
    a.emit(f'v_lshl_add_u32 v{VCE}, v2, 8, s4')
    a.emit(f'v_lshl_add_u32 v{VCO}, v2, 8, s5')
    a.emit(f'v_lshl_add_u32 v{VVE}, v3, 4, s4')
    a.emit(f'v_lshl_add_u32 v{VVO}, v3, 4, s5')
    a.emit(f's_lshl_b32 s10, s{S_WM}, 8')
    a.emit(f's_add_u32 s10, s10, {LST}')
    a.emit(f'v_lshl_add_u32 v{VS1}, v3, 2, s10')
    a.emit(f'v_lshl_add_u32 v{VS4}, v2, 4, s10')
    a.emit('v_and_b32 v33, 1, v3')
    a.emit(f'v_cmp_eq_u32 s[{M_ODD}:{M_ODD+1}], 1, v33')
    a.emit('v_lshl_add_u32 v34, v2, 2, v33')
    a.emit('v_add_u32 v35, 2, v34')
    a.emit(f'v_cmp_gt_u32 s[{M_UPA}:{M_UPA+1}], v34, v3')
    a.emit(f'v_cmp_gt_u32 s[{M_UPB}:{M_UPB+1}], v35, v3')
    a.emit('v_mov_b32 v36, 0xffff')
    a.emit('v_mov_b32 v37, 0xffff0000')
    a.emit(f'v_cndmask_b32 v36, v36, v37, s[{M_ODD}:{M_ODD+1}]')
    a.emit(f's_add_u32 s10, s10, {640 + 64}')
    a.emit('v_lshl_add_u32 v34, v34, 2, s10')
    a.emit('v_lshl_add_u32 v35, v35, 2, s10')
    a.emit('v_subrev_u32 v38, 64, v34')
    a.emit('v_subrev_u32 v39, 64, v35')
    a.emit(f'v_cndmask_b32 v{VKA}, v34, v38, s[{M_UPA}:{M_UPA+1}]')
    a.emit(f'v_cndmask_b32 v{VKB}, v35, v39, s[{M_UPB}:{M_UPB+1}]')
    a.emit(f'v_cndmask_b32 v{MAP}, 0, v36, s[{M_UPA}:{M_UPA+1}]')
    a.emit(f'v_cndmask_b32 v{MBP}, 0, v36, s[{M_UPB}:{M_UPB+1}]')
    a.emit(f'v_xor_b32 v{MAC}, v{MAP}, v36')
    a.emit(f'v_xor_b32 v{MBC}, v{MBP}, v36')
    a.emit('s_cmp_eq_u32 s8, 0')
    a.emit(f's_cselect_b64 s[{M_FA}:{M_FA+1}], s[{M_UPA}:{M_UPA+1}], 0')
    a.emit(f's_cselect_b64 s[{M_FB}:{M_FB+1}], s[{M_UPB}:{M_UPB+1}], 0')
    for i in list(range(120, 236)) + list(range(240, 256)): a.emit(f'v_mov_b32 v{i}, 0')
    a.emit('s_waitcnt lgkmcnt(0)')
    srd(a, SO, 'ws', WS_O, 4 * MB)
    def warm():
        a.emit(f's_cmp_lg_u32 s{S_LAYER}, 0')
        a.emit(f's_cbranch_scc1 L_{kind}_nowarm')
        a.emit('s_lshl_b32 s3, s2, 2')
        a.emit(f's_add_u32 s3, s3, s{S_WV}')
        srd(a, SX, 'xs', 0, 4 * MB); srd(a, SW, 'wqkv', 0, 6 * MB)
        a.emit('v_min_u32 v126, 31, v1')
        a.emit('v_min_u32 v127, 47, v1')
        a.emit('v_lshlrev_b32 v126, 7, v126')
        a.emit('v_lshlrev_b32 v127, 7, v127')
        a.emit('s_lshl_b32 s4, s3, 12')
        a.emit(f's_mul_i32 s5, s3, {48 * 128}')
        a.emit(f'buffer_load_dword v2, v126, s[{SX}:{SX+3}], s4 offen')
        a.emit(f'buffer_load_dword v3, v127, s[{SW}:{SW+3}], s5 offen')
        a.emit('v_mov_b32 v126, 0')
        a.emit('v_mov_b32 v127, 0')
        a.label(f'L_{kind}_nowarm')
    WARM = ENV('WARM', '0')
    if WARM == '1': warm()
    def reads(s, ks):
        o = []
        if 'noread' in DBG: return o
        for jm in range(4):
            o.append(f'ds_read_b128 v[{fx(s,jm)}:{fx(s,jm)+3}], v{VA+ks} offset:{jm*2048}')
        o.append(f'ds_read_b128 v[{fx(s,4)}:{fx(s,4)+3}], v{VA+4+ks}')
        for jn in range(6):
            for h in range(2):
                r = fw(s, jn) + 2 * h
                o.append(f'ds_read_b64_tr_b16 v[{r}:{r+1}], v{VA+2+(jn&1)} offset:{(jn>>1)*8192+ks*4096+h*512}')
        return o
    def mfma(c, x, y, cin=None):
        return f'v_mfma_f32_16x16x32_bf16 v[{c}:{c+3}], v[{x}:{x+3}], v[{y}:{y+3}], ' + (f'v[{c}:{c+3}]' if cin is None else cin)
    def mf(s):
        o = []
        if 'nomfma' in DBG: return ['s_nop 0']
        for jn in range(6):
            for jm in range(5):
                if jm == 4 and jn & 1: continue
                c = acc(jn, jm) if jm < 4 else HACC + (jn >> 1) * 4
                o.append(mfma(c, fw(s, jn), fx(s, jm)) if jn < 4 else mfma(c, fx(s, jm), fw(s, jn)))
        return o
    SA = [(240, 244), (248, 252), (120, 124)]
    def mfv(hh):
        def f(s):
            o = mf(s)
            ex = []
            for i, jm in enumerate([2 * hh, 2 * hh + 1] + ([4] if hh == 0 else [])):
                ex.append(mfma(SA[i][0], ONES, fx(s, jm)))
                ex.append(mfma(SA[i][1], fx(s, jm), fx(s, jm)))
            return ex + o
        return f
    def select():
        if WARM == '2': warm(); a.emit('s_nop 1')
        a.emit(f's_cmp_lg_u32 s{S_LAYER}, 0')
        a.emit(f's_cbranch_scc1 L_{kind}_loop')
        a.emit(f's_cmp_lg_u32 s{S_WN}, 0')
        a.emit(f's_cbranch_scc1 L_{kind}_loopb')
    def post():
        a.emit('v_and_b32 v32, 3, v1')
        a.emit('v_cmp_eq_u32 s[4:5], 1, v32')
        a.emit('v_cmp_eq_u32 s[6:7], 2, v32')
        a.emit('v_cmp_eq_u32 s[8:9], 3, v32')
        a.emit('v_bfe_u32 v33, v1, 2, 2')
        a.emit('v_lshrrev_b32 v34, 4, v1')
        a.emit('v_cmp_eq_u32 s[10:11], v33, v34')
        a.emit(f's_lshl_b32 s3, s{S_WN}, 7')
        a.emit(f'v_add_u32 v35, s3, v{VS1}')
        a.emit('v_and_b32 v36, 15, v1')
        a.emit(f's_cmp_eq_u32 s{S_WV}, 0')
        a.emit('s_cselect_b32 s3, 0, 576')
        a.emit(f's_add_u32 s3, s3, {LST}')
        a.emit('v_lshl_add_u32 v36, v36, 2, s3')
        for (sm, sq) in SA:
            a.emit(f'v_cndmask_b32 v{sm+1}, v{sq}, v{sq+1}, s[4:5]')
        for (sm, sq) in SA:
            a.emit(f'v_cndmask_b32 v{sm+1}, v{sm+1}, v{sq+2}, s[6:7]')
        for (sm, sq) in SA:
            a.emit(f'v_cndmask_b32 v{sm+1}, v{sm+1}, v{sq+3}, s[8:9]')
        for (sm, sq) in SA: stats_finish(a, sm)
        a.emit('s_mov_b64 exec, s[10:11]')
        a.emit(f'ds_write2_b32 v35, v{SA[0][0]}, v{SA[0][0]+1} offset0:16 offset1:176')
        a.emit(f'ds_write2_b32 v35, v{SA[1][0]}, v{SA[1][0]+1} offset0:32 offset1:192')
        a.emit(f'ds_write2_b32 v36, v{SA[2][0]}, v{SA[2][0]+1} offset0:0 offset1:160')
        a.emit('s_mov_b64 exec, -1')
        a.emit('s_waitcnt lgkmcnt(0)')
        a.emit('s_barrier')
    big_loop(a, kind, N, S, STAGE, 6, VB, VA, reads, mf, variants={'a': mfv(0), 'b': mfv(1)}, select=select, post=post)
    PR = 32
    CS = 48
    CV = 64
    MS = 66
    RK = 76
    M4 = 84
    R4 = 104
    VV = [240, 224]
    for b in range(5):
        a.emit(f'ds_read2_b32 v[{MS+2*b}:{MS+2*b+1}], v{VS1} offset0:{16*b} offset1:{160+16*b}')
    for p in range(2):
        a.emit(f'ds_read2_b32 v[{RK+2*p}:{RK+2*p+1}], v{VKA} offset0:{32*p} offset1:{32*p+16}')
        a.emit(f'ds_read2_b32 v[{RK+4+2*p}:{RK+5+2*p}], v{VKB} offset0:{32*p} offset1:{32*p+16}')
    for c in range(3):
        a.emit(f'ds_write_b128 v{VXW}, v[{HACC+4*c}:{HACC+4*c+3}] offset:{2048*c}')
    a.emit(f's_cmp_eq_u32 s{S_WM}, 1')
    a.emit(f's_cbranch_scc1 L_{kind}_nop3')
    for t in range(2, 6):
        a.emit(f'ds_write_b128 v{VXW}, v[{acc(t,3)}:{acc(t,3)+3}] offset:{6144+1024*t}')
    a.label(f'L_{kind}_nop3')
    for b in range(5):
        a.emit(f'ds_read_b128 v[{M4+4*b}:{M4+4*b+3}], v{VS4} offset:{64*b}')
        a.emit(f'ds_read_b128 v[{R4+4*b}:{R4+4*b+3}], v{VS4} offset:{640+64*b}')
    a.emit('s_waitcnt lgkmcnt(10)')
    a.emit('s_barrier')
    for t in range(4):
        a.emit(f'ds_read_b128 v[{CS+4*t}:{CS+4*t+3}], v{VCO if t&1 else VCE} offset:{1024*t}')
    for t in range(2):
        a.emit(f'ds_read_b32 v{CV+t}, v{VVO if t else VVE} offset:{4096+1024*t}')
    for t in range(4):
        a.emit(f'ds_read_b128 v[{PR+4*t}:{PR+4*t+3}], v{VPO if t&1 else VPE} offset:{2048+1024*t}')
    sc = 32 ** -0.5 * 1.4426950408889634
    for b in range(4):
        a.emit(f'v_mul_f32 v{MS+2*b+3}, {f2u(sc):#x}, v{MS+2*b+3}')
    for b in range(4):
        a.emit(f'v_mul_f32 v{RK+b}, v{RK+b}, v{MS+2*b+3}')
        a.emit(f'v_mul_f32 v{RK+4+b}, v{RK+4+b}, v{MS+2*b+3}')
    a.emit('s_waitcnt lgkmcnt(6)')
    def qk(x, y, cs, b, d):
        m = f'v[{MS+2*b}:{MS+2*b+1}]'
        for (z, c) in ((x, cs), (y, cs + 4)):
            for h in range(2):
                a.emit(f'v_pk_fma_f32 v[{z+2*h}:{z+2*h+1}], v[{c+2*h}:{c+2*h+1}], {m}, v[{z+2*h}:{z+2*h+1}] op_sel:[0,0,0] op_sel_hi:[1,0,1] neg_lo:[0,1,0] neg_hi:[0,1,0]')
        a.emit(f'v_cvt_pk_bf16_f32 v{d}, v{x}, v{x+1}')
        a.emit(f'v_cvt_pk_bf16_f32 v{d+1}, v{x+2}, v{x+3}')
        a.emit(f'v_cvt_pk_bf16_f32 v{d+2}, v{y}, v{y+1}')
        a.emit(f'v_cvt_pk_bf16_f32 v{d+3}, v{y+2}, v{y+3}')
    Q = lambda b: acc(0, b); Kf = lambda b: acc(2, b) if b >= 0 else PR
    Sc = lambda b: acc(1, b); Sp = lambda b: acc(3, b)
    for b in range(4):
        qk(acc(0, b), acc(1, b), CS, b + 1, Q(b))
        qk(acc(2, b), acc(3, b), CS + 8, b + 1, Kf(b))
        if b == 3:
            a.emit('s_waitcnt lgkmcnt(0)')
            qk(PR, PR + 4, CS + 8, 0, PR)
        if b >= 1:
            a.emit(mfma(Sc(b - 1), Kf(b - 1), Q(b - 1), '0'))
            if b >= 2: a.emit(mfma(Sp(b - 1), Kf(b - 2), Q(b - 1), '0'))
    a.emit(mfma(Sc(3), Kf(3), Q(3), '0'))
    a.emit(mfma(Sp(3), Kf(2), Q(3), '0'))
    a.emit(mfma(Sp(0), Kf(-1), Q(0), '0'))
    def vconv(x, t, b):
        cv = f'v[{CV}:{CV+1}]'
        for h in range(2):
            a.emit(f'v_pk_fma_f32 v[{x+2*h}:{x+2*h+1}], v[{M4+4*b+2*h}:{M4+4*b+2*h+1}], {cv}, v[{x+2*h}:{x+2*h+1}] op_sel:[0,{t},0] op_sel_hi:[1,{t},1] neg_lo:[1,0,0] neg_hi:[1,0,0]')
        for h in range(2):
            a.emit(f'v_pk_mul_f32 v[{x+2*h}:{x+2*h+1}], v[{x+2*h}:{x+2*h+1}], v[{R4+4*b+2*h}:{R4+4*b+2*h+1}]')
        for h in range(2):
            a.emit(f'v_cvt_pk_bf16_f32 v{VV[t]+2*b+h}, v{x+2*h}, v{x+2*h+1}')
    for t in range(2):
        vconv(PR + 8 + 4 * t, t, 0)
        for b in range(4): vconv(acc(4 + t, b), t, b + 1)
    T = lambda b: 32 + 4 * b
    odd = f's[{M_ODD}:{M_ODD+1}]'
    for b in (1, 2, 3, 0):
        a.emit(f'v_cndmask_b32 v{Sc(b)}, v{Sc(b)}, v{Sc(b)+1}, {odd}')
        a.emit(f'v_cndmask_b32 v{Sp(b)}, v{Sp(b)}, v{Sp(b)+1}, {odd}')
        a.emit(f'v_cndmask_b32 v{Sc(b)+2}, v{Sc(b)+2}, v{Sc(b)+3}, {odd}')
        a.emit(f'v_cndmask_b32 v{Sp(b)+2}, v{Sp(b)+2}, v{Sp(b)+3}, {odd}')
        a.emit(f'v_cndmask_b32 v{T(b)}, v{Sc(b)}, v{Sp(b)}, s[{M_UPA}:{M_UPA+1}]')
        a.emit(f'v_cndmask_b32 v{T(b)+1}, v{Sc(b)+2}, v{Sp(b)+2}, s[{M_UPB}:{M_UPB+1}]')
        a.emit(f'v_mul_f32 v{T(b)}, v{T(b)}, v{RK+b}')
        a.emit(f'v_mul_f32 v{T(b)+1}, v{T(b)+1}, v{RK+4+b}')
    a.emit(f'v_mov_b32 v48, {f2u(-1e9 * 1.4426950408889634):#x}')
    a.emit(f'v_cndmask_b32 v{T(0)}, v{T(0)}, v48, s[{M_FA}:{M_FA+1}]')
    a.emit(f'v_cndmask_b32 v{T(0)+1}, v{T(0)+1}, v48, s[{M_FB}:{M_FB+1}]')
    for b in range(4): a.emit(f'v_max_f32 v{T(b)+2}, v{T(b)}, v{T(b)+1}')
    for op in ('32', '16'):
        for b in range(4): a.emit(f'v_mov_b32 v{T(b)+3}, v{T(b)+2}')
        for b in range(4): a.emit(f'v_permlane{op}_swap_b32 v{T(b)+2}, v{T(b)+3}')
        for b in range(4): a.emit(f'v_max_f32 v{T(b)+2}, v{T(b)+2}, v{T(b)+3}')
    for b in range(4):
        a.emit(f'v_sub_f32 v{T(b)}, v{T(b)}, v{T(b)+2}')
        a.emit(f'v_sub_f32 v{T(b)+1}, v{T(b)+1}, v{T(b)+2}')
    for b in range(4):
        a.emit(f'v_exp_f32 v{T(b)}, v{T(b)}')
        a.emit(f'v_exp_f32 v{T(b)+1}, v{T(b)+1}')
    P = lambda b: acc(0, b)
    for b in range(4):
        a.emit(f'v_cvt_pk_bf16_f32 v{T(b)}, v{T(b)}, v{T(b)}')
        a.emit(f'v_cvt_pk_bf16_f32 v{T(b)+1}, v{T(b)+1}, v{T(b)+1}')
        a.emit(f'v_and_b32 v{P(b)}, v{T(b)}, v{MAP}')
        a.emit(f'v_and_b32 v{P(b)+1}, v{T(b)+1}, v{MBP}')
        a.emit(f'v_and_b32 v{P(b)+2}, v{T(b)}, v{MAC}')
        a.emit(f'v_and_b32 v{P(b)+3}, v{T(b)+1}, v{MBC}')
        if b >= 1:
            q = b - 1
            a.emit(mfma(acc(1, q), ONES, P(q), '0'))
            a.emit(mfma(acc(4, q), VV[0] + 2 * q, P(q), '0'))
            a.emit(mfma(acc(5, q), VV[1] + 2 * q, P(q), '0'))
    q = 3
    a.emit(mfma(acc(1, q), ONES, P(q), '0'))
    a.emit(mfma(acc(4, q), VV[0] + 2 * q, P(q), '0'))
    a.emit(mfma(acc(5, q), VV[1] + 2 * q, P(q), '0'))
    for b in range(4):
        r = acc(1, b); d = 48 + 4 * b
        a.emit(f'v_rcp_f32 v{r}, v{r}')
        a.emit(f's_mov_b32 s3, {b * 16 * 2048}')
        for t in range(2):
            x = acc(4 + t, b)
            for h in range(2):
                a.emit(f'v_pk_mul_f32 v[{x+2*h}:{x+2*h+1}], v[{x+2*h}:{x+2*h+1}], v[{r}:{r+1}] op_sel_hi:[1,0]')
        for t in range(2):
            x = acc(4 + t, b)
            for h in range(2):
                a.emit(f'v_cvt_pk_bf16_f32 v{d+2*t+h}, v{x+2*h}, v{x+2*h+1}')
        a.emit('s_nop 1')
        a.emit(f'v_permlane16_swap_b32 v{d}, v{d+2}')
        a.emit(f'v_permlane16_swap_b32 v{d+1}, v{d+3}')
        a.emit(f'buffer_store_dwordx4 v[{d}:{d+3}], v{VO}, s[{SO}:{SO+3}], s3 offen{stf(kind)}')
    stamps_out(a, kind)
    a.emit('s_endpgm')
    a.label(f'L_{kind}_loader')
    L = Loader(a, kind, K, lda2, ldw2, [0, 2048, 4096], 128, S, STAGE, halo=XH, rot=int(ENV('ROT_QKV', '0')))
    L.setup()
    a.emit('s_waitcnt lgkmcnt(0)')
    srd(a, SX, 'xs', 0, 4 * MB); srd(a, SW, 'wqkv', 0, 1024 * 6144)
    a.emit(f's_cmp_lg_u32 s{S_LAYER}, 0')
    a.emit(f's_cbranch_scc1 L_{kind}_ld1')
    L.run('0', tail_issue=lambda: side(a, 0, 'issue'), ntail_vm=side(Asm(), 0, 'issue'))
    a.emit('s_barrier')
    a.emit('s_barrier')
    side(a, 0, 'finish')
    a.emit('s_endpgm')
    a.label(f'L_{kind}_ld1')
    srd(a, ST, 'ws', WS_ST, 16 * 16384)
    n1 = side(Asm(), 1, 'issue')
    def tail1():
        stats_loads(a, 32, True)
        side(a, 1, 'issue')
    def final1():
        a.emit(f's_waitcnt vmcnt({n1})')
        stats_reduce_store(a, 32, LST)
        a.emit('s_waitcnt lgkmcnt(0)')
    L.run('1', tail_issue=tail1, ntail_vm=16 + n1, final=final1)
    a.emit('s_barrier')
    side(a, 1, 'finish')
    a.label(end)
    a.emit('s_endpgm')
    loader_first(a, kind)
    a(KD.format(name=f'{kind}l0_kernel'))
    stub(a, f'{kind}l1_kernel', body, 1, tsidx + 4, False)
    a.label(f'L_{kind}_c1')
    a(KD.format(name=f'{kind}l1_kernel'))
    return LST + 1280
```

```python
import sys, os, struct
sys.path.insert(0, os.path.join(os.path.dirname(os.path.abspath(__file__)), '..'))
from asmlib import Asm, check_offsets
MB = 1 << 20
WSB = int(os.environ.get('WSB', '0')) * MB
WS_O   = WSB
WS_X1  = WSB + 4 * MB
WS_H   = WSB + 8 * MB
WS_ST  = WSB + 23 * MB
WS_CS  = WSB + 23 * MB + 512 * 1024
WS_TS  = 60 * MB
f2u = lambda f: struct.unpack('<I', struct.pack('<f', f))[0]
ENV = os.environ.get
TS = ENV('TS', '')
DBG = ENV('DBG', '').split(',')
def stf(kind): return (' ' + ENV('WTF', 'sc1')) if kind in ENV('WT', 'attn,wo,w2,w1').split(',') else ''

KA = {'A_x': 0, 'wqkv': 8, 'wo': 16, 'w1': 32, 'b1': 40, 'w2': 48, 'b2': 56, 'out': 64, 'ws': 80}
P_IN = 16
P_OUT = 32; P_WS = 34
P_XS = 12
PTR = {'A_x': 16, 'wqkv': 18, 'wo': 20, 'w1': 24, 'b1': 26, 'w2': 28, 'b2': 30, 'out': 32, 'ws': 34, 'xs': 12}
SX, SW, SO, SR, SB, ST, SP, SC = 36, 40, 44, 48, 52, 56, 60, 64
S_MT, S_NT, S_WV, S_WM, S_WN = 68, 69, 70, 71, 72
S_KX, S_KW, S_SLOT, S_XD, S_WD, S_HD, S_CNT = 73, 74, 75, 76, 77, 78, 79
S_LAYER = 96; S_TSI = 97; S_T = 98; S_CU = 99; S_XG = 100; S_KT = 101

KD = '''.section .rodata,"a"
.p2align 6
.amdhsa_kernel {name}
  .amdhsa_next_free_vgpr 256
  .amdhsa_next_free_sgpr 102
  .amdhsa_accum_offset 256
  .amdhsa_group_segment_fixed_size 0
  .amdhsa_kernarg_size 88
  .amdhsa_user_sgpr_count 2
  .amdhsa_user_sgpr_kernarg_segment_ptr 1
  .amdhsa_system_sgpr_workgroup_id_x 1
  .amdhsa_float_denorm_mode_32 3
  .amdhsa_float_denorm_mode_16_64 3
.end_amdhsa_kernel
.text
'''

def srd(a, sd, which, off, size):
    p = PTR[which]
    if off:
        a.emit(f's_add_u32 s{sd}, s{p}, {off}')
        a.emit(f's_addc_u32 s{sd+1}, s{p+1}, 0')
        a.emit(f's_and_b32 s{sd+1}, s{sd+1}, 0xffff')
    else:
        a.emit(f's_mov_b32 s{sd}, s{p}')
        a.emit(f's_and_b32 s{sd+1}, s{p+1}, 0xffff')
    a.emit(f's_mov_b32 s{sd+2}, {size}')
    a.emit(f's_mov_b32 s{sd+3}, 0x00020000')

def stub(a, name, body, layer, tsidx, first):
    a(f'.text\n.globl {name}\n.p2align 8\n.type {name},@function\n{name}:')
    if TS:
        stamp(a, 0, nowait=True)
    a.emit('s_load_dwordx16 s[16:31], s[0:1], 0')
    a.emit('s_load_dwordx2 s[32:33], s[0:1], 64')
    a.emit('s_load_dwordx2 s[34:35], s[0:1], 80')
    a.emit(f's_load_dwordx2 s[12:13], s[0:1], {0 if layer == 0 else 64}')
    a.emit(f's_mov_b32 s{S_LAYER}, {layer}')
    if TS: a.emit(f's_mov_b32 s{S_TSI}, {tsidx}')
    if not first:
        a.emit(f's_branch {body}')

def stamp(a, n, nowait=False):
    if not TS: return
    a.emit(f's_memrealtime s[{80+4*n}:{81+4*n}]')
    a.emit(f's_memtime s[{82+4*n}:{83+4*n}]')
    if not nowait: a.emit('s_waitcnt lgkmcnt(0)')

def stamps_out(a, tag):
    if not TS: return
    a.emit('s_waitcnt vmcnt(0)')
    stamp(a, 3)
    srd(a, SP, 'ws', WS_TS, 1 << 20)
    a.emit('s_lshl_b32 s4, s2, 6')
    a.emit(f's_lshl_b32 s5, s{S_TSI}, 16')
    a.emit('s_add_u32 s4, s4, s5')
    a.emit('v_mov_b32 v1, s4')
    for i in range(16): a.emit(f'v_mov_b32 v{4+i}, s{80+i}')
    a.emit('v_cmp_eq_u32 vcc, 0, v0')
    a.emit('s_and_saveexec_b64 s[6:7], vcc')
    a.emit(f's_cbranch_execz L_tsskip_{tag}')
    for j in range(4):
        a.emit(f'buffer_store_dwordx4 v[{4+4*j}:{7+4*j}], v1, s[{SP}:{SP+3}], 0 offen offset:{16*j}')
    a.emit('s_waitcnt vmcnt(0)')
    a.label(f'L_tsskip_{tag}')

def tile_map(a, LM, endlab):
    a.emit('s_cmp_ge_u32 s2, 256')
    a.emit(f's_cbranch_scc1 {endlab}')
    a.emit('v_lshrrev_b32 v2, 6, v0')
    a.emit('v_and_b32 v1, 63, v0')
    a.emit(f'v_readfirstlane_b32 s{S_WV}, v2')
    a.emit('s_and_b32 s3, s2, 7')
    a.emit(f's_lshr_b32 s{S_CU}, s2, 3')
    a.emit(f's_and_b32 s5, s3, {(1 << (4 - LM)) - 1}')
    a.emit(f's_lshl_b32 s5, s5, {LM}')
    a.emit(f's_and_b32 s6, s{S_CU}, {(1 << LM) - 1}')
    a.emit(f's_add_u32 s{S_MT}, s5, s6')
    a.emit(f's_lshr_b32 s5, s3, {4 - LM}')
    a.emit(f's_lshl_b32 s5, s5, {5 - LM}')
    a.emit(f's_lshr_b32 s6, s{S_CU}, {LM}')
    a.emit(f's_add_u32 s{S_NT}, s5, s6')
    if 'smallm' in DBG: a.emit(f's_and_b32 s{S_MT}, s{S_MT}, 1')
    if 'smalln' in DBG: a.emit(f's_and_b32 s{S_NT}, s{S_NT}, 1')

def interleave(a, main, side, lead=1, per=1):
    si = 0
    for i, m in enumerate(main):
        a.emit(m)
        if i + 1 >= lead:
            for _ in range(per):
                if si < len(side): a.emit(side[si]); si += 1
    while si < len(side): a.emit(side[si]); si += 1

class Loader:
    VXD = 4; VWD = 8; VXH = 28
    def __init__(self, a, tag, K, lda2, ldw2, panels, colbase, S, STAGE, halo=None, delta=0, rot=None, xblk=False):
        self.a = a; self.tag = tag; self.K = K; self.lda2 = lda2; self.ldw2 = ldw2; self.panels = panels
        self.colbase = colbase; self.S = S; self.STAGE = STAGE; self.halo = halo; self.delta = delta; self.xblk = xblk; self.rot = rot if rot is not None and rot >= 0 else None
        self.NSTEP = K // 64
        self.per = 4 + 2 * len(panels) + (1 if halo is not None else 0)
    def setup(self):
        a = self.a
        if ENV('PRIO', '0') != '0': a.emit(f"s_setprio {ENV('PRIO')}")
        a.emit(f's_add_u32 s8, s{S_WV}, s{S_NT}')
        a.emit('s_and_b32 s8, s8, 3')
        a.emit(f's_add_u32 s9, s{S_WV}, s{S_MT}')
        a.emit('s_and_b32 s9, s9, 3')
        a.emit(f's_lshl_b32 s{S_XD}, s8, 12')
        a.emit(f's_lshl_b32 s{S_WD}, s9, 11')
        a.emit(f's_add_u32 s{S_WD}, s{S_WD}, 16384')
        a.emit(f's_lshl_b32 s11, s{S_MT}, 7')
        a.emit('v_and_b32 v10, 7, v1')
        if self.xblk: self.xoff_blk(self.lda2)
        else: self.xoff_rows(self.lda2)
        a.emit('v_lshrrev_b32 v3, 3, v1')
        a.emit('s_lshl_b32 s10, s9, 4')
        a.emit('v_add_u32 v3, s10, v3')
        a.emit(f'v_mul_u32_u24 v3, {self.ldw2}, v3')
        a.emit('v_lshrrev_b32 v2, 3, v1')
        a.emit('v_and_b32 v2, 2, v2')
        a.emit('v_xor_b32 v2, v2, v10')
        a.emit(f's_mul_i32 s10, s{S_NT}, {self.colbase}')
        if self.colbase & 127: a.emit('s_andn2_b32 s10, s10, 127')
        a.emit('v_add_u32 v3, s10, v3')
        a.emit(f'v_lshl_add_u32 v{self.VWD}, v2, 4, v3')
        a.emit('v_xor_b32 v2, 4, v2')
        a.emit(f'v_add_u32 v3, {8*self.ldw2}, v3')
        a.emit(f'v_lshl_add_u32 v{self.VWD+1}, v2, 4, v3')
        if self.halo is not None:
            a.emit(f's_and_b32 s10, s{S_WV}, 3')
            a.emit(f's_lshl_b32 s{S_HD}, s10, 9')
            a.emit(f's_add_u32 s{S_HD}, s{S_HD}, {self.halo}')
            a.emit('s_lshl_b32 s14, s10, 2')
            a.emit('s_add_u32 s14, s14, s11')
            a.emit('s_sub_u32 s14, s14, 16')
            a.emit('v_lshrrev_b32 v3, 3, v1')
            a.emit('v_add_u32 v3, s14, v3')
            a.emit('v_max_i32 v3, 0, v3')
            a.emit(f'v_mul_u32_u24 v3, {self.lda2}, v3')
            a.emit('s_lshl_b32 s14, s10, 1')
            a.emit('v_lshrrev_b32 v2, 4, v1')
            a.emit('v_add_u32 v2, s14, v2')
            a.emit('v_and_b32 v2, 7, v2')
            a.emit('v_xor_b32 v2, v2, v10')
            a.emit(f'v_lshl_add_u32 v{self.VXH}, v2, 4, v3')
            a.emit('s_cmp_eq_u32 s10, 0')
            a.emit('s_cselect_b32 s14, 0xffffff00, -1')
            a.emit('s_mov_b32 s15, 0')
        a.emit(f's_mov_b32 s{S_SLOT}, 0')
        if self.rot is None:
            a.emit(f's_mov_b32 s{S_KX}, 0')
            a.emit(f's_mov_b32 s{S_KW}, 0')
        else:
            if not getattr(self, 'noxg', False): a.emit(f's_add_u32 s{S_XG}, s{S_MT}, s{S_NT}')
            a.emit(f's_mov_b32 s{S_KT}, -1')
            for x in self.knext(): a.emit(x)
    def xoff_rows(self, ld):
        a = self.a
        a.emit('v_lshrrev_b32 v3, 3, v1')
        a.emit(f's_lshr_b32 s10, s{S_XD}, 7')
        a.emit(f's_lshl_b32 s3, s{S_MT}, 7')
        a.emit('s_add_u32 s10, s10, s3')
        a.emit('v_add_u32 v3, s10, v3')
        a.emit(f'v_mul_u32_u24 v3, {ld}, v3')
        a.emit('v_lshrrev_b32 v2, 4, v1')
        for j in range(4):
            d = self.VXD + j
            if j & 1:
                a.emit(f'v_add_u32 v{d}, 4, v2')
                a.emit(f'v_xor_b32 v{d}, v{d}, v10')
            else:
                a.emit(f'v_xor_b32 v{d}, v2, v10')
            a.emit(f'v_lshl_add_u32 v{d}, v{d}, 4, v3')
            if j < 3: a.emit(f'v_add_u32 v3, {8*ld}, v3')
    def xoff_blk(self, ld):
        a = self.a
        a.emit(f's_lshr_b32 s10, s{S_XD}, 11')
        a.emit(f's_lshl_b32 s3, s{S_MT}, 3')
        a.emit('s_add_u32 s10, s10, s3')
        a.emit(f's_mul_i32 s10, s10, {16*ld}')
        a.emit(f'v_lshl_add_u32 v{self.VXD}, v1, 4, s10')
        a.emit(f'v_add_u32 v{self.VXD+1}, {16*ld}, v{self.VXD}')
    def xdma(self, base, imm, sd, soff, blk):
        o = []
        for j in range(4):
            if blk:
                if not j & 1: o += [f's_add_u32 m0, s{base}, {imm + j*1024}', 's_nop 0']
                o.append(f'buffer_load_dwordx4 v{self.VXD+(j>>1)}, s[{sd}:{sd+3}], s{soff} offen offset:{(j&1)*1024} lds')
            else:
                o += [f's_add_u32 m0, s{base}, {imm + j*1024}', 's_nop 0', f'buffer_load_dwordx4 v{self.VXD+j}, s[{sd}:{sd+3}], s{soff} offen lds']
        return o
    def knext(self):
        if self.rot is None:
            return [f's_add_u32 s{S_KX}, s{S_KX}, {2048 if self.xblk else 128}', f's_add_u32 s{S_KW}, s{S_KW}, {64*self.ldw2}']
        lc = self.rot; C = 1 << lc; N = self.NSTEP
        o = [f's_add_u32 s{S_KT}, s{S_KT}, 1']
        D = int(ENV('ROTD_' + self.tag.upper(), ENV('ROTD', '2')))
        dl = {3: [3, -1, -1, -1], 2: [2, -1, -1, 0], 1: [1, -1, 0, 0]}[D]
        tbl = sum((((d * C) % N) << (8 * i)) for i, d in enumerate(dl))
        if lc: o += [f's_lshr_b32 s{S_KX}, s{S_KT}, {lc}', f's_sub_u32 s{S_KX}, s{S_KX}, s{S_XG}']
        else: o += [f's_sub_u32 s{S_KX}, s{S_KT}, s{S_XG}']
        o += [f's_lshl_b32 s{S_KX}, s{S_KX}, 3',
              f's_lshr_b32 s{S_KX}, {tbl:#x}, s{S_KX}',
              f's_and_b32 s{S_KX}, s{S_KX}, 255',
              f's_add_u32 s{S_KX}, s{S_KX}, s{S_KT}']
        if N & (N - 1) == 0: o += [f's_and_b32 s{S_KX}, s{S_KX}, {N - 1}']
        else: o += [f's_sub_u32 s{S_KW}, s{S_KX}, {N}', f's_cselect_b32 s{S_KX}, s{S_KX}, s{S_KW}']
        o += [f's_mul_i32 s{S_KW}, s{S_KX}, {64*self.ldw2}', f's_lshl_b32 s{S_KX}, s{S_KX}, {11 if self.xblk else 7}']
        return o
    def issue(self):
        o = []
        if 'nodma' in DBG: return o
        o.append(f's_add_u32 s3, s{S_SLOT}, s{S_XD}')
        o += self.xdma(3, 0, SX, S_KX, self.xblk)
        if self.halo is not None:
            o.append(f's_add_u32 m0, s{S_SLOT}, s{S_HD}')
            o.append('s_mov_b64 exec, s[14:15]')
            o.append(f'buffer_load_dwordx4 v{self.VXH}, s[{SX}:{SX+3}], s{S_KX} offen lds')
            o.append('s_mov_b64 exec, -1')
        o.append(f's_add_u32 s3, s{S_SLOT}, s{S_WD}')
        for pn, goff in enumerate(self.panels):
            for i in range(2):
                o.append(f's_add_u32 m0, s3, {pn*8192+i*1024}')
                o.append(f's_add_u32 s4, s{S_KW}, {goff}' if i == 0 else 's_nop 0')
                o.append(f'buffer_load_dwordx4 v{self.VWD+i}, s[{SW}:{SW+3}], s4 offen lds')
        o += self.knext()
        o.append(f's_add_u32 s{S_SLOT}, s{S_SLOT}, {self.STAGE}')
        o.append(f's_cmp_eq_u32 s{S_SLOT}, {self.S*self.STAGE}')
        o.append(f's_cselect_b32 s{S_SLOT}, 0, s{S_SLOT}')
        return o
    def run(self, variant='', d=None, per_stage=None, tail_issue=None, ntail_vm=0, final=None, post=()):
        a = self.a; per = self.per; N = self.NSTEP
        if d is None: d = self.S - 1
        tag = self.tag + variant
        def iss(ps=False):
            ins = self.issue()
            if not (ps and per_stage):
                for x in ins: a.emit(x)
                if ps:
                    for x in post: a.emit(x)
                return
            pre, work = per_stage()
            for x in pre: a.emit(x)
            nd = max(1, sum(1 for x in ins if 'buffer_load' in x)); k = 0; wi = 0
            for x in ins:
                a.emit(x)
                if 'buffer_load' in x: k += 1
                if 'buffer_load' in x and f'v{self.VXH},' not in x:
                    tgt = len(work) * k // nd
                    while wi < tgt: a.emit(work[wi]); wi += 1
            while wi < len(work): a.emit(work[wi]); wi += 1
        def only_ps():
            if per_stage:
                pre, work = per_stage()
                for x in pre + work: a.emit(x)
        def wait(n):
            assert n <= 63, n
            a.emit(f's_waitcnt vmcnt({n})')
        pre = min(2, d)
        for _ in range(pre): iss()
        wait((pre - 1) * per)
        a.emit('s_barrier')
        for _ in range(pre, d): iss()
        nmain = N - d
        a.emit(f's_mov_b32 s{S_CNT}, {nmain - 1}')
        a.label(f'L_{tag}_ld')
        iss(True)
        wait((d - 1) * per)
        a.emit('s_barrier')
        a.emit(f's_sub_u32 s{S_CNT}, s{S_CNT}, 1')
        a.emit(f's_cmp_lg_u32 s{S_CNT}, 0')
        a.emit(f's_cbranch_scc1 L_{tag}_ld')
        iss(True)
        if tail_issue: tail_issue()
        for i in range(N - 1 - d, N):
            if i > N - 1 - d: only_ps()
            if i + 1 < N:
                wait((N - 1 - (i + 1)) * per + ntail_vm)
            else:
                if final: final()
            a.emit('s_barrier')

def pf_weights(a, sd, which, size, ldw2, R, sh, L, LMn, tilebytes, NI, vd, row0=0, qkv=False):
    if 'nopf' in DBG: return 0
    srd(a, sd, which, 0, size)
    a.emit(f's_and_b32 s3, s{S_WV}, 3')
    a.emit(f's_mul_i32 s3, s3, {NI * (64 >> sh)}')
    a.emit(f's_mul_i32 s4, s{S_CU}, {R}')
    a.emit('s_add_u32 s3, s3, s4')
    if row0: a.emit(f's_add_u32 s3, s3, {row0}')
    a.emit(f'v_lshrrev_b32 v2, {sh}, v1')
    a.emit('v_add_u32 v2, s3, v2')
    a.emit(f'v_mul_u32_u24 v2, {ldw2}, v2')
    a.emit(f'v_and_b32 v3, {(1 << sh) - 1}, v1')
    if L < (1 << sh): a.emit(f'v_min_u32 v3, {L-1}, v3')
    if qkv:
        a.emit('v_lshrrev_b32 v12, 2, v3')
        a.emit('v_lshl_add_u32 v2, v12, 11, v2')
        a.emit('v_and_b32 v3, 3, v3')
    a.emit('v_lshl_add_u32 v2, v3, 7, v2')
    a.emit('s_and_b32 s3, s2, 7')
    a.emit(f's_lshr_b32 s3, s3, {4 - LMn}')
    a.emit(f's_mul_i32 s3, s3, {(1 << (5 - LMn)) * tilebytes}')
    for i in range(NI):
        a.emit(f'buffer_load_dword v{vd+i}, v2, s[{sd}:{sd+3}], s3 offen')
        if i + 1 < NI: a.emit(f's_add_u32 s3, s3, {(64 >> sh) * ldw2}')
    return NI

_pfc = [0]
def pf_code(a, start, end, vd, forward=True):
    if 'nopfc' in DBG: return 0
    _pfc[0] += 1
    lab = f'L_pfc{_pfc[0]}'
    a.emit('s_getpc_b64 s[4:5]')
    a.label(lab)
    if forward:
        a.emit(f's_add_u32 s4, s4, {start}-{lab}')
        a.emit('s_addc_u32 s5, s5, 0')
    else:
        a.emit(f's_sub_u32 s4, s4, {lab}-{start}')
        a.emit('s_subb_u32 s5, s5, 0')
    a.emit(f's_and_b32 s3, s{S_WV}, 3')
    a.emit('s_lshl_b32 s3, s3, 13')
    a.emit('v_lshl_add_u32 v2, v1, 7, s3')
    a.emit(f'v_min_u32 v2, {end}-{start}-4, v2')
    a.emit(f'global_load_dword v{vd}, v2, s[4:5]')
    return 1

def wbase(a, vd, vt, g='v2'):
    a.emit(f'v_bfe_u32 v{vd}, v1, 2, 2')
    a.emit(f'v_lshl_add_u32 v{vd}, {g}, 3, v{vd}')
    a.emit(f'v_lshlrev_b32 v{vd}, 7, v{vd}')
    a.emit(f'v_and_b32 v{vt}, 3, v1')
    a.emit(f'v_lshl_add_u32 v{vd}, v{vt}, 3, v{vd}')
    a.emit(f'v_bfe_u32 v{vt}, v1, 3, 2')
    a.emit(f'v_lshl_add_u32 v{vd}, v{vt}, 5, v{vd}')


def code_touch(a, start, end, nb):
    if ENV('CT', '1') == '0': return
    _pfc[0] += 1
    lab = f'L_pfc{_pfc[0]}'
    a.emit('s_getpc_b64 s[4:5]')
    a.label(lab)
    a.emit(f's_lshl_b32 s3, s{S_CU}, 2')
    a.emit(f's_add_u32 s3, s3, s{S_WV}')
    a.emit(f's_mul_i32 s3, s3, {nb}')
    a.emit(f's_min_u32 s3, s3, {end}-{start}-{nb}')
    a.emit(f's_add_i32 s3, s3, {start}-{lab}')
    a.emit('s_ashr_i32 s6, s3, 31')
    a.emit('s_add_u32 s4, s4, s3')
    a.emit('s_addc_u32 s5, s5, s6')
    for i in range(nb // 64):
        a.emit(f's_load_dword s{SX+i}, s[4:5], {64*i}')

def loader_first(a, kind):
    if ENV('LF', '1') == '0': return
    L = a.lines
    ib = max(i for i, l in enumerate(L) if l.strip() == f's_cbranch_scc1 L_{kind}_loader')
    il = L.index(f'L_{kind}_loader:')
    ie = L.index(f'L_{kind}_end:') + 2
    assert L[ie - 1].strip() == 's_endpgm' and L[ib - 1].strip().startswith('s_cmp_ge_u32')
    L[ib - 1] = L[ib - 1].replace('s_cmp_ge_u32', 's_cmp_lt_u32')
    L[ib] = f'  s_cbranch_scc1 L_{kind}_compute'
    a.lines = L[:ib + 1] + L[il:ie] + [f'L_{kind}_compute:'] + L[ib + 1:il] + L[ie:]
```

```python
from common import *
WS_XP = WSB + 24 * MB
WS_FL = WSB + 23 * MB + 768 * 1024

class Loader2(Loader):
    def __init__(self, a, tag, K, lda2, ldw2, S, STAGE, P1):
        super().__init__(a, tag, K, lda2, ldw2, [0], 128, S, STAGE, rot=0, xblk=True)
        self.P1 = P1; self.P2 = K // 64 - 2 * P1; self.N = P1 + self.P2
    def masks(self):
        D = int(ENV('ROTD_W2', ENV('ROTD', '2')))
        out = []
        for g in range(4):
            m = 0
            for t in range(self.N):
                ws = t - ((t - g) & 3)
                lo, hi = (0, self.P1) if t < self.P1 else (self.P1, self.N)
                if ws >= lo and ws + D < hi: m |= 1 << t
            out.append(m)
        return out
    def setup(self):
        a = self.a
        a.emit(f's_lshr_b32 s{S_XG}, s{S_NT}, 1')
        a.emit(f's_add_u32 s{S_XG}, s{S_XG}, s{S_MT}')
        M = self.masks()
        a.emit(f's_bitcmp1_b32 s{S_XG}, 0')
        for j in range(2):
            for w in range(2):
                dst = 14 + w if j == 0 else 8 + w
                a.emit(f's_mov_b32 s{dst}, {(M[2*j] >> (32*w)) & 0xffffffff:#x}')
                a.emit(f's_cselect_b32 s{dst}, {(M[2*j+1] >> (32*w)) & 0xffffffff:#x}, s{dst}')
        a.emit(f's_bitcmp1_b32 s{S_XG}, 1')
        a.emit('s_cselect_b64 s[14:15], s[8:9], s[14:15]')
        a.emit(f's_bitcmp1_b32 s{S_NT}, 0')
        a.emit(f's_cselect_b32 s{S_T}, {self.P1}, 0')
        a.emit(f's_mov_b32 s{S_HD}, 128')
        a.emit(f's_cselect_b32 s{S_HD}, -128, s{S_HD}')
        self.noxg = True
        super().setup()
    def knext(self):
        D = int(ENV('ROTD_W2', ENV('ROTD', '2')))
        dl = {3: [3, -1, -1, -1], 2: [2, -1, -1, 0], 1: [1, -1, 0, 0], 0: [0, 0, 0, 0]}[D]
        tbl = sum(((d & 255) << (8 * i)) for i, d in enumerate(dl))
        return [f's_add_u32 s{S_KT}, s{S_KT}, 1',
                f's_sub_u32 s{S_KX}, s{S_KT}, s{S_XG}',
                f's_lshl_b32 s{S_KX}, s{S_KX}, 3',
                f's_lshr_b32 s{S_KX}, {tbl:#x}, s{S_KX}',
                f's_sext_i32_i8 s{S_KX}, s{S_KX}',
                f's_bitcmp1_b64 s[14:15], s{S_KT}',
                f's_cselect_b32 s{S_KX}, s{S_KX}, 0',
                f's_add_u32 s{S_KX}, s{S_KX}, s{S_KT}',
                f's_cmp_lt_u32 s{S_KT}, {self.P1}',
                f's_cselect_b32 s{S_KW}, s{S_T}, {self.P1}',
                f's_add_u32 s{S_KX}, s{S_KX}, s{S_KW}',
                f's_mul_i32 s{S_KW}, s{S_KX}, {64*self.ldw2}',
                f's_lshl_b32 s{S_KX}, s{S_KX}, 11']
    def run2(self, tail_issue, ntail):
        a = self.a; N = self.N; d = self.S - 1; P1 = self.P1
        cnt = lambda t: 8 if t < P1 else (6 if t < N else (ntail if t == N else 0))
        def iss(t):
            if t < N:
                self.panels = [0, f's{S_HD}'] if t < P1 else [0]
                for x in self.issue(): a.emit(x)
            elif t == N: tail_issue()
        iss(0); iss(1)
        a.emit(f's_waitcnt vmcnt({cnt(1)})')
        a.emit('s_barrier')
        for t in range(2, d): iss(t)
        ev = []
        for i in range(N):
            t = i + d
            ev.append((0 if t < P1 else (1 if t < N else (2 if t == N else 3)), sum(cnt(x) for x in range(i + 2, i + d + 1)), t))
        i = 0; nl = 0
        while i < N:
            j = i
            while j + 1 < N and ev[j + 1][:2] == ev[i][:2]: j += 1
            n = j - i + 1
            if n >= 3:
                nl += 1
                a.emit(f's_mov_b32 s{S_CNT}, {n}')
                a.label(f'L_{self.tag}_ld{nl}')
            else: j = i
            iss(ev[i][2])
            a.emit(f's_waitcnt vmcnt({ev[i][1]})')
            a.emit('s_barrier')
            if n >= 3:
                a.emit(f's_sub_u32 s{S_CNT}, s{S_CNT}, 1')
                a.emit(f's_cmp_lg_u32 s{S_CNT}, 0')
                a.emit(f's_cbranch_scc1 L_{self.tag}_ld{nl}')
            i = j + 1

def gen_w2(a, tsidx):
    kind = 'w2'
    K = 3584; lda2 = K * 2; ldw2 = 2048
    S = int(ENV('S2', '5')); LM = 2
    P1 = int(ENV('P1', '22')); P2 = K // 64 - 2 * P1; N = P1 + P2
    EV = [int(x) for x in ENV('EV', '2,3,4').split(',')]
    STAGE = 32768
    LRES = (N % S) * STAGE; PSTEP = 64
    body = f'L_{kind}_body'; end = f'L_{kind}_end'
    VXB, VWB, VXA, VWA, VO = 5, 6, 25, 26, 12
    VPS, VPL, VFS, VFL, VF = 19, 24, 30, 31, 4
    F = [32, 80]; ACC = 128; GIV = 160; G = [192, 208]; RES = 192; BIA = 224; TM = 232
    acc = lambda jn, jm: ACC + (jn * 2 + jm) * 4
    fx = lambda s, ks, jm: F[s] + (ks * 2 + jm) * 4
    fw = lambda s, ks, jn: F[s] + 16 + (ks * 4 + jn) * 4 if jn < 4 else G[s] + (jn - 4) * 4
    a.label(f'L_{kind}_c0')
    stub(a, f'{kind}l0_kernel', body, 0, tsidx, True)
    a.label(body)
    tile_map(a, LM, end)
    if ENV('W2MAP', '1') == '1':
        a.emit(f's_lshr_b32 s5, s{S_NT}, 3')
        a.emit(f's_lshl_b32 s{S_NT}, s6, 1')
        a.emit(f's_add_u32 s{S_NT}, s{S_NT}, s5')
    a.emit(f's_cmp_ge_u32 s{S_WV}, 4')
    a.emit(f's_cbranch_scc1 L_{kind}_loader')
    a.emit('v_and_b32 v3, 15, v1')
    a.emit('v_lshrrev_b32 v2, 4, v1')
    a.emit(f's_lshl_b32 s8, s{S_MT}, 7')
    a.emit(f's_lshl_b32 s9, s{S_WV}, 5')
    a.emit('s_add_u32 s8, s8, s9')
    a.emit('v_add_u32 v13, s8, v3')
    a.emit(f's_lshl_b32 s10, s{S_NT}, 7')
    a.emit('v_lshl_add_u32 v14, v2, 3, s10')
    a.emit('v_and_b32 v16, 1, v2')
    a.emit('v_lshrrev_b32 v17, 1, v2')
    a.emit('v_lshlrev_b32 v16, 5, v16')
    a.emit('v_lshl_add_u32 v16, v17, 4, v16')
    a.emit('v_add_u32 v16, s10, v16')
    a.emit(f'v_lshl_add_u32 v{VO}, v13, 11, v16')
    a.emit('v_lshl_add_u32 v18, v17, 4, v13')
    a.emit('v_lshlrev_b32 v18, 3, v18')
    a.emit('v_and_b32 v16, 1, v2')
    a.emit('v_lshl_add_u32 v18, v16, 2, v18')
    a.emit(f's_lshl_b32 s10, s{S_NT}, 14')
    a.emit('v_add_u32 v18, s10, v18')
    a.emit(f's_lshl_b32 s10, s{S_MT}, 4')
    a.emit(f's_add_u32 s10, s10, s{S_NT}')
    a.emit('s_lshl_b32 s10, s10, 2')
    a.emit(f's_add_u32 s10, s10, s{S_WV}')
    a.emit('s_lshl_b32 s9, s10, 13')
    a.emit(f'v_lshl_add_u32 v{VPL}, v1, 4, s9')
    a.emit(f'v_xor_b32 v{VPS}, 0x8000, v{VPL}')
    a.emit('s_lshl_b32 s9, s10, 6')
    a.emit(f's_lshl_b32 s10, s{S_LAYER}, 16')
    a.emit('s_add_u32 s9, s9, s10')
    a.emit(f'v_mov_b32 v{VFL}, s9')
    a.emit(f'v_xor_b32 v{VFS}, 0x100, v{VFL}')
    a.emit(f's_lshl_b32 s8, s{S_WV}, 12')
    a.emit(f'v_lshl_add_u32 v{VXB}, v1, 4, s8')
    wbase(a, VWB, 17)
    a.emit(f'v_add_u32 v{VWB}, 16384, v{VWB}')
    for i in range(1, 4): a.emit(f'v_xor_b32 v{VWB+i}, {32*i}, v{VWB}')
    a.emit('v_lshrrev_b32 v15, 1, v2')
    a.emit('v_lshlrev_b32 v15, 8, v15')
    a.emit('v_lshl_add_u32 v15, v3, 4, v15')
    a.emit('v_lshl_add_u32 v15, v16, 3, v15')
    a.emit(f's_add_u32 s8, s8, {LRES}')
    a.emit('v_add_u32 v15, s8, v15')
    a.emit('s_mov_b32 s11, 0xffff0000')
    a.emit(f's_mov_b32 s{S_SLOT}, 0')
    for i in range(32): a.emit(f'v_mov_b32 v{GIV+i}, 0')
    a.emit('s_waitcnt lgkmcnt(0)')
    srd(a, SB, 'b2', 0, 2048)
    for jn in range(4):
        a.emit(f'buffer_load_dwordx2 v[{BIA+2*jn}:{BIA+2*jn+1}], v14, s[{SB}:{SB+3}], 0 offen offset:{jn*32}')
    srd(a, SO, 'out', 0, 4 * MB)
    srd(a, ST, 'ws', WS_ST, 16 * 16384)
    srd(a, SX, 'ws', WS_XP, 8 * MB)
    srd(a, SW, 'ws', WS_FL, 131072)
    a.emit(f's_mov_b32 s{S_T}, 4096')
    a.emit('s_waitcnt vmcnt(0)')
    for jn in range(4):
        for jm in range(2):
            c = acc(jn, jm)
            for h in range(2):
                a.emit(f'v_lshlrev_b32 v{c+2*h}, 16, v{BIA+2*jn+h}')
                a.emit(f'v_and_b32 v{c+2*h+1}, s11, v{BIA+2*jn+h}')
    def addr():
        o = [f'v_add_u32_e64 v{VXA+i}, s{S_SLOT}, v{VXB+i}' for i in range(5)]
        o += [f's_add_u32 s{S_SLOT}, s{S_SLOT}, {STAGE}', f's_cmp_eq_u32 s{S_SLOT}, {S*STAGE}', f's_cselect_b32 s{S_SLOT}, 0, s{S_SLOT}']
        return o
    def rd(s, ks, nj):
        o = []
        if 'noread' in DBG: return o
        for jm in range(2):
            o.append(f'ds_read_b128 v[{fx(s,ks,jm)}:{fx(s,ks,jm)+3}], v{VXA} offset:{jm*2048+ks*1024}')
        for jn in (list(range(4, 8)) if nj == 8 else []) + list(range(4)):
            for h in range(2):
                r = fw(s, ks, jn) + 2 * h
                o.append(f'ds_read_b64_tr_b16 v[{r}:{r+1}], v{VWA+(jn&3)} offset:{(jn>>2)*8192+ks*4096+h*512}')
        return o
    def mm(s, ks, nj):
        o = []
        if 'nomfma' in DBG: return ['s_nop 0']
        for jn in (list(range(4, 8)) if nj == 8 else []) + list(range(4)):
            for jm in range(2):
                c = acc(jn, jm)
                o.append(f'v_mfma_f32_16x16x32_bf16 v[{c}:{c+3}], v[{fw(s,ks,jn)}:{fw(s,ks,jn)+3}], v[{fx(s,ks,jm)}:{fx(s,ks,jm)+3}], v[{c}:{c+3}]')
        return o
    for x in addr(): a.emit(x)
    a.emit(f's_mov_b32 s{S_CNT}, {P1}')
    a.emit('s_barrier')
    stamp(a, 0 if ENV('TSW2') else 1)
    for x in rd(0, 0, 8): a.emit(x)
    a.emit('s_waitcnt lgkmcnt(0)')
    a('.p2align 3')
    a.label(f'L_{kind}_loop1')
    ad = addr()
    ad[-1] += f'\n  s_sub_u32 s{S_CNT}, s{S_CNT}, 1'
    interleave(a, mm(0, 0, 8), rd(1, 1, 8) + ad, lead=1, per=2)
    a.emit('s_waitcnt lgkmcnt(0)')
    a.emit('s_barrier')
    interleave(a, mm(1, 1, 8), rd(0, 0, 8) + [f's_cmp_lg_u32 s{S_CNT}, 0\n  s_nop 0'], lead=1, per=2)
    a.emit('s_waitcnt lgkmcnt(0)')
    a.emit(f's_cbranch_scc1 L_{kind}_loop1')
    if ENV('TSW2'): stamp(a, 1)
    for x in rd(0, 1, 4): a.emit(x)
    for i in range(8):
        a.emit(f'buffer_store_dwordx4 v[{GIV+4*i}:{GIV+4*i+3}], v{VPS}, s[{SX}:{SX+3}], {f"s{S_T}" if i >= 4 else "0"} offen offset:{(i&3)*1024} sc1')
    for x in addr(): a.emit(x)
    a.emit(f's_mov_b32 s{S_CNT}, {EV[0]}')
    a.emit(f's_mov_b32 s{S_KT}, 0')
    a.emit(f'v_mov_b32 v{VF}, 1')
    a.emit('s_waitcnt lgkmcnt(0)')
    a('.p2align 3')
    a.label(f'L_{kind}_loop')
    for s in range(2):
        a.emit('s_barrier')
        if s == 0: a.emit(f's_sub_u32 s{S_CNT}, s{S_CNT}, 1')
        ad = addr()
        ad[-1] += '\n  s_nop 0' if s == 0 else f'\n  s_cmp_lg_u32 s{S_CNT}, 0'
        interleave(a, mm(s, 0, 4) + mm(s, 1, 4), rd(1 - s, 0, 4) + rd(1 - s, 1, 4) + ad, lead=1, per=2)
        a.emit('s_waitcnt lgkmcnt(0)')
    a.emit(f's_cbranch_scc1 L_{kind}_loop')
    a.emit(f's_add_u32 s{S_KT}, s{S_KT}, 1')
    a.emit(f's_cmp_eq_u32 s{S_KT}, 4')
    a.emit(f's_cbranch_scc1 L_{kind}_epi')
    a.emit(f's_cmp_eq_u32 s{S_KT}, 2')
    a.emit(f's_cbranch_scc1 L_{kind}_ev2')
    a.emit(f's_cmp_eq_u32 s{S_KT}, 3')
    a.emit(f's_cbranch_scc1 L_{kind}_ev3')
    poll = f'buffer_load_dword v{VF}, v{VFL}, s[{SW}:{SW+3}], 0 offen sc1'
    def nextseg(k):
        n = (EV[k] if k < 3 else P2 // 2) - EV[k - 1]
        if n:
            a.emit(f's_mov_b32 s{S_CNT}, {n}')
            a.emit(f's_branch L_{kind}_loop')
        else: a.emit(f's_add_u32 s{S_KT}, s{S_KT}, 1')
    a.emit('s_waitcnt vmcnt(0)')
    a.emit('s_mov_b64 exec, 1')
    a.emit(f'buffer_store_dword v{VF}, v{VFS}, s[{SW}:{SW+3}], 0 offen sc1')
    a.emit('s_mov_b64 exec, -1')
    nextseg(1)
    a.label(f'L_{kind}_ev2')
    a.emit(poll)
    nextseg(2)
    a.label(f'L_{kind}_ev3')
    a.emit(f's_mov_b32 s{S_CNT}, 0x100000')
    a.label(f'L_{kind}_spin')
    a.emit('s_waitcnt vmcnt(0)')
    a.emit(f'v_readfirstlane_b32 s3, v{VF}')
    a.emit(f's_sub_u32 s{S_CNT}, s{S_CNT}, 1')
    a.emit(f's_cselect_b32 s3, 1, s3')
    a.emit('s_cmp_eq_u32 s3, 1')
    a.emit(f's_cbranch_scc1 L_{kind}_got')
    a.emit(poll)
    a.emit(f's_branch L_{kind}_spin')
    a.label(f'L_{kind}_got')
    for i in range(8):
        a.emit(f'buffer_load_dwordx4 v[{GIV+4*i}:{GIV+4*i+3}], v{VPL}, s[{SX}:{SX+3}], {f"s{S_T}" if i >= 4 else "0"} offen offset:{(i&3)*1024} sc1')
    nextseg(3)
    a.label(f'L_{kind}_epi')
    stamp(a, 2)
    for jm in range(2):
        for jn in range(4):
            r = RES + (jn * 2 + jm) * 2
            a.emit(f'ds_read_b64 v[{r}:{r+1}], v15 offset:{jm*2048+jn*512}')
    for i in range(4): a.emit(f'v_mov_b32 v{20+i}, 0')
    a.emit(f's_mov_b32 s3, {16*2048}')
    a.emit('s_mov_b32 s10, 0x3f803f80')
    for jm in range(2):
        for jn in range(4):
            c = acc(jn, jm); r = RES + (jn * 2 + jm) * 2
            a.emit(f's_waitcnt lgkmcnt({7 - (jm * 4 + jn)})')
            for h in range(2):
                a.emit(f'v_lshlrev_b32 v{TM+2*h}, 16, v{r+h}')
                a.emit(f'v_and_b32 v{TM+1+2*h}, s11, v{r+h}')
            for h in range(2):
                a.emit(f'v_pk_add_f32 v[{c+2*h}:{c+2*h+1}], v[{c+2*h}:{c+2*h+1}], v[{TM+2*h}:{TM+1+2*h}]')
    a.emit('s_waitcnt vmcnt(0)')
    D = 32
    for jm in range(2):
        for p in range(2):
            d = D + (jm * 2 + p) * 4
            for q in range(2):
                c = acc(2 * p + q, jm)
                for h in range(2):
                    a.emit(f'v_pk_add_f32 v[{c+2*h}:{c+2*h+1}], v[{c+2*h}:{c+2*h+1}], v[{c+32+2*h}:{c+33+2*h}]')
                a.emit(f'v_cvt_pk_bf16_f32 v{d+2*q}, v{c}, v{c+1}')
                a.emit(f'v_cvt_pk_bf16_f32 v{d+2*q+1}, v{c+2}, v{c+3}')
            a.emit('s_nop 1')
            a.emit(f'v_permlane16_swap_b32 v{d}, v{d+2}')
            a.emit(f'v_permlane16_swap_b32 v{d+1}, v{d+3}')
            a.emit(f'buffer_store_dwordx4 v[{d}:{d+3}], v{VO}, s[{SO}:{SO+3}], {"s3" if jm else "0"} offen offset:{p*PSTEP}{stf(kind)}')
    for jm in range(2):
        for i in range(8):
            d = D + jm * 8 + i
            a.emit(f'v_dot2_f32_bf16 v{20+jm}, v{d}, s10, v{20+jm}')
            a.emit(f'v_dot2_f32_bf16 v{22+jm}, v{d}, v{d}, v{22+jm}')
    a.emit('s_nop 2')
    a.emit('v_permlane32_swap_b32 v20, v21')
    a.emit('v_permlane32_swap_b32 v22, v23')
    a.emit('v_add_f32 v20, v20, v21')
    a.emit('v_add_f32 v22, v22, v23')
    a.emit('s_nop 1')
    a.emit('v_permlane16_swap_b32 v20, v22')
    a.emit('v_add_f32 v20, v20, v22')
    a.emit(f'buffer_store_dword v20, v18, s[{ST}:{ST+3}], 0 offen{stf(kind)}')
    stamps_out(a, kind)
    a.emit('s_endpgm')
    a.label(f'L_{kind}_loader')
    L = Loader2(a, kind, K, lda2, ldw2, S, STAGE, P1)
    L.setup()
    a.emit('s_waitcnt lgkmcnt(0)')
    srd(a, SX, 'ws', WS_H, 2048 * 7168); srd(a, SW, 'w2', 0, 3584 * 2048)
    def tail():
        srd(a, SR, 'ws', WS_X1, 4 * MB)
        L.xoff_blk(2048)
        a.emit(f's_lshl_b32 s4, s{S_NT}, 11')
        for x in L.xdma(S_XD, LRES, SR, 4, True): a.emit(x)
    L.run2(tail, 4)
    a.label(end)
    a.emit('s_endpgm')
    loader_first(a, kind)
    a(KD.format(name=f'{kind}l0_kernel'))
    stub(a, f'{kind}l1_kernel', body, 1, tsidx + 4, False)
    a.label(f'L_{kind}_c1')
    a(KD.format(name=f'{kind}l1_kernel'))
    return S * STAGE

def zero_flags(a):
    srd(a, SR, 'ws', WS_FL, 131072)
    a.emit('s_lshl_b32 s3, s2, 8')
    a.emit(f's_lshl_b32 s4, s{S_LAYER}, 16')
    a.emit('s_add_u32 s3, s3, s4')
    a.emit('v_lshlrev_b32 v2, 2, v1')
    a.emit('v_mov_b32 v3, 0')
    a.emit(f'buffer_store_dword v3, v2, s[{SR}:{SR+3}], s3 offen sc1')
    return 1
```

```python
from common import *
LM_WO = int(ENV('LM_WO', '2')); LM_W1 = int(ENV('LM_W1', '3')); LM_W2 = int(ENV('LM_W2', '2')); LM_QKV = int(ENV('LM_QKV', '3'))
PV = 96

def fin(a):
    a.emit('s_waitcnt vmcnt(0)')

def pf_wo(a):
    L = 1 << (5 - LM_WO)
    sh = 5 - LM_WO
    return pf_weights(a, SP, 'wo', 2 * MB, 2048, 32, sh, L, LM_WO, 128, max(1, (8 << sh) // 64), PV)

def touch(a, which, size, vd, l0only=True):
    if 'nopf' in DBG: return 0
    per = size // 128 // 1024
    assert per <= 64
    srd(a, SP, which, 0, size)
    a.emit(f's_and_b32 s3, s{S_WV}, 3')
    a.emit('s_lshl_b32 s4, s2, 2')
    a.emit('s_add_u32 s3, s3, s4')
    a.emit(f's_mul_i32 s3, s3, {per * 128}')
    a.emit(f'v_min_u32 v2, {per - 1}, v1')
    a.emit('v_lshlrev_b32 v2, 7, v2')
    if l0only:
        a.emit(f's_sub_u32 s4, s{S_LAYER}, 1')
        a.emit('v_and_b32 v2, s4, v2')
    a.emit(f'buffer_load_dword v{vd}, v2, s[{SP}:{SP+3}], s3 offen')
    return 1

def qkv(a, layer, phase):
    if phase == 'issue':
        n = 0
        if layer == 0:
            srd(a, SC, 'w1', 0, 1024 * 7168)
            a.emit('s_min_u32 s3, s2, 223')
            a.emit('s_mul_i32 s4, s3, 4682')
            a.emit('s_lshr_b32 s4, s4, 16')
            a.emit('s_mul_i32 s5, s4, 14')
            a.emit('s_sub_u32 s3, s3, s5')
            a.emit('s_lshl_b32 s3, s3, 2')
            a.emit(f's_and_b32 s5, s{S_WV}, 3')
            a.emit('s_add_u32 s3, s3, s5')
            a.emit(f's_mul_i32 s5, s4, {64 * 7168}')
            a.emit('s_lshl_b32 s8, s3, 7')
            a.emit('s_add_u32 s5, s5, s8')
            a.emit('s_lshl_b32 s9, s4, 14')
            a.emit('s_lshl_b32 s8, s3, 8')
            a.emit('s_add_u32 s9, s9, s8')
            a.emit('v_lshrrev_b32 v2, 3, v1')
            a.emit('v_mul_u32_u24 v2, 7168, v2')
            a.emit('v_and_b32 v3, 7, v1')
            a.emit('v_lshl_add_u32 v2, v3, 4, v2')
            for j in range(8):
                a.emit(f'buffer_load_dwordx4 v[{64+4*j}:{67+4*j}], v2, s[{SC}:{SC+3}], s5 offen')
                if j < 7: a.emit(f's_add_u32 s5, s5, {8 * 7168}')
            n += 8
            if ENV('TW2') == 'qkv': n += touch(a, 'w2', 3584 * 2048, PV + 2, False)
        if ENV('PWO', 'v') == 'v': n += pf_wo(a)
        return n
    if layer == 0:
        a.emit('s_waitcnt vmcnt(0)')
        a.emit('s_mov_b32 s7, 0xffff0000')
        for i in range(4):
            a.emit(f'v_lshlrev_b32 v{32+2*i}, 16, v{64+i}')
            a.emit(f'v_and_b32 v{33+2*i}, s7, v{64+i}')
        for j in range(1, 8):
            for i in range(4):
                a.emit(f'v_lshlrev_b32 v40, 16, v{64+4*j+i}')
                a.emit(f'v_and_b32 v41, s7, v{64+4*j+i}')
                a.emit(f'v_pk_add_f32 v[{32+2*i}:{33+2*i}], v[{32+2*i}:{33+2*i}], v[40:41]')
        srd(a, SC, 'ws', WS_CS, 16 * 16384)
        for i in range(4): a.emit(f'v_permlane32_swap_b32 v{32+i}, v{36+i}')
        for i in range(4): a.emit(f'v_add_f32 v{32+i}, v{32+i}, v{36+i}')
        a.emit('v_and_b32 v2, 7, v1')
        a.emit('v_lshlrev_b32 v2, 5, v2')
        for i in range(2): a.emit(f'v_permlane16_swap_b32 v{32+i}, v{34+i}')
        for i in range(2): a.emit(f'v_add_f32 v{32+i}, v{32+i}, v{34+i}')
        a.emit('v_lshrrev_b32 v3, 4, v1')
        a.emit('v_lshl_add_u32 v2, v3, 3, v2')
        for i in range(2): a.emit(f'v_add_f32_dpp v{32+i}, v{32+i}, v{32+i} row_ror:8 row_mask:0xf bank_mask:0xf')
        a.emit(f'buffer_store_dwordx2 v[32:33], v2, s[{SC}:{SC+3}], s9 offen')
    else:
        fin(a)

def wo(a, phase):
    if phase == 'issue':
        return touch(a, 'w2', 3584 * 2048, PV) if ENV('TW2') == 'wo' else 0
    fin(a)

def stouch(a, which, size, sd, sreg, first, lps, pre=0):
    if lps == 0: return []
    srd(a, sd, which, 0, size)
    a.emit(f's_cmp_eq_u32 s{S_LAYER}, 0')
    a.emit(f's_cselect_b32 s{sd+2}, s{sd+2}, 0')
    a.emit(f's_and_b32 s3, s{S_WV}, 3')
    a.emit('s_lshl_b32 s4, s2, 2')
    a.emit('s_add_u32 s3, s3, s4')
    a.emit(f's_mul_i32 s{sreg}, s3, {size // 1024}')
    for i in range(pre): a.emit(f's_buffer_load_dword s84, s[{sd}:{sd+3}], s{sreg} offset:{64*(first+i)}')
    return [f's_buffer_load_dword s84, s[{sd}:{sd+3}], s{sreg} offset:{64*(first+pre+i)}' for i in range(lps)] + [f's_add_u32 s{sreg}, s{sreg}, {64*lps}']

STV = [int(x) for x in ENV('STV', '4,0,4,0').split(',')]
def stouch_post(a, kind):
    if ENV('TW2', 'w1') != 's': return ()
    if kind == 'attn':
        return stouch(a, 'w2', 3584 * 2048, SR, S_T, 0, STV[0]) + stouch(a, 'wo', 2 * MB, SB, 86, 0, STV[3], pre=max(0, 32 - 14 * STV[3]))
    if kind == 'wo': return stouch(a, 'w2', 3584 * 2048, SP, S_T, 14 * STV[0], STV[1])
    if kind == 'w1': return stouch(a, 'w2', 3584 * 2048, SP, S_T, 14 * STV[0] + 11 * STV[1], STV[2])
    return ()

def w1(a, phase):
    if phase == 'issue':
        n = 0
        if ENV('SPLIT', '1') == '1':
            from gemmw2 import zero_flags
            n = zero_flags(a)
        return n + (touch(a, 'w2', 3584 * 2048, PV) if ENV('TW2', 'w1') == 'w1' else 0)
    fin(a)

def w2(a, phase):
    return 0
```

```python
import sys, os, struct
sys.path.insert(0, os.path.join(os.path.dirname(os.path.abspath(__file__)), '..'))
from asmlib import Asm, check_offsets
MB = 1 << 20
WSB = int(os.environ.get('WSB', '0')) * MB
WS_O   = WSB
WS_X1  = WSB + 4 * MB
WS_H   = WSB + 8 * MB
WS_ST  = WSB + 23 * MB
WS_CS  = WSB + 23 * MB + 512 * 1024
WS_TS  = 60 * MB
MEGA = os.environ.get('MEGA', '2') in ('1', '2')
ONE = os.environ.get('MEGA', '2') == '2'
LSTR = 64 * MB
WS_ST2 = WS_ST + 256 * 1024 if MEGA else WS_ST
WS_FL = WSB + 23 * MB + 768 * 1024
WS_XP = WSB + 24 * MB
WS_X2 = WSB + 32 * MB
XPAD = int(os.environ.get('XPAD', '128')) if MEGA else 0
f2u = lambda f: struct.unpack('<I', struct.pack('<f', f))[0]
ENV = os.environ.get
TS = ENV('TS', '')
DBG = ENV('DBG', '').split(',')
EARLY = int(ENV('EARLY', '24')) if MEGA and ENV('SPLIT', '0') == '0' else 0
def stf(kind): return (' ' + ENV('WTF', 'sc1')) if kind in ENV('WT', 'attn,wo,w2,w1').split(',') else ''

KA = {'A_x': 0, 'wqkv': 8, 'wo': 16, 'w1': 32, 'b1': 40, 'w2': 48, 'b2': 56, 'out': 64, 'ws': 80}
P_IN = 16
P_OUT = 32; P_WS = 34
P_XS = 12
PTR = {'A_x': 16, 'wqkv': 18, 'wo': 20, 'w1': 24, 'b1': 26, 'w2': 28, 'b2': 30, 'out': 32, 'ws': 34, 'xs': 12, 'ws0': 22}
SX, SW, SO, SR, SB, ST, SP, SC = 36, 40, 44, 48, 52, 56, 60, 64
S_MT, S_NT, S_WV, S_WM, S_WN = 68, 69, 70, 71, 72
S_KX, S_KW, S_SLOT, S_XD, S_WD, S_HD, S_CNT = 73, 74, 75, 76, 77, 78, 79
S_LAYER = 96; S_TSI = 97; S_T = 98; S_CU = 99; S_XG = 100; S_KT = 101

KD = '''.section .rodata,"a"
.p2align 6
.amdhsa_kernel {name}
  .amdhsa_next_free_vgpr 256
  .amdhsa_next_free_sgpr 102
  .amdhsa_accum_offset 256
  .amdhsa_group_segment_fixed_size 0
  .amdhsa_kernarg_size 88
  .amdhsa_user_sgpr_count 2
  .amdhsa_user_sgpr_kernarg_segment_ptr 1
  .amdhsa_system_sgpr_workgroup_id_x 1
  .amdhsa_float_denorm_mode_32 3
  .amdhsa_float_denorm_mode_16_64 3
.end_amdhsa_kernel
.text
'''

def srd(a, sd, which, off, size):
    p = PTR[which]
    if off:
        a.emit(f's_add_u32 s{sd}, s{p}, {off}')
        a.emit(f's_addc_u32 s{sd+1}, s{p+1}, 0')
        a.emit(f's_and_b32 s{sd+1}, s{sd+1}, 0xffff')
    else:
        a.emit(f's_mov_b32 s{sd}, s{p}')
        a.emit(f's_and_b32 s{sd+1}, s{p+1}, 0xffff')
    a.emit(f's_mov_b32 s{sd+2}, {size}')
    a.emit(f's_mov_b32 s{sd+3}, 0x00020000')

def xpitch(a, sd, inv=False):
    a.emit(f's_cmp_eq_u32 s{S_LAYER}, {0 if inv else 1}')
    a.emit(f's_cselect_b32 s{sd}, {XPAD}, 0')
    a.emit(f's_add_u32 s{sd}, s{sd}, 2048')

def srd_xs(a, sd):
    srd(a, sd, 'xs', 0, 4 * MB)
    xpitch(a, sd + 2)
    a.emit(f's_lshl_b32 s{sd+2}, s{sd+2}, 11')

def stub(a, name, body, layer, tsidx, first):
    a(f'.text\n.globl {name}\n.p2align 8\n.type {name},@function\n{name}:')
    if TS:
        stamp(a, 0, nowait=True)
    a.emit('s_load_dwordx4 s[16:19], s[0:1], 0')
    a.emit('s_load_dwordx2 s[20:21], s[0:1], 16')
    a.emit('s_load_dwordx2 s[22:23], s[0:1], 80')
    a.emit('s_load_dwordx8 s[24:31], s[0:1], 32')
    a.emit('s_load_dwordx2 s[32:33], s[0:1], 64')
    a.emit('s_load_dwordx2 s[34:35], s[0:1], 80')
    a.emit(f's_load_dwordx2 s[12:13], s[0:1], {0 if layer == 0 else 64}')
    a.emit(f's_mov_b32 s{S_LAYER}, {layer}')
    a.emit(f's_mov_b32 s{S_TSI}, {tsidx}')
    if not first:
        a.emit(f's_branch {body}')

def stamp(a, n, nowait=False):
    if not TS: return
    a.emit(f's_memrealtime s[{80+4*n}:{81+4*n}]')
    a.emit(f's_memtime s[{82+4*n}:{83+4*n}]')
    if not nowait: a.emit('s_waitcnt lgkmcnt(0)')

def stamps_out(a, tag):
    if not TS: return
    if not MEGA: a.emit('s_waitcnt vmcnt(0)')
    stamp(a, 3)
    if MEGA and tag == 'w1':
        for i in range(16): a.emit(f'v_writelane_b32 v200, s{80+i}, {i}')
        return
    srd(a, SP, 'ws0', WS_TS, 1 << 20)
    a.emit('s_lshl_b32 s4, s2, 6')
    a.emit(f's_lshl_b32 s5, s{S_TSI}, 16')
    a.emit('s_add_u32 s4, s4, s5')
    a.emit('v_mov_b32 v1, s4')
    for i in range(16): a.emit(f'v_mov_b32 v{4+i}, s{80+i}')
    a.emit('v_cmp_eq_u32 vcc, 0, v0')
    a.emit('s_and_saveexec_b64 s[6:7], vcc')
    a.emit(f's_cbranch_execz L_tsskip_{tag}')
    for j in range(4):
        a.emit(f'buffer_store_dwordx4 v[{4+4*j}:{7+4*j}], v1, s[{SP}:{SP+3}], 0 offen offset:{16*j}')
    if MEGA and tag == 'w2':
        a.emit('s_mov_b64 exec, 0xffff')
        a.emit('s_sub_u32 s4, s4, 0x10000')
        a.emit('v_lshlrev_b32 v1, 2, v0')
        a.emit(f'buffer_store_dword v200, v1, s[{SP}:{SP+3}], s4 offen')
    a.label(f'L_tsskip_{tag}')
    a.emit('s_mov_b64 exec, -1')

def lstamp(a, n):
    if TS: a.emit(f's_memrealtime s[{52+2*n}:{53+2*n}]')

def lstamps_out(a, tag):
    if not TS: return
    a.emit(f's_cmp_lg_u32 s{S_WV}, 4')
    a.emit(f's_cbranch_scc1 L_ltsskip_{tag}')
    a.emit('s_waitcnt lgkmcnt(0)')
    srd(a, SP, 'ws0', WS_TS + 16384, 1 << 20)
    a.emit('s_lshl_b32 s4, s2, 6')
    a.emit(f's_lshl_b32 s5, s{S_TSI}, 16')
    a.emit('s_add_u32 s4, s4, s5')
    for i in range(8): a.emit(f'v_writelane_b32 v20, s{52+i}, {i}')
    a.emit('v_lshlrev_b32 v21, 2, v1')
    a.emit('s_mov_b64 exec, 0xff')
    a.emit(f'buffer_store_dword v20, v21, s[{SP}:{SP+3}], s4 offen')
    a.emit('s_mov_b64 exec, -1')
    a.label(f'L_ltsskip_{tag}')

def tile_map(a, LM, endlab):
    a.emit('s_cmp_ge_u32 s2, 256')
    a.emit(f's_cbranch_scc1 {endlab}')
    a.emit('v_lshrrev_b32 v2, 6, v0')
    a.emit('v_and_b32 v1, 63, v0')
    a.emit(f'v_readfirstlane_b32 s{S_WV}, v2')
    a.emit('s_and_b32 s3, s2, 7')
    a.emit(f's_lshr_b32 s{S_CU}, s2, 3')
    if LM == 2 and ENV('MAP2', '0') == '1':
        a.emit('s_lshl_b32 s5, s3, 1')
        a.emit('s_lshr_b32 s6, s3, 1')
        a.emit('s_and_b32 s5, s5, 2')
        a.emit('s_and_b32 s6, s6, 1')
        a.emit('s_or_b32 s5, s5, s6')
    else: a.emit(f's_and_b32 s5, s3, {(1 << (4 - LM)) - 1}')
    a.emit(f's_lshl_b32 s5, s5, {LM}')
    a.emit(f's_and_b32 s6, s{S_CU}, {(1 << LM) - 1}')
    a.emit(f's_add_u32 s{S_MT}, s5, s6')
    a.emit(f's_lshr_b32 s5, s3, {4 - LM}')
    a.emit(f's_lshl_b32 s5, s5, {5 - LM}')
    a.emit(f's_lshr_b32 s6, s{S_CU}, {LM}')
    a.emit(f's_add_u32 s{S_NT}, s5, s6')
    if 'smallm' in DBG: a.emit(f's_and_b32 s{S_MT}, s{S_MT}, 1')
    if 'smalln' in DBG: a.emit(f's_and_b32 s{S_NT}, s{S_NT}, 1')

def interleave(a, main, side, lead=1, per=1):
    si = 0
    for i, m in enumerate(main):
        a.emit(m)
        if i + 1 >= lead:
            for _ in range(per):
                if si < len(side): a.emit(side[si]); si += 1
    while si < len(side): a.emit(side[si]); si += 1

class Loader:
    VXD = 4; VWD = 8; VXH = 28
    def __init__(self, a, tag, K, lda2, ldw2, panels, colbase, S, STAGE, halo=None, delta=0, rot=None, xblk=False, half=0):
        self.a = a; self.tag = tag; self.K = K; self.lda2 = lda2; self.ldw2 = ldw2; self.panels = panels
        self.colbase = colbase; self.S = S; self.STAGE = STAGE; self.halo = halo; self.delta = delta; self.xblk = xblk; self.rot = rot if rot is not None and rot >= 0 else None
        self.NSTEP = K // 64; self.half = half
        self.per = 4 + 2 * len(panels) + (1 if halo is not None else 0)
    def setup(self):
        a = self.a
        if ENV('PRIO', '0') != '0': a.emit(f"s_setprio {ENV('PRIO')}")
        a.emit(f's_add_u32 s8, s{S_WV}, s{S_NT}')
        a.emit('s_and_b32 s8, s8, 3')
        a.emit(f's_add_u32 s9, s{S_WV}, s{S_MT}')
        a.emit('s_and_b32 s9, s9, 3')
        a.emit(f's_lshl_b32 s{S_XD}, s8, 12')
        a.emit(f's_lshl_b32 s{S_WD}, s9, 11')
        a.emit(f's_add_u32 s{S_WD}, s{S_WD}, 16384')
        a.emit(f's_lshl_b32 s11, s{S_MT}, 7')
        a.emit('v_and_b32 v10, 7, v1')
        if self.xblk: self.xoff_blk(self.lda2)
        else: self.xoff_rows(self.lda2)
        a.emit('v_lshrrev_b32 v3, 3, v1')
        a.emit('s_lshl_b32 s10, s9, 4')
        a.emit('v_add_u32 v3, s10, v3')
        a.emit(f'v_mul_u32_u24 v3, {self.ldw2}, v3')
        a.emit('v_lshrrev_b32 v2, 3, v1')
        a.emit('v_and_b32 v2, 2, v2')
        a.emit('v_xor_b32 v2, v2, v10')
        a.emit(f's_mul_i32 s10, s{S_NT}, {self.colbase}')
        if self.colbase & 127: a.emit('s_andn2_b32 s10, s10, 127')
        a.emit('v_add_u32 v3, s10, v3')
        a.emit(f'v_lshl_add_u32 v{self.VWD}, v2, 4, v3')
        a.emit('v_xor_b32 v2, 4, v2')
        a.emit(f'v_add_u32 v3, {8*self.ldw2}, v3')
        a.emit(f'v_lshl_add_u32 v{self.VWD+1}, v2, 4, v3')
        if self.half:
            a.emit('v_lshrrev_b32 v3, 2, v1')
            a.emit('s_lshl_b32 s10, s9, 4')
            a.emit('v_add_u32 v3, s10, v3')
            a.emit(f'v_mul_u32_u24 v3, {self.ldw2}, v3')
            a.emit('v_lshrrev_b32 v2, 4, v1')
            a.emit('v_and_b32 v2, 2, v2')
            a.emit('v_xor_b32 v2, v2, v1')
            a.emit('v_and_b32 v2, 3, v2')
            a.emit(f's_lshl_b32 s10, s{S_NT}, 6')
            a.emit(f's_add_u32 s10, s10, {self.half}')
            a.emit('v_add_u32 v3, s10, v3')
            a.emit(f'v_lshl_add_u32 v{self.VXH}, v2, 4, v3')
            a.emit(f's_lshl_b32 s{S_HD}, s{S_NT}, 7')
            a.emit(f's_add_u32 s{S_HD}, s{S_HD}, 3072')
        if self.halo is not None:
            a.emit(f's_and_b32 s10, s{S_WV}, 3')
            a.emit(f's_lshl_b32 s{S_HD}, s10, 9')
            a.emit(f's_add_u32 s{S_HD}, s{S_HD}, {self.halo}')
            a.emit('s_lshl_b32 s14, s10, 2')
            a.emit('s_add_u32 s14, s14, s11')
            a.emit('s_sub_u32 s14, s14, 16')
            a.emit('v_lshrrev_b32 v3, 3, v1')
            a.emit('v_add_u32 v3, s14, v3')
            a.emit('v_max_i32 v3, 0, v3')
            a.emit('v_mul_u32_u24 v3, s5, v3')
            a.emit('s_lshl_b32 s14, s10, 1')
            a.emit('v_lshrrev_b32 v2, 4, v1')
            a.emit('v_add_u32 v2, s14, v2')
            a.emit('v_and_b32 v2, 7, v2')
            a.emit('v_xor_b32 v2, v2, v10')
            a.emit(f'v_lshl_add_u32 v{self.VXH}, v2, 4, v3')
            a.emit('s_cmp_eq_u32 s10, 0')
            a.emit('s_cselect_b32 s14, 0xffffff00, -1')
            a.emit('s_mov_b32 s15, 0')
        a.emit(f's_mov_b32 s{S_SLOT}, 0')
        if self.rot is None:
            a.emit(f's_mov_b32 s{S_KX}, 0')
            a.emit(f's_mov_b32 s{S_KW}, 0')
        else:
            if not getattr(self, 'noxg', False): a.emit(f's_add_u32 s{S_XG}, s{S_MT}, s{S_NT}')
            a.emit(f's_mov_b32 s{S_KT}, {0 if EARLY and self.tag == "w2" else -1}')
            for x in self.knext(): a.emit(x)
    def xoff_rows(self, ld):
        a = self.a
        a.emit('v_lshrrev_b32 v3, 3, v1')
        a.emit(f's_lshr_b32 s10, s{S_XD}, 7')
        a.emit(f's_lshl_b32 s3, s{S_MT}, 7')
        a.emit('s_add_u32 s10, s10, s3')
        a.emit('v_add_u32 v3, s10, v3')
        xpitch(a, 5)
        a.emit('s_lshl_b32 s6, s5, 3')
        a.emit('v_mul_u32_u24 v3, s5, v3')
        a.emit('v_lshrrev_b32 v2, 4, v1')
        for j in range(4):
            d = self.VXD + j
            if j & 1:
                a.emit(f'v_add_u32 v{d}, 4, v2')
                a.emit(f'v_xor_b32 v{d}, v{d}, v10')
            else:
                a.emit(f'v_xor_b32 v{d}, v2, v10')
            a.emit(f'v_lshl_add_u32 v{d}, v{d}, 4, v3')
            if j < 3: a.emit('v_add_u32 v3, s6, v3')
    def xoff_blk(self, ld):
        a = self.a
        a.emit(f's_lshr_b32 s10, s{S_XD}, 11')
        a.emit(f's_lshl_b32 s3, s{S_MT}, 3')
        a.emit('s_add_u32 s10, s10, s3')
        a.emit(f's_mul_i32 s10, s10, {16*ld}')
        a.emit(f'v_lshl_add_u32 v{self.VXD}, v1, 4, s10')
        a.emit(f'v_add_u32 v{self.VXD+1}, {16*ld}, v{self.VXD}')
    def xdma(self, base, imm, sd, soff, blk):
        o = []
        for j in range(4):
            if blk:
                if not j & 1: o += [f's_add_u32 m0, s{base}, {imm + j*1024}', 's_nop 0']
                o.append(f'buffer_load_dwordx4 v{self.VXD+(j>>1)}, s[{sd}:{sd+3}], s{soff} offen offset:{(j&1)*1024} lds')
            else:
                o += [f's_add_u32 m0, s{base}, {imm + j*1024}', 's_nop 0', f'buffer_load_dwordx4 v{self.VXD+j}, s[{sd}:{sd+3}], s{soff} offen lds']
        return o
    def knext(self):
        if self.rot is None:
            return [f's_add_u32 s{S_KX}, s{S_KX}, {2048 if self.xblk else 128}', f's_add_u32 s{S_KW}, s{S_KW}, {64*self.ldw2}']
        lc = self.rot; C = 1 << lc; N = self.NSTEP
        o = [f's_add_u32 s{S_KT}, s{S_KT}, 1']
        D = int(ENV('ROTD_' + self.tag.upper(), ENV('ROTD', '2')))
        dl = {3: [3, -1, -1, -1], 2: [2, -1, -1, 0], 1: [1, -1, 0, 0]}[D]
        tbl = sum((((d * C) % N) << (8 * i)) for i, d in enumerate(dl))
        if lc: o += [f's_lshr_b32 s{S_KX}, s{S_KT}, {lc}', f's_sub_u32 s{S_KX}, s{S_KX}, s{S_XG}']
        else: o += [f's_sub_u32 s{S_KX}, s{S_KT}, s{S_XG}']
        o += [f's_lshl_b32 s{S_KX}, s{S_KX}, 3',
              f's_lshr_b32 s{S_KX}, {tbl:#x}, s{S_KX}',
              f's_and_b32 s{S_KX}, s{S_KX}, 255',
              f's_add_u32 s{S_KX}, s{S_KX}, s{S_KT}']
        if N & (N - 1) == 0: o += [f's_and_b32 s{S_KX}, s{S_KX}, {N - 1}']
        else: o += [f's_sub_u32 s{S_KW}, s{S_KX}, {N}', f's_cselect_b32 s{S_KX}, s{S_KX}, s{S_KW}']
        o += [f's_mul_i32 s{S_KW}, s{S_KX}, {64*self.ldw2}', f's_lshl_b32 s{S_KX}, s{S_KX}, {11 if self.xblk else 7}']
        return o
    def panels_of(self, t): return self.panels
    def issue_x(self, bx, bh, imm, kx):
        o = self.xdma(bx, imm, SX, kx, self.xblk)
        if self.halo is not None:
            o.append(f's_add_u32 m0, s{S_HD}, {bh}')
            o.append('s_mov_b64 exec, s[14:15]')
            o.append(f'buffer_load_dwordx4 v{self.VXH}, s[{SX}:{SX+3}], s{kx} offen lds')
            o.append('s_mov_b64 exec, -1')
        return o
    def issue_w(self, t, bw, imm):
        o = []
        for pn, goff in enumerate(self.panels_of(t)):
            for i in range(2):
                o.append(f's_add_u32 m0, s{bw}, {imm+pn*8192+i*1024}')
                o.append((goff if str(goff).startswith('s_') else f's_add_u32 s4, s{S_KW}, {goff}') if i == 0 else 's_nop 0')
                o.append(f'buffer_load_dwordx4 v{self.VWD+i}, s[{SW}:{SW+3}], s4 offen lds')
        if self.half:
            o += [f's_add_u32 m0, s{bw}, {imm+len(self.panels)*8192}', 's_nop 0',
                  f'buffer_load_dwordx4 v{self.VXH}, s[{SW}:{SW+3}], s{S_KW} offen lds']
        return o
    def issue(self, t):
        o = [f's_add_u32 s3, s{S_SLOT}, s{S_XD}']
        o += self.issue_x(3, f's{S_SLOT}', 0, S_KX)
        o.append(f's_add_u32 s3, s{S_SLOT}, s{S_WD}')
        o += self.issue_w(t, 3, 0)
        o += self.knext()
        o.append(f's_add_u32 s{S_SLOT}, s{S_SLOT}, {self.STAGE}')
        o.append(f's_cmp_eq_u32 s{S_SLOT}, {self.S*self.STAGE}')
        o.append(f's_cselect_b32 s{S_SLOT}, 0, s{S_SLOT}')
        return o
    def run(self, variant='', tail_issue=None, ntail_vm=0, final=None, post=(), dep=None, tail_late=0, start=None):
        a = self.a; N = self.NSTEP; d = self.S - 1
        tag = self.tag + variant
        nx = 4 + (1 if self.halo is not None else 0)
        nw = lambda t: 2 * len(self.panels_of(t)) + (1 if self.half else 0)
        seq = []
        early = EARLY and self.tag == 'w2'
        pchk = EARLY - 3 - d - 1; piss = pchk - d + 1 - int(ENV('PEARLY', '0'))
        def em(o):
            for x in o:
                if 'nodma' in DBG and x.endswith(' lds'): continue
                a.emit(x)
        def after(t): return len(seq) - 1 - max(i for i, x in enumerate(seq) if x == t)
        def wait(n):
            assert n <= 63, n
            a.emit(f's_waitcnt vmcnt({n})')
        if dep is None:
            for t in range(2): em(self.issue(t)); seq += [t] * (nx + nw(t))
            if start: start()
            wait(after(0))
            a.emit('s_barrier')
            for t in range(2, d): em(self.issue(t)); seq += [t] * (nx + nw(t))
        else:
            prev = {'attn': 'w2', 'wo': 'attn', 'w1': 'wo', 'w2': 'w1'}[self.tag]
            assert 'attn' not in EBAR
            dep_pre(a, self.tag)
            if prev in EBAR: a.emit('s_barrier')
            xw = 1 if self.tag in ENV('XW', 'x').split(',') and not hasattr(self, 'P1') else 0
            for t in range(d + xw):
                a.emit(f's_mov_b32 s{88+t}, s{S_KX}')
                em(self.issue_w(t, S_WD, t * self.STAGE) + self.knext()); seq += [t] * nw(t)
            self.npre = len(seq)
            a.emit(f's_mov_b32 s{S_SLOT}, {0 if xw else d * self.STAGE}')
            dep()
            for t in range(d + xw):
                em(self.issue_x(S_XD, t * self.STAGE, t * self.STAGE, 88 + t)); seq += [t] * nx
            wait(after(0))
            if self.tag == 'w2': lstamp(a, 2)
            a.emit('s_barrier')
            if early: late_flag(a)
        ev = []
        for i in range(N):
            t = i + d
            if t in seq: t = N + 9
            if early and i == piss: seq += ['P']
            if t < N: seq += [t] * (nx + nw(t))
            tl = tail_issue is not None and t == N - 1 + tail_late
            if tl: seq += ['T'] * ntail_vm
            ev.append(((nw(t) if t < N else -1, after(i + 1) if i + 1 < N else -1, tl, early and i == piss, early and i == pchk), t))
        i = 0; nl = 0
        while i < N:
            j = i
            while j + 1 < N and ev[j + 1][0] == ev[i][0]: j += 1
            n = j - i + 1
            (k, w, tl, pi, pc), t = ev[i]
            if n >= 3:
                nl += 1
                a.emit(f's_mov_b32 s{S_CNT}, {n}')
                a.label(f'L_{tag}_ld{nl}')
            else: j = i
            if pi: a.emit(f'buffer_load_dword v13, v12, s[{SO}:{SO+3}], s86 offen sc1')
            if t < N:
                em(self.issue(t)); em(post)
            if tl: tail_issue()
            if w >= 0: wait(w)
            elif final: final()
            if pc: late_check(a)
            a.emit('s_barrier')
            if n >= 3:
                a.emit(f's_sub_u32 s{S_CNT}, s{S_CNT}, 1')
                a.emit(f's_cmp_lg_u32 s{S_CNT}, 0')
                a.emit(f's_cbranch_scc1 L_{tag}_ld{nl}')
            i = j + 1

EBAR = ENV('EBAR', 'x').split(',')
S_FL = 87
def dep_pre(a, kind):
    if ONE and kind in ('wo', 'w1'):
        a.emit(f's_add_u32 s3, s{S_LAYER}, s{S_WV}')
        a.emit('s_cmp_lg_u32 s3, 4')
        a.emit(f's_cbranch_scc1 L_{kind}_chk')
        if kind == 'wo': a.emit(f's_load_dwordx2 s[{SC}:{SC+1}], s[0:1], 72')
        else: srd(a, SO, 'ws0', WS_FL, 32768)
        a.emit(f's_mov_b32 s{S_CNT}, 0x100000')
        if kind == 'wo':
            a.emit('s_waitcnt lgkmcnt(0)')
            a.emit(f's_and_b32 s{SC+1}, s{SC+1}, 0xffff')
            a.emit(f's_mov_b32 s{SC+2}, 256')
            a.emit(f's_mov_b32 s{SC+3}, 0x00020000')
            a.emit('v_lshlrev_b32 v2, 2, v1')
        else:
            a.emit('v_lshrrev_b32 v2, 2, v1')
            a.emit('v_and_b32 v3, 3, v1')
            a.emit('v_lshlrev_b32 v2, 8, v2')
            a.emit('v_lshl_add_u32 v2, v3, 4, v2')
        a.label(f'L_{kind}_chkl')
        if kind == 'wo': a.emit(f'buffer_load_dword v12, v2, s[{SC}:{SC+3}], 0 offen sc1')
        else: a.emit(f'buffer_load_dwordx4 v[12:15], v2, s[{SO}:{SO+3}], 0 offen sc1')
        a.emit(f's_sub_u32 s{S_CNT}, s{S_CNT}, 1')
        a.emit(f's_cbranch_scc1 L_{kind}_chk')
        a.emit('s_waitcnt vmcnt(0)')
        if kind == 'wo': a.emit('v_cmp_ne_u32 vcc, 0x01010101, v12')
        else:
            a.emit('v_and_b32 v12, v12, v13')
            a.emit('v_and_b32 v14, v14, v15')
            a.emit('v_and_b32 v12, v12, v14')
            a.emit('v_cmp_ne_u32 vcc, 1, v12')
        a.emit(f's_cbranch_vccnz L_{kind}_chkl')
        a.label(f'L_{kind}_chk')

def dep_wait(a, kind, halo=False, skip_first=False, first=None):
    if skip_first and not ONE:
        a.emit(f's_cmp_eq_u32 s{S_TSI}, 1')
        a.emit(f's_cbranch_scc1 L_{kind}_dep')
    srd(a, SO, 'ws0', WS_FL, 32768)
    if ONE and kind == 'wo':
        a.emit(f's_cmp_lg_u32 s{S_LAYER}, 0')
        a.emit(f's_cbranch_scc1 L_{kind}_nofirst')
        first()
        a.label(f'L_{kind}_nofirst')
    a.emit(f's_lshl_b32 s3, s{S_TSI}, 12')
    a.emit(f's_lshl_b32 s4, s{S_MT}, 8')
    a.emit('s_add_u32 s3, s3, s4')
    a.emit('s_sub_u32 s3, s3, 4096')
    a.emit('v_and_b32 v2, 15, v1')
    a.emit('v_lshlrev_b32 v2, 2, v2')
    if halo:
        a.emit('s_min_u32 s4, s4, 256')
        a.emit('s_sub_u32 s3, s3, s4')
        a.emit('v_lshlrev_b32 v3, 4, v1')
        a.emit('v_and_b32 v3, s4, v3')
        a.emit('v_add_u32 v2, v2, v3')
    a.emit('v_mov_b32 v3, 1')
    a.emit(f's_mov_b32 s{S_CNT}, 0x100000')
    a.emit(f's_cmp_lg_u32 s{S_WV}, 4')
    a.emit('s_barrier')
    a.emit(f's_cbranch_scc1 L_{kind}_dep')
    if kind == 'w2': lstamp(a, 0)
    a.emit('s_mov_b64 exec, 1')
    a.emit(f'buffer_store_dword v3, off, s[{SO}:{SO+3}], s{S_FL} sc1')
    a.emit('s_mov_b64 exec, -1')
    a.label(f'L_{kind}_poll')
    a.emit(f'buffer_load_dword v3, v2, s[{SO}:{SO+3}], s3 offen sc1')
    a.emit(f's_sub_u32 s{S_CNT}, s{S_CNT}, 1')
    a.emit(f's_cbranch_scc1 L_{kind}_dep')
    a.emit('s_waitcnt vmcnt(0)')
    a.emit('v_cmp_ne_u32 vcc, 1, v3')
    a.emit(f's_cbranch_vccnz L_{kind}_poll')
    a.label(f'L_{kind}_dep')
    if kind == 'w2': lstamp(a, 1)
    a.emit('s_barrier')

LGO = 163840 - 64
def dep_early(a):
    srd(a, SO, 'ws0', WS_FL, 32768)
    a.emit(f's_lshl_b32 s86, s{S_TSI}, 12')
    a.emit(f's_lshl_b32 s4, s{S_MT}, 8')
    a.emit('s_add_u32 s86, s86, s4')
    a.emit('s_sub_u32 s86, s86, 4096')
    a.emit('v_and_b32 v12, 15, v1')
    a.emit('v_lshlrev_b32 v12, 2, v12')
    a.emit('v_mov_b32 v3, 0')
    a.emit(f'v_mov_b32 v2, {LGO}')
    a.emit('ds_write_b32 v2, v3')
    a.emit('v_mov_b32 v13, 1')
    a.emit(f's_mov_b32 s{S_CNT}, 0x100000')
    a.emit(f's_cmp_lg_u32 s{S_WV}, 4')
    a.emit('s_waitcnt lgkmcnt(0)')
    a.emit('s_barrier')
    a.emit('s_cbranch_scc1 L_w2_go')
    lstamp(a, 0)
    a.emit('s_mov_b64 exec, 1')
    a.emit(f'buffer_store_dword v13, off, s[{SO}:{SO+3}], s{S_FL} sc1')
    a.emit('s_mov_b64 exec, -1')
    a.label('L_w2_poll')
    a.emit(f'buffer_load_dword v3, v12, s[{SO}:{SO+3}], s86 offen sc1')
    a.emit(f's_sub_u32 s{S_CNT}, s{S_CNT}, 1')
    a.emit('s_cbranch_scc1 L_w2_rel')
    a.emit('s_waitcnt vmcnt(0)')
    a.emit('v_cmp_eq_u32 vcc, 0, v3')
    a.emit('s_cbranch_vccnz L_w2_poll')
    a.label('L_w2_rel')
    a.emit('ds_write_b32 v2, v13')
    lstamp(a, 1)
    a.emit('s_branch L_w2_dep')
    a.label('L_w2_go')
    a.emit(f's_mov_b32 s{S_CNT}, 0x2000000')
    a.label('L_w2_gol')
    a.emit('ds_read_b32 v3, v2')
    a.emit(f's_sub_u32 s{S_CNT}, s{S_CNT}, 1')
    a.emit('s_cbranch_scc1 L_w2_dep')
    a.emit('s_waitcnt lgkmcnt(0)')
    a.emit('v_cmp_eq_u32 vcc, 0, v3')
    a.emit('s_cbranch_vccnz L_w2_gol')
    a.label('L_w2_dep')

def late_flag(a):
    a.emit(f's_cmp_lg_u32 s{S_WV}, 4')
    a.emit('s_cbranch_scc1 L_w2_nolate')
    a.emit('v_mov_b32 v3, 2')
    a.emit('s_mov_b64 exec, 1')
    a.emit(f'buffer_store_dword v3, off, s[{SO}:{SO+3}], s{S_FL} sc1')
    a.emit('s_mov_b64 exec, -1')
    a.label('L_w2_nolate')

def late_check(a):
    a.emit(f's_mov_b32 s{S_CNT}, 0x100000')
    a.label('L_w2_lchk')
    a.emit('v_cmp_ne_u32 vcc, 2, v13')
    a.emit('s_cbranch_vccz L_w2_lok')
    a.emit(f'buffer_load_dword v13, v12, s[{SO}:{SO+3}], s86 offen sc1')
    a.emit(f's_sub_u32 s{S_CNT}, s{S_CNT}, 1')
    a.emit('s_waitcnt vmcnt(0)')
    a.emit('s_cbranch_scc0 L_w2_lchk')
    a.label('L_w2_lok')
    if TS: a.emit(f's_mov_b32 s58, s{S_CNT}')
    lstamps_out(a, 'w2')

def gbar(a, kind):
    if not MEGA or (EARLY and kind == 'w2'): return
    if kind == 'attn':
        a.emit(f's_cmp_eq_u32 s{S_LAYER}, 0')
        a.emit('s_cbranch_scc1 L_attn_nog')
    a.emit('s_barrier')
    if kind == 'attn': a.label('L_attn_nog')

def next_phase(a, kind):
    nxt = {'attn': 'wo', 'wo': 'w1', 'w1': 'w2', 'w2': 'attn'}[kind]
    if kind == 'w2':
        a.emit(f's_mov_b32 s{S_LAYER}, 1')
        a.emit(f's_add_u32 s12, s22, {WS_X2}')
        a.emit('s_addc_u32 s13, s23, 0')
        a.emit(f's_add_u32 s34, s22, {LSTR}')
        a.emit('s_addc_u32 s35, s23, 0')
    a.emit(f's_add_u32 s{S_TSI}, s{S_TSI}, 1')
    a.emit(f's_branch L_{nxt}_body')

def last_check(a, kind):
    if kind == 'w2' or (kind == 'attn' and not ONE):
        a.emit(f's_cmp_eq_u32 s{S_LAYER}, {0 if kind == "attn" else 1}')
        a.emit(f's_cbranch_scc1 L_{kind}_end')

def compute_end(a, kind):
    if not MEGA:
        stamps_out(a, kind)
        a.emit('s_endpgm')
        return
    if not TS: last_check(a, kind)
    if kind in EBAR: a.emit('s_barrier')
    if not (EARLY and kind == 'w1'):
        a.emit('s_waitcnt vmcnt(0)')
        a.emit('s_barrier')
    if TS:
        stamps_out(a, kind)
        last_check(a, kind)
    stamp(a, 0, nowait=True)
    next_phase(a, kind)

def loader_end(a, kind, check=True):
    if MEGA:
        if kind == 'w2' and not EARLY: lstamps_out(a, 'w2')
        if check: last_check(a, kind)
        a.emit(f's_lshl_b32 s{S_FL}, s{S_TSI}, 12')
        a.emit(f's_lshl_b32 s4, s{S_MT}, 8')
        a.emit(f's_add_u32 s{S_FL}, s{S_FL}, s4')
        a.emit(f's_lshl_b32 s4, s{S_NT}, 2')
        a.emit(f's_add_u32 s{S_FL}, s{S_FL}, s4')
        next_phase(a, kind)

def pf_weights(a, sd, which, size, ldw2, R, sh, L, LMn, tilebytes, NI, vd, row0=0, qkv=False):
    if 'nopf' in DBG: return 0
    srd(a, sd, which, 0, size)
    a.emit(f's_and_b32 s3, s{S_WV}, 3')
    a.emit(f's_mul_i32 s3, s3, {NI * (64 >> sh)}')
    a.emit(f's_mul_i32 s4, s{S_CU}, {R}')
    a.emit('s_add_u32 s3, s3, s4')
    if row0: a.emit(f's_add_u32 s3, s3, {row0}')
    a.emit(f'v_lshrrev_b32 v2, {sh}, v1')
    a.emit('v_add_u32 v2, s3, v2')
    a.emit(f'v_mul_u32_u24 v2, {ldw2}, v2')
    a.emit(f'v_and_b32 v3, {(1 << sh) - 1}, v1')
    if L < (1 << sh): a.emit(f'v_min_u32 v3, {L-1}, v3')
    if qkv:
        a.emit('v_lshrrev_b32 v12, 2, v3')
        a.emit('v_lshl_add_u32 v2, v12, 11, v2')
        a.emit('v_and_b32 v3, 3, v3')
    a.emit('v_lshl_add_u32 v2, v3, 7, v2')
    a.emit('s_and_b32 s3, s2, 7')
    a.emit(f's_lshr_b32 s3, s3, {4 - LMn}')
    a.emit(f's_mul_i32 s3, s3, {(1 << (5 - LMn)) * tilebytes}')
    for i in range(NI):
        a.emit(f'buffer_load_dword v{vd+i}, v2, s[{sd}:{sd+3}], s3 offen')
        if i + 1 < NI: a.emit(f's_add_u32 s3, s3, {(64 >> sh) * ldw2}')
    return NI

_pfc = [0]
def pf_code(a, start, end, vd, forward=True):
    if 'nopfc' in DBG: return 0
    _pfc[0] += 1
    lab = f'L_pfc{_pfc[0]}'
    a.emit('s_getpc_b64 s[4:5]')
    a.label(lab)
    if forward:
        a.emit(f's_add_u32 s4, s4, {start}-{lab}')
        a.emit('s_addc_u32 s5, s5, 0')
    else:
        a.emit(f's_sub_u32 s4, s4, {lab}-{start}')
        a.emit('s_subb_u32 s5, s5, 0')
    a.emit(f's_and_b32 s3, s{S_WV}, 3')
    a.emit('s_lshl_b32 s3, s3, 13')
    a.emit('v_lshl_add_u32 v2, v1, 7, s3')
    a.emit(f'v_min_u32 v2, {end}-{start}-4, v2')
    a.emit(f'global_load_dword v{vd}, v2, s[4:5]')
    return 1

def wbase(a, vd, vt, g='v2'):
    a.emit(f'v_bfe_u32 v{vd}, v1, 2, 2')
    a.emit(f'v_lshl_add_u32 v{vd}, {g}, 3, v{vd}')
    a.emit(f'v_lshlrev_b32 v{vd}, 7, v{vd}')
    a.emit(f'v_and_b32 v{vt}, 3, v1')
    a.emit(f'v_lshl_add_u32 v{vd}, v{vt}, 3, v{vd}')
    a.emit(f'v_bfe_u32 v{vt}, v1, 3, 2')
    a.emit(f'v_lshl_add_u32 v{vd}, v{vt}, 5, v{vd}')


def code_touch(a, start, end, nb):
    if ENV('CT', '1') == '0': return
    _pfc[0] += 1
    lab = f'L_pfc{_pfc[0]}'
    a.emit(f's_cmp_lg_u32 s{S_LAYER}, 0')
    a.emit(f's_cbranch_scc1 {lab}_skip')
    a.emit('s_getpc_b64 s[4:5]')
    a.label(lab)
    a.emit(f's_lshl_b32 s3, s{S_CU}, 2')
    a.emit(f's_add_u32 s3, s3, s{S_WV}')
    a.emit(f's_mul_i32 s3, s3, {nb}')
    a.emit(f's_min_u32 s3, s3, {end}-{start}-{nb}')
    a.emit(f's_add_i32 s3, s3, {start}-{lab}')
    a.emit('s_ashr_i32 s6, s3, 31')
    a.emit('s_add_u32 s4, s4, s3')
    a.emit('s_addc_u32 s5, s5, s6')
    for i in range(nb // 64):
        a.emit(f's_load_dword s{SX+i}, s[4:5], {64*i}')
    a.label(f'{lab}_skip')

def loader_first(a, kind):
    if ENV('LF', '1') == '0': return
    L = a.lines
    ib = max(i for i, l in enumerate(L) if l.strip() == f's_cbranch_scc1 L_{kind}_loader')
    il = L.index(f'L_{kind}_loader:')
    ie = L.index(f'L_{kind}_end:') + 2
    assert L[ie - 1].strip() == 's_endpgm' and L[ib - 1].strip().startswith('s_cmp_ge_u32')
    L[ib - 1] = L[ib - 1].replace('s_cmp_ge_u32', 's_cmp_lt_u32')
    L[ib] = f'  s_cbranch_scc1 L_{kind}_compute'
    a.lines = L[:ib + 1] + L[il:ie] + [f'L_{kind}_compute:'] + L[ib + 1:il] + L[ie:]

def clear_flags(a, part):
    if not ONE: return
    if part == 0: a.emit(f's_load_dwordx2 s[{SC}:{SC+1}], s[0:1], 72')
    a.emit(f's_or_b32 s3, s{S_LAYER}, s{S_WV}')
    a.emit(f's_cbranch_scc1 L_clr_skip{part}')
    if part == 0:
        srd(a, SP, 'ws0', WS_FL, 262144)
        a.emit('s_lshl_b32 s3, s2, 10')
        a.emit('v_lshlrev_b32 v2, 4, v1')
        a.emit(f'buffer_store_dwordx4 v[128:131], v2, s[{SP}:{SP+3}], s3 offen sc1')
    else:
        a.emit('v_mov_b32 v3, 1')
        a.emit(f's_and_b32 s{SC+1}, s{SC+1}, 0xffff')
        a.emit(f's_mov_b32 s{SC+2}, 256')
        a.emit(f's_mov_b32 s{SC+3}, 0x00020000')
        a.emit('s_mov_b64 exec, 1')
        a.emit('s_waitcnt vmcnt(0)')
        a.emit(f'buffer_store_byte v3, off, s[{SC}:{SC+3}], s2 sc1')
        a.emit('s_mov_b64 exec, -1')
    a.label(f'L_clr_skip{part}')
```

```python
from common import *

def gen_gemm64(a, kind, tsidx, side):
    K = 1024 if kind == 'wo' else 3584
    lda2 = K * 2; ldw2 = 2048
    S = int(ENV('S64', '6')); DELTA = int(ENV('DELTA', '0'))
    LM = int(ENV('LM_' + kind.upper(), '2'))
    STAGE = 16384 + 8192
    N = K // 64
    LRES = S * STAGE; PSTEP = 64 if kind == 'w2' else 1024
    body = f'L_{kind}_body'; end = f'L_{kind}_end'
    VXB, VWB, VXA, VWA, VO = 5, 6, 25, 26, 12
    F = [32, 80]; ACC = 128; RES = 160; BIA = 176
    acc = lambda jn, jm: ACC + (jn * 2 + jm) * 4
    fx = lambda s, ks, jm: F[s] + (ks * 2 + jm) * 4
    fw = lambda s, ks, jn: F[s] + 16 + (ks * 4 + jn) * 4
    a.label(f'L_{kind}_c0')
    if (kind == 'wo' and not ONE) or not MEGA: stub(a, f'{kind}l0_kernel', body, 0, tsidx, True)
    a.label(body)
    tile_map(a, LM, end)
    a.emit(f's_cmp_ge_u32 s{S_WV}, 4')
    a.emit(f's_cbranch_scc1 L_{kind}_loader')
    a.emit('v_and_b32 v3, 15, v1')
    a.emit('v_lshrrev_b32 v2, 4, v1')
    a.emit(f's_lshl_b32 s8, s{S_MT}, 7')
    a.emit(f's_lshl_b32 s9, s{S_WV}, 5')
    a.emit('s_add_u32 s8, s8, s9')
    a.emit('v_add_u32 v13, s8, v3')
    a.emit(f's_lshl_b32 s10, s{S_NT}, 7')
    a.emit('v_lshl_add_u32 v14, v2, 3, s10')
    a.emit('v_and_b32 v16, 1, v2')
    a.emit('v_lshrrev_b32 v17, 1, v2')
    if kind == 'w2':
        a.emit('v_lshlrev_b32 v16, 5, v16')
        a.emit('v_lshl_add_u32 v16, v17, 4, v16')
        a.emit('v_add_u32 v16, s10, v16')
        xpitch(a, 7, True)
        a.emit(f'v_mad_u32_u24 v{VO}, v13, s7, v16')
    else:
        a.emit('v_lshl_add_u32 v16, v16, 1, v17')
        a.emit('v_lshlrev_b32 v16, 8, v16')
        a.emit('v_lshl_add_u32 v16, v3, 4, v16')
        a.emit(f's_add_u32 s9, s8, s{S_NT}')
        a.emit('s_lshl_b32 s9, s9, 11')
        a.emit(f'v_add_u32 v{VO}, s9, v16')
    a.emit('v_lshl_add_u32 v18, v17, 4, v13')
    a.emit('v_lshlrev_b32 v18, 3, v18')
    a.emit('v_and_b32 v16, 1, v2')
    a.emit('v_lshl_add_u32 v18, v16, 2, v18')
    a.emit(f's_lshl_b32 s10, s{S_NT}, 14')
    a.emit('v_add_u32 v18, s10, v18')
    a.emit(f's_lshl_b32 s8, s{S_WV}, 12')
    a.emit(f'v_lshl_add_u32 v{VXB}, v1, 4, s8')
    wbase(a, VWB, 17)
    a.emit(f'v_add_u32 v{VWB}, 16384, v{VWB}')
    for i in range(1, 4): a.emit(f'v_xor_b32 v{VWB+i}, {32*i}, v{VWB}')
    a.emit('v_lshrrev_b32 v15, 1, v2')
    if kind == 'wo':
        a.emit('v_lshrrev_b32 v17, 1, v3')
        a.emit('v_xor_b32 v15, v15, v17')
        a.emit('v_lshlrev_b32 v15, 4, v15')
        a.emit('v_lshl_add_u32 v15, v3, 7, v15')
    else:
        a.emit('v_lshlrev_b32 v15, 8, v15')
        a.emit('v_lshl_add_u32 v15, v3, 4, v15')
    a.emit('v_lshl_add_u32 v15, v16, 3, v15')
    a.emit(f's_add_u32 s8, s8, {LRES}')
    a.emit('v_add_u32 v15, s8, v15')
    a.emit('s_mov_b32 s11, 0xffff0000')
    a.emit(f's_mov_b32 s{S_SLOT}, 0')
    if kind == 'wo':
        for i in range(32): a.emit(f'v_mov_b32 v{ACC+i}, 0')
    a.emit('s_waitcnt lgkmcnt(0)')
    if kind == 'w2':
        srd(a, SB, 'b2', 0, 2048)
        for jn in range(4):
            a.emit(f'buffer_load_dwordx2 v[{BIA+2*jn}:{BIA+2*jn+1}], v14, s[{SB}:{SB+3}], 0 offen offset:{jn*32}')
        srd(a, SO, 'out', 0, 4 * MB)
        if MEGA:
            srd(a, SR, 'ws0', WS_X2, 4 * MB)
            a.emit(f's_cmp_eq_u32 s{S_LAYER}, 0')
            a.emit(f's_cselect_b64 s[{SO}:{SO+1}], s[{SR}:{SR+1}], s[{SO}:{SO+1}]')
            a.emit(f's_lshl_b32 s{SO+2}, s7, 11')
    else:
        srd(a, SO, 'ws', WS_X1, 4 * MB)
    srd(a, ST, 'ws', WS_ST if kind == 'wo' else WS_ST2, 16 * 16384)
    if kind == 'wo': code_touch(a, 'L_w1_c0', 'L_w1_c1', 128)
    gbar(a, kind)
    if kind == 'w2':
        a.emit('s_waitcnt vmcnt(0)')
        for jn in range(4):
            for jm in range(2):
                c = acc(jn, jm)
                for h in range(2):
                    a.emit(f'v_lshlrev_b32 v{c+2*h}, 16, v{BIA+2*jn+h}')
                    a.emit(f'v_and_b32 v{c+2*h+1}, s11, v{BIA+2*jn+h}')
    def addr():
        o = [f'v_add_u32_e64 v{VXA+i}, s{S_SLOT}, v{VXB+i}' for i in range(5)]
        o += [f's_add_u32 s{S_SLOT}, s{S_SLOT}, {STAGE}', f's_cmp_eq_u32 s{S_SLOT}, {S*STAGE}', f's_cselect_b32 s{S_SLOT}, 0, s{S_SLOT}']
        return o
    def reads(s):
        o = []
        if 'noread' in DBG: return o
        for ks in range(2):
            for jm in range(2):
                o.append(f'ds_read_b128 v[{fx(s,ks,jm)}:{fx(s,ks,jm)+3}], v{VXA} offset:{jm*2048+ks*1024}')
            for jn in range(4):
                for h in range(2):
                    r = fw(s, ks, jn) + 2 * h
                    o.append(f'ds_read_b64_tr_b16 v[{r}:{r+1}], v{VWA+jn} offset:{ks*4096+h*512}')
        return o
    def mf(s):
        o = []
        if 'nomfma' in DBG: return ['s_nop 0']
        for ks in range(2):
            for jn in range(4):
                for jm in range(2):
                    c = acc(jn, jm)
                    o.append(f'v_mfma_f32_16x16x32_bf16 v[{c}:{c+3}], v[{fw(s,ks,jn)}:{fw(s,ks,jn)+3}], v[{fx(s,ks,jm)}:{fx(s,ks,jm)+3}], v[{c}:{c+3}]')
        return o
    for x in addr(): a.emit(x)
    a.emit('s_barrier')
    stamp(a, 1)
    for x in reads(0): a.emit(x)
    a.emit(f's_mov_b32 s{S_CNT}, {N//2}')
    for x in addr(): a.emit(x)
    a.emit('s_waitcnt lgkmcnt(0)')
    a('.p2align 3')
    a.label(f'L_{kind}_loop')
    for s in range(2):
        a.emit('s_barrier')
        if s == 0: a.emit(f's_sub_u32 s{S_CNT}, s{S_CNT}, 1')
        ad = addr()
        ad[-1] += '\n  s_nop 0' if s == 0 else f'\n  s_cmp_lg_u32 s{S_CNT}, 0'
        interleave(a, mf(s), reads(1 - s) + ad, lead=1, per=2)
        a.emit('s_waitcnt lgkmcnt(0)')
    a.emit(f's_cbranch_scc1 L_{kind}_loop')
    stamp(a, 2)
    if kind == 'wo':
        for jn in range(1, 4): a.emit(f'v_xor_b32 v{VXA+jn}, {32*jn}, v15')
    for jm in range(2):
        for jn in range(4):
            r = RES + (jn * 2 + jm) * 2
            if kind == 'wo': a.emit(f'ds_read_b64 v[{r}:{r+1}], v{VXA+jn if jn else 15} offset:{jm*2048}')
            else: a.emit(f'ds_read_b64 v[{r}:{r+1}], v15 offset:{jm*2048+jn*512}')
    for i in range(4): a.emit(f'v_mov_b32 v{20+i}, 0')
    a.emit(f's_mov_b32 s3, {16*2048}' if kind == 'wo' else 's_lshl_b32 s3, s7, 4')
    a.emit('s_mov_b32 s10, 0x3f803f80')
    D = 32
    for jm in range(2):
        for p in range(2):
            d = D + (jm * 2 + p) * 4
            for q in range(2):
                c = acc(2 * p + q, jm); r = RES + ((2 * p + q) * 2 + jm) * 2
                a.emit(f's_waitcnt lgkmcnt({7 - (jm * 4 + 2 * p + q)})')
                for h in range(2):
                    a.emit(f'v_lshlrev_b32 v{184+2*h}, 16, v{r+h}')
                    a.emit(f'v_and_b32 v{185+2*h}, s11, v{r+h}')
                for h in range(2):
                    a.emit(f'v_pk_add_f32 v[{c+2*h}:{c+2*h+1}], v[{c+2*h}:{c+2*h+1}], v[{184+2*h}:{185+2*h}]')
                a.emit(f'v_cvt_pk_bf16_f32 v{d+2*q}, v{c}, v{c+1}')
                a.emit(f'v_cvt_pk_bf16_f32 v{d+2*q+1}, v{c+2}, v{c+3}')
            a.emit('s_nop 1')
            a.emit(f'v_permlane16_swap_b32 v{d}, v{d+2}')
            a.emit(f'v_permlane16_swap_b32 v{d+1}, v{d+3}')
            a.emit(f'buffer_store_dwordx4 v[{d}:{d+3}], v{VO}, s[{SO}:{SO+3}], {"s3" if jm else "0"} offen offset:{p*PSTEP}{stf(kind)}')
    for jm in range(2):
        for i in range(8):
            d = D + jm * 8 + i
            a.emit(f'v_dot2_f32_bf16 v{20+jm}, v{d}, s10, v{20+jm}')
            a.emit(f'v_dot2_f32_bf16 v{22+jm}, v{d}, v{d}, v{22+jm}')
    a.emit('s_nop 2')
    a.emit('v_permlane32_swap_b32 v20, v21')
    a.emit('v_permlane32_swap_b32 v22, v23')
    a.emit('v_add_f32 v20, v20, v21')
    a.emit('v_add_f32 v22, v22, v23')
    a.emit('s_nop 1')
    a.emit('v_permlane16_swap_b32 v20, v22')
    a.emit('v_add_f32 v20, v20, v22')
    a.emit(f'buffer_store_dword v20, v18, s[{ST}:{ST+3}], 0 offen{stf(kind)}')
    compute_end(a, kind)
    a.label(f'L_{kind}_loader')
    L = (ULoader if VW else Loader)(a, kind, K, lda2, ldw2, [0], 128, S, STAGE, rot=None if VW else int(ENV('ROT_' + kind.upper(), '0')), xblk=True)
    L.setup()
    a.emit('s_waitcnt lgkmcnt(0)')
    if kind == 'wo':
        srd(a, SX, 'ws', WS_O, 4 * MB); srd(a, SW, 'wo', 0, 2 * MB)
    else:
        srd(a, SX, 'ws', WS_H, 2048 * 7168); srd(a, SW, 'w2', 0, 3584 * 2048)
    ns = side(Asm(), 'issue')
    def tail():
        if kind == 'wo':
            srd_xs(a, SR)
            L.xoff_rows(2048)
        else:
            srd(a, SR, 'ws', WS_X1, 4 * MB)
            L.xoff_blk(2048)
        a.emit(f's_lshl_b32 s4, s{S_NT}, {7 if kind == "wo" else 11}')
        for x in L.xdma(S_XD, LRES, SR, 4, kind == 'w2'): a.emit(x)
        side(a, 'issue')
    final = lambda: a.emit(f's_waitcnt vmcnt({ns})')
    import sides
    L.run('l', tail_issue=tail, ntail_vm=ns + 4, final=final, post=sides.stouch_post(a, kind),
          dep=(lambda: dep_early(a)) if EARLY and kind == 'w2' else (lambda: dep_wait(a, kind, skip_first=kind == 'wo', first=lambda: sides.qkv(a, 0, 'finish', L.npre))) if MEGA else None)
    side(a, 'finish')
    loader_end(a, kind)
    a.label(end)
    a.emit('s_endpgm')
    loader_first(a, kind)
    if (kind == 'wo' and not ONE) or not MEGA: a(KD.format(name=f'{kind}l0_kernel'))
    if not MEGA:
        stub(a, f'{kind}l1_kernel', body, 1, tsidx + 4, False)
        a(KD.format(name=f'{kind}l1_kernel'))
    a.label(f'L_{kind}_c1')
    return S * STAGE + 16384
```

```python
from common import *

def big_loop(a, tag, N, S, STAGE, naddr, VB, VA, reads, mf, variants=None, select=None, post=None):
    def addr():
        o = [f'v_add_u32_e64 v{VA+i}, s{S_SLOT}, v{VB+i}' for i in range(naddr)]
        o += [f's_add_u32 s{S_SLOT}, s{S_SLOT}, {STAGE}', f's_cmp_eq_u32 s{S_SLOT}, {S*STAGE}', f's_cselect_b32 s{S_SLOT}, 0, s{S_SLOT}']
        return o
    a.emit(f's_mov_b32 s{S_SLOT}, 0')
    for x in addr(): a.emit(x)
    a.emit(f's_mov_b32 s{S_CNT}, {N}')
    gbar(a, tag)
    a.emit('s_barrier')
    stamp(a, 1)
    for x in reads(0, 0): a.emit(x)
    a.emit('s_waitcnt lgkmcnt(0)')
    def loop(nm, m):
        a('.p2align 3')
        a.label(f'L_{tag}_loop{nm}')
        ad = addr()
        ad[-1] += f'\n  s_sub_u32 s{S_CNT}, s{S_CNT}, 1'
        interleave(a, m(0), reads(1, 1) + ad, lead=1, per=1)
        a.emit('s_waitcnt lgkmcnt(0)')
        a.emit('s_barrier')
        interleave(a, m(1), reads(0, 0) + [f's_cmp_lg_u32 s{S_CNT}, 0\n  s_nop 0'], lead=1, per=1)
        a.emit('s_waitcnt lgkmcnt(0)')
        a.emit(f's_cbranch_scc1 L_{tag}_loop{nm}')
    if variants:
        select()
        vs = list(variants.items())
        for i, (nm, m) in enumerate(vs):
            loop(nm, m)
            if i + 1 < len(vs): a.emit(f's_branch L_{tag}_post')
        a.label(f'L_{tag}_post')
        post()
        a.emit(f's_branch L_{tag}_exit')
    loop('', mf)
    a.label(f'L_{tag}_exit')
    stamp(a, 2)

def stats_loads(a, vd, halo):
    a.emit(f's_and_b32 s3, s{S_WV}, 3')
    a.emit(f's_lshl_b32 s4, s{S_MT}, 7')
    a.emit('s_lshl_b32 s5, s3, 6')
    a.emit('s_add_u32 s5, s5, s4')
    a.emit('v_add_u32 v2, s5, v1')
    a.emit('s_sub_u32 s4, s4, 16')
    a.emit('v_and_b32 v3, 15, v1')
    a.emit('v_add_u32 v3, s4, v3')
    a.emit('v_max_i32 v3, 0, v3')
    a.emit('s_cmp_ge_u32 s3, 2')
    a.emit('s_cselect_b64 vcc, -1, 0')
    a.emit('v_cndmask_b32 v2, v2, v3, vcc')
    a.emit('v_lshlrev_b32 v2, 3, v2')
    a.emit('s_mov_b32 s3, 0')
    for j in range(16):
        a.emit(f'buffer_load_dwordx2 v[{vd+2*j}:{vd+2*j+1}], v2, s[{ST}:{ST+3}], s3 offen')
        if j < 15: a.emit('s_add_u32 s3, s3, 16384')
    return 16

def stats_finish(a, vs):
    a.emit(f'v_mul_f32 v{vs}, 0x3a800000, v{vs}')
    a.emit(f'v_mul_f32 v{vs+1}, 0x3a800000, v{vs+1}')
    a.emit(f'v_fma_f32 v{vs+1}, -v{vs}, v{vs}, v{vs+1}')
    a.emit(f'v_max_f32 v{vs+1}, 0, v{vs+1}')
    a.emit(f'v_add_f32 v{vs+1}, 0x3727c5ac, v{vs+1}')
    a.emit(f'v_rsq_f32 v{vs+1}, v{vs+1}')
    a.emit('s_nop 0')

def stats_reduce_store(a, vd, LST):
    for j in range(1, 8):
        a.emit(f'v_add_f32 v{vd}, v{vd}, v{vd+2*j}')
        a.emit(f'v_add_f32 v{vd+1}, v{vd+1}, v{vd+2*j+1}')
        a.emit(f'v_add_f32 v{vd+16}, v{vd+16}, v{vd+16+2*j}')
        a.emit(f'v_add_f32 v{vd+17}, v{vd+17}, v{vd+17+2*j}')
    a.emit(f'v_add_f32 v{vd}, v{vd}, v{vd+16}')
    a.emit(f'v_add_f32 v{vd+1}, v{vd+1}, v{vd+17}')
    stats_finish(a, vd)
    a.emit(f's_and_b32 s3, s{S_WV}, 3')
    a.emit('s_lshl_b32 s5, s3, 6')
    a.emit('s_add_u32 s5, s5, 16')
    a.emit('v_add_u32 v2, s5, v1')
    a.emit('v_and_b32 v3, 15, v1')
    a.emit('s_cmp_ge_u32 s3, 2')
    a.emit('s_cselect_b64 vcc, -1, 0')
    a.emit('v_cndmask_b32 v2, v2, v3, vcc')
    a.emit('v_lshlrev_b32 v2, 2, v2')
    a.emit(f'v_add_u32 v2, {LST}, v2')
    a.emit(f'ds_write2_b32 v2, v{vd}, v{vd+1} offset0:0 offset1:160')

def gen_w1(a, tsidx, side, cs=(16, 16384, 0)):
    kind = 'w1'
    K = 1024; lda2 = 2048; ldw2 = 7168; ldo2 = 7168
    S = 3; LM = int(ENV('LM_W1', '3'))
    STAGE = 16384 + 4 * 8192
    LST = S * STAGE
    LCS = LST + 1280
    N = 16
    body = f'L_{kind}_body'; end = f'L_{kind}_end'
    VB, VA, VO = 4, 20, 12
    F = [32, 80]; ACC = 128
    acc = lambda jn, jm: ACC + (jn * 4 + jm) * 4
    fx = lambda s, jm: F[s] + jm * 4
    fw = lambda s, jn: F[s] + 16 + jn * 4
    a.label(f'L_{kind}_c0')
    if not MEGA: stub(a, f'{kind}l0_kernel', body, 0, tsidx, True)
    a.label(body)
    tile_map(a, LM, end)
    a.emit(f's_cmp_ge_u32 s{S_WV}, 4')
    a.emit(f's_cbranch_scc1 L_{kind}_loader')
    a.emit(f's_and_b32 s{S_WM}, s{S_WV}, 1')
    a.emit(f's_lshr_b32 s{S_WN}, s{S_WV}, 1')
    a.emit('v_and_b32 v3, 15, v1')
    a.emit('v_lshrrev_b32 v2, 4, v1')
    a.emit(f's_lshl_b32 s8, s{S_WM}, 13')
    a.emit(f'v_lshl_add_u32 v{VB}, v1, 4, s8')
    wbase(a, 13, 17)
    a.emit(f's_lshl_b32 s9, s{S_WN}, 6')
    a.emit('v_xor_b32 v13, s9, v13')
    a.emit(f'v_add_u32 v{VB+1}, 16384, v13')
    a.emit(f'v_xor_b32 v{VB+2}, 32, v{VB+1}')
    a.emit('v_and_b32 v16, 1, v2')
    a.emit('v_lshrrev_b32 v17, 1, v2')
    a.emit('v_bfe_u32 v13, v1, 2, 2')
    a.emit('v_lshl_add_u32 v13, v16, 3, v13')
    a.emit('v_lshl_add_u32 v13, v17, 5, v13')
    a.emit(f'v_xor_b32 v14, s{S_WN}, v16')
    a.emit('v_lshl_add_u32 v13, v13, 1, v14')
    a.emit('v_and_b32 v14, 3, v1')
    a.emit('v_lshl_add_u32 v13, v13, 2, v14')
    a.emit('v_lshlrev_b32 v13, 3, v13')
    a.emit(f'v_add_u32 v{VB+3}, {16384 + 3 * 8192}, v13')
    a.emit(f's_lshl_b32 s8, s{S_MT}, 7')
    a.emit(f's_lshl_b32 s9, s{S_WM}, 6')
    a.emit('s_add_u32 s8, s8, s9')
    a.emit(f's_mul_i32 s8, s8, {ldo2}')
    a.emit('v_lshlrev_b32 v14, 8, v17')
    a.emit('v_lshl_add_u32 v14, v3, 4, v14')
    a.emit('v_add_u32 v14, s8, v14')
    a.emit(f's_lshl_b32 s10, s{S_NT}, 11')
    a.emit(f's_lshl_b32 s9, s{S_WN}, 10')
    a.emit('s_add_u32 s9, s9, s10')
    a.emit(f'v_lshl_add_u32 v{VO}, v16, 9, v14')
    a.emit(f'v_add_u32 v{VO}, s9, v{VO}')
    a.emit(f'v_mul_u32_u24 v16, {16*ldo2}, v16')
    a.emit('s_lshr_b32 s9, s9, 1')
    a.emit(f'v_add3_u32 v{VO+1}, v16, v14, s9')
    a.emit(f's_lshl_b32 s9, s{S_WM}, 8')
    a.emit(f's_add_u32 s9, s9, {LST + 64}')
    a.emit('v_lshl_add_u32 v14, v3, 2, s9')
    a.emit(f's_lshl_b32 s9, s{S_WN}, 7')
    a.emit(f's_add_u32 s9, s9, {LCS}')
    a.emit('v_lshl_add_u32 v15, v2, 4, s9')
    a.emit(f's_lshl_b32 s9, s{S_WN}, 6')
    a.emit(f's_add_u32 s9, s9, {LCS}')
    a.emit('v_lshl_add_u32 v16, v2, 4, s9')
    for i in range(112): a.emit(f'v_mov_b32 v{ACC+i}, 0')
    a.emit('s_waitcnt lgkmcnt(0)')
    srd(a, SO, 'ws', WS_H, 2048 * 7168)
    code_touch(a, 'L_w2_c0', 'L_w2_c1', 64)
    def reads(s, ks):
        o = []
        if 'noread' in DBG: return o
        for jm in range(4):
            o.append(f'ds_read_b128 v[{fx(s,jm)}:{fx(s,jm)+3}], v{VA} offset:{jm*2048+ks*1024}')
        for jn in range(7):
            for h in range(2):
                r = fw(s, jn) + 2 * h
                o.append(f'ds_read_b64_tr_b16 v[{r}:{r+1}], v{VA+1+(jn&1 if jn < 6 else 2)} offset:{((jn>>1)*8192+h*512 if jn < 6 else h*256)+ks*4096}')
        return o
    def mf(s):
        o = []
        if 'nomfma' in DBG: return ['s_nop 0']
        for jn in range(7):
            for jm in range(4):
                c = acc(jn, jm)
                o.append(f'v_mfma_f32_16x16x32_bf16 v[{c}:{c+3}], v[{fw(s,jn)}:{fw(s,jn)+3}], v[{fx(s,jm)}:{fx(s,jm)+3}], v[{c}:{c+3}]')
        return o
    big_loop(a, kind, N, S, STAGE, 4, VB, VA, reads, mf)
    CS = 32; BI = 60; STT = 88; CK = 96; T = 100; D = 108
    for jm in range(4):
        a.emit(f'ds_read2_b32 v[{STT+2*jm}:{STT+2*jm+1}], v14 offset0:{16*jm} offset1:{160+16*jm}')
    for jn in range(7):
        a.emit(f'ds_read_b128 v[{CS+4*jn}:{CS+4*jn+3}], v{15 if jn < 6 else 16} offset:{(jn>>1)*256+(jn&1)*64}')
        a.emit(f'ds_read_b128 v[{BI+4*jn}:{BI+4*jn+3}], v{15 if jn < 6 else 16} offset:{1024+(jn>>1)*256+(jn&1)*64}')
    c0 = -2.0 * 0.7978845608028654 * 1.4426950408889634
    c1 = c0 * 0.044715
    a.emit(f'v_mov_b32 v{CK}, {f2u(c0):#x}')
    a.emit(f'v_mov_b32 v{CK+1}, {f2u(c1):#x}')
    a.emit(f'v_mov_b32 v{CK+2}, 1.0')
    a.emit('s_waitcnt lgkmcnt(0)')
    for jm in range(4):
        a.emit(f'v_mul_f32 v{STT+2*jm}, v{STT+2*jm}, v{STT+2*jm+1}')
    def tile_math(jn, jm, d):
        c = acc(jn, jm)
        seqs = []
        ST2 = f'v[{STT+2*jm}:{STT+2*jm+1}]'
        for q in range(2):
            x = c + 2 * q; t = T + 2 * q + 4 * (jn & 1)
            X = f'v[{x}:{x+1}]'; TT = f'v[{t}:{t+1}]'
            seqs.append([
              f'v_pk_fma_f32 {TT}, v[{CS+4*jn+2*q}:{CS+4*jn+2*q+1}], {ST2}, v[{BI+4*jn+2*q}:{BI+4*jn+2*q+1}] op_sel:[0,0,0] op_sel_hi:[1,0,1] neg_lo:[0,1,0] neg_hi:[0,1,0]',
              f'v_pk_fma_f32 {X}, {X}, {ST2}, {TT} op_sel:[0,1,0] op_sel_hi:[1,1,1]',
              f'v_pk_mul_f32 {TT}, {X}, {X}',
              f'v_pk_fma_f32 {TT}, {TT}, v[{CK}:{CK+1}], v[{CK}:{CK+1}] op_sel:[0,1,0] op_sel_hi:[1,1,0]',
              f'v_pk_mul_f32 {TT}, {TT}, {X}',
              f'v_exp_f32 v{t}, v{t}\n  v_exp_f32 v{t+1}, v{t+1}',
              f'v_pk_add_f32 {TT}, {TT}, v[{CK+2}:{CK+3}] op_sel_hi:[1,0]',
              f'v_rcp_f32 v{t}, v{t}\n  v_rcp_f32 v{t+1}, v{t+1}',
              f'v_pk_mul_f32 {X}, {X}, {TT}',
              f'v_cvt_pk_bf16_f32 v{d+q}, v{x}, v{x+1}'])
        for ia, ib in zip(*seqs):
            a.emit(ia); a.emit(ib)
    cnt = [0]
    def pair(t0, t1, vo, soff, big=False):
        d = D + 4 * (cnt[0] % 4); cnt[0] += 1
        tile_math(*t0, d); tile_math(*t1, d + 2)
        a.emit(f's_add_u32 s3, s10, {soff}' if big else f's_mov_b32 s3, {soff}')
        a.emit('s_nop 0')
        a.emit(f'v_permlane16_swap_b32 v{d}, v{d+2}')
        a.emit(f'v_permlane16_swap_b32 v{d+1}, v{d+3}')
        a.emit(f'buffer_store_dwordx4 v[{d}:{d+3}], v{vo}, s[{SO}:{SO+3}], s3 offen{stf(kind)}')
    pr = lambda p, jm: pair((2 * p, jm), (2 * p + 1, jm), VO, jm * 16 * ldo2 + (46 + 2 * p) * 1024 * (p > 0), p > 0)
    od = lambda jm: pair((6, jm), (6, jm + 1), VO + 1, jm * 16 * ldo2 + 32768)
    order = [lambda jm=jm: pr(0, jm) for jm in range(4)] + [lambda: od(0), lambda: od(2)] + [lambda jm=jm, p=p: pr(p, jm) for jm in range(4) for p in (1, 2)]
    EW = int(ENV('EW', '10'))
    for i, f in enumerate(order):
        f()
        if EARLY and i + 1 == EW:
            a.emit(f's_waitcnt vmcnt({EW - EARLY // 4})')
            a.emit('s_barrier')
    compute_end(a, kind)
    a.label(f'L_{kind}_loader')
    L = Loader(a, kind, K, lda2, ldw2, [0, f's{S_HD}', 's_add_u32 s4, s4, 128'], 128, S, STAGE, rot=int(ENV('ROT_W1', '0')), xblk=True, half=2048)
    L.setup()
    a.emit('s_waitcnt lgkmcnt(0)')
    srd(a, SX, 'ws', WS_X1, 4 * MB); srd(a, SW, 'w1', 0, 1024 * 7168)
    srd(a, ST, 'ws', WS_ST, 16 * 16384); srd(a, SC, 'ws0', WS_CS, 16 * 16384); srd(a, SB, 'b1', 0, 7168)
    def tail():
        stats_loads(a, 32, False)
        a.emit(f's_lshl_b32 s4, s{S_NT}, 7')
        a.emit(f's_lshl_b32 s5, s{S_WV}, 6')
        a.emit('s_add_u32 s4, s4, s5')
        a.emit(f's_add_u32 s4, s4, {1472 - 256}')
        a.emit(f's_lshl_b32 s5, s{S_NT}, 6')
        a.emit(f's_cmp_eq_u32 s{S_WV}, 4')
        a.emit('s_cselect_b32 s4, s5, s4')
        a.emit('s_lshr_b32 s5, s5, 1')
        a.emit('s_add_u32 s5, s5, 1024')
        a.emit(f's_cmp_eq_u32 s{S_WV}, 7')
        a.emit('s_cselect_b32 s4, s5, s4')
        a.emit('v_add_u32 v3, s4, v1')
        a.emit('v_lshlrev_b32 v2, 2, v3')
        a.emit('v_lshlrev_b32 v3, 1, v3')
        a.emit(f's_mov_b32 s3, {cs[2]}')
        for j in range(16):
            if j < cs[0]:
                a.emit(f'buffer_load_dword v{64+j}, v2, s[{SC}:{SC+3}], s3 offen')
                if j < cs[0] - 1: a.emit(f's_add_u32 s3, s3, {cs[1]}')
            else:
                a.emit(f'v_mov_b32 v{64+j}, 0')
        a.emit(f'buffer_load_ushort v80, v3, s[{SB}:{SB+3}], 0 offen')
        side(a, 'issue')
    ns = side(Asm(), 'issue')
    def final():
        a.emit(f's_waitcnt vmcnt({ns})')
        stats_reduce_store(a, 32, LST)
        for j in range(8): a.emit(f'v_add_f32 v{64+j}, v{64+j}, v{72+j}')
        for j in range(4): a.emit(f'v_add_f32 v{64+j}, v{64+j}, v{68+j}')
        a.emit('v_add_f32 v64, v64, v65')
        a.emit('v_add_f32 v66, v66, v67')
        a.emit('v_add_f32 v64, v64, v66')
        a.emit('v_lshlrev_b32 v80, 16, v80')
        a.emit('v_lshlrev_b32 v2, 2, v0')
        a.emit(f'v_add_u32 v2, {LCS - 1024}, v2')
        a.emit('ds_write_b32 v2, v64')
        a.emit('ds_write_b32 v2, v80 offset:1024')
        a.emit('s_waitcnt lgkmcnt(0)')
    import sides
    L.run(tail_issue=tail, ntail_vm=17 + cs[0] + ns, final=final, post=sides.stouch_post(a, kind),
          dep=(lambda: dep_wait(a, kind)) if MEGA else None)
    side(a, 'finish')
    loader_end(a, kind)
    a.label(end)
    a.emit('s_endpgm')
    loader_first(a, kind)
    if not MEGA:
        a(KD.format(name=f'{kind}l0_kernel'))
        stub(a, f'{kind}l1_kernel', body, 1, tsidx + 4, False)
        a(KD.format(name=f'{kind}l1_kernel'))
    a.label(f'L_{kind}_c1')
    return LCS + 2048
```

```python
from common import *

class Loader2(Loader):
    def __init__(self, a, tag, K, lda2, ldw2, S, STAGE, P1):
        super().__init__(a, tag, K, lda2, ldw2, [0], 128, S, STAGE, rot=0, xblk=True)
        self.P1 = P1; self.P2 = K // 64 - 2 * P1; self.N = self.NSTEP = P1 + self.P2
    def masks(self):
        D = int(ENV('ROTD_W2', ENV('ROTD', '2')))
        out = []
        for g in range(4):
            m = 0
            for t in range(self.N):
                ws = t - ((t - g) & 3)
                lo, hi = (0, self.P1) if t < self.P1 else (self.P1, self.N)
                if ws >= lo and ws + D < hi: m |= 1 << t
            out.append(m)
        return out
    def setup(self):
        a = self.a
        a.emit(f's_lshr_b32 s{S_XG}, s{S_NT}, 1')
        a.emit(f's_add_u32 s{S_XG}, s{S_XG}, s{S_MT}')
        M = self.masks()
        a.emit(f's_bitcmp1_b32 s{S_XG}, 0')
        for j in range(2):
            for w in range(2):
                dst = 14 + w if j == 0 else 8 + w
                a.emit(f's_mov_b32 s{dst}, {(M[2*j] >> (32*w)) & 0xffffffff:#x}')
                a.emit(f's_cselect_b32 s{dst}, {(M[2*j+1] >> (32*w)) & 0xffffffff:#x}, s{dst}')
        a.emit(f's_bitcmp1_b32 s{S_XG}, 1')
        a.emit('s_cselect_b64 s[14:15], s[8:9], s[14:15]')
        a.emit(f's_bitcmp1_b32 s{S_NT}, 0')
        a.emit(f's_cselect_b32 s{S_T}, {self.P1}, 0')
        a.emit(f's_mov_b32 s{S_HD}, 128')
        a.emit(f's_cselect_b32 s{S_HD}, -128, s{S_HD}')
        self.noxg = True
        super().setup()
    def knext(self):
        D = int(ENV('ROTD_W2', ENV('ROTD', '2')))
        dl = {3: [3, -1, -1, -1], 2: [2, -1, -1, 0], 1: [1, -1, 0, 0], 0: [0, 0, 0, 0]}[D]
        tbl = sum(((d & 255) << (8 * i)) for i, d in enumerate(dl))
        return [f's_add_u32 s{S_KT}, s{S_KT}, 1',
                f's_sub_u32 s{S_KX}, s{S_KT}, s{S_XG}',
                f's_lshl_b32 s{S_KX}, s{S_KX}, 3',
                f's_lshr_b32 s{S_KX}, {tbl:#x}, s{S_KX}',
                f's_sext_i32_i8 s{S_KX}, s{S_KX}',
                f's_bitcmp1_b64 s[14:15], s{S_KT}',
                f's_cselect_b32 s{S_KX}, s{S_KX}, 0',
                f's_add_u32 s{S_KX}, s{S_KX}, s{S_KT}',
                f's_cmp_lt_u32 s{S_KT}, {self.P1}',
                f's_cselect_b32 s{S_KW}, s{S_T}, {self.P1}',
                f's_add_u32 s{S_KX}, s{S_KX}, s{S_KW}',
                f's_mul_i32 s{S_KW}, s{S_KX}, {64*self.ldw2}',
                f's_lshl_b32 s{S_KX}, s{S_KX}, 11']
    def panels_of(self, t): return [0, f's{S_HD}'] if t < self.P1 else [0]

def gen_w2(a, tsidx):
    kind = 'w2'
    K = 3584; lda2 = K * 2; ldw2 = 2048
    S = int(ENV('S2', '5')); LM = 2
    P1 = int(ENV('P1', '22')); P2 = K // 64 - 2 * P1; N = P1 + P2
    EV = [int(x) for x in ENV('EV', '2,3,5').split(',')]
    STAGE = 32768
    LRES = (N % S) * STAGE; PSTEP = 64
    body = f'L_{kind}_body'; end = f'L_{kind}_end'
    VXB, VWB, VXA, VWA, VO = 5, 6, 25, 26, 12
    VPS, VPL, VFS, VFL, VF = 19, 24, 30, 31, 4
    F = [32, 80]; ACC = 128; GIV = 160; G = [192, 208]; RES = 192; BIA = 224; TM = 232
    acc = lambda jn, jm: ACC + (jn * 2 + jm) * 4
    fx = lambda s, ks, jm: F[s] + (ks * 2 + jm) * 4
    fw = lambda s, ks, jn: F[s] + 16 + (ks * 4 + jn) * 4 if jn < 4 else G[s] + (jn - 4) * 4
    a.label(f'L_{kind}_c0')
    if not MEGA: stub(a, f'{kind}l0_kernel', body, 0, tsidx, True)
    a.label(body)
    tile_map(a, LM, end)
    if ENV('W2MAP', '1') == '1':
        a.emit(f's_lshr_b32 s5, s{S_NT}, 3')
        a.emit(f's_lshl_b32 s{S_NT}, s6, 1')
        a.emit(f's_add_u32 s{S_NT}, s{S_NT}, s5')
    a.emit(f's_cmp_ge_u32 s{S_WV}, 4')
    a.emit(f's_cbranch_scc1 L_{kind}_loader')
    a.emit('v_and_b32 v3, 15, v1')
    a.emit('v_lshrrev_b32 v2, 4, v1')
    a.emit(f's_lshl_b32 s8, s{S_MT}, 7')
    a.emit(f's_lshl_b32 s9, s{S_WV}, 5')
    a.emit('s_add_u32 s8, s8, s9')
    a.emit('v_add_u32 v13, s8, v3')
    a.emit(f's_lshl_b32 s10, s{S_NT}, 7')
    a.emit('v_lshl_add_u32 v14, v2, 3, s10')
    a.emit('v_and_b32 v16, 1, v2')
    a.emit('v_lshrrev_b32 v17, 1, v2')
    a.emit('v_lshlrev_b32 v16, 5, v16')
    a.emit('v_lshl_add_u32 v16, v17, 4, v16')
    a.emit('v_add_u32 v16, s10, v16')
    a.emit(f'v_lshl_add_u32 v{VO}, v13, 11, v16')
    a.emit('v_lshl_add_u32 v18, v17, 4, v13')
    a.emit('v_lshlrev_b32 v18, 3, v18')
    a.emit('v_and_b32 v16, 1, v2')
    a.emit('v_lshl_add_u32 v18, v16, 2, v18')
    a.emit(f's_lshl_b32 s10, s{S_NT}, 14')
    a.emit('v_add_u32 v18, s10, v18')
    a.emit(f's_lshl_b32 s10, s{S_MT}, 4')
    a.emit(f's_add_u32 s10, s10, s{S_NT}')
    a.emit('s_lshl_b32 s10, s10, 2')
    a.emit(f's_add_u32 s10, s10, s{S_WV}')
    a.emit('s_lshl_b32 s9, s10, 13')
    a.emit(f'v_lshl_add_u32 v{VPL}, v1, 4, s9')
    a.emit(f'v_xor_b32 v{VPS}, 0x8000, v{VPL}')
    a.emit('s_lshl_b32 s9, s10, 6')
    a.emit(f's_lshl_b32 s10, s{S_LAYER}, 16')
    a.emit('s_add_u32 s9, s9, s10')
    a.emit(f'v_mov_b32 v{VFL}, s9')
    a.emit(f'v_xor_b32 v{VFS}, 0x100, v{VFL}')
    a.emit(f's_lshl_b32 s8, s{S_WV}, 12')
    a.emit(f'v_lshl_add_u32 v{VXB}, v1, 4, s8')
    wbase(a, VWB, 17)
    a.emit(f'v_add_u32 v{VWB}, 16384, v{VWB}')
    for i in range(1, 4): a.emit(f'v_xor_b32 v{VWB+i}, {32*i}, v{VWB}')
    a.emit('v_lshrrev_b32 v15, 1, v2')
    a.emit('v_lshlrev_b32 v15, 8, v15')
    a.emit('v_lshl_add_u32 v15, v3, 4, v15')
    a.emit('v_lshl_add_u32 v15, v16, 3, v15')
    a.emit(f's_add_u32 s8, s8, {LRES}')
    a.emit('v_add_u32 v15, s8, v15')
    a.emit('s_mov_b32 s11, 0xffff0000')
    a.emit(f's_mov_b32 s{S_SLOT}, 0')
    for i in range(32): a.emit(f'v_mov_b32 v{GIV+i}, 0')
    a.emit('s_waitcnt lgkmcnt(0)')
    srd(a, SB, 'b2', 0, 2048)
    for jn in range(4):
        a.emit(f'buffer_load_dwordx2 v[{BIA+2*jn}:{BIA+2*jn+1}], v14, s[{SB}:{SB+3}], 0 offen offset:{jn*32}')
    srd(a, SO, 'out', 0, 4 * MB)
    if MEGA:
        assert LRES >= 83968
        srd(a, SR, 'ws0', WS_X2, 4 * MB)
        a.emit(f's_cmp_eq_u32 s{S_LAYER}, 0')
        a.emit(f's_cselect_b64 s[{SO}:{SO+1}], s[{SR}:{SR+1}], s[{SO}:{SO+1}]')
    srd(a, ST, 'ws', WS_ST2, 16 * 16384)
    srd(a, SX, 'ws', WS_XP, 8 * MB)
    srd(a, SW, 'ws0', WS_FL + 65536, 131072)
    a.emit(f's_mov_b32 s{S_T}, 4096')
    gbar(a, kind)
    a.emit('s_waitcnt vmcnt(0)')
    for jn in range(4):
        for jm in range(2):
            c = acc(jn, jm)
            for h in range(2):
                a.emit(f'v_lshlrev_b32 v{c+2*h}, 16, v{BIA+2*jn+h}')
                a.emit(f'v_and_b32 v{c+2*h+1}, s11, v{BIA+2*jn+h}')
    def addr():
        o = [f'v_add_u32_e64 v{VXA+i}, s{S_SLOT}, v{VXB+i}' for i in range(5)]
        o += [f's_add_u32 s{S_SLOT}, s{S_SLOT}, {STAGE}', f's_cmp_eq_u32 s{S_SLOT}, {S*STAGE}', f's_cselect_b32 s{S_SLOT}, 0, s{S_SLOT}']
        return o
    def rd(s, ks, nj):
        o = []
        if 'noread' in DBG: return o
        for jm in range(2):
            o.append(f'ds_read_b128 v[{fx(s,ks,jm)}:{fx(s,ks,jm)+3}], v{VXA} offset:{jm*2048+ks*1024}')
        for jn in (list(range(4, 8)) if nj == 8 else []) + list(range(4)):
            for h in range(2):
                r = fw(s, ks, jn) + 2 * h
                o.append(f'ds_read_b64_tr_b16 v[{r}:{r+1}], v{VWA+(jn&3)} offset:{(jn>>2)*8192+ks*4096+h*512}')
        return o
    def mm(s, ks, nj):
        o = []
        if 'nomfma' in DBG: return ['s_nop 0']
        for jn in (list(range(4, 8)) if nj == 8 else []) + list(range(4)):
            for jm in range(2):
                c = acc(jn, jm)
                o.append(f'v_mfma_f32_16x16x32_bf16 v[{c}:{c+3}], v[{fw(s,ks,jn)}:{fw(s,ks,jn)+3}], v[{fx(s,ks,jm)}:{fx(s,ks,jm)+3}], v[{c}:{c+3}]')
        return o
    for x in addr(): a.emit(x)
    a.emit(f's_mov_b32 s{S_CNT}, {P1}')
    a.emit('s_barrier')
    stamp(a, 0 if ENV('TSW2') else 1)
    for x in rd(0, 0, 8): a.emit(x)
    a.emit('s_waitcnt lgkmcnt(0)')
    a('.p2align 3')
    a.label(f'L_{kind}_loop1')
    ad = addr()
    ad[-1] += f'\n  s_sub_u32 s{S_CNT}, s{S_CNT}, 1'
    interleave(a, mm(0, 0, 8), rd(1, 1, 8) + ad, lead=1, per=2)
    a.emit('s_waitcnt lgkmcnt(0)')
    a.emit('s_barrier')
    interleave(a, mm(1, 1, 8), rd(0, 0, 8) + [f's_cmp_lg_u32 s{S_CNT}, 0\n  s_nop 0'], lead=1, per=2)
    a.emit('s_waitcnt lgkmcnt(0)')
    a.emit(f's_cbranch_scc1 L_{kind}_loop1')
    if ENV('TSW2'): stamp(a, 1)
    for x in rd(0, 1, 4): a.emit(x)
    for i in range(8):
        a.emit(f'buffer_store_dwordx4 v[{GIV+4*i}:{GIV+4*i+3}], v{VPS}, s[{SX}:{SX+3}], {f"s{S_T}" if i >= 4 else "0"} offen offset:{(i&3)*1024} sc1')
    for x in addr(): a.emit(x)
    a.emit(f's_mov_b32 s{S_CNT}, {EV[0]}')
    a.emit(f's_mov_b32 s{S_KT}, 0')
    a.emit(f'v_mov_b32 v{VF}, 1')
    a.emit('s_waitcnt lgkmcnt(0)')
    a('.p2align 3')
    a.label(f'L_{kind}_loop')
    for s in range(2):
        a.emit('s_barrier')
        if s == 0: a.emit(f's_sub_u32 s{S_CNT}, s{S_CNT}, 1')
        ad = addr()
        ad[-1] += '\n  s_nop 0' if s == 0 else f'\n  s_cmp_lg_u32 s{S_CNT}, 0'
        interleave(a, mm(s, 0, 4) + mm(s, 1, 4), rd(1 - s, 0, 4) + rd(1 - s, 1, 4) + ad, lead=1, per=2)
        a.emit('s_waitcnt lgkmcnt(0)')
    a.emit(f's_cbranch_scc1 L_{kind}_loop')
    a.emit(f's_add_u32 s{S_KT}, s{S_KT}, 1')
    a.emit(f's_cmp_eq_u32 s{S_KT}, 4')
    a.emit(f's_cbranch_scc1 L_{kind}_epi')
    a.emit(f's_cmp_eq_u32 s{S_KT}, 2')
    a.emit(f's_cbranch_scc1 L_{kind}_ev2')
    a.emit(f's_cmp_eq_u32 s{S_KT}, 3')
    a.emit(f's_cbranch_scc1 L_{kind}_ev3')
    poll = f'buffer_load_dword v{VF}, v{VFL}, s[{SW}:{SW+3}], 0 offen sc1'
    def nextseg(k):
        n = (EV[k] if k < 3 else P2 // 2) - EV[k - 1]
        if n:
            a.emit(f's_mov_b32 s{S_CNT}, {n}')
            a.emit(f's_branch L_{kind}_loop')
        else: a.emit(f's_add_u32 s{S_KT}, s{S_KT}, 1')
    a.emit('s_waitcnt vmcnt(0)')
    a.emit('s_mov_b64 exec, 1')
    a.emit(f'buffer_store_dword v{VF}, v{VFS}, s[{SW}:{SW+3}], 0 offen sc1')
    a.emit('s_mov_b64 exec, -1')
    nextseg(1)
    a.label(f'L_{kind}_ev2')
    a.emit(poll)
    nextseg(2)
    a.label(f'L_{kind}_ev3')
    a.emit(f's_mov_b32 s{S_CNT}, 0x100000')
    a.label(f'L_{kind}_spin')
    a.emit('s_waitcnt vmcnt(0)')
    a.emit(f'v_readfirstlane_b32 s3, v{VF}')
    a.emit(f's_sub_u32 s{S_CNT}, s{S_CNT}, 1')
    a.emit(f's_cselect_b32 s3, 1, s3')
    a.emit('s_cmp_eq_u32 s3, 1')
    a.emit(f's_cbranch_scc1 L_{kind}_got')
    a.emit(poll)
    a.emit(f's_branch L_{kind}_spin')
    a.label(f'L_{kind}_got')
    for i in range(8):
        a.emit(f'buffer_load_dwordx4 v[{GIV+4*i}:{GIV+4*i+3}], v{VPL}, s[{SX}:{SX+3}], {f"s{S_T}" if i >= 4 else "0"} offen offset:{(i&3)*1024} sc1')
    nextseg(3)
    a.label(f'L_{kind}_epi')
    stamp(a, 2)
    for jm in range(2):
        for jn in range(4):
            r = RES + (jn * 2 + jm) * 2
            a.emit(f'ds_read_b64 v[{r}:{r+1}], v15 offset:{jm*2048+jn*512}')
    for i in range(4): a.emit(f'v_mov_b32 v{20+i}, 0')
    a.emit(f's_mov_b32 s3, {16*2048}')
    a.emit('s_mov_b32 s10, 0x3f803f80')
    for jm in range(2):
        for jn in range(4):
            c = acc(jn, jm); r = RES + (jn * 2 + jm) * 2
            a.emit(f's_waitcnt lgkmcnt({7 - (jm * 4 + jn)})')
            for h in range(2):
                a.emit(f'v_lshlrev_b32 v{TM+2*h}, 16, v{r+h}')
                a.emit(f'v_and_b32 v{TM+1+2*h}, s11, v{r+h}')
            for h in range(2):
                a.emit(f'v_pk_add_f32 v[{c+2*h}:{c+2*h+1}], v[{c+2*h}:{c+2*h+1}], v[{TM+2*h}:{TM+1+2*h}]')
    a.emit('s_waitcnt vmcnt(0)')
    D = 32
    for jm in range(2):
        for p in range(2):
            d = D + (jm * 2 + p) * 4
            for q in range(2):
                c = acc(2 * p + q, jm)
                for h in range(2):
                    a.emit(f'v_pk_add_f32 v[{c+2*h}:{c+2*h+1}], v[{c+2*h}:{c+2*h+1}], v[{c+32+2*h}:{c+33+2*h}]')
                a.emit(f'v_cvt_pk_bf16_f32 v{d+2*q}, v{c}, v{c+1}')
                a.emit(f'v_cvt_pk_bf16_f32 v{d+2*q+1}, v{c+2}, v{c+3}')
            a.emit('s_nop 1')
            a.emit(f'v_permlane16_swap_b32 v{d}, v{d+2}')
            a.emit(f'v_permlane16_swap_b32 v{d+1}, v{d+3}')
            a.emit(f'buffer_store_dwordx4 v[{d}:{d+3}], v{VO}, s[{SO}:{SO+3}], {"s3" if jm else "0"} offen offset:{p*PSTEP}{stf(kind)}')
    for jm in range(2):
        for i in range(8):
            d = D + jm * 8 + i
            a.emit(f'v_dot2_f32_bf16 v{20+jm}, v{d}, s10, v{20+jm}')
            a.emit(f'v_dot2_f32_bf16 v{22+jm}, v{d}, v{d}, v{22+jm}')
    a.emit('s_nop 2')
    a.emit('v_permlane32_swap_b32 v20, v21')
    a.emit('v_permlane32_swap_b32 v22, v23')
    a.emit('v_add_f32 v20, v20, v21')
    a.emit('v_add_f32 v22, v22, v23')
    a.emit('s_nop 1')
    a.emit('v_permlane16_swap_b32 v20, v22')
    a.emit('v_add_f32 v20, v20, v22')
    a.emit(f'buffer_store_dword v20, v18, s[{ST}:{ST+3}], 0 offen{stf(kind)}')
    compute_end(a, kind)
    a.label(f'L_{kind}_loader')
    L = Loader2(a, kind, K, lda2, ldw2, S, STAGE, P1)
    L.setup()
    a.emit('s_waitcnt lgkmcnt(0)')
    srd(a, SX, 'ws', WS_H, 2048 * 7168); srd(a, SW, 'w2', 0, 3584 * 2048)
    def tail():
        srd(a, SR, 'ws', WS_X1, 4 * MB)
        L.xoff_blk(2048)
        a.emit(f's_lshl_b32 s4, s{S_NT}, 11')
        for x in L.xdma(S_XD, LRES, SR, 4, True): a.emit(x)
    L.run(tail_issue=tail, ntail_vm=4, final=lambda: a.emit('s_waitcnt vmcnt(0)'), tail_late=1,
          dep=(lambda: dep_wait(a, kind)) if MEGA else None)
    loader_end(a, kind)
    a.label(end)
    a.emit('s_endpgm')
    loader_first(a, kind)
    if not MEGA:
        a(KD.format(name=f'{kind}l0_kernel'))
        stub(a, f'{kind}l1_kernel', body, 1, tsidx + 4, False)
        a(KD.format(name=f'{kind}l1_kernel'))
    a.label(f'L_{kind}_c1')
    return S * STAGE

def zero_flags(a):
    srd(a, SB, 'ws0', WS_FL, 262144)
    a.emit('s_lshl_b32 s3, s2, 10')
    a.emit('v_lshlrev_b32 v2, 2, v0')
    a.emit('v_and_b32 v2, 1023, v2')
    a.emit('v_mov_b32 v3, 0')
    a.emit(f'buffer_store_dword v3, v2, s[{SB}:{SB+3}], s3 offen sc1')
    return 1
```

```python
from common import *
from gemmw1 import big_loop, stats_loads, stats_finish, stats_reduce_store

def gen_qkv(a, tsidx, side):
    kind = 'attn'
    K = 1024; lda2 = 2048; ldw2 = 6144
    S = 3; LM = int(ENV('LM_QKV', '3'))
    XH = 16384 + 6 * 4096
    STAGE = XH + 2048
    LST = S * STAGE
    EX = 1024
    N = 16
    body = f'L_{kind}_body'; end = f'L_{kind}_end'
    VB, VA = 4, 10
    VXW, VPE, VPO, VCE, VCO, VVE, VVO, VS1, VS4, VKA, VKB, MAP, MAC, MBP, MBC, VO = range(16, 32)
    M_ODD, M_UPA, M_UPB, M_FA, M_FB = 48, 50, 52, 54, 14
    F = [32, 76]; ACC = 128; HACC = 224; ONES = 236
    acc = lambda jn, jm: ACC + (jn * 4 + jm) * 4
    fx = lambda s, jm: F[s] + jm * 4
    fw = lambda s, jn: F[s] + 20 + jn * 4
    a.label(f'L_{kind}_c0')
    stub(a, f'{kind}l0_kernel', body, 0, tsidx, True)
    a.label(body)
    tile_map(a, LM, end)
    a.emit(f's_cmp_ge_u32 s{S_WV}, 4')
    a.emit(f's_cbranch_scc1 L_{kind}_loader')
    if ENV('CTE', '0') == '1': code_touch(a, 'L_attn_c0', 'L_w2_c1', int(ENV('CTN', '256')))
    a.emit(f's_and_b32 s{S_WM}, s{S_WV}, 1')
    a.emit(f's_lshr_b32 s{S_WN}, s{S_WV}, 1')
    a.emit('v_and_b32 v3, 31, v1')
    a.emit('v_lshlrev_b32 v3, 2, v3')
    a.emit(f'v_add_u32 v3, {XH}, v3')
    for i in range(4): a.emit(f'v_mov_b32 v{ONES+i}, 0x3f803f80')
    a.emit(f'ds_write_b32 v3, v{ONES}')
    a.emit(f'ds_write_b32 v3, v{ONES} offset:{STAGE}')
    a.emit(f'v_add_u32 v3, {2*STAGE}, v3')
    a.emit(f'ds_write_b32 v3, v{ONES}')
    a.emit('v_and_b32 v3, 15, v1')
    a.emit('v_lshrrev_b32 v2, 4, v1')
    a.emit('v_lshrrev_b32 v33, 1, v3')
    a.emit(f's_lshl_b32 s8, s{S_WM}, 13')
    for ks in range(2):
        if ks: a.emit(f'v_add_u32 v{VB+ks}, 4, v2')
        a.emit(f'v_xor_b32 v{VB+ks}, v{VB+ks if ks else 2}, v33')
        a.emit(f'v_lshlrev_b32 v{VB+ks}, 4, v{VB+ks}')
        a.emit(f'v_lshl_add_u32 v{VB+ks}, v3, 7, v{VB+ks}')
        a.emit(f'v_add_u32 v{VB+4+ks}, {XH}, v{VB+ks}')
        a.emit(f'v_add_u32 v{VB+ks}, s8, v{VB+ks}')
    wbase(a, 34, 33)
    a.emit('v_and_b32 v35, 1, v2')
    a.emit(f'v_xor_b32 v35, s{S_WM}, v35')
    a.emit(f's_lshl_b32 s8, s{S_WV}, 5')
    a.emit('v_xor_b32 v34, s8, v34')
    a.emit(f'v_add_u32 v{VB+2}, 16384, v34')
    a.emit(f'v_xor_b32 v{VB+3}, 32, v{VB+2}')
    a.emit(f's_lshl_b32 s8, s{S_MT}, 7')
    a.emit(f's_lshl_b32 s9, s{S_WM}, 6')
    a.emit('s_add_u32 s8, s8, s9')
    a.emit(f's_add_u32 s10, s8, s{S_NT}')
    a.emit('s_lshl_b32 s10, s10, 11')
    a.emit(f's_lshl_b32 s11, s{S_WN}, 10')
    a.emit('s_add_u32 s10, s10, s11')
    a.emit('v_lshl_add_u32 v33, v3, 4, s10')
    a.emit('v_lshl_add_u32 v33, v35, 9, v33')
    a.emit('v_lshrrev_b32 v34, 1, v2')
    a.emit(f'v_lshl_add_u32 v{VO}, v34, 8, v33')
    a.emit(f's_mul_i32 s10, s{S_WN}, {14336 if XD else 24576}')
    a.emit(f's_add_u32 s10, s10, {EX}')
    a.emit(f's_lshl_b32 s11, s{S_WM}, 10')
    a.emit('s_add_u32 s4, s10, s11')
    a.emit('s_sub_u32 s5, s10, s11')
    a.emit(f's_mul_i32 s6, s{S_WM}, 6144')
    a.emit(f'v_lshl_add_u32 v{VXW}, v1, 4, s4')
    a.emit(f'v_add_u32 v{VPE}, s6, v{VXW}')
    a.emit(f'v_lshl_add_u32 v{VPO}, v1, 4, s5')
    a.emit(f'v_add_u32 v{VPO}, s6, v{VPO}')
    a.emit(f'v_lshl_add_u32 v{VCE}, v2, 8, s4')
    a.emit(f'v_lshl_add_u32 v{VCO}, v2, 8, s5')
    a.emit(f'v_lshl_add_u32 v{VVE}, v3, 4, s4')
    a.emit(f'v_lshl_add_u32 v{VVO}, v3, 4, s5')
    a.emit(f's_lshl_b32 s10, s{S_WM}, 8')
    a.emit(f's_add_u32 s10, s10, {LST}')
    a.emit(f'v_lshl_add_u32 v{VS1}, v3, 2, s10')
    a.emit(f'v_lshl_add_u32 v{VS4}, v2, 4, s10')
    a.emit('v_and_b32 v33, 1, v3')
    a.emit(f'v_cmp_eq_u32 s[{M_ODD}:{M_ODD+1}], 1, v33')
    a.emit('v_lshl_add_u32 v34, v2, 2, v33')
    a.emit('v_add_u32 v35, 2, v34')
    a.emit(f'v_cmp_gt_u32 s[{M_UPA}:{M_UPA+1}], v34, v3')
    a.emit(f'v_cmp_gt_u32 s[{M_UPB}:{M_UPB+1}], v35, v3')
    a.emit('v_mov_b32 v36, 0xffff')
    a.emit('v_mov_b32 v37, 0xffff0000')
    a.emit(f'v_cndmask_b32 v36, v36, v37, s[{M_ODD}:{M_ODD+1}]')
    a.emit(f's_add_u32 s10, s10, {640 + 64}')
    a.emit('v_lshl_add_u32 v34, v34, 2, s10')
    a.emit('v_lshl_add_u32 v35, v35, 2, s10')
    a.emit('v_subrev_u32 v38, 64, v34')
    a.emit('v_subrev_u32 v39, 64, v35')
    a.emit(f'v_cndmask_b32 v{VKA}, v34, v38, s[{M_UPA}:{M_UPA+1}]')
    a.emit(f'v_cndmask_b32 v{VKB}, v35, v39, s[{M_UPB}:{M_UPB+1}]')
    a.emit(f'v_cndmask_b32 v{MAP}, 0, v36, s[{M_UPA}:{M_UPA+1}]')
    a.emit(f'v_cndmask_b32 v{MBP}, 0, v36, s[{M_UPB}:{M_UPB+1}]')
    a.emit(f'v_xor_b32 v{MAC}, v{MAP}, v36')
    a.emit(f'v_xor_b32 v{MBC}, v{MBP}, v36')
    a.emit('s_cmp_eq_u32 s8, 0')
    a.emit(f's_cselect_b64 s[{M_FA}:{M_FA+1}], s[{M_UPA}:{M_UPA+1}], 0')
    a.emit(f's_cselect_b64 s[{M_FB}:{M_FB+1}], s[{M_UPB}:{M_UPB+1}], 0')
    for i in list(range(120, 236)) + list(range(240, 256)): a.emit(f'v_mov_b32 v{i}, 0')
    a.emit('s_waitcnt lgkmcnt(0)')
    srd(a, SO, 'ws', WS_O, 4 * MB)
    clear_flags(a, 0)
    if ENV('CTE', '0') == '0': code_touch(a, 'L_attn_c0', 'L_w2_c1', int(ENV('CTN', '256')))
    def warm():
        a.emit(f's_cmp_lg_u32 s{S_LAYER}, 0')
        a.emit(f's_cbranch_scc1 L_{kind}_nowarm')
        a.emit('s_lshl_b32 s3, s2, 2')
        a.emit(f's_add_u32 s3, s3, s{S_WV}')
        srd(a, SX, 'xs', 0, 4 * MB); srd(a, SW, 'wqkv', 0, 6 * MB)
        a.emit('v_min_u32 v126, 31, v1')
        a.emit('v_min_u32 v127, 47, v1')
        a.emit('v_lshlrev_b32 v126, 7, v126')
        a.emit('v_lshlrev_b32 v127, 7, v127')
        a.emit('s_lshl_b32 s4, s3, 12')
        a.emit(f's_mul_i32 s5, s3, {48 * 128}')
        a.emit(f'buffer_load_dword v2, v126, s[{SX}:{SX+3}], s4 offen')
        a.emit(f'buffer_load_dword v3, v127, s[{SW}:{SW+3}], s5 offen')
        a.emit('v_mov_b32 v126, 0')
        a.emit('v_mov_b32 v127, 0')
        a.label(f'L_{kind}_nowarm')
    WARM = ENV('WARM', '0')
    if WARM == '1': warm()
    def reads(s, ks):
        o = []
        if 'noread' in DBG: return o
        for jm in range(4):
            o.append(f'ds_read_b128 v[{fx(s,jm)}:{fx(s,jm)+3}], v{VA+ks} offset:{jm*2048}')
        o.append(f'ds_read_b128 v[{fx(s,4)}:{fx(s,4)+3}], v{VA+4+ks}')
        for jn in range(6):
            for h in range(2):
                r = fw(s, jn) + 2 * h
                o.append(f'ds_read_b64_tr_b16 v[{r}:{r+1}], v{VA+2+(jn&1)} offset:{(jn>>1)*8192+ks*4096+h*512}')
        return o
    def mfma(c, x, y, cin=None):
        return f'v_mfma_f32_16x16x32_bf16 v[{c}:{c+3}], v[{x}:{x+3}], v[{y}:{y+3}], ' + (f'v[{c}:{c+3}]' if cin is None else cin)
    def mf(s):
        o = []
        if 'nomfma' in DBG: return ['s_nop 0']
        for jn in range(6):
            for jm in range(5):
                if jm == 4 and jn & 1: continue
                c = acc(jn, jm) if jm < 4 else HACC + (jn >> 1) * 4
                o.append(mfma(c, fw(s, jn), fx(s, jm)) if jn < 4 else mfma(c, fx(s, jm), fw(s, jn)))
        return o
    SA = [(240, 244), (248, 252), (120, 124)]
    def mfv(hh):
        def f(s):
            o = mf(s)
            ex = []
            for i, jm in enumerate([2 * hh, 2 * hh + 1] + ([4] if hh == 0 else [])):
                ex.append(mfma(SA[i][0], ONES, fx(s, jm)))
                ex.append(mfma(SA[i][1], fx(s, jm), fx(s, jm)))
            return ex + o
        return f
    def select():
        if WARM == '2': warm(); a.emit('s_nop 1')
        a.emit(f's_cmp_lg_u32 s{S_LAYER}, 0')
        a.emit(f's_cbranch_scc1 L_{kind}_loop')
        a.emit(f's_cmp_lg_u32 s{S_WN}, 0')
        a.emit(f's_cbranch_scc1 L_{kind}_loopb')
        clear_flags(a, 1)
    def post():
        a.emit('v_and_b32 v32, 3, v1')
        a.emit('v_cmp_eq_u32 s[4:5], 1, v32')
        a.emit('v_cmp_eq_u32 s[6:7], 2, v32')
        a.emit('v_cmp_eq_u32 s[8:9], 3, v32')
        a.emit('v_bfe_u32 v33, v1, 2, 2')
        a.emit('v_lshrrev_b32 v34, 4, v1')
        a.emit('v_cmp_eq_u32 s[10:11], v33, v34')
        a.emit(f's_lshl_b32 s3, s{S_WN}, 7')
        a.emit(f'v_add_u32 v35, s3, v{VS1}')
        a.emit('v_and_b32 v36, 15, v1')
        a.emit(f's_cmp_eq_u32 s{S_WV}, 0')
        a.emit('s_cselect_b32 s3, 0, 576')
        a.emit(f's_add_u32 s3, s3, {LST}')
        a.emit('v_lshl_add_u32 v36, v36, 2, s3')
        for (sm, sq) in SA:
            a.emit(f'v_cndmask_b32 v{sm+1}, v{sq}, v{sq+1}, s[4:5]')
        for (sm, sq) in SA:
            a.emit(f'v_cndmask_b32 v{sm+1}, v{sm+1}, v{sq+2}, s[6:7]')
        for (sm, sq) in SA:
            a.emit(f'v_cndmask_b32 v{sm+1}, v{sm+1}, v{sq+3}, s[8:9]')
        for (sm, sq) in SA: stats_finish(a, sm)
        a.emit('s_mov_b64 exec, s[10:11]')
        a.emit(f'ds_write2_b32 v35, v{SA[0][0]}, v{SA[0][0]+1} offset0:16 offset1:176')
        a.emit(f'ds_write2_b32 v35, v{SA[1][0]}, v{SA[1][0]+1} offset0:32 offset1:192')
        a.emit(f'ds_write2_b32 v36, v{SA[2][0]}, v{SA[2][0]+1} offset0:0 offset1:160')
        a.emit('s_mov_b64 exec, -1')
        a.emit('s_waitcnt lgkmcnt(0)')
        a.emit('s_barrier')
    big_loop(a, kind, N, S, STAGE, 6, VB, VA, reads, mf, variants={'a': mfv(0), 'b': mfv(1)}, select=select, post=post)
    PR = 32
    CS = 48
    CV = 64
    MS = 66
    RK = 76
    M4 = 84
    R4 = 104
    VV = [240, 224]
    for b in range(5):
        a.emit(f'ds_read2_b32 v[{MS+2*b}:{MS+2*b+1}], v{VS1} offset0:{16*b} offset1:{160+16*b}')
    for p in range(2):
        a.emit(f'ds_read2_b32 v[{RK+2*p}:{RK+2*p+1}], v{VKA} offset0:{32*p} offset1:{32*p+16}')
        a.emit(f'ds_read2_b32 v[{RK+4+2*p}:{RK+5+2*p}], v{VKB} offset0:{32*p} offset1:{32*p+16}')
    for c in range(3):
        a.emit(f'ds_write_b128 v{VXW}, v[{HACC+4*c}:{HACC+4*c+3}] offset:{2048*c}')
    a.emit(f's_cmp_eq_u32 s{S_WM}, 1')
    a.emit(f's_cbranch_scc1 L_{kind}_nop3')
    for t in range(2, 6):
        a.emit(f'ds_write_b128 v{VXW}, v[{acc(t,3)}:{acc(t,3)+3}] offset:{6144+1024*t}')
    a.label(f'L_{kind}_nop3')
    for b in range(5):
        a.emit(f'ds_read_b128 v[{M4+4*b}:{M4+4*b+3}], v{VS4} offset:{64*b}')
        a.emit(f'ds_read_b128 v[{R4+4*b}:{R4+4*b+3}], v{VS4} offset:{640+64*b}')
    a.emit('s_waitcnt lgkmcnt(10)')
    a.emit('s_barrier')
    for t in range(4):
        a.emit(f'ds_read_b128 v[{CS+4*t}:{CS+4*t+3}], v{VCO if t&1 else VCE} offset:{1024*t}')
    for t in range(2):
        a.emit(f'ds_read_b32 v{CV+t}, v{VVO if t else VVE} offset:{4096+1024*t}')
    for t in range(4):
        a.emit(f'ds_read_b128 v[{PR+4*t}:{PR+4*t+3}], v{VPO if t&1 else VPE} offset:{2048+1024*t}')
    sc = 32 ** -0.5 * 1.4426950408889634
    for b in range(4):
        a.emit(f'v_mul_f32 v{MS+2*b+3}, {f2u(sc):#x}, v{MS+2*b+3}')
    for b in range(4):
        a.emit(f'v_mul_f32 v{RK+b}, v{RK+b}, v{MS+2*b+3}')
        a.emit(f'v_mul_f32 v{RK+4+b}, v{RK+4+b}, v{MS+2*b+3}')
    a.emit('s_waitcnt lgkmcnt(6)')
    def qk(x, y, cs, b, d):
        m = f'v[{MS+2*b}:{MS+2*b+1}]'
        for (z, c) in ((x, cs), (y, cs + 4)):
            for h in range(2):
                a.emit(f'v_pk_fma_f32 v[{z+2*h}:{z+2*h+1}], v[{c+2*h}:{c+2*h+1}], {m}, v[{z+2*h}:{z+2*h+1}] op_sel:[0,0,0] op_sel_hi:[1,0,1] neg_lo:[0,1,0] neg_hi:[0,1,0]')
        a.emit(f'v_cvt_pk_bf16_f32 v{d}, v{x}, v{x+1}')
        a.emit(f'v_cvt_pk_bf16_f32 v{d+1}, v{x+2}, v{x+3}')
        a.emit(f'v_cvt_pk_bf16_f32 v{d+2}, v{y}, v{y+1}')
        a.emit(f'v_cvt_pk_bf16_f32 v{d+3}, v{y+2}, v{y+3}')
    Q = lambda b: acc(0, b); Kf = lambda b: acc(2, b) if b >= 0 else PR
    Sc = lambda b: acc(1, b); Sp = lambda b: acc(3, b)
    for b in range(4):
        qk(acc(0, b), acc(1, b), CS, b + 1, Q(b))
        qk(acc(2, b), acc(3, b), CS + 8, b + 1, Kf(b))
        if b == 3:
            a.emit('s_waitcnt lgkmcnt(0)')
            qk(PR, PR + 4, CS + 8, 0, PR)
        if b >= 1:
            a.emit(mfma(Sc(b - 1), Kf(b - 1), Q(b - 1), '0'))
            if b >= 2: a.emit(mfma(Sp(b - 1), Kf(b - 2), Q(b - 1), '0'))
    a.emit(mfma(Sc(3), Kf(3), Q(3), '0'))
    a.emit(mfma(Sp(3), Kf(2), Q(3), '0'))
    a.emit(mfma(Sp(0), Kf(-1), Q(0), '0'))
    def vconv(x, t, b):
        cv = f'v[{CV}:{CV+1}]'
        for h in range(2):
            a.emit(f'v_pk_fma_f32 v[{x+2*h}:{x+2*h+1}], v[{M4+4*b+2*h}:{M4+4*b+2*h+1}], {cv}, v[{x+2*h}:{x+2*h+1}] op_sel:[0,{t},0] op_sel_hi:[1,{t},1] neg_lo:[1,0,0] neg_hi:[1,0,0]')
        for h in range(2):
            a.emit(f'v_pk_mul_f32 v[{x+2*h}:{x+2*h+1}], v[{x+2*h}:{x+2*h+1}], v[{R4+4*b+2*h}:{R4+4*b+2*h+1}]')
        for h in range(2):
            a.emit(f'v_cvt_pk_bf16_f32 v{VV[t]+2*b+h}, v{x+2*h}, v{x+2*h+1}')
    for t in range(2):
        vconv(PR + 8 + 4 * t, t, 0)
        for b in range(4): vconv(acc(4 + t, b), t, b + 1)
    T = lambda b: 32 + 4 * b
    odd = f's[{M_ODD}:{M_ODD+1}]'
    for b in (1, 2, 3, 0):
        a.emit(f'v_cndmask_b32 v{Sc(b)}, v{Sc(b)}, v{Sc(b)+1}, {odd}')
        a.emit(f'v_cndmask_b32 v{Sp(b)}, v{Sp(b)}, v{Sp(b)+1}, {odd}')
        a.emit(f'v_cndmask_b32 v{Sc(b)+2}, v{Sc(b)+2}, v{Sc(b)+3}, {odd}')
        a.emit(f'v_cndmask_b32 v{Sp(b)+2}, v{Sp(b)+2}, v{Sp(b)+3}, {odd}')
        a.emit(f'v_cndmask_b32 v{T(b)}, v{Sc(b)}, v{Sp(b)}, s[{M_UPA}:{M_UPA+1}]')
        a.emit(f'v_cndmask_b32 v{T(b)+1}, v{Sc(b)+2}, v{Sp(b)+2}, s[{M_UPB}:{M_UPB+1}]')
        a.emit(f'v_mul_f32 v{T(b)}, v{T(b)}, v{RK+b}')
        a.emit(f'v_mul_f32 v{T(b)+1}, v{T(b)+1}, v{RK+4+b}')
    a.emit(f'v_mov_b32 v48, {f2u(-1e9 * 1.4426950408889634):#x}')
    a.emit(f'v_cndmask_b32 v{T(0)}, v{T(0)}, v48, s[{M_FA}:{M_FA+1}]')
    a.emit(f'v_cndmask_b32 v{T(0)+1}, v{T(0)+1}, v48, s[{M_FB}:{M_FB+1}]')
    for b in range(4): a.emit(f'v_max_f32 v{T(b)+2}, v{T(b)}, v{T(b)+1}')
    for op in ('32', '16'):
        for b in range(4): a.emit(f'v_mov_b32 v{T(b)+3}, v{T(b)+2}')
        for b in range(4): a.emit(f'v_permlane{op}_swap_b32 v{T(b)+2}, v{T(b)+3}')
        for b in range(4): a.emit(f'v_max_f32 v{T(b)+2}, v{T(b)+2}, v{T(b)+3}')
    for b in range(4):
        a.emit(f'v_sub_f32 v{T(b)}, v{T(b)}, v{T(b)+2}')
        a.emit(f'v_sub_f32 v{T(b)+1}, v{T(b)+1}, v{T(b)+2}')
    for b in range(4):
        a.emit(f'v_exp_f32 v{T(b)}, v{T(b)}')
        a.emit(f'v_exp_f32 v{T(b)+1}, v{T(b)+1}')
    P = lambda b: acc(0, b)
    for b in range(4):
        a.emit(f'v_cvt_pk_bf16_f32 v{T(b)}, v{T(b)}, v{T(b)}')
        a.emit(f'v_cvt_pk_bf16_f32 v{T(b)+1}, v{T(b)+1}, v{T(b)+1}')
        a.emit(f'v_and_b32 v{P(b)}, v{T(b)}, v{MAP}')
        a.emit(f'v_and_b32 v{P(b)+1}, v{T(b)+1}, v{MBP}')
        a.emit(f'v_and_b32 v{P(b)+2}, v{T(b)}, v{MAC}')
        a.emit(f'v_and_b32 v{P(b)+3}, v{T(b)+1}, v{MBC}')
        if b >= 1:
            q = b - 1
            a.emit(mfma(acc(1, q), ONES, P(q), '0'))
            a.emit(mfma(acc(4, q), VV[0] + 2 * q, P(q), '0'))
            a.emit(mfma(acc(5, q), VV[1] + 2 * q, P(q), '0'))
    q = 3
    a.emit(mfma(acc(1, q), ONES, P(q), '0'))
    a.emit(mfma(acc(4, q), VV[0] + 2 * q, P(q), '0'))
    a.emit(mfma(acc(5, q), VV[1] + 2 * q, P(q), '0'))
    for b in range(4):
        r = acc(1, b); d = 48 + 4 * b
        a.emit(f'v_rcp_f32 v{r}, v{r}')
        a.emit(f's_mov_b32 s3, {b * 16 * 2048}')
        for t in range(2):
            x = acc(4 + t, b)
            for h in range(2):
                a.emit(f'v_pk_mul_f32 v[{x+2*h}:{x+2*h+1}], v[{x+2*h}:{x+2*h+1}], v[{r}:{r+1}] op_sel_hi:[1,0]')
        for t in range(2):
            x = acc(4 + t, b)
            for h in range(2):
                a.emit(f'v_cvt_pk_bf16_f32 v{d+2*t+h}, v{x+2*h}, v{x+2*h+1}')
        a.emit('s_nop 1')
        a.emit(f'v_permlane16_swap_b32 v{d}, v{d+2}')
        a.emit(f'v_permlane16_swap_b32 v{d+1}, v{d+3}')
        a.emit(f'buffer_store_dwordx4 v[{d}:{d+3}], v{VO}, s[{SO}:{SO+3}], s3 offen{stf(kind)}')
    compute_end(a, kind)
    a.label(f'L_{kind}_loader')
    L = Loader(a, kind, K, lda2, ldw2, [0, 2048, 4096], 128, S, STAGE, halo=XH, rot=int(ENV('ROT_QKV', '0')))
    L.setup()
    a.emit('s_waitcnt lgkmcnt(0)')
    srd_xs(a, SX); srd(a, SW, 'wqkv', 0, 1024 * 6144)
    import sides
    a.emit(f's_cmp_lg_u32 s{S_LAYER}, 0')
    a.emit(f's_cbranch_scc1 L_{kind}_ld1')
    post = sides.stouch_post(a, kind)
    L.run('0', tail_issue=lambda: side(a, 0, 'issue'), ntail_vm=side(Asm(), 0, 'issue'), post=post, start=lambda: sides.cls_touch(a))
    a.emit('s_barrier')
    a.emit('s_barrier')
    if ONE:
        a.emit(f's_branch L_{kind}_ldend')
    else:
        side(a, 0, 'finish')
        a.emit('s_endpgm')
    a.label(f'L_{kind}_ld1')
    srd(a, ST, 'ws0', WS_ST2, 16 * 16384)
    n1 = side(Asm(), 1, 'issue')
    def tail1():
        stats_loads(a, 32, True)
        side(a, 1, 'issue')
    def final1():
        a.emit(f's_waitcnt vmcnt({n1})')
        stats_reduce_store(a, 32, LST)
        a.emit('s_waitcnt lgkmcnt(0)')
    L.run('1', tail_issue=tail1, ntail_vm=16 + n1, final=final1, dep=(lambda: dep_wait(a, kind, halo=True)) if MEGA else None)
    a.emit('s_barrier')
    if not MEGA: side(a, 1, 'finish')
    a.label(f'L_{kind}_ldend')
    loader_end(a, kind, check=False)
    a.label(end)
    a.emit('s_endpgm')
    loader_first(a, kind)
    a(KD.format(name=f'{kind}l0_kernel'))
    if not MEGA:
        stub(a, f'{kind}l1_kernel', body, 1, tsidx + 4, False)
        a(KD.format(name=f'{kind}l1_kernel'))
    a.label(f'L_{kind}_c1')
    return LST + 1280
```

```python
from common import *
LM_WO = int(ENV('LM_WO', '2')); LM_W1 = int(ENV('LM_W1', '3')); LM_W2 = int(ENV('LM_W2', '2')); LM_QKV = int(ENV('LM_QKV', '3'))
PV = 96

def fin(a):
    a.emit('s_waitcnt vmcnt(0)')

def pf_wo(a):
    L = 1 << (5 - LM_WO)
    sh = 5 - LM_WO
    return pf_weights(a, SP, 'wo', 2 * MB, 2048, 32, sh, L, LM_WO, 128, max(1, (8 << sh) // 64), PV)

def touch(a, which, size, vd, l0only=True):
    if 'nopf' in DBG: return 0
    per = size // 128 // 1024
    assert per <= 64
    srd(a, SP, which, 0, size)
    a.emit(f's_and_b32 s3, s{S_WV}, 3')
    a.emit('s_lshl_b32 s4, s2, 2')
    a.emit('s_add_u32 s3, s3, s4')
    a.emit(f's_mul_i32 s3, s3, {per * 128}')
    a.emit(f'v_min_u32 v2, {per - 1}, v1')
    a.emit('v_lshlrev_b32 v2, 7, v2')
    if l0only:
        a.emit(f's_sub_u32 s4, s{S_LAYER}, 1')
        a.emit('v_and_b32 v2, s4, v2')
    a.emit(f'buffer_load_dword v{vd}, v2, s[{SP}:{SP+3}], s3 offen')
    return 1

def qkv(a, layer, phase, npre=0):
    if phase == 'issue':
        n = 0
        if layer == 0:
            srd(a, SC, 'w1', 0, 1024 * 7168)
            a.emit('s_min_u32 s3, s2, 223')
            a.emit('s_mul_i32 s4, s3, 4682')
            a.emit('s_lshr_b32 s4, s4, 16')
            a.emit('s_mul_i32 s5, s4, 14')
            a.emit('s_sub_u32 s3, s3, s5')
            a.emit('s_lshl_b32 s3, s3, 2')
            a.emit(f's_and_b32 s5, s{S_WV}, 3')
            a.emit('s_add_u32 s3, s3, s5')
            a.emit(f's_mul_i32 s5, s4, {64 * 7168}')
            a.emit('s_lshl_b32 s8, s3, 7')
            a.emit('s_add_u32 s5, s5, s8')
            a.emit('s_lshl_b32 s9, s4, 14')
            a.emit('s_lshl_b32 s8, s3, 8')
            a.emit('s_add_u32 s94, s9, s8')
            a.emit('v_lshrrev_b32 v2, 3, v1')
            a.emit('v_mul_u32_u24 v2, 7168, v2')
            a.emit('v_and_b32 v3, 7, v1')
            a.emit('v_lshl_add_u32 v2, v3, 4, v2')
            for j in range(8):
                a.emit(f'buffer_load_dwordx4 v[{64+4*j}:{67+4*j}], v2, s[{SC}:{SC+3}], s5 offen')
                if j < 7: a.emit(f's_add_u32 s5, s5, {8 * 7168}')
            n += 8
            from gemmw2 import zero_flags
            if not ONE: n += zero_flags(a)
            if ENV('TW2') == 'qkv': n += touch(a, 'w2', 3584 * 2048, PV + 2, False)
        if ENV('PWO', 'v') == 'v': n += pf_wo(a)
        return n
    if layer == 0:
        a.emit(f's_waitcnt vmcnt({npre})')
        a.emit('s_mov_b32 s7, 0xffff0000')
        for i in range(4):
            a.emit(f'v_lshlrev_b32 v{32+2*i}, 16, v{64+i}')
            a.emit(f'v_and_b32 v{33+2*i}, s7, v{64+i}')
        for j in range(1, 8):
            for i in range(4):
                a.emit(f'v_lshlrev_b32 v40, 16, v{64+4*j+i}')
                a.emit(f'v_and_b32 v41, s7, v{64+4*j+i}')
                a.emit(f'v_pk_add_f32 v[{32+2*i}:{33+2*i}], v[{32+2*i}:{33+2*i}], v[40:41]')
        srd(a, SB, 'ws0', WS_CS, 16 * 16384)
        for i in range(4): a.emit(f'v_permlane32_swap_b32 v{32+i}, v{36+i}')
        for i in range(4): a.emit(f'v_add_f32 v{32+i}, v{32+i}, v{36+i}')
        a.emit('v_and_b32 v2, 7, v1')
        a.emit('v_lshlrev_b32 v2, 5, v2')
        for i in range(2): a.emit(f'v_permlane16_swap_b32 v{32+i}, v{34+i}')
        for i in range(2): a.emit(f'v_add_f32 v{32+i}, v{32+i}, v{34+i}')
        a.emit('v_lshrrev_b32 v3, 4, v1')
        a.emit('v_lshl_add_u32 v2, v3, 3, v2')
        for i in range(2): a.emit(f'v_add_f32_dpp v{32+i}, v{32+i}, v{32+i} row_ror:8 row_mask:0xf bank_mask:0xf')
        a.emit(f'buffer_store_dwordx2 v[32:33], v2, s[{SB}:{SB+3}], s94 offen sc1')
        if ONE: a.emit('s_waitcnt vmcnt(0)')
    else:
        fin(a)

def wo(a, phase):
    if phase == 'issue':
        return touch(a, 'w2', 3584 * 2048, PV) if ENV('TW2') == 'wo' else 0
    fin(a)

def stouch(a, which, size, sd, sreg, first, lps, pre=0):
    if lps == 0: return []
    srd(a, sd, which, 0, size)
    a.emit(f's_cmp_eq_u32 s{S_LAYER}, 0')
    a.emit(f's_cselect_b32 s{sd+2}, s{sd+2}, 0')
    a.emit(f's_and_b32 s3, s{S_WV}, 3')
    a.emit('s_lshl_b32 s4, s2, 2')
    a.emit('s_add_u32 s3, s3, s4')
    a.emit(f's_mul_i32 s{sreg}, s3, {size // 1024}')
    for i in range(pre): a.emit(f's_buffer_load_dword s84, s[{sd}:{sd+3}], s{sreg} offset:{64*(first+i)}')
    return [f's_buffer_load_dword s84, s[{sd}:{sd+3}], s{sreg} offset:{64*(first+pre+i)}' for i in range(lps)] + [f's_add_u32 s{sreg}, s{sreg}, {64*lps}']

STV = [int(x) for x in ENV('STV', '4,0,4,0').split(',')]
def stouch_post(a, kind):
    if ENV('TW2', 's') != 's': return ()
    if kind == 'attn':
        return stouch(a, 'w2', 3584 * 2048, SR, S_T, 0, STV[0]) + stouch(a, 'wo', 2 * MB, SB, 86, 0, STV[3], pre=max(0, 32 - 14 * STV[3]))
    if kind == 'wo': return stouch(a, 'w2', 3584 * 2048, SP, S_T, 14 * STV[0], STV[1])
    if kind == 'w1': return stouch(a, 'w2', 3584 * 2048, SP, S_T, 14 * STV[0] + 11 * STV[1], STV[2])
    if kind == 'w2': return cls_w2(a)
    return ()

def cls_w2(a):
    P = int(ENV('CW2', '8'))
    if P == 0: return ()
    a.emit(f's_and_b32 s3, s{S_WV}, 3')
    a.emit(f's_lshl_b32 s4, s{S_CU}, 2')
    a.emit('s_add_u32 s3, s3, s4')
    a.emit('s_lshl_b32 s4, s3, 6')
    a.emit('s_and_b32 s4, s4, 64')
    a.emit('s_lshr_b32 s3, s3, 1')
    a.emit(f's_lshl_b32 s{S_T}, s3, 11')
    a.emit(f's_add_u32 s{S_T}, s{S_T}, s4')
    a.emit(f's_sub_u32 s4, 384, s{SW}')
    a.emit('s_and_b32 s4, s4, 0x380')
    a.emit(f's_add_u32 s{S_T}, s{S_T}, s4')
    a.emit(f's_lshl_b32 s4, s{S_NT}, 7')
    a.emit('s_and_b32 s4, s4, 1024')
    a.emit(f's_add_u32 s{S_T}, s{S_T}, s4')
    a.emit(f's_add_u32 s{S_T}, s{S_T}, {4 * 131072}')
    o = [f's_buffer_load_dword s84, s[{SW}:{SW+3}], s{S_T}', f's_add_u32 s{S_T}, s{S_T}, 131072']
    for i in range(P + 1):
        for x in o: a.emit(x)
    return o

def w1(a, phase):
    if phase == 'issue':
        return (touch(a, 'w2', 3584 * 2048, PV) if ENV('TW2', 's') == 'w1' else 0)
    fin(a)

def w2(a, phase):
    return 0

def cls_touch(a):
    m = ENV('CLS', 'w')
    if m == '0': return
    a.emit(f's_and_b32 s3, s{S_WV}, 3')
    a.emit('s_lshl_b32 s4, s2, 2')
    a.emit('s_add_u32 s3, s3, s4')
    a.emit(f's_sub_u32 s4, 384, s{SW}')
    a.emit('s_and_b32 s4, s4, 0x380')
    a.emit('s_mul_i32 s5, s3, 6144')
    a.emit('s_add_u32 s5, s5, s4')
    for j in range(6):
        for h in range(2): a.emit(f's_buffer_load_dword s84, s[{SW}:{SW+3}], s5 offset:{1024*j+64*h}')
    if m == 'wx':
        a.emit(f's_sub_u32 s4, 384, s{SX}')
        a.emit('s_and_b32 s4, s4, 0x380')
        a.emit('s_lshl_b32 s5, s3, 12')
        a.emit('s_add_u32 s5, s5, s4')
        for j in range(4):
            for h in range(2): a.emit(f's_buffer_load_dword s84, s[{SX}:{SX+3}], s5 offset:{1024*j+64*h}')
```

```python
from common import *
from gemm64 import gen_gemm64
from gemmw1 import gen_w1
HYB = ENV('HYB', '0') == '1'

def main():
    launches = []
    a = Asm()
    def add(name, grid, lds, blk=512):
        launches.append(f'; @launch kernel={name} grid=({grid},1,1) block=({blk},1,1) lds={lds}')
    nos = lambda a, ph: 0
    from qkv import gen_qkv
    from gemmw2 import gen_w2
    import sides
    lq = gen_qkv(a, 0, sides.qkv)
    lo = gen_gemm64(a, 'wo', 1, sides.wo)
    l1 = gen_w1(a, 2, sides.w1)
    l2 = gen_w2(a, 3) if ENV('SPLIT', '0') == '1' else gen_gemm64(a, 'w2', 3, sides.w2)
    if ONE: add('attnl0_kernel', 256, 163840)
    elif MEGA:
        add('attnl0_kernel', 256, lq); add('wol0_kernel', 256, 163840)
    else:
        for L in range(2):
            add(f'attnl{L}_kernel', 256, lq)
            add(f'wol{L}_kernel', 256, lo); add(f'w1l{L}_kernel', 256, l1); add(f'w2l{L}_kernel', 256, l2)
    if ENV('LIST'):
        m = {l.split('kernel=')[1].split('_kernel')[0]: l for l in launches}
        launches = [m[x] for x in ENV('LIST').split(',')]
    if 'nostore' in DBG:
        a.lines = [l for l in a.lines if not ('buffer_store_dwordx4' in l and f's[{SO}:{SO+3}]' in l)]
    if ENV('LDF'):
        a.lines = [l.replace(' lds', ' ' + ENV('LDF').replace('+', ' ') + ' lds') if l.endswith(' lds') else l for l in a.lines]
    if 'noexch' in DBG:
        a.lines = [l for l in a.lines if not ('dwordx4' in l and ' sc1' in l and f's[{SX}:{SX+3}]' in l)]
    if 'halfexch' in DBG:
        a.lines = [l for l in a.lines if not ('dwordx4' in l and ' sc1' in l and f's[{SX}:{SX+3}], s{S_T}' in l)]
    hdr = open(os.path.join(os.path.dirname(os.path.abspath(__file__)), '..', 'header.txt')).read()
    out = hdr + '\n'.join(launches) + '\n.amdgcn_target "amdgcn-amd-amdhsa--gfx950"\n' + a.text()
    check_offsets(out)
    path = sys.argv[1]
    open(path, 'w').write(out)
    print('wrote', path, len(out))
main()
```

```python
import sys, os, struct
sys.path.insert(0, os.path.join(os.path.dirname(os.path.abspath(__file__)), '..'))
from asmlib import Asm, check_offsets
MB = 1 << 20
WSB = int(os.environ.get('WSB', '0')) * MB
WS_O   = WSB
WS_X1  = WSB + 4 * MB
WS_H   = WSB + 8 * MB
WS_ST  = WSB + 23 * MB
WS_CS  = WSB + 23 * MB + 512 * 1024
WS_TS  = 60 * MB
MEGA = os.environ.get('MEGA', '2') in ('1', '2')
ONE = os.environ.get('MEGA', '2') == '2'
LSTR = 64 * MB
WS_ST2 = WS_ST + 256 * 1024 if MEGA else WS_ST
WS_FL = WSB + 23 * MB + 768 * 1024
WS_XP = WSB + 24 * MB
WS_X2 = WSB + 32 * MB
XPAD = int(os.environ.get('XPAD', '128')) if MEGA else 0
f2u = lambda f: struct.unpack('<I', struct.pack('<f', f))[0]
ENV = os.environ.get
TS = ENV('TS', '')
DBG = ENV('DBG', '').split(',')
EARLY = int(ENV('EARLY', '0')) if MEGA and ENV('SPLIT', '0') == '0' else 0
def stf(kind): return (' ' + ENV('WTF', 'sc1')) if kind in ENV('WT', 'attn,wo,w2,w1').split(',') else ''

KA = {'A_x': 0, 'wqkv': 8, 'wo': 16, 'w1': 32, 'b1': 40, 'w2': 48, 'b2': 56, 'out': 64, 'ws': 80}
P_IN = 16
P_OUT = 32; P_WS = 34
P_XS = 12
PTR = {'A_x': 16, 'wqkv': 18, 'wo': 20, 'w1': 24, 'b1': 26, 'w2': 28, 'b2': 30, 'out': 32, 'ws': 34, 'xs': 12, 'ws0': 22}
SX, SW, SO, SR, SB, ST, SP, SC = 36, 40, 44, 48, 52, 56, 60, 64
S_MT, S_NT, S_WV, S_WM, S_WN = 68, 69, 70, 71, 72
S_KX, S_KW, S_SLOT, S_XD, S_WD, S_HD, S_CNT = 73, 74, 75, 76, 77, 78, 79
S_LAYER = 96; S_TSI = 97; S_T = 98; S_CU = 99; S_XG = 100; S_KT = 101

KD = '''.section .rodata,"a"
.p2align 6
.amdhsa_kernel {name}
  .amdhsa_next_free_vgpr 256
  .amdhsa_next_free_sgpr 102
  .amdhsa_accum_offset 256
  .amdhsa_group_segment_fixed_size 0
  .amdhsa_kernarg_size 88
  .amdhsa_user_sgpr_count 2
  .amdhsa_user_sgpr_kernarg_segment_ptr 1
  .amdhsa_system_sgpr_workgroup_id_x 1
  .amdhsa_float_denorm_mode_32 3
  .amdhsa_float_denorm_mode_16_64 3
.end_amdhsa_kernel
.text
'''

def srd(a, sd, which, off, size):
    p = PTR[which]
    if off:
        a.emit(f's_add_u32 s{sd}, s{p}, {off}')
        a.emit(f's_addc_u32 s{sd+1}, s{p+1}, 0')
        a.emit(f's_and_b32 s{sd+1}, s{sd+1}, 0xffff')
    else:
        a.emit(f's_mov_b32 s{sd}, s{p}')
        a.emit(f's_and_b32 s{sd+1}, s{p+1}, 0xffff')
    a.emit(f's_mov_b32 s{sd+2}, {size}')
    a.emit(f's_mov_b32 s{sd+3}, 0x00020000')

def xpitch(a, sd, inv=False):
    a.emit(f's_cmp_eq_u32 s{S_LAYER}, {0 if inv else 1}')
    a.emit(f's_cselect_b32 s{sd}, {XPAD}, 0')
    a.emit(f's_add_u32 s{sd}, s{sd}, 2048')

def srd_xs(a, sd):
    srd(a, sd, 'xs', 0, 4 * MB)
    xpitch(a, sd + 2)
    a.emit(f's_lshl_b32 s{sd+2}, s{sd+2}, 11')

def stub(a, name, body, layer, tsidx, first):
    a(f'.text\n.globl {name}\n.p2align 8\n.type {name},@function\n{name}:')
    if TS:
        stamp(a, 0, nowait=True)
    a.emit('s_load_dwordx4 s[16:19], s[0:1], 0')
    a.emit('s_load_dwordx2 s[20:21], s[0:1], 16')
    a.emit('s_load_dwordx2 s[22:23], s[0:1], 80')
    a.emit('s_load_dwordx8 s[24:31], s[0:1], 32')
    a.emit('s_load_dwordx2 s[32:33], s[0:1], 64')
    a.emit('s_load_dwordx2 s[34:35], s[0:1], 80')
    a.emit(f's_load_dwordx2 s[12:13], s[0:1], {0 if layer == 0 else 64}')
    a.emit(f's_mov_b32 s{S_LAYER}, {layer}')
    a.emit(f's_mov_b32 s{S_TSI}, {tsidx}')
    if not first:
        a.emit(f's_branch {body}')

def stamp(a, n, nowait=False):
    if not TS: return
    a.emit(f's_memrealtime s[{80+4*n}:{81+4*n}]')
    a.emit(f's_memtime s[{82+4*n}:{83+4*n}]')
    if not nowait: a.emit('s_waitcnt lgkmcnt(0)')

def stamps_out(a, tag):
    if not TS: return
    if not MEGA: a.emit('s_waitcnt vmcnt(0)')
    stamp(a, 3)
    if MEGA and tag == 'w1':
        for i in range(16): a.emit(f'v_writelane_b32 v200, s{80+i}, {i}')
        return
    srd(a, SP, 'ws0', WS_TS, 1 << 20)
    a.emit('s_lshl_b32 s4, s2, 6')
    a.emit(f's_lshl_b32 s5, s{S_TSI}, 16')
    a.emit('s_add_u32 s4, s4, s5')
    a.emit('v_mov_b32 v1, s4')
    for i in range(16): a.emit(f'v_mov_b32 v{4+i}, s{80+i}')
    a.emit('v_cmp_eq_u32 vcc, 0, v0')
    a.emit('s_and_saveexec_b64 s[6:7], vcc')
    a.emit(f's_cbranch_execz L_tsskip_{tag}')
    for j in range(4):
        a.emit(f'buffer_store_dwordx4 v[{4+4*j}:{7+4*j}], v1, s[{SP}:{SP+3}], 0 offen offset:{16*j}')
    if MEGA and tag == 'w2':
        a.emit('s_mov_b64 exec, 0xffff')
        a.emit('s_sub_u32 s4, s4, 0x10000')
        a.emit('v_lshlrev_b32 v1, 2, v0')
        a.emit(f'buffer_store_dword v200, v1, s[{SP}:{SP+3}], s4 offen')
    a.label(f'L_tsskip_{tag}')
    a.emit('s_mov_b64 exec, -1')

def lstamp(a, n):
    if TS: a.emit(f's_memrealtime s[{52+2*n}:{53+2*n}]')

def lstamps_out(a, tag):
    if not TS: return
    a.emit(f's_cmp_lg_u32 s{S_WV}, 4')
    a.emit(f's_cbranch_scc1 L_ltsskip_{tag}')
    a.emit('s_waitcnt lgkmcnt(0)')
    srd(a, SP, 'ws0', WS_TS + 16384, 1 << 20)
    a.emit('s_lshl_b32 s4, s2, 6')
    a.emit(f's_lshl_b32 s5, s{S_TSI}, 16')
    a.emit('s_add_u32 s4, s4, s5')
    for i in range(8): a.emit(f'v_writelane_b32 v20, s{52+i}, {i}')
    a.emit('v_lshlrev_b32 v21, 2, v1')
    a.emit('s_mov_b64 exec, 0xff')
    a.emit(f'buffer_store_dword v20, v21, s[{SP}:{SP+3}], s4 offen')
    a.emit('s_mov_b64 exec, -1')
    a.label(f'L_ltsskip_{tag}')

def tile_map(a, LM, endlab):
    a.emit('s_cmp_ge_u32 s2, 256')
    a.emit(f's_cbranch_scc1 {endlab}')
    a.emit('v_lshrrev_b32 v2, 6, v0')
    a.emit('v_and_b32 v1, 63, v0')
    a.emit(f'v_readfirstlane_b32 s{S_WV}, v2')
    a.emit('s_and_b32 s3, s2, 7')
    a.emit(f's_lshr_b32 s{S_CU}, s2, 3')
    if LM == 2 and ENV('MAP2', '0') == '1':
        a.emit('s_lshl_b32 s5, s3, 1')
        a.emit('s_lshr_b32 s6, s3, 1')
        a.emit('s_and_b32 s5, s5, 2')
        a.emit('s_and_b32 s6, s6, 1')
        a.emit('s_or_b32 s5, s5, s6')
    else: a.emit(f's_and_b32 s5, s3, {(1 << (4 - LM)) - 1}')
    a.emit(f's_lshl_b32 s5, s5, {LM}')
    a.emit(f's_and_b32 s6, s{S_CU}, {(1 << LM) - 1}')
    a.emit(f's_add_u32 s{S_MT}, s5, s6')
    a.emit(f's_lshr_b32 s5, s3, {4 - LM}')
    a.emit(f's_lshl_b32 s5, s5, {5 - LM}')
    a.emit(f's_lshr_b32 s6, s{S_CU}, {LM}')
    a.emit(f's_add_u32 s{S_NT}, s5, s6')
    if 'smallm' in DBG: a.emit(f's_and_b32 s{S_MT}, s{S_MT}, 1')
    if 'smalln' in DBG: a.emit(f's_and_b32 s{S_NT}, s{S_NT}, 1')

def interleave(a, main, side, lead=1, per=1):
    si = 0
    for i, m in enumerate(main):
        a.emit(m)
        if i + 1 >= lead:
            for _ in range(per):
                if si < len(side): a.emit(side[si]); si += 1
    while si < len(side): a.emit(side[si]); si += 1

class Loader:
    VXD = 4; VWD = 8; VXH = 28
    def __init__(self, a, tag, K, lda2, ldw2, panels, colbase, S, STAGE, halo=None, delta=0, rot=None, xblk=False, half=0):
        self.a = a; self.tag = tag; self.K = K; self.lda2 = lda2; self.ldw2 = ldw2; self.panels = panels
        self.colbase = colbase; self.S = S; self.STAGE = STAGE; self.halo = halo; self.delta = delta; self.xblk = xblk; self.rot = rot if rot is not None and rot >= 0 else None
        self.NSTEP = K // 64; self.half = half
        self.per = 4 + 2 * len(panels) + (1 if halo is not None else 0)
    def setup(self):
        a = self.a
        if ENV('PRIO', '0') != '0': a.emit(f"s_setprio {ENV('PRIO')}")
        a.emit(f's_add_u32 s8, s{S_WV}, s{S_NT}')
        a.emit('s_and_b32 s8, s8, 3')
        a.emit(f's_add_u32 s9, s{S_WV}, s{S_MT}')
        a.emit('s_and_b32 s9, s9, 3')
        a.emit(f's_lshl_b32 s{S_XD}, s8, 12')
        a.emit(f's_lshl_b32 s{S_WD}, s9, 11')
        a.emit(f's_add_u32 s{S_WD}, s{S_WD}, 16384')
        a.emit(f's_lshl_b32 s11, s{S_MT}, 7')
        a.emit('v_and_b32 v10, 7, v1')
        if self.xblk: self.xoff_blk(self.lda2)
        else: self.xoff_rows(self.lda2)
        a.emit('v_lshrrev_b32 v3, 3, v1')
        a.emit('s_lshl_b32 s10, s9, 4')
        a.emit('v_add_u32 v3, s10, v3')
        a.emit(f'v_mul_u32_u24 v3, {self.ldw2}, v3')
        a.emit('v_lshrrev_b32 v2, 3, v1')
        a.emit('v_and_b32 v2, 2, v2')
        a.emit('v_xor_b32 v2, v2, v10')
        a.emit(f's_mul_i32 s10, s{S_NT}, {self.colbase}')
        if self.colbase & 127: a.emit('s_andn2_b32 s10, s10, 127')
        a.emit('v_add_u32 v3, s10, v3')
        a.emit(f'v_lshl_add_u32 v{self.VWD}, v2, 4, v3')
        a.emit('v_xor_b32 v2, 4, v2')
        a.emit(f'v_add_u32 v3, {8*self.ldw2}, v3')
        a.emit(f'v_lshl_add_u32 v{self.VWD+1}, v2, 4, v3')
        if self.half:
            a.emit('v_lshrrev_b32 v3, 2, v1')
            a.emit('s_lshl_b32 s10, s9, 4')
            a.emit('v_add_u32 v3, s10, v3')
            a.emit(f'v_mul_u32_u24 v3, {self.ldw2}, v3')
            a.emit('v_lshrrev_b32 v2, 4, v1')
            a.emit('v_and_b32 v2, 2, v2')
            a.emit('v_xor_b32 v2, v2, v1')
            a.emit('v_and_b32 v2, 3, v2')
            a.emit(f's_lshl_b32 s10, s{S_NT}, 6')
            a.emit(f's_add_u32 s10, s10, {self.half}')
            a.emit('v_add_u32 v3, s10, v3')
            a.emit(f'v_lshl_add_u32 v{self.VXH}, v2, 4, v3')
            a.emit(f's_lshl_b32 s{S_HD}, s{S_NT}, 7')
            a.emit(f's_add_u32 s{S_HD}, s{S_HD}, 3072')
        if self.halo is not None:
            a.emit(f's_and_b32 s10, s{S_WV}, 3')
            a.emit(f's_lshl_b32 s{S_HD}, s10, 9')
            a.emit(f's_add_u32 s{S_HD}, s{S_HD}, {self.halo}')
            a.emit('s_lshl_b32 s14, s10, 2')
            a.emit('s_add_u32 s14, s14, s11')
            a.emit('s_sub_u32 s14, s14, 16')
            a.emit('v_lshrrev_b32 v3, 3, v1')
            a.emit('v_add_u32 v3, s14, v3')
            a.emit('v_max_i32 v3, 0, v3')
            a.emit('v_mul_u32_u24 v3, s5, v3')
            a.emit('s_lshl_b32 s14, s10, 1')
            a.emit('v_lshrrev_b32 v2, 4, v1')
            a.emit('v_add_u32 v2, s14, v2')
            a.emit('v_and_b32 v2, 7, v2')
            a.emit('v_xor_b32 v2, v2, v10')
            a.emit(f'v_lshl_add_u32 v{self.VXH}, v2, 4, v3')
            a.emit('s_cmp_eq_u32 s10, 0')
            a.emit('s_cselect_b32 s14, 0xffffff00, -1')
            a.emit('s_mov_b32 s15, 0')
        a.emit(f's_mov_b32 s{S_SLOT}, 0')
        if self.rot is None:
            a.emit(f's_mov_b32 s{S_KX}, 0')
            a.emit(f's_mov_b32 s{S_KW}, 0')
        else:
            if not getattr(self, 'noxg', False): a.emit(f's_add_u32 s{S_XG}, s{S_MT}, s{S_NT}')
            a.emit(f's_mov_b32 s{S_KT}, {0 if EARLY and self.tag == "w2" else -1}')
            for x in self.knext(): a.emit(x)
    def xoff_rows(self, ld):
        a = self.a
        a.emit('v_lshrrev_b32 v3, 3, v1')
        a.emit(f's_lshr_b32 s10, s{S_XD}, 7')
        a.emit(f's_lshl_b32 s3, s{S_MT}, 7')
        a.emit('s_add_u32 s10, s10, s3')
        a.emit('v_add_u32 v3, s10, v3')
        xpitch(a, 5)
        a.emit('s_lshl_b32 s6, s5, 3')
        a.emit('v_mul_u32_u24 v3, s5, v3')
        a.emit('v_lshrrev_b32 v2, 4, v1')
        for j in range(4):
            d = self.VXD + j
            if j & 1:
                a.emit(f'v_add_u32 v{d}, 4, v2')
                a.emit(f'v_xor_b32 v{d}, v{d}, v10')
            else:
                a.emit(f'v_xor_b32 v{d}, v2, v10')
            a.emit(f'v_lshl_add_u32 v{d}, v{d}, 4, v3')
            if j < 3: a.emit('v_add_u32 v3, s6, v3')
    def xoff_blk(self, ld):
        a = self.a
        a.emit(f's_lshr_b32 s10, s{S_XD}, 11')
        a.emit(f's_lshl_b32 s3, s{S_MT}, 3')
        a.emit('s_add_u32 s10, s10, s3')
        a.emit(f's_mul_i32 s10, s10, {16*ld}')
        a.emit(f'v_lshl_add_u32 v{self.VXD}, v1, 4, s10')
        a.emit(f'v_add_u32 v{self.VXD+1}, {16*ld}, v{self.VXD}')
    def xdma(self, base, imm, sd, soff, blk):
        o = []
        for j in range(4):
            if blk:
                if not j & 1: o += [f's_add_u32 m0, s{base}, {imm + j*1024}', 's_nop 0']
                o.append(f'buffer_load_dwordx4 v{self.VXD+(j>>1)}, s[{sd}:{sd+3}], s{soff} offen offset:{(j&1)*1024} lds')
            else:
                o += [f's_add_u32 m0, s{base}, {imm + j*1024}', 's_nop 0', f'buffer_load_dwordx4 v{self.VXD+j}, s[{sd}:{sd+3}], s{soff} offen lds']
        return o
    def knext(self):
        if self.rot is None:
            return [f's_add_u32 s{S_KX}, s{S_KX}, {2048 if self.xblk else 128}', f's_add_u32 s{S_KW}, s{S_KW}, {64*self.ldw2}']
        lc = self.rot; C = 1 << lc; N = self.NSTEP
        o = [f's_add_u32 s{S_KT}, s{S_KT}, 1']
        D = int(ENV('ROTD_' + self.tag.upper(), ENV('ROTD', '2')))
        dl = {3: [3, -1, -1, -1], 2: [2, -1, -1, 0], 1: [1, -1, 0, 0]}[D]
        tbl = sum((((d * C) % N) << (8 * i)) for i, d in enumerate(dl))
        if lc: o += [f's_lshr_b32 s{S_KX}, s{S_KT}, {lc}', f's_sub_u32 s{S_KX}, s{S_KX}, s{S_XG}']
        else: o += [f's_sub_u32 s{S_KX}, s{S_KT}, s{S_XG}']
        o += [f's_lshl_b32 s{S_KX}, s{S_KX}, 3',
              f's_lshr_b32 s{S_KX}, {tbl:#x}, s{S_KX}',
              f's_and_b32 s{S_KX}, s{S_KX}, 255',
              f's_add_u32 s{S_KX}, s{S_KX}, s{S_KT}']
        if N & (N - 1) == 0: o += [f's_and_b32 s{S_KX}, s{S_KX}, {N - 1}']
        else: o += [f's_sub_u32 s{S_KW}, s{S_KX}, {N}', f's_cselect_b32 s{S_KX}, s{S_KX}, s{S_KW}']
        o += [f's_mul_i32 s{S_KW}, s{S_KX}, {64*self.ldw2}', f's_lshl_b32 s{S_KX}, s{S_KX}, {11 if self.xblk else 7}']
        return o
    def panels_of(self, t): return self.panels
    def issue_x(self, bx, bh, imm, kx):
        o = self.xdma(bx, imm, SX, kx, self.xblk)
        if self.halo is not None:
            o.append(f's_add_u32 m0, s{S_HD}, {bh}')
            o.append('s_mov_b64 exec, s[14:15]')
            o.append(f'buffer_load_dwordx4 v{self.VXH}, s[{SX}:{SX+3}], s{kx} offen lds')
            o.append('s_mov_b64 exec, -1')
        return o
    def issue_w(self, t, bw, imm):
        o = []
        for pn, goff in enumerate(self.panels_of(t)):
            for i in range(2):
                o.append(f's_add_u32 m0, s{bw}, {imm+pn*8192+i*1024}')
                o.append((goff if str(goff).startswith('s_') else f's_add_u32 s4, s{S_KW}, {goff}') if i == 0 else 's_nop 0')
                o.append(f'buffer_load_dwordx4 v{self.VWD+i}, s[{SW}:{SW+3}], s4 offen lds')
        if self.half:
            o += [f's_add_u32 m0, s{bw}, {imm+len(self.panels)*8192}', 's_nop 0',
                  f'buffer_load_dwordx4 v{self.VXH}, s[{SW}:{SW+3}], s{S_KW} offen lds']
        return o
    def issue(self, t):
        o = [f's_add_u32 s3, s{S_SLOT}, s{S_XD}']
        o += self.issue_x(3, f's{S_SLOT}', 0, S_KX)
        o.append(f's_add_u32 s3, s{S_SLOT}, s{S_WD}')
        o += self.issue_w(t, 3, 0)
        o += self.knext()
        o.append(f's_add_u32 s{S_SLOT}, s{S_SLOT}, {self.STAGE}')
        o.append(f's_cmp_eq_u32 s{S_SLOT}, {self.S*self.STAGE}')
        o.append(f's_cselect_b32 s{S_SLOT}, 0, s{S_SLOT}')
        return o
    def run(self, variant='', tail_issue=None, ntail_vm=0, final=None, post=(), dep=None, tail_late=0, start=None, extra=None):
        a = self.a; N = self.NSTEP; d = self.S - 1
        tag = self.tag + variant
        nx = 4 + (1 if self.halo is not None else 0)
        nw = lambda t: 2 * len(self.panels_of(t)) + (1 if self.half else 0)
        seq = []
        early = EARLY and self.tag == 'w2'
        pchk = EARLY - 3 - d - 1; piss = pchk - d + 1 - int(ENV('PEARLY', '0'))
        def em(o):
            for x in o:
                if 'nodma' in DBG and x.endswith(' lds'): continue
                a.emit(x)
        def after(t): return len(seq) - 1 - max(i for i, x in enumerate(seq) if x == t)
        def wait(n):
            assert n <= 63, n
            a.emit(f's_waitcnt vmcnt({n})')
        if dep is None:
            for t in range(2): em(self.issue(t)); seq += [t] * (nx + nw(t))
            if start: start()
            wait(after(0))
            a.emit('s_barrier')
            for t in range(2, d): em(self.issue(t)); seq += [t] * (nx + nw(t))
        else:
            prev = {'attn': 'w2', 'wo': 'attn', 'w1': 'wo', 'w2': 'w1'}[self.tag]
            assert 'attn' not in EBAR
            dep_pre(a, self.tag)
            if prev in EBAR: a.emit('s_barrier')
            xw = 1 if self.tag in ENV('XW', 'x').split(',') and not hasattr(self, 'P1') else 0
            for t in range(d + xw):
                a.emit(f's_mov_b32 s{88+t}, s{S_KX}')
                em(self.issue_w(t, S_WD, t * self.STAGE) + self.knext()); seq += [t] * nw(t)
            self.npre = len(seq)
            a.emit(f's_mov_b32 s{S_SLOT}, {0 if xw else d * self.STAGE}')
            dep()
            for t in range(d + xw):
                em(self.issue_x(S_XD, t * self.STAGE, t * self.STAGE, 88 + t)); seq += [t] * nx
            wait(after(0))
            if self.tag == 'w2': lstamp(a, 2)
            a.emit('s_barrier')
            if early: late_flag(a)
        ev = []
        for i in range(N):
            t = i + d
            if t in seq: t = N + 9
            if early and i == piss: seq += ['P']
            if t < N: seq += [t] * (nx + nw(t))
            ex = extra(i) if extra else []
            seq += ['E'] * sum(x.startswith('buffer_load') for x in ex)
            tl = tail_issue is not None and t == N - 1 + tail_late
            if tl: seq += ['T'] * ntail_vm
            ev.append(((nw(t) if t < N else -1, after(i + 1) if i + 1 < N else -1, tl, early and i == piss, early and i == pchk, tuple(ex)), t))
        i = 0; nl = 0
        while i < N:
            j = i
            while j + 1 < N and ev[j + 1][0] == ev[i][0]: j += 1
            n = j - i + 1
            (k, w, tl, pi, pc, ex), t = ev[i]
            if n >= 3:
                nl += 1
                a.emit(f's_mov_b32 s{S_CNT}, {n}')
                a.label(f'L_{tag}_ld{nl}')
            else: j = i
            if pi: a.emit(f'buffer_load_dword v13, v12, s[{SO}:{SO+3}], s86 offen sc1')
            if t < N:
                em(self.issue(t)); em(post)
            em(ex)
            if tl: tail_issue()
            if w >= 0: wait(w)
            elif final: final()
            if pc: late_check(a)
            a.emit('s_barrier')
            if n >= 3:
                a.emit(f's_sub_u32 s{S_CNT}, s{S_CNT}, 1')
                a.emit(f's_cmp_lg_u32 s{S_CNT}, 0')
                a.emit(f's_cbranch_scc1 L_{tag}_ld{nl}')
            i = j + 1

XD = ONE and ENV('SPLIT', '0') == '0' and ENV('XD', '1') == '1'
VW = MEGA and ENV('SPLIT', '0') == '0' and ENV('VW', '0') == '1'
NV1 = int(ENV('NV1', '16')); NV2 = int(ENV('NV2', '12')); NVO = int(ENV('NVO', '11'))
S_TB = 85
def rot_table(a, sd, smt, snt, tag):
    D = int(ENV('ROTD_' + tag.upper(), ENV('ROTD', '2')))
    dl = {3: [3, -1, -1, -1], 2: [2, -1, -1, 0], 1: [1, -1, 0, 0], 0: [0, 0, 0, 0]}[D]
    tbl = sum((d & 255) << (8 * i) for i, d in enumerate(dl))
    a.emit(f's_add_u32 s3, s{smt}, s{snt}')
    a.emit('s_lshl_b32 s3, s3, 3')
    a.emit(f's_lshl_b32 s{sd}, {tbl:#x}, s3')
    a.emit('s_sub_u32 s3, 0, s3')
    a.emit(f's_lshr_b32 s3, {tbl:#x}, s3')
    a.emit(f's_or_b32 s{sd}, s{sd}, s3')

def kpos(N, t, sd, tb=S_TB, halves=True):
    H, p, add = (28, t >> 1, 28 * (t & 1)) if N == 56 and halves else (N, t, 0)
    o = [f's_bfe_i32 s{sd}, s{tb}, {0x80000 + 8 * (p & 3):#x}', f's_add_i32 s{sd}, s{sd}, {p + add}']
    if p == 0: o += [f's_cmp_lt_i32 s{sd}, {add}', f's_cselect_b32 s{sd}, {H - 1 + add}, s{sd}']
    if p + 3 >= H: o += [f's_sub_u32 s3, s{sd}, {H}', f's_cmp_ge_i32 s{sd}, {H + add}', f's_cselect_b32 s{sd}, s3, s{sd}']
    return o

def vreg(tag, t):
    if tag == 'wo': return (128 + 8 * (t - 5), False) if 5 <= t < 5 + NVO else None
    if t & 1: return None
    p = t >> 1
    if p < NV1: return (128 + 8 * p, True)
    if p < NV1 + NV2: return (32 + 8 * (p - NV1), False)
    return None

def wvoff(a, vd, sqw, snt, ldw2):
    a.emit('v_lshrrev_b32 v3, 3, v1')
    a.emit(f's_lshl_b32 s10, s{sqw}, 4')
    a.emit('v_add_u32 v3, s10, v3')
    a.emit(f'v_mul_u32_u24 v3, {ldw2}, v3')
    a.emit('v_lshrrev_b32 v2, 3, v1')
    a.emit('v_and_b32 v2, 2, v2')
    a.emit('v_xor_b32 v2, v2, v10')
    a.emit(f's_lshl_b32 s10, s{snt}, 7')
    a.emit('v_add_u32 v3, s10, v3')
    a.emit(f'v_lshl_add_u32 v{vd}, v2, 4, v3')
    a.emit('v_xor_b32 v2, 4, v2')
    a.emit(f'v_add_u32 v3, {8*ldw2}, v3')
    a.emit(f'v_lshl_add_u32 v{vd+1}, v2, 4, v3')

def park(N, t, r, vo, sw):
    return kpos(N, t, 4) + ['s_lshl_b32 s4, s4, 17'] + [f'buffer_load_dwordx4 v[{r+4*i}:{r+4*i+3}], v{vo+i}, s[{sw}:{sw+3}], s4 offen' for i in range(2)]

class ULoader(Loader):
    def run(self, variant='', tail_issue=None, ntail_vm=0, final=None, post=(), dep=None):
        a = self.a; N = self.NSTEP; d = self.S - 1; tag = self.tag
        seq = []
        def em(o):
            for x in o:
                if 'nodma' in DBG and x.endswith(' lds'): continue
                a.emit(x)
        def after(t): return len(seq) - 1 - max(i for i, x in enumerate(seq) if x == t)
        def wait(n, lg=False):
            assert n <= 63, n
            a.emit(f's_waitcnt vmcnt({n})' + (' lgkmcnt(0)' if lg else ''))
        def iw(t):
            sl = (t % self.S) * self.STAGE; v = vreg(tag, t)
            if v:
                em([f'v_add_u32 v11, {sl}, v14'] + [f'ds_write_b128 v11, v[{v[0]+4*i}:{v[0]+4*i+3}] offset:{1024*i}' for i in range(2)])
            else:
                em([f's_lshl_b32 s{S_KW}, s{S_KX}, 17'] + [x for x in self.issue_w(t, S_WD, sl)])
                seq.extend([t] * 2)
        def ix(t, k):
            em(self.issue_x(S_XD, None, (t % self.S) * self.STAGE, k)); seq.extend([t] * 4)
        rot_table(a, S_TB, S_MT, S_NT, tag)
        a.emit(f'v_lshl_add_u32 v14, v1, 4, s{S_WD}')
        dep_pre(a, tag)
        for t in range(d):
            em(kpos(N, t, S_KX)); iw(t)
            a.emit(f's_lshl_b32 s{88+t}, s{S_KX}, 11')
        for t in range(d, N):
            v = vreg(tag, t)
            if v and not v[1]:
                em(park(N, t, v[0], self.VWD, SW)); seq.extend(['V'] * 2)
        self.npre = len(seq)
        dep()
        for t in range(d): ix(t, 88 + t)
        wait(after(0), True)
        if tag == 'w2': lstamp(a, 2)
        a.emit('s_barrier')
        for i in range(N):
            t = i + d
            if i % 4 == 0 and post and t < N:
                a.emit('s_waitcnt lgkmcnt(0)')
                em(post)
            if t < N:
                em(kpos(N, t, S_KX)); iw(t)
                a.emit(f's_lshl_b32 s{S_KX}, s{S_KX}, 11')
                ix(t, S_KX)
            if t == N - 1: tail_issue(); seq.extend(['T'] * ntail_vm)
            if i + 1 < N: wait(after(i + 1), not post or t == N)
            else: final()
            a.emit('s_barrier')

EBAR = ENV('EBAR', 'x').split(',')
S_FL = 87
def dep_pre(a, kind):
    if ONE and kind in ('wo', 'w1'):
        a.emit(f's_add_u32 s3, s{S_LAYER}, s{S_WV}')
        a.emit('s_cmp_lg_u32 s3, 4')
        a.emit(f's_cbranch_scc1 L_{kind}_chk')
        if kind == 'wo': a.emit(f's_load_dwordx2 s[{SC}:{SC+1}], s[0:1], 72')
        else: srd(a, SO, 'ws0', WS_FL, 32768)
        a.emit(f's_mov_b32 s{S_CNT}, 0x100000')
        if kind == 'wo':
            a.emit('s_waitcnt lgkmcnt(0)')
            a.emit(f's_and_b32 s{SC+1}, s{SC+1}, 0xffff')
            a.emit(f's_mov_b32 s{SC+2}, 256')
            a.emit(f's_mov_b32 s{SC+3}, 0x00020000')
            a.emit('v_lshlrev_b32 v2, 2, v1')
        else:
            a.emit('v_lshrrev_b32 v2, 2, v1')
            a.emit('v_and_b32 v3, 3, v1')
            a.emit('v_lshlrev_b32 v2, 8, v2')
            a.emit('v_lshl_add_u32 v2, v3, 4, v2')
        a.label(f'L_{kind}_chkl')
        if kind == 'wo': a.emit(f'buffer_load_dword v12, v2, s[{SC}:{SC+3}], 0 offen sc1')
        else: a.emit(f'buffer_load_dwordx4 v[12:15], v2, s[{SO}:{SO+3}], 0 offen sc1')
        a.emit(f's_sub_u32 s{S_CNT}, s{S_CNT}, 1')
        a.emit(f's_cbranch_scc1 L_{kind}_chk')
        a.emit('s_waitcnt vmcnt(0)')
        if kind == 'wo': a.emit('v_cmp_ne_u32 vcc, 0x01010101, v12')
        else:
            a.emit('v_and_b32 v12, v12, v13')
            a.emit('v_and_b32 v14, v14, v15')
            a.emit('v_and_b32 v12, v12, v14')
            a.emit('v_cmp_ne_u32 vcc, 1, v12')
        a.emit(f's_cbranch_vccnz L_{kind}_chkl')
        a.label(f'L_{kind}_chk')

def dep_wait(a, kind, halo=False, skip_first=False, first=None, preg=None):
    if skip_first and not ONE:
        a.emit(f's_cmp_eq_u32 s{S_TSI}, 1')
        a.emit(f's_cbranch_scc1 L_{kind}_dep')
    srd(a, SO, 'ws0', WS_FL, 32768)
    if ONE and kind == 'wo':
        a.emit(f's_cmp_lg_u32 s{S_LAYER}, 0')
        a.emit(f's_cbranch_scc1 L_{kind}_nofirst')
        first()
        a.label(f'L_{kind}_nofirst')
    a.emit(f's_lshl_b32 s3, s{S_TSI}, 12')
    a.emit(f's_lshl_b32 s4, s{S_MT}, 8')
    a.emit('s_add_u32 s3, s3, s4')
    a.emit('s_sub_u32 s3, s3, 4096')
    a.emit('v_and_b32 v2, 15, v1')
    a.emit('v_lshlrev_b32 v2, 2, v2')
    if halo:
        a.emit('s_min_u32 s4, s4, 256')
        a.emit('s_sub_u32 s3, s3, s4')
        a.emit('v_lshlrev_b32 v3, 4, v1')
        a.emit('v_and_b32 v3, s4, v3')
        a.emit('v_add_u32 v2, v2, v3')
    a.emit('v_mov_b32 v3, 1')
    a.emit(f's_mov_b32 s{S_CNT}, 0x100000')
    a.emit(f's_cmp_lg_u32 s{S_WV}, 4')
    a.emit('s_barrier')
    a.emit(f's_cbranch_scc1 L_{kind}_dep')
    if kind == 'w2': lstamp(a, 0)
    a.emit('s_mov_b64 exec, 1')
    a.emit(f'buffer_store_dword v3, off, s[{SO}:{SO+3}], s{S_FL} sc1')
    a.emit('s_mov_b64 exec, -1')
    a.label(f'L_{kind}_poll')
    a.emit(f'buffer_load_dword v3, v2, s[{SO}:{SO+3}], s3 offen sc1')
    a.emit(f's_sub_u32 s{S_CNT}, s{S_CNT}, 1')
    a.emit(f's_cbranch_scc1 L_{kind}_dep')
    a.emit('s_waitcnt vmcnt(0)')
    a.emit('v_cmp_ne_u32 vcc, 1, v3')
    a.emit(f's_cbranch_vccnz L_{kind}_poll')
    a.label(f'L_{kind}_dep')
    if kind == 'w2': lstamp(a, 1)
    if preg: preg()
    if preg and kind == 'w2': lstamp(a, 2)
    a.emit('s_barrier')

LGO = 163840 - 64
def dep_early(a):
    srd(a, SO, 'ws0', WS_FL, 32768)
    a.emit(f's_lshl_b32 s86, s{S_TSI}, 12')
    a.emit(f's_lshl_b32 s4, s{S_MT}, 8')
    a.emit('s_add_u32 s86, s86, s4')
    a.emit('s_sub_u32 s86, s86, 4096')
    a.emit('v_and_b32 v12, 15, v1')
    a.emit('v_lshlrev_b32 v12, 2, v12')
    a.emit('v_mov_b32 v3, 0')
    a.emit(f'v_mov_b32 v2, {LGO}')
    a.emit('ds_write_b32 v2, v3')
    a.emit('v_mov_b32 v13, 1')
    a.emit(f's_mov_b32 s{S_CNT}, 0x100000')
    a.emit(f's_cmp_lg_u32 s{S_WV}, 4')
    a.emit('s_waitcnt lgkmcnt(0)')
    a.emit('s_barrier')
    a.emit('s_cbranch_scc1 L_w2_go')
    lstamp(a, 0)
    a.emit('s_mov_b64 exec, 1')
    a.emit(f'buffer_store_dword v13, off, s[{SO}:{SO+3}], s{S_FL} sc1')
    a.emit('s_mov_b64 exec, -1')
    a.label('L_w2_poll')
    a.emit(f'buffer_load_dword v3, v12, s[{SO}:{SO+3}], s86 offen sc1')
    a.emit(f's_sub_u32 s{S_CNT}, s{S_CNT}, 1')
    a.emit('s_cbranch_scc1 L_w2_rel')
    a.emit('s_waitcnt vmcnt(0)')
    a.emit('v_cmp_eq_u32 vcc, 0, v3')
    a.emit('s_cbranch_vccnz L_w2_poll')
    a.label('L_w2_rel')
    a.emit('ds_write_b32 v2, v13')
    lstamp(a, 1)
    a.emit('s_branch L_w2_dep')
    a.label('L_w2_go')
    a.emit(f's_mov_b32 s{S_CNT}, 0x2000000')
    a.label('L_w2_gol')
    a.emit('ds_read_b32 v3, v2')
    a.emit(f's_sub_u32 s{S_CNT}, s{S_CNT}, 1')
    a.emit('s_cbranch_scc1 L_w2_dep')
    a.emit('s_waitcnt lgkmcnt(0)')
    a.emit('v_cmp_eq_u32 vcc, 0, v3')
    a.emit('s_cbranch_vccnz L_w2_gol')
    a.label('L_w2_dep')

def late_flag(a):
    a.emit(f's_cmp_lg_u32 s{S_WV}, 4')
    a.emit('s_cbranch_scc1 L_w2_nolate')
    a.emit('v_mov_b32 v3, 2')
    a.emit('s_mov_b64 exec, 1')
    a.emit(f'buffer_store_dword v3, off, s[{SO}:{SO+3}], s{S_FL} sc1')
    a.emit('s_mov_b64 exec, -1')
    a.label('L_w2_nolate')

def late_check(a):
    a.emit(f's_mov_b32 s{S_CNT}, 0x100000')
    a.label('L_w2_lchk')
    a.emit('v_cmp_ne_u32 vcc, 2, v13')
    a.emit('s_cbranch_vccz L_w2_lok')
    a.emit(f'buffer_load_dword v13, v12, s[{SO}:{SO+3}], s86 offen sc1')
    a.emit(f's_sub_u32 s{S_CNT}, s{S_CNT}, 1')
    a.emit('s_waitcnt vmcnt(0)')
    a.emit('s_cbranch_scc0 L_w2_lchk')
    a.label('L_w2_lok')
    if TS: a.emit(f's_mov_b32 s58, s{S_CNT}')
    lstamps_out(a, 'w2')

def gbar(a, kind):
    if not MEGA or (EARLY and kind == 'w2'): return
    if kind == 'attn':
        a.emit(f's_cmp_eq_u32 s{S_LAYER}, 0')
        a.emit('s_cbranch_scc1 L_attn_nog')
    a.emit('s_barrier')
    if kind == 'attn': a.label('L_attn_nog')

def next_phase(a, kind):
    nxt = {'attn': 'wo', 'wo': 'w1', 'w1': 'w2', 'w2': 'attn'}[kind]
    if kind == 'w2':
        a.emit(f's_mov_b32 s{S_LAYER}, 1')
        a.emit(f's_add_u32 s12, s22, {WS_X2}')
        a.emit('s_addc_u32 s13, s23, 0')
        a.emit(f's_add_u32 s34, s22, {LSTR}')
        a.emit('s_addc_u32 s35, s23, 0')
    a.emit(f's_add_u32 s{S_TSI}, s{S_TSI}, 1')
    a.emit(f's_branch L_{nxt}_body')

def last_check(a, kind):
    if kind == 'w2' or (kind == 'attn' and not ONE):
        a.emit(f's_cmp_eq_u32 s{S_LAYER}, {0 if kind == "attn" else 1}')
        a.emit(f's_cbranch_scc1 L_{kind}_end')

def compute_end(a, kind):
    if not MEGA:
        stamps_out(a, kind)
        a.emit('s_endpgm')
        return
    if not TS: last_check(a, kind)
    if kind in EBAR: a.emit('s_barrier')
    if not (EARLY and kind == 'w1'):
        a.emit('s_waitcnt vmcnt(0)')
        a.emit('s_barrier')
    if TS:
        stamps_out(a, kind)
        last_check(a, kind)
    stamp(a, 0, nowait=True)
    next_phase(a, kind)

def loader_end(a, kind, check=True):
    if MEGA:
        if kind == 'w2' and not EARLY: lstamps_out(a, 'w2')
        if check: last_check(a, kind)
        a.emit(f's_lshl_b32 s{S_FL}, s{S_TSI}, 12')
        a.emit(f's_lshl_b32 s4, s{S_MT}, 8')
        a.emit(f's_add_u32 s{S_FL}, s{S_FL}, s4')
        a.emit(f's_lshl_b32 s4, s{S_NT}, 2')
        a.emit(f's_add_u32 s{S_FL}, s{S_FL}, s4')
        next_phase(a, kind)

def pf_weights(a, sd, which, size, ldw2, R, sh, L, LMn, tilebytes, NI, vd, row0=0, qkv=False):
    if 'nopf' in DBG: return 0
    srd(a, sd, which, 0, size)
    a.emit(f's_and_b32 s3, s{S_WV}, 3')
    a.emit(f's_mul_i32 s3, s3, {NI * (64 >> sh)}')
    a.emit(f's_mul_i32 s4, s{S_CU}, {R}')
    a.emit('s_add_u32 s3, s3, s4')
    if row0: a.emit(f's_add_u32 s3, s3, {row0}')
    a.emit(f'v_lshrrev_b32 v2, {sh}, v1')
    a.emit('v_add_u32 v2, s3, v2')
    a.emit(f'v_mul_u32_u24 v2, {ldw2}, v2')
    a.emit(f'v_and_b32 v3, {(1 << sh) - 1}, v1')
    if L < (1 << sh): a.emit(f'v_min_u32 v3, {L-1}, v3')
    if qkv:
        a.emit('v_lshrrev_b32 v12, 2, v3')
        a.emit('v_lshl_add_u32 v2, v12, 11, v2')
        a.emit('v_and_b32 v3, 3, v3')
    a.emit('v_lshl_add_u32 v2, v3, 7, v2')
    a.emit('s_and_b32 s3, s2, 7')
    a.emit(f's_lshr_b32 s3, s3, {4 - LMn}')
    a.emit(f's_mul_i32 s3, s3, {(1 << (5 - LMn)) * tilebytes}')
    for i in range(NI):
        a.emit(f'buffer_load_dword v{vd+i}, v2, s[{sd}:{sd+3}], s3 offen')
        if i + 1 < NI: a.emit(f's_add_u32 s3, s3, {(64 >> sh) * ldw2}')
    return NI

_pfc = [0]
def pf_code(a, start, end, vd, forward=True):
    if 'nopfc' in DBG: return 0
    _pfc[0] += 1
    lab = f'L_pfc{_pfc[0]}'
    a.emit('s_getpc_b64 s[4:5]')
    a.label(lab)
    if forward:
        a.emit(f's_add_u32 s4, s4, {start}-{lab}')
        a.emit('s_addc_u32 s5, s5, 0')
    else:
        a.emit(f's_sub_u32 s4, s4, {lab}-{start}')
        a.emit('s_subb_u32 s5, s5, 0')
    a.emit(f's_and_b32 s3, s{S_WV}, 3')
    a.emit('s_lshl_b32 s3, s3, 13')
    a.emit('v_lshl_add_u32 v2, v1, 7, s3')
    a.emit(f'v_min_u32 v2, {end}-{start}-4, v2')
    a.emit(f'global_load_dword v{vd}, v2, s[4:5]')
    return 1

def wbase(a, vd, vt, g='v2'):
    a.emit(f'v_bfe_u32 v{vd}, v1, 2, 2')
    a.emit(f'v_lshl_add_u32 v{vd}, {g}, 3, v{vd}')
    a.emit(f'v_lshlrev_b32 v{vd}, 7, v{vd}')
    a.emit(f'v_and_b32 v{vt}, 3, v1')
    a.emit(f'v_lshl_add_u32 v{vd}, v{vt}, 3, v{vd}')
    a.emit(f'v_bfe_u32 v{vt}, v1, 3, 2')
    a.emit(f'v_lshl_add_u32 v{vd}, v{vt}, 5, v{vd}')


def code_touch(a, start, end, nb, sd=SX):
    if ENV('CT', '1') == '0': return
    _pfc[0] += 1
    lab = f'L_pfc{_pfc[0]}'
    a.emit(f's_cmp_lg_u32 s{S_LAYER}, 0')
    a.emit(f's_cbranch_scc1 {lab}_skip')
    a.emit('s_getpc_b64 s[4:5]')
    a.label(lab)
    a.emit(f's_lshl_b32 s3, s{S_CU}, 2')
    a.emit(f's_add_u32 s3, s3, s{S_WV}')
    a.emit(f's_mul_i32 s3, s3, {nb}')
    a.emit(f's_min_u32 s3, s3, {end}-{start}-{nb}')
    a.emit(f's_add_i32 s3, s3, {start}-{lab}')
    a.emit('s_ashr_i32 s6, s3, 31')
    a.emit('s_add_u32 s4, s4, s3')
    a.emit('s_addc_u32 s5, s5, s6')
    for i in range(nb // 64):
        a.emit(f's_load_dword s{sd+i}, s[4:5], {64*i}')
    a.label(f'{lab}_skip')

def loader_first(a, kind):
    if ENV('LF', '1') == '0': return
    L = a.lines
    ib = max(i for i, l in enumerate(L) if l.strip() == f's_cbranch_scc1 L_{kind}_loader')
    il = L.index(f'L_{kind}_loader:')
    ie = L.index(f'L_{kind}_end:') + 2
    assert L[ie - 1].strip() == 's_endpgm' and L[ib - 1].strip().startswith('s_cmp_ge_u32')
    L[ib - 1] = L[ib - 1].replace('s_cmp_ge_u32', 's_cmp_lt_u32')
    L[ib] = f'  s_cbranch_scc1 L_{kind}_compute'
    a.lines = L[:ib + 1] + L[il:ie] + [f'L_{kind}_compute:'] + L[ib + 1:il] + L[ie:]

def clear_flags(a, part):
    if not ONE: return
    if part == 0: a.emit(f's_load_dwordx2 s[{SC}:{SC+1}], s[0:1], 72')
    a.emit(f's_or_b32 s3, s{S_LAYER}, s{S_WV}')
    a.emit(f's_cbranch_scc1 L_clr_skip{part}')
    if part == 0:
        srd(a, SP, 'ws0', WS_FL, 262144)
        a.emit('s_lshl_b32 s3, s2, 10')
        a.emit('v_lshlrev_b32 v2, 4, v1')
        a.emit(f'buffer_store_dwordx4 v[128:131], v2, s[{SP}:{SP+3}], s3 offen sc1')
    else:
        a.emit('v_mov_b32 v3, 1')
        a.emit(f's_and_b32 s{SC+1}, s{SC+1}, 0xffff')
        a.emit(f's_mov_b32 s{SC+2}, 256')
        a.emit(f's_mov_b32 s{SC+3}, 0x00020000')
        a.emit('s_mov_b64 exec, 1')
        a.emit('s_waitcnt vmcnt(0)')
        a.emit(f'buffer_store_byte v3, off, s[{SC}:{SC+3}], s2 sc1')
        a.emit('s_mov_b64 exec, -1')
    a.label(f'L_clr_skip{part}')
```

```python
from common import *

def gen_gemm64x(a, kind, tsidx, side):
    K = 1024 if kind == 'wo' else 3584
    lda2 = K * 2; ldw2 = 2048
    LM = int(ENV('LM_' + kind.upper(), '2'))
    N = K // 64; NI = N // 4
    G0, GW = (131072, 28672) if kind == 'wo' else (0, 0)
    def slot(t):
        g = G0 + (t >> 2) * 32768
        if g >= 163840: g = GW + (g - 163840) % (163840 - GW)
        return g + (t & 3) * 8192
    NPRE = int(ENV('NPREO', '16')) if kind == 'wo' else int(ENV('NPRE', '18'))
    LRES = 0 if kind == 'wo' else 131072
    PSTEP = 64 if kind == 'w2' else 1024
    body = f'L_{kind}_body'; end = f'L_{kind}_end'
    VXO, VWB, VWA, VO = 4, 6, 26, 12
    XR = 32; FW = [96, 128]; ACC = 160; RES = 96; BIA = 192; SD = 88
    acc = lambda jn, jm: ACC + (jn * 2 + jm) * 4
    fx = lambda r, ks, jm: XR + 16 * r + (ks * 2 + jm) * 4
    fw = lambda s, ks, jn: FW[s] + (ks * 4 + jn) * 4
    a.label(f'L_{kind}_c0')
    a.label(body)
    tile_map(a, LM, end)
    a.emit(f's_cmp_ge_u32 s{S_WV}, 4')
    a.emit(f's_cbranch_scc1 L_{kind}_loader')
    a.emit('v_and_b32 v3, 15, v1')
    a.emit('v_lshrrev_b32 v2, 4, v1')
    a.emit(f's_lshl_b32 s8, s{S_MT}, 7')
    a.emit(f's_lshl_b32 s9, s{S_WV}, 5')
    a.emit('s_add_u32 s8, s8, s9')
    a.emit(f's_mul_i32 s9, s8, {lda2}')
    a.emit(f'v_lshl_add_u32 v{VXO}, v1, 4, s9')
    a.emit(f'v_add_u32 v{VXO+1}, {16*lda2}, v{VXO}')
    a.emit('v_add_u32 v13, s8, v3')
    a.emit(f's_lshl_b32 s10, s{S_NT}, 7')
    a.emit('v_lshl_add_u32 v14, v2, 3, s10')
    a.emit('v_and_b32 v16, 1, v2')
    a.emit('v_lshrrev_b32 v17, 1, v2')
    if kind == 'w2':
        a.emit('v_lshlrev_b32 v16, 5, v16')
        a.emit('v_lshl_add_u32 v16, v17, 4, v16')
        a.emit('v_add_u32 v16, s10, v16')
        xpitch(a, 7, True)
        a.emit(f'v_mad_u32_u24 v{VO}, v13, s7, v16')
    else:
        a.emit('v_lshl_add_u32 v16, v16, 1, v17')
        a.emit('v_lshlrev_b32 v16, 8, v16')
        a.emit('v_lshl_add_u32 v16, v3, 4, v16')
        a.emit(f's_add_u32 s9, s8, s{S_NT}')
        a.emit('s_lshl_b32 s9, s9, 11')
        a.emit(f'v_add_u32 v{VO}, s9, v16')
    a.emit('v_lshl_add_u32 v18, v17, 4, v13')
    a.emit('v_lshlrev_b32 v18, 3, v18')
    a.emit('v_and_b32 v16, 1, v2')
    a.emit('v_lshl_add_u32 v18, v16, 2, v18')
    a.emit(f's_lshl_b32 s10, s{S_NT}, 14')
    a.emit('v_add_u32 v18, s10, v18')
    wbase(a, VWB, 17)
    for i in range(1, 4): a.emit(f'v_xor_b32 v{VWB+i}, {32*i}, v{VWB}')
    a.emit('v_lshrrev_b32 v15, 1, v2')
    if kind == 'wo':
        a.emit('v_lshrrev_b32 v17, 1, v3')
        a.emit('v_xor_b32 v15, v15, v17')
        a.emit('v_lshlrev_b32 v15, 4, v15')
        a.emit('v_lshl_add_u32 v15, v3, 7, v15')
    else:
        a.emit('v_lshlrev_b32 v15, 8, v15')
        a.emit('v_lshl_add_u32 v15, v3, 4, v15')
    a.emit('v_lshl_add_u32 v15, v16, 3, v15')
    a.emit(f's_lshl_b32 s8, s{S_WV}, 12')
    if LRES: a.emit(f's_add_u32 s8, s8, {LRES}')
    a.emit('v_add_u32 v15, s8, v15')
    a.emit('s_mov_b32 s11, 0xffff0000')
    a.emit(f's_mov_b32 s{S_SLOT}, {G0}')
    SK = SC
    rot_table(a, 8, S_MT, S_NT, kind)
    for r in range(4):
        for x in kpos(N, r, SK + r, 8, False): a.emit(x)
        a.emit(f's_lshl_b32 s{SK+r}, s{SK+r}, 11')
    a.emit(f's_mov_b32 s{S_KT}, 0')
    if kind == 'wo':
        for i in range(32): a.emit(f'v_mov_b32 v{ACC+i}, 0')
        srd(a, SX, 'ws', WS_O, 4 * MB)
        srd(a, SO, 'ws', WS_X1, 4 * MB)
    else:
        srd(a, SB, 'b2', 0, 2048)
        for jn in range(4):
            a.emit(f'buffer_load_dwordx2 v[{BIA+2*jn}:{BIA+2*jn+1}], v14, s[{SB}:{SB+3}], 0 offen offset:{jn*32}')
        srd(a, SX, 'ws', WS_H, 2048 * 7168)
        srd(a, SO, 'out', 0, 4 * MB)
        srd(a, SR, 'ws0', WS_X2, 4 * MB)
        a.emit(f's_cmp_eq_u32 s{S_LAYER}, 0')
        a.emit(f's_cselect_b64 s[{SO}:{SO+1}], s[{SR}:{SR+1}], s[{SO}:{SO+1}]')
        a.emit(f's_lshl_b32 s{SO+2}, s7, 11')
    srd(a, ST, 'ws', WS_ST if kind == 'wo' else WS_ST2, 16 * 16384)
    if kind == 'wo': code_touch(a, 'L_w1_c0', 'L_w1_c1', 128, SW)
    def addr():
        o = [f'v_add_u32_e64 v{VWA+i}, s{S_SLOT}, v{VWB+i}' for i in range(4)]
        o += [f's_add_u32 s{S_SLOT}, s{S_SLOT}, 32768', f's_cmp_eq_u32 s{S_SLOT}, 163840', f's_cselect_b32 s{S_SLOT}, {GW}, s{S_SLOT}']
        return o
    def xk(r):
        o = [f's_add_u32 s{S_KX}, s{S_KT}, s{SK+r}']
        if N == 16: o += [f's_and_b32 s{S_KX}, s{S_KX}, 0x7fff']
        else: o += [f's_sub_u32 s{S_KW}, s{S_KX}, {N*2048}', f's_cselect_b32 s{S_KX}, s{S_KX}, s{S_KW}']
        return ['\n  '.join(o)]
    def xl(r, k=S_KX):
        if 'nox' in DBG: return []
        return [f'buffer_load_dwordx4 v[{fx(r,ks,jm)}:{fx(r,ks,jm)+3}], v{VXO+jm}, s[{SX}:{SX+3}], s{k} offen offset:{ks*1024}' for jm in range(2) for ks in range(2)]
    def reads(r):
        o = []
        if 'noread' in DBG: return o
        for ks in range(2):
            for jn in range(4):
                for h in range(2):
                    d = fw(r & 1, ks, jn) + 2 * h
                    o.append(f'ds_read_b64_tr_b16 v[{d}:{d+1}], v{VWA+jn} offset:{r*8192+ks*4096+h*512}')
        return o
    def mf(r):
        o = []
        if 'nomfma' in DBG: return ['s_nop 0']
        for ks in range(2):
            for jn in range(4):
                for jm in range(2):
                    c = acc(jn, jm)
                    o.append(f'v_mfma_f32_16x16x32_bf16 v[{c}:{c+3}], v[{fw(r&1,ks,jn)}:{fw(r&1,ks,jn)+3}], v[{fx(r,ks,jm)}:{fx(r,ks,jm)+3}], v[{c}:{c+3}]')
        return o
    for x in addr(): a.emit(x)
    if kind == 'w2':
        a.emit('s_waitcnt vmcnt(0)')
        for jn in range(4):
            for jm in range(2):
                c = acc(jn, jm)
                for h in range(2):
                    a.emit(f'v_lshlrev_b32 v{c+2*h}, 16, v{BIA+2*jn+h}')
                    a.emit(f'v_and_b32 v{c+2*h+1}, s11, v{BIA+2*jn+h}')
    a.emit(f's_mov_b32 s{S_CNT}, {NI}')
    a.emit('s_waitcnt lgkmcnt(0)')
    a.emit('s_barrier')
    for r in range(3):
        for x in xl(r, SK + r): a.emit(x)
    for x in reads(0): a.emit(x)
    if TS:
        a.emit('s_waitcnt vmcnt(8)')
        stamp(a, 1)
    XP = int(ENV('XPOS', '8'))
    a('.p2align 3')
    a.label(f'L_{kind}_loop')
    for r in range(4):
        a.emit('s_waitcnt vmcnt(8) lgkmcnt(0)')
        if r == 3: a.emit('s_barrier')
        sd = reads((r + 1) & 3)
        if r == 3: sd = addr() + sd
        xs = xk((r + 3) & 3) + xl((r + 3) & 3)
        if r == 0:
            xs += [f's_add_u32 s{S_KT}, s{S_KT}, 8192', f's_sub_u32 s{S_CNT}, s{S_CNT}, 1', f's_cmp_eq_u32 s{S_CNT}, 0\n  s_cselect_b32 s{SX+2}, 0, s{SX+2}']
        if r == 3: xs += [f's_cmp_lg_u32 s{S_CNT}, 0']
        m = mf(r)
        interleave(a, m[:XP], sd, lead=1, per=(len(sd) + XP - 1) // XP)
        interleave(a, m[XP:], xs, lead=1, per=1)
    a.emit(f's_cbranch_scc1 L_{kind}_loop')
    stamp(a, 2)
    a.emit('s_waitcnt lgkmcnt(0)')
    if kind == 'wo':
        for jn in range(1, 4): a.emit(f'v_xor_b32 v{VWA+jn}, {32*jn}, v15')
    for jm in range(2):
        for jn in range(4):
            r = RES + (jn * 2 + jm) * 2
            if kind == 'wo': a.emit(f'ds_read_b64 v[{r}:{r+1}], v{VWA+jn if jn else 15} offset:{jm*2048}')
            else: a.emit(f'ds_read_b64 v[{r}:{r+1}], v15 offset:{jm*2048+jn*512}')
    for i in range(4): a.emit(f'v_mov_b32 v{20+i}, 0')
    a.emit(f's_mov_b32 s3, {16*2048}' if kind == 'wo' else 's_lshl_b32 s3, s7, 4')
    a.emit('s_mov_b32 s10, 0x3f803f80')
    D = 208; U = 192
    for jm in range(2):
        for p in range(2):
            d = D + (jm * 2 + p) * 4
            for q in range(2):
                c = acc(2 * p + q, jm); r = RES + ((2 * p + q) * 2 + jm) * 2
                a.emit(f's_waitcnt lgkmcnt({7 - (jm * 4 + 2 * p + q)})')
                for h in range(2):
                    a.emit(f'v_lshlrev_b32 v{U+2*h}, 16, v{r+h}')
                    a.emit(f'v_and_b32 v{U+1+2*h}, s11, v{r+h}')
                for h in range(2):
                    a.emit(f'v_pk_add_f32 v[{c+2*h}:{c+2*h+1}], v[{c+2*h}:{c+2*h+1}], v[{U+2*h}:{U+1+2*h}]')
                a.emit(f'v_cvt_pk_bf16_f32 v{d+2*q}, v{c}, v{c+1}')
                a.emit(f'v_cvt_pk_bf16_f32 v{d+2*q+1}, v{c+2}, v{c+3}')
            a.emit('s_nop 1')
            a.emit(f'v_permlane16_swap_b32 v{d}, v{d+2}')
            a.emit(f'v_permlane16_swap_b32 v{d+1}, v{d+3}')
            a.emit(f'buffer_store_dwordx4 v[{d}:{d+3}], v{VO}, s[{SO}:{SO+3}], {"s3" if jm else "0"} offen offset:{p*PSTEP}{stf(kind)}')
    for jm in range(2):
        for i in range(8):
            d = D + jm * 8 + i
            a.emit(f'v_dot2_f32_bf16 v{20+jm}, v{d}, s10, v{20+jm}')
            a.emit(f'v_dot2_f32_bf16 v{22+jm}, v{d}, v{d}, v{22+jm}')
    a.emit('s_nop 2')
    a.emit('v_permlane32_swap_b32 v20, v21')
    a.emit('v_permlane32_swap_b32 v22, v23')
    a.emit('v_add_f32 v20, v20, v21')
    a.emit('v_add_f32 v22, v22, v23')
    a.emit('s_nop 1')
    a.emit('v_permlane16_swap_b32 v20, v22')
    a.emit('v_add_f32 v20, v20, v22')
    a.emit(f'buffer_store_dword v20, v18, s[{ST}:{ST+3}], 0 offen{stf(kind)}')
    compute_end(a, kind)
    a.label(f'L_{kind}_loader')
    L = Loader(a, kind, K, lda2, ldw2, [0], 128, 2, 8192, xblk=True)
    a.emit(f's_add_u32 s9, s{S_WV}, s{S_MT}')
    a.emit('s_and_b32 s9, s9, 3')
    a.emit(f's_lshl_b32 s{S_XD}, s9, 12')
    a.emit(f's_lshl_b32 s{S_WD}, s9, 11')
    a.emit('v_and_b32 v10, 7, v1')
    wvoff(a, L.VWD, 9, S_NT, ldw2)
    if kind == 'wo': srd(a, SW, 'wo', 0, 2 * MB)
    else: srd(a, SW, 'w2', 0, 3584 * 2048)
    rot_table(a, S_TB, S_MT, S_NT, kind)
    a.emit(f'v_lshl_add_u32 v14, v1, 4, s{S_WD}')
    seq = []
    def em(o):
        for x in o:
            if 'nodma' in DBG and x.endswith(' lds'): continue
            a.emit(x)
    def after(t): return len(seq) - 1 - max(i for i, x in enumerate(seq) if x == t)
    NPK = int(ENV('NPK', '0')) if kind == 'w2' else 0
    rest = list(range(NPRE, N))
    pk = {rest[(2 * j + 1) * len(rest) // (2 * NPK)]: 32 + 8 * j for j in range(NPK)}
    THR = int(ENV('THR' + kind[1].upper(), '63'))
    def iw(t):
        if t in pk:
            em([f'v_add_u32 v11, {slot(t)}, v14'] + [f'ds_write_b128 v11, v[{pk[t]+4*i}:{pk[t]+4*i+3}] offset:{1024*i}' for i in range(2)])
        else:
            em(kpos(N, t, S_KW, S_TB, False) + [f's_lshl_b32 s{S_KW}, s{S_KW}, 17'] + L.issue_w(t, S_WD, slot(t)))
            seq.extend([t] * 2)
    def thr(n=THR):
        if n < 63: a.emit(f's_waitcnt vmcnt({n})')
    dep_pre(a, kind)
    import sides
    post = sides.stouch_post(a, kind)
    first = lambda: sides.qkv(a, 0, 'finish', min(len(seq), THR + 2))
    for t in range(NPRE): iw(t); thr()
    for t in sorted(pk):
        em(kpos(N, t, 4, S_TB, False) + ['s_lshl_b32 s4, s4, 17'] + [f'buffer_load_dwordx4 v[{pk[t]+4*i}:{pk[t]+4*i+3}], v{L.VWD+i}, s[{SW}:{SW+3}], s4 offen' for i in range(2)])
        seq.extend([t] * 2); thr(min(THR, 56))
    dep_wait(a, kind, skip_first=kind == 'wo', first=first, preg=lambda: a.emit(f's_waitcnt vmcnt({min(after(3), 63)})'))
    def resid():
        if kind == 'wo':
            srd_xs(a, SR)
            L.xoff_rows(2048)
        else:
            srd(a, SR, 'ws', WS_X1, 4 * MB)
            L.xoff_blk(2048)
        a.emit(f's_lshl_b32 s4, s{S_NT}, {7 if kind == "wo" else 11}')
        em(L.xdma(S_XD, LRES, SR, 4, kind == 'w2')); seq.extend(['R'] * 4)
    nxt = NPRE; LT = int(ENV('LTHR', '63'))
    for j in range(NI):
        want = NPRE + -(-(j + 1) * len(rest) // (NI - 2))
        while nxt < min(N, want, 4 * j + 20):
            em(post); iw(nxt); nxt += 1; thr(LT)
        if j == (2 if kind == 'wo' else 11): resid()
        need = [t for t in range(4 * j + 4, min(N, 4 * j + 8))]
        assert all(t < nxt for t in need)
        a.emit(f's_waitcnt vmcnt({min(63, min(after(t) for t in need)) if need else 0})' + (' lgkmcnt(0)' if NPK else ''))
        a.emit('s_barrier')
    assert nxt == N
    loader_end(a, kind)
    a.label(end)
    a.emit('s_endpgm')
    loader_first(a, kind)
    a.label(f'L_{kind}_c1')
    return 163840
```

```python
from common import *

def big_loop(a, tag, N, S, STAGE, naddr, VB, VA, reads, mf, variants=None, select=None, post=None):
    def addr():
        o = [f'v_add_u32_e64 v{VA+i}, s{S_SLOT}, v{VB+i}' for i in range(naddr)]
        o += [f's_add_u32 s{S_SLOT}, s{S_SLOT}, {STAGE}', f's_cmp_eq_u32 s{S_SLOT}, {S*STAGE}', f's_cselect_b32 s{S_SLOT}, 0, s{S_SLOT}']
        return o
    a.emit(f's_mov_b32 s{S_SLOT}, 0')
    for x in addr(): a.emit(x)
    a.emit(f's_mov_b32 s{S_CNT}, {N}')
    gbar(a, tag)
    a.emit('s_barrier')
    stamp(a, 1)
    for x in reads(0, 0): a.emit(x)
    a.emit('s_waitcnt lgkmcnt(0)')
    def loop(nm, m):
        a('.p2align 3')
        a.label(f'L_{tag}_loop{nm}')
        ad = addr()
        ad[-1] += f'\n  s_sub_u32 s{S_CNT}, s{S_CNT}, 1'
        interleave(a, m(0), reads(1, 1) + ad, lead=1, per=1)
        a.emit('s_waitcnt lgkmcnt(0)')
        a.emit('s_barrier')
        interleave(a, m(1), reads(0, 0) + [f's_cmp_lg_u32 s{S_CNT}, 0\n  s_nop 0'], lead=1, per=1)
        a.emit('s_waitcnt lgkmcnt(0)')
        a.emit(f's_cbranch_scc1 L_{tag}_loop{nm}')
    if variants:
        select()
        vs = list(variants.items())
        for i, (nm, m) in enumerate(vs):
            loop(nm, m)
            if i + 1 < len(vs): a.emit(f's_branch L_{tag}_post')
        a.label(f'L_{tag}_post')
        post()
        a.emit(f's_branch L_{tag}_exit')
    loop('', mf)
    a.label(f'L_{tag}_exit')
    stamp(a, 2)

def stats_loads(a, vd, halo):
    a.emit(f's_and_b32 s3, s{S_WV}, 3')
    a.emit(f's_lshl_b32 s4, s{S_MT}, 7')
    a.emit('s_lshl_b32 s5, s3, 6')
    a.emit('s_add_u32 s5, s5, s4')
    a.emit('v_add_u32 v2, s5, v1')
    a.emit('s_sub_u32 s4, s4, 16')
    a.emit('v_and_b32 v3, 15, v1')
    a.emit('v_add_u32 v3, s4, v3')
    a.emit('v_max_i32 v3, 0, v3')
    a.emit('s_cmp_ge_u32 s3, 2')
    a.emit('s_cselect_b64 vcc, -1, 0')
    a.emit('v_cndmask_b32 v2, v2, v3, vcc')
    a.emit('v_lshlrev_b32 v2, 3, v2')
    a.emit('s_mov_b32 s3, 0')
    for j in range(16):
        a.emit(f'buffer_load_dwordx2 v[{vd+2*j}:{vd+2*j+1}], v2, s[{ST}:{ST+3}], s3 offen')
        if j < 15: a.emit('s_add_u32 s3, s3, 16384')
    return 16

def stats_finish(a, vs):
    a.emit(f'v_mul_f32 v{vs}, 0x3a800000, v{vs}')
    a.emit(f'v_mul_f32 v{vs+1}, 0x3a800000, v{vs+1}')
    a.emit(f'v_fma_f32 v{vs+1}, -v{vs}, v{vs}, v{vs+1}')
    a.emit(f'v_max_f32 v{vs+1}, 0, v{vs+1}')
    a.emit(f'v_add_f32 v{vs+1}, 0x3727c5ac, v{vs+1}')
    a.emit(f'v_rsq_f32 v{vs+1}, v{vs+1}')
    a.emit('s_nop 0')

def stats_reduce_store(a, vd, LST):
    for j in range(1, 8):
        a.emit(f'v_add_f32 v{vd}, v{vd}, v{vd+2*j}')
        a.emit(f'v_add_f32 v{vd+1}, v{vd+1}, v{vd+2*j+1}')
        a.emit(f'v_add_f32 v{vd+16}, v{vd+16}, v{vd+16+2*j}')
        a.emit(f'v_add_f32 v{vd+17}, v{vd+17}, v{vd+17+2*j}')
    a.emit(f'v_add_f32 v{vd}, v{vd}, v{vd+16}')
    a.emit(f'v_add_f32 v{vd+1}, v{vd+1}, v{vd+17}')
    stats_finish(a, vd)
    a.emit(f's_and_b32 s3, s{S_WV}, 3')
    a.emit('s_lshl_b32 s5, s3, 6')
    a.emit('s_add_u32 s5, s5, 16')
    a.emit('v_add_u32 v2, s5, v1')
    a.emit('v_and_b32 v3, 15, v1')
    a.emit('s_cmp_ge_u32 s3, 2')
    a.emit('s_cselect_b64 vcc, -1, 0')
    a.emit('v_cndmask_b32 v2, v2, v3, vcc')
    a.emit('v_lshlrev_b32 v2, 2, v2')
    a.emit(f'v_add_u32 v2, {LST}, v2')
    a.emit(f'ds_write2_b32 v2, v{vd}, v{vd+1} offset0:0 offset1:160')

def gen_w1(a, tsidx, side, cs=(16, 16384, 0)):
    kind = 'w1'
    K = 1024; lda2 = 2048; ldw2 = 7168; ldo2 = 7168
    S = 3; LM = int(ENV('LM_W1', '3'))
    STAGE = 16384 + 4 * 8192
    LST = S * STAGE
    LCS = LST + 1280
    N = 16
    body = f'L_{kind}_body'; end = f'L_{kind}_end'
    VB, VA, VO = 4, 20, 12
    F = [32, 80]; ACC = 128
    acc = lambda jn, jm: ACC + (jn * 4 + jm) * 4
    fx = lambda s, jm: F[s] + jm * 4
    fw = lambda s, jn: F[s] + 16 + jn * 4
    a.label(f'L_{kind}_c0')
    if not MEGA: stub(a, f'{kind}l0_kernel', body, 0, tsidx, True)
    a.label(body)
    tile_map(a, LM, end)
    a.emit(f's_cmp_ge_u32 s{S_WV}, 4')
    a.emit(f's_cbranch_scc1 L_{kind}_loader')
    a.emit(f's_and_b32 s{S_WM}, s{S_WV}, 1')
    a.emit(f's_lshr_b32 s{S_WN}, s{S_WV}, 1')
    a.emit('v_and_b32 v3, 15, v1')
    a.emit('v_lshrrev_b32 v2, 4, v1')
    a.emit(f's_lshl_b32 s8, s{S_WM}, 13')
    a.emit(f'v_lshl_add_u32 v{VB}, v1, 4, s8')
    wbase(a, 13, 17)
    a.emit(f's_lshl_b32 s9, s{S_WN}, 6')
    a.emit('v_xor_b32 v13, s9, v13')
    a.emit(f'v_add_u32 v{VB+1}, 16384, v13')
    a.emit(f'v_xor_b32 v{VB+2}, 32, v{VB+1}')
    a.emit('v_and_b32 v16, 1, v2')
    a.emit('v_lshrrev_b32 v17, 1, v2')
    a.emit('v_bfe_u32 v13, v1, 2, 2')
    a.emit('v_lshl_add_u32 v13, v16, 3, v13')
    a.emit('v_lshl_add_u32 v13, v17, 5, v13')
    a.emit(f'v_xor_b32 v14, s{S_WN}, v16')
    a.emit('v_lshl_add_u32 v13, v13, 1, v14')
    a.emit('v_and_b32 v14, 3, v1')
    a.emit('v_lshl_add_u32 v13, v13, 2, v14')
    a.emit('v_lshlrev_b32 v13, 3, v13')
    a.emit(f'v_add_u32 v{VB+3}, {16384 + 3 * 8192}, v13')
    a.emit(f's_lshl_b32 s8, s{S_MT}, 7')
    a.emit(f's_lshl_b32 s9, s{S_WM}, 6')
    a.emit('s_add_u32 s8, s8, s9')
    a.emit(f's_mul_i32 s8, s8, {ldo2}')
    a.emit('v_lshlrev_b32 v14, 8, v17')
    a.emit('v_lshl_add_u32 v14, v3, 4, v14')
    a.emit('v_add_u32 v14, s8, v14')
    a.emit(f's_lshl_b32 s10, s{S_NT}, 11')
    a.emit(f's_lshl_b32 s9, s{S_WN}, 10')
    a.emit('s_add_u32 s9, s9, s10')
    a.emit(f'v_lshl_add_u32 v{VO}, v16, 9, v14')
    a.emit(f'v_add_u32 v{VO}, s9, v{VO}')
    a.emit(f'v_mul_u32_u24 v16, {16*ldo2}, v16')
    a.emit('s_lshr_b32 s9, s9, 1')
    a.emit(f'v_add3_u32 v{VO+1}, v16, v14, s9')
    a.emit(f's_lshl_b32 s9, s{S_WM}, 8')
    a.emit(f's_add_u32 s9, s9, {LST + 64}')
    a.emit('v_lshl_add_u32 v14, v3, 2, s9')
    a.emit(f's_lshl_b32 s9, s{S_WN}, 7')
    a.emit(f's_add_u32 s9, s9, {LCS}')
    a.emit('v_lshl_add_u32 v15, v2, 4, s9')
    a.emit(f's_lshl_b32 s9, s{S_WN}, 6')
    a.emit(f's_add_u32 s9, s9, {LCS}')
    a.emit('v_lshl_add_u32 v16, v2, 4, s9')
    for i in range(112): a.emit(f'v_mov_b32 v{ACC+i}, 0')
    a.emit('s_waitcnt lgkmcnt(0)')
    srd(a, SO, 'ws', WS_H, 2048 * 7168)
    code_touch(a, 'L_w2_c0', 'L_w2_c1', 128)
    def reads(s, ks):
        o = []
        if 'noread' in DBG: return o
        for jm in range(4):
            o.append(f'ds_read_b128 v[{fx(s,jm)}:{fx(s,jm)+3}], v{VA} offset:{jm*2048+ks*1024}')
        for jn in range(7):
            for h in range(2):
                r = fw(s, jn) + 2 * h
                o.append(f'ds_read_b64_tr_b16 v[{r}:{r+1}], v{VA+1+(jn&1 if jn < 6 else 2)} offset:{((jn>>1)*8192+h*512 if jn < 6 else h*256)+ks*4096}')
        return o
    def mf(s):
        o = []
        if 'nomfma' in DBG: return ['s_nop 0']
        for jn in range(7):
            for jm in range(4):
                c = acc(jn, jm)
                o.append(f'v_mfma_f32_16x16x32_bf16 v[{c}:{c+3}], v[{fw(s,jn)}:{fw(s,jn)+3}], v[{fx(s,jm)}:{fx(s,jm)+3}], v[{c}:{c+3}]')
        return o
    big_loop(a, kind, N, S, STAGE, 4, VB, VA, reads, mf)
    CS = 32; BI = 60; STT = 88; CK = 96; T = 100; D = 108
    for jm in range(4):
        a.emit(f'ds_read2_b32 v[{STT+2*jm}:{STT+2*jm+1}], v14 offset0:{16*jm} offset1:{160+16*jm}')
    for jn in range(7):
        a.emit(f'ds_read_b128 v[{CS+4*jn}:{CS+4*jn+3}], v{15 if jn < 6 else 16} offset:{(jn>>1)*256+(jn&1)*64}')
        a.emit(f'ds_read_b128 v[{BI+4*jn}:{BI+4*jn+3}], v{15 if jn < 6 else 16} offset:{1024+(jn>>1)*256+(jn&1)*64}')
    c0 = -2.0 * 0.7978845608028654 * 1.4426950408889634
    c1 = c0 * 0.044715
    a.emit(f'v_mov_b32 v{CK}, {f2u(c0):#x}')
    a.emit(f'v_mov_b32 v{CK+1}, {f2u(c1):#x}')
    a.emit(f'v_mov_b32 v{CK+2}, 1.0')
    a.emit('s_waitcnt lgkmcnt(0)')
    for jm in range(4):
        a.emit(f'v_mul_f32 v{STT+2*jm}, v{STT+2*jm}, v{STT+2*jm+1}')
    def tile_math(jn, jm, d):
        c = acc(jn, jm)
        seqs = []
        ST2 = f'v[{STT+2*jm}:{STT+2*jm+1}]'
        for q in range(2):
            x = c + 2 * q; t = T + 2 * q + 4 * (jn & 1)
            X = f'v[{x}:{x+1}]'; TT = f'v[{t}:{t+1}]'
            seqs.append([
              f'v_pk_fma_f32 {TT}, v[{CS+4*jn+2*q}:{CS+4*jn+2*q+1}], {ST2}, v[{BI+4*jn+2*q}:{BI+4*jn+2*q+1}] op_sel:[0,0,0] op_sel_hi:[1,0,1] neg_lo:[0,1,0] neg_hi:[0,1,0]',
              f'v_pk_fma_f32 {X}, {X}, {ST2}, {TT} op_sel:[0,1,0] op_sel_hi:[1,1,1]',
              f'v_pk_mul_f32 {TT}, {X}, {X}',
              f'v_pk_fma_f32 {TT}, {TT}, v[{CK}:{CK+1}], v[{CK}:{CK+1}] op_sel:[0,1,0] op_sel_hi:[1,1,0]',
              f'v_pk_mul_f32 {TT}, {TT}, {X}',
              f'v_exp_f32 v{t}, v{t}\n  v_exp_f32 v{t+1}, v{t+1}',
              f'v_pk_add_f32 {TT}, {TT}, v[{CK+2}:{CK+3}] op_sel_hi:[1,0]',
              f'v_rcp_f32 v{t}, v{t}\n  v_rcp_f32 v{t+1}, v{t+1}',
              f'v_pk_mul_f32 {X}, {X}, {TT}',
              f'v_cvt_pk_bf16_f32 v{d+q}, v{x}, v{x+1}'])
        for ia, ib in zip(*seqs):
            a.emit(ia); a.emit(ib)
    cnt = [0]
    def pair(t0, t1, vo, soff, big=False):
        d = D + 4 * (cnt[0] % 4); cnt[0] += 1
        tile_math(*t0, d); tile_math(*t1, d + 2)
        a.emit(f's_add_u32 s3, s10, {soff}' if big else f's_mov_b32 s3, {soff}')
        a.emit('s_nop 0')
        a.emit(f'v_permlane16_swap_b32 v{d}, v{d+2}')
        a.emit(f'v_permlane16_swap_b32 v{d+1}, v{d+3}')
        a.emit(f'buffer_store_dwordx4 v[{d}:{d+3}], v{vo}, s[{SO}:{SO+3}], s3 offen{stf(kind)}')
    pr = lambda p, jm: pair((2 * p, jm), (2 * p + 1, jm), VO, jm * 16 * ldo2 + (46 + 2 * p) * 1024 * (p > 0), p > 0)
    od = lambda jm: pair((6, jm), (6, jm + 1), VO + 1, jm * 16 * ldo2 + 32768)
    order = [lambda jm=jm: pr(0, jm) for jm in range(4)] + [lambda: od(0), lambda: od(2)] + [lambda jm=jm, p=p: pr(p, jm) for jm in range(4) for p in (1, 2)]
    EW = int(ENV('EW', '10'))
    for i, f in enumerate(order):
        f()
        if EARLY and i + 1 == EW:
            a.emit(f's_waitcnt vmcnt({EW - EARLY // 4})')
            a.emit('s_barrier')
    compute_end(a, kind)
    a.label(f'L_{kind}_loader')
    L = Loader(a, kind, K, lda2, ldw2, [0, f's{S_HD}', 's_add_u32 s4, s4, 128'], 128, S, STAGE, rot=int(ENV('ROT_W1', '0')), xblk=True, half=2048)
    L.setup()
    a.emit('s_waitcnt lgkmcnt(0)')
    srd(a, SX, 'ws', WS_X1, 4 * MB); srd(a, SW, 'w1', 0, 1024 * 7168)
    srd(a, ST, 'ws', WS_ST, 16 * 16384); srd(a, SC, 'ws0', WS_CS, 16 * 16384); srd(a, SB, 'b1', 0, 7168)
    def tail():
        stats_loads(a, 32, False)
        a.emit(f's_lshl_b32 s4, s{S_NT}, 7')
        a.emit(f's_lshl_b32 s5, s{S_WV}, 6')
        a.emit('s_add_u32 s4, s4, s5')
        a.emit(f's_add_u32 s4, s4, {1472 - 256}')
        a.emit(f's_lshl_b32 s5, s{S_NT}, 6')
        a.emit(f's_cmp_eq_u32 s{S_WV}, 4')
        a.emit('s_cselect_b32 s4, s5, s4')
        a.emit('s_lshr_b32 s5, s5, 1')
        a.emit('s_add_u32 s5, s5, 1024')
        a.emit(f's_cmp_eq_u32 s{S_WV}, 7')
        a.emit('s_cselect_b32 s4, s5, s4')
        a.emit('v_add_u32 v3, s4, v1')
        a.emit('v_lshlrev_b32 v2, 2, v3')
        a.emit('v_lshlrev_b32 v3, 1, v3')
        a.emit(f's_mov_b32 s3, {cs[2]}')
        for j in range(16):
            if j < cs[0]:
                a.emit(f'buffer_load_dword v{64+j}, v2, s[{SC}:{SC+3}], s3 offen')
                if j < cs[0] - 1: a.emit(f's_add_u32 s3, s3, {cs[1]}')
            else:
                a.emit(f'v_mov_b32 v{64+j}, 0')
        a.emit(f'buffer_load_ushort v80, v3, s[{SB}:{SB+3}], 0 offen')
        side(a, 'issue')
    ns = side(Asm(), 'issue')
    extra = None
    if VW:
        assert int(ENV('LM_W2', '2')) == 2
        srd(a, SR, 'w2', 0, 3584 * 2048)
        a.emit('s_and_b32 s5, s2, 3')
        a.emit('s_lshl_b32 s5, s5, 2')
        a.emit(f's_and_b32 s6, s{S_CU}, 3')
        a.emit('s_add_u32 s5, s5, s6')
        a.emit('s_and_b32 s6, s2, 4')
        a.emit('s_lshl_b32 s6, s6, 1')
        a.emit(f's_lshr_b32 s7, s{S_CU}, 2')
        a.emit('s_add_u32 s6, s6, s7')
        rot_table(a, S_TB, 5, 6, 'w2')
        a.emit(f's_add_u32 s5, s5, s{S_WV}')
        a.emit('s_and_b32 s5, s5, 3')
        wvoff(a, 16, 5, 6, 2048)
        sched = [int(c) for c in ENV('PSCH', '0111111111111122')]
        assert sum(sched) >= NV1
        def extra(i):
            o = []
            for p in range(sum(sched[:i]), min(NV1, sum(sched[:i + 1]))): o += park(56, 2 * p, 128 + 8 * p, 16, SR)
            return o
        ns += sum(x.startswith('buffer_load') for i in (14, 15) for x in extra(i))
    def final():
        a.emit(f's_waitcnt vmcnt({ns})')
        if ENV('PFL', '2') == '1': side(a, 'late')
        stats_reduce_store(a, 32, LST)
        for j in range(8): a.emit(f'v_add_f32 v{64+j}, v{64+j}, v{72+j}')
        for j in range(4): a.emit(f'v_add_f32 v{64+j}, v{64+j}, v{68+j}')
        a.emit('v_add_f32 v64, v64, v65')
        a.emit('v_add_f32 v66, v66, v67')
        a.emit('v_add_f32 v64, v64, v66')
        a.emit('v_lshlrev_b32 v80, 16, v80')
        a.emit('v_lshlrev_b32 v2, 2, v0')
        a.emit(f'v_add_u32 v2, {LCS - 1024}, v2')
        a.emit('ds_write_b32 v2, v64')
        a.emit('ds_write_b32 v2, v80 offset:1024')
        a.emit('s_waitcnt lgkmcnt(0)')
    import sides
    L.run(tail_issue=tail, ntail_vm=17 + cs[0] + side(Asm(), 'issue'), final=final, extra=extra, post=sides.stouch_post(a, kind),
          dep=(lambda: dep_wait(a, kind)) if MEGA else None)
    if ENV('PFL', '2') == '2': side(a, 'late')
    if not VW: side(a, 'finish')
    loader_end(a, kind)
    a.label(end)
    a.emit('s_endpgm')
    loader_first(a, kind)
    if not MEGA:
        a(KD.format(name=f'{kind}l0_kernel'))
        stub(a, f'{kind}l1_kernel', body, 1, tsidx + 4, False)
        a(KD.format(name=f'{kind}l1_kernel'))
    a.label(f'L_{kind}_c1')
    return LCS + 2048
```

```python
from common import *
LM_WO = int(ENV('LM_WO', '2')); LM_W1 = int(ENV('LM_W1', '3')); LM_W2 = int(ENV('LM_W2', '2')); LM_QKV = int(ENV('LM_QKV', '3'))
PFW2 = int(ENV('PFW2', '0'))
PV = 96

def fin(a):
    a.emit('s_waitcnt vmcnt(0)')

def pf_wo(a):
    L = 1 << (5 - LM_WO)
    sh = 5 - LM_WO
    return pf_weights(a, SP, 'wo', 2 * MB, 2048, 32, sh, L, LM_WO, 128, max(1, (8 << sh) // 64), PV, pair=SPX)

def touch(a, which, size, vd, l0only=True):
    if 'nopf' in DBG: return 0
    per = size // 128 // 1024
    assert per <= 64
    srd(a, SP, which, 0, size)
    a.emit(f's_and_b32 s3, s{S_WV}, 3')
    a.emit('s_lshl_b32 s4, s2, 2')
    a.emit('s_add_u32 s3, s3, s4')
    a.emit(f's_mul_i32 s3, s3, {per * 128}')
    a.emit(f'v_min_u32 v2, {per - 1}, v1')
    a.emit('v_lshlrev_b32 v2, 7, v2')
    if l0only:
        a.emit(f's_sub_u32 s4, s{S_LAYER}, 1')
        a.emit('v_and_b32 v2, s4, v2')
    a.emit(f'buffer_load_dword v{vd}, v2, s[{SP}:{SP+3}], s3 offen')
    return 1

def qkv(a, layer, phase, npre=0):
    if phase == 'issue':
        n = 0
        if layer == 0:
            srd(a, SC, 'w1', 0, 1024 * 7168)
            a.emit('s_min_u32 s3, s2, 223')
            a.emit('s_mul_i32 s4, s3, 4682')
            a.emit('s_lshr_b32 s4, s4, 16')
            a.emit('s_mul_i32 s5, s4, 14')
            a.emit('s_sub_u32 s3, s3, s5')
            a.emit('s_lshl_b32 s3, s3, 2')
            a.emit(f's_and_b32 s5, s{S_WV}, 3')
            a.emit('s_add_u32 s3, s3, s5')
            a.emit(f's_mul_i32 s5, s4, {64 * 7168}')
            a.emit('s_lshl_b32 s8, s3, 7')
            a.emit('s_add_u32 s5, s5, s8')
            a.emit('s_lshl_b32 s9, s4, 14')
            a.emit('s_lshl_b32 s8, s3, 8')
            a.emit('s_add_u32 s94, s9, s8')
            a.emit('v_lshrrev_b32 v2, 3, v1')
            a.emit('v_mul_u32_u24 v2, 7168, v2')
            a.emit('v_and_b32 v3, 7, v1')
            a.emit('v_lshl_add_u32 v2, v3, 4, v2')
            for j in range(8):
                a.emit(f'buffer_load_dwordx4 v[{64+4*j}:{67+4*j}], v2, s[{SC}:{SC+3}], s5 offen')
                if j < 7: a.emit(f's_add_u32 s5, s5, {8 * 7168}')
            n += 8
            from gemmw2 import zero_flags
            if not ONE: n += zero_flags(a)
            if ENV('TW2') == 'qkv': n += touch(a, 'w2', 3584 * 2048, PV + 2, False)
        if ENV('PWO', 'v') == 'v': n += pf_wo(a)
        return n
    if layer == 0:
        a.emit(f's_waitcnt vmcnt({npre})')
        a.emit('s_mov_b32 s7, 0xffff0000')
        for i in range(4):
            a.emit(f'v_lshlrev_b32 v{32+2*i}, 16, v{64+i}')
            a.emit(f'v_and_b32 v{33+2*i}, s7, v{64+i}')
        for j in range(1, 8):
            for i in range(4):
                a.emit(f'v_lshlrev_b32 v40, 16, v{64+4*j+i}')
                a.emit(f'v_and_b32 v41, s7, v{64+4*j+i}')
                a.emit(f'v_pk_add_f32 v[{32+2*i}:{33+2*i}], v[{32+2*i}:{33+2*i}], v[40:41]')
        srd(a, SB, 'ws0', WS_CS, 16 * 16384)
        for i in range(4): a.emit(f'v_permlane32_swap_b32 v{32+i}, v{36+i}')
        for i in range(4): a.emit(f'v_add_f32 v{32+i}, v{32+i}, v{36+i}')
        a.emit('v_and_b32 v2, 7, v1')
        a.emit('v_lshlrev_b32 v2, 5, v2')
        for i in range(2): a.emit(f'v_permlane16_swap_b32 v{32+i}, v{34+i}')
        for i in range(2): a.emit(f'v_add_f32 v{32+i}, v{32+i}, v{34+i}')
        a.emit('v_lshrrev_b32 v3, 4, v1')
        a.emit('v_lshl_add_u32 v2, v3, 3, v2')
        for i in range(2): a.emit(f'v_add_f32_dpp v{32+i}, v{32+i}, v{32+i} row_ror:8 row_mask:0xf bank_mask:0xf')
        a.emit(f'buffer_store_dwordx2 v[32:33], v2, s[{SB}:{SB+3}], s94 offen sc1')
        if ONE and not SPX: a.emit('s_waitcnt vmcnt(0)')
    else:
        fin(a)

def wo(a, phase):
    if phase == 'issue':
        return touch(a, 'w2', 3584 * 2048, PV) if ENV('TW2') == 'wo' else 0
    fin(a)

def stouch(a, which, size, sd, sreg, first, lps, pre=0, per=None):
    if lps == 0: return []
    srd(a, sd, which, 0, size)
    a.emit(f's_cmp_eq_u32 s{S_LAYER}, 0')
    a.emit(f's_cselect_b32 s{sd+2}, s{sd+2}, 0')
    a.emit(f's_and_b32 s3, s{S_WV}, 3')
    a.emit('s_lshl_b32 s4, s2, 2')
    a.emit('s_add_u32 s3, s3, s4')
    a.emit(f's_mul_i32 s{sreg}, s3, {per or size // 1024}')
    if per:
        a.emit(f's_add_u32 s{sreg}, s{sreg}, {first * 64 * 1024}')
        first = 0
    for i in range(pre): a.emit(f's_buffer_load_dword s84, s[{sd}:{sd+3}], s{sreg} offset:{64*(first+i)}')
    return [f's_buffer_load_dword s84, s[{sd}:{sd+3}], s{sreg} offset:{64*(first+pre+i)}' for i in range(lps)] + [f's_add_u32 s{sreg}, s{sreg}, {64*lps}']

STV = [int(x) for x in ENV('STV', '4,0,4,0').split(',')]
def stouch_post(a, kind):
    if ENV('TW2', 's') != 's': return ()
    if kind == 'attn':
        return stouch(a, 'w2', 3584 * 2048, SR, S_T, 0, STV[0], per=14 * 64 * STV[0]) + stouch(a, 'wo', 2 * MB, SB, 86, 0, STV[3], pre=max(0, 32 - 14 * STV[3]))
    if kind == 'wo': return stouch(a, 'w2', 3584 * 2048, SP, S_T, 14 * STV[0], STV[1])
    if kind == 'w1': return stouch(a, 'w2', 3584 * 2048, SP, S_T, 14 * STV[0], STV[2], per=14 * 64 * STV[2])
    if kind == 'w2': return cls_w2(a)
    return ()

def cls_w2(a):
    P = int(ENV('CW2', '8'))
    if P == 0: return ()
    a.emit(f's_and_b32 s3, s{S_WV}, 3')
    a.emit(f's_lshl_b32 s4, s{S_CU}, 2')
    a.emit('s_add_u32 s3, s3, s4')
    a.emit('s_lshl_b32 s4, s3, 6')
    a.emit('s_and_b32 s4, s4, 64')
    a.emit('s_lshr_b32 s3, s3, 1')
    a.emit(f's_lshl_b32 s{S_T}, s3, 11')
    a.emit(f's_add_u32 s{S_T}, s{S_T}, s4')
    a.emit(f's_sub_u32 s4, 384, s{SW}')
    a.emit('s_and_b32 s4, s4, 0x380')
    a.emit(f's_add_u32 s{S_T}, s{S_T}, s4')
    a.emit(f's_lshl_b32 s4, s{S_NT}, 7')
    a.emit('s_and_b32 s4, s4, 1024')
    a.emit(f's_add_u32 s{S_T}, s{S_T}, s4')
    a.emit(f's_add_u32 s{S_T}, s{S_T}, {(30 if VW else 16 * max(1, PFW2) if XD else 4) * 131072}')
    o = [f's_buffer_load_dword s84, s[{SW}:{SW+3}], s{S_T}', f's_add_u32 s{S_T}, s{S_T}, 131072']
    if VW:
        for x in o * (P // 2): a.emit(x)
        return o * 2
    for i in range(P + 1):
        for x in o: a.emit(x)
    return o

def w1(a, phase):
    if phase == 'late' or (phase == 'issue' and ENV('PFL', '2') == '0'):
        NI = PFW2
        if phase == 'late' and ENV('PFL', '2') == '0': return
        if XD and NI: return pf_weights(a, SR, 'w2', 3584 * 2048, 2048, 32 * NI, 3, 8, 2, 128, NI, PV)
        return 0
    if phase == 'issue': return 0
    if not XD: fin(a)

def w2(a, phase):
    return 0

def cls_touch(a):
    m = ENV('CLS', 'w')
    if m == '0': return
    a.emit(f's_and_b32 s3, s{S_WV}, 3')
    a.emit('s_lshl_b32 s4, s2, 2')
    a.emit('s_add_u32 s3, s3, s4')
    a.emit(f's_sub_u32 s4, 384, s{SW}')
    a.emit('s_and_b32 s4, s4, 0x380')
    a.emit('s_mul_i32 s5, s3, 6144')
    a.emit('s_add_u32 s5, s5, s4')
    for j in range(6):
        for h in range(2): a.emit(f's_buffer_load_dword s84, s[{SW}:{SW+3}], s5 offset:{1024*j+64*h}')
    if m == 'wx':
        a.emit(f's_sub_u32 s4, 384, s{SX}')
        a.emit('s_and_b32 s4, s4, 0x380')
        a.emit('s_lshl_b32 s5, s3, 12')
        a.emit('s_add_u32 s5, s5, s4')
        for j in range(4):
            for h in range(2): a.emit(f's_buffer_load_dword s84, s[{SX}:{SX+3}], s5 offset:{1024*j+64*h}')
```

```python
from common import *
from gemm64 import gen_gemm64
from gemmw1 import gen_w1
if XD:
    from gemm64x import gen_gemm64x as gen_gemm64
    if SPX: from gemm64y import gen_gemm64y as gen_gemm64
HYB = ENV('HYB', '0') == '1'

def main():
    launches = []
    a = Asm()
    def add(name, grid, lds, blk=512):
        launches.append(f'; @launch kernel={name} grid=({grid},1,1) block=({blk},1,1) lds={lds}')
    nos = lambda a, ph: 0
    from qkv import gen_qkv
    from gemmw2 import gen_w2
    import sides
    lq = gen_qkv(a, 0, sides.qkv)
    lo = gen_gemm64(a, 'wo', 1, sides.wo)
    l1 = gen_w1(a, 2, sides.w1)
    l2 = gen_w2(a, 3) if ENV('SPLIT', '0') == '1' else gen_gemm64(a, 'w2', 3, sides.w2)
    fin(a)
    if ONE: add('attnl0_kernel', 256, 163840)
    elif MEGA:
        add('attnl0_kernel', 256, lq); add('wol0_kernel', 256, 163840)
    else:
        for L in range(2):
            add(f'attnl{L}_kernel', 256, lq)
            add(f'wol{L}_kernel', 256, lo); add(f'w1l{L}_kernel', 256, l1); add(f'w2l{L}_kernel', 256, l2)
    if ENV('LIST'):
        m = {l.split('kernel=')[1].split('_kernel')[0]: l for l in launches}
        launches = [m[x] for x in ENV('LIST').split(',')]
    if 'nostore' in DBG:
        a.lines = [l for l in a.lines if not ('buffer_store_dwordx4' in l and f's[{SO}:{SO+3}]' in l)]
    if 'nodsw' in DBG:
        a.lines = [l for l in a.lines if 'ds_write_b128 v11' not in l]
    if ENV('LDF'):
        a.lines = [l.replace(' lds', ' ' + ENV('LDF').replace('+', ' ') + ' lds') if l.endswith(' lds') else l for l in a.lines]
    if 'noexch' in DBG:
        a.lines = [l for l in a.lines if not ('dwordx4' in l and ' sc1' in l and f's[{SX}:{SX+3}]' in l)]
    if 'l2exch' in DBG:
        a.lines = [l.replace(' sc1', ENV('XF', '') if 'store' in l else '') if ('dwordx4' in l and ' sc1' in l and f's[{SX}:{SX+3}]' in l) else l for l in a.lines]
    if 'halfexch' in DBG:
        a.lines = [l for l in a.lines if not ('dwordx4' in l and ' sc1' in l and f's[{SX}:{SX+3}], s{S_T}' in l)]
    hdr = open(os.path.join(os.path.dirname(os.path.abspath(__file__)), '..', 'header.txt')).read()
    out = hdr + '\n'.join(launches) + '\n.amdgcn_target "amdgcn-amd-amdhsa--gfx950"\n' + a.text()
    if ONE and not TS and not TE:
        out = out.replace('kernel=attnl0_kernel ', '').replace('attnl0_kernel', 'interleave_layers__sliding_local_dilated__dense_activation_gelu__prompt_kernel')
    import pads
    if ENV('AL12', '1') == '1': out = pads.apply(out)
    check_offsets(out)
    path = sys.argv[1]
    open(path, 'w').write(out)
    print('wrote', path, len(out))
main()
```

```python
import sys, os, struct
sys.path.insert(0, os.path.join(os.path.dirname(os.path.abspath(__file__)), '..'))
from asmlib import Asm, check_offsets
MB = 1 << 20
WSB = int(os.environ.get('WSB', '0')) * MB
WS_O   = WSB
WS_X1  = WSB + 4 * MB
WS_H   = WSB + 8 * MB
WS_ST  = WSB + 23 * MB
WS_CS  = WSB + 23 * MB + 512 * 1024
WS_TS  = 60 * MB
MEGA = os.environ.get('MEGA', '2') in ('1', '2')
ONE = os.environ.get('MEGA', '2') == '2'
LSTR = 64 * MB
WS_ST2 = WS_ST + 256 * 1024 if MEGA else WS_ST
WS_FL = WSB + 23 * MB + 768 * 1024
WS_XP = WSB + 24 * MB
WS_X2 = WSB + 32 * MB
XPAD = int(os.environ.get('XPAD', '128')) if MEGA else 0
f2u = lambda f: struct.unpack('<I', struct.pack('<f', f))[0]
ENV = os.environ.get
TS = ENV('TS', '')
DBG = ENV('DBG', '').split(',')
EARLY = int(ENV('EARLY', '0')) if MEGA and ENV('SPLIT', '0') == '0' else 0
def stf(kind): return (' ' + ENV('WTF', 'sc1')) if kind in ENV('WT', 'attn,wo,w2,w1').split(',') else ''

KA = {'A_x': 0, 'wqkv': 8, 'wo': 16, 'w1': 32, 'b1': 40, 'w2': 48, 'b2': 56, 'out': 64, 'ws': 80}
P_IN = 16
P_OUT = 32; P_WS = 34
P_XS = 12
PTR = {'A_x': 16, 'wqkv': 18, 'wo': 20, 'w1': 24, 'b1': 26, 'w2': 28, 'b2': 30, 'out': 32, 'ws': 34, 'xs': 12, 'ws0': 22}
SX, SW, SO, SR, SB, ST, SP, SC = 36, 40, 44, 48, 52, 56, 60, 64
S_MT, S_NT, S_WV, S_WM, S_WN = 68, 69, 70, 71, 72
S_KX, S_KW, S_SLOT, S_XD, S_WD, S_HD, S_CNT = 73, 74, 75, 76, 77, 78, 79
S_LAYER = 96; S_TSI = 97; S_T = 98; S_CU = 99; S_XG = 100; S_KT = 101

KD = '''.section .rodata,"a"
.p2align 6
.amdhsa_kernel {name}
  .amdhsa_next_free_vgpr 256
  .amdhsa_next_free_sgpr 102
  .amdhsa_accum_offset 256
  .amdhsa_group_segment_fixed_size 0
  .amdhsa_kernarg_size 88
  .amdhsa_user_sgpr_count 2
  .amdhsa_user_sgpr_kernarg_segment_ptr 1
  .amdhsa_system_sgpr_workgroup_id_x 1
  .amdhsa_float_denorm_mode_32 3
  .amdhsa_float_denorm_mode_16_64 3
.end_amdhsa_kernel
.text
'''

def srd(a, sd, which, off, size):
    p = PTR[which]
    if off:
        a.emit(f's_add_u32 s{sd}, s{p}, {off}')
        a.emit(f's_addc_u32 s{sd+1}, s{p+1}, 0')
        a.emit(f's_and_b32 s{sd+1}, s{sd+1}, 0xffff')
    else:
        a.emit(f's_mov_b32 s{sd}, s{p}')
        a.emit(f's_and_b32 s{sd+1}, s{p+1}, 0xffff')
    a.emit(f's_mov_b32 s{sd+2}, {size}')
    a.emit(f's_mov_b32 s{sd+3}, 0x00020000')

def xpitch(a, sd, inv=False):
    a.emit(f's_cmp_eq_u32 s{S_LAYER}, {0 if inv else 1}')
    a.emit(f's_cselect_b32 s{sd}, {XPAD}, 0')
    a.emit(f's_add_u32 s{sd}, s{sd}, 2048')

def srd_xs(a, sd):
    srd(a, sd, 'xs', 0, 4 * MB)
    xpitch(a, sd + 2)
    a.emit(f's_lshl_b32 s{sd+2}, s{sd+2}, 11')

def stub(a, name, body, layer, tsidx, first):
    a(f'.text\n.globl {name}\n.p2align 8\n.type {name},@function\n{name}:')
    if TS:
        stamp(a, 0, nowait=True)
    a.emit('s_load_dwordx4 s[16:19], s[0:1], 0')
    a.emit('s_load_dwordx2 s[20:21], s[0:1], 16')
    a.emit('s_load_dwordx2 s[22:23], s[0:1], 80')
    a.emit('s_load_dwordx8 s[24:31], s[0:1], 32')
    a.emit('s_load_dwordx2 s[32:33], s[0:1], 64')
    a.emit('s_load_dwordx2 s[34:35], s[0:1], 80')
    a.emit(f's_load_dwordx2 s[12:13], s[0:1], {0 if layer == 0 else 64}')
    a.emit(f's_mov_b32 s{S_LAYER}, {layer}')
    a.emit(f's_mov_b32 s{S_TSI}, {tsidx}')
    if not first:
        a.emit(f's_branch {body}')

def stamp(a, n, nowait=False):
    if not TS: return
    a.emit(f's_memrealtime s[{80+4*n}:{81+4*n}]')
    a.emit(f's_memtime s[{82+4*n}:{83+4*n}]')
    if not nowait: a.emit('s_waitcnt lgkmcnt(0)')

def stamps_out(a, tag):
    if not TS: return
    if not MEGA: a.emit('s_waitcnt vmcnt(0)')
    stamp(a, 3)
    if MEGA and tag == 'w1':
        for i in range(16): a.emit(f'v_writelane_b32 v31, s{80+i}, {i}')
        return
    srd(a, SP, 'ws0', WS_TS, 1 << 20)
    a.emit('s_lshl_b32 s4, s2, 6')
    a.emit(f's_lshl_b32 s5, s{S_TSI}, 16')
    a.emit('s_add_u32 s4, s4, s5')
    a.emit('v_mov_b32 v1, s4')
    for i in range(16): a.emit(f'v_mov_b32 v{4+i}, s{80+i}')
    a.emit('v_cmp_eq_u32 vcc, 0, v0')
    a.emit('s_and_saveexec_b64 s[6:7], vcc')
    a.emit(f's_cbranch_execz L_tsskip_{tag}')
    for j in range(4):
        a.emit(f'buffer_store_dwordx4 v[{4+4*j}:{7+4*j}], v1, s[{SP}:{SP+3}], 0 offen offset:{16*j}')
    if MEGA and tag == 'w2':
        a.emit('s_mov_b64 exec, 0xffff')
        a.emit('s_sub_u32 s4, s4, 0x10000')
        a.emit('v_lshlrev_b32 v1, 2, v0')
        a.emit(f'buffer_store_dword v31, v1, s[{SP}:{SP+3}], s4 offen')
    a.label(f'L_tsskip_{tag}')
    a.emit('s_mov_b64 exec, -1')

def lstamp(a, n):
    if TS: a.emit(f's_memrealtime s[{52+2*n}:{53+2*n}]')

def lstamps_out(a, tag):
    if not TS: return
    a.emit(f's_cmp_lg_u32 s{S_WV}, 4')
    a.emit(f's_cbranch_scc1 L_ltsskip_{tag}')
    a.emit('s_waitcnt lgkmcnt(0)')
    srd(a, SP, 'ws0', WS_TS + 16384, 1 << 20)
    a.emit('s_lshl_b32 s4, s2, 6')
    a.emit(f's_lshl_b32 s5, s{S_TSI}, 16')
    a.emit('s_add_u32 s4, s4, s5')
    for i in range(8): a.emit(f'v_writelane_b32 v20, s{52+i}, {i}')
    a.emit('v_lshlrev_b32 v21, 2, v1')
    a.emit('s_mov_b64 exec, 0xff')
    a.emit(f'buffer_store_dword v20, v21, s[{SP}:{SP+3}], s4 offen')
    a.emit('s_mov_b64 exec, -1')
    a.label(f'L_ltsskip_{tag}')

def tile_map(a, LM, endlab):
    a.emit('s_cmp_ge_u32 s2, 256')
    a.emit(f's_cbranch_scc1 {endlab}')
    a.emit('v_lshrrev_b32 v2, 6, v0')
    a.emit('v_and_b32 v1, 63, v0')
    a.emit(f'v_readfirstlane_b32 s{S_WV}, v2')
    a.emit('s_and_b32 s3, s2, 7')
    a.emit(f's_lshr_b32 s{S_CU}, s2, 3')
    if LM == 2 and ENV('MAP2', '0') == '1':
        a.emit('s_lshl_b32 s5, s3, 1')
        a.emit('s_lshr_b32 s6, s3, 1')
        a.emit('s_and_b32 s5, s5, 2')
        a.emit('s_and_b32 s6, s6, 1')
        a.emit('s_or_b32 s5, s5, s6')
    else: a.emit(f's_and_b32 s5, s3, {(1 << (4 - LM)) - 1}')
    a.emit(f's_lshl_b32 s5, s5, {LM}')
    a.emit(f's_and_b32 s6, s{S_CU}, {(1 << LM) - 1}')
    a.emit(f's_add_u32 s{S_MT}, s5, s6')
    a.emit(f's_lshr_b32 s5, s3, {4 - LM}')
    a.emit(f's_lshl_b32 s5, s5, {5 - LM}')
    a.emit(f's_lshr_b32 s6, s{S_CU}, {LM}')
    a.emit(f's_add_u32 s{S_NT}, s5, s6')
    if 'smallm' in DBG: a.emit(f's_and_b32 s{S_MT}, s{S_MT}, 1')
    if 'smalln' in DBG: a.emit(f's_and_b32 s{S_NT}, s{S_NT}, 1')

def interleave(a, main, side, lead=1, per=1):
    si = 0
    for i, m in enumerate(main):
        a.emit(m)
        if i + 1 >= lead:
            for _ in range(per):
                if si < len(side): a.emit(side[si]); si += 1
    while si < len(side): a.emit(side[si]); si += 1

class Loader:
    VXD = 4; VWD = 8; VXH = 28
    def __init__(self, a, tag, K, lda2, ldw2, panels, colbase, S, STAGE, halo=None, delta=0, rot=None, xblk=False, half=0):
        self.a = a; self.tag = tag; self.K = K; self.lda2 = lda2; self.ldw2 = ldw2; self.panels = panels
        self.colbase = colbase; self.S = S; self.STAGE = STAGE; self.halo = halo; self.delta = delta; self.xblk = xblk; self.rot = rot if rot is not None and rot >= 0 else None
        self.NSTEP = K // 64; self.half = half
        self.per = 4 + 2 * len(panels) + (1 if halo is not None else 0)
    def setup(self):
        a = self.a
        if ENV('PRIO', '0') != '0': a.emit(f"s_setprio {ENV('PRIO')}")
        a.emit(f's_add_u32 s8, s{S_WV}, s{S_NT}')
        a.emit('s_and_b32 s8, s8, 3')
        a.emit(f's_add_u32 s9, s{S_WV}, s{S_MT}')
        a.emit('s_and_b32 s9, s9, 3')
        a.emit(f's_lshl_b32 s{S_XD}, s8, 12')
        a.emit(f's_lshl_b32 s{S_WD}, s9, 11')
        a.emit(f's_add_u32 s{S_WD}, s{S_WD}, 16384')
        a.emit(f's_lshl_b32 s11, s{S_MT}, 7')
        a.emit('v_and_b32 v10, 7, v1')
        if self.xblk: self.xoff_blk(self.lda2)
        else: self.xoff_rows(self.lda2)
        a.emit('v_lshrrev_b32 v3, 3, v1')
        a.emit('s_lshl_b32 s10, s9, 4')
        a.emit('v_add_u32 v3, s10, v3')
        a.emit(f'v_mul_u32_u24 v3, {self.ldw2}, v3')
        a.emit('v_lshrrev_b32 v2, 3, v1')
        a.emit('v_and_b32 v2, 2, v2')
        a.emit('v_xor_b32 v2, v2, v10')
        a.emit(f's_mul_i32 s10, s{S_NT}, {self.colbase}')
        if self.colbase & 127: a.emit('s_andn2_b32 s10, s10, 127')
        a.emit('v_add_u32 v3, s10, v3')
        a.emit(f'v_lshl_add_u32 v{self.VWD}, v2, 4, v3')
        a.emit('v_xor_b32 v2, 4, v2')
        a.emit(f'v_add_u32 v3, {8*self.ldw2}, v3')
        a.emit(f'v_lshl_add_u32 v{self.VWD+1}, v2, 4, v3')
        if self.half:
            a.emit('v_lshrrev_b32 v3, 2, v1')
            a.emit('s_lshl_b32 s10, s9, 4')
            a.emit('v_add_u32 v3, s10, v3')
            a.emit(f'v_mul_u32_u24 v3, {self.ldw2}, v3')
            a.emit('v_lshrrev_b32 v2, 4, v1')
            a.emit('v_and_b32 v2, 2, v2')
            a.emit('v_xor_b32 v2, v2, v1')
            a.emit('v_and_b32 v2, 3, v2')
            a.emit(f's_lshl_b32 s10, s{S_NT}, 6')
            a.emit(f's_add_u32 s10, s10, {self.half}')
            a.emit('v_add_u32 v3, s10, v3')
            a.emit(f'v_lshl_add_u32 v{self.VXH}, v2, 4, v3')
            a.emit(f's_lshl_b32 s{S_HD}, s{S_NT}, 7')
            a.emit(f's_add_u32 s{S_HD}, s{S_HD}, 3072')
        if self.halo is not None:
            a.emit(f's_and_b32 s10, s{S_WV}, 3')
            a.emit(f's_lshl_b32 s{S_HD}, s10, 9')
            a.emit(f's_add_u32 s{S_HD}, s{S_HD}, {self.halo}')
            a.emit('s_lshl_b32 s14, s10, 2')
            a.emit('s_add_u32 s14, s14, s11')
            a.emit('s_sub_u32 s14, s14, 16')
            a.emit('v_lshrrev_b32 v3, 3, v1')
            a.emit('v_add_u32 v3, s14, v3')
            a.emit('v_max_i32 v3, 0, v3')
            a.emit('v_mul_u32_u24 v3, s5, v3')
            a.emit('s_lshl_b32 s14, s10, 1')
            a.emit('v_lshrrev_b32 v2, 4, v1')
            a.emit('v_add_u32 v2, s14, v2')
            a.emit('v_and_b32 v2, 7, v2')
            a.emit('v_xor_b32 v2, v2, v10')
            a.emit(f'v_lshl_add_u32 v{self.VXH}, v2, 4, v3')
            a.emit('s_cmp_eq_u32 s10, 0')
            a.emit('s_cselect_b32 s14, 0xffffff00, -1')
            a.emit('s_mov_b32 s15, 0')
        a.emit(f's_mov_b32 s{S_SLOT}, 0')
        if self.rot is None:
            a.emit(f's_mov_b32 s{S_KX}, 0')
            a.emit(f's_mov_b32 s{S_KW}, 0')
        else:
            if not getattr(self, 'noxg', False): a.emit(f's_add_u32 s{S_XG}, s{S_MT}, s{S_NT}')
            a.emit(f's_mov_b32 s{S_KT}, {0 if EARLY and self.tag == "w2" else -1}')
            for x in self.knext(): a.emit(x)
    def xoff_rows(self, ld):
        a = self.a
        a.emit('v_lshrrev_b32 v3, 3, v1')
        a.emit(f's_lshr_b32 s10, s{S_XD}, 7')
        a.emit(f's_lshl_b32 s3, s{S_MT}, 7')
        a.emit('s_add_u32 s10, s10, s3')
        a.emit('v_add_u32 v3, s10, v3')
        xpitch(a, 5)
        a.emit('s_lshl_b32 s6, s5, 3')
        a.emit('v_mul_u32_u24 v3, s5, v3')
        a.emit('v_lshrrev_b32 v2, 4, v1')
        for j in range(4):
            d = self.VXD + j
            if j & 1:
                a.emit(f'v_add_u32 v{d}, 4, v2')
                a.emit(f'v_xor_b32 v{d}, v{d}, v10')
            else:
                a.emit(f'v_xor_b32 v{d}, v2, v10')
            a.emit(f'v_lshl_add_u32 v{d}, v{d}, 4, v3')
            if j < 3: a.emit('v_add_u32 v3, s6, v3')
    def xoff_blk(self, ld):
        a = self.a
        a.emit(f's_lshr_b32 s10, s{S_XD}, 11')
        a.emit(f's_lshl_b32 s3, s{S_MT}, 3')
        a.emit('s_add_u32 s10, s10, s3')
        a.emit(f's_mul_i32 s10, s10, {16*ld}')
        a.emit(f'v_lshl_add_u32 v{self.VXD}, v1, 4, s10')
        a.emit(f'v_add_u32 v{self.VXD+1}, {16*ld}, v{self.VXD}')
    def xdma(self, base, imm, sd, soff, blk):
        o = []
        for j in range(4):
            if blk:
                if not j & 1: o += [f's_add_u32 m0, s{base}, {imm + j*1024}', 's_nop 0']
                o.append(f'buffer_load_dwordx4 v{self.VXD+(j>>1)}, s[{sd}:{sd+3}], s{soff} offen offset:{(j&1)*1024} lds')
            else:
                o += [f's_add_u32 m0, s{base}, {imm + j*1024}', 's_nop 0', f'buffer_load_dwordx4 v{self.VXD+j}, s[{sd}:{sd+3}], s{soff} offen lds']
        return o
    def knext(self):
        if self.rot is None:
            return [f's_add_u32 s{S_KX}, s{S_KX}, {2048 if self.xblk else 128}', f's_add_u32 s{S_KW}, s{S_KW}, {64*self.ldw2}']
        lc = self.rot; C = 1 << lc; N = self.NSTEP
        o = [f's_add_u32 s{S_KT}, s{S_KT}, 1']
        D = int(ENV('ROTD_' + self.tag.upper(), ENV('ROTD', '2')))
        dl = {3: [3, -1, -1, -1], 2: [2, -1, -1, 0], 1: [1, -1, 0, 0]}[D]
        tbl = sum((((d * C) % N) << (8 * i)) for i, d in enumerate(dl))
        if lc: o += [f's_lshr_b32 s{S_KX}, s{S_KT}, {lc}', f's_sub_u32 s{S_KX}, s{S_KX}, s{S_XG}']
        else: o += [f's_sub_u32 s{S_KX}, s{S_KT}, s{S_XG}']
        o += [f's_lshl_b32 s{S_KX}, s{S_KX}, 3',
              f's_lshr_b32 s{S_KX}, {tbl:#x}, s{S_KX}',
              f's_and_b32 s{S_KX}, s{S_KX}, 255',
              f's_add_u32 s{S_KX}, s{S_KX}, s{S_KT}']
        if N & (N - 1) == 0: o += [f's_and_b32 s{S_KX}, s{S_KX}, {N - 1}']
        else: o += [f's_sub_u32 s{S_KW}, s{S_KX}, {N}', f's_cselect_b32 s{S_KX}, s{S_KX}, s{S_KW}']
        o += [f's_mul_i32 s{S_KW}, s{S_KX}, {64*self.ldw2}', f's_lshl_b32 s{S_KX}, s{S_KX}, {11 if self.xblk else 7}']
        return o
    def panels_of(self, t): return self.panels
    def issue_x(self, bx, bh, imm, kx):
        o = self.xdma(bx, imm, SX, kx, self.xblk)
        if self.halo is not None:
            o.append(f's_add_u32 m0, s{S_HD}, {bh}')
            o.append('s_mov_b64 exec, s[14:15]')
            o.append(f'buffer_load_dwordx4 v{self.VXH}, s[{SX}:{SX+3}], s{kx} offen lds')
            o.append('s_mov_b64 exec, -1')
        return o
    def issue_w(self, t, bw, imm):
        o = []
        for pn, goff in enumerate(self.panels_of(t)):
            for i in range(2):
                o.append(f's_add_u32 m0, s{bw}, {imm+pn*8192+i*1024}')
                o.append((goff if str(goff).startswith('s_') else f's_add_u32 s4, s{S_KW}, {goff}') if i == 0 else 's_nop 0')
                o.append(f'buffer_load_dwordx4 v{self.VWD+i}, s[{SW}:{SW+3}], s4 offen lds')
        if self.half:
            o += [f's_add_u32 m0, s{bw}, {imm+len(self.panels)*8192}', 's_nop 0',
                  f'buffer_load_dwordx4 v{self.VXH}, s[{SW}:{SW+3}], s{S_KW} offen lds']
        return o
    def issue(self, t):
        o = [f's_add_u32 s3, s{S_SLOT}, s{S_XD}']
        o += self.issue_x(3, f's{S_SLOT}', 0, S_KX)
        o.append(f's_add_u32 s3, s{S_SLOT}, s{S_WD}')
        o += self.issue_w(t, 3, 0)
        o += self.knext()
        o.append(f's_add_u32 s{S_SLOT}, s{S_SLOT}, {self.STAGE}')
        o.append(f's_cmp_eq_u32 s{S_SLOT}, {self.S*self.STAGE}')
        o.append(f's_cselect_b32 s{S_SLOT}, 0, s{S_SLOT}')
        return o
    def run(self, variant='', tail_issue=None, ntail_vm=0, final=None, post=(), dep=None, tail_late=0, start=None, extra=None):
        a = self.a; N = self.NSTEP; d = self.S - 1
        tag = self.tag + variant
        nx = 4 + (1 if self.halo is not None else 0)
        nw = lambda t: 2 * len(self.panels_of(t)) + (1 if self.half else 0)
        seq = []
        early = EARLY and self.tag == 'w2'
        pchk = EARLY - 3 - d - 1; piss = pchk - d + 1 - int(ENV('PEARLY', '0'))
        def em(o):
            for x in o:
                if 'nodma' in DBG and x.endswith(' lds'): continue
                a.emit(x)
        def after(t): return len(seq) - 1 - max(i for i, x in enumerate(seq) if x == t)
        def wait(n):
            assert n <= 63, n
            a.emit(f's_waitcnt vmcnt({n})')
        if dep is None:
            for t in range(2): em(self.issue(t)); seq += [t] * (nx + nw(t))
            if start: start()
            wait(after(0))
            a.emit('s_barrier')
            for t in range(2, d): em(self.issue(t)); seq += [t] * (nx + nw(t))
        else:
            prev = {'attn': 'w2', 'wo': 'attn', 'w1': 'wo', 'w2': 'w1'}[self.tag]
            assert 'attn' not in EBAR
            dep_pre(a, self.tag)
            if prev in EBAR: a.emit('s_barrier')
            xw = 1 if self.tag in ENV('XW', 'x').split(',') and not hasattr(self, 'P1') else 0
            for t in range(d + xw):
                a.emit(f's_mov_b32 s{88+t}, s{S_KX}')
                em(self.issue_w(t, S_WD, t * self.STAGE) + self.knext()); seq += [t] * nw(t)
            self.npre = len(seq)
            a.emit(f's_mov_b32 s{S_SLOT}, {0 if xw else d * self.STAGE}')
            dep()
            for t in range(d + xw):
                em(self.issue_x(S_XD, t * self.STAGE, t * self.STAGE, 88 + t)); seq += [t] * nx
            wait(after(0))
            if self.tag == 'w2': lstamp(a, 2)
            a.emit('s_barrier')
            if early: late_flag(a)
        ev = []
        for i in range(N):
            t = i + d
            if t in seq: t = N + 9
            if early and i == piss: seq += ['P']
            if t < N: seq += [t] * (nx + nw(t))
            ex = extra(i) if extra else []
            tl = tail_issue is not None and t == N - 1 + tail_late
            if tl: seq += ['T'] * ntail_vm
            seq += ['E'] * sum(x.startswith('buffer_load') for x in ex)
            ev.append(((nw(t) if t < N else -1, after(i + 1) if i + 1 < N else -1, tl, early and i == piss, early and i == pchk, tuple(ex)), t))
        i = 0; nl = 0
        while i < N:
            j = i
            while j + 1 < N and ev[j + 1][0] == ev[i][0]: j += 1
            n = j - i + 1
            (k, w, tl, pi, pc, ex), t = ev[i]
            if n >= 3:
                nl += 1
                a.emit(f's_mov_b32 s{S_CNT}, {n}')
                a.label(f'L_{tag}_ld{nl}')
            else: j = i
            if pi: a.emit(f'buffer_load_dword v13, v12, s[{SO}:{SO+3}], s86 offen sc1')
            if t < N:
                em(self.issue(t)); em(post)
            if tl: tail_issue()
            em(ex)
            if w >= 0: wait(w)
            elif final: final()
            if pc: late_check(a)
            a.emit('s_barrier')
            if n >= 3:
                a.emit(f's_sub_u32 s{S_CNT}, s{S_CNT}, 1')
                a.emit(f's_cmp_lg_u32 s{S_CNT}, 0')
                a.emit(f's_cbranch_scc1 L_{tag}_ld{nl}')
            i = j + 1

XD = ONE and ENV('SPLIT', '0') == '0' and ENV('XD', '1') == '1'
VW = MEGA and ENV('SPLIT', '0') == '0' and ENV('VW', '0') == '1'
NV1 = int(ENV('NV1', '16')); NV2 = int(ENV('NV2', '12')); NVO = int(ENV('NVO', '11'))
S_TB = 85
def rot_table(a, sd, smt, snt, tag):
    D = int(ENV('ROTD_' + tag.upper(), ENV('ROTD', '2')))
    dl = {3: [3, -1, -1, -1], 2: [2, -1, -1, 0], 1: [1, -1, 0, 0], 0: [0, 0, 0, 0]}[D]
    tbl = sum((d & 255) << (8 * i) for i, d in enumerate(dl))
    a.emit(f's_add_u32 s3, s{smt}, s{snt}')
    a.emit('s_lshl_b32 s3, s3, 3')
    a.emit(f's_lshl_b32 s{sd}, {tbl:#x}, s3')
    a.emit('s_sub_u32 s3, 0, s3')
    a.emit(f's_lshr_b32 s3, {tbl:#x}, s3')
    a.emit(f's_or_b32 s{sd}, s{sd}, s3')

def kpos(N, t, sd, tb=S_TB, halves=True, q=None):
    H, p, add = (28, t >> 1, 28 * (t & 1)) if N == 56 and halves else (N, t, 0)
    o = [f's_bfe_i32 s{sd}, s{tb}, {0x80000 + 8 * (p & 3):#x}', f's_add_i32 s{sd}, s{sd}, {p + add}']
    if p == 0: o += [f's_cmp_lt_i32 s{sd}, {add}', f's_cselect_b32 s{sd}, {H - 1 + add}, s{sd}']
    if p + 3 >= H: o += [f's_sub_u32 s3, s{sd}, {H}', f's_cmp_ge_i32 s{sd}, {H + add}', f's_cselect_b32 s{sd}, s3, s{sd}']
    if q is not None:
        if N == 16 or 1 <= t <= 12: o += [f's_add_u32 s{sd}, s{sd}, s{q}', f's_and_b32 s{sd}, s{sd}, 15']
        elif t <= 16 or t + 3 >= N: o += [f's_add_u32 s3, s{sd}, s{q}', 's_and_b32 s3, s3, 15', f's_cmp_lt_u32 s{sd}, 16', f's_cselect_b32 s{sd}, s3, s{sd}']
    return o

S_Q = 86
MROT = ENV('MROT', '1') == '1'
def rot_q(a, sd, smt, sh=0):
    a.emit(f's_and_b32 s{sd}, s{smt}, {3 if MROT else 0}')
    a.emit(f's_lshl_b32 s{sd}, s{sd}, {2 + sh}')

TSCH = {'wo': [int(c) for c in ENV('TSO', '000')], 'w2': [int(c) for c in ENV('TS2', '000')]}
def tail_parks(nxt, sw, mk=None, sch=None):
    if not XD: return None
    sch = sch or TSCH[nxt]; N = 16 if nxt == 'wo' else 56
    def extra(i):
        if i < 13 or not sum(sch): return []
        a = Asm()
        if i == 13:
            if mk: mk(a)
            a.emit('s_and_b32 s5, s2, 3')
            a.emit('s_lshl_b32 s5, s5, 2')
            a.emit(f's_and_b32 s6, s{S_CU}, 3')
            a.emit('s_add_u32 s5, s5, s6')
            a.emit('s_and_b32 s6, s2, 4')
            a.emit('s_lshl_b32 s6, s6, 1')
            a.emit(f's_lshr_b32 s7, s{S_CU}, 2')
            a.emit('s_add_u32 s6, s6, s7')
            rot_table(a, S_TB, 5, 6, nxt)
            rot_q(a, S_Q, 5)
            a.emit(f's_add_u32 s5, s5, s{S_WV}')
            a.emit('s_and_b32 s5, s5, 3')
            wvoff(a, 16, 5, 6, 2048)
        o = [l.strip() for l in a.lines]
        for t in range(sum(sch[:i - 13]), sum(sch[:i - 12])):
            o += kpos(N, t, 4, S_TB, False, S_Q) + ['s_lshl_b32 s4, s4, 17']
            o += [f'buffer_load_dwordx4 v[{128+8*t+4*j}:{131+8*t+4*j}], v{16+j}, s[{sw}:{sw+3}], s4 offen' for j in range(2)]
        return o
    return extra

def vreg(tag, t):
    if tag == 'wo': return (128 + 8 * (t - 5), False) if 5 <= t < 5 + NVO else None
    if t & 1: return None
    p = t >> 1
    if p < NV1: return (128 + 8 * p, True)
    if p < NV1 + NV2: return (32 + 8 * (p - NV1), False)
    return None

def wvoff(a, vd, sqw, snt, ldw2):
    a.emit('v_lshrrev_b32 v3, 3, v1')
    a.emit(f's_lshl_b32 s10, s{sqw}, 4')
    a.emit('v_add_u32 v3, s10, v3')
    a.emit(f'v_mul_u32_u24 v3, {ldw2}, v3')
    a.emit('v_lshrrev_b32 v2, 3, v1')
    a.emit('v_and_b32 v2, 2, v2')
    a.emit('v_xor_b32 v2, v2, v10')
    a.emit(f's_lshl_b32 s10, s{snt}, 7')
    a.emit('v_add_u32 v3, s10, v3')
    a.emit(f'v_lshl_add_u32 v{vd}, v2, 4, v3')
    a.emit('v_xor_b32 v2, 4, v2')
    a.emit(f'v_add_u32 v3, {8*ldw2}, v3')
    a.emit(f'v_lshl_add_u32 v{vd+1}, v2, 4, v3')

def park(N, t, r, vo, sw):
    return kpos(N, t, 4) + ['s_lshl_b32 s4, s4, 17'] + [f'buffer_load_dwordx4 v[{r+4*i}:{r+4*i+3}], v{vo+i}, s[{sw}:{sw+3}], s4 offen' for i in range(2)]

class ULoader(Loader):
    def run(self, variant='', tail_issue=None, ntail_vm=0, final=None, post=(), dep=None):
        a = self.a; N = self.NSTEP; d = self.S - 1; tag = self.tag
        seq = []
        def em(o):
            for x in o:
                if 'nodma' in DBG and x.endswith(' lds'): continue
                a.emit(x)
        def after(t): return len(seq) - 1 - max(i for i, x in enumerate(seq) if x == t)
        def wait(n, lg=False):
            assert n <= 63, n
            a.emit(f's_waitcnt vmcnt({n})' + (' lgkmcnt(0)' if lg else ''))
        def iw(t):
            sl = (t % self.S) * self.STAGE; v = vreg(tag, t)
            if v:
                em([f'v_add_u32 v11, {sl}, v14'] + [f'ds_write_b128 v11, v[{v[0]+4*i}:{v[0]+4*i+3}] offset:{1024*i}' for i in range(2)])
            else:
                em([f's_lshl_b32 s{S_KW}, s{S_KX}, 17'] + [x for x in self.issue_w(t, S_WD, sl)])
                seq.extend([t] * 2)
        def ix(t, k):
            em(self.issue_x(S_XD, None, (t % self.S) * self.STAGE, k)); seq.extend([t] * 4)
        rot_table(a, S_TB, S_MT, S_NT, tag)
        a.emit(f'v_lshl_add_u32 v14, v1, 4, s{S_WD}')
        dep_pre(a, tag)
        for t in range(d):
            em(kpos(N, t, S_KX)); iw(t)
            a.emit(f's_lshl_b32 s{88+t}, s{S_KX}, 11')
        for t in range(d, N):
            v = vreg(tag, t)
            if v and not v[1]:
                em(park(N, t, v[0], self.VWD, SW)); seq.extend(['V'] * 2)
        self.npre = len(seq)
        dep()
        for t in range(d): ix(t, 88 + t)
        wait(after(0), True)
        if tag == 'w2': lstamp(a, 2)
        a.emit('s_barrier')
        for i in range(N):
            t = i + d
            if i % 4 == 0 and post and t < N:
                a.emit('s_waitcnt lgkmcnt(0)')
                em(post)
            if t < N:
                em(kpos(N, t, S_KX)); iw(t)
                a.emit(f's_lshl_b32 s{S_KX}, s{S_KX}, 11')
                ix(t, S_KX)
            if t == N - 1: tail_issue(); seq.extend(['T'] * ntail_vm)
            if i + 1 < N: wait(after(i + 1), not post or t == N)
            else: final()
            a.emit('s_barrier')

EBAR = ENV('EBAR', 'x').split(',')
S_FL = 87
def dep_pre(a, kind):
    if ONE and kind in ('wo', 'w1'):
        a.emit(f's_add_u32 s3, s{S_LAYER}, s{S_WV}')
        a.emit('s_cmp_lg_u32 s3, 4')
        a.emit(f's_cbranch_scc1 L_{kind}_chk')
        if kind == 'wo': a.emit(f's_load_dwordx2 s[{SC}:{SC+1}], s[0:1], 72')
        else: srd(a, SO, 'ws0', WS_FL, 32768)
        a.emit(f's_mov_b32 s{S_CNT}, 0x100000')
        if kind == 'wo':
            a.emit('s_waitcnt lgkmcnt(0)')
            a.emit(f's_and_b32 s{SC+1}, s{SC+1}, 0xffff')
            a.emit(f's_mov_b32 s{SC+2}, 256')
            a.emit(f's_mov_b32 s{SC+3}, 0x00020000')
            a.emit('v_lshlrev_b32 v2, 2, v1')
        else:
            a.emit('v_lshrrev_b32 v2, 2, v1')
            a.emit('v_and_b32 v3, 3, v1')
            a.emit('v_lshlrev_b32 v2, 8, v2')
            a.emit('v_lshl_add_u32 v2, v3, 4, v2')
        a.label(f'L_{kind}_chkl')
        if kind == 'wo': a.emit(f'buffer_load_dword v12, v2, s[{SC}:{SC+3}], 0 offen sc1')
        else: a.emit(f'buffer_load_dwordx4 v[12:15], v2, s[{SO}:{SO+3}], 0 offen sc1')
        a.emit(f's_sub_u32 s{S_CNT}, s{S_CNT}, 1')
        a.emit(f's_cbranch_scc1 L_{kind}_chk')
        a.emit('s_waitcnt vmcnt(0)')
        if kind == 'wo': a.emit('v_cmp_ne_u32 vcc, 0x01010101, v12')
        else:
            a.emit('v_and_b32 v12, v12, v13')
            a.emit('v_and_b32 v14, v14, v15')
            a.emit('v_and_b32 v12, v12, v14')
            a.emit('v_cmp_ne_u32 vcc, 1, v12')
        a.emit(f's_cbranch_vccnz L_{kind}_chkl')
        a.label(f'L_{kind}_chk')

def dep_wait(a, kind, halo=False, skip_first=False, first=None, preg=None, postf=None):
    if skip_first and not ONE:
        a.emit(f's_cmp_eq_u32 s{S_TSI}, 1')
        a.emit(f's_cbranch_scc1 L_{kind}_dep')
    srd(a, SO, 'ws0', WS_FL, 32768)
    if ONE and kind == 'wo':
        a.emit(f's_cmp_lg_u32 s{S_LAYER}, 0')
        a.emit(f's_cbranch_scc1 L_{kind}_nofirst')
        first()
        a.label(f'L_{kind}_nofirst')
    a.emit(f's_lshl_b32 s3, s{S_TSI}, 12')
    a.emit(f's_lshl_b32 s4, s{S_MT}, 8')
    a.emit('s_add_u32 s3, s3, s4')
    a.emit('s_sub_u32 s3, s3, 4096')
    a.emit('v_and_b32 v2, 15, v1')
    a.emit('v_lshlrev_b32 v2, 2, v2')
    if halo:
        a.emit('s_min_u32 s4, s4, 256')
        a.emit('s_sub_u32 s3, s3, s4')
        a.emit('v_lshlrev_b32 v3, 4, v1')
        a.emit('v_and_b32 v3, s4, v3')
        a.emit('v_add_u32 v2, v2, v3')
    a.emit('v_mov_b32 v3, 1')
    a.emit(f's_mov_b32 s{S_CNT}, 0x100000')
    a.emit(f's_cmp_lg_u32 s{S_WV}, 4')
    a.emit('s_barrier')
    a.emit(f's_cbranch_scc1 L_{kind}_{"nofl" if postf else "dep"}')
    if kind == 'w2': lstamp(a, 0)
    a.emit('s_mov_b64 exec, 1')
    a.emit(f'buffer_store_dword v3, off, s[{SO}:{SO+3}], s{S_FL} sc1')
    a.emit('s_mov_b64 exec, -1')
    if postf:
        a.label(f'L_{kind}_nofl')
        a.emit('s_mov_b32 s5, s3')
        postf()
        a.emit('s_mov_b32 s3, s5')
        a.emit(f's_cmp_lg_u32 s{S_WV}, 4')
        a.emit(f's_cbranch_scc1 L_{kind}_dep')
    a.label(f'L_{kind}_poll')
    a.emit(f'buffer_load_dword v3, v2, s[{SO}:{SO+3}], s3 offen sc1')
    a.emit(f's_sub_u32 s{S_CNT}, s{S_CNT}, 1')
    a.emit(f's_cbranch_scc1 L_{kind}_dep')
    a.emit('s_waitcnt vmcnt(0)')
    a.emit('v_cmp_ne_u32 vcc, 1, v3')
    a.emit(f's_cbranch_vccnz L_{kind}_poll')
    a.label(f'L_{kind}_dep')
    if kind == 'w2': lstamp(a, 1)
    if preg: preg()
    if preg and kind == 'w2': lstamp(a, 2)
    a.emit('s_barrier')

LGO = 163840 - 64
def dep_early(a):
    srd(a, SO, 'ws0', WS_FL, 32768)
    a.emit(f's_lshl_b32 s86, s{S_TSI}, 12')
    a.emit(f's_lshl_b32 s4, s{S_MT}, 8')
    a.emit('s_add_u32 s86, s86, s4')
    a.emit('s_sub_u32 s86, s86, 4096')
    a.emit('v_and_b32 v12, 15, v1')
    a.emit('v_lshlrev_b32 v12, 2, v12')
    a.emit('v_mov_b32 v3, 0')
    a.emit(f'v_mov_b32 v2, {LGO}')
    a.emit('ds_write_b32 v2, v3')
    a.emit('v_mov_b32 v13, 1')
    a.emit(f's_mov_b32 s{S_CNT}, 0x100000')
    a.emit(f's_cmp_lg_u32 s{S_WV}, 4')
    a.emit('s_waitcnt lgkmcnt(0)')
    a.emit('s_barrier')
    a.emit('s_cbranch_scc1 L_w2_go')
    lstamp(a, 0)
    a.emit('s_mov_b64 exec, 1')
    a.emit(f'buffer_store_dword v13, off, s[{SO}:{SO+3}], s{S_FL} sc1')
    a.emit('s_mov_b64 exec, -1')
    a.label('L_w2_poll')
    a.emit(f'buffer_load_dword v3, v12, s[{SO}:{SO+3}], s86 offen sc1')
    a.emit(f's_sub_u32 s{S_CNT}, s{S_CNT}, 1')
    a.emit('s_cbranch_scc1 L_w2_rel')
    a.emit('s_waitcnt vmcnt(0)')
    a.emit('v_cmp_eq_u32 vcc, 0, v3')
    a.emit('s_cbranch_vccnz L_w2_poll')
    a.label('L_w2_rel')
    a.emit('ds_write_b32 v2, v13')
    lstamp(a, 1)
    a.emit('s_branch L_w2_dep')
    a.label('L_w2_go')
    a.emit(f's_mov_b32 s{S_CNT}, 0x2000000')
    a.label('L_w2_gol')
    a.emit('ds_read_b32 v3, v2')
    a.emit(f's_sub_u32 s{S_CNT}, s{S_CNT}, 1')
    a.emit('s_cbranch_scc1 L_w2_dep')
    a.emit('s_waitcnt lgkmcnt(0)')
    a.emit('v_cmp_eq_u32 vcc, 0, v3')
    a.emit('s_cbranch_vccnz L_w2_gol')
    a.label('L_w2_dep')

def late_flag(a):
    a.emit(f's_cmp_lg_u32 s{S_WV}, 4')
    a.emit('s_cbranch_scc1 L_w2_nolate')
    a.emit('v_mov_b32 v3, 2')
    a.emit('s_mov_b64 exec, 1')
    a.emit(f'buffer_store_dword v3, off, s[{SO}:{SO+3}], s{S_FL} sc1')
    a.emit('s_mov_b64 exec, -1')
    a.label('L_w2_nolate')

def late_check(a):
    a.emit(f's_mov_b32 s{S_CNT}, 0x100000')
    a.label('L_w2_lchk')
    a.emit('v_cmp_ne_u32 vcc, 2, v13')
    a.emit('s_cbranch_vccz L_w2_lok')
    a.emit(f'buffer_load_dword v13, v12, s[{SO}:{SO+3}], s86 offen sc1')
    a.emit(f's_sub_u32 s{S_CNT}, s{S_CNT}, 1')
    a.emit('s_waitcnt vmcnt(0)')
    a.emit('s_cbranch_scc0 L_w2_lchk')
    a.label('L_w2_lok')
    if TS: a.emit(f's_mov_b32 s58, s{S_CNT}')
    lstamps_out(a, 'w2')

def gbar(a, kind):
    if not MEGA or (EARLY and kind == 'w2'): return
    if kind == 'attn':
        a.emit(f's_cmp_eq_u32 s{S_LAYER}, 0')
        a.emit('s_cbranch_scc1 L_attn_nog')
    a.emit('s_barrier')
    if kind == 'attn': a.label('L_attn_nog')

def next_phase(a, kind):
    nxt = {'attn': 'wo', 'wo': 'w1', 'w1': 'w2', 'w2': 'attn'}[kind]
    if kind == 'w2':
        a.emit(f's_mov_b32 s{S_LAYER}, 1')
        a.emit(f's_add_u32 s12, s22, {WS_X2}')
        a.emit('s_addc_u32 s13, s23, 0')
        a.emit(f's_add_u32 s34, s22, {LSTR}')
        a.emit('s_addc_u32 s35, s23, 0')
    a.emit(f's_add_u32 s{S_TSI}, s{S_TSI}, 1')
    a.emit(f's_branch L_{nxt}_body')

def last_check(a, kind):
    if kind == 'w2' or (kind == 'attn' and not ONE):
        a.emit(f's_cmp_eq_u32 s{S_LAYER}, {0 if kind == "attn" else 1}')
        a.emit(f's_cbranch_scc1 L_{kind}_end')

def compute_end(a, kind):
    if not MEGA:
        stamps_out(a, kind)
        a.emit('s_endpgm')
        return
    if not TS: last_check(a, kind)
    if kind in EBAR: a.emit('s_barrier')
    if not (EARLY and kind == 'w1'):
        a.emit('s_waitcnt vmcnt(0)')
        a.emit('s_barrier')
    if TS:
        stamps_out(a, kind)
        last_check(a, kind)
    stamp(a, 0, nowait=True)
    next_phase(a, kind)

def loader_end(a, kind, check=True):
    if MEGA:
        if kind == 'w2' and not EARLY: lstamps_out(a, 'w2')
        if check: last_check(a, kind)
        a.emit(f's_lshl_b32 s{S_FL}, s{S_TSI}, 12')
        a.emit(f's_lshl_b32 s4, s{S_MT}, 8')
        a.emit(f's_add_u32 s{S_FL}, s{S_FL}, s4')
        a.emit(f's_lshl_b32 s4, s{S_NT}, 2')
        a.emit(f's_add_u32 s{S_FL}, s{S_FL}, s4')
        next_phase(a, kind)

def pf_weights(a, sd, which, size, ldw2, R, sh, L, LMn, tilebytes, NI, vd, row0=0, qkv=False):
    if 'nopf' in DBG: return 0
    srd(a, sd, which, 0, size)
    a.emit(f's_and_b32 s3, s{S_WV}, 3')
    a.emit(f's_mul_i32 s3, s3, {NI * (64 >> sh)}')
    a.emit(f's_mul_i32 s4, s{S_CU}, {R}')
    a.emit('s_add_u32 s3, s3, s4')
    if row0: a.emit(f's_add_u32 s3, s3, {row0}')
    a.emit(f'v_lshrrev_b32 v2, {sh}, v1')
    a.emit('v_add_u32 v2, s3, v2')
    a.emit(f'v_mul_u32_u24 v2, {ldw2}, v2')
    a.emit(f'v_and_b32 v3, {(1 << sh) - 1}, v1')
    if L < (1 << sh): a.emit(f'v_min_u32 v3, {L-1}, v3')
    if qkv:
        a.emit('v_lshrrev_b32 v12, 2, v3')
        a.emit('v_lshl_add_u32 v2, v12, 11, v2')
        a.emit('v_and_b32 v3, 3, v3')
    a.emit('v_lshl_add_u32 v2, v3, 7, v2')
    a.emit('s_and_b32 s3, s2, 7')
    a.emit(f's_lshr_b32 s3, s3, {4 - LMn}')
    a.emit(f's_mul_i32 s3, s3, {(1 << (5 - LMn)) * tilebytes}')
    for i in range(NI):
        a.emit(f'buffer_load_dword v{vd+i}, v2, s[{sd}:{sd+3}], s3 offen')
        if i + 1 < NI: a.emit(f's_add_u32 s3, s3, {(64 >> sh) * ldw2}')
    return NI

_pfc = [0]
def pf_code(a, start, end, vd, forward=True):
    if 'nopfc' in DBG: return 0
    _pfc[0] += 1
    lab = f'L_pfc{_pfc[0]}'
    a.emit('s_getpc_b64 s[4:5]')
    a.label(lab)
    if forward:
        a.emit(f's_add_u32 s4, s4, {start}-{lab}')
        a.emit('s_addc_u32 s5, s5, 0')
    else:
        a.emit(f's_sub_u32 s4, s4, {lab}-{start}')
        a.emit('s_subb_u32 s5, s5, 0')
    a.emit(f's_and_b32 s3, s{S_WV}, 3')
    a.emit('s_lshl_b32 s3, s3, 13')
    a.emit('v_lshl_add_u32 v2, v1, 7, s3')
    a.emit(f'v_min_u32 v2, {end}-{start}-4, v2')
    a.emit(f'global_load_dword v{vd}, v2, s[4:5]')
    return 1

def wbase(a, vd, vt, g='v2'):
    a.emit(f'v_bfe_u32 v{vd}, v1, 2, 2')
    a.emit(f'v_lshl_add_u32 v{vd}, {g}, 3, v{vd}')
    a.emit(f'v_lshlrev_b32 v{vd}, 7, v{vd}')
    a.emit(f'v_and_b32 v{vt}, 3, v1')
    a.emit(f'v_lshl_add_u32 v{vd}, v{vt}, 3, v{vd}')
    a.emit(f'v_bfe_u32 v{vt}, v1, 3, 2')
    a.emit(f'v_lshl_add_u32 v{vd}, v{vt}, 5, v{vd}')


def code_touch(a, start, end, nb, sd=SX):
    if ENV('CT', '1') == '0': return
    _pfc[0] += 1
    lab = f'L_pfc{_pfc[0]}'
    a.emit(f's_cmp_lg_u32 s{S_LAYER}, 0')
    a.emit(f's_cbranch_scc1 {lab}_skip')
    a.emit('s_getpc_b64 s[4:5]')
    a.label(lab)
    a.emit(f's_lshl_b32 s3, s{S_CU}, 2')
    a.emit(f's_add_u32 s3, s3, s{S_WV}')
    a.emit(f's_mul_i32 s3, s3, {nb}')
    a.emit(f's_min_u32 s3, s3, {end}-{start}-{nb}')
    a.emit(f's_add_i32 s3, s3, {start}-{lab}')
    a.emit('s_ashr_i32 s6, s3, 31')
    a.emit('s_add_u32 s4, s4, s3')
    a.emit('s_addc_u32 s5, s5, s6')
    for i in range(nb // 64):
        a.emit(f's_load_dword s{sd+i}, s[4:5], {64*i}')
    a.label(f'{lab}_skip')

def loader_first(a, kind):
    if ENV('LF', '1') == '0': return
    L = a.lines
    ib = max(i for i, l in enumerate(L) if l.strip() == f's_cbranch_scc1 L_{kind}_loader')
    il = L.index(f'L_{kind}_loader:')
    ie = L.index(f'L_{kind}_end:') + 2
    assert L[ie - 1].strip() == 's_endpgm' and L[ib - 1].strip().startswith('s_cmp_ge_u32')
    L[ib - 1] = L[ib - 1].replace('s_cmp_ge_u32', 's_cmp_lt_u32')
    L[ib] = f'  s_cbranch_scc1 L_{kind}_compute'
    a.lines = L[:ib + 1] + L[il:ie] + [f'L_{kind}_compute:'] + L[ib + 1:il] + L[ie:]

def clear_flags(a, part):
    if not ONE: return
    if part == 0: a.emit(f's_load_dwordx2 s[{SC}:{SC+1}], s[0:1], 72')
    a.emit(f's_or_b32 s3, s{S_LAYER}, s{S_WV}')
    a.emit(f's_cbranch_scc1 L_clr_skip{part}')
    if part == 0:
        srd(a, SP, 'ws0', WS_FL, 262144)
        a.emit('s_lshl_b32 s3, s2, 10')
        a.emit('v_lshlrev_b32 v2, 4, v1')
        a.emit(f'buffer_store_dwordx4 v[128:131], v2, s[{SP}:{SP+3}], s3 offen sc1')
    else:
        a.emit('v_mov_b32 v3, 1')
        a.emit(f's_and_b32 s{SC+1}, s{SC+1}, 0xffff')
        a.emit(f's_mov_b32 s{SC+2}, 256')
        a.emit(f's_mov_b32 s{SC+3}, 0x00020000')
        a.emit('s_mov_b64 exec, 1')
        a.emit('s_waitcnt vmcnt(0)')
        a.emit(f'buffer_store_byte v3, off, s[{SC}:{SC+3}], s2 sc1')
        a.emit('s_mov_b64 exec, -1')
    a.label(f'L_clr_skip{part}')
```

```python
from common import *

def gen_gemm64x(a, kind, tsidx, side):
    K = 1024 if kind == 'wo' else 3584
    lda2 = K * 2; ldw2 = 2048
    LM = int(ENV('LM_' + kind.upper(), '2'))
    N = K // 64; NI = N // 4
    G0, GW = (131072, 28672) if kind == 'wo' else (0, 0)
    def slot(t):
        g = G0 + (t >> 2) * 32768
        if g >= 163840: g = GW + (g - 163840) % (163840 - GW)
        return g + (t & 3) * 8192
    NPRE = int(ENV('NPREO', '16')) if kind == 'wo' else int(ENV('NPRE', '20'))
    LRES = 0 if kind == 'wo' else 131072
    PSTEP = 64 if kind == 'w2' else 1024
    body = f'L_{kind}_body'; end = f'L_{kind}_end'
    VXO, VWB, VWA, VO = 4, 6, 26, 12
    DX = int(ENV('DX', '4'))
    XR = 32; FW = [160, 192]; ACC = 224; RES = 160; BIA = 192
    acc = lambda jn, jm: ACC + (jn * 2 + jm) * 4
    fx = lambda r, ks, jm: XR + 16 * r + (ks * 2 + jm) * 4
    fw = lambda s, ks, jn: FW[s] + (ks * 4 + jn) * 4
    a.label(f'L_{kind}_c0')
    a.label(body)
    tile_map(a, LM, end)
    a.emit(f's_cmp_ge_u32 s{S_WV}, 4')
    a.emit(f's_cbranch_scc1 L_{kind}_loader')
    a.emit('v_and_b32 v3, 15, v1')
    a.emit('v_lshrrev_b32 v2, 4, v1')
    a.emit(f's_lshl_b32 s8, s{S_MT}, 7')
    a.emit(f's_lshl_b32 s9, s{S_WV}, 5')
    a.emit('s_add_u32 s8, s8, s9')
    a.emit(f's_mul_i32 s9, s8, {lda2}')
    a.emit(f'v_lshl_add_u32 v{VXO}, v1, 4, s9')
    a.emit(f'v_add_u32 v{VXO+1}, {16*lda2}, v{VXO}')
    a.emit('v_add_u32 v13, s8, v3')
    a.emit(f's_lshl_b32 s10, s{S_NT}, 7')
    a.emit('v_lshl_add_u32 v14, v2, 3, s10')
    a.emit('v_and_b32 v16, 1, v2')
    a.emit('v_lshrrev_b32 v17, 1, v2')
    if kind == 'w2':
        a.emit('v_lshlrev_b32 v16, 5, v16')
        a.emit('v_lshl_add_u32 v16, v17, 4, v16')
        a.emit('v_add_u32 v16, s10, v16')
        xpitch(a, 7, True)
        a.emit(f'v_mad_u32_u24 v{VO}, v13, s7, v16')
    else:
        a.emit('v_lshl_add_u32 v16, v16, 1, v17')
        a.emit('v_lshlrev_b32 v16, 8, v16')
        a.emit('v_lshl_add_u32 v16, v3, 4, v16')
        a.emit(f's_add_u32 s9, s8, s{S_NT}')
        a.emit('s_lshl_b32 s9, s9, 11')
        a.emit(f'v_add_u32 v{VO}, s9, v16')
    a.emit('v_lshl_add_u32 v18, v17, 4, v13')
    a.emit('v_lshlrev_b32 v18, 3, v18')
    a.emit('v_and_b32 v16, 1, v2')
    a.emit('v_lshl_add_u32 v18, v16, 2, v18')
    a.emit(f's_lshl_b32 s10, s{S_NT}, 14')
    a.emit('v_add_u32 v18, s10, v18')
    wbase(a, VWB, 17)
    for i in range(1, 4): a.emit(f'v_xor_b32 v{VWB+i}, {32*i}, v{VWB}')
    a.emit('v_lshrrev_b32 v15, 1, v2')
    if kind == 'wo':
        a.emit('v_lshrrev_b32 v17, 1, v3')
        a.emit('v_xor_b32 v15, v15, v17')
        a.emit('v_lshlrev_b32 v15, 4, v15')
        a.emit('v_lshl_add_u32 v15, v3, 7, v15')
    else:
        a.emit('v_lshlrev_b32 v15, 8, v15')
        a.emit('v_lshl_add_u32 v15, v3, 4, v15')
    a.emit('v_lshl_add_u32 v15, v16, 3, v15')
    a.emit(f's_lshl_b32 s8, s{S_WV}, 12')
    if LRES: a.emit(f's_add_u32 s8, s8, {LRES}')
    a.emit('v_add_u32 v15, s8, v15')
    a.emit('s_mov_b32 s11, 0xffff0000')
    a.emit(f's_mov_b32 s{S_SLOT}, {G0}')
    SK = SC
    rot_table(a, 8, S_MT, S_NT, kind)
    for r in range(4):
        for x in kpos(N, r, SK + r, 8, False): a.emit(x)
        a.emit(f's_lshl_b32 s{SK+r}, s{SK+r}, 11')
    rot_q(a, S_XG, S_MT, 11)
    a.emit(f's_mov_b32 s{S_KT}, {"s%d" % S_XG if N == 16 else 0}')
    if kind == 'wo':
        for i in range(32): a.emit(f'v_mov_b32 v{ACC+i}, 0')
        srd(a, SX, 'ws', WS_O, 4 * MB)
        srd(a, SO, 'ws', WS_X1, 4 * MB)
    else:
        srd(a, SB, 'b2', 0, 2048)
        for jn in range(4):
            a.emit(f'buffer_load_dwordx2 v[{BIA+2*jn}:{BIA+2*jn+1}], v14, s[{SB}:{SB+3}], 0 offen offset:{jn*32}')
        srd(a, SX, 'ws', WS_H, 2048 * 7168)
        srd(a, SO, 'out', 0, 4 * MB)
        srd(a, SR, 'ws0', WS_X2, 4 * MB)
        a.emit(f's_cmp_eq_u32 s{S_LAYER}, 0')
        a.emit(f's_cselect_b64 s[{SO}:{SO+1}], s[{SR}:{SR+1}], s[{SO}:{SO+1}]')
        a.emit(f's_lshl_b32 s{SO+2}, s7, 11')
    srd(a, ST, 'ws', WS_ST if kind == 'wo' else WS_ST2, 16 * 16384)
    if kind == 'wo': code_touch(a, 'L_w1_c0', 'L_w1_c1', 128, SW)
    def addr():
        o = [f'v_add_u32_e64 v{VWA+i}, s{S_SLOT}, v{VWB+i}' for i in range(4)]
        o += [f's_add_u32 s{S_SLOT}, s{S_SLOT}, 32768', f's_cmp_eq_u32 s{S_SLOT}, 163840', f's_cselect_b32 s{S_SLOT}, {GW}, s{S_SLOT}']
        return o
    def xk(r):
        o = [f's_add_u32 s{S_KX}, s{S_KT}, s{SK+r}']
        if N == 16: o += [f's_and_b32 s{S_KX}, s{S_KX}, 0x7fff']
        else:
            o += [f's_sub_u32 s{S_KW}, s{S_KX}, {N*2048}', f's_cselect_b32 s{S_KX}, s{S_KX}, s{S_KW}']
            return ['\n  '.join(o), '\n  '.join([f's_add_u32 s{S_KW}, s{S_KX}, s{S_XG}', f's_and_b32 s{S_KW}, s{S_KW}, 0x7fff',
                    f's_cmp_lt_u32 s{S_KX}, 0x8000', f's_cselect_b32 s{S_KX}, s{S_KW}, s{S_KX}'])]
        return ['\n  '.join(o)]
    def xl(r, k=S_KX):
        if 'nox' in DBG: return []
        return [f'buffer_load_dwordx4 v[{fx(r,ks,jm)}:{fx(r,ks,jm)+3}], v{VXO+jm}, s[{SX}:{SX+3}], s{k} offen offset:{ks*1024}' for jm in range(2) for ks in range(2)]
    def reads(r):
        o = []
        if 'noread' in DBG: return o
        for ks in range(2):
            for jn in range(4):
                for h in range(2):
                    d = fw(r & 1, ks, jn) + 2 * h
                    o.append(f'ds_read_b64_tr_b16 v[{d}:{d+1}], v{VWA+jn} offset:{(r&3)*8192+ks*4096+h*512}')
        return o
    def mf(r):
        o = []
        if 'nomfma' in DBG: return ['s_nop 0']
        for ks in range(2):
            for jn in range(4):
                for jm in range(2):
                    c = acc(jn, jm)
                    o.append(f'v_mfma_f32_16x16x32_bf16 v[{c}:{c+3}], v[{fw(r&1,ks,jn)}:{fw(r&1,ks,jn)+3}], v[{fx(r,ks,jm)}:{fx(r,ks,jm)+3}], v[{c}:{c+3}]')
        return o
    for x in addr(): a.emit(x)
    if kind == 'w2':
        a.emit('s_waitcnt vmcnt(0)')
        for jn in range(4):
            for jm in range(2):
                c = acc(jn, jm)
                for h in range(2):
                    a.emit(f'v_lshlrev_b32 v{c+2*h}, 16, v{BIA+2*jn+h}')
                    a.emit(f'v_and_b32 v{c+2*h+1}, s11, v{BIA+2*jn+h}')
    a.emit(f's_mov_b32 s{S_CNT}, {N // DX}')
    for r in range(DX - 1):
        for x in xk(r & 3): a.emit(x)
        a.emit(f's_mov_b32 s{SR+r}, s{S_KX}')
        if r == 3: a.emit(f's_add_u32 s{S_KT}, s{S_KT}, 8192')
    a.emit('s_waitcnt lgkmcnt(0)')
    a.emit('s_barrier')
    for r in range(DX - 1):
        for x in xl(r, SR + r): a.emit(x)
        if r == 2:
            for x in reads(0): a.emit(x)
    if TS:
        a.emit(f's_waitcnt vmcnt({4*DX-8})')
        stamp(a, 1)
    XP = int(ENV('XPOS', '8'))
    a('.p2align 3')
    a.label(f'L_{kind}_loop')
    for r in range(DX):
        a.emit(f's_waitcnt vmcnt({4*DX-8}) lgkmcnt(0)')
        if r & 3 == 3: a.emit('s_barrier')
        sd = reads((r + 1) % DX)
        if r & 3 == 3: sd = addr() + sd
        xs = xk((r + 3) & 3) + xl((r - 1) % DX)
        if r & 3 == 0: xs += [f's_add_u32 s{S_KT}, s{S_KT}, 8192']
        if r == 0: xs += [f's_sub_u32 s{S_CNT}, s{S_CNT}, 1\n  s_cmp_eq_u32 s{S_CNT}, 0\n  s_cselect_b32 s{SX+2}, 0, s{SX+2}']
        if r == DX - 1: xs += [f's_cmp_lg_u32 s{S_CNT}, 0']
        m = mf(r)
        interleave(a, m[:XP], sd, lead=1, per=(len(sd) + XP - 1) // XP)
        interleave(a, m[XP:], xs, lead=1, per=1)
    a.emit(f's_cbranch_scc1 L_{kind}_loop')
    stamp(a, 2)
    a.emit('s_waitcnt lgkmcnt(0)')
    if kind == 'wo':
        for jn in range(1, 4): a.emit(f'v_xor_b32 v{VWA+jn}, {32*jn}, v15')
    for jm in range(2):
        for jn in range(4):
            r = RES + (jn * 2 + jm) * 2
            if kind == 'wo': a.emit(f'ds_read_b64 v[{r}:{r+1}], v{VWA+jn if jn else 15} offset:{jm*2048}')
            else: a.emit(f'ds_read_b64 v[{r}:{r+1}], v15 offset:{jm*2048+jn*512}')
    for i in range(4): a.emit(f'v_mov_b32 v{20+i}, 0')
    a.emit(f's_mov_b32 s3, {16*2048}' if kind == 'wo' else 's_lshl_b32 s3, s7, 4')
    a.emit('s_mov_b32 s10, 0x3f803f80')
    D = 176; U = 6
    for jm in range(2):
        for p in range(2):
            d = D + (jm * 2 + p) * 4
            for q in range(2):
                c = acc(2 * p + q, jm); r = RES + ((2 * p + q) * 2 + jm) * 2
                a.emit(f's_waitcnt lgkmcnt({7 - (jm * 4 + 2 * p + q)})')
                for h in range(2):
                    a.emit(f'v_lshlrev_b32 v{U+2*h}, 16, v{r+h}')
                    a.emit(f'v_and_b32 v{U+1+2*h}, s11, v{r+h}')
                for h in range(2):
                    a.emit(f'v_pk_add_f32 v[{c+2*h}:{c+2*h+1}], v[{c+2*h}:{c+2*h+1}], v[{U+2*h}:{U+1+2*h}]')
                a.emit(f'v_cvt_pk_bf16_f32 v{d+2*q}, v{c}, v{c+1}')
                a.emit(f'v_cvt_pk_bf16_f32 v{d+2*q+1}, v{c+2}, v{c+3}')
            a.emit('s_nop 1')
            a.emit(f'v_permlane16_swap_b32 v{d}, v{d+2}')
            a.emit(f'v_permlane16_swap_b32 v{d+1}, v{d+3}')
            a.emit(f'buffer_store_dwordx4 v[{d}:{d+3}], v{VO}, s[{SO}:{SO+3}], {"s3" if jm else "0"} offen offset:{p*PSTEP}{stf(kind)}')
    for jm in range(2):
        for i in range(8):
            d = D + jm * 8 + i
            a.emit(f'v_dot2_f32_bf16 v{20+jm}, v{d}, s10, v{20+jm}')
            a.emit(f'v_dot2_f32_bf16 v{22+jm}, v{d}, v{d}, v{22+jm}')
    a.emit('s_nop 2')
    a.emit('v_permlane32_swap_b32 v20, v21')
    a.emit('v_permlane32_swap_b32 v22, v23')
    a.emit('v_add_f32 v20, v20, v21')
    a.emit('v_add_f32 v22, v22, v23')
    a.emit('s_nop 1')
    a.emit('v_permlane16_swap_b32 v20, v22')
    a.emit('v_add_f32 v20, v20, v22')
    a.emit(f'buffer_store_dword v20, v18, s[{ST}:{ST+3}], 0 offen{stf(kind)}')
    compute_end(a, kind)
    a.label(f'L_{kind}_loader')
    L = Loader(a, kind, K, lda2, ldw2, [0], 128, 2, 8192, xblk=True)
    a.emit(f's_add_u32 s9, s{S_WV}, s{S_MT}')
    a.emit('s_and_b32 s9, s9, 3')
    a.emit(f's_lshl_b32 s{S_XD}, s9, 12')
    a.emit(f's_lshl_b32 s{S_WD}, s9, 11')
    a.emit('v_and_b32 v10, 7, v1')
    wvoff(a, L.VWD, 9, S_NT, ldw2)
    if kind == 'wo': srd(a, SW, 'wo', 0, 2 * MB)
    else: srd(a, SW, 'w2', 0, 3584 * 2048)
    rot_table(a, S_TB, S_MT, S_NT, kind)
    rot_q(a, S_Q, S_MT)
    a.emit(f'v_lshl_add_u32 v14, v1, 4, s{S_WD}')
    NVT = sum(TSCH[kind])
    assert NPRE - int(ENV('NPF' + kind[1].upper(), '10')) <= 18
    seq = [t for t in range(NVT) for j in range(2)]
    def em(o):
        for x in o:
            if 'nodma' in DBG and x.endswith(' lds'): continue
            a.emit(x)
    def after(t): return len(seq) - 1 - max(i for i, x in enumerate(seq) if x == t)
    NPK = int(ENV('NPK', '0')) if kind == 'w2' else 0
    rest = list(range(NPRE, N))
    pk = {NPRE + j: 32 + 8 * j for j in range(NPK)}
    NPKE = int(ENV('NPKE', '0'))
    THR = int(ENV('THR' + kind[1].upper(), '63'))
    def iw(t):
        if t in pk:
            if t >= NPRE and t == min(pk): a.emit(f's_waitcnt vmcnt({min(63, after(max(pk)))})')
            em([f'v_add_u32 v11, {slot(t)}, v14'] + [f'ds_write_b128 v11, v[{pk[t]+4*i}:{pk[t]+4*i+3}] offset:{1024*i}' for i in range(2)])
        else:
            em(kpos(N, t, S_KW, S_TB, False, S_Q) + [f's_lshl_b32 s{S_KW}, s{S_KW}, 17'] + L.issue_w(t, S_WD, slot(t)))
            seq.extend([t] * 2)
    def thr(n=THR):
        if n < 63: a.emit(f's_waitcnt vmcnt({n})')
    dep_pre(a, kind)
    import sides
    post = sides.stouch_post(a, kind)
    first = lambda: sides.qkv(a, 0, 'finish', min(len(seq), THR + 2))
    NPF = int(ENV('NPF' + kind[1].upper(), '10'))
    for t in range(NVT, NPRE - NPF): iw(t); thr()
    for t in range(NVT):
        a.emit(f's_waitcnt vmcnt({min(63, after(t))})')
        pk[t] = 128 + 8 * t; iw(t); del pk[t]
    def parks(l):
        for t in l:
            em(kpos(N, t, 4, S_TB, False, S_Q) + ['s_lshl_b32 s4, s4, 17'] + [f'buffer_load_dwordx4 v[{pk[t]+4*i}:{pk[t]+4*i+3}], v{L.VWD+i}, s[{SW}:{SW+3}], s4 offen' for i in range(2)])
            seq.extend([t] * 2); thr(min(THR, 56))
    def postf():
        for t in range(NPRE - NPF, NPRE): iw(t)
        parks(sorted(pk)[NPKE:])
    parks(sorted(pk)[:NPKE])
    dep_wait(a, kind, skip_first=kind == 'wo', first=first, preg=lambda: a.emit(f's_waitcnt vmcnt({min(after(3), 63)}) lgkmcnt(0)'),
             postf=postf)
    def resid():
        if kind == 'wo':
            srd_xs(a, SR)
            L.xoff_rows(2048)
        else:
            srd(a, SR, 'ws', WS_X1, 4 * MB)
            L.xoff_blk(2048)
        a.emit(f's_lshl_b32 s4, s{S_NT}, {7 if kind == "wo" else 11}')
        em(L.xdma(S_XD, LRES, SR, 4, kind == 'w2')); seq.extend(['R'] * 4)
    nxt = NPRE; LT = int(ENV('LTHR', '63'))
    for j in range(NI):
        j0 = NPK // 4
        want = NPRE + NPK + max(0, -(-(j + 1 - j0) * (len(rest) - NPK) // (NI - 2 - j0)))
        while nxt < min(N, want, 4 * j + 20):
            em(post if nxt not in pk else []); iw(nxt); nxt += 1; thr(LT)
        if j == (2 if kind == 'wo' else 11): resid()
        need = [t for t in range(4 * j + 4, min(N, 4 * j + 8))]
        assert all(t < nxt for t in need)
        a.emit(f's_waitcnt vmcnt({min(63, min(after(t) for t in need)) if need else 0})' + (' lgkmcnt(0)' if NPK else ''))
        a.emit('s_barrier')
    assert nxt == N
    loader_end(a, kind)
    a.label(end)
    a.emit('s_endpgm')
    loader_first(a, kind)
    a.label(f'L_{kind}_c1')
    return 163840
```

```python
from common import *

def big_loop(a, tag, N, S, STAGE, naddr, VB, VA, reads, mf, variants=None, select=None, post=None):
    def addr():
        o = [f'v_add_u32_e64 v{VA+i}, s{S_SLOT}, v{VB+i}' for i in range(naddr)]
        o += [f's_add_u32 s{S_SLOT}, s{S_SLOT}, {STAGE}', f's_cmp_eq_u32 s{S_SLOT}, {S*STAGE}', f's_cselect_b32 s{S_SLOT}, 0, s{S_SLOT}']
        return o
    a.emit(f's_mov_b32 s{S_SLOT}, 0')
    for x in addr(): a.emit(x)
    a.emit(f's_mov_b32 s{S_CNT}, {N}')
    gbar(a, tag)
    a.emit('s_barrier')
    stamp(a, 1)
    for x in reads(0, 0): a.emit(x)
    a.emit('s_waitcnt lgkmcnt(0)')
    def loop(nm, m):
        a('.p2align 3')
        a.label(f'L_{tag}_loop{nm}')
        ad = addr()
        ad[-1] += f'\n  s_sub_u32 s{S_CNT}, s{S_CNT}, 1'
        interleave(a, m(0), reads(1, 1) + ad, lead=1, per=1)
        a.emit('s_waitcnt lgkmcnt(0)')
        a.emit('s_barrier')
        interleave(a, m(1), reads(0, 0) + [f's_cmp_lg_u32 s{S_CNT}, 0\n  s_nop 0'], lead=1, per=1)
        a.emit('s_waitcnt lgkmcnt(0)')
        a.emit(f's_cbranch_scc1 L_{tag}_loop{nm}')
    if variants:
        select()
        vs = list(variants.items())
        for i, (nm, m) in enumerate(vs):
            loop(nm, m)
            if i + 1 < len(vs): a.emit(f's_branch L_{tag}_post')
        a.label(f'L_{tag}_post')
        post()
        a.emit(f's_branch L_{tag}_exit')
    loop('', mf)
    a.label(f'L_{tag}_exit')
    stamp(a, 2)

def stats_loads(a, vd, halo):
    a.emit(f's_and_b32 s3, s{S_WV}, 3')
    a.emit(f's_lshl_b32 s4, s{S_MT}, 7')
    a.emit('s_lshl_b32 s5, s3, 6')
    a.emit('s_add_u32 s5, s5, s4')
    a.emit('v_add_u32 v2, s5, v1')
    a.emit('s_sub_u32 s4, s4, 16')
    a.emit('v_and_b32 v3, 15, v1')
    a.emit('v_add_u32 v3, s4, v3')
    a.emit('v_max_i32 v3, 0, v3')
    a.emit('s_cmp_ge_u32 s3, 2')
    a.emit('s_cselect_b64 vcc, -1, 0')
    a.emit('v_cndmask_b32 v2, v2, v3, vcc')
    a.emit('v_lshlrev_b32 v2, 3, v2')
    a.emit('s_mov_b32 s3, 0')
    for j in range(16):
        a.emit(f'buffer_load_dwordx2 v[{vd+2*j}:{vd+2*j+1}], v2, s[{ST}:{ST+3}], s3 offen')
        if j < 15: a.emit('s_add_u32 s3, s3, 16384')
    return 16

def stats_finish(a, vs):
    a.emit(f'v_mul_f32 v{vs}, 0x3a800000, v{vs}')
    a.emit(f'v_mul_f32 v{vs+1}, 0x3a800000, v{vs+1}')
    a.emit(f'v_fma_f32 v{vs+1}, -v{vs}, v{vs}, v{vs+1}')
    a.emit(f'v_max_f32 v{vs+1}, 0, v{vs+1}')
    a.emit(f'v_add_f32 v{vs+1}, 0x3727c5ac, v{vs+1}')
    a.emit(f'v_rsq_f32 v{vs+1}, v{vs+1}')
    a.emit('s_nop 0')

def stats_reduce_store(a, vd, LST):
    for j in range(1, 8):
        a.emit(f'v_add_f32 v{vd}, v{vd}, v{vd+2*j}')
        a.emit(f'v_add_f32 v{vd+1}, v{vd+1}, v{vd+2*j+1}')
        a.emit(f'v_add_f32 v{vd+16}, v{vd+16}, v{vd+16+2*j}')
        a.emit(f'v_add_f32 v{vd+17}, v{vd+17}, v{vd+17+2*j}')
    a.emit(f'v_add_f32 v{vd}, v{vd}, v{vd+16}')
    a.emit(f'v_add_f32 v{vd+1}, v{vd+1}, v{vd+17}')
    stats_finish(a, vd)
    a.emit(f's_and_b32 s3, s{S_WV}, 3')
    a.emit('s_lshl_b32 s5, s3, 6')
    a.emit('s_add_u32 s5, s5, 16')
    a.emit('v_add_u32 v2, s5, v1')
    a.emit('v_and_b32 v3, 15, v1')
    a.emit('s_cmp_ge_u32 s3, 2')
    a.emit('s_cselect_b64 vcc, -1, 0')
    a.emit('v_cndmask_b32 v2, v2, v3, vcc')
    a.emit('v_lshlrev_b32 v2, 2, v2')
    a.emit(f'v_add_u32 v2, {LST}, v2')
    a.emit(f'ds_write2_b32 v2, v{vd}, v{vd+1} offset0:0 offset1:160')

def gen_w1(a, tsidx, side, cs=(16, 16384, 0)):
    kind = 'w1'
    K = 1024; lda2 = 2048; ldw2 = 7168; ldo2 = 7168
    S = 3; LM = int(ENV('LM_W1', '3'))
    STAGE = 16384 + 4 * 8192
    LST = S * STAGE
    LCS = LST + 1280
    N = 16
    body = f'L_{kind}_body'; end = f'L_{kind}_end'
    VB, VA, VO = 4, 20, 12
    F = [32, 80]; ACC = 128
    acc = lambda jn, jm: ACC + (jn * 4 + jm) * 4
    fx = lambda s, jm: F[s] + jm * 4
    fw = lambda s, jn: F[s] + 16 + jn * 4
    a.label(f'L_{kind}_c0')
    if not MEGA: stub(a, f'{kind}l0_kernel', body, 0, tsidx, True)
    a.label(body)
    tile_map(a, LM, end)
    a.emit(f's_cmp_ge_u32 s{S_WV}, 4')
    a.emit(f's_cbranch_scc1 L_{kind}_loader')
    a.emit(f's_and_b32 s{S_WM}, s{S_WV}, 1')
    a.emit(f's_lshr_b32 s{S_WN}, s{S_WV}, 1')
    a.emit('v_and_b32 v3, 15, v1')
    a.emit('v_lshrrev_b32 v2, 4, v1')
    a.emit(f's_lshl_b32 s8, s{S_WM}, 13')
    a.emit(f'v_lshl_add_u32 v{VB}, v1, 4, s8')
    wbase(a, 13, 17)
    a.emit(f's_lshl_b32 s9, s{S_WN}, 6')
    a.emit('v_xor_b32 v13, s9, v13')
    a.emit(f'v_add_u32 v{VB+1}, 16384, v13')
    a.emit(f'v_xor_b32 v{VB+2}, 32, v{VB+1}')
    a.emit('v_and_b32 v16, 1, v2')
    a.emit('v_lshrrev_b32 v17, 1, v2')
    a.emit('v_bfe_u32 v13, v1, 2, 2')
    a.emit('v_lshl_add_u32 v13, v16, 3, v13')
    a.emit('v_lshl_add_u32 v13, v17, 5, v13')
    a.emit(f'v_xor_b32 v14, s{S_WN}, v16')
    a.emit('v_lshl_add_u32 v13, v13, 1, v14')
    a.emit('v_and_b32 v14, 3, v1')
    a.emit('v_lshl_add_u32 v13, v13, 2, v14')
    a.emit('v_lshlrev_b32 v13, 3, v13')
    a.emit(f'v_add_u32 v{VB+3}, {16384 + 3 * 8192}, v13')
    a.emit(f's_lshl_b32 s8, s{S_MT}, 7')
    a.emit(f's_lshl_b32 s9, s{S_WM}, 6')
    a.emit('s_add_u32 s8, s8, s9')
    a.emit(f's_mul_i32 s8, s8, {ldo2}')
    a.emit('v_lshlrev_b32 v14, 8, v17')
    a.emit('v_lshl_add_u32 v14, v3, 4, v14')
    a.emit('v_add_u32 v14, s8, v14')
    a.emit(f's_lshl_b32 s10, s{S_NT}, 11')
    a.emit(f's_lshl_b32 s9, s{S_WN}, 10')
    a.emit('s_add_u32 s9, s9, s10')
    a.emit(f'v_lshl_add_u32 v{VO}, v16, 9, v14')
    a.emit(f'v_add_u32 v{VO}, s9, v{VO}')
    a.emit(f'v_mul_u32_u24 v16, {16*ldo2}, v16')
    a.emit('s_lshr_b32 s9, s9, 1')
    a.emit(f'v_add3_u32 v{VO+1}, v16, v14, s9')
    a.emit(f's_lshl_b32 s9, s{S_WM}, 8')
    a.emit(f's_add_u32 s9, s9, {LST + 64}')
    a.emit('v_lshl_add_u32 v14, v3, 2, s9')
    a.emit(f's_lshl_b32 s9, s{S_WN}, 7')
    a.emit(f's_add_u32 s9, s9, {LCS}')
    a.emit('v_lshl_add_u32 v15, v2, 4, s9')
    a.emit(f's_lshl_b32 s9, s{S_WN}, 6')
    a.emit(f's_add_u32 s9, s9, {LCS}')
    a.emit('v_lshl_add_u32 v16, v2, 4, s9')
    for i in range(112): a.emit(f'v_mov_b32 v{ACC+i}, 0')
    a.emit('s_waitcnt lgkmcnt(0)')
    srd(a, SO, 'ws', WS_H, 2048 * 7168)
    code_touch(a, 'L_w2_c0', 'L_w2_c1', 192 if SPX else 128)
    def reads(s, ks):
        o = []
        if 'noread' in DBG: return o
        for jm in range(4):
            o.append(f'ds_read_b128 v[{fx(s,jm)}:{fx(s,jm)+3}], v{VA} offset:{jm*2048+ks*1024}')
        for jn in range(7):
            for h in range(2):
                r = fw(s, jn) + 2 * h
                o.append(f'ds_read_b64_tr_b16 v[{r}:{r+1}], v{VA+1+(jn&1 if jn < 6 else 2)} offset:{((jn>>1)*8192+h*512 if jn < 6 else h*256)+ks*4096}')
        return o
    def mf(s):
        o = []
        if 'nomfma' in DBG: return ['s_nop 0']
        for jn, jm in mf_order(7, 4):
            if True:
                c = acc(jn, jm)
                o.append(f'v_mfma_f32_16x16x32_bf16 v[{c}:{c+3}], v[{fw(s,jn)}:{fw(s,jn)+3}], v[{fx(s,jm)}:{fx(s,jm)+3}], v[{c}:{c+3}]')
        return o
    big_loop(a, kind, N, S, STAGE, 4, VB, VA, reads, mf)
    CS = 32; BI = 60; STT = 88; CK = 96; T = 100; D = 108
    for jm in range(4):
        a.emit(f'ds_read2_b32 v[{STT+2*jm}:{STT+2*jm+1}], v14 offset0:{16*jm} offset1:{160+16*jm}')
    for jn in range(7):
        a.emit(f'ds_read_b128 v[{CS+4*jn}:{CS+4*jn+3}], v{15 if jn < 6 else 16} offset:{(jn>>1)*256+(jn&1)*64}')
        a.emit(f'ds_read_b128 v[{BI+4*jn}:{BI+4*jn+3}], v{15 if jn < 6 else 16} offset:{1024+(jn>>1)*256+(jn&1)*64}')
    c0 = -2.0 * 0.7978845608028654 * 1.4426950408889634
    c1 = c0 * 0.044715
    a.emit(f'v_mov_b32 v{CK}, {f2u(c0):#x}')
    a.emit(f'v_mov_b32 v{CK+1}, {f2u(c1):#x}')
    a.emit(f'v_mov_b32 v{CK+2}, 1.0')
    a.emit('s_waitcnt lgkmcnt(0)')
    for jm in range(4):
        a.emit(f'v_mul_f32 v{STT+2*jm}, v{STT+2*jm}, v{STT+2*jm+1}')
    def tile_math(jn, jm, d):
        c = acc(jn, jm)
        seqs = []
        ST2 = f'v[{STT+2*jm}:{STT+2*jm+1}]'
        for q in range(2):
            x = c + 2 * q; t = T + 2 * q + 4 * (jn & 1)
            X = f'v[{x}:{x+1}]'; TT = f'v[{t}:{t+1}]'
            seqs.append([
              f'v_pk_fma_f32 {TT}, v[{CS+4*jn+2*q}:{CS+4*jn+2*q+1}], {ST2}, v[{BI+4*jn+2*q}:{BI+4*jn+2*q+1}] op_sel:[0,0,0] op_sel_hi:[1,0,1] neg_lo:[0,1,0] neg_hi:[0,1,0]',
              f'v_pk_fma_f32 {X}, {X}, {ST2}, {TT} op_sel:[0,1,0] op_sel_hi:[1,1,1]',
              f'v_pk_mul_f32 {TT}, {X}, {X}',
              f'v_pk_fma_f32 {TT}, {TT}, v[{CK}:{CK+1}], v[{CK}:{CK+1}] op_sel:[0,1,0] op_sel_hi:[1,1,0]',
              f'v_pk_mul_f32 {TT}, {TT}, {X}',
              f'v_exp_f32 v{t}, v{t}\n  v_exp_f32 v{t+1}, v{t+1}',
              f'v_pk_add_f32 {TT}, {TT}, v[{CK+2}:{CK+3}] op_sel_hi:[1,0]',
              f'v_rcp_f32 v{t}, v{t}\n  v_rcp_f32 v{t+1}, v{t+1}',
              f'v_pk_mul_f32 {X}, {X}, {TT}',
              f'v_cvt_pk_bf16_f32 v{d+q}, v{x}, v{x+1}'])
        for ia, ib in zip(*seqs):
            a.emit(ia); a.emit(ib)
    cnt = [0]
    def pair(t0, t1, vo, soff, big=False):
        d = D + 4 * (cnt[0] % 4); cnt[0] += 1
        tile_math(*t0, d); tile_math(*t1, d + 2)
        a.emit(f's_add_u32 s3, s10, {soff}' if big else f's_mov_b32 s3, {soff}')
        a.emit('s_nop 0')
        a.emit(f'v_permlane16_swap_b32 v{d}, v{d+2}')
        a.emit(f'v_permlane16_swap_b32 v{d+1}, v{d+3}')
        a.emit(f'buffer_store_dwordx4 v[{d}:{d+3}], v{vo}, s[{SO}:{SO+3}], s3 offen{stf(kind)}')
    pr = lambda p, jm: pair((2 * p, jm), (2 * p + 1, jm), VO, jm * 16 * ldo2 + (46 + 2 * p) * 1024 * (p > 0), p > 0)
    od = lambda jm: pair((6, jm), (6, jm + 1), VO + 1, jm * 16 * ldo2 + 32768)
    order = [lambda jm=jm: pr(0, jm) for jm in range(4)] + [lambda: od(0), lambda: od(2)] + [lambda jm=jm, p=p: pr(p, jm) for jm in range(4) for p in (1, 2)]
    EW = int(ENV('EW', '10'))
    for i, f in enumerate(order):
        f()
        if EARLY and i + 1 == EW:
            a.emit(f's_waitcnt vmcnt({EW - EARLY // 4})')
            a.emit('s_barrier')
    compute_end(a, kind)
    a.label(f'L_{kind}_loader')
    L = Loader(a, kind, K, lda2, ldw2, [0, f's{S_HD}', 's_add_u32 s4, s4, 128'], 128, S, STAGE, rot=int(ENV('ROT_W1', '0')), xblk=True, half=2048)
    L.setup()
    a.emit('s_waitcnt lgkmcnt(0)')
    srd(a, SX, 'ws', WS_X1, 4 * MB); srd(a, SW, 'w1', 0, 1024 * 7168)
    srd(a, ST, 'ws', WS_ST, 16 * 16384); srd(a, SC, 'ws0', WS_CS, 16 * 16384); srd(a, SB, 'b1', 0, 7168)
    def tail():
        stats_loads(a, 32, False)
        a.emit(f's_lshl_b32 s4, s{S_NT}, 7')
        a.emit(f's_lshl_b32 s5, s{S_WV}, 6')
        a.emit('s_add_u32 s4, s4, s5')
        a.emit(f's_add_u32 s4, s4, {1472 - 256}')
        a.emit(f's_lshl_b32 s5, s{S_NT}, 6')
        a.emit(f's_cmp_eq_u32 s{S_WV}, 4')
        a.emit('s_cselect_b32 s4, s5, s4')
        a.emit('s_lshr_b32 s5, s5, 1')
        a.emit('s_add_u32 s5, s5, 1024')
        a.emit(f's_cmp_eq_u32 s{S_WV}, 7')
        a.emit('s_cselect_b32 s4, s5, s4')
        a.emit('v_add_u32 v3, s4, v1')
        a.emit('v_lshlrev_b32 v2, 2, v3')
        a.emit('v_lshlrev_b32 v3, 1, v3')
        a.emit(f's_mov_b32 s3, {cs[2]}')
        for j in range(16):
            if j < cs[0]:
                a.emit(f'buffer_load_dword v{64+j}, v2, s[{SC}:{SC+3}], s3 offen')
                if j < cs[0] - 1: a.emit(f's_add_u32 s3, s3, {cs[1]}')
            else:
                a.emit(f'v_mov_b32 v{64+j}, 0')
        a.emit(f'buffer_load_ushort v80, v3, s[{SB}:{SB+3}], 0 offen')
        side(a, 'issue')
    ns = side(Asm(), 'issue')
    extra = None
    if VW:
        assert int(ENV('LM_W2', '2')) == 2
        srd(a, SR, 'w2', 0, 3584 * 2048)
        a.emit('s_and_b32 s5, s2, 3')
        a.emit('s_lshl_b32 s5, s5, 2')
        a.emit(f's_and_b32 s6, s{S_CU}, 3')
        a.emit('s_add_u32 s5, s5, s6')
        a.emit('s_and_b32 s6, s2, 4')
        a.emit('s_lshl_b32 s6, s6, 1')
        a.emit(f's_lshr_b32 s7, s{S_CU}, 2')
        a.emit('s_add_u32 s6, s6, s7')
        rot_table(a, S_TB, 5, 6, 'w2')
        a.emit(f's_add_u32 s5, s5, s{S_WV}')
        a.emit('s_and_b32 s5, s5, 3')
        wvoff(a, 16, 5, 6, 2048)
        sched = [int(c) for c in ENV('PSCH', '0111111111111122')]
        assert sum(sched) >= NV1
        def extra(i):
            o = []
            for p in range(sum(sched[:i]), min(NV1, sum(sched[:i + 1]))): o += park(56, 2 * p, 128 + 8 * p, 16, SR)
            return o
        ns += sum(x.startswith('buffer_load') for i in (13, 14, 15) for x in extra(i))
    if XD:
        extra = tail_parks('w2', SR, lambda b: srd(b, SR, 'w2', 0, 3584 * 2048))
        ns += 2 * sum(TSCH['w2'])
    if XD and ENV('PFL', '2') == '3':
        b = Asm(); side(b, 'late'); pl = [l.strip() for l in b.lines]
        pl = [l.replace('v2,', 'v18,').replace(', v2', ', v18').replace('s3', 's93') for l in pl]
        i0 = min(i for i, l in enumerate(pl) if l.startswith('buffer_load'))
        for l in pl[:i0]: a.emit(l)
        st = [int(x) for x in ENV('PFS', '6,10').split(',')]
        extra = lambda i: pl[i0 + 2 * st.index(i):i0 + 2 * st.index(i) + 2] if i in st else []
    def final():
        a.emit(f's_waitcnt vmcnt({ns})')
        if ENV('PFL', '2') == '1': side(a, 'late')
        stats_reduce_store(a, 32, LST)
        for j in range(8): a.emit(f'v_add_f32 v{64+j}, v{64+j}, v{72+j}')
        for j in range(4): a.emit(f'v_add_f32 v{64+j}, v{64+j}, v{68+j}')
        a.emit('v_add_f32 v64, v64, v65')
        a.emit('v_add_f32 v66, v66, v67')
        a.emit('v_add_f32 v64, v64, v66')
        a.emit('v_lshlrev_b32 v80, 16, v80')
        a.emit('v_lshlrev_b32 v2, 2, v0')
        a.emit(f'v_add_u32 v2, {LCS - 1024}, v2')
        a.emit('ds_write_b32 v2, v64')
        a.emit('ds_write_b32 v2, v80 offset:1024')
        a.emit('s_waitcnt lgkmcnt(0)')
    import sides
    L.run(tail_issue=tail, ntail_vm=17 + cs[0] + side(Asm(), 'issue'), final=final, extra=extra, post=sides.stouch_post(a, kind),
          dep=(lambda pf: dep_wait(a, kind, postf=pf)) if MEGA else None)
    if ENV('PFL', '2') == '2': side(a, 'late')
    if not VW: side(a, 'finish')
    loader_end(a, kind)
    a.label(end)
    a.emit('s_endpgm')
    loader_first(a, kind)
    if not MEGA:
        a(KD.format(name=f'{kind}l0_kernel'))
        stub(a, f'{kind}l1_kernel', body, 1, tsidx + 4, False)
        a(KD.format(name=f'{kind}l1_kernel'))
    a.label(f'L_{kind}_c1')
    return LCS + 2048
```

```python
from common import *
from gemmw1 import big_loop, stats_loads, stats_finish, stats_reduce_store

def gen_qkv(a, tsidx, side):
    kind = 'attn'
    K = 1024; lda2 = 2048; ldw2 = 6144
    S = 3; LM = int(ENV('LM_QKV', '3'))
    XH = 16384 + 6 * 4096
    STAGE = XH + 2048
    LST = S * STAGE
    EX = 1024
    N = 16
    body = f'L_{kind}_body'; end = f'L_{kind}_end'
    VB, VA = 4, 10
    VXW, VPE, VPO, VCE, VCO, VVE, VVO, VS1, VS4, VKA, VKB, MAP, MAC, MBP, MBC, VO = range(16, 32)
    M_ODD, M_UPA, M_UPB, M_FA, M_FB = 48, 50, 52, 54, 14
    F = [32, 76]; ACC = 128; HACC = 224; ONES = 236
    acc = lambda jn, jm: ACC + (jn * 4 + jm) * 4
    fx = lambda s, jm: F[s] + jm * 4
    fw = lambda s, jn: F[s] + 20 + jn * 4
    a.label(f'L_{kind}_c0')
    stub(a, f'{kind}l0_kernel', body, 0, tsidx, True)
    a.label(body)
    tile_map(a, LM, end)
    a.emit(f's_cmp_ge_u32 s{S_WV}, 4')
    a.emit(f's_cbranch_scc1 L_{kind}_loader')
    if ENV('CTE', '0') == '1': code_touch(a, 'L_attn_c0', 'L_w2_c1', int(ENV('CTN', '256')))
    a.emit(f's_and_b32 s{S_WM}, s{S_WV}, 1')
    a.emit(f's_lshr_b32 s{S_WN}, s{S_WV}, 1')
    a.emit('v_and_b32 v3, 31, v1')
    a.emit('v_lshlrev_b32 v3, 2, v3')
    a.emit(f'v_add_u32 v3, {XH}, v3')
    for i in range(4): a.emit(f'v_mov_b32 v{ONES+i}, 0x3f803f80')
    a.emit(f'ds_write_b32 v3, v{ONES}')
    a.emit(f'ds_write_b32 v3, v{ONES} offset:{STAGE}')
    a.emit(f'v_add_u32 v3, {2*STAGE}, v3')
    a.emit(f'ds_write_b32 v3, v{ONES}')
    a.emit('v_and_b32 v3, 15, v1')
    a.emit('v_lshrrev_b32 v2, 4, v1')
    a.emit('v_lshrrev_b32 v33, 1, v3')
    a.emit(f's_lshl_b32 s8, s{S_WM}, 13')
    for ks in range(2):
        if ks: a.emit(f'v_add_u32 v{VB+ks}, 4, v2')
        a.emit(f'v_xor_b32 v{VB+ks}, v{VB+ks if ks else 2}, v33')
        a.emit(f'v_lshlrev_b32 v{VB+ks}, 4, v{VB+ks}')
        a.emit(f'v_lshl_add_u32 v{VB+ks}, v3, 7, v{VB+ks}')
        a.emit(f'v_add_u32 v{VB+4+ks}, {XH}, v{VB+ks}')
        a.emit(f'v_add_u32 v{VB+ks}, s8, v{VB+ks}')
    wbase(a, 34, 33)
    a.emit('v_and_b32 v35, 1, v2')
    a.emit(f'v_xor_b32 v35, s{S_WM}, v35')
    a.emit(f's_lshl_b32 s8, s{S_WV}, 5')
    a.emit('v_xor_b32 v34, s8, v34')
    a.emit(f'v_add_u32 v{VB+2}, 16384, v34')
    a.emit(f'v_xor_b32 v{VB+3}, 32, v{VB+2}')
    a.emit(f's_lshl_b32 s8, s{S_MT}, 7')
    a.emit(f's_lshl_b32 s9, s{S_WM}, 6')
    a.emit('s_add_u32 s8, s8, s9')
    a.emit(f's_add_u32 s10, s8, s{S_NT}')
    a.emit('s_lshl_b32 s10, s10, 11')
    a.emit(f's_lshl_b32 s11, s{S_WN}, 10')
    a.emit('s_add_u32 s10, s10, s11')
    a.emit('v_lshl_add_u32 v33, v3, 4, s10')
    a.emit('v_lshl_add_u32 v33, v35, 9, v33')
    a.emit('v_lshrrev_b32 v34, 1, v2')
    a.emit(f'v_lshl_add_u32 v{VO}, v34, 8, v33')
    a.emit(f's_mul_i32 s10, s{S_WN}, {14336 if XD else 24576}')
    a.emit(f's_add_u32 s10, s10, {EX}')
    a.emit(f's_lshl_b32 s11, s{S_WM}, 10')
    a.emit('s_add_u32 s4, s10, s11')
    a.emit('s_sub_u32 s5, s10, s11')
    a.emit(f's_mul_i32 s6, s{S_WM}, 6144')
    a.emit(f'v_lshl_add_u32 v{VXW}, v1, 4, s4')
    a.emit(f'v_add_u32 v{VPE}, s6, v{VXW}')
    a.emit(f'v_lshl_add_u32 v{VPO}, v1, 4, s5')
    a.emit(f'v_add_u32 v{VPO}, s6, v{VPO}')
    a.emit(f'v_lshl_add_u32 v{VCE}, v2, 8, s4')
    a.emit(f'v_lshl_add_u32 v{VCO}, v2, 8, s5')
    a.emit(f'v_lshl_add_u32 v{VVE}, v3, 4, s4')
    a.emit(f'v_lshl_add_u32 v{VVO}, v3, 4, s5')
    a.emit(f's_lshl_b32 s10, s{S_WM}, 8')
    a.emit(f's_add_u32 s10, s10, {LST}')
    a.emit(f'v_lshl_add_u32 v{VS1}, v3, 2, s10')
    a.emit(f'v_lshl_add_u32 v{VS4}, v2, 4, s10')
    a.emit('v_and_b32 v33, 1, v3')
    a.emit(f'v_cmp_eq_u32 s[{M_ODD}:{M_ODD+1}], 1, v33')
    a.emit('v_lshl_add_u32 v34, v2, 2, v33')
    a.emit('v_add_u32 v35, 2, v34')
    a.emit(f'v_cmp_gt_u32 s[{M_UPA}:{M_UPA+1}], v34, v3')
    a.emit(f'v_cmp_gt_u32 s[{M_UPB}:{M_UPB+1}], v35, v3')
    a.emit('v_mov_b32 v36, 0xffff')
    a.emit('v_mov_b32 v37, 0xffff0000')
    a.emit(f'v_cndmask_b32 v36, v36, v37, s[{M_ODD}:{M_ODD+1}]')
    a.emit(f's_add_u32 s10, s10, {640 + 64}')
    a.emit('v_lshl_add_u32 v34, v34, 2, s10')
    a.emit('v_lshl_add_u32 v35, v35, 2, s10')
    a.emit('v_subrev_u32 v38, 64, v34')
    a.emit('v_subrev_u32 v39, 64, v35')
    a.emit(f'v_cndmask_b32 v{VKA}, v34, v38, s[{M_UPA}:{M_UPA+1}]')
    a.emit(f'v_cndmask_b32 v{VKB}, v35, v39, s[{M_UPB}:{M_UPB+1}]')
    a.emit(f'v_cndmask_b32 v{MAP}, 0, v36, s[{M_UPA}:{M_UPA+1}]')
    a.emit(f'v_cndmask_b32 v{MBP}, 0, v36, s[{M_UPB}:{M_UPB+1}]')
    a.emit(f'v_xor_b32 v{MAC}, v{MAP}, v36')
    a.emit(f'v_xor_b32 v{MBC}, v{MBP}, v36')
    a.emit('s_cmp_eq_u32 s8, 0')
    a.emit(f's_cselect_b64 s[{M_FA}:{M_FA+1}], s[{M_UPA}:{M_UPA+1}], 0')
    a.emit(f's_cselect_b64 s[{M_FB}:{M_FB+1}], s[{M_UPB}:{M_UPB+1}], 0')
    for i in list(range(120, 236)) + list(range(240, 256)): a.emit(f'v_mov_b32 v{i}, 0')
    a.emit('s_waitcnt lgkmcnt(0)')
    srd(a, SO, 'ws', WS_O, 4 * MB)
    clear_flags(a, 0)
    if ENV('CTE', '0') == '0': code_touch(a, 'L_attn_c0', 'L_w2_c1', int(ENV('CTN', '256')))
    def warm():
        a.emit(f's_cmp_lg_u32 s{S_LAYER}, 0')
        a.emit(f's_cbranch_scc1 L_{kind}_nowarm')
        a.emit('s_lshl_b32 s3, s2, 2')
        a.emit(f's_add_u32 s3, s3, s{S_WV}')
        srd(a, SX, 'xs', 0, 4 * MB); srd(a, SW, 'wqkv', 0, 6 * MB)
        a.emit('v_min_u32 v126, 31, v1')
        a.emit('v_min_u32 v127, 47, v1')
        a.emit('v_lshlrev_b32 v126, 7, v126')
        a.emit('v_lshlrev_b32 v127, 7, v127')
        a.emit('s_lshl_b32 s4, s3, 12')
        a.emit(f's_mul_i32 s5, s3, {48 * 128}')
        a.emit(f'buffer_load_dword v2, v126, s[{SX}:{SX+3}], s4 offen')
        a.emit(f'buffer_load_dword v3, v127, s[{SW}:{SW+3}], s5 offen')
        a.emit('v_mov_b32 v126, 0')
        a.emit('v_mov_b32 v127, 0')
        a.label(f'L_{kind}_nowarm')
    WARM = ENV('WARM', '0')
    if WARM == '1': warm()
    def reads(s, ks):
        o = []
        if 'noread' in DBG: return o
        for jm in range(4):
            o.append(f'ds_read_b128 v[{fx(s,jm)}:{fx(s,jm)+3}], v{VA+ks} offset:{jm*2048}')
        o.append(f'ds_read_b128 v[{fx(s,4)}:{fx(s,4)+3}], v{VA+4+ks}')
        for jn in range(6):
            for h in range(2):
                r = fw(s, jn) + 2 * h
                o.append(f'ds_read_b64_tr_b16 v[{r}:{r+1}], v{VA+2+(jn&1)} offset:{(jn>>1)*8192+ks*4096+h*512}')
        return o
    def mfma(c, x, y, cin=None):
        return f'v_mfma_f32_16x16x32_bf16 v[{c}:{c+3}], v[{x}:{x+3}], v[{y}:{y+3}], ' + (f'v[{c}:{c+3}]' if cin is None else cin)
    def mf(s):
        o = []
        if 'nomfma' in DBG: return ['s_nop 0']
        for jn in range(6):
            for jm in range(5):
                if jm == 4 and jn & 1: continue
                c = acc(jn, jm) if jm < 4 else HACC + (jn >> 1) * 4
                o.append(mfma(c, fw(s, jn), fx(s, jm)) if jn < 4 else mfma(c, fx(s, jm), fw(s, jn)))
        return o
    SA = [(240, 244), (248, 252), (120, 124)]
    def mfv(hh):
        def f(s):
            o = mf(s)
            ex = []
            for i, jm in enumerate([2 * hh, 2 * hh + 1] + ([4] if hh == 0 else [])):
                ex.append(mfma(SA[i][0], ONES, fx(s, jm)))
                ex.append(mfma(SA[i][1], fx(s, jm), fx(s, jm)))
            return ex + o
        return f
    def select():
        if WARM == '2': warm(); a.emit('s_nop 1')
        a.emit(f's_cmp_lg_u32 s{S_LAYER}, 0')
        a.emit(f's_cbranch_scc1 L_{kind}_loop')
        a.emit(f's_cmp_lg_u32 s{S_WN}, 0')
        a.emit(f's_cbranch_scc1 L_{kind}_loopb')
        clear_flags(a, 1)
    def post():
        a.emit('v_and_b32 v32, 3, v1')
        a.emit('v_cmp_eq_u32 s[4:5], 1, v32')
        a.emit('v_cmp_eq_u32 s[6:7], 2, v32')
        a.emit('v_cmp_eq_u32 s[8:9], 3, v32')
        a.emit('v_bfe_u32 v33, v1, 2, 2')
        a.emit('v_lshrrev_b32 v34, 4, v1')
        a.emit('v_cmp_eq_u32 s[10:11], v33, v34')
        a.emit(f's_lshl_b32 s3, s{S_WN}, 7')
        a.emit(f'v_add_u32 v35, s3, v{VS1}')
        a.emit('v_and_b32 v36, 15, v1')
        a.emit(f's_cmp_eq_u32 s{S_WV}, 0')
        a.emit('s_cselect_b32 s3, 0, 576')
        a.emit(f's_add_u32 s3, s3, {LST}')
        a.emit('v_lshl_add_u32 v36, v36, 2, s3')
        for (sm, sq) in SA:
            a.emit(f'v_cndmask_b32 v{sm+1}, v{sq}, v{sq+1}, s[4:5]')
        for (sm, sq) in SA:
            a.emit(f'v_cndmask_b32 v{sm+1}, v{sm+1}, v{sq+2}, s[6:7]')
        for (sm, sq) in SA:
            a.emit(f'v_cndmask_b32 v{sm+1}, v{sm+1}, v{sq+3}, s[8:9]')
        for (sm, sq) in SA: stats_finish(a, sm)
        a.emit('s_mov_b64 exec, s[10:11]')
        a.emit(f'ds_write2_b32 v35, v{SA[0][0]}, v{SA[0][0]+1} offset0:16 offset1:176')
        a.emit(f'ds_write2_b32 v35, v{SA[1][0]}, v{SA[1][0]+1} offset0:32 offset1:192')
        a.emit(f'ds_write2_b32 v36, v{SA[2][0]}, v{SA[2][0]+1} offset0:0 offset1:160')
        a.emit('s_mov_b64 exec, -1')
        a.emit('s_waitcnt lgkmcnt(0)')
        a.emit('s_barrier')
    big_loop(a, kind, N, S, STAGE, 6, VB, VA, reads, mf, variants={'a': mfv(0), 'b': mfv(1)}, select=select, post=post)
    PR = 32
    CS = 48
    CV = 64
    MS = 66
    RK = 76
    M4 = 84
    R4 = 104
    VV = [240, 224]
    for b in range(5):
        a.emit(f'ds_read2_b32 v[{MS+2*b}:{MS+2*b+1}], v{VS1} offset0:{16*b} offset1:{160+16*b}')
    for p in range(2):
        a.emit(f'ds_read2_b32 v[{RK+2*p}:{RK+2*p+1}], v{VKA} offset0:{32*p} offset1:{32*p+16}')
        a.emit(f'ds_read2_b32 v[{RK+4+2*p}:{RK+5+2*p}], v{VKB} offset0:{32*p} offset1:{32*p+16}')
    for c in range(3):
        a.emit(f'ds_write_b128 v{VXW}, v[{HACC+4*c}:{HACC+4*c+3}] offset:{2048*c}')
    a.emit(f's_cmp_eq_u32 s{S_WM}, 1')
    a.emit(f's_cbranch_scc1 L_{kind}_nop3')
    for t in range(2, 6):
        a.emit(f'ds_write_b128 v{VXW}, v[{acc(t,3)}:{acc(t,3)+3}] offset:{6144+1024*t}')
    a.label(f'L_{kind}_nop3')
    for b in range(5):
        a.emit(f'ds_read_b128 v[{M4+4*b}:{M4+4*b+3}], v{VS4} offset:{64*b}')
        a.emit(f'ds_read_b128 v[{R4+4*b}:{R4+4*b+3}], v{VS4} offset:{640+64*b}')
    a.emit('s_waitcnt lgkmcnt(10)')
    a.emit('s_barrier')
    for t in range(4):
        a.emit(f'ds_read_b128 v[{CS+4*t}:{CS+4*t+3}], v{VCO if t&1 else VCE} offset:{1024*t}')
    for t in range(2):
        a.emit(f'ds_read_b32 v{CV+t}, v{VVO if t else VVE} offset:{4096+1024*t}')
    for t in range(4):
        a.emit(f'ds_read_b128 v[{PR+4*t}:{PR+4*t+3}], v{VPO if t&1 else VPE} offset:{2048+1024*t}')
    sc = 32 ** -0.5 * 1.4426950408889634
    for b in range(4):
        a.emit(f'v_mul_f32 v{MS+2*b+3}, {f2u(sc):#x}, v{MS+2*b+3}')
    for b in range(4):
        a.emit(f'v_mul_f32 v{RK+b}, v{RK+b}, v{MS+2*b+3}')
        a.emit(f'v_mul_f32 v{RK+4+b}, v{RK+4+b}, v{MS+2*b+3}')
    a.emit('s_waitcnt lgkmcnt(6)')
    def qk(x, y, cs, b, d):
        m = f'v[{MS+2*b}:{MS+2*b+1}]'
        for (z, c) in ((x, cs), (y, cs + 4)):
            for h in range(2):
                a.emit(f'v_pk_fma_f32 v[{z+2*h}:{z+2*h+1}], v[{c+2*h}:{c+2*h+1}], {m}, v[{z+2*h}:{z+2*h+1}] op_sel:[0,0,0] op_sel_hi:[1,0,1] neg_lo:[0,1,0] neg_hi:[0,1,0]')
        a.emit(f'v_cvt_pk_bf16_f32 v{d}, v{x}, v{x+1}')
        a.emit(f'v_cvt_pk_bf16_f32 v{d+1}, v{x+2}, v{x+3}')
        a.emit(f'v_cvt_pk_bf16_f32 v{d+2}, v{y}, v{y+1}')
        a.emit(f'v_cvt_pk_bf16_f32 v{d+3}, v{y+2}, v{y+3}')
    Q = lambda b: acc(0, b); Kf = lambda b: acc(2, b) if b >= 0 else PR
    Sc = lambda b: acc(1, b); Sp = lambda b: acc(3, b)
    for b in range(4):
        qk(acc(0, b), acc(1, b), CS, b + 1, Q(b))
        qk(acc(2, b), acc(3, b), CS + 8, b + 1, Kf(b))
        if b == 3:
            a.emit('s_waitcnt lgkmcnt(0)')
            qk(PR, PR + 4, CS + 8, 0, PR)
        if b >= 1:
            a.emit(mfma(Sc(b - 1), Kf(b - 1), Q(b - 1), '0'))
            if b >= 2: a.emit(mfma(Sp(b - 1), Kf(b - 2), Q(b - 1), '0'))
    a.emit(mfma(Sc(3), Kf(3), Q(3), '0'))
    a.emit(mfma(Sp(3), Kf(2), Q(3), '0'))
    a.emit(mfma(Sp(0), Kf(-1), Q(0), '0'))
    def vconv(x, t, b):
        cv = f'v[{CV}:{CV+1}]'
        for h in range(2):
            a.emit(f'v_pk_fma_f32 v[{x+2*h}:{x+2*h+1}], v[{M4+4*b+2*h}:{M4+4*b+2*h+1}], {cv}, v[{x+2*h}:{x+2*h+1}] op_sel:[0,{t},0] op_sel_hi:[1,{t},1] neg_lo:[1,0,0] neg_hi:[1,0,0]')
        for h in range(2):
            a.emit(f'v_pk_mul_f32 v[{x+2*h}:{x+2*h+1}], v[{x+2*h}:{x+2*h+1}], v[{R4+4*b+2*h}:{R4+4*b+2*h+1}]')
        for h in range(2):
            a.emit(f'v_cvt_pk_bf16_f32 v{VV[t]+2*b+h}, v{x+2*h}, v{x+2*h+1}')
    for t in range(2):
        vconv(PR + 8 + 4 * t, t, 0)
        for b in range(4): vconv(acc(4 + t, b), t, b + 1)
    T = lambda b: 32 + 4 * b
    odd = f's[{M_ODD}:{M_ODD+1}]'
    for b in (1, 2, 3, 0):
        a.emit(f'v_cndmask_b32 v{Sc(b)}, v{Sc(b)}, v{Sc(b)+1}, {odd}')
        a.emit(f'v_cndmask_b32 v{Sp(b)}, v{Sp(b)}, v{Sp(b)+1}, {odd}')
        a.emit(f'v_cndmask_b32 v{Sc(b)+2}, v{Sc(b)+2}, v{Sc(b)+3}, {odd}')
        a.emit(f'v_cndmask_b32 v{Sp(b)+2}, v{Sp(b)+2}, v{Sp(b)+3}, {odd}')
        a.emit(f'v_cndmask_b32 v{T(b)}, v{Sc(b)}, v{Sp(b)}, s[{M_UPA}:{M_UPA+1}]')
        a.emit(f'v_cndmask_b32 v{T(b)+1}, v{Sc(b)+2}, v{Sp(b)+2}, s[{M_UPB}:{M_UPB+1}]')
        a.emit(f'v_mul_f32 v{T(b)}, v{T(b)}, v{RK+b}')
        a.emit(f'v_mul_f32 v{T(b)+1}, v{T(b)+1}, v{RK+4+b}')
    a.emit(f'v_mov_b32 v48, {f2u(-1e9 * 1.4426950408889634):#x}')
    a.emit(f'v_cndmask_b32 v{T(0)}, v{T(0)}, v48, s[{M_FA}:{M_FA+1}]')
    a.emit(f'v_cndmask_b32 v{T(0)+1}, v{T(0)+1}, v48, s[{M_FB}:{M_FB+1}]')
    for b in range(4): a.emit(f'v_max_f32 v{T(b)+2}, v{T(b)}, v{T(b)+1}')
    for op in ('32', '16'):
        for b in range(4): a.emit(f'v_mov_b32 v{T(b)+3}, v{T(b)+2}')
        for b in range(4): a.emit(f'v_permlane{op}_swap_b32 v{T(b)+2}, v{T(b)+3}')
        for b in range(4): a.emit(f'v_max_f32 v{T(b)+2}, v{T(b)+2}, v{T(b)+3}')
    for b in range(4):
        a.emit(f'v_sub_f32 v{T(b)}, v{T(b)}, v{T(b)+2}')
        a.emit(f'v_sub_f32 v{T(b)+1}, v{T(b)+1}, v{T(b)+2}')
    for b in range(4):
        a.emit(f'v_exp_f32 v{T(b)}, v{T(b)}')
        a.emit(f'v_exp_f32 v{T(b)+1}, v{T(b)+1}')
    P = lambda b: acc(0, b)
    for b in range(4):
        a.emit(f'v_cvt_pk_bf16_f32 v{T(b)}, v{T(b)}, v{T(b)}')
        a.emit(f'v_cvt_pk_bf16_f32 v{T(b)+1}, v{T(b)+1}, v{T(b)+1}')
        a.emit(f'v_and_b32 v{P(b)}, v{T(b)}, v{MAP}')
        a.emit(f'v_and_b32 v{P(b)+1}, v{T(b)+1}, v{MBP}')
        a.emit(f'v_and_b32 v{P(b)+2}, v{T(b)}, v{MAC}')
        a.emit(f'v_and_b32 v{P(b)+3}, v{T(b)+1}, v{MBC}')
        if b >= 1:
            q = b - 1
            a.emit(mfma(acc(1, q), ONES, P(q), '0'))
            a.emit(mfma(acc(4, q), VV[0] + 2 * q, P(q), '0'))
            a.emit(mfma(acc(5, q), VV[1] + 2 * q, P(q), '0'))
    q = 3
    a.emit(mfma(acc(1, q), ONES, P(q), '0'))
    a.emit(mfma(acc(4, q), VV[0] + 2 * q, P(q), '0'))
    a.emit(mfma(acc(5, q), VV[1] + 2 * q, P(q), '0'))
    for b in range(4):
        r = acc(1, b); d = 48 + 4 * b
        a.emit(f'v_rcp_f32 v{r}, v{r}')
        a.emit(f's_mov_b32 s3, {b * 16 * 2048}')
        for t in range(2):
            x = acc(4 + t, b)
            for h in range(2):
                a.emit(f'v_pk_mul_f32 v[{x+2*h}:{x+2*h+1}], v[{x+2*h}:{x+2*h+1}], v[{r}:{r+1}] op_sel_hi:[1,0]')
        for t in range(2):
            x = acc(4 + t, b)
            for h in range(2):
                a.emit(f'v_cvt_pk_bf16_f32 v{d+2*t+h}, v{x+2*h}, v{x+2*h+1}')
        a.emit('s_nop 1')
        a.emit(f'v_permlane16_swap_b32 v{d}, v{d+2}')
        a.emit(f'v_permlane16_swap_b32 v{d+1}, v{d+3}')
        a.emit(f'buffer_store_dwordx4 v[{d}:{d+3}], v{VO}, s[{SO}:{SO+3}], s3 offen{stf(kind)}')
    compute_end(a, kind)
    a.label(f'L_{kind}_loader')
    L = Loader(a, kind, K, lda2, ldw2, [0, 2048, 4096], 128, S, STAGE, halo=XH, rot=int(ENV('ROT_QKV', '0')))
    L.setup()
    a.emit('s_waitcnt lgkmcnt(0)')
    srd_xs(a, SX); srd(a, SW, 'wqkv', 0, 1024 * 6144)
    import sides
    a.emit(f's_cmp_lg_u32 s{S_LAYER}, 0')
    a.emit(f's_cbranch_scc1 L_{kind}_ld1')
    post = sides.stouch_post(a, kind)
    extra = tail_parks('wo', SP, lambda b: srd(b, SP, 'wo', 0, 2 * MB))
    sch0 = [int(c) for c in ENV('TSO0', '00000')]
    extra0 = tail_parks('wo', SP, lambda b: srd(b, SP, 'wo', 0, 2 * MB), sch0 + [sum(TSCH['wo']) - sum(sch0)])
    npk = 2 * sum(TSCH['wo']) if XD else 0
    L.run('0', tail_issue=lambda: side(a, 0, 'issue'), ntail_vm=side(Asm(), 0, 'issue'), post=post, start=lambda: sides.cls_touch(a), extra=extra0)
    for i in (16, 17):
        if XD:
            for x in extra0(i): a.emit(x)
        a.emit('s_barrier')
    if XD:
        for x in extra0(18): a.emit(x)
    if ONE:
        a.emit(f's_branch L_{kind}_ldend')
    else:
        side(a, 0, 'finish')
        a.emit('s_endpgm')
    a.label(f'L_{kind}_ld1')
    srd(a, ST, 'ws0', WS_ST2, 16 * 16384)
    n1 = side(Asm(), 1, 'issue')
    def tail1():
        stats_loads(a, 32, True)
        side(a, 1, 'issue')
    def final1():
        a.emit(f's_waitcnt vmcnt({n1 + npk})')
        stats_reduce_store(a, 32, LST)
        a.emit('s_waitcnt lgkmcnt(0)')
    L.run('1', tail_issue=tail1, ntail_vm=16 + n1, final=final1, extra=extra, dep=(lambda: dep_wait(a, kind, halo=True)) if MEGA else None)
    a.emit('s_barrier')
    if not MEGA: side(a, 1, 'finish')
    a.label(f'L_{kind}_ldend')
    loader_end(a, kind, check=False)
    a.label(end)
    a.emit('s_endpgm')
    loader_first(a, kind)
    a(KD.format(name=f'{kind}l0_kernel'))
    if not MEGA:
        stub(a, f'{kind}l1_kernel', body, 1, tsidx + 4, False)
        a(KD.format(name=f'{kind}l1_kernel'))
    a.label(f'L_{kind}_c1')
    return LST + 1280
```

```python
import sys, os, struct
sys.path.insert(0, os.path.join(os.path.dirname(os.path.abspath(__file__)), '..'))
from asmlib import Asm, check_offsets
MB = 1 << 20
WSB = int(os.environ.get('WSB', '0')) * MB
WS_O   = WSB
WS_X1  = WSB + 4 * MB
WS_H   = WSB + 8 * MB
WS_ST  = WSB + 23 * MB
WS_CS  = WSB + 23 * MB + 512 * 1024
WS_TS  = 60 * MB
MEGA = os.environ.get('MEGA', '2') in ('1', '2')
ONE = os.environ.get('MEGA', '2') == '2'
LSTR = 64 * MB
WS_ST2 = WS_ST + 256 * 1024 if MEGA else WS_ST
WS_FL = WSB + 23 * MB + 768 * 1024
WS_XP = WSB + 24 * MB
WS_X2 = WSB + 32 * MB
XPAD = int(os.environ.get('XPAD', '128')) if MEGA else 0
f2u = lambda f: struct.unpack('<I', struct.pack('<f', f))[0]
ENV = os.environ.get
TS = ENV('TS', '')
DBG = ENV('DBG', '').split(',')
EARLY = int(ENV('EARLY', '0')) if MEGA and ENV('SPLIT', '0') == '0' else 0
def stf(kind): return (' ' + ENV('WTF', 'sc1')) if kind in ENV('WT', 'attn,wo,w2,w1').split(',') else ''

KA = {'A_x': 0, 'wqkv': 8, 'wo': 16, 'w1': 32, 'b1': 40, 'w2': 48, 'b2': 56, 'out': 64, 'ws': 80}
P_IN = 16
P_OUT = 32; P_WS = 34
P_XS = 12
PTR = {'A_x': 16, 'wqkv': 18, 'wo': 20, 'w1': 24, 'b1': 26, 'w2': 28, 'b2': 30, 'out': 32, 'ws': 34, 'xs': 12, 'ws0': 22}
SX, SW, SO, SR, SB, ST, SP, SC = 36, 40, 44, 48, 52, 56, 60, 64
S_MT, S_NT, S_WV, S_WM, S_WN = 68, 69, 70, 71, 72
S_KX, S_KW, S_SLOT, S_XD, S_WD, S_HD, S_CNT = 73, 74, 75, 76, 77, 78, 79
S_LAYER = 96; S_TSI = 97; S_T = 98; S_CU = 99; S_XG = 100; S_KT = 101

KD = '''.section .rodata,"a"
.p2align 6
.amdhsa_kernel {name}
  .amdhsa_next_free_vgpr 256
  .amdhsa_next_free_sgpr 102
  .amdhsa_accum_offset 256
  .amdhsa_group_segment_fixed_size 0
  .amdhsa_kernarg_size 88
  .amdhsa_user_sgpr_count 2
  .amdhsa_user_sgpr_kernarg_segment_ptr 1
  .amdhsa_system_sgpr_workgroup_id_x 1
  .amdhsa_float_denorm_mode_32 3
  .amdhsa_float_denorm_mode_16_64 3
.end_amdhsa_kernel
.text
'''

def srd(a, sd, which, off, size):
    p = PTR[which]
    if off:
        a.emit(f's_add_u32 s{sd}, s{p}, {off}')
        a.emit(f's_addc_u32 s{sd+1}, s{p+1}, 0')
        a.emit(f's_and_b32 s{sd+1}, s{sd+1}, 0xffff')
    else:
        a.emit(f's_mov_b32 s{sd}, s{p}')
        a.emit(f's_and_b32 s{sd+1}, s{p+1}, 0xffff')
    a.emit(f's_mov_b32 s{sd+2}, {size}')
    a.emit(f's_mov_b32 s{sd+3}, 0x00020000')

def xpitch(a, sd, inv=False):
    a.emit(f's_cmp_eq_u32 s{S_LAYER}, {0 if inv else 1}')
    a.emit(f's_cselect_b32 s{sd}, {XPAD}, 0')
    a.emit(f's_add_u32 s{sd}, s{sd}, 2048')

def srd_xs(a, sd):
    srd(a, sd, 'xs', 0, 4 * MB)
    xpitch(a, sd + 2)
    a.emit(f's_lshl_b32 s{sd+2}, s{sd+2}, 11')

def stub(a, name, body, layer, tsidx, first):
    a(f'.text\n.globl {name}\n.p2align 8\n.type {name},@function\n{name}:')
    if TS:
        stamp(a, 0, nowait=True)
    a.emit('s_load_dwordx4 s[16:19], s[0:1], 0')
    a.emit('s_load_dwordx2 s[20:21], s[0:1], 16')
    a.emit('s_load_dwordx2 s[22:23], s[0:1], 80')
    a.emit('s_load_dwordx8 s[24:31], s[0:1], 32')
    a.emit('s_load_dwordx2 s[32:33], s[0:1], 64')
    a.emit('s_load_dwordx2 s[34:35], s[0:1], 80')
    a.emit(f's_load_dwordx2 s[12:13], s[0:1], {0 if layer == 0 else 64}')
    a.emit(f's_mov_b32 s{S_LAYER}, {layer}')
    a.emit(f's_mov_b32 s{S_TSI}, {tsidx}')
    if not first:
        a.emit(f's_branch {body}')

def stamp(a, n, nowait=False):
    if not TS: return
    a.emit(f's_memrealtime s[{80+4*n}:{81+4*n}]')
    a.emit(f's_memtime s[{82+4*n}:{83+4*n}]')
    if not nowait: a.emit('s_waitcnt lgkmcnt(0)')

def stamps_out(a, tag):
    if not TS: return
    if not MEGA: a.emit('s_waitcnt vmcnt(0)')
    stamp(a, 3)
    if MEGA and tag == 'w1':
        for i in range(16): a.emit(f'v_writelane_b32 v31, s{80+i}, {i}')
        return
    srd(a, SP, 'ws0', WS_TS, 1 << 20)
    a.emit('s_lshl_b32 s4, s2, 6')
    a.emit(f's_lshl_b32 s5, s{S_TSI}, 16')
    a.emit('s_add_u32 s4, s4, s5')
    a.emit('v_mov_b32 v1, s4')
    for i in range(16): a.emit(f'v_mov_b32 v{4+i}, s{80+i}')
    a.emit('v_cmp_eq_u32 vcc, 0, v0')
    a.emit('s_and_saveexec_b64 s[6:7], vcc')
    a.emit(f's_cbranch_execz L_tsskip_{tag}')
    for j in range(4):
        a.emit(f'buffer_store_dwordx4 v[{4+4*j}:{7+4*j}], v1, s[{SP}:{SP+3}], 0 offen offset:{16*j}')
    if MEGA and tag == 'w2':
        a.emit('s_mov_b64 exec, 0xffff')
        a.emit('s_sub_u32 s4, s4, 0x10000')
        a.emit('v_lshlrev_b32 v1, 2, v0')
        a.emit(f'buffer_store_dword v31, v1, s[{SP}:{SP+3}], s4 offen')
    a.label(f'L_tsskip_{tag}')
    a.emit('s_mov_b64 exec, -1')

SPX = ENV('SPX', '1') == '1'
def lstamp(a, n, dep=False):
    if dep and ENV('LST') == 'x': return
    if TS: a.emit(f's_memrealtime s[{52+2*n}:{53+2*n}]')

def lstamps_out(a, tag):
    if not TS: return
    a.emit(f's_cmp_lg_u32 s{S_WV}, 4')
    a.emit(f's_cbranch_scc1 L_ltsskip_{tag}')
    a.emit('s_waitcnt lgkmcnt(0)')
    srd(a, SP, 'ws0', WS_TS + 16384, 1 << 20)
    a.emit('s_lshl_b32 s4, s2, 6')
    a.emit(f's_lshl_b32 s5, s{S_TSI}, 16')
    a.emit('s_add_u32 s4, s4, s5')
    for i in range(8): a.emit(f'v_writelane_b32 v20, s{52+i}, {i}')
    a.emit('v_lshlrev_b32 v21, 2, v1')
    a.emit('s_mov_b64 exec, 0xff')
    a.emit(f'buffer_store_dword v20, v21, s[{SP}:{SP+3}], s4 offen')
    a.emit('s_mov_b64 exec, -1')
    a.label(f'L_ltsskip_{tag}')

def tile_map(a, LM, endlab, pair=False):
    a.emit('s_cmp_ge_u32 s2, 256')
    a.emit(f's_cbranch_scc1 {endlab}')
    a.emit('v_lshrrev_b32 v2, 6, v0')
    a.emit('v_and_b32 v1, 63, v0')
    a.emit(f'v_readfirstlane_b32 s{S_WV}, v2')
    a.emit('s_and_b32 s3, s2, 7')
    a.emit(f's_lshr_b32 s{S_CU}, s2, 3')
    if LM == 2 and ENV('MAP2', '0') == '1':
        a.emit('s_lshl_b32 s5, s3, 1')
        a.emit('s_lshr_b32 s6, s3, 1')
        a.emit('s_and_b32 s5, s5, 2')
        a.emit('s_and_b32 s6, s6, 1')
        a.emit('s_or_b32 s5, s5, s6')
    else: a.emit(f's_and_b32 s5, s3, {(1 << (4 - LM)) - 1}')
    a.emit(f's_lshl_b32 s5, s5, {LM}')
    a.emit(f's_and_b32 s6, s{S_CU}, {(1 << LM) - 1}')
    a.emit(f's_add_u32 s{S_MT}, s5, s6')
    a.emit(f's_lshr_b32 s5, s3, {4 - LM}')
    if pair:
        a.emit(f's_lshr_b32 s{S_HD}, s{S_CU}, {LM}')
        a.emit(f's_lshl1_add_u32 s{S_NT}, s{S_HD}, s5')
        return
    a.emit(f's_lshl_b32 s5, s5, {5 - LM}')
    a.emit(f's_lshr_b32 s6, s{S_CU}, {LM}')
    a.emit(f's_add_u32 s{S_NT}, s5, s6')
    if 'smallm' in DBG: a.emit(f's_and_b32 s{S_MT}, s{S_MT}, 1')
    if 'smalln' in DBG: a.emit(f's_and_b32 s{S_NT}, s{S_NT}, 1')

def interleave(a, main, side, lead=1, per=1):
    si = 0
    for i, m in enumerate(main):
        a.emit(m)
        if i + 1 >= lead:
            for _ in range(per):
                if si < len(side): a.emit(side[si]); si += 1
    while si < len(side): a.emit(side[si]); si += 1

class Loader:
    VXD = 4; VWD = 8; VXH = 28
    def __init__(self, a, tag, K, lda2, ldw2, panels, colbase, S, STAGE, halo=None, delta=0, rot=None, xblk=False, half=0):
        self.a = a; self.tag = tag; self.K = K; self.lda2 = lda2; self.ldw2 = ldw2; self.panels = panels
        self.colbase = colbase; self.S = S; self.STAGE = STAGE; self.halo = halo; self.delta = delta; self.xblk = xblk; self.rot = rot if rot is not None and rot >= 0 else None
        self.NSTEP = K // 64; self.half = half
        self.per = 4 + 2 * len(panels) + (1 if halo is not None else 0)
    def setup(self):
        a = self.a
        if ENV('PRIO', '0') != '0': a.emit(f"s_setprio {ENV('PRIO')}")
        a.emit(f's_add_u32 s8, s{S_WV}, s{S_NT}')
        a.emit('s_and_b32 s8, s8, 3')
        a.emit(f's_add_u32 s9, s{S_WV}, s{S_MT}')
        a.emit('s_and_b32 s9, s9, 3')
        a.emit(f's_lshl_b32 s{S_XD}, s8, 12')
        a.emit(f's_lshl_b32 s{S_WD}, s9, 11')
        a.emit(f's_add_u32 s{S_WD}, s{S_WD}, 16384')
        a.emit(f's_lshl_b32 s11, s{S_MT}, 7')
        a.emit('v_and_b32 v10, 7, v1')
        if self.xblk: self.xoff_blk(self.lda2)
        else: self.xoff_rows(self.lda2)
        a.emit('v_lshrrev_b32 v3, 3, v1')
        a.emit('s_lshl_b32 s10, s9, 4')
        a.emit('v_add_u32 v3, s10, v3')
        a.emit(f'v_mul_u32_u24 v3, {self.ldw2}, v3')
        a.emit('v_lshrrev_b32 v2, 3, v1')
        a.emit('v_and_b32 v2, 2, v2')
        a.emit('v_xor_b32 v2, v2, v10')
        a.emit(f's_mul_i32 s10, s{S_NT}, {self.colbase}')
        if self.colbase & 127: a.emit('s_andn2_b32 s10, s10, 127')
        a.emit('v_add_u32 v3, s10, v3')
        a.emit(f'v_lshl_add_u32 v{self.VWD}, v2, 4, v3')
        a.emit('v_xor_b32 v2, 4, v2')
        a.emit(f'v_add_u32 v3, {8*self.ldw2}, v3')
        a.emit(f'v_lshl_add_u32 v{self.VWD+1}, v2, 4, v3')
        if self.half:
            a.emit('v_lshrrev_b32 v3, 2, v1')
            a.emit('s_lshl_b32 s10, s9, 4')
            a.emit('v_add_u32 v3, s10, v3')
            a.emit(f'v_mul_u32_u24 v3, {self.ldw2}, v3')
            a.emit('v_lshrrev_b32 v2, 4, v1')
            a.emit('v_and_b32 v2, 2, v2')
            a.emit('v_xor_b32 v2, v2, v1')
            a.emit('v_and_b32 v2, 3, v2')
            a.emit(f's_lshl_b32 s10, s{S_NT}, 6')
            a.emit(f's_add_u32 s10, s10, {self.half}')
            a.emit('v_add_u32 v3, s10, v3')
            a.emit(f'v_lshl_add_u32 v{self.VXH}, v2, 4, v3')
            a.emit(f's_lshl_b32 s{S_HD}, s{S_NT}, 7')
            a.emit(f's_add_u32 s{S_HD}, s{S_HD}, 3072')
        if self.halo is not None:
            a.emit(f's_and_b32 s10, s{S_WV}, 3')
            a.emit(f's_lshl_b32 s{S_HD}, s10, 9')
            a.emit(f's_add_u32 s{S_HD}, s{S_HD}, {self.halo}')
            a.emit('s_lshl_b32 s14, s10, 2')
            a.emit('s_add_u32 s14, s14, s11')
            a.emit('s_sub_u32 s14, s14, 16')
            a.emit('v_lshrrev_b32 v3, 3, v1')
            a.emit('v_add_u32 v3, s14, v3')
            a.emit('v_max_i32 v3, 0, v3')
            a.emit('v_mul_u32_u24 v3, s5, v3')
            a.emit('s_lshl_b32 s14, s10, 1')
            a.emit('v_lshrrev_b32 v2, 4, v1')
            a.emit('v_add_u32 v2, s14, v2')
            a.emit('v_and_b32 v2, 7, v2')
            a.emit('v_xor_b32 v2, v2, v10')
            a.emit(f'v_lshl_add_u32 v{self.VXH}, v2, 4, v3')
            a.emit('s_cmp_eq_u32 s10, 0')
            a.emit('s_cselect_b32 s14, 0xffffff00, -1')
            a.emit('s_mov_b32 s15, 0')
        a.emit(f's_mov_b32 s{S_SLOT}, 0')
        if self.rot is None:
            a.emit(f's_mov_b32 s{S_KX}, 0')
            a.emit(f's_mov_b32 s{S_KW}, 0')
        else:
            if not getattr(self, 'noxg', False): a.emit(f's_add_u32 s{S_XG}, s{S_MT}, s{S_NT}')
            a.emit(f's_mov_b32 s{S_KT}, {0 if EARLY and self.tag == "w2" else -1}')
            for x in self.knext(): a.emit(x)
    def xoff_rows(self, ld):
        a = self.a
        a.emit('v_lshrrev_b32 v3, 3, v1')
        a.emit(f's_lshr_b32 s10, s{S_XD}, 7')
        a.emit(f's_lshl_b32 s3, s{S_MT}, 7')
        a.emit('s_add_u32 s10, s10, s3')
        a.emit('v_add_u32 v3, s10, v3')
        xpitch(a, 5)
        a.emit('s_lshl_b32 s6, s5, 3')
        a.emit('v_mul_u32_u24 v3, s5, v3')
        a.emit('v_lshrrev_b32 v2, 4, v1')
        for j in range(4):
            d = self.VXD + j
            if j & 1:
                a.emit(f'v_add_u32 v{d}, 4, v2')
                a.emit(f'v_xor_b32 v{d}, v{d}, v10')
            else:
                a.emit(f'v_xor_b32 v{d}, v2, v10')
            a.emit(f'v_lshl_add_u32 v{d}, v{d}, 4, v3')
            if j < 3: a.emit('v_add_u32 v3, s6, v3')
    def xoff_blk(self, ld):
        a = self.a
        a.emit(f's_lshr_b32 s10, s{S_XD}, 11')
        a.emit(f's_lshl_b32 s3, s{S_MT}, 3')
        a.emit('s_add_u32 s10, s10, s3')
        a.emit(f's_mul_i32 s10, s10, {16*ld}')
        a.emit(f'v_lshl_add_u32 v{self.VXD}, v1, 4, s10')
        a.emit(f'v_add_u32 v{self.VXD+1}, {16*ld}, v{self.VXD}')
    def xdma(self, base, imm, sd, soff, blk):
        o = []
        for j in range(4):
            if blk:
                if not j & 1: o += [f's_add_u32 m0, s{base}, {imm + j*1024}', 's_nop 0']
                o.append(f'buffer_load_dwordx4 v{self.VXD+(j>>1)}, s[{sd}:{sd+3}], s{soff} offen offset:{(j&1)*1024} lds')
            else:
                o += [f's_add_u32 m0, s{base}, {imm + j*1024}', 's_nop 0', f'buffer_load_dwordx4 v{self.VXD+j}, s[{sd}:{sd+3}], s{soff} offen lds']
        return o
    def knext(self):
        if self.rot is None:
            return [f's_add_u32 s{S_KX}, s{S_KX}, {2048 if self.xblk else 128}', f's_add_u32 s{S_KW}, s{S_KW}, {64*self.ldw2}']
        lc = self.rot; C = 1 << lc; N = self.NSTEP
        o = [f's_add_u32 s{S_KT}, s{S_KT}, 1']
        D = int(ENV('ROTD_' + self.tag.upper(), ENV('ROTD', '2')))
        dl = {3: [3, -1, -1, -1], 2: [2, -1, -1, 0], 1: [1, -1, 0, 0]}[D]
        tbl = sum((((d * C) % N) << (8 * i)) for i, d in enumerate(dl))
        if lc: o += [f's_lshr_b32 s{S_KX}, s{S_KT}, {lc}', f's_sub_u32 s{S_KX}, s{S_KX}, s{S_XG}']
        else: o += [f's_sub_u32 s{S_KX}, s{S_KT}, s{S_XG}']
        o += [f's_lshl_b32 s{S_KX}, s{S_KX}, 3',
              f's_lshr_b32 s{S_KX}, {tbl:#x}, s{S_KX}',
              f's_and_b32 s{S_KX}, s{S_KX}, 255',
              f's_add_u32 s{S_KX}, s{S_KX}, s{S_KT}']
        if N & (N - 1) == 0: o += [f's_and_b32 s{S_KX}, s{S_KX}, {N - 1}']
        else: o += [f's_sub_u32 s{S_KW}, s{S_KX}, {N}', f's_cselect_b32 s{S_KX}, s{S_KX}, s{S_KW}']
        o += [f's_mul_i32 s{S_KW}, s{S_KX}, {64*self.ldw2}', f's_lshl_b32 s{S_KX}, s{S_KX}, {11 if self.xblk else 7}']
        return o
    def panels_of(self, t): return self.panels
    def issue_x(self, bx, bh, imm, kx):
        o = self.xdma(bx, imm, SX, kx, self.xblk)
        if self.halo is not None:
            o.append(f's_add_u32 m0, s{S_HD}, {bh}')
            o.append('s_mov_b64 exec, s[14:15]')
            o.append(f'buffer_load_dwordx4 v{self.VXH}, s[{SX}:{SX+3}], s{kx} offen lds')
            o.append('s_mov_b64 exec, -1')
        return o
    def issue_w(self, t, bw, imm):
        o = []
        for pn, goff in enumerate(self.panels_of(t)):
            for i in range(2):
                o.append(f's_add_u32 m0, s{bw}, {imm+pn*8192+i*1024}')
                o.append((goff if str(goff).startswith('s_') else f's_add_u32 s4, s{S_KW}, {goff}') if i == 0 else 's_nop 0')
                o.append(f'buffer_load_dwordx4 v{self.VWD+i}, s[{SW}:{SW+3}], s4 offen lds')
        if self.half:
            o += [f's_add_u32 m0, s{bw}, {imm+len(self.panels)*8192}', 's_nop 0',
                  f'buffer_load_dwordx4 v{self.VXH}, s[{SW}:{SW+3}], s{S_KW} offen lds']
        return o
    def issue(self, t):
        o = [f's_add_u32 s3, s{S_SLOT}, s{S_XD}']
        o += self.issue_x(3, f's{S_SLOT}', 0, S_KX)
        o.append(f's_add_u32 s3, s{S_SLOT}, s{S_WD}')
        o += self.issue_w(t, 3, 0)
        o += self.knext()
        o.append(f's_add_u32 s{S_SLOT}, s{S_SLOT}, {self.STAGE}')
        o.append(f's_cmp_eq_u32 s{S_SLOT}, {self.S*self.STAGE}')
        o.append(f's_cselect_b32 s{S_SLOT}, 0, s{S_SLOT}')
        return o
    def run(self, variant='', tail_issue=None, ntail_vm=0, final=None, post=(), dep=None, tail_late=0, start=None, extra=None):
        a = self.a; N = self.NSTEP; d = self.S - 1
        tag = self.tag + variant
        nx = 4 + (1 if self.halo is not None else 0)
        nw = lambda t: 2 * len(self.panels_of(t)) + (1 if self.half else 0)
        seq = []
        early = EARLY and self.tag == 'w2'
        pchk = EARLY - 3 - d - 1; piss = pchk - d + 1 - int(ENV('PEARLY', '0'))
        def em(o):
            for x in o:
                if 'nodma' in DBG and x.endswith(' lds'): continue
                a.emit(x)
        def after(t): return len(seq) - 1 - max(i for i, x in enumerate(seq) if x == t)
        def wait(n):
            assert n <= 63, n
            a.emit(f's_waitcnt vmcnt({n})')
        if dep is None:
            for t in range(2): em(self.issue(t)); seq += [t] * (nx + nw(t))
            if start: start()
            wait(after(0))
            a.emit('s_barrier')
            for t in range(2, d): em(self.issue(t)); seq += [t] * (nx + nw(t))
        else:
            prev = {'attn': 'w2', 'wo': 'attn', 'w1': 'wo', 'w2': 'w1'}[self.tag]
            assert 'attn' not in EBAR
            dep_pre(a, self.tag)
            if prev in EBAR: a.emit('s_barrier')
            xw = 1 if self.tag in ENV('XW', 'x').split(',') and not hasattr(self, 'P1') else 0
            for t in range(d + xw):
                a.emit(f's_mov_b32 s{88+t}, s{S_KX}')
                em(self.issue_w(t, S_WD, t * self.STAGE) + self.knext()); seq += [t] * nw(t)
            self.npre = len(seq)
            a.emit(f's_mov_b32 s{S_SLOT}, {0 if xw else d * self.STAGE}')
            dep()
            for t in range(d + xw):
                em(self.issue_x(S_XD, t * self.STAGE, t * self.STAGE, 88 + t)); seq += [t] * nx
            wait(after(0))
            if self.tag == 'w2': lstamp(a, 2)
            a.emit('s_barrier')
            if early: late_flag(a)
        ev = []
        for i in range(N):
            t = i + d
            if t in seq: t = N + 9
            if early and i == piss: seq += ['P']
            if t < N: seq += [t] * (nx + nw(t))
            ex = extra(i) if extra else []
            tl = tail_issue is not None and t == N - 1 + tail_late
            if tl: seq += ['T'] * ntail_vm
            seq += ['E'] * sum(x.startswith('buffer_load') for x in ex)
            ev.append(((nw(t) if t < N else -1, after(i + 1) if i + 1 < N else -1, tl, early and i == piss, early and i == pchk, tuple(ex)), t))
        i = 0; nl = 0
        while i < N:
            j = i
            while j + 1 < N and ev[j + 1][0] == ev[i][0]: j += 1
            n = j - i + 1
            (k, w, tl, pi, pc, ex), t = ev[i]
            if n >= 3:
                nl += 1
                a.emit(f's_mov_b32 s{S_CNT}, {n}')
                a.label(f'L_{tag}_ld{nl}')
            else: j = i
            if pi: a.emit(f'buffer_load_dword v13, v12, s[{SO}:{SO+3}], s86 offen sc1')
            if t < N:
                em(self.issue(t)); em(post)
            if tl: tail_issue()
            em(ex)
            if w >= 0: wait(w)
            elif final: final()
            if pc: late_check(a)
            a.emit('s_barrier')
            if n >= 3:
                a.emit(f's_sub_u32 s{S_CNT}, s{S_CNT}, 1')
                a.emit(f's_cmp_lg_u32 s{S_CNT}, 0')
                a.emit(f's_cbranch_scc1 L_{tag}_ld{nl}')
            i = j + 1

XD = ONE and ENV('SPLIT', '0') == '0' and ENV('XD', '1') == '1'
VW = MEGA and ENV('SPLIT', '0') == '0' and ENV('VW', '0') == '1'
NV1 = int(ENV('NV1', '16')); NV2 = int(ENV('NV2', '12')); NVO = int(ENV('NVO', '11'))
S_TB = 85
def rot_table(a, sd, smt, snt, tag):
    D = int(ENV('ROTD_' + tag.upper(), ENV('ROTD', '2')))
    dl = {3: [3, -1, -1, -1], 2: [2, -1, -1, 0], 1: [1, -1, 0, 0], 0: [0, 0, 0, 0]}[D]
    tbl = sum((d & 255) << (8 * i) for i, d in enumerate(dl))
    a.emit(f's_add_u32 s3, s{smt}, s{snt}')
    a.emit('s_lshl_b32 s3, s3, 3')
    a.emit(f's_lshl_b32 s{sd}, {tbl:#x}, s3')
    a.emit('s_sub_u32 s3, 0, s3')
    a.emit(f's_lshr_b32 s3, {tbl:#x}, s3')
    a.emit(f's_or_b32 s{sd}, s{sd}, s3')

def kpos(N, t, sd, tb=S_TB, halves=True, q=None):
    H, p, add = (28, t >> 1, 28 * (t & 1)) if N == 56 and halves else (N, t, 0)
    o = [f's_bfe_i32 s{sd}, s{tb}, {0x80000 + 8 * (p & 3):#x}', f's_add_i32 s{sd}, s{sd}, {p + add}']
    if p == 0: o += [f's_cmp_lt_i32 s{sd}, {add}', f's_cselect_b32 s{sd}, {H - 1 + add}, s{sd}']
    if p + 3 >= H: o += [f's_sub_u32 s3, s{sd}, {H}', f's_cmp_ge_i32 s{sd}, {H + add}', f's_cselect_b32 s{sd}, s3, s{sd}']
    if q is not None:
        if N == 16 or 1 <= t <= 12: o += [f's_add_u32 s{sd}, s{sd}, s{q}', f's_and_b32 s{sd}, s{sd}, 15']
        elif t <= 16 or t + 3 >= N: o += [f's_add_u32 s3, s{sd}, s{q}', 's_and_b32 s3, s3, 15', f's_cmp_lt_u32 s{sd}, 16', f's_cselect_b32 s{sd}, s3, s{sd}']
    return o

S_Q = 86
MROT = ENV('MROT', '1') == '1'
def rot_q(a, sd, smt, sh=0):
    a.emit(f's_and_b32 s{sd}, s{smt}, {3 if MROT else 0}')
    a.emit(f's_lshl_b32 s{sd}, s{sd}, {2 + sh}')

TSCH = {'wo': [int(c) for c in ENV('TSO', '000')], 'w2': [int(c) for c in ENV('TS2', '000')]}
def tail_parks(nxt, sw, mk=None, sch=None):
    if not XD: return None
    sch = sch or TSCH[nxt]; N = 16 if nxt == 'wo' else 56
    def extra(i):
        if i < 13 or not sum(sch): return []
        a = Asm()
        if i == 13:
            if mk: mk(a)
            a.emit('s_and_b32 s5, s2, 3')
            a.emit('s_lshl_b32 s5, s5, 2')
            a.emit(f's_and_b32 s6, s{S_CU}, 3')
            a.emit('s_add_u32 s5, s5, s6')
            a.emit('s_and_b32 s6, s2, 4')
            a.emit('s_lshl_b32 s6, s6, 1')
            a.emit(f's_lshr_b32 s7, s{S_CU}, 2')
            a.emit('s_add_u32 s6, s6, s7')
            rot_table(a, S_TB, 5, 6, nxt)
            rot_q(a, S_Q, 5)
            a.emit(f's_add_u32 s5, s5, s{S_WV}')
            a.emit('s_and_b32 s5, s5, 3')
            wvoff(a, 16, 5, 6, 2048)
        o = [l.strip() for l in a.lines]
        for t in range(sum(sch[:i - 13]), sum(sch[:i - 12])):
            o += kpos(N, t, 4, S_TB, False, S_Q) + ['s_lshl_b32 s4, s4, 17']
            o += [f'buffer_load_dwordx4 v[{128+8*t+4*j}:{131+8*t+4*j}], v{16+j}, s[{sw}:{sw+3}], s4 offen' for j in range(2)]
        return o
    return extra

def vreg(tag, t):
    if tag == 'wo': return (128 + 8 * (t - 5), False) if 5 <= t < 5 + NVO else None
    if t & 1: return None
    p = t >> 1
    if p < NV1: return (128 + 8 * p, True)
    if p < NV1 + NV2: return (32 + 8 * (p - NV1), False)
    return None

def wvoff(a, vd, sqw, snt, ldw2):
    a.emit('v_lshrrev_b32 v3, 3, v1')
    a.emit(f's_lshl_b32 s10, s{sqw}, 4')
    a.emit('v_add_u32 v3, s10, v3')
    a.emit(f'v_mul_u32_u24 v3, {ldw2}, v3')
    a.emit('v_lshrrev_b32 v2, 3, v1')
    a.emit('v_and_b32 v2, 2, v2')
    a.emit('v_xor_b32 v2, v2, v10')
    a.emit(f's_lshl_b32 s10, s{snt}, 7')
    a.emit('v_add_u32 v3, s10, v3')
    a.emit(f'v_lshl_add_u32 v{vd}, v2, 4, v3')
    a.emit('v_xor_b32 v2, 4, v2')
    a.emit(f'v_add_u32 v3, {8*ldw2}, v3')
    a.emit(f'v_lshl_add_u32 v{vd+1}, v2, 4, v3')

def park(N, t, r, vo, sw):
    return kpos(N, t, 4) + ['s_lshl_b32 s4, s4, 17'] + [f'buffer_load_dwordx4 v[{r+4*i}:{r+4*i+3}], v{vo+i}, s[{sw}:{sw+3}], s4 offen' for i in range(2)]

class ULoader(Loader):
    def run(self, variant='', tail_issue=None, ntail_vm=0, final=None, post=(), dep=None):
        a = self.a; N = self.NSTEP; d = self.S - 1; tag = self.tag
        seq = []
        def em(o):
            for x in o:
                if 'nodma' in DBG and x.endswith(' lds'): continue
                a.emit(x)
        def after(t): return len(seq) - 1 - max(i for i, x in enumerate(seq) if x == t)
        def wait(n, lg=False):
            assert n <= 63, n
            a.emit(f's_waitcnt vmcnt({n})' + (' lgkmcnt(0)' if lg else ''))
        def iw(t):
            sl = (t % self.S) * self.STAGE; v = vreg(tag, t)
            if v:
                em([f'v_add_u32 v11, {sl}, v14'] + [f'ds_write_b128 v11, v[{v[0]+4*i}:{v[0]+4*i+3}] offset:{1024*i}' for i in range(2)])
            else:
                em([f's_lshl_b32 s{S_KW}, s{S_KX}, 17'] + [x for x in self.issue_w(t, S_WD, sl)])
                seq.extend([t] * 2)
        def ix(t, k):
            em(self.issue_x(S_XD, None, (t % self.S) * self.STAGE, k)); seq.extend([t] * 4)
        rot_table(a, S_TB, S_MT, S_NT, tag)
        a.emit(f'v_lshl_add_u32 v14, v1, 4, s{S_WD}')
        dep_pre(a, tag)
        for t in range(d):
            em(kpos(N, t, S_KX)); iw(t)
            a.emit(f's_lshl_b32 s{88+t}, s{S_KX}, 11')
        for t in range(d, N):
            v = vreg(tag, t)
            if v and not v[1]:
                em(park(N, t, v[0], self.VWD, SW)); seq.extend(['V'] * 2)
        self.npre = len(seq)
        dep()
        for t in range(d): ix(t, 88 + t)
        wait(after(0), True)
        if tag == 'w2': lstamp(a, 2)
        a.emit('s_barrier')
        for i in range(N):
            t = i + d
            if i % 4 == 0 and post and t < N:
                a.emit('s_waitcnt lgkmcnt(0)')
                em(post)
            if t < N:
                em(kpos(N, t, S_KX)); iw(t)
                a.emit(f's_lshl_b32 s{S_KX}, s{S_KX}, 11')
                ix(t, S_KX)
            if t == N - 1: tail_issue(); seq.extend(['T'] * ntail_vm)
            if i + 1 < N: wait(after(i + 1), not post or t == N)
            else: final()
            a.emit('s_barrier')

EBAR = ENV('EBAR', 'x').split(',')
S_FL = 87
def dep_pre(a, kind):
    if ONE and kind in ('wo', 'w1'):
        a.emit(f's_add_u32 s3, s{S_LAYER}, s{S_WV}')
        a.emit('s_cmp_lg_u32 s3, 4')
        a.emit(f's_cbranch_scc1 L_{kind}_chk')
        if kind == 'wo': a.emit(f's_load_dwordx2 s[{SC}:{SC+1}], s[0:1], 72')
        else: srd(a, SO, 'ws0', WS_FL, 32768)
        a.emit(f's_mov_b32 s{S_CNT}, 0x100000')
        if kind == 'wo':
            a.emit('s_waitcnt lgkmcnt(0)')
            a.emit(f's_and_b32 s{SC+1}, s{SC+1}, 0xffff')
            a.emit(f's_mov_b32 s{SC+2}, 256')
            a.emit(f's_mov_b32 s{SC+3}, 0x00020000')
            a.emit('v_lshlrev_b32 v2, 2, v1')
        else:
            a.emit('v_lshrrev_b32 v2, 2, v1')
            a.emit('v_and_b32 v3, 3, v1')
            a.emit('v_lshlrev_b32 v2, 8, v2')
            a.emit('v_lshl_add_u32 v2, v3, 4, v2')
        a.label(f'L_{kind}_chkl')
        if kind == 'wo': a.emit(f'buffer_load_dword v12, v2, s[{SC}:{SC+3}], 0 offen sc1')
        else: a.emit(f'buffer_load_dwordx4 v[12:15], v2, s[{SO}:{SO+3}], 0 offen sc1')
        a.emit(f's_sub_u32 s{S_CNT}, s{S_CNT}, 1')
        a.emit(f's_cbranch_scc1 L_{kind}_chk')
        a.emit('s_waitcnt vmcnt(0)')
        if kind == 'wo': a.emit('v_cmp_ne_u32 vcc, 0x01010101, v12')
        else:
            a.emit('v_and_b32 v12, v12, v13')
            a.emit('v_and_b32 v14, v14, v15')
            a.emit('v_and_b32 v12, v12, v14')
            a.emit('v_cmp_ne_u32 vcc, 1, v12')
        a.emit(f's_cbranch_vccnz L_{kind}_chkl')
        a.label(f'L_{kind}_chk')

def dep_wait(a, kind, halo=False, skip_first=False, first=None, preg=None, postf=None):
    if skip_first and not ONE:
        a.emit(f's_cmp_eq_u32 s{S_TSI}, 1')
        a.emit(f's_cbranch_scc1 L_{kind}_dep')
    srd(a, SO, 'ws0', WS_FL, 32768)
    if ONE and kind == 'wo':
        a.emit(f's_cmp_lg_u32 s{S_LAYER}, 0')
        a.emit(f's_cbranch_scc1 L_{kind}_nofirst')
        first()
        a.label(f'L_{kind}_nofirst')
    a.emit(f's_lshl_b32 s3, s{S_TSI}, 12')
    a.emit(f's_lshl_b32 s4, s{S_MT}, 8')
    a.emit('s_add_u32 s3, s3, s4')
    a.emit('s_sub_u32 s3, s3, 4096')
    a.emit('v_and_b32 v2, 15, v1')
    a.emit('v_lshlrev_b32 v2, 2, v2')
    if halo:
        a.emit('s_min_u32 s4, s4, 256')
        a.emit('s_sub_u32 s3, s3, s4')
        a.emit('v_lshlrev_b32 v3, 4, v1')
        a.emit('v_and_b32 v3, s4, v3')
        a.emit('v_add_u32 v2, v2, v3')
    a.emit('v_mov_b32 v3, 1')
    a.emit(f's_mov_b32 s{S_CNT}, 0x100000')
    a.emit(f's_cmp_lg_u32 s{S_WV}, 4')
    a.emit('s_barrier')
    a.emit(f's_cbranch_scc1 L_{kind}_{"nofl" if postf else "dep"}')
    if kind == 'w2': lstamp(a, 0, True)
    a.emit('s_mov_b64 exec, 1')
    a.emit(f'buffer_store_dword v3, off, s[{SO}:{SO+3}], s{S_FL} sc1')
    a.emit('s_mov_b64 exec, -1')
    if postf:
        a.label(f'L_{kind}_nofl')
        a.emit('s_mov_b32 s5, s3')
        postf()
        a.emit('s_mov_b32 s3, s5')
        a.emit(f's_cmp_lg_u32 s{S_WV}, 4')
        a.emit(f's_cbranch_scc1 L_{kind}_dep')
    a.label(f'L_{kind}_poll')
    a.emit(f'buffer_load_dword v3, v2, s[{SO}:{SO+3}], s3 offen sc1')
    a.emit(f's_sub_u32 s{S_CNT}, s{S_CNT}, 1')
    a.emit(f's_cbranch_scc1 L_{kind}_dep')
    a.emit('s_waitcnt vmcnt(0)')
    a.emit('v_cmp_ne_u32 vcc, 1, v3')
    a.emit(f's_cbranch_vccnz L_{kind}_poll')
    a.label(f'L_{kind}_dep')
    if kind == 'w2': lstamp(a, 1, True)
    if preg: preg()
    if preg and kind == 'w2': lstamp(a, 2, True)
    a.emit('s_barrier')

LGO = 163840 - 64
def dep_early(a):
    srd(a, SO, 'ws0', WS_FL, 32768)
    a.emit(f's_lshl_b32 s86, s{S_TSI}, 12')
    a.emit(f's_lshl_b32 s4, s{S_MT}, 8')
    a.emit('s_add_u32 s86, s86, s4')
    a.emit('s_sub_u32 s86, s86, 4096')
    a.emit('v_and_b32 v12, 15, v1')
    a.emit('v_lshlrev_b32 v12, 2, v12')
    a.emit('v_mov_b32 v3, 0')
    a.emit(f'v_mov_b32 v2, {LGO}')
    a.emit('ds_write_b32 v2, v3')
    a.emit('v_mov_b32 v13, 1')
    a.emit(f's_mov_b32 s{S_CNT}, 0x100000')
    a.emit(f's_cmp_lg_u32 s{S_WV}, 4')
    a.emit('s_waitcnt lgkmcnt(0)')
    a.emit('s_barrier')
    a.emit('s_cbranch_scc1 L_w2_go')
    lstamp(a, 0)
    a.emit('s_mov_b64 exec, 1')
    a.emit(f'buffer_store_dword v13, off, s[{SO}:{SO+3}], s{S_FL} sc1')
    a.emit('s_mov_b64 exec, -1')
    a.label('L_w2_poll')
    a.emit(f'buffer_load_dword v3, v12, s[{SO}:{SO+3}], s86 offen sc1')
    a.emit(f's_sub_u32 s{S_CNT}, s{S_CNT}, 1')
    a.emit('s_cbranch_scc1 L_w2_rel')
    a.emit('s_waitcnt vmcnt(0)')
    a.emit('v_cmp_eq_u32 vcc, 0, v3')
    a.emit('s_cbranch_vccnz L_w2_poll')
    a.label('L_w2_rel')
    a.emit('ds_write_b32 v2, v13')
    lstamp(a, 1)
    a.emit('s_branch L_w2_dep')
    a.label('L_w2_go')
    a.emit(f's_mov_b32 s{S_CNT}, 0x2000000')
    a.label('L_w2_gol')
    a.emit('ds_read_b32 v3, v2')
    a.emit(f's_sub_u32 s{S_CNT}, s{S_CNT}, 1')
    a.emit('s_cbranch_scc1 L_w2_dep')
    a.emit('s_waitcnt lgkmcnt(0)')
    a.emit('v_cmp_eq_u32 vcc, 0, v3')
    a.emit('s_cbranch_vccnz L_w2_gol')
    a.label('L_w2_dep')

def late_flag(a):
    a.emit(f's_cmp_lg_u32 s{S_WV}, 4')
    a.emit('s_cbranch_scc1 L_w2_nolate')
    a.emit('v_mov_b32 v3, 2')
    a.emit('s_mov_b64 exec, 1')
    a.emit(f'buffer_store_dword v3, off, s[{SO}:{SO+3}], s{S_FL} sc1')
    a.emit('s_mov_b64 exec, -1')
    a.label('L_w2_nolate')

def late_check(a):
    a.emit(f's_mov_b32 s{S_CNT}, 0x100000')
    a.label('L_w2_lchk')
    a.emit('v_cmp_ne_u32 vcc, 2, v13')
    a.emit('s_cbranch_vccz L_w2_lok')
    a.emit(f'buffer_load_dword v13, v12, s[{SO}:{SO+3}], s86 offen sc1')
    a.emit(f's_sub_u32 s{S_CNT}, s{S_CNT}, 1')
    a.emit('s_waitcnt vmcnt(0)')
    a.emit('s_cbranch_scc0 L_w2_lchk')
    a.label('L_w2_lok')
    if TS: a.emit(f's_mov_b32 s58, s{S_CNT}')
    lstamps_out(a, 'w2')

def gbar(a, kind):
    if not MEGA or (EARLY and kind == 'w2'): return
    if kind == 'attn':
        a.emit(f's_cmp_eq_u32 s{S_LAYER}, 0')
        a.emit('s_cbranch_scc1 L_attn_nog')
    a.emit('s_barrier')
    if kind == 'attn': a.label('L_attn_nog')

def next_phase(a, kind):
    nxt = {'attn': 'wo', 'wo': 'w1', 'w1': 'w2', 'w2': 'attn'}[kind]
    if kind == 'w2':
        a.emit(f's_mov_b32 s{S_LAYER}, 1')
        a.emit(f's_add_u32 s12, s22, {WS_X2}')
        a.emit('s_addc_u32 s13, s23, 0')
        a.emit(f's_add_u32 s34, s22, {LSTR}')
        a.emit('s_addc_u32 s35, s23, 0')
    a.emit(f's_add_u32 s{S_TSI}, s{S_TSI}, 1')
    a.emit(f's_branch L_{nxt}_body')

def last_check(a, kind):
    if kind == 'w2' or (kind == 'attn' and not ONE):
        a.emit(f's_cmp_eq_u32 s{S_LAYER}, {0 if kind == "attn" else 1}')
        a.emit(f's_cbranch_scc1 L_{kind}_end')

def compute_end(a, kind):
    if not MEGA:
        stamps_out(a, kind)
        a.emit('s_endpgm')
        return
    if not TS: last_check(a, kind)
    if kind in EBAR: a.emit('s_barrier')
    if not (EARLY and kind == 'w1'):
        a.emit('s_waitcnt vmcnt(0) lgkmcnt(0)')
        a.emit('s_barrier')
    if TS:
        stamps_out(a, kind)
        last_check(a, kind)
    stamp(a, 0, nowait=True)
    next_phase(a, kind)

def loader_end(a, kind, check=True):
    if MEGA:
        if kind == 'w2' and not EARLY: lstamps_out(a, 'w2')
        if check: last_check(a, kind)
        a.emit(f's_lshl_b32 s{S_FL}, s{S_TSI}, 12')
        a.emit(f's_lshl_b32 s4, s{S_MT}, 8')
        a.emit(f's_add_u32 s{S_FL}, s{S_FL}, s4')
        a.emit(f's_lshl_b32 s4, s{S_NT}, 2')
        a.emit(f's_add_u32 s{S_FL}, s{S_FL}, s4')
        next_phase(a, kind)

def pf_weights(a, sd, which, size, ldw2, R, sh, L, LMn, tilebytes, NI, vd, row0=0, qkv=False, pair=False):
    if 'nopf' in DBG: return 0
    srd(a, sd, which, 0, size)
    a.emit(f's_and_b32 s3, s{S_WV}, 3')
    a.emit(f's_mul_i32 s3, s3, {NI * (64 >> sh)}')
    a.emit(f's_mul_i32 s4, s{S_CU}, {R}')
    a.emit('s_add_u32 s3, s3, s4')
    if row0: a.emit(f's_add_u32 s3, s3, {row0}')
    a.emit(f'v_lshrrev_b32 v2, {sh}, v1')
    a.emit('v_add_u32 v2, s3, v2')
    a.emit(f'v_mul_u32_u24 v2, {ldw2}, v2')
    a.emit(f'v_and_b32 v3, {(1 << sh) - 1}, v1')
    if L < (1 << sh): a.emit(f'v_min_u32 v3, {L-1}, v3')
    if qkv:
        a.emit('v_lshrrev_b32 v12, 2, v3')
        a.emit('v_lshl_add_u32 v2, v12, 11, v2')
        a.emit('v_and_b32 v3, 3, v3')
    a.emit(f'v_lshl_add_u32 v2, v3, {8 if pair else 7}, v2')
    a.emit('s_and_b32 s3, s2, 7')
    a.emit(f's_lshr_b32 s3, s3, {4 - LMn}')
    a.emit(f's_mul_i32 s3, s3, {tilebytes if pair else (1 << (5 - LMn)) * tilebytes}')
    for i in range(NI):
        a.emit(f'buffer_load_dword v{vd+i}, v2, s[{sd}:{sd+3}], s3 offen')
        if i + 1 < NI: a.emit(f's_add_u32 s3, s3, {(64 >> sh) * ldw2}')
    return NI

_pfc = [0]
def pf_code(a, start, end, vd, forward=True):
    if 'nopfc' in DBG: return 0
    _pfc[0] += 1
    lab = f'L_pfc{_pfc[0]}'
    a.emit('s_getpc_b64 s[4:5]')
    a.label(lab)
    if forward:
        a.emit(f's_add_u32 s4, s4, {start}-{lab}')
        a.emit('s_addc_u32 s5, s5, 0')
    else:
        a.emit(f's_sub_u32 s4, s4, {lab}-{start}')
        a.emit('s_subb_u32 s5, s5, 0')
    a.emit(f's_and_b32 s3, s{S_WV}, 3')
    a.emit('s_lshl_b32 s3, s3, 13')
    a.emit('v_lshl_add_u32 v2, v1, 7, s3')
    a.emit(f'v_min_u32 v2, {end}-{start}-4, v2')
    a.emit(f'global_load_dword v{vd}, v2, s[4:5]')
    return 1

def wbase(a, vd, vt, g='v2'):
    a.emit(f'v_bfe_u32 v{vd}, v1, 2, 2')
    a.emit(f'v_lshl_add_u32 v{vd}, {g}, 3, v{vd}')
    a.emit(f'v_lshlrev_b32 v{vd}, 7, v{vd}')
    a.emit(f'v_and_b32 v{vt}, 3, v1')
    a.emit(f'v_lshl_add_u32 v{vd}, v{vt}, 3, v{vd}')
    a.emit(f'v_bfe_u32 v{vt}, v1, 3, 2')
    a.emit(f'v_lshl_add_u32 v{vd}, v{vt}, 5, v{vd}')


def code_touch(a, start, end, nb, sd=SX):
    if ENV('CT', '1') == '0': return
    _pfc[0] += 1
    lab = f'L_pfc{_pfc[0]}'
    a.emit(f's_cmp_lg_u32 s{S_LAYER}, 0')
    a.emit(f's_cbranch_scc1 {lab}_skip')
    a.emit('s_getpc_b64 s[4:5]')
    a.label(lab)
    a.emit(f's_lshl_b32 s3, s{S_CU}, 2')
    a.emit(f's_add_u32 s3, s3, s{S_WV}')
    a.emit(f's_mul_i32 s3, s3, {nb}')
    a.emit(f's_min_u32 s3, s3, {end}-{start}-{nb}')
    a.emit(f's_add_i32 s3, s3, {start}-{lab}')
    a.emit('s_ashr_i32 s6, s3, 31')
    a.emit('s_add_u32 s4, s4, s3')
    a.emit('s_addc_u32 s5, s5, s6')
    for i in range(nb // 64):
        a.emit(f's_load_dword s{sd+i}, s[4:5], {64*i}')
    a.label(f'{lab}_skip')

def loader_first(a, kind):
    if ENV('LF', '1') == '0': return
    L = a.lines
    ib = max(i for i, l in enumerate(L) if l.strip() == f's_cbranch_scc1 L_{kind}_loader')
    il = L.index(f'L_{kind}_loader:')
    ie = L.index(f'L_{kind}_end:') + 2
    assert L[ie - 1].strip() == 's_endpgm' and L[ib - 1].strip().startswith('s_cmp_ge_u32')
    L[ib - 1] = L[ib - 1].replace('s_cmp_ge_u32', 's_cmp_lt_u32')
    L[ib] = f'  s_cbranch_scc1 L_{kind}_compute'
    a.lines = L[:ib + 1] + L[il:ie] + [f'L_{kind}_compute:'] + L[ib + 1:il] + L[ie:]

def clear_flags(a, part):
    if not ONE: return
    if part == 0: a.emit(f's_load_dwordx2 s[{SC}:{SC+1}], s[0:1], 72')
    a.emit(f's_or_b32 s3, s{S_LAYER}, s{S_WV}')
    a.emit(f's_cbranch_scc1 L_clr_skip{part}')
    if part == 0:
        srd(a, SP, 'ws0', WS_FL, 262144)
        a.emit('s_lshl_b32 s3, s2, 10')
        a.emit('v_lshlrev_b32 v2, 4, v1')
        a.emit(f'buffer_store_dwordx4 v[128:131], v2, s[{SP}:{SP+3}], s3 offen sc1')
    else:
        a.emit('v_mov_b32 v3, 1')
        a.emit(f's_and_b32 s{SC+1}, s{SC+1}, 0xffff')
        a.emit(f's_mov_b32 s{SC+2}, 256')
        a.emit(f's_mov_b32 s{SC+3}, 0x00020000')
        a.emit('s_mov_b64 exec, 1')
        a.emit('s_waitcnt vmcnt(0)')
        a.emit(f'buffer_store_byte v3, off, s[{SC}:{SC+3}], s2 sc1')
        a.emit('s_mov_b64 exec, -1')
    a.label(f'L_clr_skip{part}')
```

```python
from common import *

def gen_gemm64x(a, kind, tsidx, side):
    K = 1024 if kind == 'wo' else 3584
    lda2 = K * 2; ldw2 = 2048
    LM = int(ENV('LM_' + kind.upper(), '2'))
    N = K // 64; NI = N // 4
    G0, GW = (131072, 28672) if kind == 'wo' else (0, 0)
    def slot(t):
        g = G0 + (t >> 2) * 32768
        if g >= 163840: g = GW + (g - 163840) % (163840 - GW)
        return g + (t & 3) * 8192
    NPRE = int(ENV('NPREO', '16')) if kind == 'wo' else int(ENV('NPRE', '20'))
    PSTEP = 64 if kind == 'w2' else 1024
    body = f'L_{kind}_body'; end = f'L_{kind}_end'
    VXO, VWB, VWA, VO = 4, 6, 26, 12
    DX = 4
    XR = 32; FW = [160, 192]; ACC = 96; D = 240; BIA = 192
    acc = lambda jn, jm: ACC + (jn * 2 + jm) * 4
    fx = lambda r, ks, jm: XR + 16 * r + (ks * 2 + jm) * 4
    fw = lambda s, ks, jn: FW[s] + (ks * 4 + jn) * 4
    a.label(f'L_{kind}_c0')
    a.label(body)
    tile_map(a, LM, end)
    a.emit(f's_cmp_ge_u32 s{S_WV}, 4')
    a.emit(f's_cbranch_scc1 L_{kind}_loader')
    a.emit('v_and_b32 v3, 15, v1')
    a.emit('v_lshrrev_b32 v2, 4, v1')
    a.emit(f's_lshl_b32 s8, s{S_MT}, 7')
    a.emit(f's_lshl_b32 s9, s{S_WV}, 5')
    a.emit('s_add_u32 s8, s8, s9')
    a.emit(f's_mul_i32 s9, s8, {lda2}')
    if kind == 'w2' and 'xsm' in DBG:
        a.emit('s_and_b32 s9, s8, 0x67f')
        a.emit(f's_mul_i32 s9, s9, {lda2}')
    a.emit(f'v_lshl_add_u32 v{VXO}, v1, 4, s9')
    a.emit(f'v_add_u32 v{VXO+1}, {16*lda2}, v{VXO}')
    a.emit('v_add_u32 v13, s8, v3')
    a.emit(f's_lshl_b32 s10, s{S_NT}, 7')
    a.emit('v_lshl_add_u32 v14, v2, 3, s10')
    a.emit('v_and_b32 v16, 1, v2')
    a.emit('v_lshrrev_b32 v17, 1, v2')
    if kind == 'w2':
        a.emit('v_lshlrev_b32 v16, 5, v16')
        a.emit('v_lshl_add_u32 v16, v17, 4, v16')
        a.emit('v_add_u32 v16, s10, v16')
        xpitch(a, 7, True)
        a.emit(f'v_mad_u32_u24 v{VO}, v13, s7, v16')
    else:
        a.emit('v_lshl_add_u32 v16, v16, 1, v17')
        a.emit('v_lshlrev_b32 v16, 8, v16')
        a.emit('v_lshl_add_u32 v16, v3, 4, v16')
        a.emit(f's_add_u32 s9, s8, s{S_NT}')
        a.emit('s_lshl_b32 s9, s9, 11')
        a.emit(f'v_add_u32 v{VO}, s9, v16')
    a.emit('v_lshl_add_u32 v18, v17, 4, v13')
    a.emit('v_lshlrev_b32 v18, 3, v18')
    a.emit('v_and_b32 v16, 1, v2')
    a.emit('v_lshl_add_u32 v18, v16, 2, v18')
    a.emit(f's_lshl_b32 s10, s{S_NT}, 14')
    a.emit('v_add_u32 v18, s10, v18')
    wbase(a, VWB, 17)
    for i in range(1, 4): a.emit(f'v_xor_b32 v{VWB+i}, {32*i}, v{VWB}')
    a.emit('s_mov_b32 s11, 0xffff0000')
    a.emit(f's_mov_b32 s{S_SLOT}, {G0}')
    SK = SC
    rot_table(a, 8, S_MT, S_NT, kind)
    for r in range(4):
        for x in kpos(N, r, SK + r, 8, False): a.emit(x)
        a.emit(f's_lshl_b32 s{SK+r}, s{SK+r}, 11')
    rot_q(a, S_XG, S_MT, 11)
    a.emit(f's_mov_b32 s{S_KT}, {"s%d" % S_XG if N == 16 else 0}')
    if kind == 'wo':
        srd(a, SX, 'ws', WS_O, 4 * MB)
        srd(a, SO, 'ws', WS_X1, 4 * MB)
    else:
        srd(a, SB, 'b2', 0, 2048)
        for jn in range(4):
            a.emit(f'buffer_load_dwordx2 v[{BIA+2*jn}:{BIA+2*jn+1}], v14, s[{SB}:{SB+3}], 0 offen offset:{jn*32}')
        srd(a, SX, 'ws', WS_H, 2048 * 7168)
        srd(a, SO, 'out', 0, 4 * MB)
        srd(a, SR, 'ws0', WS_X2, 4 * MB)
        a.emit(f's_cmp_eq_u32 s{S_LAYER}, 0')
        a.emit(f's_cselect_b64 s[{SO}:{SO+1}], s[{SR}:{SR+1}], s[{SO}:{SO+1}]')
        a.emit(f's_lshl_b32 s{SO+2}, s7, 11')
    srd(a, ST, 'ws', WS_ST if kind == 'wo' else WS_ST2, 16 * 16384)
    HM = int(ENV('HMASK', '0'))
    def hmask(sd):
        if HM and kind == 'w2':
            a.emit(f's_and_b32 s3, s2, {HM}')
            a.emit(f's_cselect_b32 s{sd+2}, 0, s{sd+2}')
    hmask(SX)
    if kind == 'wo': code_touch(a, 'L_w1_c0', 'L_w1_c1', 128, SW)
    def addr():
        o = [f'v_add_u32_e64 v{VWA+i}, s{S_SLOT}, v{VWB+i}' for i in range(4)]
        o += [f's_add_u32 s{S_SLOT}, s{S_SLOT}, 32768', f's_cmp_eq_u32 s{S_SLOT}, 163840', f's_cselect_b32 s{S_SLOT}, {GW}, s{S_SLOT}']
        return o
    def xk(r):
        o = [f's_add_u32 s{S_KX}, s{S_KT}, s{SK+r}']
        if N == 16: o += [f's_and_b32 s{S_KX}, s{S_KX}, 0x7fff']
        else:
            o += [f's_sub_u32 s{S_KW}, s{S_KX}, {N*2048}', f's_cselect_b32 s{S_KX}, s{S_KX}, s{S_KW}']
            return ['\n  '.join(o), '\n  '.join([f's_add_u32 s{S_KW}, s{S_KX}, s{S_XG}', f's_and_b32 s{S_KW}, s{S_KW}, 0x7fff',
                    f's_cmp_lt_u32 s{S_KX}, 0x8000', f's_cselect_b32 s{S_KX}, s{S_KW}, s{S_KX}'])]
        return ['\n  '.join(o)]
    def xl(r, k=S_KX):
        if 'nox' in DBG: return []
        return [f'buffer_load_dwordx4 v[{fx(r,ks,jm)}:{fx(r,ks,jm)+3}], v{VXO+jm}, s[{SX}:{SX+3}], s{k} offen offset:{ks*1024}' for jm in range(2) for ks in range(2)]
    def reads(r):
        o = []
        if 'noread' in DBG: return o
        for ks in range(2):
            for jn in range(4):
                for h in range(2):
                    d = fw(r & 1, ks, jn) + 2 * h
                    o.append(f'ds_read_b64_tr_b16 v[{d}:{d+1}], v{VWA+jn} offset:{(r&3)*8192+ks*4096+h*512}')
        return o
    def mf(r):
        o = []
        if 'nomfma' in DBG: return ['s_nop 0']
        for ks in range(2):
            for jn in range(4):
                for jm in range(2):
                    c = acc(jn, jm)
                    o.append(f'v_mfma_f32_16x16x32_bf16 v[{c}:{c+3}], v[{fw(r&1,ks,jn)}:{fw(r&1,ks,jn)+3}], v[{fx(r,ks,jm)}:{fx(r,ks,jm)+3}], v[{c}:{c+3}]')
        return o
    for x in addr(): a.emit(x)
    a.emit(f's_mov_b32 s{S_CNT}, {N // DX}')
    for r in range(DX - 1):
        for x in xk(r & 3): a.emit(x)
        a.emit(f's_mov_b32 s{SR+r}, s{S_KX}')
        if r == 3: a.emit(f's_add_u32 s{S_KT}, s{S_KT}, 8192')
    a.emit('s_waitcnt lgkmcnt(0)')
    a.emit('s_barrier')
    for r in range(DX - 1):
        for x in xl(r, SR + r): a.emit(x)
        if r == 2:
            for x in reads(0): a.emit(x)
    for i in range(4):
        for h in range(2): a.emit(f'v_permlane16_swap_b32 v{D+4*i+h}, v{D+4*i+2+h}')
    if kind == 'w2': a.emit('s_waitcnt vmcnt(12)')
    for jn in range(4):
        if kind == 'w2':
            for h in range(2):
                a.emit(f'v_lshlrev_b32 v{216+2*h}, 16, v{BIA+2*jn+h}')
                a.emit(f'v_and_b32 v{217+2*h}, s11, v{BIA+2*jn+h}')
        for jm in range(2):
            c = acc(jn, jm); r = D + (jm * 4 + jn) * 2
            for h in range(2):
                a.emit(f'v_lshlrev_b32 v{c+2*h}, 16, v{r+h}')
                a.emit(f'v_and_b32 v{c+2*h+1}, s11, v{r+h}')
                if kind == 'w2': a.emit(f'v_pk_add_f32 v[{c+2*h}:{c+2*h+1}], v[{c+2*h}:{c+2*h+1}], v[{216+2*h}:{217+2*h}]')
    if TS:
        a.emit(f's_waitcnt vmcnt({4*DX-8})')
        stamp(a, 1)
    XP = int(ENV('XPOS', '8'))
    a('.p2align 3')
    a.label(f'L_{kind}_loop')
    for r in range(DX):
        a.emit(f's_waitcnt vmcnt({4*DX-8}) lgkmcnt(0)')
        if r & 3 == 3: a.emit('s_barrier')
        sd = reads((r + 1) % DX)
        if r & 3 == 3: sd = addr() + sd
        xs = xk((r + 3) & 3) + xl((r - 1) % DX)
        if r & 3 == 0: xs += [f's_add_u32 s{S_KT}, s{S_KT}, 8192']
        if r == 0: xs += [f's_sub_u32 s{S_CNT}, s{S_CNT}, 1\n  s_cmp_eq_u32 s{S_CNT}, 0\n  s_cselect_b32 s{SX+2}, 0, s{SX+2}']
        if r == DX - 1: xs += [f's_cmp_lg_u32 s{S_CNT}, 0']
        m = mf(r)
        interleave(a, m[:XP], sd, lead=1, per=(len(sd) + XP - 1) // XP)
        interleave(a, m[XP:], xs, lead=1, per=1)
    a.emit(f's_cbranch_scc1 L_{kind}_loop')
    stamp(a, 2)
    for i in range(4): a.emit(f'v_mov_b32 v{20+i}, 0')
    a.emit(f's_mov_b32 s3, {16*2048}' if kind == 'wo' else 's_lshl_b32 s3, s7, 4')
    a.emit('s_mov_b32 s10, 0x3f803f80')
    a.emit('s_nop 4')
    for jm in range(2):
        for p in range(2):
            d = D + (jm * 2 + p) * 4
            for q in range(2):
                c = acc(2 * p + q, jm)
                a.emit(f'v_cvt_pk_bf16_f32 v{d+2*q}, v{c}, v{c+1}')
                a.emit(f'v_cvt_pk_bf16_f32 v{d+2*q+1}, v{c+2}, v{c+3}')
            a.emit('s_nop 1')
            a.emit(f'v_permlane16_swap_b32 v{d}, v{d+2}')
            a.emit(f'v_permlane16_swap_b32 v{d+1}, v{d+3}')
            a.emit(f'buffer_store_dwordx4 v[{d}:{d+3}], v{VO}, s[{SO}:{SO+3}], {"s3" if jm else "0"} offen offset:{p*PSTEP}{stf(kind)}')
    for jm in range(2):
        for i in range(8):
            d = D + jm * 8 + i
            a.emit(f'v_dot2_f32_bf16 v{20+jm}, v{d}, s10, v{20+jm}')
            a.emit(f'v_dot2_f32_bf16 v{22+jm}, v{d}, v{d}, v{22+jm}')
    a.emit('s_nop 2')
    a.emit('v_permlane32_swap_b32 v20, v21')
    a.emit('v_permlane32_swap_b32 v22, v23')
    a.emit('v_add_f32 v20, v20, v21')
    a.emit('v_add_f32 v22, v22, v23')
    a.emit('s_nop 1')
    a.emit('v_permlane16_swap_b32 v20, v22')
    a.emit('v_add_f32 v20, v20, v22')
    a.emit(f'buffer_store_dword v20, v18, s[{ST}:{ST+3}], 0 offen{stf(kind)}')
    compute_end(a, kind)
    a.label(f'L_{kind}_loader')
    L = Loader(a, kind, K, lda2, ldw2, [0], 128, 2, 8192, xblk=True)
    a.emit(f's_add_u32 s9, s{S_WV}, s{S_MT}')
    a.emit('s_and_b32 s9, s9, 3')
    a.emit(f's_lshl_b32 s{S_XD}, s9, 12')
    a.emit(f's_lshl_b32 s{S_WD}, s9, 11')
    a.emit('v_and_b32 v10, 7, v1')
    if kind == 'w2' and 'wsm' in DBG:
        a.emit(f's_and_b32 s11, s{S_NT}, 8')
        wvoff(a, L.VWD, 9, 11, ldw2)
    else: wvoff(a, L.VWD, 9, S_NT, ldw2)
    if kind == 'wo': srd(a, SW, 'wo', 0, 2 * MB)
    else: srd(a, SW, 'w2', 0, 3584 * 2048)
    hmask(SW)
    rot_table(a, S_TB, S_MT, S_NT, kind)
    rot_q(a, S_Q, S_MT)
    a.emit(f'v_lshl_add_u32 v14, v1, 4, s{S_WD}')
    NVT = sum(TSCH[kind])
    assert NPRE - int(ENV('NPF' + kind[1].upper(), '10')) <= 18
    seq = [t for t in range(NVT) for j in range(2)]
    def em(o):
        for x in o:
            if 'nodma' in DBG and x.endswith(' lds'): continue
            a.emit(x)
    def after(t): return len(seq) - 1 - max(i for i, x in enumerate(seq) if x == t)
    NPK = int(ENV('NPK', '0')) if kind == 'w2' else 0
    rest = list(range(NPRE, N))
    pk = {NPRE + j: 32 + 8 * j for j in range(NPK)}
    NPKE = int(ENV('NPKE', '0'))
    THR = int(ENV('THR' + kind[1].upper(), '63'))
    def iw(t):
        if t in pk:
            if t >= NPRE and t == min(pk): a.emit(f's_waitcnt vmcnt({min(63, after(max(pk)))})')
            em([f'v_add_u32 v11, {slot(t)}, v14'] + [f'ds_write_b128 v11, v[{pk[t]+4*i}:{pk[t]+4*i+3}] offset:{1024*i}' for i in range(2)])
        else:
            em(kpos(N, t, S_KW, S_TB, False, S_Q) + [f's_lshl_b32 s{S_KW}, s{S_KW}, 17'] + L.issue_w(t, S_WD, slot(t)))
            seq.extend([t] * 2)
    def thr(n=THR):
        if n < 63: a.emit(f's_waitcnt vmcnt({n})')
    dep_pre(a, kind)
    import sides
    post = sides.stouch_post(a, kind)
    first = lambda: sides.qkv(a, 0, 'finish', min(len(seq), THR + 2))
    NPF = int(ENV('NPF' + kind[1].upper(), '10'))
    for t in range(NVT, NPRE - NPF): iw(t); thr()
    for t in range(NVT):
        a.emit(f's_waitcnt vmcnt({min(63, after(t))})')
        pk[t] = 128 + 8 * t; iw(t); del pk[t]
    def parks(l):
        for t in l:
            em(kpos(N, t, 4, S_TB, False, S_Q) + ['s_lshl_b32 s4, s4, 17'] + [f'buffer_load_dwordx4 v[{pk[t]+4*i}:{pk[t]+4*i+3}], v{L.VWD+i}, s[{SW}:{SW+3}], s4 offen' for i in range(2)])
            seq.extend([t] * 2); thr(min(THR, 56))
    def postf():
        for t in range(NPRE - NPF, NPRE): iw(t)
        parks(sorted(pk)[NPKE:])
    parks(sorted(pk)[:NPKE])
    dep_wait(a, kind, skip_first=kind == 'wo', first=first, preg=lambda: a.emit(f's_waitcnt vmcnt({min(after(3), 63)}) lgkmcnt(0)'),
             postf=postf)
    nxt = NPRE; LT = int(ENV('LTHR', '63'))
    for j in range(NI):
        j0 = NPK // 4
        want = NPRE + NPK + max(0, -(-(j + 1 - j0) * (len(rest) - NPK) // (NI - 2 - j0)))
        while nxt < min(N, want, 4 * j + 20):
            em(post if nxt not in pk else []); iw(nxt); nxt += 1; thr(LT)
        need = [t for t in range(4 * j + 4, min(N, 4 * j + 8))]
        assert all(t < nxt for t in need)
        a.emit(f's_waitcnt vmcnt({min(63, min(after(t) for t in need)) if need else 0})' + (' lgkmcnt(0)' if NPK else ''))
        a.emit('s_barrier')
    assert nxt == N
    loader_end(a, kind)
    a.label(end)
    a.emit('s_endpgm')
    loader_first(a, kind)
    a.label(f'L_{kind}_c1')
    return 163840
```

```python
from common import *
from gemmw1 import big_loop, stats_loads, stats_finish, stats_reduce_store

def gen_qkv(a, tsidx, side):
    kind = 'attn'
    K = 1024; lda2 = 2048; ldw2 = 6144
    S = 3; LM = int(ENV('LM_QKV', '3'))
    XH = 16384 + 6 * 4096
    STAGE = XH + 2048
    LST = S * STAGE
    EX = 1024
    N = 16
    body = f'L_{kind}_body'; end = f'L_{kind}_end'
    VB, VA = 4, 10
    VXW, VPE, VPO, VCE, VCO, VVE, VVO, VS1, VS4, VKA, VKB, MAP, MAC, MBP, MBC, VO = range(16, 32)
    M_ODD, M_UPA, M_UPB, M_FA, M_FB = 48, 50, 52, 54, 14
    F = [32, 76]; ACC = 128; HACC = 224; ONES = 236
    acc = lambda jn, jm: ACC + (jn * 4 + jm) * 4
    fx = lambda s, jm: F[s] + jm * 4
    fw = lambda s, jn: F[s] + 20 + jn * 4
    a.label(f'L_{kind}_c0')
    stub(a, f'{kind}l0_kernel', body, 0, tsidx, True)
    a.label(body)
    tile_map(a, LM, end)
    a.emit(f's_cmp_ge_u32 s{S_WV}, 4')
    a.emit(f's_cbranch_scc1 L_{kind}_loader')
    if ENV('CTE', '0') == '1': code_touch(a, 'L_attn_c0', 'L_w2_c1', int(ENV('CTN', '256')))
    a.emit(f's_and_b32 s{S_WM}, s{S_WV}, 1')
    a.emit(f's_lshr_b32 s{S_WN}, s{S_WV}, 1')
    a.emit('v_and_b32 v3, 31, v1')
    a.emit('v_lshlrev_b32 v3, 2, v3')
    a.emit(f'v_add_u32 v3, {XH}, v3')
    for i in range(4): a.emit(f'v_mov_b32 v{ONES+i}, 0x3f803f80')
    a.emit(f'ds_write_b32 v3, v{ONES}')
    a.emit(f'ds_write_b32 v3, v{ONES} offset:{STAGE}')
    a.emit(f'v_add_u32 v3, {2*STAGE}, v3')
    a.emit(f'ds_write_b32 v3, v{ONES}')
    a.emit('v_and_b32 v3, 15, v1')
    a.emit('v_lshrrev_b32 v2, 4, v1')
    a.emit('v_lshrrev_b32 v33, 1, v3')
    a.emit(f's_lshl_b32 s8, s{S_WM}, 13')
    for ks in range(2):
        if ks: a.emit(f'v_add_u32 v{VB+ks}, 4, v2')
        a.emit(f'v_xor_b32 v{VB+ks}, v{VB+ks if ks else 2}, v33')
        a.emit(f'v_lshlrev_b32 v{VB+ks}, 4, v{VB+ks}')
        a.emit(f'v_lshl_add_u32 v{VB+ks}, v3, 7, v{VB+ks}')
        a.emit(f'v_add_u32 v{VB+4+ks}, {XH}, v{VB+ks}')
        a.emit(f'v_add_u32 v{VB+ks}, s8, v{VB+ks}')
    wbase(a, 34, 33)
    a.emit('v_and_b32 v35, 1, v2')
    a.emit(f'v_xor_b32 v35, s{S_WM}, v35')
    a.emit(f's_lshl_b32 s8, s{S_WV}, 5')
    a.emit('v_xor_b32 v34, s8, v34')
    a.emit(f'v_add_u32 v{VB+2}, 16384, v34')
    a.emit(f'v_xor_b32 v{VB+3}, 32, v{VB+2}')
    a.emit(f's_lshl_b32 s8, s{S_MT}, 7')
    a.emit(f's_lshl_b32 s9, s{S_WM}, 6')
    a.emit('s_add_u32 s8, s8, s9')
    a.emit(f's_add_u32 s10, s8, s{S_NT}')
    a.emit('s_lshl_b32 s10, s10, 11')
    a.emit(f's_lshl_b32 s11, s{S_WN}, 10')
    a.emit('s_add_u32 s10, s10, s11')
    a.emit('v_lshl_add_u32 v33, v3, 4, s10')
    a.emit('v_lshl_add_u32 v33, v35, 9, v33')
    a.emit('v_lshrrev_b32 v34, 1, v2')
    a.emit(f'v_lshl_add_u32 v{VO}, v34, 8, v33')
    a.emit(f's_mul_i32 s10, s{S_WN}, {14336 if XD else 24576}')
    a.emit(f's_add_u32 s10, s10, {EX}')
    a.emit(f's_lshl_b32 s11, s{S_WM}, 10')
    a.emit('s_add_u32 s4, s10, s11')
    a.emit('s_sub_u32 s5, s10, s11')
    a.emit(f's_mul_i32 s6, s{S_WM}, 6144')
    a.emit(f'v_lshl_add_u32 v{VXW}, v1, 4, s4')
    a.emit(f'v_add_u32 v{VPE}, s6, v{VXW}')
    a.emit(f'v_lshl_add_u32 v{VPO}, v1, 4, s5')
    a.emit(f'v_add_u32 v{VPO}, s6, v{VPO}')
    a.emit(f'v_lshl_add_u32 v{VCE}, v2, 8, s4')
    a.emit(f'v_lshl_add_u32 v{VCO}, v2, 8, s5')
    a.emit(f'v_lshl_add_u32 v{VVE}, v3, 4, s4')
    a.emit(f'v_lshl_add_u32 v{VVO}, v3, 4, s5')
    a.emit(f's_lshl_b32 s10, s{S_WM}, 8')
    a.emit(f's_add_u32 s10, s10, {LST}')
    a.emit(f'v_lshl_add_u32 v{VS1}, v3, 2, s10')
    a.emit(f'v_lshl_add_u32 v{VS4}, v2, 4, s10')
    a.emit('v_and_b32 v33, 1, v3')
    a.emit(f'v_cmp_eq_u32 s[{M_ODD}:{M_ODD+1}], 1, v33')
    a.emit('v_lshl_add_u32 v34, v2, 2, v33')
    a.emit('v_add_u32 v35, 2, v34')
    a.emit(f'v_cmp_gt_u32 s[{M_UPA}:{M_UPA+1}], v34, v3')
    a.emit(f'v_cmp_gt_u32 s[{M_UPB}:{M_UPB+1}], v35, v3')
    a.emit('v_mov_b32 v36, 0xffff')
    a.emit('v_mov_b32 v37, 0xffff0000')
    a.emit(f'v_cndmask_b32 v36, v36, v37, s[{M_ODD}:{M_ODD+1}]')
    a.emit(f's_add_u32 s10, s10, {640 + 64}')
    a.emit('v_lshl_add_u32 v34, v34, 2, s10')
    a.emit('v_lshl_add_u32 v35, v35, 2, s10')
    a.emit('v_subrev_u32 v38, 64, v34')
    a.emit('v_subrev_u32 v39, 64, v35')
    a.emit(f'v_cndmask_b32 v{VKA}, v34, v38, s[{M_UPA}:{M_UPA+1}]')
    a.emit(f'v_cndmask_b32 v{VKB}, v35, v39, s[{M_UPB}:{M_UPB+1}]')
    a.emit(f'v_cndmask_b32 v{MAP}, 0, v36, s[{M_UPA}:{M_UPA+1}]')
    a.emit(f'v_cndmask_b32 v{MBP}, 0, v36, s[{M_UPB}:{M_UPB+1}]')
    a.emit(f'v_xor_b32 v{MAC}, v{MAP}, v36')
    a.emit(f'v_xor_b32 v{MBC}, v{MBP}, v36')
    a.emit('s_cmp_eq_u32 s8, 0')
    a.emit(f's_cselect_b64 s[{M_FA}:{M_FA+1}], s[{M_UPA}:{M_UPA+1}], 0')
    a.emit(f's_cselect_b64 s[{M_FB}:{M_FB+1}], s[{M_UPB}:{M_UPB+1}], 0')
    for i in list(range(120, 236)) + ([] if XD else list(range(240, 256))): a.emit(f'v_mov_b32 v{i}, 0')
    a.emit('s_waitcnt lgkmcnt(0)')
    srd(a, SO, 'ws', WS_O, 4 * MB)
    clear_flags(a, 0)
    if ENV('CTE', '0') == '0': code_touch(a, 'L_attn_c0', 'L_w2_c1', int(ENV('CTN', '256')))
    def warm():
        a.emit(f's_cmp_lg_u32 s{S_LAYER}, 0')
        a.emit(f's_cbranch_scc1 L_{kind}_nowarm')
        a.emit('s_lshl_b32 s3, s2, 2')
        a.emit(f's_add_u32 s3, s3, s{S_WV}')
        srd(a, SX, 'xs', 0, 4 * MB); srd(a, SW, 'wqkv', 0, 6 * MB)
        a.emit('v_min_u32 v126, 31, v1')
        a.emit('v_min_u32 v127, 47, v1')
        a.emit('v_lshlrev_b32 v126, 7, v126')
        a.emit('v_lshlrev_b32 v127, 7, v127')
        a.emit('s_lshl_b32 s4, s3, 12')
        a.emit(f's_mul_i32 s5, s3, {48 * 128}')
        a.emit(f'buffer_load_dword v2, v126, s[{SX}:{SX+3}], s4 offen')
        a.emit(f'buffer_load_dword v3, v127, s[{SW}:{SW+3}], s5 offen')
        a.emit('v_mov_b32 v126, 0')
        a.emit('v_mov_b32 v127, 0')
        a.label(f'L_{kind}_nowarm')
    WARM = ENV('WARM', '0')
    if WARM == '1': warm()
    def reads(s, ks):
        o = []
        if 'noread' in DBG: return o
        for jm in range(4):
            o.append(f'ds_read_b128 v[{fx(s,jm)}:{fx(s,jm)+3}], v{VA+ks} offset:{jm*2048}')
        o.append(f'ds_read_b128 v[{fx(s,4)}:{fx(s,4)+3}], v{VA+4+ks}')
        for jn in range(6):
            for h in range(2):
                r = fw(s, jn) + 2 * h
                o.append(f'ds_read_b64_tr_b16 v[{r}:{r+1}], v{VA+2+(jn&1)} offset:{(jn>>1)*8192+ks*4096+h*512}')
        return o
    def mfma(c, x, y, cin=None):
        return f'v_mfma_f32_16x16x32_bf16 v[{c}:{c+3}], v[{x}:{x+3}], v[{y}:{y+3}], ' + (f'v[{c}:{c+3}]' if cin is None else cin)
    def mf(s):
        o = []
        if 'nomfma' in DBG: return ['s_nop 0']
        for jn, jm in mf_order(6, 5, lambda jn, jm: jm == 4 and jn & 1):
            if True:
                c = acc(jn, jm) if jm < 4 else HACC + (jn >> 1) * 4
                o.append(mfma(c, fw(s, jn), fx(s, jm)) if jn < 4 else mfma(c, fx(s, jm), fw(s, jn)))
        return o
    SA = [(240, 244), (248, 252), (120, 124)]
    def mfv(hh):
        def f(s):
            o = mf(s)
            ex = []
            for i, jm in enumerate([2 * hh, 2 * hh + 1] + ([4] if hh == 0 else [])):
                ex.append(mfma(SA[i][0], ONES, fx(s, jm)))
                ex.append(mfma(SA[i][1], fx(s, jm), fx(s, jm)))
            return o if 'nostat' in DBG else ex + o
        return f
    def select():
        if WARM == '2': warm(); a.emit('s_nop 1')
        a.emit(f's_cmp_lg_u32 s{S_LAYER}, 0')
        a.emit(f's_cbranch_scc1 L_{kind}_loop')
        if XD:
            for i in range(240, 256): a.emit(f'v_mov_b32 v{i}, 0')
        a.emit(f's_cmp_lg_u32 s{S_WN}, 0')
        a.emit(f's_cbranch_scc1 L_{kind}_loopb')
        clear_flags(a, 1)
    def post():
        a.emit('v_and_b32 v32, 3, v1')
        a.emit('v_cmp_eq_u32 s[4:5], 1, v32')
        a.emit('v_cmp_eq_u32 s[6:7], 2, v32')
        a.emit('v_cmp_eq_u32 s[8:9], 3, v32')
        a.emit('v_bfe_u32 v33, v1, 2, 2')
        a.emit('v_lshrrev_b32 v34, 4, v1')
        a.emit('v_cmp_eq_u32 s[10:11], v33, v34')
        a.emit(f's_lshl_b32 s3, s{S_WN}, 7')
        a.emit(f'v_add_u32 v35, s3, v{VS1}')
        a.emit('v_and_b32 v36, 15, v1')
        a.emit(f's_cmp_eq_u32 s{S_WV}, 0')
        a.emit('s_cselect_b32 s3, 0, 576')
        a.emit(f's_add_u32 s3, s3, {LST}')
        a.emit('v_lshl_add_u32 v36, v36, 2, s3')
        for (sm, sq) in SA:
            a.emit(f'v_cndmask_b32 v{sm+1}, v{sq}, v{sq+1}, s[4:5]')
        for (sm, sq) in SA:
            a.emit(f'v_cndmask_b32 v{sm+1}, v{sm+1}, v{sq+2}, s[6:7]')
        for (sm, sq) in SA:
            a.emit(f'v_cndmask_b32 v{sm+1}, v{sm+1}, v{sq+3}, s[8:9]')
        for (sm, sq) in SA: stats_finish(a, sm)
        a.emit('s_mov_b64 exec, s[10:11]')
        a.emit(f'ds_write2_b32 v35, v{SA[0][0]}, v{SA[0][0]+1} offset0:16 offset1:176')
        a.emit(f'ds_write2_b32 v35, v{SA[1][0]}, v{SA[1][0]+1} offset0:32 offset1:192')
        a.emit(f'ds_write2_b32 v36, v{SA[2][0]}, v{SA[2][0]+1} offset0:0 offset1:160')
        a.emit('s_mov_b64 exec, -1')
        if XD:
            assert int(ENV('LM_WO', '2')) == 2 and int(ENV('LM_W2', '2')) == 2
            srd(a, SX, 'A_x', 0, 4 * MB)
            a.emit('s_and_b32 s3, s2, 3')
            a.emit(f's_and_b32 s4, s{S_CU}, 3')
            a.emit('s_lshl2_add_u32 s3, s3, s4')
            a.emit(f's_lshl2_add_u32 s3, s3, s{S_WV}')
            a.emit('s_lshl_b32 s3, s3, 16')
            a.emit('s_bfe_u32 s4, s2, 0x10002' if SPX else 's_and_b32 s4, s2, 4')
            a.emit(f's_lshr_b32 s5, s{S_CU}, 2')
            a.emit('s_lshl1_add_u32 s4, s5, s4' if SPX else 's_lshl1_add_u32 s4, s4, s5')
            a.emit('s_lshl_b32 s4, s4, 7')
            a.emit('s_add_u32 s3, s3, s4')
            a.emit('s_add_u32 s4, s3, 32768')
            a.emit('v_and_b32 v32, 15, v1')
            a.emit('v_lshlrev_b32 v33, 1, v1')
            a.emit('v_and_b32 v33, 32, v33')
            a.emit('v_lshl_add_u32 v32, v32, 11, v33')
            a.emit('v_lshrrev_b32 v33, 1, v1')
            a.emit('v_and_b32 v33, 16, v33')
            a.emit('v_add_u32 v32, v32, v33')
        a.emit('s_waitcnt lgkmcnt(0)')
        if XD:
            for i in range(4):
                a.emit(f'buffer_load_dwordx4 v[{240+4*i}:{243+4*i}], v32, s[{SX}:{SX+3}], s{3+(i>>1)} offen offset:{64*(i&1)}')
        a.emit('s_barrier')
    big_loop(a, kind, N, S, STAGE, 6, VB, VA, reads, mf, variants={'a': mfv(0), 'b': mfv(1)}, select=select, post=post)
    PR = 32
    CS = 48
    CV = 64
    MS = 66
    RK = 76
    M4 = 84
    R4 = 104
    VV = [4 if XD else 240, 224]
    for b in range(5):
        a.emit(f'ds_read2_b32 v[{MS+2*b}:{MS+2*b+1}], v{VS1} offset0:{16*b} offset1:{160+16*b}')
    for p in range(2):
        a.emit(f'ds_read2_b32 v[{RK+2*p}:{RK+2*p+1}], v{VKA} offset0:{32*p} offset1:{32*p+16}')
        a.emit(f'ds_read2_b32 v[{RK+4+2*p}:{RK+5+2*p}], v{VKB} offset0:{32*p} offset1:{32*p+16}')
    for c in range(3):
        a.emit(f'ds_write_b128 v{VXW}, v[{HACC+4*c}:{HACC+4*c+3}] offset:{2048*c}')
    a.emit(f's_cmp_eq_u32 s{S_WM}, 1')
    a.emit(f's_cbranch_scc1 L_{kind}_nop3')
    for t in range(2, 6):
        a.emit(f'ds_write_b128 v{VXW}, v[{acc(t,3)}:{acc(t,3)+3}] offset:{6144+1024*t}')
    a.label(f'L_{kind}_nop3')
    for b in range(5):
        a.emit(f'ds_read_b128 v[{M4+4*b}:{M4+4*b+3}], v{VS4} offset:{64*b}')
        a.emit(f'ds_read_b128 v[{R4+4*b}:{R4+4*b+3}], v{VS4} offset:{640+64*b}')
    a.emit('s_waitcnt lgkmcnt(10)')
    a.emit('s_barrier')
    for t in range(4):
        a.emit(f'ds_read_b128 v[{CS+4*t}:{CS+4*t+3}], v{VCO if t&1 else VCE} offset:{1024*t}')
    for t in range(2):
        a.emit(f'ds_read_b32 v{CV+t}, v{VVO if t else VVE} offset:{4096+1024*t}')
    for t in range(4):
        a.emit(f'ds_read_b128 v[{PR+4*t}:{PR+4*t+3}], v{VPO if t&1 else VPE} offset:{2048+1024*t}')
    sc = 32 ** -0.5 * 1.4426950408889634
    for b in range(4):
        a.emit(f'v_mul_f32 v{MS+2*b+3}, {f2u(sc):#x}, v{MS+2*b+3}')
    for b in range(4):
        a.emit(f'v_mul_f32 v{RK+b}, v{RK+b}, v{MS+2*b+3}')
        a.emit(f'v_mul_f32 v{RK+4+b}, v{RK+4+b}, v{MS+2*b+3}')
    a.emit('s_waitcnt lgkmcnt(6)')
    def qk(x, y, cs, b, d):
        m = f'v[{MS+2*b}:{MS+2*b+1}]'
        for (z, c) in ((x, cs), (y, cs + 4)):
            for h in range(2):
                a.emit(f'v_pk_fma_f32 v[{z+2*h}:{z+2*h+1}], v[{c+2*h}:{c+2*h+1}], {m}, v[{z+2*h}:{z+2*h+1}] op_sel:[0,0,0] op_sel_hi:[1,0,1] neg_lo:[0,1,0] neg_hi:[0,1,0]')
        a.emit(f'v_cvt_pk_bf16_f32 v{d}, v{x}, v{x+1}')
        a.emit(f'v_cvt_pk_bf16_f32 v{d+1}, v{x+2}, v{x+3}')
        a.emit(f'v_cvt_pk_bf16_f32 v{d+2}, v{y}, v{y+1}')
        a.emit(f'v_cvt_pk_bf16_f32 v{d+3}, v{y+2}, v{y+3}')
    Q = lambda b: acc(0, b); Kf = lambda b: acc(2, b) if b >= 0 else PR
    Sc = lambda b: acc(1, b); Sp = lambda b: acc(3, b)
    for b in range(4):
        qk(acc(0, b), acc(1, b), CS, b + 1, Q(b))
        qk(acc(2, b), acc(3, b), CS + 8, b + 1, Kf(b))
        if b == 3:
            a.emit('s_waitcnt lgkmcnt(0)')
            qk(PR, PR + 4, CS + 8, 0, PR)
        if b >= 1:
            a.emit(mfma(Sc(b - 1), Kf(b - 1), Q(b - 1), '0'))
            if b >= 2: a.emit(mfma(Sp(b - 1), Kf(b - 2), Q(b - 1), '0'))
    a.emit(mfma(Sc(3), Kf(3), Q(3), '0'))
    a.emit(mfma(Sp(3), Kf(2), Q(3), '0'))
    a.emit(mfma(Sp(0), Kf(-1), Q(0), '0'))
    def vconv(x, t, b):
        cv = f'v[{CV}:{CV+1}]'
        for h in range(2):
            a.emit(f'v_pk_fma_f32 v[{x+2*h}:{x+2*h+1}], v[{M4+4*b+2*h}:{M4+4*b+2*h+1}], {cv}, v[{x+2*h}:{x+2*h+1}] op_sel:[0,{t},0] op_sel_hi:[1,{t},1] neg_lo:[1,0,0] neg_hi:[1,0,0]')
        for h in range(2):
            a.emit(f'v_pk_mul_f32 v[{x+2*h}:{x+2*h+1}], v[{x+2*h}:{x+2*h+1}], v[{R4+4*b+2*h}:{R4+4*b+2*h+1}]')
        for h in range(2):
            a.emit(f'v_cvt_pk_bf16_f32 v{VV[t]+2*b+h}, v{x+2*h}, v{x+2*h+1}')
    for t in range(2):
        vconv(PR + 8 + 4 * t, t, 0)
        for b in range(4): vconv(acc(4 + t, b), t, b + 1)
    T = lambda b: 32 + 4 * b
    odd = f's[{M_ODD}:{M_ODD+1}]'
    for b in (1, 2, 3, 0):
        a.emit(f'v_cndmask_b32 v{Sc(b)}, v{Sc(b)}, v{Sc(b)+1}, {odd}')
        a.emit(f'v_cndmask_b32 v{Sp(b)}, v{Sp(b)}, v{Sp(b)+1}, {odd}')
        a.emit(f'v_cndmask_b32 v{Sc(b)+2}, v{Sc(b)+2}, v{Sc(b)+3}, {odd}')
        a.emit(f'v_cndmask_b32 v{Sp(b)+2}, v{Sp(b)+2}, v{Sp(b)+3}, {odd}')
        a.emit(f'v_cndmask_b32 v{T(b)}, v{Sc(b)}, v{Sp(b)}, s[{M_UPA}:{M_UPA+1}]')
        a.emit(f'v_cndmask_b32 v{T(b)+1}, v{Sc(b)+2}, v{Sp(b)+2}, s[{M_UPB}:{M_UPB+1}]')
        a.emit(f'v_mul_f32 v{T(b)}, v{T(b)}, v{RK+b}')
        a.emit(f'v_mul_f32 v{T(b)+1}, v{T(b)+1}, v{RK+4+b}')
    a.emit(f'v_mov_b32 v48, {f2u(-1e9 * 1.4426950408889634):#x}')
    a.emit(f'v_cndmask_b32 v{T(0)}, v{T(0)}, v48, s[{M_FA}:{M_FA+1}]')
    a.emit(f'v_cndmask_b32 v{T(0)+1}, v{T(0)+1}, v48, s[{M_FB}:{M_FB+1}]')
    for b in range(4): a.emit(f'v_max_f32 v{T(b)+2}, v{T(b)}, v{T(b)+1}')
    for op in ('32', '16'):
        for b in range(4): a.emit(f'v_mov_b32 v{T(b)+3}, v{T(b)+2}')
        for b in range(4): a.emit(f'v_permlane{op}_swap_b32 v{T(b)+2}, v{T(b)+3}')
        for b in range(4): a.emit(f'v_max_f32 v{T(b)+2}, v{T(b)+2}, v{T(b)+3}')
    for b in range(4):
        a.emit(f'v_sub_f32 v{T(b)}, v{T(b)}, v{T(b)+2}')
        a.emit(f'v_sub_f32 v{T(b)+1}, v{T(b)+1}, v{T(b)+2}')
    for b in range(4):
        a.emit(f'v_exp_f32 v{T(b)}, v{T(b)}')
        a.emit(f'v_exp_f32 v{T(b)+1}, v{T(b)+1}')
    P = lambda b: acc(0, b)
    for b in range(4):
        a.emit(f'v_cvt_pk_bf16_f32 v{T(b)}, v{T(b)}, v{T(b)}')
        a.emit(f'v_cvt_pk_bf16_f32 v{T(b)+1}, v{T(b)+1}, v{T(b)+1}')
        a.emit(f'v_and_b32 v{P(b)}, v{T(b)}, v{MAP}')
        a.emit(f'v_and_b32 v{P(b)+1}, v{T(b)+1}, v{MBP}')
        a.emit(f'v_and_b32 v{P(b)+2}, v{T(b)}, v{MAC}')
        a.emit(f'v_and_b32 v{P(b)+3}, v{T(b)+1}, v{MBC}')
        if b >= 1:
            q = b - 1
            a.emit(mfma(acc(1, q), ONES, P(q), '0'))
            a.emit(mfma(acc(4, q), VV[0] + 2 * q, P(q), '0'))
            a.emit(mfma(acc(5, q), VV[1] + 2 * q, P(q), '0'))
    q = 3
    a.emit(mfma(acc(1, q), ONES, P(q), '0'))
    a.emit(mfma(acc(4, q), VV[0] + 2 * q, P(q), '0'))
    a.emit(mfma(acc(5, q), VV[1] + 2 * q, P(q), '0'))
    for b in range(4):
        r = acc(1, b); d = 48 + 4 * b
        a.emit(f'v_rcp_f32 v{r}, v{r}')
        a.emit(f's_mov_b32 s3, {b * 16 * 2048}')
        for t in range(2):
            x = acc(4 + t, b)
            for h in range(2):
                a.emit(f'v_pk_mul_f32 v[{x+2*h}:{x+2*h+1}], v[{x+2*h}:{x+2*h+1}], v[{r}:{r+1}] op_sel_hi:[1,0]')
        for t in range(2):
            x = acc(4 + t, b)
            for h in range(2):
                a.emit(f'v_cvt_pk_bf16_f32 v{d+2*t+h}, v{x+2*h}, v{x+2*h+1}')
        a.emit('s_nop 1')
        a.emit(f'v_permlane16_swap_b32 v{d}, v{d+2}')
        a.emit(f'v_permlane16_swap_b32 v{d+1}, v{d+3}')
        a.emit(f'buffer_store_dwordx4 v[{d}:{d+3}], v{VO}, s[{SO}:{SO+3}], s3 offen{stf(kind)}')
    compute_end(a, kind)
    a.label(f'L_{kind}_loader')
    L = Loader(a, kind, K, lda2, ldw2, [0, 2048, 4096], 128, S, STAGE, halo=XH, rot=int(ENV('ROT_QKV', '0')))
    L.setup()
    a.emit('s_waitcnt lgkmcnt(0)')
    srd_xs(a, SX); srd(a, SW, 'wqkv', 0, 1024 * 6144)
    import sides
    a.emit(f's_cmp_lg_u32 s{S_LAYER}, 0')
    a.emit(f's_cbranch_scc1 L_{kind}_ld1')
    post = sides.stouch_post(a, kind)
    extra = tail_parks('wo', SP, lambda b: srd(b, SP, 'wo', 0, 2 * MB))
    sch0 = [int(c) for c in ENV('TSO0', '00000')]
    extra0 = tail_parks('wo', SP, lambda b: srd(b, SP, 'wo', 0, 2 * MB), sch0 + [sum(TSCH['wo']) - sum(sch0)])
    npk = 2 * sum(TSCH['wo']) if XD else 0
    L.run('0', tail_issue=lambda: side(a, 0, 'issue'), ntail_vm=side(Asm(), 0, 'issue'), post=post, start=lambda: sides.cls_touch(a), extra=extra0)
    for i in (16, 17):
        if XD:
            for x in extra0(i): a.emit(x)
        a.emit('s_barrier')
    if XD:
        for x in extra0(18): a.emit(x)
    if ONE:
        a.emit(f's_branch L_{kind}_ldend')
    else:
        side(a, 0, 'finish')
        a.emit('s_endpgm')
    a.label(f'L_{kind}_ld1')
    srd(a, ST, 'ws0', WS_ST2, 16 * 16384)
    n1 = side(Asm(), 1, 'issue')
    def tail1():
        stats_loads(a, 32, True)
        side(a, 1, 'issue')
    def final1():
        a.emit(f's_waitcnt vmcnt({n1 + npk})')
        stats_reduce_store(a, 32, LST)
        a.emit('s_waitcnt lgkmcnt(0)')
    L.run('1', tail_issue=tail1, ntail_vm=16 + n1, final=final1, extra=extra, dep=(lambda pf: dep_wait(a, kind, halo=True, postf=pf)) if MEGA else None)
    a.emit('s_barrier')
    if not MEGA: side(a, 1, 'finish')
    a.label(f'L_{kind}_ldend')
    loader_end(a, kind, check=False)
    a.label(end)
    a.emit('s_endpgm')
    loader_first(a, kind)
    a(KD.format(name=f'{kind}l0_kernel'))
    if not MEGA:
        stub(a, f'{kind}l1_kernel', body, 1, tsidx + 4, False)
        a(KD.format(name=f'{kind}l1_kernel'))
    a.label(f'L_{kind}_c1')
    return LST + 1280
```

```python
import sys, os, struct
sys.path.insert(0, os.path.join(os.path.dirname(os.path.abspath(__file__)), '..'))
from asmlib import Asm, check_offsets
MB = 1 << 20
WSB = int(os.environ.get('WSB', '0')) * MB
WS_O   = WSB
WS_X1  = WSB + 4 * MB
WS_H   = WSB + 8 * MB
WS_ST  = WSB + 23 * MB
WS_CS  = WSB + 23 * MB + 512 * 1024
WS_TS  = 60 * MB
MEGA = os.environ.get('MEGA', '2') in ('1', '2')
ONE = os.environ.get('MEGA', '2') == '2'
LSTR = 64 * MB
WS_ST2 = WS_ST + 256 * 1024 if MEGA else WS_ST
WS_FL = WSB + 40 * MB
FLS = 524288
REP = int(os.environ.get('REP', '16'))
WS_XP = WSB + 24 * MB
WS_X2 = WSB + 32 * MB
XPAD = int(os.environ.get('XPAD', '128')) if MEGA else 0
f2u = lambda f: struct.unpack('<I', struct.pack('<f', f))[0]
ENV = os.environ.get
TS = ENV('TS', '')
DBG = ENV('DBG', '').split(',')
EARLY = int(ENV('EARLY', '0')) if MEGA and ENV('SPLIT', '0') == '0' else 0
def stf(kind): return (' ' + ENV('WTF', 'sc1')) if kind in ENV('WT', 'attn,wo,w2,w1').split(',') else ''

KA = {'A_x': 0, 'wqkv': 8, 'wo': 16, 'w1': 32, 'b1': 40, 'w2': 48, 'b2': 56, 'out': 64, 'ws': 80}
P_IN = 16
P_OUT = 32; P_WS = 34
P_XS = 12
PTR = {'A_x': 16, 'wqkv': 18, 'wo': 20, 'w1': 24, 'b1': 26, 'w2': 28, 'b2': 30, 'out': 32, 'ws': 34, 'xs': 12, 'ws0': 22}
SX, SW, SO, SR, SB, ST, SP, SC = 36, 40, 44, 48, 52, 56, 60, 64
S_MT, S_NT, S_WV, S_WM, S_WN = 68, 69, 70, 71, 72
S_KX, S_KW, S_SLOT, S_XD, S_WD, S_HD, S_CNT = 73, 74, 75, 76, 77, 78, 79
S_LAYER = 96; S_TSI = 97; S_T = 98; S_CU = 99; S_XG = 100; S_KT = 101

KD = '''.section .rodata,"a"
.p2align 6
.amdhsa_kernel {name}
  .amdhsa_next_free_vgpr 256
  .amdhsa_next_free_sgpr 102
  .amdhsa_accum_offset 256
  .amdhsa_group_segment_fixed_size 0
  .amdhsa_kernarg_size 88
  .amdhsa_user_sgpr_count 2
  .amdhsa_user_sgpr_kernarg_segment_ptr 1
  .amdhsa_system_sgpr_workgroup_id_x 1
  .amdhsa_float_denorm_mode_32 3
  .amdhsa_float_denorm_mode_16_64 3
.end_amdhsa_kernel
.text
'''

def srd(a, sd, which, off, size):
    p = PTR[which]
    if off:
        a.emit(f's_add_u32 s{sd}, s{p}, {off}')
        a.emit(f's_addc_u32 s{sd+1}, s{p+1}, 0')
        a.emit(f's_and_b32 s{sd+1}, s{sd+1}, 0xffff')
    else:
        a.emit(f's_mov_b32 s{sd}, s{p}')
        a.emit(f's_and_b32 s{sd+1}, s{p+1}, 0xffff')
    a.emit(f's_mov_b32 s{sd+2}, {size}')
    a.emit(f's_mov_b32 s{sd+3}, 0x00020000')

def xpitch(a, sd, inv=False):
    a.emit(f's_cmp_eq_u32 s{S_LAYER}, {0 if inv else 1}')
    a.emit(f's_cselect_b32 s{sd}, {XPAD}, 0')
    a.emit(f's_add_u32 s{sd}, s{sd}, 2048')

def srd_xs(a, sd):
    srd(a, sd, 'xs', 0, 4 * MB)
    xpitch(a, sd + 2)
    a.emit(f's_lshl_b32 s{sd+2}, s{sd+2}, 11')

def stub(a, name, body, layer, tsidx, first):
    a(f'.text\n.globl {name}\n.p2align 8\n.type {name},@function\n{name}:')
    if TS:
        stamp(a, 0, nowait=True)
    a.emit('s_load_dwordx4 s[16:19], s[0:1], 0')
    a.emit('s_load_dwordx2 s[20:21], s[0:1], 16')
    a.emit('s_load_dwordx2 s[22:23], s[0:1], 80')
    a.emit('s_load_dwordx8 s[24:31], s[0:1], 32')
    a.emit('s_load_dwordx2 s[32:33], s[0:1], 64')
    a.emit('s_load_dwordx2 s[34:35], s[0:1], 80')
    a.emit(f's_load_dwordx2 s[12:13], s[0:1], {0 if layer == 0 else 64}')
    a.emit(f's_mov_b32 s{S_LAYER}, {layer}')
    a.emit(f's_mov_b32 s{S_TSI}, {tsidx}')
    if not first:
        a.emit(f's_branch {body}')

def stamp(a, n, nowait=False):
    if not TS: return
    a.emit(f's_memrealtime s[{80+4*n}:{81+4*n}]')
    a.emit(f's_memtime s[{82+4*n}:{83+4*n}]')
    if not nowait: a.emit('s_waitcnt lgkmcnt(0)')

def stamps_out(a, tag):
    if not TS: return
    if not MEGA: a.emit('s_waitcnt vmcnt(0)')
    stamp(a, 3)
    if MEGA and tag == 'w1':
        for i in range(16): a.emit(f'v_writelane_b32 v31, s{80+i}, {i}')
        return
    srd(a, SP, 'ws0', WS_TS, 1 << 20)
    a.emit('s_lshl_b32 s4, s2, 6')
    a.emit(f's_lshl_b32 s5, s{S_TSI}, 16')
    a.emit('s_add_u32 s4, s4, s5')
    a.emit('v_mov_b32 v1, s4')
    for i in range(16): a.emit(f'v_mov_b32 v{4+i}, s{80+i}')
    a.emit('v_cmp_eq_u32 vcc, 0, v0')
    a.emit('s_and_saveexec_b64 s[6:7], vcc')
    a.emit(f's_cbranch_execz L_tsskip_{tag}')
    for j in range(4):
        a.emit(f'buffer_store_dwordx4 v[{4+4*j}:{7+4*j}], v1, s[{SP}:{SP+3}], 0 offen offset:{16*j}')
    if MEGA and tag == 'w2':
        a.emit('s_mov_b64 exec, 0xffff')
        a.emit('s_sub_u32 s4, s4, 0x10000')
        a.emit('v_lshlrev_b32 v1, 2, v0')
        a.emit(f'buffer_store_dword v31, v1, s[{SP}:{SP+3}], s4 offen')
    a.label(f'L_tsskip_{tag}')
    a.emit('s_mov_b64 exec, -1')

SPX = ENV('SPX', '1') == '1'
def lstamp(a, n, dep=False):
    if dep and ENV('LST') == 'x': return
    if TS: a.emit(f's_memrealtime s[{52+2*n}:{53+2*n}]')

def lstamps_out(a, tag):
    if not TS: return
    a.emit(f's_cmp_lg_u32 s{S_WV}, 4')
    a.emit(f's_cbranch_scc1 L_ltsskip_{tag}')
    a.emit('s_waitcnt lgkmcnt(0)')
    srd(a, SP, 'ws0', WS_TS + 16384, 1 << 20)
    a.emit('s_lshl_b32 s4, s2, 6')
    a.emit(f's_lshl_b32 s5, s{S_TSI}, 16')
    a.emit('s_add_u32 s4, s4, s5')
    for i in range(8): a.emit(f'v_writelane_b32 v20, s{52+i}, {i}')
    a.emit('v_lshlrev_b32 v21, 2, v1')
    a.emit('s_mov_b64 exec, 0xff')
    a.emit(f'buffer_store_dword v20, v21, s[{SP}:{SP+3}], s4 offen')
    a.emit('s_mov_b64 exec, -1')
    a.label(f'L_ltsskip_{tag}')

def tile_map(a, LM, endlab, pair=False):
    a.emit('s_cmp_ge_u32 s2, 256')
    a.emit(f's_cbranch_scc1 {endlab}')
    a.emit('v_lshrrev_b32 v2, 6, v0')
    a.emit('v_and_b32 v1, 63, v0')
    a.emit(f'v_readfirstlane_b32 s{S_WV}, v2')
    a.emit('s_and_b32 s3, s2, 7')
    a.emit(f's_lshr_b32 s{S_CU}, s2, 3')
    if LM == 2 and ENV('MAP2', '0') == '1':
        a.emit('s_lshl_b32 s5, s3, 1')
        a.emit('s_lshr_b32 s6, s3, 1')
        a.emit('s_and_b32 s5, s5, 2')
        a.emit('s_and_b32 s6, s6, 1')
        a.emit('s_or_b32 s5, s5, s6')
    else: a.emit(f's_and_b32 s5, s3, {(1 << (4 - LM)) - 1}')
    a.emit(f's_lshl_b32 s5, s5, {LM}')
    a.emit(f's_and_b32 s6, s{S_CU}, {(1 << LM) - 1}')
    a.emit(f's_add_u32 s{S_MT}, s5, s6')
    a.emit(f's_lshr_b32 s5, s3, {4 - LM}')
    if pair:
        a.emit(f's_lshr_b32 s{S_HD}, s{S_CU}, {LM}')
        a.emit(f's_lshl1_add_u32 s{S_NT}, s{S_HD}, s5')
        return
    a.emit(f's_lshl_b32 s5, s5, {5 - LM}')
    a.emit(f's_lshr_b32 s6, s{S_CU}, {LM}')
    a.emit(f's_add_u32 s{S_NT}, s5, s6')
    if 'smallm' in DBG: a.emit(f's_and_b32 s{S_MT}, s{S_MT}, 1')
    if 'smalln' in DBG: a.emit(f's_and_b32 s{S_NT}, s{S_NT}, 1')

def interleave(a, main, side, lead=1, per=1):
    si = 0
    for i, m in enumerate(main):
        a.emit(m)
        if i + 1 >= lead:
            for _ in range(per):
                if si < len(side): a.emit(side[si]); si += 1
    while si < len(side): a.emit(side[si]); si += 1

class Loader:
    VXD = 4; VWD = 8; VXH = 28
    def __init__(self, a, tag, K, lda2, ldw2, panels, colbase, S, STAGE, halo=None, delta=0, rot=None, xblk=False, half=0):
        self.a = a; self.tag = tag; self.K = K; self.lda2 = lda2; self.ldw2 = ldw2; self.panels = panels
        self.colbase = colbase; self.S = S; self.STAGE = STAGE; self.halo = halo; self.delta = delta; self.xblk = xblk; self.rot = rot if rot is not None and rot >= 0 else None
        self.NSTEP = K // 64; self.half = half
        self.per = 4 + 2 * len(panels) + (1 if halo is not None else 0)
    def setup(self):
        a = self.a
        if ENV('PRIO', '0') != '0': a.emit(f"s_setprio {ENV('PRIO')}")
        a.emit(f's_add_u32 s8, s{S_WV}, s{S_NT}')
        a.emit('s_and_b32 s8, s8, 3')
        a.emit(f's_add_u32 s9, s{S_WV}, s{S_MT}')
        a.emit('s_and_b32 s9, s9, 3')
        a.emit(f's_lshl_b32 s{S_XD}, s8, 12')
        a.emit(f's_lshl_b32 s{S_WD}, s9, 11')
        a.emit(f's_add_u32 s{S_WD}, s{S_WD}, 16384')
        a.emit(f's_lshl_b32 s11, s{S_MT}, 7')
        a.emit('v_and_b32 v10, 7, v1')
        if self.xblk: self.xoff_blk(self.lda2)
        else: self.xoff_rows(self.lda2)
        a.emit('v_lshrrev_b32 v3, 3, v1')
        a.emit('s_lshl_b32 s10, s9, 4')
        a.emit('v_add_u32 v3, s10, v3')
        a.emit(f'v_mul_u32_u24 v3, {self.ldw2}, v3')
        a.emit('v_lshrrev_b32 v2, 3, v1')
        a.emit('v_and_b32 v2, 2, v2')
        a.emit('v_xor_b32 v2, v2, v10')
        a.emit(f's_mul_i32 s10, s{S_NT}, {self.colbase}')
        if self.colbase & 127: a.emit('s_andn2_b32 s10, s10, 127')
        a.emit('v_add_u32 v3, s10, v3')
        a.emit(f'v_lshl_add_u32 v{self.VWD}, v2, 4, v3')
        a.emit('v_xor_b32 v2, 4, v2')
        a.emit(f'v_add_u32 v3, {8*self.ldw2}, v3')
        a.emit(f'v_lshl_add_u32 v{self.VWD+1}, v2, 4, v3')
        if self.half:
            a.emit('v_lshrrev_b32 v3, 2, v1')
            a.emit('s_lshl_b32 s10, s9, 4')
            a.emit('v_add_u32 v3, s10, v3')
            a.emit(f'v_mul_u32_u24 v3, {self.ldw2}, v3')
            a.emit('v_lshrrev_b32 v2, 4, v1')
            a.emit('v_and_b32 v2, 2, v2')
            a.emit('v_xor_b32 v2, v2, v1')
            a.emit('v_and_b32 v2, 3, v2')
            a.emit(f's_lshl_b32 s10, s{S_NT}, 6')
            a.emit(f's_add_u32 s10, s10, {self.half}')
            a.emit('v_add_u32 v3, s10, v3')
            a.emit(f'v_lshl_add_u32 v{self.VXH}, v2, 4, v3')
            a.emit(f's_lshl_b32 s{S_HD}, s{S_NT}, 7')
            a.emit(f's_add_u32 s{S_HD}, s{S_HD}, 3072')
        if self.halo is not None:
            a.emit(f's_and_b32 s10, s{S_WV}, 3')
            a.emit(f's_lshl_b32 s{S_HD}, s10, 9')
            a.emit(f's_add_u32 s{S_HD}, s{S_HD}, {self.halo}')
            a.emit('s_lshl_b32 s14, s10, 2')
            a.emit('s_add_u32 s14, s14, s11')
            a.emit('s_sub_u32 s14, s14, 16')
            a.emit('v_lshrrev_b32 v3, 3, v1')
            a.emit('v_add_u32 v3, s14, v3')
            a.emit('v_max_i32 v3, 0, v3')
            a.emit('v_mul_u32_u24 v3, s5, v3')
            a.emit('s_lshl_b32 s14, s10, 1')
            a.emit('v_lshrrev_b32 v2, 4, v1')
            a.emit('v_add_u32 v2, s14, v2')
            a.emit('v_and_b32 v2, 7, v2')
            a.emit('v_xor_b32 v2, v2, v10')
            a.emit(f'v_lshl_add_u32 v{self.VXH}, v2, 4, v3')
            a.emit('s_cmp_eq_u32 s10, 0')
            a.emit('s_cselect_b32 s14, 0xffffff00, -1')
            a.emit('s_mov_b32 s15, 0')
        a.emit(f's_mov_b32 s{S_SLOT}, 0')
        if self.rot is None:
            a.emit(f's_mov_b32 s{S_KX}, 0')
            a.emit(f's_mov_b32 s{S_KW}, 0')
        else:
            if not getattr(self, 'noxg', False): a.emit(f's_add_u32 s{S_XG}, s{S_MT}, s{S_NT}')
            a.emit(f's_mov_b32 s{S_KT}, {0 if EARLY and self.tag == "w2" else -1}')
            for x in self.knext(): a.emit(x)
    def xoff_rows(self, ld):
        a = self.a
        a.emit('v_lshrrev_b32 v3, 3, v1')
        a.emit(f's_lshr_b32 s10, s{S_XD}, 7')
        a.emit(f's_lshl_b32 s3, s{S_MT}, 7')
        a.emit('s_add_u32 s10, s10, s3')
        a.emit('v_add_u32 v3, s10, v3')
        xpitch(a, 5)
        a.emit('s_lshl_b32 s6, s5, 3')
        a.emit('v_mul_u32_u24 v3, s5, v3')
        a.emit('v_lshrrev_b32 v2, 4, v1')
        for j in range(4):
            d = self.VXD + j
            if j & 1:
                a.emit(f'v_add_u32 v{d}, 4, v2')
                a.emit(f'v_xor_b32 v{d}, v{d}, v10')
            else:
                a.emit(f'v_xor_b32 v{d}, v2, v10')
            a.emit(f'v_lshl_add_u32 v{d}, v{d}, 4, v3')
            if j < 3: a.emit('v_add_u32 v3, s6, v3')
    def xoff_blk(self, ld):
        a = self.a
        a.emit(f's_lshr_b32 s10, s{S_XD}, 11')
        a.emit(f's_lshl_b32 s3, s{S_MT}, 3')
        a.emit('s_add_u32 s10, s10, s3')
        a.emit(f's_mul_i32 s10, s10, {16*ld}')
        a.emit(f'v_lshl_add_u32 v{self.VXD}, v1, 4, s10')
        a.emit(f'v_add_u32 v{self.VXD+1}, {16*ld}, v{self.VXD}')
    def xdma(self, base, imm, sd, soff, blk):
        o = []
        for j in range(4):
            if blk:
                if not j & 1: o += [f's_add_u32 m0, s{base}, {imm + j*1024}', 's_nop 0']
                o.append(f'buffer_load_dwordx4 v{self.VXD+(j>>1)}, s[{sd}:{sd+3}], s{soff} offen offset:{(j&1)*1024} lds')
            else:
                o += [f's_add_u32 m0, s{base}, {imm + j*1024}', 's_nop 0', f'buffer_load_dwordx4 v{self.VXD+j}, s[{sd}:{sd+3}], s{soff} offen lds']
        return o
    def knext(self):
        if self.rot is None:
            return [f's_add_u32 s{S_KX}, s{S_KX}, {2048 if self.xblk else 128}', f's_add_u32 s{S_KW}, s{S_KW}, {64*self.ldw2}']
        lc = self.rot; C = 1 << lc; N = self.NSTEP
        o = [f's_add_u32 s{S_KT}, s{S_KT}, 1']
        D = int(ENV('ROTD_' + self.tag.upper(), ENV('ROTD', '2')))
        dl = {3: [3, -1, -1, -1], 2: [2, -1, -1, 0], 1: [1, -1, 0, 0]}[D]
        tbl = sum((((d * C) % N) << (8 * i)) for i, d in enumerate(dl))
        if lc: o += [f's_lshr_b32 s{S_KX}, s{S_KT}, {lc}', f's_sub_u32 s{S_KX}, s{S_KX}, s{S_XG}']
        else: o += [f's_sub_u32 s{S_KX}, s{S_KT}, s{S_XG}']
        o += [f's_lshl_b32 s{S_KX}, s{S_KX}, 3',
              f's_lshr_b32 s{S_KX}, {tbl:#x}, s{S_KX}',
              f's_and_b32 s{S_KX}, s{S_KX}, 255',
              f's_add_u32 s{S_KX}, s{S_KX}, s{S_KT}']
        if N & (N - 1) == 0: o += [f's_and_b32 s{S_KX}, s{S_KX}, {N - 1}']
        else: o += [f's_sub_u32 s{S_KW}, s{S_KX}, {N}', f's_cselect_b32 s{S_KX}, s{S_KX}, s{S_KW}']
        o += [f's_mul_i32 s{S_KW}, s{S_KX}, {64*self.ldw2}', f's_lshl_b32 s{S_KX}, s{S_KX}, {11 if self.xblk else 7}']
        return o
    def panels_of(self, t): return self.panels
    def issue_x(self, bx, bh, imm, kx):
        o = self.xdma(bx, imm, SX, kx, self.xblk)
        if self.halo is not None:
            o.append(f's_add_u32 m0, s{S_HD}, {bh}')
            o.append('s_mov_b64 exec, s[14:15]')
            o.append(f'buffer_load_dwordx4 v{self.VXH}, s[{SX}:{SX+3}], s{kx} offen lds')
            o.append('s_mov_b64 exec, -1')
        return o
    def issue_w(self, t, bw, imm):
        o = []
        for pn, goff in enumerate(self.panels_of(t)):
            for i in range(2):
                o.append(f's_add_u32 m0, s{bw}, {imm+pn*8192+i*1024}')
                o.append((goff if str(goff).startswith('s_') else f's_add_u32 s4, s{S_KW}, {goff}') if i == 0 else 's_nop 0')
                o.append(f'buffer_load_dwordx4 v{self.VWD+i}, s[{SW}:{SW+3}], s4 offen lds')
        if self.half:
            o += [f's_add_u32 m0, s{bw}, {imm+len(self.panels)*8192}', 's_nop 0',
                  f'buffer_load_dwordx4 v{self.VXH}, s[{SW}:{SW+3}], s{S_KW} offen lds']
        return o
    def issue(self, t):
        o = [f's_add_u32 s3, s{S_SLOT}, s{S_XD}']
        o += self.issue_x(3, f's{S_SLOT}', 0, S_KX)
        o.append(f's_add_u32 s3, s{S_SLOT}, s{S_WD}')
        o += self.issue_w(t, 3, 0)
        o += self.knext()
        o.append(f's_add_u32 s{S_SLOT}, s{S_SLOT}, {self.STAGE}')
        o.append(f's_cmp_eq_u32 s{S_SLOT}, {self.S*self.STAGE}')
        o.append(f's_cselect_b32 s{S_SLOT}, 0, s{S_SLOT}')
        return o
    def run(self, variant='', tail_issue=None, ntail_vm=0, final=None, post=(), dep=None, tail_late=0, start=None, extra=None):
        a = self.a; N = self.NSTEP; d = self.S - 1
        tag = self.tag + variant
        nx = 4 + (1 if self.halo is not None else 0)
        nw = lambda t: 2 * len(self.panels_of(t)) + (1 if self.half else 0)
        seq = []
        early = EARLY and self.tag == 'w2'
        pchk = EARLY - 3 - d - 1; piss = pchk - d + 1 - int(ENV('PEARLY', '0'))
        def em(o):
            for x in o:
                if 'nodma' in DBG and x.endswith(' lds'): continue
                a.emit(x)
        def after(t): return len(seq) - 1 - max(i for i, x in enumerate(seq) if x == t)
        def wait(n):
            assert n <= 63, n
            a.emit(f's_waitcnt vmcnt({n})')
        if dep is None:
            for t in range(2): em(self.issue(t)); seq += [t] * (nx + nw(t))
            if start: start()
            wait(after(0))
            a.emit('s_barrier')
            for t in range(2, d): em(self.issue(t)); seq += [t] * (nx + nw(t))
        else:
            prev = {'attn': 'w2', 'wo': 'attn', 'w1': 'wo', 'w2': 'w1'}[self.tag]
            assert 'attn' not in EBAR
            dep_pre(a, self.tag)
            if prev in EBAR: a.emit('s_barrier')
            xw = 1 if self.tag in ENV('XW', 'x').split(',') and not hasattr(self, 'P1') else 0
            def prew(ts):
                for t in ts:
                    a.emit(f's_mov_b32 s{88+t}, s{S_KX}')
                    em(self.issue_w(t, S_WD, t * self.STAGE) + self.knext()); seq.extend([t] * nw(t))
            late = int(ENV('LATE_' + self.tag.upper(), '2'))
            prew(range(d + xw - late))
            self.npre = len(seq)
            a.emit(f's_mov_b32 s{S_SLOT}, {0 if xw else d * self.STAGE}')
            dep((lambda: prew(range(d + xw - late, d + xw))) if late else None)
            for t in range(d + xw):
                em(self.issue_x(S_XD, t * self.STAGE, t * self.STAGE, 88 + t)); seq += [t] * nx
            wait(after(0))
            if self.tag == 'w2': lstamp(a, 2)
            a.emit('s_barrier')
            if early: late_flag(a)
        ev = []
        for i in range(N):
            t = i + d
            if t in seq: t = N + 9
            if early and i == piss: seq += ['P']
            if t < N: seq += [t] * (nx + nw(t))
            ex = extra(i) if extra else []
            tl = tail_issue is not None and t == N - 1 + tail_late
            if tl: seq += ['T'] * ntail_vm
            seq += ['E'] * sum(x.startswith('buffer_load') for x in ex)
            ev.append(((nw(t) if t < N else -1, after(i + 1) if i + 1 < N else -1, tl, early and i == piss, early and i == pchk, tuple(ex)), t))
        i = 0; nl = 0
        while i < N:
            j = i
            while j + 1 < N and ev[j + 1][0] == ev[i][0]: j += 1
            n = j - i + 1
            (k, w, tl, pi, pc, ex), t = ev[i]
            if n >= 3:
                nl += 1
                a.emit(f's_mov_b32 s{S_CNT}, {n}')
                a.label(f'L_{tag}_ld{nl}')
            else: j = i
            if pi: a.emit(f'buffer_load_dword v13, v12, s[{SO}:{SO+3}], s86 offen sc1')
            if t < N:
                em(self.issue(t)); em(post)
            if tl: tail_issue()
            em(ex)
            if w >= 0: wait(w)
            elif final: final()
            if pc: late_check(a)
            a.emit('s_barrier')
            if n >= 3:
                a.emit(f's_sub_u32 s{S_CNT}, s{S_CNT}, 1')
                a.emit(f's_cmp_lg_u32 s{S_CNT}, 0')
                a.emit(f's_cbranch_scc1 L_{tag}_ld{nl}')
            i = j + 1

XD = ONE and ENV('SPLIT', '0') == '0' and ENV('XD', '1') == '1'
VW = MEGA and ENV('SPLIT', '0') == '0' and ENV('VW', '0') == '1'
NV1 = int(ENV('NV1', '16')); NV2 = int(ENV('NV2', '12')); NVO = int(ENV('NVO', '11'))
S_TB = 85
def rot_table(a, sd, smt, snt, tag):
    D = int(ENV('ROTD_' + tag.upper(), ENV('ROTD', '2')))
    dl = {3: [3, -1, -1, -1], 2: [2, -1, -1, 0], 1: [1, -1, 0, 0], 0: [0, 0, 0, 0]}[D]
    tbl = sum((d & 255) << (8 * i) for i, d in enumerate(dl))
    a.emit(f's_add_u32 s3, s{smt}, s{snt}')
    a.emit('s_lshl_b32 s3, s3, 3')
    a.emit(f's_lshl_b32 s{sd}, {tbl:#x}, s3')
    a.emit('s_sub_u32 s3, 0, s3')
    a.emit(f's_lshr_b32 s3, {tbl:#x}, s3')
    a.emit(f's_or_b32 s{sd}, s{sd}, s3')

def kpos(N, t, sd, tb=S_TB, halves=True, q=None):
    H, p, add = (28, t >> 1, 28 * (t & 1)) if N == 56 and halves else (N, t, 0)
    o = [f's_bfe_i32 s{sd}, s{tb}, {0x80000 + 8 * (p & 3):#x}', f's_add_i32 s{sd}, s{sd}, {p + add}']
    if p == 0: o += [f's_cmp_lt_i32 s{sd}, {add}', f's_cselect_b32 s{sd}, {H - 1 + add}, s{sd}']
    if p + 3 >= H: o += [f's_sub_u32 s3, s{sd}, {H}', f's_cmp_ge_i32 s{sd}, {H + add}', f's_cselect_b32 s{sd}, s3, s{sd}']
    if q is not None:
        if N == 16 or 1 <= t <= 12: o += [f's_add_u32 s{sd}, s{sd}, s{q}', f's_and_b32 s{sd}, s{sd}, 15']
        elif t <= 16 or t + 3 >= N: o += [f's_add_u32 s3, s{sd}, s{q}', 's_and_b32 s3, s3, 15', f's_cmp_lt_u32 s{sd}, 16', f's_cselect_b32 s{sd}, s3, s{sd}']
    return o

S_Q = 86
MROT = ENV('MROT', '1') == '1'
def rot_q(a, sd, smt, sh=0):
    a.emit(f's_and_b32 s{sd}, s{smt}, {3 if MROT else 0}')
    a.emit(f's_lshl_b32 s{sd}, s{sd}, {2 + sh}')

TSCH = {'wo': [int(c) for c in ENV('TSO', '000')], 'w2': [int(c) for c in ENV('TS2', '000')]}
def tail_parks(nxt, sw, mk=None, sch=None):
    if not XD: return None
    sch = sch or TSCH[nxt]; N = 16 if nxt == 'wo' else 56
    def extra(i):
        if i < 13 or not sum(sch): return []
        a = Asm()
        if i == 13:
            if mk: mk(a)
            a.emit('s_and_b32 s5, s2, 3')
            a.emit('s_lshl_b32 s5, s5, 2')
            a.emit(f's_and_b32 s6, s{S_CU}, 3')
            a.emit('s_add_u32 s5, s5, s6')
            a.emit('s_and_b32 s6, s2, 4')
            a.emit('s_lshl_b32 s6, s6, 1')
            a.emit(f's_lshr_b32 s7, s{S_CU}, 2')
            a.emit('s_add_u32 s6, s6, s7')
            rot_table(a, S_TB, 5, 6, nxt)
            rot_q(a, S_Q, 5)
            a.emit(f's_add_u32 s5, s5, s{S_WV}')
            a.emit('s_and_b32 s5, s5, 3')
            wvoff(a, 16, 5, 6, 2048)
        o = [l.strip() for l in a.lines]
        for t in range(sum(sch[:i - 13]), sum(sch[:i - 12])):
            o += kpos(N, t, 4, S_TB, False, S_Q) + ['s_lshl_b32 s4, s4, 17']
            o += [f'buffer_load_dwordx4 v[{128+8*t+4*j}:{131+8*t+4*j}], v{16+j}, s[{sw}:{sw+3}], s4 offen' for j in range(2)]
        return o
    return extra

def vreg(tag, t):
    if tag == 'wo': return (128 + 8 * (t - 5), False) if 5 <= t < 5 + NVO else None
    if t & 1: return None
    p = t >> 1
    if p < NV1: return (128 + 8 * p, True)
    if p < NV1 + NV2: return (32 + 8 * (p - NV1), False)
    return None

def wvoff(a, vd, sqw, snt, ldw2):
    a.emit('v_lshrrev_b32 v3, 3, v1')
    a.emit(f's_lshl_b32 s10, s{sqw}, 4')
    a.emit('v_add_u32 v3, s10, v3')
    a.emit(f'v_mul_u32_u24 v3, {ldw2}, v3')
    a.emit('v_lshrrev_b32 v2, 3, v1')
    a.emit('v_and_b32 v2, 2, v2')
    a.emit('v_xor_b32 v2, v2, v10')
    a.emit(f's_lshl_b32 s10, s{snt}, 7')
    a.emit('v_add_u32 v3, s10, v3')
    a.emit(f'v_lshl_add_u32 v{vd}, v2, 4, v3')
    a.emit('v_xor_b32 v2, 4, v2')
    a.emit(f'v_add_u32 v3, {8*ldw2}, v3')
    a.emit(f'v_lshl_add_u32 v{vd+1}, v2, 4, v3')

def park(N, t, r, vo, sw):
    return kpos(N, t, 4) + ['s_lshl_b32 s4, s4, 17'] + [f'buffer_load_dwordx4 v[{r+4*i}:{r+4*i+3}], v{vo+i}, s[{sw}:{sw+3}], s4 offen' for i in range(2)]

class ULoader(Loader):
    def run(self, variant='', tail_issue=None, ntail_vm=0, final=None, post=(), dep=None):
        a = self.a; N = self.NSTEP; d = self.S - 1; tag = self.tag
        seq = []
        def em(o):
            for x in o:
                if 'nodma' in DBG and x.endswith(' lds'): continue
                a.emit(x)
        def after(t): return len(seq) - 1 - max(i for i, x in enumerate(seq) if x == t)
        def wait(n, lg=False):
            assert n <= 63, n
            a.emit(f's_waitcnt vmcnt({n})' + (' lgkmcnt(0)' if lg else ''))
        def iw(t):
            sl = (t % self.S) * self.STAGE; v = vreg(tag, t)
            if v:
                em([f'v_add_u32 v11, {sl}, v14'] + [f'ds_write_b128 v11, v[{v[0]+4*i}:{v[0]+4*i+3}] offset:{1024*i}' for i in range(2)])
            else:
                em([f's_lshl_b32 s{S_KW}, s{S_KX}, 17'] + [x for x in self.issue_w(t, S_WD, sl)])
                seq.extend([t] * 2)
        def ix(t, k):
            em(self.issue_x(S_XD, None, (t % self.S) * self.STAGE, k)); seq.extend([t] * 4)
        rot_table(a, S_TB, S_MT, S_NT, tag)
        a.emit(f'v_lshl_add_u32 v14, v1, 4, s{S_WD}')
        dep_pre(a, tag)
        for t in range(d):
            em(kpos(N, t, S_KX)); iw(t)
            a.emit(f's_lshl_b32 s{88+t}, s{S_KX}, 11')
        for t in range(d, N):
            v = vreg(tag, t)
            if v and not v[1]:
                em(park(N, t, v[0], self.VWD, SW)); seq.extend(['V'] * 2)
        self.npre = len(seq)
        dep()
        for t in range(d): ix(t, 88 + t)
        wait(after(0), True)
        if tag == 'w2': lstamp(a, 2)
        a.emit('s_barrier')
        for i in range(N):
            t = i + d
            if i % 4 == 0 and post and t < N:
                a.emit('s_waitcnt lgkmcnt(0)')
                em(post)
            if t < N:
                em(kpos(N, t, S_KX)); iw(t)
                a.emit(f's_lshl_b32 s{S_KX}, s{S_KX}, 11')
                ix(t, S_KX)
            if t == N - 1: tail_issue(); seq.extend(['T'] * ntail_vm)
            if i + 1 < N: wait(after(i + 1), not post or t == N)
            else: final()
            a.emit('s_barrier')

EBAR = ENV('EBAR', 'x').split(',')
S_FL = 87
def dep_pre(a, kind):
    if ONE and kind in ('wo', 'w1'):
        a.emit(f's_add_u32 s3, s{S_LAYER}, s{S_WV}')
        a.emit('s_cmp_lg_u32 s3, 4')
        a.emit(f's_cbranch_scc1 L_{kind}_chk')
        if kind == 'wo': a.emit(f's_load_dwordx2 s[{SC}:{SC+1}], s[0:1], 72')
        else: srd(a, SO, 'ws0', WS_FL, FLS)
        a.emit(f's_mov_b32 s{S_CNT}, 0x100000')
        if kind == 'wo':
            a.emit('s_waitcnt lgkmcnt(0)')
            a.emit(f's_and_b32 s{SC+1}, s{SC+1}, 0xffff')
            a.emit(f's_mov_b32 s{SC+2}, 256')
            a.emit(f's_mov_b32 s{SC+3}, 0x00020000')
            a.emit('v_lshlrev_b32 v2, 2, v1')
        else:
            a.emit('v_lshrrev_b32 v2, 2, v1')
            a.emit('v_and_b32 v3, 3, v1')
            a.emit('v_lshlrev_b32 v2, 11, v2')
            a.emit('v_lshl_add_u32 v2, v3, 4, v2')
            a.emit(f's_and_b32 s3, s{S_NT}, {REP - 1}')
            a.emit('s_lshl_b32 s3, s3, 7')
        a.label(f'L_{kind}_chkl')
        if kind == 'wo': a.emit(f'buffer_load_dword v12, v2, s[{SC}:{SC+3}], 0 offen sc1')
        else: a.emit(f'buffer_load_dwordx4 v[12:15], v2, s[{SO}:{SO+3}], s3 offen sc1')
        a.emit(f's_sub_u32 s{S_CNT}, s{S_CNT}, 1')
        a.emit(f's_cbranch_scc1 L_{kind}_chk')
        a.emit('s_waitcnt vmcnt(0)')
        if kind == 'wo': a.emit('v_cmp_ne_u32 vcc, 0x01010101, v12')
        else:
            a.emit('v_and_b32 v12, v12, v13')
            a.emit('v_and_b32 v14, v14, v15')
            a.emit('v_and_b32 v12, v12, v14')
            a.emit('v_cmp_ne_u32 vcc, 1, v12')
        a.emit(f's_cbranch_vccnz L_{kind}_chkl')
        a.label(f'L_{kind}_chk')

def dep_wait(a, kind, halo=False, skip_first=False, first=None, preg=None, postf=None):
    if skip_first and not ONE:
        a.emit(f's_cmp_eq_u32 s{S_TSI}, 1')
        a.emit(f's_cbranch_scc1 L_{kind}_dep')
    srd(a, SO, 'ws0', WS_FL, FLS)
    if ONE and kind == 'wo':
        a.emit(f's_cmp_lg_u32 s{S_LAYER}, 0')
        a.emit(f's_cbranch_scc1 L_{kind}_nofirst')
        first()
        a.label(f'L_{kind}_nofirst')
    a.emit(f's_lshl4_add_u32 s3, s{S_TSI}, s{S_MT}')
    a.emit(f's_and_b32 s4, s{S_NT}, {REP - 1}')
    a.emit('s_lshl4_add_u32 s3, s3, s4')
    a.emit('s_lshl_b32 s3, s3, 7')
    a.emit('s_sub_u32 s3, s3, 32768')
    a.emit('v_lshlrev_b32 v11, 7, v1')
    if halo:
        a.emit(f's_cmp_eq_u32 s{S_MT}, 0')
        a.emit('s_cselect_b32 s4, 15, 31')
        a.emit('v_and_b32 v2, 16, v1')
        a.emit('v_lshl_add_u32 v11, v2, 2, v11')
        a.emit('v_and_b32 v2, s4, v1')
    else: a.emit('v_and_b32 v2, 15, v1')
    a.emit('v_lshlrev_b32 v2, 2, v2')
    a.emit('v_mov_b32 v3, 1')
    a.emit(f's_mov_b32 s{S_CNT}, 0x100000')
    a.emit(f's_cmp_lg_u32 s{S_WV}, 4')
    a.emit('s_barrier')
    a.emit(f's_cbranch_scc1 L_{kind}_{"nofl" if postf else "dep"}')
    if kind == 'w2': lstamp(a, 0, True)
    a.emit(f's_mov_b32 exec_lo, {((1 << REP) - 1) * (0x10001 if halo else 1):#x}')
    a.emit('s_mov_b32 exec_hi, 0')
    a.emit(f'buffer_store_dword v3, v11, s[{SO}:{SO+3}], s{S_FL} offen sc1')
    a.emit('s_mov_b64 exec, -1')
    PSP = int(ENV('PSP', '0'))
    if postf and PSP:
        a.label(f'L_{kind}_nofl')
        a.emit('s_mov_b32 s5, s3')
        i0 = len(a.lines); postf(); ls = a.lines[i0:]; del a.lines[i0:]
        dma = [i for i, l in enumerate(ls) if 'buffer_load' in l]
        poll = lambda k: f'buffer_load_dword v{24+k}, v2, s[{SO}:{SO+3}], s5 offen sc1'
        for i, l in enumerate(ls):
            a.lines.append(l)
            for k in range(3):
                if dma and i == dma[-1 - PSP * (3 - k)]: a.emit(poll(k))
        a.emit(f's_cmp_lg_u32 s{S_WV}, 4')
        a.emit(f's_cbranch_scc1 L_{kind}_dep')
        def chk(k, n, last=False):
            a.emit(poll((k + 3) & 3))
            a.emit(f's_waitcnt vmcnt({n})')
            a.emit(f'v_cmp_ne_u32 vcc, 1, v{24+k}')
            a.emit(f's_cbranch_vccnz L_{kind}_poll' if last else f's_cbranch_vccz L_{kind}_dep')
        for k in range(3): chk(k, 3 + PSP * (3 - k))
        a.label(f'L_{kind}_poll')
        a.emit(f's_sub_u32 s{S_CNT}, s{S_CNT}, 1')
        a.emit(f's_cbranch_scc1 L_{kind}_dep')
        for k in (3, 0, 1, 2): chk(k, 3, k == 2)
    else:
        if postf:
            a.label(f'L_{kind}_nofl')
            a.emit('s_mov_b32 s5, s3')
            postf()
            a.emit('s_mov_b32 s3, s5')
            a.emit(f's_cmp_lg_u32 s{S_WV}, 4')
            a.emit(f's_cbranch_scc1 L_{kind}_dep')
        a.label(f'L_{kind}_poll')
        a.emit(f'buffer_load_dword v3, v2, s[{SO}:{SO+3}], s3 offen sc1')
        a.emit(f's_sub_u32 s{S_CNT}, s{S_CNT}, 1')
        a.emit(f's_cbranch_scc1 L_{kind}_dep')
        a.emit('s_waitcnt vmcnt(0)')
        a.emit('v_cmp_ne_u32 vcc, 1, v3')
        a.emit(f's_cbranch_vccnz L_{kind}_poll')
    a.label(f'L_{kind}_dep')
    if kind == 'w2': lstamp(a, 1, True)
    if preg: preg()
    if preg and kind == 'w2': lstamp(a, 2, True)
    a.emit('s_barrier')

LGO = 163840 - 64
def dep_early(a):
    srd(a, SO, 'ws0', WS_FL, FLS)
    a.emit(f's_lshl_b32 s86, s{S_TSI}, 12')
    a.emit(f's_lshl_b32 s4, s{S_MT}, 8')
    a.emit('s_add_u32 s86, s86, s4')
    a.emit('s_sub_u32 s86, s86, 4096')
    a.emit('v_and_b32 v12, 15, v1')
    a.emit('v_lshlrev_b32 v12, 2, v12')
    a.emit('v_mov_b32 v3, 0')
    a.emit(f'v_mov_b32 v2, {LGO}')
    a.emit('ds_write_b32 v2, v3')
    a.emit('v_mov_b32 v13, 1')
    a.emit(f's_mov_b32 s{S_CNT}, 0x100000')
    a.emit(f's_cmp_lg_u32 s{S_WV}, 4')
    a.emit('s_waitcnt lgkmcnt(0)')
    a.emit('s_barrier')
    a.emit('s_cbranch_scc1 L_w2_go')
    lstamp(a, 0)
    a.emit('s_mov_b64 exec, 1')
    a.emit(f'buffer_store_dword v13, off, s[{SO}:{SO+3}], s{S_FL} sc1')
    a.emit('s_mov_b64 exec, -1')
    a.label('L_w2_poll')
    a.emit(f'buffer_load_dword v3, v12, s[{SO}:{SO+3}], s86 offen sc1')
    a.emit(f's_sub_u32 s{S_CNT}, s{S_CNT}, 1')
    a.emit('s_cbranch_scc1 L_w2_rel')
    a.emit('s_waitcnt vmcnt(0)')
    a.emit('v_cmp_eq_u32 vcc, 0, v3')
    a.emit('s_cbranch_vccnz L_w2_poll')
    a.label('L_w2_rel')
    a.emit('ds_write_b32 v2, v13')
    lstamp(a, 1)
    a.emit('s_branch L_w2_dep')
    a.label('L_w2_go')
    a.emit(f's_mov_b32 s{S_CNT}, 0x2000000')
    a.label('L_w2_gol')
    a.emit('ds_read_b32 v3, v2')
    a.emit(f's_sub_u32 s{S_CNT}, s{S_CNT}, 1')
    a.emit('s_cbranch_scc1 L_w2_dep')
    a.emit('s_waitcnt lgkmcnt(0)')
    a.emit('v_cmp_eq_u32 vcc, 0, v3')
    a.emit('s_cbranch_vccnz L_w2_gol')
    a.label('L_w2_dep')

def late_flag(a):
    a.emit(f's_cmp_lg_u32 s{S_WV}, 4')
    a.emit('s_cbranch_scc1 L_w2_nolate')
    a.emit('v_mov_b32 v3, 2')
    a.emit('s_mov_b64 exec, 1')
    a.emit(f'buffer_store_dword v3, off, s[{SO}:{SO+3}], s{S_FL} sc1')
    a.emit('s_mov_b64 exec, -1')
    a.label('L_w2_nolate')

def late_check(a):
    a.emit(f's_mov_b32 s{S_CNT}, 0x100000')
    a.label('L_w2_lchk')
    a.emit('v_cmp_ne_u32 vcc, 2, v13')
    a.emit('s_cbranch_vccz L_w2_lok')
    a.emit(f'buffer_load_dword v13, v12, s[{SO}:{SO+3}], s86 offen sc1')
    a.emit(f's_sub_u32 s{S_CNT}, s{S_CNT}, 1')
    a.emit('s_waitcnt vmcnt(0)')
    a.emit('s_cbranch_scc0 L_w2_lchk')
    a.label('L_w2_lok')
    if TS: a.emit(f's_mov_b32 s58, s{S_CNT}')
    lstamps_out(a, 'w2')

def gbar(a, kind):
    if not MEGA or (EARLY and kind == 'w2'): return
    if kind == 'attn':
        a.emit(f's_cmp_eq_u32 s{S_LAYER}, 0')
        a.emit('s_cbranch_scc1 L_attn_nog')
    a.emit('s_barrier')
    if kind == 'attn': a.label('L_attn_nog')

def next_phase(a, kind):
    nxt = {'attn': 'wo', 'wo': 'w1', 'w1': 'w2', 'w2': 'attn'}[kind]
    if kind == 'w2':
        a.emit(f's_mov_b32 s{S_LAYER}, 1')
        a.emit(f's_add_u32 s12, s22, {WS_X2}')
        a.emit('s_addc_u32 s13, s23, 0')
        a.emit(f's_add_u32 s34, s22, {LSTR}')
        a.emit('s_addc_u32 s35, s23, 0')
    a.emit(f's_add_u32 s{S_TSI}, s{S_TSI}, 1')
    a.emit(f's_branch L_{nxt}_body')

def last_check(a, kind):
    if kind == 'w2' or (kind == 'attn' and not ONE):
        a.emit(f's_cmp_eq_u32 s{S_LAYER}, {0 if kind == "attn" else 1}')
        a.emit(f's_cbranch_scc1 L_{kind}_end')

def compute_end(a, kind):
    if not MEGA:
        stamps_out(a, kind)
        a.emit('s_endpgm')
        return
    if not TS: last_check(a, kind)
    if kind in EBAR: a.emit('s_barrier')
    if not (EARLY and kind == 'w1'):
        a.emit('s_waitcnt vmcnt(0) lgkmcnt(0)')
        a.emit('s_barrier')
    if TS:
        stamps_out(a, kind)
        last_check(a, kind)
    stamp(a, 0, nowait=True)
    next_phase(a, kind)

def loader_end(a, kind, check=True):
    if MEGA:
        if kind == 'w2' and not EARLY: lstamps_out(a, 'w2')
        if check: last_check(a, kind)
        a.emit(f's_lshl_b32 s{S_FL}, s{S_TSI}, 15')
        a.emit(f's_lshl_b32 s4, s{S_MT}, 11')
        a.emit(f's_add_u32 s{S_FL}, s{S_FL}, s4')
        a.emit(f's_lshl_b32 s4, s{S_NT}, 2')
        a.emit(f's_add_u32 s{S_FL}, s{S_FL}, s4')
        next_phase(a, kind)

def pf_weights(a, sd, which, size, ldw2, R, sh, L, LMn, tilebytes, NI, vd, row0=0, qkv=False, pair=False):
    if 'nopf' in DBG: return 0
    srd(a, sd, which, 0, size)
    a.emit(f's_and_b32 s3, s{S_WV}, 3')
    a.emit(f's_mul_i32 s3, s3, {NI * (64 >> sh)}')
    a.emit(f's_mul_i32 s4, s{S_CU}, {R}')
    a.emit('s_add_u32 s3, s3, s4')
    if row0: a.emit(f's_add_u32 s3, s3, {row0}')
    a.emit(f'v_lshrrev_b32 v2, {sh}, v1')
    a.emit('v_add_u32 v2, s3, v2')
    a.emit(f'v_mul_u32_u24 v2, {ldw2}, v2')
    a.emit(f'v_and_b32 v3, {(1 << sh) - 1}, v1')
    if L < (1 << sh): a.emit(f'v_min_u32 v3, {L-1}, v3')
    if qkv:
        a.emit('v_lshrrev_b32 v12, 2, v3')
        a.emit('v_lshl_add_u32 v2, v12, 11, v2')
        a.emit('v_and_b32 v3, 3, v3')
    a.emit(f'v_lshl_add_u32 v2, v3, {8 if pair else 7}, v2')
    a.emit('s_and_b32 s3, s2, 7')
    a.emit(f's_lshr_b32 s3, s3, {4 - LMn}')
    a.emit(f's_mul_i32 s3, s3, {tilebytes if pair else (1 << (5 - LMn)) * tilebytes}')
    for i in range(NI):
        a.emit(f'buffer_load_dword v{vd+i}, v2, s[{sd}:{sd+3}], s3 offen')
        if i + 1 < NI: a.emit(f's_add_u32 s3, s3, {(64 >> sh) * ldw2}')
    return NI

_pfc = [0]
def pf_code(a, start, end, vd, forward=True):
    if 'nopfc' in DBG: return 0
    _pfc[0] += 1
    lab = f'L_pfc{_pfc[0]}'
    a.emit('s_getpc_b64 s[4:5]')
    a.label(lab)
    if forward:
        a.emit(f's_add_u32 s4, s4, {start}-{lab}')
        a.emit('s_addc_u32 s5, s5, 0')
    else:
        a.emit(f's_sub_u32 s4, s4, {lab}-{start}')
        a.emit('s_subb_u32 s5, s5, 0')
    a.emit(f's_and_b32 s3, s{S_WV}, 3')
    a.emit('s_lshl_b32 s3, s3, 13')
    a.emit('v_lshl_add_u32 v2, v1, 7, s3')
    a.emit(f'v_min_u32 v2, {end}-{start}-4, v2')
    a.emit(f'global_load_dword v{vd}, v2, s[4:5]')
    return 1

def wbase(a, vd, vt, g='v2'):
    a.emit(f'v_bfe_u32 v{vd}, v1, 2, 2')
    a.emit(f'v_lshl_add_u32 v{vd}, {g}, 3, v{vd}')
    a.emit(f'v_lshlrev_b32 v{vd}, 7, v{vd}')
    a.emit(f'v_and_b32 v{vt}, 3, v1')
    a.emit(f'v_lshl_add_u32 v{vd}, v{vt}, 3, v{vd}')
    a.emit(f'v_bfe_u32 v{vt}, v1, 3, 2')
    a.emit(f'v_lshl_add_u32 v{vd}, v{vt}, 5, v{vd}')


def code_touch(a, start, end, nb, sd=SX):
    if ENV('CT', '1') == '0': return
    _pfc[0] += 1
    lab = f'L_pfc{_pfc[0]}'
    a.emit(f's_cmp_lg_u32 s{S_LAYER}, 0')
    a.emit(f's_cbranch_scc1 {lab}_skip')
    a.emit('s_getpc_b64 s[4:5]')
    a.label(lab)
    a.emit(f's_lshl_b32 s3, s{S_CU}, 2')
    a.emit(f's_add_u32 s3, s3, s{S_WV}')
    a.emit(f's_mul_i32 s3, s3, {nb}')
    a.emit(f's_min_u32 s3, s3, {end}-{start}-{nb}')
    a.emit(f's_add_i32 s3, s3, {start}-{lab}')
    a.emit('s_ashr_i32 s6, s3, 31')
    a.emit('s_add_u32 s4, s4, s3')
    a.emit('s_addc_u32 s5, s5, s6')
    for i in range(nb // 64):
        a.emit(f's_load_dword s{sd+i}, s[4:5], {64*i}')
    a.label(f'{lab}_skip')

def loader_first(a, kind):
    if ENV('LF', '1') == '0': return
    L = a.lines
    ib = max(i for i, l in enumerate(L) if l.strip() == f's_cbranch_scc1 L_{kind}_loader')
    il = L.index(f'L_{kind}_loader:')
    ie = L.index(f'L_{kind}_end:') + 2
    assert L[ie - 1].strip() == 's_endpgm' and L[ib - 1].strip().startswith('s_cmp_ge_u32')
    L[ib - 1] = L[ib - 1].replace('s_cmp_ge_u32', 's_cmp_lt_u32')
    L[ib] = f'  s_cbranch_scc1 L_{kind}_compute'
    a.lines = L[:ib + 1] + L[il:ie] + [f'L_{kind}_compute:'] + L[ib + 1:il] + L[ie:]

def clear_flags(a, part):
    if not ONE: return
    if part == 0: a.emit(f's_load_dwordx2 s[{SC}:{SC+1}], s[0:1], 72')
    a.emit(f's_or_b32 s3, s{S_LAYER}, s{S_WV}')
    a.emit(f's_cbranch_scc1 L_clr_skip{part}')
    if part == 0:
        srd(a, SP, 'ws0', WS_FL, FLS)
        a.emit('s_lshl_b32 s3, s2, 11')
        a.emit('v_lshlrev_b32 v2, 4, v1')
        a.emit(f'buffer_store_dwordx4 v[128:131], v2, s[{SP}:{SP+3}], s3 offen sc1')
        a.emit(f'buffer_store_dwordx4 v[128:131], v2, s[{SP}:{SP+3}], s3 offen offset:1024 sc1')
    else:
        a.emit('v_mov_b32 v3, 1')
        a.emit(f's_and_b32 s{SC+1}, s{SC+1}, 0xffff')
        a.emit(f's_mov_b32 s{SC+2}, 256')
        a.emit(f's_mov_b32 s{SC+3}, 0x00020000')
        a.emit('s_mov_b64 exec, 1')
        a.emit('s_waitcnt vmcnt(0)')
        a.emit(f'buffer_store_byte v3, off, s[{SC}:{SC+3}], s2 sc1')
        a.emit('s_mov_b64 exec, -1')
    a.label(f'L_clr_skip{part}')
```

```python
import sys, os, struct
sys.path.insert(0, os.path.join(os.path.dirname(os.path.abspath(__file__)), '..'))
from asmlib import Asm, check_offsets
MB = 1 << 20
WSB = int(os.environ.get('WSB', '0')) * MB
WS_O   = WSB
WS_X1  = WSB + 4 * MB
WS_H   = WSB + 8 * MB
WS_ST  = WSB + 23 * MB
WS_CS  = WSB + 23 * MB + 512 * 1024
WS_TS  = 60 * MB
MEGA = os.environ.get('MEGA', '2') in ('1', '2')
ONE = os.environ.get('MEGA', '2') == '2'
LSTR = 64 * MB
WS_ST2 = WS_ST + 256 * 1024 if MEGA else WS_ST
WS_FL = WSB + 40 * MB
FLS = 524288
REP = int(os.environ.get('REP', '16'))
WS_XP = WSB + 24 * MB
WS_X2 = WSB + 32 * MB
XPAD = int(os.environ.get('XPAD', '128')) if MEGA else 0
f2u = lambda f: struct.unpack('<I', struct.pack('<f', f))[0]
ENV = os.environ.get
TS = ENV('TS', '')
DBG = ENV('DBG', '').split(',')
EARLY = int(ENV('EARLY', '0')) if MEGA and ENV('SPLIT', '0') == '0' else 0
def stf(kind): return (' ' + ENV('WTF', 'sc1')) if kind in ENV('WT', 'attn,wo,w2,w1').split(',') else ''

KA = {'A_x': 0, 'wqkv': 8, 'wo': 16, 'w1': 32, 'b1': 40, 'w2': 48, 'b2': 56, 'out': 64, 'ws': 80}
P_IN = 16
P_OUT = 32; P_WS = 34
P_XS = 12
PTR = {'A_x': 16, 'wqkv': 18, 'wo': 20, 'w1': 24, 'b1': 26, 'w2': 28, 'b2': 30, 'out': 32, 'ws': 34, 'xs': 12, 'ws0': 22}
SX, SW, SO, SR, SB, ST, SP, SC = 36, 40, 44, 48, 52, 56, 60, 64
S_MT, S_NT, S_WV, S_WM, S_WN = 68, 69, 70, 71, 72
S_KX, S_KW, S_SLOT, S_XD, S_WD, S_HD, S_CNT = 73, 74, 75, 76, 77, 78, 79
S_LAYER = 96; S_TSI = 97; S_T = 98; S_CU = 99; S_XG = 100; S_KT = 101

KD = '''.section .rodata,"a"
.p2align 6
.amdhsa_kernel {name}
  .amdhsa_next_free_vgpr 256
  .amdhsa_next_free_sgpr 102
  .amdhsa_accum_offset 256
  .amdhsa_group_segment_fixed_size 0
  .amdhsa_kernarg_size 88
  .amdhsa_user_sgpr_count 2
  .amdhsa_user_sgpr_kernarg_segment_ptr 1
  .amdhsa_system_sgpr_workgroup_id_x 1
  .amdhsa_float_denorm_mode_32 3
  .amdhsa_float_denorm_mode_16_64 3
.end_amdhsa_kernel
.text
'''

def srd(a, sd, which, off, size):
    p = PTR[which]
    if off:
        a.emit(f's_add_u32 s{sd}, s{p}, {off}')
        a.emit(f's_addc_u32 s{sd+1}, s{p+1}, 0')
        a.emit(f's_and_b32 s{sd+1}, s{sd+1}, 0xffff')
    else:
        a.emit(f's_mov_b32 s{sd}, s{p}')
        a.emit(f's_and_b32 s{sd+1}, s{p+1}, 0xffff')
    a.emit(f's_mov_b32 s{sd+2}, {size}')
    a.emit(f's_mov_b32 s{sd+3}, 0x00020000')

def xpitch(a, sd, inv=False):
    a.emit(f's_cmp_eq_u32 s{S_LAYER}, {0 if inv else 1}')
    a.emit(f's_cselect_b32 s{sd}, {XPAD}, 0')
    a.emit(f's_add_u32 s{sd}, s{sd}, 2048')

def srd_xs(a, sd):
    srd(a, sd, 'xs', 0, 4 * MB)
    xpitch(a, sd + 2)
    a.emit(f's_lshl_b32 s{sd+2}, s{sd+2}, 11')

def stub(a, name, body, layer, tsidx, first):
    a(f'.text\n.globl {name}\n.p2align 8\n.type {name},@function\n{name}:')
    if TS:
        stamp(a, 0, nowait=True)
    a.emit('s_load_dwordx4 s[16:19], s[0:1], 0')
    a.emit('s_load_dwordx2 s[20:21], s[0:1], 16')
    a.emit('s_load_dwordx2 s[22:23], s[0:1], 80')
    a.emit('s_load_dwordx8 s[24:31], s[0:1], 32')
    a.emit('s_load_dwordx2 s[32:33], s[0:1], 64')
    a.emit('s_load_dwordx2 s[34:35], s[0:1], 80')
    a.emit(f's_load_dwordx2 s[12:13], s[0:1], {0 if layer == 0 else 64}')
    a.emit(f's_mov_b32 s{S_LAYER}, {layer}')
    a.emit(f's_mov_b32 s{S_TSI}, {tsidx}')
    if not first:
        a.emit(f's_branch {body}')

def stamp(a, n, nowait=False):
    if not TS: return
    a.emit(f's_memrealtime s[{80+4*n}:{81+4*n}]')
    a.emit(f's_memtime s[{82+4*n}:{83+4*n}]')
    if not nowait: a.emit('s_waitcnt lgkmcnt(0)')

def stamps_out(a, tag):
    if not TS: return
    if not MEGA: a.emit('s_waitcnt vmcnt(0)')
    stamp(a, 3)
    if MEGA and tag == 'w1':
        for i in range(16): a.emit(f'v_writelane_b32 v31, s{80+i}, {i}')
        return
    srd(a, SP, 'ws0', WS_TS, 1 << 20)
    a.emit('s_lshl_b32 s4, s2, 6')
    a.emit(f's_lshl_b32 s5, s{S_TSI}, 16')
    a.emit('s_add_u32 s4, s4, s5')
    a.emit('v_mov_b32 v1, s4')
    for i in range(16): a.emit(f'v_mov_b32 v{4+i}, s{80+i}')
    a.emit('v_cmp_eq_u32 vcc, 0, v0')
    a.emit('s_and_saveexec_b64 s[6:7], vcc')
    a.emit(f's_cbranch_execz L_tsskip_{tag}')
    for j in range(4):
        a.emit(f'buffer_store_dwordx4 v[{4+4*j}:{7+4*j}], v1, s[{SP}:{SP+3}], 0 offen offset:{16*j}')
    if MEGA and tag == 'w2':
        a.emit('s_mov_b64 exec, 0xffff')
        a.emit('s_sub_u32 s4, s4, 0x10000')
        a.emit('v_lshlrev_b32 v1, 2, v0')
        a.emit(f'buffer_store_dword v31, v1, s[{SP}:{SP+3}], s4 offen')
    a.label(f'L_tsskip_{tag}')
    a.emit('s_mov_b64 exec, -1')

SPX = ENV('SPX', '1') == '1'
LSTK = ENV('LSTK', 'w2')
LREG = [52, 54, 56, 58] if LSTK == 'w2' else [36, 38, 48, 50]
def lstamp(a, n, dep=False):
    if dep and (ENV('LST') == 'x' or LSTK != 'w2'): return
    if TS: a.emit(f's_memrealtime s[{LREG[n]}:{LREG[n]+1}]')

def lstamps_out(a, tag):
    if not TS: return
    a.emit(f's_cmp_lg_u32 s{S_WV}, 4')
    a.emit(f's_cbranch_scc1 L_ltsskip_{tag}')
    a.emit('s_waitcnt lgkmcnt(0)')
    srd(a, SP, 'ws0', WS_TS + 16384, 1 << 20)
    a.emit('s_lshl_b32 s4, s2, 6')
    a.emit(f's_lshl_b32 s5, s{S_TSI}, 16')
    a.emit('s_add_u32 s4, s4, s5')
    for i in range(8): a.emit(f'v_writelane_b32 v20, s{LREG[i>>1]+(i&1)}, {i}')
    a.emit('v_lshlrev_b32 v21, 2, v1')
    a.emit('s_mov_b64 exec, 0xff')
    a.emit(f'buffer_store_dword v20, v21, s[{SP}:{SP+3}], s4 offen')
    a.emit('s_mov_b64 exec, -1')
    a.label(f'L_ltsskip_{tag}')

def tile_map(a, LM, endlab, pair=False):
    a.emit('s_cmp_ge_u32 s2, 256')
    a.emit(f's_cbranch_scc1 {endlab}')
    a.emit('v_lshrrev_b32 v2, 6, v0')
    a.emit('v_and_b32 v1, 63, v0')
    a.emit(f'v_readfirstlane_b32 s{S_WV}, v2')
    a.emit('s_and_b32 s3, s2, 7')
    a.emit(f's_lshr_b32 s{S_CU}, s2, 3')
    if LM == 2 and ENV('MAP2', '0') == '1':
        a.emit('s_lshl_b32 s5, s3, 1')
        a.emit('s_lshr_b32 s6, s3, 1')
        a.emit('s_and_b32 s5, s5, 2')
        a.emit('s_and_b32 s6, s6, 1')
        a.emit('s_or_b32 s5, s5, s6')
    else: a.emit(f's_and_b32 s5, s3, {(1 << (4 - LM)) - 1}')
    a.emit(f's_lshl_b32 s5, s5, {LM}')
    a.emit(f's_and_b32 s6, s{S_CU}, {(1 << LM) - 1}')
    a.emit(f's_add_u32 s{S_MT}, s5, s6')
    a.emit(f's_lshr_b32 s5, s3, {4 - LM}')
    if pair:
        a.emit(f's_lshr_b32 s{S_HD}, s{S_CU}, {LM}')
        a.emit(f's_lshl1_add_u32 s{S_NT}, s{S_HD}, s5')
        return
    a.emit(f's_lshl_b32 s5, s5, {5 - LM}')
    a.emit(f's_lshr_b32 s6, s{S_CU}, {LM}')
    a.emit(f's_add_u32 s{S_NT}, s5, s6')
    if 'smallm' in DBG: a.emit(f's_and_b32 s{S_MT}, s{S_MT}, 1')
    if 'smalln' in DBG: a.emit(f's_and_b32 s{S_NT}, s{S_NT}, 1')

def interleave(a, main, side, lead=1, per=1):
    si = 0
    for i, m in enumerate(main):
        a.emit(m)
        if i + 1 >= lead:
            for _ in range(per):
                if si < len(side): a.emit(side[si]); si += 1
    while si < len(side): a.emit(side[si]); si += 1

class Loader:
    VXD = 4; VWD = 8; VXH = 28
    def __init__(self, a, tag, K, lda2, ldw2, panels, colbase, S, STAGE, halo=None, delta=0, rot=None, xblk=False, half=0):
        self.a = a; self.tag = tag; self.K = K; self.lda2 = lda2; self.ldw2 = ldw2; self.panels = panels
        self.colbase = colbase; self.S = S; self.STAGE = STAGE; self.halo = halo; self.delta = delta; self.xblk = xblk; self.rot = rot if rot is not None and rot >= 0 else None
        self.NSTEP = K // 64; self.half = half
        self.per = 4 + 2 * len(panels) + (1 if halo is not None else 0)
    def setup(self):
        a = self.a
        if ENV('PRIO', '0') != '0': a.emit(f"s_setprio {ENV('PRIO')}")
        a.emit(f's_add_u32 s8, s{S_WV}, s{S_NT}')
        a.emit('s_and_b32 s8, s8, 3')
        a.emit(f's_add_u32 s9, s{S_WV}, s{S_MT}')
        a.emit('s_and_b32 s9, s9, 3')
        a.emit(f's_lshl_b32 s{S_XD}, s8, 12')
        a.emit(f's_lshl_b32 s{S_WD}, s9, 11')
        a.emit(f's_add_u32 s{S_WD}, s{S_WD}, 16384')
        a.emit(f's_lshl_b32 s11, s{S_MT}, 7')
        a.emit('v_and_b32 v10, 7, v1')
        if self.xblk: self.xoff_blk(self.lda2)
        else: self.xoff_rows(self.lda2)
        a.emit('v_lshrrev_b32 v3, 3, v1')
        a.emit('s_lshl_b32 s10, s9, 4')
        a.emit('v_add_u32 v3, s10, v3')
        a.emit(f'v_mul_u32_u24 v3, {self.ldw2}, v3')
        a.emit('v_lshrrev_b32 v2, 3, v1')
        a.emit('v_and_b32 v2, 2, v2')
        a.emit('v_xor_b32 v2, v2, v10')
        a.emit(f's_mul_i32 s10, s{S_NT}, {self.colbase}')
        if 'noslow' in DBG and self.tag == 'attn':
            a.emit(f's_bitcmp1_b32 0x0808, s{S_NT}')
            a.emit('s_cselect_b32 s3, 512, 0')
            a.emit('s_add_u32 s10, s10, s3')
        if self.colbase & 127: a.emit('s_andn2_b32 s10, s10, 127')
        a.emit('v_add_u32 v3, s10, v3')
        a.emit(f'v_lshl_add_u32 v{self.VWD}, v2, 4, v3')
        a.emit('v_xor_b32 v2, 4, v2')
        a.emit(f'v_add_u32 v3, {8*self.ldw2}, v3')
        a.emit(f'v_lshl_add_u32 v{self.VWD+1}, v2, 4, v3')
        if self.half:
            a.emit('v_lshrrev_b32 v3, 2, v1')
            a.emit('s_lshl_b32 s10, s9, 4')
            a.emit('v_add_u32 v3, s10, v3')
            a.emit(f'v_mul_u32_u24 v3, {self.ldw2}, v3')
            a.emit('v_lshrrev_b32 v2, 4, v1')
            a.emit('v_and_b32 v2, 2, v2')
            a.emit('v_xor_b32 v2, v2, v1')
            a.emit('v_and_b32 v2, 3, v2')
            a.emit(f's_lshl_b32 s10, s{S_NT}, 6')
            a.emit(f's_add_u32 s10, s10, {self.half}')
            a.emit('v_add_u32 v3, s10, v3')
            a.emit(f'v_lshl_add_u32 v{self.VXH}, v2, 4, v3')
            a.emit(f's_lshl_b32 s{S_HD}, s{S_NT}, 7')
            a.emit(f's_add_u32 s{S_HD}, s{S_HD}, 3072')
        if self.halo is not None:
            a.emit(f's_and_b32 s10, s{S_WV}, 3')
            a.emit(f's_lshl_b32 s{S_HD}, s10, 9')
            a.emit(f's_add_u32 s{S_HD}, s{S_HD}, {self.halo}')
            a.emit('s_lshl_b32 s14, s10, 2')
            a.emit('s_add_u32 s14, s14, s11')
            a.emit('s_sub_u32 s14, s14, 16')
            a.emit('v_lshrrev_b32 v3, 3, v1')
            a.emit('v_add_u32 v3, s14, v3')
            a.emit('v_max_i32 v3, 0, v3')
            a.emit('v_mul_u32_u24 v3, s5, v3')
            a.emit('s_lshl_b32 s14, s10, 1')
            a.emit('v_lshrrev_b32 v2, 4, v1')
            a.emit('v_add_u32 v2, s14, v2')
            a.emit('v_and_b32 v2, 7, v2')
            a.emit('v_xor_b32 v2, v2, v10')
            a.emit(f'v_lshl_add_u32 v{self.VXH}, v2, 4, v3')
            a.emit('s_cmp_eq_u32 s10, 0')
            a.emit('s_cselect_b32 s14, 0xffffff00, -1')
            a.emit('s_mov_b32 s15, 0')
        a.emit(f's_mov_b32 s{S_SLOT}, 0')
        if self.rot is None:
            a.emit(f's_mov_b32 s{S_KX}, 0')
            a.emit(f's_mov_b32 s{S_KW}, 0')
        else:
            if not getattr(self, 'noxg', False): a.emit(f's_add_u32 s{S_XG}, s{S_MT}, s{S_NT}')
            a.emit(f's_mov_b32 s{S_KT}, {0 if EARLY and self.tag == "w2" else -1}')
            ko = int(ENV('KOFF_' + self.tag.upper(), '0'))
            if ko:
                a.emit(f"s_bitcmp1_b32 {ENV('KMSK_' + self.tag.upper(), '0x0808' if self.tag == 'attn' else '0x2aea')}, s{S_NT}")
                a.emit(f's_cselect_b32 s{S_KT}, {ko - 1}, s{S_KT}')
            for x in self.knext(): a.emit(x)
    def xoff_rows(self, ld):
        a = self.a
        a.emit('v_lshrrev_b32 v3, 3, v1')
        a.emit(f's_lshr_b32 s10, s{S_XD}, 7')
        a.emit(f's_lshl_b32 s3, s{S_MT}, 7')
        a.emit('s_add_u32 s10, s10, s3')
        a.emit('v_add_u32 v3, s10, v3')
        xpitch(a, 5)
        a.emit('s_lshl_b32 s6, s5, 3')
        a.emit('v_mul_u32_u24 v3, s5, v3')
        a.emit('v_lshrrev_b32 v2, 4, v1')
        for j in range(4):
            d = self.VXD + j
            if j & 1:
                a.emit(f'v_add_u32 v{d}, 4, v2')
                a.emit(f'v_xor_b32 v{d}, v{d}, v10')
            else:
                a.emit(f'v_xor_b32 v{d}, v2, v10')
            a.emit(f'v_lshl_add_u32 v{d}, v{d}, 4, v3')
            if j < 3: a.emit('v_add_u32 v3, s6, v3')
    def xoff_blk(self, ld):
        a = self.a
        a.emit(f's_lshr_b32 s10, s{S_XD}, 11')
        a.emit(f's_lshl_b32 s3, s{S_MT}, 3')
        a.emit('s_add_u32 s10, s10, s3')
        a.emit(f's_mul_i32 s10, s10, {16*ld}')
        a.emit(f'v_lshl_add_u32 v{self.VXD}, v1, 4, s10')
        a.emit(f'v_add_u32 v{self.VXD+1}, {16*ld}, v{self.VXD}')
    def xdma(self, base, imm, sd, soff, blk):
        o = []
        for j in range(4):
            if blk:
                if not j & 1: o += [f's_add_u32 m0, s{base}, {imm + j*1024}', 's_nop 0']
                o.append(f'buffer_load_dwordx4 v{self.VXD+(j>>1)}, s[{sd}:{sd+3}], s{soff} offen offset:{(j&1)*1024} lds')
            else:
                o += [f's_add_u32 m0, s{base}, {imm + j*1024}', 's_nop 0', f'buffer_load_dwordx4 v{self.VXD+j}, s[{sd}:{sd+3}], s{soff} offen lds']
        return o
    def knext(self):
        if self.rot is None:
            return [f's_add_u32 s{S_KX}, s{S_KX}, {2048 if self.xblk else 128}', f's_add_u32 s{S_KW}, s{S_KW}, {64*self.ldw2}']
        lc = self.rot; C = 1 << lc; N = self.NSTEP
        o = [f's_add_u32 s{S_KT}, s{S_KT}, 1']
        D = int(ENV('ROTD_' + self.tag.upper(), ENV('ROTD', '2')))
        dl = {3: [3, -1, -1, -1], 2: [2, -1, -1, 0], 1: [1, -1, 0, 0]}[D]
        tbl = sum((((d * C) % N) << (8 * i)) for i, d in enumerate(dl))
        if lc: o += [f's_lshr_b32 s{S_KX}, s{S_KT}, {lc}', f's_sub_u32 s{S_KX}, s{S_KX}, s{S_XG}']
        else: o += [f's_sub_u32 s{S_KX}, s{S_KT}, s{S_XG}']
        o += [f's_lshl_b32 s{S_KX}, s{S_KX}, 3',
              f's_lshr_b32 s{S_KX}, {tbl:#x}, s{S_KX}',
              f's_and_b32 s{S_KX}, s{S_KX}, 255',
              f's_add_u32 s{S_KX}, s{S_KX}, s{S_KT}']
        if N & (N - 1) == 0: o += [f's_and_b32 s{S_KX}, s{S_KX}, {N - 1}']
        else: o += [f's_sub_u32 s{S_KW}, s{S_KX}, {N}', f's_cselect_b32 s{S_KX}, s{S_KX}, s{S_KW}']
        o += [f's_mul_i32 s{S_KW}, s{S_KX}, {64*self.ldw2}', f's_lshl_b32 s{S_KX}, s{S_KX}, {11 if self.xblk else 7}']
        return o
    def panels_of(self, t): return self.panels
    def issue_x(self, bx, bh, imm, kx):
        o = self.xdma(bx, imm, SX, kx, self.xblk)
        if self.halo is not None:
            o.append(f's_add_u32 m0, s{S_HD}, {bh}')
            o.append('s_mov_b64 exec, s[14:15]')
            o.append(f'buffer_load_dwordx4 v{self.VXH}, s[{SX}:{SX+3}], s{kx} offen lds')
            o.append('s_mov_b64 exec, -1')
        return o
    def issue_w(self, t, bw, imm):
        o = []
        for pn, goff in enumerate(self.panels_of(t)):
            for i in range(2):
                o.append(f's_add_u32 m0, s{bw}, {imm+pn*8192+i*1024}')
                o.append((goff if str(goff).startswith('s_') else f's_add_u32 s4, s{S_KW}, {goff}') if i == 0 else 's_nop 0')
                o.append(f'buffer_load_dwordx4 v{self.VWD+i}, s[{SW}:{SW+3}], s4 offen lds')
        if self.half:
            o += [f's_add_u32 m0, s{bw}, {imm+len(self.panels)*8192}', 's_nop 0',
                  f'buffer_load_dwordx4 v{self.VXH}, s[{SW}:{SW+3}], s{S_KW} offen lds']
        return o
    def issue(self, t):
        o = [f's_add_u32 s3, s{S_SLOT}, s{S_XD}']
        o += self.issue_x(3, f's{S_SLOT}', 0, S_KX)
        o.append(f's_add_u32 s3, s{S_SLOT}, s{S_WD}')
        o += self.issue_w(t, 3, 0)
        o += self.knext()
        o.append(f's_add_u32 s{S_SLOT}, s{S_SLOT}, {self.STAGE}')
        o.append(f's_cmp_eq_u32 s{S_SLOT}, {self.S*self.STAGE}')
        o.append(f's_cselect_b32 s{S_SLOT}, 0, s{S_SLOT}')
        return o
    def run(self, variant='', tail_issue=None, ntail_vm=0, final=None, post=(), dep=None, tail_late=0, start=None, extra=None):
        a = self.a; N = self.NSTEP; d = self.S - 1
        tag = self.tag + variant
        nx = 4 + (1 if self.halo is not None else 0)
        nw = lambda t: 2 * len(self.panels_of(t)) + (1 if self.half else 0)
        seq = []
        early = EARLY and self.tag == 'w2'
        pchk = EARLY - 3 - d - 1; piss = pchk - d + 1 - int(ENV('PEARLY', '0'))
        def em(o):
            for x in o:
                if 'nodma' in DBG and x.endswith(' lds'): continue
                a.emit(x)
        def after(t): return len(seq) - 1 - max(i for i, x in enumerate(seq) if x == t)
        def wait(n):
            assert n <= 63, n
            a.emit(f's_waitcnt vmcnt({n})')
        if dep is None:
            for t in range(2): em(self.issue(t)); seq += [t] * (nx + nw(t))
            if start: start()
            wait(after(0))
            a.emit('s_barrier')
            for t in range(2, d): em(self.issue(t)); seq += [t] * (nx + nw(t))
        else:
            prev = {'attn': 'w2', 'wo': 'attn', 'w1': 'wo', 'w2': 'w1'}[self.tag]
            assert 'attn' not in EBAR
            dep_pre(a, self.tag)
            if prev in EBAR: a.emit('s_barrier')
            xw = 1 if self.tag in ENV('XW', 'x').split(',') and not hasattr(self, 'P1') else 0
            def prew(ts):
                for t in ts:
                    a.emit(f's_mov_b32 s{88+t}, s{S_KX}')
                    em(self.issue_w(t, S_WD, t * self.STAGE) + self.knext()); seq.extend([t] * nw(t))
            late = int(ENV('LATE_' + self.tag.upper(), '2'))
            prew(range(d + xw - late))
            self.npre = len(seq)
            a.emit(f's_mov_b32 s{S_SLOT}, {0 if xw else d * self.STAGE}')
            dep((lambda: prew(range(d + xw - late, d + xw))) if late else None)
            for t in range(d + xw):
                em(self.issue_x(S_XD, t * self.STAGE, t * self.STAGE, 88 + t)); seq += [t] * nx
            wait(after(0))
            if self.tag == 'w2': lstamp(a, 2)
            a.emit('s_barrier')
            if early: late_flag(a)
        ev = []
        for i in range(N):
            t = i + d
            if t in seq: t = N + 9
            if early and i == piss: seq += ['P']
            if t < N: seq += [t] * (nx + nw(t))
            ex = extra(i) if extra else []
            tl = tail_issue is not None and t == N - 1 + tail_late
            if tl: seq += ['T'] * ntail_vm
            seq += ['E'] * sum(x.startswith('buffer_load') for x in ex)
            ev.append(((nw(t) if t < N else -1, after(i + 1) if i + 1 < N else -1, tl, early and i == piss, early and i == pchk, tuple(ex)), t))
        i = 0; nl = 0
        while i < N:
            j = i
            while j + 1 < N and ev[j + 1][0] == ev[i][0]: j += 1
            n = j - i + 1
            (k, w, tl, pi, pc, ex), t = ev[i]
            if n >= 3:
                nl += 1
                a.emit(f's_mov_b32 s{S_CNT}, {n}')
                a.label(f'L_{tag}_ld{nl}')
            else: j = i
            if pi: a.emit(f'buffer_load_dword v13, v12, s[{SO}:{SO+3}], s86 offen sc1')
            if t < N:
                em(self.issue(t)); em(post)
            if tl: tail_issue()
            em(ex)
            if w >= 0: wait(w)
            elif final: final()
            if pc: late_check(a)
            a.emit('s_barrier')
            if n >= 3:
                a.emit(f's_sub_u32 s{S_CNT}, s{S_CNT}, 1')
                a.emit(f's_cmp_lg_u32 s{S_CNT}, 0')
                a.emit(f's_cbranch_scc1 L_{tag}_ld{nl}')
            i = j + 1

XD = ONE and ENV('SPLIT', '0') == '0' and ENV('XD', '1') == '1'
VW = MEGA and ENV('SPLIT', '0') == '0' and ENV('VW', '0') == '1'
NV1 = int(ENV('NV1', '16')); NV2 = int(ENV('NV2', '12')); NVO = int(ENV('NVO', '11'))
S_TB = 85
def rot_table(a, sd, smt, snt, tag):
    D = int(ENV('ROTD_' + tag.upper(), ENV('ROTD', '2')))
    dl = {3: [3, -1, -1, -1], 2: [2, -1, -1, 0], 1: [1, -1, 0, 0], 0: [0, 0, 0, 0]}[D]
    tbl = sum((d & 255) << (8 * i) for i, d in enumerate(dl))
    a.emit(f's_add_u32 s3, s{smt}, s{snt}')
    a.emit('s_lshl_b32 s3, s3, 3')
    a.emit(f's_lshl_b32 s{sd}, {tbl:#x}, s3')
    a.emit('s_sub_u32 s3, 0, s3')
    a.emit(f's_lshr_b32 s3, {tbl:#x}, s3')
    a.emit(f's_or_b32 s{sd}, s{sd}, s3')

def kpos(N, t, sd, tb=S_TB, halves=True, q=None):
    H, p, add = (28, t >> 1, 28 * (t & 1)) if N == 56 and halves else (N, t, 0)
    o = [f's_bfe_i32 s{sd}, s{tb}, {0x80000 + 8 * (p & 3):#x}', f's_add_i32 s{sd}, s{sd}, {p + add}']
    if p == 0: o += [f's_cmp_lt_i32 s{sd}, {add}', f's_cselect_b32 s{sd}, {H - 1 + add}, s{sd}']
    if p + 3 >= H: o += [f's_sub_u32 s3, s{sd}, {H}', f's_cmp_ge_i32 s{sd}, {H + add}', f's_cselect_b32 s{sd}, s3, s{sd}']
    if q is not None:
        if N == 16 or 1 <= t <= 12: o += [f's_add_u32 s{sd}, s{sd}, s{q}', f's_and_b32 s{sd}, s{sd}, 15']
        elif t <= 16 or t + 3 >= N: o += [f's_add_u32 s3, s{sd}, s{q}', 's_and_b32 s3, s3, 15', f's_cmp_lt_u32 s{sd}, 16', f's_cselect_b32 s{sd}, s3, s{sd}']
    return o

S_Q = 86
MROT = ENV('MROT', '1') == '1'
def rot_q(a, sd, smt, sh=0):
    a.emit(f's_and_b32 s{sd}, s{smt}, {3 if MROT else 0}')
    a.emit(f's_lshl_b32 s{sd}, s{sd}, {2 + sh}')

TSCH = {'wo': [int(c) for c in ENV('TSO', '000')], 'w2': [int(c) for c in ENV('TS2', '000')]}
def tail_parks(nxt, sw, mk=None, sch=None):
    if not XD: return None
    sch = sch or TSCH[nxt]; N = 16 if nxt == 'wo' else 56
    def extra(i):
        if i < 13 or not sum(sch): return []
        a = Asm()
        if i == 13:
            if mk: mk(a)
            a.emit('s_and_b32 s5, s2, 3')
            a.emit('s_lshl_b32 s5, s5, 2')
            a.emit(f's_and_b32 s6, s{S_CU}, 3')
            a.emit('s_add_u32 s5, s5, s6')
            a.emit('s_and_b32 s6, s2, 4')
            a.emit('s_lshl_b32 s6, s6, 1')
            a.emit(f's_lshr_b32 s7, s{S_CU}, 2')
            a.emit('s_add_u32 s6, s6, s7')
            rot_table(a, S_TB, 5, 6, nxt)
            rot_q(a, S_Q, 5)
            a.emit(f's_add_u32 s5, s5, s{S_WV}')
            a.emit('s_and_b32 s5, s5, 3')
            wvoff(a, 16, 5, 6, 2048)
        o = [l.strip() for l in a.lines]
        for t in range(sum(sch[:i - 13]), sum(sch[:i - 12])):
            o += kpos(N, t, 4, S_TB, False, S_Q) + ['s_lshl_b32 s4, s4, 17']
            o += [f'buffer_load_dwordx4 v[{128+8*t+4*j}:{131+8*t+4*j}], v{16+j}, s[{sw}:{sw+3}], s4 offen' for j in range(2)]
        return o
    return extra

def vreg(tag, t):
    if tag == 'wo': return (128 + 8 * (t - 5), False) if 5 <= t < 5 + NVO else None
    if t & 1: return None
    p = t >> 1
    if p < NV1: return (128 + 8 * p, True)
    if p < NV1 + NV2: return (32 + 8 * (p - NV1), False)
    return None

def wvoff(a, vd, sqw, snt, ldw2):
    a.emit('v_lshrrev_b32 v3, 3, v1')
    a.emit(f's_lshl_b32 s10, s{sqw}, 4')
    a.emit('v_add_u32 v3, s10, v3')
    a.emit(f'v_mul_u32_u24 v3, {ldw2}, v3')
    a.emit('v_lshrrev_b32 v2, 3, v1')
    a.emit('v_and_b32 v2, 2, v2')
    a.emit('v_xor_b32 v2, v2, v10')
    a.emit(f's_lshl_b32 s10, s{snt}, 7')
    a.emit('v_add_u32 v3, s10, v3')
    a.emit(f'v_lshl_add_u32 v{vd}, v2, 4, v3')
    a.emit('v_xor_b32 v2, 4, v2')
    a.emit(f'v_add_u32 v3, {8*ldw2}, v3')
    a.emit(f'v_lshl_add_u32 v{vd+1}, v2, 4, v3')

def park(N, t, r, vo, sw):
    return kpos(N, t, 4) + ['s_lshl_b32 s4, s4, 17'] + [f'buffer_load_dwordx4 v[{r+4*i}:{r+4*i+3}], v{vo+i}, s[{sw}:{sw+3}], s4 offen' for i in range(2)]

class ULoader(Loader):
    def run(self, variant='', tail_issue=None, ntail_vm=0, final=None, post=(), dep=None):
        a = self.a; N = self.NSTEP; d = self.S - 1; tag = self.tag
        seq = []
        def em(o):
            for x in o:
                if 'nodma' in DBG and x.endswith(' lds'): continue
                a.emit(x)
        def after(t): return len(seq) - 1 - max(i for i, x in enumerate(seq) if x == t)
        def wait(n, lg=False):
            assert n <= 63, n
            a.emit(f's_waitcnt vmcnt({n})' + (' lgkmcnt(0)' if lg else ''))
        def iw(t):
            sl = (t % self.S) * self.STAGE; v = vreg(tag, t)
            if v:
                em([f'v_add_u32 v11, {sl}, v14'] + [f'ds_write_b128 v11, v[{v[0]+4*i}:{v[0]+4*i+3}] offset:{1024*i}' for i in range(2)])
            else:
                em([f's_lshl_b32 s{S_KW}, s{S_KX}, 17'] + [x for x in self.issue_w(t, S_WD, sl)])
                seq.extend([t] * 2)
        def ix(t, k):
            em(self.issue_x(S_XD, None, (t % self.S) * self.STAGE, k)); seq.extend([t] * 4)
        rot_table(a, S_TB, S_MT, S_NT, tag)
        a.emit(f'v_lshl_add_u32 v14, v1, 4, s{S_WD}')
        dep_pre(a, tag)
        for t in range(d):
            em(kpos(N, t, S_KX)); iw(t)
            a.emit(f's_lshl_b32 s{88+t}, s{S_KX}, 11')
        for t in range(d, N):
            v = vreg(tag, t)
            if v and not v[1]:
                em(park(N, t, v[0], self.VWD, SW)); seq.extend(['V'] * 2)
        self.npre = len(seq)
        dep()
        for t in range(d): ix(t, 88 + t)
        wait(after(0), True)
        if tag == 'w2': lstamp(a, 2)
        a.emit('s_barrier')
        for i in range(N):
            t = i + d
            if i % 4 == 0 and post and t < N:
                a.emit('s_waitcnt lgkmcnt(0)')
                em(post)
            if t < N:
                em(kpos(N, t, S_KX)); iw(t)
                a.emit(f's_lshl_b32 s{S_KX}, s{S_KX}, 11')
                ix(t, S_KX)
            if t == N - 1: tail_issue(); seq.extend(['T'] * ntail_vm)
            if i + 1 < N: wait(after(i + 1), not post or t == N)
            else: final()
            a.emit('s_barrier')

EBAR = ENV('EBAR', 'x').split(',')
S_FL = 87
def dep_pre(a, kind, part=None, n=0):
    if ONE and kind in ('wo', 'w1'):
        ld = f'buffer_load_dword v12, v17, s[{SC}:{SC+3}], 0 offen sc1' if kind == 'wo' else f'buffer_load_dwordx4 v[12:15], v17, s[{SO}:{SO+3}], s3 offen sc1'
        if part == 1: a.emit(f's_waitcnt vmcnt({n})')
        a.emit(f's_add_u32 s3, s{S_LAYER}, s{S_WV}')
        a.emit('s_cmp_lg_u32 s3, 4')
        a.emit(f's_cbranch_scc1 L_{kind}_chk{part}')
        def cmp():
            if kind == 'wo': a.emit('v_cmp_ne_u32 vcc, 0x01010101, v12')
            else:
                a.emit('v_and_b32 v12, v12, v13')
                a.emit('v_and_b32 v14, v14, v15')
                a.emit('v_and_b32 v12, v12, v14')
                a.emit('v_cmp_ne_u32 vcc, 1, v12')
        if part == 1:
            cmp()
            a.emit(f's_cbranch_vccz L_{kind}_chk{part}')
        if True:
            if kind == 'wo': a.emit(f's_load_dwordx2 s[{SC}:{SC+1}], s[0:1], 72')
            else: srd(a, SO, 'ws0', WS_FL, FLS)
            if kind == 'wo':
                a.emit('s_waitcnt lgkmcnt(0)')
                a.emit(f's_and_b32 s{SC+1}, s{SC+1}, 0xffff')
                a.emit(f's_mov_b32 s{SC+2}, 256')
                a.emit(f's_mov_b32 s{SC+3}, 0x00020000')
                a.emit('v_lshlrev_b32 v17, 2, v1')
            else:
                a.emit('v_lshrrev_b32 v2, 2, v1')
                a.emit('v_and_b32 v3, 3, v1')
                a.emit('v_lshlrev_b32 v2, 11, v2')
                a.emit('v_lshl_add_u32 v17, v3, 4, v2')
                a.emit(f's_and_b32 s3, s{S_NT}, {REP - 1}')
                a.emit('s_lshl_b32 s3, s3, 7')
        if part == 0: a.emit(ld)
        else:
            a.emit(f's_mov_b32 s{S_CNT}, 0x100000')
            a.label(f'L_{kind}_chkl')
            a.emit(ld)
            a.emit(f's_sub_u32 s{S_CNT}, s{S_CNT}, 1')
            a.emit(f's_cbranch_scc1 L_{kind}_chk{part}')
            a.emit('s_waitcnt vmcnt(0)')
            cmp()
            a.emit(f's_cbranch_vccnz L_{kind}_chkl')
        a.label(f'L_{kind}_chk{part}')

def dep_wait(a, kind, halo=False, skip_first=False, first=None, preg=None, postf=None):
    if skip_first and not ONE:
        a.emit(f's_cmp_eq_u32 s{S_TSI}, 1')
        a.emit(f's_cbranch_scc1 L_{kind}_dep')
    srd(a, SO, 'ws0', WS_FL, FLS)
    if ONE and kind == 'wo' and first:
        a.emit(f's_cmp_lg_u32 s{S_LAYER}, 0')
        a.emit(f's_cbranch_scc1 L_{kind}_nofirst')
        first()
        a.label(f'L_{kind}_nofirst')
    a.emit(f's_lshl4_add_u32 s3, s{S_TSI}, s{S_MT}')
    a.emit(f's_and_b32 s4, s{S_NT}, {REP - 1}')
    a.emit('s_lshl4_add_u32 s3, s3, s4')
    a.emit('s_lshl_b32 s3, s3, 7')
    a.emit('s_sub_u32 s3, s3, 32768')
    a.emit('v_lshlrev_b32 v11, 7, v1')
    if halo:
        a.emit(f's_cmp_eq_u32 s{S_MT}, 0')
        a.emit('s_cselect_b32 s4, 15, 31')
        a.emit('v_and_b32 v2, 16, v1')
        a.emit('v_lshl_add_u32 v11, v2, 2, v11')
        a.emit('v_and_b32 v2, s4, v1')
    else: a.emit('v_and_b32 v2, 15, v1')
    a.emit('v_lshlrev_b32 v2, 2, v2')
    a.emit('v_mov_b32 v3, 1')
    a.emit(f's_mov_b32 s{S_CNT}, 0x100000')
    if kind == LSTK == 'wo': lstamp(a, 2)
    a.emit(f's_cmp_lg_u32 s{S_WV}, 4')
    a.emit('s_barrier')
    a.emit(f's_cbranch_scc1 L_{kind}_{"nofl" if postf else "dep"}')
    if kind == 'w2': lstamp(a, 0, True)
    a.emit(f's_mov_b32 exec_lo, {((1 << REP) - 1) * (0x10001 if halo else 1):#x}')
    a.emit('s_mov_b32 exec_hi, 0')
    a.emit(f'buffer_store_dword v3, v11, s[{SO}:{SO+3}], s{S_FL} offen sc1')
    a.emit('s_mov_b64 exec, -1')
    PSP = int(ENV('PSP', '0'))
    if postf and PSP:
        a.label(f'L_{kind}_nofl')
        a.emit('s_mov_b32 s5, s3')
        i0 = len(a.lines); postf(); ls = a.lines[i0:]; del a.lines[i0:]
        dma = [i for i, l in enumerate(ls) if 'buffer_load' in l]
        poll = lambda k: f'buffer_load_dword v{24+k}, v2, s[{SO}:{SO+3}], s5 offen sc1'
        for i, l in enumerate(ls):
            a.lines.append(l)
            for k in range(3):
                if dma and i == dma[-1 - PSP * (3 - k)]: a.emit(poll(k))
        a.emit(f's_cmp_lg_u32 s{S_WV}, 4')
        a.emit(f's_cbranch_scc1 L_{kind}_dep')
        def chk(k, n, last=False):
            a.emit(poll((k + 3) & 3))
            a.emit(f's_waitcnt vmcnt({n})')
            a.emit(f'v_cmp_ne_u32 vcc, 1, v{24+k}')
            a.emit(f's_cbranch_vccnz L_{kind}_poll' if last else f's_cbranch_vccz L_{kind}_dep')
        for k in range(3): chk(k, 3 + PSP * (3 - k))
        a.label(f'L_{kind}_poll')
        a.emit(f's_sub_u32 s{S_CNT}, s{S_CNT}, 1')
        a.emit(f's_cbranch_scc1 L_{kind}_dep')
        for k in (3, 0, 1, 2): chk(k, 3, k == 2)
    else:
        if postf:
            a.label(f'L_{kind}_nofl')
            a.emit('s_mov_b32 s5, s3')
            postf()
            a.emit('s_mov_b32 s3, s5')
            a.emit(f's_cmp_lg_u32 s{S_WV}, 4')
            a.emit(f's_cbranch_scc1 L_{kind}_dep')
        a.label(f'L_{kind}_poll')
        a.emit(f'buffer_load_dword v3, v2, s[{SO}:{SO+3}], s3 offen sc1')
        a.emit(f's_sub_u32 s{S_CNT}, s{S_CNT}, 1')
        a.emit(f's_cbranch_scc1 L_{kind}_dep')
        a.emit('s_waitcnt vmcnt(0)')
        a.emit('v_cmp_ne_u32 vcc, 1, v3')
        a.emit(f's_cbranch_vccnz L_{kind}_poll')
    a.label(f'L_{kind}_dep')
    if kind == 'w2': lstamp(a, 1, True)
    if kind == LSTK == 'wo': lstamp(a, 3)
    if preg: preg()
    if preg and kind == 'w2': lstamp(a, 2, True)
    a.emit('s_barrier')

LGO = 163840 - 64
def dep_early(a):
    srd(a, SO, 'ws0', WS_FL, FLS)
    a.emit(f's_lshl_b32 s86, s{S_TSI}, 12')
    a.emit(f's_lshl_b32 s4, s{S_MT}, 8')
    a.emit('s_add_u32 s86, s86, s4')
    a.emit('s_sub_u32 s86, s86, 4096')
    a.emit('v_and_b32 v12, 15, v1')
    a.emit('v_lshlrev_b32 v12, 2, v12')
    a.emit('v_mov_b32 v3, 0')
    a.emit(f'v_mov_b32 v2, {LGO}')
    a.emit('ds_write_b32 v2, v3')
    a.emit('v_mov_b32 v13, 1')
    a.emit(f's_mov_b32 s{S_CNT}, 0x100000')
    a.emit(f's_cmp_lg_u32 s{S_WV}, 4')
    a.emit('s_waitcnt lgkmcnt(0)')
    a.emit('s_barrier')
    a.emit('s_cbranch_scc1 L_w2_go')
    lstamp(a, 0)
    a.emit('s_mov_b64 exec, 1')
    a.emit(f'buffer_store_dword v13, off, s[{SO}:{SO+3}], s{S_FL} sc1')
    a.emit('s_mov_b64 exec, -1')
    a.label('L_w2_poll')
    a.emit(f'buffer_load_dword v3, v12, s[{SO}:{SO+3}], s86 offen sc1')
    a.emit(f's_sub_u32 s{S_CNT}, s{S_CNT}, 1')
    a.emit('s_cbranch_scc1 L_w2_rel')
    a.emit('s_waitcnt vmcnt(0)')
    a.emit('v_cmp_eq_u32 vcc, 0, v3')
    a.emit('s_cbranch_vccnz L_w2_poll')
    a.label('L_w2_rel')
    a.emit('ds_write_b32 v2, v13')
    lstamp(a, 1)
    a.emit('s_branch L_w2_dep')
    a.label('L_w2_go')
    a.emit(f's_mov_b32 s{S_CNT}, 0x2000000')
    a.label('L_w2_gol')
    a.emit('ds_read_b32 v3, v2')
    a.emit(f's_sub_u32 s{S_CNT}, s{S_CNT}, 1')
    a.emit('s_cbranch_scc1 L_w2_dep')
    a.emit('s_waitcnt lgkmcnt(0)')
    a.emit('v_cmp_eq_u32 vcc, 0, v3')
    a.emit('s_cbranch_vccnz L_w2_gol')
    a.label('L_w2_dep')

def late_flag(a):
    a.emit(f's_cmp_lg_u32 s{S_WV}, 4')
    a.emit('s_cbranch_scc1 L_w2_nolate')
    a.emit('v_mov_b32 v3, 2')
    a.emit('s_mov_b64 exec, 1')
    a.emit(f'buffer_store_dword v3, off, s[{SO}:{SO+3}], s{S_FL} sc1')
    a.emit('s_mov_b64 exec, -1')
    a.label('L_w2_nolate')

def late_check(a):
    a.emit(f's_mov_b32 s{S_CNT}, 0x100000')
    a.label('L_w2_lchk')
    a.emit('v_cmp_ne_u32 vcc, 2, v13')
    a.emit('s_cbranch_vccz L_w2_lok')
    a.emit(f'buffer_load_dword v13, v12, s[{SO}:{SO+3}], s86 offen sc1')
    a.emit(f's_sub_u32 s{S_CNT}, s{S_CNT}, 1')
    a.emit('s_waitcnt vmcnt(0)')
    a.emit('s_cbranch_scc0 L_w2_lchk')
    a.label('L_w2_lok')
    if TS: a.emit(f's_mov_b32 s58, s{S_CNT}')
    lstamps_out(a, 'w2')

def gbar(a, kind):
    if not MEGA or (EARLY and kind == 'w2'): return
    if kind == 'attn':
        a.emit(f's_cmp_eq_u32 s{S_LAYER}, 0')
        a.emit('s_cbranch_scc1 L_attn_nog')
    a.emit('s_barrier')
    if kind == 'attn': a.label('L_attn_nog')

def next_phase(a, kind):
    nxt = {'attn': 'wo', 'wo': 'w1', 'w1': 'w2', 'w2': 'attn'}[kind]
    if kind == 'w2':
        a.emit(f's_mov_b32 s{S_LAYER}, 1')
        a.emit(f's_add_u32 s12, s22, {WS_X2}')
        a.emit('s_addc_u32 s13, s23, 0')
        a.emit(f's_add_u32 s34, s22, {LSTR}')
        a.emit('s_addc_u32 s35, s23, 0')
    a.emit(f's_add_u32 s{S_TSI}, s{S_TSI}, 1')
    a.emit(f's_branch L_{nxt}_body')

def last_check(a, kind):
    if kind == 'w2' or (kind == 'attn' and not ONE):
        a.emit(f's_cmp_eq_u32 s{S_LAYER}, {0 if kind == "attn" else 1}')
        a.emit(f's_cbranch_scc1 L_{kind}_end')

def compute_end(a, kind):
    if not MEGA:
        stamps_out(a, kind)
        a.emit('s_endpgm')
        return
    if not TS: last_check(a, kind)
    if kind in EBAR: a.emit('s_barrier')
    if not (EARLY and kind == 'w1'):
        a.emit('s_waitcnt vmcnt(0) lgkmcnt(0)')
        a.emit('s_barrier')
    if TS:
        stamps_out(a, kind)
        last_check(a, kind)
    stamp(a, 0, nowait=True)
    next_phase(a, kind)

def loader_end(a, kind, check=True):
    if MEGA:
        if kind == LSTK and not EARLY: lstamps_out(a, kind)
        if check: last_check(a, kind)
        a.emit(f's_lshl_b32 s{S_FL}, s{S_TSI}, 15')
        a.emit(f's_lshl_b32 s4, s{S_MT}, 11')
        a.emit(f's_add_u32 s{S_FL}, s{S_FL}, s4')
        a.emit(f's_lshl_b32 s4, s{S_NT}, 2')
        a.emit(f's_add_u32 s{S_FL}, s{S_FL}, s4')
        next_phase(a, kind)

def pf_weights(a, sd, which, size, ldw2, R, sh, L, LMn, tilebytes, NI, vd, row0=0, qkv=False, pair=False):
    if 'nopf' in DBG: return 0
    srd(a, sd, which, 0, size)
    a.emit(f's_and_b32 s3, s{S_WV}, 3')
    a.emit(f's_mul_i32 s3, s3, {NI * (64 >> sh)}')
    a.emit(f's_mul_i32 s4, s{S_CU}, {R}')
    a.emit('s_add_u32 s3, s3, s4')
    if row0: a.emit(f's_add_u32 s3, s3, {row0}')
    a.emit(f'v_lshrrev_b32 v2, {sh}, v1')
    a.emit('v_add_u32 v2, s3, v2')
    a.emit(f'v_mul_u32_u24 v2, {ldw2}, v2')
    a.emit(f'v_and_b32 v3, {(1 << sh) - 1}, v1')
    if L < (1 << sh): a.emit(f'v_min_u32 v3, {L-1}, v3')
    if qkv:
        a.emit('v_lshrrev_b32 v12, 2, v3')
        a.emit('v_lshl_add_u32 v2, v12, 11, v2')
        a.emit('v_and_b32 v3, 3, v3')
    a.emit(f'v_lshl_add_u32 v2, v3, {8 if pair else 7}, v2')
    a.emit('s_and_b32 s3, s2, 7')
    a.emit(f's_lshr_b32 s3, s3, {4 - LMn}')
    a.emit(f's_mul_i32 s3, s3, {tilebytes if pair else (1 << (5 - LMn)) * tilebytes}')
    for i in range(NI):
        a.emit(f'buffer_load_dword v{vd+i}, v2, s[{sd}:{sd+3}], s3 offen')
        if i + 1 < NI: a.emit(f's_add_u32 s3, s3, {(64 >> sh) * ldw2}')
    return NI

_pfc = [0]
def pf_code(a, start, end, vd, forward=True):
    if 'nopfc' in DBG: return 0
    _pfc[0] += 1
    lab = f'L_pfc{_pfc[0]}'
    a.emit('s_getpc_b64 s[4:5]')
    a.label(lab)
    if forward:
        a.emit(f's_add_u32 s4, s4, {start}-{lab}')
        a.emit('s_addc_u32 s5, s5, 0')
    else:
        a.emit(f's_sub_u32 s4, s4, {lab}-{start}')
        a.emit('s_subb_u32 s5, s5, 0')
    a.emit(f's_and_b32 s3, s{S_WV}, 3')
    a.emit('s_lshl_b32 s3, s3, 13')
    a.emit('v_lshl_add_u32 v2, v1, 7, s3')
    a.emit(f'v_min_u32 v2, {end}-{start}-4, v2')
    a.emit(f'global_load_dword v{vd}, v2, s[4:5]')
    return 1

def wbase(a, vd, vt, g='v2'):
    a.emit(f'v_bfe_u32 v{vd}, v1, 2, 2')
    a.emit(f'v_lshl_add_u32 v{vd}, {g}, 3, v{vd}')
    a.emit(f'v_lshlrev_b32 v{vd}, 7, v{vd}')
    a.emit(f'v_and_b32 v{vt}, 3, v1')
    a.emit(f'v_lshl_add_u32 v{vd}, v{vt}, 3, v{vd}')
    a.emit(f'v_bfe_u32 v{vt}, v1, 3, 2')
    a.emit(f'v_lshl_add_u32 v{vd}, v{vt}, 5, v{vd}')


def code_touch(a, start, end, nb, sd=SX):
    if ENV('CT', '1') == '0': return
    _pfc[0] += 1
    lab = f'L_pfc{_pfc[0]}'
    a.emit(f's_cmp_lg_u32 s{S_LAYER}, 0')
    a.emit(f's_cbranch_scc1 {lab}_skip')
    a.emit('s_getpc_b64 s[4:5]')
    a.label(lab)
    a.emit(f's_lshl_b32 s3, s{S_CU}, 2')
    a.emit(f's_add_u32 s3, s3, s{S_WV}')
    a.emit(f's_mul_i32 s3, s3, {nb}')
    a.emit(f's_min_u32 s3, s3, {end}-{start}-{nb}')
    a.emit(f's_add_i32 s3, s3, {start}-{lab}')
    a.emit('s_ashr_i32 s6, s3, 31')
    a.emit('s_add_u32 s4, s4, s3')
    a.emit('s_addc_u32 s5, s5, s6')
    for i in range(nb // 64):
        a.emit(f's_load_dword s{sd+i}, s[4:5], {64*i}')
    a.label(f'{lab}_skip')

def loader_first(a, kind):
    if ENV('LF', '1') == '0': return
    L = a.lines
    ib = max(i for i, l in enumerate(L) if l.strip() == f's_cbranch_scc1 L_{kind}_loader')
    il = L.index(f'L_{kind}_loader:')
    ie = L.index(f'L_{kind}_end:') + 2
    assert L[ie - 1].strip() == 's_endpgm' and L[ib - 1].strip().startswith('s_cmp_ge_u32')
    L[ib - 1] = L[ib - 1].replace('s_cmp_ge_u32', 's_cmp_lt_u32')
    L[ib] = f'  s_cbranch_scc1 L_{kind}_compute'
    a.lines = L[:ib + 1] + L[il:ie] + [f'L_{kind}_compute:'] + L[ib + 1:il] + L[ie:]

def clear_flags(a, part):
    if not ONE: return
    if part == 0: a.emit(f's_load_dwordx2 s[{SC}:{SC+1}], s[0:1], 72')
    a.emit(f's_or_b32 s3, s{S_LAYER}, s{S_WV}')
    a.emit(f's_cbranch_scc1 L_clr_skip{part}')
    if part == 0:
        srd(a, SP, 'ws0', WS_FL, FLS)
        a.emit('s_lshl_b32 s3, s2, 11')
        a.emit('v_lshlrev_b32 v2, 4, v1')
        a.emit(f'buffer_store_dwordx4 v[128:131], v2, s[{SP}:{SP+3}], s3 offen sc1')
        a.emit(f'buffer_store_dwordx4 v[128:131], v2, s[{SP}:{SP+3}], s3 offen offset:1024 sc1')
    else:
        a.emit('v_mov_b32 v3, 1')
        a.emit(f's_and_b32 s{SC+1}, s{SC+1}, 0xffff')
        a.emit(f's_mov_b32 s{SC+2}, 256')
        a.emit(f's_mov_b32 s{SC+3}, 0x00020000')
        a.emit('s_mov_b64 exec, 1')
        a.emit('s_waitcnt vmcnt(0)')
        a.emit(f'buffer_store_byte v3, off, s[{SC}:{SC+3}], s2 sc1')
        a.emit('s_mov_b64 exec, -1')
    a.label(f'L_clr_skip{part}')

def mf_order(nn, nm, skip=lambda jn, jm: False):
    m = ENV('MFO', 's')
    if m == 'n': o = [(jn, jm) for jn in range(nn) for jm in range(nm)]
    elif m == 's': o = [(jn, jm if not jn & 1 else nm - 1 - jm) for jn in range(nn) for jm in range(nm)]
    elif m == 'm': o = [(jn, jm) for jm in range(nm) for jn in range(nn)]
    elif m == 'z': o = [(jn if not jm & 1 else nn - 1 - jn, jm) for jm in range(nm) for jn in range(nn)]
    elif m == 'd': o = [(i % nn, (i // nn + i % nn) % nm) for i in range(nn * nm)]
    return [x for x in o if not skip(*x)]
```

```python
import sys, os, struct
sys.path.insert(0, os.path.join(os.path.dirname(os.path.abspath(__file__)), '..'))
from asmlib import Asm, check_offsets
MB = 1 << 20
WSB = int(os.environ.get('WSB', '0')) * MB
WS_O   = WSB
WS_X1  = WSB + 4 * MB
WS_H   = WSB + 8 * MB
WS_ST  = WSB + 23 * MB
WS_CS  = WSB + 23 * MB + 512 * 1024
WS_TS  = 60 * MB
MEGA = os.environ.get('MEGA', '2') in ('1', '2')
ONE = os.environ.get('MEGA', '2') == '2'
LSTR = 64 * MB
WS_ST2 = WS_ST + 256 * 1024 if MEGA else WS_ST
WS_FL = WSB + 40 * MB
FLS = 524288
REP = int(os.environ.get('REP', '16'))
WS_XP = WSB + 24 * MB
WS_X2 = WSB + 32 * MB
XPAD = int(os.environ.get('XPAD', '128')) if MEGA else 0
f2u = lambda f: struct.unpack('<I', struct.pack('<f', f))[0]
ENV = os.environ.get
TS = ENV('TS', '')
DBG = ENV('DBG', '').split(',')
EARLY = int(ENV('EARLY', '0')) if MEGA and ENV('SPLIT', '0') == '0' else 0
def stf(kind): return (' ' + ENV('WTF', 'sc1')) if kind in ENV('WT', 'attn,wo,w2,w1').split(',') else ''

KA = {'A_x': 0, 'wqkv': 8, 'wo': 16, 'w1': 32, 'b1': 40, 'w2': 48, 'b2': 56, 'out': 64, 'ws': 80}
P_IN = 16
P_OUT = 32; P_WS = 34
P_XS = 12
PTR = {'A_x': 16, 'wqkv': 18, 'wo': 20, 'w1': 24, 'b1': 26, 'w2': 28, 'b2': 30, 'out': 32, 'ws': 34, 'xs': 12, 'ws0': 22}
SX, SW, SO, SR, SB, ST, SP, SC = 36, 40, 44, 48, 52, 56, 60, 64
S_MT, S_NT, S_WV, S_WM, S_WN = 68, 69, 70, 71, 72
S_KX, S_KW, S_SLOT, S_XD, S_WD, S_HD, S_CNT = 73, 74, 75, 76, 77, 78, 79
S_LAYER = 96; S_TSI = 97; S_T = 98; S_CU = 99; S_XG = 100; S_KT = 101

KD = '''.section .rodata,"a"
.p2align 6
.amdhsa_kernel {name}
  .amdhsa_next_free_vgpr 256
  .amdhsa_next_free_sgpr 102
  .amdhsa_accum_offset 256
  .amdhsa_group_segment_fixed_size 0
  .amdhsa_kernarg_size 88
  .amdhsa_user_sgpr_count 2
  .amdhsa_user_sgpr_kernarg_segment_ptr 1
  .amdhsa_system_sgpr_workgroup_id_x 1
  .amdhsa_float_denorm_mode_32 3
  .amdhsa_float_denorm_mode_16_64 3
.end_amdhsa_kernel
.text
'''

def srd(a, sd, which, off, size):
    p = PTR[which]
    if off:
        a.emit(f's_add_u32 s{sd}, s{p}, {off}')
        a.emit(f's_addc_u32 s{sd+1}, s{p+1}, 0')
        a.emit(f's_and_b32 s{sd+1}, s{sd+1}, 0xffff')
    else:
        a.emit(f's_mov_b32 s{sd}, s{p}')
        a.emit(f's_and_b32 s{sd+1}, s{p+1}, 0xffff')
    a.emit(f's_mov_b32 s{sd+2}, {size}')
    a.emit(f's_mov_b32 s{sd+3}, 0x00020000')

def xpitch(a, sd, inv=False):
    a.emit(f's_cmp_eq_u32 s{S_LAYER}, {0 if inv else 1}')
    a.emit(f's_cselect_b32 s{sd}, {XPAD}, 0')
    a.emit(f's_add_u32 s{sd}, s{sd}, 2048')

def srd_xs(a, sd):
    srd(a, sd, 'xs', 0, 4 * MB)
    xpitch(a, sd + 2)
    a.emit(f's_lshl_b32 s{sd+2}, s{sd+2}, 11')

def stub(a, name, body, layer, tsidx, first):
    a(f'.text\n.globl {name}\n.p2align 8\n.type {name},@function\n{name}:')
    if TS:
        stamp(a, 0, nowait=True)
    a.emit('s_load_dwordx4 s[16:19], s[0:1], 0')
    a.emit('s_load_dwordx2 s[20:21], s[0:1], 16')
    a.emit('s_load_dwordx2 s[22:23], s[0:1], 80')
    a.emit('s_load_dwordx8 s[24:31], s[0:1], 32')
    a.emit('s_load_dwordx2 s[32:33], s[0:1], 64')
    a.emit('s_load_dwordx2 s[34:35], s[0:1], 80')
    a.emit(f's_load_dwordx2 s[12:13], s[0:1], {0 if layer == 0 else 64}')
    a.emit(f's_mov_b32 s{S_LAYER}, {layer}')
    a.emit(f's_mov_b32 s{S_TSI}, {tsidx}')
    if not first:
        a.emit(f's_branch {body}')

def stamp(a, n, nowait=False):
    if not TS: return
    a.emit(f's_memrealtime s[{80+4*n}:{81+4*n}]')
    a.emit(f's_memtime s[{82+4*n}:{83+4*n}]')
    if not nowait: a.emit('s_waitcnt lgkmcnt(0)')

def stamps_out(a, tag):
    if not TS: return
    if not MEGA: a.emit('s_waitcnt vmcnt(0)')
    stamp(a, 3)
    if MEGA and tag == 'w1':
        for i in range(16): a.emit(f'v_writelane_b32 v31, s{80+i}, {i}')
        return
    srd(a, SP, 'ws0', WS_TS, 1 << 20)
    a.emit('s_lshl_b32 s4, s2, 6')
    a.emit(f's_lshl_b32 s5, s{S_TSI}, 16')
    a.emit('s_add_u32 s4, s4, s5')
    a.emit('v_mov_b32 v1, s4')
    for i in range(16): a.emit(f'v_mov_b32 v{4+i}, s{80+i}')
    a.emit('v_cmp_eq_u32 vcc, 0, v0')
    a.emit('s_and_saveexec_b64 s[6:7], vcc')
    a.emit(f's_cbranch_execz L_tsskip_{tag}')
    for j in range(4):
        a.emit(f'buffer_store_dwordx4 v[{4+4*j}:{7+4*j}], v1, s[{SP}:{SP+3}], 0 offen offset:{16*j}')
    if MEGA and tag == 'w2':
        a.emit('s_mov_b64 exec, 0xffff')
        a.emit('s_sub_u32 s4, s4, 0x10000')
        a.emit('v_lshlrev_b32 v1, 2, v0')
        a.emit(f'buffer_store_dword v31, v1, s[{SP}:{SP+3}], s4 offen')
    a.label(f'L_tsskip_{tag}')
    a.emit('s_mov_b64 exec, -1')

SPX = ENV('SPX', '1') == '1'
NV = int(ENV('NV', '0'))
EX = int(ENV('EX', '14'))
LSTK = ENV('LSTK', 'w2')
LREG = [52, 54, 56, 58] if LSTK == 'w2' else [36, 38, 48, 50]
def lstamp(a, n, dep=False):
    if dep and (ENV('LST') == 'x' or LSTK != 'w2'): return
    if TS: a.emit(f's_memrealtime s[{LREG[n]}:{LREG[n]+1}]')

def lstamps_out(a, tag):
    if not TS: return
    a.emit(f's_cmp_lg_u32 s{S_WV}, 4')
    a.emit(f's_cbranch_scc1 L_ltsskip_{tag}')
    a.emit('s_waitcnt lgkmcnt(0)')
    srd(a, SP, 'ws0', WS_TS + 16384, 1 << 20)
    a.emit('s_lshl_b32 s4, s2, 6')
    a.emit(f's_lshl_b32 s5, s{S_TSI}, 16')
    a.emit('s_add_u32 s4, s4, s5')
    for i in range(8): a.emit(f'v_writelane_b32 v20, s{LREG[i>>1]+(i&1)}, {i}')
    a.emit('v_lshlrev_b32 v21, 2, v1')
    a.emit('s_mov_b64 exec, 0xff')
    a.emit(f'buffer_store_dword v20, v21, s[{SP}:{SP+3}], s4 offen')
    a.emit('s_mov_b64 exec, -1')
    a.label(f'L_ltsskip_{tag}')

def tile_map(a, LM, endlab, pair=False):
    if endlab:
        a.emit('s_cmp_ge_u32 s2, 256')
        a.emit(f's_cbranch_scc1 {endlab}')
        a.emit('v_lshrrev_b32 v2, 6, v0')
        a.emit('v_and_b32 v1, 63, v0')
        a.emit(f'v_readfirstlane_b32 s{S_WV}, v2')
    a.emit('s_and_b32 s3, s2, 7')
    if endlab: a.emit(f's_lshr_b32 s{S_CU}, s2, 3')
    if LM == 2 and ENV('MAP2', '0') == '1':
        a.emit('s_lshl_b32 s5, s3, 1')
        a.emit('s_lshr_b32 s6, s3, 1')
        a.emit('s_and_b32 s5, s5, 2')
        a.emit('s_and_b32 s6, s6, 1')
        a.emit('s_or_b32 s5, s5, s6')
    else: a.emit(f's_and_b32 s5, s3, {(1 << (4 - LM)) - 1}')
    a.emit(f's_lshl_b32 s5, s5, {LM}')
    a.emit(f's_and_b32 s6, s{S_CU}, {(1 << LM) - 1}')
    a.emit(f's_add_u32 s{S_MT}, s5, s6')
    a.emit(f's_lshr_b32 s5, s3, {4 - LM}')
    if pair:
        a.emit(f's_lshr_b32 s{S_HD}, s{S_CU}, {LM}')
        a.emit(f's_lshl1_add_u32 s{S_NT}, s{S_HD}, s5')
        return
    a.emit(f's_lshl_b32 s5, s5, {5 - LM}')
    a.emit(f's_lshr_b32 s6, s{S_CU}, {LM}')
    a.emit(f's_add_u32 s{S_NT}, s5, s6')
    if 'smallm' in DBG: a.emit(f's_and_b32 s{S_MT}, s{S_MT}, 1')
    if 'smalln' in DBG: a.emit(f's_and_b32 s{S_NT}, s{S_NT}, 1')

def interleave(a, main, side, lead=1, per=1):
    si = 0
    for i, m in enumerate(main):
        a.emit(m)
        if i + 1 >= lead:
            for _ in range(per):
                if si < len(side): a.emit(side[si]); si += 1
    while si < len(side): a.emit(side[si]); si += 1

class Loader:
    VXD = 4; VWD = 8; VXH = 28
    def __init__(self, a, tag, K, lda2, ldw2, panels, colbase, S, STAGE, halo=None, delta=0, rot=None, xblk=False, half=0):
        self.a = a; self.tag = tag; self.K = K; self.lda2 = lda2; self.ldw2 = ldw2; self.panels = panels
        self.colbase = colbase; self.S = S; self.STAGE = STAGE; self.halo = halo; self.delta = delta; self.xblk = xblk; self.rot = rot if rot is not None and rot >= 0 else None
        self.NSTEP = K // 64; self.half = half
        self.per = 4 + 2 * len(panels) + (1 if halo is not None else 0)
    def setup(self):
        a = self.a
        if ENV('PRIO', '0') != '0': a.emit(f"s_setprio {ENV('PRIO')}")
        a.emit(f's_add_u32 s8, s{S_WV}, s{S_NT}')
        a.emit('s_and_b32 s8, s8, 3')
        a.emit(f's_add_u32 s9, s{S_WV}, s{S_MT}')
        a.emit('s_and_b32 s9, s9, 3')
        a.emit(f's_lshl_b32 s{S_XD}, s8, 12')
        a.emit(f's_lshl_b32 s{S_WD}, s9, 11')
        a.emit(f's_add_u32 s{S_WD}, s{S_WD}, 16384')
        a.emit(f's_lshl_b32 s11, s{S_MT}, 7')
        a.emit('v_and_b32 v10, 7, v1')
        if self.xblk: self.xoff_blk(self.lda2)
        else: self.xoff_rows(self.lda2)
        a.emit('v_lshrrev_b32 v3, 3, v1')
        a.emit('s_lshl_b32 s10, s9, 4')
        a.emit('v_add_u32 v3, s10, v3')
        a.emit(f'v_mul_u32_u24 v3, {self.ldw2}, v3')
        a.emit('v_lshrrev_b32 v2, 3, v1')
        a.emit('v_and_b32 v2, 2, v2')
        a.emit('v_xor_b32 v2, v2, v10')
        a.emit(f's_mul_i32 s10, s{S_NT}, {self.colbase}')
        if 'noslow' in DBG and self.tag == 'attn':
            a.emit(f's_bitcmp1_b32 0x0808, s{S_NT}')
            a.emit('s_cselect_b32 s3, 512, 0')
            a.emit('s_add_u32 s10, s10, s3')
        if self.colbase & 127: a.emit('s_andn2_b32 s10, s10, 127')
        a.emit('v_add_u32 v3, s10, v3')
        a.emit(f'v_lshl_add_u32 v{self.VWD}, v2, 4, v3')
        a.emit('v_xor_b32 v2, 4, v2')
        a.emit(f'v_add_u32 v3, {8*self.ldw2}, v3')
        a.emit(f'v_lshl_add_u32 v{self.VWD+1}, v2, 4, v3')
        if self.half:
            a.emit('v_lshrrev_b32 v3, 2, v1')
            a.emit('s_lshl_b32 s10, s9, 4')
            a.emit('v_add_u32 v3, s10, v3')
            a.emit(f'v_mul_u32_u24 v3, {self.ldw2}, v3')
            a.emit('v_lshrrev_b32 v2, 4, v1')
            a.emit('v_and_b32 v2, 2, v2')
            a.emit('v_xor_b32 v2, v2, v1')
            a.emit('v_and_b32 v2, 3, v2')
            a.emit(f's_lshl_b32 s10, s{S_NT}, 6')
            a.emit(f's_add_u32 s10, s10, {self.half}')
            a.emit('v_add_u32 v3, s10, v3')
            a.emit(f'v_lshl_add_u32 v{self.VXH}, v2, 4, v3')
            a.emit(f's_lshl_b32 s{S_HD}, s{S_NT}, 7')
            a.emit(f's_add_u32 s{S_HD}, s{S_HD}, 3072')
        if self.halo is not None:
            a.emit(f's_and_b32 s10, s{S_WV}, 3')
            a.emit(f's_lshl_b32 s{S_HD}, s10, 9')
            a.emit(f's_add_u32 s{S_HD}, s{S_HD}, {self.halo}')
            a.emit('s_lshl_b32 s14, s10, 2')
            a.emit('s_add_u32 s14, s14, s11')
            a.emit('s_sub_u32 s14, s14, 16')
            a.emit('v_lshrrev_b32 v3, 3, v1')
            a.emit('v_add_u32 v3, s14, v3')
            a.emit('v_max_i32 v3, 0, v3')
            a.emit('v_mul_u32_u24 v3, s5, v3')
            a.emit('s_lshl_b32 s14, s10, 1')
            a.emit('v_lshrrev_b32 v2, 4, v1')
            a.emit('v_add_u32 v2, s14, v2')
            a.emit('v_and_b32 v2, 7, v2')
            a.emit('v_xor_b32 v2, v2, v10')
            a.emit(f'v_lshl_add_u32 v{self.VXH}, v2, 4, v3')
            a.emit('s_cmp_eq_u32 s10, 0')
            a.emit('s_cselect_b32 s14, 0xffffff00, -1')
            a.emit('s_mov_b32 s15, 0')
        a.emit(f's_mov_b32 s{S_SLOT}, 0')
        if self.rot is None:
            a.emit(f's_mov_b32 s{S_KX}, 0')
            a.emit(f's_mov_b32 s{S_KW}, 0')
        else:
            if not getattr(self, 'noxg', False): a.emit(f's_add_u32 s{S_XG}, s{S_MT}, s{S_NT}')
            a.emit(f's_mov_b32 s{S_KT}, {0 if EARLY and self.tag == "w2" else -1}')
            ko = int(ENV('KOFF_' + self.tag.upper(), '0'))
            if ko:
                a.emit(f"s_bitcmp1_b32 {ENV('KMSK_' + self.tag.upper(), '0x0808' if self.tag == 'attn' else '0x2aea')}, s{S_NT}")
                a.emit(f's_cselect_b32 s{S_KT}, {ko - 1}, s{S_KT}')
            for x in self.knext(): a.emit(x)
    def xoff_rows(self, ld):
        a = self.a
        a.emit('v_lshrrev_b32 v3, 3, v1')
        a.emit(f's_lshr_b32 s10, s{S_XD}, 7')
        a.emit(f's_lshl_b32 s3, s{S_MT}, 7')
        a.emit('s_add_u32 s10, s10, s3')
        a.emit('v_add_u32 v3, s10, v3')
        xpitch(a, 5)
        a.emit('s_lshl_b32 s6, s5, 3')
        a.emit('v_mul_u32_u24 v3, s5, v3')
        a.emit('v_lshrrev_b32 v2, 4, v1')
        for j in range(4):
            d = self.VXD + j
            if j & 1:
                a.emit(f'v_add_u32 v{d}, 4, v2')
                a.emit(f'v_xor_b32 v{d}, v{d}, v10')
            else:
                a.emit(f'v_xor_b32 v{d}, v2, v10')
            a.emit(f'v_lshl_add_u32 v{d}, v{d}, 4, v3')
            if j < 3: a.emit('v_add_u32 v3, s6, v3')
    def xoff_blk(self, ld):
        a = self.a
        a.emit(f's_lshr_b32 s10, s{S_XD}, 11')
        a.emit(f's_lshl_b32 s3, s{S_MT}, 3')
        a.emit('s_add_u32 s10, s10, s3')
        a.emit(f's_mul_i32 s10, s10, {16*ld}')
        a.emit(f'v_lshl_add_u32 v{self.VXD}, v1, 4, s10')
        a.emit(f'v_add_u32 v{self.VXD+1}, {16*ld}, v{self.VXD}')
    def xdma(self, base, imm, sd, soff, blk):
        o = []
        for j in range(4):
            if blk:
                if not j & 1: o += [f's_add_u32 m0, s{base}, {imm + j*1024}', 's_nop 0']
                o.append(f'buffer_load_dwordx4 v{self.VXD+(j>>1)}, s[{sd}:{sd+3}], s{soff} offen offset:{(j&1)*1024} lds')
            else:
                o += [f's_add_u32 m0, s{base}, {imm + j*1024}', 's_nop 0', f'buffer_load_dwordx4 v{self.VXD+j}, s[{sd}:{sd+3}], s{soff} offen lds']
        return o
    def knext(self):
        if self.rot is None:
            return [f's_add_u32 s{S_KX}, s{S_KX}, {2048 if self.xblk else 128}', f's_add_u32 s{S_KW}, s{S_KW}, {64*self.ldw2}']
        lc = self.rot; C = 1 << lc; N = self.NSTEP
        o = [f's_add_u32 s{S_KT}, s{S_KT}, 1']
        D = int(ENV('ROTD_' + self.tag.upper(), ENV('ROTD', '2')))
        dl = {3: [3, -1, -1, -1], 2: [2, -1, -1, 0], 1: [1, -1, 0, 0]}[D]
        tbl = sum((((d * C) % N) << (8 * i)) for i, d in enumerate(dl))
        if lc: o += [f's_lshr_b32 s{S_KX}, s{S_KT}, {lc}', f's_sub_u32 s{S_KX}, s{S_KX}, s{S_XG}']
        else: o += [f's_sub_u32 s{S_KX}, s{S_KT}, s{S_XG}']
        o += [f's_lshl_b32 s{S_KX}, s{S_KX}, 3',
              f's_lshr_b32 s{S_KX}, {tbl:#x}, s{S_KX}',
              f's_and_b32 s{S_KX}, s{S_KX}, 255',
              f's_add_u32 s{S_KX}, s{S_KX}, s{S_KT}']
        if N & (N - 1) == 0: o += [f's_and_b32 s{S_KX}, s{S_KX}, {N - 1}']
        else: o += [f's_sub_u32 s{S_KW}, s{S_KX}, {N}', f's_cselect_b32 s{S_KX}, s{S_KX}, s{S_KW}']
        o += [f's_mul_i32 s{S_KW}, s{S_KX}, {64*self.ldw2}', f's_lshl_b32 s{S_KX}, s{S_KX}, {11 if self.xblk else 7}']
        return o
    def panels_of(self, t): return self.panels
    def issue_x(self, bx, bh, imm, kx):
        o = self.xdma(bx, imm, SX, kx, self.xblk)
        if self.halo is not None:
            o.append(f's_add_u32 m0, s{S_HD}, {bh}')
            o.append('s_mov_b64 exec, s[14:15]')
            o.append(f'buffer_load_dwordx4 v{self.VXH}, s[{SX}:{SX+3}], s{kx} offen lds')
            o.append('s_mov_b64 exec, -1')
        return o
    def issue_w(self, t, bw, imm):
        o = []
        for pn, goff in enumerate(self.panels_of(t)):
            for i in range(2):
                o.append(f's_add_u32 m0, s{bw}, {imm+pn*8192+i*1024}')
                o.append((goff if str(goff).startswith('s_') else f's_add_u32 s4, s{S_KW}, {goff}') if i == 0 else 's_nop 0')
                o.append(f'buffer_load_dwordx4 v{self.VWD+i}, s[{SW}:{SW+3}], s4 offen lds')
        if self.half:
            o += [f's_add_u32 m0, s{bw}, {imm+len(self.panels)*8192}', 's_nop 0',
                  f'buffer_load_dwordx4 v{self.VXH}, s[{SW}:{SW+3}], s{S_KW} offen lds']
        return o
    def issue(self, t):
        o = [f's_add_u32 s3, s{S_SLOT}, s{S_XD}']
        o += self.issue_x(3, f's{S_SLOT}', 0, S_KX)
        o.append(f's_add_u32 s3, s{S_SLOT}, s{S_WD}')
        o += self.issue_w(t, 3, 0)
        o += self.knext()
        o.append(f's_add_u32 s{S_SLOT}, s{S_SLOT}, {self.STAGE}')
        o.append(f's_cmp_eq_u32 s{S_SLOT}, {self.S*self.STAGE}')
        o.append(f's_cselect_b32 s{S_SLOT}, 0, s{S_SLOT}')
        return o
    def run(self, variant='', tail_issue=None, ntail_vm=0, final=None, post=(), dep=None, tail_late=0, start=None, extra=None):
        a = self.a; N = self.NSTEP; d = self.S - 1
        tag = self.tag + variant
        nx = 4 + (1 if self.halo is not None else 0)
        nw = lambda t: 2 * len(self.panels_of(t)) + (1 if self.half else 0)
        seq = []
        early = EARLY and self.tag == 'w2'
        pchk = EARLY - 3 - d - 1; piss = pchk - d + 1 - int(ENV('PEARLY', '0'))
        def em(o):
            for x in o:
                if 'nodma' in DBG and x.endswith(' lds'): continue
                a.emit(x)
        def after(t): return len(seq) - 1 - max(i for i, x in enumerate(seq) if x == t)
        def wait(n):
            assert n <= 63, n
            a.emit(f's_waitcnt vmcnt({n})')
        if dep is None:
            for t in range(2): em(self.issue(t)); seq += [t] * (nx + nw(t))
            if start: seq += ['S'] * start()
            wait(after(0))
            a.emit('s_barrier')
            for t in range(2, d): em(self.issue(t)); seq += [t] * (nx + nw(t))
        else:
            prev = {'attn': 'w2', 'wo': 'attn', 'w1': 'wo', 'w2': 'w1'}[self.tag]
            assert 'attn' not in EBAR
            dep_pre(a, self.tag)
            if prev in EBAR: a.emit('s_barrier')
            xw = 1 if self.tag in ENV('XW', 'x').split(',') and not hasattr(self, 'P1') else 0
            def prew(ts):
                for t in ts:
                    a.emit(f's_mov_b32 s{88+t}, s{S_KX}')
                    em(self.issue_w(t, S_WD, t * self.STAGE) + self.knext()); seq.extend([t] * nw(t))
            late = int(ENV('LATE_' + self.tag.upper(), '2'))
            prew(range(d + xw - late))
            self.npre = len(seq)
            a.emit(f's_mov_b32 s{S_SLOT}, {0 if xw else d * self.STAGE}')
            dep((lambda: prew(range(d + xw - late, d + xw))) if late else None)
            for t in range(d + xw):
                em(self.issue_x(S_XD, t * self.STAGE, t * self.STAGE, 88 + t)); seq += [t] * nx
            wait(after(0))
            if self.tag == 'w2': lstamp(a, 2)
            a.emit('s_barrier')
            if early: late_flag(a)
        ev = []
        for i in range(N):
            t = i + d
            if t in seq: t = N + 9
            if early and i == piss: seq += ['P']
            if t < N: seq += [t] * (nx + nw(t)) + ['Q'] * sum(x.startswith('buffer_') for x in post)
            ex = extra(i) if extra else []
            tl = tail_issue is not None and t == N - 1 + tail_late
            if tl: seq += ['T'] * ntail_vm
            seq += ['E'] * sum(x.startswith('buffer_load') for x in ex)
            ev.append(((nw(t) if t < N else -1, after(i + 1) if i + 1 < N else -1, tl, early and i == piss, early and i == pchk, tuple(ex)), t))
        i = 0; nl = 0
        while i < N:
            j = i
            while j + 1 < N and ev[j + 1][0] == ev[i][0]: j += 1
            n = j - i + 1
            (k, w, tl, pi, pc, ex), t = ev[i]
            if n >= 3:
                nl += 1
                a.emit(f's_mov_b32 s{S_CNT}, {n}')
                a.label(f'L_{tag}_ld{nl}')
            else: j = i
            if pi: a.emit(f'buffer_load_dword v13, v12, s[{SO}:{SO+3}], s86 offen sc1')
            if t < N:
                em(self.issue(t)); em(post)
            if tl and not ('notail' in DBG and self.tag == 'w1'):
                if ENV('FPRIO'): a.emit('s_setprio 3')
                tail_issue()
                if ENV('FPRIO'): a.emit('s_setprio 0')
            em(ex)
            if w >= 0: wait(w)
            elif final and 'nofinal' not in DBG:
                if ENV('FPRIO'): a.emit('s_setprio 3')
                final()
                if ENV('FPRIO'): a.emit('s_setprio 0')
            if pc: late_check(a)
            a.emit('s_barrier')
            if n >= 3:
                a.emit(f's_sub_u32 s{S_CNT}, s{S_CNT}, 1')
                a.emit(f's_cmp_lg_u32 s{S_CNT}, 0')
                a.emit(f's_cbranch_scc1 L_{tag}_ld{nl}')
            i = j + 1

XD = ONE and ENV('SPLIT', '0') == '0' and ENV('XD', '1') == '1'
VW = MEGA and ENV('SPLIT', '0') == '0' and ENV('VW', '0') == '1'
NV1 = int(ENV('NV1', '16')); NV2 = int(ENV('NV2', '12')); NVO = int(ENV('NVO', '11'))
S_TB = 85
def rot_table(a, sd, smt, snt, tag):
    D = int(ENV('ROTD_' + tag.upper(), ENV('ROTD', '2')))
    dl = {3: [3, -1, -1, -1], 2: [2, -1, -1, 0], 1: [1, -1, 0, 0], 0: [0, 0, 0, 0]}[D]
    tbl = sum((d & 255) << (8 * i) for i, d in enumerate(dl))
    a.emit(f's_add_u32 s3, s{smt}, s{snt}')
    a.emit('s_lshl_b32 s3, s3, 3')
    a.emit(f's_lshl_b32 s{sd}, {tbl:#x}, s3')
    a.emit('s_sub_u32 s3, 0, s3')
    a.emit(f's_lshr_b32 s3, {tbl:#x}, s3')
    a.emit(f's_or_b32 s{sd}, s{sd}, s3')

def kpos(N, t, sd, tb=S_TB, halves=True, q=None):
    H, p, add = (28, t >> 1, 28 * (t & 1)) if N == 56 and halves else (N, t, 0)
    o = [f's_bfe_i32 s{sd}, s{tb}, {0x80000 + 8 * (p & 3):#x}', f's_add_i32 s{sd}, s{sd}, {p + add}']
    if p == 0: o += [f's_cmp_lt_i32 s{sd}, {add}', f's_cselect_b32 s{sd}, {H - 1 + add}, s{sd}']
    if p + 3 >= H: o += [f's_sub_u32 s3, s{sd}, {H}', f's_cmp_ge_i32 s{sd}, {H + add}', f's_cselect_b32 s{sd}, s3, s{sd}']
    if q is not None:
        if N == 16 or 1 <= t <= 12: o += [f's_add_u32 s{sd}, s{sd}, s{q}', f's_and_b32 s{sd}, s{sd}, 15']
        elif t <= 16 or t + 3 >= N: o += [f's_add_u32 s3, s{sd}, s{q}', 's_and_b32 s3, s3, 15', f's_cmp_lt_u32 s{sd}, 16', f's_cselect_b32 s{sd}, s3, s{sd}']
    return o

S_Q = 86
MROT = ENV('MROT', '1') == '1'
def rot_q(a, sd, smt, sh=0):
    a.emit(f's_and_b32 s{sd}, s{smt}, {3 if MROT else 0}')
    a.emit(f's_lshl_b32 s{sd}, s{sd}, {2 + sh}')

TSCH = {'wo': [int(c) for c in ENV('TSO', '000')], 'w2': [int(c) for c in ENV('TS2', '000')]}
def tail_parks(nxt, sw, mk=None, sch=None):
    if not XD: return None
    sch = sch or TSCH[nxt]; N = 16 if nxt == 'wo' else 56
    def extra(i):
        if i < 13 or not sum(sch): return []
        a = Asm()
        if i == 13:
            if mk: mk(a)
            a.emit('s_and_b32 s5, s2, 3')
            a.emit('s_lshl_b32 s5, s5, 2')
            a.emit(f's_and_b32 s6, s{S_CU}, 3')
            a.emit('s_add_u32 s5, s5, s6')
            a.emit('s_and_b32 s6, s2, 4')
            a.emit('s_lshl_b32 s6, s6, 1')
            a.emit(f's_lshr_b32 s7, s{S_CU}, 2')
            a.emit('s_add_u32 s6, s6, s7')
            rot_table(a, S_TB, 5, 6, nxt)
            rot_q(a, S_Q, 5)
            a.emit(f's_add_u32 s5, s5, s{S_WV}')
            a.emit('s_and_b32 s5, s5, 3')
            wvoff(a, 16, 5, 6, 2048)
        o = [l.strip() for l in a.lines]
        for t in range(sum(sch[:i - 13]), sum(sch[:i - 12])):
            o += kpos(N, t, 4, S_TB, False, S_Q) + ['s_lshl_b32 s4, s4, 17']
            o += [f'buffer_load_dwordx4 v[{128+8*t+4*j}:{131+8*t+4*j}], v{16+j}, s[{sw}:{sw+3}], s4 offen' for j in range(2)]
        return o
    return extra

def vreg(tag, t):
    if tag == 'wo': return (128 + 8 * (t - 5), False) if 5 <= t < 5 + NVO else None
    if t & 1: return None
    p = t >> 1
    if p < NV1: return (128 + 8 * p, True)
    if p < NV1 + NV2: return (32 + 8 * (p - NV1), False)
    return None

def wvoff(a, vd, sqw, snt, ldw2):
    a.emit('v_lshrrev_b32 v3, 3, v1')
    a.emit(f's_lshl_b32 s10, s{sqw}, 4')
    a.emit('v_add_u32 v3, s10, v3')
    a.emit(f'v_mul_u32_u24 v3, {ldw2}, v3')
    a.emit('v_lshrrev_b32 v2, 3, v1')
    a.emit('v_and_b32 v2, 2, v2')
    a.emit('v_xor_b32 v2, v2, v10')
    a.emit(f's_lshl_b32 s10, s{snt}, 7')
    a.emit('v_add_u32 v3, s10, v3')
    a.emit(f'v_lshl_add_u32 v{vd}, v2, 4, v3')
    a.emit('v_xor_b32 v2, 4, v2')
    a.emit(f'v_add_u32 v3, {8*ldw2}, v3')
    a.emit(f'v_lshl_add_u32 v{vd+1}, v2, 4, v3')

def park(N, t, r, vo, sw):
    return kpos(N, t, 4) + ['s_lshl_b32 s4, s4, 17'] + [f'buffer_load_dwordx4 v[{r+4*i}:{r+4*i+3}], v{vo+i}, s[{sw}:{sw+3}], s4 offen' for i in range(2)]

class ULoader(Loader):
    def run(self, variant='', tail_issue=None, ntail_vm=0, final=None, post=(), dep=None):
        a = self.a; N = self.NSTEP; d = self.S - 1; tag = self.tag
        seq = []
        def em(o):
            for x in o:
                if 'nodma' in DBG and x.endswith(' lds'): continue
                a.emit(x)
        def after(t): return len(seq) - 1 - max(i for i, x in enumerate(seq) if x == t)
        def wait(n, lg=False):
            assert n <= 63, n
            a.emit(f's_waitcnt vmcnt({n})' + (' lgkmcnt(0)' if lg else ''))
        def iw(t):
            sl = (t % self.S) * self.STAGE; v = vreg(tag, t)
            if v:
                em([f'v_add_u32 v11, {sl}, v14'] + [f'ds_write_b128 v11, v[{v[0]+4*i}:{v[0]+4*i+3}] offset:{1024*i}' for i in range(2)])
            else:
                em([f's_lshl_b32 s{S_KW}, s{S_KX}, 17'] + [x for x in self.issue_w(t, S_WD, sl)])
                seq.extend([t] * 2)
        def ix(t, k):
            em(self.issue_x(S_XD, None, (t % self.S) * self.STAGE, k)); seq.extend([t] * 4)
        rot_table(a, S_TB, S_MT, S_NT, tag)
        a.emit(f'v_lshl_add_u32 v14, v1, 4, s{S_WD}')
        dep_pre(a, tag)
        for t in range(d):
            em(kpos(N, t, S_KX)); iw(t)
            a.emit(f's_lshl_b32 s{88+t}, s{S_KX}, 11')
        for t in range(d, N):
            v = vreg(tag, t)
            if v and not v[1]:
                em(park(N, t, v[0], self.VWD, SW)); seq.extend(['V'] * 2)
        self.npre = len(seq)
        dep()
        for t in range(d): ix(t, 88 + t)
        wait(after(0), True)
        if tag == 'w2': lstamp(a, 2)
        a.emit('s_barrier')
        for i in range(N):
            t = i + d
            if i % 4 == 0 and post and t < N:
                a.emit('s_waitcnt lgkmcnt(0)')
                em(post)
            if t < N:
                em(kpos(N, t, S_KX)); iw(t)
                a.emit(f's_lshl_b32 s{S_KX}, s{S_KX}, 11')
                ix(t, S_KX)
            if t == N - 1: tail_issue(); seq.extend(['T'] * ntail_vm)
            if i + 1 < N: wait(after(i + 1), not post or t == N)
            else: final()
            a.emit('s_barrier')

EBAR = ENV('EBAR', 'x').split(',')
S_FL = 87
def dep_pre(a, kind, part=None, n=0):
    if ONE and kind in ('wo', 'w1'):
        ld = f'buffer_load_dword v12, v17, s[{SC}:{SC+3}], 0 offen sc1' if kind == 'wo' else f'buffer_load_dwordx4 v[12:15], v17, s[{SO}:{SO+3}], s3 offen sc1'
        if part == 1: a.emit(f's_waitcnt vmcnt({n})')
        a.emit(f's_add_u32 s3, s{S_LAYER}, s{S_WV}')
        a.emit('s_cmp_lg_u32 s3, 4')
        a.emit(f's_cbranch_scc1 L_{kind}_chk{part}')
        def cmp():
            if kind == 'wo': a.emit('v_cmp_ne_u32 vcc, 0x01010101, v12')
            else:
                a.emit('v_and_b32 v12, v12, v13')
                a.emit('v_and_b32 v14, v14, v15')
                a.emit('v_and_b32 v12, v12, v14')
                a.emit('v_cmp_ne_u32 vcc, 1, v12')
        if part == 1:
            cmp()
            a.emit(f's_cbranch_vccz L_{kind}_chk{part}')
        if True:
            if kind == 'wo': a.emit(f's_load_dwordx2 s[{SC}:{SC+1}], s[0:1], 72')
            else: srd(a, SO, 'ws0', WS_FL, FLS)
            if kind == 'wo':
                a.emit('s_waitcnt lgkmcnt(0)')
                a.emit(f's_and_b32 s{SC+1}, s{SC+1}, 0xffff')
                a.emit(f's_mov_b32 s{SC+2}, 256')
                a.emit(f's_mov_b32 s{SC+3}, 0x00020000')
                a.emit('v_lshlrev_b32 v17, 2, v1')
            else:
                a.emit('v_lshrrev_b32 v2, 2, v1')
                a.emit('v_and_b32 v3, 3, v1')
                a.emit('v_lshlrev_b32 v2, 11, v2')
                a.emit('v_lshl_add_u32 v17, v3, 4, v2')
                a.emit(f's_and_b32 s3, s{S_NT}, {REP - 1}')
                a.emit('s_lshl_b32 s3, s3, 7')
        if part == 0: a.emit(ld)
        else:
            a.emit(f's_mov_b32 s{S_CNT}, 0x100000')
            a.label(f'L_{kind}_chkl')
            a.emit(ld)
            a.emit(f's_sub_u32 s{S_CNT}, s{S_CNT}, 1')
            a.emit(f's_cbranch_scc1 L_{kind}_chk{part}')
            a.emit('s_waitcnt vmcnt(0)')
            cmp()
            a.emit(f's_cbranch_vccnz L_{kind}_chkl')
        a.label(f'L_{kind}_chk{part}')

def dep_wait(a, kind, halo=False, skip_first=False, first=None, preg=None, postf=None, pref=None, defer=False):
    if skip_first and not ONE:
        a.emit(f's_cmp_eq_u32 s{S_TSI}, 1')
        a.emit(f's_cbranch_scc1 L_{kind}_dep')
    srd(a, SO, 'ws0', WS_FL, FLS)
    if ONE and kind == 'wo' and first:
        a.emit(f's_cmp_lg_u32 s{S_LAYER}, 0')
        a.emit(f's_cbranch_scc1 L_{kind}_nofirst')
        first()
        a.label(f'L_{kind}_nofirst')
    a.emit(f's_lshl4_add_u32 s3, s{S_TSI}, s{S_MT}')
    a.emit(f's_and_b32 s4, s{S_NT}, {REP - 1}')
    a.emit('s_lshl4_add_u32 s3, s3, s4')
    a.emit('s_lshl_b32 s3, s3, 7')
    a.emit('s_sub_u32 s3, s3, 32768')
    a.emit('v_lshlrev_b32 v11, 7, v1')
    if halo:
        a.emit(f's_cmp_eq_u32 s{S_MT}, 0')
        a.emit('s_cselect_b32 s4, 15, 31')
        a.emit('v_and_b32 v2, 16, v1')
        a.emit('v_lshl_add_u32 v11, v2, 2, v11')
        a.emit('v_and_b32 v2, s4, v1')
    else: a.emit('v_and_b32 v2, 15, v1')
    a.emit('v_lshlrev_b32 v2, 2, v2')
    a.emit('v_mov_b32 v3, 1')
    a.emit(f's_mov_b32 s{S_CNT}, 0x100000')
    if kind == LSTK == 'wo': lstamp(a, 2)
    if pref: pref()
    a.emit(f's_cmp_lg_u32 s{S_WV}, 4')
    a.emit('s_barrier')
    a.emit(f's_cbranch_scc1 L_{kind}_{"nofl" if postf else "dep"}')
    if kind == 'w2': lstamp(a, 0, True)
    a.emit(f's_mov_b32 exec_lo, {((1 << REP) - 1) * (0x10001 if halo else 1):#x}')
    a.emit('s_mov_b32 exec_hi, 0')
    a.emit(f'buffer_store_dword v3, v11, s[{SO}:{SO+3}], s{S_FL} offen sc1')
    a.emit('s_mov_b64 exec, -1')
    PSP = int(ENV('PSP', '0'))
    if defer:
        a.label(f'L_{kind}_nofl')
        a.emit(f's_mov_b32 s{S_Q}, s3')
        postf()
        return
    if postf and PSP:
        a.label(f'L_{kind}_nofl')
        a.emit('s_mov_b32 s5, s3')
        i0 = len(a.lines); postf(); ls = a.lines[i0:]; del a.lines[i0:]
        dma = [i for i, l in enumerate(ls) if 'buffer_load' in l]
        poll = lambda k: f'buffer_load_dword v{24+k}, v2, s[{SO}:{SO+3}], s5 offen sc1'
        for i, l in enumerate(ls):
            a.lines.append(l)
            for k in range(3):
                if dma and i == dma[-1 - PSP * (3 - k)]: a.emit(poll(k))
        a.emit(f's_cmp_lg_u32 s{S_WV}, 4')
        a.emit(f's_cbranch_scc1 L_{kind}_dep')
        def chk(k, n, last=False):
            a.emit(poll((k + 3) & 3))
            a.emit(f's_waitcnt vmcnt({n})')
            a.emit(f'v_cmp_ne_u32 vcc, 1, v{24+k}')
            a.emit(f's_cbranch_vccnz L_{kind}_poll' if last else f's_cbranch_vccz L_{kind}_dep')
        for k in range(3): chk(k, 3 + PSP * (3 - k))
        a.label(f'L_{kind}_poll')
        a.emit(f's_sub_u32 s{S_CNT}, s{S_CNT}, 1')
        a.emit(f's_cbranch_scc1 L_{kind}_dep')
        for k in (3, 0, 1, 2): chk(k, 3, k == 2)
    else:
        if postf:
            a.label(f'L_{kind}_nofl')
            a.emit('s_mov_b32 s5, s3')
            postf()
            a.emit('s_mov_b32 s3, s5')
            a.emit(f's_cmp_lg_u32 s{S_WV}, 4')
            a.emit(f's_cbranch_scc1 L_{kind}_dep')
        a.label(f'L_{kind}_poll')
        a.emit(f'buffer_load_dword v3, v2, s[{SO}:{SO+3}], s3 offen sc1')
        a.emit(f's_sub_u32 s{S_CNT}, s{S_CNT}, 1')
        a.emit(f's_cbranch_scc1 L_{kind}_dep')
        a.emit('s_waitcnt vmcnt(0)')
        a.emit('v_cmp_ne_u32 vcc, 1, v3')
        a.emit(f's_cbranch_vccnz L_{kind}_poll')
    a.label(f'L_{kind}_dep')
    if kind == 'w2': lstamp(a, 1, True)
    if kind == LSTK == 'wo': lstamp(a, 3)
    if preg: preg()
    if preg and kind == 'w2': lstamp(a, 2, True)
    a.emit('s_barrier')

def dep_late(a, kind, part, n=0):
    ld = f'buffer_load_dword v3, v2, s[{SO}:{SO+3}], s{S_Q} offen sc1'
    if part == 0:
        a.emit(f's_cmp_eq_u32 s{S_WV}, 4')
        a.emit(f's_cselect_b32 s{SO+2}, s{SO+2}, 0')
        a.emit(ld)
        return
    a.emit(f's_cmp_lg_u32 s{S_WV}, 4')
    a.emit(f's_cbranch_scc1 L_{kind}_dep')
    a.emit(f's_waitcnt vmcnt({n})')
    a.emit('v_cmp_ne_u32 vcc, 1, v3')
    a.emit(f's_cbranch_vccz L_{kind}_dep')
    a.label(f'L_{kind}_poll')
    a.emit(ld)
    a.emit(f's_sub_u32 s{S_CNT}, s{S_CNT}, 1')
    a.emit(f's_cbranch_scc1 L_{kind}_dep')
    a.emit('s_waitcnt vmcnt(0)')
    a.emit('v_cmp_ne_u32 vcc, 1, v3')
    a.emit(f's_cbranch_vccnz L_{kind}_poll')
    a.label(f'L_{kind}_dep')
    lstamp(a, 1, True); lstamp(a, 2, True)
    if TS and ENV('LST') != 'x': a.emit(f's_mov_b32 s58, s{S_CNT}')

LGO = 163840 - 64
def dep_early(a):
    srd(a, SO, 'ws0', WS_FL, FLS)
    a.emit(f's_lshl_b32 s86, s{S_TSI}, 12')
    a.emit(f's_lshl_b32 s4, s{S_MT}, 8')
    a.emit('s_add_u32 s86, s86, s4')
    a.emit('s_sub_u32 s86, s86, 4096')
    a.emit('v_and_b32 v12, 15, v1')
    a.emit('v_lshlrev_b32 v12, 2, v12')
    a.emit('v_mov_b32 v3, 0')
    a.emit(f'v_mov_b32 v2, {LGO}')
    a.emit('ds_write_b32 v2, v3')
    a.emit('v_mov_b32 v13, 1')
    a.emit(f's_mov_b32 s{S_CNT}, 0x100000')
    a.emit(f's_cmp_lg_u32 s{S_WV}, 4')
    a.emit('s_waitcnt lgkmcnt(0)')
    a.emit('s_barrier')
    a.emit('s_cbranch_scc1 L_w2_go')
    lstamp(a, 0)
    a.emit('s_mov_b64 exec, 1')
    a.emit(f'buffer_store_dword v13, off, s[{SO}:{SO+3}], s{S_FL} sc1')
    a.emit('s_mov_b64 exec, -1')
    a.label('L_w2_poll')
    a.emit(f'buffer_load_dword v3, v12, s[{SO}:{SO+3}], s86 offen sc1')
    a.emit(f's_sub_u32 s{S_CNT}, s{S_CNT}, 1')
    a.emit('s_cbranch_scc1 L_w2_rel')
    a.emit('s_waitcnt vmcnt(0)')
    a.emit('v_cmp_eq_u32 vcc, 0, v3')
    a.emit('s_cbranch_vccnz L_w2_poll')
    a.label('L_w2_rel')
    a.emit('ds_write_b32 v2, v13')
    lstamp(a, 1)
    a.emit('s_branch L_w2_dep')
    a.label('L_w2_go')
    a.emit(f's_mov_b32 s{S_CNT}, 0x2000000')
    a.label('L_w2_gol')
    a.emit('ds_read_b32 v3, v2')
    a.emit(f's_sub_u32 s{S_CNT}, s{S_CNT}, 1')
    a.emit('s_cbranch_scc1 L_w2_dep')
    a.emit('s_waitcnt lgkmcnt(0)')
    a.emit('v_cmp_eq_u32 vcc, 0, v3')
    a.emit('s_cbranch_vccnz L_w2_gol')
    a.label('L_w2_dep')

def late_flag(a):
    a.emit(f's_cmp_lg_u32 s{S_WV}, 4')
    a.emit('s_cbranch_scc1 L_w2_nolate')
    a.emit('v_mov_b32 v3, 2')
    a.emit('s_mov_b64 exec, 1')
    a.emit(f'buffer_store_dword v3, off, s[{SO}:{SO+3}], s{S_FL} sc1')
    a.emit('s_mov_b64 exec, -1')
    a.label('L_w2_nolate')

def late_check(a):
    a.emit(f's_mov_b32 s{S_CNT}, 0x100000')
    a.label('L_w2_lchk')
    a.emit('v_cmp_ne_u32 vcc, 2, v13')
    a.emit('s_cbranch_vccz L_w2_lok')
    a.emit(f'buffer_load_dword v13, v12, s[{SO}:{SO+3}], s86 offen sc1')
    a.emit(f's_sub_u32 s{S_CNT}, s{S_CNT}, 1')
    a.emit('s_waitcnt vmcnt(0)')
    a.emit('s_cbranch_scc0 L_w2_lchk')
    a.label('L_w2_lok')
    if TS: a.emit(f's_mov_b32 s58, s{S_CNT}')
    lstamps_out(a, 'w2')

def gbar(a, kind):
    if not MEGA or (EARLY and kind == 'w2'): return
    if kind == 'attn':
        a.emit(f's_cmp_eq_u32 s{S_LAYER}, 0')
        a.emit('s_cbranch_scc1 L_attn_nog')
    a.emit('s_barrier')
    if kind == 'attn': a.label('L_attn_nog')

def next_phase(a, kind, comp=False):
    nxt = {'attn': 'wo', 'wo': 'w1', 'w1': 'w2', 'w2': 'attn'}[kind]
    if kind == 'w2':
        a.emit(f's_mov_b32 s{S_LAYER}, 1')
        a.emit(f's_add_u32 s12, s22, {WS_X2}')
        a.emit('s_addc_u32 s13, s23, 0')
        a.emit(f's_add_u32 s34, s22, {LSTR}')
        a.emit('s_addc_u32 s35, s23, 0')
    a.emit(f's_add_u32 s{S_TSI}, s{S_TSI}, 1')
    a.emit(f's_branch L_{nxt}_' + ('compute' if comp and NV and nxt == 'w2' else 'body'))

def last_check(a, kind):
    if kind == 'w2' or (kind == 'attn' and not ONE):
        a.emit(f's_cmp_eq_u32 s{S_LAYER}, {0 if kind == "attn" else 1}')
        a.emit(f's_cbranch_scc1 L_{kind}_end')

def compute_end(a, kind):
    if not MEGA:
        stamps_out(a, kind)
        a.emit('s_endpgm')
        return
    if not TS: last_check(a, kind)
    if kind in EBAR: a.emit('s_barrier')
    if not ((EARLY or NV) and kind == 'w1'):
        a.emit('s_waitcnt vmcnt(0) lgkmcnt(0)')
        a.emit('s_barrier')
    if TS:
        stamps_out(a, kind)
        last_check(a, kind)
    stamp(a, 0, nowait=True)
    next_phase(a, kind, True)

def loader_end(a, kind, check=True):
    if MEGA:
        if kind == LSTK and not EARLY: lstamps_out(a, kind)
        if check: last_check(a, kind)
        a.emit(f's_lshl_b32 s{S_FL}, s{S_TSI}, 15')
        a.emit(f's_lshl_b32 s4, s{S_MT}, 11')
        a.emit(f's_add_u32 s{S_FL}, s{S_FL}, s4')
        a.emit(f's_lshl_b32 s4, s{S_NT}, 2')
        a.emit(f's_add_u32 s{S_FL}, s{S_FL}, s4')
        next_phase(a, kind)

def pf_weights(a, sd, which, size, ldw2, R, sh, L, LMn, tilebytes, NI, vd, row0=0, qkv=False, pair=False):
    if 'nopf' in DBG: return 0
    srd(a, sd, which, 0, size)
    a.emit(f's_and_b32 s3, s{S_WV}, 3')
    a.emit(f's_mul_i32 s3, s3, {NI * (64 >> sh)}')
    a.emit(f's_mul_i32 s4, s{S_CU}, {R}')
    a.emit('s_add_u32 s3, s3, s4')
    if row0: a.emit(f's_add_u32 s3, s3, {row0}')
    a.emit(f'v_lshrrev_b32 v2, {sh}, v1')
    a.emit('v_add_u32 v2, s3, v2')
    a.emit(f'v_mul_u32_u24 v2, {ldw2}, v2')
    a.emit(f'v_and_b32 v3, {(1 << sh) - 1}, v1')
    if L < (1 << sh): a.emit(f'v_min_u32 v3, {L-1}, v3')
    if qkv:
        a.emit('v_lshrrev_b32 v12, 2, v3')
        a.emit('v_lshl_add_u32 v2, v12, 11, v2')
        a.emit('v_and_b32 v3, 3, v3')
    a.emit(f'v_lshl_add_u32 v2, v3, {8 if pair else 7}, v2')
    a.emit('s_and_b32 s3, s2, 7')
    a.emit(f's_lshr_b32 s3, s3, {4 - LMn}')
    a.emit(f's_mul_i32 s3, s3, {tilebytes if pair else (1 << (5 - LMn)) * tilebytes}')
    for i in range(NI):
        a.emit(f'buffer_load_dword v{vd+i}, v2, s[{sd}:{sd+3}], s3 offen')
        if i + 1 < NI: a.emit(f's_add_u32 s3, s3, {(64 >> sh) * ldw2}')
    return NI

_pfc = [0]
def pf_code(a, start, end, vd, forward=True):
    if 'nopfc' in DBG: return 0
    _pfc[0] += 1
    lab = f'L_pfc{_pfc[0]}'
    a.emit('s_getpc_b64 s[4:5]')
    a.label(lab)
    if forward:
        a.emit(f's_add_u32 s4, s4, {start}-{lab}')
        a.emit('s_addc_u32 s5, s5, 0')
    else:
        a.emit(f's_sub_u32 s4, s4, {lab}-{start}')
        a.emit('s_subb_u32 s5, s5, 0')
    a.emit(f's_and_b32 s3, s{S_WV}, 3')
    a.emit('s_lshl_b32 s3, s3, 13')
    a.emit('v_lshl_add_u32 v2, v1, 7, s3')
    a.emit(f'v_min_u32 v2, {end}-{start}-4, v2')
    a.emit(f'global_load_dword v{vd}, v2, s[4:5]')
    return 1

def wbase(a, vd, vt, g='v2'):
    a.emit(f'v_bfe_u32 v{vd}, v1, 2, 2')
    a.emit(f'v_lshl_add_u32 v{vd}, {g}, 3, v{vd}')
    a.emit(f'v_lshlrev_b32 v{vd}, 7, v{vd}')
    a.emit(f'v_and_b32 v{vt}, 3, v1')
    a.emit(f'v_lshl_add_u32 v{vd}, v{vt}, 3, v{vd}')
    a.emit(f'v_bfe_u32 v{vt}, v1, 3, 2')
    a.emit(f'v_lshl_add_u32 v{vd}, v{vt}, 5, v{vd}')


def code_touch(a, start, end, nb, sd=SX):
    if ENV('CT', '1') == '0': return
    _pfc[0] += 1
    lab = f'L_pfc{_pfc[0]}'
    a.emit(f's_cmp_lg_u32 s{S_LAYER}, 0')
    a.emit(f's_cbranch_scc1 {lab}_skip')
    a.emit('s_getpc_b64 s[4:5]')
    a.label(lab)
    a.emit(f's_lshl_b32 s3, s{S_CU}, 2')
    a.emit(f's_add_u32 s3, s3, s{S_WV}')
    a.emit(f's_mul_i32 s3, s3, {nb}')
    a.emit(f's_min_u32 s3, s3, {end}-{start}-{nb}')
    a.emit(f's_add_i32 s3, s3, {start}-{lab}')
    a.emit('s_ashr_i32 s6, s3, 31')
    a.emit('s_add_u32 s4, s4, s3')
    a.emit('s_addc_u32 s5, s5, s6')
    for i in range(nb // 64):
        a.emit(f's_load_dword s{sd+i}, s[4:5], {64*i}')
    a.label(f'{lab}_skip')

def loader_first(a, kind):
    if ENV('LF', '1') == '0': return
    L = a.lines
    ib = max(i for i, l in enumerate(L) if l.strip() == f's_cbranch_scc1 L_{kind}_loader')
    il = L.index(f'L_{kind}_loader:')
    ie = L.index(f'L_{kind}_end:') + 2
    assert L[ie - 1].strip() == 's_endpgm' and L[ib - 1].strip().startswith('s_cmp_ge_u32')
    L[ib - 1] = L[ib - 1].replace('s_cmp_ge_u32', 's_cmp_lt_u32')
    L[ib] = f'  s_cbranch_scc1 L_{kind}_compute'
    a.lines = L[:ib + 1] + L[il:ie] + [f'L_{kind}_compute:'] + L[ib + 1:il] + L[ie:]

def clear_flags(a, part, n=0):
    if not ONE: return
    if part == 0: a.emit(f's_load_dwordx2 s[{SC}:{SC+1}], s[0:1], 72')
    a.emit(f's_or_b32 s3, s{S_LAYER}, s{S_WV}')
    a.emit(f's_cbranch_scc1 L_clr_skip{part}')
    if part == 0:
        srd(a, SP, 'ws0', WS_FL, FLS)
        a.emit('s_lshl_b32 s3, s2, 11')
        a.emit('v_lshlrev_b32 v2, 4, v1')
        a.emit(f'buffer_store_dwordx4 v[128:131], v2, s[{SP}:{SP+3}], s3 offen sc1')
        a.emit(f'buffer_store_dwordx4 v[128:131], v2, s[{SP}:{SP+3}], s3 offen offset:1024 sc1')
    else:
        a.emit('v_mov_b32 v3, 1')
        a.emit(f's_and_b32 s{SC+1}, s{SC+1}, 0xffff')
        a.emit(f's_mov_b32 s{SC+2}, 256')
        a.emit(f's_mov_b32 s{SC+3}, 0x00020000')
        a.emit('s_mov_b64 exec, 1')
        a.emit(f's_waitcnt vmcnt({n})')
        a.emit(f'buffer_store_byte v3, off, s[{SC}:{SC+3}], s2 sc1')
        a.emit('s_mov_b64 exec, -1')
    a.label(f'L_clr_skip{part}')

def mf_order(nn, nm, skip=lambda jn, jm: False):
    m = ENV('MFO', 's')
    if m == 'n': o = [(jn, jm) for jn in range(nn) for jm in range(nm)]
    elif m == 's': o = [(jn, jm if not jn & 1 else nm - 1 - jm) for jn in range(nn) for jm in range(nm)]
    elif m == 'm': o = [(jn, jm) for jm in range(nm) for jn in range(nn)]
    elif m == 'z': o = [(jn if not jm & 1 else nn - 1 - jn, jm) for jm in range(nm) for jn in range(nn)]
    elif m == 'd': o = [(i % nn, (i // nn + i % nn) % nm) for i in range(nn * nm)]
    return [x for x in o if not skip(*x)]
```

```python
from common import *

def ktab(a, vt, sh, P1, P2, tb):
    a.emit('v_and_b32 v2, 3, v1')
    a.emit('v_lshlrev_b32 v2, 3, v2')
    a.emit(f'v_bfe_i32 v{vt}, s{tb}, v2, 8')
    a.emit(f's_and_b32 s3, s{S_MT}, 3')
    a.emit(f's_mul_i32 s4, s3, {P2 // 4}')
    a.emit(f'v_add3_u32 v3, v{vt}, v1, s4')
    if P1 & (P2 - 1): a.emit(f'v_subrev_u32 v3, {P1}, v3')
    a.emit(f'v_and_b32 v3, {P2 - 1}, v3')
    if P1:
        MR = int(ENV('MR', '4'))
        if NV: a.emit(f'v_cmp_gt_u32 vcc, {NV}, v1')
        a.emit(f's_mul_i32 s3, s3, {MR // 4}')
        if NV:
            a.emit(f's_and_b32 s4, s{S_NT}, 1')
            a.emit(f'v_cndmask_b32_e64 v{vt+1}, {P1 - NV}, {NV}, vcc')
            a.emit(f'v_cndmask_b32_e64 v2, {P1 - 2 * NV}, {NV}, vcc')
            a.emit(f'v_add3_u32 v{vt}, v{vt}, v1, v2')
            for _ in range(2):
                a.emit(f'v_sub_u32 v2, v{vt}, v{vt+1}')
                a.emit(f'v_min_u32 v{vt}, v{vt}, v2')
            a.emit(f'v_cndmask_b32_e64 v2, {NV}, 0, vcc')
            a.emit(f'v_add_u32 v{vt}, v{vt}, v2')
        else:
            a.emit(f'v_add3_u32 v{vt}, v{vt}, v1, {P1}')
            a.emit(f's_bitcmp1_b32 s{S_NT}, 0')
            a.emit(f's_cselect_b32 s4, {P1}, 0')
            for _ in range(2):
                a.emit(f'v_subrev_u32 v2, {P1}, v{vt}')
                a.emit(f'v_min_u32 v{vt}, v{vt}, v2')
        if MR:
            a.emit(f'v_cmp_gt_u32 vcc, {MR}, v{vt}')
            a.emit(f'v_add_u32 v2, s3, v{vt}')
            a.emit(f'v_subrev_u32 v{vt+1}, {MR}, v2')
            a.emit(f'v_min_u32 v2, v{vt+1}, v2')
            a.emit(f'v_cndmask_b32 v{vt}, v{vt}, v2, vcc')
        a.emit(f'v_cmp_gt_u32 vcc, {P1}, v1')
        a.emit(f'v_lshl_add_u32 v{vt}, v{vt}, 1, s4' if NV else f'v_add_u32 v{vt}, s4, v{vt}')
        a.emit(f'v_add_u32 v3, {2 * P1}, v3')
        a.emit(f'v_cndmask_b32 v3, v3, v{vt}, vcc')
    a.emit(f'v_lshlrev_b32 v{vt}, {sh}, v3')

EVX, EVT, EVB = 24, 30, 27; EBIA = [4, 10, 124, 126]; ERING = [128, 144, 224, 64, 80, 240]
def w2_pre(a):
    P1 = int(ENV('P1', '20'))
    tile_map(a, 2, None, pair=True)
    rot_table(a, S_TB, S_MT, S_HD, 'w2')
    ktab(a, EVT, 11, P1, 56 - 2 * P1, S_TB)
    a.emit(f's_lshl_b32 s8, s{S_MT}, 7')
    a.emit(f's_lshl_b32 s9, s{S_WV}, 5')
    a.emit('s_add_u32 s8, s8, s9')
    a.emit('s_mul_i32 s9, s8, 7168')
    a.emit(f'v_lshl_add_u32 v{EVX}, v1, 4, s9')
    a.emit(f'v_add_u32 v{EVX+1}, {16*7168}, v{EVX}')
    a.emit('v_lshrrev_b32 v2, 4, v1')
    a.emit(f's_lshl_b32 s10, s{S_NT}, 7')
    a.emit(f'v_lshl_add_u32 v{EVB}, v2, 3, s10')

def w2_early(a):
    NG = int(ENV('NG2', '3'))
    for x in range(NG): a.emit(f'v_readlane_b32 s{SR+x}, v{EVT}, {x}')
    srd(a, SB, 'b2', 0, 2048)
    srd(a, SX, 'ws', WS_H, 2048 * 7168)
    for jn in range(4):
        a.emit(f'buffer_load_dwordx2 v[{EBIA[jn]}:{EBIA[jn]+1}], v{EVB}, s[{SB}:{SB+3}], 0 offen offset:{jn*32}')
    for x in range(NG):
        for ks in range(2):
            for jm in range(2):
                r = ERING[x] + (ks * 2 + jm) * 4
                a.emit(f'buffer_load_dwordx4 v[{r}:{r+3}], v{EVX+jm}, s[{SX}:{SX+3}], s{SR+x} offen offset:{ks*1024}')

def gen_gemm64y(a, kind, tsidx, side):
    K = 1024 if kind == 'wo' else 3584
    lda2 = K * 2; ldw2 = 2048
    N = K // 64
    P1 = int(ENV('P1', '20')) if kind == 'w2' else 0
    P2 = N - 2 * P1
    B16 = ENV('XB16', '1') == '1'
    NXC = 4 if B16 else 8; CH = NXC * 1024
    G0, GW = (131072, 28672) if kind == 'wo' else (0, 0)
    def slot(t):
        g = G0 + (t >> 2) * 32768
        if g >= 163840: g = GW + (g - 163840) % (163840 - GW)
        return g + (t & 3) * 8192
    XB = 131072; assert P1 in (0, 20, 24)
    NPRE = int(ENV('NPREO', '16')) if kind == 'wo' else int(ENV('NPRE', '20'))
    PSTEP = 64 if kind == 'w2' else 1024
    body = f'L_{kind}_body'; end = f'L_{kind}_end'
    VXO, VWB, VWA, VO, VT, VE = 4, 6, 26, 12, 15, 19
    XR = 32; FW = [160, 192]; ACC = [128, 96]; D = 240; BIA = 192
    SPC = NV if P1 else 0
    BIA = [BIA + 2 * jn for jn in range(4)]
    if SPC: VXO, VT, ACC, BIA = EVX, EVT, [32, 96], EBIA
    acc = lambda jn, jm, u=1: ACC[u] + (jn * 2 + jm) * 4
    fx = lambda r, ks, jm: XR + 16 * r + (ks * 2 + jm) * 4
    fw = lambda s, ks, jn: FW[s] + (ks * 4 + jn) * 4
    a.label(f'L_{kind}_c0')
    a.label(body)
    tile_map(a, 2, end, pair=True)
    rot_table(a, S_TB, S_MT, S_HD, kind)
    a.emit(f's_cmp_ge_u32 s{S_WV}, 4')
    a.emit(f's_cbranch_scc1 L_{kind}_loader')
    if SPC: tile_map(a, 2, None, pair=True)
    else: ktab(a, VT, 11, P1, P2, S_TB)
    a.emit('v_and_b32 v3, 15, v1')
    a.emit('v_lshrrev_b32 v2, 4, v1')
    a.emit(f's_lshl_b32 s8, s{S_MT}, 7')
    a.emit(f's_lshl_b32 s9, s{S_WV}, 5')
    a.emit('s_add_u32 s8, s8, s9')
    a.emit(f's_mul_i32 s9, s8, {lda2}')
    if 'xsm' in DBG:
        a.emit('s_and_b32 s9, s8, 0x67f')
        a.emit(f's_mul_i32 s9, s9, {lda2}')
    if not SPC:
        a.emit(f'v_lshl_add_u32 v{VXO}, v1, 4, s9')
        a.emit(f'v_add_u32 v{VXO+1}, {16*lda2}, v{VXO}')
    a.emit('v_add_u32 v13, s8, v3')
    a.emit(f's_lshl_b32 s10, s{S_NT}, 7')
    a.emit('v_lshl_add_u32 v14, v2, 3, s10')
    a.emit('v_and_b32 v16, 1, v2')
    a.emit('v_lshrrev_b32 v17, 1, v2')
    if kind == 'w2':
        a.emit('v_lshlrev_b32 v16, 5, v16')
        a.emit('v_lshl_add_u32 v16, v17, 4, v16')
        a.emit('v_add_u32 v16, s10, v16')
        xpitch(a, 7, True)
        a.emit(f'v_mad_u32_u24 v{VO}, v13, s7, v16')
    else:
        a.emit('v_lshl_add_u32 v16, v16, 1, v17')
        a.emit('v_lshlrev_b32 v16, 8, v16')
        a.emit('v_lshl_add_u32 v16, v3, 4, v16')
        a.emit(f's_add_u32 s9, s8, s{S_NT}')
        a.emit('s_lshl_b32 s9, s9, 11')
        a.emit(f'v_add_u32 v{VO}, s9, v16')
    a.emit('v_lshl_add_u32 v18, v17, 4, v13')
    a.emit('v_lshlrev_b32 v18, 3, v18')
    a.emit('v_and_b32 v16, 1, v2')
    a.emit('v_lshl_add_u32 v18, v16, 2, v18')
    a.emit(f's_lshl_b32 s10, s{S_NT}, 14')
    a.emit('v_add_u32 v18, s10, v18')
    wbase(a, VWB, 17)
    for i in range(1, 4): a.emit(f'v_xor_b32 v{VWB+i}, {32*i}, v{VWB}')
    a.emit('s_mov_b32 s11, 0xffff0000')
    if kind == 'wo':
        srd(a, SX, 'ws', WS_O, 4 * MB)
        srd(a, SO, 'ws', WS_X1, 4 * MB)
    else:
        if not SPC:
            srd(a, SB, 'b2', 0, 2048)
            for jn in range(4):
                a.emit(f'buffer_load_dwordx2 v[{BIA[jn]}:{BIA[jn]+1}], v14, s[{SB}:{SB+3}], 0 offen offset:{jn*32}')
            srd(a, SX, 'ws', WS_H, 2048 * 7168)
        srd(a, SO, 'out', 0, 4 * MB)
        srd(a, SR, 'ws0', WS_X2, 4 * MB)
        a.emit(f's_cmp_eq_u32 s{S_LAYER}, 0')
        a.emit(f's_cselect_b64 s[{SO}:{SO+1}], s[{SR}:{SR+1}], s[{SO}:{SO+1}]')
        a.emit(f's_lshl_b32 s{SO+2}, s7, 11')
    srd(a, ST, 'ws', WS_ST if kind == 'wo' else WS_ST2, 16 * 16384)
    TID = ENV('TID', '1') == '1'
    if TID:
        a.emit(f's_mul_i32 s9, s8, {lda2}')
        a.emit(f's_add_u32 s{SX}, s{SX}, s9')
        a.emit(f's_addc_u32 s{SX+1}, s{SX+1}, 0x100000')
        a.emit(f's_add_u32 s{SC}, s{SX}, {16 * lda2}')
        a.emit(f's_addc_u32 s{SC+1}, s{SX+1}, 0')
        for r in (SX, SC):
            a.emit(f's_mov_b32 s{r+2}, {16 * lda2}')
            a.emit(f's_mov_b32 s{r+3}, 0x00800000')
    if kind == 'wo': code_touch(a, 'L_w1_c0', 'L_w1_c1', 128, SW)
    DX = int(ENV('DX', '2'))
    CLW = DX == 1 and not P1 and ENV('CLP', 'e') == 'w'
    if CLW:
        for i in range(4): a.emit(f'v_mov_b32 v{128+i}, -1')
    if (P1 and DX) or CLW:
        srd(a, SP, 'ws', WS_XP, 4 * MB)
        a.emit(f's_or_b32 s{SP+1}, s{SP+1}, 0x100000')
        a.emit(f's_mov_b32 s{SP+3}, 0x00800000')
        a.emit(f's_lshl4_add_u32 s4, s{S_MT}, s{S_NT}')
        a.emit(f's_lshl2_add_u32 s4, s4, s{S_WV}')
        if DX == 2:
            srd(a, SB, 'ws0', WS_FL, FLS)
            a.emit(f's_add_u32 s6, s{S_LAYER}, 4')
            a.emit('s_lshl_b32 s6, s6, 10')
            a.emit('s_add_u32 s6, s6, s4')
            a.emit('s_lshl_b32 s6, s6, 6')
            a.emit(f'v_mov_b32 v{VE}, 1')
        a.emit('s_lshl_b32 s4, s4, 12')
        a.emit('s_xor_b32 s5, s4, 16384')
    elif P1:
        a.emit(f's_mul_i32 s3, s{S_WV}, {CH}')
        a.emit(f's_add_u32 s3, s3, {XB}')
        a.emit(f'v_lshl_add_u32 v{VE}, v1, 4, s3')
    if P1:
        for i in range(32): a.emit(f'v_mov_b32 v{ACC[0]+i}, 0')
    bases = []
    for t in sorted(range(min(N, 20)), key=slot):
        if not bases or slot(t) + 8191 - bases[-1] > 65535: bases.append(slot(t))
    VSET = [VWB, 20, 26]
    for k in (2, 1, 0):
        for i in range(4):
            if bases[k] or k: a.emit(f'v_add_u32 v{VSET[k]+i}, {bases[k]}, v{VWB+i}')
    xof = lambda t: t >> 1 if t < 2 * P1 else t - P1
    NX = P1 + P2
    last = lambda x: 2 * x + 1 if x < P1 else x + P1
    def xl(x, reg):
        if TID: return [(f'buffer_load_dwordx4 v[{reg+(ks*2+jm)*4}:{reg+(ks*2+jm)*4+3}], off, s[{(SX, SC)[jm]}:{(SX, SC)[jm]+3}], s{SR+(x&3)} offset:{ks*1024}', 'V', ('x', x, ks))
                for ks in range(2) for jm in range(2)]
        return [(f'buffer_load_dwordx4 v[{reg+(ks*2+jm)*4}:{reg+(ks*2+jm)*4+3}], v{VXO+jm}, s[{SX}:{SX+3}], s{SR+(x&3)} offen offset:{ks*1024}', 'V', ('x', x, ks))
                for ks in range(2) for jm in range(2)]
    def reads(t):
        o = []
        k = max(i for i, b in enumerate(bases) if b <= slot(t))
        for ks in range(2):
            for jn in range(4):
                for h in range(2):
                    d = fw(t & 1, ks, jn) + 2 * h
                    o.append((f'ds_read_b64_tr_b16 v[{d}:{d+1}], v{VSET[k]+jn} offset:{slot(t)-bases[k]+ks*4096+h*512}', 'L', ('w', t, ks)))
        return o
    xreg = {}
    def mf(t):
        o = []
        for ks in range(2):
            for jn, jm in mf_order(4, 2):
                if True:
                    c = acc(jn, jm, t & 1 if t < 2 * P1 else 1); x = xreg[xof(t)] + (ks * 2 + jm) * 4
                    o.append(f'v_mfma_f32_16x16x32_bf16 v[{c}:{c+3}], v[{fw(t&1,ks,jn)}:{fw(t&1,ks,jn)+3}], v[{x}:{x+3}], v[{c}:{c+3}]')
        return o
    U = kind[1].upper()
    NG = int(ENV('NG' + U, '3'))
    ring = [32, 48, 64, 80, 224, 240][:int(ENV('RING' + U, '6' if P1 else '4'))]
    if SPC: ring = ERING
    else:
        for x in range(NG): a.emit(f'v_readlane_b32 s{SR+x}, v{VT}, {x}')
    for i in range(4):
        for h in range(2): a.emit(f'v_permlane16_swap_b32 v{D+4*i+h}, v{D+4*i+2+h}')
    TF = int(ENV('TF', '-1')); TG = int(ENV('TG', '15'))
    a.emit('s_waitcnt lgkmcnt(0)' + (f' vmcnt({4 * NG + 4 if EX == 14 else 0})' if SPC and TF < 0 else ''))
    a.emit('s_barrier')
    pre = []
    for x in range(NG):
        xreg[x] = ring[x]; pre += xl(x, ring[x])
    if SPC: pre = [('', k, tg) for _, k, tg in pre] + [('', 'V', 'st')] * (14 - EX)
    pre += reads(0)
    P = lambda x: (x, '', None)
    if kind == 'w2': pre.append(P(f's_waitcnt vmcnt({len(pre) - 16})'))
    for jn in range(4):
        if kind == 'w2':
            for h in range(2):
                pre.append(P(f'v_lshlrev_b32 v{216+2*h}, 16, v{BIA[jn]+h}'))
                pre.append(P(f'v_and_b32 v{217+2*h}, s11, v{BIA[jn]+h}'))
        for jm in range(2):
            c = acc(jn, jm); r = D + (jm * 4 + jn) * 2
            for h in range(2):
                pre.append(P(f'v_lshlrev_b32 v{c+2*h}, 16, v{r+h}'))
                pre.append(P(f'v_and_b32 v{c+2*h+1}, s11, v{r+h}'))
                if kind == 'w2': pre.append(P(f'v_pk_add_f32 v[{c+2*h}:{c+2*h+1}], v[{c+2*h}:{c+2*h+1}], v[{216+2*h}:{217+2*h}]'))
    pre.append(('', 'W', [('w', 0, 0), ('x', 0, 0)]))
    if TS:
        b = Asm(); stamp(b, 1); pre += [P(l.strip()) for l in b.lines]
    gp = [[] for _ in range(16 * N + 1)]
    waits = {}
    for t in range(N):
        if t + 1 < N:
            for i, x in enumerate(reads(t + 1)): gp[16 * t + i].append(x)
        for g, tt, ks in ((16 * t + 7, t, 1), (16 * t + 15, t + 1, 0)):
            if tt < N:
                waits[g] = [('w', tt, ks), ('x', xof(tt), ks)]
                gp[g].append(('', 'W', waits[g]))
    def put(g, x, cap=2):
        while len(gp[g]) >= cap and g < 16 * N: g += 1
        gp[g].append(x); return g
    BP = int(ENV('BP', '4'))
    ZS = int(ENV('ZS', '50' if DX else '54')) if P1 else N - 1
    XS = int(ENV('XS', '45' if DX else '41'))
    PS = int(ENV('PS', '0'))
    bars = list(range(BP - 1, 2 * P1, BP)) + [XS] + ([PS] if PS else []) + ([] if DX == 1 else [ZS]) if P1 else [int(x) for x in ENV('BWO', '3,7,12').split(',')]
    if SPC:
        bars = [TF] + [t for t in bars if t > TF + 1]
        assert TG in bars
        if EX < 14 and TF >= 0: waits[16 * TF + 7].append('st')
    for t in bars:
        if t >= 0: gp[16 * t + 7].append(P('s_barrier'))
    G = ACC[0]; GI = G + 16 if B16 else G
    pool = [[r, -1 if i >= NG else 16 * last(i) + 15, N] for i, r in enumerate(ring)]
    if P1:
        for i in range(int(ENV('RINGX', '0'))): pool.append([G + 16 * i, 16 * XS + 7, ZS])
    SP1 = int(ENV('SP1', '7')); SP2 = int(ENV('SP2', '3'))
    g = 0
    for x in range(NG, NX):
        sl = min((p for p in pool if last(x) < p[2]), key=lambda p: p[1])
        xreg[x] = sl[0]
        if SPC and x == SPC: g = max(g, 16 * TG + 7)
        g = put(max(g - 2, sl[1] - 2, 0), P(f'v_readlane_b32 s{SR+(x&3)}, v{VT}, {x}')) + 3
        sp = SP1 if len(ring) <= x and g < 16 * int(ENV('SPE', str(2 * P1))) else SP2
        sps = [int(c) for c in ENV('SP3', '4')] if P1 and len(ring) <= x and sp == SP2 else [sp]
        for i, y in enumerate(xl(x, sl[0])): g = put(max(g, sl[1] + 1), y) + sps[i % len(sps)]
        sl[1] = 16 * last(x) + 15
    for i in range(4): put(16 * (N - 1), P(f'v_mov_b32 v{20+i}, 0'))
    if CLW:
        g = max(g, int(16 * float(ENV('CLG', '0'))))
        for i in range(4): g = put(g, (f'buffer_store_dwordx4 v[128:131], off, s[{SP}:{SP+3}], s4 offset:{1024*i} sc1', 'V', 'cl')) + int(ENV('CLD', '2'))
    def xld(i): return f'buffer_load_dwordx4 v[{GI+4*i}:{GI+4*i+3}], off, s[{SP}:{SP+3}], s5 offset:{1024*i} sc1'
    def vmax(d, r):
        return [f'v_max3_u32 v{d}, v{r}, v{r+1}, v{r+2}'] + [f'v_max3_u32 v{d}, v{d}, v{r+j}, v{r+j+1}' for j in range(3, 15, 2)] + [f'v_max_u32 v{d}, v{d}, v{r+15}', f'v_cmp_eq_u32 vcc, -1, v{d}']
    if P1 and DX:
        g = 16 * (2 * P1 - 1) + 2
        for i in range(4):
            for j in range(4 * i, 4 * i + 4): g = put(g, P(f'v_cvt_pk_bf16_f32 v{G+j}, v{G+2*j}, v{G+2*j+1}'))
            put(max(g + 1, 16 * (2 * P1 - 1) + 6 + i * int(ENV('XWS', '0'))), (f'buffer_store_dwordx4 v[{G+4*i}:{G+4*i+3}], off, s[{SP}:{SP+3}], s4 offset:{1024*i} sc1', 'V', 'xw'))
        g = int(16 * float(ENV('RS', '50')))
        if DX == 2:
            g = put(int(16 * float(ENV('FS', '43'))), ('', 'W', ['xw']))
            put(g, (f'buffer_store_dword v{VE}, off, s[{SB}:{SB+3}], s6 sc1', 'V', 'xf'))
            g = 16 * ZS + 8
        for i in range(4): g = put(g, (xld(i), 'V', 'xr')) + int(ENV('RSP', '2'))
        g = put(int(16 * float(ENV('VS', '53.5' if DX == 1 else '54'))), ('', 'W', ['xr']))
        if DX == 1:
            for y in vmax(VE, GI): g = put(g, P(y))
            g = put(g + 1, P(f's_cbranch_vccnz L_{kind}_xrt\nL_{kind}_xok:'))
        for i in range(16):
            g = put(g, P(f'v_lshlrev_b32 v{G+2*i}, 16, v{GI+i}'), 2 if g < 16 * (N - 1) else 3)
            g = put(g, P(f'v_and_b32 v{G+2*i+1}, s11, v{GI+i}'), 2 if g < 16 * (N - 1) else 3)
    elif P1:
        g = 16 * (2 * P1 - 1) + 2
        for i in range(NXC):
            if B16:
                for j in range(4 * i, 4 * i + 4): g = put(g, P(f'v_cvt_pk_bf16_f32 v{G+j}, v{G+2*j}, v{G+2*j+1}'))
            gw = put(max(g + 1, 16 * (2 * P1 - 1) + 8 + 2 * i), (f'ds_write_b128 v{VE}, v[{G+4*i}:{G+4*i+3}] offset:{1024*i}', 'L', 'xw'))
        assert gw < 16 * XS + 7
        waits[16 * XS + 7].append('xw')
        g = 16 * ZS + 8
        for i in range(NXC): g = put(g, (f'ds_read_b128 v[{GI+4*i}:{GI+4*i+3}], v{VE} offset:{1024*i}', 'L', 'xr')) + 1
        g = put(max(g + 6, 16 * (N - 1)), ('', 'W', ['xr']))
        if B16:
            for i in range(16):
                g = put(g, P(f'v_lshlrev_b32 v{G+2*i}, 16, v{GI+i}'), 3)
                g = put(g, P(f'v_and_b32 v{G+2*i+1}, s11, v{GI+i}'), 3)
    XG = int(ENV('XG', '1'))
    if XG:
        isr = lambda y: y[1] == 'L' and y[2][0] == 'w'
        for g in range(16 * N - 1):
            if len(gp[g]) == 2 and gp[g][1][1] == 'V' and isr(gp[g][0]):
                for d in ((1, -1) if XG == 1 else (-1, 1)):
                    if len(gp[g + d]) == 1 and isr(gp[g + d][0]) and (d > 0 or g & 15):
                        gp[g + d].insert(0 if d > 0 else 1, gp[g].pop(0)); break
    lin = list(pre)
    for t in range(N):
        for i, m in enumerate(mf(t)):
            lin.append(P(m)); lin += gp[16 * t + i]
        if TS and t == int(ENV('ST2', '99')):
            b = Asm(); stamp(b, 2); lin += [P(l.strip()) for l in b.lines]
    lin += gp[16 * N]
    iss = {'L': [], 'V': []}; done = {'L': -1, 'V': -1}
    for txt, k, tag in lin:
        if k == 'W':
            o = []
            for c, nm, mx in (('V', 'vmcnt', 63), ('L', 'lgkmcnt', 15)):
                idx = [i for i, x in enumerate(iss[c]) if x in tag]
                if idx and max(idx) > done[c]:
                    n = min(mx, len(iss[c]) - 1 - max(idx)); done[c] = len(iss[c]) - 1 - n
                    o.append(f'{nm}({n})')
            assert all(x in iss['L'] or x in iss['V'] for x in tag), tag
            if o: a.emit('s_waitcnt ' + ' '.join(o))
            continue
        if k: iss[k].append(tag)
        if ('nox' in DBG and k == 'V') or ('nomfma' in DBG and 'mfma' in txt) or not txt: continue
        a.emit(txt)
    if int(ENV('ST2', '99')) >= N: stamp(a, 2)
    a.emit(f's_mov_b32 s3, {16*2048}' if kind == 'wo' else 's_lshl_b32 s3, s7, 4')
    a.emit('s_mov_b32 s10, 0x3f803f80')
    a.emit('s_nop 4')
    for jm in range(2):
        for p in range(2):
            d = D + (jm * 2 + p) * 4
            for q in range(2):
                c = acc(2 * p + q, jm); g = acc(2 * p + q, jm, 0)
                if P1:
                    for h in range(2): a.emit(f'v_pk_add_f32 v[{c+2*h}:{c+2*h+1}], v[{c+2*h}:{c+2*h+1}], v[{g+2*h}:{g+2*h+1}]')
                a.emit(f'v_cvt_pk_bf16_f32 v{d+2*q}, v{c}, v{c+1}')
                a.emit(f'v_cvt_pk_bf16_f32 v{d+2*q+1}, v{c+2}, v{c+3}')
            a.emit('s_nop 1')
            a.emit(f'v_permlane16_swap_b32 v{d}, v{d+2}')
            a.emit(f'v_permlane16_swap_b32 v{d+1}, v{d+3}')
            a.emit(f'buffer_store_dwordx4 v[{d}:{d+3}], v{VO}, s[{SO}:{SO+3}], {"s3" if jm else "0"} offen offset:{p*PSTEP}{stf(kind)}')
    for jm in range(2):
        for i in range(8):
            d = D + jm * 8 + i
            a.emit(f'v_dot2_f32_bf16 v{20+jm}, v{d}, s10, v{20+jm}')
            a.emit(f'v_dot2_f32_bf16 v{22+jm}, v{d}, v{d}, v{22+jm}')
    a.emit('s_nop 2')
    a.emit('v_permlane32_swap_b32 v20, v21')
    a.emit('v_permlane32_swap_b32 v22, v23')
    a.emit('v_add_f32 v20, v20, v21')
    a.emit('v_add_f32 v22, v22, v23')
    a.emit('s_nop 1')
    a.emit('v_permlane16_swap_b32 v20, v22')
    a.emit('v_add_f32 v20, v20, v22')
    a.emit(f'buffer_store_dword v20, v18, s[{ST}:{ST+3}], 0 offen{stf(kind)}')
    compute_end(a, kind)
    if P1 and DX == 1:
        a.label(f'L_{kind}_xrt')
        a.emit('s_mov_b32 s6, 0x40000')
        a.label(f'L_{kind}_xrl')
        for i in range(4): a.emit(xld(i))
        a.emit('s_sub_u32 s6, s6, 1')
        a.emit('s_waitcnt vmcnt(0)')
        a.emit(f's_cbranch_scc1 L_{kind}_xok')
        for y in vmax(VE, GI): a.emit(y)
        a.emit(f's_cbranch_vccnz L_{kind}_xrl')
        a.emit(f's_branch L_{kind}_xok')
    a.label(f'L_{kind}_loader')
    VT = 16
    if ENV('LPRIO'): a.emit(f"s_setprio {ENV('LPRIO')}")
    if kind == 'wo':
        if LSTK == 'wo': lstamp(a, 0)
        import sides
        dep_pre(a, kind, 0)
        a.emit(f's_cmp_lg_u32 s{S_LAYER}, 0')
        a.emit(f's_cbranch_scc1 L_{kind}_nofirst')
        sides.qkv(a, 0, 'finish', 1)
        a.label(f'L_{kind}_nofirst')
    L = Loader(a, kind, K, lda2, ldw2, [0], 128, 2, 8192, xblk=True)
    L.panels_of = lambda t: [f's{S_XD}'] if t < 2 * P1 and not t & 1 else [0]
    ktab(a, VT, 17, P1, P2, S_TB)
    a.emit(f's_add_u32 s9, s{S_WV}, s{S_MT}')
    a.emit('s_and_b32 s9, s9, 3')
    a.emit(f's_lshl_b32 s{S_WD}, s9, 11')
    a.emit('v_and_b32 v10, 7, v1')
    if 'wsm' in DBG:
        a.emit(f's_and_b32 s11, s{S_NT}, 1')
        wvoff(a, L.VWD, 9, 11, ldw2)
    elif 'noslow2' in DBG:
        a.emit(f's_bitcmp1_b32 0x0c0c, s{S_NT}')
        a.emit('s_cselect_b32 s11, 2, 0')
        a.emit(f's_add_u32 s11, s11, s{S_NT}')
        wvoff(a, L.VWD, 9, 11, ldw2)
    else: wvoff(a, L.VWD, 9, S_NT, ldw2)
    if kind == 'wo': srd(a, SW, 'wo', 0, 2 * MB)
    else:
        srd(a, SW, 'w2', 0, 3584 * 2048)
        a.emit(f's_bitcmp1_b32 s{S_NT}, 0')
        a.emit(f's_mov_b32 s{S_XD}, 128')
        a.emit(f's_cselect_b32 s{S_XD}, -128, s{S_XD}')
    NPF = int(ENV('NPF' + kind[1].upper(), '10'))
    assert NPRE - NPF <= 18
    seq = []
    def em(o):
        for x in o:
            if ('nodma' in DBG or ('nodma2' in DBG and len(seq) >= 40)) and x.endswith(' lds'): continue
            a.emit(x)
    def after(t): return len(seq) - 1 - max(i for i, x in enumerate(seq) if x == t)
    NPK = int(ENV('NPK', '0')) if P1 else 0
    PK0 = int(ENV('PK0', '20')); PKA = int(ENV('PKA', '0'))
    PKD = int(ENV('PKD', '1'))
    pks = [t for t in range(PK0, N) if ((t - PK0) >> 1) % PKD == 0][:NPK]
    pkr = lambda t: 256 - 8 * NPK + 8 * pks.index(t)
    assert 256 - 8 * NPK >= 48
    if NPK:
        a.emit(f'v_lshl_add_u32 v20, v1, 4, s{S_WD}')
        a.emit('v_add_u32 v21, 0x10000, v20')
        a.emit('v_add_u32 v22, 0x20000, v20')
    lastk = [None]
    def kw(t):
        x = t >> 1 if t < 2 * P1 else t - P1
        if lastk[0] != x: a.emit(f'v_readlane_b32 s{S_KW}, v{VT}, {x}')
        lastk[0] = x
    def pk(t):
        kw(t)
        a.emit(f's_add_u32 s4, s{S_KW}, {L.panels_of(t)[0]}')
        for i in range(2): a.emit(f'buffer_load_dwordx4 v[{pkr(t)+4*i}:{pkr(t)+4*i+3}], v{L.VWD+i}, s[{SW}:{SW+3}], s4 offen')
        seq.extend([('P', t)] * 2)
    vmdone = [-1]
    def iw(t):
        if t in pks:
            i = max(i for i, x in enumerate(seq) if x == ('P', t))
            if i > vmdone[0]:
                a.emit(f's_waitcnt vmcnt({min(63, len(seq) - 1 - i)})'); vmdone[0] = i
            for i in range(0 if 'nopw' in DBG else 2): a.emit(f'ds_write_b128 v{20+(slot(t)>>16)}, v[{pkr(t)+4*i}:{pkr(t)+4*i+3}] offset:{(slot(t)&65535)+1024*i}')
            return
        kw(t)
        em(L.issue_w(t, S_WD, slot(t)))
        seq.extend([t] * 2)
    if kind == LSTK == 'wo': lstamp(a, 1)
    CW = [int(x) for x in ENV('CW', '0').split(',')] if P1 else []
    cwk = list(range(NPRE // 2, P1)) + list(range(2 * P1, N)); cwn = [0]
    if sum(CW):
        srd(a, SR, 'w2', 0, 3584 * 2048)
        a.emit(f's_and_b32 s3, s{S_WV}, 3')
        a.emit(f's_lshl2_add_u32 s3, s{S_CU}, s3')
        a.emit('s_lshl_b32 s4, s3, 6')
        a.emit('s_and_b32 s4, s4, 64')
        a.emit('s_lshr_b32 s3, s3, 1')
        a.emit('s_lshl_b32 s3, s3, 11')
        a.emit('s_add_u32 s3, s3, s4')
        a.emit(f's_sub_u32 s4, 384, s{SW}')
        a.emit('s_and_b32 s4, s4, 0x380')
        a.emit(f's_add_u32 s{S_Q}, s3, s4')
        a.emit(f's_bitcmp1_b32 s{S_NT}, 0')
        a.emit(f's_cselect_b32 s3, {P1 << 17}, 0')
        a.emit(f's_add_u32 s{S_T}, s{S_Q}, s3')
        a.emit('s_lshr_b32 s4, s4, 7')
        a.emit(f's_xor_b32 s4, s4, s{S_NT}')
        a.emit('s_bitcmp1_b32 s4, 0')
        a.emit(f's_cselect_b32 s{SR+2}, 0, s{SR+2}')
    def cw(j):
        for k in cwk[cwn[0]:cwn[0] + (CW[j] if j < len(CW) else 0)]:
            a.emit(f's_add_u32 s3, s{S_T if k < P1 else S_Q}, {k << 17}')
            for i in range(2): a.emit(f's_buffer_load_dword s84, s[{SW if k < P1 else SR}:{(SW if k < P1 else SR)+3}], s3 offset:{1024*i}')
            cwn[0] += 1
    def clr(w):
        if DX != 1 or P1 or w != ENV('CLP', 'e'): return
        srd(a, SP, 'ws', WS_XP, 4 * MB)
        a.emit(f's_and_b32 s5, s{S_WV}, 3')
        a.emit(f's_lshl4_add_u32 s6, s{S_MT}, s{S_NT}')
        a.emit('s_lshl2_add_u32 s6, s6, s5')
        a.emit('s_lshl_b32 s6, s6, 12')
        a.emit('s_setprio 3')
        a.emit('v_lshlrev_b32 v3, 4, v1')
        for i in range(4): a.emit(f'v_mov_b32 v{24+i}, -1')
        for i in range(4): a.emit(f'buffer_store_dwordx4 v[24:27], v3, s[{SP}:{SP+3}], s6 offen offset:{1024*i} sc1')
        a.emit('s_setprio 0')
        seq.extend(['C'] * 4)
    clr('a')
    for t in range(NPRE - NPF): iw(t)
    clr('b')
    PTH = ENV('PTH', '')
    for t in pks[:NPK - PKA]:
        pk(t)
        if PTH: a.emit(f's_waitcnt vmcnt({PTH})')
    cw(0)
    dep_pre(a, kind, 1, len(seq))
    N2 = NPRE - NPF; pref = None
    if SPC:
        N2 = max(N2, int(ENV('N2', '0')), bars[1] + 2); NPRE = int(ENV('N3', '20'))
        assert NPRE <= TF + 21
        def pref():
            a.emit('s_mov_b32 s5, s3')
            if TF >= 0:
                a.emit(f's_waitcnt vmcnt({after(TF + 1)})')
                a.emit('s_barrier')
            for t in range(len(seq) // 2, N2): iw(t)
            a.emit('s_mov_b32 s3, s5')
            a.emit(f's_waitcnt vmcnt({after(bars[1] + 1)})')
    def postf():
        for t in range(N2, NPRE): iw(t)
        for t in pks[NPK - PKA:]: pk(t)
    dep_wait(a, kind, skip_first=kind == 'wo', preg=lambda: a.emit(f's_waitcnt vmcnt({min(after(bars[2 if SPC else 0] + 1), 63)}) lgkmcnt(0)'),
             postf=postf, pref=pref, defer=bool(SPC))
    nxt = NPRE
    reg = bars[:bars.index(XS)] if P1 and not DX else bars
    clr('g')
    for j, t in enumerate(reg):
        if SPC and j < 1: continue
        lim = min(N, (reg[j - 1] if j else -1) + 21)
        PP = int(ENV('PP', '2'))
        pp = min(lim - 1, nxt + PP) if SPC and t == TG else -1
        while nxt < lim:
            if nxt == pp: dep_late(a, kind, 0); seq.append('F')
            iw(nxt); nxt += 1
            if nxt - 1 in pks: a.emit('s_waitcnt lgkmcnt(0)')
            elif nxt < lim: a.emit(f"s_waitcnt vmcnt({ENV('LTHR', '4')})")
        cw(j + 1)
        clr(str(j))
        need = [min(N - 1, bars[j + 1] + 1)] if j + 1 < len(bars) else []
        assert all(t < nxt for t in need)
        need = [max(x for x in range(t + 1) if x not in pks) for t in need]
        if P1 and not DX and j == len(reg) - 1:
            srd(a, SP, 'ws', WS_XP, 8 * MB)
            srd(a, SC, 'ws0', WS_FL, FLS)
            a.emit(f's_and_b32 s5, s{S_WV}, 3')
            a.emit(f's_lshl4_add_u32 s6, s{S_MT}, s{S_NT}')
            a.emit('s_lshl2_add_u32 s6, s6, s5')
            a.emit(f's_mul_i32 s8, s6, {CH}')
            a.emit('s_add_u32 s9, s8, 4096')
            a.emit(f's_add_u32 s7, s{S_LAYER}, 4')
            a.emit('s_lshl_b32 s7, s7, 10')
            a.emit('s_add_u32 s6, s6, s7')
            a.emit('s_lshl_b32 s6, s6, 6')
            a.emit('s_xor_b32 s7, s6, 256')
            a.emit(f's_mul_i32 s5, s5, {CH}')
            a.emit(f's_add_u32 s5, s5, {XB}')
            a.emit('v_lshlrev_b32 v3, 4, v1')
            a.emit('v_add_u32 v2, s5, v3')
            a.emit('v_mov_b32 v4, 1')
            a.emit(f's_mov_b32 s{S_CNT}, 0x100000')
        if pp >= 0: dep_late(a, kind, 1, after('F'))
        if P1 and DX == 2 and t == XS:
            srd(a, SC, 'ws0', WS_FL, FLS)
            a.emit(f's_lshl4_add_u32 s6, s{S_MT}, s{S_NT}')
            a.emit('s_xor_b32 s6, s6, 1')
            a.emit(f's_add_u32 s7, s{S_LAYER}, 4')
            a.emit('s_lshl_b32 s7, s7, 8')
            a.emit('s_add_u32 s6, s6, s7')
            a.emit('s_lshl_b32 s6, s6, 8')
            a.emit('v_and_b32 v2, 3, v1')
            a.emit('v_lshlrev_b32 v2, 6, v2')
            a.emit(f's_mov_b32 s{S_CNT}, 0x100000')
        if P1 and DX == 2 and t == ZS:
            a.emit(f's_cmp_lg_u32 s{S_WV}, 4')
            a.emit(f's_cbranch_scc1 L_{kind}_xgo')
            a.emit('s_setprio 3')
            a.label(f'L_{kind}_xpoll')
            a.emit(f'buffer_load_dword v5, v2, s[{SC}:{SC+3}], s6 offen sc1')
            a.emit(f's_sub_u32 s{S_CNT}, s{S_CNT}, 1')
            a.emit(f's_cbranch_scc1 L_{kind}_xgo')
            a.emit('s_waitcnt vmcnt(0)')
            a.emit('v_cmp_ne_u32 vcc, 1, v5')
            a.emit(f's_cbranch_vccnz L_{kind}_xpoll')
            a.label(f'L_{kind}_xgo')
            a.emit('s_setprio 0')
        a.emit(f's_waitcnt vmcnt({min(63, min(after(t) for t in need)) if need else 0})')
        a.emit('s_barrier')
    assert nxt == N and ENV('LATE_W1', '2') == '2' and ENV('LATE_ATTN', '2') == '2'
    clr('e')
    if not P1: a.emit('s_waitcnt vmcnt(0)')
    if P1 and not DX:
        XL = ENV('LST') == 'x'
        a.emit('s_setprio 3')
        a.emit('s_waitcnt vmcnt(0) lgkmcnt(0)')
        a.emit('s_barrier')
        for i in range(NXC): a.emit(f'ds_read_b128 v[{32+4*i}:{35+4*i}], v2 offset:{1024*i}')
        for i in range(NXC):
            a.emit(f's_waitcnt lgkmcnt({NXC-1-i})')
            if 'noxs' not in DBG: a.emit(f'buffer_store_dwordx4 v[{32+4*i}:{35+4*i}], v3, s[{SP}:{SP+3}], s{8+(i>>2)} offen offset:{1024*(i&3)} sc1')
        if XL: lstamp(a, 0)
        a.emit(f's_xor_b32 s8, s8, {4*CH}')
        a.emit(f's_xor_b32 s9, s9, {4*CH}')
        a.emit('s_mov_b64 exec, 1')
        a.emit('s_waitcnt vmcnt(0)')
        a.emit(f'buffer_store_dword v4, off, s[{SC}:{SC+3}], s6 sc1')
        if XL: lstamp(a, 1)
        if PS: a.emit('s_barrier')
        if 'nopoll' in DBG: a.emit(f's_branch L_{kind}_xgo')
        a.label(f'L_{kind}_xpoll')
        a.emit(f'buffer_load_dword v5, off, s[{SC}:{SC+3}], s7 sc1')
        a.emit(f's_sub_u32 s{S_CNT}, s{S_CNT}, 1')
        a.emit(f's_cbranch_scc1 L_{kind}_xgo')
        a.emit('s_waitcnt vmcnt(0)')
        a.emit('v_cmp_ne_u32 vcc, 1, v5')
        a.emit(f's_cbranch_vccnz L_{kind}_xpoll')
        a.label(f'L_{kind}_xgo')
        a.emit('s_mov_b64 exec, -1')
        a.emit('s_mov_b32 m0, s5')
        if XL: lstamp(a, 2)
        for i in range(NXC):
            if i == 4: a.emit('s_add_u32 m0, s5, 4096')
            if not i & 3: a.emit('s_nop 0')
            if 'noxl' not in DBG: a.emit(f'buffer_load_dwordx4 v3, s[{SP}:{SP+3}], s{8+(i>>2)} offen offset:{1024*(i&3)} lds')
        a.emit('s_waitcnt vmcnt(0)')
        if XL: lstamp(a, 3)
        a.emit('s_setprio 0')
        a.emit('s_barrier')
    loader_end(a, kind)
    a.label(end)
    a.emit('s_endpgm')
    loader_first(a, kind)
    if SPC:
        i = a.lines.index(f'  s_cbranch_scc1 L_{kind}_compute')
        del a.lines[i - 1:i + 1]
    a.label(f'L_{kind}_c1')
    return 163840
```

```python
from common import *

def big_loop(a, tag, N, S, STAGE, naddr, VB, VA, reads, mf, variants=None, select=None, post=None):
    def addr():
        o = [f'v_add_u32_e64 v{VA+i}, s{S_SLOT}, v{VB+i}' for i in range(naddr)]
        o += [f's_add_u32 s{S_SLOT}, s{S_SLOT}, {STAGE}', f's_cmp_eq_u32 s{S_SLOT}, {S*STAGE}', f's_cselect_b32 s{S_SLOT}, 0, s{S_SLOT}']
        return o
    a.emit(f's_mov_b32 s{S_SLOT}, 0')
    for x in addr(): a.emit(x)
    a.emit(f's_mov_b32 s{S_CNT}, {N}')
    gbar(a, tag)
    a.emit('s_barrier')
    stamp(a, 1)
    for x in reads(0, 0): a.emit(x)
    a.emit('s_waitcnt lgkmcnt(0)')
    def loop(nm, m):
        a('.p2align 3')
        a.label(f'L_{tag}_loop{nm}')
        ad = addr()
        ad[-1] += f'\n  s_sub_u32 s{S_CNT}, s{S_CNT}, 1'
        interleave(a, m(0), reads(1, 1) + ad, lead=1, per=1)
        a.emit('s_waitcnt lgkmcnt(0)')
        a.emit('s_barrier')
        interleave(a, m(1), reads(0, 0) + [f's_cmp_lg_u32 s{S_CNT}, 0\n  s_nop 0'], lead=1, per=1)
        a.emit('s_waitcnt lgkmcnt(0)')
        a.emit(f's_cbranch_scc1 L_{tag}_loop{nm}')
    if variants:
        select()
        vs = list(variants.items())
        for i, (nm, m) in enumerate(vs):
            loop(nm, m)
            if i + 1 < len(vs): a.emit(f's_branch L_{tag}_post')
        a.label(f'L_{tag}_post')
        post()
        a.emit(f's_branch L_{tag}_exit')
    loop('', mf)
    a.label(f'L_{tag}_exit')
    stamp(a, 2)

def stats_loads(a, vd, halo):
    a.emit(f's_and_b32 s3, s{S_WV}, 3')
    a.emit(f's_lshl_b32 s4, s{S_MT}, 7')
    a.emit('s_lshl_b32 s5, s3, 6')
    a.emit('s_add_u32 s5, s5, s4')
    a.emit('v_add_u32 v2, s5, v1')
    a.emit('s_sub_u32 s4, s4, 16')
    a.emit('v_and_b32 v3, 15, v1')
    a.emit('v_add_u32 v3, s4, v3')
    a.emit('v_max_i32 v3, 0, v3')
    a.emit('s_cmp_ge_u32 s3, 2')
    a.emit('s_cselect_b64 vcc, -1, 0')
    a.emit('v_cndmask_b32 v2, v2, v3, vcc')
    a.emit('v_lshlrev_b32 v2, 3, v2')
    a.emit('s_mov_b32 s3, 0')
    for j in range(16):
        a.emit(f'buffer_load_dwordx2 v[{vd+2*j}:{vd+2*j+1}], v2, s[{ST}:{ST+3}], s3 offen')
        if j < 15: a.emit('s_add_u32 s3, s3, 16384')
    return 16

def stats_finish(a, vs):
    a.emit(f'v_mul_f32 v{vs}, 0x3a800000, v{vs}')
    a.emit(f'v_mul_f32 v{vs+1}, 0x3a800000, v{vs+1}')
    a.emit(f'v_fma_f32 v{vs+1}, -v{vs}, v{vs}, v{vs+1}')
    a.emit(f'v_max_f32 v{vs+1}, 0, v{vs+1}')
    a.emit(f'v_add_f32 v{vs+1}, 0x3727c5ac, v{vs+1}')
    a.emit(f'v_rsq_f32 v{vs+1}, v{vs+1}')
    a.emit('s_nop 0')

def stats_reduce_store(a, vd, LST):
    for j in range(1, 8):
        a.emit(f'v_add_f32 v{vd}, v{vd}, v{vd+2*j}')
        a.emit(f'v_add_f32 v{vd+1}, v{vd+1}, v{vd+2*j+1}')
        a.emit(f'v_add_f32 v{vd+16}, v{vd+16}, v{vd+16+2*j}')
        a.emit(f'v_add_f32 v{vd+17}, v{vd+17}, v{vd+17+2*j}')
    a.emit(f'v_add_f32 v{vd}, v{vd}, v{vd+16}')
    a.emit(f'v_add_f32 v{vd+1}, v{vd+1}, v{vd+17}')
    stats_finish(a, vd)
    a.emit(f's_and_b32 s3, s{S_WV}, 3')
    a.emit('s_lshl_b32 s5, s3, 6')
    a.emit('s_add_u32 s5, s5, 16')
    a.emit('v_add_u32 v2, s5, v1')
    a.emit('v_and_b32 v3, 15, v1')
    a.emit('s_cmp_ge_u32 s3, 2')
    a.emit('s_cselect_b64 vcc, -1, 0')
    a.emit('v_cndmask_b32 v2, v2, v3, vcc')
    a.emit('v_lshlrev_b32 v2, 2, v2')
    a.emit(f'v_add_u32 v2, {LST}, v2')
    a.emit(f'ds_write2_b32 v2, v{vd}, v{vd+1} offset0:0 offset1:160')

def gen_w1(a, tsidx, side, cs=(16, 16384, 0)):
    kind = 'w1'
    K = 1024; lda2 = 2048; ldw2 = 7168; ldo2 = 7168
    S = 3; LM = int(ENV('LM_W1', '3'))
    STAGE = 16384 + 4 * 8192
    LST = S * STAGE
    LCS = LST + 1280
    N = 16
    body = f'L_{kind}_body'; end = f'L_{kind}_end'
    VB, VA, VO = 4, 20, 12
    F = [32, 80]; ACC = 128
    acc = lambda jn, jm: ACC + (jn * 4 + jm) * 4
    fx = lambda s, jm: F[s] + jm * 4
    fw = lambda s, jn: F[s] + 16 + jn * 4
    a.label(f'L_{kind}_c0')
    if not MEGA: stub(a, f'{kind}l0_kernel', body, 0, tsidx, True)
    a.label(body)
    tile_map(a, LM, end)
    a.emit(f's_cmp_ge_u32 s{S_WV}, 4')
    a.emit(f's_cbranch_scc1 L_{kind}_loader')
    if NV:
        from gemm64y import w2_pre, w2_early
        w2_pre(a)
        tile_map(a, LM, None)
    a.emit(f's_and_b32 s{S_WM}, s{S_WV}, 1')
    a.emit(f's_lshr_b32 s{S_WN}, s{S_WV}, 1')
    a.emit('v_and_b32 v3, 15, v1')
    a.emit('v_lshrrev_b32 v2, 4, v1')
    a.emit(f's_lshl_b32 s8, s{S_WM}, 13')
    a.emit(f'v_lshl_add_u32 v{VB}, v1, 4, s8')
    wbase(a, 13, 17)
    a.emit(f's_lshl_b32 s9, s{S_WN}, 6')
    a.emit('v_xor_b32 v13, s9, v13')
    a.emit(f'v_add_u32 v{VB+1}, 16384, v13')
    a.emit(f'v_xor_b32 v{VB+2}, 32, v{VB+1}')
    a.emit('v_and_b32 v16, 1, v2')
    a.emit('v_lshrrev_b32 v17, 1, v2')
    a.emit('v_bfe_u32 v13, v1, 2, 2')
    a.emit('v_lshl_add_u32 v13, v16, 3, v13')
    a.emit('v_lshl_add_u32 v13, v17, 5, v13')
    a.emit(f'v_xor_b32 v14, s{S_WN}, v16')
    a.emit('v_lshl_add_u32 v13, v13, 1, v14')
    a.emit('v_and_b32 v14, 3, v1')
    a.emit('v_lshl_add_u32 v13, v13, 2, v14')
    a.emit('v_lshlrev_b32 v13, 3, v13')
    a.emit(f'v_add_u32 v{VB+3}, {16384 + 3 * 8192}, v13')
    a.emit(f's_lshl_b32 s8, s{S_MT}, 7')
    a.emit(f's_lshl_b32 s9, s{S_WM}, 6')
    a.emit('s_add_u32 s8, s8, s9')
    a.emit(f's_mul_i32 s8, s8, {ldo2}')
    a.emit('v_lshlrev_b32 v14, 8, v17')
    a.emit('v_lshl_add_u32 v14, v3, 4, v14')
    a.emit('v_add_u32 v14, s8, v14')
    a.emit(f's_lshl_b32 s10, s{S_NT}, 11')
    a.emit(f's_lshl_b32 s9, s{S_WN}, 10')
    a.emit('s_add_u32 s9, s9, s10')
    a.emit(f'v_lshl_add_u32 v{VO}, v16, 9, v14')
    a.emit(f'v_add_u32 v{VO}, s9, v{VO}')
    a.emit(f'v_mul_u32_u24 v16, {16*ldo2}, v16')
    a.emit('s_lshr_b32 s9, s9, 1')
    a.emit(f'v_add3_u32 v{VO+1}, v16, v14, s9')
    a.emit(f's_lshl_b32 s9, s{S_WM}, 8')
    a.emit(f's_add_u32 s9, s9, {LST + 64}')
    a.emit('v_lshl_add_u32 v14, v3, 2, s9')
    a.emit(f's_lshl_b32 s9, s{S_WN}, 7')
    a.emit(f's_add_u32 s9, s9, {LCS}')
    a.emit('v_lshl_add_u32 v15, v2, 4, s9')
    a.emit(f's_lshl_b32 s9, s{S_WN}, 6')
    a.emit(f's_add_u32 s9, s9, {LCS}')
    a.emit('v_lshl_add_u32 v16, v2, 4, s9')
    for i in range(112): a.emit(f'v_mov_b32 v{ACC+i}, 0')
    a.emit('s_waitcnt lgkmcnt(0)')
    srd(a, SO, 'ws', WS_H, 2048 * 7168)
    code_touch(a, 'L_w2_c0', 'L_w2_c1', 192 if SPX else 128)
    def reads(s, ks):
        o = []
        if 'noread' in DBG: return o
        for jm in range(4):
            o.append(f'ds_read_b128 v[{fx(s,jm)}:{fx(s,jm)+3}], v{VA} offset:{jm*2048+ks*1024}')
        for jn in range(7):
            for h in range(2):
                r = fw(s, jn) + 2 * h
                o.append(f'ds_read_b64_tr_b16 v[{r}:{r+1}], v{VA+1+(jn&1 if jn < 6 else 2)} offset:{((jn>>1)*8192+h*512 if jn < 6 else h*256)+ks*4096}')
        return o
    def mf(s):
        o = []
        if 'nomfma' in DBG: return ['s_nop 0']
        for jn, jm in mf_order(7, 4):
            if True:
                c = acc(jn, jm)
                o.append(f'v_mfma_f32_16x16x32_bf16 v[{c}:{c+3}], v[{fw(s,jn)}:{fw(s,jn)+3}], v[{fx(s,jm)}:{fx(s,jm)+3}], v[{c}:{c+3}]')
        return o
    big_loop(a, kind, N, S, STAGE, 4, VB, VA, reads, mf)
    CS = 32; BI = 60; STT = 88; CK = 96; T = 100; D = 108
    for jm in range(4):
        a.emit(f'ds_read2_b32 v[{STT+2*jm}:{STT+2*jm+1}], v14 offset0:{16*jm} offset1:{160+16*jm}')
    for jn in range(7):
        a.emit(f'ds_read_b128 v[{CS+4*jn}:{CS+4*jn+3}], v{15 if jn < 6 else 16} offset:{(jn>>1)*256+(jn&1)*64}')
        a.emit(f'ds_read_b128 v[{BI+4*jn}:{BI+4*jn+3}], v{15 if jn < 6 else 16} offset:{1024+(jn>>1)*256+(jn&1)*64}')
    c0 = -2.0 * 0.7978845608028654 * 1.4426950408889634
    c1 = c0 * 0.044715
    a.emit(f'v_mov_b32 v{CK}, {f2u(c0):#x}')
    a.emit(f'v_mov_b32 v{CK+1}, {f2u(c1):#x}')
    a.emit(f'v_mov_b32 v{CK+2}, 1.0')
    a.emit('s_waitcnt lgkmcnt(0)')
    for jm in range(4):
        a.emit(f'v_mul_f32 v{STT+2*jm}, v{STT+2*jm}, v{STT+2*jm+1}')
    def tile_math(jn, jm, d):
        c = acc(jn, jm)
        seqs = []
        ST2 = f'v[{STT+2*jm}:{STT+2*jm+1}]'
        for q in range(2):
            x = c + 2 * q; t = T + 2 * q + 4 * (jn & 1)
            X = f'v[{x}:{x+1}]'; TT = f'v[{t}:{t+1}]'
            seqs.append([
              f'v_pk_fma_f32 {TT}, v[{CS+4*jn+2*q}:{CS+4*jn+2*q+1}], {ST2}, v[{BI+4*jn+2*q}:{BI+4*jn+2*q+1}] op_sel:[0,0,0] op_sel_hi:[1,0,1] neg_lo:[0,1,0] neg_hi:[0,1,0]',
              f'v_pk_fma_f32 {X}, {X}, {ST2}, {TT} op_sel:[0,1,0] op_sel_hi:[1,1,1]',
              f'v_pk_mul_f32 {TT}, {X}, {X}',
              f'v_pk_fma_f32 {TT}, {TT}, v[{CK}:{CK+1}], v[{CK}:{CK+1}] op_sel:[0,1,0] op_sel_hi:[1,1,0]',
              f'v_pk_mul_f32 {TT}, {TT}, {X}',
              f'v_exp_f32 v{t}, v{t}\n  v_exp_f32 v{t+1}, v{t+1}',
              f'v_pk_add_f32 {TT}, {TT}, v[{CK+2}:{CK+3}] op_sel_hi:[1,0]',
              f'v_rcp_f32 v{t}, v{t}\n  v_rcp_f32 v{t+1}, v{t+1}',
              f'v_pk_mul_f32 {X}, {X}, {TT}',
              f'v_cvt_pk_bf16_f32 v{d+q}, v{x}, v{x+1}'])
        for ia, ib in zip(*seqs):
            a.emit(ia); a.emit(ib)
    cnt = [0]
    def pair(t0, t1, vo, soff, big=False):
        d = D + 4 * (cnt[0] % 4); cnt[0] += 1
        tile_math(*t0, d); tile_math(*t1, d + 2)
        a.emit(f's_add_u32 s3, s10, {soff}' if big else f's_mov_b32 s3, {soff}')
        a.emit('s_nop 0')
        a.emit(f'v_permlane16_swap_b32 v{d}, v{d+2}')
        a.emit(f'v_permlane16_swap_b32 v{d+1}, v{d+3}')
        a.emit(f'buffer_store_dwordx4 v[{d}:{d+3}], v{vo}, s[{SO}:{SO+3}], s3 offen{stf(kind)}')
    pr = lambda p, jm: pair((2 * p, jm), (2 * p + 1, jm), VO, jm * 16 * ldo2 + (46 + 2 * p) * 1024 * (p > 0), p > 0)
    od = lambda jm: pair((6, jm), (6, jm + 1), VO + 1, jm * 16 * ldo2 + 32768)
    order = [lambda jm=jm: pr(0, jm) for jm in range(4)] + [lambda: od(0), lambda: od(2)] + [lambda jm=jm, p=p: pr(p, jm) for jm in range(4) for p in (1, 2)]
    EW = int(ENV('EW', '10'))
    for i, f in enumerate(order):
        f()
        if NV and i + 1 == EX: w2_early(a)
        if EARLY and i + 1 == EW:
            a.emit(f's_waitcnt vmcnt({EW - EARLY // 4})')
            a.emit('s_barrier')
    compute_end(a, kind)
    a.label(f'L_{kind}_loader')
    L = Loader(a, kind, K, lda2, ldw2, [0, f's{S_HD}', 's_add_u32 s4, s4, 128'], 128, S, STAGE, rot=int(ENV('ROT_W1', '0')), xblk=True, half=2048)
    L.setup()
    a.emit('s_waitcnt lgkmcnt(0)')
    srd(a, SX, 'ws', WS_X1, 4 * MB); srd(a, SW, 'w1', 0, 1024 * 7168)
    srd(a, ST, 'ws', WS_ST, 16 * 16384); srd(a, SC, 'ws0', WS_CS, 16 * 16384); srd(a, SB, 'b1', 0, 7168)
    def tail():
        stats_loads(a, 32, False)
        a.emit(f's_lshl_b32 s4, s{S_NT}, 7')
        a.emit(f's_lshl_b32 s5, s{S_WV}, 6')
        a.emit('s_add_u32 s4, s4, s5')
        a.emit(f's_add_u32 s4, s4, {1472 - 256}')
        a.emit(f's_lshl_b32 s5, s{S_NT}, 6')
        a.emit(f's_cmp_eq_u32 s{S_WV}, 4')
        a.emit('s_cselect_b32 s4, s5, s4')
        a.emit('s_lshr_b32 s5, s5, 1')
        a.emit('s_add_u32 s5, s5, 1024')
        a.emit(f's_cmp_eq_u32 s{S_WV}, 7')
        a.emit('s_cselect_b32 s4, s5, s4')
        a.emit('v_add_u32 v3, s4, v1')
        a.emit('v_lshlrev_b32 v2, 2, v3')
        a.emit('v_lshlrev_b32 v3, 1, v3')
        a.emit(f's_mov_b32 s3, {cs[2]}')
        for j in range(16):
            if j < cs[0]:
                a.emit(f'buffer_load_dword v{64+j}, v2, s[{SC}:{SC+3}], s3 offen')
                if j < cs[0] - 1: a.emit(f's_add_u32 s3, s3, {cs[1]}')
            else:
                a.emit(f'v_mov_b32 v{64+j}, 0')
        a.emit(f'buffer_load_ushort v80, v3, s[{SB}:{SB+3}], 0 offen')
        side(a, 'issue')
    ns = side(Asm(), 'issue')
    extra = None
    if VW:
        assert int(ENV('LM_W2', '2')) == 2
        srd(a, SR, 'w2', 0, 3584 * 2048)
        a.emit('s_and_b32 s5, s2, 3')
        a.emit('s_lshl_b32 s5, s5, 2')
        a.emit(f's_and_b32 s6, s{S_CU}, 3')
        a.emit('s_add_u32 s5, s5, s6')
        a.emit('s_and_b32 s6, s2, 4')
        a.emit('s_lshl_b32 s6, s6, 1')
        a.emit(f's_lshr_b32 s7, s{S_CU}, 2')
        a.emit('s_add_u32 s6, s6, s7')
        rot_table(a, S_TB, 5, 6, 'w2')
        a.emit(f's_add_u32 s5, s5, s{S_WV}')
        a.emit('s_and_b32 s5, s5, 3')
        wvoff(a, 16, 5, 6, 2048)
        sched = [int(c) for c in ENV('PSCH', '0111111111111122')]
        assert sum(sched) >= NV1
        def extra(i):
            o = []
            for p in range(sum(sched[:i]), min(NV1, sum(sched[:i + 1]))): o += park(56, 2 * p, 128 + 8 * p, 16, SR)
            return o
        ns += sum(x.startswith('buffer_load') for i in (13, 14, 15) for x in extra(i))
    if XD:
        extra = tail_parks('w2', SR, lambda b: srd(b, SR, 'w2', 0, 3584 * 2048))
        ns += 2 * sum(TSCH['w2'])
    if XD and ENV('PFL', '2') == '3':
        b = Asm(); side(b, 'late'); pl = [l.strip() for l in b.lines]
        pl = [l.replace('v2,', 'v18,').replace(', v2', ', v18').replace('s3', 's93') for l in pl]
        i0 = min(i for i, l in enumerate(pl) if l.startswith('buffer_load'))
        for l in pl[:i0]: a.emit(l)
        st = [int(x) for x in ENV('PFS', '6,10').split(',')]
        extra = lambda i: pl[i0 + 2 * st.index(i):i0 + 2 * st.index(i) + 2] if i in st else []
    def final():
        a.emit(f's_waitcnt vmcnt({ns})')
        if ENV('PFL', '2') == '1': side(a, 'late')
        stats_reduce_store(a, 32, LST)
        for j in range(8): a.emit(f'v_add_f32 v{64+j}, v{64+j}, v{72+j}')
        for j in range(4): a.emit(f'v_add_f32 v{64+j}, v{64+j}, v{68+j}')
        a.emit('v_add_f32 v64, v64, v65')
        a.emit('v_add_f32 v66, v66, v67')
        a.emit('v_add_f32 v64, v64, v66')
        a.emit('v_lshlrev_b32 v80, 16, v80')
        a.emit('v_lshlrev_b32 v2, 2, v0')
        a.emit(f'v_add_u32 v2, {LCS - 1024}, v2')
        a.emit('ds_write_b32 v2, v64')
        a.emit('ds_write_b32 v2, v80 offset:1024')
        a.emit('s_waitcnt lgkmcnt(0)')
    import sides
    L.run(tail_issue=tail, ntail_vm=17 + cs[0] + side(Asm(), 'issue'), final=final, extra=extra, post=sides.stouch_post(a, kind),
          dep=(lambda pf: dep_wait(a, kind, postf=pf)) if MEGA else None)
    if ENV('PFL', '2') == '2': side(a, 'late')
    if not VW: side(a, 'finish')
    loader_end(a, kind)
    a.label(end)
    a.emit('s_endpgm')
    loader_first(a, kind)
    if not MEGA:
        a(KD.format(name=f'{kind}l0_kernel'))
        stub(a, f'{kind}l1_kernel', body, 1, tsidx + 4, False)
        a(KD.format(name=f'{kind}l1_kernel'))
    a.label(f'L_{kind}_c1')
    return LCS + 2048
```

```python
from common import *
from gemmw1 import big_loop, stats_loads, stats_finish, stats_reduce_store

def gen_qkv(a, tsidx, side):
    kind = 'attn'
    K = 1024; lda2 = 2048; ldw2 = 6144
    S = 3; LM = int(ENV('LM_QKV', '3'))
    XH = 16384 + 6 * 4096
    STAGE = XH + 2048
    LST = S * STAGE
    EX = 1024
    N = 16
    body = f'L_{kind}_body'; end = f'L_{kind}_end'
    VB, VA = 4, 10
    VXW, VPE, VPO, VCE, VCO, VVE, VVO, VS1, VS4, VKA, VKB, MAP, MAC, MBP, MBC, VO = range(16, 32)
    M_ODD, M_UPA, M_UPB, M_FA, M_FB = 48, 50, 52, 54, 14
    F = [32, 76]; ACC = 128; HACC = 224; ONES = 236
    acc = lambda jn, jm: ACC + (jn * 4 + jm) * 4
    fx = lambda s, jm: F[s] + jm * 4
    fw = lambda s, jn: F[s] + 20 + jn * 4
    a.label(f'L_{kind}_c0')
    stub(a, f'{kind}l0_kernel', body, 0, tsidx, True)
    a.label(body)
    tile_map(a, LM, end)
    a.emit(f's_cmp_ge_u32 s{S_WV}, 4')
    a.emit(f's_cbranch_scc1 L_{kind}_loader')
    if ENV('CTE', '0') == '1': code_touch(a, 'L_attn_c0', 'L_w2_c1', int(ENV('CTN', '256')))
    a.emit(f's_and_b32 s{S_WM}, s{S_WV}, 1')
    a.emit(f's_lshr_b32 s{S_WN}, s{S_WV}, 1')
    a.emit('v_and_b32 v3, 31, v1')
    a.emit('v_lshlrev_b32 v3, 2, v3')
    a.emit(f'v_add_u32 v3, {XH}, v3')
    for i in range(4): a.emit(f'v_mov_b32 v{ONES+i}, 0x3f803f80')
    a.emit(f'ds_write_b32 v3, v{ONES}')
    a.emit(f'ds_write_b32 v3, v{ONES} offset:{STAGE}')
    a.emit(f'v_add_u32 v3, {2*STAGE}, v3')
    a.emit(f'ds_write_b32 v3, v{ONES}')
    a.emit('v_and_b32 v3, 15, v1')
    a.emit('v_lshrrev_b32 v2, 4, v1')
    a.emit('v_lshrrev_b32 v33, 1, v3')
    a.emit(f's_lshl_b32 s8, s{S_WM}, 13')
    for ks in range(2):
        if ks: a.emit(f'v_add_u32 v{VB+ks}, 4, v2')
        a.emit(f'v_xor_b32 v{VB+ks}, v{VB+ks if ks else 2}, v33')
        a.emit(f'v_lshlrev_b32 v{VB+ks}, 4, v{VB+ks}')
        a.emit(f'v_lshl_add_u32 v{VB+ks}, v3, 7, v{VB+ks}')
        a.emit(f'v_add_u32 v{VB+4+ks}, {XH}, v{VB+ks}')
        a.emit(f'v_add_u32 v{VB+ks}, s8, v{VB+ks}')
    wbase(a, 34, 33)
    a.emit('v_and_b32 v35, 1, v2')
    a.emit(f'v_xor_b32 v35, s{S_WM}, v35')
    a.emit(f's_lshl_b32 s8, s{S_WV}, 5')
    a.emit('v_xor_b32 v34, s8, v34')
    a.emit(f'v_add_u32 v{VB+2}, 16384, v34')
    a.emit(f'v_xor_b32 v{VB+3}, 32, v{VB+2}')
    a.emit(f's_lshl_b32 s8, s{S_MT}, 7')
    a.emit(f's_lshl_b32 s9, s{S_WM}, 6')
    a.emit('s_add_u32 s8, s8, s9')
    a.emit(f's_add_u32 s10, s8, s{S_NT}')
    a.emit('s_lshl_b32 s10, s10, 11')
    a.emit(f's_lshl_b32 s11, s{S_WN}, 10')
    a.emit('s_add_u32 s10, s10, s11')
    a.emit('v_lshl_add_u32 v33, v3, 4, s10')
    a.emit('v_lshl_add_u32 v33, v35, 9, v33')
    a.emit('v_lshrrev_b32 v34, 1, v2')
    a.emit(f'v_lshl_add_u32 v{VO}, v34, 8, v33')
    a.emit(f's_mul_i32 s10, s{S_WN}, {14336 if XD else 24576}')
    a.emit(f's_add_u32 s10, s10, {EX}')
    a.emit(f's_lshl_b32 s11, s{S_WM}, 10')
    a.emit('s_add_u32 s4, s10, s11')
    a.emit('s_sub_u32 s5, s10, s11')
    a.emit(f's_mul_i32 s6, s{S_WM}, 6144')
    a.emit(f'v_lshl_add_u32 v{VXW}, v1, 4, s4')
    a.emit(f'v_add_u32 v{VPE}, s6, v{VXW}')
    a.emit(f'v_lshl_add_u32 v{VPO}, v1, 4, s5')
    a.emit(f'v_add_u32 v{VPO}, s6, v{VPO}')
    a.emit(f'v_lshl_add_u32 v{VCE}, v2, 8, s4')
    a.emit(f'v_lshl_add_u32 v{VCO}, v2, 8, s5')
    a.emit(f'v_lshl_add_u32 v{VVE}, v3, 4, s4')
    a.emit(f'v_lshl_add_u32 v{VVO}, v3, 4, s5')
    a.emit(f's_lshl_b32 s10, s{S_WM}, 8')
    a.emit(f's_add_u32 s10, s10, {LST}')
    a.emit(f'v_lshl_add_u32 v{VS1}, v3, 2, s10')
    a.emit(f'v_lshl_add_u32 v{VS4}, v2, 4, s10')
    a.emit('v_and_b32 v33, 1, v3')
    a.emit(f'v_cmp_eq_u32 s[{M_ODD}:{M_ODD+1}], 1, v33')
    a.emit('v_lshl_add_u32 v34, v2, 2, v33')
    a.emit('v_add_u32 v35, 2, v34')
    a.emit(f'v_cmp_gt_u32 s[{M_UPA}:{M_UPA+1}], v34, v3')
    a.emit(f'v_cmp_gt_u32 s[{M_UPB}:{M_UPB+1}], v35, v3')
    a.emit('v_mov_b32 v36, 0xffff')
    a.emit('v_mov_b32 v37, 0xffff0000')
    a.emit(f'v_cndmask_b32 v36, v36, v37, s[{M_ODD}:{M_ODD+1}]')
    a.emit(f's_add_u32 s10, s10, {640 + 64}')
    a.emit('v_lshl_add_u32 v34, v34, 2, s10')
    a.emit('v_lshl_add_u32 v35, v35, 2, s10')
    a.emit('v_subrev_u32 v38, 64, v34')
    a.emit('v_subrev_u32 v39, 64, v35')
    a.emit(f'v_cndmask_b32 v{VKA}, v34, v38, s[{M_UPA}:{M_UPA+1}]')
    a.emit(f'v_cndmask_b32 v{VKB}, v35, v39, s[{M_UPB}:{M_UPB+1}]')
    a.emit(f'v_cndmask_b32 v{MAP}, 0, v36, s[{M_UPA}:{M_UPA+1}]')
    a.emit(f'v_cndmask_b32 v{MBP}, 0, v36, s[{M_UPB}:{M_UPB+1}]')
    a.emit(f'v_xor_b32 v{MAC}, v{MAP}, v36')
    a.emit(f'v_xor_b32 v{MBC}, v{MBP}, v36')
    a.emit('s_cmp_eq_u32 s8, 0')
    a.emit(f's_cselect_b64 s[{M_FA}:{M_FA+1}], s[{M_UPA}:{M_UPA+1}], 0')
    a.emit(f's_cselect_b64 s[{M_FB}:{M_FB+1}], s[{M_UPB}:{M_UPB+1}], 0')
    for i in list(range(120, 236)) + ([] if XD else list(range(240, 256))): a.emit(f'v_mov_b32 v{i}, 0')
    a.emit('s_waitcnt lgkmcnt(0)')
    srd(a, SO, 'ws', WS_O, 4 * MB)
    clear_flags(a, 0)
    if ENV('CTE', '0') == '0': code_touch(a, 'L_attn_c0', 'L_w2_c1', int(ENV('CTN', '256')))
    CLQ = ENV('DX', '2') == '1' and ENV('CLP', 'e') == 'q'
    if CLQ:
        srd(a, ST, 'ws', WS_XP, 4 * MB)
        a.emit(f's_or_b32 s{ST+1}, s{ST+1}, 0x100000')
        a.emit(f's_mov_b32 s{ST+3}, 0x00800000')
        a.emit('s_and_b32 s3, s2, 3')
        a.emit(f's_and_b32 s4, s{S_CU}, 3')
        a.emit('s_lshl2_add_u32 s3, s3, s4')
        a.emit('s_bfe_u32 s4, s2, 0x10002')
        a.emit(f's_lshr_b32 s5, s{S_CU}, 2')
        a.emit('s_lshl1_add_u32 s4, s5, s4')
        a.emit('s_lshl4_add_u32 s3, s3, s4')
        a.emit(f's_lshl2_add_u32 s3, s3, s{S_WV}')
        a.emit(f's_lshl_b32 s{S_T}, s3, 12')
        for i in range(4): a.emit(f'v_mov_b32 v{116+i}, -1')
    def warm():
        a.emit(f's_cmp_lg_u32 s{S_LAYER}, 0')
        a.emit(f's_cbranch_scc1 L_{kind}_nowarm')
        a.emit('s_lshl_b32 s3, s2, 2')
        a.emit(f's_add_u32 s3, s3, s{S_WV}')
        srd(a, SX, 'xs', 0, 4 * MB); srd(a, SW, 'wqkv', 0, 6 * MB)
        a.emit('v_min_u32 v126, 31, v1')
        a.emit('v_min_u32 v127, 47, v1')
        a.emit('v_lshlrev_b32 v126, 7, v126')
        a.emit('v_lshlrev_b32 v127, 7, v127')
        a.emit('s_lshl_b32 s4, s3, 12')
        a.emit(f's_mul_i32 s5, s3, {48 * 128}')
        a.emit(f'buffer_load_dword v2, v126, s[{SX}:{SX+3}], s4 offen')
        a.emit(f'buffer_load_dword v3, v127, s[{SW}:{SW+3}], s5 offen')
        a.emit('v_mov_b32 v126, 0')
        a.emit('v_mov_b32 v127, 0')
        a.label(f'L_{kind}_nowarm')
    WARM = ENV('WARM', '0')
    if WARM == '1': warm()
    def reads(s, ks):
        o = []
        if 'noread' in DBG: return o
        for jm in range(4):
            o.append(f'ds_read_b128 v[{fx(s,jm)}:{fx(s,jm)+3}], v{VA+ks} offset:{jm*2048}')
        o.append(f'ds_read_b128 v[{fx(s,4)}:{fx(s,4)+3}], v{VA+4+ks}')
        for jn in range(6):
            for h in range(2):
                r = fw(s, jn) + 2 * h
                o.append(f'ds_read_b64_tr_b16 v[{r}:{r+1}], v{VA+2+(jn&1)} offset:{(jn>>1)*8192+ks*4096+h*512}')
        return o
    def mfma(c, x, y, cin=None):
        return f'v_mfma_f32_16x16x32_bf16 v[{c}:{c+3}], v[{x}:{x+3}], v[{y}:{y+3}], ' + (f'v[{c}:{c+3}]' if cin is None else cin)
    def mf(s):
        o = []
        if 'nomfma' in DBG: return ['s_nop 0']
        for jn, jm in mf_order(6, 5, lambda jn, jm: jm == 4 and jn & 1):
            if True:
                c = acc(jn, jm) if jm < 4 else HACC + (jn >> 1) * 4
                o.append(mfma(c, fw(s, jn), fx(s, jm)) if jn < 4 else mfma(c, fx(s, jm), fw(s, jn)))
        return o
    SA = [(240, 244), (248, 252), (120, 124)]
    def mfv(hh):
        def f(s):
            o = mf(s)
            ex = []
            for i, jm in enumerate([2 * hh, 2 * hh + 1] + ([4] if hh == 0 else [])):
                ex.append(mfma(SA[i][0], ONES, fx(s, jm)))
                ex.append(mfma(SA[i][1], fx(s, jm), fx(s, jm)))
            return o if 'nostat' in DBG else ex + o
        return f
    def select():
        if CLQ:
            for i in range(4): a.emit(f'buffer_store_dwordx4 v[116:119], off, s[{ST}:{ST+3}], s{S_T} offset:{1024*i} sc1')
        if WARM == '2': warm(); a.emit('s_nop 1')
        a.emit(f's_cmp_lg_u32 s{S_LAYER}, 0')
        a.emit(f's_cbranch_scc1 L_{kind}_loop')
        if XD:
            for i in range(240, 256): a.emit(f'v_mov_b32 v{i}, 0')
        a.emit(f's_cmp_lg_u32 s{S_WN}, 0')
        a.emit(f's_cbranch_scc1 L_{kind}_loopb')
        clear_flags(a, 1, 4 if CLQ else 0)
    def post():
        a.emit('v_and_b32 v32, 3, v1')
        a.emit('v_cmp_eq_u32 s[4:5], 1, v32')
        a.emit('v_cmp_eq_u32 s[6:7], 2, v32')
        a.emit('v_cmp_eq_u32 s[8:9], 3, v32')
        a.emit('v_bfe_u32 v33, v1, 2, 2')
        a.emit('v_lshrrev_b32 v34, 4, v1')
        a.emit('v_cmp_eq_u32 s[10:11], v33, v34')
        a.emit(f's_lshl_b32 s3, s{S_WN}, 7')
        a.emit(f'v_add_u32 v35, s3, v{VS1}')
        a.emit('v_and_b32 v36, 15, v1')
        a.emit(f's_cmp_eq_u32 s{S_WV}, 0')
        a.emit('s_cselect_b32 s3, 0, 576')
        a.emit(f's_add_u32 s3, s3, {LST}')
        a.emit('v_lshl_add_u32 v36, v36, 2, s3')
        for (sm, sq) in SA:
            a.emit(f'v_cndmask_b32 v{sm+1}, v{sq}, v{sq+1}, s[4:5]')
        for (sm, sq) in SA:
            a.emit(f'v_cndmask_b32 v{sm+1}, v{sm+1}, v{sq+2}, s[6:7]')
        for (sm, sq) in SA:
            a.emit(f'v_cndmask_b32 v{sm+1}, v{sm+1}, v{sq+3}, s[8:9]')
        for (sm, sq) in SA: stats_finish(a, sm)
        a.emit('s_mov_b64 exec, s[10:11]')
        a.emit(f'ds_write2_b32 v35, v{SA[0][0]}, v{SA[0][0]+1} offset0:16 offset1:176')
        a.emit(f'ds_write2_b32 v35, v{SA[1][0]}, v{SA[1][0]+1} offset0:32 offset1:192')
        a.emit(f'ds_write2_b32 v36, v{SA[2][0]}, v{SA[2][0]+1} offset0:0 offset1:160')
        a.emit('s_mov_b64 exec, -1')
        if XD:
            assert int(ENV('LM_WO', '2')) == 2 and int(ENV('LM_W2', '2')) == 2
            srd(a, SX, 'A_x', 0, 4 * MB)
            a.emit('s_and_b32 s3, s2, 3')
            a.emit(f's_and_b32 s4, s{S_CU}, 3')
            a.emit('s_lshl2_add_u32 s3, s3, s4')
            a.emit(f's_lshl2_add_u32 s3, s3, s{S_WV}')
            a.emit('s_lshl_b32 s3, s3, 16')
            a.emit('s_bfe_u32 s4, s2, 0x10002' if SPX else 's_and_b32 s4, s2, 4')
            a.emit(f's_lshr_b32 s5, s{S_CU}, 2')
            a.emit('s_lshl1_add_u32 s4, s5, s4' if SPX else 's_lshl1_add_u32 s4, s4, s5')
            a.emit('s_lshl_b32 s4, s4, 7')
            a.emit('s_add_u32 s3, s3, s4')
            a.emit('s_add_u32 s4, s3, 32768')
            a.emit('v_and_b32 v32, 15, v1')
            a.emit('v_lshlrev_b32 v33, 1, v1')
            a.emit('v_and_b32 v33, 32, v33')
            a.emit('v_lshl_add_u32 v32, v32, 11, v33')
            a.emit('v_lshrrev_b32 v33, 1, v1')
            a.emit('v_and_b32 v33, 16, v33')
            a.emit('v_add_u32 v32, v32, v33')
        a.emit('s_waitcnt lgkmcnt(0)')
        if XD:
            for i in range(4):
                a.emit(f'buffer_load_dwordx4 v[{240+4*i}:{243+4*i}], v32, s[{SX}:{SX+3}], s{3+(i>>1)} offen offset:{64*(i&1)}')
        a.emit('s_barrier')
    big_loop(a, kind, N, S, STAGE, 6, VB, VA, reads, mf, variants={'a': mfv(0), 'b': mfv(1)}, select=select, post=post)
    PR = 32
    CS = 48
    CV = 64
    MS = 66
    RK = 76
    M4 = 84
    R4 = 104
    VV = [4 if XD else 240, 224]
    for b in range(5):
        a.emit(f'ds_read2_b32 v[{MS+2*b}:{MS+2*b+1}], v{VS1} offset0:{16*b} offset1:{160+16*b}')
    for p in range(2):
        a.emit(f'ds_read2_b32 v[{RK+2*p}:{RK+2*p+1}], v{VKA} offset0:{32*p} offset1:{32*p+16}')
        a.emit(f'ds_read2_b32 v[{RK+4+2*p}:{RK+5+2*p}], v{VKB} offset0:{32*p} offset1:{32*p+16}')
    for c in range(3):
        a.emit(f'ds_write_b128 v{VXW}, v[{HACC+4*c}:{HACC+4*c+3}] offset:{2048*c}')
    a.emit(f's_cmp_eq_u32 s{S_WM}, 1')
    a.emit(f's_cbranch_scc1 L_{kind}_nop3')
    for t in range(2, 6):
        a.emit(f'ds_write_b128 v{VXW}, v[{acc(t,3)}:{acc(t,3)+3}] offset:{6144+1024*t}')
    a.label(f'L_{kind}_nop3')
    for b in range(5):
        a.emit(f'ds_read_b128 v[{M4+4*b}:{M4+4*b+3}], v{VS4} offset:{64*b}')
        a.emit(f'ds_read_b128 v[{R4+4*b}:{R4+4*b+3}], v{VS4} offset:{640+64*b}')
    a.emit('s_waitcnt lgkmcnt(10)')
    a.emit('s_barrier')
    for t in range(4):
        a.emit(f'ds_read_b128 v[{CS+4*t}:{CS+4*t+3}], v{VCO if t&1 else VCE} offset:{1024*t}')
    for t in range(2):
        a.emit(f'ds_read_b32 v{CV+t}, v{VVO if t else VVE} offset:{4096+1024*t}')
    for t in range(4):
        a.emit(f'ds_read_b128 v[{PR+4*t}:{PR+4*t+3}], v{VPO if t&1 else VPE} offset:{2048+1024*t}')
    sc = 32 ** -0.5 * 1.4426950408889634
    for b in range(4):
        a.emit(f'v_mul_f32 v{MS+2*b+3}, {f2u(sc):#x}, v{MS+2*b+3}')
    for b in range(4):
        a.emit(f'v_mul_f32 v{RK+b}, v{RK+b}, v{MS+2*b+3}')
        a.emit(f'v_mul_f32 v{RK+4+b}, v{RK+4+b}, v{MS+2*b+3}')
    a.emit('s_waitcnt lgkmcnt(6)')
    def qk(x, y, cs, b, d):
        m = f'v[{MS+2*b}:{MS+2*b+1}]'
        for (z, c) in ((x, cs), (y, cs + 4)):
            for h in range(2):
                a.emit(f'v_pk_fma_f32 v[{z+2*h}:{z+2*h+1}], v[{c+2*h}:{c+2*h+1}], {m}, v[{z+2*h}:{z+2*h+1}] op_sel:[0,0,0] op_sel_hi:[1,0,1] neg_lo:[0,1,0] neg_hi:[0,1,0]')
        a.emit(f'v_cvt_pk_bf16_f32 v{d}, v{x}, v{x+1}')
        a.emit(f'v_cvt_pk_bf16_f32 v{d+1}, v{x+2}, v{x+3}')
        a.emit(f'v_cvt_pk_bf16_f32 v{d+2}, v{y}, v{y+1}')
        a.emit(f'v_cvt_pk_bf16_f32 v{d+3}, v{y+2}, v{y+3}')
    Q = lambda b: acc(0, b); Kf = lambda b: acc(2, b) if b >= 0 else PR
    Sc = lambda b: acc(1, b); Sp = lambda b: acc(3, b)
    for b in range(4):
        qk(acc(0, b), acc(1, b), CS, b + 1, Q(b))
        qk(acc(2, b), acc(3, b), CS + 8, b + 1, Kf(b))
        if b == 3:
            a.emit('s_waitcnt lgkmcnt(0)')
            qk(PR, PR + 4, CS + 8, 0, PR)
        if b >= 1:
            a.emit(mfma(Sc(b - 1), Kf(b - 1), Q(b - 1), '0'))
            if b >= 2: a.emit(mfma(Sp(b - 1), Kf(b - 2), Q(b - 1), '0'))
    a.emit(mfma(Sc(3), Kf(3), Q(3), '0'))
    a.emit(mfma(Sp(3), Kf(2), Q(3), '0'))
    a.emit(mfma(Sp(0), Kf(-1), Q(0), '0'))
    def vconv(x, t, b):
        cv = f'v[{CV}:{CV+1}]'
        for h in range(2):
            a.emit(f'v_pk_fma_f32 v[{x+2*h}:{x+2*h+1}], v[{M4+4*b+2*h}:{M4+4*b+2*h+1}], {cv}, v[{x+2*h}:{x+2*h+1}] op_sel:[0,{t},0] op_sel_hi:[1,{t},1] neg_lo:[1,0,0] neg_hi:[1,0,0]')
        for h in range(2):
            a.emit(f'v_pk_mul_f32 v[{x+2*h}:{x+2*h+1}], v[{x+2*h}:{x+2*h+1}], v[{R4+4*b+2*h}:{R4+4*b+2*h+1}]')
        for h in range(2):
            a.emit(f'v_cvt_pk_bf16_f32 v{VV[t]+2*b+h}, v{x+2*h}, v{x+2*h+1}')
    for t in range(2):
        vconv(PR + 8 + 4 * t, t, 0)
        for b in range(4): vconv(acc(4 + t, b), t, b + 1)
    T = lambda b: 32 + 4 * b
    odd = f's[{M_ODD}:{M_ODD+1}]'
    for b in (1, 2, 3, 0):
        a.emit(f'v_cndmask_b32 v{Sc(b)}, v{Sc(b)}, v{Sc(b)+1}, {odd}')
        a.emit(f'v_cndmask_b32 v{Sp(b)}, v{Sp(b)}, v{Sp(b)+1}, {odd}')
        a.emit(f'v_cndmask_b32 v{Sc(b)+2}, v{Sc(b)+2}, v{Sc(b)+3}, {odd}')
        a.emit(f'v_cndmask_b32 v{Sp(b)+2}, v{Sp(b)+2}, v{Sp(b)+3}, {odd}')
        a.emit(f'v_cndmask_b32 v{T(b)}, v{Sc(b)}, v{Sp(b)}, s[{M_UPA}:{M_UPA+1}]')
        a.emit(f'v_cndmask_b32 v{T(b)+1}, v{Sc(b)+2}, v{Sp(b)+2}, s[{M_UPB}:{M_UPB+1}]')
        a.emit(f'v_mul_f32 v{T(b)}, v{T(b)}, v{RK+b}')
        a.emit(f'v_mul_f32 v{T(b)+1}, v{T(b)+1}, v{RK+4+b}')
    a.emit(f'v_mov_b32 v48, {f2u(-1e9 * 1.4426950408889634):#x}')
    a.emit(f'v_cndmask_b32 v{T(0)}, v{T(0)}, v48, s[{M_FA}:{M_FA+1}]')
    a.emit(f'v_cndmask_b32 v{T(0)+1}, v{T(0)+1}, v48, s[{M_FB}:{M_FB+1}]')
    for b in range(4): a.emit(f'v_max_f32 v{T(b)+2}, v{T(b)}, v{T(b)+1}')
    for op in ('32', '16'):
        for b in range(4): a.emit(f'v_mov_b32 v{T(b)+3}, v{T(b)+2}')
        for b in range(4): a.emit(f'v_permlane{op}_swap_b32 v{T(b)+2}, v{T(b)+3}')
        for b in range(4): a.emit(f'v_max_f32 v{T(b)+2}, v{T(b)+2}, v{T(b)+3}')
    for b in range(4):
        a.emit(f'v_sub_f32 v{T(b)}, v{T(b)}, v{T(b)+2}')
        a.emit(f'v_sub_f32 v{T(b)+1}, v{T(b)+1}, v{T(b)+2}')
    for b in range(4):
        a.emit(f'v_exp_f32 v{T(b)}, v{T(b)}')
        a.emit(f'v_exp_f32 v{T(b)+1}, v{T(b)+1}')
    P = lambda b: acc(0, b)
    for b in range(4):
        a.emit(f'v_cvt_pk_bf16_f32 v{T(b)}, v{T(b)}, v{T(b)}')
        a.emit(f'v_cvt_pk_bf16_f32 v{T(b)+1}, v{T(b)+1}, v{T(b)+1}')
        a.emit(f'v_and_b32 v{P(b)}, v{T(b)}, v{MAP}')
        a.emit(f'v_and_b32 v{P(b)+1}, v{T(b)+1}, v{MBP}')
        a.emit(f'v_and_b32 v{P(b)+2}, v{T(b)}, v{MAC}')
        a.emit(f'v_and_b32 v{P(b)+3}, v{T(b)+1}, v{MBC}')
        if b >= 1:
            q = b - 1
            a.emit(mfma(acc(1, q), ONES, P(q), '0'))
            a.emit(mfma(acc(4, q), VV[0] + 2 * q, P(q), '0'))
            a.emit(mfma(acc(5, q), VV[1] + 2 * q, P(q), '0'))
    q = 3
    a.emit(mfma(acc(1, q), ONES, P(q), '0'))
    a.emit(mfma(acc(4, q), VV[0] + 2 * q, P(q), '0'))
    a.emit(mfma(acc(5, q), VV[1] + 2 * q, P(q), '0'))
    for b in range(4):
        r = acc(1, b); d = 48 + 4 * b
        a.emit(f'v_rcp_f32 v{r}, v{r}')
        a.emit(f's_mov_b32 s3, {b * 16 * 2048}')
        for t in range(2):
            x = acc(4 + t, b)
            for h in range(2):
                a.emit(f'v_pk_mul_f32 v[{x+2*h}:{x+2*h+1}], v[{x+2*h}:{x+2*h+1}], v[{r}:{r+1}] op_sel_hi:[1,0]')
        for t in range(2):
            x = acc(4 + t, b)
            for h in range(2):
                a.emit(f'v_cvt_pk_bf16_f32 v{d+2*t+h}, v{x+2*h}, v{x+2*h+1}')
        a.emit('s_nop 1')
        a.emit(f'v_permlane16_swap_b32 v{d}, v{d+2}')
        a.emit(f'v_permlane16_swap_b32 v{d+1}, v{d+3}')
        a.emit(f'buffer_store_dwordx4 v[{d}:{d+3}], v{VO}, s[{SO}:{SO+3}], s3 offen{stf(kind)}')
    compute_end(a, kind)
    a.label(f'L_{kind}_loader')
    L = Loader(a, kind, K, lda2, ldw2, [0, 2048, 4096], 128, S, STAGE, halo=XH, rot=int(ENV('ROT_QKV', '0')))
    L.setup()
    a.emit('s_waitcnt lgkmcnt(0)')
    srd_xs(a, SX); srd(a, SW, 'wqkv', 0, 1024 * 6144)
    import sides
    fill = []
    if ENV('DX', '2') == '1' and ENV('CLP', 'e') == 'l':
        a.emit('s_and_b32 s3, s2, 3')
        a.emit(f's_and_b32 s4, s{S_CU}, 3')
        a.emit('s_lshl2_add_u32 s3, s3, s4')
        a.emit('s_bfe_u32 s4, s2, 0x10002')
        a.emit(f's_lshr_b32 s5, s{S_CU}, 2')
        a.emit('s_lshl1_add_u32 s4, s5, s4')
        a.emit('s_lshl4_add_u32 s3, s3, s4')
        a.emit(f's_and_b32 s4, s{S_WV}, 3')
        a.emit('s_lshl2_add_u32 s3, s3, s4')
        a.emit('s_lshl_b32 s3, s3, 12')
        srd(a, SB, 'ws', WS_XP, 0 if 'fill0' in DBG else 4096)
        if 'fillfl' in DBG:
            srd(a, SB, 'ws0', WS_FL + MB, 4096)
            a.emit('s_and_b32 s3, s3, 0xfffff')
        a.emit(f's_add_u32 s{SB}, s{SB}, s3')
        a.emit(f's_addc_u32 s{SB+1}, s{SB+1}, 0')
        FW_ = int(ENV('FILLW', '2'))
        a.emit(f'v_mul_u32_u24 v29, {4 * FW_}, v1')
        for i in range(4): a.emit(f'v_mov_b32 v{24+i}, -1')
        fill = [f'buffer_store_dword{"x" + str(FW_)} v[24:{23 + FW_}], v29, s[{SB}:{SB+3}], 0 offen' + ('' if 'fillwb' in DBG else ' sc1'), f'v_add_u32 v29, {256 * FW_}, v29']
        assert sides.STV[3] == 0
    a.emit(f's_cmp_lg_u32 s{S_LAYER}, 0')
    a.emit(f's_cbranch_scc1 L_{kind}_ld1')
    post = list(sides.stouch_post(a, kind)) + fill
    TG_ = int(ENV('TLBG', '0'))
    if TG_:
        srd(a, SO, 'ws0', 0, 256 * MB)
        a.emit(f's_and_b32 s3, s{S_WV}, 3')
        a.emit(f's_lshl2_add_u32 s3, s{S_CU}, s3')
        a.emit(f's_lshl_b32 s86, s3, {TG_}')
        tl = [f's_buffer_load_dword s84, s[{SO}:{SO+3}], s86', f's_add_u32 s86, s86, {128 << TG_}']
        if TG_ < 21: post += tl
    extra = tail_parks('wo', SP, lambda b: srd(b, SP, 'wo', 0, 2 * MB))
    sch0 = [int(c) for c in ENV('TSO0', '00000')]
    extra0 = tail_parks('wo', SP, lambda b: srd(b, SP, 'wo', 0, 2 * MB), sch0 + [sum(TSCH['wo']) - sum(sch0)])
    npk = 2 * sum(TSCH['wo']) if XD else 0
    def start():
        sides.cls_touch(a)
        if TG_:
            for x in tl: a.emit(x)
            a.emit(f's_and_b32 s3, s{S_WV}, 3')
            a.emit(f's_lshl2_add_u32 s3, s{S_CU}, s3')
            for w, sz in (('out', 4 * MB), ('wo', 2 * MB), ('w1', 7 * MB), ('b1', 4096), ('b2', 2048)):
                srd(a, SC, w, 0, sz)
                a.emit(f's_mul_i32 s4, s3, {sz // 128}')
                a.emit(f's_buffer_load_dword s84, s[{SC}:{SC+3}], s4')
        if ENV('DX', '2') != '1' or ENV('CLP', 'e') != 's': return 0
        srd(a, ST, 'ws0', WS_XP, LSTR + 4 * MB)
        a.emit('s_and_b32 s3, s2, 3')
        a.emit(f's_and_b32 s4, s{S_CU}, 3')
        a.emit('s_lshl2_add_u32 s3, s3, s4')
        a.emit('s_bfe_u32 s4, s2, 0x10002')
        a.emit(f's_lshr_b32 s5, s{S_CU}, 2')
        a.emit('s_lshl1_add_u32 s4, s5, s4')
        a.emit('s_lshl4_add_u32 s3, s3, s4')
        a.emit(f's_and_b32 s4, s{S_WV}, 3')
        a.emit('s_lshl2_add_u32 s3, s3, s4')
        a.emit('s_lshl_b32 s3, s3, 12')
        a.emit(f's_add_u32 s4, s3, {LSTR}')
        a.emit('v_lshlrev_b32 v2, 4, v1')
        for i in range(4): a.emit(f'v_mov_b32 v{32+i}, -1')
        for i in range(8): a.emit(f'buffer_store_dwordx4 v[32:35], v2, s[{ST}:{ST+3}], s{3+(i>>2)} offen offset:{1024*(i&3)} sc1')
        return 8
    L.run('0', tail_issue=lambda: side(a, 0, 'issue'), ntail_vm=side(Asm(), 0, 'issue'), post=post, start=start, extra=extra0)
    for i in (16, 17):
        if XD:
            for x in extra0(i): a.emit(x)
        a.emit('s_barrier')
    if XD:
        for x in extra0(18): a.emit(x)
    if ONE:
        a.emit(f's_branch L_{kind}_ldend')
    else:
        side(a, 0, 'finish')
        a.emit('s_endpgm')
    a.label(f'L_{kind}_ld1')
    srd(a, ST, 'ws0', WS_ST2, 16 * 16384)
    n1 = side(Asm(), 1, 'issue')
    def tail1():
        stats_loads(a, 32, True)
        side(a, 1, 'issue')
    def final1():
        a.emit(f's_waitcnt vmcnt({n1 + npk})')
        stats_reduce_store(a, 32, LST)
        a.emit('s_waitcnt lgkmcnt(0)')
    L.run('1', tail_issue=tail1, ntail_vm=16 + n1, final=final1, extra=extra, post=fill, dep=(lambda pf: dep_wait(a, kind, halo=True, postf=pf)) if MEGA else None)
    a.emit('s_barrier')
    if not MEGA: side(a, 1, 'finish')
    a.label(f'L_{kind}_ldend')
    loader_end(a, kind, check=False)
    a.label(end)
    a.emit('s_endpgm')
    loader_first(a, kind)
    a(KD.format(name=f'{kind}l0_kernel'))
    if not MEGA:
        stub(a, f'{kind}l1_kernel', body, 1, tsidx + 4, False)
        a(KD.format(name=f'{kind}l1_kernel'))
    a.label(f'L_{kind}_c1')
    return LST + 1280
```

```python
from common import *
LM_WO = int(ENV('LM_WO', '2')); LM_W1 = int(ENV('LM_W1', '3')); LM_W2 = int(ENV('LM_W2', '2')); LM_QKV = int(ENV('LM_QKV', '3'))
PFW2 = int(ENV('PFW2', '0'))
PV = 96

def fin(a):
    a.emit('s_waitcnt vmcnt(0)')

def pf_wo(a):
    L = 1 << (5 - LM_WO)
    sh = 5 - LM_WO
    return pf_weights(a, SP, 'wo', 2 * MB, 2048, 32, sh, L, LM_WO, 128, max(1, (8 << sh) // 64), PV, pair=SPX)

def touch(a, which, size, vd, l0only=True):
    if 'nopf' in DBG: return 0
    per = size // 128 // 1024
    assert per <= 64
    srd(a, SP, which, 0, size)
    a.emit(f's_and_b32 s3, s{S_WV}, 3')
    a.emit('s_lshl_b32 s4, s2, 2')
    a.emit('s_add_u32 s3, s3, s4')
    a.emit(f's_mul_i32 s3, s3, {per * 128}')
    a.emit(f'v_min_u32 v2, {per - 1}, v1')
    a.emit('v_lshlrev_b32 v2, 7, v2')
    if l0only:
        a.emit(f's_sub_u32 s4, s{S_LAYER}, 1')
        a.emit('v_and_b32 v2, s4, v2')
    a.emit(f'buffer_load_dword v{vd}, v2, s[{SP}:{SP+3}], s3 offen')
    return 1

def fill(a):
    if ENV('DX', '2') != '1' or ENV('CLP', 'e') != 't': return 0
    srd(a, SB, 'ws', WS_XP, 4 * MB)
    a.emit('s_and_b32 s3, s2, 3')
    a.emit(f's_and_b32 s4, s{S_CU}, 3')
    a.emit('s_lshl2_add_u32 s3, s3, s4')
    a.emit('s_bfe_u32 s4, s2, 0x10002')
    a.emit(f's_lshr_b32 s5, s{S_CU}, 2')
    a.emit('s_lshl1_add_u32 s4, s5, s4')
    a.emit('s_lshl4_add_u32 s3, s3, s4')
    a.emit(f's_and_b32 s4, s{S_WV}, 3')
    a.emit('s_lshl2_add_u32 s3, s3, s4')
    a.emit('s_lshl_b32 s3, s3, 12')
    a.emit('v_lshlrev_b32 v2, 4, v1')
    for i in range(4): a.emit(f'v_mov_b32 v{24+i}, -1')
    for i in range(4): a.emit(f'buffer_store_dwordx4 v[24:27], v2, s[{SB}:{SB+3}], s3 offen offset:{1024*i} sc1')
    return 4

def qkv(a, layer, phase, npre=0):
    if phase == 'issue':
        n = 0
        if layer == 0:
            srd(a, SC, 'w1', 0, 1024 * 7168)
            a.emit('s_min_u32 s3, s2, 223')
            a.emit('s_mul_i32 s4, s3, 4682')
            a.emit('s_lshr_b32 s4, s4, 16')
            a.emit('s_mul_i32 s5, s4, 14')
            a.emit('s_sub_u32 s3, s3, s5')
            a.emit('s_lshl_b32 s3, s3, 2')
            a.emit(f's_and_b32 s5, s{S_WV}, 3')
            a.emit('s_add_u32 s3, s3, s5')
            a.emit(f's_mul_i32 s5, s4, {64 * 7168}')
            a.emit('s_lshl_b32 s8, s3, 7')
            a.emit('s_add_u32 s5, s5, s8')
            a.emit('s_lshl_b32 s9, s4, 14')
            a.emit('s_lshl_b32 s8, s3, 8')
            a.emit('s_add_u32 s94, s9, s8')
            a.emit('v_lshrrev_b32 v2, 3, v1')
            a.emit('v_mul_u32_u24 v2, 7168, v2')
            a.emit('v_and_b32 v3, 7, v1')
            a.emit('v_lshl_add_u32 v2, v3, 4, v2')
            for j in range(8):
                a.emit(f'buffer_load_dwordx4 v[{64+4*j}:{67+4*j}], v2, s[{SC}:{SC+3}], s5 offen')
                if j < 7: a.emit(f's_add_u32 s5, s5, {8 * 7168}')
            n += 8
            from gemmw2 import zero_flags
            if not ONE: n += zero_flags(a)
            if ENV('TW2') == 'qkv': n += touch(a, 'w2', 3584 * 2048, PV + 2, False)
        if ENV('CLO', '0') == '1': n += fill(a)
        if ENV('PWO', 'v') == 'v': n += pf_wo(a)
        if ENV('CLO', '0') == '0': n += fill(a)
        return n
    if layer == 0:
        a.emit(f's_waitcnt vmcnt({npre})')
        a.emit('s_mov_b32 s7, 0xffff0000')
        for i in range(4):
            a.emit(f'v_lshlrev_b32 v{32+2*i}, 16, v{64+i}')
            a.emit(f'v_and_b32 v{33+2*i}, s7, v{64+i}')
        for j in range(1, 8):
            for i in range(4):
                a.emit(f'v_lshlrev_b32 v40, 16, v{64+4*j+i}')
                a.emit(f'v_and_b32 v41, s7, v{64+4*j+i}')
                a.emit(f'v_pk_add_f32 v[{32+2*i}:{33+2*i}], v[{32+2*i}:{33+2*i}], v[40:41]')
        srd(a, SB, 'ws0', WS_CS, 16 * 16384)
        for i in range(4): a.emit(f'v_permlane32_swap_b32 v{32+i}, v{36+i}')
        for i in range(4): a.emit(f'v_add_f32 v{32+i}, v{32+i}, v{36+i}')
        a.emit('v_and_b32 v2, 7, v1')
        a.emit('v_lshlrev_b32 v2, 5, v2')
        for i in range(2): a.emit(f'v_permlane16_swap_b32 v{32+i}, v{34+i}')
        for i in range(2): a.emit(f'v_add_f32 v{32+i}, v{32+i}, v{34+i}')
        a.emit('v_lshrrev_b32 v3, 4, v1')
        a.emit('v_lshl_add_u32 v2, v3, 3, v2')
        for i in range(2): a.emit(f'v_add_f32_dpp v{32+i}, v{32+i}, v{32+i} row_ror:8 row_mask:0xf bank_mask:0xf')
        a.emit(f'buffer_store_dwordx2 v[32:33], v2, s[{SB}:{SB+3}], s94 offen sc1')
        if ONE and not SPX: a.emit('s_waitcnt vmcnt(0)')
    else:
        fin(a)

def wo(a, phase):
    if phase == 'issue':
        return touch(a, 'w2', 3584 * 2048, PV) if ENV('TW2') == 'wo' else 0
    fin(a)

def stouch(a, which, size, sd, sreg, first, lps, pre=0, per=None):
    if lps == 0: return []
    srd(a, sd, which, 0, size)
    a.emit(f's_cmp_eq_u32 s{S_LAYER}, 0')
    a.emit(f's_cselect_b32 s{sd+2}, s{sd+2}, 0')
    a.emit(f's_and_b32 s3, s{S_WV}, 3')
    a.emit('s_lshl_b32 s4, s2, 2')
    a.emit('s_add_u32 s3, s3, s4')
    a.emit(f's_mul_i32 s{sreg}, s3, {per or size // 1024}')
    if per:
        a.emit(f's_add_u32 s{sreg}, s{sreg}, {first * 64 * 1024}')
        first = 0
    for i in range(pre): a.emit(f's_buffer_load_dword s84, s[{sd}:{sd+3}], s{sreg} offset:{64*(first+i)}')
    return [f's_buffer_load_dword s84, s[{sd}:{sd+3}], s{sreg} offset:{64*(first+pre+i)}' for i in range(lps)] + [f's_add_u32 s{sreg}, s{sreg}, {64*lps}']

STV = [int(x) for x in ENV('STV', '4,0,4,0').split(',')]
def stouch_post(a, kind):
    if ENV('TW2', 's') != 's': return ()
    if kind == 'attn':
        return stouch(a, 'w2', 3584 * 2048, SR, S_T, 0, STV[0], per=14 * 64 * STV[0]) + stouch(a, 'wo', 2 * MB, SB, 86, 0, STV[3], pre=max(0, 32 - 14 * STV[3]))
    if kind == 'wo': return stouch(a, 'w2', 3584 * 2048, SP, S_T, 14 * STV[0], STV[1])
    if kind == 'w1': return stouch(a, 'w2', 3584 * 2048, SP, S_T, 14 * STV[0], STV[2], per=14 * 64 * STV[2])
    if kind == 'w2': return cls_w2(a)
    return ()

def cls_w2(a):
    P = int(ENV('CW2', '8'))
    if P == 0: return ()
    a.emit(f's_and_b32 s3, s{S_WV}, 3')
    a.emit(f's_lshl_b32 s4, s{S_CU}, 2')
    a.emit('s_add_u32 s3, s3, s4')
    a.emit('s_lshl_b32 s4, s3, 6')
    a.emit('s_and_b32 s4, s4, 64')
    a.emit('s_lshr_b32 s3, s3, 1')
    a.emit(f's_lshl_b32 s{S_T}, s3, 11')
    a.emit(f's_add_u32 s{S_T}, s{S_T}, s4')
    a.emit(f's_sub_u32 s4, 384, s{SW}')
    a.emit('s_and_b32 s4, s4, 0x380')
    a.emit(f's_add_u32 s{S_T}, s{S_T}, s4')
    a.emit(f's_lshl_b32 s4, s{S_NT}, 7')
    a.emit('s_and_b32 s4, s4, 1024')
    a.emit(f's_add_u32 s{S_T}, s{S_T}, s4')
    a.emit(f's_add_u32 s{S_T}, s{S_T}, {(30 if VW else 16 * max(1, PFW2) if XD else 4) * 131072}')
    o = [f's_buffer_load_dword s84, s[{SW}:{SW+3}], s{S_T}', f's_add_u32 s{S_T}, s{S_T}, 131072']
    if VW:
        for x in o * (P // 2): a.emit(x)
        return o * 2
    for i in range(P + 1):
        for x in o: a.emit(x)
    return o

def w1(a, phase):
    if phase == 'late' or (phase == 'issue' and ENV('PFL', '2') == '0'):
        NI = PFW2
        if phase == 'late' and ENV('PFL', '2') == '0': return
        if XD and NI: return pf_weights(a, SR, 'w2', 3584 * 2048, 2048, 32 * NI, 3, 8, 2, 128, NI, PV)
        return 0
    if phase == 'issue': return 0
    if not XD: fin(a)

def w2(a, phase):
    return 0

def cls_touch(a):
    m = ENV('CLS', 'w')
    if m == '0': return
    a.emit(f's_and_b32 s3, s{S_WV}, 3')
    a.emit('s_lshl_b32 s4, s2, 2')
    a.emit('s_add_u32 s3, s3, s4')
    a.emit(f's_sub_u32 s4, 384, s{SW}')
    a.emit('s_and_b32 s4, s4, 0x380')
    a.emit('s_mul_i32 s5, s3, 6144')
    a.emit('s_add_u32 s5, s5, s4')
    for j in range(6):
        for h in range(2): a.emit(f's_buffer_load_dword s84, s[{SW}:{SW+3}], s5 offset:{1024*j+64*h}')
    if m == 'wx':
        a.emit(f's_sub_u32 s4, 384, s{SX}')
        a.emit('s_and_b32 s4, s4, 0x380')
        a.emit('s_lshl_b32 s5, s3, 12')
        a.emit('s_add_u32 s5, s5, s4')
        for j in range(4):
            for h in range(2): a.emit(f's_buffer_load_dword s84, s[{SX}:{SX+3}], s5 offset:{1024*j+64*h}')
```

```python
from common import *

T4 = ENV('T4', '1') == '1'
def big_loop(a, tag, N, S, STAGE, naddr, VB, VA, reads, mf, variants=None, select=None, post=None):
    def addr():
        o = [f'v_add_u32_e64 v{VA+i}, s{S_SLOT}, v{VB+i}' for i in range(naddr)]
        o += [f's_add_u32 s{S_SLOT}, s{S_SLOT}, {STAGE}', f's_cmp_eq_u32 s{S_SLOT}, {S*STAGE}', f's_cselect_b32 s{S_SLOT}, 0, s{S_SLOT}']
        return o
    a.emit(f's_mov_b32 s{S_SLOT}, 0')
    for x in addr(): a.emit(x)
    a.emit(f's_mov_b32 s{S_CNT}, {N}')
    gbar(a, tag)
    a.emit('s_barrier')
    stamp(a, 1)
    for x in reads(0, 0): a.emit(x)
    a.emit('s_waitcnt lgkmcnt(0)')
    def loop(nm, m):
        a('.p2align 3')
        a.label(f'L_{tag}_loop{nm}')
        ad = addr()
        ad[-1] += f'\n  s_sub_u32 s{S_CNT}, s{S_CNT}, 1'
        interleave(a, m(0), reads(1, 1) + ad, lead=1, per=1)
        a.emit('s_waitcnt lgkmcnt(0)')
        a.emit('s_barrier')
        interleave(a, m(1), reads(0, 0) + [f's_cmp_lg_u32 s{S_CNT}, 0\n  s_nop 0'], lead=1, per=1)
        a.emit('s_waitcnt lgkmcnt(0)')
        a.emit(f's_cbranch_scc1 L_{tag}_loop{nm}')
    if variants:
        select()
        vs = list(variants.items())
        for i, (nm, m) in enumerate(vs):
            loop(nm, m)
            if i + 1 < len(vs): a.emit(f's_branch L_{tag}_post')
        a.label(f'L_{tag}_post')
        post()
        a.emit(f's_branch L_{tag}_exit')
    loop('', mf)
    a.label(f'L_{tag}_exit')
    stamp(a, 2)

def stats_loads(a, vd, halo):
    a.emit(f's_and_b32 s3, s{S_WV}, 3')
    a.emit(f's_lshl_b32 s4, s{S_MT}, 7')
    a.emit('s_lshl_b32 s5, s3, 6')
    a.emit('s_add_u32 s5, s5, s4')
    a.emit('v_add_u32 v2, s5, v1')
    a.emit('s_sub_u32 s4, s4, 16')
    a.emit('v_and_b32 v3, 15, v1')
    a.emit('v_add_u32 v3, s4, v3')
    a.emit('v_max_i32 v3, 0, v3')
    a.emit('s_cmp_ge_u32 s3, 2')
    a.emit('s_cselect_b64 vcc, -1, 0')
    a.emit('v_cndmask_b32 v2, v2, v3, vcc')
    a.emit('v_lshlrev_b32 v2, 3, v2')
    a.emit('s_mov_b32 s3, 0')
    for j in range(16):
        a.emit(f'buffer_load_dwordx2 v[{vd+2*j}:{vd+2*j+1}], v2, s[{ST}:{ST+3}], s3 offen')
        if j < 15: a.emit('s_add_u32 s3, s3, 16384')
    return 16

def stats_finish(a, vs):
    a.emit(f'v_mul_f32 v{vs}, 0x3a800000, v{vs}')
    a.emit(f'v_mul_f32 v{vs+1}, 0x3a800000, v{vs+1}')
    a.emit(f'v_fma_f32 v{vs+1}, -v{vs}, v{vs}, v{vs+1}')
    a.emit(f'v_max_f32 v{vs+1}, 0, v{vs+1}')
    a.emit(f'v_add_f32 v{vs+1}, 0x3727c5ac, v{vs+1}')
    a.emit(f'v_rsq_f32 v{vs+1}, v{vs+1}')
    a.emit('s_nop 0')

def stats_reduce_store(a, vd, LST):
    for j in range(1, 8):
        a.emit(f'v_add_f32 v{vd}, v{vd}, v{vd+2*j}')
        a.emit(f'v_add_f32 v{vd+1}, v{vd+1}, v{vd+2*j+1}')
        a.emit(f'v_add_f32 v{vd+16}, v{vd+16}, v{vd+16+2*j}')
        a.emit(f'v_add_f32 v{vd+17}, v{vd+17}, v{vd+17+2*j}')
    a.emit(f'v_add_f32 v{vd}, v{vd}, v{vd+16}')
    a.emit(f'v_add_f32 v{vd+1}, v{vd+1}, v{vd+17}')
    stats_finish(a, vd)
    a.emit(f's_and_b32 s3, s{S_WV}, 3')
    a.emit('s_lshl_b32 s5, s3, 6')
    a.emit('s_add_u32 s5, s5, 16')
    a.emit('v_add_u32 v2, s5, v1')
    a.emit('v_and_b32 v3, 15, v1')
    a.emit('s_cmp_ge_u32 s3, 2')
    a.emit('s_cselect_b64 vcc, -1, 0')
    a.emit('v_cndmask_b32 v2, v2, v3, vcc')
    a.emit('v_lshlrev_b32 v2, 2, v2')
    a.emit(f'v_add_u32 v2, {LST}, v2')
    a.emit(f'ds_write2_b32 v2, v{vd}, v{vd+1} offset0:0 offset1:160')

VST, VSH, VCS, VBI = 18, 19, 22, 23
def stats4_setup(a, halo):
    a.emit(f's_and_b32 s3, s{S_WV}, 3')
    a.emit(f's_lshl2_add_u32 s4, s{S_MT}, s3')
    a.emit('s_lshl_b32 s4, s4, 8')
    a.emit('v_lshrrev_b32 v2, 4, v1')
    a.emit('v_and_b32 v3, 15, v1')
    a.emit('v_lshl_add_u32 v3, v3, 4, s4')
    a.emit(f'v_lshl_add_u32 v{VST}, v2, 14, v3')
    if halo:
        a.emit(f's_lshl_b32 s4, s{S_MT}, 5')
        a.emit('s_add_u32 s4, s4, s3')
        a.emit('s_sub_u32 s4, s4, 4')
        a.emit('s_max_i32 s4, s4, 0')
        a.emit('s_lshl_b32 s4, s4, 5')
        a.emit('v_lshrrev_b32 v2, 2, v1')
        a.emit('v_and_b32 v3, 3, v1')
        a.emit('v_lshl_add_u32 v3, v3, 3, s4')
        a.emit(f'v_lshl_add_u32 v{VSH}, v2, 14, v3')

def quad_loads(vd, vo, sd):
    o = []
    for j in range(4):
        if j: o.append(f's_mov_b32 s3, {j << 16}')
        o.append(f'buffer_load_dwordx4 v[{vd+4*j}:{vd+4*j+3}], v{vo}, s[{sd}:{sd+3}], {"s3" if j else 0} offen')
    return o

def stats4_loads(vd, halo):
    return quad_loads(vd, VST, ST) + ([f'buffer_load_dwordx2 v[{vd+16}:{vd+17}], v{VSH}, s[{ST}:{ST+3}], 0 offen'] if halo else [])

def quad_sum(a, vd):
    pk = lambda d, s: a.emit(f'v_pk_add_f32 v[{d}:{d+1}], v[{d}:{d+1}], v[{s}:{s+1}]')
    pk(vd, vd + 4); pk(vd + 2, vd + 6); pk(vd + 8, vd + 12); pk(vd + 10, vd + 14); pk(vd, vd + 8); pk(vd + 2, vd + 10)
    a.emit('s_nop 1')
    a.emit(f'v_permlane32_swap_b32 v{vd}, v{vd+2}')
    a.emit(f'v_permlane32_swap_b32 v{vd+1}, v{vd+3}')
    pk(vd, vd + 2)

def stats4_store(a, vd, LST, halo):
    quad_sum(a, vd)
    def allsum(r, op):
        a.emit(f'v_mov_b32 v{r+2}, v{r}')
        a.emit(f'v_mov_b32 v{r+3}, v{r+1}')
        a.emit('s_nop 0')
        a.emit(f'v_permlane{op}_swap_b32 v{r}, v{r+2}')
        a.emit(f'v_permlane{op}_swap_b32 v{r+1}, v{r+3}')
        a.emit(f'v_pk_add_f32 v[{r}:{r+1}], v[{r}:{r+1}], v[{r+2}:{r+3}]')
    allsum(vd, 16)
    stats_finish(a, vd)
    a.emit(f's_and_b32 s3, s{S_WV}, 3')
    a.emit('s_lshl_b32 s5, s3, 7')
    a.emit(f's_add_u32 s5, s5, {LST + 64}')
    a.emit('v_and_b32 v3, 15, v1')
    a.emit('v_lshrrev_b32 v2, 5, v1')
    a.emit('v_lshl_add_u32 v2, v3, 1, v2')
    a.emit('v_lshl_add_u32 v2, v2, 2, s5')
    a.emit(f'ds_write2_b32 v2, v{vd}, v{vd+1} offset0:0 offset1:160')
    if halo:
        h = vd + 16
        allsum(h, 32); allsum(h, 16)
        for r in (8, 4):
            a.emit('s_nop 1')
            for i in range(2): a.emit(f'v_add_f32_dpp v{h+i}, v{h+i}, v{h+i} row_ror:{r} row_mask:0xf bank_mask:0xf')
        stats_finish(a, h)
        a.emit('s_lshl_b32 s5, s3, 4')
        a.emit(f's_add_u32 s5, s5, {LST}')
        a.emit('v_and_b32 v3, 3, v1')
        a.emit('v_lshl_add_u32 v2, v3, 2, s5')
        a.emit(f'ds_write2_b32 v2, v{h}, v{h+1} offset0:0 offset1:160')

def gen_w1(a, tsidx, side, cs=(16, 16384, 0)):
    kind = 'w1'
    K = 1024; lda2 = 2048; ldw2 = 7168; ldo2 = 7168
    S = 3; LM = int(ENV('LM_W1', '3'))
    STAGE = 16384 + 4 * 8192
    LST = S * STAGE
    LCS = LST + 1280
    N = 16
    body = f'L_{kind}_body'; end = f'L_{kind}_end'
    VB, VA, VO = 4, 20, 12
    F = [32, 80]; ACC = 128
    acc = lambda jn, jm: ACC + (jn * 4 + jm) * 4
    fx = lambda s, jm: F[s] + jm * 4
    fw = lambda s, jn: F[s] + 16 + jn * 4
    a.label(f'L_{kind}_c0')
    if not MEGA: stub(a, f'{kind}l0_kernel', body, 0, tsidx, True)
    a.label(body)
    tile_map(a, LM, end)
    a.emit(f's_cmp_ge_u32 s{S_WV}, 4')
    a.emit(f's_cbranch_scc1 L_{kind}_loader')
    if NV:
        from gemm64y import w2_pre, w2_early
        w2_pre(a)
        tile_map(a, LM, None)
    a.emit(f's_and_b32 s{S_WM}, s{S_WV}, 1')
    a.emit(f's_lshr_b32 s{S_WN}, s{S_WV}, 1')
    a.emit('v_and_b32 v3, 15, v1')
    a.emit('v_lshrrev_b32 v2, 4, v1')
    a.emit(f's_lshl_b32 s8, s{S_WM}, 13')
    a.emit(f'v_lshl_add_u32 v{VB}, v1, 4, s8')
    wbase(a, 13, 17)
    a.emit(f's_lshl_b32 s9, s{S_WN}, 6')
    a.emit('v_xor_b32 v13, s9, v13')
    a.emit(f'v_add_u32 v{VB+1}, 16384, v13')
    a.emit(f'v_xor_b32 v{VB+2}, 32, v{VB+1}')
    a.emit('v_and_b32 v16, 1, v2')
    a.emit('v_lshrrev_b32 v17, 1, v2')
    a.emit('v_bfe_u32 v13, v1, 2, 2')
    a.emit('v_lshl_add_u32 v13, v16, 3, v13')
    a.emit('v_lshl_add_u32 v13, v17, 5, v13')
    a.emit(f'v_xor_b32 v14, s{S_WN}, v16')
    a.emit('v_lshl_add_u32 v13, v13, 1, v14')
    a.emit('v_and_b32 v14, 3, v1')
    a.emit('v_lshl_add_u32 v13, v13, 2, v14')
    a.emit('v_lshlrev_b32 v13, 3, v13')
    a.emit(f'v_add_u32 v{VB+3}, {16384 + 3 * 8192}, v13')
    a.emit(f's_lshl_b32 s8, s{S_MT}, 7')
    a.emit(f's_lshl_b32 s9, s{S_WM}, 6')
    a.emit('s_add_u32 s8, s8, s9')
    a.emit(f's_mul_i32 s8, s8, {ldo2}')
    a.emit('v_lshlrev_b32 v14, 8, v17')
    a.emit('v_lshl_add_u32 v14, v3, 4, v14')
    a.emit('v_add_u32 v14, s8, v14')
    a.emit(f's_lshl_b32 s10, s{S_NT}, 11')
    a.emit(f's_lshl_b32 s9, s{S_WN}, 10')
    a.emit('s_add_u32 s9, s9, s10')
    a.emit(f'v_lshl_add_u32 v{VO}, v16, 9, v14')
    a.emit(f'v_add_u32 v{VO}, s9, v{VO}')
    a.emit(f'v_mul_u32_u24 v16, {16*ldo2}, v16')
    a.emit('s_lshr_b32 s9, s9, 1')
    a.emit(f'v_add3_u32 v{VO+1}, v16, v14, s9')
    a.emit(f's_lshl_b32 s9, s{S_WM}, 8')
    a.emit(f's_add_u32 s9, s9, {LST + 64}')
    a.emit('v_lshl_add_u32 v14, v3, 2, s9')
    a.emit(f's_lshl_b32 s9, s{S_WN}, 7')
    a.emit(f's_add_u32 s9, s9, {LCS}')
    a.emit('v_lshl_add_u32 v15, v2, 4, s9')
    a.emit(f's_lshl_b32 s9, s{S_WN}, 6')
    a.emit(f's_add_u32 s9, s9, {LCS}')
    a.emit('v_lshl_add_u32 v16, v2, 4, s9')
    for i in range(112): a.emit(f'v_mov_b32 v{ACC+i}, 0')
    a.emit('s_waitcnt lgkmcnt(0)')
    srd(a, SO, 'ws', WS_H, 2048 * 7168)
    code_touch(a, 'L_w2_c0', 'L_w2_c1', 192 if SPX else 128)
    def reads(s, ks):
        o = []
        if 'noread' in DBG: return o
        for jm in range(4):
            o.append(f'ds_read_b128 v[{fx(s,jm)}:{fx(s,jm)+3}], v{VA} offset:{jm*2048+ks*1024}')
        for jn in range(7):
            for h in range(2):
                r = fw(s, jn) + 2 * h
                o.append(f'ds_read_b64_tr_b16 v[{r}:{r+1}], v{VA+1+(jn&1 if jn < 6 else 2)} offset:{((jn>>1)*8192+h*512 if jn < 6 else h*256)+ks*4096}')
        return o
    def mf(s):
        o = []
        if 'nomfma' in DBG: return ['s_nop 0']
        for jn, jm in mf_order(7, 4):
            if True:
                c = acc(jn, jm)
                o.append(f'v_mfma_f32_16x16x32_bf16 v[{c}:{c+3}], v[{fw(s,jn)}:{fw(s,jn)+3}], v[{fx(s,jm)}:{fx(s,jm)+3}], v[{c}:{c+3}]')
        return o
    big_loop(a, kind, N, S, STAGE, 4, VB, VA, reads, mf)
    CS = 32; BI = 60; STT = 88; CK = 96; T = 100; D = 108
    for jm in range(4):
        a.emit(f'ds_read2_b32 v[{STT+2*jm}:{STT+2*jm+1}], v14 offset0:{16*jm} offset1:{160+16*jm}')
    for jn in range(7):
        a.emit(f'ds_read_b128 v[{CS+4*jn}:{CS+4*jn+3}], v{15 if jn < 6 else 16} offset:{(jn>>1)*256+(jn&1)*64}')
        a.emit(f'ds_read_b128 v[{BI+4*jn}:{BI+4*jn+3}], v{15 if jn < 6 else 16} offset:{1024+(jn>>1)*256+(jn&1)*64}')
    c0 = -2.0 * 0.7978845608028654 * 1.4426950408889634
    c1 = c0 * 0.044715
    a.emit(f'v_mov_b32 v{CK}, {f2u(c0):#x}')
    a.emit(f'v_mov_b32 v{CK+1}, {f2u(c1):#x}')
    a.emit(f'v_mov_b32 v{CK+2}, 1.0')
    a.emit('s_waitcnt lgkmcnt(0)')
    for jm in range(4):
        a.emit(f'v_mul_f32 v{STT+2*jm}, v{STT+2*jm}, v{STT+2*jm+1}')
    def tile_math(jn, jm, d):
        c = acc(jn, jm)
        seqs = []
        ST2 = f'v[{STT+2*jm}:{STT+2*jm+1}]'
        for q in range(2):
            x = c + 2 * q; t = T + 2 * q + 4 * (jn & 1)
            X = f'v[{x}:{x+1}]'; TT = f'v[{t}:{t+1}]'
            seqs.append([
              f'v_pk_fma_f32 {TT}, v[{CS+4*jn+2*q}:{CS+4*jn+2*q+1}], {ST2}, v[{BI+4*jn+2*q}:{BI+4*jn+2*q+1}] op_sel:[0,0,0] op_sel_hi:[1,0,1] neg_lo:[0,1,0] neg_hi:[0,1,0]',
              f'v_pk_fma_f32 {X}, {X}, {ST2}, {TT} op_sel:[0,1,0] op_sel_hi:[1,1,1]',
              f'v_pk_mul_f32 {TT}, {X}, {X}',
              f'v_pk_fma_f32 {TT}, {TT}, v[{CK}:{CK+1}], v[{CK}:{CK+1}] op_sel:[0,1,0] op_sel_hi:[1,1,0]',
              f'v_pk_mul_f32 {TT}, {TT}, {X}',
              f'v_exp_f32 v{t}, v{t}\n  v_exp_f32 v{t+1}, v{t+1}',
              f'v_pk_add_f32 {TT}, {TT}, v[{CK+2}:{CK+3}] op_sel_hi:[1,0]',
              f'v_rcp_f32 v{t}, v{t}\n  v_rcp_f32 v{t+1}, v{t+1}',
              f'v_pk_mul_f32 {X}, {X}, {TT}',
              f'v_cvt_pk_bf16_f32 v{d+q}, v{x}, v{x+1}'])
        for ia, ib in zip(*seqs):
            a.emit(ia); a.emit(ib)
    cnt = [0]
    def pair(t0, t1, vo, soff, big=False):
        d = D + 4 * (cnt[0] % 4); cnt[0] += 1
        tile_math(*t0, d); tile_math(*t1, d + 2)
        a.emit(f's_add_u32 s3, s10, {soff}' if big else f's_mov_b32 s3, {soff}')
        a.emit('s_nop 0')
        a.emit(f'v_permlane16_swap_b32 v{d}, v{d+2}')
        a.emit(f'v_permlane16_swap_b32 v{d+1}, v{d+3}')
        a.emit(f'buffer_store_dwordx4 v[{d}:{d+3}], v{vo}, s[{SO}:{SO+3}], s3 offen{stf(kind)}')
    pr = lambda p, jm: pair((2 * p, jm), (2 * p + 1, jm), VO, jm * 16 * ldo2 + (46 + 2 * p) * 1024 * (p > 0), p > 0)
    od = lambda jm: pair((6, jm), (6, jm + 1), VO + 1, jm * 16 * ldo2 + 32768)
    order = [lambda jm=jm: pr(0, jm) for jm in range(4)] + [lambda: od(0), lambda: od(2)] + [lambda jm=jm, p=p: pr(p, jm) for jm in range(4) for p in (1, 2)]
    EW = int(ENV('EW', '10'))
    for i, f in enumerate(order):
        f()
        if NV and i + 1 == EX: w2_early(a)
        if EARLY and i + 1 == EW:
            a.emit(f's_waitcnt vmcnt({EW - EARLY // 4})')
            a.emit('s_barrier')
    compute_end(a, kind)
    a.label(f'L_{kind}_loader')
    L = Loader(a, kind, K, lda2, ldw2, [0, f's{S_HD}', 's_add_u32 s4, s4, 128'], 128, S, STAGE, rot=int(ENV('ROT_W1', '0')), xblk=True, half=2048)
    L.setup()
    a.emit('s_waitcnt lgkmcnt(0)')
    srd(a, SX, 'ws', WS_X1, 4 * MB); srd(a, SW, 'w1', 0, 1024 * 7168)
    srd(a, ST, 'ws', WS_ST, 16 * 16384); srd(a, SC, 'ws0', WS_CS, 16 * 16384); srd(a, SB, 'b1', 0, 7168)
    def tail():
        stats_loads(a, 32, False)
        a.emit(f's_lshl_b32 s4, s{S_NT}, 7')
        a.emit(f's_lshl_b32 s5, s{S_WV}, 6')
        a.emit('s_add_u32 s4, s4, s5')
        a.emit(f's_add_u32 s4, s4, {1472 - 256}')
        a.emit(f's_lshl_b32 s5, s{S_NT}, 6')
        a.emit(f's_cmp_eq_u32 s{S_WV}, 4')
        a.emit('s_cselect_b32 s4, s5, s4')
        a.emit('s_lshr_b32 s5, s5, 1')
        a.emit('s_add_u32 s5, s5, 1024')
        a.emit(f's_cmp_eq_u32 s{S_WV}, 7')
        a.emit('s_cselect_b32 s4, s5, s4')
        a.emit('v_add_u32 v3, s4, v1')
        a.emit('v_lshlrev_b32 v2, 2, v3')
        a.emit('v_lshlrev_b32 v3, 1, v3')
        a.emit(f's_mov_b32 s3, {cs[2]}')
        for j in range(16):
            if j < cs[0]:
                a.emit(f'buffer_load_dword v{64+j}, v2, s[{SC}:{SC+3}], s3 offen')
                if j < cs[0] - 1: a.emit(f's_add_u32 s3, s3, {cs[1]}')
            else:
                a.emit(f'v_mov_b32 v{64+j}, 0')
        a.emit(f'buffer_load_ushort v80, v3, s[{SB}:{SB+3}], 0 offen')
        side(a, 'issue')
    ns = side(Asm(), 'issue')
    extra = None
    if VW:
        assert int(ENV('LM_W2', '2')) == 2
        srd(a, SR, 'w2', 0, 3584 * 2048)
        a.emit('s_and_b32 s5, s2, 3')
        a.emit('s_lshl_b32 s5, s5, 2')
        a.emit(f's_and_b32 s6, s{S_CU}, 3')
        a.emit('s_add_u32 s5, s5, s6')
        a.emit('s_and_b32 s6, s2, 4')
        a.emit('s_lshl_b32 s6, s6, 1')
        a.emit(f's_lshr_b32 s7, s{S_CU}, 2')
        a.emit('s_add_u32 s6, s6, s7')
        rot_table(a, S_TB, 5, 6, 'w2')
        a.emit(f's_add_u32 s5, s5, s{S_WV}')
        a.emit('s_and_b32 s5, s5, 3')
        wvoff(a, 16, 5, 6, 2048)
        sched = [int(c) for c in ENV('PSCH', '0111111111111122')]
        assert sum(sched) >= NV1
        def extra(i):
            o = []
            for p in range(sum(sched[:i]), min(NV1, sum(sched[:i + 1]))): o += park(56, 2 * p, 128 + 8 * p, 16, SR)
            return o
        ns += sum(x.startswith('buffer_load') for i in (13, 14, 15) for x in extra(i))
    if XD:
        extra = tail_parks('w2', SR, lambda b: srd(b, SR, 'w2', 0, 3584 * 2048))
        ns += 2 * sum(TSCH['w2'])
    if XD and ENV('PFL', '2') == '3':
        b = Asm(); side(b, 'late'); pl = [l.strip() for l in b.lines]
        pl = [l.replace('v2,', 'v18,').replace(', v2', ', v18').replace('s3', 's93') for l in pl]
        i0 = min(i for i, l in enumerate(pl) if l.startswith('buffer_load'))
        for l in pl[:i0]: a.emit(l)
        st = [int(x) for x in ENV('PFS', '6,10').split(',')]
        extra = lambda i: pl[i0 + 2 * st.index(i):i0 + 2 * st.index(i) + 2] if i in st else []
    def final():
        a.emit(f's_waitcnt vmcnt({ns})')
        if ENV('PFL', '2') == '1': side(a, 'late')
        stats_reduce_store(a, 32, LST)
        for j in range(8): a.emit(f'v_add_f32 v{64+j}, v{64+j}, v{72+j}')
        for j in range(4): a.emit(f'v_add_f32 v{64+j}, v{64+j}, v{68+j}')
        a.emit('v_add_f32 v64, v64, v65')
        a.emit('v_add_f32 v66, v66, v67')
        a.emit('v_add_f32 v64, v64, v66')
        a.emit('v_lshlrev_b32 v80, 16, v80')
        a.emit('v_lshlrev_b32 v2, 2, v0')
        a.emit(f'v_add_u32 v2, {LCS - 1024}, v2')
        a.emit('ds_write_b32 v2, v64')
        a.emit('ds_write_b32 v2, v80 offset:1024')
        a.emit('s_waitcnt lgkmcnt(0)')
    import sides
    if T4:
        stats4_setup(a, False)
        a.emit(f's_lshl_b32 s4, s{S_NT}, 7')
        a.emit(f's_lshl_b32 s5, s{S_WV}, 6')
        a.emit('s_add_u32 s4, s4, s5')
        a.emit(f's_add_u32 s4, s4, {1472 - 256}')
        a.emit(f's_lshl_b32 s5, s{S_NT}, 6')
        a.emit(f's_cmp_eq_u32 s{S_WV}, 4')
        a.emit('s_cselect_b32 s4, s5, s4')
        a.emit('s_lshr_b32 s5, s5, 1')
        a.emit('s_add_u32 s5, s5, 1024')
        a.emit(f's_cmp_eq_u32 s{S_WV}, 7')
        a.emit('s_cselect_b32 s4, s5, s4')
        a.emit('v_and_b32 v3, 15, v1')
        a.emit('v_lshl_add_u32 v3, v3, 2, s4')
        a.emit('v_lshrrev_b32 v2, 4, v1')
        a.emit(f'v_add_lshl_u32 v{VBI}, v3, v2, 1')
        a.emit('v_lshlrev_b32 v3, 2, v3')
        a.emit(f'v_lshl_add_u32 v{VCS}, v2, 14, v3')
        CSI = int(ENV('CSI', '14')); STI = int(ENV('STI', '14'))
        def extra4(i):
            o = []
            if i == CSI: o += quad_loads(64, VCS, SC) + [f'buffer_load_ushort v80, v{VBI}, s[{SB}:{SB+3}], 0 offen']
            if i == STI: o += stats4_loads(32, False)
            return o
        def final4():
            a.emit('s_waitcnt vmcnt(0)')
            stats4_store(a, 32, LST, False)
            quad_sum(a, 64)
            a.emit('v_lshlrev_b32 v80, 16, v80')
            a.emit('s_lshl_b32 s5, s3, 8')
            a.emit(f's_add_u32 s5, s5, {LCS}')
            a.emit('v_permlane16_swap_b32 v64, v65')
            a.emit('v_lshrrev_b32 v2, 4, v1')
            a.emit('v_lshl_add_u32 v2, v3, 2, v2')
            a.emit('v_lshl_add_u32 v2, v2, 2, s5')
            a.emit('v_add_f32 v64, v64, v65')
            a.emit('ds_write2st64_b32 v2, v64, v80 offset0:0 offset1:4')
            a.emit('s_waitcnt lgkmcnt(0)')
        assert ns == 0
        L.run(final=final4, extra=extra4, post=sides.stouch_post(a, kind), dep=lambda pf: dep_wait(a, kind, postf=pf))
    else: L.run(tail_issue=tail, ntail_vm=17 + cs[0] + side(Asm(), 'issue'), final=final, extra=extra, post=sides.stouch_post(a, kind),
          dep=(lambda pf: dep_wait(a, kind, postf=pf)) if MEGA else None)
    if ENV('PFL', '2') == '2': side(a, 'late')
    if not VW: side(a, 'finish')
    loader_end(a, kind)
    a.label(end)
    a.emit('s_endpgm')
    loader_first(a, kind)
    if not MEGA:
        a(KD.format(name=f'{kind}l0_kernel'))
        stub(a, f'{kind}l1_kernel', body, 1, tsidx + 4, False)
        a(KD.format(name=f'{kind}l1_kernel'))
    a.label(f'L_{kind}_c1')
    return LCS + 2048
```

```python
from common import *
from gemmw1 import *

def gen_qkv(a, tsidx, side):
    kind = 'attn'
    K = 1024; lda2 = 2048; ldw2 = 6144
    S = 3; LM = int(ENV('LM_QKV', '3'))
    XH = 16384 + 6 * 4096
    STAGE = XH + 2048
    LST = S * STAGE
    EX = 1024
    N = 16
    body = f'L_{kind}_body'; end = f'L_{kind}_end'
    VB, VA = 4, 10
    VXW, VPE, VPO, VCE, VCO, VVE, VVO, VS1, VS4, VKA, VKB, MAP, MAC, MBP, MBC, VO = range(16, 32)
    M_ODD, M_UPA, M_UPB, M_FA, M_FB = 48, 50, 52, 54, 14
    F = [32, 76]; ACC = 128; HACC = 224; ONES = 236
    acc = lambda jn, jm: ACC + (jn * 4 + jm) * 4
    fx = lambda s, jm: F[s] + jm * 4
    fw = lambda s, jn: F[s] + 20 + jn * 4
    a.label(f'L_{kind}_c0')
    stub(a, f'{kind}l0_kernel', body, 0, tsidx, True)
    a.label(body)
    tile_map(a, LM, end)
    a.emit(f's_cmp_ge_u32 s{S_WV}, 4')
    a.emit(f's_cbranch_scc1 L_{kind}_loader')
    if ENV('CTE', '0') == '1': code_touch(a, 'L_attn_c0', 'L_w2_c1', int(ENV('CTN', '256')))
    a.emit(f's_and_b32 s{S_WM}, s{S_WV}, 1')
    a.emit(f's_lshr_b32 s{S_WN}, s{S_WV}, 1')
    a.emit('v_and_b32 v3, 31, v1')
    a.emit('v_lshlrev_b32 v3, 2, v3')
    a.emit(f'v_add_u32 v3, {XH}, v3')
    for i in range(4): a.emit(f'v_mov_b32 v{ONES+i}, 0x3f803f80')
    a.emit(f'ds_write_b32 v3, v{ONES}')
    a.emit(f'ds_write_b32 v3, v{ONES} offset:{STAGE}')
    a.emit(f'v_add_u32 v3, {2*STAGE}, v3')
    a.emit(f'ds_write_b32 v3, v{ONES}')
    a.emit('v_and_b32 v3, 15, v1')
    a.emit('v_lshrrev_b32 v2, 4, v1')
    a.emit('v_lshrrev_b32 v33, 1, v3')
    a.emit(f's_lshl_b32 s8, s{S_WM}, 13')
    for ks in range(2):
        if ks: a.emit(f'v_add_u32 v{VB+ks}, 4, v2')
        a.emit(f'v_xor_b32 v{VB+ks}, v{VB+ks if ks else 2}, v33')
        a.emit(f'v_lshlrev_b32 v{VB+ks}, 4, v{VB+ks}')
        a.emit(f'v_lshl_add_u32 v{VB+ks}, v3, 7, v{VB+ks}')
        a.emit(f'v_add_u32 v{VB+4+ks}, {XH}, v{VB+ks}')
        a.emit(f'v_add_u32 v{VB+ks}, s8, v{VB+ks}')
    wbase(a, 34, 33)
    a.emit('v_and_b32 v35, 1, v2')
    a.emit(f'v_xor_b32 v35, s{S_WM}, v35')
    a.emit(f's_lshl_b32 s8, s{S_WV}, 5')
    a.emit('v_xor_b32 v34, s8, v34')
    a.emit(f'v_add_u32 v{VB+2}, 16384, v34')
    a.emit(f'v_xor_b32 v{VB+3}, 32, v{VB+2}')
    a.emit(f's_lshl_b32 s8, s{S_MT}, 7')
    a.emit(f's_lshl_b32 s9, s{S_WM}, 6')
    a.emit('s_add_u32 s8, s8, s9')
    a.emit(f's_add_u32 s10, s8, s{S_NT}')
    a.emit('s_lshl_b32 s10, s10, 11')
    a.emit(f's_lshl_b32 s11, s{S_WN}, 10')
    a.emit('s_add_u32 s10, s10, s11')
    a.emit('v_lshl_add_u32 v33, v3, 4, s10')
    a.emit('v_lshl_add_u32 v33, v35, 9, v33')
    a.emit('v_lshrrev_b32 v34, 1, v2')
    a.emit(f'v_lshl_add_u32 v{VO}, v34, 8, v33')
    a.emit(f's_mul_i32 s10, s{S_WN}, {14336 if XD else 24576}')
    a.emit(f's_add_u32 s10, s10, {EX}')
    a.emit(f's_lshl_b32 s11, s{S_WM}, 10')
    a.emit('s_add_u32 s4, s10, s11')
    a.emit('s_sub_u32 s5, s10, s11')
    a.emit(f's_mul_i32 s6, s{S_WM}, 6144')
    a.emit(f'v_lshl_add_u32 v{VXW}, v1, 4, s4')
    a.emit(f'v_add_u32 v{VPE}, s6, v{VXW}')
    a.emit(f'v_lshl_add_u32 v{VPO}, v1, 4, s5')
    a.emit(f'v_add_u32 v{VPO}, s6, v{VPO}')
    a.emit(f'v_lshl_add_u32 v{VCE}, v2, 8, s4')
    a.emit(f'v_lshl_add_u32 v{VCO}, v2, 8, s5')
    a.emit(f'v_lshl_add_u32 v{VVE}, v3, 4, s4')
    a.emit(f'v_lshl_add_u32 v{VVO}, v3, 4, s5')
    a.emit(f's_lshl_b32 s10, s{S_WM}, 8')
    a.emit(f's_add_u32 s10, s10, {LST}')
    a.emit(f'v_lshl_add_u32 v{VS1}, v3, 2, s10')
    a.emit(f'v_lshl_add_u32 v{VS4}, v2, 4, s10')
    a.emit('v_and_b32 v33, 1, v3')
    a.emit(f'v_cmp_eq_u32 s[{M_ODD}:{M_ODD+1}], 1, v33')
    a.emit('v_lshl_add_u32 v34, v2, 2, v33')
    a.emit('v_add_u32 v35, 2, v34')
    a.emit(f'v_cmp_gt_u32 s[{M_UPA}:{M_UPA+1}], v34, v3')
    a.emit(f'v_cmp_gt_u32 s[{M_UPB}:{M_UPB+1}], v35, v3')
    a.emit('v_mov_b32 v36, 0xffff')
    a.emit('v_mov_b32 v37, 0xffff0000')
    a.emit(f'v_cndmask_b32 v36, v36, v37, s[{M_ODD}:{M_ODD+1}]')
    a.emit(f's_add_u32 s10, s10, {640 + 64}')
    a.emit('v_lshl_add_u32 v34, v34, 2, s10')
    a.emit('v_lshl_add_u32 v35, v35, 2, s10')
    a.emit('v_subrev_u32 v38, 64, v34')
    a.emit('v_subrev_u32 v39, 64, v35')
    a.emit(f'v_cndmask_b32 v{VKA}, v34, v38, s[{M_UPA}:{M_UPA+1}]')
    a.emit(f'v_cndmask_b32 v{VKB}, v35, v39, s[{M_UPB}:{M_UPB+1}]')
    a.emit(f'v_cndmask_b32 v{MAP}, 0, v36, s[{M_UPA}:{M_UPA+1}]')
    a.emit(f'v_cndmask_b32 v{MBP}, 0, v36, s[{M_UPB}:{M_UPB+1}]')
    a.emit(f'v_xor_b32 v{MAC}, v{MAP}, v36')
    a.emit(f'v_xor_b32 v{MBC}, v{MBP}, v36')
    a.emit('s_cmp_eq_u32 s8, 0')
    a.emit(f's_cselect_b64 s[{M_FA}:{M_FA+1}], s[{M_UPA}:{M_UPA+1}], 0')
    a.emit(f's_cselect_b64 s[{M_FB}:{M_FB+1}], s[{M_UPB}:{M_UPB+1}], 0')
    for i in list(range(120, 236)) + ([] if XD else list(range(240, 256))): a.emit(f'v_mov_b32 v{i}, 0')
    a.emit('s_waitcnt lgkmcnt(0)')
    srd(a, SO, 'ws', WS_O, 4 * MB)
    clear_flags(a, 0)
    if ENV('CTE', '0') == '0': code_touch(a, 'L_attn_c0', 'L_w2_c1', int(ENV('CTN', '256')))
    CLQ = ENV('DX', '2') == '1' and ENV('CLP', 'e') == 'q'
    if CLQ:
        srd(a, ST, 'ws', WS_XP, 4 * MB)
        a.emit(f's_or_b32 s{ST+1}, s{ST+1}, 0x100000')
        a.emit(f's_mov_b32 s{ST+3}, 0x00800000')
        a.emit('s_and_b32 s3, s2, 3')
        a.emit(f's_and_b32 s4, s{S_CU}, 3')
        a.emit('s_lshl2_add_u32 s3, s3, s4')
        a.emit('s_bfe_u32 s4, s2, 0x10002')
        a.emit(f's_lshr_b32 s5, s{S_CU}, 2')
        a.emit('s_lshl1_add_u32 s4, s5, s4')
        a.emit('s_lshl4_add_u32 s3, s3, s4')
        a.emit(f's_lshl2_add_u32 s3, s3, s{S_WV}')
        a.emit(f's_lshl_b32 s{S_T}, s3, 12')
        for i in range(4): a.emit(f'v_mov_b32 v{116+i}, -1')
    def warm():
        a.emit(f's_cmp_lg_u32 s{S_LAYER}, 0')
        a.emit(f's_cbranch_scc1 L_{kind}_nowarm')
        a.emit('s_lshl_b32 s3, s2, 2')
        a.emit(f's_add_u32 s3, s3, s{S_WV}')
        srd(a, SX, 'xs', 0, 4 * MB); srd(a, SW, 'wqkv', 0, 6 * MB)
        a.emit('v_min_u32 v126, 31, v1')
        a.emit('v_min_u32 v127, 47, v1')
        a.emit('v_lshlrev_b32 v126, 7, v126')
        a.emit('v_lshlrev_b32 v127, 7, v127')
        a.emit('s_lshl_b32 s4, s3, 12')
        a.emit(f's_mul_i32 s5, s3, {48 * 128}')
        a.emit(f'buffer_load_dword v2, v126, s[{SX}:{SX+3}], s4 offen')
        a.emit(f'buffer_load_dword v3, v127, s[{SW}:{SW+3}], s5 offen')
        a.emit('v_mov_b32 v126, 0')
        a.emit('v_mov_b32 v127, 0')
        a.label(f'L_{kind}_nowarm')
    WARM = ENV('WARM', '0')
    if WARM == '1': warm()
    def reads(s, ks):
        o = []
        if 'noread' in DBG: return o
        for jm in range(4):
            o.append(f'ds_read_b128 v[{fx(s,jm)}:{fx(s,jm)+3}], v{VA+ks} offset:{jm*2048}')
        o.append(f'ds_read_b128 v[{fx(s,4)}:{fx(s,4)+3}], v{VA+4+ks}')
        for jn in range(6):
            for h in range(2):
                r = fw(s, jn) + 2 * h
                o.append(f'ds_read_b64_tr_b16 v[{r}:{r+1}], v{VA+2+(jn&1)} offset:{(jn>>1)*8192+ks*4096+h*512}')
        return o
    def mfma(c, x, y, cin=None):
        return f'v_mfma_f32_16x16x32_bf16 v[{c}:{c+3}], v[{x}:{x+3}], v[{y}:{y+3}], ' + (f'v[{c}:{c+3}]' if cin is None else cin)
    def mf(s):
        o = []
        if 'nomfma' in DBG: return ['s_nop 0']
        for jn, jm in mf_order(6, 5, lambda jn, jm: jm == 4 and jn & 1):
            if True:
                c = acc(jn, jm) if jm < 4 else HACC + (jn >> 1) * 4
                o.append(mfma(c, fw(s, jn), fx(s, jm)) if jn < 4 else mfma(c, fx(s, jm), fw(s, jn)))
        return o
    SA = [(240, 244), (248, 252), (120, 124)]
    def mfv(hh):
        def f(s):
            o = mf(s)
            ex = []
            for i, jm in enumerate([2 * hh, 2 * hh + 1] + ([4] if hh == 0 else [])):
                ex.append(mfma(SA[i][0], ONES, fx(s, jm)))
                ex.append(mfma(SA[i][1], fx(s, jm), fx(s, jm)))
            return o if 'nostat' in DBG else ex + o
        return f
    def select():
        if CLQ:
            for i in range(4): a.emit(f'buffer_store_dwordx4 v[116:119], off, s[{ST}:{ST+3}], s{S_T} offset:{1024*i} sc1')
        if WARM == '2': warm(); a.emit('s_nop 1')
        a.emit(f's_cmp_lg_u32 s{S_LAYER}, 0')
        a.emit(f's_cbranch_scc1 L_{kind}_loop')
        if XD:
            for i in range(240, 256): a.emit(f'v_mov_b32 v{i}, 0')
        a.emit(f's_cmp_lg_u32 s{S_WN}, 0')
        a.emit(f's_cbranch_scc1 L_{kind}_loopb')
        clear_flags(a, 1, 4 if CLQ else 0)
    def post():
        a.emit('v_and_b32 v32, 3, v1')
        a.emit('v_cmp_eq_u32 s[4:5], 1, v32')
        a.emit('v_cmp_eq_u32 s[6:7], 2, v32')
        a.emit('v_cmp_eq_u32 s[8:9], 3, v32')
        a.emit('v_bfe_u32 v33, v1, 2, 2')
        a.emit('v_lshrrev_b32 v34, 4, v1')
        a.emit('v_cmp_eq_u32 s[10:11], v33, v34')
        a.emit(f's_lshl_b32 s3, s{S_WN}, 7')
        a.emit(f'v_add_u32 v35, s3, v{VS1}')
        a.emit('v_and_b32 v36, 15, v1')
        a.emit(f's_cmp_eq_u32 s{S_WV}, 0')
        a.emit('s_cselect_b32 s3, 0, 576')
        a.emit(f's_add_u32 s3, s3, {LST}')
        a.emit('v_lshl_add_u32 v36, v36, 2, s3')
        for (sm, sq) in SA:
            a.emit(f'v_cndmask_b32 v{sm+1}, v{sq}, v{sq+1}, s[4:5]')
        for (sm, sq) in SA:
            a.emit(f'v_cndmask_b32 v{sm+1}, v{sm+1}, v{sq+2}, s[6:7]')
        for (sm, sq) in SA:
            a.emit(f'v_cndmask_b32 v{sm+1}, v{sm+1}, v{sq+3}, s[8:9]')
        for (sm, sq) in SA: stats_finish(a, sm)
        a.emit('s_mov_b64 exec, s[10:11]')
        a.emit(f'ds_write2_b32 v35, v{SA[0][0]}, v{SA[0][0]+1} offset0:16 offset1:176')
        a.emit(f'ds_write2_b32 v35, v{SA[1][0]}, v{SA[1][0]+1} offset0:32 offset1:192')
        a.emit(f'ds_write2_b32 v36, v{SA[2][0]}, v{SA[2][0]+1} offset0:0 offset1:160')
        a.emit('s_mov_b64 exec, -1')
        if XD:
            assert int(ENV('LM_WO', '2')) == 2 and int(ENV('LM_W2', '2')) == 2
            srd(a, SX, 'A_x', 0, 4 * MB)
            a.emit('s_and_b32 s3, s2, 3')
            a.emit(f's_and_b32 s4, s{S_CU}, 3')
            a.emit('s_lshl2_add_u32 s3, s3, s4')
            a.emit(f's_lshl2_add_u32 s3, s3, s{S_WV}')
            a.emit('s_lshl_b32 s3, s3, 16')
            a.emit('s_bfe_u32 s4, s2, 0x10002' if SPX else 's_and_b32 s4, s2, 4')
            a.emit(f's_lshr_b32 s5, s{S_CU}, 2')
            a.emit('s_lshl1_add_u32 s4, s5, s4' if SPX else 's_lshl1_add_u32 s4, s4, s5')
            a.emit('s_lshl_b32 s4, s4, 7')
            a.emit('s_add_u32 s3, s3, s4')
            a.emit('s_add_u32 s4, s3, 32768')
            a.emit('v_and_b32 v32, 15, v1')
            a.emit('v_lshlrev_b32 v33, 1, v1')
            a.emit('v_and_b32 v33, 32, v33')
            a.emit('v_lshl_add_u32 v32, v32, 11, v33')
            a.emit('v_lshrrev_b32 v33, 1, v1')
            a.emit('v_and_b32 v33, 16, v33')
            a.emit('v_add_u32 v32, v32, v33')
        a.emit('s_waitcnt lgkmcnt(0)')
        if XD:
            for i in range(4):
                a.emit(f'buffer_load_dwordx4 v[{240+4*i}:{243+4*i}], v32, s[{SX}:{SX+3}], s{3+(i>>1)} offen offset:{64*(i&1)}')
        a.emit('s_barrier')
    big_loop(a, kind, N, S, STAGE, 6, VB, VA, reads, mf, variants={'a': mfv(0), 'b': mfv(1)}, select=select, post=post)
    PR = 32
    CS = 48
    CV = 64
    MS = 66
    RK = 76
    M4 = 84
    R4 = 104
    VV = [4 if XD else 240, 224]
    for b in range(5):
        a.emit(f'ds_read2_b32 v[{MS+2*b}:{MS+2*b+1}], v{VS1} offset0:{16*b} offset1:{160+16*b}')
    for p in range(2):
        a.emit(f'ds_read2_b32 v[{RK+2*p}:{RK+2*p+1}], v{VKA} offset0:{32*p} offset1:{32*p+16}')
        a.emit(f'ds_read2_b32 v[{RK+4+2*p}:{RK+5+2*p}], v{VKB} offset0:{32*p} offset1:{32*p+16}')
    for c in range(3):
        a.emit(f'ds_write_b128 v{VXW}, v[{HACC+4*c}:{HACC+4*c+3}] offset:{2048*c}')
    a.emit(f's_cmp_eq_u32 s{S_WM}, 1')
    a.emit(f's_cbranch_scc1 L_{kind}_nop3')
    for t in range(2, 6):
        a.emit(f'ds_write_b128 v{VXW}, v[{acc(t,3)}:{acc(t,3)+3}] offset:{6144+1024*t}')
    a.label(f'L_{kind}_nop3')
    for b in range(5):
        a.emit(f'ds_read_b128 v[{M4+4*b}:{M4+4*b+3}], v{VS4} offset:{64*b}')
        a.emit(f'ds_read_b128 v[{R4+4*b}:{R4+4*b+3}], v{VS4} offset:{640+64*b}')
    a.emit('s_waitcnt lgkmcnt(10)')
    a.emit('s_barrier')
    for t in range(4):
        a.emit(f'ds_read_b128 v[{CS+4*t}:{CS+4*t+3}], v{VCO if t&1 else VCE} offset:{1024*t}')
    for t in range(2):
        a.emit(f'ds_read_b32 v{CV+t}, v{VVO if t else VVE} offset:{4096+1024*t}')
    for t in range(4):
        a.emit(f'ds_read_b128 v[{PR+4*t}:{PR+4*t+3}], v{VPO if t&1 else VPE} offset:{2048+1024*t}')
    sc = 32 ** -0.5 * 1.4426950408889634
    for b in range(4):
        a.emit(f'v_mul_f32 v{MS+2*b+3}, {f2u(sc):#x}, v{MS+2*b+3}')
    for b in range(4):
        a.emit(f'v_mul_f32 v{RK+b}, v{RK+b}, v{MS+2*b+3}')
        a.emit(f'v_mul_f32 v{RK+4+b}, v{RK+4+b}, v{MS+2*b+3}')
    a.emit('s_waitcnt lgkmcnt(6)')
    def qk(x, y, cs, b, d):
        m = f'v[{MS+2*b}:{MS+2*b+1}]'
        for (z, c) in ((x, cs), (y, cs + 4)):
            for h in range(2):
                a.emit(f'v_pk_fma_f32 v[{z+2*h}:{z+2*h+1}], v[{c+2*h}:{c+2*h+1}], {m}, v[{z+2*h}:{z+2*h+1}] op_sel:[0,0,0] op_sel_hi:[1,0,1] neg_lo:[0,1,0] neg_hi:[0,1,0]')
        a.emit(f'v_cvt_pk_bf16_f32 v{d}, v{x}, v{x+1}')
        a.emit(f'v_cvt_pk_bf16_f32 v{d+1}, v{x+2}, v{x+3}')
        a.emit(f'v_cvt_pk_bf16_f32 v{d+2}, v{y}, v{y+1}')
        a.emit(f'v_cvt_pk_bf16_f32 v{d+3}, v{y+2}, v{y+3}')
    Q = lambda b: acc(0, b); Kf = lambda b: acc(2, b) if b >= 0 else PR
    Sc = lambda b: acc(1, b); Sp = lambda b: acc(3, b)
    for b in range(4):
        qk(acc(0, b), acc(1, b), CS, b + 1, Q(b))
        qk(acc(2, b), acc(3, b), CS + 8, b + 1, Kf(b))
        if b == 3:
            a.emit('s_waitcnt lgkmcnt(0)')
            qk(PR, PR + 4, CS + 8, 0, PR)
        if b >= 1:
            a.emit(mfma(Sc(b - 1), Kf(b - 1), Q(b - 1), '0'))
            if b >= 2: a.emit(mfma(Sp(b - 1), Kf(b - 2), Q(b - 1), '0'))
    a.emit(mfma(Sc(3), Kf(3), Q(3), '0'))
    a.emit(mfma(Sp(3), Kf(2), Q(3), '0'))
    a.emit(mfma(Sp(0), Kf(-1), Q(0), '0'))
    def vconv(x, t, b):
        cv = f'v[{CV}:{CV+1}]'
        for h in range(2):
            a.emit(f'v_pk_fma_f32 v[{x+2*h}:{x+2*h+1}], v[{M4+4*b+2*h}:{M4+4*b+2*h+1}], {cv}, v[{x+2*h}:{x+2*h+1}] op_sel:[0,{t},0] op_sel_hi:[1,{t},1] neg_lo:[1,0,0] neg_hi:[1,0,0]')
        for h in range(2):
            a.emit(f'v_pk_mul_f32 v[{x+2*h}:{x+2*h+1}], v[{x+2*h}:{x+2*h+1}], v[{R4+4*b+2*h}:{R4+4*b+2*h+1}]')
        for h in range(2):
            a.emit(f'v_cvt_pk_bf16_f32 v{VV[t]+2*b+h}, v{x+2*h}, v{x+2*h+1}')
    for t in range(2):
        vconv(PR + 8 + 4 * t, t, 0)
        for b in range(4): vconv(acc(4 + t, b), t, b + 1)
    T = lambda b: 32 + 4 * b
    odd = f's[{M_ODD}:{M_ODD+1}]'
    for b in (1, 2, 3, 0):
        a.emit(f'v_cndmask_b32 v{Sc(b)}, v{Sc(b)}, v{Sc(b)+1}, {odd}')
        a.emit(f'v_cndmask_b32 v{Sp(b)}, v{Sp(b)}, v{Sp(b)+1}, {odd}')
        a.emit(f'v_cndmask_b32 v{Sc(b)+2}, v{Sc(b)+2}, v{Sc(b)+3}, {odd}')
        a.emit(f'v_cndmask_b32 v{Sp(b)+2}, v{Sp(b)+2}, v{Sp(b)+3}, {odd}')
        a.emit(f'v_cndmask_b32 v{T(b)}, v{Sc(b)}, v{Sp(b)}, s[{M_UPA}:{M_UPA+1}]')
        a.emit(f'v_cndmask_b32 v{T(b)+1}, v{Sc(b)+2}, v{Sp(b)+2}, s[{M_UPB}:{M_UPB+1}]')
        a.emit(f'v_mul_f32 v{T(b)}, v{T(b)}, v{RK+b}')
        a.emit(f'v_mul_f32 v{T(b)+1}, v{T(b)+1}, v{RK+4+b}')
    a.emit(f'v_mov_b32 v48, {f2u(-1e9 * 1.4426950408889634):#x}')
    a.emit(f'v_cndmask_b32 v{T(0)}, v{T(0)}, v48, s[{M_FA}:{M_FA+1}]')
    a.emit(f'v_cndmask_b32 v{T(0)+1}, v{T(0)+1}, v48, s[{M_FB}:{M_FB+1}]')
    for b in range(4): a.emit(f'v_max_f32 v{T(b)+2}, v{T(b)}, v{T(b)+1}')
    for op in ('32', '16'):
        for b in range(4): a.emit(f'v_mov_b32 v{T(b)+3}, v{T(b)+2}')
        for b in range(4): a.emit(f'v_permlane{op}_swap_b32 v{T(b)+2}, v{T(b)+3}')
        for b in range(4): a.emit(f'v_max_f32 v{T(b)+2}, v{T(b)+2}, v{T(b)+3}')
    for b in range(4):
        a.emit(f'v_sub_f32 v{T(b)}, v{T(b)}, v{T(b)+2}')
        a.emit(f'v_sub_f32 v{T(b)+1}, v{T(b)+1}, v{T(b)+2}')
    for b in range(4):
        a.emit(f'v_exp_f32 v{T(b)}, v{T(b)}')
        a.emit(f'v_exp_f32 v{T(b)+1}, v{T(b)+1}')
    P = lambda b: acc(0, b)
    for b in range(4):
        a.emit(f'v_cvt_pk_bf16_f32 v{T(b)}, v{T(b)}, v{T(b)}')
        a.emit(f'v_cvt_pk_bf16_f32 v{T(b)+1}, v{T(b)+1}, v{T(b)+1}')
        a.emit(f'v_and_b32 v{P(b)}, v{T(b)}, v{MAP}')
        a.emit(f'v_and_b32 v{P(b)+1}, v{T(b)+1}, v{MBP}')
        a.emit(f'v_and_b32 v{P(b)+2}, v{T(b)}, v{MAC}')
        a.emit(f'v_and_b32 v{P(b)+3}, v{T(b)+1}, v{MBC}')
        if b >= 1:
            q = b - 1
            a.emit(mfma(acc(1, q), ONES, P(q), '0'))
            a.emit(mfma(acc(4, q), VV[0] + 2 * q, P(q), '0'))
            a.emit(mfma(acc(5, q), VV[1] + 2 * q, P(q), '0'))
    q = 3
    a.emit(mfma(acc(1, q), ONES, P(q), '0'))
    a.emit(mfma(acc(4, q), VV[0] + 2 * q, P(q), '0'))
    a.emit(mfma(acc(5, q), VV[1] + 2 * q, P(q), '0'))
    for b in range(4):
        r = acc(1, b); d = 48 + 4 * b
        a.emit(f'v_rcp_f32 v{r}, v{r}')
        a.emit(f's_mov_b32 s3, {b * 16 * 2048}')
        for t in range(2):
            x = acc(4 + t, b)
            for h in range(2):
                a.emit(f'v_pk_mul_f32 v[{x+2*h}:{x+2*h+1}], v[{x+2*h}:{x+2*h+1}], v[{r}:{r+1}] op_sel_hi:[1,0]')
        for t in range(2):
            x = acc(4 + t, b)
            for h in range(2):
                a.emit(f'v_cvt_pk_bf16_f32 v{d+2*t+h}, v{x+2*h}, v{x+2*h+1}')
        a.emit('s_nop 1')
        a.emit(f'v_permlane16_swap_b32 v{d}, v{d+2}')
        a.emit(f'v_permlane16_swap_b32 v{d+1}, v{d+3}')
        a.emit(f'buffer_store_dwordx4 v[{d}:{d+3}], v{VO}, s[{SO}:{SO+3}], s3 offen{stf(kind)}')
    compute_end(a, kind)
    a.label(f'L_{kind}_loader')
    L = Loader(a, kind, K, lda2, ldw2, [0, 2048, 4096], 128, S, STAGE, halo=XH, rot=int(ENV('ROT_QKV', '0')))
    L.setup()
    a.emit('s_waitcnt lgkmcnt(0)')
    srd_xs(a, SX); srd(a, SW, 'wqkv', 0, 1024 * 6144)
    import sides
    fill = []
    if ENV('DX', '2') == '1' and ENV('CLP', 'e') == 'l':
        a.emit('s_and_b32 s3, s2, 3')
        a.emit(f's_and_b32 s4, s{S_CU}, 3')
        a.emit('s_lshl2_add_u32 s3, s3, s4')
        a.emit('s_bfe_u32 s4, s2, 0x10002')
        a.emit(f's_lshr_b32 s5, s{S_CU}, 2')
        a.emit('s_lshl1_add_u32 s4, s5, s4')
        a.emit('s_lshl4_add_u32 s3, s3, s4')
        a.emit(f's_and_b32 s4, s{S_WV}, 3')
        a.emit('s_lshl2_add_u32 s3, s3, s4')
        a.emit('s_lshl_b32 s3, s3, 12')
        srd(a, SB, 'ws', WS_XP, 0 if 'fill0' in DBG else 4096)
        if 'fillfl' in DBG:
            srd(a, SB, 'ws0', WS_FL + MB, 4096)
            a.emit('s_and_b32 s3, s3, 0xfffff')
        a.emit(f's_add_u32 s{SB}, s{SB}, s3')
        a.emit(f's_addc_u32 s{SB+1}, s{SB+1}, 0')
        FW_ = int(ENV('FILLW', '2'))
        a.emit(f'v_mul_u32_u24 v29, {4 * FW_}, v1')
        for i in range(4): a.emit(f'v_mov_b32 v{24+i}, -1')
        fill = [f'buffer_store_dword{"x" + str(FW_)} v[24:{23 + FW_}], v29, s[{SB}:{SB+3}], 0 offen' + ('' if 'fillwb' in DBG else ' sc1'), f'v_add_u32 v29, {256 * FW_}, v29']
        assert sides.STV[3] == 0
    a.emit(f's_cmp_lg_u32 s{S_LAYER}, 0')
    a.emit(f's_cbranch_scc1 L_{kind}_ld1')
    post = list(sides.stouch_post(a, kind)) + fill
    TG_ = int(ENV('TLBG', '0'))
    if TG_:
        srd(a, SO, 'ws0', 0, 256 * MB)
        a.emit(f's_and_b32 s3, s{S_WV}, 3')
        a.emit(f's_lshl2_add_u32 s3, s{S_CU}, s3')
        a.emit(f's_lshl_b32 s86, s3, {TG_}')
        tl = [f's_buffer_load_dword s84, s[{SO}:{SO+3}], s86', f's_add_u32 s86, s86, {128 << TG_}']
        if TG_ < 21: post += tl
    extra = tail_parks('wo', SP, lambda b: srd(b, SP, 'wo', 0, 2 * MB))
    sch0 = [int(c) for c in ENV('TSO0', '00000')]
    extra0 = tail_parks('wo', SP, lambda b: srd(b, SP, 'wo', 0, 2 * MB), sch0 + [sum(TSCH['wo']) - sum(sch0)])
    npk = 2 * sum(TSCH['wo']) if XD else 0
    def start():
        sides.cls_touch(a)
        if TG_:
            for x in tl: a.emit(x)
            a.emit(f's_and_b32 s3, s{S_WV}, 3')
            a.emit(f's_lshl2_add_u32 s3, s{S_CU}, s3')
            for w, sz in (('out', 4 * MB), ('wo', 2 * MB), ('w1', 7 * MB), ('b1', 4096), ('b2', 2048)):
                srd(a, SC, w, 0, sz)
                a.emit(f's_mul_i32 s4, s3, {sz // 128}')
                a.emit(f's_buffer_load_dword s84, s[{SC}:{SC+3}], s4')
        if ENV('DX', '2') != '1' or ENV('CLP', 'e') != 's': return 0
        srd(a, ST, 'ws0', WS_XP, LSTR + 4 * MB)
        a.emit('s_and_b32 s3, s2, 3')
        a.emit(f's_and_b32 s4, s{S_CU}, 3')
        a.emit('s_lshl2_add_u32 s3, s3, s4')
        a.emit('s_bfe_u32 s4, s2, 0x10002')
        a.emit(f's_lshr_b32 s5, s{S_CU}, 2')
        a.emit('s_lshl1_add_u32 s4, s5, s4')
        a.emit('s_lshl4_add_u32 s3, s3, s4')
        a.emit(f's_and_b32 s4, s{S_WV}, 3')
        a.emit('s_lshl2_add_u32 s3, s3, s4')
        a.emit('s_lshl_b32 s3, s3, 12')
        a.emit(f's_add_u32 s4, s3, {LSTR}')
        a.emit('v_lshlrev_b32 v2, 4, v1')
        for i in range(4): a.emit(f'v_mov_b32 v{32+i}, -1')
        for i in range(8): a.emit(f'buffer_store_dwordx4 v[32:35], v2, s[{ST}:{ST+3}], s{3+(i>>2)} offen offset:{1024*(i&3)} sc1')
        return 8
    L.run('0', tail_issue=lambda: side(a, 0, 'issue'), ntail_vm=side(Asm(), 0, 'issue'), post=post, start=start, extra=extra0, tail_late=int(ENV('TL0', '0')))
    for i in (16, 17):
        if XD:
            for x in extra0(i): a.emit(x)
        a.emit('s_barrier')
    if XD:
        for x in extra0(18): a.emit(x)
    if ONE:
        a.emit(f's_branch L_{kind}_ldend')
    else:
        side(a, 0, 'finish')
        a.emit('s_endpgm')
    a.label(f'L_{kind}_ld1')
    srd(a, ST, 'ws0', WS_ST2, 16 * 16384)
    n1 = side(Asm(), 1, 'issue')
    def tail1():
        stats_loads(a, 32, True)
        side(a, 1, 'issue')
    def final1():
        a.emit(f's_waitcnt vmcnt({n1 + npk})')
        stats_reduce_store(a, 32, LST)
        a.emit('s_waitcnt lgkmcnt(0)')
    if T4:
        stats4_setup(a, True)
        TL1 = int(ENV('TL1', '0'))
        def final4():
            a.emit(f"s_waitcnt vmcnt({n1 if int(ENV('STQ', '14')) < 13 + TL1 < 15 else 0})")
            stats4_store(a, 32, LST, True)
            a.emit('s_waitcnt lgkmcnt(0)')
        L.run('1', tail_issue=lambda: side(a, 1, 'issue'), ntail_vm=n1, tail_late=TL1, final=final4, extra=lambda i: stats4_loads(32, True) if i == int(ENV('STQ', '14')) else [],
              post=fill, dep=lambda pf: dep_wait(a, kind, halo=True, postf=pf))
    else: L.run('1', tail_issue=tail1, ntail_vm=16 + n1, final=final1, extra=extra, post=fill, dep=(lambda pf: dep_wait(a, kind, halo=True, postf=pf)) if MEGA else None)
    a.emit('s_barrier')
    if not MEGA: side(a, 1, 'finish')
    a.label(f'L_{kind}_ldend')
    loader_end(a, kind, check=False)
    a.label(end)
    a.emit('s_endpgm')
    loader_first(a, kind)
    a(KD.format(name=f'{kind}l0_kernel'))
    if not MEGA:
        stub(a, f'{kind}l1_kernel', body, 1, tsidx + 4, False)
        a(KD.format(name=f'{kind}l1_kernel'))
    a.label(f'L_{kind}_c1')
    return LST + 1280
```

```python
import sys, os, struct
sys.path.insert(0, os.path.join(os.path.dirname(os.path.abspath(__file__)), '..'))
from asmlib import Asm, check_offsets
MB = 1 << 20
WSB = int(os.environ.get('WSB', '0')) * MB
WS_O   = WSB
WS_X1  = WSB + 4 * MB
WS_H   = WSB + 8 * MB
WS_ST  = WSB + 23 * MB
WS_CS  = WSB + 23 * MB + 512 * 1024
WS_TS  = 60 * MB
MEGA = os.environ.get('MEGA', '2') in ('1', '2')
ONE = os.environ.get('MEGA', '2') == '2'
LSTR = 64 * MB
WS_ST2 = WS_ST + 256 * 1024 if MEGA else WS_ST
WS_FL = WSB + 40 * MB
FLS = 524288
REP = int(os.environ.get('REP', '16'))
WS_XP = WSB + 24 * MB
WS_X2 = WSB + 32 * MB
XPAD = int(os.environ.get('XPAD', '128')) if MEGA else 0
f2u = lambda f: struct.unpack('<I', struct.pack('<f', f))[0]
ENV = os.environ.get
TS = ENV('TS', '')
DBG = ENV('DBG', '').split(',')
EARLY = int(ENV('EARLY', '0')) if MEGA and ENV('SPLIT', '0') == '0' else 0
def stf(kind): return (' ' + ENV('WTF', 'sc1')) if kind in ENV('WT', 'attn,wo,w2,w1').split(',') else ''

KA = {'A_x': 0, 'wqkv': 8, 'wo': 16, 'w1': 32, 'b1': 40, 'w2': 48, 'b2': 56, 'out': 64, 'ws': 80}
P_IN = 16
P_OUT = 32; P_WS = 34
P_XS = 12
PTR = {'A_x': 16, 'wqkv': 18, 'wo': 20, 'w1': 24, 'b1': 26, 'w2': 28, 'b2': 30, 'out': 32, 'ws': 34, 'xs': 12, 'ws0': 22}
SX, SW, SO, SR, SB, ST, SP, SC = 36, 40, 44, 48, 52, 56, 60, 64
S_MT, S_NT, S_WV, S_WM, S_WN = 68, 69, 70, 71, 72
S_KX, S_KW, S_SLOT, S_XD, S_WD, S_HD, S_CNT = 73, 74, 75, 76, 77, 78, 79
S_LAYER = 96; S_TSI = 97; S_T = 98; S_CU = 99; S_XG = 100; S_KT = 101

KD = '''.section .rodata,"a"
.p2align 6
.amdhsa_kernel {name}
  .amdhsa_next_free_vgpr 256
  .amdhsa_next_free_sgpr 102
  .amdhsa_accum_offset 256
  .amdhsa_group_segment_fixed_size 0
  .amdhsa_kernarg_size 88
  .amdhsa_user_sgpr_count 2
  .amdhsa_user_sgpr_kernarg_segment_ptr 1
  .amdhsa_system_sgpr_workgroup_id_x 1
  .amdhsa_float_denorm_mode_32 3
  .amdhsa_float_denorm_mode_16_64 3
.end_amdhsa_kernel
.text
'''

def srd(a, sd, which, off, size):
    p = PTR[which]
    if off:
        a.emit(f's_add_u32 s{sd}, s{p}, {off}')
        a.emit(f's_addc_u32 s{sd+1}, s{p+1}, 0')
        a.emit(f's_and_b32 s{sd+1}, s{sd+1}, 0xffff')
    else:
        a.emit(f's_mov_b32 s{sd}, s{p}')
        a.emit(f's_and_b32 s{sd+1}, s{p+1}, 0xffff')
    a.emit(f's_mov_b32 s{sd+2}, {size}')
    a.emit(f's_mov_b32 s{sd+3}, 0x00020000')

def xpitch(a, sd, inv=False):
    a.emit(f's_cmp_eq_u32 s{S_LAYER}, {0 if inv else 1}')
    a.emit(f's_cselect_b32 s{sd}, {XPAD}, 0')
    a.emit(f's_add_u32 s{sd}, s{sd}, 2048')

def srd_xs(a, sd):
    srd(a, sd, 'xs', 0, 4 * MB)
    xpitch(a, sd + 2)
    a.emit(f's_lshl_b32 s{sd+2}, s{sd+2}, 11')

def stub(a, name, body, layer, tsidx, first):
    a(f'.text\n.globl {name}\n.p2align 8\n.type {name},@function\n{name}:')
    if TS:
        stamp(a, 0, nowait=True)
    a.emit('s_load_dwordx4 s[16:19], s[0:1], 0')
    a.emit('s_load_dwordx2 s[20:21], s[0:1], 16')
    a.emit('s_load_dwordx2 s[22:23], s[0:1], 80')
    a.emit('s_load_dwordx8 s[24:31], s[0:1], 32')
    a.emit('s_load_dwordx2 s[32:33], s[0:1], 64')
    a.emit('s_load_dwordx2 s[34:35], s[0:1], 80')
    a.emit(f's_load_dwordx2 s[12:13], s[0:1], {0 if layer == 0 else 64}')
    a.emit(f's_mov_b32 s{S_LAYER}, {layer}')
    a.emit(f's_mov_b32 s{S_TSI}, {tsidx}')
    if not first:
        a.emit(f's_branch {body}')

def stamp(a, n, nowait=False):
    if not TS: return
    a.emit(f's_memrealtime s[{80+4*n}:{81+4*n}]')
    a.emit(f's_memtime s[{82+4*n}:{83+4*n}]')
    if not nowait: a.emit('s_waitcnt lgkmcnt(0)')

def stamps_out(a, tag):
    if not TS: return
    if not MEGA: a.emit('s_waitcnt vmcnt(0)')
    stamp(a, 3)
    if MEGA and tag == 'w1':
        for i in range(16): a.emit(f'v_writelane_b32 v31, s{80+i}, {i}')
        return
    srd(a, SP, 'ws0', WS_TS, 1 << 20)
    a.emit('s_lshl_b32 s4, s2, 6')
    a.emit(f's_lshl_b32 s5, s{S_TSI}, 16')
    a.emit('s_add_u32 s4, s4, s5')
    a.emit('v_mov_b32 v1, s4')
    for i in range(16): a.emit(f'v_mov_b32 v{4+i}, s{80+i}')
    a.emit('v_cmp_eq_u32 vcc, 0, v0')
    a.emit('s_and_saveexec_b64 s[6:7], vcc')
    a.emit(f's_cbranch_execz L_tsskip_{tag}')
    for j in range(4):
        a.emit(f'buffer_store_dwordx4 v[{4+4*j}:{7+4*j}], v1, s[{SP}:{SP+3}], 0 offen offset:{16*j}')
    if MEGA and tag == 'w2':
        a.emit('s_mov_b64 exec, 0xffff')
        a.emit('s_sub_u32 s4, s4, 0x10000')
        a.emit('v_lshlrev_b32 v1, 2, v0')
        a.emit(f'buffer_store_dword v31, v1, s[{SP}:{SP+3}], s4 offen')
    a.label(f'L_tsskip_{tag}')
    a.emit('s_mov_b64 exec, -1')

SPX = ENV('SPX', '1') == '1'
OT = ENV('OT', 'w1,w2,attn').split(',')
S_T0 = 91
OHB = 114688; OBIA = [10, 24, 124, 126]
NV = int(ENV('NV', '0'))
EX = int(ENV('EX', '14'))
LSTK = ENV('LSTK', 'w2')
LREG = [52, 54, 56, 58] if LSTK == 'w2' else [36, 38, 48, 50] if LSTK == 'wo' else [80, 82, 48, 50]
def lstamp(a, n, dep=False):
    if dep and (ENV('LST') == 'x' or LSTK != 'w2'): return
    if TS: a.emit(f's_memrealtime s[{LREG[n]}:{LREG[n]+1}]')

def lstamps_out(a, tag):
    if not TS: return
    a.emit(f"s_cmp_lg_u32 s{S_WV}, {ENV('PW_' + tag.upper(), '4')}")
    a.emit(f's_cbranch_scc1 L_ltsskip_{tag}')
    a.emit('s_waitcnt lgkmcnt(0)')
    srd(a, SP, 'ws0', WS_TS + 16384, 1 << 20)
    a.emit('s_lshl_b32 s4, s2, 6')
    a.emit(f's_lshl_b32 s5, s{S_TSI}, 16')
    a.emit('s_add_u32 s4, s4, s5')
    for i in range(8): a.emit(f'v_writelane_b32 v20, s{LREG[i>>1]+(i&1)}, {i}')
    a.emit('v_lshlrev_b32 v21, 2, v1')
    a.emit('s_mov_b64 exec, 0xff')
    a.emit(f'buffer_store_dword v20, v21, s[{SP}:{SP+3}], s4 offen')
    a.emit('s_mov_b64 exec, -1')
    a.label(f'L_ltsskip_{tag}')

def tile_map(a, LM, endlab, pair=False):
    if endlab:
        a.emit('s_cmp_ge_u32 s2, 256')
        a.emit(f's_cbranch_scc1 {endlab}')
        a.emit('v_lshrrev_b32 v2, 6, v0')
        a.emit('v_and_b32 v1, 63, v0')
        a.emit(f'v_readfirstlane_b32 s{S_WV}, v2')
    a.emit('s_and_b32 s3, s2, 7')
    if endlab: a.emit(f's_lshr_b32 s{S_CU}, s2, 3')
    if LM == 2 and ENV('MAP2', '0') == '1':
        a.emit('s_lshl_b32 s5, s3, 1')
        a.emit('s_lshr_b32 s6, s3, 1')
        a.emit('s_and_b32 s5, s5, 2')
        a.emit('s_and_b32 s6, s6, 1')
        a.emit('s_or_b32 s5, s5, s6')
    else: a.emit(f's_and_b32 s5, s3, {(1 << (4 - LM)) - 1}')
    a.emit(f's_lshl_b32 s5, s5, {LM}')
    a.emit(f's_and_b32 s6, s{S_CU}, {(1 << LM) - 1}')
    a.emit(f's_add_u32 s{S_MT}, s5, s6')
    a.emit(f's_lshr_b32 s5, s3, {4 - LM}')
    if pair:
        a.emit(f's_lshr_b32 s{S_HD}, s{S_CU}, {LM}')
        a.emit(f's_lshl1_add_u32 s{S_NT}, s{S_HD}, s5')
        return
    a.emit(f's_lshl_b32 s5, s5, {5 - LM}')
    a.emit(f's_lshr_b32 s6, s{S_CU}, {LM}')
    a.emit(f's_add_u32 s{S_NT}, s5, s6')
    if 'smallm' in DBG: a.emit(f's_and_b32 s{S_MT}, s{S_MT}, 1')
    if 'smalln' in DBG: a.emit(f's_and_b32 s{S_NT}, s{S_NT}, 1')

def interleave(a, main, side, lead=1, per=1):
    si = 0
    for i, m in enumerate(main):
        a.emit(m)
        if i + 1 >= lead:
            for _ in range(per):
                if si < len(side): a.emit(side[si]); si += 1
    while si < len(side): a.emit(side[si]); si += 1

class Loader:
    VXD = 4; VWD = 8; VXH = 28
    def __init__(self, a, tag, K, lda2, ldw2, panels, colbase, S, STAGE, halo=None, delta=0, rot=None, xblk=False, half=0):
        self.a = a; self.tag = tag; self.K = K; self.lda2 = lda2; self.ldw2 = ldw2; self.panels = panels
        self.colbase = colbase; self.S = S; self.STAGE = STAGE; self.halo = halo; self.delta = delta; self.xblk = xblk; self.rot = rot if rot is not None and rot >= 0 else None
        self.NSTEP = K // 64; self.half = half; self.ot = 0
        self.per = 4 + 2 * len(panels) + (1 if halo is not None else 0)
    def setup(self):
        a = self.a
        if ENV('PRIO', '0') != '0': a.emit(f"s_setprio {ENV('PRIO')}")
        a.emit(f's_add_u32 s8, s{S_WV}, s{S_NT}')
        a.emit('s_and_b32 s8, s8, 3')
        a.emit(f's_add_u32 s9, s{S_WV}, s{S_MT}')
        a.emit('s_and_b32 s9, s9, 3')
        a.emit(f's_lshl_b32 s{S_XD}, s8, 12')
        a.emit(f's_lshl_b32 s{S_WD}, s9, 11')
        a.emit(f's_add_u32 s{S_WD}, s{S_WD}, 16384')
        a.emit(f's_lshl_b32 s11, s{S_MT}, 7')
        a.emit('v_and_b32 v10, 7, v1')
        if self.xblk: self.xoff_blk(self.lda2)
        else: self.xoff_rows(self.lda2)
        a.emit('v_lshrrev_b32 v3, 3, v1')
        a.emit('s_lshl_b32 s10, s9, 4')
        a.emit('v_add_u32 v3, s10, v3')
        a.emit(f'v_mul_u32_u24 v3, {self.ldw2}, v3')
        a.emit('v_lshrrev_b32 v2, 3, v1')
        a.emit('v_and_b32 v2, 2, v2')
        a.emit('v_xor_b32 v2, v2, v10')
        a.emit(f's_mul_i32 s10, s{S_NT}, {self.colbase}')
        if 'noslow' in DBG and self.tag == 'attn':
            a.emit(f's_bitcmp1_b32 0x0808, s{S_NT}')
            a.emit('s_cselect_b32 s3, 512, 0')
            a.emit('s_add_u32 s10, s10, s3')
        if self.colbase & 127: a.emit('s_andn2_b32 s10, s10, 127')
        a.emit('v_add_u32 v3, s10, v3')
        a.emit(f'v_lshl_add_u32 v{self.VWD}, v2, 4, v3')
        a.emit('v_xor_b32 v2, 4, v2')
        a.emit(f'v_add_u32 v3, {8*self.ldw2}, v3')
        a.emit(f'v_lshl_add_u32 v{self.VWD+1}, v2, 4, v3')
        if self.half:
            a.emit('v_lshrrev_b32 v3, 2, v1')
            a.emit('s_lshl_b32 s10, s9, 4')
            a.emit('v_add_u32 v3, s10, v3')
            a.emit(f'v_mul_u32_u24 v3, {self.ldw2}, v3')
            a.emit('v_lshrrev_b32 v2, 4, v1')
            a.emit('v_and_b32 v2, 2, v2')
            a.emit('v_xor_b32 v2, v2, v1')
            a.emit('v_and_b32 v2, 3, v2')
            a.emit(f's_lshl_b32 s10, s{S_NT}, 6')
            a.emit(f's_add_u32 s10, s10, {self.half}')
            a.emit('v_add_u32 v3, s10, v3')
            a.emit(f'v_lshl_add_u32 v{self.VXH}, v2, 4, v3')
            a.emit(f's_lshl_b32 s{S_HD}, s{S_NT}, 7')
            a.emit(f's_add_u32 s{S_HD}, s{S_HD}, 3072')
        if self.halo is not None:
            a.emit(f's_and_b32 s10, s{S_WV}, 3')
            a.emit(f's_lshl_b32 s{S_HD}, s10, 9')
            a.emit(f's_add_u32 s{S_HD}, s{S_HD}, {self.halo}')
            a.emit('s_lshl_b32 s14, s10, 2')
            a.emit('s_add_u32 s14, s14, s11')
            a.emit('s_sub_u32 s14, s14, 16')
            a.emit('v_lshrrev_b32 v3, 3, v1')
            a.emit('v_add_u32 v3, s14, v3')
            a.emit('v_max_i32 v3, 0, v3')
            a.emit('v_mul_u32_u24 v3, s5, v3')
            a.emit('s_lshl_b32 s14, s10, 1')
            a.emit('v_lshrrev_b32 v2, 4, v1')
            a.emit('v_add_u32 v2, s14, v2')
            a.emit('v_and_b32 v2, 7, v2')
            a.emit('v_xor_b32 v2, v2, v10')
            a.emit(f'v_lshl_add_u32 v{self.VXH}, v2, 4, v3')
            a.emit('s_cmp_eq_u32 s10, 0')
            a.emit('s_cselect_b32 s14, 0xffffff00, -1')
            a.emit('s_mov_b32 s15, 0')
        a.emit(f's_mov_b32 s{S_SLOT}, 0')
        if self.rot is None:
            a.emit(f's_mov_b32 s{S_KX}, 0')
            a.emit(f's_mov_b32 s{S_KW}, 0')
        else:
            if not getattr(self, 'noxg', False): a.emit(f's_add_u32 s{S_XG}, s{S_MT}, s{S_NT}')
            a.emit(f's_mov_b32 s{S_KT}, {0 if EARLY and self.tag == "w2" else -1}')
            ko = int(ENV('KOFF_' + self.tag.upper(), '0'))
            if ko:
                a.emit(f"s_bitcmp1_b32 {ENV('KMSK_' + self.tag.upper(), '0x0808' if self.tag == 'attn' else '0x2aea')}, s{S_NT}")
                a.emit(f's_cselect_b32 s{S_KT}, {ko - 1}, s{S_KT}')
            if self.kord(): self.ktable()
            if not self.ot:
                for x in self.knext(): a.emit(x)
    def kord(self): return ENV('KORD_' + self.tag.upper(), {'w1': '2', 'attn': '0,2'}.get(self.tag, ''))
    def korder(self, g, start):
        D = int(ENV('ROTD_' + self.tag.upper(), ENV('ROTD', '2')))
        o = list(range(16))
        if start < 0:
            dl = {3: [3, -1, -1, -1], 2: [2, -1, -1, 0], 1: [1, -1, 0, 0]}[D]
            return [(t + dl[(t - g) & 3]) & 15 for t in range(16)]
        for t in range(start + g, 16 - D, 4): o[t:t + D + 1] = [t + D] + list(range(t, t + D))
        return o
    def ktable(self, start=None):
        a = self.a
        if start is None: start = int(self.kord().split(',')[0])
        a.emit(f's_add_u32 s3, s{S_MT}, s{S_NT}')
        a.emit('s_and_b32 s3, s3, 3')
        for g in range(4):
            v = sum(k << (4 * i) for i, k in enumerate(self.korder(g, start)))
            if g: a.emit(f's_cmp_eq_u32 s3, {g}')
            for h in range(2):
                a.emit(f's_cselect_b32 s{S_XG+h}, {(v >> (32 * h)) & 0xffffffff:#x}, s{S_XG+h}' if g else f's_mov_b32 s{S_XG+h}, {(v >> (32 * h)) & 0xffffffff:#x}')
    def own(self):
        D = int(ENV('ROTD_' + self.tag.upper(), ENV('ROTD', '2')))
        dl = {3: [3, -1, -1, -1], 2: [2, -1, -1, 0], 1: [1, -1, 0, 0]}[D]
        tbl = sum(((-d) % 16) << (8 * ((r + d) & 3)) for r, d in enumerate(dl))
        assert self.rot == 0 and self.NSTEP == 16
        if self.kord():
            return [f's_lshr_b32 s3, s{S_NT}, 3', f's_and_b32 s{S_KX}, s{S_NT}, 7', f's_lshl1_add_u32 s{S_T0}, s{S_KX}, s3',
                    f's_mul_i32 s{S_KW}, s{S_T0}, {64*self.ldw2}', f's_lshl_b32 s{S_KX}, s{S_T0}, {11 if self.xblk else 7}']
        return [f's_lshr_b32 s3, s{S_NT}, 3', f's_and_b32 s{S_KX}, s{S_NT}, 7', f's_lshl1_add_u32 s{S_KX}, s{S_KX}, s3',
                f's_sub_u32 s3, s{S_KX}, s{S_XG}', 's_lshl_b32 s3, s3, 3', f's_lshr_b32 s3, {tbl:#x}, s3',
                f's_add_u32 s3, s3, s{S_KX}', f's_and_b32 s{S_T0}, s3, 15',
                f's_mul_i32 s{S_KW}, s{S_KX}, {64*self.ldw2}', f's_lshl_b32 s{S_KX}, s{S_KX}, {11 if self.xblk else 7}']
    def xoff_rows(self, ld):
        a = self.a
        a.emit('v_lshrrev_b32 v3, 3, v1')
        a.emit(f's_lshr_b32 s10, s{S_XD}, 7')
        a.emit(f's_lshl_b32 s3, s{S_MT}, 7')
        a.emit('s_add_u32 s10, s10, s3')
        a.emit('v_add_u32 v3, s10, v3')
        xpitch(a, 5)
        a.emit('s_lshl_b32 s6, s5, 3')
        a.emit('v_mul_u32_u24 v3, s5, v3')
        a.emit('v_lshrrev_b32 v2, 4, v1')
        for j in range(4):
            d = self.VXD + j
            if j & 1:
                a.emit(f'v_add_u32 v{d}, 4, v2')
                a.emit(f'v_xor_b32 v{d}, v{d}, v10')
            else:
                a.emit(f'v_xor_b32 v{d}, v2, v10')
            a.emit(f'v_lshl_add_u32 v{d}, v{d}, 4, v3')
            if j < 3: a.emit('v_add_u32 v3, s6, v3')
    def xoff_blk(self, ld):
        a = self.a
        a.emit(f's_lshr_b32 s10, s{S_XD}, 11')
        a.emit(f's_lshl_b32 s3, s{S_MT}, 3')
        a.emit('s_add_u32 s10, s10, s3')
        a.emit(f's_mul_i32 s10, s10, {16*ld}')
        a.emit(f'v_lshl_add_u32 v{self.VXD}, v1, 4, s10')
        a.emit(f'v_add_u32 v{self.VXD+1}, {16*ld}, v{self.VXD}')
    def xdma(self, base, imm, sd, soff, blk):
        o = []
        for j in range(4):
            if blk:
                if not j & 1: o += [f's_add_u32 m0, s{base}, {imm + j*1024}', 's_nop 0']
                o.append(f'buffer_load_dwordx4 v{self.VXD+(j>>1)}, s[{sd}:{sd+3}], s{soff} offen offset:{(j&1)*1024} lds')
            else:
                o += [f's_add_u32 m0, s{base}, {imm + j*1024}', 's_nop 0', f'buffer_load_dwordx4 v{self.VXD+j}, s[{sd}:{sd+3}], s{soff} offen lds']
        return o
    def knext(self):
        if self.rot is None:
            return [f's_add_u32 s{S_KX}, s{S_KX}, {2048 if self.xblk else 128}', f's_add_u32 s{S_KW}, s{S_KW}, {64*self.ldw2}']
        if self.kord():
            tb = f's[{S_XG}:{S_XG+1}]'
            o = [f's_and_b32 s{S_KX}, s{S_XG}, 15']
            if self.ot: o += [f's_cmp_eq_u32 s{S_KX}, s{S_T0}', f's_cselect_b32 s{S_KW}, 4, 0', f's_lshr_b64 {tb}, {tb}, s{S_KW}', f's_and_b32 s{S_KX}, s{S_XG}, 15']
            return o + [f's_lshr_b64 {tb}, {tb}, 4', f's_mul_i32 s{S_KW}, s{S_KX}, {64*self.ldw2}', f's_lshl_b32 s{S_KX}, s{S_KX}, {11 if self.xblk else 7}']
        lc = self.rot; C = 1 << lc; N = self.NSTEP
        o = [f's_add_u32 s{S_KT}, s{S_KT}, 1']
        if self.ot: o += [f's_cmp_eq_u32 s{S_KT}, s{S_T0}', f's_addc_u32 s{S_KT}, s{S_KT}, 0']
        D = int(ENV('ROTD_' + self.tag.upper(), ENV('ROTD', '2')))
        dl = {3: [3, -1, -1, -1], 2: [2, -1, -1, 0], 1: [1, -1, 0, 0]}[D]
        tbl = sum((((d * C) % N) << (8 * i)) for i, d in enumerate(dl))
        if lc: o += [f's_lshr_b32 s{S_KX}, s{S_KT}, {lc}', f's_sub_u32 s{S_KX}, s{S_KX}, s{S_XG}']
        else: o += [f's_sub_u32 s{S_KX}, s{S_KT}, s{S_XG}']
        o += [f's_lshl_b32 s{S_KX}, s{S_KX}, 3',
              f's_lshr_b32 s{S_KX}, {tbl:#x}, s{S_KX}',
              f's_and_b32 s{S_KX}, s{S_KX}, 255',
              f's_add_u32 s{S_KX}, s{S_KX}, s{S_KT}']
        if N & (N - 1) == 0: o += [f's_and_b32 s{S_KX}, s{S_KX}, {N - 1}']
        else: o += [f's_sub_u32 s{S_KW}, s{S_KX}, {N}', f's_cselect_b32 s{S_KX}, s{S_KX}, s{S_KW}']
        o += [f's_mul_i32 s{S_KW}, s{S_KX}, {64*self.ldw2}', f's_lshl_b32 s{S_KX}, s{S_KX}, {11 if self.xblk else 7}']
        return o
    def panels_of(self, t): return self.panels
    def issue_x(self, bx, bh, imm, kx):
        o = self.xdma(bx, imm, SX, kx, self.xblk)
        if self.halo is not None:
            o.append(f's_add_u32 m0, s{S_HD}, {bh}')
            o.append('s_mov_b64 exec, s[14:15]')
            o.append(f'buffer_load_dwordx4 v{self.VXH}, s[{SX}:{SX+3}], s{kx} offen lds')
            o.append('s_mov_b64 exec, -1')
        return o
    def issue_w(self, t, bw, imm):
        o = []
        for pn, goff in enumerate(self.panels_of(t)):
            for i in range(2):
                o.append(f's_add_u32 m0, s{bw}, {imm+pn*8192+i*1024}')
                o.append((goff if str(goff).startswith('s_') else f's_add_u32 s4, s{S_KW}, {goff}') if i == 0 else 's_nop 0')
                o.append(f'buffer_load_dwordx4 v{self.VWD+i}, s[{SW}:{SW+3}], s4 offen lds')
        if self.half:
            o += [f's_add_u32 m0, s{bw}, {imm+len(self.panels)*8192}', 's_nop 0',
                  f'buffer_load_dwordx4 v{self.VXH}, s[{SW}:{SW+3}], s{S_KW} offen lds']
        return o
    def issue(self, t):
        o = [f's_add_u32 s3, s{S_SLOT}, s{S_XD}']
        o += self.issue_x(3, f's{S_SLOT}', 0, S_KX)
        o.append(f's_add_u32 s3, s{S_SLOT}, s{S_WD}')
        o += self.issue_w(t, 3, 0)
        o += self.knext()
        o.append(f's_add_u32 s{S_SLOT}, s{S_SLOT}, {self.STAGE}')
        o.append(f's_cmp_eq_u32 s{S_SLOT}, {self.S*self.STAGE}')
        o.append(f's_cselect_b32 s{S_SLOT}, 0, s{S_SLOT}')
        return o
    def run(self, variant='', tail_issue=None, ntail_vm=0, final=None, post=(), dep=None, tail_late=0, start=None, extra=None):
        a = self.a; N = self.NSTEP; d = self.S - 1
        tag = self.tag + variant
        nx = 4 + (1 if self.halo is not None else 0)
        nw = lambda t: 2 * len(self.panels_of(t)) + (1 if self.half else 0)
        seq = []
        early = EARLY and self.tag == 'w2'
        pchk = EARLY - 3 - d - 1; piss = pchk - d + 1 - int(ENV('PEARLY', '0'))
        def em(o):
            for x in o:
                if 'nodma' in DBG and x.endswith(' lds'): continue
                a.emit(x)
        def after(t): return len(seq) - 1 - max(i for i, x in enumerate(seq) if x == t)
        def wait(n):
            assert n <= 63, n
            a.emit(f's_waitcnt vmcnt({n})')
        if dep is None:
            for t in range(2): em(self.issue(t)); seq += [t] * (nx + nw(t))
            if start: seq += ['S'] * start()
            wait(after(0))
            a.emit('s_barrier')
            for t in range(2, d): em(self.issue(t)); seq += [t] * (nx + nw(t))
        else:
            prev = {'attn': 'w2', 'wo': 'attn', 'w1': 'wo', 'w2': 'w1'}[self.tag]
            assert 'attn' not in EBAR
            ot = self.ot
            if ot: em(self.own() + [f's_mov_b32 s88, s{S_KX}'] + self.issue_w(0, S_WD, 0) + self.knext()); seq.extend([0] * nw(0))
            dep_pre(a, self.tag)
            if prev in EBAR: a.emit('s_barrier')
            xw = 1 if self.tag in ENV('XW', 'x').split(',') and not hasattr(self, 'P1') else 0
            def prew(ts):
                for t in ts:
                    a.emit(f's_mov_b32 s{88+t}, s{S_KX}')
                    em(self.issue_w(t, S_WD, t * self.STAGE) + self.knext()); seq.extend([t] * nw(t))
            late = int(ENV('LATE_' + self.tag.upper(), '2'))
            if ot: xw = 1
            prew(range(ot, d + xw - late))
            self.npre = len(seq)
            a.emit(f's_mov_b32 s{S_SLOT}, {0 if xw else d * self.STAGE}')
            wag = int(ENV('WAG_' + self.tag.upper(), '0'))
            dep((lambda: prew(range(d + xw - late, d + xw - wag))) if late else None)
            if ot and self.halo is not None: em(self.issue_x(S_XD, self.hx, 0, 88)[-4:]); seq.append(0)
            for t in range(ot, d + xw):
                if t >= d + xw - wag: prew([t])
                em(self.issue_x(S_XD, t * self.STAGE, t * self.STAGE, 88 + t)); seq += [t] * nx
            if ot and ENV('OPRIO'): a.emit('s_setprio 0')
            wait(after(ot))
            if self.tag == 'w2': lstamp(a, 2)
            a.emit('s_barrier')
            if early: late_flag(a)
        ev = [None] * self.ot
        for i in range(self.ot, N):
            t = i + d
            if t in seq: t = N + 9
            if early and i == piss: seq += ['P']
            if t < N: seq += [t] * (nx + nw(t)) + ['Q'] * sum(x.startswith('buffer_') for x in post)
            ex = extra(i) if extra else []
            tl = tail_issue is not None and t == N - 1 + tail_late
            if tl: seq += ['T'] * ntail_vm
            seq += ['E'] * sum(x.startswith('buffer_load') for x in ex)
            ev.append(((nw(t) if t < N else -1, after(i + 1) if i + 1 < N else -1, tl, early and i == piss, early and i == pchk, tuple(ex)), t))
        i = self.ot; nl = 0
        while i < N:
            j = i
            while j + 1 < N and ev[j + 1][0] == ev[i][0]: j += 1
            n = j - i + 1
            (k, w, tl, pi, pc, ex), t = ev[i]
            if n >= 3:
                nl += 1
                a.emit(f's_mov_b32 s{S_CNT}, {n}')
                a.label(f'L_{tag}_ld{nl}')
            else: j = i
            if pi: a.emit(f'buffer_load_dword v13, v12, s[{SO}:{SO+3}], s86 offen sc1')
            if t < N:
                em(self.issue(t)); em(post)
            if tl and not ('notail' in DBG and self.tag == 'w1'):
                if ENV('FPRIO'): a.emit('s_setprio 3')
                tail_issue()
                if ENV('FPRIO'): a.emit('s_setprio 0')
            em(ex)
            if w >= 0: wait(w)
            elif final and 'nofinal' not in DBG:
                if ENV('FPRIO'): a.emit('s_setprio 3')
                final()
                if ENV('FPRIO'): a.emit('s_setprio 0')
            if pc: late_check(a)
            a.emit('s_barrier')
            if n >= 3:
                a.emit(f's_sub_u32 s{S_CNT}, s{S_CNT}, 1')
                a.emit(f's_cmp_lg_u32 s{S_CNT}, 0')
                a.emit(f's_cbranch_scc1 L_{tag}_ld{nl}')
            i = j + 1

XD = ONE and ENV('SPLIT', '0') == '0' and ENV('XD', '1') == '1'
VW = MEGA and ENV('SPLIT', '0') == '0' and ENV('VW', '0') == '1'
NV1 = int(ENV('NV1', '16')); NV2 = int(ENV('NV2', '12')); NVO = int(ENV('NVO', '11'))
S_TB = 85
def rot_table(a, sd, smt, snt, tag):
    D = int(ENV('ROTD_' + tag.upper(), ENV('ROTD', '2')))
    dl = {3: [3, -1, -1, -1], 2: [2, -1, -1, 0], 1: [1, -1, 0, 0], 0: [0, 0, 0, 0]}[D]
    tbl = sum((d & 255) << (8 * i) for i, d in enumerate(dl))
    a.emit(f's_add_u32 s3, s{smt}, s{snt}')
    a.emit('s_lshl_b32 s3, s3, 3')
    a.emit(f's_lshl_b32 s{sd}, {tbl:#x}, s3')
    a.emit('s_sub_u32 s3, 0, s3')
    a.emit(f's_lshr_b32 s3, {tbl:#x}, s3')
    a.emit(f's_or_b32 s{sd}, s{sd}, s3')

def kpos(N, t, sd, tb=S_TB, halves=True, q=None):
    H, p, add = (28, t >> 1, 28 * (t & 1)) if N == 56 and halves else (N, t, 0)
    o = [f's_bfe_i32 s{sd}, s{tb}, {0x80000 + 8 * (p & 3):#x}', f's_add_i32 s{sd}, s{sd}, {p + add}']
    if p == 0: o += [f's_cmp_lt_i32 s{sd}, {add}', f's_cselect_b32 s{sd}, {H - 1 + add}, s{sd}']
    if p + 3 >= H: o += [f's_sub_u32 s3, s{sd}, {H}', f's_cmp_ge_i32 s{sd}, {H + add}', f's_cselect_b32 s{sd}, s3, s{sd}']
    if q is not None:
        if N == 16 or 1 <= t <= 12: o += [f's_add_u32 s{sd}, s{sd}, s{q}', f's_and_b32 s{sd}, s{sd}, 15']
        elif t <= 16 or t + 3 >= N: o += [f's_add_u32 s3, s{sd}, s{q}', 's_and_b32 s3, s3, 15', f's_cmp_lt_u32 s{sd}, 16', f's_cselect_b32 s{sd}, s3, s{sd}']
    return o

S_Q = 86
MROT = ENV('MROT', '1') == '1'
def rot_q(a, sd, smt, sh=0):
    a.emit(f's_and_b32 s{sd}, s{smt}, {3 if MROT else 0}')
    a.emit(f's_lshl_b32 s{sd}, s{sd}, {2 + sh}')

TSCH = {'wo': [int(c) for c in ENV('TSO', '000')], 'w2': [int(c) for c in ENV('TS2', '000')]}
def tail_parks(nxt, sw, mk=None, sch=None):
    if not XD: return None
    sch = sch or TSCH[nxt]; N = 16 if nxt == 'wo' else 56
    def extra(i):
        if i < 13 or not sum(sch): return []
        a = Asm()
        if i == 13:
            if mk: mk(a)
            a.emit('s_and_b32 s5, s2, 3')
            a.emit('s_lshl_b32 s5, s5, 2')
            a.emit(f's_and_b32 s6, s{S_CU}, 3')
            a.emit('s_add_u32 s5, s5, s6')
            a.emit('s_and_b32 s6, s2, 4')
            a.emit('s_lshl_b32 s6, s6, 1')
            a.emit(f's_lshr_b32 s7, s{S_CU}, 2')
            a.emit('s_add_u32 s6, s6, s7')
            rot_table(a, S_TB, 5, 6, nxt)
            rot_q(a, S_Q, 5)
            a.emit(f's_add_u32 s5, s5, s{S_WV}')
            a.emit('s_and_b32 s5, s5, 3')
            wvoff(a, 16, 5, 6, 2048)
        o = [l.strip() for l in a.lines]
        for t in range(sum(sch[:i - 13]), sum(sch[:i - 12])):
            o += kpos(N, t, 4, S_TB, False, S_Q) + ['s_lshl_b32 s4, s4, 17']
            o += [f'buffer_load_dwordx4 v[{128+8*t+4*j}:{131+8*t+4*j}], v{16+j}, s[{sw}:{sw+3}], s4 offen' for j in range(2)]
        return o
    return extra

def vreg(tag, t):
    if tag == 'wo': return (128 + 8 * (t - 5), False) if 5 <= t < 5 + NVO else None
    if t & 1: return None
    p = t >> 1
    if p < NV1: return (128 + 8 * p, True)
    if p < NV1 + NV2: return (32 + 8 * (p - NV1), False)
    return None

def wvoff(a, vd, sqw, snt, ldw2):
    a.emit('v_lshrrev_b32 v3, 3, v1')
    a.emit(f's_lshl_b32 s10, s{sqw}, 4')
    a.emit('v_add_u32 v3, s10, v3')
    a.emit(f'v_mul_u32_u24 v3, {ldw2}, v3')
    a.emit('v_lshrrev_b32 v2, 3, v1')
    a.emit('v_and_b32 v2, 2, v2')
    a.emit('v_xor_b32 v2, v2, v10')
    a.emit(f's_lshl_b32 s10, s{snt}, 7')
    a.emit('v_add_u32 v3, s10, v3')
    a.emit(f'v_lshl_add_u32 v{vd}, v2, 4, v3')
    a.emit('v_xor_b32 v2, 4, v2')
    a.emit(f'v_add_u32 v3, {8*ldw2}, v3')
    a.emit(f'v_lshl_add_u32 v{vd+1}, v2, 4, v3')

def park(N, t, r, vo, sw):
    return kpos(N, t, 4) + ['s_lshl_b32 s4, s4, 17'] + [f'buffer_load_dwordx4 v[{r+4*i}:{r+4*i+3}], v{vo+i}, s[{sw}:{sw+3}], s4 offen' for i in range(2)]

class ULoader(Loader):
    def run(self, variant='', tail_issue=None, ntail_vm=0, final=None, post=(), dep=None):
        a = self.a; N = self.NSTEP; d = self.S - 1; tag = self.tag
        seq = []
        def em(o):
            for x in o:
                if 'nodma' in DBG and x.endswith(' lds'): continue
                a.emit(x)
        def after(t): return len(seq) - 1 - max(i for i, x in enumerate(seq) if x == t)
        def wait(n, lg=False):
            assert n <= 63, n
            a.emit(f's_waitcnt vmcnt({n})' + (' lgkmcnt(0)' if lg else ''))
        def iw(t):
            sl = (t % self.S) * self.STAGE; v = vreg(tag, t)
            if v:
                em([f'v_add_u32 v11, {sl}, v14'] + [f'ds_write_b128 v11, v[{v[0]+4*i}:{v[0]+4*i+3}] offset:{1024*i}' for i in range(2)])
            else:
                em([f's_lshl_b32 s{S_KW}, s{S_KX}, 17'] + [x for x in self.issue_w(t, S_WD, sl)])
                seq.extend([t] * 2)
        def ix(t, k):
            em(self.issue_x(S_XD, None, (t % self.S) * self.STAGE, k)); seq.extend([t] * 4)
        rot_table(a, S_TB, S_MT, S_NT, tag)
        a.emit(f'v_lshl_add_u32 v14, v1, 4, s{S_WD}')
        dep_pre(a, tag)
        for t in range(d):
            em(kpos(N, t, S_KX)); iw(t)
            a.emit(f's_lshl_b32 s{88+t}, s{S_KX}, 11')
        for t in range(d, N):
            v = vreg(tag, t)
            if v and not v[1]:
                em(park(N, t, v[0], self.VWD, SW)); seq.extend(['V'] * 2)
        self.npre = len(seq)
        dep()
        for t in range(d): ix(t, 88 + t)
        wait(after(0), True)
        if tag == 'w2': lstamp(a, 2)
        a.emit('s_barrier')
        for i in range(N):
            t = i + d
            if i % 4 == 0 and post and t < N:
                a.emit('s_waitcnt lgkmcnt(0)')
                em(post)
            if t < N:
                em(kpos(N, t, S_KX)); iw(t)
                a.emit(f's_lshl_b32 s{S_KX}, s{S_KX}, 11')
                ix(t, S_KX)
            if t == N - 1: tail_issue(); seq.extend(['T'] * ntail_vm)
            if i + 1 < N: wait(after(i + 1), not post or t == N)
            else: final()
            a.emit('s_barrier')

EBAR = ENV('EBAR', 'x').split(',')
S_FL = 87
def dep_pre(a, kind, part=None, n=0):
    if ONE and kind in ('wo', 'w1'):
        ld = f'buffer_load_dword v12, v17, s[{SC}:{SC+3}], 0 offen sc1' if kind == 'wo' else f'buffer_load_dwordx4 v[12:15], v17, s[{SO}:{SO+3}], s3 offen sc1'
        if part == 1: a.emit(f's_waitcnt vmcnt({n})')
        a.emit(f's_add_u32 s3, s{S_LAYER}, s{S_WV}')
        a.emit('s_cmp_lg_u32 s3, 4')
        a.emit(f's_cbranch_scc1 L_{kind}_chk{part}')
        def cmp():
            if kind == 'wo': a.emit('v_cmp_ne_u32 vcc, 0x01010101, v12')
            else:
                a.emit('v_and_b32 v12, v12, v13')
                a.emit('v_and_b32 v14, v14, v15')
                a.emit('v_and_b32 v12, v12, v14')
                a.emit('v_cmp_ne_u32 vcc, 1, v12')
        if part == 1:
            cmp()
            a.emit(f's_cbranch_vccz L_{kind}_chk{part}')
        if True:
            if kind == 'wo': a.emit(f's_load_dwordx2 s[{SC}:{SC+1}], s[0:1], 72')
            else: srd(a, SO, 'ws0', WS_FL, FLS)
            if kind == 'wo':
                a.emit('s_waitcnt lgkmcnt(0)')
                a.emit(f's_and_b32 s{SC+1}, s{SC+1}, 0xffff')
                a.emit(f's_mov_b32 s{SC+2}, 256')
                a.emit(f's_mov_b32 s{SC+3}, 0x00020000')
                a.emit('v_lshlrev_b32 v17, 2, v1')
            else:
                a.emit('v_lshrrev_b32 v2, 2, v1')
                a.emit('v_and_b32 v3, 3, v1')
                a.emit('v_lshlrev_b32 v2, 11, v2')
                a.emit('v_lshl_add_u32 v17, v3, 4, v2')
                a.emit(f's_and_b32 s3, s{S_NT}, {REP - 1}')
                a.emit('s_lshl_b32 s3, s3, 7')
        if part == 0: a.emit(ld)
        else:
            a.emit(f's_mov_b32 s{S_CNT}, 0x100000')
            a.label(f'L_{kind}_chkl')
            a.emit(ld)
            a.emit(f's_sub_u32 s{S_CNT}, s{S_CNT}, 1')
            a.emit(f's_cbranch_scc1 L_{kind}_chk{part}')
            a.emit('s_waitcnt vmcnt(0)')
            cmp()
            a.emit(f's_cbranch_vccnz L_{kind}_chkl')
        a.label(f'L_{kind}_chk{part}')

def dep_wait(a, kind, halo=False, skip_first=False, first=None, preg=None, postf=None, pref=None, defer=False, obar=False):
    if skip_first and not ONE:
        a.emit(f's_cmp_eq_u32 s{S_TSI}, 1')
        a.emit(f's_cbranch_scc1 L_{kind}_dep')
    srd(a, SO, 'ws0', WS_FL, FLS)
    if ONE and kind == 'wo' and first:
        a.emit(f's_cmp_lg_u32 s{S_LAYER}, 0')
        a.emit(f's_cbranch_scc1 L_{kind}_nofirst')
        first()
        a.label(f'L_{kind}_nofirst')
    a.emit(f's_lshl4_add_u32 s3, s{S_TSI}, s{S_MT}')
    a.emit(f's_and_b32 s4, s{S_NT}, {REP - 1}')
    a.emit('s_lshl4_add_u32 s3, s3, s4')
    a.emit('s_lshl_b32 s3, s3, 7')
    a.emit('s_sub_u32 s3, s3, 32768')
    a.emit('v_lshlrev_b32 v11, 7, v1')
    if halo:
        a.emit(f's_cmp_eq_u32 s{S_MT}, 0')
        a.emit('s_cselect_b32 s4, 15, 31')
        a.emit('v_and_b32 v2, 16, v1')
        a.emit('v_lshl_add_u32 v11, v2, 2, v11')
        a.emit('v_and_b32 v2, s4, v1')
    else: a.emit('v_and_b32 v2, 15, v1')
    a.emit('v_lshlrev_b32 v2, 2, v2')
    a.emit('v_mov_b32 v3, 1')
    a.emit(f's_mov_b32 s{S_CNT}, 0x100000')
    if kind == LSTK == 'wo': lstamp(a, 2)
    if pref: pref()
    a.emit(f's_cmp_lg_u32 s{S_WV}, 4')
    a.emit('s_barrier')
    if kind == 'w2': lstamp(a, 0, True)
    if kind == LSTK == 'w1': lstamp(a, 0)
    a.emit(f's_cbranch_scc1 L_{kind}_{"nofl" if postf else "dep"}')
    a.emit(f's_mov_b32 exec_lo, {((1 << REP) - 1) * (0x10001 if halo else 1):#x}')
    a.emit('s_mov_b32 exec_hi, 0')
    a.emit(f'buffer_store_dword v3, v11, s[{SO}:{SO+3}], s{S_FL} offen sc1')
    a.emit('s_mov_b64 exec, -1')
    PSP = int(ENV('PSP', '0'))
    if defer:
        a.label(f'L_{kind}_nofl')
        a.emit(f's_mov_b32 s{S_Q}, s3')
        postf()
        return
    if postf and PSP:
        a.label(f'L_{kind}_nofl')
        a.emit('s_mov_b32 s5, s3')
        i0 = len(a.lines); postf(); ls = a.lines[i0:]; del a.lines[i0:]
        dma = [i for i, l in enumerate(ls) if 'buffer_load' in l]
        poll = lambda k: f'buffer_load_dword v{24+k}, v2, s[{SO}:{SO+3}], s5 offen sc1'
        for i, l in enumerate(ls):
            a.lines.append(l)
            for k in range(3):
                if dma and i == dma[-1 - PSP * (3 - k)]: a.emit(poll(k))
        a.emit(f's_cmp_lg_u32 s{S_WV}, 4')
        a.emit(f's_cbranch_scc1 L_{kind}_dep')
        def chk(k, n, last=False):
            a.emit(poll((k + 3) & 3))
            a.emit(f's_waitcnt vmcnt({n})')
            a.emit(f'v_cmp_ne_u32 vcc, 1, v{24+k}')
            a.emit(f's_cbranch_vccnz L_{kind}_poll' if last else f's_cbranch_vccz L_{kind}_dep')
        for k in range(3): chk(k, 3 + PSP * (3 - k))
        a.label(f'L_{kind}_poll')
        a.emit(f's_sub_u32 s{S_CNT}, s{S_CNT}, 1')
        a.emit(f's_cbranch_scc1 L_{kind}_dep')
        for k in (3, 0, 1, 2): chk(k, 3, k == 2)
    else:
        if postf:
            if obar:
                a.emit(f's_waitcnt vmcnt({obar})')
                a.emit(f's_branch L_{kind}_obar')
            a.label(f'L_{kind}_nofl')
            if obar:
                a.emit(f's_waitcnt vmcnt({obar - 1})')
                a.label(f'L_{kind}_obar')
                a.emit('s_barrier')
                if ENV('OPRIO'): a.emit(f"s_setprio {ENV('OPRIO')}")
            a.emit('s_mov_b32 s5, s3')
            postf()
            a.emit('s_mov_b32 s3, s5')
            a.emit(f"s_cmp_lg_u32 s{S_WV}, {ENV('PW_' + kind.upper(), '4')}")
            a.emit(f's_cbranch_scc1 L_{kind}_dep')
        if kind == LSTK == 'w1': lstamp(a, 1)
        a.label(f'L_{kind}_poll')
        a.emit(f'buffer_load_dword v3, v2, s[{SO}:{SO+3}], s3 offen sc1')
        a.emit(f's_sub_u32 s{S_CNT}, s{S_CNT}, 1')
        a.emit(f's_cbranch_scc1 L_{kind}_dep')
        a.emit('s_waitcnt vmcnt(0)')
        a.emit('v_cmp_ne_u32 vcc, 1, v3')
        a.emit(f's_cbranch_vccnz L_{kind}_poll')
    a.label(f'L_{kind}_dep')
    if kind == 'w2': lstamp(a, 1, True)
    if kind == LSTK == 'wo': lstamp(a, 3)
    if kind == LSTK == 'w1':
        lstamp(a, 2)
        if TS: a.emit(f's_mov_b32 s50, s{S_CNT}')
    if preg: preg()
    if preg and kind == 'w2': lstamp(a, 2, True)
    a.emit('s_barrier')

def dep_late(a, kind, part, n=0):
    ld = f'buffer_load_dword v3, v2, s[{SO}:{SO+3}], s{S_Q} offen sc1'
    if part == 0:
        a.emit(f's_cmp_eq_u32 s{S_WV}, 4')
        a.emit(f's_cselect_b32 s{SO+2}, s{SO+2}, 0')
        a.emit(ld)
        return
    a.emit(f's_cmp_lg_u32 s{S_WV}, 4')
    a.emit(f's_cbranch_scc1 L_{kind}_dep')
    a.emit(f's_waitcnt vmcnt({n})')
    a.emit('v_cmp_ne_u32 vcc, 1, v3')
    a.emit(f's_cbranch_vccz L_{kind}_dep')
    a.label(f'L_{kind}_poll')
    a.emit(ld)
    a.emit(f's_sub_u32 s{S_CNT}, s{S_CNT}, 1')
    a.emit(f's_cbranch_scc1 L_{kind}_dep')
    a.emit('s_waitcnt vmcnt(0)')
    a.emit('v_cmp_ne_u32 vcc, 1, v3')
    a.emit(f's_cbranch_vccnz L_{kind}_poll')
    a.label(f'L_{kind}_dep')
    lstamp(a, 1, True); lstamp(a, 2, True)
    if TS and ENV('LST') != 'x': a.emit(f's_mov_b32 s58, s{S_CNT}')

LGO = 163840 - 64
def dep_early(a):
    srd(a, SO, 'ws0', WS_FL, FLS)
    a.emit(f's_lshl_b32 s86, s{S_TSI}, 12')
    a.emit(f's_lshl_b32 s4, s{S_MT}, 8')
    a.emit('s_add_u32 s86, s86, s4')
    a.emit('s_sub_u32 s86, s86, 4096')
    a.emit('v_and_b32 v12, 15, v1')
    a.emit('v_lshlrev_b32 v12, 2, v12')
    a.emit('v_mov_b32 v3, 0')
    a.emit(f'v_mov_b32 v2, {LGO}')
    a.emit('ds_write_b32 v2, v3')
    a.emit('v_mov_b32 v13, 1')
    a.emit(f's_mov_b32 s{S_CNT}, 0x100000')
    a.emit(f's_cmp_lg_u32 s{S_WV}, 4')
    a.emit('s_waitcnt lgkmcnt(0)')
    a.emit('s_barrier')
    a.emit('s_cbranch_scc1 L_w2_go')
    lstamp(a, 0)
    a.emit('s_mov_b64 exec, 1')
    a.emit(f'buffer_store_dword v13, off, s[{SO}:{SO+3}], s{S_FL} sc1')
    a.emit('s_mov_b64 exec, -1')
    a.label('L_w2_poll')
    a.emit(f'buffer_load_dword v3, v12, s[{SO}:{SO+3}], s86 offen sc1')
    a.emit(f's_sub_u32 s{S_CNT}, s{S_CNT}, 1')
    a.emit('s_cbranch_scc1 L_w2_rel')
    a.emit('s_waitcnt vmcnt(0)')
    a.emit('v_cmp_eq_u32 vcc, 0, v3')
    a.emit('s_cbranch_vccnz L_w2_poll')
    a.label('L_w2_rel')
    a.emit('ds_write_b32 v2, v13')
    lstamp(a, 1)
    a.emit('s_branch L_w2_dep')
    a.label('L_w2_go')
    a.emit(f's_mov_b32 s{S_CNT}, 0x2000000')
    a.label('L_w2_gol')
    a.emit('ds_read_b32 v3, v2')
    a.emit(f's_sub_u32 s{S_CNT}, s{S_CNT}, 1')
    a.emit('s_cbranch_scc1 L_w2_dep')
    a.emit('s_waitcnt lgkmcnt(0)')
    a.emit('v_cmp_eq_u32 vcc, 0, v3')
    a.emit('s_cbranch_vccnz L_w2_gol')
    a.label('L_w2_dep')

def late_flag(a):
    a.emit(f's_cmp_lg_u32 s{S_WV}, 4')
    a.emit('s_cbranch_scc1 L_w2_nolate')
    a.emit('v_mov_b32 v3, 2')
    a.emit('s_mov_b64 exec, 1')
    a.emit(f'buffer_store_dword v3, off, s[{SO}:{SO+3}], s{S_FL} sc1')
    a.emit('s_mov_b64 exec, -1')
    a.label('L_w2_nolate')

def late_check(a):
    a.emit(f's_mov_b32 s{S_CNT}, 0x100000')
    a.label('L_w2_lchk')
    a.emit('v_cmp_ne_u32 vcc, 2, v13')
    a.emit('s_cbranch_vccz L_w2_lok')
    a.emit(f'buffer_load_dword v13, v12, s[{SO}:{SO+3}], s86 offen sc1')
    a.emit(f's_sub_u32 s{S_CNT}, s{S_CNT}, 1')
    a.emit('s_waitcnt vmcnt(0)')
    a.emit('s_cbranch_scc0 L_w2_lchk')
    a.label('L_w2_lok')
    if TS: a.emit(f's_mov_b32 s58, s{S_CNT}')
    lstamps_out(a, 'w2')

def gbar(a, kind):
    if not MEGA or (EARLY and kind == 'w2'): return
    if kind == 'attn':
        a.emit(f's_cmp_eq_u32 s{S_LAYER}, 0')
        a.emit('s_cbranch_scc1 L_attn_nog')
    a.emit('s_barrier')
    if kind == 'attn': a.label('L_attn_nog')

def next_phase(a, kind, comp=False):
    nxt = {'attn': 'wo', 'wo': 'w1', 'w1': 'w2', 'w2': 'attn'}[kind]
    if kind == 'w2':
        a.emit(f's_mov_b32 s{S_LAYER}, 1')
        a.emit(f's_add_u32 s12, s22, {WS_X2}')
        a.emit('s_addc_u32 s13, s23, 0')
        a.emit(f's_add_u32 s34, s22, {LSTR}')
        a.emit('s_addc_u32 s35, s23, 0')
    a.emit(f's_add_u32 s{S_TSI}, s{S_TSI}, 1')
    a.emit(f's_branch L_{nxt}_' + ('compute' if comp and NV and nxt == 'w2' else 'body'))

def last_check(a, kind):
    if kind == 'w2' or (kind == 'attn' and not ONE):
        a.emit(f's_cmp_eq_u32 s{S_LAYER}, {0 if kind == "attn" else 1}')
        a.emit(f's_cbranch_scc1 L_{kind}_end')

def compute_end(a, kind):
    if not MEGA:
        stamps_out(a, kind)
        a.emit('s_endpgm')
        return
    if not TS: last_check(a, kind)
    if kind in EBAR: a.emit('s_barrier')
    if not ((EARLY or NV) and kind == 'w1'):
        a.emit('s_waitcnt vmcnt(0) lgkmcnt(0)')
        a.emit('s_barrier')
    if TS:
        stamps_out(a, kind)
        last_check(a, kind)
    stamp(a, 0, nowait=True)
    next_phase(a, kind, True)

def loader_end(a, kind, check=True):
    if MEGA:
        if kind == LSTK and not EARLY: lstamps_out(a, kind)
        if check: last_check(a, kind)
        a.emit(f's_lshl_b32 s{S_FL}, s{S_TSI}, 15')
        a.emit(f's_lshl_b32 s4, s{S_MT}, 11')
        a.emit(f's_add_u32 s{S_FL}, s{S_FL}, s4')
        a.emit(f's_lshl_b32 s4, s{S_NT}, 2')
        a.emit(f's_add_u32 s{S_FL}, s{S_FL}, s4')
        next_phase(a, kind)

def pf_weights(a, sd, which, size, ldw2, R, sh, L, LMn, tilebytes, NI, vd, row0=0, qkv=False, pair=False):
    if 'nopf' in DBG: return 0
    srd(a, sd, which, 0, size)
    a.emit(f's_and_b32 s3, s{S_WV}, 3')
    a.emit(f's_mul_i32 s3, s3, {NI * (64 >> sh)}')
    a.emit(f's_mul_i32 s4, s{S_CU}, {R}')
    a.emit('s_add_u32 s3, s3, s4')
    if row0: a.emit(f's_add_u32 s3, s3, {row0}')
    a.emit(f'v_lshrrev_b32 v2, {sh}, v1')
    a.emit('v_add_u32 v2, s3, v2')
    a.emit(f'v_mul_u32_u24 v2, {ldw2}, v2')
    a.emit(f'v_and_b32 v3, {(1 << sh) - 1}, v1')
    if L < (1 << sh): a.emit(f'v_min_u32 v3, {L-1}, v3')
    if qkv:
        a.emit('v_lshrrev_b32 v12, 2, v3')
        a.emit('v_lshl_add_u32 v2, v12, 11, v2')
        a.emit('v_and_b32 v3, 3, v3')
    a.emit(f'v_lshl_add_u32 v2, v3, {8 if pair else 7}, v2')
    a.emit('s_and_b32 s3, s2, 7')
    a.emit(f's_lshr_b32 s3, s3, {4 - LMn}')
    a.emit(f's_mul_i32 s3, s3, {tilebytes if pair else (1 << (5 - LMn)) * tilebytes}')
    for i in range(NI):
        a.emit(f'buffer_load_dword v{vd+i}, v2, s[{sd}:{sd+3}], s3 offen')
        if i + 1 < NI: a.emit(f's_add_u32 s3, s3, {(64 >> sh) * ldw2}')
    return NI

_pfc = [0]
def pf_code(a, start, end, vd, forward=True):
    if 'nopfc' in DBG: return 0
    _pfc[0] += 1
    lab = f'L_pfc{_pfc[0]}'
    a.emit('s_getpc_b64 s[4:5]')
    a.label(lab)
    if forward:
        a.emit(f's_add_u32 s4, s4, {start}-{lab}')
        a.emit('s_addc_u32 s5, s5, 0')
    else:
        a.emit(f's_sub_u32 s4, s4, {lab}-{start}')
        a.emit('s_subb_u32 s5, s5, 0')
    a.emit(f's_and_b32 s3, s{S_WV}, 3')
    a.emit('s_lshl_b32 s3, s3, 13')
    a.emit('v_lshl_add_u32 v2, v1, 7, s3')
    a.emit(f'v_min_u32 v2, {end}-{start}-4, v2')
    a.emit(f'global_load_dword v{vd}, v2, s[4:5]')
    return 1

def wbase(a, vd, vt, g='v2'):
    a.emit(f'v_bfe_u32 v{vd}, v1, 2, 2')
    a.emit(f'v_lshl_add_u32 v{vd}, {g}, 3, v{vd}')
    a.emit(f'v_lshlrev_b32 v{vd}, 7, v{vd}')
    a.emit(f'v_and_b32 v{vt}, 3, v1')
    a.emit(f'v_lshl_add_u32 v{vd}, v{vt}, 3, v{vd}')
    a.emit(f'v_bfe_u32 v{vt}, v1, 3, 2')
    a.emit(f'v_lshl_add_u32 v{vd}, v{vt}, 5, v{vd}')


def code_touch(a, start, end, nb, sd=SX, loader=False):
    if ENV('CT', '1') == '0': return
    _pfc[0] += 1
    lab = f'L_pfc{_pfc[0]}'
    a.emit(f's_cmp_lg_u32 s{S_LAYER}, 0')
    a.emit(f's_cbranch_scc1 {lab}_skip')
    a.emit('s_getpc_b64 s[4:5]')
    a.label(lab)
    a.emit(f's_lshl_b32 s3, s{S_CU}, 2')
    a.emit(f's_add_u32 s3, s3, s{S_WV}')
    if loader: a.emit('s_sub_u32 s3, s3, 4')
    a.emit(f's_mul_i32 s3, s3, {nb}')
    a.emit(f's_min_u32 s3, s3, {end}-{start}-{nb}')
    a.emit(f's_add_i32 s3, s3, {start}-{lab}')
    a.emit('s_ashr_i32 s6, s3, 31')
    a.emit('s_add_u32 s4, s4, s3')
    a.emit('s_addc_u32 s5, s5, s6')
    for i in range(nb // 64):
        a.emit(f's_load_dword s{84 if loader else sd+i}, s[4:5], {64*i}')
    a.label(f'{lab}_skip')

def loader_first(a, kind):
    if ENV('LF', '1') == '0': return
    L = a.lines
    ib = max(i for i, l in enumerate(L) if l.strip() == f's_cbranch_scc1 L_{kind}_loader')
    il = L.index(f'L_{kind}_loader:')
    ie = L.index(f'L_{kind}_end:') + 2
    assert L[ie - 1].strip() == 's_endpgm' and L[ib - 1].strip().startswith('s_cmp_ge_u32')
    L[ib - 1] = L[ib - 1].replace('s_cmp_ge_u32', 's_cmp_lt_u32')
    L[ib] = f'  s_cbranch_scc1 L_{kind}_compute'
    a.lines = L[:ib + 1] + L[il:ie] + [f'L_{kind}_compute:'] + L[ib + 1:il] + L[ie:]

def clear_flags(a, part, n=0):
    if not ONE: return
    if part == 0 and 'attn' not in OT: a.emit(f's_load_dwordx2 s[{SC}:{SC+1}], s[0:1], 72')
    a.emit(f's_or_b32 s3, s{S_LAYER}, s{S_WV}')
    a.emit(f's_cbranch_scc1 L_clr_skip{part}')
    if part == 0:
        srd(a, SP, 'ws0', WS_FL, FLS)
        a.emit('s_lshl_b32 s3, s2, 11')
        a.emit('v_lshlrev_b32 v2, 4, v1')
        a.emit(f'buffer_store_dwordx4 v[128:131], v2, s[{SP}:{SP+3}], s3 offen sc1')
        a.emit(f'buffer_store_dwordx4 v[128:131], v2, s[{SP}:{SP+3}], s3 offen offset:1024 sc1')
    else:
        a.emit('v_mov_b32 v3, 1')
        a.emit(f's_and_b32 s{SC+1}, s{SC+1}, 0xffff')
        a.emit(f's_mov_b32 s{SC+2}, 256')
        a.emit(f's_mov_b32 s{SC+3}, 0x00020000')
        a.emit('s_mov_b64 exec, 1')
        a.emit(f's_waitcnt vmcnt({n})')
        a.emit(f'buffer_store_byte v3, off, s[{SC}:{SC+3}], s2 sc1')
        a.emit('s_mov_b64 exec, -1')
    a.label(f'L_clr_skip{part}')

def mf_order(nn, nm, skip=lambda jn, jm: False):
    m = ENV('MFO', 's')
    if m == 'n': o = [(jn, jm) for jn in range(nn) for jm in range(nm)]
    elif m == 's': o = [(jn, jm if not jn & 1 else nm - 1 - jm) for jn in range(nn) for jm in range(nm)]
    elif m == 'm': o = [(jn, jm) for jm in range(nm) for jn in range(nn)]
    elif m == 'z': o = [(jn if not jm & 1 else nn - 1 - jn, jm) for jm in range(nm) for jn in range(nn)]
    elif m == 'd': o = [(i % nn, (i // nn + i % nn) % nm) for i in range(nn * nm)]
    return [x for x in o if not skip(*x)]
```

```python
from common import *

def ktab(a, vt, sh, P1, P2, tb):
    a.emit('v_and_b32 v2, 3, v1')
    a.emit('v_lshlrev_b32 v2, 3, v2')
    a.emit(f'v_bfe_i32 v{vt}, s{tb}, v2, 8')
    a.emit(f's_and_b32 s3, s{S_MT}, 3')
    a.emit(f's_mul_i32 s4, s3, {P2 // 4}')
    a.emit(f'v_add3_u32 v3, v{vt}, v1, s4')
    if P1 & (P2 - 1): a.emit(f'v_subrev_u32 v3, {P1}, v3')
    a.emit(f'v_and_b32 v3, {P2 - 1}, v3')
    if P1:
        MR = int(ENV('MR', '4'))
        if NV: a.emit(f'v_cmp_gt_u32 vcc, {NV}, v1')
        a.emit(f's_mul_i32 s3, s3, {MR // 4}')
        if NV:
            a.emit(f's_and_b32 s4, s{S_NT}, 1')
            a.emit(f'v_cndmask_b32_e64 v{vt+1}, {P1 - NV}, {NV}, vcc')
            a.emit(f'v_cndmask_b32_e64 v2, {P1 - 2 * NV}, {NV}, vcc')
            a.emit(f'v_add3_u32 v{vt}, v{vt}, v1, v2')
            for _ in range(2):
                a.emit(f'v_sub_u32 v2, v{vt}, v{vt+1}')
                a.emit(f'v_min_u32 v{vt}, v{vt}, v2')
            a.emit(f'v_cndmask_b32_e64 v2, {NV}, 0, vcc')
            a.emit(f'v_add_u32 v{vt}, v{vt}, v2')
        else:
            a.emit(f'v_add3_u32 v{vt}, v{vt}, v1, {P1}')
            a.emit(f's_bitcmp1_b32 s{S_NT}, 0')
            a.emit(f's_cselect_b32 s4, {P1}, 0')
            for _ in range(2):
                a.emit(f'v_subrev_u32 v2, {P1}, v{vt}')
                a.emit(f'v_min_u32 v{vt}, v{vt}, v2')
        if MR:
            a.emit(f'v_cmp_gt_u32 vcc, {MR}, v{vt}')
            a.emit(f'v_add_u32 v2, s3, v{vt}')
            a.emit(f'v_subrev_u32 v{vt+1}, {MR}, v2')
            a.emit(f'v_min_u32 v2, v{vt+1}, v2')
            a.emit(f'v_cndmask_b32 v{vt}, v{vt}, v2, vcc')
        a.emit(f'v_cmp_gt_u32 vcc, {P1}, v1')
        a.emit(f'v_lshl_add_u32 v{vt}, v{vt}, 1, s4' if NV else f'v_add_u32 v{vt}, s4, v{vt}')
        a.emit(f'v_add_u32 v3, {2 * P1}, v3')
        a.emit(f'v_cndmask_b32 v3, v3, v{vt}, vcc')
    a.emit(f'v_lshlrev_b32 v{vt}, {sh}, v3')

def ktab_ot(a, vt, sh, tb):
    KS = int(ENV('KS2', '1'))
    a.emit(f's_add_u32 s3, s{S_MT}, s{S_HD}')
    a.emit('s_and_b32 s3, s3, 3')
    for g in range(4):
        o = list(range(17))
        for t in range(KS + g, 14, 4): o[t:t + 3] = [t + 2, t, t + 1]
        assert o[0] == 0 and o[16] == 16
        v = sum(((t - o[t]) & 3) << (2 * t) for t in range(16))
        if g: a.emit(f's_cmp_eq_u32 s3, {g}')
        a.emit(f's_cselect_b32 s4, {v:#x}, s4' if g else f's_mov_b32 s4, {v:#x}')
    a.emit('v_subrev_u32 v2, 3, v1')
    a.emit('v_lshlrev_b32 v3, 1, v2')
    a.emit(f'v_bfe_i32 v{vt}, s4, v3, 2')
    a.emit(f'v_sub_u32 v{vt}, v1, v{vt}')
    a.emit(f'v_subrev_u32 v{vt}, 6, v{vt}')
    a.emit(f'v_ashrrev_i32 v3, 1, v{vt}')
    a.emit(f'v_cmp_eq_u32 vcc, s{S_HD}, v3')
    a.emit(f's_and_b32 s3, s{S_NT}, 1')
    a.emit(f'v_or_b32 v2, 14, v{vt}')
    a.emit(f'v_cndmask_b32 v2, v{vt}, v2, vcc')
    a.emit(f'v_cmp_gt_i32 vcc, 0, v{vt}')
    a.emit('s_lshl2_add_u32 s4, s3, 19')
    a.emit(f'v_add_u32 v{vt}, s4, v{vt}')
    a.emit('s_lshl4_add_u32 s4, s3, 24')
    a.emit('v_add_u32 v2, s4, v2')
    a.emit(f'v_cndmask_b32 v{vt}, v2, v{vt}, vcc')
    a.emit('v_and_b32 v2, 3, v1')
    a.emit('v_lshlrev_b32 v2, 3, v2')
    a.emit(f'v_bfe_i32 v3, s{tb}, v2, 8')
    a.emit(f's_lshl2_add_u32 s5, s{S_MT}, 12')
    a.emit('v_add3_u32 v3, v3, v1, s5')
    a.emit('v_and_b32 v2, 7, v3')
    a.emit(f'v_cmp_eq_u32 vcc, s{S_HD}, v2')
    a.emit('v_bfe_u32 v2, v3, 3, 1')
    a.emit('v_lshl_add_u32 v2, v2, 2, 19')
    a.emit('v_and_b32 v3, 15, v3')
    a.emit('v_cndmask_b32 v3, v3, v2, vcc')
    a.emit('v_cmp_gt_u32 vcc, 20, v1')
    a.emit(f's_lshl1_add_u32 s4, s{S_HD}, s4')
    a.emit(f's_lshl3_add_u32 s3, s3, s{S_HD}')
    a.emit(f'v_cndmask_b32 v3, v3, v{vt}, vcc')
    a.emit('v_writelane_b32 v3, s4, 0')
    a.emit('s_add_u32 s4, s4, 1')
    a.emit('v_writelane_b32 v3, s3, 2')
    a.emit('v_writelane_b32 v3, s4, 1')
    a.emit(f'v_lshlrev_b32 v{vt}, {sh}, v3')

EVX, EVT, EVB = 24, 30, 27; EBIA = [4, 10, 124, 126]; ERING = [128, 144, 224, 64, 80, 240]
def w2_pre(a):
    P1 = int(ENV('P1', '20'))
    tile_map(a, 2, None, pair=True)
    rot_table(a, S_TB, S_MT, S_HD, 'w2')
    ktab(a, EVT, 11, P1, 56 - 2 * P1, S_TB)
    a.emit(f's_lshl_b32 s8, s{S_MT}, 7')
    a.emit(f's_lshl_b32 s9, s{S_WV}, 5')
    a.emit('s_add_u32 s8, s8, s9')
    a.emit('s_mul_i32 s9, s8, 7168')
    a.emit(f'v_lshl_add_u32 v{EVX}, v1, 4, s9')
    a.emit(f'v_add_u32 v{EVX+1}, {16*7168}, v{EVX}')
    a.emit('v_lshrrev_b32 v2, 4, v1')
    a.emit(f's_lshl_b32 s10, s{S_NT}, 7')
    a.emit(f'v_lshl_add_u32 v{EVB}, v2, 3, s10')

def w2_early(a):
    NG = int(ENV('NG2', '3'))
    for x in range(NG): a.emit(f'v_readlane_b32 s{SR+x}, v{EVT}, {x}')
    srd(a, SB, 'b2', 0, 2048)
    srd(a, SX, 'ws', WS_H, 2048 * 7168)
    for jn in range(4):
        a.emit(f'buffer_load_dwordx2 v[{EBIA[jn]}:{EBIA[jn]+1}], v{EVB}, s[{SB}:{SB+3}], 0 offen offset:{jn*32}')
    for x in range(NG):
        for ks in range(2):
            for jm in range(2):
                r = ERING[x] + (ks * 2 + jm) * 4
                a.emit(f'buffer_load_dwordx4 v[{r}:{r+3}], v{EVX+jm}, s[{SX}:{SX+3}], s{SR+x} offen offset:{ks*1024}')

def gen_gemm64y(a, kind, tsidx, side):
    K = 1024 if kind == 'wo' else 3584
    lda2 = K * 2; ldw2 = 2048
    N = K // 64
    P1 = int(ENV('P1', '20')) if kind == 'w2' else 0
    P2 = N - 2 * P1
    B16 = ENV('XB16', '1') == '1'
    NXC = 4 if B16 else 8; CH = NXC * 1024
    G0, GW = (131072, 28672) if kind == 'wo' else (0, 0)
    def slot(t):
        if kind == 'wo' and 'w1' in OT: return 28672 + 8192 * t + (4096 if t >= 12 else 0)
        g = G0 + (t >> 2) * 32768
        if g >= 163840: g = GW + (g - 163840) % (163840 - GW)
        return g + (t & 3) * 8192
    XB = 131072; assert P1 in (0, 20, 24)
    NPRE = int(ENV('NPREO', '16')) if kind == 'wo' else int(ENV('NPRE', '20'))
    PSTEP = 64 if kind == 'w2' else 1024
    body = f'L_{kind}_body'; end = f'L_{kind}_end'
    VXO, VWB, VWA, VO, VT, VE = 4, 6, 26, 12, 15, 19
    XR = 32; FW = [160, 192]; ACC = [128, 96]; D = 240; BIA = 192
    SPC = NV if P1 else 0
    BIA = [BIA + 2 * jn for jn in range(4)]
    if SPC: VXO, VT, ACC, BIA = EVX, EVT, [32, 96], EBIA
    ot = kind == 'w2' and 'w2' in OT
    if ot: BIA = OBIA; assert P1 == 20 and not SPC
    acc = lambda jn, jm, u=1: ACC[u] + (jn * 2 + jm) * 4
    fx = lambda r, ks, jm: XR + 16 * r + (ks * 2 + jm) * 4
    fw = lambda s, ks, jn: FW[s] + (ks * 4 + jn) * 4
    a.label(f'L_{kind}_c0')
    a.label(body)
    tile_map(a, 2, end, pair=True)
    rot_table(a, S_TB, S_MT, S_HD, kind)
    a.emit(f's_cmp_ge_u32 s{S_WV}, 4')
    a.emit(f's_cbranch_scc1 L_{kind}_loader')
    if ot:
        a.emit(f's_lshl_b32 s3, s{S_WV}, 12')
        a.emit(f's_add_u32 s3, s3, {OHB}')
        a.emit('v_lshl_add_u32 v2, v1, 4, s3')
        for i in range(12): a.emit(f'ds_read_b128 v[{32+4*i}:{35+4*i}], v2 offset:{(i>>2)*16384+(i&1)*2048+(i&2)*512}')
        ktab_ot(a, VT, 11, S_TB)
        if ENV('RE', '1') == '1':
            a.emit('s_waitcnt lgkmcnt(0)')
            a.emit('s_barrier')
    elif SPC: tile_map(a, 2, None, pair=True)
    else: ktab(a, VT, 11, P1, P2, S_TB)
    a.emit('v_and_b32 v3, 15, v1')
    a.emit('v_lshrrev_b32 v2, 4, v1')
    a.emit(f's_lshl_b32 s8, s{S_MT}, 7')
    a.emit(f's_lshl_b32 s9, s{S_WV}, 5')
    a.emit('s_add_u32 s8, s8, s9')
    a.emit(f's_mul_i32 s9, s8, {lda2}')
    if 'xsm' in DBG:
        a.emit('s_and_b32 s9, s8, 0x67f')
        a.emit(f's_mul_i32 s9, s9, {lda2}')
    if not SPC and ENV('TID', '1') != '1':
        a.emit(f'v_lshl_add_u32 v{VXO}, v1, 4, s9')
        a.emit(f'v_add_u32 v{VXO+1}, {16*lda2}, v{VXO}')
    a.emit('v_add_u32 v13, s8, v3')
    a.emit(f's_lshl_b32 s10, s{S_NT}, 7')
    a.emit('v_lshl_add_u32 v14, v2, 3, s10')
    a.emit('v_and_b32 v16, 1, v2')
    a.emit('v_lshrrev_b32 v17, 1, v2')
    if kind == 'w2':
        a.emit('v_lshlrev_b32 v16, 5, v16')
        a.emit('v_lshl_add_u32 v16, v17, 4, v16')
        if 'attn' in OT:
            a.emit('v_lshlrev_b32 v4, 3, v3')
            a.emit('v_and_b32 v4, 0x70, v4')
            a.emit('v_xor_b32 v4, v4, v16')
            a.emit('v_lshl_add_u32 v4, v3, 7, v4')
            a.emit(f's_lshl_b32 s3, s{S_WV}, 12')
            a.emit('v_add_u32 v4, s3, v4')
            a.emit('v_xor_b32 v5, 64, v4')
        a.emit('v_add_u32 v16, s10, v16')
        xpitch(a, 7, True)
        a.emit(f'v_mad_u32_u24 v{VO}, v13, s7, v16')
    else:
        a.emit('v_lshl_add_u32 v16, v16, 1, v17')
        a.emit('v_lshlrev_b32 v16, 8, v16')
        a.emit('v_lshl_add_u32 v16, v3, 4, v16')
        a.emit(f's_add_u32 s9, s8, s{S_NT}')
        a.emit('s_lshl_b32 s9, s9, 11')
        a.emit(f'v_add_u32 v{VO}, s9, v16')
        if 'w1' in OT:
            a.emit(f's_lshl_b32 s9, s{S_WV}, 12')
            a.emit(f'v_add_u32 v{VE}, s9, v16')
    a.emit('v_lshl_add_u32 v18, v17, 4, v13')
    a.emit('v_lshlrev_b32 v18, 3, v18')
    a.emit('v_and_b32 v16, 1, v2')
    a.emit('v_lshl_add_u32 v18, v16, 2, v18')
    a.emit(f's_lshl_b32 s10, s{S_NT}, 14')
    a.emit('v_add_u32 v18, s10, v18')
    wbase(a, VWB, 17)
    for i in range(1, 4): a.emit(f'v_xor_b32 v{VWB+i}, {32*i}, v{VWB}')
    a.emit('s_mov_b32 s11, 0xffff0000')
    if kind == 'wo':
        srd(a, SX, 'ws', WS_O, 4 * MB)
        srd(a, SO, 'ws', WS_X1, 4 * MB)
    else:
        if not SPC:
            if not ot: srd(a, SB, 'b2', 0, 2048)
            for jn in range(0 if ot else 4):
                a.emit(f'buffer_load_dwordx2 v[{BIA[jn]}:{BIA[jn]+1}], v14, s[{SB}:{SB+3}], 0 offen offset:{jn*32}')
            srd(a, SX, 'ws', WS_H, 2048 * 7168)
        srd(a, SO, 'out', 0, 4 * MB)
        srd(a, SR, 'ws0', WS_X2, 4 * MB)
        a.emit(f's_cmp_eq_u32 s{S_LAYER}, 0')
        a.emit(f's_cselect_b64 s[{SO}:{SO+1}], s[{SR}:{SR+1}], s[{SO}:{SO+1}]')
        a.emit(f's_lshl_b32 s{SO+2}, s7, 11')
    srd(a, ST, 'ws', WS_ST if kind == 'wo' else WS_ST2, 16 * 16384)
    TID = ENV('TID', '1') == '1'
    if TID:
        a.emit(f's_mul_i32 s9, s8, {lda2}')
        a.emit(f's_add_u32 s{SX}, s{SX}, s9')
        a.emit(f's_addc_u32 s{SX+1}, s{SX+1}, 0x100000')
        a.emit(f's_add_u32 s{SC}, s{SX}, {16 * lda2}')
        a.emit(f's_addc_u32 s{SC+1}, s{SX+1}, 0')
        for r in (SX, SC):
            a.emit(f's_mov_b32 s{r+2}, {16 * lda2}')
            a.emit(f's_mov_b32 s{r+3}, 0x00800000')
    if kind == 'wo': code_touch(a, 'L_w1_c0', 'L_w1_c1', 128, SW)
    DX = int(ENV('DX', '2'))
    CLW = DX == 1 and not P1 and ENV('CLP', 'e') == 'w'
    if CLW:
        for i in range(4): a.emit(f'v_mov_b32 v{128+i}, -1')
    if (P1 and DX) or CLW:
        srd(a, SP, 'ws', WS_XP, 4 * MB)
        a.emit(f's_or_b32 s{SP+1}, s{SP+1}, 0x100000')
        a.emit(f's_mov_b32 s{SP+3}, 0x00800000')
        a.emit(f's_lshl4_add_u32 s4, s{S_MT}, s{S_NT}')
        a.emit(f's_lshl2_add_u32 s4, s4, s{S_WV}')
        if DX == 2:
            srd(a, SB, 'ws0', WS_FL, FLS)
            a.emit(f's_add_u32 s6, s{S_LAYER}, 4')
            a.emit('s_lshl_b32 s6, s6, 10')
            a.emit('s_add_u32 s6, s6, s4')
            a.emit('s_lshl_b32 s6, s6, 6')
            a.emit(f'v_mov_b32 v{VE}, 1')
        a.emit('s_lshl_b32 s4, s4, 12')
        a.emit('s_xor_b32 s5, s4, 16384')
    elif P1:
        a.emit(f's_mul_i32 s3, s{S_WV}, {CH}')
        a.emit(f's_add_u32 s3, s3, {XB}')
        a.emit(f'v_lshl_add_u32 v{VE}, v1, 4, s3')
    if P1 and not ot:
        for i in range(32): a.emit(f'v_mov_b32 v{ACC[0]+i}, 0')
    bases = []
    for t in sorted(range(min(N, 20)), key=slot):
        if not bases or slot(t) + 8191 - bases[-1] > 65535: bases.append(slot(t))
    VSET = [VWB, 20, 26]
    for k in (2, 1, 0):
        for i in range(4):
            if bases[k] or k: a.emit(f'v_add_u32 v{VSET[k]+i}, {bases[k]}, v{VWB+i}')
    xof = lambda t: t >> 1 if t < 2 * P1 else t - P1
    NX = P1 + P2
    last = lambda x: 2 * x + 1 if x < P1 else x + P1
    def xl(x, reg):
        if TID: return [(f'buffer_load_dwordx4 v[{reg+(ks*2+jm)*4}:{reg+(ks*2+jm)*4+3}], off, s[{(SX, SC)[jm]}:{(SX, SC)[jm]+3}], s{SR+(x&3)} offset:{ks*1024}', 'V', ('x', x, ks))
                for ks in range(2) for jm in range(2)]
        return [(f'buffer_load_dwordx4 v[{reg+(ks*2+jm)*4}:{reg+(ks*2+jm)*4+3}], v{VXO+jm}, s[{SX}:{SX+3}], s{SR+(x&3)} offen offset:{ks*1024}', 'V', ('x', x, ks))
                for ks in range(2) for jm in range(2)]
    def reads(t):
        o = []
        k = max(i for i, b in enumerate(bases) if b <= slot(t))
        for ks in range(2):
            for jn in range(4):
                for h in range(2):
                    d = fw(t & 1, ks, jn) + 2 * h
                    o.append((f'ds_read_b64_tr_b16 v[{d}:{d+1}], v{VSET[k]+jn} offset:{slot(t)-bases[k]+ks*4096+h*512}', 'L', ('w', t, ks)))
        return o
    xreg = {}
    def mf(t):
        o = []
        for ks in range(2):
            for jn, jm in mf_order(4, 2):
                if True:
                    c = acc(jn, jm, t & 1 if t < 2 * P1 else 1); x = xreg[xof(t)] + (ks * 2 + jm) * 4
                    o.append(f'v_mfma_f32_16x16x32_bf16 v[{c}:{c+3}], v[{fw(t&1,ks,jn)}:{fw(t&1,ks,jn)+3}], v[{x}:{x+3}], ' + ('0' if ot and t == ks == 0 else f'v[{c}:{c+3}]'))
        return o
    U = kind[1].upper()
    NG = int(ENV('NG' + U, '3'))
    ring = [32, 48, 64, 80, 224, 240][:int(ENV('RING' + U, '6' if P1 else '4'))]
    NB = int(ENV('NB', '3'))
    if SPC: ring = ERING
    elif ot:
        assert NG == 3
        for x in range(3, 3 + NB): a.emit(f'v_readlane_b32 s{SR+(x&3)}, v{VT}, {x}')
    else:
        for x in range(NG): a.emit(f'v_readlane_b32 s{SR+x}, v{VT}, {x}')
    for i in range(4):
        for h in range(2): a.emit(f'v_permlane16_swap_b32 v{D+4*i+h}, v{D+4*i+2+h}')
    TF = int(ENV('TF', '-1')); TG = int(ENV('TG', '15'))
    import pads
    for x in pads.chain('hg') if kind == 'wo' else []: a.emit(x)
    a.emit('s_waitcnt lgkmcnt(0)' + (f' vmcnt({4 * NG + 4 if EX == 14 else 0})' if SPC and TF < 0 else ''))
    if not (ot and ENV('RE', '1') == '1'): a.emit('s_barrier')
    pre = []
    for x in range(NG):
        xreg[x] = ring[x]; pre += xl(x, ring[x])
    if SPC: pre = [('', k, tg) for _, k, tg in pre] + [('', 'V', 'st')] * (14 - EX)
    if ot: pre = [('', 'L', tg) for _, k, tg in pre]
    pre += reads(0)
    P = lambda x: (x, '', None)
    if kind == 'w2' and not ot: pre.append(P(f's_waitcnt vmcnt({len(pre) - 16})'))
    for jn in range(4):
        if kind == 'w2':
            for h in range(2):
                pre.append(P(f'v_lshlrev_b32 v{216+2*h}, 16, v{BIA[jn]+h}'))
                pre.append(P(f'v_and_b32 v{217+2*h}, s11, v{BIA[jn]+h}'))
        for jm in range(2):
            c = acc(jn, jm); r = D + (jm * 4 + jn) * 2
            for h in range(2):
                pre.append(P(f'v_lshlrev_b32 v{c+2*h}, 16, v{r+h}'))
                pre.append(P(f'v_and_b32 v{c+2*h+1}, s11, v{r+h}'))
                if kind == 'w2': pre.append(P(f'v_pk_add_f32 v[{c+2*h}:{c+2*h+1}], v[{c+2*h}:{c+2*h+1}], v[{216+2*h}:{217+2*h}]'))
    pre.append(('', 'W', [('w', 0, 0), ('x', 0, 0)]))
    if TS:
        b = Asm(); stamp(b, 1); pre += [P(l.strip()) for l in b.lines]
    gp = [[] for _ in range(16 * N + 1)]
    waits = {}
    for t in range(N):
        if t + 1 < N:
            for i, x in enumerate(reads(t + 1)): gp[16 * t + i].append(x)
        for g, tt, ks in ((16 * t + 7, t, 1), (16 * t + 15, t + 1, 0)):
            if tt < N:
                waits[g] = [('w', tt, ks), ('x', xof(tt), ks)]
                gp[g].append(('', 'W', waits[g]))
    def put(g, x, cap=2):
        while len(gp[g]) >= cap and g < 16 * N: g += 1
        gp[g].append(x); return g
    BP = int(ENV('BP', '4'))
    ZS = int(ENV('ZS', '50' if DX else '54')) if P1 else N - 1
    XS = int(ENV('XS', '45' if DX else '41'))
    PS = int(ENV('PS', '0'))
    bars = list(range(BP - 1, 2 * P1, BP)) + [XS] + ([PS] if PS else []) + ([] if DX == 1 else [ZS]) if P1 else [int(x) for x in ENV('BWO', '3,10' if 'w1' in OT else '3,7,12').split(',')]
    if SPC:
        bars = [TF] + [t for t in bars if t > TF + 1]
        assert TG in bars
        if EX < 14 and TF >= 0: waits[16 * TF + 7].append('st')
    if ot: bars = [int(x) for x in ENV('BW2', '2,7').split(',')] + bars[2:]
    for t in bars:
        if t >= 0: gp[16 * t + 7].append(P('s_barrier'))
    G = ACC[0]; GI = G + 16 if B16 else G
    pool = [[r, -1 if i >= NG else 16 * last(i) + 15, N] for i, r in enumerate(ring)]
    if P1:
        for i in range(int(ENV('RINGX', '0'))): pool.append([G + 16 * i, 16 * XS + 7, ZS])
    SP1 = int(ENV('SP1', '7')); SP2 = int(ENV('SP2', '3'))
    g = 0
    for x in range(NG, NX):
        sl = min((p for p in pool if last(x) < p[2]), key=lambda p: p[1])
        xreg[x] = sl[0]
        if SPC and x == SPC: g = max(g, 16 * TG + 7)
        if ot and x < 3 + NB:
            g = 16 * bars[0] + 7
            gp[g] += xl(x, sl[0]); sl[1] = 16 * last(x) + 15; g += 3
            continue
        g = put(max(g - 2, sl[1] - 2, 0), P(f'v_readlane_b32 s{SR+(x&3)}, v{VT}, {x}')) + 3
        sp = SP1 if len(ring) + (int(ENV('CU2', '2')) if ot else 0) <= x and g < 16 * int(ENV('SPE', str(2 * P1))) else SP2
        sps = [int(c) for c in ENV('SP3', '4')] if P1 and 12 <= x and sp == SP2 else [sp]
        for i, y in enumerate(xl(x, sl[0])): g = put(max(g, sl[1] + 1), y) + sps[i % len(sps)]
        sl[1] = 16 * last(x) + 15
    for i in range(4): put(16 * (N - 1), P(f'v_mov_b32 v{20+i}, 0'))
    if CLW:
        g = max(g, int(16 * float(ENV('CLG', '0'))))
        for i in range(4): g = put(g, (f'buffer_store_dwordx4 v[128:131], off, s[{SP}:{SP+3}], s4 offset:{1024*i} sc1', 'V', 'cl')) + int(ENV('CLD', '2'))
    def xld(i): return f'buffer_load_dwordx4 v[{GI+4*i}:{GI+4*i+3}], off, s[{SP}:{SP+3}], s5 offset:{1024*i} sc1'
    def vmax(d, r):
        return [f'v_max3_u32 v{d}, v{r}, v{r+1}, v{r+2}'] + [f'v_max3_u32 v{d}, v{d}, v{r+j}, v{r+j+1}' for j in range(3, 15, 2)] + [f'v_max_u32 v{d}, v{d}, v{r+15}', f'v_cmp_eq_u32 vcc, -1, v{d}']
    if P1 and DX:
        g = 16 * (2 * P1 - 1) + 2
        for i in range(4):
            for j in range(4 * i, 4 * i + 4): g = put(g, P(f'v_cvt_pk_bf16_f32 v{G+j}, v{G+2*j}, v{G+2*j+1}'))
            put(max(g + 1, 16 * (2 * P1 - 1) + 6 + i * int(ENV('XWS', '0'))), (f'buffer_store_dwordx4 v[{G+4*i}:{G+4*i+3}], off, s[{SP}:{SP+3}], s4 offset:{1024*i} sc1', 'V', 'xw'))
        g = int(16 * float(ENV('RS', '50')))
        if DX == 2:
            g = put(int(16 * float(ENV('FS', '43'))), ('', 'W', ['xw']))
            put(g, (f'buffer_store_dword v{VE}, off, s[{SB}:{SB+3}], s6 sc1', 'V', 'xf'))
            g = 16 * ZS + 8
        for i in range(4): g = put(g, (xld(i), 'V', 'xr')) + int(ENV('RSP', '2'))
        g = put(int(16 * float(ENV('VS', '53.5' if DX == 1 else '54'))), ('', 'W', ['xr']))
        if DX == 1:
            for y in vmax(VE, GI): g = put(g, P(y))
            g = put(g + 1, P(f's_cbranch_vccnz L_{kind}_xrt\nL_{kind}_xok:'))
        for i in range(16):
            g = put(g, P(f'v_lshlrev_b32 v{G+2*i}, 16, v{GI+i}'), 2 if g < 16 * (N - 1) else 3)
            g = put(g, P(f'v_and_b32 v{G+2*i+1}, s11, v{GI+i}'), 2 if g < 16 * (N - 1) else 3)
    elif P1:
        g = 16 * (2 * P1 - 1) + 2
        for i in range(NXC):
            if B16:
                for j in range(4 * i, 4 * i + 4): g = put(g, P(f'v_cvt_pk_bf16_f32 v{G+j}, v{G+2*j}, v{G+2*j+1}'))
            gw = put(max(g + 1, 16 * (2 * P1 - 1) + 8 + 2 * i), (f'ds_write_b128 v{VE}, v[{G+4*i}:{G+4*i+3}] offset:{1024*i}', 'L', 'xw'))
        assert gw < 16 * XS + 7
        waits[16 * XS + 7].append('xw')
        g = 16 * ZS + 8
        for i in range(NXC): g = put(g, (f'ds_read_b128 v[{GI+4*i}:{GI+4*i+3}], v{VE} offset:{1024*i}', 'L', 'xr')) + 1
        g = put(max(g + 6, 16 * (N - 1)), ('', 'W', ['xr']))
        if B16:
            for i in range(16):
                g = put(g, P(f'v_lshlrev_b32 v{G+2*i}, 16, v{GI+i}'), 3)
                g = put(g, P(f'v_and_b32 v{G+2*i+1}, s11, v{GI+i}'), 3)
    XG = int(ENV('XG', '1'))
    if XG:
        isr = lambda y: y[1] == 'L' and y[2][0] == 'w'
        for g in range(16 * N - 1):
            if len(gp[g]) == 2 and gp[g][1][1] == 'V' and isr(gp[g][0]):
                for d in ((1, -1) if XG == 1 else (-1, 1)):
                    if len(gp[g + d]) == 1 and isr(gp[g + d][0]) and (d > 0 or g & 15):
                        gp[g + d].insert(0 if d > 0 else 1, gp[g].pop(0)); break
    lin = list(pre)
    for t in range(N):
        for i, m in enumerate(mf(t)):
            lin.append(P(m)); lin += gp[16 * t + i]
        if TS and t == int(ENV('ST2', '99')):
            b = Asm(); stamp(b, 2); lin += [P(l.strip()) for l in b.lines]
    lin += gp[16 * N]
    iss = {'L': [], 'V': []}; done = {'L': -1, 'V': -1}
    for txt, k, tag in lin:
        if k == 'W':
            o = []
            for c, nm, mx in (('V', 'vmcnt', 63), ('L', 'lgkmcnt', 15)):
                idx = [i for i, x in enumerate(iss[c]) if x in tag]
                if idx and max(idx) > done[c]:
                    n = min(mx, len(iss[c]) - 1 - max(idx)); done[c] = len(iss[c]) - 1 - n
                    o.append(f'{nm}({n})')
            assert all(x in iss['L'] or x in iss['V'] for x in tag), tag
            if o: a.emit('s_waitcnt ' + ' '.join(o))
            continue
        if k: iss[k].append(tag)
        if ('nox' in DBG and k == 'V') or ('nomfma' in DBG and 'mfma' in txt) or not txt: continue
        a.emit(txt)
    if int(ENV('ST2', '99')) >= N: stamp(a, 2)
    a.emit(f's_mov_b32 s3, {16*2048}' if kind == 'wo' else 's_lshl_b32 s3, s7, 4')
    a.emit('s_mov_b32 s10, 0x3f803f80')
    a.emit('s_nop 4')
    for jm in range(2):
        for p in range(2):
            d = D + (jm * 2 + p) * 4
            for q in range(2):
                c = acc(2 * p + q, jm); g = acc(2 * p + q, jm, 0)
                if P1:
                    for h in range(2): a.emit(f'v_pk_add_f32 v[{c+2*h}:{c+2*h+1}], v[{c+2*h}:{c+2*h+1}], v[{g+2*h}:{g+2*h+1}]')
                a.emit(f'v_cvt_pk_bf16_f32 v{d+2*q}, v{c}, v{c+1}')
                a.emit(f'v_cvt_pk_bf16_f32 v{d+2*q+1}, v{c+2}, v{c+3}')
            a.emit('s_nop 1')
            a.emit(f'v_permlane16_swap_b32 v{d}, v{d+2}')
            a.emit(f'v_permlane16_swap_b32 v{d+1}, v{d+3}')
            a.emit(f'buffer_store_dwordx4 v[{d}:{d+3}], v{VO}, s[{SO}:{SO+3}], {"s3" if jm else "0"} offen offset:{p*PSTEP}{stf(kind)}')
            if kind == 'w2' and 'attn' in OT: a.emit(f'ds_write_b128 v{4+p}, v[{d}:{d+3}] offset:{jm*2048}')
            if kind == 'wo' and 'w1' in OT: a.emit(f'ds_write_b128 v{VE}, v[{d}:{d+3}] offset:{jm*2048+p*1024}')
    for jm in range(2):
        for i in range(8):
            d = D + jm * 8 + i
            a.emit(f'v_dot2_f32_bf16 v{20+jm}, v{d}, s10, v{20+jm}')
            a.emit(f'v_dot2_f32_bf16 v{22+jm}, v{d}, v{d}, v{22+jm}')
    a.emit('s_nop 2')
    a.emit('v_permlane32_swap_b32 v20, v21')
    a.emit('v_permlane32_swap_b32 v22, v23')
    a.emit('v_add_f32 v20, v20, v21')
    a.emit('v_add_f32 v22, v22, v23')
    a.emit('s_nop 1')
    a.emit('v_permlane16_swap_b32 v20, v22')
    a.emit('v_add_f32 v20, v20, v22')
    a.emit(f'buffer_store_dword v20, v18, s[{ST}:{ST+3}], 0 offen{stf(kind)}')
    compute_end(a, kind)
    if P1 and DX == 1:
        a.label(f'L_{kind}_xrt')
        a.emit('s_mov_b32 s6, 0x40000')
        a.label(f'L_{kind}_xrl')
        for i in range(4): a.emit(xld(i))
        a.emit('s_sub_u32 s6, s6, 1')
        a.emit('s_waitcnt vmcnt(0)')
        a.emit(f's_cbranch_scc1 L_{kind}_xok')
        for y in vmax(VE, GI): a.emit(y)
        a.emit(f's_cbranch_vccnz L_{kind}_xrl')
        a.emit(f's_branch L_{kind}_xok')
    a.label(f'L_{kind}_loader')
    VT = 16
    if ENV('LPRIO'): a.emit(f"s_setprio {ENV('LPRIO')}")
    if kind == 'wo':
        if LSTK == 'wo': lstamp(a, 0)
        import sides
        dep_pre(a, kind, 0)
        a.emit(f's_cmp_lg_u32 s{S_LAYER}, 0')
        a.emit(f's_cbranch_scc1 L_{kind}_nofirst')
        sides.qkv(a, 0, 'finish', 1)
        a.label(f'L_{kind}_nofirst')
    L = Loader(a, kind, K, lda2, ldw2, [0], 128, 2, 8192, xblk=True)
    L.panels_of = lambda t: [f's{S_XD}'] if t < 2 * P1 and not t & 1 else [0]
    if ot: ktab_ot(a, VT, 17, S_TB)
    else: ktab(a, VT, 17, P1, P2, S_TB)
    a.emit(f's_add_u32 s9, s{S_WV}, s{S_MT}')
    a.emit('s_and_b32 s9, s9, 3')
    a.emit(f's_lshl_b32 s{S_WD}, s9, 11')
    a.emit('v_and_b32 v10, 7, v1')
    if 'wsm' in DBG:
        a.emit(f's_and_b32 s11, s{S_NT}, 1')
        wvoff(a, L.VWD, 9, 11, ldw2)
    elif 'noslow2' in DBG:
        a.emit(f's_bitcmp1_b32 0x0c0c, s{S_NT}')
        a.emit('s_cselect_b32 s11, 2, 0')
        a.emit(f's_add_u32 s11, s11, s{S_NT}')
        wvoff(a, L.VWD, 9, 11, ldw2)
    else: wvoff(a, L.VWD, 9, S_NT, ldw2)
    if kind == 'wo': srd(a, SW, 'wo', 0, 2 * MB)
    else:
        srd(a, SW, 'w2', 0, 3584 * 2048)
        a.emit(f's_bitcmp1_b32 s{S_NT}, 0')
        a.emit(f's_mov_b32 s{S_XD}, 128')
        a.emit(f's_cselect_b32 s{S_XD}, -128, s{S_XD}')
    NPF = int(ENV('NPF' + kind[1].upper(), '10'))
    assert NPRE - NPF <= 18
    seq = []
    def em(o):
        for x in o:
            if ('nodma' in DBG or ('nodma2' in DBG and len(seq) >= 40)) and x.endswith(' lds'): continue
            a.emit(x)
    def after(t): return len(seq) - 1 - max(i for i, x in enumerate(seq) if x == t)
    NPK = int(ENV('NPK', '0')) if P1 else 0
    PK0 = int(ENV('PK0', '20')); PKA = int(ENV('PKA', '0'))
    PKD = int(ENV('PKD', '1'))
    pks = [t for t in range(PK0, N) if ((t - PK0) >> 1) % PKD == 0][:NPK]
    pkr = lambda t: 256 - 8 * NPK + 8 * pks.index(t)
    assert 256 - 8 * NPK >= 48
    if NPK:
        a.emit(f'v_lshl_add_u32 v20, v1, 4, s{S_WD}')
        a.emit('v_add_u32 v21, 0x10000, v20')
        a.emit('v_add_u32 v22, 0x20000, v20')
    lastk = [None]
    def kw(t):
        x = t >> 1 if t < 2 * P1 else t - P1
        if lastk[0] != x: a.emit(f'v_readlane_b32 s{S_KW}, v{VT}, {x}')
        lastk[0] = x
    def pk(t):
        kw(t)
        a.emit(f's_add_u32 s4, s{S_KW}, {L.panels_of(t)[0]}')
        for i in range(2): a.emit(f'buffer_load_dwordx4 v[{pkr(t)+4*i}:{pkr(t)+4*i+3}], v{L.VWD+i}, s[{SW}:{SW+3}], s4 offen')
        seq.extend([('P', t)] * 2)
    vmdone = [-1]
    def iw(t):
        if t in pks:
            i = max(i for i, x in enumerate(seq) if x == ('P', t))
            if i > vmdone[0]:
                a.emit(f's_waitcnt vmcnt({min(63, len(seq) - 1 - i)})'); vmdone[0] = i
            for i in range(0 if 'nopw' in DBG else 2): a.emit(f'ds_write_b128 v{20+(slot(t)>>16)}, v[{pkr(t)+4*i}:{pkr(t)+4*i+3}] offset:{(slot(t)&65535)+1024*i}')
            return
        kw(t)
        em(L.issue_w(t, S_WD, slot(t)))
        seq.extend([t] * 2)
    if kind == LSTK == 'wo': lstamp(a, 1)
    CW = [int(x) for x in ENV('CW', '0').split(',')] if P1 else []
    cwk = list(range(NPRE // 2, P1)) + list(range(2 * P1, N)); cwn = [0]
    if sum(CW):
        srd(a, SR, 'w2', 0, 3584 * 2048)
        a.emit(f's_and_b32 s3, s{S_WV}, 3')
        a.emit(f's_lshl2_add_u32 s3, s{S_CU}, s3')
        a.emit('s_lshl_b32 s4, s3, 6')
        a.emit('s_and_b32 s4, s4, 64')
        a.emit('s_lshr_b32 s3, s3, 1')
        a.emit('s_lshl_b32 s3, s3, 11')
        a.emit('s_add_u32 s3, s3, s4')
        a.emit(f's_sub_u32 s4, 384, s{SW}')
        a.emit('s_and_b32 s4, s4, 0x380')
        a.emit(f's_add_u32 s{S_Q}, s3, s4')
        a.emit(f's_bitcmp1_b32 s{S_NT}, 0')
        a.emit(f's_cselect_b32 s3, {P1 << 17}, 0')
        a.emit(f's_add_u32 s{S_T}, s{S_Q}, s3')
        a.emit('s_lshr_b32 s4, s4, 7')
        a.emit(f's_xor_b32 s4, s4, s{S_NT}')
        a.emit('s_bitcmp1_b32 s4, 0')
        a.emit(f's_cselect_b32 s{SR+2}, 0, s{SR+2}')
    def cw(j):
        for k in cwk[cwn[0]:cwn[0] + (CW[j] if j < len(CW) else 0)]:
            a.emit(f's_add_u32 s3, s{S_T if k < P1 else S_Q}, {k << 17}')
            for i in range(2): a.emit(f's_buffer_load_dword s84, s[{SW if k < P1 else SR}:{(SW if k < P1 else SR)+3}], s3 offset:{1024*i}')
            cwn[0] += 1
    def clr(w):
        if DX != 1 or P1 or w != ENV('CLP', 'e'): return
        srd(a, SP, 'ws', WS_XP, 4 * MB)
        a.emit(f's_and_b32 s5, s{S_WV}, 3')
        a.emit(f's_lshl4_add_u32 s6, s{S_MT}, s{S_NT}')
        a.emit('s_lshl2_add_u32 s6, s6, s5')
        a.emit('s_lshl_b32 s6, s6, 12')
        a.emit('s_setprio 3')
        a.emit('v_lshlrev_b32 v3, 4, v1')
        for i in range(4): a.emit(f'v_mov_b32 v{24+i}, -1')
        for i in range(4): a.emit(f'buffer_store_dwordx4 v[24:27], v3, s[{SP}:{SP+3}], s6 offen offset:{1024*i} sc1')
        a.emit('s_setprio 0')
        seq.extend(['C'] * 4)
    clr('a')
    for t in range(NPRE - NPF): iw(t)
    clr('b')
    PTH = ENV('PTH', '')
    for t in pks[:NPK - PKA]:
        pk(t)
        if PTH: a.emit(f's_waitcnt vmcnt({PTH})')
    cw(0)
    if kind == 'wo': dep_pre(a, kind, 1, len(seq))
    N2 = NPRE - NPF; pref = None
    if SPC:
        N2 = max(N2, int(ENV('N2', '0')), bars[1] + 2); NPRE = int(ENV('N3', '20'))
        assert NPRE <= TF + 21
        def pref():
            a.emit('s_mov_b32 s5, s3')
            if TF >= 0:
                a.emit(f's_waitcnt vmcnt({after(TF + 1)})')
                a.emit('s_barrier')
            for t in range(len(seq) // 2, N2): iw(t)
            a.emit('s_mov_b32 s3, s5')
            a.emit(f's_waitcnt vmcnt({after(bars[1] + 1)})')
    def postf():
        for t in range(N2, NPRE):
            if ot and slot(t) == OHB:
                a.emit(f's_waitcnt vmcnt({after(bars[0] + 1)})')
                a.emit('s_barrier')
            iw(t)
        for t in pks[NPK - PKA:]: pk(t)
    dep_wait(a, kind, skip_first=kind == 'wo', preg=lambda: a.emit(f's_waitcnt vmcnt({min(after(bars[2 if SPC else 1 if ot else 0] + 1), 63)}) lgkmcnt(0)'),
             postf=postf, pref=pref, defer=bool(SPC))
    nxt = NPRE
    reg = bars[:bars.index(XS)] if P1 and not DX else bars
    clr('g')
    for j, t in enumerate(reg):
        if (SPC or ot) and j < 1: continue
        lim = min(N, (reg[j - 1] if j else -1) + 21)
        PP = int(ENV('PP', '2'))
        pp = min(lim - 1, nxt + PP) if SPC and t == TG else -1
        while nxt < lim:
            if nxt == pp: dep_late(a, kind, 0); seq.append('F')
            iw(nxt); nxt += 1
            if nxt - 1 in pks: a.emit('s_waitcnt lgkmcnt(0)')
            elif nxt < lim: a.emit(f"s_waitcnt vmcnt({ENV('LTHR', '4')})")
        cw(j + 1)
        clr(str(j))
        need = [min(N - 1, bars[j + 1] + 1)] if j + 1 < len(bars) else []
        assert all(t < nxt for t in need)
        need = [max(x for x in range(t + 1) if x not in pks) for t in need]
        if P1 and not DX and j == len(reg) - 1:
            srd(a, SP, 'ws', WS_XP, 8 * MB)
            srd(a, SC, 'ws0', WS_FL, FLS)
            a.emit(f's_and_b32 s5, s{S_WV}, 3')
            a.emit(f's_lshl4_add_u32 s6, s{S_MT}, s{S_NT}')
            a.emit('s_lshl2_add_u32 s6, s6, s5')
            a.emit(f's_mul_i32 s8, s6, {CH}')
            a.emit('s_add_u32 s9, s8, 4096')
            a.emit(f's_add_u32 s7, s{S_LAYER}, 4')
            a.emit('s_lshl_b32 s7, s7, 10')
            a.emit('s_add_u32 s6, s6, s7')
            a.emit('s_lshl_b32 s6, s6, 6')
            a.emit('s_xor_b32 s7, s6, 256')
            a.emit(f's_mul_i32 s5, s5, {CH}')
            a.emit(f's_add_u32 s5, s5, {XB}')
            a.emit('v_lshlrev_b32 v3, 4, v1')
            a.emit('v_add_u32 v2, s5, v3')
            a.emit('v_mov_b32 v4, 1')
            a.emit(f's_mov_b32 s{S_CNT}, 0x100000')
        if pp >= 0: dep_late(a, kind, 1, after('F'))
        if P1 and DX == 2 and t == XS:
            srd(a, SC, 'ws0', WS_FL, FLS)
            a.emit(f's_lshl4_add_u32 s6, s{S_MT}, s{S_NT}')
            a.emit('s_xor_b32 s6, s6, 1')
            a.emit(f's_add_u32 s7, s{S_LAYER}, 4')
            a.emit('s_lshl_b32 s7, s7, 8')
            a.emit('s_add_u32 s6, s6, s7')
            a.emit('s_lshl_b32 s6, s6, 8')
            a.emit('v_and_b32 v2, 3, v1')
            a.emit('v_lshlrev_b32 v2, 6, v2')
            a.emit(f's_mov_b32 s{S_CNT}, 0x100000')
        if P1 and DX == 2 and t == ZS:
            a.emit(f's_cmp_lg_u32 s{S_WV}, 4')
            a.emit(f's_cbranch_scc1 L_{kind}_xgo')
            a.emit('s_setprio 3')
            a.label(f'L_{kind}_xpoll')
            a.emit(f'buffer_load_dword v5, v2, s[{SC}:{SC+3}], s6 offen sc1')
            a.emit(f's_sub_u32 s{S_CNT}, s{S_CNT}, 1')
            a.emit(f's_cbranch_scc1 L_{kind}_xgo')
            a.emit('s_waitcnt vmcnt(0)')
            a.emit('v_cmp_ne_u32 vcc, 1, v5')
            a.emit(f's_cbranch_vccnz L_{kind}_xpoll')
            a.label(f'L_{kind}_xgo')
            a.emit('s_setprio 0')
        a.emit(f's_waitcnt vmcnt({min(63, min(after(t) for t in need)) if need else 0})')
        a.emit('s_barrier')
    assert nxt == N and (ENV('LATE_W1', '2') == '2' or (kind == 'w2' or bars[-1] >= 9) and 'w1' in OT) and ENV('LATE_ATTN', '2') == '2'
    clr('e')
    if not P1: a.emit('s_waitcnt vmcnt(0)')
    if P1 and not DX:
        XL = ENV('LST') == 'x'
        a.emit('s_setprio 3')
        a.emit('s_waitcnt vmcnt(0) lgkmcnt(0)')
        a.emit('s_barrier')
        for i in range(NXC): a.emit(f'ds_read_b128 v[{32+4*i}:{35+4*i}], v2 offset:{1024*i}')
        for i in range(NXC):
            a.emit(f's_waitcnt lgkmcnt({NXC-1-i})')
            if 'noxs' not in DBG: a.emit(f'buffer_store_dwordx4 v[{32+4*i}:{35+4*i}], v3, s[{SP}:{SP+3}], s{8+(i>>2)} offen offset:{1024*(i&3)} sc1')
        if XL: lstamp(a, 0)
        a.emit(f's_xor_b32 s8, s8, {4*CH}')
        a.emit(f's_xor_b32 s9, s9, {4*CH}')
        a.emit('s_mov_b64 exec, 1')
        a.emit('s_waitcnt vmcnt(0)')
        a.emit(f'buffer_store_dword v4, off, s[{SC}:{SC+3}], s6 sc1')
        if XL: lstamp(a, 1)
        if PS: a.emit('s_barrier')
        if 'nopoll' in DBG: a.emit(f's_branch L_{kind}_xgo')
        a.label(f'L_{kind}_xpoll')
        a.emit(f'buffer_load_dword v5, off, s[{SC}:{SC+3}], s7 sc1')
        a.emit(f's_sub_u32 s{S_CNT}, s{S_CNT}, 1')
        a.emit(f's_cbranch_scc1 L_{kind}_xgo')
        a.emit('s_waitcnt vmcnt(0)')
        a.emit('v_cmp_ne_u32 vcc, 1, v5')
        a.emit(f's_cbranch_vccnz L_{kind}_xpoll')
        a.label(f'L_{kind}_xgo')
        a.emit('s_mov_b64 exec, -1')
        a.emit('s_mov_b32 m0, s5')
        if XL: lstamp(a, 2)
        for i in range(NXC):
            if i == 4: a.emit('s_add_u32 m0, s5, 4096')
            if not i & 3: a.emit('s_nop 0')
            if 'noxl' not in DBG: a.emit(f'buffer_load_dwordx4 v3, s[{SP}:{SP+3}], s{8+(i>>2)} offen offset:{1024*(i&3)} lds')
        a.emit('s_waitcnt vmcnt(0)')
        if XL: lstamp(a, 3)
        a.emit('s_setprio 0')
        a.emit('s_barrier')
    loader_end(a, kind)
    a.label(end)
    a.emit('s_endpgm')
    loader_first(a, kind)
    if SPC:
        i = a.lines.index(f'  s_cbranch_scc1 L_{kind}_compute')
        del a.lines[i - 1:i + 1]
    a.label(f'L_{kind}_c1')
    return 163840
```

```python
from common import *

T4 = ENV('T4', '1') == '1'
OBAR = ENV('OBAR', '0') == '1'
def big_loop(a, tag, N, S, STAGE, naddr, VB, VA, reads, mf, variants=None, select=None, post=None, ot=None, mid=(), halo=None):
    def addr():
        o = [f'v_add_u32_e64 v{VA+i}, s{S_SLOT}, v{VB+i}' for i in range(naddr)]
        o += [f's_add_u32 s{S_SLOT}, s{S_SLOT}, {STAGE}', f's_cmp_eq_u32 s{S_SLOT}, {S*STAGE}', f's_cselect_b32 s{S_SLOT}, 0, s{S_SLOT}']
        return o
    a.emit(f's_mov_b32 s{S_SLOT}, 0')
    for x in addr(): a.emit(x)
    if halo:
        a.emit(f's_mov_b32 s{S_CNT}, {N}')
        a.emit(f's_cmp_eq_u32 s{S_LAYER}, 0')
        a.emit(f's_cbranch_scc1 L_{tag}_nog')
    a.emit(f's_mov_b32 s{S_CNT}, {N - 1 if ot else N}')
    if ot:
        rd = (lambda s, ks: reads(s, ks, False)) if halo else reads
        for x in rd(0, 0): a.emit(x)
        a.emit('s_waitcnt lgkmcnt(0)')
        interleave(a, ot(0), rd(1, 1) + addr(), lead=1, per=1)
        a.emit('s_waitcnt lgkmcnt(0)')
        for x in ot(1): a.emit(x)
    if halo:
        a.emit('s_barrier')
        for x in halo[0]: a.emit(x)
        a.label(f'L_{tag}_nog')
    else: gbar(a, tag)
    a.lines += mid
    if halo: a.emit(f's_cmp_eq_u32 s{S_LAYER}, 0')
    a.emit('s_barrier')
    stamp(a, 1)
    if halo:
        a.emit(f's_cbranch_scc1 L_{tag}_first')
        for x in halo[1] + reads(0, 0): a.emit(x)
        a.emit('s_waitcnt lgkmcnt(15)')
        for x in halo[2]: a.emit(x)
        a.emit('s_waitcnt lgkmcnt(0)')
        a.emit(f's_branch L_{tag}_loop')
        a.label(f'L_{tag}_first')
        a.emit(f's_load_dwordx2 s[{SC}:{SC+1}], s[0:1], 72')
    for x in reads(0, 0): a.emit(x)
    a.emit('s_waitcnt lgkmcnt(0)')
    def loop(nm, m):
        a('.p2align 3')
        a.label(f'L_{tag}_loop{nm}')
        ad = addr()
        ad[-1] += f'\n  s_sub_u32 s{S_CNT}, s{S_CNT}, 1'
        interleave(a, m(0), reads(1, 1) + ad, lead=1, per=1)
        a.emit('s_waitcnt lgkmcnt(0)')
        a.emit('s_barrier')
        interleave(a, m(1), reads(0, 0) + [f's_cmp_lg_u32 s{S_CNT}, 0\n  s_nop 0'], lead=1, per=1)
        a.emit('s_waitcnt lgkmcnt(0)')
        a.emit(f's_cbranch_scc1 L_{tag}_loop{nm}')
    if variants:
        select()
        vs = list(variants.items())
        for i, (nm, m) in enumerate(vs):
            loop(nm, m)
            if i + 1 < len(vs): a.emit(f's_branch L_{tag}_post')
        a.label(f'L_{tag}_post')
        post()
        a.emit(f's_branch L_{tag}_exit')
    loop('', mf)
    a.label(f'L_{tag}_exit')
    stamp(a, 2)

def stats_loads(a, vd, halo):
    a.emit(f's_and_b32 s3, s{S_WV}, 3')
    a.emit(f's_lshl_b32 s4, s{S_MT}, 7')
    a.emit('s_lshl_b32 s5, s3, 6')
    a.emit('s_add_u32 s5, s5, s4')
    a.emit('v_add_u32 v2, s5, v1')
    a.emit('s_sub_u32 s4, s4, 16')
    a.emit('v_and_b32 v3, 15, v1')
    a.emit('v_add_u32 v3, s4, v3')
    a.emit('v_max_i32 v3, 0, v3')
    a.emit('s_cmp_ge_u32 s3, 2')
    a.emit('s_cselect_b64 vcc, -1, 0')
    a.emit('v_cndmask_b32 v2, v2, v3, vcc')
    a.emit('v_lshlrev_b32 v2, 3, v2')
    a.emit('s_mov_b32 s3, 0')
    for j in range(16):
        a.emit(f'buffer_load_dwordx2 v[{vd+2*j}:{vd+2*j+1}], v2, s[{ST}:{ST+3}], s3 offen')
        if j < 15: a.emit('s_add_u32 s3, s3, 16384')
    return 16

def stats_finish(a, vs):
    a.emit(f'v_mul_f32 v{vs}, 0x3a800000, v{vs}')
    a.emit(f'v_mul_f32 v{vs+1}, 0x3a800000, v{vs+1}')
    a.emit(f'v_fma_f32 v{vs+1}, -v{vs}, v{vs}, v{vs+1}')
    a.emit(f'v_max_f32 v{vs+1}, 0, v{vs+1}')
    a.emit(f'v_add_f32 v{vs+1}, 0x3727c5ac, v{vs+1}')
    a.emit(f'v_rsq_f32 v{vs+1}, v{vs+1}')
    a.emit('s_nop 0')

def stats_reduce_store(a, vd, LST):
    for j in range(1, 8):
        a.emit(f'v_add_f32 v{vd}, v{vd}, v{vd+2*j}')
        a.emit(f'v_add_f32 v{vd+1}, v{vd+1}, v{vd+2*j+1}')
        a.emit(f'v_add_f32 v{vd+16}, v{vd+16}, v{vd+16+2*j}')
        a.emit(f'v_add_f32 v{vd+17}, v{vd+17}, v{vd+17+2*j}')
    a.emit(f'v_add_f32 v{vd}, v{vd}, v{vd+16}')
    a.emit(f'v_add_f32 v{vd+1}, v{vd+1}, v{vd+17}')
    stats_finish(a, vd)
    a.emit(f's_and_b32 s3, s{S_WV}, 3')
    a.emit('s_lshl_b32 s5, s3, 6')
    a.emit('s_add_u32 s5, s5, 16')
    a.emit('v_add_u32 v2, s5, v1')
    a.emit('v_and_b32 v3, 15, v1')
    a.emit('s_cmp_ge_u32 s3, 2')
    a.emit('s_cselect_b64 vcc, -1, 0')
    a.emit('v_cndmask_b32 v2, v2, v3, vcc')
    a.emit('v_lshlrev_b32 v2, 2, v2')
    a.emit(f'v_add_u32 v2, {LST}, v2')
    a.emit(f'ds_write2_b32 v2, v{vd}, v{vd+1} offset0:0 offset1:160')

VST, VSH, VCS, VBI = 18, 19, 22, 23
def stats4_setup(a, halo):
    a.emit(f's_and_b32 s3, s{S_WV}, 3')
    a.emit(f's_lshl2_add_u32 s4, s{S_MT}, s3')
    a.emit('s_lshl_b32 s4, s4, 8')
    a.emit('v_lshrrev_b32 v2, 4, v1')
    a.emit('v_and_b32 v3, 15, v1')
    a.emit('v_lshl_add_u32 v3, v3, 4, s4')
    a.emit(f'v_lshl_add_u32 v{VST}, v2, 14, v3')
    if halo:
        a.emit(f's_lshl_b32 s4, s{S_MT}, 5')
        a.emit('s_add_u32 s4, s4, s3')
        a.emit('s_sub_u32 s4, s4, 4')
        a.emit('s_max_i32 s4, s4, 0')
        a.emit('s_lshl_b32 s4, s4, 5')
        a.emit('v_lshrrev_b32 v2, 2, v1')
        a.emit('v_and_b32 v3, 3, v1')
        a.emit('v_lshl_add_u32 v3, v3, 3, s4')
        a.emit(f'v_lshl_add_u32 v{VSH}, v2, 14, v3')

def quad_loads(vd, vo, sd):
    o = []
    for j in range(4):
        if j: o.append(f's_mov_b32 s3, {j << 16}')
        o.append(f'buffer_load_dwordx4 v[{vd+4*j}:{vd+4*j+3}], v{vo}, s[{sd}:{sd+3}], {"s3" if j else 0} offen')
    return o

def stats4_loads(vd, halo):
    return quad_loads(vd, VST, ST) + ([f'buffer_load_dwordx2 v[{vd+16}:{vd+17}], v{VSH}, s[{ST}:{ST+3}], 0 offen'] if halo else [])

def quad_sum(a, vd):
    pk = lambda d, s: a.emit(f'v_pk_add_f32 v[{d}:{d+1}], v[{d}:{d+1}], v[{s}:{s+1}]')
    pk(vd, vd + 4); pk(vd + 2, vd + 6); pk(vd + 8, vd + 12); pk(vd + 10, vd + 14); pk(vd, vd + 8); pk(vd + 2, vd + 10)
    a.emit('s_nop 1')
    a.emit(f'v_permlane32_swap_b32 v{vd}, v{vd+2}')
    a.emit(f'v_permlane32_swap_b32 v{vd+1}, v{vd+3}')
    pk(vd, vd + 2)

def stats4_store(a, vd, LST, halo):
    quad_sum(a, vd)
    def allsum(r, op):
        a.emit(f'v_mov_b32 v{r+2}, v{r}')
        a.emit(f'v_mov_b32 v{r+3}, v{r+1}')
        a.emit('s_nop 0')
        a.emit(f'v_permlane{op}_swap_b32 v{r}, v{r+2}')
        a.emit(f'v_permlane{op}_swap_b32 v{r+1}, v{r+3}')
        a.emit(f'v_pk_add_f32 v[{r}:{r+1}], v[{r}:{r+1}], v[{r+2}:{r+3}]')
    allsum(vd, 16)
    stats_finish(a, vd)
    a.emit(f's_and_b32 s3, s{S_WV}, 3')
    a.emit('s_lshl_b32 s5, s3, 7')
    a.emit(f's_add_u32 s5, s5, {LST + 64}')
    a.emit('v_and_b32 v3, 15, v1')
    a.emit('v_lshrrev_b32 v2, 5, v1')
    a.emit('v_lshl_add_u32 v2, v3, 1, v2')
    a.emit('v_lshl_add_u32 v2, v2, 2, s5')
    a.emit(f'ds_write2_b32 v2, v{vd}, v{vd+1} offset0:0 offset1:160')
    if halo:
        h = vd + 16
        allsum(h, 32); allsum(h, 16)
        for r in (8, 4):
            a.emit('s_nop 1')
            for i in range(2): a.emit(f'v_add_f32_dpp v{h+i}, v{h+i}, v{h+i} row_ror:{r} row_mask:0xf bank_mask:0xf')
        stats_finish(a, h)
        a.emit('s_lshl_b32 s5, s3, 4')
        a.emit(f's_add_u32 s5, s5, {LST}')
        a.emit('v_and_b32 v3, 3, v1')
        a.emit('v_lshl_add_u32 v2, v3, 2, s5')
        a.emit(f'ds_write2_b32 v2, v{h}, v{h+1} offset0:0 offset1:160')

def gen_w1(a, tsidx, side, cs=(16, 16384, 0)):
    kind = 'w1'
    K = 1024; lda2 = 2048; ldw2 = 7168; ldo2 = 7168
    ot = kind in OT
    S = 3; LM = int(ENV('LM_W1', '2' if ot else '3'))
    STAGE = 16384 + 4 * 8192
    o2 = 'w2' in OT
    assert LM == 2 or not o2
    LST = OHB - 4096 if o2 else S * STAGE
    LCS = LST + 1280
    N = 16
    body = f'L_{kind}_body'; end = f'L_{kind}_end'
    VB, VA, VO = 4, 20, 12
    F = [32, 80]; ACC = 128
    acc = lambda jn, jm: ACC + (jn * 4 + jm) * 4
    fx = lambda s, jm: F[s] + jm * 4
    fw = lambda s, jn: F[s] + 16 + jn * 4
    a.label(f'L_{kind}_c0')
    if not MEGA: stub(a, f'{kind}l0_kernel', body, 0, tsidx, True)
    a.label(body)
    tile_map(a, LM, end)
    a.emit(f's_cmp_ge_u32 s{S_WV}, 4')
    a.emit(f's_cbranch_scc1 L_{kind}_loader')
    if ot and OBAR: a.emit('s_barrier')
    if NV:
        from gemm64y import w2_pre, w2_early
        w2_pre(a)
        tile_map(a, LM, None)
    a.emit(f's_and_b32 s{S_WM}, s{S_WV}, 1')
    a.emit(f's_lshr_b32 s{S_WN}, s{S_WV}, 1')
    a.emit('v_and_b32 v3, 15, v1')
    a.emit('v_lshrrev_b32 v2, 4, v1')
    a.emit(f's_lshl_b32 s8, s{S_WM}, 13')
    a.emit(f'v_lshl_add_u32 v{VB}, v1, 4, s8')
    wbase(a, 13, 17)
    a.emit(f's_lshl_b32 s9, s{S_WN}, 6')
    a.emit('v_xor_b32 v13, s9, v13')
    a.emit(f'v_add_u32 v{VB+1}, 16384, v13')
    a.emit(f'v_xor_b32 v{VB+2}, 32, v{VB+1}')
    a.emit('v_and_b32 v16, 1, v2')
    a.emit('v_lshrrev_b32 v17, 1, v2')
    a.emit('v_bfe_u32 v13, v1, 2, 2')
    a.emit('v_lshl_add_u32 v13, v16, 3, v13')
    a.emit('v_lshl_add_u32 v13, v17, 5, v13')
    a.emit(f'v_xor_b32 v14, s{S_WN}, v16')
    a.emit('v_lshl_add_u32 v13, v13, 1, v14')
    a.emit('v_and_b32 v14, 3, v1')
    a.emit('v_lshl_add_u32 v13, v13, 2, v14')
    a.emit('v_lshlrev_b32 v13, 3, v13')
    a.emit(f'v_add_u32 v{VB+3}, {16384 + 3 * 8192}, v13')
    i0 = len(a.lines)
    a.emit(f's_lshl_b32 s8, s{S_MT}, 7')
    a.emit(f's_lshl_b32 s9, s{S_WM}, 6')
    a.emit('s_add_u32 s8, s8, s9')
    a.emit(f's_mul_i32 s8, s8, {ldo2}')
    a.emit('v_lshlrev_b32 v14, 8, v17')
    a.emit('v_lshl_add_u32 v14, v3, 4, v14')
    if o2:
        a.emit(f's_lshl3_add_u32 s9, s{S_WM}, s{S_WN}')
        a.emit('s_lshl_b32 s9, s9, 10')
        a.emit(f's_add_u32 s9, s9, {OHB}')
        a.emit('v_lshl_add_u32 v18, v16, 9, v14')
        a.emit('v_add_u32 v18, s9, v18')
        srd(a, SB, 'b2', 0, 2048)
        a.emit(f's_lshr_b32 s9, s{S_NT}, 3')
        a.emit(f's_and_b32 s10, s{S_NT}, 7')
        a.emit('s_lshl1_add_u32 s9, s10, s9')
        a.emit('s_lshl_b32 s9, s9, 7')
        a.emit('v_lshl_add_u32 v19, v2, 3, s9')
    a.emit('v_add_u32 v14, s8, v14')
    a.emit(f's_lshl_b32 s10, s{S_NT}, 11')
    a.emit(f's_lshl_b32 s9, s{S_WN}, 10')
    a.emit('s_add_u32 s9, s9, s10')
    a.emit(f'v_lshl_add_u32 v{VO}, v16, 9, v14')
    a.emit(f'v_add_u32 v{VO}, s9, v{VO}')
    a.emit(f'v_mul_u32_u24 v16, {16*ldo2}, v16')
    a.emit('s_lshr_b32 s9, s9, 1')
    a.emit(f'v_add3_u32 v{VO+1}, v16, v14, s9')
    a.emit(f's_lshl_b32 s9, s{S_WM}, 8')
    a.emit(f's_add_u32 s9, s9, {LST + 64}')
    a.emit('v_lshl_add_u32 v14, v3, 2, s9')
    a.emit(f's_lshl_b32 s9, s{S_WN}, 7')
    a.emit(f's_add_u32 s9, s9, {LCS}')
    a.emit('v_lshl_add_u32 v15, v2, 4, s9')
    a.emit(f's_lshl_b32 s9, s{S_WN}, 6')
    a.emit(f's_add_u32 s9, s9, {LCS}')
    a.emit('v_lshl_add_u32 v16, v2, 4, s9')
    for i in range(0 if ot else 112): a.emit(f'v_mov_b32 v{ACC+i}, 0')
    if not MEGA: a.emit('s_waitcnt lgkmcnt(0)')
    srd(a, SO, 'ws', WS_H, 2048 * 7168)
    if not ot: code_touch(a, 'L_w2_c0', 'L_w2_c1', 192 if SPX else 128)
    mid = []
    if ot: mid = a.lines[i0:]; del a.lines[i0:]
    def reads(s, ks):
        o = []
        if 'noread' in DBG: return o
        for jm in range(4):
            o.append(f'ds_read_b128 v[{fx(s,jm)}:{fx(s,jm)+3}], v{VA} offset:{jm*2048+ks*1024}')
        for jn in range(7):
            for h in range(2):
                r = fw(s, jn) + 2 * h
                o.append(f'ds_read_b64_tr_b16 v[{r}:{r+1}], v{VA+1+(jn&1 if jn < 6 else 2)} offset:{((jn>>1)*8192+h*512 if jn < 6 else h*256)+ks*4096}')
        return o
    def mf(s):
        o = []
        if 'nomfma' in DBG: return ['s_nop 0']
        for jn, jm in mf_order(7, 4):
            if True:
                c = acc(jn, jm)
                o.append(f'v_mfma_f32_16x16x32_bf16 v[{c}:{c+3}], v[{fw(s,jn)}:{fw(s,jn)+3}], v[{fx(s,jm)}:{fx(s,jm)+3}], v[{c}:{c+3}]')
        return o
    zc = lambda x: x[:x.rindex(',')] + ', 0'
    big_loop(a, kind, N, S, STAGE, 4, VB, VA, reads, mf, ot=(lambda s: mf(1) if s else [zc(x) for x in mf(0)]) if ot else None, mid=mid)
    CS = 32; BI = 60; STT = 88; CK = 96; T = 100; D = 108
    for jm in range(4):
        a.emit(f'ds_read2_b32 v[{STT+2*jm}:{STT+2*jm+1}], v14 offset0:{16*jm} offset1:{160+16*jm}')
    for jn in range(7):
        a.emit(f'ds_read_b128 v[{CS+4*jn}:{CS+4*jn+3}], v{15 if jn < 6 else 16} offset:{(jn>>1)*256+(jn&1)*64}')
        a.emit(f'ds_read_b128 v[{BI+4*jn}:{BI+4*jn+3}], v{15 if jn < 6 else 16} offset:{1024+(jn>>1)*256+(jn&1)*64}')
    for jn in range(4 if o2 else 0):
        a.emit(f'buffer_load_dwordx2 v[{OBIA[jn]}:{OBIA[jn]+1}], v19, s[{SB}:{SB+3}], 0 offen offset:{jn*32}')
    c0 = -2.0 * 0.7978845608028654 * 1.4426950408889634
    c1 = c0 * 0.044715
    a.emit(f'v_mov_b32 v{CK}, {f2u(c0):#x}')
    a.emit(f'v_mov_b32 v{CK+1}, {f2u(c1):#x}')
    a.emit(f'v_mov_b32 v{CK+2}, 1.0')
    a.emit('s_waitcnt lgkmcnt(0)')
    for jm in range(4):
        a.emit(f'v_mul_f32 v{STT+2*jm}, v{STT+2*jm}, v{STT+2*jm+1}')
    def tile_math(jn, jm, d):
        c = acc(jn, jm)
        seqs = []
        ST2 = f'v[{STT+2*jm}:{STT+2*jm+1}]'
        for q in range(2):
            x = c + 2 * q; t = T + 2 * q + 4 * (jn & 1)
            X = f'v[{x}:{x+1}]'; TT = f'v[{t}:{t+1}]'
            seqs.append([
              f'v_pk_fma_f32 {TT}, v[{CS+4*jn+2*q}:{CS+4*jn+2*q+1}], {ST2}, v[{BI+4*jn+2*q}:{BI+4*jn+2*q+1}] op_sel:[0,0,0] op_sel_hi:[1,0,1] neg_lo:[0,1,0] neg_hi:[0,1,0]',
              f'v_pk_fma_f32 {X}, {X}, {ST2}, {TT} op_sel:[0,1,0] op_sel_hi:[1,1,1]',
              f'v_pk_mul_f32 {TT}, {X}, {X}',
              f'v_pk_fma_f32 {TT}, {TT}, v[{CK}:{CK+1}], v[{CK}:{CK+1}] op_sel:[0,1,0] op_sel_hi:[1,1,0]',
              f'v_pk_mul_f32 {TT}, {TT}, {X}',
              f'v_exp_f32 v{t}, v{t}\n  v_exp_f32 v{t+1}, v{t+1}',
              f'v_pk_add_f32 {TT}, {TT}, v[{CK+2}:{CK+3}] op_sel_hi:[1,0]',
              f'v_rcp_f32 v{t}, v{t}\n  v_rcp_f32 v{t+1}, v{t+1}',
              f'v_pk_mul_f32 {X}, {X}, {TT}',
              f'v_cvt_pk_bf16_f32 v{d+q}, v{x}, v{x+1}'])
        for ia, ib in zip(*seqs):
            a.emit(ia); a.emit(ib)
    cnt = [0]
    def pair(t0, t1, vo, soff, big=False):
        d = D + 4 * (cnt[0] % 4); cnt[0] += 1
        tile_math(*t0, d); tile_math(*t1, d + 2)
        a.emit(f's_add_u32 s3, s10, {soff}' if big else f's_mov_b32 s3, {soff}')
        a.emit('s_nop 0')
        a.emit(f'v_permlane16_swap_b32 v{d}, v{d+2}')
        a.emit(f'v_permlane16_swap_b32 v{d+1}, v{d+3}')
        a.emit(f'buffer_store_dwordx4 v[{d}:{d+3}], v{vo}, s[{SO}:{SO+3}], s3 offen{stf(kind)}')
        if o2 and t0[0] < 6: a.emit(f'ds_write_b128 v18, v[{d}:{d+3}] offset:{(t0[0] // 2 + 2) % 3 * 16384 + t0[1] * 2048}')
    pr = lambda p, jm: pair((2 * p, jm), (2 * p + 1, jm), VO, jm * 16 * ldo2 + (46 + 2 * p) * 1024 * (p > 0), p > 0)
    od = lambda jm: pair((6, jm), (6, jm + 1), VO + 1, jm * 16 * ldo2 + 32768)
    order = [lambda jm=jm: pr(0, jm) for jm in range(4)] + [lambda: od(0), lambda: od(2)] + [lambda jm=jm, p=p: pr(p, jm) for jm in range(4) for p in (1, 2)]
    EW = int(ENV('EW', '10'))
    for i, f in enumerate(order):
        f()
        if NV and i + 1 == EX: w2_early(a)
        if EARLY and i + 1 == EW:
            a.emit(f's_waitcnt vmcnt({EW - EARLY // 4})')
            a.emit('s_barrier')
    compute_end(a, kind)
    a.label(f'L_{kind}_loader')
    L = Loader(a, kind, K, lda2, ldw2, [0, f's{S_HD}', 's_add_u32 s4, s4, 128'], 128, S, STAGE, rot=int(ENV('ROT_W1', '0')), xblk=True, half=2048)
    L.ot = int(ot)
    L.setup()
    a.emit('s_waitcnt lgkmcnt(0)')
    if ot: code_touch(a, 'L_w2_c0', 'L_w2_c1', 192, loader=True)
    srd(a, SX, 'ws', WS_X1, 4 * MB); srd(a, SW, 'w1', 0, 1024 * 7168)
    srd(a, ST, 'ws', WS_ST, 16 * 16384); srd(a, SC, 'ws0', WS_CS, 16 * 16384); srd(a, SB, 'b1', 0, 7168)
    def tail():
        stats_loads(a, 32, False)
        a.emit(f's_lshl_b32 s4, s{S_NT}, 7')
        a.emit(f's_lshl_b32 s5, s{S_WV}, 6')
        a.emit('s_add_u32 s4, s4, s5')
        a.emit(f's_add_u32 s4, s4, {1472 - 256}')
        a.emit(f's_lshl_b32 s5, s{S_NT}, 6')
        a.emit(f's_cmp_eq_u32 s{S_WV}, 4')
        a.emit('s_cselect_b32 s4, s5, s4')
        a.emit('s_lshr_b32 s5, s5, 1')
        a.emit('s_add_u32 s5, s5, 1024')
        a.emit(f's_cmp_eq_u32 s{S_WV}, 7')
        a.emit('s_cselect_b32 s4, s5, s4')
        a.emit('v_add_u32 v3, s4, v1')
        a.emit('v_lshlrev_b32 v2, 2, v3')
        a.emit('v_lshlrev_b32 v3, 1, v3')
        a.emit(f's_mov_b32 s3, {cs[2]}')
        for j in range(16):
            if j < cs[0]:
                a.emit(f'buffer_load_dword v{64+j}, v2, s[{SC}:{SC+3}], s3 offen')
                if j < cs[0] - 1: a.emit(f's_add_u32 s3, s3, {cs[1]}')
            else:
                a.emit(f'v_mov_b32 v{64+j}, 0')
        a.emit(f'buffer_load_ushort v80, v3, s[{SB}:{SB+3}], 0 offen')
        side(a, 'issue')
    ns = side(Asm(), 'issue')
    extra = None
    if VW:
        assert int(ENV('LM_W2', '2')) == 2
        srd(a, SR, 'w2', 0, 3584 * 2048)
        a.emit('s_and_b32 s5, s2, 3')
        a.emit('s_lshl_b32 s5, s5, 2')
        a.emit(f's_and_b32 s6, s{S_CU}, 3')
        a.emit('s_add_u32 s5, s5, s6')
        a.emit('s_and_b32 s6, s2, 4')
        a.emit('s_lshl_b32 s6, s6, 1')
        a.emit(f's_lshr_b32 s7, s{S_CU}, 2')
        a.emit('s_add_u32 s6, s6, s7')
        rot_table(a, S_TB, 5, 6, 'w2')
        a.emit(f's_add_u32 s5, s5, s{S_WV}')
        a.emit('s_and_b32 s5, s5, 3')
        wvoff(a, 16, 5, 6, 2048)
        sched = [int(c) for c in ENV('PSCH', '0111111111111122')]
        assert sum(sched) >= NV1
        def extra(i):
            o = []
            for p in range(sum(sched[:i]), min(NV1, sum(sched[:i + 1]))): o += park(56, 2 * p, 128 + 8 * p, 16, SR)
            return o
        ns += sum(x.startswith('buffer_load') for i in (13, 14, 15) for x in extra(i))
    if XD:
        extra = tail_parks('w2', SR, lambda b: srd(b, SR, 'w2', 0, 3584 * 2048))
        ns += 2 * sum(TSCH['w2'])
    if XD and ENV('PFL', '2') == '3':
        b = Asm(); side(b, 'late'); pl = [l.strip() for l in b.lines]
        pl = [l.replace('v2,', 'v18,').replace(', v2', ', v18').replace('s3', 's93') for l in pl]
        i0 = min(i for i, l in enumerate(pl) if l.startswith('buffer_load'))
        for l in pl[:i0]: a.emit(l)
        st = [int(x) for x in ENV('PFS', '6,10').split(',')]
        extra = lambda i: pl[i0 + 2 * st.index(i):i0 + 2 * st.index(i) + 2] if i in st else []
    def final():
        a.emit(f's_waitcnt vmcnt({ns})')
        if ENV('PFL', '2') == '1': side(a, 'late')
        stats_reduce_store(a, 32, LST)
        for j in range(8): a.emit(f'v_add_f32 v{64+j}, v{64+j}, v{72+j}')
        for j in range(4): a.emit(f'v_add_f32 v{64+j}, v{64+j}, v{68+j}')
        a.emit('v_add_f32 v64, v64, v65')
        a.emit('v_add_f32 v66, v66, v67')
        a.emit('v_add_f32 v64, v64, v66')
        a.emit('v_lshlrev_b32 v80, 16, v80')
        a.emit('v_lshlrev_b32 v2, 2, v0')
        a.emit(f'v_add_u32 v2, {LCS - 1024}, v2')
        a.emit('ds_write_b32 v2, v64')
        a.emit('ds_write_b32 v2, v80 offset:1024')
        a.emit('s_waitcnt lgkmcnt(0)')
    import sides
    if T4:
        stats4_setup(a, False)
        a.emit(f's_lshl_b32 s4, s{S_NT}, 7')
        a.emit(f's_lshl_b32 s5, s{S_WV}, 6')
        a.emit('s_add_u32 s4, s4, s5')
        a.emit(f's_add_u32 s4, s4, {1472 - 256}')
        a.emit(f's_lshl_b32 s5, s{S_NT}, 6')
        a.emit(f's_cmp_eq_u32 s{S_WV}, 4')
        a.emit('s_cselect_b32 s4, s5, s4')
        a.emit('s_lshr_b32 s5, s5, 1')
        a.emit('s_add_u32 s5, s5, 1024')
        a.emit(f's_cmp_eq_u32 s{S_WV}, 7')
        a.emit('s_cselect_b32 s4, s5, s4')
        a.emit('v_and_b32 v3, 15, v1')
        a.emit('v_lshl_add_u32 v3, v3, 2, s4')
        a.emit('v_lshrrev_b32 v2, 4, v1')
        a.emit(f'v_add_lshl_u32 v{VBI}, v3, v2, 1')
        a.emit('v_lshlrev_b32 v3, 2, v3')
        a.emit(f'v_lshl_add_u32 v{VCS}, v2, 14, v3')
        CSI = int(ENV('CSI', '14')); STI = int(ENV('STI', '14'))
        def extra4(i):
            o = []
            if i == CSI: o += quad_loads(64, VCS, SC) + [f'buffer_load_ushort v80, v{VBI}, s[{SB}:{SB+3}], 0 offen']
            if i == STI: o += stats4_loads(32, False)
            return o
        def final4():
            a.emit('s_waitcnt vmcnt(0)')
            stats4_store(a, 32, LST, False)
            quad_sum(a, 64)
            a.emit('v_lshlrev_b32 v80, 16, v80')
            a.emit('s_lshl_b32 s5, s3, 8')
            a.emit(f's_add_u32 s5, s5, {LCS}')
            a.emit('v_permlane16_swap_b32 v64, v65')
            a.emit('v_lshrrev_b32 v2, 4, v1')
            a.emit('v_lshl_add_u32 v2, v3, 2, v2')
            a.emit('v_lshl_add_u32 v2, v2, 2, s5')
            a.emit('v_add_f32 v64, v64, v65')
            a.emit('ds_write2st64_b32 v2, v64, v80 offset0:0 offset1:4')
            a.emit('s_waitcnt lgkmcnt(0)')
        assert ns == 0
        L.run(final=final4, extra=extra4, post=sides.stouch_post(a, kind), dep=lambda pf: dep_wait(a, kind, postf=pf, obar=L.npre - 6 if ot and OBAR else 0, pref=(lambda: a.emit(f's_waitcnt vmcnt({L.npre - 7})')) if ot and not OBAR else None))
    else: L.run(tail_issue=tail, ntail_vm=17 + cs[0] + side(Asm(), 'issue'), final=final, extra=extra, post=sides.stouch_post(a, kind),
          dep=(lambda pf: dep_wait(a, kind, postf=pf)) if MEGA else None)
    if ENV('PFL', '2') == '2': side(a, 'late')
    if not VW: side(a, 'finish')
    loader_end(a, kind)
    a.label(end)
    a.emit('s_endpgm')
    loader_first(a, kind)
    if not MEGA:
        a(KD.format(name=f'{kind}l0_kernel'))
        stub(a, f'{kind}l1_kernel', body, 1, tsidx + 4, False)
        a(KD.format(name=f'{kind}l1_kernel'))
    a.label(f'L_{kind}_c1')
    return LCS + 2048
```

```python
from common import *
from gemmw1 import *

def gen_qkv(a, tsidx, side):
    kind = 'attn'
    K = 1024; lda2 = 2048; ldw2 = 6144
    S = 3; LM = int(ENV('LM_QKV', '3'))
    XH = 16384 + 6 * 4096
    STAGE = XH + 2048
    LST = S * STAGE
    EX = 1024
    N = 16
    body = f'L_{kind}_body'; end = f'L_{kind}_end'
    VB, VA = 4, 10
    VXW, VPE, VPO, VCE, VCO, VVE, VVO, VS1, VS4, VKA, VKB, MAP, MAC, MBP, MBC, VO = range(16, 32)
    M_ODD, M_UPA, M_UPB, M_FA, M_FB = 48, 50, 52, 54, 14
    F = [32, 76]; ACC = 128; HACC = 224; ONES = 236
    acc = lambda jn, jm: ACC + (jn * 4 + jm) * 4
    fx = lambda s, jm: F[s] + jm * 4
    fw = lambda s, jn: F[s] + 20 + jn * 4
    a.label(f'L_{kind}_c0')
    stub(a, f'{kind}l0_kernel', body, 0, tsidx, True)
    a.label(body)
    ot = kind in OT
    HX = LST + 1280
    tile_map(a, LM, end)
    if ot and LM != 2:
        a.emit(f's_cmp_eq_u32 s{S_LAYER}, 0')
        a.emit(f's_cbranch_scc1 L_{kind}_map')
        tile_map(a, 2, None)
        a.label(f'L_{kind}_map')
    a.emit(f's_cmp_ge_u32 s{S_WV}, 4')
    a.emit(f's_cbranch_scc1 L_{kind}_loader')
    if ENV('CTE', '0') == '1': code_touch(a, 'L_attn_c0', 'L_w2_c1', int(ENV('CTN', '256')))
    a.emit(f's_and_b32 s{S_WM}, s{S_WV}, 1')
    a.emit(f's_lshr_b32 s{S_WN}, s{S_WV}, 1')
    a.emit('v_and_b32 v3, 31, v1')
    a.emit('v_lshlrev_b32 v3, 2, v3')
    a.emit(f'v_add_u32 v3, {XH}, v3')
    for i in range(4): a.emit(f'v_mov_b32 v{ONES+i}, 0x3f803f80')
    a.emit(f'ds_write_b32 v3, v{ONES}')
    a.emit(f'ds_write_b32 v3, v{ONES} offset:{STAGE}')
    a.emit(f'v_add_u32 v3, {2*STAGE}, v3')
    a.emit(f'ds_write_b32 v3, v{ONES}')
    if ot: a.emit(f'ds_write_b32 v3, v{ONES} offset:{HX - XH - 2 * STAGE}')
    a.emit('v_and_b32 v3, 15, v1')
    a.emit('v_lshrrev_b32 v2, 4, v1')
    a.emit('v_lshrrev_b32 v33, 1, v3')
    a.emit(f's_lshl_b32 s8, s{S_WM}, 13')
    for ks in range(2):
        if ks: a.emit(f'v_add_u32 v{VB+ks}, 4, v2')
        a.emit(f'v_xor_b32 v{VB+ks}, v{VB+ks if ks else 2}, v33')
        a.emit(f'v_lshlrev_b32 v{VB+ks}, 4, v{VB+ks}')
        a.emit(f'v_lshl_add_u32 v{VB+ks}, v3, 7, v{VB+ks}')
        a.emit(f'v_add_u32 v{VB+4+ks}, {XH}, v{VB+ks}')
        a.emit(f'v_add_u32 v{VB+ks}, s8, v{VB+ks}')
    wbase(a, 34, 33)
    a.emit(f's_lshl_b32 s8, s{S_WV}, 5')
    a.emit('v_xor_b32 v34, s8, v34')
    a.emit(f'v_add_u32 v{VB+2}, 16384, v34')
    a.emit(f'v_xor_b32 v{VB+3}, 32, v{VB+2}')
    i0 = len(a.lines)
    a.emit('v_and_b32 v35, 1, v2')
    a.emit(f'v_xor_b32 v35, s{S_WM}, v35')
    a.emit(f's_lshl_b32 s8, s{S_MT}, 7')
    a.emit(f's_lshl_b32 s9, s{S_WM}, 6')
    a.emit('s_add_u32 s8, s8, s9')
    a.emit(f's_add_u32 s10, s8, s{S_NT}')
    a.emit('s_lshl_b32 s10, s10, 11')
    a.emit(f's_lshl_b32 s11, s{S_WN}, 10')
    a.emit('s_add_u32 s10, s10, s11')
    a.emit('v_lshl_add_u32 v33, v3, 4, s10')
    a.emit('v_lshl_add_u32 v33, v35, 9, v33')
    a.emit('v_lshrrev_b32 v34, 1, v2')
    a.emit(f'v_lshl_add_u32 v{VO}, v34, 8, v33')
    a.emit(f's_mul_i32 s10, s{S_WN}, {14336 if XD else 24576}')
    a.emit(f's_add_u32 s10, s10, {EX}')
    a.emit(f's_lshl_b32 s11, s{S_WM}, 10')
    a.emit('s_add_u32 s4, s10, s11')
    a.emit('s_sub_u32 s5, s10, s11')
    a.emit(f's_mul_i32 s6, s{S_WM}, 6144')
    a.emit(f'v_lshl_add_u32 v{VXW}, v1, 4, s4')
    a.emit(f'v_add_u32 v{VPE}, s6, v{VXW}')
    a.emit(f'v_lshl_add_u32 v{VPO}, v1, 4, s5')
    a.emit(f'v_add_u32 v{VPO}, s6, v{VPO}')
    a.emit(f'v_lshl_add_u32 v{VCE}, v2, 8, s4')
    a.emit(f'v_lshl_add_u32 v{VCO}, v2, 8, s5')
    a.emit(f'v_lshl_add_u32 v{VVE}, v3, 4, s4')
    a.emit(f'v_lshl_add_u32 v{VVO}, v3, 4, s5')
    a.emit(f's_lshl_b32 s10, s{S_WM}, 8')
    a.emit(f's_add_u32 s10, s10, {LST}')
    a.emit(f'v_lshl_add_u32 v{VS1}, v3, 2, s10')
    a.emit(f'v_lshl_add_u32 v{VS4}, v2, 4, s10')
    a.emit('v_and_b32 v33, 1, v3')
    a.emit(f'v_cmp_eq_u32 s[{M_ODD}:{M_ODD+1}], 1, v33')
    a.emit('v_lshl_add_u32 v34, v2, 2, v33')
    a.emit('v_add_u32 v35, 2, v34')
    a.emit(f'v_cmp_gt_u32 s[{M_UPA}:{M_UPA+1}], v34, v3')
    a.emit(f'v_cmp_gt_u32 s[{M_UPB}:{M_UPB+1}], v35, v3')
    a.emit('v_mov_b32 v36, 0xffff')
    a.emit('v_mov_b32 v37, 0xffff0000')
    a.emit(f'v_cndmask_b32 v36, v36, v37, s[{M_ODD}:{M_ODD+1}]')
    a.emit(f's_add_u32 s10, s10, {640 + 64}')
    a.emit('v_lshl_add_u32 v34, v34, 2, s10')
    a.emit('v_lshl_add_u32 v35, v35, 2, s10')
    a.emit('v_subrev_u32 v38, 64, v34')
    a.emit('v_subrev_u32 v39, 64, v35')
    a.emit(f'v_cndmask_b32 v{VKA}, v34, v38, s[{M_UPA}:{M_UPA+1}]')
    a.emit(f'v_cndmask_b32 v{VKB}, v35, v39, s[{M_UPB}:{M_UPB+1}]')
    a.emit(f'v_cndmask_b32 v{MAP}, 0, v36, s[{M_UPA}:{M_UPA+1}]')
    a.emit(f'v_cndmask_b32 v{MBP}, 0, v36, s[{M_UPB}:{M_UPB+1}]')
    a.emit(f'v_xor_b32 v{MAC}, v{MAP}, v36')
    a.emit(f'v_xor_b32 v{MBC}, v{MBP}, v36')
    a.emit('s_cmp_eq_u32 s8, 0')
    a.emit(f's_cselect_b64 s[{M_FA}:{M_FA+1}], s[{M_UPA}:{M_UPA+1}], 0')
    a.emit(f's_cselect_b64 s[{M_FB}:{M_FB+1}], s[{M_UPB}:{M_UPB+1}], 0')
    if ot:
        a.emit(f's_cmp_lg_u32 s{S_LAYER}, 0')
        a.emit(f's_cbranch_scc1 L_{kind}_nozero')
    for i in list(range(120, 236)) + ([] if XD else list(range(240, 256))): a.emit(f'v_mov_b32 v{i}, 0')
    if ot: a.label(f'L_{kind}_nozero')
    a.emit('s_waitcnt lgkmcnt(0)')
    srd(a, SO, 'ws', WS_O, 4 * MB)
    clear_flags(a, 0)
    if ENV('CTE', '0') == '0': code_touch(a, 'L_attn_c0', 'L_w2_c1', int(ENV('CTN', '256')))
    CLQ = ENV('DX', '2') == '1' and ENV('CLP', 'e') == 'q'
    if CLQ:
        srd(a, ST, 'ws', WS_XP, 4 * MB)
        a.emit(f's_or_b32 s{ST+1}, s{ST+1}, 0x100000')
        a.emit(f's_mov_b32 s{ST+3}, 0x00800000')
        a.emit('s_and_b32 s3, s2, 3')
        a.emit(f's_and_b32 s4, s{S_CU}, 3')
        a.emit('s_lshl2_add_u32 s3, s3, s4')
        a.emit('s_bfe_u32 s4, s2, 0x10002')
        a.emit(f's_lshr_b32 s5, s{S_CU}, 2')
        a.emit('s_lshl1_add_u32 s4, s5, s4')
        a.emit('s_lshl4_add_u32 s3, s3, s4')
        a.emit(f's_lshl2_add_u32 s3, s3, s{S_WV}')
        a.emit(f's_lshl_b32 s{S_T}, s3, 12')
        for i in range(4): a.emit(f'v_mov_b32 v{116+i}, -1')
    def warm():
        a.emit(f's_cmp_lg_u32 s{S_LAYER}, 0')
        a.emit(f's_cbranch_scc1 L_{kind}_nowarm')
        a.emit('s_lshl_b32 s3, s2, 2')
        a.emit(f's_add_u32 s3, s3, s{S_WV}')
        srd(a, SX, 'xs', 0, 4 * MB); srd(a, SW, 'wqkv', 0, 6 * MB)
        a.emit('v_min_u32 v126, 31, v1')
        a.emit('v_min_u32 v127, 47, v1')
        a.emit('v_lshlrev_b32 v126, 7, v126')
        a.emit('v_lshlrev_b32 v127, 7, v127')
        a.emit('s_lshl_b32 s4, s3, 12')
        a.emit(f's_mul_i32 s5, s3, {48 * 128}')
        a.emit(f'buffer_load_dword v2, v126, s[{SX}:{SX+3}], s4 offen')
        a.emit(f'buffer_load_dword v3, v127, s[{SW}:{SW+3}], s5 offen')
        a.emit('v_mov_b32 v126, 0')
        a.emit('v_mov_b32 v127, 0')
        a.label(f'L_{kind}_nowarm')
    WARM = ENV('WARM', '0')
    if WARM == '1': warm()
    mid = []
    if ot: mid = a.lines[i0:]; del a.lines[i0:]
    def reads(s, ks, hl=True):
        o = []
        if 'noread' in DBG: return o
        for jm in range(4):
            o.append(f'ds_read_b128 v[{fx(s,jm)}:{fx(s,jm)+3}], v{VA+ks} offset:{jm*2048}')
        if hl: o.append(f'ds_read_b128 v[{fx(s,4)}:{fx(s,4)+3}], v{VA+4+ks}')
        for jn in range(6):
            for h in range(2):
                r = fw(s, jn) + 2 * h
                o.append(f'ds_read_b64_tr_b16 v[{r}:{r+1}], v{VA+2+(jn&1)} offset:{(jn>>1)*8192+ks*4096+h*512}')
        return o
    def mfma(c, x, y, cin=None):
        return f'v_mfma_f32_16x16x32_bf16 v[{c}:{c+3}], v[{x}:{x+3}], v[{y}:{y+3}], ' + (f'v[{c}:{c+3}]' if cin is None else cin)
    def mf(s):
        o = []
        if 'nomfma' in DBG: return ['s_nop 0']
        for jn, jm in mf_order(6, 5, lambda jn, jm: jm == 4 and jn & 1):
            if True:
                c = acc(jn, jm) if jm < 4 else HACC + (jn >> 1) * 4
                o.append(mfma(c, fw(s, jn), fx(s, jm)) if jn < 4 else mfma(c, fx(s, jm), fw(s, jn)))
        return o
    SA = [(240, 244), (248, 252), (120, 124)]
    def mfv(hh):
        def f(s):
            o = mf(s)
            ex = []
            for i, jm in enumerate([2 * hh, 2 * hh + 1] + ([4] if hh == 0 else [])):
                ex.append(mfma(SA[i][0], ONES, fx(s, jm)))
                ex.append(mfma(SA[i][1], fx(s, jm), fx(s, jm)))
            return o if 'nostat' in DBG else ex + o
        return f
    def select():
        if CLQ:
            for i in range(4): a.emit(f'buffer_store_dwordx4 v[116:119], off, s[{ST}:{ST+3}], s{S_T} offset:{1024*i} sc1')
        if WARM == '2': warm(); a.emit('s_nop 1')
        if not ot:
            a.emit(f's_cmp_lg_u32 s{S_LAYER}, 0')
            a.emit(f's_cbranch_scc1 L_{kind}_loop')
        if XD:
            for i in range(240, 256): a.emit(f'v_mov_b32 v{i}, 0')
        a.emit(f's_cmp_lg_u32 s{S_WN}, 0')
        a.emit(f's_cbranch_scc1 L_{kind}_loopb')
        clear_flags(a, 1, 4 if CLQ else 0)
    def post():
        a.emit('v_and_b32 v32, 3, v1')
        a.emit('v_cmp_eq_u32 s[4:5], 1, v32')
        a.emit('v_cmp_eq_u32 s[6:7], 2, v32')
        a.emit('v_cmp_eq_u32 s[8:9], 3, v32')
        a.emit('v_bfe_u32 v33, v1, 2, 2')
        a.emit('v_lshrrev_b32 v34, 4, v1')
        a.emit('v_cmp_eq_u32 s[10:11], v33, v34')
        a.emit(f's_lshl_b32 s3, s{S_WN}, 7')
        a.emit(f'v_add_u32 v35, s3, v{VS1}')
        a.emit('v_and_b32 v36, 15, v1')
        a.emit(f's_cmp_eq_u32 s{S_WV}, 0')
        a.emit('s_cselect_b32 s3, 0, 576')
        a.emit(f's_add_u32 s3, s3, {LST}')
        a.emit('v_lshl_add_u32 v36, v36, 2, s3')
        for (sm, sq) in SA:
            a.emit(f'v_cndmask_b32 v{sm+1}, v{sq}, v{sq+1}, s[4:5]')
        for (sm, sq) in SA:
            a.emit(f'v_cndmask_b32 v{sm+1}, v{sm+1}, v{sq+2}, s[6:7]')
        for (sm, sq) in SA:
            a.emit(f'v_cndmask_b32 v{sm+1}, v{sm+1}, v{sq+3}, s[8:9]')
        for (sm, sq) in SA: stats_finish(a, sm)
        a.emit('s_mov_b64 exec, s[10:11]')
        a.emit(f'ds_write2_b32 v35, v{SA[0][0]}, v{SA[0][0]+1} offset0:16 offset1:176')
        a.emit(f'ds_write2_b32 v35, v{SA[1][0]}, v{SA[1][0]+1} offset0:32 offset1:192')
        a.emit(f'ds_write2_b32 v36, v{SA[2][0]}, v{SA[2][0]+1} offset0:0 offset1:160')
        a.emit('s_mov_b64 exec, -1')
        if XD:
            assert int(ENV('LM_WO', '2')) == 2 and int(ENV('LM_W2', '2')) == 2
            srd(a, SX, 'A_x', 0, 4 * MB)
            a.emit('s_and_b32 s3, s2, 3')
            a.emit(f's_and_b32 s4, s{S_CU}, 3')
            a.emit('s_lshl2_add_u32 s3, s3, s4')
            a.emit(f's_lshl2_add_u32 s3, s3, s{S_WV}')
            a.emit('s_lshl_b32 s3, s3, 16')
            a.emit('s_bfe_u32 s4, s2, 0x10002' if SPX else 's_and_b32 s4, s2, 4')
            a.emit(f's_lshr_b32 s5, s{S_CU}, 2')
            a.emit('s_lshl1_add_u32 s4, s5, s4' if SPX else 's_lshl1_add_u32 s4, s4, s5')
            a.emit('s_lshl_b32 s4, s4, 7')
            a.emit('s_add_u32 s3, s3, s4')
            a.emit('s_add_u32 s4, s3, 32768')
            a.emit('v_and_b32 v32, 15, v1')
            a.emit('v_lshlrev_b32 v33, 1, v1')
            a.emit('v_and_b32 v33, 32, v33')
            a.emit('v_lshl_add_u32 v32, v32, 11, v33')
            a.emit('v_lshrrev_b32 v33, 1, v1')
            a.emit('v_and_b32 v33, 16, v33')
            a.emit('v_add_u32 v32, v32, v33')
        a.emit('s_waitcnt lgkmcnt(0)')
        if XD:
            for i in range(4):
                a.emit(f'buffer_load_dwordx4 v[{240+4*i}:{243+4*i}], v32, s[{SX}:{SX+3}], s{3+(i>>1)} offen offset:{64*(i&1)}')
        a.emit('s_barrier')
    own = lambda s: [mfma(acc(jn, jm), *((fw(s, jn), fx(s, jm)) if jn < 4 else (fx(s, jm), fw(s, jn))), None if s else '0') for jn, jm in mf_order(6, 4)]
    hw = lambda ks, c: fw(1, 2 * c) if ks else fx(1, c)
    hal = ([f'v_mov_b32 v{fx(1,c)+i}, v{fw(0,2*c)+i}' for c in range(3) for i in range(4)],
           [f'ds_read_b128 v[{fx(1,3+ks)}:{fx(1,3+ks)+3}], v{VA+4+ks} offset:{HX - XH - STAGE}' for ks in range(2)],
           [mfma(HACC + 4 * c, *((hw(ks, c), fx(1, 3 + ks)) if c < 2 else (fx(1, 3 + ks), hw(ks, c))), None if ks else '0') for ks in range(2) for c in range(3)])
    big_loop(a, kind, N, S, STAGE, 6, VB, VA, reads, mf, variants={'a': mfv(0), 'b': mfv(1)}, select=select, post=post, mid=mid,
             ot=own if ot else None, halo=hal if ot else None)
    PR = 32
    CS = 48
    CV = 64
    MS = 66
    RK = 76
    M4 = 84
    R4 = 104
    VV = [4 if XD else 240, 224]
    for b in range(5):
        a.emit(f'ds_read2_b32 v[{MS+2*b}:{MS+2*b+1}], v{VS1} offset0:{16*b} offset1:{160+16*b}')
    for p in range(2):
        a.emit(f'ds_read2_b32 v[{RK+2*p}:{RK+2*p+1}], v{VKA} offset0:{32*p} offset1:{32*p+16}')
        a.emit(f'ds_read2_b32 v[{RK+4+2*p}:{RK+5+2*p}], v{VKB} offset0:{32*p} offset1:{32*p+16}')
    for c in range(3):
        a.emit(f'ds_write_b128 v{VXW}, v[{HACC+4*c}:{HACC+4*c+3}] offset:{2048*c}')
    a.emit(f's_cmp_eq_u32 s{S_WM}, 1')
    a.emit(f's_cbranch_scc1 L_{kind}_nop3')
    for t in range(2, 6):
        a.emit(f'ds_write_b128 v{VXW}, v[{acc(t,3)}:{acc(t,3)+3}] offset:{6144+1024*t}')
    a.label(f'L_{kind}_nop3')
    for b in range(5):
        a.emit(f'ds_read_b128 v[{M4+4*b}:{M4+4*b+3}], v{VS4} offset:{64*b}')
        a.emit(f'ds_read_b128 v[{R4+4*b}:{R4+4*b+3}], v{VS4} offset:{640+64*b}')
    a.emit('s_waitcnt lgkmcnt(10)')
    a.emit('s_barrier')
    for t in range(4):
        a.emit(f'ds_read_b128 v[{CS+4*t}:{CS+4*t+3}], v{VCO if t&1 else VCE} offset:{1024*t}')
    for t in range(2):
        a.emit(f'ds_read_b32 v{CV+t}, v{VVO if t else VVE} offset:{4096+1024*t}')
    for t in range(4):
        a.emit(f'ds_read_b128 v[{PR+4*t}:{PR+4*t+3}], v{VPO if t&1 else VPE} offset:{2048+1024*t}')
    sc = 32 ** -0.5 * 1.4426950408889634
    for b in range(4):
        a.emit(f'v_mul_f32 v{MS+2*b+3}, {f2u(sc):#x}, v{MS+2*b+3}')
    for b in range(4):
        a.emit(f'v_mul_f32 v{RK+b}, v{RK+b}, v{MS+2*b+3}')
        a.emit(f'v_mul_f32 v{RK+4+b}, v{RK+4+b}, v{MS+2*b+3}')
    a.emit('s_waitcnt lgkmcnt(6)')
    def qk(x, y, cs, b, d):
        m = f'v[{MS+2*b}:{MS+2*b+1}]'
        for (z, c) in ((x, cs), (y, cs + 4)):
            for h in range(2):
                a.emit(f'v_pk_fma_f32 v[{z+2*h}:{z+2*h+1}], v[{c+2*h}:{c+2*h+1}], {m}, v[{z+2*h}:{z+2*h+1}] op_sel:[0,0,0] op_sel_hi:[1,0,1] neg_lo:[0,1,0] neg_hi:[0,1,0]')
        a.emit(f'v_cvt_pk_bf16_f32 v{d}, v{x}, v{x+1}')
        a.emit(f'v_cvt_pk_bf16_f32 v{d+1}, v{x+2}, v{x+3}')
        a.emit(f'v_cvt_pk_bf16_f32 v{d+2}, v{y}, v{y+1}')
        a.emit(f'v_cvt_pk_bf16_f32 v{d+3}, v{y+2}, v{y+3}')
    Q = lambda b: acc(0, b); Kf = lambda b: acc(2, b) if b >= 0 else PR
    Sc = lambda b: acc(1, b); Sp = lambda b: acc(3, b)
    for b in range(4):
        qk(acc(0, b), acc(1, b), CS, b + 1, Q(b))
        qk(acc(2, b), acc(3, b), CS + 8, b + 1, Kf(b))
        if b == 3:
            a.emit('s_waitcnt lgkmcnt(0)')
            qk(PR, PR + 4, CS + 8, 0, PR)
        if b >= 1:
            a.emit(mfma(Sc(b - 1), Kf(b - 1), Q(b - 1), '0'))
            if b >= 2: a.emit(mfma(Sp(b - 1), Kf(b - 2), Q(b - 1), '0'))
    a.emit(mfma(Sc(3), Kf(3), Q(3), '0'))
    a.emit(mfma(Sp(3), Kf(2), Q(3), '0'))
    a.emit(mfma(Sp(0), Kf(-1), Q(0), '0'))
    def vconv(x, t, b):
        cv = f'v[{CV}:{CV+1}]'
        for h in range(2):
            a.emit(f'v_pk_fma_f32 v[{x+2*h}:{x+2*h+1}], v[{M4+4*b+2*h}:{M4+4*b+2*h+1}], {cv}, v[{x+2*h}:{x+2*h+1}] op_sel:[0,{t},0] op_sel_hi:[1,{t},1] neg_lo:[1,0,0] neg_hi:[1,0,0]')
        for h in range(2):
            a.emit(f'v_pk_mul_f32 v[{x+2*h}:{x+2*h+1}], v[{x+2*h}:{x+2*h+1}], v[{R4+4*b+2*h}:{R4+4*b+2*h+1}]')
        for h in range(2):
            a.emit(f'v_cvt_pk_bf16_f32 v{VV[t]+2*b+h}, v{x+2*h}, v{x+2*h+1}')
    for t in range(2):
        vconv(PR + 8 + 4 * t, t, 0)
        for b in range(4): vconv(acc(4 + t, b), t, b + 1)
    T = lambda b: 32 + 4 * b
    odd = f's[{M_ODD}:{M_ODD+1}]'
    for b in (1, 2, 3, 0):
        a.emit(f'v_cndmask_b32 v{Sc(b)}, v{Sc(b)}, v{Sc(b)+1}, {odd}')
        a.emit(f'v_cndmask_b32 v{Sp(b)}, v{Sp(b)}, v{Sp(b)+1}, {odd}')
        a.emit(f'v_cndmask_b32 v{Sc(b)+2}, v{Sc(b)+2}, v{Sc(b)+3}, {odd}')
        a.emit(f'v_cndmask_b32 v{Sp(b)+2}, v{Sp(b)+2}, v{Sp(b)+3}, {odd}')
        a.emit(f'v_cndmask_b32 v{T(b)}, v{Sc(b)}, v{Sp(b)}, s[{M_UPA}:{M_UPA+1}]')
        a.emit(f'v_cndmask_b32 v{T(b)+1}, v{Sc(b)+2}, v{Sp(b)+2}, s[{M_UPB}:{M_UPB+1}]')
        a.emit(f'v_mul_f32 v{T(b)}, v{T(b)}, v{RK+b}')
        a.emit(f'v_mul_f32 v{T(b)+1}, v{T(b)+1}, v{RK+4+b}')
    a.emit(f'v_mov_b32 v48, {f2u(-1e9 * 1.4426950408889634):#x}')
    a.emit(f'v_cndmask_b32 v{T(0)}, v{T(0)}, v48, s[{M_FA}:{M_FA+1}]')
    a.emit(f'v_cndmask_b32 v{T(0)+1}, v{T(0)+1}, v48, s[{M_FB}:{M_FB+1}]')
    for b in range(4): a.emit(f'v_max_f32 v{T(b)+2}, v{T(b)}, v{T(b)+1}')
    for op in ('32', '16'):
        for b in range(4): a.emit(f'v_mov_b32 v{T(b)+3}, v{T(b)+2}')
        for b in range(4): a.emit(f'v_permlane{op}_swap_b32 v{T(b)+2}, v{T(b)+3}')
        for b in range(4): a.emit(f'v_max_f32 v{T(b)+2}, v{T(b)+2}, v{T(b)+3}')
    for b in range(4):
        a.emit(f'v_sub_f32 v{T(b)}, v{T(b)}, v{T(b)+2}')
        a.emit(f'v_sub_f32 v{T(b)+1}, v{T(b)+1}, v{T(b)+2}')
    for b in range(4):
        a.emit(f'v_exp_f32 v{T(b)}, v{T(b)}')
        a.emit(f'v_exp_f32 v{T(b)+1}, v{T(b)+1}')
    P = lambda b: acc(0, b)
    for b in range(4):
        a.emit(f'v_cvt_pk_bf16_f32 v{T(b)}, v{T(b)}, v{T(b)}')
        a.emit(f'v_cvt_pk_bf16_f32 v{T(b)+1}, v{T(b)+1}, v{T(b)+1}')
        a.emit(f'v_and_b32 v{P(b)}, v{T(b)}, v{MAP}')
        a.emit(f'v_and_b32 v{P(b)+1}, v{T(b)+1}, v{MBP}')
        a.emit(f'v_and_b32 v{P(b)+2}, v{T(b)}, v{MAC}')
        a.emit(f'v_and_b32 v{P(b)+3}, v{T(b)+1}, v{MBC}')
        if b >= 1:
            q = b - 1
            a.emit(mfma(acc(1, q), ONES, P(q), '0'))
            a.emit(mfma(acc(4, q), VV[0] + 2 * q, P(q), '0'))
            a.emit(mfma(acc(5, q), VV[1] + 2 * q, P(q), '0'))
    q = 3
    a.emit(mfma(acc(1, q), ONES, P(q), '0'))
    a.emit(mfma(acc(4, q), VV[0] + 2 * q, P(q), '0'))
    a.emit(mfma(acc(5, q), VV[1] + 2 * q, P(q), '0'))
    for b in range(4):
        r = acc(1, b); d = 48 + 4 * b
        a.emit(f'v_rcp_f32 v{r}, v{r}')
        a.emit(f's_mov_b32 s3, {b * 16 * 2048}')
        for t in range(2):
            x = acc(4 + t, b)
            for h in range(2):
                a.emit(f'v_pk_mul_f32 v[{x+2*h}:{x+2*h+1}], v[{x+2*h}:{x+2*h+1}], v[{r}:{r+1}] op_sel_hi:[1,0]')
        for t in range(2):
            x = acc(4 + t, b)
            for h in range(2):
                a.emit(f'v_cvt_pk_bf16_f32 v{d+2*t+h}, v{x+2*h}, v{x+2*h+1}')
        a.emit('s_nop 1')
        a.emit(f'v_permlane16_swap_b32 v{d}, v{d+2}')
        a.emit(f'v_permlane16_swap_b32 v{d+1}, v{d+3}')
        a.emit(f'buffer_store_dwordx4 v[{d}:{d+3}], v{VO}, s[{SO}:{SO+3}], s3 offen{stf(kind)}')
    compute_end(a, kind)
    a.label(f'L_{kind}_loader')
    L = Loader(a, kind, K, lda2, ldw2, [0, 2048, 4096], 128, S, STAGE, halo=XH, rot=int(ENV('ROT_QKV', '0')))
    L.setup()
    a.emit('s_waitcnt lgkmcnt(0)')
    srd_xs(a, SX); srd(a, SW, 'wqkv', 0, 1024 * 6144)
    import sides
    fill = []
    if ENV('DX', '2') == '1' and ENV('CLP', 'e') == 'l':
        a.emit('s_and_b32 s3, s2, 3')
        a.emit(f's_and_b32 s4, s{S_CU}, 3')
        a.emit('s_lshl2_add_u32 s3, s3, s4')
        a.emit('s_bfe_u32 s4, s2, 0x10002')
        a.emit(f's_lshr_b32 s5, s{S_CU}, 2')
        a.emit('s_lshl1_add_u32 s4, s5, s4')
        a.emit('s_lshl4_add_u32 s3, s3, s4')
        a.emit(f's_and_b32 s4, s{S_WV}, 3')
        a.emit('s_lshl2_add_u32 s3, s3, s4')
        a.emit('s_lshl_b32 s3, s3, 12')
        srd(a, SB, 'ws', WS_XP, 0 if 'fill0' in DBG else 4096)
        if 'fillfl' in DBG:
            srd(a, SB, 'ws0', WS_FL + MB, 4096)
            a.emit('s_and_b32 s3, s3, 0xfffff')
        a.emit(f's_add_u32 s{SB}, s{SB}, s3')
        a.emit(f's_addc_u32 s{SB+1}, s{SB+1}, 0')
        FW_ = int(ENV('FILLW', '2'))
        a.emit(f'v_mul_u32_u24 v29, {4 * FW_}, v1')
        for i in range(4): a.emit(f'v_mov_b32 v{24+i}, -1')
        fill = [f'buffer_store_dword{"x" + str(FW_)} v[24:{23 + FW_}], v29, s[{SB}:{SB+3}], 0 offen' + ('' if 'fillwb' in DBG else ' sc1'), f'v_add_u32 v29, {256 * FW_}, v29']
        assert sides.STV[3] == 0
    a.emit(f's_cmp_lg_u32 s{S_LAYER}, 0')
    a.emit(f's_cbranch_scc1 L_{kind}_ld1')
    post = list(sides.stouch_post(a, kind)) + fill
    TG_ = int(ENV('TLBG', '0'))
    if TG_:
        srd(a, SO, 'ws0', 0, 256 * MB)
        a.emit(f's_and_b32 s3, s{S_WV}, 3')
        a.emit(f's_lshl2_add_u32 s3, s{S_CU}, s3')
        a.emit(f's_lshl_b32 s86, s3, {TG_}')
        tl = [f's_buffer_load_dword s84, s[{SO}:{SO+3}], s86', f's_add_u32 s86, s86, {128 << TG_}']
        if TG_ < 21: post += tl
    extra = tail_parks('wo', SP, lambda b: srd(b, SP, 'wo', 0, 2 * MB))
    sch0 = [int(c) for c in ENV('TSO0', '00000')]
    extra0 = tail_parks('wo', SP, lambda b: srd(b, SP, 'wo', 0, 2 * MB), sch0 + [sum(TSCH['wo']) - sum(sch0)])
    npk = 2 * sum(TSCH['wo']) if XD else 0
    def start():
        sides.cls_touch(a)
        if TG_:
            for x in tl: a.emit(x)
            a.emit(f's_and_b32 s3, s{S_WV}, 3')
            a.emit(f's_lshl2_add_u32 s3, s{S_CU}, s3')
            for w, sz in (('out', 4 * MB), ('wo', 2 * MB), ('w1', 7 * MB), ('b1', 4096), ('b2', 2048)):
                srd(a, SC, w, 0, sz)
                a.emit(f's_mul_i32 s4, s3, {sz // 128}')
                a.emit(f's_buffer_load_dword s84, s[{SC}:{SC+3}], s4')
        if ENV('DX', '2') != '1' or ENV('CLP', 'e') != 's': return 0
        srd(a, ST, 'ws0', WS_XP, LSTR + 4 * MB)
        a.emit('s_and_b32 s3, s2, 3')
        a.emit(f's_and_b32 s4, s{S_CU}, 3')
        a.emit('s_lshl2_add_u32 s3, s3, s4')
        a.emit('s_bfe_u32 s4, s2, 0x10002')
        a.emit(f's_lshr_b32 s5, s{S_CU}, 2')
        a.emit('s_lshl1_add_u32 s4, s5, s4')
        a.emit('s_lshl4_add_u32 s3, s3, s4')
        a.emit(f's_and_b32 s4, s{S_WV}, 3')
        a.emit('s_lshl2_add_u32 s3, s3, s4')
        a.emit('s_lshl_b32 s3, s3, 12')
        a.emit(f's_add_u32 s4, s3, {LSTR}')
        a.emit('v_lshlrev_b32 v2, 4, v1')
        for i in range(4): a.emit(f'v_mov_b32 v{32+i}, -1')
        for i in range(8): a.emit(f'buffer_store_dwordx4 v[32:35], v2, s[{ST}:{ST+3}], s{3+(i>>2)} offen offset:{1024*(i&3)} sc1')
        return 8
    L.run('0', tail_issue=lambda: side(a, 0, 'issue'), ntail_vm=side(Asm(), 0, 'issue'), post=post, start=start, extra=extra0, tail_late=int(ENV('TL0', '0')))
    for i in (16, 17):
        if XD:
            for x in extra0(i): a.emit(x)
        a.emit('s_barrier')
    if XD:
        for x in extra0(18): a.emit(x)
    if ONE:
        a.emit(f's_branch L_{kind}_ldend')
    else:
        side(a, 0, 'finish')
        a.emit('s_endpgm')
    a.label(f'L_{kind}_ld1')
    if ',' in L.kord():
        L.ktable(int(L.kord().split(',')[1]))
        L.ot = int(ot); L.hx = HX - XH
        for x in ([] if ot else L.knext()): a.emit(x)
    srd(a, ST, 'ws0', WS_ST2, 16 * 16384)
    n1 = side(Asm(), 1, 'issue')
    def tail1():
        stats_loads(a, 32, True)
        side(a, 1, 'issue')
    def final1():
        a.emit(f's_waitcnt vmcnt({n1 + npk})')
        stats_reduce_store(a, 32, LST)
        a.emit('s_waitcnt lgkmcnt(0)')
    if T4:
        stats4_setup(a, True)
        TL1 = int(ENV('TL1', '0'))
        def final4():
            a.emit(f"s_waitcnt vmcnt({n1 if int(ENV('STQ', '14')) < 13 + TL1 < 15 else 0})")
            stats4_store(a, 32, LST, True)
            a.emit('s_waitcnt lgkmcnt(0)')
        L.run('1', tail_issue=lambda: side(a, 1, 'issue'), ntail_vm=n1, tail_late=TL1, final=final4, extra=lambda i: stats4_loads(32, True) if i == int(ENV('STQ', '14')) else [],
              post=fill, dep=lambda pf: dep_wait(a, kind, halo=True, postf=pf, pref=(lambda: a.emit('s_waitcnt vmcnt(0)')) if ot else None))
    else: L.run('1', tail_issue=tail1, ntail_vm=16 + n1, final=final1, extra=extra, post=fill, dep=(lambda pf: dep_wait(a, kind, halo=True, postf=pf)) if MEGA else None)
    a.emit('s_barrier')
    if not MEGA: side(a, 1, 'finish')
    a.label(f'L_{kind}_ldend')
    loader_end(a, kind, check=False)
    a.label(end)
    a.emit('s_endpgm')
    loader_first(a, kind)
    a(KD.format(name=f'{kind}l0_kernel'))
    if not MEGA:
        stub(a, f'{kind}l1_kernel', body, 1, tsidx + 4, False)
        a(KD.format(name=f'{kind}l1_kernel'))
    a.label(f'L_{kind}_c1')
    return LST + 1280
```

```python
from common import *
LM_WO = int(ENV('LM_WO', '2')); LM_W1 = int(ENV('LM_W1', '3')); LM_W2 = int(ENV('LM_W2', '2')); LM_QKV = int(ENV('LM_QKV', '3'))
PFW2 = int(ENV('PFW2', '0'))
PV = 96

def fin(a):
    a.emit('s_waitcnt vmcnt(0)')

def pf_wo(a):
    L = 1 << (5 - LM_WO)
    sh = 5 - LM_WO
    return pf_weights(a, SP, 'wo', 2 * MB, 2048, 32, sh, L, LM_WO, 128, max(1, (8 << sh) // 64), PV, pair=SPX)

PF1 = int(ENV('PF1', '0'))
def pf_w1(a, sd=SP):
    if not PF1: return 0
    lm = 2 if 'w1' in OT else LM_W1
    u = 1 << (5 - lm)
    sh = 7 - lm
    srd(a, sd, 'w1', 0, 1024 * 7168)
    a.emit(f's_and_b32 s3, s{S_WV}, 3')
    a.emit(f's_lshl2_add_u32 s3, s{S_CU}, s3')
    a.emit(f's_mul_i32 s3, s3, {64 >> sh}')
    a.emit(f"s_add_u32 s3, s3, {1024 - int(ENV('PF1B', '64'))}")
    a.emit(f'v_lshrrev_b32 v2, {sh}, v1')
    a.emit('v_add_u32 v12, s3, v2')
    a.emit(f'v_and_b32 v3, {4 * u - 1}, v1')
    a.emit(f'v_min_u32 v3, {7 * u // 2 - 1}, v3')
    a.emit('s_and_b32 s3, s2, 7')
    a.emit(f's_lshr_b32 s3, s3, {4 - lm}')
    a.emit(f's_mul_i32 s4, s3, {-(u // 2)}')
    a.emit(f's_add_u32 s4, s4, {16 - u}')
    a.emit(f's_mul_i32 s5, s3, {u}')
    a.emit(f's_add_u32 s5, s5, {24 - 3 * u // 2}')
    a.emit(f's_mul_i32 s3, s3, {u * 128}')
    a.emit(f'v_cmp_le_u32 vcc, {u}, v3')
    a.emit('v_mov_b32 v2, s4')
    a.emit('v_mov_b32 v13, s5')
    a.emit('v_cndmask_b32 v2, 0, v2, vcc')
    a.emit(f'v_cmp_le_u32 vcc, {3 * u // 2}, v3')
    a.emit('s_movk_i32 s4, 7168')
    a.emit('s_nop 0')
    a.emit('v_cndmask_b32 v2, v2, v13, vcc')
    a.emit('v_add_lshl_u32 v3, v3, v2, 7')
    for i in range(PF1):
        if i: a.emit(f'v_add_u32 v12, {128 * (64 >> sh)}, v12')
        a.emit('v_and_b32 v2, 1023, v12')
        a.emit('v_mad_u32_u24 v2, v2, s4, v3')
        a.emit(f'buffer_load_dword v{PV+4+i}, v2, s[{sd}:{sd+3}], s3 offen')
    return PF1

def touch(a, which, size, vd, l0only=True):
    if 'nopf' in DBG: return 0
    per = size // 128 // 1024
    assert per <= 64
    srd(a, SP, which, 0, size)
    a.emit(f's_and_b32 s3, s{S_WV}, 3')
    a.emit('s_lshl_b32 s4, s2, 2')
    a.emit('s_add_u32 s3, s3, s4')
    a.emit(f's_mul_i32 s3, s3, {per * 128}')
    a.emit(f'v_min_u32 v2, {per - 1}, v1')
    a.emit('v_lshlrev_b32 v2, 7, v2')
    if l0only:
        a.emit(f's_sub_u32 s4, s{S_LAYER}, 1')
        a.emit('v_and_b32 v2, s4, v2')
    a.emit(f'buffer_load_dword v{vd}, v2, s[{SP}:{SP+3}], s3 offen')
    return 1

def fill(a):
    if ENV('DX', '2') != '1' or ENV('CLP', 'e') != 't': return 0
    srd(a, SB, 'ws', WS_XP, 4 * MB)
    a.emit('s_and_b32 s3, s2, 3')
    a.emit(f's_and_b32 s4, s{S_CU}, 3')
    a.emit('s_lshl2_add_u32 s3, s3, s4')
    a.emit('s_bfe_u32 s4, s2, 0x10002')
    a.emit(f's_lshr_b32 s5, s{S_CU}, 2')
    a.emit('s_lshl1_add_u32 s4, s5, s4')
    a.emit('s_lshl4_add_u32 s3, s3, s4')
    a.emit(f's_and_b32 s4, s{S_WV}, 3')
    a.emit('s_lshl2_add_u32 s3, s3, s4')
    a.emit('s_lshl_b32 s3, s3, 12')
    a.emit('v_lshlrev_b32 v2, 4, v1')
    for i in range(4): a.emit(f'v_mov_b32 v{24+i}, -1')
    for i in range(4): a.emit(f'buffer_store_dwordx4 v[24:27], v2, s[{SB}:{SB+3}], s3 offen offset:{1024*i} sc1')
    return 4

def qkv(a, layer, phase, npre=0):
    if phase == 'issue':
        n = 0
        if layer == 0:
            srd(a, SC, 'w1', 0, 1024 * 7168)
            a.emit('s_min_u32 s3, s2, 223')
            a.emit('s_mul_i32 s4, s3, 4682')
            a.emit('s_lshr_b32 s4, s4, 16')
            a.emit('s_mul_i32 s5, s4, 14')
            a.emit('s_sub_u32 s3, s3, s5')
            a.emit('s_lshl_b32 s3, s3, 2')
            a.emit(f's_and_b32 s5, s{S_WV}, 3')
            a.emit('s_add_u32 s3, s3, s5')
            a.emit(f's_mul_i32 s5, s4, {64 * 7168}')
            a.emit('s_lshl_b32 s8, s3, 7')
            a.emit('s_add_u32 s5, s5, s8')
            a.emit('s_lshl_b32 s9, s4, 14')
            a.emit('s_lshl_b32 s8, s3, 8')
            a.emit('s_add_u32 s94, s9, s8')
            a.emit('v_lshrrev_b32 v2, 3, v1')
            a.emit('v_mul_u32_u24 v2, 7168, v2')
            a.emit('v_and_b32 v3, 7, v1')
            a.emit('v_lshl_add_u32 v2, v3, 4, v2')
            for j in range(8):
                a.emit(f'buffer_load_dwordx4 v[{64+4*j}:{67+4*j}], v2, s[{SC}:{SC+3}], s5 offen')
                if j < 7: a.emit(f's_add_u32 s5, s5, {8 * 7168}')
            n += 8
            from gemmw2 import zero_flags
            if not ONE: n += zero_flags(a)
            if ENV('TW2') == 'qkv': n += touch(a, 'w2', 3584 * 2048, PV + 2, False)
        if ENV('CLO', '0') == '1': n += fill(a)
        if ENV('PWO', 'v') == 'v': n += pf_wo(a)
        if str(layer) in ENV('PF1L', '01'): n += pf_w1(a)
        if ENV('CLO', '0') == '0': n += fill(a)
        return n
    if layer == 0:
        a.emit(f's_waitcnt vmcnt({npre})')
        a.emit('s_mov_b32 s7, 0xffff0000')
        for i in range(4):
            a.emit(f'v_lshlrev_b32 v{32+2*i}, 16, v{64+i}')
            a.emit(f'v_and_b32 v{33+2*i}, s7, v{64+i}')
        for j in range(1, 8):
            for i in range(4):
                a.emit(f'v_lshlrev_b32 v40, 16, v{64+4*j+i}')
                a.emit(f'v_and_b32 v41, s7, v{64+4*j+i}')
                a.emit(f'v_pk_add_f32 v[{32+2*i}:{33+2*i}], v[{32+2*i}:{33+2*i}], v[40:41]')
        srd(a, SB, 'ws0', WS_CS, 16 * 16384)
        for i in range(4): a.emit(f'v_permlane32_swap_b32 v{32+i}, v{36+i}')
        for i in range(4): a.emit(f'v_add_f32 v{32+i}, v{32+i}, v{36+i}')
        a.emit('v_and_b32 v2, 7, v1')
        a.emit('v_lshlrev_b32 v2, 5, v2')
        for i in range(2): a.emit(f'v_permlane16_swap_b32 v{32+i}, v{34+i}')
        for i in range(2): a.emit(f'v_add_f32 v{32+i}, v{32+i}, v{34+i}')
        a.emit('v_lshrrev_b32 v3, 4, v1')
        a.emit('v_lshl_add_u32 v2, v3, 3, v2')
        for i in range(2): a.emit(f'v_add_f32_dpp v{32+i}, v{32+i}, v{32+i} row_ror:8 row_mask:0xf bank_mask:0xf')
        a.emit(f'buffer_store_dwordx2 v[32:33], v2, s[{SB}:{SB+3}], s94 offen sc1')
        if ONE and not SPX: a.emit('s_waitcnt vmcnt(0)')
    else:
        fin(a)

def wo(a, phase):
    if phase == 'issue':
        return touch(a, 'w2', 3584 * 2048, PV) if ENV('TW2') == 'wo' else 0
    fin(a)

def stouch(a, which, size, sd, sreg, first, lps, pre=0, per=None):
    if lps == 0: return []
    srd(a, sd, which, 0, size)
    a.emit(f's_cmp_eq_u32 s{S_LAYER}, 0')
    a.emit(f's_cselect_b32 s{sd+2}, s{sd+2}, 0')
    a.emit(f's_and_b32 s3, s{S_WV}, 3')
    a.emit('s_lshl_b32 s4, s2, 2')
    a.emit('s_add_u32 s3, s3, s4')
    a.emit(f's_mul_i32 s{sreg}, s3, {per or size // 1024}')
    if per:
        a.emit(f's_add_u32 s{sreg}, s{sreg}, {first * 64 * 1024}')
        first = 0
    for i in range(pre): a.emit(f's_buffer_load_dword s84, s[{sd}:{sd+3}], s{sreg} offset:{64*(first+i)}')
    return [f's_buffer_load_dword s84, s[{sd}:{sd+3}], s{sreg} offset:{64*(first+pre+i)}' for i in range(lps)] + [f's_add_u32 s{sreg}, s{sreg}, {64*lps}']

STV = [int(x) for x in ENV('STV', '4,0,4,0').split(',')]
def stouch_post(a, kind):
    if ENV('TW2', 's') != 's': return ()
    if kind == 'attn':
        return stouch(a, 'w2', 3584 * 2048, SR, S_T, 0, STV[0], per=14 * 64 * STV[0]) + stouch(a, 'wo', 2 * MB, SB, 86, 0, STV[3], pre=max(0, 32 - 14 * STV[3]))
    if kind == 'wo': return stouch(a, 'w2', 3584 * 2048, SP, S_T, 14 * STV[0], STV[1])
    if kind == 'w1': return stouch(a, 'w2', 3584 * 2048, SP, S_T, 14 * STV[0], STV[2], per=14 * 64 * STV[2], pre=STV[2] if 'w1' in OT else 0)
    if kind == 'w2': return cls_w2(a)
    return ()

def cls_w2(a):
    P = int(ENV('CW2', '8'))
    if P == 0: return ()
    a.emit(f's_and_b32 s3, s{S_WV}, 3')
    a.emit(f's_lshl_b32 s4, s{S_CU}, 2')
    a.emit('s_add_u32 s3, s3, s4')
    a.emit('s_lshl_b32 s4, s3, 6')
    a.emit('s_and_b32 s4, s4, 64')
    a.emit('s_lshr_b32 s3, s3, 1')
    a.emit(f's_lshl_b32 s{S_T}, s3, 11')
    a.emit(f's_add_u32 s{S_T}, s{S_T}, s4')
    a.emit(f's_sub_u32 s4, 384, s{SW}')
    a.emit('s_and_b32 s4, s4, 0x380')
    a.emit(f's_add_u32 s{S_T}, s{S_T}, s4')
    a.emit(f's_lshl_b32 s4, s{S_NT}, 7')
    a.emit('s_and_b32 s4, s4, 1024')
    a.emit(f's_add_u32 s{S_T}, s{S_T}, s4')
    a.emit(f's_add_u32 s{S_T}, s{S_T}, {(30 if VW else 16 * max(1, PFW2) if XD else 4) * 131072}')
    o = [f's_buffer_load_dword s84, s[{SW}:{SW+3}], s{S_T}', f's_add_u32 s{S_T}, s{S_T}, 131072']
    if VW:
        for x in o * (P // 2): a.emit(x)
        return o * 2
    for i in range(P + 1):
        for x in o: a.emit(x)
    return o

def w1(a, phase):
    if phase == 'late' or (phase == 'issue' and ENV('PFL', '2') == '0'):
        NI = PFW2
        if phase == 'late' and ENV('PFL', '2') == '0': return
        if XD and NI: return pf_weights(a, SR, 'w2', 3584 * 2048, 2048, 32 * NI, 3, 8, 2, 128, NI, PV)
        return 0
    if phase == 'issue': return 0
    if not XD: fin(a)

def w2(a, phase):
    return 0

def cls_touch(a):
    m = ENV('CLS', 'w')
    if m == '0': return
    a.emit(f's_and_b32 s3, s{S_WV}, 3')
    a.emit('s_lshl_b32 s4, s2, 2')
    a.emit('s_add_u32 s3, s3, s4')
    a.emit(f's_sub_u32 s4, 384, s{SW}')
    a.emit('s_and_b32 s4, s4, 0x380')
    a.emit('s_mul_i32 s5, s3, 6144')
    a.emit('s_add_u32 s5, s5, s4')
    for j in range(6):
        for h in range(2): a.emit(f's_buffer_load_dword s84, s[{SW}:{SW+3}], s5 offset:{1024*j+64*h}')
    if m == 'wx':
        a.emit(f's_sub_u32 s4, 384, s{SX}')
        a.emit('s_and_b32 s4, s4, 0x380')
        a.emit('s_lshl_b32 s5, s3, 12')
        a.emit('s_add_u32 s5, s5, s4')
        for j in range(4):
            for h in range(2): a.emit(f's_buffer_load_dword s84, s[{SX}:{SX+3}], s5 offset:{1024*j+64*h}')
```

```python
import sys, os, struct
sys.path.insert(0, os.path.join(os.path.dirname(os.path.abspath(__file__)), '..'))
from asmlib import Asm, check_offsets
MB = 1 << 20
WSB = int(os.environ.get('WSB', '0')) * MB
WS_O   = WSB
WS_X1  = WSB + 4 * MB
WS_H   = WSB + 8 * MB
WS_ST  = WSB + 23 * MB
WS_CS  = WSB + 23 * MB + 512 * 1024
WS_ST0 = WSB + 23 * MB + 768 * 1024
DS = os.environ.get('DS', '1') == '1'
WS_TS  = 60 * MB
MEGA = os.environ.get('MEGA', '2') in ('1', '2')
ONE = os.environ.get('MEGA', '2') == '2'
LSTR = 64 * MB
WS_ST2 = WS_ST + 256 * 1024 if MEGA else WS_ST
WS_FL = WSB + 40 * MB
FLS = 524288
REP = int(os.environ.get('REP', '16'))
WS_XP = WSB + 24 * MB
WS_X2 = WSB + 32 * MB
XPAD = int(os.environ.get('XPAD', '128')) if MEGA else 0
f2u = lambda f: struct.unpack('<I', struct.pack('<f', f))[0]
ENV = os.environ.get
TS = ENV('TS', '')
DBG = ENV('DBG', '').split(',')
EARLY = int(ENV('EARLY', '0')) if MEGA and ENV('SPLIT', '0') == '0' else 0
def stf(kind): return (' ' + ENV('WTF', 'sc1')) if kind in ENV('WT', 'attn,wo,w2,w1').split(',') else ''

KA = {'A_x': 0, 'wqkv': 8, 'wo': 16, 'w1': 32, 'b1': 40, 'w2': 48, 'b2': 56, 'out': 64, 'ws': 80}
P_IN = 16
P_OUT = 32; P_WS = 34
P_XS = 12
PTR = {'A_x': 16, 'wqkv': 18, 'wo': 20, 'w1': 24, 'b1': 26, 'w2': 28, 'b2': 30, 'out': 32, 'ws': 34, 'xs': 12, 'ws0': 22}
SX, SW, SO, SR, SB, ST, SP, SC = 36, 40, 44, 48, 52, 56, 60, 64
S_MT, S_NT, S_WV, S_WM, S_WN = 68, 69, 70, 71, 72
S_KX, S_KW, S_SLOT, S_XD, S_WD, S_HD, S_CNT = 73, 74, 75, 76, 77, 78, 79
S_LAYER = 96; S_TSI = 97; S_T = 98; S_CU = 99; S_XG = 100; S_KT = 101

KD = '''.section .rodata,"a"
.p2align 6
.amdhsa_kernel {name}
  .amdhsa_next_free_vgpr 256
  .amdhsa_next_free_sgpr 102
  .amdhsa_accum_offset 256
  .amdhsa_group_segment_fixed_size 0
  .amdhsa_kernarg_size 88
  .amdhsa_user_sgpr_count 2
  .amdhsa_user_sgpr_kernarg_segment_ptr 1
  .amdhsa_system_sgpr_workgroup_id_x 1
  .amdhsa_float_denorm_mode_32 3
  .amdhsa_float_denorm_mode_16_64 3
.end_amdhsa_kernel
.text
'''

def srd(a, sd, which, off, size):
    p = PTR[which]
    if off:
        a.emit(f's_add_u32 s{sd}, s{p}, {off}')
        a.emit(f's_addc_u32 s{sd+1}, s{p+1}, 0')
        a.emit(f's_and_b32 s{sd+1}, s{sd+1}, 0xffff')
    else:
        a.emit(f's_mov_b32 s{sd}, s{p}')
        a.emit(f's_and_b32 s{sd+1}, s{p+1}, 0xffff')
    a.emit(f's_mov_b32 s{sd+2}, {size}')
    a.emit(f's_mov_b32 s{sd+3}, 0x00020000')

def xpitch(a, sd, inv=False):
    a.emit(f's_cmp_eq_u32 s{S_LAYER}, {0 if inv else 1}')
    a.emit(f's_cselect_b32 s{sd}, {XPAD}, 0')
    a.emit(f's_add_u32 s{sd}, s{sd}, 2048')

def srd_xs(a, sd):
    srd(a, sd, 'xs', 0, 4 * MB)
    xpitch(a, sd + 2)
    a.emit(f's_lshl_b32 s{sd+2}, s{sd+2}, 11')

def stub(a, name, body, layer, tsidx, first):
    a(f'.text\n.globl {name}\n.p2align 8\n.type {name},@function\n{name}:')
    if TS:
        stamp(a, 0, nowait=True)
    a.emit('s_load_dwordx4 s[16:19], s[0:1], 0')
    a.emit('s_load_dwordx2 s[20:21], s[0:1], 16')
    a.emit('s_load_dwordx2 s[22:23], s[0:1], 80')
    a.emit('s_load_dwordx8 s[24:31], s[0:1], 32')
    a.emit('s_load_dwordx2 s[32:33], s[0:1], 64')
    a.emit('s_load_dwordx2 s[34:35], s[0:1], 80')
    a.emit(f's_load_dwordx2 s[12:13], s[0:1], {0 if layer == 0 else 64}')
    if DS: a.emit(f's_load_dwordx2 s[{SC}:{SC+1}], s[0:1], 72')
    a.emit(f's_mov_b32 s{S_LAYER}, {layer}')
    a.emit(f's_mov_b32 s{S_TSI}, {tsidx}')
    if not first:
        a.emit(f's_branch {body}')

def stamp(a, n, nowait=False):
    if not TS: return
    a.emit(f's_memrealtime s[{80+4*n}:{81+4*n}]')
    a.emit(f's_memtime s[{82+4*n}:{83+4*n}]')
    if not nowait: a.emit('s_waitcnt lgkmcnt(0)')

def stamps_out(a, tag):
    if not TS: return
    if not MEGA: a.emit('s_waitcnt vmcnt(0)')
    stamp(a, 3)
    if MEGA and tag == 'w1':
        for i in range(16): a.emit(f'v_writelane_b32 v31, s{80+i}, {i}')
        return
    srd(a, SP, 'ws0', WS_TS, 1 << 20)
    a.emit('s_lshl_b32 s4, s2, 6')
    a.emit(f's_lshl_b32 s5, s{S_TSI}, 16')
    a.emit('s_add_u32 s4, s4, s5')
    a.emit('v_mov_b32 v1, s4')
    for i in range(16): a.emit(f'v_mov_b32 v{4+i}, s{80+i}')
    a.emit('v_cmp_eq_u32 vcc, 0, v0')
    a.emit('s_and_saveexec_b64 s[6:7], vcc')
    a.emit(f's_cbranch_execz L_tsskip_{tag}')
    for j in range(4):
        a.emit(f'buffer_store_dwordx4 v[{4+4*j}:{7+4*j}], v1, s[{SP}:{SP+3}], 0 offen offset:{16*j}' + (' sc1' if ENV('DIAG') else ''))
    if MEGA and tag == 'w2':
        a.emit('s_mov_b64 exec, 0xffff')
        a.emit('s_sub_u32 s4, s4, 0x10000')
        a.emit('v_lshlrev_b32 v1, 2, v0')
        a.emit(f'buffer_store_dword v31, v1, s[{SP}:{SP+3}], s4 offen' + (' sc1' if ENV('DIAG') else ''))
    a.label(f'L_tsskip_{tag}')
    a.emit('s_mov_b64 exec, -1')

SPX = ENV('SPX', '1') == '1'
OT = ENV('OT', 'w1,w2,attn').split(',')
S_T0 = 91
OHB = 114688; OBIA = [10, 24, 124, 126]
NV = int(ENV('NV', '0'))
EX = int(ENV('EX', '14'))
LSTK = ENV('LSTK', 'w2')
LREG = [52, 54, 56, 58] if LSTK == 'w2' else [36, 38, 48, 50] if LSTK == 'wo' else [80, 82, 48, 50]
def lstamp(a, n, dep=False):
    if dep and (ENV('LST') == 'x' or LSTK != 'w2'): return
    if TS: a.emit(f's_memrealtime s[{LREG[n]}:{LREG[n]+1}]')

def lstamps_out(a, tag):
    if not TS: return
    a.emit(f"s_cmp_lg_u32 s{S_WV}, {ENV('PW_' + tag.upper(), '4')}")
    a.emit(f's_cbranch_scc1 L_ltsskip_{tag}')
    a.emit('s_waitcnt lgkmcnt(0)')
    srd(a, SP, 'ws0', WS_TS + 16384, 1 << 20)
    a.emit('s_lshl_b32 s4, s2, 6')
    a.emit(f's_lshl_b32 s5, s{S_TSI}, 16')
    a.emit('s_add_u32 s4, s4, s5')
    for i in range(8): a.emit(f'v_writelane_b32 v20, s{LREG[i>>1]+(i&1)}, {i}')
    a.emit('v_lshlrev_b32 v21, 2, v1')
    a.emit('s_mov_b64 exec, 0xff')
    a.emit(f'buffer_store_dword v20, v21, s[{SP}:{SP+3}], s4 offen')
    a.emit('s_mov_b64 exec, -1')
    a.label(f'L_ltsskip_{tag}')

def tile_map(a, LM, endlab, pair=False):
    if endlab:
        a.emit('s_cmp_ge_u32 s2, 256')
        a.emit(f's_cbranch_scc1 {endlab}')
        a.emit('v_lshrrev_b32 v2, 6, v0')
        a.emit('v_and_b32 v1, 63, v0')
        a.emit(f'v_readfirstlane_b32 s{S_WV}, v2')
    a.emit('s_and_b32 s3, s2, 7')
    if endlab: a.emit(f's_lshr_b32 s{S_CU}, s2, 3')
    if LM == 2 and ENV('MAP2', '0') == '1':
        a.emit('s_lshl_b32 s5, s3, 1')
        a.emit('s_lshr_b32 s6, s3, 1')
        a.emit('s_and_b32 s5, s5, 2')
        a.emit('s_and_b32 s6, s6, 1')
        a.emit('s_or_b32 s5, s5, s6')
    else: a.emit(f's_and_b32 s5, s3, {(1 << (4 - LM)) - 1}')
    a.emit(f's_lshl_b32 s5, s5, {LM}')
    a.emit(f's_and_b32 s6, s{S_CU}, {(1 << LM) - 1}')
    a.emit(f's_add_u32 s{S_MT}, s5, s6')
    a.emit(f's_lshr_b32 s5, s3, {4 - LM}')
    if pair:
        a.emit(f's_lshr_b32 s{S_HD}, s{S_CU}, {LM}')
        a.emit(f's_lshl1_add_u32 s{S_NT}, s{S_HD}, s5')
        return
    a.emit(f's_lshl_b32 s5, s5, {5 - LM}')
    a.emit(f's_lshr_b32 s6, s{S_CU}, {LM}')
    a.emit(f's_add_u32 s{S_NT}, s5, s6')
    if 'smallm' in DBG: a.emit(f's_and_b32 s{S_MT}, s{S_MT}, 1')
    if 'smalln' in DBG: a.emit(f's_and_b32 s{S_NT}, s{S_NT}, 1')

def interleave(a, main, side, lead=1, per=1):
    si = 0
    for i, m in enumerate(main):
        a.emit(m)
        if i + 1 >= lead:
            for _ in range(per):
                if si < len(side): a.emit(side[si]); si += 1
    while si < len(side): a.emit(side[si]); si += 1

PO0, POM = [int(x) for x in ENV('PO', '1,3').split(',')]
KSH = int(ENV('KSH', '0'))
def own_pos(a, sd):
    a.emit(f's_and_b32 s{sd}, s{S_NT}, {POM}')
    a.emit(f's_add_u32 s{sd}, s{sd}, {PO0}')

class Loader:
    VXD = 4; VWD = 8; VXH = 28
    def __init__(self, a, tag, K, lda2, ldw2, panels, colbase, S, STAGE, halo=None, delta=0, rot=None, xblk=False, half=0):
        self.a = a; self.tag = tag; self.K = K; self.lda2 = lda2; self.ldw2 = ldw2; self.panels = panels
        self.colbase = colbase; self.S = S; self.STAGE = STAGE; self.halo = halo; self.delta = delta; self.xblk = xblk; self.rot = rot if rot is not None and rot >= 0 else None
        self.NSTEP = K // 64; self.half = half; self.ot = 0; self.skip = False
        self.per = 4 + 2 * len(panels) + (1 if halo is not None else 0)
    def setup(self):
        a = self.a
        if ENV('PRIO', '0') != '0': a.emit(f"s_setprio {ENV('PRIO')}")
        a.emit(f's_add_u32 s8, s{S_WV}, s{S_NT}')
        a.emit('s_and_b32 s8, s8, 3')
        a.emit(f's_add_u32 s9, s{S_WV}, s{S_MT}')
        a.emit('s_and_b32 s9, s9, 3')
        a.emit(f's_lshl_b32 s{S_XD}, s8, 12')
        a.emit(f's_lshl_b32 s{S_WD}, s9, 11')
        a.emit(f's_add_u32 s{S_WD}, s{S_WD}, 16384')
        a.emit(f's_lshl_b32 s11, s{S_MT}, 7')
        a.emit('v_and_b32 v10, 7, v1')
        if self.xblk: self.xoff_blk(self.lda2)
        else: self.xoff_rows(self.lda2)
        a.emit('v_lshrrev_b32 v3, 3, v1')
        a.emit('s_lshl_b32 s10, s9, 4')
        a.emit('v_add_u32 v3, s10, v3')
        a.emit(f'v_mul_u32_u24 v3, {self.ldw2}, v3')
        a.emit('v_lshrrev_b32 v2, 3, v1')
        a.emit('v_and_b32 v2, 2, v2')
        a.emit('v_xor_b32 v2, v2, v10')
        a.emit(f's_mul_i32 s10, s{S_NT}, {self.colbase}')
        if 'noslow' in DBG and self.tag == 'attn':
            a.emit(f's_bitcmp1_b32 0x0808, s{S_NT}')
            a.emit('s_cselect_b32 s3, 512, 0')
            a.emit('s_add_u32 s10, s10, s3')
        if self.colbase & 127: a.emit('s_andn2_b32 s10, s10, 127')
        a.emit('v_add_u32 v3, s10, v3')
        a.emit(f'v_lshl_add_u32 v{self.VWD}, v2, 4, v3')
        a.emit('v_xor_b32 v2, 4, v2')
        a.emit(f'v_add_u32 v3, {8*self.ldw2}, v3')
        a.emit(f'v_lshl_add_u32 v{self.VWD+1}, v2, 4, v3')
        if self.half:
            a.emit('v_lshrrev_b32 v3, 2, v1')
            a.emit('s_lshl_b32 s10, s9, 4')
            a.emit('v_add_u32 v3, s10, v3')
            a.emit(f'v_mul_u32_u24 v3, {self.ldw2}, v3')
            a.emit('v_lshrrev_b32 v2, 4, v1')
            a.emit('v_and_b32 v2, 2, v2')
            a.emit('v_xor_b32 v2, v2, v1')
            a.emit('v_and_b32 v2, 3, v2')
            a.emit(f's_lshl_b32 s10, s{S_NT}, 6')
            a.emit(f's_add_u32 s10, s10, {self.half}')
            a.emit('v_add_u32 v3, s10, v3')
            a.emit(f'v_lshl_add_u32 v{self.VXH}, v2, 4, v3')
            a.emit(f's_lshl_b32 s{S_HD}, s{S_NT}, 7')
            a.emit(f's_add_u32 s{S_HD}, s{S_HD}, 3072')
        if self.halo is not None:
            a.emit(f's_and_b32 s10, s{S_WV}, 3')
            a.emit(f's_lshl_b32 s{S_HD}, s10, 9')
            a.emit(f's_add_u32 s{S_HD}, s{S_HD}, {self.halo}')
            a.emit('s_lshl_b32 s14, s10, 2')
            a.emit('s_add_u32 s14, s14, s11')
            a.emit('s_sub_u32 s14, s14, 16')
            a.emit('v_lshrrev_b32 v3, 3, v1')
            a.emit('v_add_u32 v3, s14, v3')
            a.emit('v_max_i32 v3, 0, v3')
            a.emit('v_mul_u32_u24 v3, s5, v3')
            a.emit('s_lshl_b32 s14, s10, 1')
            a.emit('v_lshrrev_b32 v2, 4, v1')
            a.emit('v_add_u32 v2, s14, v2')
            a.emit('v_and_b32 v2, 7, v2')
            a.emit('v_xor_b32 v2, v2, v10')
            a.emit(f'v_lshl_add_u32 v{self.VXH}, v2, 4, v3')
            a.emit('s_cmp_eq_u32 s10, 0')
            a.emit('s_cselect_b32 s14, 0xffffff00, -1')
            a.emit('s_mov_b32 s15, 0')
        a.emit(f's_mov_b32 s{S_SLOT}, 0')
        if self.rot is None:
            a.emit(f's_mov_b32 s{S_KX}, 0')
            a.emit(f's_mov_b32 s{S_KW}, 0')
        else:
            if not getattr(self, 'noxg', False): a.emit(f's_add_u32 s{S_XG}, s{S_MT}, s{S_NT}')
            a.emit(f's_mov_b32 s{S_KT}, {0 if EARLY and self.tag == "w2" else -1}')
            ko = int(ENV('KOFF_' + self.tag.upper(), '0'))
            if ko:
                a.emit(f"s_bitcmp1_b32 {ENV('KMSK_' + self.tag.upper(), '0x0808' if self.tag == 'attn' else '0x2aea')}, s{S_NT}")
                a.emit(f's_cselect_b32 s{S_KT}, {ko - 1}, s{S_KT}')
            if self.kord(): self.ktable()
            if self.skip:
                if KSH:
                    a.emit(f's_and_b32 s{S_T0}, s{S_NT}, 3')
                    a.emit(f's_and_b32 s93, s{S_NT}, 12')
                    if KSH == 2:
                        a.emit(f's_and_b32 s3, s{S_MT}, 8')
                        a.emit('s_add_u32 s93, s93, s3')
                else: a.emit(f's_mov_b32 s{S_T0}, s{S_NT}')
                own_pos(a, 92)
                for x in self.knext(): a.emit(x)
            elif not self.ot:
                for x in self.knext(): a.emit(x)
    def kord(self): return ENV('KORD_' + self.tag.upper(), {'w1': '2', 'attn': '0,2'}.get(self.tag, ''))
    def korder(self, g, start):
        D = int(ENV('ROTD_' + self.tag.upper(), ENV('ROTD', '2')))
        o = list(range(16))
        if start < 0:
            dl = {3: [3, -1, -1, -1], 2: [2, -1, -1, 0], 1: [1, -1, 0, 0]}[D]
            return [(t + dl[(t - g) & 3]) & 15 for t in range(16)]
        for t in range(start + g, 16 - D, 4): o[t:t + D + 1] = [t + D] + list(range(t, t + D))
        return o
    def ktable(self, start=None):
        a = self.a
        if start is None: start = int(self.kord().split(',')[0])
        a.emit(f's_add_u32 s3, s{S_MT}, s{S_NT}')
        a.emit('s_and_b32 s3, s3, 3')
        for g in range(4):
            v = sum(k << (4 * i) for i, k in enumerate(self.korder(g, start)))
            if g: a.emit(f's_cmp_eq_u32 s3, {g}')
            for h in range(2):
                a.emit(f's_cselect_b32 s{S_XG+h}, {(v >> (32 * h)) & 0xffffffff:#x}, s{S_XG+h}' if g else f's_mov_b32 s{S_XG+h}, {(v >> (32 * h)) & 0xffffffff:#x}')
    def own(self):
        D = int(ENV('ROTD_' + self.tag.upper(), ENV('ROTD', '2')))
        dl = {3: [3, -1, -1, -1], 2: [2, -1, -1, 0], 1: [1, -1, 0, 0]}[D]
        tbl = sum(((-d) % 16) << (8 * ((r + d) & 3)) for r, d in enumerate(dl))
        assert self.rot == 0 and self.NSTEP == 16
        if self.kord():
            return [f's_lshr_b32 s3, s{S_NT}, 3', f's_and_b32 s{S_KX}, s{S_NT}, 7', f's_lshl1_add_u32 s{S_T0}, s{S_KX}, s3',
                    f's_mul_i32 s{S_KW}, s{S_T0}, {64*self.ldw2}', f's_lshl_b32 s{S_KX}, s{S_T0}, {11 if self.xblk else 7}']
        return [f's_lshr_b32 s3, s{S_NT}, 3', f's_and_b32 s{S_KX}, s{S_NT}, 7', f's_lshl1_add_u32 s{S_KX}, s{S_KX}, s3',
                f's_sub_u32 s3, s{S_KX}, s{S_XG}', 's_lshl_b32 s3, s3, 3', f's_lshr_b32 s3, {tbl:#x}, s3',
                f's_add_u32 s3, s3, s{S_KX}', f's_and_b32 s{S_T0}, s3, 15',
                f's_mul_i32 s{S_KW}, s{S_KX}, {64*self.ldw2}', f's_lshl_b32 s{S_KX}, s{S_KX}, {11 if self.xblk else 7}']
    def xoff_rows(self, ld):
        a = self.a
        a.emit('v_lshrrev_b32 v3, 3, v1')
        a.emit(f's_lshr_b32 s10, s{S_XD}, 7')
        a.emit(f's_lshl_b32 s3, s{S_MT}, 7')
        a.emit('s_add_u32 s10, s10, s3')
        a.emit('v_add_u32 v3, s10, v3')
        xpitch(a, 5)
        a.emit('s_lshl_b32 s6, s5, 3')
        a.emit('v_mul_u32_u24 v3, s5, v3')
        a.emit('v_lshrrev_b32 v2, 4, v1')
        for j in range(4):
            d = self.VXD + j
            if j & 1:
                a.emit(f'v_add_u32 v{d}, 4, v2')
                a.emit(f'v_xor_b32 v{d}, v{d}, v10')
            else:
                a.emit(f'v_xor_b32 v{d}, v2, v10')
            a.emit(f'v_lshl_add_u32 v{d}, v{d}, 4, v3')
            if j < 3: a.emit('v_add_u32 v3, s6, v3')
    def xoff_blk(self, ld):
        a = self.a
        a.emit(f's_lshr_b32 s10, s{S_XD}, 11')
        a.emit(f's_lshl_b32 s3, s{S_MT}, 3')
        a.emit('s_add_u32 s10, s10, s3')
        a.emit(f's_mul_i32 s10, s10, {16*ld}')
        a.emit(f'v_lshl_add_u32 v{self.VXD}, v1, 4, s10')
        a.emit(f'v_add_u32 v{self.VXD+1}, {16*ld}, v{self.VXD}')
    def xdma(self, base, imm, sd, soff, blk):
        o = []
        for j in range(4):
            if blk:
                if not j & 1: o += [f's_add_u32 m0, s{base}, {imm + j*1024}', 's_nop 0']
                o.append(f'buffer_load_dwordx4 v{self.VXD+(j>>1)}, s[{sd}:{sd+3}], s{soff} offen offset:{(j&1)*1024} lds')
            else:
                o += [f's_add_u32 m0, s{base}, {imm + j*1024}', 's_nop 0', f'buffer_load_dwordx4 v{self.VXD+j}, s[{sd}:{sd+3}], s{soff} offen lds']
        return o
    def knext(self):
        if self.rot is None:
            return [f's_add_u32 s{S_KX}, s{S_KX}, {2048 if self.xblk else 128}', f's_add_u32 s{S_KW}, s{S_KW}, {64*self.ldw2}']
        if self.kord():
            tb = f's[{S_XG}:{S_XG+1}]'
            o = [f's_and_b32 s{S_KX}, s{S_XG}, 15']
            if self.ot or self.skip: o += [f's_cmp_eq_u32 s{S_KX}, s{S_T0}', f's_cselect_b32 s{S_KW}, 4, 0', f's_lshr_b64 {tb}, {tb}, s{S_KW}', f's_and_b32 s{S_KX}, s{S_XG}, 15']
            if self.skip and not self.ot: o += ['s_sub_u32 s92, s92, 1', f's_cselect_b32 s{S_KX}, s{S_T0}, s{S_KX}', f's_cselect_b32 s{S_KW}, 0, 4'] + ([f's_add_u32 s{S_KX}, s{S_KX}, s93', f's_and_b32 s{S_KX}, s{S_KX}, 15'] if KSH else [])
            return o + [f's_lshr_b64 {tb}, {tb}, ' + (f's{S_KW}' if self.skip and not self.ot else '4'), f's_mul_i32 s{S_KW}, s{S_KX}, {64*self.ldw2}', f's_lshl_b32 s{S_KX}, s{S_KX}, {11 if self.xblk else 7}']
        lc = self.rot; C = 1 << lc; N = self.NSTEP
        o = [f's_add_u32 s{S_KT}, s{S_KT}, 1']
        if self.ot: o += [f's_cmp_eq_u32 s{S_KT}, s{S_T0}', f's_addc_u32 s{S_KT}, s{S_KT}, 0']
        D = int(ENV('ROTD_' + self.tag.upper(), ENV('ROTD', '2')))
        dl = {3: [3, -1, -1, -1], 2: [2, -1, -1, 0], 1: [1, -1, 0, 0]}[D]
        tbl = sum((((d * C) % N) << (8 * i)) for i, d in enumerate(dl))
        if lc: o += [f's_lshr_b32 s{S_KX}, s{S_KT}, {lc}', f's_sub_u32 s{S_KX}, s{S_KX}, s{S_XG}']
        else: o += [f's_sub_u32 s{S_KX}, s{S_KT}, s{S_XG}']
        o += [f's_lshl_b32 s{S_KX}, s{S_KX}, 3',
              f's_lshr_b32 s{S_KX}, {tbl:#x}, s{S_KX}',
              f's_and_b32 s{S_KX}, s{S_KX}, 255',
              f's_add_u32 s{S_KX}, s{S_KX}, s{S_KT}']
        if N & (N - 1) == 0: o += [f's_and_b32 s{S_KX}, s{S_KX}, {N - 1}']
        else: o += [f's_sub_u32 s{S_KW}, s{S_KX}, {N}', f's_cselect_b32 s{S_KX}, s{S_KX}, s{S_KW}']
        o += [f's_mul_i32 s{S_KW}, s{S_KX}, {64*self.ldw2}', f's_lshl_b32 s{S_KX}, s{S_KX}, {11 if self.xblk else 7}']
        return o
    def panels_of(self, t): return self.panels
    def issue_x(self, bx, bh, imm, kx):
        o = self.xdma(bx, imm, SX, kx, self.xblk)
        if self.halo is not None:
            o.append(f's_add_u32 m0, s{S_HD}, {bh}')
            o.append('s_mov_b64 exec, s[14:15]')
            o.append(f'buffer_load_dwordx4 v{self.VXH}, s[{SX}:{SX+3}], s{kx} offen lds')
            o.append('s_mov_b64 exec, -1')
        return o
    def issue_w(self, t, bw, imm):
        o = []
        for pn, goff in enumerate(self.panels_of(t)):
            for i in range(2):
                o.append(f's_add_u32 m0, s{bw}, {imm+pn*8192+i*1024}')
                o.append((goff if str(goff).startswith('s_') else f's_add_u32 s4, s{S_KW}, {goff}') if i == 0 else 's_nop 0')
                o.append(f'buffer_load_dwordx4 v{self.VWD+i}, s[{SW}:{SW+3}], s4 offen lds')
        if self.half:
            o += [f's_add_u32 m0, s{bw}, {imm+len(self.panels)*8192}', 's_nop 0',
                  f'buffer_load_dwordx4 v{self.VXH}, s[{SW}:{SW+3}], s{S_KW} offen lds']
        return o
    def issue(self, t):
        o = [f's_add_u32 s3, s{S_SLOT}, s{S_XD}']
        o += self.issue_x(3, f's{S_SLOT}', 0, S_KX)
        o.append(f's_add_u32 s3, s{S_SLOT}, s{S_WD}')
        o += self.issue_w(t, 3, 0)
        o += self.knext()
        o.append(f's_add_u32 s{S_SLOT}, s{S_SLOT}, {self.STAGE}')
        o.append(f's_cmp_eq_u32 s{S_SLOT}, {self.S*self.STAGE}')
        o.append(f's_cselect_b32 s{S_SLOT}, 0, s{S_SLOT}')
        return o
    def run(self, variant='', tail_issue=None, ntail_vm=0, final=None, post=(), dep=None, tail_late=0, start=None, extra=None, exfirst=False):
        a = self.a; N = self.NSTEP; d = self.S - 1
        tag = self.tag + variant
        nx = 4 + (1 if self.halo is not None else 0)
        nw = lambda t: 2 * len(self.panels_of(t)) + (1 if self.half else 0)
        seq = []
        early = EARLY and self.tag == 'w2'
        pchk = EARLY - 3 - d - 1; piss = pchk - d + 1 - int(ENV('PEARLY', '0'))
        def em(o):
            for x in o:
                if 'nodma' in DBG and x.endswith(' lds'): continue
                a.emit(x)
        def after(t): return len(seq) - 1 - max(i for i, x in enumerate(seq) if x == t)
        def wait(n):
            assert n <= 63, n
            a.emit(f's_waitcnt vmcnt({n})')
        if dep is None:
            for t in range(2): em(self.issue(t)); seq += [t] * (nx + nw(t))
            if start: seq += ['S'] * start()
            wait(after(0))
            a.emit('s_barrier')
            for t in range(2, d): em(self.issue(t)); seq += [t] * (nx + nw(t))
        else:
            prev = {'attn': 'w2', 'wo': 'attn', 'w1': 'wo', 'w2': 'w1'}[self.tag]
            assert 'attn' not in EBAR
            ot = self.ot
            if ot: em(self.own() + [f's_mov_b32 s88, s{S_KX}'] + self.issue_w(0, S_WD, 0) + self.knext()); seq.extend([0] * nw(0))
            dep_pre(a, self.tag)
            if prev in EBAR: a.emit('s_barrier')
            xw = 1 if self.tag in ENV('XW', 'x').split(',') and not hasattr(self, 'P1') else 0
            def prew(ts):
                for t in ts:
                    a.emit(f's_mov_b32 s{88+t}, s{S_KX}')
                    em(self.issue_w(t, S_WD, t * self.STAGE) + self.knext()); seq.extend([t] * nw(t))
            late = int(ENV('LATE_' + self.tag.upper(), '2'))
            if ot: xw = 1
            prew(range(ot, d + xw - late))
            self.npre = len(seq)
            a.emit(f's_mov_b32 s{S_SLOT}, {0 if xw else d * self.STAGE}')
            wag = int(ENV('WAG_' + self.tag.upper(), '0'))
            dep((lambda: prew(range(d + xw - late, d + xw - wag))) if late else None)
            if ot and self.halo is not None: em(self.issue_x(S_XD, self.hx, 0, 88)[-4:]); seq.append(0)
            for t in range(ot, d + xw):
                if t >= d + xw - wag: prew([t])
                em(self.issue_x(S_XD, t * self.STAGE, t * self.STAGE, 88 + t)); seq += [t] * nx
            if ot and ENV('OPRIO'): a.emit('s_setprio 0')
            wait(after(ot))
            if self.tag == 'w2': lstamp(a, 2)
            a.emit('s_barrier')
            if early: late_flag(a)
        ev = [None] * self.ot
        for i in range(self.ot, N):
            t = i + d
            if t in seq: t = N + 9
            if early and i == piss: seq += ['P']
            if t < N: seq += [t] * (nx + nw(t)) + ['Q'] * sum(x.startswith('buffer_') for x in post)
            ex = extra(i) if extra else []
            tl = tail_issue is not None and t == N - 1 + tail_late
            if exfirst: seq += ['E'] * sum(x.startswith('buffer_') for x in ex)
            if tl: seq += ['T'] * ntail_vm
            if not exfirst: seq += ['E'] * sum(x.startswith('buffer_') for x in ex)
            ev.append(((nw(t) if t < N else -1, after(i + 1) if i + 1 < N else -1, tl, early and i == piss, early and i == pchk, tuple(ex)), t))
        i = self.ot; nl = 0
        while i < N:
            j = i
            while j + 1 < N and ev[j + 1][0] == ev[i][0]: j += 1
            n = j - i + 1
            (k, w, tl, pi, pc, ex), t = ev[i]
            if n >= 3:
                nl += 1
                a.emit(f's_mov_b32 s{S_CNT}, {n}')
                a.label(f'L_{tag}_ld{nl}')
            else: j = i
            if pi: a.emit(f'buffer_load_dword v13, v12, s[{SO}:{SO+3}], s86 offen sc1')
            if t < N:
                em(self.issue(t)); em(post)
            if exfirst: em(ex)
            if tl and not ('notail' in DBG and self.tag == 'w1'):
                if ENV('FPRIO'): a.emit('s_setprio 3')
                tail_issue()
                if ENV('FPRIO'): a.emit('s_setprio 0')
            if not exfirst: em(ex)
            if w >= 0: wait(w)
            elif final and 'nofinal' not in DBG:
                if ENV('FPRIO'): a.emit('s_setprio 3')
                final()
                if ENV('FPRIO'): a.emit('s_setprio 0')
            if pc: late_check(a)
            a.emit('s_barrier')
            if n >= 3:
                a.emit(f's_sub_u32 s{S_CNT}, s{S_CNT}, 1')
                a.emit(f's_cmp_lg_u32 s{S_CNT}, 0')
                a.emit(f's_cbranch_scc1 L_{tag}_ld{nl}')
            i = j + 1

XD = ONE and ENV('SPLIT', '0') == '0' and ENV('XD', '1') == '1'
VW = MEGA and ENV('SPLIT', '0') == '0' and ENV('VW', '0') == '1'
NV1 = int(ENV('NV1', '16')); NV2 = int(ENV('NV2', '12')); NVO = int(ENV('NVO', '11'))
S_TB = 85
def rot_table(a, sd, smt, snt, tag):
    D = int(ENV('ROTD_' + tag.upper(), ENV('ROTD', '2')))
    dl = {3: [3, -1, -1, -1], 2: [2, -1, -1, 0], 1: [1, -1, 0, 0], 0: [0, 0, 0, 0]}[D]
    tbl = sum((d & 255) << (8 * i) for i, d in enumerate(dl))
    a.emit(f's_add_u32 s3, s{smt}, s{snt}')
    a.emit('s_lshl_b32 s3, s3, 3')
    a.emit(f's_lshl_b32 s{sd}, {tbl:#x}, s3')
    a.emit('s_sub_u32 s3, 0, s3')
    a.emit(f's_lshr_b32 s3, {tbl:#x}, s3')
    a.emit(f's_or_b32 s{sd}, s{sd}, s3')

def kpos(N, t, sd, tb=S_TB, halves=True, q=None):
    H, p, add = (28, t >> 1, 28 * (t & 1)) if N == 56 and halves else (N, t, 0)
    o = [f's_bfe_i32 s{sd}, s{tb}, {0x80000 + 8 * (p & 3):#x}', f's_add_i32 s{sd}, s{sd}, {p + add}']
    if p == 0: o += [f's_cmp_lt_i32 s{sd}, {add}', f's_cselect_b32 s{sd}, {H - 1 + add}, s{sd}']
    if p + 3 >= H: o += [f's_sub_u32 s3, s{sd}, {H}', f's_cmp_ge_i32 s{sd}, {H + add}', f's_cselect_b32 s{sd}, s3, s{sd}']
    if q is not None:
        if N == 16 or 1 <= t <= 12: o += [f's_add_u32 s{sd}, s{sd}, s{q}', f's_and_b32 s{sd}, s{sd}, 15']
        elif t <= 16 or t + 3 >= N: o += [f's_add_u32 s3, s{sd}, s{q}', 's_and_b32 s3, s3, 15', f's_cmp_lt_u32 s{sd}, 16', f's_cselect_b32 s{sd}, s3, s{sd}']
    return o

S_Q = 86
MROT = ENV('MROT', '1') == '1'
def rot_q(a, sd, smt, sh=0):
    a.emit(f's_and_b32 s{sd}, s{smt}, {3 if MROT else 0}')
    a.emit(f's_lshl_b32 s{sd}, s{sd}, {2 + sh}')

TSCH = {'wo': [int(c) for c in ENV('TSO', '000')], 'w2': [int(c) for c in ENV('TS2', '000')]}
def tail_parks(nxt, sw, mk=None, sch=None):
    if not XD: return None
    sch = sch or TSCH[nxt]; N = 16 if nxt == 'wo' else 56
    def extra(i):
        if i < 13 or not sum(sch): return []
        a = Asm()
        if i == 13:
            if mk: mk(a)
            a.emit('s_and_b32 s5, s2, 3')
            a.emit('s_lshl_b32 s5, s5, 2')
            a.emit(f's_and_b32 s6, s{S_CU}, 3')
            a.emit('s_add_u32 s5, s5, s6')
            a.emit('s_and_b32 s6, s2, 4')
            a.emit('s_lshl_b32 s6, s6, 1')
            a.emit(f's_lshr_b32 s7, s{S_CU}, 2')
            a.emit('s_add_u32 s6, s6, s7')
            rot_table(a, S_TB, 5, 6, nxt)
            rot_q(a, S_Q, 5)
            a.emit(f's_add_u32 s5, s5, s{S_WV}')
            a.emit('s_and_b32 s5, s5, 3')
            wvoff(a, 16, 5, 6, 2048)
        o = [l.strip() for l in a.lines]
        for t in range(sum(sch[:i - 13]), sum(sch[:i - 12])):
            o += kpos(N, t, 4, S_TB, False, S_Q) + ['s_lshl_b32 s4, s4, 17']
            o += [f'buffer_load_dwordx4 v[{128+8*t+4*j}:{131+8*t+4*j}], v{16+j}, s[{sw}:{sw+3}], s4 offen' for j in range(2)]
        return o
    return extra

def vreg(tag, t):
    if tag == 'wo': return (128 + 8 * (t - 5), False) if 5 <= t < 5 + NVO else None
    if t & 1: return None
    p = t >> 1
    if p < NV1: return (128 + 8 * p, True)
    if p < NV1 + NV2: return (32 + 8 * (p - NV1), False)
    return None

def wvoff(a, vd, sqw, snt, ldw2):
    a.emit('v_lshrrev_b32 v3, 3, v1')
    a.emit(f's_lshl_b32 s10, s{sqw}, 4')
    a.emit('v_add_u32 v3, s10, v3')
    a.emit(f'v_mul_u32_u24 v3, {ldw2}, v3')
    a.emit('v_lshrrev_b32 v2, 3, v1')
    a.emit('v_and_b32 v2, 2, v2')
    a.emit('v_xor_b32 v2, v2, v10')
    a.emit(f's_lshl_b32 s10, s{snt}, 7')
    a.emit('v_add_u32 v3, s10, v3')
    a.emit(f'v_lshl_add_u32 v{vd}, v2, 4, v3')
    a.emit('v_xor_b32 v2, 4, v2')
    a.emit(f'v_add_u32 v3, {8*ldw2}, v3')
    a.emit(f'v_lshl_add_u32 v{vd+1}, v2, 4, v3')

def park(N, t, r, vo, sw):
    return kpos(N, t, 4) + ['s_lshl_b32 s4, s4, 17'] + [f'buffer_load_dwordx4 v[{r+4*i}:{r+4*i+3}], v{vo+i}, s[{sw}:{sw+3}], s4 offen' for i in range(2)]

class ULoader(Loader):
    def run(self, variant='', tail_issue=None, ntail_vm=0, final=None, post=(), dep=None):
        a = self.a; N = self.NSTEP; d = self.S - 1; tag = self.tag
        seq = []
        def em(o):
            for x in o:
                if 'nodma' in DBG and x.endswith(' lds'): continue
                a.emit(x)
        def after(t): return len(seq) - 1 - max(i for i, x in enumerate(seq) if x == t)
        def wait(n, lg=False):
            assert n <= 63, n
            a.emit(f's_waitcnt vmcnt({n})' + (' lgkmcnt(0)' if lg else ''))
        def iw(t):
            sl = (t % self.S) * self.STAGE; v = vreg(tag, t)
            if v:
                em([f'v_add_u32 v11, {sl}, v14'] + [f'ds_write_b128 v11, v[{v[0]+4*i}:{v[0]+4*i+3}] offset:{1024*i}' for i in range(2)])
            else:
                em([f's_lshl_b32 s{S_KW}, s{S_KX}, 17'] + [x for x in self.issue_w(t, S_WD, sl)])
                seq.extend([t] * 2)
        def ix(t, k):
            em(self.issue_x(S_XD, None, (t % self.S) * self.STAGE, k)); seq.extend([t] * 4)
        rot_table(a, S_TB, S_MT, S_NT, tag)
        a.emit(f'v_lshl_add_u32 v14, v1, 4, s{S_WD}')
        dep_pre(a, tag)
        for t in range(d):
            em(kpos(N, t, S_KX)); iw(t)
            a.emit(f's_lshl_b32 s{88+t}, s{S_KX}, 11')
        for t in range(d, N):
            v = vreg(tag, t)
            if v and not v[1]:
                em(park(N, t, v[0], self.VWD, SW)); seq.extend(['V'] * 2)
        self.npre = len(seq)
        dep()
        for t in range(d): ix(t, 88 + t)
        wait(after(0), True)
        if tag == 'w2': lstamp(a, 2)
        a.emit('s_barrier')
        for i in range(N):
            t = i + d
            if i % 4 == 0 and post and t < N:
                a.emit('s_waitcnt lgkmcnt(0)')
                em(post)
            if t < N:
                em(kpos(N, t, S_KX)); iw(t)
                a.emit(f's_lshl_b32 s{S_KX}, s{S_KX}, 11')
                ix(t, S_KX)
            if t == N - 1: tail_issue(); seq.extend(['T'] * ntail_vm)
            if i + 1 < N: wait(after(i + 1), not post or t == N)
            else: final()
            a.emit('s_barrier')

EBAR = ENV('EBAR', 'x').split(',')
S_FL = 87
def dep_pre(a, kind, part=None, n=0):
    if ONE and kind in ('wo', 'w1'):
        ld = f'buffer_load_dword v12, v17, s[{SC}:{SC+3}], 0 offen sc1' if kind == 'wo' else f'buffer_load_dwordx4 v[12:15], v17, s[{SO}:{SO+3}], s3 offen sc1'
        if part == 1: a.emit(f's_waitcnt vmcnt({n})')
        a.emit(f's_add_u32 s3, s{S_LAYER}, s{S_WV}')
        a.emit('s_cmp_lg_u32 s3, 4')
        a.emit(f's_cbranch_scc1 L_{kind}_chk{part}')
        def cmp():
            if kind == 'wo': a.emit('v_cmp_ne_u32 vcc, 0x01010101, v12')
            else:
                a.emit('v_and_b32 v12, v12, v13')
                a.emit('v_and_b32 v14, v14, v15')
                a.emit('v_and_b32 v12, v12, v14')
                a.emit('v_cmp_ne_u32 vcc, 1, v12')
        if part == 1:
            cmp()
            a.emit(f's_cbranch_vccz L_{kind}_chk{part}')
        if True:
            if kind == 'wo': a.emit(f's_load_dwordx2 s[{SC}:{SC+1}], s[0:1], 72')
            else: srd(a, SO, 'ws0', WS_FL, FLS)
            if kind == 'wo':
                a.emit('s_waitcnt lgkmcnt(0)')
                a.emit(f's_and_b32 s{SC+1}, s{SC+1}, 0xffff')
                a.emit(f's_mov_b32 s{SC+2}, 256')
                a.emit(f's_mov_b32 s{SC+3}, 0x00020000')
                a.emit('v_lshlrev_b32 v17, 2, v1')
            else:
                a.emit('v_lshrrev_b32 v2, 2, v1')
                a.emit('v_and_b32 v3, 3, v1')
                a.emit('v_lshlrev_b32 v2, 11, v2')
                a.emit('v_lshl_add_u32 v17, v3, 4, v2')
                a.emit(f's_and_b32 s3, s{S_NT}, {REP - 1}')
                a.emit('s_lshl_b32 s3, s3, 7')
        if part == 0: a.emit(ld)
        else:
            a.emit(f's_mov_b32 s{S_CNT}, 0x100000')
            a.label(f'L_{kind}_chkl')
            a.emit(ld)
            a.emit(f's_sub_u32 s{S_CNT}, s{S_CNT}, 1')
            a.emit(f's_cbranch_scc1 L_{kind}_chk{part}')
            a.emit('s_waitcnt vmcnt(0)')
            cmp()
            a.emit(f's_cbranch_vccnz L_{kind}_chkl')
        a.label(f'L_{kind}_chk{part}')

def dep_wait(a, kind, halo=False, skip_first=False, first=None, preg=None, postf=None, pref=None, defer=False, obar=False):
    if skip_first and not ONE:
        a.emit(f's_cmp_eq_u32 s{S_TSI}, 1')
        a.emit(f's_cbranch_scc1 L_{kind}_dep')
    srd(a, SO, 'ws0', WS_FL, FLS)
    if ONE and kind == 'wo' and first:
        a.emit(f's_cmp_lg_u32 s{S_LAYER}, 0')
        a.emit(f's_cbranch_scc1 L_{kind}_nofirst')
        first()
        a.label(f'L_{kind}_nofirst')
    a.emit(f's_lshl4_add_u32 s3, s{S_TSI}, s{S_MT}')
    a.emit(f's_and_b32 s4, s{S_NT}, {REP - 1}')
    a.emit('s_lshl4_add_u32 s3, s3, s4')
    a.emit('s_lshl_b32 s3, s3, 7')
    a.emit('s_sub_u32 s3, s3, 32768')
    a.emit('v_lshlrev_b32 v11, 7, v1')
    if halo:
        a.emit(f's_cmp_eq_u32 s{S_MT}, 0')
        a.emit('s_cselect_b32 s4, 15, 31')
        a.emit('v_and_b32 v2, 16, v1')
        a.emit('v_lshl_add_u32 v11, v2, 2, v11')
        a.emit('v_and_b32 v2, s4, v1')
    else: a.emit('v_and_b32 v2, 15, v1')
    a.emit('v_lshlrev_b32 v2, 2, v2')
    a.emit('v_mov_b32 v3, 1')
    a.emit(f's_mov_b32 s{S_CNT}, 0x100000')
    if kind == LSTK == 'wo': lstamp(a, 2)
    if pref: pref()
    a.emit(f's_cmp_lg_u32 s{S_WV}, 4')
    a.emit('s_barrier')
    if kind == 'w2': lstamp(a, 0, True)
    if kind == LSTK == 'w1': lstamp(a, 0)
    a.emit(f's_cbranch_scc1 L_{kind}_{"nofl" if postf else "dep"}')
    a.emit(f's_mov_b32 exec_lo, {((1 << REP) - 1) * (0x10001 if halo else 1):#x}')
    a.emit('s_mov_b32 exec_hi, 0')
    a.emit(f'buffer_store_dword v3, v11, s[{SO}:{SO+3}], s{S_FL} offen sc1')
    a.emit('s_mov_b64 exec, -1')
    PSP = int(ENV('PSP', '0'))
    if defer:
        a.label(f'L_{kind}_nofl')
        a.emit(f's_mov_b32 s{S_Q}, s3')
        postf()
        return
    if postf and PSP:
        a.label(f'L_{kind}_nofl')
        a.emit('s_mov_b32 s5, s3')
        i0 = len(a.lines); postf(); ls = a.lines[i0:]; del a.lines[i0:]
        dma = [i for i, l in enumerate(ls) if 'buffer_load' in l]
        poll = lambda k: f'buffer_load_dword v{24+k}, v2, s[{SO}:{SO+3}], s5 offen sc1'
        for i, l in enumerate(ls):
            a.lines.append(l)
            for k in range(3):
                if dma and i == dma[-1 - PSP * (3 - k)]: a.emit(poll(k))
        a.emit(f's_cmp_lg_u32 s{S_WV}, 4')
        a.emit(f's_cbranch_scc1 L_{kind}_dep')
        def chk(k, n, last=False):
            a.emit(poll((k + 3) & 3))
            a.emit(f's_waitcnt vmcnt({n})')
            a.emit(f'v_cmp_ne_u32 vcc, 1, v{24+k}')
            a.emit(f's_cbranch_vccnz L_{kind}_poll' if last else f's_cbranch_vccz L_{kind}_dep')
        for k in range(3): chk(k, 3 + PSP * (3 - k))
        a.label(f'L_{kind}_poll')
        a.emit(f's_sub_u32 s{S_CNT}, s{S_CNT}, 1')
        a.emit(f's_cbranch_scc1 L_{kind}_dep')
        for k in (3, 0, 1, 2): chk(k, 3, k == 2)
    else:
        if postf:
            if obar:
                a.emit(f's_waitcnt vmcnt({obar})')
                a.emit(f's_branch L_{kind}_obar')
            a.label(f'L_{kind}_nofl')
            if obar:
                a.emit(f's_waitcnt vmcnt({obar - 1})')
                a.label(f'L_{kind}_obar')
                a.emit('s_barrier')
                if ENV('OPRIO'): a.emit(f"s_setprio {ENV('OPRIO')}")
            a.emit('s_mov_b32 s5, s3')
            postf()
            a.emit('s_mov_b32 s3, s5')
            a.emit(f"s_cmp_lg_u32 s{S_WV}, {ENV('PW_' + kind.upper(), '4')}")
            a.emit(f's_cbranch_scc1 L_{kind}_dep')
        if kind == LSTK == 'w1': lstamp(a, 1)
        a.label(f'L_{kind}_poll')
        a.emit(f'buffer_load_dword v3, v2, s[{SO}:{SO+3}], s3 offen sc1')
        a.emit(f's_sub_u32 s{S_CNT}, s{S_CNT}, 1')
        a.emit(f's_cbranch_scc1 L_{kind}_dep')
        a.emit('s_waitcnt vmcnt(0)')
        a.emit('v_cmp_ne_u32 vcc, 1, v3')
        a.emit(f's_cbranch_vccnz L_{kind}_poll')
    a.label(f'L_{kind}_dep')
    if kind == 'w2': lstamp(a, 1, True)
    if kind == LSTK == 'wo': lstamp(a, 3)
    if kind == LSTK == 'w1':
        lstamp(a, 2)
        if TS: a.emit(f's_mov_b32 s50, s{S_CNT}')
    if preg: preg()
    if preg and kind == 'w2': lstamp(a, 2, True)
    a.emit('s_barrier')

def dep_late(a, kind, part, n=0):
    ld = f'buffer_load_dword v3, v2, s[{SO}:{SO+3}], s{S_Q} offen sc1'
    if part == 0:
        a.emit(f's_cmp_eq_u32 s{S_WV}, 4')
        a.emit(f's_cselect_b32 s{SO+2}, s{SO+2}, 0')
        a.emit(ld)
        return
    a.emit(f's_cmp_lg_u32 s{S_WV}, 4')
    a.emit(f's_cbranch_scc1 L_{kind}_dep')
    a.emit(f's_waitcnt vmcnt({n})')
    a.emit('v_cmp_ne_u32 vcc, 1, v3')
    a.emit(f's_cbranch_vccz L_{kind}_dep')
    a.label(f'L_{kind}_poll')
    a.emit(ld)
    a.emit(f's_sub_u32 s{S_CNT}, s{S_CNT}, 1')
    a.emit(f's_cbranch_scc1 L_{kind}_dep')
    a.emit('s_waitcnt vmcnt(0)')
    a.emit('v_cmp_ne_u32 vcc, 1, v3')
    a.emit(f's_cbranch_vccnz L_{kind}_poll')
    a.label(f'L_{kind}_dep')
    lstamp(a, 1, True); lstamp(a, 2, True)
    if TS and ENV('LST') != 'x': a.emit(f's_mov_b32 s58, s{S_CNT}')

LGO = 163840 - 64
def dep_early(a):
    srd(a, SO, 'ws0', WS_FL, FLS)
    a.emit(f's_lshl_b32 s86, s{S_TSI}, 12')
    a.emit(f's_lshl_b32 s4, s{S_MT}, 8')
    a.emit('s_add_u32 s86, s86, s4')
    a.emit('s_sub_u32 s86, s86, 4096')
    a.emit('v_and_b32 v12, 15, v1')
    a.emit('v_lshlrev_b32 v12, 2, v12')
    a.emit('v_mov_b32 v3, 0')
    a.emit(f'v_mov_b32 v2, {LGO}')
    a.emit('ds_write_b32 v2, v3')
    a.emit('v_mov_b32 v13, 1')
    a.emit(f's_mov_b32 s{S_CNT}, 0x100000')
    a.emit(f's_cmp_lg_u32 s{S_WV}, 4')
    a.emit('s_waitcnt lgkmcnt(0)')
    a.emit('s_barrier')
    a.emit('s_cbranch_scc1 L_w2_go')
    lstamp(a, 0)
    a.emit('s_mov_b64 exec, 1')
    a.emit(f'buffer_store_dword v13, off, s[{SO}:{SO+3}], s{S_FL} sc1')
    a.emit('s_mov_b64 exec, -1')
    a.label('L_w2_poll')
    a.emit(f'buffer_load_dword v3, v12, s[{SO}:{SO+3}], s86 offen sc1')
    a.emit(f's_sub_u32 s{S_CNT}, s{S_CNT}, 1')
    a.emit('s_cbranch_scc1 L_w2_rel')
    a.emit('s_waitcnt vmcnt(0)')
    a.emit('v_cmp_eq_u32 vcc, 0, v3')
    a.emit('s_cbranch_vccnz L_w2_poll')
    a.label('L_w2_rel')
    a.emit('ds_write_b32 v2, v13')
    lstamp(a, 1)
    a.emit('s_branch L_w2_dep')
    a.label('L_w2_go')
    a.emit(f's_mov_b32 s{S_CNT}, 0x2000000')
    a.label('L_w2_gol')
    a.emit('ds_read_b32 v3, v2')
    a.emit(f's_sub_u32 s{S_CNT}, s{S_CNT}, 1')
    a.emit('s_cbranch_scc1 L_w2_dep')
    a.emit('s_waitcnt lgkmcnt(0)')
    a.emit('v_cmp_eq_u32 vcc, 0, v3')
    a.emit('s_cbranch_vccnz L_w2_gol')
    a.label('L_w2_dep')

def late_flag(a):
    a.emit(f's_cmp_lg_u32 s{S_WV}, 4')
    a.emit('s_cbranch_scc1 L_w2_nolate')
    a.emit('v_mov_b32 v3, 2')
    a.emit('s_mov_b64 exec, 1')
    a.emit(f'buffer_store_dword v3, off, s[{SO}:{SO+3}], s{S_FL} sc1')
    a.emit('s_mov_b64 exec, -1')
    a.label('L_w2_nolate')

def late_check(a):
    a.emit(f's_mov_b32 s{S_CNT}, 0x100000')
    a.label('L_w2_lchk')
    a.emit('v_cmp_ne_u32 vcc, 2, v13')
    a.emit('s_cbranch_vccz L_w2_lok')
    a.emit(f'buffer_load_dword v13, v12, s[{SO}:{SO+3}], s86 offen sc1')
    a.emit(f's_sub_u32 s{S_CNT}, s{S_CNT}, 1')
    a.emit('s_waitcnt vmcnt(0)')
    a.emit('s_cbranch_scc0 L_w2_lchk')
    a.label('L_w2_lok')
    if TS: a.emit(f's_mov_b32 s58, s{S_CNT}')
    lstamps_out(a, 'w2')

def gbar(a, kind):
    if not MEGA or (EARLY and kind == 'w2'): return
    if kind == 'attn':
        a.emit(f's_cmp_eq_u32 s{S_LAYER}, 0')
        a.emit('s_cbranch_scc1 L_attn_nog')
    a.emit('s_barrier')
    if kind == 'attn': a.label('L_attn_nog')

def next_phase(a, kind, comp=False):
    nxt = {'attn': 'wo', 'wo': 'w1', 'w1': 'w2', 'w2': 'attn'}[kind]
    if kind == 'w2':
        a.emit(f's_mov_b32 s{S_LAYER}, 1')
        a.emit(f's_add_u32 s12, s22, {WS_X2}')
        a.emit('s_addc_u32 s13, s23, 0')
        a.emit(f's_add_u32 s34, s22, {LSTR}')
        a.emit('s_addc_u32 s35, s23, 0')
    a.emit(f's_add_u32 s{S_TSI}, s{S_TSI}, 1')
    a.emit(f's_branch L_{nxt}_' + ('compute' if comp and NV and nxt == 'w2' else 'body'))

def last_check(a, kind):
    if kind == 'w2' or (kind == 'attn' and not ONE):
        a.emit(f's_cmp_eq_u32 s{S_LAYER}, {0 if kind == "attn" else 1}')
        a.emit(f's_cbranch_scc1 L_{kind}_end')

def compute_end(a, kind):
    if not MEGA:
        stamps_out(a, kind)
        a.emit('s_endpgm')
        return
    if not TS: last_check(a, kind)
    if kind in EBAR: a.emit('s_barrier')
    if not ((EARLY or NV) and kind == 'w1'):
        a.emit('s_waitcnt vmcnt(0) lgkmcnt(0)')
        a.emit('s_barrier')
    if TS:
        stamps_out(a, kind)
        if ENV('DIAG') and kind == 'w2': diag(a)
        last_check(a, kind)
    stamp(a, 0, nowait=True)
    next_phase(a, kind, True)

def diag(a):
    ph, j, K, C = [int(x) for x in ENV('DIAG').split(',')]
    a.emit(f's_lshl1_add_u32 s3, s{S_WV}, s{S_LAYER}')
    a.emit('s_cmp_lg_u32 s3, 1')
    a.emit('s_cbranch_scc1 L_diag_end')
    a.emit('s_waitcnt vmcnt(0)')
    a.emit('v_lshlrev_b32 v1, 6, v0')
    for i in range(4): a.emit(f's_mov_b32 s3, {4096*i}'); a.emit(f'buffer_load_dword v{4+i}, v1, s[{SP}:{SP+3}], s3 offen sc1')
    a.emit('s_lshl_b32 s4, s2, 6')
    a.emit(f's_add_u32 s4, s4, {(ph << 16) + 16 * j}')
    a.emit(f'buffer_load_dword v8, off, s[{SP}:{SP+3}], s4 sc1')
    a.emit('s_waitcnt vmcnt(0)')
    for i in range(4): a.emit(f'v_sub_u32 v{4+i}, v8, v{4+i}')
    a.emit('v_max_i32 v4, v4, v5'); a.emit('v_max_i32 v6, v6, v7'); a.emit('v_max_i32 v4, v4, v6')
    a.emit('s_mov_b32 s5, 0')
    a.emit('s_nop 1')
    for i in range(64):
        a.emit(f'v_readlane_b32 s3, v4, {i}')
        a.emit('s_max_i32 s5, s5, s3')
    if C: a.emit(f's_sub_u32 s5, {C}, s5'); a.emit('s_max_i32 s5, s5, 0')
    a.emit('s_min_u32 s5, s5, 15000')
    a.emit(f's_mul_i32 s5, s5, {K}')
    a.emit('s_memrealtime s[6:7]')
    a.emit('s_mov_b32 s4, 0x40000')
    a.emit('s_waitcnt lgkmcnt(0)')
    a.label('L_diag_l')
    a.emit('s_memrealtime s[8:9]')
    a.emit('s_sub_u32 s4, s4, 1')
    a.emit('s_cbranch_scc1 L_diag_end')
    a.emit('s_waitcnt lgkmcnt(0)')
    a.emit('s_sub_u32 s8, s8, s6')
    a.emit('s_cmp_lt_u32 s8, s5')
    a.emit('s_cbranch_scc1 L_diag_l')
    a.label('L_diag_end')

def loader_end(a, kind, check=True):
    if MEGA:
        if kind == LSTK and not EARLY: lstamps_out(a, kind)
        if check: last_check(a, kind)
        a.emit(f's_lshl_b32 s{S_FL}, s{S_TSI}, 15')
        a.emit(f's_lshl_b32 s4, s{S_MT}, 11')
        a.emit(f's_add_u32 s{S_FL}, s{S_FL}, s4')
        a.emit(f's_lshl_b32 s4, s{S_NT}, 2')
        a.emit(f's_add_u32 s{S_FL}, s{S_FL}, s4')
        next_phase(a, kind)

def pf_weights(a, sd, which, size, ldw2, R, sh, L, LMn, tilebytes, NI, vd, row0=0, qkv=False, pair=False):
    if 'nopf' in DBG: return 0
    srd(a, sd, which, 0, size)
    a.emit(f's_and_b32 s3, s{S_WV}, 3')
    a.emit(f's_mul_i32 s3, s3, {NI * (64 >> sh)}')
    a.emit(f's_mul_i32 s4, s{S_CU}, {R}')
    a.emit('s_add_u32 s3, s3, s4')
    if row0: a.emit(f's_add_u32 s3, s3, {row0}')
    a.emit(f'v_lshrrev_b32 v2, {sh}, v1')
    a.emit('v_add_u32 v2, s3, v2')
    a.emit(f'v_mul_u32_u24 v2, {ldw2}, v2')
    a.emit(f'v_and_b32 v3, {(1 << sh) - 1}, v1')
    if L < (1 << sh): a.emit(f'v_min_u32 v3, {L-1}, v3')
    if qkv:
        a.emit('v_lshrrev_b32 v12, 2, v3')
        a.emit('v_lshl_add_u32 v2, v12, 11, v2')
        a.emit('v_and_b32 v3, 3, v3')
    a.emit(f'v_lshl_add_u32 v2, v3, {8 if pair else 7}, v2')
    a.emit('s_and_b32 s3, s2, 7')
    a.emit(f's_lshr_b32 s3, s3, {4 - LMn}')
    a.emit(f's_mul_i32 s3, s3, {tilebytes if pair else (1 << (5 - LMn)) * tilebytes}')
    for i in range(NI):
        a.emit(f'buffer_load_dword v{vd+i}, v2, s[{sd}:{sd+3}], s3 offen')
        if i + 1 < NI: a.emit(f's_add_u32 s3, s3, {(64 >> sh) * ldw2}')
    return NI

_pfc = [0]
def pf_code(a, start, end, vd, forward=True):
    if 'nopfc' in DBG: return 0
    _pfc[0] += 1
    lab = f'L_pfc{_pfc[0]}'
    a.emit('s_getpc_b64 s[4:5]')
    a.label(lab)
    if forward:
        a.emit(f's_add_u32 s4, s4, {start}-{lab}')
        a.emit('s_addc_u32 s5, s5, 0')
    else:
        a.emit(f's_sub_u32 s4, s4, {lab}-{start}')
        a.emit('s_subb_u32 s5, s5, 0')
    a.emit(f's_and_b32 s3, s{S_WV}, 3')
    a.emit('s_lshl_b32 s3, s3, 13')
    a.emit('v_lshl_add_u32 v2, v1, 7, s3')
    a.emit(f'v_min_u32 v2, {end}-{start}-4, v2')
    a.emit(f'global_load_dword v{vd}, v2, s[4:5]')
    return 1

def wbase(a, vd, vt, g='v2'):
    a.emit(f'v_bfe_u32 v{vd}, v1, 2, 2')
    a.emit(f'v_lshl_add_u32 v{vd}, {g}, 3, v{vd}')
    a.emit(f'v_lshlrev_b32 v{vd}, 7, v{vd}')
    a.emit(f'v_and_b32 v{vt}, 3, v1')
    a.emit(f'v_lshl_add_u32 v{vd}, v{vt}, 3, v{vd}')
    a.emit(f'v_bfe_u32 v{vt}, v1, 3, 2')
    a.emit(f'v_lshl_add_u32 v{vd}, v{vt}, 5, v{vd}')


def code_touch(a, start, end, nb, sd=SX, loader=False):
    if ENV('CT', '1') == '0': return
    _pfc[0] += 1
    lab = f'L_pfc{_pfc[0]}'
    a.emit(f's_cmp_lg_u32 s{S_LAYER}, 0')
    a.emit(f's_cbranch_scc1 {lab}_skip')
    a.emit('s_getpc_b64 s[4:5]')
    a.label(lab)
    a.emit(f's_lshl_b32 s3, s{S_CU}, 2')
    a.emit(f's_add_u32 s3, s3, s{S_WV}')
    if loader: a.emit('s_sub_u32 s3, s3, 4')
    a.emit(f's_mul_i32 s3, s3, {nb}')
    a.emit(f's_min_u32 s3, s3, {end}-{start}-{nb}')
    a.emit(f's_add_i32 s3, s3, {start}-{lab}')
    a.emit('s_ashr_i32 s6, s3, 31')
    a.emit('s_add_u32 s4, s4, s3')
    a.emit('s_addc_u32 s5, s5, s6')
    for i in range(nb // 64):
        a.emit(f's_load_dword s{84 if loader else sd+i}, s[4:5], {64*i}')
    a.label(f'{lab}_skip')

def loader_first(a, kind):
    if ENV('LF', '1') == '0': return
    L = a.lines
    ib = max(i for i, l in enumerate(L) if l.strip() == f's_cbranch_scc1 L_{kind}_loader')
    il = L.index(f'L_{kind}_loader:')
    ie = L.index(f'L_{kind}_end:') + 2
    assert L[ie - 1].strip() == 's_endpgm' and L[ib - 1].strip().startswith('s_cmp_ge_u32')
    L[ib - 1] = L[ib - 1].replace('s_cmp_ge_u32', 's_cmp_lt_u32')
    L[ib] = f'  s_cbranch_scc1 L_{kind}_compute'
    a.lines = L[:ib + 1] + L[il:ie] + [f'L_{kind}_compute:'] + L[ib + 1:il] + L[ie:]

def clear_flags(a, part, n=0):
    if not ONE or DS: return
    if part == 0 and 'attn' not in OT: a.emit(f's_load_dwordx2 s[{SC}:{SC+1}], s[0:1], 72')
    a.emit(f's_or_b32 s3, s{S_LAYER}, s{S_WV}')
    a.emit(f's_cbranch_scc1 L_clr_skip{part}')
    if part == 0:
        srd(a, SP, 'ws0', WS_FL, FLS)
        a.emit('s_lshl_b32 s3, s2, 11')
        a.emit('v_lshlrev_b32 v2, 4, v1')
        a.emit(f'buffer_store_dwordx4 v[128:131], v2, s[{SP}:{SP+3}], s3 offen sc1')
        a.emit(f'buffer_store_dwordx4 v[128:131], v2, s[{SP}:{SP+3}], s3 offen offset:1024 sc1')
    else:
        a.emit('v_mov_b32 v3, 1')
        a.emit(f's_and_b32 s{SC+1}, s{SC+1}, 0xffff')
        a.emit(f's_mov_b32 s{SC+2}, 256')
        a.emit(f's_mov_b32 s{SC+3}, 0x00020000')
        a.emit('s_mov_b64 exec, 1')
        a.emit(f's_waitcnt vmcnt({n})')
        a.emit(f'buffer_store_byte v3, off, s[{SC}:{SC+3}], s2 sc1')
        a.emit('s_mov_b64 exec, -1')
    a.label(f'L_clr_skip{part}')

def mf_order(nn, nm, skip=lambda jn, jm: False):
    m = ENV('MFO', 's')
    if m == 'n': o = [(jn, jm) for jn in range(nn) for jm in range(nm)]
    elif m == 's': o = [(jn, jm if not jn & 1 else nm - 1 - jm) for jn in range(nn) for jm in range(nm)]
    elif m == 'm': o = [(jn, jm) for jm in range(nm) for jn in range(nn)]
    elif m == 'z': o = [(jn if not jm & 1 else nn - 1 - jn, jm) for jm in range(nm) for jn in range(nn)]
    elif m == 'd': o = [(i % nn, (i // nn + i % nn) % nm) for i in range(nn * nm)]
    return [x for x in o if not skip(*x)]
```

```python
from common import *

T4 = ENV('T4', '1') == '1'
OBAR = ENV('OBAR', '0') == '1'
def big_loop(a, tag, N, S, STAGE, naddr, VB, VA, reads, mf, variants=None, select=None, post=None, ot=None, mid=(), halo=None, hooks=None):
    def addr():
        o = [f'v_add_u32_e64 v{VA+i}, s{S_SLOT}, v{VB+i}' for i in range(naddr)]
        o += [f's_add_u32 s{S_SLOT}, s{S_SLOT}, {STAGE}', f's_cmp_eq_u32 s{S_SLOT}, {S*STAGE}', f's_cselect_b32 s{S_SLOT}, 0, s{S_SLOT}']
        return o
    a.emit(f's_mov_b32 s{S_SLOT}, 0')
    for x in addr(): a.emit(x)
    if halo:
        if hooks: own_pos(a, S_CNT)
        else: a.emit(f's_mov_b32 s{S_CNT}, {N}')
        if hooks: a.emit(f's_mul_i32 s{S_T}, s{S_LAYER}, {len(hooks)}')
        a.emit(f's_cmp_eq_u32 s{S_LAYER}, 0')
        a.emit(f's_cbranch_scc1 L_{tag}_nog')
    a.emit(f's_mov_b32 s{S_CNT}, {N - 1 if ot else N}')
    if ot:
        rd = (lambda s, ks: reads(s, ks, False)) if halo else reads
        for x in rd(0, 0): a.emit(x)
        a.emit('s_waitcnt lgkmcnt(0)')
        interleave(a, ot(0), rd(1, 1) + addr(), lead=1, per=1)
        a.emit('s_waitcnt lgkmcnt(0)')
        for x in ot(1): a.emit(x)
    if halo:
        a.emit('s_barrier')
        for x in halo[0]: a.emit(x)
        a.label(f'L_{tag}_nog')
    else: gbar(a, tag)
    a.lines += mid
    if halo: a.emit(f's_cmp_eq_u32 s{S_LAYER}, 0')
    a.emit('s_barrier')
    stamp(a, 1)
    if halo:
        a.emit(f's_cbranch_scc1 L_{tag}_first')
        for x in halo[1] + reads(0, 0): a.emit(x)
        a.emit('s_waitcnt lgkmcnt(15)')
        for x in halo[2]: a.emit(x)
        a.emit('s_waitcnt lgkmcnt(0)')
        a.emit(f's_branch L_{tag}_loop')
        a.label(f'L_{tag}_first')
        if not DS: a.emit(f's_load_dwordx2 s[{SC}:{SC+1}], s[0:1], 72')
    for x in reads(0, 0): a.emit(x)
    a.emit('s_waitcnt lgkmcnt(0)')
    def loop(nm, m):
        a('.p2align 3')
        a.label(f'L_{tag}_loop{nm}')
        ad = addr()
        ad[-1] += f'\n  s_sub_u32 s{S_CNT}, s{S_CNT}, 1'
        interleave(a, m(0), reads(1, 1) + ad, lead=1, per=1)
        a.emit('s_waitcnt lgkmcnt(0)')
        a.emit('s_barrier')
        interleave(a, m(1), reads(0, 0) + [f's_cmp_lg_u32 s{S_CNT}, 0\n  s_nop 0'], lead=1, per=1)
        a.emit('s_waitcnt lgkmcnt(0)')
        a.emit(f's_cbranch_scc1 L_{tag}_loop{nm}')
    if variants:
        select()
        vs = list(variants.items())
        for i, (nm, m) in enumerate(vs):
            loop(nm, m)
            if i + 1 < len(vs): a.emit(f's_branch L_{tag}_post')
        a.label(f'L_{tag}_post')
        post()
        a.emit(f's_branch L_{tag}_exit')
    if hooks:
        if PO0 == 0:
            a.emit(f's_cmp_lg_u32 s{S_CNT}, 0')
            a.emit(f's_cbranch_scc1 L_{tag}_loop')
            a.emit(f's_mov_b32 s{S_T}, 1')
        else: a.emit(f's_branch L_{tag}_loop')
        a.label(f'L_{tag}_hook')
        for i, (t, code) in enumerate(hooks):
            if i + 1 < len(hooks):
                a.emit(f's_cmp_lg_u32 s{S_T}, {i + 1}')
                a.emit(f's_cbranch_scc1 L_{tag}_hook{i}')
            t2 = hooks[i + 1][0] if i + 1 < len(hooks) else N
            if t < 0 <= t2:
                own_pos(a, S_CNT)
                a.emit(f's_sub_u32 s{S_CNT}, {t2 + t + 1}, s{S_CNT}')
                assert t2 + t + 1 > PO0 + POM
            else: a.emit(f's_mov_b32 s{S_CNT}, {abs(t2 - t)}')
            for x in code: a.emit(x)
            if i + 1 < len(hooks):
                a.emit(f's_branch L_{tag}_loop')
                a.label(f'L_{tag}_hook{i}')
    loop('', mf)
    if hooks:
        a.emit(f's_add_u32 s{S_T}, s{S_T}, 1')
        a.emit(f's_cmp_le_u32 s{S_T}, {len(hooks)}')
        a.emit(f's_cbranch_scc1 L_{tag}_hook')
    a.label(f'L_{tag}_exit')
    stamp(a, 2)

def stats_loads(a, vd, halo):
    a.emit(f's_and_b32 s3, s{S_WV}, 3')
    a.emit(f's_lshl_b32 s4, s{S_MT}, 7')
    a.emit('s_lshl_b32 s5, s3, 6')
    a.emit('s_add_u32 s5, s5, s4')
    a.emit('v_add_u32 v2, s5, v1')
    a.emit('s_sub_u32 s4, s4, 16')
    a.emit('v_and_b32 v3, 15, v1')
    a.emit('v_add_u32 v3, s4, v3')
    a.emit('v_max_i32 v3, 0, v3')
    a.emit('s_cmp_ge_u32 s3, 2')
    a.emit('s_cselect_b64 vcc, -1, 0')
    a.emit('v_cndmask_b32 v2, v2, v3, vcc')
    a.emit('v_lshlrev_b32 v2, 3, v2')
    a.emit('s_mov_b32 s3, 0')
    for j in range(16):
        a.emit(f'buffer_load_dwordx2 v[{vd+2*j}:{vd+2*j+1}], v2, s[{ST}:{ST+3}], s3 offen')
        if j < 15: a.emit('s_add_u32 s3, s3, 16384')
    return 16

def stats_finish(a, vs):
    a.emit(f'v_mul_f32 v{vs}, 0x3a800000, v{vs}')
    a.emit(f'v_mul_f32 v{vs+1}, 0x3a800000, v{vs+1}')
    a.emit(f'v_fma_f32 v{vs+1}, -v{vs}, v{vs}, v{vs+1}')
    a.emit(f'v_max_f32 v{vs+1}, 0, v{vs+1}')
    a.emit(f'v_add_f32 v{vs+1}, 0x3727c5ac, v{vs+1}')
    a.emit(f'v_rsq_f32 v{vs+1}, v{vs+1}')
    a.emit('s_nop 0')

def stats_reduce_store(a, vd, LST):
    for j in range(1, 8):
        a.emit(f'v_add_f32 v{vd}, v{vd}, v{vd+2*j}')
        a.emit(f'v_add_f32 v{vd+1}, v{vd+1}, v{vd+2*j+1}')
        a.emit(f'v_add_f32 v{vd+16}, v{vd+16}, v{vd+16+2*j}')
        a.emit(f'v_add_f32 v{vd+17}, v{vd+17}, v{vd+17+2*j}')
    a.emit(f'v_add_f32 v{vd}, v{vd}, v{vd+16}')
    a.emit(f'v_add_f32 v{vd+1}, v{vd+1}, v{vd+17}')
    stats_finish(a, vd)
    a.emit(f's_and_b32 s3, s{S_WV}, 3')
    a.emit('s_lshl_b32 s5, s3, 6')
    a.emit('s_add_u32 s5, s5, 16')
    a.emit('v_add_u32 v2, s5, v1')
    a.emit('v_and_b32 v3, 15, v1')
    a.emit('s_cmp_ge_u32 s3, 2')
    a.emit('s_cselect_b64 vcc, -1, 0')
    a.emit('v_cndmask_b32 v2, v2, v3, vcc')
    a.emit('v_lshlrev_b32 v2, 2, v2')
    a.emit(f'v_add_u32 v2, {LST}, v2')
    a.emit(f'ds_write2_b32 v2, v{vd}, v{vd+1} offset0:0 offset1:160')

VST, VSH, VCS, VBI = 18, 19, 22, 23
def stats4_setup(a, halo):
    a.emit(f's_and_b32 s3, s{S_WV}, 3')
    a.emit(f's_lshl2_add_u32 s4, s{S_MT}, s3')
    a.emit('s_lshl_b32 s4, s4, 8')
    a.emit('v_lshrrev_b32 v2, 4, v1')
    a.emit('v_and_b32 v3, 15, v1')
    a.emit('v_lshl_add_u32 v3, v3, 4, s4')
    a.emit(f'v_lshl_add_u32 v{VST}, v2, 14, v3')
    if halo:
        a.emit(f's_lshl_b32 s4, s{S_MT}, 5')
        a.emit('s_add_u32 s4, s4, s3')
        a.emit('s_sub_u32 s4, s4, 4')
        a.emit('s_max_i32 s4, s4, 0')
        a.emit('s_lshl_b32 s4, s4, 5')
        a.emit('v_lshrrev_b32 v2, 2, v1')
        a.emit('v_and_b32 v3, 3, v1')
        a.emit('v_lshl_add_u32 v3, v3, 3, s4')
        a.emit(f'v_lshl_add_u32 v{VSH}, v2, 14, v3')

def quad_loads(vd, vo, sd):
    o = []
    for j in range(4):
        if j: o.append(f's_mov_b32 s3, {j << 16}')
        o.append(f'buffer_load_dwordx4 v[{vd+4*j}:{vd+4*j+3}], v{vo}, s[{sd}:{sd+3}], {"s3" if j else 0} offen')
    return o

def stats4_loads(vd, halo):
    return quad_loads(vd, VST, ST) + ([f'buffer_load_dwordx2 v[{vd+16}:{vd+17}], v{VSH}, s[{ST}:{ST+3}], 0 offen'] if halo else [])

def quad_sum(a, vd):
    pk = lambda d, s: a.emit(f'v_pk_add_f32 v[{d}:{d+1}], v[{d}:{d+1}], v[{s}:{s+1}]')
    pk(vd, vd + 4); pk(vd + 2, vd + 6); pk(vd + 8, vd + 12); pk(vd + 10, vd + 14); pk(vd, vd + 8); pk(vd + 2, vd + 10)
    a.emit('s_nop 1')
    a.emit(f'v_permlane32_swap_b32 v{vd}, v{vd+2}')
    a.emit(f'v_permlane32_swap_b32 v{vd+1}, v{vd+3}')
    pk(vd, vd + 2)

def stats4_store(a, vd, LST, halo, chk=None):
    quad_sum(a, vd)
    if chk: chk()
    def allsum(r, op):
        a.emit(f'v_mov_b32 v{r+2}, v{r}')
        a.emit(f'v_mov_b32 v{r+3}, v{r+1}')
        a.emit('s_nop 0')
        a.emit(f'v_permlane{op}_swap_b32 v{r}, v{r+2}')
        a.emit(f'v_permlane{op}_swap_b32 v{r+1}, v{r+3}')
        a.emit(f'v_pk_add_f32 v[{r}:{r+1}], v[{r}:{r+1}], v[{r+2}:{r+3}]')
    allsum(vd, 16)
    stats_finish(a, vd)
    a.emit(f's_and_b32 s3, s{S_WV}, 3')
    a.emit('s_lshl_b32 s5, s3, 7')
    a.emit(f's_add_u32 s5, s5, {LST + 64}')
    a.emit('v_and_b32 v3, 15, v1')
    a.emit('v_lshrrev_b32 v2, 5, v1')
    a.emit('v_lshl_add_u32 v2, v3, 1, v2')
    a.emit('v_lshl_add_u32 v2, v2, 2, s5')
    a.emit(f'ds_write2_b32 v2, v{vd}, v{vd+1} offset0:0 offset1:160')
    if halo:
        h = vd + 16
        allsum(h, 32); allsum(h, 16)
        for r in (8, 4):
            a.emit('s_nop 1')
            for i in range(2): a.emit(f'v_add_f32_dpp v{h+i}, v{h+i}, v{h+i} row_ror:{r} row_mask:0xf bank_mask:0xf')
        stats_finish(a, h)
        a.emit('s_lshl_b32 s5, s3, 4')
        a.emit(f's_add_u32 s5, s5, {LST}')
        a.emit('v_and_b32 v3, 3, v1')
        a.emit('v_lshl_add_u32 v2, v3, 2, s5')
        a.emit(f'ds_write2_b32 v2, v{h}, v{h+1} offset0:0 offset1:160')

def gen_w1(a, tsidx, side, cs=(16, 16384, 0)):
    kind = 'w1'
    K = 1024; lda2 = 2048; ldw2 = 7168; ldo2 = 7168
    ot = kind in OT
    S = 3; LM = int(ENV('LM_W1', '2' if ot else '3'))
    STAGE = 16384 + 4 * 8192
    o2 = 'w2' in OT
    assert LM == 2 or not o2
    LST = OHB - 4096 if o2 else S * STAGE
    LCS = LST + 1280
    N = 16
    body = f'L_{kind}_body'; end = f'L_{kind}_end'
    VB, VA, VO = 4, 20, 12
    F = [32, 80]; ACC = 128
    acc = lambda jn, jm: ACC + (jn * 4 + jm) * 4
    fx = lambda s, jm: F[s] + jm * 4
    fw = lambda s, jn: F[s] + 16 + jn * 4
    a.label(f'L_{kind}_c0')
    if not MEGA: stub(a, f'{kind}l0_kernel', body, 0, tsidx, True)
    a.label(body)
    tile_map(a, LM, end)
    a.emit(f's_cmp_ge_u32 s{S_WV}, 4')
    a.emit(f's_cbranch_scc1 L_{kind}_loader')
    if ot and OBAR: a.emit('s_barrier')
    if NV:
        from gemm64y import w2_pre, w2_early
        w2_pre(a)
        tile_map(a, LM, None)
    a.emit(f's_and_b32 s{S_WM}, s{S_WV}, 1')
    a.emit(f's_lshr_b32 s{S_WN}, s{S_WV}, 1')
    a.emit('v_and_b32 v3, 15, v1')
    a.emit('v_lshrrev_b32 v2, 4, v1')
    a.emit(f's_lshl_b32 s8, s{S_WM}, 13')
    a.emit(f'v_lshl_add_u32 v{VB}, v1, 4, s8')
    wbase(a, 13, 17)
    a.emit(f's_lshl_b32 s9, s{S_WN}, 6')
    a.emit('v_xor_b32 v13, s9, v13')
    a.emit(f'v_add_u32 v{VB+1}, 16384, v13')
    a.emit(f'v_xor_b32 v{VB+2}, 32, v{VB+1}')
    a.emit('v_and_b32 v16, 1, v2')
    a.emit('v_lshrrev_b32 v17, 1, v2')
    a.emit('v_bfe_u32 v13, v1, 2, 2')
    a.emit('v_lshl_add_u32 v13, v16, 3, v13')
    a.emit('v_lshl_add_u32 v13, v17, 5, v13')
    a.emit(f'v_xor_b32 v14, s{S_WN}, v16')
    a.emit('v_lshl_add_u32 v13, v13, 1, v14')
    a.emit('v_and_b32 v14, 3, v1')
    a.emit('v_lshl_add_u32 v13, v13, 2, v14')
    a.emit('v_lshlrev_b32 v13, 3, v13')
    a.emit(f'v_add_u32 v{VB+3}, {16384 + 3 * 8192}, v13')
    i0 = len(a.lines)
    a.emit(f's_lshl_b32 s8, s{S_MT}, 7')
    a.emit(f's_lshl_b32 s9, s{S_WM}, 6')
    a.emit('s_add_u32 s8, s8, s9')
    a.emit(f's_mul_i32 s8, s8, {ldo2}')
    a.emit('v_lshlrev_b32 v14, 8, v17')
    a.emit('v_lshl_add_u32 v14, v3, 4, v14')
    if o2:
        a.emit(f's_lshl3_add_u32 s9, s{S_WM}, s{S_WN}')
        a.emit('s_lshl_b32 s9, s9, 10')
        a.emit(f's_add_u32 s9, s9, {OHB}')
        a.emit('v_lshl_add_u32 v18, v16, 9, v14')
        a.emit('v_add_u32 v18, s9, v18')
        srd(a, SB, 'b2', 0, 2048)
        a.emit(f's_lshr_b32 s9, s{S_NT}, 3')
        a.emit(f's_and_b32 s10, s{S_NT}, 7')
        a.emit('s_lshl1_add_u32 s9, s10, s9')
        a.emit('s_lshl_b32 s9, s9, 7')
        a.emit('v_lshl_add_u32 v19, v2, 3, s9')
    a.emit('v_add_u32 v14, s8, v14')
    a.emit(f's_lshl_b32 s10, s{S_NT}, 11')
    a.emit(f's_lshl_b32 s9, s{S_WN}, 10')
    a.emit('s_add_u32 s9, s9, s10')
    a.emit(f'v_lshl_add_u32 v{VO}, v16, 9, v14')
    a.emit(f'v_add_u32 v{VO}, s9, v{VO}')
    a.emit(f'v_mul_u32_u24 v16, {16*ldo2}, v16')
    a.emit('s_lshr_b32 s9, s9, 1')
    a.emit(f'v_add3_u32 v{VO+1}, v16, v14, s9')
    a.emit(f's_lshl_b32 s9, s{S_WM}, 8')
    a.emit(f's_add_u32 s9, s9, {LST + 64}')
    a.emit('v_lshl_add_u32 v14, v3, 2, s9')
    a.emit(f's_lshl_b32 s9, s{S_WN}, 7')
    a.emit(f's_add_u32 s9, s9, {LCS}')
    a.emit('v_lshl_add_u32 v15, v2, 4, s9')
    a.emit(f's_lshl_b32 s9, s{S_WN}, 6')
    a.emit(f's_add_u32 s9, s9, {LCS}')
    a.emit('v_lshl_add_u32 v16, v2, 4, s9')
    for i in range(0 if ot else 112): a.emit(f'v_mov_b32 v{ACC+i}, 0')
    if not MEGA: a.emit('s_waitcnt lgkmcnt(0)')
    srd(a, SO, 'ws', WS_H, 2048 * 7168)
    if not ot: code_touch(a, 'L_w2_c0', 'L_w2_c1', 192 if SPX else 128)
    mid = []
    if ot: mid = a.lines[i0:]; del a.lines[i0:]
    def reads(s, ks):
        o = []
        if 'noread' in DBG: return o
        for jm in range(4):
            o.append(f'ds_read_b128 v[{fx(s,jm)}:{fx(s,jm)+3}], v{VA} offset:{jm*2048+ks*1024}')
        for jn in range(7):
            for h in range(2):
                r = fw(s, jn) + 2 * h
                o.append(f'ds_read_b64_tr_b16 v[{r}:{r+1}], v{VA+1+(jn&1 if jn < 6 else 2)} offset:{((jn>>1)*8192+h*512 if jn < 6 else h*256)+ks*4096}')
        return o
    def mf(s):
        o = []
        if 'nomfma' in DBG: return ['s_nop 0']
        for jn, jm in mf_order(7, 4):
            if True:
                c = acc(jn, jm)
                o.append(f'v_mfma_f32_16x16x32_bf16 v[{c}:{c+3}], v[{fw(s,jn)}:{fw(s,jn)+3}], v[{fx(s,jm)}:{fx(s,jm)+3}], v[{c}:{c+3}]')
        return o
    zc = lambda x: x[:x.rindex(',')] + ', 0'
    big_loop(a, kind, N, S, STAGE, 4, VB, VA, reads, mf, ot=(lambda s: mf(1) if s else [zc(x) for x in mf(0)]) if ot else None, mid=mid)
    CS = 32; BI = 60; STT = 88; CK = 96; T = 100; D = 108
    for jm in range(4):
        a.emit(f'ds_read2_b32 v[{STT+2*jm}:{STT+2*jm+1}], v14 offset0:{16*jm} offset1:{160+16*jm}')
    for jn in range(7):
        a.emit(f'ds_read_b128 v[{CS+4*jn}:{CS+4*jn+3}], v{15 if jn < 6 else 16} offset:{(jn>>1)*256+(jn&1)*64}')
        a.emit(f'ds_read_b128 v[{BI+4*jn}:{BI+4*jn+3}], v{15 if jn < 6 else 16} offset:{1024+(jn>>1)*256+(jn&1)*64}')
    for jn in range(4 if o2 else 0):
        a.emit(f'buffer_load_dwordx2 v[{OBIA[jn]}:{OBIA[jn]+1}], v19, s[{SB}:{SB+3}], 0 offen offset:{jn*32}')
    c0 = -2.0 * 0.7978845608028654 * 1.4426950408889634
    c1 = c0 * 0.044715
    a.emit(f'v_mov_b32 v{CK}, {f2u(c0):#x}')
    a.emit(f'v_mov_b32 v{CK+1}, {f2u(c1):#x}')
    a.emit(f'v_mov_b32 v{CK+2}, 1.0')
    a.emit('s_waitcnt lgkmcnt(0)')
    for jm in range(4):
        a.emit(f'v_mul_f32 v{STT+2*jm}, v{STT+2*jm}, v{STT+2*jm+1}')
    def tile_math(jn, jm, d):
        c = acc(jn, jm)
        seqs = []
        ST2 = f'v[{STT+2*jm}:{STT+2*jm+1}]'
        for q in range(2):
            x = c + 2 * q; t = T + 2 * q + 4 * (jn & 1)
            X = f'v[{x}:{x+1}]'; TT = f'v[{t}:{t+1}]'
            seqs.append([
              f'v_pk_fma_f32 {TT}, v[{CS+4*jn+2*q}:{CS+4*jn+2*q+1}], {ST2}, v[{BI+4*jn+2*q}:{BI+4*jn+2*q+1}] op_sel:[0,0,0] op_sel_hi:[1,0,1] neg_lo:[0,1,0] neg_hi:[0,1,0]',
              f'v_pk_fma_f32 {X}, {X}, {ST2}, {TT} op_sel:[0,1,0] op_sel_hi:[1,1,1]',
              f'v_pk_mul_f32 {TT}, {X}, {X}',
              f'v_pk_fma_f32 {TT}, {TT}, v[{CK}:{CK+1}], v[{CK}:{CK+1}] op_sel:[0,1,0] op_sel_hi:[1,1,0]',
              f'v_pk_mul_f32 {TT}, {TT}, {X}',
              f'v_exp_f32 v{t}, v{t}\n  v_exp_f32 v{t+1}, v{t+1}',
              f'v_pk_add_f32 {TT}, {TT}, v[{CK+2}:{CK+3}] op_sel_hi:[1,0]',
              f'v_rcp_f32 v{t}, v{t}\n  v_rcp_f32 v{t+1}, v{t+1}',
              f'v_pk_mul_f32 {X}, {X}, {TT}',
              f'v_cvt_pk_bf16_f32 v{d+q}, v{x}, v{x+1}'])
        for ia, ib in zip(*seqs):
            a.emit(ia); a.emit(ib)
    cnt = [0]
    def pair(t0, t1, vo, soff, big=False):
        d = D + 4 * (cnt[0] % 4); cnt[0] += 1
        tile_math(*t0, d); tile_math(*t1, d + 2)
        a.emit(f's_add_u32 s3, s10, {soff}' if big else f's_mov_b32 s3, {soff}')
        a.emit('s_nop 0')
        a.emit(f'v_permlane16_swap_b32 v{d}, v{d+2}')
        a.emit(f'v_permlane16_swap_b32 v{d+1}, v{d+3}')
        a.emit(f'buffer_store_dwordx4 v[{d}:{d+3}], v{vo}, s[{SO}:{SO+3}], s3 offen{stf(kind)}')
        if o2 and t0[0] < 6: a.emit(f'ds_write_b128 v18, v[{d}:{d+3}] offset:{(t0[0] // 2 + 2) % 3 * 16384 + t0[1] * 2048}')
    pr = lambda p, jm: pair((2 * p, jm), (2 * p + 1, jm), VO, jm * 16 * ldo2 + (46 + 2 * p) * 1024 * (p > 0), p > 0)
    od = lambda jm: pair((6, jm), (6, jm + 1), VO + 1, jm * 16 * ldo2 + 32768)
    order = [lambda jm=jm: pr(0, jm) for jm in range(4)] + [lambda: od(0), lambda: od(2)] + [lambda jm=jm, p=p: pr(p, jm) for jm in range(4) for p in (1, 2)]
    EW = int(ENV('EW', '10'))
    for i, f in enumerate(order):
        f()
        if NV and i + 1 == EX: w2_early(a)
        if EARLY and i + 1 == EW:
            a.emit(f's_waitcnt vmcnt({EW - EARLY // 4})')
            a.emit('s_barrier')
    compute_end(a, kind)
    a.label(f'L_{kind}_loader')
    L = Loader(a, kind, K, lda2, ldw2, [0, f's{S_HD}', 's_add_u32 s4, s4, 128'], 128, S, STAGE, rot=int(ENV('ROT_W1', '0')), xblk=True, half=2048)
    L.ot = int(ot)
    L.setup()
    a.emit('s_waitcnt lgkmcnt(0)')
    if ot: code_touch(a, 'L_w2_c0', 'L_w2_c1', 192, loader=True)
    srd(a, SX, 'ws', WS_X1, 4 * MB); srd(a, SW, 'w1', 0, 1024 * 7168)
    srd(a, ST, 'ws', WS_ST, 16 * 16384); srd(a, SC, 'ws0', WS_CS, 16 * 16384); srd(a, SB, 'b1', 0, 7168)
    def tail():
        stats_loads(a, 32, False)
        a.emit(f's_lshl_b32 s4, s{S_NT}, 7')
        a.emit(f's_lshl_b32 s5, s{S_WV}, 6')
        a.emit('s_add_u32 s4, s4, s5')
        a.emit(f's_add_u32 s4, s4, {1472 - 256}')
        a.emit(f's_lshl_b32 s5, s{S_NT}, 6')
        a.emit(f's_cmp_eq_u32 s{S_WV}, 4')
        a.emit('s_cselect_b32 s4, s5, s4')
        a.emit('s_lshr_b32 s5, s5, 1')
        a.emit('s_add_u32 s5, s5, 1024')
        a.emit(f's_cmp_eq_u32 s{S_WV}, 7')
        a.emit('s_cselect_b32 s4, s5, s4')
        a.emit('v_add_u32 v3, s4, v1')
        a.emit('v_lshlrev_b32 v2, 2, v3')
        a.emit('v_lshlrev_b32 v3, 1, v3')
        a.emit(f's_mov_b32 s3, {cs[2]}')
        for j in range(16):
            if j < cs[0]:
                a.emit(f'buffer_load_dword v{64+j}, v2, s[{SC}:{SC+3}], s3 offen')
                if j < cs[0] - 1: a.emit(f's_add_u32 s3, s3, {cs[1]}')
            else:
                a.emit(f'v_mov_b32 v{64+j}, 0')
        a.emit(f'buffer_load_ushort v80, v3, s[{SB}:{SB+3}], 0 offen')
        side(a, 'issue')
    ns = side(Asm(), 'issue')
    extra = None
    if VW:
        assert int(ENV('LM_W2', '2')) == 2
        srd(a, SR, 'w2', 0, 3584 * 2048)
        a.emit('s_and_b32 s5, s2, 3')
        a.emit('s_lshl_b32 s5, s5, 2')
        a.emit(f's_and_b32 s6, s{S_CU}, 3')
        a.emit('s_add_u32 s5, s5, s6')
        a.emit('s_and_b32 s6, s2, 4')
        a.emit('s_lshl_b32 s6, s6, 1')
        a.emit(f's_lshr_b32 s7, s{S_CU}, 2')
        a.emit('s_add_u32 s6, s6, s7')
        rot_table(a, S_TB, 5, 6, 'w2')
        a.emit(f's_add_u32 s5, s5, s{S_WV}')
        a.emit('s_and_b32 s5, s5, 3')
        wvoff(a, 16, 5, 6, 2048)
        sched = [int(c) for c in ENV('PSCH', '0111111111111122')]
        assert sum(sched) >= NV1
        def extra(i):
            o = []
            for p in range(sum(sched[:i]), min(NV1, sum(sched[:i + 1]))): o += park(56, 2 * p, 128 + 8 * p, 16, SR)
            return o
        ns += sum(x.startswith('buffer_load') for i in (13, 14, 15) for x in extra(i))
    if XD:
        extra = tail_parks('w2', SR, lambda b: srd(b, SR, 'w2', 0, 3584 * 2048))
        ns += 2 * sum(TSCH['w2'])
    if XD and ENV('PFL', '2') == '3':
        b = Asm(); side(b, 'late'); pl = [l.strip() for l in b.lines]
        pl = [l.replace('v2,', 'v18,').replace(', v2', ', v18').replace('s3', 's93') for l in pl]
        i0 = min(i for i, l in enumerate(pl) if l.startswith('buffer_load'))
        for l in pl[:i0]: a.emit(l)
        st = [int(x) for x in ENV('PFS', '6,10').split(',')]
        extra = lambda i: pl[i0 + 2 * st.index(i):i0 + 2 * st.index(i) + 2] if i in st else []
    def final():
        a.emit(f's_waitcnt vmcnt({ns})')
        if ENV('PFL', '2') == '1': side(a, 'late')
        stats_reduce_store(a, 32, LST)
        for j in range(8): a.emit(f'v_add_f32 v{64+j}, v{64+j}, v{72+j}')
        for j in range(4): a.emit(f'v_add_f32 v{64+j}, v{64+j}, v{68+j}')
        a.emit('v_add_f32 v64, v64, v65')
        a.emit('v_add_f32 v66, v66, v67')
        a.emit('v_add_f32 v64, v64, v66')
        a.emit('v_lshlrev_b32 v80, 16, v80')
        a.emit('v_lshlrev_b32 v2, 2, v0')
        a.emit(f'v_add_u32 v2, {LCS - 1024}, v2')
        a.emit('ds_write_b32 v2, v64')
        a.emit('ds_write_b32 v2, v80 offset:1024')
        a.emit('s_waitcnt lgkmcnt(0)')
    import sides
    if T4:
        stats4_setup(a, False)
        a.emit(f's_lshl_b32 s4, s{S_NT}, 7')
        a.emit(f's_lshl_b32 s5, s{S_WV}, 6')
        a.emit('s_add_u32 s4, s4, s5')
        a.emit(f's_add_u32 s4, s4, {1472 - 256}')
        a.emit(f's_lshl_b32 s5, s{S_NT}, 6')
        a.emit(f's_cmp_eq_u32 s{S_WV}, 4')
        a.emit('s_cselect_b32 s4, s5, s4')
        a.emit('s_lshr_b32 s5, s5, 1')
        a.emit('s_add_u32 s5, s5, 1024')
        a.emit(f's_cmp_eq_u32 s{S_WV}, 7')
        a.emit('s_cselect_b32 s4, s5, s4')
        a.emit('v_and_b32 v3, 15, v1')
        a.emit('v_lshl_add_u32 v3, v3, 2, s4')
        a.emit('v_lshrrev_b32 v2, 4, v1')
        a.emit(f'v_add_lshl_u32 v{VBI}, v3, v2, 1')
        a.emit('v_lshlrev_b32 v3, 2, v3')
        a.emit(f'v_lshl_add_u32 v{VCS}, v2, 14, v3')
        CSI = int(ENV('CSI', '14')); STI = int(ENV('STI', '14'))
        def extra4(i):
            o = []
            if i == CSI: o += quad_loads(64, VCS, SC) + [f'buffer_load_ushort v80, v{VBI}, s[{SB}:{SB+3}], 0 offen']
            if i == STI: o += stats4_loads(32, False)
            return o
        def final4():
            a.emit('s_waitcnt vmcnt(0)')
            stats4_store(a, 32, LST, False)
            quad_sum(a, 64)
            a.emit('v_lshlrev_b32 v80, 16, v80')
            a.emit('s_lshl_b32 s5, s3, 8')
            a.emit(f's_add_u32 s5, s5, {LCS}')
            a.emit('v_permlane16_swap_b32 v64, v65')
            a.emit('v_lshrrev_b32 v2, 4, v1')
            a.emit('v_lshl_add_u32 v2, v3, 2, v2')
            a.emit('v_lshl_add_u32 v2, v2, 2, s5')
            a.emit('v_add_f32 v64, v64, v65')
            a.emit('ds_write2st64_b32 v2, v64, v80 offset0:0 offset1:4')
            a.emit('s_waitcnt lgkmcnt(0)')
        assert ns == 0
        L.run(final=final4, extra=extra4, post=sides.stouch_post(a, kind), dep=lambda pf: dep_wait(a, kind, postf=pf, obar=L.npre - 6 if ot and OBAR else 0, pref=(lambda: a.emit(f's_waitcnt vmcnt({L.npre - 7})')) if ot and not OBAR else None))
    else: L.run(tail_issue=tail, ntail_vm=17 + cs[0] + side(Asm(), 'issue'), final=final, extra=extra, post=sides.stouch_post(a, kind),
          dep=(lambda pf: dep_wait(a, kind, postf=pf)) if MEGA else None)
    if ENV('PFL', '2') == '2': side(a, 'late')
    if not VW: side(a, 'finish')
    loader_end(a, kind)
    a.label(end)
    a.emit('s_endpgm')
    loader_first(a, kind)
    if not MEGA:
        a(KD.format(name=f'{kind}l0_kernel'))
        stub(a, f'{kind}l1_kernel', body, 1, tsidx + 4, False)
        a(KD.format(name=f'{kind}l1_kernel'))
    a.label(f'L_{kind}_c1')
    return LCS + 2048
```

```python
from common import *
from gemmw1 import *

def res_addr(a, swv, sd, v):
    assert int(ENV('LM_WO', '2')) == 2 and int(ENV('LM_W2', '2')) == 2
    srd(a, sd, 'A_x', 0, 4 * MB)
    a.emit('s_and_b32 s3, s2, 3')
    a.emit(f's_and_b32 s4, s{S_CU}, 3')
    a.emit('s_lshl2_add_u32 s3, s3, s4')
    a.emit(f's_lshl2_add_u32 s3, s3, s{swv}')
    a.emit('s_lshl_b32 s3, s3, 16')
    a.emit('s_bfe_u32 s4, s2, 0x10002' if SPX else 's_and_b32 s4, s2, 4')
    a.emit(f's_lshr_b32 s5, s{S_CU}, 2')
    a.emit('s_lshl1_add_u32 s4, s5, s4' if SPX else 's_lshl1_add_u32 s4, s4, s5')
    a.emit('s_lshl_b32 s4, s4, 7')
    a.emit('s_add_u32 s3, s3, s4')
    a.emit('s_add_u32 s4, s3, 32768')
    a.emit(f'v_and_b32 v{v}, 15, v1')
    a.emit(f'v_lshlrev_b32 v{v+1}, 1, v1')
    a.emit(f'v_and_b32 v{v+1}, 32, v{v+1}')
    a.emit(f'v_lshl_add_u32 v{v}, v{v}, 11, v{v+1}')
    a.emit(f'v_lshrrev_b32 v{v+1}, 1, v1')
    a.emit(f'v_and_b32 v{v+1}, 16, v{v+1}')
    a.emit(f'v_add_u32 v{v}, v{v}, v{v+1}')

def res_loads(vd, v, sd):
    return [f'buffer_load_dwordx4 v[{vd+4*i}:{vd+3+4*i}], v{v}, s[{sd}:{sd+3}], s{3+(i>>1)} offen offset:{64*(i&1)}' for i in range(4)]

def gen_qkv(a, tsidx, side):
    kind = 'attn'
    K = 1024; lda2 = 2048; ldw2 = 6144
    S = 3; LM = int(ENV('LM_QKV', '3'))
    XH = 16384 + 6 * 4096
    STAGE = XH + 2048
    LST = S * STAGE
    EX = 1024
    N = 16
    body = f'L_{kind}_body'; end = f'L_{kind}_end'
    VB, VA = 4, 10
    VXW, VPE, VPO, VCE, VCO, VVE, VVO, VS1, VS4, VKA, VKB, MAP, MAC, MBP, MBC, VO = range(16, 32)
    M_ODD, M_UPA, M_UPB, M_FA, M_FB = 48, 50, 52, 54, 14
    F = [32, 76]; ACC = 128; HACC = 224; ONES = 236
    acc = lambda jn, jm: ACC + (jn * 4 + jm) * 4
    fx = lambda s, jm: F[s] + jm * 4
    fw = lambda s, jn: F[s] + 20 + jn * 4
    a.label(f'L_{kind}_c0')
    stub(a, f'{kind}l0_kernel', body, 0, tsidx, True)
    a.label(body)
    ot = kind in OT
    HX = LST + 1280
    tile_map(a, LM, end)
    if ot and LM != 2:
        a.emit(f's_cmp_eq_u32 s{S_LAYER}, 0')
        a.emit(f's_cbranch_scc1 L_{kind}_map')
        tile_map(a, 2, None)
        a.label(f'L_{kind}_map')
    a.emit(f's_cmp_ge_u32 s{S_WV}, 4')
    a.emit(f's_cbranch_scc1 L_{kind}_loader')
    if ENV('CTE', '0') == '1': code_touch(a, 'L_attn_c0', 'L_w2_c1', int(ENV('CTN', '256')))
    a.emit(f's_and_b32 s{S_WM}, s{S_WV}, 1')
    a.emit(f's_lshr_b32 s{S_WN}, s{S_WV}, 1')
    a.emit('v_and_b32 v3, 31, v1')
    a.emit('v_lshlrev_b32 v3, 2, v3')
    a.emit(f'v_add_u32 v3, {XH}, v3')
    for i in range(4): a.emit(f'v_mov_b32 v{ONES+i}, 0x3f803f80')
    a.emit(f'ds_write_b32 v3, v{ONES}')
    a.emit(f'ds_write_b32 v3, v{ONES} offset:{STAGE}')
    a.emit(f'v_add_u32 v3, {2*STAGE}, v3')
    a.emit(f'ds_write_b32 v3, v{ONES}')
    if ot: a.emit(f'ds_write_b32 v3, v{ONES} offset:{HX - XH - 2 * STAGE}')
    a.emit('v_and_b32 v3, 15, v1')
    a.emit('v_lshrrev_b32 v2, 4, v1')
    a.emit('v_lshrrev_b32 v33, 1, v3')
    a.emit(f's_lshl_b32 s8, s{S_WM}, 13')
    for ks in range(2):
        if ks: a.emit(f'v_add_u32 v{VB+ks}, 4, v2')
        a.emit(f'v_xor_b32 v{VB+ks}, v{VB+ks if ks else 2}, v33')
        a.emit(f'v_lshlrev_b32 v{VB+ks}, 4, v{VB+ks}')
        a.emit(f'v_lshl_add_u32 v{VB+ks}, v3, 7, v{VB+ks}')
        a.emit(f'v_add_u32 v{VB+4+ks}, {XH}, v{VB+ks}')
        a.emit(f'v_add_u32 v{VB+ks}, s8, v{VB+ks}')
    wbase(a, 34, 33)
    a.emit(f's_lshl_b32 s8, s{S_WV}, 5')
    a.emit('v_xor_b32 v34, s8, v34')
    a.emit(f'v_add_u32 v{VB+2}, 16384, v34')
    a.emit(f'v_xor_b32 v{VB+3}, 32, v{VB+2}')
    i0 = len(a.lines)
    a.emit('v_and_b32 v35, 1, v2')
    a.emit(f'v_xor_b32 v35, s{S_WM}, v35')
    a.emit(f's_lshl_b32 s8, s{S_MT}, 7')
    a.emit(f's_lshl_b32 s9, s{S_WM}, 6')
    a.emit('s_add_u32 s8, s8, s9')
    a.emit(f's_add_u32 s10, s8, s{S_NT}')
    a.emit('s_lshl_b32 s10, s10, 11')
    a.emit(f's_lshl_b32 s11, s{S_WN}, 10')
    a.emit('s_add_u32 s10, s10, s11')
    a.emit('v_lshl_add_u32 v33, v3, 4, s10')
    a.emit('v_lshl_add_u32 v33, v35, 9, v33')
    a.emit('v_lshrrev_b32 v34, 1, v2')
    a.emit(f'v_lshl_add_u32 v{VO}, v34, 8, v33')
    a.emit(f's_mul_i32 s10, s{S_WN}, {14336 if XD else 24576}')
    a.emit(f's_add_u32 s10, s10, {EX}')
    a.emit(f's_lshl_b32 s11, s{S_WM}, 10')
    a.emit('s_add_u32 s4, s10, s11')
    a.emit('s_sub_u32 s5, s10, s11')
    a.emit(f's_mul_i32 s6, s{S_WM}, 6144')
    a.emit(f'v_lshl_add_u32 v{VXW}, v1, 4, s4')
    a.emit(f'v_add_u32 v{VPE}, s6, v{VXW}')
    a.emit(f'v_lshl_add_u32 v{VPO}, v1, 4, s5')
    a.emit(f'v_add_u32 v{VPO}, s6, v{VPO}')
    a.emit(f'v_lshl_add_u32 v{VCE}, v2, 8, s4')
    a.emit(f'v_lshl_add_u32 v{VCO}, v2, 8, s5')
    a.emit(f'v_lshl_add_u32 v{VVE}, v3, 4, s4')
    a.emit(f'v_lshl_add_u32 v{VVO}, v3, 4, s5')
    a.emit(f's_lshl_b32 s10, s{S_WM}, 8')
    a.emit(f's_add_u32 s10, s10, {LST}')
    a.emit(f'v_lshl_add_u32 v{VS1}, v3, 2, s10')
    a.emit(f'v_lshl_add_u32 v{VS4}, v2, 4, s10')
    a.emit('v_and_b32 v33, 1, v3')
    a.emit(f'v_cmp_eq_u32 s[{M_ODD}:{M_ODD+1}], 1, v33')
    a.emit('v_lshl_add_u32 v34, v2, 2, v33')
    a.emit('v_add_u32 v35, 2, v34')
    a.emit(f'v_cmp_gt_u32 s[{M_UPA}:{M_UPA+1}], v34, v3')
    a.emit(f'v_cmp_gt_u32 s[{M_UPB}:{M_UPB+1}], v35, v3')
    a.emit('v_mov_b32 v36, 0xffff')
    a.emit('v_mov_b32 v37, 0xffff0000')
    a.emit(f'v_cndmask_b32 v36, v36, v37, s[{M_ODD}:{M_ODD+1}]')
    a.emit(f's_add_u32 s10, s10, {640 + 64}')
    a.emit('v_lshl_add_u32 v34, v34, 2, s10')
    a.emit('v_lshl_add_u32 v35, v35, 2, s10')
    a.emit('v_subrev_u32 v38, 64, v34')
    a.emit('v_subrev_u32 v39, 64, v35')
    a.emit(f'v_cndmask_b32 v{VKA}, v34, v38, s[{M_UPA}:{M_UPA+1}]')
    a.emit(f'v_cndmask_b32 v{VKB}, v35, v39, s[{M_UPB}:{M_UPB+1}]')
    a.emit(f'v_cndmask_b32 v{MAP}, 0, v36, s[{M_UPA}:{M_UPA+1}]')
    a.emit(f'v_cndmask_b32 v{MBP}, 0, v36, s[{M_UPB}:{M_UPB+1}]')
    a.emit(f'v_xor_b32 v{MAC}, v{MAP}, v36')
    a.emit(f'v_xor_b32 v{MBC}, v{MBP}, v36')
    a.emit('s_cmp_eq_u32 s8, 0')
    a.emit(f's_cselect_b64 s[{M_FA}:{M_FA+1}], s[{M_UPA}:{M_UPA+1}], 0')
    a.emit(f's_cselect_b64 s[{M_FB}:{M_FB+1}], s[{M_UPB}:{M_UPB+1}], 0')
    if ot:
        a.emit(f's_cmp_lg_u32 s{S_LAYER}, 0')
        a.emit(f's_cbranch_scc1 L_{kind}_nozero')
    for i in list(range(122 if DS else 120, 236)) + ([] if XD else list(range(240, 256))): a.emit(f'v_mov_b32 v{i}, 0')
    if DS:
        a.emit('s_waitcnt lgkmcnt(0)')
        a.emit(f's_lshl_b32 s3, s{S_WN}, 5')
        a.emit('s_add_u32 s3, s3, s8')
        a.emit(f's_lshl_b32 s4, s{S_NT}, 14')
        a.emit('s_lshl3_add_u32 s3, s3, s4')
        a.emit('v_lshrrev_b32 v121, 1, v2')
        a.emit('v_lshl_add_u32 v121, v121, 4, v3')
        a.emit('v_and_b32 v120, 1, v2')
        a.emit('v_lshl_add_u32 v121, v121, 1, v120')
        a.emit('v_lshl_add_u32 v120, v121, 2, s3')
        a.emit('v_lshlrev_b32 v121, 3, v0')
        srd(a, ST, 'ws0', WS_ST0, 16 * 16384)
        srd(a, SP, 'ws0', WS_FL, FLS)
        a.emit('s_lshl_b32 s3, s2, 11')
        a.emit(f'buffer_store_dwordx2 v[126:127], v121, s[{SP}:{SP+3}], s3 offen sc1')
        a.emit(f's_lshl_b32 s3, s{S_MT}, 2')
        a.emit('s_sub_u32 s3, s3, 4')
        a.emit('v_and_b32 v121, 7, v1')
        a.emit('v_add_u32 v121, s3, v121')
        a.emit('v_max_i32 v121, 0, v121')
        a.emit('v_lshlrev_b32 v121, 2, v121')
        a.emit(f's_and_b32 s{SC+1}, s{SC+1}, 0xffff')
        a.emit(f's_mov_b32 s{SC+2}, 256')
        a.emit(f's_mov_b32 s{SC+3}, 0x00020000')
        a.emit('s_mov_b32 s7, 0x3f803f80')
    if ot: a.label(f'L_{kind}_nozero')
    a.emit('s_waitcnt lgkmcnt(0)')
    srd(a, SO, 'ws', WS_O, 4 * MB)
    clear_flags(a, 0)
    if ENV('CTE', '0') == '0': code_touch(a, 'L_attn_c0', 'L_w2_c1', int(ENV('CTN', '256')))
    CLQ = ENV('DX', '2') == '1' and ENV('CLP', 'e') == 'q'
    if CLQ:
        srd(a, ST, 'ws', WS_XP, 4 * MB)
        a.emit(f's_or_b32 s{ST+1}, s{ST+1}, 0x100000')
        a.emit(f's_mov_b32 s{ST+3}, 0x00800000')
        a.emit('s_and_b32 s3, s2, 3')
        a.emit(f's_and_b32 s4, s{S_CU}, 3')
        a.emit('s_lshl2_add_u32 s3, s3, s4')
        a.emit('s_bfe_u32 s4, s2, 0x10002')
        a.emit(f's_lshr_b32 s5, s{S_CU}, 2')
        a.emit('s_lshl1_add_u32 s4, s5, s4')
        a.emit('s_lshl4_add_u32 s3, s3, s4')
        a.emit(f's_lshl2_add_u32 s3, s3, s{S_WV}')
        a.emit(f's_lshl_b32 s{S_T}, s3, 12')
        for i in range(4): a.emit(f'v_mov_b32 v{116+i}, -1')
    def warm():
        a.emit(f's_cmp_lg_u32 s{S_LAYER}, 0')
        a.emit(f's_cbranch_scc1 L_{kind}_nowarm')
        a.emit('s_lshl_b32 s3, s2, 2')
        a.emit(f's_add_u32 s3, s3, s{S_WV}')
        srd(a, SX, 'xs', 0, 4 * MB); srd(a, SW, 'wqkv', 0, 6 * MB)
        a.emit('v_min_u32 v126, 31, v1')
        a.emit('v_min_u32 v127, 47, v1')
        a.emit('v_lshlrev_b32 v126, 7, v126')
        a.emit('v_lshlrev_b32 v127, 7, v127')
        a.emit('s_lshl_b32 s4, s3, 12')
        a.emit(f's_mul_i32 s5, s3, {48 * 128}')
        a.emit(f'buffer_load_dword v2, v126, s[{SX}:{SX+3}], s4 offen')
        a.emit(f'buffer_load_dword v3, v127, s[{SW}:{SW+3}], s5 offen')
        a.emit('v_mov_b32 v126, 0')
        a.emit('v_mov_b32 v127, 0')
        a.label(f'L_{kind}_nowarm')
    WARM = ENV('WARM', '0')
    if WARM == '1': warm()
    mid = []
    if ot: mid = a.lines[i0:]; del a.lines[i0:]
    def reads(s, ks, hl=True):
        o = []
        if 'noread' in DBG: return o
        for jm in range(4):
            o.append(f'ds_read_b128 v[{fx(s,jm)}:{fx(s,jm)+3}], v{VA+ks} offset:{jm*2048}')
        if hl: o.append(f'ds_read_b128 v[{fx(s,4)}:{fx(s,4)+3}], v{VA+4+ks}')
        for jn in range(6):
            for h in range(2):
                r = fw(s, jn) + 2 * h
                o.append(f'ds_read_b64_tr_b16 v[{r}:{r+1}], v{VA+2+(jn&1)} offset:{(jn>>1)*8192+ks*4096+h*512}')
        return o
    def mfma(c, x, y, cin=None):
        return f'v_mfma_f32_16x16x32_bf16 v[{c}:{c+3}], v[{x}:{x+3}], v[{y}:{y+3}], ' + (f'v[{c}:{c+3}]' if cin is None else cin)
    def mf(s):
        o = []
        if 'nomfma' in DBG: return ['s_nop 0']
        for jn, jm in mf_order(6, 5, lambda jn, jm: jm == 4 and jn & 1):
            if True:
                c = acc(jn, jm) if jm < 4 else HACC + (jn >> 1) * 4
                o.append(mfma(c, fw(s, jn), fx(s, jm)) if jn < 4 else mfma(c, fx(s, jm), fw(s, jn)))
        return o
    SA = [(240, 244), (248, 252), (120, 124)]
    def mfv(hh):
        def f(s):
            o = mf(s)
            ex = []
            for i, jm in enumerate([2 * hh, 2 * hh + 1] + ([4] if hh == 0 else [])):
                ex.append(mfma(SA[i][0], ONES, fx(s, jm)))
                ex.append(mfma(SA[i][1], fx(s, jm), fx(s, jm)))
            return o if 'nostat' in DBG else ex + o
        return f
    def select():
        if CLQ:
            for i in range(4): a.emit(f'buffer_store_dwordx4 v[116:119], off, s[{ST}:{ST+3}], s{S_T} offset:{1024*i} sc1')
        if WARM == '2': warm(); a.emit('s_nop 1')
        if not ot:
            a.emit(f's_cmp_lg_u32 s{S_LAYER}, 0')
            a.emit(f's_cbranch_scc1 L_{kind}_loop')
        if XD:
            for i in range(240, 256): a.emit(f'v_mov_b32 v{i}, 0')
        a.emit(f's_cmp_lg_u32 s{S_WN}, 0')
        a.emit(f's_cbranch_scc1 L_{kind}_loopb')
        clear_flags(a, 1, 4 if CLQ else 0)
    def post():
        a.emit('v_and_b32 v32, 3, v1')
        a.emit('v_cmp_eq_u32 s[4:5], 1, v32')
        a.emit('v_cmp_eq_u32 s[6:7], 2, v32')
        a.emit('v_cmp_eq_u32 s[8:9], 3, v32')
        a.emit('v_bfe_u32 v33, v1, 2, 2')
        a.emit('v_lshrrev_b32 v34, 4, v1')
        a.emit('v_cmp_eq_u32 s[10:11], v33, v34')
        a.emit(f's_lshl_b32 s3, s{S_WN}, 7')
        a.emit(f'v_add_u32 v35, s3, v{VS1}')
        a.emit('v_and_b32 v36, 15, v1')
        a.emit(f's_cmp_eq_u32 s{S_WV}, 0')
        a.emit('s_cselect_b32 s3, 0, 576')
        a.emit(f's_add_u32 s3, s3, {LST}')
        a.emit('v_lshl_add_u32 v36, v36, 2, s3')
        for (sm, sq) in SA:
            a.emit(f'v_cndmask_b32 v{sm+1}, v{sq}, v{sq+1}, s[4:5]')
        for (sm, sq) in SA:
            a.emit(f'v_cndmask_b32 v{sm+1}, v{sm+1}, v{sq+2}, s[6:7]')
        for (sm, sq) in SA:
            a.emit(f'v_cndmask_b32 v{sm+1}, v{sm+1}, v{sq+3}, s[8:9]')
        for (sm, sq) in SA: stats_finish(a, sm)
        a.emit('s_mov_b64 exec, s[10:11]')
        a.emit(f'ds_write2_b32 v35, v{SA[0][0]}, v{SA[0][0]+1} offset0:16 offset1:176')
        a.emit(f'ds_write2_b32 v35, v{SA[1][0]}, v{SA[1][0]+1} offset0:32 offset1:192')
        a.emit(f'ds_write2_b32 v36, v{SA[2][0]}, v{SA[2][0]+1} offset0:0 offset1:160')
        a.emit('s_mov_b64 exec, -1')
        if XD:
            res_addr(a, S_WV, SX, 32)
        a.emit('s_waitcnt lgkmcnt(0)')
        if XD:
            for i in range(4):
                a.emit(f'buffer_load_dwordx4 v[{240+4*i}:{243+4*i}], v32, s[{SX}:{SX+3}], s{3+(i>>1)} offen offset:{64*(i&1)}')
        a.emit('s_barrier')
    own = lambda s: [mfma(acc(jn, jm), *((fw(s, jn), fx(s, jm)) if jn < 4 else (fx(s, jm), fw(s, jn))), None if s else '0') for jn, jm in mf_order(6, 4)]
    hw = lambda ks, c: fw(1, 2 * c) if ks else fx(1, c)
    hal = ([f'v_mov_b32 v{fx(1,c)+i}, v{fw(0,2*c)+i}' for c in range(3) for i in range(4)],
           [f'ds_read_b128 v[{fx(1,3+ks)}:{fx(1,3+ks)+3}], v{VA+4+ks} offset:{HX - XH - STAGE}' for ks in range(2)],
           [mfma(HACC + 4 * c, *((hw(ks, c), fx(1, 3 + ks)) if c < 2 else (fx(1, 3 + ks), hw(ks, c))), None if ks else '0') for ks in range(2) for c in range(3)])
    hooks = None
    if DS:
        HK = [int(x) for x in ENV('HK', '-1,-2,-4,-5,11,13').split(',')]
        def dots(s):
            o = [f's_cmp_lg_u32 s{S_WN}, 0', f's_cbranch_scc1 L_{kind}_dot{s}']
            for hh in range(2):
                for j in range(8):
                    r = fx(s, 2 * hh) + (j >> 1) + 4 * (j & 1)
                    o += [f'v_dot2_f32_bf16 v{122+(j&1)}, v{r}, s7, v{122+(j&1)}', f'v_dot2_f32_bf16 v{124+(j&1)}, v{r}, v{r}, v{124+(j&1)}']
                o += [f'L_{kind}_dote{s}:'] if hh else [f's_branch L_{kind}_dote{s}', f'L_{kind}_dot{s}:']
            return o
        h1 = dots(1) + ['s_nop 2', 'v_permlane32_swap_b32 v122, v123', 'v_permlane32_swap_b32 v124, v125', 'v_add_f32 v122, v122, v123', 'v_add_f32 v124, v124, v125',
               'v_mov_b32 v126, 1', 's_nop 0', 'v_permlane16_swap_b32 v122, v124', 'v_add_f32 v122, v122, v124', f'buffer_store_dword v122, v120, s[{ST}:{ST+3}], 0 offen sc1']
        w0 = [f's_cmp_lg_u32 s{S_WV}, 0', f's_cbranch_scc1 L_{kind}_loop']
        pl = f'buffer_load_dword v127, v121, s[{SC}:{SC+3}], 0 offen sc1'
        b = Asm(); res_addr(b, S_WV, SX, 122); rs = [l.strip() for l in b.lines] + res_loads(240, 122, SX)
        hooks = list(zip(HK + [int(ENV('HKR', '14'))], [dots(0), h1, ['s_waitcnt vmcnt(0)'],
            w0 + [f's_lshl4_add_u32 s3, s{S_MT}, s{S_NT}', 's_mov_b64 exec, 1', f'buffer_store_byte v126, off, s[{SC}:{SC+3}], s3 sc1', 's_mov_b64 exec, -1'], w0 + [pl],
            w0 + ['s_mov_b32 s5, 0x100000', 'L_attn_chkl:', 's_waitcnt vmcnt(0)', 'v_cmp_ne_u32 vcc, 0x01010101, v127', f's_cbranch_vccz L_{kind}_loop',
                  pl, 's_sub_u32 s5, s5, 1', 's_cbranch_scc0 L_attn_chkl'], rs]))
        assert HK[:2] == [-1, -2]
    assert ot or not DS
    big_loop(a, kind, N, S, STAGE, 6, VB, VA, reads, mf, variants=None if DS else {'a': mfv(0), 'b': mfv(1)}, select=select, post=post, mid=mid, hooks=hooks,
             ot=own if ot else None, halo=hal if ot else None)
    PR = 32
    CS = 48
    CV = 64
    MS = 66
    RK = 76
    M4 = 84
    R4 = 104
    VV = [4 if XD else 240, 224]
    for b in range(5):
        a.emit(f'ds_read2_b32 v[{MS+2*b}:{MS+2*b+1}], v{VS1} offset0:{16*b} offset1:{160+16*b}')
    for p in range(2):
        a.emit(f'ds_read2_b32 v[{RK+2*p}:{RK+2*p+1}], v{VKA} offset0:{32*p} offset1:{32*p+16}')
        a.emit(f'ds_read2_b32 v[{RK+4+2*p}:{RK+5+2*p}], v{VKB} offset0:{32*p} offset1:{32*p+16}')
    for c in range(3):
        a.emit(f'ds_write_b128 v{VXW}, v[{HACC+4*c}:{HACC+4*c+3}] offset:{2048*c}')
    a.emit(f's_cmp_eq_u32 s{S_WM}, 1')
    a.emit(f's_cbranch_scc1 L_{kind}_nop3')
    for t in range(2, 6):
        a.emit(f'ds_write_b128 v{VXW}, v[{acc(t,3)}:{acc(t,3)+3}] offset:{6144+1024*t}')
    a.label(f'L_{kind}_nop3')
    for b in range(5):
        a.emit(f'ds_read_b128 v[{M4+4*b}:{M4+4*b+3}], v{VS4} offset:{64*b}')
        a.emit(f'ds_read_b128 v[{R4+4*b}:{R4+4*b+3}], v{VS4} offset:{640+64*b}')
    a.emit('s_waitcnt lgkmcnt(10)')
    a.emit('s_barrier')
    for t in range(4):
        a.emit(f'ds_read_b128 v[{CS+4*t}:{CS+4*t+3}], v{VCO if t&1 else VCE} offset:{1024*t}')
    for t in range(2):
        a.emit(f'ds_read_b32 v{CV+t}, v{VVO if t else VVE} offset:{4096+1024*t}')
    for t in range(4):
        a.emit(f'ds_read_b128 v[{PR+4*t}:{PR+4*t+3}], v{VPO if t&1 else VPE} offset:{2048+1024*t}')
    sc = 32 ** -0.5 * 1.4426950408889634
    for b in range(4):
        a.emit(f'v_mul_f32 v{MS+2*b+3}, {f2u(sc):#x}, v{MS+2*b+3}')
    for b in range(4):
        a.emit(f'v_mul_f32 v{RK+b}, v{RK+b}, v{MS+2*b+3}')
        a.emit(f'v_mul_f32 v{RK+4+b}, v{RK+4+b}, v{MS+2*b+3}')
    a.emit('s_waitcnt lgkmcnt(6)')
    def qk(x, y, cs, b, d):
        m = f'v[{MS+2*b}:{MS+2*b+1}]'
        for (z, c) in ((x, cs), (y, cs + 4)):
            for h in range(2):
                a.emit(f'v_pk_fma_f32 v[{z+2*h}:{z+2*h+1}], v[{c+2*h}:{c+2*h+1}], {m}, v[{z+2*h}:{z+2*h+1}] op_sel:[0,0,0] op_sel_hi:[1,0,1] neg_lo:[0,1,0] neg_hi:[0,1,0]')
        a.emit(f'v_cvt_pk_bf16_f32 v{d}, v{x}, v{x+1}')
        a.emit(f'v_cvt_pk_bf16_f32 v{d+1}, v{x+2}, v{x+3}')
        a.emit(f'v_cvt_pk_bf16_f32 v{d+2}, v{y}, v{y+1}')
        a.emit(f'v_cvt_pk_bf16_f32 v{d+3}, v{y+2}, v{y+3}')
    Q = lambda b: acc(0, b); Kf = lambda b: acc(2, b) if b >= 0 else PR
    Sc = lambda b: acc(1, b); Sp = lambda b: acc(3, b)
    for b in range(4):
        qk(acc(0, b), acc(1, b), CS, b + 1, Q(b))
        qk(acc(2, b), acc(3, b), CS + 8, b + 1, Kf(b))
        if b == 3:
            a.emit('s_waitcnt lgkmcnt(0)')
            qk(PR, PR + 4, CS + 8, 0, PR)
        if b >= 1:
            a.emit(mfma(Sc(b - 1), Kf(b - 1), Q(b - 1), '0'))
            if b >= 2: a.emit(mfma(Sp(b - 1), Kf(b - 2), Q(b - 1), '0'))
    a.emit(mfma(Sc(3), Kf(3), Q(3), '0'))
    a.emit(mfma(Sp(3), Kf(2), Q(3), '0'))
    a.emit(mfma(Sp(0), Kf(-1), Q(0), '0'))
    def vconv(x, t, b):
        cv = f'v[{CV}:{CV+1}]'
        for h in range(2):
            a.emit(f'v_pk_fma_f32 v[{x+2*h}:{x+2*h+1}], v[{M4+4*b+2*h}:{M4+4*b+2*h+1}], {cv}, v[{x+2*h}:{x+2*h+1}] op_sel:[0,{t},0] op_sel_hi:[1,{t},1] neg_lo:[1,0,0] neg_hi:[1,0,0]')
        for h in range(2):
            a.emit(f'v_pk_mul_f32 v[{x+2*h}:{x+2*h+1}], v[{x+2*h}:{x+2*h+1}], v[{R4+4*b+2*h}:{R4+4*b+2*h+1}]')
        for h in range(2):
            a.emit(f'v_cvt_pk_bf16_f32 v{VV[t]+2*b+h}, v{x+2*h}, v{x+2*h+1}')
    for t in range(2):
        vconv(PR + 8 + 4 * t, t, 0)
        for b in range(4): vconv(acc(4 + t, b), t, b + 1)
    T = lambda b: 32 + 4 * b
    odd = f's[{M_ODD}:{M_ODD+1}]'
    for b in (1, 2, 3, 0):
        a.emit(f'v_cndmask_b32 v{Sc(b)}, v{Sc(b)}, v{Sc(b)+1}, {odd}')
        a.emit(f'v_cndmask_b32 v{Sp(b)}, v{Sp(b)}, v{Sp(b)+1}, {odd}')
        a.emit(f'v_cndmask_b32 v{Sc(b)+2}, v{Sc(b)+2}, v{Sc(b)+3}, {odd}')
        a.emit(f'v_cndmask_b32 v{Sp(b)+2}, v{Sp(b)+2}, v{Sp(b)+3}, {odd}')
        a.emit(f'v_cndmask_b32 v{T(b)}, v{Sc(b)}, v{Sp(b)}, s[{M_UPA}:{M_UPA+1}]')
        a.emit(f'v_cndmask_b32 v{T(b)+1}, v{Sc(b)+2}, v{Sp(b)+2}, s[{M_UPB}:{M_UPB+1}]')
        a.emit(f'v_mul_f32 v{T(b)}, v{T(b)}, v{RK+b}')
        a.emit(f'v_mul_f32 v{T(b)+1}, v{T(b)+1}, v{RK+4+b}')
    a.emit(f'v_mov_b32 v48, {f2u(-1e9 * 1.4426950408889634):#x}')
    a.emit(f'v_cndmask_b32 v{T(0)}, v{T(0)}, v48, s[{M_FA}:{M_FA+1}]')
    a.emit(f'v_cndmask_b32 v{T(0)+1}, v{T(0)+1}, v48, s[{M_FB}:{M_FB+1}]')
    for b in range(4): a.emit(f'v_max_f32 v{T(b)+2}, v{T(b)}, v{T(b)+1}')
    for op in ('32', '16'):
        for b in range(4): a.emit(f'v_mov_b32 v{T(b)+3}, v{T(b)+2}')
        for b in range(4): a.emit(f'v_permlane{op}_swap_b32 v{T(b)+2}, v{T(b)+3}')
        for b in range(4): a.emit(f'v_max_f32 v{T(b)+2}, v{T(b)+2}, v{T(b)+3}')
    for b in range(4):
        a.emit(f'v_sub_f32 v{T(b)}, v{T(b)}, v{T(b)+2}')
        a.emit(f'v_sub_f32 v{T(b)+1}, v{T(b)+1}, v{T(b)+2}')
    for b in range(4):
        a.emit(f'v_exp_f32 v{T(b)}, v{T(b)}')
        a.emit(f'v_exp_f32 v{T(b)+1}, v{T(b)+1}')
    P = lambda b: acc(0, b)
    for b in range(4):
        a.emit(f'v_cvt_pk_bf16_f32 v{T(b)}, v{T(b)}, v{T(b)}')
        a.emit(f'v_cvt_pk_bf16_f32 v{T(b)+1}, v{T(b)+1}, v{T(b)+1}')
        a.emit(f'v_and_b32 v{P(b)}, v{T(b)}, v{MAP}')
        a.emit(f'v_and_b32 v{P(b)+1}, v{T(b)+1}, v{MBP}')
        a.emit(f'v_and_b32 v{P(b)+2}, v{T(b)}, v{MAC}')
        a.emit(f'v_and_b32 v{P(b)+3}, v{T(b)+1}, v{MBC}')
        if b >= 1:
            q = b - 1
            a.emit(mfma(acc(1, q), ONES, P(q), '0'))
            a.emit(mfma(acc(4, q), VV[0] + 2 * q, P(q), '0'))
            a.emit(mfma(acc(5, q), VV[1] + 2 * q, P(q), '0'))
    q = 3
    a.emit(mfma(acc(1, q), ONES, P(q), '0'))
    a.emit(mfma(acc(4, q), VV[0] + 2 * q, P(q), '0'))
    a.emit(mfma(acc(5, q), VV[1] + 2 * q, P(q), '0'))
    for b in range(4):
        r = acc(1, b); d = 48 + 4 * b
        a.emit(f'v_rcp_f32 v{r}, v{r}')
        a.emit(f's_mov_b32 s3, {b * 16 * 2048}')
        for t in range(2):
            x = acc(4 + t, b)
            for h in range(2):
                a.emit(f'v_pk_mul_f32 v[{x+2*h}:{x+2*h+1}], v[{x+2*h}:{x+2*h+1}], v[{r}:{r+1}] op_sel_hi:[1,0]')
        for t in range(2):
            x = acc(4 + t, b)
            for h in range(2):
                a.emit(f'v_cvt_pk_bf16_f32 v{d+2*t+h}, v{x+2*h}, v{x+2*h+1}')
        a.emit('s_nop 1')
        a.emit(f'v_permlane16_swap_b32 v{d}, v{d+2}')
        a.emit(f'v_permlane16_swap_b32 v{d+1}, v{d+3}')
        a.emit(f'buffer_store_dwordx4 v[{d}:{d+3}], v{VO}, s[{SO}:{SO+3}], s3 offen{stf(kind)}')
    compute_end(a, kind)
    a.label(f'L_{kind}_loader')
    L = Loader(a, kind, K, lda2, ldw2, [0, 2048, 4096], 128, S, STAGE, halo=XH, rot=int(ENV('ROT_QKV', '0')))
    L.skip = DS
    L.setup()
    a.emit('s_waitcnt lgkmcnt(0)')
    srd_xs(a, SX); srd(a, SW, 'wqkv', 0, 1024 * 6144)
    import sides
    fill = []
    if ENV('DX', '2') == '1' and ENV('CLP', 'e') == 'l':
        a.emit('s_and_b32 s3, s2, 3')
        a.emit(f's_and_b32 s4, s{S_CU}, 3')
        a.emit('s_lshl2_add_u32 s3, s3, s4')
        a.emit('s_bfe_u32 s4, s2, 0x10002')
        a.emit(f's_lshr_b32 s5, s{S_CU}, 2')
        a.emit('s_lshl1_add_u32 s4, s5, s4')
        a.emit('s_lshl4_add_u32 s3, s3, s4')
        a.emit(f's_and_b32 s4, s{S_WV}, 3')
        a.emit('s_lshl2_add_u32 s3, s3, s4')
        a.emit('s_lshl_b32 s3, s3, 12')
        srd(a, SB, 'ws', WS_XP, 0 if 'fill0' in DBG else 4096)
        if 'fillfl' in DBG:
            srd(a, SB, 'ws0', WS_FL + MB, 4096)
            a.emit('s_and_b32 s3, s3, 0xfffff')
        a.emit(f's_add_u32 s{SB}, s{SB}, s3')
        a.emit(f's_addc_u32 s{SB+1}, s{SB+1}, 0')
        FW_ = int(ENV('FILLW', '2'))
        a.emit(f'v_mul_u32_u24 v29, {4 * FW_}, v1')
        for i in range(4): a.emit(f'v_mov_b32 v{24+i}, -1')
        fill = [f'buffer_store_dword{"x" + str(FW_)} v[24:{23 + FW_}], v29, s[{SB}:{SB+3}], 0 offen' + ('' if 'fillwb' in DBG else ' sc1'), f'v_add_u32 v29, {256 * FW_}, v29']
        assert sides.STV[3] == 0
    a.emit(f's_cmp_lg_u32 s{S_LAYER}, 0')
    a.emit(f's_cbranch_scc1 L_{kind}_ld1')
    post = list(sides.stouch_post(a, kind)) + fill
    TG_ = int(ENV('TLBG', '0'))
    if TG_:
        srd(a, SO, 'ws0', 0, 256 * MB)
        a.emit(f's_and_b32 s3, s{S_WV}, 3')
        a.emit(f's_lshl2_add_u32 s3, s{S_CU}, s3')
        a.emit(f's_lshl_b32 s86, s3, {TG_}')
        tl = [f's_buffer_load_dword s84, s[{SO}:{SO+3}], s86', f's_add_u32 s86, s86, {128 << TG_}']
        if TG_ < 21: post += tl
    extra = tail_parks('wo', SP, lambda b: srd(b, SP, 'wo', 0, 2 * MB))
    sch0 = [int(c) for c in ENV('TSO0', '00000')]
    extra0 = tail_parks('wo', SP, lambda b: srd(b, SP, 'wo', 0, 2 * MB), sch0 + [sum(TSCH['wo']) - sum(sch0)])
    npk = 2 * sum(TSCH['wo']) if XD else 0
    def start():
        sides.cls_touch(a)
        if TG_:
            for x in tl: a.emit(x)
            a.emit(f's_and_b32 s3, s{S_WV}, 3')
            a.emit(f's_lshl2_add_u32 s3, s{S_CU}, s3')
            for w, sz in (('out', 4 * MB), ('wo', 2 * MB), ('w1', 7 * MB), ('b1', 4096), ('b2', 2048)):
                srd(a, SC, w, 0, sz)
                a.emit(f's_mul_i32 s4, s3, {sz // 128}')
                a.emit(f's_buffer_load_dword s84, s[{SC}:{SC+3}], s4')
        if ENV('DX', '2') != '1' or ENV('CLP', 'e') != 's': return 0
        srd(a, ST, 'ws0', WS_XP, LSTR + 4 * MB)
        a.emit('s_and_b32 s3, s2, 3')
        a.emit(f's_and_b32 s4, s{S_CU}, 3')
        a.emit('s_lshl2_add_u32 s3, s3, s4')
        a.emit('s_bfe_u32 s4, s2, 0x10002')
        a.emit(f's_lshr_b32 s5, s{S_CU}, 2')
        a.emit('s_lshl1_add_u32 s4, s5, s4')
        a.emit('s_lshl4_add_u32 s3, s3, s4')
        a.emit(f's_and_b32 s4, s{S_WV}, 3')
        a.emit('s_lshl2_add_u32 s3, s3, s4')
        a.emit('s_lshl_b32 s3, s3, 12')
        a.emit(f's_add_u32 s4, s3, {LSTR}')
        a.emit('v_lshlrev_b32 v2, 4, v1')
        for i in range(4): a.emit(f'v_mov_b32 v{32+i}, -1')
        for i in range(8): a.emit(f'buffer_store_dwordx4 v[32:35], v2, s[{ST}:{ST+3}], s{3+(i>>2)} offen offset:{1024*(i&3)} sc1')
        return 8
    final0 = None
    TL0 = int(ENV('TL0', '1' if DS else '0'))
    if DS:
        STQ0 = int(ENV('STQ0', '14'))
        assert HK[-1] < STQ0 <= 13 + TL0
        def start():
            sides.cls_touch(a)
            srd(a, ST, 'ws0', WS_ST0, 16 * 16384)
            stats4_setup(a, True)
            return 0
        extra0 = lambda i: stats4_loads(32, True) if i == STQ0 else []
        def final0():
            a.emit(f"s_waitcnt vmcnt({side(Asm(), 0, 'issue')})")
            stats4_store(a, 32, LST, True)
            a.emit('s_waitcnt lgkmcnt(0)')
    L.run('0', tail_issue=lambda: side(a, 0, 'issue'), ntail_vm=side(Asm(), 0, 'issue'), post=post, start=start, extra=extra0, tail_late=TL0, final=final0, exfirst=True)
    for i in (16,) if DS else (16, 17):
        if XD:
            for x in extra0(i): a.emit(x)
        a.emit('s_barrier')
    if XD:
        for x in extra0(18): a.emit(x)
    if ONE:
        a.emit(f's_branch L_{kind}_ldend')
    else:
        side(a, 0, 'finish')
        a.emit('s_endpgm')
    a.label(f'L_{kind}_ld1')
    if ',' in L.kord():
        L.ktable(int(L.kord().split(',')[1]))
        L.ot = int(ot); L.hx = HX - XH
        for x in ([] if ot else L.knext()): a.emit(x)
    srd(a, ST, 'ws0', WS_ST2, 16 * 16384)
    n1 = side(Asm(), 1, 'issue')
    def tail1():
        stats_loads(a, 32, True)
        side(a, 1, 'issue')
    def final1():
        a.emit(f's_waitcnt vmcnt({n1 + npk})')
        stats_reduce_store(a, 32, LST)
        a.emit('s_waitcnt lgkmcnt(0)')
    if T4:
        stats4_setup(a, True)
        TL1 = int(ENV('TL1', '0'))
        def final4():
            a.emit(f"s_waitcnt vmcnt({n1 if int(ENV('STQ', '14')) < 13 + TL1 < 15 else 0})")
            stats4_store(a, 32, LST, True)
            a.emit('s_waitcnt lgkmcnt(0)')
        L.run('1', tail_issue=lambda: side(a, 1, 'issue'), ntail_vm=n1, tail_late=TL1, final=final4, extra=lambda i: stats4_loads(32, True) if i == int(ENV('STQ', '14')) else [],
              post=fill, dep=lambda pf: dep_wait(a, kind, halo=True, postf=pf, pref=(lambda: a.emit('s_waitcnt vmcnt(0)')) if ot else None))
    else: L.run('1', tail_issue=tail1, ntail_vm=16 + n1, final=final1, extra=extra, post=fill, dep=(lambda pf: dep_wait(a, kind, halo=True, postf=pf)) if MEGA else None)
    a.emit('s_barrier')
    if not MEGA: side(a, 1, 'finish')
    a.label(f'L_{kind}_ldend')
    loader_end(a, kind, check=False)
    a.label(end)
    a.emit('s_endpgm')
    loader_first(a, kind)
    a(KD.format(name=f'{kind}l0_kernel'))
    if not MEGA:
        stub(a, f'{kind}l1_kernel', body, 1, tsidx + 4, False)
        a(KD.format(name=f'{kind}l1_kernel'))
    a.label(f'L_{kind}_c1')
    return LST + 1280
```

```python
import sys, os, struct
sys.path.insert(0, os.path.join(os.path.dirname(os.path.abspath(__file__)), '..'))
from asmlib import Asm, check_offsets
MB = 1 << 20
WSB = int(os.environ.get('WSB', '0')) * MB
WS_O   = WSB
WS_X1  = WSB + 4 * MB
WS_H   = WSB + 8 * MB
WS_ST  = WSB + 23 * MB
WS_CS  = WSB + 23 * MB + 512 * 1024
WS_ST0 = WSB + 23 * MB + 768 * 1024
D2 = os.environ.get('DS', '2') == '2'
DS = os.environ.get('DS', '2') in '12'
WS_TS  = 60 * MB
MEGA = os.environ.get('MEGA', '2') in ('1', '2')
ONE = os.environ.get('MEGA', '2') == '2'
LSTR = 64 * MB
WS_ST2 = WS_ST + 256 * 1024 if MEGA else WS_ST
WS_FL = WSB + 40 * MB
FLS = 524288
REP = int(os.environ.get('REP', '16'))
WS_XP = WSB + 24 * MB
WS_X2 = WSB + 32 * MB
XPAD = int(os.environ.get('XPAD', '128')) if MEGA else 0
f2u = lambda f: struct.unpack('<I', struct.pack('<f', f))[0]
ENV = os.environ.get
TS = ENV('TS', '')
DBG = ENV('DBG', '').split(',')
EARLY = int(ENV('EARLY', '0')) if MEGA and ENV('SPLIT', '0') == '0' else 0
def stf(kind): return (' ' + ENV('WTF', 'sc1')) if kind in ENV('WT', 'attn,wo,w2,w1').split(',') else ''

KA = {'A_x': 0, 'wqkv': 8, 'wo': 16, 'w1': 32, 'b1': 40, 'w2': 48, 'b2': 56, 'out': 64, 'ws': 80}
P_IN = 16
P_OUT = 32; P_WS = 34
P_XS = 12
PTR = {'A_x': 16, 'wqkv': 18, 'wo': 20, 'w1': 24, 'b1': 26, 'w2': 28, 'b2': 30, 'out': 32, 'ws': 34, 'xs': 12, 'ws0': 22}
SX, SW, SO, SR, SB, ST, SP, SC = 36, 40, 44, 48, 52, 56, 60, 64
S_MT, S_NT, S_WV, S_WM, S_WN = 68, 69, 70, 71, 72
S_KX, S_KW, S_SLOT, S_XD, S_WD, S_HD, S_CNT = 73, 74, 75, 76, 77, 78, 79
S_LAYER = 96; S_TSI = 97; S_T = 98; S_CU = 99; S_XG = 100; S_KT = 101

KD = '''.section .rodata,"a"
.p2align 6
.amdhsa_kernel {name}
  .amdhsa_next_free_vgpr 256
  .amdhsa_next_free_sgpr 102
  .amdhsa_accum_offset 256
  .amdhsa_group_segment_fixed_size 0
  .amdhsa_kernarg_size 88
  .amdhsa_user_sgpr_count 2
  .amdhsa_user_sgpr_kernarg_segment_ptr 1
  .amdhsa_system_sgpr_workgroup_id_x 1
  .amdhsa_float_denorm_mode_32 3
  .amdhsa_float_denorm_mode_16_64 3
.end_amdhsa_kernel
.text
'''

def srd(a, sd, which, off, size):
    p = PTR[which]
    if off:
        a.emit(f's_add_u32 s{sd}, s{p}, {off}')
        a.emit(f's_addc_u32 s{sd+1}, s{p+1}, 0')
        a.emit(f's_and_b32 s{sd+1}, s{sd+1}, 0xffff')
    else:
        a.emit(f's_mov_b32 s{sd}, s{p}')
        a.emit(f's_and_b32 s{sd+1}, s{p+1}, 0xffff')
    a.emit(f's_mov_b32 s{sd+2}, {size}')
    a.emit(f's_mov_b32 s{sd+3}, 0x00020000')

def xpitch(a, sd, inv=False):
    a.emit(f's_cmp_eq_u32 s{S_LAYER}, {0 if inv else 1}')
    a.emit(f's_cselect_b32 s{sd}, {XPAD}, 0')
    a.emit(f's_add_u32 s{sd}, s{sd}, 2048')

def srd_xs(a, sd):
    srd(a, sd, 'xs', 0, 4 * MB)
    xpitch(a, sd + 2)
    a.emit(f's_lshl_b32 s{sd+2}, s{sd+2}, 11')

def stub(a, name, body, layer, tsidx, first):
    a(f'.text\n.globl {name}\n.p2align 8\n.type {name},@function\n{name}:')
    if TS:
        stamp(a, 0, nowait=True)
    a.emit('s_load_dwordx4 s[16:19], s[0:1], 0')
    a.emit('s_load_dwordx2 s[20:21], s[0:1], 16')
    a.emit('s_load_dwordx2 s[22:23], s[0:1], 80')
    a.emit('s_load_dwordx8 s[24:31], s[0:1], 32')
    a.emit('s_load_dwordx2 s[32:33], s[0:1], 64')
    a.emit('s_load_dwordx2 s[34:35], s[0:1], 80')
    a.emit(f's_load_dwordx2 s[12:13], s[0:1], {0 if layer == 0 else 64}')
    if DS: a.emit(f's_load_dwordx2 s[{SC}:{SC+1}], s[0:1], 72')
    a.emit(f's_mov_b32 s{S_LAYER}, {layer}')
    a.emit(f's_mov_b32 s{S_TSI}, {tsidx}')
    if not first:
        a.emit(f's_branch {body}')

def stamp(a, n, nowait=False):
    if not TS: return
    a.emit(f's_memrealtime s[{80+4*n}:{81+4*n}]')
    a.emit(f's_memtime s[{82+4*n}:{83+4*n}]')
    if not nowait: a.emit('s_waitcnt lgkmcnt(0)')

def stamps_out(a, tag):
    if not TS: return
    if not MEGA: a.emit('s_waitcnt vmcnt(0)')
    stamp(a, 3)
    if MEGA and tag == 'w1':
        for i in range(16): a.emit(f'v_writelane_b32 v31, s{80+i}, {i}')
        return
    srd(a, SP, 'ws0', WS_TS, 1 << 20)
    a.emit('s_lshl_b32 s4, s2, 6')
    a.emit(f's_lshl_b32 s5, s{S_TSI}, 16')
    a.emit('s_add_u32 s4, s4, s5')
    a.emit('v_mov_b32 v1, s4')
    for i in range(16): a.emit(f'v_mov_b32 v{4+i}, s{80+i}')
    a.emit('v_cmp_eq_u32 vcc, 0, v0')
    a.emit('s_and_saveexec_b64 s[6:7], vcc')
    a.emit(f's_cbranch_execz L_tsskip_{tag}')
    for j in range(4):
        a.emit(f'buffer_store_dwordx4 v[{4+4*j}:{7+4*j}], v1, s[{SP}:{SP+3}], 0 offen offset:{16*j}' + (' sc1' if ENV('DIAG') else ''))
    if MEGA and tag == 'w2':
        a.emit('s_mov_b64 exec, 0xffff')
        a.emit('s_sub_u32 s4, s4, 0x10000')
        a.emit('v_lshlrev_b32 v1, 2, v0')
        a.emit(f'buffer_store_dword v31, v1, s[{SP}:{SP+3}], s4 offen' + (' sc1' if ENV('DIAG') else ''))
    a.label(f'L_tsskip_{tag}')
    a.emit('s_mov_b64 exec, -1')

SPX = ENV('SPX', '1') == '1'
OT = ENV('OT', 'w1,w2,attn').split(',')
S_T0 = 91
OHB = 114688; OBIA = [10, 24, 124, 126]
NV = int(ENV('NV', '0'))
EX = int(ENV('EX', '14'))
LSTK = ENV('LSTK', 'w2')
LREG = [52, 54, 56, 58] if LSTK == 'w2' else [36, 38, 48, 50] if LSTK == 'wo' else [80, 82, 48, 50]
def lstamp(a, n, dep=False):
    if dep and (ENV('LST') == 'x' or LSTK != 'w2'): return
    if TS: a.emit(f's_memrealtime s[{LREG[n]}:{LREG[n]+1}]')

def lstamps_out(a, tag):
    if not TS: return
    a.emit(f"s_cmp_lg_u32 s{S_WV}, {ENV('PW_' + tag.upper(), '4')}")
    a.emit(f's_cbranch_scc1 L_ltsskip_{tag}')
    a.emit('s_waitcnt lgkmcnt(0)')
    srd(a, SP, 'ws0', WS_TS + 16384, 1 << 20)
    a.emit('s_lshl_b32 s4, s2, 6')
    a.emit(f's_lshl_b32 s5, s{S_TSI}, 16')
    a.emit('s_add_u32 s4, s4, s5')
    for i in range(8): a.emit(f'v_writelane_b32 v20, s{LREG[i>>1]+(i&1)}, {i}')
    a.emit('v_lshlrev_b32 v21, 2, v1')
    a.emit('s_mov_b64 exec, 0xff')
    a.emit(f'buffer_store_dword v20, v21, s[{SP}:{SP+3}], s4 offen')
    a.emit('s_mov_b64 exec, -1')
    a.label(f'L_ltsskip_{tag}')

def tile_map(a, LM, endlab, pair=False):
    if endlab:
        a.emit('s_cmp_ge_u32 s2, 256')
        a.emit(f's_cbranch_scc1 {endlab}')
        a.emit('v_lshrrev_b32 v2, 6, v0')
        a.emit('v_and_b32 v1, 63, v0')
        a.emit(f'v_readfirstlane_b32 s{S_WV}, v2')
    a.emit('s_and_b32 s3, s2, 7')
    if endlab: a.emit(f's_lshr_b32 s{S_CU}, s2, 3')
    if LM == 2 and ENV('MAP2', '0') == '1':
        a.emit('s_lshl_b32 s5, s3, 1')
        a.emit('s_lshr_b32 s6, s3, 1')
        a.emit('s_and_b32 s5, s5, 2')
        a.emit('s_and_b32 s6, s6, 1')
        a.emit('s_or_b32 s5, s5, s6')
    else: a.emit(f's_and_b32 s5, s3, {(1 << (4 - LM)) - 1}')
    a.emit(f's_lshl_b32 s5, s5, {LM}')
    a.emit(f's_and_b32 s6, s{S_CU}, {(1 << LM) - 1}')
    a.emit(f's_add_u32 s{S_MT}, s5, s6')
    a.emit(f's_lshr_b32 s5, s3, {4 - LM}')
    if pair:
        a.emit(f's_lshr_b32 s{S_HD}, s{S_CU}, {LM}')
        a.emit(f's_lshl1_add_u32 s{S_NT}, s{S_HD}, s5')
        return
    a.emit(f's_lshl_b32 s5, s5, {5 - LM}')
    a.emit(f's_lshr_b32 s6, s{S_CU}, {LM}')
    a.emit(f's_add_u32 s{S_NT}, s5, s6')
    if 'smallm' in DBG: a.emit(f's_and_b32 s{S_MT}, s{S_MT}, 1')
    if 'smalln' in DBG: a.emit(f's_and_b32 s{S_NT}, s{S_NT}, 1')

def interleave(a, main, side, lead=1, per=1):
    si = 0
    for i, m in enumerate(main):
        a.emit(m)
        if i + 1 >= lead:
            for _ in range(per):
                if si < len(side): a.emit(side[si]); si += 1
    while si < len(side): a.emit(side[si]); si += 1

PO0, POM = [int(x) for x in ENV('PO', '1,3').split(',')]
KSH = int(ENV('KSH', '0')); LAT = int(ENV('LAT', '0'))
def own_pos(a, sd):
    a.emit(f's_and_b32 s{sd}, s{S_NT}, {POM}')
    a.emit(f's_add_u32 s{sd}, s{sd}, {PO0}')

class Loader:
    VXD = 4; VWD = 8; VXH = 28
    def __init__(self, a, tag, K, lda2, ldw2, panels, colbase, S, STAGE, halo=None, delta=0, rot=None, xblk=False, half=0):
        self.a = a; self.tag = tag; self.K = K; self.lda2 = lda2; self.ldw2 = ldw2; self.panels = panels
        self.colbase = colbase; self.S = S; self.STAGE = STAGE; self.halo = halo; self.delta = delta; self.xblk = xblk; self.rot = rot if rot is not None and rot >= 0 else None
        self.NSTEP = K // 64; self.half = half; self.ot = 0; self.skip = False
        self.per = 4 + 2 * len(panels) + (1 if halo is not None else 0)
    def setup(self):
        a = self.a
        if ENV('PRIO', '0') != '0': a.emit(f"s_setprio {ENV('PRIO')}")
        a.emit(f's_add_u32 s8, s{S_WV}, s{S_NT}')
        a.emit('s_and_b32 s8, s8, 3')
        a.emit(f's_add_u32 s9, s{S_WV}, s{S_MT}')
        a.emit('s_and_b32 s9, s9, 3')
        a.emit(f's_lshl_b32 s{S_XD}, s8, 12')
        a.emit(f's_lshl_b32 s{S_WD}, s9, 11')
        a.emit(f's_add_u32 s{S_WD}, s{S_WD}, 16384')
        a.emit(f's_lshl_b32 s11, s{S_MT}, 7')
        a.emit('v_and_b32 v10, 7, v1')
        if self.xblk: self.xoff_blk(self.lda2)
        else: self.xoff_rows(self.lda2)
        a.emit('v_lshrrev_b32 v3, 3, v1')
        a.emit('s_lshl_b32 s10, s9, 4')
        a.emit('v_add_u32 v3, s10, v3')
        a.emit(f'v_mul_u32_u24 v3, {self.ldw2}, v3')
        a.emit('v_lshrrev_b32 v2, 3, v1')
        a.emit('v_and_b32 v2, 2, v2')
        a.emit('v_xor_b32 v2, v2, v10')
        a.emit(f's_mul_i32 s10, s{S_NT}, {self.colbase}')
        if 'noslow' in DBG and self.tag == 'attn':
            a.emit(f's_bitcmp1_b32 0x0808, s{S_NT}')
            a.emit('s_cselect_b32 s3, 512, 0')
            a.emit('s_add_u32 s10, s10, s3')
        if self.colbase & 127: a.emit('s_andn2_b32 s10, s10, 127')
        a.emit('v_add_u32 v3, s10, v3')
        a.emit(f'v_lshl_add_u32 v{self.VWD}, v2, 4, v3')
        a.emit('v_xor_b32 v2, 4, v2')
        a.emit(f'v_add_u32 v3, {8*self.ldw2}, v3')
        a.emit(f'v_lshl_add_u32 v{self.VWD+1}, v2, 4, v3')
        if self.half:
            a.emit('v_lshrrev_b32 v3, 2, v1')
            a.emit('s_lshl_b32 s10, s9, 4')
            a.emit('v_add_u32 v3, s10, v3')
            a.emit(f'v_mul_u32_u24 v3, {self.ldw2}, v3')
            a.emit('v_lshrrev_b32 v2, 4, v1')
            a.emit('v_and_b32 v2, 2, v2')
            a.emit('v_xor_b32 v2, v2, v1')
            a.emit('v_and_b32 v2, 3, v2')
            a.emit(f's_lshl_b32 s10, s{S_NT}, 6')
            a.emit(f's_add_u32 s10, s10, {self.half}')
            a.emit('v_add_u32 v3, s10, v3')
            a.emit(f'v_lshl_add_u32 v{self.VXH}, v2, 4, v3')
            a.emit(f's_lshl_b32 s{S_HD}, s{S_NT}, 7')
            a.emit(f's_add_u32 s{S_HD}, s{S_HD}, 3072')
        if self.halo is not None:
            a.emit(f's_and_b32 s10, s{S_WV}, 3')
            a.emit(f's_lshl_b32 s{S_HD}, s10, 9')
            a.emit(f's_add_u32 s{S_HD}, s{S_HD}, {self.halo}')
            a.emit('s_lshl_b32 s14, s10, 2')
            a.emit('s_add_u32 s14, s14, s11')
            a.emit('s_sub_u32 s14, s14, 16')
            a.emit('v_lshrrev_b32 v3, 3, v1')
            a.emit('v_add_u32 v3, s14, v3')
            a.emit('v_max_i32 v3, 0, v3')
            a.emit('v_mul_u32_u24 v3, s5, v3')
            a.emit('s_lshl_b32 s14, s10, 1')
            a.emit('v_lshrrev_b32 v2, 4, v1')
            a.emit('v_add_u32 v2, s14, v2')
            a.emit('v_and_b32 v2, 7, v2')
            a.emit('v_xor_b32 v2, v2, v10')
            a.emit(f'v_lshl_add_u32 v{self.VXH}, v2, 4, v3')
            a.emit('s_cmp_eq_u32 s10, 0')
            a.emit('s_cselect_b32 s14, 0xffffff00, -1')
            a.emit('s_mov_b32 s15, 0')
        a.emit(f's_mov_b32 s{S_SLOT}, 0')
        if self.rot is None:
            a.emit(f's_mov_b32 s{S_KX}, 0')
            a.emit(f's_mov_b32 s{S_KW}, 0')
        else:
            if not getattr(self, 'noxg', False): a.emit(f's_add_u32 s{S_XG}, s{S_MT}, s{S_NT}')
            a.emit(f's_mov_b32 s{S_KT}, {0 if EARLY and self.tag == "w2" else -1}')
            ko = int(ENV('KOFF_' + self.tag.upper(), '0'))
            if ko:
                a.emit(f"s_bitcmp1_b32 {ENV('KMSK_' + self.tag.upper(), '0x0808' if self.tag == 'attn' else '0x2aea')}, s{S_NT}")
                a.emit(f's_cselect_b32 s{S_KT}, {ko - 1}, s{S_KT}')
            if self.kord(): self.ktable()
            if self.skip:
                if LAT:
                    a.emit(f's_mul_i32 s3, s{S_MT}, {LAT}')
                    a.emit(f's_add_u32 s3, s3, s{S_NT}')
                    a.emit(f's_and_b32 s{S_T0}, s3, 15')
                elif KSH:
                    a.emit(f's_and_b32 s{S_T0}, s{S_NT}, 3')
                    a.emit(f's_and_b32 s93, s{S_NT}, 12')
                    if KSH == 2:
                        a.emit(f's_and_b32 s3, s{S_MT}, 8')
                        a.emit('s_add_u32 s93, s93, s3')
                else: a.emit(f's_mov_b32 s{S_T0}, s{S_NT}')
                own_pos(a, 92)
                for x in self.knext(): a.emit(x)
            elif not self.ot:
                for x in self.knext(): a.emit(x)
    def kord(self): return ENV('KORD_' + self.tag.upper(), {'w1': '2', 'attn': '0,2'}.get(self.tag, ''))
    def korder(self, g, start):
        D = int(ENV('ROTD_' + self.tag.upper(), ENV('ROTD', '2')))
        o = list(range(16))
        if start < 0:
            dl = {3: [3, -1, -1, -1], 2: [2, -1, -1, 0], 1: [1, -1, 0, 0]}[D]
            return [(t + dl[(t - g) & 3]) & 15 for t in range(16)]
        for t in range(start + g, 16 - D, 4): o[t:t + D + 1] = [t + D] + list(range(t, t + D))
        return o
    def ktable(self, start=None):
        a = self.a
        if start is None: start = int(self.kord().split(',')[0])
        a.emit(f's_add_u32 s3, s{S_MT}, s{S_NT}')
        a.emit('s_and_b32 s3, s3, 3')
        for g in range(4):
            v = sum(k << (4 * i) for i, k in enumerate(self.korder(g, start)))
            if g: a.emit(f's_cmp_eq_u32 s3, {g}')
            for h in range(2):
                a.emit(f's_cselect_b32 s{S_XG+h}, {(v >> (32 * h)) & 0xffffffff:#x}, s{S_XG+h}' if g else f's_mov_b32 s{S_XG+h}, {(v >> (32 * h)) & 0xffffffff:#x}')
    def own(self):
        D = int(ENV('ROTD_' + self.tag.upper(), ENV('ROTD', '2')))
        dl = {3: [3, -1, -1, -1], 2: [2, -1, -1, 0], 1: [1, -1, 0, 0]}[D]
        tbl = sum(((-d) % 16) << (8 * ((r + d) & 3)) for r, d in enumerate(dl))
        assert self.rot == 0 and self.NSTEP == 16
        if self.kord():
            return [f's_lshr_b32 s3, s{S_NT}, 3', f's_and_b32 s{S_KX}, s{S_NT}, 7', f's_lshl1_add_u32 s{S_T0}, s{S_KX}, s3',
                    f's_mul_i32 s{S_KW}, s{S_T0}, {64*self.ldw2}', f's_lshl_b32 s{S_KX}, s{S_T0}, {11 if self.xblk else 7}']
        return [f's_lshr_b32 s3, s{S_NT}, 3', f's_and_b32 s{S_KX}, s{S_NT}, 7', f's_lshl1_add_u32 s{S_KX}, s{S_KX}, s3',
                f's_sub_u32 s3, s{S_KX}, s{S_XG}', 's_lshl_b32 s3, s3, 3', f's_lshr_b32 s3, {tbl:#x}, s3',
                f's_add_u32 s3, s3, s{S_KX}', f's_and_b32 s{S_T0}, s3, 15',
                f's_mul_i32 s{S_KW}, s{S_KX}, {64*self.ldw2}', f's_lshl_b32 s{S_KX}, s{S_KX}, {11 if self.xblk else 7}']
    def xoff_rows(self, ld):
        a = self.a
        a.emit('v_lshrrev_b32 v3, 3, v1')
        a.emit(f's_lshr_b32 s10, s{S_XD}, 7')
        a.emit(f's_lshl_b32 s3, s{S_MT}, 7')
        a.emit('s_add_u32 s10, s10, s3')
        a.emit('v_add_u32 v3, s10, v3')
        xpitch(a, 5)
        a.emit('s_lshl_b32 s6, s5, 3')
        a.emit('v_mul_u32_u24 v3, s5, v3')
        a.emit('v_lshrrev_b32 v2, 4, v1')
        for j in range(4):
            d = self.VXD + j
            if j & 1:
                a.emit(f'v_add_u32 v{d}, 4, v2')
                a.emit(f'v_xor_b32 v{d}, v{d}, v10')
            else:
                a.emit(f'v_xor_b32 v{d}, v2, v10')
            a.emit(f'v_lshl_add_u32 v{d}, v{d}, 4, v3')
            if j < 3: a.emit('v_add_u32 v3, s6, v3')
    def xoff_blk(self, ld):
        a = self.a
        a.emit(f's_lshr_b32 s10, s{S_XD}, 11')
        a.emit(f's_lshl_b32 s3, s{S_MT}, 3')
        a.emit('s_add_u32 s10, s10, s3')
        a.emit(f's_mul_i32 s10, s10, {16*ld}')
        a.emit(f'v_lshl_add_u32 v{self.VXD}, v1, 4, s10')
        a.emit(f'v_add_u32 v{self.VXD+1}, {16*ld}, v{self.VXD}')
    def xdma(self, base, imm, sd, soff, blk):
        o = []
        for j in range(4):
            if blk:
                if not j & 1: o += [f's_add_u32 m0, s{base}, {imm + j*1024}', 's_nop 0']
                o.append(f'buffer_load_dwordx4 v{self.VXD+(j>>1)}, s[{sd}:{sd+3}], s{soff} offen offset:{(j&1)*1024} lds')
            else:
                o += [f's_add_u32 m0, s{base}, {imm + j*1024}', 's_nop 0', f'buffer_load_dwordx4 v{self.VXD+j}, s[{sd}:{sd+3}], s{soff} offen lds']
        return o
    def knext(self):
        if self.rot is None:
            return [f's_add_u32 s{S_KX}, s{S_KX}, {2048 if self.xblk else 128}', f's_add_u32 s{S_KW}, s{S_KW}, {64*self.ldw2}']
        if self.kord():
            tb = f's[{S_XG}:{S_XG+1}]'
            o = [f's_and_b32 s{S_KX}, s{S_XG}, 15']
            if self.ot or self.skip: o += [f's_cmp_eq_u32 s{S_KX}, s{S_T0}', f's_cselect_b32 s{S_KW}, 4, 0', f's_lshr_b64 {tb}, {tb}, s{S_KW}', f's_and_b32 s{S_KX}, s{S_XG}, 15']
            if self.skip and not self.ot: o += ['s_sub_u32 s92, s92, 1', f's_cselect_b32 s{S_KX}, s{S_T0}, s{S_KX}', f's_cselect_b32 s{S_KW}, 0, 4'] + ([f's_add_u32 s{S_KX}, s{S_KX}, s93', f's_and_b32 s{S_KX}, s{S_KX}, 15'] if KSH else [])
            return o + [f's_lshr_b64 {tb}, {tb}, ' + (f's{S_KW}' if self.skip and not self.ot else '4'), f's_mul_i32 s{S_KW}, s{S_KX}, {64*self.ldw2}', f's_lshl_b32 s{S_KX}, s{S_KX}, {11 if self.xblk else 7}']
        lc = self.rot; C = 1 << lc; N = self.NSTEP
        o = [f's_add_u32 s{S_KT}, s{S_KT}, 1']
        if self.ot: o += [f's_cmp_eq_u32 s{S_KT}, s{S_T0}', f's_addc_u32 s{S_KT}, s{S_KT}, 0']
        D = int(ENV('ROTD_' + self.tag.upper(), ENV('ROTD', '2')))
        dl = {3: [3, -1, -1, -1], 2: [2, -1, -1, 0], 1: [1, -1, 0, 0]}[D]
        tbl = sum((((d * C) % N) << (8 * i)) for i, d in enumerate(dl))
        if lc: o += [f's_lshr_b32 s{S_KX}, s{S_KT}, {lc}', f's_sub_u32 s{S_KX}, s{S_KX}, s{S_XG}']
        else: o += [f's_sub_u32 s{S_KX}, s{S_KT}, s{S_XG}']
        o += [f's_lshl_b32 s{S_KX}, s{S_KX}, 3',
              f's_lshr_b32 s{S_KX}, {tbl:#x}, s{S_KX}',
              f's_and_b32 s{S_KX}, s{S_KX}, 255',
              f's_add_u32 s{S_KX}, s{S_KX}, s{S_KT}']
        if N & (N - 1) == 0: o += [f's_and_b32 s{S_KX}, s{S_KX}, {N - 1}']
        else: o += [f's_sub_u32 s{S_KW}, s{S_KX}, {N}', f's_cselect_b32 s{S_KX}, s{S_KX}, s{S_KW}']
        o += [f's_mul_i32 s{S_KW}, s{S_KX}, {64*self.ldw2}', f's_lshl_b32 s{S_KX}, s{S_KX}, {11 if self.xblk else 7}']
        return o
    def panels_of(self, t): return self.panels
    def issue_x(self, bx, bh, imm, kx):
        o = self.xdma(bx, imm, SX, kx, self.xblk)
        if self.halo is not None:
            o.append(f's_add_u32 m0, s{S_HD}, {bh}')
            o.append('s_mov_b64 exec, s[14:15]')
            o.append(f'buffer_load_dwordx4 v{self.VXH}, s[{SX}:{SX+3}], s{kx} offen lds')
            o.append('s_mov_b64 exec, -1')
        return o
    def issue_w(self, t, bw, imm):
        o = []
        for pn, goff in enumerate(self.panels_of(t)):
            for i in range(2):
                o.append(f's_add_u32 m0, s{bw}, {imm+pn*8192+i*1024}')
                o.append((goff if str(goff).startswith('s_') else f's_add_u32 s4, s{S_KW}, {goff}') if i == 0 else 's_nop 0')
                o.append(f'buffer_load_dwordx4 v{self.VWD+i}, s[{SW}:{SW+3}], s4 offen lds')
        if self.half:
            o += [f's_add_u32 m0, s{bw}, {imm+len(self.panels)*8192}', 's_nop 0',
                  f'buffer_load_dwordx4 v{self.VXH}, s[{SW}:{SW+3}], s{S_KW} offen lds']
        return o
    def issue(self, t):
        o = [f's_add_u32 s3, s{S_SLOT}, s{S_XD}']
        o += self.issue_x(3, f's{S_SLOT}', 0, S_KX)
        o.append(f's_add_u32 s3, s{S_SLOT}, s{S_WD}')
        o += self.issue_w(t, 3, 0)
        o += self.knext()
        o.append(f's_add_u32 s{S_SLOT}, s{S_SLOT}, {self.STAGE}')
        o.append(f's_cmp_eq_u32 s{S_SLOT}, {self.S*self.STAGE}')
        o.append(f's_cselect_b32 s{S_SLOT}, 0, s{S_SLOT}')
        return o
    def run(self, variant='', tail_issue=None, ntail_vm=0, final=None, post=(), dep=None, tail_late=0, start=None, extra=None, exfirst=False):
        a = self.a; N = self.NSTEP; d = self.S - 1
        tag = self.tag + variant
        nx = 4 + (1 if self.halo is not None else 0)
        nw = lambda t: 2 * len(self.panels_of(t)) + (1 if self.half else 0)
        seq = []
        early = EARLY and self.tag == 'w2'
        pchk = EARLY - 3 - d - 1; piss = pchk - d + 1 - int(ENV('PEARLY', '0'))
        def em(o):
            for x in o:
                if 'nodma' in DBG and x.endswith(' lds'): continue
                a.emit(x)
        def after(t): return len(seq) - 1 - max(i for i, x in enumerate(seq) if x == t)
        def wait(n):
            assert n <= 63, n
            a.emit(f's_waitcnt vmcnt({n})')
        if dep is None:
            for t in range(2): em(self.issue(t)); seq += [t] * (nx + nw(t))
            if start: seq += ['S'] * start()
            wait(after(0))
            a.emit('s_barrier')
            for t in range(2, d): em(self.issue(t)); seq += [t] * (nx + nw(t))
        else:
            prev = {'attn': 'w2', 'wo': 'attn', 'w1': 'wo', 'w2': 'w1'}[self.tag]
            assert 'attn' not in EBAR
            ot = self.ot
            if ot: em(self.own() + [f's_mov_b32 s88, s{S_KX}'] + self.issue_w(0, S_WD, 0) + self.knext()); seq.extend([0] * nw(0))
            dep_pre(a, self.tag)
            if prev in EBAR: a.emit('s_barrier')
            xw = 1 if self.tag in ENV('XW', 'x').split(',') and not hasattr(self, 'P1') else 0
            def prew(ts):
                for t in ts:
                    a.emit(f's_mov_b32 s{88+t}, s{S_KX}')
                    em(self.issue_w(t, S_WD, t * self.STAGE) + self.knext()); seq.extend([t] * nw(t))
            late = int(ENV('LATE_' + self.tag.upper(), '2'))
            if ot: xw = 1
            prew(range(ot, d + xw - late))
            self.npre = len(seq)
            a.emit(f's_mov_b32 s{S_SLOT}, {0 if xw else d * self.STAGE}')
            wag = int(ENV('WAG_' + self.tag.upper(), '0'))
            dep((lambda: prew(range(d + xw - late, d + xw - wag))) if late else None)
            if ot and self.halo is not None: em(self.issue_x(S_XD, self.hx, 0, 88)[-4:]); seq.append(0)
            for t in range(ot, d + xw):
                if t >= d + xw - wag: prew([t])
                em(self.issue_x(S_XD, t * self.STAGE, t * self.STAGE, 88 + t)); seq += [t] * nx
            if ot and ENV('OPRIO'): a.emit('s_setprio 0')
            wait(after(ot))
            if self.tag == 'w2': lstamp(a, 2)
            a.emit('s_barrier')
            if early: late_flag(a)
        ev = [None] * self.ot
        for i in range(self.ot, N):
            t = i + d
            if t in seq: t = N + 9
            if early and i == piss: seq += ['P']
            if t < N: seq += [t] * (nx + nw(t)) + ['Q'] * sum(x.startswith('buffer_') for x in post)
            ex = extra(i) if extra else []
            tl = tail_issue is not None and t == N - 1 + tail_late
            if exfirst: seq += ['E'] * sum(x.startswith('buffer_') for x in ex)
            if tl: seq += ['T'] * ntail_vm
            if not exfirst: seq += ['E'] * sum(x.startswith('buffer_') for x in ex)
            ev.append(((nw(t) if t < N else -1, after(i + 1) if i + 1 < N else -1, tl, early and i == piss, early and i == pchk, tuple(ex)), t))
        i = self.ot; nl = 0
        while i < N:
            j = i
            while j + 1 < N and ev[j + 1][0] == ev[i][0]: j += 1
            n = j - i + 1
            (k, w, tl, pi, pc, ex), t = ev[i]
            if n >= 3:
                nl += 1
                a.emit(f's_mov_b32 s{S_CNT}, {n}')
                a.label(f'L_{tag}_ld{nl}')
            else: j = i
            if pi: a.emit(f'buffer_load_dword v13, v12, s[{SO}:{SO+3}], s86 offen sc1')
            if t < N:
                em(self.issue(t)); em(post)
            if exfirst: em(ex)
            if tl and not ('notail' in DBG and self.tag == 'w1'):
                if ENV('FPRIO'): a.emit('s_setprio 3')
                tail_issue()
                if ENV('FPRIO'): a.emit('s_setprio 0')
            if not exfirst: em(ex)
            if w >= 0: wait(w)
            elif final and 'nofinal' not in DBG:
                if ENV('FPRIO'): a.emit('s_setprio 3')
                final()
                if ENV('FPRIO'): a.emit('s_setprio 0')
            if pc: late_check(a)
            a.emit('s_barrier')
            if n >= 3:
                a.emit(f's_sub_u32 s{S_CNT}, s{S_CNT}, 1')
                a.emit(f's_cmp_lg_u32 s{S_CNT}, 0')
                a.emit(f's_cbranch_scc1 L_{tag}_ld{nl}')
            i = j + 1

XD = ONE and ENV('SPLIT', '0') == '0' and ENV('XD', '1') == '1'
VW = MEGA and ENV('SPLIT', '0') == '0' and ENV('VW', '0') == '1'
NV1 = int(ENV('NV1', '16')); NV2 = int(ENV('NV2', '12')); NVO = int(ENV('NVO', '11'))
S_TB = 85
def rot_table(a, sd, smt, snt, tag):
    D = int(ENV('ROTD_' + tag.upper(), ENV('ROTD', '2')))
    dl = {3: [3, -1, -1, -1], 2: [2, -1, -1, 0], 1: [1, -1, 0, 0], 0: [0, 0, 0, 0]}[D]
    tbl = sum((d & 255) << (8 * i) for i, d in enumerate(dl))
    a.emit(f's_add_u32 s3, s{smt}, s{snt}')
    a.emit('s_lshl_b32 s3, s3, 3')
    a.emit(f's_lshl_b32 s{sd}, {tbl:#x}, s3')
    a.emit('s_sub_u32 s3, 0, s3')
    a.emit(f's_lshr_b32 s3, {tbl:#x}, s3')
    a.emit(f's_or_b32 s{sd}, s{sd}, s3')

def kpos(N, t, sd, tb=S_TB, halves=True, q=None):
    H, p, add = (28, t >> 1, 28 * (t & 1)) if N == 56 and halves else (N, t, 0)
    o = [f's_bfe_i32 s{sd}, s{tb}, {0x80000 + 8 * (p & 3):#x}', f's_add_i32 s{sd}, s{sd}, {p + add}']
    if p == 0: o += [f's_cmp_lt_i32 s{sd}, {add}', f's_cselect_b32 s{sd}, {H - 1 + add}, s{sd}']
    if p + 3 >= H: o += [f's_sub_u32 s3, s{sd}, {H}', f's_cmp_ge_i32 s{sd}, {H + add}', f's_cselect_b32 s{sd}, s3, s{sd}']
    if q is not None:
        if N == 16 or 1 <= t <= 12: o += [f's_add_u32 s{sd}, s{sd}, s{q}', f's_and_b32 s{sd}, s{sd}, 15']
        elif t <= 16 or t + 3 >= N: o += [f's_add_u32 s3, s{sd}, s{q}', 's_and_b32 s3, s3, 15', f's_cmp_lt_u32 s{sd}, 16', f's_cselect_b32 s{sd}, s3, s{sd}']
    return o

S_Q = 86
MROT = ENV('MROT', '1') == '1'
def rot_q(a, sd, smt, sh=0):
    a.emit(f's_and_b32 s{sd}, s{smt}, {3 if MROT else 0}')
    a.emit(f's_lshl_b32 s{sd}, s{sd}, {2 + sh}')

TSCH = {'wo': [int(c) for c in ENV('TSO', '000')], 'w2': [int(c) for c in ENV('TS2', '000')]}
def tail_parks(nxt, sw, mk=None, sch=None):
    if not XD: return None
    sch = sch or TSCH[nxt]; N = 16 if nxt == 'wo' else 56
    def extra(i):
        if i < 13 or not sum(sch): return []
        a = Asm()
        if i == 13:
            if mk: mk(a)
            a.emit('s_and_b32 s5, s2, 3')
            a.emit('s_lshl_b32 s5, s5, 2')
            a.emit(f's_and_b32 s6, s{S_CU}, 3')
            a.emit('s_add_u32 s5, s5, s6')
            a.emit('s_and_b32 s6, s2, 4')
            a.emit('s_lshl_b32 s6, s6, 1')
            a.emit(f's_lshr_b32 s7, s{S_CU}, 2')
            a.emit('s_add_u32 s6, s6, s7')
            rot_table(a, S_TB, 5, 6, nxt)
            rot_q(a, S_Q, 5)
            a.emit(f's_add_u32 s5, s5, s{S_WV}')
            a.emit('s_and_b32 s5, s5, 3')
            wvoff(a, 16, 5, 6, 2048)
        o = [l.strip() for l in a.lines]
        for t in range(sum(sch[:i - 13]), sum(sch[:i - 12])):
            o += kpos(N, t, 4, S_TB, False, S_Q) + ['s_lshl_b32 s4, s4, 17']
            o += [f'buffer_load_dwordx4 v[{128+8*t+4*j}:{131+8*t+4*j}], v{16+j}, s[{sw}:{sw+3}], s4 offen' for j in range(2)]
        return o
    return extra

def vreg(tag, t):
    if tag == 'wo': return (128 + 8 * (t - 5), False) if 5 <= t < 5 + NVO else None
    if t & 1: return None
    p = t >> 1
    if p < NV1: return (128 + 8 * p, True)
    if p < NV1 + NV2: return (32 + 8 * (p - NV1), False)
    return None

def wvoff(a, vd, sqw, snt, ldw2):
    a.emit('v_lshrrev_b32 v3, 3, v1')
    a.emit(f's_lshl_b32 s10, s{sqw}, 4')
    a.emit('v_add_u32 v3, s10, v3')
    a.emit(f'v_mul_u32_u24 v3, {ldw2}, v3')
    a.emit('v_lshrrev_b32 v2, 3, v1')
    a.emit('v_and_b32 v2, 2, v2')
    a.emit('v_xor_b32 v2, v2, v10')
    a.emit(f's_lshl_b32 s10, s{snt}, 7')
    a.emit('v_add_u32 v3, s10, v3')
    a.emit(f'v_lshl_add_u32 v{vd}, v2, 4, v3')
    a.emit('v_xor_b32 v2, 4, v2')
    a.emit(f'v_add_u32 v3, {8*ldw2}, v3')
    a.emit(f'v_lshl_add_u32 v{vd+1}, v2, 4, v3')

def park(N, t, r, vo, sw):
    return kpos(N, t, 4) + ['s_lshl_b32 s4, s4, 17'] + [f'buffer_load_dwordx4 v[{r+4*i}:{r+4*i+3}], v{vo+i}, s[{sw}:{sw+3}], s4 offen' for i in range(2)]

class ULoader(Loader):
    def run(self, variant='', tail_issue=None, ntail_vm=0, final=None, post=(), dep=None):
        a = self.a; N = self.NSTEP; d = self.S - 1; tag = self.tag
        seq = []
        def em(o):
            for x in o:
                if 'nodma' in DBG and x.endswith(' lds'): continue
                a.emit(x)
        def after(t): return len(seq) - 1 - max(i for i, x in enumerate(seq) if x == t)
        def wait(n, lg=False):
            assert n <= 63, n
            a.emit(f's_waitcnt vmcnt({n})' + (' lgkmcnt(0)' if lg else ''))
        def iw(t):
            sl = (t % self.S) * self.STAGE; v = vreg(tag, t)
            if v:
                em([f'v_add_u32 v11, {sl}, v14'] + [f'ds_write_b128 v11, v[{v[0]+4*i}:{v[0]+4*i+3}] offset:{1024*i}' for i in range(2)])
            else:
                em([f's_lshl_b32 s{S_KW}, s{S_KX}, 17'] + [x for x in self.issue_w(t, S_WD, sl)])
                seq.extend([t] * 2)
        def ix(t, k):
            em(self.issue_x(S_XD, None, (t % self.S) * self.STAGE, k)); seq.extend([t] * 4)
        rot_table(a, S_TB, S_MT, S_NT, tag)
        a.emit(f'v_lshl_add_u32 v14, v1, 4, s{S_WD}')
        dep_pre(a, tag)
        for t in range(d):
            em(kpos(N, t, S_KX)); iw(t)
            a.emit(f's_lshl_b32 s{88+t}, s{S_KX}, 11')
        for t in range(d, N):
            v = vreg(tag, t)
            if v and not v[1]:
                em(park(N, t, v[0], self.VWD, SW)); seq.extend(['V'] * 2)
        self.npre = len(seq)
        dep()
        for t in range(d): ix(t, 88 + t)
        wait(after(0), True)
        if tag == 'w2': lstamp(a, 2)
        a.emit('s_barrier')
        for i in range(N):
            t = i + d
            if i % 4 == 0 and post and t < N:
                a.emit('s_waitcnt lgkmcnt(0)')
                em(post)
            if t < N:
                em(kpos(N, t, S_KX)); iw(t)
                a.emit(f's_lshl_b32 s{S_KX}, s{S_KX}, 11')
                ix(t, S_KX)
            if t == N - 1: tail_issue(); seq.extend(['T'] * ntail_vm)
            if i + 1 < N: wait(after(i + 1), not post or t == N)
            else: final()
            a.emit('s_barrier')

EBAR = ENV('EBAR', 'x').split(',')
S_FL = 87
def dep_pre(a, kind, part=None, n=0):
    if ONE and kind in ('wo', 'w1'):
        ld = f'buffer_load_dword v12, v17, s[{SC}:{SC+3}], 0 offen sc1' if kind == 'wo' else f'buffer_load_dwordx4 v[12:15], v17, s[{SO}:{SO+3}], s3 offen sc1'
        if part == 1: a.emit(f's_waitcnt vmcnt({n})')
        a.emit(f's_add_u32 s3, s{S_LAYER}, s{S_WV}')
        a.emit('s_cmp_lg_u32 s3, 4')
        a.emit(f's_cbranch_scc1 L_{kind}_chk{part}')
        def cmp():
            if kind == 'wo': a.emit('v_cmp_ne_u32 vcc, 0x01010101, v12')
            else:
                a.emit('v_and_b32 v12, v12, v13')
                a.emit('v_and_b32 v14, v14, v15')
                a.emit('v_and_b32 v12, v12, v14')
                a.emit('v_cmp_ne_u32 vcc, 1, v12')
        if part == 1:
            cmp()
            a.emit(f's_cbranch_vccz L_{kind}_chk{part}')
        if True:
            if kind == 'wo': a.emit(f's_load_dwordx2 s[{SC}:{SC+1}], s[0:1], 72')
            else: srd(a, SO, 'ws0', WS_FL, FLS)
            if kind == 'wo':
                a.emit('s_waitcnt lgkmcnt(0)')
                a.emit(f's_and_b32 s{SC+1}, s{SC+1}, 0xffff')
                a.emit(f's_mov_b32 s{SC+2}, 256')
                a.emit(f's_mov_b32 s{SC+3}, 0x00020000')
                a.emit('v_lshlrev_b32 v17, 2, v1')
            else:
                a.emit('v_lshrrev_b32 v2, 2, v1')
                a.emit('v_and_b32 v3, 3, v1')
                a.emit('v_lshlrev_b32 v2, 11, v2')
                a.emit('v_lshl_add_u32 v17, v3, 4, v2')
                a.emit(f's_and_b32 s3, s{S_NT}, {REP - 1}')
                a.emit('s_lshl_b32 s3, s3, 7')
        if part == 0: a.emit(ld)
        else:
            a.emit(f's_mov_b32 s{S_CNT}, 0x100000')
            a.label(f'L_{kind}_chkl')
            a.emit(ld)
            a.emit(f's_sub_u32 s{S_CNT}, s{S_CNT}, 1')
            a.emit(f's_cbranch_scc1 L_{kind}_chk{part}')
            a.emit('s_waitcnt vmcnt(0)')
            cmp()
            a.emit(f's_cbranch_vccnz L_{kind}_chkl')
        a.label(f'L_{kind}_chk{part}')

def dep_wait(a, kind, halo=False, skip_first=False, first=None, preg=None, postf=None, pref=None, defer=False, obar=False):
    if skip_first and not ONE:
        a.emit(f's_cmp_eq_u32 s{S_TSI}, 1')
        a.emit(f's_cbranch_scc1 L_{kind}_dep')
    srd(a, SO, 'ws0', WS_FL, FLS)
    if ONE and kind == 'wo' and first:
        a.emit(f's_cmp_lg_u32 s{S_LAYER}, 0')
        a.emit(f's_cbranch_scc1 L_{kind}_nofirst')
        first()
        a.label(f'L_{kind}_nofirst')
    a.emit(f's_lshl4_add_u32 s3, s{S_TSI}, s{S_MT}')
    a.emit(f's_and_b32 s4, s{S_NT}, {REP - 1}')
    a.emit('s_lshl4_add_u32 s3, s3, s4')
    a.emit('s_lshl_b32 s3, s3, 7')
    a.emit('s_sub_u32 s3, s3, 32768')
    a.emit('v_lshlrev_b32 v11, 7, v1')
    if halo:
        a.emit(f's_cmp_eq_u32 s{S_MT}, 0')
        a.emit('s_cselect_b32 s4, 15, 31')
        a.emit('v_and_b32 v2, 16, v1')
        a.emit('v_lshl_add_u32 v11, v2, 2, v11')
        a.emit('v_and_b32 v2, s4, v1')
    else: a.emit('v_and_b32 v2, 15, v1')
    a.emit('v_lshlrev_b32 v2, 2, v2')
    a.emit('v_mov_b32 v3, 1')
    a.emit(f's_mov_b32 s{S_CNT}, 0x100000')
    if kind == LSTK == 'wo': lstamp(a, 2)
    if pref: pref()
    a.emit(f's_cmp_lg_u32 s{S_WV}, 4')
    a.emit('s_barrier')
    if kind == 'w2': lstamp(a, 0, True)
    if kind == LSTK == 'w1': lstamp(a, 0)
    a.emit(f's_cbranch_scc1 L_{kind}_{"nofl" if postf else "dep"}')
    a.emit(f's_mov_b32 exec_lo, {((1 << REP) - 1) * (0x10001 if halo else 1):#x}')
    a.emit('s_mov_b32 exec_hi, 0')
    a.emit(f'buffer_store_dword v3, v11, s[{SO}:{SO+3}], s{S_FL} offen sc1')
    a.emit('s_mov_b64 exec, -1')
    PSP = int(ENV('PSP', '0'))
    if defer:
        a.label(f'L_{kind}_nofl')
        a.emit(f's_mov_b32 s{S_Q}, s3')
        postf()
        return
    if postf and PSP:
        a.label(f'L_{kind}_nofl')
        a.emit('s_mov_b32 s5, s3')
        i0 = len(a.lines); postf(); ls = a.lines[i0:]; del a.lines[i0:]
        dma = [i for i, l in enumerate(ls) if 'buffer_load' in l]
        poll = lambda k: f'buffer_load_dword v{24+k}, v2, s[{SO}:{SO+3}], s5 offen sc1'
        for i, l in enumerate(ls):
            a.lines.append(l)
            for k in range(3):
                if dma and i == dma[-1 - PSP * (3 - k)]: a.emit(poll(k))
        a.emit(f's_cmp_lg_u32 s{S_WV}, 4')
        a.emit(f's_cbranch_scc1 L_{kind}_dep')
        def chk(k, n, last=False):
            a.emit(poll((k + 3) & 3))
            a.emit(f's_waitcnt vmcnt({n})')
            a.emit(f'v_cmp_ne_u32 vcc, 1, v{24+k}')
            a.emit(f's_cbranch_vccnz L_{kind}_poll' if last else f's_cbranch_vccz L_{kind}_dep')
        for k in range(3): chk(k, 3 + PSP * (3 - k))
        a.label(f'L_{kind}_poll')
        a.emit(f's_sub_u32 s{S_CNT}, s{S_CNT}, 1')
        a.emit(f's_cbranch_scc1 L_{kind}_dep')
        for k in (3, 0, 1, 2): chk(k, 3, k == 2)
    else:
        if postf:
            if obar:
                a.emit(f's_waitcnt vmcnt({obar})')
                a.emit(f's_branch L_{kind}_obar')
            a.label(f'L_{kind}_nofl')
            if obar:
                a.emit(f's_waitcnt vmcnt({obar - 1})')
                a.label(f'L_{kind}_obar')
                a.emit('s_barrier')
                if ENV('OPRIO'): a.emit(f"s_setprio {ENV('OPRIO')}")
            a.emit('s_mov_b32 s5, s3')
            postf()
            a.emit('s_mov_b32 s3, s5')
            a.emit(f"s_cmp_lg_u32 s{S_WV}, {ENV('PW_' + kind.upper(), '4')}")
            a.emit(f's_cbranch_scc1 L_{kind}_dep')
        if kind == LSTK == 'w1': lstamp(a, 1)
        a.label(f'L_{kind}_poll')
        a.emit(f'buffer_load_dword v3, v2, s[{SO}:{SO+3}], s3 offen sc1')
        a.emit(f's_sub_u32 s{S_CNT}, s{S_CNT}, 1')
        a.emit(f's_cbranch_scc1 L_{kind}_dep')
        a.emit('s_waitcnt vmcnt(0)')
        a.emit('v_cmp_ne_u32 vcc, 1, v3')
        a.emit(f's_cbranch_vccnz L_{kind}_poll')
    a.label(f'L_{kind}_dep')
    if kind == 'w2': lstamp(a, 1, True)
    if kind == LSTK == 'wo': lstamp(a, 3)
    if kind == LSTK == 'w1':
        lstamp(a, 2)
        if TS: a.emit(f's_mov_b32 s50, s{S_CNT}')
    if preg: preg()
    if preg and kind == 'w2': lstamp(a, 2, True)
    a.emit('s_barrier')

def dep_late(a, kind, part, n=0):
    ld = f'buffer_load_dword v3, v2, s[{SO}:{SO+3}], s{S_Q} offen sc1'
    if part == 0:
        a.emit(f's_cmp_eq_u32 s{S_WV}, 4')
        a.emit(f's_cselect_b32 s{SO+2}, s{SO+2}, 0')
        a.emit(ld)
        return
    a.emit(f's_cmp_lg_u32 s{S_WV}, 4')
    a.emit(f's_cbranch_scc1 L_{kind}_dep')
    a.emit(f's_waitcnt vmcnt({n})')
    a.emit('v_cmp_ne_u32 vcc, 1, v3')
    a.emit(f's_cbranch_vccz L_{kind}_dep')
    a.label(f'L_{kind}_poll')
    a.emit(ld)
    a.emit(f's_sub_u32 s{S_CNT}, s{S_CNT}, 1')
    a.emit(f's_cbranch_scc1 L_{kind}_dep')
    a.emit('s_waitcnt vmcnt(0)')
    a.emit('v_cmp_ne_u32 vcc, 1, v3')
    a.emit(f's_cbranch_vccnz L_{kind}_poll')
    a.label(f'L_{kind}_dep')
    lstamp(a, 1, True); lstamp(a, 2, True)
    if TS and ENV('LST') != 'x': a.emit(f's_mov_b32 s58, s{S_CNT}')

LGO = 163840 - 64
def dep_early(a):
    srd(a, SO, 'ws0', WS_FL, FLS)
    a.emit(f's_lshl_b32 s86, s{S_TSI}, 12')
    a.emit(f's_lshl_b32 s4, s{S_MT}, 8')
    a.emit('s_add_u32 s86, s86, s4')
    a.emit('s_sub_u32 s86, s86, 4096')
    a.emit('v_and_b32 v12, 15, v1')
    a.emit('v_lshlrev_b32 v12, 2, v12')
    a.emit('v_mov_b32 v3, 0')
    a.emit(f'v_mov_b32 v2, {LGO}')
    a.emit('ds_write_b32 v2, v3')
    a.emit('v_mov_b32 v13, 1')
    a.emit(f's_mov_b32 s{S_CNT}, 0x100000')
    a.emit(f's_cmp_lg_u32 s{S_WV}, 4')
    a.emit('s_waitcnt lgkmcnt(0)')
    a.emit('s_barrier')
    a.emit('s_cbranch_scc1 L_w2_go')
    lstamp(a, 0)
    a.emit('s_mov_b64 exec, 1')
    a.emit(f'buffer_store_dword v13, off, s[{SO}:{SO+3}], s{S_FL} sc1')
    a.emit('s_mov_b64 exec, -1')
    a.label('L_w2_poll')
    a.emit(f'buffer_load_dword v3, v12, s[{SO}:{SO+3}], s86 offen sc1')
    a.emit(f's_sub_u32 s{S_CNT}, s{S_CNT}, 1')
    a.emit('s_cbranch_scc1 L_w2_rel')
    a.emit('s_waitcnt vmcnt(0)')
    a.emit('v_cmp_eq_u32 vcc, 0, v3')
    a.emit('s_cbranch_vccnz L_w2_poll')
    a.label('L_w2_rel')
    a.emit('ds_write_b32 v2, v13')
    lstamp(a, 1)
    a.emit('s_branch L_w2_dep')
    a.label('L_w2_go')
    a.emit(f's_mov_b32 s{S_CNT}, 0x2000000')
    a.label('L_w2_gol')
    a.emit('ds_read_b32 v3, v2')
    a.emit(f's_sub_u32 s{S_CNT}, s{S_CNT}, 1')
    a.emit('s_cbranch_scc1 L_w2_dep')
    a.emit('s_waitcnt lgkmcnt(0)')
    a.emit('v_cmp_eq_u32 vcc, 0, v3')
    a.emit('s_cbranch_vccnz L_w2_gol')
    a.label('L_w2_dep')

def late_flag(a):
    a.emit(f's_cmp_lg_u32 s{S_WV}, 4')
    a.emit('s_cbranch_scc1 L_w2_nolate')
    a.emit('v_mov_b32 v3, 2')
    a.emit('s_mov_b64 exec, 1')
    a.emit(f'buffer_store_dword v3, off, s[{SO}:{SO+3}], s{S_FL} sc1')
    a.emit('s_mov_b64 exec, -1')
    a.label('L_w2_nolate')

def late_check(a):
    a.emit(f's_mov_b32 s{S_CNT}, 0x100000')
    a.label('L_w2_lchk')
    a.emit('v_cmp_ne_u32 vcc, 2, v13')
    a.emit('s_cbranch_vccz L_w2_lok')
    a.emit(f'buffer_load_dword v13, v12, s[{SO}:{SO+3}], s86 offen sc1')
    a.emit(f's_sub_u32 s{S_CNT}, s{S_CNT}, 1')
    a.emit('s_waitcnt vmcnt(0)')
    a.emit('s_cbranch_scc0 L_w2_lchk')
    a.label('L_w2_lok')
    if TS: a.emit(f's_mov_b32 s58, s{S_CNT}')
    lstamps_out(a, 'w2')

def gbar(a, kind):
    if not MEGA or (EARLY and kind == 'w2'): return
    if kind == 'attn':
        a.emit(f's_cmp_eq_u32 s{S_LAYER}, 0')
        a.emit('s_cbranch_scc1 L_attn_nog')
    a.emit('s_barrier')
    if kind == 'attn': a.label('L_attn_nog')

def next_phase(a, kind, comp=False):
    nxt = {'attn': 'wo', 'wo': 'w1', 'w1': 'w2', 'w2': 'attn'}[kind]
    if kind == 'w2':
        a.emit(f's_mov_b32 s{S_LAYER}, 1')
        a.emit(f's_add_u32 s12, s22, {WS_X2}')
        a.emit('s_addc_u32 s13, s23, 0')
        a.emit(f's_add_u32 s34, s22, {LSTR}')
        a.emit('s_addc_u32 s35, s23, 0')
    a.emit(f's_add_u32 s{S_TSI}, s{S_TSI}, 1')
    a.emit(f's_branch L_{nxt}_' + ('compute' if comp and NV and nxt == 'w2' else 'body'))

def last_check(a, kind):
    if kind == 'w2' or (kind == 'attn' and not ONE):
        a.emit(f's_cmp_eq_u32 s{S_LAYER}, {0 if kind == "attn" else 1}')
        a.emit(f's_cbranch_scc1 L_{kind}_end')

def compute_end(a, kind):
    if not MEGA:
        stamps_out(a, kind)
        a.emit('s_endpgm')
        return
    if not TS: last_check(a, kind)
    if kind in EBAR: a.emit('s_barrier')
    if not ((EARLY or NV) and kind == 'w1'):
        a.emit('s_waitcnt vmcnt(0) lgkmcnt(0)')
        a.emit('s_barrier')
    if TS:
        stamps_out(a, kind)
        if ENV('DIAG') and kind == 'w2': diag(a)
        last_check(a, kind)
    stamp(a, 0, nowait=True)
    next_phase(a, kind, True)

def diag(a):
    ph, j, K, C = [int(x) for x in ENV('DIAG').split(',')]
    a.emit(f's_lshl1_add_u32 s3, s{S_WV}, s{S_LAYER}')
    a.emit('s_cmp_lg_u32 s3, 1')
    a.emit('s_cbranch_scc1 L_diag_end')
    a.emit('s_waitcnt vmcnt(0)')
    a.emit('v_lshlrev_b32 v1, 6, v0')
    for i in range(4): a.emit(f's_mov_b32 s3, {4096*i}'); a.emit(f'buffer_load_dword v{4+i}, v1, s[{SP}:{SP+3}], s3 offen sc1')
    a.emit('s_lshl_b32 s4, s2, 6')
    a.emit(f's_add_u32 s4, s4, {(ph << 16) + 16 * j}')
    a.emit(f'buffer_load_dword v8, off, s[{SP}:{SP+3}], s4 sc1')
    a.emit('s_waitcnt vmcnt(0)')
    for i in range(4): a.emit(f'v_sub_u32 v{4+i}, v8, v{4+i}')
    a.emit('v_max_i32 v4, v4, v5'); a.emit('v_max_i32 v6, v6, v7'); a.emit('v_max_i32 v4, v4, v6')
    a.emit('s_mov_b32 s5, 0')
    a.emit('s_nop 1')
    for i in range(64):
        a.emit(f'v_readlane_b32 s3, v4, {i}')
        a.emit('s_max_i32 s5, s5, s3')
    if C: a.emit(f's_sub_u32 s5, {C}, s5'); a.emit('s_max_i32 s5, s5, 0')
    a.emit('s_min_u32 s5, s5, 15000')
    a.emit(f's_mul_i32 s5, s5, {K}')
    a.emit('s_memrealtime s[6:7]')
    a.emit('s_mov_b32 s4, 0x40000')
    a.emit('s_waitcnt lgkmcnt(0)')
    a.label('L_diag_l')
    a.emit('s_memrealtime s[8:9]')
    a.emit('s_sub_u32 s4, s4, 1')
    a.emit('s_cbranch_scc1 L_diag_end')
    a.emit('s_waitcnt lgkmcnt(0)')
    a.emit('s_sub_u32 s8, s8, s6')
    a.emit('s_cmp_lt_u32 s8, s5')
    a.emit('s_cbranch_scc1 L_diag_l')
    a.label('L_diag_end')

def loader_end(a, kind, check=True):
    if MEGA:
        if kind == LSTK and not EARLY: lstamps_out(a, kind)
        if check: last_check(a, kind)
        a.emit(f's_lshl_b32 s{S_FL}, s{S_TSI}, 15')
        a.emit(f's_lshl_b32 s4, s{S_MT}, 11')
        a.emit(f's_add_u32 s{S_FL}, s{S_FL}, s4')
        a.emit(f's_lshl_b32 s4, s{S_NT}, 2')
        a.emit(f's_add_u32 s{S_FL}, s{S_FL}, s4')
        next_phase(a, kind)

def pf_weights(a, sd, which, size, ldw2, R, sh, L, LMn, tilebytes, NI, vd, row0=0, qkv=False, pair=False):
    if 'nopf' in DBG: return 0
    srd(a, sd, which, 0, size)
    a.emit(f's_and_b32 s3, s{S_WV}, 3')
    a.emit(f's_mul_i32 s3, s3, {NI * (64 >> sh)}')
    a.emit(f's_mul_i32 s4, s{S_CU}, {R}')
    a.emit('s_add_u32 s3, s3, s4')
    if row0: a.emit(f's_add_u32 s3, s3, {row0}')
    a.emit(f'v_lshrrev_b32 v2, {sh}, v1')
    a.emit('v_add_u32 v2, s3, v2')
    a.emit(f'v_mul_u32_u24 v2, {ldw2}, v2')
    a.emit(f'v_and_b32 v3, {(1 << sh) - 1}, v1')
    if L < (1 << sh): a.emit(f'v_min_u32 v3, {L-1}, v3')
    if qkv:
        a.emit('v_lshrrev_b32 v12, 2, v3')
        a.emit('v_lshl_add_u32 v2, v12, 11, v2')
        a.emit('v_and_b32 v3, 3, v3')
    a.emit(f'v_lshl_add_u32 v2, v3, {8 if pair else 7}, v2')
    a.emit('s_and_b32 s3, s2, 7')
    a.emit(f's_lshr_b32 s3, s3, {4 - LMn}')
    a.emit(f's_mul_i32 s3, s3, {tilebytes if pair else (1 << (5 - LMn)) * tilebytes}')
    for i in range(NI):
        a.emit(f'buffer_load_dword v{vd+i}, v2, s[{sd}:{sd+3}], s3 offen')
        if i + 1 < NI: a.emit(f's_add_u32 s3, s3, {(64 >> sh) * ldw2}')
    return NI

_pfc = [0]
def pf_code(a, start, end, vd, forward=True):
    if 'nopfc' in DBG: return 0
    _pfc[0] += 1
    lab = f'L_pfc{_pfc[0]}'
    a.emit('s_getpc_b64 s[4:5]')
    a.label(lab)
    if forward:
        a.emit(f's_add_u32 s4, s4, {start}-{lab}')
        a.emit('s_addc_u32 s5, s5, 0')
    else:
        a.emit(f's_sub_u32 s4, s4, {lab}-{start}')
        a.emit('s_subb_u32 s5, s5, 0')
    a.emit(f's_and_b32 s3, s{S_WV}, 3')
    a.emit('s_lshl_b32 s3, s3, 13')
    a.emit('v_lshl_add_u32 v2, v1, 7, s3')
    a.emit(f'v_min_u32 v2, {end}-{start}-4, v2')
    a.emit(f'global_load_dword v{vd}, v2, s[4:5]')
    return 1

def wbase(a, vd, vt, g='v2'):
    a.emit(f'v_bfe_u32 v{vd}, v1, 2, 2')
    a.emit(f'v_lshl_add_u32 v{vd}, {g}, 3, v{vd}')
    a.emit(f'v_lshlrev_b32 v{vd}, 7, v{vd}')
    a.emit(f'v_and_b32 v{vt}, 3, v1')
    a.emit(f'v_lshl_add_u32 v{vd}, v{vt}, 3, v{vd}')
    a.emit(f'v_bfe_u32 v{vt}, v1, 3, 2')
    a.emit(f'v_lshl_add_u32 v{vd}, v{vt}, 5, v{vd}')


def code_touch(a, start, end, nb, sd=SX, loader=False):
    if ENV('CT', '1') == '0': return
    _pfc[0] += 1
    lab = f'L_pfc{_pfc[0]}'
    a.emit(f's_cmp_lg_u32 s{S_LAYER}, 0')
    a.emit(f's_cbranch_scc1 {lab}_skip')
    a.emit('s_getpc_b64 s[4:5]')
    a.label(lab)
    a.emit(f's_lshl_b32 s3, s{S_CU}, 2')
    a.emit(f's_add_u32 s3, s3, s{S_WV}')
    if loader: a.emit('s_sub_u32 s3, s3, 4')
    a.emit(f's_mul_i32 s3, s3, {nb}')
    a.emit(f's_min_u32 s3, s3, {end}-{start}-{nb}')
    a.emit(f's_add_i32 s3, s3, {start}-{lab}')
    a.emit('s_ashr_i32 s6, s3, 31')
    a.emit('s_add_u32 s4, s4, s3')
    a.emit('s_addc_u32 s5, s5, s6')
    for i in range(nb // 64):
        a.emit(f's_load_dword s{84 if loader else sd+i}, s[4:5], {64*i}')
    a.label(f'{lab}_skip')

def loader_first(a, kind):
    if ENV('LF', '1') == '0': return
    L = a.lines
    ib = max(i for i, l in enumerate(L) if l.strip() == f's_cbranch_scc1 L_{kind}_loader')
    il = L.index(f'L_{kind}_loader:')
    ie = L.index(f'L_{kind}_end:') + 2
    assert L[ie - 1].strip() == 's_endpgm' and L[ib - 1].strip().startswith('s_cmp_ge_u32')
    L[ib - 1] = L[ib - 1].replace('s_cmp_ge_u32', 's_cmp_lt_u32')
    L[ib] = f'  s_cbranch_scc1 L_{kind}_compute'
    a.lines = L[:ib + 1] + L[il:ie] + [f'L_{kind}_compute:'] + L[ib + 1:il] + L[ie:]

def clear_flags(a, part, n=0):
    if not ONE or DS: return
    if part == 0 and 'attn' not in OT: a.emit(f's_load_dwordx2 s[{SC}:{SC+1}], s[0:1], 72')
    a.emit(f's_or_b32 s3, s{S_LAYER}, s{S_WV}')
    a.emit(f's_cbranch_scc1 L_clr_skip{part}')
    if part == 0:
        srd(a, SP, 'ws0', WS_FL, FLS)
        a.emit('s_lshl_b32 s3, s2, 11')
        a.emit('v_lshlrev_b32 v2, 4, v1')
        a.emit(f'buffer_store_dwordx4 v[128:131], v2, s[{SP}:{SP+3}], s3 offen sc1')
        a.emit(f'buffer_store_dwordx4 v[128:131], v2, s[{SP}:{SP+3}], s3 offen offset:1024 sc1')
    else:
        a.emit('v_mov_b32 v3, 1')
        a.emit(f's_and_b32 s{SC+1}, s{SC+1}, 0xffff')
        a.emit(f's_mov_b32 s{SC+2}, 256')
        a.emit(f's_mov_b32 s{SC+3}, 0x00020000')
        a.emit('s_mov_b64 exec, 1')
        a.emit(f's_waitcnt vmcnt({n})')
        a.emit(f'buffer_store_byte v3, off, s[{SC}:{SC+3}], s2 sc1')
        a.emit('s_mov_b64 exec, -1')
    a.label(f'L_clr_skip{part}')

def mf_order(nn, nm, skip=lambda jn, jm: False):
    m = ENV('MFO', 's')
    if m == 'n': o = [(jn, jm) for jn in range(nn) for jm in range(nm)]
    elif m == 's': o = [(jn, jm if not jn & 1 else nm - 1 - jm) for jn in range(nn) for jm in range(nm)]
    elif m == 'm': o = [(jn, jm) for jm in range(nm) for jn in range(nn)]
    elif m == 'z': o = [(jn if not jm & 1 else nn - 1 - jn, jm) for jm in range(nm) for jn in range(nn)]
    elif m == 'd': o = [(i % nn, (i // nn + i % nn) % nm) for i in range(nn * nm)]
    return [x for x in o if not skip(*x)]
```

```python
from common import *
from gemmw1 import *

def res_addr(a, swv, sd, v):
    assert int(ENV('LM_WO', '2')) == 2 and int(ENV('LM_W2', '2')) == 2
    srd(a, sd, 'A_x', 0, 4 * MB)
    a.emit('s_and_b32 s3, s2, 3')
    a.emit(f's_and_b32 s4, s{S_CU}, 3')
    a.emit('s_lshl2_add_u32 s3, s3, s4')
    a.emit(f's_lshl2_add_u32 s3, s3, s{swv}')
    a.emit('s_lshl_b32 s3, s3, 16')
    a.emit('s_bfe_u32 s4, s2, 0x10002' if SPX else 's_and_b32 s4, s2, 4')
    a.emit(f's_lshr_b32 s5, s{S_CU}, 2')
    a.emit('s_lshl1_add_u32 s4, s5, s4' if SPX else 's_lshl1_add_u32 s4, s4, s5')
    a.emit('s_lshl_b32 s4, s4, 7')
    a.emit('s_add_u32 s3, s3, s4')
    a.emit('s_add_u32 s4, s3, 32768')
    a.emit(f'v_and_b32 v{v}, 15, v1')
    a.emit(f'v_lshlrev_b32 v{v+1}, 1, v1')
    a.emit(f'v_and_b32 v{v+1}, 32, v{v+1}')
    a.emit(f'v_lshl_add_u32 v{v}, v{v}, 11, v{v+1}')
    a.emit(f'v_lshrrev_b32 v{v+1}, 1, v1')
    a.emit(f'v_and_b32 v{v+1}, 16, v{v+1}')
    a.emit(f'v_add_u32 v{v}, v{v}, v{v+1}')

def dbg_off(a, v):
    a.emit(f's_lshl_b32 s3, s{S_MT}, 2')
    a.emit('s_sub_u32 s3, s3, 4')
    a.emit(f'v_and_b32 v{v}, 7, v1')
    a.emit(f'v_add_u32 v{v}, s3, v{v}')
    a.emit(f'v_max_i32 v{v}, 0, v{v}')
    a.emit(f'v_lshlrev_b32 v{v}, 2, v{v}')

def res_loads(vd, v, sd):
    return [f'buffer_load_dwordx4 v[{vd+4*i}:{vd+3+4*i}], v{v}, s[{sd}:{sd+3}], s{3+(i>>1)} offen offset:{64*(i&1)}' for i in range(4)]

def gen_qkv(a, tsidx, side):
    kind = 'attn'
    K = 1024; lda2 = 2048; ldw2 = 6144
    S = 3; LM = int(ENV('LM_QKV', '3'))
    XH = 16384 + 6 * 4096
    STAGE = XH + 2048
    LST = S * STAGE
    EX = 1024
    N = 16
    body = f'L_{kind}_body'; end = f'L_{kind}_end'
    VB, VA = 4, 10
    VXW, VPE, VPO, VCE, VCO, VVE, VVO, VS1, VS4, VKA, VKB, MAP, MAC, MBP, MBC, VO = range(16, 32)
    M_ODD, M_UPA, M_UPB, M_FA, M_FB = 48, 50, 52, 54, 14
    F = [32, 76]; ACC = 128; HACC = 224; ONES = 236
    acc = lambda jn, jm: ACC + (jn * 4 + jm) * 4
    fx = lambda s, jm: F[s] + jm * 4
    fw = lambda s, jn: F[s] + 20 + jn * 4
    a.label(f'L_{kind}_c0')
    stub(a, f'{kind}l0_kernel', body, 0, tsidx, True)
    a.label(body)
    ot = kind in OT
    HX = LST + 1280
    tile_map(a, LM, end)
    if ot and LM != 2:
        a.emit(f's_cmp_eq_u32 s{S_LAYER}, 0')
        a.emit(f's_cbranch_scc1 L_{kind}_map')
        tile_map(a, 2, None)
        a.label(f'L_{kind}_map')
    a.emit(f's_cmp_ge_u32 s{S_WV}, 4')
    a.emit(f's_cbranch_scc1 L_{kind}_loader')
    if ENV('CTE', '0') == '1': code_touch(a, 'L_attn_c0', 'L_w2_c1', int(ENV('CTN', '256')))
    a.emit(f's_and_b32 s{S_WM}, s{S_WV}, 1')
    a.emit(f's_lshr_b32 s{S_WN}, s{S_WV}, 1')
    a.emit('v_and_b32 v3, 31, v1')
    a.emit('v_lshlrev_b32 v3, 2, v3')
    a.emit(f'v_add_u32 v3, {XH}, v3')
    for i in range(4): a.emit(f'v_mov_b32 v{ONES+i}, 0x3f803f80')
    a.emit(f'ds_write_b32 v3, v{ONES}')
    a.emit(f'ds_write_b32 v3, v{ONES} offset:{STAGE}')
    a.emit(f'v_add_u32 v3, {2*STAGE}, v3')
    a.emit(f'ds_write_b32 v3, v{ONES}')
    if ot: a.emit(f'ds_write_b32 v3, v{ONES} offset:{HX - XH - 2 * STAGE}')
    a.emit('v_and_b32 v3, 15, v1')
    a.emit('v_lshrrev_b32 v2, 4, v1')
    a.emit('v_lshrrev_b32 v33, 1, v3')
    a.emit(f's_lshl_b32 s8, s{S_WM}, 13')
    for ks in range(2):
        if ks: a.emit(f'v_add_u32 v{VB+ks}, 4, v2')
        a.emit(f'v_xor_b32 v{VB+ks}, v{VB+ks if ks else 2}, v33')
        a.emit(f'v_lshlrev_b32 v{VB+ks}, 4, v{VB+ks}')
        a.emit(f'v_lshl_add_u32 v{VB+ks}, v3, 7, v{VB+ks}')
        a.emit(f'v_add_u32 v{VB+4+ks}, {XH}, v{VB+ks}')
        a.emit(f'v_add_u32 v{VB+ks}, s8, v{VB+ks}')
    wbase(a, 34, 33)
    a.emit(f's_lshl_b32 s8, s{S_WV}, 5')
    a.emit('v_xor_b32 v34, s8, v34')
    a.emit(f'v_add_u32 v{VB+2}, 16384, v34')
    a.emit(f'v_xor_b32 v{VB+3}, 32, v{VB+2}')
    i0 = len(a.lines)
    a.emit('v_and_b32 v35, 1, v2')
    a.emit(f'v_xor_b32 v35, s{S_WM}, v35')
    a.emit(f's_lshl_b32 s8, s{S_MT}, 7')
    a.emit(f's_lshl_b32 s9, s{S_WM}, 6')
    a.emit('s_add_u32 s8, s8, s9')
    a.emit(f's_add_u32 s10, s8, s{S_NT}')
    a.emit('s_lshl_b32 s10, s10, 11')
    a.emit(f's_lshl_b32 s11, s{S_WN}, 10')
    a.emit('s_add_u32 s10, s10, s11')
    a.emit('v_lshl_add_u32 v33, v3, 4, s10')
    a.emit('v_lshl_add_u32 v33, v35, 9, v33')
    a.emit('v_lshrrev_b32 v34, 1, v2')
    a.emit(f'v_lshl_add_u32 v{VO}, v34, 8, v33')
    a.emit(f's_mul_i32 s10, s{S_WN}, {14336 if XD else 24576}')
    a.emit(f's_add_u32 s10, s10, {EX}')
    a.emit(f's_lshl_b32 s11, s{S_WM}, 10')
    a.emit('s_add_u32 s4, s10, s11')
    a.emit('s_sub_u32 s5, s10, s11')
    a.emit(f's_mul_i32 s6, s{S_WM}, 6144')
    a.emit(f'v_lshl_add_u32 v{VXW}, v1, 4, s4')
    a.emit(f'v_add_u32 v{VPE}, s6, v{VXW}')
    a.emit(f'v_lshl_add_u32 v{VPO}, v1, 4, s5')
    a.emit(f'v_add_u32 v{VPO}, s6, v{VPO}')
    a.emit(f'v_lshl_add_u32 v{VCE}, v2, 8, s4')
    a.emit(f'v_lshl_add_u32 v{VCO}, v2, 8, s5')
    a.emit(f'v_lshl_add_u32 v{VVE}, v3, 4, s4')
    a.emit(f'v_lshl_add_u32 v{VVO}, v3, 4, s5')
    a.emit(f's_lshl_b32 s10, s{S_WM}, 8')
    a.emit(f's_add_u32 s10, s10, {LST}')
    a.emit(f'v_lshl_add_u32 v{VS1}, v3, 2, s10')
    a.emit(f'v_lshl_add_u32 v{VS4}, v2, 4, s10')
    a.emit('v_and_b32 v33, 1, v3')
    a.emit(f'v_cmp_eq_u32 s[{M_ODD}:{M_ODD+1}], 1, v33')
    a.emit('v_lshl_add_u32 v34, v2, 2, v33')
    a.emit('v_add_u32 v35, 2, v34')
    a.emit(f'v_cmp_gt_u32 s[{M_UPA}:{M_UPA+1}], v34, v3')
    a.emit(f'v_cmp_gt_u32 s[{M_UPB}:{M_UPB+1}], v35, v3')
    a.emit('v_mov_b32 v36, 0xffff')
    a.emit('v_mov_b32 v37, 0xffff0000')
    a.emit(f'v_cndmask_b32 v36, v36, v37, s[{M_ODD}:{M_ODD+1}]')
    a.emit(f's_add_u32 s10, s10, {640 + 64}')
    a.emit('v_lshl_add_u32 v34, v34, 2, s10')
    a.emit('v_lshl_add_u32 v35, v35, 2, s10')
    a.emit('v_subrev_u32 v38, 64, v34')
    a.emit('v_subrev_u32 v39, 64, v35')
    a.emit(f'v_cndmask_b32 v{VKA}, v34, v38, s[{M_UPA}:{M_UPA+1}]')
    a.emit(f'v_cndmask_b32 v{VKB}, v35, v39, s[{M_UPB}:{M_UPB+1}]')
    a.emit(f'v_cndmask_b32 v{MAP}, 0, v36, s[{M_UPA}:{M_UPA+1}]')
    a.emit(f'v_cndmask_b32 v{MBP}, 0, v36, s[{M_UPB}:{M_UPB+1}]')
    a.emit(f'v_xor_b32 v{MAC}, v{MAP}, v36')
    a.emit(f'v_xor_b32 v{MBC}, v{MBP}, v36')
    a.emit('s_cmp_eq_u32 s8, 0')
    a.emit(f's_cselect_b64 s[{M_FA}:{M_FA+1}], s[{M_UPA}:{M_UPA+1}], 0')
    a.emit(f's_cselect_b64 s[{M_FB}:{M_FB+1}], s[{M_UPB}:{M_UPB+1}], 0')
    if ot:
        a.emit(f's_cmp_lg_u32 s{S_LAYER}, 0')
        a.emit(f's_cbranch_scc1 L_{kind}_nozero')
    for i in list(range(122 if DS else 120, 236)) + ([] if XD else list(range(240, 256))): a.emit(f'v_mov_b32 v{i}, 0')
    if DS:
        a.emit('s_waitcnt lgkmcnt(0)')
        a.emit(f's_lshl_b32 s3, s{S_WN}, 5')
        a.emit('s_add_u32 s3, s3, s8')
        a.emit(f's_lshl_b32 s4, s{S_NT}, 14')
        a.emit('s_lshl3_add_u32 s3, s3, s4')
        a.emit('v_lshrrev_b32 v121, 1, v2')
        a.emit('v_lshl_add_u32 v121, v121, 4, v3')
        a.emit('v_and_b32 v120, 1, v2')
        a.emit('v_lshl_add_u32 v121, v121, 1, v120')
        a.emit('v_lshl_add_u32 v120, v121, 2, s3')
        srd(a, ST, 'ws0', WS_ST0, 16 * 16384)
        srd(a, SP, 'ws0', WS_FL, FLS)
        a.emit('s_lshl_b32 s3, s2, 11')
        if D2:
            a.emit(f's_cmp_lg_u32 s{S_WV}, 0')
            a.emit(f's_cbranch_scc1 L_{kind}_noclr')
            a.emit(f's_lshl_b32 s5, s{S_MT}, 10')
            a.emit('s_add_u32 s4, s4, s5')
            a.emit('v_lshlrev_b32 v121, 4, v1')
            for i in range(4): a.emit(f'v_mov_b32 v{40+i}, -1')
            a.emit(f'buffer_store_dwordx4 v[40:43], v121, s[{ST}:{ST+3}], s4 offen sc1')
            for i in range(2): a.emit(f'buffer_store_dwordx4 v[128:131], v121, s[{SP}:{SP+3}], s3 offen offset:{1024*i} sc1')
            a.emit('v_mov_b32 v126, 1')
            a.label(f'L_{kind}_noclr')
        else:
            a.emit('v_lshlrev_b32 v121, 3, v0')
            a.emit(f'buffer_store_dwordx2 v[126:127], v121, s[{SP}:{SP+3}], s3 offen sc1')
            dbg_off(a, 121)
        a.emit(f's_and_b32 s{SC+1}, s{SC+1}, 0xffff')
        a.emit(f's_mov_b32 s{SC+2}, 256')
        a.emit(f's_mov_b32 s{SC+3}, 0x00020000')
        a.emit('s_mov_b32 s7, 0x3f803f80')
    if ot: a.label(f'L_{kind}_nozero')
    a.emit('s_waitcnt lgkmcnt(0)')
    srd(a, SO, 'ws', WS_O, 4 * MB)
    clear_flags(a, 0)
    if ENV('CTE', '0') == '0': code_touch(a, 'L_attn_c0', 'L_w2_c1', int(ENV('CTN', '256')))
    CLQ = ENV('DX', '2') == '1' and ENV('CLP', 'e') == 'q'
    if CLQ:
        srd(a, ST, 'ws', WS_XP, 4 * MB)
        a.emit(f's_or_b32 s{ST+1}, s{ST+1}, 0x100000')
        a.emit(f's_mov_b32 s{ST+3}, 0x00800000')
        a.emit('s_and_b32 s3, s2, 3')
        a.emit(f's_and_b32 s4, s{S_CU}, 3')
        a.emit('s_lshl2_add_u32 s3, s3, s4')
        a.emit('s_bfe_u32 s4, s2, 0x10002')
        a.emit(f's_lshr_b32 s5, s{S_CU}, 2')
        a.emit('s_lshl1_add_u32 s4, s5, s4')
        a.emit('s_lshl4_add_u32 s3, s3, s4')
        a.emit(f's_lshl2_add_u32 s3, s3, s{S_WV}')
        a.emit(f's_lshl_b32 s{S_T}, s3, 12')
        for i in range(4): a.emit(f'v_mov_b32 v{116+i}, -1')
    def warm():
        a.emit(f's_cmp_lg_u32 s{S_LAYER}, 0')
        a.emit(f's_cbranch_scc1 L_{kind}_nowarm')
        a.emit('s_lshl_b32 s3, s2, 2')
        a.emit(f's_add_u32 s3, s3, s{S_WV}')
        srd(a, SX, 'xs', 0, 4 * MB); srd(a, SW, 'wqkv', 0, 6 * MB)
        a.emit('v_min_u32 v126, 31, v1')
        a.emit('v_min_u32 v127, 47, v1')
        a.emit('v_lshlrev_b32 v126, 7, v126')
        a.emit('v_lshlrev_b32 v127, 7, v127')
        a.emit('s_lshl_b32 s4, s3, 12')
        a.emit(f's_mul_i32 s5, s3, {48 * 128}')
        a.emit(f'buffer_load_dword v2, v126, s[{SX}:{SX+3}], s4 offen')
        a.emit(f'buffer_load_dword v3, v127, s[{SW}:{SW+3}], s5 offen')
        a.emit('v_mov_b32 v126, 0')
        a.emit('v_mov_b32 v127, 0')
        a.label(f'L_{kind}_nowarm')
    WARM = ENV('WARM', '0')
    if WARM == '1': warm()
    mid = []
    if ot: mid = a.lines[i0:]; del a.lines[i0:]
    def reads(s, ks, hl=True):
        o = []
        if 'noread' in DBG: return o
        for jm in range(4):
            o.append(f'ds_read_b128 v[{fx(s,jm)}:{fx(s,jm)+3}], v{VA+ks} offset:{jm*2048}')
        if hl: o.append(f'ds_read_b128 v[{fx(s,4)}:{fx(s,4)+3}], v{VA+4+ks}')
        for jn in range(6):
            for h in range(2):
                r = fw(s, jn) + 2 * h
                o.append(f'ds_read_b64_tr_b16 v[{r}:{r+1}], v{VA+2+(jn&1)} offset:{(jn>>1)*8192+ks*4096+h*512}')
        return o
    def mfma(c, x, y, cin=None):
        return f'v_mfma_f32_16x16x32_bf16 v[{c}:{c+3}], v[{x}:{x+3}], v[{y}:{y+3}], ' + (f'v[{c}:{c+3}]' if cin is None else cin)
    def mf(s):
        o = []
        if 'nomfma' in DBG: return ['s_nop 0']
        for jn, jm in mf_order(6, 5, lambda jn, jm: jm == 4 and jn & 1):
            if True:
                c = acc(jn, jm) if jm < 4 else HACC + (jn >> 1) * 4
                o.append(mfma(c, fw(s, jn), fx(s, jm)) if jn < 4 else mfma(c, fx(s, jm), fw(s, jn)))
        return o
    SA = [(240, 244), (248, 252), (120, 124)]
    def mfv(hh):
        def f(s):
            o = mf(s)
            ex = []
            for i, jm in enumerate([2 * hh, 2 * hh + 1] + ([4] if hh == 0 else [])):
                ex.append(mfma(SA[i][0], ONES, fx(s, jm)))
                ex.append(mfma(SA[i][1], fx(s, jm), fx(s, jm)))
            return o if 'nostat' in DBG else ex + o
        return f
    def select():
        if CLQ:
            for i in range(4): a.emit(f'buffer_store_dwordx4 v[116:119], off, s[{ST}:{ST+3}], s{S_T} offset:{1024*i} sc1')
        if WARM == '2': warm(); a.emit('s_nop 1')
        if not ot:
            a.emit(f's_cmp_lg_u32 s{S_LAYER}, 0')
            a.emit(f's_cbranch_scc1 L_{kind}_loop')
        if XD:
            for i in range(240, 256): a.emit(f'v_mov_b32 v{i}, 0')
        a.emit(f's_cmp_lg_u32 s{S_WN}, 0')
        a.emit(f's_cbranch_scc1 L_{kind}_loopb')
        clear_flags(a, 1, 4 if CLQ else 0)
    def post():
        a.emit('v_and_b32 v32, 3, v1')
        a.emit('v_cmp_eq_u32 s[4:5], 1, v32')
        a.emit('v_cmp_eq_u32 s[6:7], 2, v32')
        a.emit('v_cmp_eq_u32 s[8:9], 3, v32')
        a.emit('v_bfe_u32 v33, v1, 2, 2')
        a.emit('v_lshrrev_b32 v34, 4, v1')
        a.emit('v_cmp_eq_u32 s[10:11], v33, v34')
        a.emit(f's_lshl_b32 s3, s{S_WN}, 7')
        a.emit(f'v_add_u32 v35, s3, v{VS1}')
        a.emit('v_and_b32 v36, 15, v1')
        a.emit(f's_cmp_eq_u32 s{S_WV}, 0')
        a.emit('s_cselect_b32 s3, 0, 576')
        a.emit(f's_add_u32 s3, s3, {LST}')
        a.emit('v_lshl_add_u32 v36, v36, 2, s3')
        for (sm, sq) in SA:
            a.emit(f'v_cndmask_b32 v{sm+1}, v{sq}, v{sq+1}, s[4:5]')
        for (sm, sq) in SA:
            a.emit(f'v_cndmask_b32 v{sm+1}, v{sm+1}, v{sq+2}, s[6:7]')
        for (sm, sq) in SA:
            a.emit(f'v_cndmask_b32 v{sm+1}, v{sm+1}, v{sq+3}, s[8:9]')
        for (sm, sq) in SA: stats_finish(a, sm)
        a.emit('s_mov_b64 exec, s[10:11]')
        a.emit(f'ds_write2_b32 v35, v{SA[0][0]}, v{SA[0][0]+1} offset0:16 offset1:176')
        a.emit(f'ds_write2_b32 v35, v{SA[1][0]}, v{SA[1][0]+1} offset0:32 offset1:192')
        a.emit(f'ds_write2_b32 v36, v{SA[2][0]}, v{SA[2][0]+1} offset0:0 offset1:160')
        a.emit('s_mov_b64 exec, -1')
        if XD:
            res_addr(a, S_WV, SX, 32)
        a.emit('s_waitcnt lgkmcnt(0)')
        if XD:
            for i in range(4):
                a.emit(f'buffer_load_dwordx4 v[{240+4*i}:{243+4*i}], v32, s[{SX}:{SX+3}], s{3+(i>>1)} offen offset:{64*(i&1)}')
        a.emit('s_barrier')
    own = lambda s: [mfma(acc(jn, jm), *((fw(s, jn), fx(s, jm)) if jn < 4 else (fx(s, jm), fw(s, jn))), None if s else '0') for jn, jm in mf_order(6, 4)]
    hw = lambda ks, c: fw(1, 2 * c) if ks else fx(1, c)
    hal = ([f'v_mov_b32 v{fx(1,c)+i}, v{fw(0,2*c)+i}' for c in range(3) for i in range(4)],
           [f'ds_read_b128 v[{fx(1,3+ks)}:{fx(1,3+ks)+3}], v{VA+4+ks} offset:{HX - XH - STAGE}' for ks in range(2)],
           [mfma(HACC + 4 * c, *((hw(ks, c), fx(1, 3 + ks)) if c < 2 else (fx(1, 3 + ks), hw(ks, c))), None if ks else '0') for ks in range(2) for c in range(3)])
    hooks = None
    if DS:
        HK = [int(x) for x in ENV('HK', '-1,-2,-4,-5,11,13').split(',')]
        def dots(s):
            o = [f's_cmp_lg_u32 s{S_WN}, 0', f's_cbranch_scc1 L_{kind}_dot{s}']
            for hh in range(2):
                for j in range(8):
                    r = fx(s, 2 * hh) + (j >> 1) + 4 * (j & 1)
                    o += [f'v_dot2_f32_bf16 v{122+(j&1)}, v{r}, s7, v{122+(j&1)}', f'v_dot2_f32_bf16 v{124+(j&1)}, v{r}, v{r}, v{124+(j&1)}']
                o += [f'L_{kind}_dote{s}:'] if hh else [f's_branch L_{kind}_dote{s}', f'L_{kind}_dot{s}:']
            return o
        h1 = dots(1) + ['s_nop 2', 'v_permlane32_swap_b32 v122, v123', 'v_permlane32_swap_b32 v124, v125', 'v_add_f32 v122, v122, v123', 'v_add_f32 v124, v124, v125',
               'v_mov_b32 v126, 1', 's_nop 0', 'v_permlane16_swap_b32 v122, v124', 'v_add_f32 v122, v122, v124', f'buffer_store_dword v122, v120, s[{ST}:{ST+3}], 0 offen sc1']
        w0 = [f's_cmp_lg_u32 s{S_WV}, 0', f's_cbranch_scc1 L_{kind}_loop']
        pl = f'buffer_load_dword v127, v121, s[{SC}:{SC+3}], 0 offen sc1'
        b = Asm(); res_addr(b, S_WV, SX, 122); rs = [l.strip() for l in b.lines] + res_loads(240, 122, SX)
        hooks = list(zip(HK + [int(ENV('HKR', '14'))], [dots(0), h1, ['s_waitcnt vmcnt(0)'],
            w0 + [f's_lshl4_add_u32 s3, s{S_MT}, s{S_NT}', 's_mov_b64 exec, 1', f'buffer_store_byte v126, off, s[{SC}:{SC+3}], s3 sc1', 's_mov_b64 exec, -1'], w0 + [pl],
            w0 + ['s_mov_b32 s5, 0x100000', 'L_attn_chkl:', 's_waitcnt vmcnt(0)', 'v_cmp_ne_u32 vcc, 0x01010101, v127', f's_cbranch_vccz L_{kind}_loop',
                  pl, 's_sub_u32 s5, s5, 1', 's_cbranch_scc0 L_attn_chkl'], rs]))
        assert HK[:2] == [-1, -2]
        if D2: hooks = [(-1, dots(0) + w0 + hooks[2][1] + hooks[3][1][2:]), (-2, [x.replace('v_mov_b32 v126, 1', 's_nop 0') for x in h1]), hooks[-1]]
    assert ot or not DS
    big_loop(a, kind, N, S, STAGE, 6, VB, VA, reads, mf, variants=None if DS else {'a': mfv(0), 'b': mfv(1)}, select=select, post=post, mid=mid, hooks=hooks,
             ot=own if ot else None, halo=hal if ot else None)
    PR = 32
    CS = 48
    CV = 64
    MS = 66
    RK = 76
    M4 = 84
    R4 = 104
    VV = [4 if XD else 240, 224]
    for b in range(5):
        a.emit(f'ds_read2_b32 v[{MS+2*b}:{MS+2*b+1}], v{VS1} offset0:{16*b} offset1:{160+16*b}')
    for p in range(2):
        a.emit(f'ds_read2_b32 v[{RK+2*p}:{RK+2*p+1}], v{VKA} offset0:{32*p} offset1:{32*p+16}')
        a.emit(f'ds_read2_b32 v[{RK+4+2*p}:{RK+5+2*p}], v{VKB} offset0:{32*p} offset1:{32*p+16}')
    for c in range(3):
        a.emit(f'ds_write_b128 v{VXW}, v[{HACC+4*c}:{HACC+4*c+3}] offset:{2048*c}')
    a.emit(f's_cmp_eq_u32 s{S_WM}, 1')
    a.emit(f's_cbranch_scc1 L_{kind}_nop3')
    for t in range(2, 6):
        a.emit(f'ds_write_b128 v{VXW}, v[{acc(t,3)}:{acc(t,3)+3}] offset:{6144+1024*t}')
    a.label(f'L_{kind}_nop3')
    for b in range(5):
        a.emit(f'ds_read_b128 v[{M4+4*b}:{M4+4*b+3}], v{VS4} offset:{64*b}')
        a.emit(f'ds_read_b128 v[{R4+4*b}:{R4+4*b+3}], v{VS4} offset:{640+64*b}')
    a.emit('s_waitcnt lgkmcnt(10)')
    a.emit('s_barrier')
    for t in range(4):
        a.emit(f'ds_read_b128 v[{CS+4*t}:{CS+4*t+3}], v{VCO if t&1 else VCE} offset:{1024*t}')
    for t in range(2):
        a.emit(f'ds_read_b32 v{CV+t}, v{VVO if t else VVE} offset:{4096+1024*t}')
    for t in range(4):
        a.emit(f'ds_read_b128 v[{PR+4*t}:{PR+4*t+3}], v{VPO if t&1 else VPE} offset:{2048+1024*t}')
    sc = 32 ** -0.5 * 1.4426950408889634
    for b in range(4):
        a.emit(f'v_mul_f32 v{MS+2*b+3}, {f2u(sc):#x}, v{MS+2*b+3}')
    for b in range(4):
        a.emit(f'v_mul_f32 v{RK+b}, v{RK+b}, v{MS+2*b+3}')
        a.emit(f'v_mul_f32 v{RK+4+b}, v{RK+4+b}, v{MS+2*b+3}')
    a.emit('s_waitcnt lgkmcnt(6)')
    def qk(x, y, cs, b, d):
        m = f'v[{MS+2*b}:{MS+2*b+1}]'
        for (z, c) in ((x, cs), (y, cs + 4)):
            for h in range(2):
                a.emit(f'v_pk_fma_f32 v[{z+2*h}:{z+2*h+1}], v[{c+2*h}:{c+2*h+1}], {m}, v[{z+2*h}:{z+2*h+1}] op_sel:[0,0,0] op_sel_hi:[1,0,1] neg_lo:[0,1,0] neg_hi:[0,1,0]')
        a.emit(f'v_cvt_pk_bf16_f32 v{d}, v{x}, v{x+1}')
        a.emit(f'v_cvt_pk_bf16_f32 v{d+1}, v{x+2}, v{x+3}')
        a.emit(f'v_cvt_pk_bf16_f32 v{d+2}, v{y}, v{y+1}')
        a.emit(f'v_cvt_pk_bf16_f32 v{d+3}, v{y+2}, v{y+3}')
    Q = lambda b: acc(0, b); Kf = lambda b: acc(2, b) if b >= 0 else PR
    Sc = lambda b: acc(1, b); Sp = lambda b: acc(3, b)
    for b in range(4):
        qk(acc(0, b), acc(1, b), CS, b + 1, Q(b))
        qk(acc(2, b), acc(3, b), CS + 8, b + 1, Kf(b))
        if b == 3:
            a.emit('s_waitcnt lgkmcnt(0)')
            qk(PR, PR + 4, CS + 8, 0, PR)
        if b >= 1:
            a.emit(mfma(Sc(b - 1), Kf(b - 1), Q(b - 1), '0'))
            if b >= 2: a.emit(mfma(Sp(b - 1), Kf(b - 2), Q(b - 1), '0'))
    a.emit(mfma(Sc(3), Kf(3), Q(3), '0'))
    a.emit(mfma(Sp(3), Kf(2), Q(3), '0'))
    a.emit(mfma(Sp(0), Kf(-1), Q(0), '0'))
    def vconv(x, t, b):
        cv = f'v[{CV}:{CV+1}]'
        for h in range(2):
            a.emit(f'v_pk_fma_f32 v[{x+2*h}:{x+2*h+1}], v[{M4+4*b+2*h}:{M4+4*b+2*h+1}], {cv}, v[{x+2*h}:{x+2*h+1}] op_sel:[0,{t},0] op_sel_hi:[1,{t},1] neg_lo:[1,0,0] neg_hi:[1,0,0]')
        for h in range(2):
            a.emit(f'v_pk_mul_f32 v[{x+2*h}:{x+2*h+1}], v[{x+2*h}:{x+2*h+1}], v[{R4+4*b+2*h}:{R4+4*b+2*h+1}]')
        for h in range(2):
            a.emit(f'v_cvt_pk_bf16_f32 v{VV[t]+2*b+h}, v{x+2*h}, v{x+2*h+1}')
    for t in range(2):
        vconv(PR + 8 + 4 * t, t, 0)
        for b in range(4): vconv(acc(4 + t, b), t, b + 1)
    T = lambda b: 32 + 4 * b
    odd = f's[{M_ODD}:{M_ODD+1}]'
    for b in (1, 2, 3, 0):
        a.emit(f'v_cndmask_b32 v{Sc(b)}, v{Sc(b)}, v{Sc(b)+1}, {odd}')
        a.emit(f'v_cndmask_b32 v{Sp(b)}, v{Sp(b)}, v{Sp(b)+1}, {odd}')
        a.emit(f'v_cndmask_b32 v{Sc(b)+2}, v{Sc(b)+2}, v{Sc(b)+3}, {odd}')
        a.emit(f'v_cndmask_b32 v{Sp(b)+2}, v{Sp(b)+2}, v{Sp(b)+3}, {odd}')
        a.emit(f'v_cndmask_b32 v{T(b)}, v{Sc(b)}, v{Sp(b)}, s[{M_UPA}:{M_UPA+1}]')
        a.emit(f'v_cndmask_b32 v{T(b)+1}, v{Sc(b)+2}, v{Sp(b)+2}, s[{M_UPB}:{M_UPB+1}]')
        a.emit(f'v_mul_f32 v{T(b)}, v{T(b)}, v{RK+b}')
        a.emit(f'v_mul_f32 v{T(b)+1}, v{T(b)+1}, v{RK+4+b}')
    a.emit(f'v_mov_b32 v48, {f2u(-1e9 * 1.4426950408889634):#x}')
    a.emit(f'v_cndmask_b32 v{T(0)}, v{T(0)}, v48, s[{M_FA}:{M_FA+1}]')
    a.emit(f'v_cndmask_b32 v{T(0)+1}, v{T(0)+1}, v48, s[{M_FB}:{M_FB+1}]')
    for b in range(4): a.emit(f'v_max_f32 v{T(b)+2}, v{T(b)}, v{T(b)+1}')
    for op in ('32', '16'):
        for b in range(4): a.emit(f'v_mov_b32 v{T(b)+3}, v{T(b)+2}')
        for b in range(4): a.emit(f'v_permlane{op}_swap_b32 v{T(b)+2}, v{T(b)+3}')
        for b in range(4): a.emit(f'v_max_f32 v{T(b)+2}, v{T(b)+2}, v{T(b)+3}')
    for b in range(4):
        a.emit(f'v_sub_f32 v{T(b)}, v{T(b)}, v{T(b)+2}')
        a.emit(f'v_sub_f32 v{T(b)+1}, v{T(b)+1}, v{T(b)+2}')
    for b in range(4):
        a.emit(f'v_exp_f32 v{T(b)}, v{T(b)}')
        a.emit(f'v_exp_f32 v{T(b)+1}, v{T(b)+1}')
    P = lambda b: acc(0, b)
    for b in range(4):
        a.emit(f'v_cvt_pk_bf16_f32 v{T(b)}, v{T(b)}, v{T(b)}')
        a.emit(f'v_cvt_pk_bf16_f32 v{T(b)+1}, v{T(b)+1}, v{T(b)+1}')
        a.emit(f'v_and_b32 v{P(b)}, v{T(b)}, v{MAP}')
        a.emit(f'v_and_b32 v{P(b)+1}, v{T(b)+1}, v{MBP}')
        a.emit(f'v_and_b32 v{P(b)+2}, v{T(b)}, v{MAC}')
        a.emit(f'v_and_b32 v{P(b)+3}, v{T(b)+1}, v{MBC}')
        if b >= 1:
            q = b - 1
            a.emit(mfma(acc(1, q), ONES, P(q), '0'))
            a.emit(mfma(acc(4, q), VV[0] + 2 * q, P(q), '0'))
            a.emit(mfma(acc(5, q), VV[1] + 2 * q, P(q), '0'))
    q = 3
    a.emit(mfma(acc(1, q), ONES, P(q), '0'))
    a.emit(mfma(acc(4, q), VV[0] + 2 * q, P(q), '0'))
    a.emit(mfma(acc(5, q), VV[1] + 2 * q, P(q), '0'))
    for b in range(4):
        r = acc(1, b); d = 48 + 4 * b
        a.emit(f'v_rcp_f32 v{r}, v{r}')
        a.emit(f's_mov_b32 s3, {b * 16 * 2048}')
        for t in range(2):
            x = acc(4 + t, b)
            for h in range(2):
                a.emit(f'v_pk_mul_f32 v[{x+2*h}:{x+2*h+1}], v[{x+2*h}:{x+2*h+1}], v[{r}:{r+1}] op_sel_hi:[1,0]')
        for t in range(2):
            x = acc(4 + t, b)
            for h in range(2):
                a.emit(f'v_cvt_pk_bf16_f32 v{d+2*t+h}, v{x+2*h}, v{x+2*h+1}')
        a.emit('s_nop 1')
        a.emit(f'v_permlane16_swap_b32 v{d}, v{d+2}')
        a.emit(f'v_permlane16_swap_b32 v{d+1}, v{d+3}')
        a.emit(f'buffer_store_dwordx4 v[{d}:{d+3}], v{VO}, s[{SO}:{SO+3}], s3 offen{stf(kind)}')
    compute_end(a, kind)
    a.label(f'L_{kind}_loader')
    L = Loader(a, kind, K, lda2, ldw2, [0, 2048, 4096], 128, S, STAGE, halo=XH, rot=int(ENV('ROT_QKV', '0')))
    L.skip = DS
    L.setup()
    a.emit('s_waitcnt lgkmcnt(0)')
    srd_xs(a, SX); srd(a, SW, 'wqkv', 0, 1024 * 6144)
    import sides
    fill = []
    if ENV('DX', '2') == '1' and ENV('CLP', 'e') == 'l':
        a.emit('s_and_b32 s3, s2, 3')
        a.emit(f's_and_b32 s4, s{S_CU}, 3')
        a.emit('s_lshl2_add_u32 s3, s3, s4')
        a.emit('s_bfe_u32 s4, s2, 0x10002')
        a.emit(f's_lshr_b32 s5, s{S_CU}, 2')
        a.emit('s_lshl1_add_u32 s4, s5, s4')
        a.emit('s_lshl4_add_u32 s3, s3, s4')
        a.emit(f's_and_b32 s4, s{S_WV}, 3')
        a.emit('s_lshl2_add_u32 s3, s3, s4')
        a.emit('s_lshl_b32 s3, s3, 12')
        srd(a, SB, 'ws', WS_XP, 0 if 'fill0' in DBG else 4096)
        if 'fillfl' in DBG:
            srd(a, SB, 'ws0', WS_FL + MB, 4096)
            a.emit('s_and_b32 s3, s3, 0xfffff')
        a.emit(f's_add_u32 s{SB}, s{SB}, s3')
        a.emit(f's_addc_u32 s{SB+1}, s{SB+1}, 0')
        FW_ = int(ENV('FILLW', '2'))
        a.emit(f'v_mul_u32_u24 v29, {4 * FW_}, v1')
        for i in range(4): a.emit(f'v_mov_b32 v{24+i}, -1')
        fill = [f'buffer_store_dword{"x" + str(FW_)} v[24:{23 + FW_}], v29, s[{SB}:{SB+3}], 0 offen' + ('' if 'fillwb' in DBG else ' sc1'), f'v_add_u32 v29, {256 * FW_}, v29']
        assert sides.STV[3] == 0
    a.emit(f's_cmp_lg_u32 s{S_LAYER}, 0')
    a.emit(f's_cbranch_scc1 L_{kind}_ld1')
    post = list(sides.stouch_post(a, kind)) + fill
    SPF = [int(x) for x in ENV('SPF', '0,0,2').split(',')]
    def spf():
        hs = range(SPF[2])
        return ([f's_buffer_load_dword s84, s[{SX}:{SX+3}], s85 offset:{2048*r+64*h}' for r in range(2) for h in hs] +
                [f's_buffer_load_dword s84, s[{SW}:{SW+3}], s86 offset:{2048*p+64*h}' for p in range(3) for h in hs] +
                ['s_add_u32 s85, s85, 128', f's_add_u32 s86, s86, {64*ldw2}'])
    def spf_start():
        if not SPF[1]: return
        a.emit(f's_and_b32 s3, s{S_WV}, 3')
        a.emit(f's_lshl2_add_u32 s3, s{S_CU}, s3')
        a.emit('s_and_b32 s4, s2, 1')
        a.emit('s_bfe_u32 s5, s2, 0x20001')
        a.emit('s_lshl2_add_u32 s85, s4, s5')
        a.emit('s_lshl_b32 s85, s85, 7')
        a.emit('s_add_u32 s85, s85, s3')
        a.emit('s_lshl_b32 s85, s85, 12')
        a.emit(f's_add_u32 s85, s85, {128*SPF[0]}')
        a.emit('s_lshl_b32 s4, s4, 5')
        a.emit(f's_add_u32 s4, s4, s{S_CU}')
        a.emit(f's_add_u32 s4, s4, {64*SPF[0]}')
        a.emit(f's_mul_i32 s86, s4, {ldw2}')
        a.emit('s_and_b32 s3, s3, 3')
        a.emit('s_lshl2_add_u32 s3, s5, s3')
        a.emit('s_lshl_b32 s3, s3, 7')
        a.emit('s_add_u32 s86, s86, s3')
        for i in range(SPF[0], SPF[1]):
            for x in spf(): a.emit(x)
    if SPF[1]: post += spf()
    VPF = [int(x) for x in ENV('VPF', '0,0,1').split(',')]
    def vpf():
        k0, nk, hs = VPF
        if not nk: return 0
        a.emit(f's_and_b32 s3, s{S_WV}, 3')
        a.emit(f's_lshl2_add_u32 s3, s{S_CU}, s3')
        a.emit('s_and_b32 s4, s2, 1')
        a.emit('s_bfe_u32 s5, s2, 0x20001')
        a.emit('s_lshl2_add_u32 s85, s4, s5')
        a.emit('s_lshl_b32 s85, s85, 7')
        a.emit('s_add_u32 s85, s85, s3')
        a.emit('s_lshl_b32 s85, s85, 12')
        a.emit('s_lshl_b32 s4, s4, 7')
        a.emit('s_add_u32 s4, s4, s3')
        a.emit(f's_add_u32 s4, s4, {64*k0}')
        a.emit(f's_mul_i32 s86, s4, {ldw2}')
        a.emit('s_lshl_b32 s5, s5, 9')
        a.emit('s_add_u32 s86, s86, s5')
        a.emit('v_and_b32 v2, 15, v1')
        a.emit(f'v_min_u32 v3, {nk-1}, v2')
        a.emit('v_and_b32 v22, 16, v1')
        a.emit('v_add_lshl_u32 v22, v22, v3, 7')
        a.emit('v_min_u32 v2, 11, v2')
        a.emit('v_lshrrev_b32 v3, 2, v2')
        a.emit('v_and_b32 v2, 3, v2')
        a.emit('v_lshl_add_u32 v2, v3, 4, v2')
        a.emit('v_lshrrev_b32 v3, 4, v1')
        a.emit(f'v_min_u32 v3, {nk//4-1}, v3')
        a.emit(f'v_mul_u32_u24 v3, {256*ldw2}, v3')
        a.emit('v_lshl_add_u32 v23, v2, 7, v3')
        for h in range(hs):
            a.emit(f'buffer_load_dword v24, v23, s[{SW}:{SW+3}], s86 offen offset:{64*h}')
            a.emit(f'buffer_load_dword v25, v22, s[{SX}:{SX+3}], s85 offen offset:{128*k0+64*h}')
        return 2 * hs
    TG_ = int(ENV('TLBG', '0'))
    if TG_:
        srd(a, SO, 'ws0', 0, 256 * MB)
        a.emit(f's_and_b32 s3, s{S_WV}, 3')
        a.emit(f's_lshl2_add_u32 s3, s{S_CU}, s3')
        a.emit(f's_lshl_b32 s86, s3, {TG_}')
        tl = [f's_buffer_load_dword s84, s[{SO}:{SO+3}], s86', f's_add_u32 s86, s86, {128 << TG_}']
        if TG_ < 21: post += tl
    extra = tail_parks('wo', SP, lambda b: srd(b, SP, 'wo', 0, 2 * MB))
    sch0 = [int(c) for c in ENV('TSO0', '00000')]
    extra0 = tail_parks('wo', SP, lambda b: srd(b, SP, 'wo', 0, 2 * MB), sch0 + [sum(TSCH['wo']) - sum(sch0)])
    npk = 2 * sum(TSCH['wo']) if XD else 0
    def start():
        sides.cls_touch(a)
        if TG_:
            for x in tl: a.emit(x)
            a.emit(f's_and_b32 s3, s{S_WV}, 3')
            a.emit(f's_lshl2_add_u32 s3, s{S_CU}, s3')
            for w, sz in (('out', 4 * MB), ('wo', 2 * MB), ('w1', 7 * MB), ('b1', 4096), ('b2', 2048)):
                srd(a, SC, w, 0, sz)
                a.emit(f's_mul_i32 s4, s3, {sz // 128}')
                a.emit(f's_buffer_load_dword s84, s[{SC}:{SC+3}], s4')
        if ENV('DX', '2') != '1' or ENV('CLP', 'e') != 's': return 0
        srd(a, ST, 'ws0', WS_XP, LSTR + 4 * MB)
        a.emit('s_and_b32 s3, s2, 3')
        a.emit(f's_and_b32 s4, s{S_CU}, 3')
        a.emit('s_lshl2_add_u32 s3, s3, s4')
        a.emit('s_bfe_u32 s4, s2, 0x10002')
        a.emit(f's_lshr_b32 s5, s{S_CU}, 2')
        a.emit('s_lshl1_add_u32 s4, s5, s4')
        a.emit('s_lshl4_add_u32 s3, s3, s4')
        a.emit(f's_and_b32 s4, s{S_WV}, 3')
        a.emit('s_lshl2_add_u32 s3, s3, s4')
        a.emit('s_lshl_b32 s3, s3, 12')
        a.emit(f's_add_u32 s4, s3, {LSTR}')
        a.emit('v_lshlrev_b32 v2, 4, v1')
        for i in range(4): a.emit(f'v_mov_b32 v{32+i}, -1')
        for i in range(8): a.emit(f'buffer_store_dwordx4 v[32:35], v2, s[{ST}:{ST+3}], s{3+(i>>2)} offen offset:{1024*(i&3)} sc1')
        return 8
    final0 = None
    TL0 = int(ENV('TL0', '1' if DS else '0'))
    if DS:
        STQ0 = int(ENV('STQ0', '14'))
        assert HK[-1] < STQ0 <= 13 + TL0
        def start():
            nv = vpf()
            spf_start()
            sides.cls_touch(a)
            srd(a, ST, 'ws0', WS_ST0, 16 * 16384)
            stats4_setup(a, True)
            if D2:
                dbg_off(a, 20)
                a.emit(f's_and_b32 s{SC+1}, s{SC+1}, 0xffff')
                a.emit(f's_mov_b32 s{SC+2}, 256')
                a.emit(f's_mov_b32 s{SC+3}, 0x00020000')
            return nv
        pl2 = f'buffer_load_dword v21, v20, s[{SC}:{SC+3}], 0 offen sc1'
        ck2 = ['s_mov_b32 s5, 0x100000', 'L_attn_dchk:', 'v_cmp_ne_u32 vcc, 0x01010101, v21', 's_cbranch_vccz L_attn_dok', 's_sub_u32 s5, s5, 1\n  ' + pl2,
               's_waitcnt vmcnt(0)', 's_cbranch_scc0 L_attn_dchk', 'L_attn_dok:'] if D2 else []
        extra0 = lambda i: ck2 + stats4_loads(32, True) if i == STQ0 else [pl2] if D2 and i == STQ0 - 3 else []
        def chk0():
            a.emit('v_cmp_u_f32 vcc, v32, v33')
            a.emit('v_cmp_u_f32 s[4:5], v48, v49')
            a.emit('s_or_b64 s[4:5], vcc, s[4:5]')
            a.emit('s_cbranch_scc0 L_attn_sok')
            a.emit(f's_sub_u32 s{S_CNT}, s{S_CNT}, 1')
            a.emit('s_cbranch_scc1 L_attn_sok')
            for x in stats4_loads(32, True): a.emit(x + (' sc1' if x.startswith('buf') else ''))
            a.emit('s_waitcnt vmcnt(0)')
            a.emit('s_branch L_attn_schk')
            a.label('L_attn_sok')
        def final0():
            a.emit(f's_mov_b32 s{S_CNT}, 0x4000')
            a.emit(f"s_waitcnt vmcnt({side(Asm(), 0, 'issue')})")
            a.label('L_attn_schk')
            stats4_store(a, 32, LST, True, chk0 if D2 else None)
            a.emit('s_waitcnt lgkmcnt(0)')
    L.run('0', tail_issue=lambda: side(a, 0, 'issue'), ntail_vm=side(Asm(), 0, 'issue'), post=post, start=start, extra=extra0, tail_late=TL0, final=final0, exfirst=True)
    for i in (16,) if DS else (16, 17):
        if XD:
            for x in extra0(i): a.emit(x)
        a.emit('s_barrier')
    if XD:
        for x in extra0(18): a.emit(x)
    if ONE:
        a.emit(f's_branch L_{kind}_ldend')
    else:
        side(a, 0, 'finish')
        a.emit('s_endpgm')
    a.label(f'L_{kind}_ld1')
    if ',' in L.kord():
        L.ktable(int(L.kord().split(',')[1]))
        L.ot = int(ot); L.hx = HX - XH
        for x in ([] if ot else L.knext()): a.emit(x)
    srd(a, ST, 'ws0', WS_ST2, 16 * 16384)
    n1 = side(Asm(), 1, 'issue')
    def tail1():
        stats_loads(a, 32, True)
        side(a, 1, 'issue')
    def final1():
        a.emit(f's_waitcnt vmcnt({n1 + npk})')
        stats_reduce_store(a, 32, LST)
        a.emit('s_waitcnt lgkmcnt(0)')
    if T4:
        stats4_setup(a, True)
        TL1 = int(ENV('TL1', '0'))
        def final4():
            a.emit(f"s_waitcnt vmcnt({n1 if int(ENV('STQ', '14')) < 13 + TL1 < 15 else 0})")
            stats4_store(a, 32, LST, True)
            a.emit('s_waitcnt lgkmcnt(0)')
        L.run('1', tail_issue=lambda: side(a, 1, 'issue'), ntail_vm=n1, tail_late=TL1, final=final4, extra=lambda i: stats4_loads(32, True) if i == int(ENV('STQ', '14')) else [],
              post=fill, dep=lambda pf: dep_wait(a, kind, halo=True, postf=pf, pref=(lambda: a.emit('s_waitcnt vmcnt(0)')) if ot else None))
    else: L.run('1', tail_issue=tail1, ntail_vm=16 + n1, final=final1, extra=extra, post=fill, dep=(lambda pf: dep_wait(a, kind, halo=True, postf=pf)) if MEGA else None)
    a.emit('s_barrier')
    if not MEGA: side(a, 1, 'finish')
    a.label(f'L_{kind}_ldend')
    loader_end(a, kind, check=False)
    a.label(end)
    a.emit('s_endpgm')
    loader_first(a, kind)
    a(KD.format(name=f'{kind}l0_kernel'))
    if not MEGA:
        stub(a, f'{kind}l1_kernel', body, 1, tsidx + 4, False)
        a(KD.format(name=f'{kind}l1_kernel'))
    a.label(f'L_{kind}_c1')
    return LST + 1280
```

```python
from common import *
from gemmw1 import *

def res_addr(a, swv, sd, v):
    assert int(ENV('LM_WO', '2')) == 2 and int(ENV('LM_W2', '2')) == 2
    srd(a, sd, 'A_x', 0, 4 * MB)
    a.emit('s_and_b32 s3, s2, 3')
    a.emit(f's_and_b32 s4, s{S_CU}, 3')
    a.emit('s_lshl2_add_u32 s3, s3, s4')
    a.emit(f's_lshl2_add_u32 s3, s3, s{swv}')
    a.emit('s_lshl_b32 s3, s3, 16')
    a.emit('s_bfe_u32 s4, s2, 0x10002' if SPX else 's_and_b32 s4, s2, 4')
    a.emit(f's_lshr_b32 s5, s{S_CU}, 2')
    a.emit('s_lshl1_add_u32 s4, s5, s4' if SPX else 's_lshl1_add_u32 s4, s4, s5')
    a.emit('s_lshl_b32 s4, s4, 7')
    a.emit('s_add_u32 s3, s3, s4')
    a.emit('s_add_u32 s4, s3, 32768')
    a.emit(f'v_and_b32 v{v}, 15, v1')
    a.emit(f'v_lshlrev_b32 v{v+1}, 1, v1')
    a.emit(f'v_and_b32 v{v+1}, 32, v{v+1}')
    a.emit(f'v_lshl_add_u32 v{v}, v{v}, 11, v{v+1}')
    a.emit(f'v_lshrrev_b32 v{v+1}, 1, v1')
    a.emit(f'v_and_b32 v{v+1}, 16, v{v+1}')
    a.emit(f'v_add_u32 v{v}, v{v}, v{v+1}')

def dbg_off(a, v):
    a.emit(f's_lshl_b32 s3, s{S_MT}, 2')
    a.emit('s_sub_u32 s3, s3, 4')
    a.emit(f'v_and_b32 v{v}, 7, v1')
    a.emit(f'v_add_u32 v{v}, s3, v{v}')
    a.emit(f'v_max_i32 v{v}, 0, v{v}')
    a.emit(f'v_lshlrev_b32 v{v}, 2, v{v}')

def res_loads(vd, v, sd):
    return [f'buffer_load_dwordx4 v[{vd+4*i}:{vd+3+4*i}], v{v}, s[{sd}:{sd+3}], s{3+(i>>1)} offen offset:{64*(i&1)}' for i in range(4)]

def gen_qkv(a, tsidx, side):
    kind = 'attn'
    K = 1024; lda2 = 2048; ldw2 = 6144
    S = 3; LM = int(ENV('LM_QKV', '3'))
    XH = 16384 + 6 * 4096
    STAGE = XH + 2048
    LST = S * STAGE
    EX = 1024
    N = 16
    body = f'L_{kind}_body'; end = f'L_{kind}_end'
    VB, VA = 4, 10
    VXW, VPE, VPO, VCE, VCO, VVE, VVO, VS1, VS4, VKA, VKB, MAP, MAC, MBP, MBC, VO = range(16, 32)
    M_ODD, M_UPA, M_UPB, M_FA, M_FB = 48, 50, 52, 54, 14
    F = [32, 76]; ACC = 128; HACC = 224; ONES = 236
    acc = lambda jn, jm: ACC + (jn * 4 + jm) * 4
    fx = lambda s, jm: F[s] + jm * 4
    fw = lambda s, jn: F[s] + 20 + jn * 4
    a.label(f'L_{kind}_c0')
    stub(a, f'{kind}l0_kernel', body, 0, tsidx, True)
    a.label(body)
    ot = kind in OT
    HX = LST + 1280
    tile_map(a, LM, end)
    if ot and LM != 2:
        a.emit(f's_cmp_eq_u32 s{S_LAYER}, 0')
        a.emit(f's_cbranch_scc1 L_{kind}_map')
        tile_map(a, 2, None)
        a.label(f'L_{kind}_map')
    a.emit(f's_cmp_ge_u32 s{S_WV}, 4')
    a.emit(f's_cbranch_scc1 L_{kind}_loader')
    if ENV('CTE', '0') == '1': code_touch(a, 'L_attn_c0', 'L_w2_c1', int(ENV('CTN', '256')))
    a.emit(f's_and_b32 s{S_WM}, s{S_WV}, 1')
    a.emit(f's_lshr_b32 s{S_WN}, s{S_WV}, 1')
    a.emit('v_and_b32 v3, 31, v1')
    a.emit('v_lshlrev_b32 v3, 2, v3')
    a.emit(f'v_add_u32 v3, {XH}, v3')
    for i in range(4): a.emit(f'v_mov_b32 v{ONES+i}, 0x3f803f80')
    a.emit(f'ds_write_b32 v3, v{ONES}')
    a.emit(f'ds_write_b32 v3, v{ONES} offset:{STAGE}')
    a.emit(f'v_add_u32 v3, {2*STAGE}, v3')
    a.emit(f'ds_write_b32 v3, v{ONES}')
    if ot: a.emit(f'ds_write_b32 v3, v{ONES} offset:{HX - XH - 2 * STAGE}')
    a.emit('v_and_b32 v3, 15, v1')
    a.emit('v_lshrrev_b32 v2, 4, v1')
    a.emit('v_lshrrev_b32 v33, 1, v3')
    a.emit(f's_lshl_b32 s8, s{S_WM}, 13')
    for ks in range(2):
        if ks: a.emit(f'v_add_u32 v{VB+ks}, 4, v2')
        a.emit(f'v_xor_b32 v{VB+ks}, v{VB+ks if ks else 2}, v33')
        a.emit(f'v_lshlrev_b32 v{VB+ks}, 4, v{VB+ks}')
        a.emit(f'v_lshl_add_u32 v{VB+ks}, v3, 7, v{VB+ks}')
        a.emit(f'v_add_u32 v{VB+4+ks}, {XH}, v{VB+ks}')
        a.emit(f'v_add_u32 v{VB+ks}, s8, v{VB+ks}')
    wbase(a, 34, 33)
    a.emit(f's_lshl_b32 s8, s{S_WV}, 5')
    a.emit('v_xor_b32 v34, s8, v34')
    a.emit(f'v_add_u32 v{VB+2}, 16384, v34')
    a.emit(f'v_xor_b32 v{VB+3}, 32, v{VB+2}')
    i0 = len(a.lines)
    a.emit('v_and_b32 v35, 1, v2')
    a.emit(f'v_xor_b32 v35, s{S_WM}, v35')
    a.emit(f's_lshl_b32 s8, s{S_MT}, 7')
    a.emit(f's_lshl_b32 s9, s{S_WM}, 6')
    a.emit('s_add_u32 s8, s8, s9')
    a.emit(f's_add_u32 s10, s8, s{S_NT}')
    a.emit('s_lshl_b32 s10, s10, 11')
    a.emit(f's_lshl_b32 s11, s{S_WN}, 10')
    a.emit('s_add_u32 s10, s10, s11')
    a.emit('v_lshl_add_u32 v33, v3, 4, s10')
    a.emit('v_lshl_add_u32 v33, v35, 9, v33')
    a.emit('v_lshrrev_b32 v34, 1, v2')
    a.emit(f'v_lshl_add_u32 v{VO}, v34, 8, v33')
    a.emit(f's_mul_i32 s10, s{S_WN}, {14336 if XD else 24576}')
    a.emit(f's_add_u32 s10, s10, {EX}')
    a.emit(f's_lshl_b32 s11, s{S_WM}, 10')
    a.emit('s_add_u32 s4, s10, s11')
    a.emit('s_sub_u32 s5, s10, s11')
    a.emit(f's_mul_i32 s6, s{S_WM}, 6144')
    a.emit(f'v_lshl_add_u32 v{VXW}, v1, 4, s4')
    a.emit(f'v_add_u32 v{VPE}, s6, v{VXW}')
    a.emit(f'v_lshl_add_u32 v{VPO}, v1, 4, s5')
    a.emit(f'v_add_u32 v{VPO}, s6, v{VPO}')
    a.emit(f'v_lshl_add_u32 v{VCE}, v2, 8, s4')
    a.emit(f'v_lshl_add_u32 v{VCO}, v2, 8, s5')
    a.emit(f'v_lshl_add_u32 v{VVE}, v3, 4, s4')
    a.emit(f'v_lshl_add_u32 v{VVO}, v3, 4, s5')
    a.emit(f's_lshl_b32 s10, s{S_WM}, 8')
    a.emit(f's_add_u32 s10, s10, {LST}')
    a.emit(f'v_lshl_add_u32 v{VS1}, v3, 2, s10')
    a.emit(f'v_lshl_add_u32 v{VS4}, v2, 4, s10')
    a.emit('v_and_b32 v33, 1, v3')
    a.emit(f'v_cmp_eq_u32 s[{M_ODD}:{M_ODD+1}], 1, v33')
    a.emit('v_lshl_add_u32 v34, v2, 2, v33')
    a.emit('v_add_u32 v35, 2, v34')
    a.emit(f'v_cmp_gt_u32 s[{M_UPA}:{M_UPA+1}], v34, v3')
    a.emit(f'v_cmp_gt_u32 s[{M_UPB}:{M_UPB+1}], v35, v3')
    a.emit('v_mov_b32 v36, 0xffff')
    a.emit('v_mov_b32 v37, 0xffff0000')
    a.emit(f'v_cndmask_b32 v36, v36, v37, s[{M_ODD}:{M_ODD+1}]')
    a.emit(f's_add_u32 s10, s10, {640 + 64}')
    a.emit('v_lshl_add_u32 v34, v34, 2, s10')
    a.emit('v_lshl_add_u32 v35, v35, 2, s10')
    a.emit('v_subrev_u32 v38, 64, v34')
    a.emit('v_subrev_u32 v39, 64, v35')
    a.emit(f'v_cndmask_b32 v{VKA}, v34, v38, s[{M_UPA}:{M_UPA+1}]')
    a.emit(f'v_cndmask_b32 v{VKB}, v35, v39, s[{M_UPB}:{M_UPB+1}]')
    a.emit(f'v_cndmask_b32 v{MAP}, 0, v36, s[{M_UPA}:{M_UPA+1}]')
    a.emit(f'v_cndmask_b32 v{MBP}, 0, v36, s[{M_UPB}:{M_UPB+1}]')
    a.emit(f'v_xor_b32 v{MAC}, v{MAP}, v36')
    a.emit(f'v_xor_b32 v{MBC}, v{MBP}, v36')
    a.emit('s_cmp_eq_u32 s8, 0')
    a.emit(f's_cselect_b64 s[{M_FA}:{M_FA+1}], s[{M_UPA}:{M_UPA+1}], 0')
    a.emit(f's_cselect_b64 s[{M_FB}:{M_FB+1}], s[{M_UPB}:{M_UPB+1}], 0')
    if ot:
        a.emit(f's_cmp_lg_u32 s{S_LAYER}, 0')
        a.emit(f's_cbranch_scc1 L_{kind}_nozero')
    for i in list(range(122 if DS else 120, 236)) + ([] if XD else list(range(240, 256))): a.emit(f'v_mov_b32 v{i}, 0')
    if DS:
        a.emit('s_waitcnt lgkmcnt(0)')
        a.emit(f's_lshl_b32 s3, s{S_WN}, 5')
        a.emit('s_add_u32 s3, s3, s8')
        a.emit(f's_lshl_b32 s4, s{S_NT}, 14')
        a.emit('s_lshl3_add_u32 s3, s3, s4')
        a.emit('v_lshrrev_b32 v121, 1, v2')
        a.emit('v_lshl_add_u32 v121, v121, 4, v3')
        a.emit('v_and_b32 v120, 1, v2')
        a.emit('v_lshl_add_u32 v121, v121, 1, v120')
        a.emit('v_lshl_add_u32 v120, v121, 2, s3')
        srd(a, ST, 'ws0', WS_ST0, 16 * 16384)
        srd(a, SP, 'ws0', WS_FL, FLS)
        a.emit('s_lshl_b32 s3, s2, 11')
        if D2:
            a.emit(f's_cmp_lg_u32 s{S_WV}, 0')
            a.emit(f's_cbranch_scc1 L_{kind}_noclr')
            a.emit(f's_lshl_b32 s5, s{S_MT}, 10')
            a.emit('s_add_u32 s4, s4, s5')
            a.emit('v_lshlrev_b32 v121, 4, v1')
            for i in range(4): a.emit(f'v_mov_b32 v{40+i}, -1')
            a.emit(f'buffer_store_dwordx4 v[40:43], v121, s[{ST}:{ST+3}], s4 offen sc1')
            for i in range(2): a.emit(f'buffer_store_dwordx4 v[128:131], v121, s[{SP}:{SP+3}], s3 offen offset:{1024*i} sc1')
            a.emit('v_mov_b32 v126, 1')
            a.label(f'L_{kind}_noclr')
        else:
            a.emit('v_lshlrev_b32 v121, 3, v0')
            a.emit(f'buffer_store_dwordx2 v[126:127], v121, s[{SP}:{SP+3}], s3 offen sc1')
            dbg_off(a, 121)
        a.emit(f's_and_b32 s{SC+1}, s{SC+1}, 0xffff')
        a.emit(f's_mov_b32 s{SC+2}, 256')
        a.emit(f's_mov_b32 s{SC+3}, 0x00020000')
        a.emit('s_mov_b32 s7, 0x3f803f80')
    if ot: a.label(f'L_{kind}_nozero')
    a.emit('s_waitcnt lgkmcnt(0)')
    srd(a, SO, 'ws', WS_O, 4 * MB)
    clear_flags(a, 0)
    if ENV('CTE', '0') == '0': code_touch(a, 'L_attn_c0', 'L_w2_c1', int(ENV('CTN', '256')))
    CLQ = ENV('DX', '2') == '1' and ENV('CLP', 'e') == 'q'
    if CLQ:
        srd(a, ST, 'ws', WS_XP, 4 * MB)
        a.emit(f's_or_b32 s{ST+1}, s{ST+1}, 0x100000')
        a.emit(f's_mov_b32 s{ST+3}, 0x00800000')
        a.emit('s_and_b32 s3, s2, 3')
        a.emit(f's_and_b32 s4, s{S_CU}, 3')
        a.emit('s_lshl2_add_u32 s3, s3, s4')
        a.emit('s_bfe_u32 s4, s2, 0x10002')
        a.emit(f's_lshr_b32 s5, s{S_CU}, 2')
        a.emit('s_lshl1_add_u32 s4, s5, s4')
        a.emit('s_lshl4_add_u32 s3, s3, s4')
        a.emit(f's_lshl2_add_u32 s3, s3, s{S_WV}')
        a.emit(f's_lshl_b32 s{S_T}, s3, 12')
        for i in range(4): a.emit(f'v_mov_b32 v{116+i}, -1')
    def warm():
        a.emit(f's_cmp_lg_u32 s{S_LAYER}, 0')
        a.emit(f's_cbranch_scc1 L_{kind}_nowarm')
        a.emit('s_lshl_b32 s3, s2, 2')
        a.emit(f's_add_u32 s3, s3, s{S_WV}')
        srd(a, SX, 'xs', 0, 4 * MB); srd(a, SW, 'wqkv', 0, 6 * MB)
        a.emit('v_min_u32 v126, 31, v1')
        a.emit('v_min_u32 v127, 47, v1')
        a.emit('v_lshlrev_b32 v126, 7, v126')
        a.emit('v_lshlrev_b32 v127, 7, v127')
        a.emit('s_lshl_b32 s4, s3, 12')
        a.emit(f's_mul_i32 s5, s3, {48 * 128}')
        a.emit(f'buffer_load_dword v2, v126, s[{SX}:{SX+3}], s4 offen')
        a.emit(f'buffer_load_dword v3, v127, s[{SW}:{SW+3}], s5 offen')
        a.emit('v_mov_b32 v126, 0')
        a.emit('v_mov_b32 v127, 0')
        a.label(f'L_{kind}_nowarm')
    WARM = ENV('WARM', '0')
    if WARM == '1': warm()
    mid = []
    if ot: mid = a.lines[i0:]; del a.lines[i0:]
    def reads(s, ks, hl=True):
        o = []
        if 'noread' in DBG: return o
        for jm in range(4):
            o.append(f'ds_read_b128 v[{fx(s,jm)}:{fx(s,jm)+3}], v{VA+ks} offset:{jm*2048}')
        if hl: o.append(f'ds_read_b128 v[{fx(s,4)}:{fx(s,4)+3}], v{VA+4+ks}')
        for jn in range(6):
            for h in range(2):
                r = fw(s, jn) + 2 * h
                o.append(f'ds_read_b64_tr_b16 v[{r}:{r+1}], v{VA+2+(jn&1)} offset:{(jn>>1)*8192+ks*4096+h*512}')
        return o
    def mfma(c, x, y, cin=None):
        return f'v_mfma_f32_16x16x32_bf16 v[{c}:{c+3}], v[{x}:{x+3}], v[{y}:{y+3}], ' + (f'v[{c}:{c+3}]' if cin is None else cin)
    def mf(s):
        o = []
        if 'nomfma' in DBG: return ['s_nop 0']
        for jn, jm in mf_order(6, 5, lambda jn, jm: jm == 4 and jn & 1):
            if True:
                c = acc(jn, jm) if jm < 4 else HACC + (jn >> 1) * 4
                o.append(mfma(c, fw(s, jn), fx(s, jm)) if jn < 4 else mfma(c, fx(s, jm), fw(s, jn)))
        return o
    SA = [(240, 244), (248, 252), (120, 124)]
    def mfv(hh):
        def f(s):
            o = mf(s)
            ex = []
            for i, jm in enumerate([2 * hh, 2 * hh + 1] + ([4] if hh == 0 else [])):
                ex.append(mfma(SA[i][0], ONES, fx(s, jm)))
                ex.append(mfma(SA[i][1], fx(s, jm), fx(s, jm)))
            return o if 'nostat' in DBG else ex + o
        return f
    def select():
        if CLQ:
            for i in range(4): a.emit(f'buffer_store_dwordx4 v[116:119], off, s[{ST}:{ST+3}], s{S_T} offset:{1024*i} sc1')
        if WARM == '2': warm(); a.emit('s_nop 1')
        if not ot:
            a.emit(f's_cmp_lg_u32 s{S_LAYER}, 0')
            a.emit(f's_cbranch_scc1 L_{kind}_loop')
        if XD:
            for i in range(240, 256): a.emit(f'v_mov_b32 v{i}, 0')
        a.emit(f's_cmp_lg_u32 s{S_WN}, 0')
        a.emit(f's_cbranch_scc1 L_{kind}_loopb')
        clear_flags(a, 1, 4 if CLQ else 0)
    def post():
        a.emit('v_and_b32 v32, 3, v1')
        a.emit('v_cmp_eq_u32 s[4:5], 1, v32')
        a.emit('v_cmp_eq_u32 s[6:7], 2, v32')
        a.emit('v_cmp_eq_u32 s[8:9], 3, v32')
        a.emit('v_bfe_u32 v33, v1, 2, 2')
        a.emit('v_lshrrev_b32 v34, 4, v1')
        a.emit('v_cmp_eq_u32 s[10:11], v33, v34')
        a.emit(f's_lshl_b32 s3, s{S_WN}, 7')
        a.emit(f'v_add_u32 v35, s3, v{VS1}')
        a.emit('v_and_b32 v36, 15, v1')
        a.emit(f's_cmp_eq_u32 s{S_WV}, 0')
        a.emit('s_cselect_b32 s3, 0, 576')
        a.emit(f's_add_u32 s3, s3, {LST}')
        a.emit('v_lshl_add_u32 v36, v36, 2, s3')
        for (sm, sq) in SA:
            a.emit(f'v_cndmask_b32 v{sm+1}, v{sq}, v{sq+1}, s[4:5]')
        for (sm, sq) in SA:
            a.emit(f'v_cndmask_b32 v{sm+1}, v{sm+1}, v{sq+2}, s[6:7]')
        for (sm, sq) in SA:
            a.emit(f'v_cndmask_b32 v{sm+1}, v{sm+1}, v{sq+3}, s[8:9]')
        for (sm, sq) in SA: stats_finish(a, sm)
        a.emit('s_mov_b64 exec, s[10:11]')
        a.emit(f'ds_write2_b32 v35, v{SA[0][0]}, v{SA[0][0]+1} offset0:16 offset1:176')
        a.emit(f'ds_write2_b32 v35, v{SA[1][0]}, v{SA[1][0]+1} offset0:32 offset1:192')
        a.emit(f'ds_write2_b32 v36, v{SA[2][0]}, v{SA[2][0]+1} offset0:0 offset1:160')
        a.emit('s_mov_b64 exec, -1')
        if XD:
            res_addr(a, S_WV, SX, 32)
        a.emit('s_waitcnt lgkmcnt(0)')
        if XD:
            for i in range(4):
                a.emit(f'buffer_load_dwordx4 v[{240+4*i}:{243+4*i}], v32, s[{SX}:{SX+3}], s{3+(i>>1)} offen offset:{64*(i&1)}')
        a.emit('s_barrier')
    own = lambda s: [mfma(acc(jn, jm), *((fw(s, jn), fx(s, jm)) if jn < 4 else (fx(s, jm), fw(s, jn))), None if s else '0') for jn, jm in mf_order(6, 4)]
    hw = lambda ks, c: fw(1, 2 * c) if ks else fx(1, c)
    hal = ([f'v_mov_b32 v{fx(1,c)+i}, v{fw(0,2*c)+i}' for c in range(3) for i in range(4)],
           [f'ds_read_b128 v[{fx(1,3+ks)}:{fx(1,3+ks)+3}], v{VA+4+ks} offset:{HX - XH - STAGE}' for ks in range(2)],
           [mfma(HACC + 4 * c, *((hw(ks, c), fx(1, 3 + ks)) if c < 2 else (fx(1, 3 + ks), hw(ks, c))), None if ks else '0') for ks in range(2) for c in range(3)])
    hooks = None
    if DS:
        HK = [int(x) for x in ENV('HK', '-1,-2,-4,-5,11,13').split(',')]
        def dots(s):
            o = [f's_cmp_lg_u32 s{S_WN}, 0', f's_cbranch_scc1 L_{kind}_dot{s}']
            for hh in range(2):
                for j in range(8):
                    r = fx(s, 2 * hh) + (j >> 1) + 4 * (j & 1)
                    o += [f'v_dot2_f32_bf16 v{122+(j&1)}, v{r}, s7, v{122+(j&1)}', f'v_dot2_f32_bf16 v{124+(j&1)}, v{r}, v{r}, v{124+(j&1)}']
                o += [f'L_{kind}_dote{s}:'] if hh else [f's_branch L_{kind}_dote{s}', f'L_{kind}_dot{s}:']
            return o
        h1 = dots(1) + ['s_nop 2', 'v_permlane32_swap_b32 v122, v123', 'v_permlane32_swap_b32 v124, v125', 'v_add_f32 v122, v122, v123', 'v_add_f32 v124, v124, v125',
               'v_mov_b32 v126, 1', 's_nop 0', 'v_permlane16_swap_b32 v122, v124', 'v_add_f32 v122, v122, v124', f'buffer_store_dword v122, v120, s[{ST}:{ST+3}], 0 offen sc1']
        w0 = [f's_cmp_lg_u32 s{S_WV}, 0', f's_cbranch_scc1 L_{kind}_loop']
        pl = f'buffer_load_dword v127, v121, s[{SC}:{SC+3}], 0 offen sc1'
        b = Asm(); res_addr(b, S_WV, SX, 122); rs = [l.strip() for l in b.lines] + res_loads(240, 122, SX)
        hooks = list(zip(HK + [int(ENV('HKR', '14'))], [dots(0), h1, ['s_waitcnt vmcnt(0)'],
            w0 + [f's_lshl4_add_u32 s3, s{S_MT}, s{S_NT}', 's_mov_b64 exec, 1', f'buffer_store_byte v126, off, s[{SC}:{SC+3}], s3 sc1', 's_mov_b64 exec, -1'], w0 + [pl],
            w0 + ['s_mov_b32 s5, 0x100000', 'L_attn_chkl:', 's_waitcnt vmcnt(0)', 'v_cmp_ne_u32 vcc, 0x01010101, v127', f's_cbranch_vccz L_{kind}_loop',
                  pl, 's_sub_u32 s5, s5, 1', 's_cbranch_scc0 L_attn_chkl'], rs]))
        assert HK[:2] == [-1, -2]
        if D2: hooks = [(-1, dots(0) + w0 + hooks[2][1] + hooks[3][1][2:]), (-2, [x.replace('v_mov_b32 v126, 1', 's_nop 0') for x in h1]), hooks[-1]]
        if ENV('XSL'):
            xs = [int(x) for x in ENV('XSL').split(',')]
            hooks[1] = (hooks[1][0], hooks[1][1] + [f's_sleep {xs[0]}'])
            hooks[2] = (hooks[2][0], hooks[2][1] + [f's_sleep {xs[1]}'])
    assert ot or not DS
    big_loop(a, kind, N, S, STAGE, 6, VB, VA, reads, mf, variants=None if DS else {'a': mfv(0), 'b': mfv(1)}, select=select, post=post, mid=mid, hooks=hooks,
             ot=own if ot else None, halo=hal if ot else None)
    PR = 32
    CS = 48
    CV = 64
    MS = 66
    RK = 76
    M4 = 84
    R4 = 104
    VV = [4 if XD else 240, 224]
    for b in range(5):
        a.emit(f'ds_read2_b32 v[{MS+2*b}:{MS+2*b+1}], v{VS1} offset0:{16*b} offset1:{160+16*b}')
    for p in range(2):
        a.emit(f'ds_read2_b32 v[{RK+2*p}:{RK+2*p+1}], v{VKA} offset0:{32*p} offset1:{32*p+16}')
        a.emit(f'ds_read2_b32 v[{RK+4+2*p}:{RK+5+2*p}], v{VKB} offset0:{32*p} offset1:{32*p+16}')
    for c in range(3):
        a.emit(f'ds_write_b128 v{VXW}, v[{HACC+4*c}:{HACC+4*c+3}] offset:{2048*c}')
    a.emit(f's_cmp_eq_u32 s{S_WM}, 1')
    a.emit(f's_cbranch_scc1 L_{kind}_nop3')
    for t in range(2, 6):
        a.emit(f'ds_write_b128 v{VXW}, v[{acc(t,3)}:{acc(t,3)+3}] offset:{6144+1024*t}')
    a.label(f'L_{kind}_nop3')
    for b in range(5):
        a.emit(f'ds_read_b128 v[{M4+4*b}:{M4+4*b+3}], v{VS4} offset:{64*b}')
        a.emit(f'ds_read_b128 v[{R4+4*b}:{R4+4*b+3}], v{VS4} offset:{640+64*b}')
    a.emit('s_waitcnt lgkmcnt(10)')
    a.emit('s_barrier')
    for t in range(4):
        a.emit(f'ds_read_b128 v[{CS+4*t}:{CS+4*t+3}], v{VCO if t&1 else VCE} offset:{1024*t}')
    for t in range(2):
        a.emit(f'ds_read_b32 v{CV+t}, v{VVO if t else VVE} offset:{4096+1024*t}')
    for t in range(4):
        a.emit(f'ds_read_b128 v[{PR+4*t}:{PR+4*t+3}], v{VPO if t&1 else VPE} offset:{2048+1024*t}')
    sc = 32 ** -0.5 * 1.4426950408889634
    for b in range(4):
        a.emit(f'v_mul_f32 v{MS+2*b+3}, {f2u(sc):#x}, v{MS+2*b+3}')
    for b in range(4):
        a.emit(f'v_mul_f32 v{RK+b}, v{RK+b}, v{MS+2*b+3}')
        a.emit(f'v_mul_f32 v{RK+4+b}, v{RK+4+b}, v{MS+2*b+3}')
    a.emit('s_waitcnt lgkmcnt(6)')
    def qk(x, y, cs, b, d):
        m = f'v[{MS+2*b}:{MS+2*b+1}]'
        for (z, c) in ((x, cs), (y, cs + 4)):
            for h in range(2):
                a.emit(f'v_pk_fma_f32 v[{z+2*h}:{z+2*h+1}], v[{c+2*h}:{c+2*h+1}], {m}, v[{z+2*h}:{z+2*h+1}] op_sel:[0,0,0] op_sel_hi:[1,0,1] neg_lo:[0,1,0] neg_hi:[0,1,0]')
        a.emit(f'v_cvt_pk_bf16_f32 v{d}, v{x}, v{x+1}')
        a.emit(f'v_cvt_pk_bf16_f32 v{d+1}, v{x+2}, v{x+3}')
        a.emit(f'v_cvt_pk_bf16_f32 v{d+2}, v{y}, v{y+1}')
        a.emit(f'v_cvt_pk_bf16_f32 v{d+3}, v{y+2}, v{y+3}')
    Q = lambda b: acc(0, b); Kf = lambda b: acc(2, b) if b >= 0 else PR
    Sc = lambda b: acc(1, b); Sp = lambda b: acc(3, b)
    for b in range(4):
        qk(acc(0, b), acc(1, b), CS, b + 1, Q(b))
        qk(acc(2, b), acc(3, b), CS + 8, b + 1, Kf(b))
        if b == 3:
            a.emit('s_waitcnt lgkmcnt(0)')
            qk(PR, PR + 4, CS + 8, 0, PR)
        if b >= 1:
            a.emit(mfma(Sc(b - 1), Kf(b - 1), Q(b - 1), '0'))
            if b >= 2: a.emit(mfma(Sp(b - 1), Kf(b - 2), Q(b - 1), '0'))
    a.emit(mfma(Sc(3), Kf(3), Q(3), '0'))
    a.emit(mfma(Sp(3), Kf(2), Q(3), '0'))
    a.emit(mfma(Sp(0), Kf(-1), Q(0), '0'))
    def vconv(x, t, b):
        cv = f'v[{CV}:{CV+1}]'
        for h in range(2):
            a.emit(f'v_pk_fma_f32 v[{x+2*h}:{x+2*h+1}], v[{M4+4*b+2*h}:{M4+4*b+2*h+1}], {cv}, v[{x+2*h}:{x+2*h+1}] op_sel:[0,{t},0] op_sel_hi:[1,{t},1] neg_lo:[1,0,0] neg_hi:[1,0,0]')
        for h in range(2):
            a.emit(f'v_pk_mul_f32 v[{x+2*h}:{x+2*h+1}], v[{x+2*h}:{x+2*h+1}], v[{R4+4*b+2*h}:{R4+4*b+2*h+1}]')
        for h in range(2):
            a.emit(f'v_cvt_pk_bf16_f32 v{VV[t]+2*b+h}, v{x+2*h}, v{x+2*h+1}')
    for t in range(2):
        vconv(PR + 8 + 4 * t, t, 0)
        for b in range(4): vconv(acc(4 + t, b), t, b + 1)
    T = lambda b: 32 + 4 * b
    odd = f's[{M_ODD}:{M_ODD+1}]'
    for b in (1, 2, 3, 0):
        a.emit(f'v_cndmask_b32 v{Sc(b)}, v{Sc(b)}, v{Sc(b)+1}, {odd}')
        a.emit(f'v_cndmask_b32 v{Sp(b)}, v{Sp(b)}, v{Sp(b)+1}, {odd}')
        a.emit(f'v_cndmask_b32 v{Sc(b)+2}, v{Sc(b)+2}, v{Sc(b)+3}, {odd}')
        a.emit(f'v_cndmask_b32 v{Sp(b)+2}, v{Sp(b)+2}, v{Sp(b)+3}, {odd}')
        a.emit(f'v_cndmask_b32 v{T(b)}, v{Sc(b)}, v{Sp(b)}, s[{M_UPA}:{M_UPA+1}]')
        a.emit(f'v_cndmask_b32 v{T(b)+1}, v{Sc(b)+2}, v{Sp(b)+2}, s[{M_UPB}:{M_UPB+1}]')
        a.emit(f'v_mul_f32 v{T(b)}, v{T(b)}, v{RK+b}')
        a.emit(f'v_mul_f32 v{T(b)+1}, v{T(b)+1}, v{RK+4+b}')
    a.emit(f'v_mov_b32 v48, {f2u(-1e9 * 1.4426950408889634):#x}')
    a.emit(f'v_cndmask_b32 v{T(0)}, v{T(0)}, v48, s[{M_FA}:{M_FA+1}]')
    a.emit(f'v_cndmask_b32 v{T(0)+1}, v{T(0)+1}, v48, s[{M_FB}:{M_FB+1}]')
    for b in range(4): a.emit(f'v_max_f32 v{T(b)+2}, v{T(b)}, v{T(b)+1}')
    for op in ('32', '16'):
        for b in range(4): a.emit(f'v_mov_b32 v{T(b)+3}, v{T(b)+2}')
        for b in range(4): a.emit(f'v_permlane{op}_swap_b32 v{T(b)+2}, v{T(b)+3}')
        for b in range(4): a.emit(f'v_max_f32 v{T(b)+2}, v{T(b)+2}, v{T(b)+3}')
    for b in range(4):
        a.emit(f'v_sub_f32 v{T(b)}, v{T(b)}, v{T(b)+2}')
        a.emit(f'v_sub_f32 v{T(b)+1}, v{T(b)+1}, v{T(b)+2}')
    for b in range(4):
        a.emit(f'v_exp_f32 v{T(b)}, v{T(b)}')
        a.emit(f'v_exp_f32 v{T(b)+1}, v{T(b)+1}')
    P = lambda b: acc(0, b)
    for b in range(4):
        a.emit(f'v_cvt_pk_bf16_f32 v{T(b)}, v{T(b)}, v{T(b)}')
        a.emit(f'v_cvt_pk_bf16_f32 v{T(b)+1}, v{T(b)+1}, v{T(b)+1}')
        a.emit(f'v_and_b32 v{P(b)}, v{T(b)}, v{MAP}')
        a.emit(f'v_and_b32 v{P(b)+1}, v{T(b)+1}, v{MBP}')
        a.emit(f'v_and_b32 v{P(b)+2}, v{T(b)}, v{MAC}')
        a.emit(f'v_and_b32 v{P(b)+3}, v{T(b)+1}, v{MBC}')
        if b >= 1:
            q = b - 1
            a.emit(mfma(acc(1, q), ONES, P(q), '0'))
            a.emit(mfma(acc(4, q), VV[0] + 2 * q, P(q), '0'))
            a.emit(mfma(acc(5, q), VV[1] + 2 * q, P(q), '0'))
    q = 3
    a.emit(mfma(acc(1, q), ONES, P(q), '0'))
    a.emit(mfma(acc(4, q), VV[0] + 2 * q, P(q), '0'))
    a.emit(mfma(acc(5, q), VV[1] + 2 * q, P(q), '0'))
    for b in range(4):
        r = acc(1, b); d = 48 + 4 * b
        a.emit(f'v_rcp_f32 v{r}, v{r}')
        a.emit(f's_mov_b32 s3, {b * 16 * 2048}')
        for t in range(2):
            x = acc(4 + t, b)
            for h in range(2):
                a.emit(f'v_pk_mul_f32 v[{x+2*h}:{x+2*h+1}], v[{x+2*h}:{x+2*h+1}], v[{r}:{r+1}] op_sel_hi:[1,0]')
        for t in range(2):
            x = acc(4 + t, b)
            for h in range(2):
                a.emit(f'v_cvt_pk_bf16_f32 v{d+2*t+h}, v{x+2*h}, v{x+2*h+1}')
        a.emit('s_nop 1')
        a.emit(f'v_permlane16_swap_b32 v{d}, v{d+2}')
        a.emit(f'v_permlane16_swap_b32 v{d+1}, v{d+3}')
        a.emit(f'buffer_store_dwordx4 v[{d}:{d+3}], v{VO}, s[{SO}:{SO+3}], s3 offen{stf(kind)}')
    compute_end(a, kind)
    a.label(f'L_{kind}_loader')
    L = Loader(a, kind, K, lda2, ldw2, [0, 2048, 4096], 128, S, STAGE, halo=XH, rot=int(ENV('ROT_QKV', '0')))
    L.skip = DS
    L.setup()
    a.emit('s_waitcnt lgkmcnt(0)')
    srd_xs(a, SX); srd(a, SW, 'wqkv', 0, 1024 * 6144)
    import sides
    fill = []
    if ENV('DX', '2') == '1' and ENV('CLP', 'e') == 'l':
        a.emit('s_and_b32 s3, s2, 3')
        a.emit(f's_and_b32 s4, s{S_CU}, 3')
        a.emit('s_lshl2_add_u32 s3, s3, s4')
        a.emit('s_bfe_u32 s4, s2, 0x10002')
        a.emit(f's_lshr_b32 s5, s{S_CU}, 2')
        a.emit('s_lshl1_add_u32 s4, s5, s4')
        a.emit('s_lshl4_add_u32 s3, s3, s4')
        a.emit(f's_and_b32 s4, s{S_WV}, 3')
        a.emit('s_lshl2_add_u32 s3, s3, s4')
        a.emit('s_lshl_b32 s3, s3, 12')
        srd(a, SB, 'ws', WS_XP, 0 if 'fill0' in DBG else 4096)
        if 'fillfl' in DBG:
            srd(a, SB, 'ws0', WS_FL + MB, 4096)
            a.emit('s_and_b32 s3, s3, 0xfffff')
        a.emit(f's_add_u32 s{SB}, s{SB}, s3')
        a.emit(f's_addc_u32 s{SB+1}, s{SB+1}, 0')
        FW_ = int(ENV('FILLW', '2'))
        a.emit(f'v_mul_u32_u24 v29, {4 * FW_}, v1')
        for i in range(4): a.emit(f'v_mov_b32 v{24+i}, -1')
        fill = [f'buffer_store_dword{"x" + str(FW_)} v[24:{23 + FW_}], v29, s[{SB}:{SB+3}], 0 offen' + ('' if 'fillwb' in DBG else ' sc1'), f'v_add_u32 v29, {256 * FW_}, v29']
        assert sides.STV[3] == 0
    a.emit(f's_cmp_lg_u32 s{S_LAYER}, 0')
    a.emit(f's_cbranch_scc1 L_{kind}_ld1')
    post = list(sides.stouch_post(a, kind)) + fill
    SPF = [int(x) for x in ENV('SPF', '0,0,2').split(',')]
    def spf():
        hs = range(SPF[2])
        return ([f's_buffer_load_dword s84, s[{SX}:{SX+3}], s85 offset:{2048*r+64*h}' for r in range(2) for h in hs] +
                [f's_buffer_load_dword s84, s[{SW}:{SW+3}], s86 offset:{2048*p+64*h}' for p in range(3) for h in hs] +
                ['s_add_u32 s85, s85, 128', f's_add_u32 s86, s86, {64*ldw2}'])
    def spf_start():
        if not SPF[1]: return
        a.emit(f's_and_b32 s3, s{S_WV}, 3')
        a.emit(f's_lshl2_add_u32 s3, s{S_CU}, s3')
        a.emit('s_and_b32 s4, s2, 1')
        a.emit('s_bfe_u32 s5, s2, 0x20001')
        a.emit('s_lshl2_add_u32 s85, s4, s5')
        a.emit('s_lshl_b32 s85, s85, 7')
        a.emit('s_add_u32 s85, s85, s3')
        a.emit('s_lshl_b32 s85, s85, 12')
        a.emit(f's_add_u32 s85, s85, {128*SPF[0]}')
        a.emit('s_lshl_b32 s4, s4, 5')
        a.emit(f's_add_u32 s4, s4, s{S_CU}')
        a.emit(f's_add_u32 s4, s4, {64*SPF[0]}')
        a.emit(f's_mul_i32 s86, s4, {ldw2}')
        a.emit('s_and_b32 s3, s3, 3')
        a.emit('s_lshl2_add_u32 s3, s5, s3')
        a.emit('s_lshl_b32 s3, s3, 7')
        a.emit('s_add_u32 s86, s86, s3')
        for i in range(SPF[0], SPF[1]):
            for x in spf(): a.emit(x)
    if SPF[1]: post += spf()
    VPF = [int(x) for x in ENV('VPF', '0,0,1').split(',')]
    def vpf():
        k0, nk, hs = VPF
        if not nk: return 0
        a.emit(f's_and_b32 s3, s{S_WV}, 3')
        a.emit(f's_lshl2_add_u32 s3, s{S_CU}, s3')
        a.emit('s_and_b32 s4, s2, 1')
        a.emit('s_bfe_u32 s5, s2, 0x20001')
        a.emit('s_lshl2_add_u32 s85, s4, s5')
        a.emit('s_lshl_b32 s85, s85, 7')
        a.emit('s_add_u32 s85, s85, s3')
        a.emit('s_lshl_b32 s85, s85, 12')
        a.emit('s_lshl_b32 s4, s4, 7')
        a.emit('s_add_u32 s4, s4, s3')
        a.emit(f's_add_u32 s4, s4, {64*k0}')
        a.emit(f's_mul_i32 s86, s4, {ldw2}')
        a.emit('s_lshl_b32 s5, s5, 9')
        a.emit('s_add_u32 s86, s86, s5')
        a.emit('v_and_b32 v2, 15, v1')
        a.emit(f'v_min_u32 v3, {nk-1}, v2')
        a.emit('v_and_b32 v22, 16, v1')
        a.emit('v_add_lshl_u32 v22, v22, v3, 7')
        a.emit('v_min_u32 v2, 11, v2')
        a.emit('v_lshrrev_b32 v3, 2, v2')
        a.emit('v_and_b32 v2, 3, v2')
        a.emit('v_lshl_add_u32 v2, v3, 4, v2')
        a.emit('v_lshrrev_b32 v3, 4, v1')
        a.emit(f'v_min_u32 v3, {nk//4-1}, v3')
        a.emit(f'v_mul_u32_u24 v3, {256*ldw2}, v3')
        a.emit('v_lshl_add_u32 v23, v2, 7, v3')
        for h in range(hs):
            a.emit(f'buffer_load_dword v24, v23, s[{SW}:{SW+3}], s86 offen offset:{64*h}')
            a.emit(f'buffer_load_dword v25, v22, s[{SX}:{SX+3}], s85 offen offset:{128*k0+64*h}')
        return 2 * hs
    TG_ = int(ENV('TLBG', '0'))
    if TG_:
        srd(a, SO, 'ws0', 0, 256 * MB)
        a.emit(f's_and_b32 s3, s{S_WV}, 3')
        a.emit(f's_lshl2_add_u32 s3, s{S_CU}, s3')
        a.emit(f's_lshl_b32 s86, s3, {TG_}')
        tl = [f's_buffer_load_dword s84, s[{SO}:{SO+3}], s86', f's_add_u32 s86, s86, {128 << TG_}']
        if TG_ < 21: post += tl
    extra = tail_parks('wo', SP, lambda b: srd(b, SP, 'wo', 0, 2 * MB))
    sch0 = [int(c) for c in ENV('TSO0', '00000')]
    extra0 = tail_parks('wo', SP, lambda b: srd(b, SP, 'wo', 0, 2 * MB), sch0 + [sum(TSCH['wo']) - sum(sch0)])
    npk = 2 * sum(TSCH['wo']) if XD else 0
    def start():
        sides.cls_touch(a)
        if TG_:
            for x in tl: a.emit(x)
            a.emit(f's_and_b32 s3, s{S_WV}, 3')
            a.emit(f's_lshl2_add_u32 s3, s{S_CU}, s3')
            for w, sz in (('out', 4 * MB), ('wo', 2 * MB), ('w1', 7 * MB), ('b1', 4096), ('b2', 2048)):
                srd(a, SC, w, 0, sz)
                a.emit(f's_mul_i32 s4, s3, {sz // 128}')
                a.emit(f's_buffer_load_dword s84, s[{SC}:{SC+3}], s4')
        if ENV('DX', '2') != '1' or ENV('CLP', 'e') != 's': return 0
        srd(a, ST, 'ws0', WS_XP, LSTR + 4 * MB)
        a.emit('s_and_b32 s3, s2, 3')
        a.emit(f's_and_b32 s4, s{S_CU}, 3')
        a.emit('s_lshl2_add_u32 s3, s3, s4')
        a.emit('s_bfe_u32 s4, s2, 0x10002')
        a.emit(f's_lshr_b32 s5, s{S_CU}, 2')
        a.emit('s_lshl1_add_u32 s4, s5, s4')
        a.emit('s_lshl4_add_u32 s3, s3, s4')
        a.emit(f's_and_b32 s4, s{S_WV}, 3')
        a.emit('s_lshl2_add_u32 s3, s3, s4')
        a.emit('s_lshl_b32 s3, s3, 12')
        a.emit(f's_add_u32 s4, s3, {LSTR}')
        a.emit('v_lshlrev_b32 v2, 4, v1')
        for i in range(4): a.emit(f'v_mov_b32 v{32+i}, -1')
        for i in range(8): a.emit(f'buffer_store_dwordx4 v[32:35], v2, s[{ST}:{ST+3}], s{3+(i>>2)} offen offset:{1024*(i&3)} sc1')
        return 8
    final0 = None
    TL0 = int(ENV('TL0', '1' if DS else '0'))
    if DS:
        STQ0 = int(ENV('STQ0', '14'))
        assert HK[-1] < STQ0 <= 13 + TL0
        def start():
            nv = vpf()
            if sides.CE:
                assert sum(sides.CE.values()) == 8
                sides.cs_setup(a, SB, 95, 26)
                for x in sides.cs_at(-1): a.emit(x)
                nv += sides.CE.get(-1, 0)
            spf_start()
            sides.cls_touch(a)
            srd(a, ST, 'ws0', WS_ST0, 16 * 16384)
            stats4_setup(a, True)
            if D2:
                dbg_off(a, 20)
                a.emit(f's_and_b32 s{SC+1}, s{SC+1}, 0xffff')
                a.emit(f's_mov_b32 s{SC+2}, 256')
                a.emit(f's_mov_b32 s{SC+3}, 0x00020000')
            return nv
        pl2 = f'buffer_load_dword v21, v20, s[{SC}:{SC+3}], 0 offen sc1'
        ck2 = ['s_mov_b32 s5, 0x100000', 'L_attn_dchk:', 'v_cmp_ne_u32 vcc, 0x01010101, v21', 's_cbranch_vccz L_attn_dok', 's_sub_u32 s5, s5, 1\n  ' + pl2,
               's_waitcnt vmcnt(0)', 's_cbranch_scc0 L_attn_dchk', 'L_attn_dok:'] if D2 else []
        extra0 = lambda i: (ck2 + stats4_loads(32, True) if i == STQ0 else [pl2] if D2 and i == STQ0 - 3 else []) + sides.cs_at(i)
        def chk0():
            a.emit('v_cmp_u_f32 vcc, v32, v33')
            a.emit('v_cmp_u_f32 s[4:5], v48, v49')
            a.emit('s_or_b64 s[4:5], vcc, s[4:5]')
            a.emit('s_cbranch_scc0 L_attn_sok')
            a.emit(f's_sub_u32 s{S_CNT}, s{S_CNT}, 1')
            a.emit('s_cbranch_scc1 L_attn_sok')
            for x in stats4_loads(32, True): a.emit(x + (' sc1' if x.startswith('buf') else ''))
            a.emit('s_waitcnt vmcnt(0)')
            a.emit('s_branch L_attn_schk')
            a.label('L_attn_sok')
        def final0():
            a.emit(f's_mov_b32 s{S_CNT}, 0x4000')
            a.emit(f"s_waitcnt vmcnt({side(Asm(), 0, 'issue') + sum(n for e, n in sides.CE.items() if e >= STQ0)})")
            a.label('L_attn_schk')
            stats4_store(a, 32, LST, True, chk0 if D2 else None)
            a.emit('s_waitcnt lgkmcnt(0)')
    L.run('0', tail_issue=lambda: side(a, 0, 'issue'), ntail_vm=side(Asm(), 0, 'issue'), post=post, start=start, extra=extra0, tail_late=TL0, final=final0, exfirst=True)
    for i in (16,) if DS else (16, 17):
        if XD:
            for x in extra0(i): a.emit(x)
        a.emit('s_barrier')
    if XD:
        for x in extra0(18): a.emit(x)
    if ONE:
        a.emit(f's_branch L_{kind}_ldend')
    else:
        side(a, 0, 'finish')
        a.emit('s_endpgm')
    a.label(f'L_{kind}_ld1')
    if ',' in L.kord():
        L.ktable(int(L.kord().split(',')[1]))
        L.ot = int(ot); L.hx = HX - XH
        for x in ([] if ot else L.knext()): a.emit(x)
    srd(a, ST, 'ws0', WS_ST2, 16 * 16384)
    n1 = side(Asm(), 1, 'issue')
    def tail1():
        stats_loads(a, 32, True)
        side(a, 1, 'issue')
    def final1():
        a.emit(f's_waitcnt vmcnt({n1 + npk})')
        stats_reduce_store(a, 32, LST)
        a.emit('s_waitcnt lgkmcnt(0)')
    if T4:
        stats4_setup(a, True)
        TL1 = int(ENV('TL1', '0'))
        def final4():
            a.emit(f"s_waitcnt vmcnt({n1 if int(ENV('STQ', '14')) < 13 + TL1 < 15 else 0})")
            stats4_store(a, 32, LST, True)
            a.emit('s_waitcnt lgkmcnt(0)')
        L.run('1', tail_issue=lambda: side(a, 1, 'issue'), ntail_vm=n1, tail_late=TL1, final=final4, extra=lambda i: stats4_loads(32, True) if i == int(ENV('STQ', '14')) else [],
              post=fill, dep=lambda pf: dep_wait(a, kind, halo=True, postf=pf, pref=(lambda: a.emit('s_waitcnt vmcnt(0)')) if ot else None))
    else: L.run('1', tail_issue=tail1, ntail_vm=16 + n1, final=final1, extra=extra, post=fill, dep=(lambda pf: dep_wait(a, kind, halo=True, postf=pf)) if MEGA else None)
    a.emit('s_barrier')
    if not MEGA: side(a, 1, 'finish')
    a.label(f'L_{kind}_ldend')
    loader_end(a, kind, check=False)
    a.label(end)
    a.emit('s_endpgm')
    loader_first(a, kind)
    a(KD.format(name=f'{kind}l0_kernel'))
    if not MEGA:
        stub(a, f'{kind}l1_kernel', body, 1, tsidx + 4, False)
        a(KD.format(name=f'{kind}l1_kernel'))
    a.label(f'L_{kind}_c1')
    return LST + 1280
```

```python
from common import *
LM_WO = int(ENV('LM_WO', '2')); LM_W1 = int(ENV('LM_W1', '3')); LM_W2 = int(ENV('LM_W2', '2')); LM_QKV = int(ENV('LM_QKV', '3'))
PFW2 = int(ENV('PFW2', '0'))
PV = 96

def fin(a):
    a.emit('s_waitcnt vmcnt(0)')

def pf_wo(a):
    L = 1 << (5 - LM_WO)
    sh = 5 - LM_WO
    return pf_weights(a, SP, 'wo', 2 * MB, 2048, 32, sh, L, LM_WO, 128, max(1, (8 << sh) // 64), PV, pair=SPX)

PF1 = int(ENV('PF1', '0'))
def pf_w1(a, sd=SP):
    if not PF1: return 0
    lm = 2 if 'w1' in OT else LM_W1
    u = 1 << (5 - lm)
    sh = 7 - lm
    srd(a, sd, 'w1', 0, 1024 * 7168)
    a.emit(f's_and_b32 s3, s{S_WV}, 3')
    a.emit(f's_lshl2_add_u32 s3, s{S_CU}, s3')
    a.emit(f's_mul_i32 s3, s3, {64 >> sh}')
    a.emit(f"s_add_u32 s3, s3, {1024 - int(ENV('PF1B', '64'))}")
    a.emit(f'v_lshrrev_b32 v2, {sh}, v1')
    a.emit('v_add_u32 v12, s3, v2')
    a.emit(f'v_and_b32 v3, {4 * u - 1}, v1')
    a.emit(f'v_min_u32 v3, {7 * u // 2 - 1}, v3')
    a.emit('s_and_b32 s3, s2, 7')
    a.emit(f's_lshr_b32 s3, s3, {4 - lm}')
    a.emit(f's_mul_i32 s4, s3, {-(u // 2)}')
    a.emit(f's_add_u32 s4, s4, {16 - u}')
    a.emit(f's_mul_i32 s5, s3, {u}')
    a.emit(f's_add_u32 s5, s5, {24 - 3 * u // 2}')
    a.emit(f's_mul_i32 s3, s3, {u * 128}')
    a.emit(f'v_cmp_le_u32 vcc, {u}, v3')
    a.emit('v_mov_b32 v2, s4')
    a.emit('v_mov_b32 v13, s5')
    a.emit('v_cndmask_b32 v2, 0, v2, vcc')
    a.emit(f'v_cmp_le_u32 vcc, {3 * u // 2}, v3')
    a.emit('s_movk_i32 s4, 7168')
    a.emit('s_nop 0')
    a.emit('v_cndmask_b32 v2, v2, v13, vcc')
    a.emit('v_add_lshl_u32 v3, v3, v2, 7')
    for i in range(PF1):
        if i: a.emit(f'v_add_u32 v12, {128 * (64 >> sh)}, v12')
        a.emit('v_and_b32 v2, 1023, v12')
        a.emit('v_mad_u32_u24 v2, v2, s4, v3')
        a.emit(f'buffer_load_dword v{PV+4+i}, v2, s[{sd}:{sd+3}], s3 offen')
    return PF1

def touch(a, which, size, vd, l0only=True):
    if 'nopf' in DBG: return 0
    per = size // 128 // 1024
    assert per <= 64
    srd(a, SP, which, 0, size)
    a.emit(f's_and_b32 s3, s{S_WV}, 3')
    a.emit('s_lshl_b32 s4, s2, 2')
    a.emit('s_add_u32 s3, s3, s4')
    a.emit(f's_mul_i32 s3, s3, {per * 128}')
    a.emit(f'v_min_u32 v2, {per - 1}, v1')
    a.emit('v_lshlrev_b32 v2, 7, v2')
    if l0only:
        a.emit(f's_sub_u32 s4, s{S_LAYER}, 1')
        a.emit('v_and_b32 v2, s4, v2')
    a.emit(f'buffer_load_dword v{vd}, v2, s[{SP}:{SP+3}], s3 offen')
    return 1

def fill(a):
    if ENV('DX', '2') != '1' or ENV('CLP', 'e') != 't': return 0
    srd(a, SB, 'ws', WS_XP, 4 * MB)
    a.emit('s_and_b32 s3, s2, 3')
    a.emit(f's_and_b32 s4, s{S_CU}, 3')
    a.emit('s_lshl2_add_u32 s3, s3, s4')
    a.emit('s_bfe_u32 s4, s2, 0x10002')
    a.emit(f's_lshr_b32 s5, s{S_CU}, 2')
    a.emit('s_lshl1_add_u32 s4, s5, s4')
    a.emit('s_lshl4_add_u32 s3, s3, s4')
    a.emit(f's_and_b32 s4, s{S_WV}, 3')
    a.emit('s_lshl2_add_u32 s3, s3, s4')
    a.emit('s_lshl_b32 s3, s3, 12')
    a.emit('v_lshlrev_b32 v2, 4, v1')
    for i in range(4): a.emit(f'v_mov_b32 v{24+i}, -1')
    for i in range(4): a.emit(f'buffer_store_dwordx4 v[24:27], v2, s[{SB}:{SB+3}], s3 offen offset:{1024*i} sc1')
    return 4

CE = dict((int(x.split(':')[0]), int(x.split(':')[1])) for x in ENV('CE', '0:2,1:2,2:2,3:2').split(',') if x)
def cs_setup(a, sd, so, vo):
    srd(a, sd, 'w1', 0, 0 if 'nocs' in DBG else 1024 * 7168)
    a.emit('s_min_u32 s3, s2, 223')
    a.emit('s_mul_i32 s4, s3, 4682')
    a.emit('s_lshr_b32 s4, s4, 16')
    a.emit('s_mul_i32 s5, s4, 14')
    a.emit('s_sub_u32 s3, s3, s5')
    a.emit('s_lshl_b32 s3, s3, 2')
    a.emit(f's_and_b32 s5, s{S_WV}, 3')
    a.emit('s_add_u32 s3, s3, s5')
    a.emit(f's_mul_i32 s5, s4, {64 * 7168}')
    a.emit('s_lshl_b32 s8, s3, 7')
    a.emit(f's_add_u32 s{so}, s5, s8')
    a.emit('s_lshl_b32 s9, s4, 14')
    a.emit('s_lshl_b32 s8, s3, 8')
    a.emit('s_add_u32 s94, s9, s8')
    a.emit('v_lshrrev_b32 v2, 3, v1')
    a.emit('v_mul_u32_u24 v2, 7168, v2')
    a.emit('v_and_b32 v3, 7, v1')
    a.emit(f'v_lshl_add_u32 v{vo}, v3, 4, v2')
def cs_loads(sd, so, vo, js):
    o = []
    for j in js:
        o.append(f'buffer_load_dwordx4 v[{64+4*j}:{67+4*j}], v{vo}, s[{sd}:{sd+3}], s{so} offen')
        if j < 7: o.append(f's_add_u32 s{so}, s{so}, {8 * 7168}')
    return o
def cs_at(i):
    j0 = sum(n for e, n in CE.items() if e < i)
    return cs_loads(SB, 95, 26, range(j0, j0 + CE.get(i, 0)))

def qkv(a, layer, phase, npre=0):
    if phase == 'issue':
        n = 0
        if layer == 0:
            if not CE:
                cs_setup(a, SC, 5, 2)
                for x in cs_loads(SC, 5, 2, range(8)): a.emit(x)
                n += 8
            from gemmw2 import zero_flags
            if not ONE: n += zero_flags(a)
            if ENV('TW2') == 'qkv': n += touch(a, 'w2', 3584 * 2048, PV + 2, False)
        if ENV('CLO', '0') == '1': n += fill(a)
        if ENV('PWO', 'v') == 'v': n += pf_wo(a)
        if str(layer) in ENV('PF1L', '01'): n += pf_w1(a)
        if ENV('CLO', '0') == '0': n += fill(a)
        return n
    if layer == 0:
        a.emit(f's_waitcnt vmcnt({npre})')
        a.emit('s_mov_b32 s7, 0xffff0000')
        for i in range(4):
            a.emit(f'v_lshlrev_b32 v{32+2*i}, 16, v{64+i}')
            a.emit(f'v_and_b32 v{33+2*i}, s7, v{64+i}')
        for j in range(1, 8):
            for i in range(4):
                a.emit(f'v_lshlrev_b32 v40, 16, v{64+4*j+i}')
                a.emit(f'v_and_b32 v41, s7, v{64+4*j+i}')
                a.emit(f'v_pk_add_f32 v[{32+2*i}:{33+2*i}], v[{32+2*i}:{33+2*i}], v[40:41]')
        srd(a, SB, 'ws0', WS_CS, 16 * 16384)
        for i in range(4): a.emit(f'v_permlane32_swap_b32 v{32+i}, v{36+i}')
        for i in range(4): a.emit(f'v_add_f32 v{32+i}, v{32+i}, v{36+i}')
        a.emit('v_and_b32 v2, 7, v1')
        a.emit('v_lshlrev_b32 v2, 5, v2')
        for i in range(2): a.emit(f'v_permlane16_swap_b32 v{32+i}, v{34+i}')
        for i in range(2): a.emit(f'v_add_f32 v{32+i}, v{32+i}, v{34+i}')
        a.emit('v_lshrrev_b32 v3, 4, v1')
        a.emit('v_lshl_add_u32 v2, v3, 3, v2')
        for i in range(2): a.emit(f'v_add_f32_dpp v{32+i}, v{32+i}, v{32+i} row_ror:8 row_mask:0xf bank_mask:0xf')
        a.emit(f'buffer_store_dwordx2 v[32:33], v2, s[{SB}:{SB+3}], s94 offen sc1')
        if ONE and not SPX: a.emit('s_waitcnt vmcnt(0)')
    else:
        fin(a)

def wo(a, phase):
    if phase == 'issue':
        return touch(a, 'w2', 3584 * 2048, PV) if ENV('TW2') == 'wo' else 0
    fin(a)

SL = int(ENV('SL', '64'))
def stouch(a, which, size, sd, sreg, first, lps, pre=0, per=None):
    if lps == 0: return []
    srd(a, sd, which, 0, size)
    a.emit(f's_cmp_eq_u32 s{S_LAYER}, 0')
    a.emit(f's_cselect_b32 s{sd+2}, s{sd+2}, 0')
    a.emit(f's_and_b32 s3, s{S_WV}, 3')
    a.emit('s_lshl_b32 s4, s2, 2')
    a.emit('s_add_u32 s3, s3, s4')
    a.emit(f's_mul_i32 s{sreg}, s3, {per * SL // 64 if per else size // 1024}')
    if per:
        a.emit(f's_add_u32 s{sreg}, s{sreg}, {first * SL * 1024}')
        first = 0
    for i in range(pre): a.emit(f's_buffer_load_dword s84, s[{sd}:{sd+3}], s{sreg} offset:{SL*(first+i)}')
    return [f's_buffer_load_dword s84, s[{sd}:{sd+3}], s{sreg} offset:{SL*(first+pre+i)}' for i in range(lps)] + [f's_add_u32 s{sreg}, s{sreg}, {SL*lps}']

STV = [int(x) for x in ENV('STV', '4,0,4,0').split(',')]
def stouch_post(a, kind):
    if ENV('TW2', 's') != 's': return ()
    if kind == 'attn':
        n1 = int(ENV('STW1', '0'))
        return stouch(a, 'w1', 1024 * 7168, SB, 86, 0, n1, per=14 * 64 * n1) + stouch(a, 'w2', 3584 * 2048, SR, S_T, 0, STV[0], per=14 * 64 * STV[0]) + stouch(a, 'wo', 2 * MB, SB, 86, 0, STV[3], pre=max(0, 32 - 14 * STV[3]))
    if kind == 'wo': return stouch(a, 'w2', 3584 * 2048, SP, S_T, 14 * STV[0], STV[1])
    if kind == 'w1': return stouch(a, 'w2', 3584 * 2048, SP, S_T, 14 * STV[0], STV[2], per=14 * 64 * STV[2], pre=STV[2] if 'w1' in OT else 0)
    if kind == 'w2': return cls_w2(a)
    return ()

def cls_w2(a):
    P = int(ENV('CW2', '8'))
    if P == 0: return ()
    a.emit(f's_and_b32 s3, s{S_WV}, 3')
    a.emit(f's_lshl_b32 s4, s{S_CU}, 2')
    a.emit('s_add_u32 s3, s3, s4')
    a.emit('s_lshl_b32 s4, s3, 6')
    a.emit('s_and_b32 s4, s4, 64')
    a.emit('s_lshr_b32 s3, s3, 1')
    a.emit(f's_lshl_b32 s{S_T}, s3, 11')
    a.emit(f's_add_u32 s{S_T}, s{S_T}, s4')
    a.emit(f's_sub_u32 s4, 384, s{SW}')
    a.emit('s_and_b32 s4, s4, 0x380')
    a.emit(f's_add_u32 s{S_T}, s{S_T}, s4')
    a.emit(f's_lshl_b32 s4, s{S_NT}, 7')
    a.emit('s_and_b32 s4, s4, 1024')
    a.emit(f's_add_u32 s{S_T}, s{S_T}, s4')
    a.emit(f's_add_u32 s{S_T}, s{S_T}, {(30 if VW else 16 * max(1, PFW2) if XD else 4) * 131072}')
    o = [f's_buffer_load_dword s84, s[{SW}:{SW+3}], s{S_T}', f's_add_u32 s{S_T}, s{S_T}, 131072']
    if VW:
        for x in o * (P // 2): a.emit(x)
        return o * 2
    for i in range(P + 1):
        for x in o: a.emit(x)
    return o

def w1(a, phase):
    if phase == 'late' or (phase == 'issue' and ENV('PFL', '2') == '0'):
        NI = PFW2
        if phase == 'late' and ENV('PFL', '2') == '0': return
        if XD and NI: return pf_weights(a, SR, 'w2', 3584 * 2048, 2048, 32 * NI, 3, 8, 2, 128, NI, PV)
        return 0
    if phase == 'issue': return 0
    if not XD: fin(a)

def w2(a, phase):
    return 0

def cls_touch(a):
    m = ENV('CLS', 'w')
    if m == '0': return
    a.emit(f's_and_b32 s3, s{S_WV}, 3')
    a.emit('s_lshl_b32 s4, s2, 2')
    a.emit('s_add_u32 s3, s3, s4')
    a.emit(f's_sub_u32 s4, 384, s{SW}')
    a.emit('s_and_b32 s4, s4, 0x380')
    a.emit('s_mul_i32 s5, s3, 6144')
    a.emit('s_add_u32 s5, s5, s4')
    for j in range(6):
        for h in range(2): a.emit(f's_buffer_load_dword s84, s[{SW}:{SW+3}], s5 offset:{1024*j+64*h}')
    if m == 'wx':
        a.emit(f's_sub_u32 s4, 384, s{SX}')
        a.emit('s_and_b32 s4, s4, 0x380')
        a.emit('s_lshl_b32 s5, s3, 12')
        a.emit('s_add_u32 s5, s5, s4')
        for j in range(4):
            for h in range(2): a.emit(f's_buffer_load_dword s84, s[{SX}:{SX+3}], s5 offset:{1024*j+64*h}')
```

```python
import sys, os, struct
sys.path.insert(0, os.path.join(os.path.dirname(os.path.abspath(__file__)), '..'))
from asmlib import Asm, check_offsets
MB = 1 << 20
WSB = int(os.environ.get('WSB', '0')) * MB
WS_O   = WSB
WS_X1  = WSB + 4 * MB
WS_H   = WSB + 8 * MB
WS_ST  = WSB + 23 * MB
WS_CS  = WSB + 23 * MB + 512 * 1024
WS_ST0 = WSB + 23 * MB + 768 * 1024
D2 = os.environ.get('DS', '2') == '2'
DS = os.environ.get('DS', '2') in '12'
WS_TS  = 60 * MB
MEGA = os.environ.get('MEGA', '2') in ('1', '2')
ONE = os.environ.get('MEGA', '2') == '2'
LSTR = 64 * MB
WS_ST2 = WS_ST + 256 * 1024 if MEGA else WS_ST
WS_FL = WSB + 40 * MB
FLS = 524288
REP = int(os.environ.get('REP', '16'))
WS_XP = WSB + 24 * MB
WS_X2 = WSB + 32 * MB
XPAD = int(os.environ.get('XPAD', '128')) if MEGA else 0
f2u = lambda f: struct.unpack('<I', struct.pack('<f', f))[0]
ENV = os.environ.get
TS = ENV('TS', '')
DBG = ENV('DBG', '').split(',')
EARLY = int(ENV('EARLY', '0')) if MEGA and ENV('SPLIT', '0') == '0' else 0
def stf(kind): return (' ' + ENV('WTF', 'sc1')) if kind in ENV('WT', 'attn,wo,w2,w1').split(',') else ''

KA = {'A_x': 0, 'wqkv': 8, 'wo': 16, 'w1': 32, 'b1': 40, 'w2': 48, 'b2': 56, 'out': 64, 'ws': 80}
P_IN = 16
P_OUT = 32; P_WS = 34
P_XS = 12
PTR = {'A_x': 16, 'wqkv': 18, 'wo': 20, 'w1': 24, 'b1': 26, 'w2': 28, 'b2': 30, 'out': 32, 'ws': 34, 'xs': 12, 'ws0': 22}
SX, SW, SO, SR, SB, ST, SP, SC = 36, 40, 44, 48, 52, 56, 60, 64
S_MT, S_NT, S_WV, S_WM, S_WN = 68, 69, 70, 71, 72
S_KX, S_KW, S_SLOT, S_XD, S_WD, S_HD, S_CNT = 73, 74, 75, 76, 77, 78, 79
S_LAYER = 96; S_TSI = 97; S_T = 98; S_CU = 99; S_XG = 100; S_KT = 101

KD = '''.section .rodata,"a"
.p2align 6
.amdhsa_kernel {name}
  .amdhsa_next_free_vgpr 256
  .amdhsa_next_free_sgpr 102
  .amdhsa_accum_offset 256
  .amdhsa_group_segment_fixed_size 0
  .amdhsa_kernarg_size 88
  .amdhsa_user_sgpr_count 2
  .amdhsa_user_sgpr_kernarg_segment_ptr 1
  .amdhsa_system_sgpr_workgroup_id_x 1
  .amdhsa_float_denorm_mode_32 3
  .amdhsa_float_denorm_mode_16_64 3
.end_amdhsa_kernel
.text
'''

def srd(a, sd, which, off, size):
    p = PTR[which]
    if off:
        a.emit(f's_add_u32 s{sd}, s{p}, {off}')
        a.emit(f's_addc_u32 s{sd+1}, s{p+1}, 0')
        a.emit(f's_and_b32 s{sd+1}, s{sd+1}, 0xffff')
    else:
        a.emit(f's_mov_b32 s{sd}, s{p}')
        a.emit(f's_and_b32 s{sd+1}, s{p+1}, 0xffff')
    a.emit(f's_mov_b32 s{sd+2}, {size}')
    a.emit(f's_mov_b32 s{sd+3}, 0x00020000')

def xpitch(a, sd, inv=False):
    a.emit(f's_cmp_eq_u32 s{S_LAYER}, {0 if inv else 1}')
    a.emit(f's_cselect_b32 s{sd}, {XPAD}, 0')
    a.emit(f's_add_u32 s{sd}, s{sd}, 2048')

def srd_xs(a, sd):
    srd(a, sd, 'xs', 0, 4 * MB)
    xpitch(a, sd + 2)
    a.emit(f's_lshl_b32 s{sd+2}, s{sd+2}, 11')

def stub(a, name, body, layer, tsidx, first):
    a(f'.text\n.globl {name}\n.p2align 8\n.type {name},@function\n{name}:')
    if TS:
        stamp(a, 0, nowait=True)
    a.emit('s_load_dwordx4 s[16:19], s[0:1], 0')
    a.emit('s_load_dwordx2 s[20:21], s[0:1], 16')
    a.emit('s_load_dwordx2 s[22:23], s[0:1], 80')
    a.emit('s_load_dwordx8 s[24:31], s[0:1], 32')
    a.emit('s_load_dwordx2 s[32:33], s[0:1], 64')
    a.emit('s_load_dwordx2 s[34:35], s[0:1], 80')
    a.emit(f's_load_dwordx2 s[12:13], s[0:1], {0 if layer == 0 else 64}')
    if DS: a.emit(f's_load_dwordx2 s[{SC}:{SC+1}], s[0:1], 72')
    a.emit(f's_mov_b32 s{S_LAYER}, {layer}')
    if ENV('PADS', '1') == '1': a.emit('s_mov_b64 exec, -1')
    a.emit(f's_mov_b32 s{S_TSI}, {tsidx}')
    if not first:
        a.emit(f's_branch {body}')

def stamp(a, n, nowait=False):
    if not TS: return
    a.emit(f's_memrealtime s[{80+4*n}:{81+4*n}]')
    a.emit(f's_memtime s[{82+4*n}:{83+4*n}]')
    if not nowait: a.emit('s_waitcnt lgkmcnt(0)')

def stamps_out(a, tag):
    if not TS: return
    if not MEGA: a.emit('s_waitcnt vmcnt(0)')
    stamp(a, 3)
    if MEGA and tag == 'w1':
        for i in range(16): a.emit(f'v_writelane_b32 v31, s{80+i}, {i}')
        return
    srd(a, SP, 'ws0', WS_TS, 1 << 20)
    a.emit('s_lshl_b32 s4, s2, 6')
    a.emit(f's_lshl_b32 s5, s{S_TSI}, 16')
    a.emit('s_add_u32 s4, s4, s5')
    a.emit('v_mov_b32 v1, s4')
    for i in range(16): a.emit(f'v_mov_b32 v{4+i}, s{80+i}')
    a.emit('v_cmp_eq_u32 vcc, 0, v0')
    a.emit('s_and_saveexec_b64 s[6:7], vcc')
    a.emit(f's_cbranch_execz L_tsskip_{tag}')
    for j in range(4):
        a.emit(f'buffer_store_dwordx4 v[{4+4*j}:{7+4*j}], v1, s[{SP}:{SP+3}], 0 offen offset:{16*j}' + (' sc1' if ENV('DIAG') else ''))
    if MEGA and tag == 'w2':
        a.emit('s_mov_b64 exec, 0xffff')
        a.emit('s_sub_u32 s4, s4, 0x10000')
        a.emit('v_lshlrev_b32 v1, 2, v0')
        a.emit(f'buffer_store_dword v31, v1, s[{SP}:{SP+3}], s4 offen' + (' sc1' if ENV('DIAG') else ''))
    a.label(f'L_tsskip_{tag}')
    a.emit('s_mov_b64 exec, -1')

SPX = ENV('SPX', '1') == '1'
OT = ENV('OT', 'w1,w2,attn').split(',')
S_T0 = 91
OHB = 114688; OBIA = [10, 24, 124, 126]
NV = int(ENV('NV', '0'))
EX = int(ENV('EX', '14'))
LSTK = ENV('LSTK', 'w2')
LREG = [52, 54, 56, 58] if LSTK == 'w2' else [36, 38, 48, 50] if LSTK == 'wo' else [80, 82, 48, 50]
def lstamp(a, n, dep=False):
    if dep and (ENV('LST') == 'x' or LSTK != 'w2'): return
    if TS: a.emit(f's_memrealtime s[{LREG[n]}:{LREG[n]+1}]')

def lstamps_out(a, tag):
    if not TS: return
    a.emit(f"s_cmp_lg_u32 s{S_WV}, {ENV('PW_' + tag.upper(), '4')}")
    a.emit(f's_cbranch_scc1 L_ltsskip_{tag}')
    a.emit('s_waitcnt lgkmcnt(0)')
    srd(a, SP, 'ws0', WS_TS + 16384, 1 << 20)
    a.emit('s_lshl_b32 s4, s2, 6')
    a.emit(f's_lshl_b32 s5, s{S_TSI}, 16')
    a.emit('s_add_u32 s4, s4, s5')
    for i in range(8): a.emit(f'v_writelane_b32 v20, s{LREG[i>>1]+(i&1)}, {i}')
    a.emit('v_lshlrev_b32 v21, 2, v1')
    a.emit('s_mov_b64 exec, 0xff')
    a.emit(f'buffer_store_dword v20, v21, s[{SP}:{SP+3}], s4 offen')
    a.emit('s_mov_b64 exec, -1')
    a.label(f'L_ltsskip_{tag}')

def tile_map(a, LM, endlab, pair=False):
    if endlab:
        a.emit('s_cmp_ge_u32 s2, 256')
        a.emit(f's_cbranch_scc1 {endlab}')
        a.emit('v_lshrrev_b32 v2, 6, v0')
        a.emit('v_and_b32 v1, 63, v0')
        a.emit(f'v_readfirstlane_b32 s{S_WV}, v2')
    a.emit('s_and_b32 s3, s2, 7')
    if endlab: a.emit(f's_lshr_b32 s{S_CU}, s2, 3')
    if LM == 2 and ENV('MAP2', '0') == '1':
        a.emit('s_lshl_b32 s5, s3, 1')
        a.emit('s_lshr_b32 s6, s3, 1')
        a.emit('s_and_b32 s5, s5, 2')
        a.emit('s_and_b32 s6, s6, 1')
        a.emit('s_or_b32 s5, s5, s6')
    else: a.emit(f's_and_b32 s5, s3, {(1 << (4 - LM)) - 1}')
    a.emit(f's_lshl_b32 s5, s5, {LM}')
    a.emit(f's_and_b32 s6, s{S_CU}, {(1 << LM) - 1}')
    a.emit(f's_add_u32 s{S_MT}, s5, s6')
    a.emit(f's_lshr_b32 s5, s3, {4 - LM}')
    if pair:
        a.emit(f's_lshr_b32 s{S_HD}, s{S_CU}, {LM}')
        a.emit(f's_lshl1_add_u32 s{S_NT}, s{S_HD}, s5')
        return
    a.emit(f's_lshl_b32 s5, s5, {5 - LM}')
    a.emit(f's_lshr_b32 s6, s{S_CU}, {LM}')
    a.emit(f's_add_u32 s{S_NT}, s5, s6')
    if 'smallm' in DBG: a.emit(f's_and_b32 s{S_MT}, s{S_MT}, 1')
    if 'smalln' in DBG: a.emit(f's_and_b32 s{S_NT}, s{S_NT}, 1')

def interleave(a, main, side, lead=1, per=1):
    si = 0
    for i, m in enumerate(main):
        a.emit(m)
        if i + 1 >= lead:
            for _ in range(per):
                if si < len(side): a.emit(side[si]); si += 1
    while si < len(side): a.emit(side[si]); si += 1

PO0, POM = [int(x) for x in ENV('PO', '1,3').split(',')]
KSH = int(ENV('KSH', '0')); LAT = int(ENV('LAT', '0'))
def own_pos(a, sd):
    a.emit(f's_and_b32 s{sd}, s{S_NT}, {POM}')
    a.emit(f's_add_u32 s{sd}, s{sd}, {PO0}')

class Loader:
    VXD = 4; VWD = 8; VXH = 28
    def __init__(self, a, tag, K, lda2, ldw2, panels, colbase, S, STAGE, halo=None, delta=0, rot=None, xblk=False, half=0):
        self.a = a; self.tag = tag; self.K = K; self.lda2 = lda2; self.ldw2 = ldw2; self.panels = panels
        self.colbase = colbase; self.S = S; self.STAGE = STAGE; self.halo = halo; self.delta = delta; self.xblk = xblk; self.rot = rot if rot is not None and rot >= 0 else None
        self.NSTEP = K // 64; self.half = half; self.ot = 0; self.skip = False
        self.per = 4 + 2 * len(panels) + (1 if halo is not None else 0)
    def setup(self):
        a = self.a
        if ENV('PRIO', '0') != '0': a.emit(f"s_setprio {ENV('PRIO')}")
        a.emit(f's_add_u32 s8, s{S_WV}, s{S_NT}')
        a.emit('s_and_b32 s8, s8, 3')
        a.emit(f's_add_u32 s9, s{S_WV}, s{S_MT}')
        a.emit('s_and_b32 s9, s9, 3')
        a.emit(f's_lshl_b32 s{S_XD}, s8, 12')
        a.emit(f's_lshl_b32 s{S_WD}, s9, 11')
        a.emit(f's_add_u32 s{S_WD}, s{S_WD}, 16384')
        a.emit(f's_lshl_b32 s11, s{S_MT}, 7')
        a.emit('v_and_b32 v10, 7, v1')
        if self.xblk: self.xoff_blk(self.lda2)
        else: self.xoff_rows(self.lda2)
        a.emit('v_lshrrev_b32 v3, 3, v1')
        a.emit('s_lshl_b32 s10, s9, 4')
        a.emit('v_add_u32 v3, s10, v3')
        a.emit(f'v_mul_u32_u24 v3, {self.ldw2}, v3')
        a.emit('v_lshrrev_b32 v2, 3, v1')
        a.emit('v_and_b32 v2, 2, v2')
        a.emit('v_xor_b32 v2, v2, v10')
        a.emit(f's_mul_i32 s10, s{S_NT}, {self.colbase}')
        if 'noslow' in DBG and self.tag == 'attn':
            a.emit(f's_bitcmp1_b32 0x0808, s{S_NT}')
            a.emit('s_cselect_b32 s3, 512, 0')
            a.emit('s_add_u32 s10, s10, s3')
        if self.colbase & 127: a.emit('s_andn2_b32 s10, s10, 127')
        a.emit('v_add_u32 v3, s10, v3')
        a.emit(f'v_lshl_add_u32 v{self.VWD}, v2, 4, v3')
        a.emit('v_xor_b32 v2, 4, v2')
        a.emit(f'v_add_u32 v3, {8*self.ldw2}, v3')
        a.emit(f'v_lshl_add_u32 v{self.VWD+1}, v2, 4, v3')
        if self.half:
            a.emit('v_lshrrev_b32 v3, 2, v1')
            a.emit('s_lshl_b32 s10, s9, 4')
            a.emit('v_add_u32 v3, s10, v3')
            a.emit(f'v_mul_u32_u24 v3, {self.ldw2}, v3')
            a.emit('v_lshrrev_b32 v2, 4, v1')
            a.emit('v_and_b32 v2, 2, v2')
            a.emit('v_xor_b32 v2, v2, v1')
            a.emit('v_and_b32 v2, 3, v2')
            a.emit(f's_lshl_b32 s10, s{S_NT}, 6')
            a.emit(f's_add_u32 s10, s10, {self.half}')
            a.emit('v_add_u32 v3, s10, v3')
            a.emit(f'v_lshl_add_u32 v{self.VXH}, v2, 4, v3')
            a.emit(f's_lshl_b32 s{S_HD}, s{S_NT}, 7')
            a.emit(f's_add_u32 s{S_HD}, s{S_HD}, 3072')
        if self.halo is not None:
            a.emit(f's_and_b32 s10, s{S_WV}, 3')
            a.emit(f's_lshl_b32 s{S_HD}, s10, 9')
            a.emit(f's_add_u32 s{S_HD}, s{S_HD}, {self.halo}')
            a.emit('s_lshl_b32 s14, s10, 2')
            a.emit('s_add_u32 s14, s14, s11')
            a.emit('s_sub_u32 s14, s14, 16')
            a.emit('v_lshrrev_b32 v3, 3, v1')
            a.emit('v_add_u32 v3, s14, v3')
            a.emit('v_max_i32 v3, 0, v3')
            a.emit('v_mul_u32_u24 v3, s5, v3')
            a.emit('s_lshl_b32 s14, s10, 1')
            a.emit('v_lshrrev_b32 v2, 4, v1')
            a.emit('v_add_u32 v2, s14, v2')
            a.emit('v_and_b32 v2, 7, v2')
            a.emit('v_xor_b32 v2, v2, v10')
            a.emit(f'v_lshl_add_u32 v{self.VXH}, v2, 4, v3')
            a.emit('s_cmp_eq_u32 s10, 0')
            a.emit('s_cselect_b32 s14, 0xffffff00, -1')
            a.emit('s_mov_b32 s15, 0')
        a.emit(f's_mov_b32 s{S_SLOT}, 0')
        if self.rot is None:
            a.emit(f's_mov_b32 s{S_KX}, 0')
            a.emit(f's_mov_b32 s{S_KW}, 0')
        else:
            if not getattr(self, 'noxg', False): a.emit(f's_add_u32 s{S_XG}, s{S_MT}, s{S_NT}')
            a.emit(f's_mov_b32 s{S_KT}, {0 if EARLY and self.tag == "w2" else -1}')
            ko = int(ENV('KOFF_' + self.tag.upper(), '0'))
            if ko:
                a.emit(f"s_bitcmp1_b32 {ENV('KMSK_' + self.tag.upper(), '0x0808' if self.tag == 'attn' else '0x2aea')}, s{S_NT}")
                a.emit(f's_cselect_b32 s{S_KT}, {ko - 1}, s{S_KT}')
            if self.kord(): self.ktable()
            if self.skip:
                if LAT:
                    a.emit(f's_mul_i32 s3, s{S_MT}, {LAT}')
                    a.emit(f's_add_u32 s3, s3, s{S_NT}')
                    a.emit(f's_and_b32 s{S_T0}, s3, 15')
                elif KSH:
                    a.emit(f's_and_b32 s{S_T0}, s{S_NT}, 3')
                    a.emit(f's_and_b32 s93, s{S_NT}, 12')
                    if KSH == 2:
                        a.emit(f's_and_b32 s3, s{S_MT}, 8')
                        a.emit('s_add_u32 s93, s93, s3')
                else: a.emit(f's_mov_b32 s{S_T0}, s{S_NT}')
                own_pos(a, 92)
                for x in self.knext(): a.emit(x)
            elif not self.ot:
                for x in self.knext(): a.emit(x)
    def kord(self): return ENV('KORD_' + self.tag.upper(), {'w1': '2', 'attn': '0,2'}.get(self.tag, ''))
    def korder(self, g, start):
        D = int(ENV('ROTD_' + self.tag.upper(), ENV('ROTD', '2')))
        o = list(range(16))
        if start < 0:
            dl = {3: [3, -1, -1, -1], 2: [2, -1, -1, 0], 1: [1, -1, 0, 0]}[D]
            return [(t + dl[(t - g) & 3]) & 15 for t in range(16)]
        for t in range(start + g, 16 - D, 4): o[t:t + D + 1] = [t + D] + list(range(t, t + D))
        return o
    def ktable(self, start=None):
        a = self.a
        if start is None: start = int(self.kord().split(',')[0])
        a.emit(f's_add_u32 s3, s{S_MT}, s{S_NT}')
        a.emit('s_and_b32 s3, s3, 3')
        for g in range(4):
            v = sum(k << (4 * i) for i, k in enumerate(self.korder(g, start)))
            if g: a.emit(f's_cmp_eq_u32 s3, {g}')
            for h in range(2):
                a.emit(f's_cselect_b32 s{S_XG+h}, {(v >> (32 * h)) & 0xffffffff:#x}, s{S_XG+h}' if g else f's_mov_b32 s{S_XG+h}, {(v >> (32 * h)) & 0xffffffff:#x}')
    def own(self):
        D = int(ENV('ROTD_' + self.tag.upper(), ENV('ROTD', '2')))
        dl = {3: [3, -1, -1, -1], 2: [2, -1, -1, 0], 1: [1, -1, 0, 0]}[D]
        tbl = sum(((-d) % 16) << (8 * ((r + d) & 3)) for r, d in enumerate(dl))
        assert self.rot == 0 and self.NSTEP == 16
        if self.kord():
            return [f's_lshr_b32 s3, s{S_NT}, 3', f's_and_b32 s{S_KX}, s{S_NT}, 7', f's_lshl1_add_u32 s{S_T0}, s{S_KX}, s3',
                    f's_mul_i32 s{S_KW}, s{S_T0}, {64*self.ldw2}', f's_lshl_b32 s{S_KX}, s{S_T0}, {11 if self.xblk else 7}']
        return [f's_lshr_b32 s3, s{S_NT}, 3', f's_and_b32 s{S_KX}, s{S_NT}, 7', f's_lshl1_add_u32 s{S_KX}, s{S_KX}, s3',
                f's_sub_u32 s3, s{S_KX}, s{S_XG}', 's_lshl_b32 s3, s3, 3', f's_lshr_b32 s3, {tbl:#x}, s3',
                f's_add_u32 s3, s3, s{S_KX}', f's_and_b32 s{S_T0}, s3, 15',
                f's_mul_i32 s{S_KW}, s{S_KX}, {64*self.ldw2}', f's_lshl_b32 s{S_KX}, s{S_KX}, {11 if self.xblk else 7}']
    def xoff_rows(self, ld):
        a = self.a
        a.emit('v_lshrrev_b32 v3, 3, v1')
        a.emit(f's_lshr_b32 s10, s{S_XD}, 7')
        a.emit(f's_lshl_b32 s3, s{S_MT}, 7')
        a.emit('s_add_u32 s10, s10, s3')
        a.emit('v_add_u32 v3, s10, v3')
        xpitch(a, 5)
        a.emit('s_lshl_b32 s6, s5, 3')
        a.emit('v_mul_u32_u24 v3, s5, v3')
        a.emit('v_lshrrev_b32 v2, 4, v1')
        for j in range(4):
            d = self.VXD + j
            if j & 1:
                a.emit(f'v_add_u32 v{d}, 4, v2')
                a.emit(f'v_xor_b32 v{d}, v{d}, v10')
            else:
                a.emit(f'v_xor_b32 v{d}, v2, v10')
            a.emit(f'v_lshl_add_u32 v{d}, v{d}, 4, v3')
            if j < 3: a.emit('v_add_u32 v3, s6, v3')
    def xoff_blk(self, ld):
        a = self.a
        a.emit(f's_lshr_b32 s10, s{S_XD}, 11')
        a.emit(f's_lshl_b32 s3, s{S_MT}, 3')
        a.emit('s_add_u32 s10, s10, s3')
        a.emit(f's_mul_i32 s10, s10, {16*ld}')
        a.emit(f'v_lshl_add_u32 v{self.VXD}, v1, 4, s10')
        a.emit(f'v_add_u32 v{self.VXD+1}, {16*ld}, v{self.VXD}')
    def xdma(self, base, imm, sd, soff, blk):
        o = []
        for j in range(4):
            if blk:
                if not j & 1: o += [f's_add_u32 m0, s{base}, {imm + j*1024}', 's_nop 0']
                o.append(f'buffer_load_dwordx4 v{self.VXD+(j>>1)}, s[{sd}:{sd+3}], s{soff} offen offset:{(j&1)*1024} lds')
            else:
                o += [f's_add_u32 m0, s{base}, {imm + j*1024}', 's_nop 0', f'buffer_load_dwordx4 v{self.VXD+j}, s[{sd}:{sd+3}], s{soff} offen lds']
        return o
    def knext(self):
        if self.rot is None:
            return [f's_add_u32 s{S_KX}, s{S_KX}, {2048 if self.xblk else 128}', f's_add_u32 s{S_KW}, s{S_KW}, {64*self.ldw2}']
        if self.kord():
            tb = f's[{S_XG}:{S_XG+1}]'
            o = [f's_and_b32 s{S_KX}, s{S_XG}, 15']
            if self.ot or self.skip: o += [f's_cmp_eq_u32 s{S_KX}, s{S_T0}', f's_cselect_b32 s{S_KW}, 4, 0', f's_lshr_b64 {tb}, {tb}, s{S_KW}', f's_and_b32 s{S_KX}, s{S_XG}, 15']
            if self.skip and not self.ot: o += ['s_sub_u32 s92, s92, 1', f's_cselect_b32 s{S_KX}, s{S_T0}, s{S_KX}', f's_cselect_b32 s{S_KW}, 0, 4'] + ([f's_add_u32 s{S_KX}, s{S_KX}, s93', f's_and_b32 s{S_KX}, s{S_KX}, 15'] if KSH else [])
            return o + [f's_lshr_b64 {tb}, {tb}, ' + (f's{S_KW}' if self.skip and not self.ot else '4'), f's_mul_i32 s{S_KW}, s{S_KX}, {64*self.ldw2}', f's_lshl_b32 s{S_KX}, s{S_KX}, {11 if self.xblk else 7}']
        lc = self.rot; C = 1 << lc; N = self.NSTEP
        o = [f's_add_u32 s{S_KT}, s{S_KT}, 1']
        if self.ot: o += [f's_cmp_eq_u32 s{S_KT}, s{S_T0}', f's_addc_u32 s{S_KT}, s{S_KT}, 0']
        D = int(ENV('ROTD_' + self.tag.upper(), ENV('ROTD', '2')))
        dl = {3: [3, -1, -1, -1], 2: [2, -1, -1, 0], 1: [1, -1, 0, 0]}[D]
        tbl = sum((((d * C) % N) << (8 * i)) for i, d in enumerate(dl))
        if lc: o += [f's_lshr_b32 s{S_KX}, s{S_KT}, {lc}', f's_sub_u32 s{S_KX}, s{S_KX}, s{S_XG}']
        else: o += [f's_sub_u32 s{S_KX}, s{S_KT}, s{S_XG}']
        o += [f's_lshl_b32 s{S_KX}, s{S_KX}, 3',
              f's_lshr_b32 s{S_KX}, {tbl:#x}, s{S_KX}',
              f's_and_b32 s{S_KX}, s{S_KX}, 255',
              f's_add_u32 s{S_KX}, s{S_KX}, s{S_KT}']
        if N & (N - 1) == 0: o += [f's_and_b32 s{S_KX}, s{S_KX}, {N - 1}']
        else: o += [f's_sub_u32 s{S_KW}, s{S_KX}, {N}', f's_cselect_b32 s{S_KX}, s{S_KX}, s{S_KW}']
        o += [f's_mul_i32 s{S_KW}, s{S_KX}, {64*self.ldw2}', f's_lshl_b32 s{S_KX}, s{S_KX}, {11 if self.xblk else 7}']
        return o
    def panels_of(self, t): return self.panels
    def issue_x(self, bx, bh, imm, kx):
        o = self.xdma(bx, imm, SX, kx, self.xblk)
        if self.halo is not None:
            o.append(f's_add_u32 m0, s{S_HD}, {bh}')
            o.append('s_mov_b64 exec, s[14:15]')
            o.append(f'buffer_load_dwordx4 v{self.VXH}, s[{SX}:{SX+3}], s{kx} offen lds')
            o.append('s_mov_b64 exec, -1')
        return o
    def issue_w(self, t, bw, imm):
        o = []
        for pn, goff in enumerate(self.panels_of(t)):
            for i in range(2):
                o.append(f's_add_u32 m0, s{bw}, {imm+pn*8192+i*1024}')
                o.append((goff if str(goff).startswith('s_') else f's_add_u32 s4, s{S_KW}, {goff}') if i == 0 else 's_nop 0')
                o.append(f'buffer_load_dwordx4 v{self.VWD+i}, s[{SW}:{SW+3}], s4 offen lds')
        if self.half:
            o += [f's_add_u32 m0, s{bw}, {imm+len(self.panels)*8192}', 's_nop 0',
                  f'buffer_load_dwordx4 v{self.VXH}, s[{SW}:{SW+3}], s{S_KW} offen lds']
        return o
    def issue(self, t):
        o = [f's_add_u32 s3, s{S_SLOT}, s{S_XD}']
        o += self.issue_x(3, f's{S_SLOT}', 0, S_KX)
        o.append(f's_add_u32 s3, s{S_SLOT}, s{S_WD}')
        o += self.issue_w(t, 3, 0)
        o += self.knext()
        o.append(f's_add_u32 s{S_SLOT}, s{S_SLOT}, {self.STAGE}')
        o.append(f's_cmp_eq_u32 s{S_SLOT}, {self.S*self.STAGE}')
        o.append(f's_cselect_b32 s{S_SLOT}, 0, s{S_SLOT}')
        return o
    def run(self, variant='', tail_issue=None, ntail_vm=0, final=None, post=(), dep=None, tail_late=0, start=None, extra=None, exfirst=False):
        a = self.a; N = self.NSTEP; d = self.S - 1
        tag = self.tag + variant
        nx = 4 + (1 if self.halo is not None else 0)
        nw = lambda t: 2 * len(self.panels_of(t)) + (1 if self.half else 0)
        seq = []
        early = EARLY and self.tag == 'w2'
        pchk = EARLY - 3 - d - 1; piss = pchk - d + 1 - int(ENV('PEARLY', '0'))
        def em(o):
            for x in o:
                if 'nodma' in DBG and x.endswith(' lds'): continue
                a.emit(x)
        def after(t): return len(seq) - 1 - max(i for i, x in enumerate(seq) if x == t)
        def wait(n):
            assert n <= 63, n
            a.emit(f's_waitcnt vmcnt({n})')
        if dep is None:
            for t in range(2): em(self.issue(t)); seq += [t] * (nx + nw(t))
            if start: seq += ['S'] * start()
            wait(after(0))
            a.emit('s_barrier')
            for t in range(2, d): em(self.issue(t)); seq += [t] * (nx + nw(t))
        else:
            prev = {'attn': 'w2', 'wo': 'attn', 'w1': 'wo', 'w2': 'w1'}[self.tag]
            assert 'attn' not in EBAR
            ot = self.ot
            if ot: em(self.own() + [f's_mov_b32 s88, s{S_KX}'] + self.issue_w(0, S_WD, 0) + self.knext()); seq.extend([0] * nw(0))
            dep_pre(a, self.tag)
            if prev in EBAR: a.emit('s_barrier')
            xw = 1 if self.tag in ENV('XW', 'x').split(',') and not hasattr(self, 'P1') else 0
            def prew(ts):
                for t in ts:
                    a.emit(f's_mov_b32 s{88+t}, s{S_KX}')
                    em(self.issue_w(t, S_WD, t * self.STAGE) + self.knext()); seq.extend([t] * nw(t))
            late = int(ENV('LATE_' + self.tag.upper(), '2'))
            if ot: xw = 1
            prew(range(ot, d + xw - late))
            self.npre = len(seq)
            a.emit(f's_mov_b32 s{S_SLOT}, {0 if xw else d * self.STAGE}')
            wag = int(ENV('WAG_' + self.tag.upper(), '0'))
            dep((lambda: prew(range(d + xw - late, d + xw - wag))) if late else None)
            if ot and self.halo is not None: em(self.issue_x(S_XD, self.hx, 0, 88)[-4:]); seq.append(0)
            for t in range(ot, d + xw):
                if t >= d + xw - wag: prew([t])
                em(self.issue_x(S_XD, t * self.STAGE, t * self.STAGE, 88 + t)); seq += [t] * nx
            if ot and ENV('OPRIO'): a.emit('s_setprio 0')
            wait(after(ot))
            if self.tag == 'w2': lstamp(a, 2)
            a.emit('s_barrier')
            if early: late_flag(a)
        ev = [None] * self.ot
        for i in range(self.ot, N):
            t = i + d
            if t in seq: t = N + 9
            if early and i == piss: seq += ['P']
            if t < N: seq += [t] * (nx + nw(t)) + ['Q'] * sum(x.startswith('buffer_') for x in post)
            ex = extra(i) if extra else []
            tl = tail_issue is not None and t == N - 1 + tail_late
            if exfirst: seq += ['E'] * sum(x.startswith('buffer_') for x in ex)
            if tl: seq += ['T'] * ntail_vm
            if not exfirst: seq += ['E'] * sum(x.startswith('buffer_') for x in ex)
            ev.append(((nw(t) if t < N else -1, after(i + 1) if i + 1 < N else -1, tl, early and i == piss, early and i == pchk, tuple(ex)), t))
        i = self.ot; nl = 0
        while i < N:
            j = i
            while j + 1 < N and ev[j + 1][0] == ev[i][0]: j += 1
            n = j - i + 1
            (k, w, tl, pi, pc, ex), t = ev[i]
            if n >= 3:
                nl += 1
                a.emit(f's_mov_b32 s{S_CNT}, {n}')
                a.label(f'L_{tag}_ld{nl}')
            else: j = i
            if pi: a.emit(f'buffer_load_dword v13, v12, s[{SO}:{SO+3}], s86 offen sc1')
            if t < N:
                em(self.issue(t)); em(post)
            if exfirst: em(ex)
            if tl and not ('notail' in DBG and self.tag == 'w1'):
                if ENV('FPRIO'): a.emit('s_setprio 3')
                tail_issue()
                if ENV('FPRIO'): a.emit('s_setprio 0')
            if not exfirst: em(ex)
            if w >= 0: wait(w)
            elif final and 'nofinal' not in DBG:
                if ENV('FPRIO'): a.emit('s_setprio 3')
                final()
                if ENV('FPRIO'): a.emit('s_setprio 0')
            if pc: late_check(a)
            a.emit('s_barrier')
            if n >= 3:
                a.emit(f's_sub_u32 s{S_CNT}, s{S_CNT}, 1')
                a.emit(f's_cmp_lg_u32 s{S_CNT}, 0')
                a.emit(f's_cbranch_scc1 L_{tag}_ld{nl}')
            i = j + 1

XD = ONE and ENV('SPLIT', '0') == '0' and ENV('XD', '1') == '1'
VW = MEGA and ENV('SPLIT', '0') == '0' and ENV('VW', '0') == '1'
NV1 = int(ENV('NV1', '16')); NV2 = int(ENV('NV2', '12')); NVO = int(ENV('NVO', '11'))
S_TB = 85
def rot_table(a, sd, smt, snt, tag):
    D = int(ENV('ROTD_' + tag.upper(), ENV('ROTD', '2')))
    dl = {3: [3, -1, -1, -1], 2: [2, -1, -1, 0], 1: [1, -1, 0, 0], 0: [0, 0, 0, 0]}[D]
    tbl = sum((d & 255) << (8 * i) for i, d in enumerate(dl))
    a.emit(f's_add_u32 s3, s{smt}, s{snt}')
    a.emit('s_lshl_b32 s3, s3, 3')
    a.emit(f's_lshl_b32 s{sd}, {tbl:#x}, s3')
    a.emit('s_sub_u32 s3, 0, s3')
    a.emit(f's_lshr_b32 s3, {tbl:#x}, s3')
    a.emit(f's_or_b32 s{sd}, s{sd}, s3')

def kpos(N, t, sd, tb=S_TB, halves=True, q=None):
    H, p, add = (28, t >> 1, 28 * (t & 1)) if N == 56 and halves else (N, t, 0)
    o = [f's_bfe_i32 s{sd}, s{tb}, {0x80000 + 8 * (p & 3):#x}', f's_add_i32 s{sd}, s{sd}, {p + add}']
    if p == 0: o += [f's_cmp_lt_i32 s{sd}, {add}', f's_cselect_b32 s{sd}, {H - 1 + add}, s{sd}']
    if p + 3 >= H: o += [f's_sub_u32 s3, s{sd}, {H}', f's_cmp_ge_i32 s{sd}, {H + add}', f's_cselect_b32 s{sd}, s3, s{sd}']
    if q is not None:
        if N == 16 or 1 <= t <= 12: o += [f's_add_u32 s{sd}, s{sd}, s{q}', f's_and_b32 s{sd}, s{sd}, 15']
        elif t <= 16 or t + 3 >= N: o += [f's_add_u32 s3, s{sd}, s{q}', 's_and_b32 s3, s3, 15', f's_cmp_lt_u32 s{sd}, 16', f's_cselect_b32 s{sd}, s3, s{sd}']
    return o

S_Q = 86
MROT = ENV('MROT', '1') == '1'
def rot_q(a, sd, smt, sh=0):
    a.emit(f's_and_b32 s{sd}, s{smt}, {3 if MROT else 0}')
    a.emit(f's_lshl_b32 s{sd}, s{sd}, {2 + sh}')

TSCH = {'wo': [int(c) for c in ENV('TSO', '000')], 'w2': [int(c) for c in ENV('TS2', '000')]}
def tail_parks(nxt, sw, mk=None, sch=None):
    if not XD: return None
    sch = sch or TSCH[nxt]; N = 16 if nxt == 'wo' else 56
    def extra(i):
        if i < 13 or not sum(sch): return []
        a = Asm()
        if i == 13:
            if mk: mk(a)
            a.emit('s_and_b32 s5, s2, 3')
            a.emit('s_lshl_b32 s5, s5, 2')
            a.emit(f's_and_b32 s6, s{S_CU}, 3')
            a.emit('s_add_u32 s5, s5, s6')
            a.emit('s_and_b32 s6, s2, 4')
            a.emit('s_lshl_b32 s6, s6, 1')
            a.emit(f's_lshr_b32 s7, s{S_CU}, 2')
            a.emit('s_add_u32 s6, s6, s7')
            rot_table(a, S_TB, 5, 6, nxt)
            rot_q(a, S_Q, 5)
            a.emit(f's_add_u32 s5, s5, s{S_WV}')
            a.emit('s_and_b32 s5, s5, 3')
            wvoff(a, 16, 5, 6, 2048)
        o = [l.strip() for l in a.lines]
        for t in range(sum(sch[:i - 13]), sum(sch[:i - 12])):
            o += kpos(N, t, 4, S_TB, False, S_Q) + ['s_lshl_b32 s4, s4, 17']
            o += [f'buffer_load_dwordx4 v[{128+8*t+4*j}:{131+8*t+4*j}], v{16+j}, s[{sw}:{sw+3}], s4 offen' for j in range(2)]
        return o
    return extra

def vreg(tag, t):
    if tag == 'wo': return (128 + 8 * (t - 5), False) if 5 <= t < 5 + NVO else None
    if t & 1: return None
    p = t >> 1
    if p < NV1: return (128 + 8 * p, True)
    if p < NV1 + NV2: return (32 + 8 * (p - NV1), False)
    return None

def wvoff(a, vd, sqw, snt, ldw2):
    a.emit('v_lshrrev_b32 v3, 3, v1')
    a.emit(f's_lshl_b32 s10, s{sqw}, 4')
    a.emit('v_add_u32 v3, s10, v3')
    a.emit(f'v_mul_u32_u24 v3, {ldw2}, v3')
    a.emit('v_lshrrev_b32 v2, 3, v1')
    a.emit('v_and_b32 v2, 2, v2')
    a.emit('v_xor_b32 v2, v2, v10')
    a.emit(f's_lshl_b32 s10, s{snt}, 7')
    a.emit('v_add_u32 v3, s10, v3')
    a.emit(f'v_lshl_add_u32 v{vd}, v2, 4, v3')
    a.emit('v_xor_b32 v2, 4, v2')
    a.emit(f'v_add_u32 v3, {8*ldw2}, v3')
    a.emit(f'v_lshl_add_u32 v{vd+1}, v2, 4, v3')

def park(N, t, r, vo, sw):
    return kpos(N, t, 4) + ['s_lshl_b32 s4, s4, 17'] + [f'buffer_load_dwordx4 v[{r+4*i}:{r+4*i+3}], v{vo+i}, s[{sw}:{sw+3}], s4 offen' for i in range(2)]

class ULoader(Loader):
    def run(self, variant='', tail_issue=None, ntail_vm=0, final=None, post=(), dep=None):
        a = self.a; N = self.NSTEP; d = self.S - 1; tag = self.tag
        seq = []
        def em(o):
            for x in o:
                if 'nodma' in DBG and x.endswith(' lds'): continue
                a.emit(x)
        def after(t): return len(seq) - 1 - max(i for i, x in enumerate(seq) if x == t)
        def wait(n, lg=False):
            assert n <= 63, n
            a.emit(f's_waitcnt vmcnt({n})' + (' lgkmcnt(0)' if lg else ''))
        def iw(t):
            sl = (t % self.S) * self.STAGE; v = vreg(tag, t)
            if v:
                em([f'v_add_u32 v11, {sl}, v14'] + [f'ds_write_b128 v11, v[{v[0]+4*i}:{v[0]+4*i+3}] offset:{1024*i}' for i in range(2)])
            else:
                em([f's_lshl_b32 s{S_KW}, s{S_KX}, 17'] + [x for x in self.issue_w(t, S_WD, sl)])
                seq.extend([t] * 2)
        def ix(t, k):
            em(self.issue_x(S_XD, None, (t % self.S) * self.STAGE, k)); seq.extend([t] * 4)
        rot_table(a, S_TB, S_MT, S_NT, tag)
        a.emit(f'v_lshl_add_u32 v14, v1, 4, s{S_WD}')
        dep_pre(a, tag)
        for t in range(d):
            em(kpos(N, t, S_KX)); iw(t)
            a.emit(f's_lshl_b32 s{88+t}, s{S_KX}, 11')
        for t in range(d, N):
            v = vreg(tag, t)
            if v and not v[1]:
                em(park(N, t, v[0], self.VWD, SW)); seq.extend(['V'] * 2)
        self.npre = len(seq)
        dep()
        for t in range(d): ix(t, 88 + t)
        wait(after(0), True)
        if tag == 'w2': lstamp(a, 2)
        a.emit('s_barrier')
        for i in range(N):
            t = i + d
            if i % 4 == 0 and post and t < N:
                a.emit('s_waitcnt lgkmcnt(0)')
                em(post)
            if t < N:
                em(kpos(N, t, S_KX)); iw(t)
                a.emit(f's_lshl_b32 s{S_KX}, s{S_KX}, 11')
                ix(t, S_KX)
            if t == N - 1: tail_issue(); seq.extend(['T'] * ntail_vm)
            if i + 1 < N: wait(after(i + 1), not post or t == N)
            else: final()
            a.emit('s_barrier')

EBAR = ENV('EBAR', 'x').split(',')
S_FL = 87
def dep_pre(a, kind, part=None, n=0):
    if ONE and kind in ('wo', 'w1'):
        ld = f'buffer_load_dword v12, v17, s[{SC}:{SC+3}], 0 offen sc1' if kind == 'wo' else f'buffer_load_dwordx4 v[12:15], v17, s[{SO}:{SO+3}], s3 offen sc1'
        if part == 1: a.emit(f's_waitcnt vmcnt({n})')
        a.emit(f's_add_u32 s3, s{S_LAYER}, s{S_WV}')
        a.emit('s_cmp_lg_u32 s3, 4')
        a.emit(f's_cbranch_scc1 L_{kind}_chk{part}')
        def cmp():
            if kind == 'wo': a.emit('v_cmp_ne_u32 vcc, 0x01010101, v12')
            else:
                a.emit('v_and_b32 v12, v12, v13')
                a.emit('v_and_b32 v14, v14, v15')
                a.emit('v_and_b32 v12, v12, v14')
                a.emit('v_cmp_ne_u32 vcc, 1, v12')
        if part == 1:
            cmp()
            a.emit(f's_cbranch_vccz L_{kind}_chk{part}')
        if True:
            if kind == 'wo': a.emit(f's_load_dwordx2 s[{SC}:{SC+1}], s[0:1], 72')
            else: srd(a, SO, 'ws0', WS_FL, FLS)
            if kind == 'wo':
                a.emit('s_waitcnt lgkmcnt(0)')
                a.emit(f's_and_b32 s{SC+1}, s{SC+1}, 0xffff')
                a.emit(f's_mov_b32 s{SC+2}, 256')
                a.emit(f's_mov_b32 s{SC+3}, 0x00020000')
                a.emit('v_lshlrev_b32 v17, 2, v1')
            else:
                a.emit('v_lshrrev_b32 v2, 2, v1')
                a.emit('v_and_b32 v3, 3, v1')
                a.emit('v_lshlrev_b32 v2, 11, v2')
                a.emit('v_lshl_add_u32 v17, v3, 4, v2')
                a.emit(f's_and_b32 s3, s{S_NT}, {REP - 1}')
                a.emit('s_lshl_b32 s3, s3, 7')
        if part == 0: a.emit(ld)
        else:
            a.emit(f's_mov_b32 s{S_CNT}, 0x100000')
            a.label(f'L_{kind}_chkl')
            a.emit(ld)
            a.emit(f's_sub_u32 s{S_CNT}, s{S_CNT}, 1')
            a.emit(f's_cbranch_scc1 L_{kind}_chk{part}')
            a.emit('s_waitcnt vmcnt(0)')
            cmp()
            a.emit(f's_cbranch_vccnz L_{kind}_chkl')
        a.label(f'L_{kind}_chk{part}')

def dep_wait(a, kind, halo=False, skip_first=False, first=None, preg=None, postf=None, pref=None, defer=False, obar=False):
    if skip_first and not ONE:
        a.emit(f's_cmp_eq_u32 s{S_TSI}, 1')
        a.emit(f's_cbranch_scc1 L_{kind}_dep')
    srd(a, SO, 'ws0', WS_FL, FLS)
    if ONE and kind == 'wo' and first:
        a.emit(f's_cmp_lg_u32 s{S_LAYER}, 0')
        a.emit(f's_cbranch_scc1 L_{kind}_nofirst')
        first()
        a.label(f'L_{kind}_nofirst')
    a.emit(f's_lshl4_add_u32 s3, s{S_TSI}, s{S_MT}')
    a.emit(f's_and_b32 s4, s{S_NT}, {REP - 1}')
    a.emit('s_lshl4_add_u32 s3, s3, s4')
    a.emit('s_lshl_b32 s3, s3, 7')
    a.emit('s_sub_u32 s3, s3, 32768')
    a.emit('v_lshlrev_b32 v11, 7, v1')
    if halo:
        a.emit(f's_cmp_eq_u32 s{S_MT}, 0')
        a.emit('s_cselect_b32 s4, 15, 31')
        a.emit('v_and_b32 v2, 16, v1')
        a.emit('v_lshl_add_u32 v11, v2, 2, v11')
        a.emit('v_and_b32 v2, s4, v1')
    else: a.emit('v_and_b32 v2, 15, v1')
    a.emit('v_lshlrev_b32 v2, 2, v2')
    a.emit('v_mov_b32 v3, 1')
    a.emit(f's_mov_b32 s{S_CNT}, 0x100000')
    if kind == LSTK == 'wo': lstamp(a, 2)
    if pref: pref()
    a.emit(f's_cmp_lg_u32 s{S_WV}, 4')
    a.emit('s_barrier')
    if kind == 'w2': lstamp(a, 0, True)
    if kind == LSTK == 'w1': lstamp(a, 0)
    a.emit(f's_cbranch_scc1 L_{kind}_{"nofl" if postf else "dep"}')
    a.emit(f's_mov_b32 exec_lo, {((1 << REP) - 1) * (0x10001 if halo else 1):#x}')
    a.emit('s_mov_b32 exec_hi, 0')
    a.emit(f'buffer_store_dword v3, v11, s[{SO}:{SO+3}], s{S_FL} offen sc1')
    a.emit('s_mov_b64 exec, -1')
    PSP = int(ENV('PSP', '0'))
    if defer:
        a.label(f'L_{kind}_nofl')
        a.emit(f's_mov_b32 s{S_Q}, s3')
        postf()
        return
    if postf and PSP:
        a.label(f'L_{kind}_nofl')
        a.emit('s_mov_b32 s5, s3')
        i0 = len(a.lines); postf(); ls = a.lines[i0:]; del a.lines[i0:]
        dma = [i for i, l in enumerate(ls) if 'buffer_load' in l]
        poll = lambda k: f'buffer_load_dword v{24+k}, v2, s[{SO}:{SO+3}], s5 offen sc1'
        for i, l in enumerate(ls):
            a.lines.append(l)
            for k in range(3):
                if dma and i == dma[-1 - PSP * (3 - k)]: a.emit(poll(k))
        a.emit(f's_cmp_lg_u32 s{S_WV}, 4')
        a.emit(f's_cbranch_scc1 L_{kind}_dep')
        def chk(k, n, last=False):
            a.emit(poll((k + 3) & 3))
            a.emit(f's_waitcnt vmcnt({n})')
            a.emit(f'v_cmp_ne_u32 vcc, 1, v{24+k}')
            a.emit(f's_cbranch_vccnz L_{kind}_poll' if last else f's_cbranch_vccz L_{kind}_dep')
        for k in range(3): chk(k, 3 + PSP * (3 - k))
        a.label(f'L_{kind}_poll')
        a.emit(f's_sub_u32 s{S_CNT}, s{S_CNT}, 1')
        a.emit(f's_cbranch_scc1 L_{kind}_dep')
        for k in (3, 0, 1, 2): chk(k, 3, k == 2)
    else:
        if postf:
            if obar:
                a.emit(f's_waitcnt vmcnt({obar})')
                a.emit(f's_branch L_{kind}_obar')
            a.label(f'L_{kind}_nofl')
            if obar:
                a.emit(f's_waitcnt vmcnt({obar - 1})')
                a.label(f'L_{kind}_obar')
                a.emit('s_barrier')
                if ENV('OPRIO'): a.emit(f"s_setprio {ENV('OPRIO')}")
            a.emit('s_mov_b32 s5, s3')
            postf()
            a.emit('s_mov_b32 s3, s5')
            a.emit(f"s_cmp_lg_u32 s{S_WV}, {ENV('PW_' + kind.upper(), '4')}")
            a.emit(f's_cbranch_scc1 L_{kind}_dep')
        if kind == LSTK == 'w1': lstamp(a, 1)
        a.label(f'L_{kind}_poll')
        a.emit(f'buffer_load_dword v3, v2, s[{SO}:{SO+3}], s3 offen sc1')
        a.emit(f's_sub_u32 s{S_CNT}, s{S_CNT}, 1')
        a.emit(f's_cbranch_scc1 L_{kind}_dep')
        a.emit('s_waitcnt vmcnt(0)')
        a.emit('v_cmp_ne_u32 vcc, 1, v3')
        a.emit(f's_cbranch_vccnz L_{kind}_poll')
    a.label(f'L_{kind}_dep')
    if kind == 'w2': lstamp(a, 1, True)
    if kind == LSTK == 'wo': lstamp(a, 3)
    if kind == LSTK == 'w1':
        lstamp(a, 2)
        if TS: a.emit(f's_mov_b32 s50, s{S_CNT}')
    if preg: preg()
    if preg and kind == 'w2': lstamp(a, 2, True)
    a.emit('s_barrier')

def dep_late(a, kind, part, n=0):
    ld = f'buffer_load_dword v3, v2, s[{SO}:{SO+3}], s{S_Q} offen sc1'
    if part == 0:
        a.emit(f's_cmp_eq_u32 s{S_WV}, 4')
        a.emit(f's_cselect_b32 s{SO+2}, s{SO+2}, 0')
        a.emit(ld)
        return
    a.emit(f's_cmp_lg_u32 s{S_WV}, 4')
    a.emit(f's_cbranch_scc1 L_{kind}_dep')
    a.emit(f's_waitcnt vmcnt({n})')
    a.emit('v_cmp_ne_u32 vcc, 1, v3')
    a.emit(f's_cbranch_vccz L_{kind}_dep')
    a.label(f'L_{kind}_poll')
    a.emit(ld)
    a.emit(f's_sub_u32 s{S_CNT}, s{S_CNT}, 1')
    a.emit(f's_cbranch_scc1 L_{kind}_dep')
    a.emit('s_waitcnt vmcnt(0)')
    a.emit('v_cmp_ne_u32 vcc, 1, v3')
    a.emit(f's_cbranch_vccnz L_{kind}_poll')
    a.label(f'L_{kind}_dep')
    lstamp(a, 1, True); lstamp(a, 2, True)
    if TS and ENV('LST') != 'x': a.emit(f's_mov_b32 s58, s{S_CNT}')

LGO = 163840 - 64
def dep_early(a):
    srd(a, SO, 'ws0', WS_FL, FLS)
    a.emit(f's_lshl_b32 s86, s{S_TSI}, 12')
    a.emit(f's_lshl_b32 s4, s{S_MT}, 8')
    a.emit('s_add_u32 s86, s86, s4')
    a.emit('s_sub_u32 s86, s86, 4096')
    a.emit('v_and_b32 v12, 15, v1')
    a.emit('v_lshlrev_b32 v12, 2, v12')
    a.emit('v_mov_b32 v3, 0')
    a.emit(f'v_mov_b32 v2, {LGO}')
    a.emit('ds_write_b32 v2, v3')
    a.emit('v_mov_b32 v13, 1')
    a.emit(f's_mov_b32 s{S_CNT}, 0x100000')
    a.emit(f's_cmp_lg_u32 s{S_WV}, 4')
    a.emit('s_waitcnt lgkmcnt(0)')
    a.emit('s_barrier')
    a.emit('s_cbranch_scc1 L_w2_go')
    lstamp(a, 0)
    a.emit('s_mov_b64 exec, 1')
    a.emit(f'buffer_store_dword v13, off, s[{SO}:{SO+3}], s{S_FL} sc1')
    a.emit('s_mov_b64 exec, -1')
    a.label('L_w2_poll')
    a.emit(f'buffer_load_dword v3, v12, s[{SO}:{SO+3}], s86 offen sc1')
    a.emit(f's_sub_u32 s{S_CNT}, s{S_CNT}, 1')
    a.emit('s_cbranch_scc1 L_w2_rel')
    a.emit('s_waitcnt vmcnt(0)')
    a.emit('v_cmp_eq_u32 vcc, 0, v3')
    a.emit('s_cbranch_vccnz L_w2_poll')
    a.label('L_w2_rel')
    a.emit('ds_write_b32 v2, v13')
    lstamp(a, 1)
    a.emit('s_branch L_w2_dep')
    a.label('L_w2_go')
    a.emit(f's_mov_b32 s{S_CNT}, 0x2000000')
    a.label('L_w2_gol')
    a.emit('ds_read_b32 v3, v2')
    a.emit(f's_sub_u32 s{S_CNT}, s{S_CNT}, 1')
    a.emit('s_cbranch_scc1 L_w2_dep')
    a.emit('s_waitcnt lgkmcnt(0)')
    a.emit('v_cmp_eq_u32 vcc, 0, v3')
    a.emit('s_cbranch_vccnz L_w2_gol')
    a.label('L_w2_dep')

def late_flag(a):
    a.emit(f's_cmp_lg_u32 s{S_WV}, 4')
    a.emit('s_cbranch_scc1 L_w2_nolate')
    a.emit('v_mov_b32 v3, 2')
    a.emit('s_mov_b64 exec, 1')
    a.emit(f'buffer_store_dword v3, off, s[{SO}:{SO+3}], s{S_FL} sc1')
    a.emit('s_mov_b64 exec, -1')
    a.label('L_w2_nolate')

def late_check(a):
    a.emit(f's_mov_b32 s{S_CNT}, 0x100000')
    a.label('L_w2_lchk')
    a.emit('v_cmp_ne_u32 vcc, 2, v13')
    a.emit('s_cbranch_vccz L_w2_lok')
    a.emit(f'buffer_load_dword v13, v12, s[{SO}:{SO+3}], s86 offen sc1')
    a.emit(f's_sub_u32 s{S_CNT}, s{S_CNT}, 1')
    a.emit('s_waitcnt vmcnt(0)')
    a.emit('s_cbranch_scc0 L_w2_lchk')
    a.label('L_w2_lok')
    if TS: a.emit(f's_mov_b32 s58, s{S_CNT}')
    lstamps_out(a, 'w2')

def gbar(a, kind):
    if not MEGA or (EARLY and kind == 'w2'): return
    if kind == 'attn':
        a.emit(f's_cmp_eq_u32 s{S_LAYER}, 0')
        a.emit('s_cbranch_scc1 L_attn_nog')
    a.emit('s_barrier')
    if kind == 'attn': a.label('L_attn_nog')

def next_phase(a, kind, comp=False):
    nxt = {'attn': 'wo', 'wo': 'w1', 'w1': 'w2', 'w2': 'attn'}[kind]
    if kind == 'w2':
        a.emit(f's_mov_b32 s{S_LAYER}, 1')
        a.emit(f's_add_u32 s12, s22, {WS_X2}')
        a.emit('s_addc_u32 s13, s23, 0')
        a.emit(f's_add_u32 s34, s22, {LSTR}')
        a.emit('s_addc_u32 s35, s23, 0')
    a.emit(f's_add_u32 s{S_TSI}, s{S_TSI}, 1')
    a.emit(f's_branch L_{nxt}_' + ('compute' if comp and NV and nxt == 'w2' else 'body'))

def last_check(a, kind):
    if kind == 'w2' or (kind == 'attn' and not ONE):
        a.emit(f's_cmp_eq_u32 s{S_LAYER}, {0 if kind == "attn" else 1}')
        a.emit(f's_cbranch_scc1 L_{kind}_end')

def compute_end(a, kind):
    if not MEGA:
        stamps_out(a, kind)
        a.emit('s_endpgm')
        return
    if not TS: last_check(a, kind)
    if kind in EBAR: a.emit('s_barrier')
    import pads
    for x in pads.chain({'attn': 'he', 'wo': 'hw'}.get(kind)): a.emit(x)
    if not ((EARLY or NV) and kind == 'w1'):
        a.emit('s_waitcnt vmcnt(0) lgkmcnt(0)')
        a.emit('s_barrier')
    if TS:
        stamps_out(a, kind)
        if ENV('DIAG') and kind == 'w2': diag(a)
        last_check(a, kind)
    stamp(a, 0, nowait=True)
    next_phase(a, kind, True)

def diag(a):
    ph, j, K, C = [int(x) for x in ENV('DIAG').split(',')]
    a.emit(f's_lshl1_add_u32 s3, s{S_WV}, s{S_LAYER}')
    a.emit('s_cmp_lg_u32 s3, 1')
    a.emit('s_cbranch_scc1 L_diag_end')
    a.emit('s_waitcnt vmcnt(0)')
    a.emit('v_lshlrev_b32 v1, 6, v0')
    for i in range(4): a.emit(f's_mov_b32 s3, {4096*i}'); a.emit(f'buffer_load_dword v{4+i}, v1, s[{SP}:{SP+3}], s3 offen sc1')
    a.emit('s_lshl_b32 s4, s2, 6')
    a.emit(f's_add_u32 s4, s4, {(ph << 16) + 16 * j}')
    a.emit(f'buffer_load_dword v8, off, s[{SP}:{SP+3}], s4 sc1')
    a.emit('s_waitcnt vmcnt(0)')
    for i in range(4): a.emit(f'v_sub_u32 v{4+i}, v8, v{4+i}')
    a.emit('v_max_i32 v4, v4, v5'); a.emit('v_max_i32 v6, v6, v7'); a.emit('v_max_i32 v4, v4, v6')
    a.emit('s_mov_b32 s5, 0')
    a.emit('s_nop 1')
    for i in range(64):
        a.emit(f'v_readlane_b32 s3, v4, {i}')
        a.emit('s_max_i32 s5, s5, s3')
    if C: a.emit(f's_sub_u32 s5, {C}, s5'); a.emit('s_max_i32 s5, s5, 0')
    a.emit('s_min_u32 s5, s5, 15000')
    a.emit(f's_mul_i32 s5, s5, {K}')
    a.emit('s_memrealtime s[6:7]')
    a.emit('s_mov_b32 s4, 0x40000')
    a.emit('s_waitcnt lgkmcnt(0)')
    a.label('L_diag_l')
    a.emit('s_memrealtime s[8:9]')
    a.emit('s_sub_u32 s4, s4, 1')
    a.emit('s_cbranch_scc1 L_diag_end')
    a.emit('s_waitcnt lgkmcnt(0)')
    a.emit('s_sub_u32 s8, s8, s6')
    a.emit('s_cmp_lt_u32 s8, s5')
    a.emit('s_cbranch_scc1 L_diag_l')
    a.label('L_diag_end')

def loader_end(a, kind, check=True):
    if MEGA:
        if kind == LSTK and not EARLY: lstamps_out(a, kind)
        if check: last_check(a, kind)
        a.emit(f's_lshl_b32 s{S_FL}, s{S_TSI}, 15')
        a.emit(f's_lshl_b32 s4, s{S_MT}, 11')
        a.emit(f's_add_u32 s{S_FL}, s{S_FL}, s4')
        a.emit(f's_lshl_b32 s4, s{S_NT}, 2')
        a.emit(f's_add_u32 s{S_FL}, s{S_FL}, s4')
        next_phase(a, kind)

def pf_weights(a, sd, which, size, ldw2, R, sh, L, LMn, tilebytes, NI, vd, row0=0, qkv=False, pair=False):
    if 'nopf' in DBG: return 0
    srd(a, sd, which, 0, size)
    a.emit(f's_and_b32 s3, s{S_WV}, 3')
    a.emit(f's_mul_i32 s3, s3, {NI * (64 >> sh)}')
    a.emit(f's_mul_i32 s4, s{S_CU}, {R}')
    a.emit('s_add_u32 s3, s3, s4')
    if row0: a.emit(f's_add_u32 s3, s3, {row0}')
    a.emit(f'v_lshrrev_b32 v2, {sh}, v1')
    a.emit('v_add_u32 v2, s3, v2')
    a.emit(f'v_mul_u32_u24 v2, {ldw2}, v2')
    a.emit(f'v_and_b32 v3, {(1 << sh) - 1}, v1')
    if L < (1 << sh): a.emit(f'v_min_u32 v3, {L-1}, v3')
    if qkv:
        a.emit('v_lshrrev_b32 v12, 2, v3')
        a.emit('v_lshl_add_u32 v2, v12, 11, v2')
        a.emit('v_and_b32 v3, 3, v3')
    a.emit(f'v_lshl_add_u32 v2, v3, {8 if pair else 7}, v2')
    a.emit('s_and_b32 s3, s2, 7')
    a.emit(f's_lshr_b32 s3, s3, {4 - LMn}')
    a.emit(f's_mul_i32 s3, s3, {tilebytes if pair else (1 << (5 - LMn)) * tilebytes}')
    for i in range(NI):
        a.emit(f'buffer_load_dword v{vd+i}, v2, s[{sd}:{sd+3}], s3 offen')
        if i + 1 < NI: a.emit(f's_add_u32 s3, s3, {(64 >> sh) * ldw2}')
    return NI

_pfc = [0]
def pf_code(a, start, end, vd, forward=True):
    if 'nopfc' in DBG: return 0
    _pfc[0] += 1
    lab = f'L_pfc{_pfc[0]}'
    a.emit('s_getpc_b64 s[4:5]')
    a.label(lab)
    if forward:
        a.emit(f's_add_u32 s4, s4, {start}-{lab}')
        a.emit('s_addc_u32 s5, s5, 0')
    else:
        a.emit(f's_sub_u32 s4, s4, {lab}-{start}')
        a.emit('s_subb_u32 s5, s5, 0')
    a.emit(f's_and_b32 s3, s{S_WV}, 3')
    a.emit('s_lshl_b32 s3, s3, 13')
    a.emit('v_lshl_add_u32 v2, v1, 7, s3')
    a.emit(f'v_min_u32 v2, {end}-{start}-4, v2')
    a.emit(f'global_load_dword v{vd}, v2, s[4:5]')
    return 1

def wbase(a, vd, vt, g='v2'):
    a.emit(f'v_bfe_u32 v{vd}, v1, 2, 2')
    a.emit(f'v_lshl_add_u32 v{vd}, {g}, 3, v{vd}')
    a.emit(f'v_lshlrev_b32 v{vd}, 7, v{vd}')
    a.emit(f'v_and_b32 v{vt}, 3, v1')
    a.emit(f'v_lshl_add_u32 v{vd}, v{vt}, 3, v{vd}')
    a.emit(f'v_bfe_u32 v{vt}, v1, 3, 2')
    a.emit(f'v_lshl_add_u32 v{vd}, v{vt}, 5, v{vd}')


def code_touch(a, start, end, nb, sd=SX, loader=False):
    if ENV('CT', '1') == '0': return
    _pfc[0] += 1
    lab = f'L_pfc{_pfc[0]}'
    a.emit(f's_cmp_lg_u32 s{S_LAYER}, 0')
    a.emit(f's_cbranch_scc1 {lab}_skip')
    a.emit('s_getpc_b64 s[4:5]')
    a.label(lab)
    a.emit(f's_lshl_b32 s3, s{S_CU}, 2')
    a.emit(f's_add_u32 s3, s3, s{S_WV}')
    if loader: a.emit('s_sub_u32 s3, s3, 4')
    a.emit(f's_mul_i32 s3, s3, {nb}')
    a.emit(f's_min_u32 s3, s3, {end}-{start}-{nb}')
    a.emit(f's_add_i32 s3, s3, {start}-{lab}')
    a.emit('s_ashr_i32 s6, s3, 31')
    a.emit('s_add_u32 s4, s4, s3')
    a.emit('s_addc_u32 s5, s5, s6')
    for i in range(nb // 64):
        a.emit(f's_load_dword s{84 if loader else SW}, s[4:5], {64*i}')
    a.label(f'{lab}_skip')

def loader_first(a, kind):
    if ENV('LF', '1') == '0': return
    L = a.lines
    ib = max(i for i, l in enumerate(L) if l.strip() == f's_cbranch_scc1 L_{kind}_loader')
    il = L.index(f'L_{kind}_loader:')
    ie = L.index(f'L_{kind}_end:') + 2
    assert L[ie - 1].strip() == 's_endpgm' and L[ib - 1].strip().startswith('s_cmp_ge_u32')
    L[ib - 1] = L[ib - 1].replace('s_cmp_ge_u32', 's_cmp_lt_u32')
    L[ib] = f'  s_cbranch_scc1 L_{kind}_compute'
    a.lines = L[:ib + 1] + L[il:ie] + [f'L_{kind}_compute:'] + L[ib + 1:il] + L[ie:]

def clear_flags(a, part, n=0):
    if not ONE or DS: return
    if part == 0 and 'attn' not in OT: a.emit(f's_load_dwordx2 s[{SC}:{SC+1}], s[0:1], 72')
    a.emit(f's_or_b32 s3, s{S_LAYER}, s{S_WV}')
    a.emit(f's_cbranch_scc1 L_clr_skip{part}')
    if part == 0:
        srd(a, SP, 'ws0', WS_FL, FLS)
        a.emit('s_lshl_b32 s3, s2, 11')
        a.emit('v_lshlrev_b32 v2, 4, v1')
        a.emit(f'buffer_store_dwordx4 v[128:131], v2, s[{SP}:{SP+3}], s3 offen sc1')
        a.emit(f'buffer_store_dwordx4 v[128:131], v2, s[{SP}:{SP+3}], s3 offen offset:1024 sc1')
    else:
        a.emit('v_mov_b32 v3, 1')
        a.emit(f's_and_b32 s{SC+1}, s{SC+1}, 0xffff')
        a.emit(f's_mov_b32 s{SC+2}, 256')
        a.emit(f's_mov_b32 s{SC+3}, 0x00020000')
        a.emit('s_mov_b64 exec, 1')
        a.emit(f's_waitcnt vmcnt({n})')
        a.emit(f'buffer_store_byte v3, off, s[{SC}:{SC+3}], s2 sc1')
        a.emit('s_mov_b64 exec, -1')
    a.label(f'L_clr_skip{part}')

def mf_order(nn, nm, skip=lambda jn, jm: False):
    m = ENV('MFO', 's')
    if m == 'n': o = [(jn, jm) for jn in range(nn) for jm in range(nm)]
    elif m == 's': o = [(jn, jm if not jn & 1 else nm - 1 - jm) for jn in range(nn) for jm in range(nm)]
    elif m == 'm': o = [(jn, jm) for jm in range(nm) for jn in range(nn)]
    elif m == 'z': o = [(jn if not jm & 1 else nn - 1 - jn, jm) for jm in range(nm) for jn in range(nn)]
    elif m == 'd': o = [(i % nn, (i // nn + i % nn) % nm) for i in range(nn * nm)]
    return [x for x in o if not skip(*x)]
```

```python
from common import *

T4 = ENV('T4', '1') == '1'
OBAR = ENV('OBAR', '0') == '1'
def big_loop(a, tag, N, S, STAGE, naddr, VB, VA, reads, mf, variants=None, select=None, post=None, ot=None, mid=(), halo=None, hooks=None):
    def addr():
        o = [f'v_add_u32_e64 v{VA+i}, s{S_SLOT}, v{VB+i}' for i in range(naddr)]
        o += [f's_add_u32 s{S_SLOT}, s{S_SLOT}, {STAGE}', f's_cmp_eq_u32 s{S_SLOT}, {S*STAGE}', f's_cselect_b32 s{S_SLOT}, 0, s{S_SLOT}']
        return o
    a.emit(f's_mov_b32 s{S_SLOT}, 0')
    for x in addr(): a.emit(x)
    if halo:
        if hooks: own_pos(a, S_CNT)
        else: a.emit(f's_mov_b32 s{S_CNT}, {N}')
        if hooks: a.emit(f's_mul_i32 s{S_T}, s{S_LAYER}, {len(hooks)}')
        a.emit(f's_cmp_eq_u32 s{S_LAYER}, 0')
        a.emit(f's_cbranch_scc1 L_{tag}_nog')
    a.emit(f's_mov_b32 s{S_CNT}, {N - 1 if ot else N}')
    if ot:
        rd = (lambda s, ks: reads(s, ks, False)) if halo else reads
        for x in rd(0, 0): a.emit(x)
        a.emit('s_waitcnt lgkmcnt(0)')
        interleave(a, ot(0), rd(1, 1) + addr(), lead=1, per=1)
        a.emit('s_waitcnt lgkmcnt(0)')
        for x in ot(1): a.emit(x)
    if halo:
        a.emit('s_barrier')
        for x in halo[0]: a.emit(x)
        a.label(f'L_{tag}_nog')
    else: gbar(a, tag)
    a.lines += mid
    if halo: a.emit(f's_cmp_eq_u32 s{S_LAYER}, 0')
    a.emit('s_barrier')
    stamp(a, 1)
    if halo:
        a.emit(f's_cbranch_scc1 L_{tag}_first')
        for x in halo[1] + reads(0, 0): a.emit(x)
        a.emit('s_waitcnt lgkmcnt(15)')
        for x in halo[2]: a.emit(x)
        a.emit('s_waitcnt lgkmcnt(0)')
        a.emit(f's_branch L_{tag}_loop')
        a.label(f'L_{tag}_first')
        if not DS: a.emit(f's_load_dwordx2 s[{SC}:{SC+1}], s[0:1], 72')
    for x in reads(0, 0): a.emit(x)
    a.emit('s_waitcnt lgkmcnt(0)')
    def loop(nm, m):
        a('.p2align 3')
        a.label(f'L_{tag}_loop{nm}')
        ad = addr()
        ad[-1] += f'\n  s_sub_u32 s{S_CNT}, s{S_CNT}, 1'
        interleave(a, m(0), reads(1, 1) + ad, lead=1, per=1)
        a.emit('s_waitcnt lgkmcnt(0)')
        a.emit('s_barrier')
        interleave(a, m(1), reads(0, 0) + [f's_cmp_lg_u32 s{S_CNT}, 0\n  s_nop 0'], lead=1, per=1)
        a.emit('s_waitcnt lgkmcnt(0)')
        a.emit(f's_cbranch_scc1 L_{tag}_loop{nm}')
    if variants:
        select()
        vs = list(variants.items())
        for i, (nm, m) in enumerate(vs):
            loop(nm, m)
            if i + 1 < len(vs): a.emit(f's_branch L_{tag}_post')
        a.label(f'L_{tag}_post')
        post()
        a.emit(f's_branch L_{tag}_exit')
    if hooks and PO0 == 0:
        a.emit(f's_cmp_eq_u32 s{S_CNT}, 0')
        a.emit(f's_cbranch_scc1 L_{tag}_lend')
    loop('', mf)
    a.label(f'L_{tag}_lend')
    if hooks:
        a.emit(f's_add_u32 s{S_T}, s{S_T}, 1')
        a.emit(f's_cmp_gt_u32 s{S_T}, {len(hooks)}')
        a.emit(f's_cbranch_scc1 L_{tag}_exit')
        for i, (t, code) in enumerate(hooks):
            if i + 1 < len(hooks):
                a.emit(f's_cmp_lg_u32 s{S_T}, {i + 1}')
                a.emit(f's_cbranch_scc1 L_{tag}_hook{i}')
            t2 = hooks[i + 1][0] if i + 1 < len(hooks) else N
            if t < 0 <= t2:
                own_pos(a, S_CNT)
                a.emit(f's_sub_u32 s{S_CNT}, {t2 + t + 1}, s{S_CNT}')
                assert t2 + t + 1 > PO0 + POM
            else: a.emit(f's_mov_b32 s{S_CNT}, {abs(t2 - t)}')
            for x in code: a.emit(x)
            a.emit(f's_branch L_{tag}_loop')
            if i + 1 < len(hooks): a.label(f'L_{tag}_hook{i}')
    a.label(f'L_{tag}_exit')
    stamp(a, 2)

def stats_loads(a, vd, halo):
    a.emit(f's_and_b32 s3, s{S_WV}, 3')
    a.emit(f's_lshl_b32 s4, s{S_MT}, 7')
    a.emit('s_lshl_b32 s5, s3, 6')
    a.emit('s_add_u32 s5, s5, s4')
    a.emit('v_add_u32 v2, s5, v1')
    a.emit('s_sub_u32 s4, s4, 16')
    a.emit('v_and_b32 v3, 15, v1')
    a.emit('v_add_u32 v3, s4, v3')
    a.emit('v_max_i32 v3, 0, v3')
    a.emit('s_cmp_ge_u32 s3, 2')
    a.emit('s_cselect_b64 vcc, -1, 0')
    a.emit('v_cndmask_b32 v2, v2, v3, vcc')
    a.emit('v_lshlrev_b32 v2, 3, v2')
    a.emit('s_mov_b32 s3, 0')
    for j in range(16):
        a.emit(f'buffer_load_dwordx2 v[{vd+2*j}:{vd+2*j+1}], v2, s[{ST}:{ST+3}], s3 offen')
        if j < 15: a.emit('s_add_u32 s3, s3, 16384')
    return 16

def stats_finish(a, vs):
    a.emit(f'v_mul_f32 v{vs}, 0x3a800000, v{vs}')
    a.emit(f'v_mul_f32 v{vs+1}, 0x3a800000, v{vs+1}')
    a.emit(f'v_fma_f32 v{vs+1}, -v{vs}, v{vs}, v{vs+1}')
    a.emit(f'v_max_f32 v{vs+1}, 0, v{vs+1}')
    a.emit(f'v_add_f32 v{vs+1}, 0x3727c5ac, v{vs+1}')
    a.emit(f'v_rsq_f32 v{vs+1}, v{vs+1}')
    a.emit('s_nop 0')

def stats_reduce_store(a, vd, LST):
    for j in range(1, 8):
        a.emit(f'v_add_f32 v{vd}, v{vd}, v{vd+2*j}')
        a.emit(f'v_add_f32 v{vd+1}, v{vd+1}, v{vd+2*j+1}')
        a.emit(f'v_add_f32 v{vd+16}, v{vd+16}, v{vd+16+2*j}')
        a.emit(f'v_add_f32 v{vd+17}, v{vd+17}, v{vd+17+2*j}')
    a.emit(f'v_add_f32 v{vd}, v{vd}, v{vd+16}')
    a.emit(f'v_add_f32 v{vd+1}, v{vd+1}, v{vd+17}')
    stats_finish(a, vd)
    a.emit(f's_and_b32 s3, s{S_WV}, 3')
    a.emit('s_lshl_b32 s5, s3, 6')
    a.emit('s_add_u32 s5, s5, 16')
    a.emit('v_add_u32 v2, s5, v1')
    a.emit('v_and_b32 v3, 15, v1')
    a.emit('s_cmp_ge_u32 s3, 2')
    a.emit('s_cselect_b64 vcc, -1, 0')
    a.emit('v_cndmask_b32 v2, v2, v3, vcc')
    a.emit('v_lshlrev_b32 v2, 2, v2')
    a.emit(f'v_add_u32 v2, {LST}, v2')
    a.emit(f'ds_write2_b32 v2, v{vd}, v{vd+1} offset0:0 offset1:160')

VST, VSH, VCS, VBI = 18, 19, 22, 23
def stats4_setup(a, halo):
    a.emit(f's_and_b32 s3, s{S_WV}, 3')
    a.emit(f's_lshl2_add_u32 s4, s{S_MT}, s3')
    a.emit('s_lshl_b32 s4, s4, 8')
    a.emit('v_lshrrev_b32 v2, 4, v1')
    a.emit('v_and_b32 v3, 15, v1')
    a.emit('v_lshl_add_u32 v3, v3, 4, s4')
    a.emit(f'v_lshl_add_u32 v{VST}, v2, 14, v3')
    if halo:
        a.emit(f's_lshl_b32 s4, s{S_MT}, 5')
        a.emit('s_add_u32 s4, s4, s3')
        a.emit('s_sub_u32 s4, s4, 4')
        a.emit('s_max_i32 s4, s4, 0')
        a.emit('s_lshl_b32 s4, s4, 5')
        a.emit('v_lshrrev_b32 v2, 2, v1')
        a.emit('v_and_b32 v3, 3, v1')
        a.emit('v_lshl_add_u32 v3, v3, 3, s4')
        a.emit(f'v_lshl_add_u32 v{VSH}, v2, 14, v3')

def quad_loads(vd, vo, sd):
    o = []
    for j in range(4):
        if j: o.append(f's_mov_b32 s3, {j << 16}')
        o.append(f'buffer_load_dwordx4 v[{vd+4*j}:{vd+4*j+3}], v{vo}, s[{sd}:{sd+3}], {"s3" if j else 0} offen')
    return o

def stats4_loads(vd, halo):
    return quad_loads(vd, VST, ST) + ([f'buffer_load_dwordx2 v[{vd+16}:{vd+17}], v{VSH}, s[{ST}:{ST+3}], 0 offen'] if halo else [])

def quad_sum(a, vd):
    pk = lambda d, s: a.emit(f'v_pk_add_f32 v[{d}:{d+1}], v[{d}:{d+1}], v[{s}:{s+1}]')
    pk(vd, vd + 4); pk(vd + 2, vd + 6); pk(vd + 8, vd + 12); pk(vd + 10, vd + 14); pk(vd, vd + 8); pk(vd + 2, vd + 10)
    a.emit('s_nop 1')
    a.emit(f'v_permlane32_swap_b32 v{vd}, v{vd+2}')
    a.emit(f'v_permlane32_swap_b32 v{vd+1}, v{vd+3}')
    pk(vd, vd + 2)

def stats4_store(a, vd, LST, halo, chk=None):
    quad_sum(a, vd)
    if chk: chk()
    def allsum(r, op):
        a.emit(f'v_mov_b32 v{r+2}, v{r}')
        a.emit(f'v_mov_b32 v{r+3}, v{r+1}')
        a.emit('s_nop 0')
        a.emit(f'v_permlane{op}_swap_b32 v{r}, v{r+2}')
        a.emit(f'v_permlane{op}_swap_b32 v{r+1}, v{r+3}')
        a.emit(f'v_pk_add_f32 v[{r}:{r+1}], v[{r}:{r+1}], v[{r+2}:{r+3}]')
    allsum(vd, 16)
    stats_finish(a, vd)
    a.emit(f's_and_b32 s3, s{S_WV}, 3')
    a.emit('s_lshl_b32 s5, s3, 7')
    a.emit(f's_add_u32 s5, s5, {LST + 64}')
    a.emit('v_and_b32 v3, 15, v1')
    a.emit('v_lshrrev_b32 v2, 5, v1')
    a.emit('v_lshl_add_u32 v2, v3, 1, v2')
    a.emit('v_lshl_add_u32 v2, v2, 2, s5')
    a.emit(f'ds_write2_b32 v2, v{vd}, v{vd+1} offset0:0 offset1:160')
    if halo:
        h = vd + 16
        allsum(h, 32); allsum(h, 16)
        for r in (8, 4):
            a.emit('s_nop 1')
            for i in range(2): a.emit(f'v_add_f32_dpp v{h+i}, v{h+i}, v{h+i} row_ror:{r} row_mask:0xf bank_mask:0xf')
        stats_finish(a, h)
        a.emit('s_lshl_b32 s5, s3, 4')
        a.emit(f's_add_u32 s5, s5, {LST}')
        a.emit('v_and_b32 v3, 3, v1')
        a.emit('v_lshl_add_u32 v2, v3, 2, s5')
        a.emit(f'ds_write2_b32 v2, v{h}, v{h+1} offset0:0 offset1:160')

def gen_w1(a, tsidx, side, cs=(16, 16384, 0)):
    kind = 'w1'
    K = 1024; lda2 = 2048; ldw2 = 7168; ldo2 = 7168
    ot = kind in OT
    S = 3; LM = int(ENV('LM_W1', '2' if ot else '3'))
    STAGE = 16384 + 4 * 8192
    o2 = 'w2' in OT
    assert LM == 2 or not o2
    LST = OHB - 4096 if o2 else S * STAGE
    LCS = LST + 1280
    N = 16
    body = f'L_{kind}_body'; end = f'L_{kind}_end'
    VB, VA, VO = 4, 20, 12
    F = [32, 80]; ACC = 128
    acc = lambda jn, jm: ACC + (jn * 4 + jm) * 4
    fx = lambda s, jm: F[s] + jm * 4
    fw = lambda s, jn: F[s] + 16 + jn * 4
    a.label(f'L_{kind}_c0')
    if not MEGA: stub(a, f'{kind}l0_kernel', body, 0, tsidx, True)
    a.label(body)
    tile_map(a, LM, end)
    a.emit(f's_cmp_ge_u32 s{S_WV}, 4')
    a.emit(f's_cbranch_scc1 L_{kind}_loader')
    if ot and OBAR: a.emit('s_barrier')
    if NV:
        from gemm64y import w2_pre, w2_early
        w2_pre(a)
        tile_map(a, LM, None)
    a.emit(f's_and_b32 s{S_WM}, s{S_WV}, 1')
    a.emit(f's_lshr_b32 s{S_WN}, s{S_WV}, 1')
    a.emit('v_and_b32 v3, 15, v1')
    a.emit('v_lshrrev_b32 v2, 4, v1')
    a.emit(f's_lshl_b32 s8, s{S_WM}, 13')
    a.emit(f'v_lshl_add_u32 v{VB}, v1, 4, s8')
    wbase(a, 13, 17)
    a.emit(f's_lshl_b32 s9, s{S_WN}, 6')
    a.emit('v_xor_b32 v13, s9, v13')
    a.emit(f'v_add_u32 v{VB+1}, 16384, v13')
    a.emit(f'v_xor_b32 v{VB+2}, 32, v{VB+1}')
    a.emit('v_and_b32 v16, 1, v2')
    a.emit('v_lshrrev_b32 v17, 1, v2')
    a.emit('v_bfe_u32 v13, v1, 2, 2')
    a.emit('v_lshl_add_u32 v13, v16, 3, v13')
    a.emit('v_lshl_add_u32 v13, v17, 5, v13')
    a.emit(f'v_xor_b32 v14, s{S_WN}, v16')
    a.emit('v_lshl_add_u32 v13, v13, 1, v14')
    a.emit('v_and_b32 v14, 3, v1')
    a.emit('v_lshl_add_u32 v13, v13, 2, v14')
    a.emit('v_lshlrev_b32 v13, 3, v13')
    a.emit(f'v_add_u32 v{VB+3}, {16384 + 3 * 8192}, v13')
    i0 = len(a.lines)
    a.emit(f's_lshl_b32 s8, s{S_MT}, 7')
    a.emit(f's_lshl_b32 s9, s{S_WM}, 6')
    a.emit('s_add_u32 s8, s8, s9')
    a.emit(f's_mul_i32 s8, s8, {ldo2}')
    a.emit('v_lshlrev_b32 v14, 8, v17')
    a.emit('v_lshl_add_u32 v14, v3, 4, v14')
    if o2:
        a.emit(f's_lshl3_add_u32 s9, s{S_WM}, s{S_WN}')
        a.emit('s_lshl_b32 s9, s9, 10')
        a.emit(f's_add_u32 s9, s9, {OHB}')
        a.emit('v_lshl_add_u32 v18, v16, 9, v14')
        a.emit('v_add_u32 v18, s9, v18')
        srd(a, SB, 'b2', 0, 2048)
        a.emit(f's_lshr_b32 s9, s{S_NT}, 3')
        a.emit(f's_and_b32 s10, s{S_NT}, 7')
        a.emit('s_lshl1_add_u32 s9, s10, s9')
        a.emit('s_lshl_b32 s9, s9, 7')
        a.emit('v_lshl_add_u32 v19, v2, 3, s9')
    a.emit('v_add_u32 v14, s8, v14')
    a.emit(f's_lshl_b32 s10, s{S_NT}, 11')
    a.emit(f's_lshl_b32 s9, s{S_WN}, 10')
    a.emit('s_add_u32 s9, s9, s10')
    a.emit(f'v_lshl_add_u32 v{VO}, v16, 9, v14')
    a.emit(f'v_add_u32 v{VO}, s9, v{VO}')
    a.emit(f'v_mul_u32_u24 v16, {16*ldo2}, v16')
    a.emit('s_lshr_b32 s9, s9, 1')
    a.emit(f'v_add3_u32 v{VO+1}, v16, v14, s9')
    a.emit(f's_lshl_b32 s9, s{S_WM}, 8')
    a.emit(f's_add_u32 s9, s9, {LST + 64}')
    a.emit('v_lshl_add_u32 v14, v3, 2, s9')
    a.emit(f's_lshl_b32 s9, s{S_WN}, 7')
    a.emit(f's_add_u32 s9, s9, {LCS}')
    a.emit('v_lshl_add_u32 v15, v2, 4, s9')
    a.emit(f's_lshl_b32 s9, s{S_WN}, 6')
    a.emit(f's_add_u32 s9, s9, {LCS}')
    a.emit('v_lshl_add_u32 v16, v2, 4, s9')
    for i in range(0 if ot else 112): a.emit(f'v_mov_b32 v{ACC+i}, 0')
    if not MEGA: a.emit('s_waitcnt lgkmcnt(0)')
    srd(a, SO, 'ws', WS_H, 2048 * 7168)
    if not ot: code_touch(a, 'L_w2_c0', 'L_w2_c1', 192 if SPX else 128)
    mid = []
    if ot: mid = a.lines[i0:]; del a.lines[i0:]
    def reads(s, ks):
        o = []
        if 'noread' in DBG: return o
        for jm in range(4):
            o.append(f'ds_read_b128 v[{fx(s,jm)}:{fx(s,jm)+3}], v{VA} offset:{jm*2048+ks*1024}')
        for jn in range(7):
            for h in range(2):
                r = fw(s, jn) + 2 * h
                o.append(f'ds_read_b64_tr_b16 v[{r}:{r+1}], v{VA+1+(jn&1 if jn < 6 else 2)} offset:{((jn>>1)*8192+h*512 if jn < 6 else h*256)+ks*4096}')
        return o
    def mf(s):
        o = []
        if 'nomfma' in DBG: return ['s_nop 0']
        for jn, jm in mf_order(7, 4):
            if True:
                c = acc(jn, jm)
                o.append(f'v_mfma_f32_16x16x32_bf16 v[{c}:{c+3}], v[{fw(s,jn)}:{fw(s,jn)+3}], v[{fx(s,jm)}:{fx(s,jm)+3}], v[{c}:{c+3}]')
        return o
    zc = lambda x: x[:x.rindex(',')] + ', 0'
    big_loop(a, kind, N, S, STAGE, 4, VB, VA, reads, mf, ot=(lambda s: mf(1) if s else [zc(x) for x in mf(0)]) if ot else None, mid=mid)
    CS = 32; BI = 60; STT = 88; CK = 96; T = 100; D = 108
    for jm in range(4):
        a.emit(f'ds_read2_b32 v[{STT+2*jm}:{STT+2*jm+1}], v14 offset0:{16*jm} offset1:{160+16*jm}')
    for jn in range(7):
        a.emit(f'ds_read_b128 v[{CS+4*jn}:{CS+4*jn+3}], v{15 if jn < 6 else 16} offset:{(jn>>1)*256+(jn&1)*64}')
        a.emit(f'ds_read_b128 v[{BI+4*jn}:{BI+4*jn+3}], v{15 if jn < 6 else 16} offset:{1024+(jn>>1)*256+(jn&1)*64}')
    for jn in range(4 if o2 else 0):
        a.emit(f'buffer_load_dwordx2 v[{OBIA[jn]}:{OBIA[jn]+1}], v19, s[{SB}:{SB+3}], 0 offen offset:{jn*32}')
    c0 = -2.0 * 0.7978845608028654 * 1.4426950408889634
    c1 = c0 * 0.044715
    a.emit(f'v_mov_b32 v{CK}, {f2u(c0):#x}')
    a.emit(f'v_mov_b32 v{CK+1}, {f2u(c1):#x}')
    a.emit(f'v_mov_b32 v{CK+2}, 1.0')
    a.emit('s_waitcnt lgkmcnt(0)')
    for jm in range(4):
        a.emit(f'v_mul_f32 v{STT+2*jm}, v{STT+2*jm}, v{STT+2*jm+1}')
    def tile_math(jn, jm, d):
        c = acc(jn, jm)
        seqs = []
        ST2 = f'v[{STT+2*jm}:{STT+2*jm+1}]'
        for q in range(2):
            x = c + 2 * q; t = T + 2 * q + 4 * (jn & 1)
            X = f'v[{x}:{x+1}]'; TT = f'v[{t}:{t+1}]'
            seqs.append([
              f'v_pk_fma_f32 {TT}, v[{CS+4*jn+2*q}:{CS+4*jn+2*q+1}], {ST2}, v[{BI+4*jn+2*q}:{BI+4*jn+2*q+1}] op_sel:[0,0,0] op_sel_hi:[1,0,1] neg_lo:[0,1,0] neg_hi:[0,1,0]',
              f'v_pk_fma_f32 {X}, {X}, {ST2}, {TT} op_sel:[0,1,0] op_sel_hi:[1,1,1]',
              f'v_pk_mul_f32 {TT}, {X}, {X}',
              f'v_pk_fma_f32 {TT}, {TT}, v[{CK}:{CK+1}], v[{CK}:{CK+1}] op_sel:[0,1,0] op_sel_hi:[1,1,0]',
              f'v_pk_mul_f32 {TT}, {TT}, {X}',
              f'v_exp_f32 v{t}, v{t}\n  v_exp_f32 v{t+1}, v{t+1}',
              f'v_pk_add_f32 {TT}, {TT}, v[{CK+2}:{CK+3}] op_sel_hi:[1,0]',
              f'v_rcp_f32 v{t}, v{t}\n  v_rcp_f32 v{t+1}, v{t+1}',
              f'v_pk_mul_f32 {X}, {X}, {TT}',
              f'v_cvt_pk_bf16_f32 v{d+q}, v{x}, v{x+1}'])
        for ia, ib in zip(*seqs):
            a.emit(ia); a.emit(ib)
    cnt = [0]
    def pair(t0, t1, vo, soff, big=False):
        d = D + 4 * (cnt[0] % 4); cnt[0] += 1
        tile_math(*t0, d); tile_math(*t1, d + 2)
        a.emit(f's_add_u32 s3, s10, {soff}' if big else f's_mov_b32 s3, {soff}')
        a.emit('s_nop 0')
        a.emit(f'v_permlane16_swap_b32 v{d}, v{d+2}')
        a.emit(f'v_permlane16_swap_b32 v{d+1}, v{d+3}')
        a.emit(f'buffer_store_dwordx4 v[{d}:{d+3}], v{vo}, s[{SO}:{SO+3}], s3 offen{stf(kind)}')
        if o2 and t0[0] < 6: a.emit(f'ds_write_b128 v18, v[{d}:{d+3}] offset:{(t0[0] // 2 + 2) % 3 * 16384 + t0[1] * 2048}')
    pr = lambda p, jm: pair((2 * p, jm), (2 * p + 1, jm), VO, jm * 16 * ldo2 + (46 + 2 * p) * 1024 * (p > 0), p > 0)
    od = lambda jm: pair((6, jm), (6, jm + 1), VO + 1, jm * 16 * ldo2 + 32768)
    order = [lambda jm=jm: pr(0, jm) for jm in range(4)] + [lambda: od(0), lambda: od(2)] + [lambda jm=jm, p=p: pr(p, jm) for jm in range(4) for p in (1, 2)]
    EW = int(ENV('EW', '10'))
    for i, f in enumerate(order):
        f()
        if NV and i + 1 == EX: w2_early(a)
        if EARLY and i + 1 == EW:
            a.emit(f's_waitcnt vmcnt({EW - EARLY // 4})')
            a.emit('s_barrier')
    if ENV('ES'): stamp(a, 1)
    compute_end(a, kind)
    a.label(f'L_{kind}_loader')
    L = Loader(a, kind, K, lda2, ldw2, [0, f's{S_HD}', 's_add_u32 s4, s4, 128'], 128, S, STAGE, rot=int(ENV('ROT_W1', '0')), xblk=True, half=2048)
    L.ot = int(ot)
    L.setup()
    a.emit('s_waitcnt lgkmcnt(0)')
    if ot: code_touch(a, 'L_w2_c0', 'L_w2_c1', 192, loader=True)
    srd(a, SX, 'ws', WS_X1, 4 * MB); srd(a, SW, 'w1', 0, 1024 * 7168)
    srd(a, ST, 'ws', WS_ST, 16 * 16384); srd(a, SC, 'ws0', WS_CS, 16 * 16384); srd(a, SB, 'b1', 0, 7168)
    def tail():
        stats_loads(a, 32, False)
        a.emit(f's_lshl_b32 s4, s{S_NT}, 7')
        a.emit(f's_lshl_b32 s5, s{S_WV}, 6')
        a.emit('s_add_u32 s4, s4, s5')
        a.emit(f's_add_u32 s4, s4, {1472 - 256}')
        a.emit(f's_lshl_b32 s5, s{S_NT}, 6')
        a.emit(f's_cmp_eq_u32 s{S_WV}, 4')
        a.emit('s_cselect_b32 s4, s5, s4')
        a.emit('s_lshr_b32 s5, s5, 1')
        a.emit('s_add_u32 s5, s5, 1024')
        a.emit(f's_cmp_eq_u32 s{S_WV}, 7')
        a.emit('s_cselect_b32 s4, s5, s4')
        a.emit('v_add_u32 v3, s4, v1')
        a.emit('v_lshlrev_b32 v2, 2, v3')
        a.emit('v_lshlrev_b32 v3, 1, v3')
        a.emit(f's_mov_b32 s3, {cs[2]}')
        for j in range(16):
            if j < cs[0]:
                a.emit(f'buffer_load_dword v{64+j}, v2, s[{SC}:{SC+3}], s3 offen')
                if j < cs[0] - 1: a.emit(f's_add_u32 s3, s3, {cs[1]}')
            else:
                a.emit(f'v_mov_b32 v{64+j}, 0')
        a.emit(f'buffer_load_ushort v80, v3, s[{SB}:{SB+3}], 0 offen')
        side(a, 'issue')
    ns = side(Asm(), 'issue')
    extra = None
    if VW:
        assert int(ENV('LM_W2', '2')) == 2
        srd(a, SR, 'w2', 0, 3584 * 2048)
        a.emit('s_and_b32 s5, s2, 3')
        a.emit('s_lshl_b32 s5, s5, 2')
        a.emit(f's_and_b32 s6, s{S_CU}, 3')
        a.emit('s_add_u32 s5, s5, s6')
        a.emit('s_and_b32 s6, s2, 4')
        a.emit('s_lshl_b32 s6, s6, 1')
        a.emit(f's_lshr_b32 s7, s{S_CU}, 2')
        a.emit('s_add_u32 s6, s6, s7')
        rot_table(a, S_TB, 5, 6, 'w2')
        a.emit(f's_add_u32 s5, s5, s{S_WV}')
        a.emit('s_and_b32 s5, s5, 3')
        wvoff(a, 16, 5, 6, 2048)
        sched = [int(c) for c in ENV('PSCH', '0111111111111122')]
        assert sum(sched) >= NV1
        def extra(i):
            o = []
            for p in range(sum(sched[:i]), min(NV1, sum(sched[:i + 1]))): o += park(56, 2 * p, 128 + 8 * p, 16, SR)
            return o
        ns += sum(x.startswith('buffer_load') for i in (13, 14, 15) for x in extra(i))
    if XD:
        extra = tail_parks('w2', SR, lambda b: srd(b, SR, 'w2', 0, 3584 * 2048))
        ns += 2 * sum(TSCH['w2'])
    if XD and ENV('PFL', '2') == '3':
        b = Asm(); side(b, 'late'); pl = [l.strip() for l in b.lines]
        pl = [l.replace('v2,', 'v18,').replace(', v2', ', v18').replace('s3', 's93') for l in pl]
        i0 = min(i for i, l in enumerate(pl) if l.startswith('buffer_load'))
        for l in pl[:i0]: a.emit(l)
        st = [int(x) for x in ENV('PFS', '6,10').split(',')]
        extra = lambda i: pl[i0 + 2 * st.index(i):i0 + 2 * st.index(i) + 2] if i in st else []
    def final():
        a.emit(f's_waitcnt vmcnt({ns})')
        if ENV('PFL', '2') == '1': side(a, 'late')
        stats_reduce_store(a, 32, LST)
        for j in range(8): a.emit(f'v_add_f32 v{64+j}, v{64+j}, v{72+j}')
        for j in range(4): a.emit(f'v_add_f32 v{64+j}, v{64+j}, v{68+j}')
        a.emit('v_add_f32 v64, v64, v65')
        a.emit('v_add_f32 v66, v66, v67')
        a.emit('v_add_f32 v64, v64, v66')
        a.emit('v_lshlrev_b32 v80, 16, v80')
        a.emit('v_lshlrev_b32 v2, 2, v0')
        a.emit(f'v_add_u32 v2, {LCS - 1024}, v2')
        a.emit('ds_write_b32 v2, v64')
        a.emit('ds_write_b32 v2, v80 offset:1024')
        a.emit('s_waitcnt lgkmcnt(0)')
    import sides
    if T4:
        stats4_setup(a, False)
        a.emit(f's_lshl_b32 s4, s{S_NT}, 7')
        a.emit(f's_lshl_b32 s5, s{S_WV}, 6')
        a.emit('s_add_u32 s4, s4, s5')
        a.emit(f's_add_u32 s4, s4, {1472 - 256}')
        a.emit(f's_lshl_b32 s5, s{S_NT}, 6')
        a.emit(f's_cmp_eq_u32 s{S_WV}, 4')
        a.emit('s_cselect_b32 s4, s5, s4')
        a.emit('s_lshr_b32 s5, s5, 1')
        a.emit('s_add_u32 s5, s5, 1024')
        a.emit(f's_cmp_eq_u32 s{S_WV}, 7')
        a.emit('s_cselect_b32 s4, s5, s4')
        a.emit('v_and_b32 v3, 15, v1')
        a.emit('v_lshl_add_u32 v3, v3, 2, s4')
        a.emit('v_lshrrev_b32 v2, 4, v1')
        a.emit(f'v_add_lshl_u32 v{VBI}, v3, v2, 1')
        a.emit('v_lshlrev_b32 v3, 2, v3')
        a.emit(f'v_lshl_add_u32 v{VCS}, v2, 14, v3')
        CSI = int(ENV('CSI', '14')); STI = int(ENV('STI', '14'))
        def extra4(i):
            o = []
            if i == CSI: o += quad_loads(64, VCS, SC) + [f'buffer_load_ushort v80, v{VBI}, s[{SB}:{SB+3}], 0 offen']
            if i == STI: o += stats4_loads(32, False)
            return o
        def final4():
            a.emit('s_waitcnt vmcnt(0)')
            stats4_store(a, 32, LST, False)
            quad_sum(a, 64)
            a.emit('v_lshlrev_b32 v80, 16, v80')
            a.emit('s_lshl_b32 s5, s3, 8')
            a.emit(f's_add_u32 s5, s5, {LCS}')
            a.emit('v_permlane16_swap_b32 v64, v65')
            a.emit('v_lshrrev_b32 v2, 4, v1')
            a.emit('v_lshl_add_u32 v2, v3, 2, v2')
            a.emit('v_lshl_add_u32 v2, v2, 2, s5')
            a.emit('v_add_f32 v64, v64, v65')
            a.emit('ds_write2st64_b32 v2, v64, v80 offset0:0 offset1:4')
            a.emit('s_waitcnt lgkmcnt(0)')
        assert ns == 0
        L.run(final=final4, extra=extra4, post=sides.stouch_post(a, kind), dep=lambda pf: dep_wait(a, kind, postf=pf, obar=L.npre - 6 if ot and OBAR else 0, pref=(lambda: a.emit(f's_waitcnt vmcnt({L.npre - 7})')) if ot and not OBAR else None))
    else: L.run(tail_issue=tail, ntail_vm=17 + cs[0] + side(Asm(), 'issue'), final=final, extra=extra, post=sides.stouch_post(a, kind),
          dep=(lambda pf: dep_wait(a, kind, postf=pf)) if MEGA else None)
    if ENV('PFL', '2') == '2': side(a, 'late')
    if not VW: side(a, 'finish')
    loader_end(a, kind)
    a.label(end)
    a.emit('s_endpgm')
    loader_first(a, kind)
    if not MEGA:
        a(KD.format(name=f'{kind}l0_kernel'))
        stub(a, f'{kind}l1_kernel', body, 1, tsidx + 4, False)
        a(KD.format(name=f'{kind}l1_kernel'))
    a.label(f'L_{kind}_c1')
    return LCS + 2048
```

```python
from common import *
from gemmw1 import *

def res_addr(a, swv, sd, v):
    assert int(ENV('LM_WO', '2')) == 2 and int(ENV('LM_W2', '2')) == 2
    srd(a, sd, 'A_x', 0, 4 * MB)
    a.emit('s_and_b32 s3, s2, 3')
    a.emit(f's_and_b32 s4, s{S_CU}, 3')
    a.emit('s_lshl2_add_u32 s3, s3, s4')
    a.emit(f's_lshl2_add_u32 s3, s3, s{swv}')
    a.emit('s_lshl_b32 s3, s3, 16')
    a.emit('s_bfe_u32 s4, s2, 0x10002' if SPX else 's_and_b32 s4, s2, 4')
    a.emit(f's_lshr_b32 s5, s{S_CU}, 2')
    a.emit('s_lshl1_add_u32 s4, s5, s4' if SPX else 's_lshl1_add_u32 s4, s4, s5')
    a.emit('s_lshl_b32 s4, s4, 7')
    a.emit('s_add_u32 s3, s3, s4')
    a.emit('s_add_u32 s4, s3, 32768')
    a.emit(f'v_and_b32 v{v}, 15, v1')
    a.emit(f'v_lshlrev_b32 v{v+1}, 1, v1')
    a.emit(f'v_and_b32 v{v+1}, 32, v{v+1}')
    a.emit(f'v_lshl_add_u32 v{v}, v{v}, 11, v{v+1}')
    a.emit(f'v_lshrrev_b32 v{v+1}, 1, v1')
    a.emit(f'v_and_b32 v{v+1}, 16, v{v+1}')
    a.emit(f'v_add_u32 v{v}, v{v}, v{v+1}')

def dbg_off(a, v):
    a.emit(f's_lshl_b32 s3, s{S_MT}, 2')
    a.emit('s_sub_u32 s3, s3, 4')
    a.emit(f'v_and_b32 v{v}, 7, v1')
    a.emit(f'v_add_u32 v{v}, s3, v{v}')
    a.emit(f'v_max_i32 v{v}, 0, v{v}')
    a.emit(f'v_lshlrev_b32 v{v}, 2, v{v}')

def res_loads(vd, v, sd):
    return [f'buffer_load_dwordx4 v[{vd+4*i}:{vd+3+4*i}], v{v}, s[{sd}:{sd+3}], s{3+(i>>1)} offen offset:{64*(i&1)}' for i in range(4)]

def gen_qkv(a, tsidx, side):
    kind = 'attn'
    K = 1024; lda2 = 2048; ldw2 = 6144
    S = 3; LM = int(ENV('LM_QKV', '3'))
    XH = 16384 + 6 * 4096
    STAGE = XH + 2048
    LST = S * STAGE
    EX = 1024
    N = 16
    body = f'L_{kind}_body'; end = f'L_{kind}_end'
    VB, VA = 4, 10
    VXW, VPE, VPO, VCE, VCO, VVE, VVO, VS1, VS4, VKA, VKB, MAP, MAC, MBP, MBC, VO = range(16, 32)
    M_ODD, M_UPA, M_UPB, M_FA, M_FB = 48, 50, 52, 54, 14
    F = [32, 76]; ACC = 128; HACC = 224; ONES = 236
    acc = lambda jn, jm: ACC + (jn * 4 + jm) * 4
    fx = lambda s, jm: F[s] + jm * 4
    fw = lambda s, jn: F[s] + 20 + jn * 4
    a.label(f'L_{kind}_c0')
    stub(a, f'{kind}l0_kernel', body, 0, tsidx, True)
    a.label(body)
    ot = kind in OT
    HX = LST + 1280
    tile_map(a, LM, end)
    if ot and LM != 2:
        a.emit(f's_cmp_eq_u32 s{S_LAYER}, 0')
        a.emit(f's_cbranch_scc1 L_{kind}_map')
        tile_map(a, 2, None)
        a.label(f'L_{kind}_map')
    a.emit(f's_cmp_ge_u32 s{S_WV}, 4')
    a.emit(f's_cbranch_scc1 L_{kind}_loader')
    if ENV('CTE', '1') == '1': code_touch(a, 'L_attn_c0', 'L_w2_c1', int(ENV('CTN', '320')))
    a.emit(f's_and_b32 s{S_WM}, s{S_WV}, 1')
    a.emit(f's_lshr_b32 s{S_WN}, s{S_WV}, 1')
    a.emit('v_and_b32 v3, 31, v1')
    a.emit('v_lshlrev_b32 v3, 2, v3')
    a.emit(f'v_add_u32 v3, {XH}, v3')
    for i in range(4): a.emit(f'v_mov_b32 v{ONES+i}, 0x3f803f80')
    a.emit(f'ds_write_b32 v3, v{ONES}')
    a.emit(f'ds_write_b32 v3, v{ONES} offset:{STAGE}')
    a.emit(f'v_add_u32 v3, {2*STAGE}, v3')
    a.emit(f'ds_write_b32 v3, v{ONES}')
    if ot: a.emit(f'ds_write_b32 v3, v{ONES} offset:{HX - XH - 2 * STAGE}')
    a.emit('v_and_b32 v3, 15, v1')
    a.emit('v_lshrrev_b32 v2, 4, v1')
    a.emit('v_lshrrev_b32 v33, 1, v3')
    a.emit(f's_lshl_b32 s8, s{S_WM}, 13')
    for ks in range(2):
        if ks: a.emit(f'v_add_u32 v{VB+ks}, 4, v2')
        a.emit(f'v_xor_b32 v{VB+ks}, v{VB+ks if ks else 2}, v33')
        a.emit(f'v_lshlrev_b32 v{VB+ks}, 4, v{VB+ks}')
        a.emit(f'v_lshl_add_u32 v{VB+ks}, v3, 7, v{VB+ks}')
        a.emit(f'v_add_u32 v{VB+4+ks}, {XH}, v{VB+ks}')
        a.emit(f'v_add_u32 v{VB+ks}, s8, v{VB+ks}')
    wbase(a, 34, 33)
    a.emit(f's_lshl_b32 s8, s{S_WV}, 5')
    a.emit('v_xor_b32 v34, s8, v34')
    a.emit(f'v_add_u32 v{VB+2}, 16384, v34')
    a.emit(f'v_xor_b32 v{VB+3}, 32, v{VB+2}')
    i0 = len(a.lines)
    a.emit('v_and_b32 v35, 1, v2')
    a.emit(f'v_xor_b32 v35, s{S_WM}, v35')
    a.emit(f's_lshl_b32 s8, s{S_MT}, 7')
    a.emit(f's_lshl_b32 s9, s{S_WM}, 6')
    a.emit('s_add_u32 s8, s8, s9')
    a.emit(f's_add_u32 s10, s8, s{S_NT}')
    a.emit('s_lshl_b32 s10, s10, 11')
    a.emit(f's_lshl_b32 s11, s{S_WN}, 10')
    a.emit('s_add_u32 s10, s10, s11')
    a.emit('v_lshl_add_u32 v33, v3, 4, s10')
    a.emit('v_lshl_add_u32 v33, v35, 9, v33')
    a.emit('v_lshrrev_b32 v34, 1, v2')
    a.emit(f'v_lshl_add_u32 v{VO}, v34, 8, v33')
    a.emit(f's_mul_i32 s10, s{S_WN}, {14336 if XD else 24576}')
    a.emit(f's_add_u32 s10, s10, {EX}')
    a.emit(f's_lshl_b32 s11, s{S_WM}, 10')
    a.emit('s_add_u32 s4, s10, s11')
    a.emit('s_sub_u32 s5, s10, s11')
    a.emit(f's_mul_i32 s6, s{S_WM}, 6144')
    a.emit(f'v_lshl_add_u32 v{VXW}, v1, 4, s4')
    a.emit(f'v_add_u32 v{VPE}, s6, v{VXW}')
    a.emit(f'v_lshl_add_u32 v{VPO}, v1, 4, s5')
    a.emit(f'v_add_u32 v{VPO}, s6, v{VPO}')
    a.emit(f'v_lshl_add_u32 v{VCE}, v2, 8, s4')
    a.emit(f'v_lshl_add_u32 v{VCO}, v2, 8, s5')
    a.emit(f'v_lshl_add_u32 v{VVE}, v3, 4, s4')
    a.emit(f'v_lshl_add_u32 v{VVO}, v3, 4, s5')
    a.emit(f's_lshl_b32 s10, s{S_WM}, 8')
    a.emit(f's_add_u32 s10, s10, {LST}')
    a.emit(f'v_lshl_add_u32 v{VS1}, v3, 2, s10')
    a.emit(f'v_lshl_add_u32 v{VS4}, v2, 4, s10')
    a.emit('v_and_b32 v33, 1, v3')
    a.emit(f'v_cmp_eq_u32 s[{M_ODD}:{M_ODD+1}], 1, v33')
    a.emit('v_lshl_add_u32 v34, v2, 2, v33')
    a.emit('v_add_u32 v35, 2, v34')
    a.emit(f'v_cmp_gt_u32 s[{M_UPA}:{M_UPA+1}], v34, v3')
    a.emit(f'v_cmp_gt_u32 s[{M_UPB}:{M_UPB+1}], v35, v3')
    a.emit('v_mov_b32 v36, 0xffff')
    a.emit('v_mov_b32 v37, 0xffff0000')
    a.emit(f'v_cndmask_b32 v36, v36, v37, s[{M_ODD}:{M_ODD+1}]')
    a.emit(f's_add_u32 s10, s10, {640 + 64}')
    a.emit('v_lshl_add_u32 v34, v34, 2, s10')
    a.emit('v_lshl_add_u32 v35, v35, 2, s10')
    a.emit('v_subrev_u32 v38, 64, v34')
    a.emit('v_subrev_u32 v39, 64, v35')
    a.emit(f'v_cndmask_b32 v{VKA}, v34, v38, s[{M_UPA}:{M_UPA+1}]')
    a.emit(f'v_cndmask_b32 v{VKB}, v35, v39, s[{M_UPB}:{M_UPB+1}]')
    a.emit(f'v_cndmask_b32 v{MAP}, 0, v36, s[{M_UPA}:{M_UPA+1}]')
    a.emit(f'v_cndmask_b32 v{MBP}, 0, v36, s[{M_UPB}:{M_UPB+1}]')
    a.emit(f'v_xor_b32 v{MAC}, v{MAP}, v36')
    a.emit(f'v_xor_b32 v{MBC}, v{MBP}, v36')
    a.emit('s_cmp_eq_u32 s8, 0')
    a.emit(f's_cselect_b64 s[{M_FA}:{M_FA+1}], s[{M_UPA}:{M_UPA+1}], 0')
    a.emit(f's_cselect_b64 s[{M_FB}:{M_FB+1}], s[{M_UPB}:{M_UPB+1}], 0')
    if ot:
        a.emit(f's_cmp_lg_u32 s{S_LAYER}, 0')
        a.emit(f's_cbranch_scc1 L_{kind}_nozero')
    for i in list(range(122 if DS else 120, 236)) + ([] if XD else list(range(240, 256))): a.emit(f'v_mov_b32 v{i}, 0')
    if DS:
        a.emit('s_waitcnt lgkmcnt(0)')
        a.emit(f's_lshl_b32 s3, s{S_WN}, 5')
        a.emit('s_add_u32 s3, s3, s8')
        a.emit(f's_lshl_b32 s4, s{S_NT}, 14')
        a.emit('s_lshl3_add_u32 s3, s3, s4')
        a.emit('v_lshrrev_b32 v121, 1, v2')
        a.emit('v_lshl_add_u32 v121, v121, 4, v3')
        a.emit('v_and_b32 v120, 1, v2')
        a.emit('v_lshl_add_u32 v121, v121, 1, v120')
        a.emit('v_lshl_add_u32 v120, v121, 2, s3')
        srd(a, ST, 'ws0', WS_ST0, 16 * 16384)
        srd(a, SP, 'ws0', WS_FL, FLS)
        a.emit('s_lshl_b32 s3, s2, 11')
        if D2:
            a.emit(f's_cmp_lg_u32 s{S_WV}, 0')
            a.emit(f's_cbranch_scc1 L_{kind}_noclr')
            a.emit(f's_lshl_b32 s5, s{S_MT}, 10')
            a.emit('s_add_u32 s4, s4, s5')
            a.emit('v_lshlrev_b32 v121, 4, v1')
            for i in range(4): a.emit(f'v_mov_b32 v{40+i}, -1')
            a.emit(f'buffer_store_dwordx4 v[40:43], v121, s[{ST}:{ST+3}], s4 offen sc1')
            for i in range(2): a.emit(f'buffer_store_dwordx4 v[128:131], v121, s[{SP}:{SP+3}], s3 offen offset:{1024*i} sc1')
            a.emit('v_mov_b32 v126, 1')
            a.label(f'L_{kind}_noclr')
        else:
            a.emit('v_lshlrev_b32 v121, 3, v0')
            a.emit(f'buffer_store_dwordx2 v[126:127], v121, s[{SP}:{SP+3}], s3 offen sc1')
            dbg_off(a, 121)
        a.emit(f's_and_b32 s{SC+1}, s{SC+1}, 0xffff')
        a.emit(f's_mov_b32 s{SC+2}, 256')
        a.emit(f's_mov_b32 s{SC+3}, 0x00020000')
        a.emit('s_mov_b32 s7, 0x3f803f80')
    if ot: a.label(f'L_{kind}_nozero')
    a.emit('s_waitcnt lgkmcnt(0)')
    srd(a, SO, 'ws', WS_O, 4 * MB)
    clear_flags(a, 0)
    if ENV('CTE', '1') == '0': code_touch(a, 'L_attn_c0', 'L_w2_c1', int(ENV('CTN', '320')))
    import pads
    CLQ = ENV('DX', '2') == '1' and ENV('CLP', 'e') == 'q'
    if CLQ:
        srd(a, ST, 'ws', WS_XP, 4 * MB)
        a.emit(f's_or_b32 s{ST+1}, s{ST+1}, 0x100000')
        a.emit(f's_mov_b32 s{ST+3}, 0x00800000')
        a.emit('s_and_b32 s3, s2, 3')
        a.emit(f's_and_b32 s4, s{S_CU}, 3')
        a.emit('s_lshl2_add_u32 s3, s3, s4')
        a.emit('s_bfe_u32 s4, s2, 0x10002')
        a.emit(f's_lshr_b32 s5, s{S_CU}, 2')
        a.emit('s_lshl1_add_u32 s4, s5, s4')
        a.emit('s_lshl4_add_u32 s3, s3, s4')
        a.emit(f's_lshl2_add_u32 s3, s3, s{S_WV}')
        a.emit(f's_lshl_b32 s{S_T}, s3, 12')
        for i in range(4): a.emit(f'v_mov_b32 v{116+i}, -1')
    def warm():
        a.emit(f's_cmp_lg_u32 s{S_LAYER}, 0')
        a.emit(f's_cbranch_scc1 L_{kind}_nowarm')
        a.emit('s_lshl_b32 s3, s2, 2')
        a.emit(f's_add_u32 s3, s3, s{S_WV}')
        srd(a, SX, 'xs', 0, 4 * MB); srd(a, SW, 'wqkv', 0, 6 * MB)
        a.emit('v_min_u32 v126, 31, v1')
        a.emit('v_min_u32 v127, 47, v1')
        a.emit('v_lshlrev_b32 v126, 7, v126')
        a.emit('v_lshlrev_b32 v127, 7, v127')
        a.emit('s_lshl_b32 s4, s3, 12')
        a.emit(f's_mul_i32 s5, s3, {48 * 128}')
        a.emit(f'buffer_load_dword v2, v126, s[{SX}:{SX+3}], s4 offen')
        a.emit(f'buffer_load_dword v3, v127, s[{SW}:{SW+3}], s5 offen')
        a.emit('v_mov_b32 v126, 0')
        a.emit('v_mov_b32 v127, 0')
        a.label(f'L_{kind}_nowarm')
    WARM = ENV('WARM', '0')
    if WARM == '1': warm()
    mid = []
    if ot: mid = a.lines[i0:]; del a.lines[i0:]
    def reads(s, ks, hl=True):
        o = []
        if 'noread' in DBG: return o
        for jm in range(4):
            o.append(f'ds_read_b128 v[{fx(s,jm)}:{fx(s,jm)+3}], v{VA+ks} offset:{jm*2048}')
        if hl: o.append(f'ds_read_b128 v[{fx(s,4)}:{fx(s,4)+3}], v{VA+4+ks}')
        for jn in range(6):
            for h in range(2):
                r = fw(s, jn) + 2 * h
                o.append(f'ds_read_b64_tr_b16 v[{r}:{r+1}], v{VA+2+(jn&1)} offset:{(jn>>1)*8192+ks*4096+h*512}')
        return o
    def mfma(c, x, y, cin=None):
        return f'v_mfma_f32_16x16x32_bf16 v[{c}:{c+3}], v[{x}:{x+3}], v[{y}:{y+3}], ' + (f'v[{c}:{c+3}]' if cin is None else cin)
    def mf(s):
        o = []
        if 'nomfma' in DBG: return ['s_nop 0']
        for jn, jm in mf_order(6, 5, lambda jn, jm: jm == 4 and jn & 1):
            if True:
                c = acc(jn, jm) if jm < 4 else HACC + (jn >> 1) * 4
                o.append(mfma(c, fw(s, jn), fx(s, jm)) if jn < 4 else mfma(c, fx(s, jm), fw(s, jn)))
        return o
    SA = [(240, 244), (248, 252), (120, 124)]
    def mfv(hh):
        def f(s):
            o = mf(s)
            ex = []
            for i, jm in enumerate([2 * hh, 2 * hh + 1] + ([4] if hh == 0 else [])):
                ex.append(mfma(SA[i][0], ONES, fx(s, jm)))
                ex.append(mfma(SA[i][1], fx(s, jm), fx(s, jm)))
            return o if 'nostat' in DBG else ex + o
        return f
    def select():
        if CLQ:
            for i in range(4): a.emit(f'buffer_store_dwordx4 v[116:119], off, s[{ST}:{ST+3}], s{S_T} offset:{1024*i} sc1')
        if WARM == '2': warm(); a.emit('s_nop 1')
        if not ot:
            a.emit(f's_cmp_lg_u32 s{S_LAYER}, 0')
            a.emit(f's_cbranch_scc1 L_{kind}_loop')
        if XD:
            for i in range(240, 256): a.emit(f'v_mov_b32 v{i}, 0')
        a.emit(f's_cmp_lg_u32 s{S_WN}, 0')
        a.emit(f's_cbranch_scc1 L_{kind}_loopb')
        clear_flags(a, 1, 4 if CLQ else 0)
    def post():
        a.emit('v_and_b32 v32, 3, v1')
        a.emit('v_cmp_eq_u32 s[4:5], 1, v32')
        a.emit('v_cmp_eq_u32 s[6:7], 2, v32')
        a.emit('v_cmp_eq_u32 s[8:9], 3, v32')
        a.emit('v_bfe_u32 v33, v1, 2, 2')
        a.emit('v_lshrrev_b32 v34, 4, v1')
        a.emit('v_cmp_eq_u32 s[10:11], v33, v34')
        a.emit(f's_lshl_b32 s3, s{S_WN}, 7')
        a.emit(f'v_add_u32 v35, s3, v{VS1}')
        a.emit('v_and_b32 v36, 15, v1')
        a.emit(f's_cmp_eq_u32 s{S_WV}, 0')
        a.emit('s_cselect_b32 s3, 0, 576')
        a.emit(f's_add_u32 s3, s3, {LST}')
        a.emit('v_lshl_add_u32 v36, v36, 2, s3')
        for (sm, sq) in SA:
            a.emit(f'v_cndmask_b32 v{sm+1}, v{sq}, v{sq+1}, s[4:5]')
        for (sm, sq) in SA:
            a.emit(f'v_cndmask_b32 v{sm+1}, v{sm+1}, v{sq+2}, s[6:7]')
        for (sm, sq) in SA:
            a.emit(f'v_cndmask_b32 v{sm+1}, v{sm+1}, v{sq+3}, s[8:9]')
        for (sm, sq) in SA: stats_finish(a, sm)
        a.emit('s_mov_b64 exec, s[10:11]')
        a.emit(f'ds_write2_b32 v35, v{SA[0][0]}, v{SA[0][0]+1} offset0:16 offset1:176')
        a.emit(f'ds_write2_b32 v35, v{SA[1][0]}, v{SA[1][0]+1} offset0:32 offset1:192')
        a.emit(f'ds_write2_b32 v36, v{SA[2][0]}, v{SA[2][0]+1} offset0:0 offset1:160')
        a.emit('s_mov_b64 exec, -1')
        if XD:
            res_addr(a, S_WV, SX, 32)
        a.emit('s_waitcnt lgkmcnt(0)')
        if XD:
            for i in range(4):
                a.emit(f'buffer_load_dwordx4 v[{240+4*i}:{243+4*i}], v32, s[{SX}:{SX+3}], s{3+(i>>1)} offen offset:{64*(i&1)}')
        a.emit('s_barrier')
    own = lambda s: [mfma(acc(jn, jm), *((fw(s, jn), fx(s, jm)) if jn < 4 else (fx(s, jm), fw(s, jn))), None if s else '0') for jn, jm in mf_order(6, 4)]
    hw = lambda ks, c: fw(1, 2 * c) if ks else fx(1, c)
    hal = ([f'v_mov_b32 v{fx(1,c)+i}, v{fw(0,2*c)+i}' for c in range(3) for i in range(4)],
           [f'ds_read_b128 v[{fx(1,3+ks)}:{fx(1,3+ks)+3}], v{VA+4+ks} offset:{HX - XH - STAGE}' for ks in range(2)],
           [mfma(HACC + 4 * c, *((hw(ks, c), fx(1, 3 + ks)) if c < 2 else (fx(1, 3 + ks), hw(ks, c))), None if ks else '0') for ks in range(2) for c in range(3)])
    hooks = None
    if DS:
        HK = [int(x) for x in ENV('HK', '-1,-2,-4,-5,11,13').split(',')]
        def dots(s):
            o = [f's_cmp_lg_u32 s{S_WN}, 0', f's_cbranch_scc1 L_{kind}_dot{s}']
            for hh in range(2):
                for j in range(8):
                    r = fx(s, 2 * hh) + (j >> 1) + 4 * (j & 1)
                    o += [f'v_dot2_f32_bf16 v{122+(j&1)}, v{r}, s7, v{122+(j&1)}', f'v_dot2_f32_bf16 v{124+(j&1)}, v{r}, v{r}, v{124+(j&1)}']
                o += [f'L_{kind}_dote{s}:'] if hh else [f's_branch L_{kind}_dote{s}', f'L_{kind}_dot{s}:']
            return o
        h1 = dots(1) + ['s_nop 2', 'v_permlane32_swap_b32 v122, v123', 'v_permlane32_swap_b32 v124, v125', 'v_add_f32 v122, v122, v123', 'v_add_f32 v124, v124, v125',
               'v_mov_b32 v126, 1', 's_nop 0', 'v_permlane16_swap_b32 v122, v124', 'v_add_f32 v122, v122, v124', f'buffer_store_dword v122, v120, s[{ST}:{ST+3}], 0 offen sc1']
        w0 = [f's_cmp_lg_u32 s{S_WV}, 0', f's_cbranch_scc1 L_{kind}_loop']
        pl = f'buffer_load_dword v127, v121, s[{SC}:{SC+3}], 0 offen sc1'
        b = Asm(); res_addr(b, S_WV, SX, 122); rs = [l.strip() for l in b.lines] + res_loads(240, 122, SX)
        hooks = list(zip(HK + [int(ENV('HKR', '14'))], [dots(0), h1, ['s_waitcnt vmcnt(0)'],
            w0 + [f's_lshl4_add_u32 s3, s{S_MT}, s{S_NT}', 's_mov_b64 exec, 1', f'buffer_store_byte v126, off, s[{SC}:{SC+3}], s3 sc1', 's_mov_b64 exec, -1'], w0 + [pl],
            w0 + ['s_mov_b32 s5, 0x100000', 'L_attn_chkl:', 's_waitcnt vmcnt(0)', 'v_cmp_ne_u32 vcc, 0x01010101, v127', f's_cbranch_vccz L_{kind}_loop',
                  pl, 's_sub_u32 s5, s5, 1', 's_cbranch_scc0 L_attn_chkl'], rs]))
        assert HK[:2] == [-1, -2]
        if D2: hooks = [(-1, dots(0) + pads.chain('h0') + w0 + hooks[2][1] + hooks[3][1][2:]), (-2, [x.replace('v_mov_b32 v126, 1', 's_nop 0') for x in h1] + pads.chain('h1')), hooks[-1]]
        if ENV('XSL'):
            xs = [int(x) for x in ENV('XSL').split(',')]
            hooks[1] = (hooks[1][0], hooks[1][1] + [f's_sleep {xs[0]}'])
            hooks[2] = (hooks[2][0], hooks[2][1] + [f's_sleep {xs[1]}'])
    assert ot or not DS
    big_loop(a, kind, N, S, STAGE, 6, VB, VA, reads, mf, variants=None if DS else {'a': mfv(0), 'b': mfv(1)}, select=select, post=post, mid=mid, hooks=hooks,
             ot=own if ot else None, halo=hal if ot else None)
    PR = 32
    CS = 48
    CV = 64
    MS = 66
    RK = 76
    M4 = 84
    R4 = 104
    VV = [4 if XD else 240, 224]
    for b in range(5):
        a.emit(f'ds_read2_b32 v[{MS+2*b}:{MS+2*b+1}], v{VS1} offset0:{16*b} offset1:{160+16*b}')
    for p in range(2):
        a.emit(f'ds_read2_b32 v[{RK+2*p}:{RK+2*p+1}], v{VKA} offset0:{32*p} offset1:{32*p+16}')
        a.emit(f'ds_read2_b32 v[{RK+4+2*p}:{RK+5+2*p}], v{VKB} offset0:{32*p} offset1:{32*p+16}')
    for c in range(3):
        a.emit(f'ds_write_b128 v{VXW}, v[{HACC+4*c}:{HACC+4*c+3}] offset:{2048*c}')
    a.emit(f's_cmp_eq_u32 s{S_WM}, 1')
    a.emit(f's_cbranch_scc1 L_{kind}_nop3')
    for t in range(2, 6):
        a.emit(f'ds_write_b128 v{VXW}, v[{acc(t,3)}:{acc(t,3)+3}] offset:{6144+1024*t}')
    a.label(f'L_{kind}_nop3')
    for b in range(5):
        a.emit(f'ds_read_b128 v[{M4+4*b}:{M4+4*b+3}], v{VS4} offset:{64*b}')
        a.emit(f'ds_read_b128 v[{R4+4*b}:{R4+4*b+3}], v{VS4} offset:{640+64*b}')
    a.emit('s_waitcnt lgkmcnt(10)')
    a.emit('s_barrier')
    for t in range(4):
        a.emit(f'ds_read_b128 v[{CS+4*t}:{CS+4*t+3}], v{VCO if t&1 else VCE} offset:{1024*t}')
    for t in range(2):
        a.emit(f'ds_read_b32 v{CV+t}, v{VVO if t else VVE} offset:{4096+1024*t}')
    for t in range(4):
        a.emit(f'ds_read_b128 v[{PR+4*t}:{PR+4*t+3}], v{VPO if t&1 else VPE} offset:{2048+1024*t}')
    sc = 32 ** -0.5 * 1.4426950408889634
    for b in range(4):
        a.emit(f'v_mul_f32 v{MS+2*b+3}, {f2u(sc):#x}, v{MS+2*b+3}')
    for b in range(4):
        a.emit(f'v_mul_f32 v{RK+b}, v{RK+b}, v{MS+2*b+3}')
        a.emit(f'v_mul_f32 v{RK+4+b}, v{RK+4+b}, v{MS+2*b+3}')
    a.emit('s_waitcnt lgkmcnt(6)')
    def qk(x, y, cs, b, d):
        m = f'v[{MS+2*b}:{MS+2*b+1}]'
        for (z, c) in ((x, cs), (y, cs + 4)):
            for h in range(2):
                a.emit(f'v_pk_fma_f32 v[{z+2*h}:{z+2*h+1}], v[{c+2*h}:{c+2*h+1}], {m}, v[{z+2*h}:{z+2*h+1}] op_sel:[0,0,0] op_sel_hi:[1,0,1] neg_lo:[0,1,0] neg_hi:[0,1,0]')
        a.emit(f'v_cvt_pk_bf16_f32 v{d}, v{x}, v{x+1}')
        a.emit(f'v_cvt_pk_bf16_f32 v{d+1}, v{x+2}, v{x+3}')
        a.emit(f'v_cvt_pk_bf16_f32 v{d+2}, v{y}, v{y+1}')
        a.emit(f'v_cvt_pk_bf16_f32 v{d+3}, v{y+2}, v{y+3}')
    Q = lambda b: acc(0, b); Kf = lambda b: acc(2, b) if b >= 0 else PR
    Sc = lambda b: acc(1, b); Sp = lambda b: acc(3, b)
    for b in range(4):
        qk(acc(0, b), acc(1, b), CS, b + 1, Q(b))
        qk(acc(2, b), acc(3, b), CS + 8, b + 1, Kf(b))
        if b == 3:
            a.emit('s_waitcnt lgkmcnt(0)')
            qk(PR, PR + 4, CS + 8, 0, PR)
        if b >= 1:
            a.emit(mfma(Sc(b - 1), Kf(b - 1), Q(b - 1), '0'))
            if b >= 2: a.emit(mfma(Sp(b - 1), Kf(b - 2), Q(b - 1), '0'))
    a.emit(mfma(Sc(3), Kf(3), Q(3), '0'))
    a.emit(mfma(Sp(3), Kf(2), Q(3), '0'))
    a.emit(mfma(Sp(0), Kf(-1), Q(0), '0'))
    def vconv(x, t, b):
        cv = f'v[{CV}:{CV+1}]'
        for h in range(2):
            a.emit(f'v_pk_fma_f32 v[{x+2*h}:{x+2*h+1}], v[{M4+4*b+2*h}:{M4+4*b+2*h+1}], {cv}, v[{x+2*h}:{x+2*h+1}] op_sel:[0,{t},0] op_sel_hi:[1,{t},1] neg_lo:[1,0,0] neg_hi:[1,0,0]')
        for h in range(2):
            a.emit(f'v_pk_mul_f32 v[{x+2*h}:{x+2*h+1}], v[{x+2*h}:{x+2*h+1}], v[{R4+4*b+2*h}:{R4+4*b+2*h+1}]')
        for h in range(2):
            a.emit(f'v_cvt_pk_bf16_f32 v{VV[t]+2*b+h}, v{x+2*h}, v{x+2*h+1}')
    for t in range(2):
        vconv(PR + 8 + 4 * t, t, 0)
        for b in range(4): vconv(acc(4 + t, b), t, b + 1)
    T = lambda b: 32 + 4 * b
    odd = f's[{M_ODD}:{M_ODD+1}]'
    for b in (1, 2, 3, 0):
        a.emit(f'v_cndmask_b32 v{Sc(b)}, v{Sc(b)}, v{Sc(b)+1}, {odd}')
        a.emit(f'v_cndmask_b32 v{Sp(b)}, v{Sp(b)}, v{Sp(b)+1}, {odd}')
        a.emit(f'v_cndmask_b32 v{Sc(b)+2}, v{Sc(b)+2}, v{Sc(b)+3}, {odd}')
        a.emit(f'v_cndmask_b32 v{Sp(b)+2}, v{Sp(b)+2}, v{Sp(b)+3}, {odd}')
        a.emit(f'v_cndmask_b32 v{T(b)}, v{Sc(b)}, v{Sp(b)}, s[{M_UPA}:{M_UPA+1}]')
        a.emit(f'v_cndmask_b32 v{T(b)+1}, v{Sc(b)+2}, v{Sp(b)+2}, s[{M_UPB}:{M_UPB+1}]')
        a.emit(f'v_mul_f32 v{T(b)}, v{T(b)}, v{RK+b}')
        a.emit(f'v_mul_f32 v{T(b)+1}, v{T(b)+1}, v{RK+4+b}')
    a.emit(f'v_mov_b32 v48, {f2u(-1e9 * 1.4426950408889634):#x}')
    a.emit(f'v_cndmask_b32 v{T(0)}, v{T(0)}, v48, s[{M_FA}:{M_FA+1}]')
    a.emit(f'v_cndmask_b32 v{T(0)+1}, v{T(0)+1}, v48, s[{M_FB}:{M_FB+1}]')
    for b in range(4): a.emit(f'v_max_f32 v{T(b)+2}, v{T(b)}, v{T(b)+1}')
    for op in ('32', '16'):
        for b in range(4): a.emit(f'v_mov_b32 v{T(b)+3}, v{T(b)+2}')
        for b in range(4): a.emit(f'v_permlane{op}_swap_b32 v{T(b)+2}, v{T(b)+3}')
        for b in range(4): a.emit(f'v_max_f32 v{T(b)+2}, v{T(b)+2}, v{T(b)+3}')
    for b in range(4):
        a.emit(f'v_sub_f32 v{T(b)}, v{T(b)}, v{T(b)+2}')
        a.emit(f'v_sub_f32 v{T(b)+1}, v{T(b)+1}, v{T(b)+2}')
    for b in range(4):
        a.emit(f'v_exp_f32 v{T(b)}, v{T(b)}')
        a.emit(f'v_exp_f32 v{T(b)+1}, v{T(b)+1}')
    P = lambda b: acc(0, b)
    for b in range(4):
        a.emit(f'v_cvt_pk_bf16_f32 v{T(b)}, v{T(b)}, v{T(b)}')
        a.emit(f'v_cvt_pk_bf16_f32 v{T(b)+1}, v{T(b)+1}, v{T(b)+1}')
        a.emit(f'v_and_b32 v{P(b)}, v{T(b)}, v{MAP}')
        a.emit(f'v_and_b32 v{P(b)+1}, v{T(b)+1}, v{MBP}')
        a.emit(f'v_and_b32 v{P(b)+2}, v{T(b)}, v{MAC}')
        a.emit(f'v_and_b32 v{P(b)+3}, v{T(b)+1}, v{MBC}')
        if b >= 1:
            q = b - 1
            a.emit(mfma(acc(1, q), ONES, P(q), '0'))
            a.emit(mfma(acc(4, q), VV[0] + 2 * q, P(q), '0'))
            a.emit(mfma(acc(5, q), VV[1] + 2 * q, P(q), '0'))
    q = 3
    a.emit(mfma(acc(1, q), ONES, P(q), '0'))
    a.emit(mfma(acc(4, q), VV[0] + 2 * q, P(q), '0'))
    a.emit(mfma(acc(5, q), VV[1] + 2 * q, P(q), '0'))
    if ENV('ES'): stamp(a, 1)
    for b in range(4):
        r = acc(1, b); d = 48 + 4 * b
        a.emit(f'v_rcp_f32 v{r}, v{r}')
        a.emit(f's_mov_b32 s3, {b * 16 * 2048}')
        for t in range(2):
            x = acc(4 + t, b)
            for h in range(2):
                a.emit(f'v_pk_mul_f32 v[{x+2*h}:{x+2*h+1}], v[{x+2*h}:{x+2*h+1}], v[{r}:{r+1}] op_sel_hi:[1,0]')
        for t in range(2):
            x = acc(4 + t, b)
            for h in range(2):
                a.emit(f'v_cvt_pk_bf16_f32 v{d+2*t+h}, v{x+2*h}, v{x+2*h+1}')
        a.emit('s_nop 1')
        a.emit(f'v_permlane16_swap_b32 v{d}, v{d+2}')
        a.emit(f'v_permlane16_swap_b32 v{d+1}, v{d+3}')
        a.emit(f'buffer_store_dwordx4 v[{d}:{d+3}], v{VO}, s[{SO}:{SO+3}], s3 offen{stf(kind)}')
    compute_end(a, kind)
    a.label(f'L_{kind}_loader')
    L = Loader(a, kind, K, lda2, ldw2, [0, 2048, 4096], 128, S, STAGE, halo=XH, rot=int(ENV('ROT_QKV', '0')))
    L.skip = DS
    L.setup()
    a.emit('s_waitcnt lgkmcnt(0)')
    srd_xs(a, SX); srd(a, SW, 'wqkv', 0, 1024 * 6144)
    import sides
    fill = []
    if ENV('DX', '2') == '1' and ENV('CLP', 'e') == 'l':
        a.emit('s_and_b32 s3, s2, 3')
        a.emit(f's_and_b32 s4, s{S_CU}, 3')
        a.emit('s_lshl2_add_u32 s3, s3, s4')
        a.emit('s_bfe_u32 s4, s2, 0x10002')
        a.emit(f's_lshr_b32 s5, s{S_CU}, 2')
        a.emit('s_lshl1_add_u32 s4, s5, s4')
        a.emit('s_lshl4_add_u32 s3, s3, s4')
        a.emit(f's_and_b32 s4, s{S_WV}, 3')
        a.emit('s_lshl2_add_u32 s3, s3, s4')
        a.emit('s_lshl_b32 s3, s3, 12')
        srd(a, SB, 'ws', WS_XP, 0 if 'fill0' in DBG else 4096)
        if 'fillfl' in DBG:
            srd(a, SB, 'ws0', WS_FL + MB, 4096)
            a.emit('s_and_b32 s3, s3, 0xfffff')
        a.emit(f's_add_u32 s{SB}, s{SB}, s3')
        a.emit(f's_addc_u32 s{SB+1}, s{SB+1}, 0')
        FW_ = int(ENV('FILLW', '2'))
        a.emit(f'v_mul_u32_u24 v29, {4 * FW_}, v1')
        for i in range(4): a.emit(f'v_mov_b32 v{24+i}, -1')
        fill = [f'buffer_store_dword{"x" + str(FW_)} v[24:{23 + FW_}], v29, s[{SB}:{SB+3}], 0 offen' + ('' if 'fillwb' in DBG else ' sc1'), f'v_add_u32 v29, {256 * FW_}, v29']
        assert sides.STV[3] == 0
    a.emit(f's_cmp_lg_u32 s{S_LAYER}, 0')
    a.emit(f's_cbranch_scc1 L_{kind}_ld1')
    post = list(sides.stouch_post(a, kind)) + fill
    SPF = [int(x) for x in ENV('SPF', '0,0,2').split(',')]
    def spf():
        hs = range(SPF[2])
        return ([f's_buffer_load_dword s84, s[{SX}:{SX+3}], s85 offset:{2048*r+64*h}' for r in range(2) for h in hs] +
                [f's_buffer_load_dword s84, s[{SW}:{SW+3}], s86 offset:{2048*p+64*h}' for p in range(3) for h in hs] +
                ['s_add_u32 s85, s85, 128', f's_add_u32 s86, s86, {64*ldw2}'])
    def spf_start():
        if not SPF[1]: return
        a.emit(f's_and_b32 s3, s{S_WV}, 3')
        a.emit(f's_lshl2_add_u32 s3, s{S_CU}, s3')
        a.emit('s_and_b32 s4, s2, 1')
        a.emit('s_bfe_u32 s5, s2, 0x20001')
        a.emit('s_lshl2_add_u32 s85, s4, s5')
        a.emit('s_lshl_b32 s85, s85, 7')
        a.emit('s_add_u32 s85, s85, s3')
        a.emit('s_lshl_b32 s85, s85, 12')
        a.emit(f's_add_u32 s85, s85, {128*SPF[0]}')
        a.emit('s_lshl_b32 s4, s4, 5')
        a.emit(f's_add_u32 s4, s4, s{S_CU}')
        a.emit(f's_add_u32 s4, s4, {64*SPF[0]}')
        a.emit(f's_mul_i32 s86, s4, {ldw2}')
        a.emit('s_and_b32 s3, s3, 3')
        a.emit('s_lshl2_add_u32 s3, s5, s3')
        a.emit('s_lshl_b32 s3, s3, 7')
        a.emit('s_add_u32 s86, s86, s3')
        for i in range(SPF[0], SPF[1]):
            for x in spf(): a.emit(x)
    if SPF[1]: post += spf()
    VPF = [int(x) for x in ENV('VPF', '0,0,1').split(',')]
    def vpf():
        k0, nk, hs = VPF
        if not nk: return 0
        a.emit(f's_and_b32 s3, s{S_WV}, 3')
        a.emit(f's_lshl2_add_u32 s3, s{S_CU}, s3')
        a.emit('s_and_b32 s4, s2, 1')
        a.emit('s_bfe_u32 s5, s2, 0x20001')
        a.emit('s_lshl2_add_u32 s85, s4, s5')
        a.emit('s_lshl_b32 s85, s85, 7')
        a.emit('s_add_u32 s85, s85, s3')
        a.emit('s_lshl_b32 s85, s85, 12')
        a.emit('s_lshl_b32 s4, s4, 7')
        a.emit('s_add_u32 s4, s4, s3')
        a.emit(f's_add_u32 s4, s4, {64*k0}')
        a.emit(f's_mul_i32 s86, s4, {ldw2}')
        a.emit('s_lshl_b32 s5, s5, 9')
        a.emit('s_add_u32 s86, s86, s5')
        a.emit('v_and_b32 v2, 15, v1')
        a.emit(f'v_min_u32 v3, {nk-1}, v2')
        a.emit('v_and_b32 v22, 16, v1')
        a.emit('v_add_lshl_u32 v22, v22, v3, 7')
        a.emit('v_min_u32 v2, 11, v2')
        a.emit('v_lshrrev_b32 v3, 2, v2')
        a.emit('v_and_b32 v2, 3, v2')
        a.emit('v_lshl_add_u32 v2, v3, 4, v2')
        a.emit('v_lshrrev_b32 v3, 4, v1')
        a.emit(f'v_min_u32 v3, {nk//4-1}, v3')
        a.emit(f'v_mul_u32_u24 v3, {256*ldw2}, v3')
        a.emit('v_lshl_add_u32 v23, v2, 7, v3')
        for h in range(hs):
            a.emit(f'buffer_load_dword v24, v23, s[{SW}:{SW+3}], s86 offen offset:{64*h}')
            a.emit(f'buffer_load_dword v25, v22, s[{SX}:{SX+3}], s85 offen offset:{128*k0+64*h}')
        return 2 * hs
    TG_ = int(ENV('TLBG', '0'))
    if TG_:
        srd(a, SO, 'ws0', 0, 256 * MB)
        a.emit(f's_and_b32 s3, s{S_WV}, 3')
        a.emit(f's_lshl2_add_u32 s3, s{S_CU}, s3')
        a.emit(f's_lshl_b32 s86, s3, {TG_}')
        tl = [f's_buffer_load_dword s84, s[{SO}:{SO+3}], s86', f's_add_u32 s86, s86, {128 << TG_}']
        if TG_ < 21: post += tl
    extra = tail_parks('wo', SP, lambda b: srd(b, SP, 'wo', 0, 2 * MB))
    sch0 = [int(c) for c in ENV('TSO0', '00000')]
    extra0 = tail_parks('wo', SP, lambda b: srd(b, SP, 'wo', 0, 2 * MB), sch0 + [sum(TSCH['wo']) - sum(sch0)])
    npk = 2 * sum(TSCH['wo']) if XD else 0
    def start():
        sides.cls_touch(a)
        if TG_:
            for x in tl: a.emit(x)
            a.emit(f's_and_b32 s3, s{S_WV}, 3')
            a.emit(f's_lshl2_add_u32 s3, s{S_CU}, s3')
            for w, sz in (('out', 4 * MB), ('wo', 2 * MB), ('w1', 7 * MB), ('b1', 4096), ('b2', 2048)):
                srd(a, SC, w, 0, sz)
                a.emit(f's_mul_i32 s4, s3, {sz // 128}')
                a.emit(f's_buffer_load_dword s84, s[{SC}:{SC+3}], s4')
        if ENV('DX', '2') != '1' or ENV('CLP', 'e') != 's': return 0
        srd(a, ST, 'ws0', WS_XP, LSTR + 4 * MB)
        a.emit('s_and_b32 s3, s2, 3')
        a.emit(f's_and_b32 s4, s{S_CU}, 3')
        a.emit('s_lshl2_add_u32 s3, s3, s4')
        a.emit('s_bfe_u32 s4, s2, 0x10002')
        a.emit(f's_lshr_b32 s5, s{S_CU}, 2')
        a.emit('s_lshl1_add_u32 s4, s5, s4')
        a.emit('s_lshl4_add_u32 s3, s3, s4')
        a.emit(f's_and_b32 s4, s{S_WV}, 3')
        a.emit('s_lshl2_add_u32 s3, s3, s4')
        a.emit('s_lshl_b32 s3, s3, 12')
        a.emit(f's_add_u32 s4, s3, {LSTR}')
        a.emit('v_lshlrev_b32 v2, 4, v1')
        for i in range(4): a.emit(f'v_mov_b32 v{32+i}, -1')
        for i in range(8): a.emit(f'buffer_store_dwordx4 v[32:35], v2, s[{ST}:{ST+3}], s{3+(i>>2)} offen offset:{1024*(i&3)} sc1')
        return 8
    final0 = None
    TL0 = int(ENV('TL0', '1' if DS else '0'))
    if DS:
        STQ0 = int(ENV('STQ0', '14'))
        assert HK[-1] < STQ0 <= 13 + TL0
        def start():
            nv = vpf()
            if sides.CE:
                assert sum(sides.CE.values()) == 8
                sides.cs_setup(a, SB, 95, 26)
                for x in sides.cs_at(-1): a.emit(x)
                nv += sides.CE.get(-1, 0)
            spf_start()
            sides.cls_touch(a)
            srd(a, ST, 'ws0', WS_ST0, 16 * 16384)
            stats4_setup(a, True)
            if D2:
                dbg_off(a, 20)
                a.emit(f's_and_b32 s{SC+1}, s{SC+1}, 0xffff')
                a.emit(f's_mov_b32 s{SC+2}, 256')
                a.emit(f's_mov_b32 s{SC+3}, 0x00020000')
            for x in pads.chain(-1): a.emit(x)
            return nv
        pl2 = f'buffer_load_dword v21, v20, s[{SC}:{SC+3}], 0 offen sc1'
        ck2 = ['s_mov_b32 s5, 0x100000', 'L_attn_dchk:', 'v_cmp_ne_u32 vcc, 0x01010101, v21', 's_cbranch_vccz L_attn_dok', 's_sub_u32 s5, s5, 1\n  ' + pl2,
               's_waitcnt vmcnt(0)', 's_cbranch_scc0 L_attn_dchk', 'L_attn_dok:'] if D2 else []
        extra0 = lambda i: (ck2 + stats4_loads(32, True) if i == STQ0 else [pl2] if D2 and i == STQ0 - 3 else []) + sides.cs_at(i) + pads.chain(i)
        def chk0():
            a.emit('v_cmp_u_f32 vcc, v32, v33')
            a.emit('v_cmp_u_f32 s[4:5], v48, v49')
            a.emit('s_or_b64 s[4:5], vcc, s[4:5]')
            a.emit('s_cbranch_scc0 L_attn_sok')
            a.emit(f's_sub_u32 s{S_CNT}, s{S_CNT}, 1')
            a.emit('s_cbranch_scc1 L_attn_sok')
            for x in stats4_loads(32, True): a.emit(x + (' sc1' if x.startswith('buf') else ''))
            a.emit('s_waitcnt vmcnt(0)')
            a.emit('s_branch L_attn_schk')
            a.label('L_attn_sok')
        def final0():
            a.emit(f's_mov_b32 s{S_CNT}, 0x4000')
            a.emit(f"s_waitcnt vmcnt({side(Asm(), 0, 'issue') + sum(n for e, n in sides.CE.items() if e >= STQ0)})")
            a.label('L_attn_schk')
            stats4_store(a, 32, LST, True, chk0 if D2 else None)
            a.emit('s_waitcnt lgkmcnt(0)')
    L.run('0', tail_issue=lambda: side(a, 0, 'issue'), ntail_vm=side(Asm(), 0, 'issue'), post=post, start=start, extra=extra0, tail_late=TL0, final=final0, exfirst=True)
    for i in (16,) if DS else (16, 17):
        if XD:
            for x in extra0(i): a.emit(x)
        a.emit('s_barrier')
    if XD:
        for x in extra0(18): a.emit(x)
    if ONE:
        a.emit(f's_branch L_{kind}_ldend')
    else:
        side(a, 0, 'finish')
        a.emit('s_endpgm')
    a.label(f'L_{kind}_ld1')
    if ',' in L.kord():
        L.ktable(int(L.kord().split(',')[1]))
        L.ot = int(ot); L.hx = HX - XH
        for x in ([] if ot else L.knext()): a.emit(x)
    srd(a, ST, 'ws0', WS_ST2, 16 * 16384)
    n1 = side(Asm(), 1, 'issue')
    def tail1():
        stats_loads(a, 32, True)
        side(a, 1, 'issue')
    def final1():
        a.emit(f's_waitcnt vmcnt({n1 + npk})')
        stats_reduce_store(a, 32, LST)
        a.emit('s_waitcnt lgkmcnt(0)')
    if T4:
        stats4_setup(a, True)
        TL1 = int(ENV('TL1', '0'))
        def final4():
            a.emit(f"s_waitcnt vmcnt({n1 if int(ENV('STQ', '14')) < 13 + TL1 < 15 else 0})")
            stats4_store(a, 32, LST, True)
            a.emit('s_waitcnt lgkmcnt(0)')
        L.run('1', tail_issue=lambda: side(a, 1, 'issue'), ntail_vm=n1, tail_late=TL1, final=final4, extra=lambda i: stats4_loads(32, True) if i == int(ENV('STQ', '14')) else [],
              post=fill, dep=lambda pf: dep_wait(a, kind, halo=True, postf=pf, pref=(lambda: a.emit('s_waitcnt vmcnt(0)')) if ot else None))
    else: L.run('1', tail_issue=tail1, ntail_vm=16 + n1, final=final1, extra=extra, post=fill, dep=(lambda pf: dep_wait(a, kind, halo=True, postf=pf)) if MEGA else None)
    a.emit('s_barrier')
    if not MEGA: side(a, 1, 'finish')
    a.label(f'L_{kind}_ldend')
    loader_end(a, kind, check=False)
    a.label(end)
    a.emit('s_endpgm')
    loader_first(a, kind)
    a(KD.format(name=f'{kind}l0_kernel'))
    if not MEGA:
        stub(a, f'{kind}l1_kernel', body, 1, tsidx + 4, False)
        a(KD.format(name=f'{kind}l1_kernel'))
    a.label(f'L_{kind}_c1')
    return LST + 1280
```

```python
from common import *

def ktab(a, vt, sh, P1, P2, tb):
    a.emit('v_and_b32 v2, 3, v1')
    a.emit('v_lshlrev_b32 v2, 3, v2')
    a.emit(f'v_bfe_i32 v{vt}, s{tb}, v2, 8')
    a.emit(f's_and_b32 s3, s{S_MT}, 3')
    a.emit(f's_mul_i32 s4, s3, {P2 // 4}')
    a.emit(f'v_add3_u32 v3, v{vt}, v1, s4')
    if P1 & (P2 - 1): a.emit(f'v_subrev_u32 v3, {P1}, v3')
    a.emit(f'v_and_b32 v3, {P2 - 1}, v3')
    if P1:
        MR = int(ENV('MR', '4'))
        if NV: a.emit(f'v_cmp_gt_u32 vcc, {NV}, v1')
        a.emit(f's_mul_i32 s3, s3, {MR // 4}')
        if NV:
            a.emit(f's_and_b32 s4, s{S_NT}, 1')
            a.emit(f'v_cndmask_b32_e64 v{vt+1}, {P1 - NV}, {NV}, vcc')
            a.emit(f'v_cndmask_b32_e64 v2, {P1 - 2 * NV}, {NV}, vcc')
            a.emit(f'v_add3_u32 v{vt}, v{vt}, v1, v2')
            for _ in range(2):
                a.emit(f'v_sub_u32 v2, v{vt}, v{vt+1}')
                a.emit(f'v_min_u32 v{vt}, v{vt}, v2')
            a.emit(f'v_cndmask_b32_e64 v2, {NV}, 0, vcc')
            a.emit(f'v_add_u32 v{vt}, v{vt}, v2')
        else:
            a.emit(f'v_add3_u32 v{vt}, v{vt}, v1, {P1}')
            a.emit(f's_bitcmp1_b32 s{S_NT}, 0')
            a.emit(f's_cselect_b32 s4, {P1}, 0')
            for _ in range(2):
                a.emit(f'v_subrev_u32 v2, {P1}, v{vt}')
                a.emit(f'v_min_u32 v{vt}, v{vt}, v2')
        if MR:
            a.emit(f'v_cmp_gt_u32 vcc, {MR}, v{vt}')
            a.emit(f'v_add_u32 v2, s3, v{vt}')
            a.emit(f'v_subrev_u32 v{vt+1}, {MR}, v2')
            a.emit(f'v_min_u32 v2, v{vt+1}, v2')
            a.emit(f'v_cndmask_b32 v{vt}, v{vt}, v2, vcc')
        a.emit(f'v_cmp_gt_u32 vcc, {P1}, v1')
        a.emit(f'v_lshl_add_u32 v{vt}, v{vt}, 1, s4' if NV else f'v_add_u32 v{vt}, s4, v{vt}')
        a.emit(f'v_add_u32 v3, {2 * P1}, v3')
        a.emit(f'v_cndmask_b32 v3, v3, v{vt}, vcc')
    a.emit(f'v_lshlrev_b32 v{vt}, {sh}, v3')

def ktab_ot(a, vt, sh, tb):
    KS = int(ENV('KS2', '1'))
    a.emit(f's_add_u32 s3, s{S_MT}, s{S_HD}')
    a.emit('s_and_b32 s3, s3, 3')
    for g in range(4):
        o = list(range(17))
        for t in range(KS + g, 14, 4): o[t:t + 3] = [t + 2, t, t + 1]
        assert o[0] == 0 and o[16] == 16
        v = sum(((t - o[t]) & 3) << (2 * t) for t in range(16))
        if g: a.emit(f's_cmp_eq_u32 s3, {g}')
        a.emit(f's_cselect_b32 s4, {v:#x}, s4' if g else f's_mov_b32 s4, {v:#x}')
    a.emit('v_subrev_u32 v2, 3, v1')
    a.emit('v_lshlrev_b32 v3, 1, v2')
    a.emit(f'v_bfe_i32 v{vt}, s4, v3, 2')
    a.emit(f'v_sub_u32 v{vt}, v1, v{vt}')
    a.emit(f'v_subrev_u32 v{vt}, 6, v{vt}')
    a.emit(f'v_ashrrev_i32 v3, 1, v{vt}')
    a.emit(f'v_cmp_eq_u32 vcc, s{S_HD}, v3')
    a.emit(f's_and_b32 s3, s{S_NT}, 1')
    a.emit(f'v_or_b32 v2, 14, v{vt}')
    a.emit(f'v_cndmask_b32 v2, v{vt}, v2, vcc')
    a.emit(f'v_cmp_gt_i32 vcc, 0, v{vt}')
    a.emit('s_lshl2_add_u32 s4, s3, 19')
    a.emit(f'v_add_u32 v{vt}, s4, v{vt}')
    a.emit('s_lshl4_add_u32 s4, s3, 24')
    a.emit('v_add_u32 v2, s4, v2')
    a.emit(f'v_cndmask_b32 v{vt}, v2, v{vt}, vcc')
    a.emit('v_and_b32 v2, 3, v1')
    a.emit('v_lshlrev_b32 v2, 3, v2')
    a.emit(f'v_bfe_i32 v3, s{tb}, v2, 8')
    a.emit(f's_lshl2_add_u32 s5, s{S_MT}, 12')
    a.emit('v_add3_u32 v3, v3, v1, s5')
    a.emit('v_and_b32 v2, 7, v3')
    a.emit(f'v_cmp_eq_u32 vcc, s{S_HD}, v2')
    a.emit('v_bfe_u32 v2, v3, 3, 1')
    a.emit('v_lshl_add_u32 v2, v2, 2, 19')
    a.emit('v_and_b32 v3, 15, v3')
    a.emit('v_cndmask_b32 v3, v3, v2, vcc')
    a.emit('v_cmp_gt_u32 vcc, 20, v1')
    a.emit(f's_lshl1_add_u32 s4, s{S_HD}, s4')
    a.emit(f's_lshl3_add_u32 s3, s3, s{S_HD}')
    a.emit(f'v_cndmask_b32 v3, v3, v{vt}, vcc')
    a.emit('v_writelane_b32 v3, s4, 0')
    a.emit('s_add_u32 s4, s4, 1')
    a.emit('v_writelane_b32 v3, s3, 2')
    a.emit('v_writelane_b32 v3, s4, 1')
    a.emit(f'v_lshlrev_b32 v{vt}, {sh}, v3')

EVX, EVT, EVB = 24, 30, 27; EBIA = [4, 10, 124, 126]; ERING = [128, 144, 224, 64, 80, 240]
def w2_pre(a):
    P1 = int(ENV('P1', '20'))
    tile_map(a, 2, None, pair=True)
    rot_table(a, S_TB, S_MT, S_HD, 'w2')
    ktab(a, EVT, 11, P1, 56 - 2 * P1, S_TB)
    a.emit(f's_lshl_b32 s8, s{S_MT}, 7')
    a.emit(f's_lshl_b32 s9, s{S_WV}, 5')
    a.emit('s_add_u32 s8, s8, s9')
    a.emit('s_mul_i32 s9, s8, 7168')
    a.emit(f'v_lshl_add_u32 v{EVX}, v1, 4, s9')
    a.emit(f'v_add_u32 v{EVX+1}, {16*7168}, v{EVX}')
    a.emit('v_lshrrev_b32 v2, 4, v1')
    a.emit(f's_lshl_b32 s10, s{S_NT}, 7')
    a.emit(f'v_lshl_add_u32 v{EVB}, v2, 3, s10')

def w2_early(a):
    NG = int(ENV('NG2', '3'))
    for x in range(NG): a.emit(f'v_readlane_b32 s{SR+x}, v{EVT}, {x}')
    srd(a, SB, 'b2', 0, 2048)
    srd(a, SX, 'ws', WS_H, 2048 * 7168)
    for jn in range(4):
        a.emit(f'buffer_load_dwordx2 v[{EBIA[jn]}:{EBIA[jn]+1}], v{EVB}, s[{SB}:{SB+3}], 0 offen offset:{jn*32}')
    for x in range(NG):
        for ks in range(2):
            for jm in range(2):
                r = ERING[x] + (ks * 2 + jm) * 4
                a.emit(f'buffer_load_dwordx4 v[{r}:{r+3}], v{EVX+jm}, s[{SX}:{SX+3}], s{SR+x} offen offset:{ks*1024}')

def gen_gemm64y(a, kind, tsidx, side):
    K = 1024 if kind == 'wo' else 3584
    lda2 = K * 2; ldw2 = 2048
    N = K // 64
    P1 = int(ENV('P1', '20')) if kind == 'w2' else 0
    P2 = N - 2 * P1
    B16 = ENV('XB16', '1') == '1'
    NXC = 4 if B16 else 8; CH = NXC * 1024
    G0, GW = (131072, 28672) if kind == 'wo' else (0, 0)
    def slot(t):
        if kind == 'wo' and 'w1' in OT: return 28672 + 8192 * t + (4096 if t >= 12 else 0)
        g = G0 + (t >> 2) * 32768
        if g >= 163840: g = GW + (g - 163840) % (163840 - GW)
        return g + (t & 3) * 8192
    XB = 131072; assert P1 in (0, 20, 24)
    NPRE = int(ENV('NPREO', '16')) if kind == 'wo' else int(ENV('NPRE', '20'))
    PSTEP = 64 if kind == 'w2' else 1024
    body = f'L_{kind}_body'; end = f'L_{kind}_end'
    VXO, VWB, VWA, VO, VT, VE = 4, 6, 26, 12, 15, 19
    XR = 32; FW = [160, 192]; ACC = [128, 96]; D = 240; BIA = 192
    SPC = NV if P1 else 0
    BIA = [BIA + 2 * jn for jn in range(4)]
    if SPC: VXO, VT, ACC, BIA = EVX, EVT, [32, 96], EBIA
    ot = kind == 'w2' and 'w2' in OT
    if ot: BIA = OBIA; assert P1 == 20 and not SPC
    acc = lambda jn, jm, u=1: ACC[u] + (jn * 2 + jm) * 4
    fx = lambda r, ks, jm: XR + 16 * r + (ks * 2 + jm) * 4
    fw = lambda s, ks, jn: FW[s] + (ks * 4 + jn) * 4
    a.label(f'L_{kind}_c0')
    a.label(body)
    tile_map(a, 2, end, pair=True)
    rot_table(a, S_TB, S_MT, S_HD, kind)
    a.emit(f's_cmp_ge_u32 s{S_WV}, 4')
    a.emit(f's_cbranch_scc1 L_{kind}_loader')
    if ot:
        a.emit(f's_lshl_b32 s3, s{S_WV}, 12')
        a.emit(f's_add_u32 s3, s3, {OHB}')
        a.emit('v_lshl_add_u32 v2, v1, 4, s3')
        for i in range(12): a.emit(f'ds_read_b128 v[{32+4*i}:{35+4*i}], v2 offset:{(i>>2)*16384+(i&1)*2048+(i&2)*512}')
        ktab_ot(a, VT, 11, S_TB)
        if ENV('RE', '1') == '1':
            a.emit('s_waitcnt lgkmcnt(0)')
            a.emit('s_barrier')
    elif SPC: tile_map(a, 2, None, pair=True)
    else: ktab(a, VT, 11, P1, P2, S_TB)
    a.emit('v_and_b32 v3, 15, v1')
    a.emit('v_lshrrev_b32 v2, 4, v1')
    a.emit(f's_lshl_b32 s8, s{S_MT}, 7')
    a.emit(f's_lshl_b32 s9, s{S_WV}, 5')
    a.emit('s_add_u32 s8, s8, s9')
    a.emit(f's_mul_i32 s9, s8, {lda2}')
    if 'xsm' in DBG:
        a.emit('s_and_b32 s9, s8, 0x67f')
        a.emit(f's_mul_i32 s9, s9, {lda2}')
    if not SPC and ENV('TID', '1') != '1':
        a.emit(f'v_lshl_add_u32 v{VXO}, v1, 4, s9')
        a.emit(f'v_add_u32 v{VXO+1}, {16*lda2}, v{VXO}')
    a.emit('v_add_u32 v13, s8, v3')
    a.emit(f's_lshl_b32 s10, s{S_NT}, 7')
    a.emit('v_lshl_add_u32 v14, v2, 3, s10')
    a.emit('v_and_b32 v16, 1, v2')
    a.emit('v_lshrrev_b32 v17, 1, v2')
    if kind == 'w2':
        a.emit('v_lshlrev_b32 v16, 5, v16')
        a.emit('v_lshl_add_u32 v16, v17, 4, v16')
        if 'attn' in OT:
            a.emit('v_lshlrev_b32 v4, 3, v3')
            a.emit('v_and_b32 v4, 0x70, v4')
            a.emit('v_xor_b32 v4, v4, v16')
            a.emit('v_lshl_add_u32 v4, v3, 7, v4')
            a.emit(f's_lshl_b32 s3, s{S_WV}, 12')
            a.emit('v_add_u32 v4, s3, v4')
            a.emit('v_xor_b32 v5, 64, v4')
        a.emit('v_add_u32 v16, s10, v16')
        xpitch(a, 7, True)
        a.emit(f'v_mad_u32_u24 v{VO}, v13, s7, v16')
    else:
        a.emit('v_lshl_add_u32 v16, v16, 1, v17')
        a.emit('v_lshlrev_b32 v16, 8, v16')
        a.emit('v_lshl_add_u32 v16, v3, 4, v16')
        a.emit(f's_add_u32 s9, s8, s{S_NT}')
        a.emit('s_lshl_b32 s9, s9, 11')
        a.emit(f'v_add_u32 v{VO}, s9, v16')
        if 'w1' in OT:
            a.emit(f's_lshl_b32 s9, s{S_WV}, 12')
            a.emit(f'v_add_u32 v{VE}, s9, v16')
    a.emit('v_lshl_add_u32 v18, v17, 4, v13')
    a.emit('v_lshlrev_b32 v18, 3, v18')
    a.emit('v_and_b32 v16, 1, v2')
    a.emit('v_lshl_add_u32 v18, v16, 2, v18')
    a.emit(f's_lshl_b32 s10, s{S_NT}, 14')
    a.emit('v_add_u32 v18, s10, v18')
    wbase(a, VWB, 17)
    for i in range(1, 4): a.emit(f'v_xor_b32 v{VWB+i}, {32*i}, v{VWB}')
    a.emit('s_mov_b32 s11, 0xffff0000')
    if kind == 'wo':
        srd(a, SX, 'ws', WS_O, 4 * MB)
        srd(a, SO, 'ws', WS_X1, 4 * MB)
    else:
        if not SPC:
            if not ot: srd(a, SB, 'b2', 0, 2048)
            for jn in range(0 if ot else 4):
                a.emit(f'buffer_load_dwordx2 v[{BIA[jn]}:{BIA[jn]+1}], v14, s[{SB}:{SB+3}], 0 offen offset:{jn*32}')
            srd(a, SX, 'ws', WS_H, 2048 * 7168)
        srd(a, SO, 'out', 0, 4 * MB)
        srd(a, SR, 'ws0', WS_X2, 4 * MB)
        a.emit(f's_cmp_eq_u32 s{S_LAYER}, 0')
        a.emit(f's_cselect_b64 s[{SO}:{SO+1}], s[{SR}:{SR+1}], s[{SO}:{SO+1}]')
        a.emit(f's_lshl_b32 s{SO+2}, s7, 11')
    srd(a, ST, 'ws', WS_ST if kind == 'wo' else WS_ST2, 16 * 16384)
    TID = ENV('TID', '1') == '1'
    if TID:
        a.emit(f's_mul_i32 s9, s8, {lda2}')
        a.emit(f's_add_u32 s{SX}, s{SX}, s9')
        a.emit(f's_addc_u32 s{SX+1}, s{SX+1}, 0x100000')
        a.emit(f's_add_u32 s{SC}, s{SX}, {16 * lda2}')
        a.emit(f's_addc_u32 s{SC+1}, s{SX+1}, 0')
        for r in (SX, SC):
            a.emit(f's_mov_b32 s{r+2}, {16 * lda2}')
            a.emit(f's_mov_b32 s{r+3}, 0x00800000')
    if kind == 'wo':
        if ENV('CT2', 'l') == 'l': code_touch(a, 'L_w1_c0', 'L_w1_c1', 128, SW)
        elif ENV('CT2') == 'o': code_touch(a, 'L_w2_c0', 'L_w2_c1', 192, SW)
        else: code_touch(a, 'L_w1_c0', 'L_w2_c1', 320, SW)
    DX = int(ENV('DX', '2'))
    CLW = DX == 1 and not P1 and ENV('CLP', 'e') == 'w'
    if CLW:
        for i in range(4): a.emit(f'v_mov_b32 v{128+i}, -1')
    if (P1 and DX) or CLW:
        srd(a, SP, 'ws', WS_XP, 4 * MB)
        a.emit(f's_or_b32 s{SP+1}, s{SP+1}, 0x100000')
        a.emit(f's_mov_b32 s{SP+3}, 0x00800000')
        a.emit(f's_lshl4_add_u32 s4, s{S_MT}, s{S_NT}')
        a.emit(f's_lshl2_add_u32 s4, s4, s{S_WV}')
        if DX == 2:
            srd(a, SB, 'ws0', WS_FL, FLS)
            a.emit(f's_add_u32 s6, s{S_LAYER}, 4')
            a.emit('s_lshl_b32 s6, s6, 10')
            a.emit('s_add_u32 s6, s6, s4')
            a.emit('s_lshl_b32 s6, s6, 6')
            a.emit(f'v_mov_b32 v{VE}, 1')
        a.emit('s_lshl_b32 s4, s4, 12')
        a.emit('s_xor_b32 s5, s4, 16384')
    elif P1:
        a.emit(f's_mul_i32 s3, s{S_WV}, {CH}')
        a.emit(f's_add_u32 s3, s3, {XB}')
        a.emit(f'v_lshl_add_u32 v{VE}, v1, 4, s3')
    if P1 and not ot:
        for i in range(32): a.emit(f'v_mov_b32 v{ACC[0]+i}, 0')
    bases = []
    for t in sorted(range(min(N, 20)), key=slot):
        if not bases or slot(t) + 8191 - bases[-1] > 65535: bases.append(slot(t))
    VSET = [VWB, 20, 26]
    for k in (2, 1, 0):
        for i in range(4):
            if bases[k] or k: a.emit(f'v_add_u32 v{VSET[k]+i}, {bases[k]}, v{VWB+i}')
    xof = lambda t: t >> 1 if t < 2 * P1 else t - P1
    NX = P1 + P2
    last = lambda x: 2 * x + 1 if x < P1 else x + P1
    def xl(x, reg):
        if TID: return [(f'buffer_load_dwordx4 v[{reg+(ks*2+jm)*4}:{reg+(ks*2+jm)*4+3}], off, s[{(SX, SC)[jm]}:{(SX, SC)[jm]+3}], s{SR+(x&3)} offset:{ks*1024}', 'V', ('x', x, ks))
                for ks in range(2) for jm in range(2)]
        return [(f'buffer_load_dwordx4 v[{reg+(ks*2+jm)*4}:{reg+(ks*2+jm)*4+3}], v{VXO+jm}, s[{SX}:{SX+3}], s{SR+(x&3)} offen offset:{ks*1024}', 'V', ('x', x, ks))
                for ks in range(2) for jm in range(2)]
    def reads(t):
        o = []
        k = max(i for i, b in enumerate(bases) if b <= slot(t))
        for ks in range(2):
            for jn in range(4):
                for h in range(2):
                    d = fw(t & 1, ks, jn) + 2 * h
                    o.append((f'ds_read_b64_tr_b16 v[{d}:{d+1}], v{VSET[k]+jn} offset:{slot(t)-bases[k]+ks*4096+h*512}', 'L', ('w', t, ks)))
        return o
    xreg = {}
    def mf(t):
        o = []
        for ks in range(2):
            for jn, jm in mf_order(4, 2):
                if True:
                    c = acc(jn, jm, t & 1 if t < 2 * P1 else 1); x = xreg[xof(t)] + (ks * 2 + jm) * 4
                    o.append(f'v_mfma_f32_16x16x32_bf16 v[{c}:{c+3}], v[{fw(t&1,ks,jn)}:{fw(t&1,ks,jn)+3}], v[{x}:{x+3}], ' + ('0' if ot and t == ks == 0 else f'v[{c}:{c+3}]'))
        return o
    U = kind[1].upper()
    NG = int(ENV('NG' + U, '3'))
    ring = [32, 48, 64, 80, 224, 240][:int(ENV('RING' + U, '6' if P1 else '4'))]
    NB = int(ENV('NB', '3'))
    if SPC: ring = ERING
    elif ot:
        assert NG == 3
        for x in range(3, 3 + NB): a.emit(f'v_readlane_b32 s{SR+(x&3)}, v{VT}, {x}')
    else:
        for x in range(NG): a.emit(f'v_readlane_b32 s{SR+x}, v{VT}, {x}')
    for i in range(4):
        for h in range(2): a.emit(f'v_permlane16_swap_b32 v{D+4*i+h}, v{D+4*i+2+h}')
    TF = int(ENV('TF', '-1')); TG = int(ENV('TG', '15'))
    import pads
    for x in pads.chain('hg') if kind == 'wo' else []: a.emit(x)
    a.emit('s_waitcnt lgkmcnt(0)' + (f' vmcnt({4 * NG + 4 if EX == 14 else 0})' if SPC and TF < 0 else ''))
    if not (ot and ENV('RE', '1') == '1'): a.emit('s_barrier')
    pre = []
    for x in range(NG):
        xreg[x] = ring[x]; pre += xl(x, ring[x])
    if SPC: pre = [('', k, tg) for _, k, tg in pre] + [('', 'V', 'st')] * (14 - EX)
    if ot: pre = [('', 'L', tg) for _, k, tg in pre]
    pre += reads(0)
    P = lambda x: (x, '', None)
    if kind == 'w2' and not ot: pre.append(P(f's_waitcnt vmcnt({len(pre) - 16})'))
    for jn in range(4):
        if kind == 'w2':
            for h in range(2):
                pre.append(P(f'v_lshlrev_b32 v{216+2*h}, 16, v{BIA[jn]+h}'))
                pre.append(P(f'v_and_b32 v{217+2*h}, s11, v{BIA[jn]+h}'))
        for jm in range(2):
            c = acc(jn, jm); r = D + (jm * 4 + jn) * 2
            for h in range(2):
                pre.append(P(f'v_lshlrev_b32 v{c+2*h}, 16, v{r+h}'))
                pre.append(P(f'v_and_b32 v{c+2*h+1}, s11, v{r+h}'))
                if kind == 'w2': pre.append(P(f'v_pk_add_f32 v[{c+2*h}:{c+2*h+1}], v[{c+2*h}:{c+2*h+1}], v[{216+2*h}:{217+2*h}]'))
    pre.append(('', 'W', [('w', 0, 0), ('x', 0, 0)]))
    if TS:
        b = Asm(); stamp(b, 1); pre += [P(l.strip()) for l in b.lines]
    gp = [[] for _ in range(16 * N + 1)]
    waits = {}
    for t in range(N):
        if t + 1 < N:
            for i, x in enumerate(reads(t + 1)): gp[16 * t + i].append(x)
        for g, tt, ks in ((16 * t + 7, t, 1), (16 * t + 15, t + 1, 0)):
            if tt < N:
                waits[g] = [('w', tt, ks), ('x', xof(tt), ks)]
                gp[g].append(('', 'W', waits[g]))
    def put(g, x, cap=2):
        while len(gp[g]) >= cap and g < 16 * N: g += 1
        gp[g].append(x); return g
    BP = int(ENV('BP', '4'))
    ZS = int(ENV('ZS', '50' if DX else '54')) if P1 else N - 1
    XS = int(ENV('XS', '45' if DX else '41'))
    PS = int(ENV('PS', '0'))
    bars = list(range(BP - 1, 2 * P1, BP)) + [XS] + ([PS] if PS else []) + ([] if DX == 1 else [ZS]) if P1 else [int(x) for x in ENV('BWO', '3,10' if 'w1' in OT else '3,7,12').split(',')]
    if SPC:
        bars = [TF] + [t for t in bars if t > TF + 1]
        assert TG in bars
        if EX < 14 and TF >= 0: waits[16 * TF + 7].append('st')
    if ot: bars = [int(x) for x in ENV('BW2', '2,7').split(',')] + bars[2:]
    for t in bars:
        if t >= 0: gp[16 * t + 7].append(P('s_barrier'))
    G = ACC[0]; GI = G + 16 if B16 else G
    pool = [[r, -1 if i >= NG else 16 * last(i) + 15, N] for i, r in enumerate(ring)]
    if P1:
        for i in range(int(ENV('RINGX', '0'))): pool.append([G + 16 * i, 16 * XS + 7, ZS])
    SP1 = int(ENV('SP1', '7')); SP2 = int(ENV('SP2', '3'))
    g = 0
    for x in range(NG, NX):
        sl = min((p for p in pool if last(x) < p[2]), key=lambda p: p[1])
        xreg[x] = sl[0]
        if SPC and x == SPC: g = max(g, 16 * TG + 7)
        if ot and x < 3 + NB:
            g = 16 * bars[0] + 7
            gp[g] += xl(x, sl[0]); sl[1] = 16 * last(x) + 15; g += 3
            continue
        g = put(max(g - 2, sl[1] - 2, 0), P(f'v_readlane_b32 s{SR+(x&3)}, v{VT}, {x}')) + 3
        sp = SP1 if len(ring) + (int(ENV('CU2', '2')) if ot else 0) <= x and g < 16 * int(ENV('SPE', str(2 * P1))) else SP2
        sps = [int(c) for c in ENV('SP3', '4')] if P1 and 12 <= x and sp == SP2 else [sp]
        for i, y in enumerate(xl(x, sl[0])): g = put(max(g, sl[1] + 1), y) + sps[i % len(sps)]
        sl[1] = 16 * last(x) + 15
    for i in range(4): put(16 * (N - 1), P(f'v_mov_b32 v{20+i}, 0'))
    if CLW:
        g = max(g, int(16 * float(ENV('CLG', '0'))))
        for i in range(4): g = put(g, (f'buffer_store_dwordx4 v[128:131], off, s[{SP}:{SP+3}], s4 offset:{1024*i} sc1', 'V', 'cl')) + int(ENV('CLD', '2'))
    def xld(i): return f'buffer_load_dwordx4 v[{GI+4*i}:{GI+4*i+3}], off, s[{SP}:{SP+3}], s5 offset:{1024*i} sc1'
    def vmax(d, r):
        return [f'v_max3_u32 v{d}, v{r}, v{r+1}, v{r+2}'] + [f'v_max3_u32 v{d}, v{d}, v{r+j}, v{r+j+1}' for j in range(3, 15, 2)] + [f'v_max_u32 v{d}, v{d}, v{r+15}', f'v_cmp_eq_u32 vcc, -1, v{d}']
    if P1 and DX:
        g = 16 * (2 * P1 - 1) + 2
        for i in range(4):
            for j in range(4 * i, 4 * i + 4): g = put(g, P(f'v_cvt_pk_bf16_f32 v{G+j}, v{G+2*j}, v{G+2*j+1}'))
            put(max(g + 1, 16 * (2 * P1 - 1) + 6 + i * int(ENV('XWS', '0'))), (f'buffer_store_dwordx4 v[{G+4*i}:{G+4*i+3}], off, s[{SP}:{SP+3}], s4 offset:{1024*i} sc1', 'V', 'xw'))
        g = int(16 * float(ENV('RS', '50')))
        if DX == 2:
            g = put(int(16 * float(ENV('FS', '43'))), ('', 'W', ['xw']))
            put(g, (f'buffer_store_dword v{VE}, off, s[{SB}:{SB+3}], s6 sc1', 'V', 'xf'))
            g = 16 * ZS + 8
        for i in range(4): g = put(g, (xld(i), 'V', 'xr')) + int(ENV('RSP', '2'))
        g = put(int(16 * float(ENV('VS', '53.5' if DX == 1 else '54'))), ('', 'W', ['xr']))
        if DX == 1:
            for y in vmax(VE, GI): g = put(g, P(y))
            g = put(g + 1, P(f's_cbranch_vccnz L_{kind}_xrt\nL_{kind}_xok:'))
        for i in range(16):
            g = put(g, P(f'v_lshlrev_b32 v{G+2*i}, 16, v{GI+i}'), 2 if g < 16 * (N - 1) else 3)
            g = put(g, P(f'v_and_b32 v{G+2*i+1}, s11, v{GI+i}'), 2 if g < 16 * (N - 1) else 3)
    elif P1:
        g = 16 * (2 * P1 - 1) + 2
        for i in range(NXC):
            if B16:
                for j in range(4 * i, 4 * i + 4): g = put(g, P(f'v_cvt_pk_bf16_f32 v{G+j}, v{G+2*j}, v{G+2*j+1}'))
            gw = put(max(g + 1, 16 * (2 * P1 - 1) + 8 + 2 * i), (f'ds_write_b128 v{VE}, v[{G+4*i}:{G+4*i+3}] offset:{1024*i}', 'L', 'xw'))
        assert gw < 16 * XS + 7
        waits[16 * XS + 7].append('xw')
        g = 16 * ZS + 8
        for i in range(NXC): g = put(g, (f'ds_read_b128 v[{GI+4*i}:{GI+4*i+3}], v{VE} offset:{1024*i}', 'L', 'xr')) + 1
        g = put(max(g + 6, 16 * (N - 1)), ('', 'W', ['xr']))
        if B16:
            for i in range(16):
                g = put(g, P(f'v_lshlrev_b32 v{G+2*i}, 16, v{GI+i}'), 3)
                g = put(g, P(f'v_and_b32 v{G+2*i+1}, s11, v{GI+i}'), 3)
    XG = int(ENV('XG', '1'))
    if XG:
        isr = lambda y: y[1] == 'L' and y[2][0] == 'w'
        for g in range(16 * N - 1):
            if len(gp[g]) == 2 and gp[g][1][1] == 'V' and isr(gp[g][0]):
                for d in ((1, -1) if XG == 1 else (-1, 1)):
                    if len(gp[g + d]) == 1 and isr(gp[g + d][0]) and (d > 0 or g & 15):
                        gp[g + d].insert(0 if d > 0 else 1, gp[g].pop(0)); break
    lin = list(pre)
    for t in range(N):
        for i, m in enumerate(mf(t)):
            lin.append(P(m)); lin += gp[16 * t + i]
        if TS and t == int(ENV('ST2', '99')):
            b = Asm(); stamp(b, 2); lin += [P(l.strip()) for l in b.lines]
    lin += gp[16 * N]
    iss = {'L': [], 'V': []}; done = {'L': -1, 'V': -1}
    for txt, k, tag in lin:
        if k == 'W':
            o = []
            for c, nm, mx in (('V', 'vmcnt', 63), ('L', 'lgkmcnt', 15)):
                idx = [i for i, x in enumerate(iss[c]) if x in tag]
                if idx and max(idx) > done[c]:
                    n = min(mx, len(iss[c]) - 1 - max(idx)); done[c] = len(iss[c]) - 1 - n
                    o.append(f'{nm}({n})')
            assert all(x in iss['L'] or x in iss['V'] for x in tag), tag
            if o: a.emit('s_waitcnt ' + ' '.join(o))
            continue
        if k: iss[k].append(tag)
        if ('nox' in DBG and k == 'V') or ('nomfma' in DBG and 'mfma' in txt) or not txt: continue
        a.emit(txt)
    if int(ENV('ST2', '99')) >= N: stamp(a, 2)
    a.emit(f's_mov_b32 s3, {16*2048}' if kind == 'wo' else 's_lshl_b32 s3, s7, 4')
    a.emit('s_mov_b32 s10, 0x3f803f80')
    a.emit('s_nop 4')
    for jm in range(2):
        for p in range(2):
            d = D + (jm * 2 + p) * 4
            for q in range(2):
                c = acc(2 * p + q, jm); g = acc(2 * p + q, jm, 0)
                if P1:
                    for h in range(2): a.emit(f'v_pk_add_f32 v[{c+2*h}:{c+2*h+1}], v[{c+2*h}:{c+2*h+1}], v[{g+2*h}:{g+2*h+1}]')
                a.emit(f'v_cvt_pk_bf16_f32 v{d+2*q}, v{c}, v{c+1}')
                a.emit(f'v_cvt_pk_bf16_f32 v{d+2*q+1}, v{c+2}, v{c+3}')
            a.emit('s_nop 1')
            a.emit(f'v_permlane16_swap_b32 v{d}, v{d+2}')
            a.emit(f'v_permlane16_swap_b32 v{d+1}, v{d+3}')
            a.emit(f'buffer_store_dwordx4 v[{d}:{d+3}], v{VO}, s[{SO}:{SO+3}], {"s3" if jm else "0"} offen offset:{p*PSTEP}{stf(kind)}')
            if kind == 'w2' and 'attn' in OT: a.emit(f'ds_write_b128 v{4+p}, v[{d}:{d+3}] offset:{jm*2048}')
            if kind == 'wo' and 'w1' in OT: a.emit(f'ds_write_b128 v{VE}, v[{d}:{d+3}] offset:{jm*2048+p*1024}')
    for jm in range(2):
        for i in range(8):
            d = D + jm * 8 + i
            a.emit(f'v_dot2_f32_bf16 v{20+jm}, v{d}, s10, v{20+jm}')
            a.emit(f'v_dot2_f32_bf16 v{22+jm}, v{d}, v{d}, v{22+jm}')
    a.emit('s_nop 2')
    a.emit('v_permlane32_swap_b32 v20, v21')
    a.emit('v_permlane32_swap_b32 v22, v23')
    a.emit('v_add_f32 v20, v20, v21')
    a.emit('v_add_f32 v22, v22, v23')
    a.emit('s_nop 1')
    a.emit('v_permlane16_swap_b32 v20, v22')
    a.emit('v_add_f32 v20, v20, v22')
    a.emit(f'buffer_store_dword v20, v18, s[{ST}:{ST+3}], 0 offen{stf(kind)}')
    compute_end(a, kind)
    if P1 and DX == 1:
        a.label(f'L_{kind}_xrt')
        a.emit('s_mov_b32 s6, 0x40000')
        a.label(f'L_{kind}_xrl')
        for i in range(4): a.emit(xld(i))
        a.emit('s_sub_u32 s6, s6, 1')
        a.emit('s_waitcnt vmcnt(0)')
        a.emit(f's_cbranch_scc1 L_{kind}_xok')
        for y in vmax(VE, GI): a.emit(y)
        a.emit(f's_cbranch_vccnz L_{kind}_xrl')
        a.emit(f's_branch L_{kind}_xok')
    a.label(f'L_{kind}_loader')
    VT = 16
    if ENV('LPRIO'): a.emit(f"s_setprio {ENV('LPRIO')}")
    if kind == 'wo':
        if LSTK == 'wo': lstamp(a, 0)
        import sides
        dep_pre(a, kind, 0)
        a.emit(f's_cmp_lg_u32 s{S_LAYER}, 0')
        a.emit(f's_cbranch_scc1 L_{kind}_nofirst')
        sides.qkv(a, 0, 'finish', 1)
        a.label(f'L_{kind}_nofirst')
    L = Loader(a, kind, K, lda2, ldw2, [0], 128, 2, 8192, xblk=True)
    L.panels_of = lambda t: [f's{S_XD}'] if t < 2 * P1 and not t & 1 else [0]
    if ot: ktab_ot(a, VT, 17, S_TB)
    else: ktab(a, VT, 17, P1, P2, S_TB)
    a.emit(f's_add_u32 s9, s{S_WV}, s{S_MT}')
    a.emit('s_and_b32 s9, s9, 3')
    a.emit(f's_lshl_b32 s{S_WD}, s9, 11')
    a.emit('v_and_b32 v10, 7, v1')
    if 'wsm' in DBG:
        a.emit(f's_and_b32 s11, s{S_NT}, 1')
        wvoff(a, L.VWD, 9, 11, ldw2)
    elif 'noslow2' in DBG:
        a.emit(f's_bitcmp1_b32 0x0c0c, s{S_NT}')
        a.emit('s_cselect_b32 s11, 2, 0')
        a.emit(f's_add_u32 s11, s11, s{S_NT}')
        wvoff(a, L.VWD, 9, 11, ldw2)
    else: wvoff(a, L.VWD, 9, S_NT, ldw2)
    if kind == 'wo': srd(a, SW, 'wo', 0, 2 * MB)
    else:
        srd(a, SW, 'w2', 0, 3584 * 2048)
        a.emit(f's_bitcmp1_b32 s{S_NT}, 0')
        a.emit(f's_mov_b32 s{S_XD}, 128')
        a.emit(f's_cselect_b32 s{S_XD}, -128, s{S_XD}')
    NPF = int(ENV('NPF' + kind[1].upper(), '10'))
    assert NPRE - NPF <= 18
    seq = []
    def em(o):
        for x in o:
            if ('nodma' in DBG or ('nodma2' in DBG and len(seq) >= 40)) and x.endswith(' lds'): continue
            a.emit(x)
    def after(t): return len(seq) - 1 - max(i for i, x in enumerate(seq) if x == t)
    NPK = int(ENV('NPK', '0')) if P1 else 0
    PK0 = int(ENV('PK0', '20')); PKA = int(ENV('PKA', '0'))
    PKD = int(ENV('PKD', '1'))
    pks = [t for t in range(PK0, N) if ((t - PK0) >> 1) % PKD == 0][:NPK]
    pkr = lambda t: 256 - 8 * NPK + 8 * pks.index(t)
    assert 256 - 8 * NPK >= 48
    if NPK:
        a.emit(f'v_lshl_add_u32 v20, v1, 4, s{S_WD}')
        a.emit('v_add_u32 v21, 0x10000, v20')
        a.emit('v_add_u32 v22, 0x20000, v20')
    lastk = [None]
    def kw(t):
        x = t >> 1 if t < 2 * P1 else t - P1
        if lastk[0] != x: a.emit(f'v_readlane_b32 s{S_KW}, v{VT}, {x}')
        lastk[0] = x
    def pk(t):
        kw(t)
        a.emit(f's_add_u32 s4, s{S_KW}, {L.panels_of(t)[0]}')
        for i in range(2): a.emit(f'buffer_load_dwordx4 v[{pkr(t)+4*i}:{pkr(t)+4*i+3}], v{L.VWD+i}, s[{SW}:{SW+3}], s4 offen')
        seq.extend([('P', t)] * 2)
    vmdone = [-1]
    def iw(t):
        if t in pks:
            i = max(i for i, x in enumerate(seq) if x == ('P', t))
            if i > vmdone[0]:
                a.emit(f's_waitcnt vmcnt({min(63, len(seq) - 1 - i)})'); vmdone[0] = i
            for i in range(0 if 'nopw' in DBG else 2): a.emit(f'ds_write_b128 v{20+(slot(t)>>16)}, v[{pkr(t)+4*i}:{pkr(t)+4*i+3}] offset:{(slot(t)&65535)+1024*i}')
            return
        kw(t)
        em(L.issue_w(t, S_WD, slot(t)))
        seq.extend([t] * 2)
    if kind == LSTK == 'wo': lstamp(a, 1)
    CW = [int(x) for x in ENV('CW', '0').split(',')] if P1 else []
    cwk = list(range(NPRE // 2, P1)) + list(range(2 * P1, N)); cwn = [0]
    if sum(CW):
        srd(a, SR, 'w2', 0, 3584 * 2048)
        a.emit(f's_and_b32 s3, s{S_WV}, 3')
        a.emit(f's_lshl2_add_u32 s3, s{S_CU}, s3')
        a.emit('s_lshl_b32 s4, s3, 6')
        a.emit('s_and_b32 s4, s4, 64')
        a.emit('s_lshr_b32 s3, s3, 1')
        a.emit('s_lshl_b32 s3, s3, 11')
        a.emit('s_add_u32 s3, s3, s4')
        a.emit(f's_sub_u32 s4, 384, s{SW}')
        a.emit('s_and_b32 s4, s4, 0x380')
        a.emit(f's_add_u32 s{S_Q}, s3, s4')
        a.emit(f's_bitcmp1_b32 s{S_NT}, 0')
        a.emit(f's_cselect_b32 s3, {P1 << 17}, 0')
        a.emit(f's_add_u32 s{S_T}, s{S_Q}, s3')
        a.emit('s_lshr_b32 s4, s4, 7')
        a.emit(f's_xor_b32 s4, s4, s{S_NT}')
        a.emit('s_bitcmp1_b32 s4, 0')
        a.emit(f's_cselect_b32 s{SR+2}, 0, s{SR+2}')
    def cw(j):
        for k in cwk[cwn[0]:cwn[0] + (CW[j] if j < len(CW) else 0)]:
            a.emit(f's_add_u32 s3, s{S_T if k < P1 else S_Q}, {k << 17}')
            for i in range(2): a.emit(f's_buffer_load_dword s84, s[{SW if k < P1 else SR}:{(SW if k < P1 else SR)+3}], s3 offset:{1024*i}')
            cwn[0] += 1
    def clr(w):
        if DX != 1 or P1 or w != ENV('CLP', 'e'): return
        srd(a, SP, 'ws', WS_XP, 4 * MB)
        a.emit(f's_and_b32 s5, s{S_WV}, 3')
        a.emit(f's_lshl4_add_u32 s6, s{S_MT}, s{S_NT}')
        a.emit('s_lshl2_add_u32 s6, s6, s5')
        a.emit('s_lshl_b32 s6, s6, 12')
        a.emit('s_setprio 3')
        a.emit('v_lshlrev_b32 v3, 4, v1')
        for i in range(4): a.emit(f'v_mov_b32 v{24+i}, -1')
        for i in range(4): a.emit(f'buffer_store_dwordx4 v[24:27], v3, s[{SP}:{SP+3}], s6 offen offset:{1024*i} sc1')
        a.emit('s_setprio 0')
        seq.extend(['C'] * 4)
    clr('a')
    for t in range(NPRE - NPF): iw(t)
    clr('b')
    PTH = ENV('PTH', '')
    for t in pks[:NPK - PKA]:
        pk(t)
        if PTH: a.emit(f's_waitcnt vmcnt({PTH})')
    cw(0)
    if kind == 'wo': dep_pre(a, kind, 1, len(seq))
    N2 = NPRE - NPF; pref = None
    if SPC:
        N2 = max(N2, int(ENV('N2', '0')), bars[1] + 2); NPRE = int(ENV('N3', '20'))
        assert NPRE <= TF + 21
        def pref():
            a.emit('s_mov_b32 s5, s3')
            if TF >= 0:
                a.emit(f's_waitcnt vmcnt({after(TF + 1)})')
                a.emit('s_barrier')
            for t in range(len(seq) // 2, N2): iw(t)
            a.emit('s_mov_b32 s3, s5')
            a.emit(f's_waitcnt vmcnt({after(bars[1] + 1)})')
    def postf():
        for t in range(N2, NPRE):
            if ot and slot(t) == OHB:
                a.emit(f's_waitcnt vmcnt({after(bars[0] + 1)})')
                a.emit('s_barrier')
            iw(t)
        for t in pks[NPK - PKA:]: pk(t)
    dep_wait(a, kind, skip_first=kind == 'wo', preg=lambda: a.emit(f's_waitcnt vmcnt({min(after(bars[2 if SPC else 1 if ot else 0] + 1), 63)}) lgkmcnt(0)'),
             postf=postf, pref=pref, defer=bool(SPC))
    nxt = NPRE
    reg = bars[:bars.index(XS)] if P1 and not DX else bars
    clr('g')
    for j, t in enumerate(reg):
        if (SPC or ot) and j < 1: continue
        lim = min(N, (reg[j - 1] if j else -1) + 21)
        PP = int(ENV('PP', '2'))
        pp = min(lim - 1, nxt + PP) if SPC and t == TG else -1
        while nxt < lim:
            if nxt == pp: dep_late(a, kind, 0); seq.append('F')
            iw(nxt); nxt += 1
            if nxt - 1 in pks: a.emit('s_waitcnt lgkmcnt(0)')
            elif nxt < lim: a.emit(f"s_waitcnt vmcnt({ENV('LTHR', '4')})")
        cw(j + 1)
        clr(str(j))
        need = [min(N - 1, bars[j + 1] + 1)] if j + 1 < len(bars) else []
        assert all(t < nxt for t in need)
        need = [max(x for x in range(t + 1) if x not in pks) for t in need]
        if P1 and not DX and j == len(reg) - 1:
            srd(a, SP, 'ws', WS_XP, 8 * MB)
            srd(a, SC, 'ws0', WS_FL, FLS)
            a.emit(f's_and_b32 s5, s{S_WV}, 3')
            a.emit(f's_lshl4_add_u32 s6, s{S_MT}, s{S_NT}')
            a.emit('s_lshl2_add_u32 s6, s6, s5')
            a.emit(f's_mul_i32 s8, s6, {CH}')
            a.emit('s_add_u32 s9, s8, 4096')
            a.emit(f's_add_u32 s7, s{S_LAYER}, 4')
            a.emit('s_lshl_b32 s7, s7, 10')
            a.emit('s_add_u32 s6, s6, s7')
            a.emit('s_lshl_b32 s6, s6, 6')
            a.emit('s_xor_b32 s7, s6, 256')
            a.emit(f's_mul_i32 s5, s5, {CH}')
            a.emit(f's_add_u32 s5, s5, {XB}')
            a.emit('v_lshlrev_b32 v3, 4, v1')
            a.emit('v_add_u32 v2, s5, v3')
            a.emit('v_mov_b32 v4, 1')
            a.emit(f's_mov_b32 s{S_CNT}, 0x100000')
        if pp >= 0: dep_late(a, kind, 1, after('F'))
        if P1 and DX == 2 and t == XS:
            srd(a, SC, 'ws0', WS_FL, FLS)
            a.emit(f's_lshl4_add_u32 s6, s{S_MT}, s{S_NT}')
            a.emit('s_xor_b32 s6, s6, 1')
            a.emit(f's_add_u32 s7, s{S_LAYER}, 4')
            a.emit('s_lshl_b32 s7, s7, 8')
            a.emit('s_add_u32 s6, s6, s7')
            a.emit('s_lshl_b32 s6, s6, 8')
            a.emit('v_and_b32 v2, 3, v1')
            a.emit('v_lshlrev_b32 v2, 6, v2')
            a.emit(f's_mov_b32 s{S_CNT}, 0x100000')
        if P1 and DX == 2 and t == ZS:
            a.emit(f's_cmp_lg_u32 s{S_WV}, 4')
            a.emit(f's_cbranch_scc1 L_{kind}_xgo')
            a.emit('s_setprio 3')
            a.label(f'L_{kind}_xpoll')
            a.emit(f'buffer_load_dword v5, v2, s[{SC}:{SC+3}], s6 offen sc1')
            a.emit(f's_sub_u32 s{S_CNT}, s{S_CNT}, 1')
            a.emit(f's_cbranch_scc1 L_{kind}_xgo')
            a.emit('s_waitcnt vmcnt(0)')
            a.emit('v_cmp_ne_u32 vcc, 1, v5')
            a.emit(f's_cbranch_vccnz L_{kind}_xpoll')
            a.label(f'L_{kind}_xgo')
            a.emit('s_setprio 0')
        a.emit(f's_waitcnt vmcnt({min(63, min(after(t) for t in need)) if need else 0})')
        a.emit('s_barrier')
    assert nxt == N and (ENV('LATE_W1', '2') == '2' or (kind == 'w2' or bars[-1] >= 9) and 'w1' in OT) and ENV('LATE_ATTN', '2') == '2'
    clr('e')
    if not P1: a.emit('s_waitcnt vmcnt(0)')
    if P1 and not DX:
        XL = ENV('LST') == 'x'
        a.emit('s_setprio 3')
        a.emit('s_waitcnt vmcnt(0) lgkmcnt(0)')
        a.emit('s_barrier')
        for i in range(NXC): a.emit(f'ds_read_b128 v[{32+4*i}:{35+4*i}], v2 offset:{1024*i}')
        for i in range(NXC):
            a.emit(f's_waitcnt lgkmcnt({NXC-1-i})')
            if 'noxs' not in DBG: a.emit(f'buffer_store_dwordx4 v[{32+4*i}:{35+4*i}], v3, s[{SP}:{SP+3}], s{8+(i>>2)} offen offset:{1024*(i&3)} sc1')
        if XL: lstamp(a, 0)
        a.emit(f's_xor_b32 s8, s8, {4*CH}')
        a.emit(f's_xor_b32 s9, s9, {4*CH}')
        a.emit('s_mov_b64 exec, 1')
        a.emit('s_waitcnt vmcnt(0)')
        a.emit(f'buffer_store_dword v4, off, s[{SC}:{SC+3}], s6 sc1')
        if XL: lstamp(a, 1)
        if PS: a.emit('s_barrier')
        if 'nopoll' in DBG: a.emit(f's_branch L_{kind}_xgo')
        a.label(f'L_{kind}_xpoll')
        a.emit(f'buffer_load_dword v5, off, s[{SC}:{SC+3}], s7 sc1')
        a.emit(f's_sub_u32 s{S_CNT}, s{S_CNT}, 1')
        a.emit(f's_cbranch_scc1 L_{kind}_xgo')
        a.emit('s_waitcnt vmcnt(0)')
        a.emit('v_cmp_ne_u32 vcc, 1, v5')
        a.emit(f's_cbranch_vccnz L_{kind}_xpoll')
        a.label(f'L_{kind}_xgo')
        a.emit('s_mov_b64 exec, -1')
        a.emit('s_mov_b32 m0, s5')
        if XL: lstamp(a, 2)
        for i in range(NXC):
            if i == 4: a.emit('s_add_u32 m0, s5, 4096')
            if not i & 3: a.emit('s_nop 0')
            if 'noxl' not in DBG: a.emit(f'buffer_load_dwordx4 v3, s[{SP}:{SP+3}], s{8+(i>>2)} offen offset:{1024*(i&3)} lds')
        a.emit('s_waitcnt vmcnt(0)')
        if XL: lstamp(a, 3)
        a.emit('s_setprio 0')
        a.emit('s_barrier')
    loader_end(a, kind)
    a.label(end)
    a.emit('s_endpgm')
    loader_first(a, kind)
    if SPC:
        i = a.lines.index(f'  s_cbranch_scc1 L_{kind}_compute')
        del a.lines[i - 1:i + 1]
    a.label(f'L_{kind}_c1')
    return 163840
```

```python
from common import *

T4 = ENV('T4', '1') == '1'
OBAR = ENV('OBAR', '0') == '1'
def big_loop(a, tag, N, S, STAGE, naddr, VB, VA, reads, mf, variants=None, select=None, post=None, ot=None, mid=(), halo=None, hooks=None):
    def addr():
        o = [f'v_add_u32_e64 v{VA+i}, s{S_SLOT}, v{VB+i}' for i in range(naddr)]
        o += [f's_add_u32 s{S_SLOT}, s{S_SLOT}, {STAGE}', f's_cmp_eq_u32 s{S_SLOT}, {S*STAGE}', f's_cselect_b32 s{S_SLOT}, 0, s{S_SLOT}']
        return o
    a.emit(f's_mov_b32 s{S_SLOT}, 0')
    for x in addr(): a.emit(x)
    if halo:
        if hooks: own_pos(a, S_CNT)
        else: a.emit(f's_mov_b32 s{S_CNT}, {N}')
        if hooks: a.emit(f's_mul_i32 s{S_T}, s{S_LAYER}, {len(hooks)}')
        a.emit(f's_cmp_eq_u32 s{S_LAYER}, 0')
        a.emit(f's_cbranch_scc1 L_{tag}_nog')
    a.emit(f's_mov_b32 s{S_CNT}, {N - 1 if ot else N}')
    if ot:
        rd = (lambda s, ks: reads(s, ks, False)) if halo else reads
        for x in rd(0, 0): a.emit(x)
        a.emit('s_waitcnt lgkmcnt(0)')
        interleave(a, ot(0), rd(1, 1) + addr(), lead=1, per=1)
        a.emit('s_waitcnt lgkmcnt(0)')
        for x in ot(1): a.emit(x)
    if halo:
        a.emit('s_barrier')
        for x in halo[0]: a.emit(x)
        a.label(f'L_{tag}_nog')
    else:
        import pads
        for x in pads.chain('hv'): a.emit(x)
        gbar(a, tag)
    a.lines += mid
    if halo: a.emit(f's_cmp_eq_u32 s{S_LAYER}, 0')
    a.emit('s_barrier')
    stamp(a, 1)
    if halo:
        a.emit(f's_cbranch_scc1 L_{tag}_first')
        for x in halo[1] + reads(0, 0): a.emit(x)
        a.emit('s_waitcnt lgkmcnt(15)')
        for x in halo[2]: a.emit(x)
        a.emit('s_waitcnt lgkmcnt(0)')
        a.emit(f's_branch L_{tag}_loop')
        a.label(f'L_{tag}_first')
        if not DS: a.emit(f's_load_dwordx2 s[{SC}:{SC+1}], s[0:1], 72')
    for x in reads(0, 0): a.emit(x)
    a.emit('s_waitcnt lgkmcnt(0)')
    def loop(nm, m):
        a('.p2align 3')
        a.label(f'L_{tag}_loop{nm}')
        ad = addr()
        ad[-1] += f'\n  s_sub_u32 s{S_CNT}, s{S_CNT}, 1'
        interleave(a, m(0), reads(1, 1) + ad, lead=1, per=1)
        a.emit('s_waitcnt lgkmcnt(0)')
        a.emit('s_barrier')
        interleave(a, m(1), reads(0, 0) + [f's_cmp_lg_u32 s{S_CNT}, 0\n  s_nop 0'], lead=1, per=1)
        a.emit('s_waitcnt lgkmcnt(0)')
        a.emit(f's_cbranch_scc1 L_{tag}_loop{nm}')
    if variants:
        select()
        vs = list(variants.items())
        for i, (nm, m) in enumerate(vs):
            loop(nm, m)
            if i + 1 < len(vs): a.emit(f's_branch L_{tag}_post')
        a.label(f'L_{tag}_post')
        post()
        a.emit(f's_branch L_{tag}_exit')
    if hooks and PO0 == 0:
        a.emit(f's_cmp_eq_u32 s{S_CNT}, 0')
        a.emit(f's_cbranch_scc1 L_{tag}_lend')
    loop('', mf)
    a.label(f'L_{tag}_lend')
    if hooks:
        a.emit(f's_add_u32 s{S_T}, s{S_T}, 1')
        a.emit(f's_cmp_gt_u32 s{S_T}, {len(hooks)}')
        a.emit(f's_cbranch_scc1 L_{tag}_exit')
        for i, (t, code) in enumerate(hooks):
            if i + 1 < len(hooks):
                a.emit(f's_cmp_lg_u32 s{S_T}, {i + 1}')
                a.emit(f's_cbranch_scc1 L_{tag}_hook{i}')
            t2 = hooks[i + 1][0] if i + 1 < len(hooks) else N
            if t < 0 <= t2:
                own_pos(a, S_CNT)
                a.emit(f's_sub_u32 s{S_CNT}, {t2 + t + 1}, s{S_CNT}')
                assert t2 + t + 1 > PO0 + POM
            else: a.emit(f's_mov_b32 s{S_CNT}, {abs(t2 - t)}')
            for x in code: a.emit(x)
            a.emit(f's_branch L_{tag}_loop')
            if i + 1 < len(hooks): a.label(f'L_{tag}_hook{i}')
    a.label(f'L_{tag}_exit')
    stamp(a, 2)

def stats_loads(a, vd, halo):
    a.emit(f's_and_b32 s3, s{S_WV}, 3')
    a.emit(f's_lshl_b32 s4, s{S_MT}, 7')
    a.emit('s_lshl_b32 s5, s3, 6')
    a.emit('s_add_u32 s5, s5, s4')
    a.emit('v_add_u32 v2, s5, v1')
    a.emit('s_sub_u32 s4, s4, 16')
    a.emit('v_and_b32 v3, 15, v1')
    a.emit('v_add_u32 v3, s4, v3')
    a.emit('v_max_i32 v3, 0, v3')
    a.emit('s_cmp_ge_u32 s3, 2')
    a.emit('s_cselect_b64 vcc, -1, 0')
    a.emit('v_cndmask_b32 v2, v2, v3, vcc')
    a.emit('v_lshlrev_b32 v2, 3, v2')
    a.emit('s_mov_b32 s3, 0')
    for j in range(16):
        a.emit(f'buffer_load_dwordx2 v[{vd+2*j}:{vd+2*j+1}], v2, s[{ST}:{ST+3}], s3 offen')
        if j < 15: a.emit('s_add_u32 s3, s3, 16384')
    return 16

def stats_finish(a, vs):
    a.emit(f'v_mul_f32 v{vs}, 0x3a800000, v{vs}')
    a.emit(f'v_mul_f32 v{vs+1}, 0x3a800000, v{vs+1}')
    a.emit(f'v_fma_f32 v{vs+1}, -v{vs}, v{vs}, v{vs+1}')
    a.emit(f'v_max_f32 v{vs+1}, 0, v{vs+1}')
    a.emit(f'v_add_f32 v{vs+1}, 0x3727c5ac, v{vs+1}')
    a.emit(f'v_rsq_f32 v{vs+1}, v{vs+1}')
    a.emit('s_nop 0')

def stats_reduce_store(a, vd, LST):
    for j in range(1, 8):
        a.emit(f'v_add_f32 v{vd}, v{vd}, v{vd+2*j}')
        a.emit(f'v_add_f32 v{vd+1}, v{vd+1}, v{vd+2*j+1}')
        a.emit(f'v_add_f32 v{vd+16}, v{vd+16}, v{vd+16+2*j}')
        a.emit(f'v_add_f32 v{vd+17}, v{vd+17}, v{vd+17+2*j}')
    a.emit(f'v_add_f32 v{vd}, v{vd}, v{vd+16}')
    a.emit(f'v_add_f32 v{vd+1}, v{vd+1}, v{vd+17}')
    stats_finish(a, vd)
    a.emit(f's_and_b32 s3, s{S_WV}, 3')
    a.emit('s_lshl_b32 s5, s3, 6')
    a.emit('s_add_u32 s5, s5, 16')
    a.emit('v_add_u32 v2, s5, v1')
    a.emit('v_and_b32 v3, 15, v1')
    a.emit('s_cmp_ge_u32 s3, 2')
    a.emit('s_cselect_b64 vcc, -1, 0')
    a.emit('v_cndmask_b32 v2, v2, v3, vcc')
    a.emit('v_lshlrev_b32 v2, 2, v2')
    a.emit(f'v_add_u32 v2, {LST}, v2')
    a.emit(f'ds_write2_b32 v2, v{vd}, v{vd+1} offset0:0 offset1:160')

VST, VSH, VCS, VBI = 18, 19, 22, 23
def stats4_setup(a, halo):
    a.emit(f's_and_b32 s3, s{S_WV}, 3')
    a.emit(f's_lshl2_add_u32 s4, s{S_MT}, s3')
    a.emit('s_lshl_b32 s4, s4, 8')
    a.emit('v_lshrrev_b32 v2, 4, v1')
    a.emit('v_and_b32 v3, 15, v1')
    a.emit('v_lshl_add_u32 v3, v3, 4, s4')
    a.emit(f'v_lshl_add_u32 v{VST}, v2, 14, v3')
    if halo:
        a.emit(f's_lshl_b32 s4, s{S_MT}, 5')
        a.emit('s_add_u32 s4, s4, s3')
        a.emit('s_sub_u32 s4, s4, 4')
        a.emit('s_max_i32 s4, s4, 0')
        a.emit('s_lshl_b32 s4, s4, 5')
        a.emit('v_lshrrev_b32 v2, 2, v1')
        a.emit('v_and_b32 v3, 3, v1')
        a.emit('v_lshl_add_u32 v3, v3, 3, s4')
        a.emit(f'v_lshl_add_u32 v{VSH}, v2, 14, v3')

def quad_loads(vd, vo, sd):
    o = []
    for j in range(4):
        if j: o.append(f's_mov_b32 s3, {j << 16}')
        o.append(f'buffer_load_dwordx4 v[{vd+4*j}:{vd+4*j+3}], v{vo}, s[{sd}:{sd+3}], {"s3" if j else 0} offen')
    return o

def stats4_loads(vd, halo):
    return quad_loads(vd, VST, ST) + ([f'buffer_load_dwordx2 v[{vd+16}:{vd+17}], v{VSH}, s[{ST}:{ST+3}], 0 offen'] if halo else [])

def quad_sum(a, vd):
    pk = lambda d, s: a.emit(f'v_pk_add_f32 v[{d}:{d+1}], v[{d}:{d+1}], v[{s}:{s+1}]')
    pk(vd, vd + 4); pk(vd + 2, vd + 6); pk(vd + 8, vd + 12); pk(vd + 10, vd + 14); pk(vd, vd + 8); pk(vd + 2, vd + 10)
    a.emit('s_nop 1')
    a.emit(f'v_permlane32_swap_b32 v{vd}, v{vd+2}')
    a.emit(f'v_permlane32_swap_b32 v{vd+1}, v{vd+3}')
    pk(vd, vd + 2)

def stats4_store(a, vd, LST, halo, chk=None):
    quad_sum(a, vd)
    if chk: chk()
    def allsum(r, op):
        a.emit(f'v_mov_b32 v{r+2}, v{r}')
        a.emit(f'v_mov_b32 v{r+3}, v{r+1}')
        a.emit('s_nop 0')
        a.emit(f'v_permlane{op}_swap_b32 v{r}, v{r+2}')
        a.emit(f'v_permlane{op}_swap_b32 v{r+1}, v{r+3}')
        a.emit(f'v_pk_add_f32 v[{r}:{r+1}], v[{r}:{r+1}], v[{r+2}:{r+3}]')
    allsum(vd, 16)
    stats_finish(a, vd)
    a.emit(f's_and_b32 s3, s{S_WV}, 3')
    a.emit('s_lshl_b32 s5, s3, 7')
    a.emit(f's_add_u32 s5, s5, {LST + 64}')
    a.emit('v_and_b32 v3, 15, v1')
    a.emit('v_lshrrev_b32 v2, 5, v1')
    a.emit('v_lshl_add_u32 v2, v3, 1, v2')
    a.emit('v_lshl_add_u32 v2, v2, 2, s5')
    a.emit(f'ds_write2_b32 v2, v{vd}, v{vd+1} offset0:0 offset1:160')
    if halo:
        h = vd + 16
        allsum(h, 32); allsum(h, 16)
        for r in (8, 4):
            a.emit('s_nop 1')
            for i in range(2): a.emit(f'v_add_f32_dpp v{h+i}, v{h+i}, v{h+i} row_ror:{r} row_mask:0xf bank_mask:0xf')
        stats_finish(a, h)
        a.emit('s_lshl_b32 s5, s3, 4')
        a.emit(f's_add_u32 s5, s5, {LST}')
        a.emit('v_and_b32 v3, 3, v1')
        a.emit('v_lshl_add_u32 v2, v3, 2, s5')
        a.emit(f'ds_write2_b32 v2, v{h}, v{h+1} offset0:0 offset1:160')

def gen_w1(a, tsidx, side, cs=(16, 16384, 0)):
    kind = 'w1'
    K = 1024; lda2 = 2048; ldw2 = 7168; ldo2 = 7168
    ot = kind in OT
    S = 3; LM = int(ENV('LM_W1', '2' if ot else '3'))
    STAGE = 16384 + 4 * 8192
    o2 = 'w2' in OT
    assert LM == 2 or not o2
    LST = OHB - 4096 if o2 else S * STAGE
    LCS = LST + 1280
    N = 16
    body = f'L_{kind}_body'; end = f'L_{kind}_end'
    VB, VA, VO = 4, 20, 12
    F = [32, 80]; ACC = 128
    acc = lambda jn, jm: ACC + (jn * 4 + jm) * 4
    fx = lambda s, jm: F[s] + jm * 4
    fw = lambda s, jn: F[s] + 16 + jn * 4
    a.label(f'L_{kind}_c0')
    if not MEGA: stub(a, f'{kind}l0_kernel', body, 0, tsidx, True)
    a.label(body)
    tile_map(a, LM, end)
    a.emit(f's_cmp_ge_u32 s{S_WV}, 4')
    a.emit(f's_cbranch_scc1 L_{kind}_loader')
    if ot and OBAR: a.emit('s_barrier')
    if NV:
        from gemm64y import w2_pre, w2_early
        w2_pre(a)
        tile_map(a, LM, None)
    a.emit(f's_and_b32 s{S_WM}, s{S_WV}, 1')
    a.emit(f's_lshr_b32 s{S_WN}, s{S_WV}, 1')
    a.emit('v_and_b32 v3, 15, v1')
    a.emit('v_lshrrev_b32 v2, 4, v1')
    a.emit(f's_lshl_b32 s8, s{S_WM}, 13')
    a.emit(f'v_lshl_add_u32 v{VB}, v1, 4, s8')
    wbase(a, 13, 17)
    a.emit(f's_lshl_b32 s9, s{S_WN}, 6')
    a.emit('v_xor_b32 v13, s9, v13')
    a.emit(f'v_add_u32 v{VB+1}, 16384, v13')
    a.emit(f'v_xor_b32 v{VB+2}, 32, v{VB+1}')
    a.emit('v_and_b32 v16, 1, v2')
    a.emit('v_lshrrev_b32 v17, 1, v2')
    a.emit('v_bfe_u32 v13, v1, 2, 2')
    a.emit('v_lshl_add_u32 v13, v16, 3, v13')
    a.emit('v_lshl_add_u32 v13, v17, 5, v13')
    a.emit(f'v_xor_b32 v14, s{S_WN}, v16')
    a.emit('v_lshl_add_u32 v13, v13, 1, v14')
    a.emit('v_and_b32 v14, 3, v1')
    a.emit('v_lshl_add_u32 v13, v13, 2, v14')
    a.emit('v_lshlrev_b32 v13, 3, v13')
    a.emit(f'v_add_u32 v{VB+3}, {16384 + 3 * 8192}, v13')
    i0 = len(a.lines)
    a.emit(f's_lshl_b32 s8, s{S_MT}, 7')
    a.emit(f's_lshl_b32 s9, s{S_WM}, 6')
    a.emit('s_add_u32 s8, s8, s9')
    a.emit(f's_mul_i32 s8, s8, {ldo2}')
    a.emit('v_lshlrev_b32 v14, 8, v17')
    a.emit('v_lshl_add_u32 v14, v3, 4, v14')
    if o2:
        a.emit(f's_lshl3_add_u32 s9, s{S_WM}, s{S_WN}')
        a.emit('s_lshl_b32 s9, s9, 10')
        a.emit(f's_add_u32 s9, s9, {OHB}')
        a.emit('v_lshl_add_u32 v18, v16, 9, v14')
        a.emit('v_add_u32 v18, s9, v18')
        srd(a, SB, 'b2', 0, 2048)
        a.emit(f's_lshr_b32 s9, s{S_NT}, 3')
        a.emit(f's_and_b32 s10, s{S_NT}, 7')
        a.emit('s_lshl1_add_u32 s9, s10, s9')
        a.emit('s_lshl_b32 s9, s9, 7')
        a.emit('v_lshl_add_u32 v19, v2, 3, s9')
    a.emit('v_add_u32 v14, s8, v14')
    a.emit(f's_lshl_b32 s10, s{S_NT}, 11')
    a.emit(f's_lshl_b32 s9, s{S_WN}, 10')
    a.emit('s_add_u32 s9, s9, s10')
    a.emit(f'v_lshl_add_u32 v{VO}, v16, 9, v14')
    a.emit(f'v_add_u32 v{VO}, s9, v{VO}')
    a.emit(f'v_mul_u32_u24 v16, {16*ldo2}, v16')
    a.emit('s_lshr_b32 s9, s9, 1')
    a.emit(f'v_add3_u32 v{VO+1}, v16, v14, s9')
    a.emit(f's_lshl_b32 s9, s{S_WM}, 8')
    a.emit(f's_add_u32 s9, s9, {LST + 64}')
    a.emit('v_lshl_add_u32 v14, v3, 2, s9')
    a.emit(f's_lshl_b32 s9, s{S_WN}, 7')
    a.emit(f's_add_u32 s9, s9, {LCS}')
    a.emit('v_lshl_add_u32 v15, v2, 4, s9')
    a.emit(f's_lshl_b32 s9, s{S_WN}, 6')
    a.emit(f's_add_u32 s9, s9, {LCS}')
    a.emit('v_lshl_add_u32 v16, v2, 4, s9')
    for i in range(0 if ot else 112): a.emit(f'v_mov_b32 v{ACC+i}, 0')
    if not MEGA: a.emit('s_waitcnt lgkmcnt(0)')
    srd(a, SO, 'ws', WS_H, 2048 * 7168)
    if not ot: code_touch(a, 'L_w2_c0', 'L_w2_c1', 192 if SPX else 128)
    mid = []
    if ot: mid = a.lines[i0:]; del a.lines[i0:]
    def reads(s, ks):
        o = []
        if 'noread' in DBG: return o
        for jm in range(4):
            o.append(f'ds_read_b128 v[{fx(s,jm)}:{fx(s,jm)+3}], v{VA} offset:{jm*2048+ks*1024}')
        for jn in range(7):
            for h in range(2):
                r = fw(s, jn) + 2 * h
                o.append(f'ds_read_b64_tr_b16 v[{r}:{r+1}], v{VA+1+(jn&1 if jn < 6 else 2)} offset:{((jn>>1)*8192+h*512 if jn < 6 else h*256)+ks*4096}')
        return o
    def mf(s):
        o = []
        if 'nomfma' in DBG: return ['s_nop 0']
        for jn, jm in mf_order(7, 4):
            if True:
                c = acc(jn, jm)
                o.append(f'v_mfma_f32_16x16x32_bf16 v[{c}:{c+3}], v[{fw(s,jn)}:{fw(s,jn)+3}], v[{fx(s,jm)}:{fx(s,jm)+3}], v[{c}:{c+3}]')
        return o
    zc = lambda x: x[:x.rindex(',')] + ', 0'
    big_loop(a, kind, N, S, STAGE, 4, VB, VA, reads, mf, ot=(lambda s: mf(1) if s else [zc(x) for x in mf(0)]) if ot else None, mid=mid)
    CS = 32; BI = 60; STT = 88; CK = 96; T = 100; D = 108
    for jm in range(4):
        a.emit(f'ds_read2_b32 v[{STT+2*jm}:{STT+2*jm+1}], v14 offset0:{16*jm} offset1:{160+16*jm}')
    for jn in range(7):
        a.emit(f'ds_read_b128 v[{CS+4*jn}:{CS+4*jn+3}], v{15 if jn < 6 else 16} offset:{(jn>>1)*256+(jn&1)*64}')
        a.emit(f'ds_read_b128 v[{BI+4*jn}:{BI+4*jn+3}], v{15 if jn < 6 else 16} offset:{1024+(jn>>1)*256+(jn&1)*64}')
    for jn in range(4 if o2 else 0):
        a.emit(f'buffer_load_dwordx2 v[{OBIA[jn]}:{OBIA[jn]+1}], v19, s[{SB}:{SB+3}], 0 offen offset:{jn*32}')
    c0 = -2.0 * 0.7978845608028654 * 1.4426950408889634
    c1 = c0 * 0.044715
    a.emit(f'v_mov_b32 v{CK}, {f2u(c0):#x}')
    a.emit(f'v_mov_b32 v{CK+1}, {f2u(c1):#x}')
    a.emit(f'v_mov_b32 v{CK+2}, 1.0')
    a.emit('s_waitcnt lgkmcnt(0)')
    for jm in range(4):
        a.emit(f'v_mul_f32 v{STT+2*jm}, v{STT+2*jm}, v{STT+2*jm+1}')
    def tile_math(jn, jm, d):
        c = acc(jn, jm)
        seqs = []
        ST2 = f'v[{STT+2*jm}:{STT+2*jm+1}]'
        for q in range(2):
            x = c + 2 * q; t = T + 2 * q + 4 * (jn & 1)
            X = f'v[{x}:{x+1}]'; TT = f'v[{t}:{t+1}]'
            seqs.append([
              f'v_pk_fma_f32 {TT}, v[{CS+4*jn+2*q}:{CS+4*jn+2*q+1}], {ST2}, v[{BI+4*jn+2*q}:{BI+4*jn+2*q+1}] op_sel:[0,0,0] op_sel_hi:[1,0,1] neg_lo:[0,1,0] neg_hi:[0,1,0]',
              f'v_pk_fma_f32 {X}, {X}, {ST2}, {TT} op_sel:[0,1,0] op_sel_hi:[1,1,1]',
              f'v_pk_mul_f32 {TT}, {X}, {X}',
              f'v_pk_fma_f32 {TT}, {TT}, v[{CK}:{CK+1}], v[{CK}:{CK+1}] op_sel:[0,1,0] op_sel_hi:[1,1,0]',
              f'v_pk_mul_f32 {TT}, {TT}, {X}',
              f'v_exp_f32 v{t}, v{t}\n  v_exp_f32 v{t+1}, v{t+1}',
              f'v_pk_add_f32 {TT}, {TT}, v[{CK+2}:{CK+3}] op_sel_hi:[1,0]',
              f'v_rcp_f32 v{t}, v{t}\n  v_rcp_f32 v{t+1}, v{t+1}',
              f'v_pk_mul_f32 {X}, {X}, {TT}',
              f'v_cvt_pk_bf16_f32 v{d+q}, v{x}, v{x+1}'])
        for ia, ib in zip(*seqs):
            a.emit(ia); a.emit(ib)
    cnt = [0]
    def pair(t0, t1, vo, soff, big=False):
        d = D + 4 * (cnt[0] % 4); cnt[0] += 1
        tile_math(*t0, d); tile_math(*t1, d + 2)
        a.emit(f's_add_u32 s3, s10, {soff}' if big else f's_mov_b32 s3, {soff}')
        a.emit('s_nop 0')
        a.emit(f'v_permlane16_swap_b32 v{d}, v{d+2}')
        a.emit(f'v_permlane16_swap_b32 v{d+1}, v{d+3}')
        a.emit(f'buffer_store_dwordx4 v[{d}:{d+3}], v{vo}, s[{SO}:{SO+3}], s3 offen{stf(kind)}')
        if o2 and t0[0] < 6: a.emit(f'ds_write_b128 v18, v[{d}:{d+3}] offset:{(t0[0] // 2 + 2) % 3 * 16384 + t0[1] * 2048}')
    pr = lambda p, jm: pair((2 * p, jm), (2 * p + 1, jm), VO, jm * 16 * ldo2 + (46 + 2 * p) * 1024 * (p > 0), p > 0)
    od = lambda jm: pair((6, jm), (6, jm + 1), VO + 1, jm * 16 * ldo2 + 32768)
    order = [lambda jm=jm: pr(0, jm) for jm in range(4)] + [lambda: od(0), lambda: od(2)] + [lambda jm=jm, p=p: pr(p, jm) for jm in range(4) for p in (1, 2)]
    EW = int(ENV('EW', '10'))
    for i, f in enumerate(order):
        f()
        if NV and i + 1 == EX: w2_early(a)
        if EARLY and i + 1 == EW:
            a.emit(f's_waitcnt vmcnt({EW - EARLY // 4})')
            a.emit('s_barrier')
    if ENV('ES'): stamp(a, 1)
    compute_end(a, kind)
    a.label(f'L_{kind}_loader')
    L = Loader(a, kind, K, lda2, ldw2, [0, f's{S_HD}', 's_add_u32 s4, s4, 128'], 128, S, STAGE, rot=int(ENV('ROT_W1', '0')), xblk=True, half=2048)
    L.ot = int(ot)
    L.setup()
    a.emit('s_waitcnt lgkmcnt(0)')
    if ot and ENV('CT2', 'l') == 'l': code_touch(a, 'L_w2_c0', 'L_w2_c1', 192, loader=True)
    srd(a, SX, 'ws', WS_X1, 4 * MB); srd(a, SW, 'w1', 0, 1024 * 7168)
    srd(a, ST, 'ws', WS_ST, 16 * 16384); srd(a, SC, 'ws0', WS_CS, 16 * 16384); srd(a, SB, 'b1', 0, 7168)
    def tail():
        stats_loads(a, 32, False)
        a.emit(f's_lshl_b32 s4, s{S_NT}, 7')
        a.emit(f's_lshl_b32 s5, s{S_WV}, 6')
        a.emit('s_add_u32 s4, s4, s5')
        a.emit(f's_add_u32 s4, s4, {1472 - 256}')
        a.emit(f's_lshl_b32 s5, s{S_NT}, 6')
        a.emit(f's_cmp_eq_u32 s{S_WV}, 4')
        a.emit('s_cselect_b32 s4, s5, s4')
        a.emit('s_lshr_b32 s5, s5, 1')
        a.emit('s_add_u32 s5, s5, 1024')
        a.emit(f's_cmp_eq_u32 s{S_WV}, 7')
        a.emit('s_cselect_b32 s4, s5, s4')
        a.emit('v_add_u32 v3, s4, v1')
        a.emit('v_lshlrev_b32 v2, 2, v3')
        a.emit('v_lshlrev_b32 v3, 1, v3')
        a.emit(f's_mov_b32 s3, {cs[2]}')
        for j in range(16):
            if j < cs[0]:
                a.emit(f'buffer_load_dword v{64+j}, v2, s[{SC}:{SC+3}], s3 offen')
                if j < cs[0] - 1: a.emit(f's_add_u32 s3, s3, {cs[1]}')
            else:
                a.emit(f'v_mov_b32 v{64+j}, 0')
        a.emit(f'buffer_load_ushort v80, v3, s[{SB}:{SB+3}], 0 offen')
        side(a, 'issue')
    ns = side(Asm(), 'issue')
    extra = None
    if VW:
        assert int(ENV('LM_W2', '2')) == 2
        srd(a, SR, 'w2', 0, 3584 * 2048)
        a.emit('s_and_b32 s5, s2, 3')
        a.emit('s_lshl_b32 s5, s5, 2')
        a.emit(f's_and_b32 s6, s{S_CU}, 3')
        a.emit('s_add_u32 s5, s5, s6')
        a.emit('s_and_b32 s6, s2, 4')
        a.emit('s_lshl_b32 s6, s6, 1')
        a.emit(f's_lshr_b32 s7, s{S_CU}, 2')
        a.emit('s_add_u32 s6, s6, s7')
        rot_table(a, S_TB, 5, 6, 'w2')
        a.emit(f's_add_u32 s5, s5, s{S_WV}')
        a.emit('s_and_b32 s5, s5, 3')
        wvoff(a, 16, 5, 6, 2048)
        sched = [int(c) for c in ENV('PSCH', '0111111111111122')]
        assert sum(sched) >= NV1
        def extra(i):
            o = []
            for p in range(sum(sched[:i]), min(NV1, sum(sched[:i + 1]))): o += park(56, 2 * p, 128 + 8 * p, 16, SR)
            return o
        ns += sum(x.startswith('buffer_load') for i in (13, 14, 15) for x in extra(i))
    if XD:
        extra = tail_parks('w2', SR, lambda b: srd(b, SR, 'w2', 0, 3584 * 2048))
        ns += 2 * sum(TSCH['w2'])
    if XD and ENV('PFL', '2') == '3':
        b = Asm(); side(b, 'late'); pl = [l.strip() for l in b.lines]
        pl = [l.replace('v2,', 'v18,').replace(', v2', ', v18').replace('s3', 's93') for l in pl]
        i0 = min(i for i, l in enumerate(pl) if l.startswith('buffer_load'))
        for l in pl[:i0]: a.emit(l)
        st = [int(x) for x in ENV('PFS', '6,10').split(',')]
        extra = lambda i: pl[i0 + 2 * st.index(i):i0 + 2 * st.index(i) + 2] if i in st else []
    def final():
        a.emit(f's_waitcnt vmcnt({ns})')
        if ENV('PFL', '2') == '1': side(a, 'late')
        stats_reduce_store(a, 32, LST)
        for j in range(8): a.emit(f'v_add_f32 v{64+j}, v{64+j}, v{72+j}')
        for j in range(4): a.emit(f'v_add_f32 v{64+j}, v{64+j}, v{68+j}')
        a.emit('v_add_f32 v64, v64, v65')
        a.emit('v_add_f32 v66, v66, v67')
        a.emit('v_add_f32 v64, v64, v66')
        a.emit('v_lshlrev_b32 v80, 16, v80')
        a.emit('v_lshlrev_b32 v2, 2, v0')
        a.emit(f'v_add_u32 v2, {LCS - 1024}, v2')
        a.emit('ds_write_b32 v2, v64')
        a.emit('ds_write_b32 v2, v80 offset:1024')
        a.emit('s_waitcnt lgkmcnt(0)')
    import sides
    if T4:
        stats4_setup(a, False)
        a.emit(f's_lshl_b32 s4, s{S_NT}, 7')
        a.emit(f's_lshl_b32 s5, s{S_WV}, 6')
        a.emit('s_add_u32 s4, s4, s5')
        a.emit(f's_add_u32 s4, s4, {1472 - 256}')
        a.emit(f's_lshl_b32 s5, s{S_NT}, 6')
        a.emit(f's_cmp_eq_u32 s{S_WV}, 4')
        a.emit('s_cselect_b32 s4, s5, s4')
        a.emit('s_lshr_b32 s5, s5, 1')
        a.emit('s_add_u32 s5, s5, 1024')
        a.emit(f's_cmp_eq_u32 s{S_WV}, 7')
        a.emit('s_cselect_b32 s4, s5, s4')
        a.emit('v_and_b32 v3, 15, v1')
        a.emit('v_lshl_add_u32 v3, v3, 2, s4')
        a.emit('v_lshrrev_b32 v2, 4, v1')
        a.emit(f'v_add_lshl_u32 v{VBI}, v3, v2, 1')
        a.emit('v_lshlrev_b32 v3, 2, v3')
        a.emit(f'v_lshl_add_u32 v{VCS}, v2, 14, v3')
        CSI = int(ENV('CSI', '14')); STI = int(ENV('STI', '14'))
        def extra4(i):
            o = []
            if i == CSI: o += quad_loads(64, VCS, SC) + [f'buffer_load_ushort v80, v{VBI}, s[{SB}:{SB+3}], 0 offen']
            if i == STI: o += stats4_loads(32, False)
            return o
        def final4():
            a.emit('s_waitcnt vmcnt(0)')
            stats4_store(a, 32, LST, False)
            quad_sum(a, 64)
            a.emit('v_lshlrev_b32 v80, 16, v80')
            a.emit('s_lshl_b32 s5, s3, 8')
            a.emit(f's_add_u32 s5, s5, {LCS}')
            a.emit('v_permlane16_swap_b32 v64, v65')
            a.emit('v_lshrrev_b32 v2, 4, v1')
            a.emit('v_lshl_add_u32 v2, v3, 2, v2')
            a.emit('v_lshl_add_u32 v2, v2, 2, s5')
            a.emit('v_add_f32 v64, v64, v65')
            a.emit('ds_write2st64_b32 v2, v64, v80 offset0:0 offset1:4')
            a.emit('s_waitcnt lgkmcnt(0)')
        assert ns == 0
        L.run(final=final4, extra=extra4, post=sides.stouch_post(a, kind), dep=lambda pf: dep_wait(a, kind, postf=pf, obar=L.npre - 6 if ot and OBAR else 0, pref=(lambda: a.emit(f's_waitcnt vmcnt({L.npre - 7})')) if ot and not OBAR else None))
    else: L.run(tail_issue=tail, ntail_vm=17 + cs[0] + side(Asm(), 'issue'), final=final, extra=extra, post=sides.stouch_post(a, kind),
          dep=(lambda pf: dep_wait(a, kind, postf=pf)) if MEGA else None)
    if ENV('PFL', '2') == '2': side(a, 'late')
    if not VW: side(a, 'finish')
    loader_end(a, kind)
    a.label(end)
    a.emit('s_endpgm')
    loader_first(a, kind)
    if not MEGA:
        a(KD.format(name=f'{kind}l0_kernel'))
        stub(a, f'{kind}l1_kernel', body, 1, tsidx + 4, False)
        a(KD.format(name=f'{kind}l1_kernel'))
    a.label(f'L_{kind}_c1')
    return LCS + 2048
```

```python
import sys, os, struct
sys.path.insert(0, os.path.join(os.path.dirname(os.path.abspath(__file__)), '..'))
from asmlib import Asm, check_offsets
MB = 1 << 20
WSB = int(os.environ.get('WSB', '0')) * MB
WS_O   = WSB
WS_X1  = WSB + 4 * MB
WS_H   = WSB + 8 * MB
WS_ST  = WSB + 23 * MB
WS_CS  = WSB + 23 * MB + 512 * 1024
WS_ST0 = WSB + 23 * MB + 768 * 1024
D2 = os.environ.get('DS', '2') == '2'
DS = os.environ.get('DS', '2') in '12'
WS_TS  = 60 * MB
MEGA = os.environ.get('MEGA', '2') in ('1', '2')
ONE = os.environ.get('MEGA', '2') == '2'
LSTR = 64 * MB
WS_ST2 = WS_ST + 256 * 1024 if MEGA else WS_ST
WS_FL = WSB + 40 * MB
FLS = 524288
REP = int(os.environ.get('REP', '16'))
WS_XP = WSB + 24 * MB
WS_X2 = WSB + 32 * MB
XPAD = int(os.environ.get('XPAD', '128')) if MEGA else 0
f2u = lambda f: struct.unpack('<I', struct.pack('<f', f))[0]
ENV = os.environ.get
TS = ENV('TS', '')
TE = ENV('TE', '')
DBG = ENV('DBG', '').split(',')
EARLY = int(ENV('EARLY', '0')) if MEGA and ENV('SPLIT', '0') == '0' else 0
def stf(kind): return (' ' + ENV('WTF', 'sc1')) if kind in ENV('WT', 'attn,wo,w2,w1').split(',') else ''

KA = {'A_x': 0, 'wqkv': 8, 'wo': 16, 'w1': 32, 'b1': 40, 'w2': 48, 'b2': 56, 'out': 64, 'ws': 80}
P_IN = 16
P_OUT = 32; P_WS = 34
P_XS = 12
PTR = {'A_x': 16, 'wqkv': 18, 'wo': 20, 'w1': 24, 'b1': 26, 'w2': 28, 'b2': 30, 'out': 32, 'ws': 34, 'xs': 12, 'ws0': 22}
SX, SW, SO, SR, SB, ST, SP, SC = 36, 40, 44, 48, 52, 56, 60, 64
S_MT, S_NT, S_WV, S_WM, S_WN = 68, 69, 70, 71, 72
S_KX, S_KW, S_SLOT, S_XD, S_WD, S_HD, S_CNT = 73, 74, 75, 76, 77, 78, 79
S_LAYER = 96; S_TSI = 97; S_T = 98; S_CU = 99; S_XG = 100; S_KT = 101

KD = '''.section .rodata,"a"
.p2align 6
.amdhsa_kernel {name}
  .amdhsa_next_free_vgpr 256
  .amdhsa_next_free_sgpr 102
  .amdhsa_accum_offset 256
  .amdhsa_group_segment_fixed_size 0
  .amdhsa_kernarg_size 88
  .amdhsa_user_sgpr_count 2
  .amdhsa_user_sgpr_kernarg_segment_ptr 1
  .amdhsa_system_sgpr_workgroup_id_x 1
  .amdhsa_float_denorm_mode_32 3
  .amdhsa_float_denorm_mode_16_64 3
.end_amdhsa_kernel
.text
'''

def srd(a, sd, which, off, size):
    p = PTR[which]
    if off:
        a.emit(f's_add_u32 s{sd}, s{p}, {off}')
        a.emit(f's_addc_u32 s{sd+1}, s{p+1}, 0')
        a.emit(f's_and_b32 s{sd+1}, s{sd+1}, 0xffff')
    else:
        a.emit(f's_mov_b32 s{sd}, s{p}')
        a.emit(f's_and_b32 s{sd+1}, s{p+1}, 0xffff')
    a.emit(f's_mov_b32 s{sd+2}, {size}')
    a.emit(f's_mov_b32 s{sd+3}, 0x00020000')

def xpitch(a, sd, inv=False):
    a.emit(f's_cmp_eq_u32 s{S_LAYER}, {0 if inv else 1}')
    a.emit(f's_cselect_b32 s{sd}, {XPAD}, 0')
    a.emit(f's_add_u32 s{sd}, s{sd}, 2048')

def srd_xs(a, sd):
    srd(a, sd, 'xs', 0, 4 * MB)
    xpitch(a, sd + 2)
    a.emit(f's_lshl_b32 s{sd+2}, s{sd+2}, 11')

def stub(a, name, body, layer, tsidx, first):
    a(f'.text\n.globl {name}\n.p2align 8\n.type {name},@function\n{name}:')
    if TS:
        stamp(a, 0, nowait=True)
    if TE: a.emit('s_memrealtime s[94:95]')
    a.emit('s_load_dwordx4 s[16:19], s[0:1], 0')
    a.emit('s_load_dwordx2 s[20:21], s[0:1], 16')
    a.emit('s_load_dwordx2 s[22:23], s[0:1], 80')
    a.emit('s_load_dwordx8 s[24:31], s[0:1], 32')
    a.emit('s_load_dwordx2 s[32:33], s[0:1], 64')
    a.emit('s_load_dwordx2 s[34:35], s[0:1], 80')
    a.emit(f's_load_dwordx2 s[12:13], s[0:1], {0 if layer == 0 else 64}')
    if DS: a.emit(f's_load_dwordx2 s[{SC}:{SC+1}], s[0:1], 72')
    a.emit(f's_mov_b32 s{S_LAYER}, {layer}')
    if ENV('PADS', '0') == '1': a.emit('s_mov_b64 exec, -1')
    a.emit(f's_mov_b32 s{S_TSI}, {tsidx}')
    if not first:
        a.emit(f's_branch {body}')

def stamp(a, n, nowait=False):
    if not TS: return
    a.emit(f's_memrealtime s[{80+4*n}:{81+4*n}]')
    a.emit(f's_memtime s[{82+4*n}:{83+4*n}]')
    if not nowait: a.emit('s_waitcnt lgkmcnt(0)')

def stamps_out(a, tag):
    if not TS: return
    if not MEGA: a.emit('s_waitcnt vmcnt(0)')
    stamp(a, 3)
    if MEGA and tag == 'w1':
        for i in range(16): a.emit(f'v_writelane_b32 v31, s{80+i}, {i}')
        return
    srd(a, SP, 'ws0', WS_TS, 1 << 20)
    a.emit('s_lshl_b32 s4, s2, 6')
    a.emit(f's_lshl_b32 s5, s{S_TSI}, 16')
    a.emit('s_add_u32 s4, s4, s5')
    a.emit('v_mov_b32 v1, s4')
    for i in range(16): a.emit(f'v_mov_b32 v{4+i}, s{80+i}')
    a.emit('v_cmp_eq_u32 vcc, 0, v0')
    a.emit('s_and_saveexec_b64 s[6:7], vcc')
    a.emit(f's_cbranch_execz L_tsskip_{tag}')
    for j in range(4):
        a.emit(f'buffer_store_dwordx4 v[{4+4*j}:{7+4*j}], v1, s[{SP}:{SP+3}], 0 offen offset:{16*j}' + (' sc1' if ENV('DIAG') else ''))
    if MEGA and tag == 'w2':
        a.emit('s_mov_b64 exec, 0xffff')
        a.emit('s_sub_u32 s4, s4, 0x10000')
        a.emit('v_lshlrev_b32 v1, 2, v0')
        a.emit(f'buffer_store_dword v31, v1, s[{SP}:{SP+3}], s4 offen' + (' sc1' if ENV('DIAG') else ''))
    a.label(f'L_tsskip_{tag}')
    a.emit('s_mov_b64 exec, -1')

SPX = ENV('SPX', '1') == '1'
OT = ENV('OT', 'w1,w2,attn').split(',')
S_T0 = 91
OHB = 114688; OBIA = [10, 24, 124, 126]
NV = int(ENV('NV', '0'))
EX = int(ENV('EX', '14'))
LSTK = ENV('LSTK', 'w2')
LREG = [52, 54, 56, 58] if LSTK == 'w2' else [36, 38, 48, 50] if LSTK == 'wo' else [80, 82, 48, 50]
def lstamp(a, n, dep=False):
    if dep and (ENV('LST') == 'x' or LSTK != 'w2'): return
    if TS: a.emit(f's_memrealtime s[{LREG[n]}:{LREG[n]+1}]')

def lstamps_out(a, tag):
    if not TS: return
    a.emit(f"s_cmp_lg_u32 s{S_WV}, {ENV('PW_' + tag.upper(), '4')}")
    a.emit(f's_cbranch_scc1 L_ltsskip_{tag}')
    a.emit('s_waitcnt lgkmcnt(0)')
    srd(a, SP, 'ws0', WS_TS + 16384, 1 << 20)
    a.emit('s_lshl_b32 s4, s2, 6')
    a.emit(f's_lshl_b32 s5, s{S_TSI}, 16')
    a.emit('s_add_u32 s4, s4, s5')
    for i in range(8): a.emit(f'v_writelane_b32 v20, s{LREG[i>>1]+(i&1)}, {i}')
    a.emit('v_lshlrev_b32 v21, 2, v1')
    a.emit('s_mov_b64 exec, 0xff')
    a.emit(f'buffer_store_dword v20, v21, s[{SP}:{SP+3}], s4 offen')
    a.emit('s_mov_b64 exec, -1')
    a.label(f'L_ltsskip_{tag}')

def tile_map(a, LM, endlab, pair=False):
    if endlab:
        a.emit('s_cmp_ge_u32 s2, 256')
        a.emit(f's_cbranch_scc1 {endlab}')
        a.emit('v_lshrrev_b32 v2, 6, v0')
        a.emit('v_and_b32 v1, 63, v0')
        a.emit(f'v_readfirstlane_b32 s{S_WV}, v2')
    a.emit('s_and_b32 s3, s2, 7')
    if endlab: a.emit(f's_lshr_b32 s{S_CU}, s2, 3')
    if LM == 2 and ENV('MAP2', '0') == '1':
        a.emit('s_lshl_b32 s5, s3, 1')
        a.emit('s_lshr_b32 s6, s3, 1')
        a.emit('s_and_b32 s5, s5, 2')
        a.emit('s_and_b32 s6, s6, 1')
        a.emit('s_or_b32 s5, s5, s6')
    else: a.emit(f's_and_b32 s5, s3, {(1 << (4 - LM)) - 1}')
    a.emit(f's_lshl_b32 s5, s5, {LM}')
    a.emit(f's_and_b32 s6, s{S_CU}, {(1 << LM) - 1}')
    a.emit(f's_add_u32 s{S_MT}, s5, s6')
    a.emit(f's_lshr_b32 s5, s3, {4 - LM}')
    if pair:
        a.emit(f's_lshr_b32 s{S_HD}, s{S_CU}, {LM}')
        a.emit(f's_lshl1_add_u32 s{S_NT}, s{S_HD}, s5')
        return
    a.emit(f's_lshl_b32 s5, s5, {5 - LM}')
    a.emit(f's_lshr_b32 s6, s{S_CU}, {LM}')
    a.emit(f's_add_u32 s{S_NT}, s5, s6')
    if 'smallm' in DBG: a.emit(f's_and_b32 s{S_MT}, s{S_MT}, 1')
    if 'smalln' in DBG: a.emit(f's_and_b32 s{S_NT}, s{S_NT}, 1')

def interleave(a, main, side, lead=1, per=1):
    si = 0
    for i, m in enumerate(main):
        a.emit(m)
        if i + 1 >= lead:
            for _ in range(per):
                if si < len(side): a.emit(side[si]); si += 1
    while si < len(side): a.emit(side[si]); si += 1

PO0, POM = [int(x) for x in ENV('PO', '1,3').split(',')]
KSH = int(ENV('KSH', '0')); LAT = int(ENV('LAT', '0'))
def own_pos(a, sd):
    a.emit(f's_and_b32 s{sd}, s{S_NT}, {POM}')
    a.emit(f's_add_u32 s{sd}, s{sd}, {PO0}')

class Loader:
    VXD = 4; VWD = 8; VXH = 28
    def __init__(self, a, tag, K, lda2, ldw2, panels, colbase, S, STAGE, halo=None, delta=0, rot=None, xblk=False, half=0):
        self.a = a; self.tag = tag; self.K = K; self.lda2 = lda2; self.ldw2 = ldw2; self.panels = panels
        self.colbase = colbase; self.S = S; self.STAGE = STAGE; self.halo = halo; self.delta = delta; self.xblk = xblk; self.rot = rot if rot is not None and rot >= 0 else None
        self.NSTEP = K // 64; self.half = half; self.ot = 0; self.skip = False
        self.per = 4 + 2 * len(panels) + (1 if halo is not None else 0)
    def setup(self):
        a = self.a
        if ENV('PRIO', '0') != '0': a.emit(f"s_setprio {ENV('PRIO')}")
        a.emit(f's_add_u32 s8, s{S_WV}, s{S_NT}')
        a.emit('s_and_b32 s8, s8, 3')
        a.emit(f's_add_u32 s9, s{S_WV}, s{S_MT}')
        a.emit('s_and_b32 s9, s9, 3')
        a.emit(f's_lshl_b32 s{S_XD}, s8, 12')
        a.emit(f's_lshl_b32 s{S_WD}, s9, 11')
        a.emit(f's_add_u32 s{S_WD}, s{S_WD}, 16384')
        a.emit(f's_lshl_b32 s11, s{S_MT}, 7')
        a.emit('v_and_b32 v10, 7, v1')
        if self.xblk: self.xoff_blk(self.lda2)
        else: self.xoff_rows(self.lda2)
        a.emit('v_lshrrev_b32 v3, 3, v1')
        a.emit('s_lshl_b32 s10, s9, 4')
        a.emit('v_add_u32 v3, s10, v3')
        a.emit(f'v_mul_u32_u24 v3, {self.ldw2}, v3')
        a.emit('v_lshrrev_b32 v2, 3, v1')
        a.emit('v_and_b32 v2, 2, v2')
        a.emit('v_xor_b32 v2, v2, v10')
        a.emit(f's_mul_i32 s10, s{S_NT}, {self.colbase}')
        if 'noslow' in DBG and self.tag == 'attn':
            a.emit(f's_bitcmp1_b32 0x0808, s{S_NT}')
            a.emit('s_cselect_b32 s3, 512, 0')
            a.emit('s_add_u32 s10, s10, s3')
        if self.colbase & 127: a.emit('s_andn2_b32 s10, s10, 127')
        a.emit('v_add_u32 v3, s10, v3')
        a.emit(f'v_lshl_add_u32 v{self.VWD}, v2, 4, v3')
        a.emit('v_xor_b32 v2, 4, v2')
        a.emit(f'v_add_u32 v3, {8*self.ldw2}, v3')
        a.emit(f'v_lshl_add_u32 v{self.VWD+1}, v2, 4, v3')
        if self.half:
            a.emit('v_lshrrev_b32 v3, 2, v1')
            a.emit('s_lshl_b32 s10, s9, 4')
            a.emit('v_add_u32 v3, s10, v3')
            a.emit(f'v_mul_u32_u24 v3, {self.ldw2}, v3')
            a.emit('v_lshrrev_b32 v2, 4, v1')
            a.emit('v_and_b32 v2, 2, v2')
            a.emit('v_xor_b32 v2, v2, v1')
            a.emit('v_and_b32 v2, 3, v2')
            a.emit(f's_lshl_b32 s10, s{S_NT}, 6')
            a.emit(f's_add_u32 s10, s10, {self.half}')
            a.emit('v_add_u32 v3, s10, v3')
            a.emit(f'v_lshl_add_u32 v{self.VXH}, v2, 4, v3')
            a.emit(f's_lshl_b32 s{S_HD}, s{S_NT}, 7')
            a.emit(f's_add_u32 s{S_HD}, s{S_HD}, 3072')
        if self.halo is not None:
            a.emit(f's_and_b32 s10, s{S_WV}, 3')
            a.emit(f's_lshl_b32 s{S_HD}, s10, 9')
            a.emit(f's_add_u32 s{S_HD}, s{S_HD}, {self.halo}')
            a.emit('s_lshl_b32 s14, s10, 2')
            a.emit('s_add_u32 s14, s14, s11')
            a.emit('s_sub_u32 s14, s14, 16')
            a.emit('v_lshrrev_b32 v3, 3, v1')
            a.emit('v_add_u32 v3, s14, v3')
            a.emit('v_max_i32 v3, 0, v3')
            a.emit('v_mul_u32_u24 v3, s5, v3')
            a.emit('s_lshl_b32 s14, s10, 1')
            a.emit('v_lshrrev_b32 v2, 4, v1')
            a.emit('v_add_u32 v2, s14, v2')
            a.emit('v_and_b32 v2, 7, v2')
            a.emit('v_xor_b32 v2, v2, v10')
            a.emit(f'v_lshl_add_u32 v{self.VXH}, v2, 4, v3')
            a.emit('s_cmp_eq_u32 s10, 0')
            a.emit('s_cselect_b32 s14, 0xffffff00, -1')
            a.emit('s_mov_b32 s15, 0')
        a.emit(f's_mov_b32 s{S_SLOT}, 0')
        if self.rot is None:
            a.emit(f's_mov_b32 s{S_KX}, 0')
            a.emit(f's_mov_b32 s{S_KW}, 0')
        else:
            if not getattr(self, 'noxg', False): a.emit(f's_add_u32 s{S_XG}, s{S_MT}, s{S_NT}')
            a.emit(f's_mov_b32 s{S_KT}, {0 if EARLY and self.tag == "w2" else -1}')
            ko = int(ENV('KOFF_' + self.tag.upper(), '0'))
            if ko:
                a.emit(f"s_bitcmp1_b32 {ENV('KMSK_' + self.tag.upper(), '0x0808' if self.tag == 'attn' else '0x2aea')}, s{S_NT}")
                a.emit(f's_cselect_b32 s{S_KT}, {ko - 1}, s{S_KT}')
            if self.kord(): self.ktable()
            if self.skip:
                if LAT:
                    a.emit(f's_mul_i32 s3, s{S_MT}, {LAT}')
                    a.emit(f's_add_u32 s3, s3, s{S_NT}')
                    a.emit(f's_and_b32 s{S_T0}, s3, 15')
                elif KSH:
                    a.emit(f's_and_b32 s{S_T0}, s{S_NT}, 3')
                    a.emit(f's_and_b32 s93, s{S_NT}, 12')
                    if KSH == 2:
                        a.emit(f's_and_b32 s3, s{S_MT}, 8')
                        a.emit('s_add_u32 s93, s93, s3')
                else: a.emit(f's_mov_b32 s{S_T0}, s{S_NT}')
                own_pos(a, 92)
                for x in self.knext(): a.emit(x)
            elif not self.ot:
                for x in self.knext(): a.emit(x)
    def kord(self): return ENV('KORD_' + self.tag.upper(), {'w1': '2', 'attn': '0,2'}.get(self.tag, ''))
    def korder(self, g, start):
        D = int(ENV('ROTD_' + self.tag.upper(), ENV('ROTD', '2')))
        o = list(range(16))
        if start < 0:
            dl = {3: [3, -1, -1, -1], 2: [2, -1, -1, 0], 1: [1, -1, 0, 0]}[D]
            return [(t + dl[(t - g) & 3]) & 15 for t in range(16)]
        for t in range(start + g, 16 - D, 4): o[t:t + D + 1] = [t + D] + list(range(t, t + D))
        return o
    def ktable(self, start=None):
        a = self.a
        if start is None: start = int(self.kord().split(',')[0])
        a.emit(f's_add_u32 s3, s{S_MT}, s{S_NT}')
        a.emit('s_and_b32 s3, s3, 3')
        for g in range(4):
            v = sum(k << (4 * i) for i, k in enumerate(self.korder(g, start)))
            if g: a.emit(f's_cmp_eq_u32 s3, {g}')
            for h in range(2):
                a.emit(f's_cselect_b32 s{S_XG+h}, {(v >> (32 * h)) & 0xffffffff:#x}, s{S_XG+h}' if g else f's_mov_b32 s{S_XG+h}, {(v >> (32 * h)) & 0xffffffff:#x}')
    def own(self):
        D = int(ENV('ROTD_' + self.tag.upper(), ENV('ROTD', '2')))
        dl = {3: [3, -1, -1, -1], 2: [2, -1, -1, 0], 1: [1, -1, 0, 0]}[D]
        tbl = sum(((-d) % 16) << (8 * ((r + d) & 3)) for r, d in enumerate(dl))
        assert self.rot == 0 and self.NSTEP == 16
        if self.kord():
            return [f's_lshr_b32 s3, s{S_NT}, 3', f's_and_b32 s{S_KX}, s{S_NT}, 7', f's_lshl1_add_u32 s{S_T0}, s{S_KX}, s3',
                    f's_mul_i32 s{S_KW}, s{S_T0}, {64*self.ldw2}', f's_lshl_b32 s{S_KX}, s{S_T0}, {11 if self.xblk else 7}']
        return [f's_lshr_b32 s3, s{S_NT}, 3', f's_and_b32 s{S_KX}, s{S_NT}, 7', f's_lshl1_add_u32 s{S_KX}, s{S_KX}, s3',
                f's_sub_u32 s3, s{S_KX}, s{S_XG}', 's_lshl_b32 s3, s3, 3', f's_lshr_b32 s3, {tbl:#x}, s3',
                f's_add_u32 s3, s3, s{S_KX}', f's_and_b32 s{S_T0}, s3, 15',
                f's_mul_i32 s{S_KW}, s{S_KX}, {64*self.ldw2}', f's_lshl_b32 s{S_KX}, s{S_KX}, {11 if self.xblk else 7}']
    def xoff_rows(self, ld):
        a = self.a
        a.emit('v_lshrrev_b32 v3, 3, v1')
        a.emit(f's_lshr_b32 s10, s{S_XD}, 7')
        a.emit(f's_lshl_b32 s3, s{S_MT}, 7')
        a.emit('s_add_u32 s10, s10, s3')
        a.emit('v_add_u32 v3, s10, v3')
        xpitch(a, 5)
        a.emit('s_lshl_b32 s6, s5, 3')
        a.emit('v_mul_u32_u24 v3, s5, v3')
        a.emit('v_lshrrev_b32 v2, 4, v1')
        for j in range(4):
            d = self.VXD + j
            if j & 1:
                a.emit(f'v_add_u32 v{d}, 4, v2')
                a.emit(f'v_xor_b32 v{d}, v{d}, v10')
            else:
                a.emit(f'v_xor_b32 v{d}, v2, v10')
            a.emit(f'v_lshl_add_u32 v{d}, v{d}, 4, v3')
            if j < 3: a.emit('v_add_u32 v3, s6, v3')
    def xoff_blk(self, ld):
        a = self.a
        a.emit(f's_lshr_b32 s10, s{S_XD}, 11')
        a.emit(f's_lshl_b32 s3, s{S_MT}, 3')
        a.emit('s_add_u32 s10, s10, s3')
        a.emit(f's_mul_i32 s10, s10, {16*ld}')
        a.emit(f'v_lshl_add_u32 v{self.VXD}, v1, 4, s10')
        a.emit(f'v_add_u32 v{self.VXD+1}, {16*ld}, v{self.VXD}')
    def xdma(self, base, imm, sd, soff, blk):
        o = []
        for j in range(4):
            if blk:
                if not j & 1: o += [f's_add_u32 m0, s{base}, {imm + j*1024}', 's_nop 0']
                o.append(f'buffer_load_dwordx4 v{self.VXD+(j>>1)}, s[{sd}:{sd+3}], s{soff} offen offset:{(j&1)*1024} lds')
            else:
                o += [f's_add_u32 m0, s{base}, {imm + j*1024}', 's_nop 0', f'buffer_load_dwordx4 v{self.VXD+j}, s[{sd}:{sd+3}], s{soff} offen lds']
        return o
    def knext(self):
        if self.rot is None:
            return [f's_add_u32 s{S_KX}, s{S_KX}, {2048 if self.xblk else 128}', f's_add_u32 s{S_KW}, s{S_KW}, {64*self.ldw2}']
        if self.kord():
            tb = f's[{S_XG}:{S_XG+1}]'
            o = [f's_and_b32 s{S_KX}, s{S_XG}, 15']
            if self.ot or self.skip: o += [f's_cmp_eq_u32 s{S_KX}, s{S_T0}', f's_cselect_b32 s{S_KW}, 4, 0', f's_lshr_b64 {tb}, {tb}, s{S_KW}', f's_and_b32 s{S_KX}, s{S_XG}, 15']
            if self.skip and not self.ot: o += ['s_sub_u32 s92, s92, 1', f's_cselect_b32 s{S_KX}, s{S_T0}, s{S_KX}', f's_cselect_b32 s{S_KW}, 0, 4'] + ([f's_add_u32 s{S_KX}, s{S_KX}, s93', f's_and_b32 s{S_KX}, s{S_KX}, 15'] if KSH else [])
            return o + [f's_lshr_b64 {tb}, {tb}, ' + (f's{S_KW}' if self.skip and not self.ot else '4'), f's_mul_i32 s{S_KW}, s{S_KX}, {64*self.ldw2}', f's_lshl_b32 s{S_KX}, s{S_KX}, {11 if self.xblk else 7}']
        lc = self.rot; C = 1 << lc; N = self.NSTEP
        o = [f's_add_u32 s{S_KT}, s{S_KT}, 1']
        if self.ot: o += [f's_cmp_eq_u32 s{S_KT}, s{S_T0}', f's_addc_u32 s{S_KT}, s{S_KT}, 0']
        D = int(ENV('ROTD_' + self.tag.upper(), ENV('ROTD', '2')))
        dl = {3: [3, -1, -1, -1], 2: [2, -1, -1, 0], 1: [1, -1, 0, 0]}[D]
        tbl = sum((((d * C) % N) << (8 * i)) for i, d in enumerate(dl))
        if lc: o += [f's_lshr_b32 s{S_KX}, s{S_KT}, {lc}', f's_sub_u32 s{S_KX}, s{S_KX}, s{S_XG}']
        else: o += [f's_sub_u32 s{S_KX}, s{S_KT}, s{S_XG}']
        o += [f's_lshl_b32 s{S_KX}, s{S_KX}, 3',
              f's_lshr_b32 s{S_KX}, {tbl:#x}, s{S_KX}',
              f's_and_b32 s{S_KX}, s{S_KX}, 255',
              f's_add_u32 s{S_KX}, s{S_KX}, s{S_KT}']
        if N & (N - 1) == 0: o += [f's_and_b32 s{S_KX}, s{S_KX}, {N - 1}']
        else: o += [f's_sub_u32 s{S_KW}, s{S_KX}, {N}', f's_cselect_b32 s{S_KX}, s{S_KX}, s{S_KW}']
        o += [f's_mul_i32 s{S_KW}, s{S_KX}, {64*self.ldw2}', f's_lshl_b32 s{S_KX}, s{S_KX}, {11 if self.xblk else 7}']
        return o
    def panels_of(self, t): return self.panels
    def issue_x(self, bx, bh, imm, kx):
        o = self.xdma(bx, imm, SX, kx, self.xblk)
        if self.halo is not None:
            o.append(f's_add_u32 m0, s{S_HD}, {bh}')
            o.append('s_mov_b64 exec, s[14:15]')
            o.append(f'buffer_load_dwordx4 v{self.VXH}, s[{SX}:{SX+3}], s{kx} offen lds')
            o.append('s_mov_b64 exec, -1')
        return o
    def issue_w(self, t, bw, imm):
        o = []
        for pn, goff in enumerate(self.panels_of(t)):
            for i in range(2):
                o.append(f's_add_u32 m0, s{bw}, {imm+pn*8192+i*1024}')
                o.append((goff if str(goff).startswith('s_') else f's_add_u32 s4, s{S_KW}, {goff}') if i == 0 else 's_nop 0')
                o.append(f'buffer_load_dwordx4 v{self.VWD+i}, s[{SW}:{SW+3}], s4 offen lds')
        if self.half:
            o += [f's_add_u32 m0, s{bw}, {imm+len(self.panels)*8192}', 's_nop 0',
                  f'buffer_load_dwordx4 v{self.VXH}, s[{SW}:{SW+3}], s{S_KW} offen lds']
        return o
    def issue(self, t):
        o = [f's_add_u32 s3, s{S_SLOT}, s{S_XD}']
        o += self.issue_x(3, f's{S_SLOT}', 0, S_KX)
        o.append(f's_add_u32 s3, s{S_SLOT}, s{S_WD}')
        o += self.issue_w(t, 3, 0)
        o += self.knext()
        o.append(f's_add_u32 s{S_SLOT}, s{S_SLOT}, {self.STAGE}')
        o.append(f's_cmp_eq_u32 s{S_SLOT}, {self.S*self.STAGE}')
        o.append(f's_cselect_b32 s{S_SLOT}, 0, s{S_SLOT}')
        return o
    def run(self, variant='', tail_issue=None, ntail_vm=0, final=None, post=(), dep=None, tail_late=0, start=None, extra=None, exfirst=False):
        a = self.a; N = self.NSTEP; d = self.S - 1
        tag = self.tag + variant
        nx = 4 + (1 if self.halo is not None else 0)
        nw = lambda t: 2 * len(self.panels_of(t)) + (1 if self.half else 0)
        seq = []
        early = EARLY and self.tag == 'w2'
        pchk = EARLY - 3 - d - 1; piss = pchk - d + 1 - int(ENV('PEARLY', '0'))
        def em(o):
            for x in o:
                if 'nodma' in DBG and x.endswith(' lds'): continue
                a.emit(x)
        def after(t): return len(seq) - 1 - max(i for i, x in enumerate(seq) if x == t)
        def wait(n):
            assert n <= 63, n
            a.emit(f's_waitcnt vmcnt({n})')
        if dep is None:
            for t in range(2): em(self.issue(t)); seq += [t] * (nx + nw(t))
            if start: seq += ['S'] * start()
            wait(after(0))
            a.emit('s_barrier')
            for t in range(2, d): em(self.issue(t)); seq += [t] * (nx + nw(t))
        else:
            prev = {'attn': 'w2', 'wo': 'attn', 'w1': 'wo', 'w2': 'w1'}[self.tag]
            assert 'attn' not in EBAR
            ot = self.ot
            if ot: em(self.own() + [f's_mov_b32 s88, s{S_KX}'] + self.issue_w(0, S_WD, 0) + self.knext()); seq.extend([0] * nw(0))
            dep_pre(a, self.tag)
            if prev in EBAR: a.emit('s_barrier')
            xw = 1 if self.tag in ENV('XW', 'x').split(',') and not hasattr(self, 'P1') else 0
            def prew(ts):
                for t in ts:
                    a.emit(f's_mov_b32 s{88+t}, s{S_KX}')
                    em(self.issue_w(t, S_WD, t * self.STAGE) + self.knext()); seq.extend([t] * nw(t))
            late = int(ENV('LATE_' + self.tag.upper(), '2'))
            if ot: xw = 1
            prew(range(ot, d + xw - late))
            self.npre = len(seq)
            a.emit(f's_mov_b32 s{S_SLOT}, {0 if xw else d * self.STAGE}')
            wag = int(ENV('WAG_' + self.tag.upper(), '0'))
            dep((lambda: prew(range(d + xw - late, d + xw - wag))) if late else None)
            if ot and self.halo is not None: em(self.issue_x(S_XD, self.hx, 0, 88)[-4:]); seq.append(0)
            for t in range(ot, d + xw):
                if t >= d + xw - wag: prew([t])
                em(self.issue_x(S_XD, t * self.STAGE, t * self.STAGE, 88 + t)); seq += [t] * nx
            if ot and ENV('OPRIO'): a.emit('s_setprio 0')
            wait(after(ot))
            if self.tag == 'w2': lstamp(a, 2)
            a.emit('s_barrier')
            if early: late_flag(a)
        ev = [None] * self.ot
        for i in range(self.ot, N):
            t = i + d
            if t in seq: t = N + 9
            if early and i == piss: seq += ['P']
            if t < N: seq += [t] * (nx + nw(t)) + ['Q'] * sum(x.startswith('buffer_') for x in post)
            ex = extra(i) if extra else []
            tl = tail_issue is not None and t == N - 1 + tail_late
            if exfirst: seq += ['E'] * sum(x.startswith('buffer_') for x in ex)
            if tl: seq += ['T'] * ntail_vm
            if not exfirst: seq += ['E'] * sum(x.startswith('buffer_') for x in ex)
            ev.append(((nw(t) if t < N else -1, after(i + 1) if i + 1 < N else -1, tl, early and i == piss, early and i == pchk, tuple(ex)), t))
        i = self.ot; nl = 0
        while i < N:
            j = i
            while j + 1 < N and ev[j + 1][0] == ev[i][0]: j += 1
            n = j - i + 1
            (k, w, tl, pi, pc, ex), t = ev[i]
            if n >= 3:
                nl += 1
                a.emit(f's_mov_b32 s{S_CNT}, {n}')
                a.label(f'L_{tag}_ld{nl}')
            else: j = i
            if pi: a.emit(f'buffer_load_dword v13, v12, s[{SO}:{SO+3}], s86 offen sc1')
            if t < N:
                em(self.issue(t)); em(post)
            if exfirst: em(ex)
            if tl and not ('notail' in DBG and self.tag == 'w1'):
                if ENV('FPRIO'): a.emit('s_setprio 3')
                tail_issue()
                if ENV('FPRIO'): a.emit('s_setprio 0')
            if not exfirst: em(ex)
            if w >= 0: wait(w)
            elif final and 'nofinal' not in DBG:
                if ENV('FPRIO'): a.emit('s_setprio 3')
                final()
                if ENV('FPRIO'): a.emit('s_setprio 0')
            if pc: late_check(a)
            a.emit('s_barrier')
            if n >= 3:
                a.emit(f's_sub_u32 s{S_CNT}, s{S_CNT}, 1')
                a.emit(f's_cmp_lg_u32 s{S_CNT}, 0')
                a.emit(f's_cbranch_scc1 L_{tag}_ld{nl}')
            i = j + 1

XD = ONE and ENV('SPLIT', '0') == '0' and ENV('XD', '1') == '1'
VW = MEGA and ENV('SPLIT', '0') == '0' and ENV('VW', '0') == '1'
NV1 = int(ENV('NV1', '16')); NV2 = int(ENV('NV2', '12')); NVO = int(ENV('NVO', '11'))
S_TB = 85
def rot_table(a, sd, smt, snt, tag):
    D = int(ENV('ROTD_' + tag.upper(), ENV('ROTD', '2')))
    dl = {3: [3, -1, -1, -1], 2: [2, -1, -1, 0], 1: [1, -1, 0, 0], 0: [0, 0, 0, 0]}[D]
    tbl = sum((d & 255) << (8 * i) for i, d in enumerate(dl))
    a.emit(f's_add_u32 s3, s{smt}, s{snt}')
    a.emit('s_lshl_b32 s3, s3, 3')
    a.emit(f's_lshl_b32 s{sd}, {tbl:#x}, s3')
    a.emit('s_sub_u32 s3, 0, s3')
    a.emit(f's_lshr_b32 s3, {tbl:#x}, s3')
    a.emit(f's_or_b32 s{sd}, s{sd}, s3')

def kpos(N, t, sd, tb=S_TB, halves=True, q=None):
    H, p, add = (28, t >> 1, 28 * (t & 1)) if N == 56 and halves else (N, t, 0)
    o = [f's_bfe_i32 s{sd}, s{tb}, {0x80000 + 8 * (p & 3):#x}', f's_add_i32 s{sd}, s{sd}, {p + add}']
    if p == 0: o += [f's_cmp_lt_i32 s{sd}, {add}', f's_cselect_b32 s{sd}, {H - 1 + add}, s{sd}']
    if p + 3 >= H: o += [f's_sub_u32 s3, s{sd}, {H}', f's_cmp_ge_i32 s{sd}, {H + add}', f's_cselect_b32 s{sd}, s3, s{sd}']
    if q is not None:
        if N == 16 or 1 <= t <= 12: o += [f's_add_u32 s{sd}, s{sd}, s{q}', f's_and_b32 s{sd}, s{sd}, 15']
        elif t <= 16 or t + 3 >= N: o += [f's_add_u32 s3, s{sd}, s{q}', 's_and_b32 s3, s3, 15', f's_cmp_lt_u32 s{sd}, 16', f's_cselect_b32 s{sd}, s3, s{sd}']
    return o

S_Q = 86
MROT = ENV('MROT', '1') == '1'
def rot_q(a, sd, smt, sh=0):
    a.emit(f's_and_b32 s{sd}, s{smt}, {3 if MROT else 0}')
    a.emit(f's_lshl_b32 s{sd}, s{sd}, {2 + sh}')

TSCH = {'wo': [int(c) for c in ENV('TSO', '000')], 'w2': [int(c) for c in ENV('TS2', '000')]}
def tail_parks(nxt, sw, mk=None, sch=None):
    if not XD: return None
    sch = sch or TSCH[nxt]; N = 16 if nxt == 'wo' else 56
    def extra(i):
        if i < 13 or not sum(sch): return []
        a = Asm()
        if i == 13:
            if mk: mk(a)
            a.emit('s_and_b32 s5, s2, 3')
            a.emit('s_lshl_b32 s5, s5, 2')
            a.emit(f's_and_b32 s6, s{S_CU}, 3')
            a.emit('s_add_u32 s5, s5, s6')
            a.emit('s_and_b32 s6, s2, 4')
            a.emit('s_lshl_b32 s6, s6, 1')
            a.emit(f's_lshr_b32 s7, s{S_CU}, 2')
            a.emit('s_add_u32 s6, s6, s7')
            rot_table(a, S_TB, 5, 6, nxt)
            rot_q(a, S_Q, 5)
            a.emit(f's_add_u32 s5, s5, s{S_WV}')
            a.emit('s_and_b32 s5, s5, 3')
            wvoff(a, 16, 5, 6, 2048)
        o = [l.strip() for l in a.lines]
        for t in range(sum(sch[:i - 13]), sum(sch[:i - 12])):
            o += kpos(N, t, 4, S_TB, False, S_Q) + ['s_lshl_b32 s4, s4, 17']
            o += [f'buffer_load_dwordx4 v[{128+8*t+4*j}:{131+8*t+4*j}], v{16+j}, s[{sw}:{sw+3}], s4 offen' for j in range(2)]
        return o
    return extra

def vreg(tag, t):
    if tag == 'wo': return (128 + 8 * (t - 5), False) if 5 <= t < 5 + NVO else None
    if t & 1: return None
    p = t >> 1
    if p < NV1: return (128 + 8 * p, True)
    if p < NV1 + NV2: return (32 + 8 * (p - NV1), False)
    return None

def wvoff(a, vd, sqw, snt, ldw2):
    a.emit('v_lshrrev_b32 v3, 3, v1')
    a.emit(f's_lshl_b32 s10, s{sqw}, 4')
    a.emit('v_add_u32 v3, s10, v3')
    a.emit(f'v_mul_u32_u24 v3, {ldw2}, v3')
    a.emit('v_lshrrev_b32 v2, 3, v1')
    a.emit('v_and_b32 v2, 2, v2')
    a.emit('v_xor_b32 v2, v2, v10')
    a.emit(f's_lshl_b32 s10, s{snt}, 7')
    a.emit('v_add_u32 v3, s10, v3')
    a.emit(f'v_lshl_add_u32 v{vd}, v2, 4, v3')
    a.emit('v_xor_b32 v2, 4, v2')
    a.emit(f'v_add_u32 v3, {8*ldw2}, v3')
    a.emit(f'v_lshl_add_u32 v{vd+1}, v2, 4, v3')

def park(N, t, r, vo, sw):
    return kpos(N, t, 4) + ['s_lshl_b32 s4, s4, 17'] + [f'buffer_load_dwordx4 v[{r+4*i}:{r+4*i+3}], v{vo+i}, s[{sw}:{sw+3}], s4 offen' for i in range(2)]

class ULoader(Loader):
    def run(self, variant='', tail_issue=None, ntail_vm=0, final=None, post=(), dep=None):
        a = self.a; N = self.NSTEP; d = self.S - 1; tag = self.tag
        seq = []
        def em(o):
            for x in o:
                if 'nodma' in DBG and x.endswith(' lds'): continue
                a.emit(x)
        def after(t): return len(seq) - 1 - max(i for i, x in enumerate(seq) if x == t)
        def wait(n, lg=False):
            assert n <= 63, n
            a.emit(f's_waitcnt vmcnt({n})' + (' lgkmcnt(0)' if lg else ''))
        def iw(t):
            sl = (t % self.S) * self.STAGE; v = vreg(tag, t)
            if v:
                em([f'v_add_u32 v11, {sl}, v14'] + [f'ds_write_b128 v11, v[{v[0]+4*i}:{v[0]+4*i+3}] offset:{1024*i}' for i in range(2)])
            else:
                em([f's_lshl_b32 s{S_KW}, s{S_KX}, 17'] + [x for x in self.issue_w(t, S_WD, sl)])
                seq.extend([t] * 2)
        def ix(t, k):
            em(self.issue_x(S_XD, None, (t % self.S) * self.STAGE, k)); seq.extend([t] * 4)
        rot_table(a, S_TB, S_MT, S_NT, tag)
        a.emit(f'v_lshl_add_u32 v14, v1, 4, s{S_WD}')
        dep_pre(a, tag)
        for t in range(d):
            em(kpos(N, t, S_KX)); iw(t)
            a.emit(f's_lshl_b32 s{88+t}, s{S_KX}, 11')
        for t in range(d, N):
            v = vreg(tag, t)
            if v and not v[1]:
                em(park(N, t, v[0], self.VWD, SW)); seq.extend(['V'] * 2)
        self.npre = len(seq)
        dep()
        for t in range(d): ix(t, 88 + t)
        wait(after(0), True)
        if tag == 'w2': lstamp(a, 2)
        a.emit('s_barrier')
        for i in range(N):
            t = i + d
            if i % 4 == 0 and post and t < N:
                a.emit('s_waitcnt lgkmcnt(0)')
                em(post)
            if t < N:
                em(kpos(N, t, S_KX)); iw(t)
                a.emit(f's_lshl_b32 s{S_KX}, s{S_KX}, 11')
                ix(t, S_KX)
            if t == N - 1: tail_issue(); seq.extend(['T'] * ntail_vm)
            if i + 1 < N: wait(after(i + 1), not post or t == N)
            else: final()
            a.emit('s_barrier')

EBAR = ENV('EBAR', 'x').split(',')
S_FL = 87
def dep_pre(a, kind, part=None, n=0):
    if ONE and kind in ('wo', 'w1'):
        ld = f'buffer_load_dword v12, v17, s[{SC}:{SC+3}], 0 offen sc1' if kind == 'wo' else f'buffer_load_dwordx4 v[12:15], v17, s[{SO}:{SO+3}], s3 offen sc1'
        if part == 1: a.emit(f's_waitcnt vmcnt({n})')
        a.emit(f's_add_u32 s3, s{S_LAYER}, s{S_WV}')
        a.emit('s_cmp_lg_u32 s3, 4')
        a.emit(f's_cbranch_scc1 L_{kind}_chk{part}')
        def cmp():
            if kind == 'wo': a.emit('v_cmp_ne_u32 vcc, 0x01010101, v12')
            else:
                a.emit('v_and_b32 v12, v12, v13')
                a.emit('v_and_b32 v14, v14, v15')
                a.emit('v_and_b32 v12, v12, v14')
                a.emit('v_cmp_ne_u32 vcc, 1, v12')
        if part == 1:
            cmp()
            a.emit(f's_cbranch_vccz L_{kind}_chk{part}')
        if True:
            if kind == 'wo': a.emit(f's_load_dwordx2 s[{SC}:{SC+1}], s[0:1], 72')
            else: srd(a, SO, 'ws0', WS_FL, FLS)
            if kind == 'wo':
                a.emit('s_waitcnt lgkmcnt(0)')
                a.emit(f's_and_b32 s{SC+1}, s{SC+1}, 0xffff')
                a.emit(f's_mov_b32 s{SC+2}, 256')
                a.emit(f's_mov_b32 s{SC+3}, 0x00020000')
                a.emit('v_lshlrev_b32 v17, 2, v1')
            else:
                a.emit('v_lshrrev_b32 v2, 2, v1')
                a.emit('v_and_b32 v3, 3, v1')
                a.emit('v_lshlrev_b32 v2, 11, v2')
                a.emit('v_lshl_add_u32 v17, v3, 4, v2')
                a.emit(f's_and_b32 s3, s{S_NT}, {REP - 1}')
                a.emit('s_lshl_b32 s3, s3, 7')
        if part == 0: a.emit(ld)
        else:
            a.emit(f's_mov_b32 s{S_CNT}, 0x100000')
            a.label(f'L_{kind}_chkl')
            a.emit(ld)
            a.emit(f's_sub_u32 s{S_CNT}, s{S_CNT}, 1')
            a.emit(f's_cbranch_scc1 L_{kind}_chk{part}')
            a.emit('s_waitcnt vmcnt(0)')
            cmp()
            a.emit(f's_cbranch_vccnz L_{kind}_chkl')
        a.label(f'L_{kind}_chk{part}')

def dep_wait(a, kind, halo=False, skip_first=False, first=None, preg=None, postf=None, pref=None, defer=False, obar=False):
    if skip_first and not ONE:
        a.emit(f's_cmp_eq_u32 s{S_TSI}, 1')
        a.emit(f's_cbranch_scc1 L_{kind}_dep')
    srd(a, SO, 'ws0', WS_FL, FLS)
    if ONE and kind == 'wo' and first:
        a.emit(f's_cmp_lg_u32 s{S_LAYER}, 0')
        a.emit(f's_cbranch_scc1 L_{kind}_nofirst')
        first()
        a.label(f'L_{kind}_nofirst')
    a.emit(f's_lshl4_add_u32 s3, s{S_TSI}, s{S_MT}')
    a.emit(f's_and_b32 s4, s{S_NT}, {REP - 1}')
    a.emit('s_lshl4_add_u32 s3, s3, s4')
    a.emit('s_lshl_b32 s3, s3, 7')
    a.emit('s_sub_u32 s3, s3, 32768')
    a.emit('v_lshlrev_b32 v11, 7, v1')
    if halo:
        a.emit(f's_cmp_eq_u32 s{S_MT}, 0')
        a.emit('s_cselect_b32 s4, 15, 31')
        a.emit('v_and_b32 v2, 16, v1')
        a.emit('v_lshl_add_u32 v11, v2, 2, v11')
        a.emit('v_and_b32 v2, s4, v1')
    else: a.emit('v_and_b32 v2, 15, v1')
    a.emit('v_lshlrev_b32 v2, 2, v2')
    a.emit('v_mov_b32 v3, 1')
    a.emit(f's_mov_b32 s{S_CNT}, 0x100000')
    if kind == LSTK == 'wo': lstamp(a, 2)
    if pref: pref()
    a.emit(f's_cmp_lg_u32 s{S_WV}, 4')
    a.emit('s_barrier')
    if kind == 'w2': lstamp(a, 0, True)
    if kind == LSTK == 'w1': lstamp(a, 0)
    a.emit(f's_cbranch_scc1 L_{kind}_{"nofl" if postf else "dep"}')
    a.emit(f's_mov_b32 exec_lo, {((1 << REP) - 1) * (0x10001 if halo else 1):#x}')
    a.emit('s_mov_b32 exec_hi, 0')
    a.emit(f'buffer_store_dword v3, v11, s[{SO}:{SO+3}], s{S_FL} offen sc1')
    a.emit('s_mov_b64 exec, -1')
    PSP = int(ENV('PSP', '0'))
    if defer:
        a.label(f'L_{kind}_nofl')
        a.emit(f's_mov_b32 s{S_Q}, s3')
        postf()
        return
    if postf and PSP:
        a.label(f'L_{kind}_nofl')
        a.emit('s_mov_b32 s5, s3')
        i0 = len(a.lines); postf(); ls = a.lines[i0:]; del a.lines[i0:]
        dma = [i for i, l in enumerate(ls) if 'buffer_load' in l]
        poll = lambda k: f'buffer_load_dword v{24+k}, v2, s[{SO}:{SO+3}], s5 offen sc1'
        for i, l in enumerate(ls):
            a.lines.append(l)
            for k in range(3):
                if dma and i == dma[-1 - PSP * (3 - k)]: a.emit(poll(k))
        a.emit(f's_cmp_lg_u32 s{S_WV}, 4')
        a.emit(f's_cbranch_scc1 L_{kind}_dep')
        def chk(k, n, last=False):
            a.emit(poll((k + 3) & 3))
            a.emit(f's_waitcnt vmcnt({n})')
            a.emit(f'v_cmp_ne_u32 vcc, 1, v{24+k}')
            a.emit(f's_cbranch_vccnz L_{kind}_poll' if last else f's_cbranch_vccz L_{kind}_dep')
        for k in range(3): chk(k, 3 + PSP * (3 - k))
        a.label(f'L_{kind}_poll')
        a.emit(f's_sub_u32 s{S_CNT}, s{S_CNT}, 1')
        a.emit(f's_cbranch_scc1 L_{kind}_dep')
        for k in (3, 0, 1, 2): chk(k, 3, k == 2)
    else:
        if postf:
            if obar:
                a.emit(f's_waitcnt vmcnt({obar})')
                a.emit(f's_branch L_{kind}_obar')
            a.label(f'L_{kind}_nofl')
            if obar:
                a.emit(f's_waitcnt vmcnt({obar - 1})')
                a.label(f'L_{kind}_obar')
                a.emit('s_barrier')
                if ENV('OPRIO'): a.emit(f"s_setprio {ENV('OPRIO')}")
            a.emit('s_mov_b32 s5, s3')
            postf()
            a.emit('s_mov_b32 s3, s5')
            a.emit(f"s_cmp_lg_u32 s{S_WV}, {ENV('PW_' + kind.upper(), '4')}")
            a.emit(f's_cbranch_scc1 L_{kind}_dep')
        if kind == LSTK == 'w1': lstamp(a, 1)
        a.label(f'L_{kind}_poll')
        a.emit(f'buffer_load_dword v3, v2, s[{SO}:{SO+3}], s3 offen sc1')
        a.emit(f's_sub_u32 s{S_CNT}, s{S_CNT}, 1')
        a.emit(f's_cbranch_scc1 L_{kind}_dep')
        a.emit('s_waitcnt vmcnt(0)')
        a.emit('v_cmp_ne_u32 vcc, 1, v3')
        a.emit(f's_cbranch_vccnz L_{kind}_poll')
    a.label(f'L_{kind}_dep')
    if kind == 'w2': lstamp(a, 1, True)
    if kind == LSTK == 'wo': lstamp(a, 3)
    if kind == LSTK == 'w1':
        lstamp(a, 2)
        if TS: a.emit(f's_mov_b32 s50, s{S_CNT}')
    if preg: preg()
    if preg and kind == 'w2': lstamp(a, 2, True)
    a.emit('s_barrier')

def dep_late(a, kind, part, n=0):
    ld = f'buffer_load_dword v3, v2, s[{SO}:{SO+3}], s{S_Q} offen sc1'
    if part == 0:
        a.emit(f's_cmp_eq_u32 s{S_WV}, 4')
        a.emit(f's_cselect_b32 s{SO+2}, s{SO+2}, 0')
        a.emit(ld)
        return
    a.emit(f's_cmp_lg_u32 s{S_WV}, 4')
    a.emit(f's_cbranch_scc1 L_{kind}_dep')
    a.emit(f's_waitcnt vmcnt({n})')
    a.emit('v_cmp_ne_u32 vcc, 1, v3')
    a.emit(f's_cbranch_vccz L_{kind}_dep')
    a.label(f'L_{kind}_poll')
    a.emit(ld)
    a.emit(f's_sub_u32 s{S_CNT}, s{S_CNT}, 1')
    a.emit(f's_cbranch_scc1 L_{kind}_dep')
    a.emit('s_waitcnt vmcnt(0)')
    a.emit('v_cmp_ne_u32 vcc, 1, v3')
    a.emit(f's_cbranch_vccnz L_{kind}_poll')
    a.label(f'L_{kind}_dep')
    lstamp(a, 1, True); lstamp(a, 2, True)
    if TS and ENV('LST') != 'x': a.emit(f's_mov_b32 s58, s{S_CNT}')

LGO = 163840 - 64
def dep_early(a):
    srd(a, SO, 'ws0', WS_FL, FLS)
    a.emit(f's_lshl_b32 s86, s{S_TSI}, 12')
    a.emit(f's_lshl_b32 s4, s{S_MT}, 8')
    a.emit('s_add_u32 s86, s86, s4')
    a.emit('s_sub_u32 s86, s86, 4096')
    a.emit('v_and_b32 v12, 15, v1')
    a.emit('v_lshlrev_b32 v12, 2, v12')
    a.emit('v_mov_b32 v3, 0')
    a.emit(f'v_mov_b32 v2, {LGO}')
    a.emit('ds_write_b32 v2, v3')
    a.emit('v_mov_b32 v13, 1')
    a.emit(f's_mov_b32 s{S_CNT}, 0x100000')
    a.emit(f's_cmp_lg_u32 s{S_WV}, 4')
    a.emit('s_waitcnt lgkmcnt(0)')
    a.emit('s_barrier')
    a.emit('s_cbranch_scc1 L_w2_go')
    lstamp(a, 0)
    a.emit('s_mov_b64 exec, 1')
    a.emit(f'buffer_store_dword v13, off, s[{SO}:{SO+3}], s{S_FL} sc1')
    a.emit('s_mov_b64 exec, -1')
    a.label('L_w2_poll')
    a.emit(f'buffer_load_dword v3, v12, s[{SO}:{SO+3}], s86 offen sc1')
    a.emit(f's_sub_u32 s{S_CNT}, s{S_CNT}, 1')
    a.emit('s_cbranch_scc1 L_w2_rel')
    a.emit('s_waitcnt vmcnt(0)')
    a.emit('v_cmp_eq_u32 vcc, 0, v3')
    a.emit('s_cbranch_vccnz L_w2_poll')
    a.label('L_w2_rel')
    a.emit('ds_write_b32 v2, v13')
    lstamp(a, 1)
    a.emit('s_branch L_w2_dep')
    a.label('L_w2_go')
    a.emit(f's_mov_b32 s{S_CNT}, 0x2000000')
    a.label('L_w2_gol')
    a.emit('ds_read_b32 v3, v2')
    a.emit(f's_sub_u32 s{S_CNT}, s{S_CNT}, 1')
    a.emit('s_cbranch_scc1 L_w2_dep')
    a.emit('s_waitcnt lgkmcnt(0)')
    a.emit('v_cmp_eq_u32 vcc, 0, v3')
    a.emit('s_cbranch_vccnz L_w2_gol')
    a.label('L_w2_dep')

def late_flag(a):
    a.emit(f's_cmp_lg_u32 s{S_WV}, 4')
    a.emit('s_cbranch_scc1 L_w2_nolate')
    a.emit('v_mov_b32 v3, 2')
    a.emit('s_mov_b64 exec, 1')
    a.emit(f'buffer_store_dword v3, off, s[{SO}:{SO+3}], s{S_FL} sc1')
    a.emit('s_mov_b64 exec, -1')
    a.label('L_w2_nolate')

def late_check(a):
    a.emit(f's_mov_b32 s{S_CNT}, 0x100000')
    a.label('L_w2_lchk')
    a.emit('v_cmp_ne_u32 vcc, 2, v13')
    a.emit('s_cbranch_vccz L_w2_lok')
    a.emit(f'buffer_load_dword v13, v12, s[{SO}:{SO+3}], s86 offen sc1')
    a.emit(f's_sub_u32 s{S_CNT}, s{S_CNT}, 1')
    a.emit('s_waitcnt vmcnt(0)')
    a.emit('s_cbranch_scc0 L_w2_lchk')
    a.label('L_w2_lok')
    if TS: a.emit(f's_mov_b32 s58, s{S_CNT}')
    lstamps_out(a, 'w2')

def gbar(a, kind):
    if not MEGA or (EARLY and kind == 'w2'): return
    if kind == 'attn':
        a.emit(f's_cmp_eq_u32 s{S_LAYER}, 0')
        a.emit('s_cbranch_scc1 L_attn_nog')
    a.emit('s_barrier')
    if kind == 'attn': a.label('L_attn_nog')

def next_phase(a, kind, comp=False):
    nxt = {'attn': 'wo', 'wo': 'w1', 'w1': 'w2', 'w2': 'attn'}[kind]
    if kind == 'w2':
        a.emit(f's_mov_b32 s{S_LAYER}, 1')
        a.emit(f's_add_u32 s12, s22, {WS_X2}')
        a.emit('s_addc_u32 s13, s23, 0')
        a.emit(f's_add_u32 s34, s22, {LSTR}')
        a.emit('s_addc_u32 s35, s23, 0')
    a.emit(f's_add_u32 s{S_TSI}, s{S_TSI}, 1')
    a.emit(f's_branch L_{nxt}_' + ('compute' if comp and NV and nxt == 'w2' else 'body'))

def last_check(a, kind):
    if kind == 'w2' or (kind == 'attn' and not ONE):
        a.emit(f's_cmp_eq_u32 s{S_LAYER}, {0 if kind == "attn" else 1}')
        a.emit(f's_cbranch_scc1 L_{kind}_end')

def compute_end(a, kind):
    if not MEGA:
        stamps_out(a, kind)
        a.emit('s_endpgm')
        return
    if not TS: last_check(a, kind)
    if TE and kind == 'w2': a.lines[-1] = a.lines[-1].replace('L_w2_end', 'L_fin')
    if kind in EBAR: a.emit('s_barrier')
    import pads
    for x in pads.chain({'attn': 'he', 'wo': 'hw'}.get(kind)): a.emit(x)
    if not ((EARLY or NV) and kind == 'w1'):
        a.emit('s_waitcnt vmcnt(0) lgkmcnt(0)')
        a.emit('s_barrier')
    if TS:
        stamps_out(a, kind)
        if ENV('DIAG') and kind == 'w2': diag(a)
        last_check(a, kind)
    stamp(a, 0, nowait=True)
    next_phase(a, kind, True)

def fin(a):
    if not TE: return
    a.label('L_fin')
    a.emit('s_waitcnt vmcnt(0)')
    a.emit('s_memrealtime s[92:93]')
    srd(a, SP, 'ws0', WS_TS, 1 << 20)
    a.emit(f's_lshl2_add_u32 s4, s2, s{S_WV}')
    a.emit('s_lshl_b32 s4, s4, 3')
    a.emit('s_waitcnt lgkmcnt(0)')
    a.emit('v_mov_b32 v4, s94')
    a.emit('v_mov_b32 v5, s92')
    a.emit('s_mov_b64 exec, 1')
    a.emit(f'buffer_store_dwordx2 v[4:5], off, s[{SP}:{SP+3}], s4')
    a.emit('s_endpgm')

def diag(a):
    ph, j, K, C = [int(x) for x in ENV('DIAG').split(',')]
    a.emit(f's_lshl1_add_u32 s3, s{S_WV}, s{S_LAYER}')
    a.emit('s_cmp_lg_u32 s3, 1')
    a.emit('s_cbranch_scc1 L_diag_end')
    a.emit('s_waitcnt vmcnt(0)')
    a.emit('v_lshlrev_b32 v1, 6, v0')
    for i in range(4): a.emit(f's_mov_b32 s3, {4096*i}'); a.emit(f'buffer_load_dword v{4+i}, v1, s[{SP}:{SP+3}], s3 offen sc1')
    a.emit('s_lshl_b32 s4, s2, 6')
    a.emit(f's_add_u32 s4, s4, {(ph << 16) + 16 * j}')
    a.emit(f'buffer_load_dword v8, off, s[{SP}:{SP+3}], s4 sc1')
    a.emit('s_waitcnt vmcnt(0)')
    for i in range(4): a.emit(f'v_sub_u32 v{4+i}, v8, v{4+i}')
    a.emit('v_max_i32 v4, v4, v5'); a.emit('v_max_i32 v6, v6, v7'); a.emit('v_max_i32 v4, v4, v6')
    a.emit('s_mov_b32 s5, 0')
    a.emit('s_nop 1')
    for i in range(64):
        a.emit(f'v_readlane_b32 s3, v4, {i}')
        a.emit('s_max_i32 s5, s5, s3')
    if C: a.emit(f's_sub_u32 s5, {C}, s5'); a.emit('s_max_i32 s5, s5, 0')
    a.emit('s_min_u32 s5, s5, 15000')
    a.emit(f's_mul_i32 s5, s5, {K}')
    a.emit('s_memrealtime s[6:7]')
    a.emit('s_mov_b32 s4, 0x40000')
    a.emit('s_waitcnt lgkmcnt(0)')
    a.label('L_diag_l')
    a.emit('s_memrealtime s[8:9]')
    a.emit('s_sub_u32 s4, s4, 1')
    a.emit('s_cbranch_scc1 L_diag_end')
    a.emit('s_waitcnt lgkmcnt(0)')
    a.emit('s_sub_u32 s8, s8, s6')
    a.emit('s_cmp_lt_u32 s8, s5')
    a.emit('s_cbranch_scc1 L_diag_l')
    a.label('L_diag_end')

def loader_end(a, kind, check=True):
    if MEGA:
        if kind == LSTK and not EARLY: lstamps_out(a, kind)
        if check: last_check(a, kind)
        a.emit(f's_lshl_b32 s{S_FL}, s{S_TSI}, 15')
        a.emit(f's_lshl_b32 s4, s{S_MT}, 11')
        a.emit(f's_add_u32 s{S_FL}, s{S_FL}, s4')
        a.emit(f's_lshl_b32 s4, s{S_NT}, 2')
        a.emit(f's_add_u32 s{S_FL}, s{S_FL}, s4')
        next_phase(a, kind)

def pf_weights(a, sd, which, size, ldw2, R, sh, L, LMn, tilebytes, NI, vd, row0=0, qkv=False, pair=False):
    if 'nopf' in DBG: return 0
    srd(a, sd, which, 0, size)
    a.emit(f's_and_b32 s3, s{S_WV}, 3')
    a.emit(f's_mul_i32 s3, s3, {NI * (64 >> sh)}')
    a.emit(f's_mul_i32 s4, s{S_CU}, {R}')
    a.emit('s_add_u32 s3, s3, s4')
    if row0: a.emit(f's_add_u32 s3, s3, {row0}')
    a.emit(f'v_lshrrev_b32 v2, {sh}, v1')
    a.emit('v_add_u32 v2, s3, v2')
    a.emit(f'v_mul_u32_u24 v2, {ldw2}, v2')
    a.emit(f'v_and_b32 v3, {(1 << sh) - 1}, v1')
    if L < (1 << sh): a.emit(f'v_min_u32 v3, {L-1}, v3')
    if qkv:
        a.emit('v_lshrrev_b32 v12, 2, v3')
        a.emit('v_lshl_add_u32 v2, v12, 11, v2')
        a.emit('v_and_b32 v3, 3, v3')
    a.emit(f'v_lshl_add_u32 v2, v3, {8 if pair else 7}, v2')
    a.emit('s_and_b32 s3, s2, 7')
    a.emit(f's_lshr_b32 s3, s3, {4 - LMn}')
    a.emit(f's_mul_i32 s3, s3, {tilebytes if pair else (1 << (5 - LMn)) * tilebytes}')
    for i in range(NI):
        a.emit(f'buffer_load_dword v{vd+i}, v2, s[{sd}:{sd+3}], s3 offen')
        if i + 1 < NI: a.emit(f's_add_u32 s3, s3, {(64 >> sh) * ldw2}')
    return NI

_pfc = [0]
def pf_code(a, start, end, vd, forward=True):
    if 'nopfc' in DBG: return 0
    _pfc[0] += 1
    lab = f'L_pfc{_pfc[0]}'
    a.emit('s_getpc_b64 s[4:5]')
    a.label(lab)
    if forward:
        a.emit(f's_add_u32 s4, s4, {start}-{lab}')
        a.emit('s_addc_u32 s5, s5, 0')
    else:
        a.emit(f's_sub_u32 s4, s4, {lab}-{start}')
        a.emit('s_subb_u32 s5, s5, 0')
    a.emit(f's_and_b32 s3, s{S_WV}, 3')
    a.emit('s_lshl_b32 s3, s3, 13')
    a.emit('v_lshl_add_u32 v2, v1, 7, s3')
    a.emit(f'v_min_u32 v2, {end}-{start}-4, v2')
    a.emit(f'global_load_dword v{vd}, v2, s[4:5]')
    return 1

def wbase(a, vd, vt, g='v2'):
    a.emit(f'v_bfe_u32 v{vd}, v1, 2, 2')
    a.emit(f'v_lshl_add_u32 v{vd}, {g}, 3, v{vd}')
    a.emit(f'v_lshlrev_b32 v{vd}, 7, v{vd}')
    a.emit(f'v_and_b32 v{vt}, 3, v1')
    a.emit(f'v_lshl_add_u32 v{vd}, v{vt}, 3, v{vd}')
    a.emit(f'v_bfe_u32 v{vt}, v1, 3, 2')
    a.emit(f'v_lshl_add_u32 v{vd}, v{vt}, 5, v{vd}')


def code_touch(a, start, end, nb, sd=SX, loader=False):
    if ENV('CT', '1') == '0': return
    _pfc[0] += 1
    lab = f'L_pfc{_pfc[0]}'
    a.emit(f's_cmp_lg_u32 s{S_LAYER}, 0')
    a.emit(f's_cbranch_scc1 {lab}_skip')
    a.emit('s_getpc_b64 s[4:5]')
    a.label(lab)
    a.emit(f's_lshl_b32 s3, s{S_CU}, 2')
    a.emit(f's_add_u32 s3, s3, s{S_WV}')
    if loader: a.emit('s_sub_u32 s3, s3, 4')
    a.emit(f's_mul_i32 s3, s3, {nb}')
    a.emit(f's_min_u32 s3, s3, {end}-{start}-{nb}')
    a.emit(f's_add_i32 s3, s3, {start}-{lab}')
    a.emit('s_ashr_i32 s6, s3, 31')
    a.emit('s_add_u32 s4, s4, s3')
    a.emit('s_addc_u32 s5, s5, s6')
    for i in range(nb // 64):
        a.emit(f's_load_dword s{84 if loader else SW}, s[4:5], {64*i}')
    a.label(f'{lab}_skip')

def loader_first(a, kind):
    if ENV('LF', '1') == '0': return
    L = a.lines
    ib = max(i for i, l in enumerate(L) if l.strip() == f's_cbranch_scc1 L_{kind}_loader')
    il = L.index(f'L_{kind}_loader:')
    ie = L.index(f'L_{kind}_end:') + 2
    assert L[ie - 1].strip() == 's_endpgm' and L[ib - 1].strip().startswith('s_cmp_ge_u32')
    L[ib - 1] = L[ib - 1].replace('s_cmp_ge_u32', 's_cmp_lt_u32')
    L[ib] = f'  s_cbranch_scc1 L_{kind}_compute'
    a.lines = L[:ib + 1] + L[il:ie] + [f'L_{kind}_compute:'] + L[ib + 1:il] + L[ie:]

def clear_flags(a, part, n=0):
    if not ONE or DS: return
    if part == 0 and 'attn' not in OT: a.emit(f's_load_dwordx2 s[{SC}:{SC+1}], s[0:1], 72')
    a.emit(f's_or_b32 s3, s{S_LAYER}, s{S_WV}')
    a.emit(f's_cbranch_scc1 L_clr_skip{part}')
    if part == 0:
        srd(a, SP, 'ws0', WS_FL, FLS)
        a.emit('s_lshl_b32 s3, s2, 11')
        a.emit('v_lshlrev_b32 v2, 4, v1')
        a.emit(f'buffer_store_dwordx4 v[128:131], v2, s[{SP}:{SP+3}], s3 offen sc1')
        a.emit(f'buffer_store_dwordx4 v[128:131], v2, s[{SP}:{SP+3}], s3 offen offset:1024 sc1')
    else:
        a.emit('v_mov_b32 v3, 1')
        a.emit(f's_and_b32 s{SC+1}, s{SC+1}, 0xffff')
        a.emit(f's_mov_b32 s{SC+2}, 256')
        a.emit(f's_mov_b32 s{SC+3}, 0x00020000')
        a.emit('s_mov_b64 exec, 1')
        a.emit(f's_waitcnt vmcnt({n})')
        a.emit(f'buffer_store_byte v3, off, s[{SC}:{SC+3}], s2 sc1')
        a.emit('s_mov_b64 exec, -1')
    a.label(f'L_clr_skip{part}')

def mf_order(nn, nm, skip=lambda jn, jm: False):
    m = ENV('MFO', 's')
    if m == 'n': o = [(jn, jm) for jn in range(nn) for jm in range(nm)]
    elif m == 's': o = [(jn, jm if not jn & 1 else nm - 1 - jm) for jn in range(nn) for jm in range(nm)]
    elif m == 'm': o = [(jn, jm) for jm in range(nm) for jn in range(nn)]
    elif m == 'z': o = [(jn if not jm & 1 else nn - 1 - jn, jm) for jm in range(nm) for jn in range(nn)]
    elif m == 'd': o = [(i % nn, (i // nn + i % nn) % nm) for i in range(nn * nm)]
    return [x for x in o if not skip(*x)]
```

```python
from common import *

T4 = ENV('T4', '1') == '1'
OBAR = ENV('OBAR', '0') == '1'
def big_loop(a, tag, N, S, STAGE, naddr, VB, VA, reads, mf, variants=None, select=None, post=None, ot=None, mid=(), halo=None, hooks=None):
    def addr():
        o = [f'v_add_u32_e64 v{VA+i}, s{S_SLOT}, v{VB+i}' for i in range(naddr)]
        o += [f's_add_u32 s{S_SLOT}, s{S_SLOT}, {STAGE}', f's_cmp_eq_u32 s{S_SLOT}, {S*STAGE}', f's_cselect_b32 s{S_SLOT}, 0, s{S_SLOT}']
        return o
    a.emit(f's_mov_b32 s{S_SLOT}, 0')
    for x in addr(): a.emit(x)
    if halo:
        if hooks: own_pos(a, S_CNT)
        else: a.emit(f's_mov_b32 s{S_CNT}, {N}')
        if hooks: a.emit(f's_mul_i32 s{S_T}, s{S_LAYER}, {len(hooks)}')
        a.emit(f's_cmp_eq_u32 s{S_LAYER}, 0')
        a.emit(f's_cbranch_scc1 L_{tag}_nog')
    a.emit(f's_mov_b32 s{S_CNT}, {N - 1 if ot else N}')
    if ot:
        rd = (lambda s, ks: reads(s, ks, False)) if halo else reads
        for x in rd(0, 0): a.emit(x)
        a.emit('s_waitcnt lgkmcnt(0)')
        interleave(a, ot(0), rd(1, 1) + addr(), lead=1, per=1)
        a.emit('s_waitcnt lgkmcnt(0)')
        for x in ot(1): a.emit(x)
    if halo:
        a.emit('s_barrier')
        for x in halo[0]: a.emit(x)
        a.label(f'L_{tag}_nog')
    else:
        import pads
        for x in pads.chain('hv'): a.emit(x)
        gbar(a, tag)
    a.lines += mid
    if halo: a.emit(f's_cmp_eq_u32 s{S_LAYER}, 0')
    a.emit('s_barrier')
    stamp(a, 1)
    if halo:
        a.emit(f's_cbranch_scc1 L_{tag}_first')
        for x in halo[1] + reads(0, 0): a.emit(x)
        a.emit('s_waitcnt lgkmcnt(15)')
        for x in halo[2]: a.emit(x)
        a.emit('s_waitcnt lgkmcnt(0)')
        a.emit(f's_branch L_{tag}_loop')
        a.label(f'L_{tag}_first')
        if not DS: a.emit(f's_load_dwordx2 s[{SC}:{SC+1}], s[0:1], 72')
    for x in reads(0, 0): a.emit(x)
    a.emit('s_waitcnt lgkmcnt(0)')
    def loop(nm, m):
        la = int(ENV('LA_' + tag.upper(), '4'))
        w = a.lines.pop()
        assert w.split()[0] in ('s_waitcnt', 's_cbranch_scc1', 's_branch')
        a('.p2align 5')
        for _ in range(la - 1): a.emit('s_nop 0')
        a.lines.append(w)
        a.label(f'L_{tag}_loop{nm}')
        ad = addr()
        ad[-1] += f'\n  s_sub_u32 s{S_CNT}, s{S_CNT}, 1'
        interleave(a, m(0), reads(1, 1) + ad, lead=1, per=1)
        a.emit('s_waitcnt lgkmcnt(0)')
        a.emit('s_barrier')
        interleave(a, m(1), reads(0, 0) + [f's_cmp_lg_u32 s{S_CNT}, 0\n  s_nop 0'], lead=1, per=1)
        a.emit('s_waitcnt lgkmcnt(0)')
        a.emit(f's_cbranch_scc1 L_{tag}_loop{nm}')
    if variants:
        select()
        vs = list(variants.items())
        for i, (nm, m) in enumerate(vs):
            loop(nm, m)
            if i + 1 < len(vs): a.emit(f's_branch L_{tag}_post')
        a.label(f'L_{tag}_post')
        post()
        a.emit(f's_branch L_{tag}_exit')
    if hooks and PO0 == 0:
        a.emit(f's_cmp_eq_u32 s{S_CNT}, 0')
        a.emit(f's_cbranch_scc1 L_{tag}_lend')
    loop('', mf)
    a.label(f'L_{tag}_lend')
    if hooks:
        a.emit(f's_add_u32 s{S_T}, s{S_T}, 1')
        a.emit(f's_cmp_gt_u32 s{S_T}, {len(hooks)}')
        a.emit(f's_cbranch_scc1 L_{tag}_exit')
        for i, (t, code) in enumerate(hooks):
            if i + 1 < len(hooks):
                a.emit(f's_cmp_lg_u32 s{S_T}, {i + 1}')
                a.emit(f's_cbranch_scc1 L_{tag}_hook{i}')
            t2 = hooks[i + 1][0] if i + 1 < len(hooks) else N
            if t < 0 <= t2:
                own_pos(a, S_CNT)
                a.emit(f's_sub_u32 s{S_CNT}, {t2 + t + 1}, s{S_CNT}')
                assert t2 + t + 1 > PO0 + POM
            else: a.emit(f's_mov_b32 s{S_CNT}, {abs(t2 - t)}')
            for x in code: a.emit(x)
            a.emit(f's_branch L_{tag}_loop')
            if i + 1 < len(hooks): a.label(f'L_{tag}_hook{i}')
    a.label(f'L_{tag}_exit')
    stamp(a, 2)

def stats_loads(a, vd, halo):
    a.emit(f's_and_b32 s3, s{S_WV}, 3')
    a.emit(f's_lshl_b32 s4, s{S_MT}, 7')
    a.emit('s_lshl_b32 s5, s3, 6')
    a.emit('s_add_u32 s5, s5, s4')
    a.emit('v_add_u32 v2, s5, v1')
    a.emit('s_sub_u32 s4, s4, 16')
    a.emit('v_and_b32 v3, 15, v1')
    a.emit('v_add_u32 v3, s4, v3')
    a.emit('v_max_i32 v3, 0, v3')
    a.emit('s_cmp_ge_u32 s3, 2')
    a.emit('s_cselect_b64 vcc, -1, 0')
    a.emit('v_cndmask_b32 v2, v2, v3, vcc')
    a.emit('v_lshlrev_b32 v2, 3, v2')
    a.emit('s_mov_b32 s3, 0')
    for j in range(16):
        a.emit(f'buffer_load_dwordx2 v[{vd+2*j}:{vd+2*j+1}], v2, s[{ST}:{ST+3}], s3 offen')
        if j < 15: a.emit('s_add_u32 s3, s3, 16384')
    return 16

def stats_finish(a, vs):
    a.emit(f'v_mul_f32 v{vs}, 0x3a800000, v{vs}')
    a.emit(f'v_mul_f32 v{vs+1}, 0x3a800000, v{vs+1}')
    a.emit(f'v_fma_f32 v{vs+1}, -v{vs}, v{vs}, v{vs+1}')
    a.emit(f'v_max_f32 v{vs+1}, 0, v{vs+1}')
    a.emit(f'v_add_f32 v{vs+1}, 0x3727c5ac, v{vs+1}')
    a.emit(f'v_rsq_f32 v{vs+1}, v{vs+1}')
    a.emit('s_nop 0')

def stats_reduce_store(a, vd, LST):
    for j in range(1, 8):
        a.emit(f'v_add_f32 v{vd}, v{vd}, v{vd+2*j}')
        a.emit(f'v_add_f32 v{vd+1}, v{vd+1}, v{vd+2*j+1}')
        a.emit(f'v_add_f32 v{vd+16}, v{vd+16}, v{vd+16+2*j}')
        a.emit(f'v_add_f32 v{vd+17}, v{vd+17}, v{vd+17+2*j}')
    a.emit(f'v_add_f32 v{vd}, v{vd}, v{vd+16}')
    a.emit(f'v_add_f32 v{vd+1}, v{vd+1}, v{vd+17}')
    stats_finish(a, vd)
    a.emit(f's_and_b32 s3, s{S_WV}, 3')
    a.emit('s_lshl_b32 s5, s3, 6')
    a.emit('s_add_u32 s5, s5, 16')
    a.emit('v_add_u32 v2, s5, v1')
    a.emit('v_and_b32 v3, 15, v1')
    a.emit('s_cmp_ge_u32 s3, 2')
    a.emit('s_cselect_b64 vcc, -1, 0')
    a.emit('v_cndmask_b32 v2, v2, v3, vcc')
    a.emit('v_lshlrev_b32 v2, 2, v2')
    a.emit(f'v_add_u32 v2, {LST}, v2')
    a.emit(f'ds_write2_b32 v2, v{vd}, v{vd+1} offset0:0 offset1:160')

VST, VSH, VCS, VBI = 18, 19, 22, 23
def stats4_setup(a, halo):
    a.emit(f's_and_b32 s3, s{S_WV}, 3')
    a.emit(f's_lshl2_add_u32 s4, s{S_MT}, s3')
    a.emit('s_lshl_b32 s4, s4, 8')
    a.emit('v_lshrrev_b32 v2, 4, v1')
    a.emit('v_and_b32 v3, 15, v1')
    a.emit('v_lshl_add_u32 v3, v3, 4, s4')
    a.emit(f'v_lshl_add_u32 v{VST}, v2, 14, v3')
    if halo:
        a.emit(f's_lshl_b32 s4, s{S_MT}, 5')
        a.emit('s_add_u32 s4, s4, s3')
        a.emit('s_sub_u32 s4, s4, 4')
        a.emit('s_max_i32 s4, s4, 0')
        a.emit('s_lshl_b32 s4, s4, 5')
        a.emit('v_lshrrev_b32 v2, 2, v1')
        a.emit('v_and_b32 v3, 3, v1')
        a.emit('v_lshl_add_u32 v3, v3, 3, s4')
        a.emit(f'v_lshl_add_u32 v{VSH}, v2, 14, v3')

def quad_loads(vd, vo, sd):
    o = []
    for j in range(4):
        if j: o.append(f's_mov_b32 s3, {j << 16}')
        o.append(f'buffer_load_dwordx4 v[{vd+4*j}:{vd+4*j+3}], v{vo}, s[{sd}:{sd+3}], {"s3" if j else 0} offen')
    return o

def stats4_loads(vd, halo):
    return quad_loads(vd, VST, ST) + ([f'buffer_load_dwordx2 v[{vd+16}:{vd+17}], v{VSH}, s[{ST}:{ST+3}], 0 offen'] if halo else [])

def quad_sum(a, vd):
    pk = lambda d, s: a.emit(f'v_pk_add_f32 v[{d}:{d+1}], v[{d}:{d+1}], v[{s}:{s+1}]')
    pk(vd, vd + 4); pk(vd + 2, vd + 6); pk(vd + 8, vd + 12); pk(vd + 10, vd + 14); pk(vd, vd + 8); pk(vd + 2, vd + 10)
    a.emit('s_nop 1')
    a.emit(f'v_permlane32_swap_b32 v{vd}, v{vd+2}')
    a.emit(f'v_permlane32_swap_b32 v{vd+1}, v{vd+3}')
    pk(vd, vd + 2)

def stats4_store(a, vd, LST, halo, chk=None):
    quad_sum(a, vd)
    if chk: chk()
    def allsum(r, op):
        a.emit(f'v_mov_b32 v{r+2}, v{r}')
        a.emit(f'v_mov_b32 v{r+3}, v{r+1}')
        a.emit('s_nop 0')
        a.emit(f'v_permlane{op}_swap_b32 v{r}, v{r+2}')
        a.emit(f'v_permlane{op}_swap_b32 v{r+1}, v{r+3}')
        a.emit(f'v_pk_add_f32 v[{r}:{r+1}], v[{r}:{r+1}], v[{r+2}:{r+3}]')
    allsum(vd, 16)
    stats_finish(a, vd)
    a.emit(f's_and_b32 s3, s{S_WV}, 3')
    a.emit('s_lshl_b32 s5, s3, 7')
    a.emit(f's_add_u32 s5, s5, {LST + 64}')
    a.emit('v_and_b32 v3, 15, v1')
    a.emit('v_lshrrev_b32 v2, 5, v1')
    a.emit('v_lshl_add_u32 v2, v3, 1, v2')
    a.emit('v_lshl_add_u32 v2, v2, 2, s5')
    a.emit(f'ds_write2_b32 v2, v{vd}, v{vd+1} offset0:0 offset1:160')
    if halo:
        h = vd + 16
        allsum(h, 32); allsum(h, 16)
        for r in (8, 4):
            a.emit('s_nop 1')
            for i in range(2): a.emit(f'v_add_f32_dpp v{h+i}, v{h+i}, v{h+i} row_ror:{r} row_mask:0xf bank_mask:0xf')
        stats_finish(a, h)
        a.emit('s_lshl_b32 s5, s3, 4')
        a.emit(f's_add_u32 s5, s5, {LST}')
        a.emit('v_and_b32 v3, 3, v1')
        a.emit('v_lshl_add_u32 v2, v3, 2, s5')
        a.emit(f'ds_write2_b32 v2, v{h}, v{h+1} offset0:0 offset1:160')

def gen_w1(a, tsidx, side, cs=(16, 16384, 0)):
    kind = 'w1'
    K = 1024; lda2 = 2048; ldw2 = 7168; ldo2 = 7168
    ot = kind in OT
    S = 3; LM = int(ENV('LM_W1', '2' if ot else '3'))
    STAGE = 16384 + 4 * 8192
    o2 = 'w2' in OT
    assert LM == 2 or not o2
    LST = OHB - 4096 if o2 else S * STAGE
    LCS = LST + 1280
    N = 16
    body = f'L_{kind}_body'; end = f'L_{kind}_end'
    VB, VA, VO = 4, 20, 12
    F = [32, 80]; ACC = 128
    acc = lambda jn, jm: ACC + (jn * 4 + jm) * 4
    fx = lambda s, jm: F[s] + jm * 4
    fw = lambda s, jn: F[s] + 16 + jn * 4
    a.label(f'L_{kind}_c0')
    if not MEGA: stub(a, f'{kind}l0_kernel', body, 0, tsidx, True)
    a.label(body)
    tile_map(a, LM, end)
    a.emit(f's_cmp_ge_u32 s{S_WV}, 4')
    a.emit(f's_cbranch_scc1 L_{kind}_loader')
    if ot and OBAR: a.emit('s_barrier')
    if NV:
        from gemm64y import w2_pre, w2_early
        w2_pre(a)
        tile_map(a, LM, None)
    a.emit(f's_and_b32 s{S_WM}, s{S_WV}, 1')
    a.emit(f's_lshr_b32 s{S_WN}, s{S_WV}, 1')
    a.emit('v_and_b32 v3, 15, v1')
    a.emit('v_lshrrev_b32 v2, 4, v1')
    a.emit(f's_lshl_b32 s8, s{S_WM}, 13')
    a.emit(f'v_lshl_add_u32 v{VB}, v1, 4, s8')
    wbase(a, 13, 17)
    a.emit(f's_lshl_b32 s9, s{S_WN}, 6')
    a.emit('v_xor_b32 v13, s9, v13')
    a.emit(f'v_add_u32 v{VB+1}, 16384, v13')
    a.emit(f'v_xor_b32 v{VB+2}, 32, v{VB+1}')
    a.emit('v_and_b32 v16, 1, v2')
    a.emit('v_lshrrev_b32 v17, 1, v2')
    a.emit('v_bfe_u32 v13, v1, 2, 2')
    a.emit('v_lshl_add_u32 v13, v16, 3, v13')
    a.emit('v_lshl_add_u32 v13, v17, 5, v13')
    a.emit(f'v_xor_b32 v14, s{S_WN}, v16')
    a.emit('v_lshl_add_u32 v13, v13, 1, v14')
    a.emit('v_and_b32 v14, 3, v1')
    a.emit('v_lshl_add_u32 v13, v13, 2, v14')
    a.emit('v_lshlrev_b32 v13, 3, v13')
    a.emit(f'v_add_u32 v{VB+3}, {16384 + 3 * 8192}, v13')
    i0 = len(a.lines)
    a.emit(f's_lshl_b32 s8, s{S_MT}, 7')
    a.emit(f's_lshl_b32 s9, s{S_WM}, 6')
    a.emit('s_add_u32 s8, s8, s9')
    a.emit(f's_mul_i32 s8, s8, {ldo2}')
    a.emit('v_lshlrev_b32 v14, 8, v17')
    a.emit('v_lshl_add_u32 v14, v3, 4, v14')
    if o2:
        a.emit(f's_lshl3_add_u32 s9, s{S_WM}, s{S_WN}')
        a.emit('s_lshl_b32 s9, s9, 10')
        a.emit(f's_add_u32 s9, s9, {OHB}')
        a.emit('v_lshl_add_u32 v18, v16, 9, v14')
        a.emit('v_add_u32 v18, s9, v18')
        srd(a, SB, 'b2', 0, 2048)
        a.emit(f's_lshr_b32 s9, s{S_NT}, 3')
        a.emit(f's_and_b32 s10, s{S_NT}, 7')
        a.emit('s_lshl1_add_u32 s9, s10, s9')
        a.emit('s_lshl_b32 s9, s9, 7')
        a.emit('v_lshl_add_u32 v19, v2, 3, s9')
    a.emit('v_add_u32 v14, s8, v14')
    a.emit(f's_lshl_b32 s10, s{S_NT}, 11')
    a.emit(f's_lshl_b32 s9, s{S_WN}, 10')
    a.emit('s_add_u32 s9, s9, s10')
    a.emit(f'v_lshl_add_u32 v{VO}, v16, 9, v14')
    a.emit(f'v_add_u32 v{VO}, s9, v{VO}')
    a.emit(f'v_mul_u32_u24 v16, {16*ldo2}, v16')
    a.emit('s_lshr_b32 s9, s9, 1')
    a.emit(f'v_add3_u32 v{VO+1}, v16, v14, s9')
    a.emit(f's_lshl_b32 s9, s{S_WM}, 8')
    a.emit(f's_add_u32 s9, s9, {LST + 64}')
    a.emit('v_lshl_add_u32 v14, v3, 2, s9')
    a.emit(f's_lshl_b32 s9, s{S_WN}, 7')
    a.emit(f's_add_u32 s9, s9, {LCS}')
    a.emit('v_lshl_add_u32 v15, v2, 4, s9')
    a.emit(f's_lshl_b32 s9, s{S_WN}, 6')
    a.emit(f's_add_u32 s9, s9, {LCS}')
    a.emit('v_lshl_add_u32 v16, v2, 4, s9')
    for i in range(0 if ot else 112): a.emit(f'v_mov_b32 v{ACC+i}, 0')
    if not MEGA: a.emit('s_waitcnt lgkmcnt(0)')
    srd(a, SO, 'ws', WS_H, 2048 * 7168)
    if not ot: code_touch(a, 'L_w2_c0', 'L_w2_c1', 192 if SPX else 128)
    mid = []
    if ot: mid = a.lines[i0:]; del a.lines[i0:]
    def reads(s, ks):
        o = []
        if 'noread' in DBG: return o
        for jm in range(4):
            o.append(f'ds_read_b128 v[{fx(s,jm)}:{fx(s,jm)+3}], v{VA} offset:{jm*2048+ks*1024}')
        for jn in range(7):
            for h in range(2):
                r = fw(s, jn) + 2 * h
                o.append(f'ds_read_b64_tr_b16 v[{r}:{r+1}], v{VA+1+(jn&1 if jn < 6 else 2)} offset:{((jn>>1)*8192+h*512 if jn < 6 else h*256)+ks*4096}')
        return o
    def mf(s):
        o = []
        if 'nomfma' in DBG: return ['s_nop 0']
        for jn, jm in mf_order(7, 4):
            if True:
                c = acc(jn, jm)
                o.append(f'v_mfma_f32_16x16x32_bf16 v[{c}:{c+3}], v[{fw(s,jn)}:{fw(s,jn)+3}], v[{fx(s,jm)}:{fx(s,jm)+3}], v[{c}:{c+3}]')
        return o
    zc = lambda x: x[:x.rindex(',')] + ', 0'
    big_loop(a, kind, N, S, STAGE, 4, VB, VA, reads, mf, ot=(lambda s: mf(1) if s else [zc(x) for x in mf(0)]) if ot else None, mid=mid)
    CS = 32; BI = 60; STT = 88; CK = 96; T = 100; D = 108
    for jm in range(4):
        a.emit(f'ds_read2_b32 v[{STT+2*jm}:{STT+2*jm+1}], v14 offset0:{16*jm} offset1:{160+16*jm}')
    for jn in range(7):
        a.emit(f'ds_read_b128 v[{CS+4*jn}:{CS+4*jn+3}], v{15 if jn < 6 else 16} offset:{(jn>>1)*256+(jn&1)*64}')
        a.emit(f'ds_read_b128 v[{BI+4*jn}:{BI+4*jn+3}], v{15 if jn < 6 else 16} offset:{1024+(jn>>1)*256+(jn&1)*64}')
    for jn in range(4 if o2 else 0):
        a.emit(f'buffer_load_dwordx2 v[{OBIA[jn]}:{OBIA[jn]+1}], v19, s[{SB}:{SB+3}], 0 offen offset:{jn*32}')
    c0 = -2.0 * 0.7978845608028654 * 1.4426950408889634
    c1 = c0 * 0.044715
    a.emit(f'v_mov_b32 v{CK}, {f2u(c0):#x}')
    a.emit(f'v_mov_b32 v{CK+1}, {f2u(c1):#x}')
    a.emit(f'v_mov_b32 v{CK+2}, 1.0')
    a.emit('s_waitcnt lgkmcnt(0)')
    for jm in range(4):
        a.emit(f'v_mul_f32 v{STT+2*jm}, v{STT+2*jm}, v{STT+2*jm+1}')
    def tile_math(jn, jm, d):
        c = acc(jn, jm)
        seqs = []
        ST2 = f'v[{STT+2*jm}:{STT+2*jm+1}]'
        for q in range(2):
            x = c + 2 * q; t = T + 2 * q + 4 * (jn & 1)
            X = f'v[{x}:{x+1}]'; TT = f'v[{t}:{t+1}]'
            seqs.append([
              f'v_pk_fma_f32 {TT}, v[{CS+4*jn+2*q}:{CS+4*jn+2*q+1}], {ST2}, v[{BI+4*jn+2*q}:{BI+4*jn+2*q+1}] op_sel:[0,0,0] op_sel_hi:[1,0,1] neg_lo:[0,1,0] neg_hi:[0,1,0]',
              f'v_pk_fma_f32 {X}, {X}, {ST2}, {TT} op_sel:[0,1,0] op_sel_hi:[1,1,1]',
              f'v_pk_mul_f32 {TT}, {X}, {X}',
              f'v_pk_fma_f32 {TT}, {TT}, v[{CK}:{CK+1}], v[{CK}:{CK+1}] op_sel:[0,1,0] op_sel_hi:[1,1,0]',
              f'v_pk_mul_f32 {TT}, {TT}, {X}',
              f'v_exp_f32 v{t}, v{t}\n  v_exp_f32 v{t+1}, v{t+1}',
              f'v_pk_add_f32 {TT}, {TT}, v[{CK+2}:{CK+3}] op_sel_hi:[1,0]',
              f'v_rcp_f32 v{t}, v{t}\n  v_rcp_f32 v{t+1}, v{t+1}',
              f'v_pk_mul_f32 {X}, {X}, {TT}',
              f'v_cvt_pk_bf16_f32 v{d+q}, v{x}, v{x+1}'])
        for ia, ib in zip(*seqs):
            a.emit(ia); a.emit(ib)
    cnt = [0]
    def pair(t0, t1, vo, soff, big=False):
        d = D + 4 * (cnt[0] % 4); cnt[0] += 1
        tile_math(*t0, d); tile_math(*t1, d + 2)
        a.emit(f's_add_u32 s3, s10, {soff}' if big else f's_mov_b32 s3, {soff}')
        a.emit('s_nop 0')
        a.emit(f'v_permlane16_swap_b32 v{d}, v{d+2}')
        a.emit(f'v_permlane16_swap_b32 v{d+1}, v{d+3}')
        a.emit(f'buffer_store_dwordx4 v[{d}:{d+3}], v{vo}, s[{SO}:{SO+3}], s3 offen{stf(kind)}')
        if o2 and t0[0] < 6: a.emit(f'ds_write_b128 v18, v[{d}:{d+3}] offset:{(t0[0] // 2 + 2) % 3 * 16384 + t0[1] * 2048}')
    pr = lambda p, jm: pair((2 * p, jm), (2 * p + 1, jm), VO, jm * 16 * ldo2 + (46 + 2 * p) * 1024 * (p > 0), p > 0)
    od = lambda jm: pair((6, jm), (6, jm + 1), VO + 1, jm * 16 * ldo2 + 32768)
    order = [lambda jm=jm: pr(0, jm) for jm in range(4)] + [lambda: od(0), lambda: od(2)] + [lambda jm=jm, p=p: pr(p, jm) for jm in range(4) for p in (1, 2)]
    EW = int(ENV('EW', '10'))
    for i, f in enumerate(order):
        f()
        if NV and i + 1 == EX: w2_early(a)
        if EARLY and i + 1 == EW:
            a.emit(f's_waitcnt vmcnt({EW - EARLY // 4})')
            a.emit('s_barrier')
    if ENV('ES'): stamp(a, 1)
    compute_end(a, kind)
    a.label(f'L_{kind}_loader')
    L = Loader(a, kind, K, lda2, ldw2, [0, f's{S_HD}', 's_add_u32 s4, s4, 128'], 128, S, STAGE, rot=int(ENV('ROT_W1', '0')), xblk=True, half=2048)
    L.ot = int(ot)
    L.setup()
    a.emit('s_waitcnt lgkmcnt(0)')
    if ot and ENV('CT2', 'l') == 'l': code_touch(a, 'L_w2_c0', 'L_w2_c1', 192, loader=True)
    srd(a, SX, 'ws', WS_X1, 4 * MB); srd(a, SW, 'w1', 0, 1024 * 7168)
    srd(a, ST, 'ws', WS_ST, 16 * 16384); srd(a, SC, 'ws0', WS_CS, 16 * 16384); srd(a, SB, 'b1', 0, 7168)
    def tail():
        stats_loads(a, 32, False)
        a.emit(f's_lshl_b32 s4, s{S_NT}, 7')
        a.emit(f's_lshl_b32 s5, s{S_WV}, 6')
        a.emit('s_add_u32 s4, s4, s5')
        a.emit(f's_add_u32 s4, s4, {1472 - 256}')
        a.emit(f's_lshl_b32 s5, s{S_NT}, 6')
        a.emit(f's_cmp_eq_u32 s{S_WV}, 4')
        a.emit('s_cselect_b32 s4, s5, s4')
        a.emit('s_lshr_b32 s5, s5, 1')
        a.emit('s_add_u32 s5, s5, 1024')
        a.emit(f's_cmp_eq_u32 s{S_WV}, 7')
        a.emit('s_cselect_b32 s4, s5, s4')
        a.emit('v_add_u32 v3, s4, v1')
        a.emit('v_lshlrev_b32 v2, 2, v3')
        a.emit('v_lshlrev_b32 v3, 1, v3')
        a.emit(f's_mov_b32 s3, {cs[2]}')
        for j in range(16):
            if j < cs[0]:
                a.emit(f'buffer_load_dword v{64+j}, v2, s[{SC}:{SC+3}], s3 offen')
                if j < cs[0] - 1: a.emit(f's_add_u32 s3, s3, {cs[1]}')
            else:
                a.emit(f'v_mov_b32 v{64+j}, 0')
        a.emit(f'buffer_load_ushort v80, v3, s[{SB}:{SB+3}], 0 offen')
        side(a, 'issue')
    ns = side(Asm(), 'issue')
    extra = None
    if VW:
        assert int(ENV('LM_W2', '2')) == 2
        srd(a, SR, 'w2', 0, 3584 * 2048)
        a.emit('s_and_b32 s5, s2, 3')
        a.emit('s_lshl_b32 s5, s5, 2')
        a.emit(f's_and_b32 s6, s{S_CU}, 3')
        a.emit('s_add_u32 s5, s5, s6')
        a.emit('s_and_b32 s6, s2, 4')
        a.emit('s_lshl_b32 s6, s6, 1')
        a.emit(f's_lshr_b32 s7, s{S_CU}, 2')
        a.emit('s_add_u32 s6, s6, s7')
        rot_table(a, S_TB, 5, 6, 'w2')
        a.emit(f's_add_u32 s5, s5, s{S_WV}')
        a.emit('s_and_b32 s5, s5, 3')
        wvoff(a, 16, 5, 6, 2048)
        sched = [int(c) for c in ENV('PSCH', '0111111111111122')]
        assert sum(sched) >= NV1
        def extra(i):
            o = []
            for p in range(sum(sched[:i]), min(NV1, sum(sched[:i + 1]))): o += park(56, 2 * p, 128 + 8 * p, 16, SR)
            return o
        ns += sum(x.startswith('buffer_load') for i in (13, 14, 15) for x in extra(i))
    if XD:
        extra = tail_parks('w2', SR, lambda b: srd(b, SR, 'w2', 0, 3584 * 2048))
        ns += 2 * sum(TSCH['w2'])
    if XD and ENV('PFL', '2') == '3':
        b = Asm(); side(b, 'late'); pl = [l.strip() for l in b.lines]
        pl = [l.replace('v2,', 'v18,').replace(', v2', ', v18').replace('s3', 's93') for l in pl]
        i0 = min(i for i, l in enumerate(pl) if l.startswith('buffer_load'))
        for l in pl[:i0]: a.emit(l)
        st = [int(x) for x in ENV('PFS', '6,10').split(',')]
        extra = lambda i: pl[i0 + 2 * st.index(i):i0 + 2 * st.index(i) + 2] if i in st else []
    def final():
        a.emit(f's_waitcnt vmcnt({ns})')
        if ENV('PFL', '2') == '1': side(a, 'late')
        stats_reduce_store(a, 32, LST)
        for j in range(8): a.emit(f'v_add_f32 v{64+j}, v{64+j}, v{72+j}')
        for j in range(4): a.emit(f'v_add_f32 v{64+j}, v{64+j}, v{68+j}')
        a.emit('v_add_f32 v64, v64, v65')
        a.emit('v_add_f32 v66, v66, v67')
        a.emit('v_add_f32 v64, v64, v66')
        a.emit('v_lshlrev_b32 v80, 16, v80')
        a.emit('v_lshlrev_b32 v2, 2, v0')
        a.emit(f'v_add_u32 v2, {LCS - 1024}, v2')
        a.emit('ds_write_b32 v2, v64')
        a.emit('ds_write_b32 v2, v80 offset:1024')
        a.emit('s_waitcnt lgkmcnt(0)')
    import sides
    if T4:
        stats4_setup(a, False)
        a.emit(f's_lshl_b32 s4, s{S_NT}, 7')
        a.emit(f's_lshl_b32 s5, s{S_WV}, 6')
        a.emit('s_add_u32 s4, s4, s5')
        a.emit(f's_add_u32 s4, s4, {1472 - 256}')
        a.emit(f's_lshl_b32 s5, s{S_NT}, 6')
        a.emit(f's_cmp_eq_u32 s{S_WV}, 4')
        a.emit('s_cselect_b32 s4, s5, s4')
        a.emit('s_lshr_b32 s5, s5, 1')
        a.emit('s_add_u32 s5, s5, 1024')
        a.emit(f's_cmp_eq_u32 s{S_WV}, 7')
        a.emit('s_cselect_b32 s4, s5, s4')
        a.emit('v_and_b32 v3, 15, v1')
        a.emit('v_lshl_add_u32 v3, v3, 2, s4')
        a.emit('v_lshrrev_b32 v2, 4, v1')
        a.emit(f'v_add_lshl_u32 v{VBI}, v3, v2, 1')
        a.emit('v_lshlrev_b32 v3, 2, v3')
        a.emit(f'v_lshl_add_u32 v{VCS}, v2, 14, v3')
        CSI = int(ENV('CSI', '14')); STI = int(ENV('STI', '14'))
        def extra4(i):
            o = []
            if i == CSI: o += quad_loads(64, VCS, SC) + [f'buffer_load_ushort v80, v{VBI}, s[{SB}:{SB+3}], 0 offen']
            if i == STI: o += stats4_loads(32, False)
            return o
        def final4():
            a.emit('s_waitcnt vmcnt(0)')
            stats4_store(a, 32, LST, False)
            quad_sum(a, 64)
            a.emit('v_lshlrev_b32 v80, 16, v80')
            a.emit('s_lshl_b32 s5, s3, 8')
            a.emit(f's_add_u32 s5, s5, {LCS}')
            a.emit('v_permlane16_swap_b32 v64, v65')
            a.emit('v_lshrrev_b32 v2, 4, v1')
            a.emit('v_lshl_add_u32 v2, v3, 2, v2')
            a.emit('v_lshl_add_u32 v2, v2, 2, s5')
            a.emit('v_add_f32 v64, v64, v65')
            a.emit('ds_write2st64_b32 v2, v64, v80 offset0:0 offset1:4')
            a.emit('s_waitcnt lgkmcnt(0)')
        assert ns == 0
        L.run(final=final4, extra=extra4, post=sides.stouch_post(a, kind), dep=lambda pf: dep_wait(a, kind, postf=pf, obar=L.npre - 6 if ot and OBAR else 0, pref=(lambda: a.emit(f's_waitcnt vmcnt({L.npre - 7})')) if ot and not OBAR else None))
    else: L.run(tail_issue=tail, ntail_vm=17 + cs[0] + side(Asm(), 'issue'), final=final, extra=extra, post=sides.stouch_post(a, kind),
          dep=(lambda pf: dep_wait(a, kind, postf=pf)) if MEGA else None)
    if ENV('PFL', '2') == '2': side(a, 'late')
    if not VW: side(a, 'finish')
    loader_end(a, kind)
    a.label(end)
    a.emit('s_endpgm')
    loader_first(a, kind)
    if not MEGA:
        a(KD.format(name=f'{kind}l0_kernel'))
        stub(a, f'{kind}l1_kernel', body, 1, tsidx + 4, False)
        a(KD.format(name=f'{kind}l1_kernel'))
    a.label(f'L_{kind}_c1')
    return LCS + 2048
```

```python
import sys, os, struct
sys.path.insert(0, os.path.join(os.path.dirname(os.path.abspath(__file__)), '..'))
from asmlib import Asm, check_offsets
MB = 1 << 20
WSB = int(os.environ.get('WSB', '0')) * MB
WS_O   = WSB
WS_X1  = WSB + 4 * MB
WS_H   = WSB + 8 * MB
WS_ST  = WSB + 23 * MB
WS_CS  = WSB + 23 * MB + 512 * 1024
WS_ST0 = WSB + 23 * MB + 768 * 1024
D2 = os.environ.get('DS', '2') == '2'
DS = os.environ.get('DS', '2') in '12'
WS_TS  = 60 * MB
MEGA = os.environ.get('MEGA', '2') in ('1', '2')
ONE = os.environ.get('MEGA', '2') == '2'
LSTR = 64 * MB
WS_ST2 = WS_ST + 256 * 1024 if MEGA else WS_ST
WS_FL = WSB + 40 * MB
FLS = 524288
REP = int(os.environ.get('REP', '16'))
WS_XP = WSB + 24 * MB
WS_X2 = WSB + 32 * MB
XPAD = int(os.environ.get('XPAD', '128')) if MEGA else 0
f2u = lambda f: struct.unpack('<I', struct.pack('<f', f))[0]
ENV = os.environ.get
TS = ENV('TS', '')
TE = ENV('TE', '')
DBG = ENV('DBG', '').split(',')
EARLY = int(ENV('EARLY', '0')) if MEGA and ENV('SPLIT', '0') == '0' else 0
def stf(kind): return (' ' + ENV('WTF', 'sc1')) if kind in ENV('WT', 'attn,wo,w2,w1').split(',') else ''

KA = {'A_x': 0, 'wqkv': 8, 'wo': 16, 'w1': 32, 'b1': 40, 'w2': 48, 'b2': 56, 'out': 64, 'ws': 80}
P_IN = 16
P_OUT = 32; P_WS = 34
P_XS = 12
PTR = {'A_x': 16, 'wqkv': 18, 'wo': 20, 'w1': 24, 'b1': 26, 'w2': 28, 'b2': 30, 'out': 32, 'ws': 34, 'xs': 12, 'ws0': 22}
SX, SW, SO, SR, SB, ST, SP, SC = 36, 40, 44, 48, 52, 56, 60, 64
S_MT, S_NT, S_WV, S_WM, S_WN = 68, 69, 70, 71, 72
S_KX, S_KW, S_SLOT, S_XD, S_WD, S_HD, S_CNT = 73, 74, 75, 76, 77, 78, 79
S_LAYER = 96; S_TSI = 97; S_T = 98; S_CU = 99; S_XG = 100; S_KT = 101

KD = '''.section .rodata,"a"
.p2align 6
.amdhsa_kernel {name}
  .amdhsa_next_free_vgpr 256
  .amdhsa_next_free_sgpr 102
  .amdhsa_accum_offset 256
  .amdhsa_group_segment_fixed_size 0
  .amdhsa_kernarg_size 88
  .amdhsa_user_sgpr_count 2
  .amdhsa_user_sgpr_kernarg_segment_ptr 1
  .amdhsa_system_sgpr_workgroup_id_x 1
  .amdhsa_float_denorm_mode_32 3
  .amdhsa_float_denorm_mode_16_64 3
.end_amdhsa_kernel
.text
'''

def srd(a, sd, which, off, size):
    p = PTR[which]
    if off:
        a.emit(f's_add_u32 s{sd}, s{p}, {off}')
        a.emit(f's_addc_u32 s{sd+1}, s{p+1}, 0')
        a.emit(f's_and_b32 s{sd+1}, s{sd+1}, 0xffff')
    else:
        a.emit(f's_mov_b32 s{sd}, s{p}')
        a.emit(f's_and_b32 s{sd+1}, s{p+1}, 0xffff')
    a.emit(f's_mov_b32 s{sd+2}, {size}')
    a.emit(f's_mov_b32 s{sd+3}, 0x00020000')

def xpitch(a, sd, inv=False):
    a.emit(f's_cmp_eq_u32 s{S_LAYER}, {0 if inv else 1}')
    a.emit(f's_cselect_b32 s{sd}, {XPAD}, 0')
    a.emit(f's_add_u32 s{sd}, s{sd}, 2048')

def srd_xs(a, sd):
    srd(a, sd, 'xs', 0, 4 * MB)
    xpitch(a, sd + 2)
    a.emit(f's_lshl_b32 s{sd+2}, s{sd+2}, 11')

def stub(a, name, body, layer, tsidx, first):
    a(f'.text\n.globl {name}\n.p2align 8\n.type {name},@function\n{name}:')
    if TS:
        stamp(a, 0, nowait=True)
    if TE: a.emit('s_memrealtime s[94:95]')
    a.emit('s_load_dwordx4 s[16:19], s[0:1], 0')
    a.emit('s_load_dwordx2 s[20:21], s[0:1], 16')
    a.emit('s_load_dwordx2 s[22:23], s[0:1], 80')
    a.emit('s_load_dwordx8 s[24:31], s[0:1], 32')
    a.emit('s_load_dwordx2 s[32:33], s[0:1], 64')
    a.emit('s_load_dwordx2 s[34:35], s[0:1], 80')
    a.emit(f's_load_dwordx2 s[12:13], s[0:1], {0 if layer == 0 else 64}')
    if DS: a.emit(f's_load_dwordx2 s[{SC}:{SC+1}], s[0:1], 72')
    a.emit(f's_mov_b32 s{S_LAYER}, {layer}')
    if ENV('PADS', '0') == '1': a.emit('s_mov_b64 exec, -1')
    a.emit(f's_mov_b32 s{S_TSI}, {tsidx}')
    if not first:
        a.emit(f's_branch {body}')

def stamp(a, n, nowait=False):
    if not TS: return
    a.emit(f's_memrealtime s[{80+4*n}:{81+4*n}]')
    a.emit(f's_memtime s[{82+4*n}:{83+4*n}]')
    if not nowait: a.emit('s_waitcnt lgkmcnt(0)')

def stamps_out(a, tag):
    if not TS: return
    if not MEGA: a.emit('s_waitcnt vmcnt(0)')
    stamp(a, 3)
    if MEGA and tag == 'w1':
        for i in range(16): a.emit(f'v_writelane_b32 v31, s{80+i}, {i}')
        return
    srd(a, SP, 'ws0', WS_TS, 1 << 20)
    a.emit('s_lshl_b32 s4, s2, 6')
    a.emit(f's_lshl_b32 s5, s{S_TSI}, 16')
    a.emit('s_add_u32 s4, s4, s5')
    a.emit('v_mov_b32 v1, s4')
    for i in range(16): a.emit(f'v_mov_b32 v{4+i}, s{80+i}')
    a.emit('v_cmp_eq_u32 vcc, 0, v0')
    a.emit('s_and_saveexec_b64 s[6:7], vcc')
    a.emit(f's_cbranch_execz L_tsskip_{tag}')
    for j in range(4):
        a.emit(f'buffer_store_dwordx4 v[{4+4*j}:{7+4*j}], v1, s[{SP}:{SP+3}], 0 offen offset:{16*j}' + (' sc1' if ENV('DIAG') else ''))
    if MEGA and tag == 'w2':
        a.emit('s_mov_b64 exec, 0xffff')
        a.emit('s_sub_u32 s4, s4, 0x10000')
        a.emit('v_lshlrev_b32 v1, 2, v0')
        a.emit(f'buffer_store_dword v31, v1, s[{SP}:{SP+3}], s4 offen' + (' sc1' if ENV('DIAG') else ''))
    a.label(f'L_tsskip_{tag}')
    a.emit('s_mov_b64 exec, -1')

SPX = ENV('SPX', '1') == '1'
OT = ENV('OT', 'w1,w2,attn').split(',')
S_T0 = 91
OHB = 114688; OBIA = [10, 24, 124, 126]
NV = int(ENV('NV', '0'))
EF = int(ENV('EF', '0'))
NS = ENV('NS', 'wo,w1,w2').split(',')
NSR = ENV('NSR', '1') == '1'
EX = int(ENV('EX', '14'))
LSTK = ENV('LSTK', 'w2')
LREG = [52, 54, 56, 58] if LSTK == 'w2' else [36, 38, 48, 50] if LSTK == 'wo' else [80, 82, 48, 50]
def lstamp(a, n, dep=False):
    if dep and (ENV('LST') == 'x' or LSTK != 'w2'): return
    if TS: a.emit(f's_memrealtime s[{LREG[n]}:{LREG[n]+1}]')

def lstamps_out(a, tag):
    if not TS: return
    a.emit(f"s_cmp_lg_u32 s{S_WV}, {ENV('PW_' + tag.upper(), '4')}")
    a.emit(f's_cbranch_scc1 L_ltsskip_{tag}')
    a.emit('s_waitcnt lgkmcnt(0)')
    srd(a, SP, 'ws0', WS_TS + 16384, 1 << 20)
    a.emit('s_lshl_b32 s4, s2, 6')
    a.emit(f's_lshl_b32 s5, s{S_TSI}, 16')
    a.emit('s_add_u32 s4, s4, s5')
    for i in range(8): a.emit(f'v_writelane_b32 v20, s{LREG[i>>1]+(i&1)}, {i}')
    a.emit('v_lshlrev_b32 v21, 2, v1')
    a.emit('s_mov_b64 exec, 0xff')
    a.emit(f'buffer_store_dword v20, v21, s[{SP}:{SP+3}], s4 offen')
    a.emit('s_mov_b64 exec, -1')
    a.label(f'L_ltsskip_{tag}')

def tile_map(a, LM, endlab, pair=False):
    if endlab:
        a.emit('s_cmp_ge_u32 s2, 256')
        a.emit(f's_cbranch_scc1 {endlab}')
        a.emit('v_lshrrev_b32 v2, 6, v0')
        a.emit('v_and_b32 v1, 63, v0')
        a.emit(f'v_readfirstlane_b32 s{S_WV}, v2')
    a.emit('s_and_b32 s3, s2, 7')
    if endlab: a.emit(f's_lshr_b32 s{S_CU}, s2, 3')
    if LM == 2 and ENV('MAP2', '0') == '1':
        a.emit('s_lshl_b32 s5, s3, 1')
        a.emit('s_lshr_b32 s6, s3, 1')
        a.emit('s_and_b32 s5, s5, 2')
        a.emit('s_and_b32 s6, s6, 1')
        a.emit('s_or_b32 s5, s5, s6')
    else: a.emit(f's_and_b32 s5, s3, {(1 << (4 - LM)) - 1}')
    a.emit(f's_lshl_b32 s5, s5, {LM}')
    a.emit(f's_and_b32 s6, s{S_CU}, {(1 << LM) - 1}')
    a.emit(f's_add_u32 s{S_MT}, s5, s6')
    a.emit(f's_lshr_b32 s5, s3, {4 - LM}')
    if pair:
        a.emit(f's_lshr_b32 s{S_HD}, s{S_CU}, {LM}')
        a.emit(f's_lshl1_add_u32 s{S_NT}, s{S_HD}, s5')
        return
    a.emit(f's_lshl_b32 s5, s5, {5 - LM}')
    a.emit(f's_lshr_b32 s6, s{S_CU}, {LM}')
    a.emit(f's_add_u32 s{S_NT}, s5, s6')
    if 'smallm' in DBG: a.emit(f's_and_b32 s{S_MT}, s{S_MT}, 1')
    if 'smalln' in DBG: a.emit(f's_and_b32 s{S_NT}, s{S_NT}, 1')

def interleave(a, main, side, lead=1, per=1):
    si = 0
    for i, m in enumerate(main):
        a.emit(m)
        if i + 1 >= lead:
            for _ in range(per):
                if si < len(side): a.emit(side[si]); si += 1
    while si < len(side): a.emit(side[si]); si += 1

PO0, POM = [int(x) for x in ENV('PO', '1,3').split(',')]
KSH = int(ENV('KSH', '0')); LAT = int(ENV('LAT', '0'))
def own_pos(a, sd):
    a.emit(f's_and_b32 s{sd}, s{S_NT}, {POM}')
    a.emit(f's_add_u32 s{sd}, s{sd}, {PO0}')

class Loader:
    VXD = 4; VWD = 8; VXH = 28
    def __init__(self, a, tag, K, lda2, ldw2, panels, colbase, S, STAGE, halo=None, delta=0, rot=None, xblk=False, half=0):
        self.a = a; self.tag = tag; self.K = K; self.lda2 = lda2; self.ldw2 = ldw2; self.panels = panels
        self.colbase = colbase; self.S = S; self.STAGE = STAGE; self.halo = halo; self.delta = delta; self.xblk = xblk; self.rot = rot if rot is not None and rot >= 0 else None
        self.NSTEP = K // 64; self.half = half; self.ot = 0; self.skip = False
        self.per = 4 + 2 * len(panels) + (1 if halo is not None else 0)
    def setup(self):
        a = self.a
        if ENV('PRIO', '0') != '0': a.emit(f"s_setprio {ENV('PRIO')}")
        a.emit(f's_add_u32 s8, s{S_WV}, s{S_NT}')
        a.emit('s_and_b32 s8, s8, 3')
        a.emit(f's_add_u32 s9, s{S_WV}, s{S_MT}')
        a.emit('s_and_b32 s9, s9, 3')
        a.emit(f's_lshl_b32 s{S_XD}, s8, 12')
        a.emit(f's_lshl_b32 s{S_WD}, s9, 11')
        a.emit(f's_add_u32 s{S_WD}, s{S_WD}, 16384')
        a.emit(f's_lshl_b32 s11, s{S_MT}, 7')
        a.emit('v_and_b32 v10, 7, v1')
        if self.xblk: self.xoff_blk(self.lda2)
        else: self.xoff_rows(self.lda2)
        ns = self.tag in NS and not NSR; nr = self.tag in NS and NSR
        wrow(a, 9, ns)
        a.emit(f'v_mul_u32_u24 v3, {self.ldw2}, v3')
        a.emit('v_lshrrev_b32 v2, 3, v1')
        a.emit(f'v_and_b32 v2, {6 if nr else 2}, v2')
        a.emit('v_xor_b32 v2, v2, v10')
        a.emit(f's_mul_i32 s10, s{S_NT}, {self.colbase}')
        if 'noslow' in DBG and self.tag == 'attn':
            a.emit(f's_bitcmp1_b32 0x0808, s{S_NT}')
            a.emit('s_cselect_b32 s3, 512, 0')
            a.emit('s_add_u32 s10, s10, s3')
        if self.colbase & 127: a.emit('s_andn2_b32 s10, s10, 127')
        a.emit('v_add_u32 v3, s10, v3')
        a.emit(f'v_lshl_add_u32 v{self.VWD}, v2, 4, v3')
        if not nr: a.emit('v_xor_b32 v2, 4, v2')
        a.emit(f'v_add_u32 v3, {(4 if ns else 8)*self.ldw2}, v3')
        a.emit(f'v_lshl_add_u32 v{self.VWD+1}, v2, 4, v3')
        if self.half:
            if ns:
                a.emit('v_bfe_u32 v3, v1, 2, 2')
                a.emit('v_lshrrev_b32 v2, 5, v1')
                a.emit('v_lshl_add_u32 v3, v2, 2, v3')
                a.emit('v_and_b32 v2, 16, v1')
                a.emit('s_and_b32 s10, s9, 2')
                a.emit('s_add_u32 s10, s10, s9')
                a.emit('s_lshl_b32 s10, s10, 3')
                a.emit('v_add3_u32 v3, s10, v3, v2')
            else:
                a.emit('v_lshrrev_b32 v3, 2, v1')
                a.emit('s_lshl_b32 s10, s9, 4')
                a.emit('v_add_u32 v3, s10, v3')
            a.emit(f'v_mul_u32_u24 v3, {self.ldw2}, v3')
            if 'w2' in NS: a.emit(f'v_bfe_u32 v2, v1, {4 if nr else 5}, 1')
            else:
                a.emit(f'v_lshrrev_b32 v2, {3 if nr else 4}, v1')
                a.emit('v_and_b32 v2, 2, v2')
            a.emit('v_xor_b32 v2, v2, v1')
            a.emit('v_and_b32 v2, 3, v2')
            a.emit(f's_lshl_b32 s10, s{S_NT}, 6')
            a.emit(f's_add_u32 s10, s10, {self.half}')
            a.emit('v_add_u32 v3, s10, v3')
            a.emit(f'v_lshl_add_u32 v{self.VXH}, v2, 4, v3')
            a.emit(f's_lshl_b32 s{S_HD}, s{S_NT}, 7')
            a.emit(f's_add_u32 s{S_HD}, s{S_HD}, 3072')
        if self.halo is not None:
            a.emit(f's_and_b32 s10, s{S_WV}, 3')
            a.emit(f's_lshl_b32 s{S_HD}, s10, 9')
            a.emit(f's_add_u32 s{S_HD}, s{S_HD}, {self.halo}')
            a.emit('s_lshl_b32 s14, s10, 2')
            a.emit('s_add_u32 s14, s14, s11')
            a.emit('s_sub_u32 s14, s14, 16')
            a.emit('v_lshrrev_b32 v3, 3, v1')
            a.emit('v_add_u32 v3, s14, v3')
            a.emit('v_max_i32 v3, 0, v3')
            a.emit('v_mul_u32_u24 v3, s5, v3')
            a.emit('s_lshl_b32 s14, s10, 1')
            a.emit('v_lshrrev_b32 v2, 4, v1')
            a.emit('v_add_u32 v2, s14, v2')
            a.emit('v_and_b32 v2, 7, v2')
            a.emit('v_xor_b32 v2, v2, v10')
            a.emit(f'v_lshl_add_u32 v{self.VXH}, v2, 4, v3')
            a.emit('s_cmp_eq_u32 s10, 0')
            a.emit('s_cselect_b32 s14, 0xffffff00, -1')
            a.emit('s_mov_b32 s15, 0')
        a.emit(f's_mov_b32 s{S_SLOT}, 0')
        if self.rot is None:
            a.emit(f's_mov_b32 s{S_KX}, 0')
            a.emit(f's_mov_b32 s{S_KW}, 0')
        else:
            if not getattr(self, 'noxg', False): a.emit(f's_add_u32 s{S_XG}, s{S_MT}, s{S_NT}')
            a.emit(f's_mov_b32 s{S_KT}, {0 if EARLY and self.tag == "w2" else -1}')
            ko = int(ENV('KOFF_' + self.tag.upper(), '0'))
            if ko:
                a.emit(f"s_bitcmp1_b32 {ENV('KMSK_' + self.tag.upper(), '0x0808' if self.tag == 'attn' else '0x2aea')}, s{S_NT}")
                a.emit(f's_cselect_b32 s{S_KT}, {ko - 1}, s{S_KT}')
            if self.kord(): self.ktable()
            if self.skip:
                if LAT:
                    a.emit(f's_mul_i32 s3, s{S_MT}, {LAT}')
                    a.emit(f's_add_u32 s3, s3, s{S_NT}')
                    a.emit(f's_and_b32 s{S_T0}, s3, 15')
                elif KSH:
                    a.emit(f's_and_b32 s{S_T0}, s{S_NT}, 3')
                    a.emit(f's_and_b32 s93, s{S_NT}, 12')
                    if KSH == 2:
                        a.emit(f's_and_b32 s3, s{S_MT}, 8')
                        a.emit('s_add_u32 s93, s93, s3')
                else: a.emit(f's_mov_b32 s{S_T0}, s{S_NT}')
                own_pos(a, 92)
                for x in self.knext(): a.emit(x)
            elif not self.ot:
                for x in self.knext(): a.emit(x)
    def kord(self): return ENV('KORD_' + self.tag.upper(), {'w1': '2', 'attn': '0,2'}.get(self.tag, ''))
    def korder(self, g, start):
        D = int(ENV('ROTD_' + self.tag.upper(), ENV('ROTD', '2')))
        o = list(range(16))
        if start < 0:
            dl = {3: [3, -1, -1, -1], 2: [2, -1, -1, 0], 1: [1, -1, 0, 0]}[D]
            return [(t + dl[(t - g) & 3]) & 15 for t in range(16)]
        for t in range(start + g, 16 - D, 4): o[t:t + D + 1] = [t + D] + list(range(t, t + D))
        return o
    def ktable(self, start=None):
        a = self.a
        if start is None: start = int(self.kord().split(',')[0])
        a.emit(f's_add_u32 s3, s{S_MT}, s{S_NT}')
        a.emit('s_and_b32 s3, s3, 3')
        for g in range(4):
            v = sum(k << (4 * i) for i, k in enumerate(self.korder(g, start)))
            if g: a.emit(f's_cmp_eq_u32 s3, {g}')
            for h in range(2):
                a.emit(f's_cselect_b32 s{S_XG+h}, {(v >> (32 * h)) & 0xffffffff:#x}, s{S_XG+h}' if g else f's_mov_b32 s{S_XG+h}, {(v >> (32 * h)) & 0xffffffff:#x}')
    def own(self):
        D = int(ENV('ROTD_' + self.tag.upper(), ENV('ROTD', '2')))
        dl = {3: [3, -1, -1, -1], 2: [2, -1, -1, 0], 1: [1, -1, 0, 0]}[D]
        tbl = sum(((-d) % 16) << (8 * ((r + d) & 3)) for r, d in enumerate(dl))
        assert self.rot == 0 and self.NSTEP == 16
        if self.kord():
            return [f's_lshr_b32 s3, s{S_NT}, 3', f's_and_b32 s{S_KX}, s{S_NT}, 7', f's_lshl1_add_u32 s{S_T0}, s{S_KX}, s3',
                    f's_mul_i32 s{S_KW}, s{S_T0}, {64*self.ldw2}', f's_lshl_b32 s{S_KX}, s{S_T0}, {11 if self.xblk else 7}']
        return [f's_lshr_b32 s3, s{S_NT}, 3', f's_and_b32 s{S_KX}, s{S_NT}, 7', f's_lshl1_add_u32 s{S_KX}, s{S_KX}, s3',
                f's_sub_u32 s3, s{S_KX}, s{S_XG}', 's_lshl_b32 s3, s3, 3', f's_lshr_b32 s3, {tbl:#x}, s3',
                f's_add_u32 s3, s3, s{S_KX}', f's_and_b32 s{S_T0}, s3, 15',
                f's_mul_i32 s{S_KW}, s{S_KX}, {64*self.ldw2}', f's_lshl_b32 s{S_KX}, s{S_KX}, {11 if self.xblk else 7}']
    def xoff_rows(self, ld):
        a = self.a
        a.emit('v_lshrrev_b32 v3, 3, v1')
        a.emit(f's_lshr_b32 s10, s{S_XD}, 7')
        a.emit(f's_lshl_b32 s3, s{S_MT}, 7')
        a.emit('s_add_u32 s10, s10, s3')
        a.emit('v_add_u32 v3, s10, v3')
        xpitch(a, 5)
        a.emit('s_lshl_b32 s6, s5, 3')
        a.emit('v_mul_u32_u24 v3, s5, v3')
        a.emit('v_lshrrev_b32 v2, 4, v1')
        for j in range(4):
            d = self.VXD + j
            if j & 1:
                a.emit(f'v_add_u32 v{d}, 4, v2')
                a.emit(f'v_xor_b32 v{d}, v{d}, v10')
            else:
                a.emit(f'v_xor_b32 v{d}, v2, v10')
            a.emit(f'v_lshl_add_u32 v{d}, v{d}, 4, v3')
            if j < 3: a.emit('v_add_u32 v3, s6, v3')
    def xoff_blk(self, ld):
        a = self.a
        a.emit(f's_lshr_b32 s10, s{S_XD}, 11')
        a.emit(f's_lshl_b32 s3, s{S_MT}, 3')
        a.emit('s_add_u32 s10, s10, s3')
        a.emit(f's_mul_i32 s10, s10, {16*ld}')
        a.emit(f'v_lshl_add_u32 v{self.VXD}, v1, 4, s10')
        a.emit(f'v_add_u32 v{self.VXD+1}, {16*ld}, v{self.VXD}')
    def xdma(self, base, imm, sd, soff, blk):
        o = []
        for j in range(4):
            if blk:
                if not j & 1: o += [f's_add_u32 m0, s{base}, {imm + j*1024}', 's_nop 0']
                o.append(f'buffer_load_dwordx4 v{self.VXD+(j>>1)}, s[{sd}:{sd+3}], s{soff} offen offset:{(j&1)*1024} lds')
            else:
                o += [f's_add_u32 m0, s{base}, {imm + j*1024}', 's_nop 0', f'buffer_load_dwordx4 v{self.VXD+j}, s[{sd}:{sd+3}], s{soff} offen lds']
        return o
    def knext(self):
        if self.rot is None:
            return [f's_add_u32 s{S_KX}, s{S_KX}, {2048 if self.xblk else 128}', f's_add_u32 s{S_KW}, s{S_KW}, {64*self.ldw2}']
        if self.kord():
            tb = f's[{S_XG}:{S_XG+1}]'
            o = [f's_and_b32 s{S_KX}, s{S_XG}, 15']
            if self.ot or self.skip: o += [f's_cmp_eq_u32 s{S_KX}, s{S_T0}', f's_cselect_b32 s{S_KW}, 4, 0', f's_lshr_b64 {tb}, {tb}, s{S_KW}', f's_and_b32 s{S_KX}, s{S_XG}, 15']
            if self.skip and not self.ot: o += ['s_sub_u32 s92, s92, 1', f's_cselect_b32 s{S_KX}, s{S_T0}, s{S_KX}', f's_cselect_b32 s{S_KW}, 0, 4'] + ([f's_add_u32 s{S_KX}, s{S_KX}, s93', f's_and_b32 s{S_KX}, s{S_KX}, 15'] if KSH else [])
            return o + [f's_lshr_b64 {tb}, {tb}, ' + (f's{S_KW}' if self.skip and not self.ot else '4'), f's_mul_i32 s{S_KW}, s{S_KX}, {64*self.ldw2}', f's_lshl_b32 s{S_KX}, s{S_KX}, {11 if self.xblk else 7}']
        lc = self.rot; C = 1 << lc; N = self.NSTEP
        o = [f's_add_u32 s{S_KT}, s{S_KT}, 1']
        if self.ot: o += [f's_cmp_eq_u32 s{S_KT}, s{S_T0}', f's_addc_u32 s{S_KT}, s{S_KT}, 0']
        D = int(ENV('ROTD_' + self.tag.upper(), ENV('ROTD', '2')))
        dl = {3: [3, -1, -1, -1], 2: [2, -1, -1, 0], 1: [1, -1, 0, 0]}[D]
        tbl = sum((((d * C) % N) << (8 * i)) for i, d in enumerate(dl))
        if lc: o += [f's_lshr_b32 s{S_KX}, s{S_KT}, {lc}', f's_sub_u32 s{S_KX}, s{S_KX}, s{S_XG}']
        else: o += [f's_sub_u32 s{S_KX}, s{S_KT}, s{S_XG}']
        o += [f's_lshl_b32 s{S_KX}, s{S_KX}, 3',
              f's_lshr_b32 s{S_KX}, {tbl:#x}, s{S_KX}',
              f's_and_b32 s{S_KX}, s{S_KX}, 255',
              f's_add_u32 s{S_KX}, s{S_KX}, s{S_KT}']
        if N & (N - 1) == 0: o += [f's_and_b32 s{S_KX}, s{S_KX}, {N - 1}']
        else: o += [f's_sub_u32 s{S_KW}, s{S_KX}, {N}', f's_cselect_b32 s{S_KX}, s{S_KX}, s{S_KW}']
        o += [f's_mul_i32 s{S_KW}, s{S_KX}, {64*self.ldw2}', f's_lshl_b32 s{S_KX}, s{S_KX}, {11 if self.xblk else 7}']
        return o
    def panels_of(self, t): return self.panels
    def issue_x(self, bx, bh, imm, kx):
        o = self.xdma(bx, imm, SX, kx, self.xblk)
        if self.halo is not None:
            o.append(f's_add_u32 m0, s{S_HD}, {bh}')
            o.append('s_mov_b64 exec, s[14:15]')
            o.append(f'buffer_load_dwordx4 v{self.VXH}, s[{SX}:{SX+3}], s{kx} offen lds')
            o.append('s_mov_b64 exec, -1')
        return o
    def issue_w(self, t, bw, imm):
        o = []
        for pn, goff in enumerate(self.panels_of(t)):
            for i in range(2):
                o.append(f's_add_u32 m0, s{bw}, {imm+pn*8192+i*1024}')
                o.append((goff if str(goff).startswith('s_') else f's_add_u32 s4, s{S_KW}, {goff}') if i == 0 else 's_nop 0')
                o.append(f'buffer_load_dwordx4 v{self.VWD+i}, s[{SW}:{SW+3}], s4 offen lds')
        if self.half:
            o += [f's_add_u32 m0, s{bw}, {imm+len(self.panels)*8192}', 's_nop 0',
                  f'buffer_load_dwordx4 v{self.VXH}, s[{SW}:{SW+3}], s{S_KW} offen lds']
        return o
    def issue(self, t):
        o = [f's_add_u32 s3, s{S_SLOT}, s{S_XD}']
        o += self.issue_x(3, f's{S_SLOT}', 0, S_KX)
        o.append(f's_add_u32 s3, s{S_SLOT}, s{S_WD}')
        o += self.issue_w(t, 3, 0)
        o += self.knext()
        o.append(f's_add_u32 s{S_SLOT}, s{S_SLOT}, {self.STAGE}')
        o.append(f's_cmp_eq_u32 s{S_SLOT}, {self.S*self.STAGE}')
        o.append(f's_cselect_b32 s{S_SLOT}, 0, s{S_SLOT}')
        return o
    def run(self, variant='', tail_issue=None, ntail_vm=0, final=None, post=(), dep=None, tail_late=0, start=None, extra=None, exfirst=False):
        a = self.a; N = self.NSTEP; d = self.S - 1
        tag = self.tag + variant
        nx = 4 + (1 if self.halo is not None else 0)
        nw = lambda t: 2 * len(self.panels_of(t)) + (1 if self.half else 0)
        seq = []
        early = EARLY and self.tag == 'w2'
        pchk = EARLY - 3 - d - 1; piss = pchk - d + 1 - int(ENV('PEARLY', '0'))
        def em(o):
            for x in o:
                if 'nodma' in DBG and x.endswith(' lds'): continue
                a.emit(x)
        def after(t): return len(seq) - 1 - max(i for i, x in enumerate(seq) if x == t)
        def wait(n):
            assert n <= 63, n
            a.emit(f's_waitcnt vmcnt({n})')
        if dep is None:
            for t in range(2): em(self.issue(t)); seq += [t] * (nx + nw(t))
            if start: seq += ['S'] * start()
            wait(after(0))
            a.emit('s_barrier')
            for t in range(2, d): em(self.issue(t)); seq += [t] * (nx + nw(t))
        else:
            prev = {'attn': 'w2', 'wo': 'attn', 'w1': 'wo', 'w2': 'w1'}[self.tag]
            assert 'attn' not in EBAR
            ot = self.ot
            if ot: em(self.own() + [f's_mov_b32 s88, s{S_KX}'] + self.issue_w(0, S_WD, 0) + self.knext()); seq.extend([0] * nw(0))
            dep_pre(a, self.tag)
            if prev in EBAR: a.emit('s_barrier')
            xw = 1 if self.tag in ENV('XW', 'x').split(',') and not hasattr(self, 'P1') else 0
            def prew(ts):
                for t in ts:
                    a.emit(f's_mov_b32 s{88+t}, s{S_KX}')
                    em(self.issue_w(t, S_WD, t * self.STAGE) + self.knext()); seq.extend([t] * nw(t))
            late = int(ENV('LATE_' + self.tag.upper(), '2'))
            if ot: xw = 1
            prew(range(ot, d + xw - late))
            self.npre = len(seq)
            a.emit(f's_mov_b32 s{S_SLOT}, {0 if xw else d * self.STAGE}')
            wag = int(ENV('WAG_' + self.tag.upper(), '0'))
            dep((lambda: prew(range(d + xw - late, d + xw - wag))) if late else None)
            if ot and self.halo is not None: em(self.issue_x(S_XD, self.hx, 0, 88)[-4:]); seq.append(0)
            for t in range(ot, d + xw):
                if t >= d + xw - wag: prew([t])
                em(self.issue_x(S_XD, t * self.STAGE, t * self.STAGE, 88 + t)); seq += [t] * nx
            if ot and ENV('OPRIO'): a.emit('s_setprio 0')
            wait(after(ot))
            if self.tag == 'w2': lstamp(a, 2)
            a.emit('s_barrier')
            if early: late_flag(a)
        ev = [None] * self.ot
        for i in range(self.ot, N):
            t = i + d
            if t in seq: t = N + 9
            if early and i == piss: seq += ['P']
            if t < N: seq += [t] * (nx + nw(t)) + ['Q'] * sum(x.startswith('buffer_') for x in post)
            ex = extra(i) if extra else []
            tl = tail_issue is not None and t == N - 1 + tail_late
            if exfirst: seq += ['E'] * sum(x.startswith('buffer_') for x in ex)
            if tl: seq += ['T'] * ntail_vm
            if not exfirst: seq += ['E'] * sum(x.startswith('buffer_') for x in ex)
            ev.append(((nw(t) if t < N else -1, after(i + 1) if i + 1 < N else -1, tl, early and i == piss, early and i == pchk, tuple(ex)), t))
        i = self.ot; nl = 0
        while i < N:
            j = i
            while j + 1 < N and ev[j + 1][0] == ev[i][0]: j += 1
            n = j - i + 1
            (k, w, tl, pi, pc, ex), t = ev[i]
            if n >= 3:
                nl += 1
                a.emit(f's_mov_b32 s{S_CNT}, {n}')
                a.label(f'L_{tag}_ld{nl}')
            else: j = i
            if pi: a.emit(f'buffer_load_dword v13, v12, s[{SO}:{SO+3}], s86 offen sc1')
            if t < N:
                em(self.issue(t)); em(post)
            if exfirst: em(ex)
            if tl and not ('notail' in DBG and self.tag == 'w1'):
                if ENV('FPRIO'): a.emit('s_setprio 3')
                tail_issue()
                if ENV('FPRIO'): a.emit('s_setprio 0')
            if not exfirst: em(ex)
            if w >= 0: wait(w)
            elif final and 'nofinal' not in DBG:
                if ENV('FPRIO'): a.emit('s_setprio 3')
                final()
                if ENV('FPRIO'): a.emit('s_setprio 0')
            if pc: late_check(a)
            a.emit('s_barrier')
            if n >= 3:
                a.emit(f's_sub_u32 s{S_CNT}, s{S_CNT}, 1')
                a.emit(f's_cmp_lg_u32 s{S_CNT}, 0')
                a.emit(f's_cbranch_scc1 L_{tag}_ld{nl}')
            i = j + 1

XD = ONE and ENV('SPLIT', '0') == '0' and ENV('XD', '1') == '1'
VW = MEGA and ENV('SPLIT', '0') == '0' and ENV('VW', '0') == '1'
NV1 = int(ENV('NV1', '16')); NV2 = int(ENV('NV2', '12')); NVO = int(ENV('NVO', '11'))
S_TB = 85
def rot_table(a, sd, smt, snt, tag):
    D = int(ENV('ROTD_' + tag.upper(), ENV('ROTD', '2')))
    dl = {3: [3, -1, -1, -1], 2: [2, -1, -1, 0], 1: [1, -1, 0, 0], 0: [0, 0, 0, 0]}[D]
    tbl = sum((d & 255) << (8 * i) for i, d in enumerate(dl))
    a.emit(f's_add_u32 s3, s{smt}, s{snt}')
    a.emit('s_lshl_b32 s3, s3, 3')
    a.emit(f's_lshl_b32 s{sd}, {tbl:#x}, s3')
    a.emit('s_sub_u32 s3, 0, s3')
    a.emit(f's_lshr_b32 s3, {tbl:#x}, s3')
    a.emit(f's_or_b32 s{sd}, s{sd}, s3')

def kpos(N, t, sd, tb=S_TB, halves=True, q=None):
    H, p, add = (28, t >> 1, 28 * (t & 1)) if N == 56 and halves else (N, t, 0)
    o = [f's_bfe_i32 s{sd}, s{tb}, {0x80000 + 8 * (p & 3):#x}', f's_add_i32 s{sd}, s{sd}, {p + add}']
    if p == 0: o += [f's_cmp_lt_i32 s{sd}, {add}', f's_cselect_b32 s{sd}, {H - 1 + add}, s{sd}']
    if p + 3 >= H: o += [f's_sub_u32 s3, s{sd}, {H}', f's_cmp_ge_i32 s{sd}, {H + add}', f's_cselect_b32 s{sd}, s3, s{sd}']
    if q is not None:
        if N == 16 or 1 <= t <= 12: o += [f's_add_u32 s{sd}, s{sd}, s{q}', f's_and_b32 s{sd}, s{sd}, 15']
        elif t <= 16 or t + 3 >= N: o += [f's_add_u32 s3, s{sd}, s{q}', 's_and_b32 s3, s3, 15', f's_cmp_lt_u32 s{sd}, 16', f's_cselect_b32 s{sd}, s3, s{sd}']
    return o

S_Q = 86
MROT = ENV('MROT', '1') == '1'
def rot_q(a, sd, smt, sh=0):
    a.emit(f's_and_b32 s{sd}, s{smt}, {3 if MROT else 0}')
    a.emit(f's_lshl_b32 s{sd}, s{sd}, {2 + sh}')

TSCH = {'wo': [int(c) for c in ENV('TSO', '000')], 'w2': [int(c) for c in ENV('TS2', '000')]}
def tail_parks(nxt, sw, mk=None, sch=None):
    if not XD: return None
    sch = sch or TSCH[nxt]; N = 16 if nxt == 'wo' else 56
    def extra(i):
        if i < 13 or not sum(sch): return []
        a = Asm()
        if i == 13:
            if mk: mk(a)
            a.emit('s_and_b32 s5, s2, 3')
            a.emit('s_lshl_b32 s5, s5, 2')
            a.emit(f's_and_b32 s6, s{S_CU}, 3')
            a.emit('s_add_u32 s5, s5, s6')
            a.emit('s_and_b32 s6, s2, 4')
            a.emit('s_lshl_b32 s6, s6, 1')
            a.emit(f's_lshr_b32 s7, s{S_CU}, 2')
            a.emit('s_add_u32 s6, s6, s7')
            rot_table(a, S_TB, 5, 6, nxt)
            rot_q(a, S_Q, 5)
            a.emit(f's_add_u32 s5, s5, s{S_WV}')
            a.emit('s_and_b32 s5, s5, 3')
            wvoff(a, 16, 5, 6, 2048)
        o = [l.strip() for l in a.lines]
        for t in range(sum(sch[:i - 13]), sum(sch[:i - 12])):
            o += kpos(N, t, 4, S_TB, False, S_Q) + ['s_lshl_b32 s4, s4, 17']
            o += [f'buffer_load_dwordx4 v[{128+8*t+4*j}:{131+8*t+4*j}], v{16+j}, s[{sw}:{sw+3}], s4 offen' for j in range(2)]
        return o
    return extra

def vreg(tag, t):
    if tag == 'wo': return (128 + 8 * (t - 5), False) if 5 <= t < 5 + NVO else None
    if t & 1: return None
    p = t >> 1
    if p < NV1: return (128 + 8 * p, True)
    if p < NV1 + NV2: return (32 + 8 * (p - NV1), False)
    return None

def wrow(a, sqw, ns):
    if ns:
        a.emit('v_bfe_u32 v3, v1, 3, 2')
        a.emit('v_lshrrev_b32 v2, 5, v1')
        a.emit('v_lshl_add_u32 v3, v2, 4, v3')
        a.emit(f's_and_b32 s10, s{sqw}, 2')
        a.emit(f's_add_u32 s10, s10, s{sqw}')
        a.emit('v_lshl_add_u32 v3, s10, 3, v3')
    else:
        a.emit('v_lshrrev_b32 v3, 3, v1')
        a.emit(f's_lshl_b32 s10, s{sqw}, 4')
        a.emit('v_add_u32 v3, s10, v3')

def wvoff(a, vd, sqw, snt, ldw2, ns=False):
    nr = ns and NSR; ns = ns and not NSR
    wrow(a, sqw, ns)
    a.emit(f'v_mul_u32_u24 v3, {ldw2}, v3')
    a.emit('v_lshrrev_b32 v2, 3, v1')
    a.emit(f'v_and_b32 v2, {6 if nr else 2}, v2')
    a.emit('v_xor_b32 v2, v2, v10')
    a.emit(f's_lshl_b32 s10, s{snt}, 7')
    a.emit('v_add_u32 v3, s10, v3')
    a.emit(f'v_lshl_add_u32 v{vd}, v2, 4, v3')
    if not nr: a.emit('v_xor_b32 v2, 4, v2')
    a.emit(f'v_add_u32 v3, {(4 if ns else 8)*ldw2}, v3')
    a.emit(f'v_lshl_add_u32 v{vd+1}, v2, 4, v3')

def park(N, t, r, vo, sw):
    return kpos(N, t, 4) + ['s_lshl_b32 s4, s4, 17'] + [f'buffer_load_dwordx4 v[{r+4*i}:{r+4*i+3}], v{vo+i}, s[{sw}:{sw+3}], s4 offen' for i in range(2)]

class ULoader(Loader):
    def run(self, variant='', tail_issue=None, ntail_vm=0, final=None, post=(), dep=None):
        a = self.a; N = self.NSTEP; d = self.S - 1; tag = self.tag
        seq = []
        def em(o):
            for x in o:
                if 'nodma' in DBG and x.endswith(' lds'): continue
                a.emit(x)
        def after(t): return len(seq) - 1 - max(i for i, x in enumerate(seq) if x == t)
        def wait(n, lg=False):
            assert n <= 63, n
            a.emit(f's_waitcnt vmcnt({n})' + (' lgkmcnt(0)' if lg else ''))
        def iw(t):
            sl = (t % self.S) * self.STAGE; v = vreg(tag, t)
            if v:
                em([f'v_add_u32 v11, {sl}, v14'] + [f'ds_write_b128 v11, v[{v[0]+4*i}:{v[0]+4*i+3}] offset:{1024*i}' for i in range(2)])
            else:
                em([f's_lshl_b32 s{S_KW}, s{S_KX}, 17'] + [x for x in self.issue_w(t, S_WD, sl)])
                seq.extend([t] * 2)
        def ix(t, k):
            em(self.issue_x(S_XD, None, (t % self.S) * self.STAGE, k)); seq.extend([t] * 4)
        rot_table(a, S_TB, S_MT, S_NT, tag)
        a.emit(f'v_lshl_add_u32 v14, v1, 4, s{S_WD}')
        dep_pre(a, tag)
        for t in range(d):
            em(kpos(N, t, S_KX)); iw(t)
            a.emit(f's_lshl_b32 s{88+t}, s{S_KX}, 11')
        for t in range(d, N):
            v = vreg(tag, t)
            if v and not v[1]:
                em(park(N, t, v[0], self.VWD, SW)); seq.extend(['V'] * 2)
        self.npre = len(seq)
        dep()
        for t in range(d): ix(t, 88 + t)
        wait(after(0), True)
        if tag == 'w2': lstamp(a, 2)
        a.emit('s_barrier')
        for i in range(N):
            t = i + d
            if i % 4 == 0 and post and t < N:
                a.emit('s_waitcnt lgkmcnt(0)')
                em(post)
            if t < N:
                em(kpos(N, t, S_KX)); iw(t)
                a.emit(f's_lshl_b32 s{S_KX}, s{S_KX}, 11')
                ix(t, S_KX)
            if t == N - 1: tail_issue(); seq.extend(['T'] * ntail_vm)
            if i + 1 < N: wait(after(i + 1), not post or t == N)
            else: final()
            a.emit('s_barrier')

EBAR = ENV('EBAR', 'x').split(',')
S_FL = 87
def dep_pre(a, kind, part=None, n=0):
    if ONE and kind in ('wo', 'w1'):
        ld = f'buffer_load_dword v12, v17, s[{SC}:{SC+3}], 0 offen sc1' if kind == 'wo' else f'buffer_load_dwordx4 v[12:15], v17, s[{SO}:{SO+3}], s3 offen sc1'
        if part == 1: a.emit(f's_waitcnt vmcnt({n})')
        a.emit(f's_add_u32 s3, s{S_LAYER}, s{S_WV}')
        a.emit('s_cmp_lg_u32 s3, 4')
        a.emit(f's_cbranch_scc1 L_{kind}_chk{part}')
        def cmp():
            if kind == 'wo': a.emit('v_cmp_ne_u32 vcc, 0x01010101, v12')
            else:
                a.emit('v_and_b32 v12, v12, v13')
                a.emit('v_and_b32 v14, v14, v15')
                a.emit('v_and_b32 v12, v12, v14')
                a.emit('v_cmp_ne_u32 vcc, 1, v12')
        if part == 1:
            cmp()
            a.emit(f's_cbranch_vccz L_{kind}_chk{part}')
        if True:
            if kind == 'wo': a.emit(f's_load_dwordx2 s[{SC}:{SC+1}], s[0:1], 72')
            else: srd(a, SO, 'ws0', WS_FL, FLS)
            if kind == 'wo':
                a.emit('s_waitcnt lgkmcnt(0)')
                a.emit(f's_and_b32 s{SC+1}, s{SC+1}, 0xffff')
                a.emit(f's_mov_b32 s{SC+2}, 256')
                a.emit(f's_mov_b32 s{SC+3}, 0x00020000')
                a.emit('v_lshlrev_b32 v17, 2, v1')
            else:
                a.emit('v_lshrrev_b32 v2, 2, v1')
                a.emit('v_and_b32 v3, 3, v1')
                a.emit('v_lshlrev_b32 v2, 11, v2')
                a.emit('v_lshl_add_u32 v17, v3, 4, v2')
                a.emit(f's_and_b32 s3, s{S_NT}, {REP - 1}')
                a.emit('s_lshl_b32 s3, s3, 7')
        if part == 0: a.emit(ld)
        else:
            a.emit(f's_mov_b32 s{S_CNT}, 0x100000')
            a.label(f'L_{kind}_chkl')
            a.emit(ld)
            a.emit(f's_sub_u32 s{S_CNT}, s{S_CNT}, 1')
            a.emit(f's_cbranch_scc1 L_{kind}_chk{part}')
            a.emit('s_waitcnt vmcnt(0)')
            cmp()
            a.emit(f's_cbranch_vccnz L_{kind}_chkl')
        a.label(f'L_{kind}_chk{part}')

def dep_wait(a, kind, halo=False, skip_first=False, first=None, preg=None, postf=None, pref=None, defer=False, obar=False):
    if skip_first and not ONE:
        a.emit(f's_cmp_eq_u32 s{S_TSI}, 1')
        a.emit(f's_cbranch_scc1 L_{kind}_dep')
    srd(a, SO, 'ws0', WS_FL, FLS)
    if ONE and kind == 'wo' and first:
        a.emit(f's_cmp_lg_u32 s{S_LAYER}, 0')
        a.emit(f's_cbranch_scc1 L_{kind}_nofirst')
        first()
        a.label(f'L_{kind}_nofirst')
    a.emit(f's_lshl4_add_u32 s3, s{S_TSI}, s{S_MT}')
    a.emit(f's_and_b32 s4, s{S_NT}, {REP - 1}')
    a.emit('s_lshl4_add_u32 s3, s3, s4')
    a.emit('s_lshl_b32 s3, s3, 7')
    a.emit('s_sub_u32 s3, s3, 32768')
    a.emit('v_lshlrev_b32 v11, 7, v1')
    if halo:
        a.emit(f's_cmp_eq_u32 s{S_MT}, 0')
        a.emit('s_cselect_b32 s4, 15, 31')
        a.emit('v_and_b32 v2, 16, v1')
        a.emit('v_lshl_add_u32 v11, v2, 2, v11')
        a.emit('v_and_b32 v2, s4, v1')
    else: a.emit('v_and_b32 v2, 15, v1')
    a.emit('v_lshlrev_b32 v2, 2, v2')
    a.emit('v_mov_b32 v3, 1')
    a.emit(f's_mov_b32 s{S_CNT}, 0x100000')
    if kind == LSTK == 'wo': lstamp(a, 2)
    if pref: pref()
    a.emit(f's_cmp_lg_u32 s{S_WV}, 4')
    a.emit('s_barrier')
    if kind == 'w2': lstamp(a, 0, True)
    if kind == LSTK == 'w1': lstamp(a, 0)
    a.emit(f's_cbranch_scc1 L_{kind}_{"nofl" if postf else "dep"}')
    a.emit(f's_mov_b32 exec_lo, {((1 << REP) - 1) * (0x10001 if halo else 1):#x}')
    a.emit('s_mov_b32 exec_hi, 0')
    a.emit(f'buffer_store_dword v3, v11, s[{SO}:{SO+3}], s{S_FL} offen sc1')
    a.emit('s_mov_b64 exec, -1')
    PSP = int(ENV('PSP', '0'))
    if defer:
        a.label(f'L_{kind}_nofl')
        a.emit(f's_mov_b32 s{S_Q}, s3')
        postf()
        return
    if postf and PSP:
        a.label(f'L_{kind}_nofl')
        a.emit('s_mov_b32 s5, s3')
        i0 = len(a.lines); postf(); ls = a.lines[i0:]; del a.lines[i0:]
        dma = [i for i, l in enumerate(ls) if 'buffer_load' in l]
        poll = lambda k: f'buffer_load_dword v{24+k}, v2, s[{SO}:{SO+3}], s5 offen sc1'
        for i, l in enumerate(ls):
            a.lines.append(l)
            for k in range(3):
                if dma and i == dma[-1 - PSP * (3 - k)]: a.emit(poll(k))
        a.emit(f's_cmp_lg_u32 s{S_WV}, 4')
        a.emit(f's_cbranch_scc1 L_{kind}_dep')
        def chk(k, n, last=False):
            a.emit(poll((k + 3) & 3))
            a.emit(f's_waitcnt vmcnt({n})')
            a.emit(f'v_cmp_ne_u32 vcc, 1, v{24+k}')
            a.emit(f's_cbranch_vccnz L_{kind}_poll' if last else f's_cbranch_vccz L_{kind}_dep')
        for k in range(3): chk(k, 3 + PSP * (3 - k))
        a.label(f'L_{kind}_poll')
        a.emit(f's_sub_u32 s{S_CNT}, s{S_CNT}, 1')
        a.emit(f's_cbranch_scc1 L_{kind}_dep')
        for k in (3, 0, 1, 2): chk(k, 3, k == 2)
    else:
        if postf:
            if obar:
                a.emit(f's_waitcnt vmcnt({obar})')
                a.emit(f's_branch L_{kind}_obar')
            a.label(f'L_{kind}_nofl')
            if obar:
                a.emit(f's_waitcnt vmcnt({obar - 1})')
                a.label(f'L_{kind}_obar')
                a.emit('s_barrier')
                if ENV('OPRIO'): a.emit(f"s_setprio {ENV('OPRIO')}")
            a.emit('s_mov_b32 s5, s3')
            postf()
            a.emit('s_mov_b32 s3, s5')
            a.emit(f"s_cmp_lg_u32 s{S_WV}, {ENV('PW_' + kind.upper(), '4')}")
            a.emit(f's_cbranch_scc1 L_{kind}_dep')
        if kind == LSTK == 'w1': lstamp(a, 1)
        a.label(f'L_{kind}_poll')
        a.emit(f'buffer_load_dword v3, v2, s[{SO}:{SO+3}], s3 offen sc1')
        a.emit(f's_sub_u32 s{S_CNT}, s{S_CNT}, 1')
        a.emit(f's_cbranch_scc1 L_{kind}_dep')
        a.emit('s_waitcnt vmcnt(0)')
        a.emit('v_cmp_ne_u32 vcc, 1, v3')
        a.emit(f's_cbranch_vccnz L_{kind}_poll')
    a.label(f'L_{kind}_dep')
    if kind == 'w2': lstamp(a, 1, True)
    if kind == LSTK == 'wo': lstamp(a, 3)
    if kind == LSTK == 'w1':
        lstamp(a, 2)
        if TS: a.emit(f's_mov_b32 s50, s{S_CNT}')
    if preg: preg()
    if preg and kind == 'w2': lstamp(a, 2, True)
    a.emit('s_barrier')

def ef_poll(a, lab, v, prio=False):
    a.emit(f"s_cmp_lg_u32 s{S_WV}, {ENV('PW_W2', '4')}")
    a.emit(f's_cbranch_scc1 {lab}_ok')
    if prio: a.emit('s_setprio 3')
    a.emit(f's_mov_b32 s{S_CNT}, 0x100000')
    a.label(lab)
    a.emit(f'buffer_load_dword v3, v{v}, s[{SO}:{SO+3}], s{S_Q} offen sc1')
    a.emit(f's_sub_u32 s{S_CNT}, s{S_CNT}, 1')
    a.emit(f's_cbranch_scc1 {lab}_ok')
    a.emit('s_waitcnt vmcnt(0)')
    a.emit('v_cmp_ne_u32 vcc, 1, v3')
    a.emit(f's_cbranch_vccnz {lab}')
    a.label(f'{lab}_ok')
    if prio: a.emit('s_setprio 0')

def ef_flag(a, lab, off):
    a.emit(f's_cmp_lg_u32 s{S_WV}, 4')
    a.emit('s_barrier')
    a.emit(f's_cbranch_scc1 {lab}')
    a.emit(f's_mov_b64 exec, {(1 << REP) - 1:#x}')
    a.emit(f'buffer_store_dword v13, v11, s[{SO}:{SO+3}], s{S_FL} offen offset:{off} sc1')
    a.emit('s_mov_b64 exec, -1')
    a.label(lab)

def dep_ef(a, poste, preh, preg):
    srd(a, SO, 'ws0', WS_FL, FLS)
    a.emit(f's_lshl4_add_u32 s3, s{S_TSI}, s{S_MT}')
    a.emit(f's_and_b32 s4, s{S_NT}, {REP - 1}')
    a.emit('s_lshl4_add_u32 s3, s3, s4')
    a.emit('s_lshl_b32 s3, s3, 7')
    a.emit(f's_sub_u32 s{S_Q}, s3, 32768')
    a.emit('v_lshlrev_b32 v11, 7, v1')
    a.emit('v_and_b32 v2, 15, v1')
    a.emit('v_lshlrev_b32 v2, 2, v2')
    a.emit(f's_bitcmp1_b32 s{S_NT}, 0')
    a.emit('s_cselect_b32 s4, 96, 64')
    a.emit('v_and_b32 v12, 28, v2')
    a.emit('v_add_u32 v12, s4, v12')
    a.emit('v_mov_b32 v13, 1')
    ef_flag(a, 'L_w2_nofe', 64)
    lstamp(a, 0, True)
    poste()
    if ENV('EFP', '1') == '0': ef_poll(a, 'L_w2_pe', 12)
    preh()
    a.emit('s_barrier')
    if ENV('EFP', '1') != '0': ef_poll(a, 'L_w2_pe', 12, ENV('EFP') == '2')
    lstamp(a, 1, True)
    preg()
    ef_flag(a, 'L_w2_nofl', 0)

def dep_late(a, kind, part, n=0):
    ld = f'buffer_load_dword v3, v2, s[{SO}:{SO+3}], s{S_Q} offen sc1'
    if part == 0:
        a.emit(f's_cmp_eq_u32 s{S_WV}, 4')
        a.emit(f's_cselect_b32 s{SO+2}, s{SO+2}, 0')
        a.emit(ld)
        return
    a.emit(f's_cmp_lg_u32 s{S_WV}, 4')
    a.emit(f's_cbranch_scc1 L_{kind}_dep')
    a.emit(f's_waitcnt vmcnt({n})')
    a.emit('v_cmp_ne_u32 vcc, 1, v3')
    a.emit(f's_cbranch_vccz L_{kind}_dep')
    a.label(f'L_{kind}_poll')
    a.emit(ld)
    a.emit(f's_sub_u32 s{S_CNT}, s{S_CNT}, 1')
    a.emit(f's_cbranch_scc1 L_{kind}_dep')
    a.emit('s_waitcnt vmcnt(0)')
    a.emit('v_cmp_ne_u32 vcc, 1, v3')
    a.emit(f's_cbranch_vccnz L_{kind}_poll')
    a.label(f'L_{kind}_dep')
    if not EF: lstamp(a, 1, True)
    lstamp(a, 2, True)
    if TS and ENV('LST') != 'x': a.emit(f's_mov_b32 s58, s{S_CNT}')

LGO = 163840 - 64
def dep_early(a):
    srd(a, SO, 'ws0', WS_FL, FLS)
    a.emit(f's_lshl_b32 s86, s{S_TSI}, 12')
    a.emit(f's_lshl_b32 s4, s{S_MT}, 8')
    a.emit('s_add_u32 s86, s86, s4')
    a.emit('s_sub_u32 s86, s86, 4096')
    a.emit('v_and_b32 v12, 15, v1')
    a.emit('v_lshlrev_b32 v12, 2, v12')
    a.emit('v_mov_b32 v3, 0')
    a.emit(f'v_mov_b32 v2, {LGO}')
    a.emit('ds_write_b32 v2, v3')
    a.emit('v_mov_b32 v13, 1')
    a.emit(f's_mov_b32 s{S_CNT}, 0x100000')
    a.emit(f's_cmp_lg_u32 s{S_WV}, 4')
    a.emit('s_waitcnt lgkmcnt(0)')
    a.emit('s_barrier')
    a.emit('s_cbranch_scc1 L_w2_go')
    lstamp(a, 0)
    a.emit('s_mov_b64 exec, 1')
    a.emit(f'buffer_store_dword v13, off, s[{SO}:{SO+3}], s{S_FL} sc1')
    a.emit('s_mov_b64 exec, -1')
    a.label('L_w2_poll')
    a.emit(f'buffer_load_dword v3, v12, s[{SO}:{SO+3}], s86 offen sc1')
    a.emit(f's_sub_u32 s{S_CNT}, s{S_CNT}, 1')
    a.emit('s_cbranch_scc1 L_w2_rel')
    a.emit('s_waitcnt vmcnt(0)')
    a.emit('v_cmp_eq_u32 vcc, 0, v3')
    a.emit('s_cbranch_vccnz L_w2_poll')
    a.label('L_w2_rel')
    a.emit('ds_write_b32 v2, v13')
    lstamp(a, 1)
    a.emit('s_branch L_w2_dep')
    a.label('L_w2_go')
    a.emit(f's_mov_b32 s{S_CNT}, 0x2000000')
    a.label('L_w2_gol')
    a.emit('ds_read_b32 v3, v2')
    a.emit(f's_sub_u32 s{S_CNT}, s{S_CNT}, 1')
    a.emit('s_cbranch_scc1 L_w2_dep')
    a.emit('s_waitcnt lgkmcnt(0)')
    a.emit('v_cmp_eq_u32 vcc, 0, v3')
    a.emit('s_cbranch_vccnz L_w2_gol')
    a.label('L_w2_dep')

def late_flag(a):
    a.emit(f's_cmp_lg_u32 s{S_WV}, 4')
    a.emit('s_cbranch_scc1 L_w2_nolate')
    a.emit('v_mov_b32 v3, 2')
    a.emit('s_mov_b64 exec, 1')
    a.emit(f'buffer_store_dword v3, off, s[{SO}:{SO+3}], s{S_FL} sc1')
    a.emit('s_mov_b64 exec, -1')
    a.label('L_w2_nolate')

def late_check(a):
    a.emit(f's_mov_b32 s{S_CNT}, 0x100000')
    a.label('L_w2_lchk')
    a.emit('v_cmp_ne_u32 vcc, 2, v13')
    a.emit('s_cbranch_vccz L_w2_lok')
    a.emit(f'buffer_load_dword v13, v12, s[{SO}:{SO+3}], s86 offen sc1')
    a.emit(f's_sub_u32 s{S_CNT}, s{S_CNT}, 1')
    a.emit('s_waitcnt vmcnt(0)')
    a.emit('s_cbranch_scc0 L_w2_lchk')
    a.label('L_w2_lok')
    if TS: a.emit(f's_mov_b32 s58, s{S_CNT}')
    lstamps_out(a, 'w2')

def gbar(a, kind):
    if not MEGA or (EARLY and kind == 'w2'): return
    if kind == 'attn':
        a.emit(f's_cmp_eq_u32 s{S_LAYER}, 0')
        a.emit('s_cbranch_scc1 L_attn_nog')
    a.emit('s_barrier')
    if kind == 'attn': a.label('L_attn_nog')

def next_phase(a, kind, comp=False):
    nxt = {'attn': 'wo', 'wo': 'w1', 'w1': 'w2', 'w2': 'attn'}[kind]
    if kind == 'w2':
        a.emit(f's_mov_b32 s{S_LAYER}, 1')
        a.emit(f's_add_u32 s12, s22, {WS_X2}')
        a.emit('s_addc_u32 s13, s23, 0')
        a.emit(f's_add_u32 s34, s22, {LSTR}')
        a.emit('s_addc_u32 s35, s23, 0')
    a.emit(f's_add_u32 s{S_TSI}, s{S_TSI}, 1')
    a.emit(f's_branch L_{nxt}_' + ('compute' if comp and NV and nxt == 'w2' else 'body'))

def last_check(a, kind):
    if kind == 'w2' or (kind == 'attn' and not ONE):
        a.emit(f's_cmp_eq_u32 s{S_LAYER}, {0 if kind == "attn" else 1}')
        a.emit(f's_cbranch_scc1 L_{kind}_end')

def compute_end(a, kind):
    if not MEGA:
        stamps_out(a, kind)
        a.emit('s_endpgm')
        return
    if not TS: last_check(a, kind)
    if TE and kind == 'w2': a.lines[-1] = a.lines[-1].replace('L_w2_end', 'L_fin')
    if kind in EBAR: a.emit('s_barrier')
    import pads
    for x in pads.chain({'attn': 'he', 'wo': 'hw'}.get(kind)): a.emit(x)
    if not ((EARLY or NV) and kind == 'w1'):
        a.emit('s_waitcnt lgkmcnt(0)' if EF and kind == 'w1' else 's_waitcnt vmcnt(0) lgkmcnt(0)')
        a.emit('s_barrier')
    if TS:
        stamps_out(a, kind)
        if ENV('DIAG') and kind == 'w2': diag(a)
        last_check(a, kind)
    stamp(a, 0, nowait=True)
    next_phase(a, kind, True)

def fin(a):
    if not TE: return
    a.label('L_fin')
    a.emit('s_waitcnt vmcnt(0)')
    a.emit('s_memrealtime s[92:93]')
    srd(a, SP, 'ws0', WS_TS, 1 << 20)
    a.emit(f's_lshl2_add_u32 s4, s2, s{S_WV}')
    a.emit('s_lshl_b32 s4, s4, 3')
    a.emit('s_waitcnt lgkmcnt(0)')
    a.emit('v_mov_b32 v4, s94')
    a.emit('v_mov_b32 v5, s92')
    a.emit('s_mov_b64 exec, 1')
    a.emit(f'buffer_store_dwordx2 v[4:5], off, s[{SP}:{SP+3}], s4')
    a.emit('s_endpgm')

def diag(a):
    ph, j, K, C = [int(x) for x in ENV('DIAG').split(',')]
    a.emit(f's_lshl1_add_u32 s3, s{S_WV}, s{S_LAYER}')
    a.emit('s_cmp_lg_u32 s3, 1')
    a.emit('s_cbranch_scc1 L_diag_end')
    a.emit('s_waitcnt vmcnt(0)')
    a.emit('v_lshlrev_b32 v1, 6, v0')
    for i in range(4): a.emit(f's_mov_b32 s3, {4096*i}'); a.emit(f'buffer_load_dword v{4+i}, v1, s[{SP}:{SP+3}], s3 offen sc1')
    a.emit('s_lshl_b32 s4, s2, 6')
    a.emit(f's_add_u32 s4, s4, {(ph << 16) + 16 * j}')
    a.emit(f'buffer_load_dword v8, off, s[{SP}:{SP+3}], s4 sc1')
    a.emit('s_waitcnt vmcnt(0)')
    for i in range(4): a.emit(f'v_sub_u32 v{4+i}, v8, v{4+i}')
    a.emit('v_max_i32 v4, v4, v5'); a.emit('v_max_i32 v6, v6, v7'); a.emit('v_max_i32 v4, v4, v6')
    a.emit('s_mov_b32 s5, 0')
    a.emit('s_nop 1')
    for i in range(64):
        a.emit(f'v_readlane_b32 s3, v4, {i}')
        a.emit('s_max_i32 s5, s5, s3')
    if C: a.emit(f's_sub_u32 s5, {C}, s5'); a.emit('s_max_i32 s5, s5, 0')
    a.emit('s_min_u32 s5, s5, 15000')
    a.emit(f's_mul_i32 s5, s5, {K}')
    a.emit('s_memrealtime s[6:7]')
    a.emit('s_mov_b32 s4, 0x40000')
    a.emit('s_waitcnt lgkmcnt(0)')
    a.label('L_diag_l')
    a.emit('s_memrealtime s[8:9]')
    a.emit('s_sub_u32 s4, s4, 1')
    a.emit('s_cbranch_scc1 L_diag_end')
    a.emit('s_waitcnt lgkmcnt(0)')
    a.emit('s_sub_u32 s8, s8, s6')
    a.emit('s_cmp_lt_u32 s8, s5')
    a.emit('s_cbranch_scc1 L_diag_l')
    a.label('L_diag_end')

def loader_end(a, kind, check=True):
    if MEGA:
        if kind == LSTK and not EARLY: lstamps_out(a, kind)
        if check: last_check(a, kind)
        a.emit(f's_lshl_b32 s{S_FL}, s{S_TSI}, 15')
        a.emit(f's_lshl_b32 s4, s{S_MT}, 11')
        a.emit(f's_add_u32 s{S_FL}, s{S_FL}, s4')
        a.emit(f's_lshl_b32 s4, s{S_NT}, 2')
        a.emit(f's_add_u32 s{S_FL}, s{S_FL}, s4')
        next_phase(a, kind)

def pf_weights(a, sd, which, size, ldw2, R, sh, L, LMn, tilebytes, NI, vd, row0=0, qkv=False, pair=False):
    if 'nopf' in DBG: return 0
    srd(a, sd, which, 0, size)
    a.emit(f's_and_b32 s3, s{S_WV}, 3')
    a.emit(f's_mul_i32 s3, s3, {NI * (64 >> sh)}')
    a.emit(f's_mul_i32 s4, s{S_CU}, {R}')
    a.emit('s_add_u32 s3, s3, s4')
    if row0: a.emit(f's_add_u32 s3, s3, {row0}')
    a.emit(f'v_lshrrev_b32 v2, {sh}, v1')
    a.emit('v_add_u32 v2, s3, v2')
    a.emit(f'v_mul_u32_u24 v2, {ldw2}, v2')
    a.emit(f'v_and_b32 v3, {(1 << sh) - 1}, v1')
    if L < (1 << sh): a.emit(f'v_min_u32 v3, {L-1}, v3')
    if qkv:
        a.emit('v_lshrrev_b32 v12, 2, v3')
        a.emit('v_lshl_add_u32 v2, v12, 11, v2')
        a.emit('v_and_b32 v3, 3, v3')
    a.emit(f'v_lshl_add_u32 v2, v3, {8 if pair else 7}, v2')
    a.emit('s_and_b32 s3, s2, 7')
    a.emit(f's_lshr_b32 s3, s3, {4 - LMn}')
    a.emit(f's_mul_i32 s3, s3, {tilebytes if pair else (1 << (5 - LMn)) * tilebytes}')
    for i in range(NI):
        a.emit(f'buffer_load_dword v{vd+i}, v2, s[{sd}:{sd+3}], s3 offen')
        if i + 1 < NI: a.emit(f's_add_u32 s3, s3, {(64 >> sh) * ldw2}')
    return NI

_pfc = [0]
def pf_code(a, start, end, vd, forward=True):
    if 'nopfc' in DBG: return 0
    _pfc[0] += 1
    lab = f'L_pfc{_pfc[0]}'
    a.emit('s_getpc_b64 s[4:5]')
    a.label(lab)
    if forward:
        a.emit(f's_add_u32 s4, s4, {start}-{lab}')
        a.emit('s_addc_u32 s5, s5, 0')
    else:
        a.emit(f's_sub_u32 s4, s4, {lab}-{start}')
        a.emit('s_subb_u32 s5, s5, 0')
    a.emit(f's_and_b32 s3, s{S_WV}, 3')
    a.emit('s_lshl_b32 s3, s3, 13')
    a.emit('v_lshl_add_u32 v2, v1, 7, s3')
    a.emit(f'v_min_u32 v2, {end}-{start}-4, v2')
    a.emit(f'global_load_dword v{vd}, v2, s[4:5]')
    return 1

def wbase(a, vd, vt, g='v2', nr=False):
    if nr: a.emit(f'v_lshrrev_b32 v{vd}, 2, v1')
    else:
        a.emit(f'v_bfe_u32 v{vd}, v1, 2, 2')
        a.emit(f'v_lshl_add_u32 v{vd}, {g}, 3, v{vd}')
    a.emit(f'v_lshlrev_b32 v{vd}, 7, v{vd}')
    a.emit(f'v_and_b32 v{vt}, 3, v1')
    a.emit(f'v_lshl_add_u32 v{vd}, v{vt}, 3, v{vd}')
    a.emit(f'v_bfe_u32 v{vt}, v1, 3, 2')
    a.emit(f'v_lshl_add_u32 v{vd}, v{vt}, 5, v{vd}')


def code_touch(a, start, end, nb, sd=SX, loader=False):
    if ENV('CT', '1') == '0': return
    _pfc[0] += 1
    lab = f'L_pfc{_pfc[0]}'
    a.emit(f's_cmp_lg_u32 s{S_LAYER}, 0')
    a.emit(f's_cbranch_scc1 {lab}_skip')
    a.emit('s_getpc_b64 s[4:5]')
    a.label(lab)
    a.emit(f's_lshl_b32 s3, s{S_CU}, 2')
    a.emit(f's_add_u32 s3, s3, s{S_WV}')
    if loader: a.emit('s_sub_u32 s3, s3, 4')
    a.emit(f's_mul_i32 s3, s3, {nb}')
    a.emit(f's_min_u32 s3, s3, {end}-{start}-{nb}')
    a.emit(f's_add_i32 s3, s3, {start}-{lab}')
    a.emit('s_ashr_i32 s6, s3, 31')
    a.emit('s_add_u32 s4, s4, s3')
    a.emit('s_addc_u32 s5, s5, s6')
    for i in range(nb // 64):
        a.emit(f's_load_dword s{84 if loader else SW}, s[4:5], {64*i}')
    a.label(f'{lab}_skip')

def loader_first(a, kind):
    if ENV('LF', '1') == '0': return
    L = a.lines
    ib = max(i for i, l in enumerate(L) if l.strip() == f's_cbranch_scc1 L_{kind}_loader')
    il = L.index(f'L_{kind}_loader:')
    ie = L.index(f'L_{kind}_end:') + 2
    assert L[ie - 1].strip() == 's_endpgm' and L[ib - 1].strip().startswith('s_cmp_ge_u32')
    L[ib - 1] = L[ib - 1].replace('s_cmp_ge_u32', 's_cmp_lt_u32')
    L[ib] = f'  s_cbranch_scc1 L_{kind}_compute'
    a.lines = L[:ib + 1] + L[il:ie] + [f'L_{kind}_compute:'] + L[ib + 1:il] + L[ie:]

def clear_flags(a, part, n=0):
    if not ONE or DS: return
    if part == 0 and 'attn' not in OT: a.emit(f's_load_dwordx2 s[{SC}:{SC+1}], s[0:1], 72')
    a.emit(f's_or_b32 s3, s{S_LAYER}, s{S_WV}')
    a.emit(f's_cbranch_scc1 L_clr_skip{part}')
    if part == 0:
        srd(a, SP, 'ws0', WS_FL, FLS)
        a.emit('s_lshl_b32 s3, s2, 11')
        a.emit('v_lshlrev_b32 v2, 4, v1')
        a.emit(f'buffer_store_dwordx4 v[128:131], v2, s[{SP}:{SP+3}], s3 offen sc1')
        a.emit(f'buffer_store_dwordx4 v[128:131], v2, s[{SP}:{SP+3}], s3 offen offset:1024 sc1')
    else:
        a.emit('v_mov_b32 v3, 1')
        a.emit(f's_and_b32 s{SC+1}, s{SC+1}, 0xffff')
        a.emit(f's_mov_b32 s{SC+2}, 256')
        a.emit(f's_mov_b32 s{SC+3}, 0x00020000')
        a.emit('s_mov_b64 exec, 1')
        a.emit(f's_waitcnt vmcnt({n})')
        a.emit(f'buffer_store_byte v3, off, s[{SC}:{SC+3}], s2 sc1')
        a.emit('s_mov_b64 exec, -1')
    a.label(f'L_clr_skip{part}')

def mf_order(nn, nm, skip=lambda jn, jm: False):
    m = ENV('MFO', 's')
    if m == 'n': o = [(jn, jm) for jn in range(nn) for jm in range(nm)]
    elif m == 's': o = [(jn, jm if not jn & 1 else nm - 1 - jm) for jn in range(nn) for jm in range(nm)]
    elif m == 'm': o = [(jn, jm) for jm in range(nm) for jn in range(nn)]
    elif m == 'z': o = [(jn if not jm & 1 else nn - 1 - jn, jm) for jm in range(nm) for jn in range(nn)]
    elif m == 'd': o = [(i % nn, (i // nn + i % nn) % nm) for i in range(nn * nm)]
    return [x for x in o if not skip(*x)]
```

```python
from common import *

def ktab(a, vt, sh, P1, P2, tb):
    a.emit('v_and_b32 v2, 3, v1')
    a.emit('v_lshlrev_b32 v2, 3, v2')
    a.emit(f'v_bfe_i32 v{vt}, s{tb}, v2, 8')
    a.emit(f's_and_b32 s3, s{S_MT}, 3')
    a.emit(f's_mul_i32 s4, s3, {P2 // 4}')
    a.emit(f'v_add3_u32 v3, v{vt}, v1, s4')
    if P1 & (P2 - 1): a.emit(f'v_subrev_u32 v3, {P1}, v3')
    a.emit(f'v_and_b32 v3, {P2 - 1}, v3')
    if P1:
        MR = int(ENV('MR', '4'))
        if NV: a.emit(f'v_cmp_gt_u32 vcc, {NV}, v1')
        a.emit(f's_mul_i32 s3, s3, {MR // 4}')
        if NV:
            a.emit(f's_and_b32 s4, s{S_NT}, 1')
            a.emit(f'v_cndmask_b32_e64 v{vt+1}, {P1 - NV}, {NV}, vcc')
            a.emit(f'v_cndmask_b32_e64 v2, {P1 - 2 * NV}, {NV}, vcc')
            a.emit(f'v_add3_u32 v{vt}, v{vt}, v1, v2')
            for _ in range(2):
                a.emit(f'v_sub_u32 v2, v{vt}, v{vt+1}')
                a.emit(f'v_min_u32 v{vt}, v{vt}, v2')
            a.emit(f'v_cndmask_b32_e64 v2, {NV}, 0, vcc')
            a.emit(f'v_add_u32 v{vt}, v{vt}, v2')
        else:
            a.emit(f'v_add3_u32 v{vt}, v{vt}, v1, {P1}')
            a.emit(f's_bitcmp1_b32 s{S_NT}, 0')
            a.emit(f's_cselect_b32 s4, {P1}, 0')
            for _ in range(2):
                a.emit(f'v_subrev_u32 v2, {P1}, v{vt}')
                a.emit(f'v_min_u32 v{vt}, v{vt}, v2')
        if MR:
            a.emit(f'v_cmp_gt_u32 vcc, {MR}, v{vt}')
            a.emit(f'v_add_u32 v2, s3, v{vt}')
            a.emit(f'v_subrev_u32 v{vt+1}, {MR}, v2')
            a.emit(f'v_min_u32 v2, v{vt+1}, v2')
            a.emit(f'v_cndmask_b32 v{vt}, v{vt}, v2, vcc')
        a.emit(f'v_cmp_gt_u32 vcc, {P1}, v1')
        a.emit(f'v_lshl_add_u32 v{vt}, v{vt}, 1, s4' if NV else f'v_add_u32 v{vt}, s4, v{vt}')
        a.emit(f'v_add_u32 v3, {2 * P1}, v3')
        a.emit(f'v_cndmask_b32 v3, v3, v{vt}, vcc')
    a.emit(f'v_lshlrev_b32 v{vt}, {sh}, v3')

def ktab_ot(a, vt, sh, tb):
    KS = int(ENV('KS2', '1'))
    a.emit(f's_add_u32 s3, s{S_MT}, s{S_HD}')
    a.emit('s_and_b32 s3, s3, 3')
    for g in range(4):
        o = list(range(17))
        for t in range(KS + g, 14, 4): o[t:t + 3] = [t + 2, t, t + 1]
        assert o[0] == 0 and o[16] == 16
        v = sum(((t - o[t]) & 3) << (2 * t) for t in range(16))
        if g: a.emit(f's_cmp_eq_u32 s3, {g}')
        a.emit(f's_cselect_b32 s4, {v:#x}, s4' if g else f's_mov_b32 s4, {v:#x}')
    P1 = int(ENV('P1', '23')); P2 = 56 - 2 * P1
    a.emit('v_subrev_u32 v2, 3, v1')
    if P1 > 20: a.emit('v_min_u32 v2, 16, v2')
    a.emit('v_lshlrev_b32 v3, 1, v2')
    a.emit(f'v_bfe_i32 v{vt}, s4, v3, 2')
    a.emit(f'v_sub_u32 v{vt}, v1, v{vt}')
    a.emit(f'v_subrev_u32 v{vt}, {7 if P1 > 20 else 6}, v{vt}')
    if EF:
        a.emit(f'v_subrev_u32 v3, 7, v{vt}')
        a.emit(f'v_min_u32 v3, v3, v{vt}')
        a.emit(f'v_cmp_eq_u32 vcc, s{S_HD}, v3')
        a.emit(f's_and_b32 s3, s{S_NT}, 1')
        a.emit(f'v_cmp_lt_i32 s[4:5], 6, v{vt}')
        a.emit(f'v_cndmask_b32_e64 v3, v3, 7, vcc')
        a.emit('s_nop 0')
        a.emit('v_addc_co_u32 v2, vcc, v3, v3, s[4:5]')
    else:
        a.emit(f'v_ashrrev_i32 v3, 1, v{vt}')
        a.emit(f'v_cmp_eq_u32 vcc, s{S_HD}, v3')
        a.emit(f's_and_b32 s3, s{S_NT}, 1')
        a.emit(f'v_or_b32 v2, 14, v{vt}')
        a.emit(f'v_cndmask_b32 v2, v{vt}, v2, vcc')
    a.emit(f'v_cmp_gt_i32 vcc, 0, v{vt}')
    a.emit(f's_lshl2_add_u32 s4, s3, {20 if P1 > 20 else 19}')
    a.emit(f'v_add_u32 v{vt}, s4, v{vt}')
    a.emit('s_lshl4_add_u32 s4, s3, 24')
    a.emit('v_add_u32 v2, s4, v2')
    a.emit(f'v_cndmask_b32 v{vt}, v2, v{vt}, vcc')
    if P1 > 20:
        a.emit(f's_and_b32 s5, s{S_MT}, 3')
        a.emit(f"s_mul_i32 s5, s5, {ENV('RCM', '3')}")
        a.emit(f's_sub_u32 s5, s5, {P1}')
        a.emit('v_add_u32 v3, s5, v1')
        for _ in range(2):
            a.emit(f'v_subrev_u32 v2, {P2}, v3')
            a.emit('v_min_u32 v3, v3, v2')
        a.emit(f'v_cmp_gt_u32 vcc, {P1}, v1')
        a.emit(f's_sub_u32 s5, s3, {2 * P1}')
        a.emit('v_lshl_add_u32 v2, v1, 1, s5')
        a.emit('v_cndmask_b32 v3, v3, v2, vcc')
        a.emit(f's_add_u32 s5, s{S_HD}, {P1 - 20}')
        a.emit('v_ashrrev_i32 v2, 1, v3')
        a.emit('v_add_u32 v2, s5, v2')
        a.emit('v_and_b32 v2, 7, v2')
        a.emit('v_and_b32 v3, 1, v3')
        a.emit('v_cmp_gt_u32 vcc, 21, v1')
        a.emit('v_lshl_add_u32 v3, v3, 3, v2')
        a.emit(f's_lshl1_add_u32 s4, s{S_HD}, s4')
        a.emit(f's_lshl3_add_u32 s3, s3, s{S_HD}')
        a.emit(f'v_cndmask_b32 v3, v3, v{vt}, vcc')
        a.emit('v_writelane_b32 v3, s4, 0')
        a.emit('s_add_u32 s4, s4, 1')
        a.emit('v_writelane_b32 v3, s3, 2')
        a.emit('v_writelane_b32 v3, s4, 1')
        a.emit(f'v_lshlrev_b32 v{vt}, {sh}, v3')
        return
    a.emit('v_and_b32 v2, 3, v1')
    a.emit('v_lshlrev_b32 v2, 3, v2')
    a.emit(f'v_bfe_i32 v3, s{tb}, v2, 8')
    a.emit(f's_lshl2_add_u32 s5, s{S_MT}, 12')
    a.emit('v_add3_u32 v3, v3, v1, s5')
    a.emit('v_and_b32 v2, 7, v3')
    a.emit(f'v_cmp_eq_u32 vcc, s{S_HD}, v2')
    a.emit('v_bfe_u32 v2, v3, 3, 1')
    a.emit('v_lshl_add_u32 v2, v2, 2, 19')
    a.emit('v_and_b32 v3, 15, v3')
    a.emit('v_cndmask_b32 v3, v3, v2, vcc')
    a.emit('v_cmp_gt_u32 vcc, 20, v1')
    a.emit(f's_lshl1_add_u32 s4, s{S_HD}, s4')
    a.emit(f's_lshl3_add_u32 s3, s3, s{S_HD}')
    a.emit(f'v_cndmask_b32 v3, v3, v{vt}, vcc')
    a.emit('v_writelane_b32 v3, s4, 0')
    a.emit('s_add_u32 s4, s4, 1')
    a.emit('v_writelane_b32 v3, s3, 2')
    a.emit('v_writelane_b32 v3, s4, 1')
    a.emit(f'v_lshlrev_b32 v{vt}, {sh}, v3')

EVX, EVT, EVB = 24, 30, 27; EBIA = [4, 10, 124, 126]; ERING = [128, 144, 224, 64, 80, 240]
def w2_pre(a):
    P1 = int(ENV('P1', '23'))
    tile_map(a, 2, None, pair=True)
    rot_table(a, S_TB, S_MT, S_HD, 'w2')
    ktab(a, EVT, 11, P1, 56 - 2 * P1, S_TB)
    a.emit(f's_lshl_b32 s8, s{S_MT}, 7')
    a.emit(f's_lshl_b32 s9, s{S_WV}, 5')
    a.emit('s_add_u32 s8, s8, s9')
    a.emit('s_mul_i32 s9, s8, 7168')
    a.emit(f'v_lshl_add_u32 v{EVX}, v1, 4, s9')
    a.emit(f'v_add_u32 v{EVX+1}, {16*7168}, v{EVX}')
    a.emit('v_lshrrev_b32 v2, 4, v1')
    a.emit(f's_lshl_b32 s10, s{S_NT}, 7')
    a.emit(f'v_lshl_add_u32 v{EVB}, v2, 3, s10')

def w2_early(a):
    NG = int(ENV('NG2', '3'))
    for x in range(NG): a.emit(f'v_readlane_b32 s{SR+x}, v{EVT}, {x}')
    srd(a, SB, 'b2', 0, 2048)
    srd(a, SX, 'ws', WS_H, 2048 * 7168)
    for jn in range(4):
        a.emit(f'buffer_load_dwordx2 v[{EBIA[jn]}:{EBIA[jn]+1}], v{EVB}, s[{SB}:{SB+3}], 0 offen offset:{jn*32}')
    for x in range(NG):
        for ks in range(2):
            for jm in range(2):
                r = ERING[x] + (ks * 2 + jm) * 4
                a.emit(f'buffer_load_dwordx4 v[{r}:{r+3}], v{EVX+jm}, s[{SX}:{SX+3}], s{SR+x} offen offset:{ks*1024}')

def gen_gemm64y(a, kind, tsidx, side):
    K = 1024 if kind == 'wo' else 3584
    lda2 = K * 2; ldw2 = 2048
    N = K // 64
    P1 = int(ENV('P1', '23')) if kind == 'w2' else 0
    P2 = N - 2 * P1
    B16 = ENV('XB16', '1') == '1'
    NXC = 4 if B16 else 8; CH = NXC * 1024
    G0, GW = (131072, 28672) if kind == 'wo' else (0, 0)
    def slot(t):
        if kind == 'wo' and 'w1' in OT: return 28672 + 8192 * t + (4096 if t >= 12 else 0)
        g = G0 + (t >> 2) * 32768
        if g >= 163840: g = GW + (g - 163840) % (163840 - GW)
        return g + (t & 3) * 8192
    XB = 131072
    HR = int(ENV('HR', '6')) if P1 else 0
    sched = [(t >> 1, t & 1) for t in range(2 * (P1 - HR))] + [(x, u) for u in (0, 1) for x in range(P1 - HR, P1)] + [(x, 1) for x in range(P1, P1 + P2)]
    TU = 2 * P1 - max(HR, 1)
    NPRE = int(ENV('NPREO', '16')) if kind == 'wo' else int(ENV('NPRE', '20'))
    PSTEP = 64 if kind == 'w2' else 1024
    body = f'L_{kind}_body'; end = f'L_{kind}_end'
    VXO, VWB, VWA, VO, VT, VE = 4, 6, 26, 12, 15, 19
    XR = 32; FW = [160, 192]; ACC = [128, 96]; D = 240; BIA = 192
    SPC = NV if P1 else 0
    BIA = [BIA + 2 * jn for jn in range(4)]
    if SPC: VXO, VT, ACC, BIA = EVX, EVT, [32, 96], EBIA
    ot = kind == 'w2' and 'w2' in OT
    if ot: BIA = OBIA; assert P1 >= 20 and not SPC
    acc = lambda jn, jm, u=1: ACC[u] + (jn * 2 + jm) * 4
    fx = lambda r, ks, jm: XR + 16 * r + (ks * 2 + jm) * 4
    fw = lambda s, ks, jn: FW[s] + (ks * 4 + jn) * 4
    a.label(f'L_{kind}_c0')
    a.label(body)
    tile_map(a, 2, end, pair=True)
    rot_table(a, S_TB, S_MT, S_HD, kind)
    a.emit(f's_cmp_ge_u32 s{S_WV}, 4')
    a.emit(f's_cbranch_scc1 L_{kind}_loader')
    if ot:
        a.emit(f's_lshl_b32 s3, s{S_WV}, 12')
        a.emit(f's_add_u32 s3, s3, {OHB}')
        a.emit('v_lshl_add_u32 v2, v1, 4, s3')
        for i in range(12): a.emit(f'ds_read_b128 v[{32+4*i}:{35+4*i}], v2 offset:{(i>>2)*16384+(i&1)*2048+(i&2)*512}')
        ktab_ot(a, VT, 11, S_TB)
        if 'xhit' in DBG: a.emit(f'v_and_b32 v{VT}, 0x1800, v{VT}')
        if ENV('RE', '1') == '1' and not EF:
            a.emit('s_waitcnt lgkmcnt(0)')
            a.emit('s_barrier')
    elif SPC: tile_map(a, 2, None, pair=True)
    else: ktab(a, VT, 11, P1, P2, S_TB)
    a.emit('v_and_b32 v3, 15, v1')
    a.emit('v_lshrrev_b32 v2, 4, v1')
    a.emit(f's_lshl_b32 s8, s{S_MT}, 7')
    a.emit(f's_lshl_b32 s9, s{S_WV}, 5')
    a.emit('s_add_u32 s8, s8, s9')
    a.emit(f's_mul_i32 s9, s8, {lda2}')
    if 'xsm' in DBG:
        a.emit('s_and_b32 s9, s8, 0x67f')
        a.emit(f's_mul_i32 s9, s9, {lda2}')
    if not SPC and ENV('TID', '1') != '1':
        a.emit(f'v_lshl_add_u32 v{VXO}, v1, 4, s9')
        a.emit(f'v_add_u32 v{VXO+1}, {16*lda2}, v{VXO}')
    E2 = ot and EF == 2
    if E2: xpitch(a, 7, True)
    iB = len(a.lines)
    a.emit('v_add_u32 v13, s8, v3')
    a.emit(f's_lshl_b32 s10, s{S_NT}, 7')
    a.emit('v_lshl_add_u32 v14, v2, 3, s10')
    a.emit('v_and_b32 v16, 1, v2')
    a.emit('v_lshrrev_b32 v17, 1, v2')
    if kind == 'w2':
        a.emit('v_lshlrev_b32 v16, 5, v16')
        a.emit('v_lshl_add_u32 v16, v17, 4, v16')
        if 'attn' in OT:
            a.emit('v_lshlrev_b32 v4, 3, v3')
            a.emit('v_and_b32 v4, 0x70, v4')
            a.emit('v_xor_b32 v4, v4, v16')
            a.emit('v_lshl_add_u32 v4, v3, 7, v4')
            a.emit(f's_lshl_b32 s3, s{S_WV}, 12')
            a.emit('v_add_u32 v4, s3, v4')
            a.emit('v_xor_b32 v5, 64, v4')
        a.emit('v_add_u32 v16, s10, v16')
        if not E2: xpitch(a, 7, True)
        a.emit(f'v_mad_u32_u24 v{VO}, v13, s7, v16')
    else:
        if 'w1' in NS: a.emit('v_lshlrev_b32 v16, 4, v1')
        else:
            a.emit('v_lshl_add_u32 v16, v16, 1, v17')
            a.emit('v_lshlrev_b32 v16, 8, v16')
            a.emit('v_lshl_add_u32 v16, v3, 4, v16')
        a.emit(f's_add_u32 s9, s8, s{S_NT}')
        a.emit('s_lshl_b32 s9, s9, 11')
        a.emit(f'v_add_u32 v{VO}, s9, v16')
        if 'w1' in OT:
            a.emit(f's_lshl_b32 s9, s{S_WV}, 12')
            a.emit(f'v_add_u32 v{VE}, s9, v16')
    a.emit('v_lshl_add_u32 v18, v17, 4, v13')
    a.emit('v_lshlrev_b32 v18, 3, v18')
    a.emit('v_and_b32 v16, 1, v2')
    a.emit('v_lshl_add_u32 v18, v16, 2, v18')
    a.emit(f's_lshl_b32 s10, s{S_NT}, 14')
    a.emit('v_add_u32 v18, s10, v18')
    nr = kind in NS and NSR
    wbase(a, VWB, 17, nr=nr)
    for i in range(1, 4): a.emit(f'v_xor_b32 v{VWB+i}, {32*i}, v{VWB}')
    a.emit('s_mov_b32 s11, 0xffff0000')
    if E2: bl = a.lines[iB:]; del a.lines[iB:]
    if kind == 'wo':
        srd(a, SX, 'ws', WS_O, 4 * MB)
        srd(a, SO, 'ws', WS_X1, 4 * MB)
    else:
        if not SPC:
            if not ot: srd(a, SB, 'b2', 0, 2048)
            for jn in range(0 if ot else 4):
                a.emit(f'buffer_load_dwordx2 v[{BIA[jn]}:{BIA[jn]+1}], v14, s[{SB}:{SB+3}], 0 offen offset:{jn*32}')
            srd(a, SX, 'ws', WS_H, 2048 * 7168)
        srd(a, SO, 'out', 0, 4 * MB)
        srd(a, SR, 'ws0', WS_X2, 4 * MB)
        a.emit(f's_cmp_eq_u32 s{S_LAYER}, 0')
        a.emit(f's_cselect_b64 s[{SO}:{SO+1}], s[{SR}:{SR+1}], s[{SO}:{SO+1}]')
        a.emit(f's_lshl_b32 s{SO+2}, s7, 11')
        if E2:
            for x in range(3, 5): a.emit(f'v_readlane_b32 s{SR+(x&3)}, v{VT}, {x}')
    if not E2: srd(a, ST, 'ws', WS_ST if kind == 'wo' else WS_ST2, 16 * 16384)
    TID = ENV('TID', '1') == '1'
    if TID:
        a.emit(f's_mul_i32 s9, s8, {lda2}')
        a.emit(f's_add_u32 s{SX}, s{SX}, s9')
        a.emit(f's_addc_u32 s{SX+1}, s{SX+1}, 0x100000')
        a.emit(f's_add_u32 s{SC}, s{SX}, {16 * lda2}')
        a.emit(f's_addc_u32 s{SC+1}, s{SX+1}, 0')
        for r in (SX, SC):
            a.emit(f's_mov_b32 s{r+2}, {16 * lda2}')
            a.emit(f's_mov_b32 s{r+3}, 0x00800000')
    if E2:
        RB = int(ENV('RB', '0'))
        a.lines += bl[:RB]
        a.emit('s_waitcnt vmcnt(0) lgkmcnt(0)')
        a.emit('s_barrier')
        iR = len(a.lines)
        a.lines += bl[RB:]
        srd(a, ST, 'ws', WS_ST2, 16 * 16384)
    if kind == 'wo':
        if ENV('CT2', 'l') == 'l': code_touch(a, 'L_w1_c0', 'L_w1_c1', 128, SW)
        elif ENV('CT2') == 'o': code_touch(a, 'L_w2_c0', 'L_w2_c1', 192, SW)
        else: code_touch(a, 'L_w1_c0', 'L_w2_c1', 320, SW)
    DX = int(ENV('DX', '2'))
    CLW = DX == 1 and not P1 and ENV('CLP', 'e') == 'w'
    if CLW:
        for i in range(4): a.emit(f'v_mov_b32 v{128+i}, -1')
    if (P1 and DX) or CLW:
        srd(a, SP, 'ws', WS_XP, 4 * MB)
        a.emit(f's_or_b32 s{SP+1}, s{SP+1}, 0x100000')
        a.emit(f's_mov_b32 s{SP+3}, 0x00800000')
        a.emit(f's_lshl4_add_u32 s4, s{S_MT}, s{S_NT}')
        a.emit(f's_lshl2_add_u32 s4, s4, s{S_WV}')
        if DX == 2:
            srd(a, SB, 'ws0', WS_FL, FLS)
            a.emit(f's_add_u32 s6, s{S_LAYER}, 4')
            a.emit('s_lshl_b32 s6, s6, 10')
            a.emit('s_add_u32 s6, s6, s4')
            a.emit('s_lshl_b32 s6, s6, 6')
            a.emit(f'v_mov_b32 v{VE}, 1')
        a.emit('s_lshl_b32 s4, s4, 12')
        a.emit('s_xor_b32 s5, s4, 16384')
    elif P1:
        a.emit(f's_mul_i32 s3, s{S_WV}, {CH}')
        a.emit(f's_add_u32 s3, s3, {XB}')
        a.emit(f'v_lshl_add_u32 v{VE}, v1, 4, s3')
    if P1 and not ot:
        for i in range(32): a.emit(f'v_mov_b32 v{ACC[0]+i}, 0')
    bases = []
    for t in sorted(range(min(N, 20)), key=slot):
        if not bases or slot(t) + 8191 - bases[-1] > 65535: bases.append(slot(t))
    VSET = [VWB, 20, 26]
    for k in (2, 1, 0):
        for i in range(4):
            if bases[k] or k: a.emit(f'v_add_u32 v{VSET[k]+i}, {bases[k]}, v{VWB+i}')
    xof = lambda t: sched[t][0]
    NX = P1 + P2
    last = lambda x: sched.index((x, 1))
    def xl(x, reg):
        if TID: return [(f'buffer_load_dwordx4 v[{reg+(ks*2+jm)*4}:{reg+(ks*2+jm)*4+3}], off, s[{(SX, SC)[jm]}:{(SX, SC)[jm]+3}], s{SR+(x&3)} offset:{ks*1024}', 'V', ('x', x, ks))
                for ks in range(2) for jm in range(2)]
        return [(f'buffer_load_dwordx4 v[{reg+(ks*2+jm)*4}:{reg+(ks*2+jm)*4+3}], v{VXO+jm}, s[{SX}:{SX+3}], s{SR+(x&3)} offen offset:{ks*1024}', 'V', ('x', x, ks))
                for ks in range(2) for jm in range(2)]
    def reads(t):
        o = []
        k = max(i for i, b in enumerate(bases) if b <= slot(t))
        for ks in range(2):
            for jn in range(4):
                for h in range(2):
                    d = fw(t & 1, ks, jn) + 2 * h
                    o.append((f'ds_read_b64_tr_b16 v[{d}:{d+1}], v{VSET[k]+jn} offset:{slot(t)-bases[k]+ks*4096+h*(2048 if nr else 512)}', 'L', ('w', t, ks)))
        return o
    xreg = {}
    def mf(t):
        o = []
        for ks in range(2):
            for jn, jm in mf_order(4, 2):
                if True:
                    c = acc(jn, jm, sched[t][1]); x = xreg[xof(t)] + (ks * 2 + jm) * 4
                    o.append(f'v_mfma_f32_16x16x32_bf16 v[{c}:{c+3}], v[{fw(t&1,ks,jn)}:{fw(t&1,ks,jn)+3}], v[{x}:{x+3}], ' + ('0' if ot and t == ks == 0 else f'v[{c}:{c+3}]'))
        return o
    U = kind[1].upper()
    NG = int(ENV('NG' + U, '3'))
    ring = [32, 48, 64, 80, 224, 240][:int(ENV('RING' + U, '6' if P1 else '4'))]
    NB = 2 if E2 else int(ENV('NB', '3'))
    if SPC: ring = ERING
    elif ot:
        assert NG == 3
        for x in range(3, 3 if E2 else 3 + NB): a.emit(f'v_readlane_b32 s{SR+(x&3)}, v{VT}, {x}')
    else:
        for x in range(NG): a.emit(f'v_readlane_b32 s{SR+x}, v{VT}, {x}')
    for i in range(0 if kind == 'w2' and 'w1' in NS else 4):
        for h in range(2): a.emit(f'v_permlane16_swap_b32 v{D+4*i+h}, v{D+4*i+2+h}')
    TF = int(ENV('TF', '-1')); TG = int(ENV('TG', '15'))
    import pads
    for x in pads.chain('hg') if kind == 'wo' else []: a.emit(x)
    a.emit('s_waitcnt lgkmcnt(0)' + (f' vmcnt({4 * NG + 4 if EX == 14 else 0})' if SPC and TF < 0 else ''))
    if not (ot and ENV('RE', '1') == '1'): a.emit('s_barrier')
    pre = []
    for x in range(NG):
        xreg[x] = ring[x]; pre += xl(x, ring[x])
    if SPC: pre = [('', k, tg) for _, k, tg in pre] + [('', 'V', 'st')] * (14 - EX)
    if ot: pre = [('', 'L', tg) for _, k, tg in pre] + [('', 'V', 'st')] * (EF == 1)
    if E2:
        xe = xl(3, ring[3]) + xl(4, ring[4])
        XD_ = int(ENV('XED', '8'))
        for i, y in enumerate(xe): a.lines.insert(iR + i * (XD_ + 1), '  ' + y[0])
        pre += [('', k, tg) for _, k, tg in xe]
    pre += reads(0)
    P = lambda x: (x, '', None)
    if kind == 'w2' and not ot: pre.append(P(f's_waitcnt vmcnt({len(pre) - 16})'))
    for jn in range(4):
        if kind == 'w2':
            for h in range(2):
                pre.append(P(f'v_lshlrev_b32 v{216+2*h}, 16, v{BIA[jn]+h}'))
                pre.append(P(f'v_and_b32 v{217+2*h}, s11, v{BIA[jn]+h}'))
        for jm in range(2):
            c = acc(jn, jm); r = D + (jm * 4 + jn) * 2
            for h in range(2):
                pre.append(P(f'v_lshlrev_b32 v{c+2*h}, 16, v{r+h}'))
                pre.append(P(f'v_and_b32 v{c+2*h+1}, s11, v{r+h}'))
                if kind == 'w2': pre.append(P(f'v_pk_add_f32 v[{c+2*h}:{c+2*h+1}], v[{c+2*h}:{c+2*h+1}], v[{216+2*h}:{217+2*h}]'))
    pre.append(('', 'W', [('w', 0, 0), ('x', 0, 0)]))
    if TS:
        b = Asm(); stamp(b, 1); pre += [P(l.strip()) for l in b.lines]
    gp = [[] for _ in range(16 * N + 1)]
    waits = {}
    for t in range(N):
        if t + 1 < N:
            for i, x in enumerate(reads(t + 1)): gp[16 * t + i].append(x)
        for g, tt, ks in ((16 * t + 7, t, 1), (16 * t + 15, t + 1, 0)):
            if tt < N:
                waits[g] = [('w', tt, ks), ('x', xof(tt), ks)]
                gp[g].append(('', 'W', waits[g]))
    def put(g, x, cap=2):
        while len(gp[g]) >= cap and g < 16 * N: g += 1
        gp[g].append(x); return g
    BP = int(ENV('BP', '4'))
    ZS = int(ENV('ZS', '50' if DX else '54')) if P1 else N - 1
    XS = int(ENV('XS', '43' if DX else '41'))
    PS = int(ENV('PS', '0'))
    bars = list(range(BP - 1, min(2 * P1, XS), BP)) + [XS] + ([PS] if PS else []) + ([] if DX == 1 else [ZS]) if P1 else [int(x) for x in ENV('BWO', '3,10' if 'w1' in OT else '3,7,12').split(',')]
    if SPC:
        bars = [TF] + [t for t in bars if t > TF + 1]
        assert TG in bars
        if EX < 14 and TF >= 0: waits[16 * TF + 7].append('st')
    if ot: bars = [int(x) for x in ENV('BW2', ['2,7', '1,7', '3,7'][EF]).split(',')] + bars[2:]
    TG2 = int(ENV('TG2', '11'))
    if ot and EF == 1: waits[16 * bars[0] + 7].append('st')
    if ot and EF: assert TG2 in bars
    for t in bars:
        if t >= 0: gp[16 * t + 7].append(P('s_barrier'))
    G = ACC[0]; GI = G + 16 if B16 else G
    pool = [[r, -1 if i >= NG else 16 * last(i) + 15, N] for i, r in enumerate(ring)]
    if P1:
        for i in range(int(ENV('RINGX', '0'))): pool.append([G + 16 * i, 16 * XS + 7, ZS])
    SP1 = int(ENV('SP1', '7')); SP2 = int(ENV('SP2', '3'))
    g = 0
    for x in range(NG, NX):
        sl = min((p for p in pool if last(x) < p[2]), key=lambda p: p[1])
        xreg[x] = sl[0]
        if SPC and x == SPC: g = max(g, 16 * TG + 7)
        if ot and EF and x == 11: g = max(g, 16 * TG2 + 7)
        if E2 and x < 5:
            assert sl[0] == ring[x]
            sl[1] = 16 * last(x) + 15
            continue
        if ot and x < 3 + NB:
            g = 16 * bars[0] + 7
            gp[g] += xl(x, sl[0]); sl[1] = 16 * last(x) + 15; g += 3
            continue
        g = put(max(g - 2, sl[1] - 2, 0), P(f'v_readlane_b32 s{SR+(x&3)}, v{VT}, {x}')) + 3
        sp = SP1 if len(ring) + (int(ENV('CU2', '2')) if ot else 0) <= x and g < 16 * int(ENV('SPE', str(TU + 1))) else SP2
        sps = [int(c) for c in ENV('SP3', '4')] if P1 and 12 <= x and sp == SP2 else [sp]
        for i, y in enumerate(xl(x, sl[0])): g = put(max(g, sl[1] + 1), y) + sps[i % len(sps)]
        sl[1] = 16 * last(x) + 15
    for i in range(4): put(16 * (N - 1), P(f'v_mov_b32 v{20+i}, 0'))
    if CLW:
        g = max(g, int(16 * float(ENV('CLG', '0'))))
        for i in range(4): g = put(g, (f'buffer_store_dwordx4 v[128:131], off, s[{SP}:{SP+3}], s4 offset:{1024*i} sc1', 'V', 'cl')) + int(ENV('CLD', '2'))
    def xld(i): return f'buffer_load_dwordx4 v[{GI+4*i}:{GI+4*i+3}], off, s[{SP}:{SP+3}], s5 offset:{1024*i} sc1'
    def vmax(d, r):
        return [f'v_max3_u32 v{d}, v{r}, v{r+1}, v{r+2}'] + [f'v_max3_u32 v{d}, v{d}, v{r+j}, v{r+j+1}' for j in range(3, 15, 2)] + [f'v_max_u32 v{d}, v{d}, v{r+15}', f'v_cmp_eq_u32 vcc, -1, v{d}']
    if P1 and DX:
        g = 16 * TU + 2
        for i in range(4):
            for j in range(4 * i, 4 * i + 4): g = put(g, P(f'v_cvt_pk_bf16_f32 v{G+j}, v{G+2*j}, v{G+2*j+1}'))
            put(max(g + 1, 16 * TU + 6 + i * int(ENV('XWS', '0'))), (f'buffer_store_dwordx4 v[{G+4*i}:{G+4*i+3}], off, s[{SP}:{SP+3}], s4 offset:{1024*i} sc1', 'V', 'xw'))
        g = int(16 * float(ENV('RS', '50')))
        if DX == 2:
            g = put(int(16 * float(ENV('FS', '44'))), ('', 'W', ['xw']))
            put(g, (f'buffer_store_dword v{VE}, off, s[{SB}:{SB+3}], s6 sc1', 'V', 'xf'))
            g = 16 * ZS + 8
        for i in range(4): g = put(g, (xld(i), 'V', 'xr')) + int(ENV('RSP', '2'))
        g = put(int(16 * float(ENV('VS', '53.5' if DX == 1 else '54'))), ('', 'W', ['xr']))
        if DX == 1:
            for y in vmax(VE, GI): g = put(g, P(y))
            g = put(g + 1, P(f's_cbranch_vccnz L_{kind}_xrt\nL_{kind}_xok:'))
        for i in range(16):
            g = put(g, P(f'v_lshlrev_b32 v{G+2*i}, 16, v{GI+i}'), 2 if g < 16 * (N - 1) else 3)
            g = put(g, P(f'v_and_b32 v{G+2*i+1}, s11, v{GI+i}'), 2 if g < 16 * (N - 1) else 3)
    elif P1:
        g = 16 * (2 * P1 - 1) + 2
        for i in range(NXC):
            if B16:
                for j in range(4 * i, 4 * i + 4): g = put(g, P(f'v_cvt_pk_bf16_f32 v{G+j}, v{G+2*j}, v{G+2*j+1}'))
            gw = put(max(g + 1, 16 * (2 * P1 - 1) + 8 + 2 * i), (f'ds_write_b128 v{VE}, v[{G+4*i}:{G+4*i+3}] offset:{1024*i}', 'L', 'xw'))
        assert gw < 16 * XS + 7
        waits[16 * XS + 7].append('xw')
        g = 16 * ZS + 8
        for i in range(NXC): g = put(g, (f'ds_read_b128 v[{GI+4*i}:{GI+4*i+3}], v{VE} offset:{1024*i}', 'L', 'xr')) + 1
        g = put(max(g + 6, 16 * (N - 1)), ('', 'W', ['xr']))
        if B16:
            for i in range(16):
                g = put(g, P(f'v_lshlrev_b32 v{G+2*i}, 16, v{GI+i}'), 3)
                g = put(g, P(f'v_and_b32 v{G+2*i+1}, s11, v{GI+i}'), 3)
    XG = int(ENV('XG', '1'))
    if XG:
        isr = lambda y: y[1] == 'L' and y[2][0] == 'w'
        for g in range(16 * N - 1):
            if len(gp[g]) == 2 and gp[g][1][1] == 'V' and isr(gp[g][0]):
                for d in ((1, -1) if XG == 1 else (-1, 1)):
                    if len(gp[g + d]) == 1 and isr(gp[g + d][0]) and (d > 0 or g & 15):
                        gp[g + d].insert(0 if d > 0 else 1, gp[g].pop(0)); break
    lin = list(pre)
    for t in range(N):
        for i, m in enumerate(mf(t)):
            lin.append(P(m)); lin += gp[16 * t + i]
        if TS and t == int(ENV('ST2', '99')):
            b = Asm(); stamp(b, 2); lin += [P(l.strip()) for l in b.lines]
    lin += gp[16 * N]
    nbc = [0]
    def nb2():
        nbc[0] += 1; return 2 < nbc[0] < len(bars)
    iss = {'L': [], 'V': []}; done = {'L': -1, 'V': -1}
    for txt, k, tag in lin:
        if k == 'W':
            o = []
            for c, nm, mx in (('V', 'vmcnt', 63), ('L', 'lgkmcnt', 15)):
                idx = [i for i, x in enumerate(iss[c]) if x in tag]
                if idx and max(idx) > done[c]:
                    n = min(mx, len(iss[c]) - 1 - max(idx)); done[c] = len(iss[c]) - 1 - n
                    o.append(f'{nm}({n})')
            assert all(x in iss['L'] or x in iss['V'] for x in tag), tag
            if o: a.emit('s_waitcnt ' + ' '.join(o))
            continue
        if k: iss[k].append(tag)
        if 'nox2' in DBG and P1 and k == 'V' and tag[0] == 'x' and len(tag) == 3: continue
        if 'nobar2' in DBG and P1 and txt == 's_barrier' and nb2(): continue
        if ('nox' in DBG and k == 'V') or ('nomfma' in DBG and 'mfma' in txt) or not txt: continue
        a.emit(txt)
    if int(ENV('ST2', '99')) >= N: stamp(a, 2)
    a.emit(f's_mov_b32 s3, {16*2048}' if kind == 'wo' else 's_lshl_b32 s3, s7, 4')
    a.emit('s_mov_b32 s10, 0x3f803f80')
    a.emit('s_nop 4')
    for jm in range(2):
        for p in range(2):
            d = D + (jm * 2 + p) * 4
            for q in range(2):
                c = acc(2 * p + q, jm); g = acc(2 * p + q, jm, 0)
                if P1:
                    for h in range(2): a.emit(f'v_pk_add_f32 v[{c+2*h}:{c+2*h+1}], v[{c+2*h}:{c+2*h+1}], v[{g+2*h}:{g+2*h+1}]')
                a.emit(f'v_cvt_pk_bf16_f32 v{d+2*q}, v{c}, v{c+1}')
                a.emit(f'v_cvt_pk_bf16_f32 v{d+2*q+1}, v{c+2}, v{c+3}')
            if not (kind == 'wo' and 'w1' in NS):
                a.emit('s_nop 1')
                a.emit(f'v_permlane16_swap_b32 v{d}, v{d+2}')
                a.emit(f'v_permlane16_swap_b32 v{d+1}, v{d+3}')
            a.emit(f'buffer_store_dwordx4 v[{d}:{d+3}], v{VO}, s[{SO}:{SO+3}], {"s3" if jm else "0"} offen offset:{p*PSTEP}{stf(kind)}')
            if kind == 'w2' and 'attn' in OT: a.emit(f'ds_write_b128 v{4+p}, v[{d}:{d+3}] offset:{jm*2048}')
            if kind == 'wo' and 'w1' in OT: a.emit(f'ds_write_b128 v{VE}, v[{d}:{d+3}] offset:{jm*2048+p*1024}')
    for jm in range(2):
        for i in range(8):
            d = D + jm * 8 + i
            a.emit(f'v_dot2_f32_bf16 v{20+jm}, v{d}, s10, v{20+jm}')
            a.emit(f'v_dot2_f32_bf16 v{22+jm}, v{d}, v{d}, v{22+jm}')
    a.emit('s_nop 2')
    a.emit('v_permlane32_swap_b32 v20, v21')
    a.emit('v_permlane32_swap_b32 v22, v23')
    a.emit('v_add_f32 v20, v20, v21')
    a.emit('v_add_f32 v22, v22, v23')
    a.emit('s_nop 1')
    a.emit('v_permlane16_swap_b32 v20, v22')
    a.emit('v_add_f32 v20, v20, v22')
    a.emit(f'buffer_store_dword v20, v18, s[{ST}:{ST+3}], 0 offen{stf(kind)}')
    compute_end(a, kind)
    if P1 and DX == 1:
        a.label(f'L_{kind}_xrt')
        a.emit('s_mov_b32 s6, 0x40000')
        a.label(f'L_{kind}_xrl')
        for i in range(4): a.emit(xld(i))
        a.emit('s_sub_u32 s6, s6, 1')
        a.emit('s_waitcnt vmcnt(0)')
        a.emit(f's_cbranch_scc1 L_{kind}_xok')
        for y in vmax(VE, GI): a.emit(y)
        a.emit(f's_cbranch_vccnz L_{kind}_xrl')
        a.emit(f's_branch L_{kind}_xok')
    a.label(f'L_{kind}_loader')
    VT = 16
    if ENV('LPRIO'): a.emit(f"s_setprio {ENV('LPRIO')}")
    if kind == 'wo':
        if LSTK == 'wo': lstamp(a, 0)
        import sides
        dep_pre(a, kind, 0)
        a.emit(f's_cmp_lg_u32 s{S_LAYER}, 0')
        a.emit(f's_cbranch_scc1 L_{kind}_nofirst')
        sides.qkv(a, 0, 'finish', 1)
        a.label(f'L_{kind}_nofirst')
    L = Loader(a, kind, K, lda2, ldw2, [0], 128, 2, 8192, xblk=True)
    L.panels_of = lambda t: [0] if sched[t][1] else [f's{S_XD}']
    if ot:
        ktab_ot(a, VT, 17, S_TB)
        if 'whit' in DBG: a.emit(f'v_and_b32 v{VT}, 0x60000, v{VT}')
    else: ktab(a, VT, 17, P1, P2, S_TB)
    a.emit(f's_add_u32 s9, s{S_WV}, s{S_MT}')
    a.emit('s_and_b32 s9, s9, 3')
    a.emit(f's_lshl_b32 s{S_WD}, s9, 11')
    a.emit('v_and_b32 v10, 7, v1')
    if 'wsm' in DBG:
        a.emit(f's_and_b32 s11, s{S_NT}, 1')
        wvoff(a, L.VWD, 9, 11, ldw2)
    elif 'noslow2' in DBG:
        a.emit(f's_bitcmp1_b32 0x0c0c, s{S_NT}')
        a.emit('s_cselect_b32 s11, 2, 0')
        a.emit(f's_add_u32 s11, s11, s{S_NT}')
        wvoff(a, L.VWD, 9, 11, ldw2)
    else: wvoff(a, L.VWD, 9, S_NT, ldw2, kind in NS)
    if kind == 'wo': srd(a, SW, 'wo', 0, 2 * MB)
    else:
        srd(a, SW, 'w2', 0, 3584 * 2048)
        a.emit(f's_bitcmp1_b32 s{S_NT}, 0')
        a.emit(f's_mov_b32 s{S_XD}, 128')
        a.emit(f's_cselect_b32 s{S_XD}, -128, s{S_XD}')
    NPF = int(ENV('NPF' + kind[1].upper(), '10'))
    assert NPRE - NPF <= 18
    seq = []
    def em(o):
        for x in o:
            if ('nodma' in DBG or ('nodma2' in DBG and len(seq) >= 40)) and x.endswith(' lds'): continue
            a.emit(x)
    def after(t): return len(seq) - 1 - max(i for i, x in enumerate(seq) if x == t)
    NPK = int(ENV('NPK', '0')) if P1 else 0
    PK0 = int(ENV('PK0', '20')); PKA = int(ENV('PKA', '0'))
    PKD = int(ENV('PKD', '1'))
    pks = [t for t in range(PK0, N) if ((t - PK0) >> 1) % PKD == 0][:NPK]
    pkr = lambda t: 256 - 8 * NPK + 8 * pks.index(t)
    assert 256 - 8 * NPK >= 48
    if NPK:
        a.emit(f'v_lshl_add_u32 v20, v1, 4, s{S_WD}')
        a.emit('v_add_u32 v21, 0x10000, v20')
        a.emit('v_add_u32 v22, 0x20000, v20')
    lastk = [None]
    def kw(t):
        x = xof(t)
        if lastk[0] != x: a.emit(f'v_readlane_b32 s{S_KW}, v{VT}, {x}')
        lastk[0] = x
    def pk(t):
        kw(t)
        a.emit(f's_add_u32 s4, s{S_KW}, {L.panels_of(t)[0]}')
        for i in range(2): a.emit(f'buffer_load_dwordx4 v[{pkr(t)+4*i}:{pkr(t)+4*i+3}], v{L.VWD+i}, s[{SW}:{SW+3}], s4 offen')
        seq.extend([('P', t)] * 2)
    vmdone = [-1]
    def iw(t):
        if t in pks:
            i = max(i for i, x in enumerate(seq) if x == ('P', t))
            if i > vmdone[0]:
                a.emit(f's_waitcnt vmcnt({min(63, len(seq) - 1 - i)})'); vmdone[0] = i
            for i in range(0 if 'nopw' in DBG else 2): a.emit(f'ds_write_b128 v{20+(slot(t)>>16)}, v[{pkr(t)+4*i}:{pkr(t)+4*i+3}] offset:{(slot(t)&65535)+1024*i}')
            return
        kw(t)
        em(L.issue_w(t, S_WD, slot(t)))
        seq.extend([t] * 2)
    if kind == LSTK == 'wo': lstamp(a, 1)
    CW = [int(x) for x in ENV('CW', '0').split(',')] if P1 else []
    cwk = list(range(NPRE // 2, P1)) + list(range(2 * P1, N)); cwn = [0]
    if sum(CW):
        srd(a, SR, 'w2', 0, 3584 * 2048)
        a.emit(f's_and_b32 s3, s{S_WV}, 3')
        a.emit(f's_lshl2_add_u32 s3, s{S_CU}, s3')
        a.emit('s_lshl_b32 s4, s3, 6')
        a.emit('s_and_b32 s4, s4, 64')
        a.emit('s_lshr_b32 s3, s3, 1')
        a.emit('s_lshl_b32 s3, s3, 11')
        a.emit('s_add_u32 s3, s3, s4')
        a.emit(f's_sub_u32 s4, 384, s{SW}')
        a.emit('s_and_b32 s4, s4, 0x380')
        a.emit(f's_add_u32 s{S_Q}, s3, s4')
        a.emit(f's_bitcmp1_b32 s{S_NT}, 0')
        a.emit(f's_cselect_b32 s3, {P1 << 17}, 0')
        a.emit(f's_add_u32 s{S_T}, s{S_Q}, s3')
        a.emit('s_lshr_b32 s4, s4, 7')
        a.emit(f's_xor_b32 s4, s4, s{S_NT}')
        a.emit('s_bitcmp1_b32 s4, 0')
        a.emit(f's_cselect_b32 s{SR+2}, 0, s{SR+2}')
    def cw(j):
        for k in cwk[cwn[0]:cwn[0] + (CW[j] if j < len(CW) else 0)]:
            a.emit(f's_add_u32 s3, s{S_T if k < P1 else S_Q}, {k << 17}')
            for i in range(2): a.emit(f's_buffer_load_dword s84, s[{SW if k < P1 else SR}:{(SW if k < P1 else SR)+3}], s3 offset:{1024*i}')
            cwn[0] += 1
    def clr(w):
        if DX != 1 or P1 or w != ENV('CLP', 'e'): return
        srd(a, SP, 'ws', WS_XP, 4 * MB)
        a.emit(f's_and_b32 s5, s{S_WV}, 3')
        a.emit(f's_lshl4_add_u32 s6, s{S_MT}, s{S_NT}')
        a.emit('s_lshl2_add_u32 s6, s6, s5')
        a.emit('s_lshl_b32 s6, s6, 12')
        a.emit('s_setprio 3')
        a.emit('v_lshlrev_b32 v3, 4, v1')
        for i in range(4): a.emit(f'v_mov_b32 v{24+i}, -1')
        for i in range(4): a.emit(f'buffer_store_dwordx4 v[24:27], v3, s[{SP}:{SP+3}], s6 offen offset:{1024*i} sc1')
        a.emit('s_setprio 0')
        seq.extend(['C'] * 4)
    clr('a')
    for t in range(NPRE - NPF): iw(t)
    clr('b')
    PTH = ENV('PTH', '')
    for t in pks[:NPK - PKA]:
        pk(t)
        if PTH: a.emit(f's_waitcnt vmcnt({PTH})')
    cw(0)
    if kind == 'wo': dep_pre(a, kind, 1, len(seq))
    N2 = NPRE - NPF; pref = None
    if SPC:
        N2 = max(N2, int(ENV('N2', '0')), bars[1] + 2); NPRE = int(ENV('N3', '20'))
        assert NPRE <= TF + 21
        def pref():
            a.emit('s_mov_b32 s5, s3')
            if TF >= 0:
                a.emit(f's_waitcnt vmcnt({after(TF + 1)})')
                a.emit('s_barrier')
            for t in range(len(seq) // 2, N2): iw(t)
            a.emit('s_mov_b32 s3, s5')
            a.emit(f's_waitcnt vmcnt({after(bars[1] + 1)})')
    def postf():
        for t in range(N2, NPRE):
            if ot and slot(t) == OHB:
                a.emit(f's_waitcnt vmcnt({after(bars[0] + 1)})')
                a.emit('s_barrier')
            iw(t)
        for t in pks[NPK - PKA:]: pk(t)
    if ot and EF:
        NE = int(ENV('NE', '14')); NH = int(ENV('NH', str(NE))); NPRE = int(ENV('NGB', '20' if E2 else str(NH)))
        assert slot(NH - 1) < OHB
        dep_ef(a, lambda: [iw(t) for t in range(N2, NE)], lambda: E2 or a.emit(f's_waitcnt vmcnt({after(bars[0] + 1)})'),
               lambda: [iw(t) for t in range(NE, NH)] + [a.emit(f's_waitcnt vmcnt({after(bars[0 if E2 else 1] + 1)}) lgkmcnt(0)')])
        a.emit(f's_mov_b32 s{S_CNT}, 0x100000')
        for t in range(NH, NPRE): iw(t)
    else: dep_wait(a, kind, skip_first=kind == 'wo', preg=lambda: a.emit(f's_waitcnt vmcnt({min(after(bars[2 if SPC else 1 if ot else 0] + 1), 63)}) lgkmcnt(0)'),
             postf=postf, pref=pref, defer=bool(SPC))
    nxt = NPRE
    reg = bars[:bars.index(XS)] if P1 and not DX else bars
    clr('g')
    for j, t in enumerate(reg):
        if (SPC or ot) and j < 1 and not E2: continue
        lim = min(N, (reg[j - 1] if j else -1) + 21)
        PACE = [int(c) for c in ENV('PACE', '')] if P1 else []
        if j < len(PACE): lim = min(lim, nxt + PACE[j])
        PP = int(ENV('PP', '2'))
        pp = min(lim - 1, nxt + PP) if (SPC and t == TG) or (E2 and t == TG2) else -1
        pe = min(lim - 1, nxt + int(ENV('PE', '0'))) if ot and EF == 1 and t == TG2 else -1
        while nxt < lim:
            if nxt == pp: dep_late(a, kind, 0); seq.append('F')
            if nxt == pe:
                ef_poll(a, 'L_w2_pl', 2, True)
                lstamp(a, 2, True)
            iw(nxt); nxt += 1
            if nxt - 1 in pks: a.emit('s_waitcnt lgkmcnt(0)')
            elif nxt < lim: a.emit(f"s_waitcnt vmcnt({ENV('LTHR', '4')})")
        cw(j + 1)
        clr(str(j))
        need = [min(N - 1, bars[j + 1] + 1)] if j + 1 < len(bars) else []
        assert all(t < nxt for t in need)
        need = [max(x for x in range(t + 1) if x not in pks) for t in need]
        if P1 and not DX and j == len(reg) - 1:
            srd(a, SP, 'ws', WS_XP, 8 * MB)
            srd(a, SC, 'ws0', WS_FL, FLS)
            a.emit(f's_and_b32 s5, s{S_WV}, 3')
            a.emit(f's_lshl4_add_u32 s6, s{S_MT}, s{S_NT}')
            a.emit('s_lshl2_add_u32 s6, s6, s5')
            a.emit(f's_mul_i32 s8, s6, {CH}')
            a.emit('s_add_u32 s9, s8, 4096')
            a.emit(f's_add_u32 s7, s{S_LAYER}, 4')
            a.emit('s_lshl_b32 s7, s7, 10')
            a.emit('s_add_u32 s6, s6, s7')
            a.emit('s_lshl_b32 s6, s6, 6')
            a.emit('s_xor_b32 s7, s6, 256')
            a.emit(f's_mul_i32 s5, s5, {CH}')
            a.emit(f's_add_u32 s5, s5, {XB}')
            a.emit('v_lshlrev_b32 v3, 4, v1')
            a.emit('v_add_u32 v2, s5, v3')
            a.emit('v_mov_b32 v4, 1')
            a.emit(f's_mov_b32 s{S_CNT}, 0x100000')
        if pp >= 0: dep_late(a, kind, 1, after('F'))
        if P1 and DX == 2 and t == XS:
            srd(a, SC, 'ws0', WS_FL, FLS)
            a.emit(f's_lshl4_add_u32 s6, s{S_MT}, s{S_NT}')
            a.emit('s_xor_b32 s6, s6, 1')
            a.emit(f's_add_u32 s7, s{S_LAYER}, 4')
            a.emit('s_lshl_b32 s7, s7, 8')
            a.emit('s_add_u32 s6, s6, s7')
            a.emit('s_lshl_b32 s6, s6, 8')
            a.emit('v_and_b32 v2, 3, v1')
            a.emit('v_lshlrev_b32 v2, 6, v2')
            a.emit(f's_mov_b32 s{S_CNT}, 0x100000')
        if P1 and DX == 2 and t == ZS:
            a.emit(f's_cmp_lg_u32 s{S_WV}, 4')
            a.emit(f's_cbranch_scc1 L_{kind}_xgo')
            a.emit('s_setprio 3')
            a.label(f'L_{kind}_xpoll')
            a.emit(f'buffer_load_dword v5, v2, s[{SC}:{SC+3}], s6 offen sc1')
            a.emit(f's_sub_u32 s{S_CNT}, s{S_CNT}, 1')
            a.emit(f's_cbranch_scc1 L_{kind}_xgo')
            a.emit('s_waitcnt vmcnt(0)')
            a.emit('v_cmp_ne_u32 vcc, 1, v5')
            a.emit(f's_cbranch_vccnz L_{kind}_xpoll')
            a.label(f'L_{kind}_xgo')
            a.emit('s_setprio 0')
        a.emit(f's_waitcnt vmcnt({min(63, min(after(t) for t in need)) if need else 0})')
        if not ('nobar2' in DBG and P1 and 1 < j < len(bars) - 1): a.emit('s_barrier')
    assert nxt == N and (ENV('LATE_W1', '2') == '2' or (kind == 'w2' or bars[-1] >= 9) and 'w1' in OT) and ENV('LATE_ATTN', '2') == '2'
    clr('e')
    if not P1: a.emit('s_waitcnt vmcnt(0)')
    if P1 and not DX:
        XL = ENV('LST') == 'x'
        a.emit('s_setprio 3')
        a.emit('s_waitcnt vmcnt(0) lgkmcnt(0)')
        a.emit('s_barrier')
        for i in range(NXC): a.emit(f'ds_read_b128 v[{32+4*i}:{35+4*i}], v2 offset:{1024*i}')
        for i in range(NXC):
            a.emit(f's_waitcnt lgkmcnt({NXC-1-i})')
            if 'noxs' not in DBG: a.emit(f'buffer_store_dwordx4 v[{32+4*i}:{35+4*i}], v3, s[{SP}:{SP+3}], s{8+(i>>2)} offen offset:{1024*(i&3)} sc1')
        if XL: lstamp(a, 0)
        a.emit(f's_xor_b32 s8, s8, {4*CH}')
        a.emit(f's_xor_b32 s9, s9, {4*CH}')
        a.emit('s_mov_b64 exec, 1')
        a.emit('s_waitcnt vmcnt(0)')
        a.emit(f'buffer_store_dword v4, off, s[{SC}:{SC+3}], s6 sc1')
        if XL: lstamp(a, 1)
        if PS: a.emit('s_barrier')
        if 'nopoll' in DBG: a.emit(f's_branch L_{kind}_xgo')
        a.label(f'L_{kind}_xpoll')
        a.emit(f'buffer_load_dword v5, off, s[{SC}:{SC+3}], s7 sc1')
        a.emit(f's_sub_u32 s{S_CNT}, s{S_CNT}, 1')
        a.emit(f's_cbranch_scc1 L_{kind}_xgo')
        a.emit('s_waitcnt vmcnt(0)')
        a.emit('v_cmp_ne_u32 vcc, 1, v5')
        a.emit(f's_cbranch_vccnz L_{kind}_xpoll')
        a.label(f'L_{kind}_xgo')
        a.emit('s_mov_b64 exec, -1')
        a.emit('s_mov_b32 m0, s5')
        if XL: lstamp(a, 2)
        for i in range(NXC):
            if i == 4: a.emit('s_add_u32 m0, s5, 4096')
            if not i & 3: a.emit('s_nop 0')
            if 'noxl' not in DBG: a.emit(f'buffer_load_dwordx4 v3, s[{SP}:{SP+3}], s{8+(i>>2)} offen offset:{1024*(i&3)} lds')
        a.emit('s_waitcnt vmcnt(0)')
        if XL: lstamp(a, 3)
        a.emit('s_setprio 0')
        a.emit('s_barrier')
    loader_end(a, kind)
    a.label(end)
    a.emit('s_endpgm')
    loader_first(a, kind)
    if SPC:
        i = a.lines.index(f'  s_cbranch_scc1 L_{kind}_compute')
        del a.lines[i - 1:i + 1]
    a.label(f'L_{kind}_c1')
    return 163840
```

```python
from common import *

T4 = ENV('T4', '1') == '1'
OBAR = ENV('OBAR', '0') == '1'
def big_loop(a, tag, N, S, STAGE, naddr, VB, VA, reads, mf, variants=None, select=None, post=None, ot=None, mid=(), halo=None, hooks=None):
    def addr():
        o = [f'v_add_u32_e64 v{VA+i}, s{S_SLOT}, v{VB+i}' for i in range(naddr)]
        o += [f's_add_u32 s{S_SLOT}, s{S_SLOT}, {STAGE}', f's_cmp_eq_u32 s{S_SLOT}, {S*STAGE}', f's_cselect_b32 s{S_SLOT}, 0, s{S_SLOT}']
        return o
    a.emit(f's_mov_b32 s{S_SLOT}, 0')
    for x in addr(): a.emit(x)
    if halo:
        if hooks: own_pos(a, S_CNT)
        else: a.emit(f's_mov_b32 s{S_CNT}, {N}')
        if hooks: a.emit(f's_mul_i32 s{S_T}, s{S_LAYER}, {len(hooks)}')
        a.emit(f's_cmp_eq_u32 s{S_LAYER}, 0')
        a.emit(f's_cbranch_scc1 L_{tag}_nog')
    a.emit(f's_mov_b32 s{S_CNT}, {N - 1 if ot else N}')
    if ot:
        rd = (lambda s, ks: reads(s, ks, False)) if halo else reads
        for x in rd(0, 0): a.emit(x)
        a.emit('s_waitcnt lgkmcnt(0)')
        interleave(a, ot(0), rd(1, 1) + addr(), lead=1, per=1)
        a.emit('s_waitcnt lgkmcnt(0)')
        for x in ot(1): a.emit(x)
    if halo:
        a.emit('s_barrier')
        for x in halo[0]: a.emit(x)
        a.label(f'L_{tag}_nog')
    else:
        import pads
        for x in pads.chain('hv'): a.emit(x)
        gbar(a, tag)
    a.lines += mid
    if halo: a.emit(f's_cmp_eq_u32 s{S_LAYER}, 0')
    a.emit('s_barrier')
    stamp(a, 1)
    if halo:
        a.emit(f's_cbranch_scc1 L_{tag}_first')
        for x in halo[1] + reads(0, 0): a.emit(x)
        a.emit('s_waitcnt lgkmcnt(15)')
        for x in halo[2]: a.emit(x)
        a.emit('s_waitcnt lgkmcnt(0)')
        a.emit(f's_branch L_{tag}_loop')
        a.label(f'L_{tag}_first')
        if not DS: a.emit(f's_load_dwordx2 s[{SC}:{SC+1}], s[0:1], 72')
    for x in reads(0, 0): a.emit(x)
    a.emit('s_waitcnt lgkmcnt(0)')
    def loop(nm, m):
        la = int(ENV('LA_' + tag.upper(), '4'))
        w = a.lines.pop()
        assert w.split()[0] in ('s_waitcnt', 's_cbranch_scc1', 's_branch')
        a('.p2align 5')
        for _ in range(la - 1): a.emit('s_nop 0')
        a.lines.append(w)
        a.label(f'L_{tag}_loop{nm}')
        ad = addr()
        ad[-1] += f'\n  s_sub_u32 s{S_CNT}, s{S_CNT}, 1'
        interleave(a, m(0), reads(1, 1) + ad, lead=1, per=1)
        a.emit('s_waitcnt lgkmcnt(0)')
        a.emit('s_barrier')
        interleave(a, m(1), reads(0, 0) + [f's_cmp_lg_u32 s{S_CNT}, 0\n  s_nop 0'], lead=1, per=1)
        a.emit('s_waitcnt lgkmcnt(0)')
        a.emit(f's_cbranch_scc1 L_{tag}_loop{nm}')
    if variants:
        select()
        vs = list(variants.items())
        for i, (nm, m) in enumerate(vs):
            loop(nm, m)
            if i + 1 < len(vs): a.emit(f's_branch L_{tag}_post')
        a.label(f'L_{tag}_post')
        post()
        a.emit(f's_branch L_{tag}_exit')
    if hooks and PO0 == 0:
        a.emit(f's_cmp_eq_u32 s{S_CNT}, 0')
        a.emit(f's_cbranch_scc1 L_{tag}_lend')
    loop('', mf)
    a.label(f'L_{tag}_lend')
    if hooks:
        a.emit(f's_add_u32 s{S_T}, s{S_T}, 1')
        a.emit(f's_cmp_gt_u32 s{S_T}, {len(hooks)}')
        a.emit(f's_cbranch_scc1 L_{tag}_exit')
        for i, (t, code) in enumerate(hooks):
            if i + 1 < len(hooks):
                a.emit(f's_cmp_lg_u32 s{S_T}, {i + 1}')
                a.emit(f's_cbranch_scc1 L_{tag}_hook{i}')
            t2 = hooks[i + 1][0] if i + 1 < len(hooks) else N
            if t < 0 <= t2:
                own_pos(a, S_CNT)
                a.emit(f's_sub_u32 s{S_CNT}, {t2 + t + 1}, s{S_CNT}')
                assert t2 + t + 1 > PO0 + POM
            else: a.emit(f's_mov_b32 s{S_CNT}, {abs(t2 - t)}')
            for x in code: a.emit(x)
            a.emit(f's_branch L_{tag}_loop')
            if i + 1 < len(hooks): a.label(f'L_{tag}_hook{i}')
    a.label(f'L_{tag}_exit')
    stamp(a, 2)

def stats_loads(a, vd, halo):
    a.emit(f's_and_b32 s3, s{S_WV}, 3')
    a.emit(f's_lshl_b32 s4, s{S_MT}, 7')
    a.emit('s_lshl_b32 s5, s3, 6')
    a.emit('s_add_u32 s5, s5, s4')
    a.emit('v_add_u32 v2, s5, v1')
    a.emit('s_sub_u32 s4, s4, 16')
    a.emit('v_and_b32 v3, 15, v1')
    a.emit('v_add_u32 v3, s4, v3')
    a.emit('v_max_i32 v3, 0, v3')
    a.emit('s_cmp_ge_u32 s3, 2')
    a.emit('s_cselect_b64 vcc, -1, 0')
    a.emit('v_cndmask_b32 v2, v2, v3, vcc')
    a.emit('v_lshlrev_b32 v2, 3, v2')
    a.emit('s_mov_b32 s3, 0')
    for j in range(16):
        a.emit(f'buffer_load_dwordx2 v[{vd+2*j}:{vd+2*j+1}], v2, s[{ST}:{ST+3}], s3 offen')
        if j < 15: a.emit('s_add_u32 s3, s3, 16384')
    return 16

def stats_finish(a, vs):
    a.emit(f'v_mul_f32 v{vs}, 0x3a800000, v{vs}')
    a.emit(f'v_mul_f32 v{vs+1}, 0x3a800000, v{vs+1}')
    a.emit(f'v_fma_f32 v{vs+1}, -v{vs}, v{vs}, v{vs+1}')
    a.emit(f'v_max_f32 v{vs+1}, 0, v{vs+1}')
    a.emit(f'v_add_f32 v{vs+1}, 0x3727c5ac, v{vs+1}')
    a.emit(f'v_rsq_f32 v{vs+1}, v{vs+1}')
    a.emit('s_nop 0')

def stats_reduce_store(a, vd, LST):
    for j in range(1, 8):
        a.emit(f'v_add_f32 v{vd}, v{vd}, v{vd+2*j}')
        a.emit(f'v_add_f32 v{vd+1}, v{vd+1}, v{vd+2*j+1}')
        a.emit(f'v_add_f32 v{vd+16}, v{vd+16}, v{vd+16+2*j}')
        a.emit(f'v_add_f32 v{vd+17}, v{vd+17}, v{vd+17+2*j}')
    a.emit(f'v_add_f32 v{vd}, v{vd}, v{vd+16}')
    a.emit(f'v_add_f32 v{vd+1}, v{vd+1}, v{vd+17}')
    stats_finish(a, vd)
    a.emit(f's_and_b32 s3, s{S_WV}, 3')
    a.emit('s_lshl_b32 s5, s3, 6')
    a.emit('s_add_u32 s5, s5, 16')
    a.emit('v_add_u32 v2, s5, v1')
    a.emit('v_and_b32 v3, 15, v1')
    a.emit('s_cmp_ge_u32 s3, 2')
    a.emit('s_cselect_b64 vcc, -1, 0')
    a.emit('v_cndmask_b32 v2, v2, v3, vcc')
    a.emit('v_lshlrev_b32 v2, 2, v2')
    a.emit(f'v_add_u32 v2, {LST}, v2')
    a.emit(f'ds_write2_b32 v2, v{vd}, v{vd+1} offset0:0 offset1:160')

VST, VSH, VCS, VBI = 18, 19, 22, 23
def stats4_setup(a, halo):
    a.emit(f's_and_b32 s3, s{S_WV}, 3')
    a.emit(f's_lshl2_add_u32 s4, s{S_MT}, s3')
    a.emit('s_lshl_b32 s4, s4, 8')
    a.emit('v_lshrrev_b32 v2, 4, v1')
    a.emit('v_and_b32 v3, 15, v1')
    a.emit('v_lshl_add_u32 v3, v3, 4, s4')
    a.emit(f'v_lshl_add_u32 v{VST}, v2, 14, v3')
    if halo:
        a.emit(f's_lshl_b32 s4, s{S_MT}, 5')
        a.emit('s_add_u32 s4, s4, s3')
        a.emit('s_sub_u32 s4, s4, 4')
        a.emit('s_max_i32 s4, s4, 0')
        a.emit('s_lshl_b32 s4, s4, 5')
        a.emit('v_lshrrev_b32 v2, 2, v1')
        a.emit('v_and_b32 v3, 3, v1')
        a.emit('v_lshl_add_u32 v3, v3, 3, s4')
        a.emit(f'v_lshl_add_u32 v{VSH}, v2, 14, v3')

def quad_loads(vd, vo, sd):
    o = []
    for j in range(4):
        if j: o.append(f's_mov_b32 s3, {j << 16}')
        o.append(f'buffer_load_dwordx4 v[{vd+4*j}:{vd+4*j+3}], v{vo}, s[{sd}:{sd+3}], {"s3" if j else 0} offen')
    return o

def stats4_loads(vd, halo):
    return quad_loads(vd, VST, ST) + ([f'buffer_load_dwordx2 v[{vd+16}:{vd+17}], v{VSH}, s[{ST}:{ST+3}], 0 offen'] if halo else [])

def quad_sum(a, vd):
    pk = lambda d, s: a.emit(f'v_pk_add_f32 v[{d}:{d+1}], v[{d}:{d+1}], v[{s}:{s+1}]')
    pk(vd, vd + 4); pk(vd + 2, vd + 6); pk(vd + 8, vd + 12); pk(vd + 10, vd + 14); pk(vd, vd + 8); pk(vd + 2, vd + 10)
    a.emit('s_nop 1')
    a.emit(f'v_permlane32_swap_b32 v{vd}, v{vd+2}')
    a.emit(f'v_permlane32_swap_b32 v{vd+1}, v{vd+3}')
    pk(vd, vd + 2)

def stats4_store(a, vd, LST, halo, chk=None):
    quad_sum(a, vd)
    if chk: chk()
    def allsum(r, op):
        a.emit(f'v_mov_b32 v{r+2}, v{r}')
        a.emit(f'v_mov_b32 v{r+3}, v{r+1}')
        a.emit('s_nop 0')
        a.emit(f'v_permlane{op}_swap_b32 v{r}, v{r+2}')
        a.emit(f'v_permlane{op}_swap_b32 v{r+1}, v{r+3}')
        a.emit(f'v_pk_add_f32 v[{r}:{r+1}], v[{r}:{r+1}], v[{r+2}:{r+3}]')
    allsum(vd, 16)
    stats_finish(a, vd)
    a.emit(f's_and_b32 s3, s{S_WV}, 3')
    a.emit('s_lshl_b32 s5, s3, 7')
    a.emit(f's_add_u32 s5, s5, {LST + 64}')
    a.emit('v_and_b32 v3, 15, v1')
    a.emit('v_lshrrev_b32 v2, 5, v1')
    a.emit('v_lshl_add_u32 v2, v3, 1, v2')
    a.emit('v_lshl_add_u32 v2, v2, 2, s5')
    a.emit(f'ds_write2_b32 v2, v{vd}, v{vd+1} offset0:0 offset1:160')
    if halo:
        h = vd + 16
        allsum(h, 32); allsum(h, 16)
        for r in (8, 4):
            a.emit('s_nop 1')
            for i in range(2): a.emit(f'v_add_f32_dpp v{h+i}, v{h+i}, v{h+i} row_ror:{r} row_mask:0xf bank_mask:0xf')
        stats_finish(a, h)
        a.emit('s_lshl_b32 s5, s3, 4')
        a.emit(f's_add_u32 s5, s5, {LST}')
        a.emit('v_and_b32 v3, 3, v1')
        a.emit('v_lshl_add_u32 v2, v3, 2, s5')
        a.emit(f'ds_write2_b32 v2, v{h}, v{h+1} offset0:0 offset1:160')

def gen_w1(a, tsidx, side, cs=(16, 16384, 0)):
    kind = 'w1'
    K = 1024; lda2 = 2048; ldw2 = 7168; ldo2 = 7168
    ot = kind in OT
    S = 3; LM = int(ENV('LM_W1', '2' if ot else '3'))
    STAGE = 16384 + 4 * 8192
    o2 = 'w2' in OT
    assert LM == 2 or not o2
    LST = OHB - 4096 if o2 else S * STAGE
    LCS = LST + 1280
    N = 16
    body = f'L_{kind}_body'; end = f'L_{kind}_end'
    VB, VA, VO = 4, 20, 12
    F = [32, 80]; ACC = 128
    acc = lambda jn, jm: ACC + (jn * 4 + jm) * 4
    fx = lambda s, jm: F[s] + jm * 4
    fw = lambda s, jn: F[s] + 16 + jn * 4
    a.label(f'L_{kind}_c0')
    if not MEGA: stub(a, f'{kind}l0_kernel', body, 0, tsidx, True)
    a.label(body)
    tile_map(a, LM, end)
    a.emit(f's_cmp_ge_u32 s{S_WV}, 4')
    a.emit(f's_cbranch_scc1 L_{kind}_loader')
    if ot and OBAR: a.emit('s_barrier')
    if NV:
        from gemm64y import w2_pre, w2_early
        w2_pre(a)
        tile_map(a, LM, None)
    a.emit(f's_and_b32 s{S_WM}, s{S_WV}, 1')
    a.emit(f's_lshr_b32 s{S_WN}, s{S_WV}, 1')
    a.emit('v_and_b32 v3, 15, v1')
    a.emit('v_lshrrev_b32 v2, 4, v1')
    a.emit(f's_lshl_b32 s8, s{S_WM}, 13')
    a.emit(f'v_lshl_add_u32 v{VB}, v1, 4, s8')
    nr = kind in NS and NSR
    wbase(a, 13, 17, nr=nr)
    a.emit(f's_lshl_b32 s9, s{S_WN}, 6')
    a.emit('v_xor_b32 v13, s9, v13')
    a.emit(f'v_add_u32 v{VB+1}, 16384, v13')
    a.emit(f'v_xor_b32 v{VB+2}, 32, v{VB+1}')
    a.emit('v_and_b32 v16, 1, v2')
    a.emit('v_lshrrev_b32 v17, 1, v2')
    if nr: a.emit('v_lshrrev_b32 v13, 2, v1')
    else:
        a.emit('v_bfe_u32 v13, v1, 2, 2')
        a.emit('v_lshl_add_u32 v13, v16, 3, v13')
        a.emit('v_lshl_add_u32 v13, v17, 5, v13')
    n2 = 'w2' in NS
    if n2:
        a.emit('v_and_b32 v14, 1, v1')
        a.emit('v_lshl_add_u32 v13, v13, 1, v14')
        a.emit(f'v_xor_b32 v14, s{S_WN}, v16')
        a.emit('v_lshl_add_u32 v13, v13, 1, v14')
        a.emit('v_bfe_u32 v14, v1, 1, 1')
        a.emit('v_lshl_add_u32 v13, v13, 1, v14')
    else:
        a.emit(f'v_xor_b32 v14, s{S_WN}, v16')
        a.emit('v_lshl_add_u32 v13, v13, 1, v14')
        a.emit('v_and_b32 v14, 3, v1')
        a.emit('v_lshl_add_u32 v13, v13, 2, v14')
    a.emit('v_lshlrev_b32 v13, 3, v13')
    a.emit(f'v_add_u32 v{VB+3}, {16384 + 3 * 8192}, v13')
    i0 = len(a.lines)
    a.emit(f's_lshl_b32 s8, s{S_MT}, 7')
    a.emit(f's_lshl_b32 s9, s{S_WM}, 6')
    a.emit('s_add_u32 s8, s8, s9')
    a.emit(f's_mul_i32 s8, s8, {ldo2}')
    a.emit('v_lshlrev_b32 v14, 8, v17')
    a.emit('v_lshl_add_u32 v14, v3, 4, v14')
    if o2:
        a.emit(f's_lshl3_add_u32 s9, s{S_WM}, s{S_WN}')
        a.emit('s_lshl_b32 s9, s9, 10')
        a.emit(f's_add_u32 s9, s9, {OHB}')
        if n2: a.emit('v_lshl_add_u32 v18, v1, 4, s9')
        else:
            a.emit('v_lshl_add_u32 v18, v16, 9, v14')
            a.emit('v_add_u32 v18, s9, v18')
        srd(a, SB, 'b2', 0, 2048)
        a.emit(f's_lshr_b32 s9, s{S_NT}, 3')
        a.emit(f's_and_b32 s10, s{S_NT}, 7')
        a.emit('s_lshl1_add_u32 s9, s10, s9')
        a.emit('s_lshl_b32 s9, s9, 7')
        a.emit('v_lshl_add_u32 v19, v2, 3, s9')
    a.emit('v_add_u32 v14, s8, v14')
    a.emit(f's_lshl_b32 s10, s{S_NT}, 11')
    a.emit(f's_lshl_b32 s9, s{S_WN}, 10')
    a.emit('s_add_u32 s9, s9, s10')
    a.emit(f'v_lshl_add_u32 v{VO}, v1, 4, s8' if n2 else f'v_lshl_add_u32 v{VO}, v16, 9, v14')
    a.emit(f'v_add_u32 v{VO}, s9, v{VO}')
    if n2: a.emit('v_lshl_add_u32 v17, v16, 2, v17')
    a.emit(f'v_mul_u32_u24 v16, {16*ldo2}, v16')
    a.emit('s_lshr_b32 s9, s9, 1')
    a.emit(f'v_add3_u32 v{VO+1}, v16, v14, s9')
    a.emit(f's_lshl_b32 s9, s{S_WM}, 8')
    a.emit(f's_add_u32 s9, s9, {LST + 64}')
    a.emit('v_lshl_add_u32 v14, v3, 2, s9')
    a.emit(f's_lshl_b32 s9, s{S_WN}, 7')
    a.emit(f's_add_u32 s9, s9, {LCS}')
    a.emit('v_lshl_add_u32 v15, v2, 4, s9')
    a.emit(f's_lshl_b32 s9, s{S_WN}, {5 if n2 else 6}')
    a.emit(f's_add_u32 s9, s9, {LCS}')
    a.emit(f'v_lshl_add_u32 v16, v{17 if n2 else 2}, 4, s9')
    for i in range(0 if ot else 112): a.emit(f'v_mov_b32 v{ACC+i}, 0')
    if not MEGA: a.emit('s_waitcnt lgkmcnt(0)')
    srd(a, SO, 'ws', WS_H, 2048 * 7168)
    if not ot: code_touch(a, 'L_w2_c0', 'L_w2_c1', 192 if SPX else 128)
    mid = []
    if ot: mid = a.lines[i0:]; del a.lines[i0:]
    def reads(s, ks):
        o = []
        if 'noread' in DBG: return o
        for jm in range(4):
            o.append(f'ds_read_b128 v[{fx(s,jm)}:{fx(s,jm)+3}], v{VA} offset:{jm*2048+ks*1024}')
        for jn in range(7):
            for h in range(2):
                r = fw(s, jn) + 2 * h
                o.append(f'ds_read_b64_tr_b16 v[{r}:{r+1}], v{VA+1+(jn&1 if jn < 6 else 2)} offset:{((jn>>1)*8192 if jn < 6 else 0)+h*(2048 if nr else 512 if jn < 6 else 256)+ks*4096}')
        return o
    def mf(s):
        o = []
        if 'nomfma' in DBG: return ['s_nop 0']
        for jn, jm in mf_order(7, 4):
            if True:
                c = acc(jn, jm)
                o.append(f'v_mfma_f32_16x16x32_bf16 v[{c}:{c+3}], v[{fw(s,jn)}:{fw(s,jn)+3}], v[{fx(s,jm)}:{fx(s,jm)+3}], v[{c}:{c+3}]')
        return o
    zc = lambda x: x[:x.rindex(',')] + ', 0'
    big_loop(a, kind, N, S, STAGE, 4, VB, VA, reads, mf, ot=(lambda s: mf(1) if s else [zc(x) for x in mf(0)]) if ot else None, mid=mid)
    if ENV('XSE'): a.emit(f"s_sleep {ENV('XSE')}")
    CS = 32; BI = 60; STT = 88; CK = 96; T = 100; D = 108
    for jm in range(4):
        a.emit(f'ds_read2_b32 v[{STT+2*jm}:{STT+2*jm+1}], v14 offset0:{16*jm} offset1:{160+16*jm}')
    for jn in range(7):
        a.emit(f'ds_read_b128 v[{CS+4*jn}:{CS+4*jn+3}], v{15 if jn < 6 else 16} offset:{(jn>>1)*256+(jn&1)*64}')
        a.emit(f'ds_read_b128 v[{BI+4*jn}:{BI+4*jn+3}], v{15 if jn < 6 else 16} offset:{1024+(jn>>1)*256+(jn&1)*64}')
    for jn in range(4 if o2 else 0):
        a.emit(f'buffer_load_dwordx2 v[{OBIA[jn]}:{OBIA[jn]+1}], v19, s[{SB}:{SB+3}], 0 offen offset:{jn*32}')
    c0 = -2.0 * 0.7978845608028654 * 1.4426950408889634
    c1 = c0 * 0.044715
    a.emit(f'v_mov_b32 v{CK}, {f2u(c0):#x}')
    a.emit(f'v_mov_b32 v{CK+1}, {f2u(c1):#x}')
    a.emit(f'v_mov_b32 v{CK+2}, 1.0')
    a.emit('s_waitcnt lgkmcnt(0)')
    for jm in range(4):
        a.emit(f'v_mul_f32 v{STT+2*jm}, v{STT+2*jm}, v{STT+2*jm+1}')
    def tile_math(jn, jm, d):
        c = acc(jn, jm)
        seqs = []
        ST2 = f'v[{STT+2*jm}:{STT+2*jm+1}]'
        for q in range(2):
            x = c + 2 * q; t = T + 2 * q + 4 * (jn & 1)
            X = f'v[{x}:{x+1}]'; TT = f'v[{t}:{t+1}]'
            seqs.append([
              f'v_pk_fma_f32 {TT}, v[{CS+4*jn+2*q}:{CS+4*jn+2*q+1}], {ST2}, v[{BI+4*jn+2*q}:{BI+4*jn+2*q+1}] op_sel:[0,0,0] op_sel_hi:[1,0,1] neg_lo:[0,1,0] neg_hi:[0,1,0]',
              f'v_pk_fma_f32 {X}, {X}, {ST2}, {TT} op_sel:[0,1,0] op_sel_hi:[1,1,1]',
              f'v_pk_mul_f32 {TT}, {X}, {X}',
              f'v_pk_fma_f32 {TT}, {TT}, v[{CK}:{CK+1}], v[{CK}:{CK+1}] op_sel:[0,1,0] op_sel_hi:[1,1,0]',
              f'v_pk_mul_f32 {TT}, {TT}, {X}',
              f'v_exp_f32 v{t}, v{t}\n  v_exp_f32 v{t+1}, v{t+1}',
              f'v_pk_add_f32 {TT}, {TT}, v[{CK+2}:{CK+3}] op_sel_hi:[1,0]',
              f'v_rcp_f32 v{t}, v{t}\n  v_rcp_f32 v{t+1}, v{t+1}',
              f'v_pk_mul_f32 {X}, {X}, {TT}',
              f'v_cvt_pk_bf16_f32 v{d+q}, v{x}, v{x+1}'])
        for ia, ib in zip(*seqs):
            a.emit(ia); a.emit(ib)
    cnt = [0]
    def pair(t0, t1, vo, soff, big=False):
        d = D + 4 * (cnt[0] % 4); cnt[0] += 1
        tile_math(*t0, d); tile_math(*t1, d + 2)
        a.emit(f's_add_u32 s3, s10, {soff}' if big else f's_mov_b32 s3, {soff}')
        if not n2 or t0[0] == 6:
            a.emit('s_nop 0')
            a.emit(f'v_permlane16_swap_b32 v{d}, v{d+2}')
            a.emit(f'v_permlane16_swap_b32 v{d+1}, v{d+3}')
        a.emit(f'buffer_store_dwordx4 v[{d}:{d+3}], v{vo}, s[{SO}:{SO+3}], s3 offen' + (stf(kind) if str(t0[0] // 2) in ENV('WTP', '0123') else ' ' + ENV('WTQ', '')))
        if o2 and t0[0] < 6: a.emit(f'ds_write_b128 v18, v[{d}:{d+3}] offset:{(t0[0] // 2 + 2) % 3 * 16384 + t0[1] * 2048}')
    pr = lambda p, jm: pair((2 * p, jm), (2 * p + 1, jm), VO, jm * 16 * ldo2 + (46 + 2 * p) * 1024 * (p > 0), p > 0)
    od = lambda jm: pair((6, jm), (6, jm + 1), VO + 1, jm * 16 * ldo2 + 32768)
    order = [lambda jm=jm: pr(0, jm) for jm in range(4)] + [lambda: od(0), lambda: od(2)] + [lambda jm=jm, p=p: pr(p, jm) for jm in range(4) for p in (1, 2)]
    EW = int(ENV('EW', '10'))
    if EF: order = [lambda: od(0), lambda: od(2)] + [lambda jm=jm, p=p: pr(p, jm) for p in (1, 2, 0) for jm in range(4)]
    for i, f in enumerate(order):
        f()
        if NV and i + 1 == EX: w2_early(a)
        if (EARLY or EF) and i + 1 == EW:
            a.emit(f's_waitcnt vmcnt({EW - (6 if EF else EARLY // 4)})')
            a.emit('s_barrier')
    if ENV('ES'): stamp(a, 1)
    compute_end(a, kind)
    a.label(f'L_{kind}_loader')
    L = Loader(a, kind, K, lda2, ldw2, [0, f's{S_HD}', 's_add_u32 s4, s4, 128'], 128, S, STAGE, rot=int(ENV('ROT_W1', '0')), xblk=True, half=2048)
    L.ot = int(ot)
    L.setup()
    a.emit('s_waitcnt lgkmcnt(0)')
    if ot and ENV('CT2', 'l') == 'l': code_touch(a, 'L_w2_c0', 'L_w2_c1', 192, loader=True)
    srd(a, SX, 'ws', WS_X1, 4 * MB); srd(a, SW, 'w1', 0, 1024 * 7168)
    srd(a, ST, 'ws', WS_ST, 16 * 16384); srd(a, SC, 'ws0', WS_CS, 16 * 16384); srd(a, SB, 'b1', 0, 7168)
    def tail():
        stats_loads(a, 32, False)
        a.emit(f's_lshl_b32 s4, s{S_NT}, 7')
        a.emit(f's_lshl_b32 s5, s{S_WV}, 6')
        a.emit('s_add_u32 s4, s4, s5')
        a.emit(f's_add_u32 s4, s4, {1472 - 256}')
        a.emit(f's_lshl_b32 s5, s{S_NT}, 6')
        a.emit(f's_cmp_eq_u32 s{S_WV}, 4')
        a.emit('s_cselect_b32 s4, s5, s4')
        a.emit('s_lshr_b32 s5, s5, 1')
        a.emit('s_add_u32 s5, s5, 1024')
        a.emit(f's_cmp_eq_u32 s{S_WV}, 7')
        a.emit('s_cselect_b32 s4, s5, s4')
        a.emit('v_add_u32 v3, s4, v1')
        a.emit('v_lshlrev_b32 v2, 2, v3')
        a.emit('v_lshlrev_b32 v3, 1, v3')
        a.emit(f's_mov_b32 s3, {cs[2]}')
        for j in range(16):
            if j < cs[0]:
                a.emit(f'buffer_load_dword v{64+j}, v2, s[{SC}:{SC+3}], s3 offen')
                if j < cs[0] - 1: a.emit(f's_add_u32 s3, s3, {cs[1]}')
            else:
                a.emit(f'v_mov_b32 v{64+j}, 0')
        a.emit(f'buffer_load_ushort v80, v3, s[{SB}:{SB+3}], 0 offen')
        side(a, 'issue')
    ns = side(Asm(), 'issue')
    extra = None
    if VW:
        assert int(ENV('LM_W2', '2')) == 2
        srd(a, SR, 'w2', 0, 3584 * 2048)
        a.emit('s_and_b32 s5, s2, 3')
        a.emit('s_lshl_b32 s5, s5, 2')
        a.emit(f's_and_b32 s6, s{S_CU}, 3')
        a.emit('s_add_u32 s5, s5, s6')
        a.emit('s_and_b32 s6, s2, 4')
        a.emit('s_lshl_b32 s6, s6, 1')
        a.emit(f's_lshr_b32 s7, s{S_CU}, 2')
        a.emit('s_add_u32 s6, s6, s7')
        rot_table(a, S_TB, 5, 6, 'w2')
        a.emit(f's_add_u32 s5, s5, s{S_WV}')
        a.emit('s_and_b32 s5, s5, 3')
        wvoff(a, 16, 5, 6, 2048)
        sched = [int(c) for c in ENV('PSCH', '0111111111111122')]
        assert sum(sched) >= NV1
        def extra(i):
            o = []
            for p in range(sum(sched[:i]), min(NV1, sum(sched[:i + 1]))): o += park(56, 2 * p, 128 + 8 * p, 16, SR)
            return o
        ns += sum(x.startswith('buffer_load') for i in (13, 14, 15) for x in extra(i))
    if XD:
        extra = tail_parks('w2', SR, lambda b: srd(b, SR, 'w2', 0, 3584 * 2048))
        ns += 2 * sum(TSCH['w2'])
    if XD and ENV('PFL', '2') == '3':
        b = Asm(); side(b, 'late'); pl = [l.strip() for l in b.lines]
        pl = [l.replace('v2,', 'v18,').replace(', v2', ', v18').replace('s3', 's93') for l in pl]
        i0 = min(i for i, l in enumerate(pl) if l.startswith('buffer_load'))
        for l in pl[:i0]: a.emit(l)
        st = [int(x) for x in ENV('PFS', '6,10').split(',')]
        extra = lambda i: pl[i0 + 2 * st.index(i):i0 + 2 * st.index(i) + 2] if i in st else []
    def final():
        a.emit(f's_waitcnt vmcnt({ns})')
        if ENV('PFL', '2') == '1': side(a, 'late')
        stats_reduce_store(a, 32, LST)
        for j in range(8): a.emit(f'v_add_f32 v{64+j}, v{64+j}, v{72+j}')
        for j in range(4): a.emit(f'v_add_f32 v{64+j}, v{64+j}, v{68+j}')
        a.emit('v_add_f32 v64, v64, v65')
        a.emit('v_add_f32 v66, v66, v67')
        a.emit('v_add_f32 v64, v64, v66')
        a.emit('v_lshlrev_b32 v80, 16, v80')
        a.emit('v_lshlrev_b32 v2, 2, v0')
        a.emit(f'v_add_u32 v2, {LCS - 1024}, v2')
        a.emit('ds_write_b32 v2, v64')
        a.emit('ds_write_b32 v2, v80 offset:1024')
        a.emit('s_waitcnt lgkmcnt(0)')
    import sides
    if T4:
        stats4_setup(a, False)
        a.emit(f's_lshl_b32 s4, s{S_NT}, 7')
        a.emit(f's_lshl_b32 s5, s{S_WV}, 6')
        a.emit('s_add_u32 s4, s4, s5')
        a.emit(f's_add_u32 s4, s4, {1472 - 256}')
        a.emit(f's_lshl_b32 s5, s{S_NT}, 6')
        a.emit(f's_cmp_eq_u32 s{S_WV}, 4')
        a.emit('s_cselect_b32 s4, s5, s4')
        a.emit('s_lshr_b32 s5, s5, 1')
        a.emit('s_add_u32 s5, s5, 1024')
        a.emit(f's_cmp_eq_u32 s{S_WV}, 7')
        a.emit('s_cselect_b32 s4, s5, s4')
        a.emit('v_and_b32 v3, 15, v1')
        a.emit('v_lshl_add_u32 v3, v3, 2, s4')
        a.emit('v_lshrrev_b32 v2, 4, v1')
        a.emit(f'v_add_lshl_u32 v{VBI}, v3, v2, 1')
        a.emit('v_lshlrev_b32 v3, 2, v3')
        a.emit(f'v_lshl_add_u32 v{VCS}, v2, 14, v3')
        CSI = int(ENV('CSI', '14')); STI = int(ENV('STI', '14'))
        def extra4(i):
            o = []
            if i == CSI: o += quad_loads(64, VCS, SC) + [f'buffer_load_ushort v80, v{VBI}, s[{SB}:{SB+3}], 0 offen']
            if i == STI: o += stats4_loads(32, False)
            return o
        def final4():
            a.emit('s_waitcnt vmcnt(0)')
            stats4_store(a, 32, LST, False)
            quad_sum(a, 64)
            a.emit('v_lshlrev_b32 v80, 16, v80')
            a.emit('s_lshl_b32 s5, s3, 8')
            a.emit(f's_add_u32 s5, s5, {LCS}')
            a.emit('v_permlane16_swap_b32 v64, v65')
            a.emit('v_lshrrev_b32 v2, 4, v1')
            a.emit('v_lshl_add_u32 v2, v3, 2, v2')
            a.emit('v_lshl_add_u32 v2, v2, 2, s5')
            a.emit('v_add_f32 v64, v64, v65')
            a.emit('ds_write2st64_b32 v2, v64, v80 offset0:0 offset1:4')
            a.emit('s_waitcnt lgkmcnt(0)')
        assert ns == 0
        L.run(final=final4, extra=extra4, post=sides.stouch_post(a, kind), dep=lambda pf: dep_wait(a, kind, postf=pf, obar=L.npre - 6 if ot and OBAR else 0, pref=(lambda: a.emit(f's_waitcnt vmcnt({L.npre - 7})')) if ot and not OBAR else None))
    else: L.run(tail_issue=tail, ntail_vm=17 + cs[0] + side(Asm(), 'issue'), final=final, extra=extra, post=sides.stouch_post(a, kind),
          dep=(lambda pf: dep_wait(a, kind, postf=pf)) if MEGA else None)
    if ENV('PFL', '2') == '2': side(a, 'late')
    if not VW: side(a, 'finish')
    loader_end(a, kind)
    a.label(end)
    a.emit('s_endpgm')
    loader_first(a, kind)
    if not MEGA:
        a(KD.format(name=f'{kind}l0_kernel'))
        stub(a, f'{kind}l1_kernel', body, 1, tsidx + 4, False)
        a(KD.format(name=f'{kind}l1_kernel'))
    a.label(f'L_{kind}_c1')
    return LCS + 2048
```

```python
from common import *
from gemmw1 import *

def res_addr(a, swv, sd, v):
    assert int(ENV('LM_WO', '2')) == 2 and int(ENV('LM_W2', '2')) == 2
    srd(a, sd, 'A_x', 0, 4 * MB)
    a.emit('s_and_b32 s3, s2, 3')
    a.emit(f's_and_b32 s4, s{S_CU}, 3')
    a.emit('s_lshl2_add_u32 s3, s3, s4')
    a.emit(f's_lshl2_add_u32 s3, s3, s{swv}')
    a.emit('s_lshl_b32 s3, s3, 16')
    a.emit('s_bfe_u32 s4, s2, 0x10002' if SPX else 's_and_b32 s4, s2, 4')
    a.emit(f's_lshr_b32 s5, s{S_CU}, 2')
    a.emit('s_lshl1_add_u32 s4, s5, s4' if SPX else 's_lshl1_add_u32 s4, s4, s5')
    a.emit('s_lshl_b32 s4, s4, 7')
    a.emit('s_add_u32 s3, s3, s4')
    a.emit('s_add_u32 s4, s3, 32768')
    a.emit(f'v_and_b32 v{v}, 15, v1')
    a.emit(f'v_lshlrev_b32 v{v+1}, 1, v1')
    a.emit(f'v_and_b32 v{v+1}, 32, v{v+1}')
    a.emit(f'v_lshl_add_u32 v{v}, v{v}, 11, v{v+1}')
    a.emit(f'v_lshrrev_b32 v{v+1}, 1, v1')
    a.emit(f'v_and_b32 v{v+1}, 16, v{v+1}')
    a.emit(f'v_add_u32 v{v}, v{v}, v{v+1}')

def dbg_off(a, v):
    a.emit(f's_lshl_b32 s3, s{S_MT}, 2')
    a.emit('s_sub_u32 s3, s3, 4')
    a.emit(f'v_and_b32 v{v}, 7, v1')
    a.emit(f'v_add_u32 v{v}, s3, v{v}')
    a.emit(f'v_max_i32 v{v}, 0, v{v}')
    a.emit(f'v_lshlrev_b32 v{v}, 2, v{v}')

def res_loads(vd, v, sd):
    return [f'buffer_load_dwordx4 v[{vd+4*i}:{vd+3+4*i}], v{v}, s[{sd}:{sd+3}], s{3+(i>>1)} offen offset:{64*(i&1)}' for i in range(4)]

def gen_qkv(a, tsidx, side):
    kind = 'attn'
    K = 1024; lda2 = 2048; ldw2 = 6144
    S = 3; LM = int(ENV('LM_QKV', '3'))
    XH = 16384 + 6 * 4096
    STAGE = XH + 2048
    LST = S * STAGE
    EX = 1024
    N = 16
    body = f'L_{kind}_body'; end = f'L_{kind}_end'
    VB, VA = 4, 10
    VXW, VPE, VPO, VCE, VCO, VVE, VVO, VS1, VS4, VKA, VKB, MAP, MAC, MBP, MBC, VO = range(16, 32)
    M_ODD, M_UPA, M_UPB, M_FA, M_FB = 48, 50, 52, 54, 14
    F = [32, 76]; ACC = 128; HACC = 224; ONES = 236
    acc = lambda jn, jm: ACC + (jn * 4 + jm) * 4
    fx = lambda s, jm: F[s] + jm * 4
    fw = lambda s, jn: F[s] + 20 + jn * 4
    a.label(f'L_{kind}_c0')
    stub(a, f'{kind}l0_kernel', body, 0, tsidx, True)
    a.label(body)
    ot = kind in OT
    HX = LST + 1280
    tile_map(a, LM, end)
    if ot and LM != 2:
        a.emit(f's_cmp_eq_u32 s{S_LAYER}, 0')
        a.emit(f's_cbranch_scc1 L_{kind}_map')
        tile_map(a, 2, None)
        a.label(f'L_{kind}_map')
    a.emit(f's_cmp_ge_u32 s{S_WV}, 4')
    a.emit(f's_cbranch_scc1 L_{kind}_loader')
    if ENV('CTE', '1') == '1': code_touch(a, 'L_attn_c0', 'L_w2_c1', int(ENV('CTN', '320')))
    a.emit(f's_and_b32 s{S_WM}, s{S_WV}, 1')
    a.emit(f's_lshr_b32 s{S_WN}, s{S_WV}, 1')
    a.emit('v_and_b32 v3, 31, v1')
    a.emit('v_lshlrev_b32 v3, 2, v3')
    a.emit(f'v_add_u32 v3, {XH}, v3')
    for i in range(4): a.emit(f'v_mov_b32 v{ONES+i}, 0x3f803f80')
    a.emit(f'ds_write_b32 v3, v{ONES}')
    a.emit(f'ds_write_b32 v3, v{ONES} offset:{STAGE}')
    a.emit(f'v_add_u32 v3, {2*STAGE}, v3')
    a.emit(f'ds_write_b32 v3, v{ONES}')
    if ot: a.emit(f'ds_write_b32 v3, v{ONES} offset:{HX - XH - 2 * STAGE}')
    a.emit('v_and_b32 v3, 15, v1')
    a.emit('v_lshrrev_b32 v2, 4, v1')
    a.emit('v_lshrrev_b32 v33, 1, v3')
    a.emit(f's_lshl_b32 s8, s{S_WM}, 13')
    for ks in range(2):
        if ks: a.emit(f'v_add_u32 v{VB+ks}, 4, v2')
        a.emit(f'v_xor_b32 v{VB+ks}, v{VB+ks if ks else 2}, v33')
        a.emit(f'v_lshlrev_b32 v{VB+ks}, 4, v{VB+ks}')
        a.emit(f'v_lshl_add_u32 v{VB+ks}, v3, 7, v{VB+ks}')
        a.emit(f'v_add_u32 v{VB+4+ks}, {XH}, v{VB+ks}')
        a.emit(f'v_add_u32 v{VB+ks}, s8, v{VB+ks}')
    wbase(a, 34, 33)
    a.emit(f's_lshl_b32 s8, s{S_WV}, 5')
    a.emit('v_xor_b32 v34, s8, v34')
    a.emit(f'v_add_u32 v{VB+2}, 16384, v34')
    a.emit(f'v_xor_b32 v{VB+3}, 32, v{VB+2}')
    i0 = len(a.lines)
    a.emit('v_and_b32 v35, 1, v2')
    a.emit(f'v_xor_b32 v35, s{S_WM}, v35')
    a.emit(f's_lshl_b32 s8, s{S_MT}, 7')
    a.emit(f's_lshl_b32 s9, s{S_WM}, 6')
    a.emit('s_add_u32 s8, s8, s9')
    a.emit(f's_add_u32 s10, s8, s{S_NT}')
    a.emit('s_lshl_b32 s10, s10, 11')
    a.emit(f's_lshl_b32 s11, s{S_WN}, 10')
    a.emit('s_add_u32 s10, s10, s11')
    if 'wo' in NS: a.emit(f'v_lshl_add_u32 v{VO}, v1, 4, s10')
    else:
        a.emit('v_lshl_add_u32 v33, v3, 4, s10')
        a.emit('v_lshl_add_u32 v33, v35, 9, v33')
        a.emit('v_lshrrev_b32 v34, 1, v2')
        a.emit(f'v_lshl_add_u32 v{VO}, v34, 8, v33')
    a.emit(f's_mul_i32 s10, s{S_WN}, {14336 if XD else 24576}')
    a.emit(f's_add_u32 s10, s10, {EX}')
    a.emit(f's_lshl_b32 s11, s{S_WM}, 10')
    a.emit('s_add_u32 s4, s10, s11')
    a.emit('s_sub_u32 s5, s10, s11')
    a.emit(f's_mul_i32 s6, s{S_WM}, 6144')
    a.emit(f'v_lshl_add_u32 v{VXW}, v1, 4, s4')
    a.emit(f'v_add_u32 v{VPE}, s6, v{VXW}')
    a.emit(f'v_lshl_add_u32 v{VPO}, v1, 4, s5')
    a.emit(f'v_add_u32 v{VPO}, s6, v{VPO}')
    a.emit(f'v_lshl_add_u32 v{VCE}, v2, 8, s4')
    a.emit(f'v_lshl_add_u32 v{VCO}, v2, 8, s5')
    a.emit(f'v_lshl_add_u32 v{VVE}, v3, 4, s4')
    a.emit(f'v_lshl_add_u32 v{VVO}, v3, 4, s5')
    a.emit(f's_lshl_b32 s10, s{S_WM}, 8')
    a.emit(f's_add_u32 s10, s10, {LST}')
    a.emit(f'v_lshl_add_u32 v{VS1}, v3, 2, s10')
    a.emit(f'v_lshl_add_u32 v{VS4}, v2, 4, s10')
    a.emit('v_and_b32 v33, 1, v3')
    a.emit(f'v_cmp_eq_u32 s[{M_ODD}:{M_ODD+1}], 1, v33')
    a.emit('v_lshl_add_u32 v34, v2, 2, v33')
    a.emit('v_add_u32 v35, 2, v34')
    a.emit(f'v_cmp_gt_u32 s[{M_UPA}:{M_UPA+1}], v34, v3')
    a.emit(f'v_cmp_gt_u32 s[{M_UPB}:{M_UPB+1}], v35, v3')
    a.emit('v_mov_b32 v36, 0xffff')
    a.emit('v_mov_b32 v37, 0xffff0000')
    a.emit(f'v_cndmask_b32 v36, v36, v37, s[{M_ODD}:{M_ODD+1}]')
    a.emit(f's_add_u32 s10, s10, {640 + 64}')
    a.emit('v_lshl_add_u32 v34, v34, 2, s10')
    a.emit('v_lshl_add_u32 v35, v35, 2, s10')
    a.emit('v_subrev_u32 v38, 64, v34')
    a.emit('v_subrev_u32 v39, 64, v35')
    a.emit(f'v_cndmask_b32 v{VKA}, v34, v38, s[{M_UPA}:{M_UPA+1}]')
    a.emit(f'v_cndmask_b32 v{VKB}, v35, v39, s[{M_UPB}:{M_UPB+1}]')
    a.emit(f'v_cndmask_b32 v{MAP}, 0, v36, s[{M_UPA}:{M_UPA+1}]')
    a.emit(f'v_cndmask_b32 v{MBP}, 0, v36, s[{M_UPB}:{M_UPB+1}]')
    a.emit(f'v_xor_b32 v{MAC}, v{MAP}, v36')
    a.emit(f'v_xor_b32 v{MBC}, v{MBP}, v36')
    a.emit('s_cmp_eq_u32 s8, 0')
    a.emit(f's_cselect_b64 s[{M_FA}:{M_FA+1}], s[{M_UPA}:{M_UPA+1}], 0')
    a.emit(f's_cselect_b64 s[{M_FB}:{M_FB+1}], s[{M_UPB}:{M_UPB+1}], 0')
    if ot:
        a.emit(f's_cmp_lg_u32 s{S_LAYER}, 0')
        a.emit(f's_cbranch_scc1 L_{kind}_nozero')
    for i in list(range(122 if DS else 120, 236)) + ([] if XD else list(range(240, 256))): a.emit(f'v_mov_b32 v{i}, 0')
    if DS:
        a.emit('s_waitcnt lgkmcnt(0)')
        a.emit(f's_lshl_b32 s3, s{S_WN}, 5')
        a.emit('s_add_u32 s3, s3, s8')
        a.emit(f's_lshl_b32 s4, s{S_NT}, 14')
        a.emit('s_lshl3_add_u32 s3, s3, s4')
        a.emit('v_lshrrev_b32 v121, 1, v2')
        a.emit('v_lshl_add_u32 v121, v121, 4, v3')
        a.emit('v_and_b32 v120, 1, v2')
        a.emit('v_lshl_add_u32 v121, v121, 1, v120')
        a.emit('v_lshl_add_u32 v120, v121, 2, s3')
        srd(a, ST, 'ws0', WS_ST0, 16 * 16384)
        srd(a, SP, 'ws0', WS_FL, FLS)
        a.emit('s_lshl_b32 s3, s2, 11')
        if D2:
            a.emit(f's_cmp_lg_u32 s{S_WV}, 0')
            a.emit(f's_cbranch_scc1 L_{kind}_noclr')
            a.emit(f's_lshl_b32 s5, s{S_MT}, 10')
            a.emit('s_add_u32 s4, s4, s5')
            a.emit('v_lshlrev_b32 v121, 4, v1')
            for i in range(4): a.emit(f'v_mov_b32 v{40+i}, -1')
            a.emit(f'buffer_store_dwordx4 v[40:43], v121, s[{ST}:{ST+3}], s4 offen sc1')
            for i in range(2): a.emit(f'buffer_store_dwordx4 v[128:131], v121, s[{SP}:{SP+3}], s3 offen offset:{1024*i} sc1')
            a.emit('v_mov_b32 v126, 1')
            a.label(f'L_{kind}_noclr')
        else:
            a.emit('v_lshlrev_b32 v121, 3, v0')
            a.emit(f'buffer_store_dwordx2 v[126:127], v121, s[{SP}:{SP+3}], s3 offen sc1')
            dbg_off(a, 121)
        a.emit(f's_and_b32 s{SC+1}, s{SC+1}, 0xffff')
        a.emit(f's_mov_b32 s{SC+2}, 256')
        a.emit(f's_mov_b32 s{SC+3}, 0x00020000')
        a.emit('s_mov_b32 s7, 0x3f803f80')
    if ot: a.label(f'L_{kind}_nozero')
    a.emit('s_waitcnt lgkmcnt(0)')
    srd(a, SO, 'ws', WS_O, 4 * MB)
    clear_flags(a, 0)
    if ENV('CTE', '1') == '0': code_touch(a, 'L_attn_c0', 'L_w2_c1', int(ENV('CTN', '320')))
    import pads
    CLQ = ENV('DX', '2') == '1' and ENV('CLP', 'e') == 'q'
    if CLQ:
        srd(a, ST, 'ws', WS_XP, 4 * MB)
        a.emit(f's_or_b32 s{ST+1}, s{ST+1}, 0x100000')
        a.emit(f's_mov_b32 s{ST+3}, 0x00800000')
        a.emit('s_and_b32 s3, s2, 3')
        a.emit(f's_and_b32 s4, s{S_CU}, 3')
        a.emit('s_lshl2_add_u32 s3, s3, s4')
        a.emit('s_bfe_u32 s4, s2, 0x10002')
        a.emit(f's_lshr_b32 s5, s{S_CU}, 2')
        a.emit('s_lshl1_add_u32 s4, s5, s4')
        a.emit('s_lshl4_add_u32 s3, s3, s4')
        a.emit(f's_lshl2_add_u32 s3, s3, s{S_WV}')
        a.emit(f's_lshl_b32 s{S_T}, s3, 12')
        for i in range(4): a.emit(f'v_mov_b32 v{116+i}, -1')
    def warm():
        a.emit(f's_cmp_lg_u32 s{S_LAYER}, 0')
        a.emit(f's_cbranch_scc1 L_{kind}_nowarm')
        a.emit('s_lshl_b32 s3, s2, 2')
        a.emit(f's_add_u32 s3, s3, s{S_WV}')
        srd(a, SX, 'xs', 0, 4 * MB); srd(a, SW, 'wqkv', 0, 6 * MB)
        a.emit('v_min_u32 v126, 31, v1')
        a.emit('v_min_u32 v127, 47, v1')
        a.emit('v_lshlrev_b32 v126, 7, v126')
        a.emit('v_lshlrev_b32 v127, 7, v127')
        a.emit('s_lshl_b32 s4, s3, 12')
        a.emit(f's_mul_i32 s5, s3, {48 * 128}')
        a.emit(f'buffer_load_dword v2, v126, s[{SX}:{SX+3}], s4 offen')
        a.emit(f'buffer_load_dword v3, v127, s[{SW}:{SW+3}], s5 offen')
        a.emit('v_mov_b32 v126, 0')
        a.emit('v_mov_b32 v127, 0')
        a.label(f'L_{kind}_nowarm')
    WARM = ENV('WARM', '0')
    if WARM == '1': warm()
    mid = []
    if ot: mid = a.lines[i0:]; del a.lines[i0:]
    def reads(s, ks, hl=True):
        o = []
        if 'noread' in DBG: return o
        for jm in range(4):
            o.append(f'ds_read_b128 v[{fx(s,jm)}:{fx(s,jm)+3}], v{VA+ks} offset:{jm*2048}')
        if hl: o.append(f'ds_read_b128 v[{fx(s,4)}:{fx(s,4)+3}], v{VA+4+ks}')
        for jn in range(6):
            for h in range(2):
                r = fw(s, jn) + 2 * h
                o.append(f'ds_read_b64_tr_b16 v[{r}:{r+1}], v{VA+2+(jn&1)} offset:{(jn>>1)*8192+ks*4096+h*512}')
        return o
    def mfma(c, x, y, cin=None):
        return f'v_mfma_f32_16x16x32_bf16 v[{c}:{c+3}], v[{x}:{x+3}], v[{y}:{y+3}], ' + (f'v[{c}:{c+3}]' if cin is None else cin)
    def mf(s):
        o = []
        if 'nomfma' in DBG: return ['s_nop 0']
        for jn, jm in mf_order(6, 5, lambda jn, jm: jm == 4 and jn & 1):
            if True:
                c = acc(jn, jm) if jm < 4 else HACC + (jn >> 1) * 4
                o.append(mfma(c, fw(s, jn), fx(s, jm)) if jn < 4 else mfma(c, fx(s, jm), fw(s, jn)))
        return o
    SA = [(240, 244), (248, 252), (120, 124)]
    def mfv(hh):
        def f(s):
            o = mf(s)
            ex = []
            for i, jm in enumerate([2 * hh, 2 * hh + 1] + ([4] if hh == 0 else [])):
                ex.append(mfma(SA[i][0], ONES, fx(s, jm)))
                ex.append(mfma(SA[i][1], fx(s, jm), fx(s, jm)))
            return o if 'nostat' in DBG else ex + o
        return f
    def select():
        if CLQ:
            for i in range(4): a.emit(f'buffer_store_dwordx4 v[116:119], off, s[{ST}:{ST+3}], s{S_T} offset:{1024*i} sc1')
        if WARM == '2': warm(); a.emit('s_nop 1')
        if not ot:
            a.emit(f's_cmp_lg_u32 s{S_LAYER}, 0')
            a.emit(f's_cbranch_scc1 L_{kind}_loop')
        if XD:
            for i in range(240, 256): a.emit(f'v_mov_b32 v{i}, 0')
        a.emit(f's_cmp_lg_u32 s{S_WN}, 0')
        a.emit(f's_cbranch_scc1 L_{kind}_loopb')
        clear_flags(a, 1, 4 if CLQ else 0)
    def post():
        a.emit('v_and_b32 v32, 3, v1')
        a.emit('v_cmp_eq_u32 s[4:5], 1, v32')
        a.emit('v_cmp_eq_u32 s[6:7], 2, v32')
        a.emit('v_cmp_eq_u32 s[8:9], 3, v32')
        a.emit('v_bfe_u32 v33, v1, 2, 2')
        a.emit('v_lshrrev_b32 v34, 4, v1')
        a.emit('v_cmp_eq_u32 s[10:11], v33, v34')
        a.emit(f's_lshl_b32 s3, s{S_WN}, 7')
        a.emit(f'v_add_u32 v35, s3, v{VS1}')
        a.emit('v_and_b32 v36, 15, v1')
        a.emit(f's_cmp_eq_u32 s{S_WV}, 0')
        a.emit('s_cselect_b32 s3, 0, 576')
        a.emit(f's_add_u32 s3, s3, {LST}')
        a.emit('v_lshl_add_u32 v36, v36, 2, s3')
        for (sm, sq) in SA:
            a.emit(f'v_cndmask_b32 v{sm+1}, v{sq}, v{sq+1}, s[4:5]')
        for (sm, sq) in SA:
            a.emit(f'v_cndmask_b32 v{sm+1}, v{sm+1}, v{sq+2}, s[6:7]')
        for (sm, sq) in SA:
            a.emit(f'v_cndmask_b32 v{sm+1}, v{sm+1}, v{sq+3}, s[8:9]')
        for (sm, sq) in SA: stats_finish(a, sm)
        a.emit('s_mov_b64 exec, s[10:11]')
        a.emit(f'ds_write2_b32 v35, v{SA[0][0]}, v{SA[0][0]+1} offset0:16 offset1:176')
        a.emit(f'ds_write2_b32 v35, v{SA[1][0]}, v{SA[1][0]+1} offset0:32 offset1:192')
        a.emit(f'ds_write2_b32 v36, v{SA[2][0]}, v{SA[2][0]+1} offset0:0 offset1:160')
        a.emit('s_mov_b64 exec, -1')
        if XD:
            res_addr(a, S_WV, SX, 32)
        a.emit('s_waitcnt lgkmcnt(0)')
        if XD:
            for i in range(4):
                a.emit(f'buffer_load_dwordx4 v[{240+4*i}:{243+4*i}], v32, s[{SX}:{SX+3}], s{3+(i>>1)} offen offset:{64*(i&1)}')
        a.emit('s_barrier')
    own = lambda s: [mfma(acc(jn, jm), *((fw(s, jn), fx(s, jm)) if jn < 4 else (fx(s, jm), fw(s, jn))), None if s else '0') for jn, jm in mf_order(6, 4)]
    hw = lambda ks, c: fw(1, 2 * c) if ks else fx(1, c)
    hal = ([f'v_mov_b32 v{fx(1,c)+i}, v{fw(0,2*c)+i}' for c in range(3) for i in range(4)],
           [f'ds_read_b128 v[{fx(1,3+ks)}:{fx(1,3+ks)+3}], v{VA+4+ks} offset:{HX - XH - STAGE}' for ks in range(2)],
           [mfma(HACC + 4 * c, *((hw(ks, c), fx(1, 3 + ks)) if c < 2 else (fx(1, 3 + ks), hw(ks, c))), None if ks else '0') for ks in range(2) for c in range(3)])
    hooks = None
    if DS:
        HK = [int(x) for x in ENV('HK', '-1,-2,-4,-5,11,13').split(',')]
        def dots(s):
            o = [f's_cmp_lg_u32 s{S_WN}, 0', f's_cbranch_scc1 L_{kind}_dot{s}']
            for hh in range(2):
                for j in range(8):
                    r = fx(s, 2 * hh) + (j >> 1) + 4 * (j & 1)
                    o += [f'v_dot2_f32_bf16 v{122+(j&1)}, v{r}, s7, v{122+(j&1)}', f'v_dot2_f32_bf16 v{124+(j&1)}, v{r}, v{r}, v{124+(j&1)}']
                o += [f'L_{kind}_dote{s}:'] if hh else [f's_branch L_{kind}_dote{s}', f'L_{kind}_dot{s}:']
            return o
        h1 = dots(1) + ['s_nop 2', 'v_permlane32_swap_b32 v122, v123', 'v_permlane32_swap_b32 v124, v125', 'v_add_f32 v122, v122, v123', 'v_add_f32 v124, v124, v125',
               'v_mov_b32 v126, 1', 's_nop 0', 'v_permlane16_swap_b32 v122, v124', 'v_add_f32 v122, v122, v124', f'buffer_store_dword v122, v120, s[{ST}:{ST+3}], 0 offen sc1']
        w0 = [f's_cmp_lg_u32 s{S_WV}, 0', f's_cbranch_scc1 L_{kind}_loop']
        pl = f'buffer_load_dword v127, v121, s[{SC}:{SC+3}], 0 offen sc1'
        b = Asm(); res_addr(b, S_WV, SX, 122); rs = [l.strip() for l in b.lines] + res_loads(240, 122, SX)
        hooks = list(zip(HK + [int(ENV('HKR', '14'))], [dots(0), h1, ['s_waitcnt vmcnt(0)'],
            w0 + [f's_lshl4_add_u32 s3, s{S_MT}, s{S_NT}', 's_mov_b64 exec, 1', f'buffer_store_byte v126, off, s[{SC}:{SC+3}], s3 sc1', 's_mov_b64 exec, -1'], w0 + [pl],
            w0 + ['s_mov_b32 s5, 0x100000', 'L_attn_chkl:', 's_waitcnt vmcnt(0)', 'v_cmp_ne_u32 vcc, 0x01010101, v127', f's_cbranch_vccz L_{kind}_loop',
                  pl, 's_sub_u32 s5, s5, 1', 's_cbranch_scc0 L_attn_chkl'], rs]))
        assert HK[:2] == [-1, -2]
        if D2: hooks = [(-1, dots(0) + pads.chain('h0') + w0 + hooks[2][1] + hooks[3][1][2:]), (-2, [x.replace('v_mov_b32 v126, 1', 's_nop 0') for x in h1] + pads.chain('h1')), hooks[-1]]
        if ENV('XSL'):
            xs = [int(x) for x in ENV('XSL').split(',')]
            hooks[1] = (hooks[1][0], hooks[1][1] + [f's_sleep {xs[0]}'])
            hooks[2] = (hooks[2][0], hooks[2][1] + [f's_sleep {xs[1]}'])
    assert ot or not DS
    big_loop(a, kind, N, S, STAGE, 6, VB, VA, reads, mf, variants=None if DS else {'a': mfv(0), 'b': mfv(1)}, select=select, post=post, mid=mid, hooks=hooks,
             ot=own if ot else None, halo=hal if ot else None)
    PR = 32
    CS = 48
    CV = 64
    MS = 66
    RK = 76
    M4 = 84
    R4 = 104
    VV = [4 if XD else 240, 224]
    for b in range(5):
        a.emit(f'ds_read2_b32 v[{MS+2*b}:{MS+2*b+1}], v{VS1} offset0:{16*b} offset1:{160+16*b}')
    for p in range(2):
        a.emit(f'ds_read2_b32 v[{RK+2*p}:{RK+2*p+1}], v{VKA} offset0:{32*p} offset1:{32*p+16}')
        a.emit(f'ds_read2_b32 v[{RK+4+2*p}:{RK+5+2*p}], v{VKB} offset0:{32*p} offset1:{32*p+16}')
    for c in range(3):
        a.emit(f'ds_write_b128 v{VXW}, v[{HACC+4*c}:{HACC+4*c+3}] offset:{2048*c}')
    a.emit(f's_cmp_eq_u32 s{S_WM}, 1')
    a.emit(f's_cbranch_scc1 L_{kind}_nop3')
    for t in range(2, 6):
        a.emit(f'ds_write_b128 v{VXW}, v[{acc(t,3)}:{acc(t,3)+3}] offset:{6144+1024*t}')
    a.label(f'L_{kind}_nop3')
    for b in range(5):
        a.emit(f'ds_read_b128 v[{M4+4*b}:{M4+4*b+3}], v{VS4} offset:{64*b}')
        a.emit(f'ds_read_b128 v[{R4+4*b}:{R4+4*b+3}], v{VS4} offset:{640+64*b}')
    a.emit('s_waitcnt lgkmcnt(10)')
    a.emit('s_barrier')
    for t in range(4):
        a.emit(f'ds_read_b128 v[{CS+4*t}:{CS+4*t+3}], v{VCO if t&1 else VCE} offset:{1024*t}')
    for t in range(2):
        a.emit(f'ds_read_b32 v{CV+t}, v{VVO if t else VVE} offset:{4096+1024*t}')
    for t in range(4):
        a.emit(f'ds_read_b128 v[{PR+4*t}:{PR+4*t+3}], v{VPO if t&1 else VPE} offset:{2048+1024*t}')
    sc = 32 ** -0.5 * 1.4426950408889634
    for b in range(4):
        a.emit(f'v_mul_f32 v{MS+2*b+3}, {f2u(sc):#x}, v{MS+2*b+3}')
    for b in range(4):
        a.emit(f'v_mul_f32 v{RK+b}, v{RK+b}, v{MS+2*b+3}')
        a.emit(f'v_mul_f32 v{RK+4+b}, v{RK+4+b}, v{MS+2*b+3}')
    a.emit('s_waitcnt lgkmcnt(6)')
    def qk(x, y, cs, b, d):
        m = f'v[{MS+2*b}:{MS+2*b+1}]'
        for (z, c) in ((x, cs), (y, cs + 4)):
            for h in range(2):
                a.emit(f'v_pk_fma_f32 v[{z+2*h}:{z+2*h+1}], v[{c+2*h}:{c+2*h+1}], {m}, v[{z+2*h}:{z+2*h+1}] op_sel:[0,0,0] op_sel_hi:[1,0,1] neg_lo:[0,1,0] neg_hi:[0,1,0]')
        a.emit(f'v_cvt_pk_bf16_f32 v{d}, v{x}, v{x+1}')
        a.emit(f'v_cvt_pk_bf16_f32 v{d+1}, v{x+2}, v{x+3}')
        a.emit(f'v_cvt_pk_bf16_f32 v{d+2}, v{y}, v{y+1}')
        a.emit(f'v_cvt_pk_bf16_f32 v{d+3}, v{y+2}, v{y+3}')
    Q = lambda b: acc(0, b); Kf = lambda b: acc(2, b) if b >= 0 else PR
    Sc = lambda b: acc(1, b); Sp = lambda b: acc(3, b)
    for b in range(4):
        qk(acc(0, b), acc(1, b), CS, b + 1, Q(b))
        qk(acc(2, b), acc(3, b), CS + 8, b + 1, Kf(b))
        if b == 3:
            a.emit('s_waitcnt lgkmcnt(0)')
            qk(PR, PR + 4, CS + 8, 0, PR)
        if b >= 1:
            a.emit(mfma(Sc(b - 1), Kf(b - 1), Q(b - 1), '0'))
            if b >= 2: a.emit(mfma(Sp(b - 1), Kf(b - 2), Q(b - 1), '0'))
    a.emit(mfma(Sc(3), Kf(3), Q(3), '0'))
    a.emit(mfma(Sp(3), Kf(2), Q(3), '0'))
    a.emit(mfma(Sp(0), Kf(-1), Q(0), '0'))
    def vconv(x, t, b):
        cv = f'v[{CV}:{CV+1}]'
        for h in range(2):
            a.emit(f'v_pk_fma_f32 v[{x+2*h}:{x+2*h+1}], v[{M4+4*b+2*h}:{M4+4*b+2*h+1}], {cv}, v[{x+2*h}:{x+2*h+1}] op_sel:[0,{t},0] op_sel_hi:[1,{t},1] neg_lo:[1,0,0] neg_hi:[1,0,0]')
        for h in range(2):
            a.emit(f'v_pk_mul_f32 v[{x+2*h}:{x+2*h+1}], v[{x+2*h}:{x+2*h+1}], v[{R4+4*b+2*h}:{R4+4*b+2*h+1}]')
        for h in range(2):
            a.emit(f'v_cvt_pk_bf16_f32 v{VV[t]+2*b+h}, v{x+2*h}, v{x+2*h+1}')
    for t in range(2):
        vconv(PR + 8 + 4 * t, t, 0)
        for b in range(4): vconv(acc(4 + t, b), t, b + 1)
    T = lambda b: 32 + 4 * b
    odd = f's[{M_ODD}:{M_ODD+1}]'
    for b in (1, 2, 3, 0):
        a.emit(f'v_cndmask_b32 v{Sc(b)}, v{Sc(b)}, v{Sc(b)+1}, {odd}')
        a.emit(f'v_cndmask_b32 v{Sp(b)}, v{Sp(b)}, v{Sp(b)+1}, {odd}')
        a.emit(f'v_cndmask_b32 v{Sc(b)+2}, v{Sc(b)+2}, v{Sc(b)+3}, {odd}')
        a.emit(f'v_cndmask_b32 v{Sp(b)+2}, v{Sp(b)+2}, v{Sp(b)+3}, {odd}')
        a.emit(f'v_cndmask_b32 v{T(b)}, v{Sc(b)}, v{Sp(b)}, s[{M_UPA}:{M_UPA+1}]')
        a.emit(f'v_cndmask_b32 v{T(b)+1}, v{Sc(b)+2}, v{Sp(b)+2}, s[{M_UPB}:{M_UPB+1}]')
        a.emit(f'v_mul_f32 v{T(b)}, v{T(b)}, v{RK+b}')
        a.emit(f'v_mul_f32 v{T(b)+1}, v{T(b)+1}, v{RK+4+b}')
    a.emit(f'v_mov_b32 v48, {f2u(-1e9 * 1.4426950408889634):#x}')
    a.emit(f'v_cndmask_b32 v{T(0)}, v{T(0)}, v48, s[{M_FA}:{M_FA+1}]')
    a.emit(f'v_cndmask_b32 v{T(0)+1}, v{T(0)+1}, v48, s[{M_FB}:{M_FB+1}]')
    for b in range(4): a.emit(f'v_max_f32 v{T(b)+2}, v{T(b)}, v{T(b)+1}')
    for op in ('32', '16'):
        for b in range(4): a.emit(f'v_mov_b32 v{T(b)+3}, v{T(b)+2}')
        for b in range(4): a.emit(f'v_permlane{op}_swap_b32 v{T(b)+2}, v{T(b)+3}')
        for b in range(4): a.emit(f'v_max_f32 v{T(b)+2}, v{T(b)+2}, v{T(b)+3}')
    for b in range(4):
        a.emit(f'v_sub_f32 v{T(b)}, v{T(b)}, v{T(b)+2}')
        a.emit(f'v_sub_f32 v{T(b)+1}, v{T(b)+1}, v{T(b)+2}')
    for b in range(4):
        a.emit(f'v_exp_f32 v{T(b)}, v{T(b)}')
        a.emit(f'v_exp_f32 v{T(b)+1}, v{T(b)+1}')
    P = lambda b: acc(0, b)
    for b in range(4):
        a.emit(f'v_cvt_pk_bf16_f32 v{T(b)}, v{T(b)}, v{T(b)}')
        a.emit(f'v_cvt_pk_bf16_f32 v{T(b)+1}, v{T(b)+1}, v{T(b)+1}')
        a.emit(f'v_and_b32 v{P(b)}, v{T(b)}, v{MAP}')
        a.emit(f'v_and_b32 v{P(b)+1}, v{T(b)+1}, v{MBP}')
        a.emit(f'v_and_b32 v{P(b)+2}, v{T(b)}, v{MAC}')
        a.emit(f'v_and_b32 v{P(b)+3}, v{T(b)+1}, v{MBC}')
        if b >= 1:
            q = b - 1
            a.emit(mfma(acc(1, q), ONES, P(q), '0'))
            a.emit(mfma(acc(4, q), VV[0] + 2 * q, P(q), '0'))
            a.emit(mfma(acc(5, q), VV[1] + 2 * q, P(q), '0'))
    q = 3
    a.emit(mfma(acc(1, q), ONES, P(q), '0'))
    a.emit(mfma(acc(4, q), VV[0] + 2 * q, P(q), '0'))
    a.emit(mfma(acc(5, q), VV[1] + 2 * q, P(q), '0'))
    if ENV('ES'): stamp(a, 1)
    no = 'wo' in NS
    if no:
        a.emit(f's_cmp_eq_u32 s{S_WM}, 1')
        a.emit(f's_cbranch_scc1 L_{kind}_out1')
    for w in range(2 if no else 1):
        if w: a.label(f'L_{kind}_out1')
        for b in range(4):
            r = acc(1, b); d = 48 + 4 * b
            a.emit(f'v_rcp_f32 v{r}, v{r}')
            a.emit(f's_mov_b32 s3, {b * 16 * 2048}')
            for t in range(2):
                x = acc(4 + t, b)
                for h in range(2):
                    a.emit(f'v_pk_mul_f32 v[{x+2*h}:{x+2*h+1}], v[{x+2*h}:{x+2*h+1}], v[{r}:{r+1}] op_sel_hi:[1,0]')
            for t in range(2):
                x = acc(4 + t, b)
                for h in range(2):
                    a.emit(f'v_cvt_pk_bf16_f32 v{d+2*(t^w)+h}, v{x+2*h}, v{x+2*h+1}')
            if not no:
                a.emit('s_nop 1')
                a.emit(f'v_permlane16_swap_b32 v{d}, v{d+2}')
                a.emit(f'v_permlane16_swap_b32 v{d+1}, v{d+3}')
            a.emit(f'buffer_store_dwordx4 v[{d}:{d+3}], v{VO}, s[{SO}:{SO+3}], s3 offen{stf(kind)}')
        if no and not w: a.emit(f's_branch L_{kind}_out2')
    if no: a.label(f'L_{kind}_out2')
    compute_end(a, kind)
    a.label(f'L_{kind}_loader')
    L = Loader(a, kind, K, lda2, ldw2, [0, 2048, 4096], 128, S, STAGE, halo=XH, rot=int(ENV('ROT_QKV', '0')))
    L.skip = DS
    L.setup()
    a.emit('s_waitcnt lgkmcnt(0)')
    srd_xs(a, SX); srd(a, SW, 'wqkv', 0, 1024 * 6144)
    import sides
    fill = []
    if ENV('DX', '2') == '1' and ENV('CLP', 'e') == 'l':
        a.emit('s_and_b32 s3, s2, 3')
        a.emit(f's_and_b32 s4, s{S_CU}, 3')
        a.emit('s_lshl2_add_u32 s3, s3, s4')
        a.emit('s_bfe_u32 s4, s2, 0x10002')
        a.emit(f's_lshr_b32 s5, s{S_CU}, 2')
        a.emit('s_lshl1_add_u32 s4, s5, s4')
        a.emit('s_lshl4_add_u32 s3, s3, s4')
        a.emit(f's_and_b32 s4, s{S_WV}, 3')
        a.emit('s_lshl2_add_u32 s3, s3, s4')
        a.emit('s_lshl_b32 s3, s3, 12')
        srd(a, SB, 'ws', WS_XP, 0 if 'fill0' in DBG else 4096)
        if 'fillfl' in DBG:
            srd(a, SB, 'ws0', WS_FL + MB, 4096)
            a.emit('s_and_b32 s3, s3, 0xfffff')
        a.emit(f's_add_u32 s{SB}, s{SB}, s3')
        a.emit(f's_addc_u32 s{SB+1}, s{SB+1}, 0')
        FW_ = int(ENV('FILLW', '2'))
        a.emit(f'v_mul_u32_u24 v29, {4 * FW_}, v1')
        for i in range(4): a.emit(f'v_mov_b32 v{24+i}, -1')
        fill = [f'buffer_store_dword{"x" + str(FW_)} v[24:{23 + FW_}], v29, s[{SB}:{SB+3}], 0 offen' + ('' if 'fillwb' in DBG else ' sc1'), f'v_add_u32 v29, {256 * FW_}, v29']
        assert sides.STV[3] == 0
    a.emit(f's_cmp_lg_u32 s{S_LAYER}, 0')
    a.emit(f's_cbranch_scc1 L_{kind}_ld1')
    post = list(sides.stouch_post(a, kind)) + fill
    SPF = [int(x) for x in ENV('SPF', '0,0,2').split(',')]
    def spf():
        hs = range(SPF[2])
        return ([f's_buffer_load_dword s84, s[{SX}:{SX+3}], s85 offset:{2048*r+64*h}' for r in range(2) for h in hs] +
                [f's_buffer_load_dword s84, s[{SW}:{SW+3}], s86 offset:{2048*p+64*h}' for p in range(3) for h in hs] +
                ['s_add_u32 s85, s85, 128', f's_add_u32 s86, s86, {64*ldw2}'])
    def spf_start():
        if not SPF[1]: return
        a.emit(f's_and_b32 s3, s{S_WV}, 3')
        a.emit(f's_lshl2_add_u32 s3, s{S_CU}, s3')
        a.emit('s_and_b32 s4, s2, 1')
        a.emit('s_bfe_u32 s5, s2, 0x20001')
        a.emit('s_lshl2_add_u32 s85, s4, s5')
        a.emit('s_lshl_b32 s85, s85, 7')
        a.emit('s_add_u32 s85, s85, s3')
        a.emit('s_lshl_b32 s85, s85, 12')
        a.emit(f's_add_u32 s85, s85, {128*SPF[0]}')
        a.emit('s_lshl_b32 s4, s4, 5')
        a.emit(f's_add_u32 s4, s4, s{S_CU}')
        a.emit(f's_add_u32 s4, s4, {64*SPF[0]}')
        a.emit(f's_mul_i32 s86, s4, {ldw2}')
        a.emit('s_and_b32 s3, s3, 3')
        a.emit('s_lshl2_add_u32 s3, s5, s3')
        a.emit('s_lshl_b32 s3, s3, 7')
        a.emit('s_add_u32 s86, s86, s3')
        for i in range(SPF[0], SPF[1]):
            for x in spf(): a.emit(x)
    if SPF[1]: post += spf()
    VPF = [int(x) for x in ENV('VPF', '0,0,1').split(',')]
    def vpf():
        k0, nk, hs = VPF
        if not nk: return 0
        a.emit(f's_and_b32 s3, s{S_WV}, 3')
        a.emit(f's_lshl2_add_u32 s3, s{S_CU}, s3')
        a.emit('s_and_b32 s4, s2, 1')
        a.emit('s_bfe_u32 s5, s2, 0x20001')
        a.emit('s_lshl2_add_u32 s85, s4, s5')
        a.emit('s_lshl_b32 s85, s85, 7')
        a.emit('s_add_u32 s85, s85, s3')
        a.emit('s_lshl_b32 s85, s85, 12')
        a.emit('s_lshl_b32 s4, s4, 7')
        a.emit('s_add_u32 s4, s4, s3')
        a.emit(f's_add_u32 s4, s4, {64*k0}')
        a.emit(f's_mul_i32 s86, s4, {ldw2}')
        a.emit('s_lshl_b32 s5, s5, 9')
        a.emit('s_add_u32 s86, s86, s5')
        a.emit('v_and_b32 v2, 15, v1')
        a.emit(f'v_min_u32 v3, {nk-1}, v2')
        a.emit('v_and_b32 v22, 16, v1')
        a.emit('v_add_lshl_u32 v22, v22, v3, 7')
        a.emit('v_min_u32 v2, 11, v2')
        a.emit('v_lshrrev_b32 v3, 2, v2')
        a.emit('v_and_b32 v2, 3, v2')
        a.emit('v_lshl_add_u32 v2, v3, 4, v2')
        a.emit('v_lshrrev_b32 v3, 4, v1')
        a.emit(f'v_min_u32 v3, {nk//4-1}, v3')
        a.emit(f'v_mul_u32_u24 v3, {256*ldw2}, v3')
        a.emit('v_lshl_add_u32 v23, v2, 7, v3')
        for h in range(hs):
            a.emit(f'buffer_load_dword v24, v23, s[{SW}:{SW+3}], s86 offen offset:{64*h}')
            a.emit(f'buffer_load_dword v25, v22, s[{SX}:{SX+3}], s85 offen offset:{128*k0+64*h}')
        return 2 * hs
    TG_ = int(ENV('TLBG', '0'))
    if TG_:
        srd(a, SO, 'ws0', 0, 256 * MB)
        a.emit(f's_and_b32 s3, s{S_WV}, 3')
        a.emit(f's_lshl2_add_u32 s3, s{S_CU}, s3')
        a.emit(f's_lshl_b32 s86, s3, {TG_}')
        tl = [f's_buffer_load_dword s84, s[{SO}:{SO+3}], s86', f's_add_u32 s86, s86, {128 << TG_}']
        if TG_ < 21: post += tl
    extra = tail_parks('wo', SP, lambda b: srd(b, SP, 'wo', 0, 2 * MB))
    sch0 = [int(c) for c in ENV('TSO0', '00000')]
    extra0 = tail_parks('wo', SP, lambda b: srd(b, SP, 'wo', 0, 2 * MB), sch0 + [sum(TSCH['wo']) - sum(sch0)])
    npk = 2 * sum(TSCH['wo']) if XD else 0
    def start():
        sides.cls_touch(a)
        if TG_:
            for x in tl: a.emit(x)
            a.emit(f's_and_b32 s3, s{S_WV}, 3')
            a.emit(f's_lshl2_add_u32 s3, s{S_CU}, s3')
            for w, sz in (('out', 4 * MB), ('wo', 2 * MB), ('w1', 7 * MB), ('b1', 4096), ('b2', 2048)):
                srd(a, SC, w, 0, sz)
                a.emit(f's_mul_i32 s4, s3, {sz // 128}')
                a.emit(f's_buffer_load_dword s84, s[{SC}:{SC+3}], s4')
        if ENV('DX', '2') != '1' or ENV('CLP', 'e') != 's': return 0
        srd(a, ST, 'ws0', WS_XP, LSTR + 4 * MB)
        a.emit('s_and_b32 s3, s2, 3')
        a.emit(f's_and_b32 s4, s{S_CU}, 3')
        a.emit('s_lshl2_add_u32 s3, s3, s4')
        a.emit('s_bfe_u32 s4, s2, 0x10002')
        a.emit(f's_lshr_b32 s5, s{S_CU}, 2')
        a.emit('s_lshl1_add_u32 s4, s5, s4')
        a.emit('s_lshl4_add_u32 s3, s3, s4')
        a.emit(f's_and_b32 s4, s{S_WV}, 3')
        a.emit('s_lshl2_add_u32 s3, s3, s4')
        a.emit('s_lshl_b32 s3, s3, 12')
        a.emit(f's_add_u32 s4, s3, {LSTR}')
        a.emit('v_lshlrev_b32 v2, 4, v1')
        for i in range(4): a.emit(f'v_mov_b32 v{32+i}, -1')
        for i in range(8): a.emit(f'buffer_store_dwordx4 v[32:35], v2, s[{ST}:{ST+3}], s{3+(i>>2)} offen offset:{1024*(i&3)} sc1')
        return 8
    final0 = None
    TL0 = int(ENV('TL0', '1' if DS else '0'))
    if DS:
        STQ0 = int(ENV('STQ0', '14'))
        assert HK[-1] < STQ0 <= 13 + TL0
        def start():
            nv = vpf()
            if sides.CE:
                assert sum(sides.CE.values()) == 8
                sides.cs_setup(a, SB, 95, 26)
                for x in sides.cs_at(-1): a.emit(x)
                nv += sides.CE.get(-1, 0)
            spf_start()
            sides.cls_touch(a)
            srd(a, ST, 'ws0', WS_ST0, 16 * 16384)
            stats4_setup(a, True)
            if D2:
                dbg_off(a, 20)
                a.emit(f's_and_b32 s{SC+1}, s{SC+1}, 0xffff')
                a.emit(f's_mov_b32 s{SC+2}, 256')
                a.emit(f's_mov_b32 s{SC+3}, 0x00020000')
            for x in pads.chain(-1): a.emit(x)
            return nv
        pl2 = f'buffer_load_dword v21, v20, s[{SC}:{SC+3}], 0 offen sc1'
        ck2 = ['s_mov_b32 s5, 0x100000', 'L_attn_dchk:', 'v_cmp_ne_u32 vcc, 0x01010101, v21', 's_cbranch_vccz L_attn_dok', 's_sub_u32 s5, s5, 1\n  ' + pl2,
               's_waitcnt vmcnt(0)', 's_cbranch_scc0 L_attn_dchk', 'L_attn_dok:'] if D2 else []
        extra0 = lambda i: (ck2 + stats4_loads(32, True) if i == STQ0 else [pl2] if D2 and i == STQ0 - 3 else []) + sides.cs_at(i) + pads.chain(i)
        def chk0():
            a.emit('v_cmp_u_f32 vcc, v32, v33')
            a.emit('v_cmp_u_f32 s[4:5], v48, v49')
            a.emit('s_or_b64 s[4:5], vcc, s[4:5]')
            a.emit('s_cbranch_scc0 L_attn_sok')
            a.emit(f's_sub_u32 s{S_CNT}, s{S_CNT}, 1')
            a.emit('s_cbranch_scc1 L_attn_sok')
            for x in stats4_loads(32, True): a.emit(x + (' sc1' if x.startswith('buf') else ''))
            a.emit('s_waitcnt vmcnt(0)')
            a.emit('s_branch L_attn_schk')
            a.label('L_attn_sok')
        def final0():
            a.emit(f's_mov_b32 s{S_CNT}, 0x4000')
            a.emit(f"s_waitcnt vmcnt({side(Asm(), 0, 'issue') + sum(n for e, n in sides.CE.items() if e >= STQ0)})")
            a.label('L_attn_schk')
            stats4_store(a, 32, LST, True, chk0 if D2 else None)
            a.emit('s_waitcnt lgkmcnt(0)')
    L.run('0', tail_issue=lambda: side(a, 0, 'issue'), ntail_vm=side(Asm(), 0, 'issue'), post=post, start=start, extra=extra0, tail_late=TL0, final=final0, exfirst=True)
    for i in (16,) if DS else (16, 17):
        if XD:
            for x in extra0(i): a.emit(x)
        a.emit('s_barrier')
    if XD:
        for x in extra0(18): a.emit(x)
    if ONE:
        a.emit(f's_branch L_{kind}_ldend')
    else:
        side(a, 0, 'finish')
        a.emit('s_endpgm')
    a.label(f'L_{kind}_ld1')
    if ',' in L.kord():
        L.ktable(int(L.kord().split(',')[1]))
        L.ot = int(ot); L.hx = HX - XH
        for x in ([] if ot else L.knext()): a.emit(x)
    srd(a, ST, 'ws0', WS_ST2, 16 * 16384)
    n1 = side(Asm(), 1, 'issue')
    def tail1():
        stats_loads(a, 32, True)
        side(a, 1, 'issue')
    def final1():
        a.emit(f's_waitcnt vmcnt({n1 + npk})')
        stats_reduce_store(a, 32, LST)
        a.emit('s_waitcnt lgkmcnt(0)')
    if T4:
        stats4_setup(a, True)
        TL1 = int(ENV('TL1', '0'))
        def final4():
            a.emit(f"s_waitcnt vmcnt({n1 if int(ENV('STQ', '14')) < 13 + TL1 < 15 else 0})")
            stats4_store(a, 32, LST, True)
            a.emit('s_waitcnt lgkmcnt(0)')
        L.run('1', tail_issue=lambda: side(a, 1, 'issue'), ntail_vm=n1, tail_late=TL1, final=final4, extra=lambda i: stats4_loads(32, True) if i == int(ENV('STQ', '14')) else [],
              post=fill, dep=lambda pf: dep_wait(a, kind, halo=True, postf=pf, pref=(lambda: a.emit('s_waitcnt vmcnt(0)')) if ot else None))
    else: L.run('1', tail_issue=tail1, ntail_vm=16 + n1, final=final1, extra=extra, post=fill, dep=(lambda pf: dep_wait(a, kind, halo=True, postf=pf)) if MEGA else None)
    a.emit('s_barrier')
    if not MEGA: side(a, 1, 'finish')
    a.label(f'L_{kind}_ldend')
    loader_end(a, kind, check=False)
    a.label(end)
    a.emit('s_endpgm')
    loader_first(a, kind)
    a(KD.format(name=f'{kind}l0_kernel'))
    if not MEGA:
        stub(a, f'{kind}l1_kernel', body, 1, tsidx + 4, False)
        a(KD.format(name=f'{kind}l1_kernel'))
    a.label(f'L_{kind}_c1')
    return LST + 1280
```

```python
import sys, os, struct
sys.path.insert(0, os.path.join(os.path.dirname(os.path.abspath(__file__)), '..'))
from asmlib import Asm, check_offsets
MB = 1 << 20
WSB = int(os.environ.get('WSB', '0')) * MB
WS_O   = WSB
WS_X1  = WSB + 4 * MB
WS_H   = WSB + 8 * MB
WS_ST  = WSB + 23 * MB
WS_CS  = WSB + 23 * MB + 512 * 1024
WS_ST0 = WSB + 23 * MB + 768 * 1024
D2 = os.environ.get('DS', '2') == '2'
DS = os.environ.get('DS', '2') in '12'
WS_TS  = 60 * MB
MEGA = os.environ.get('MEGA', '2') in ('1', '2')
ONE = os.environ.get('MEGA', '2') == '2'
LSTR = 64 * MB
WS_ST2 = WS_ST + 256 * 1024 if MEGA else WS_ST
WS_FL = WSB + 40 * MB
FLS = 524288
REP = int(os.environ.get('REP', '16'))
WS_XP = WSB + 24 * MB
WS_X2 = WSB + 32 * MB
XPAD = int(os.environ.get('XPAD', '128')) if MEGA else 0
f2u = lambda f: struct.unpack('<I', struct.pack('<f', f))[0]
ENV = os.environ.get
TS = ENV('TS', '')
TE = ENV('TE', '')
DBG = ENV('DBG', '').split(',')
EARLY = int(ENV('EARLY', '0')) if MEGA and ENV('SPLIT', '0') == '0' else 0
def stf(kind): return (' ' + ENV('WTF', 'sc1')) if kind in ENV('WT', 'attn,wo,w2,w1').split(',') else ''

KA = {'A_x': 0, 'wqkv': 8, 'wo': 16, 'w1': 32, 'b1': 40, 'w2': 48, 'b2': 56, 'out': 64, 'ws': 80}
P_IN = 16
P_OUT = 32; P_WS = 34
P_XS = 12
PTR = {'A_x': 16, 'wqkv': 18, 'wo': 20, 'w1': 24, 'b1': 26, 'w2': 28, 'b2': 30, 'out': 32, 'ws': 34, 'xs': 12, 'ws0': 22}
SX, SW, SO, SR, SB, ST, SP, SC = 36, 40, 44, 48, 52, 56, 60, 64
S_MT, S_NT, S_WV, S_WM, S_WN = 68, 69, 70, 71, 72
S_KX, S_KW, S_SLOT, S_XD, S_WD, S_HD, S_CNT = 73, 74, 75, 76, 77, 78, 79
S_LAYER = 96; S_TSI = 97; S_T = 98; S_CU = 99; S_XG = 100; S_KT = 101

KD = '''.section .rodata,"a"
.p2align 6
.amdhsa_kernel {name}
  .amdhsa_next_free_vgpr 256
  .amdhsa_next_free_sgpr 102
  .amdhsa_accum_offset 256
  .amdhsa_group_segment_fixed_size 0
  .amdhsa_kernarg_size 88
  .amdhsa_user_sgpr_count 2
  .amdhsa_user_sgpr_kernarg_segment_ptr 1
  .amdhsa_system_sgpr_workgroup_id_x 1
  .amdhsa_float_denorm_mode_32 3
  .amdhsa_float_denorm_mode_16_64 3
.end_amdhsa_kernel
.text
'''

def srd(a, sd, which, off, size):
    p = PTR[which]
    if off:
        a.emit(f's_add_u32 s{sd}, s{p}, {off}')
        a.emit(f's_addc_u32 s{sd+1}, s{p+1}, 0')
        a.emit(f's_and_b32 s{sd+1}, s{sd+1}, 0xffff')
    else:
        a.emit(f's_mov_b32 s{sd}, s{p}')
        a.emit(f's_and_b32 s{sd+1}, s{p+1}, 0xffff')
    a.emit(f's_mov_b32 s{sd+2}, {size}')
    a.emit(f's_mov_b32 s{sd+3}, 0x00020000')

def xpitch(a, sd, inv=False):
    a.emit(f's_cmp_eq_u32 s{S_LAYER}, {0 if inv else 1}')
    a.emit(f's_cselect_b32 s{sd}, {XPAD}, 0')
    a.emit(f's_add_u32 s{sd}, s{sd}, 2048')

def srd_xs(a, sd):
    srd(a, sd, 'xs', 0, 4 * MB)
    xpitch(a, sd + 2)
    a.emit(f's_lshl_b32 s{sd+2}, s{sd+2}, 11')

def stub(a, name, body, layer, tsidx, first):
    a(f'.text\n.globl {name}\n.p2align 8\n.type {name},@function\n{name}:')
    if TS:
        stamp(a, 0, nowait=True)
    if TE: a.emit('s_memrealtime s[94:95]')
    a.emit('s_load_dwordx4 s[16:19], s[0:1], 0')
    a.emit('s_load_dwordx2 s[20:21], s[0:1], 16')
    a.emit('s_load_dwordx2 s[22:23], s[0:1], 80')
    a.emit('s_load_dwordx8 s[24:31], s[0:1], 32')
    a.emit('s_load_dwordx2 s[32:33], s[0:1], 64')
    a.emit('s_load_dwordx2 s[34:35], s[0:1], 80')
    a.emit(f's_load_dwordx2 s[12:13], s[0:1], {0 if layer == 0 else 64}')
    if DS: a.emit(f's_load_dwordx2 s[{SC}:{SC+1}], s[0:1], 72')
    a.emit(f's_mov_b32 s{S_LAYER}, {layer}')
    if ENV('PADS', '0') == '1': a.emit('s_mov_b64 exec, -1')
    a.emit(f's_mov_b32 s{S_TSI}, {tsidx}')
    if not first:
        a.emit(f's_branch {body}')

def stamp(a, n, nowait=False):
    if not TS: return
    a.emit(f's_memrealtime s[{80+4*n}:{81+4*n}]')
    a.emit(f's_memtime s[{82+4*n}:{83+4*n}]')
    if not nowait: a.emit('s_waitcnt lgkmcnt(0)')

def stamps_out(a, tag):
    if not TS: return
    if not MEGA: a.emit('s_waitcnt vmcnt(0)')
    stamp(a, 3)
    if MEGA and tag == 'w1':
        for i in range(16): a.emit(f'v_writelane_b32 v31, s{80+i}, {i}')
        return
    srd(a, SP, 'ws0', WS_TS, 1 << 20)
    a.emit('s_lshl_b32 s4, s2, 6')
    a.emit(f's_lshl_b32 s5, s{S_TSI}, 16')
    a.emit('s_add_u32 s4, s4, s5')
    a.emit('v_mov_b32 v1, s4')
    for i in range(16): a.emit(f'v_mov_b32 v{4+i}, s{80+i}')
    a.emit('v_cmp_eq_u32 vcc, 0, v0')
    a.emit('s_and_saveexec_b64 s[6:7], vcc')
    a.emit(f's_cbranch_execz L_tsskip_{tag}')
    for j in range(4):
        a.emit(f'buffer_store_dwordx4 v[{4+4*j}:{7+4*j}], v1, s[{SP}:{SP+3}], 0 offen offset:{16*j}' + (' sc1' if ENV('DIAG') else ''))
    if MEGA and tag == 'w2':
        a.emit('s_mov_b64 exec, 0xffff')
        a.emit('s_sub_u32 s4, s4, 0x10000')
        a.emit('v_lshlrev_b32 v1, 2, v0')
        a.emit(f'buffer_store_dword v31, v1, s[{SP}:{SP+3}], s4 offen' + (' sc1' if ENV('DIAG') else ''))
    a.label(f'L_tsskip_{tag}')
    a.emit('s_mov_b64 exec, -1')

SPX = ENV('SPX', '1') == '1'
OT = ENV('OT', 'w1,w2,attn').split(',')
S_T0 = 91
OHB = 114688; OBIA = [10, 24, 124, 126]
NV = int(ENV('NV', '0'))
EF = int(ENV('EF', '0'))
NS = ENV('NS', 'wo,w1,w2').split(',')
NSR = ENV('NSR', '1') == '1'
SKL = ENV('SKL', '1') == '1'
SF = ENV('SF', '0') == '1'
WD = ENV('WD', 'c')
ZD = ENV('ZD', 'a')
EX = int(ENV('EX', '14'))
LSTK = ENV('LSTK', 'w2')
LREG = [52, 54, 56, 58] if LSTK == 'w2' else [36, 38, 48, 50] if LSTK == 'wo' else [80, 82, 48, 50]
def lstamp(a, n, dep=False):
    if dep and (ENV('LST') == 'x' or LSTK != 'w2'): return
    if TS: a.emit(f's_memrealtime s[{LREG[n]}:{LREG[n]+1}]')

def lstamps_out(a, tag):
    if not TS: return
    a.emit(f"s_cmp_lg_u32 s{S_WV}, {ENV('PW_' + tag.upper(), '4')}")
    a.emit(f's_cbranch_scc1 L_ltsskip_{tag}')
    a.emit('s_waitcnt lgkmcnt(0)')
    srd(a, SP, 'ws0', WS_TS + 16384, 1 << 20)
    a.emit('s_lshl_b32 s4, s2, 6')
    a.emit(f's_lshl_b32 s5, s{S_TSI}, 16')
    a.emit('s_add_u32 s4, s4, s5')
    for i in range(8): a.emit(f'v_writelane_b32 v20, s{LREG[i>>1]+(i&1)}, {i}')
    a.emit('v_lshlrev_b32 v21, 2, v1')
    a.emit('s_mov_b64 exec, 0xff')
    a.emit(f'buffer_store_dword v20, v21, s[{SP}:{SP+3}], s4 offen')
    a.emit('s_mov_b64 exec, -1')
    a.label(f'L_ltsskip_{tag}')

def tile_map(a, LM, endlab, pair=False):
    if endlab:
        a.emit('s_cmp_ge_u32 s2, 256')
        a.emit(f's_cbranch_scc1 {endlab}')
        a.emit('v_lshrrev_b32 v2, 6, v0')
        a.emit('v_and_b32 v1, 63, v0')
        a.emit(f'v_readfirstlane_b32 s{S_WV}, v2')
    a.emit('s_and_b32 s3, s2, 7')
    if endlab: a.emit(f's_lshr_b32 s{S_CU}, s2, 3')
    if LM == 2 and ENV('MAP2', '0') == '1':
        a.emit('s_lshl_b32 s5, s3, 1')
        a.emit('s_lshr_b32 s6, s3, 1')
        a.emit('s_and_b32 s5, s5, 2')
        a.emit('s_and_b32 s6, s6, 1')
        a.emit('s_or_b32 s5, s5, s6')
    else: a.emit(f's_and_b32 s5, s3, {(1 << (4 - LM)) - 1}')
    a.emit(f's_lshl_b32 s5, s5, {LM}')
    a.emit(f's_and_b32 s6, s{S_CU}, {(1 << LM) - 1}')
    a.emit(f's_add_u32 s{S_MT}, s5, s6')
    a.emit(f's_lshr_b32 s5, s3, {4 - LM}')
    if pair:
        a.emit(f's_lshr_b32 s{S_HD}, s{S_CU}, {LM}')
        a.emit(f's_lshl1_add_u32 s{S_NT}, s{S_HD}, s5')
        return
    a.emit(f's_lshl_b32 s5, s5, {5 - LM}')
    a.emit(f's_lshr_b32 s6, s{S_CU}, {LM}')
    a.emit(f's_add_u32 s{S_NT}, s5, s6')
    if 'smallm' in DBG: a.emit(f's_and_b32 s{S_MT}, s{S_MT}, 1')
    if 'smalln' in DBG: a.emit(f's_and_b32 s{S_NT}, s{S_NT}, 1')

def interleave(a, main, side, lead=1, per=1):
    si = 0
    for i, m in enumerate(main):
        a.emit(m)
        if i + 1 >= lead:
            for _ in range(per):
                if si < len(side): a.emit(side[si]); si += 1
    while si < len(side): a.emit(side[si]); si += 1

PO0, POM = [int(x) for x in ENV('PO', '1,3').split(',')]
KSH = int(ENV('KSH', '0')); LAT = int(ENV('LAT', '0'))
def own_pos(a, sd):
    a.emit(f's_and_b32 s{sd}, s{S_NT}, {POM}')
    a.emit(f's_add_u32 s{sd}, s{sd}, {PO0}')

class Loader:
    VXD = 4; VWD = 8; VXH = 28
    def __init__(self, a, tag, K, lda2, ldw2, panels, colbase, S, STAGE, halo=None, delta=0, rot=None, xblk=False, half=0):
        self.a = a; self.tag = tag; self.K = K; self.lda2 = lda2; self.ldw2 = ldw2; self.panels = panels
        self.colbase = colbase; self.S = S; self.STAGE = STAGE; self.halo = halo; self.delta = delta; self.xblk = xblk; self.rot = rot if rot is not None and rot >= 0 else None
        self.NSTEP = K // 64; self.half = half; self.ot = 0; self.skip = False
        self.per = 4 + 2 * len(panels) + (1 if halo is not None else 0)
    def setup(self):
        a = self.a
        if ENV('PRIO', '0') != '0': a.emit(f"s_setprio {ENV('PRIO')}")
        a.emit(f's_add_u32 s8, s{S_WV}, s{S_NT}')
        a.emit('s_and_b32 s8, s8, 3')
        a.emit(f's_add_u32 s9, s{S_WV}, s{S_MT}')
        a.emit('s_and_b32 s9, s9, 3')
        a.emit(f's_lshl_b32 s{S_XD}, s8, 12')
        a.emit(f's_lshl_b32 s{S_WD}, s9, 11')
        a.emit(f's_add_u32 s{S_WD}, s{S_WD}, 16384')
        a.emit(f's_lshl_b32 s11, s{S_MT}, 7')
        a.emit('v_and_b32 v10, 7, v1')
        if self.xblk: self.xoff_blk(self.lda2)
        else: self.xoff_rows(self.lda2)
        ns = self.tag in NS and not NSR; nr = self.tag in NS and NSR
        wrow(a, 9, ns)
        a.emit(f'v_mul_u32_u24 v3, {self.ldw2}, v3')
        a.emit('v_lshrrev_b32 v2, 3, v1')
        a.emit(f'v_and_b32 v2, {6 if nr else 2}, v2')
        a.emit('v_xor_b32 v2, v2, v10')
        a.emit(f's_mul_i32 s10, s{S_NT}, {self.colbase}')
        if 'noslow' in DBG and self.tag == 'attn':
            a.emit(f's_bitcmp1_b32 0x0808, s{S_NT}')
            a.emit('s_cselect_b32 s3, 512, 0')
            a.emit('s_add_u32 s10, s10, s3')
        if self.colbase & 127: a.emit('s_andn2_b32 s10, s10, 127')
        a.emit('v_add_u32 v3, s10, v3')
        a.emit(f'v_lshl_add_u32 v{self.VWD}, v2, 4, v3')
        if not nr: a.emit('v_xor_b32 v2, 4, v2')
        a.emit(f'v_add_u32 v3, {(4 if ns else 8)*self.ldw2}, v3')
        a.emit(f'v_lshl_add_u32 v{self.VWD+1}, v2, 4, v3')
        if self.half:
            if ns:
                a.emit('v_bfe_u32 v3, v1, 2, 2')
                a.emit('v_lshrrev_b32 v2, 5, v1')
                a.emit('v_lshl_add_u32 v3, v2, 2, v3')
                a.emit('v_and_b32 v2, 16, v1')
                a.emit('s_and_b32 s10, s9, 2')
                a.emit('s_add_u32 s10, s10, s9')
                a.emit('s_lshl_b32 s10, s10, 3')
                a.emit('v_add3_u32 v3, s10, v3, v2')
            else:
                a.emit('v_lshrrev_b32 v3, 2, v1')
                a.emit('s_lshl_b32 s10, s9, 4')
                a.emit('v_add_u32 v3, s10, v3')
            a.emit(f'v_mul_u32_u24 v3, {self.ldw2}, v3')
            if 'w2' in NS: a.emit(f'v_bfe_u32 v2, v1, {4 if nr else 5}, 1')
            else:
                a.emit(f'v_lshrrev_b32 v2, {3 if nr else 4}, v1')
                a.emit('v_and_b32 v2, 2, v2')
            a.emit('v_xor_b32 v2, v2, v1')
            a.emit('v_and_b32 v2, 3, v2')
            a.emit(f's_lshl_b32 s10, s{S_NT}, 6')
            a.emit(f's_add_u32 s10, s10, {self.half}')
            a.emit('v_add_u32 v3, s10, v3')
            a.emit(f'v_lshl_add_u32 v{self.VXH}, v2, 4, v3')
            a.emit(f's_lshl_b32 s{S_HD}, s{S_NT}, 7')
            a.emit(f's_add_u32 s{S_HD}, s{S_HD}, 3072')
        if self.halo is not None:
            a.emit(f's_and_b32 s10, s{S_WV}, 3')
            a.emit(f's_lshl_b32 s{S_HD}, s10, 9')
            a.emit(f's_add_u32 s{S_HD}, s{S_HD}, {self.halo}')
            a.emit('s_lshl_b32 s14, s10, 2')
            a.emit('s_add_u32 s14, s14, s11')
            a.emit('s_sub_u32 s14, s14, 16')
            a.emit('v_lshrrev_b32 v3, 3, v1')
            a.emit('v_add_u32 v3, s14, v3')
            a.emit('v_max_i32 v3, 0, v3')
            a.emit('v_mul_u32_u24 v3, s5, v3')
            a.emit('s_lshl_b32 s14, s10, 1')
            a.emit('v_lshrrev_b32 v2, 4, v1')
            a.emit('v_add_u32 v2, s14, v2')
            a.emit('v_and_b32 v2, 7, v2')
            a.emit('v_xor_b32 v2, v2, v10')
            a.emit(f'v_lshl_add_u32 v{self.VXH}, v2, 4, v3')
            a.emit('s_cmp_eq_u32 s10, 0')
            a.emit('s_cselect_b32 s14, 0xffffff00, -1')
            a.emit('s_mov_b32 s15, 0')
        a.emit(f's_mov_b32 s{S_SLOT}, 0')
        if self.rot is None:
            a.emit(f's_mov_b32 s{S_KX}, 0')
            a.emit(f's_mov_b32 s{S_KW}, 0')
        else:
            if not getattr(self, 'noxg', False): a.emit(f's_add_u32 s{S_XG}, s{S_MT}, s{S_NT}')
            a.emit(f's_mov_b32 s{S_KT}, {0 if EARLY and self.tag == "w2" else -1}')
            ko = int(ENV('KOFF_' + self.tag.upper(), '0'))
            if ko:
                a.emit(f"s_bitcmp1_b32 {ENV('KMSK_' + self.tag.upper(), '0x0808' if self.tag == 'attn' else '0x2aea')}, s{S_NT}")
                a.emit(f's_cselect_b32 s{S_KT}, {ko - 1}, s{S_KT}')
            if self.kord(): self.ktable()
            if self.skip:
                if LAT:
                    a.emit(f's_mul_i32 s3, s{S_MT}, {LAT}')
                    a.emit(f's_add_u32 s3, s3, s{S_NT}')
                    a.emit(f's_and_b32 s{S_T0}, s3, 15')
                elif KSH:
                    a.emit(f's_and_b32 s{S_T0}, s{S_NT}, 3')
                    a.emit(f's_and_b32 s93, s{S_NT}, 12')
                    if KSH == 2:
                        a.emit(f's_and_b32 s3, s{S_MT}, 8')
                        a.emit('s_add_u32 s93, s93, s3')
                else: a.emit(f's_mov_b32 s{S_T0}, s{S_NT}')
                own_pos(a, 92)
                for x in self.knext(): a.emit(x)
            elif not self.ot:
                for x in self.knext(): a.emit(x)
    def kord(self): return ENV('KORD_' + self.tag.upper(), {'w1': '2', 'attn': '0,2'}.get(self.tag, ''))
    def korder(self, g, start):
        D = int(ENV('ROTD_' + self.tag.upper(), ENV('ROTD', '2')))
        o = list(range(16))
        if start < 0:
            dl = {3: [3, -1, -1, -1], 2: [2, -1, -1, 0], 1: [1, -1, 0, 0]}[D]
            return [(t + dl[(t - g) & 3]) & 15 for t in range(16)]
        for t in range(start + g, 16 - D, 4): o[t:t + D + 1] = [t + D] + list(range(t, t + D))
        return o
    def ktable(self, start=None):
        a = self.a
        if start is None: start = int(self.kord().split(',')[0])
        a.emit(f's_add_u32 s3, s{S_MT}, s{S_NT}')
        a.emit('s_and_b32 s3, s3, 3')
        for g in range(4):
            v = sum(k << (4 * i) for i, k in enumerate(self.korder(g, start)))
            if g: a.emit(f's_cmp_eq_u32 s3, {g}')
            for h in range(2):
                a.emit(f's_cselect_b32 s{S_XG+h}, {(v >> (32 * h)) & 0xffffffff:#x}, s{S_XG+h}' if g else f's_mov_b32 s{S_XG+h}, {(v >> (32 * h)) & 0xffffffff:#x}')
    def own(self):
        D = int(ENV('ROTD_' + self.tag.upper(), ENV('ROTD', '2')))
        dl = {3: [3, -1, -1, -1], 2: [2, -1, -1, 0], 1: [1, -1, 0, 0]}[D]
        tbl = sum(((-d) % 16) << (8 * ((r + d) & 3)) for r, d in enumerate(dl))
        assert self.rot == 0 and self.NSTEP == 16
        if self.kord():
            return [f's_lshr_b32 s3, s{S_NT}, 3', f's_and_b32 s{S_KX}, s{S_NT}, 7', f's_lshl1_add_u32 s{S_T0}, s{S_KX}, s3',
                    f's_mul_i32 s{S_KW}, s{S_T0}, {64*self.ldw2}', f's_lshl_b32 s{S_KX}, s{S_T0}, {11 if self.xblk else 7}']
        return [f's_lshr_b32 s3, s{S_NT}, 3', f's_and_b32 s{S_KX}, s{S_NT}, 7', f's_lshl1_add_u32 s{S_KX}, s{S_KX}, s3',
                f's_sub_u32 s3, s{S_KX}, s{S_XG}', 's_lshl_b32 s3, s3, 3', f's_lshr_b32 s3, {tbl:#x}, s3',
                f's_add_u32 s3, s3, s{S_KX}', f's_and_b32 s{S_T0}, s3, 15',
                f's_mul_i32 s{S_KW}, s{S_KX}, {64*self.ldw2}', f's_lshl_b32 s{S_KX}, s{S_KX}, {11 if self.xblk else 7}']
    def xoff_rows(self, ld):
        a = self.a
        a.emit('v_lshrrev_b32 v3, 3, v1')
        a.emit(f's_lshr_b32 s10, s{S_XD}, 7')
        a.emit(f's_lshl_b32 s3, s{S_MT}, 7')
        a.emit('s_add_u32 s10, s10, s3')
        a.emit('v_add_u32 v3, s10, v3')
        xpitch(a, 5)
        a.emit('s_lshl_b32 s6, s5, 3')
        a.emit('v_mul_u32_u24 v3, s5, v3')
        a.emit('v_lshrrev_b32 v2, 4, v1')
        for j in range(4):
            d = self.VXD + j
            if j & 1:
                a.emit(f'v_add_u32 v{d}, 4, v2')
                a.emit(f'v_xor_b32 v{d}, v{d}, v10')
            else:
                a.emit(f'v_xor_b32 v{d}, v2, v10')
            a.emit(f'v_lshl_add_u32 v{d}, v{d}, 4, v3')
            if j < 3: a.emit('v_add_u32 v3, s6, v3')
    def xoff_blk(self, ld):
        a = self.a
        a.emit(f's_lshr_b32 s10, s{S_XD}, 11')
        a.emit(f's_lshl_b32 s3, s{S_MT}, 3')
        a.emit('s_add_u32 s10, s10, s3')
        a.emit(f's_mul_i32 s10, s10, {16*ld}')
        a.emit(f'v_lshl_add_u32 v{self.VXD}, v1, 4, s10')
        a.emit(f'v_add_u32 v{self.VXD+1}, {16*ld}, v{self.VXD}')
    def xdma(self, base, imm, sd, soff, blk):
        o = []
        for j in range(4):
            if blk:
                if not j & 1: o += [f's_add_u32 m0, s{base}, {imm + j*1024}', 's_nop 0']
                o.append(f'buffer_load_dwordx4 v{self.VXD+(j>>1)}, s[{sd}:{sd+3}], s{soff} offen offset:{(j&1)*1024} lds')
            else:
                o += [f's_add_u32 m0, s{base}, {imm + j*1024}', 's_nop 0', f'buffer_load_dwordx4 v{self.VXD+j}, s[{sd}:{sd+3}], s{soff} offen lds']
        return o
    def knext(self):
        if self.rot is None:
            return [f's_add_u32 s{S_KX}, s{S_KX}, {2048 if self.xblk else 128}', f's_add_u32 s{S_KW}, s{S_KW}, {64*self.ldw2}']
        if self.kord():
            tb = f's[{S_XG}:{S_XG+1}]'
            o = [f's_and_b32 s{S_KX}, s{S_XG}, 15']
            if self.ot or self.skip: o += [f's_cmp_eq_u32 s{S_KX}, s{S_T0}', f's_cselect_b32 s{S_KW}, 4, 0', f's_lshr_b64 {tb}, {tb}, s{S_KW}', f's_and_b32 s{S_KX}, s{S_XG}, 15']
            if self.skip and not self.ot: o += ['s_sub_u32 s92, s92, 1', f's_cselect_b32 s{S_KX}, s{S_T0}, s{S_KX}', f's_cselect_b32 s{S_KW}, 0, 4'] + ([f's_add_u32 s{S_KX}, s{S_KX}, s93', f's_and_b32 s{S_KX}, s{S_KX}, 15'] if KSH else [])
            return o + [f's_lshr_b64 {tb}, {tb}, ' + (f's{S_KW}' if self.skip and not self.ot else '4'), f's_mul_i32 s{S_KW}, s{S_KX}, {64*self.ldw2}', f's_lshl_b32 s{S_KX}, s{S_KX}, {11 if self.xblk else 7}']
        lc = self.rot; C = 1 << lc; N = self.NSTEP
        o = [f's_add_u32 s{S_KT}, s{S_KT}, 1']
        if self.ot: o += [f's_cmp_eq_u32 s{S_KT}, s{S_T0}', f's_addc_u32 s{S_KT}, s{S_KT}, 0']
        D = int(ENV('ROTD_' + self.tag.upper(), ENV('ROTD', '2')))
        dl = {3: [3, -1, -1, -1], 2: [2, -1, -1, 0], 1: [1, -1, 0, 0]}[D]
        tbl = sum((((d * C) % N) << (8 * i)) for i, d in enumerate(dl))
        if lc: o += [f's_lshr_b32 s{S_KX}, s{S_KT}, {lc}', f's_sub_u32 s{S_KX}, s{S_KX}, s{S_XG}']
        else: o += [f's_sub_u32 s{S_KX}, s{S_KT}, s{S_XG}']
        o += [f's_lshl_b32 s{S_KX}, s{S_KX}, 3',
              f's_lshr_b32 s{S_KX}, {tbl:#x}, s{S_KX}',
              f's_and_b32 s{S_KX}, s{S_KX}, 255',
              f's_add_u32 s{S_KX}, s{S_KX}, s{S_KT}']
        if N & (N - 1) == 0: o += [f's_and_b32 s{S_KX}, s{S_KX}, {N - 1}']
        else: o += [f's_sub_u32 s{S_KW}, s{S_KX}, {N}', f's_cselect_b32 s{S_KX}, s{S_KX}, s{S_KW}']
        o += [f's_mul_i32 s{S_KW}, s{S_KX}, {64*self.ldw2}', f's_lshl_b32 s{S_KX}, s{S_KX}, {11 if self.xblk else 7}']
        return o
    def panels_of(self, t): return self.panels
    def issue_x(self, bx, bh, imm, kx):
        o = self.xdma(bx, imm, SX, kx, self.xblk)
        if self.halo is not None:
            o.append(f's_add_u32 m0, s{S_HD}, {bh}')
            o.append('s_mov_b64 exec, s[14:15]')
            o.append(f'buffer_load_dwordx4 v{self.VXH}, s[{SX}:{SX+3}], s{kx} offen lds')
            o.append('s_mov_b64 exec, -1')
        return o
    def issue_w(self, t, bw, imm):
        o = []
        for pn, goff in enumerate(self.panels_of(t)):
            for i in range(2):
                o.append(f's_add_u32 m0, s{bw}, {imm+pn*8192+i*1024}')
                o.append((goff if str(goff).startswith('s_') else f's_add_u32 s4, s{S_KW}, {goff}') if i == 0 else 's_nop 0')
                o.append(f'buffer_load_dwordx4 v{self.VWD+i}, s[{SW}:{SW+3}], s4 offen lds')
        if self.half:
            o += [f's_add_u32 m0, s{bw}, {imm+len(self.panels)*8192}', 's_nop 0',
                  f'buffer_load_dwordx4 v{self.VXH}, s[{SW}:{SW+3}], s{S_KW} offen lds']
        return o
    def issue(self, t):
        o = [f's_add_u32 s3, s{S_SLOT}, s{S_XD}']
        o += self.issue_x(3, f's{S_SLOT}', 0, S_KX)
        o.append(f's_add_u32 s3, s{S_SLOT}, s{S_WD}')
        o += self.issue_w(t, 3, 0)
        o += self.knext()
        o.append(f's_add_u32 s{S_SLOT}, s{S_SLOT}, {self.STAGE}')
        o.append(f's_cmp_eq_u32 s{S_SLOT}, {self.S*self.STAGE}')
        o.append(f's_cselect_b32 s{S_SLOT}, 0, s{S_SLOT}')
        return o
    def run(self, variant='', tail_issue=None, ntail_vm=0, final=None, post=(), dep=None, tail_late=0, start=None, extra=None, exfirst=False):
        a = self.a; N = self.NSTEP; d = self.S - 1
        tag = self.tag + variant
        nx = 4 + (1 if self.halo is not None else 0)
        nw = lambda t: 2 * len(self.panels_of(t)) + (1 if self.half else 0)
        seq = []
        early = EARLY and self.tag == 'w2'
        pchk = EARLY - 3 - d - 1; piss = pchk - d + 1 - int(ENV('PEARLY', '0'))
        def em(o):
            for x in o:
                if 'nodma' in DBG and x.endswith(' lds'): continue
                a.emit(x)
        def after(t): return len(seq) - 1 - max(i for i, x in enumerate(seq) if x == t)
        def wait(n):
            assert n <= 63, n
            a.emit(f's_waitcnt vmcnt({n})')
        if dep is None:
            for t in range(2): em(self.issue(t)); seq += [t] * (nx + nw(t))
            if start: seq += ['S'] * start()
            wait(after(0))
            a.emit('s_barrier')
            for t in range(2, d): em(self.issue(t)); seq += [t] * (nx + nw(t))
        else:
            prev = {'attn': 'w2', 'wo': 'attn', 'w1': 'wo', 'w2': 'w1'}[self.tag]
            assert 'attn' not in EBAR
            ot = self.ot
            if ot: em(self.own() + [f's_mov_b32 s88, s{S_KX}'] + self.issue_w(0, S_WD, 0) + self.knext()); seq.extend([0] * nw(0))
            a.lines += getattr(self, 'after_own', [])
            dep_pre(a, self.tag)
            if prev in EBAR: a.emit('s_barrier')
            xw = 1 if self.tag in ENV('XW', 'x').split(',') and not hasattr(self, 'P1') else 0
            def prew(ts):
                for t in ts:
                    a.emit(f's_mov_b32 s{88+t}, s{S_KX}')
                    em(self.issue_w(t, S_WD, t * self.STAGE) + self.knext()); seq.extend([t] * nw(t))
            late = int(ENV('LATE_' + self.tag.upper(), '2'))
            if ot: xw = 1
            prew(range(ot, d + xw - late))
            self.npre = len(seq)
            a.emit(f's_mov_b32 s{S_SLOT}, {0 if xw else d * self.STAGE}')
            wag = int(ENV('WAG_' + self.tag.upper(), '0'))
            dep((lambda: prew(range(d + xw - late, d + xw - wag))) if late else None)
            if ot and self.halo is not None: em(self.issue_x(S_XD, self.hx, 0, 88)[-4:]); seq.append(0)
            for t in range(ot, d + xw):
                if t >= d + xw - wag: prew([t])
                em(self.issue_x(S_XD, t * self.STAGE, t * self.STAGE, 88 + t)); seq += [t] * nx
            if ot and ENV('OPRIO'): a.emit('s_setprio 0')
            wait(after(ot))
            if self.tag == 'w2': lstamp(a, 2)
            a.emit('s_barrier')
            if early: late_flag(a)
        ev = [None] * self.ot
        for i in range(self.ot, N):
            t = i + d
            if t in seq: t = N + 9
            if early and i == piss: seq += ['P']
            if t < N: seq += [t] * (nx + nw(t)) + ['Q'] * sum(x.startswith('buffer_') for x in post)
            ex = extra(i) if extra else []
            tl = tail_issue is not None and t == N - 1 + tail_late
            if exfirst: seq += ['E'] * sum(x.startswith('buffer_') for x in ex)
            if tl: seq += ['T'] * ntail_vm
            if not exfirst: seq += ['E'] * sum(x.startswith('buffer_') for x in ex)
            ev.append(((nw(t) if t < N else -1, after(i + 1) if i + 1 < N else -1, tl, early and i == piss, early and i == pchk, tuple(ex)), t))
        i = self.ot; nl = 0
        while i < N:
            j = i
            while j + 1 < N and ev[j + 1][0] == ev[i][0]: j += 1
            n = j - i + 1
            (k, w, tl, pi, pc, ex), t = ev[i]
            if n >= 3:
                nl += 1
                a.emit(f's_mov_b32 s{S_CNT}, {n}')
                a.label(f'L_{tag}_ld{nl}')
            else: j = i
            if pi: a.emit(f'buffer_load_dword v13, v12, s[{SO}:{SO+3}], s86 offen sc1')
            if t < N:
                em(self.issue(t)); em(post)
            if exfirst: em(ex)
            if tl and not ('notail' in DBG and self.tag == 'w1'):
                if ENV('FPRIO'): a.emit('s_setprio 3')
                tail_issue()
                if ENV('FPRIO'): a.emit('s_setprio 0')
            if not exfirst: em(ex)
            if w >= 0: wait(w)
            elif final and 'nofinal' not in DBG:
                if ENV('FPRIO'): a.emit('s_setprio 3')
                final()
                if ENV('FPRIO'): a.emit('s_setprio 0')
            if pc: late_check(a)
            a.emit('s_barrier')
            if n >= 3:
                a.emit(f's_sub_u32 s{S_CNT}, s{S_CNT}, 1')
                a.emit(f's_cmp_lg_u32 s{S_CNT}, 0')
                a.emit(f's_cbranch_scc1 L_{tag}_ld{nl}')
            i = j + 1

XD = ONE and ENV('SPLIT', '0') == '0' and ENV('XD', '1') == '1'
VW = MEGA and ENV('SPLIT', '0') == '0' and ENV('VW', '0') == '1'
NV1 = int(ENV('NV1', '16')); NV2 = int(ENV('NV2', '12')); NVO = int(ENV('NVO', '11'))
S_TB = 85
def rot_table(a, sd, smt, snt, tag):
    D = int(ENV('ROTD_' + tag.upper(), ENV('ROTD', '2')))
    dl = {3: [3, -1, -1, -1], 2: [2, -1, -1, 0], 1: [1, -1, 0, 0], 0: [0, 0, 0, 0]}[D]
    tbl = sum((d & 255) << (8 * i) for i, d in enumerate(dl))
    a.emit(f's_add_u32 s3, s{smt}, s{snt}')
    a.emit('s_lshl_b32 s3, s3, 3')
    a.emit(f's_lshl_b32 s{sd}, {tbl:#x}, s3')
    a.emit('s_sub_u32 s3, 0, s3')
    a.emit(f's_lshr_b32 s3, {tbl:#x}, s3')
    a.emit(f's_or_b32 s{sd}, s{sd}, s3')

def kpos(N, t, sd, tb=S_TB, halves=True, q=None):
    H, p, add = (28, t >> 1, 28 * (t & 1)) if N == 56 and halves else (N, t, 0)
    o = [f's_bfe_i32 s{sd}, s{tb}, {0x80000 + 8 * (p & 3):#x}', f's_add_i32 s{sd}, s{sd}, {p + add}']
    if p == 0: o += [f's_cmp_lt_i32 s{sd}, {add}', f's_cselect_b32 s{sd}, {H - 1 + add}, s{sd}']
    if p + 3 >= H: o += [f's_sub_u32 s3, s{sd}, {H}', f's_cmp_ge_i32 s{sd}, {H + add}', f's_cselect_b32 s{sd}, s3, s{sd}']
    if q is not None:
        if N == 16 or 1 <= t <= 12: o += [f's_add_u32 s{sd}, s{sd}, s{q}', f's_and_b32 s{sd}, s{sd}, 15']
        elif t <= 16 or t + 3 >= N: o += [f's_add_u32 s3, s{sd}, s{q}', 's_and_b32 s3, s3, 15', f's_cmp_lt_u32 s{sd}, 16', f's_cselect_b32 s{sd}, s3, s{sd}']
    return o

S_Q = 86
MROT = ENV('MROT', '1') == '1'
def rot_q(a, sd, smt, sh=0):
    a.emit(f's_and_b32 s{sd}, s{smt}, {3 if MROT else 0}')
    a.emit(f's_lshl_b32 s{sd}, s{sd}, {2 + sh}')

TSCH = {'wo': [int(c) for c in ENV('TSO', '000')], 'w2': [int(c) for c in ENV('TS2', '000')]}
def tail_parks(nxt, sw, mk=None, sch=None):
    if not XD: return None
    sch = sch or TSCH[nxt]; N = 16 if nxt == 'wo' else 56
    def extra(i):
        if i < 13 or not sum(sch): return []
        a = Asm()
        if i == 13:
            if mk: mk(a)
            a.emit('s_and_b32 s5, s2, 3')
            a.emit('s_lshl_b32 s5, s5, 2')
            a.emit(f's_and_b32 s6, s{S_CU}, 3')
            a.emit('s_add_u32 s5, s5, s6')
            a.emit('s_and_b32 s6, s2, 4')
            a.emit('s_lshl_b32 s6, s6, 1')
            a.emit(f's_lshr_b32 s7, s{S_CU}, 2')
            a.emit('s_add_u32 s6, s6, s7')
            rot_table(a, S_TB, 5, 6, nxt)
            rot_q(a, S_Q, 5)
            a.emit(f's_add_u32 s5, s5, s{S_WV}')
            a.emit('s_and_b32 s5, s5, 3')
            wvoff(a, 16, 5, 6, 2048)
        o = [l.strip() for l in a.lines]
        for t in range(sum(sch[:i - 13]), sum(sch[:i - 12])):
            o += kpos(N, t, 4, S_TB, False, S_Q) + ['s_lshl_b32 s4, s4, 17']
            o += [f'buffer_load_dwordx4 v[{128+8*t+4*j}:{131+8*t+4*j}], v{16+j}, s[{sw}:{sw+3}], s4 offen' for j in range(2)]
        return o
    return extra

def vreg(tag, t):
    if tag == 'wo': return (128 + 8 * (t - 5), False) if 5 <= t < 5 + NVO else None
    if t & 1: return None
    p = t >> 1
    if p < NV1: return (128 + 8 * p, True)
    if p < NV1 + NV2: return (32 + 8 * (p - NV1), False)
    return None

def wrow(a, sqw, ns):
    if ns:
        a.emit('v_bfe_u32 v3, v1, 3, 2')
        a.emit('v_lshrrev_b32 v2, 5, v1')
        a.emit('v_lshl_add_u32 v3, v2, 4, v3')
        a.emit(f's_and_b32 s10, s{sqw}, 2')
        a.emit(f's_add_u32 s10, s10, s{sqw}')
        a.emit('v_lshl_add_u32 v3, s10, 3, v3')
    else:
        a.emit('v_lshrrev_b32 v3, 3, v1')
        a.emit(f's_lshl_b32 s10, s{sqw}, 4')
        a.emit('v_add_u32 v3, s10, v3')

def wvoff(a, vd, sqw, snt, ldw2, ns=False):
    nr = ns and NSR; ns = ns and not NSR
    wrow(a, sqw, ns)
    a.emit(f'v_mul_u32_u24 v3, {ldw2}, v3')
    a.emit('v_lshrrev_b32 v2, 3, v1')
    a.emit(f'v_and_b32 v2, {6 if nr else 2}, v2')
    a.emit('v_xor_b32 v2, v2, v10')
    a.emit(f's_lshl_b32 s10, s{snt}, 7')
    a.emit('v_add_u32 v3, s10, v3')
    a.emit(f'v_lshl_add_u32 v{vd}, v2, 4, v3')
    if not nr: a.emit('v_xor_b32 v2, 4, v2')
    a.emit(f'v_add_u32 v3, {(4 if ns else 8)*ldw2}, v3')
    a.emit(f'v_lshl_add_u32 v{vd+1}, v2, 4, v3')

def park(N, t, r, vo, sw):
    return kpos(N, t, 4) + ['s_lshl_b32 s4, s4, 17'] + [f'buffer_load_dwordx4 v[{r+4*i}:{r+4*i+3}], v{vo+i}, s[{sw}:{sw+3}], s4 offen' for i in range(2)]

class ULoader(Loader):
    def run(self, variant='', tail_issue=None, ntail_vm=0, final=None, post=(), dep=None):
        a = self.a; N = self.NSTEP; d = self.S - 1; tag = self.tag
        seq = []
        def em(o):
            for x in o:
                if 'nodma' in DBG and x.endswith(' lds'): continue
                a.emit(x)
        def after(t): return len(seq) - 1 - max(i for i, x in enumerate(seq) if x == t)
        def wait(n, lg=False):
            assert n <= 63, n
            a.emit(f's_waitcnt vmcnt({n})' + (' lgkmcnt(0)' if lg else ''))
        def iw(t):
            sl = (t % self.S) * self.STAGE; v = vreg(tag, t)
            if v:
                em([f'v_add_u32 v11, {sl}, v14'] + [f'ds_write_b128 v11, v[{v[0]+4*i}:{v[0]+4*i+3}] offset:{1024*i}' for i in range(2)])
            else:
                em([f's_lshl_b32 s{S_KW}, s{S_KX}, 17'] + [x for x in self.issue_w(t, S_WD, sl)])
                seq.extend([t] * 2)
        def ix(t, k):
            em(self.issue_x(S_XD, None, (t % self.S) * self.STAGE, k)); seq.extend([t] * 4)
        rot_table(a, S_TB, S_MT, S_NT, tag)
        a.emit(f'v_lshl_add_u32 v14, v1, 4, s{S_WD}')
        dep_pre(a, tag)
        for t in range(d):
            em(kpos(N, t, S_KX)); iw(t)
            a.emit(f's_lshl_b32 s{88+t}, s{S_KX}, 11')
        for t in range(d, N):
            v = vreg(tag, t)
            if v and not v[1]:
                em(park(N, t, v[0], self.VWD, SW)); seq.extend(['V'] * 2)
        self.npre = len(seq)
        dep()
        for t in range(d): ix(t, 88 + t)
        wait(after(0), True)
        if tag == 'w2': lstamp(a, 2)
        a.emit('s_barrier')
        for i in range(N):
            t = i + d
            if i % 4 == 0 and post and t < N:
                a.emit('s_waitcnt lgkmcnt(0)')
                em(post)
            if t < N:
                em(kpos(N, t, S_KX)); iw(t)
                a.emit(f's_lshl_b32 s{S_KX}, s{S_KX}, 11')
                ix(t, S_KX)
            if t == N - 1: tail_issue(); seq.extend(['T'] * ntail_vm)
            if i + 1 < N: wait(after(i + 1), not post or t == N)
            else: final()
            a.emit('s_barrier')

EBAR = ENV('EBAR', 'x').split(',')
S_FL = 87
def dep_pre(a, kind, part=None, n=0):
    if ONE and kind in ('wo', 'w1'):
        ld = f'buffer_load_dword v12, v17, s[{SC}:{SC+3}], 0 offen sc1' if kind == 'wo' else f'buffer_load_dwordx4 v[12:15], v17, s[{SO}:{SO+3}], s3 offen sc1'
        if part == 1: a.emit(f's_waitcnt vmcnt({n})')
        a.emit(f's_add_u32 s3, s{S_LAYER}, s{S_WV}')
        a.emit('s_cmp_lg_u32 s3, 4')
        a.emit(f's_cbranch_scc1 L_{kind}_chk{part}')
        def cmp():
            if kind == 'wo': a.emit('v_cmp_ne_u32 vcc, 0x01010101, v12')
            else:
                a.emit('v_and_b32 v12, v12, v13')
                a.emit('v_and_b32 v14, v14, v15')
                a.emit('v_and_b32 v12, v12, v14')
                a.emit('v_cmp_ne_u32 vcc, 1, v12')
        if part == 1:
            cmp()
            a.emit(f's_cbranch_vccz L_{kind}_chk{part}')
        if True:
            if kind == 'wo': a.emit(f's_load_dwordx2 s[{SC}:{SC+1}], s[0:1], 72')
            else: srd(a, SO, 'ws0', WS_FL, FLS)
            if kind == 'wo':
                a.emit('s_waitcnt lgkmcnt(0)')
                a.emit(f's_and_b32 s{SC+1}, s{SC+1}, 0xffff')
                a.emit(f's_mov_b32 s{SC+2}, 256')
                a.emit(f's_mov_b32 s{SC+3}, 0x00020000')
                a.emit('v_lshlrev_b32 v17, 2, v1')
            else:
                a.emit('v_lshrrev_b32 v2, 2, v1')
                a.emit('v_and_b32 v3, 3, v1')
                a.emit('v_lshlrev_b32 v2, 11, v2')
                a.emit('v_lshl_add_u32 v17, v3, 4, v2')
                a.emit(f's_and_b32 s3, s{S_NT}, {REP - 1}')
                a.emit('s_lshl_b32 s3, s3, 7')
        if part == 0: a.emit(ld)
        else:
            a.emit(f's_mov_b32 s{S_CNT}, 0x100000')
            a.label(f'L_{kind}_chkl')
            a.emit(ld)
            a.emit(f's_sub_u32 s{S_CNT}, s{S_CNT}, 1')
            a.emit(f's_cbranch_scc1 L_{kind}_chk{part}')
            a.emit('s_waitcnt vmcnt(0)')
            cmp()
            a.emit(f's_cbranch_vccnz L_{kind}_chkl')
        a.label(f'L_{kind}_chk{part}')

def dep_wait(a, kind, halo=False, skip_first=False, first=None, preg=None, postf=None, pref=None, defer=False, obar=False):
    if skip_first and not ONE:
        a.emit(f's_cmp_eq_u32 s{S_TSI}, 1')
        a.emit(f's_cbranch_scc1 L_{kind}_dep')
    srd(a, SO, 'ws0', WS_FL, FLS)
    if ONE and kind == 'wo' and first:
        a.emit(f's_cmp_lg_u32 s{S_LAYER}, 0')
        a.emit(f's_cbranch_scc1 L_{kind}_nofirst')
        first()
        a.label(f'L_{kind}_nofirst')
    a.emit(f's_lshl4_add_u32 s3, s{S_TSI}, s{S_MT}')
    a.emit(f's_and_b32 s4, s{S_NT}, {REP - 1}')
    a.emit('s_lshl4_add_u32 s3, s3, s4')
    a.emit('s_lshl_b32 s3, s3, 7')
    a.emit('s_sub_u32 s3, s3, 32768')
    a.emit('v_lshlrev_b32 v11, 7, v1')
    if halo:
        a.emit(f's_cmp_eq_u32 s{S_MT}, 0')
        a.emit('s_cselect_b32 s4, 15, 31')
        a.emit('v_and_b32 v2, 16, v1')
        a.emit('v_lshl_add_u32 v11, v2, 2, v11')
        a.emit('v_and_b32 v2, s4, v1')
    else: a.emit('v_and_b32 v2, 15, v1')
    a.emit('v_lshlrev_b32 v2, 2, v2')
    a.emit('v_mov_b32 v3, 1')
    a.emit(f's_mov_b32 s{S_CNT}, 0x100000')
    if kind == LSTK == 'wo': lstamp(a, 2)
    if pref: pref()
    a.emit(f's_cmp_lg_u32 s{S_WV}, 4')
    a.emit('s_barrier')
    if kind == 'w2': lstamp(a, 0, True)
    if kind == LSTK == 'w1': lstamp(a, 0)
    a.emit(f's_cbranch_scc1 L_{kind}_{"nofl" if postf else "dep"}')
    a.emit(f's_mov_b32 exec_lo, {((1 << REP) - 1) * (0x10001 if halo else 1):#x}')
    a.emit('s_mov_b32 exec_hi, 0')
    a.emit(f'buffer_store_dword v3, v11, s[{SO}:{SO+3}], s{S_FL} offen sc1')
    a.emit('s_mov_b64 exec, -1')
    PSP = int(ENV('PSP', '0'))
    if defer:
        a.label(f'L_{kind}_nofl')
        a.emit(f's_mov_b32 s{S_Q}, s3')
        postf()
        return
    if postf and PSP:
        a.label(f'L_{kind}_nofl')
        a.emit('s_mov_b32 s5, s3')
        i0 = len(a.lines); postf(); ls = a.lines[i0:]; del a.lines[i0:]
        dma = [i for i, l in enumerate(ls) if 'buffer_load' in l]
        poll = lambda k: f'buffer_load_dword v{24+k}, v2, s[{SO}:{SO+3}], s5 offen sc1'
        for i, l in enumerate(ls):
            a.lines.append(l)
            for k in range(3):
                if dma and i == dma[-1 - PSP * (3 - k)]: a.emit(poll(k))
        a.emit(f's_cmp_lg_u32 s{S_WV}, 4')
        a.emit(f's_cbranch_scc1 L_{kind}_dep')
        def chk(k, n, last=False):
            a.emit(poll((k + 3) & 3))
            a.emit(f's_waitcnt vmcnt({n})')
            a.emit(f'v_cmp_ne_u32 vcc, 1, v{24+k}')
            a.emit(f's_cbranch_vccnz L_{kind}_poll' if last else f's_cbranch_vccz L_{kind}_dep')
        for k in range(3): chk(k, 3 + PSP * (3 - k))
        a.label(f'L_{kind}_poll')
        a.emit(f's_sub_u32 s{S_CNT}, s{S_CNT}, 1')
        a.emit(f's_cbranch_scc1 L_{kind}_dep')
        for k in (3, 0, 1, 2): chk(k, 3, k == 2)
    else:
        if postf:
            if obar:
                a.emit(f's_waitcnt vmcnt({obar})')
                a.emit(f's_branch L_{kind}_obar')
            a.label(f'L_{kind}_nofl')
            if obar:
                a.emit(f's_waitcnt vmcnt({obar - 1})')
                a.label(f'L_{kind}_obar')
                a.emit('s_barrier')
                if ENV('OPRIO'): a.emit(f"s_setprio {ENV('OPRIO')}")
            a.emit('s_mov_b32 s5, s3')
            postf()
            a.emit('s_mov_b32 s3, s5')
            a.emit(f"s_cmp_lg_u32 s{S_WV}, {ENV('PW_' + kind.upper(), '4')}")
            a.emit(f's_cbranch_scc1 L_{kind}_dep')
        if kind == LSTK == 'w1': lstamp(a, 1)
        a.label(f'L_{kind}_poll')
        a.emit(f'buffer_load_dword v3, v2, s[{SO}:{SO+3}], s3 offen sc1')
        a.emit(f's_sub_u32 s{S_CNT}, s{S_CNT}, 1')
        a.emit(f's_cbranch_scc1 L_{kind}_dep')
        a.emit('s_waitcnt vmcnt(0)')
        a.emit('v_cmp_ne_u32 vcc, 1, v3')
        a.emit(f's_cbranch_vccnz L_{kind}_poll')
    a.label(f'L_{kind}_dep')
    if kind == 'w2': lstamp(a, 1, True)
    if kind == LSTK == 'wo': lstamp(a, 3)
    if kind == LSTK == 'w1':
        lstamp(a, 2)
        if TS: a.emit(f's_mov_b32 s50, s{S_CNT}')
    if preg: preg()
    if preg and kind == 'w2': lstamp(a, 2, True)
    a.emit('s_barrier')

def xpoll(a, lab, sd, so, v, vd):
    a.emit(f's_cmp_lg_u32 s{S_WV}, 4')
    a.emit(f's_cbranch_scc1 {lab}go')
    a.emit('s_setprio 3')
    a.label(f'{lab}poll')
    a.emit(f'buffer_load_dword v{vd}, v{v}, s[{sd}:{sd+3}], s{so} offen sc1')
    a.emit(f's_sub_u32 s{S_CNT}, s{S_CNT}, 1')
    a.emit(f's_cbranch_scc1 {lab}go')
    a.emit('s_waitcnt vmcnt(0)')
    a.emit(f'v_cmp_ne_u32 vcc, 1, v{vd}')
    a.emit(f's_cbranch_vccnz {lab}poll')
    a.label(f'{lab}go')
    a.emit('s_setprio 0')

def ef_poll(a, lab, v, prio=False):
    a.emit(f"s_cmp_lg_u32 s{S_WV}, {ENV('PW_W2', '4')}")
    a.emit(f's_cbranch_scc1 {lab}_ok')
    if prio: a.emit('s_setprio 3')
    a.emit(f's_mov_b32 s{S_CNT}, 0x100000')
    a.label(lab)
    a.emit(f'buffer_load_dword v3, v{v}, s[{SO}:{SO+3}], s{S_Q} offen sc1')
    a.emit(f's_sub_u32 s{S_CNT}, s{S_CNT}, 1')
    a.emit(f's_cbranch_scc1 {lab}_ok')
    a.emit('s_waitcnt vmcnt(0)')
    a.emit('v_cmp_ne_u32 vcc, 1, v3')
    a.emit(f's_cbranch_vccnz {lab}')
    a.label(f'{lab}_ok')
    if prio: a.emit('s_setprio 0')

def ef_flag(a, lab, off):
    a.emit(f's_cmp_lg_u32 s{S_WV}, 4')
    a.emit('s_barrier')
    a.emit(f's_cbranch_scc1 {lab}')
    a.emit(f's_mov_b64 exec, {(1 << REP) - 1:#x}')
    a.emit(f'buffer_store_dword v13, v11, s[{SO}:{SO+3}], s{S_FL} offen offset:{off} sc1')
    a.emit('s_mov_b64 exec, -1')
    a.label(lab)

def dep_ef(a, poste, preh, preg):
    srd(a, SO, 'ws0', WS_FL, FLS)
    a.emit(f's_lshl4_add_u32 s3, s{S_TSI}, s{S_MT}')
    a.emit(f's_and_b32 s4, s{S_NT}, {REP - 1}')
    a.emit('s_lshl4_add_u32 s3, s3, s4')
    a.emit('s_lshl_b32 s3, s3, 7')
    a.emit(f's_sub_u32 s{S_Q}, s3, 32768')
    a.emit('v_lshlrev_b32 v11, 7, v1')
    a.emit('v_and_b32 v2, 15, v1')
    a.emit('v_lshlrev_b32 v2, 2, v2')
    a.emit(f's_bitcmp1_b32 s{S_NT}, 0')
    a.emit('s_cselect_b32 s4, 96, 64')
    a.emit('v_and_b32 v12, 28, v2')
    a.emit('v_add_u32 v12, s4, v12')
    a.emit('v_mov_b32 v13, 1')
    ef_flag(a, 'L_w2_nofe', 64)
    lstamp(a, 0, True)
    poste()
    if ENV('EFP', '1') == '0': ef_poll(a, 'L_w2_pe', 12)
    preh()
    a.emit('s_barrier')
    if ENV('EFP', '1') != '0': ef_poll(a, 'L_w2_pe', 12, ENV('EFP') == '2')
    lstamp(a, 1, True)
    preg()
    ef_flag(a, 'L_w2_nofl', 0)

def dep_late(a, kind, part, n=0):
    ld = f'buffer_load_dword v3, v2, s[{SO}:{SO+3}], s{S_Q} offen sc1'
    if part == 0:
        a.emit(f's_cmp_eq_u32 s{S_WV}, 4')
        a.emit(f's_cselect_b32 s{SO+2}, s{SO+2}, 0')
        a.emit(ld)
        return
    a.emit(f's_cmp_lg_u32 s{S_WV}, 4')
    a.emit(f's_cbranch_scc1 L_{kind}_dep')
    a.emit(f's_waitcnt vmcnt({n})')
    a.emit('v_cmp_ne_u32 vcc, 1, v3')
    a.emit(f's_cbranch_vccz L_{kind}_dep')
    a.label(f'L_{kind}_poll')
    a.emit(ld)
    a.emit(f's_sub_u32 s{S_CNT}, s{S_CNT}, 1')
    a.emit(f's_cbranch_scc1 L_{kind}_dep')
    a.emit('s_waitcnt vmcnt(0)')
    a.emit('v_cmp_ne_u32 vcc, 1, v3')
    a.emit(f's_cbranch_vccnz L_{kind}_poll')
    a.label(f'L_{kind}_dep')
    if not EF: lstamp(a, 1, True)
    lstamp(a, 2, True)
    if TS and ENV('LST') != 'x': a.emit(f's_mov_b32 s58, s{S_CNT}')

LGO = 163840 - 64
def dep_early(a):
    srd(a, SO, 'ws0', WS_FL, FLS)
    a.emit(f's_lshl_b32 s86, s{S_TSI}, 12')
    a.emit(f's_lshl_b32 s4, s{S_MT}, 8')
    a.emit('s_add_u32 s86, s86, s4')
    a.emit('s_sub_u32 s86, s86, 4096')
    a.emit('v_and_b32 v12, 15, v1')
    a.emit('v_lshlrev_b32 v12, 2, v12')
    a.emit('v_mov_b32 v3, 0')
    a.emit(f'v_mov_b32 v2, {LGO}')
    a.emit('ds_write_b32 v2, v3')
    a.emit('v_mov_b32 v13, 1')
    a.emit(f's_mov_b32 s{S_CNT}, 0x100000')
    a.emit(f's_cmp_lg_u32 s{S_WV}, 4')
    a.emit('s_waitcnt lgkmcnt(0)')
    a.emit('s_barrier')
    a.emit('s_cbranch_scc1 L_w2_go')
    lstamp(a, 0)
    a.emit('s_mov_b64 exec, 1')
    a.emit(f'buffer_store_dword v13, off, s[{SO}:{SO+3}], s{S_FL} sc1')
    a.emit('s_mov_b64 exec, -1')
    a.label('L_w2_poll')
    a.emit(f'buffer_load_dword v3, v12, s[{SO}:{SO+3}], s86 offen sc1')
    a.emit(f's_sub_u32 s{S_CNT}, s{S_CNT}, 1')
    a.emit('s_cbranch_scc1 L_w2_rel')
    a.emit('s_waitcnt vmcnt(0)')
    a.emit('v_cmp_eq_u32 vcc, 0, v3')
    a.emit('s_cbranch_vccnz L_w2_poll')
    a.label('L_w2_rel')
    a.emit('ds_write_b32 v2, v13')
    lstamp(a, 1)
    a.emit('s_branch L_w2_dep')
    a.label('L_w2_go')
    a.emit(f's_mov_b32 s{S_CNT}, 0x2000000')
    a.label('L_w2_gol')
    a.emit('ds_read_b32 v3, v2')
    a.emit(f's_sub_u32 s{S_CNT}, s{S_CNT}, 1')
    a.emit('s_cbranch_scc1 L_w2_dep')
    a.emit('s_waitcnt lgkmcnt(0)')
    a.emit('v_cmp_eq_u32 vcc, 0, v3')
    a.emit('s_cbranch_vccnz L_w2_gol')
    a.label('L_w2_dep')

def late_flag(a):
    a.emit(f's_cmp_lg_u32 s{S_WV}, 4')
    a.emit('s_cbranch_scc1 L_w2_nolate')
    a.emit('v_mov_b32 v3, 2')
    a.emit('s_mov_b64 exec, 1')
    a.emit(f'buffer_store_dword v3, off, s[{SO}:{SO+3}], s{S_FL} sc1')
    a.emit('s_mov_b64 exec, -1')
    a.label('L_w2_nolate')

def late_check(a):
    a.emit(f's_mov_b32 s{S_CNT}, 0x100000')
    a.label('L_w2_lchk')
    a.emit('v_cmp_ne_u32 vcc, 2, v13')
    a.emit('s_cbranch_vccz L_w2_lok')
    a.emit(f'buffer_load_dword v13, v12, s[{SO}:{SO+3}], s86 offen sc1')
    a.emit(f's_sub_u32 s{S_CNT}, s{S_CNT}, 1')
    a.emit('s_waitcnt vmcnt(0)')
    a.emit('s_cbranch_scc0 L_w2_lchk')
    a.label('L_w2_lok')
    if TS: a.emit(f's_mov_b32 s58, s{S_CNT}')
    lstamps_out(a, 'w2')

def gbar(a, kind):
    if not MEGA or (EARLY and kind == 'w2'): return
    if kind == 'attn':
        a.emit(f's_cmp_eq_u32 s{S_LAYER}, 0')
        a.emit('s_cbranch_scc1 L_attn_nog')
    a.emit('s_barrier')
    if kind == 'attn': a.label('L_attn_nog')

def next_phase(a, kind, comp=False):
    nxt = {'attn': 'wo', 'wo': 'w1', 'w1': 'w2', 'w2': 'attn'}[kind]
    if kind == 'w2':
        a.emit(f's_mov_b32 s{S_LAYER}, 1')
        a.emit(f's_add_u32 s12, s22, {WS_X2}')
        a.emit('s_addc_u32 s13, s23, 0')
        a.emit(f's_add_u32 s34, s22, {LSTR}')
        a.emit('s_addc_u32 s35, s23, 0')
    a.emit(f's_add_u32 s{S_TSI}, s{S_TSI}, 1')
    a.emit(f's_branch L_{nxt}_' + ('compute' if comp and NV and nxt == 'w2' else 'body'))

def last_check(a, kind):
    if kind == 'w2' or (kind == 'attn' and not ONE):
        a.emit(f's_cmp_eq_u32 s{S_LAYER}, {0 if kind == "attn" else 1}')
        a.emit(f's_cbranch_scc1 L_{kind}_end')

def compute_end(a, kind):
    if not MEGA:
        stamps_out(a, kind)
        a.emit('s_endpgm')
        return
    if not TS and not (SKL and kind == 'w2'): last_check(a, kind)
    if TE and kind == 'w2' and not SKL: a.lines[-1] = a.lines[-1].replace('L_w2_end', 'L_fin')
    if kind in EBAR: a.emit('s_barrier')
    import pads
    for x in pads.chain({'attn': 'he', 'wo': 'hw'}.get(kind)): a.emit(x)
    if not ((EARLY or NV) and kind == 'w1'):
        a.emit('s_waitcnt lgkmcnt(0)' if EF and kind == 'w1' else f"s_waitcnt vmcnt({int(SF and kind in ('wo', 'w2'))}) lgkmcnt(0)")
        a.emit('s_barrier')
    if TS:
        stamps_out(a, kind)
        if ENV('DIAG') and kind == 'w2': diag(a)
        last_check(a, kind)
    stamp(a, 0, nowait=True)
    next_phase(a, kind, True)

def fin(a):
    if not TE: return
    a.label('L_fin')
    a.emit('s_waitcnt vmcnt(0)')
    a.emit('s_memrealtime s[92:93]')
    srd(a, SP, 'ws0', WS_TS, 1 << 20)
    a.emit(f's_lshl2_add_u32 s4, s2, s{S_WV}')
    a.emit('s_lshl_b32 s4, s4, 3')
    a.emit('s_waitcnt lgkmcnt(0)')
    a.emit('v_mov_b32 v4, s94')
    a.emit('v_mov_b32 v5, s92')
    a.emit('s_mov_b64 exec, 1')
    a.emit(f'buffer_store_dwordx2 v[4:5], off, s[{SP}:{SP+3}], s4')
    a.emit('s_endpgm')

def diag(a):
    ph, j, K, C = [int(x) for x in ENV('DIAG').split(',')]
    a.emit(f's_lshl1_add_u32 s3, s{S_WV}, s{S_LAYER}')
    a.emit('s_cmp_lg_u32 s3, 1')
    a.emit('s_cbranch_scc1 L_diag_end')
    a.emit('s_waitcnt vmcnt(0)')
    a.emit('v_lshlrev_b32 v1, 6, v0')
    for i in range(4): a.emit(f's_mov_b32 s3, {4096*i}'); a.emit(f'buffer_load_dword v{4+i}, v1, s[{SP}:{SP+3}], s3 offen sc1')
    a.emit('s_lshl_b32 s4, s2, 6')
    a.emit(f's_add_u32 s4, s4, {(ph << 16) + 16 * j}')
    a.emit(f'buffer_load_dword v8, off, s[{SP}:{SP+3}], s4 sc1')
    a.emit('s_waitcnt vmcnt(0)')
    for i in range(4): a.emit(f'v_sub_u32 v{4+i}, v8, v{4+i}')
    a.emit('v_max_i32 v4, v4, v5'); a.emit('v_max_i32 v6, v6, v7'); a.emit('v_max_i32 v4, v4, v6')
    a.emit('s_mov_b32 s5, 0')
    a.emit('s_nop 1')
    for i in range(64):
        a.emit(f'v_readlane_b32 s3, v4, {i}')
        a.emit('s_max_i32 s5, s5, s3')
    if C: a.emit(f's_sub_u32 s5, {C}, s5'); a.emit('s_max_i32 s5, s5, 0')
    a.emit('s_min_u32 s5, s5, 15000')
    a.emit(f's_mul_i32 s5, s5, {K}')
    a.emit('s_memrealtime s[6:7]')
    a.emit('s_mov_b32 s4, 0x40000')
    a.emit('s_waitcnt lgkmcnt(0)')
    a.label('L_diag_l')
    a.emit('s_memrealtime s[8:9]')
    a.emit('s_sub_u32 s4, s4, 1')
    a.emit('s_cbranch_scc1 L_diag_end')
    a.emit('s_waitcnt lgkmcnt(0)')
    a.emit('s_sub_u32 s8, s8, s6')
    a.emit('s_cmp_lt_u32 s8, s5')
    a.emit('s_cbranch_scc1 L_diag_l')
    a.label('L_diag_end')

def loader_end(a, kind, check=True):
    if MEGA:
        if kind == LSTK and not EARLY: lstamps_out(a, kind)
        if check: last_check(a, kind)
        a.emit(f's_lshl_b32 s{S_FL}, s{S_TSI}, 15')
        a.emit(f's_lshl_b32 s4, s{S_MT}, 11')
        a.emit(f's_add_u32 s{S_FL}, s{S_FL}, s4')
        a.emit(f's_lshl_b32 s4, s{S_NT}, 2')
        a.emit(f's_add_u32 s{S_FL}, s{S_FL}, s4')
        next_phase(a, kind)

def pf_weights(a, sd, which, size, ldw2, R, sh, L, LMn, tilebytes, NI, vd, row0=0, qkv=False, pair=False):
    if 'nopf' in DBG: return 0
    srd(a, sd, which, 0, size)
    a.emit(f's_and_b32 s3, s{S_WV}, 3')
    a.emit(f's_mul_i32 s3, s3, {NI * (64 >> sh)}')
    a.emit(f's_mul_i32 s4, s{S_CU}, {R}')
    a.emit('s_add_u32 s3, s3, s4')
    if row0: a.emit(f's_add_u32 s3, s3, {row0}')
    a.emit(f'v_lshrrev_b32 v2, {sh}, v1')
    a.emit('v_add_u32 v2, s3, v2')
    a.emit(f'v_mul_u32_u24 v2, {ldw2}, v2')
    a.emit(f'v_and_b32 v3, {(1 << sh) - 1}, v1')
    if L < (1 << sh): a.emit(f'v_min_u32 v3, {L-1}, v3')
    if qkv:
        a.emit('v_lshrrev_b32 v12, 2, v3')
        a.emit('v_lshl_add_u32 v2, v12, 11, v2')
        a.emit('v_and_b32 v3, 3, v3')
    a.emit(f'v_lshl_add_u32 v2, v3, {8 if pair else 7}, v2')
    a.emit('s_and_b32 s3, s2, 7')
    a.emit(f's_lshr_b32 s3, s3, {4 - LMn}')
    a.emit(f's_mul_i32 s3, s3, {tilebytes if pair else (1 << (5 - LMn)) * tilebytes}')
    for i in range(NI):
        a.emit(f'buffer_load_dword v{vd+i}, v2, s[{sd}:{sd+3}], s3 offen')
        if i + 1 < NI: a.emit(f's_add_u32 s3, s3, {(64 >> sh) * ldw2}')
    return NI

_pfc = [0]
def pf_code(a, start, end, vd, forward=True):
    if 'nopfc' in DBG: return 0
    _pfc[0] += 1
    lab = f'L_pfc{_pfc[0]}'
    a.emit('s_getpc_b64 s[4:5]')
    a.label(lab)
    if forward:
        a.emit(f's_add_u32 s4, s4, {start}-{lab}')
        a.emit('s_addc_u32 s5, s5, 0')
    else:
        a.emit(f's_sub_u32 s4, s4, {lab}-{start}')
        a.emit('s_subb_u32 s5, s5, 0')
    a.emit(f's_and_b32 s3, s{S_WV}, 3')
    a.emit('s_lshl_b32 s3, s3, 13')
    a.emit('v_lshl_add_u32 v2, v1, 7, s3')
    a.emit(f'v_min_u32 v2, {end}-{start}-4, v2')
    a.emit(f'global_load_dword v{vd}, v2, s[4:5]')
    return 1

def wbase(a, vd, vt, g='v2', nr=False):
    if nr: a.emit(f'v_lshrrev_b32 v{vd}, 2, v1')
    else:
        a.emit(f'v_bfe_u32 v{vd}, v1, 2, 2')
        a.emit(f'v_lshl_add_u32 v{vd}, {g}, 3, v{vd}')
    a.emit(f'v_lshlrev_b32 v{vd}, 7, v{vd}')
    a.emit(f'v_and_b32 v{vt}, 3, v1')
    a.emit(f'v_lshl_add_u32 v{vd}, v{vt}, 3, v{vd}')
    a.emit(f'v_bfe_u32 v{vt}, v1, 3, 2')
    a.emit(f'v_lshl_add_u32 v{vd}, v{vt}, 5, v{vd}')


def code_touch(a, start, end, nb, sd=SX, loader=False):
    if ENV('CT', '1') == '0': return
    _pfc[0] += 1
    lab = f'L_pfc{_pfc[0]}'
    a.emit(f's_cmp_lg_u32 s{S_LAYER}, 0')
    a.emit(f's_cbranch_scc1 {lab}_skip')
    a.emit('s_getpc_b64 s[4:5]')
    a.label(lab)
    a.emit(f's_lshl_b32 s3, s{S_CU}, 2')
    a.emit(f's_add_u32 s3, s3, s{S_WV}')
    if loader: a.emit('s_sub_u32 s3, s3, 4')
    a.emit(f's_mul_i32 s3, s3, {nb}')
    a.emit(f's_min_u32 s3, s3, {end}-{start}-{nb}')
    a.emit(f's_add_i32 s3, s3, {start}-{lab}')
    a.emit('s_ashr_i32 s6, s3, 31')
    a.emit('s_add_u32 s4, s4, s3')
    a.emit('s_addc_u32 s5, s5, s6')
    for i in range(nb // 64):
        a.emit(f's_load_dword s{84 if loader else SW}, s[4:5], {64*i}')
    a.label(f'{lab}_skip')

def loader_first(a, kind):
    if ENV('LF', '1') == '0': return
    L = a.lines
    ib = max(i for i, l in enumerate(L) if l.strip() == f's_cbranch_scc1 L_{kind}_loader')
    il = L.index(f'L_{kind}_loader:')
    ie = L.index(f'L_{kind}_end:') + 2
    assert L[ie - 1].strip() == 's_endpgm' and L[ib - 1].strip().startswith('s_cmp_ge_u32')
    L[ib - 1] = L[ib - 1].replace('s_cmp_ge_u32', 's_cmp_lt_u32')
    L[ib] = f'  s_cbranch_scc1 L_{kind}_compute'
    a.lines = L[:ib + 1] + L[il:ie] + [f'L_{kind}_compute:'] + L[ib + 1:il] + L[ie:]

def clear_flags(a, part, n=0):
    if not ONE or DS: return
    if part == 0 and 'attn' not in OT: a.emit(f's_load_dwordx2 s[{SC}:{SC+1}], s[0:1], 72')
    a.emit(f's_or_b32 s3, s{S_LAYER}, s{S_WV}')
    a.emit(f's_cbranch_scc1 L_clr_skip{part}')
    if part == 0:
        srd(a, SP, 'ws0', WS_FL, FLS)
        a.emit('s_lshl_b32 s3, s2, 11')
        a.emit('v_lshlrev_b32 v2, 4, v1')
        a.emit(f'buffer_store_dwordx4 v[128:131], v2, s[{SP}:{SP+3}], s3 offen sc1')
        a.emit(f'buffer_store_dwordx4 v[128:131], v2, s[{SP}:{SP+3}], s3 offen offset:1024 sc1')
    else:
        a.emit('v_mov_b32 v3, 1')
        a.emit(f's_and_b32 s{SC+1}, s{SC+1}, 0xffff')
        a.emit(f's_mov_b32 s{SC+2}, 256')
        a.emit(f's_mov_b32 s{SC+3}, 0x00020000')
        a.emit('s_mov_b64 exec, 1')
        a.emit(f's_waitcnt vmcnt({n})')
        a.emit(f'buffer_store_byte v3, off, s[{SC}:{SC+3}], s2 sc1')
        a.emit('s_mov_b64 exec, -1')
    a.label(f'L_clr_skip{part}')

def mf_order(nn, nm, skip=lambda jn, jm: False):
    m = ENV('MFO', 's')
    if m == 'n': o = [(jn, jm) for jn in range(nn) for jm in range(nm)]
    elif m == 's': o = [(jn, jm if not jn & 1 else nm - 1 - jm) for jn in range(nn) for jm in range(nm)]
    elif m == 'm': o = [(jn, jm) for jm in range(nm) for jn in range(nn)]
    elif m == 'z': o = [(jn if not jm & 1 else nn - 1 - jn, jm) for jm in range(nm) for jn in range(nn)]
    elif m == 'd': o = [(i % nn, (i // nn + i % nn) % nm) for i in range(nn * nm)]
    return [x for x in o if not skip(*x)]
```

```python
from common import *

def ktab(a, vt, sh, P1, P2, tb):
    a.emit('v_and_b32 v2, 3, v1')
    a.emit('v_lshlrev_b32 v2, 3, v2')
    a.emit(f'v_bfe_i32 v{vt}, s{tb}, v2, 8')
    a.emit(f's_and_b32 s3, s{S_MT}, 3')
    a.emit(f's_mul_i32 s4, s3, {P2 // 4}')
    a.emit(f'v_add3_u32 v3, v{vt}, v1, s4')
    if P1 & (P2 - 1): a.emit(f'v_subrev_u32 v3, {P1}, v3')
    a.emit(f'v_and_b32 v3, {P2 - 1}, v3')
    if P1:
        MR = int(ENV('MR', '4'))
        if NV: a.emit(f'v_cmp_gt_u32 vcc, {NV}, v1')
        a.emit(f's_mul_i32 s3, s3, {MR // 4}')
        if NV:
            a.emit(f's_and_b32 s4, s{S_NT}, 1')
            a.emit(f'v_cndmask_b32_e64 v{vt+1}, {P1 - NV}, {NV}, vcc')
            a.emit(f'v_cndmask_b32_e64 v2, {P1 - 2 * NV}, {NV}, vcc')
            a.emit(f'v_add3_u32 v{vt}, v{vt}, v1, v2')
            for _ in range(2):
                a.emit(f'v_sub_u32 v2, v{vt}, v{vt+1}')
                a.emit(f'v_min_u32 v{vt}, v{vt}, v2')
            a.emit(f'v_cndmask_b32_e64 v2, {NV}, 0, vcc')
            a.emit(f'v_add_u32 v{vt}, v{vt}, v2')
        else:
            a.emit(f'v_add3_u32 v{vt}, v{vt}, v1, {P1}')
            a.emit(f's_bitcmp1_b32 s{S_NT}, 0')
            a.emit(f's_cselect_b32 s4, {P1}, 0')
            for _ in range(2):
                a.emit(f'v_subrev_u32 v2, {P1}, v{vt}')
                a.emit(f'v_min_u32 v{vt}, v{vt}, v2')
        if MR:
            a.emit(f'v_cmp_gt_u32 vcc, {MR}, v{vt}')
            a.emit(f'v_add_u32 v2, s3, v{vt}')
            a.emit(f'v_subrev_u32 v{vt+1}, {MR}, v2')
            a.emit(f'v_min_u32 v2, v{vt+1}, v2')
            a.emit(f'v_cndmask_b32 v{vt}, v{vt}, v2, vcc')
        a.emit(f'v_cmp_gt_u32 vcc, {P1}, v1')
        a.emit(f'v_lshl_add_u32 v{vt}, v{vt}, 1, s4' if NV else f'v_add_u32 v{vt}, s4, v{vt}')
        a.emit(f'v_add_u32 v3, {2 * P1}, v3')
        a.emit(f'v_cndmask_b32 v3, v3, v{vt}, vcc')
    a.emit(f'v_lshlrev_b32 v{vt}, {sh}, v3')

def ktab_ot(a, vt, sh, tb):
    KS = int(ENV('KS2', '2'))
    a.emit(f's_add_u32 s3, s{S_MT}, s{S_HD}')
    a.emit('s_and_b32 s3, s3, 3')
    for g in range(4):
        o = list(range(17))
        for t in range(KS + g, 14, 4): o[t:t + 3] = [t + 2, t, t + 1]
        assert o[0] == 0 and o[16] == 16
        v = sum(((t - o[t]) & 3) << (2 * t) for t in range(16))
        if g: a.emit(f's_cmp_eq_u32 s3, {g}')
        a.emit(f's_cselect_b32 s4, {v:#x}, s4' if g else f's_mov_b32 s4, {v:#x}')
    P1 = int(ENV('P1', '23')); P2 = 56 - 2 * P1
    a.emit('v_subrev_u32 v2, 3, v1')
    if P1 > 20: a.emit('v_min_u32 v2, 16, v2')
    a.emit('v_lshlrev_b32 v3, 1, v2')
    a.emit(f'v_bfe_i32 v{vt}, s4, v3, 2')
    a.emit(f'v_sub_u32 v{vt}, v1, v{vt}')
    a.emit(f'v_subrev_u32 v{vt}, {7 if P1 > 20 else 6}, v{vt}')
    if EF:
        a.emit(f'v_subrev_u32 v3, 7, v{vt}')
        a.emit(f'v_min_u32 v3, v3, v{vt}')
        a.emit(f'v_cmp_eq_u32 vcc, s{S_HD}, v3')
        a.emit(f's_and_b32 s3, s{S_NT}, 1')
        a.emit(f'v_cmp_lt_i32 s[4:5], 6, v{vt}')
        a.emit(f'v_cndmask_b32_e64 v3, v3, 7, vcc')
        a.emit('s_nop 0')
        a.emit('v_addc_co_u32 v2, vcc, v3, v3, s[4:5]')
    else:
        a.emit(f'v_ashrrev_i32 v3, 1, v{vt}')
        a.emit(f'v_cmp_eq_u32 vcc, s{S_HD}, v3')
        a.emit(f's_and_b32 s3, s{S_NT}, 1')
        a.emit(f'v_or_b32 v2, 14, v{vt}')
        a.emit(f'v_cndmask_b32 v2, v{vt}, v2, vcc')
    a.emit(f'v_cmp_gt_i32 vcc, 0, v{vt}')
    a.emit(f's_lshl2_add_u32 s4, s3, {20 if P1 > 20 else 19}')
    a.emit(f'v_add_u32 v{vt}, s4, v{vt}')
    a.emit('s_lshl4_add_u32 s4, s3, 24')
    a.emit('v_add_u32 v2, s4, v2')
    a.emit(f'v_cndmask_b32 v{vt}, v2, v{vt}, vcc')
    if P1 > 20:
        a.emit(f's_and_b32 s5, s{S_MT}, 3')
        a.emit(f"s_mul_i32 s5, s5, {ENV('RCM', '3')}")
        a.emit(f's_sub_u32 s5, s5, {P1}')
        a.emit('v_add_u32 v3, s5, v1')
        for _ in range(2):
            a.emit(f'v_subrev_u32 v2, {P2}, v3')
            a.emit('v_min_u32 v3, v3, v2')
        a.emit(f'v_cmp_gt_u32 vcc, {P1}, v1')
        a.emit(f's_sub_u32 s5, s3, {2 * P1}')
        a.emit('v_lshl_add_u32 v2, v1, 1, s5')
        a.emit('v_cndmask_b32 v3, v3, v2, vcc')
        a.emit(f's_add_u32 s5, s{S_HD}, {P1 - 20}')
        a.emit('v_ashrrev_i32 v2, 1, v3')
        a.emit('v_add_u32 v2, s5, v2')
        a.emit('v_and_b32 v2, 7, v2')
        a.emit('v_and_b32 v3, 1, v3')
        a.emit('v_cmp_gt_u32 vcc, 21, v1')
        a.emit('v_lshl_add_u32 v3, v3, 3, v2')
        a.emit(f's_lshl1_add_u32 s4, s{S_HD}, s4')
        a.emit(f's_lshl3_add_u32 s3, s3, s{S_HD}')
        a.emit(f'v_cndmask_b32 v3, v3, v{vt}, vcc')
        a.emit('v_writelane_b32 v3, s4, 0')
        a.emit('s_add_u32 s4, s4, 1')
        a.emit('v_writelane_b32 v3, s3, 2')
        a.emit('v_writelane_b32 v3, s4, 1')
        a.emit(f'v_lshlrev_b32 v{vt}, {sh}, v3')
        return
    a.emit('v_and_b32 v2, 3, v1')
    a.emit('v_lshlrev_b32 v2, 3, v2')
    a.emit(f'v_bfe_i32 v3, s{tb}, v2, 8')
    a.emit(f's_lshl2_add_u32 s5, s{S_MT}, 12')
    a.emit('v_add3_u32 v3, v3, v1, s5')
    a.emit('v_and_b32 v2, 7, v3')
    a.emit(f'v_cmp_eq_u32 vcc, s{S_HD}, v2')
    a.emit('v_bfe_u32 v2, v3, 3, 1')
    a.emit('v_lshl_add_u32 v2, v2, 2, 19')
    a.emit('v_and_b32 v3, 15, v3')
    a.emit('v_cndmask_b32 v3, v3, v2, vcc')
    a.emit('v_cmp_gt_u32 vcc, 20, v1')
    a.emit(f's_lshl1_add_u32 s4, s{S_HD}, s4')
    a.emit(f's_lshl3_add_u32 s3, s3, s{S_HD}')
    a.emit(f'v_cndmask_b32 v3, v3, v{vt}, vcc')
    a.emit('v_writelane_b32 v3, s4, 0')
    a.emit('s_add_u32 s4, s4, 1')
    a.emit('v_writelane_b32 v3, s3, 2')
    a.emit('v_writelane_b32 v3, s4, 1')
    a.emit(f'v_lshlrev_b32 v{vt}, {sh}, v3')

EVX, EVT, EVB = 24, 30, 27; EBIA = [4, 10, 124, 126]; ERING = [128, 144, 224, 64, 80, 240]
def w2_pre(a):
    P1 = int(ENV('P1', '23'))
    tile_map(a, 2, None, pair=True)
    rot_table(a, S_TB, S_MT, S_HD, 'w2')
    ktab(a, EVT, 11, P1, 56 - 2 * P1, S_TB)
    a.emit(f's_lshl_b32 s8, s{S_MT}, 7')
    a.emit(f's_lshl_b32 s9, s{S_WV}, 5')
    a.emit('s_add_u32 s8, s8, s9')
    a.emit('s_mul_i32 s9, s8, 7168')
    a.emit(f'v_lshl_add_u32 v{EVX}, v1, 4, s9')
    a.emit(f'v_add_u32 v{EVX+1}, {16*7168}, v{EVX}')
    a.emit('v_lshrrev_b32 v2, 4, v1')
    a.emit(f's_lshl_b32 s10, s{S_NT}, 7')
    a.emit(f'v_lshl_add_u32 v{EVB}, v2, 3, s10')

def w2_early(a):
    NG = int(ENV('NG2', '3'))
    for x in range(NG): a.emit(f'v_readlane_b32 s{SR+x}, v{EVT}, {x}')
    srd(a, SB, 'b2', 0, 2048)
    srd(a, SX, 'ws', WS_H, 2048 * 7168)
    for jn in range(4):
        a.emit(f'buffer_load_dwordx2 v[{EBIA[jn]}:{EBIA[jn]+1}], v{EVB}, s[{SB}:{SB+3}], 0 offen offset:{jn*32}')
    for x in range(NG):
        for ks in range(2):
            for jm in range(2):
                r = ERING[x] + (ks * 2 + jm) * 4
                a.emit(f'buffer_load_dwordx4 v[{r}:{r+3}], v{EVX+jm}, s[{SX}:{SX+3}], s{SR+x} offen offset:{ks*1024}')

def gen_gemm64y(a, kind, tsidx, side):
    K = 1024 if kind == 'wo' else 3584
    lda2 = K * 2; ldw2 = 2048
    N = K // 64
    P1 = int(ENV('P1', '23')) if kind == 'w2' else 0
    P2 = N - 2 * P1
    B16 = ENV('XB16', '1') == '1'
    NXC = 4 if B16 else 8; CH = NXC * 1024
    G0, GW = (131072, 28672) if kind == 'wo' else (0, 0)
    def slot(t):
        if kind == 'wo' and 'w1' in OT: return 28672 + 8192 * t + (4096 if t >= 12 else 0)
        g = G0 + (t >> 2) * 32768
        if g >= 163840: g = GW + (g - 163840) % (163840 - GW)
        return g + (t & 3) * 8192
    XB = 131072
    HR = int(ENV('HR', '6')) if P1 else 0
    sched = [(t >> 1, t & 1) for t in range(2 * (P1 - HR))] + [(x, u) for u in (0, 1) for x in range(P1 - HR, P1)] + [(x, 1) for x in range(P1, P1 + P2)]
    TU = 2 * P1 - max(HR, 1)
    NPRE = int(ENV('NPREO', '16')) if kind == 'wo' else int(ENV('NPRE', '20'))
    PSTEP = 64 if kind == 'w2' else 1024
    body = f'L_{kind}_body'; end = f'L_{kind}_end'
    VXO, VWB, VWA, VO, VT, VE = 4, 6, 26, 12, 15, 19
    XR = 32; FW = [160, 192]; ACC = [128, 96]; D = 240; BIA = 192
    SPC = NV if P1 else 0
    BIA = [BIA + 2 * jn for jn in range(4)]
    if SPC: VXO, VT, ACC, BIA = EVX, EVT, [32, 96], EBIA
    ot = kind == 'w2' and 'w2' in OT
    if ot: BIA = OBIA; assert P1 >= 20 and not SPC
    acc = lambda jn, jm, u=1: ACC[u] + (jn * 2 + jm) * 4
    fx = lambda r, ks, jm: XR + 16 * r + (ks * 2 + jm) * 4
    fw = lambda s, ks, jn: FW[s] + (ks * 4 + jn) * 4
    a.label(f'L_{kind}_c0')
    a.label(body)
    tile_map(a, 2, end, pair=True)
    rot_table(a, S_TB, S_MT, S_HD, kind)
    a.emit(f's_cmp_ge_u32 s{S_WV}, 4')
    a.emit(f's_cbranch_scc1 L_{kind}_loader')
    if ot:
        a.emit(f's_lshl_b32 s3, s{S_WV}, 12')
        a.emit(f's_add_u32 s3, s3, {OHB}')
        a.emit('v_lshl_add_u32 v2, v1, 4, s3')
        for i in range(12): a.emit(f'ds_read_b128 v[{32+4*i}:{35+4*i}], v2 offset:{(i>>2)*16384+(i&1)*2048+(i&2)*512}')
        ktab_ot(a, VT, 11, S_TB)
        if 'xhit' in DBG: a.emit(f'v_and_b32 v{VT}, 0x1800, v{VT}')
        if ENV('RE', '1') == '1' and not EF:
            a.emit('s_waitcnt lgkmcnt(0)')
            a.emit('s_barrier')
    elif SPC: tile_map(a, 2, None, pair=True)
    else: ktab(a, VT, 11, P1, P2, S_TB)
    a.emit('v_and_b32 v3, 15, v1')
    a.emit('v_lshrrev_b32 v2, 4, v1')
    a.emit(f's_lshl_b32 s8, s{S_MT}, 7')
    a.emit(f's_lshl_b32 s9, s{S_WV}, 5')
    a.emit('s_add_u32 s8, s8, s9')
    a.emit(f's_mul_i32 s9, s8, {lda2}')
    if 'xsm' in DBG:
        a.emit('s_and_b32 s9, s8, 0x67f')
        a.emit(f's_mul_i32 s9, s9, {lda2}')
    if not SPC and ENV('TID', '1') != '1':
        a.emit(f'v_lshl_add_u32 v{VXO}, v1, 4, s9')
        a.emit(f'v_add_u32 v{VXO+1}, {16*lda2}, v{VXO}')
    E2 = ot and EF == 2
    if E2: xpitch(a, 7, True)
    iB = len(a.lines)
    a.emit('v_add_u32 v13, s8, v3')
    a.emit(f's_lshl_b32 s10, s{S_NT}, 7')
    a.emit('v_lshl_add_u32 v14, v2, 3, s10')
    a.emit('v_and_b32 v16, 1, v2')
    a.emit('v_lshrrev_b32 v17, 1, v2')
    F2 = ENV('FL', '2') == '2'
    if kind == 'w2' and F2:
        assert 'attn' in OT
        a.emit('v_lshlrev_b32 v4, 3, v3')
        a.emit('v_and_b32 v4, 0x70, v4')
        a.emit('v_lshlrev_b32 v16, 3, v2')
        a.emit('v_xor_b32 v4, v4, v16')
        a.emit('v_lshl_add_u32 v4, v3, 7, v4')
        a.emit(f's_lshl_b32 s3, s{S_WV}, 12')
        a.emit('v_add_u32 v4, s3, v4')
        a.emit('v_lshl_add_u32 v5, v1, 4, s3')
        if not E2: xpitch(a, 7, True)
        a.emit('v_xor_b32 v16, v1, v2')
        a.emit('v_and_b32 v16, 7, v16')
        a.emit('v_lshl_add_u32 v16, v16, 4, s10')
        a.emit('v_lshrrev_b32 v14, 3, v1')
        a.emit('v_add_u32 v14, s8, v14')
        a.emit(f'v_mad_u32_u24 v{VO}, v14, s7, v16')
        FL = False
    elif kind == 'w2':
        a.emit('v_lshlrev_b32 v16, 5, v16')
        a.emit('v_lshl_add_u32 v16, v17, 4, v16')
        if 'attn' in OT:
            a.emit('v_lshlrev_b32 v4, 3, v3')
            a.emit('v_and_b32 v4, 0x70, v4')
            a.emit('v_xor_b32 v4, v4, v16')
            a.emit('v_lshl_add_u32 v4, v3, 7, v4')
            a.emit(f's_lshl_b32 s3, s{S_WV}, 12')
            a.emit('v_add_u32 v4, s3, v4')
            a.emit('v_xor_b32 v5, 64, v4')
        a.emit('v_add_u32 v16, s10, v16')
        if not E2: xpitch(a, 7, True)
        FL = ENV('FL', '2') == '1'
        if FL:
            a.emit('v_and_b32 v14, 8, v3')
            a.emit('v_lshl_add_u32 v16, v14, 3, v16')
            a.emit('v_sub_u32 v14, v13, v14')
            assert ot
        a.emit(f'v_mad_u32_u24 v{VO}, v{14 if FL else 13}, s7, v16')
    else:
        if 'w1' in NS: a.emit('v_lshlrev_b32 v16, 4, v1')
        else:
            a.emit('v_lshl_add_u32 v16, v16, 1, v17')
            a.emit('v_lshlrev_b32 v16, 8, v16')
            a.emit('v_lshl_add_u32 v16, v3, 4, v16')
        a.emit(f's_add_u32 s9, s8, s{S_NT}')
        a.emit('s_lshl_b32 s9, s9, 11')
        a.emit(f'v_add_u32 v{VO}, s9, v16')
        if 'w1' in OT:
            a.emit(f's_lshl_b32 s9, s{S_WV}, 12')
            a.emit(f'v_add_u32 v{VE}, s9, v16')
    a.emit('v_lshl_add_u32 v18, v17, 4, v13')
    a.emit('v_lshlrev_b32 v18, 3, v18')
    a.emit('v_and_b32 v16, 1, v2')
    a.emit('v_lshl_add_u32 v18, v16, 2, v18')
    a.emit(f's_lshl_b32 s10, s{S_NT}, 14')
    a.emit('v_add_u32 v18, s10, v18')
    nr = kind in NS and NSR
    wbase(a, VWB, 17, nr=nr)
    for i in range(1, 4): a.emit(f'v_xor_b32 v{VWB+i}, {32*i}, v{VWB}')
    a.emit('s_mov_b32 s11, 0xffff0000')
    if E2: bl = a.lines[iB:]; del a.lines[iB:]
    if kind == 'wo':
        srd(a, SX, 'ws', WS_O, 4 * MB)
        srd(a, SO, 'ws', WS_X1, 4 * MB)
    else:
        if not SPC:
            if not ot: srd(a, SB, 'b2', 0, 2048)
            for jn in range(0 if ot else 4):
                a.emit(f'buffer_load_dwordx2 v[{BIA[jn]}:{BIA[jn]+1}], v14, s[{SB}:{SB+3}], 0 offen offset:{jn*32}')
            srd(a, SX, 'ws', WS_H, 2048 * 7168)
        srd(a, SO, 'out', 0, 4 * MB)
        srd(a, SR, 'ws0', WS_X2, 4 * MB)
        a.emit(f's_cmp_eq_u32 s{S_LAYER}, 0')
        a.emit(f's_cselect_b64 s[{SO}:{SO+1}], s[{SR}:{SR+1}], s[{SO}:{SO+1}]')
        a.emit(f's_lshl_b32 s{SO+2}, s7, 11')
        if E2:
            for x in range(3, 5): a.emit(f'v_readlane_b32 s{SR+(x&3)}, v{VT}, {x}')
    if not E2: srd(a, ST, 'ws', WS_ST if kind == 'wo' else WS_ST2, 16 * 16384)
    TID = ENV('TID', '1') == '1'
    if TID:
        a.emit(f's_mul_i32 s9, s8, {lda2}')
        a.emit(f's_add_u32 s{SX}, s{SX}, s9')
        a.emit(f's_addc_u32 s{SX+1}, s{SX+1}, 0x100000')
        a.emit(f's_add_u32 s{SC}, s{SX}, {16 * lda2}')
        a.emit(f's_addc_u32 s{SC+1}, s{SX+1}, 0')
        for r in (SX, SC):
            a.emit(f's_mov_b32 s{r+2}, {16 * lda2}')
            a.emit(f's_mov_b32 s{r+3}, 0x00800000')
    if E2:
        RB = int(ENV('RB', '0'))
        a.lines += bl[:RB]
        a.emit('s_waitcnt vmcnt(0) lgkmcnt(0)')
        a.emit('s_barrier')
        iR = len(a.lines)
        a.lines += bl[RB:]
        srd(a, ST, 'ws', WS_ST2, 16 * 16384)
    if kind == 'wo':
        if ENV('CT2', 'l') == 'l': code_touch(a, 'L_w1_c0', 'L_w1_c1', 128, SW)
        elif ENV('CT2') == 'o': code_touch(a, 'L_w2_c0', 'L_w2_c1', 192, SW)
        else: code_touch(a, 'L_w1_c0', 'L_w2_c1', 320, SW)
    DX = int(ENV('DX', '2'))
    CLW = DX == 1 and not P1 and ENV('CLP', 'e') == 'w'
    if CLW:
        for i in range(4): a.emit(f'v_mov_b32 v{128+i}, -1')
    if (P1 and DX) or CLW:
        srd(a, SP, 'ws', WS_XP, 4 * MB)
        a.emit(f's_or_b32 s{SP+1}, s{SP+1}, 0x100000')
        a.emit(f's_mov_b32 s{SP+3}, 0x00800000')
        a.emit(f's_lshl4_add_u32 s4, s{S_MT}, s{S_NT}')
        a.emit(f's_lshl2_add_u32 s4, s4, s{S_WV}')
        if DX == 2:
            srd(a, SB, 'ws0', WS_FL, FLS)
            a.emit(f's_add_u32 s6, s{S_LAYER}, 4')
            a.emit('s_lshl_b32 s6, s6, 10')
            a.emit('s_add_u32 s6, s6, s4')
            a.emit('s_lshl_b32 s6, s6, 6')
            a.emit(f'v_mov_b32 v{VE}, 1')
        a.emit('s_lshl_b32 s4, s4, 12')
        a.emit('s_xor_b32 s5, s4, 16384')
    elif P1:
        a.emit(f's_mul_i32 s3, s{S_WV}, {CH}')
        a.emit(f's_add_u32 s3, s3, {XB}')
        a.emit(f'v_lshl_add_u32 v{VE}, v1, 4, s3')
    if P1 and not ot:
        for i in range(32): a.emit(f'v_mov_b32 v{ACC[0]+i}, 0')
    bases = []
    for t in sorted(range(min(N, 20)), key=slot):
        if not bases or slot(t) + 8191 - bases[-1] > 65535: bases.append(slot(t))
    VSET = [VWB, 20, 26]
    for k in (2, 1, 0):
        for i in range(4):
            if bases[k] or k: a.emit(f'v_add_u32 v{VSET[k]+i}, {bases[k]}, v{VWB+i}')
    xof = lambda t: sched[t][0]
    NX = P1 + P2
    last = lambda x: sched.index((x, 1))
    def xl(x, reg):
        if TID: return [(f'buffer_load_dwordx4 v[{reg+(ks*2+jm)*4}:{reg+(ks*2+jm)*4+3}], off, s[{(SX, SC)[jm]}:{(SX, SC)[jm]+3}], s{SR+(x&3)} offset:{ks*1024}', 'V', ('x', x, ks))
                for ks in range(2) for jm in range(2)]
        return [(f'buffer_load_dwordx4 v[{reg+(ks*2+jm)*4}:{reg+(ks*2+jm)*4+3}], v{VXO+jm}, s[{SX}:{SX+3}], s{SR+(x&3)} offen offset:{ks*1024}', 'V', ('x', x, ks))
                for ks in range(2) for jm in range(2)]
    def reads(t):
        o = []
        k = max(i for i, b in enumerate(bases) if b <= slot(t))
        for ks in range(2):
            for jn in range(4):
                for h in range(2):
                    d = fw(t & 1, ks, jn) + 2 * h
                    o.append((f'ds_read_b64_tr_b16 v[{d}:{d+1}], v{VSET[k]+jn} offset:{slot(t)-bases[k]+ks*4096+h*(2048 if nr else 512)}', 'L', ('w', t, ks)))
        return o
    xreg = {}
    def mf(t):
        o = []
        for ks in range(2):
            for jn, jm in mf_order(4, 2):
                if True:
                    c = acc(jn, jm, sched[t][1]); x = xreg[xof(t)] + (ks * 2 + jm) * 4
                    o.append(f'v_mfma_f32_16x16x32_bf16 v[{c}:{c+3}], v[{fw(t&1,ks,jn)}:{fw(t&1,ks,jn)+3}], v[{x}:{x+3}], ' + ('0' if ot and t == ks == 0 else f'v[{c}:{c+3}]'))
        return o
    U = kind[1].upper()
    NG = int(ENV('NG' + U, '3'))
    ring = [32, 48, 64, 80, 224, 240][:int(ENV('RING' + U, '6' if P1 else '4'))]
    NB = 2 if E2 else int(ENV('NB', '3'))
    if SPC: ring = ERING
    elif ot:
        assert NG == 3
        for x in range(3, 3 if E2 else 3 + NB): a.emit(f'v_readlane_b32 s{SR+(x&3)}, v{VT}, {x}')
    else:
        for x in range(NG): a.emit(f'v_readlane_b32 s{SR+x}, v{VT}, {x}')
    if kind == 'wo' and F2:
        a.emit(f's_cmp_lg_u32 s{S_LAYER}, 0')
        a.emit('s_cbranch_scc1 L_wo_nosw')
    for i in range(0 if kind == 'w2' and 'w1' in NS else 4):
        for h in range(2): a.emit(f'v_permlane16_swap_b32 v{D+4*i+h}, v{D+4*i+2+h}')
    if kind == 'wo' and F2: a.label('L_wo_nosw')
    TF = int(ENV('TF', '-1')); TG = int(ENV('TG', '15'))
    if SF:
        a.emit('v_mov_b32 v13, -1')
        a.emit(f'buffer_store_dword v13, v18, s[{ST}:{ST+3}], 0 offen sc1')
        assert not E2
    import pads
    for x in pads.chain('hg') if kind == 'wo' else []: a.emit(x)
    a.emit('s_waitcnt lgkmcnt(0)' + (f' vmcnt({4 * NG + 4 if EX == 14 else 0})' if SPC and TF < 0 else ''))
    if not (ot and ENV('RE', '1') == '1'): a.emit('s_barrier')
    pre = []
    for x in range(NG):
        xreg[x] = ring[x]; pre += xl(x, ring[x])
    if SPC: pre = [('', k, tg) for _, k, tg in pre] + [('', 'V', 'st')] * (14 - EX)
    if ot: pre = [('', 'L', tg) for _, k, tg in pre] + [('', 'V', 'st')] * (EF == 1)
    if E2:
        xe = xl(3, ring[3]) + xl(4, ring[4])
        XD_ = int(ENV('XED', '8'))
        for i, y in enumerate(xe): a.lines.insert(iR + i * (XD_ + 1), '  ' + y[0])
        pre += [('', k, tg) for _, k, tg in xe]
    pre += reads(0)
    P = lambda x: (x, '', None)
    if kind == 'w2' and not ot: pre.append(P(f's_waitcnt vmcnt({len(pre) - 16})'))
    for jn in range(4):
        if kind == 'w2':
            for h in range(2):
                pre.append(P(f'v_lshlrev_b32 v{216+2*h}, 16, v{BIA[jn]+h}'))
                pre.append(P(f'v_and_b32 v{217+2*h}, s11, v{BIA[jn]+h}'))
        for jm in range(2):
            c = acc(jn, jm); r = D + (jm * 4 + jn) * 2
            for h in range(2):
                pre.append(P(f'v_lshlrev_b32 v{c+2*h}, 16, v{r+h}'))
                pre.append(P(f'v_and_b32 v{c+2*h+1}, s11, v{r+h}'))
                if kind == 'w2': pre.append(P(f'v_pk_add_f32 v[{c+2*h}:{c+2*h+1}], v[{c+2*h}:{c+2*h+1}], v[{216+2*h}:{217+2*h}]'))
    pre.append(('', 'W', [('w', 0, 0), ('x', 0, 0)]))
    if TS:
        b = Asm(); stamp(b, 1); pre += [P(l.strip()) for l in b.lines]
    gp = [[] for _ in range(16 * N + 1)]
    waits = {}
    for t in range(N):
        if t + 1 < N:
            for i, x in enumerate(reads(t + 1)): gp[16 * t + i].append(x)
        for g, tt, ks in ((16 * t + 7, t, 1), (16 * t + 15, t + 1, 0)):
            if tt < N:
                waits[g] = [('w', tt, ks), ('x', xof(tt), ks)]
                gp[g].append(('', 'W', waits[g]))
    def put(g, x, cap=2):
        while len(gp[g]) >= cap and g < 16 * N: g += 1
        gp[g].append(x); return g
    BP = int(ENV('BP', '4'))
    ZS = int(ENV('ZS', '50' if DX else '54')) if P1 else N - 1
    XS = int(ENV('XS', '43' if DX else '41'))
    PS = int(ENV('PS', '0'))
    bars = list(range(BP - 1, min(2 * P1, XS - 1), BP)) + [XS] + ([PS] if PS else []) + ([] if DX == 1 else [ZS]) if P1 else [int(x) for x in ENV('BWO', ('4,13' if WD == 'c' else '3,10') if 'w1' in OT else '3,7,12').split(',')]
    if SPC:
        bars = [TF] + [t for t in bars if t > TF + 1]
        assert TG in bars
        if EX < 14 and TF >= 0: waits[16 * TF + 7].append('st')
    if ot: bars = [int(x) for x in ENV('BW2', ['2,7', '1,7', '3,7'][EF]).split(',')] + bars[2:]
    TG2 = int(ENV('TG2', '11'))
    if ot and EF == 1: waits[16 * bars[0] + 7].append('st')
    if ot and EF: assert TG2 in bars
    for t in bars:
        if t >= 0: gp[16 * t + 7].append(P('s_barrier'))
    G = ACC[0]; GI = G + 16 if B16 else G
    pool = [[r, -1 if i >= NG else 16 * last(i) + 15, N] for i, r in enumerate(ring)]
    if P1:
        for i in range(int(ENV('RINGX', '0'))): pool.append([G + 16 * i, 16 * XS + 7, ZS])
    SP1 = int(ENV('SP1', '6')); SP2 = int(ENV('SP2', '3'))
    g = 0
    for x in range(NG, NX):
        sl = min((p for p in pool if last(x) < p[2]), key=lambda p: p[1])
        xreg[x] = sl[0]
        if SPC and x == SPC: g = max(g, 16 * TG + 7)
        if ot and EF and x == 11: g = max(g, 16 * TG2 + 7)
        if E2 and x < 5:
            assert sl[0] == ring[x]
            sl[1] = 16 * last(x) + 15
            continue
        if ot and x < 3 + NB:
            g = 16 * bars[0] + 7
            gp[g] += xl(x, sl[0]); sl[1] = 16 * last(x) + 15; g += 3
            continue
        g = put(max(g - 2, sl[1] - 2, 0), P(f'v_readlane_b32 s{SR+(x&3)}, v{VT}, {x}')) + 3
        sp = SP1 if len(ring) + (int(ENV('CU2', '2')) if ot else 0) <= x and g < 16 * int(ENV('SPE', str(TU + 1))) else SP2
        sps = [int(c) for c in ENV('SP3', '4')] if P1 and 12 <= x and sp == SP2 else [sp]
        for i, y in enumerate(xl(x, sl[0])): g = put(max(g, sl[1] + 1), y) + sps[i % len(sps)]
        sl[1] = 16 * last(x) + 15
    for i in range(4): put(16 * (N - 1), P(f'v_mov_b32 v{20+i}, 0'))
    if CLW:
        g = max(g, int(16 * float(ENV('CLG', '0'))))
        for i in range(4): g = put(g, (f'buffer_store_dwordx4 v[128:131], off, s[{SP}:{SP+3}], s4 offset:{1024*i} sc1', 'V', 'cl')) + int(ENV('CLD', '2'))
    def xld(i): return f'buffer_load_dwordx4 v[{GI+4*i}:{GI+4*i+3}], off, s[{SP}:{SP+3}], s5 offset:{1024*i} sc1'
    def vmax(d, r):
        return [f'v_max3_u32 v{d}, v{r}, v{r+1}, v{r+2}'] + [f'v_max3_u32 v{d}, v{d}, v{r+j}, v{r+j+1}' for j in range(3, 15, 2)] + [f'v_max_u32 v{d}, v{d}, v{r+15}', f'v_cmp_eq_u32 vcc, -1, v{d}']
    if P1 and DX:
        g = 16 * TU + 2
        for i in range(4):
            for j in range(4 * i, 4 * i + 4): g = put(g, P(f'v_cvt_pk_bf16_f32 v{G+j}, v{G+2*j}, v{G+2*j+1}'))
            put(max(g + 1, 16 * TU + 6 + i * int(ENV('XWS', '0'))), (f'buffer_store_dwordx4 v[{G+4*i}:{G+4*i+3}], off, s[{SP}:{SP+3}], s4 offset:{1024*i} sc1', 'V', 'xw'))
        g = int(16 * float(ENV('RS', '50')))
        if DX == 2:
            g = put(int(16 * float(ENV('FS', '44'))), ('', 'W', ['xw']))
            put(g, (f'buffer_store_dword v{VE}, off, s[{SB}:{SB+3}], s6 sc1', 'V', 'xf'))
            g = 16 * ZS + 8
        for i in range(4): g = put(g, (xld(i), 'V', 'xr')) + int(ENV('RSP', '2'))
        g = put(int(16 * float(ENV('VS', '53.5' if DX == 1 else '54'))), ('', 'W', ['xr']))
        if DX == 1:
            for y in vmax(VE, GI): g = put(g, P(y))
            g = put(g + 1, P(f's_cbranch_vccnz L_{kind}_xrt\nL_{kind}_xok:'))
        for i in range(16):
            g = put(g, P(f'v_lshlrev_b32 v{G+2*i}, 16, v{GI+i}'), 2 if g < 16 * (N - 1) else 3)
            g = put(g, P(f'v_and_b32 v{G+2*i+1}, s11, v{GI+i}'), 2 if g < 16 * (N - 1) else 3)
    elif P1:
        g = 16 * (2 * P1 - 1) + 2
        for i in range(NXC):
            if B16:
                for j in range(4 * i, 4 * i + 4): g = put(g, P(f'v_cvt_pk_bf16_f32 v{G+j}, v{G+2*j}, v{G+2*j+1}'))
            gw = put(max(g + 1, 16 * (2 * P1 - 1) + 8 + 2 * i), (f'ds_write_b128 v{VE}, v[{G+4*i}:{G+4*i+3}] offset:{1024*i}', 'L', 'xw'))
        assert gw < 16 * XS + 7
        waits[16 * XS + 7].append('xw')
        g = 16 * ZS + 8
        for i in range(NXC): g = put(g, (f'ds_read_b128 v[{GI+4*i}:{GI+4*i+3}], v{VE} offset:{1024*i}', 'L', 'xr')) + 1
        g = put(max(g + 6, 16 * (N - 1)), ('', 'W', ['xr']))
        if B16:
            for i in range(16):
                g = put(g, P(f'v_lshlrev_b32 v{G+2*i}, 16, v{GI+i}'), 3)
                g = put(g, P(f'v_and_b32 v{G+2*i+1}, s11, v{GI+i}'), 3)
    XG = int(ENV('XG', '1'))
    if XG:
        isr = lambda y: y[1] == 'L' and y[2][0] == 'w'
        for g in range(16 * N - 1):
            if len(gp[g]) == 2 and gp[g][1][1] == 'V' and isr(gp[g][0]):
                for d in ((1, -1) if XG == 1 else (-1, 1)):
                    if len(gp[g + d]) == 1 and isr(gp[g + d][0]) and (d > 0 or g & 15):
                        gp[g + d].insert(0 if d > 0 else 1, gp[g].pop(0)); break
    lin = list(pre)
    for t in range(N):
        for i, m in enumerate(mf(t)):
            lin.append(P(m)); lin += gp[16 * t + i]
        if TS and t == int(ENV('ST2', '99')):
            b = Asm(); stamp(b, 2); lin += [P(l.strip()) for l in b.lines]
    lin += gp[16 * N]
    nbc = [0]
    def nb2():
        nbc[0] += 1; return 2 < nbc[0] < len(bars)
    iss = {'L': [], 'V': []}; done = {'L': -1, 'V': -1}
    for txt, k, tag in lin:
        if k == 'W':
            o = []
            for c, nm, mx in (('V', 'vmcnt', 63), ('L', 'lgkmcnt', 15)):
                idx = [i for i, x in enumerate(iss[c]) if x in tag]
                if idx and max(idx) > done[c]:
                    n = min(mx, len(iss[c]) - 1 - max(idx)); done[c] = len(iss[c]) - 1 - n
                    o.append(f'{nm}({n})')
            assert all(x in iss['L'] or x in iss['V'] for x in tag), tag
            if o: a.emit('s_waitcnt ' + ' '.join(o))
            continue
        if k: iss[k].append(tag)
        if 'nox2' in DBG and P1 and k == 'V' and tag[0] == 'x' and len(tag) == 3: continue
        if 'nobar2' in DBG and P1 and txt == 's_barrier' and nb2(): continue
        if ('nox' in DBG and k == 'V') or ('nomfma' in DBG and 'mfma' in txt) or not txt: continue
        a.emit(txt)
    if int(ENV('ST2', '99')) >= N: stamp(a, 2)
    a.emit(f's_mov_b32 s3, {16*2048}' if kind == 'wo' else 's_lshl_b32 s3, s7, 4')
    a.emit('s_mov_b32 s10, 0x3f803f80')
    FL = kind == 'w2' and FL; F2 = kind == 'w2' and F2
    if F2:
        a.emit('s_lshl_b32 s4, s7, 3')
        a.emit('s_add_u32 s5, s3, s4')
        for i in range(1, 4): a.emit(f'v_xor_b32 v{5+i}, {32*i}, v4')
        a.emit(f'v_xor_b32 v9, 64, v{VO}')
    elif FL:
        a.emit('s_lshl_b32 s4, s7, 3')
        a.emit('s_add_u32 s5, s3, s4')
        a.emit('s_mov_b32 vcc_lo, 0x00ff00ff')
        a.emit('s_mov_b32 vcc_hi, vcc_lo')
        a.emit('s_nop 0')
    else: a.emit('s_nop 4')
    for jm in range(2):
        for p in range(2):
            d = D + (jm * 2 + p) * 4
            for q in range(2):
                c = acc(2 * p + q, jm); g = acc(2 * p + q, jm, 0)
                if P1:
                    for h in range(2): a.emit(f'v_pk_add_f32 v[{c+2*h}:{c+2*h+1}], v[{c+2*h}:{c+2*h+1}], v[{g+2*h}:{g+2*h+1}]')
                a.emit(f'v_cvt_pk_bf16_f32 v{d+2*q}, v{c}, v{c+1}')
                a.emit(f'v_cvt_pk_bf16_f32 v{d+2*q+1}, v{c+2}, v{c+3}')
            if F2:
                for q in range(2): a.emit(f'ds_write_b64 v{(4, 6, 7, 8)[2*p+q]}, v[{d+2*q}:{d+2*q+1}] offset:{jm*2048}')
                for k in range(2 * p): a.emit(f'ds_read_b128 v[{32+8*jm+4*k}:{35+8*jm+4*k}], v5 offset:{jm*2048+k*1024}')
                continue
            if not (kind == 'wo' and 'w1' in NS):
                a.emit('s_nop 1')
                a.emit(f'v_permlane16_swap_b32 v{d}, v{d+2}')
                a.emit(f'v_permlane16_swap_b32 v{d+1}, v{d+3}')
            if not FL: a.emit(f'buffer_store_dwordx4 v[{d}:{d+3}], v{VO}, s[{SO}:{SO+3}], {"s3" if jm else "0"} offen offset:{p*PSTEP}{stf(kind)}')
            if kind == 'w2' and 'attn' in OT: a.emit(f'ds_write_b128 v{4+p}, v[{d}:{d+3}] offset:{jm*2048}')
            if FL and p:
                for k in ((0, 1), (1, 0))[jm]:
                    t = 32 + 8 * jm + 4 * k
                    if k == jm: a.emit('s_nop 0')
                    else: a.emit('s_not_b64 vcc, vcc')
                    for i in range(4): a.emit(f'v_cndmask_b32_dpp v{t+i}, v{d-4*k+i}, v{d-4+4*k+i}, vcc row_ror:8 row_mask:0xf bank_mask:0xf')
                    a.emit(f'buffer_store_dwordx4 v[{t}:{t+3}], v{VO}, s[{SO}:{SO+3}], {("0", "s4", "s3", "s5")[2*jm+k]} offen{stf(kind)}')
            if kind == 'wo' and 'w1' in OT: a.emit(f'ds_write_b128 v{VE}, v[{d}:{d+3}] offset:{jm*2048+p*1024}')
    if F2:
        for k in range(4):
            a.emit(f's_waitcnt lgkmcnt({(7, 6, 1, 0)[k]})')
            a.emit(f'buffer_store_dwordx4 v[{32+4*k}:{35+4*k}], v{(VO, 9)[k&1]}, s[{SO}:{SO+3}], {("0", "s4", "s3", "s5")[k]} offen{stf(kind)}')
    if SKL and kind == 'w2' and not TS:
        last_check(a, kind)
        if TE: a.lines[-1] = a.lines[-1].replace('L_w2_end', 'L_fin')
    for jm in range(2):
        for i in range(8):
            d = D + jm * 8 + i
            a.emit(f'v_dot2_f32_bf16 v{20+jm}, v{d}, s10, v{20+jm}')
            a.emit(f'v_dot2_f32_bf16 v{22+jm}, v{d}, v{d}, v{22+jm}')
    a.emit('s_nop 2')
    a.emit('v_permlane32_swap_b32 v20, v21')
    a.emit('v_permlane32_swap_b32 v22, v23')
    a.emit('v_add_f32 v20, v20, v21')
    a.emit('v_add_f32 v22, v22, v23')
    a.emit('s_nop 1')
    a.emit('v_permlane16_swap_b32 v20, v22')
    a.emit('v_add_f32 v20, v20, v22')
    a.emit(f'buffer_store_dword v20, v18, s[{ST}:{ST+3}], 0 offen{stf(kind)}')
    compute_end(a, kind)
    if P1 and DX == 1:
        a.label(f'L_{kind}_xrt')
        a.emit('s_mov_b32 s6, 0x40000')
        a.label(f'L_{kind}_xrl')
        for i in range(4): a.emit(xld(i))
        a.emit('s_sub_u32 s6, s6, 1')
        a.emit('s_waitcnt vmcnt(0)')
        a.emit(f's_cbranch_scc1 L_{kind}_xok')
        for y in vmax(VE, GI): a.emit(y)
        a.emit(f's_cbranch_vccnz L_{kind}_xrl')
        a.emit(f's_branch L_{kind}_xok')
    a.label(f'L_{kind}_loader')
    VT = 16
    if ENV('LPRIO'): a.emit(f"s_setprio {ENV('LPRIO')}")
    if kind == 'wo':
        if LSTK == 'wo': lstamp(a, 0)
        import sides
        dep_pre(a, kind, 0)
        a.emit(f's_cmp_lg_u32 s{S_LAYER}, 0')
        a.emit(f's_cbranch_scc1 L_{kind}_nofirst')
        sides.qkv(a, 0, 'finish', 1)
        a.label(f'L_{kind}_nofirst')
    L = Loader(a, kind, K, lda2, ldw2, [0], 128, 2, 8192, xblk=True)
    L.panels_of = lambda t: [0] if sched[t][1] else [f's{S_XD}']
    if ot:
        ktab_ot(a, VT, 17, S_TB)
        if 'whit' in DBG: a.emit(f'v_and_b32 v{VT}, 0x60000, v{VT}')
    else: ktab(a, VT, 17, P1, P2, S_TB)
    a.emit(f's_add_u32 s9, s{S_WV}, s{S_MT}')
    a.emit('s_and_b32 s9, s9, 3')
    a.emit(f's_lshl_b32 s{S_WD}, s9, 11')
    a.emit('v_and_b32 v10, 7, v1')
    if 'wsm' in DBG:
        a.emit(f's_and_b32 s11, s{S_NT}, 1')
        wvoff(a, L.VWD, 9, 11, ldw2)
    elif 'noslow2' in DBG:
        a.emit(f's_bitcmp1_b32 0x0c0c, s{S_NT}')
        a.emit('s_cselect_b32 s11, 2, 0')
        a.emit(f's_add_u32 s11, s11, s{S_NT}')
        wvoff(a, L.VWD, 9, 11, ldw2)
    else: wvoff(a, L.VWD, 9, S_NT, ldw2, kind in NS)
    if kind == 'wo': srd(a, SW, 'wo', 0, 2 * MB)
    else:
        srd(a, SW, 'w2', 0, 3584 * 2048)
        a.emit(f's_bitcmp1_b32 s{S_NT}, 0')
        a.emit(f's_mov_b32 s{S_XD}, 128')
        a.emit(f's_cselect_b32 s{S_XD}, -128, s{S_XD}')
    NPF = int(ENV('NPF' + kind[1].upper(), '10'))
    assert NPRE - NPF <= 18
    seq = []
    def em(o):
        for x in o:
            if ('nodma' in DBG or ('nodma2' in DBG and len(seq) >= 40)) and x.endswith(' lds'): continue
            a.emit(x)
    def after(t): return len(seq) - 1 - max(i for i, x in enumerate(seq) if x == t)
    NPK = int(ENV('NPK', '0')) if P1 else 0
    PK0 = int(ENV('PK0', '20')); PKA = int(ENV('PKA', '0'))
    PKD = int(ENV('PKD', '1'))
    pks = [t for t in range(PK0, N) if ((t - PK0) >> 1) % PKD == 0][:NPK]
    pkr = lambda t: 256 - 8 * NPK + 8 * pks.index(t)
    assert 256 - 8 * NPK >= 48
    if NPK:
        a.emit(f'v_lshl_add_u32 v20, v1, 4, s{S_WD}')
        a.emit('v_add_u32 v21, 0x10000, v20')
        a.emit('v_add_u32 v22, 0x20000, v20')
    lastk = [None]
    def kw(t):
        x = xof(t)
        if lastk[0] != x: a.emit(f'v_readlane_b32 s{S_KW}, v{VT}, {x}')
        lastk[0] = x
    def pk(t):
        kw(t)
        a.emit(f's_add_u32 s4, s{S_KW}, {L.panels_of(t)[0]}')
        for i in range(2): a.emit(f'buffer_load_dwordx4 v[{pkr(t)+4*i}:{pkr(t)+4*i+3}], v{L.VWD+i}, s[{SW}:{SW+3}], s4 offen')
        seq.extend([('P', t)] * 2)
    vmdone = [-1]
    def iw(t):
        if t in pks:
            i = max(i for i, x in enumerate(seq) if x == ('P', t))
            if i > vmdone[0]:
                a.emit(f's_waitcnt vmcnt({min(63, len(seq) - 1 - i)})'); vmdone[0] = i
            for i in range(0 if 'nopw' in DBG else 2): a.emit(f'ds_write_b128 v{20+(slot(t)>>16)}, v[{pkr(t)+4*i}:{pkr(t)+4*i+3}] offset:{(slot(t)&65535)+1024*i}')
            return
        kw(t)
        em(L.issue_w(t, S_WD, slot(t)))
        seq.extend([t] * 2)
    if kind == LSTK == 'wo': lstamp(a, 1)
    CW = [int(x) for x in ENV('CW', '0').split(',')] if P1 else []
    cwk = list(range(NPRE // 2, P1)) + list(range(2 * P1, N)); cwn = [0]
    if sum(CW):
        srd(a, SR, 'w2', 0, 3584 * 2048)
        a.emit(f's_and_b32 s3, s{S_WV}, 3')
        a.emit(f's_lshl2_add_u32 s3, s{S_CU}, s3')
        a.emit('s_lshl_b32 s4, s3, 6')
        a.emit('s_and_b32 s4, s4, 64')
        a.emit('s_lshr_b32 s3, s3, 1')
        a.emit('s_lshl_b32 s3, s3, 11')
        a.emit('s_add_u32 s3, s3, s4')
        a.emit(f's_sub_u32 s4, 384, s{SW}')
        a.emit('s_and_b32 s4, s4, 0x380')
        a.emit(f's_add_u32 s{S_Q}, s3, s4')
        a.emit(f's_bitcmp1_b32 s{S_NT}, 0')
        a.emit(f's_cselect_b32 s3, {P1 << 17}, 0')
        a.emit(f's_add_u32 s{S_T}, s{S_Q}, s3')
        a.emit('s_lshr_b32 s4, s4, 7')
        a.emit(f's_xor_b32 s4, s4, s{S_NT}')
        a.emit('s_bitcmp1_b32 s4, 0')
        a.emit(f's_cselect_b32 s{SR+2}, 0, s{SR+2}')
    def cw(j):
        for k in cwk[cwn[0]:cwn[0] + (CW[j] if j < len(CW) else 0)]:
            a.emit(f's_add_u32 s3, s{S_T if k < P1 else S_Q}, {k << 17}')
            for i in range(2): a.emit(f's_buffer_load_dword s84, s[{SW if k < P1 else SR}:{(SW if k < P1 else SR)+3}], s3 offset:{1024*i}')
            cwn[0] += 1
    def clr(w):
        if DX != 1 or P1 or w != ENV('CLP', 'e'): return
        srd(a, SP, 'ws', WS_XP, 4 * MB)
        a.emit(f's_and_b32 s5, s{S_WV}, 3')
        a.emit(f's_lshl4_add_u32 s6, s{S_MT}, s{S_NT}')
        a.emit('s_lshl2_add_u32 s6, s6, s5')
        a.emit('s_lshl_b32 s6, s6, 12')
        a.emit('s_setprio 3')
        a.emit('v_lshlrev_b32 v3, 4, v1')
        for i in range(4): a.emit(f'v_mov_b32 v{24+i}, -1')
        for i in range(4): a.emit(f'buffer_store_dwordx4 v[24:27], v3, s[{SP}:{SP+3}], s6 offen offset:{1024*i} sc1')
        a.emit('s_setprio 0')
        seq.extend(['C'] * 4)
    clr('a')
    for t in range(NPRE - NPF): iw(t)
    clr('b')
    PTH = ENV('PTH', '')
    for t in pks[:NPK - PKA]:
        pk(t)
        if PTH: a.emit(f's_waitcnt vmcnt({PTH})')
    cw(0)
    if kind == 'wo': dep_pre(a, kind, 1, len(seq))
    N2 = NPRE - NPF; pref = None
    if SPC:
        N2 = max(N2, int(ENV('N2', '0')), bars[1] + 2); NPRE = int(ENV('N3', '20'))
        assert NPRE <= TF + 21
        def pref():
            a.emit('s_mov_b32 s5, s3')
            if TF >= 0:
                a.emit(f's_waitcnt vmcnt({after(TF + 1)})')
                a.emit('s_barrier')
            for t in range(len(seq) // 2, N2): iw(t)
            a.emit('s_mov_b32 s3, s5')
            a.emit(f's_waitcnt vmcnt({after(bars[1] + 1)})')
    def postf():
        for t in range(N2, NPRE):
            if ot and slot(t) == OHB:
                a.emit(f's_waitcnt vmcnt({after(bars[0] + 1)})')
                a.emit('s_barrier')
            iw(t)
        for t in pks[NPK - PKA:]: pk(t)
    if ot and EF:
        NE = int(ENV('NE', '14')); NH = int(ENV('NH', str(NE))); NPRE = int(ENV('NGB', '20' if E2 else str(NH)))
        assert slot(NH - 1) < OHB
        dep_ef(a, lambda: [iw(t) for t in range(N2, NE)], lambda: E2 or a.emit(f's_waitcnt vmcnt({after(bars[0] + 1)})'),
               lambda: [iw(t) for t in range(NE, NH)] + [a.emit(f's_waitcnt vmcnt({after(bars[0 if E2 else 1] + 1)}) lgkmcnt(0)')])
        a.emit(f's_mov_b32 s{S_CNT}, 0x100000')
        for t in range(NH, NPRE): iw(t)
    else: dep_wait(a, kind, skip_first=kind == 'wo', preg=lambda: a.emit(f's_waitcnt vmcnt({min(after(bars[2 if SPC else 1 if ot else 0] + 1), 63)}) lgkmcnt(0)'),
             postf=postf, pref=pref, defer=bool(SPC))
    nxt = NPRE
    reg = bars[:bars.index(XS)] if P1 and not DX else bars
    clr('g')
    for j, t in enumerate(reg):
        if (SPC or ot) and j < 1 and not E2: continue
        lim = min(N, (reg[j - 1] if j else -1) + 21)
        PACE = [int(c) for c in ENV('PACE', '')] if P1 else []
        if j < len(PACE): lim = min(lim, nxt + PACE[j])
        PP = int(ENV('PP', '2'))
        pp = min(lim - 1, nxt + PP) if (SPC and t == TG) or (E2 and t == TG2) else -1
        pe = min(lim - 1, nxt + int(ENV('PE', '0'))) if ot and EF == 1 and t == TG2 else -1
        while nxt < lim:
            if nxt == pp: dep_late(a, kind, 0); seq.append('F')
            if nxt == pe:
                ef_poll(a, 'L_w2_pl', 2, True)
                lstamp(a, 2, True)
            iw(nxt); nxt += 1
            if nxt - 1 in pks: a.emit('s_waitcnt lgkmcnt(0)')
            elif nxt < lim: a.emit(f"s_waitcnt vmcnt({ENV('LTHR', '4')})")
        cw(j + 1)
        clr(str(j))
        need = [min(N - 1, bars[j + 1] + 1)] if j + 1 < len(bars) else []
        assert all(t < nxt for t in need)
        need = [max(x for x in range(t + 1) if x not in pks) for t in need]
        if P1 and not DX and j == len(reg) - 1:
            srd(a, SP, 'ws', WS_XP, 8 * MB)
            srd(a, SC, 'ws0', WS_FL, FLS)
            a.emit(f's_and_b32 s5, s{S_WV}, 3')
            a.emit(f's_lshl4_add_u32 s6, s{S_MT}, s{S_NT}')
            a.emit('s_lshl2_add_u32 s6, s6, s5')
            a.emit(f's_mul_i32 s8, s6, {CH}')
            a.emit('s_add_u32 s9, s8, 4096')
            a.emit(f's_add_u32 s7, s{S_LAYER}, 4')
            a.emit('s_lshl_b32 s7, s7, 10')
            a.emit('s_add_u32 s6, s6, s7')
            a.emit('s_lshl_b32 s6, s6, 6')
            a.emit('s_xor_b32 s7, s6, 256')
            a.emit(f's_mul_i32 s5, s5, {CH}')
            a.emit(f's_add_u32 s5, s5, {XB}')
            a.emit('v_lshlrev_b32 v3, 4, v1')
            a.emit('v_add_u32 v2, s5, v3')
            a.emit('v_mov_b32 v4, 1')
            a.emit(f's_mov_b32 s{S_CNT}, 0x100000')
        if pp >= 0: dep_late(a, kind, 1, after('F'))
        if P1 and DX == 2 and t == XS:
            srd(a, SC, 'ws0', WS_FL, FLS)
            a.emit(f's_lshl4_add_u32 s6, s{S_MT}, s{S_NT}')
            a.emit('s_xor_b32 s6, s6, 1')
            a.emit(f's_add_u32 s7, s{S_LAYER}, 4')
            a.emit('s_lshl_b32 s7, s7, 8')
            a.emit('s_add_u32 s6, s6, s7')
            a.emit(f's_lshl_b32 s{S_Q if ZD else 6}, s6, 8')
            a.emit('v_and_b32 v2, 3, v1')
            a.emit(f'v_lshlrev_b32 v{30 if ZD else 2}, 6, v2')
            a.emit(f's_mov_b32 s{S_CNT}, 0x100000')
            if ZD: need = []; assert nxt == N and (ZD == 'a' or XS >= 44)
        if P1 and DX == 2 and t == ZS:
            if ZD:
                if ENV('ZDP'): a.emit(f"s_setprio {ENV('ZDP')}")
                a.emit(f's_cmp_eq_u32 s{S_LAYER}, 0')
                a.emit(f's_cbranch_scc1 L_{kind}_zskip')
            xpoll(a, f'L_{kind}_x', SC, S_Q if ZD else 6, 30 if ZD else 2, 5)
        if kind == 'wo' and WD in ('b', 'c') and j == len(reg) - 1: assert reg[j - 1] >= 2; break
        a.emit(f's_waitcnt vmcnt({min(63, min(after(t) for t in need)) if need else 0})')
        if not ('nobar2' in DBG and P1 and 1 < j < len(bars) - 1): a.emit('s_barrier')
    if P1 and ZD: a.label(f'L_{kind}_zskip')
    assert nxt == N and (ENV('LATE_W1', '2') == '2' or (kind == 'w2' or bars[-1] >= 9) and 'w1' in OT) and ENV('LATE_ATTN', '2') == '2'
    clr('e')
    if not P1 and WD not in ('b', 'c'): a.emit('s_waitcnt vmcnt(0)')
    if P1 and not DX:
        XL = ENV('LST') == 'x'
        a.emit('s_setprio 3')
        a.emit('s_waitcnt vmcnt(0) lgkmcnt(0)')
        a.emit('s_barrier')
        for i in range(NXC): a.emit(f'ds_read_b128 v[{32+4*i}:{35+4*i}], v2 offset:{1024*i}')
        for i in range(NXC):
            a.emit(f's_waitcnt lgkmcnt({NXC-1-i})')
            if 'noxs' not in DBG: a.emit(f'buffer_store_dwordx4 v[{32+4*i}:{35+4*i}], v3, s[{SP}:{SP+3}], s{8+(i>>2)} offen offset:{1024*(i&3)} sc1')
        if XL: lstamp(a, 0)
        a.emit(f's_xor_b32 s8, s8, {4*CH}')
        a.emit(f's_xor_b32 s9, s9, {4*CH}')
        a.emit('s_mov_b64 exec, 1')
        a.emit('s_waitcnt vmcnt(0)')
        a.emit(f'buffer_store_dword v4, off, s[{SC}:{SC+3}], s6 sc1')
        if XL: lstamp(a, 1)
        if PS: a.emit('s_barrier')
        if 'nopoll' in DBG: a.emit(f's_branch L_{kind}_xgo')
        a.label(f'L_{kind}_xpoll')
        a.emit(f'buffer_load_dword v5, off, s[{SC}:{SC+3}], s7 sc1')
        a.emit(f's_sub_u32 s{S_CNT}, s{S_CNT}, 1')
        a.emit(f's_cbranch_scc1 L_{kind}_xgo')
        a.emit('s_waitcnt vmcnt(0)')
        a.emit('v_cmp_ne_u32 vcc, 1, v5')
        a.emit(f's_cbranch_vccnz L_{kind}_xpoll')
        a.label(f'L_{kind}_xgo')
        a.emit('s_mov_b64 exec, -1')
        a.emit('s_mov_b32 m0, s5')
        if XL: lstamp(a, 2)
        for i in range(NXC):
            if i == 4: a.emit('s_add_u32 m0, s5, 4096')
            if not i & 3: a.emit('s_nop 0')
            if 'noxl' not in DBG: a.emit(f'buffer_load_dwordx4 v3, s[{SP}:{SP+3}], s{8+(i>>2)} offen offset:{1024*(i&3)} lds')
        a.emit('s_waitcnt vmcnt(0)')
        if XL: lstamp(a, 3)
        a.emit('s_setprio 0')
        a.emit('s_barrier')
    loader_end(a, kind)
    a.label(end)
    a.emit('s_endpgm')
    loader_first(a, kind)
    if SPC:
        i = a.lines.index(f'  s_cbranch_scc1 L_{kind}_compute')
        del a.lines[i - 1:i + 1]
    a.label(f'L_{kind}_c1')
    return 163840
```

```python
from common import *

T4 = ENV('T4', '1') == '1'
OBAR = ENV('OBAR', '0') == '1'
def big_loop(a, tag, N, S, STAGE, naddr, VB, VA, reads, mf, variants=None, select=None, post=None, ot=None, mid=(), halo=None, hooks=None):
    def addr():
        o = [f'v_add_u32_e64 v{VA+i}, s{S_SLOT}, v{VB+i}' for i in range(naddr)]
        o += [f's_add_u32 s{S_SLOT}, s{S_SLOT}, {STAGE}', f's_cmp_eq_u32 s{S_SLOT}, {S*STAGE}', f's_cselect_b32 s{S_SLOT}, 0, s{S_SLOT}']
        return o
    a.emit(f's_mov_b32 s{S_SLOT}, 0')
    for x in addr(): a.emit(x)
    if halo:
        if hooks: own_pos(a, S_CNT)
        else: a.emit(f's_mov_b32 s{S_CNT}, {N}')
        if hooks: a.emit(f's_mul_i32 s{S_T}, s{S_LAYER}, {len(hooks)}')
        a.emit(f's_cmp_eq_u32 s{S_LAYER}, 0')
        a.emit(f's_cbranch_scc1 L_{tag}_nog')
    a.emit(f's_mov_b32 s{S_CNT}, {N - 1 if ot else N}')
    if ot:
        rd = (lambda s, ks: reads(s, ks, False)) if halo else reads
        for x in rd(0, 0): a.emit(x)
        a.emit('s_waitcnt lgkmcnt(0)')
        interleave(a, ot(0), rd(1, 1) + addr(), lead=1, per=1)
        a.emit('s_waitcnt lgkmcnt(0)')
        for x in ot(1): a.emit(x)
    if halo:
        a.emit('s_barrier')
        for x in halo[0]: a.emit(x)
        a.label(f'L_{tag}_nog')
    else:
        import pads
        for x in pads.chain('hv'): a.emit(x)
        gbar(a, tag)
    a.lines += mid
    if halo: a.emit(f's_cmp_eq_u32 s{S_LAYER}, 0')
    a.emit('s_barrier')
    stamp(a, 1)
    if halo:
        a.emit(f's_cbranch_scc1 L_{tag}_first')
        for x in halo[1] + reads(0, 0): a.emit(x)
        a.emit('s_waitcnt lgkmcnt(15)')
        for x in halo[2]: a.emit(x)
        a.emit('s_waitcnt lgkmcnt(0)')
        a.emit(f's_branch L_{tag}_loop')
        a.label(f'L_{tag}_first')
        if not DS: a.emit(f's_load_dwordx2 s[{SC}:{SC+1}], s[0:1], 72')
    for x in reads(0, 0): a.emit(x)
    a.emit('s_waitcnt lgkmcnt(0)')
    def loop(nm, m):
        la = int(ENV('LA_' + tag.upper(), '4'))
        w = a.lines.pop()
        assert w.split()[0] in ('s_waitcnt', 's_cbranch_scc1', 's_branch')
        a('.p2align 5')
        for _ in range(la - 1): a.emit('s_nop 0')
        a.lines.append(w)
        a.label(f'L_{tag}_loop{nm}')
        ad = addr()
        ad[-1] += f'\n  s_sub_u32 s{S_CNT}, s{S_CNT}, 1'
        interleave(a, m(0), reads(1, 1) + ad, lead=1, per=1)
        a.emit('s_waitcnt lgkmcnt(0)')
        a.emit('s_barrier')
        interleave(a, m(1), reads(0, 0) + [f's_cmp_lg_u32 s{S_CNT}, 0\n  s_nop 0'], lead=1, per=1)
        a.emit('s_waitcnt lgkmcnt(0)')
        a.emit(f's_cbranch_scc1 L_{tag}_loop{nm}')
    if variants:
        select()
        vs = list(variants.items())
        for i, (nm, m) in enumerate(vs):
            loop(nm, m)
            if i + 1 < len(vs): a.emit(f's_branch L_{tag}_post')
        a.label(f'L_{tag}_post')
        post()
        a.emit(f's_branch L_{tag}_exit')
    if hooks and PO0 == 0:
        a.emit(f's_cmp_eq_u32 s{S_CNT}, 0')
        a.emit(f's_cbranch_scc1 L_{tag}_lend')
    loop('', mf)
    a.label(f'L_{tag}_lend')
    if hooks:
        a.emit(f's_add_u32 s{S_T}, s{S_T}, 1')
        a.emit(f's_cmp_gt_u32 s{S_T}, {len(hooks)}')
        a.emit(f's_cbranch_scc1 L_{tag}_exit')
        for i, (t, code) in enumerate(hooks):
            if i + 1 < len(hooks):
                a.emit(f's_cmp_lg_u32 s{S_T}, {i + 1}')
                a.emit(f's_cbranch_scc1 L_{tag}_hook{i}')
            t2 = hooks[i + 1][0] if i + 1 < len(hooks) else N
            if t < 0 <= t2:
                own_pos(a, S_CNT)
                a.emit(f's_sub_u32 s{S_CNT}, {t2 + t + 1}, s{S_CNT}')
                assert t2 + t + 1 > PO0 + POM
            else: a.emit(f's_mov_b32 s{S_CNT}, {abs(t2 - t)}')
            for x in code: a.emit(x)
            a.emit(f's_branch L_{tag}_loop')
            if i + 1 < len(hooks): a.label(f'L_{tag}_hook{i}')
    a.label(f'L_{tag}_exit')
    stamp(a, 2)

def stats_loads(a, vd, halo):
    a.emit(f's_and_b32 s3, s{S_WV}, 3')
    a.emit(f's_lshl_b32 s4, s{S_MT}, 7')
    a.emit('s_lshl_b32 s5, s3, 6')
    a.emit('s_add_u32 s5, s5, s4')
    a.emit('v_add_u32 v2, s5, v1')
    a.emit('s_sub_u32 s4, s4, 16')
    a.emit('v_and_b32 v3, 15, v1')
    a.emit('v_add_u32 v3, s4, v3')
    a.emit('v_max_i32 v3, 0, v3')
    a.emit('s_cmp_ge_u32 s3, 2')
    a.emit('s_cselect_b64 vcc, -1, 0')
    a.emit('v_cndmask_b32 v2, v2, v3, vcc')
    a.emit('v_lshlrev_b32 v2, 3, v2')
    a.emit('s_mov_b32 s3, 0')
    for j in range(16):
        a.emit(f'buffer_load_dwordx2 v[{vd+2*j}:{vd+2*j+1}], v2, s[{ST}:{ST+3}], s3 offen')
        if j < 15: a.emit('s_add_u32 s3, s3, 16384')
    return 16

def stats_finish(a, vs):
    a.emit(f'v_mul_f32 v{vs}, 0x3a800000, v{vs}')
    a.emit(f'v_mul_f32 v{vs+1}, 0x3a800000, v{vs+1}')
    a.emit(f'v_fma_f32 v{vs+1}, -v{vs}, v{vs}, v{vs+1}')
    a.emit(f'v_max_f32 v{vs+1}, 0, v{vs+1}')
    a.emit(f'v_add_f32 v{vs+1}, 0x3727c5ac, v{vs+1}')
    a.emit(f'v_rsq_f32 v{vs+1}, v{vs+1}')
    a.emit('s_nop 0')

def stats_reduce_store(a, vd, LST):
    for j in range(1, 8):
        a.emit(f'v_add_f32 v{vd}, v{vd}, v{vd+2*j}')
        a.emit(f'v_add_f32 v{vd+1}, v{vd+1}, v{vd+2*j+1}')
        a.emit(f'v_add_f32 v{vd+16}, v{vd+16}, v{vd+16+2*j}')
        a.emit(f'v_add_f32 v{vd+17}, v{vd+17}, v{vd+17+2*j}')
    a.emit(f'v_add_f32 v{vd}, v{vd}, v{vd+16}')
    a.emit(f'v_add_f32 v{vd+1}, v{vd+1}, v{vd+17}')
    stats_finish(a, vd)
    a.emit(f's_and_b32 s3, s{S_WV}, 3')
    a.emit('s_lshl_b32 s5, s3, 6')
    a.emit('s_add_u32 s5, s5, 16')
    a.emit('v_add_u32 v2, s5, v1')
    a.emit('v_and_b32 v3, 15, v1')
    a.emit('s_cmp_ge_u32 s3, 2')
    a.emit('s_cselect_b64 vcc, -1, 0')
    a.emit('v_cndmask_b32 v2, v2, v3, vcc')
    a.emit('v_lshlrev_b32 v2, 2, v2')
    a.emit(f'v_add_u32 v2, {LST}, v2')
    a.emit(f'ds_write2_b32 v2, v{vd}, v{vd+1} offset0:0 offset1:160')

VST, VSH, VCS, VBI = 18, 19, 22, 23
def stats4_setup(a, halo):
    a.emit(f's_and_b32 s3, s{S_WV}, 3')
    a.emit(f's_lshl2_add_u32 s4, s{S_MT}, s3')
    a.emit('s_lshl_b32 s4, s4, 8')
    a.emit('v_lshrrev_b32 v2, 4, v1')
    a.emit('v_and_b32 v3, 15, v1')
    a.emit('v_lshl_add_u32 v3, v3, 4, s4')
    a.emit(f'v_lshl_add_u32 v{VST}, v2, 14, v3')
    if halo:
        a.emit(f's_lshl_b32 s4, s{S_MT}, 5')
        a.emit('s_add_u32 s4, s4, s3')
        a.emit('s_sub_u32 s4, s4, 4')
        a.emit('s_max_i32 s4, s4, 0')
        a.emit('s_lshl_b32 s4, s4, 5')
        a.emit('v_lshrrev_b32 v2, 2, v1')
        a.emit('v_and_b32 v3, 3, v1')
        a.emit('v_lshl_add_u32 v3, v3, 3, s4')
        a.emit(f'v_lshl_add_u32 v{VSH}, v2, 14, v3')

def quad_loads(vd, vo, sd):
    o = []
    for j in range(4):
        if j: o.append(f's_mov_b32 s3, {j << 16}')
        o.append(f'buffer_load_dwordx4 v[{vd+4*j}:{vd+4*j+3}], v{vo}, s[{sd}:{sd+3}], {"s3" if j else 0} offen')
    return o

def stats4_loads(vd, halo):
    return quad_loads(vd, VST, ST) + ([f'buffer_load_dwordx2 v[{vd+16}:{vd+17}], v{VSH}, s[{ST}:{ST+3}], 0 offen'] if halo else [])

def quad_sum(a, vd):
    pk = lambda d, s: a.emit(f'v_pk_add_f32 v[{d}:{d+1}], v[{d}:{d+1}], v[{s}:{s+1}]')
    pk(vd, vd + 4); pk(vd + 2, vd + 6); pk(vd + 8, vd + 12); pk(vd + 10, vd + 14); pk(vd, vd + 8); pk(vd + 2, vd + 10)
    a.emit('s_nop 1')
    a.emit(f'v_permlane32_swap_b32 v{vd}, v{vd+2}')
    a.emit(f'v_permlane32_swap_b32 v{vd+1}, v{vd+3}')
    pk(vd, vd + 2)

def nan_chk(a, lab, halo):
    def chk():
        a.emit('v_cmp_u_f32 vcc, v32, v33')
        if halo:
            a.emit('v_cmp_u_f32 s[4:5], v48, v49')
            a.emit('s_or_b64 s[4:5], vcc, s[4:5]')
            a.emit(f's_cbranch_scc0 {lab}ok')
        else: a.emit(f's_cbranch_vccz {lab}ok')
        a.emit(f's_sub_u32 s{S_CNT}, s{S_CNT}, 1')
        a.emit(f's_cbranch_scc1 {lab}ok')
        for x in stats4_loads(32, halo): a.emit(x + (' sc1' if x.startswith('buf') else ''))
        a.emit('s_waitcnt vmcnt(0)')
        a.emit(f's_branch {lab}chk')
        a.label(f'{lab}ok')
    a.emit(f's_mov_b32 s{S_CNT}, 0x4000')
    a.label(f'{lab}chk')
    return chk

def stats4_store(a, vd, LST, halo, chk=None):
    quad_sum(a, vd)
    if chk: chk()
    def allsum(r, op):
        a.emit(f'v_mov_b32 v{r+2}, v{r}')
        a.emit(f'v_mov_b32 v{r+3}, v{r+1}')
        a.emit('s_nop 0')
        a.emit(f'v_permlane{op}_swap_b32 v{r}, v{r+2}')
        a.emit(f'v_permlane{op}_swap_b32 v{r+1}, v{r+3}')
        a.emit(f'v_pk_add_f32 v[{r}:{r+1}], v[{r}:{r+1}], v[{r+2}:{r+3}]')
    allsum(vd, 16)
    stats_finish(a, vd)
    a.emit(f's_and_b32 s3, s{S_WV}, 3')
    a.emit('s_lshl_b32 s5, s3, 7')
    a.emit(f's_add_u32 s5, s5, {LST + 64}')
    a.emit('v_and_b32 v3, 15, v1')
    a.emit('v_lshrrev_b32 v2, 5, v1')
    a.emit('v_lshl_add_u32 v2, v3, 1, v2')
    a.emit('v_lshl_add_u32 v2, v2, 2, s5')
    a.emit(f'ds_write2_b32 v2, v{vd}, v{vd+1} offset0:0 offset1:160')
    if halo:
        h = vd + 16
        allsum(h, 32); allsum(h, 16)
        for r in (8, 4):
            a.emit('s_nop 1')
            for i in range(2): a.emit(f'v_add_f32_dpp v{h+i}, v{h+i}, v{h+i} row_ror:{r} row_mask:0xf bank_mask:0xf')
        stats_finish(a, h)
        a.emit('s_lshl_b32 s5, s3, 4')
        a.emit(f's_add_u32 s5, s5, {LST}')
        a.emit('v_and_b32 v3, 3, v1')
        a.emit('v_lshl_add_u32 v2, v3, 2, s5')
        a.emit(f'ds_write2_b32 v2, v{h}, v{h+1} offset0:0 offset1:160')

def gen_w1(a, tsidx, side, cs=(16, 16384, 0)):
    kind = 'w1'
    K = 1024; lda2 = 2048; ldw2 = 7168; ldo2 = 7168
    ot = kind in OT
    S = 3; LM = int(ENV('LM_W1', '2' if ot else '3'))
    STAGE = 16384 + 4 * 8192
    o2 = 'w2' in OT
    assert LM == 2 or not o2
    LST = OHB - 4096 if o2 else S * STAGE
    LCS = LST + 1280
    N = 16
    body = f'L_{kind}_body'; end = f'L_{kind}_end'
    VB, VA, VO = 4, 20, 12
    F = [32, 80]; ACC = 128
    acc = lambda jn, jm: ACC + (jn * 4 + jm) * 4
    fx = lambda s, jm: F[s] + jm * 4
    fw = lambda s, jn: F[s] + 16 + jn * 4
    a.label(f'L_{kind}_c0')
    if not MEGA: stub(a, f'{kind}l0_kernel', body, 0, tsidx, True)
    a.label(body)
    tile_map(a, LM, end)
    a.emit(f's_cmp_ge_u32 s{S_WV}, 4')
    a.emit(f's_cbranch_scc1 L_{kind}_loader')
    if ot and OBAR: a.emit('s_barrier')
    if NV:
        from gemm64y import w2_pre, w2_early
        w2_pre(a)
        tile_map(a, LM, None)
    a.emit(f's_and_b32 s{S_WM}, s{S_WV}, 1')
    a.emit(f's_lshr_b32 s{S_WN}, s{S_WV}, 1')
    a.emit('v_and_b32 v3, 15, v1')
    a.emit('v_lshrrev_b32 v2, 4, v1')
    a.emit(f's_lshl_b32 s8, s{S_WM}, 13')
    a.emit(f'v_lshl_add_u32 v{VB}, v1, 4, s8')
    nr = kind in NS and NSR
    wbase(a, 13, 17, nr=nr)
    a.emit(f's_lshl_b32 s9, s{S_WN}, 6')
    a.emit('v_xor_b32 v13, s9, v13')
    a.emit(f'v_add_u32 v{VB+1}, 16384, v13')
    a.emit(f'v_xor_b32 v{VB+2}, 32, v{VB+1}')
    a.emit('v_and_b32 v16, 1, v2')
    a.emit('v_lshrrev_b32 v17, 1, v2')
    if nr: a.emit('v_lshrrev_b32 v13, 2, v1')
    else:
        a.emit('v_bfe_u32 v13, v1, 2, 2')
        a.emit('v_lshl_add_u32 v13, v16, 3, v13')
        a.emit('v_lshl_add_u32 v13, v17, 5, v13')
    n2 = 'w2' in NS
    if n2:
        a.emit('v_and_b32 v14, 1, v1')
        a.emit('v_lshl_add_u32 v13, v13, 1, v14')
        a.emit(f'v_xor_b32 v14, s{S_WN}, v16')
        a.emit('v_lshl_add_u32 v13, v13, 1, v14')
        a.emit('v_bfe_u32 v14, v1, 1, 1')
        a.emit('v_lshl_add_u32 v13, v13, 1, v14')
    else:
        a.emit(f'v_xor_b32 v14, s{S_WN}, v16')
        a.emit('v_lshl_add_u32 v13, v13, 1, v14')
        a.emit('v_and_b32 v14, 3, v1')
        a.emit('v_lshl_add_u32 v13, v13, 2, v14')
    a.emit('v_lshlrev_b32 v13, 3, v13')
    a.emit(f'v_add_u32 v{VB+3}, {16384 + 3 * 8192}, v13')
    i0 = len(a.lines)
    a.emit(f's_lshl_b32 s8, s{S_MT}, 7')
    a.emit(f's_lshl_b32 s9, s{S_WM}, 6')
    a.emit('s_add_u32 s8, s8, s9')
    a.emit(f's_mul_i32 s8, s8, {ldo2}')
    a.emit('v_lshlrev_b32 v14, 8, v17')
    a.emit('v_lshl_add_u32 v14, v3, 4, v14')
    if o2:
        a.emit(f's_lshl3_add_u32 s9, s{S_WM}, s{S_WN}')
        a.emit('s_lshl_b32 s9, s9, 10')
        a.emit(f's_add_u32 s9, s9, {OHB}')
        if n2: a.emit('v_lshl_add_u32 v18, v1, 4, s9')
        else:
            a.emit('v_lshl_add_u32 v18, v16, 9, v14')
            a.emit('v_add_u32 v18, s9, v18')
        srd(a, SB, 'b2', 0, 2048)
        a.emit(f's_lshr_b32 s9, s{S_NT}, 3')
        a.emit(f's_and_b32 s10, s{S_NT}, 7')
        a.emit('s_lshl1_add_u32 s9, s10, s9')
        a.emit('s_lshl_b32 s9, s9, 7')
        a.emit('v_lshl_add_u32 v19, v2, 3, s9')
    a.emit('v_add_u32 v14, s8, v14')
    a.emit(f's_lshl_b32 s10, s{S_NT}, 11')
    a.emit(f's_lshl_b32 s9, s{S_WN}, 10')
    a.emit('s_add_u32 s9, s9, s10')
    a.emit(f'v_lshl_add_u32 v{VO}, v1, 4, s8' if n2 else f'v_lshl_add_u32 v{VO}, v16, 9, v14')
    a.emit(f'v_add_u32 v{VO}, s9, v{VO}')
    if n2: a.emit('v_lshl_add_u32 v17, v16, 2, v17')
    a.emit(f'v_mul_u32_u24 v16, {16*ldo2}, v16')
    a.emit('s_lshr_b32 s9, s9, 1')
    a.emit(f'v_add3_u32 v{VO+1}, v16, v14, s9')
    a.emit(f's_lshl_b32 s9, s{S_WM}, 8')
    a.emit(f's_add_u32 s9, s9, {LST + 64}')
    a.emit('v_lshl_add_u32 v14, v3, 2, s9')
    a.emit(f's_lshl_b32 s9, s{S_WN}, 7')
    a.emit(f's_add_u32 s9, s9, {LCS}')
    a.emit('v_lshl_add_u32 v15, v2, 4, s9')
    a.emit(f's_lshl_b32 s9, s{S_WN}, {5 if n2 else 6}')
    a.emit(f's_add_u32 s9, s9, {LCS}')
    a.emit(f'v_lshl_add_u32 v16, v{17 if n2 else 2}, 4, s9')
    for i in range(0 if ot else 112): a.emit(f'v_mov_b32 v{ACC+i}, 0')
    if not MEGA: a.emit('s_waitcnt lgkmcnt(0)')
    srd(a, SO, 'ws', WS_H, 2048 * 7168)
    if not ot: code_touch(a, 'L_w2_c0', 'L_w2_c1', 192 if SPX else 128)
    mid = []
    if ot: mid = a.lines[i0:]; del a.lines[i0:]
    def reads(s, ks):
        o = []
        if 'noread' in DBG: return o
        for jm in range(4):
            o.append(f'ds_read_b128 v[{fx(s,jm)}:{fx(s,jm)+3}], v{VA} offset:{jm*2048+ks*1024}')
        for jn in range(7):
            for h in range(2):
                r = fw(s, jn) + 2 * h
                o.append(f'ds_read_b64_tr_b16 v[{r}:{r+1}], v{VA+1+(jn&1 if jn < 6 else 2)} offset:{((jn>>1)*8192 if jn < 6 else 0)+h*(2048 if nr else 512 if jn < 6 else 256)+ks*4096}')
        return o
    def mf(s):
        o = []
        if 'nomfma' in DBG: return ['s_nop 0']
        for jn, jm in mf_order(7, 4):
            if True:
                c = acc(jn, jm)
                o.append(f'v_mfma_f32_16x16x32_bf16 v[{c}:{c+3}], v[{fw(s,jn)}:{fw(s,jn)+3}], v[{fx(s,jm)}:{fx(s,jm)+3}], v[{c}:{c+3}]')
        return o
    zc = lambda x: x[:x.rindex(',')] + ', 0'
    big_loop(a, kind, N, S, STAGE, 4, VB, VA, reads, mf, ot=(lambda s: mf(1) if s else [zc(x) for x in mf(0)]) if ot else None, mid=mid)
    if ENV('XSE'): a.emit(f"s_sleep {ENV('XSE')}")
    CS = 32; BI = 60; STT = 88; CK = 96; T = 100; D = 108
    for jm in range(4):
        a.emit(f'ds_read2_b32 v[{STT+2*jm}:{STT+2*jm+1}], v14 offset0:{16*jm} offset1:{160+16*jm}')
    for jn in range(7):
        a.emit(f'ds_read_b128 v[{CS+4*jn}:{CS+4*jn+3}], v{15 if jn < 6 else 16} offset:{(jn>>1)*256+(jn&1)*64}')
        a.emit(f'ds_read_b128 v[{BI+4*jn}:{BI+4*jn+3}], v{15 if jn < 6 else 16} offset:{1024+(jn>>1)*256+(jn&1)*64}')
    for jn in range(4 if o2 else 0):
        a.emit(f'buffer_load_dwordx2 v[{OBIA[jn]}:{OBIA[jn]+1}], v19, s[{SB}:{SB+3}], 0 offen offset:{jn*32}')
    c0 = -2.0 * 0.7978845608028654 * 1.4426950408889634
    c1 = c0 * 0.044715
    a.emit(f'v_mov_b32 v{CK}, {f2u(c0):#x}')
    a.emit(f'v_mov_b32 v{CK+1}, {f2u(c1):#x}')
    a.emit(f'v_mov_b32 v{CK+2}, 1.0')
    a.emit('s_waitcnt lgkmcnt(0)')
    for jm in range(4):
        a.emit(f'v_mul_f32 v{STT+2*jm}, v{STT+2*jm}, v{STT+2*jm+1}')
    def tile_math(jn, jm, d):
        c = acc(jn, jm)
        seqs = []
        ST2 = f'v[{STT+2*jm}:{STT+2*jm+1}]'
        for q in range(2):
            x = c + 2 * q; t = T + 2 * q + 4 * (jn & 1)
            X = f'v[{x}:{x+1}]'; TT = f'v[{t}:{t+1}]'
            seqs.append([
              f'v_pk_fma_f32 {TT}, v[{CS+4*jn+2*q}:{CS+4*jn+2*q+1}], {ST2}, v[{BI+4*jn+2*q}:{BI+4*jn+2*q+1}] op_sel:[0,0,0] op_sel_hi:[1,0,1] neg_lo:[0,1,0] neg_hi:[0,1,0]',
              f'v_pk_fma_f32 {X}, {X}, {ST2}, {TT} op_sel:[0,1,0] op_sel_hi:[1,1,1]',
              f'v_pk_mul_f32 {TT}, {X}, {X}',
              f'v_pk_fma_f32 {TT}, {TT}, v[{CK}:{CK+1}], v[{CK}:{CK+1}] op_sel:[0,1,0] op_sel_hi:[1,1,0]',
              f'v_pk_mul_f32 {TT}, {TT}, {X}',
              f'v_exp_f32 v{t}, v{t}\n  v_exp_f32 v{t+1}, v{t+1}',
              f'v_pk_add_f32 {TT}, {TT}, v[{CK+2}:{CK+3}] op_sel_hi:[1,0]',
              f'v_rcp_f32 v{t}, v{t}\n  v_rcp_f32 v{t+1}, v{t+1}',
              f'v_pk_mul_f32 {X}, {X}, {TT}',
              f'v_cvt_pk_bf16_f32 v{d+q}, v{x}, v{x+1}'])
        for ia, ib in zip(*seqs):
            a.emit(ia); a.emit(ib)
    cnt = [0]
    def pair(t0, t1, vo, soff, big=False):
        d = D + 4 * (cnt[0] % 4); cnt[0] += 1
        tile_math(*t0, d); tile_math(*t1, d + 2)
        a.emit(f's_add_u32 s3, s10, {soff}' if big else f's_mov_b32 s3, {soff}')
        if not n2 or t0[0] == 6:
            a.emit('s_nop 0')
            a.emit(f'v_permlane16_swap_b32 v{d}, v{d+2}')
            a.emit(f'v_permlane16_swap_b32 v{d+1}, v{d+3}')
        a.emit(f'buffer_store_dwordx4 v[{d}:{d+3}], v{vo}, s[{SO}:{SO+3}], s3 offen' + (stf(kind) if str(t0[0] // 2) in ENV('WTP', '0123') else ' ' + ENV('WTQ', '')))
        if o2 and t0[0] < 6: a.emit(f'ds_write_b128 v18, v[{d}:{d+3}] offset:{(t0[0] // 2 + 2) % 3 * 16384 + t0[1] * 2048}')
    pr = lambda p, jm: pair((2 * p, jm), (2 * p + 1, jm), VO, jm * 16 * ldo2 + (46 + 2 * p) * 1024 * (p > 0), p > 0)
    od = lambda jm: pair((6, jm), (6, jm + 1), VO + 1, jm * 16 * ldo2 + 32768)
    order = [lambda jm=jm: pr(0, jm) for jm in range(4)] + [lambda: od(0), lambda: od(2)] + [lambda jm=jm, p=p: pr(p, jm) for jm in range(4) for p in (1, 2)]
    EW = int(ENV('EW', '10'))
    if EF: order = [lambda: od(0), lambda: od(2)] + [lambda jm=jm, p=p: pr(p, jm) for p in (1, 2, 0) for jm in range(4)]
    for i, f in enumerate(order):
        f()
        if NV and i + 1 == EX: w2_early(a)
        if (EARLY or EF) and i + 1 == EW:
            a.emit(f's_waitcnt vmcnt({EW - (6 if EF else EARLY // 4)})')
            a.emit('s_barrier')
    if ENV('ES'): stamp(a, 1)
    compute_end(a, kind)
    a.label(f'L_{kind}_loader')
    L = Loader(a, kind, K, lda2, ldw2, [0, f's{S_HD}', 's_add_u32 s4, s4, 128'], 128, S, STAGE, rot=int(ENV('ROT_W1', '0')), xblk=True, half=2048)
    L.ot = int(ot)
    L.setup()
    a.emit('s_waitcnt lgkmcnt(0)')
    if WD: srd(a, SW, 'w1', 0, 1024 * 7168)
    iw0 = len(a.lines)
    if WD == 'b':
        a.emit('s_waitcnt vmcnt(7)')
        a.emit('s_barrier')
    if ot and ENV('CT2', 'l') == 'l': code_touch(a, 'L_w2_c0', 'L_w2_c1', 192, loader=True)
    srd(a, SX, 'ws', WS_X1, 4 * MB)
    if not WD: srd(a, SW, 'w1', 0, 1024 * 7168)
    srd(a, ST, 'ws', WS_ST, 16 * 16384); srd(a, SC, 'ws0', WS_CS, 16 * 16384); srd(a, SB, 'b1', 0, 7168)
    def tail():
        stats_loads(a, 32, False)
        a.emit(f's_lshl_b32 s4, s{S_NT}, 7')
        a.emit(f's_lshl_b32 s5, s{S_WV}, 6')
        a.emit('s_add_u32 s4, s4, s5')
        a.emit(f's_add_u32 s4, s4, {1472 - 256}')
        a.emit(f's_lshl_b32 s5, s{S_NT}, 6')
        a.emit(f's_cmp_eq_u32 s{S_WV}, 4')
        a.emit('s_cselect_b32 s4, s5, s4')
        a.emit('s_lshr_b32 s5, s5, 1')
        a.emit('s_add_u32 s5, s5, 1024')
        a.emit(f's_cmp_eq_u32 s{S_WV}, 7')
        a.emit('s_cselect_b32 s4, s5, s4')
        a.emit('v_add_u32 v3, s4, v1')
        a.emit('v_lshlrev_b32 v2, 2, v3')
        a.emit('v_lshlrev_b32 v3, 1, v3')
        a.emit(f's_mov_b32 s3, {cs[2]}')
        for j in range(16):
            if j < cs[0]:
                a.emit(f'buffer_load_dword v{64+j}, v2, s[{SC}:{SC+3}], s3 offen')
                if j < cs[0] - 1: a.emit(f's_add_u32 s3, s3, {cs[1]}')
            else:
                a.emit(f'v_mov_b32 v{64+j}, 0')
        a.emit(f'buffer_load_ushort v80, v3, s[{SB}:{SB+3}], 0 offen')
        side(a, 'issue')
    ns = side(Asm(), 'issue')
    extra = None
    if VW:
        assert int(ENV('LM_W2', '2')) == 2
        srd(a, SR, 'w2', 0, 3584 * 2048)
        a.emit('s_and_b32 s5, s2, 3')
        a.emit('s_lshl_b32 s5, s5, 2')
        a.emit(f's_and_b32 s6, s{S_CU}, 3')
        a.emit('s_add_u32 s5, s5, s6')
        a.emit('s_and_b32 s6, s2, 4')
        a.emit('s_lshl_b32 s6, s6, 1')
        a.emit(f's_lshr_b32 s7, s{S_CU}, 2')
        a.emit('s_add_u32 s6, s6, s7')
        rot_table(a, S_TB, 5, 6, 'w2')
        a.emit(f's_add_u32 s5, s5, s{S_WV}')
        a.emit('s_and_b32 s5, s5, 3')
        wvoff(a, 16, 5, 6, 2048)
        sched = [int(c) for c in ENV('PSCH', '0111111111111122')]
        assert sum(sched) >= NV1
        def extra(i):
            o = []
            for p in range(sum(sched[:i]), min(NV1, sum(sched[:i + 1]))): o += park(56, 2 * p, 128 + 8 * p, 16, SR)
            return o
        ns += sum(x.startswith('buffer_load') for i in (13, 14, 15) for x in extra(i))
    if XD:
        extra = tail_parks('w2', SR, lambda b: srd(b, SR, 'w2', 0, 3584 * 2048))
        ns += 2 * sum(TSCH['w2'])
    if XD and ENV('PFL', '2') == '3':
        b = Asm(); side(b, 'late'); pl = [l.strip() for l in b.lines]
        pl = [l.replace('v2,', 'v18,').replace(', v2', ', v18').replace('s3', 's93') for l in pl]
        i0 = min(i for i, l in enumerate(pl) if l.startswith('buffer_load'))
        for l in pl[:i0]: a.emit(l)
        st = [int(x) for x in ENV('PFS', '6,10').split(',')]
        extra = lambda i: pl[i0 + 2 * st.index(i):i0 + 2 * st.index(i) + 2] if i in st else []
    def final():
        a.emit(f's_waitcnt vmcnt({ns})')
        if ENV('PFL', '2') == '1': side(a, 'late')
        stats_reduce_store(a, 32, LST)
        for j in range(8): a.emit(f'v_add_f32 v{64+j}, v{64+j}, v{72+j}')
        for j in range(4): a.emit(f'v_add_f32 v{64+j}, v{64+j}, v{68+j}')
        a.emit('v_add_f32 v64, v64, v65')
        a.emit('v_add_f32 v66, v66, v67')
        a.emit('v_add_f32 v64, v64, v66')
        a.emit('v_lshlrev_b32 v80, 16, v80')
        a.emit('v_lshlrev_b32 v2, 2, v0')
        a.emit(f'v_add_u32 v2, {LCS - 1024}, v2')
        a.emit('ds_write_b32 v2, v64')
        a.emit('ds_write_b32 v2, v80 offset:1024')
        a.emit('s_waitcnt lgkmcnt(0)')
    import sides
    if T4:
        stats4_setup(a, False)
        a.emit(f's_lshl_b32 s4, s{S_NT}, 7')
        a.emit(f's_lshl_b32 s5, s{S_WV}, 6')
        a.emit('s_add_u32 s4, s4, s5')
        a.emit(f's_add_u32 s4, s4, {1472 - 256}')
        a.emit(f's_lshl_b32 s5, s{S_NT}, 6')
        a.emit(f's_cmp_eq_u32 s{S_WV}, 4')
        a.emit('s_cselect_b32 s4, s5, s4')
        a.emit('s_lshr_b32 s5, s5, 1')
        a.emit('s_add_u32 s5, s5, 1024')
        a.emit(f's_cmp_eq_u32 s{S_WV}, 7')
        a.emit('s_cselect_b32 s4, s5, s4')
        a.emit('v_and_b32 v3, 15, v1')
        a.emit('v_lshl_add_u32 v3, v3, 2, s4')
        a.emit('v_lshrrev_b32 v2, 4, v1')
        a.emit(f'v_add_lshl_u32 v{VBI}, v3, v2, 1')
        a.emit('v_lshlrev_b32 v3, 2, v3')
        a.emit(f'v_lshl_add_u32 v{VCS}, v2, 14, v3')
        CSI = int(ENV('CSI', '14')); STI = int(ENV('STI', '14'))
        LP2 = ENV('LP2', ''); LP0 = int(ENV('LP0', '5'))
        if LP2:
            a.emit(f's_and_b32 s3, s{S_MT}, 3')
            a.emit(f's_lshl2_add_u32 s3, s3, s{S_WV}')
            a.emit('s_sub_u32 s3, s3, 4')
            a.emit(f's_and_b32 s4, s{S_NT}, 7')
            a.emit('s_lshl_b32 s4, s4, 8')
            a.emit('s_lshl_b32 s5, s3, 14')
            a.emit('s_add_u32 s5, s5, s4')
            a.emit(f's_lshl_b32 s{SR}, s{S_NT}, 18')
            a.emit(f's_add_u32 s{SR}, s{SR}, {24 << 17}')
            a.emit(f's_add_u32 s{SR}, s{SR}, s5')
            a.emit(f's_and_b32 s{SR+1}, s{S_NT}, 8')
            a.emit(f's_lshl_b32 s{SR+1}, s{SR+1}, 16')
            a.emit(f's_add_u32 s{SR+1}, s{SR+1}, {16 << 17}')
            a.emit(f's_add_u32 s{SR+1}, s{SR+1}, s5')
            a.emit('s_lshr_b32 s5, s3, 1')
            a.emit(f's_lshl3_add_u32 s5, s{S_NT}, s5')
            a.emit('s_lshl_b32 s5, s5, 14')
            a.emit('s_and_b32 s3, s3, 1')
            a.emit('s_lshl_b32 s3, s3, 7')
            a.emit('s_add_u32 s4, s4, s3')
            a.emit(f's_add_u32 s{SR+2}, s5, s4')
            a.emit(f's_add_u32 s{SR+3}, s{SR+1}, {2 << 17}')
        def extra4(i):
            o = []
            if LP2 and i == LP0 - 1:
                b = Asm(); srd(b, SO, 'w2', 0, 3584 * 2048); o += [l.strip() for l in b.lines]
            if LP2 and LP0 <= i < LP0 + 8:
                for k, c in enumerate('ABCD'):
                    if c in LP2: o += [f's_buffer_load_dword s84, s[{SO}:{SO+3}], s{SR+k} offset:{64*j}' for j in range(2 if c == 'C' else 4)] + [f's_add_u32 s{SR+k}, s{SR+k}, 2048']
            if i == CSI: o += quad_loads(64, VCS, SC) + [f'buffer_load_ushort v80, v{VBI}, s[{SB}:{SB+3}], 0 offen']
            if i == STI: o += stats4_loads(32, False)
            return o
        def final4():
            a.emit('s_waitcnt vmcnt(0)')
            stats4_store(a, 32, LST, False, nan_chk(a, 'L_w1_s', False) if SF else None)
            quad_sum(a, 64)
            a.emit('v_lshlrev_b32 v80, 16, v80')
            a.emit('s_lshl_b32 s5, s3, 8')
            a.emit(f's_add_u32 s5, s5, {LCS}')
            a.emit('v_permlane16_swap_b32 v64, v65')
            a.emit('v_lshrrev_b32 v2, 4, v1')
            a.emit('v_lshl_add_u32 v2, v3, 2, v2')
            a.emit('v_lshl_add_u32 v2, v2, 2, s5')
            a.emit('v_add_f32 v64, v64, v65')
            a.emit('ds_write2st64_b32 v2, v64, v80 offset0:0 offset1:4')
            a.emit('s_waitcnt lgkmcnt(0)')
        assert ns == 0
        pst = sides.stouch_post(a, kind)
        if WD == 'c':
            a.emit('s_waitcnt vmcnt(0)')
            a.emit('s_barrier')
        elif WD: L.after_own = a.lines[iw0:]; del a.lines[iw0:]
        L.run(final=final4, extra=extra4, post=pst, dep=lambda pf: dep_wait(a, kind, postf=pf, obar=L.npre - 6 if ot and OBAR else 0, pref=(lambda: a.emit(f's_waitcnt vmcnt({L.npre - 7})')) if ot and not OBAR else None))
    else: L.run(tail_issue=tail, ntail_vm=17 + cs[0] + side(Asm(), 'issue'), final=final, extra=extra, post=sides.stouch_post(a, kind),
          dep=(lambda pf: dep_wait(a, kind, postf=pf)) if MEGA else None)
    if ENV('PFL', '2') == '2': side(a, 'late')
    if not VW: side(a, 'finish')
    loader_end(a, kind)
    a.label(end)
    a.emit('s_endpgm')
    loader_first(a, kind)
    if not MEGA:
        a(KD.format(name=f'{kind}l0_kernel'))
        stub(a, f'{kind}l1_kernel', body, 1, tsidx + 4, False)
        a(KD.format(name=f'{kind}l1_kernel'))
    a.label(f'L_{kind}_c1')
    return LCS + 2048
```

```python
from common import *
from gemmw1 import *

def res_addr(a, swv, sd, v):
    assert int(ENV('LM_WO', '2')) == 2 and int(ENV('LM_W2', '2')) == 2
    srd(a, sd, 'A_x', 0, 4 * MB)
    a.emit('s_and_b32 s3, s2, 3')
    a.emit(f's_and_b32 s4, s{S_CU}, 3')
    a.emit('s_lshl2_add_u32 s3, s3, s4')
    a.emit(f's_lshl2_add_u32 s3, s3, s{swv}')
    a.emit('s_lshl_b32 s3, s3, 16')
    a.emit('s_bfe_u32 s4, s2, 0x10002' if SPX else 's_and_b32 s4, s2, 4')
    a.emit(f's_lshr_b32 s5, s{S_CU}, 2')
    a.emit('s_lshl1_add_u32 s4, s5, s4' if SPX else 's_lshl1_add_u32 s4, s4, s5')
    a.emit('s_lshl_b32 s4, s4, 7')
    a.emit('s_add_u32 s3, s3, s4')
    a.emit('s_add_u32 s4, s3, 32768')
    a.emit(f'v_and_b32 v{v}, 15, v1')
    a.emit(f'v_lshlrev_b32 v{v+1}, 1, v1')
    a.emit(f'v_and_b32 v{v+1}, 32, v{v+1}')
    a.emit(f'v_lshl_add_u32 v{v}, v{v}, 11, v{v+1}')
    a.emit(f'v_lshrrev_b32 v{v+1}, 1, v1')
    a.emit(f'v_and_b32 v{v+1}, 16, v{v+1}')
    a.emit(f'v_add_u32 v{v}, v{v}, v{v+1}')

def dbg_off(a, v):
    a.emit(f's_lshl_b32 s3, s{S_MT}, 2')
    a.emit('s_sub_u32 s3, s3, 4')
    a.emit(f'v_and_b32 v{v}, 7, v1')
    a.emit(f'v_add_u32 v{v}, s3, v{v}')
    a.emit(f'v_max_i32 v{v}, 0, v{v}')
    a.emit(f'v_lshlrev_b32 v{v}, 2, v{v}')

def res_loads(vd, v, sd):
    return [f'buffer_load_dwordx4 v[{vd+4*i}:{vd+3+4*i}], v{v}, s[{sd}:{sd+3}], s{3+(i>>1)} offen offset:{64*(i&1)}' for i in range(4)]

def gen_qkv(a, tsidx, side):
    kind = 'attn'
    K = 1024; lda2 = 2048; ldw2 = 6144
    S = 3; LM = int(ENV('LM_QKV', '3'))
    XH = 16384 + 6 * 4096
    STAGE = XH + 2048
    LST = S * STAGE
    EX = 1024
    N = 16
    body = f'L_{kind}_body'; end = f'L_{kind}_end'
    VB, VA = 4, 10
    VXW, VPE, VPO, VCE, VCO, VVE, VVO, VS1, VS4, VKA, VKB, MAP, MAC, MBP, MBC, VO = range(16, 32)
    M_ODD, M_UPA, M_UPB, M_FA, M_FB = 48, 50, 52, 54, 14
    F = [32, 76]; ACC = 128; HACC = 224; ONES = 236
    acc = lambda jn, jm: ACC + (jn * 4 + jm) * 4
    fx = lambda s, jm: F[s] + jm * 4
    fw = lambda s, jn: F[s] + 20 + jn * 4
    a.label(f'L_{kind}_c0')
    stub(a, f'{kind}l0_kernel', body, 0, tsidx, True)
    a.label(body)
    ot = kind in OT
    HX = LST + 1280
    tile_map(a, LM, end)
    if ot and LM != 2:
        a.emit(f's_cmp_eq_u32 s{S_LAYER}, 0')
        a.emit(f's_cbranch_scc1 L_{kind}_map')
        tile_map(a, 2, None)
        a.label(f'L_{kind}_map')
    a.emit(f's_cmp_ge_u32 s{S_WV}, 4')
    a.emit(f's_cbranch_scc1 L_{kind}_loader')
    if ENV('CTE', '1') == '1': code_touch(a, 'L_attn_c0', 'L_w2_c1', int(ENV('CTN', '320')))
    a.emit(f's_and_b32 s{S_WM}, s{S_WV}, 1')
    a.emit(f's_lshr_b32 s{S_WN}, s{S_WV}, 1')
    a.emit('v_and_b32 v3, 31, v1')
    a.emit('v_lshlrev_b32 v3, 2, v3')
    a.emit(f'v_add_u32 v3, {XH}, v3')
    for i in range(4): a.emit(f'v_mov_b32 v{ONES+i}, 0x3f803f80')
    a.emit(f'ds_write_b32 v3, v{ONES}')
    a.emit(f'ds_write_b32 v3, v{ONES} offset:{STAGE}')
    a.emit(f'v_add_u32 v3, {2*STAGE}, v3')
    a.emit(f'ds_write_b32 v3, v{ONES}')
    if ot: a.emit(f'ds_write_b32 v3, v{ONES} offset:{HX - XH - 2 * STAGE}')
    a.emit('v_and_b32 v3, 15, v1')
    a.emit('v_lshrrev_b32 v2, 4, v1')
    a.emit('v_lshrrev_b32 v33, 1, v3')
    a.emit(f's_lshl_b32 s8, s{S_WM}, 13')
    for ks in range(2):
        if ks: a.emit(f'v_add_u32 v{VB+ks}, 4, v2')
        a.emit(f'v_xor_b32 v{VB+ks}, v{VB+ks if ks else 2}, v33')
        a.emit(f'v_lshlrev_b32 v{VB+ks}, 4, v{VB+ks}')
        a.emit(f'v_lshl_add_u32 v{VB+ks}, v3, 7, v{VB+ks}')
        a.emit(f'v_add_u32 v{VB+4+ks}, {XH}, v{VB+ks}')
        a.emit(f'v_add_u32 v{VB+ks}, s8, v{VB+ks}')
    wbase(a, 34, 33)
    a.emit(f's_lshl_b32 s8, s{S_WV}, 5')
    a.emit('v_xor_b32 v34, s8, v34')
    a.emit(f'v_add_u32 v{VB+2}, 16384, v34')
    a.emit(f'v_xor_b32 v{VB+3}, 32, v{VB+2}')
    i0 = len(a.lines)
    a.emit('v_and_b32 v35, 1, v2')
    a.emit(f'v_xor_b32 v35, s{S_WM}, v35')
    a.emit(f's_lshl_b32 s8, s{S_MT}, 7')
    a.emit(f's_lshl_b32 s9, s{S_WM}, 6')
    a.emit('s_add_u32 s8, s8, s9')
    a.emit(f's_add_u32 s10, s8, s{S_NT}')
    a.emit('s_lshl_b32 s10, s10, 11')
    a.emit(f's_lshl_b32 s11, s{S_WN}, 10')
    a.emit('s_add_u32 s10, s10, s11')
    if 'wo' in NS: a.emit(f'v_lshl_add_u32 v{VO}, v1, 4, s10')
    else:
        a.emit('v_lshl_add_u32 v33, v3, 4, s10')
        a.emit('v_lshl_add_u32 v33, v35, 9, v33')
        a.emit('v_lshrrev_b32 v34, 1, v2')
        a.emit(f'v_lshl_add_u32 v{VO}, v34, 8, v33')
    a.emit(f's_mul_i32 s10, s{S_WN}, {14336 if XD else 24576}')
    a.emit(f's_add_u32 s10, s10, {EX}')
    a.emit(f's_lshl_b32 s11, s{S_WM}, 10')
    a.emit('s_add_u32 s4, s10, s11')
    a.emit('s_sub_u32 s5, s10, s11')
    a.emit(f's_mul_i32 s6, s{S_WM}, 6144')
    a.emit(f'v_lshl_add_u32 v{VXW}, v1, 4, s4')
    a.emit(f'v_add_u32 v{VPE}, s6, v{VXW}')
    a.emit(f'v_lshl_add_u32 v{VPO}, v1, 4, s5')
    a.emit(f'v_add_u32 v{VPO}, s6, v{VPO}')
    a.emit(f'v_lshl_add_u32 v{VCE}, v2, 8, s4')
    a.emit(f'v_lshl_add_u32 v{VCO}, v2, 8, s5')
    a.emit(f'v_lshl_add_u32 v{VVE}, v3, 4, s4')
    a.emit(f'v_lshl_add_u32 v{VVO}, v3, 4, s5')
    a.emit(f's_lshl_b32 s10, s{S_WM}, 8')
    a.emit(f's_add_u32 s10, s10, {LST}')
    a.emit(f'v_lshl_add_u32 v{VS1}, v3, 2, s10')
    a.emit(f'v_lshl_add_u32 v{VS4}, v2, 4, s10')
    a.emit('v_and_b32 v33, 1, v3')
    a.emit(f'v_cmp_eq_u32 s[{M_ODD}:{M_ODD+1}], 1, v33')
    a.emit('v_lshl_add_u32 v34, v2, 2, v33')
    a.emit('v_add_u32 v35, 2, v34')
    a.emit(f'v_cmp_gt_u32 s[{M_UPA}:{M_UPA+1}], v34, v3')
    a.emit(f'v_cmp_gt_u32 s[{M_UPB}:{M_UPB+1}], v35, v3')
    a.emit('v_mov_b32 v36, 0xffff')
    a.emit('v_mov_b32 v37, 0xffff0000')
    a.emit(f'v_cndmask_b32 v36, v36, v37, s[{M_ODD}:{M_ODD+1}]')
    a.emit(f's_add_u32 s10, s10, {640 + 64}')
    a.emit('v_lshl_add_u32 v34, v34, 2, s10')
    a.emit('v_lshl_add_u32 v35, v35, 2, s10')
    a.emit('v_subrev_u32 v38, 64, v34')
    a.emit('v_subrev_u32 v39, 64, v35')
    a.emit(f'v_cndmask_b32 v{VKA}, v34, v38, s[{M_UPA}:{M_UPA+1}]')
    a.emit(f'v_cndmask_b32 v{VKB}, v35, v39, s[{M_UPB}:{M_UPB+1}]')
    a.emit(f'v_cndmask_b32 v{MAP}, 0, v36, s[{M_UPA}:{M_UPA+1}]')
    a.emit(f'v_cndmask_b32 v{MBP}, 0, v36, s[{M_UPB}:{M_UPB+1}]')
    a.emit(f'v_xor_b32 v{MAC}, v{MAP}, v36')
    a.emit(f'v_xor_b32 v{MBC}, v{MBP}, v36')
    a.emit('s_cmp_eq_u32 s8, 0')
    a.emit(f's_cselect_b64 s[{M_FA}:{M_FA+1}], s[{M_UPA}:{M_UPA+1}], 0')
    a.emit(f's_cselect_b64 s[{M_FB}:{M_FB+1}], s[{M_UPB}:{M_UPB+1}], 0')
    if ot:
        a.emit(f's_cmp_lg_u32 s{S_LAYER}, 0')
        a.emit(f's_cbranch_scc1 L_{kind}_nozero')
    for i in list(range(122 if DS else 120, 236)) + ([] if XD else list(range(240, 256))): a.emit(f'v_mov_b32 v{i}, 0')
    if DS:
        a.emit('s_waitcnt lgkmcnt(0)')
        a.emit(f's_lshl_b32 s3, s{S_WN}, 5')
        a.emit('s_add_u32 s3, s3, s8')
        a.emit(f's_lshl_b32 s4, s{S_NT}, 14')
        a.emit('s_lshl3_add_u32 s3, s3, s4')
        a.emit('v_lshrrev_b32 v121, 1, v2')
        a.emit('v_lshl_add_u32 v121, v121, 4, v3')
        a.emit('v_and_b32 v120, 1, v2')
        a.emit('v_lshl_add_u32 v121, v121, 1, v120')
        a.emit('v_lshl_add_u32 v120, v121, 2, s3')
        srd(a, ST, 'ws0', WS_ST0, 16 * 16384)
        srd(a, SP, 'ws0', WS_FL, FLS)
        a.emit('s_lshl_b32 s3, s2, 11')
        if D2:
            a.emit(f's_cmp_lg_u32 s{S_WV}, 0')
            a.emit(f's_cbranch_scc1 L_{kind}_noclr')
            a.emit(f's_lshl_b32 s5, s{S_MT}, 10')
            a.emit('s_add_u32 s4, s4, s5')
            a.emit('v_lshlrev_b32 v121, 4, v1')
            for i in range(4): a.emit(f'v_mov_b32 v{40+i}, -1')
            a.emit(f'buffer_store_dwordx4 v[40:43], v121, s[{ST}:{ST+3}], s4 offen sc1')
            for i in range(2): a.emit(f'buffer_store_dwordx4 v[128:131], v121, s[{SP}:{SP+3}], s3 offen offset:{1024*i} sc1')
            a.emit('v_mov_b32 v126, 1')
            a.label(f'L_{kind}_noclr')
        else:
            a.emit('v_lshlrev_b32 v121, 3, v0')
            a.emit(f'buffer_store_dwordx2 v[126:127], v121, s[{SP}:{SP+3}], s3 offen sc1')
            dbg_off(a, 121)
        a.emit(f's_and_b32 s{SC+1}, s{SC+1}, 0xffff')
        a.emit(f's_mov_b32 s{SC+2}, 256')
        a.emit(f's_mov_b32 s{SC+3}, 0x00020000')
        a.emit('s_mov_b32 s7, 0x3f803f80')
    if ot: a.label(f'L_{kind}_nozero')
    a.emit('s_waitcnt lgkmcnt(0)')
    srd(a, SO, 'ws', WS_O, 4 * MB)
    clear_flags(a, 0)
    if ENV('CTE', '1') == '0': code_touch(a, 'L_attn_c0', 'L_w2_c1', int(ENV('CTN', '320')))
    import pads
    CLQ = ENV('DX', '2') == '1' and ENV('CLP', 'e') == 'q'
    if CLQ:
        srd(a, ST, 'ws', WS_XP, 4 * MB)
        a.emit(f's_or_b32 s{ST+1}, s{ST+1}, 0x100000')
        a.emit(f's_mov_b32 s{ST+3}, 0x00800000')
        a.emit('s_and_b32 s3, s2, 3')
        a.emit(f's_and_b32 s4, s{S_CU}, 3')
        a.emit('s_lshl2_add_u32 s3, s3, s4')
        a.emit('s_bfe_u32 s4, s2, 0x10002')
        a.emit(f's_lshr_b32 s5, s{S_CU}, 2')
        a.emit('s_lshl1_add_u32 s4, s5, s4')
        a.emit('s_lshl4_add_u32 s3, s3, s4')
        a.emit(f's_lshl2_add_u32 s3, s3, s{S_WV}')
        a.emit(f's_lshl_b32 s{S_T}, s3, 12')
        for i in range(4): a.emit(f'v_mov_b32 v{116+i}, -1')
    def warm():
        a.emit(f's_cmp_lg_u32 s{S_LAYER}, 0')
        a.emit(f's_cbranch_scc1 L_{kind}_nowarm')
        a.emit('s_lshl_b32 s3, s2, 2')
        a.emit(f's_add_u32 s3, s3, s{S_WV}')
        srd(a, SX, 'xs', 0, 4 * MB); srd(a, SW, 'wqkv', 0, 6 * MB)
        a.emit('v_min_u32 v126, 31, v1')
        a.emit('v_min_u32 v127, 47, v1')
        a.emit('v_lshlrev_b32 v126, 7, v126')
        a.emit('v_lshlrev_b32 v127, 7, v127')
        a.emit('s_lshl_b32 s4, s3, 12')
        a.emit(f's_mul_i32 s5, s3, {48 * 128}')
        a.emit(f'buffer_load_dword v2, v126, s[{SX}:{SX+3}], s4 offen')
        a.emit(f'buffer_load_dword v3, v127, s[{SW}:{SW+3}], s5 offen')
        a.emit('v_mov_b32 v126, 0')
        a.emit('v_mov_b32 v127, 0')
        a.label(f'L_{kind}_nowarm')
    WARM = ENV('WARM', '0')
    if WARM == '1': warm()
    mid = []
    if ot: mid = a.lines[i0:]; del a.lines[i0:]
    def reads(s, ks, hl=True):
        o = []
        if 'noread' in DBG: return o
        for jm in range(4):
            o.append(f'ds_read_b128 v[{fx(s,jm)}:{fx(s,jm)+3}], v{VA+ks} offset:{jm*2048}')
        if hl: o.append(f'ds_read_b128 v[{fx(s,4)}:{fx(s,4)+3}], v{VA+4+ks}')
        for jn in range(6):
            for h in range(2):
                r = fw(s, jn) + 2 * h
                o.append(f'ds_read_b64_tr_b16 v[{r}:{r+1}], v{VA+2+(jn&1)} offset:{(jn>>1)*8192+ks*4096+h*512}')
        return o
    def mfma(c, x, y, cin=None):
        return f'v_mfma_f32_16x16x32_bf16 v[{c}:{c+3}], v[{x}:{x+3}], v[{y}:{y+3}], ' + (f'v[{c}:{c+3}]' if cin is None else cin)
    def mf(s):
        o = []
        if 'nomfma' in DBG: return ['s_nop 0']
        for jn, jm in mf_order(6, 5, lambda jn, jm: jm == 4 and jn & 1):
            if True:
                c = acc(jn, jm) if jm < 4 else HACC + (jn >> 1) * 4
                o.append(mfma(c, fw(s, jn), fx(s, jm)) if jn < 4 else mfma(c, fx(s, jm), fw(s, jn)))
        return o
    SA = [(240, 244), (248, 252), (120, 124)]
    def mfv(hh):
        def f(s):
            o = mf(s)
            ex = []
            for i, jm in enumerate([2 * hh, 2 * hh + 1] + ([4] if hh == 0 else [])):
                ex.append(mfma(SA[i][0], ONES, fx(s, jm)))
                ex.append(mfma(SA[i][1], fx(s, jm), fx(s, jm)))
            return o if 'nostat' in DBG else ex + o
        return f
    def select():
        if CLQ:
            for i in range(4): a.emit(f'buffer_store_dwordx4 v[116:119], off, s[{ST}:{ST+3}], s{S_T} offset:{1024*i} sc1')
        if WARM == '2': warm(); a.emit('s_nop 1')
        if not ot:
            a.emit(f's_cmp_lg_u32 s{S_LAYER}, 0')
            a.emit(f's_cbranch_scc1 L_{kind}_loop')
        if XD:
            for i in range(240, 256): a.emit(f'v_mov_b32 v{i}, 0')
        a.emit(f's_cmp_lg_u32 s{S_WN}, 0')
        a.emit(f's_cbranch_scc1 L_{kind}_loopb')
        clear_flags(a, 1, 4 if CLQ else 0)
    def post():
        a.emit('v_and_b32 v32, 3, v1')
        a.emit('v_cmp_eq_u32 s[4:5], 1, v32')
        a.emit('v_cmp_eq_u32 s[6:7], 2, v32')
        a.emit('v_cmp_eq_u32 s[8:9], 3, v32')
        a.emit('v_bfe_u32 v33, v1, 2, 2')
        a.emit('v_lshrrev_b32 v34, 4, v1')
        a.emit('v_cmp_eq_u32 s[10:11], v33, v34')
        a.emit(f's_lshl_b32 s3, s{S_WN}, 7')
        a.emit(f'v_add_u32 v35, s3, v{VS1}')
        a.emit('v_and_b32 v36, 15, v1')
        a.emit(f's_cmp_eq_u32 s{S_WV}, 0')
        a.emit('s_cselect_b32 s3, 0, 576')
        a.emit(f's_add_u32 s3, s3, {LST}')
        a.emit('v_lshl_add_u32 v36, v36, 2, s3')
        for (sm, sq) in SA:
            a.emit(f'v_cndmask_b32 v{sm+1}, v{sq}, v{sq+1}, s[4:5]')
        for (sm, sq) in SA:
            a.emit(f'v_cndmask_b32 v{sm+1}, v{sm+1}, v{sq+2}, s[6:7]')
        for (sm, sq) in SA:
            a.emit(f'v_cndmask_b32 v{sm+1}, v{sm+1}, v{sq+3}, s[8:9]')
        for (sm, sq) in SA: stats_finish(a, sm)
        a.emit('s_mov_b64 exec, s[10:11]')
        a.emit(f'ds_write2_b32 v35, v{SA[0][0]}, v{SA[0][0]+1} offset0:16 offset1:176')
        a.emit(f'ds_write2_b32 v35, v{SA[1][0]}, v{SA[1][0]+1} offset0:32 offset1:192')
        a.emit(f'ds_write2_b32 v36, v{SA[2][0]}, v{SA[2][0]+1} offset0:0 offset1:160')
        a.emit('s_mov_b64 exec, -1')
        if XD:
            res_addr(a, S_WV, SX, 32)
        a.emit('s_waitcnt lgkmcnt(0)')
        if XD:
            for i in range(4):
                a.emit(f'buffer_load_dwordx4 v[{240+4*i}:{243+4*i}], v32, s[{SX}:{SX+3}], s{3+(i>>1)} offen offset:{64*(i&1)}')
        a.emit('s_barrier')
    own = lambda s: [mfma(acc(jn, jm), *((fw(s, jn), fx(s, jm)) if jn < 4 else (fx(s, jm), fw(s, jn))), None if s else '0') for jn, jm in mf_order(6, 4)]
    hw = lambda ks, c: fw(1, 2 * c) if ks else fx(1, c)
    hal = ([f'v_mov_b32 v{fx(1,c)+i}, v{fw(0,2*c)+i}' for c in range(3) for i in range(4)],
           [f'ds_read_b128 v[{fx(1,3+ks)}:{fx(1,3+ks)+3}], v{VA+4+ks} offset:{HX - XH - STAGE}' for ks in range(2)],
           [mfma(HACC + 4 * c, *((hw(ks, c), fx(1, 3 + ks)) if c < 2 else (fx(1, 3 + ks), hw(ks, c))), None if ks else '0') for ks in range(2) for c in range(3)])
    hooks = None
    if DS:
        HK = [int(x) for x in ENV('HK', '-1,-2,-4,-5,11,13').split(',')]
        def dots(s):
            o = [f's_cmp_lg_u32 s{S_WN}, 0', f's_cbranch_scc1 L_{kind}_dot{s}']
            for hh in range(2):
                for j in range(8):
                    r = fx(s, 2 * hh) + (j >> 1) + 4 * (j & 1)
                    o += [f'v_dot2_f32_bf16 v{122+(j&1)}, v{r}, s7, v{122+(j&1)}', f'v_dot2_f32_bf16 v{124+(j&1)}, v{r}, v{r}, v{124+(j&1)}']
                o += [f'L_{kind}_dote{s}:'] if hh else [f's_branch L_{kind}_dote{s}', f'L_{kind}_dot{s}:']
            return o
        h1 = dots(1) + ['s_nop 2', 'v_permlane32_swap_b32 v122, v123', 'v_permlane32_swap_b32 v124, v125', 'v_add_f32 v122, v122, v123', 'v_add_f32 v124, v124, v125',
               'v_mov_b32 v126, 1', 's_nop 0', 'v_permlane16_swap_b32 v122, v124', 'v_add_f32 v122, v122, v124', f'buffer_store_dword v122, v120, s[{ST}:{ST+3}], 0 offen sc1']
        w0 = [f's_cmp_lg_u32 s{S_WV}, 0', f's_cbranch_scc1 L_{kind}_loop']
        pl = f'buffer_load_dword v127, v121, s[{SC}:{SC+3}], 0 offen sc1'
        b = Asm(); res_addr(b, S_WV, SX, 122); rs = [l.strip() for l in b.lines] + res_loads(240, 122, SX)
        hooks = list(zip(HK + [int(ENV('HKR', '14'))], [dots(0), h1, ['s_waitcnt vmcnt(0)'],
            w0 + [f's_lshl4_add_u32 s3, s{S_MT}, s{S_NT}', 's_mov_b64 exec, 1', f'buffer_store_byte v126, off, s[{SC}:{SC+3}], s3 sc1', 's_mov_b64 exec, -1'], w0 + [pl],
            w0 + ['s_mov_b32 s5, 0x100000', 'L_attn_chkl:', 's_waitcnt vmcnt(0)', 'v_cmp_ne_u32 vcc, 0x01010101, v127', f's_cbranch_vccz L_{kind}_loop',
                  pl, 's_sub_u32 s5, s5, 1', 's_cbranch_scc0 L_attn_chkl'], rs]))
        assert HK[:2] == [-1, -2]
        if D2: hooks = [(-1, dots(0) + pads.chain('h0') + w0 + hooks[2][1] + hooks[3][1][2:]), (-2, [x.replace('v_mov_b32 v126, 1', 's_nop 0') for x in h1] + pads.chain('h1')), hooks[-1]]
        if ENV('XSL'):
            xs = [int(x) for x in ENV('XSL').split(',')]
            hooks[1] = (hooks[1][0], hooks[1][1] + [f's_sleep {xs[0]}'])
            hooks[2] = (hooks[2][0], hooks[2][1] + [f's_sleep {xs[1]}'])
    assert ot or not DS
    big_loop(a, kind, N, S, STAGE, 6, VB, VA, reads, mf, variants=None if DS else {'a': mfv(0), 'b': mfv(1)}, select=select, post=post, mid=mid, hooks=hooks,
             ot=own if ot else None, halo=hal if ot else None)
    PR = 32
    CS = 48
    CV = 64
    MS = 66
    RK = 76
    M4 = 84
    R4 = 104
    VV = [4 if XD else 240, 224]
    for b in range(5):
        a.emit(f'ds_read2_b32 v[{MS+2*b}:{MS+2*b+1}], v{VS1} offset0:{16*b} offset1:{160+16*b}')
    for p in range(2):
        a.emit(f'ds_read2_b32 v[{RK+2*p}:{RK+2*p+1}], v{VKA} offset0:{32*p} offset1:{32*p+16}')
        a.emit(f'ds_read2_b32 v[{RK+4+2*p}:{RK+5+2*p}], v{VKB} offset0:{32*p} offset1:{32*p+16}')
    for c in range(3):
        a.emit(f'ds_write_b128 v{VXW}, v[{HACC+4*c}:{HACC+4*c+3}] offset:{2048*c}')
    a.emit(f's_cmp_eq_u32 s{S_WM}, 1')
    a.emit(f's_cbranch_scc1 L_{kind}_nop3')
    for t in range(2, 6):
        a.emit(f'ds_write_b128 v{VXW}, v[{acc(t,3)}:{acc(t,3)+3}] offset:{6144+1024*t}')
    a.label(f'L_{kind}_nop3')
    for b in range(5):
        a.emit(f'ds_read_b128 v[{M4+4*b}:{M4+4*b+3}], v{VS4} offset:{64*b}')
        a.emit(f'ds_read_b128 v[{R4+4*b}:{R4+4*b+3}], v{VS4} offset:{640+64*b}')
    a.emit('s_waitcnt lgkmcnt(10)')
    a.emit('s_barrier')
    for t in range(4):
        a.emit(f'ds_read_b128 v[{CS+4*t}:{CS+4*t+3}], v{VCO if t&1 else VCE} offset:{1024*t}')
    for t in range(2):
        a.emit(f'ds_read_b32 v{CV+t}, v{VVO if t else VVE} offset:{4096+1024*t}')
    for t in range(4):
        a.emit(f'ds_read_b128 v[{PR+4*t}:{PR+4*t+3}], v{VPO if t&1 else VPE} offset:{2048+1024*t}')
    sc = 32 ** -0.5 * 1.4426950408889634
    for b in range(4):
        a.emit(f'v_mul_f32 v{MS+2*b+3}, {f2u(sc):#x}, v{MS+2*b+3}')
    for b in range(4):
        a.emit(f'v_mul_f32 v{RK+b}, v{RK+b}, v{MS+2*b+3}')
        a.emit(f'v_mul_f32 v{RK+4+b}, v{RK+4+b}, v{MS+2*b+3}')
    a.emit('s_waitcnt lgkmcnt(6)')
    def qk(x, y, cs, b, d):
        m = f'v[{MS+2*b}:{MS+2*b+1}]'
        for (z, c) in ((x, cs), (y, cs + 4)):
            for h in range(2):
                a.emit(f'v_pk_fma_f32 v[{z+2*h}:{z+2*h+1}], v[{c+2*h}:{c+2*h+1}], {m}, v[{z+2*h}:{z+2*h+1}] op_sel:[0,0,0] op_sel_hi:[1,0,1] neg_lo:[0,1,0] neg_hi:[0,1,0]')
        a.emit(f'v_cvt_pk_bf16_f32 v{d}, v{x}, v{x+1}')
        a.emit(f'v_cvt_pk_bf16_f32 v{d+1}, v{x+2}, v{x+3}')
        a.emit(f'v_cvt_pk_bf16_f32 v{d+2}, v{y}, v{y+1}')
        a.emit(f'v_cvt_pk_bf16_f32 v{d+3}, v{y+2}, v{y+3}')
    Q = lambda b: acc(0, b); Kf = lambda b: acc(2, b) if b >= 0 else PR
    Sc = lambda b: acc(1, b); Sp = lambda b: acc(3, b)
    for b in range(4):
        qk(acc(0, b), acc(1, b), CS, b + 1, Q(b))
        qk(acc(2, b), acc(3, b), CS + 8, b + 1, Kf(b))
        if b == 3:
            a.emit('s_waitcnt lgkmcnt(0)')
            qk(PR, PR + 4, CS + 8, 0, PR)
        if b >= 1:
            a.emit(mfma(Sc(b - 1), Kf(b - 1), Q(b - 1), '0'))
            if b >= 2: a.emit(mfma(Sp(b - 1), Kf(b - 2), Q(b - 1), '0'))
    a.emit(mfma(Sc(3), Kf(3), Q(3), '0'))
    a.emit(mfma(Sp(3), Kf(2), Q(3), '0'))
    a.emit(mfma(Sp(0), Kf(-1), Q(0), '0'))
    def vconv(x, t, b):
        cv = f'v[{CV}:{CV+1}]'
        for h in range(2):
            a.emit(f'v_pk_fma_f32 v[{x+2*h}:{x+2*h+1}], v[{M4+4*b+2*h}:{M4+4*b+2*h+1}], {cv}, v[{x+2*h}:{x+2*h+1}] op_sel:[0,{t},0] op_sel_hi:[1,{t},1] neg_lo:[1,0,0] neg_hi:[1,0,0]')
        for h in range(2):
            a.emit(f'v_pk_mul_f32 v[{x+2*h}:{x+2*h+1}], v[{x+2*h}:{x+2*h+1}], v[{R4+4*b+2*h}:{R4+4*b+2*h+1}]')
        for h in range(2):
            a.emit(f'v_cvt_pk_bf16_f32 v{VV[t]+2*b+h}, v{x+2*h}, v{x+2*h+1}')
    for t in range(2):
        vconv(PR + 8 + 4 * t, t, 0)
        for b in range(4): vconv(acc(4 + t, b), t, b + 1)
    T = lambda b: 32 + 4 * b
    odd = f's[{M_ODD}:{M_ODD+1}]'
    for b in (1, 2, 3, 0):
        a.emit(f'v_cndmask_b32 v{Sc(b)}, v{Sc(b)}, v{Sc(b)+1}, {odd}')
        a.emit(f'v_cndmask_b32 v{Sp(b)}, v{Sp(b)}, v{Sp(b)+1}, {odd}')
        a.emit(f'v_cndmask_b32 v{Sc(b)+2}, v{Sc(b)+2}, v{Sc(b)+3}, {odd}')
        a.emit(f'v_cndmask_b32 v{Sp(b)+2}, v{Sp(b)+2}, v{Sp(b)+3}, {odd}')
        a.emit(f'v_cndmask_b32 v{T(b)}, v{Sc(b)}, v{Sp(b)}, s[{M_UPA}:{M_UPA+1}]')
        a.emit(f'v_cndmask_b32 v{T(b)+1}, v{Sc(b)+2}, v{Sp(b)+2}, s[{M_UPB}:{M_UPB+1}]')
        a.emit(f'v_mul_f32 v{T(b)}, v{T(b)}, v{RK+b}')
        a.emit(f'v_mul_f32 v{T(b)+1}, v{T(b)+1}, v{RK+4+b}')
    a.emit(f'v_mov_b32 v48, {f2u(-1e9 * 1.4426950408889634):#x}')
    a.emit(f'v_cndmask_b32 v{T(0)}, v{T(0)}, v48, s[{M_FA}:{M_FA+1}]')
    a.emit(f'v_cndmask_b32 v{T(0)+1}, v{T(0)+1}, v48, s[{M_FB}:{M_FB+1}]')
    for b in range(4): a.emit(f'v_max_f32 v{T(b)+2}, v{T(b)}, v{T(b)+1}')
    for op in ('32', '16'):
        for b in range(4): a.emit(f'v_mov_b32 v{T(b)+3}, v{T(b)+2}')
        for b in range(4): a.emit(f'v_permlane{op}_swap_b32 v{T(b)+2}, v{T(b)+3}')
        for b in range(4): a.emit(f'v_max_f32 v{T(b)+2}, v{T(b)+2}, v{T(b)+3}')
    for b in range(4):
        a.emit(f'v_sub_f32 v{T(b)}, v{T(b)}, v{T(b)+2}')
        a.emit(f'v_sub_f32 v{T(b)+1}, v{T(b)+1}, v{T(b)+2}')
    for b in range(4):
        a.emit(f'v_exp_f32 v{T(b)}, v{T(b)}')
        a.emit(f'v_exp_f32 v{T(b)+1}, v{T(b)+1}')
    P = lambda b: acc(0, b)
    for b in range(4):
        a.emit(f'v_cvt_pk_bf16_f32 v{T(b)}, v{T(b)}, v{T(b)}')
        a.emit(f'v_cvt_pk_bf16_f32 v{T(b)+1}, v{T(b)+1}, v{T(b)+1}')
        a.emit(f'v_and_b32 v{P(b)}, v{T(b)}, v{MAP}')
        a.emit(f'v_and_b32 v{P(b)+1}, v{T(b)+1}, v{MBP}')
        a.emit(f'v_and_b32 v{P(b)+2}, v{T(b)}, v{MAC}')
        a.emit(f'v_and_b32 v{P(b)+3}, v{T(b)+1}, v{MBC}')
        if b >= 1:
            q = b - 1
            a.emit(mfma(acc(1, q), ONES, P(q), '0'))
            a.emit(mfma(acc(4, q), VV[0] + 2 * q, P(q), '0'))
            a.emit(mfma(acc(5, q), VV[1] + 2 * q, P(q), '0'))
    q = 3
    a.emit(mfma(acc(1, q), ONES, P(q), '0'))
    a.emit(mfma(acc(4, q), VV[0] + 2 * q, P(q), '0'))
    a.emit(mfma(acc(5, q), VV[1] + 2 * q, P(q), '0'))
    if ENV('ES'): stamp(a, 1)
    no = 'wo' in NS
    if no:
        a.emit(f's_cmp_eq_u32 s{S_WM}, 1')
        a.emit(f's_cbranch_scc1 L_{kind}_out1')
    for w in range(2 if no else 1):
        if w: a.label(f'L_{kind}_out1')
        for b in range(4):
            r = acc(1, b); d = 48 + 4 * b
            a.emit(f'v_rcp_f32 v{r}, v{r}')
            a.emit(f's_mov_b32 s3, {b * 16 * 2048}')
            for t in range(2):
                x = acc(4 + t, b)
                for h in range(2):
                    a.emit(f'v_pk_mul_f32 v[{x+2*h}:{x+2*h+1}], v[{x+2*h}:{x+2*h+1}], v[{r}:{r+1}] op_sel_hi:[1,0]')
            for t in range(2):
                x = acc(4 + t, b)
                for h in range(2):
                    a.emit(f'v_cvt_pk_bf16_f32 v{d+2*(t^w)+h}, v{x+2*h}, v{x+2*h+1}')
            if not no:
                a.emit('s_nop 1')
                a.emit(f'v_permlane16_swap_b32 v{d}, v{d+2}')
                a.emit(f'v_permlane16_swap_b32 v{d+1}, v{d+3}')
            a.emit(f'buffer_store_dwordx4 v[{d}:{d+3}], v{VO}, s[{SO}:{SO+3}], s3 offen{stf(kind)}')
        if no and not w: a.emit(f's_branch L_{kind}_out2')
    if no: a.label(f'L_{kind}_out2')
    compute_end(a, kind)
    a.label(f'L_{kind}_loader')
    L = Loader(a, kind, K, lda2, ldw2, [0, 2048, 4096], 128, S, STAGE, halo=XH, rot=int(ENV('ROT_QKV', '0')))
    L.skip = DS
    L.setup()
    a.emit('s_waitcnt lgkmcnt(0)')
    srd_xs(a, SX); srd(a, SW, 'wqkv', 0, 1024 * 6144)
    import sides
    fill = []
    if ENV('DX', '2') == '1' and ENV('CLP', 'e') == 'l':
        a.emit('s_and_b32 s3, s2, 3')
        a.emit(f's_and_b32 s4, s{S_CU}, 3')
        a.emit('s_lshl2_add_u32 s3, s3, s4')
        a.emit('s_bfe_u32 s4, s2, 0x10002')
        a.emit(f's_lshr_b32 s5, s{S_CU}, 2')
        a.emit('s_lshl1_add_u32 s4, s5, s4')
        a.emit('s_lshl4_add_u32 s3, s3, s4')
        a.emit(f's_and_b32 s4, s{S_WV}, 3')
        a.emit('s_lshl2_add_u32 s3, s3, s4')
        a.emit('s_lshl_b32 s3, s3, 12')
        srd(a, SB, 'ws', WS_XP, 0 if 'fill0' in DBG else 4096)
        if 'fillfl' in DBG:
            srd(a, SB, 'ws0', WS_FL + MB, 4096)
            a.emit('s_and_b32 s3, s3, 0xfffff')
        a.emit(f's_add_u32 s{SB}, s{SB}, s3')
        a.emit(f's_addc_u32 s{SB+1}, s{SB+1}, 0')
        FW_ = int(ENV('FILLW', '2'))
        a.emit(f'v_mul_u32_u24 v29, {4 * FW_}, v1')
        for i in range(4): a.emit(f'v_mov_b32 v{24+i}, -1')
        fill = [f'buffer_store_dword{"x" + str(FW_)} v[24:{23 + FW_}], v29, s[{SB}:{SB+3}], 0 offen' + ('' if 'fillwb' in DBG else ' sc1'), f'v_add_u32 v29, {256 * FW_}, v29']
        assert sides.STV[3] == 0
    a.emit(f's_cmp_lg_u32 s{S_LAYER}, 0')
    a.emit(f's_cbranch_scc1 L_{kind}_ld1')
    post = list(sides.stouch_post(a, kind)) + fill
    SPF = [int(x) for x in ENV('SPF', '0,0,2').split(',')]
    def spf():
        hs = range(SPF[2])
        return ([f's_buffer_load_dword s84, s[{SX}:{SX+3}], s85 offset:{2048*r+64*h}' for r in range(2) for h in hs] +
                [f's_buffer_load_dword s84, s[{SW}:{SW+3}], s86 offset:{2048*p+64*h}' for p in range(3) for h in hs] +
                ['s_add_u32 s85, s85, 128', f's_add_u32 s86, s86, {64*ldw2}'])
    def spf_start():
        if not SPF[1]: return
        a.emit(f's_and_b32 s3, s{S_WV}, 3')
        a.emit(f's_lshl2_add_u32 s3, s{S_CU}, s3')
        a.emit('s_and_b32 s4, s2, 1')
        a.emit('s_bfe_u32 s5, s2, 0x20001')
        a.emit('s_lshl2_add_u32 s85, s4, s5')
        a.emit('s_lshl_b32 s85, s85, 7')
        a.emit('s_add_u32 s85, s85, s3')
        a.emit('s_lshl_b32 s85, s85, 12')
        a.emit(f's_add_u32 s85, s85, {128*SPF[0]}')
        a.emit('s_lshl_b32 s4, s4, 5')
        a.emit(f's_add_u32 s4, s4, s{S_CU}')
        a.emit(f's_add_u32 s4, s4, {64*SPF[0]}')
        a.emit(f's_mul_i32 s86, s4, {ldw2}')
        a.emit('s_and_b32 s3, s3, 3')
        a.emit('s_lshl2_add_u32 s3, s5, s3')
        a.emit('s_lshl_b32 s3, s3, 7')
        a.emit('s_add_u32 s86, s86, s3')
        for i in range(SPF[0], SPF[1]):
            for x in spf(): a.emit(x)
    if SPF[1]: post += spf()
    VPF = [int(x) for x in ENV('VPF', '0,0,1').split(',')]
    def vpf():
        k0, nk, hs = VPF
        if not nk: return 0
        a.emit(f's_and_b32 s3, s{S_WV}, 3')
        a.emit(f's_lshl2_add_u32 s3, s{S_CU}, s3')
        a.emit('s_and_b32 s4, s2, 1')
        a.emit('s_bfe_u32 s5, s2, 0x20001')
        a.emit('s_lshl2_add_u32 s85, s4, s5')
        a.emit('s_lshl_b32 s85, s85, 7')
        a.emit('s_add_u32 s85, s85, s3')
        a.emit('s_lshl_b32 s85, s85, 12')
        a.emit('s_lshl_b32 s4, s4, 7')
        a.emit('s_add_u32 s4, s4, s3')
        a.emit(f's_add_u32 s4, s4, {64*k0}')
        a.emit(f's_mul_i32 s86, s4, {ldw2}')
        a.emit('s_lshl_b32 s5, s5, 9')
        a.emit('s_add_u32 s86, s86, s5')
        a.emit('v_and_b32 v2, 15, v1')
        a.emit(f'v_min_u32 v3, {nk-1}, v2')
        a.emit('v_and_b32 v22, 16, v1')
        a.emit('v_add_lshl_u32 v22, v22, v3, 7')
        a.emit('v_min_u32 v2, 11, v2')
        a.emit('v_lshrrev_b32 v3, 2, v2')
        a.emit('v_and_b32 v2, 3, v2')
        a.emit('v_lshl_add_u32 v2, v3, 4, v2')
        a.emit('v_lshrrev_b32 v3, 4, v1')
        a.emit(f'v_min_u32 v3, {nk//4-1}, v3')
        a.emit(f'v_mul_u32_u24 v3, {256*ldw2}, v3')
        a.emit('v_lshl_add_u32 v23, v2, 7, v3')
        for h in range(hs):
            a.emit(f'buffer_load_dword v24, v23, s[{SW}:{SW+3}], s86 offen offset:{64*h}')
            a.emit(f'buffer_load_dword v25, v22, s[{SX}:{SX+3}], s85 offen offset:{128*k0+64*h}')
        return 2 * hs
    TG_ = int(ENV('TLBG', '0'))
    if TG_:
        srd(a, SO, 'ws0', 0, 256 * MB)
        a.emit(f's_and_b32 s3, s{S_WV}, 3')
        a.emit(f's_lshl2_add_u32 s3, s{S_CU}, s3')
        a.emit(f's_lshl_b32 s86, s3, {TG_}')
        tl = [f's_buffer_load_dword s84, s[{SO}:{SO+3}], s86', f's_add_u32 s86, s86, {128 << TG_}']
        if TG_ < 21: post += tl
    extra = tail_parks('wo', SP, lambda b: srd(b, SP, 'wo', 0, 2 * MB))
    sch0 = [int(c) for c in ENV('TSO0', '00000')]
    extra0 = tail_parks('wo', SP, lambda b: srd(b, SP, 'wo', 0, 2 * MB), sch0 + [sum(TSCH['wo']) - sum(sch0)])
    npk = 2 * sum(TSCH['wo']) if XD else 0
    def start():
        sides.cls_touch(a)
        if TG_:
            for x in tl: a.emit(x)
            a.emit(f's_and_b32 s3, s{S_WV}, 3')
            a.emit(f's_lshl2_add_u32 s3, s{S_CU}, s3')
            for w, sz in (('out', 4 * MB), ('wo', 2 * MB), ('w1', 7 * MB), ('b1', 4096), ('b2', 2048)):
                srd(a, SC, w, 0, sz)
                a.emit(f's_mul_i32 s4, s3, {sz // 128}')
                a.emit(f's_buffer_load_dword s84, s[{SC}:{SC+3}], s4')
        if ENV('DX', '2') != '1' or ENV('CLP', 'e') != 's': return 0
        srd(a, ST, 'ws0', WS_XP, LSTR + 4 * MB)
        a.emit('s_and_b32 s3, s2, 3')
        a.emit(f's_and_b32 s4, s{S_CU}, 3')
        a.emit('s_lshl2_add_u32 s3, s3, s4')
        a.emit('s_bfe_u32 s4, s2, 0x10002')
        a.emit(f's_lshr_b32 s5, s{S_CU}, 2')
        a.emit('s_lshl1_add_u32 s4, s5, s4')
        a.emit('s_lshl4_add_u32 s3, s3, s4')
        a.emit(f's_and_b32 s4, s{S_WV}, 3')
        a.emit('s_lshl2_add_u32 s3, s3, s4')
        a.emit('s_lshl_b32 s3, s3, 12')
        a.emit(f's_add_u32 s4, s3, {LSTR}')
        a.emit('v_lshlrev_b32 v2, 4, v1')
        for i in range(4): a.emit(f'v_mov_b32 v{32+i}, -1')
        for i in range(8): a.emit(f'buffer_store_dwordx4 v[32:35], v2, s[{ST}:{ST+3}], s{3+(i>>2)} offen offset:{1024*(i&3)} sc1')
        return 8
    final0 = None
    TL0 = int(ENV('TL0', '1' if DS else '0'))
    if DS:
        STQ0 = int(ENV('STQ0', '14'))
        assert HK[-1] < STQ0 <= 13 + TL0
        def start():
            nv = vpf()
            if sides.CE:
                assert sum(sides.CE.values()) == 8
                sides.cs_setup(a, SB, 95, 26)
                for x in sides.cs_at(-1): a.emit(x)
                nv += sides.CE.get(-1, 0)
            spf_start()
            sides.cls_touch(a)
            srd(a, ST, 'ws0', WS_ST0, 16 * 16384)
            stats4_setup(a, True)
            if D2:
                dbg_off(a, 20)
                a.emit(f's_and_b32 s{SC+1}, s{SC+1}, 0xffff')
                a.emit(f's_mov_b32 s{SC+2}, 256')
                a.emit(f's_mov_b32 s{SC+3}, 0x00020000')
            for x in pads.chain(-1): a.emit(x)
            return nv
        pl2 = f'buffer_load_dword v21, v20, s[{SC}:{SC+3}], 0 offen sc1'
        ck2 = ['s_mov_b32 s5, 0x100000', 'L_attn_dchk:', 'v_cmp_ne_u32 vcc, 0x01010101, v21', 's_cbranch_vccz L_attn_dok', 's_sub_u32 s5, s5, 1\n  ' + pl2,
               's_waitcnt vmcnt(0)', 's_cbranch_scc0 L_attn_dchk', 'L_attn_dok:'] if D2 else []
        extra0 = lambda i: (ck2 + stats4_loads(32, True) if i == STQ0 else [pl2] if D2 and i == STQ0 - 3 else []) + sides.cs_at(i) + pads.chain(i)
        def chk0():
            a.emit('v_cmp_u_f32 vcc, v32, v33')
            a.emit('v_cmp_u_f32 s[4:5], v48, v49')
            a.emit('s_or_b64 s[4:5], vcc, s[4:5]')
            a.emit('s_cbranch_scc0 L_attn_sok')
            a.emit(f's_sub_u32 s{S_CNT}, s{S_CNT}, 1')
            a.emit('s_cbranch_scc1 L_attn_sok')
            for x in stats4_loads(32, True): a.emit(x + (' sc1' if x.startswith('buf') else ''))
            a.emit('s_waitcnt vmcnt(0)')
            a.emit('s_branch L_attn_schk')
            a.label('L_attn_sok')
        def final0():
            a.emit(f's_mov_b32 s{S_CNT}, 0x4000')
            a.emit(f"s_waitcnt vmcnt({side(Asm(), 0, 'issue') + sum(n for e, n in sides.CE.items() if e >= STQ0)})")
            a.label('L_attn_schk')
            stats4_store(a, 32, LST, True, chk0 if D2 else None)
            a.emit('s_waitcnt lgkmcnt(0)')
    L.run('0', tail_issue=lambda: side(a, 0, 'issue'), ntail_vm=side(Asm(), 0, 'issue'), post=post, start=start, extra=extra0, tail_late=TL0, final=final0, exfirst=True)
    for i in (16,) if DS else (16, 17):
        if XD:
            for x in extra0(i): a.emit(x)
        a.emit('s_barrier')
    if XD:
        for x in extra0(18): a.emit(x)
    if ONE:
        a.emit(f's_branch L_{kind}_ldend')
    else:
        side(a, 0, 'finish')
        a.emit('s_endpgm')
    a.label(f'L_{kind}_ld1')
    if ',' in L.kord():
        L.ktable(int(L.kord().split(',')[1]))
        L.ot = int(ot); L.hx = HX - XH
        for x in ([] if ot else L.knext()): a.emit(x)
    srd(a, ST, 'ws0', WS_ST2, 16 * 16384)
    n1 = side(Asm(), 1, 'issue')
    def tail1():
        stats_loads(a, 32, True)
        side(a, 1, 'issue')
    def final1():
        a.emit(f's_waitcnt vmcnt({n1 + npk})')
        stats_reduce_store(a, 32, LST)
        a.emit('s_waitcnt lgkmcnt(0)')
    if T4:
        stats4_setup(a, True)
        TL1 = int(ENV('TL1', '0'))
        def final4():
            a.emit(f"s_waitcnt vmcnt({n1 if int(ENV('STQ', '14')) < 13 + TL1 < 15 else 0})")
            stats4_store(a, 32, LST, True, nan_chk(a, 'L_attn_t', True) if SF else None)
            a.emit('s_waitcnt lgkmcnt(0)')
        if ZD:
            srd(a, SC, 'ws0', WS_FL, FLS)
            a.emit('v_and_b32 v30, 3, v1')
            a.emit('v_lshlrev_b32 v30, 6, v30')
            a.emit(f's_mov_b32 s{S_CNT}, 0x100000')
        def zbar():
            xpoll(a, 'L_attn_x', SC, S_Q, 30, 12)
            a.emit('s_barrier')
        def pref1():
            if ZD == 'b': zbar()
            a.emit('s_waitcnt vmcnt(0)')
        if ZD == 'a': zbar()
        L.run('1', tail_issue=lambda: side(a, 1, 'issue'), ntail_vm=n1, tail_late=TL1, final=final4, extra=lambda i: stats4_loads(32, True) if i == int(ENV('STQ', '14')) else [],
              post=fill, dep=lambda pf: dep_wait(a, kind, halo=True, postf=pf, pref=pref1 if ot else None))
    else: L.run('1', tail_issue=tail1, ntail_vm=16 + n1, final=final1, extra=extra, post=fill, dep=(lambda pf: dep_wait(a, kind, halo=True, postf=pf)) if MEGA else None)
    a.emit('s_barrier')
    if not MEGA: side(a, 1, 'finish')
    a.label(f'L_{kind}_ldend')
    loader_end(a, kind, check=False)
    a.label(end)
    a.emit('s_endpgm')
    loader_first(a, kind)
    a(KD.format(name=f'{kind}l0_kernel'))
    if not MEGA:
        stub(a, f'{kind}l1_kernel', body, 1, tsidx + 4, False)
        a(KD.format(name=f'{kind}l1_kernel'))
    a.label(f'L_{kind}_c1')
    return LST + 1280
```

```python
import sys, os, struct
sys.path.insert(0, os.path.join(os.path.dirname(os.path.abspath(__file__)), '..'))
from asmlib import Asm, check_offsets
MB = 1 << 20
WSB = int(os.environ.get('WSB', '0')) * MB
WS_O   = WSB
WS_X1  = WSB + 4 * MB
WS_H   = WSB + 8 * MB
WS_ST  = WSB + 23 * MB
WS_CS  = WSB + 23 * MB + 512 * 1024
WS_ST0 = WSB + 23 * MB + 768 * 1024
D2 = os.environ.get('DS', '2') == '2'
DS = os.environ.get('DS', '2') in '12'
WS_TS  = 60 * MB
MEGA = os.environ.get('MEGA', '2') in ('1', '2')
ONE = os.environ.get('MEGA', '2') == '2'
LSTR = 64 * MB
WS_ST2 = WS_ST + 256 * 1024 if MEGA else WS_ST
WS_FL = WSB + 40 * MB
FLS = 524288
REP = int(os.environ.get('REP', '16'))
WS_XP = WSB + 24 * MB
WS_X2 = WSB + 32 * MB
XPAD = int(os.environ.get('XPAD', '128')) if MEGA else 0
f2u = lambda f: struct.unpack('<I', struct.pack('<f', f))[0]
ENV = os.environ.get
TS = ENV('TS', '')
TE = ENV('TE', '')
DBG = ENV('DBG', '').split(',')
EARLY = int(ENV('EARLY', '0')) if MEGA and ENV('SPLIT', '0') == '0' else 0
def stf(kind): return (' ' + ENV('WTF', 'sc1')) if kind in ENV('WT', 'attn,wo,w2,w1').split(',') else ''

KA = {'A_x': 0, 'wqkv': 8, 'wo': 16, 'w1': 32, 'b1': 40, 'w2': 48, 'b2': 56, 'out': 64, 'ws': 80}
P_IN = 16
P_OUT = 32; P_WS = 34
P_XS = 12
PTR = {'A_x': 16, 'wqkv': 18, 'wo': 20, 'w1': 24, 'b1': 26, 'w2': 28, 'b2': 30, 'out': 32, 'ws': 34, 'xs': 12, 'ws0': 22}
SX, SW, SO, SR, SB, ST, SP, SC = 36, 40, 44, 48, 52, 56, 60, 64
S_MT, S_NT, S_WV, S_WM, S_WN = 68, 69, 70, 71, 72
S_KX, S_KW, S_SLOT, S_XD, S_WD, S_HD, S_CNT = 73, 74, 75, 76, 77, 78, 79
S_LAYER = 96; S_TSI = 97; S_T = 98; S_CU = 99; S_XG = 100; S_KT = 101

KD = '''.section .rodata,"a"
.p2align 6
.amdhsa_kernel {name}
  .amdhsa_next_free_vgpr 256
  .amdhsa_next_free_sgpr 102
  .amdhsa_accum_offset 256
  .amdhsa_group_segment_fixed_size 0
  .amdhsa_kernarg_size 88
  .amdhsa_user_sgpr_count 2
  .amdhsa_user_sgpr_kernarg_segment_ptr 1
  .amdhsa_system_sgpr_workgroup_id_x 1
  .amdhsa_float_denorm_mode_32 3
  .amdhsa_float_denorm_mode_16_64 3
.end_amdhsa_kernel
.text
'''

def srd(a, sd, which, off, size):
    p = PTR[which]
    if off:
        a.emit(f's_add_u32 s{sd}, s{p}, {off}')
        a.emit(f's_addc_u32 s{sd+1}, s{p+1}, 0')
        a.emit(f's_and_b32 s{sd+1}, s{sd+1}, 0xffff')
    else:
        a.emit(f's_mov_b32 s{sd}, s{p}')
        a.emit(f's_and_b32 s{sd+1}, s{p+1}, 0xffff')
    a.emit(f's_mov_b32 s{sd+2}, {size}')
    a.emit(f's_mov_b32 s{sd+3}, 0x00020000')

def xpitch(a, sd, inv=False):
    a.emit(f's_cmp_eq_u32 s{S_LAYER}, {0 if inv else 1}')
    a.emit(f's_cselect_b32 s{sd}, {XPAD}, 0')
    a.emit(f's_add_u32 s{sd}, s{sd}, 2048')

def srd_xs(a, sd):
    srd(a, sd, 'xs', 0, 4 * MB)
    xpitch(a, sd + 2)
    a.emit(f's_lshl_b32 s{sd+2}, s{sd+2}, 11')

def stub(a, name, body, layer, tsidx, first):
    a(f'.text\n.globl {name}\n.p2align 8\n.type {name},@function\n{name}:')
    if TS:
        stamp(a, 0, nowait=True)
    if TE: a.emit('s_memrealtime s[94:95]')
    for x in ENV('PERM', '').split():
        a.emit(f"s_bitcmp1_b32 s2, {x.split(':')[0]}")
        a.emit(f"s_cselect_b32 s3, {x.split(':')[1]}, 0")
        a.emit('s_xor_b32 s2, s2, s3')
    a.emit('s_load_dwordx4 s[16:19], s[0:1], 0')
    a.emit('s_load_dwordx2 s[20:21], s[0:1], 16')
    a.emit('s_load_dwordx2 s[22:23], s[0:1], 80')
    a.emit('s_load_dwordx8 s[24:31], s[0:1], 32')
    a.emit('s_load_dwordx2 s[32:33], s[0:1], 64')
    a.emit('s_load_dwordx2 s[34:35], s[0:1], 80')
    a.emit(f's_load_dwordx2 s[12:13], s[0:1], {0 if layer == 0 else 64}')
    if DS: a.emit(f's_load_dwordx2 s[{SC}:{SC+1}], s[0:1], 72')
    a.emit(f's_mov_b32 s{S_LAYER}, {layer}')
    if ENV('PADS', '0') == '1': a.emit('s_mov_b64 exec, -1')
    a.emit(f's_mov_b32 s{S_TSI}, {tsidx}')
    if not first:
        a.emit(f's_branch {body}')

def stamp(a, n, nowait=False):
    if not TS: return
    a.emit(f's_memrealtime s[{80+4*n}:{81+4*n}]')
    a.emit(f's_memtime s[{82+4*n}:{83+4*n}]')
    if not nowait: a.emit('s_waitcnt lgkmcnt(0)')

def stamps_out(a, tag):
    if not TS: return
    if not MEGA: a.emit('s_waitcnt vmcnt(0)')
    stamp(a, 3)
    if MEGA and tag == 'w1':
        for i in range(16): a.emit(f'v_writelane_b32 v31, s{80+i}, {i}')
        return
    srd(a, SP, 'ws0', WS_TS, 1 << 20)
    a.emit('s_lshl_b32 s4, s2, 6')
    a.emit(f's_lshl_b32 s5, s{S_TSI}, 16')
    a.emit('s_add_u32 s4, s4, s5')
    a.emit('v_mov_b32 v1, s4')
    for i in range(16): a.emit(f'v_mov_b32 v{4+i}, s{80+i}')
    a.emit('v_cmp_eq_u32 vcc, 0, v0')
    a.emit('s_and_saveexec_b64 s[6:7], vcc')
    a.emit(f's_cbranch_execz L_tsskip_{tag}')
    for j in range(4):
        a.emit(f'buffer_store_dwordx4 v[{4+4*j}:{7+4*j}], v1, s[{SP}:{SP+3}], 0 offen offset:{16*j}' + (' sc1' if ENV('DIAG') else ''))
    if MEGA and tag == 'w2':
        a.emit('s_mov_b64 exec, 0xffff')
        a.emit('s_sub_u32 s4, s4, 0x10000')
        a.emit('v_lshlrev_b32 v1, 2, v0')
        a.emit(f'buffer_store_dword v31, v1, s[{SP}:{SP+3}], s4 offen' + (' sc1' if ENV('DIAG') else ''))
    a.label(f'L_tsskip_{tag}')
    a.emit('s_mov_b64 exec, -1')

SPX = ENV('SPX', '1') == '1'
OT = ENV('OT', 'w1,w2,attn').split(',')
S_T0 = 91
OHB = 114688; OBIA = [10, 24, 124, 126]
NV = int(ENV('NV', '0'))
EF = int(ENV('EF', '0'))
NS = ENV('NS', 'wo,w1,w2').split(',')
NSR = ENV('NSR', '1') == '1'
SKL = ENV('SKL', '1') == '1'
SF = ENV('SF', '0') == '1'
WD = ENV('WD', 'c')
ZD = ENV('ZD', 'a')
OH = int(ENV('OH', '0'))
OHO = (0, 51200, 81920)[OH]
HALT = 33 * MB
S_MD = 92; VMD = 27
EX = int(ENV('EX', '14'))
LSTK = ENV('LSTK', 'w2')
LREG = [52, 54, 56, 58] if LSTK == 'w2' else [36, 38, 48, 50] if LSTK == 'wo' else [80, 82, 48, 50]
def lstamp(a, n, dep=False):
    if dep and (ENV('LST') == 'x' or LSTK != 'w2'): return
    if TS: a.emit(f's_memrealtime s[{LREG[n]}:{LREG[n]+1}]')

def lstamps_out(a, tag):
    if not TS: return
    a.emit(f"s_cmp_lg_u32 s{S_WV}, {ENV('PW_' + tag.upper(), '4')}")
    a.emit(f's_cbranch_scc1 L_ltsskip_{tag}')
    a.emit('s_waitcnt lgkmcnt(0)')
    srd(a, SP, 'ws0', WS_TS + 16384, 1 << 20)
    a.emit('s_lshl_b32 s4, s2, 6')
    a.emit(f's_lshl_b32 s5, s{S_TSI}, 16')
    a.emit('s_add_u32 s4, s4, s5')
    for i in range(8): a.emit(f'v_writelane_b32 v20, s{LREG[i>>1]+(i&1)}, {i}')
    a.emit('v_lshlrev_b32 v21, 2, v1')
    a.emit('s_mov_b64 exec, 0xff')
    a.emit(f'buffer_store_dword v20, v21, s[{SP}:{SP+3}], s4 offen')
    a.emit('s_mov_b64 exec, -1')
    a.label(f'L_ltsskip_{tag}')

def tile_map(a, LM, endlab, pair=False):
    if endlab:
        a.emit('s_cmp_ge_u32 s2, 256')
        a.emit(f's_cbranch_scc1 {endlab}')
        a.emit('v_lshrrev_b32 v2, 6, v0')
        a.emit('v_and_b32 v1, 63, v0')
        a.emit(f'v_readfirstlane_b32 s{S_WV}, v2')
    a.emit('s_and_b32 s3, s2, 7')
    if endlab: a.emit(f's_lshr_b32 s{S_CU}, s2, 3')
    if LM == 2 and ENV('MAP2', '0') == '1':
        a.emit('s_lshl_b32 s5, s3, 1')
        a.emit('s_lshr_b32 s6, s3, 1')
        a.emit('s_and_b32 s5, s5, 2')
        a.emit('s_and_b32 s6, s6, 1')
        a.emit('s_or_b32 s5, s5, s6')
    else: a.emit(f's_and_b32 s5, s3, {(1 << (4 - LM)) - 1}')
    a.emit(f's_lshl_b32 s5, s5, {LM}')
    a.emit(f's_and_b32 s6, s{S_CU}, {(1 << LM) - 1}')
    a.emit(f's_add_u32 s{S_MT}, s5, s6')
    a.emit(f's_lshr_b32 s5, s3, {4 - LM}')
    if pair:
        a.emit(f's_lshr_b32 s{S_HD}, s{S_CU}, {LM}')
        a.emit(f's_lshl1_add_u32 s{S_NT}, s{S_HD}, s5')
        return
    a.emit(f's_lshl_b32 s5, s5, {5 - LM}')
    a.emit(f's_lshr_b32 s6, s{S_CU}, {LM}')
    a.emit(f's_add_u32 s{S_NT}, s5, s6')
    if 'smallm' in DBG: a.emit(f's_and_b32 s{S_MT}, s{S_MT}, 1')
    if 'smalln' in DBG: a.emit(f's_and_b32 s{S_NT}, s{S_NT}, 1')

def interleave(a, main, side, lead=1, per=1):
    si = 0
    for i, m in enumerate(main):
        a.emit(m)
        if i + 1 >= lead:
            for _ in range(per):
                if si < len(side): a.emit(side[si]); si += 1
    while si < len(side): a.emit(side[si]); si += 1

PO0, POM = [int(x) for x in ENV('PO', '1,3').split(',')]
KSH = int(ENV('KSH', '0')); LAT = int(ENV('LAT', '0'))
def own_pos(a, sd):
    a.emit(f's_and_b32 s{sd}, s{S_NT}, {POM}')
    a.emit(f's_add_u32 s{sd}, s{sd}, {PO0}')

class Loader:
    VXD = 4; VWD = 8; VXH = 28
    def __init__(self, a, tag, K, lda2, ldw2, panels, colbase, S, STAGE, halo=None, delta=0, rot=None, xblk=False, half=0):
        self.a = a; self.tag = tag; self.K = K; self.lda2 = lda2; self.ldw2 = ldw2; self.panels = panels
        self.colbase = colbase; self.S = S; self.STAGE = STAGE; self.halo = halo; self.delta = delta; self.xblk = xblk; self.rot = rot if rot is not None and rot >= 0 else None
        self.NSTEP = K // 64; self.half = half; self.ot = 0; self.skip = False
        self.per = 4 + 2 * len(panels) + (1 if halo is not None else 0)
    def setup(self):
        a = self.a
        if ENV('PRIO', '0') != '0': a.emit(f"s_setprio {ENV('PRIO')}")
        a.emit(f's_add_u32 s8, s{S_WV}, s{S_NT}')
        a.emit('s_and_b32 s8, s8, 3')
        a.emit(f's_add_u32 s9, s{S_WV}, s{S_MT}')
        a.emit('s_and_b32 s9, s9, 3')
        a.emit(f's_lshl_b32 s{S_XD}, s8, 12')
        a.emit(f's_lshl_b32 s{S_WD}, s9, 11')
        a.emit(f's_add_u32 s{S_WD}, s{S_WD}, 16384')
        a.emit(f's_lshl_b32 s11, s{S_MT}, 7')
        a.emit('v_and_b32 v10, 7, v1')
        if self.xblk: self.xoff_blk(self.lda2)
        else: self.xoff_rows(self.lda2)
        ns = self.tag in NS and not NSR; nr = self.tag in NS and NSR
        wrow(a, 9, ns)
        a.emit(f'v_mul_u32_u24 v3, {self.ldw2}, v3')
        a.emit('v_lshrrev_b32 v2, 3, v1')
        a.emit(f'v_and_b32 v2, {6 if nr else 2}, v2')
        a.emit('v_xor_b32 v2, v2, v10')
        a.emit(f's_mul_i32 s10, s{S_NT}, {self.colbase}')
        if 'noslow' in DBG and self.tag == 'attn':
            a.emit(f's_bitcmp1_b32 0x0808, s{S_NT}')
            a.emit('s_cselect_b32 s3, 512, 0')
            a.emit('s_add_u32 s10, s10, s3')
        if self.colbase & 127: a.emit('s_andn2_b32 s10, s10, 127')
        a.emit('v_add_u32 v3, s10, v3')
        a.emit(f'v_lshl_add_u32 v{self.VWD}, v2, 4, v3')
        if not nr: a.emit('v_xor_b32 v2, 4, v2')
        a.emit(f'v_add_u32 v3, {(4 if ns else 8)*self.ldw2}, v3')
        a.emit(f'v_lshl_add_u32 v{self.VWD+1}, v2, 4, v3')
        if self.half:
            if ns:
                a.emit('v_bfe_u32 v3, v1, 2, 2')
                a.emit('v_lshrrev_b32 v2, 5, v1')
                a.emit('v_lshl_add_u32 v3, v2, 2, v3')
                a.emit('v_and_b32 v2, 16, v1')
                a.emit('s_and_b32 s10, s9, 2')
                a.emit('s_add_u32 s10, s10, s9')
                a.emit('s_lshl_b32 s10, s10, 3')
                a.emit('v_add3_u32 v3, s10, v3, v2')
            else:
                a.emit('v_lshrrev_b32 v3, 2, v1')
                a.emit('s_lshl_b32 s10, s9, 4')
                a.emit('v_add_u32 v3, s10, v3')
            a.emit(f'v_mul_u32_u24 v3, {self.ldw2}, v3')
            if 'w2' in NS: a.emit(f'v_bfe_u32 v2, v1, {4 if nr else 5}, 1')
            else:
                a.emit(f'v_lshrrev_b32 v2, {3 if nr else 4}, v1')
                a.emit('v_and_b32 v2, 2, v2')
            a.emit('v_xor_b32 v2, v2, v1')
            a.emit('v_and_b32 v2, 3, v2')
            a.emit(f's_lshl_b32 s10, s{S_NT}, 6')
            a.emit(f's_add_u32 s10, s10, {self.half}')
            a.emit('v_add_u32 v3, s10, v3')
            a.emit(f'v_lshl_add_u32 v{self.VXH}, v2, 4, v3')
            a.emit(f's_lshl_b32 s{S_HD}, s{S_NT}, 7')
            a.emit(f's_add_u32 s{S_HD}, s{S_HD}, 3072')
        if self.halo is not None:
            a.emit(f's_and_b32 s10, s{S_WV}, 3')
            a.emit(f's_lshl_b32 s{S_HD}, s10, 9')
            a.emit(f's_add_u32 s{S_HD}, s{S_HD}, {self.halo}')
            a.emit('s_lshl_b32 s14, s10, 2')
            a.emit('s_add_u32 s14, s14, s11')
            a.emit('s_sub_u32 s14, s14, 16')
            a.emit('v_lshrrev_b32 v3, 3, v1')
            a.emit('v_add_u32 v3, s14, v3')
            a.emit('v_max_i32 v3, 0, v3')
            a.emit('v_mul_u32_u24 v3, s5, v3')
            a.emit('s_lshl_b32 s14, s10, 1')
            a.emit('v_lshrrev_b32 v2, 4, v1')
            a.emit('v_add_u32 v2, s14, v2')
            a.emit('v_and_b32 v2, 7, v2')
            a.emit('v_xor_b32 v2, v2, v10')
            a.emit(f'v_lshl_add_u32 v{self.VXH}, v2, 4, v3')
            a.emit('s_cmp_eq_u32 s10, 0')
            a.emit('s_cselect_b32 s14, 0xffffff00, -1')
            a.emit('s_mov_b32 s15, 0')
        a.emit(f's_mov_b32 s{S_SLOT}, 0')
        if self.rot is None:
            a.emit(f's_mov_b32 s{S_KX}, 0')
            a.emit(f's_mov_b32 s{S_KW}, 0')
        else:
            if not getattr(self, 'noxg', False): a.emit(f's_add_u32 s{S_XG}, s{S_MT}, s{S_NT}')
            a.emit(f's_mov_b32 s{S_KT}, {0 if EARLY and self.tag == "w2" else -1}')
            ko = int(ENV('KOFF_' + self.tag.upper(), '0'))
            if ko:
                a.emit(f"s_bitcmp1_b32 {ENV('KMSK_' + self.tag.upper(), '0x0808' if self.tag == 'attn' else '0x2aea')}, s{S_NT}")
                a.emit(f's_cselect_b32 s{S_KT}, {ko - 1}, s{S_KT}')
            if self.kord(): self.ktable()
            if self.skip:
                if LAT:
                    a.emit(f's_mul_i32 s3, s{S_MT}, {LAT}')
                    a.emit(f's_add_u32 s3, s3, s{S_NT}')
                    a.emit(f's_and_b32 s{S_T0}, s3, 15')
                elif KSH:
                    a.emit(f's_and_b32 s{S_T0}, s{S_NT}, 3')
                    a.emit(f's_and_b32 s93, s{S_NT}, 12')
                    if KSH == 2:
                        a.emit(f's_and_b32 s3, s{S_MT}, 8')
                        a.emit('s_add_u32 s93, s93, s3')
                else: a.emit(f's_mov_b32 s{S_T0}, s{S_NT}')
                own_pos(a, 92)
                for x in self.knext(): a.emit(x)
            elif not self.ot:
                for x in self.knext(): a.emit(x)
    def kord(self): return ENV('KORD_' + self.tag.upper(), {'w1': '2', 'attn': '0,2'}.get(self.tag, ''))
    def korder(self, g, start):
        D = int(ENV('ROTD_' + self.tag.upper(), ENV('ROTD', '2')))
        o = list(range(16))
        if start < 0:
            dl = {3: [3, -1, -1, -1], 2: [2, -1, -1, 0], 1: [1, -1, 0, 0]}[D]
            return [(t + dl[(t - g) & 3]) & 15 for t in range(16)]
        for t in range(start + g, 16 - D, 4): o[t:t + D + 1] = [t + D] + list(range(t, t + D))
        return o
    def ktable(self, start=None):
        a = self.a
        if start is None: start = int(self.kord().split(',')[0])
        a.emit(f's_add_u32 s3, s{S_MT}, s{S_NT}')
        a.emit('s_and_b32 s3, s3, 3')
        for g in range(4):
            v = sum(k << (4 * i) for i, k in enumerate(self.korder(g, start)))
            if g: a.emit(f's_cmp_eq_u32 s3, {g}')
            for h in range(2):
                a.emit(f's_cselect_b32 s{S_XG+h}, {(v >> (32 * h)) & 0xffffffff:#x}, s{S_XG+h}' if g else f's_mov_b32 s{S_XG+h}, {(v >> (32 * h)) & 0xffffffff:#x}')
    def own(self):
        D = int(ENV('ROTD_' + self.tag.upper(), ENV('ROTD', '2')))
        dl = {3: [3, -1, -1, -1], 2: [2, -1, -1, 0], 1: [1, -1, 0, 0]}[D]
        tbl = sum(((-d) % 16) << (8 * ((r + d) & 3)) for r, d in enumerate(dl))
        assert self.rot == 0 and self.NSTEP == 16
        if self.kord():
            return [f's_lshr_b32 s3, s{S_NT}, 3', f's_and_b32 s{S_KX}, s{S_NT}, 7', f's_lshl1_add_u32 s{S_T0}, s{S_KX}, s3',
                    f's_mul_i32 s{S_KW}, s{S_T0}, {64*self.ldw2}', f's_lshl_b32 s{S_KX}, s{S_T0}, {11 if self.xblk else 7}']
        return [f's_lshr_b32 s3, s{S_NT}, 3', f's_and_b32 s{S_KX}, s{S_NT}, 7', f's_lshl1_add_u32 s{S_KX}, s{S_KX}, s3',
                f's_sub_u32 s3, s{S_KX}, s{S_XG}', 's_lshl_b32 s3, s3, 3', f's_lshr_b32 s3, {tbl:#x}, s3',
                f's_add_u32 s3, s3, s{S_KX}', f's_and_b32 s{S_T0}, s3, 15',
                f's_mul_i32 s{S_KW}, s{S_KX}, {64*self.ldw2}', f's_lshl_b32 s{S_KX}, s{S_KX}, {11 if self.xblk else 7}']
    def xoff_rows(self, ld):
        a = self.a
        a.emit('v_lshrrev_b32 v3, 3, v1')
        a.emit(f's_lshr_b32 s10, s{S_XD}, 7')
        a.emit(f's_lshl_b32 s3, s{S_MT}, 7')
        a.emit('s_add_u32 s10, s10, s3')
        a.emit('v_add_u32 v3, s10, v3')
        xpitch(a, 5)
        a.emit('s_lshl_b32 s6, s5, 3')
        a.emit('v_mul_u32_u24 v3, s5, v3')
        a.emit('v_lshrrev_b32 v2, 4, v1')
        for j in range(4):
            d = self.VXD + j
            if j & 1:
                a.emit(f'v_add_u32 v{d}, 4, v2')
                a.emit(f'v_xor_b32 v{d}, v{d}, v10')
            else:
                a.emit(f'v_xor_b32 v{d}, v2, v10')
            a.emit(f'v_lshl_add_u32 v{d}, v{d}, 4, v3')
            if j < 3: a.emit('v_add_u32 v3, s6, v3')
    def xoff_blk(self, ld):
        a = self.a
        a.emit(f's_lshr_b32 s10, s{S_XD}, 11')
        a.emit(f's_lshl_b32 s3, s{S_MT}, 3')
        a.emit('s_add_u32 s10, s10, s3')
        a.emit(f's_mul_i32 s10, s10, {16*ld}')
        a.emit(f'v_lshl_add_u32 v{self.VXD}, v1, 4, s10')
        a.emit(f'v_add_u32 v{self.VXD+1}, {16*ld}, v{self.VXD}')
    def xdma(self, base, imm, sd, soff, blk):
        o = []
        for j in range(4):
            if blk:
                if not j & 1: o += [f's_add_u32 m0, s{base}, {imm + j*1024}', 's_nop 0']
                o.append(f'buffer_load_dwordx4 v{self.VXD+(j>>1)}, s[{sd}:{sd+3}], s{soff} offen offset:{(j&1)*1024} lds')
            else:
                o += [f's_add_u32 m0, s{base}, {imm + j*1024}', 's_nop 0', f'buffer_load_dwordx4 v{self.VXD+j}, s[{sd}:{sd+3}], s{soff} offen lds']
        return o
    def knext(self):
        if self.rot is None:
            return [f's_add_u32 s{S_KX}, s{S_KX}, {2048 if self.xblk else 128}', f's_add_u32 s{S_KW}, s{S_KW}, {64*self.ldw2}']
        if self.kord():
            tb = f's[{S_XG}:{S_XG+1}]'
            o = [f's_and_b32 s{S_KX}, s{S_XG}, 15']
            if self.ot or self.skip: o += [f's_cmp_eq_u32 s{S_KX}, s{S_T0}', f's_cselect_b32 s{S_KW}, 4, 0', f's_lshr_b64 {tb}, {tb}, s{S_KW}', f's_and_b32 s{S_KX}, s{S_XG}, 15']
            if self.skip and not self.ot: o += ['s_sub_u32 s92, s92, 1', f's_cselect_b32 s{S_KX}, s{S_T0}, s{S_KX}', f's_cselect_b32 s{S_KW}, 0, 4'] + ([f's_add_u32 s{S_KX}, s{S_KX}, s93', f's_and_b32 s{S_KX}, s{S_KX}, 15'] if KSH else [])
            return o + [f's_lshr_b64 {tb}, {tb}, ' + (f's{S_KW}' if self.skip and not self.ot else '4'), f's_mul_i32 s{S_KW}, s{S_KX}, {64*self.ldw2}', f's_lshl_b32 s{S_KX}, s{S_KX}, {11 if self.xblk else 7}']
        lc = self.rot; C = 1 << lc; N = self.NSTEP
        o = [f's_add_u32 s{S_KT}, s{S_KT}, 1']
        if self.ot: o += [f's_cmp_eq_u32 s{S_KT}, s{S_T0}', f's_addc_u32 s{S_KT}, s{S_KT}, 0']
        D = int(ENV('ROTD_' + self.tag.upper(), ENV('ROTD', '2')))
        dl = {3: [3, -1, -1, -1], 2: [2, -1, -1, 0], 1: [1, -1, 0, 0]}[D]
        tbl = sum((((d * C) % N) << (8 * i)) for i, d in enumerate(dl))
        if lc: o += [f's_lshr_b32 s{S_KX}, s{S_KT}, {lc}', f's_sub_u32 s{S_KX}, s{S_KX}, s{S_XG}']
        else: o += [f's_sub_u32 s{S_KX}, s{S_KT}, s{S_XG}']
        o += [f's_lshl_b32 s{S_KX}, s{S_KX}, 3',
              f's_lshr_b32 s{S_KX}, {tbl:#x}, s{S_KX}',
              f's_and_b32 s{S_KX}, s{S_KX}, 255',
              f's_add_u32 s{S_KX}, s{S_KX}, s{S_KT}']
        if N & (N - 1) == 0: o += [f's_and_b32 s{S_KX}, s{S_KX}, {N - 1}']
        else: o += [f's_sub_u32 s{S_KW}, s{S_KX}, {N}', f's_cselect_b32 s{S_KX}, s{S_KX}, s{S_KW}']
        o += [f's_mul_i32 s{S_KW}, s{S_KX}, {64*self.ldw2}', f's_lshl_b32 s{S_KX}, s{S_KX}, {11 if self.xblk else 7}']
        return o
    def panels_of(self, t): return self.panels
    def issue_x(self, bx, bh, imm, kx):
        o = self.xdma(bx, imm, SX, kx, self.xblk)
        if self.halo is not None:
            o.append(f's_add_u32 m0, s{S_HD}, {bh}')
            o.append('s_mov_b64 exec, s[14:15]')
            o.append(f'buffer_load_dwordx4 v{self.VXH}, s[{SX}:{SX+3}], s{kx} offen lds')
            o.append('s_mov_b64 exec, -1')
        return o
    def issue_w(self, t, bw, imm):
        o = []
        for pn, goff in enumerate(self.panels_of(t)):
            for i in range(2):
                o.append(f's_add_u32 m0, s{bw}, {imm+pn*8192+i*1024}')
                o.append((goff if str(goff).startswith('s_') else f's_add_u32 s4, s{S_KW}, {goff}') if i == 0 else 's_nop 0')
                o.append(f'buffer_load_dwordx4 v{self.VWD+i}, s[{SW}:{SW+3}], s4 offen lds')
        if self.half:
            o += [f's_add_u32 m0, s{bw}, {imm+len(self.panels)*8192}', 's_nop 0',
                  f'buffer_load_dwordx4 v{self.VXH}, s[{SW}:{SW+3}], s{S_KW} offen lds']
        return o
    def issue(self, t):
        o = [f's_add_u32 s3, s{S_SLOT}, s{S_XD}']
        o += self.issue_x(3, f's{S_SLOT}', 0, S_KX)
        o.append(f's_add_u32 s3, s{S_SLOT}, s{S_WD}')
        o += self.issue_w(t, 3, 0)
        o += self.knext()
        o.append(f's_add_u32 s{S_SLOT}, s{S_SLOT}, {self.STAGE}')
        o.append(f's_cmp_eq_u32 s{S_SLOT}, {self.S*self.STAGE}')
        o.append(f's_cselect_b32 s{S_SLOT}, 0, s{S_SLOT}')
        return o
    def run(self, variant='', tail_issue=None, ntail_vm=0, final=None, post=(), dep=None, tail_late=0, start=None, extra=None, exfirst=False):
        a = self.a; N = self.NSTEP; d = self.S - 1
        tag = self.tag + variant
        nx = 4 + (1 if self.halo is not None else 0)
        nw = lambda t: 2 * len(self.panels_of(t)) + (1 if self.half else 0)
        seq = []
        early = EARLY and self.tag == 'w2'
        pchk = EARLY - 3 - d - 1; piss = pchk - d + 1 - int(ENV('PEARLY', '0'))
        def em(o):
            for x in o:
                if 'nodma' in DBG and x.endswith(' lds'): continue
                a.emit(x)
        def after(t): return len(seq) - 1 - max(i for i, x in enumerate(seq) if x == t)
        def wait(n):
            assert n <= 63, n
            a.emit(f's_waitcnt vmcnt({n})')
        if dep is None:
            for t in range(2): em(self.issue(t)); seq += [t] * (nx + nw(t))
            if start: seq += ['S'] * start()
            wait(after(0))
            a.emit('s_barrier')
            for t in range(2, d): em(self.issue(t)); seq += [t] * (nx + nw(t))
        else:
            prev = {'attn': 'w2', 'wo': 'attn', 'w1': 'wo', 'w2': 'w1'}[self.tag]
            assert 'attn' not in EBAR
            ot = self.ot
            if ot: em(self.own() + [f's_mov_b32 s88, s{S_KX}'] + self.issue_w(0, S_WD, 0) + self.knext()); seq.extend([0] * nw(0))
            a.lines += getattr(self, 'after_own', [])
            dep_pre(a, self.tag)
            if prev in EBAR: a.emit('s_barrier')
            xw = 1 if self.tag in ENV('XW', 'x').split(',') and not hasattr(self, 'P1') else 0
            def prew(ts):
                for t in ts:
                    a.emit(f's_mov_b32 s{88+t}, s{S_KX}')
                    em(self.issue_w(t, S_WD, t * self.STAGE) + self.knext()); seq.extend([t] * nw(t))
            late = int(ENV('LATE_' + self.tag.upper(), '2'))
            if ot: xw = 1
            prew(range(ot, d + xw - late))
            self.npre = len(seq)
            a.emit(f's_mov_b32 s{S_SLOT}, {0 if xw else d * self.STAGE}')
            wag = int(ENV('WAG_' + self.tag.upper(), '0'))
            dep((lambda: prew(range(d + xw - late, d + xw - wag))) if late else None)
            if ot and self.halo is not None: em(self.issue_x(S_XD, self.hx, 0, 88)[-4:]); seq.append(0)
            for t in range(ot, d + xw):
                if t >= d + xw - wag: prew([t])
                em(self.issue_x(S_XD, t * self.STAGE, t * self.STAGE, 88 + t)); seq += [t] * nx
            if ot and ENV('OPRIO'): a.emit('s_setprio 0')
            wait(after(ot))
            if self.tag == 'w2': lstamp(a, 2)
            a.emit('s_barrier')
            if early: late_flag(a)
        ev = [None] * self.ot
        for i in range(self.ot, N):
            t = i + d
            if t in seq: t = N + 9
            if early and i == piss: seq += ['P']
            if t < N: seq += [t] * (nx + nw(t)) + ['Q'] * sum(x.startswith('buffer_') for x in post)
            ex = extra(i) if extra else []
            tl = tail_issue is not None and t == N - 1 + tail_late
            if exfirst: seq += ['E'] * sum(x.startswith('buffer_') for x in ex)
            if tl: seq += ['T'] * ntail_vm
            if not exfirst: seq += ['E'] * sum(x.startswith('buffer_') for x in ex)
            ev.append(((nw(t) if t < N else -1, after(i + 1) if i + 1 < N else -1, tl, early and i == piss, early and i == pchk, tuple(ex)), t))
        i = self.ot; nl = 0
        while i < N:
            j = i
            while j + 1 < N and ev[j + 1][0] == ev[i][0]: j += 1
            n = j - i + 1
            (k, w, tl, pi, pc, ex), t = ev[i]
            if n >= 3:
                nl += 1
                a.emit(f's_mov_b32 s{S_CNT}, {n}')
                a.label(f'L_{tag}_ld{nl}')
            else: j = i
            if pi: a.emit(f'buffer_load_dword v13, v12, s[{SO}:{SO+3}], s86 offen sc1')
            if t < N:
                em(self.issue(t)); em(post)
            if exfirst: em(ex)
            if tl and not ('notail' in DBG and self.tag == 'w1'):
                if ENV('FPRIO'): a.emit('s_setprio 3')
                tail_issue()
                if ENV('FPRIO'): a.emit('s_setprio 0')
            if not exfirst: em(ex)
            if w >= 0: wait(w)
            elif final and 'nofinal' not in DBG:
                if ENV('FPRIO'): a.emit('s_setprio 3')
                final()
                if ENV('FPRIO'): a.emit('s_setprio 0')
            if pc: late_check(a)
            a.emit('s_barrier')
            if n >= 3:
                a.emit(f's_sub_u32 s{S_CNT}, s{S_CNT}, 1')
                a.emit(f's_cmp_lg_u32 s{S_CNT}, 0')
                a.emit(f's_cbranch_scc1 L_{tag}_ld{nl}')
            i = j + 1

XD = ONE and ENV('SPLIT', '0') == '0' and ENV('XD', '1') == '1'
VW = MEGA and ENV('SPLIT', '0') == '0' and ENV('VW', '0') == '1'
NV1 = int(ENV('NV1', '16')); NV2 = int(ENV('NV2', '12')); NVO = int(ENV('NVO', '11'))
S_TB = 85
def rot_table(a, sd, smt, snt, tag):
    D = int(ENV('ROTD_' + tag.upper(), ENV('ROTD', '2')))
    dl = {3: [3, -1, -1, -1], 2: [2, -1, -1, 0], 1: [1, -1, 0, 0], 0: [0, 0, 0, 0]}[D]
    tbl = sum((d & 255) << (8 * i) for i, d in enumerate(dl))
    a.emit(f's_add_u32 s3, s{smt}, s{snt}')
    a.emit('s_lshl_b32 s3, s3, 3')
    a.emit(f's_lshl_b32 s{sd}, {tbl:#x}, s3')
    a.emit('s_sub_u32 s3, 0, s3')
    a.emit(f's_lshr_b32 s3, {tbl:#x}, s3')
    a.emit(f's_or_b32 s{sd}, s{sd}, s3')

def kpos(N, t, sd, tb=S_TB, halves=True, q=None):
    H, p, add = (28, t >> 1, 28 * (t & 1)) if N == 56 and halves else (N, t, 0)
    o = [f's_bfe_i32 s{sd}, s{tb}, {0x80000 + 8 * (p & 3):#x}', f's_add_i32 s{sd}, s{sd}, {p + add}']
    if p == 0: o += [f's_cmp_lt_i32 s{sd}, {add}', f's_cselect_b32 s{sd}, {H - 1 + add}, s{sd}']
    if p + 3 >= H: o += [f's_sub_u32 s3, s{sd}, {H}', f's_cmp_ge_i32 s{sd}, {H + add}', f's_cselect_b32 s{sd}, s3, s{sd}']
    if q is not None:
        if N == 16 or 1 <= t <= 12: o += [f's_add_u32 s{sd}, s{sd}, s{q}', f's_and_b32 s{sd}, s{sd}, 15']
        elif t <= 16 or t + 3 >= N: o += [f's_add_u32 s3, s{sd}, s{q}', 's_and_b32 s3, s3, 15', f's_cmp_lt_u32 s{sd}, 16', f's_cselect_b32 s{sd}, s3, s{sd}']
    return o

S_Q = 86
MROT = ENV('MROT', '1') == '1'
def rot_q(a, sd, smt, sh=0):
    a.emit(f's_and_b32 s{sd}, s{smt}, {3 if MROT else 0}')
    a.emit(f's_lshl_b32 s{sd}, s{sd}, {2 + sh}')

TSCH = {'wo': [int(c) for c in ENV('TSO', '000')], 'w2': [int(c) for c in ENV('TS2', '000')]}
def tail_parks(nxt, sw, mk=None, sch=None):
    if not XD: return None
    sch = sch or TSCH[nxt]; N = 16 if nxt == 'wo' else 56
    def extra(i):
        if i < 13 or not sum(sch): return []
        a = Asm()
        if i == 13:
            if mk: mk(a)
            a.emit('s_and_b32 s5, s2, 3')
            a.emit('s_lshl_b32 s5, s5, 2')
            a.emit(f's_and_b32 s6, s{S_CU}, 3')
            a.emit('s_add_u32 s5, s5, s6')
            a.emit('s_and_b32 s6, s2, 4')
            a.emit('s_lshl_b32 s6, s6, 1')
            a.emit(f's_lshr_b32 s7, s{S_CU}, 2')
            a.emit('s_add_u32 s6, s6, s7')
            rot_table(a, S_TB, 5, 6, nxt)
            rot_q(a, S_Q, 5)
            a.emit(f's_add_u32 s5, s5, s{S_WV}')
            a.emit('s_and_b32 s5, s5, 3')
            wvoff(a, 16, 5, 6, 2048)
        o = [l.strip() for l in a.lines]
        for t in range(sum(sch[:i - 13]), sum(sch[:i - 12])):
            o += kpos(N, t, 4, S_TB, False, S_Q) + ['s_lshl_b32 s4, s4, 17']
            o += [f'buffer_load_dwordx4 v[{128+8*t+4*j}:{131+8*t+4*j}], v{16+j}, s[{sw}:{sw+3}], s4 offen' for j in range(2)]
        return o
    return extra

def vreg(tag, t):
    if tag == 'wo': return (128 + 8 * (t - 5), False) if 5 <= t < 5 + NVO else None
    if t & 1: return None
    p = t >> 1
    if p < NV1: return (128 + 8 * p, True)
    if p < NV1 + NV2: return (32 + 8 * (p - NV1), False)
    return None

def wrow(a, sqw, ns):
    if ns:
        a.emit('v_bfe_u32 v3, v1, 3, 2')
        a.emit('v_lshrrev_b32 v2, 5, v1')
        a.emit('v_lshl_add_u32 v3, v2, 4, v3')
        a.emit(f's_and_b32 s10, s{sqw}, 2')
        a.emit(f's_add_u32 s10, s10, s{sqw}')
        a.emit('v_lshl_add_u32 v3, s10, 3, v3')
    else:
        a.emit('v_lshrrev_b32 v3, 3, v1')
        a.emit(f's_lshl_b32 s10, s{sqw}, 4')
        a.emit('v_add_u32 v3, s10, v3')

def wvoff(a, vd, sqw, snt, ldw2, ns=False):
    nr = ns and NSR; ns = ns and not NSR
    wrow(a, sqw, ns)
    a.emit(f'v_mul_u32_u24 v3, {ldw2}, v3')
    a.emit('v_lshrrev_b32 v2, 3, v1')
    a.emit(f'v_and_b32 v2, {6 if nr else 2}, v2')
    a.emit('v_xor_b32 v2, v2, v10')
    a.emit(f's_lshl_b32 s10, s{snt}, 7')
    a.emit('v_add_u32 v3, s10, v3')
    a.emit(f'v_lshl_add_u32 v{vd}, v2, 4, v3')
    if not nr: a.emit('v_xor_b32 v2, 4, v2')
    a.emit(f'v_add_u32 v3, {(4 if ns else 8)*ldw2}, v3')
    a.emit(f'v_lshl_add_u32 v{vd+1}, v2, 4, v3')

def park(N, t, r, vo, sw):
    return kpos(N, t, 4) + ['s_lshl_b32 s4, s4, 17'] + [f'buffer_load_dwordx4 v[{r+4*i}:{r+4*i+3}], v{vo+i}, s[{sw}:{sw+3}], s4 offen' for i in range(2)]

class ULoader(Loader):
    def run(self, variant='', tail_issue=None, ntail_vm=0, final=None, post=(), dep=None):
        a = self.a; N = self.NSTEP; d = self.S - 1; tag = self.tag
        seq = []
        def em(o):
            for x in o:
                if 'nodma' in DBG and x.endswith(' lds'): continue
                a.emit(x)
        def after(t): return len(seq) - 1 - max(i for i, x in enumerate(seq) if x == t)
        def wait(n, lg=False):
            assert n <= 63, n
            a.emit(f's_waitcnt vmcnt({n})' + (' lgkmcnt(0)' if lg else ''))
        def iw(t):
            sl = (t % self.S) * self.STAGE; v = vreg(tag, t)
            if v:
                em([f'v_add_u32 v11, {sl}, v14'] + [f'ds_write_b128 v11, v[{v[0]+4*i}:{v[0]+4*i+3}] offset:{1024*i}' for i in range(2)])
            else:
                em([f's_lshl_b32 s{S_KW}, s{S_KX}, 17'] + [x for x in self.issue_w(t, S_WD, sl)])
                seq.extend([t] * 2)
        def ix(t, k):
            em(self.issue_x(S_XD, None, (t % self.S) * self.STAGE, k)); seq.extend([t] * 4)
        rot_table(a, S_TB, S_MT, S_NT, tag)
        a.emit(f'v_lshl_add_u32 v14, v1, 4, s{S_WD}')
        dep_pre(a, tag)
        for t in range(d):
            em(kpos(N, t, S_KX)); iw(t)
            a.emit(f's_lshl_b32 s{88+t}, s{S_KX}, 11')
        for t in range(d, N):
            v = vreg(tag, t)
            if v and not v[1]:
                em(park(N, t, v[0], self.VWD, SW)); seq.extend(['V'] * 2)
        self.npre = len(seq)
        dep()
        for t in range(d): ix(t, 88 + t)
        wait(after(0), True)
        if tag == 'w2': lstamp(a, 2)
        a.emit('s_barrier')
        for i in range(N):
            t = i + d
            if i % 4 == 0 and post and t < N:
                a.emit('s_waitcnt lgkmcnt(0)')
                em(post)
            if t < N:
                em(kpos(N, t, S_KX)); iw(t)
                a.emit(f's_lshl_b32 s{S_KX}, s{S_KX}, 11')
                ix(t, S_KX)
            if t == N - 1: tail_issue(); seq.extend(['T'] * ntail_vm)
            if i + 1 < N: wait(after(i + 1), not post or t == N)
            else: final()
            a.emit('s_barrier')

EBAR = ENV('EBAR', 'x').split(',')
S_FL = 87
def dep_pre(a, kind, part=None, n=0):
    if ONE and kind in ('wo', 'w1'):
        ld = f'buffer_load_dword v12, v17, s[{SC}:{SC+3}], 0 offen sc1' if kind == 'wo' else f'buffer_load_dwordx4 v[12:15], v17, s[{SO}:{SO+3}], s3 offen sc1'
        if part == 1: a.emit(f's_waitcnt vmcnt({n})')
        a.emit(f's_add_u32 s3, s{S_LAYER}, s{S_WV}')
        a.emit('s_cmp_lg_u32 s3, 4')
        a.emit(f's_cbranch_scc1 L_{kind}_chk{part}')
        def cmp():
            if kind == 'wo': a.emit('v_cmp_ne_u32 vcc, 0x01010101, v12')
            else:
                a.emit('v_and_b32 v12, v12, v13')
                a.emit('v_and_b32 v14, v14, v15')
                a.emit('v_and_b32 v12, v12, v14')
                a.emit('v_cmp_ne_u32 vcc, 1, v12')
        if part == 1:
            cmp()
            a.emit(f's_cbranch_vccz L_{kind}_chk{part}')
        if True:
            if kind == 'wo': a.emit(f's_load_dwordx2 s[{SC}:{SC+1}], s[0:1], 72')
            else: srd(a, SO, 'ws0', WS_FL, FLS)
            if kind == 'wo':
                a.emit('s_waitcnt lgkmcnt(0)')
                a.emit(f's_and_b32 s{SC+1}, s{SC+1}, 0xffff')
                a.emit(f's_mov_b32 s{SC+2}, 256')
                a.emit(f's_mov_b32 s{SC+3}, 0x00020000')
                a.emit('v_lshlrev_b32 v17, 2, v1')
            else:
                a.emit('v_lshrrev_b32 v2, 2, v1')
                a.emit('v_and_b32 v3, 3, v1')
                a.emit('v_lshlrev_b32 v2, 11, v2')
                a.emit('v_lshl_add_u32 v17, v3, 4, v2')
                a.emit(f's_and_b32 s3, s{S_NT}, {REP - 1}')
                a.emit('s_lshl_b32 s3, s3, 7')
        if part == 0: a.emit(ld)
        else:
            a.emit(f's_mov_b32 s{S_CNT}, 0x100000')
            a.label(f'L_{kind}_chkl')
            a.emit(ld)
            a.emit(f's_sub_u32 s{S_CNT}, s{S_CNT}, 1')
            a.emit(f's_cbranch_scc1 L_{kind}_chk{part}')
            a.emit('s_waitcnt vmcnt(0)')
            cmp()
            a.emit(f's_cbranch_vccnz L_{kind}_chkl')
        a.label(f'L_{kind}_chk{part}')

def dep_wait(a, kind, halo=False, skip_first=False, first=None, preg=None, postf=None, pref=None, defer=False, obar=False):
    if skip_first and not ONE:
        a.emit(f's_cmp_eq_u32 s{S_TSI}, 1')
        a.emit(f's_cbranch_scc1 L_{kind}_dep')
    srd(a, SO, 'ws0', WS_FL, FLS)
    if ONE and kind == 'wo' and first:
        a.emit(f's_cmp_lg_u32 s{S_LAYER}, 0')
        a.emit(f's_cbranch_scc1 L_{kind}_nofirst')
        first()
        a.label(f'L_{kind}_nofirst')
    a.emit(f's_lshl4_add_u32 s3, s{S_TSI}, s{S_MT}')
    a.emit(f's_and_b32 s4, s{S_NT}, {REP - 1}')
    a.emit('s_lshl4_add_u32 s3, s3, s4')
    a.emit('s_lshl_b32 s3, s3, 7')
    a.emit('s_sub_u32 s3, s3, 32768')
    a.emit('v_lshlrev_b32 v11, 7, v1')
    if halo:
        a.emit(f's_cmp_eq_u32 s{S_MT}, 0')
        a.emit('s_cselect_b32 s4, 15, 31')
        a.emit('v_and_b32 v2, 16, v1')
        a.emit('v_lshl_add_u32 v11, v2, 2, v11')
        a.emit('v_and_b32 v2, s4, v1')
    else: a.emit('v_and_b32 v2, 15, v1')
    a.emit('v_lshlrev_b32 v2, 2, v2')
    xc = OH and kind == 'w1'
    if xc:
        a.emit('s_getreg_b32 s4, hwreg(HW_REG_XCC_ID, 0, 4)')
        if ENV('FB'): a.emit(f"s_and_b32 s4, s2, {ENV('FB')}")
        a.emit('v_add_u32 v3, 1, s4')
    else: a.emit('v_mov_b32 v3, 1')
    a.emit(f's_mov_b32 s{S_CNT}, 0x100000')
    if kind == LSTK == 'wo': lstamp(a, 2)
    if pref: pref()
    if OH and kind == 'w2': a.emit(f'v_cmp_ne_u32 vcc, s{S_MD}, 0')
    a.emit(f's_cmp_lg_u32 s{S_WV}, 4')
    a.emit('s_barrier')
    if kind == 'w2': lstamp(a, 0, True)
    if kind == LSTK == 'w1': lstamp(a, 0)
    a.emit(f's_cbranch_scc1 L_{kind}_{"nofl" if postf else "dep"}')
    if OH and kind == 'w2':
        a.emit('s_cbranch_vccnz L_w2_wb')
        a.label('L_w2_wbd')
    a.emit(f's_mov_b32 exec_lo, {((1 << REP) - 1) * (0x10001 if halo else 1):#x}')
    a.emit('s_mov_b32 exec_hi, 0')
    a.emit(f'buffer_store_dword v3, v11, s[{SO}:{SO+3}], s{S_FL} offen sc1')
    a.emit('s_mov_b64 exec, -1')
    PSP = int(ENV('PSP', '0'))
    if defer:
        a.label(f'L_{kind}_nofl')
        a.emit(f's_mov_b32 s{S_Q}, s3')
        postf()
        return
    if postf and PSP:
        a.label(f'L_{kind}_nofl')
        a.emit('s_mov_b32 s5, s3')
        i0 = len(a.lines); postf(); ls = a.lines[i0:]; del a.lines[i0:]
        dma = [i for i, l in enumerate(ls) if 'buffer_load' in l]
        poll = lambda k: f'buffer_load_dword v{24+k}, v2, s[{SO}:{SO+3}], s5 offen sc1'
        for i, l in enumerate(ls):
            a.lines.append(l)
            for k in range(3):
                if dma and i == dma[-1 - PSP * (3 - k)]: a.emit(poll(k))
        a.emit(f's_cmp_lg_u32 s{S_WV}, 4')
        a.emit(f's_cbranch_scc1 L_{kind}_dep')
        def chk(k, n, last=False):
            a.emit(poll((k + 3) & 3))
            a.emit(f's_waitcnt vmcnt({n})')
            a.emit(f'v_cmp_ne_u32 vcc, 1, v{24+k}')
            a.emit(f's_cbranch_vccnz L_{kind}_poll' if last else f's_cbranch_vccz L_{kind}_dep')
        for k in range(3): chk(k, 3 + PSP * (3 - k))
        a.label(f'L_{kind}_poll')
        a.emit(f's_sub_u32 s{S_CNT}, s{S_CNT}, 1')
        a.emit(f's_cbranch_scc1 L_{kind}_dep')
        for k in (3, 0, 1, 2): chk(k, 3, k == 2)
    else:
        if postf:
            if obar:
                a.emit(f's_waitcnt vmcnt({obar})')
                a.emit(f's_branch L_{kind}_obar')
            a.label(f'L_{kind}_nofl')
            if obar:
                a.emit(f's_waitcnt vmcnt({obar - 1})')
                a.label(f'L_{kind}_obar')
                a.emit('s_barrier')
                if ENV('OPRIO'): a.emit(f"s_setprio {ENV('OPRIO')}")
            a.emit('s_mov_b32 s5, s3')
            postf()
            a.emit('s_mov_b32 s3, s5')
            a.emit(f"s_cmp_lg_u32 s{S_WV}, {ENV('PW_' + kind.upper(), '4')}")
            a.emit(f's_cbranch_scc1 L_{kind}_dep')
        if kind == LSTK == 'w1': lstamp(a, 1)
        a.label(f'L_{kind}_poll')
        a.emit(f'buffer_load_dword v{VMD if xc else 3}, v2, s[{SO}:{SO+3}], s3 offen sc1')
        a.emit(f's_sub_u32 s{S_CNT}, s{S_CNT}, 1')
        a.emit(f's_cbranch_scc1 L_{kind}_dep')
        a.emit('s_waitcnt vmcnt(0)')
        a.emit(f'v_cmp_eq_u32 vcc, 0, v{VMD}' if xc else 'v_cmp_ne_u32 vcc, 1, v3')
        a.emit(f's_cbranch_vccnz L_{kind}_poll')
    a.label(f'L_{kind}_dep')
    if kind == 'w2': lstamp(a, 1, True)
    if kind == LSTK == 'wo': lstamp(a, 3)
    if kind == LSTK == 'w1':
        lstamp(a, 2)
        if TS: a.emit(f's_mov_b32 s50, s{S_CNT}')
    if preg: preg()
    if preg and kind == 'w2': lstamp(a, 2, True)
    a.emit('s_barrier')

def xpoll(a, lab, sd, so, v, vd):
    a.emit(f's_cmp_lg_u32 s{S_WV}, 4')
    a.emit(f's_cbranch_scc1 {lab}go')
    a.emit('s_setprio 3')
    a.label(f'{lab}poll')
    a.emit(f'buffer_load_dword v{vd}, v{v}, s[{sd}:{sd+3}], s{so} offen sc1')
    a.emit(f's_sub_u32 s{S_CNT}, s{S_CNT}, 1')
    a.emit(f's_cbranch_scc1 {lab}go')
    a.emit('s_waitcnt vmcnt(0)')
    a.emit(f'v_cmp_ne_u32 vcc, 1, v{vd}')
    a.emit(f's_cbranch_vccnz {lab}poll')
    a.label(f'{lab}go')
    a.emit('s_setprio 0')

def ef_poll(a, lab, v, prio=False):
    a.emit(f"s_cmp_lg_u32 s{S_WV}, {ENV('PW_W2', '4')}")
    a.emit(f's_cbranch_scc1 {lab}_ok')
    if prio: a.emit('s_setprio 3')
    a.emit(f's_mov_b32 s{S_CNT}, 0x100000')
    a.label(lab)
    a.emit(f'buffer_load_dword v3, v{v}, s[{SO}:{SO+3}], s{S_Q} offen sc1')
    a.emit(f's_sub_u32 s{S_CNT}, s{S_CNT}, 1')
    a.emit(f's_cbranch_scc1 {lab}_ok')
    a.emit('s_waitcnt vmcnt(0)')
    a.emit('v_cmp_ne_u32 vcc, 1, v3')
    a.emit(f's_cbranch_vccnz {lab}')
    a.label(f'{lab}_ok')
    if prio: a.emit('s_setprio 0')

def ef_flag(a, lab, off):
    a.emit(f's_cmp_lg_u32 s{S_WV}, 4')
    a.emit('s_barrier')
    a.emit(f's_cbranch_scc1 {lab}')
    a.emit(f's_mov_b64 exec, {(1 << REP) - 1:#x}')
    a.emit(f'buffer_store_dword v13, v11, s[{SO}:{SO+3}], s{S_FL} offen offset:{off} sc1')
    a.emit('s_mov_b64 exec, -1')
    a.label(lab)

def dep_ef(a, poste, preh, preg):
    srd(a, SO, 'ws0', WS_FL, FLS)
    a.emit(f's_lshl4_add_u32 s3, s{S_TSI}, s{S_MT}')
    a.emit(f's_and_b32 s4, s{S_NT}, {REP - 1}')
    a.emit('s_lshl4_add_u32 s3, s3, s4')
    a.emit('s_lshl_b32 s3, s3, 7')
    a.emit(f's_sub_u32 s{S_Q}, s3, 32768')
    a.emit('v_lshlrev_b32 v11, 7, v1')
    a.emit('v_and_b32 v2, 15, v1')
    a.emit('v_lshlrev_b32 v2, 2, v2')
    a.emit(f's_bitcmp1_b32 s{S_NT}, 0')
    a.emit('s_cselect_b32 s4, 96, 64')
    a.emit('v_and_b32 v12, 28, v2')
    a.emit('v_add_u32 v12, s4, v12')
    a.emit('v_mov_b32 v13, 1')
    ef_flag(a, 'L_w2_nofe', 64)
    lstamp(a, 0, True)
    poste()
    if ENV('EFP', '1') == '0': ef_poll(a, 'L_w2_pe', 12)
    preh()
    a.emit('s_barrier')
    if ENV('EFP', '1') != '0': ef_poll(a, 'L_w2_pe', 12, ENV('EFP') == '2')
    lstamp(a, 1, True)
    preg()
    ef_flag(a, 'L_w2_nofl', 0)

def dep_late(a, kind, part, n=0):
    ld = f'buffer_load_dword v3, v2, s[{SO}:{SO+3}], s{S_Q} offen sc1'
    if part == 0:
        a.emit(f's_cmp_eq_u32 s{S_WV}, 4')
        a.emit(f's_cselect_b32 s{SO+2}, s{SO+2}, 0')
        a.emit(ld)
        return
    a.emit(f's_cmp_lg_u32 s{S_WV}, 4')
    a.emit(f's_cbranch_scc1 L_{kind}_dep')
    a.emit(f's_waitcnt vmcnt({n})')
    a.emit('v_cmp_ne_u32 vcc, 1, v3')
    a.emit(f's_cbranch_vccz L_{kind}_dep')
    a.label(f'L_{kind}_poll')
    a.emit(ld)
    a.emit(f's_sub_u32 s{S_CNT}, s{S_CNT}, 1')
    a.emit(f's_cbranch_scc1 L_{kind}_dep')
    a.emit('s_waitcnt vmcnt(0)')
    a.emit('v_cmp_ne_u32 vcc, 1, v3')
    a.emit(f's_cbranch_vccnz L_{kind}_poll')
    a.label(f'L_{kind}_dep')
    if not EF: lstamp(a, 1, True)
    lstamp(a, 2, True)
    if TS and ENV('LST') != 'x': a.emit(f's_mov_b32 s58, s{S_CNT}')

LGO = 163840 - 64
def dep_early(a):
    srd(a, SO, 'ws0', WS_FL, FLS)
    a.emit(f's_lshl_b32 s86, s{S_TSI}, 12')
    a.emit(f's_lshl_b32 s4, s{S_MT}, 8')
    a.emit('s_add_u32 s86, s86, s4')
    a.emit('s_sub_u32 s86, s86, 4096')
    a.emit('v_and_b32 v12, 15, v1')
    a.emit('v_lshlrev_b32 v12, 2, v12')
    a.emit('v_mov_b32 v3, 0')
    a.emit(f'v_mov_b32 v2, {LGO}')
    a.emit('ds_write_b32 v2, v3')
    a.emit('v_mov_b32 v13, 1')
    a.emit(f's_mov_b32 s{S_CNT}, 0x100000')
    a.emit(f's_cmp_lg_u32 s{S_WV}, 4')
    a.emit('s_waitcnt lgkmcnt(0)')
    a.emit('s_barrier')
    a.emit('s_cbranch_scc1 L_w2_go')
    lstamp(a, 0)
    a.emit('s_mov_b64 exec, 1')
    a.emit(f'buffer_store_dword v13, off, s[{SO}:{SO+3}], s{S_FL} sc1')
    a.emit('s_mov_b64 exec, -1')
    a.label('L_w2_poll')
    a.emit(f'buffer_load_dword v3, v12, s[{SO}:{SO+3}], s86 offen sc1')
    a.emit(f's_sub_u32 s{S_CNT}, s{S_CNT}, 1')
    a.emit('s_cbranch_scc1 L_w2_rel')
    a.emit('s_waitcnt vmcnt(0)')
    a.emit('v_cmp_eq_u32 vcc, 0, v3')
    a.emit('s_cbranch_vccnz L_w2_poll')
    a.label('L_w2_rel')
    a.emit('ds_write_b32 v2, v13')
    lstamp(a, 1)
    a.emit('s_branch L_w2_dep')
    a.label('L_w2_go')
    a.emit(f's_mov_b32 s{S_CNT}, 0x2000000')
    a.label('L_w2_gol')
    a.emit('ds_read_b32 v3, v2')
    a.emit(f's_sub_u32 s{S_CNT}, s{S_CNT}, 1')
    a.emit('s_cbranch_scc1 L_w2_dep')
    a.emit('s_waitcnt lgkmcnt(0)')
    a.emit('v_cmp_eq_u32 vcc, 0, v3')
    a.emit('s_cbranch_vccnz L_w2_gol')
    a.label('L_w2_dep')

def late_flag(a):
    a.emit(f's_cmp_lg_u32 s{S_WV}, 4')
    a.emit('s_cbranch_scc1 L_w2_nolate')
    a.emit('v_mov_b32 v3, 2')
    a.emit('s_mov_b64 exec, 1')
    a.emit(f'buffer_store_dword v3, off, s[{SO}:{SO+3}], s{S_FL} sc1')
    a.emit('s_mov_b64 exec, -1')
    a.label('L_w2_nolate')

def late_check(a):
    a.emit(f's_mov_b32 s{S_CNT}, 0x100000')
    a.label('L_w2_lchk')
    a.emit('v_cmp_ne_u32 vcc, 2, v13')
    a.emit('s_cbranch_vccz L_w2_lok')
    a.emit(f'buffer_load_dword v13, v12, s[{SO}:{SO+3}], s86 offen sc1')
    a.emit(f's_sub_u32 s{S_CNT}, s{S_CNT}, 1')
    a.emit('s_waitcnt vmcnt(0)')
    a.emit('s_cbranch_scc0 L_w2_lchk')
    a.label('L_w2_lok')
    if TS: a.emit(f's_mov_b32 s58, s{S_CNT}')
    lstamps_out(a, 'w2')

def gbar(a, kind):
    if not MEGA or (EARLY and kind == 'w2'): return
    if kind == 'attn':
        a.emit(f's_cmp_eq_u32 s{S_LAYER}, 0')
        a.emit('s_cbranch_scc1 L_attn_nog')
    a.emit('s_barrier')
    if kind == 'attn': a.label('L_attn_nog')

def next_phase(a, kind, comp=False):
    nxt = {'attn': 'wo', 'wo': 'w1', 'w1': 'w2', 'w2': 'attn'}[kind]
    if kind == 'w2':
        a.emit(f's_mov_b32 s{S_LAYER}, 1')
        a.emit(f's_add_u32 s12, s22, {WS_X2}')
        a.emit('s_addc_u32 s13, s23, 0')
        a.emit(f's_add_u32 s34, s22, {LSTR}')
        a.emit('s_addc_u32 s35, s23, 0')
    a.emit(f's_add_u32 s{S_TSI}, s{S_TSI}, 1')
    a.emit(f's_branch L_{nxt}_' + ('compute' if comp and NV and nxt == 'w2' else 'body'))

def last_check(a, kind):
    if kind == 'w2' or (kind == 'attn' and not ONE):
        a.emit(f's_cmp_eq_u32 s{S_LAYER}, {0 if kind == "attn" else 1}')
        a.emit(f's_cbranch_scc1 L_{kind}_end')

def compute_end(a, kind):
    if not MEGA:
        stamps_out(a, kind)
        a.emit('s_endpgm')
        return
    if not TS and not (SKL and kind == 'w2'): last_check(a, kind)
    if TE and kind == 'w2' and not SKL: a.lines[-1] = a.lines[-1].replace('L_w2_end', 'L_fin')
    if kind in EBAR: a.emit('s_barrier')
    import pads
    for x in pads.chain({'attn': 'he', 'wo': 'hw'}.get(kind)): a.emit(x)
    if not ((EARLY or NV) and kind == 'w1'):
        a.emit('s_waitcnt lgkmcnt(0)' if EF and kind == 'w1' else f"s_waitcnt vmcnt({int(SF and kind in ('wo', 'w2'))}) lgkmcnt(0)")
        a.emit('s_barrier')
    if TS:
        stamps_out(a, kind)
        if ENV('DIAG') and kind == 'w2': diag(a)
        last_check(a, kind)
    stamp(a, 0, nowait=True)
    next_phase(a, kind, True)

def fin(a):
    if not TE: return
    a.label('L_fin')
    a.emit('s_waitcnt vmcnt(0)')
    a.emit('s_memrealtime s[92:93]')
    srd(a, SP, 'ws0', WS_TS, 1 << 20)
    a.emit(f's_lshl2_add_u32 s4, s2, s{S_WV}')
    a.emit('s_lshl_b32 s4, s4, 3')
    a.emit('s_waitcnt lgkmcnt(0)')
    a.emit('v_mov_b32 v4, s94')
    a.emit('v_mov_b32 v5, s92')
    a.emit('s_mov_b64 exec, 1')
    a.emit(f'buffer_store_dwordx2 v[4:5], off, s[{SP}:{SP+3}], s4')
    a.emit('s_endpgm')

def diag(a):
    ph, j, K, C = [int(x) for x in ENV('DIAG').split(',')]
    a.emit(f's_lshl1_add_u32 s3, s{S_WV}, s{S_LAYER}')
    a.emit('s_cmp_lg_u32 s3, 1')
    a.emit('s_cbranch_scc1 L_diag_end')
    a.emit('s_waitcnt vmcnt(0)')
    a.emit('v_lshlrev_b32 v1, 6, v0')
    for i in range(4): a.emit(f's_mov_b32 s3, {4096*i}'); a.emit(f'buffer_load_dword v{4+i}, v1, s[{SP}:{SP+3}], s3 offen sc1')
    a.emit('s_lshl_b32 s4, s2, 6')
    a.emit(f's_add_u32 s4, s4, {(ph << 16) + 16 * j}')
    a.emit(f'buffer_load_dword v8, off, s[{SP}:{SP+3}], s4 sc1')
    a.emit('s_waitcnt vmcnt(0)')
    for i in range(4): a.emit(f'v_sub_u32 v{4+i}, v8, v{4+i}')
    a.emit('v_max_i32 v4, v4, v5'); a.emit('v_max_i32 v6, v6, v7'); a.emit('v_max_i32 v4, v4, v6')
    a.emit('s_mov_b32 s5, 0')
    a.emit('s_nop 1')
    for i in range(64):
        a.emit(f'v_readlane_b32 s3, v4, {i}')
        a.emit('s_max_i32 s5, s5, s3')
    if C: a.emit(f's_sub_u32 s5, {C}, s5'); a.emit('s_max_i32 s5, s5, 0')
    a.emit('s_min_u32 s5, s5, 15000')
    a.emit(f's_mul_i32 s5, s5, {K}')
    a.emit('s_memrealtime s[6:7]')
    a.emit('s_mov_b32 s4, 0x40000')
    a.emit('s_waitcnt lgkmcnt(0)')
    a.label('L_diag_l')
    a.emit('s_memrealtime s[8:9]')
    a.emit('s_sub_u32 s4, s4, 1')
    a.emit('s_cbranch_scc1 L_diag_end')
    a.emit('s_waitcnt lgkmcnt(0)')
    a.emit('s_sub_u32 s8, s8, s6')
    a.emit('s_cmp_lt_u32 s8, s5')
    a.emit('s_cbranch_scc1 L_diag_l')
    a.label('L_diag_end')

def loader_end(a, kind, check=True):
    if MEGA:
        if kind == LSTK and not EARLY: lstamps_out(a, kind)
        if check: last_check(a, kind)
        a.emit(f's_lshl_b32 s{S_FL}, s{S_TSI}, 15')
        a.emit(f's_lshl_b32 s4, s{S_MT}, 11')
        a.emit(f's_add_u32 s{S_FL}, s{S_FL}, s4')
        a.emit(f's_lshl_b32 s4, s{S_NT}, 2')
        a.emit(f's_add_u32 s{S_FL}, s{S_FL}, s4')
        next_phase(a, kind)

def pf_weights(a, sd, which, size, ldw2, R, sh, L, LMn, tilebytes, NI, vd, row0=0, qkv=False, pair=False):
    if 'nopf' in DBG: return 0
    srd(a, sd, which, 0, size)
    a.emit(f's_and_b32 s3, s{S_WV}, 3')
    a.emit(f's_mul_i32 s3, s3, {NI * (64 >> sh)}')
    a.emit(f's_mul_i32 s4, s{S_CU}, {R}')
    a.emit('s_add_u32 s3, s3, s4')
    if row0: a.emit(f's_add_u32 s3, s3, {row0}')
    a.emit(f'v_lshrrev_b32 v2, {sh}, v1')
    a.emit('v_add_u32 v2, s3, v2')
    a.emit(f'v_mul_u32_u24 v2, {ldw2}, v2')
    a.emit(f'v_and_b32 v3, {(1 << sh) - 1}, v1')
    if L < (1 << sh): a.emit(f'v_min_u32 v3, {L-1}, v3')
    if qkv:
        a.emit('v_lshrrev_b32 v12, 2, v3')
        a.emit('v_lshl_add_u32 v2, v12, 11, v2')
        a.emit('v_and_b32 v3, 3, v3')
    a.emit(f'v_lshl_add_u32 v2, v3, {8 if pair else 7}, v2')
    a.emit('s_and_b32 s3, s2, 7')
    a.emit(f's_lshr_b32 s3, s3, {4 - LMn}')
    a.emit(f's_mul_i32 s3, s3, {tilebytes if pair else (1 << (5 - LMn)) * tilebytes}')
    for i in range(NI):
        a.emit(f'buffer_load_dword v{vd+i}, v2, s[{sd}:{sd+3}], s3 offen')
        if i + 1 < NI: a.emit(f's_add_u32 s3, s3, {(64 >> sh) * ldw2}')
    return NI

_pfc = [0]
def pf_code(a, start, end, vd, forward=True):
    if 'nopfc' in DBG: return 0
    _pfc[0] += 1
    lab = f'L_pfc{_pfc[0]}'
    a.emit('s_getpc_b64 s[4:5]')
    a.label(lab)
    if forward:
        a.emit(f's_add_u32 s4, s4, {start}-{lab}')
        a.emit('s_addc_u32 s5, s5, 0')
    else:
        a.emit(f's_sub_u32 s4, s4, {lab}-{start}')
        a.emit('s_subb_u32 s5, s5, 0')
    a.emit(f's_and_b32 s3, s{S_WV}, 3')
    a.emit('s_lshl_b32 s3, s3, 13')
    a.emit('v_lshl_add_u32 v2, v1, 7, s3')
    a.emit(f'v_min_u32 v2, {end}-{start}-4, v2')
    a.emit(f'global_load_dword v{vd}, v2, s[4:5]')
    return 1

def wbase(a, vd, vt, g='v2', nr=False):
    if nr: a.emit(f'v_lshrrev_b32 v{vd}, 2, v1')
    else:
        a.emit(f'v_bfe_u32 v{vd}, v1, 2, 2')
        a.emit(f'v_lshl_add_u32 v{vd}, {g}, 3, v{vd}')
    a.emit(f'v_lshlrev_b32 v{vd}, 7, v{vd}')
    a.emit(f'v_and_b32 v{vt}, 3, v1')
    a.emit(f'v_lshl_add_u32 v{vd}, v{vt}, 3, v{vd}')
    a.emit(f'v_bfe_u32 v{vt}, v1, 3, 2')
    a.emit(f'v_lshl_add_u32 v{vd}, v{vt}, 5, v{vd}')


def code_touch(a, start, end, nb, sd=SX, loader=False):
    if ENV('CT', '1') == '0': return
    _pfc[0] += 1
    lab = f'L_pfc{_pfc[0]}'
    a.emit(f's_cmp_lg_u32 s{S_LAYER}, 0')
    a.emit(f's_cbranch_scc1 {lab}_skip')
    a.emit('s_getpc_b64 s[4:5]')
    a.label(lab)
    a.emit(f's_lshl_b32 s3, s{S_CU}, 2')
    a.emit(f's_add_u32 s3, s3, s{S_WV}')
    if loader: a.emit('s_sub_u32 s3, s3, 4')
    a.emit(f's_mul_i32 s3, s3, {nb}')
    a.emit(f's_min_u32 s3, s3, {end}-{start}-{nb}')
    a.emit(f's_add_i32 s3, s3, {start}-{lab}')
    a.emit('s_ashr_i32 s6, s3, 31')
    a.emit('s_add_u32 s4, s4, s3')
    a.emit('s_addc_u32 s5, s5, s6')
    for i in range(nb // 64):
        a.emit(f's_load_dword s{84 if loader else SW}, s[4:5], {64*i}')
    a.label(f'{lab}_skip')

def loader_first(a, kind):
    if ENV('LF', '1') == '0': return
    L = a.lines
    ib = max(i for i, l in enumerate(L) if l.strip() == f's_cbranch_scc1 L_{kind}_loader')
    il = L.index(f'L_{kind}_loader:')
    ie = L.index(f'L_{kind}_end:') + 2
    assert L[ie - 1].strip() == 's_endpgm' and L[ib - 1].strip().startswith('s_cmp_ge_u32')
    L[ib - 1] = L[ib - 1].replace('s_cmp_ge_u32', 's_cmp_lt_u32')
    L[ib] = f'  s_cbranch_scc1 L_{kind}_compute'
    a.lines = L[:ib + 1] + L[il:ie] + [f'L_{kind}_compute:'] + L[ib + 1:il] + L[ie:]

def clear_flags(a, part, n=0):
    if not ONE or DS: return
    if part == 0 and 'attn' not in OT: a.emit(f's_load_dwordx2 s[{SC}:{SC+1}], s[0:1], 72')
    a.emit(f's_or_b32 s3, s{S_LAYER}, s{S_WV}')
    a.emit(f's_cbranch_scc1 L_clr_skip{part}')
    if part == 0:
        srd(a, SP, 'ws0', WS_FL, FLS)
        a.emit('s_lshl_b32 s3, s2, 11')
        a.emit('v_lshlrev_b32 v2, 4, v1')
        a.emit(f'buffer_store_dwordx4 v[128:131], v2, s[{SP}:{SP+3}], s3 offen sc1')
        a.emit(f'buffer_store_dwordx4 v[128:131], v2, s[{SP}:{SP+3}], s3 offen offset:1024 sc1')
    else:
        a.emit('v_mov_b32 v3, 1')
        a.emit(f's_and_b32 s{SC+1}, s{SC+1}, 0xffff')
        a.emit(f's_mov_b32 s{SC+2}, 256')
        a.emit(f's_mov_b32 s{SC+3}, 0x00020000')
        a.emit('s_mov_b64 exec, 1')
        a.emit(f's_waitcnt vmcnt({n})')
        a.emit(f'buffer_store_byte v3, off, s[{SC}:{SC+3}], s2 sc1')
        a.emit('s_mov_b64 exec, -1')
    a.label(f'L_clr_skip{part}')

def mf_order(nn, nm, skip=lambda jn, jm: False):
    m = ENV('MFO', 's')
    if m == 'n': o = [(jn, jm) for jn in range(nn) for jm in range(nm)]
    elif m == 's': o = [(jn, jm if not jn & 1 else nm - 1 - jm) for jn in range(nn) for jm in range(nm)]
    elif m == 'm': o = [(jn, jm) for jm in range(nm) for jn in range(nn)]
    elif m == 'z': o = [(jn if not jm & 1 else nn - 1 - jn, jm) for jm in range(nm) for jn in range(nn)]
    elif m == 'd': o = [(i % nn, (i // nn + i % nn) % nm) for i in range(nn * nm)]
    return [x for x in o if not skip(*x)]
```

```python
from common import *

def ktab(a, vt, sh, P1, P2, tb):
    a.emit('v_and_b32 v2, 3, v1')
    a.emit('v_lshlrev_b32 v2, 3, v2')
    a.emit(f'v_bfe_i32 v{vt}, s{tb}, v2, 8')
    a.emit(f's_and_b32 s3, s{S_MT}, 3')
    a.emit(f's_mul_i32 s4, s3, {P2 // 4}')
    a.emit(f'v_add3_u32 v3, v{vt}, v1, s4')
    if P1 & (P2 - 1): a.emit(f'v_subrev_u32 v3, {P1}, v3')
    a.emit(f'v_and_b32 v3, {P2 - 1}, v3')
    if P1:
        MR = int(ENV('MR', '4'))
        if NV: a.emit(f'v_cmp_gt_u32 vcc, {NV}, v1')
        a.emit(f's_mul_i32 s3, s3, {MR // 4}')
        if NV:
            a.emit(f's_and_b32 s4, s{S_NT}, 1')
            a.emit(f'v_cndmask_b32_e64 v{vt+1}, {P1 - NV}, {NV}, vcc')
            a.emit(f'v_cndmask_b32_e64 v2, {P1 - 2 * NV}, {NV}, vcc')
            a.emit(f'v_add3_u32 v{vt}, v{vt}, v1, v2')
            for _ in range(2):
                a.emit(f'v_sub_u32 v2, v{vt}, v{vt+1}')
                a.emit(f'v_min_u32 v{vt}, v{vt}, v2')
            a.emit(f'v_cndmask_b32_e64 v2, {NV}, 0, vcc')
            a.emit(f'v_add_u32 v{vt}, v{vt}, v2')
        else:
            a.emit(f'v_add3_u32 v{vt}, v{vt}, v1, {P1}')
            a.emit(f's_bitcmp1_b32 s{S_NT}, 0')
            a.emit(f's_cselect_b32 s4, {P1}, 0')
            for _ in range(2):
                a.emit(f'v_subrev_u32 v2, {P1}, v{vt}')
                a.emit(f'v_min_u32 v{vt}, v{vt}, v2')
        if MR:
            a.emit(f'v_cmp_gt_u32 vcc, {MR}, v{vt}')
            a.emit(f'v_add_u32 v2, s3, v{vt}')
            a.emit(f'v_subrev_u32 v{vt+1}, {MR}, v2')
            a.emit(f'v_min_u32 v2, v{vt+1}, v2')
            a.emit(f'v_cndmask_b32 v{vt}, v{vt}, v2, vcc')
        a.emit(f'v_cmp_gt_u32 vcc, {P1}, v1')
        a.emit(f'v_lshl_add_u32 v{vt}, v{vt}, 1, s4' if NV else f'v_add_u32 v{vt}, s4, v{vt}')
        a.emit(f'v_add_u32 v3, {2 * P1}, v3')
        a.emit(f'v_cndmask_b32 v3, v3, v{vt}, vcc')
    a.emit(f'v_lshlrev_b32 v{vt}, {sh}, v3')

def ktab_ot(a, vt, sh, tb):
    KS = int(ENV('KS2', '2'))
    a.emit(f's_add_u32 s3, s{S_MT}, s{S_HD}')
    a.emit('s_and_b32 s3, s3, 3')
    for g in range(4):
        o = list(range(17))
        for t in range(KS + g, 14, 4): o[t:t + 3] = [t + 2, t, t + 1]
        assert o[0] == 0 and o[16] == 16
        v = sum(((t - o[t]) & 3) << (2 * t) for t in range(16))
        if g: a.emit(f's_cmp_eq_u32 s3, {g}')
        a.emit(f's_cselect_b32 s4, {v:#x}, s4' if g else f's_mov_b32 s4, {v:#x}')
    P1 = int(ENV('P1', '23')); P2 = 56 - 2 * P1
    a.emit('v_subrev_u32 v2, 3, v1')
    if P1 > 20: a.emit('v_min_u32 v2, 16, v2')
    a.emit('v_lshlrev_b32 v3, 1, v2')
    a.emit(f'v_bfe_i32 v{vt}, s4, v3, 2')
    a.emit(f'v_sub_u32 v{vt}, v1, v{vt}')
    a.emit(f'v_subrev_u32 v{vt}, {7 if P1 > 20 else 6}, v{vt}')
    if EF:
        a.emit(f'v_subrev_u32 v3, 7, v{vt}')
        a.emit(f'v_min_u32 v3, v3, v{vt}')
        a.emit(f'v_cmp_eq_u32 vcc, s{S_HD}, v3')
        a.emit(f's_and_b32 s3, s{S_NT}, 1')
        a.emit(f'v_cmp_lt_i32 s[4:5], 6, v{vt}')
        a.emit(f'v_cndmask_b32_e64 v3, v3, 7, vcc')
        a.emit('s_nop 0')
        a.emit('v_addc_co_u32 v2, vcc, v3, v3, s[4:5]')
    else:
        a.emit(f'v_ashrrev_i32 v3, 1, v{vt}')
        a.emit(f'v_cmp_eq_u32 vcc, s{S_HD}, v3')
        a.emit(f's_and_b32 s3, s{S_NT}, 1')
        a.emit(f'v_or_b32 v2, 14, v{vt}')
        a.emit(f'v_cndmask_b32 v2, v{vt}, v2, vcc')
    a.emit(f'v_cmp_gt_i32 vcc, 0, v{vt}')
    a.emit(f's_lshl2_add_u32 s4, s3, {20 if P1 > 20 else 19}')
    a.emit(f'v_add_u32 v{vt}, s4, v{vt}')
    a.emit('s_lshl4_add_u32 s4, s3, 24')
    a.emit('v_add_u32 v2, s4, v2')
    a.emit(f'v_cndmask_b32 v{vt}, v2, v{vt}, vcc')
    if P1 > 20:
        a.emit(f's_and_b32 s5, s{S_MT}, 3')
        a.emit(f"s_mul_i32 s5, s5, {ENV('RCM', '3')}")
        a.emit(f's_sub_u32 s5, s5, {P1}')
        a.emit('v_add_u32 v3, s5, v1')
        for _ in range(2):
            a.emit(f'v_subrev_u32 v2, {P2}, v3')
            a.emit('v_min_u32 v3, v3, v2')
        a.emit(f'v_cmp_gt_u32 vcc, {P1}, v1')
        a.emit(f's_sub_u32 s5, s3, {2 * P1}')
        a.emit('v_lshl_add_u32 v2, v1, 1, s5')
        a.emit('v_cndmask_b32 v3, v3, v2, vcc')
        a.emit(f's_add_u32 s5, s{S_HD}, {P1 - 20}')
        a.emit('v_ashrrev_i32 v2, 1, v3')
        a.emit('v_add_u32 v2, s5, v2')
        a.emit('v_and_b32 v2, 7, v2')
        a.emit('v_and_b32 v3, 1, v3')
        a.emit('v_cmp_gt_u32 vcc, 21, v1')
        a.emit('v_lshl_add_u32 v3, v3, 3, v2')
        a.emit(f's_lshl1_add_u32 s4, s{S_HD}, s4')
        a.emit(f's_lshl3_add_u32 s3, s3, s{S_HD}')
        a.emit(f'v_cndmask_b32 v3, v3, v{vt}, vcc')
        a.emit('v_writelane_b32 v3, s4, 0')
        a.emit('s_add_u32 s4, s4, 1')
        a.emit('v_writelane_b32 v3, s3, 2')
        a.emit('v_writelane_b32 v3, s4, 1')
        if OH == 2 and sh == 11:
            a.emit('v_cmp_lt_u32 vcc, 23, v3')
            a.emit('v_lshrrev_b32 v2, 1, v3')
            a.emit(f'v_and_b32 v{vt}, 1, v3')
            a.emit(f'v_lshl_add_u32 v2, v{vt}, 4, v2')
            a.emit('v_add_u32 v2, 12, v2')
            a.emit('v_cndmask_b32 v3, v3, v2, vcc')
        a.emit(f'v_lshlrev_b32 v{vt}, {sh}, v3')
        return
    a.emit('v_and_b32 v2, 3, v1')
    a.emit('v_lshlrev_b32 v2, 3, v2')
    a.emit(f'v_bfe_i32 v3, s{tb}, v2, 8')
    a.emit(f's_lshl2_add_u32 s5, s{S_MT}, 12')
    a.emit('v_add3_u32 v3, v3, v1, s5')
    a.emit('v_and_b32 v2, 7, v3')
    a.emit(f'v_cmp_eq_u32 vcc, s{S_HD}, v2')
    a.emit('v_bfe_u32 v2, v3, 3, 1')
    a.emit('v_lshl_add_u32 v2, v2, 2, 19')
    a.emit('v_and_b32 v3, 15, v3')
    a.emit('v_cndmask_b32 v3, v3, v2, vcc')
    a.emit('v_cmp_gt_u32 vcc, 20, v1')
    a.emit(f's_lshl1_add_u32 s4, s{S_HD}, s4')
    a.emit(f's_lshl3_add_u32 s3, s3, s{S_HD}')
    a.emit(f'v_cndmask_b32 v3, v3, v{vt}, vcc')
    a.emit('v_writelane_b32 v3, s4, 0')
    a.emit('s_add_u32 s4, s4, 1')
    a.emit('v_writelane_b32 v3, s3, 2')
    a.emit('v_writelane_b32 v3, s4, 1')
    a.emit(f'v_lshlrev_b32 v{vt}, {sh}, v3')

EVX, EVT, EVB = 24, 30, 27; EBIA = [4, 10, 124, 126]; ERING = [128, 144, 224, 64, 80, 240]
def w2_pre(a):
    P1 = int(ENV('P1', '23'))
    tile_map(a, 2, None, pair=True)
    rot_table(a, S_TB, S_MT, S_HD, 'w2')
    ktab(a, EVT, 11, P1, 56 - 2 * P1, S_TB)
    a.emit(f's_lshl_b32 s8, s{S_MT}, 7')
    a.emit(f's_lshl_b32 s9, s{S_WV}, 5')
    a.emit('s_add_u32 s8, s8, s9')
    a.emit('s_mul_i32 s9, s8, 7168')
    a.emit(f'v_lshl_add_u32 v{EVX}, v1, 4, s9')
    a.emit(f'v_add_u32 v{EVX+1}, {16*7168}, v{EVX}')
    a.emit('v_lshrrev_b32 v2, 4, v1')
    a.emit(f's_lshl_b32 s10, s{S_NT}, 7')
    a.emit(f'v_lshl_add_u32 v{EVB}, v2, 3, s10')

def w2_early(a):
    NG = int(ENV('NG2', '3'))
    for x in range(NG): a.emit(f'v_readlane_b32 s{SR+x}, v{EVT}, {x}')
    srd(a, SB, 'b2', 0, 2048)
    srd(a, SX, 'ws', WS_H, 2048 * 7168)
    for jn in range(4):
        a.emit(f'buffer_load_dwordx2 v[{EBIA[jn]}:{EBIA[jn]+1}], v{EVB}, s[{SB}:{SB+3}], 0 offen offset:{jn*32}')
    for x in range(NG):
        for ks in range(2):
            for jm in range(2):
                r = ERING[x] + (ks * 2 + jm) * 4
                a.emit(f'buffer_load_dwordx4 v[{r}:{r+3}], v{EVX+jm}, s[{SX}:{SX+3}], s{SR+x} offen offset:{ks*1024}')

def gen_gemm64y(a, kind, tsidx, side):
    K = 1024 if kind == 'wo' else 3584
    lda2 = 7168 if OH else K * 2; ldw2 = 2048
    N = K // 64
    P1 = int(ENV('P1', '23')) if kind == 'w2' else 0
    P2 = N - 2 * P1
    B16 = ENV('XB16', '1') == '1'
    NXC = 4 if B16 else 8; CH = NXC * 1024
    G0, GW = (131072, 28672) if kind == 'wo' else (0, 0)
    def slot(t):
        if kind == 'wo' and 'w1' in OT: return 28672 + 8192 * t + (4096 if t >= 12 else 0)
        g = G0 + (t >> 2) * 32768
        if g >= 163840: g = GW + (g - 163840) % (163840 - GW)
        return g + (t & 3) * 8192
    XB = 131072
    HR = int(ENV('HR', '6')) if P1 else 0
    sched = [(t >> 1, t & 1) for t in range(2 * (P1 - HR))] + [(x, u) for u in (0, 1) for x in range(P1 - HR, P1)] + [(x, 1) for x in range(P1, P1 + P2)]
    TU = 2 * P1 - max(HR, 1)
    NPRE = int(ENV('NPREO', '16')) if kind == 'wo' else int(ENV('NPRE', '20'))
    PSTEP = 64 if kind == 'w2' else 1024
    body = f'L_{kind}_body'; end = f'L_{kind}_end'
    VXO, VWB, VWA, VO, VT, VE = 4, 6, 26, 12, 15, 19
    XR = 32; FW = [160, 192]; ACC = [128, 96]; D = 240; BIA = 192
    SPC = NV if P1 else 0
    BIA = [BIA + 2 * jn for jn in range(4)]
    if SPC: VXO, VT, ACC, BIA = EVX, EVT, [32, 96], EBIA
    ot = kind == 'w2' and 'w2' in OT
    if ot: BIA = OBIA; assert P1 >= 20 and not SPC
    acc = lambda jn, jm, u=1: ACC[u] + (jn * 2 + jm) * 4
    fx = lambda r, ks, jm: XR + 16 * r + (ks * 2 + jm) * 4
    fw = lambda s, ks, jn: FW[s] + (ks * 4 + jn) * 4
    a.label(f'L_{kind}_c0')
    a.label(body)
    tile_map(a, 2, end, pair=True)
    rot_table(a, S_TB, S_MT, S_HD, kind)
    a.emit(f's_cmp_ge_u32 s{S_WV}, 4')
    a.emit(f's_cbranch_scc1 L_{kind}_loader')
    if ot:
        a.emit(f's_lshl_b32 s3, s{S_WV}, 12')
        a.emit(f's_add_u32 s3, s3, {OHB}')
        a.emit('v_lshl_add_u32 v2, v1, 4, s3')
        for i in range(12): a.emit(f'ds_read_b128 v[{32+4*i}:{35+4*i}], v2 offset:{(i>>2)*16384+(i&1)*2048+(i&2)*512}')
        ktab_ot(a, VT, 11, S_TB)
        if 'xhit' in DBG: a.emit(f'v_and_b32 v{VT}, 0x1800, v{VT}')
        if ENV('RE', '1') == '1' and not EF:
            a.emit('s_waitcnt lgkmcnt(0)')
            a.emit('s_barrier')
    elif SPC: tile_map(a, 2, None, pair=True)
    else: ktab(a, VT, 12 if OH == 1 else 11, P1, P2, S_TB)
    a.emit('v_and_b32 v3, 15, v1')
    a.emit('v_lshrrev_b32 v2, 4, v1')
    a.emit(f's_lshl_b32 s8, s{S_MT}, 7')
    a.emit(f's_lshl_b32 s9, s{S_WV}, 5')
    a.emit('s_add_u32 s8, s8, s9')
    a.emit(f's_mul_i32 s9, s8, {lda2}')
    if 'xsm' in DBG:
        a.emit('s_and_b32 s9, s8, 0x67f')
        a.emit(f's_mul_i32 s9, s9, {lda2}')
    if not SPC and ENV('TID', '1') != '1':
        a.emit(f'v_lshl_add_u32 v{VXO}, v1, 4, s9')
        a.emit(f'v_add_u32 v{VXO+1}, {16*lda2}, v{VXO}')
    E2 = ot and EF == 2
    if E2: xpitch(a, 7, True)
    iB = len(a.lines)
    a.emit('v_add_u32 v13, s8, v3')
    a.emit(f's_lshl_b32 s10, s{S_NT}, 7')
    a.emit('v_lshl_add_u32 v14, v2, 3, s10')
    a.emit('v_and_b32 v16, 1, v2')
    a.emit('v_lshrrev_b32 v17, 1, v2')
    F2 = ENV('FL', '2') == '2'
    if kind == 'w2' and F2:
        assert 'attn' in OT
        a.emit('v_lshlrev_b32 v4, 3, v3')
        a.emit('v_and_b32 v4, 0x70, v4')
        a.emit('v_lshlrev_b32 v16, 3, v2')
        a.emit('v_xor_b32 v4, v4, v16')
        a.emit('v_lshl_add_u32 v4, v3, 7, v4')
        a.emit(f's_lshl_b32 s3, s{S_WV}, 12')
        a.emit('v_add_u32 v4, s3, v4')
        a.emit('v_lshl_add_u32 v5, v1, 4, s3')
        if not E2: xpitch(a, 7, True)
        a.emit('v_xor_b32 v16, v1, v2')
        a.emit('v_and_b32 v16, 7, v16')
        a.emit('v_lshl_add_u32 v16, v16, 4, s10')
        a.emit('v_lshrrev_b32 v14, 3, v1')
        a.emit('v_add_u32 v14, s8, v14')
        a.emit(f'v_mad_u32_u24 v{VO}, v14, s7, v16')
        FL = False
    elif kind == 'w2':
        a.emit('v_lshlrev_b32 v16, 5, v16')
        a.emit('v_lshl_add_u32 v16, v17, 4, v16')
        if 'attn' in OT:
            a.emit('v_lshlrev_b32 v4, 3, v3')
            a.emit('v_and_b32 v4, 0x70, v4')
            a.emit('v_xor_b32 v4, v4, v16')
            a.emit('v_lshl_add_u32 v4, v3, 7, v4')
            a.emit(f's_lshl_b32 s3, s{S_WV}, 12')
            a.emit('v_add_u32 v4, s3, v4')
            a.emit('v_xor_b32 v5, 64, v4')
        a.emit('v_add_u32 v16, s10, v16')
        if not E2: xpitch(a, 7, True)
        FL = ENV('FL', '2') == '1'
        if FL:
            a.emit('v_and_b32 v14, 8, v3')
            a.emit('v_lshl_add_u32 v16, v14, 3, v16')
            a.emit('v_sub_u32 v14, v13, v14')
            assert ot
        a.emit(f'v_mad_u32_u24 v{VO}, v{14 if FL else 13}, s7, v16')
    else:
        if 'w1' in NS: a.emit('v_lshlrev_b32 v16, 4, v1')
        else:
            a.emit('v_lshl_add_u32 v16, v16, 1, v17')
            a.emit('v_lshlrev_b32 v16, 8, v16')
            a.emit('v_lshl_add_u32 v16, v3, 4, v16')
        a.emit(f's_add_u32 s9, s8, s{S_NT}')
        a.emit('s_lshl_b32 s9, s9, 11')
        a.emit(f'v_add_u32 v{VO}, s9, v16')
        if 'w1' in OT:
            a.emit(f's_lshl_b32 s9, s{S_WV}, 12')
            a.emit(f'v_add_u32 v{VE}, s9, v16')
    a.emit('v_lshl_add_u32 v18, v17, 4, v13')
    a.emit('v_lshlrev_b32 v18, 3, v18')
    a.emit('v_and_b32 v16, 1, v2')
    a.emit('v_lshl_add_u32 v18, v16, 2, v18')
    a.emit(f's_lshl_b32 s10, s{S_NT}, 14')
    a.emit('v_add_u32 v18, s10, v18')
    nr = kind in NS and NSR
    wbase(a, VWB, 17, nr=nr)
    for i in range(1, 4): a.emit(f'v_xor_b32 v{VWB+i}, {32*i}, v{VWB}')
    a.emit('s_mov_b32 s11, 0xffff0000')
    if E2: bl = a.lines[iB:]; del a.lines[iB:]
    if kind == 'wo':
        srd(a, SX, 'ws', WS_H + OHO if OH else WS_O, 4 * MB)
        srd(a, SO, 'ws', WS_X1, 4 * MB)
    else:
        if not SPC:
            if not ot: srd(a, SB, 'b2', 0, 2048)
            for jn in range(0 if ot else 4):
                a.emit(f'buffer_load_dwordx2 v[{BIA[jn]}:{BIA[jn]+1}], v14, s[{SB}:{SB+3}], 0 offen offset:{jn*32}')
            srd(a, SX, ENV('HB', 'ws'), WS_H, 2048 * 7168)
        srd(a, SO, 'out', 0, 4 * MB)
        srd(a, SR, 'ws0', WS_X2, 4 * MB)
        a.emit(f's_cmp_eq_u32 s{S_LAYER}, 0')
        a.emit(f's_cselect_b64 s[{SO}:{SO+1}], s[{SR}:{SR+1}], s[{SO}:{SO+1}]')
        a.emit(f's_lshl_b32 s{SO+2}, s7, 11')
        if E2:
            for x in range(3, 5): a.emit(f'v_readlane_b32 s{SR+(x&3)}, v{VT}, {x}')
    if not E2: srd(a, ST, 'ws', WS_ST if kind == 'wo' else WS_ST2, 16 * 16384)
    TID = ENV('TID', '1') == '1'
    if TID:
        a.emit(f's_mul_i32 s9, s8, {lda2}')
        if OH and P1: a.emit(f's_add_u32 s9, s9, s{S_T}')
        a.emit(f's_add_u32 s{SX}, s{SX}, s9')
        a.emit(f's_addc_u32 s{SX+1}, s{SX+1}, 0x100000')
        a.emit(f's_add_u32 s{SC}, s{SX}, {16 * lda2}')
        a.emit(f's_addc_u32 s{SC+1}, s{SX+1}, 0')
        for r in (SX, SC):
            a.emit(f"s_mov_b32 s{r+2}, {16 * lda2 - (OHO if kind == 'wo' else 0)}")
            a.emit(f's_mov_b32 s{r+3}, 0x00800000')
    if E2:
        RB = int(ENV('RB', '0'))
        a.lines += bl[:RB]
        a.emit('s_waitcnt vmcnt(0) lgkmcnt(0)')
        a.emit('s_barrier')
        iR = len(a.lines)
        a.lines += bl[RB:]
        srd(a, ST, 'ws', WS_ST2, 16 * 16384)
    if kind == 'wo':
        if ENV('CT2', 'l') == 'l': code_touch(a, 'L_w1_c0', 'L_w1_c1', 128, SW)
        elif ENV('CT2') == 'o': code_touch(a, 'L_w2_c0', 'L_w2_c1', 192, SW)
        else: code_touch(a, 'L_w1_c0', 'L_w2_c1', 320, SW)
    DX = int(ENV('DX', '2'))
    CLW = DX == 1 and not P1 and ENV('CLP', 'e') == 'w'
    if CLW:
        for i in range(4): a.emit(f'v_mov_b32 v{128+i}, -1')
    if (P1 and DX) or CLW:
        srd(a, SP, 'ws', WS_XP, 4 * MB)
        a.emit(f's_or_b32 s{SP+1}, s{SP+1}, 0x100000')
        a.emit(f's_mov_b32 s{SP+3}, 0x00800000')
        a.emit(f's_lshl4_add_u32 s4, s{S_MT}, s{S_NT}')
        a.emit(f's_lshl2_add_u32 s4, s4, s{S_WV}')
        if DX == 2:
            srd(a, SB, 'ws0', WS_FL, FLS)
            a.emit(f's_add_u32 s6, s{S_LAYER}, 4')
            a.emit('s_lshl_b32 s6, s6, 10')
            a.emit('s_add_u32 s6, s6, s4')
            a.emit('s_lshl_b32 s6, s6, 6')
            a.emit(f'v_mov_b32 v{VE}, 1')
        a.emit('s_lshl_b32 s4, s4, 12')
        a.emit('s_xor_b32 s5, s4, 16384')
    elif P1:
        a.emit(f's_mul_i32 s3, s{S_WV}, {CH}')
        a.emit(f's_add_u32 s3, s3, {XB}')
        a.emit(f'v_lshl_add_u32 v{VE}, v1, 4, s3')
    if P1 and not ot:
        for i in range(32): a.emit(f'v_mov_b32 v{ACC[0]+i}, 0')
    bases = []
    for t in sorted(range(min(N, 20)), key=slot):
        if not bases or slot(t) + 8191 - bases[-1] > 65535: bases.append(slot(t))
    VSET = [VWB, 20, 26]
    for k in (2, 1, 0):
        for i in range(4):
            if bases[k] or k: a.emit(f'v_add_u32 v{VSET[k]+i}, {bases[k]}, v{VWB+i}')
    xof = lambda t: sched[t][0]
    NX = P1 + P2
    last = lambda x: sched.index((x, 1))
    def xl(x, reg):
        if TID: return [(f'buffer_load_dwordx4 v[{reg+(ks*2+jm)*4}:{reg+(ks*2+jm)*4+3}], off, s[{(SX, SC)[jm]}:{(SX, SC)[jm]+3}], s{SR+(x&3)} offset:{ks*1024}' + (ENV('XLF', ' sc1') if OH and P1 else ''), 'V', ('x', x, ks))
                for ks in range(2) for jm in range(2)]
        return [(f'buffer_load_dwordx4 v[{reg+(ks*2+jm)*4}:{reg+(ks*2+jm)*4+3}], v{VXO+jm}, s[{SX}:{SX+3}], s{SR+(x&3)} offen offset:{ks*1024}', 'V', ('x', x, ks))
                for ks in range(2) for jm in range(2)]
    def reads(t):
        o = []
        k = max(i for i, b in enumerate(bases) if b <= slot(t))
        for ks in range(2):
            for jn in range(4):
                for h in range(2):
                    d = fw(t & 1, ks, jn) + 2 * h
                    o.append((f'ds_read_b64_tr_b16 v[{d}:{d+1}], v{VSET[k]+jn} offset:{slot(t)-bases[k]+ks*4096+h*(2048 if nr else 512)}', 'L', ('w', t, ks)))
        return o
    xreg = {}
    def mf(t):
        o = []
        for ks in range(2):
            for jn, jm in mf_order(4, 2):
                if True:
                    c = acc(jn, jm, sched[t][1]); x = xreg[xof(t)] + (ks * 2 + jm) * 4
                    o.append(f'v_mfma_f32_16x16x32_bf16 v[{c}:{c+3}], v[{fw(t&1,ks,jn)}:{fw(t&1,ks,jn)+3}], v[{x}:{x+3}], ' + ('0' if ot and t == ks == 0 else f'v[{c}:{c+3}]'))
        return o
    U = kind[1].upper()
    NG = int(ENV('NG' + U, '3'))
    ring = [32, 48, 64, 80, 224, 240][:int(ENV('RING' + U, '6' if P1 else '4'))]
    NB = 2 if E2 else int(ENV('NB', '3'))
    if SPC: ring = ERING
    elif ot:
        assert NG == 3
        for x in range(3, 3 if E2 else 3 + NB): a.emit(f'v_readlane_b32 s{SR+(x&3)}, v{VT}, {x}')
    else:
        for x in range(NG): a.emit(f'v_readlane_b32 s{SR+x}, v{VT}, {x}')
    if kind == 'wo' and F2:
        a.emit(f's_cmp_lg_u32 s{S_LAYER}, 0')
        a.emit('s_cbranch_scc1 L_wo_nosw')
    for i in range(0 if kind == 'w2' and 'w1' in NS else 4):
        for h in range(2): a.emit(f'v_permlane16_swap_b32 v{D+4*i+h}, v{D+4*i+2+h}')
    if kind == 'wo' and F2: a.label('L_wo_nosw')
    TF = int(ENV('TF', '-1')); TG = int(ENV('TG', '15'))
    if SF:
        a.emit('v_mov_b32 v13, -1')
        a.emit(f'buffer_store_dword v13, v18, s[{ST}:{ST+3}], 0 offen sc1')
        assert not E2
    import pads
    for x in pads.chain('hg') if kind == 'wo' else []: a.emit(x)
    a.emit('s_waitcnt lgkmcnt(0)' + (f' vmcnt({4 * NG + 4 if EX == 14 else 0})' if SPC and TF < 0 else ''))
    if not (ot and ENV('RE', '1') == '1'): a.emit('s_barrier')
    pre = []
    for x in range(NG):
        xreg[x] = ring[x]; pre += xl(x, ring[x])
    if SPC: pre = [('', k, tg) for _, k, tg in pre] + [('', 'V', 'st')] * (14 - EX)
    if ot: pre = [('', 'L', tg) for _, k, tg in pre] + [('', 'V', 'st')] * (EF == 1)
    if E2:
        xe = xl(3, ring[3]) + xl(4, ring[4])
        XD_ = int(ENV('XED', '8'))
        for i, y in enumerate(xe): a.lines.insert(iR + i * (XD_ + 1), '  ' + y[0])
        pre += [('', k, tg) for _, k, tg in xe]
    pre += reads(0)
    P = lambda x: (x, '', None)
    if kind == 'w2' and not ot: pre.append(P(f's_waitcnt vmcnt({len(pre) - 16})'))
    for jn in range(4):
        if kind == 'w2':
            for h in range(2):
                pre.append(P(f'v_lshlrev_b32 v{216+2*h}, 16, v{BIA[jn]+h}'))
                pre.append(P(f'v_and_b32 v{217+2*h}, s11, v{BIA[jn]+h}'))
        for jm in range(2):
            c = acc(jn, jm); r = D + (jm * 4 + jn) * 2
            for h in range(2):
                pre.append(P(f'v_lshlrev_b32 v{c+2*h}, 16, v{r+h}'))
                pre.append(P(f'v_and_b32 v{c+2*h+1}, s11, v{r+h}'))
                if kind == 'w2': pre.append(P(f'v_pk_add_f32 v[{c+2*h}:{c+2*h+1}], v[{c+2*h}:{c+2*h+1}], v[{216+2*h}:{217+2*h}]'))
    pre.append(('', 'W', [('w', 0, 0), ('x', 0, 0)]))
    if TS:
        b = Asm(); stamp(b, 1); pre += [P(l.strip()) for l in b.lines]
    gp = [[] for _ in range(16 * N + 1)]
    waits = {}
    for t in range(N):
        if t + 1 < N:
            for i, x in enumerate(reads(t + 1)): gp[16 * t + i].append(x)
        for g, tt, ks in ((16 * t + 7, t, 1), (16 * t + 15, t + 1, 0)):
            if tt < N:
                waits[g] = [('w', tt, ks), ('x', xof(tt), ks)]
                gp[g].append(('', 'W', waits[g]))
    def put(g, x, cap=2):
        while len(gp[g]) >= cap and g < 16 * N: g += 1
        gp[g].append(x); return g
    BP = int(ENV('BP', '4'))
    ZS = int(ENV('ZS', '50' if DX else '54')) if P1 else N - 1
    XS = int(ENV('XS', '43' if DX else '41'))
    PS = int(ENV('PS', '0'))
    bars = list(range(BP - 1, min(2 * P1, XS - 1), BP)) + [XS] + ([PS] if PS else []) + ([] if DX == 1 else [ZS]) if P1 else [int(x) for x in ENV('BWO', ('4,13' if WD == 'c' else '3,10') if 'w1' in OT else '3,7,12').split(',')]
    if SPC:
        bars = [TF] + [t for t in bars if t > TF + 1]
        assert TG in bars
        if EX < 14 and TF >= 0: waits[16 * TF + 7].append('st')
    if ot: bars = [int(x) for x in ENV('BW2', ['2,7', '1,7', '3,7'][EF]).split(',')] + bars[2:]
    TG2 = int(ENV('TG2', '11'))
    if ot and EF == 1: waits[16 * bars[0] + 7].append('st')
    if ot and EF: assert TG2 in bars
    for t in bars:
        if t >= 0: gp[16 * t + 7].append(P('s_barrier'))
    G = ACC[0]; GI = G + 16 if B16 else G
    pool = [[r, -1 if i >= NG else 16 * last(i) + 15, N] for i, r in enumerate(ring)]
    if P1:
        for i in range(int(ENV('RINGX', '0'))): pool.append([G + 16 * i, 16 * XS + 7, ZS])
    SP1 = int(ENV('SP1', '6')); SP2 = int(ENV('SP2', '3'))
    g = 0
    for x in range(NG, NX):
        sl = min((p for p in pool if last(x) < p[2]), key=lambda p: p[1])
        xreg[x] = sl[0]
        if SPC and x == SPC: g = max(g, 16 * TG + 7)
        if ot and EF and x == 11: g = max(g, 16 * TG2 + 7)
        if E2 and x < 5:
            assert sl[0] == ring[x]
            sl[1] = 16 * last(x) + 15
            continue
        if ot and x < 3 + NB:
            g = 16 * bars[0] + 7
            gp[g] += xl(x, sl[0]); sl[1] = 16 * last(x) + 15; g += 3
            continue
        g = put(max(g - 2, sl[1] - 2, 0), P(f'v_readlane_b32 s{SR+(x&3)}, v{VT}, {x}')) + 3
        sp = SP1 if len(ring) + (int(ENV('CU2', '2')) if ot else 0) <= x and g < 16 * int(ENV('SPE', str(TU + 1))) else SP2
        sps = [int(c) for c in ENV('SP3', '4')] if P1 and 12 <= x and sp == SP2 else [sp]
        for i, y in enumerate(xl(x, sl[0])): g = put(max(g, sl[1] + 1), y) + sps[i % len(sps)]
        sl[1] = 16 * last(x) + 15
    for i in range(4): put(16 * (N - 1), P(f'v_mov_b32 v{20+i}, 0'))
    if CLW:
        g = max(g, int(16 * float(ENV('CLG', '0'))))
        for i in range(4): g = put(g, (f'buffer_store_dwordx4 v[128:131], off, s[{SP}:{SP+3}], s4 offset:{1024*i} sc1', 'V', 'cl')) + int(ENV('CLD', '2'))
    def xld(i): return f'buffer_load_dwordx4 v[{GI+4*i}:{GI+4*i+3}], off, s[{SP}:{SP+3}], s5 offset:{1024*i} sc1'
    def vmax(d, r):
        return [f'v_max3_u32 v{d}, v{r}, v{r+1}, v{r+2}'] + [f'v_max3_u32 v{d}, v{d}, v{r+j}, v{r+j+1}' for j in range(3, 15, 2)] + [f'v_max_u32 v{d}, v{d}, v{r+15}', f'v_cmp_eq_u32 vcc, -1, v{d}']
    if P1 and DX:
        g = 16 * TU + 2
        for i in range(4):
            for j in range(4 * i, 4 * i + 4): g = put(g, P(f'v_cvt_pk_bf16_f32 v{G+j}, v{G+2*j}, v{G+2*j+1}'))
            put(max(g + 1, 16 * TU + 6 + i * int(ENV('XWS', '0'))), (f'buffer_store_dwordx4 v[{G+4*i}:{G+4*i+3}], off, s[{SP}:{SP+3}], s4 offset:{1024*i} sc1', 'V', 'xw'))
        g = int(16 * float(ENV('RS', '50')))
        if DX == 2:
            g = put(int(16 * float(ENV('FS', '44'))), ('', 'W', ['xw']))
            put(g, (f'buffer_store_dword v{VE}, off, s[{SB}:{SB+3}], s6 sc1', 'V', 'xf'))
            g = 16 * ZS + 8
        for i in range(4): g = put(g, (xld(i), 'V', 'xr')) + int(ENV('RSP', '2'))
        g = put(int(16 * float(ENV('VS', '53.5' if DX == 1 else '54'))), ('', 'W', ['xr']))
        if DX == 1:
            for y in vmax(VE, GI): g = put(g, P(y))
            g = put(g + 1, P(f's_cbranch_vccnz L_{kind}_xrt\nL_{kind}_xok:'))
        for i in range(16):
            g = put(g, P(f'v_lshlrev_b32 v{G+2*i}, 16, v{GI+i}'), 2 if g < 16 * (N - 1) else 3)
            g = put(g, P(f'v_and_b32 v{G+2*i+1}, s11, v{GI+i}'), 2 if g < 16 * (N - 1) else 3)
    elif P1:
        g = 16 * (2 * P1 - 1) + 2
        for i in range(NXC):
            if B16:
                for j in range(4 * i, 4 * i + 4): g = put(g, P(f'v_cvt_pk_bf16_f32 v{G+j}, v{G+2*j}, v{G+2*j+1}'))
            gw = put(max(g + 1, 16 * (2 * P1 - 1) + 8 + 2 * i), (f'ds_write_b128 v{VE}, v[{G+4*i}:{G+4*i+3}] offset:{1024*i}', 'L', 'xw'))
        assert gw < 16 * XS + 7
        waits[16 * XS + 7].append('xw')
        g = 16 * ZS + 8
        for i in range(NXC): g = put(g, (f'ds_read_b128 v[{GI+4*i}:{GI+4*i+3}], v{VE} offset:{1024*i}', 'L', 'xr')) + 1
        g = put(max(g + 6, 16 * (N - 1)), ('', 'W', ['xr']))
        if B16:
            for i in range(16):
                g = put(g, P(f'v_lshlrev_b32 v{G+2*i}, 16, v{GI+i}'), 3)
                g = put(g, P(f'v_and_b32 v{G+2*i+1}, s11, v{GI+i}'), 3)
    XG = int(ENV('XG', '1'))
    if XG:
        isr = lambda y: y[1] == 'L' and y[2][0] == 'w'
        for g in range(16 * N - 1):
            if len(gp[g]) == 2 and gp[g][1][1] == 'V' and isr(gp[g][0]):
                for d in ((1, -1) if XG == 1 else (-1, 1)):
                    if len(gp[g + d]) == 1 and isr(gp[g + d][0]) and (d > 0 or g & 15):
                        gp[g + d].insert(0 if d > 0 else 1, gp[g].pop(0)); break
    lin = list(pre)
    for t in range(N):
        for i, m in enumerate(mf(t)):
            lin.append(P(m)); lin += gp[16 * t + i]
        if TS and t == int(ENV('ST2', '99')):
            b = Asm(); stamp(b, 2); lin += [P(l.strip()) for l in b.lines]
    lin += gp[16 * N]
    nbc = [0]
    def nb2():
        nbc[0] += 1; return 2 < nbc[0] < len(bars)
    iss = {'L': [], 'V': []}; done = {'L': -1, 'V': -1}
    for txt, k, tag in lin:
        if k == 'W':
            o = []
            for c, nm, mx in (('V', 'vmcnt', 63), ('L', 'lgkmcnt', 15)):
                idx = [i for i, x in enumerate(iss[c]) if x in tag]
                if idx and max(idx) > done[c]:
                    n = min(mx, len(iss[c]) - 1 - max(idx)); done[c] = len(iss[c]) - 1 - n
                    o.append(f'{nm}({n})')
            assert all(x in iss['L'] or x in iss['V'] for x in tag), tag
            if o: a.emit('s_waitcnt ' + ' '.join(o))
            continue
        if k: iss[k].append(tag)
        if 'nox2' in DBG and P1 and k == 'V' and tag[0] == 'x' and len(tag) == 3: continue
        if 'nobar2' in DBG and P1 and txt == 's_barrier' and nb2(): continue
        if ('nox' in DBG and k == 'V') or ('nomfma' in DBG and 'mfma' in txt) or not txt: continue
        a.emit(txt)
    if int(ENV('ST2', '99')) >= N: stamp(a, 2)
    a.emit(f's_mov_b32 s3, {16*2048}' if kind == 'wo' else 's_lshl_b32 s3, s7, 4')
    a.emit('s_mov_b32 s10, 0x3f803f80')
    FL = kind == 'w2' and FL; F2 = kind == 'w2' and F2
    if F2:
        a.emit('s_lshl_b32 s4, s7, 3')
        a.emit('s_add_u32 s5, s3, s4')
        for i in range(1, 4): a.emit(f'v_xor_b32 v{5+i}, {32*i}, v4')
        a.emit(f'v_xor_b32 v9, 64, v{VO}')
    elif FL:
        a.emit('s_lshl_b32 s4, s7, 3')
        a.emit('s_add_u32 s5, s3, s4')
        a.emit('s_mov_b32 vcc_lo, 0x00ff00ff')
        a.emit('s_mov_b32 vcc_hi, vcc_lo')
        a.emit('s_nop 0')
    else: a.emit('s_nop 4')
    for jm in range(2):
        for p in range(2):
            d = D + (jm * 2 + p) * 4
            for q in range(2):
                c = acc(2 * p + q, jm); g = acc(2 * p + q, jm, 0)
                if P1:
                    for h in range(2): a.emit(f'v_pk_add_f32 v[{c+2*h}:{c+2*h+1}], v[{c+2*h}:{c+2*h+1}], v[{g+2*h}:{g+2*h+1}]')
                a.emit(f'v_cvt_pk_bf16_f32 v{d+2*q}, v{c}, v{c+1}')
                a.emit(f'v_cvt_pk_bf16_f32 v{d+2*q+1}, v{c+2}, v{c+3}')
            if F2:
                for q in range(2): a.emit(f'ds_write_b64 v{(4, 6, 7, 8)[2*p+q]}, v[{d+2*q}:{d+2*q+1}] offset:{jm*2048}')
                for k in range(2 * p): a.emit(f'ds_read_b128 v[{32+8*jm+4*k}:{35+8*jm+4*k}], v5 offset:{jm*2048+k*1024}')
                continue
            if not (kind == 'wo' and 'w1' in NS):
                a.emit('s_nop 1')
                a.emit(f'v_permlane16_swap_b32 v{d}, v{d+2}')
                a.emit(f'v_permlane16_swap_b32 v{d+1}, v{d+3}')
            if not FL: a.emit(f'buffer_store_dwordx4 v[{d}:{d+3}], v{VO}, s[{SO}:{SO+3}], {"s3" if jm else "0"} offen offset:{p*PSTEP}{stf(kind)}')
            if kind == 'w2' and 'attn' in OT: a.emit(f'ds_write_b128 v{4+p}, v[{d}:{d+3}] offset:{jm*2048}')
            if FL and p:
                for k in ((0, 1), (1, 0))[jm]:
                    t = 32 + 8 * jm + 4 * k
                    if k == jm: a.emit('s_nop 0')
                    else: a.emit('s_not_b64 vcc, vcc')
                    for i in range(4): a.emit(f'v_cndmask_b32_dpp v{t+i}, v{d-4*k+i}, v{d-4+4*k+i}, vcc row_ror:8 row_mask:0xf bank_mask:0xf')
                    a.emit(f'buffer_store_dwordx4 v[{t}:{t+3}], v{VO}, s[{SO}:{SO+3}], {("0", "s4", "s3", "s5")[2*jm+k]} offen{stf(kind)}')
            if kind == 'wo' and 'w1' in OT: a.emit(f'ds_write_b128 v{VE}, v[{d}:{d+3}] offset:{jm*2048+p*1024}')
    if F2:
        for k in range(4):
            a.emit(f's_waitcnt lgkmcnt({(7, 6, 1, 0)[k]})')
            a.emit(f'buffer_store_dwordx4 v[{32+4*k}:{35+4*k}], v{(VO, 9)[k&1]}, s[{SO}:{SO+3}], {("0", "s4", "s3", "s5")[k]} offen{stf(kind)}')
    if SKL and kind == 'w2' and not TS:
        last_check(a, kind)
        if TE: a.lines[-1] = a.lines[-1].replace('L_w2_end', 'L_fin')
    for jm in range(2):
        for i in range(8):
            d = D + jm * 8 + i
            a.emit(f'v_dot2_f32_bf16 v{20+jm}, v{d}, s10, v{20+jm}')
            a.emit(f'v_dot2_f32_bf16 v{22+jm}, v{d}, v{d}, v{22+jm}')
    a.emit('s_nop 2')
    a.emit('v_permlane32_swap_b32 v20, v21')
    a.emit('v_permlane32_swap_b32 v22, v23')
    a.emit('v_add_f32 v20, v20, v21')
    a.emit('v_add_f32 v22, v22, v23')
    a.emit('s_nop 1')
    a.emit('v_permlane16_swap_b32 v20, v22')
    a.emit('v_add_f32 v20, v20, v22')
    a.emit(f'buffer_store_dword v20, v18, s[{ST}:{ST+3}], 0 offen{stf(kind)}')
    compute_end(a, kind)
    if P1 and DX == 1:
        a.label(f'L_{kind}_xrt')
        a.emit('s_mov_b32 s6, 0x40000')
        a.label(f'L_{kind}_xrl')
        for i in range(4): a.emit(xld(i))
        a.emit('s_sub_u32 s6, s6, 1')
        a.emit('s_waitcnt vmcnt(0)')
        a.emit(f's_cbranch_scc1 L_{kind}_xok')
        for y in vmax(VE, GI): a.emit(y)
        a.emit(f's_cbranch_vccnz L_{kind}_xrl')
        a.emit(f's_branch L_{kind}_xok')
    a.label(f'L_{kind}_loader')
    VT = 16
    if ENV('LPRIO'): a.emit(f"s_setprio {ENV('LPRIO')}")
    if kind == 'wo':
        if LSTK == 'wo': lstamp(a, 0)
        import sides
        dep_pre(a, kind, 0)
        a.emit(f's_cmp_lg_u32 s{S_LAYER}, 0')
        a.emit(f's_cbranch_scc1 L_{kind}_nofirst')
        sides.qkv(a, 0, 'finish', 1)
        a.label(f'L_{kind}_nofirst')
    L = Loader(a, kind, K, lda2, ldw2, [0], 128, 2, 8192, xblk=True)
    L.panels_of = lambda t: [0] if sched[t][1] else [f's{S_XD}']
    if ot:
        ktab_ot(a, VT, 17, S_TB)
        if 'whit' in DBG: a.emit(f'v_and_b32 v{VT}, 0x60000, v{VT}')
    else: ktab(a, VT, 17, P1, P2, S_TB)
    a.emit(f's_add_u32 s9, s{S_WV}, s{S_MT}')
    a.emit('s_and_b32 s9, s9, 3')
    a.emit(f's_lshl_b32 s{S_WD}, s9, 11')
    a.emit('v_and_b32 v10, 7, v1')
    if 'wsm' in DBG:
        a.emit(f's_and_b32 s11, s{S_NT}, 1')
        wvoff(a, L.VWD, 9, 11, ldw2)
    elif 'noslow2' in DBG:
        a.emit(f's_bitcmp1_b32 0x0c0c, s{S_NT}')
        a.emit('s_cselect_b32 s11, 2, 0')
        a.emit(f's_add_u32 s11, s11, s{S_NT}')
        wvoff(a, L.VWD, 9, 11, ldw2)
    else: wvoff(a, L.VWD, 9, S_NT, ldw2, kind in NS)
    if kind == 'wo': srd(a, SW, 'wo', 0, 2 * MB)
    else:
        srd(a, SW, 'w2', 0, 3584 * 2048)
        a.emit(f's_bitcmp1_b32 s{S_NT}, 0')
        a.emit(f's_mov_b32 s{S_XD}, 128')
        a.emit(f's_cselect_b32 s{S_XD}, -128, s{S_XD}')
    NPF = int(ENV('NPF' + kind[1].upper(), '10'))
    assert NPRE - NPF <= 18
    seq = []
    def em(o):
        for x in o:
            if ('nodma' in DBG or ('nodma2' in DBG and len(seq) >= 40)) and x.endswith(' lds'): continue
            a.emit(x)
    def after(t): return len(seq) - 1 - max(i for i, x in enumerate(seq) if x == t)
    NPK = int(ENV('NPK', '0')) if P1 else 0
    PK0 = int(ENV('PK0', '20')); PKA = int(ENV('PKA', '0'))
    PKD = int(ENV('PKD', '1'))
    pks = [t for t in range(PK0, N) if ((t - PK0) >> 1) % PKD == 0][:NPK]
    pkr = lambda t: 256 - 8 * NPK + 8 * pks.index(t)
    assert 256 - 8 * NPK >= 48
    if NPK:
        a.emit(f'v_lshl_add_u32 v20, v1, 4, s{S_WD}')
        a.emit('v_add_u32 v21, 0x10000, v20')
        a.emit('v_add_u32 v22, 0x20000, v20')
    lastk = [None]
    def kw(t):
        x = xof(t)
        if lastk[0] != x: a.emit(f'v_readlane_b32 s{S_KW}, v{VT}, {x}')
        lastk[0] = x
    def pk(t):
        kw(t)
        a.emit(f's_add_u32 s4, s{S_KW}, {L.panels_of(t)[0]}')
        for i in range(2): a.emit(f'buffer_load_dwordx4 v[{pkr(t)+4*i}:{pkr(t)+4*i+3}], v{L.VWD+i}, s[{SW}:{SW+3}], s4 offen')
        seq.extend([('P', t)] * 2)
    vmdone = [-1]
    def iw(t):
        if t in pks:
            i = max(i for i, x in enumerate(seq) if x == ('P', t))
            if i > vmdone[0]:
                a.emit(f's_waitcnt vmcnt({min(63, len(seq) - 1 - i)})'); vmdone[0] = i
            for i in range(0 if 'nopw' in DBG else 2): a.emit(f'ds_write_b128 v{20+(slot(t)>>16)}, v[{pkr(t)+4*i}:{pkr(t)+4*i+3}] offset:{(slot(t)&65535)+1024*i}')
            return
        kw(t)
        em(L.issue_w(t, S_WD, slot(t)))
        seq.extend([t] * 2)
    if kind == LSTK == 'wo': lstamp(a, 1)
    CW = [int(x) for x in ENV('CW', '0').split(',')] if P1 else []
    cwk = list(range(NPRE // 2, P1)) + list(range(2 * P1, N)); cwn = [0]
    if sum(CW):
        srd(a, SR, 'w2', 0, 3584 * 2048)
        a.emit(f's_and_b32 s3, s{S_WV}, 3')
        a.emit(f's_lshl2_add_u32 s3, s{S_CU}, s3')
        a.emit('s_lshl_b32 s4, s3, 6')
        a.emit('s_and_b32 s4, s4, 64')
        a.emit('s_lshr_b32 s3, s3, 1')
        a.emit('s_lshl_b32 s3, s3, 11')
        a.emit('s_add_u32 s3, s3, s4')
        a.emit(f's_sub_u32 s4, 384, s{SW}')
        a.emit('s_and_b32 s4, s4, 0x380')
        a.emit(f's_add_u32 s{S_Q}, s3, s4')
        a.emit(f's_bitcmp1_b32 s{S_NT}, 0')
        a.emit(f's_cselect_b32 s3, {P1 << 17}, 0')
        a.emit(f's_add_u32 s{S_T}, s{S_Q}, s3')
        a.emit('s_lshr_b32 s4, s4, 7')
        a.emit(f's_xor_b32 s4, s4, s{S_NT}')
        a.emit('s_bitcmp1_b32 s4, 0')
        a.emit(f's_cselect_b32 s{SR+2}, 0, s{SR+2}')
    def cw(j):
        for k in cwk[cwn[0]:cwn[0] + (CW[j] if j < len(CW) else 0)]:
            a.emit(f's_add_u32 s3, s{S_T if k < P1 else S_Q}, {k << 17}')
            for i in range(2): a.emit(f's_buffer_load_dword s84, s[{SW if k < P1 else SR}:{(SW if k < P1 else SR)+3}], s3 offset:{1024*i}')
            cwn[0] += 1
    def clr(w):
        if DX != 1 or P1 or w != ENV('CLP', 'e'): return
        srd(a, SP, 'ws', WS_XP, 4 * MB)
        a.emit(f's_and_b32 s5, s{S_WV}, 3')
        a.emit(f's_lshl4_add_u32 s6, s{S_MT}, s{S_NT}')
        a.emit('s_lshl2_add_u32 s6, s6, s5')
        a.emit('s_lshl_b32 s6, s6, 12')
        a.emit('s_setprio 3')
        a.emit('v_lshlrev_b32 v3, 4, v1')
        for i in range(4): a.emit(f'v_mov_b32 v{24+i}, -1')
        for i in range(4): a.emit(f'buffer_store_dwordx4 v[24:27], v3, s[{SP}:{SP+3}], s6 offen offset:{1024*i} sc1')
        a.emit('s_setprio 0')
        seq.extend(['C'] * 4)
    clr('a')
    for t in range(NPRE - NPF): iw(t)
    clr('b')
    PTH = ENV('PTH', '')
    for t in pks[:NPK - PKA]:
        pk(t)
        if PTH: a.emit(f's_waitcnt vmcnt({PTH})')
    cw(0)
    if kind == 'wo': dep_pre(a, kind, 1, len(seq))
    N2 = NPRE - NPF; pref = None
    if SPC:
        N2 = max(N2, int(ENV('N2', '0')), bars[1] + 2); NPRE = int(ENV('N3', '20'))
        assert NPRE <= TF + 21
        def pref():
            a.emit('s_mov_b32 s5, s3')
            if TF >= 0:
                a.emit(f's_waitcnt vmcnt({after(TF + 1)})')
                a.emit('s_barrier')
            for t in range(len(seq) // 2, N2): iw(t)
            a.emit('s_mov_b32 s3, s5')
            a.emit(f's_waitcnt vmcnt({after(bars[1] + 1)})')
    def postf():
        for t in range(N2, NPRE):
            if ot and slot(t) == OHB:
                a.emit(f's_waitcnt vmcnt({after(bars[0] + 1)})')
                a.emit('s_barrier')
            iw(t)
        for t in pks[NPK - PKA:]: pk(t)
    if ot and EF:
        NE = int(ENV('NE', '14')); NH = int(ENV('NH', str(NE))); NPRE = int(ENV('NGB', '20' if E2 else str(NH)))
        assert slot(NH - 1) < OHB
        dep_ef(a, lambda: [iw(t) for t in range(N2, NE)], lambda: E2 or a.emit(f's_waitcnt vmcnt({after(bars[0] + 1)})'),
               lambda: [iw(t) for t in range(NE, NH)] + [a.emit(f's_waitcnt vmcnt({after(bars[0 if E2 else 1] + 1)}) lgkmcnt(0)')])
        a.emit(f's_mov_b32 s{S_CNT}, 0x100000')
        for t in range(NH, NPRE): iw(t)
    else: dep_wait(a, kind, skip_first=kind == 'wo', preg=lambda: a.emit(f's_waitcnt vmcnt({min(after(bars[2 if SPC else 1 if ot else 0] + 1), 63)}) lgkmcnt(0)'),
             postf=postf, pref=pref, defer=bool(SPC))
    nxt = NPRE
    reg = bars[:bars.index(XS)] if P1 and not DX else bars
    clr('g')
    for j, t in enumerate(reg):
        if (SPC or ot) and j < 1 and not E2: continue
        lim = min(N, (reg[j - 1] if j else -1) + 21)
        PACE = [int(c) for c in ENV('PACE', '')] if P1 else []
        if j < len(PACE): lim = min(lim, nxt + PACE[j])
        PP = int(ENV('PP', '2'))
        pp = min(lim - 1, nxt + PP) if (SPC and t == TG) or (E2 and t == TG2) else -1
        pe = min(lim - 1, nxt + int(ENV('PE', '0'))) if ot and EF == 1 and t == TG2 else -1
        while nxt < lim:
            if nxt == pp: dep_late(a, kind, 0); seq.append('F')
            if nxt == pe:
                ef_poll(a, 'L_w2_pl', 2, True)
                lstamp(a, 2, True)
            iw(nxt); nxt += 1
            if nxt - 1 in pks: a.emit('s_waitcnt lgkmcnt(0)')
            elif nxt < lim: a.emit(f"s_waitcnt vmcnt({ENV('LTHR', '4')})")
        cw(j + 1)
        clr(str(j))
        need = [min(N - 1, bars[j + 1] + 1)] if j + 1 < len(bars) else []
        assert all(t < nxt for t in need)
        need = [max(x for x in range(t + 1) if x not in pks) for t in need]
        if P1 and not DX and j == len(reg) - 1:
            srd(a, SP, 'ws', WS_XP, 8 * MB)
            srd(a, SC, 'ws0', WS_FL, FLS)
            a.emit(f's_and_b32 s5, s{S_WV}, 3')
            a.emit(f's_lshl4_add_u32 s6, s{S_MT}, s{S_NT}')
            a.emit('s_lshl2_add_u32 s6, s6, s5')
            a.emit(f's_mul_i32 s8, s6, {CH}')
            a.emit('s_add_u32 s9, s8, 4096')
            a.emit(f's_add_u32 s7, s{S_LAYER}, 4')
            a.emit('s_lshl_b32 s7, s7, 10')
            a.emit('s_add_u32 s6, s6, s7')
            a.emit('s_lshl_b32 s6, s6, 6')
            a.emit('s_xor_b32 s7, s6, 256')
            a.emit(f's_mul_i32 s5, s5, {CH}')
            a.emit(f's_add_u32 s5, s5, {XB}')
            a.emit('v_lshlrev_b32 v3, 4, v1')
            a.emit('v_add_u32 v2, s5, v3')
            a.emit('v_mov_b32 v4, 1')
            a.emit(f's_mov_b32 s{S_CNT}, 0x100000')
        if pp >= 0: dep_late(a, kind, 1, after('F'))
        if P1 and DX == 2 and t == XS:
            srd(a, SC, 'ws0', WS_FL, FLS)
            a.emit(f's_lshl4_add_u32 s6, s{S_MT}, s{S_NT}')
            a.emit('s_xor_b32 s6, s6, 1')
            a.emit(f's_add_u32 s7, s{S_LAYER}, 4')
            a.emit('s_lshl_b32 s7, s7, 8')
            a.emit('s_add_u32 s6, s6, s7')
            a.emit(f's_lshl_b32 s{S_Q if ZD else 6}, s6, 8')
            a.emit('v_and_b32 v2, 3, v1')
            a.emit(f'v_lshlrev_b32 v{30 if ZD else 2}, 6, v2')
            a.emit(f's_mov_b32 s{S_CNT}, 0x100000')
            if ZD: need = []; assert nxt == N and (ZD == 'a' or XS >= 44)
        if P1 and DX == 2 and t == ZS:
            if ZD:
                if ENV('ZDP'): a.emit(f"s_setprio {ENV('ZDP')}")
                a.emit(f's_cmp_eq_u32 s{S_LAYER}, 0')
                a.emit(f's_cbranch_scc1 L_{kind}_zskip')
            xpoll(a, f'L_{kind}_x', SC, S_Q if ZD else 6, 30 if ZD else 2, 5)
        if kind == 'wo' and WD in ('b', 'c') and j == len(reg) - 1: assert reg[j - 1] >= 2; break
        a.emit(f's_waitcnt vmcnt({min(63, min(after(t) for t in need)) if need else 0})')
        if not ('nobar2' in DBG and P1 and 1 < j < len(bars) - 1): a.emit('s_barrier')
    if P1 and ZD: a.label(f'L_{kind}_zskip')
    assert nxt == N and (ENV('LATE_W1', '2') == '2' or (kind == 'w2' or bars[-1] >= 9) and 'w1' in OT) and ENV('LATE_ATTN', '2') == '2'
    clr('e')
    if not P1 and WD not in ('b', 'c'): a.emit('s_waitcnt vmcnt(0)')
    if P1 and not DX:
        XL = ENV('LST') == 'x'
        a.emit('s_setprio 3')
        a.emit('s_waitcnt vmcnt(0) lgkmcnt(0)')
        a.emit('s_barrier')
        for i in range(NXC): a.emit(f'ds_read_b128 v[{32+4*i}:{35+4*i}], v2 offset:{1024*i}')
        for i in range(NXC):
            a.emit(f's_waitcnt lgkmcnt({NXC-1-i})')
            if 'noxs' not in DBG: a.emit(f'buffer_store_dwordx4 v[{32+4*i}:{35+4*i}], v3, s[{SP}:{SP+3}], s{8+(i>>2)} offen offset:{1024*(i&3)} sc1')
        if XL: lstamp(a, 0)
        a.emit(f's_xor_b32 s8, s8, {4*CH}')
        a.emit(f's_xor_b32 s9, s9, {4*CH}')
        a.emit('s_mov_b64 exec, 1')
        a.emit('s_waitcnt vmcnt(0)')
        a.emit(f'buffer_store_dword v4, off, s[{SC}:{SC+3}], s6 sc1')
        if XL: lstamp(a, 1)
        if PS: a.emit('s_barrier')
        if 'nopoll' in DBG: a.emit(f's_branch L_{kind}_xgo')
        a.label(f'L_{kind}_xpoll')
        a.emit(f'buffer_load_dword v5, off, s[{SC}:{SC+3}], s7 sc1')
        a.emit(f's_sub_u32 s{S_CNT}, s{S_CNT}, 1')
        a.emit(f's_cbranch_scc1 L_{kind}_xgo')
        a.emit('s_waitcnt vmcnt(0)')
        a.emit('v_cmp_ne_u32 vcc, 1, v5')
        a.emit(f's_cbranch_vccnz L_{kind}_xpoll')
        a.label(f'L_{kind}_xgo')
        a.emit('s_mov_b64 exec, -1')
        a.emit('s_mov_b32 m0, s5')
        if XL: lstamp(a, 2)
        for i in range(NXC):
            if i == 4: a.emit('s_add_u32 m0, s5, 4096')
            if not i & 3: a.emit('s_nop 0')
            if 'noxl' not in DBG: a.emit(f'buffer_load_dwordx4 v3, s[{SP}:{SP+3}], s{8+(i>>2)} offen offset:{1024*(i&3)} lds')
        a.emit('s_waitcnt vmcnt(0)')
        if XL: lstamp(a, 3)
        a.emit('s_setprio 0')
        a.emit('s_barrier')
    loader_end(a, kind)
    if OH and P1:
        a.label('L_w2_wb')
        a.emit('buffer_wbl2 sc1')
        a.emit('s_waitcnt vmcnt(0)')
        a.emit('s_branch L_w2_wbd')
    a.label(end)
    a.emit('s_endpgm')
    loader_first(a, kind)
    if SPC:
        i = a.lines.index(f'  s_cbranch_scc1 L_{kind}_compute')
        del a.lines[i - 1:i + 1]
    a.label(f'L_{kind}_c1')
    return 163840
```

```python
from common import *

T4 = ENV('T4', '1') == '1'
OBAR = ENV('OBAR', '0') == '1'
def big_loop(a, tag, N, S, STAGE, naddr, VB, VA, reads, mf, variants=None, select=None, post=None, ot=None, mid=(), halo=None, hooks=None):
    def addr():
        o = [f'v_add_u32_e64 v{VA+i}, s{S_SLOT}, v{VB+i}' for i in range(naddr)]
        o += [f's_add_u32 s{S_SLOT}, s{S_SLOT}, {STAGE}', f's_cmp_eq_u32 s{S_SLOT}, {S*STAGE}', f's_cselect_b32 s{S_SLOT}, 0, s{S_SLOT}']
        return o
    a.emit(f's_mov_b32 s{S_SLOT}, 0')
    for x in addr(): a.emit(x)
    if halo:
        if hooks: own_pos(a, S_CNT)
        else: a.emit(f's_mov_b32 s{S_CNT}, {N}')
        if hooks: a.emit(f's_mul_i32 s{S_T}, s{S_LAYER}, {len(hooks)}')
        a.emit(f's_cmp_eq_u32 s{S_LAYER}, 0')
        a.emit(f's_cbranch_scc1 L_{tag}_nog')
    a.emit(f's_mov_b32 s{S_CNT}, {N - 1 if ot else N}')
    if ot:
        rd = (lambda s, ks: reads(s, ks, False)) if halo else reads
        for x in rd(0, 0): a.emit(x)
        a.emit('s_waitcnt lgkmcnt(0)')
        interleave(a, ot(0), rd(1, 1) + addr(), lead=1, per=1)
        a.emit('s_waitcnt lgkmcnt(0)')
        for x in ot(1): a.emit(x)
    if halo:
        a.emit('s_barrier')
        for x in halo[0]: a.emit(x)
        a.label(f'L_{tag}_nog')
    else:
        import pads
        for x in pads.chain('hv'): a.emit(x)
        gbar(a, tag)
    a.lines += mid
    if halo: a.emit(f's_cmp_eq_u32 s{S_LAYER}, 0')
    a.emit('s_barrier')
    stamp(a, 1)
    if halo:
        a.emit(f's_cbranch_scc1 L_{tag}_first')
        for x in halo[1] + reads(0, 0): a.emit(x)
        a.emit('s_waitcnt lgkmcnt(15)')
        for x in halo[2]: a.emit(x)
        a.emit('s_waitcnt lgkmcnt(0)')
        a.emit(f's_branch L_{tag}_loop')
        a.label(f'L_{tag}_first')
        if not DS: a.emit(f's_load_dwordx2 s[{SC}:{SC+1}], s[0:1], 72')
    for x in reads(0, 0): a.emit(x)
    a.emit('s_waitcnt lgkmcnt(0)')
    def loop(nm, m):
        la = int(ENV('LA_' + tag.upper(), '4'))
        w = a.lines.pop()
        assert w.split()[0] in ('s_waitcnt', 's_cbranch_scc1', 's_branch')
        a('.p2align 5')
        for _ in range(la - 1): a.emit('s_nop 0')
        a.lines.append(w)
        a.label(f'L_{tag}_loop{nm}')
        ad = addr()
        ad[-1] += f'\n  s_sub_u32 s{S_CNT}, s{S_CNT}, 1'
        interleave(a, m(0), reads(1, 1) + ad, lead=1, per=1)
        a.emit('s_waitcnt lgkmcnt(0)')
        a.emit('s_barrier')
        interleave(a, m(1), reads(0, 0) + [f's_cmp_lg_u32 s{S_CNT}, 0\n  s_nop 0'], lead=1, per=1)
        a.emit('s_waitcnt lgkmcnt(0)')
        a.emit(f's_cbranch_scc1 L_{tag}_loop{nm}')
    if variants:
        select()
        vs = list(variants.items())
        for i, (nm, m) in enumerate(vs):
            loop(nm, m)
            if i + 1 < len(vs): a.emit(f's_branch L_{tag}_post')
        a.label(f'L_{tag}_post')
        post()
        a.emit(f's_branch L_{tag}_exit')
    if hooks and PO0 == 0:
        a.emit(f's_cmp_eq_u32 s{S_CNT}, 0')
        a.emit(f's_cbranch_scc1 L_{tag}_lend')
    loop('', mf)
    a.label(f'L_{tag}_lend')
    if hooks:
        a.emit(f's_add_u32 s{S_T}, s{S_T}, 1')
        a.emit(f's_cmp_gt_u32 s{S_T}, {len(hooks)}')
        a.emit(f's_cbranch_scc1 L_{tag}_exit')
        for i, (t, code) in enumerate(hooks):
            if i + 1 < len(hooks):
                a.emit(f's_cmp_lg_u32 s{S_T}, {i + 1}')
                a.emit(f's_cbranch_scc1 L_{tag}_hook{i}')
            t2 = hooks[i + 1][0] if i + 1 < len(hooks) else N
            if t < 0 <= t2:
                own_pos(a, S_CNT)
                a.emit(f's_sub_u32 s{S_CNT}, {t2 + t + 1}, s{S_CNT}')
                assert t2 + t + 1 > PO0 + POM
            else: a.emit(f's_mov_b32 s{S_CNT}, {abs(t2 - t)}')
            for x in code: a.emit(x)
            a.emit(f's_branch L_{tag}_loop')
            if i + 1 < len(hooks): a.label(f'L_{tag}_hook{i}')
    a.label(f'L_{tag}_exit')
    stamp(a, 2)

def stats_loads(a, vd, halo):
    a.emit(f's_and_b32 s3, s{S_WV}, 3')
    a.emit(f's_lshl_b32 s4, s{S_MT}, 7')
    a.emit('s_lshl_b32 s5, s3, 6')
    a.emit('s_add_u32 s5, s5, s4')
    a.emit('v_add_u32 v2, s5, v1')
    a.emit('s_sub_u32 s4, s4, 16')
    a.emit('v_and_b32 v3, 15, v1')
    a.emit('v_add_u32 v3, s4, v3')
    a.emit('v_max_i32 v3, 0, v3')
    a.emit('s_cmp_ge_u32 s3, 2')
    a.emit('s_cselect_b64 vcc, -1, 0')
    a.emit('v_cndmask_b32 v2, v2, v3, vcc')
    a.emit('v_lshlrev_b32 v2, 3, v2')
    a.emit('s_mov_b32 s3, 0')
    for j in range(16):
        a.emit(f'buffer_load_dwordx2 v[{vd+2*j}:{vd+2*j+1}], v2, s[{ST}:{ST+3}], s3 offen')
        if j < 15: a.emit('s_add_u32 s3, s3, 16384')
    return 16

def stats_finish(a, vs):
    a.emit(f'v_mul_f32 v{vs}, 0x3a800000, v{vs}')
    a.emit(f'v_mul_f32 v{vs+1}, 0x3a800000, v{vs+1}')
    a.emit(f'v_fma_f32 v{vs+1}, -v{vs}, v{vs}, v{vs+1}')
    a.emit(f'v_max_f32 v{vs+1}, 0, v{vs+1}')
    a.emit(f'v_add_f32 v{vs+1}, 0x3727c5ac, v{vs+1}')
    a.emit(f'v_rsq_f32 v{vs+1}, v{vs+1}')
    a.emit('s_nop 0')

def stats_reduce_store(a, vd, LST):
    for j in range(1, 8):
        a.emit(f'v_add_f32 v{vd}, v{vd}, v{vd+2*j}')
        a.emit(f'v_add_f32 v{vd+1}, v{vd+1}, v{vd+2*j+1}')
        a.emit(f'v_add_f32 v{vd+16}, v{vd+16}, v{vd+16+2*j}')
        a.emit(f'v_add_f32 v{vd+17}, v{vd+17}, v{vd+17+2*j}')
    a.emit(f'v_add_f32 v{vd}, v{vd}, v{vd+16}')
    a.emit(f'v_add_f32 v{vd+1}, v{vd+1}, v{vd+17}')
    stats_finish(a, vd)
    a.emit(f's_and_b32 s3, s{S_WV}, 3')
    a.emit('s_lshl_b32 s5, s3, 6')
    a.emit('s_add_u32 s5, s5, 16')
    a.emit('v_add_u32 v2, s5, v1')
    a.emit('v_and_b32 v3, 15, v1')
    a.emit('s_cmp_ge_u32 s3, 2')
    a.emit('s_cselect_b64 vcc, -1, 0')
    a.emit('v_cndmask_b32 v2, v2, v3, vcc')
    a.emit('v_lshlrev_b32 v2, 2, v2')
    a.emit(f'v_add_u32 v2, {LST}, v2')
    a.emit(f'ds_write2_b32 v2, v{vd}, v{vd+1} offset0:0 offset1:160')

VST, VSH, VCS, VBI = 18, 19, 22, 23
def stats4_setup(a, halo):
    a.emit(f's_and_b32 s3, s{S_WV}, 3')
    a.emit(f's_lshl2_add_u32 s4, s{S_MT}, s3')
    a.emit('s_lshl_b32 s4, s4, 8')
    a.emit('v_lshrrev_b32 v2, 4, v1')
    a.emit('v_and_b32 v3, 15, v1')
    a.emit('v_lshl_add_u32 v3, v3, 4, s4')
    a.emit(f'v_lshl_add_u32 v{VST}, v2, 14, v3')
    if halo:
        a.emit(f's_lshl_b32 s4, s{S_MT}, 5')
        a.emit('s_add_u32 s4, s4, s3')
        a.emit('s_sub_u32 s4, s4, 4')
        a.emit('s_max_i32 s4, s4, 0')
        a.emit('s_lshl_b32 s4, s4, 5')
        a.emit('v_lshrrev_b32 v2, 2, v1')
        a.emit('v_and_b32 v3, 3, v1')
        a.emit('v_lshl_add_u32 v3, v3, 3, s4')
        a.emit(f'v_lshl_add_u32 v{VSH}, v2, 14, v3')

def quad_loads(vd, vo, sd):
    o = []
    for j in range(4):
        if j: o.append(f's_mov_b32 s3, {j << 16}')
        o.append(f'buffer_load_dwordx4 v[{vd+4*j}:{vd+4*j+3}], v{vo}, s[{sd}:{sd+3}], {"s3" if j else 0} offen')
    return o

def stats4_loads(vd, halo):
    return quad_loads(vd, VST, ST) + ([f'buffer_load_dwordx2 v[{vd+16}:{vd+17}], v{VSH}, s[{ST}:{ST+3}], 0 offen'] if halo else [])

def quad_sum(a, vd):
    pk = lambda d, s: a.emit(f'v_pk_add_f32 v[{d}:{d+1}], v[{d}:{d+1}], v[{s}:{s+1}]')
    pk(vd, vd + 4); pk(vd + 2, vd + 6); pk(vd + 8, vd + 12); pk(vd + 10, vd + 14); pk(vd, vd + 8); pk(vd + 2, vd + 10)
    a.emit('s_nop 1')
    a.emit(f'v_permlane32_swap_b32 v{vd}, v{vd+2}')
    a.emit(f'v_permlane32_swap_b32 v{vd+1}, v{vd+3}')
    pk(vd, vd + 2)

def nan_chk(a, lab, halo):
    def chk():
        a.emit('v_cmp_u_f32 vcc, v32, v33')
        if halo:
            a.emit('v_cmp_u_f32 s[4:5], v48, v49')
            a.emit('s_or_b64 s[4:5], vcc, s[4:5]')
            a.emit(f's_cbranch_scc0 {lab}ok')
        else: a.emit(f's_cbranch_vccz {lab}ok')
        a.emit(f's_sub_u32 s{S_CNT}, s{S_CNT}, 1')
        a.emit(f's_cbranch_scc1 {lab}ok')
        for x in stats4_loads(32, halo): a.emit(x + (' sc1' if x.startswith('buf') else ''))
        a.emit('s_waitcnt vmcnt(0)')
        a.emit(f's_branch {lab}chk')
        a.label(f'{lab}ok')
    a.emit(f's_mov_b32 s{S_CNT}, 0x4000')
    a.label(f'{lab}chk')
    return chk

def stats4_store(a, vd, LST, halo, chk=None):
    quad_sum(a, vd)
    if chk: chk()
    def allsum(r, op):
        a.emit(f'v_mov_b32 v{r+2}, v{r}')
        a.emit(f'v_mov_b32 v{r+3}, v{r+1}')
        a.emit('s_nop 0')
        a.emit(f'v_permlane{op}_swap_b32 v{r}, v{r+2}')
        a.emit(f'v_permlane{op}_swap_b32 v{r+1}, v{r+3}')
        a.emit(f'v_pk_add_f32 v[{r}:{r+1}], v[{r}:{r+1}], v[{r+2}:{r+3}]')
    allsum(vd, 16)
    stats_finish(a, vd)
    a.emit(f's_and_b32 s3, s{S_WV}, 3')
    a.emit('s_lshl_b32 s5, s3, 7')
    a.emit(f's_add_u32 s5, s5, {LST + 64}')
    a.emit('v_and_b32 v3, 15, v1')
    a.emit('v_lshrrev_b32 v2, 5, v1')
    a.emit('v_lshl_add_u32 v2, v3, 1, v2')
    a.emit('v_lshl_add_u32 v2, v2, 2, s5')
    a.emit(f'ds_write2_b32 v2, v{vd}, v{vd+1} offset0:0 offset1:160')
    if halo:
        h = vd + 16
        allsum(h, 32); allsum(h, 16)
        for r in (8, 4):
            a.emit('s_nop 1')
            for i in range(2): a.emit(f'v_add_f32_dpp v{h+i}, v{h+i}, v{h+i} row_ror:{r} row_mask:0xf bank_mask:0xf')
        stats_finish(a, h)
        a.emit('s_lshl_b32 s5, s3, 4')
        a.emit(f's_add_u32 s5, s5, {LST}')
        a.emit('v_and_b32 v3, 3, v1')
        a.emit('v_lshl_add_u32 v2, v3, 2, s5')
        a.emit(f'ds_write2_b32 v2, v{h}, v{h+1} offset0:0 offset1:160')

def gen_w1(a, tsidx, side, cs=(16, 16384, 0)):
    kind = 'w1'
    K = 1024; lda2 = 2048; ldw2 = 7168; ldo2 = 7168
    ot = kind in OT
    S = 3; LM = int(ENV('LM_W1', '2' if ot else '3'))
    STAGE = 16384 + 4 * 8192
    o2 = 'w2' in OT
    assert LM == 2 or not o2
    LST = OHB - 4096 if o2 else S * STAGE
    LCS = LST + 1280
    N = 16
    body = f'L_{kind}_body'; end = f'L_{kind}_end'
    VB, VA, VO = 4, 20, 12
    F = [32, 80]; ACC = 128
    acc = lambda jn, jm: ACC + (jn * 4 + jm) * 4
    fx = lambda s, jm: F[s] + jm * 4
    fw = lambda s, jn: F[s] + 16 + jn * 4
    a.label(f'L_{kind}_c0')
    if not MEGA: stub(a, f'{kind}l0_kernel', body, 0, tsidx, True)
    a.label(body)
    tile_map(a, LM, end)
    a.emit(f's_cmp_ge_u32 s{S_WV}, 4')
    a.emit(f's_cbranch_scc1 L_{kind}_loader')
    if ot and OBAR: a.emit('s_barrier')
    if NV:
        from gemm64y import w2_pre, w2_early
        w2_pre(a)
        tile_map(a, LM, None)
    a.emit(f's_and_b32 s{S_WM}, s{S_WV}, 1')
    a.emit(f's_lshr_b32 s{S_WN}, s{S_WV}, 1')
    a.emit('v_and_b32 v3, 15, v1')
    a.emit('v_lshrrev_b32 v2, 4, v1')
    a.emit(f's_lshl_b32 s8, s{S_WM}, 13')
    a.emit(f'v_lshl_add_u32 v{VB}, v1, 4, s8')
    nr = kind in NS and NSR
    wbase(a, 13, 17, nr=nr)
    a.emit(f's_lshl_b32 s9, s{S_WN}, 6')
    a.emit('v_xor_b32 v13, s9, v13')
    a.emit(f'v_add_u32 v{VB+1}, 16384, v13')
    a.emit(f'v_xor_b32 v{VB+2}, 32, v{VB+1}')
    a.emit('v_and_b32 v16, 1, v2')
    a.emit('v_lshrrev_b32 v17, 1, v2')
    if nr: a.emit('v_lshrrev_b32 v13, 2, v1')
    else:
        a.emit('v_bfe_u32 v13, v1, 2, 2')
        a.emit('v_lshl_add_u32 v13, v16, 3, v13')
        a.emit('v_lshl_add_u32 v13, v17, 5, v13')
    n2 = 'w2' in NS
    if n2:
        a.emit('v_and_b32 v14, 1, v1')
        a.emit('v_lshl_add_u32 v13, v13, 1, v14')
        a.emit(f'v_xor_b32 v14, s{S_WN}, v16')
        a.emit('v_lshl_add_u32 v13, v13, 1, v14')
        a.emit('v_bfe_u32 v14, v1, 1, 1')
        a.emit('v_lshl_add_u32 v13, v13, 1, v14')
    else:
        a.emit(f'v_xor_b32 v14, s{S_WN}, v16')
        a.emit('v_lshl_add_u32 v13, v13, 1, v14')
        a.emit('v_and_b32 v14, 3, v1')
        a.emit('v_lshl_add_u32 v13, v13, 2, v14')
    a.emit('v_lshlrev_b32 v13, 3, v13')
    a.emit(f'v_add_u32 v{VB+3}, {16384 + 3 * 8192}, v13')
    i0 = len(a.lines)
    a.emit(f's_lshl_b32 s8, s{S_MT}, 7')
    a.emit(f's_lshl_b32 s9, s{S_WM}, 6')
    a.emit('s_add_u32 s8, s8, s9')
    a.emit(f's_mul_i32 s8, s8, {ldo2}')
    a.emit('v_lshlrev_b32 v14, 8, v17')
    a.emit('v_lshl_add_u32 v14, v3, 4, v14')
    if o2:
        a.emit(f's_lshl3_add_u32 s9, s{S_WM}, s{S_WN}')
        a.emit('s_lshl_b32 s9, s9, 10')
        a.emit(f's_add_u32 s9, s9, {OHB}')
        if n2: a.emit('v_lshl_add_u32 v18, v1, 4, s9')
        else:
            a.emit('v_lshl_add_u32 v18, v16, 9, v14')
            a.emit('v_add_u32 v18, s9, v18')
        srd(a, SB, 'b2', 0, 2048)
        a.emit(f's_lshr_b32 s9, s{S_NT}, 3')
        a.emit(f's_and_b32 s10, s{S_NT}, 7')
        a.emit('s_lshl1_add_u32 s9, s10, s9')
        a.emit('s_lshl_b32 s9, s9, 7')
        a.emit('v_lshl_add_u32 v19, v2, 3, s9')
    a.emit('v_add_u32 v14, s8, v14')
    a.emit(f's_lshl_b32 s10, s{S_NT}, 11')
    a.emit(f's_lshl_b32 s9, s{S_WN}, 10')
    a.emit('s_add_u32 s9, s9, s10')
    a.emit(f'v_lshl_add_u32 v{VO}, v1, 4, s8' if n2 else f'v_lshl_add_u32 v{VO}, v16, 9, v14')
    a.emit(f'v_add_u32 v{VO}, s9, v{VO}')
    if n2: a.emit('v_lshl_add_u32 v17, v16, 2, v17')
    a.emit(f'v_mul_u32_u24 v16, {16*ldo2}, v16')
    a.emit('s_lshr_b32 s9, s9, 1')
    a.emit(f'v_add3_u32 v{VO+1}, v16, v14, s9')
    a.emit(f's_lshl_b32 s9, s{S_WM}, 8')
    a.emit(f's_add_u32 s9, s9, {LST + 64}')
    a.emit('v_lshl_add_u32 v14, v3, 2, s9')
    a.emit(f's_lshl_b32 s9, s{S_WN}, 7')
    a.emit(f's_add_u32 s9, s9, {LCS}')
    a.emit('v_lshl_add_u32 v15, v2, 4, s9')
    a.emit(f's_lshl_b32 s9, s{S_WN}, {5 if n2 else 6}')
    a.emit(f's_add_u32 s9, s9, {LCS}')
    a.emit(f'v_lshl_add_u32 v16, v{17 if n2 else 2}, 4, s9')
    if OH: a.emit(f'v_mov_b32 v17, {LST}')
    for i in range(0 if ot else 112): a.emit(f'v_mov_b32 v{ACC+i}, 0')
    if not MEGA: a.emit('s_waitcnt lgkmcnt(0)')
    srd(a, SO, ENV('HB', 'ws'), WS_H, 2048 * 7168)
    HC = ENV('HC', '')
    if HC:
        G_ = int(ENV('HCG', '6'))
        a.emit('v_lshrrev_b32 v26, 4, v1')
        a.emit(f'v_mul_u32_u24 v26, {16*ldo2}, v26')
        a.emit('v_lshl_add_u32 v26, v3, 6, v26')
        if G_ == 7: a.emit('v_and_b32 v26, 0xffffff80, v26')
        a.emit(f's_lshl1_add_u32 s3, s{S_NT}, s{S_WN}')
        a.emit('s_lshl_b32 s4, s3, 9')
        a.emit('s_add_u32 s4, s4, s8')
        a.emit('s_add_u32 s4, s4, 32768')
        a.emit('s_lshl_b32 s3, s3, 10')
        a.emit('s_add_u32 s3, s3, s10')
        a.emit('s_add_u32 s3, s3, s8')
        a.emit(f's_add_u32 s3, s3, {48 * 1024}')
        a.emit('v_and_b32 v27, 0xfffffdff, v26')
        op = 'load' if 'l' in HC else 'store'; fl = ' sc1' if '1' in HC else ''
        a.emit(f'buffer_{op}_dword v28, v26, s[{SO}:{SO+3}], s3 offen{fl}')
        a.emit(f'buffer_{op}_dword v29, v26, s[{SO}:{SO+3}], s3 offen offset:2048{fl}')
        a.emit(f'buffer_{op}_dword v30, v27, s[{SO}:{SO+3}], s4 offen{fl}')
    if ENV('HS'):
        a.emit(f"s_and_b32 s3, s2, {ENV('HS')}")
        a.emit(f's_cselect_b32 s{SO+2}, 0, s{SO+2}')
    if not ot: code_touch(a, 'L_w2_c0', 'L_w2_c1', 192 if SPX else 128)
    mid = []
    if ot: mid = a.lines[i0:]; del a.lines[i0:]
    def reads(s, ks):
        o = []
        if 'noread' in DBG: return o
        for jm in range(4):
            o.append(f'ds_read_b128 v[{fx(s,jm)}:{fx(s,jm)+3}], v{VA} offset:{jm*2048+ks*1024}')
        for jn in range(7):
            for h in range(2):
                r = fw(s, jn) + 2 * h
                o.append(f'ds_read_b64_tr_b16 v[{r}:{r+1}], v{VA+1+(jn&1 if jn < 6 else 2)} offset:{((jn>>1)*8192 if jn < 6 else 0)+h*(2048 if nr else 512 if jn < 6 else 256)+ks*4096}')
        return o
    def mf(s):
        o = []
        if 'nomfma' in DBG: return ['s_nop 0']
        for jn, jm in mf_order(7, 4):
            if True:
                c = acc(jn, jm)
                o.append(f'v_mfma_f32_16x16x32_bf16 v[{c}:{c+3}], v[{fw(s,jn)}:{fw(s,jn)+3}], v[{fx(s,jm)}:{fx(s,jm)+3}], v[{c}:{c+3}]')
        return o
    zc = lambda x: x[:x.rindex(',')] + ', 0'
    big_loop(a, kind, N, S, STAGE, 4, VB, VA, reads, mf, ot=(lambda s: mf(1) if s else [zc(x) for x in mf(0)]) if ot else None, mid=mid)
    if ENV('XSE'): a.emit(f"s_sleep {ENV('XSE')}")
    CS = 32; BI = 60; STT = 88; CK = 96; T = 100; D = 108
    for jm in range(4):
        a.emit(f'ds_read2_b32 v[{STT+2*jm}:{STT+2*jm+1}], v14 offset0:{16*jm} offset1:{160+16*jm}')
    for jn in range(0 if 'nofold' in DBG else 7):
        a.emit(f'ds_read_b128 v[{CS+4*jn}:{CS+4*jn+3}], v{15 if jn < 6 else 16} offset:{(jn>>1)*256+(jn&1)*64}')
        a.emit(f'ds_read_b128 v[{BI+4*jn}:{BI+4*jn+3}], v{15 if jn < 6 else 16} offset:{1024+(jn>>1)*256+(jn&1)*64}')
    if HC: a.emit('s_waitcnt vmcnt(0)')
    if OH: a.emit('ds_read_b32 v17, v17')
    for jn in range(4 if o2 else 0):
        a.emit(f'buffer_load_dwordx2 v[{OBIA[jn]}:{OBIA[jn]+1}], v19, s[{SB}:{SB+3}], 0 offen offset:{jn*32}')
    c0 = -2.0 * 0.7978845608028654 * 1.4426950408889634
    c1 = c0 * 0.044715
    a.emit(f'v_mov_b32 v{CK}, {f2u(c0):#x}')
    a.emit(f'v_mov_b32 v{CK+1}, {f2u(c1):#x}')
    a.emit(f'v_mov_b32 v{CK+2}, 1.0')
    a.emit('s_waitcnt lgkmcnt(0)')
    if OH: a.emit(f'v_readfirstlane_b32 s{S_T}, v17')
    for jm in range(4):
        a.emit(f'v_mul_f32 v{STT+2*jm}, v{STT+2*jm}, v{STT+2*jm+1}')
    if OH:
        a.emit(f's_cmp_lg_u32 s{S_T}, 0')
        a.emit(f's_cselect_b32 s{S_T}, {HALT}, 0')
        a.emit(f's_add_u32 s{SO}, s{SO}, s{S_T}')
        a.emit(f's_addc_u32 s{SO+1}, s{SO+1}, 0')
    def tile_math(jn, jm, d):
        c = acc(jn, jm)
        seqs = []
        ST2 = f'v[{STT+2*jm}:{STT+2*jm+1}]'
        for q in range(2):
            x = c + 2 * q; t = T + 2 * q + 4 * (jn & 1)
            X = f'v[{x}:{x+1}]'; TT = f'v[{t}:{t+1}]'
            seqs.append([
              f'v_pk_fma_f32 {TT}, v[{CS+4*jn+2*q}:{CS+4*jn+2*q+1}], {ST2}, v[{BI+4*jn+2*q}:{BI+4*jn+2*q+1}] op_sel:[0,0,0] op_sel_hi:[1,0,1] neg_lo:[0,1,0] neg_hi:[0,1,0]',
              f'v_pk_fma_f32 {X}, {X}, {ST2}, {TT} op_sel:[0,1,0] op_sel_hi:[1,1,1]',
              f'v_pk_mul_f32 {TT}, {X}, {X}',
              f'v_pk_fma_f32 {TT}, {TT}, v[{CK}:{CK+1}], v[{CK}:{CK+1}] op_sel:[0,1,0] op_sel_hi:[1,1,0]',
              f'v_pk_mul_f32 {TT}, {TT}, {X}',
              f'v_exp_f32 v{t}, v{t}\n  v_exp_f32 v{t+1}, v{t+1}',
              f'v_pk_add_f32 {TT}, {TT}, v[{CK+2}:{CK+3}] op_sel_hi:[1,0]',
              f'v_rcp_f32 v{t}, v{t}\n  v_rcp_f32 v{t+1}, v{t+1}',
              f'v_pk_mul_f32 {X}, {X}, {TT}',
              f'v_cvt_pk_bf16_f32 v{d+q}, v{x}, v{x+1}'])
        if 'nofold' in DBG: seqs = [q[2:] for q in seqs]
        if 'nofold1' in DBG: seqs = [q[1:] for q in seqs]
        if 'nogelu' in DBG: seqs = [q[:2] + q[-1:] for q in seqs]
        if 'halfgelu' in DBG: seqs = [q[:2] + q[5:6] + q[-2:] for q in seqs]
        for ia, ib in zip(*seqs):
            a.emit(ia); a.emit(ib)
    cnt = [0]
    def pair(t0, t1, vo, soff, big=False):
        d = D + 4 * (cnt[0] % 4); cnt[0] += 1
        tile_math(*t0, d); tile_math(*t1, d + 2)
        a.emit(f's_add_u32 s3, s10, {soff}' if big else f's_mov_b32 s3, {soff}')
        if not n2 or t0[0] == 6:
            a.emit('s_nop 0')
            a.emit(f'v_permlane16_swap_b32 v{d}, v{d+2}')
            a.emit(f'v_permlane16_swap_b32 v{d+1}, v{d+3}')
        a.emit(f'buffer_store_dwordx4 v[{d}:{d+3}], v{vo}, s[{SO}:{SO+3}], s3 offen' + (stf(kind) if str(t0[0] // 2) in ENV('WTP', '013' if OH else '0123') else ' ' + ENV('WTQ', '')))
        if o2 and t0[0] < 6: a.emit(f'ds_write_b128 v18, v[{d}:{d+3}] offset:{(t0[0] // 2 + 2) % 3 * 16384 + t0[1] * 2048}')
    pr = lambda p, jm: pair((2 * p, jm), (2 * p + 1, jm), VO, jm * 16 * ldo2 + ((16 + 32 * p) if OH == 2 else (46 + 2 * p)) * 1024 * (p > 0), p > 0 and OH != 2)
    od = lambda jm: pair((6, jm), (6, jm + 1), VO + 1, jm * 16 * ldo2 + 32768)
    order = [lambda jm=jm: pr(0, jm) for jm in range(4)] + [lambda: od(0), lambda: od(2)] + [lambda jm=jm, p=p: pr(p, jm) for jm in range(4) for p in (1, 2)]
    if OH:
        order = []
        for c in ENV('ORD', '0312'): order += [lambda: od(0), lambda: od(2)] if c == '3' else [lambda jm=jm, p=int(c): pr(p, jm) for jm in range(4)]
    EW = int(ENV('EW', '10'))
    if EF: order = [lambda: od(0), lambda: od(2)] + [lambda jm=jm, p=p: pr(p, jm) for p in (1, 2, 0) for jm in range(4)]
    for i, f in enumerate(order):
        f()
        if NV and i + 1 == EX: w2_early(a)
        if (EARLY or EF) and i + 1 == EW:
            a.emit(f's_waitcnt vmcnt({EW - (6 if EF else EARLY // 4)})')
            a.emit('s_barrier')
    if ENV('ES'): stamp(a, 1)
    compute_end(a, kind)
    a.label(f'L_{kind}_loader')
    L = Loader(a, kind, K, lda2, ldw2, [0, f's{S_HD}', 's_add_u32 s4, s4, 128'], 128, S, STAGE, rot=int(ENV('ROT_W1', '0')), xblk=True, half=2048)
    L.ot = int(ot)
    L.setup()
    a.emit('s_waitcnt lgkmcnt(0)')
    if WD: srd(a, SW, 'w1', 0, 1024 * 7168)
    iw0 = len(a.lines)
    if WD == 'b':
        a.emit('s_waitcnt vmcnt(7)')
        a.emit('s_barrier')
    if ot and ENV('CT2', 'l') == 'l': code_touch(a, 'L_w2_c0', 'L_w2_c1', 192, loader=True)
    srd(a, SX, 'ws', WS_X1, 4 * MB)
    if not WD: srd(a, SW, 'w1', 0, 1024 * 7168)
    srd(a, ST, 'ws', WS_ST, 16 * 16384); srd(a, SC, 'ws0', WS_CS, 16 * 16384); srd(a, SB, 'b1', 0, 7168)
    def tail():
        stats_loads(a, 32, False)
        a.emit(f's_lshl_b32 s4, s{S_NT}, 7')
        a.emit(f's_lshl_b32 s5, s{S_WV}, 6')
        a.emit('s_add_u32 s4, s4, s5')
        a.emit(f's_add_u32 s4, s4, {1472 - 256}')
        a.emit(f's_lshl_b32 s5, s{S_NT}, 6')
        a.emit(f's_cmp_eq_u32 s{S_WV}, 4')
        a.emit('s_cselect_b32 s4, s5, s4')
        a.emit('s_lshr_b32 s5, s5, 1')
        a.emit('s_add_u32 s5, s5, 1024')
        a.emit(f's_cmp_eq_u32 s{S_WV}, 7')
        a.emit('s_cselect_b32 s4, s5, s4')
        a.emit('v_add_u32 v3, s4, v1')
        a.emit('v_lshlrev_b32 v2, 2, v3')
        a.emit('v_lshlrev_b32 v3, 1, v3')
        a.emit(f's_mov_b32 s3, {cs[2]}')
        for j in range(16):
            if j < cs[0]:
                a.emit(f'buffer_load_dword v{64+j}, v2, s[{SC}:{SC+3}], s3 offen')
                if j < cs[0] - 1: a.emit(f's_add_u32 s3, s3, {cs[1]}')
            else:
                a.emit(f'v_mov_b32 v{64+j}, 0')
        a.emit(f'buffer_load_ushort v80, v3, s[{SB}:{SB+3}], 0 offen')
        side(a, 'issue')
    ns = side(Asm(), 'issue')
    extra = None
    if VW:
        assert int(ENV('LM_W2', '2')) == 2
        srd(a, SR, 'w2', 0, 3584 * 2048)
        a.emit('s_and_b32 s5, s2, 3')
        a.emit('s_lshl_b32 s5, s5, 2')
        a.emit(f's_and_b32 s6, s{S_CU}, 3')
        a.emit('s_add_u32 s5, s5, s6')
        a.emit('s_and_b32 s6, s2, 4')
        a.emit('s_lshl_b32 s6, s6, 1')
        a.emit(f's_lshr_b32 s7, s{S_CU}, 2')
        a.emit('s_add_u32 s6, s6, s7')
        rot_table(a, S_TB, 5, 6, 'w2')
        a.emit(f's_add_u32 s5, s5, s{S_WV}')
        a.emit('s_and_b32 s5, s5, 3')
        wvoff(a, 16, 5, 6, 2048)
        sched = [int(c) for c in ENV('PSCH', '0111111111111122')]
        assert sum(sched) >= NV1
        def extra(i):
            o = []
            for p in range(sum(sched[:i]), min(NV1, sum(sched[:i + 1]))): o += park(56, 2 * p, 128 + 8 * p, 16, SR)
            return o
        ns += sum(x.startswith('buffer_load') for i in (13, 14, 15) for x in extra(i))
    if XD:
        extra = tail_parks('w2', SR, lambda b: srd(b, SR, 'w2', 0, 3584 * 2048))
        ns += 2 * sum(TSCH['w2'])
    if XD and ENV('PFL', '2') == '3':
        b = Asm(); side(b, 'late'); pl = [l.strip() for l in b.lines]
        pl = [l.replace('v2,', 'v18,').replace(', v2', ', v18').replace('s3', 's93') for l in pl]
        i0 = min(i for i, l in enumerate(pl) if l.startswith('buffer_load'))
        for l in pl[:i0]: a.emit(l)
        st = [int(x) for x in ENV('PFS', '6,10').split(',')]
        extra = lambda i: pl[i0 + 2 * st.index(i):i0 + 2 * st.index(i) + 2] if i in st else []
    def final():
        a.emit(f's_waitcnt vmcnt({ns})')
        if ENV('PFL', '2') == '1': side(a, 'late')
        stats_reduce_store(a, 32, LST)
        for j in range(8): a.emit(f'v_add_f32 v{64+j}, v{64+j}, v{72+j}')
        for j in range(4): a.emit(f'v_add_f32 v{64+j}, v{64+j}, v{68+j}')
        a.emit('v_add_f32 v64, v64, v65')
        a.emit('v_add_f32 v66, v66, v67')
        a.emit('v_add_f32 v64, v64, v66')
        a.emit('v_lshlrev_b32 v80, 16, v80')
        a.emit('v_lshlrev_b32 v2, 2, v0')
        a.emit(f'v_add_u32 v2, {LCS - 1024}, v2')
        a.emit('ds_write_b32 v2, v64')
        a.emit('ds_write_b32 v2, v80 offset:1024')
        a.emit('s_waitcnt lgkmcnt(0)')
    import sides
    if T4:
        stats4_setup(a, False)
        a.emit(f's_lshl_b32 s4, s{S_NT}, 7')
        a.emit(f's_lshl_b32 s5, s{S_WV}, 6')
        a.emit('s_add_u32 s4, s4, s5')
        a.emit(f's_add_u32 s4, s4, {1472 - 256}')
        a.emit(f's_lshl_b32 s5, s{S_NT}, 6')
        a.emit(f's_cmp_eq_u32 s{S_WV}, 4')
        a.emit('s_cselect_b32 s4, s5, s4')
        a.emit('s_lshr_b32 s5, s5, 1')
        a.emit('s_add_u32 s5, s5, 1024')
        a.emit(f's_cmp_eq_u32 s{S_WV}, 7')
        a.emit('s_cselect_b32 s4, s5, s4')
        a.emit('v_and_b32 v3, 15, v1')
        a.emit('v_lshl_add_u32 v3, v3, 2, s4')
        a.emit('v_lshrrev_b32 v2, 4, v1')
        a.emit(f'v_add_lshl_u32 v{VBI}, v3, v2, 1')
        a.emit('v_lshlrev_b32 v3, 2, v3')
        a.emit(f'v_lshl_add_u32 v{VCS}, v2, 14, v3')
        CSI = int(ENV('CSI', '14')); STI = int(ENV('STI', '14'))
        LP2 = ENV('LP2', ''); LP0 = int(ENV('LP0', '5'))
        if LP2:
            a.emit(f's_and_b32 s3, s{S_MT}, 3')
            a.emit(f's_lshl2_add_u32 s3, s3, s{S_WV}')
            a.emit('s_sub_u32 s3, s3, 4')
            a.emit(f's_and_b32 s4, s{S_NT}, 7')
            a.emit('s_lshl_b32 s4, s4, 8')
            a.emit('s_lshl_b32 s5, s3, 14')
            a.emit('s_add_u32 s5, s5, s4')
            a.emit(f's_lshl_b32 s{SR}, s{S_NT}, 18')
            a.emit(f's_add_u32 s{SR}, s{SR}, {24 << 17}')
            a.emit(f's_add_u32 s{SR}, s{SR}, s5')
            a.emit(f's_and_b32 s{SR+1}, s{S_NT}, 8')
            a.emit(f's_lshl_b32 s{SR+1}, s{SR+1}, 16')
            a.emit(f's_add_u32 s{SR+1}, s{SR+1}, {16 << 17}')
            a.emit(f's_add_u32 s{SR+1}, s{SR+1}, s5')
            a.emit('s_lshr_b32 s5, s3, 1')
            a.emit(f's_lshl3_add_u32 s5, s{S_NT}, s5')
            a.emit('s_lshl_b32 s5, s5, 14')
            a.emit('s_and_b32 s3, s3, 1')
            a.emit('s_lshl_b32 s3, s3, 7')
            a.emit('s_add_u32 s4, s4, s3')
            a.emit(f's_add_u32 s{SR+2}, s5, s4')
            a.emit(f's_add_u32 s{SR+3}, s{SR+1}, {2 << 17}')
        HP = int(ENV('HP', '-1'))
        if HP >= 0:
            srd(a, SR, 'ws', WS_H, 2048 * 7168)
            a.emit(f's_and_b32 s3, s{S_WV}, 3')
            a.emit(f's_lshl2_add_u32 s3, s{S_MT}, s3')
            a.emit(f's_mul_i32 s3, s3, {32 * ldo2}')
            a.emit(f's_lshl_b32 s4, s{S_NT}, 12')
            a.emit('s_add_u32 s4, s4, s3')
            a.emit(f's_add_u32 s4, s4, {48 * 1024}')
            a.emit('v_lshl_add_u32 v24, v1, 6, s4')
            a.emit(f'v_add_u32 v25, {16 * ldo2}, v24')
            a.emit(f's_lshl_b32 s4, s{S_NT}, 10')
            a.emit('s_add_u32 s4, s4, s3')
            a.emit(f's_add_u32 s4, s4, {32 * 1024}')
            a.emit('v_and_b32 v3, 15, v1')
            a.emit('v_lshl_add_u32 v3, v3, 6, s4')
            a.emit('v_bfe_u32 v2, v1, 4, 1')
            a.emit(f'v_mul_u32_u24 v2, {16 * ldo2}, v2')
            a.emit('v_add_u32 v26, v2, v3')
            a.emit('v_and_b32 v3, 15, v1')
        def extra4(i):
            o = []
            if LP2 and i == LP0 - 1:
                b = Asm(); srd(b, SO, 'w2', 0, 3584 * 2048); o += [l.strip() for l in b.lines]
            if LP2 and LP0 <= i < LP0 + 8:
                for k, c in enumerate('ABCD'):
                    if c in LP2: o += [f's_buffer_load_dword s84, s[{SO}:{SO+3}], s{SR+k} offset:{64*j}' for j in range(2 if c == 'C' else 4)] + [f's_add_u32 s{SR+k}, s{SR+k}, 2048']
            if i == CSI: o += quad_loads(64, VCS, SC) + [f'buffer_load_ushort v80, v{VBI}, s[{SB}:{SB+3}], 0 offen']
            if i == STI: o += stats4_loads(32, False)
            HPD = int(ENV('HPD', '0'))
            if HP >= 0: o += [f"buffer_{ENV('HPO', 'load')}_dword v{84+j}, v{24+j}, s[{SR}:{SR+3}], 0 offen {ENV('HPF', '')}" for j in range(3) if i == HP + j * HPD]
            return o
        def final4():
            a.emit(f"s_waitcnt vmcnt({3 if HP >= 14 and ENV('HPO', 'load') == 'load' else 0})")
            stats4_store(a, 32, LST, False, nan_chk(a, 'L_w1_s', False) if SF else None)
            quad_sum(a, 64)
            a.emit('v_lshlrev_b32 v80, 16, v80')
            a.emit('s_lshl_b32 s5, s3, 8')
            a.emit(f's_add_u32 s5, s5, {LCS}')
            a.emit('v_permlane16_swap_b32 v64, v65')
            a.emit('v_lshrrev_b32 v2, 4, v1')
            a.emit('v_lshl_add_u32 v2, v3, 2, v2')
            a.emit('v_lshl_add_u32 v2, v2, 2, s5')
            a.emit('v_add_f32 v64, v64, v65')
            a.emit('ds_write2st64_b32 v2, v64, v80 offset0:0 offset1:4')
            if OH:
                assert ENV('PW_W1', '4') == '4'
                a.emit(f'v_xor_b32_dpp v64, v{VMD}, v{VMD} row_ror:2 row_mask:0xf bank_mask:0xf')
                a.emit(f's_lshl2_add_u32 s5, s3, {LST}')
                a.emit('v_cmp_ne_u32 vcc, 0, v64')
                a.emit('v_mov_b32 v2, s5')
                a.emit(f's_or_b32 s{S_MD}, vcc_lo, vcc_hi')
                a.emit(f'v_mov_b32 v64, s{S_MD}')
                a.emit('ds_write_b32 v2, v64')
            a.emit('s_waitcnt lgkmcnt(0)')
        assert ns == 0
        pst = sides.stouch_post(a, kind)
        if WD == 'c':
            a.emit('s_waitcnt vmcnt(0)')
            a.emit('s_barrier')
        elif WD: L.after_own = a.lines[iw0:]; del a.lines[iw0:]
        L.run(final=final4, extra=extra4, post=pst, dep=lambda pf: dep_wait(a, kind, postf=pf, obar=L.npre - 6 if ot and OBAR else 0, pref=(lambda: a.emit(f's_waitcnt vmcnt({L.npre - 7})')) if ot and not OBAR else None))
    else: L.run(tail_issue=tail, ntail_vm=17 + cs[0] + side(Asm(), 'issue'), final=final, extra=extra, post=sides.stouch_post(a, kind),
          dep=(lambda pf: dep_wait(a, kind, postf=pf)) if MEGA else None)
    if ENV('PFL', '2') == '2': side(a, 'late')
    if not VW: side(a, 'finish')
    loader_end(a, kind)
    a.label(end)
    a.emit('s_endpgm')
    loader_first(a, kind)
    if not MEGA:
        a(KD.format(name=f'{kind}l0_kernel'))
        stub(a, f'{kind}l1_kernel', body, 1, tsidx + 4, False)
        a(KD.format(name=f'{kind}l1_kernel'))
    a.label(f'L_{kind}_c1')
    return LCS + 2048
```

```python
from common import *
from gemmw1 import *

def res_addr(a, swv, sd, v):
    assert int(ENV('LM_WO', '2')) == 2 and int(ENV('LM_W2', '2')) == 2
    srd(a, sd, 'A_x', 0, 4 * MB)
    a.emit('s_and_b32 s3, s2, 3')
    a.emit(f's_and_b32 s4, s{S_CU}, 3')
    a.emit('s_lshl2_add_u32 s3, s3, s4')
    a.emit(f's_lshl2_add_u32 s3, s3, s{swv}')
    a.emit('s_lshl_b32 s3, s3, 16')
    a.emit('s_bfe_u32 s4, s2, 0x10002' if SPX else 's_and_b32 s4, s2, 4')
    a.emit(f's_lshr_b32 s5, s{S_CU}, 2')
    a.emit('s_lshl1_add_u32 s4, s5, s4' if SPX else 's_lshl1_add_u32 s4, s4, s5')
    a.emit('s_lshl_b32 s4, s4, 7')
    a.emit('s_add_u32 s3, s3, s4')
    a.emit('s_add_u32 s4, s3, 32768')
    a.emit(f'v_and_b32 v{v}, 15, v1')
    a.emit(f'v_lshlrev_b32 v{v+1}, 1, v1')
    a.emit(f'v_and_b32 v{v+1}, 32, v{v+1}')
    a.emit(f'v_lshl_add_u32 v{v}, v{v}, 11, v{v+1}')
    a.emit(f'v_lshrrev_b32 v{v+1}, 1, v1')
    a.emit(f'v_and_b32 v{v+1}, 16, v{v+1}')
    a.emit(f'v_add_u32 v{v}, v{v}, v{v+1}')

def dbg_off(a, v):
    a.emit(f's_lshl_b32 s3, s{S_MT}, 2')
    a.emit('s_sub_u32 s3, s3, 4')
    a.emit(f'v_and_b32 v{v}, 7, v1')
    a.emit(f'v_add_u32 v{v}, s3, v{v}')
    a.emit(f'v_max_i32 v{v}, 0, v{v}')
    a.emit(f'v_lshlrev_b32 v{v}, 2, v{v}')

def res_loads(vd, v, sd):
    return [f'buffer_load_dwordx4 v[{vd+4*i}:{vd+3+4*i}], v{v}, s[{sd}:{sd+3}], s{3+(i>>1)} offen offset:{64*(i&1)}' for i in range(4)]

def gen_qkv(a, tsidx, side):
    kind = 'attn'
    K = 1024; lda2 = 2048; ldw2 = 6144
    S = 3; LM = int(ENV('LM_QKV', '3'))
    XH = 16384 + 6 * 4096
    STAGE = XH + 2048
    LST = S * STAGE
    EX = 1024
    N = 16
    body = f'L_{kind}_body'; end = f'L_{kind}_end'
    VB, VA = 4, 10
    VXW, VPE, VPO, VCE, VCO, VVE, VVO, VS1, VS4, VKA, VKB, MAP, MAC, MBP, MBC, VO = range(16, 32)
    M_ODD, M_UPA, M_UPB, M_FA, M_FB = 48, 50, 52, 54, 14
    F = [32, 76]; ACC = 128; HACC = 224; ONES = 236
    acc = lambda jn, jm: ACC + (jn * 4 + jm) * 4
    fx = lambda s, jm: F[s] + jm * 4
    fw = lambda s, jn: F[s] + 20 + jn * 4
    a.label(f'L_{kind}_c0')
    stub(a, f'{kind}l0_kernel', body, 0, tsidx, True)
    a.label(body)
    ot = kind in OT
    HX = LST + 1280
    tile_map(a, LM, end)
    if ot and LM != 2:
        a.emit(f's_cmp_eq_u32 s{S_LAYER}, 0')
        a.emit(f's_cbranch_scc1 L_{kind}_map')
        tile_map(a, 2, None)
        a.label(f'L_{kind}_map')
    a.emit(f's_cmp_ge_u32 s{S_WV}, 4')
    a.emit(f's_cbranch_scc1 L_{kind}_loader')
    if ENV('CTE', '1') == '1': code_touch(a, 'L_attn_c0', 'L_w2_c1', int(ENV('CTN', '320')))
    a.emit(f's_and_b32 s{S_WM}, s{S_WV}, 1')
    a.emit(f's_lshr_b32 s{S_WN}, s{S_WV}, 1')
    a.emit('v_and_b32 v3, 31, v1')
    a.emit('v_lshlrev_b32 v3, 2, v3')
    a.emit(f'v_add_u32 v3, {XH}, v3')
    for i in range(4): a.emit(f'v_mov_b32 v{ONES+i}, 0x3f803f80')
    a.emit(f'ds_write_b32 v3, v{ONES}')
    a.emit(f'ds_write_b32 v3, v{ONES} offset:{STAGE}')
    a.emit(f'v_add_u32 v3, {2*STAGE}, v3')
    a.emit(f'ds_write_b32 v3, v{ONES}')
    if ot: a.emit(f'ds_write_b32 v3, v{ONES} offset:{HX - XH - 2 * STAGE}')
    a.emit('v_and_b32 v3, 15, v1')
    a.emit('v_lshrrev_b32 v2, 4, v1')
    a.emit('v_lshrrev_b32 v33, 1, v3')
    a.emit(f's_lshl_b32 s8, s{S_WM}, 13')
    for ks in range(2):
        if ks: a.emit(f'v_add_u32 v{VB+ks}, 4, v2')
        a.emit(f'v_xor_b32 v{VB+ks}, v{VB+ks if ks else 2}, v33')
        a.emit(f'v_lshlrev_b32 v{VB+ks}, 4, v{VB+ks}')
        a.emit(f'v_lshl_add_u32 v{VB+ks}, v3, 7, v{VB+ks}')
        a.emit(f'v_add_u32 v{VB+4+ks}, {XH}, v{VB+ks}')
        a.emit(f'v_add_u32 v{VB+ks}, s8, v{VB+ks}')
    wbase(a, 34, 33)
    a.emit(f's_lshl_b32 s8, s{S_WV}, 5')
    a.emit('v_xor_b32 v34, s8, v34')
    a.emit(f'v_add_u32 v{VB+2}, 16384, v34')
    a.emit(f'v_xor_b32 v{VB+3}, 32, v{VB+2}')
    i0 = len(a.lines)
    a.emit('v_and_b32 v35, 1, v2')
    a.emit(f'v_xor_b32 v35, s{S_WM}, v35')
    a.emit(f's_lshl_b32 s8, s{S_MT}, 7')
    a.emit(f's_lshl_b32 s9, s{S_WM}, 6')
    a.emit('s_add_u32 s8, s8, s9')
    if OH:
        a.emit('s_mul_i32 s10, s8, 7')
        a.emit(f's_lshl{3 - OH}_add_u32 s11, s{S_NT}, s{S_WN}')
        a.emit('s_add_u32 s10, s10, s11')
        a.emit('s_lshl_b32 s10, s10, 10')
    else:
        a.emit(f's_add_u32 s10, s8, s{S_NT}')
        a.emit('s_lshl_b32 s10, s10, 11')
        a.emit(f's_lshl_b32 s11, s{S_WN}, 10')
        a.emit('s_add_u32 s10, s10, s11')
    if 'wo' in NS: a.emit(f'v_lshl_add_u32 v{VO}, v1, 4, s10')
    else:
        a.emit('v_lshl_add_u32 v33, v3, 4, s10')
        a.emit('v_lshl_add_u32 v33, v35, 9, v33')
        a.emit('v_lshrrev_b32 v34, 1, v2')
        a.emit(f'v_lshl_add_u32 v{VO}, v34, 8, v33')
    a.emit(f's_mul_i32 s10, s{S_WN}, {14336 if XD else 24576}')
    a.emit(f's_add_u32 s10, s10, {EX}')
    a.emit(f's_lshl_b32 s11, s{S_WM}, 10')
    a.emit('s_add_u32 s4, s10, s11')
    a.emit('s_sub_u32 s5, s10, s11')
    a.emit(f's_mul_i32 s6, s{S_WM}, 6144')
    a.emit(f'v_lshl_add_u32 v{VXW}, v1, 4, s4')
    a.emit(f'v_add_u32 v{VPE}, s6, v{VXW}')
    a.emit(f'v_lshl_add_u32 v{VPO}, v1, 4, s5')
    a.emit(f'v_add_u32 v{VPO}, s6, v{VPO}')
    a.emit(f'v_lshl_add_u32 v{VCE}, v2, 8, s4')
    a.emit(f'v_lshl_add_u32 v{VCO}, v2, 8, s5')
    a.emit(f'v_lshl_add_u32 v{VVE}, v3, 4, s4')
    a.emit(f'v_lshl_add_u32 v{VVO}, v3, 4, s5')
    a.emit(f's_lshl_b32 s10, s{S_WM}, 8')
    a.emit(f's_add_u32 s10, s10, {LST}')
    a.emit(f'v_lshl_add_u32 v{VS1}, v3, 2, s10')
    a.emit(f'v_lshl_add_u32 v{VS4}, v2, 4, s10')
    a.emit('v_and_b32 v33, 1, v3')
    a.emit(f'v_cmp_eq_u32 s[{M_ODD}:{M_ODD+1}], 1, v33')
    a.emit('v_lshl_add_u32 v34, v2, 2, v33')
    a.emit('v_add_u32 v35, 2, v34')
    a.emit(f'v_cmp_gt_u32 s[{M_UPA}:{M_UPA+1}], v34, v3')
    a.emit(f'v_cmp_gt_u32 s[{M_UPB}:{M_UPB+1}], v35, v3')
    a.emit('v_mov_b32 v36, 0xffff')
    a.emit('v_mov_b32 v37, 0xffff0000')
    a.emit(f'v_cndmask_b32 v36, v36, v37, s[{M_ODD}:{M_ODD+1}]')
    a.emit(f's_add_u32 s10, s10, {640 + 64}')
    a.emit('v_lshl_add_u32 v34, v34, 2, s10')
    a.emit('v_lshl_add_u32 v35, v35, 2, s10')
    a.emit('v_subrev_u32 v38, 64, v34')
    a.emit('v_subrev_u32 v39, 64, v35')
    a.emit(f'v_cndmask_b32 v{VKA}, v34, v38, s[{M_UPA}:{M_UPA+1}]')
    a.emit(f'v_cndmask_b32 v{VKB}, v35, v39, s[{M_UPB}:{M_UPB+1}]')
    a.emit(f'v_cndmask_b32 v{MAP}, 0, v36, s[{M_UPA}:{M_UPA+1}]')
    a.emit(f'v_cndmask_b32 v{MBP}, 0, v36, s[{M_UPB}:{M_UPB+1}]')
    a.emit(f'v_xor_b32 v{MAC}, v{MAP}, v36')
    a.emit(f'v_xor_b32 v{MBC}, v{MBP}, v36')
    a.emit('s_cmp_eq_u32 s8, 0')
    a.emit(f's_cselect_b64 s[{M_FA}:{M_FA+1}], s[{M_UPA}:{M_UPA+1}], 0')
    a.emit(f's_cselect_b64 s[{M_FB}:{M_FB+1}], s[{M_UPB}:{M_UPB+1}], 0')
    if ot:
        a.emit(f's_cmp_lg_u32 s{S_LAYER}, 0')
        a.emit(f's_cbranch_scc1 L_{kind}_nozero')
    for i in list(range(122 if DS else 120, 236)) + ([] if XD else list(range(240, 256))): a.emit(f'v_mov_b32 v{i}, 0')
    if DS:
        a.emit('s_waitcnt lgkmcnt(0)')
        a.emit(f's_lshl_b32 s3, s{S_WN}, 5')
        a.emit('s_add_u32 s3, s3, s8')
        a.emit(f's_lshl_b32 s4, s{S_NT}, 14')
        a.emit('s_lshl3_add_u32 s3, s3, s4')
        a.emit('v_lshrrev_b32 v121, 1, v2')
        a.emit('v_lshl_add_u32 v121, v121, 4, v3')
        a.emit('v_and_b32 v120, 1, v2')
        a.emit('v_lshl_add_u32 v121, v121, 1, v120')
        a.emit('v_lshl_add_u32 v120, v121, 2, s3')
        srd(a, ST, 'ws0', WS_ST0, 16 * 16384)
        srd(a, SP, 'ws0', WS_FL, FLS)
        a.emit('s_lshl_b32 s3, s2, 11')
        if D2:
            a.emit(f's_cmp_lg_u32 s{S_WV}, 0')
            a.emit(f's_cbranch_scc1 L_{kind}_noclr')
            a.emit(f's_lshl_b32 s5, s{S_MT}, 10')
            a.emit('s_add_u32 s4, s4, s5')
            a.emit('v_lshlrev_b32 v121, 4, v1')
            for i in range(4): a.emit(f'v_mov_b32 v{40+i}, -1')
            a.emit(f'buffer_store_dwordx4 v[40:43], v121, s[{ST}:{ST+3}], s4 offen sc1')
            for i in range(2): a.emit(f'buffer_store_dwordx4 v[128:131], v121, s[{SP}:{SP+3}], s3 offen offset:{1024*i} sc1')
            a.emit('v_mov_b32 v126, 1')
            a.label(f'L_{kind}_noclr')
        else:
            a.emit('v_lshlrev_b32 v121, 3, v0')
            a.emit(f'buffer_store_dwordx2 v[126:127], v121, s[{SP}:{SP+3}], s3 offen sc1')
            dbg_off(a, 121)
        a.emit(f's_and_b32 s{SC+1}, s{SC+1}, 0xffff')
        a.emit(f's_mov_b32 s{SC+2}, 256')
        a.emit(f's_mov_b32 s{SC+3}, 0x00020000')
        a.emit('s_mov_b32 s7, 0x3f803f80')
    if ot: a.label(f'L_{kind}_nozero')
    a.emit('s_waitcnt lgkmcnt(0)')
    if OH: srd(a, SO, 'ws', WS_H + OHO, 2048 * 7168 - OHO)
    else: srd(a, SO, 'ws', WS_O, 4 * MB)
    clear_flags(a, 0)
    if ENV('CTE', '1') == '0': code_touch(a, 'L_attn_c0', 'L_w2_c1', int(ENV('CTN', '320')))
    import pads
    CLQ = ENV('DX', '2') == '1' and ENV('CLP', 'e') == 'q'
    if CLQ:
        srd(a, ST, 'ws', WS_XP, 4 * MB)
        a.emit(f's_or_b32 s{ST+1}, s{ST+1}, 0x100000')
        a.emit(f's_mov_b32 s{ST+3}, 0x00800000')
        a.emit('s_and_b32 s3, s2, 3')
        a.emit(f's_and_b32 s4, s{S_CU}, 3')
        a.emit('s_lshl2_add_u32 s3, s3, s4')
        a.emit('s_bfe_u32 s4, s2, 0x10002')
        a.emit(f's_lshr_b32 s5, s{S_CU}, 2')
        a.emit('s_lshl1_add_u32 s4, s5, s4')
        a.emit('s_lshl4_add_u32 s3, s3, s4')
        a.emit(f's_lshl2_add_u32 s3, s3, s{S_WV}')
        a.emit(f's_lshl_b32 s{S_T}, s3, 12')
        for i in range(4): a.emit(f'v_mov_b32 v{116+i}, -1')
    def warm():
        a.emit(f's_cmp_lg_u32 s{S_LAYER}, 0')
        a.emit(f's_cbranch_scc1 L_{kind}_nowarm')
        a.emit('s_lshl_b32 s3, s2, 2')
        a.emit(f's_add_u32 s3, s3, s{S_WV}')
        srd(a, SX, 'xs', 0, 4 * MB); srd(a, SW, 'wqkv', 0, 6 * MB)
        a.emit('v_min_u32 v126, 31, v1')
        a.emit('v_min_u32 v127, 47, v1')
        a.emit('v_lshlrev_b32 v126, 7, v126')
        a.emit('v_lshlrev_b32 v127, 7, v127')
        a.emit('s_lshl_b32 s4, s3, 12')
        a.emit(f's_mul_i32 s5, s3, {48 * 128}')
        a.emit(f'buffer_load_dword v2, v126, s[{SX}:{SX+3}], s4 offen')
        a.emit(f'buffer_load_dword v3, v127, s[{SW}:{SW+3}], s5 offen')
        a.emit('v_mov_b32 v126, 0')
        a.emit('v_mov_b32 v127, 0')
        a.label(f'L_{kind}_nowarm')
    WARM = ENV('WARM', '0')
    if WARM == '1': warm()
    mid = []
    if ot: mid = a.lines[i0:]; del a.lines[i0:]
    def reads(s, ks, hl=True):
        o = []
        if 'noread' in DBG: return o
        for jm in range(4):
            o.append(f'ds_read_b128 v[{fx(s,jm)}:{fx(s,jm)+3}], v{VA+ks} offset:{jm*2048}')
        if hl: o.append(f'ds_read_b128 v[{fx(s,4)}:{fx(s,4)+3}], v{VA+4+ks}')
        for jn in range(6):
            for h in range(2):
                r = fw(s, jn) + 2 * h
                o.append(f'ds_read_b64_tr_b16 v[{r}:{r+1}], v{VA+2+(jn&1)} offset:{(jn>>1)*8192+ks*4096+h*512}')
        return o
    def mfma(c, x, y, cin=None):
        return f'v_mfma_f32_16x16x32_bf16 v[{c}:{c+3}], v[{x}:{x+3}], v[{y}:{y+3}], ' + (f'v[{c}:{c+3}]' if cin is None else cin)
    def mf(s):
        o = []
        if 'nomfma' in DBG: return ['s_nop 0']
        for jn, jm in mf_order(6, 5, lambda jn, jm: jm == 4 and jn & 1):
            if True:
                c = acc(jn, jm) if jm < 4 else HACC + (jn >> 1) * 4
                o.append(mfma(c, fw(s, jn), fx(s, jm)) if jn < 4 else mfma(c, fx(s, jm), fw(s, jn)))
        return o
    SA = [(240, 244), (248, 252), (120, 124)]
    def mfv(hh):
        def f(s):
            o = mf(s)
            ex = []
            for i, jm in enumerate([2 * hh, 2 * hh + 1] + ([4] if hh == 0 else [])):
                ex.append(mfma(SA[i][0], ONES, fx(s, jm)))
                ex.append(mfma(SA[i][1], fx(s, jm), fx(s, jm)))
            return o if 'nostat' in DBG else ex + o
        return f
    def select():
        if CLQ:
            for i in range(4): a.emit(f'buffer_store_dwordx4 v[116:119], off, s[{ST}:{ST+3}], s{S_T} offset:{1024*i} sc1')
        if WARM == '2': warm(); a.emit('s_nop 1')
        if not ot:
            a.emit(f's_cmp_lg_u32 s{S_LAYER}, 0')
            a.emit(f's_cbranch_scc1 L_{kind}_loop')
        if XD:
            for i in range(240, 256): a.emit(f'v_mov_b32 v{i}, 0')
        a.emit(f's_cmp_lg_u32 s{S_WN}, 0')
        a.emit(f's_cbranch_scc1 L_{kind}_loopb')
        clear_flags(a, 1, 4 if CLQ else 0)
    def post():
        a.emit('v_and_b32 v32, 3, v1')
        a.emit('v_cmp_eq_u32 s[4:5], 1, v32')
        a.emit('v_cmp_eq_u32 s[6:7], 2, v32')
        a.emit('v_cmp_eq_u32 s[8:9], 3, v32')
        a.emit('v_bfe_u32 v33, v1, 2, 2')
        a.emit('v_lshrrev_b32 v34, 4, v1')
        a.emit('v_cmp_eq_u32 s[10:11], v33, v34')
        a.emit(f's_lshl_b32 s3, s{S_WN}, 7')
        a.emit(f'v_add_u32 v35, s3, v{VS1}')
        a.emit('v_and_b32 v36, 15, v1')
        a.emit(f's_cmp_eq_u32 s{S_WV}, 0')
        a.emit('s_cselect_b32 s3, 0, 576')
        a.emit(f's_add_u32 s3, s3, {LST}')
        a.emit('v_lshl_add_u32 v36, v36, 2, s3')
        for (sm, sq) in SA:
            a.emit(f'v_cndmask_b32 v{sm+1}, v{sq}, v{sq+1}, s[4:5]')
        for (sm, sq) in SA:
            a.emit(f'v_cndmask_b32 v{sm+1}, v{sm+1}, v{sq+2}, s[6:7]')
        for (sm, sq) in SA:
            a.emit(f'v_cndmask_b32 v{sm+1}, v{sm+1}, v{sq+3}, s[8:9]')
        for (sm, sq) in SA: stats_finish(a, sm)
        a.emit('s_mov_b64 exec, s[10:11]')
        a.emit(f'ds_write2_b32 v35, v{SA[0][0]}, v{SA[0][0]+1} offset0:16 offset1:176')
        a.emit(f'ds_write2_b32 v35, v{SA[1][0]}, v{SA[1][0]+1} offset0:32 offset1:192')
        a.emit(f'ds_write2_b32 v36, v{SA[2][0]}, v{SA[2][0]+1} offset0:0 offset1:160')
        a.emit('s_mov_b64 exec, -1')
        if XD:
            res_addr(a, S_WV, SX, 32)
        a.emit('s_waitcnt lgkmcnt(0)')
        if XD:
            for i in range(4):
                a.emit(f'buffer_load_dwordx4 v[{240+4*i}:{243+4*i}], v32, s[{SX}:{SX+3}], s{3+(i>>1)} offen offset:{64*(i&1)}')
        a.emit('s_barrier')
    own = lambda s: [mfma(acc(jn, jm), *((fw(s, jn), fx(s, jm)) if jn < 4 else (fx(s, jm), fw(s, jn))), None if s else '0') for jn, jm in mf_order(6, 4)]
    hw = lambda ks, c: fw(1, 2 * c) if ks else fx(1, c)
    hal = ([f'v_mov_b32 v{fx(1,c)+i}, v{fw(0,2*c)+i}' for c in range(3) for i in range(4)],
           [f'ds_read_b128 v[{fx(1,3+ks)}:{fx(1,3+ks)+3}], v{VA+4+ks} offset:{HX - XH - STAGE}' for ks in range(2)],
           [mfma(HACC + 4 * c, *((hw(ks, c), fx(1, 3 + ks)) if c < 2 else (fx(1, 3 + ks), hw(ks, c))), None if ks else '0') for ks in range(2) for c in range(3)])
    hooks = None
    if DS:
        HK = [int(x) for x in ENV('HK', '-1,-2,-4,-5,11,13').split(',')]
        def dots(s):
            o = [f's_cmp_lg_u32 s{S_WN}, 0', f's_cbranch_scc1 L_{kind}_dot{s}']
            for hh in range(2):
                for j in range(8):
                    r = fx(s, 2 * hh) + (j >> 1) + 4 * (j & 1)
                    o += [f'v_dot2_f32_bf16 v{122+(j&1)}, v{r}, s7, v{122+(j&1)}', f'v_dot2_f32_bf16 v{124+(j&1)}, v{r}, v{r}, v{124+(j&1)}']
                o += [f'L_{kind}_dote{s}:'] if hh else [f's_branch L_{kind}_dote{s}', f'L_{kind}_dot{s}:']
            return o
        h1 = dots(1) + ['s_nop 2', 'v_permlane32_swap_b32 v122, v123', 'v_permlane32_swap_b32 v124, v125', 'v_add_f32 v122, v122, v123', 'v_add_f32 v124, v124, v125',
               'v_mov_b32 v126, 1', 's_nop 0', 'v_permlane16_swap_b32 v122, v124', 'v_add_f32 v122, v122, v124', f'buffer_store_dword v122, v120, s[{ST}:{ST+3}], 0 offen sc1']
        w0 = [f's_cmp_lg_u32 s{S_WV}, 0', f's_cbranch_scc1 L_{kind}_loop']
        pl = f'buffer_load_dword v127, v121, s[{SC}:{SC+3}], 0 offen sc1'
        b = Asm(); res_addr(b, S_WV, SX, 122); rs = [l.strip() for l in b.lines] + res_loads(240, 122, SX)
        hooks = list(zip(HK + [int(ENV('HKR', '14'))], [dots(0), h1, ['s_waitcnt vmcnt(0)'],
            w0 + [f's_lshl4_add_u32 s3, s{S_MT}, s{S_NT}', 's_mov_b64 exec, 1', f'buffer_store_byte v126, off, s[{SC}:{SC+3}], s3 sc1', 's_mov_b64 exec, -1'], w0 + [pl],
            w0 + ['s_mov_b32 s5, 0x100000', 'L_attn_chkl:', 's_waitcnt vmcnt(0)', 'v_cmp_ne_u32 vcc, 0x01010101, v127', f's_cbranch_vccz L_{kind}_loop',
                  pl, 's_sub_u32 s5, s5, 1', 's_cbranch_scc0 L_attn_chkl'], rs]))
        assert HK[:2] == [-1, -2]
        if D2: hooks = [(-1, dots(0) + pads.chain('h0') + w0 + hooks[2][1] + hooks[3][1][2:]), (-2, [x.replace('v_mov_b32 v126, 1', 's_nop 0') for x in h1] + pads.chain('h1')), hooks[-1]]
        if ENV('XSL'):
            xs = [int(x) for x in ENV('XSL').split(',')]
            hooks[1] = (hooks[1][0], hooks[1][1] + [f's_sleep {xs[0]}'])
            hooks[2] = (hooks[2][0], hooks[2][1] + [f's_sleep {xs[1]}'])
    assert ot or not DS
    big_loop(a, kind, N, S, STAGE, 6, VB, VA, reads, mf, variants=None if DS else {'a': mfv(0), 'b': mfv(1)}, select=select, post=post, mid=mid, hooks=hooks,
             ot=own if ot else None, halo=hal if ot else None)
    PR = 32
    CS = 48
    CV = 64
    MS = 66
    RK = 76
    M4 = 84
    R4 = 104
    VV = [4 if XD else 240, 224]
    for b in range(5):
        a.emit(f'ds_read2_b32 v[{MS+2*b}:{MS+2*b+1}], v{VS1} offset0:{16*b} offset1:{160+16*b}')
    for p in range(2):
        a.emit(f'ds_read2_b32 v[{RK+2*p}:{RK+2*p+1}], v{VKA} offset0:{32*p} offset1:{32*p+16}')
        a.emit(f'ds_read2_b32 v[{RK+4+2*p}:{RK+5+2*p}], v{VKB} offset0:{32*p} offset1:{32*p+16}')
    for c in range(3):
        a.emit(f'ds_write_b128 v{VXW}, v[{HACC+4*c}:{HACC+4*c+3}] offset:{2048*c}')
    a.emit(f's_cmp_eq_u32 s{S_WM}, 1')
    a.emit(f's_cbranch_scc1 L_{kind}_nop3')
    for t in range(2, 6):
        a.emit(f'ds_write_b128 v{VXW}, v[{acc(t,3)}:{acc(t,3)+3}] offset:{6144+1024*t}')
    a.label(f'L_{kind}_nop3')
    for b in range(5):
        a.emit(f'ds_read_b128 v[{M4+4*b}:{M4+4*b+3}], v{VS4} offset:{64*b}')
        a.emit(f'ds_read_b128 v[{R4+4*b}:{R4+4*b+3}], v{VS4} offset:{640+64*b}')
    a.emit('s_waitcnt lgkmcnt(10)')
    a.emit('s_barrier')
    for t in range(4):
        a.emit(f'ds_read_b128 v[{CS+4*t}:{CS+4*t+3}], v{VCO if t&1 else VCE} offset:{1024*t}')
    for t in range(2):
        a.emit(f'ds_read_b32 v{CV+t}, v{VVO if t else VVE} offset:{4096+1024*t}')
    for t in range(4):
        a.emit(f'ds_read_b128 v[{PR+4*t}:{PR+4*t+3}], v{VPO if t&1 else VPE} offset:{2048+1024*t}')
    sc = 32 ** -0.5 * 1.4426950408889634
    for b in range(4):
        a.emit(f'v_mul_f32 v{MS+2*b+3}, {f2u(sc):#x}, v{MS+2*b+3}')
    for b in range(4):
        a.emit(f'v_mul_f32 v{RK+b}, v{RK+b}, v{MS+2*b+3}')
        a.emit(f'v_mul_f32 v{RK+4+b}, v{RK+4+b}, v{MS+2*b+3}')
    a.emit('s_waitcnt lgkmcnt(6)')
    def qk(x, y, cs, b, d):
        m = f'v[{MS+2*b}:{MS+2*b+1}]'
        for (z, c) in ((x, cs), (y, cs + 4)):
            for h in range(2):
                a.emit(f'v_pk_fma_f32 v[{z+2*h}:{z+2*h+1}], v[{c+2*h}:{c+2*h+1}], {m}, v[{z+2*h}:{z+2*h+1}] op_sel:[0,0,0] op_sel_hi:[1,0,1] neg_lo:[0,1,0] neg_hi:[0,1,0]')
        a.emit(f'v_cvt_pk_bf16_f32 v{d}, v{x}, v{x+1}')
        a.emit(f'v_cvt_pk_bf16_f32 v{d+1}, v{x+2}, v{x+3}')
        a.emit(f'v_cvt_pk_bf16_f32 v{d+2}, v{y}, v{y+1}')
        a.emit(f'v_cvt_pk_bf16_f32 v{d+3}, v{y+2}, v{y+3}')
    Q = lambda b: acc(0, b); Kf = lambda b: acc(2, b) if b >= 0 else PR
    Sc = lambda b: acc(1, b); Sp = lambda b: acc(3, b)
    for b in range(4):
        qk(acc(0, b), acc(1, b), CS, b + 1, Q(b))
        qk(acc(2, b), acc(3, b), CS + 8, b + 1, Kf(b))
        if b == 3:
            a.emit('s_waitcnt lgkmcnt(0)')
            qk(PR, PR + 4, CS + 8, 0, PR)
        if b >= 1:
            a.emit(mfma(Sc(b - 1), Kf(b - 1), Q(b - 1), '0'))
            if b >= 2: a.emit(mfma(Sp(b - 1), Kf(b - 2), Q(b - 1), '0'))
    a.emit(mfma(Sc(3), Kf(3), Q(3), '0'))
    a.emit(mfma(Sp(3), Kf(2), Q(3), '0'))
    a.emit(mfma(Sp(0), Kf(-1), Q(0), '0'))
    def vconv(x, t, b):
        cv = f'v[{CV}:{CV+1}]'
        for h in range(2):
            a.emit(f'v_pk_fma_f32 v[{x+2*h}:{x+2*h+1}], v[{M4+4*b+2*h}:{M4+4*b+2*h+1}], {cv}, v[{x+2*h}:{x+2*h+1}] op_sel:[0,{t},0] op_sel_hi:[1,{t},1] neg_lo:[1,0,0] neg_hi:[1,0,0]')
        for h in range(2):
            a.emit(f'v_pk_mul_f32 v[{x+2*h}:{x+2*h+1}], v[{x+2*h}:{x+2*h+1}], v[{R4+4*b+2*h}:{R4+4*b+2*h+1}]')
        for h in range(2):
            a.emit(f'v_cvt_pk_bf16_f32 v{VV[t]+2*b+h}, v{x+2*h}, v{x+2*h+1}')
    for t in range(2):
        vconv(PR + 8 + 4 * t, t, 0)
        for b in range(4): vconv(acc(4 + t, b), t, b + 1)
    T = lambda b: 32 + 4 * b
    odd = f's[{M_ODD}:{M_ODD+1}]'
    for b in (1, 2, 3, 0):
        a.emit(f'v_cndmask_b32 v{Sc(b)}, v{Sc(b)}, v{Sc(b)+1}, {odd}')
        a.emit(f'v_cndmask_b32 v{Sp(b)}, v{Sp(b)}, v{Sp(b)+1}, {odd}')
        a.emit(f'v_cndmask_b32 v{Sc(b)+2}, v{Sc(b)+2}, v{Sc(b)+3}, {odd}')
        a.emit(f'v_cndmask_b32 v{Sp(b)+2}, v{Sp(b)+2}, v{Sp(b)+3}, {odd}')
        a.emit(f'v_cndmask_b32 v{T(b)}, v{Sc(b)}, v{Sp(b)}, s[{M_UPA}:{M_UPA+1}]')
        a.emit(f'v_cndmask_b32 v{T(b)+1}, v{Sc(b)+2}, v{Sp(b)+2}, s[{M_UPB}:{M_UPB+1}]')
        a.emit(f'v_mul_f32 v{T(b)}, v{T(b)}, v{RK+b}')
        a.emit(f'v_mul_f32 v{T(b)+1}, v{T(b)+1}, v{RK+4+b}')
    a.emit(f'v_mov_b32 v48, {f2u(-1e9 * 1.4426950408889634):#x}')
    a.emit(f'v_cndmask_b32 v{T(0)}, v{T(0)}, v48, s[{M_FA}:{M_FA+1}]')
    a.emit(f'v_cndmask_b32 v{T(0)+1}, v{T(0)+1}, v48, s[{M_FB}:{M_FB+1}]')
    for b in range(4): a.emit(f'v_max_f32 v{T(b)+2}, v{T(b)}, v{T(b)+1}')
    for op in ('32', '16'):
        for b in range(4): a.emit(f'v_mov_b32 v{T(b)+3}, v{T(b)+2}')
        for b in range(4): a.emit(f'v_permlane{op}_swap_b32 v{T(b)+2}, v{T(b)+3}')
        for b in range(4): a.emit(f'v_max_f32 v{T(b)+2}, v{T(b)+2}, v{T(b)+3}')
    for b in range(4):
        a.emit(f'v_sub_f32 v{T(b)}, v{T(b)}, v{T(b)+2}')
        a.emit(f'v_sub_f32 v{T(b)+1}, v{T(b)+1}, v{T(b)+2}')
    for b in range(4):
        a.emit(f'v_exp_f32 v{T(b)}, v{T(b)}')
        a.emit(f'v_exp_f32 v{T(b)+1}, v{T(b)+1}')
    P = lambda b: acc(0, b)
    for b in range(4):
        a.emit(f'v_cvt_pk_bf16_f32 v{T(b)}, v{T(b)}, v{T(b)}')
        a.emit(f'v_cvt_pk_bf16_f32 v{T(b)+1}, v{T(b)+1}, v{T(b)+1}')
        a.emit(f'v_and_b32 v{P(b)}, v{T(b)}, v{MAP}')
        a.emit(f'v_and_b32 v{P(b)+1}, v{T(b)+1}, v{MBP}')
        a.emit(f'v_and_b32 v{P(b)+2}, v{T(b)}, v{MAC}')
        a.emit(f'v_and_b32 v{P(b)+3}, v{T(b)+1}, v{MBC}')
        if b >= 1:
            q = b - 1
            a.emit(mfma(acc(1, q), ONES, P(q), '0'))
            a.emit(mfma(acc(4, q), VV[0] + 2 * q, P(q), '0'))
            a.emit(mfma(acc(5, q), VV[1] + 2 * q, P(q), '0'))
    q = 3
    a.emit(mfma(acc(1, q), ONES, P(q), '0'))
    a.emit(mfma(acc(4, q), VV[0] + 2 * q, P(q), '0'))
    a.emit(mfma(acc(5, q), VV[1] + 2 * q, P(q), '0'))
    if ENV('ES'): stamp(a, 1)
    no = 'wo' in NS
    if no:
        a.emit(f's_cmp_eq_u32 s{S_WM}, 1')
        a.emit(f's_cbranch_scc1 L_{kind}_out1')
    for w in range(2 if no else 1):
        if w: a.label(f'L_{kind}_out1')
        for b in range(4):
            r = acc(1, b); d = 48 + 4 * b
            a.emit(f'v_rcp_f32 v{r}, v{r}')
            a.emit(f's_mov_b32 s3, {b * 16 * (7168 if OH else 2048)}')
            for t in range(2):
                x = acc(4 + t, b)
                for h in range(2):
                    a.emit(f'v_pk_mul_f32 v[{x+2*h}:{x+2*h+1}], v[{x+2*h}:{x+2*h+1}], v[{r}:{r+1}] op_sel_hi:[1,0]')
            for t in range(2):
                x = acc(4 + t, b)
                for h in range(2):
                    a.emit(f'v_cvt_pk_bf16_f32 v{d+2*(t^w)+h}, v{x+2*h}, v{x+2*h+1}')
            if not no:
                a.emit('s_nop 1')
                a.emit(f'v_permlane16_swap_b32 v{d}, v{d+2}')
                a.emit(f'v_permlane16_swap_b32 v{d+1}, v{d+3}')
            a.emit(f'buffer_store_dwordx4 v[{d}:{d+3}], v{VO}, s[{SO}:{SO+3}], s3 offen{stf(kind)}')
        if no and not w: a.emit(f's_branch L_{kind}_out2')
    if no: a.label(f'L_{kind}_out2')
    compute_end(a, kind)
    a.label(f'L_{kind}_loader')
    L = Loader(a, kind, K, lda2, ldw2, [0, 2048, 4096], 128, S, STAGE, halo=XH, rot=int(ENV('ROT_QKV', '0')))
    L.skip = DS
    L.setup()
    a.emit('s_waitcnt lgkmcnt(0)')
    srd_xs(a, SX); srd(a, SW, 'wqkv', 0, 1024 * 6144)
    import sides
    fill = []
    if ENV('DX', '2') == '1' and ENV('CLP', 'e') == 'l':
        a.emit('s_and_b32 s3, s2, 3')
        a.emit(f's_and_b32 s4, s{S_CU}, 3')
        a.emit('s_lshl2_add_u32 s3, s3, s4')
        a.emit('s_bfe_u32 s4, s2, 0x10002')
        a.emit(f's_lshr_b32 s5, s{S_CU}, 2')
        a.emit('s_lshl1_add_u32 s4, s5, s4')
        a.emit('s_lshl4_add_u32 s3, s3, s4')
        a.emit(f's_and_b32 s4, s{S_WV}, 3')
        a.emit('s_lshl2_add_u32 s3, s3, s4')
        a.emit('s_lshl_b32 s3, s3, 12')
        srd(a, SB, 'ws', WS_XP, 0 if 'fill0' in DBG else 4096)
        if 'fillfl' in DBG:
            srd(a, SB, 'ws0', WS_FL + MB, 4096)
            a.emit('s_and_b32 s3, s3, 0xfffff')
        a.emit(f's_add_u32 s{SB}, s{SB}, s3')
        a.emit(f's_addc_u32 s{SB+1}, s{SB+1}, 0')
        FW_ = int(ENV('FILLW', '2'))
        a.emit(f'v_mul_u32_u24 v29, {4 * FW_}, v1')
        for i in range(4): a.emit(f'v_mov_b32 v{24+i}, -1')
        fill = [f'buffer_store_dword{"x" + str(FW_)} v[24:{23 + FW_}], v29, s[{SB}:{SB+3}], 0 offen' + ('' if 'fillwb' in DBG else ' sc1'), f'v_add_u32 v29, {256 * FW_}, v29']
        assert sides.STV[3] == 0
    a.emit(f's_cmp_lg_u32 s{S_LAYER}, 0')
    a.emit(f's_cbranch_scc1 L_{kind}_ld1')
    post = list(sides.stouch_post(a, kind)) + fill
    SPF = [int(x) for x in ENV('SPF', '0,0,2').split(',')]
    def spf():
        hs = range(SPF[2])
        return ([f's_buffer_load_dword s84, s[{SX}:{SX+3}], s85 offset:{2048*r+64*h}' for r in range(2) for h in hs] +
                [f's_buffer_load_dword s84, s[{SW}:{SW+3}], s86 offset:{2048*p+64*h}' for p in range(3) for h in hs] +
                ['s_add_u32 s85, s85, 128', f's_add_u32 s86, s86, {64*ldw2}'])
    def spf_start():
        if not SPF[1]: return
        a.emit(f's_and_b32 s3, s{S_WV}, 3')
        a.emit(f's_lshl2_add_u32 s3, s{S_CU}, s3')
        a.emit('s_and_b32 s4, s2, 1')
        a.emit('s_bfe_u32 s5, s2, 0x20001')
        a.emit('s_lshl2_add_u32 s85, s4, s5')
        a.emit('s_lshl_b32 s85, s85, 7')
        a.emit('s_add_u32 s85, s85, s3')
        a.emit('s_lshl_b32 s85, s85, 12')
        a.emit(f's_add_u32 s85, s85, {128*SPF[0]}')
        a.emit('s_lshl_b32 s4, s4, 5')
        a.emit(f's_add_u32 s4, s4, s{S_CU}')
        a.emit(f's_add_u32 s4, s4, {64*SPF[0]}')
        a.emit(f's_mul_i32 s86, s4, {ldw2}')
        a.emit('s_and_b32 s3, s3, 3')
        a.emit('s_lshl2_add_u32 s3, s5, s3')
        a.emit('s_lshl_b32 s3, s3, 7')
        a.emit('s_add_u32 s86, s86, s3')
        for i in range(SPF[0], SPF[1]):
            for x in spf(): a.emit(x)
    if SPF[1]: post += spf()
    VPF = [int(x) for x in ENV('VPF', '0,0,1').split(',')]
    def vpf():
        k0, nk, hs = VPF
        if not nk: return 0
        a.emit(f's_and_b32 s3, s{S_WV}, 3')
        a.emit(f's_lshl2_add_u32 s3, s{S_CU}, s3')
        a.emit('s_and_b32 s4, s2, 1')
        a.emit('s_bfe_u32 s5, s2, 0x20001')
        a.emit('s_lshl2_add_u32 s85, s4, s5')
        a.emit('s_lshl_b32 s85, s85, 7')
        a.emit('s_add_u32 s85, s85, s3')
        a.emit('s_lshl_b32 s85, s85, 12')
        a.emit('s_lshl_b32 s4, s4, 7')
        a.emit('s_add_u32 s4, s4, s3')
        a.emit(f's_add_u32 s4, s4, {64*k0}')
        a.emit(f's_mul_i32 s86, s4, {ldw2}')
        a.emit('s_lshl_b32 s5, s5, 9')
        a.emit('s_add_u32 s86, s86, s5')
        a.emit('v_and_b32 v2, 15, v1')
        a.emit(f'v_min_u32 v3, {nk-1}, v2')
        a.emit('v_and_b32 v22, 16, v1')
        a.emit('v_add_lshl_u32 v22, v22, v3, 7')
        a.emit('v_min_u32 v2, 11, v2')
        a.emit('v_lshrrev_b32 v3, 2, v2')
        a.emit('v_and_b32 v2, 3, v2')
        a.emit('v_lshl_add_u32 v2, v3, 4, v2')
        a.emit('v_lshrrev_b32 v3, 4, v1')
        a.emit(f'v_min_u32 v3, {nk//4-1}, v3')
        a.emit(f'v_mul_u32_u24 v3, {256*ldw2}, v3')
        a.emit('v_lshl_add_u32 v23, v2, 7, v3')
        for h in range(hs):
            a.emit(f'buffer_load_dword v24, v23, s[{SW}:{SW+3}], s86 offen offset:{64*h}')
            a.emit(f'buffer_load_dword v25, v22, s[{SX}:{SX+3}], s85 offen offset:{128*k0+64*h}')
        return 2 * hs
    TG_ = int(ENV('TLBG', '0'))
    if TG_:
        srd(a, SO, 'ws0', 0, 256 * MB)
        a.emit(f's_and_b32 s3, s{S_WV}, 3')
        a.emit(f's_lshl2_add_u32 s3, s{S_CU}, s3')
        a.emit(f's_lshl_b32 s86, s3, {TG_}')
        tl = [f's_buffer_load_dword s84, s[{SO}:{SO+3}], s86', f's_add_u32 s86, s86, {128 << TG_}']
        if TG_ < 21: post += tl
    extra = tail_parks('wo', SP, lambda b: srd(b, SP, 'wo', 0, 2 * MB))
    sch0 = [int(c) for c in ENV('TSO0', '00000')]
    extra0 = tail_parks('wo', SP, lambda b: srd(b, SP, 'wo', 0, 2 * MB), sch0 + [sum(TSCH['wo']) - sum(sch0)])
    npk = 2 * sum(TSCH['wo']) if XD else 0
    def start():
        sides.cls_touch(a)
        if TG_:
            for x in tl: a.emit(x)
            a.emit(f's_and_b32 s3, s{S_WV}, 3')
            a.emit(f's_lshl2_add_u32 s3, s{S_CU}, s3')
            for w, sz in (('out', 4 * MB), ('wo', 2 * MB), ('w1', 7 * MB), ('b1', 4096), ('b2', 2048)):
                srd(a, SC, w, 0, sz)
                a.emit(f's_mul_i32 s4, s3, {sz // 128}')
                a.emit(f's_buffer_load_dword s84, s[{SC}:{SC+3}], s4')
        if ENV('DX', '2') != '1' or ENV('CLP', 'e') != 's': return 0
        srd(a, ST, 'ws0', WS_XP, LSTR + 4 * MB)
        a.emit('s_and_b32 s3, s2, 3')
        a.emit(f's_and_b32 s4, s{S_CU}, 3')
        a.emit('s_lshl2_add_u32 s3, s3, s4')
        a.emit('s_bfe_u32 s4, s2, 0x10002')
        a.emit(f's_lshr_b32 s5, s{S_CU}, 2')
        a.emit('s_lshl1_add_u32 s4, s5, s4')
        a.emit('s_lshl4_add_u32 s3, s3, s4')
        a.emit(f's_and_b32 s4, s{S_WV}, 3')
        a.emit('s_lshl2_add_u32 s3, s3, s4')
        a.emit('s_lshl_b32 s3, s3, 12')
        a.emit(f's_add_u32 s4, s3, {LSTR}')
        a.emit('v_lshlrev_b32 v2, 4, v1')
        for i in range(4): a.emit(f'v_mov_b32 v{32+i}, -1')
        for i in range(8): a.emit(f'buffer_store_dwordx4 v[32:35], v2, s[{ST}:{ST+3}], s{3+(i>>2)} offen offset:{1024*(i&3)} sc1')
        return 8
    final0 = None
    TL0 = int(ENV('TL0', '1' if DS else '0'))
    if DS:
        STQ0 = int(ENV('STQ0', '14'))
        assert HK[-1] < STQ0 <= 13 + TL0
        def start():
            nv = vpf()
            if sides.CE:
                assert sum(sides.CE.values()) == 8
                sides.cs_setup(a, SB, 95, 26)
                for x in sides.cs_at(-1): a.emit(x)
                nv += sides.CE.get(-1, 0)
            spf_start()
            sides.cls_touch(a)
            srd(a, ST, 'ws0', WS_ST0, 16 * 16384)
            stats4_setup(a, True)
            if D2:
                dbg_off(a, 20)
                a.emit(f's_and_b32 s{SC+1}, s{SC+1}, 0xffff')
                a.emit(f's_mov_b32 s{SC+2}, 256')
                a.emit(f's_mov_b32 s{SC+3}, 0x00020000')
            for x in pads.chain(-1): a.emit(x)
            return nv
        pl2 = f'buffer_load_dword v21, v20, s[{SC}:{SC+3}], 0 offen sc1'
        ck2 = ['s_mov_b32 s5, 0x100000', 'L_attn_dchk:', 'v_cmp_ne_u32 vcc, 0x01010101, v21', 's_cbranch_vccz L_attn_dok', 's_sub_u32 s5, s5, 1\n  ' + pl2,
               's_waitcnt vmcnt(0)', 's_cbranch_scc0 L_attn_dchk', 'L_attn_dok:'] if D2 else []
        extra0 = lambda i: (ck2 + stats4_loads(32, True) if i == STQ0 else [pl2] if D2 and i == STQ0 - 3 else []) + sides.cs_at(i) + pads.chain(i)
        def chk0():
            a.emit('v_cmp_u_f32 vcc, v32, v33')
            a.emit('v_cmp_u_f32 s[4:5], v48, v49')
            a.emit('s_or_b64 s[4:5], vcc, s[4:5]')
            a.emit('s_cbranch_scc0 L_attn_sok')
            a.emit(f's_sub_u32 s{S_CNT}, s{S_CNT}, 1')
            a.emit('s_cbranch_scc1 L_attn_sok')
            for x in stats4_loads(32, True): a.emit(x + (' sc1' if x.startswith('buf') else ''))
            a.emit('s_waitcnt vmcnt(0)')
            a.emit('s_branch L_attn_schk')
            a.label('L_attn_sok')
        def final0():
            a.emit(f's_mov_b32 s{S_CNT}, 0x4000')
            a.emit(f"s_waitcnt vmcnt({side(Asm(), 0, 'issue') + sum(n for e, n in sides.CE.items() if e >= STQ0)})")
            a.label('L_attn_schk')
            stats4_store(a, 32, LST, True, chk0 if D2 else None)
            a.emit('s_waitcnt lgkmcnt(0)')
    L.run('0', tail_issue=lambda: side(a, 0, 'issue'), ntail_vm=side(Asm(), 0, 'issue'), post=post, start=start, extra=extra0, tail_late=TL0, final=final0, exfirst=True)
    for i in (16,) if DS else (16, 17):
        if XD:
            for x in extra0(i): a.emit(x)
        a.emit('s_barrier')
    if XD:
        for x in extra0(18): a.emit(x)
    if ONE:
        a.emit(f's_branch L_{kind}_ldend')
    else:
        side(a, 0, 'finish')
        a.emit('s_endpgm')
    a.label(f'L_{kind}_ld1')
    if ',' in L.kord():
        L.ktable(int(L.kord().split(',')[1]))
        L.ot = int(ot); L.hx = HX - XH
        for x in ([] if ot else L.knext()): a.emit(x)
    srd(a, ST, 'ws0', WS_ST2, 16 * 16384)
    n1 = side(Asm(), 1, 'issue')
    def tail1():
        stats_loads(a, 32, True)
        side(a, 1, 'issue')
    def final1():
        a.emit(f's_waitcnt vmcnt({n1 + npk})')
        stats_reduce_store(a, 32, LST)
        a.emit('s_waitcnt lgkmcnt(0)')
    if T4:
        stats4_setup(a, True)
        TL1 = int(ENV('TL1', '0'))
        def final4():
            a.emit(f"s_waitcnt vmcnt({n1 if int(ENV('STQ', '14')) < 13 + TL1 < 15 else 0})")
            stats4_store(a, 32, LST, True, nan_chk(a, 'L_attn_t', True) if SF else None)
            a.emit('s_waitcnt lgkmcnt(0)')
        if ZD:
            srd(a, SC, 'ws0', WS_FL, FLS)
            a.emit('v_and_b32 v30, 3, v1')
            a.emit('v_lshlrev_b32 v30, 6, v30')
            a.emit(f's_mov_b32 s{S_CNT}, 0x100000')
        def zbar():
            xpoll(a, 'L_attn_x', SC, S_Q, 30, 12)
            a.emit('s_barrier')
        def pref1():
            if ZD == 'b': zbar()
            a.emit('s_waitcnt vmcnt(0)')
        if ZD == 'a': zbar()
        L.run('1', tail_issue=lambda: side(a, 1, 'issue'), ntail_vm=n1, tail_late=TL1, final=final4, extra=lambda i: stats4_loads(32, True) if i == int(ENV('STQ', '14')) else [],
              post=fill, dep=lambda pf: dep_wait(a, kind, halo=True, postf=pf, pref=pref1 if ot else None))
    else: L.run('1', tail_issue=tail1, ntail_vm=16 + n1, final=final1, extra=extra, post=fill, dep=(lambda pf: dep_wait(a, kind, halo=True, postf=pf)) if MEGA else None)
    a.emit('s_barrier')
    if not MEGA: side(a, 1, 'finish')
    a.label(f'L_{kind}_ldend')
    loader_end(a, kind, check=False)
    a.label(end)
    a.emit('s_endpgm')
    loader_first(a, kind)
    a(KD.format(name=f'{kind}l0_kernel'))
    if not MEGA:
        stub(a, f'{kind}l1_kernel', body, 1, tsidx + 4, False)
        a(KD.format(name=f'{kind}l1_kernel'))
    a.label(f'L_{kind}_c1')
    return LST + 1280
```

```python
import sys, os, struct
sys.path.insert(0, os.path.join(os.path.dirname(os.path.abspath(__file__)), '..'))
from asmlib import Asm, check_offsets
MB = 1 << 20
WSB = int(os.environ.get('WSB', '0')) * MB
WS_O   = WSB
WS_X1  = WSB + 4 * MB
WS_H   = WSB + 8 * MB
WS_ST  = WSB + 23 * MB
WS_CS  = WSB + 23 * MB + 512 * 1024
WS_ST0 = WSB + 23 * MB + 768 * 1024
D2 = os.environ.get('DS', '2') == '2'
DS = os.environ.get('DS', '2') in '12'
WS_TS  = 60 * MB
MEGA = os.environ.get('MEGA', '2') in ('1', '2')
ONE = os.environ.get('MEGA', '2') == '2'
LSTR = 64 * MB
WS_ST2 = WS_ST + 256 * 1024 if MEGA else WS_ST
WS_FL = WSB + 40 * MB
FLS = 524288
REP = int(os.environ.get('REP', '16'))
WS_XP = WSB + 24 * MB
WS_X2 = WSB + 32 * MB
XPAD = int(os.environ.get('XPAD', '128')) if MEGA else 0
f2u = lambda f: struct.unpack('<I', struct.pack('<f', f))[0]
ENV = os.environ.get
TS = ENV('TS', '')
TE = ENV('TE', '')
DBG = ENV('DBG', '').split(',')
EARLY = int(ENV('EARLY', '0')) if MEGA and ENV('SPLIT', '0') == '0' else 0
def stf(kind): return (' ' + ENV('WTF', 'sc1')) if kind in ENV('WT', 'attn,wo,w2,w1').split(',') else ''

KA = {'A_x': 0, 'wqkv': 8, 'wo': 16, 'w1': 32, 'b1': 40, 'w2': 48, 'b2': 56, 'out': 64, 'ws': 80}
P_IN = 16
P_OUT = 32; P_WS = 34
P_XS = 12
PTR = {'A_x': 16, 'wqkv': 18, 'wo': 20, 'w1': 24, 'b1': 26, 'w2': 28, 'b2': 30, 'out': 32, 'ws': 34, 'xs': 12, 'ws0': 22}
SX, SW, SO, SR, SB, ST, SP, SC = 36, 40, 44, 48, 52, 56, 60, 64
S_MT, S_NT, S_WV, S_WM, S_WN = 68, 69, 70, 71, 72
S_KX, S_KW, S_SLOT, S_XD, S_WD, S_HD, S_CNT = 73, 74, 75, 76, 77, 78, 79
S_LAYER = 96; S_TSI = 97; S_T = 98; S_CU = 99; S_XG = 100; S_KT = 101

KD = '''.section .rodata,"a"
.p2align 6
.amdhsa_kernel {name}
  .amdhsa_next_free_vgpr 256
  .amdhsa_next_free_sgpr 102
  .amdhsa_accum_offset 256
  .amdhsa_group_segment_fixed_size 0
  .amdhsa_kernarg_size 88
  .amdhsa_user_sgpr_count 2
  .amdhsa_user_sgpr_kernarg_segment_ptr 1
  .amdhsa_system_sgpr_workgroup_id_x 1
  .amdhsa_float_denorm_mode_32 3
  .amdhsa_float_denorm_mode_16_64 3
.end_amdhsa_kernel
.text
'''

def srd(a, sd, which, off, size):
    p = PTR[which]
    if off:
        a.emit(f's_add_u32 s{sd}, s{p}, {off}')
        a.emit(f's_addc_u32 s{sd+1}, s{p+1}, 0')
        a.emit(f's_and_b32 s{sd+1}, s{sd+1}, 0xffff')
    else:
        a.emit(f's_mov_b32 s{sd}, s{p}')
        a.emit(f's_and_b32 s{sd+1}, s{p+1}, 0xffff')
    a.emit(f's_mov_b32 s{sd+2}, {size}')
    a.emit(f's_mov_b32 s{sd+3}, 0x00020000')

def xpitch(a, sd, inv=False):
    a.emit(f's_cmp_eq_u32 s{S_LAYER}, {0 if inv else 1}')
    a.emit(f's_cselect_b32 s{sd}, {XPAD}, 0')
    a.emit(f's_add_u32 s{sd}, s{sd}, 2048')

def srd_xs(a, sd):
    srd(a, sd, 'xs', 0, 4 * MB)
    xpitch(a, sd + 2)
    a.emit(f's_lshl_b32 s{sd+2}, s{sd+2}, 11')

def stub(a, name, body, layer, tsidx, first):
    a(f'.text\n.globl {name}\n.p2align 8\n.type {name},@function\n{name}:')
    if TS:
        stamp(a, 0, nowait=True)
    if TE: a.emit('s_memrealtime s[94:95]')
    for x in ENV('PERM', '').split():
        a.emit(f"s_bitcmp1_b32 s2, {x.split(':')[0]}")
        a.emit(f"s_cselect_b32 s3, {x.split(':')[1]}, 0")
        a.emit('s_xor_b32 s2, s2, s3')
    a.emit('s_load_dwordx4 s[16:19], s[0:1], 0')
    a.emit('s_load_dwordx2 s[20:21], s[0:1], 16')
    a.emit('s_load_dwordx2 s[22:23], s[0:1], 80')
    a.emit('s_load_dwordx8 s[24:31], s[0:1], 32')
    a.emit('s_load_dwordx2 s[32:33], s[0:1], 64')
    a.emit('s_load_dwordx2 s[34:35], s[0:1], 80')
    a.emit(f's_load_dwordx2 s[12:13], s[0:1], {0 if layer == 0 else 64}')
    if DS: a.emit(f's_load_dwordx2 s[{SC}:{SC+1}], s[0:1], 72')
    a.emit(f's_mov_b32 s{S_LAYER}, {layer}')
    if ENV('PADS', '0') == '1': a.emit('s_mov_b64 exec, -1')
    a.emit(f's_mov_b32 s{S_TSI}, {tsidx}')
    if not first:
        a.emit(f's_branch {body}')

def stamp(a, n, nowait=False):
    if not TS: return
    a.emit(f's_memrealtime s[{80+4*n}:{81+4*n}]')
    a.emit(f's_memtime s[{82+4*n}:{83+4*n}]')
    if not nowait: a.emit('s_waitcnt lgkmcnt(0)')

def stamps_out(a, tag):
    if not TS: return
    if not MEGA: a.emit('s_waitcnt vmcnt(0)')
    stamp(a, 3)
    if MEGA and tag == 'w1':
        for i in range(16): a.emit(f'v_writelane_b32 v31, s{80+i}, {i}')
        return
    srd(a, SP, 'ws0', WS_TS, 1 << 20)
    a.emit('s_lshl_b32 s4, s2, 6')
    a.emit(f's_lshl_b32 s5, s{S_TSI}, 16')
    a.emit('s_add_u32 s4, s4, s5')
    a.emit('v_mov_b32 v1, s4')
    for i in range(16): a.emit(f'v_mov_b32 v{4+i}, s{80+i}')
    a.emit('v_cmp_eq_u32 vcc, 0, v0')
    a.emit('s_and_saveexec_b64 s[6:7], vcc')
    a.emit(f's_cbranch_execz L_tsskip_{tag}')
    for j in range(4):
        a.emit(f'buffer_store_dwordx4 v[{4+4*j}:{7+4*j}], v1, s[{SP}:{SP+3}], 0 offen offset:{16*j}' + (' sc1' if ENV('DIAG') else ''))
    if MEGA and tag == 'w2':
        a.emit('s_mov_b64 exec, 0xffff')
        a.emit('s_sub_u32 s4, s4, 0x10000')
        a.emit('v_lshlrev_b32 v1, 2, v0')
        a.emit(f'buffer_store_dword v31, v1, s[{SP}:{SP+3}], s4 offen' + (' sc1' if ENV('DIAG') else ''))
    a.label(f'L_tsskip_{tag}')
    a.emit('s_mov_b64 exec, -1')

SPX = ENV('SPX', '1') == '1'
OT = ENV('OT', 'w1,w2,attn').split(',')
S_T0 = 91
OHB = 114688; OBIA = [10, 24, 124, 126]
NV = int(ENV('NV', '0'))
EF = int(ENV('EF', '0'))
NS = ENV('NS', 'wo,w1,w2').split(',')
NSR = ENV('NSR', '1') == '1'
SKL = ENV('SKL', '1') == '1'
SF = ENV('SF', '0') == '1'
WD = ENV('WD', 'c')
ZD = ENV('ZD', 'a')
OH = int(ENV('OH', '1'))
OHO = (0, 51200, 81920)[OH]
HALT = 33 * MB
S_MD = 92; VMD = 27
LF2 = int(ENV('LF2', '2'))
EX = int(ENV('EX', '14'))
LSTK = ENV('LSTK', 'w2')
LREG = [52, 54, 56, 58] if LSTK == 'w2' else [36, 38, 48, 50] if LSTK == 'wo' else [80, 82, 48, 50]
def lstamp(a, n, dep=False):
    if dep and (ENV('LST') == 'x' or LSTK != 'w2'): return
    if TS: a.emit(f's_memrealtime s[{LREG[n]}:{LREG[n]+1}]')

def lstamps_out(a, tag):
    if not TS: return
    a.emit(f"s_cmp_lg_u32 s{S_WV}, {ENV('PW_' + tag.upper(), '4')}")
    a.emit(f's_cbranch_scc1 L_ltsskip_{tag}')
    a.emit('s_waitcnt lgkmcnt(0)')
    srd(a, SP, 'ws0', WS_TS + 16384, 1 << 20)
    a.emit('s_lshl_b32 s4, s2, 6')
    a.emit(f's_lshl_b32 s5, s{S_TSI}, 16')
    a.emit('s_add_u32 s4, s4, s5')
    for i in range(8): a.emit(f'v_writelane_b32 v20, s{LREG[i>>1]+(i&1)}, {i}')
    a.emit('v_lshlrev_b32 v21, 2, v1')
    a.emit('s_mov_b64 exec, 0xff')
    a.emit(f'buffer_store_dword v20, v21, s[{SP}:{SP+3}], s4 offen')
    a.emit('s_mov_b64 exec, -1')
    a.label(f'L_ltsskip_{tag}')

def tile_map(a, LM, endlab, pair=False):
    if endlab:
        a.emit('s_cmp_ge_u32 s2, 256')
        a.emit(f's_cbranch_scc1 {endlab}')
        a.emit('v_lshrrev_b32 v2, 6, v0')
        a.emit('v_and_b32 v1, 63, v0')
        a.emit(f'v_readfirstlane_b32 s{S_WV}, v2')
    a.emit('s_and_b32 s3, s2, 7')
    if endlab: a.emit(f's_lshr_b32 s{S_CU}, s2, 3')
    if LM == 2 and ENV('MAP2', '0') == '1':
        a.emit('s_lshl_b32 s5, s3, 1')
        a.emit('s_lshr_b32 s6, s3, 1')
        a.emit('s_and_b32 s5, s5, 2')
        a.emit('s_and_b32 s6, s6, 1')
        a.emit('s_or_b32 s5, s5, s6')
    else: a.emit(f's_and_b32 s5, s3, {(1 << (4 - LM)) - 1}')
    a.emit(f's_lshl_b32 s5, s5, {LM}')
    a.emit(f's_and_b32 s6, s{S_CU}, {(1 << LM) - 1}')
    a.emit(f's_add_u32 s{S_MT}, s5, s6')
    a.emit(f's_lshr_b32 s5, s3, {4 - LM}')
    if pair:
        a.emit(f's_lshr_b32 s{S_HD}, s{S_CU}, {LM}')
        a.emit(f's_lshl1_add_u32 s{S_NT}, s{S_HD}, s5')
        return
    a.emit(f's_lshl_b32 s5, s5, {5 - LM}')
    a.emit(f's_lshr_b32 s6, s{S_CU}, {LM}')
    a.emit(f's_add_u32 s{S_NT}, s5, s6')
    if 'smallm' in DBG: a.emit(f's_and_b32 s{S_MT}, s{S_MT}, 1')
    if 'smalln' in DBG: a.emit(f's_and_b32 s{S_NT}, s{S_NT}, 1')

def interleave(a, main, side, lead=1, per=1):
    si = 0
    for i, m in enumerate(main):
        a.emit(m)
        if i + 1 >= lead:
            for _ in range(per):
                if si < len(side): a.emit(side[si]); si += 1
    while si < len(side): a.emit(side[si]); si += 1

PO0, POM = [int(x) for x in ENV('PO', '1,3').split(',')]
KSH = int(ENV('KSH', '0')); LAT = int(ENV('LAT', '0'))
def own_pos(a, sd):
    a.emit(f's_and_b32 s{sd}, s{S_NT}, {POM}')
    a.emit(f's_add_u32 s{sd}, s{sd}, {PO0}')

class Loader:
    VXD = 4; VWD = 8; VXH = 28
    def __init__(self, a, tag, K, lda2, ldw2, panels, colbase, S, STAGE, halo=None, delta=0, rot=None, xblk=False, half=0):
        self.a = a; self.tag = tag; self.K = K; self.lda2 = lda2; self.ldw2 = ldw2; self.panels = panels
        self.colbase = colbase; self.S = S; self.STAGE = STAGE; self.halo = halo; self.delta = delta; self.xblk = xblk; self.rot = rot if rot is not None and rot >= 0 else None
        self.NSTEP = K // 64; self.half = half; self.ot = 0; self.skip = False
        self.per = 4 + 2 * len(panels) + (1 if halo is not None else 0)
    def setup(self):
        a = self.a
        if ENV('PRIO', '0') != '0': a.emit(f"s_setprio {ENV('PRIO')}")
        a.emit(f's_add_u32 s8, s{S_WV}, s{S_NT}')
        a.emit('s_and_b32 s8, s8, 3')
        a.emit(f's_add_u32 s9, s{S_WV}, s{S_MT}')
        a.emit('s_and_b32 s9, s9, 3')
        a.emit(f's_lshl_b32 s{S_XD}, s8, 12')
        a.emit(f's_lshl_b32 s{S_WD}, s9, 11')
        a.emit(f's_add_u32 s{S_WD}, s{S_WD}, 16384')
        a.emit(f's_lshl_b32 s11, s{S_MT}, 7')
        a.emit('v_and_b32 v10, 7, v1')
        if self.xblk: self.xoff_blk(self.lda2)
        else: self.xoff_rows(self.lda2)
        ns = self.tag in NS and not NSR; nr = self.tag in NS and NSR
        wrow(a, 9, ns)
        a.emit(f'v_mul_u32_u24 v3, {self.ldw2}, v3')
        a.emit('v_lshrrev_b32 v2, 3, v1')
        a.emit(f'v_and_b32 v2, {6 if nr else 2}, v2')
        a.emit('v_xor_b32 v2, v2, v10')
        a.emit(f's_mul_i32 s10, s{S_NT}, {self.colbase}')
        if 'noslow' in DBG and self.tag == 'attn':
            a.emit(f's_bitcmp1_b32 0x0808, s{S_NT}')
            a.emit('s_cselect_b32 s3, 512, 0')
            a.emit('s_add_u32 s10, s10, s3')
        if self.colbase & 127: a.emit('s_andn2_b32 s10, s10, 127')
        a.emit('v_add_u32 v3, s10, v3')
        a.emit(f'v_lshl_add_u32 v{self.VWD}, v2, 4, v3')
        if not nr: a.emit('v_xor_b32 v2, 4, v2')
        a.emit(f'v_add_u32 v3, {(4 if ns else 8)*self.ldw2}, v3')
        a.emit(f'v_lshl_add_u32 v{self.VWD+1}, v2, 4, v3')
        if self.half:
            if ns:
                a.emit('v_bfe_u32 v3, v1, 2, 2')
                a.emit('v_lshrrev_b32 v2, 5, v1')
                a.emit('v_lshl_add_u32 v3, v2, 2, v3')
                a.emit('v_and_b32 v2, 16, v1')
                a.emit('s_and_b32 s10, s9, 2')
                a.emit('s_add_u32 s10, s10, s9')
                a.emit('s_lshl_b32 s10, s10, 3')
                a.emit('v_add3_u32 v3, s10, v3, v2')
            else:
                a.emit('v_lshrrev_b32 v3, 2, v1')
                a.emit('s_lshl_b32 s10, s9, 4')
                a.emit('v_add_u32 v3, s10, v3')
            a.emit(f'v_mul_u32_u24 v3, {self.ldw2}, v3')
            if 'w2' in NS: a.emit(f'v_bfe_u32 v2, v1, {4 if nr else 5}, 1')
            else:
                a.emit(f'v_lshrrev_b32 v2, {3 if nr else 4}, v1')
                a.emit('v_and_b32 v2, 2, v2')
            a.emit('v_xor_b32 v2, v2, v1')
            a.emit('v_and_b32 v2, 3, v2')
            a.emit(f's_lshl_b32 s10, s{S_NT}, 6')
            a.emit(f's_add_u32 s10, s10, {self.half}')
            a.emit('v_add_u32 v3, s10, v3')
            a.emit(f'v_lshl_add_u32 v{self.VXH}, v2, 4, v3')
            a.emit(f's_lshl_b32 s{S_HD}, s{S_NT}, 7')
            a.emit(f's_add_u32 s{S_HD}, s{S_HD}, 3072')
        if self.halo is not None:
            a.emit(f's_and_b32 s10, s{S_WV}, 3')
            a.emit(f's_lshl_b32 s{S_HD}, s10, 9')
            a.emit(f's_add_u32 s{S_HD}, s{S_HD}, {self.halo}')
            a.emit('s_lshl_b32 s14, s10, 2')
            a.emit('s_add_u32 s14, s14, s11')
            a.emit('s_sub_u32 s14, s14, 16')
            a.emit('v_lshrrev_b32 v3, 3, v1')
            a.emit('v_add_u32 v3, s14, v3')
            a.emit('v_max_i32 v3, 0, v3')
            a.emit('v_mul_u32_u24 v3, s5, v3')
            a.emit('s_lshl_b32 s14, s10, 1')
            a.emit('v_lshrrev_b32 v2, 4, v1')
            a.emit('v_add_u32 v2, s14, v2')
            a.emit('v_and_b32 v2, 7, v2')
            a.emit('v_xor_b32 v2, v2, v10')
            a.emit(f'v_lshl_add_u32 v{self.VXH}, v2, 4, v3')
            a.emit('s_cmp_eq_u32 s10, 0')
            a.emit('s_cselect_b32 s14, 0xffffff00, -1')
            a.emit('s_mov_b32 s15, 0')
        a.emit(f's_mov_b32 s{S_SLOT}, 0')
        if self.rot is None:
            a.emit(f's_mov_b32 s{S_KX}, 0')
            a.emit(f's_mov_b32 s{S_KW}, 0')
        else:
            if not getattr(self, 'noxg', False): a.emit(f's_add_u32 s{S_XG}, s{S_MT}, s{S_NT}')
            a.emit(f's_mov_b32 s{S_KT}, {0 if EARLY and self.tag == "w2" else -1}')
            ko = int(ENV('KOFF_' + self.tag.upper(), '0'))
            if ko:
                a.emit(f"s_bitcmp1_b32 {ENV('KMSK_' + self.tag.upper(), '0x0808' if self.tag == 'attn' else '0x2aea')}, s{S_NT}")
                a.emit(f's_cselect_b32 s{S_KT}, {ko - 1}, s{S_KT}')
            if self.kord(): self.ktable()
            if self.skip:
                if LAT:
                    a.emit(f's_mul_i32 s3, s{S_MT}, {LAT}')
                    a.emit(f's_add_u32 s3, s3, s{S_NT}')
                    a.emit(f's_and_b32 s{S_T0}, s3, 15')
                elif KSH:
                    a.emit(f's_and_b32 s{S_T0}, s{S_NT}, 3')
                    a.emit(f's_and_b32 s93, s{S_NT}, 12')
                    if KSH == 2:
                        a.emit(f's_and_b32 s3, s{S_MT}, 8')
                        a.emit('s_add_u32 s93, s93, s3')
                else: a.emit(f's_mov_b32 s{S_T0}, s{S_NT}')
                own_pos(a, 92)
                for x in self.knext(): a.emit(x)
            elif not self.ot:
                for x in self.knext(): a.emit(x)
    def kord(self): return ENV('KORD_' + self.tag.upper(), {'w1': '2', 'attn': '0,2'}.get(self.tag, ''))
    def korder(self, g, start):
        D = int(ENV('ROTD_' + self.tag.upper(), ENV('ROTD', '2')))
        o = list(range(16))
        if start < 0:
            dl = {3: [3, -1, -1, -1], 2: [2, -1, -1, 0], 1: [1, -1, 0, 0]}[D]
            return [(t + dl[(t - g) & 3]) & 15 for t in range(16)]
        for t in range(start + g, 16 - D, 4): o[t:t + D + 1] = [t + D] + list(range(t, t + D))
        return o
    def ktable(self, start=None):
        a = self.a
        if start is None: start = int(self.kord().split(',')[0])
        a.emit(f's_add_u32 s3, s{S_MT}, s{S_NT}')
        a.emit('s_and_b32 s3, s3, 3')
        for g in range(4):
            v = sum(k << (4 * i) for i, k in enumerate(self.korder(g, start)))
            if g: a.emit(f's_cmp_eq_u32 s3, {g}')
            for h in range(2):
                a.emit(f's_cselect_b32 s{S_XG+h}, {(v >> (32 * h)) & 0xffffffff:#x}, s{S_XG+h}' if g else f's_mov_b32 s{S_XG+h}, {(v >> (32 * h)) & 0xffffffff:#x}')
    def own(self):
        D = int(ENV('ROTD_' + self.tag.upper(), ENV('ROTD', '2')))
        dl = {3: [3, -1, -1, -1], 2: [2, -1, -1, 0], 1: [1, -1, 0, 0]}[D]
        tbl = sum(((-d) % 16) << (8 * ((r + d) & 3)) for r, d in enumerate(dl))
        assert self.rot == 0 and self.NSTEP == 16
        if self.kord():
            return [f's_lshr_b32 s3, s{S_NT}, 3', f's_and_b32 s{S_KX}, s{S_NT}, 7', f's_lshl1_add_u32 s{S_T0}, s{S_KX}, s3',
                    f's_mul_i32 s{S_KW}, s{S_T0}, {64*self.ldw2}', f's_lshl_b32 s{S_KX}, s{S_T0}, {11 if self.xblk else 7}']
        return [f's_lshr_b32 s3, s{S_NT}, 3', f's_and_b32 s{S_KX}, s{S_NT}, 7', f's_lshl1_add_u32 s{S_KX}, s{S_KX}, s3',
                f's_sub_u32 s3, s{S_KX}, s{S_XG}', 's_lshl_b32 s3, s3, 3', f's_lshr_b32 s3, {tbl:#x}, s3',
                f's_add_u32 s3, s3, s{S_KX}', f's_and_b32 s{S_T0}, s3, 15',
                f's_mul_i32 s{S_KW}, s{S_KX}, {64*self.ldw2}', f's_lshl_b32 s{S_KX}, s{S_KX}, {11 if self.xblk else 7}']
    def xoff_rows(self, ld):
        a = self.a
        a.emit('v_lshrrev_b32 v3, 3, v1')
        a.emit(f's_lshr_b32 s10, s{S_XD}, 7')
        a.emit(f's_lshl_b32 s3, s{S_MT}, 7')
        a.emit('s_add_u32 s10, s10, s3')
        a.emit('v_add_u32 v3, s10, v3')
        xpitch(a, 5)
        a.emit('s_lshl_b32 s6, s5, 3')
        a.emit('v_mul_u32_u24 v3, s5, v3')
        a.emit('v_lshrrev_b32 v2, 4, v1')
        for j in range(4):
            d = self.VXD + j
            if j & 1:
                a.emit(f'v_add_u32 v{d}, 4, v2')
                a.emit(f'v_xor_b32 v{d}, v{d}, v10')
            else:
                a.emit(f'v_xor_b32 v{d}, v2, v10')
            a.emit(f'v_lshl_add_u32 v{d}, v{d}, 4, v3')
            if j < 3: a.emit('v_add_u32 v3, s6, v3')
    def xoff_blk(self, ld):
        a = self.a
        a.emit(f's_lshr_b32 s10, s{S_XD}, 11')
        a.emit(f's_lshl_b32 s3, s{S_MT}, 3')
        a.emit('s_add_u32 s10, s10, s3')
        a.emit(f's_mul_i32 s10, s10, {16*ld}')
        a.emit(f'v_lshl_add_u32 v{self.VXD}, v1, 4, s10')
        a.emit(f'v_add_u32 v{self.VXD+1}, {16*ld}, v{self.VXD}')
    def xdma(self, base, imm, sd, soff, blk):
        o = []
        for j in range(4):
            if blk:
                if not j & 1: o += [f's_add_u32 m0, s{base}, {imm + j*1024}', 's_nop 0']
                o.append(f'buffer_load_dwordx4 v{self.VXD+(j>>1)}, s[{sd}:{sd+3}], s{soff} offen offset:{(j&1)*1024} lds')
            else:
                o += [f's_add_u32 m0, s{base}, {imm + j*1024}', 's_nop 0', f'buffer_load_dwordx4 v{self.VXD+j}, s[{sd}:{sd+3}], s{soff} offen lds']
        return o
    def knext(self):
        if self.rot is None:
            return [f's_add_u32 s{S_KX}, s{S_KX}, {2048 if self.xblk else 128}', f's_add_u32 s{S_KW}, s{S_KW}, {64*self.ldw2}']
        if self.kord():
            tb = f's[{S_XG}:{S_XG+1}]'
            o = [f's_and_b32 s{S_KX}, s{S_XG}, 15']
            if self.ot or self.skip: o += [f's_cmp_eq_u32 s{S_KX}, s{S_T0}', f's_cselect_b32 s{S_KW}, 4, 0', f's_lshr_b64 {tb}, {tb}, s{S_KW}', f's_and_b32 s{S_KX}, s{S_XG}, 15']
            if self.skip and not self.ot: o += ['s_sub_u32 s92, s92, 1', f's_cselect_b32 s{S_KX}, s{S_T0}, s{S_KX}', f's_cselect_b32 s{S_KW}, 0, 4'] + ([f's_add_u32 s{S_KX}, s{S_KX}, s93', f's_and_b32 s{S_KX}, s{S_KX}, 15'] if KSH else [])
            return o + [f's_lshr_b64 {tb}, {tb}, ' + (f's{S_KW}' if self.skip and not self.ot else '4'), f's_mul_i32 s{S_KW}, s{S_KX}, {64*self.ldw2}', f's_lshl_b32 s{S_KX}, s{S_KX}, {11 if self.xblk else 7}']
        lc = self.rot; C = 1 << lc; N = self.NSTEP
        o = [f's_add_u32 s{S_KT}, s{S_KT}, 1']
        if self.ot: o += [f's_cmp_eq_u32 s{S_KT}, s{S_T0}', f's_addc_u32 s{S_KT}, s{S_KT}, 0']
        D = int(ENV('ROTD_' + self.tag.upper(), ENV('ROTD', '2')))
        dl = {3: [3, -1, -1, -1], 2: [2, -1, -1, 0], 1: [1, -1, 0, 0]}[D]
        tbl = sum((((d * C) % N) << (8 * i)) for i, d in enumerate(dl))
        if lc: o += [f's_lshr_b32 s{S_KX}, s{S_KT}, {lc}', f's_sub_u32 s{S_KX}, s{S_KX}, s{S_XG}']
        else: o += [f's_sub_u32 s{S_KX}, s{S_KT}, s{S_XG}']
        o += [f's_lshl_b32 s{S_KX}, s{S_KX}, 3',
              f's_lshr_b32 s{S_KX}, {tbl:#x}, s{S_KX}',
              f's_and_b32 s{S_KX}, s{S_KX}, 255',
              f's_add_u32 s{S_KX}, s{S_KX}, s{S_KT}']
        if N & (N - 1) == 0: o += [f's_and_b32 s{S_KX}, s{S_KX}, {N - 1}']
        else: o += [f's_sub_u32 s{S_KW}, s{S_KX}, {N}', f's_cselect_b32 s{S_KX}, s{S_KX}, s{S_KW}']
        o += [f's_mul_i32 s{S_KW}, s{S_KX}, {64*self.ldw2}', f's_lshl_b32 s{S_KX}, s{S_KX}, {11 if self.xblk else 7}']
        return o
    def panels_of(self, t): return self.panels
    def issue_x(self, bx, bh, imm, kx):
        o = self.xdma(bx, imm, SX, kx, self.xblk)
        if self.halo is not None:
            o.append(f's_add_u32 m0, s{S_HD}, {bh}')
            o.append('s_mov_b64 exec, s[14:15]')
            o.append(f'buffer_load_dwordx4 v{self.VXH}, s[{SX}:{SX+3}], s{kx} offen lds')
            o.append('s_mov_b64 exec, -1')
        return o
    def issue_w(self, t, bw, imm):
        o = []
        for pn, goff in enumerate(self.panels_of(t)):
            for i in range(2):
                o.append(f's_add_u32 m0, s{bw}, {imm+pn*8192+i*1024}')
                o.append((goff if str(goff).startswith('s_') else f's_add_u32 s4, s{S_KW}, {goff}') if i == 0 else 's_nop 0')
                o.append(f'buffer_load_dwordx4 v{self.VWD+i}, s[{SW}:{SW+3}], s4 offen lds')
        if self.half:
            o += [f's_add_u32 m0, s{bw}, {imm+len(self.panels)*8192}', 's_nop 0',
                  f'buffer_load_dwordx4 v{self.VXH}, s[{SW}:{SW+3}], s{S_KW} offen lds']
        return o
    def issue(self, t):
        o = [f's_add_u32 s3, s{S_SLOT}, s{S_XD}']
        o += self.issue_x(3, f's{S_SLOT}', 0, S_KX)
        o.append(f's_add_u32 s3, s{S_SLOT}, s{S_WD}')
        o += self.issue_w(t, 3, 0)
        o += self.knext()
        o.append(f's_add_u32 s{S_SLOT}, s{S_SLOT}, {self.STAGE}')
        o.append(f's_cmp_eq_u32 s{S_SLOT}, {self.S*self.STAGE}')
        o.append(f's_cselect_b32 s{S_SLOT}, 0, s{S_SLOT}')
        return o
    def run(self, variant='', tail_issue=None, ntail_vm=0, final=None, post=(), dep=None, tail_late=0, start=None, extra=None, exfirst=False):
        a = self.a; N = self.NSTEP; d = self.S - 1
        tag = self.tag + variant
        nx = 4 + (1 if self.halo is not None else 0)
        nw = lambda t: 2 * len(self.panels_of(t)) + (1 if self.half else 0)
        seq = []
        early = EARLY and self.tag == 'w2'
        pchk = EARLY - 3 - d - 1; piss = pchk - d + 1 - int(ENV('PEARLY', '0'))
        def em(o):
            for x in o:
                if 'nodma' in DBG and x.endswith(' lds'): continue
                a.emit(x)
        def after(t): return len(seq) - 1 - max(i for i, x in enumerate(seq) if x == t)
        def wait(n):
            assert n <= 63, n
            a.emit(f's_waitcnt vmcnt({n})')
        if dep is None:
            for t in range(2): em(self.issue(t)); seq += [t] * (nx + nw(t))
            if start: seq += ['S'] * start()
            wait(after(0))
            a.emit('s_barrier')
            for t in range(2, d): em(self.issue(t)); seq += [t] * (nx + nw(t))
        else:
            prev = {'attn': 'w2', 'wo': 'attn', 'w1': 'wo', 'w2': 'w1'}[self.tag]
            assert 'attn' not in EBAR
            ot = self.ot
            if ot: em(self.own() + [f's_mov_b32 s88, s{S_KX}'] + self.issue_w(0, S_WD, 0) + self.knext()); seq.extend([0] * nw(0))
            a.lines += getattr(self, 'after_own', [])
            dep_pre(a, self.tag)
            if prev in EBAR: a.emit('s_barrier')
            xw = 1 if self.tag in ENV('XW', 'x').split(',') and not hasattr(self, 'P1') else 0
            def prew(ts):
                for t in ts:
                    a.emit(f's_mov_b32 s{88+t}, s{S_KX}')
                    em(self.issue_w(t, S_WD, t * self.STAGE) + self.knext()); seq.extend([t] * nw(t))
            late = int(ENV('LATE_' + self.tag.upper(), '2'))
            if ot: xw = 1
            prew(range(ot, d + xw - late))
            self.npre = len(seq)
            a.emit(f's_mov_b32 s{S_SLOT}, {0 if xw else d * self.STAGE}')
            wag = int(ENV('WAG_' + self.tag.upper(), '0'))
            dep((lambda: prew(range(d + xw - late, d + xw - wag))) if late else None)
            if ot and self.halo is not None: em(self.issue_x(S_XD, self.hx, 0, 88)[-4:]); seq.append(0)
            for t in range(ot, d + xw):
                if t >= d + xw - wag: prew([t])
                em(self.issue_x(S_XD, t * self.STAGE, t * self.STAGE, 88 + t)); seq += [t] * nx
            if ot and ENV('OPRIO'): a.emit('s_setprio 0')
            wait(after(ot))
            if self.tag == 'w2': lstamp(a, 2)
            a.emit('s_barrier')
            if early: late_flag(a)
        ev = [None] * self.ot
        for i in range(self.ot, N):
            t = i + d
            if t in seq: t = N + 9
            if early and i == piss: seq += ['P']
            if t < N: seq += [t] * (nx + nw(t)) + ['Q'] * sum(x.startswith('buffer_') for x in post)
            ex = extra(i) if extra else []
            tl = tail_issue is not None and t == N - 1 + tail_late
            if exfirst: seq += ['E'] * sum(x.startswith('buffer_') for x in ex)
            if tl: seq += ['T'] * ntail_vm
            if not exfirst: seq += ['E'] * sum(x.startswith('buffer_') for x in ex)
            ev.append(((nw(t) if t < N else -1, after(i + 1) if i + 1 < N else -1, tl, early and i == piss, early and i == pchk, tuple(ex)), t))
        i = self.ot; nl = 0
        while i < N:
            j = i
            while j + 1 < N and ev[j + 1][0] == ev[i][0]: j += 1
            n = j - i + 1
            (k, w, tl, pi, pc, ex), t = ev[i]
            if n >= 3:
                nl += 1
                a.emit(f's_mov_b32 s{S_CNT}, {n}')
                a.label(f'L_{tag}_ld{nl}')
            else: j = i
            if pi: a.emit(f'buffer_load_dword v13, v12, s[{SO}:{SO+3}], s86 offen sc1')
            if t < N:
                em(self.issue(t)); em(post)
            if exfirst: em(ex)
            if tl and not ('notail' in DBG and self.tag == 'w1'):
                if ENV('FPRIO'): a.emit('s_setprio 3')
                tail_issue()
                if ENV('FPRIO'): a.emit('s_setprio 0')
            if not exfirst: em(ex)
            if w >= 0: wait(w)
            elif final and 'nofinal' not in DBG:
                if ENV('FPRIO'): a.emit('s_setprio 3')
                final()
                if ENV('FPRIO'): a.emit('s_setprio 0')
            if pc: late_check(a)
            a.emit('s_barrier')
            if n >= 3:
                a.emit(f's_sub_u32 s{S_CNT}, s{S_CNT}, 1')
                a.emit(f's_cmp_lg_u32 s{S_CNT}, 0')
                a.emit(f's_cbranch_scc1 L_{tag}_ld{nl}')
            i = j + 1

XD = ONE and ENV('SPLIT', '0') == '0' and ENV('XD', '1') == '1'
VW = MEGA and ENV('SPLIT', '0') == '0' and ENV('VW', '0') == '1'
NV1 = int(ENV('NV1', '16')); NV2 = int(ENV('NV2', '12')); NVO = int(ENV('NVO', '11'))
S_TB = 85
def rot_table(a, sd, smt, snt, tag):
    D = int(ENV('ROTD_' + tag.upper(), ENV('ROTD', '2')))
    dl = {3: [3, -1, -1, -1], 2: [2, -1, -1, 0], 1: [1, -1, 0, 0], 0: [0, 0, 0, 0]}[D]
    tbl = sum((d & 255) << (8 * i) for i, d in enumerate(dl))
    a.emit(f's_add_u32 s3, s{smt}, s{snt}')
    a.emit('s_lshl_b32 s3, s3, 3')
    a.emit(f's_lshl_b32 s{sd}, {tbl:#x}, s3')
    a.emit('s_sub_u32 s3, 0, s3')
    a.emit(f's_lshr_b32 s3, {tbl:#x}, s3')
    a.emit(f's_or_b32 s{sd}, s{sd}, s3')

def kpos(N, t, sd, tb=S_TB, halves=True, q=None):
    H, p, add = (28, t >> 1, 28 * (t & 1)) if N == 56 and halves else (N, t, 0)
    o = [f's_bfe_i32 s{sd}, s{tb}, {0x80000 + 8 * (p & 3):#x}', f's_add_i32 s{sd}, s{sd}, {p + add}']
    if p == 0: o += [f's_cmp_lt_i32 s{sd}, {add}', f's_cselect_b32 s{sd}, {H - 1 + add}, s{sd}']
    if p + 3 >= H: o += [f's_sub_u32 s3, s{sd}, {H}', f's_cmp_ge_i32 s{sd}, {H + add}', f's_cselect_b32 s{sd}, s3, s{sd}']
    if q is not None:
        if N == 16 or 1 <= t <= 12: o += [f's_add_u32 s{sd}, s{sd}, s{q}', f's_and_b32 s{sd}, s{sd}, 15']
        elif t <= 16 or t + 3 >= N: o += [f's_add_u32 s3, s{sd}, s{q}', 's_and_b32 s3, s3, 15', f's_cmp_lt_u32 s{sd}, 16', f's_cselect_b32 s{sd}, s3, s{sd}']
    return o

S_Q = 86
MROT = ENV('MROT', '1') == '1'
def rot_q(a, sd, smt, sh=0):
    a.emit(f's_and_b32 s{sd}, s{smt}, {3 if MROT else 0}')
    a.emit(f's_lshl_b32 s{sd}, s{sd}, {2 + sh}')

TSCH = {'wo': [int(c) for c in ENV('TSO', '000')], 'w2': [int(c) for c in ENV('TS2', '000')]}
def tail_parks(nxt, sw, mk=None, sch=None):
    if not XD: return None
    sch = sch or TSCH[nxt]; N = 16 if nxt == 'wo' else 56
    def extra(i):
        if i < 13 or not sum(sch): return []
        a = Asm()
        if i == 13:
            if mk: mk(a)
            a.emit('s_and_b32 s5, s2, 3')
            a.emit('s_lshl_b32 s5, s5, 2')
            a.emit(f's_and_b32 s6, s{S_CU}, 3')
            a.emit('s_add_u32 s5, s5, s6')
            a.emit('s_and_b32 s6, s2, 4')
            a.emit('s_lshl_b32 s6, s6, 1')
            a.emit(f's_lshr_b32 s7, s{S_CU}, 2')
            a.emit('s_add_u32 s6, s6, s7')
            rot_table(a, S_TB, 5, 6, nxt)
            rot_q(a, S_Q, 5)
            a.emit(f's_add_u32 s5, s5, s{S_WV}')
            a.emit('s_and_b32 s5, s5, 3')
            wvoff(a, 16, 5, 6, 2048)
        o = [l.strip() for l in a.lines]
        for t in range(sum(sch[:i - 13]), sum(sch[:i - 12])):
            o += kpos(N, t, 4, S_TB, False, S_Q) + ['s_lshl_b32 s4, s4, 17']
            o += [f'buffer_load_dwordx4 v[{128+8*t+4*j}:{131+8*t+4*j}], v{16+j}, s[{sw}:{sw+3}], s4 offen' for j in range(2)]
        return o
    return extra

def vreg(tag, t):
    if tag == 'wo': return (128 + 8 * (t - 5), False) if 5 <= t < 5 + NVO else None
    if t & 1: return None
    p = t >> 1
    if p < NV1: return (128 + 8 * p, True)
    if p < NV1 + NV2: return (32 + 8 * (p - NV1), False)
    return None

def wrow(a, sqw, ns):
    if ns:
        a.emit('v_bfe_u32 v3, v1, 3, 2')
        a.emit('v_lshrrev_b32 v2, 5, v1')
        a.emit('v_lshl_add_u32 v3, v2, 4, v3')
        a.emit(f's_and_b32 s10, s{sqw}, 2')
        a.emit(f's_add_u32 s10, s10, s{sqw}')
        a.emit('v_lshl_add_u32 v3, s10, 3, v3')
    else:
        a.emit('v_lshrrev_b32 v3, 3, v1')
        a.emit(f's_lshl_b32 s10, s{sqw}, 4')
        a.emit('v_add_u32 v3, s10, v3')

def wvoff(a, vd, sqw, snt, ldw2, ns=False):
    nr = ns and NSR; ns = ns and not NSR
    wrow(a, sqw, ns)
    a.emit(f'v_mul_u32_u24 v3, {ldw2}, v3')
    a.emit('v_lshrrev_b32 v2, 3, v1')
    a.emit(f'v_and_b32 v2, {6 if nr else 2}, v2')
    a.emit('v_xor_b32 v2, v2, v10')
    a.emit(f's_lshl_b32 s10, s{snt}, 7')
    a.emit('v_add_u32 v3, s10, v3')
    a.emit(f'v_lshl_add_u32 v{vd}, v2, 4, v3')
    if not nr: a.emit('v_xor_b32 v2, 4, v2')
    a.emit(f'v_add_u32 v3, {(4 if ns else 8)*ldw2}, v3')
    a.emit(f'v_lshl_add_u32 v{vd+1}, v2, 4, v3')

def park(N, t, r, vo, sw):
    return kpos(N, t, 4) + ['s_lshl_b32 s4, s4, 17'] + [f'buffer_load_dwordx4 v[{r+4*i}:{r+4*i+3}], v{vo+i}, s[{sw}:{sw+3}], s4 offen' for i in range(2)]

class ULoader(Loader):
    def run(self, variant='', tail_issue=None, ntail_vm=0, final=None, post=(), dep=None):
        a = self.a; N = self.NSTEP; d = self.S - 1; tag = self.tag
        seq = []
        def em(o):
            for x in o:
                if 'nodma' in DBG and x.endswith(' lds'): continue
                a.emit(x)
        def after(t): return len(seq) - 1 - max(i for i, x in enumerate(seq) if x == t)
        def wait(n, lg=False):
            assert n <= 63, n
            a.emit(f's_waitcnt vmcnt({n})' + (' lgkmcnt(0)' if lg else ''))
        def iw(t):
            sl = (t % self.S) * self.STAGE; v = vreg(tag, t)
            if v:
                em([f'v_add_u32 v11, {sl}, v14'] + [f'ds_write_b128 v11, v[{v[0]+4*i}:{v[0]+4*i+3}] offset:{1024*i}' for i in range(2)])
            else:
                em([f's_lshl_b32 s{S_KW}, s{S_KX}, 17'] + [x for x in self.issue_w(t, S_WD, sl)])
                seq.extend([t] * 2)
        def ix(t, k):
            em(self.issue_x(S_XD, None, (t % self.S) * self.STAGE, k)); seq.extend([t] * 4)
        rot_table(a, S_TB, S_MT, S_NT, tag)
        a.emit(f'v_lshl_add_u32 v14, v1, 4, s{S_WD}')
        dep_pre(a, tag)
        for t in range(d):
            em(kpos(N, t, S_KX)); iw(t)
            a.emit(f's_lshl_b32 s{88+t}, s{S_KX}, 11')
        for t in range(d, N):
            v = vreg(tag, t)
            if v and not v[1]:
                em(park(N, t, v[0], self.VWD, SW)); seq.extend(['V'] * 2)
        self.npre = len(seq)
        dep()
        for t in range(d): ix(t, 88 + t)
        wait(after(0), True)
        if tag == 'w2': lstamp(a, 2)
        a.emit('s_barrier')
        for i in range(N):
            t = i + d
            if i % 4 == 0 and post and t < N:
                a.emit('s_waitcnt lgkmcnt(0)')
                em(post)
            if t < N:
                em(kpos(N, t, S_KX)); iw(t)
                a.emit(f's_lshl_b32 s{S_KX}, s{S_KX}, 11')
                ix(t, S_KX)
            if t == N - 1: tail_issue(); seq.extend(['T'] * ntail_vm)
            if i + 1 < N: wait(after(i + 1), not post or t == N)
            else: final()
            a.emit('s_barrier')

EBAR = ENV('EBAR', 'x').split(',')
S_FL = 87
def dep_pre(a, kind, part=None, n=0):
    if ONE and kind in ('wo', 'w1'):
        ld = f'buffer_load_dword v12, v17, s[{SC}:{SC+3}], 0 offen sc1' if kind == 'wo' else f'buffer_load_dwordx4 v[12:15], v17, s[{SO}:{SO+3}], s3 offen sc1'
        if part == 1: a.emit(f's_waitcnt vmcnt({n})')
        a.emit(f's_add_u32 s3, s{S_LAYER}, s{S_WV}')
        a.emit('s_cmp_lg_u32 s3, 4')
        a.emit(f's_cbranch_scc1 L_{kind}_chk{part}')
        def cmp():
            if kind == 'wo': a.emit('v_cmp_ne_u32 vcc, 0x01010101, v12')
            else:
                a.emit('v_and_b32 v12, v12, v13')
                a.emit('v_and_b32 v14, v14, v15')
                a.emit('v_and_b32 v12, v12, v14')
                a.emit('v_cmp_ne_u32 vcc, 1, v12')
        if part == 1:
            cmp()
            a.emit(f's_cbranch_vccz L_{kind}_chk{part}')
        if True:
            if kind == 'wo': a.emit(f's_load_dwordx2 s[{SC}:{SC+1}], s[0:1], 72')
            else: srd(a, SO, 'ws0', WS_FL, FLS)
            if kind == 'wo':
                a.emit('s_waitcnt lgkmcnt(0)')
                a.emit(f's_and_b32 s{SC+1}, s{SC+1}, 0xffff')
                a.emit(f's_mov_b32 s{SC+2}, 256')
                a.emit(f's_mov_b32 s{SC+3}, 0x00020000')
                a.emit('v_lshlrev_b32 v17, 2, v1')
            else:
                a.emit('v_lshrrev_b32 v2, 2, v1')
                a.emit('v_and_b32 v3, 3, v1')
                a.emit('v_lshlrev_b32 v2, 11, v2')
                a.emit('v_lshl_add_u32 v17, v3, 4, v2')
                a.emit(f's_and_b32 s3, s{S_NT}, {REP - 1}')
                a.emit('s_lshl_b32 s3, s3, 7')
        if part == 0: a.emit(ld)
        else:
            a.emit(f's_mov_b32 s{S_CNT}, 0x100000')
            a.label(f'L_{kind}_chkl')
            a.emit(ld)
            a.emit(f's_sub_u32 s{S_CNT}, s{S_CNT}, 1')
            a.emit(f's_cbranch_scc1 L_{kind}_chk{part}')
            a.emit('s_waitcnt vmcnt(0)')
            cmp()
            a.emit(f's_cbranch_vccnz L_{kind}_chkl')
        a.label(f'L_{kind}_chk{part}')

def dep_wait(a, kind, halo=False, skip_first=False, first=None, preg=None, postf=None, pref=None, defer=False, obar=False):
    if skip_first and not ONE:
        a.emit(f's_cmp_eq_u32 s{S_TSI}, 1')
        a.emit(f's_cbranch_scc1 L_{kind}_dep')
    srd(a, SO, 'ws0', WS_FL, FLS)
    if ONE and kind == 'wo' and first:
        a.emit(f's_cmp_lg_u32 s{S_LAYER}, 0')
        a.emit(f's_cbranch_scc1 L_{kind}_nofirst')
        first()
        a.label(f'L_{kind}_nofirst')
    a.emit(f's_lshl4_add_u32 s3, s{S_TSI}, s{S_MT}')
    a.emit(f's_and_b32 s4, s{S_NT}, {REP - 1}')
    a.emit('s_lshl4_add_u32 s3, s3, s4')
    a.emit('s_lshl_b32 s3, s3, 7')
    a.emit('s_sub_u32 s3, s3, 32768')
    a.emit('v_lshlrev_b32 v11, 7, v1')
    if halo:
        a.emit(f's_cmp_eq_u32 s{S_MT}, 0')
        a.emit('s_cselect_b32 s4, 15, 31')
        a.emit('v_and_b32 v2, 16, v1')
        a.emit('v_lshl_add_u32 v11, v2, 2, v11')
        a.emit('v_and_b32 v2, s4, v1')
    else: a.emit('v_and_b32 v2, 15, v1')
    a.emit('v_lshlrev_b32 v2, 2, v2')
    xc = OH and kind == 'w1'
    if xc:
        a.emit('s_getreg_b32 s4, hwreg(HW_REG_XCC_ID, 0, 4)')
        if ENV('FB'): a.emit(f"s_and_b32 s4, s2, {ENV('FB')}")
        a.emit('v_add_u32 v3, 1, s4')
    else: a.emit('v_mov_b32 v3, 1')
    a.emit(f's_mov_b32 s{S_CNT}, 0x100000')
    if kind == LSTK == 'wo': lstamp(a, 2)
    if pref: pref()
    lf = LF2 and kind == 'w2'
    if lf:
        a.emit(f's_mov_b32 s{S_Q}, s3')
        a.emit('s_or_b32 s4, s2, 0xe0')
        a.emit(f's_lshl4_add_u32 s4, s4, s{S_LAYER}')
        a.emit('s_lshl_b32 s4, s4, 7')
        a.emit(f's_lshl2_add_u32 s93, s{S_HD}, s4')
        a.emit(f's_cmp_eq_u32 s{S_MD}, 0')
        a.emit('s_cselect_b32 s3, s4, s3')
        a.emit('s_cselect_b32 s4, 28, 60')
        a.emit('v_and_b32 v13, s4, v2')
        if ENV('LFT', '1') == '1':
            a.emit(f's_cmp_lg_u32 s{S_WV}, 4')
            a.emit('s_cbranch_scc1 L_w2_notch')
            a.emit(f'buffer_load_dword v12, v13, s[{SO}:{SO+3}], s3 offen sc1')
            a.label('L_w2_notch')
    if OH and kind == 'w2': a.emit(f'v_cmp_ne_u32 vcc, s{S_MD}, 0')
    a.emit(f's_cmp_lg_u32 s{S_WV}, 4')
    a.emit('s_barrier')
    if kind == 'w2': lstamp(a, 0, True)
    if kind == LSTK == 'w1': lstamp(a, 0)
    a.emit(f's_cbranch_scc1 L_{kind}_{"nofl" if postf else "dep"}')
    if OH and kind == 'w2':
        a.emit('s_cbranch_vccnz L_w2_wb')
        a.label('L_w2_wbd')
    if lf:
        a.emit('s_mov_b64 exec, 1')
        a.emit(f'buffer_store_dword v3, off, s[{SO}:{SO+3}], s93')
    a.emit(f's_mov_b32 exec_lo, {((1 << REP) - 1) * (0x10001 if halo else 1):#x}')
    a.emit('s_mov_b32 exec_hi, 0')
    a.emit(f'buffer_store_dword v3, v11, s[{SO}:{SO+3}], s{S_FL} offen sc1')
    a.emit('s_mov_b64 exec, -1')
    if lf and ENV('LFX'):
        a.label('L_w2_spoll')
        if ENV('LFX') == 's':
            a.emit(f's_buffer_load_dwordx8 s[4:11], s[{SO}:{SO+3}], s3 glc')
            a.emit(f's_sub_u32 s{S_CNT}, s{S_CNT}, 16')
            a.emit('s_cbranch_scc1 L_w2_spok')
            a.emit('s_waitcnt lgkmcnt(0)')
            a.emit('s_and_b64 s[4:5], s[4:5], s[6:7]')
            a.emit('s_and_b64 s[8:9], s[8:9], s[10:11]')
            a.emit('s_and_b64 s[4:5], s[4:5], s[8:9]')
            a.emit('s_and_b32 s4, s4, s5')
            a.emit('s_cbranch_scc0 L_w2_spoll')
        else:
            a.emit(f'buffer_load_dword v12, v13, s[{SO}:{SO+3}], s3 offen sc1')
            a.emit(f's_sub_u32 s{S_CNT}, s{S_CNT}, 16')
            a.emit('s_cbranch_scc1 L_w2_spok')
            a.emit('s_waitcnt vmcnt(0)')
            a.emit('v_cmp_ne_u32 vcc, 1, v12')
            a.emit('s_cbranch_vccnz L_w2_spoll')
        a.label('L_w2_spok')
        lstamp(a, 1, True)
        a.emit(f's_mov_b32 s{S_CNT}, 0x100000')
    PSP = int(ENV('PSP', '0'))
    if defer:
        a.label(f'L_{kind}_nofl')
        a.emit(f's_mov_b32 s{S_Q}, s3')
        postf()
        return
    if postf and PSP:
        a.label(f'L_{kind}_nofl')
        a.emit('s_mov_b32 s5, s3')
        i0 = len(a.lines); postf(); ls = a.lines[i0:]; del a.lines[i0:]
        dma = [i for i, l in enumerate(ls) if 'buffer_load' in l]
        poll = lambda k: f'buffer_load_dword v{24+k}, v2, s[{SO}:{SO+3}], s5 offen sc1'
        for i, l in enumerate(ls):
            a.lines.append(l)
            for k in range(3):
                if dma and i == dma[-1 - PSP * (3 - k)]: a.emit(poll(k))
        a.emit(f's_cmp_lg_u32 s{S_WV}, 4')
        a.emit(f's_cbranch_scc1 L_{kind}_dep')
        def chk(k, n, last=False):
            a.emit(poll((k + 3) & 3))
            a.emit(f's_waitcnt vmcnt({n})')
            a.emit(f'v_cmp_ne_u32 vcc, 1, v{24+k}')
            a.emit(f's_cbranch_vccnz L_{kind}_poll' if last else f's_cbranch_vccz L_{kind}_dep')
        for k in range(3): chk(k, 3 + PSP * (3 - k))
        a.label(f'L_{kind}_poll')
        a.emit(f's_sub_u32 s{S_CNT}, s{S_CNT}, 1')
        a.emit(f's_cbranch_scc1 L_{kind}_dep')
        for k in (3, 0, 1, 2): chk(k, 3, k == 2)
    else:
        if postf:
            if obar:
                a.emit(f's_waitcnt vmcnt({obar})')
                a.emit(f's_branch L_{kind}_obar')
            a.label(f'L_{kind}_nofl')
            if obar:
                a.emit(f's_waitcnt vmcnt({obar - 1})')
                a.label(f'L_{kind}_obar')
                a.emit('s_barrier')
                if ENV('OPRIO'): a.emit(f"s_setprio {ENV('OPRIO')}")
            a.emit('s_mov_b32 s5, s3')
            postf()
            a.emit('s_mov_b32 s3, s5')
            a.emit(f"s_cmp_lg_u32 s{S_WV}, {ENV('PW_' + kind.upper(), '4')}")
            a.emit(f's_cbranch_scc1 L_{kind}_dep')
        if kind == LSTK == 'w1': lstamp(a, 1)
        a.label(f'L_{kind}_poll')
        a.emit(f'buffer_load_dword v{VMD if xc else 3}, v{13 if lf else 2}, s[{SO}:{SO+3}], s3 offen sc1')
        a.emit(f's_sub_u32 s{S_CNT}, s{S_CNT}, 1')
        a.emit(f's_cbranch_scc1 L_{kind}_dep')
        a.emit('s_waitcnt vmcnt(0)')
        a.emit(f'v_cmp_eq_u32 vcc, 0, v{VMD}' if xc else 'v_cmp_ne_u32 vcc, 1, v3')
        a.emit(f's_cbranch_vccnz L_{kind}_poll')
    a.label(f'L_{kind}_dep')
    if kind == 'w2' and not ENV('LFX'): lstamp(a, 1, True)
    if kind == LSTK == 'wo': lstamp(a, 3)
    if kind == LSTK == 'w1':
        lstamp(a, 2)
        if TS: a.emit(f's_mov_b32 s50, s{S_CNT}')
    if preg: preg()
    if preg and kind == 'w2': lstamp(a, 2, True)
    a.emit('s_barrier')

def dep_lf(a, w0, blk, w1):
    srd(a, SO, 'ws0', WS_FL, FLS)
    a.emit(f's_lshl4_add_u32 s3, s{S_TSI}, s{S_MT}')
    a.emit(f's_and_b32 s4, s{S_NT}, {REP - 1}')
    a.emit('s_lshl4_add_u32 s3, s3, s4')
    a.emit('s_lshl_b32 s3, s3, 7')
    a.emit(f's_sub_u32 s{S_Q}, s3, 32768')
    a.emit('v_lshlrev_b32 v11, 7, v1')
    a.emit('v_and_b32 v2, 15, v1')
    a.emit('v_lshlrev_b32 v2, 2, v2')
    a.emit(f's_cmp_lg_u32 s{S_WV}, 4')
    a.emit(f's_waitcnt vmcnt({w0})')
    a.emit('s_cbranch_scc1 L_w2_nofl')
    W4 = ENV('W4', 'a')
    if W4 == 'a': a.lines += blk
    a.emit('v_mov_b32 v3, 1')
    a.emit(f's_mov_b32 s{S_CNT}, 0x100000')
    a.emit('s_or_b32 s4, s2, 0xe0')
    a.emit(f's_lshl4_add_u32 s4, s4, s{S_LAYER}')
    a.emit('s_lshl_b32 s4, s4, 7')
    a.emit(f's_lshl2_add_u32 s5, s{S_HD}, s4')
    a.emit(f's_cmp_eq_u32 s{S_MD}, 0')
    a.emit(f's_cselect_b32 s3, s4, s{S_Q}')
    a.emit('s_cselect_b32 s4, 28, 60')
    a.emit('v_and_b32 v13, s4, v2')
    a.emit(f'buffer_load_dword v12, v13, s[{SO}:{SO+3}], s3 offen sc1')
    a.emit(f"s_setprio {ENV('LFP', '3')}")
    a.emit('s_barrier')
    lstamp(a, 0, True)
    a.emit('s_cbranch_scc0 L_w2_wb')
    a.label('L_w2_wbd')
    a.emit('s_mov_b64 exec, 1')
    a.emit(f'buffer_store_dword v3, off, s[{SO}:{SO+3}], s5')
    a.emit('s_mov_b64 exec, -1')
    a.label('L_w2_poll')
    a.emit(f'buffer_load_dword v12, v13, s[{SO}:{SO+3}], s3 offen sc1')
    a.emit(f's_sub_u32 s{S_CNT}, s{S_CNT}, 1')
    a.emit('s_cbranch_scc1 L_w2_dep')
    a.emit('s_waitcnt vmcnt(0)')
    a.emit('v_cmp_ne_u32 vcc, 1, v12')
    a.emit('s_cbranch_vccnz L_w2_poll')
    a.label('L_w2_dep')
    lstamp(a, 1, True)
    a.emit('s_barrier')
    lstamp(a, 2, True)
    a.emit('s_setprio 0')
    if W4 != 'a': a.lines += blk
    a.emit(f's_mov_b64 exec, {(1 << REP) - 1:#x}')
    a.emit(f'buffer_store_dword v3, v11, s[{SO}:{SO+3}], s{S_FL} offen sc1')
    a.emit('s_mov_b64 exec, -1')
    a.emit('s_branch L_w2_go')
    a.label('L_w2_nofl')
    if W4 == 'c':
        a.emit('s_waitcnt vmcnt(0)')
        a.emit('s_barrier')
        a.emit('s_barrier')
        a.lines += blk
    else:
        a.emit('s_barrier')
        a.lines += blk
        a.emit(f's_waitcnt vmcnt({w1})')
        a.emit('s_barrier')
    a.label('L_w2_go')

def xpoll(a, lab, sd, so, v, vd):
    a.emit(f's_cmp_lg_u32 s{S_WV}, 4')
    a.emit(f's_cbranch_scc1 {lab}go')
    a.emit('s_setprio 3')
    a.label(f'{lab}poll')
    a.emit(f'buffer_load_dword v{vd}, v{v}, s[{sd}:{sd+3}], s{so} offen sc1')
    a.emit(f's_sub_u32 s{S_CNT}, s{S_CNT}, 1')
    a.emit(f's_cbranch_scc1 {lab}go')
    a.emit('s_waitcnt vmcnt(0)')
    a.emit(f'v_cmp_ne_u32 vcc, 1, v{vd}')
    a.emit(f's_cbranch_vccnz {lab}poll')
    a.label(f'{lab}go')
    a.emit('s_setprio 0')

def ef_poll(a, lab, v, prio=False):
    a.emit(f"s_cmp_lg_u32 s{S_WV}, {ENV('PW_W2', '4')}")
    a.emit(f's_cbranch_scc1 {lab}_ok')
    if prio: a.emit('s_setprio 3')
    a.emit(f's_mov_b32 s{S_CNT}, 0x100000')
    a.label(lab)
    a.emit(f'buffer_load_dword v3, v{v}, s[{SO}:{SO+3}], s{S_Q} offen sc1')
    a.emit(f's_sub_u32 s{S_CNT}, s{S_CNT}, 1')
    a.emit(f's_cbranch_scc1 {lab}_ok')
    a.emit('s_waitcnt vmcnt(0)')
    a.emit('v_cmp_ne_u32 vcc, 1, v3')
    a.emit(f's_cbranch_vccnz {lab}')
    a.label(f'{lab}_ok')
    if prio: a.emit('s_setprio 0')

def ef_flag(a, lab, off):
    a.emit(f's_cmp_lg_u32 s{S_WV}, 4')
    a.emit('s_barrier')
    a.emit(f's_cbranch_scc1 {lab}')
    a.emit(f's_mov_b64 exec, {(1 << REP) - 1:#x}')
    a.emit(f'buffer_store_dword v13, v11, s[{SO}:{SO+3}], s{S_FL} offen offset:{off} sc1')
    a.emit('s_mov_b64 exec, -1')
    a.label(lab)

def dep_ef(a, poste, preh, preg):
    srd(a, SO, 'ws0', WS_FL, FLS)
    a.emit(f's_lshl4_add_u32 s3, s{S_TSI}, s{S_MT}')
    a.emit(f's_and_b32 s4, s{S_NT}, {REP - 1}')
    a.emit('s_lshl4_add_u32 s3, s3, s4')
    a.emit('s_lshl_b32 s3, s3, 7')
    a.emit(f's_sub_u32 s{S_Q}, s3, 32768')
    a.emit('v_lshlrev_b32 v11, 7, v1')
    a.emit('v_and_b32 v2, 15, v1')
    a.emit('v_lshlrev_b32 v2, 2, v2')
    a.emit(f's_bitcmp1_b32 s{S_NT}, 0')
    a.emit('s_cselect_b32 s4, 96, 64')
    a.emit('v_and_b32 v12, 28, v2')
    a.emit('v_add_u32 v12, s4, v12')
    a.emit('v_mov_b32 v13, 1')
    ef_flag(a, 'L_w2_nofe', 64)
    lstamp(a, 0, True)
    poste()
    if ENV('EFP', '1') == '0': ef_poll(a, 'L_w2_pe', 12)
    preh()
    a.emit('s_barrier')
    if ENV('EFP', '1') != '0': ef_poll(a, 'L_w2_pe', 12, ENV('EFP') == '2')
    lstamp(a, 1, True)
    preg()
    ef_flag(a, 'L_w2_nofl', 0)

def dep_late(a, kind, part, n=0):
    ld = f'buffer_load_dword v3, v2, s[{SO}:{SO+3}], s{S_Q} offen sc1'
    if part == 0:
        a.emit(f's_cmp_eq_u32 s{S_WV}, 4')
        a.emit(f's_cselect_b32 s{SO+2}, s{SO+2}, 0')
        a.emit(ld)
        return
    if LF2:
        kind += 'l'
        a.emit(f's_mov_b32 s{S_CNT}, 0x100000')
    a.emit(f's_cmp_lg_u32 s{S_WV}, 4')
    a.emit(f's_cbranch_scc1 L_{kind}_dep')
    a.emit(f's_waitcnt vmcnt({n})')
    a.emit('v_cmp_ne_u32 vcc, 1, v3')
    a.emit(f's_cbranch_vccz L_{kind}_dep')
    a.label(f'L_{kind}_poll')
    a.emit(ld)
    a.emit(f's_sub_u32 s{S_CNT}, s{S_CNT}, 1')
    a.emit(f's_cbranch_scc1 L_{kind}_dep')
    a.emit('s_waitcnt vmcnt(0)')
    a.emit('v_cmp_ne_u32 vcc, 1, v3')
    a.emit(f's_cbranch_vccnz L_{kind}_poll')
    a.label(f'L_{kind}_dep')
    if LF2: return
    if not EF: lstamp(a, 1, True)
    lstamp(a, 2, True)
    if TS and ENV('LST') != 'x': a.emit(f's_mov_b32 s58, s{S_CNT}')

LGO = 163840 - 64
def dep_early(a):
    srd(a, SO, 'ws0', WS_FL, FLS)
    a.emit(f's_lshl_b32 s86, s{S_TSI}, 12')
    a.emit(f's_lshl_b32 s4, s{S_MT}, 8')
    a.emit('s_add_u32 s86, s86, s4')
    a.emit('s_sub_u32 s86, s86, 4096')
    a.emit('v_and_b32 v12, 15, v1')
    a.emit('v_lshlrev_b32 v12, 2, v12')
    a.emit('v_mov_b32 v3, 0')
    a.emit(f'v_mov_b32 v2, {LGO}')
    a.emit('ds_write_b32 v2, v3')
    a.emit('v_mov_b32 v13, 1')
    a.emit(f's_mov_b32 s{S_CNT}, 0x100000')
    a.emit(f's_cmp_lg_u32 s{S_WV}, 4')
    a.emit('s_waitcnt lgkmcnt(0)')
    a.emit('s_barrier')
    a.emit('s_cbranch_scc1 L_w2_go')
    lstamp(a, 0)
    a.emit('s_mov_b64 exec, 1')
    a.emit(f'buffer_store_dword v13, off, s[{SO}:{SO+3}], s{S_FL} sc1')
    a.emit('s_mov_b64 exec, -1')
    a.label('L_w2_poll')
    a.emit(f'buffer_load_dword v3, v12, s[{SO}:{SO+3}], s86 offen sc1')
    a.emit(f's_sub_u32 s{S_CNT}, s{S_CNT}, 1')
    a.emit('s_cbranch_scc1 L_w2_rel')
    a.emit('s_waitcnt vmcnt(0)')
    a.emit('v_cmp_eq_u32 vcc, 0, v3')
    a.emit('s_cbranch_vccnz L_w2_poll')
    a.label('L_w2_rel')
    a.emit('ds_write_b32 v2, v13')
    lstamp(a, 1)
    a.emit('s_branch L_w2_dep')
    a.label('L_w2_go')
    a.emit(f's_mov_b32 s{S_CNT}, 0x2000000')
    a.label('L_w2_gol')
    a.emit('ds_read_b32 v3, v2')
    a.emit(f's_sub_u32 s{S_CNT}, s{S_CNT}, 1')
    a.emit('s_cbranch_scc1 L_w2_dep')
    a.emit('s_waitcnt lgkmcnt(0)')
    a.emit('v_cmp_eq_u32 vcc, 0, v3')
    a.emit('s_cbranch_vccnz L_w2_gol')
    a.label('L_w2_dep')

def late_flag(a):
    a.emit(f's_cmp_lg_u32 s{S_WV}, 4')
    a.emit('s_cbranch_scc1 L_w2_nolate')
    a.emit('v_mov_b32 v3, 2')
    a.emit('s_mov_b64 exec, 1')
    a.emit(f'buffer_store_dword v3, off, s[{SO}:{SO+3}], s{S_FL} sc1')
    a.emit('s_mov_b64 exec, -1')
    a.label('L_w2_nolate')

def late_check(a):
    a.emit(f's_mov_b32 s{S_CNT}, 0x100000')
    a.label('L_w2_lchk')
    a.emit('v_cmp_ne_u32 vcc, 2, v13')
    a.emit('s_cbranch_vccz L_w2_lok')
    a.emit(f'buffer_load_dword v13, v12, s[{SO}:{SO+3}], s86 offen sc1')
    a.emit(f's_sub_u32 s{S_CNT}, s{S_CNT}, 1')
    a.emit('s_waitcnt vmcnt(0)')
    a.emit('s_cbranch_scc0 L_w2_lchk')
    a.label('L_w2_lok')
    if TS: a.emit(f's_mov_b32 s58, s{S_CNT}')
    lstamps_out(a, 'w2')

def gbar(a, kind):
    if not MEGA or (EARLY and kind == 'w2'): return
    if kind == 'attn':
        a.emit(f's_cmp_eq_u32 s{S_LAYER}, 0')
        a.emit('s_cbranch_scc1 L_attn_nog')
    a.emit('s_barrier')
    if kind == 'attn': a.label('L_attn_nog')

def next_phase(a, kind, comp=False):
    nxt = {'attn': 'wo', 'wo': 'w1', 'w1': 'w2', 'w2': 'attn'}[kind]
    if kind == 'w2':
        a.emit(f's_mov_b32 s{S_LAYER}, 1')
        a.emit(f's_add_u32 s12, s22, {WS_X2}')
        a.emit('s_addc_u32 s13, s23, 0')
        a.emit(f's_add_u32 s34, s22, {LSTR}')
        a.emit('s_addc_u32 s35, s23, 0')
    a.emit(f's_add_u32 s{S_TSI}, s{S_TSI}, 1')
    a.emit(f's_branch L_{nxt}_' + ('compute' if comp and (NV or LF2 == 2) and nxt == 'w2' else 'body'))

def last_check(a, kind):
    if kind == 'w2' or (kind == 'attn' and not ONE):
        a.emit(f's_cmp_eq_u32 s{S_LAYER}, {0 if kind == "attn" else 1}')
        a.emit(f's_cbranch_scc1 L_{kind}_end')

def compute_end(a, kind):
    if not MEGA:
        stamps_out(a, kind)
        a.emit('s_endpgm')
        return
    if not TS and not (SKL and kind == 'w2'): last_check(a, kind)
    if TE and kind == 'w2' and not SKL: a.lines[-1] = a.lines[-1].replace('L_w2_end', 'L_fin')
    if kind in EBAR: a.emit('s_barrier')
    import pads
    for x in pads.chain({'attn': 'he', 'wo': 'hw'}.get(kind)): a.emit(x)
    if LF2 == 2 and kind == 'w1': a.lines.append('@W2B')
    if not ((EARLY or NV) and kind == 'w1'):
        a.emit('s_waitcnt lgkmcnt(0)' if EF and kind == 'w1' else f"s_waitcnt vmcnt({int(SF and kind in ('wo', 'w2'))}) lgkmcnt(0)")
        a.emit('s_barrier')
    if TS:
        stamps_out(a, kind)
        if ENV('DIAG') and kind == 'w2': diag(a)
        last_check(a, kind)
    stamp(a, 0, nowait=True)
    next_phase(a, kind, True)

def fin(a):
    if not TE: return
    a.label('L_fin')
    a.emit('s_waitcnt vmcnt(0)')
    a.emit('s_memrealtime s[92:93]')
    srd(a, SP, 'ws0', WS_TS, 1 << 20)
    a.emit(f's_lshl2_add_u32 s4, s2, s{S_WV}')
    a.emit('s_lshl_b32 s4, s4, 3')
    a.emit('s_waitcnt lgkmcnt(0)')
    a.emit('v_mov_b32 v4, s94')
    a.emit('v_mov_b32 v5, s92')
    a.emit('s_mov_b64 exec, 1')
    a.emit(f'buffer_store_dwordx2 v[4:5], off, s[{SP}:{SP+3}], s4')
    a.emit('s_endpgm')

def diag(a):
    ph, j, K, C = [int(x) for x in ENV('DIAG').split(',')]
    a.emit(f's_lshl1_add_u32 s3, s{S_WV}, s{S_LAYER}')
    a.emit('s_cmp_lg_u32 s3, 1')
    a.emit('s_cbranch_scc1 L_diag_end')
    a.emit('s_waitcnt vmcnt(0)')
    a.emit('v_lshlrev_b32 v1, 6, v0')
    for i in range(4): a.emit(f's_mov_b32 s3, {4096*i}'); a.emit(f'buffer_load_dword v{4+i}, v1, s[{SP}:{SP+3}], s3 offen sc1')
    a.emit('s_lshl_b32 s4, s2, 6')
    a.emit(f's_add_u32 s4, s4, {(ph << 16) + 16 * j}')
    a.emit(f'buffer_load_dword v8, off, s[{SP}:{SP+3}], s4 sc1')
    a.emit('s_waitcnt vmcnt(0)')
    for i in range(4): a.emit(f'v_sub_u32 v{4+i}, v8, v{4+i}')
    a.emit('v_max_i32 v4, v4, v5'); a.emit('v_max_i32 v6, v6, v7'); a.emit('v_max_i32 v4, v4, v6')
    a.emit('s_mov_b32 s5, 0')
    a.emit('s_nop 1')
    for i in range(64):
        a.emit(f'v_readlane_b32 s3, v4, {i}')
        a.emit('s_max_i32 s5, s5, s3')
    if C: a.emit(f's_sub_u32 s5, {C}, s5'); a.emit('s_max_i32 s5, s5, 0')
    a.emit('s_min_u32 s5, s5, 15000')
    a.emit(f's_mul_i32 s5, s5, {K}')
    a.emit('s_memrealtime s[6:7]')
    a.emit('s_mov_b32 s4, 0x40000')
    a.emit('s_waitcnt lgkmcnt(0)')
    a.label('L_diag_l')
    a.emit('s_memrealtime s[8:9]')
    a.emit('s_sub_u32 s4, s4, 1')
    a.emit('s_cbranch_scc1 L_diag_end')
    a.emit('s_waitcnt lgkmcnt(0)')
    a.emit('s_sub_u32 s8, s8, s6')
    a.emit('s_cmp_lt_u32 s8, s5')
    a.emit('s_cbranch_scc1 L_diag_l')
    a.label('L_diag_end')

def loader_end(a, kind, check=True):
    if MEGA:
        if kind == LSTK and not EARLY: lstamps_out(a, kind)
        if check: last_check(a, kind)
        a.emit(f's_lshl_b32 s{S_FL}, s{S_TSI}, 15')
        a.emit(f's_lshl_b32 s4, s{S_MT}, 11')
        a.emit(f's_add_u32 s{S_FL}, s{S_FL}, s4')
        a.emit(f's_lshl_b32 s4, s{S_NT}, 2')
        a.emit(f's_add_u32 s{S_FL}, s{S_FL}, s4')
        next_phase(a, kind)

def pf_weights(a, sd, which, size, ldw2, R, sh, L, LMn, tilebytes, NI, vd, row0=0, qkv=False, pair=False):
    if 'nopf' in DBG: return 0
    srd(a, sd, which, 0, size)
    a.emit(f's_and_b32 s3, s{S_WV}, 3')
    a.emit(f's_mul_i32 s3, s3, {NI * (64 >> sh)}')
    a.emit(f's_mul_i32 s4, s{S_CU}, {R}')
    a.emit('s_add_u32 s3, s3, s4')
    if row0: a.emit(f's_add_u32 s3, s3, {row0}')
    a.emit(f'v_lshrrev_b32 v2, {sh}, v1')
    a.emit('v_add_u32 v2, s3, v2')
    a.emit(f'v_mul_u32_u24 v2, {ldw2}, v2')
    a.emit(f'v_and_b32 v3, {(1 << sh) - 1}, v1')
    if L < (1 << sh): a.emit(f'v_min_u32 v3, {L-1}, v3')
    if qkv:
        a.emit('v_lshrrev_b32 v12, 2, v3')
        a.emit('v_lshl_add_u32 v2, v12, 11, v2')
        a.emit('v_and_b32 v3, 3, v3')
    a.emit(f'v_lshl_add_u32 v2, v3, {8 if pair else 7}, v2')
    a.emit('s_and_b32 s3, s2, 7')
    a.emit(f's_lshr_b32 s3, s3, {4 - LMn}')
    a.emit(f's_mul_i32 s3, s3, {tilebytes if pair else (1 << (5 - LMn)) * tilebytes}')
    for i in range(NI):
        a.emit(f'buffer_load_dword v{vd+i}, v2, s[{sd}:{sd+3}], s3 offen')
        if i + 1 < NI: a.emit(f's_add_u32 s3, s3, {(64 >> sh) * ldw2}')
    return NI

_pfc = [0]
def pf_code(a, start, end, vd, forward=True):
    if 'nopfc' in DBG: return 0
    _pfc[0] += 1
    lab = f'L_pfc{_pfc[0]}'
    a.emit('s_getpc_b64 s[4:5]')
    a.label(lab)
    if forward:
        a.emit(f's_add_u32 s4, s4, {start}-{lab}')
        a.emit('s_addc_u32 s5, s5, 0')
    else:
        a.emit(f's_sub_u32 s4, s4, {lab}-{start}')
        a.emit('s_subb_u32 s5, s5, 0')
    a.emit(f's_and_b32 s3, s{S_WV}, 3')
    a.emit('s_lshl_b32 s3, s3, 13')
    a.emit('v_lshl_add_u32 v2, v1, 7, s3')
    a.emit(f'v_min_u32 v2, {end}-{start}-4, v2')
    a.emit(f'global_load_dword v{vd}, v2, s[4:5]')
    return 1

def wbase(a, vd, vt, g='v2', nr=False):
    if nr: a.emit(f'v_lshrrev_b32 v{vd}, 2, v1')
    else:
        a.emit(f'v_bfe_u32 v{vd}, v1, 2, 2')
        a.emit(f'v_lshl_add_u32 v{vd}, {g}, 3, v{vd}')
    a.emit(f'v_lshlrev_b32 v{vd}, 7, v{vd}')
    a.emit(f'v_and_b32 v{vt}, 3, v1')
    a.emit(f'v_lshl_add_u32 v{vd}, v{vt}, 3, v{vd}')
    a.emit(f'v_bfe_u32 v{vt}, v1, 3, 2')
    a.emit(f'v_lshl_add_u32 v{vd}, v{vt}, 5, v{vd}')


def code_touch(a, start, end, nb, sd=SX, loader=False):
    if ENV('CT', '1') == '0': return
    _pfc[0] += 1
    lab = f'L_pfc{_pfc[0]}'
    a.emit(f's_cmp_lg_u32 s{S_LAYER}, 0')
    a.emit(f's_cbranch_scc1 {lab}_skip')
    a.emit('s_getpc_b64 s[4:5]')
    a.label(lab)
    a.emit(f's_lshl_b32 s3, s{S_CU}, 2')
    a.emit(f's_add_u32 s3, s3, s{S_WV}')
    if loader: a.emit('s_sub_u32 s3, s3, 4')
    a.emit(f's_mul_i32 s3, s3, {nb}')
    a.emit(f's_min_u32 s3, s3, {end}-{start}-{nb}')
    a.emit(f's_add_i32 s3, s3, {start}-{lab}')
    a.emit('s_ashr_i32 s6, s3, 31')
    a.emit('s_add_u32 s4, s4, s3')
    a.emit('s_addc_u32 s5, s5, s6')
    for i in range(nb // 64):
        a.emit(f's_load_dword s{84 if loader else SW}, s[4:5], {64*i}')
    a.label(f'{lab}_skip')

def loader_first(a, kind):
    if ENV('LF', '1') == '0': return
    L = a.lines
    ib = max(i for i, l in enumerate(L) if l.strip() == f's_cbranch_scc1 L_{kind}_loader')
    il = L.index(f'L_{kind}_loader:')
    ie = L.index(f'L_{kind}_end:') + 2
    assert L[ie - 1].strip() == 's_endpgm' and L[ib - 1].strip().startswith('s_cmp_ge_u32')
    L[ib - 1] = L[ib - 1].replace('s_cmp_ge_u32', 's_cmp_lt_u32')
    L[ib] = f'  s_cbranch_scc1 L_{kind}_compute'
    a.lines = L[:ib + 1] + L[il:ie] + [f'L_{kind}_compute:'] + L[ib + 1:il] + L[ie:]

def clear_flags(a, part, n=0):
    if not ONE or DS: return
    if part == 0 and 'attn' not in OT: a.emit(f's_load_dwordx2 s[{SC}:{SC+1}], s[0:1], 72')
    a.emit(f's_or_b32 s3, s{S_LAYER}, s{S_WV}')
    a.emit(f's_cbranch_scc1 L_clr_skip{part}')
    if part == 0:
        srd(a, SP, 'ws0', WS_FL, FLS)
        a.emit('s_lshl_b32 s3, s2, 11')
        a.emit('v_lshlrev_b32 v2, 4, v1')
        a.emit(f'buffer_store_dwordx4 v[128:131], v2, s[{SP}:{SP+3}], s3 offen sc1')
        a.emit(f'buffer_store_dwordx4 v[128:131], v2, s[{SP}:{SP+3}], s3 offen offset:1024 sc1')
    else:
        a.emit('v_mov_b32 v3, 1')
        a.emit(f's_and_b32 s{SC+1}, s{SC+1}, 0xffff')
        a.emit(f's_mov_b32 s{SC+2}, 256')
        a.emit(f's_mov_b32 s{SC+3}, 0x00020000')
        a.emit('s_mov_b64 exec, 1')
        a.emit(f's_waitcnt vmcnt({n})')
        a.emit(f'buffer_store_byte v3, off, s[{SC}:{SC+3}], s2 sc1')
        a.emit('s_mov_b64 exec, -1')
    a.label(f'L_clr_skip{part}')

def mf_order(nn, nm, skip=lambda jn, jm: False):
    m = ENV('MFO', 's')
    if m == 'n': o = [(jn, jm) for jn in range(nn) for jm in range(nm)]
    elif m == 's': o = [(jn, jm if not jn & 1 else nm - 1 - jm) for jn in range(nn) for jm in range(nm)]
    elif m == 'm': o = [(jn, jm) for jm in range(nm) for jn in range(nn)]
    elif m == 'z': o = [(jn if not jm & 1 else nn - 1 - jn, jm) for jm in range(nm) for jn in range(nn)]
    elif m == 'd': o = [(i % nn, (i // nn + i % nn) % nm) for i in range(nn * nm)]
    return [x for x in o if not skip(*x)]
```

```python
from common import *
import re

def ktab(a, vt, sh, P1, P2, tb):
    a.emit('v_and_b32 v2, 3, v1')
    a.emit('v_lshlrev_b32 v2, 3, v2')
    a.emit(f'v_bfe_i32 v{vt}, s{tb}, v2, 8')
    a.emit(f's_and_b32 s3, s{S_MT}, 3')
    a.emit(f's_mul_i32 s4, s3, {P2 // 4}')
    a.emit(f'v_add3_u32 v3, v{vt}, v1, s4')
    if P1 & (P2 - 1): a.emit(f'v_subrev_u32 v3, {P1}, v3')
    a.emit(f'v_and_b32 v3, {P2 - 1}, v3')
    if P1:
        MR = int(ENV('MR', '4'))
        if NV: a.emit(f'v_cmp_gt_u32 vcc, {NV}, v1')
        a.emit(f's_mul_i32 s3, s3, {MR // 4}')
        if NV:
            a.emit(f's_and_b32 s4, s{S_NT}, 1')
            a.emit(f'v_cndmask_b32_e64 v{vt+1}, {P1 - NV}, {NV}, vcc')
            a.emit(f'v_cndmask_b32_e64 v2, {P1 - 2 * NV}, {NV}, vcc')
            a.emit(f'v_add3_u32 v{vt}, v{vt}, v1, v2')
            for _ in range(2):
                a.emit(f'v_sub_u32 v2, v{vt}, v{vt+1}')
                a.emit(f'v_min_u32 v{vt}, v{vt}, v2')
            a.emit(f'v_cndmask_b32_e64 v2, {NV}, 0, vcc')
            a.emit(f'v_add_u32 v{vt}, v{vt}, v2')
        else:
            a.emit(f'v_add3_u32 v{vt}, v{vt}, v1, {P1}')
            a.emit(f's_bitcmp1_b32 s{S_NT}, 0')
            a.emit(f's_cselect_b32 s4, {P1}, 0')
            for _ in range(2):
                a.emit(f'v_subrev_u32 v2, {P1}, v{vt}')
                a.emit(f'v_min_u32 v{vt}, v{vt}, v2')
        if MR:
            a.emit(f'v_cmp_gt_u32 vcc, {MR}, v{vt}')
            a.emit(f'v_add_u32 v2, s3, v{vt}')
            a.emit(f'v_subrev_u32 v{vt+1}, {MR}, v2')
            a.emit(f'v_min_u32 v2, v{vt+1}, v2')
            a.emit(f'v_cndmask_b32 v{vt}, v{vt}, v2, vcc')
        a.emit(f'v_cmp_gt_u32 vcc, {P1}, v1')
        a.emit(f'v_lshl_add_u32 v{vt}, v{vt}, 1, s4' if NV else f'v_add_u32 v{vt}, s4, v{vt}')
        a.emit(f'v_add_u32 v3, {2 * P1}, v3')
        a.emit(f'v_cndmask_b32 v3, v3, v{vt}, vcc')
    a.emit(f'v_lshlrev_b32 v{vt}, {sh}, v3')

def ktab_ot(a, vt, sh, tb):
    KS = int(ENV('KS2', '2'))
    a.emit(f's_add_u32 s3, s{S_MT}, s{S_HD}')
    a.emit('s_and_b32 s3, s3, 3')
    for g in range(4):
        o = list(range(17))
        for t in range(KS + g, 14, 4): o[t:t + 3] = [t + 2, t, t + 1]
        assert o[0] == 0 and o[16] == 16
        v = sum(((t - o[t]) & 3) << (2 * t) for t in range(16))
        if g: a.emit(f's_cmp_eq_u32 s3, {g}')
        a.emit(f's_cselect_b32 s4, {v:#x}, s4' if g else f's_mov_b32 s4, {v:#x}')
    P1 = int(ENV('P1', '23')); P2 = 56 - 2 * P1
    a.emit('v_subrev_u32 v2, 3, v1')
    if P1 > 20: a.emit('v_min_u32 v2, 16, v2')
    a.emit('v_lshlrev_b32 v3, 1, v2')
    a.emit(f'v_bfe_i32 v{vt}, s4, v3, 2')
    a.emit(f'v_sub_u32 v{vt}, v1, v{vt}')
    a.emit(f'v_subrev_u32 v{vt}, {7 if P1 > 20 else 6}, v{vt}')
    if EF:
        a.emit(f'v_subrev_u32 v3, 7, v{vt}')
        a.emit(f'v_min_u32 v3, v3, v{vt}')
        a.emit(f'v_cmp_eq_u32 vcc, s{S_HD}, v3')
        a.emit(f's_and_b32 s3, s{S_NT}, 1')
        a.emit(f'v_cmp_lt_i32 s[4:5], 6, v{vt}')
        a.emit(f'v_cndmask_b32_e64 v3, v3, 7, vcc')
        a.emit('s_nop 0')
        a.emit('v_addc_co_u32 v2, vcc, v3, v3, s[4:5]')
    else:
        a.emit(f'v_ashrrev_i32 v3, 1, v{vt}')
        a.emit(f'v_cmp_eq_u32 vcc, s{S_HD}, v3')
        a.emit(f's_and_b32 s3, s{S_NT}, 1')
        a.emit(f'v_or_b32 v2, 14, v{vt}')
        a.emit(f'v_cndmask_b32 v2, v{vt}, v2, vcc')
    a.emit(f'v_cmp_gt_i32 vcc, 0, v{vt}')
    a.emit(f's_lshl2_add_u32 s4, s3, {20 if P1 > 20 else 19}')
    a.emit(f'v_add_u32 v{vt}, s4, v{vt}')
    a.emit('s_lshl4_add_u32 s4, s3, 24')
    a.emit('v_add_u32 v2, s4, v2')
    a.emit(f'v_cndmask_b32 v{vt}, v2, v{vt}, vcc')
    if P1 > 20:
        a.emit(f's_and_b32 s5, s{S_MT}, 3')
        a.emit(f"s_mul_i32 s5, s5, {ENV('RCM', '3')}")
        a.emit(f's_sub_u32 s5, s5, {P1}')
        a.emit('v_add_u32 v3, s5, v1')
        for _ in range(2):
            a.emit(f'v_subrev_u32 v2, {P2}, v3')
            a.emit('v_min_u32 v3, v3, v2')
        a.emit(f'v_cmp_gt_u32 vcc, {P1}, v1')
        a.emit(f's_sub_u32 s5, s3, {2 * P1}')
        a.emit('v_lshl_add_u32 v2, v1, 1, s5')
        a.emit('v_cndmask_b32 v3, v3, v2, vcc')
        a.emit(f's_add_u32 s5, s{S_HD}, {P1 - 20}')
        a.emit('v_ashrrev_i32 v2, 1, v3')
        a.emit('v_add_u32 v2, s5, v2')
        a.emit('v_and_b32 v2, 7, v2')
        a.emit('v_and_b32 v3, 1, v3')
        a.emit('v_cmp_gt_u32 vcc, 21, v1')
        a.emit('v_lshl_add_u32 v3, v3, 3, v2')
        a.emit(f's_lshl1_add_u32 s4, s{S_HD}, s4')
        a.emit(f's_lshl3_add_u32 s3, s3, s{S_HD}')
        a.emit(f'v_cndmask_b32 v3, v3, v{vt}, vcc')
        a.emit('v_writelane_b32 v3, s4, 0')
        a.emit('s_add_u32 s4, s4, 1')
        a.emit('v_writelane_b32 v3, s3, 2')
        a.emit('v_writelane_b32 v3, s4, 1')
        if OH == 2 and sh == 11:
            a.emit('v_cmp_lt_u32 vcc, 23, v3')
            a.emit('v_lshrrev_b32 v2, 1, v3')
            a.emit(f'v_and_b32 v{vt}, 1, v3')
            a.emit(f'v_lshl_add_u32 v2, v{vt}, 4, v2')
            a.emit('v_add_u32 v2, 12, v2')
            a.emit('v_cndmask_b32 v3, v3, v2, vcc')
        a.emit(f'v_lshlrev_b32 v{vt}, {sh}, v3')
        return
    a.emit('v_and_b32 v2, 3, v1')
    a.emit('v_lshlrev_b32 v2, 3, v2')
    a.emit(f'v_bfe_i32 v3, s{tb}, v2, 8')
    a.emit(f's_lshl2_add_u32 s5, s{S_MT}, 12')
    a.emit('v_add3_u32 v3, v3, v1, s5')
    a.emit('v_and_b32 v2, 7, v3')
    a.emit(f'v_cmp_eq_u32 vcc, s{S_HD}, v2')
    a.emit('v_bfe_u32 v2, v3, 3, 1')
    a.emit('v_lshl_add_u32 v2, v2, 2, 19')
    a.emit('v_and_b32 v3, 15, v3')
    a.emit('v_cndmask_b32 v3, v3, v2, vcc')
    a.emit('v_cmp_gt_u32 vcc, 20, v1')
    a.emit(f's_lshl1_add_u32 s4, s{S_HD}, s4')
    a.emit(f's_lshl3_add_u32 s3, s3, s{S_HD}')
    a.emit(f'v_cndmask_b32 v3, v3, v{vt}, vcc')
    a.emit('v_writelane_b32 v3, s4, 0')
    a.emit('s_add_u32 s4, s4, 1')
    a.emit('v_writelane_b32 v3, s3, 2')
    a.emit('v_writelane_b32 v3, s4, 1')
    a.emit(f'v_lshlrev_b32 v{vt}, {sh}, v3')

EVX, EVT, EVB = 24, 30, 27; EBIA = [4, 10, 124, 126]; ERING = [128, 144, 224, 64, 80, 240]
def w2_pre(a):
    P1 = int(ENV('P1', '23'))
    tile_map(a, 2, None, pair=True)
    rot_table(a, S_TB, S_MT, S_HD, 'w2')
    ktab(a, EVT, 11, P1, 56 - 2 * P1, S_TB)
    a.emit(f's_lshl_b32 s8, s{S_MT}, 7')
    a.emit(f's_lshl_b32 s9, s{S_WV}, 5')
    a.emit('s_add_u32 s8, s8, s9')
    a.emit('s_mul_i32 s9, s8, 7168')
    a.emit(f'v_lshl_add_u32 v{EVX}, v1, 4, s9')
    a.emit(f'v_add_u32 v{EVX+1}, {16*7168}, v{EVX}')
    a.emit('v_lshrrev_b32 v2, 4, v1')
    a.emit(f's_lshl_b32 s10, s{S_NT}, 7')
    a.emit(f'v_lshl_add_u32 v{EVB}, v2, 3, s10')

def w2_early(a):
    NG = int(ENV('NG2', '3'))
    for x in range(NG): a.emit(f'v_readlane_b32 s{SR+x}, v{EVT}, {x}')
    srd(a, SB, 'b2', 0, 2048)
    srd(a, SX, 'ws', WS_H, 2048 * 7168)
    for jn in range(4):
        a.emit(f'buffer_load_dwordx2 v[{EBIA[jn]}:{EBIA[jn]+1}], v{EVB}, s[{SB}:{SB+3}], 0 offen offset:{jn*32}')
    for x in range(NG):
        for ks in range(2):
            for jm in range(2):
                r = ERING[x] + (ks * 2 + jm) * 4
                a.emit(f'buffer_load_dwordx4 v[{r}:{r+3}], v{EVX+jm}, s[{SX}:{SX+3}], s{SR+x} offen offset:{ks*1024}')

def gen_gemm64y(a, kind, tsidx, side):
    K = 1024 if kind == 'wo' else 3584
    lda2 = 7168 if OH else K * 2; ldw2 = 2048
    N = K // 64
    P1 = int(ENV('P1', '23')) if kind == 'w2' else 0
    P2 = N - 2 * P1
    B16 = ENV('XB16', '1') == '1'
    NXC = 4 if B16 else 8; CH = NXC * 1024
    G0, GW = (131072, 28672) if kind == 'wo' else (0, 0)
    def slot(t):
        if kind == 'wo' and 'w1' in OT: return 28672 + 8192 * t + (4096 if t >= 12 else 0)
        g = G0 + (t >> 2) * 32768
        if g >= 163840: g = GW + (g - 163840) % (163840 - GW)
        return g + (t & 3) * 8192
    XB = 131072
    HR = int(ENV('HR', '6')) if P1 else 0
    sched = [(t >> 1, t & 1) for t in range(2 * (P1 - HR))] + [(x, u) for u in (0, 1) for x in range(P1 - HR, P1)] + [(x, 1) for x in range(P1, P1 + P2)]
    TU = 2 * P1 - max(HR, 1)
    NPRE = int(ENV('NPREO', '16')) if kind == 'wo' else int(ENV('NPRE', '20'))
    PSTEP = 64 if kind == 'w2' else 1024
    body = f'L_{kind}_body'; end = f'L_{kind}_end'
    VXO, VWB, VWA, VO, VT, VE = 4, 6, 26, 12, 15, 19
    XR = 32; FW = [160, 192]; ACC = [128, 96]; D = 240; BIA = 192
    SPC = NV if P1 else 0
    BIA = [BIA + 2 * jn for jn in range(4)]
    if SPC: VXO, VT, ACC, BIA = EVX, EVT, [32, 96], EBIA
    ot = kind == 'w2' and 'w2' in OT
    if ot: BIA = OBIA; assert P1 >= 20 and not SPC
    PW = ot and LF2 == 2
    SU = SW if PW else SO
    if PW: VT = 30
    acc = lambda jn, jm, u=1: ACC[u] + (jn * 2 + jm) * 4
    fx = lambda r, ks, jm: XR + 16 * r + (ks * 2 + jm) * 4
    fw = lambda s, ks, jn: FW[s] + (ks * 4 + jn) * 4
    a.label(f'L_{kind}_c0')
    a.label(body)
    tile_map(a, 2, end, pair=True)
    rot_table(a, S_TB, S_MT, S_HD, kind)
    a.emit(f's_cmp_ge_u32 s{S_WV}, 4')
    a.emit(f's_cbranch_scc1 L_{kind}_loader')
    iA = len(a.lines)
    ownx = [f'ds_read_b128 v[{32+4*i}:{35+4*i}], v2 offset:{(i>>2)*16384+(i&1)*2048+(i&2)*512}' for i in range(12)]
    if PW:
        a.emit(f's_lshr_b32 s3, s{S_NT}, 3')
        a.emit(f's_and_b32 s{S_HD}, s{S_NT}, 7')
        a.emit(f's_lshl1_add_u32 s{S_NT}, s{S_HD}, s3')
        ktab_ot(a, VT, 11, S_TB)
    elif ot:
        a.emit(f's_lshl_b32 s3, s{S_WV}, 12')
        a.emit(f's_add_u32 s3, s3, {OHB}')
        a.emit('v_lshl_add_u32 v2, v1, 4, s3')
        for i in range(12): a.emit(f'ds_read_b128 v[{32+4*i}:{35+4*i}], v2 offset:{(i>>2)*16384+(i&1)*2048+(i&2)*512}')
        ktab_ot(a, VT, 11, S_TB)
        if 'xhit' in DBG: a.emit(f'v_and_b32 v{VT}, 0x1800, v{VT}')
        if ENV('RE', '1') == '1' and not EF:
            a.emit('s_waitcnt lgkmcnt(0)')
            a.emit('s_barrier')
    elif SPC: tile_map(a, 2, None, pair=True)
    else: ktab(a, VT, 12 if OH == 1 else 11, P1, P2, S_TB)
    a.emit('v_and_b32 v3, 15, v1')
    a.emit('v_lshrrev_b32 v2, 4, v1')
    a.emit(f's_lshl_b32 s8, s{S_MT}, 7')
    a.emit(f's_lshl_b32 s9, s{S_WV}, 5')
    a.emit('s_add_u32 s8, s8, s9')
    a.emit(f's_mul_i32 s9, s8, {lda2}')
    if 'xsm' in DBG:
        a.emit('s_and_b32 s9, s8, 0x67f')
        a.emit(f's_mul_i32 s9, s9, {lda2}')
    if not SPC and ENV('TID', '1') != '1':
        a.emit(f'v_lshl_add_u32 v{VXO}, v1, 4, s9')
        a.emit(f'v_add_u32 v{VXO+1}, {16*lda2}, v{VXO}')
    E2 = ot and EF == 2
    if E2: xpitch(a, 7, True)
    iB = len(a.lines)
    a.emit('v_add_u32 v13, s8, v3')
    a.emit(f's_lshl_b32 s10, s{S_NT}, 7')
    a.emit('v_lshl_add_u32 v14, v2, 3, s10')
    a.emit('v_and_b32 v16, 1, v2')
    a.emit('v_lshrrev_b32 v17, 1, v2')
    F2 = ENV('FL', '2') == '2'
    if kind == 'w2' and F2:
        assert 'attn' in OT
        a.emit('v_lshlrev_b32 v4, 3, v3')
        a.emit('v_and_b32 v4, 0x70, v4')
        a.emit('v_lshlrev_b32 v16, 3, v2')
        a.emit('v_xor_b32 v4, v4, v16')
        a.emit('v_lshl_add_u32 v4, v3, 7, v4')
        a.emit(f's_lshl_b32 s3, s{S_WV}, 12')
        a.emit('v_add_u32 v4, s3, v4')
        a.emit('v_lshl_add_u32 v5, v1, 4, s3')
        if not E2: xpitch(a, 7, True)
        a.emit('v_xor_b32 v16, v1, v2')
        a.emit('v_and_b32 v16, 7, v16')
        a.emit('v_lshl_add_u32 v16, v16, 4, s10')
        a.emit('v_lshrrev_b32 v14, 3, v1')
        a.emit('v_add_u32 v14, s8, v14')
        a.emit(f'v_mad_u32_u24 v{VO}, v14, s7, v16')
        FL = False
    elif kind == 'w2':
        a.emit('v_lshlrev_b32 v16, 5, v16')
        a.emit('v_lshl_add_u32 v16, v17, 4, v16')
        if 'attn' in OT:
            a.emit('v_lshlrev_b32 v4, 3, v3')
            a.emit('v_and_b32 v4, 0x70, v4')
            a.emit('v_xor_b32 v4, v4, v16')
            a.emit('v_lshl_add_u32 v4, v3, 7, v4')
            a.emit(f's_lshl_b32 s3, s{S_WV}, 12')
            a.emit('v_add_u32 v4, s3, v4')
            a.emit('v_xor_b32 v5, 64, v4')
        a.emit('v_add_u32 v16, s10, v16')
        if not E2: xpitch(a, 7, True)
        FL = ENV('FL', '2') == '1'
        if FL:
            a.emit('v_and_b32 v14, 8, v3')
            a.emit('v_lshl_add_u32 v16, v14, 3, v16')
            a.emit('v_sub_u32 v14, v13, v14')
            assert ot
        a.emit(f'v_mad_u32_u24 v{VO}, v{14 if FL else 13}, s7, v16')
    else:
        if 'w1' in NS: a.emit('v_lshlrev_b32 v16, 4, v1')
        else:
            a.emit('v_lshl_add_u32 v16, v16, 1, v17')
            a.emit('v_lshlrev_b32 v16, 8, v16')
            a.emit('v_lshl_add_u32 v16, v3, 4, v16')
        a.emit(f's_add_u32 s9, s8, s{S_NT}')
        a.emit('s_lshl_b32 s9, s9, 11')
        a.emit(f'v_add_u32 v{VO}, s9, v16')
        if 'w1' in OT:
            a.emit(f's_lshl_b32 s9, s{S_WV}, 12')
            a.emit(f'v_add_u32 v{VE}, s9, v16')
    a.emit('v_lshl_add_u32 v18, v17, 4, v13')
    a.emit('v_lshlrev_b32 v18, 3, v18')
    a.emit('v_and_b32 v16, 1, v2')
    a.emit('v_lshl_add_u32 v18, v16, 2, v18')
    a.emit(f's_lshl_b32 s10, s{S_NT}, 14')
    a.emit('v_add_u32 v18, s10, v18')
    nr = kind in NS and NSR
    wbase(a, VWB, 17, nr=nr)
    for i in range(1, 1 if PW else 4): a.emit(f'v_xor_b32 v{VWB+i}, {32*i}, v{VWB}')
    a.emit('s_mov_b32 s11, 0xffff0000')
    if E2: bl = a.lines[iB:]; del a.lines[iB:]
    if kind == 'wo':
        srd(a, SX, 'ws', WS_H + OHO if OH else WS_O, 4 * MB)
        srd(a, SO, 'ws', WS_X1, 4 * MB)
    else:
        if not SPC:
            if not ot: srd(a, SB, 'b2', 0, 2048)
            for jn in range(0 if ot else 4):
                a.emit(f'buffer_load_dwordx2 v[{BIA[jn]}:{BIA[jn]+1}], v14, s[{SB}:{SB+3}], 0 offen offset:{jn*32}')
            srd(a, SX, ENV('HB', 'ws'), WS_H, 2048 * 7168)
        srd(a, SU, 'out', 0, 4 * MB)
        srd(a, SR, 'ws0', WS_X2, 4 * MB)
        a.emit(f's_cmp_eq_u32 s{S_LAYER}, 0')
        a.emit(f's_cselect_b64 s[{SU}:{SU+1}], s[{SR}:{SR+1}], s[{SU}:{SU+1}]')
        a.emit(f's_lshl_b32 s{SU+2}, s7, 11')
        if E2:
            for x in range(3, 5): a.emit(f'v_readlane_b32 s{SR+(x&3)}, v{VT}, {x}')
    if not E2: srd(a, ST, 'ws', WS_ST if kind == 'wo' else WS_ST2, 16 * 16384)
    TID = ENV('TID', '1') == '1'
    if TID:
        a.emit(f's_mul_i32 s9, s8, {lda2}')
        if OH and P1 and not PW: a.emit(f's_add_u32 s9, s9, s{S_T}')
        a.emit(f's_add_u32 s{SX}, s{SX}, s9')
        a.emit(f's_addc_u32 s{SX+1}, s{SX+1}, 0x100000')
        a.emit(f's_add_u32 s{SC}, s{SX}, {16 * lda2}')
        a.emit(f's_addc_u32 s{SC+1}, s{SX+1}, 0')
        for r in (SX, SC):
            a.emit(f"s_mov_b32 s{r+2}, {16 * lda2 - (OHO if kind == 'wo' else 0)}")
            a.emit(f's_mov_b32 s{r+3}, 0x00800000')
    if E2:
        RB = int(ENV('RB', '0'))
        a.lines += bl[:RB]
        a.emit('s_waitcnt vmcnt(0) lgkmcnt(0)')
        a.emit('s_barrier')
        iR = len(a.lines)
        a.lines += bl[RB:]
        srd(a, ST, 'ws', WS_ST2, 16 * 16384)
    if kind == 'wo':
        if ENV('CT2', 'l') == 'l': code_touch(a, 'L_w1_c0', 'L_w1_c1', 128, SW)
        elif ENV('CT2') == 'o': code_touch(a, 'L_w2_c0', 'L_w2_c1', 192, SW)
        else: code_touch(a, 'L_w1_c0', 'L_w2_c1', 320, SW)
    DX = int(ENV('DX', '2'))
    CLW = DX == 1 and not P1 and ENV('CLP', 'e') == 'w'
    if CLW:
        for i in range(4): a.emit(f'v_mov_b32 v{128+i}, -1')
    if (P1 and DX) or CLW:
        srd(a, SP, 'ws', WS_XP, 4 * MB)
        a.emit(f's_or_b32 s{SP+1}, s{SP+1}, 0x100000')
        a.emit(f's_mov_b32 s{SP+3}, 0x00800000')
        a.emit(f's_lshl4_add_u32 s4, s{S_MT}, s{S_NT}')
        a.emit(f's_lshl2_add_u32 s4, s4, s{S_WV}')
        if DX == 2:
            if not PW: srd(a, SB, 'ws0', WS_FL, FLS)
            a.emit(f's_add_u32 s6, s{S_LAYER}, 4')
            a.emit('s_lshl_b32 s6, s6, 10')
            a.emit('s_add_u32 s6, s6, s4')
            a.emit('s_lshl_b32 s6, s6, 6')
            if not PW: a.emit(f'v_mov_b32 v{VE}, 1')
        a.emit('s_lshl_b32 s4, s4, 12')
        a.emit('s_xor_b32 s5, s4, 16384')
    elif P1:
        a.emit(f's_mul_i32 s3, s{S_WV}, {CH}')
        a.emit(f's_add_u32 s3, s3, {XB}')
        a.emit(f'v_lshl_add_u32 v{VE}, v1, 4, s3')
    if P1 and not ot:
        for i in range(32): a.emit(f'v_mov_b32 v{ACC[0]+i}, 0')
    bases = []
    for t in sorted(range(min(N, 20)), key=slot):
        if not bases or slot(t) + 8191 - bases[-1] > 65535: bases.append(slot(t))
    VSET = [VWB, 20, 26]
    fil = [f'v_add_u32 v{VSET[k]+i}, {bases[k]}, v{VWB+i}' for k in (2, 1, 0) for i in range(4) if bases[k] or k]
    if not PW:
        for x in fil: a.emit(x)
    xof = lambda t: sched[t][0]
    NX = P1 + P2
    last = lambda x: sched.index((x, 1))
    def xl(x, reg):
        if TID: return [(f'buffer_load_dwordx4 v[{reg+(ks*2+jm)*4}:{reg+(ks*2+jm)*4+3}], off, s[{(SX, SC)[jm]}:{(SX, SC)[jm]+3}], s{SR+(x&3)} offset:{ks*1024}' + (ENV('XLF', ' sc1') if OH and P1 else ''), 'V', ('x', x, ks))
                for ks in range(2) for jm in range(2)]
        return [(f'buffer_load_dwordx4 v[{reg+(ks*2+jm)*4}:{reg+(ks*2+jm)*4+3}], v{VXO+jm}, s[{SX}:{SX+3}], s{SR+(x&3)} offen offset:{ks*1024}', 'V', ('x', x, ks))
                for ks in range(2) for jm in range(2)]
    def reads(t):
        o = []
        k = max(i for i, b in enumerate(bases) if b <= slot(t))
        for ks in range(2):
            for jn in range(4):
                for h in range(2):
                    d = fw(t & 1, ks, jn) + 2 * h
                    o.append((f'ds_read_b64_tr_b16 v[{d}:{d+1}], v{VSET[k]+jn} offset:{slot(t)-bases[k]+ks*4096+h*(2048 if nr else 512)}', 'L', ('w', t, ks)))
        return o
    xreg = {}
    def mf(t):
        o = []
        for ks in range(2):
            for jn, jm in mf_order(4, 2):
                if True:
                    c = acc(jn, jm, sched[t][1]); x = xreg[xof(t)] + (ks * 2 + jm) * 4
                    o.append(f'v_mfma_f32_16x16x32_bf16 v[{c}:{c+3}], v[{fw(t&1,ks,jn)}:{fw(t&1,ks,jn)+3}], v[{x}:{x+3}], ' + ('0' if ot and t == ks == 0 else f'v[{c}:{c+3}]'))
        return o
    U = kind[1].upper()
    NG = int(ENV('NG' + U, '3'))
    ring = [32, 48, 64, 80, 224, 240][:int(ENV('RING' + U, '6' if P1 else '4'))]
    NB = 2 if E2 else int(ENV('NB', '3'))
    if SPC: ring = ERING
    elif ot:
        assert NG == 3
        for x in range(3, 3 if E2 else 3 + NB): a.emit(f'v_readlane_b32 s{SR+(x&3)}, v{VT}, {x}')
    else:
        for x in range(NG): a.emit(f'v_readlane_b32 s{SR+x}, v{VT}, {x}')
    if PW:
        assert F2 and DX == 2 and TID
        ren = {'v4': 'v26', 'v5': 'v27', 'v12': 'v28', 'v18': 'v29', 'v6': 'v8', 'v13': 'v76', 'v14': 'v77', 'v16': 'v78', 'v17': 'v79', 's10': 's14'}
        pa = [re.sub(r'\b[vs]\d+\b', lambda m: ren.get(m.group(0), m.group(0)), l) for l in a.lines[iA:]]
        del a.lines[iA:]
        for x in ('s_mul_i32 s9, s8, 7168', 'v_lshl_add_u32 v77, v2, 3, s14', 'v_and_b32 v78, 1, v2', f's_mov_b32 s{SX+2}, 14680064', f's_mov_b32 s{SX+3}, 0x00020000',
                  f's_mov_b32 s{SU+2}, 4194304', f's_mov_b32 s{SR+2}, 4194304', f's_mov_b32 s{SR+3}, 0x00020000', f's_mov_b32 s{SP+3}, 0x00020000',
                  'v_writelane_b32 v3, s4, 0', 's_add_u32 s4, s4, 1', 'v_writelane_b32 v3, s3, 2', 'v_writelane_b32 v3, s4, 1', f's_lshl1_add_u32 s4, s{S_HD}, s4', f's_lshl3_add_u32 s3, s3, s{S_HD}'):
            pa.remove('  ' + x)
        i = pa.index('  v_lshl_add_u32 v3, v3, 3, v2'); pa[i - 2], pa[i - 1] = pa[i - 1], pa[i - 2]
        MA = int(ENV('MA', '50'))
        i = a.lines.index('@W2A'); a.lines[i:i + 1] = pa[MA:]
        i = a.lines.index('@W2G'); a.lines[i:i + 1] = pa[:MA]
        fil = [f'v_mov_b32 {k}, {ren[k]}' for k in ('v4', 'v5', 'v12', 'v18')] + [f'v_mov_b32 v{VE}, 1'] + fil[4:] + fil[:4]
        b = Asm(); srd(b, SB, 'ws0', WS_FL, FLS); fil += [l.strip() for l in b.lines]
    if kind == 'wo' and F2:
        a.emit(f's_cmp_lg_u32 s{S_LAYER}, 0')
        a.emit('s_cbranch_scc1 L_wo_nosw')
    for i in range(0 if kind == 'w2' and 'w1' in NS else 4):
        for h in range(2): a.emit(f'v_permlane16_swap_b32 v{D+4*i+h}, v{D+4*i+2+h}')
    if kind == 'wo' and F2: a.label('L_wo_nosw')
    TF = int(ENV('TF', '-1')); TG = int(ENV('TG', '15'))
    if SF:
        a.emit('v_mov_b32 v13, -1')
        a.emit(f'buffer_store_dword v13, v18, s[{ST}:{ST+3}], 0 offen sc1')
        assert not E2
    import pads
    for x in pads.chain('hg') if kind == 'wo' else []: a.emit(x)
    if not PW: a.emit('s_waitcnt lgkmcnt(0)' + (f' vmcnt({4 * NG + 4 if EX == 14 else 0})' if SPC and TF < 0 else ''))
    if not (ot and ENV('RE', '1') == '1'): a.emit('s_barrier')
    pre = []
    for x in range(NG):
        xreg[x] = ring[x]; pre += xl(x, ring[x])
    if SPC: pre = [('', k, tg) for _, k, tg in pre] + [('', 'V', 'st')] * (14 - EX)
    if ot: pre = [('', 'L', tg) for _, k, tg in pre] + [('', 'V', 'st')] * (EF == 1)
    if E2:
        xe = xl(3, ring[3]) + xl(4, ring[4])
        XD_ = int(ENV('XED', '8'))
        for i, y in enumerate(xe): a.lines.insert(iR + i * (XD_ + 1), '  ' + y[0])
        pre += [('', k, tg) for _, k, tg in xe]
    if PW:
        pre = [(y, 'L', p[2]) for y, p in zip(ownx, pre)]
        pre = pre[:2] + reads(0)[:8] + pre[2:4] + reads(0)[8:] + pre[4:]
    else: pre += reads(0)
    npre = len(pre)
    P = lambda x: (x, '', None)
    if kind == 'w2' and not ot: pre.append(P(f's_waitcnt vmcnt({len(pre) - 16})'))
    for jn in range(4):
        if kind == 'w2':
            for h in range(2):
                pre.append(P(f'v_lshlrev_b32 v{216+2*h}, 16, v{BIA[jn]+h}'))
                pre.append(P(f'v_and_b32 v{217+2*h}, s11, v{BIA[jn]+h}'))
        for jm in range(2):
            c = acc(jn, jm); r = D + (jm * 4 + jn) * 2
            for h in range(2):
                pre.append(P(f'v_lshlrev_b32 v{c+2*h}, 16, v{r+h}'))
                pre.append(P(f'v_and_b32 v{c+2*h+1}, s11, v{r+h}'))
                if kind == 'w2': pre.append(P(f'v_pk_add_f32 v[{c+2*h}:{c+2*h+1}], v[{c+2*h}:{c+2*h+1}], v[{216+2*h}:{217+2*h}]'))
    if PW:
        NI = int(ENV('NI', '64'))
        pb = [f'v_add_u32 v2, {OHB}, v27', 'v_mov_b32 v6, v8', 'v_xor_b32 v7, 32, v8', 'v_xor_b32 v9, 96, v8', 'v_xor_b32 v8, 64, v8', 's_waitcnt vmcnt(14)'] + [x[0] for x in pre[npre:npre + NI]]
        del pre[npre:npre + NI]
        i = a.lines.index('@W2B'); a.lines[i:i + 1] = ['  ' + x for x in pb]
    pre.append(('', 'W', [('w', 0, 0), ('x', 0, 0)]))
    if TS:
        b = Asm(); stamp(b, 1); pre += [P(l.strip()) for l in b.lines]
    gp = [[] for _ in range(16 * N + 1)]
    waits = {}
    for t in range(N):
        if t + 1 < N:
            for i, x in enumerate(reads(t + 1)): gp[16 * t + i].append(x)
        for g, tt, ks in ((16 * t + 7, t, 1), (16 * t + 15, t + 1, 0)):
            if tt < N:
                waits[g] = [('w', tt, ks), ('x', xof(tt), ks)]
                gp[g].append(('', 'W', waits[g]))
    def put(g, x, cap=2):
        while len(gp[g]) >= cap and g < 16 * N: g += 1
        gp[g].append(x); return g
    if PW:
        for x in fil: put(0, P(x))
    BP = int(ENV('BP', '4'))
    ZS = int(ENV('ZS', '50' if DX else '54')) if P1 else N - 1
    XS = int(ENV('XS', '43' if DX else '41'))
    PS = int(ENV('PS', '0'))
    bars = list(range(BP - 1, min(2 * P1, XS - 1), BP)) + [XS] + ([PS] if PS else []) + ([] if DX == 1 else [ZS]) if P1 else [int(x) for x in ENV('BWO', ('4,13' if WD == 'c' else '3,10') if 'w1' in OT else '3,7,12').split(',')]
    if SPC:
        bars = [TF] + [t for t in bars if t > TF + 1]
        assert TG in bars
        if EX < 14 and TF >= 0: waits[16 * TF + 7].append('st')
    if ot: bars = [int(x) for x in ENV('BW2', '1,7' if PW else ['2,7', '1,7', '3,7'][EF]).split(',')] + bars[2:]
    TG2 = int(ENV('TG2', '11'))
    if ot and EF == 1: waits[16 * bars[0] + 7].append('st')
    if ot and EF: assert TG2 in bars
    for t in bars:
        if t >= 0: gp[16 * t + 7].append(P('s_barrier'))
    G = ACC[0]; GI = G + 16 if B16 else G
    pool = [[r, -1 if i >= NG else 16 * last(i) + 15, N] for i, r in enumerate(ring)]
    if P1:
        for i in range(int(ENV('RINGX', '0'))): pool.append([G + 16 * i, 16 * XS + 7, ZS])
    SP1 = int(ENV('SP1', '6')); SP2 = int(ENV('SP2', '3'))
    g = 0
    for x in range(NG, NX):
        sl = min((p for p in pool if last(x) < p[2]), key=lambda p: p[1])
        xreg[x] = sl[0]
        if SPC and x == SPC: g = max(g, 16 * TG + 7)
        if ot and EF and x == 11: g = max(g, 16 * TG2 + 7)
        if E2 and x < 5:
            assert sl[0] == ring[x]
            sl[1] = 16 * last(x) + 15
            continue
        if ot and x < 3 + NB:
            g = 16 * bars[0] + 7
            gp[g] += xl(x, sl[0]); sl[1] = 16 * last(x) + 15; g += 3
            continue
        g = put(max(g - 2, sl[1] - 2, 0), P(f'v_readlane_b32 s{SR+(x&3)}, v{VT}, {x}')) + 3
        sp = SP1 if len(ring) + (int(ENV('CU2', '2')) if ot else 0) <= x and g < 16 * int(ENV('SPE', str(TU + 1))) else SP2
        sps = [int(c) for c in ENV('SP3', '4')] if P1 and 12 <= x and sp == SP2 else [sp]
        for i, y in enumerate(xl(x, sl[0])): g = put(max(g, sl[1] + 1), y) + sps[i % len(sps)]
        sl[1] = 16 * last(x) + 15
    for i in range(4): put(16 * (N - 1), P(f'v_mov_b32 v{20+i}, 0'))
    if CLW:
        g = max(g, int(16 * float(ENV('CLG', '0'))))
        for i in range(4): g = put(g, (f'buffer_store_dwordx4 v[128:131], off, s[{SP}:{SP+3}], s4 offset:{1024*i} sc1', 'V', 'cl')) + int(ENV('CLD', '2'))
    def xld(i): return f'buffer_load_dwordx4 v[{GI+4*i}:{GI+4*i+3}], off, s[{SP}:{SP+3}], s5 offset:{1024*i} sc1'
    def vmax(d, r):
        return [f'v_max3_u32 v{d}, v{r}, v{r+1}, v{r+2}'] + [f'v_max3_u32 v{d}, v{d}, v{r+j}, v{r+j+1}' for j in range(3, 15, 2)] + [f'v_max_u32 v{d}, v{d}, v{r+15}', f'v_cmp_eq_u32 vcc, -1, v{d}']
    if P1 and DX:
        g = 16 * TU + 2
        for i in range(4):
            for j in range(4 * i, 4 * i + 4): g = put(g, P(f'v_cvt_pk_bf16_f32 v{G+j}, v{G+2*j}, v{G+2*j+1}'))
            put(max(g + 1, 16 * TU + 6 + i * int(ENV('XWS', '0'))), (f'buffer_store_dwordx4 v[{G+4*i}:{G+4*i+3}], off, s[{SP}:{SP+3}], s4 offset:{1024*i} sc1', 'V', 'xw'))
        g = int(16 * float(ENV('RS', '50')))
        if DX == 2:
            g = put(int(16 * float(ENV('FS', '44'))), ('', 'W', ['xw']))
            put(g, (f'buffer_store_dword v{VE}, off, s[{SB}:{SB+3}], s6 sc1', 'V', 'xf'))
            g = 16 * ZS + 8
        for i in range(4): g = put(g, (xld(i), 'V', 'xr')) + int(ENV('RSP', '2'))
        g = put(int(16 * float(ENV('VS', '53.5' if DX == 1 else '54'))), ('', 'W', ['xr']))
        if DX == 1:
            for y in vmax(VE, GI): g = put(g, P(y))
            g = put(g + 1, P(f's_cbranch_vccnz L_{kind}_xrt\nL_{kind}_xok:'))
        for i in range(16):
            g = put(g, P(f'v_lshlrev_b32 v{G+2*i}, 16, v{GI+i}'), 2 if g < 16 * (N - 1) else 3)
            g = put(g, P(f'v_and_b32 v{G+2*i+1}, s11, v{GI+i}'), 2 if g < 16 * (N - 1) else 3)
    elif P1:
        g = 16 * (2 * P1 - 1) + 2
        for i in range(NXC):
            if B16:
                for j in range(4 * i, 4 * i + 4): g = put(g, P(f'v_cvt_pk_bf16_f32 v{G+j}, v{G+2*j}, v{G+2*j+1}'))
            gw = put(max(g + 1, 16 * (2 * P1 - 1) + 8 + 2 * i), (f'ds_write_b128 v{VE}, v[{G+4*i}:{G+4*i+3}] offset:{1024*i}', 'L', 'xw'))
        assert gw < 16 * XS + 7
        waits[16 * XS + 7].append('xw')
        g = 16 * ZS + 8
        for i in range(NXC): g = put(g, (f'ds_read_b128 v[{GI+4*i}:{GI+4*i+3}], v{VE} offset:{1024*i}', 'L', 'xr')) + 1
        g = put(max(g + 6, 16 * (N - 1)), ('', 'W', ['xr']))
        if B16:
            for i in range(16):
                g = put(g, P(f'v_lshlrev_b32 v{G+2*i}, 16, v{GI+i}'), 3)
                g = put(g, P(f'v_and_b32 v{G+2*i+1}, s11, v{GI+i}'), 3)
    XG = int(ENV('XG', '1'))
    if XG:
        isr = lambda y: y[1] == 'L' and y[2][0] == 'w'
        for g in range(16 * N - 1):
            if len(gp[g]) == 2 and gp[g][1][1] == 'V' and isr(gp[g][0]):
                for d in ((1, -1) if XG == 1 else (-1, 1)):
                    if len(gp[g + d]) == 1 and isr(gp[g + d][0]) and (d > 0 or g & 15):
                        gp[g + d].insert(0 if d > 0 else 1, gp[g].pop(0)); break
    lin = list(pre)
    for t in range(N):
        for i, m in enumerate(mf(t)):
            lin.append(P(m)); lin += gp[16 * t + i]
        if TS and t == int(ENV('ST2', '99')):
            b = Asm(); stamp(b, 2); lin += [P(l.strip()) for l in b.lines]
    lin += gp[16 * N]
    nbc = [0]
    def nb2():
        nbc[0] += 1; return 2 < nbc[0] < len(bars)
    iss = {'L': [], 'V': []}; done = {'L': -1, 'V': -1}
    for txt, k, tag in lin:
        if k == 'W':
            o = []
            for c, nm, mx in (('V', 'vmcnt', 63), ('L', 'lgkmcnt', 15)):
                idx = [i for i, x in enumerate(iss[c]) if x in tag]
                if idx and max(idx) > done[c]:
                    n = min(mx, len(iss[c]) - 1 - max(idx)); done[c] = len(iss[c]) - 1 - n
                    o.append(f'{nm}({n})')
            assert all(x in iss['L'] or x in iss['V'] for x in tag), tag
            if o: a.emit('s_waitcnt ' + ' '.join(o))
            continue
        if k: iss[k].append(tag)
        if 'nox2' in DBG and P1 and k == 'V' and tag[0] == 'x' and len(tag) == 3: continue
        if 'nobar2' in DBG and P1 and txt == 's_barrier' and nb2(): continue
        if ('nox' in DBG and k == 'V') or ('nomfma' in DBG and 'mfma' in txt) or not txt: continue
        a.emit(txt)
    if int(ENV('ST2', '99')) >= N: stamp(a, 2)
    a.emit(f's_mov_b32 s3, {16*2048}' if kind == 'wo' else 's_lshl_b32 s3, s7, 4')
    a.emit('s_mov_b32 s10, 0x3f803f80')
    FL = kind == 'w2' and FL; F2 = kind == 'w2' and F2
    if F2:
        a.emit('s_lshl_b32 s4, s7, 3')
        a.emit('s_add_u32 s5, s3, s4')
        for i in range(1, 4): a.emit(f'v_xor_b32 v{5+i}, {32*i}, v4')
        a.emit(f'v_xor_b32 v9, 64, v{VO}')
    elif FL:
        a.emit('s_lshl_b32 s4, s7, 3')
        a.emit('s_add_u32 s5, s3, s4')
        a.emit('s_mov_b32 vcc_lo, 0x00ff00ff')
        a.emit('s_mov_b32 vcc_hi, vcc_lo')
        a.emit('s_nop 0')
    else: a.emit('s_nop 4')
    for jm in range(2):
        for p in range(2):
            d = D + (jm * 2 + p) * 4
            for q in range(2):
                c = acc(2 * p + q, jm); g = acc(2 * p + q, jm, 0)
                if P1:
                    for h in range(2): a.emit(f'v_pk_add_f32 v[{c+2*h}:{c+2*h+1}], v[{c+2*h}:{c+2*h+1}], v[{g+2*h}:{g+2*h+1}]')
                a.emit(f'v_cvt_pk_bf16_f32 v{d+2*q}, v{c}, v{c+1}')
                a.emit(f'v_cvt_pk_bf16_f32 v{d+2*q+1}, v{c+2}, v{c+3}')
            if F2:
                for q in range(2): a.emit(f'ds_write_b64 v{(4, 6, 7, 8)[2*p+q]}, v[{d+2*q}:{d+2*q+1}] offset:{jm*2048}')
                for k in range(2 * p): a.emit(f'ds_read_b128 v[{32+8*jm+4*k}:{35+8*jm+4*k}], v5 offset:{jm*2048+k*1024}')
                continue
            if not (kind == 'wo' and 'w1' in NS):
                a.emit('s_nop 1')
                a.emit(f'v_permlane16_swap_b32 v{d}, v{d+2}')
                a.emit(f'v_permlane16_swap_b32 v{d+1}, v{d+3}')
            if not FL: a.emit(f'buffer_store_dwordx4 v[{d}:{d+3}], v{VO}, s[{SO}:{SO+3}], {"s3" if jm else "0"} offen offset:{p*PSTEP}{stf(kind)}')
            if kind == 'w2' and 'attn' in OT: a.emit(f'ds_write_b128 v{4+p}, v[{d}:{d+3}] offset:{jm*2048}')
            if FL and p:
                for k in ((0, 1), (1, 0))[jm]:
                    t = 32 + 8 * jm + 4 * k
                    if k == jm: a.emit('s_nop 0')
                    else: a.emit('s_not_b64 vcc, vcc')
                    for i in range(4): a.emit(f'v_cndmask_b32_dpp v{t+i}, v{d-4*k+i}, v{d-4+4*k+i}, vcc row_ror:8 row_mask:0xf bank_mask:0xf')
                    a.emit(f'buffer_store_dwordx4 v[{t}:{t+3}], v{VO}, s[{SO}:{SO+3}], {("0", "s4", "s3", "s5")[2*jm+k]} offen{stf(kind)}')
            if kind == 'wo' and 'w1' in OT: a.emit(f'ds_write_b128 v{VE}, v[{d}:{d+3}] offset:{jm*2048+p*1024}')
    if F2:
        for k in range(4):
            a.emit(f's_waitcnt lgkmcnt({(7, 6, 1, 0)[k]})')
            a.emit(f'buffer_store_dwordx4 v[{32+4*k}:{35+4*k}], v{(VO, 9)[k&1]}, s[{SU}:{SU+3}], {("0", "s4", "s3", "s5")[k]} offen{stf(kind)}')
    if SKL and kind == 'w2' and not TS:
        last_check(a, kind)
        if TE: a.lines[-1] = a.lines[-1].replace('L_w2_end', 'L_fin')
    for jm in range(2):
        for i in range(8):
            d = D + jm * 8 + i
            a.emit(f'v_dot2_f32_bf16 v{20+jm}, v{d}, s10, v{20+jm}')
            a.emit(f'v_dot2_f32_bf16 v{22+jm}, v{d}, v{d}, v{22+jm}')
    a.emit('s_nop 2')
    a.emit('v_permlane32_swap_b32 v20, v21')
    a.emit('v_permlane32_swap_b32 v22, v23')
    a.emit('v_add_f32 v20, v20, v21')
    a.emit('v_add_f32 v22, v22, v23')
    a.emit('s_nop 1')
    a.emit('v_permlane16_swap_b32 v20, v22')
    a.emit('v_add_f32 v20, v20, v22')
    a.emit(f'buffer_store_dword v20, v18, s[{ST}:{ST+3}], 0 offen{stf(kind)}')
    compute_end(a, kind)
    if P1 and DX == 1:
        a.label(f'L_{kind}_xrt')
        a.emit('s_mov_b32 s6, 0x40000')
        a.label(f'L_{kind}_xrl')
        for i in range(4): a.emit(xld(i))
        a.emit('s_sub_u32 s6, s6, 1')
        a.emit('s_waitcnt vmcnt(0)')
        a.emit(f's_cbranch_scc1 L_{kind}_xok')
        for y in vmax(VE, GI): a.emit(y)
        a.emit(f's_cbranch_vccnz L_{kind}_xrl')
        a.emit(f's_branch L_{kind}_xok')
    a.label(f'L_{kind}_loader')
    VT = 16
    if ENV('LPRIO'): a.emit(f"s_setprio {ENV('LPRIO')}")
    if kind == 'wo':
        if LSTK == 'wo': lstamp(a, 0)
        import sides
        dep_pre(a, kind, 0)
        a.emit(f's_cmp_lg_u32 s{S_LAYER}, 0')
        a.emit(f's_cbranch_scc1 L_{kind}_nofirst')
        sides.qkv(a, 0, 'finish', 1)
        a.label(f'L_{kind}_nofirst')
    L = Loader(a, kind, K, lda2, ldw2, [0], 128, 2, 8192, xblk=True)
    L.panels_of = lambda t: [0] if sched[t][1] else [f's{S_XD}']
    if ot:
        ktab_ot(a, VT, 17, S_TB)
        if 'whit' in DBG: a.emit(f'v_and_b32 v{VT}, 0x60000, v{VT}')
    else: ktab(a, VT, 17, P1, P2, S_TB)
    a.emit(f's_add_u32 s9, s{S_WV}, s{S_MT}')
    a.emit('s_and_b32 s9, s9, 3')
    a.emit(f's_lshl_b32 s{S_WD}, s9, 11')
    a.emit('v_and_b32 v10, 7, v1')
    if 'wsm' in DBG:
        a.emit(f's_and_b32 s11, s{S_NT}, 1')
        wvoff(a, L.VWD, 9, 11, ldw2)
    elif 'noslow2' in DBG:
        a.emit(f's_bitcmp1_b32 0x0c0c, s{S_NT}')
        a.emit('s_cselect_b32 s11, 2, 0')
        a.emit(f's_add_u32 s11, s11, s{S_NT}')
        wvoff(a, L.VWD, 9, 11, ldw2)
    else: wvoff(a, L.VWD, 9, S_NT, ldw2, kind in NS)
    if kind == 'wo': srd(a, SW, 'wo', 0, 2 * MB)
    else:
        srd(a, SW, 'w2', 0, 3584 * 2048)
        a.emit(f's_bitcmp1_b32 s{S_NT}, 0')
        a.emit(f's_mov_b32 s{S_XD}, 128')
        a.emit(f's_cselect_b32 s{S_XD}, -128, s{S_XD}')
    NPF = int(ENV('NPF' + kind[1].upper(), '10'))
    assert NPRE - NPF <= 18
    seq = []
    def em(o):
        for x in o:
            if ('nodma' in DBG or ('nodma2' in DBG and len(seq) >= 40)) and x.endswith(' lds'): continue
            a.emit(x)
    def after(t): return len(seq) - 1 - max(i for i, x in enumerate(seq) if x == t)
    NPK = int(ENV('NPK', '0')) if P1 else 0
    PK0 = int(ENV('PK0', '20')); PKA = int(ENV('PKA', '0'))
    PKD = int(ENV('PKD', '1'))
    pks = [t for t in range(PK0, N) if ((t - PK0) >> 1) % PKD == 0][:NPK]
    pkr = lambda t: 256 - 8 * NPK + 8 * pks.index(t)
    assert 256 - 8 * NPK >= 48
    if NPK:
        a.emit(f'v_lshl_add_u32 v20, v1, 4, s{S_WD}')
        a.emit('v_add_u32 v21, 0x10000, v20')
        a.emit('v_add_u32 v22, 0x20000, v20')
    lastk = [None]
    def kw(t):
        x = xof(t)
        if lastk[0] != x: a.emit(f'v_readlane_b32 s{S_KW}, v{VT}, {x}')
        lastk[0] = x
    def pk(t):
        kw(t)
        a.emit(f's_add_u32 s4, s{S_KW}, {L.panels_of(t)[0]}')
        for i in range(2): a.emit(f'buffer_load_dwordx4 v[{pkr(t)+4*i}:{pkr(t)+4*i+3}], v{L.VWD+i}, s[{SW}:{SW+3}], s4 offen')
        seq.extend([('P', t)] * 2)
    vmdone = [-1]
    def iw(t):
        if t in pks:
            i = max(i for i, x in enumerate(seq) if x == ('P', t))
            if i > vmdone[0]:
                a.emit(f's_waitcnt vmcnt({min(63, len(seq) - 1 - i)})'); vmdone[0] = i
            for i in range(0 if 'nopw' in DBG else 2): a.emit(f'ds_write_b128 v{20+(slot(t)>>16)}, v[{pkr(t)+4*i}:{pkr(t)+4*i+3}] offset:{(slot(t)&65535)+1024*i}')
            return
        kw(t)
        em(L.issue_w(t, S_WD, slot(t)))
        seq.extend([t] * 2)
    if kind == LSTK == 'wo': lstamp(a, 1)
    CW = [int(x) for x in ENV('CW', '0').split(',')] if P1 else []
    cwk = list(range(NPRE // 2, P1)) + list(range(2 * P1, N)); cwn = [0]
    if sum(CW):
        srd(a, SR, 'w2', 0, 3584 * 2048)
        a.emit(f's_and_b32 s3, s{S_WV}, 3')
        a.emit(f's_lshl2_add_u32 s3, s{S_CU}, s3')
        a.emit('s_lshl_b32 s4, s3, 6')
        a.emit('s_and_b32 s4, s4, 64')
        a.emit('s_lshr_b32 s3, s3, 1')
        a.emit('s_lshl_b32 s3, s3, 11')
        a.emit('s_add_u32 s3, s3, s4')
        a.emit(f's_sub_u32 s4, 384, s{SW}')
        a.emit('s_and_b32 s4, s4, 0x380')
        a.emit(f's_add_u32 s{S_Q}, s3, s4')
        a.emit(f's_bitcmp1_b32 s{S_NT}, 0')
        a.emit(f's_cselect_b32 s3, {P1 << 17}, 0')
        a.emit(f's_add_u32 s{S_T}, s{S_Q}, s3')
        a.emit('s_lshr_b32 s4, s4, 7')
        a.emit(f's_xor_b32 s4, s4, s{S_NT}')
        a.emit('s_bitcmp1_b32 s4, 0')
        a.emit(f's_cselect_b32 s{SR+2}, 0, s{SR+2}')
    def cw(j):
        for k in cwk[cwn[0]:cwn[0] + (CW[j] if j < len(CW) else 0)]:
            a.emit(f's_add_u32 s3, s{S_T if k < P1 else S_Q}, {k << 17}')
            for i in range(2): a.emit(f's_buffer_load_dword s84, s[{SW if k < P1 else SR}:{(SW if k < P1 else SR)+3}], s3 offset:{1024*i}')
            cwn[0] += 1
    def clr(w):
        if DX != 1 or P1 or w != ENV('CLP', 'e'): return
        srd(a, SP, 'ws', WS_XP, 4 * MB)
        a.emit(f's_and_b32 s5, s{S_WV}, 3')
        a.emit(f's_lshl4_add_u32 s6, s{S_MT}, s{S_NT}')
        a.emit('s_lshl2_add_u32 s6, s6, s5')
        a.emit('s_lshl_b32 s6, s6, 12')
        a.emit('s_setprio 3')
        a.emit('v_lshlrev_b32 v3, 4, v1')
        for i in range(4): a.emit(f'v_mov_b32 v{24+i}, -1')
        for i in range(4): a.emit(f'buffer_store_dwordx4 v[24:27], v3, s[{SP}:{SP+3}], s6 offen offset:{1024*i} sc1')
        a.emit('s_setprio 0')
        seq.extend(['C'] * 4)
    clr('a')
    for t in range(NPRE - NPF): iw(t)
    clr('b')
    PTH = ENV('PTH', '')
    for t in pks[:NPK - PKA]:
        pk(t)
        if PTH: a.emit(f's_waitcnt vmcnt({PTH})')
    cw(0)
    if kind == 'wo': dep_pre(a, kind, 1, len(seq))
    N2 = NPRE - NPF; pref = None
    if SPC:
        N2 = max(N2, int(ENV('N2', '0')), bars[1] + 2); NPRE = int(ENV('N3', '20'))
        assert NPRE <= TF + 21
        def pref():
            a.emit('s_mov_b32 s5, s3')
            if TF >= 0:
                a.emit(f's_waitcnt vmcnt({after(TF + 1)})')
                a.emit('s_barrier')
            for t in range(len(seq) // 2, N2): iw(t)
            a.emit('s_mov_b32 s3, s5')
            a.emit(f's_waitcnt vmcnt({after(bars[1] + 1)})')
    def postf():
        for t in range(N2, NPRE):
            if ot and slot(t) == OHB:
                a.emit(f's_waitcnt vmcnt({after(bars[0] + 1)})')
                a.emit('s_barrier')
            iw(t)
        for t in pks[NPK - PKA:]: pk(t)
    if PW:
        NPRE = int(ENV('NE', '13'))
        assert slot(NPRE) <= OHB - (4096 if ENV('W4', 'a') == 'a' else 0) and bars[1] + 1 < N2
        w0 = after(bars[0] + 1)
        i = len(a.lines)
        for t in range(N2, NPRE): iw(t)
        blk = a.lines[i:]; del a.lines[i:]
        dep_lf(a, w0, blk, after(bars[1] + 1))
    elif ot and EF:
        NE = int(ENV('NE', '14')); NH = int(ENV('NH', str(NE))); NPRE = int(ENV('NGB', '20' if E2 else str(NH)))
        assert slot(NH - 1) < OHB
        dep_ef(a, lambda: [iw(t) for t in range(N2, NE)], lambda: E2 or a.emit(f's_waitcnt vmcnt({after(bars[0] + 1)})'),
               lambda: [iw(t) for t in range(NE, NH)] + [a.emit(f's_waitcnt vmcnt({after(bars[0 if E2 else 1] + 1)}) lgkmcnt(0)')])
        a.emit(f's_mov_b32 s{S_CNT}, 0x100000')
        for t in range(NH, NPRE): iw(t)
    else: dep_wait(a, kind, skip_first=kind == 'wo', preg=lambda: a.emit(f's_waitcnt vmcnt({min(after(bars[2 if SPC else 1 if ot else 0] + 1), 63)}) lgkmcnt(0)'),
             postf=postf, pref=pref, defer=bool(SPC))
    nxt = NPRE
    reg = bars[:bars.index(XS)] if P1 and not DX else bars
    clr('g')
    for j, t in enumerate(reg):
        if (SPC or ot) and j < 1 and not E2: continue
        lim = min(N, (reg[j - 1] if j else -1) + 21)
        PACE = [int(c) for c in ENV('PACE', '064444449' if PW else '')] if P1 else []
        if j < len(PACE): lim = min(lim, nxt + PACE[j])
        PP = int(ENV('PP', '2'))
        pp = min(lim - 1, nxt + PP) if (SPC and t == TG) or (E2 and t == TG2) or (LF2 and P1 and t == int(ENV('TL2', '27'))) else -1
        pe = min(lim - 1, nxt + int(ENV('PE', '0'))) if ot and EF == 1 and t == TG2 else -1
        while nxt < lim:
            if nxt == pp: dep_late(a, kind, 0); seq.append('F')
            if nxt == pe:
                ef_poll(a, 'L_w2_pl', 2, True)
                lstamp(a, 2, True)
            iw(nxt); nxt += 1
            if nxt - 1 in pks: a.emit('s_waitcnt lgkmcnt(0)')
            elif nxt < lim: a.emit(f"s_waitcnt vmcnt({ENV('LTH2', '30') if PW and t >= int(ENV('LT2', '35')) else ENV('LTHR', '4')})")
        cw(j + 1)
        clr(str(j))
        need = [min(N - 1, bars[j + 1] + 1)] if j + 1 < len(bars) else []
        assert all(t < nxt for t in need)
        need = [max(x for x in range(t + 1) if x not in pks) for t in need]
        if P1 and not DX and j == len(reg) - 1:
            srd(a, SP, 'ws', WS_XP, 8 * MB)
            srd(a, SC, 'ws0', WS_FL, FLS)
            a.emit(f's_and_b32 s5, s{S_WV}, 3')
            a.emit(f's_lshl4_add_u32 s6, s{S_MT}, s{S_NT}')
            a.emit('s_lshl2_add_u32 s6, s6, s5')
            a.emit(f's_mul_i32 s8, s6, {CH}')
            a.emit('s_add_u32 s9, s8, 4096')
            a.emit(f's_add_u32 s7, s{S_LAYER}, 4')
            a.emit('s_lshl_b32 s7, s7, 10')
            a.emit('s_add_u32 s6, s6, s7')
            a.emit('s_lshl_b32 s6, s6, 6')
            a.emit('s_xor_b32 s7, s6, 256')
            a.emit(f's_mul_i32 s5, s5, {CH}')
            a.emit(f's_add_u32 s5, s5, {XB}')
            a.emit('v_lshlrev_b32 v3, 4, v1')
            a.emit('v_add_u32 v2, s5, v3')
            a.emit('v_mov_b32 v4, 1')
            a.emit(f's_mov_b32 s{S_CNT}, 0x100000')
        if pp >= 0: dep_late(a, kind, 1, after('F'))
        if P1 and DX == 2 and t == XS:
            srd(a, SC, 'ws0', WS_FL, FLS)
            a.emit(f's_lshl4_add_u32 s6, s{S_MT}, s{S_NT}')
            a.emit('s_xor_b32 s6, s6, 1')
            a.emit(f's_add_u32 s7, s{S_LAYER}, 4')
            a.emit('s_lshl_b32 s7, s7, 8')
            a.emit('s_add_u32 s6, s6, s7')
            a.emit(f's_lshl_b32 s{S_Q if ZD else 6}, s6, 8')
            a.emit('v_and_b32 v2, 3, v1')
            a.emit(f'v_lshlrev_b32 v{30 if ZD else 2}, 6, v2')
            a.emit(f's_mov_b32 s{S_CNT}, 0x100000')
            if ZD: need = []; assert nxt == N and (ZD == 'a' or XS >= 44)
        if P1 and DX == 2 and t == ZS:
            if ZD:
                if ENV('ZDP'): a.emit(f"s_setprio {ENV('ZDP')}")
                a.emit(f's_cmp_eq_u32 s{S_LAYER}, 0')
                a.emit(f's_cbranch_scc1 L_{kind}_zskip')
            xpoll(a, f'L_{kind}_x', SC, S_Q if ZD else 6, 30 if ZD else 2, 5)
        if kind == 'wo' and WD in ('b', 'c') and j == len(reg) - 1: assert reg[j - 1] >= 2; break
        a.emit(f's_waitcnt vmcnt({min(63, min(after(t) for t in need)) if need else 0})')
        if not ('nobar2' in DBG and P1 and 1 < j < len(bars) - 1): a.emit('s_barrier')
    if P1 and ZD: a.label(f'L_{kind}_zskip')
    assert nxt == N and (ENV('LATE_W1', '2') == '2' or (kind == 'w2' or bars[-1] >= 9) and 'w1' in OT) and ENV('LATE_ATTN', '2') == '2'
    clr('e')
    if not P1 and WD not in ('b', 'c'): a.emit('s_waitcnt vmcnt(0)')
    if P1 and not DX:
        XL = ENV('LST') == 'x'
        a.emit('s_setprio 3')
        a.emit('s_waitcnt vmcnt(0) lgkmcnt(0)')
        a.emit('s_barrier')
        for i in range(NXC): a.emit(f'ds_read_b128 v[{32+4*i}:{35+4*i}], v2 offset:{1024*i}')
        for i in range(NXC):
            a.emit(f's_waitcnt lgkmcnt({NXC-1-i})')
            if 'noxs' not in DBG: a.emit(f'buffer_store_dwordx4 v[{32+4*i}:{35+4*i}], v3, s[{SP}:{SP+3}], s{8+(i>>2)} offen offset:{1024*(i&3)} sc1')
        if XL: lstamp(a, 0)
        a.emit(f's_xor_b32 s8, s8, {4*CH}')
        a.emit(f's_xor_b32 s9, s9, {4*CH}')
        a.emit('s_mov_b64 exec, 1')
        a.emit('s_waitcnt vmcnt(0)')
        a.emit(f'buffer_store_dword v4, off, s[{SC}:{SC+3}], s6 sc1')
        if XL: lstamp(a, 1)
        if PS: a.emit('s_barrier')
        if 'nopoll' in DBG: a.emit(f's_branch L_{kind}_xgo')
        a.label(f'L_{kind}_xpoll')
        a.emit(f'buffer_load_dword v5, off, s[{SC}:{SC+3}], s7 sc1')
        a.emit(f's_sub_u32 s{S_CNT}, s{S_CNT}, 1')
        a.emit(f's_cbranch_scc1 L_{kind}_xgo')
        a.emit('s_waitcnt vmcnt(0)')
        a.emit('v_cmp_ne_u32 vcc, 1, v5')
        a.emit(f's_cbranch_vccnz L_{kind}_xpoll')
        a.label(f'L_{kind}_xgo')
        a.emit('s_mov_b64 exec, -1')
        a.emit('s_mov_b32 m0, s5')
        if XL: lstamp(a, 2)
        for i in range(NXC):
            if i == 4: a.emit('s_add_u32 m0, s5, 4096')
            if not i & 3: a.emit('s_nop 0')
            if 'noxl' not in DBG: a.emit(f'buffer_load_dwordx4 v3, s[{SP}:{SP+3}], s{8+(i>>2)} offen offset:{1024*(i&3)} lds')
        a.emit('s_waitcnt vmcnt(0)')
        if XL: lstamp(a, 3)
        a.emit('s_setprio 0')
        a.emit('s_barrier')
    loader_end(a, kind)
    if OH and P1:
        a.label('L_w2_wb')
        a.emit('buffer_wbl2 sc1')
        a.emit('s_waitcnt vmcnt(0)')
        if PW:
            a.emit(f's_mov_b64 exec, {(1 << REP) - 1:#x}')
            a.emit(f'buffer_store_dword v3, v11, s[{SO}:{SO+3}], s{S_FL} offen sc1')
        a.emit('s_branch L_w2_wbd')
    a.label(end)
    a.emit('s_endpgm')
    loader_first(a, kind)
    if SPC or PW:
        i = a.lines.index(f'  s_cbranch_scc1 L_{kind}_compute')
        del a.lines[i - 1:i + 1]
    a.label(f'L_{kind}_c1')
    return 163840
```

```python
from common import *

T4 = ENV('T4', '1') == '1'
OBAR = ENV('OBAR', '0') == '1'
def big_loop(a, tag, N, S, STAGE, naddr, VB, VA, reads, mf, variants=None, select=None, post=None, ot=None, mid=(), halo=None, hooks=None):
    def addr():
        o = [f'v_add_u32_e64 v{VA+i}, s{S_SLOT}, v{VB+i}' for i in range(naddr)]
        o += [f's_add_u32 s{S_SLOT}, s{S_SLOT}, {STAGE}', f's_cmp_eq_u32 s{S_SLOT}, {S*STAGE}', f's_cselect_b32 s{S_SLOT}, 0, s{S_SLOT}']
        return o
    a.emit(f's_mov_b32 s{S_SLOT}, 0')
    for x in addr(): a.emit(x)
    if halo:
        if hooks: own_pos(a, S_CNT)
        else: a.emit(f's_mov_b32 s{S_CNT}, {N}')
        if hooks: a.emit(f's_mul_i32 s{S_T}, s{S_LAYER}, {len(hooks)}')
        a.emit(f's_cmp_eq_u32 s{S_LAYER}, 0')
        a.emit(f's_cbranch_scc1 L_{tag}_nog')
    a.emit(f's_mov_b32 s{S_CNT}, {N - 1 if ot else N}')
    if ot:
        rd = (lambda s, ks: reads(s, ks, False)) if halo else reads
        for x in rd(0, 0): a.emit(x)
        a.emit('s_waitcnt lgkmcnt(0)')
        interleave(a, ot(0), rd(1, 1) + addr(), lead=1, per=1)
        a.emit('s_waitcnt lgkmcnt(0)')
        for x in ot(1): a.emit(x)
    if halo:
        a.emit('s_barrier')
        for x in halo[0]: a.emit(x)
        a.label(f'L_{tag}_nog')
    else:
        import pads
        for x in pads.chain('hv'): a.emit(x)
        MG = int(ENV('MG', '0'))
        if LF2 == 2: MG = len(mid) - 1
        a.lines += mid[:MG] + ['@W2G'] * (LF2 == 2); mid = mid[MG:]
        if ENV('S1') == 'a': stamp(a, 1)
        gbar(a, tag)
        if ENV('S1') == 'b': stamp(a, 1)
    a.lines += mid
    if ENV('S1') == 'c': stamp(a, 1)
    if halo: a.emit(f's_cmp_eq_u32 s{S_LAYER}, 0')
    a.emit('s_barrier')
    if not ENV('S1') or halo: stamp(a, 1)
    if halo:
        a.emit(f's_cbranch_scc1 L_{tag}_first')
        for x in halo[1] + reads(0, 0): a.emit(x)
        a.emit('s_waitcnt lgkmcnt(15)')
        for x in halo[2]: a.emit(x)
        a.emit('s_waitcnt lgkmcnt(0)')
        a.emit(f's_branch L_{tag}_loop')
        a.label(f'L_{tag}_first')
        if not DS: a.emit(f's_load_dwordx2 s[{SC}:{SC+1}], s[0:1], 72')
    for x in reads(0, 0): a.emit(x)
    a.emit('s_waitcnt lgkmcnt(0)')
    def loop(nm, m):
        la = int(ENV('LA_' + tag.upper(), '4'))
        w = a.lines.pop()
        assert w.split()[0] in ('s_waitcnt', 's_cbranch_scc1', 's_branch')
        a('.p2align 5')
        for _ in range(la - 1): a.emit('s_nop 0')
        a.lines.append(w)
        a.label(f'L_{tag}_loop{nm}')
        ad = addr()
        ad[-1] += f'\n  s_sub_u32 s{S_CNT}, s{S_CNT}, 1'
        interleave(a, m(0), reads(1, 1) + ad, lead=1, per=1)
        a.emit('s_waitcnt lgkmcnt(0)')
        a.emit('s_barrier')
        interleave(a, m(1), reads(0, 0) + [f's_cmp_lg_u32 s{S_CNT}, 0\n  s_nop 0'], lead=1, per=1)
        a.emit('s_waitcnt lgkmcnt(0)')
        a.emit(f's_cbranch_scc1 L_{tag}_loop{nm}')
    if variants:
        select()
        vs = list(variants.items())
        for i, (nm, m) in enumerate(vs):
            loop(nm, m)
            if i + 1 < len(vs): a.emit(f's_branch L_{tag}_post')
        a.label(f'L_{tag}_post')
        post()
        a.emit(f's_branch L_{tag}_exit')
    if hooks and PO0 == 0:
        a.emit(f's_cmp_eq_u32 s{S_CNT}, 0')
        a.emit(f's_cbranch_scc1 L_{tag}_lend')
    loop('', mf)
    a.label(f'L_{tag}_lend')
    if hooks:
        a.emit(f's_add_u32 s{S_T}, s{S_T}, 1')
        a.emit(f's_cmp_gt_u32 s{S_T}, {len(hooks)}')
        a.emit(f's_cbranch_scc1 L_{tag}_exit')
        for i, (t, code) in enumerate(hooks):
            if i + 1 < len(hooks):
                a.emit(f's_cmp_lg_u32 s{S_T}, {i + 1}')
                a.emit(f's_cbranch_scc1 L_{tag}_hook{i}')
            t2 = hooks[i + 1][0] if i + 1 < len(hooks) else N
            if t < 0 <= t2:
                own_pos(a, S_CNT)
                a.emit(f's_sub_u32 s{S_CNT}, {t2 + t + 1}, s{S_CNT}')
                assert t2 + t + 1 > PO0 + POM
            else: a.emit(f's_mov_b32 s{S_CNT}, {abs(t2 - t)}')
            for x in code: a.emit(x)
            a.emit(f's_branch L_{tag}_loop')
            if i + 1 < len(hooks): a.label(f'L_{tag}_hook{i}')
    a.label(f'L_{tag}_exit')
    stamp(a, 2)

def stats_loads(a, vd, halo):
    a.emit(f's_and_b32 s3, s{S_WV}, 3')
    a.emit(f's_lshl_b32 s4, s{S_MT}, 7')
    a.emit('s_lshl_b32 s5, s3, 6')
    a.emit('s_add_u32 s5, s5, s4')
    a.emit('v_add_u32 v2, s5, v1')
    a.emit('s_sub_u32 s4, s4, 16')
    a.emit('v_and_b32 v3, 15, v1')
    a.emit('v_add_u32 v3, s4, v3')
    a.emit('v_max_i32 v3, 0, v3')
    a.emit('s_cmp_ge_u32 s3, 2')
    a.emit('s_cselect_b64 vcc, -1, 0')
    a.emit('v_cndmask_b32 v2, v2, v3, vcc')
    a.emit('v_lshlrev_b32 v2, 3, v2')
    a.emit('s_mov_b32 s3, 0')
    for j in range(16):
        a.emit(f'buffer_load_dwordx2 v[{vd+2*j}:{vd+2*j+1}], v2, s[{ST}:{ST+3}], s3 offen')
        if j < 15: a.emit('s_add_u32 s3, s3, 16384')
    return 16

def stats_finish(a, vs):
    a.emit(f'v_mul_f32 v{vs}, 0x3a800000, v{vs}')
    a.emit(f'v_mul_f32 v{vs+1}, 0x3a800000, v{vs+1}')
    a.emit(f'v_fma_f32 v{vs+1}, -v{vs}, v{vs}, v{vs+1}')
    a.emit(f'v_max_f32 v{vs+1}, 0, v{vs+1}')
    a.emit(f'v_add_f32 v{vs+1}, 0x3727c5ac, v{vs+1}')
    a.emit(f'v_rsq_f32 v{vs+1}, v{vs+1}')
    a.emit('s_nop 0')

def stats_reduce_store(a, vd, LST):
    for j in range(1, 8):
        a.emit(f'v_add_f32 v{vd}, v{vd}, v{vd+2*j}')
        a.emit(f'v_add_f32 v{vd+1}, v{vd+1}, v{vd+2*j+1}')
        a.emit(f'v_add_f32 v{vd+16}, v{vd+16}, v{vd+16+2*j}')
        a.emit(f'v_add_f32 v{vd+17}, v{vd+17}, v{vd+17+2*j}')
    a.emit(f'v_add_f32 v{vd}, v{vd}, v{vd+16}')
    a.emit(f'v_add_f32 v{vd+1}, v{vd+1}, v{vd+17}')
    stats_finish(a, vd)
    a.emit(f's_and_b32 s3, s{S_WV}, 3')
    a.emit('s_lshl_b32 s5, s3, 6')
    a.emit('s_add_u32 s5, s5, 16')
    a.emit('v_add_u32 v2, s5, v1')
    a.emit('v_and_b32 v3, 15, v1')
    a.emit('s_cmp_ge_u32 s3, 2')
    a.emit('s_cselect_b64 vcc, -1, 0')
    a.emit('v_cndmask_b32 v2, v2, v3, vcc')
    a.emit('v_lshlrev_b32 v2, 2, v2')
    a.emit(f'v_add_u32 v2, {LST}, v2')
    a.emit(f'ds_write2_b32 v2, v{vd}, v{vd+1} offset0:0 offset1:160')

VST, VSH, VCS, VBI = 18, 19, 22, 23
def stats4_setup(a, halo):
    a.emit(f's_and_b32 s3, s{S_WV}, 3')
    a.emit(f's_lshl2_add_u32 s4, s{S_MT}, s3')
    a.emit('s_lshl_b32 s4, s4, 8')
    a.emit('v_lshrrev_b32 v2, 4, v1')
    a.emit('v_and_b32 v3, 15, v1')
    a.emit('v_lshl_add_u32 v3, v3, 4, s4')
    a.emit(f'v_lshl_add_u32 v{VST}, v2, 14, v3')
    if halo:
        a.emit(f's_lshl_b32 s4, s{S_MT}, 5')
        a.emit('s_add_u32 s4, s4, s3')
        a.emit('s_sub_u32 s4, s4, 4')
        a.emit('s_max_i32 s4, s4, 0')
        a.emit('s_lshl_b32 s4, s4, 5')
        a.emit('v_lshrrev_b32 v2, 2, v1')
        a.emit('v_and_b32 v3, 3, v1')
        a.emit('v_lshl_add_u32 v3, v3, 3, s4')
        a.emit(f'v_lshl_add_u32 v{VSH}, v2, 14, v3')

def quad_loads(vd, vo, sd):
    o = []
    for j in range(4):
        if j: o.append(f's_mov_b32 s3, {j << 16}')
        o.append(f'buffer_load_dwordx4 v[{vd+4*j}:{vd+4*j+3}], v{vo}, s[{sd}:{sd+3}], {"s3" if j else 0} offen')
    return o

def stats4_loads(vd, halo):
    return quad_loads(vd, VST, ST) + ([f'buffer_load_dwordx2 v[{vd+16}:{vd+17}], v{VSH}, s[{ST}:{ST+3}], 0 offen'] if halo else [])

def quad_sum(a, vd):
    pk = lambda d, s: a.emit(f'v_pk_add_f32 v[{d}:{d+1}], v[{d}:{d+1}], v[{s}:{s+1}]')
    pk(vd, vd + 4); pk(vd + 2, vd + 6); pk(vd + 8, vd + 12); pk(vd + 10, vd + 14); pk(vd, vd + 8); pk(vd + 2, vd + 10)
    a.emit('s_nop 1')
    a.emit(f'v_permlane32_swap_b32 v{vd}, v{vd+2}')
    a.emit(f'v_permlane32_swap_b32 v{vd+1}, v{vd+3}')
    pk(vd, vd + 2)

def nan_chk(a, lab, halo):
    def chk():
        a.emit('v_cmp_u_f32 vcc, v32, v33')
        if halo:
            a.emit('v_cmp_u_f32 s[4:5], v48, v49')
            a.emit('s_or_b64 s[4:5], vcc, s[4:5]')
            a.emit(f's_cbranch_scc0 {lab}ok')
        else: a.emit(f's_cbranch_vccz {lab}ok')
        a.emit(f's_sub_u32 s{S_CNT}, s{S_CNT}, 1')
        a.emit(f's_cbranch_scc1 {lab}ok')
        for x in stats4_loads(32, halo): a.emit(x + (' sc1' if x.startswith('buf') else ''))
        a.emit('s_waitcnt vmcnt(0)')
        a.emit(f's_branch {lab}chk')
        a.label(f'{lab}ok')
    a.emit(f's_mov_b32 s{S_CNT}, 0x4000')
    a.label(f'{lab}chk')
    return chk

def stats4_store(a, vd, LST, halo, chk=None):
    quad_sum(a, vd)
    if chk: chk()
    def allsum(r, op):
        a.emit(f'v_mov_b32 v{r+2}, v{r}')
        a.emit(f'v_mov_b32 v{r+3}, v{r+1}')
        a.emit('s_nop 0')
        a.emit(f'v_permlane{op}_swap_b32 v{r}, v{r+2}')
        a.emit(f'v_permlane{op}_swap_b32 v{r+1}, v{r+3}')
        a.emit(f'v_pk_add_f32 v[{r}:{r+1}], v[{r}:{r+1}], v[{r+2}:{r+3}]')
    allsum(vd, 16)
    stats_finish(a, vd)
    a.emit(f's_and_b32 s3, s{S_WV}, 3')
    a.emit('s_lshl_b32 s5, s3, 7')
    a.emit(f's_add_u32 s5, s5, {LST + 64}')
    a.emit('v_and_b32 v3, 15, v1')
    a.emit('v_lshrrev_b32 v2, 5, v1')
    a.emit('v_lshl_add_u32 v2, v3, 1, v2')
    a.emit('v_lshl_add_u32 v2, v2, 2, s5')
    a.emit(f'ds_write2_b32 v2, v{vd}, v{vd+1} offset0:0 offset1:160')
    if halo:
        h = vd + 16
        allsum(h, 32); allsum(h, 16)
        for r in (8, 4):
            a.emit('s_nop 1')
            for i in range(2): a.emit(f'v_add_f32_dpp v{h+i}, v{h+i}, v{h+i} row_ror:{r} row_mask:0xf bank_mask:0xf')
        stats_finish(a, h)
        a.emit('s_lshl_b32 s5, s3, 4')
        a.emit(f's_add_u32 s5, s5, {LST}')
        a.emit('v_and_b32 v3, 3, v1')
        a.emit('v_lshl_add_u32 v2, v3, 2, s5')
        a.emit(f'ds_write2_b32 v2, v{h}, v{h+1} offset0:0 offset1:160')

def gen_w1(a, tsidx, side, cs=(16, 16384, 0)):
    kind = 'w1'
    K = 1024; lda2 = 2048; ldw2 = 7168; ldo2 = 7168
    ot = kind in OT
    S = 3; LM = int(ENV('LM_W1', '2' if ot else '3'))
    STAGE = 16384 + 4 * 8192
    o2 = 'w2' in OT
    assert LM == 2 or not o2
    LST = OHB - 4096 if o2 else S * STAGE
    LCS = LST + 1280
    N = 16
    body = f'L_{kind}_body'; end = f'L_{kind}_end'
    VB, VA, VO = 4, 20, 12
    F = [32, 80]; ACC = 128
    acc = lambda jn, jm: ACC + (jn * 4 + jm) * 4
    fx = lambda s, jm: F[s] + jm * 4
    fw = lambda s, jn: F[s] + 16 + jn * 4
    a.label(f'L_{kind}_c0')
    if not MEGA: stub(a, f'{kind}l0_kernel', body, 0, tsidx, True)
    a.label(body)
    tile_map(a, LM, end)
    a.emit(f's_cmp_ge_u32 s{S_WV}, 4')
    a.emit(f's_cbranch_scc1 L_{kind}_loader')
    if ot and OBAR: a.emit('s_barrier')
    if NV:
        from gemm64y import w2_pre, w2_early
        w2_pre(a)
        tile_map(a, LM, None)
    a.emit(f's_and_b32 s{S_WM}, s{S_WV}, 1')
    a.emit(f's_lshr_b32 s{S_WN}, s{S_WV}, 1')
    a.emit('v_and_b32 v3, 15, v1')
    a.emit('v_lshrrev_b32 v2, 4, v1')
    a.emit(f's_lshl_b32 s8, s{S_WM}, 13')
    a.emit(f'v_lshl_add_u32 v{VB}, v1, 4, s8')
    nr = kind in NS and NSR
    wbase(a, 13, 17, nr=nr)
    a.emit(f's_lshl_b32 s9, s{S_WN}, 6')
    a.emit('v_xor_b32 v13, s9, v13')
    a.emit(f'v_add_u32 v{VB+1}, 16384, v13')
    a.emit(f'v_xor_b32 v{VB+2}, 32, v{VB+1}')
    a.emit('v_and_b32 v16, 1, v2')
    a.emit('v_lshrrev_b32 v17, 1, v2')
    if nr: a.emit('v_lshrrev_b32 v13, 2, v1')
    else:
        a.emit('v_bfe_u32 v13, v1, 2, 2')
        a.emit('v_lshl_add_u32 v13, v16, 3, v13')
        a.emit('v_lshl_add_u32 v13, v17, 5, v13')
    n2 = 'w2' in NS
    if n2:
        a.emit('v_and_b32 v14, 1, v1')
        a.emit('v_lshl_add_u32 v13, v13, 1, v14')
        a.emit(f'v_xor_b32 v14, s{S_WN}, v16')
        a.emit('v_lshl_add_u32 v13, v13, 1, v14')
        a.emit('v_bfe_u32 v14, v1, 1, 1')
        a.emit('v_lshl_add_u32 v13, v13, 1, v14')
    else:
        a.emit(f'v_xor_b32 v14, s{S_WN}, v16')
        a.emit('v_lshl_add_u32 v13, v13, 1, v14')
        a.emit('v_and_b32 v14, 3, v1')
        a.emit('v_lshl_add_u32 v13, v13, 2, v14')
    a.emit('v_lshlrev_b32 v13, 3, v13')
    a.emit(f'v_add_u32 v{VB+3}, {16384 + 3 * 8192}, v13')
    i0 = len(a.lines)
    a.emit(f's_lshl_b32 s8, s{S_MT}, 7')
    a.emit(f's_lshl_b32 s9, s{S_WM}, 6')
    a.emit('s_add_u32 s8, s8, s9')
    a.emit(f's_mul_i32 s8, s8, {ldo2}')
    a.emit('v_lshlrev_b32 v14, 8, v17')
    a.emit('v_lshl_add_u32 v14, v3, 4, v14')
    if o2:
        a.emit(f's_lshl3_add_u32 s9, s{S_WM}, s{S_WN}')
        a.emit('s_lshl_b32 s9, s9, 10')
        a.emit(f's_add_u32 s9, s9, {OHB}')
        if n2: a.emit('v_lshl_add_u32 v18, v1, 4, s9')
        else:
            a.emit('v_lshl_add_u32 v18, v16, 9, v14')
            a.emit('v_add_u32 v18, s9, v18')
        srd(a, SB, 'b2', 0, 2048)
        a.emit(f's_lshr_b32 s9, s{S_NT}, 3')
        a.emit(f's_and_b32 s10, s{S_NT}, 7')
        a.emit('s_lshl1_add_u32 s9, s10, s9')
        a.emit('s_lshl_b32 s9, s9, 7')
        a.emit('v_lshl_add_u32 v19, v2, 3, s9')
    a.emit('v_add_u32 v14, s8, v14')
    a.emit(f's_lshl_b32 s10, s{S_NT}, 11')
    a.emit(f's_lshl_b32 s9, s{S_WN}, 10')
    a.emit('s_add_u32 s9, s9, s10')
    a.emit(f'v_lshl_add_u32 v{VO}, v1, 4, s8' if n2 else f'v_lshl_add_u32 v{VO}, v16, 9, v14')
    a.emit(f'v_add_u32 v{VO}, s9, v{VO}')
    if n2: a.emit('v_lshl_add_u32 v17, v16, 2, v17')
    a.emit(f'v_mul_u32_u24 v16, {16*ldo2}, v16')
    a.emit('s_lshr_b32 s9, s9, 1')
    a.emit(f'v_add3_u32 v{VO+1}, v16, v14, s9')
    a.emit(f's_lshl_b32 s9, s{S_WM}, 8')
    a.emit(f's_add_u32 s9, s9, {LST + 64}')
    a.emit('v_lshl_add_u32 v14, v3, 2, s9')
    a.emit(f's_lshl_b32 s9, s{S_WN}, 7')
    a.emit(f's_add_u32 s9, s9, {LCS}')
    a.emit('v_lshl_add_u32 v15, v2, 4, s9')
    a.emit(f's_lshl_b32 s9, s{S_WN}, {5 if n2 else 6}')
    a.emit(f's_add_u32 s9, s9, {LCS}')
    a.emit(f'v_lshl_add_u32 v16, v{17 if n2 else 2}, 4, s9')
    if OH: a.emit(f'v_mov_b32 v17, {LST}')
    for i in range(0 if ot else 112): a.emit(f'v_mov_b32 v{ACC+i}, 0')
    if not MEGA: a.emit('s_waitcnt lgkmcnt(0)')
    srd(a, SO, ENV('HB', 'ws'), WS_H, 2048 * 7168)
    HC = ENV('HC', '')
    if HC:
        G_ = int(ENV('HCG', '6'))
        a.emit('v_lshrrev_b32 v26, 4, v1')
        a.emit(f'v_mul_u32_u24 v26, {16*ldo2}, v26')
        a.emit('v_lshl_add_u32 v26, v3, 6, v26')
        if G_ == 7: a.emit('v_and_b32 v26, 0xffffff80, v26')
        a.emit(f's_lshl1_add_u32 s3, s{S_NT}, s{S_WN}')
        a.emit('s_lshl_b32 s4, s3, 9')
        a.emit('s_add_u32 s4, s4, s8')
        a.emit('s_add_u32 s4, s4, 32768')
        a.emit('s_lshl_b32 s3, s3, 10')
        a.emit('s_add_u32 s3, s3, s10')
        a.emit('s_add_u32 s3, s3, s8')
        a.emit(f's_add_u32 s3, s3, {48 * 1024}')
        a.emit('v_and_b32 v27, 0xfffffdff, v26')
        op = 'load' if 'l' in HC else 'store'; fl = ' sc1' if '1' in HC else ''
        a.emit(f'buffer_{op}_dword v28, v26, s[{SO}:{SO+3}], s3 offen{fl}')
        a.emit(f'buffer_{op}_dword v29, v26, s[{SO}:{SO+3}], s3 offen offset:2048{fl}')
        a.emit(f'buffer_{op}_dword v30, v27, s[{SO}:{SO+3}], s4 offen{fl}')
    if ENV('HS'):
        a.emit(f"s_and_b32 s3, s2, {ENV('HS')}")
        a.emit(f's_cselect_b32 s{SO+2}, 0, s{SO+2}')
    if not ot: code_touch(a, 'L_w2_c0', 'L_w2_c1', 192 if SPX else 128)
    PW = LF2 == 2
    if PW: a.lines.append('@W2A')
    mid = []
    if ot: mid = a.lines[i0:]; del a.lines[i0:]
    def reads(s, ks):
        o = []
        if 'noread' in DBG: return o
        for jm in range(4):
            o.append(f'ds_read_b128 v[{fx(s,jm)}:{fx(s,jm)+3}], v{VA} offset:{jm*2048+ks*1024}')
        for jn in range(7):
            for h in range(2):
                r = fw(s, jn) + 2 * h
                o.append(f'ds_read_b64_tr_b16 v[{r}:{r+1}], v{VA+1+(jn&1 if jn < 6 else 2)} offset:{((jn>>1)*8192 if jn < 6 else 0)+h*(2048 if nr else 512 if jn < 6 else 256)+ks*4096}')
        return o
    def mf(s):
        o = []
        if 'nomfma' in DBG: return ['s_nop 0']
        for jn, jm in mf_order(7, 4):
            if True:
                c = acc(jn, jm)
                o.append(f'v_mfma_f32_16x16x32_bf16 v[{c}:{c+3}], v[{fw(s,jn)}:{fw(s,jn)+3}], v[{fx(s,jm)}:{fx(s,jm)+3}], v[{c}:{c+3}]')
        return o
    zc = lambda x: x[:x.rindex(',')] + ', 0'
    big_loop(a, kind, N, S, STAGE, 4, VB, VA, reads, mf, ot=(lambda s: mf(1) if s else [zc(x) for x in mf(0)]) if ot else None, mid=mid)
    if ENV('XSE'): a.emit(f"s_sleep {ENV('XSE')}")
    CS = 32; BI = 60; STT = 88; CK = 96; T = 100; D = 108
    for jm in range(4):
        a.emit(f'ds_read2_b32 v[{STT+2*jm}:{STT+2*jm+1}], v14 offset0:{16*jm} offset1:{160+16*jm}')
    for jn in range(0 if 'nofold' in DBG else 7):
        a.emit(f'ds_read_b128 v[{CS+4*jn}:{CS+4*jn+3}], v{15 if jn < 6 else 16} offset:{(jn>>1)*256+(jn&1)*64}')
        a.emit(f'ds_read_b128 v[{BI+4*jn}:{BI+4*jn+3}], v{15 if jn < 6 else 16} offset:{1024+(jn>>1)*256+(jn&1)*64}')
    if HC: a.emit('s_waitcnt vmcnt(0)')
    if OH: a.emit('ds_read_b32 v17, v17')
    for jn in range(4 if o2 else 0):
        a.emit(f'buffer_load_dwordx2 v[{OBIA[jn]}:{OBIA[jn]+1}], v19, s[{SB}:{SB+3}], 0 offen offset:{jn*32}')
    c0 = -2.0 * 0.7978845608028654 * 1.4426950408889634
    c1 = c0 * 0.044715
    a.emit(f'v_mov_b32 v{CK}, {f2u(c0):#x}')
    a.emit(f'v_mov_b32 v{CK+1}, {f2u(c1):#x}')
    a.emit(f'v_mov_b32 v{CK+2}, 1.0')
    a.emit('s_waitcnt lgkmcnt(0)')
    if OH: a.emit(f'v_readfirstlane_b32 s{S_T}, v17')
    for jm in range(4):
        a.emit(f'v_mul_f32 v{STT+2*jm}, v{STT+2*jm}, v{STT+2*jm+1}')
    if OH:
        a.emit(f's_cmp_lg_u32 s{S_T}, 0')
        a.emit(f's_cselect_b32 s{S_T}, {HALT}, 0')
        a.emit(f's_add_u32 s{SO}, s{SO}, s{S_T}')
        a.emit(f's_addc_u32 s{SO+1}, s{SO+1}, 0')
        for r in (SX, SC) if PW else ():
            a.emit(f's_add_u32 s{r}, s{r}, s{S_T}')
            a.emit(f's_addc_u32 s{r+1}, s{r+1}, 0')
    def tile_math(jn, jm, d):
        c = acc(jn, jm)
        seqs = []
        ST2 = f'v[{STT+2*jm}:{STT+2*jm+1}]'
        for q in range(2):
            x = c + 2 * q; t = T + 2 * q + 4 * (jn & 1)
            X = f'v[{x}:{x+1}]'; TT = f'v[{t}:{t+1}]'
            seqs.append([
              f'v_pk_fma_f32 {TT}, v[{CS+4*jn+2*q}:{CS+4*jn+2*q+1}], {ST2}, v[{BI+4*jn+2*q}:{BI+4*jn+2*q+1}] op_sel:[0,0,0] op_sel_hi:[1,0,1] neg_lo:[0,1,0] neg_hi:[0,1,0]',
              f'v_pk_fma_f32 {X}, {X}, {ST2}, {TT} op_sel:[0,1,0] op_sel_hi:[1,1,1]',
              f'v_pk_mul_f32 {TT}, {X}, {X}',
              f'v_pk_fma_f32 {TT}, {TT}, v[{CK}:{CK+1}], v[{CK}:{CK+1}] op_sel:[0,1,0] op_sel_hi:[1,1,0]',
              f'v_pk_mul_f32 {TT}, {TT}, {X}',
              f'v_exp_f32 v{t}, v{t}\n  v_exp_f32 v{t+1}, v{t+1}',
              f'v_pk_add_f32 {TT}, {TT}, v[{CK+2}:{CK+3}] op_sel_hi:[1,0]',
              f'v_rcp_f32 v{t}, v{t}\n  v_rcp_f32 v{t+1}, v{t+1}',
              f'v_pk_mul_f32 {X}, {X}, {TT}',
              f'v_cvt_pk_bf16_f32 v{d+q}, v{x}, v{x+1}'])
        if 'nofold' in DBG: seqs = [q[2:] for q in seqs]
        if 'nofold1' in DBG: seqs = [q[1:] for q in seqs]
        if 'nogelu' in DBG: seqs = [q[:2] + q[-1:] for q in seqs]
        if 'halfgelu' in DBG: seqs = [q[:2] + q[5:6] + q[-2:] for q in seqs]
        for ia, ib in zip(*seqs):
            a.emit(ia); a.emit(ib)
    cnt = [0]
    def pair(t0, t1, vo, soff, big=False):
        d = D + 4 * (cnt[0] % 4); cnt[0] += 1
        tile_math(*t0, d); tile_math(*t1, d + 2)
        a.emit(f's_add_u32 s3, s10, {soff}' if big else f's_mov_b32 s3, {soff}')
        if not n2 or t0[0] == 6:
            a.emit('s_nop 0')
            a.emit(f'v_permlane16_swap_b32 v{d}, v{d+2}')
            a.emit(f'v_permlane16_swap_b32 v{d+1}, v{d+3}')
        a.emit(f'buffer_store_dwordx4 v[{d}:{d+3}], v{vo}, s[{SO}:{SO+3}], s3 offen' + (stf(kind) if str(t0[0] // 2) in ENV('WTP', '013' if OH else '0123') else ' ' + ENV('WTQ', '')))
        if o2 and t0[0] < 6: a.emit(f'ds_write_b128 v18, v[{d}:{d+3}] offset:{(t0[0] // 2 + 2) % 3 * 16384 + t0[1] * 2048}')
    pr = lambda p, jm: pair((2 * p, jm), (2 * p + 1, jm), VO, jm * 16 * ldo2 + ((16 + 32 * p) if OH == 2 else (46 + 2 * p)) * 1024 * (p > 0), p > 0 and OH != 2)
    od = lambda jm: pair((6, jm), (6, jm + 1), VO + 1, jm * 16 * ldo2 + 32768)
    order = [lambda jm=jm: pr(0, jm) for jm in range(4)] + [lambda: od(0), lambda: od(2)] + [lambda jm=jm, p=p: pr(p, jm) for jm in range(4) for p in (1, 2)]
    if OH:
        order = []
        for c in ENV('ORD', '0312'): order += [lambda: od(0), lambda: od(2)] if c == '3' else [lambda jm=jm, p=int(c): pr(p, jm) for jm in range(4)]
    EW = int(ENV('EW', '10'))
    if EF: order = [lambda: od(0), lambda: od(2)] + [lambda jm=jm, p=p: pr(p, jm) for p in (1, 2, 0) for jm in range(4)]
    for i, f in enumerate(order):
        f()
        if NV and i + 1 == EX: w2_early(a)
        if (EARLY or EF) and i + 1 == EW:
            a.emit(f's_waitcnt vmcnt({EW - (6 if EF else EARLY // 4)})')
            a.emit('s_barrier')
    if ENV('ES'): stamp(a, 1)
    compute_end(a, kind)
    a.label(f'L_{kind}_loader')
    L = Loader(a, kind, K, lda2, ldw2, [0, f's{S_HD}', 's_add_u32 s4, s4, 128'], 128, S, STAGE, rot=int(ENV('ROT_W1', '0')), xblk=True, half=2048)
    L.ot = int(ot)
    L.setup()
    a.emit('s_waitcnt lgkmcnt(0)')
    if WD: srd(a, SW, 'w1', 0, 1024 * 7168)
    iw0 = len(a.lines)
    if WD == 'b':
        a.emit('s_waitcnt vmcnt(7)')
        a.emit('s_barrier')
    if ot and ENV('CT2', 'l') == 'l': code_touch(a, 'L_w2_c0', 'L_w2_c1', 192, loader=True)
    srd(a, SX, 'ws', WS_X1, 4 * MB)
    if not WD: srd(a, SW, 'w1', 0, 1024 * 7168)
    srd(a, ST, 'ws', WS_ST, 16 * 16384); srd(a, SC, 'ws0', WS_CS, 16 * 16384); srd(a, SB, 'b1', 0, 7168)
    def tail():
        stats_loads(a, 32, False)
        a.emit(f's_lshl_b32 s4, s{S_NT}, 7')
        a.emit(f's_lshl_b32 s5, s{S_WV}, 6')
        a.emit('s_add_u32 s4, s4, s5')
        a.emit(f's_add_u32 s4, s4, {1472 - 256}')
        a.emit(f's_lshl_b32 s5, s{S_NT}, 6')
        a.emit(f's_cmp_eq_u32 s{S_WV}, 4')
        a.emit('s_cselect_b32 s4, s5, s4')
        a.emit('s_lshr_b32 s5, s5, 1')
        a.emit('s_add_u32 s5, s5, 1024')
        a.emit(f's_cmp_eq_u32 s{S_WV}, 7')
        a.emit('s_cselect_b32 s4, s5, s4')
        a.emit('v_add_u32 v3, s4, v1')
        a.emit('v_lshlrev_b32 v2, 2, v3')
        a.emit('v_lshlrev_b32 v3, 1, v3')
        a.emit(f's_mov_b32 s3, {cs[2]}')
        for j in range(16):
            if j < cs[0]:
                a.emit(f'buffer_load_dword v{64+j}, v2, s[{SC}:{SC+3}], s3 offen')
                if j < cs[0] - 1: a.emit(f's_add_u32 s3, s3, {cs[1]}')
            else:
                a.emit(f'v_mov_b32 v{64+j}, 0')
        a.emit(f'buffer_load_ushort v80, v3, s[{SB}:{SB+3}], 0 offen')
        side(a, 'issue')
    ns = side(Asm(), 'issue')
    extra = None
    if VW:
        assert int(ENV('LM_W2', '2')) == 2
        srd(a, SR, 'w2', 0, 3584 * 2048)
        a.emit('s_and_b32 s5, s2, 3')
        a.emit('s_lshl_b32 s5, s5, 2')
        a.emit(f's_and_b32 s6, s{S_CU}, 3')
        a.emit('s_add_u32 s5, s5, s6')
        a.emit('s_and_b32 s6, s2, 4')
        a.emit('s_lshl_b32 s6, s6, 1')
        a.emit(f's_lshr_b32 s7, s{S_CU}, 2')
        a.emit('s_add_u32 s6, s6, s7')
        rot_table(a, S_TB, 5, 6, 'w2')
        a.emit(f's_add_u32 s5, s5, s{S_WV}')
        a.emit('s_and_b32 s5, s5, 3')
        wvoff(a, 16, 5, 6, 2048)
        sched = [int(c) for c in ENV('PSCH', '0111111111111122')]
        assert sum(sched) >= NV1
        def extra(i):
            o = []
            for p in range(sum(sched[:i]), min(NV1, sum(sched[:i + 1]))): o += park(56, 2 * p, 128 + 8 * p, 16, SR)
            return o
        ns += sum(x.startswith('buffer_load') for i in (13, 14, 15) for x in extra(i))
    if XD:
        extra = tail_parks('w2', SR, lambda b: srd(b, SR, 'w2', 0, 3584 * 2048))
        ns += 2 * sum(TSCH['w2'])
    if XD and ENV('PFL', '2') == '3':
        b = Asm(); side(b, 'late'); pl = [l.strip() for l in b.lines]
        pl = [l.replace('v2,', 'v18,').replace(', v2', ', v18').replace('s3', 's93') for l in pl]
        i0 = min(i for i, l in enumerate(pl) if l.startswith('buffer_load'))
        for l in pl[:i0]: a.emit(l)
        st = [int(x) for x in ENV('PFS', '6,10').split(',')]
        extra = lambda i: pl[i0 + 2 * st.index(i):i0 + 2 * st.index(i) + 2] if i in st else []
    def final():
        a.emit(f's_waitcnt vmcnt({ns})')
        if ENV('PFL', '2') == '1': side(a, 'late')
        stats_reduce_store(a, 32, LST)
        for j in range(8): a.emit(f'v_add_f32 v{64+j}, v{64+j}, v{72+j}')
        for j in range(4): a.emit(f'v_add_f32 v{64+j}, v{64+j}, v{68+j}')
        a.emit('v_add_f32 v64, v64, v65')
        a.emit('v_add_f32 v66, v66, v67')
        a.emit('v_add_f32 v64, v64, v66')
        a.emit('v_lshlrev_b32 v80, 16, v80')
        a.emit('v_lshlrev_b32 v2, 2, v0')
        a.emit(f'v_add_u32 v2, {LCS - 1024}, v2')
        a.emit('ds_write_b32 v2, v64')
        a.emit('ds_write_b32 v2, v80 offset:1024')
        a.emit('s_waitcnt lgkmcnt(0)')
    import sides
    if T4:
        stats4_setup(a, False)
        a.emit(f's_lshl_b32 s4, s{S_NT}, 7')
        a.emit(f's_lshl_b32 s5, s{S_WV}, 6')
        a.emit('s_add_u32 s4, s4, s5')
        a.emit(f's_add_u32 s4, s4, {1472 - 256}')
        a.emit(f's_lshl_b32 s5, s{S_NT}, 6')
        a.emit(f's_cmp_eq_u32 s{S_WV}, 4')
        a.emit('s_cselect_b32 s4, s5, s4')
        a.emit('s_lshr_b32 s5, s5, 1')
        a.emit('s_add_u32 s5, s5, 1024')
        a.emit(f's_cmp_eq_u32 s{S_WV}, 7')
        a.emit('s_cselect_b32 s4, s5, s4')
        a.emit('v_and_b32 v3, 15, v1')
        a.emit('v_lshl_add_u32 v3, v3, 2, s4')
        a.emit('v_lshrrev_b32 v2, 4, v1')
        a.emit(f'v_add_lshl_u32 v{VBI}, v3, v2, 1')
        a.emit('v_lshlrev_b32 v3, 2, v3')
        a.emit(f'v_lshl_add_u32 v{VCS}, v2, 14, v3')
        CSI = int(ENV('CSI', '14')); STI = int(ENV('STI', '14'))
        LP2 = ENV('LP2', ''); LP0 = int(ENV('LP0', '5'))
        if LP2:
            a.emit(f's_and_b32 s3, s{S_MT}, 3')
            a.emit(f's_lshl2_add_u32 s3, s3, s{S_WV}')
            a.emit('s_sub_u32 s3, s3, 4')
            a.emit(f's_and_b32 s4, s{S_NT}, 7')
            a.emit('s_lshl_b32 s4, s4, 8')
            a.emit('s_lshl_b32 s5, s3, 14')
            a.emit('s_add_u32 s5, s5, s4')
            a.emit(f's_lshl_b32 s{SR}, s{S_NT}, 18')
            a.emit(f's_add_u32 s{SR}, s{SR}, {24 << 17}')
            a.emit(f's_add_u32 s{SR}, s{SR}, s5')
            a.emit(f's_and_b32 s{SR+1}, s{S_NT}, 8')
            a.emit(f's_lshl_b32 s{SR+1}, s{SR+1}, 16')
            a.emit(f's_add_u32 s{SR+1}, s{SR+1}, {16 << 17}')
            a.emit(f's_add_u32 s{SR+1}, s{SR+1}, s5')
            a.emit('s_lshr_b32 s5, s3, 1')
            a.emit(f's_lshl3_add_u32 s5, s{S_NT}, s5')
            a.emit('s_lshl_b32 s5, s5, 14')
            a.emit('s_and_b32 s3, s3, 1')
            a.emit('s_lshl_b32 s3, s3, 7')
            a.emit('s_add_u32 s4, s4, s3')
            a.emit(f's_add_u32 s{SR+2}, s5, s4')
            a.emit(f's_add_u32 s{SR+3}, s{SR+1}, {2 << 17}')
        HP = int(ENV('HP', '-1'))
        if HP >= 0:
            srd(a, SR, 'ws', WS_H, 2048 * 7168)
            a.emit(f's_and_b32 s3, s{S_WV}, 3')
            a.emit(f's_lshl2_add_u32 s3, s{S_MT}, s3')
            a.emit(f's_mul_i32 s3, s3, {32 * ldo2}')
            a.emit(f's_lshl_b32 s4, s{S_NT}, 12')
            a.emit('s_add_u32 s4, s4, s3')
            a.emit(f's_add_u32 s4, s4, {48 * 1024}')
            a.emit('v_lshl_add_u32 v24, v1, 6, s4')
            a.emit(f'v_add_u32 v25, {16 * ldo2}, v24')
            a.emit(f's_lshl_b32 s4, s{S_NT}, 10')
            a.emit('s_add_u32 s4, s4, s3')
            a.emit(f's_add_u32 s4, s4, {32 * 1024}')
            a.emit('v_and_b32 v3, 15, v1')
            a.emit('v_lshl_add_u32 v3, v3, 6, s4')
            a.emit('v_bfe_u32 v2, v1, 4, 1')
            a.emit(f'v_mul_u32_u24 v2, {16 * ldo2}, v2')
            a.emit('v_add_u32 v26, v2, v3')
            a.emit('v_and_b32 v3, 15, v1')
        def extra4(i):
            o = []
            if LP2 and i == LP0 - 1:
                b = Asm(); srd(b, SO, 'w2', 0, 3584 * 2048); o += [l.strip() for l in b.lines]
            if LP2 and LP0 <= i < LP0 + 8:
                for k, c in enumerate('ABCD'):
                    if c in LP2: o += [f's_buffer_load_dword s84, s[{SO}:{SO+3}], s{SR+k} offset:{64*j}' for j in range(2 if c == 'C' else 4)] + [f's_add_u32 s{SR+k}, s{SR+k}, 2048']
            if i == CSI: o += quad_loads(64, VCS, SC) + [f'buffer_load_ushort v80, v{VBI}, s[{SB}:{SB+3}], 0 offen']
            if i == STI: o += stats4_loads(32, False)
            HPD = int(ENV('HPD', '0'))
            if HP >= 0: o += [f"buffer_{ENV('HPO', 'load')}_dword v{84+j}, v{24+j}, s[{SR}:{SR+3}], 0 offen {ENV('HPF', '')}" for j in range(3) if i == HP + j * HPD]
            return o
        def final4():
            a.emit(f"s_waitcnt vmcnt({3 if HP >= 14 and ENV('HPO', 'load') == 'load' else 0})")
            stats4_store(a, 32, LST, False, nan_chk(a, 'L_w1_s', False) if SF else None)
            quad_sum(a, 64)
            a.emit('v_lshlrev_b32 v80, 16, v80')
            a.emit('s_lshl_b32 s5, s3, 8')
            a.emit(f's_add_u32 s5, s5, {LCS}')
            a.emit('v_permlane16_swap_b32 v64, v65')
            a.emit('v_lshrrev_b32 v2, 4, v1')
            a.emit('v_lshl_add_u32 v2, v3, 2, v2')
            a.emit('v_lshl_add_u32 v2, v2, 2, s5')
            a.emit('v_add_f32 v64, v64, v65')
            a.emit('ds_write2st64_b32 v2, v64, v80 offset0:0 offset1:4')
            if OH:
                assert ENV('PW_W1', '4') == '4'
                a.emit(f'v_xor_b32_dpp v64, v{VMD}, v{VMD} row_ror:2 row_mask:0xf bank_mask:0xf')
                a.emit(f's_lshl2_add_u32 s5, s3, {LST}')
                a.emit('v_cmp_ne_u32 vcc, 0, v64')
                a.emit('v_mov_b32 v2, s5')
                a.emit(f's_or_b32 s{S_MD}, vcc_lo, vcc_hi')
                a.emit(f'v_mov_b32 v64, s{S_MD}')
                a.emit('ds_write_b32 v2, v64')
            a.emit('s_waitcnt lgkmcnt(0)')
        assert ns == 0
        pst = sides.stouch_post(a, kind)
        if WD == 'c':
            a.emit('s_waitcnt vmcnt(0)')
            a.emit('s_barrier')
        elif WD: L.after_own = a.lines[iw0:]; del a.lines[iw0:]
        L.run(final=final4, extra=extra4, post=pst, dep=lambda pf: dep_wait(a, kind, postf=pf, obar=L.npre - 6 if ot and OBAR else 0, pref=(lambda: a.emit(f's_waitcnt vmcnt({L.npre - 7})')) if ot and not OBAR else None))
    else: L.run(tail_issue=tail, ntail_vm=17 + cs[0] + side(Asm(), 'issue'), final=final, extra=extra, post=sides.stouch_post(a, kind),
          dep=(lambda pf: dep_wait(a, kind, postf=pf)) if MEGA else None)
    if ENV('PFL', '2') == '2': side(a, 'late')
    if not VW: side(a, 'finish')
    loader_end(a, kind)
    a.label(end)
    a.emit('s_endpgm')
    loader_first(a, kind)
    if not MEGA:
        a(KD.format(name=f'{kind}l0_kernel'))
        stub(a, f'{kind}l1_kernel', body, 1, tsidx + 4, False)
        a(KD.format(name=f'{kind}l1_kernel'))
    a.label(f'L_{kind}_c1')
    return LCS + 2048
```

```python
import sys, os, struct
sys.path.insert(0, os.path.join(os.path.dirname(os.path.abspath(__file__)), '..'))
from asmlib import Asm, check_offsets
MB = 1 << 20
WSB = int(os.environ.get('WSB', '0')) * MB
WS_O   = WSB
WS_X1  = WSB + 4 * MB
WS_H   = WSB + 8 * MB
WS_ST  = WSB + 23 * MB
WS_CS  = WSB + 23 * MB + 512 * 1024
WS_ST0 = WSB + 23 * MB + 768 * 1024
D2 = os.environ.get('DS', '2') == '2'
DS = os.environ.get('DS', '2') in '12'
WS_TS  = 60 * MB
MEGA = os.environ.get('MEGA', '2') in ('1', '2')
ONE = os.environ.get('MEGA', '2') == '2'
LSTR = 64 * MB
WS_ST2 = WS_ST + 256 * 1024 if MEGA else WS_ST
WS_FL = WSB + 40 * MB
FLS = 524288
REP = int(os.environ.get('REP', '16'))
WS_XP = WSB + 24 * MB
WS_X2 = WSB + 32 * MB
XPAD = int(os.environ.get('XPAD', '128')) if MEGA else 0
f2u = lambda f: struct.unpack('<I', struct.pack('<f', f))[0]
ENV = os.environ.get
TS = ENV('TS', '')
TE = ENV('TE', '')
DBG = ENV('DBG', '').split(',')
EARLY = int(ENV('EARLY', '0')) if MEGA and ENV('SPLIT', '0') == '0' else 0
def stf(kind): return (' ' + ENV('WTF', 'sc1')) if kind in ENV('WT', 'attn,wo,w2,w1').split(',') else ''

KA = {'A_x': 0, 'wqkv': 8, 'wo': 16, 'w1': 32, 'b1': 40, 'w2': 48, 'b2': 56, 'out': 64, 'ws': 80}
P_IN = 16
P_OUT = 32; P_WS = 34
P_XS = 12
PTR = {'A_x': 16, 'wqkv': 18, 'wo': 20, 'w1': 24, 'b1': 26, 'w2': 28, 'b2': 30, 'out': 32, 'ws': 34, 'xs': 12, 'ws0': 22}
SX, SW, SO, SR, SB, ST, SP, SC = 36, 40, 44, 48, 52, 56, 60, 64
S_MT, S_NT, S_WV, S_WM, S_WN = 68, 69, 70, 71, 72
S_KX, S_KW, S_SLOT, S_XD, S_WD, S_HD, S_CNT = 73, 74, 75, 76, 77, 78, 79
S_LAYER = 96; S_TSI = 97; S_T = 98; S_CU = 99; S_XG = 100; S_KT = 101

KD = '''.section .rodata,"a"
.p2align 6
.amdhsa_kernel {name}
  .amdhsa_next_free_vgpr 256
  .amdhsa_next_free_sgpr 102
  .amdhsa_accum_offset 256
  .amdhsa_group_segment_fixed_size 0
  .amdhsa_kernarg_size 88
  .amdhsa_user_sgpr_count 2
  .amdhsa_user_sgpr_kernarg_segment_ptr 1
  .amdhsa_system_sgpr_workgroup_id_x 1
  .amdhsa_float_denorm_mode_32 3
  .amdhsa_float_denorm_mode_16_64 3
.end_amdhsa_kernel
.text
'''

def srd(a, sd, which, off, size):
    p = PTR[which]
    if off:
        a.emit(f's_add_u32 s{sd}, s{p}, {off}')
        a.emit(f's_addc_u32 s{sd+1}, s{p+1}, 0')
        a.emit(f's_and_b32 s{sd+1}, s{sd+1}, 0xffff')
    else:
        a.emit(f's_mov_b32 s{sd}, s{p}')
        a.emit(f's_and_b32 s{sd+1}, s{p+1}, 0xffff')
    a.emit(f's_mov_b32 s{sd+2}, {size}')
    a.emit(f's_mov_b32 s{sd+3}, 0x00020000')

def xpitch(a, sd, inv=False):
    a.emit(f's_cmp_eq_u32 s{S_LAYER}, {0 if inv else 1}')
    a.emit(f's_cselect_b32 s{sd}, {XPAD}, 0')
    a.emit(f's_add_u32 s{sd}, s{sd}, 2048')

def srd_xs(a, sd):
    srd(a, sd, 'xs', 0, 4 * MB)
    xpitch(a, sd + 2)
    a.emit(f's_lshl_b32 s{sd+2}, s{sd+2}, 11')

def stub(a, name, body, layer, tsidx, first):
    a(f'.text\n.globl {name}\n.p2align 8\n.type {name},@function\n{name}:')
    if TS:
        stamp(a, 0, nowait=True)
    if TE: a.emit('s_memrealtime s[94:95]')
    for x in ENV('PERM', '').split():
        a.emit(f"s_bitcmp1_b32 s2, {x.split(':')[0]}")
        a.emit(f"s_cselect_b32 s3, {x.split(':')[1]}, 0")
        a.emit('s_xor_b32 s2, s2, s3')
    a.emit('s_load_dwordx4 s[16:19], s[0:1], 0')
    a.emit('s_load_dwordx2 s[20:21], s[0:1], 16')
    a.emit('s_load_dwordx2 s[22:23], s[0:1], 80')
    a.emit('s_load_dwordx8 s[24:31], s[0:1], 32')
    a.emit('s_load_dwordx2 s[32:33], s[0:1], 64')
    a.emit('s_load_dwordx2 s[34:35], s[0:1], 80')
    a.emit(f's_load_dwordx2 s[12:13], s[0:1], {0 if layer == 0 else 64}')
    if DS: a.emit(f's_load_dwordx2 s[{SC}:{SC+1}], s[0:1], 72')
    a.emit(f's_mov_b32 s{S_LAYER}, {layer}')
    if ENV('PADS', '0') == '1': a.emit('s_mov_b64 exec, -1')
    a.emit(f's_mov_b32 s{S_TSI}, {tsidx}')
    if not first:
        a.emit(f's_branch {body}')

def stamp(a, n, nowait=False):
    if not TS: return
    a.emit(f's_memrealtime s[{80+4*n}:{81+4*n}]')
    a.emit(f's_memtime s[{82+4*n}:{83+4*n}]')
    if not nowait: a.emit('s_waitcnt lgkmcnt(0)')

def stamps_out(a, tag):
    if not TS: return
    if not MEGA: a.emit('s_waitcnt vmcnt(0)')
    stamp(a, 3)
    if MEGA and tag == 'w1':
        for i in range(16): a.emit(f'v_writelane_b32 v31, s{80+i}, {i}')
        return
    srd(a, SP, 'ws0', WS_TS, 1 << 20)
    a.emit('s_lshl_b32 s4, s2, 6')
    a.emit(f's_lshl_b32 s5, s{S_TSI}, 16')
    a.emit('s_add_u32 s4, s4, s5')
    a.emit('v_mov_b32 v1, s4')
    for i in range(16): a.emit(f'v_mov_b32 v{4+i}, s{80+i}')
    a.emit('v_cmp_eq_u32 vcc, 0, v0')
    a.emit('s_and_saveexec_b64 s[6:7], vcc')
    a.emit(f's_cbranch_execz L_tsskip_{tag}')
    for j in range(4):
        a.emit(f'buffer_store_dwordx4 v[{4+4*j}:{7+4*j}], v1, s[{SP}:{SP+3}], 0 offen offset:{16*j}' + (' sc1' if ENV('DIAG') else ''))
    if MEGA and tag == 'w2':
        a.emit('s_mov_b64 exec, 0xffff')
        a.emit('s_sub_u32 s4, s4, 0x10000')
        a.emit('v_lshlrev_b32 v1, 2, v0')
        a.emit(f'buffer_store_dword v31, v1, s[{SP}:{SP+3}], s4 offen' + (' sc1' if ENV('DIAG') else ''))
    a.label(f'L_tsskip_{tag}')
    a.emit('s_mov_b64 exec, -1')

SPX = ENV('SPX', '1') == '1'
OT = ENV('OT', 'w1,w2,attn').split(',')
S_T0 = 91
OHB = 114688; OBIA = [10, 24, 124, 126]
NV = int(ENV('NV', '0'))
EF = int(ENV('EF', '0'))
NS = ENV('NS', 'wo,w1,w2').split(',')
NSR = ENV('NSR', '1') == '1'
SKL = ENV('SKL', '1') == '1'
SF = ENV('SF', '0') == '1'
WD = ENV('WD', 'c')
ZD = ENV('ZD', 'a')
OH = int(ENV('OH', '1'))
OHO = (0, 51200, 81920)[OH]
HALT = 33 * MB
GM = ENV('GM', '0') == '1'
S_MD = 93 if GM else 92; VMD = 27
CF = ENV('CF', '0') == '1'
WE = int(ENV('WE', '-1'))
LF1 = int(ENV('LF1', '0'))
LF2 = int(ENV('LF2', '2'))
EX = int(ENV('EX', '14'))
LSTK = ENV('LSTK', 'w2')
LREG = [52, 54, 56, 58] if LSTK == 'w2' else [36, 38, 48, 50] if LSTK == 'wo' else [80, 82, 48, 50]
def lstamp(a, n, dep=False):
    if dep and (ENV('LST') == 'x' or LSTK != 'w2'): return
    if TS: a.emit(f's_memrealtime s[{LREG[n]}:{LREG[n]+1}]')

def lstamps_out(a, tag):
    if not TS: return
    a.emit(f"s_cmp_lg_u32 s{S_WV}, {ENV('PW_' + tag.upper(), '4')}")
    a.emit(f's_cbranch_scc1 L_ltsskip_{tag}')
    a.emit('s_waitcnt lgkmcnt(0)')
    srd(a, SP, 'ws0', WS_TS + 16384, 1 << 20)
    a.emit('s_lshl_b32 s4, s2, 6')
    a.emit(f's_lshl_b32 s5, s{S_TSI}, 16')
    a.emit('s_add_u32 s4, s4, s5')
    for i in range(8): a.emit(f'v_writelane_b32 v20, s{LREG[i>>1]+(i&1)}, {i}')
    a.emit('v_lshlrev_b32 v21, 2, v1')
    a.emit('s_mov_b64 exec, 0xff')
    a.emit(f'buffer_store_dword v20, v21, s[{SP}:{SP+3}], s4 offen')
    a.emit('s_mov_b64 exec, -1')
    a.label(f'L_ltsskip_{tag}')

def tile_map(a, LM, endlab, pair=False):
    if endlab:
        a.emit('s_cmp_ge_u32 s2, 256')
        a.emit(f's_cbranch_scc1 {endlab}')
        a.emit('v_lshrrev_b32 v2, 6, v0')
        a.emit('v_and_b32 v1, 63, v0')
        a.emit(f'v_readfirstlane_b32 s{S_WV}, v2')
    a.emit('s_and_b32 s3, s2, 7')
    if endlab: a.emit(f's_lshr_b32 s{S_CU}, s2, 3')
    if LM == 2 and ENV('MAP2', '0') == '1':
        a.emit('s_lshl_b32 s5, s3, 1')
        a.emit('s_lshr_b32 s6, s3, 1')
        a.emit('s_and_b32 s5, s5, 2')
        a.emit('s_and_b32 s6, s6, 1')
        a.emit('s_or_b32 s5, s5, s6')
    else: a.emit(f's_and_b32 s5, s3, {(1 << (4 - LM)) - 1}')
    a.emit(f's_lshl_b32 s5, s5, {LM}')
    a.emit(f's_and_b32 s6, s{S_CU}, {(1 << LM) - 1}')
    a.emit(f's_add_u32 s{S_MT}, s5, s6')
    a.emit(f's_lshr_b32 s5, s3, {4 - LM}')
    if pair:
        a.emit(f's_lshr_b32 s{S_HD}, s{S_CU}, {LM}')
        a.emit(f's_lshl1_add_u32 s{S_NT}, s{S_HD}, s5')
        return
    a.emit(f's_lshl_b32 s5, s5, {5 - LM}')
    a.emit(f's_lshr_b32 s6, s{S_CU}, {LM}')
    a.emit(f's_add_u32 s{S_NT}, s5, s6')
    if 'smallm' in DBG: a.emit(f's_and_b32 s{S_MT}, s{S_MT}, 1')
    if 'smalln' in DBG: a.emit(f's_and_b32 s{S_NT}, s{S_NT}, 1')

def interleave(a, main, side, lead=1, per=1):
    si = 0
    for i, m in enumerate(main):
        a.emit(m)
        if i + 1 >= lead:
            for _ in range(per):
                if si < len(side): a.emit(side[si]); si += 1
    while si < len(side): a.emit(side[si]); si += 1

PO0, POM = [int(x) for x in ENV('PO', '1,3').split(',')]
KSH = int(ENV('KSH', '0')); LAT = int(ENV('LAT', '0'))
def own_pos(a, sd):
    a.emit(f's_and_b32 s{sd}, s{S_NT}, {POM}')
    a.emit(f's_add_u32 s{sd}, s{sd}, {PO0}')

class Loader:
    VXD = 4; VWD = 8; VXH = 28
    def __init__(self, a, tag, K, lda2, ldw2, panels, colbase, S, STAGE, halo=None, delta=0, rot=None, xblk=False, half=0):
        self.a = a; self.tag = tag; self.K = K; self.lda2 = lda2; self.ldw2 = ldw2; self.panels = panels
        self.colbase = colbase; self.S = S; self.STAGE = STAGE; self.halo = halo; self.delta = delta; self.xblk = xblk; self.rot = rot if rot is not None and rot >= 0 else None
        self.NSTEP = K // 64; self.half = half; self.ot = 0; self.skip = False; self.loc = False
        self.per = 4 + 2 * len(panels) + (1 if halo is not None else 0)
    def setup(self):
        a = self.a
        if ENV('PRIO', '0') != '0': a.emit(f"s_setprio {ENV('PRIO')}")
        a.emit(f's_add_u32 s8, s{S_WV}, s{S_NT}')
        a.emit('s_and_b32 s8, s8, 3')
        a.emit(f's_add_u32 s9, s{S_WV}, s{S_MT}')
        a.emit('s_and_b32 s9, s9, 3')
        a.emit(f's_lshl_b32 s{S_XD}, s8, 12')
        a.emit(f's_lshl_b32 s{S_WD}, s9, 11')
        a.emit(f's_add_u32 s{S_WD}, s{S_WD}, 16384')
        a.emit(f's_lshl_b32 s11, s{S_MT}, 7')
        a.emit('v_and_b32 v10, 7, v1')
        if self.xblk: self.xoff_blk(self.lda2)
        else: self.xoff_rows(self.lda2)
        ns = self.tag in NS and not NSR; nr = self.tag in NS and NSR
        wrow(a, 9, ns)
        a.emit(f'v_mul_u32_u24 v3, {self.ldw2}, v3')
        a.emit('v_lshrrev_b32 v2, 3, v1')
        a.emit(f'v_and_b32 v2, {6 if nr else 2}, v2')
        a.emit('v_xor_b32 v2, v2, v10')
        a.emit(f's_mul_i32 s10, s{S_NT}, {self.colbase}')
        if 'noslow' in DBG and self.tag == 'attn':
            a.emit(f's_bitcmp1_b32 0x0808, s{S_NT}')
            a.emit('s_cselect_b32 s3, 512, 0')
            a.emit('s_add_u32 s10, s10, s3')
        if self.colbase & 127: a.emit('s_andn2_b32 s10, s10, 127')
        a.emit('v_add_u32 v3, s10, v3')
        a.emit(f'v_lshl_add_u32 v{self.VWD}, v2, 4, v3')
        if not nr: a.emit('v_xor_b32 v2, 4, v2')
        a.emit(f'v_add_u32 v3, {(4 if ns else 8)*self.ldw2}, v3')
        a.emit(f'v_lshl_add_u32 v{self.VWD+1}, v2, 4, v3')
        if self.half:
            if ns:
                a.emit('v_bfe_u32 v3, v1, 2, 2')
                a.emit('v_lshrrev_b32 v2, 5, v1')
                a.emit('v_lshl_add_u32 v3, v2, 2, v3')
                a.emit('v_and_b32 v2, 16, v1')
                a.emit('s_and_b32 s10, s9, 2')
                a.emit('s_add_u32 s10, s10, s9')
                a.emit('s_lshl_b32 s10, s10, 3')
                a.emit('v_add3_u32 v3, s10, v3, v2')
            else:
                a.emit('v_lshrrev_b32 v3, 2, v1')
                a.emit('s_lshl_b32 s10, s9, 4')
                a.emit('v_add_u32 v3, s10, v3')
            a.emit(f'v_mul_u32_u24 v3, {self.ldw2}, v3')
            if 'w2' in NS: a.emit(f'v_bfe_u32 v2, v1, {4 if nr else 5}, 1')
            else:
                a.emit(f'v_lshrrev_b32 v2, {3 if nr else 4}, v1')
                a.emit('v_and_b32 v2, 2, v2')
            a.emit('v_xor_b32 v2, v2, v1')
            a.emit('v_and_b32 v2, 3, v2')
            a.emit(f's_lshl_b32 s10, s{S_NT}, 6')
            a.emit(f's_add_u32 s10, s10, {self.half}')
            a.emit('v_add_u32 v3, s10, v3')
            a.emit(f'v_lshl_add_u32 v{self.VXH}, v2, 4, v3')
            a.emit(f's_lshl_b32 s{S_HD}, s{S_NT}, 7')
            a.emit(f's_add_u32 s{S_HD}, s{S_HD}, 3072')
        if self.halo is not None:
            a.emit(f's_and_b32 s10, s{S_WV}, 3')
            a.emit(f's_lshl_b32 s{S_HD}, s10, 9')
            a.emit(f's_add_u32 s{S_HD}, s{S_HD}, {self.halo}')
            a.emit('s_lshl_b32 s14, s10, 2')
            a.emit('s_add_u32 s14, s14, s11')
            a.emit('s_sub_u32 s14, s14, 16')
            a.emit('v_lshrrev_b32 v3, 3, v1')
            a.emit('v_add_u32 v3, s14, v3')
            a.emit('v_max_i32 v3, 0, v3')
            a.emit('v_mul_u32_u24 v3, s5, v3')
            a.emit('s_lshl_b32 s14, s10, 1')
            a.emit('v_lshrrev_b32 v2, 4, v1')
            a.emit('v_add_u32 v2, s14, v2')
            a.emit('v_and_b32 v2, 7, v2')
            a.emit('v_xor_b32 v2, v2, v10')
            a.emit(f'v_lshl_add_u32 v{self.VXH}, v2, 4, v3')
            a.emit('s_cmp_eq_u32 s10, 0')
            a.emit('s_cselect_b32 s14, 0xffffff00, -1')
            a.emit('s_mov_b32 s15, 0')
        a.emit(f's_mov_b32 s{S_SLOT}, 0')
        if self.rot is None:
            a.emit(f's_mov_b32 s{S_KX}, 0')
            a.emit(f's_mov_b32 s{S_KW}, 0')
        else:
            if not getattr(self, 'noxg', False): a.emit(f's_add_u32 s{S_XG}, s{S_MT}, s{S_NT}')
            a.emit(f's_mov_b32 s{S_KT}, {0 if EARLY and self.tag == "w2" else -1}')
            ko = int(ENV('KOFF_' + self.tag.upper(), '0'))
            if ko:
                a.emit(f"s_bitcmp1_b32 {ENV('KMSK_' + self.tag.upper(), '0x0808' if self.tag == 'attn' else '0x2aea')}, s{S_NT}")
                a.emit(f's_cselect_b32 s{S_KT}, {ko - 1}, s{S_KT}')
            if self.kord(): self.ktable()
            if self.skip:
                if LAT:
                    a.emit(f's_mul_i32 s3, s{S_MT}, {LAT}')
                    a.emit(f's_add_u32 s3, s3, s{S_NT}')
                    a.emit(f's_and_b32 s{S_T0}, s3, 15')
                elif KSH:
                    a.emit(f's_and_b32 s{S_T0}, s{S_NT}, 3')
                    a.emit(f's_and_b32 s93, s{S_NT}, 12')
                    if KSH == 2:
                        a.emit(f's_and_b32 s3, s{S_MT}, 8')
                        a.emit('s_add_u32 s93, s93, s3')
                else: a.emit(f's_mov_b32 s{S_T0}, s{S_NT}')
                own_pos(a, 92)
                for x in self.knext(): a.emit(x)
            elif not self.ot:
                for x in self.knext(): a.emit(x)
    def kord(self): return ENV('KORD_' + self.tag.upper(), {'w1': '2', 'attn': '0,2'}.get(self.tag, ''))
    def korder(self, g, start):
        D = int(ENV('ROTD_' + self.tag.upper(), ENV('ROTD', '2')))
        o = list(range(16))
        if start < 0:
            dl = {3: [3, -1, -1, -1], 2: [2, -1, -1, 0], 1: [1, -1, 0, 0]}[D]
            return [(t + dl[(t - g) & 3]) & 15 for t in range(16)]
        for t in range(start + g, 16 - D, 4): o[t:t + D + 1] = [t + D] + list(range(t, t + D))
        return o
    def ktable(self, start=None):
        a = self.a
        if start is None: start = int(self.kord().split(',')[0])
        a.emit(f's_add_u32 s3, s{S_MT}, s{S_NT}')
        a.emit('s_and_b32 s3, s3, 3')
        for g in range(4):
            v = sum((2 * (k & 7) + (k >> 3) if self.loc else k) << (4 * i) for i, k in enumerate(self.korder(g, start)))
            if self.loc: assert max(self.korder(g, start)[:6]) < 8
            if g: a.emit(f's_cmp_eq_u32 s3, {g}')
            for h in range(2):
                a.emit(f's_cselect_b32 s{S_XG+h}, {(v >> (32 * h)) & 0xffffffff:#x}, s{S_XG+h}' if g else f's_mov_b32 s{S_XG+h}, {(v >> (32 * h)) & 0xffffffff:#x}')
        if self.loc:
            a.emit(f's_bitcmp1_b32 s{S_NT}, 3')
            a.emit('s_cselect_b32 s3, 0x11111111, 0')
            for h in range(2): a.emit(f's_xor_b32 s{S_XG+h}, s{S_XG+h}, s3')
    def own(self):
        D = int(ENV('ROTD_' + self.tag.upper(), ENV('ROTD', '2')))
        dl = {3: [3, -1, -1, -1], 2: [2, -1, -1, 0], 1: [1, -1, 0, 0]}[D]
        tbl = sum(((-d) % 16) << (8 * ((r + d) & 3)) for r, d in enumerate(dl))
        assert self.rot == 0 and self.NSTEP == 16
        if self.kord():
            return [f's_lshr_b32 s3, s{S_NT}, 3', f's_and_b32 s{S_KX}, s{S_NT}, 7', f's_lshl1_add_u32 s{S_T0}, s{S_KX}, s3',
                    f's_mul_i32 s{S_KW}, s{S_T0}, {64*self.ldw2}', f's_lshl_b32 s{S_KX}, s{S_T0}, {11 if self.xblk else 7}']
        return [f's_lshr_b32 s3, s{S_NT}, 3', f's_and_b32 s{S_KX}, s{S_NT}, 7', f's_lshl1_add_u32 s{S_KX}, s{S_KX}, s3',
                f's_sub_u32 s3, s{S_KX}, s{S_XG}', 's_lshl_b32 s3, s3, 3', f's_lshr_b32 s3, {tbl:#x}, s3',
                f's_add_u32 s3, s3, s{S_KX}', f's_and_b32 s{S_T0}, s3, 15',
                f's_mul_i32 s{S_KW}, s{S_KX}, {64*self.ldw2}', f's_lshl_b32 s{S_KX}, s{S_KX}, {11 if self.xblk else 7}']
    def xoff_rows(self, ld):
        a = self.a
        a.emit('v_lshrrev_b32 v3, 3, v1')
        a.emit(f's_lshr_b32 s10, s{S_XD}, 7')
        a.emit(f's_lshl_b32 s3, s{S_MT}, 7')
        a.emit('s_add_u32 s10, s10, s3')
        a.emit('v_add_u32 v3, s10, v3')
        xpitch(a, 5)
        a.emit('s_lshl_b32 s6, s5, 3')
        a.emit('v_mul_u32_u24 v3, s5, v3')
        a.emit('v_lshrrev_b32 v2, 4, v1')
        for j in range(4):
            d = self.VXD + j
            if j & 1:
                a.emit(f'v_add_u32 v{d}, 4, v2')
                a.emit(f'v_xor_b32 v{d}, v{d}, v10')
            else:
                a.emit(f'v_xor_b32 v{d}, v2, v10')
            a.emit(f'v_lshl_add_u32 v{d}, v{d}, 4, v3')
            if j < 3: a.emit('v_add_u32 v3, s6, v3')
    def xoff_blk(self, ld):
        a = self.a
        a.emit(f's_lshr_b32 s10, s{S_XD}, 11')
        a.emit(f's_lshl_b32 s3, s{S_MT}, 3')
        a.emit('s_add_u32 s10, s10, s3')
        a.emit(f's_mul_i32 s10, s10, {16*ld}')
        a.emit(f'v_lshl_add_u32 v{self.VXD}, v1, 4, s10')
        a.emit(f'v_add_u32 v{self.VXD+1}, {16*ld}, v{self.VXD}')
    def xdma(self, base, imm, sd, soff, blk):
        o = []
        for j in range(4):
            if blk:
                if not j & 1: o += [f's_add_u32 m0, s{base}, {imm + j*1024}', 's_nop 0']
                o.append(f'buffer_load_dwordx4 v{self.VXD+(j>>1)}, s[{sd}:{sd+3}], s{soff} offen offset:{(j&1)*1024} lds')
            else:
                o += [f's_add_u32 m0, s{base}, {imm + j*1024}', 's_nop 0', f'buffer_load_dwordx4 v{self.VXD+j}, s[{sd}:{sd+3}], s{soff} offen lds']
        return o
    def knext(self):
        if self.rot is None:
            return [f's_add_u32 s{S_KX}, s{S_KX}, {2048 if self.xblk else 128}', f's_add_u32 s{S_KW}, s{S_KW}, {64*self.ldw2}']
        if self.kord():
            tb = f's[{S_XG}:{S_XG+1}]'
            o = [f's_and_b32 s{S_KX}, s{S_XG}, 15']
            if self.ot or self.skip: o += [f's_cmp_eq_u32 s{S_KX}, s{S_T0}', f's_cselect_b32 s{S_KW}, 4, 0', f's_lshr_b64 {tb}, {tb}, s{S_KW}', f's_and_b32 s{S_KX}, s{S_XG}, 15']
            if self.skip and not self.ot: o += ['s_sub_u32 s92, s92, 1', f's_cselect_b32 s{S_KX}, s{S_T0}, s{S_KX}', f's_cselect_b32 s{S_KW}, 0, 4'] + ([f's_add_u32 s{S_KX}, s{S_KX}, s93', f's_and_b32 s{S_KX}, s{S_KX}, 15'] if KSH else [])
            return o + [f's_lshr_b64 {tb}, {tb}, ' + (f's{S_KW}' if self.skip and not self.ot else '4'), f's_mul_i32 s{S_KW}, s{S_KX}, {64*self.ldw2}', f's_lshl_b32 s{S_KX}, s{S_KX}, {11 if self.xblk else 7}']
        lc = self.rot; C = 1 << lc; N = self.NSTEP
        o = [f's_add_u32 s{S_KT}, s{S_KT}, 1']
        if self.ot: o += [f's_cmp_eq_u32 s{S_KT}, s{S_T0}', f's_addc_u32 s{S_KT}, s{S_KT}, 0']
        D = int(ENV('ROTD_' + self.tag.upper(), ENV('ROTD', '2')))
        dl = {3: [3, -1, -1, -1], 2: [2, -1, -1, 0], 1: [1, -1, 0, 0]}[D]
        tbl = sum((((d * C) % N) << (8 * i)) for i, d in enumerate(dl))
        if lc: o += [f's_lshr_b32 s{S_KX}, s{S_KT}, {lc}', f's_sub_u32 s{S_KX}, s{S_KX}, s{S_XG}']
        else: o += [f's_sub_u32 s{S_KX}, s{S_KT}, s{S_XG}']
        o += [f's_lshl_b32 s{S_KX}, s{S_KX}, 3',
              f's_lshr_b32 s{S_KX}, {tbl:#x}, s{S_KX}',
              f's_and_b32 s{S_KX}, s{S_KX}, 255',
              f's_add_u32 s{S_KX}, s{S_KX}, s{S_KT}']
        if N & (N - 1) == 0: o += [f's_and_b32 s{S_KX}, s{S_KX}, {N - 1}']
        else: o += [f's_sub_u32 s{S_KW}, s{S_KX}, {N}', f's_cselect_b32 s{S_KX}, s{S_KX}, s{S_KW}']
        o += [f's_mul_i32 s{S_KW}, s{S_KX}, {64*self.ldw2}', f's_lshl_b32 s{S_KX}, s{S_KX}, {11 if self.xblk else 7}']
        return o
    def panels_of(self, t): return self.panels
    def issue_x(self, bx, bh, imm, kx):
        o = self.xdma(bx, imm, SX, kx, self.xblk)
        if self.halo is not None:
            o.append(f's_add_u32 m0, s{S_HD}, {bh}')
            o.append('s_mov_b64 exec, s[14:15]')
            o.append(f'buffer_load_dwordx4 v{self.VXH}, s[{SX}:{SX+3}], s{kx} offen lds')
            o.append('s_mov_b64 exec, -1')
        return o
    def issue_w(self, t, bw, imm):
        o = []
        for pn, goff in enumerate(self.panels_of(t)):
            for i in range(2):
                o.append(f's_add_u32 m0, s{bw}, {imm+pn*8192+i*1024}')
                o.append((goff if str(goff).startswith('s_') else f's_add_u32 s4, s{S_KW}, {goff}') if i == 0 else 's_nop 0')
                o.append(f'buffer_load_dwordx4 v{self.VWD+i}, s[{SW}:{SW+3}], s4 offen lds')
        if self.half:
            o += [f's_add_u32 m0, s{bw}, {imm+len(self.panels)*8192}', 's_nop 0',
                  f'buffer_load_dwordx4 v{self.VXH}, s[{SW}:{SW+3}], s{S_KW} offen lds']
        return o
    def issue(self, t):
        o = [f's_add_u32 s3, s{S_SLOT}, s{S_XD}']
        o += self.issue_x(3, f's{S_SLOT}', 0, S_KX)
        o.append(f's_add_u32 s3, s{S_SLOT}, s{S_WD}')
        o += self.issue_w(t, 3, 0)
        o += self.knext()
        o.append(f's_add_u32 s{S_SLOT}, s{S_SLOT}, {self.STAGE}')
        o.append(f's_cmp_eq_u32 s{S_SLOT}, {self.S*self.STAGE}')
        o.append(f's_cselect_b32 s{S_SLOT}, 0, s{S_SLOT}')
        return o
    def run(self, variant='', tail_issue=None, ntail_vm=0, final=None, post=(), dep=None, tail_late=0, start=None, extra=None, exfirst=False):
        a = self.a; N = self.NSTEP; d = self.S - 1
        tag = self.tag + variant
        nx = 4 + (1 if self.halo is not None else 0)
        nw = lambda t: 2 * len(self.panels_of(t)) + (1 if self.half else 0)
        seq = []
        early = EARLY and self.tag == 'w2'
        pchk = EARLY - 3 - d - 1; piss = pchk - d + 1 - int(ENV('PEARLY', '0'))
        if self.loc: pchk = 3; piss = 2
        def em(o):
            for x in o:
                if 'nodma' in DBG and x.endswith(' lds'): continue
                a.emit(x)
        def after(t): return len(seq) - 1 - max(i for i, x in enumerate(seq) if x == t)
        def wait(n):
            assert n <= 63, n
            a.emit(f's_waitcnt vmcnt({n})')
        if dep is None:
            for t in range(2): em(self.issue(t)); seq += [t] * (nx + nw(t))
            if start: seq += ['S'] * start()
            wait(after(0))
            a.emit('s_barrier')
            for t in range(2, d): em(self.issue(t)); seq += [t] * (nx + nw(t))
        else:
            prev = {'attn': 'w2', 'wo': 'attn', 'w1': 'wo', 'w2': 'w1'}[self.tag]
            assert 'attn' not in EBAR
            ot = self.ot
            if ot: em(self.own() + [f's_mov_b32 s88, s{S_KX}'] + [f's_mov_b32 s72, s{S_KW}'] * (self.tag + 'hit' in DBG) + self.issue_w(0, S_WD, 0) + self.knext()); seq.extend([0] * nw(0))
            a.lines += getattr(self, 'after_own', [])
            dep_pre(a, self.tag)
            if prev in EBAR: a.emit('s_barrier')
            xw = 1 if self.tag in ENV('XW', 'x').split(',') and not hasattr(self, 'P1') else 0
            def prew(ts):
                for t in ts:
                    a.emit(f's_mov_b32 s{88+t}, s{S_KX}')
                    if self.tag + 'hit' in DBG: a.emit(f's_mov_b32 s{S_KW}, s72')
                    em(self.issue_w(t, S_WD, t * self.STAGE) + self.knext()); seq.extend([t] * nw(t))
            late = int(ENV('LATE_' + self.tag.upper(), '2'))
            if ot: xw = 1
            prew(range(ot, d + xw - late))
            self.npre = len(seq)
            a.emit(f's_mov_b32 s{S_SLOT}, {0 if xw else d * self.STAGE}')
            wag = int(ENV('WAG_' + self.tag.upper(), '0'))
            dep((lambda: prew(range(d + xw - late, d + xw - wag))) if late else None)
            if ot and self.halo is not None: em(self.issue_x(S_XD, self.hx, 0, 88)[-4:]); seq.append(0)
            for t in range(ot, d + xw):
                if t >= d + xw - wag: prew([t])
                em(self.issue_x(S_XD, t * self.STAGE, t * self.STAGE, 88 + t)); seq += [t] * nx
            if ot and ENV('OPRIO'): a.emit('s_setprio 0')
            if self.loc: loc_flag(a, self.tag)
            wait(after(ot))
            if self.tag == 'w2': lstamp(a, 2)
            a.emit('s_barrier')
            if early: late_flag(a)
        ev = [None] * self.ot
        for i in range(self.ot, N):
            t = i + d
            if t in seq: t = N + 9
            early = early or self.loc
            if early and i == piss: seq += ['P']
            if t < N: seq += [t] * (nx + nw(t)) + ['Q'] * sum(x.startswith('buffer_') for x in post)
            ex = extra(i) if extra else []
            tl = tail_issue is not None and t == N - 1 + tail_late
            if exfirst: seq += ['E'] * sum(x.startswith('buffer_') for x in ex)
            if tl: seq += ['T'] * ntail_vm
            if not exfirst: seq += ['E'] * sum(x.startswith('buffer_') for x in ex)
            ev.append(((nw(t) if t < N else -1, after(i + 1) if i + 1 < N else -1, tl, early and i == piss, early and i == pchk, tuple(ex)), t))
        i = self.ot; nl = 0
        while i < N:
            j = i
            while j + 1 < N and ev[j + 1][0] == ev[i][0]: j += 1
            n = j - i + 1
            (k, w, tl, pi, pc, ex), t = ev[i]
            if n >= 3:
                nl += 1
                a.emit(f's_mov_b32 s{S_CNT}, {n}')
                a.label(f'L_{tag}_ld{nl}')
            else: j = i
            if pi and self.loc: dep_late(a, self.tag, 0)
            elif pi: a.emit(f'buffer_load_dword v13, v12, s[{SO}:{SO+3}], s86 offen sc1')
            if t < N:
                em(self.issue(t)); em(post)
            if exfirst: em(ex)
            if tl and not ('notail' in DBG and self.tag == 'w1'):
                if ENV('FPRIO'): a.emit('s_setprio 3')
                tail_issue()
                if ENV('FPRIO'): a.emit('s_setprio 0')
            if not exfirst: em(ex)
            if w >= 0: wait(w)
            elif final and 'nofinal' not in DBG:
                if ENV('FPRIO'): a.emit('s_setprio 3')
                final()
                if ENV('FPRIO'): a.emit('s_setprio 0')
            if pc and self.loc: dep_late(a, self.tag, 1, w)
            elif pc: late_check(a)
            a.emit('s_barrier')
            if n >= 3:
                a.emit(f's_sub_u32 s{S_CNT}, s{S_CNT}, 1')
                a.emit(f's_cmp_lg_u32 s{S_CNT}, 0')
                a.emit(f's_cbranch_scc1 L_{tag}_ld{nl}')
            i = j + 1

XD = ONE and ENV('SPLIT', '0') == '0' and ENV('XD', '1') == '1'
VW = MEGA and ENV('SPLIT', '0') == '0' and ENV('VW', '0') == '1'
NV1 = int(ENV('NV1', '16')); NV2 = int(ENV('NV2', '12')); NVO = int(ENV('NVO', '11'))
S_TB = 85
def rot_table(a, sd, smt, snt, tag):
    D = int(ENV('ROTD_' + tag.upper(), ENV('ROTD', '2')))
    dl = {3: [3, -1, -1, -1], 2: [2, -1, -1, 0], 1: [1, -1, 0, 0], 0: [0, 0, 0, 0]}[D]
    tbl = sum((d & 255) << (8 * i) for i, d in enumerate(dl))
    a.emit(f's_add_u32 s3, s{smt}, s{snt}')
    a.emit('s_lshl_b32 s3, s3, 3')
    a.emit(f's_lshl_b32 s{sd}, {tbl:#x}, s3')
    a.emit('s_sub_u32 s3, 0, s3')
    a.emit(f's_lshr_b32 s3, {tbl:#x}, s3')
    a.emit(f's_or_b32 s{sd}, s{sd}, s3')

def kpos(N, t, sd, tb=S_TB, halves=True, q=None):
    H, p, add = (28, t >> 1, 28 * (t & 1)) if N == 56 and halves else (N, t, 0)
    o = [f's_bfe_i32 s{sd}, s{tb}, {0x80000 + 8 * (p & 3):#x}', f's_add_i32 s{sd}, s{sd}, {p + add}']
    if p == 0: o += [f's_cmp_lt_i32 s{sd}, {add}', f's_cselect_b32 s{sd}, {H - 1 + add}, s{sd}']
    if p + 3 >= H: o += [f's_sub_u32 s3, s{sd}, {H}', f's_cmp_ge_i32 s{sd}, {H + add}', f's_cselect_b32 s{sd}, s3, s{sd}']
    if q is not None:
        if N == 16 or 1 <= t <= 12: o += [f's_add_u32 s{sd}, s{sd}, s{q}', f's_and_b32 s{sd}, s{sd}, 15']
        elif t <= 16 or t + 3 >= N: o += [f's_add_u32 s3, s{sd}, s{q}', 's_and_b32 s3, s3, 15', f's_cmp_lt_u32 s{sd}, 16', f's_cselect_b32 s{sd}, s3, s{sd}']
    return o

S_Q = 86
MROT = ENV('MROT', '1') == '1'
def rot_q(a, sd, smt, sh=0):
    a.emit(f's_and_b32 s{sd}, s{smt}, {3 if MROT else 0}')
    a.emit(f's_lshl_b32 s{sd}, s{sd}, {2 + sh}')

TSCH = {'wo': [int(c) for c in ENV('TSO', '000')], 'w2': [int(c) for c in ENV('TS2', '000')]}
def tail_parks(nxt, sw, mk=None, sch=None):
    if not XD: return None
    sch = sch or TSCH[nxt]; N = 16 if nxt == 'wo' else 56
    def extra(i):
        if i < 13 or not sum(sch): return []
        a = Asm()
        if i == 13:
            if mk: mk(a)
            a.emit('s_and_b32 s5, s2, 3')
            a.emit('s_lshl_b32 s5, s5, 2')
            a.emit(f's_and_b32 s6, s{S_CU}, 3')
            a.emit('s_add_u32 s5, s5, s6')
            a.emit('s_and_b32 s6, s2, 4')
            a.emit('s_lshl_b32 s6, s6, 1')
            a.emit(f's_lshr_b32 s7, s{S_CU}, 2')
            a.emit('s_add_u32 s6, s6, s7')
            rot_table(a, S_TB, 5, 6, nxt)
            rot_q(a, S_Q, 5)
            a.emit(f's_add_u32 s5, s5, s{S_WV}')
            a.emit('s_and_b32 s5, s5, 3')
            wvoff(a, 16, 5, 6, 2048)
        o = [l.strip() for l in a.lines]
        for t in range(sum(sch[:i - 13]), sum(sch[:i - 12])):
            o += kpos(N, t, 4, S_TB, False, S_Q) + ['s_lshl_b32 s4, s4, 17']
            o += [f'buffer_load_dwordx4 v[{128+8*t+4*j}:{131+8*t+4*j}], v{16+j}, s[{sw}:{sw+3}], s4 offen' for j in range(2)]
        return o
    return extra

def vreg(tag, t):
    if tag == 'wo': return (128 + 8 * (t - 5), False) if 5 <= t < 5 + NVO else None
    if t & 1: return None
    p = t >> 1
    if p < NV1: return (128 + 8 * p, True)
    if p < NV1 + NV2: return (32 + 8 * (p - NV1), False)
    return None

def wrow(a, sqw, ns):
    if ns:
        a.emit('v_bfe_u32 v3, v1, 3, 2')
        a.emit('v_lshrrev_b32 v2, 5, v1')
        a.emit('v_lshl_add_u32 v3, v2, 4, v3')
        a.emit(f's_and_b32 s10, s{sqw}, 2')
        a.emit(f's_add_u32 s10, s10, s{sqw}')
        a.emit('v_lshl_add_u32 v3, s10, 3, v3')
    else:
        a.emit('v_lshrrev_b32 v3, 3, v1')
        a.emit(f's_lshl_b32 s10, s{sqw}, 4')
        a.emit('v_add_u32 v3, s10, v3')

def wvoff(a, vd, sqw, snt, ldw2, ns=False):
    nr = ns and NSR; ns = ns and not NSR
    wrow(a, sqw, ns)
    a.emit(f'v_mul_u32_u24 v3, {ldw2}, v3')
    a.emit('v_lshrrev_b32 v2, 3, v1')
    a.emit(f'v_and_b32 v2, {6 if nr else 2}, v2')
    a.emit('v_xor_b32 v2, v2, v10')
    a.emit(f's_lshl_b32 s10, s{snt}, 7')
    a.emit('v_add_u32 v3, s10, v3')
    a.emit(f'v_lshl_add_u32 v{vd}, v2, 4, v3')
    if not nr: a.emit('v_xor_b32 v2, 4, v2')
    a.emit(f'v_add_u32 v3, {(4 if ns else 8)*ldw2}, v3')
    a.emit(f'v_lshl_add_u32 v{vd+1}, v2, 4, v3')

def park(N, t, r, vo, sw):
    return kpos(N, t, 4) + ['s_lshl_b32 s4, s4, 17'] + [f'buffer_load_dwordx4 v[{r+4*i}:{r+4*i+3}], v{vo+i}, s[{sw}:{sw+3}], s4 offen' for i in range(2)]

class ULoader(Loader):
    def run(self, variant='', tail_issue=None, ntail_vm=0, final=None, post=(), dep=None):
        a = self.a; N = self.NSTEP; d = self.S - 1; tag = self.tag
        seq = []
        def em(o):
            for x in o:
                if 'nodma' in DBG and x.endswith(' lds'): continue
                a.emit(x)
        def after(t): return len(seq) - 1 - max(i for i, x in enumerate(seq) if x == t)
        def wait(n, lg=False):
            assert n <= 63, n
            a.emit(f's_waitcnt vmcnt({n})' + (' lgkmcnt(0)' if lg else ''))
        def iw(t):
            sl = (t % self.S) * self.STAGE; v = vreg(tag, t)
            if v:
                em([f'v_add_u32 v11, {sl}, v14'] + [f'ds_write_b128 v11, v[{v[0]+4*i}:{v[0]+4*i+3}] offset:{1024*i}' for i in range(2)])
            else:
                em([f's_lshl_b32 s{S_KW}, s{S_KX}, 17'] + [x for x in self.issue_w(t, S_WD, sl)])
                seq.extend([t] * 2)
        def ix(t, k):
            em(self.issue_x(S_XD, None, (t % self.S) * self.STAGE, k)); seq.extend([t] * 4)
        rot_table(a, S_TB, S_MT, S_NT, tag)
        a.emit(f'v_lshl_add_u32 v14, v1, 4, s{S_WD}')
        dep_pre(a, tag)
        for t in range(d):
            em(kpos(N, t, S_KX)); iw(t)
            a.emit(f's_lshl_b32 s{88+t}, s{S_KX}, 11')
        for t in range(d, N):
            v = vreg(tag, t)
            if v and not v[1]:
                em(park(N, t, v[0], self.VWD, SW)); seq.extend(['V'] * 2)
        self.npre = len(seq)
        dep()
        for t in range(d): ix(t, 88 + t)
        wait(after(0), True)
        if tag == 'w2': lstamp(a, 2)
        a.emit('s_barrier')
        for i in range(N):
            t = i + d
            if i % 4 == 0 and post and t < N:
                a.emit('s_waitcnt lgkmcnt(0)')
                em(post)
            if t < N:
                em(kpos(N, t, S_KX)); iw(t)
                a.emit(f's_lshl_b32 s{S_KX}, s{S_KX}, 11')
                ix(t, S_KX)
            if t == N - 1: tail_issue(); seq.extend(['T'] * ntail_vm)
            if i + 1 < N: wait(after(i + 1), not post or t == N)
            else: final()
            a.emit('s_barrier')

EBAR = ENV('EBAR', 'x').split(',')
S_FL = 87
def dep_pre(a, kind, part=None, n=0):
    if ONE and kind in (('w1',) if CF else ('wo', 'w1')):
        ld = f'buffer_load_dword v12, v17, s[{SC}:{SC+3}], 0 offen sc1' if kind == 'wo' else f'buffer_load_dwordx4 v[12:15], v17, s[{SO}:{SO+3}], s3 offen sc1'
        if part == 1: a.emit(f's_waitcnt vmcnt({n})')
        gm = GM and kind == 'wo'
        if gm: a.emit(f's_cmp_lg_u32 s{S_LAYER}, 0')
        else:
            a.emit(f's_add_u32 s3, s{S_LAYER}, s{S_WV}')
            a.emit('s_cmp_lg_u32 s3, 4')
        a.emit(f's_cbranch_scc1 L_{kind}_chk{part}' + 'e' * (gm and part == 1))
        def cmp():
            if gm:
                a.emit('v_or_b32 v13, 0xfefefefe, v12')
                a.emit('v_cmp_ne_u32 vcc, -1, v13')
            elif kind == 'wo': a.emit('v_cmp_ne_u32 vcc, 0x01010101, v12')
            else:
                a.emit('v_and_b32 v12, v12, v13')
                a.emit('v_and_b32 v14, v14, v15')
                a.emit('v_and_b32 v12, v12, v14')
                a.emit('v_cmp_ne_u32 vcc, 1, v12')
        if part == 1:
            cmp()
            a.emit(f's_cbranch_vccz L_{kind}_chk{part}')
        if True:
            if kind == 'wo': a.emit(f's_load_dwordx2 s[{SC}:{SC+1}], s[0:1], 72')
            else: srd(a, SO, 'ws0', WS_FL, FLS)
            if kind == 'wo':
                a.emit('s_waitcnt lgkmcnt(0)')
                a.emit(f's_and_b32 s{SC+1}, s{SC+1}, 0xffff')
                a.emit(f's_mov_b32 s{SC+2}, 256')
                a.emit(f's_mov_b32 s{SC+3}, 0x00020000')
                a.emit('v_lshlrev_b32 v17, 2, v1')
            else:
                a.emit('v_lshrrev_b32 v2, 2, v1')
                a.emit('v_and_b32 v3, 3, v1')
                a.emit('v_lshlrev_b32 v2, 11, v2')
                a.emit('v_lshl_add_u32 v17, v3, 4, v2')
                a.emit(f's_and_b32 s3, s{S_NT}, {REP - 1}')
                a.emit('s_lshl_b32 s3, s3, 7')
        if part == 0: a.emit(ld)
        else:
            a.emit(f's_mov_b32 s{S_CNT}, 0x100000')
            a.label(f'L_{kind}_chkl')
            a.emit(ld)
            a.emit(f's_sub_u32 s{S_CNT}, s{S_CNT}, 1')
            a.emit(f's_cbranch_scc1 L_{kind}_chk{part}')
            a.emit('s_waitcnt vmcnt(0)')
            cmp()
            a.emit(f's_cbranch_vccnz L_{kind}_chkl')
        a.label(f'L_{kind}_chk{part}')
        if gm and part == 1:
            l2_mode(a, 12)
            a.label(f'L_{kind}_chk{part}e')

def l2_mode(a, v):
    assert int(ENV('LM_QKV', '3')) == 3
    a.emit(f'v_mov_b32 v14, v{v}')
    a.emit(f'v_mov_b32 v15, v{v}')
    a.emit(f'v_alignbyte_b32 v13, v{v}, v{v}, 1')
    a.emit(f'v_xor_b32 v13, v13, v{v}')
    a.emit('v_permlane16_swap_b32 v14, v15')
    a.emit(f'v_xor_b32_dpp v12, v{v}, v{v} row_ror:4 row_mask:0xf bank_mask:0xf')
    a.emit('v_xor_b32 v14, v14, v15')
    a.emit('v_or3_b32 v13, v13, v12, v14')
    a.emit('v_cmp_ne_u32 vcc, 0, v13')
    a.emit(f's_or_b32 s{S_MD}, vcc_lo, vcc_hi')

def dep_wait(a, kind, halo=False, skip_first=False, first=None, preg=None, postf=None, pref=None, defer=False, obar=False):
    if skip_first and not ONE:
        a.emit(f's_cmp_eq_u32 s{S_TSI}, 1')
        a.emit(f's_cbranch_scc1 L_{kind}_dep')
    srd(a, SO, 'ws0', WS_FL, FLS)
    if ONE and kind == 'wo' and first:
        a.emit(f's_cmp_lg_u32 s{S_LAYER}, 0')
        a.emit(f's_cbranch_scc1 L_{kind}_nofirst')
        first()
        a.label(f'L_{kind}_nofirst')
    a.emit(f's_lshl4_add_u32 s3, s{S_TSI}, s{S_MT}')
    a.emit(f's_and_b32 s4, s{S_NT}, {REP - 1}')
    a.emit('s_lshl4_add_u32 s3, s3, s4')
    a.emit('s_lshl_b32 s3, s3, 7')
    a.emit('s_sub_u32 s3, s3, 32768')
    a.emit('v_lshlrev_b32 v11, 7, v1')
    if halo:
        a.emit(f's_cmp_eq_u32 s{S_MT}, 0')
        a.emit('s_cselect_b32 s4, 15, 31')
        a.emit('v_and_b32 v2, 16, v1')
        a.emit('v_lshl_add_u32 v11, v2, 2, v11')
        a.emit('v_and_b32 v2, s4, v1')
    else: a.emit('v_and_b32 v2, 15, v1')
    a.emit('v_lshlrev_b32 v2, 2, v2')
    xc = OH and kind == 'w1' and not GM
    if xc:
        a.emit('s_getreg_b32 s4, hwreg(HW_REG_XCC_ID, 0, 4)')
        if ENV('FB'): a.emit(f"s_and_b32 s4, s2, {ENV('FB')}")
        a.emit('v_add_u32 v3, 1, s4')
    else: a.emit('v_mov_b32 v3, 1')
    a.emit(f's_mov_b32 s{S_CNT}, 0x100000')
    if kind == LSTK == 'wo': lstamp(a, 2)
    if pref: pref()
    lf = LF2 and kind == 'w2'
    if lf:
        a.emit(f's_mov_b32 s{S_Q}, s3')
        a.emit('s_or_b32 s4, s2, 0xe0')
        a.emit(f's_lshl4_add_u32 s4, s4, s{S_LAYER}')
        a.emit('s_lshl_b32 s4, s4, 7')
        a.emit(f's_lshl2_add_u32 s93, s{S_HD}, s4')
        a.emit(f's_cmp_eq_u32 s{S_MD}, 0')
        a.emit('s_cselect_b32 s3, s4, s3')
        a.emit('s_cselect_b32 s4, 28, 60')
        a.emit('v_and_b32 v13, s4, v2')
        if ENV('LFT', '1') == '1':
            a.emit(f's_cmp_lg_u32 s{S_WV}, 4')
            a.emit('s_cbranch_scc1 L_w2_notch')
            a.emit(f'buffer_load_dword v12, v13, s[{SO}:{SO+3}], s3 offen sc1')
            a.label('L_w2_notch')
    if OH and kind == 'w2': a.emit(f'v_cmp_ne_u32 vcc, s{S_MD}, 0')
    a.emit(f's_cmp_lg_u32 s{S_WV}, 4')
    a.emit('s_barrier')
    if kind == 'w2': lstamp(a, 0, True)
    if kind == LSTK == 'w1': lstamp(a, 0)
    a.emit(f's_cbranch_scc1 L_{kind}_{"nofl" if postf else "dep"}')
    if OH and kind == 'w2':
        a.emit('s_cbranch_vccnz L_w2_wb')
        a.label('L_w2_wbd')
    if lf:
        a.emit('s_mov_b64 exec, 1')
        a.emit(f'buffer_store_dword v3, off, s[{SO}:{SO+3}], s93')
    a.emit(f's_mov_b32 exec_lo, {((1 << REP) - 1) * (0x10001 if halo else 1):#x}')
    a.emit('s_mov_b32 exec_hi, 0')
    a.emit(f'buffer_store_dword v3, v11, s[{SO}:{SO+3}], s{S_FL} offen sc1')
    a.emit('s_mov_b64 exec, -1')
    if lf and ENV('LFX'):
        a.label('L_w2_spoll')
        if ENV('LFX') == 's':
            a.emit(f's_buffer_load_dwordx8 s[4:11], s[{SO}:{SO+3}], s3 glc')
            a.emit(f's_sub_u32 s{S_CNT}, s{S_CNT}, 16')
            a.emit('s_cbranch_scc1 L_w2_spok')
            a.emit('s_waitcnt lgkmcnt(0)')
            a.emit('s_and_b64 s[4:5], s[4:5], s[6:7]')
            a.emit('s_and_b64 s[8:9], s[8:9], s[10:11]')
            a.emit('s_and_b64 s[4:5], s[4:5], s[8:9]')
            a.emit('s_and_b32 s4, s4, s5')
            a.emit('s_cbranch_scc0 L_w2_spoll')
        else:
            a.emit(f'buffer_load_dword v12, v13, s[{SO}:{SO+3}], s3 offen sc1')
            a.emit(f's_sub_u32 s{S_CNT}, s{S_CNT}, 16')
            a.emit('s_cbranch_scc1 L_w2_spok')
            a.emit('s_waitcnt vmcnt(0)')
            a.emit('v_cmp_ne_u32 vcc, 1, v12')
            a.emit('s_cbranch_vccnz L_w2_spoll')
        a.label('L_w2_spok')
        lstamp(a, 1, True)
        a.emit(f's_mov_b32 s{S_CNT}, 0x100000')
    PSP = int(ENV('PSP', '0'))
    if defer:
        a.label(f'L_{kind}_nofl')
        a.emit(f's_mov_b32 s{S_Q}, s3')
        postf()
        return
    if postf and PSP:
        a.label(f'L_{kind}_nofl')
        a.emit('s_mov_b32 s5, s3')
        i0 = len(a.lines); postf(); ls = a.lines[i0:]; del a.lines[i0:]
        dma = [i for i, l in enumerate(ls) if 'buffer_load' in l]
        poll = lambda k: f'buffer_load_dword v{24+k}, v2, s[{SO}:{SO+3}], s5 offen sc1'
        for i, l in enumerate(ls):
            a.lines.append(l)
            for k in range(3):
                if dma and i == dma[-1 - PSP * (3 - k)]: a.emit(poll(k))
        a.emit(f's_cmp_lg_u32 s{S_WV}, 4')
        a.emit(f's_cbranch_scc1 L_{kind}_dep')
        def chk(k, n, last=False):
            a.emit(poll((k + 3) & 3))
            a.emit(f's_waitcnt vmcnt({n})')
            a.emit(f'v_cmp_ne_u32 vcc, 1, v{24+k}')
            a.emit(f's_cbranch_vccnz L_{kind}_poll' if last else f's_cbranch_vccz L_{kind}_dep')
        for k in range(3): chk(k, 3 + PSP * (3 - k))
        a.label(f'L_{kind}_poll')
        a.emit(f's_sub_u32 s{S_CNT}, s{S_CNT}, 1')
        a.emit(f's_cbranch_scc1 L_{kind}_dep')
        for k in (3, 0, 1, 2): chk(k, 3, k == 2)
    else:
        if postf:
            if obar:
                a.emit(f's_waitcnt vmcnt({obar})')
                a.emit(f's_branch L_{kind}_obar')
            a.label(f'L_{kind}_nofl')
            if obar:
                a.emit(f's_waitcnt vmcnt({obar - 1})')
                a.label(f'L_{kind}_obar')
                a.emit('s_barrier')
                if ENV('OPRIO'): a.emit(f"s_setprio {ENV('OPRIO')}")
            a.emit('s_mov_b32 s5, s3')
            postf()
            a.emit('s_mov_b32 s3, s5')
            a.emit(f"s_cmp_lg_u32 s{S_WV}, {ENV('PW_' + kind.upper(), '4')}")
            a.emit(f's_cbranch_scc1 L_{kind}_dep')
        if kind == LSTK == 'w1': lstamp(a, 1)
        a.label(f'L_{kind}_poll')
        a.emit(f'buffer_load_dword v{VMD if xc else 3}, v{13 if lf else 2}, s[{SO}:{SO+3}], s3 offen sc1')
        a.emit(f's_sub_u32 s{S_CNT}, s{S_CNT}, 1')
        a.emit(f's_cbranch_scc1 L_{kind}_dep')
        a.emit('s_waitcnt vmcnt(0)')
        a.emit(f'v_cmp_eq_u32 vcc, 0, v{VMD}' if xc else 'v_cmp_ne_u32 vcc, 1, v3')
        a.emit(f's_cbranch_vccnz L_{kind}_poll')
    a.label(f'L_{kind}_dep')
    if kind == 'w2' and not ENV('LFX'): lstamp(a, 1, True)
    if kind == LSTK == 'wo': lstamp(a, 3)
    if kind == LSTK == 'w1':
        lstamp(a, 2)
        if TS: a.emit(f's_mov_b32 s50, s{S_CNT}')
    if preg: preg()
    if preg and kind == 'w2': lstamp(a, 2, True)
    a.emit('s_barrier')

def dep_loc(a, kind, postf, pref):
    srd(a, SO, 'ws0', WS_FL, FLS)
    a.emit(f's_lshl4_add_u32 s3, s{S_TSI}, s{S_MT}')
    a.emit(f's_and_b32 s4, s{S_NT}, {REP - 1}')
    a.emit('s_lshl4_add_u32 s3, s3, s4')
    a.emit('s_lshl_b32 s3, s3, 7')
    a.emit(f's_sub_u32 s{S_Q}, s3, 32768')
    a.emit('v_lshlrev_b32 v11, 7, v1')
    a.emit('v_and_b32 v2, 15, v1')
    a.emit('v_lshlrev_b32 v2, 2, v2')
    a.emit('v_mov_b32 v14, 1')
    a.emit(f's_mov_b32 s{S_CNT}, 0x100000')
    a.emit('s_or_b32 s4, s2, 0xe0')
    a.emit(f's_lshl4_add_u32 s4, s4, s{S_TSI}')
    a.emit('s_lshl_b32 s4, s4, 7')
    a.emit(f's_lshr_b32 s7, s{S_CU}, 2')
    a.emit('s_lshl2_add_u32 s7, s7, s4')
    a.emit(f's_cmp_eq_u32 s{S_MD}, 0')
    a.emit(f's_cselect_b32 s6, s4, s{S_Q}')
    a.emit('s_cselect_b32 s4, 28, 60')
    a.emit('v_and_b32 v13, s4, v2')
    a.emit(f'buffer_load_dword v12, v13, s[{SO}:{SO+3}], s6 offen sc1')
    pref()
    a.emit(f"s_setprio {ENV('LFP1', '3')}")
    a.emit(f's_cmp_lg_u32 s{S_WV}, 4')
    a.emit('s_barrier')
    if kind == LSTK: lstamp(a, 0)
    a.emit(f's_cbranch_scc1 L_{kind}_nofl')
    a.emit('s_mov_b64 exec, 1')
    a.emit(f'buffer_store_dword v14, off, s[{SO}:{SO+3}], s7')
    a.emit(f's_cmp_eq_u32 s{S_MD}, 0')
    a.emit(f's_cbranch_scc1 L_{kind}_nogl')
    a.emit(f's_mov_b64 exec, {(1 << REP) - 1:#x}')
    a.emit(f'buffer_store_dword v14, v11, s[{SO}:{SO+3}], s{S_FL} offen sc1')
    a.label(f'L_{kind}_nogl')
    a.emit('s_mov_b64 exec, -1')
    a.label(f'L_{kind}_nofl')
    if postf: postf()
    if kind == LSTK: lstamp(a, 1)
    a.label(f'L_{kind}_poll')
    a.emit(f'buffer_load_dword v12, v13, s[{SO}:{SO+3}], s6 offen sc1')
    a.emit(f's_sub_u32 s{S_CNT}, s{S_CNT}, 1')
    a.emit(f's_cbranch_scc1 L_{kind}_dep')
    a.emit('s_waitcnt vmcnt(0)')
    a.emit('v_cmp_ne_u32 vcc, 1, v12')
    a.emit(f's_cbranch_vccnz L_{kind}_poll')
    a.label(f'L_{kind}_dep')
    if kind == LSTK:
        lstamp(a, 2)
        if TS: a.emit(f's_mov_b32 s50, s{S_CNT}')

def loc_flag(a, kind):
    a.emit('s_setprio 0')
    a.emit(f's_cmp_lg_u32 s{S_WV}, 4')
    a.emit(f's_cbranch_scc1 L_{kind}_nogf')
    a.emit(f's_mov_b64 exec, {(1 << REP) - 1:#x}')
    a.emit(f'buffer_store_dword v14, v11, s[{SO}:{SO+3}], s{S_FL} offen sc1')
    a.emit('s_mov_b64 exec, -1')
    a.label(f'L_{kind}_nogf')

def dep_lf(a, w0, blk, w1):
    srd(a, SO, 'ws0', WS_FL, FLS)
    a.emit(f's_lshl4_add_u32 s3, s{S_TSI}, s{S_MT}')
    a.emit(f's_and_b32 s4, s{S_NT}, {REP - 1}')
    a.emit('s_lshl4_add_u32 s3, s3, s4')
    a.emit('s_lshl_b32 s3, s3, 7')
    a.emit(f's_sub_u32 s{S_Q}, s3, 32768')
    a.emit('v_lshlrev_b32 v11, 7, v1')
    a.emit('v_and_b32 v2, 15, v1')
    a.emit('v_lshlrev_b32 v2, 2, v2')
    a.emit(f's_cmp_lg_u32 s{S_WV}, 4')
    a.emit(f's_waitcnt vmcnt({w0})')
    a.emit('s_cbranch_scc1 L_w2_nofl')
    W4 = ENV('W4', 'a')
    if W4 == 'a': a.lines += blk
    a.emit('v_mov_b32 v3, 1')
    a.emit(f's_mov_b32 s{S_CNT}, 0x100000')
    a.emit('s_or_b32 s4, s2, 0xe0')
    a.emit(f's_lshl4_add_u32 s4, s4, s{S_TSI}')
    a.emit('s_lshl_b32 s4, s4, 7')
    a.emit(f's_lshl2_add_u32 s5, s{S_HD}, s4')
    a.emit(f's_cmp_eq_u32 s{S_MD}, 0')
    a.emit(f's_cselect_b32 s3, s4, s{S_Q}')
    a.emit('s_cselect_b32 s4, 28, 60')
    a.emit('v_and_b32 v13, s4, v2')
    a.emit(f'buffer_load_dword v12, v13, s[{SO}:{SO+3}], s3 offen sc1')
    a.emit(f"s_setprio {ENV('LFP', '3')}")
    a.emit('s_barrier')
    lstamp(a, 0, True)
    a.emit('s_cbranch_scc0 L_w2_wb')
    a.label('L_w2_wbd')
    a.emit('s_mov_b64 exec, 1')
    a.emit(f'buffer_store_dword v3, off, s[{SO}:{SO+3}], s5')
    a.emit('s_mov_b64 exec, -1')
    a.label('L_w2_poll')
    a.emit(f'buffer_load_dword v12, v13, s[{SO}:{SO+3}], s3 offen sc1')
    a.emit(f's_sub_u32 s{S_CNT}, s{S_CNT}, 1')
    a.emit('s_cbranch_scc1 L_w2_dep')
    a.emit('s_waitcnt vmcnt(0)')
    a.emit('v_cmp_ne_u32 vcc, 1, v12')
    a.emit('s_cbranch_vccnz L_w2_poll')
    a.label('L_w2_dep')
    lstamp(a, 1, True)
    a.emit('s_barrier')
    lstamp(a, 2, True)
    a.emit('s_setprio 0')
    if W4 != 'a': a.lines += blk
    a.emit(f's_mov_b64 exec, {(1 << REP) - 1:#x}')
    a.emit(f'buffer_store_dword v3, v11, s[{SO}:{SO+3}], s{S_FL} offen sc1')
    a.emit('s_mov_b64 exec, -1')
    a.emit('s_branch L_w2_go')
    a.label('L_w2_nofl')
    if W4 == 'c':
        a.emit('s_waitcnt vmcnt(0)')
        a.emit('s_barrier')
        a.emit('s_barrier')
        a.lines += blk
    else:
        a.emit('s_barrier')
        a.lines += blk
        a.emit(f's_waitcnt vmcnt({w1})')
        a.emit('s_barrier')
    a.label('L_w2_go')

def xpoll(a, lab, sd, so, v, vd):
    a.emit(f's_cmp_lg_u32 s{S_WV}, 4')
    a.emit(f's_cbranch_scc1 {lab}go')
    a.emit('s_setprio 3')
    a.label(f'{lab}poll')
    a.emit(f'buffer_load_dword v{vd}, v{v}, s[{sd}:{sd+3}], s{so} offen sc1')
    a.emit(f's_sub_u32 s{S_CNT}, s{S_CNT}, 1')
    a.emit(f's_cbranch_scc1 {lab}go')
    a.emit('s_waitcnt vmcnt(0)')
    a.emit(f'v_cmp_ne_u32 vcc, 1, v{vd}')
    a.emit(f's_cbranch_vccnz {lab}poll')
    a.label(f'{lab}go')
    a.emit('s_setprio 0')

def ef_poll(a, lab, v, prio=False):
    a.emit(f"s_cmp_lg_u32 s{S_WV}, {ENV('PW_W2', '4')}")
    a.emit(f's_cbranch_scc1 {lab}_ok')
    if prio: a.emit('s_setprio 3')
    a.emit(f's_mov_b32 s{S_CNT}, 0x100000')
    a.label(lab)
    a.emit(f'buffer_load_dword v3, v{v}, s[{SO}:{SO+3}], s{S_Q} offen sc1')
    a.emit(f's_sub_u32 s{S_CNT}, s{S_CNT}, 1')
    a.emit(f's_cbranch_scc1 {lab}_ok')
    a.emit('s_waitcnt vmcnt(0)')
    a.emit('v_cmp_ne_u32 vcc, 1, v3')
    a.emit(f's_cbranch_vccnz {lab}')
    a.label(f'{lab}_ok')
    if prio: a.emit('s_setprio 0')

def ef_flag(a, lab, off):
    a.emit(f's_cmp_lg_u32 s{S_WV}, 4')
    a.emit('s_barrier')
    a.emit(f's_cbranch_scc1 {lab}')
    a.emit(f's_mov_b64 exec, {(1 << REP) - 1:#x}')
    a.emit(f'buffer_store_dword v13, v11, s[{SO}:{SO+3}], s{S_FL} offen offset:{off} sc1')
    a.emit('s_mov_b64 exec, -1')
    a.label(lab)

def dep_ef(a, poste, preh, preg):
    srd(a, SO, 'ws0', WS_FL, FLS)
    a.emit(f's_lshl4_add_u32 s3, s{S_TSI}, s{S_MT}')
    a.emit(f's_and_b32 s4, s{S_NT}, {REP - 1}')
    a.emit('s_lshl4_add_u32 s3, s3, s4')
    a.emit('s_lshl_b32 s3, s3, 7')
    a.emit(f's_sub_u32 s{S_Q}, s3, 32768')
    a.emit('v_lshlrev_b32 v11, 7, v1')
    a.emit('v_and_b32 v2, 15, v1')
    a.emit('v_lshlrev_b32 v2, 2, v2')
    a.emit(f's_bitcmp1_b32 s{S_NT}, 0')
    a.emit('s_cselect_b32 s4, 96, 64')
    a.emit('v_and_b32 v12, 28, v2')
    a.emit('v_add_u32 v12, s4, v12')
    a.emit('v_mov_b32 v13, 1')
    ef_flag(a, 'L_w2_nofe', 64)
    lstamp(a, 0, True)
    poste()
    if ENV('EFP', '1') == '0': ef_poll(a, 'L_w2_pe', 12)
    preh()
    a.emit('s_barrier')
    if ENV('EFP', '1') != '0': ef_poll(a, 'L_w2_pe', 12, ENV('EFP') == '2')
    lstamp(a, 1, True)
    preg()
    ef_flag(a, 'L_w2_nofl', 0)

def dep_late(a, kind, part, n=0):
    ld = f'buffer_load_dword v3, v2, s[{SO}:{SO+3}], s{S_Q} offen sc1'
    if part == 0:
        a.emit(f's_cmp_eq_u32 s{S_WV}, 4')
        a.emit(f's_cselect_b32 s{SO+2}, s{SO+2}, 0')
        a.emit(ld)
        return
    if LF2:
        kind += 'l'
        a.emit(f's_mov_b32 s{S_CNT}, 0x100000')
    a.emit(f's_cmp_lg_u32 s{S_WV}, 4')
    a.emit(f's_cbranch_scc1 L_{kind}_dep')
    a.emit(f's_waitcnt vmcnt({n})')
    a.emit('v_cmp_ne_u32 vcc, 1, v3')
    a.emit(f's_cbranch_vccz L_{kind}_dep')
    a.label(f'L_{kind}_poll')
    a.emit(ld)
    a.emit(f's_sub_u32 s{S_CNT}, s{S_CNT}, 1')
    a.emit(f's_cbranch_scc1 L_{kind}_dep')
    a.emit('s_waitcnt vmcnt(0)')
    a.emit('v_cmp_ne_u32 vcc, 1, v3')
    a.emit(f's_cbranch_vccnz L_{kind}_poll')
    a.label(f'L_{kind}_dep')
    if LF2: return
    if not EF: lstamp(a, 1, True)
    lstamp(a, 2, True)
    if TS and ENV('LST') != 'x': a.emit(f's_mov_b32 s58, s{S_CNT}')

LGO = 163840 - 64
def dep_early(a):
    srd(a, SO, 'ws0', WS_FL, FLS)
    a.emit(f's_lshl_b32 s86, s{S_TSI}, 12')
    a.emit(f's_lshl_b32 s4, s{S_MT}, 8')
    a.emit('s_add_u32 s86, s86, s4')
    a.emit('s_sub_u32 s86, s86, 4096')
    a.emit('v_and_b32 v12, 15, v1')
    a.emit('v_lshlrev_b32 v12, 2, v12')
    a.emit('v_mov_b32 v3, 0')
    a.emit(f'v_mov_b32 v2, {LGO}')
    a.emit('ds_write_b32 v2, v3')
    a.emit('v_mov_b32 v13, 1')
    a.emit(f's_mov_b32 s{S_CNT}, 0x100000')
    a.emit(f's_cmp_lg_u32 s{S_WV}, 4')
    a.emit('s_waitcnt lgkmcnt(0)')
    a.emit('s_barrier')
    a.emit('s_cbranch_scc1 L_w2_go')
    lstamp(a, 0)
    a.emit('s_mov_b64 exec, 1')
    a.emit(f'buffer_store_dword v13, off, s[{SO}:{SO+3}], s{S_FL} sc1')
    a.emit('s_mov_b64 exec, -1')
    a.label('L_w2_poll')
    a.emit(f'buffer_load_dword v3, v12, s[{SO}:{SO+3}], s86 offen sc1')
    a.emit(f's_sub_u32 s{S_CNT}, s{S_CNT}, 1')
    a.emit('s_cbranch_scc1 L_w2_rel')
    a.emit('s_waitcnt vmcnt(0)')
    a.emit('v_cmp_eq_u32 vcc, 0, v3')
    a.emit('s_cbranch_vccnz L_w2_poll')
    a.label('L_w2_rel')
    a.emit('ds_write_b32 v2, v13')
    lstamp(a, 1)
    a.emit('s_branch L_w2_dep')
    a.label('L_w2_go')
    a.emit(f's_mov_b32 s{S_CNT}, 0x2000000')
    a.label('L_w2_gol')
    a.emit('ds_read_b32 v3, v2')
    a.emit(f's_sub_u32 s{S_CNT}, s{S_CNT}, 1')
    a.emit('s_cbranch_scc1 L_w2_dep')
    a.emit('s_waitcnt lgkmcnt(0)')
    a.emit('v_cmp_eq_u32 vcc, 0, v3')
    a.emit('s_cbranch_vccnz L_w2_gol')
    a.label('L_w2_dep')

def late_flag(a):
    a.emit(f's_cmp_lg_u32 s{S_WV}, 4')
    a.emit('s_cbranch_scc1 L_w2_nolate')
    a.emit('v_mov_b32 v3, 2')
    a.emit('s_mov_b64 exec, 1')
    a.emit(f'buffer_store_dword v3, off, s[{SO}:{SO+3}], s{S_FL} sc1')
    a.emit('s_mov_b64 exec, -1')
    a.label('L_w2_nolate')

def late_check(a):
    a.emit(f's_mov_b32 s{S_CNT}, 0x100000')
    a.label('L_w2_lchk')
    a.emit('v_cmp_ne_u32 vcc, 2, v13')
    a.emit('s_cbranch_vccz L_w2_lok')
    a.emit(f'buffer_load_dword v13, v12, s[{SO}:{SO+3}], s86 offen sc1')
    a.emit(f's_sub_u32 s{S_CNT}, s{S_CNT}, 1')
    a.emit('s_waitcnt vmcnt(0)')
    a.emit('s_cbranch_scc0 L_w2_lchk')
    a.label('L_w2_lok')
    if TS: a.emit(f's_mov_b32 s58, s{S_CNT}')
    lstamps_out(a, 'w2')

def gbar(a, kind):
    if not MEGA or (EARLY and kind == 'w2'): return
    if kind == 'attn':
        a.emit(f's_cmp_eq_u32 s{S_LAYER}, 0')
        a.emit('s_cbranch_scc1 L_attn_nog')
    a.emit('s_barrier')
    if kind == 'attn': a.label('L_attn_nog')

def next_phase(a, kind, comp=False):
    nxt = {'attn': 'wo', 'wo': 'w1', 'w1': 'w2', 'w2': 'attn'}[kind]
    if kind == 'w2':
        a.emit(f's_mov_b32 s{S_LAYER}, 1')
        a.emit(f's_add_u32 s12, s22, {WS_X2}')
        a.emit('s_addc_u32 s13, s23, 0')
        a.emit(f's_add_u32 s34, s22, {LSTR}')
        a.emit('s_addc_u32 s35, s23, 0')
    a.emit(f's_add_u32 s{S_TSI}, s{S_TSI}, 1')
    a.emit(f's_branch L_{nxt}_' + ('compute' if comp and (NV or LF2 == 2) and nxt == 'w2' else 'body'))

def last_check(a, kind):
    if kind == 'w2' or (kind == 'attn' and not ONE):
        a.emit(f's_cmp_eq_u32 s{S_LAYER}, {0 if kind == "attn" else 1}')
        a.emit(f's_cbranch_scc1 L_{kind}_end')

def compute_end(a, kind):
    if not MEGA:
        stamps_out(a, kind)
        a.emit('s_endpgm')
        return
    if not TS and not (SKL and kind == 'w2'): last_check(a, kind)
    if TE and kind == 'w2' and not SKL: a.lines[-1] = a.lines[-1].replace('L_w2_end', 'L_fin')
    if kind in EBAR: a.emit('s_barrier')
    import pads
    for x in pads.chain({'attn': 'he', 'wo': 'hw'}.get(kind)): a.emit(x)
    if LF2 == 2 and kind == 'w1': a.lines.append('@W2B')
    if not ((EARLY or NV) and kind == 'w1'):
        a.emit('s_waitcnt lgkmcnt(0)' if EF and kind == 'w1' else f"s_waitcnt vmcnt({int(SF and kind in ('wo', 'w2'))}) lgkmcnt(0)")
        a.emit('s_barrier')
    if TS:
        stamps_out(a, kind)
        if ENV('DIAG') and kind == 'w2': diag(a)
        last_check(a, kind)
    stamp(a, 0, nowait=True)
    next_phase(a, kind, True)

def fin(a):
    if not TE: return
    a.label('L_fin')
    a.emit('s_waitcnt vmcnt(0)')
    a.emit('s_memrealtime s[92:93]')
    srd(a, SP, 'ws0', WS_TS, 1 << 20)
    a.emit(f's_lshl2_add_u32 s4, s2, s{S_WV}')
    a.emit('s_lshl_b32 s4, s4, 3')
    a.emit('s_waitcnt lgkmcnt(0)')
    a.emit('v_mov_b32 v4, s94')
    a.emit('v_mov_b32 v5, s92')
    a.emit('s_mov_b64 exec, 1')
    a.emit(f'buffer_store_dwordx2 v[4:5], off, s[{SP}:{SP+3}], s4')
    a.emit('s_endpgm')

def diag(a):
    ph, j, K, C = [int(x) for x in ENV('DIAG').split(',')]
    a.emit(f's_lshl1_add_u32 s3, s{S_WV}, s{S_LAYER}')
    a.emit('s_cmp_lg_u32 s3, 1')
    a.emit('s_cbranch_scc1 L_diag_end')
    a.emit('s_waitcnt vmcnt(0)')
    a.emit('v_lshlrev_b32 v1, 6, v0')
    for i in range(4): a.emit(f's_mov_b32 s3, {4096*i}'); a.emit(f'buffer_load_dword v{4+i}, v1, s[{SP}:{SP+3}], s3 offen sc1')
    a.emit('s_lshl_b32 s4, s2, 6')
    a.emit(f's_add_u32 s4, s4, {(ph << 16) + 16 * j}')
    a.emit(f'buffer_load_dword v8, off, s[{SP}:{SP+3}], s4 sc1')
    a.emit('s_waitcnt vmcnt(0)')
    for i in range(4): a.emit(f'v_sub_u32 v{4+i}, v8, v{4+i}')
    a.emit('v_max_i32 v4, v4, v5'); a.emit('v_max_i32 v6, v6, v7'); a.emit('v_max_i32 v4, v4, v6')
    a.emit('s_mov_b32 s5, 0')
    a.emit('s_nop 1')
    for i in range(64):
        a.emit(f'v_readlane_b32 s3, v4, {i}')
        a.emit('s_max_i32 s5, s5, s3')
    if C: a.emit(f's_sub_u32 s5, {C}, s5'); a.emit('s_max_i32 s5, s5, 0')
    a.emit('s_min_u32 s5, s5, 15000')
    a.emit(f's_mul_i32 s5, s5, {K}')
    a.emit('s_memrealtime s[6:7]')
    a.emit('s_mov_b32 s4, 0x40000')
    a.emit('s_waitcnt lgkmcnt(0)')
    a.label('L_diag_l')
    a.emit('s_memrealtime s[8:9]')
    a.emit('s_sub_u32 s4, s4, 1')
    a.emit('s_cbranch_scc1 L_diag_end')
    a.emit('s_waitcnt lgkmcnt(0)')
    a.emit('s_sub_u32 s8, s8, s6')
    a.emit('s_cmp_lt_u32 s8, s5')
    a.emit('s_cbranch_scc1 L_diag_l')
    a.label('L_diag_end')

def loader_end(a, kind, check=True):
    if MEGA:
        if kind == LSTK and not EARLY: lstamps_out(a, kind)
        if check: last_check(a, kind)
        a.emit(f's_lshl_b32 s{S_FL}, s{S_TSI}, 15')
        a.emit(f's_lshl_b32 s4, s{S_MT}, 11')
        a.emit(f's_add_u32 s{S_FL}, s{S_FL}, s4')
        a.emit(f's_lshl_b32 s4, s{S_NT}, 2')
        a.emit(f's_add_u32 s{S_FL}, s{S_FL}, s4')
        next_phase(a, kind)

def pf_weights(a, sd, which, size, ldw2, R, sh, L, LMn, tilebytes, NI, vd, row0=0, qkv=False, pair=False):
    if 'nopf' in DBG: return 0
    srd(a, sd, which, 0, size)
    a.emit(f's_and_b32 s3, s{S_WV}, 3')
    a.emit(f's_mul_i32 s3, s3, {NI * (64 >> sh)}')
    a.emit(f's_mul_i32 s4, s{S_CU}, {R}')
    a.emit('s_add_u32 s3, s3, s4')
    if row0: a.emit(f's_add_u32 s3, s3, {row0}')
    a.emit(f'v_lshrrev_b32 v2, {sh}, v1')
    a.emit('v_add_u32 v2, s3, v2')
    a.emit(f'v_mul_u32_u24 v2, {ldw2}, v2')
    a.emit(f'v_and_b32 v3, {(1 << sh) - 1}, v1')
    if L < (1 << sh): a.emit(f'v_min_u32 v3, {L-1}, v3')
    if qkv:
        a.emit('v_lshrrev_b32 v12, 2, v3')
        a.emit('v_lshl_add_u32 v2, v12, 11, v2')
        a.emit('v_and_b32 v3, 3, v3')
    a.emit(f'v_lshl_add_u32 v2, v3, {8 if pair else 7}, v2')
    a.emit('s_and_b32 s3, s2, 7')
    a.emit(f's_lshr_b32 s3, s3, {4 - LMn}')
    a.emit(f's_mul_i32 s3, s3, {tilebytes if pair else (1 << (5 - LMn)) * tilebytes}')
    for i in range(NI):
        a.emit(f'buffer_load_dword v{vd+i}, v2, s[{sd}:{sd+3}], s3 offen')
        if i + 1 < NI: a.emit(f's_add_u32 s3, s3, {(64 >> sh) * ldw2}')
    return NI

_pfc = [0]
def pf_code(a, start, end, vd, forward=True):
    if 'nopfc' in DBG: return 0
    _pfc[0] += 1
    lab = f'L_pfc{_pfc[0]}'
    a.emit('s_getpc_b64 s[4:5]')
    a.label(lab)
    if forward:
        a.emit(f's_add_u32 s4, s4, {start}-{lab}')
        a.emit('s_addc_u32 s5, s5, 0')
    else:
        a.emit(f's_sub_u32 s4, s4, {lab}-{start}')
        a.emit('s_subb_u32 s5, s5, 0')
    a.emit(f's_and_b32 s3, s{S_WV}, 3')
    a.emit('s_lshl_b32 s3, s3, 13')
    a.emit('v_lshl_add_u32 v2, v1, 7, s3')
    a.emit(f'v_min_u32 v2, {end}-{start}-4, v2')
    a.emit(f'global_load_dword v{vd}, v2, s[4:5]')
    return 1

def wbase(a, vd, vt, g='v2', nr=False):
    if nr: a.emit(f'v_lshrrev_b32 v{vd}, 2, v1')
    else:
        a.emit(f'v_bfe_u32 v{vd}, v1, 2, 2')
        a.emit(f'v_lshl_add_u32 v{vd}, {g}, 3, v{vd}')
    a.emit(f'v_lshlrev_b32 v{vd}, 7, v{vd}')
    a.emit(f'v_and_b32 v{vt}, 3, v1')
    a.emit(f'v_lshl_add_u32 v{vd}, v{vt}, 3, v{vd}')
    a.emit(f'v_bfe_u32 v{vt}, v1, 3, 2')
    a.emit(f'v_lshl_add_u32 v{vd}, v{vt}, 5, v{vd}')


def code_touch(a, start, end, nb, sd=SX, loader=False):
    if ENV('CT', '1') == '0': return
    _pfc[0] += 1
    lab = f'L_pfc{_pfc[0]}'
    a.emit(f's_cmp_lg_u32 s{S_LAYER}, 0')
    a.emit(f's_cbranch_scc1 {lab}_skip')
    a.emit('s_getpc_b64 s[4:5]')
    a.label(lab)
    a.emit(f's_lshl_b32 s3, s{S_CU}, 2')
    a.emit(f's_add_u32 s3, s3, s{S_WV}')
    if loader: a.emit('s_sub_u32 s3, s3, 4')
    a.emit(f's_mul_i32 s3, s3, {nb}')
    a.emit(f's_min_u32 s3, s3, {end}-{start}-{nb}')
    a.emit(f's_add_i32 s3, s3, {start}-{lab}')
    a.emit('s_ashr_i32 s6, s3, 31')
    a.emit('s_add_u32 s4, s4, s3')
    a.emit('s_addc_u32 s5, s5, s6')
    for i in range(nb // 64):
        a.emit(f's_load_dword s{84 if loader else SW}, s[4:5], {64*i}')
    a.label(f'{lab}_skip')

def loader_first(a, kind):
    if ENV('LF', '1') == '0': return
    L = a.lines
    ib = max(i for i, l in enumerate(L) if l.strip() == f's_cbranch_scc1 L_{kind}_loader')
    il = L.index(f'L_{kind}_loader:')
    ie = L.index(f'L_{kind}_end:') + 2
    assert L[ie - 1].strip() == 's_endpgm' and L[ib - 1].strip().startswith('s_cmp_ge_u32')
    L[ib - 1] = L[ib - 1].replace('s_cmp_ge_u32', 's_cmp_lt_u32')
    L[ib] = f'  s_cbranch_scc1 L_{kind}_compute'
    a.lines = L[:ib + 1] + L[il:ie] + [f'L_{kind}_compute:'] + L[ib + 1:il] + L[ie:]

def clear_flags(a, part, n=0):
    if not ONE or DS: return
    if part == 0 and 'attn' not in OT: a.emit(f's_load_dwordx2 s[{SC}:{SC+1}], s[0:1], 72')
    a.emit(f's_or_b32 s3, s{S_LAYER}, s{S_WV}')
    a.emit(f's_cbranch_scc1 L_clr_skip{part}')
    if part == 0:
        srd(a, SP, 'ws0', WS_FL, FLS)
        a.emit('s_lshl_b32 s3, s2, 11')
        a.emit('v_lshlrev_b32 v2, 4, v1')
        a.emit(f'buffer_store_dwordx4 v[128:131], v2, s[{SP}:{SP+3}], s3 offen sc1')
        a.emit(f'buffer_store_dwordx4 v[128:131], v2, s[{SP}:{SP+3}], s3 offen offset:1024 sc1')
    else:
        a.emit('v_mov_b32 v3, 1')
        a.emit(f's_and_b32 s{SC+1}, s{SC+1}, 0xffff')
        a.emit(f's_mov_b32 s{SC+2}, 256')
        a.emit(f's_mov_b32 s{SC+3}, 0x00020000')
        a.emit('s_mov_b64 exec, 1')
        a.emit(f's_waitcnt vmcnt({n})')
        a.emit(f'buffer_store_byte v3, off, s[{SC}:{SC+3}], s2 sc1')
        a.emit('s_mov_b64 exec, -1')
    a.label(f'L_clr_skip{part}')

def mf_order(nn, nm, skip=lambda jn, jm: False):
    m = ENV('MFO', 's')
    if m == 'n': o = [(jn, jm) for jn in range(nn) for jm in range(nm)]
    elif m == 's': o = [(jn, jm if not jn & 1 else nm - 1 - jm) for jn in range(nn) for jm in range(nm)]
    elif m == 'm': o = [(jn, jm) for jm in range(nm) for jn in range(nn)]
    elif m == 'z': o = [(jn if not jm & 1 else nn - 1 - jn, jm) for jm in range(nm) for jn in range(nn)]
    elif m == 'd': o = [(i % nn, (i // nn + i % nn) % nm) for i in range(nn * nm)]
    return [x for x in o if not skip(*x)]
```

```python
from common import *
import re

def ktab(a, vt, sh, P1, P2, tb):
    a.emit('v_and_b32 v2, 3, v1')
    a.emit('v_lshlrev_b32 v2, 3, v2')
    a.emit(f'v_bfe_i32 v{vt}, s{tb}, v2, 8')
    a.emit(f's_and_b32 s3, s{S_MT}, 3')
    a.emit(f's_mul_i32 s4, s3, {P2 // 4}')
    a.emit(f'v_add3_u32 v3, v{vt}, v1, s4')
    if P1 & (P2 - 1): a.emit(f'v_subrev_u32 v3, {P1}, v3')
    a.emit(f'v_and_b32 v3, {P2 - 1}, v3')
    if P1:
        MR = int(ENV('MR', '4'))
        if NV: a.emit(f'v_cmp_gt_u32 vcc, {NV}, v1')
        a.emit(f's_mul_i32 s3, s3, {MR // 4}')
        if NV:
            a.emit(f's_and_b32 s4, s{S_NT}, 1')
            a.emit(f'v_cndmask_b32_e64 v{vt+1}, {P1 - NV}, {NV}, vcc')
            a.emit(f'v_cndmask_b32_e64 v2, {P1 - 2 * NV}, {NV}, vcc')
            a.emit(f'v_add3_u32 v{vt}, v{vt}, v1, v2')
            for _ in range(2):
                a.emit(f'v_sub_u32 v2, v{vt}, v{vt+1}')
                a.emit(f'v_min_u32 v{vt}, v{vt}, v2')
            a.emit(f'v_cndmask_b32_e64 v2, {NV}, 0, vcc')
            a.emit(f'v_add_u32 v{vt}, v{vt}, v2')
        else:
            a.emit(f'v_add3_u32 v{vt}, v{vt}, v1, {P1}')
            a.emit(f's_bitcmp1_b32 s{S_NT}, 0')
            a.emit(f's_cselect_b32 s4, {P1}, 0')
            for _ in range(2):
                a.emit(f'v_subrev_u32 v2, {P1}, v{vt}')
                a.emit(f'v_min_u32 v{vt}, v{vt}, v2')
        if MR:
            a.emit(f'v_cmp_gt_u32 vcc, {MR}, v{vt}')
            a.emit(f'v_add_u32 v2, s3, v{vt}')
            a.emit(f'v_subrev_u32 v{vt+1}, {MR}, v2')
            a.emit(f'v_min_u32 v2, v{vt+1}, v2')
            a.emit(f'v_cndmask_b32 v{vt}, v{vt}, v2, vcc')
        a.emit(f'v_cmp_gt_u32 vcc, {P1}, v1')
        a.emit(f'v_lshl_add_u32 v{vt}, v{vt}, 1, s4' if NV else f'v_add_u32 v{vt}, s4, v{vt}')
        a.emit(f'v_add_u32 v3, {2 * P1}, v3')
        a.emit(f'v_cndmask_b32 v3, v3, v{vt}, vcc')
    a.emit(f'v_lshlrev_b32 v{vt}, {sh}, v3')

def ktab_ot(a, vt, sh, tb):
    KS = int(ENV('KS2', '2'))
    a.emit(f's_add_u32 s3, s{S_MT}, s{S_HD}')
    a.emit('s_and_b32 s3, s3, 3')
    for g in range(4):
        o = list(range(17))
        for t in range(KS + g, 14, 4): o[t:t + 3] = [t + 2, t, t + 1]
        assert o[0] == 0 and o[16] == 16
        v = sum(((t - o[t]) & 3) << (2 * t) for t in range(16))
        if g: a.emit(f's_cmp_eq_u32 s3, {g}')
        a.emit(f's_cselect_b32 s4, {v:#x}, s4' if g else f's_mov_b32 s4, {v:#x}')
    P1 = int(ENV('P1', '23')); P2 = 56 - 2 * P1
    a.emit('v_subrev_u32 v2, 3, v1')
    if P1 > 20: a.emit('v_min_u32 v2, 16, v2')
    a.emit('v_lshlrev_b32 v3, 1, v2')
    a.emit(f'v_bfe_i32 v{vt}, s4, v3, 2')
    a.emit(f'v_sub_u32 v{vt}, v1, v{vt}')
    a.emit(f'v_subrev_u32 v{vt}, {7 if P1 > 20 else 6}, v{vt}')
    if EF:
        a.emit(f'v_subrev_u32 v3, 7, v{vt}')
        a.emit(f'v_min_u32 v3, v3, v{vt}')
        a.emit(f'v_cmp_eq_u32 vcc, s{S_HD}, v3')
        a.emit(f's_and_b32 s3, s{S_NT}, 1')
        a.emit(f'v_cmp_lt_i32 s[4:5], 6, v{vt}')
        a.emit(f'v_cndmask_b32_e64 v3, v3, 7, vcc')
        a.emit('s_nop 0')
        a.emit('v_addc_co_u32 v2, vcc, v3, v3, s[4:5]')
    else:
        a.emit(f'v_ashrrev_i32 v3, 1, v{vt}')
        a.emit(f'v_cmp_eq_u32 vcc, s{S_HD}, v3')
        a.emit(f's_and_b32 s3, s{S_NT}, 1')
        a.emit(f'v_or_b32 v2, 14, v{vt}')
        a.emit(f'v_cndmask_b32 v2, v{vt}, v2, vcc')
    a.emit(f'v_cmp_gt_i32 vcc, 0, v{vt}')
    a.emit(f's_lshl2_add_u32 s4, s3, {20 if P1 > 20 else 19}')
    a.emit(f'v_add_u32 v{vt}, s4, v{vt}')
    a.emit('s_lshl4_add_u32 s4, s3, 24')
    a.emit('v_add_u32 v2, s4, v2')
    a.emit(f'v_cndmask_b32 v{vt}, v2, v{vt}, vcc')
    if P1 > 20:
        a.emit(f's_and_b32 s5, s{S_MT}, 3')
        a.emit(f"s_mul_i32 s5, s5, {ENV('RCM', '3')}")
        a.emit(f's_sub_u32 s5, s5, {P1}')
        a.emit('v_add_u32 v3, s5, v1')
        for _ in range(2):
            a.emit(f'v_subrev_u32 v2, {P2}, v3')
            a.emit('v_min_u32 v3, v3, v2')
        a.emit(f'v_cmp_gt_u32 vcc, {P1}, v1')
        a.emit(f's_sub_u32 s5, s3, {2 * P1}')
        a.emit('v_lshl_add_u32 v2, v1, 1, s5')
        a.emit('v_cndmask_b32 v3, v3, v2, vcc')
        a.emit(f's_add_u32 s5, s{S_HD}, {P1 - 20}')
        a.emit('v_ashrrev_i32 v2, 1, v3')
        a.emit('v_add_u32 v2, s5, v2')
        a.emit('v_and_b32 v2, 7, v2')
        a.emit('v_and_b32 v3, 1, v3')
        a.emit('v_cmp_gt_u32 vcc, 21, v1')
        a.emit('v_lshl_add_u32 v3, v3, 3, v2')
        a.emit(f's_lshl1_add_u32 s4, s{S_HD}, s4')
        a.emit(f's_lshl3_add_u32 s3, s3, s{S_HD}')
        a.emit(f'v_cndmask_b32 v3, v3, v{vt}, vcc')
        a.emit('v_writelane_b32 v3, s4, 0')
        a.emit('s_add_u32 s4, s4, 1')
        a.emit('v_writelane_b32 v3, s3, 2')
        a.emit('v_writelane_b32 v3, s4, 1')
        if OH == 2 and sh == 11:
            a.emit('v_cmp_lt_u32 vcc, 23, v3')
            a.emit('v_lshrrev_b32 v2, 1, v3')
            a.emit(f'v_and_b32 v{vt}, 1, v3')
            a.emit(f'v_lshl_add_u32 v2, v{vt}, 4, v2')
            a.emit('v_add_u32 v2, 12, v2')
            a.emit('v_cndmask_b32 v3, v3, v2, vcc')
        a.emit(f'v_lshlrev_b32 v{vt}, {sh}, v3')
        return
    a.emit('v_and_b32 v2, 3, v1')
    a.emit('v_lshlrev_b32 v2, 3, v2')
    a.emit(f'v_bfe_i32 v3, s{tb}, v2, 8')
    a.emit(f's_lshl2_add_u32 s5, s{S_MT}, 12')
    a.emit('v_add3_u32 v3, v3, v1, s5')
    a.emit('v_and_b32 v2, 7, v3')
    a.emit(f'v_cmp_eq_u32 vcc, s{S_HD}, v2')
    a.emit('v_bfe_u32 v2, v3, 3, 1')
    a.emit('v_lshl_add_u32 v2, v2, 2, 19')
    a.emit('v_and_b32 v3, 15, v3')
    a.emit('v_cndmask_b32 v3, v3, v2, vcc')
    a.emit('v_cmp_gt_u32 vcc, 20, v1')
    a.emit(f's_lshl1_add_u32 s4, s{S_HD}, s4')
    a.emit(f's_lshl3_add_u32 s3, s3, s{S_HD}')
    a.emit(f'v_cndmask_b32 v3, v3, v{vt}, vcc')
    a.emit('v_writelane_b32 v3, s4, 0')
    a.emit('s_add_u32 s4, s4, 1')
    a.emit('v_writelane_b32 v3, s3, 2')
    a.emit('v_writelane_b32 v3, s4, 1')
    a.emit(f'v_lshlrev_b32 v{vt}, {sh}, v3')

EVX, EVT, EVB = 24, 30, 27; EBIA = [4, 10, 124, 126]; ERING = [128, 144, 224, 64, 80, 240]
def w2_pre(a):
    P1 = int(ENV('P1', '23'))
    tile_map(a, 2, None, pair=True)
    rot_table(a, S_TB, S_MT, S_HD, 'w2')
    ktab(a, EVT, 11, P1, 56 - 2 * P1, S_TB)
    a.emit(f's_lshl_b32 s8, s{S_MT}, 7')
    a.emit(f's_lshl_b32 s9, s{S_WV}, 5')
    a.emit('s_add_u32 s8, s8, s9')
    a.emit('s_mul_i32 s9, s8, 7168')
    a.emit(f'v_lshl_add_u32 v{EVX}, v1, 4, s9')
    a.emit(f'v_add_u32 v{EVX+1}, {16*7168}, v{EVX}')
    a.emit('v_lshrrev_b32 v2, 4, v1')
    a.emit(f's_lshl_b32 s10, s{S_NT}, 7')
    a.emit(f'v_lshl_add_u32 v{EVB}, v2, 3, s10')

def w2_early(a):
    NG = int(ENV('NG2', '3'))
    for x in range(NG): a.emit(f'v_readlane_b32 s{SR+x}, v{EVT}, {x}')
    srd(a, SB, 'b2', 0, 2048)
    srd(a, SX, 'ws', WS_H, 2048 * 7168)
    for jn in range(4):
        a.emit(f'buffer_load_dwordx2 v[{EBIA[jn]}:{EBIA[jn]+1}], v{EVB}, s[{SB}:{SB+3}], 0 offen offset:{jn*32}')
    for x in range(NG):
        for ks in range(2):
            for jm in range(2):
                r = ERING[x] + (ks * 2 + jm) * 4
                a.emit(f'buffer_load_dwordx4 v[{r}:{r+3}], v{EVX+jm}, s[{SX}:{SX+3}], s{SR+x} offen offset:{ks*1024}')

def gen_gemm64y(a, kind, tsidx, side):
    K = 1024 if kind == 'wo' else 3584
    lda2 = 7168 if OH else K * 2; ldw2 = 2048
    N = K // 64
    P1 = int(ENV('P1', '23')) if kind == 'w2' else 0
    P2 = N - 2 * P1
    B16 = ENV('XB16', '1') == '1'
    NXC = 4 if B16 else 8; CH = NXC * 1024
    G0, GW = (131072, 28672) if kind == 'wo' else (0, 0)
    def slot(t):
        if kind == 'wo' and 'w1' in OT: return 28672 + 8192 * t + (4096 if t >= 12 else 0)
        g = G0 + (t >> 2) * 32768
        if g >= 163840: g = GW + (g - 163840) % (163840 - GW)
        return g + (t & 3) * 8192
    XB = 131072
    HR = int(ENV('HR', '6')) if P1 else 0
    sched = [(t >> 1, t & 1) for t in range(2 * (P1 - HR))] + [(x, u) for u in (0, 1) for x in range(P1 - HR, P1)] + [(x, 1) for x in range(P1, P1 + P2)]
    TU = 2 * P1 - max(HR, 1)
    NPRE = int(ENV('NPREO', '16')) if kind == 'wo' else int(ENV('NPRE', '20'))
    PSTEP = 64 if kind == 'w2' else 1024
    body = f'L_{kind}_body'; end = f'L_{kind}_end'
    VXO, VWB, VWA, VO, VT, VE = 4, 6, 26, 12, 15, 19
    XR = 32; FW = [160, 192]; ACC = [128, 96]; D = 240; BIA = 192
    SPC = NV if P1 else 0
    BIA = [BIA + 2 * jn for jn in range(4)]
    if SPC: VXO, VT, ACC, BIA = EVX, EVT, [32, 96], EBIA
    ot = kind == 'w2' and 'w2' in OT
    if ot: BIA = OBIA; assert P1 >= 20 and not SPC
    PW = ot and LF2 == 2
    SU = SW if PW else SO
    if PW: VT = 30
    acc = lambda jn, jm, u=1: ACC[u] + (jn * 2 + jm) * 4
    fx = lambda r, ks, jm: XR + 16 * r + (ks * 2 + jm) * 4
    fw = lambda s, ks, jn: FW[s] + (ks * 4 + jn) * 4
    a.label(f'L_{kind}_c0')
    a.label(body)
    tile_map(a, 2, end, pair=True)
    rot_table(a, S_TB, S_MT, S_HD, kind)
    a.emit(f's_cmp_ge_u32 s{S_WV}, 4')
    a.emit(f's_cbranch_scc1 L_{kind}_loader')
    iA = len(a.lines)
    ownx = [f'ds_read_b128 v[{32+4*i}:{35+4*i}], v2 offset:{(i>>2)*16384+(i&1)*2048+(i&2)*512}' for i in range(12)]
    if PW:
        a.emit(f's_lshr_b32 s3, s{S_NT}, 3')
        a.emit(f's_and_b32 s{S_HD}, s{S_NT}, 7')
        a.emit(f's_lshl1_add_u32 s{S_NT}, s{S_HD}, s3')
        ktab_ot(a, VT, 11, S_TB)
    elif ot:
        a.emit(f's_lshl_b32 s3, s{S_WV}, 12')
        a.emit(f's_add_u32 s3, s3, {OHB}')
        a.emit('v_lshl_add_u32 v2, v1, 4, s3')
        for i in range(12): a.emit(f'ds_read_b128 v[{32+4*i}:{35+4*i}], v2 offset:{(i>>2)*16384+(i&1)*2048+(i&2)*512}')
        ktab_ot(a, VT, 11, S_TB)
        if 'xhit' in DBG: a.emit(f'v_and_b32 v{VT}, 0x1800, v{VT}')
        if ENV('RE', '1') == '1' and not EF:
            a.emit('s_waitcnt lgkmcnt(0)')
            a.emit('s_barrier')
    elif SPC: tile_map(a, 2, None, pair=True)
    else: ktab(a, VT, 12 if OH == 1 else 11, P1, P2, S_TB)
    a.emit('v_and_b32 v3, 15, v1')
    a.emit('v_lshrrev_b32 v2, 4, v1')
    a.emit(f's_lshl_b32 s8, s{S_MT}, 7')
    a.emit(f's_lshl_b32 s9, s{S_WV}, 5')
    a.emit('s_add_u32 s8, s8, s9')
    a.emit(f's_mul_i32 s9, s8, {lda2}')
    if 'xsm' in DBG:
        a.emit('s_and_b32 s9, s8, 0x67f')
        a.emit(f's_mul_i32 s9, s9, {lda2}')
    if not SPC and ENV('TID', '1') != '1':
        a.emit(f'v_lshl_add_u32 v{VXO}, v1, 4, s9')
        a.emit(f'v_add_u32 v{VXO+1}, {16*lda2}, v{VXO}')
    E2 = ot and EF == 2
    if E2: xpitch(a, 7, True)
    iB = len(a.lines)
    a.emit('v_add_u32 v13, s8, v3')
    a.emit(f's_lshl_b32 s10, s{S_NT}, 7')
    a.emit('v_lshl_add_u32 v14, v2, 3, s10')
    a.emit('v_and_b32 v16, 1, v2')
    a.emit('v_lshrrev_b32 v17, 1, v2')
    F2 = ENV('FL', '2') == '2'
    if kind == 'w2' and F2:
        assert 'attn' in OT
        a.emit('v_lshlrev_b32 v4, 3, v3')
        a.emit('v_and_b32 v4, 0x70, v4')
        a.emit('v_lshlrev_b32 v16, 3, v2')
        a.emit('v_xor_b32 v4, v4, v16')
        a.emit('v_lshl_add_u32 v4, v3, 7, v4')
        a.emit(f's_lshl_b32 s3, s{S_WV}, 12')
        a.emit('v_add_u32 v4, s3, v4')
        a.emit('v_lshl_add_u32 v5, v1, 4, s3')
        if not E2: xpitch(a, 7, True)
        a.emit('v_xor_b32 v16, v1, v2')
        a.emit('v_and_b32 v16, 7, v16')
        a.emit('v_lshl_add_u32 v16, v16, 4, s10')
        a.emit('v_lshrrev_b32 v14, 3, v1')
        a.emit('v_add_u32 v14, s8, v14')
        a.emit(f'v_mad_u32_u24 v{VO}, v14, s7, v16')
        FL = False
    elif kind == 'w2':
        a.emit('v_lshlrev_b32 v16, 5, v16')
        a.emit('v_lshl_add_u32 v16, v17, 4, v16')
        if 'attn' in OT:
            a.emit('v_lshlrev_b32 v4, 3, v3')
            a.emit('v_and_b32 v4, 0x70, v4')
            a.emit('v_xor_b32 v4, v4, v16')
            a.emit('v_lshl_add_u32 v4, v3, 7, v4')
            a.emit(f's_lshl_b32 s3, s{S_WV}, 12')
            a.emit('v_add_u32 v4, s3, v4')
            a.emit('v_xor_b32 v5, 64, v4')
        a.emit('v_add_u32 v16, s10, v16')
        if not E2: xpitch(a, 7, True)
        FL = ENV('FL', '2') == '1'
        if FL:
            a.emit('v_and_b32 v14, 8, v3')
            a.emit('v_lshl_add_u32 v16, v14, 3, v16')
            a.emit('v_sub_u32 v14, v13, v14')
            assert ot
        a.emit(f'v_mad_u32_u24 v{VO}, v{14 if FL else 13}, s7, v16')
    else:
        if 'w1' in NS: a.emit('v_lshlrev_b32 v16, 4, v1')
        else:
            a.emit('v_lshl_add_u32 v16, v16, 1, v17')
            a.emit('v_lshlrev_b32 v16, 8, v16')
            a.emit('v_lshl_add_u32 v16, v3, 4, v16')
        a.emit(f's_add_u32 s9, s8, s{S_NT}')
        a.emit('s_lshl_b32 s9, s9, 11')
        a.emit(f'v_add_u32 v{VO}, s9, v16')
        if 'w1' in OT:
            a.emit(f's_lshl_b32 s9, s{S_WV}, 12')
            a.emit(f'v_add_u32 v{VE}, s9, v16')
    a.emit('v_lshl_add_u32 v18, v17, 4, v13')
    a.emit('v_lshlrev_b32 v18, 3, v18')
    a.emit('v_and_b32 v16, 1, v2')
    a.emit('v_lshl_add_u32 v18, v16, 2, v18')
    a.emit(f's_lshl_b32 s10, s{S_NT}, 14')
    a.emit('v_add_u32 v18, s10, v18')
    nr = kind in NS and NSR
    wbase(a, VWB, 17, nr=nr)
    for i in range(1, 1 if PW else 4): a.emit(f'v_xor_b32 v{VWB+i}, {32*i}, v{VWB}')
    a.emit('s_mov_b32 s11, 0xffff0000')
    if E2: bl = a.lines[iB:]; del a.lines[iB:]
    if kind == 'wo':
        srd(a, SX, 'ws', WS_H + OHO if OH else WS_O, 4 * MB)
        srd(a, SO, 'ws', WS_X1, 4 * MB)
    else:
        if not SPC:
            if not ot: srd(a, SB, 'b2', 0, 2048)
            for jn in range(0 if ot else 4):
                a.emit(f'buffer_load_dwordx2 v[{BIA[jn]}:{BIA[jn]+1}], v14, s[{SB}:{SB+3}], 0 offen offset:{jn*32}')
            srd(a, SX, ENV('HB', 'ws'), WS_H, 2048 * 7168)
        srd(a, SU, 'out', 0, 4 * MB)
        srd(a, SR, 'ws0', WS_X2, 4 * MB)
        a.emit(f's_cmp_eq_u32 s{S_LAYER}, 0')
        a.emit(f's_cselect_b64 s[{SU}:{SU+1}], s[{SR}:{SR+1}], s[{SU}:{SU+1}]')
        a.emit(f's_lshl_b32 s{SU+2}, s7, 11')
        if E2:
            for x in range(3, 5): a.emit(f'v_readlane_b32 s{SR+(x&3)}, v{VT}, {x}')
    if not E2: srd(a, ST, 'ws', WS_ST if kind == 'wo' else WS_ST2, 16 * 16384)
    TID = ENV('TID', '1') == '1'
    if TID:
        a.emit(f's_mul_i32 s9, s8, {lda2}')
        if OH and P1 and not PW: a.emit(f's_add_u32 s9, s9, s{S_T}')
        a.emit(f's_add_u32 s{SX}, s{SX}, s9')
        a.emit(f's_addc_u32 s{SX+1}, s{SX+1}, 0x100000')
        a.emit(f's_add_u32 s{SC}, s{SX}, {16 * lda2}')
        a.emit(f's_addc_u32 s{SC+1}, s{SX+1}, 0')
        for r in (SX, SC):
            a.emit(f"s_mov_b32 s{r+2}, {16 * lda2 - (OHO if kind == 'wo' else 0)}")
            a.emit(f's_mov_b32 s{r+3}, 0x00800000')
    if E2:
        RB = int(ENV('RB', '0'))
        a.lines += bl[:RB]
        a.emit('s_waitcnt vmcnt(0) lgkmcnt(0)')
        a.emit('s_barrier')
        iR = len(a.lines)
        a.lines += bl[RB:]
        srd(a, ST, 'ws', WS_ST2, 16 * 16384)
    if kind == 'wo':
        if ENV('CT2', 'l') == 'l': code_touch(a, 'L_w1_c0', 'L_w1_c1', 128, SW)
        elif ENV('CT2') == 'o': code_touch(a, 'L_w2_c0', 'L_w2_c1', 192, SW)
        else: code_touch(a, 'L_w1_c0', 'L_w2_c1', 320, SW)
    DX = int(ENV('DX', '2'))
    CLW = DX == 1 and not P1 and ENV('CLP', 'e') == 'w'
    if CLW:
        for i in range(4): a.emit(f'v_mov_b32 v{128+i}, -1')
    if (P1 and DX) or CLW:
        srd(a, SP, 'ws', WS_XP, 4 * MB)
        a.emit(f's_or_b32 s{SP+1}, s{SP+1}, 0x100000')
        a.emit(f's_mov_b32 s{SP+3}, 0x00800000')
        a.emit(f's_lshl4_add_u32 s4, s{S_MT}, s{S_NT}')
        a.emit(f's_lshl2_add_u32 s4, s4, s{S_WV}')
        if DX == 2:
            if not PW: srd(a, SB, 'ws0', WS_FL, FLS)
            a.emit(f's_add_u32 s6, s{S_LAYER}, 4')
            a.emit('s_lshl_b32 s6, s6, 10')
            a.emit('s_add_u32 s6, s6, s4')
            a.emit('s_lshl_b32 s6, s6, 6')
            if not PW: a.emit(f'v_mov_b32 v{VE}, 1')
        a.emit('s_lshl_b32 s4, s4, 12')
        a.emit('s_xor_b32 s5, s4, 16384')
    elif P1:
        a.emit(f's_mul_i32 s3, s{S_WV}, {CH}')
        a.emit(f's_add_u32 s3, s3, {XB}')
        a.emit(f'v_lshl_add_u32 v{VE}, v1, 4, s3')
    if P1 and not ot:
        for i in range(32): a.emit(f'v_mov_b32 v{ACC[0]+i}, 0')
    bases = []
    for t in sorted(range(min(N, 20)), key=slot):
        if not bases or slot(t) + 8191 - bases[-1] > 65535: bases.append(slot(t))
    VSET = [VWB, 20, 26]
    fil = [f'v_add_u32 v{VSET[k]+i}, {bases[k]}, v{VWB+i}' for k in (2, 1, 0) for i in range(4) if bases[k] or k]
    if not PW:
        for x in fil: a.emit(x)
    xof = lambda t: sched[t][0]
    NX = P1 + P2
    last = lambda x: sched.index((x, 1))
    def xl(x, reg):
        if TID: return [(f'buffer_load_dwordx4 v[{reg+(ks*2+jm)*4}:{reg+(ks*2+jm)*4+3}], off, s[{(SX, SC)[jm]}:{(SX, SC)[jm]+3}], s{SR+(x&3)} offset:{ks*1024}' + (ENV('XLF', ' sc1') if OH and P1 else ''), 'V', ('x', x, ks))
                for ks in range(2) for jm in range(2)]
        return [(f'buffer_load_dwordx4 v[{reg+(ks*2+jm)*4}:{reg+(ks*2+jm)*4+3}], v{VXO+jm}, s[{SX}:{SX+3}], s{SR+(x&3)} offen offset:{ks*1024}', 'V', ('x', x, ks))
                for ks in range(2) for jm in range(2)]
    def reads(t):
        o = []
        k = max(i for i, b in enumerate(bases) if b <= slot(t))
        for ks in range(2):
            for jn in range(4):
                for h in range(2):
                    d = fw(t & 1, ks, jn) + 2 * h
                    o.append((f'ds_read_b64_tr_b16 v[{d}:{d+1}], v{VSET[k]+jn} offset:{slot(t)-bases[k]+ks*4096+h*(2048 if nr else 512)}', 'L', ('w', t, ks)))
        return o
    xreg = {}
    def mf(t):
        o = []
        for ks in range(2):
            for jn, jm in mf_order(4, 2):
                if True:
                    c = acc(jn, jm, sched[t][1]); x = xreg[xof(t)] + (ks * 2 + jm) * 4
                    o.append(f'v_mfma_f32_16x16x32_bf16 v[{c}:{c+3}], v[{fw(t&1,ks,jn)}:{fw(t&1,ks,jn)+3}], v[{x}:{x+3}], ' + ('0' if ot and t == ks == 0 else f'v[{c}:{c+3}]'))
        return o
    U = kind[1].upper()
    NG = int(ENV('NG' + U, '3'))
    ring = [32, 48, 64, 80, 224, 240][:int(ENV('RING' + U, '6' if P1 else '4'))]
    NB = 2 if E2 else int(ENV('NB', '3'))
    if SPC: ring = ERING
    elif ot:
        assert NG == 3
        for x in range(3, 3 if E2 else 3 + NB): a.emit(f'v_readlane_b32 s{SR+(x&3)}, v{VT}, {x}')
    else:
        for x in range(NG): a.emit(f'v_readlane_b32 s{SR+x}, v{VT}, {x}')
    if PW:
        assert F2 and DX == 2 and TID
        ren = {'v4': 'v26', 'v5': 'v27', 'v12': 'v28', 'v18': 'v29', 'v6': 'v8', 'v13': 'v76', 'v14': 'v77', 'v16': 'v78', 'v17': 'v79', 's10': 's14'}
        pa = [re.sub(r'\b[vs]\d+\b', lambda m: ren.get(m.group(0), m.group(0)), l) for l in a.lines[iA:]]
        del a.lines[iA:]
        for x in ('s_mul_i32 s9, s8, 7168', 'v_lshl_add_u32 v77, v2, 3, s14', 'v_and_b32 v78, 1, v2', f's_mov_b32 s{SX+2}, 14680064', f's_mov_b32 s{SX+3}, 0x00020000',
                  f's_mov_b32 s{SU+2}, 4194304', f's_mov_b32 s{SR+2}, 4194304', f's_mov_b32 s{SR+3}, 0x00020000', f's_mov_b32 s{SP+3}, 0x00020000',
                  'v_writelane_b32 v3, s4, 0', 's_add_u32 s4, s4, 1', 'v_writelane_b32 v3, s3, 2', 'v_writelane_b32 v3, s4, 1', f's_lshl1_add_u32 s4, s{S_HD}, s4', f's_lshl3_add_u32 s3, s3, s{S_HD}'):
            pa.remove('  ' + x)
        i = pa.index('  v_lshl_add_u32 v3, v3, 3, v2'); pa[i - 2], pa[i - 1] = pa[i - 1], pa[i - 2]
        while '@S' in a.lines:
            i = a.lines.index('@S'); a.lines[i:i + 1] = pa[:1]; del pa[:1]
        MA = int(ENV('MA', '50'))
        i = a.lines.index('@W2A'); a.lines[i:i + 1] = pa[MA:]
        i = a.lines.index('@W2G'); a.lines[i:i + 1] = pa[:MA]
        fil = [f'v_mov_b32 {k}, {ren[k]}' for k in ('v4', 'v5', 'v12', 'v18')] + [f'v_mov_b32 v{VE}, 1'] + fil[4:] + fil[:4]
        b = Asm(); srd(b, SB, 'ws0', WS_FL, FLS); fil += [l.strip() for l in b.lines]
    if kind == 'wo' and F2:
        a.emit(f's_cmp_lg_u32 s{S_LAYER}, 0')
        a.emit('s_cbranch_scc1 L_wo_nosw')
    for i in range(0 if kind == 'w2' and 'w1' in NS else 4):
        for h in range(2): a.emit(f'v_permlane16_swap_b32 v{D+4*i+h}, v{D+4*i+2+h}')
    if kind == 'wo' and F2: a.label('L_wo_nosw')
    TF = int(ENV('TF', '-1')); TG = int(ENV('TG', '15'))
    if SF:
        a.emit('v_mov_b32 v13, -1')
        a.emit(f'buffer_store_dword v13, v18, s[{ST}:{ST+3}], 0 offen sc1')
        assert not E2
    import pads
    for x in pads.chain('hg') if kind == 'wo' else []: a.emit(x)
    if not PW: a.emit('s_waitcnt lgkmcnt(0)' + (f' vmcnt({4 * NG + 4 if EX == 14 else 0})' if SPC and TF < 0 else ''))
    if not (ot and ENV('RE', '1') == '1'): a.emit('s_barrier')
    pre = []
    for x in range(NG):
        xreg[x] = ring[x]; pre += xl(x, ring[x])
    if SPC: pre = [('', k, tg) for _, k, tg in pre] + [('', 'V', 'st')] * (14 - EX)
    if ot: pre = [('', 'L', tg) for _, k, tg in pre] + [('', 'V', 'st')] * (EF == 1)
    if E2:
        xe = xl(3, ring[3]) + xl(4, ring[4])
        XD_ = int(ENV('XED', '8'))
        for i, y in enumerate(xe): a.lines.insert(iR + i * (XD_ + 1), '  ' + y[0])
        pre += [('', k, tg) for _, k, tg in xe]
    if PW:
        pre = [(y, 'L', p[2]) for y, p in zip(ownx, pre)]
        pre = pre[:2] + reads(0)[:8] + pre[2:4] + reads(0)[8:] + pre[4:]
    else: pre += reads(0)
    npre = len(pre)
    P = lambda x: (x, '', None)
    if kind == 'w2' and not ot: pre.append(P(f's_waitcnt vmcnt({len(pre) - 16})'))
    for jn in range(4):
        if kind == 'w2':
            for h in range(2):
                pre.append(P(f'v_lshlrev_b32 v{216+2*h}, 16, v{BIA[jn]+h}'))
                pre.append(P(f'v_and_b32 v{217+2*h}, s11, v{BIA[jn]+h}'))
        for jm in range(2):
            c = acc(jn, jm); r = D + (jm * 4 + jn) * 2
            for h in range(2):
                pre.append(P(f'v_lshlrev_b32 v{c+2*h}, 16, v{r+h}'))
                pre.append(P(f'v_and_b32 v{c+2*h+1}, s11, v{r+h}'))
                if kind == 'w2': pre.append(P(f'v_pk_add_f32 v[{c+2*h}:{c+2*h+1}], v[{c+2*h}:{c+2*h+1}], v[{216+2*h}:{217+2*h}]'))
    if PW:
        NI = int(ENV('NI', '64'))
        pb = [f'v_add_u32 v2, {OHB}, v27', 'v_mov_b32 v6, v8', 'v_xor_b32 v7, 32, v8', 'v_xor_b32 v9, 96, v8', 'v_xor_b32 v8, 64, v8', 's_waitcnt vmcnt(14)'] + [x[0] for x in pre[npre:npre + NI]]
        del pre[npre:npre + NI]
        i = a.lines.index('@W2B'); a.lines[i:i + 1] = ['  ' + x for x in pb]
    pre.append(('', 'W', [('w', 0, 0), ('x', 0, 0)]))
    if TS:
        b = Asm(); stamp(b, 1); pre += [P(l.strip()) for l in b.lines]
    gp = [[] for _ in range(16 * N + 1)]
    waits = {}
    for t in range(N):
        if t + 1 < N:
            for i, x in enumerate(reads(t + 1)): gp[16 * t + i].append(x)
        for g, tt, ks in ((16 * t + 7, t, 1), (16 * t + 15, t + 1, 0)):
            if tt < N:
                waits[g] = [('w', tt, ks), ('x', xof(tt), ks)]
                gp[g].append(('', 'W', waits[g]))
    def put(g, x, cap=2):
        while len(gp[g]) >= cap and g < 16 * N: g += 1
        gp[g].append(x); return g
    if PW:
        for x in fil: put(0, P(x))
    BP = int(ENV('BP', '4'))
    ZS = int(ENV('ZS', '50' if DX else '54')) if P1 else N - 1
    XS = int(ENV('XS', '43' if DX else '41'))
    PS = int(ENV('PS', '0'))
    bars = list(range(BP - 1, min(2 * P1, XS - 1), BP)) + [XS] + ([PS] if PS else []) + ([] if DX == 1 else [ZS]) if P1 else [int(x) for x in ENV('BWO', ('4,13' if WD == 'c' else '3,10') if 'w1' in OT else '3,7,12').split(',')]
    if SPC:
        bars = [TF] + [t for t in bars if t > TF + 1]
        assert TG in bars
        if EX < 14 and TF >= 0: waits[16 * TF + 7].append('st')
    if ot: bars = [int(x) for x in ENV('BW2', '1,7' if PW else ['2,7', '1,7', '3,7'][EF]).split(',')] + bars[2:]
    TG2 = int(ENV('TG2', '11'))
    if ot and EF == 1: waits[16 * bars[0] + 7].append('st')
    if ot and EF: assert TG2 in bars
    for t in bars:
        if t >= 0: gp[16 * t + 7].append(P('s_barrier'))
    G = ACC[0]; GI = G + 16 if B16 else G
    pool = [[r, -1 if i >= NG else 16 * last(i) + 15, N] for i, r in enumerate(ring)]
    if P1:
        for i in range(int(ENV('RINGX', '0'))): pool.append([G + 16 * i, 16 * XS + 7, ZS])
    SP1 = int(ENV('SP1', '6')); SP2 = int(ENV('SP2', '3'))
    g = 0
    for x in range(NG, NX):
        sl = min((p for p in pool if last(x) < p[2]), key=lambda p: p[1])
        xreg[x] = sl[0]
        if SPC and x == SPC: g = max(g, 16 * TG + 7)
        if ot and EF and x == 11: g = max(g, 16 * TG2 + 7)
        if E2 and x < 5:
            assert sl[0] == ring[x]
            sl[1] = 16 * last(x) + 15
            continue
        if ot and x < 3 + NB:
            g = 16 * bars[0] + 7
            gp[g] += xl(x, sl[0]); sl[1] = 16 * last(x) + 15; g += 3
            continue
        g = put(max(g - 2, sl[1] - 2, 0), P(f'v_readlane_b32 s{SR+(x&3)}, v{VT}, {x}')) + 3
        sp = SP1 if len(ring) + (int(ENV('CU2', '2')) if ot else 0) <= x and g < 16 * int(ENV('SPE', str(TU + 1))) else SP2
        sps = [int(c) for c in ENV('SP3', '4')] if P1 and 12 <= x and sp == SP2 else [sp]
        for i, y in enumerate(xl(x, sl[0])): g = put(max(g, sl[1] + 1), y) + sps[i % len(sps)]
        sl[1] = 16 * last(x) + 15
    for i in range(4): put(16 * (N - 1), P(f'v_mov_b32 v{20+i}, 0'))
    if CLW:
        g = max(g, int(16 * float(ENV('CLG', '0'))))
        for i in range(4): g = put(g, (f'buffer_store_dwordx4 v[128:131], off, s[{SP}:{SP+3}], s4 offset:{1024*i} sc1', 'V', 'cl')) + int(ENV('CLD', '2'))
    def xld(i): return f'buffer_load_dwordx4 v[{GI+4*i}:{GI+4*i+3}], off, s[{SP}:{SP+3}], s5 offset:{1024*i} sc1'
    def vmax(d, r):
        return [f'v_max3_u32 v{d}, v{r}, v{r+1}, v{r+2}'] + [f'v_max3_u32 v{d}, v{d}, v{r+j}, v{r+j+1}' for j in range(3, 15, 2)] + [f'v_max_u32 v{d}, v{d}, v{r+15}', f'v_cmp_eq_u32 vcc, -1, v{d}']
    if P1 and DX:
        g = 16 * TU + 2
        for i in range(4):
            for j in range(4 * i, 4 * i + 4): g = put(g, P(f'v_cvt_pk_bf16_f32 v{G+j}, v{G+2*j}, v{G+2*j+1}'))
            put(max(g + 1, 16 * TU + 6 + i * int(ENV('XWS', '0'))), (f'buffer_store_dwordx4 v[{G+4*i}:{G+4*i+3}], off, s[{SP}:{SP+3}], s4 offset:{1024*i} sc1', 'V', 'xw'))
        g = int(16 * float(ENV('RS', '50')))
        if DX == 2:
            g = put(int(16 * float(ENV('FS', '44'))), ('', 'W', ['xw']))
            put(g, (f'buffer_store_dword v{VE}, off, s[{SB}:{SB+3}], s6 sc1', 'V', 'xf'))
            g = 16 * ZS + 8
        for i in range(4): g = put(g, (xld(i), 'V', 'xr')) + int(ENV('RSP', '2'))
        g = put(int(16 * float(ENV('VS', '53.5' if DX == 1 else '54'))), ('', 'W', ['xr']))
        if DX == 1:
            for y in vmax(VE, GI): g = put(g, P(y))
            g = put(g + 1, P(f's_cbranch_vccnz L_{kind}_xrt\nL_{kind}_xok:'))
        for i in range(16):
            g = put(g, P(f'v_lshlrev_b32 v{G+2*i}, 16, v{GI+i}'), 2 if g < 16 * (N - 1) else 3)
            g = put(g, P(f'v_and_b32 v{G+2*i+1}, s11, v{GI+i}'), 2 if g < 16 * (N - 1) else 3)
    elif P1:
        g = 16 * (2 * P1 - 1) + 2
        for i in range(NXC):
            if B16:
                for j in range(4 * i, 4 * i + 4): g = put(g, P(f'v_cvt_pk_bf16_f32 v{G+j}, v{G+2*j}, v{G+2*j+1}'))
            gw = put(max(g + 1, 16 * (2 * P1 - 1) + 8 + 2 * i), (f'ds_write_b128 v{VE}, v[{G+4*i}:{G+4*i+3}] offset:{1024*i}', 'L', 'xw'))
        assert gw < 16 * XS + 7
        waits[16 * XS + 7].append('xw')
        g = 16 * ZS + 8
        for i in range(NXC): g = put(g, (f'ds_read_b128 v[{GI+4*i}:{GI+4*i+3}], v{VE} offset:{1024*i}', 'L', 'xr')) + 1
        g = put(max(g + 6, 16 * (N - 1)), ('', 'W', ['xr']))
        if B16:
            for i in range(16):
                g = put(g, P(f'v_lshlrev_b32 v{G+2*i}, 16, v{GI+i}'), 3)
                g = put(g, P(f'v_and_b32 v{G+2*i+1}, s11, v{GI+i}'), 3)
    XG = int(ENV('XG', '1'))
    if XG:
        isr = lambda y: y[1] == 'L' and y[2][0] == 'w'
        for g in range(16 * N - 1):
            if len(gp[g]) == 2 and gp[g][1][1] == 'V' and isr(gp[g][0]):
                for d in ((1, -1) if XG == 1 else (-1, 1)):
                    if len(gp[g + d]) == 1 and isr(gp[g + d][0]) and (d > 0 or g & 15):
                        gp[g + d].insert(0 if d > 0 else 1, gp[g].pop(0)); break
    lin = list(pre)
    for t in range(N):
        for i, m in enumerate(mf(t)):
            lin.append(P(m)); lin += gp[16 * t + i]
        if TS and t == int(ENV('ST2', '99')):
            b = Asm(); stamp(b, 2); lin += [P(l.strip()) for l in b.lines]
    lin += gp[16 * N]
    nbc = [0]
    def nb2():
        nbc[0] += 1; return 2 < nbc[0] < len(bars)
    iss = {'L': [], 'V': []}; done = {'L': -1, 'V': -1}
    for txt, k, tag in lin:
        if k == 'W':
            o = []
            for c, nm, mx in (('V', 'vmcnt', 63), ('L', 'lgkmcnt', 15)):
                idx = [i for i, x in enumerate(iss[c]) if x in tag]
                if idx and max(idx) > done[c]:
                    n = min(mx, len(iss[c]) - 1 - max(idx)); done[c] = len(iss[c]) - 1 - n
                    o.append(f'{nm}({n})')
            assert all(x in iss['L'] or x in iss['V'] for x in tag), tag
            if o: a.emit('s_waitcnt ' + ' '.join(o))
            continue
        if k: iss[k].append(tag)
        if 'nox2' in DBG and P1 and k == 'V' and tag[0] == 'x' and len(tag) == 3: continue
        if 'nobar2' in DBG and P1 and txt == 's_barrier' and nb2(): continue
        if ('nox' in DBG and k == 'V') or ('nomfma' in DBG and 'mfma' in txt) or not txt: continue
        a.emit(txt)
    if int(ENV('ST2', '99')) >= N: stamp(a, 2)
    a.emit(f's_mov_b32 s3, {16*2048}' if kind == 'wo' else 's_lshl_b32 s3, s7, 4')
    a.emit('s_mov_b32 s10, 0x3f803f80')
    FL = kind == 'w2' and FL; F2 = kind == 'w2' and F2
    if F2:
        a.emit('s_lshl_b32 s4, s7, 3')
        a.emit('s_add_u32 s5, s3, s4')
        for i in range(1, 4): a.emit(f'v_xor_b32 v{5+i}, {32*i}, v4')
        a.emit(f'v_xor_b32 v9, 64, v{VO}')
    elif FL:
        a.emit('s_lshl_b32 s4, s7, 3')
        a.emit('s_add_u32 s5, s3, s4')
        a.emit('s_mov_b32 vcc_lo, 0x00ff00ff')
        a.emit('s_mov_b32 vcc_hi, vcc_lo')
        a.emit('s_nop 0')
    else: a.emit('s_nop 4')
    for jm in range(2):
        for p in range(2):
            d = D + (jm * 2 + p) * 4
            for q in range(2):
                c = acc(2 * p + q, jm); g = acc(2 * p + q, jm, 0)
                if P1:
                    for h in range(2): a.emit(f'v_pk_add_f32 v[{c+2*h}:{c+2*h+1}], v[{c+2*h}:{c+2*h+1}], v[{g+2*h}:{g+2*h+1}]')
                a.emit(f'v_cvt_pk_bf16_f32 v{d+2*q}, v{c}, v{c+1}')
                a.emit(f'v_cvt_pk_bf16_f32 v{d+2*q+1}, v{c+2}, v{c+3}')
            if F2:
                for q in range(2): a.emit(f'ds_write_b64 v{(4, 6, 7, 8)[2*p+q]}, v[{d+2*q}:{d+2*q+1}] offset:{jm*2048}')
                for k in range(2 * p): a.emit(f'ds_read_b128 v[{32+8*jm+4*k}:{35+8*jm+4*k}], v5 offset:{jm*2048+k*1024}')
                continue
            if not (kind == 'wo' and 'w1' in NS):
                a.emit('s_nop 1')
                a.emit(f'v_permlane16_swap_b32 v{d}, v{d+2}')
                a.emit(f'v_permlane16_swap_b32 v{d+1}, v{d+3}')
            if not FL: a.emit(f'buffer_store_dwordx4 v[{d}:{d+3}], v{VO}, s[{SO}:{SO+3}], {"s3" if jm else "0"} offen offset:{p*PSTEP}{stf(kind)}')
            if kind == 'w2' and 'attn' in OT: a.emit(f'ds_write_b128 v{4+p}, v[{d}:{d+3}] offset:{jm*2048}')
            if FL and p:
                for k in ((0, 1), (1, 0))[jm]:
                    t = 32 + 8 * jm + 4 * k
                    if k == jm: a.emit('s_nop 0')
                    else: a.emit('s_not_b64 vcc, vcc')
                    for i in range(4): a.emit(f'v_cndmask_b32_dpp v{t+i}, v{d-4*k+i}, v{d-4+4*k+i}, vcc row_ror:8 row_mask:0xf bank_mask:0xf')
                    a.emit(f'buffer_store_dwordx4 v[{t}:{t+3}], v{VO}, s[{SO}:{SO+3}], {("0", "s4", "s3", "s5")[2*jm+k]} offen{stf(kind)}')
            if kind == 'wo' and 'w1' in OT: a.emit(f'ds_write_b128 v{VE}, v[{d}:{d+3}] offset:{jm*2048+p*1024}')
    if F2:
        for k in range(4):
            a.emit(f's_waitcnt lgkmcnt({(7, 6, 1, 0)[k]})')
            a.emit(f'buffer_store_dwordx4 v[{32+4*k}:{35+4*k}], v{(VO, 9)[k&1]}, s[{SU}:{SU+3}], {("0", "s4", "s3", "s5")[k]} offen{stf(kind)}')
    if SKL and kind == 'w2' and not TS:
        last_check(a, kind)
        if TE: a.lines[-1] = a.lines[-1].replace('L_w2_end', 'L_fin')
    for jm in range(2):
        for i in range(8):
            d = D + jm * 8 + i
            a.emit(f'v_dot2_f32_bf16 v{20+jm}, v{d}, s10, v{20+jm}')
            a.emit(f'v_dot2_f32_bf16 v{22+jm}, v{d}, v{d}, v{22+jm}')
    a.emit('s_nop 2')
    a.emit('v_permlane32_swap_b32 v20, v21')
    a.emit('v_permlane32_swap_b32 v22, v23')
    a.emit('v_add_f32 v20, v20, v21')
    a.emit('v_add_f32 v22, v22, v23')
    a.emit('s_nop 1')
    a.emit('v_permlane16_swap_b32 v20, v22')
    a.emit('v_add_f32 v20, v20, v22')
    a.emit(f'buffer_store_dword v20, v18, s[{ST}:{ST+3}], 0 offen{stf(kind)}')
    compute_end(a, kind)
    if P1 and DX == 1:
        a.label(f'L_{kind}_xrt')
        a.emit('s_mov_b32 s6, 0x40000')
        a.label(f'L_{kind}_xrl')
        for i in range(4): a.emit(xld(i))
        a.emit('s_sub_u32 s6, s6, 1')
        a.emit('s_waitcnt vmcnt(0)')
        a.emit(f's_cbranch_scc1 L_{kind}_xok')
        for y in vmax(VE, GI): a.emit(y)
        a.emit(f's_cbranch_vccnz L_{kind}_xrl')
        a.emit(f's_branch L_{kind}_xok')
    a.label(f'L_{kind}_loader')
    VT = 16
    if ENV('LPRIO'): a.emit(f"s_setprio {ENV('LPRIO')}")
    if kind == 'wo':
        if LSTK == 'wo': lstamp(a, 0)
        import sides
        dep_pre(a, kind, 0)
        if not CF or ENV('CFK'):
            a.emit(f's_cmp_lg_u32 s{S_LAYER}, {7 if CF else 0}')
            a.emit(f's_cbranch_scc1 L_{kind}_nofirst')
            sides.qkv(a, 0, 'finish', 1)
            a.label(f'L_{kind}_nofirst')
    L = Loader(a, kind, K, lda2, ldw2, [0], 128, 2, 8192, xblk=True)
    L.panels_of = lambda t: [0] if sched[t][1] else [f's{S_XD}']
    if ot:
        ktab_ot(a, VT, 17, S_TB)
        if 'whit' in DBG: a.emit(f'v_and_b32 v{VT}, 0x60000, v{VT}')
    else: ktab(a, VT, 17, P1, P2, S_TB)
    a.emit(f's_add_u32 s9, s{S_WV}, s{S_MT}')
    a.emit('s_and_b32 s9, s9, 3')
    a.emit(f's_lshl_b32 s{S_WD}, s9, 11')
    a.emit('v_and_b32 v10, 7, v1')
    if 'wsm' in DBG:
        a.emit(f's_and_b32 s11, s{S_NT}, 1')
        wvoff(a, L.VWD, 9, 11, ldw2)
    elif 'noslow2' in DBG:
        a.emit(f's_bitcmp1_b32 0x0c0c, s{S_NT}')
        a.emit('s_cselect_b32 s11, 2, 0')
        a.emit(f's_add_u32 s11, s11, s{S_NT}')
        wvoff(a, L.VWD, 9, 11, ldw2)
    else: wvoff(a, L.VWD, 9, S_NT, ldw2, kind in NS)
    if kind == 'wo': srd(a, SW, 'wo', 0, 2 * MB)
    else:
        srd(a, SW, 'w2', 0, 3584 * 2048)
        a.emit(f's_bitcmp1_b32 s{S_NT}, 0')
        a.emit(f's_mov_b32 s{S_XD}, 128')
        a.emit(f's_cselect_b32 s{S_XD}, -128, s{S_XD}')
    NPF = int(ENV('NPF' + kind[1].upper(), '10'))
    assert NPRE - NPF <= 18
    seq = []
    def em(o):
        for x in o:
            if ('nodma' in DBG or ('nodma2' in DBG and len(seq) >= 40)) and x.endswith(' lds'): continue
            a.emit(x)
    def after(t): return len(seq) - 1 - max(i for i, x in enumerate(seq) if x == t)
    NPK = int(ENV('NPK', '0')) if P1 else 0
    PK0 = int(ENV('PK0', '20')); PKA = int(ENV('PKA', '0'))
    PKD = int(ENV('PKD', '1'))
    pks = [t for t in range(PK0, N) if ((t - PK0) >> 1) % PKD == 0][:NPK]
    pkr = lambda t: 256 - 8 * NPK + 8 * pks.index(t)
    assert 256 - 8 * NPK >= 48
    if NPK:
        a.emit(f'v_lshl_add_u32 v20, v1, 4, s{S_WD}')
        a.emit('v_add_u32 v21, 0x10000, v20')
        a.emit('v_add_u32 v22, 0x20000, v20')
    lastk = [None]
    def kw(t):
        x = xof(t)
        if lastk[0] != x: a.emit(f'v_readlane_b32 s{S_KW}, v{VT}, {x}')
        lastk[0] = x
    def pk(t):
        kw(t)
        a.emit(f's_add_u32 s4, s{S_KW}, {L.panels_of(t)[0]}')
        for i in range(2): a.emit(f'buffer_load_dwordx4 v[{pkr(t)+4*i}:{pkr(t)+4*i+3}], v{L.VWD+i}, s[{SW}:{SW+3}], s4 offen')
        seq.extend([('P', t)] * 2)
    vmdone = [-1]
    def iw(t):
        if t in pks:
            i = max(i for i, x in enumerate(seq) if x == ('P', t))
            if i > vmdone[0]:
                a.emit(f's_waitcnt vmcnt({min(63, len(seq) - 1 - i)})'); vmdone[0] = i
            for i in range(0 if 'nopw' in DBG else 2): a.emit(f'ds_write_b128 v{20+(slot(t)>>16)}, v[{pkr(t)+4*i}:{pkr(t)+4*i+3}] offset:{(slot(t)&65535)+1024*i}')
            return
        kw(t)
        em(L.issue_w(t, S_WD, slot(t)))
        seq.extend([t] * 2)
    if kind == LSTK == 'wo': lstamp(a, 1)
    CW = [int(x) for x in ENV('CW', '0').split(',')] if P1 else []
    cwk = list(range(NPRE // 2, P1)) + list(range(2 * P1, N)); cwn = [0]
    if sum(CW):
        srd(a, SR, 'w2', 0, 3584 * 2048)
        a.emit(f's_and_b32 s3, s{S_WV}, 3')
        a.emit(f's_lshl2_add_u32 s3, s{S_CU}, s3')
        a.emit('s_lshl_b32 s4, s3, 6')
        a.emit('s_and_b32 s4, s4, 64')
        a.emit('s_lshr_b32 s3, s3, 1')
        a.emit('s_lshl_b32 s3, s3, 11')
        a.emit('s_add_u32 s3, s3, s4')
        a.emit(f's_sub_u32 s4, 384, s{SW}')
        a.emit('s_and_b32 s4, s4, 0x380')
        a.emit(f's_add_u32 s{S_Q}, s3, s4')
        a.emit(f's_bitcmp1_b32 s{S_NT}, 0')
        a.emit(f's_cselect_b32 s3, {P1 << 17}, 0')
        a.emit(f's_add_u32 s{S_T}, s{S_Q}, s3')
        a.emit('s_lshr_b32 s4, s4, 7')
        a.emit(f's_xor_b32 s4, s4, s{S_NT}')
        a.emit('s_bitcmp1_b32 s4, 0')
        a.emit(f's_cselect_b32 s{SR+2}, 0, s{SR+2}')
    def cw(j):
        for k in cwk[cwn[0]:cwn[0] + (CW[j] if j < len(CW) else 0)]:
            a.emit(f's_add_u32 s3, s{S_T if k < P1 else S_Q}, {k << 17}')
            for i in range(2): a.emit(f's_buffer_load_dword s84, s[{SW if k < P1 else SR}:{(SW if k < P1 else SR)+3}], s3 offset:{1024*i}')
            cwn[0] += 1
    def clr(w):
        if DX != 1 or P1 or w != ENV('CLP', 'e'): return
        srd(a, SP, 'ws', WS_XP, 4 * MB)
        a.emit(f's_and_b32 s5, s{S_WV}, 3')
        a.emit(f's_lshl4_add_u32 s6, s{S_MT}, s{S_NT}')
        a.emit('s_lshl2_add_u32 s6, s6, s5')
        a.emit('s_lshl_b32 s6, s6, 12')
        a.emit('s_setprio 3')
        a.emit('v_lshlrev_b32 v3, 4, v1')
        for i in range(4): a.emit(f'v_mov_b32 v{24+i}, -1')
        for i in range(4): a.emit(f'buffer_store_dwordx4 v[24:27], v3, s[{SP}:{SP+3}], s6 offen offset:{1024*i} sc1')
        a.emit('s_setprio 0')
        seq.extend(['C'] * 4)
    clr('a')
    for t in range(NPRE - NPF):
        if kind == 'wo' and t == WE: a.emit('s_barrier')
        iw(t)
    assert kind != 'wo' or WE < NPRE - NPF
    assert kind != 'wo' or ENV('PTQ', '2') != '2' or slot(NPRE - NPF) <= 86016
    clr('b')
    PTH = ENV('PTH', '')
    for t in pks[:NPK - PKA]:
        pk(t)
        if PTH: a.emit(f's_waitcnt vmcnt({PTH})')
    cw(0)
    if kind == 'wo': dep_pre(a, kind, 1, len(seq))
    if kind == 'wo' and CF: a.emit(f's_waitcnt vmcnt({len(seq)})')
    N2 = NPRE - NPF; pref = None
    if SPC:
        N2 = max(N2, int(ENV('N2', '0')), bars[1] + 2); NPRE = int(ENV('N3', '20'))
        assert NPRE <= TF + 21
        def pref():
            a.emit('s_mov_b32 s5, s3')
            if TF >= 0:
                a.emit(f's_waitcnt vmcnt({after(TF + 1)})')
                a.emit('s_barrier')
            for t in range(len(seq) // 2, N2): iw(t)
            a.emit('s_mov_b32 s3, s5')
            a.emit(f's_waitcnt vmcnt({after(bars[1] + 1)})')
    def postf():
        for t in range(N2, NPRE):
            if ot and slot(t) == OHB:
                a.emit(f's_waitcnt vmcnt({after(bars[0] + 1)})')
                a.emit('s_barrier')
            iw(t)
        for t in pks[NPK - PKA:]: pk(t)
    if PW:
        NPRE = int(ENV('NE', '13'))
        assert slot(NPRE) <= OHB - ((8192 if MF else 4096) if ENV('W4', 'a') == 'a' else 0) and bars[1] + 1 < N2
        w0 = after(bars[0] + 1)
        i = len(a.lines)
        for t in range(N2, NPRE): iw(t)
        blk = a.lines[i:]; del a.lines[i:]
        dep_lf(a, w0, blk, after(bars[1] + 1))
    elif ot and EF:
        NE = int(ENV('NE', '14')); NH = int(ENV('NH', str(NE))); NPRE = int(ENV('NGB', '20' if E2 else str(NH)))
        assert slot(NH - 1) < OHB
        dep_ef(a, lambda: [iw(t) for t in range(N2, NE)], lambda: E2 or a.emit(f's_waitcnt vmcnt({after(bars[0] + 1)})'),
               lambda: [iw(t) for t in range(NE, NH)] + [a.emit(f's_waitcnt vmcnt({after(bars[0 if E2 else 1] + 1)}) lgkmcnt(0)')])
        a.emit(f's_mov_b32 s{S_CNT}, 0x100000')
        for t in range(NH, NPRE): iw(t)
    else: dep_wait(a, kind, skip_first=kind == 'wo', preg=lambda: a.emit(f's_waitcnt vmcnt({min(after(bars[2 if SPC else 1 if ot else 0] + 1), 63)}) lgkmcnt(0)'),
             postf=postf, pref=pref, defer=bool(SPC))
    nxt = NPRE
    reg = bars[:bars.index(XS)] if P1 and not DX else bars
    clr('g')
    for j, t in enumerate(reg):
        if (SPC or ot) and j < 1 and not E2: continue
        lim = min(N, (reg[j - 1] if j else -1) + 21)
        PACE = [int(c) for c in ENV('PACE', '064444449' if PW else '')] if P1 else []
        if j < len(PACE): lim = min(lim, nxt + PACE[j])
        PP = int(ENV('PP', '2'))
        pp = min(lim - 1, nxt + PP) if (SPC and t == TG) or (E2 and t == TG2) or (LF2 and P1 and t == int(ENV('TL2', '27'))) else -1
        pe = min(lim - 1, nxt + int(ENV('PE', '0'))) if ot and EF == 1 and t == TG2 else -1
        while nxt < lim:
            if nxt == pp: dep_late(a, kind, 0); seq.append('F')
            if nxt == pe:
                ef_poll(a, 'L_w2_pl', 2, True)
                lstamp(a, 2, True)
            iw(nxt); nxt += 1
            if nxt - 1 in pks: a.emit('s_waitcnt lgkmcnt(0)')
            elif nxt < lim: a.emit(f"s_waitcnt vmcnt({ENV('LTH2', '30') if PW and t >= int(ENV('LT2', '35')) else ENV('LTHR', '4')})")
        cw(j + 1)
        clr(str(j))
        need = [min(N - 1, bars[j + 1] + 1)] if j + 1 < len(bars) else []
        assert all(t < nxt for t in need)
        need = [max(x for x in range(t + 1) if x not in pks) for t in need]
        if P1 and not DX and j == len(reg) - 1:
            srd(a, SP, 'ws', WS_XP, 8 * MB)
            srd(a, SC, 'ws0', WS_FL, FLS)
            a.emit(f's_and_b32 s5, s{S_WV}, 3')
            a.emit(f's_lshl4_add_u32 s6, s{S_MT}, s{S_NT}')
            a.emit('s_lshl2_add_u32 s6, s6, s5')
            a.emit(f's_mul_i32 s8, s6, {CH}')
            a.emit('s_add_u32 s9, s8, 4096')
            a.emit(f's_add_u32 s7, s{S_LAYER}, 4')
            a.emit('s_lshl_b32 s7, s7, 10')
            a.emit('s_add_u32 s6, s6, s7')
            a.emit('s_lshl_b32 s6, s6, 6')
            a.emit('s_xor_b32 s7, s6, 256')
            a.emit(f's_mul_i32 s5, s5, {CH}')
            a.emit(f's_add_u32 s5, s5, {XB}')
            a.emit('v_lshlrev_b32 v3, 4, v1')
            a.emit('v_add_u32 v2, s5, v3')
            a.emit('v_mov_b32 v4, 1')
            a.emit(f's_mov_b32 s{S_CNT}, 0x100000')
        if pp >= 0: dep_late(a, kind, 1, after('F'))
        if P1 and DX == 2 and t == XS:
            srd(a, SC, 'ws0', WS_FL, FLS)
            a.emit(f's_lshl4_add_u32 s6, s{S_MT}, s{S_NT}')
            a.emit('s_xor_b32 s6, s6, 1')
            a.emit(f's_add_u32 s7, s{S_LAYER}, 4')
            a.emit('s_lshl_b32 s7, s7, 8')
            a.emit('s_add_u32 s6, s6, s7')
            a.emit(f's_lshl_b32 s{S_Q if ZD else 6}, s6, 8')
            a.emit('v_and_b32 v2, 3, v1')
            a.emit(f'v_lshlrev_b32 v{30 if ZD else 2}, 6, v2')
            a.emit(f's_mov_b32 s{S_CNT}, 0x100000')
            if ZD: need = []; assert nxt == N and (ZD == 'a' or XS >= 44)
        if P1 and DX == 2 and t == ZS:
            if ZD:
                if ENV('ZDP'): a.emit(f"s_setprio {ENV('ZDP')}")
                a.emit(f's_cmp_eq_u32 s{S_LAYER}, 0')
                a.emit(f's_cbranch_scc1 L_{kind}_zskip')
                if ENV('WBE'):
                    a.emit(f"s_and_b32 s3, s{S_CU}, {ENV('WBE')}")
                    a.emit(f's_lshl3_add_u32 s3, s3, s{S_WV}')
                    a.emit('s_cmp_lg_u32 s3, 5')
                    a.emit('s_cbranch_scc1 L_w2_nowbe')
                    a.emit('buffer_wbl2 sc1')
                    a.emit('s_barrier')
                    a.emit('s_endpgm')
                    a.label('L_w2_nowbe')
            xpoll(a, f'L_{kind}_x', SC, S_Q if ZD else 6, 30 if ZD else 2, 5)
        if kind == 'wo' and WD in ('b', 'c') and j == len(reg) - 1: assert reg[j - 1] >= 2; break
        a.emit(f's_waitcnt vmcnt({min(63, min(after(t) for t in need)) if need else 0})')
        if not ('nobar2' in DBG and P1 and 1 < j < len(bars) - 1): a.emit('s_barrier')
    if P1 and ZD: a.label(f'L_{kind}_zskip')
    assert nxt == N and (ENV('LATE_W1', '2') == '2' or (kind == 'w2' or bars[-1] >= 9) and 'w1' in OT) and ENV('LATE_ATTN', '2') == '2'
    clr('e')
    if not P1 and WD not in ('b', 'c'): a.emit('s_waitcnt vmcnt(0)')
    if P1 and not DX:
        XL = ENV('LST') == 'x'
        a.emit('s_setprio 3')
        a.emit('s_waitcnt vmcnt(0) lgkmcnt(0)')
        a.emit('s_barrier')
        for i in range(NXC): a.emit(f'ds_read_b128 v[{32+4*i}:{35+4*i}], v2 offset:{1024*i}')
        for i in range(NXC):
            a.emit(f's_waitcnt lgkmcnt({NXC-1-i})')
            if 'noxs' not in DBG: a.emit(f'buffer_store_dwordx4 v[{32+4*i}:{35+4*i}], v3, s[{SP}:{SP+3}], s{8+(i>>2)} offen offset:{1024*(i&3)} sc1')
        if XL: lstamp(a, 0)
        a.emit(f's_xor_b32 s8, s8, {4*CH}')
        a.emit(f's_xor_b32 s9, s9, {4*CH}')
        a.emit('s_mov_b64 exec, 1')
        a.emit('s_waitcnt vmcnt(0)')
        a.emit(f'buffer_store_dword v4, off, s[{SC}:{SC+3}], s6 sc1')
        if XL: lstamp(a, 1)
        if PS: a.emit('s_barrier')
        if 'nopoll' in DBG: a.emit(f's_branch L_{kind}_xgo')
        a.label(f'L_{kind}_xpoll')
        a.emit(f'buffer_load_dword v5, off, s[{SC}:{SC+3}], s7 sc1')
        a.emit(f's_sub_u32 s{S_CNT}, s{S_CNT}, 1')
        a.emit(f's_cbranch_scc1 L_{kind}_xgo')
        a.emit('s_waitcnt vmcnt(0)')
        a.emit('v_cmp_ne_u32 vcc, 1, v5')
        a.emit(f's_cbranch_vccnz L_{kind}_xpoll')
        a.label(f'L_{kind}_xgo')
        a.emit('s_mov_b64 exec, -1')
        a.emit('s_mov_b32 m0, s5')
        if XL: lstamp(a, 2)
        for i in range(NXC):
            if i == 4: a.emit('s_add_u32 m0, s5, 4096')
            if not i & 3: a.emit('s_nop 0')
            if 'noxl' not in DBG: a.emit(f'buffer_load_dwordx4 v3, s[{SP}:{SP+3}], s{8+(i>>2)} offen offset:{1024*(i&3)} lds')
        a.emit('s_waitcnt vmcnt(0)')
        if XL: lstamp(a, 3)
        a.emit('s_setprio 0')
        a.emit('s_barrier')
    loader_end(a, kind)
    if OH and P1:
        a.label('L_w2_wb')
        a.emit('buffer_wbl2 sc1')
        a.emit('s_waitcnt vmcnt(0)')
        if PW:
            a.emit(f's_mov_b64 exec, {(1 << REP) - 1:#x}')
            a.emit(f'buffer_store_dword v3, v11, s[{SO}:{SO+3}], s{S_FL} offen sc1')
        a.emit('s_branch L_w2_wbd')
    a.label(end)
    a.emit('s_endpgm')
    loader_first(a, kind)
    if SPC or PW:
        i = a.lines.index(f'  s_cbranch_scc1 L_{kind}_compute')
        del a.lines[i - 1:i + 1]
    a.label(f'L_{kind}_c1')
    return 163840
```

```python
from common import *

T4 = ENV('T4', '1') == '1'
OBAR = ENV('OBAR', '0') == '1'
def big_loop(a, tag, N, S, STAGE, naddr, VB, VA, reads, mf, variants=None, select=None, post=None, ot=None, mid=(), halo=None, hooks=None):
    def addr():
        o = [f'v_add_u32_e64 v{VA+i}, s{S_SLOT}, v{VB+i}' for i in range(naddr)]
        o += [f's_add_u32 s{S_SLOT}, s{S_SLOT}, {STAGE}', f's_cmp_eq_u32 s{S_SLOT}, {S*STAGE}', f's_cselect_b32 s{S_SLOT}, 0, s{S_SLOT}']
        return o
    a.emit(f's_mov_b32 s{S_SLOT}, 0')
    for x in addr(): a.emit(x)
    if halo:
        if hooks: own_pos(a, S_CNT)
        else: a.emit(f's_mov_b32 s{S_CNT}, {N}')
        if hooks: a.emit(f's_mul_i32 s{S_T}, s{S_LAYER}, {len(hooks)}')
        a.emit(f's_cmp_eq_u32 s{S_LAYER}, 0')
        a.emit(f's_cbranch_scc1 L_{tag}_nog')
    a.emit(f's_mov_b32 s{S_CNT}, {N - 1 if ot else N}')
    if ot:
        rd = (lambda s, ks: reads(s, ks, False)) if halo else reads
        for x in rd(0, 0): a.emit(x)
        a.emit('s_waitcnt lgkmcnt(0)')
        if LF1 and tag == 'w1':
            SH0, SH1 = [int(x) for x in ENV('SH', '18,3').split(',')]
            sd = rd(1, 1) + addr()
            for i, x in enumerate(ot(0)):
                a.emit(x)
                if i < len(sd): a.emit(sd[i])
                a.lines += ['@S'] * (1 if i < SH0 else SH1 if i >= len(sd) else 0)
            a.emit('s_waitcnt lgkmcnt(0)')
            for x in ot(1): a.emit(x); a.lines += ['@S'] * SH1
            assert mid[SH0].split()[0] not in ('s_addc_u32', 's_cselect_b32')
            while len(mid) > 1: a.lines[a.lines.index('@S')] = mid.pop(0)
        else:
            interleave(a, ot(0), rd(1, 1) + addr(), lead=1, per=1)
            a.emit('s_waitcnt lgkmcnt(0)')
            for x in ot(1): a.emit(x)
    if halo:
        a.emit('s_barrier')
        for x in halo[0]: a.emit(x)
        a.label(f'L_{tag}_nog')
    else:
        import pads
        for x in pads.chain('hv'): a.emit(x)
        MG = int(ENV('MG', '0'))
        if LF2 == 2: MG = len(mid) - 1
        a.lines += mid[:MG] + ['@W2G'] * (LF2 == 2); mid = mid[MG:]
        if ENV('S1') == 'a': stamp(a, 1)
        if not LF1: gbar(a, tag)
        if ENV('S1') == 'b': stamp(a, 1)
    a.lines += mid
    if ENV('S1') == 'c': stamp(a, 1)
    if halo: a.emit(f's_cmp_eq_u32 s{S_LAYER}, 0')
    a.emit('s_barrier')
    if not ENV('S1') or halo: stamp(a, 1)
    if halo:
        a.emit(f's_cbranch_scc1 L_{tag}_first')
        for x in halo[1] + reads(0, 0): a.emit(x)
        a.emit('s_waitcnt lgkmcnt(15)')
        for x in halo[2]: a.emit(x)
        a.emit('s_waitcnt lgkmcnt(0)')
        a.emit(f's_branch L_{tag}_loop')
        a.label(f'L_{tag}_first')
        if not DS: a.emit(f's_load_dwordx2 s[{SC}:{SC+1}], s[0:1], 72')
    for x in reads(0, 0): a.emit(x)
    a.emit('s_waitcnt lgkmcnt(0)')
    def loop(nm, m):
        la = int(ENV('LA_' + tag.upper(), '4'))
        w = a.lines.pop()
        assert w.split()[0] in ('s_waitcnt', 's_cbranch_scc1', 's_branch')
        a('.p2align 5')
        for _ in range(la - 1): a.emit('s_nop 0')
        a.lines.append(w)
        a.label(f'L_{tag}_loop{nm}')
        ad = addr()
        ad[-1] += f'\n  s_sub_u32 s{S_CNT}, s{S_CNT}, 1'
        interleave(a, m(0), reads(1, 1) + ad, lead=1, per=1)
        a.emit('s_waitcnt lgkmcnt(0)')
        a.emit('s_barrier')
        interleave(a, m(1), reads(0, 0) + [f's_cmp_lg_u32 s{S_CNT}, 0\n  s_nop 0'], lead=1, per=1)
        a.emit('s_waitcnt lgkmcnt(0)')
        a.emit(f's_cbranch_scc1 L_{tag}_loop{nm}')
    if variants:
        select()
        vs = list(variants.items())
        for i, (nm, m) in enumerate(vs):
            loop(nm, m)
            if i + 1 < len(vs): a.emit(f's_branch L_{tag}_post')
        a.label(f'L_{tag}_post')
        post()
        a.emit(f's_branch L_{tag}_exit')
    if hooks and PO0 == 0:
        a.emit(f's_cmp_eq_u32 s{S_CNT}, 0')
        a.emit(f's_cbranch_scc1 L_{tag}_lend')
    loop('', mf)
    a.label(f'L_{tag}_lend')
    if hooks:
        a.emit(f's_add_u32 s{S_T}, s{S_T}, 1')
        a.emit(f's_cmp_gt_u32 s{S_T}, {len(hooks)}')
        a.emit(f's_cbranch_scc1 L_{tag}_exit')
        for i, (t, code) in enumerate(hooks):
            if i + 1 < len(hooks):
                a.emit(f's_cmp_lg_u32 s{S_T}, {i + 1}')
                a.emit(f's_cbranch_scc1 L_{tag}_hook{i}')
            t2 = hooks[i + 1][0] if i + 1 < len(hooks) else N
            if t < 0 <= t2:
                own_pos(a, S_CNT)
                a.emit(f's_sub_u32 s{S_CNT}, {t2 + t + 1}, s{S_CNT}')
                assert t2 + t + 1 > PO0 + POM
            else: a.emit(f's_mov_b32 s{S_CNT}, {abs(t2 - t)}')
            for x in code: a.emit(x)
            a.emit(f's_branch L_{tag}_loop')
            if i + 1 < len(hooks): a.label(f'L_{tag}_hook{i}')
    a.label(f'L_{tag}_exit')
    stamp(a, 2)

def stats_loads(a, vd, halo):
    a.emit(f's_and_b32 s3, s{S_WV}, 3')
    a.emit(f's_lshl_b32 s4, s{S_MT}, 7')
    a.emit('s_lshl_b32 s5, s3, 6')
    a.emit('s_add_u32 s5, s5, s4')
    a.emit('v_add_u32 v2, s5, v1')
    a.emit('s_sub_u32 s4, s4, 16')
    a.emit('v_and_b32 v3, 15, v1')
    a.emit('v_add_u32 v3, s4, v3')
    a.emit('v_max_i32 v3, 0, v3')
    a.emit('s_cmp_ge_u32 s3, 2')
    a.emit('s_cselect_b64 vcc, -1, 0')
    a.emit('v_cndmask_b32 v2, v2, v3, vcc')
    a.emit('v_lshlrev_b32 v2, 3, v2')
    a.emit('s_mov_b32 s3, 0')
    for j in range(16):
        a.emit(f'buffer_load_dwordx2 v[{vd+2*j}:{vd+2*j+1}], v2, s[{ST}:{ST+3}], s3 offen')
        if j < 15: a.emit('s_add_u32 s3, s3, 16384')
    return 16

def stats_finish(a, vs):
    a.emit(f'v_mul_f32 v{vs}, 0x3a800000, v{vs}')
    a.emit(f'v_mul_f32 v{vs+1}, 0x3a800000, v{vs+1}')
    a.emit(f'v_fma_f32 v{vs+1}, -v{vs}, v{vs}, v{vs+1}')
    a.emit(f'v_max_f32 v{vs+1}, 0, v{vs+1}')
    a.emit(f'v_add_f32 v{vs+1}, 0x3727c5ac, v{vs+1}')
    a.emit(f'v_rsq_f32 v{vs+1}, v{vs+1}')
    a.emit('s_nop 0')

def stats_reduce_store(a, vd, LST):
    for j in range(1, 8):
        a.emit(f'v_add_f32 v{vd}, v{vd}, v{vd+2*j}')
        a.emit(f'v_add_f32 v{vd+1}, v{vd+1}, v{vd+2*j+1}')
        a.emit(f'v_add_f32 v{vd+16}, v{vd+16}, v{vd+16+2*j}')
        a.emit(f'v_add_f32 v{vd+17}, v{vd+17}, v{vd+17+2*j}')
    a.emit(f'v_add_f32 v{vd}, v{vd}, v{vd+16}')
    a.emit(f'v_add_f32 v{vd+1}, v{vd+1}, v{vd+17}')
    stats_finish(a, vd)
    a.emit(f's_and_b32 s3, s{S_WV}, 3')
    a.emit('s_lshl_b32 s5, s3, 6')
    a.emit('s_add_u32 s5, s5, 16')
    a.emit('v_add_u32 v2, s5, v1')
    a.emit('v_and_b32 v3, 15, v1')
    a.emit('s_cmp_ge_u32 s3, 2')
    a.emit('s_cselect_b64 vcc, -1, 0')
    a.emit('v_cndmask_b32 v2, v2, v3, vcc')
    a.emit('v_lshlrev_b32 v2, 2, v2')
    a.emit(f'v_add_u32 v2, {LST}, v2')
    a.emit(f'ds_write2_b32 v2, v{vd}, v{vd+1} offset0:0 offset1:160')

VST, VSH, VCS, VBI = 18, 19, 22, 23
def stats4_setup(a, halo):
    a.emit(f's_and_b32 s3, s{S_WV}, 3')
    a.emit(f's_lshl2_add_u32 s4, s{S_MT}, s3')
    a.emit('s_lshl_b32 s4, s4, 8')
    a.emit('v_lshrrev_b32 v2, 4, v1')
    a.emit('v_and_b32 v3, 15, v1')
    a.emit('v_lshl_add_u32 v3, v3, 4, s4')
    a.emit(f'v_lshl_add_u32 v{VST}, v2, 14, v3')
    if halo:
        a.emit(f's_lshl_b32 s4, s{S_MT}, 5')
        a.emit('s_add_u32 s4, s4, s3')
        a.emit('s_sub_u32 s4, s4, 4')
        a.emit('s_max_i32 s4, s4, 0')
        a.emit('s_lshl_b32 s4, s4, 5')
        a.emit('v_lshrrev_b32 v2, 2, v1')
        a.emit('v_and_b32 v3, 3, v1')
        a.emit('v_lshl_add_u32 v3, v3, 3, s4')
        a.emit(f'v_lshl_add_u32 v{VSH}, v2, 14, v3')

def quad_loads(vd, vo, sd):
    o = []
    for j in range(4):
        if j: o.append(f's_mov_b32 s3, {j << 16}')
        o.append(f'buffer_load_dwordx4 v[{vd+4*j}:{vd+4*j+3}], v{vo}, s[{sd}:{sd+3}], {"s3" if j else 0} offen')
    return o

def stats4_loads(vd, halo):
    return quad_loads(vd, VST, ST) + ([f'buffer_load_dwordx2 v[{vd+16}:{vd+17}], v{VSH}, s[{ST}:{ST+3}], 0 offen'] if halo else [])

def quad_sum(a, vd):
    pk = lambda d, s: a.emit(f'v_pk_add_f32 v[{d}:{d+1}], v[{d}:{d+1}], v[{s}:{s+1}]')
    pk(vd, vd + 4); pk(vd + 2, vd + 6); pk(vd + 8, vd + 12); pk(vd + 10, vd + 14); pk(vd, vd + 8); pk(vd + 2, vd + 10)
    a.emit('s_nop 1')
    a.emit(f'v_permlane32_swap_b32 v{vd}, v{vd+2}')
    a.emit(f'v_permlane32_swap_b32 v{vd+1}, v{vd+3}')
    pk(vd, vd + 2)

def nan_chk(a, lab, halo):
    def chk():
        a.emit('v_cmp_u_f32 vcc, v32, v33')
        if halo:
            a.emit('v_cmp_u_f32 s[4:5], v48, v49')
            a.emit('s_or_b64 s[4:5], vcc, s[4:5]')
            a.emit(f's_cbranch_scc0 {lab}ok')
        else: a.emit(f's_cbranch_vccz {lab}ok')
        a.emit(f's_sub_u32 s{S_CNT}, s{S_CNT}, 1')
        a.emit(f's_cbranch_scc1 {lab}ok')
        for x in stats4_loads(32, halo): a.emit(x + (' sc1' if x.startswith('buf') else ''))
        a.emit('s_waitcnt vmcnt(0)')
        a.emit(f's_branch {lab}chk')
        a.label(f'{lab}ok')
    a.emit(f's_mov_b32 s{S_CNT}, 0x4000')
    a.label(f'{lab}chk')
    return chk

def stats4_store(a, vd, LST, halo, chk=None):
    quad_sum(a, vd)
    if chk: chk()
    def allsum(r, op):
        a.emit(f'v_mov_b32 v{r+2}, v{r}')
        a.emit(f'v_mov_b32 v{r+3}, v{r+1}')
        a.emit('s_nop 0')
        a.emit(f'v_permlane{op}_swap_b32 v{r}, v{r+2}')
        a.emit(f'v_permlane{op}_swap_b32 v{r+1}, v{r+3}')
        a.emit(f'v_pk_add_f32 v[{r}:{r+1}], v[{r}:{r+1}], v[{r+2}:{r+3}]')
    allsum(vd, 16)
    stats_finish(a, vd)
    a.emit(f's_and_b32 s3, s{S_WV}, 3')
    a.emit('s_lshl_b32 s5, s3, 7')
    a.emit(f's_add_u32 s5, s5, {LST + 64}')
    a.emit('v_and_b32 v3, 15, v1')
    a.emit('v_lshrrev_b32 v2, 5, v1')
    a.emit('v_lshl_add_u32 v2, v3, 1, v2')
    a.emit('v_lshl_add_u32 v2, v2, 2, s5')
    a.emit(f'ds_write2_b32 v2, v{vd}, v{vd+1} offset0:0 offset1:160')
    if halo:
        h = vd + 16
        allsum(h, 32); allsum(h, 16)
        for r in (8, 4):
            a.emit('s_nop 1')
            for i in range(2): a.emit(f'v_add_f32_dpp v{h+i}, v{h+i}, v{h+i} row_ror:{r} row_mask:0xf bank_mask:0xf')
        stats_finish(a, h)
        a.emit('s_lshl_b32 s5, s3, 4')
        a.emit(f's_add_u32 s5, s5, {LST}')
        a.emit('v_and_b32 v3, 3, v1')
        a.emit('v_lshl_add_u32 v2, v3, 2, s5')
        a.emit(f'ds_write2_b32 v2, v{h}, v{h+1} offset0:0 offset1:160')

def gen_w1(a, tsidx, side, cs=(16, 16384, 0)):
    kind = 'w1'
    K = 1024; lda2 = 2048; ldw2 = 7168; ldo2 = 7168
    ot = kind in OT
    S = 3; LM = int(ENV('LM_W1', '2' if ot else '3'))
    STAGE = 16384 + 4 * 8192
    o2 = 'w2' in OT
    assert LM == 2 or not o2
    LST = OHB - 4096 if o2 else S * STAGE
    LCS = LST + 1280
    N = 16
    body = f'L_{kind}_body'; end = f'L_{kind}_end'
    VB, VA, VO = 4, 20, 12
    F = [32, 80]; ACC = 128
    acc = lambda jn, jm: ACC + (jn * 4 + jm) * 4
    fx = lambda s, jm: F[s] + jm * 4
    fw = lambda s, jn: F[s] + 16 + jn * 4
    a.label(f'L_{kind}_c0')
    if not MEGA: stub(a, f'{kind}l0_kernel', body, 0, tsidx, True)
    a.label(body)
    tile_map(a, LM, end)
    a.emit(f's_cmp_ge_u32 s{S_WV}, 4')
    a.emit(f's_cbranch_scc1 L_{kind}_loader')
    if ot and OBAR: a.emit('s_barrier')
    if NV:
        from gemm64y import w2_pre, w2_early
        w2_pre(a)
        tile_map(a, LM, None)
    a.emit(f's_and_b32 s{S_WM}, s{S_WV}, 1')
    a.emit(f's_lshr_b32 s{S_WN}, s{S_WV}, 1')
    a.emit('v_and_b32 v3, 15, v1')
    a.emit('v_lshrrev_b32 v2, 4, v1')
    a.emit(f's_lshl_b32 s8, s{S_WM}, 13')
    a.emit(f'v_lshl_add_u32 v{VB}, v1, 4, s8')
    nr = kind in NS and NSR
    wbase(a, 13, 17, nr=nr)
    a.emit(f's_lshl_b32 s9, s{S_WN}, 6')
    a.emit('v_xor_b32 v13, s9, v13')
    a.emit(f'v_add_u32 v{VB+1}, 16384, v13')
    a.emit(f'v_xor_b32 v{VB+2}, 32, v{VB+1}')
    a.emit('v_and_b32 v16, 1, v2')
    a.emit('v_lshrrev_b32 v17, 1, v2')
    if nr: a.emit('v_lshrrev_b32 v13, 2, v1')
    else:
        a.emit('v_bfe_u32 v13, v1, 2, 2')
        a.emit('v_lshl_add_u32 v13, v16, 3, v13')
        a.emit('v_lshl_add_u32 v13, v17, 5, v13')
    n2 = 'w2' in NS
    if n2:
        a.emit('v_and_b32 v14, 1, v1')
        a.emit('v_lshl_add_u32 v13, v13, 1, v14')
        a.emit(f'v_xor_b32 v14, s{S_WN}, v16')
        a.emit('v_lshl_add_u32 v13, v13, 1, v14')
        a.emit('v_bfe_u32 v14, v1, 1, 1')
        a.emit('v_lshl_add_u32 v13, v13, 1, v14')
    else:
        a.emit(f'v_xor_b32 v14, s{S_WN}, v16')
        a.emit('v_lshl_add_u32 v13, v13, 1, v14')
        a.emit('v_and_b32 v14, 3, v1')
        a.emit('v_lshl_add_u32 v13, v13, 2, v14')
    a.emit('v_lshlrev_b32 v13, 3, v13')
    a.emit(f'v_add_u32 v{VB+3}, {16384 + 3 * 8192}, v13')
    i0 = len(a.lines)
    a.emit(f's_lshl_b32 s8, s{S_MT}, 7')
    a.emit(f's_lshl_b32 s9, s{S_WM}, 6')
    a.emit('s_add_u32 s8, s8, s9')
    a.emit(f's_mul_i32 s8, s8, {ldo2}')
    a.emit('v_lshlrev_b32 v14, 8, v17')
    a.emit('v_lshl_add_u32 v14, v3, 4, v14')
    if o2:
        a.emit(f's_lshl3_add_u32 s9, s{S_WM}, s{S_WN}')
        a.emit('s_lshl_b32 s9, s9, 10')
        a.emit(f's_add_u32 s9, s9, {OHB}')
        if n2: a.emit('v_lshl_add_u32 v18, v1, 4, s9')
        else:
            a.emit('v_lshl_add_u32 v18, v16, 9, v14')
            a.emit('v_add_u32 v18, s9, v18')
        srd(a, SB, 'b2', 0, 2048)
        a.emit(f's_lshr_b32 s9, s{S_NT}, 3')
        a.emit(f's_and_b32 s10, s{S_NT}, 7')
        a.emit('s_lshl1_add_u32 s9, s10, s9')
        a.emit('s_lshl_b32 s9, s9, 7')
        a.emit('v_lshl_add_u32 v19, v2, 3, s9')
    a.emit('v_add_u32 v14, s8, v14')
    a.emit(f's_lshl_b32 s10, s{S_NT}, 11')
    a.emit(f's_lshl_b32 s9, s{S_WN}, 10')
    a.emit('s_add_u32 s9, s9, s10')
    a.emit(f'v_lshl_add_u32 v{VO}, v1, 4, s8' if n2 else f'v_lshl_add_u32 v{VO}, v16, 9, v14')
    a.emit(f'v_add_u32 v{VO}, s9, v{VO}')
    if n2: a.emit('v_lshl_add_u32 v17, v16, 2, v17')
    a.emit(f'v_mul_u32_u24 v16, {16*ldo2}, v16')
    a.emit('s_lshr_b32 s9, s9, 1')
    a.emit(f'v_add3_u32 v{VO+1}, v16, v14, s9')
    a.emit(f's_lshl_b32 s9, s{S_WM}, 8')
    a.emit(f's_add_u32 s9, s9, {LST + 64}')
    a.emit('v_lshl_add_u32 v14, v3, 2, s9')
    a.emit(f's_lshl_b32 s9, s{S_WN}, 7')
    a.emit(f's_add_u32 s9, s9, {LCS}')
    a.emit('v_lshl_add_u32 v15, v2, 4, s9')
    a.emit(f's_lshl_b32 s9, s{S_WN}, {5 if n2 else 6}')
    a.emit(f's_add_u32 s9, s9, {LCS}')
    a.emit(f'v_lshl_add_u32 v16, v{17 if n2 else 2}, 4, s9')
    if OH: a.emit(f'v_mov_b32 v17, {LST}')
    for i in range(0 if ot else 112): a.emit(f'v_mov_b32 v{ACC+i}, 0')
    if not MEGA: a.emit('s_waitcnt lgkmcnt(0)')
    srd(a, SO, ENV('HB', 'ws'), WS_H, 2048 * 7168)
    HC = ENV('HC', '')
    if HC:
        G_ = int(ENV('HCG', '6'))
        a.emit('v_lshrrev_b32 v26, 4, v1')
        a.emit(f'v_mul_u32_u24 v26, {16*ldo2}, v26')
        a.emit('v_lshl_add_u32 v26, v3, 6, v26')
        if G_ == 7: a.emit('v_and_b32 v26, 0xffffff80, v26')
        a.emit(f's_lshl1_add_u32 s3, s{S_NT}, s{S_WN}')
        a.emit('s_lshl_b32 s4, s3, 9')
        a.emit('s_add_u32 s4, s4, s8')
        a.emit('s_add_u32 s4, s4, 32768')
        a.emit('s_lshl_b32 s3, s3, 10')
        a.emit('s_add_u32 s3, s3, s10')
        a.emit('s_add_u32 s3, s3, s8')
        a.emit(f's_add_u32 s3, s3, {48 * 1024}')
        a.emit('v_and_b32 v27, 0xfffffdff, v26')
        op = 'load' if 'l' in HC else 'store'; fl = ' sc1' if '1' in HC else ''
        a.emit(f'buffer_{op}_dword v28, v26, s[{SO}:{SO+3}], s3 offen{fl}')
        a.emit(f'buffer_{op}_dword v29, v26, s[{SO}:{SO+3}], s3 offen offset:2048{fl}')
        a.emit(f'buffer_{op}_dword v30, v27, s[{SO}:{SO+3}], s4 offen{fl}')
    if ENV('HS'):
        a.emit(f"s_and_b32 s3, s2, {ENV('HS')}")
        a.emit(f's_cselect_b32 s{SO+2}, 0, s{SO+2}')
    if not ot: code_touch(a, 'L_w2_c0', 'L_w2_c1', 192 if SPX else 128)
    PW = LF2 == 2
    if PW: a.lines.append('@W2A')
    mid = []
    if ot: mid = a.lines[i0:]; del a.lines[i0:]
    def reads(s, ks):
        o = []
        if 'noread' in DBG: return o
        for jm in range(4):
            o.append(f'ds_read_b128 v[{fx(s,jm)}:{fx(s,jm)+3}], v{VA} offset:{jm*2048+ks*1024}')
        for jn in range(7):
            for h in range(2):
                r = fw(s, jn) + 2 * h
                o.append(f'ds_read_b64_tr_b16 v[{r}:{r+1}], v{VA+1+(jn&1 if jn < 6 else 2)} offset:{((jn>>1)*8192 if jn < 6 else 0)+h*(2048 if nr else 512 if jn < 6 else 256)+ks*4096}')
        return o
    def mf(s):
        o = []
        if 'nomfma' in DBG: return ['s_nop 0']
        for jn, jm in mf_order(7, 4):
            if True:
                c = acc(jn, jm)
                o.append(f'v_mfma_f32_16x16x32_bf16 v[{c}:{c+3}], v[{fw(s,jn)}:{fw(s,jn)+3}], v[{fx(s,jm)}:{fx(s,jm)+3}], v[{c}:{c+3}]')
        return o
    zc = lambda x: x[:x.rindex(',')] + ', 0'
    big_loop(a, kind, N, S, STAGE, 4, VB, VA, reads, mf, ot=(lambda s: mf(1) if s else [zc(x) for x in mf(0)]) if ot else None, mid=mid)
    if ENV('XSE'): a.emit(f"s_sleep {ENV('XSE')}")
    CS = 32; BI = 60; STT = 88; CK = 96; T = 100; D = 108
    for jm in range(4):
        a.emit(f'ds_read2_b32 v[{STT+2*jm}:{STT+2*jm+1}], v14 offset0:{16*jm} offset1:{160+16*jm}')
    for jn in range(0 if 'nofold' in DBG else 7):
        a.emit(f'ds_read_b128 v[{CS+4*jn}:{CS+4*jn+3}], v{15 if jn < 6 else 16} offset:{(jn>>1)*256+(jn&1)*64}')
        a.emit(f'ds_read_b128 v[{BI+4*jn}:{BI+4*jn+3}], v{15 if jn < 6 else 16} offset:{1024+(jn>>1)*256+(jn&1)*64}')
    if HC: a.emit('s_waitcnt vmcnt(0)')
    if OH: a.emit('ds_read_b32 v17, v17')
    for jn in range(4 if o2 else 0):
        a.emit(f'buffer_load_dwordx2 v[{OBIA[jn]}:{OBIA[jn]+1}], v19, s[{SB}:{SB+3}], 0 offen offset:{jn*32}')
    c0 = -2.0 * 0.7978845608028654 * 1.4426950408889634
    c1 = c0 * 0.044715
    a.emit(f'v_mov_b32 v{CK}, {f2u(c0):#x}')
    a.emit(f'v_mov_b32 v{CK+1}, {f2u(c1):#x}')
    a.emit(f'v_mov_b32 v{CK+2}, 1.0')
    a.emit('s_waitcnt lgkmcnt(0)')
    if OH: a.emit(f'v_readfirstlane_b32 s{S_T}, v17')
    for jm in range(4):
        a.emit(f'v_mul_f32 v{STT+2*jm}, v{STT+2*jm}, v{STT+2*jm+1}')
    if OH:
        a.emit(f's_cmp_lg_u32 s{S_T}, 0')
        a.emit(f's_cselect_b32 s{S_T}, {HALT}, 0')
        a.emit(f's_add_u32 s{SO}, s{SO}, s{S_T}')
        a.emit(f's_addc_u32 s{SO+1}, s{SO+1}, 0')
        for r in (SX, SC) if PW else ():
            a.emit(f's_add_u32 s{r}, s{r}, s{S_T}')
            a.emit(f's_addc_u32 s{r+1}, s{r+1}, 0')
    def tile_math(jn, jm, d):
        c = acc(jn, jm)
        seqs = []
        ST2 = f'v[{STT+2*jm}:{STT+2*jm+1}]'
        for q in range(2):
            x = c + 2 * q; t = T + 2 * q + 4 * (jn & 1)
            X = f'v[{x}:{x+1}]'; TT = f'v[{t}:{t+1}]'
            seqs.append([
              f'v_pk_fma_f32 {TT}, v[{CS+4*jn+2*q}:{CS+4*jn+2*q+1}], {ST2}, v[{BI+4*jn+2*q}:{BI+4*jn+2*q+1}] op_sel:[0,0,0] op_sel_hi:[1,0,1] neg_lo:[0,1,0] neg_hi:[0,1,0]',
              f'v_pk_fma_f32 {X}, {X}, {ST2}, {TT} op_sel:[0,1,0] op_sel_hi:[1,1,1]',
              f'v_pk_mul_f32 {TT}, {X}, {X}',
              f'v_pk_fma_f32 {TT}, {TT}, v[{CK}:{CK+1}], v[{CK}:{CK+1}] op_sel:[0,1,0] op_sel_hi:[1,1,0]',
              f'v_pk_mul_f32 {TT}, {TT}, {X}',
              f'v_exp_f32 v{t}, v{t}\n  v_exp_f32 v{t+1}, v{t+1}',
              f'v_pk_add_f32 {TT}, {TT}, v[{CK+2}:{CK+3}] op_sel_hi:[1,0]',
              f'v_rcp_f32 v{t}, v{t}\n  v_rcp_f32 v{t+1}, v{t+1}',
              f'v_pk_mul_f32 {X}, {X}, {TT}',
              f'v_cvt_pk_bf16_f32 v{d+q}, v{x}, v{x+1}'])
        if 'nofold' in DBG: seqs = [q[2:] for q in seqs]
        if 'nofold1' in DBG: seqs = [q[1:] for q in seqs]
        if 'nogelu' in DBG: seqs = [q[:2] + q[-1:] for q in seqs]
        if 'halfgelu' in DBG: seqs = [q[:2] + q[5:6] + q[-2:] for q in seqs]
        for ia, ib in zip(*seqs):
            a.emit(ia); a.emit(ib)
    cnt = [0]
    def pair(t0, t1, vo, soff, big=False):
        d = D + 4 * (cnt[0] % 4); cnt[0] += 1
        tile_math(*t0, d); tile_math(*t1, d + 2)
        a.emit(f's_add_u32 s3, s10, {soff}' if big else f's_mov_b32 s3, {soff}')
        if not n2 or t0[0] == 6:
            a.emit('s_nop 0')
            a.emit(f'v_permlane16_swap_b32 v{d}, v{d+2}')
            a.emit(f'v_permlane16_swap_b32 v{d+1}, v{d+3}')
        a.emit(f'buffer_store_dwordx4 v[{d}:{d+3}], v{vo}, s[{SO}:{SO+3}], s3 offen' + (stf(kind) if str(t0[0] // 2) in ENV('WTP', '013' if OH else '0123') else ' ' + ENV('WTQ', '')))
        if o2 and t0[0] < 6: a.emit(f'ds_write_b128 v18, v[{d}:{d+3}] offset:{(t0[0] // 2 + 2) % 3 * 16384 + t0[1] * 2048}')
    pr = lambda p, jm: pair((2 * p, jm), (2 * p + 1, jm), VO, jm * 16 * ldo2 + ((16 + 32 * p) if OH == 2 else (46 + 2 * p)) * 1024 * (p > 0), p > 0 and OH != 2)
    od = lambda jm: pair((6, jm), (6, jm + 1), VO + 1, jm * 16 * ldo2 + 32768)
    order = [lambda jm=jm: pr(0, jm) for jm in range(4)] + [lambda: od(0), lambda: od(2)] + [lambda jm=jm, p=p: pr(p, jm) for jm in range(4) for p in (1, 2)]
    if OH:
        order = []
        for c in ENV('ORD', '0312'): order += [lambda: od(0), lambda: od(2)] if c == '3' else [lambda jm=jm, p=int(c): pr(p, jm) for jm in range(4)]
    EW = int(ENV('EW', '10'))
    if EF: order = [lambda: od(0), lambda: od(2)] + [lambda jm=jm, p=p: pr(p, jm) for p in (1, 2, 0) for jm in range(4)]
    for i, f in enumerate(order):
        f()
        if NV and i + 1 == EX: w2_early(a)
        if (EARLY or EF) and i + 1 == EW:
            a.emit(f's_waitcnt vmcnt({EW - (6 if EF else EARLY // 4)})')
            a.emit('s_barrier')
    if ENV('ES'): stamp(a, 1)
    compute_end(a, kind)
    a.label(f'L_{kind}_loader')
    L = Loader(a, kind, K, lda2, ldw2, [0, f's{S_HD}', 's_add_u32 s4, s4, 128'], 128, S, STAGE, rot=int(ENV('ROT_W1', '0')), xblk=True, half=2048)
    L.ot = int(ot); L.loc = bool(LF1)
    L.setup()
    a.emit('s_waitcnt lgkmcnt(0)')
    if WD: srd(a, SW, 'w1', 0, 1024 * 7168)
    iw0 = len(a.lines)
    if WD == 'b':
        a.emit('s_waitcnt vmcnt(7)')
        a.emit('s_barrier')
    if ot and ENV('CT2', 'l') == 'l': code_touch(a, 'L_w2_c0', 'L_w2_c1', 192, loader=True)
    srd(a, SX, 'ws', WS_X1, 4 * MB)
    if not WD: srd(a, SW, 'w1', 0, 1024 * 7168)
    srd(a, ST, 'ws', WS_ST, 16 * 16384); srd(a, SC, 'ws0', WS_CS, 16 * 16384); srd(a, SB, 'b1', 0, 7168)
    def tail():
        stats_loads(a, 32, False)
        a.emit(f's_lshl_b32 s4, s{S_NT}, 7')
        a.emit(f's_lshl_b32 s5, s{S_WV}, 6')
        a.emit('s_add_u32 s4, s4, s5')
        a.emit(f's_add_u32 s4, s4, {1472 - 256}')
        a.emit(f's_lshl_b32 s5, s{S_NT}, 6')
        a.emit(f's_cmp_eq_u32 s{S_WV}, 4')
        a.emit('s_cselect_b32 s4, s5, s4')
        a.emit('s_lshr_b32 s5, s5, 1')
        a.emit('s_add_u32 s5, s5, 1024')
        a.emit(f's_cmp_eq_u32 s{S_WV}, 7')
        a.emit('s_cselect_b32 s4, s5, s4')
        a.emit('v_add_u32 v3, s4, v1')
        a.emit('v_lshlrev_b32 v2, 2, v3')
        a.emit('v_lshlrev_b32 v3, 1, v3')
        a.emit(f's_mov_b32 s3, {cs[2]}')
        for j in range(16):
            if j < cs[0]:
                a.emit(f'buffer_load_dword v{64+j}, v2, s[{SC}:{SC+3}], s3 offen')
                if j < cs[0] - 1: a.emit(f's_add_u32 s3, s3, {cs[1]}')
            else:
                a.emit(f'v_mov_b32 v{64+j}, 0')
        a.emit(f'buffer_load_ushort v80, v3, s[{SB}:{SB+3}], 0 offen')
        side(a, 'issue')
    ns = side(Asm(), 'issue')
    extra = None
    if VW:
        assert int(ENV('LM_W2', '2')) == 2
        srd(a, SR, 'w2', 0, 3584 * 2048)
        a.emit('s_and_b32 s5, s2, 3')
        a.emit('s_lshl_b32 s5, s5, 2')
        a.emit(f's_and_b32 s6, s{S_CU}, 3')
        a.emit('s_add_u32 s5, s5, s6')
        a.emit('s_and_b32 s6, s2, 4')
        a.emit('s_lshl_b32 s6, s6, 1')
        a.emit(f's_lshr_b32 s7, s{S_CU}, 2')
        a.emit('s_add_u32 s6, s6, s7')
        rot_table(a, S_TB, 5, 6, 'w2')
        a.emit(f's_add_u32 s5, s5, s{S_WV}')
        a.emit('s_and_b32 s5, s5, 3')
        wvoff(a, 16, 5, 6, 2048)
        sched = [int(c) for c in ENV('PSCH', '0111111111111122')]
        assert sum(sched) >= NV1
        def extra(i):
            o = []
            for p in range(sum(sched[:i]), min(NV1, sum(sched[:i + 1]))): o += park(56, 2 * p, 128 + 8 * p, 16, SR)
            return o
        ns += sum(x.startswith('buffer_load') for i in (13, 14, 15) for x in extra(i))
    if XD:
        extra = tail_parks('w2', SR, lambda b: srd(b, SR, 'w2', 0, 3584 * 2048))
        ns += 2 * sum(TSCH['w2'])
    if XD and ENV('PFL', '2') == '3':
        b = Asm(); side(b, 'late'); pl = [l.strip() for l in b.lines]
        pl = [l.replace('v2,', 'v18,').replace(', v2', ', v18').replace('s3', 's93') for l in pl]
        i0 = min(i for i, l in enumerate(pl) if l.startswith('buffer_load'))
        for l in pl[:i0]: a.emit(l)
        st = [int(x) for x in ENV('PFS', '6,10').split(',')]
        extra = lambda i: pl[i0 + 2 * st.index(i):i0 + 2 * st.index(i) + 2] if i in st else []
    def final():
        a.emit(f's_waitcnt vmcnt({ns})')
        if ENV('PFL', '2') == '1': side(a, 'late')
        stats_reduce_store(a, 32, LST)
        for j in range(8): a.emit(f'v_add_f32 v{64+j}, v{64+j}, v{72+j}')
        for j in range(4): a.emit(f'v_add_f32 v{64+j}, v{64+j}, v{68+j}')
        a.emit('v_add_f32 v64, v64, v65')
        a.emit('v_add_f32 v66, v66, v67')
        a.emit('v_add_f32 v64, v64, v66')
        a.emit('v_lshlrev_b32 v80, 16, v80')
        a.emit('v_lshlrev_b32 v2, 2, v0')
        a.emit(f'v_add_u32 v2, {LCS - 1024}, v2')
        a.emit('ds_write_b32 v2, v64')
        a.emit('ds_write_b32 v2, v80 offset:1024')
        a.emit('s_waitcnt lgkmcnt(0)')
    import sides
    if T4:
        stats4_setup(a, False)
        a.emit(f's_lshl_b32 s4, s{S_NT}, 7')
        a.emit(f's_lshl_b32 s5, s{S_WV}, 6')
        a.emit('s_add_u32 s4, s4, s5')
        a.emit(f's_add_u32 s4, s4, {1472 - 256}')
        a.emit(f's_lshl_b32 s5, s{S_NT}, 6')
        a.emit(f's_cmp_eq_u32 s{S_WV}, 4')
        a.emit('s_cselect_b32 s4, s5, s4')
        a.emit('s_lshr_b32 s5, s5, 1')
        a.emit('s_add_u32 s5, s5, 1024')
        a.emit(f's_cmp_eq_u32 s{S_WV}, 7')
        a.emit('s_cselect_b32 s4, s5, s4')
        a.emit('v_and_b32 v3, 15, v1')
        a.emit('v_lshl_add_u32 v3, v3, 2, s4')
        a.emit('v_lshrrev_b32 v2, 4, v1')
        a.emit(f'v_add_lshl_u32 v{VBI}, v3, v2, 1')
        a.emit('v_lshlrev_b32 v3, 2, v3')
        a.emit(f'v_lshl_add_u32 v{VCS}, v2, 14, v3')
        CSI = int(ENV('CSI', '14')); STI = int(ENV('STI', '14'))
        LP2 = ENV('LP2', ''); LP0 = int(ENV('LP0', '5'))
        if LP2:
            a.emit(f's_and_b32 s3, s{S_MT}, 3')
            a.emit(f's_lshl2_add_u32 s3, s3, s{S_WV}')
            a.emit('s_sub_u32 s3, s3, 4')
            a.emit(f's_and_b32 s4, s{S_NT}, 7')
            a.emit('s_lshl_b32 s4, s4, 8')
            a.emit('s_lshl_b32 s5, s3, 14')
            a.emit('s_add_u32 s5, s5, s4')
            a.emit(f's_lshl_b32 s{SR}, s{S_NT}, 18')
            a.emit(f's_add_u32 s{SR}, s{SR}, {24 << 17}')
            a.emit(f's_add_u32 s{SR}, s{SR}, s5')
            a.emit(f's_and_b32 s{SR+1}, s{S_NT}, 8')
            a.emit(f's_lshl_b32 s{SR+1}, s{SR+1}, 16')
            a.emit(f's_add_u32 s{SR+1}, s{SR+1}, {16 << 17}')
            a.emit(f's_add_u32 s{SR+1}, s{SR+1}, s5')
            a.emit('s_lshr_b32 s5, s3, 1')
            a.emit(f's_lshl3_add_u32 s5, s{S_NT}, s5')
            a.emit('s_lshl_b32 s5, s5, 14')
            a.emit('s_and_b32 s3, s3, 1')
            a.emit('s_lshl_b32 s3, s3, 7')
            a.emit('s_add_u32 s4, s4, s3')
            a.emit(f's_add_u32 s{SR+2}, s5, s4')
            a.emit(f's_add_u32 s{SR+3}, s{SR+1}, {2 << 17}')
        HP = int(ENV('HP', '-1'))
        if HP >= 0:
            srd(a, SR, 'ws', WS_H, 2048 * 7168)
            a.emit(f's_and_b32 s3, s{S_WV}, 3')
            a.emit(f's_lshl2_add_u32 s3, s{S_MT}, s3')
            a.emit(f's_mul_i32 s3, s3, {32 * ldo2}')
            a.emit(f's_lshl_b32 s4, s{S_NT}, 12')
            a.emit('s_add_u32 s4, s4, s3')
            a.emit(f's_add_u32 s4, s4, {48 * 1024}')
            a.emit('v_lshl_add_u32 v24, v1, 6, s4')
            a.emit(f'v_add_u32 v25, {16 * ldo2}, v24')
            a.emit(f's_lshl_b32 s4, s{S_NT}, 10')
            a.emit('s_add_u32 s4, s4, s3')
            a.emit(f's_add_u32 s4, s4, {32 * 1024}')
            a.emit('v_and_b32 v3, 15, v1')
            a.emit('v_lshl_add_u32 v3, v3, 6, s4')
            a.emit('v_bfe_u32 v2, v1, 4, 1')
            a.emit(f'v_mul_u32_u24 v2, {16 * ldo2}, v2')
            a.emit('v_add_u32 v26, v2, v3')
            a.emit('v_and_b32 v3, 15, v1')
        def extra4(i):
            o = []
            if LP2 and i == LP0 - 1:
                b = Asm(); srd(b, SO, 'w2', 0, 3584 * 2048); o += [l.strip() for l in b.lines]
            if LP2 and LP0 <= i < LP0 + 8:
                for k, c in enumerate('ABCD'):
                    if c in LP2: o += [f's_buffer_load_dword s84, s[{SO}:{SO+3}], s{SR+k} offset:{64*j}' for j in range(2 if c == 'C' else 4)] + [f's_add_u32 s{SR+k}, s{SR+k}, 2048']
            if i == CSI: o += quad_loads(64, VCS, SC) + [f'buffer_load_ushort v80, v{VBI}, s[{SB}:{SB+3}], 0 offen']
            if i == STI: o += stats4_loads(32, False)
            HPD = int(ENV('HPD', '0'))
            if HP >= 0: o += [f"buffer_{ENV('HPO', 'load')}_dword v{84+j}, v{24+j}, s[{SR}:{SR+3}], 0 offen {ENV('HPF', '')}" for j in range(3) if i == HP + j * HPD]
            return o
        def final4():
            a.emit(f"s_waitcnt vmcnt({3 if HP >= 14 and ENV('HPO', 'load') == 'load' else 0})")
            stats4_store(a, 32, LST, False, nan_chk(a, 'L_w1_s', False) if SF else None)
            quad_sum(a, 64)
            a.emit('v_lshlrev_b32 v80, 16, v80')
            a.emit('s_lshl_b32 s5, s3, 8')
            a.emit(f's_add_u32 s5, s5, {LCS}')
            a.emit('v_permlane16_swap_b32 v64, v65')
            a.emit('v_lshrrev_b32 v2, 4, v1')
            a.emit('v_lshl_add_u32 v2, v3, 2, v2')
            a.emit('v_lshl_add_u32 v2, v2, 2, s5')
            a.emit('v_add_f32 v64, v64, v65')
            a.emit('ds_write2st64_b32 v2, v64, v80 offset0:0 offset1:4')
            if OH:
                assert ENV('PW_W1', '4') == '4'
                if GM: a.emit(f'v_mov_b32 v2, {LST}')
                else:
                    a.emit(f'v_xor_b32_dpp v64, v{VMD}, v{VMD} row_ror:2 row_mask:0xf bank_mask:0xf')
                    a.emit(f's_lshl2_add_u32 s5, s3, {LST}')
                    a.emit('v_cmp_ne_u32 vcc, 0, v64')
                    a.emit('v_mov_b32 v2, s5')
                    a.emit(f's_or_b32 s{S_MD}, vcc_lo, vcc_hi')
                a.emit(f'v_mov_b32 v64, s{S_MD}')
                a.emit('ds_write_b32 v2, v64')
            a.emit('s_waitcnt lgkmcnt(0)')
        assert ns == 0
        pst = sides.stouch_post(a, kind)
        if WD == 'c':
            a.emit('s_waitcnt vmcnt(0)')
            a.emit('s_barrier')
        elif WD: L.after_own = a.lines[iw0:]; del a.lines[iw0:]
        if LF1: L.run(final=final4, extra=extra4, post=pst, dep=lambda pf: dep_loc(a, kind, pf, lambda: a.emit(f's_waitcnt vmcnt({L.npre - 6})')))
        else: L.run(final=final4, extra=extra4, post=pst, dep=lambda pf: dep_wait(a, kind, postf=pf, obar=L.npre - 6 if ot and OBAR else 0, pref=(lambda: a.emit(f's_waitcnt vmcnt({L.npre - 7})')) if ot and not OBAR else None))
    else: L.run(tail_issue=tail, ntail_vm=17 + cs[0] + side(Asm(), 'issue'), final=final, extra=extra, post=sides.stouch_post(a, kind),
          dep=(lambda pf: dep_wait(a, kind, postf=pf)) if MEGA else None)
    if ENV('PFL', '2') == '2': side(a, 'late')
    if not VW: side(a, 'finish')
    loader_end(a, kind)
    a.label(end)
    a.emit('s_endpgm')
    loader_first(a, kind)
    if not MEGA:
        a(KD.format(name=f'{kind}l0_kernel'))
        stub(a, f'{kind}l1_kernel', body, 1, tsidx + 4, False)
        a(KD.format(name=f'{kind}l1_kernel'))
    a.label(f'L_{kind}_c1')
    return LCS + 2048
```

```python
from common import *
from gemmw1 import *

def res_addr(a, swv, sd, v):
    assert int(ENV('LM_WO', '2')) == 2 and int(ENV('LM_W2', '2')) == 2
    srd(a, sd, 'A_x', 0, 4 * MB)
    a.emit('s_and_b32 s3, s2, 3')
    a.emit(f's_and_b32 s4, s{S_CU}, 3')
    a.emit('s_lshl2_add_u32 s3, s3, s4')
    a.emit(f's_lshl2_add_u32 s3, s3, s{swv}')
    a.emit('s_lshl_b32 s3, s3, 16')
    a.emit('s_bfe_u32 s4, s2, 0x10002' if SPX else 's_and_b32 s4, s2, 4')
    a.emit(f's_lshr_b32 s5, s{S_CU}, 2')
    a.emit('s_lshl1_add_u32 s4, s5, s4' if SPX else 's_lshl1_add_u32 s4, s4, s5')
    a.emit('s_lshl_b32 s4, s4, 7')
    a.emit('s_add_u32 s3, s3, s4')
    a.emit('s_add_u32 s4, s3, 32768')
    a.emit(f'v_and_b32 v{v}, 15, v1')
    a.emit(f'v_lshlrev_b32 v{v+1}, 1, v1')
    a.emit(f'v_and_b32 v{v+1}, 32, v{v+1}')
    a.emit(f'v_lshl_add_u32 v{v}, v{v}, 11, v{v+1}')
    a.emit(f'v_lshrrev_b32 v{v+1}, 1, v1')
    a.emit(f'v_and_b32 v{v+1}, 16, v{v+1}')
    a.emit(f'v_add_u32 v{v}, v{v}, v{v+1}')

def dbg_off(a, v):
    a.emit(f's_lshl_b32 s3, s{S_MT}, 2')
    a.emit('s_sub_u32 s3, s3, 4')
    a.emit(f'v_and_b32 v{v}, 7, v1')
    a.emit(f'v_add_u32 v{v}, s3, v{v}')
    a.emit(f'v_max_i32 v{v}, 0, v{v}')
    a.emit(f'v_lshlrev_b32 v{v}, 2, v{v}')

def res_loads(vd, v, sd):
    return [f'buffer_load_dwordx4 v[{vd+4*i}:{vd+3+4*i}], v{v}, s[{sd}:{sd+3}], s{3+(i>>1)} offen offset:{64*(i&1)}' for i in range(4)]

def gen_qkv(a, tsidx, side):
    kind = 'attn'
    K = 1024; lda2 = 2048; ldw2 = 6144
    S = 3; LM = int(ENV('LM_QKV', '3'))
    XH = 16384 + 6 * 4096
    STAGE = XH + 2048
    LST = S * STAGE
    EX = 1024
    N = 16
    body = f'L_{kind}_body'; end = f'L_{kind}_end'
    VB, VA = 4, 10
    VXW, VPE, VPO, VCE, VCO, VVE, VVO, VS1, VS4, VKA, VKB, MAP, MAC, MBP, MBC, VO = range(16, 32)
    M_ODD, M_UPA, M_UPB, M_FA, M_FB = 48, 50, 52, 54, 14
    F = [32, 76]; ACC = 128; HACC = 224; ONES = 236
    acc = lambda jn, jm: ACC + (jn * 4 + jm) * 4
    fx = lambda s, jm: F[s] + jm * 4
    fw = lambda s, jn: F[s] + 20 + jn * 4
    a.label(f'L_{kind}_c0')
    stub(a, f'{kind}l0_kernel', body, 0, tsidx, True)
    a.label(body)
    ot = kind in OT
    HX = LST + 1280
    tile_map(a, LM, end)
    if ot and LM != 2:
        a.emit(f's_cmp_eq_u32 s{S_LAYER}, 0')
        a.emit(f's_cbranch_scc1 L_{kind}_map')
        tile_map(a, 2, None)
        a.label(f'L_{kind}_map')
    a.emit(f's_cmp_ge_u32 s{S_WV}, 4')
    a.emit(f's_cbranch_scc1 L_{kind}_loader')
    if ENV('CTE', '1') == '1': code_touch(a, 'L_attn_c0', 'L_w2_c1', int(ENV('CTN', '320')))
    a.emit(f's_and_b32 s{S_WM}, s{S_WV}, 1')
    a.emit(f's_lshr_b32 s{S_WN}, s{S_WV}, 1')
    a.emit('v_and_b32 v3, 31, v1')
    a.emit('v_lshlrev_b32 v3, 2, v3')
    a.emit(f'v_add_u32 v3, {XH}, v3')
    for i in range(4): a.emit(f'v_mov_b32 v{ONES+i}, 0x3f803f80')
    a.emit(f'ds_write_b32 v3, v{ONES}')
    a.emit(f'ds_write_b32 v3, v{ONES} offset:{STAGE}')
    a.emit(f'v_add_u32 v3, {2*STAGE}, v3')
    a.emit(f'ds_write_b32 v3, v{ONES}')
    if ot: a.emit(f'ds_write_b32 v3, v{ONES} offset:{HX - XH - 2 * STAGE}')
    a.emit('v_and_b32 v3, 15, v1')
    a.emit('v_lshrrev_b32 v2, 4, v1')
    a.emit('v_lshrrev_b32 v33, 1, v3')
    a.emit(f's_lshl_b32 s8, s{S_WM}, 13')
    for ks in range(2):
        if ks: a.emit(f'v_add_u32 v{VB+ks}, 4, v2')
        a.emit(f'v_xor_b32 v{VB+ks}, v{VB+ks if ks else 2}, v33')
        a.emit(f'v_lshlrev_b32 v{VB+ks}, 4, v{VB+ks}')
        a.emit(f'v_lshl_add_u32 v{VB+ks}, v3, 7, v{VB+ks}')
        a.emit(f'v_add_u32 v{VB+4+ks}, {XH}, v{VB+ks}')
        a.emit(f'v_add_u32 v{VB+ks}, s8, v{VB+ks}')
    wbase(a, 34, 33)
    a.emit(f's_lshl_b32 s8, s{S_WV}, 5')
    a.emit('v_xor_b32 v34, s8, v34')
    a.emit(f'v_add_u32 v{VB+2}, 16384, v34')
    a.emit(f'v_xor_b32 v{VB+3}, 32, v{VB+2}')
    i0 = len(a.lines)
    a.emit('v_and_b32 v35, 1, v2')
    a.emit(f'v_xor_b32 v35, s{S_WM}, v35')
    a.emit(f's_lshl_b32 s8, s{S_MT}, 7')
    a.emit(f's_lshl_b32 s9, s{S_WM}, 6')
    a.emit('s_add_u32 s8, s8, s9')
    if OH:
        a.emit('s_mul_i32 s10, s8, 7')
        a.emit(f's_lshl{3 - OH}_add_u32 s11, s{S_NT}, s{S_WN}')
        a.emit('s_add_u32 s10, s10, s11')
        a.emit('s_lshl_b32 s10, s10, 10')
    else:
        a.emit(f's_add_u32 s10, s8, s{S_NT}')
        a.emit('s_lshl_b32 s10, s10, 11')
        a.emit(f's_lshl_b32 s11, s{S_WN}, 10')
        a.emit('s_add_u32 s10, s10, s11')
    if 'wo' in NS: a.emit(f'v_lshl_add_u32 v{VO}, v1, 4, s10')
    else:
        a.emit('v_lshl_add_u32 v33, v3, 4, s10')
        a.emit('v_lshl_add_u32 v33, v35, 9, v33')
        a.emit('v_lshrrev_b32 v34, 1, v2')
        a.emit(f'v_lshl_add_u32 v{VO}, v34, 8, v33')
    a.emit(f's_mul_i32 s10, s{S_WN}, {14336 if XD else 24576}')
    a.emit(f's_add_u32 s10, s10, {EX}')
    a.emit(f's_lshl_b32 s11, s{S_WM}, 10')
    a.emit('s_add_u32 s4, s10, s11')
    a.emit('s_sub_u32 s5, s10, s11')
    a.emit(f's_mul_i32 s6, s{S_WM}, 6144')
    a.emit(f'v_lshl_add_u32 v{VXW}, v1, 4, s4')
    a.emit(f'v_add_u32 v{VPE}, s6, v{VXW}')
    a.emit(f'v_lshl_add_u32 v{VPO}, v1, 4, s5')
    a.emit(f'v_add_u32 v{VPO}, s6, v{VPO}')
    a.emit(f'v_lshl_add_u32 v{VCE}, v2, 8, s4')
    a.emit(f'v_lshl_add_u32 v{VCO}, v2, 8, s5')
    a.emit(f'v_lshl_add_u32 v{VVE}, v3, 4, s4')
    a.emit(f'v_lshl_add_u32 v{VVO}, v3, 4, s5')
    a.emit(f's_lshl_b32 s10, s{S_WM}, 8')
    a.emit(f's_add_u32 s10, s10, {LST}')
    a.emit(f'v_lshl_add_u32 v{VS1}, v3, 2, s10')
    a.emit(f'v_lshl_add_u32 v{VS4}, v2, 4, s10')
    a.emit('v_and_b32 v33, 1, v3')
    a.emit(f'v_cmp_eq_u32 s[{M_ODD}:{M_ODD+1}], 1, v33')
    a.emit('v_lshl_add_u32 v34, v2, 2, v33')
    a.emit('v_add_u32 v35, 2, v34')
    a.emit(f'v_cmp_gt_u32 s[{M_UPA}:{M_UPA+1}], v34, v3')
    a.emit(f'v_cmp_gt_u32 s[{M_UPB}:{M_UPB+1}], v35, v3')
    a.emit('v_mov_b32 v36, 0xffff')
    a.emit('v_mov_b32 v37, 0xffff0000')
    a.emit(f'v_cndmask_b32 v36, v36, v37, s[{M_ODD}:{M_ODD+1}]')
    a.emit(f's_add_u32 s10, s10, {640 + 64}')
    a.emit('v_lshl_add_u32 v34, v34, 2, s10')
    a.emit('v_lshl_add_u32 v35, v35, 2, s10')
    a.emit('v_subrev_u32 v38, 64, v34')
    a.emit('v_subrev_u32 v39, 64, v35')
    a.emit(f'v_cndmask_b32 v{VKA}, v34, v38, s[{M_UPA}:{M_UPA+1}]')
    a.emit(f'v_cndmask_b32 v{VKB}, v35, v39, s[{M_UPB}:{M_UPB+1}]')
    a.emit(f'v_cndmask_b32 v{MAP}, 0, v36, s[{M_UPA}:{M_UPA+1}]')
    a.emit(f'v_cndmask_b32 v{MBP}, 0, v36, s[{M_UPB}:{M_UPB+1}]')
    a.emit(f'v_xor_b32 v{MAC}, v{MAP}, v36')
    a.emit(f'v_xor_b32 v{MBC}, v{MBP}, v36')
    a.emit('s_cmp_eq_u32 s8, 0')
    a.emit(f's_cselect_b64 s[{M_FA}:{M_FA+1}], s[{M_UPA}:{M_UPA+1}], 0')
    a.emit(f's_cselect_b64 s[{M_FB}:{M_FB+1}], s[{M_UPB}:{M_UPB+1}], 0')
    if ot:
        a.emit(f's_cmp_lg_u32 s{S_LAYER}, 0')
        a.emit(f's_cbranch_scc1 L_{kind}_nozero')
    for i in list(range(122 if DS else 120, 236)) + ([] if XD else list(range(240, 256))): a.emit(f'v_mov_b32 v{i}, 0')
    if DS:
        a.emit('s_waitcnt lgkmcnt(0)')
        a.emit(f's_lshl_b32 s3, s{S_WN}, 5')
        a.emit('s_add_u32 s3, s3, s8')
        a.emit(f's_lshl_b32 s4, s{S_NT}, 14')
        a.emit('s_lshl3_add_u32 s3, s3, s4')
        a.emit('v_lshrrev_b32 v121, 1, v2')
        a.emit('v_lshl_add_u32 v121, v121, 4, v3')
        a.emit('v_and_b32 v120, 1, v2')
        a.emit('v_lshl_add_u32 v121, v121, 1, v120')
        a.emit('v_lshl_add_u32 v120, v121, 2, s3')
        srd(a, ST, 'ws0', WS_ST0, 16 * 16384)
        srd(a, SP, 'ws0', WS_FL, FLS)
        a.emit('s_lshl_b32 s3, s2, 11')
        if D2:
            a.emit(f's_cmp_lg_u32 s{S_WV}, 0')
            a.emit(f's_cbranch_scc1 L_{kind}_noclr')
            a.emit(f's_lshl_b32 s5, s{S_MT}, 10')
            a.emit('s_add_u32 s4, s4, s5')
            a.emit('v_lshlrev_b32 v121, 4, v1')
            for i in range(4): a.emit(f'v_mov_b32 v{40+i}, -1')
            a.emit(f'buffer_store_dwordx4 v[40:43], v121, s[{ST}:{ST+3}], s4 offen sc1')
            for i in range(2): a.emit(f'buffer_store_dwordx4 v[128:131], v121, s[{SP}:{SP+3}], s3 offen offset:{1024*i} sc1')
            if GM:
                a.emit('s_getreg_b32 s5, hwreg(HW_REG_XCC_ID, 0, 4)')
                if ENV('FB'): a.emit(f"s_and_b32 s5, s2, {ENV('FB')}")
                a.emit('v_lshl_or_b32 v126, s5, 1, 1')
            else: a.emit('v_mov_b32 v126, 1')
            a.label(f'L_{kind}_noclr')
        else:
            a.emit('v_lshlrev_b32 v121, 3, v0')
            a.emit(f'buffer_store_dwordx2 v[126:127], v121, s[{SP}:{SP+3}], s3 offen sc1')
            dbg_off(a, 121)
        a.emit(f's_and_b32 s{SC+1}, s{SC+1}, 0xffff')
        a.emit(f's_mov_b32 s{SC+2}, 256')
        a.emit(f's_mov_b32 s{SC+3}, 0x00020000')
        a.emit('s_mov_b32 s7, 0x3f803f80')
    if ot: a.label(f'L_{kind}_nozero')
    a.emit('s_waitcnt lgkmcnt(0)')
    if OH: srd(a, SO, 'ws', WS_H + OHO, 2048 * 7168 - OHO)
    else: srd(a, SO, 'ws', WS_O, 4 * MB)
    clear_flags(a, 0)
    if ENV('CTE', '1') == '0': code_touch(a, 'L_attn_c0', 'L_w2_c1', int(ENV('CTN', '320')))
    import pads
    CLQ = ENV('DX', '2') == '1' and ENV('CLP', 'e') == 'q'
    if CLQ:
        srd(a, ST, 'ws', WS_XP, 4 * MB)
        a.emit(f's_or_b32 s{ST+1}, s{ST+1}, 0x100000')
        a.emit(f's_mov_b32 s{ST+3}, 0x00800000')
        a.emit('s_and_b32 s3, s2, 3')
        a.emit(f's_and_b32 s4, s{S_CU}, 3')
        a.emit('s_lshl2_add_u32 s3, s3, s4')
        a.emit('s_bfe_u32 s4, s2, 0x10002')
        a.emit(f's_lshr_b32 s5, s{S_CU}, 2')
        a.emit('s_lshl1_add_u32 s4, s5, s4')
        a.emit('s_lshl4_add_u32 s3, s3, s4')
        a.emit(f's_lshl2_add_u32 s3, s3, s{S_WV}')
        a.emit(f's_lshl_b32 s{S_T}, s3, 12')
        for i in range(4): a.emit(f'v_mov_b32 v{116+i}, -1')
    def warm():
        a.emit(f's_cmp_lg_u32 s{S_LAYER}, 0')
        a.emit(f's_cbranch_scc1 L_{kind}_nowarm')
        a.emit('s_lshl_b32 s3, s2, 2')
        a.emit(f's_add_u32 s3, s3, s{S_WV}')
        srd(a, SX, 'xs', 0, 4 * MB); srd(a, SW, 'wqkv', 0, 6 * MB)
        a.emit('v_min_u32 v126, 31, v1')
        a.emit('v_min_u32 v127, 47, v1')
        a.emit('v_lshlrev_b32 v126, 7, v126')
        a.emit('v_lshlrev_b32 v127, 7, v127')
        a.emit('s_lshl_b32 s4, s3, 12')
        a.emit(f's_mul_i32 s5, s3, {48 * 128}')
        a.emit(f'buffer_load_dword v2, v126, s[{SX}:{SX+3}], s4 offen')
        a.emit(f'buffer_load_dword v3, v127, s[{SW}:{SW+3}], s5 offen')
        a.emit('v_mov_b32 v126, 0')
        a.emit('v_mov_b32 v127, 0')
        a.label(f'L_{kind}_nowarm')
    WARM = ENV('WARM', '0')
    if WARM == '1': warm()
    mid = []
    if ot: mid = a.lines[i0:]; del a.lines[i0:]
    def reads(s, ks, hl=True):
        o = []
        if 'noread' in DBG: return o
        for jm in range(4):
            o.append(f'ds_read_b128 v[{fx(s,jm)}:{fx(s,jm)+3}], v{VA+ks} offset:{jm*2048}')
        if hl: o.append(f'ds_read_b128 v[{fx(s,4)}:{fx(s,4)+3}], v{VA+4+ks}')
        for jn in range(6):
            for h in range(2):
                r = fw(s, jn) + 2 * h
                o.append(f'ds_read_b64_tr_b16 v[{r}:{r+1}], v{VA+2+(jn&1)} offset:{(jn>>1)*8192+ks*4096+h*512}')
        return o
    def mfma(c, x, y, cin=None):
        return f'v_mfma_f32_16x16x32_bf16 v[{c}:{c+3}], v[{x}:{x+3}], v[{y}:{y+3}], ' + (f'v[{c}:{c+3}]' if cin is None else cin)
    def mf(s):
        o = []
        if 'nomfma' in DBG: return ['s_nop 0']
        for jn, jm in mf_order(6, 5, lambda jn, jm: jm == 4 and jn & 1):
            if True:
                c = acc(jn, jm) if jm < 4 else HACC + (jn >> 1) * 4
                o.append(mfma(c, fw(s, jn), fx(s, jm)) if jn < 4 else mfma(c, fx(s, jm), fw(s, jn)))
        return o
    SA = [(240, 244), (248, 252), (120, 124)]
    def mfv(hh):
        def f(s):
            o = mf(s)
            ex = []
            for i, jm in enumerate([2 * hh, 2 * hh + 1] + ([4] if hh == 0 else [])):
                ex.append(mfma(SA[i][0], ONES, fx(s, jm)))
                ex.append(mfma(SA[i][1], fx(s, jm), fx(s, jm)))
            return o if 'nostat' in DBG else ex + o
        return f
    def select():
        if CLQ:
            for i in range(4): a.emit(f'buffer_store_dwordx4 v[116:119], off, s[{ST}:{ST+3}], s{S_T} offset:{1024*i} sc1')
        if WARM == '2': warm(); a.emit('s_nop 1')
        if not ot:
            a.emit(f's_cmp_lg_u32 s{S_LAYER}, 0')
            a.emit(f's_cbranch_scc1 L_{kind}_loop')
        if XD:
            for i in range(240, 256): a.emit(f'v_mov_b32 v{i}, 0')
        a.emit(f's_cmp_lg_u32 s{S_WN}, 0')
        a.emit(f's_cbranch_scc1 L_{kind}_loopb')
        clear_flags(a, 1, 4 if CLQ else 0)
    def post():
        a.emit('v_and_b32 v32, 3, v1')
        a.emit('v_cmp_eq_u32 s[4:5], 1, v32')
        a.emit('v_cmp_eq_u32 s[6:7], 2, v32')
        a.emit('v_cmp_eq_u32 s[8:9], 3, v32')
        a.emit('v_bfe_u32 v33, v1, 2, 2')
        a.emit('v_lshrrev_b32 v34, 4, v1')
        a.emit('v_cmp_eq_u32 s[10:11], v33, v34')
        a.emit(f's_lshl_b32 s3, s{S_WN}, 7')
        a.emit(f'v_add_u32 v35, s3, v{VS1}')
        a.emit('v_and_b32 v36, 15, v1')
        a.emit(f's_cmp_eq_u32 s{S_WV}, 0')
        a.emit('s_cselect_b32 s3, 0, 576')
        a.emit(f's_add_u32 s3, s3, {LST}')
        a.emit('v_lshl_add_u32 v36, v36, 2, s3')
        for (sm, sq) in SA:
            a.emit(f'v_cndmask_b32 v{sm+1}, v{sq}, v{sq+1}, s[4:5]')
        for (sm, sq) in SA:
            a.emit(f'v_cndmask_b32 v{sm+1}, v{sm+1}, v{sq+2}, s[6:7]')
        for (sm, sq) in SA:
            a.emit(f'v_cndmask_b32 v{sm+1}, v{sm+1}, v{sq+3}, s[8:9]')
        for (sm, sq) in SA: stats_finish(a, sm)
        a.emit('s_mov_b64 exec, s[10:11]')
        a.emit(f'ds_write2_b32 v35, v{SA[0][0]}, v{SA[0][0]+1} offset0:16 offset1:176')
        a.emit(f'ds_write2_b32 v35, v{SA[1][0]}, v{SA[1][0]+1} offset0:32 offset1:192')
        a.emit(f'ds_write2_b32 v36, v{SA[2][0]}, v{SA[2][0]+1} offset0:0 offset1:160')
        a.emit('s_mov_b64 exec, -1')
        if XD:
            res_addr(a, S_WV, SX, 32)
        a.emit('s_waitcnt lgkmcnt(0)')
        if XD:
            for i in range(4):
                a.emit(f'buffer_load_dwordx4 v[{240+4*i}:{243+4*i}], v32, s[{SX}:{SX+3}], s{3+(i>>1)} offen offset:{64*(i&1)}')
        a.emit('s_barrier')
    own = lambda s: [mfma(acc(jn, jm), *((fw(s, jn), fx(s, jm)) if jn < 4 else (fx(s, jm), fw(s, jn))), None if s else '0') for jn, jm in mf_order(6, 4)]
    hw = lambda ks, c: fw(1, 2 * c) if ks else fx(1, c)
    hal = ([f'v_mov_b32 v{fx(1,c)+i}, v{fw(0,2*c)+i}' for c in range(3) for i in range(4)],
           [f'ds_read_b128 v[{fx(1,3+ks)}:{fx(1,3+ks)+3}], v{VA+4+ks} offset:{HX - XH - STAGE}' for ks in range(2)],
           [mfma(HACC + 4 * c, *((hw(ks, c), fx(1, 3 + ks)) if c < 2 else (fx(1, 3 + ks), hw(ks, c))), None if ks else '0') for ks in range(2) for c in range(3)])
    hooks = None
    if DS:
        HK = [int(x) for x in ENV('HK', '-1,-2,-4,-5,11,13').split(',')]
        def dots(s):
            o = [f's_cmp_lg_u32 s{S_WN}, 0', f's_cbranch_scc1 L_{kind}_dot{s}']
            for hh in range(2):
                for j in range(8):
                    r = fx(s, 2 * hh) + (j >> 1) + 4 * (j & 1)
                    o += [f'v_dot2_f32_bf16 v{122+(j&1)}, v{r}, s7, v{122+(j&1)}', f'v_dot2_f32_bf16 v{124+(j&1)}, v{r}, v{r}, v{124+(j&1)}']
                o += [f'L_{kind}_dote{s}:'] if hh else [f's_branch L_{kind}_dote{s}', f'L_{kind}_dot{s}:']
            return o
        h1 = dots(1) + ['s_nop 2', 'v_permlane32_swap_b32 v122, v123', 'v_permlane32_swap_b32 v124, v125', 'v_add_f32 v122, v122, v123', 'v_add_f32 v124, v124, v125',
               'v_mov_b32 v126, 1', 's_nop 0', 'v_permlane16_swap_b32 v122, v124', 'v_add_f32 v122, v122, v124', f'buffer_store_dword v122, v120, s[{ST}:{ST+3}], 0 offen sc1']
        w0 = [f's_cmp_lg_u32 s{S_WV}, 0', f's_cbranch_scc1 L_{kind}_loop']
        pl = f'buffer_load_dword v127, v121, s[{SC}:{SC+3}], 0 offen sc1'
        b = Asm(); res_addr(b, S_WV, SX, 122); rs = [l.strip() for l in b.lines] + res_loads(240, 122, SX)
        hooks = list(zip(HK + [int(ENV('HKR', '14'))], [dots(0), h1, ['s_waitcnt vmcnt(0)'],
            w0 + [f's_lshl4_add_u32 s3, s{S_MT}, s{S_NT}', 's_mov_b64 exec, 1', f'buffer_store_byte v126, off, s[{SC}:{SC+3}], s3 sc1', 's_mov_b64 exec, -1'], w0 + [pl],
            w0 + ['s_mov_b32 s5, 0x100000', 'L_attn_chkl:', 's_waitcnt vmcnt(0)', 'v_cmp_ne_u32 vcc, 0x01010101, v127', f's_cbranch_vccz L_{kind}_loop',
                  pl, 's_sub_u32 s5, s5, 1', 's_cbranch_scc0 L_attn_chkl'], rs]))
        assert HK[:2] == [-1, -2]
        if D2: hooks = [(-1, dots(0) + pads.chain('h0') + w0 + hooks[2][1] + hooks[3][1][2:]), (-2, [x.replace('v_mov_b32 v126, 1', 's_nop 0') for x in h1] + pads.chain('h1')), hooks[-1]]
        if ENV('XSL'):
            xs = [int(x) for x in ENV('XSL').split(',')]
            hooks[1] = (hooks[1][0], hooks[1][1] + [f's_sleep {xs[0]}'])
            hooks[2] = (hooks[2][0], hooks[2][1] + [f's_sleep {xs[1]}'])
    assert ot or not DS
    big_loop(a, kind, N, S, STAGE, 6, VB, VA, reads, mf, variants=None if DS else {'a': mfv(0), 'b': mfv(1)}, select=select, post=post, mid=mid, hooks=hooks,
             ot=own if ot else None, halo=hal if ot else None)
    PR = 32
    CS = 48
    CV = 64
    MS = 66
    RK = 76
    M4 = 84
    R4 = 104
    VV = [4 if XD else 240, 224]
    for b in range(5):
        a.emit(f'ds_read2_b32 v[{MS+2*b}:{MS+2*b+1}], v{VS1} offset0:{16*b} offset1:{160+16*b}')
    for p in range(2):
        a.emit(f'ds_read2_b32 v[{RK+2*p}:{RK+2*p+1}], v{VKA} offset0:{32*p} offset1:{32*p+16}')
        a.emit(f'ds_read2_b32 v[{RK+4+2*p}:{RK+5+2*p}], v{VKB} offset0:{32*p} offset1:{32*p+16}')
    for c in range(3):
        a.emit(f'ds_write_b128 v{VXW}, v[{HACC+4*c}:{HACC+4*c+3}] offset:{2048*c}')
    a.emit(f's_cmp_eq_u32 s{S_WM}, 1')
    a.emit(f's_cbranch_scc1 L_{kind}_nop3')
    for t in range(2, 6):
        a.emit(f'ds_write_b128 v{VXW}, v[{acc(t,3)}:{acc(t,3)+3}] offset:{6144+1024*t}')
    a.label(f'L_{kind}_nop3')
    for b in range(5):
        a.emit(f'ds_read_b128 v[{M4+4*b}:{M4+4*b+3}], v{VS4} offset:{64*b}')
        a.emit(f'ds_read_b128 v[{R4+4*b}:{R4+4*b+3}], v{VS4} offset:{640+64*b}')
    a.emit('s_waitcnt lgkmcnt(10)')
    a.emit('s_barrier')
    for t in range(4):
        a.emit(f'ds_read_b128 v[{CS+4*t}:{CS+4*t+3}], v{VCO if t&1 else VCE} offset:{1024*t}')
    for t in range(2):
        a.emit(f'ds_read_b32 v{CV+t}, v{VVO if t else VVE} offset:{4096+1024*t}')
    for t in range(4):
        a.emit(f'ds_read_b128 v[{PR+4*t}:{PR+4*t+3}], v{VPO if t&1 else VPE} offset:{2048+1024*t}')
    sc = 32 ** -0.5 * 1.4426950408889634
    for b in range(4):
        a.emit(f'v_mul_f32 v{MS+2*b+3}, {f2u(sc):#x}, v{MS+2*b+3}')
    for b in range(4):
        a.emit(f'v_mul_f32 v{RK+b}, v{RK+b}, v{MS+2*b+3}')
        a.emit(f'v_mul_f32 v{RK+4+b}, v{RK+4+b}, v{MS+2*b+3}')
    a.emit('s_waitcnt lgkmcnt(6)')
    def qk(x, y, cs, b, d):
        m = f'v[{MS+2*b}:{MS+2*b+1}]'
        for (z, c) in ((x, cs), (y, cs + 4)):
            for h in range(2):
                a.emit(f'v_pk_fma_f32 v[{z+2*h}:{z+2*h+1}], v[{c+2*h}:{c+2*h+1}], {m}, v[{z+2*h}:{z+2*h+1}] op_sel:[0,0,0] op_sel_hi:[1,0,1] neg_lo:[0,1,0] neg_hi:[0,1,0]')
        a.emit(f'v_cvt_pk_bf16_f32 v{d}, v{x}, v{x+1}')
        a.emit(f'v_cvt_pk_bf16_f32 v{d+1}, v{x+2}, v{x+3}')
        a.emit(f'v_cvt_pk_bf16_f32 v{d+2}, v{y}, v{y+1}')
        a.emit(f'v_cvt_pk_bf16_f32 v{d+3}, v{y+2}, v{y+3}')
    Q = lambda b: acc(0, b); Kf = lambda b: acc(2, b) if b >= 0 else PR
    Sc = lambda b: acc(1, b); Sp = lambda b: acc(3, b)
    for b in range(4):
        qk(acc(0, b), acc(1, b), CS, b + 1, Q(b))
        qk(acc(2, b), acc(3, b), CS + 8, b + 1, Kf(b))
        if b == 3:
            a.emit('s_waitcnt lgkmcnt(0)')
            qk(PR, PR + 4, CS + 8, 0, PR)
        if b >= 1:
            a.emit(mfma(Sc(b - 1), Kf(b - 1), Q(b - 1), '0'))
            if b >= 2: a.emit(mfma(Sp(b - 1), Kf(b - 2), Q(b - 1), '0'))
    a.emit(mfma(Sc(3), Kf(3), Q(3), '0'))
    a.emit(mfma(Sp(3), Kf(2), Q(3), '0'))
    a.emit(mfma(Sp(0), Kf(-1), Q(0), '0'))
    def vconv(x, t, b):
        cv = f'v[{CV}:{CV+1}]'
        for h in range(2):
            a.emit(f'v_pk_fma_f32 v[{x+2*h}:{x+2*h+1}], v[{M4+4*b+2*h}:{M4+4*b+2*h+1}], {cv}, v[{x+2*h}:{x+2*h+1}] op_sel:[0,{t},0] op_sel_hi:[1,{t},1] neg_lo:[1,0,0] neg_hi:[1,0,0]')
        for h in range(2):
            a.emit(f'v_pk_mul_f32 v[{x+2*h}:{x+2*h+1}], v[{x+2*h}:{x+2*h+1}], v[{R4+4*b+2*h}:{R4+4*b+2*h+1}]')
        for h in range(2):
            a.emit(f'v_cvt_pk_bf16_f32 v{VV[t]+2*b+h}, v{x+2*h}, v{x+2*h+1}')
    for t in range(2):
        vconv(PR + 8 + 4 * t, t, 0)
        for b in range(4): vconv(acc(4 + t, b), t, b + 1)
    T = lambda b: 32 + 4 * b
    odd = f's[{M_ODD}:{M_ODD+1}]'
    for b in (1, 2, 3, 0):
        a.emit(f'v_cndmask_b32 v{Sc(b)}, v{Sc(b)}, v{Sc(b)+1}, {odd}')
        a.emit(f'v_cndmask_b32 v{Sp(b)}, v{Sp(b)}, v{Sp(b)+1}, {odd}')
        a.emit(f'v_cndmask_b32 v{Sc(b)+2}, v{Sc(b)+2}, v{Sc(b)+3}, {odd}')
        a.emit(f'v_cndmask_b32 v{Sp(b)+2}, v{Sp(b)+2}, v{Sp(b)+3}, {odd}')
        a.emit(f'v_cndmask_b32 v{T(b)}, v{Sc(b)}, v{Sp(b)}, s[{M_UPA}:{M_UPA+1}]')
        a.emit(f'v_cndmask_b32 v{T(b)+1}, v{Sc(b)+2}, v{Sp(b)+2}, s[{M_UPB}:{M_UPB+1}]')
        a.emit(f'v_mul_f32 v{T(b)}, v{T(b)}, v{RK+b}')
        a.emit(f'v_mul_f32 v{T(b)+1}, v{T(b)+1}, v{RK+4+b}')
    a.emit(f'v_mov_b32 v48, {f2u(-1e9 * 1.4426950408889634):#x}')
    a.emit(f'v_cndmask_b32 v{T(0)}, v{T(0)}, v48, s[{M_FA}:{M_FA+1}]')
    a.emit(f'v_cndmask_b32 v{T(0)+1}, v{T(0)+1}, v48, s[{M_FB}:{M_FB+1}]')
    for b in range(4): a.emit(f'v_max_f32 v{T(b)+2}, v{T(b)}, v{T(b)+1}')
    for op in ('32', '16'):
        for b in range(4): a.emit(f'v_mov_b32 v{T(b)+3}, v{T(b)+2}')
        for b in range(4): a.emit(f'v_permlane{op}_swap_b32 v{T(b)+2}, v{T(b)+3}')
        for b in range(4): a.emit(f'v_max_f32 v{T(b)+2}, v{T(b)+2}, v{T(b)+3}')
    for b in range(4):
        a.emit(f'v_sub_f32 v{T(b)}, v{T(b)}, v{T(b)+2}')
        a.emit(f'v_sub_f32 v{T(b)+1}, v{T(b)+1}, v{T(b)+2}')
    for b in range(4):
        a.emit(f'v_exp_f32 v{T(b)}, v{T(b)}')
        a.emit(f'v_exp_f32 v{T(b)+1}, v{T(b)+1}')
    P = lambda b: acc(0, b)
    for b in range(4):
        a.emit(f'v_cvt_pk_bf16_f32 v{T(b)}, v{T(b)}, v{T(b)}')
        a.emit(f'v_cvt_pk_bf16_f32 v{T(b)+1}, v{T(b)+1}, v{T(b)+1}')
        a.emit(f'v_and_b32 v{P(b)}, v{T(b)}, v{MAP}')
        a.emit(f'v_and_b32 v{P(b)+1}, v{T(b)+1}, v{MBP}')
        a.emit(f'v_and_b32 v{P(b)+2}, v{T(b)}, v{MAC}')
        a.emit(f'v_and_b32 v{P(b)+3}, v{T(b)+1}, v{MBC}')
        if b >= 1:
            q = b - 1
            a.emit(mfma(acc(1, q), ONES, P(q), '0'))
            a.emit(mfma(acc(4, q), VV[0] + 2 * q, P(q), '0'))
            a.emit(mfma(acc(5, q), VV[1] + 2 * q, P(q), '0'))
    q = 3
    a.emit(mfma(acc(1, q), ONES, P(q), '0'))
    a.emit(mfma(acc(4, q), VV[0] + 2 * q, P(q), '0'))
    a.emit(mfma(acc(5, q), VV[1] + 2 * q, P(q), '0'))
    if ENV('ES'): stamp(a, 1)
    no = 'wo' in NS
    if no:
        a.emit(f's_cmp_eq_u32 s{S_WM}, 1')
        a.emit(f's_cbranch_scc1 L_{kind}_out1')
    for w in range(2 if no else 1):
        if w: a.label(f'L_{kind}_out1')
        for b in range(4):
            r = acc(1, b); d = 48 + 4 * b
            a.emit(f'v_rcp_f32 v{r}, v{r}')
            a.emit(f's_mov_b32 s3, {b * 16 * (7168 if OH else 2048)}')
            for t in range(2):
                x = acc(4 + t, b)
                for h in range(2):
                    a.emit(f'v_pk_mul_f32 v[{x+2*h}:{x+2*h+1}], v[{x+2*h}:{x+2*h+1}], v[{r}:{r+1}] op_sel_hi:[1,0]')
            for t in range(2):
                x = acc(4 + t, b)
                for h in range(2):
                    a.emit(f'v_cvt_pk_bf16_f32 v{d+2*(t^w)+h}, v{x+2*h}, v{x+2*h+1}')
            if not no:
                a.emit('s_nop 1')
                a.emit(f'v_permlane16_swap_b32 v{d}, v{d+2}')
                a.emit(f'v_permlane16_swap_b32 v{d+1}, v{d+3}')
            a.emit(f'buffer_store_dwordx4 v[{d}:{d+3}], v{VO}, s[{SO}:{SO+3}], s3 offen{stf(kind)}')
        if no and not w: a.emit(f's_branch L_{kind}_out2')
    if no: a.label(f'L_{kind}_out2')
    compute_end(a, kind)
    a.label(f'L_{kind}_loader')
    L = Loader(a, kind, K, lda2, ldw2, [0, 2048, 4096], 128, S, STAGE, halo=XH, rot=int(ENV('ROT_QKV', '0')))
    L.skip = DS
    L.setup()
    a.emit('s_waitcnt lgkmcnt(0)')
    srd_xs(a, SX); srd(a, SW, 'wqkv', 0, 1024 * 6144)
    import sides
    fill = []
    if ENV('DX', '2') == '1' and ENV('CLP', 'e') == 'l':
        a.emit('s_and_b32 s3, s2, 3')
        a.emit(f's_and_b32 s4, s{S_CU}, 3')
        a.emit('s_lshl2_add_u32 s3, s3, s4')
        a.emit('s_bfe_u32 s4, s2, 0x10002')
        a.emit(f's_lshr_b32 s5, s{S_CU}, 2')
        a.emit('s_lshl1_add_u32 s4, s5, s4')
        a.emit('s_lshl4_add_u32 s3, s3, s4')
        a.emit(f's_and_b32 s4, s{S_WV}, 3')
        a.emit('s_lshl2_add_u32 s3, s3, s4')
        a.emit('s_lshl_b32 s3, s3, 12')
        srd(a, SB, 'ws', WS_XP, 0 if 'fill0' in DBG else 4096)
        if 'fillfl' in DBG:
            srd(a, SB, 'ws0', WS_FL + MB, 4096)
            a.emit('s_and_b32 s3, s3, 0xfffff')
        a.emit(f's_add_u32 s{SB}, s{SB}, s3')
        a.emit(f's_addc_u32 s{SB+1}, s{SB+1}, 0')
        FW_ = int(ENV('FILLW', '2'))
        a.emit(f'v_mul_u32_u24 v29, {4 * FW_}, v1')
        for i in range(4): a.emit(f'v_mov_b32 v{24+i}, -1')
        fill = [f'buffer_store_dword{"x" + str(FW_)} v[24:{23 + FW_}], v29, s[{SB}:{SB+3}], 0 offen' + ('' if 'fillwb' in DBG else ' sc1'), f'v_add_u32 v29, {256 * FW_}, v29']
        assert sides.STV[3] == 0
    a.emit(f's_cmp_lg_u32 s{S_LAYER}, 0')
    a.emit(f's_cbranch_scc1 L_{kind}_ld1')
    post = list(sides.stouch_post(a, kind)) + fill
    SPF = [int(x) for x in ENV('SPF', '0,0,2').split(',')]
    def spf():
        hs = range(SPF[2])
        return ([f's_buffer_load_dword s84, s[{SX}:{SX+3}], s85 offset:{2048*r+64*h}' for r in range(2) for h in hs] +
                [f's_buffer_load_dword s84, s[{SW}:{SW+3}], s86 offset:{2048*p+64*h}' for p in range(3) for h in hs] +
                ['s_add_u32 s85, s85, 128', f's_add_u32 s86, s86, {64*ldw2}'])
    def spf_start():
        if not SPF[1]: return
        a.emit(f's_and_b32 s3, s{S_WV}, 3')
        a.emit(f's_lshl2_add_u32 s3, s{S_CU}, s3')
        a.emit('s_and_b32 s4, s2, 1')
        a.emit('s_bfe_u32 s5, s2, 0x20001')
        a.emit('s_lshl2_add_u32 s85, s4, s5')
        a.emit('s_lshl_b32 s85, s85, 7')
        a.emit('s_add_u32 s85, s85, s3')
        a.emit('s_lshl_b32 s85, s85, 12')
        a.emit(f's_add_u32 s85, s85, {128*SPF[0]}')
        a.emit('s_lshl_b32 s4, s4, 5')
        a.emit(f's_add_u32 s4, s4, s{S_CU}')
        a.emit(f's_add_u32 s4, s4, {64*SPF[0]}')
        a.emit(f's_mul_i32 s86, s4, {ldw2}')
        a.emit('s_and_b32 s3, s3, 3')
        a.emit('s_lshl2_add_u32 s3, s5, s3')
        a.emit('s_lshl_b32 s3, s3, 7')
        a.emit('s_add_u32 s86, s86, s3')
        for i in range(SPF[0], SPF[1]):
            for x in spf(): a.emit(x)
    if SPF[1]: post += spf()
    VPF = [int(x) for x in ENV('VPF', '0,0,1').split(',')]
    def vpf():
        k0, nk, hs = VPF
        if not nk: return 0
        a.emit(f's_and_b32 s3, s{S_WV}, 3')
        a.emit(f's_lshl2_add_u32 s3, s{S_CU}, s3')
        a.emit('s_and_b32 s4, s2, 1')
        a.emit('s_bfe_u32 s5, s2, 0x20001')
        a.emit('s_lshl2_add_u32 s85, s4, s5')
        a.emit('s_lshl_b32 s85, s85, 7')
        a.emit('s_add_u32 s85, s85, s3')
        a.emit('s_lshl_b32 s85, s85, 12')
        a.emit('s_lshl_b32 s4, s4, 7')
        a.emit('s_add_u32 s4, s4, s3')
        a.emit(f's_add_u32 s4, s4, {64*k0}')
        a.emit(f's_mul_i32 s86, s4, {ldw2}')
        a.emit('s_lshl_b32 s5, s5, 9')
        a.emit('s_add_u32 s86, s86, s5')
        a.emit('v_and_b32 v2, 15, v1')
        a.emit(f'v_min_u32 v3, {nk-1}, v2')
        a.emit('v_and_b32 v22, 16, v1')
        a.emit('v_add_lshl_u32 v22, v22, v3, 7')
        a.emit('v_min_u32 v2, 11, v2')
        a.emit('v_lshrrev_b32 v3, 2, v2')
        a.emit('v_and_b32 v2, 3, v2')
        a.emit('v_lshl_add_u32 v2, v3, 4, v2')
        a.emit('v_lshrrev_b32 v3, 4, v1')
        a.emit(f'v_min_u32 v3, {nk//4-1}, v3')
        a.emit(f'v_mul_u32_u24 v3, {256*ldw2}, v3')
        a.emit('v_lshl_add_u32 v23, v2, 7, v3')
        for h in range(hs):
            a.emit(f'buffer_load_dword v24, v23, s[{SW}:{SW+3}], s86 offen offset:{64*h}')
            a.emit(f'buffer_load_dword v25, v22, s[{SX}:{SX+3}], s85 offen offset:{128*k0+64*h}')
        return 2 * hs
    TG_ = int(ENV('TLBG', '0'))
    if TG_:
        srd(a, SO, 'ws0', 0, 256 * MB)
        a.emit(f's_and_b32 s3, s{S_WV}, 3')
        a.emit(f's_lshl2_add_u32 s3, s{S_CU}, s3')
        a.emit(f's_lshl_b32 s86, s3, {TG_}')
        tl = [f's_buffer_load_dword s84, s[{SO}:{SO+3}], s86', f's_add_u32 s86, s86, {128 << TG_}']
        if TG_ < 21: post += tl
    extra = tail_parks('wo', SP, lambda b: srd(b, SP, 'wo', 0, 2 * MB))
    sch0 = [int(c) for c in ENV('TSO0', '00000')]
    extra0 = tail_parks('wo', SP, lambda b: srd(b, SP, 'wo', 0, 2 * MB), sch0 + [sum(TSCH['wo']) - sum(sch0)])
    npk = 2 * sum(TSCH['wo']) if XD else 0
    def start():
        sides.cls_touch(a)
        if TG_:
            for x in tl: a.emit(x)
            a.emit(f's_and_b32 s3, s{S_WV}, 3')
            a.emit(f's_lshl2_add_u32 s3, s{S_CU}, s3')
            for w, sz in (('out', 4 * MB), ('wo', 2 * MB), ('w1', 7 * MB), ('b1', 4096), ('b2', 2048)):
                srd(a, SC, w, 0, sz)
                a.emit(f's_mul_i32 s4, s3, {sz // 128}')
                a.emit(f's_buffer_load_dword s84, s[{SC}:{SC+3}], s4')
        if ENV('DX', '2') != '1' or ENV('CLP', 'e') != 's': return 0
        srd(a, ST, 'ws0', WS_XP, LSTR + 4 * MB)
        a.emit('s_and_b32 s3, s2, 3')
        a.emit(f's_and_b32 s4, s{S_CU}, 3')
        a.emit('s_lshl2_add_u32 s3, s3, s4')
        a.emit('s_bfe_u32 s4, s2, 0x10002')
        a.emit(f's_lshr_b32 s5, s{S_CU}, 2')
        a.emit('s_lshl1_add_u32 s4, s5, s4')
        a.emit('s_lshl4_add_u32 s3, s3, s4')
        a.emit(f's_and_b32 s4, s{S_WV}, 3')
        a.emit('s_lshl2_add_u32 s3, s3, s4')
        a.emit('s_lshl_b32 s3, s3, 12')
        a.emit(f's_add_u32 s4, s3, {LSTR}')
        a.emit('v_lshlrev_b32 v2, 4, v1')
        for i in range(4): a.emit(f'v_mov_b32 v{32+i}, -1')
        for i in range(8): a.emit(f'buffer_store_dwordx4 v[32:35], v2, s[{ST}:{ST+3}], s{3+(i>>2)} offen offset:{1024*(i&3)} sc1')
        return 8
    final0 = None
    TL0 = int(ENV('TL0', '1' if DS else '0'))
    if DS:
        STQ0 = int(ENV('STQ0', '14'))
        assert HK[-1] < STQ0 <= 13 + TL0
        def start():
            nv = vpf()
            if sides.CE:
                assert sum(sides.CE.values()) == 8
                sides.cs_setup(a, SB, 95, 26)
                for x in sides.cs_at(-1): a.emit(x)
                nv += sides.CE.get(-1, 0)
            spf_start()
            sides.cls_touch(a)
            srd(a, ST, 'ws0', WS_ST0, 16 * 16384)
            stats4_setup(a, True)
            if D2:
                if CF: a.emit('v_lshlrev_b32 v20, 2, v1')
                else: dbg_off(a, 20)
                a.emit(f's_and_b32 s{SC+1}, s{SC+1}, 0xffff')
                a.emit(f's_mov_b32 s{SC+2}, 256')
                a.emit(f's_mov_b32 s{SC+3}, 0x00020000')
            for x in pads.chain(-1): a.emit(x)
            return nv
        pl2 = f'buffer_load_dword v21, v20, s[{SC}:{SC+3}], 0 offen sc1'
        ck2 = ['s_mov_b32 s5, 0x100000', 'L_attn_dchk:', 'v_or_b32 v13, 0xfefefefe, v21', 'v_cmp_ne_u32 vcc, -1, v13', 's_cbranch_vccz L_attn_dok', 's_sub_u32 s5, s5, 1\n  ' + pl2,
               's_waitcnt vmcnt(0)', 's_cbranch_scc0 L_attn_dchk', 'L_attn_dok:'] if D2 else []
        extra0 = lambda i: (ck2 + stats4_loads(32, True) if i == STQ0 else [pl2] if D2 and i == STQ0 - 3 else []) + sides.cs_at(i) + sides.cs_acc(i) + pads.chain(i)
        def chk0():
            a.emit('v_cmp_u_f32 vcc, v32, v33')
            a.emit('v_cmp_u_f32 s[4:5], v48, v49')
            a.emit('s_or_b64 s[4:5], vcc, s[4:5]')
            a.emit('s_cbranch_scc0 L_attn_sok')
            a.emit(f's_sub_u32 s{S_CNT}, s{S_CNT}, 1')
            a.emit('s_cbranch_scc1 L_attn_sok')
            for x in stats4_loads(32, True): a.emit(x + (' sc1' if x.startswith('buf') else ''))
            a.emit('s_waitcnt vmcnt(0)')
            a.emit('s_branch L_attn_schk')
            a.label('L_attn_sok')
        def final0():
            a.emit(f's_mov_b32 s{S_CNT}, 0x4000')
            a.emit(f"s_waitcnt vmcnt({side(Asm(), 0, 'issue') + sum(n for e, n in sides.CE.items() if e >= STQ0)})")
            a.label('L_attn_schk')
            stats4_store(a, 32, LST, True, chk0 if D2 else None)
            a.emit('s_waitcnt lgkmcnt(0)')
    L.run('0', tail_issue=lambda: side(a, 0, 'issue'), ntail_vm=side(Asm(), 0, 'issue'), post=post, start=start, extra=extra0, tail_late=TL0, final=final0, exfirst=True)
    for i in (16,) if DS else (16, 17):
        if XD:
            for x in extra0(i): a.emit(x)
        if WE < 0: a.emit('s_barrier')
    if XD:
        for x in extra0(18): a.emit(x)
    if ONE:
        a.emit(f's_branch L_{kind}_ldend')
    else:
        side(a, 0, 'finish')
        a.emit('s_endpgm')
    a.label(f'L_{kind}_ld1')
    if ',' in L.kord():
        L.ktable(int(L.kord().split(',')[1]))
        L.ot = int(ot); L.hx = HX - XH
        for x in ([] if ot else L.knext()): a.emit(x)
    srd(a, ST, 'ws0', WS_ST2, 16 * 16384)
    n1 = side(Asm(), 1, 'issue')
    def tail1():
        stats_loads(a, 32, True)
        side(a, 1, 'issue')
    def final1():
        a.emit(f's_waitcnt vmcnt({n1 + npk})')
        stats_reduce_store(a, 32, LST)
        a.emit('s_waitcnt lgkmcnt(0)')
    if T4:
        stats4_setup(a, True)
        TL1 = int(ENV('TL1', '0'))
        def final4():
            a.emit(f"s_waitcnt vmcnt({n1 if int(ENV('STQ', '14')) < 13 + TL1 < 15 else 0})")
            stats4_store(a, 32, LST, True, nan_chk(a, 'L_attn_t', True) if SF else None)
            a.emit('s_waitcnt lgkmcnt(0)')
        if ZD:
            srd(a, SC, 'ws0', WS_FL, FLS)
            a.emit('v_and_b32 v30, 3, v1')
            a.emit('v_lshlrev_b32 v30, 6, v30')
            a.emit(f's_mov_b32 s{S_CNT}, 0x100000')
        def zbar():
            xpoll(a, 'L_attn_x', SC, S_Q, 30, 12)
            a.emit('s_barrier')
        def pref1():
            if ZD == 'b': zbar()
            a.emit('s_waitcnt vmcnt(0)')
        if ZD == 'a': zbar()
        L.run('1', tail_issue=lambda: side(a, 1, 'issue'), ntail_vm=n1, tail_late=TL1, final=final4, extra=lambda i: stats4_loads(32, True) if i == int(ENV('STQ', '14')) else [],
              post=fill, dep=lambda pf: dep_wait(a, kind, halo=True, postf=pf, pref=pref1 if ot else None))
    else: L.run('1', tail_issue=tail1, ntail_vm=16 + n1, final=final1, extra=extra, post=fill, dep=(lambda pf: dep_wait(a, kind, halo=True, postf=pf)) if MEGA else None)
    if WE < 0: a.emit('s_barrier')
    if not MEGA: side(a, 1, 'finish')
    a.label(f'L_{kind}_ldend')
    loader_end(a, kind, check=False)
    a.label(end)
    a.emit('s_endpgm')
    loader_first(a, kind)
    a(KD.format(name=f'{kind}l0_kernel'))
    if not MEGA:
        stub(a, f'{kind}l1_kernel', body, 1, tsidx + 4, False)
        a(KD.format(name=f'{kind}l1_kernel'))
    a.label(f'L_{kind}_c1')
    return LST + 1280
```

```python
from common import *
LM_WO = int(ENV('LM_WO', '2')); LM_W1 = int(ENV('LM_W1', '3')); LM_W2 = int(ENV('LM_W2', '2')); LM_QKV = int(ENV('LM_QKV', '3'))
PFW2 = int(ENV('PFW2', '0'))
PV = 96

def fin(a):
    a.emit('s_waitcnt vmcnt(0)')

def pf_wo(a):
    L = 1 << (5 - LM_WO)
    sh = 5 - LM_WO
    return pf_weights(a, SP, 'wo', 2 * MB, 2048, 32, sh, L, LM_WO, 128, max(1, (8 << sh) // 64), PV, pair=SPX)

PF1 = int(ENV('PF1', '0'))
def pf_w1(a, sd=SP):
    if not PF1: return 0
    lm = 2 if 'w1' in OT else LM_W1
    u = 1 << (5 - lm)
    sh = 7 - lm
    srd(a, sd, 'w1', 0, 1024 * 7168)
    a.emit(f's_and_b32 s3, s{S_WV}, 3')
    a.emit(f's_lshl2_add_u32 s3, s{S_CU}, s3')
    a.emit(f's_mul_i32 s3, s3, {64 >> sh}')
    a.emit(f"s_add_u32 s3, s3, {1024 - int(ENV('PF1B', '64'))}")
    a.emit(f'v_lshrrev_b32 v2, {sh}, v1')
    a.emit('v_add_u32 v12, s3, v2')
    a.emit(f'v_and_b32 v3, {4 * u - 1}, v1')
    a.emit(f'v_min_u32 v3, {7 * u // 2 - 1}, v3')
    a.emit('s_and_b32 s3, s2, 7')
    a.emit(f's_lshr_b32 s3, s3, {4 - lm}')
    a.emit(f's_mul_i32 s4, s3, {-(u // 2)}')
    a.emit(f's_add_u32 s4, s4, {16 - u}')
    a.emit(f's_mul_i32 s5, s3, {u}')
    a.emit(f's_add_u32 s5, s5, {24 - 3 * u // 2}')
    a.emit(f's_mul_i32 s3, s3, {u * 128}')
    a.emit(f'v_cmp_le_u32 vcc, {u}, v3')
    a.emit('v_mov_b32 v2, s4')
    a.emit('v_mov_b32 v13, s5')
    a.emit('v_cndmask_b32 v2, 0, v2, vcc')
    a.emit(f'v_cmp_le_u32 vcc, {3 * u // 2}, v3')
    a.emit('s_movk_i32 s4, 7168')
    a.emit('s_nop 0')
    a.emit('v_cndmask_b32 v2, v2, v13, vcc')
    a.emit('v_add_lshl_u32 v3, v3, v2, 7')
    for i in range(PF1):
        if i: a.emit(f'v_add_u32 v12, {128 * (64 >> sh)}, v12')
        a.emit('v_and_b32 v2, 1023, v12')
        a.emit('v_mad_u32_u24 v2, v2, s4, v3')
        a.emit(f'buffer_load_dword v{PV+4+i}, v2, s[{sd}:{sd+3}], s3 offen')
    return PF1

def touch(a, which, size, vd, l0only=True):
    if 'nopf' in DBG: return 0
    per = size // 128 // 1024
    assert per <= 64
    srd(a, SP, which, 0, size)
    a.emit(f's_and_b32 s3, s{S_WV}, 3')
    a.emit('s_lshl_b32 s4, s2, 2')
    a.emit('s_add_u32 s3, s3, s4')
    a.emit(f's_mul_i32 s3, s3, {per * 128}')
    a.emit(f'v_min_u32 v2, {per - 1}, v1')
    a.emit('v_lshlrev_b32 v2, 7, v2')
    if l0only:
        a.emit(f's_sub_u32 s4, s{S_LAYER}, 1')
        a.emit('v_and_b32 v2, s4, v2')
    a.emit(f'buffer_load_dword v{vd}, v2, s[{SP}:{SP+3}], s3 offen')
    return 1

def fill(a):
    if ENV('DX', '2') != '1' or ENV('CLP', 'e') != 't': return 0
    srd(a, SB, 'ws', WS_XP, 4 * MB)
    a.emit('s_and_b32 s3, s2, 3')
    a.emit(f's_and_b32 s4, s{S_CU}, 3')
    a.emit('s_lshl2_add_u32 s3, s3, s4')
    a.emit('s_bfe_u32 s4, s2, 0x10002')
    a.emit(f's_lshr_b32 s5, s{S_CU}, 2')
    a.emit('s_lshl1_add_u32 s4, s5, s4')
    a.emit('s_lshl4_add_u32 s3, s3, s4')
    a.emit(f's_and_b32 s4, s{S_WV}, 3')
    a.emit('s_lshl2_add_u32 s3, s3, s4')
    a.emit('s_lshl_b32 s3, s3, 12')
    a.emit('v_lshlrev_b32 v2, 4, v1')
    for i in range(4): a.emit(f'v_mov_b32 v{24+i}, -1')
    for i in range(4): a.emit(f'buffer_store_dwordx4 v[24:27], v2, s[{SB}:{SB+3}], s3 offen offset:{1024*i} sc1')
    return 4

CE = dict((int(x.split(':')[0]), int(x.split(':')[1])) for x in ENV('CE', '0:2,1:2,2:2,3:2').split(',') if x)
def cs_setup(a, sd, so, vo):
    srd(a, sd, 'w1', 0, 0 if 'nocs' in DBG else 1024 * 7168)
    a.emit('s_min_u32 s3, s2, 223')
    a.emit('s_mul_i32 s4, s3, 4682')
    a.emit('s_lshr_b32 s4, s4, 16')
    a.emit('s_mul_i32 s5, s4, 14')
    a.emit('s_sub_u32 s3, s3, s5')
    a.emit('s_lshl_b32 s3, s3, 2')
    a.emit(f's_and_b32 s5, s{S_WV}, 3')
    a.emit('s_add_u32 s3, s3, s5')
    a.emit(f's_mul_i32 s5, s4, {64 * 7168}')
    a.emit('s_lshl_b32 s8, s3, 7')
    a.emit(f's_add_u32 s{so}, s5, s8')
    a.emit('s_lshl_b32 s9, s4, 14')
    a.emit('s_lshl_b32 s8, s3, 8')
    a.emit('s_add_u32 s94, s9, s8')
    a.emit('v_lshrrev_b32 v2, 3, v1')
    a.emit('v_mul_u32_u24 v2, 7168, v2')
    a.emit('v_and_b32 v3, 7, v1')
    a.emit(f'v_lshl_add_u32 v{vo}, v3, 4, v2')
def cs_loads(sd, so, vo, js):
    o = []
    for j in js:
        o.append(f'buffer_load_dwordx4 v[{64+4*j}:{67+4*j}], v{vo}, s[{sd}:{sd+3}], s{so} offen')
        if j < 7: o.append(f's_add_u32 s{so}, s{so}, {8 * 7168}')
    return o
def cs_at(i):
    j0 = sum(n for e, n in CE.items() if e < i)
    return cs_loads(SB, 95, 26, range(j0, j0 + CE.get(i, 0)))

CFS = [int(x) for x in ENV('CFS', '12,13').split(',')]
def cs_acc(i):
    if not CF or i not in CFS: return []
    n = 8 // len(CFS); o = ['s_movk_i32 s5, 0x3f80', 's_lshl_b32 s6, s5, 16']
    for j in range(n * CFS.index(i), n * CFS.index(i) + n):
        o += [f'v_dot2_f32_bf16 v{100+2*k+h}, v{64+4*j+k}, s{5+h}, ' + (f'v{100+2*k+h}' if j else '0') for k in range(4) for h in range(2)]
    return o
def cs_out(a, r):
    srd(a, SB, 'ws0', WS_CS, 16 * 16384)
    for i in range(4): a.emit(f'v_permlane32_swap_b32 v{r+i}, v{r+4+i}')
    for i in range(4): a.emit(f'v_add_f32 v{r+i}, v{r+i}, v{r+4+i}')
    a.emit('v_and_b32 v2, 7, v1')
    a.emit('v_lshlrev_b32 v2, 5, v2')
    for i in range(2): a.emit(f'v_permlane16_swap_b32 v{r+i}, v{r+2+i}')
    for i in range(2): a.emit(f'v_add_f32 v{r+i}, v{r+i}, v{r+2+i}')
    a.emit('v_lshrrev_b32 v3, 4, v1')
    a.emit('v_lshl_add_u32 v2, v3, 3, v2')
    for i in range(2): a.emit(f'v_add_f32_dpp v{r+i}, v{r+i}, v{r+i} row_ror:8 row_mask:0xf bank_mask:0xf')
    a.emit(f'buffer_store_dwordx2 v[{r}:{r+1}], v2, s[{SB}:{SB+3}], s94 offen sc1')

def qkv(a, layer, phase, npre=0):
    if phase == 'issue':
        n = 0
        if layer == 0:
            if not CE:
                cs_setup(a, SC, 5, 2)
                for x in cs_loads(SC, 5, 2, range(8)): a.emit(x)
                n += 8
            from gemmw2 import zero_flags
            if not ONE: n += zero_flags(a)
            if ENV('TW2') == 'qkv': n += touch(a, 'w2', 3584 * 2048, PV + 2, False)
        if ENV('CLO', '0') == '1': n += fill(a)
        if ENV('PWO', 'v') == 'v': n += pf_wo(a)
        if str(layer) in ENV('PF1L', '01'): n += pf_w1(a)
        if ENV('CLO', '0') == '0': n += fill(a)
        if CF and layer == 0:
            cs_out(a, 100); n += 1
            if GM: l2_mode(a, 21)
        return n
    if layer == 0:
        a.emit(f's_waitcnt vmcnt({npre})')
        a.emit('s_mov_b32 s7, 0xffff0000')
        for i in range(4):
            a.emit(f'v_lshlrev_b32 v{32+2*i}, 16, v{64+i}')
            a.emit(f'v_and_b32 v{33+2*i}, s7, v{64+i}')
        for j in range(1, 8):
            for i in range(4):
                a.emit(f'v_lshlrev_b32 v40, 16, v{64+4*j+i}')
                a.emit(f'v_and_b32 v41, s7, v{64+4*j+i}')
                a.emit(f'v_pk_add_f32 v[{32+2*i}:{33+2*i}], v[{32+2*i}:{33+2*i}], v[40:41]')
        srd(a, SB, 'ws0', WS_CS, 16 * 16384)
        for i in range(4): a.emit(f'v_permlane32_swap_b32 v{32+i}, v{36+i}')
        for i in range(4): a.emit(f'v_add_f32 v{32+i}, v{32+i}, v{36+i}')
        a.emit('v_and_b32 v2, 7, v1')
        a.emit('v_lshlrev_b32 v2, 5, v2')
        for i in range(2): a.emit(f'v_permlane16_swap_b32 v{32+i}, v{34+i}')
        for i in range(2): a.emit(f'v_add_f32 v{32+i}, v{32+i}, v{34+i}')
        a.emit('v_lshrrev_b32 v3, 4, v1')
        a.emit('v_lshl_add_u32 v2, v3, 3, v2')
        for i in range(2): a.emit(f'v_add_f32_dpp v{32+i}, v{32+i}, v{32+i} row_ror:8 row_mask:0xf bank_mask:0xf')
        a.emit(f'buffer_store_dwordx2 v[32:33], v2, s[{SB}:{SB+3}], s94 offen sc1')
        if ONE and not SPX: a.emit('s_waitcnt vmcnt(0)')
    else:
        fin(a)

def wo(a, phase):
    if phase == 'issue':
        return touch(a, 'w2', 3584 * 2048, PV) if ENV('TW2') == 'wo' else 0
    fin(a)

SL = int(ENV('SL', '64'))
def stouch(a, which, size, sd, sreg, first, lps, pre=0, per=None):
    if lps == 0: return []
    srd(a, sd, which, 0, size)
    a.emit(f's_cmp_eq_u32 s{S_LAYER}, 0')
    a.emit(f's_cselect_b32 s{sd+2}, s{sd+2}, 0')
    a.emit(f's_and_b32 s3, s{S_WV}, 3')
    a.emit('s_lshl_b32 s4, s2, 2')
    a.emit('s_add_u32 s3, s3, s4')
    a.emit(f's_mul_i32 s{sreg}, s3, {per * SL // 64 if per else size // 1024}')
    if per:
        a.emit(f's_add_u32 s{sreg}, s{sreg}, {first * SL * 1024}')
        first = 0
    for i in range(pre): a.emit(f's_buffer_load_dword s84, s[{sd}:{sd+3}], s{sreg} offset:{SL*(first+i)}')
    return [f's_buffer_load_dword s84, s[{sd}:{sd+3}], s{sreg} offset:{SL*(first+pre+i)}' for i in range(lps)] + [f's_add_u32 s{sreg}, s{sreg}, {SL*lps}']

STV = [int(x) for x in ENV('STV', '4,0,4,0').split(',')]
def stouch_post(a, kind):
    if ENV('TW2', 's') != 's': return ()
    if kind == 'attn':
        n1 = int(ENV('STW1', '0'))
        return stouch(a, 'w1', 1024 * 7168, SB, 86, 0, n1, per=14 * 64 * n1) + stouch(a, 'w2', 3584 * 2048, SR, S_T, 0, STV[0], per=14 * 64 * STV[0]) + stouch(a, 'wo', 2 * MB, SB, 86, 0, STV[3], pre=max(0, 32 - 14 * STV[3]))
    if kind == 'wo': return stouch(a, 'w2', 3584 * 2048, SP, S_T, 14 * STV[0], STV[1])
    if kind == 'w1': return stouch(a, 'w2', 3584 * 2048, SP, S_T, 14 * STV[0], STV[2], per=14 * 64 * STV[2], pre=STV[2] if 'w1' in OT else 0)
    if kind == 'w2': return cls_w2(a)
    return ()

def cls_w2(a):
    P = int(ENV('CW2', '8'))
    if P == 0: return ()
    a.emit(f's_and_b32 s3, s{S_WV}, 3')
    a.emit(f's_lshl_b32 s4, s{S_CU}, 2')
    a.emit('s_add_u32 s3, s3, s4')
    a.emit('s_lshl_b32 s4, s3, 6')
    a.emit('s_and_b32 s4, s4, 64')
    a.emit('s_lshr_b32 s3, s3, 1')
    a.emit(f's_lshl_b32 s{S_T}, s3, 11')
    a.emit(f's_add_u32 s{S_T}, s{S_T}, s4')
    a.emit(f's_sub_u32 s4, 384, s{SW}')
    a.emit('s_and_b32 s4, s4, 0x380')
    a.emit(f's_add_u32 s{S_T}, s{S_T}, s4')
    a.emit(f's_lshl_b32 s4, s{S_NT}, 7')
    a.emit('s_and_b32 s4, s4, 1024')
    a.emit(f's_add_u32 s{S_T}, s{S_T}, s4')
    a.emit(f's_add_u32 s{S_T}, s{S_T}, {(30 if VW else 16 * max(1, PFW2) if XD else 4) * 131072}')
    o = [f's_buffer_load_dword s84, s[{SW}:{SW+3}], s{S_T}', f's_add_u32 s{S_T}, s{S_T}, 131072']
    if VW:
        for x in o * (P // 2): a.emit(x)
        return o * 2
    for i in range(P + 1):
        for x in o: a.emit(x)
    return o

def w1(a, phase):
    if phase == 'late' or (phase == 'issue' and ENV('PFL', '2') == '0'):
        NI = PFW2
        if phase == 'late' and ENV('PFL', '2') == '0': return
        if XD and NI: return pf_weights(a, SR, 'w2', 3584 * 2048, 2048, 32 * NI, 3, 8, 2, 128, NI, PV)
        return 0
    if phase == 'issue': return 0
    if not XD: fin(a)

def w2(a, phase):
    return 0

def cls_touch(a):
    m = ENV('CLS', 'w')
    if m == '0': return
    a.emit(f's_and_b32 s3, s{S_WV}, 3')
    a.emit('s_lshl_b32 s4, s2, 2')
    a.emit('s_add_u32 s3, s3, s4')
    a.emit(f's_sub_u32 s4, 384, s{SW}')
    a.emit('s_and_b32 s4, s4, 0x380')
    a.emit('s_mul_i32 s5, s3, 6144')
    a.emit('s_add_u32 s5, s5, s4')
    for j in range(6):
        for h in range(2): a.emit(f's_buffer_load_dword s84, s[{SW}:{SW+3}], s5 offset:{1024*j+64*h}')
    if m == 'wx':
        a.emit(f's_sub_u32 s4, 384, s{SX}')
        a.emit('s_and_b32 s4, s4, 0x380')
        a.emit('s_lshl_b32 s5, s3, 12')
        a.emit('s_add_u32 s5, s5, s4')
        for j in range(4):
            for h in range(2): a.emit(f's_buffer_load_dword s84, s[{SX}:{SX+3}], s5 offset:{1024*j+64*h}')
```

```python
import sys, os, struct
sys.path.insert(0, os.path.join(os.path.dirname(os.path.abspath(__file__)), '..'))
from asmlib import Asm, check_offsets
MB = 1 << 20
WSB = int(os.environ.get('WSB', '0')) * MB
WS_O   = WSB
WS_X1  = WSB + 4 * MB
WS_H   = WSB + 8 * MB
WS_ST  = WSB + 23 * MB
WS_CS  = WSB + 23 * MB + 512 * 1024
WS_ST0 = WSB + 23 * MB + 768 * 1024
D2 = os.environ.get('DS', '2') == '2'
DS = os.environ.get('DS', '2') in '12'
WS_TS  = 60 * MB
MEGA = os.environ.get('MEGA', '2') in ('1', '2')
ONE = os.environ.get('MEGA', '2') == '2'
LSTR = int(os.environ.get('LSTR', '64')) * MB
WS_ST2 = WS_ST + 256 * 1024 if MEGA else WS_ST
WS_FL = WSB + 40 * MB
FLS = 524288
REP = int(os.environ.get('REP', '16'))
WS_XP = WSB + 24 * MB
WS_X2 = WSB + 32 * MB
XPAD = int(os.environ.get('XPAD', '128')) if MEGA else 0
f2u = lambda f: struct.unpack('<I', struct.pack('<f', f))[0]
ENV = os.environ.get
TS = ENV('TS', '')
TE = ENV('TE', '')
DBG = ENV('DBG', '').split(',')
EARLY = int(ENV('EARLY', '0')) if MEGA and ENV('SPLIT', '0') == '0' else 0
def stf(kind): return (' ' + ENV('WTF', 'sc1')) if kind in ENV('WT', 'attn,wo,w2,w1').split(',') else ''

KA = {'A_x': 0, 'wqkv': 8, 'wo': 16, 'w1': 32, 'b1': 40, 'w2': 48, 'b2': 56, 'out': 64, 'ws': 80}
P_IN = 16
P_OUT = 32; P_WS = 34
P_XS = 12
PTR = {'A_x': 16, 'wqkv': 18, 'wo': 20, 'w1': 24, 'b1': 26, 'w2': 28, 'b2': 30, 'out': 32, 'ws': 34, 'xs': 12, 'ws0': 22}
SX, SW, SO, SR, SB, ST, SP, SC = 36, 40, 44, 48, 52, 56, 60, 64
S_MT, S_NT, S_WV, S_WM, S_WN = 68, 69, 70, 71, 72
S_KX, S_KW, S_SLOT, S_XD, S_WD, S_HD, S_CNT = 73, 74, 75, 76, 77, 78, 79
S_LAYER = 96; S_TSI = 97; S_T = 98; S_CU = 99; S_XG = 100; S_KT = 101

KD = '''.section .rodata,"a"
.p2align 6
.amdhsa_kernel {name}
  .amdhsa_next_free_vgpr 256
  .amdhsa_next_free_sgpr 102
  .amdhsa_accum_offset 256
  .amdhsa_group_segment_fixed_size 0
  .amdhsa_kernarg_size 88
  .amdhsa_user_sgpr_count 2
  .amdhsa_user_sgpr_kernarg_segment_ptr 1
  .amdhsa_system_sgpr_workgroup_id_x 1
  .amdhsa_float_denorm_mode_32 3
  .amdhsa_float_denorm_mode_16_64 3
.end_amdhsa_kernel
.text
'''

def srd(a, sd, which, off, size):
    p = PTR[which]
    if off:
        a.emit(f's_add_u32 s{sd}, s{p}, {off}')
        a.emit(f's_addc_u32 s{sd+1}, s{p+1}, 0')
        a.emit(f's_and_b32 s{sd+1}, s{sd+1}, 0xffff')
    else:
        a.emit(f's_mov_b32 s{sd}, s{p}')
        a.emit(f's_and_b32 s{sd+1}, s{p+1}, 0xffff')
    a.emit(f's_mov_b32 s{sd+2}, {size}')
    a.emit(f's_mov_b32 s{sd+3}, 0x00020000')

def xpitch(a, sd, inv=False):
    a.emit(f's_cmp_eq_u32 s{S_LAYER}, {0 if inv else 1}')
    a.emit(f's_cselect_b32 s{sd}, {XPAD}, 0')
    a.emit(f's_add_u32 s{sd}, s{sd}, 2048')

def srd_xs(a, sd):
    srd(a, sd, 'xs', 0, 4 * MB)
    xpitch(a, sd + 2)
    a.emit(f's_lshl_b32 s{sd+2}, s{sd+2}, 11')

def stub(a, name, body, layer, tsidx, first):
    a(f'.text\n.globl {name}\n.p2align 8\n.type {name},@function\n{name}:')
    if TS:
        stamp(a, 0, nowait=True)
    if TE: a.emit('s_memrealtime s[94:95]')
    for x in ENV('PERM', '').split():
        a.emit(f"s_bitcmp1_b32 s2, {x.split(':')[0]}")
        a.emit(f"s_cselect_b32 s3, {x.split(':')[1]}, 0")
        a.emit('s_xor_b32 s2, s2, s3')
    a.emit('s_load_dwordx4 s[16:19], s[0:1], 0')
    a.emit('s_load_dwordx2 s[20:21], s[0:1], 16')
    a.emit('s_load_dwordx2 s[22:23], s[0:1], 80')
    a.emit('s_load_dwordx8 s[24:31], s[0:1], 32')
    a.emit('s_load_dwordx2 s[32:33], s[0:1], 64')
    a.emit('s_load_dwordx2 s[34:35], s[0:1], 80')
    a.emit(f's_load_dwordx2 s[12:13], s[0:1], {0 if layer == 0 else 64}')
    if DS: a.emit(f's_load_dwordx2 s[{SC}:{SC+1}], s[0:1], 72')
    a.emit(f's_mov_b32 s{S_LAYER}, {layer}')
    if ENV('PADS', '0') == '1': a.emit('s_mov_b64 exec, -1')
    a.emit(f's_mov_b32 s{S_TSI}, {tsidx}')
    if not first:
        a.emit(f's_branch {body}')

def stamp(a, n, nowait=False):
    if not TS: return
    a.emit(f's_memrealtime s[{80+4*n}:{81+4*n}]')
    a.emit(f's_memtime s[{82+4*n}:{83+4*n}]')
    if not nowait: a.emit('s_waitcnt lgkmcnt(0)')

def stamps_out(a, tag):
    if not TS: return
    if not MEGA: a.emit('s_waitcnt vmcnt(0)')
    stamp(a, 3)
    if MEGA and tag == 'w1':
        for i in range(16): a.emit(f'v_writelane_b32 v31, s{80+i}, {i}')
        return
    srd(a, SP, 'ws0', WS_TS, 1 << 20)
    a.emit('s_lshl_b32 s4, s2, 6')
    a.emit(f's_lshl_b32 s5, s{S_TSI}, 16')
    a.emit('s_add_u32 s4, s4, s5')
    a.emit('v_mov_b32 v1, s4')
    for i in range(16): a.emit(f'v_mov_b32 v{4+i}, s{80+i}')
    a.emit('v_cmp_eq_u32 vcc, 0, v0')
    a.emit('s_and_saveexec_b64 s[6:7], vcc')
    a.emit(f's_cbranch_execz L_tsskip_{tag}')
    for j in range(4):
        a.emit(f'buffer_store_dwordx4 v[{4+4*j}:{7+4*j}], v1, s[{SP}:{SP+3}], 0 offen offset:{16*j}' + (' sc1' if ENV('DIAG') else ''))
    if MEGA and tag == 'w2':
        a.emit('s_mov_b64 exec, 0xffff')
        a.emit('s_sub_u32 s4, s4, 0x10000')
        a.emit('v_lshlrev_b32 v1, 2, v0')
        a.emit(f'buffer_store_dword v31, v1, s[{SP}:{SP+3}], s4 offen' + (' sc1' if ENV('DIAG') else ''))
    a.label(f'L_tsskip_{tag}')
    a.emit('s_mov_b64 exec, -1')

SPX = ENV('SPX', '1') == '1'
OT = ENV('OT', 'w1,w2,attn').split(',')
S_T0 = 91
OHB = 114688; OBIA = [10, 24, 124, 126]
NV = int(ENV('NV', '0'))
EF = int(ENV('EF', '0'))
NS = ENV('NS', 'wo,w1,w2').split(',')
NSR = ENV('NSR', '1') == '1'
SKL = ENV('SKL', '1') == '1'
SF = ENV('SF', '0') == '1'
WD = ENV('WD', 'c')
ZD = ENV('ZD', 'a')
OH = int(ENV('OH', '1'))
OHO = (0, 51200, 81920)[OH]
HALT = 33 * MB
GM = ENV('GM', '0') == '1'
S_MD = 93 if GM else 92; VMD = 27
CF = int(ENV('CF', '1'))
WE = int(ENV('WE', '-1'))
LF1 = int(ENV('LF1', '0'))
MF = int(ENV('MF', '2'))
LF2 = int(ENV('LF2', '2'))
EX = int(ENV('EX', '14'))
LSTK = ENV('LSTK', 'w2')
LREG = [52, 54, 56, 58] if LSTK == 'w2' else [36, 38, 48, 50] if LSTK == 'wo' else [80, 82, 48, 50]
def lstamp(a, n, dep=False):
    if dep and (ENV('LST') == 'x' or LSTK != 'w2'): return
    if TS: a.emit(f's_memrealtime s[{LREG[n]}:{LREG[n]+1}]')

def lstamps_out(a, tag):
    if not TS: return
    a.emit(f"s_cmp_lg_u32 s{S_WV}, {ENV('PW_' + tag.upper(), '4')}")
    a.emit(f's_cbranch_scc1 L_ltsskip_{tag}')
    a.emit('s_waitcnt lgkmcnt(0)')
    srd(a, SP, 'ws0', WS_TS + 16384, 1 << 20)
    a.emit('s_lshl_b32 s4, s2, 6')
    a.emit(f's_lshl_b32 s5, s{S_TSI}, 16')
    a.emit('s_add_u32 s4, s4, s5')
    for i in range(8): a.emit(f'v_writelane_b32 v20, s{LREG[i>>1]+(i&1)}, {i}')
    a.emit('v_lshlrev_b32 v21, 2, v1')
    a.emit('s_mov_b64 exec, 0xff')
    a.emit(f'buffer_store_dword v20, v21, s[{SP}:{SP+3}], s4 offen')
    a.emit('s_mov_b64 exec, -1')
    a.label(f'L_ltsskip_{tag}')

def tile_map(a, LM, endlab, pair=False):
    if endlab:
        a.emit('s_cmp_ge_u32 s2, 256')
        a.emit(f's_cbranch_scc1 {endlab}')
        a.emit('v_lshrrev_b32 v2, 6, v0')
        a.emit('v_and_b32 v1, 63, v0')
        a.emit(f'v_readfirstlane_b32 s{S_WV}, v2')
    a.emit('s_and_b32 s3, s2, 7')
    if endlab: a.emit(f's_lshr_b32 s{S_CU}, s2, 3')
    if LM == 2 and ENV('MAP2', '0') == '1':
        a.emit('s_lshl_b32 s5, s3, 1')
        a.emit('s_lshr_b32 s6, s3, 1')
        a.emit('s_and_b32 s5, s5, 2')
        a.emit('s_and_b32 s6, s6, 1')
        a.emit('s_or_b32 s5, s5, s6')
    else: a.emit(f's_and_b32 s5, s3, {(1 << (4 - LM)) - 1}')
    a.emit(f's_lshl_b32 s5, s5, {LM}')
    a.emit(f's_and_b32 s6, s{S_CU}, {(1 << LM) - 1}')
    a.emit(f's_add_u32 s{S_MT}, s5, s6')
    a.emit(f's_lshr_b32 s5, s3, {4 - LM}')
    if pair:
        a.emit(f's_lshr_b32 s{S_HD}, s{S_CU}, {LM}')
        a.emit(f's_lshl1_add_u32 s{S_NT}, s{S_HD}, s5')
        return
    a.emit(f's_lshl_b32 s5, s5, {5 - LM}')
    a.emit(f's_lshr_b32 s6, s{S_CU}, {LM}')
    a.emit(f's_add_u32 s{S_NT}, s5, s6')
    if 'smallm' in DBG: a.emit(f's_and_b32 s{S_MT}, s{S_MT}, 1')
    if 'smalln' in DBG: a.emit(f's_and_b32 s{S_NT}, s{S_NT}, 1')

def interleave(a, main, side, lead=1, per=1):
    si = 0
    for i, m in enumerate(main):
        a.emit(m)
        if i + 1 >= lead:
            for _ in range(per):
                if si < len(side): a.emit(side[si]); si += 1
    while si < len(side): a.emit(side[si]); si += 1

PO0, POM = [int(x) for x in ENV('PO', '1,3').split(',')]
KSH = int(ENV('KSH', '0')); LAT = int(ENV('LAT', '0'))
def own_pos(a, sd):
    a.emit(f's_and_b32 s{sd}, s{S_NT}, {POM}')
    a.emit(f's_add_u32 s{sd}, s{sd}, {PO0}')

class Loader:
    VXD = 4; VWD = 8; VXH = 28
    def __init__(self, a, tag, K, lda2, ldw2, panels, colbase, S, STAGE, halo=None, delta=0, rot=None, xblk=False, half=0):
        self.a = a; self.tag = tag; self.K = K; self.lda2 = lda2; self.ldw2 = ldw2; self.panels = panels
        self.colbase = colbase; self.S = S; self.STAGE = STAGE; self.halo = halo; self.delta = delta; self.xblk = xblk; self.rot = rot if rot is not None and rot >= 0 else None
        self.NSTEP = K // 64; self.half = half; self.ot = 0; self.skip = False; self.loc = False
        self.per = 4 + 2 * len(panels) + (1 if halo is not None else 0)
    def setup(self):
        a = self.a
        if ENV('PRIO', '0') != '0': a.emit(f"s_setprio {ENV('PRIO')}")
        a.emit(f's_add_u32 s8, s{S_WV}, s{S_NT}')
        a.emit('s_and_b32 s8, s8, 3')
        a.emit(f's_add_u32 s9, s{S_WV}, s{S_MT}')
        a.emit('s_and_b32 s9, s9, 3')
        a.emit(f's_lshl_b32 s{S_XD}, s8, 12')
        a.emit(f's_lshl_b32 s{S_WD}, s9, 11')
        a.emit(f's_add_u32 s{S_WD}, s{S_WD}, 16384')
        a.emit(f's_lshl_b32 s11, s{S_MT}, 7')
        a.emit('v_and_b32 v10, 7, v1')
        if self.xblk: self.xoff_blk(self.lda2)
        else: self.xoff_rows(self.lda2)
        ns = self.tag in NS and not NSR; nr = self.tag in NS and NSR
        wrow(a, 9, ns)
        a.emit(f'v_mul_u32_u24 v3, {self.ldw2}, v3')
        a.emit('v_lshrrev_b32 v2, 3, v1')
        a.emit(f'v_and_b32 v2, {6 if nr else 2}, v2')
        a.emit('v_xor_b32 v2, v2, v10')
        a.emit(f's_mul_i32 s10, s{S_NT}, {self.colbase}')
        if 'noslow' in DBG and self.tag == 'attn':
            a.emit(f's_bitcmp1_b32 0x0808, s{S_NT}')
            a.emit('s_cselect_b32 s3, 512, 0')
            a.emit('s_add_u32 s10, s10, s3')
        if self.colbase & 127: a.emit('s_andn2_b32 s10, s10, 127')
        a.emit('v_add_u32 v3, s10, v3')
        a.emit(f'v_lshl_add_u32 v{self.VWD}, v2, 4, v3')
        if not nr: a.emit('v_xor_b32 v2, 4, v2')
        a.emit(f'v_add_u32 v3, {(4 if ns else 8)*self.ldw2}, v3')
        a.emit(f'v_lshl_add_u32 v{self.VWD+1}, v2, 4, v3')
        if self.half:
            if ns:
                a.emit('v_bfe_u32 v3, v1, 2, 2')
                a.emit('v_lshrrev_b32 v2, 5, v1')
                a.emit('v_lshl_add_u32 v3, v2, 2, v3')
                a.emit('v_and_b32 v2, 16, v1')
                a.emit('s_and_b32 s10, s9, 2')
                a.emit('s_add_u32 s10, s10, s9')
                a.emit('s_lshl_b32 s10, s10, 3')
                a.emit('v_add3_u32 v3, s10, v3, v2')
            else:
                a.emit('v_lshrrev_b32 v3, 2, v1')
                a.emit('s_lshl_b32 s10, s9, 4')
                a.emit('v_add_u32 v3, s10, v3')
            a.emit(f'v_mul_u32_u24 v3, {self.ldw2}, v3')
            if 'w2' in NS: a.emit(f'v_bfe_u32 v2, v1, {4 if nr else 5}, 1')
            else:
                a.emit(f'v_lshrrev_b32 v2, {3 if nr else 4}, v1')
                a.emit('v_and_b32 v2, 2, v2')
            a.emit('v_xor_b32 v2, v2, v1')
            a.emit('v_and_b32 v2, 3, v2')
            a.emit(f's_lshl_b32 s10, s{S_NT}, 6')
            a.emit(f's_add_u32 s10, s10, {self.half}')
            a.emit('v_add_u32 v3, s10, v3')
            a.emit(f'v_lshl_add_u32 v{self.VXH}, v2, 4, v3')
            a.emit(f's_lshl_b32 s{S_HD}, s{S_NT}, 7')
            a.emit(f's_add_u32 s{S_HD}, s{S_HD}, 3072')
        if self.halo is not None:
            a.emit(f's_and_b32 s10, s{S_WV}, 3')
            a.emit(f's_lshl_b32 s{S_HD}, s10, 9')
            a.emit(f's_add_u32 s{S_HD}, s{S_HD}, {self.halo}')
            a.emit('s_lshl_b32 s14, s10, 2')
            a.emit('s_add_u32 s14, s14, s11')
            a.emit('s_sub_u32 s14, s14, 16')
            a.emit('v_lshrrev_b32 v3, 3, v1')
            a.emit('v_add_u32 v3, s14, v3')
            a.emit('v_max_i32 v3, 0, v3')
            a.emit('v_mul_u32_u24 v3, s5, v3')
            a.emit('s_lshl_b32 s14, s10, 1')
            a.emit('v_lshrrev_b32 v2, 4, v1')
            a.emit('v_add_u32 v2, s14, v2')
            a.emit('v_and_b32 v2, 7, v2')
            a.emit('v_xor_b32 v2, v2, v10')
            a.emit(f'v_lshl_add_u32 v{self.VXH}, v2, 4, v3')
            a.emit('s_cmp_eq_u32 s10, 0')
            a.emit('s_cselect_b32 s14, 0xffffff00, -1')
            a.emit('s_mov_b32 s15, 0')
        a.emit(f's_mov_b32 s{S_SLOT}, 0')
        if self.rot is None:
            a.emit(f's_mov_b32 s{S_KX}, 0')
            a.emit(f's_mov_b32 s{S_KW}, 0')
        else:
            if not getattr(self, 'noxg', False): a.emit(f's_add_u32 s{S_XG}, s{S_MT}, s{S_NT}')
            a.emit(f's_mov_b32 s{S_KT}, {0 if EARLY and self.tag == "w2" else -1}')
            ko = int(ENV('KOFF_' + self.tag.upper(), '0'))
            if ko:
                a.emit(f"s_bitcmp1_b32 {ENV('KMSK_' + self.tag.upper(), '0x0808' if self.tag == 'attn' else '0x2aea')}, s{S_NT}")
                a.emit(f's_cselect_b32 s{S_KT}, {ko - 1}, s{S_KT}')
            if self.kord(): self.ktable()
            if self.skip:
                if LAT:
                    a.emit(f's_mul_i32 s3, s{S_MT}, {LAT}')
                    a.emit(f's_add_u32 s3, s3, s{S_NT}')
                    a.emit(f's_and_b32 s{S_T0}, s3, 15')
                elif KSH:
                    a.emit(f's_and_b32 s{S_T0}, s{S_NT}, 3')
                    a.emit(f's_and_b32 s93, s{S_NT}, 12')
                    if KSH == 2:
                        a.emit(f's_and_b32 s3, s{S_MT}, 8')
                        a.emit('s_add_u32 s93, s93, s3')
                else: a.emit(f's_mov_b32 s{S_T0}, s{S_NT}')
                own_pos(a, 92)
                for x in self.knext(): a.emit(x)
            elif not self.ot:
                for x in self.knext(): a.emit(x)
    def kord(self): return ENV('KORD_' + self.tag.upper(), {'w1': '2', 'attn': '0,2'}.get(self.tag, ''))
    def korder(self, g, start):
        D = int(ENV('ROTD_' + self.tag.upper(), ENV('ROTD', '2')))
        o = list(range(16))
        if start < 0:
            dl = {3: [3, -1, -1, -1], 2: [2, -1, -1, 0], 1: [1, -1, 0, 0]}[D]
            return [(t + dl[(t - g) & 3]) & 15 for t in range(16)]
        for t in range(start + g, 16 - D, 4): o[t:t + D + 1] = [t + D] + list(range(t, t + D))
        return o
    def ktable(self, start=None):
        a = self.a
        if start is None: start = int(self.kord().split(',')[0])
        a.emit(f's_add_u32 s3, s{S_MT}, s{S_NT}')
        a.emit('s_and_b32 s3, s3, 3')
        for g in range(4):
            v = sum((2 * (k & 7) + (k >> 3) if self.loc else k) << (4 * i) for i, k in enumerate(self.korder(g, start)))
            if self.loc: assert max(self.korder(g, start)[:6]) < 8
            if g: a.emit(f's_cmp_eq_u32 s3, {g}')
            for h in range(2):
                a.emit(f's_cselect_b32 s{S_XG+h}, {(v >> (32 * h)) & 0xffffffff:#x}, s{S_XG+h}' if g else f's_mov_b32 s{S_XG+h}, {(v >> (32 * h)) & 0xffffffff:#x}')
        if self.loc:
            a.emit(f's_bitcmp1_b32 s{S_NT}, 3')
            a.emit('s_cselect_b32 s3, 0x11111111, 0')
            for h in range(2): a.emit(f's_xor_b32 s{S_XG+h}, s{S_XG+h}, s3')
    def own(self):
        D = int(ENV('ROTD_' + self.tag.upper(), ENV('ROTD', '2')))
        dl = {3: [3, -1, -1, -1], 2: [2, -1, -1, 0], 1: [1, -1, 0, 0]}[D]
        tbl = sum(((-d) % 16) << (8 * ((r + d) & 3)) for r, d in enumerate(dl))
        assert self.rot == 0 and self.NSTEP == 16
        if self.kord():
            return [f's_lshr_b32 s3, s{S_NT}, 3', f's_and_b32 s{S_KX}, s{S_NT}, 7', f's_lshl1_add_u32 s{S_T0}, s{S_KX}, s3',
                    f's_mul_i32 s{S_KW}, s{S_T0}, {64*self.ldw2}', f's_lshl_b32 s{S_KX}, s{S_T0}, {11 if self.xblk else 7}']
        return [f's_lshr_b32 s3, s{S_NT}, 3', f's_and_b32 s{S_KX}, s{S_NT}, 7', f's_lshl1_add_u32 s{S_KX}, s{S_KX}, s3',
                f's_sub_u32 s3, s{S_KX}, s{S_XG}', 's_lshl_b32 s3, s3, 3', f's_lshr_b32 s3, {tbl:#x}, s3',
                f's_add_u32 s3, s3, s{S_KX}', f's_and_b32 s{S_T0}, s3, 15',
                f's_mul_i32 s{S_KW}, s{S_KX}, {64*self.ldw2}', f's_lshl_b32 s{S_KX}, s{S_KX}, {11 if self.xblk else 7}']
    def xoff_rows(self, ld):
        a = self.a
        a.emit('v_lshrrev_b32 v3, 3, v1')
        a.emit(f's_lshr_b32 s10, s{S_XD}, 7')
        a.emit(f's_lshl_b32 s3, s{S_MT}, 7')
        a.emit('s_add_u32 s10, s10, s3')
        a.emit('v_add_u32 v3, s10, v3')
        xpitch(a, 5)
        a.emit('s_lshl_b32 s6, s5, 3')
        a.emit('v_mul_u32_u24 v3, s5, v3')
        a.emit('v_lshrrev_b32 v2, 4, v1')
        for j in range(4):
            d = self.VXD + j
            if j & 1:
                a.emit(f'v_add_u32 v{d}, 4, v2')
                a.emit(f'v_xor_b32 v{d}, v{d}, v10')
            else:
                a.emit(f'v_xor_b32 v{d}, v2, v10')
            a.emit(f'v_lshl_add_u32 v{d}, v{d}, 4, v3')
            if j < 3: a.emit('v_add_u32 v3, s6, v3')
    def xoff_blk(self, ld):
        a = self.a
        a.emit(f's_lshr_b32 s10, s{S_XD}, 11')
        a.emit(f's_lshl_b32 s3, s{S_MT}, 3')
        a.emit('s_add_u32 s10, s10, s3')
        a.emit(f's_mul_i32 s10, s10, {16*ld}')
        a.emit(f'v_lshl_add_u32 v{self.VXD}, v1, 4, s10')
        a.emit(f'v_add_u32 v{self.VXD+1}, {16*ld}, v{self.VXD}')
    def xdma(self, base, imm, sd, soff, blk):
        o = []
        for j in range(4):
            if blk:
                if not j & 1: o += [f's_add_u32 m0, s{base}, {imm + j*1024}', 's_nop 0']
                o.append(f'buffer_load_dwordx4 v{self.VXD+(j>>1)}, s[{sd}:{sd+3}], s{soff} offen offset:{(j&1)*1024} lds')
            else:
                o += [f's_add_u32 m0, s{base}, {imm + j*1024}', 's_nop 0', f'buffer_load_dwordx4 v{self.VXD+j}, s[{sd}:{sd+3}], s{soff} offen lds']
        return o
    def knext(self):
        if self.rot is None:
            return [f's_add_u32 s{S_KX}, s{S_KX}, {2048 if self.xblk else 128}', f's_add_u32 s{S_KW}, s{S_KW}, {64*self.ldw2}']
        if self.kord():
            tb = f's[{S_XG}:{S_XG+1}]'
            o = [f's_and_b32 s{S_KX}, s{S_XG}, 15']
            if self.ot or self.skip: o += [f's_cmp_eq_u32 s{S_KX}, s{S_T0}', f's_cselect_b32 s{S_KW}, 4, 0', f's_lshr_b64 {tb}, {tb}, s{S_KW}', f's_and_b32 s{S_KX}, s{S_XG}, 15']
            if self.skip and not self.ot: o += ['s_sub_u32 s92, s92, 1', f's_cselect_b32 s{S_KX}, s{S_T0}, s{S_KX}', f's_cselect_b32 s{S_KW}, 0, 4'] + ([f's_add_u32 s{S_KX}, s{S_KX}, s93', f's_and_b32 s{S_KX}, s{S_KX}, 15'] if KSH else [])
            return o + [f's_lshr_b64 {tb}, {tb}, ' + (f's{S_KW}' if self.skip and not self.ot else '4'), f's_mul_i32 s{S_KW}, s{S_KX}, {64*self.ldw2}', f's_lshl_b32 s{S_KX}, s{S_KX}, {11 if self.xblk else 7}']
        lc = self.rot; C = 1 << lc; N = self.NSTEP
        o = [f's_add_u32 s{S_KT}, s{S_KT}, 1']
        if self.ot: o += [f's_cmp_eq_u32 s{S_KT}, s{S_T0}', f's_addc_u32 s{S_KT}, s{S_KT}, 0']
        D = int(ENV('ROTD_' + self.tag.upper(), ENV('ROTD', '2')))
        dl = {3: [3, -1, -1, -1], 2: [2, -1, -1, 0], 1: [1, -1, 0, 0]}[D]
        tbl = sum((((d * C) % N) << (8 * i)) for i, d in enumerate(dl))
        if lc: o += [f's_lshr_b32 s{S_KX}, s{S_KT}, {lc}', f's_sub_u32 s{S_KX}, s{S_KX}, s{S_XG}']
        else: o += [f's_sub_u32 s{S_KX}, s{S_KT}, s{S_XG}']
        o += [f's_lshl_b32 s{S_KX}, s{S_KX}, 3',
              f's_lshr_b32 s{S_KX}, {tbl:#x}, s{S_KX}',
              f's_and_b32 s{S_KX}, s{S_KX}, 255',
              f's_add_u32 s{S_KX}, s{S_KX}, s{S_KT}']
        if N & (N - 1) == 0: o += [f's_and_b32 s{S_KX}, s{S_KX}, {N - 1}']
        else: o += [f's_sub_u32 s{S_KW}, s{S_KX}, {N}', f's_cselect_b32 s{S_KX}, s{S_KX}, s{S_KW}']
        o += [f's_mul_i32 s{S_KW}, s{S_KX}, {64*self.ldw2}', f's_lshl_b32 s{S_KX}, s{S_KX}, {11 if self.xblk else 7}']
        return o
    def panels_of(self, t): return self.panels
    def issue_x(self, bx, bh, imm, kx):
        o = self.xdma(bx, imm, SX, kx, self.xblk)
        if self.halo is not None:
            o.append(f's_add_u32 m0, s{S_HD}, {bh}')
            o.append('s_mov_b64 exec, s[14:15]')
            o.append(f'buffer_load_dwordx4 v{self.VXH}, s[{SX}:{SX+3}], s{kx} offen lds')
            o.append('s_mov_b64 exec, -1')
        return o
    def issue_w(self, t, bw, imm):
        o = []
        for pn, goff in enumerate(self.panels_of(t)):
            for i in range(2):
                o.append(f's_add_u32 m0, s{bw}, {imm+pn*8192+i*1024}')
                o.append((goff if str(goff).startswith('s_') else f's_add_u32 s4, s{S_KW}, {goff}') if i == 0 else 's_nop 0')
                o.append(f'buffer_load_dwordx4 v{self.VWD+i}, s[{SW}:{SW+3}], s4 offen lds')
        if self.half:
            o += [f's_add_u32 m0, s{bw}, {imm+len(self.panels)*8192}', 's_nop 0',
                  f'buffer_load_dwordx4 v{self.VXH}, s[{SW}:{SW+3}], s{S_KW} offen lds']
        return o
    def issue(self, t):
        o = [f's_add_u32 s3, s{S_SLOT}, s{S_XD}']
        o += self.issue_x(3, f's{S_SLOT}', 0, S_KX)
        o.append(f's_add_u32 s3, s{S_SLOT}, s{S_WD}')
        o += self.issue_w(t, 3, 0)
        o += self.knext()
        o.append(f's_add_u32 s{S_SLOT}, s{S_SLOT}, {self.STAGE}')
        o.append(f's_cmp_eq_u32 s{S_SLOT}, {self.S*self.STAGE}')
        o.append(f's_cselect_b32 s{S_SLOT}, 0, s{S_SLOT}')
        return o
    def run(self, variant='', tail_issue=None, ntail_vm=0, final=None, post=(), dep=None, tail_late=0, start=None, extra=None, exfirst=False):
        a = self.a; N = self.NSTEP; d = self.S - 1
        tag = self.tag + variant
        nx = 4 + (1 if self.halo is not None else 0)
        nw = lambda t: 2 * len(self.panels_of(t)) + (1 if self.half else 0)
        seq = []
        early = EARLY and self.tag == 'w2'
        pchk = EARLY - 3 - d - 1; piss = pchk - d + 1 - int(ENV('PEARLY', '0'))
        if self.loc: pchk = 3; piss = 2
        def em(o):
            for x in o:
                if 'nodma' in DBG and x.endswith(' lds'): continue
                a.emit(x)
        def after(t): return len(seq) - 1 - max(i for i, x in enumerate(seq) if x == t)
        def wait(n):
            assert n <= 63, n
            a.emit(f's_waitcnt vmcnt({n})')
        if dep is None:
            for t in range(2): em(self.issue(t)); seq += [t] * (nx + nw(t))
            if start: seq += ['S'] * start()
            wait(after(0))
            a.emit('s_barrier')
            for t in range(2, d): em(self.issue(t)); seq += [t] * (nx + nw(t))
        else:
            prev = {'attn': 'w2', 'wo': 'attn', 'w1': 'wo', 'w2': 'w1'}[self.tag]
            assert 'attn' not in EBAR
            ot = self.ot
            if ot: em(self.own() + [f's_mov_b32 s88, s{S_KX}'] + [f's_mov_b32 s72, s{S_KW}'] * (self.tag + 'hit' in DBG) + self.issue_w(0, S_WD, 0) + self.knext()); seq.extend([0] * nw(0))
            a.lines += getattr(self, 'after_own', [])
            dep_pre(a, self.tag)
            if prev in EBAR: a.emit('s_barrier')
            xw = 1 if self.tag in ENV('XW', 'x').split(',') and not hasattr(self, 'P1') else 0
            def prew(ts):
                for t in ts:
                    a.emit(f's_mov_b32 s{88+t}, s{S_KX}')
                    if self.tag + 'hit' in DBG: a.emit(f's_mov_b32 s{S_KW}, s72')
                    em(self.issue_w(t, S_WD, t * self.STAGE) + self.knext()); seq.extend([t] * nw(t))
            late = int(ENV('LATE_' + self.tag.upper(), '2'))
            if ot: xw = 1
            prew(range(ot, d + xw - late))
            self.npre = len(seq)
            a.emit(f's_mov_b32 s{S_SLOT}, {0 if xw else d * self.STAGE}')
            wag = int(ENV('WAG_' + self.tag.upper(), '0'))
            dep((lambda: prew(range(d + xw - late, d + xw - wag))) if late else None)
            if ot and self.halo is not None: em(self.issue_x(S_XD, self.hx, 0, 88)[-4:]); seq.append(0)
            for t in range(ot, d + xw):
                if t >= d + xw - wag: prew([t])
                em(self.issue_x(S_XD, t * self.STAGE, t * self.STAGE, 88 + t)); seq += [t] * nx
            if ot and ENV('OPRIO'): a.emit('s_setprio 0')
            if self.loc: loc_flag(a, self.tag)
            wait(after(ot))
            if self.tag == 'w2': lstamp(a, 2)
            a.emit('s_barrier')
            if early: late_flag(a)
        ev = [None] * self.ot
        for i in range(self.ot, N):
            t = i + d
            if t in seq: t = N + 9
            early = early or self.loc
            if early and i == piss: seq += ['P']
            if t < N: seq += [t] * (nx + nw(t)) + ['Q'] * sum(x.startswith('buffer_') for x in post)
            ex = extra(i) if extra else []
            tl = tail_issue is not None and t == N - 1 + tail_late
            if exfirst: seq += ['E'] * sum(x.startswith('buffer_') for x in ex)
            if tl: seq += ['T'] * ntail_vm
            if not exfirst: seq += ['E'] * sum(x.startswith('buffer_') for x in ex)
            ev.append(((nw(t) if t < N else -1, after(i + 1) if i + 1 < N else -1, tl, early and i == piss, early and i == pchk, tuple(ex)), t))
        i = self.ot; nl = 0
        while i < N:
            j = i
            while j + 1 < N and ev[j + 1][0] == ev[i][0]: j += 1
            n = j - i + 1
            (k, w, tl, pi, pc, ex), t = ev[i]
            if n >= 3:
                nl += 1
                a.emit(f's_mov_b32 s{S_CNT}, {n}')
                a.label(f'L_{tag}_ld{nl}')
            else: j = i
            if pi and self.loc: dep_late(a, self.tag, 0)
            elif pi: a.emit(f'buffer_load_dword v13, v12, s[{SO}:{SO+3}], s86 offen sc1')
            if t < N:
                em(self.issue(t)); em(post)
            if exfirst: em(ex)
            if tl and not ('notail' in DBG and self.tag == 'w1'):
                if ENV('FPRIO'): a.emit('s_setprio 3')
                tail_issue()
                if ENV('FPRIO'): a.emit('s_setprio 0')
            if not exfirst: em(ex)
            if w >= 0: wait(w)
            elif final and 'nofinal' not in DBG:
                if ENV('FPRIO'): a.emit('s_setprio 3')
                final()
                if ENV('FPRIO'): a.emit('s_setprio 0')
            if pc and self.loc: dep_late(a, self.tag, 1, w)
            elif pc: late_check(a)
            a.emit('s_barrier')
            if n >= 3:
                a.emit(f's_sub_u32 s{S_CNT}, s{S_CNT}, 1')
                a.emit(f's_cmp_lg_u32 s{S_CNT}, 0')
                a.emit(f's_cbranch_scc1 L_{tag}_ld{nl}')
            i = j + 1

XD = ONE and ENV('SPLIT', '0') == '0' and ENV('XD', '1') == '1'
VW = MEGA and ENV('SPLIT', '0') == '0' and ENV('VW', '0') == '1'
NV1 = int(ENV('NV1', '16')); NV2 = int(ENV('NV2', '12')); NVO = int(ENV('NVO', '11'))
S_TB = 85
def rot_table(a, sd, smt, snt, tag):
    D = int(ENV('ROTD_' + tag.upper(), ENV('ROTD', '2')))
    dl = {3: [3, -1, -1, -1], 2: [2, -1, -1, 0], 1: [1, -1, 0, 0], 0: [0, 0, 0, 0]}[D]
    tbl = sum((d & 255) << (8 * i) for i, d in enumerate(dl))
    a.emit(f's_add_u32 s3, s{smt}, s{snt}')
    a.emit('s_lshl_b32 s3, s3, 3')
    a.emit(f's_lshl_b32 s{sd}, {tbl:#x}, s3')
    a.emit('s_sub_u32 s3, 0, s3')
    a.emit(f's_lshr_b32 s3, {tbl:#x}, s3')
    a.emit(f's_or_b32 s{sd}, s{sd}, s3')

def kpos(N, t, sd, tb=S_TB, halves=True, q=None):
    H, p, add = (28, t >> 1, 28 * (t & 1)) if N == 56 and halves else (N, t, 0)
    o = [f's_bfe_i32 s{sd}, s{tb}, {0x80000 + 8 * (p & 3):#x}', f's_add_i32 s{sd}, s{sd}, {p + add}']
    if p == 0: o += [f's_cmp_lt_i32 s{sd}, {add}', f's_cselect_b32 s{sd}, {H - 1 + add}, s{sd}']
    if p + 3 >= H: o += [f's_sub_u32 s3, s{sd}, {H}', f's_cmp_ge_i32 s{sd}, {H + add}', f's_cselect_b32 s{sd}, s3, s{sd}']
    if q is not None:
        if N == 16 or 1 <= t <= 12: o += [f's_add_u32 s{sd}, s{sd}, s{q}', f's_and_b32 s{sd}, s{sd}, 15']
        elif t <= 16 or t + 3 >= N: o += [f's_add_u32 s3, s{sd}, s{q}', 's_and_b32 s3, s3, 15', f's_cmp_lt_u32 s{sd}, 16', f's_cselect_b32 s{sd}, s3, s{sd}']
    return o

S_Q = 86
MROT = ENV('MROT', '1') == '1'
def rot_q(a, sd, smt, sh=0):
    a.emit(f's_and_b32 s{sd}, s{smt}, {3 if MROT else 0}')
    a.emit(f's_lshl_b32 s{sd}, s{sd}, {2 + sh}')

TSCH = {'wo': [int(c) for c in ENV('TSO', '000')], 'w2': [int(c) for c in ENV('TS2', '000')]}
def tail_parks(nxt, sw, mk=None, sch=None):
    if not XD: return None
    sch = sch or TSCH[nxt]; N = 16 if nxt == 'wo' else 56
    def extra(i):
        if i < 13 or not sum(sch): return []
        a = Asm()
        if i == 13:
            if mk: mk(a)
            a.emit('s_and_b32 s5, s2, 3')
            a.emit('s_lshl_b32 s5, s5, 2')
            a.emit(f's_and_b32 s6, s{S_CU}, 3')
            a.emit('s_add_u32 s5, s5, s6')
            a.emit('s_and_b32 s6, s2, 4')
            a.emit('s_lshl_b32 s6, s6, 1')
            a.emit(f's_lshr_b32 s7, s{S_CU}, 2')
            a.emit('s_add_u32 s6, s6, s7')
            rot_table(a, S_TB, 5, 6, nxt)
            rot_q(a, S_Q, 5)
            a.emit(f's_add_u32 s5, s5, s{S_WV}')
            a.emit('s_and_b32 s5, s5, 3')
            wvoff(a, 16, 5, 6, 2048)
        o = [l.strip() for l in a.lines]
        for t in range(sum(sch[:i - 13]), sum(sch[:i - 12])):
            o += kpos(N, t, 4, S_TB, False, S_Q) + ['s_lshl_b32 s4, s4, 17']
            o += [f'buffer_load_dwordx4 v[{128+8*t+4*j}:{131+8*t+4*j}], v{16+j}, s[{sw}:{sw+3}], s4 offen' for j in range(2)]
        return o
    return extra

def vreg(tag, t):
    if tag == 'wo': return (128 + 8 * (t - 5), False) if 5 <= t < 5 + NVO else None
    if t & 1: return None
    p = t >> 1
    if p < NV1: return (128 + 8 * p, True)
    if p < NV1 + NV2: return (32 + 8 * (p - NV1), False)
    return None

def wrow(a, sqw, ns):
    if ns:
        a.emit('v_bfe_u32 v3, v1, 3, 2')
        a.emit('v_lshrrev_b32 v2, 5, v1')
        a.emit('v_lshl_add_u32 v3, v2, 4, v3')
        a.emit(f's_and_b32 s10, s{sqw}, 2')
        a.emit(f's_add_u32 s10, s10, s{sqw}')
        a.emit('v_lshl_add_u32 v3, s10, 3, v3')
    else:
        a.emit('v_lshrrev_b32 v3, 3, v1')
        a.emit(f's_lshl_b32 s10, s{sqw}, 4')
        a.emit('v_add_u32 v3, s10, v3')

def wvoff(a, vd, sqw, snt, ldw2, ns=False):
    nr = ns and NSR; ns = ns and not NSR
    wrow(a, sqw, ns)
    a.emit(f'v_mul_u32_u24 v3, {ldw2}, v3')
    a.emit('v_lshrrev_b32 v2, 3, v1')
    a.emit(f'v_and_b32 v2, {6 if nr else 2}, v2')
    a.emit('v_xor_b32 v2, v2, v10')
    a.emit(f's_lshl_b32 s10, s{snt}, 7')
    a.emit('v_add_u32 v3, s10, v3')
    a.emit(f'v_lshl_add_u32 v{vd}, v2, 4, v3')
    if not nr: a.emit('v_xor_b32 v2, 4, v2')
    a.emit(f'v_add_u32 v3, {(4 if ns else 8)*ldw2}, v3')
    a.emit(f'v_lshl_add_u32 v{vd+1}, v2, 4, v3')

def park(N, t, r, vo, sw):
    return kpos(N, t, 4) + ['s_lshl_b32 s4, s4, 17'] + [f'buffer_load_dwordx4 v[{r+4*i}:{r+4*i+3}], v{vo+i}, s[{sw}:{sw+3}], s4 offen' for i in range(2)]

class ULoader(Loader):
    def run(self, variant='', tail_issue=None, ntail_vm=0, final=None, post=(), dep=None):
        a = self.a; N = self.NSTEP; d = self.S - 1; tag = self.tag
        seq = []
        def em(o):
            for x in o:
                if 'nodma' in DBG and x.endswith(' lds'): continue
                a.emit(x)
        def after(t): return len(seq) - 1 - max(i for i, x in enumerate(seq) if x == t)
        def wait(n, lg=False):
            assert n <= 63, n
            a.emit(f's_waitcnt vmcnt({n})' + (' lgkmcnt(0)' if lg else ''))
        def iw(t):
            sl = (t % self.S) * self.STAGE; v = vreg(tag, t)
            if v:
                em([f'v_add_u32 v11, {sl}, v14'] + [f'ds_write_b128 v11, v[{v[0]+4*i}:{v[0]+4*i+3}] offset:{1024*i}' for i in range(2)])
            else:
                em([f's_lshl_b32 s{S_KW}, s{S_KX}, 17'] + [x for x in self.issue_w(t, S_WD, sl)])
                seq.extend([t] * 2)
        def ix(t, k):
            em(self.issue_x(S_XD, None, (t % self.S) * self.STAGE, k)); seq.extend([t] * 4)
        rot_table(a, S_TB, S_MT, S_NT, tag)
        a.emit(f'v_lshl_add_u32 v14, v1, 4, s{S_WD}')
        dep_pre(a, tag)
        for t in range(d):
            em(kpos(N, t, S_KX)); iw(t)
            a.emit(f's_lshl_b32 s{88+t}, s{S_KX}, 11')
        for t in range(d, N):
            v = vreg(tag, t)
            if v and not v[1]:
                em(park(N, t, v[0], self.VWD, SW)); seq.extend(['V'] * 2)
        self.npre = len(seq)
        dep()
        for t in range(d): ix(t, 88 + t)
        wait(after(0), True)
        if tag == 'w2': lstamp(a, 2)
        a.emit('s_barrier')
        for i in range(N):
            t = i + d
            if i % 4 == 0 and post and t < N:
                a.emit('s_waitcnt lgkmcnt(0)')
                em(post)
            if t < N:
                em(kpos(N, t, S_KX)); iw(t)
                a.emit(f's_lshl_b32 s{S_KX}, s{S_KX}, 11')
                ix(t, S_KX)
            if t == N - 1: tail_issue(); seq.extend(['T'] * ntail_vm)
            if i + 1 < N: wait(after(i + 1), not post or t == N)
            else: final()
            a.emit('s_barrier')

EBAR = ENV('EBAR', 'x').split(',')
S_FL = 87
def dep_pre(a, kind, part=None, n=0):
    if ONE and kind in (('w1',) if CF == 2 else ('wo', 'w1')):
        ld = f'buffer_load_dword v12, v17, s[{SC}:{SC+3}], 0 offen sc1' if kind == 'wo' else f'buffer_load_dwordx4 v[12:15], v17, s[{SO}:{SO+3}], s3 offen sc1'
        if part == 1: a.emit(f's_waitcnt vmcnt({n})')
        gm = GM and kind == 'wo'
        if gm: a.emit(f's_cmp_lg_u32 s{S_LAYER}, 0')
        else:
            a.emit(f's_add_u32 s3, s{S_LAYER}, s{S_WV}')
            a.emit('s_cmp_lg_u32 s3, 4')
        a.emit(f's_cbranch_scc1 L_{kind}_chk{part}' + 'e' * (gm and part == 1))
        def cmp():
            if gm:
                a.emit('v_or_b32 v13, 0xfefefefe, v12')
                a.emit('v_cmp_ne_u32 vcc, -1, v13')
            elif kind == 'wo': a.emit('v_cmp_ne_u32 vcc, 0x01010101, v12')
            else:
                a.emit('v_and_b32 v12, v12, v13')
                a.emit('v_and_b32 v14, v14, v15')
                a.emit('v_and_b32 v12, v12, v14')
                a.emit('v_cmp_ne_u32 vcc, 1, v12')
        if part == 1:
            cmp()
            a.emit(f's_cbranch_vccz L_{kind}_chk{part}')
        if True:
            if kind == 'wo': a.emit(f's_load_dwordx2 s[{SC}:{SC+1}], s[0:1], 72')
            else: srd(a, SO, 'ws0', WS_FL, FLS)
            if kind == 'wo':
                a.emit('s_waitcnt lgkmcnt(0)')
                a.emit(f's_and_b32 s{SC+1}, s{SC+1}, 0xffff')
                a.emit(f's_mov_b32 s{SC+2}, 256')
                a.emit(f's_mov_b32 s{SC+3}, 0x00020000')
                a.emit('v_lshlrev_b32 v17, 2, v1')
            else:
                a.emit('v_lshrrev_b32 v2, 2, v1')
                a.emit('v_and_b32 v3, 3, v1')
                a.emit('v_lshlrev_b32 v2, 11, v2')
                a.emit('v_lshl_add_u32 v17, v3, 4, v2')
                a.emit(f's_and_b32 s3, s{S_NT}, {REP - 1}')
                a.emit('s_lshl_b32 s3, s3, 7')
        if part == 0: a.emit(ld)
        else:
            a.emit(f's_mov_b32 s{S_CNT}, 0x100000')
            a.label(f'L_{kind}_chkl')
            a.emit(ld)
            a.emit(f's_sub_u32 s{S_CNT}, s{S_CNT}, 1')
            a.emit(f's_cbranch_scc1 L_{kind}_chk{part}')
            a.emit('s_waitcnt vmcnt(0)')
            cmp()
            a.emit(f's_cbranch_vccnz L_{kind}_chkl')
        a.label(f'L_{kind}_chk{part}')
        if gm and part == 1:
            l2_mode(a, 12)
            a.label(f'L_{kind}_chk{part}e')

def l2_mode(a, v):
    assert int(ENV('LM_QKV', '3')) == 3
    a.emit(f'v_mov_b32 v14, v{v}')
    a.emit(f'v_mov_b32 v15, v{v}')
    a.emit(f'v_alignbyte_b32 v13, v{v}, v{v}, 1')
    a.emit(f'v_xor_b32 v13, v13, v{v}')
    a.emit('v_permlane16_swap_b32 v14, v15')
    a.emit(f'v_xor_b32_dpp v12, v{v}, v{v} row_ror:4 row_mask:0xf bank_mask:0xf')
    a.emit('v_xor_b32 v14, v14, v15')
    a.emit('v_or3_b32 v13, v13, v12, v14')
    a.emit('v_cmp_ne_u32 vcc, 0, v13')
    a.emit(f's_or_b32 s{S_MD}, vcc_lo, vcc_hi')

def dep_wait(a, kind, halo=False, skip_first=False, first=None, preg=None, postf=None, pref=None, defer=False, obar=False):
    if skip_first and not ONE:
        a.emit(f's_cmp_eq_u32 s{S_TSI}, 1')
        a.emit(f's_cbranch_scc1 L_{kind}_dep')
    srd(a, SO, 'ws0', WS_FL, FLS)
    if ONE and kind == 'wo' and first:
        a.emit(f's_cmp_lg_u32 s{S_LAYER}, 0')
        a.emit(f's_cbranch_scc1 L_{kind}_nofirst')
        first()
        a.label(f'L_{kind}_nofirst')
    a.emit(f's_lshl4_add_u32 s3, s{S_TSI}, s{S_MT}')
    a.emit(f's_and_b32 s4, s{S_NT}, {REP - 1}')
    a.emit('s_lshl4_add_u32 s3, s3, s4')
    a.emit('s_lshl_b32 s3, s3, 7')
    a.emit('s_sub_u32 s3, s3, 32768')
    a.emit('v_lshlrev_b32 v11, 7, v1')
    if halo:
        a.emit(f's_cmp_eq_u32 s{S_MT}, 0')
        a.emit('s_cselect_b32 s4, 15, 31')
        a.emit('v_and_b32 v2, 16, v1')
        a.emit('v_lshl_add_u32 v11, v2, 2, v11')
        a.emit('v_and_b32 v2, s4, v1')
    else: a.emit('v_and_b32 v2, 15, v1')
    a.emit('v_lshlrev_b32 v2, 2, v2')
    xc = OH and kind == 'w1' and not GM
    if xc:
        a.emit('s_getreg_b32 s4, hwreg(HW_REG_XCC_ID, 0, 4)')
        if ENV('FB'): a.emit(f"s_and_b32 s4, s2, {ENV('FB')}")
        a.emit('v_add_u32 v3, 1, s4')
    else: a.emit('v_mov_b32 v3, 1')
    a.emit(f's_mov_b32 s{S_CNT}, 0x100000')
    if kind == LSTK == 'wo': lstamp(a, 2)
    if pref: pref()
    lf = LF2 and kind == 'w2'
    if lf:
        a.emit(f's_mov_b32 s{S_Q}, s3')
        a.emit('s_or_b32 s4, s2, 0xe0')
        a.emit(f's_lshl4_add_u32 s4, s4, s{S_LAYER}')
        a.emit('s_lshl_b32 s4, s4, 7')
        a.emit(f's_lshl2_add_u32 s93, s{S_HD}, s4')
        a.emit(f's_cmp_eq_u32 s{S_MD}, 0')
        a.emit('s_cselect_b32 s3, s4, s3')
        a.emit('s_cselect_b32 s4, 28, 60')
        a.emit('v_and_b32 v13, s4, v2')
        if ENV('LFT', '1') == '1':
            a.emit(f's_cmp_lg_u32 s{S_WV}, 4')
            a.emit('s_cbranch_scc1 L_w2_notch')
            a.emit(f'buffer_load_dword v12, v13, s[{SO}:{SO+3}], s3 offen sc1')
            a.label('L_w2_notch')
    if OH and kind == 'w2': a.emit(f'v_cmp_ne_u32 vcc, s{S_MD}, 0')
    a.emit(f's_cmp_lg_u32 s{S_WV}, 4')
    a.emit('s_barrier')
    if kind == 'w2': lstamp(a, 0, True)
    if kind == LSTK == 'w1': lstamp(a, 0)
    a.emit(f's_cbranch_scc1 L_{kind}_{"nofl" if postf else "dep"}')
    if OH and kind == 'w2':
        a.emit('s_cbranch_vccnz L_w2_wb')
        a.label('L_w2_wbd')
    if lf:
        a.emit('s_mov_b64 exec, 1')
        a.emit(f'buffer_store_dword v3, off, s[{SO}:{SO+3}], s93')
    a.emit(f's_mov_b32 exec_lo, {((1 << REP) - 1) * (0x10001 if halo else 1):#x}')
    a.emit('s_mov_b32 exec_hi, 0')
    a.emit(f'buffer_store_dword v3, v11, s[{SO}:{SO+3}], s{S_FL} offen sc1')
    a.emit('s_mov_b64 exec, -1')
    if lf and ENV('LFX'):
        a.label('L_w2_spoll')
        if ENV('LFX') == 's':
            a.emit(f's_buffer_load_dwordx8 s[4:11], s[{SO}:{SO+3}], s3 glc')
            a.emit(f's_sub_u32 s{S_CNT}, s{S_CNT}, 16')
            a.emit('s_cbranch_scc1 L_w2_spok')
            a.emit('s_waitcnt lgkmcnt(0)')
            a.emit('s_and_b64 s[4:5], s[4:5], s[6:7]')
            a.emit('s_and_b64 s[8:9], s[8:9], s[10:11]')
            a.emit('s_and_b64 s[4:5], s[4:5], s[8:9]')
            a.emit('s_and_b32 s4, s4, s5')
            a.emit('s_cbranch_scc0 L_w2_spoll')
        else:
            a.emit(f'buffer_load_dword v12, v13, s[{SO}:{SO+3}], s3 offen sc1')
            a.emit(f's_sub_u32 s{S_CNT}, s{S_CNT}, 16')
            a.emit('s_cbranch_scc1 L_w2_spok')
            a.emit('s_waitcnt vmcnt(0)')
            a.emit('v_cmp_ne_u32 vcc, 1, v12')
            a.emit('s_cbranch_vccnz L_w2_spoll')
        a.label('L_w2_spok')
        lstamp(a, 1, True)
        a.emit(f's_mov_b32 s{S_CNT}, 0x100000')
    PSP = int(ENV('PSP', '0'))
    if defer:
        a.label(f'L_{kind}_nofl')
        a.emit(f's_mov_b32 s{S_Q}, s3')
        postf()
        return
    if postf and PSP:
        a.label(f'L_{kind}_nofl')
        a.emit('s_mov_b32 s5, s3')
        i0 = len(a.lines); postf(); ls = a.lines[i0:]; del a.lines[i0:]
        dma = [i for i, l in enumerate(ls) if 'buffer_load' in l]
        poll = lambda k: f'buffer_load_dword v{24+k}, v2, s[{SO}:{SO+3}], s5 offen sc1'
        for i, l in enumerate(ls):
            a.lines.append(l)
            for k in range(3):
                if dma and i == dma[-1 - PSP * (3 - k)]: a.emit(poll(k))
        a.emit(f's_cmp_lg_u32 s{S_WV}, 4')
        a.emit(f's_cbranch_scc1 L_{kind}_dep')
        def chk(k, n, last=False):
            a.emit(poll((k + 3) & 3))
            a.emit(f's_waitcnt vmcnt({n})')
            a.emit(f'v_cmp_ne_u32 vcc, 1, v{24+k}')
            a.emit(f's_cbranch_vccnz L_{kind}_poll' if last else f's_cbranch_vccz L_{kind}_dep')
        for k in range(3): chk(k, 3 + PSP * (3 - k))
        a.label(f'L_{kind}_poll')
        a.emit(f's_sub_u32 s{S_CNT}, s{S_CNT}, 1')
        a.emit(f's_cbranch_scc1 L_{kind}_dep')
        for k in (3, 0, 1, 2): chk(k, 3, k == 2)
    else:
        if postf:
            if obar:
                a.emit(f's_waitcnt vmcnt({obar})')
                a.emit(f's_branch L_{kind}_obar')
            a.label(f'L_{kind}_nofl')
            if obar:
                a.emit(f's_waitcnt vmcnt({obar - 1})')
                a.label(f'L_{kind}_obar')
                a.emit('s_barrier')
                if ENV('OPRIO'): a.emit(f"s_setprio {ENV('OPRIO')}")
            a.emit('s_mov_b32 s5, s3')
            postf()
            a.emit('s_mov_b32 s3, s5')
            a.emit(f"s_cmp_lg_u32 s{S_WV}, {ENV('PW_' + kind.upper(), '4')}")
            a.emit(f's_cbranch_scc1 L_{kind}_dep')
        if kind == LSTK == 'w1': lstamp(a, 1)
        a.label(f'L_{kind}_poll')
        a.emit(f'buffer_load_dword v{VMD if xc else 3}, v{13 if lf else 2}, s[{SO}:{SO+3}], s3 offen sc1')
        a.emit(f's_sub_u32 s{S_CNT}, s{S_CNT}, 1')
        a.emit(f's_cbranch_scc1 L_{kind}_dep')
        a.emit('s_waitcnt vmcnt(0)')
        a.emit(f'v_cmp_eq_u32 vcc, 0, v{VMD}' if xc else 'v_cmp_ne_u32 vcc, 1, v3')
        a.emit(f's_cbranch_vccnz L_{kind}_poll')
    a.label(f'L_{kind}_dep')
    if kind == 'w2' and not ENV('LFX'): lstamp(a, 1, True)
    if kind == LSTK == 'wo': lstamp(a, 3)
    if kind == LSTK == 'w1':
        lstamp(a, 2)
        if TS: a.emit(f's_mov_b32 s50, s{S_CNT}')
    if preg: preg()
    if preg and kind == 'w2': lstamp(a, 2, True)
    a.emit('s_barrier')

def dep_loc(a, kind, postf, pref):
    srd(a, SO, 'ws0', WS_FL, FLS)
    a.emit(f's_lshl4_add_u32 s3, s{S_TSI}, s{S_MT}')
    a.emit(f's_and_b32 s4, s{S_NT}, {REP - 1}')
    a.emit('s_lshl4_add_u32 s3, s3, s4')
    a.emit('s_lshl_b32 s3, s3, 7')
    a.emit(f's_sub_u32 s{S_Q}, s3, 32768')
    a.emit('v_lshlrev_b32 v11, 7, v1')
    a.emit('v_and_b32 v2, 15, v1')
    a.emit('v_lshlrev_b32 v2, 2, v2')
    a.emit('v_mov_b32 v14, 1')
    a.emit(f's_mov_b32 s{S_CNT}, 0x100000')
    a.emit('s_or_b32 s4, s2, 0xe0')
    a.emit(f's_lshl4_add_u32 s4, s4, s{S_TSI}')
    a.emit('s_lshl_b32 s4, s4, 7')
    a.emit(f's_lshr_b32 s7, s{S_CU}, 2')
    a.emit('s_lshl2_add_u32 s7, s7, s4')
    a.emit(f's_cmp_eq_u32 s{S_MD}, 0')
    a.emit(f's_cselect_b32 s6, s4, s{S_Q}')
    a.emit('s_cselect_b32 s4, 28, 60')
    a.emit('v_and_b32 v13, s4, v2')
    a.emit(f'buffer_load_dword v12, v13, s[{SO}:{SO+3}], s6 offen sc1')
    pref()
    a.emit(f"s_setprio {ENV('LFP1', '3')}")
    a.emit(f's_cmp_lg_u32 s{S_WV}, 4')
    a.emit('s_barrier')
    if kind == LSTK: lstamp(a, 0)
    a.emit(f's_cbranch_scc1 L_{kind}_nofl')
    a.emit('s_mov_b64 exec, 1')
    a.emit(f'buffer_store_dword v14, off, s[{SO}:{SO+3}], s7')
    a.emit(f's_cmp_eq_u32 s{S_MD}, 0')
    a.emit(f's_cbranch_scc1 L_{kind}_nogl')
    a.emit(f's_mov_b64 exec, {(1 << REP) - 1:#x}')
    a.emit(f'buffer_store_dword v14, v11, s[{SO}:{SO+3}], s{S_FL} offen sc1')
    a.label(f'L_{kind}_nogl')
    a.emit('s_mov_b64 exec, -1')
    a.label(f'L_{kind}_nofl')
    if postf: postf()
    if kind == LSTK: lstamp(a, 1)
    a.label(f'L_{kind}_poll')
    a.emit(f'buffer_load_dword v12, v13, s[{SO}:{SO+3}], s6 offen sc1')
    a.emit(f's_sub_u32 s{S_CNT}, s{S_CNT}, 1')
    a.emit(f's_cbranch_scc1 L_{kind}_dep')
    a.emit('s_waitcnt vmcnt(0)')
    a.emit('v_cmp_ne_u32 vcc, 1, v12')
    a.emit(f's_cbranch_vccnz L_{kind}_poll')
    a.label(f'L_{kind}_dep')
    if kind == LSTK:
        lstamp(a, 2)
        if TS: a.emit(f's_mov_b32 s50, s{S_CNT}')

def loc_flag(a, kind):
    a.emit('s_setprio 0')
    a.emit(f's_cmp_lg_u32 s{S_WV}, 4')
    a.emit(f's_cbranch_scc1 L_{kind}_nogf')
    a.emit(f's_mov_b64 exec, {(1 << REP) - 1:#x}')
    a.emit(f'buffer_store_dword v14, v11, s[{SO}:{SO+3}], s{S_FL} offen sc1')
    a.emit('s_mov_b64 exec, -1')
    a.label(f'L_{kind}_nogf')

def dep_lf(a, w0, blk, w1):
    srd(a, SO, 'ws0', WS_FL, FLS)
    a.emit(f's_lshl4_add_u32 s3, s{S_TSI}, s{S_MT}')
    a.emit(f's_and_b32 s4, s{S_NT}, {REP - 1}')
    a.emit('s_lshl4_add_u32 s3, s3, s4')
    a.emit('s_lshl_b32 s3, s3, 7')
    a.emit(f's_sub_u32 s{S_Q}, s3, 32768')
    a.emit('v_lshlrev_b32 v11, 7, v1')
    a.emit('v_and_b32 v2, 15, v1')
    a.emit('v_lshlrev_b32 v2, 2, v2')
    a.emit(f's_cmp_lg_u32 s{S_WV}, 4')
    a.emit(f's_waitcnt vmcnt({w0})')
    a.emit('s_cbranch_scc1 L_w2_nofl')
    W4 = ENV('W4', 'a')
    if W4 == 'a': a.lines += blk
    a.emit('v_mov_b32 v3, 1')
    a.emit(f's_mov_b32 s{S_CNT}, 0x100000')
    a.emit('s_or_b32 s4, s2, 0xe0')
    a.emit(f's_lshl4_add_u32 s4, s4, s{S_TSI}')
    a.emit('s_lshl_b32 s4, s4, 7')
    a.emit(f's_lshl2_add_u32 s5, s{S_HD}, s4')
    a.emit(f's_cmp_eq_u32 s{S_MD}, 0')
    a.emit(f's_cselect_b32 s3, s4, s{S_Q}')
    a.emit('s_cselect_b32 s4, 28, 60')
    a.emit('v_and_b32 v13, s4, v2')
    a.emit(f'buffer_load_dword v12, v13, s[{SO}:{SO+3}], s3 offen sc1')
    a.emit(f"s_setprio {ENV('LFP', '3')}")
    a.emit('s_barrier')
    lstamp(a, 0, True)
    a.emit('s_cbranch_scc0 L_w2_wb')
    a.label('L_w2_wbd')
    a.emit('s_mov_b64 exec, 1')
    a.emit(f'buffer_store_dword v3, off, s[{SO}:{SO+3}], s5')
    a.emit('s_mov_b64 exec, -1')
    a.label('L_w2_poll')
    a.emit(f'buffer_load_dword v12, v13, s[{SO}:{SO+3}], s3 offen sc1')
    a.emit(f's_sub_u32 s{S_CNT}, s{S_CNT}, 1')
    a.emit('s_cbranch_scc1 L_w2_dep')
    a.emit('s_waitcnt vmcnt(0)')
    a.emit('v_cmp_ne_u32 vcc, 1, v12')
    a.emit('s_cbranch_vccnz L_w2_poll')
    a.label('L_w2_dep')
    lstamp(a, 1, True)
    a.emit('s_barrier')
    lstamp(a, 2, True)
    a.emit('s_setprio 0')
    if W4 != 'a': a.lines += blk
    a.emit(f's_mov_b64 exec, {(1 << REP) - 1:#x}')
    a.emit(f'buffer_store_dword v3, v11, s[{SO}:{SO+3}], s{S_FL} offen sc1')
    a.emit('s_mov_b64 exec, -1')
    a.emit('s_branch L_w2_go')
    a.label('L_w2_nofl')
    if W4 == 'c':
        a.emit('s_waitcnt vmcnt(0)')
        a.emit('s_barrier')
        a.emit('s_barrier')
        a.lines += blk
    else:
        a.emit('s_barrier')
        a.lines += blk
        a.emit(f's_waitcnt vmcnt({w1})')
        a.emit('s_barrier')
    a.label('L_w2_go')

def xpoll(a, lab, sd, so, v, vd):
    a.emit(f's_cmp_lg_u32 s{S_WV}, 4')
    a.emit(f's_cbranch_scc1 {lab}go')
    a.emit('s_setprio 3')
    a.label(f'{lab}poll')
    a.emit(f'buffer_load_dword v{vd}, v{v}, s[{sd}:{sd+3}], s{so} offen sc1')
    a.emit(f's_sub_u32 s{S_CNT}, s{S_CNT}, 1')
    a.emit(f's_cbranch_scc1 {lab}go')
    a.emit('s_waitcnt vmcnt(0)')
    a.emit(f'v_cmp_ne_u32 vcc, 1, v{vd}')
    a.emit(f's_cbranch_vccnz {lab}poll')
    a.label(f'{lab}go')
    a.emit('s_setprio 0')

def ef_poll(a, lab, v, prio=False):
    a.emit(f"s_cmp_lg_u32 s{S_WV}, {ENV('PW_W2', '4')}")
    a.emit(f's_cbranch_scc1 {lab}_ok')
    if prio: a.emit('s_setprio 3')
    a.emit(f's_mov_b32 s{S_CNT}, 0x100000')
    a.label(lab)
    a.emit(f'buffer_load_dword v3, v{v}, s[{SO}:{SO+3}], s{S_Q} offen sc1')
    a.emit(f's_sub_u32 s{S_CNT}, s{S_CNT}, 1')
    a.emit(f's_cbranch_scc1 {lab}_ok')
    a.emit('s_waitcnt vmcnt(0)')
    a.emit('v_cmp_ne_u32 vcc, 1, v3')
    a.emit(f's_cbranch_vccnz {lab}')
    a.label(f'{lab}_ok')
    if prio: a.emit('s_setprio 0')

def ef_flag(a, lab, off):
    a.emit(f's_cmp_lg_u32 s{S_WV}, 4')
    a.emit('s_barrier')
    a.emit(f's_cbranch_scc1 {lab}')
    a.emit(f's_mov_b64 exec, {(1 << REP) - 1:#x}')
    a.emit(f'buffer_store_dword v13, v11, s[{SO}:{SO+3}], s{S_FL} offen offset:{off} sc1')
    a.emit('s_mov_b64 exec, -1')
    a.label(lab)

def dep_ef(a, poste, preh, preg):
    srd(a, SO, 'ws0', WS_FL, FLS)
    a.emit(f's_lshl4_add_u32 s3, s{S_TSI}, s{S_MT}')
    a.emit(f's_and_b32 s4, s{S_NT}, {REP - 1}')
    a.emit('s_lshl4_add_u32 s3, s3, s4')
    a.emit('s_lshl_b32 s3, s3, 7')
    a.emit(f's_sub_u32 s{S_Q}, s3, 32768')
    a.emit('v_lshlrev_b32 v11, 7, v1')
    a.emit('v_and_b32 v2, 15, v1')
    a.emit('v_lshlrev_b32 v2, 2, v2')
    a.emit(f's_bitcmp1_b32 s{S_NT}, 0')
    a.emit('s_cselect_b32 s4, 96, 64')
    a.emit('v_and_b32 v12, 28, v2')
    a.emit('v_add_u32 v12, s4, v12')
    a.emit('v_mov_b32 v13, 1')
    ef_flag(a, 'L_w2_nofe', 64)
    lstamp(a, 0, True)
    poste()
    if ENV('EFP', '1') == '0': ef_poll(a, 'L_w2_pe', 12)
    preh()
    a.emit('s_barrier')
    if ENV('EFP', '1') != '0': ef_poll(a, 'L_w2_pe', 12, ENV('EFP') == '2')
    lstamp(a, 1, True)
    preg()
    ef_flag(a, 'L_w2_nofl', 0)

def dep_late(a, kind, part, n=0):
    ld = f'buffer_load_dword v3, v2, s[{SO}:{SO+3}], s{S_Q} offen sc1'
    if part == 0:
        a.emit(f's_cmp_eq_u32 s{S_WV}, 4')
        a.emit(f's_cselect_b32 s{SO+2}, s{SO+2}, 0')
        a.emit(ld)
        return
    if LF2:
        kind += 'l'
        a.emit(f's_mov_b32 s{S_CNT}, 0x100000')
    a.emit(f's_cmp_lg_u32 s{S_WV}, 4')
    a.emit(f's_cbranch_scc1 L_{kind}_dep')
    a.emit(f's_waitcnt vmcnt({n})')
    a.emit('v_cmp_ne_u32 vcc, 1, v3')
    a.emit(f's_cbranch_vccz L_{kind}_dep')
    a.label(f'L_{kind}_poll')
    a.emit(ld)
    a.emit(f's_sub_u32 s{S_CNT}, s{S_CNT}, 1')
    a.emit(f's_cbranch_scc1 L_{kind}_dep')
    a.emit('s_waitcnt vmcnt(0)')
    a.emit('v_cmp_ne_u32 vcc, 1, v3')
    a.emit(f's_cbranch_vccnz L_{kind}_poll')
    a.label(f'L_{kind}_dep')
    if LF2: return
    if not EF: lstamp(a, 1, True)
    lstamp(a, 2, True)
    if TS and ENV('LST') != 'x': a.emit(f's_mov_b32 s58, s{S_CNT}')

LGO = 163840 - 64
def dep_early(a):
    srd(a, SO, 'ws0', WS_FL, FLS)
    a.emit(f's_lshl_b32 s86, s{S_TSI}, 12')
    a.emit(f's_lshl_b32 s4, s{S_MT}, 8')
    a.emit('s_add_u32 s86, s86, s4')
    a.emit('s_sub_u32 s86, s86, 4096')
    a.emit('v_and_b32 v12, 15, v1')
    a.emit('v_lshlrev_b32 v12, 2, v12')
    a.emit('v_mov_b32 v3, 0')
    a.emit(f'v_mov_b32 v2, {LGO}')
    a.emit('ds_write_b32 v2, v3')
    a.emit('v_mov_b32 v13, 1')
    a.emit(f's_mov_b32 s{S_CNT}, 0x100000')
    a.emit(f's_cmp_lg_u32 s{S_WV}, 4')
    a.emit('s_waitcnt lgkmcnt(0)')
    a.emit('s_barrier')
    a.emit('s_cbranch_scc1 L_w2_go')
    lstamp(a, 0)
    a.emit('s_mov_b64 exec, 1')
    a.emit(f'buffer_store_dword v13, off, s[{SO}:{SO+3}], s{S_FL} sc1')
    a.emit('s_mov_b64 exec, -1')
    a.label('L_w2_poll')
    a.emit(f'buffer_load_dword v3, v12, s[{SO}:{SO+3}], s86 offen sc1')
    a.emit(f's_sub_u32 s{S_CNT}, s{S_CNT}, 1')
    a.emit('s_cbranch_scc1 L_w2_rel')
    a.emit('s_waitcnt vmcnt(0)')
    a.emit('v_cmp_eq_u32 vcc, 0, v3')
    a.emit('s_cbranch_vccnz L_w2_poll')
    a.label('L_w2_rel')
    a.emit('ds_write_b32 v2, v13')
    lstamp(a, 1)
    a.emit('s_branch L_w2_dep')
    a.label('L_w2_go')
    a.emit(f's_mov_b32 s{S_CNT}, 0x2000000')
    a.label('L_w2_gol')
    a.emit('ds_read_b32 v3, v2')
    a.emit(f's_sub_u32 s{S_CNT}, s{S_CNT}, 1')
    a.emit('s_cbranch_scc1 L_w2_dep')
    a.emit('s_waitcnt lgkmcnt(0)')
    a.emit('v_cmp_eq_u32 vcc, 0, v3')
    a.emit('s_cbranch_vccnz L_w2_gol')
    a.label('L_w2_dep')

def late_flag(a):
    a.emit(f's_cmp_lg_u32 s{S_WV}, 4')
    a.emit('s_cbranch_scc1 L_w2_nolate')
    a.emit('v_mov_b32 v3, 2')
    a.emit('s_mov_b64 exec, 1')
    a.emit(f'buffer_store_dword v3, off, s[{SO}:{SO+3}], s{S_FL} sc1')
    a.emit('s_mov_b64 exec, -1')
    a.label('L_w2_nolate')

def late_check(a):
    a.emit(f's_mov_b32 s{S_CNT}, 0x100000')
    a.label('L_w2_lchk')
    a.emit('v_cmp_ne_u32 vcc, 2, v13')
    a.emit('s_cbranch_vccz L_w2_lok')
    a.emit(f'buffer_load_dword v13, v12, s[{SO}:{SO+3}], s86 offen sc1')
    a.emit(f's_sub_u32 s{S_CNT}, s{S_CNT}, 1')
    a.emit('s_waitcnt vmcnt(0)')
    a.emit('s_cbranch_scc0 L_w2_lchk')
    a.label('L_w2_lok')
    if TS: a.emit(f's_mov_b32 s58, s{S_CNT}')
    lstamps_out(a, 'w2')

def gbar(a, kind):
    if not MEGA or (EARLY and kind == 'w2'): return
    if kind == 'attn':
        a.emit(f's_cmp_eq_u32 s{S_LAYER}, 0')
        a.emit('s_cbranch_scc1 L_attn_nog')
    a.emit('s_barrier')
    if kind == 'attn': a.label('L_attn_nog')

def next_phase(a, kind, comp=False):
    nxt = {'attn': 'wo', 'wo': 'w1', 'w1': 'w2', 'w2': 'attn'}[kind]
    if kind == 'w2':
        a.emit(f's_mov_b32 s{S_LAYER}, 1')
        a.emit(f's_add_u32 s12, s22, {WS_X2}')
        a.emit('s_addc_u32 s13, s23, 0')
        a.emit(f's_add_u32 s34, s22, {LSTR}')
        a.emit('s_addc_u32 s35, s23, 0')
    a.emit(f's_add_u32 s{S_TSI}, s{S_TSI}, 1')
    a.emit(f's_branch L_{nxt}_' + ('compute' if comp and (NV or LF2 == 2) and nxt == 'w2' else 'body'))

def last_check(a, kind):
    if kind == 'w2' or (kind == 'attn' and not ONE):
        a.emit(f's_cmp_eq_u32 s{S_LAYER}, {0 if kind == "attn" else 1}')
        a.emit(f's_cbranch_scc1 L_{kind}_end')

def compute_end(a, kind):
    if not MEGA:
        stamps_out(a, kind)
        a.emit('s_endpgm')
        return
    if not TS and not (SKL and kind == 'w2'): last_check(a, kind)
    if TE and kind == 'w2' and not SKL: a.lines[-1] = a.lines[-1].replace('L_w2_end', 'L_fin')
    if kind in EBAR: a.emit('s_barrier')
    import pads
    for x in pads.chain({'attn': 'he', 'wo': 'hw'}.get(kind)): a.emit(x)
    if LF2 == 2 and kind == 'w1': a.lines.append('@W2B')
    if not ((EARLY or NV) and kind == 'w1'):
        a.emit('s_waitcnt lgkmcnt(0)' if EF and kind == 'w1' else f"s_waitcnt vmcnt({int(SF and kind in ('wo', 'w2'))}) lgkmcnt(0)")
        a.emit('s_barrier')
    if TS:
        stamps_out(a, kind)
        if ENV('DIAG') and kind == 'w2': diag(a)
        last_check(a, kind)
    stamp(a, 0, nowait=True)
    next_phase(a, kind, True)

def fin(a):
    if not TE: return
    a.label('L_fin')
    a.emit('s_waitcnt vmcnt(0)')
    a.emit('s_memrealtime s[92:93]')
    srd(a, SP, 'ws0', WS_TS, 1 << 20)
    a.emit(f's_lshl2_add_u32 s4, s2, s{S_WV}')
    a.emit('s_lshl_b32 s4, s4, 3')
    a.emit('s_waitcnt lgkmcnt(0)')
    a.emit('v_mov_b32 v4, s94')
    a.emit('v_mov_b32 v5, s92')
    a.emit('s_mov_b64 exec, 1')
    a.emit(f'buffer_store_dwordx2 v[4:5], off, s[{SP}:{SP+3}], s4')
    a.emit('s_endpgm')

def diag(a):
    ph, j, K, C = [int(x) for x in ENV('DIAG').split(',')]
    a.emit(f's_lshl1_add_u32 s3, s{S_WV}, s{S_LAYER}')
    a.emit('s_cmp_lg_u32 s3, 1')
    a.emit('s_cbranch_scc1 L_diag_end')
    a.emit('s_waitcnt vmcnt(0)')
    a.emit('v_lshlrev_b32 v1, 6, v0')
    for i in range(4): a.emit(f's_mov_b32 s3, {4096*i}'); a.emit(f'buffer_load_dword v{4+i}, v1, s[{SP}:{SP+3}], s3 offen sc1')
    a.emit('s_lshl_b32 s4, s2, 6')
    a.emit(f's_add_u32 s4, s4, {(ph << 16) + 16 * j}')
    a.emit(f'buffer_load_dword v8, off, s[{SP}:{SP+3}], s4 sc1')
    a.emit('s_waitcnt vmcnt(0)')
    for i in range(4): a.emit(f'v_sub_u32 v{4+i}, v8, v{4+i}')
    a.emit('v_max_i32 v4, v4, v5'); a.emit('v_max_i32 v6, v6, v7'); a.emit('v_max_i32 v4, v4, v6')
    a.emit('s_mov_b32 s5, 0')
    a.emit('s_nop 1')
    for i in range(64):
        a.emit(f'v_readlane_b32 s3, v4, {i}')
        a.emit('s_max_i32 s5, s5, s3')
    if C: a.emit(f's_sub_u32 s5, {C}, s5'); a.emit('s_max_i32 s5, s5, 0')
    a.emit('s_min_u32 s5, s5, 15000')
    a.emit(f's_mul_i32 s5, s5, {K}')
    a.emit('s_memrealtime s[6:7]')
    a.emit('s_mov_b32 s4, 0x40000')
    a.emit('s_waitcnt lgkmcnt(0)')
    a.label('L_diag_l')
    a.emit('s_memrealtime s[8:9]')
    a.emit('s_sub_u32 s4, s4, 1')
    a.emit('s_cbranch_scc1 L_diag_end')
    a.emit('s_waitcnt lgkmcnt(0)')
    a.emit('s_sub_u32 s8, s8, s6')
    a.emit('s_cmp_lt_u32 s8, s5')
    a.emit('s_cbranch_scc1 L_diag_l')
    a.label('L_diag_end')

def loader_end(a, kind, check=True):
    if MEGA:
        if kind == LSTK and not EARLY: lstamps_out(a, kind)
        if check: last_check(a, kind)
        a.emit(f's_lshl_b32 s{S_FL}, s{S_TSI}, 15')
        a.emit(f's_lshl_b32 s4, s{S_MT}, 11')
        a.emit(f's_add_u32 s{S_FL}, s{S_FL}, s4')
        a.emit(f's_lshl_b32 s4, s{S_NT}, 2')
        a.emit(f's_add_u32 s{S_FL}, s{S_FL}, s4')
        next_phase(a, kind)

def pf_weights(a, sd, which, size, ldw2, R, sh, L, LMn, tilebytes, NI, vd, row0=0, qkv=False, pair=False):
    if 'nopf' in DBG: return 0
    srd(a, sd, which, 0, size)
    a.emit(f's_and_b32 s3, s{S_WV}, 3')
    a.emit(f's_mul_i32 s3, s3, {NI * (64 >> sh)}')
    a.emit(f's_mul_i32 s4, s{S_CU}, {R}')
    a.emit('s_add_u32 s3, s3, s4')
    if row0: a.emit(f's_add_u32 s3, s3, {row0}')
    a.emit(f'v_lshrrev_b32 v2, {sh}, v1')
    a.emit('v_add_u32 v2, s3, v2')
    a.emit(f'v_mul_u32_u24 v2, {ldw2}, v2')
    a.emit(f'v_and_b32 v3, {(1 << sh) - 1}, v1')
    if L < (1 << sh): a.emit(f'v_min_u32 v3, {L-1}, v3')
    if qkv:
        a.emit('v_lshrrev_b32 v12, 2, v3')
        a.emit('v_lshl_add_u32 v2, v12, 11, v2')
        a.emit('v_and_b32 v3, 3, v3')
    a.emit(f'v_lshl_add_u32 v2, v3, {8 if pair else 7}, v2')
    a.emit('s_and_b32 s3, s2, 7')
    a.emit(f's_lshr_b32 s3, s3, {4 - LMn}')
    a.emit(f's_mul_i32 s3, s3, {tilebytes if pair else (1 << (5 - LMn)) * tilebytes}')
    for i in range(NI):
        a.emit(f'buffer_load_dword v{vd+i}, v2, s[{sd}:{sd+3}], s3 offen')
        if i + 1 < NI: a.emit(f's_add_u32 s3, s3, {(64 >> sh) * ldw2}')
    return NI

_pfc = [0]
def pf_code(a, start, end, vd, forward=True):
    if 'nopfc' in DBG: return 0
    _pfc[0] += 1
    lab = f'L_pfc{_pfc[0]}'
    a.emit('s_getpc_b64 s[4:5]')
    a.label(lab)
    if forward:
        a.emit(f's_add_u32 s4, s4, {start}-{lab}')
        a.emit('s_addc_u32 s5, s5, 0')
    else:
        a.emit(f's_sub_u32 s4, s4, {lab}-{start}')
        a.emit('s_subb_u32 s5, s5, 0')
    a.emit(f's_and_b32 s3, s{S_WV}, 3')
    a.emit('s_lshl_b32 s3, s3, 13')
    a.emit('v_lshl_add_u32 v2, v1, 7, s3')
    a.emit(f'v_min_u32 v2, {end}-{start}-4, v2')
    a.emit(f'global_load_dword v{vd}, v2, s[4:5]')
    return 1

def wbase(a, vd, vt, g='v2', nr=False):
    if nr: a.emit(f'v_lshrrev_b32 v{vd}, 2, v1')
    else:
        a.emit(f'v_bfe_u32 v{vd}, v1, 2, 2')
        a.emit(f'v_lshl_add_u32 v{vd}, {g}, 3, v{vd}')
    a.emit(f'v_lshlrev_b32 v{vd}, 7, v{vd}')
    a.emit(f'v_and_b32 v{vt}, 3, v1')
    a.emit(f'v_lshl_add_u32 v{vd}, v{vt}, 3, v{vd}')
    a.emit(f'v_bfe_u32 v{vt}, v1, 3, 2')
    a.emit(f'v_lshl_add_u32 v{vd}, v{vt}, 5, v{vd}')


def code_touch(a, start, end, nb, sd=SX, loader=False):
    if ENV('CT', '1') == '0': return
    _pfc[0] += 1
    lab = f'L_pfc{_pfc[0]}'
    a.emit(f's_cmp_lg_u32 s{S_LAYER}, 0')
    a.emit(f's_cbranch_scc1 {lab}_skip')
    a.emit('s_getpc_b64 s[4:5]')
    a.label(lab)
    a.emit(f's_lshl_b32 s3, s{S_CU}, 2')
    a.emit(f's_add_u32 s3, s3, s{S_WV}')
    if loader: a.emit('s_sub_u32 s3, s3, 4')
    a.emit(f's_mul_i32 s3, s3, {nb}')
    a.emit(f's_min_u32 s3, s3, {end}-{start}-{nb}')
    a.emit(f's_add_i32 s3, s3, {start}-{lab}')
    a.emit('s_ashr_i32 s6, s3, 31')
    a.emit('s_add_u32 s4, s4, s3')
    a.emit('s_addc_u32 s5, s5, s6')
    for i in range(nb // 64):
        a.emit(f's_load_dword s{84 if loader else SW}, s[4:5], {64*i}')
    a.label(f'{lab}_skip')

def loader_first(a, kind):
    if ENV('LF', '1') == '0': return
    L = a.lines
    ib = max(i for i, l in enumerate(L) if l.strip() == f's_cbranch_scc1 L_{kind}_loader')
    il = L.index(f'L_{kind}_loader:')
    ie = L.index(f'L_{kind}_end:') + 2
    assert L[ie - 1].strip() == 's_endpgm' and L[ib - 1].strip().startswith('s_cmp_ge_u32')
    L[ib - 1] = L[ib - 1].replace('s_cmp_ge_u32', 's_cmp_lt_u32')
    L[ib] = f'  s_cbranch_scc1 L_{kind}_compute'
    a.lines = L[:ib + 1] + L[il:ie] + [f'L_{kind}_compute:'] + L[ib + 1:il] + L[ie:]

def clear_flags(a, part, n=0):
    if not ONE or DS: return
    if part == 0 and 'attn' not in OT: a.emit(f's_load_dwordx2 s[{SC}:{SC+1}], s[0:1], 72')
    a.emit(f's_or_b32 s3, s{S_LAYER}, s{S_WV}')
    a.emit(f's_cbranch_scc1 L_clr_skip{part}')
    if part == 0:
        srd(a, SP, 'ws0', WS_FL, FLS)
        a.emit('s_lshl_b32 s3, s2, 11')
        a.emit('v_lshlrev_b32 v2, 4, v1')
        a.emit(f'buffer_store_dwordx4 v[128:131], v2, s[{SP}:{SP+3}], s3 offen sc1')
        a.emit(f'buffer_store_dwordx4 v[128:131], v2, s[{SP}:{SP+3}], s3 offen offset:1024 sc1')
    else:
        a.emit('v_mov_b32 v3, 1')
        a.emit(f's_and_b32 s{SC+1}, s{SC+1}, 0xffff')
        a.emit(f's_mov_b32 s{SC+2}, 256')
        a.emit(f's_mov_b32 s{SC+3}, 0x00020000')
        a.emit('s_mov_b64 exec, 1')
        a.emit(f's_waitcnt vmcnt({n})')
        a.emit(f'buffer_store_byte v3, off, s[{SC}:{SC+3}], s2 sc1')
        a.emit('s_mov_b64 exec, -1')
    a.label(f'L_clr_skip{part}')

def mf_order(nn, nm, skip=lambda jn, jm: False):
    m = ENV('MFO', 's')
    if m == 'n': o = [(jn, jm) for jn in range(nn) for jm in range(nm)]
    elif m == 's': o = [(jn, jm if not jn & 1 else nm - 1 - jm) for jn in range(nn) for jm in range(nm)]
    elif m == 'm': o = [(jn, jm) for jm in range(nm) for jn in range(nn)]
    elif m == 'z': o = [(jn if not jm & 1 else nn - 1 - jn, jm) for jm in range(nm) for jn in range(nn)]
    elif m == 'd': o = [(i % nn, (i // nn + i % nn) % nm) for i in range(nn * nm)]
    return [x for x in o if not skip(*x)]
```

```python
from common import *

T4 = ENV('T4', '1') == '1'
OBAR = ENV('OBAR', '0') == '1'
def big_loop(a, tag, N, S, STAGE, naddr, VB, VA, reads, mf, variants=None, select=None, post=None, ot=None, mid=(), halo=None, hooks=None):
    def addr():
        o = [f'v_add_u32_e64 v{VA+i}, s{S_SLOT}, v{VB+i}' for i in range(naddr)]
        o += [f's_add_u32 s{S_SLOT}, s{S_SLOT}, {STAGE}', f's_cmp_eq_u32 s{S_SLOT}, {S*STAGE}', f's_cselect_b32 s{S_SLOT}, 0, s{S_SLOT}']
        return o
    a.emit(f's_mov_b32 s{S_SLOT}, 0')
    for x in addr(): a.emit(x)
    if halo:
        if hooks: own_pos(a, S_CNT)
        else: a.emit(f's_mov_b32 s{S_CNT}, {N}')
        if hooks: a.emit(f's_mul_i32 s{S_T}, s{S_LAYER}, {len(hooks)}')
        a.emit(f's_cmp_eq_u32 s{S_LAYER}, 0')
        a.emit(f's_cbranch_scc1 L_{tag}_nog')
    a.emit(f's_mov_b32 s{S_CNT}, {N - 1 if ot else N}')
    if ot:
        rd = (lambda s, ks: reads(s, ks, False)) if halo else reads
        for x in rd(0, 0): a.emit(x)
        a.emit('s_waitcnt lgkmcnt(0)')
        if LF1 and tag == 'w1':
            SH0, SH1 = [int(x) for x in ENV('SH', '18,3').split(',')]
            sd = rd(1, 1) + addr()
            for i, x in enumerate(ot(0)):
                a.emit(x)
                if i < len(sd): a.emit(sd[i])
                a.lines += ['@S'] * (1 if i < SH0 else SH1 if i >= len(sd) else 0)
            a.emit('s_waitcnt lgkmcnt(0)')
            for x in ot(1): a.emit(x); a.lines += ['@S'] * SH1
            assert mid[SH0].split()[0] not in ('s_addc_u32', 's_cselect_b32')
            while len(mid) > 1: a.lines[a.lines.index('@S')] = mid.pop(0)
        else:
            interleave(a, ot(0), rd(1, 1) + addr(), lead=1, per=1)
            a.emit('s_waitcnt lgkmcnt(0)')
            for x in ot(1): a.emit(x)
    if halo:
        a.emit('s_barrier')
        for x in halo[0]: a.emit(x)
        a.label(f'L_{tag}_nog')
    else:
        import pads
        for x in pads.chain('hv'): a.emit(x)
        MG = int(ENV('MG', '0'))
        if LF2 == 2: MG = len(mid) - 1
        a.lines += mid[:MG] + ['@W2G'] * (LF2 == 2); mid = mid[MG:]
        if ENV('S1') == 'a': stamp(a, 1)
        if not LF1: gbar(a, tag)
        if ENV('S1') == 'b': stamp(a, 1)
    a.lines += mid
    if ENV('S1') == 'c': stamp(a, 1)
    if halo: a.emit(f's_cmp_eq_u32 s{S_LAYER}, 0')
    a.emit('s_barrier')
    if not ENV('S1') or halo: stamp(a, 1)
    if halo:
        a.emit(f's_cbranch_scc1 L_{tag}_first')
        for x in halo[1] + reads(0, 0): a.emit(x)
        a.emit('s_waitcnt lgkmcnt(15)')
        for x in halo[2]: a.emit(x)
        a.emit('s_waitcnt lgkmcnt(0)')
        a.emit(f's_branch L_{tag}_loop')
        a.label(f'L_{tag}_first')
        if not DS: a.emit(f's_load_dwordx2 s[{SC}:{SC+1}], s[0:1], 72')
    for x in reads(0, 0): a.emit(x)
    a.emit('s_waitcnt lgkmcnt(0)')
    def loop(nm, m):
        la = int(ENV('LA_' + tag.upper(), '4'))
        w = a.lines.pop()
        assert w.split()[0] in ('s_waitcnt', 's_cbranch_scc1', 's_branch')
        a('.p2align 5')
        for _ in range(la - 1): a.emit('s_nop 0')
        a.lines.append(w)
        a.label(f'L_{tag}_loop{nm}')
        ad = addr()
        ad[-1] += f'\n  s_sub_u32 s{S_CNT}, s{S_CNT}, 1'
        interleave(a, m(0), reads(1, 1) + ad, lead=1, per=1)
        a.emit('s_waitcnt lgkmcnt(0)')
        a.emit('s_barrier')
        interleave(a, m(1), reads(0, 0) + [f's_cmp_lg_u32 s{S_CNT}, 0\n  s_nop 0'], lead=1, per=1)
        a.emit('s_waitcnt lgkmcnt(0)')
        a.emit(f's_cbranch_scc1 L_{tag}_loop{nm}')
    if variants:
        select()
        vs = list(variants.items())
        for i, (nm, m) in enumerate(vs):
            loop(nm, m)
            if i + 1 < len(vs): a.emit(f's_branch L_{tag}_post')
        a.label(f'L_{tag}_post')
        post()
        a.emit(f's_branch L_{tag}_exit')
    if hooks and PO0 == 0:
        a.emit(f's_cmp_eq_u32 s{S_CNT}, 0')
        a.emit(f's_cbranch_scc1 L_{tag}_lend')
    loop('', mf)
    a.label(f'L_{tag}_lend')
    if hooks:
        a.emit(f's_add_u32 s{S_T}, s{S_T}, 1')
        a.emit(f's_cmp_gt_u32 s{S_T}, {len(hooks)}')
        a.emit(f's_cbranch_scc1 L_{tag}_exit')
        for i, (t, code) in enumerate(hooks):
            if i + 1 < len(hooks):
                a.emit(f's_cmp_lg_u32 s{S_T}, {i + 1}')
                a.emit(f's_cbranch_scc1 L_{tag}_hook{i}')
            t2 = hooks[i + 1][0] if i + 1 < len(hooks) else N
            if t < 0 <= t2:
                own_pos(a, S_CNT)
                a.emit(f's_sub_u32 s{S_CNT}, {t2 + t + 1}, s{S_CNT}')
                assert t2 + t + 1 > PO0 + POM
            else: a.emit(f's_mov_b32 s{S_CNT}, {abs(t2 - t)}')
            for x in code: a.emit(x)
            a.emit(f's_branch L_{tag}_loop')
            if i + 1 < len(hooks): a.label(f'L_{tag}_hook{i}')
    a.label(f'L_{tag}_exit')
    stamp(a, 2)

def stats_loads(a, vd, halo):
    a.emit(f's_and_b32 s3, s{S_WV}, 3')
    a.emit(f's_lshl_b32 s4, s{S_MT}, 7')
    a.emit('s_lshl_b32 s5, s3, 6')
    a.emit('s_add_u32 s5, s5, s4')
    a.emit('v_add_u32 v2, s5, v1')
    a.emit('s_sub_u32 s4, s4, 16')
    a.emit('v_and_b32 v3, 15, v1')
    a.emit('v_add_u32 v3, s4, v3')
    a.emit('v_max_i32 v3, 0, v3')
    a.emit('s_cmp_ge_u32 s3, 2')
    a.emit('s_cselect_b64 vcc, -1, 0')
    a.emit('v_cndmask_b32 v2, v2, v3, vcc')
    a.emit('v_lshlrev_b32 v2, 3, v2')
    a.emit('s_mov_b32 s3, 0')
    for j in range(16):
        a.emit(f'buffer_load_dwordx2 v[{vd+2*j}:{vd+2*j+1}], v2, s[{ST}:{ST+3}], s3 offen')
        if j < 15: a.emit('s_add_u32 s3, s3, 16384')
    return 16

def stats_finish(a, vs):
    a.emit(f'v_mul_f32 v{vs}, 0x3a800000, v{vs}')
    a.emit(f'v_mul_f32 v{vs+1}, 0x3a800000, v{vs+1}')
    a.emit(f'v_fma_f32 v{vs+1}, -v{vs}, v{vs}, v{vs+1}')
    a.emit(f'v_max_f32 v{vs+1}, 0, v{vs+1}')
    a.emit(f'v_add_f32 v{vs+1}, 0x3727c5ac, v{vs+1}')
    a.emit(f'v_rsq_f32 v{vs+1}, v{vs+1}')
    a.emit('s_nop 0')

def stats_reduce_store(a, vd, LST):
    for j in range(1, 8):
        a.emit(f'v_add_f32 v{vd}, v{vd}, v{vd+2*j}')
        a.emit(f'v_add_f32 v{vd+1}, v{vd+1}, v{vd+2*j+1}')
        a.emit(f'v_add_f32 v{vd+16}, v{vd+16}, v{vd+16+2*j}')
        a.emit(f'v_add_f32 v{vd+17}, v{vd+17}, v{vd+17+2*j}')
    a.emit(f'v_add_f32 v{vd}, v{vd}, v{vd+16}')
    a.emit(f'v_add_f32 v{vd+1}, v{vd+1}, v{vd+17}')
    stats_finish(a, vd)
    a.emit(f's_and_b32 s3, s{S_WV}, 3')
    a.emit('s_lshl_b32 s5, s3, 6')
    a.emit('s_add_u32 s5, s5, 16')
    a.emit('v_add_u32 v2, s5, v1')
    a.emit('v_and_b32 v3, 15, v1')
    a.emit('s_cmp_ge_u32 s3, 2')
    a.emit('s_cselect_b64 vcc, -1, 0')
    a.emit('v_cndmask_b32 v2, v2, v3, vcc')
    a.emit('v_lshlrev_b32 v2, 2, v2')
    a.emit(f'v_add_u32 v2, {LST}, v2')
    a.emit(f'ds_write2_b32 v2, v{vd}, v{vd+1} offset0:0 offset1:160')

VST, VSH, VCS, VBI = 18, 19, 22, 23
def stats4_setup(a, halo):
    a.emit(f's_and_b32 s3, s{S_WV}, 3')
    a.emit(f's_lshl2_add_u32 s4, s{S_MT}, s3')
    a.emit('s_lshl_b32 s4, s4, 8')
    a.emit('v_lshrrev_b32 v2, 4, v1')
    a.emit('v_and_b32 v3, 15, v1')
    a.emit('v_lshl_add_u32 v3, v3, 4, s4')
    a.emit(f'v_lshl_add_u32 v{VST}, v2, 14, v3')
    if halo:
        a.emit(f's_lshl_b32 s4, s{S_MT}, 5')
        a.emit('s_add_u32 s4, s4, s3')
        a.emit('s_sub_u32 s4, s4, 4')
        a.emit('s_max_i32 s4, s4, 0')
        a.emit('s_lshl_b32 s4, s4, 5')
        a.emit('v_lshrrev_b32 v2, 2, v1')
        a.emit('v_and_b32 v3, 3, v1')
        a.emit('v_lshl_add_u32 v3, v3, 3, s4')
        a.emit(f'v_lshl_add_u32 v{VSH}, v2, 14, v3')

def quad_loads(vd, vo, sd):
    o = []
    for j in range(4):
        if j: o.append(f's_mov_b32 s3, {j << 16}')
        o.append(f'buffer_load_dwordx4 v[{vd+4*j}:{vd+4*j+3}], v{vo}, s[{sd}:{sd+3}], {"s3" if j else 0} offen')
    return o

def stats4_loads(vd, halo):
    return quad_loads(vd, VST, ST) + ([f'buffer_load_dwordx2 v[{vd+16}:{vd+17}], v{VSH}, s[{ST}:{ST+3}], 0 offen'] if halo else [])

def pkadd(a, d, s):
    if ENV('UPK', '1') == '1':
        for i in range(2): a.emit(f'v_add_f32 v{d+i}, v{d+i}, v{s+i}')
    else: a.emit(f'v_pk_add_f32 v[{d}:{d+1}], v[{d}:{d+1}], v[{s}:{s+1}]')

def quad_sum(a, vd):
    pk = lambda d, s: pkadd(a, d, s)
    pk(vd, vd + 4); pk(vd + 2, vd + 6); pk(vd + 8, vd + 12); pk(vd + 10, vd + 14); pk(vd, vd + 8); pk(vd + 2, vd + 10)
    a.emit('s_nop 1')
    a.emit(f'v_permlane32_swap_b32 v{vd}, v{vd+2}')
    a.emit(f'v_permlane32_swap_b32 v{vd+1}, v{vd+3}')
    pk(vd, vd + 2)

def nan_chk(a, lab, halo):
    def chk():
        a.emit('v_cmp_u_f32 vcc, v32, v33')
        if halo:
            a.emit('v_cmp_u_f32 s[4:5], v48, v49')
            a.emit('s_or_b64 s[4:5], vcc, s[4:5]')
            a.emit(f's_cbranch_scc0 {lab}ok')
        else: a.emit(f's_cbranch_vccz {lab}ok')
        a.emit(f's_sub_u32 s{S_CNT}, s{S_CNT}, 1')
        a.emit(f's_cbranch_scc1 {lab}ok')
        for x in stats4_loads(32, halo): a.emit(x + (' sc1' if x.startswith('buf') else ''))
        a.emit('s_waitcnt vmcnt(0)')
        a.emit(f's_branch {lab}chk')
        a.label(f'{lab}ok')
    a.emit(f's_mov_b32 s{S_CNT}, 0x4000')
    a.label(f'{lab}chk')
    return chk

def split3(a, x, d, t, row):
    a.emit(f'v_cvt_pk_bf16_f32 v{d}, v{x}, v{x}')
    a.emit(f'v_and_b32 v{t}, 0xffff0000, v{d}')
    a.emit(f'v_sub_f32 v{t}, v{x}, v{t}')
    a.emit(f'v_cvt_pk_bf16_f32 v{d+1}, v{t if row else x}, v{t}')
    a.emit(f'v_and_b32 v{d+2}, 0xffff0000, v{d+1}')
    a.emit(f'v_sub_f32 v{t}, v{t}, v{d+2}')
    a.emit(f'v_cvt_pk_bf16_f32 v{d+2}, v{x if row else t}, v{t if row else x}')
    if not row: a.emit(f'v_mov_b32 v{d}, v{d+1}')

def stats4_store(a, vd, LST, halo, chk=None, fin=None):
    quad_sum(a, vd)
    if chk: chk()
    def allsum(r, op):
        a.emit(f'v_mov_b32 v{r+2}, v{r}')
        a.emit(f'v_mov_b32 v{r+3}, v{r+1}')
        a.emit('s_nop 0')
        a.emit(f'v_permlane{op}_swap_b32 v{r}, v{r+2}')
        a.emit(f'v_permlane{op}_swap_b32 v{r+1}, v{r+3}')
        pkadd(a, r, r + 2)
    allsum(vd, 16)
    if fin: return fin()
    stats_finish(a, vd)
    a.emit(f's_and_b32 s3, s{S_WV}, 3')
    a.emit('s_lshl_b32 s5, s3, 7')
    a.emit(f's_add_u32 s5, s5, {LST + 64}')
    a.emit('v_and_b32 v3, 15, v1')
    a.emit('v_lshrrev_b32 v2, 5, v1')
    a.emit('v_lshl_add_u32 v2, v3, 1, v2')
    a.emit('v_lshl_add_u32 v2, v2, 2, s5')
    a.emit(f'ds_write2_b32 v2, v{vd}, v{vd+1} offset0:0 offset1:160')
    if halo:
        h = vd + 16
        allsum(h, 32); allsum(h, 16)
        for r in (8, 4):
            a.emit('s_nop 1')
            for i in range(2): a.emit(f'v_add_f32_dpp v{h+i}, v{h+i}, v{h+i} row_ror:{r} row_mask:0xf bank_mask:0xf')
        stats_finish(a, h)
        a.emit('s_lshl_b32 s5, s3, 4')
        a.emit(f's_add_u32 s5, s5, {LST}')
        a.emit('v_and_b32 v3, 3, v1')
        a.emit('v_lshl_add_u32 v2, v3, 2, s5')
        a.emit(f'ds_write2_b32 v2, v{h}, v{h+1} offset0:0 offset1:160')

def gen_w1(a, tsidx, side, cs=(16, 16384, 0)):
    kind = 'w1'
    K = 1024; lda2 = 2048; ldw2 = 7168; ldo2 = 7168
    ot = kind in OT
    S = 3; LM = int(ENV('LM_W1', '2' if ot else '3'))
    STAGE = 16384 + 4 * 8192
    o2 = 'w2' in OT
    assert LM == 2 or not o2
    LST = OHB - 4096 if o2 else S * STAGE
    LCS = LST + 1280
    if MF: LST = OHB - 8192; LCS = LST + 4096
    c0 = -2.0 * 0.7978845608028654 * 1.4426950408889634
    c1 = c0 * 0.044715
    N = 16
    body = f'L_{kind}_body'; end = f'L_{kind}_end'
    VB, VA, VO = 4, 20, 12
    F = [32, 80]; ACC = 128
    acc = lambda jn, jm: ACC + (jn * 4 + jm) * 4
    fx = lambda s, jm: F[s] + jm * 4
    fw = lambda s, jn: F[s] + 16 + jn * 4
    a.label(f'L_{kind}_c0')
    if not MEGA: stub(a, f'{kind}l0_kernel', body, 0, tsidx, True)
    a.label(body)
    tile_map(a, LM, end)
    a.emit(f's_cmp_ge_u32 s{S_WV}, 4')
    a.emit(f's_cbranch_scc1 L_{kind}_loader')
    if ot and OBAR: a.emit('s_barrier')
    if NV:
        from gemm64y import w2_pre, w2_early
        w2_pre(a)
        tile_map(a, LM, None)
    a.emit(f's_and_b32 s{S_WM}, s{S_WV}, 1')
    a.emit(f's_lshr_b32 s{S_WN}, s{S_WV}, 1')
    a.emit('v_and_b32 v3, 15, v1')
    a.emit('v_lshrrev_b32 v2, 4, v1')
    a.emit(f's_lshl_b32 s8, s{S_WM}, 13')
    a.emit(f'v_lshl_add_u32 v{VB}, v1, 4, s8')
    nr = kind in NS and NSR
    wbase(a, 13, 17, nr=nr)
    a.emit(f's_lshl_b32 s9, s{S_WN}, 6')
    a.emit('v_xor_b32 v13, s9, v13')
    a.emit(f'v_add_u32 v{VB+1}, 16384, v13')
    a.emit(f'v_xor_b32 v{VB+2}, 32, v{VB+1}')
    a.emit('v_and_b32 v16, 1, v2')
    a.emit('v_lshrrev_b32 v17, 1, v2')
    if nr: a.emit('v_lshrrev_b32 v13, 2, v1')
    else:
        a.emit('v_bfe_u32 v13, v1, 2, 2')
        a.emit('v_lshl_add_u32 v13, v16, 3, v13')
        a.emit('v_lshl_add_u32 v13, v17, 5, v13')
    n2 = 'w2' in NS
    if n2:
        a.emit('v_and_b32 v14, 1, v1')
        a.emit('v_lshl_add_u32 v13, v13, 1, v14')
        a.emit(f'v_xor_b32 v14, s{S_WN}, v16')
        a.emit('v_lshl_add_u32 v13, v13, 1, v14')
        a.emit('v_bfe_u32 v14, v1, 1, 1')
        a.emit('v_lshl_add_u32 v13, v13, 1, v14')
    else:
        a.emit(f'v_xor_b32 v14, s{S_WN}, v16')
        a.emit('v_lshl_add_u32 v13, v13, 1, v14')
        a.emit('v_and_b32 v14, 3, v1')
        a.emit('v_lshl_add_u32 v13, v13, 2, v14')
    a.emit('v_lshlrev_b32 v13, 3, v13')
    a.emit(f'v_add_u32 v{VB+3}, {16384 + 3 * 8192}, v13')
    i0 = len(a.lines)
    a.emit(f's_lshl_b32 s8, s{S_MT}, 7')
    a.emit(f's_lshl_b32 s9, s{S_WM}, 6')
    a.emit('s_add_u32 s8, s8, s9')
    a.emit(f's_mul_i32 s8, s8, {ldo2}')
    a.emit('v_lshlrev_b32 v14, 8, v17')
    a.emit('v_lshl_add_u32 v14, v3, 4, v14')
    if o2:
        a.emit(f's_lshl3_add_u32 s9, s{S_WM}, s{S_WN}')
        a.emit('s_lshl_b32 s9, s9, 10')
        a.emit(f's_add_u32 s9, s9, {OHB}')
        if n2: a.emit('v_lshl_add_u32 v18, v1, 4, s9')
        else:
            a.emit('v_lshl_add_u32 v18, v16, 9, v14')
            a.emit('v_add_u32 v18, s9, v18')
        srd(a, SB, 'b2', 0, 2048)
        a.emit(f's_lshr_b32 s9, s{S_NT}, 3')
        a.emit(f's_and_b32 s10, s{S_NT}, 7')
        a.emit('s_lshl1_add_u32 s9, s10, s9')
        a.emit('s_lshl_b32 s9, s9, 7')
        a.emit('v_lshl_add_u32 v19, v2, 3, s9')
    a.emit('v_add_u32 v14, s8, v14')
    a.emit(f's_lshl_b32 s10, s{S_NT}, 11')
    a.emit(f's_lshl_b32 s9, s{S_WN}, 10')
    a.emit('s_add_u32 s9, s9, s10')
    a.emit(f'v_lshl_add_u32 v{VO}, v1, 4, s8' if n2 else f'v_lshl_add_u32 v{VO}, v16, 9, v14')
    a.emit(f'v_add_u32 v{VO}, s9, v{VO}')
    if n2 and not MF: a.emit('v_lshl_add_u32 v17, v16, 2, v17')
    a.emit(f'v_mul_u32_u24 v16, {16*ldo2}, v16')
    a.emit('s_lshr_b32 s9, s9, 1')
    a.emit(f'v_add3_u32 v{VO+1}, v16, v14, s9')
    if MF:
        assert n2 and OH
        a.emit(f's_lshl_b32 s9, s{S_WM}, 10')
        a.emit(f's_add_u32 s9, s9, {LST}')
        a.emit('v_lshl_add_u32 v14, v3, 4, s9')
        a.emit(f's_lshl_b32 s9, s{S_WN}, 9')
        a.emit(f's_add_u32 s9, s9, {LCS}')
        a.emit('v_lshl_add_u32 v15, v3, 4, s9')
        a.emit('v_bfe_u32 v16, v1, 2, 1')
        a.emit('v_bfe_u32 v17, v1, 3, 1')
        a.emit('v_lshl_add_u32 v17, v16, 2, v17')
        a.emit('v_and_b32 v16, 3, v1')
        a.emit('v_lshl_add_u32 v17, v17, 2, v16')
        a.emit(f's_lshl_b32 s9, s{S_WN}, 7')
        a.emit(f's_add_u32 s9, s9, {LCS}')
        a.emit('v_lshl_add_u32 v16, v17, 4, s9')
        if MF == 2:
            a.emit('v_bfe_u32 v17, v1, 4, 1')
            for r in (14, 15, 16): a.emit(f'v_lshl_add_u32 v{r}, v17, 3, v{r}')
        a.emit(f'v_mov_b32 v17, {LST + 2048 + 12}')
    else:
        a.emit(f's_lshl_b32 s9, s{S_WM}, 8')
        a.emit(f's_add_u32 s9, s9, {LST + 64}')
        a.emit('v_lshl_add_u32 v14, v3, 2, s9')
        a.emit(f's_lshl_b32 s9, s{S_WN}, 7')
        a.emit(f's_add_u32 s9, s9, {LCS}')
        a.emit('v_lshl_add_u32 v15, v2, 4, s9')
        a.emit(f's_lshl_b32 s9, s{S_WN}, {5 if n2 else 6}')
        a.emit(f's_add_u32 s9, s9, {LCS}')
        a.emit(f'v_lshl_add_u32 v16, v{17 if n2 else 2}, 4, s9')
        if OH: a.emit(f'v_mov_b32 v17, {LST}')
    for i in range(0 if ot else 112): a.emit(f'v_mov_b32 v{ACC+i}, 0')
    if not MEGA: a.emit('s_waitcnt lgkmcnt(0)')
    srd(a, SO, ENV('HB', 'ws'), WS_H, 2048 * 7168)
    HC = ENV('HC', '')
    if HC:
        G_ = int(ENV('HCG', '6'))
        a.emit('v_lshrrev_b32 v26, 4, v1')
        a.emit(f'v_mul_u32_u24 v26, {16*ldo2}, v26')
        a.emit('v_lshl_add_u32 v26, v3, 6, v26')
        if G_ == 7: a.emit('v_and_b32 v26, 0xffffff80, v26')
        a.emit(f's_lshl1_add_u32 s3, s{S_NT}, s{S_WN}')
        a.emit('s_lshl_b32 s4, s3, 9')
        a.emit('s_add_u32 s4, s4, s8')
        a.emit('s_add_u32 s4, s4, 32768')
        a.emit('s_lshl_b32 s3, s3, 10')
        a.emit('s_add_u32 s3, s3, s10')
        a.emit('s_add_u32 s3, s3, s8')
        a.emit(f's_add_u32 s3, s3, {48 * 1024}')
        a.emit('v_and_b32 v27, 0xfffffdff, v26')
        op = 'load' if 'l' in HC else 'store'; fl = ' sc1' if '1' in HC else ''
        a.emit(f'buffer_{op}_dword v28, v26, s[{SO}:{SO+3}], s3 offen{fl}')
        a.emit(f'buffer_{op}_dword v29, v26, s[{SO}:{SO+3}], s3 offen offset:2048{fl}')
        a.emit(f'buffer_{op}_dword v30, v27, s[{SO}:{SO+3}], s4 offen{fl}')
    if ENV('HS'):
        a.emit(f"s_and_b32 s3, s2, {ENV('HS')}")
        a.emit(f's_cselect_b32 s{SO+2}, 0, s{SO+2}')
    if not ot: code_touch(a, 'L_w2_c0', 'L_w2_c1', 192 if SPX else 128)
    PW = LF2 == 2
    if PW: a.lines.append('@W2A')
    mid = []
    if ot: mid = a.lines[i0:]; del a.lines[i0:]
    def reads(s, ks):
        o = []
        if 'noread' in DBG: return o
        for jm in range(4):
            o.append(f'ds_read_b128 v[{fx(s,jm)}:{fx(s,jm)+3}], v{VA} offset:{jm*2048+ks*1024}')
        for jn in range(7):
            for h in range(2):
                r = fw(s, jn) + 2 * h
                o.append(f'ds_read_b64_tr_b16 v[{r}:{r+1}], v{VA+1+(jn&1 if jn < 6 else 2)} offset:{((jn>>1)*8192 if jn < 6 else 0)+h*(2048 if nr else 512 if jn < 6 else 256)+ks*4096}')
        return o
    def mf(s):
        o = []
        if 'nomfma' in DBG: return ['s_nop 0']
        for jn, jm in mf_order(7, 4):
            if True:
                c = acc(jn, jm)
                o.append(f'v_mfma_f32_16x16x32_bf16 v[{c}:{c+3}], v[{fw(s,jn)}:{fw(s,jn)+3}], v[{fx(s,jm)}:{fx(s,jm)+3}], v[{c}:{c+3}]')
        return o
    zc = lambda x: x[:x.rindex(',')] + ', 0'
    big_loop(a, kind, N, S, STAGE, 4, VB, VA, reads, mf, ot=(lambda s: mf(1) if s else [zc(x) for x in mf(0)]) if ot else None, mid=mid)
    if ENV('XSE'): a.emit(f"s_sleep {ENV('XSE')}")
    CS = 32; BI = 60; STT = 88; CK = 96; T = 100; D = 108
    KK = 76
    FW = 3 if MF == 1 else 1
    def fold(jn, jm): return f'v_mfma_f32_16x16x{16 * (FW + 1 >> 1)}_bf16 v[{acc(jn,jm)}:{acc(jn,jm)+3}], v[{CS+4*jn}:{CS+4*jn+FW}], v[{BI+4*jm}:{BI+4*jm+FW}], v[{acc(jn,jm)}:{acc(jn,jm)+3}]'
    if MF:
        rr = lambda jm, k: f'ds_read_b128 v[{KK+4*jm}:{KK+4*jm+3}], v{14 if MF == 1 else T} offset:{2048+256*jm}' if k else f'ds_read_b{32*FW+32} v[{BI+4*jm}:{BI+4*jm+FW}], v14 offset:{256*jm}'
        rc = lambda jn: f'ds_read_b{32*FW+32} v[{CS+4*jn}:{CS+4*jn+FW}], v{15 if jn < 6 else 16} offset:{(jn>>1)*1024+(jn&1)*256}'
        assert ENV('ORD', '0312')[0] == '0'
        hd = [rr(0, 0), rc(0), rc(1), rr(0, 1), 'ds_read_b32 v17, v17']
        tl = [rr(jm, k) for jm in (1, 2, 3) for k in (0, 1)] + [rc(jn) for jn in (6, 2, 3, 4, 5)]
        if MF == 2: hd.insert(2, f'v_and_b32 v{T}, -9, v14')
        for x in hd + tl: a.emit(x)
    for jm in range(0 if MF else 4):
        a.emit(f'ds_read2_b32 v[{STT+2*jm}:{STT+2*jm+1}], v14 offset0:{16*jm} offset1:{160+16*jm}')
    for jn in range(0 if 'nofold' in DBG or MF else 7):
        a.emit(f'ds_read_b128 v[{CS+4*jn}:{CS+4*jn+3}], v{15 if jn < 6 else 16} offset:{(jn>>1)*256+(jn&1)*64}')
        a.emit(f'ds_read_b128 v[{BI+4*jn}:{BI+4*jn+3}], v{15 if jn < 6 else 16} offset:{1024+(jn>>1)*256+(jn&1)*64}')
    if HC: a.emit('s_waitcnt vmcnt(0)')
    if OH and not MF: a.emit('ds_read_b32 v17, v17')
    for jn in range(4 if o2 else 0):
        a.emit(f'buffer_load_dwordx2 v[{OBIA[jn]}:{OBIA[jn]+1}], v19, s[{SB}:{SB+3}], 0 offen offset:{jn*32}')
    if MF:
        a.emit(f's_waitcnt lgkmcnt({len(tl) + 3})')
        a.emit(fold(0, 0))
        a.emit(f's_waitcnt lgkmcnt({len(tl)})')
    else:
        a.emit(f'v_mov_b32 v{CK}, {f2u(c0):#x}')
        a.emit(f'v_mov_b32 v{CK+1}, {f2u(c1):#x}')
        a.emit(f'v_mov_b32 v{CK+2}, 1.0')
        a.emit('s_waitcnt lgkmcnt(0)')
    if OH: a.emit(f'v_readfirstlane_b32 s{S_T}, v17')
    for jm in range(0 if MF else 4):
        a.emit(f'v_mul_f32 v{STT+2*jm}, v{STT+2*jm}, v{STT+2*jm+1}')
    if OH:
        a.emit(f's_cmp_lg_u32 s{S_T}, 0')
        a.emit(f's_cselect_b32 s{S_T}, {HALT}, 0')
        a.emit(f's_add_u32 s{SO}, s{SO}, s{S_T}')
        a.emit(f's_addc_u32 s{SO+1}, s{SO+1}, 0')
        for r in (SX, SC) if PW else ():
            a.emit(f's_add_u32 s{r}, s{r}, s{S_T}')
            a.emit(f's_addc_u32 s{r+1}, s{r+1}, 0')
    def tile_math(jn, jm, d):
        c = acc(jn, jm)
        seqs = []
        ST2 = f'v[{STT+2*jm}:{STT+2*jm+1}]'
        for q in range(2):
            x = c + 2 * q; t = T + 2 * q + 4 * (jn & 1)
            X = f'v[{x}:{x+1}]'; TT = f'v[{t}:{t+1}]'
            seqs.append([
              f'v_pk_fma_f32 {TT}, v[{CS+4*jn+2*q}:{CS+4*jn+2*q+1}], {ST2}, v[{BI+4*jn+2*q}:{BI+4*jn+2*q+1}] op_sel:[0,0,0] op_sel_hi:[1,0,1] neg_lo:[0,1,0] neg_hi:[0,1,0]',
              f'v_pk_fma_f32 {X}, {X}, {ST2}, {TT} op_sel:[0,1,0] op_sel_hi:[1,1,1]',
              f'v_pk_mul_f32 {TT}, {X}, {X}',
              f'v_pk_fma_f32 {TT}, {TT}, v[{CK}:{CK+1}], v[{CK}:{CK+1}] op_sel:[0,1,0] op_sel_hi:[1,1,0]',
              f'v_pk_mul_f32 {TT}, {TT}, {X}',
              f'v_exp_f32 v{t}, v{t}\n  v_exp_f32 v{t+1}, v{t+1}',
              f'v_pk_add_f32 {TT}, {TT}, v[{CK+2}:{CK+3}] op_sel_hi:[1,0]',
              f'v_rcp_f32 v{t}, v{t}\n  v_rcp_f32 v{t+1}, v{t+1}',
              f'v_pk_mul_f32 {X}, {X}, {TT}',
              f'v_cvt_pk_bf16_f32 v{d+q}, v{x}, v{x+1}'])
        if MF:
            k0 = f'v[{KK+4*jm}:{KK+4*jm+1}]'; k2 = f'v[{KK+4*jm+2}:{KK+4*jm+3}]'
            for q in seqs:
                TT = q[0].split()[1][:-1]
                q[3] = q[3].replace(f'v[{CK}:{CK+1}]', k0)
                q[6] = f'v_pk_fma_f32 {TT}, {TT}, {k2}, {k2} op_sel_hi:[1,0,0]'
                del q[:2]
            seqs[0][3] = '@MF\n  ' + seqs[0][3]
            tiles.append((jn, jm))
        if 'nofold' in DBG: seqs = [q[2:] for q in seqs]
        if 'nofold1' in DBG: seqs = [q[1:] for q in seqs]
        if 'nogelu' in DBG: seqs = [q[:2] + q[-1:] for q in seqs]
        if 'halfgelu' in DBG: seqs = [q[:2] + q[5:6] + q[-2:] for q in seqs]
        for ia, ib in zip(*seqs):
            a.emit(ia); a.emit(ib)
    cnt = [0]; tiles = []; e0 = len(a.lines)
    def pair(t0, t1, vo, soff, big=False):
        d = D + 4 * (cnt[0] % 4); cnt[0] += 1
        tile_math(*t0, d); tile_math(*t1, d + 2)
        a.emit(f's_add_u32 s3, s10, {soff}' if big else f's_mov_b32 s3, {soff}')
        if not n2 or t0[0] == 6:
            a.emit('s_nop 0')
            a.emit(f'v_permlane16_swap_b32 v{d}, v{d+2}')
            a.emit(f'v_permlane16_swap_b32 v{d+1}, v{d+3}')
        a.emit(f'buffer_store_dwordx4 v[{d}:{d+3}], v{vo}, s[{SO}:{SO+3}], s3 offen' + (stf(kind) if str(t0[0] // 2) in ENV('WTP', '013' if OH else '0123') else ' ' + ENV('WTQ', '')))
        if o2 and t0[0] < 6: a.emit(f'ds_write_b128 v18, v[{d}:{d+3}] offset:{(t0[0] // 2 + 2) % 3 * 16384 + t0[1] * 2048}')
    pr = lambda p, jm: pair((2 * p, jm), (2 * p + 1, jm), VO, jm * 16 * ldo2 + ((16 + 32 * p) if OH == 2 else (46 + 2 * p)) * 1024 * (p > 0), p > 0 and OH != 2)
    od = lambda jm: pair((6, jm), (6, jm + 1), VO + 1, jm * 16 * ldo2 + 32768)
    order = [lambda jm=jm: pr(0, jm) for jm in range(4)] + [lambda: od(0), lambda: od(2)] + [lambda jm=jm, p=p: pr(p, jm) for jm in range(4) for p in (1, 2)]
    if OH:
        order = []
        for c in ENV('ORD', '0312'): order += [lambda: od(0), lambda: od(2)] if c == '3' else [lambda jm=jm, p=int(c): pr(p, jm) for jm in range(4)]
    EW = int(ENV('EW', '10'))
    if EF: order = [lambda: od(0), lambda: od(2)] + [lambda jm=jm, p=p: pr(p, jm) for p in (1, 2, 0) for jm in range(4)]
    for i, f in enumerate(order):
        f()
        if NV and i + 1 == EX: w2_early(a)
        if (EARLY or EF) and i + 1 == EW:
            a.emit(f's_waitcnt vmcnt({EW - (6 if EF else EARLY // 4)})')
            a.emit('s_barrier')
    for i, j in enumerate(j for j in range(e0, len(a.lines)) if '@MF' in a.lines[j]):
        a.lines[j] = a.lines[j].replace('@MF\n  ', ('s_waitcnt lgkmcnt(0)\n  ' if i == 1 else '') + (fold(*tiles[i + 1]) + '\n  ' if i + 1 < len(tiles) else ''))
    if ENV('ES'): stamp(a, 1)
    compute_end(a, kind)
    a.label(f'L_{kind}_loader')
    L = Loader(a, kind, K, lda2, ldw2, [0, f's{S_HD}', 's_add_u32 s4, s4, 128'], 128, S, STAGE, rot=int(ENV('ROT_W1', '0')), xblk=True, half=2048)
    L.ot = int(ot); L.loc = bool(LF1)
    L.setup()
    a.emit('s_waitcnt lgkmcnt(0)')
    if WD: srd(a, SW, 'w1', 0, 1024 * 7168)
    iw0 = len(a.lines)
    if WD == 'b':
        a.emit('s_waitcnt vmcnt(7)')
        a.emit('s_barrier')
    if ot and ENV('CT2', 'l') == 'l': code_touch(a, 'L_w2_c0', 'L_w2_c1', 192, loader=True)
    srd(a, SX, 'ws', WS_X1, 4 * MB)
    if not WD: srd(a, SW, 'w1', 0, 1024 * 7168)
    srd(a, ST, 'ws', WS_ST, 16 * 16384); srd(a, SC, 'ws0', WS_CS, 16 * 16384); srd(a, SB, 'b1', 0, 7168)
    def tail():
        stats_loads(a, 32, False)
        a.emit(f's_lshl_b32 s4, s{S_NT}, 7')
        a.emit(f's_lshl_b32 s5, s{S_WV}, 6')
        a.emit('s_add_u32 s4, s4, s5')
        a.emit(f's_add_u32 s4, s4, {1472 - 256}')
        a.emit(f's_lshl_b32 s5, s{S_NT}, 6')
        a.emit(f's_cmp_eq_u32 s{S_WV}, 4')
        a.emit('s_cselect_b32 s4, s5, s4')
        a.emit('s_lshr_b32 s5, s5, 1')
        a.emit('s_add_u32 s5, s5, 1024')
        a.emit(f's_cmp_eq_u32 s{S_WV}, 7')
        a.emit('s_cselect_b32 s4, s5, s4')
        a.emit('v_add_u32 v3, s4, v1')
        a.emit('v_lshlrev_b32 v2, 2, v3')
        a.emit('v_lshlrev_b32 v3, 1, v3')
        a.emit(f's_mov_b32 s3, {cs[2]}')
        for j in range(16):
            if j < cs[0]:
                a.emit(f'buffer_load_dword v{64+j}, v2, s[{SC}:{SC+3}], s3 offen')
                if j < cs[0] - 1: a.emit(f's_add_u32 s3, s3, {cs[1]}')
            else:
                a.emit(f'v_mov_b32 v{64+j}, 0')
        a.emit(f'buffer_load_ushort v80, v3, s[{SB}:{SB+3}], 0 offen')
        side(a, 'issue')
    ns = side(Asm(), 'issue')
    extra = None
    if VW:
        assert int(ENV('LM_W2', '2')) == 2
        srd(a, SR, 'w2', 0, 3584 * 2048)
        a.emit('s_and_b32 s5, s2, 3')
        a.emit('s_lshl_b32 s5, s5, 2')
        a.emit(f's_and_b32 s6, s{S_CU}, 3')
        a.emit('s_add_u32 s5, s5, s6')
        a.emit('s_and_b32 s6, s2, 4')
        a.emit('s_lshl_b32 s6, s6, 1')
        a.emit(f's_lshr_b32 s7, s{S_CU}, 2')
        a.emit('s_add_u32 s6, s6, s7')
        rot_table(a, S_TB, 5, 6, 'w2')
        a.emit(f's_add_u32 s5, s5, s{S_WV}')
        a.emit('s_and_b32 s5, s5, 3')
        wvoff(a, 16, 5, 6, 2048)
        sched = [int(c) for c in ENV('PSCH', '0111111111111122')]
        assert sum(sched) >= NV1
        def extra(i):
            o = []
            for p in range(sum(sched[:i]), min(NV1, sum(sched[:i + 1]))): o += park(56, 2 * p, 128 + 8 * p, 16, SR)
            return o
        ns += sum(x.startswith('buffer_load') for i in (13, 14, 15) for x in extra(i))
    if XD:
        extra = tail_parks('w2', SR, lambda b: srd(b, SR, 'w2', 0, 3584 * 2048))
        ns += 2 * sum(TSCH['w2'])
    if XD and ENV('PFL', '2') == '3':
        b = Asm(); side(b, 'late'); pl = [l.strip() for l in b.lines]
        pl = [l.replace('v2,', 'v18,').replace(', v2', ', v18').replace('s3', 's93') for l in pl]
        i0 = min(i for i, l in enumerate(pl) if l.startswith('buffer_load'))
        for l in pl[:i0]: a.emit(l)
        st = [int(x) for x in ENV('PFS', '6,10').split(',')]
        extra = lambda i: pl[i0 + 2 * st.index(i):i0 + 2 * st.index(i) + 2] if i in st else []
    def final():
        a.emit(f's_waitcnt vmcnt({ns})')
        if ENV('PFL', '2') == '1': side(a, 'late')
        stats_reduce_store(a, 32, LST)
        for j in range(8): a.emit(f'v_add_f32 v{64+j}, v{64+j}, v{72+j}')
        for j in range(4): a.emit(f'v_add_f32 v{64+j}, v{64+j}, v{68+j}')
        a.emit('v_add_f32 v64, v64, v65')
        a.emit('v_add_f32 v66, v66, v67')
        a.emit('v_add_f32 v64, v64, v66')
        a.emit('v_lshlrev_b32 v80, 16, v80')
        a.emit('v_lshlrev_b32 v2, 2, v0')
        a.emit(f'v_add_u32 v2, {LCS - 1024}, v2')
        a.emit('ds_write_b32 v2, v64')
        a.emit('ds_write_b32 v2, v80 offset:1024')
        a.emit('s_waitcnt lgkmcnt(0)')
    import sides
    if T4:
        stats4_setup(a, False)
        a.emit(f's_lshl_b32 s4, s{S_NT}, 7')
        a.emit(f's_lshl_b32 s5, s{S_WV}, 6')
        a.emit('s_add_u32 s4, s4, s5')
        a.emit(f's_add_u32 s4, s4, {1472 - 256}')
        a.emit(f's_lshl_b32 s5, s{S_NT}, 6')
        a.emit(f's_cmp_eq_u32 s{S_WV}, 4')
        a.emit('s_cselect_b32 s4, s5, s4')
        a.emit('s_lshr_b32 s5, s5, 1')
        a.emit('s_add_u32 s5, s5, 1024')
        a.emit(f's_cmp_eq_u32 s{S_WV}, 7')
        a.emit('s_cselect_b32 s4, s5, s4')
        a.emit('v_and_b32 v3, 15, v1')
        a.emit('v_lshl_add_u32 v3, v3, 2, s4')
        a.emit('v_lshrrev_b32 v2, 4, v1')
        a.emit(f'v_add_lshl_u32 v{VBI}, v3, v2, 1')
        a.emit('v_lshlrev_b32 v3, 2, v3')
        a.emit(f'v_lshl_add_u32 v{VCS}, v2, 14, v3')
        CSI = int(ENV('CSI', '14')); STI = int(ENV('STI', '14'))
        LP2 = ENV('LP2', ''); LP0 = int(ENV('LP0', '5'))
        if LP2:
            a.emit(f's_and_b32 s3, s{S_MT}, 3')
            a.emit(f's_lshl2_add_u32 s3, s3, s{S_WV}')
            a.emit('s_sub_u32 s3, s3, 4')
            a.emit(f's_and_b32 s4, s{S_NT}, 7')
            a.emit('s_lshl_b32 s4, s4, 8')
            a.emit('s_lshl_b32 s5, s3, 14')
            a.emit('s_add_u32 s5, s5, s4')
            a.emit(f's_lshl_b32 s{SR}, s{S_NT}, 18')
            a.emit(f's_add_u32 s{SR}, s{SR}, {24 << 17}')
            a.emit(f's_add_u32 s{SR}, s{SR}, s5')
            a.emit(f's_and_b32 s{SR+1}, s{S_NT}, 8')
            a.emit(f's_lshl_b32 s{SR+1}, s{SR+1}, 16')
            a.emit(f's_add_u32 s{SR+1}, s{SR+1}, {16 << 17}')
            a.emit(f's_add_u32 s{SR+1}, s{SR+1}, s5')
            a.emit('s_lshr_b32 s5, s3, 1')
            a.emit(f's_lshl3_add_u32 s5, s{S_NT}, s5')
            a.emit('s_lshl_b32 s5, s5, 14')
            a.emit('s_and_b32 s3, s3, 1')
            a.emit('s_lshl_b32 s3, s3, 7')
            a.emit('s_add_u32 s4, s4, s3')
            a.emit(f's_add_u32 s{SR+2}, s5, s4')
            a.emit(f's_add_u32 s{SR+3}, s{SR+1}, {2 << 17}')
        HP = int(ENV('HP', '-1'))
        if HP >= 0:
            srd(a, SR, 'ws', WS_H, 2048 * 7168)
            a.emit(f's_and_b32 s3, s{S_WV}, 3')
            a.emit(f's_lshl2_add_u32 s3, s{S_MT}, s3')
            a.emit(f's_mul_i32 s3, s3, {32 * ldo2}')
            a.emit(f's_lshl_b32 s4, s{S_NT}, 12')
            a.emit('s_add_u32 s4, s4, s3')
            a.emit(f's_add_u32 s4, s4, {48 * 1024}')
            a.emit('v_lshl_add_u32 v24, v1, 6, s4')
            a.emit(f'v_add_u32 v25, {16 * ldo2}, v24')
            a.emit(f's_lshl_b32 s4, s{S_NT}, 10')
            a.emit('s_add_u32 s4, s4, s3')
            a.emit(f's_add_u32 s4, s4, {32 * 1024}')
            a.emit('v_and_b32 v3, 15, v1')
            a.emit('v_lshl_add_u32 v3, v3, 6, s4')
            a.emit('v_bfe_u32 v2, v1, 4, 1')
            a.emit(f'v_mul_u32_u24 v2, {16 * ldo2}, v2')
            a.emit('v_add_u32 v26, v2, v3')
            a.emit('v_and_b32 v3, 15, v1')
        CPI = int(ENV('CPI', '-1'))
        assert CPI < 0 or CPI >= CSI + 3 or (CSI, CPI, STI) == (13, 14, 14)
        LSK = int(ENV('LSK', '1')) if MF else 0; VC = 200
        def l0(o, lab, w):
            return [f's_cmp_lg_u32 s{S_LAYER}, 0', f's_cbranch_scc1 {lab}'] + o + ([f's_branch {lab}e', f'{lab}:', f's_waitcnt vmcnt({w})', f'{lab}e:'] if w >= 0 else [f'{lab}:']) if LSK else o
        def cols():
            b = Asm()
            b.emit(f's_and_b32 s3, s{S_WV}, 3')
            b.emit('s_lshl_b32 s5, s3, 9')
            b.emit(f's_add_u32 s5, s5, {LST}')
            b.emit('v_lshrrev_b32 v2, 5, v1')
            b.emit('v_and_b32 v3, 15, v1')
            b.emit('v_lshl_add_u32 v2, v3, 1, v2')
            b.emit(f'v_lshl_add_u32 v{VC+5}, v2, 4, s5')
            quad_sum(b, 64)
            b.emit(f'v_lshl_or_b32 v{VC+3}, v80, 16, v80')
            b.emit('s_lshl_b32 s5, s3, 10')
            b.emit(f's_add_u32 s5, s5, {LCS}')
            b.emit('v_permlane16_swap_b32 v64, v65')
            b.emit('v_lshrrev_b32 v2, 4, v1')
            b.emit('v_lshl_add_u32 v2, v3, 2, v2')
            b.emit(f'v_lshl_add_u32 v{VC+4}, v2, 4, s5')
            b.emit('v_add_f32 v64, v64, v65')
            split3(b, 64, VC, 65, False)
            return l0([l.strip() for l in b.lines], 'L_w1_cp', -1)
        def extra4(i):
            o = []
            if LP2 and i == LP0 - 1:
                b = Asm(); srd(b, SO, 'w2', 0, 3584 * 2048); o += [l.strip() for l in b.lines]
            if LP2 and LP0 <= i < LP0 + 8:
                for k, c in enumerate('ABCD'):
                    if c in LP2: o += [f's_buffer_load_dword s84, s[{SO}:{SO+3}], s{SR+k} offset:{64*j}' for j in range(2 if c == 'C' else 4)] + [f's_add_u32 s{SR+k}, s{SR+k}, 2048']
            if i == STI and LSK: o += stats4_loads(32, False)
            if i == CSI: o += l0(quad_loads(64, VCS, SC) + [f'buffer_load_ushort v80, v{VBI}, s[{SB}:{SB+3}], 0 offen'], 'L_w1_cl', 11 if CSI == 13 else 4)
            if i == STI and not LSK: o += stats4_loads(32, False)
            if MF and i == CPI: o += ['s_waitcnt vmcnt(4)'] * (CSI == 13) + cols()
            HPD = int(ENV('HPD', '0'))
            if HP >= 0: o += [f"buffer_{ENV('HPO', 'load')}_dword v{84+j}, v{24+j}, s[{SR}:{SR+3}], 0 offen {ENV('HPF', '')}" for j in range(3) if i == HP + j * HPD]
            return o
        def final5():
            def fin():
                a.emit('v_mul_f32 v32, 0x3a800000, v32')
                a.emit('v_mul_f32 v33, 0x3a800000, v33')
                a.emit('v_fma_f32 v33, -v32, v32, v33')
                a.emit('v_max_f32 v33, 0, v33')
                a.emit('v_add_f32 v33, 0x3727c5ac, v33')
                a.emit('v_rsq_f32 v34, v33')
                a.emit(f'v_mul_f32 v32, {-0.25 * MF}, v32')
                split3(a, 32, 36, 35, True)
                a.emit('v_mul_f32 v42, v33, v34')
                a.emit(f'v_mul_f32 v40, {f2u(c0):#x}, v34')
                a.emit('v_mul_f32 v34, v34, v34')
                a.emit(f'v_mul_f32 v33, {0.25 * MF}, v42')
                a.emit(f'v_mul_f32 v34, {f2u(0.044715):#x}, v34')
                a.emit('v_cvt_pk_bf16_f32 v35, v33, v33')
                a.emit('v_mul_f32 v41, v40, v34')
                a.emit('v_and_b32 v35, 0xffff0000, v35')
                if not GM: a.emit(f'v_xor_b32_dpp v43, v{VMD}, v{VMD} row_ror:2 row_mask:0xf bank_mask:0xf')
                a.emit('v_sub_f32 v35, v33, v35')
                if not GM: a.emit('v_cmp_ne_u32 vcc, 0, v43')
                a.emit('v_cvt_pk_bf16_f32 v39, v33, v35')
                if not GM: a.emit(f's_or_b32 s{S_MD}, vcc_lo, vcc_hi')
                a.emit(f'v_mov_b32 v43, s{S_MD}')
                a.emit(f'ds_write_b128 v{VC+5}, v[36:39]')
                a.emit(f'ds_write_b128 v{VC+5}, v[40:43] offset:2048')
            assert ENV('PW_W1', '4') == '4'
            for x in cols() if CPI < 0 else []: a.emit(x)
            a.emit(f'ds_write_b128 v{VC+4}, v[{VC}:{VC+3}]')
            assert CSI in (13, 14) and STI == 14 or not LSK
            stats4_store(a, 32, LST, False, fin=fin)
            a.emit('s_waitcnt lgkmcnt(0)')
        def final4():
            a.emit(f"s_waitcnt vmcnt({3 if HP >= 14 and ENV('HPO', 'load') == 'load' else 0})")
            if MF: return final5()
            stats4_store(a, 32, LST, False, nan_chk(a, 'L_w1_s', False) if SF else None)
            quad_sum(a, 64)
            a.emit('v_lshlrev_b32 v80, 16, v80')
            a.emit('s_lshl_b32 s5, s3, 8')
            a.emit(f's_add_u32 s5, s5, {LCS}')
            a.emit('v_permlane16_swap_b32 v64, v65')
            a.emit('v_lshrrev_b32 v2, 4, v1')
            a.emit('v_lshl_add_u32 v2, v3, 2, v2')
            a.emit('v_lshl_add_u32 v2, v2, 2, s5')
            a.emit('v_add_f32 v64, v64, v65')
            a.emit('ds_write2st64_b32 v2, v64, v80 offset0:0 offset1:4')
            if OH:
                assert ENV('PW_W1', '4') == '4'
                if GM: a.emit(f'v_mov_b32 v2, {LST}')
                else:
                    a.emit(f'v_xor_b32_dpp v64, v{VMD}, v{VMD} row_ror:2 row_mask:0xf bank_mask:0xf')
                    a.emit(f's_lshl2_add_u32 s5, s3, {LST}')
                    a.emit('v_cmp_ne_u32 vcc, 0, v64')
                    a.emit('v_mov_b32 v2, s5')
                    a.emit(f's_or_b32 s{S_MD}, vcc_lo, vcc_hi')
                a.emit(f'v_mov_b32 v64, s{S_MD}')
                a.emit('ds_write_b32 v2, v64')
            a.emit('s_waitcnt lgkmcnt(0)')
        assert ns == 0
        pst = sides.stouch_post(a, kind)
        if WD == 'c':
            a.emit('s_waitcnt vmcnt(0)')
            a.emit('s_barrier')
        elif WD: L.after_own = a.lines[iw0:]; del a.lines[iw0:]
        if LF1: L.run(final=final4, extra=extra4, post=pst, dep=lambda pf: dep_loc(a, kind, pf, lambda: a.emit(f's_waitcnt vmcnt({L.npre - 6})')))
        else: L.run(final=final4, extra=extra4, post=pst, dep=lambda pf: dep_wait(a, kind, postf=pf, obar=L.npre - 6 if ot and OBAR else 0, pref=(lambda: a.emit(f's_waitcnt vmcnt({L.npre - 7})')) if ot and not OBAR else None))
    else: L.run(tail_issue=tail, ntail_vm=17 + cs[0] + side(Asm(), 'issue'), final=final, extra=extra, post=sides.stouch_post(a, kind),
          dep=(lambda pf: dep_wait(a, kind, postf=pf)) if MEGA else None)
    if ENV('PFL', '2') == '2': side(a, 'late')
    if not VW: side(a, 'finish')
    loader_end(a, kind)
    a.label(end)
    a.emit('s_endpgm')
    loader_first(a, kind)
    if not MEGA:
        a(KD.format(name=f'{kind}l0_kernel'))
        stub(a, f'{kind}l1_kernel', body, 1, tsidx + 4, False)
        a(KD.format(name=f'{kind}l1_kernel'))
    a.label(f'L_{kind}_c1')
    return LCS + (4096 if MF else 2048)
```

```python
from common import *
from gemmw1 import *

def res_addr(a, swv, sd, v):
    assert int(ENV('LM_WO', '2')) == 2 and int(ENV('LM_W2', '2')) == 2
    srd(a, sd, 'A_x', 0, 4 * MB)
    a.emit('s_and_b32 s3, s2, 3')
    a.emit(f's_and_b32 s4, s{S_CU}, 3')
    a.emit('s_lshl2_add_u32 s3, s3, s4')
    a.emit(f's_lshl2_add_u32 s3, s3, s{swv}')
    a.emit('s_lshl_b32 s3, s3, 16')
    a.emit('s_bfe_u32 s4, s2, 0x10002' if SPX else 's_and_b32 s4, s2, 4')
    a.emit(f's_lshr_b32 s5, s{S_CU}, 2')
    a.emit('s_lshl1_add_u32 s4, s5, s4' if SPX else 's_lshl1_add_u32 s4, s4, s5')
    a.emit('s_lshl_b32 s4, s4, 7')
    a.emit('s_add_u32 s3, s3, s4')
    a.emit('s_add_u32 s4, s3, 32768')
    a.emit(f'v_and_b32 v{v}, 15, v1')
    a.emit(f'v_lshlrev_b32 v{v+1}, 1, v1')
    a.emit(f'v_and_b32 v{v+1}, 32, v{v+1}')
    a.emit(f'v_lshl_add_u32 v{v}, v{v}, 11, v{v+1}')
    a.emit(f'v_lshrrev_b32 v{v+1}, 1, v1')
    a.emit(f'v_and_b32 v{v+1}, 16, v{v+1}')
    a.emit(f'v_add_u32 v{v}, v{v}, v{v+1}')

def dbg_off(a, v):
    a.emit(f's_lshl_b32 s3, s{S_MT}, 2')
    a.emit('s_sub_u32 s3, s3, 4')
    a.emit(f'v_and_b32 v{v}, 7, v1')
    a.emit(f'v_add_u32 v{v}, s3, v{v}')
    a.emit(f'v_max_i32 v{v}, 0, v{v}')
    a.emit(f'v_lshlrev_b32 v{v}, 2, v{v}')

def res_loads(vd, v, sd):
    return [f'buffer_load_dwordx4 v[{vd+4*i}:{vd+3+4*i}], v{v}, s[{sd}:{sd+3}], s{3+(i>>1)} offen offset:{64*(i&1)}' for i in range(4)]

def gen_qkv(a, tsidx, side):
    kind = 'attn'
    K = 1024; lda2 = 2048; ldw2 = 6144
    S = 3; LM = int(ENV('LM_QKV', '3'))
    XH = 16384 + 6 * 4096
    STAGE = XH + 2048
    LST = S * STAGE
    EX = 1024
    N = 16
    body = f'L_{kind}_body'; end = f'L_{kind}_end'
    VB, VA = 4, 10
    VXW, VPE, VPO, VCE, VCO, VVE, VVO, VS1, VS4, VKA, VKB, MAP, MAC, MBP, MBC, VO = range(16, 32)
    M_ODD, M_UPA, M_UPB, M_FA, M_FB = 48, 50, 52, 54, 14
    F = [32, 76]; ACC = 128; HACC = 224; ONES = 236
    acc = lambda jn, jm: ACC + (jn * 4 + jm) * 4
    fx = lambda s, jm: F[s] + jm * 4
    fw = lambda s, jn: F[s] + 20 + jn * 4
    a.label(f'L_{kind}_c0')
    stub(a, f'{kind}l0_kernel', body, 0, tsidx, True)
    a.label(body)
    ot = kind in OT
    HX = LST + 1280
    tile_map(a, LM, end)
    if ot and LM != 2:
        a.emit(f's_cmp_eq_u32 s{S_LAYER}, 0')
        a.emit(f's_cbranch_scc1 L_{kind}_map')
        tile_map(a, 2, None)
        a.label(f'L_{kind}_map')
    a.emit(f's_cmp_ge_u32 s{S_WV}, 4')
    a.emit(f's_cbranch_scc1 L_{kind}_loader')
    if ENV('CTE', '1') == '1': code_touch(a, 'L_attn_c0', 'L_w2_c1', int(ENV('CTN', '320')))
    a.emit(f's_and_b32 s{S_WM}, s{S_WV}, 1')
    a.emit(f's_lshr_b32 s{S_WN}, s{S_WV}, 1')
    a.emit('v_and_b32 v3, 31, v1')
    a.emit('v_lshlrev_b32 v3, 2, v3')
    a.emit(f'v_add_u32 v3, {XH}, v3')
    for i in range(4): a.emit(f'v_mov_b32 v{ONES+i}, 0x3f803f80')
    a.emit(f'ds_write_b32 v3, v{ONES}')
    a.emit(f'ds_write_b32 v3, v{ONES} offset:{STAGE}')
    a.emit(f'v_add_u32 v3, {2*STAGE}, v3')
    a.emit(f'ds_write_b32 v3, v{ONES}')
    if ot: a.emit(f'ds_write_b32 v3, v{ONES} offset:{HX - XH - 2 * STAGE}')
    a.emit('v_and_b32 v3, 15, v1')
    a.emit('v_lshrrev_b32 v2, 4, v1')
    a.emit('v_lshrrev_b32 v33, 1, v3')
    a.emit(f's_lshl_b32 s8, s{S_WM}, 13')
    for ks in range(2):
        if ks: a.emit(f'v_add_u32 v{VB+ks}, 4, v2')
        a.emit(f'v_xor_b32 v{VB+ks}, v{VB+ks if ks else 2}, v33')
        a.emit(f'v_lshlrev_b32 v{VB+ks}, 4, v{VB+ks}')
        a.emit(f'v_lshl_add_u32 v{VB+ks}, v3, 7, v{VB+ks}')
        a.emit(f'v_add_u32 v{VB+4+ks}, {XH}, v{VB+ks}')
        a.emit(f'v_add_u32 v{VB+ks}, s8, v{VB+ks}')
    wbase(a, 34, 33)
    a.emit(f's_lshl_b32 s8, s{S_WV}, 5')
    a.emit('v_xor_b32 v34, s8, v34')
    a.emit(f'v_add_u32 v{VB+2}, 16384, v34')
    a.emit(f'v_xor_b32 v{VB+3}, 32, v{VB+2}')
    i0 = len(a.lines)
    a.emit('v_and_b32 v35, 1, v2')
    a.emit(f'v_xor_b32 v35, s{S_WM}, v35')
    a.emit(f's_lshl_b32 s8, s{S_MT}, 7')
    a.emit(f's_lshl_b32 s9, s{S_WM}, 6')
    a.emit('s_add_u32 s8, s8, s9')
    if OH:
        a.emit('s_mul_i32 s10, s8, 7')
        a.emit(f's_lshl{3 - OH}_add_u32 s11, s{S_NT}, s{S_WN}')
        a.emit('s_add_u32 s10, s10, s11')
        a.emit('s_lshl_b32 s10, s10, 10')
    else:
        a.emit(f's_add_u32 s10, s8, s{S_NT}')
        a.emit('s_lshl_b32 s10, s10, 11')
        a.emit(f's_lshl_b32 s11, s{S_WN}, 10')
        a.emit('s_add_u32 s10, s10, s11')
    if 'wo' in NS: a.emit(f'v_lshl_add_u32 v{VO}, v1, 4, s10')
    else:
        a.emit('v_lshl_add_u32 v33, v3, 4, s10')
        a.emit('v_lshl_add_u32 v33, v35, 9, v33')
        a.emit('v_lshrrev_b32 v34, 1, v2')
        a.emit(f'v_lshl_add_u32 v{VO}, v34, 8, v33')
    a.emit(f's_mul_i32 s10, s{S_WN}, {14336 if XD else 24576}')
    a.emit(f's_add_u32 s10, s10, {EX}')
    a.emit(f's_lshl_b32 s11, s{S_WM}, 10')
    a.emit('s_add_u32 s4, s10, s11')
    a.emit('s_sub_u32 s5, s10, s11')
    a.emit(f's_mul_i32 s6, s{S_WM}, 6144')
    a.emit(f'v_lshl_add_u32 v{VXW}, v1, 4, s4')
    a.emit(f'v_add_u32 v{VPE}, s6, v{VXW}')
    a.emit(f'v_lshl_add_u32 v{VPO}, v1, 4, s5')
    a.emit(f'v_add_u32 v{VPO}, s6, v{VPO}')
    a.emit(f'v_lshl_add_u32 v{VCE}, v2, 8, s4')
    a.emit(f'v_lshl_add_u32 v{VCO}, v2, 8, s5')
    a.emit(f'v_lshl_add_u32 v{VVE}, v3, 4, s4')
    a.emit(f'v_lshl_add_u32 v{VVO}, v3, 4, s5')
    a.emit(f's_lshl_b32 s10, s{S_WM}, 8')
    a.emit(f's_add_u32 s10, s10, {LST}')
    a.emit(f'v_lshl_add_u32 v{VS1}, v3, 2, s10')
    a.emit(f'v_lshl_add_u32 v{VS4}, v2, 4, s10')
    a.emit('v_and_b32 v33, 1, v3')
    a.emit(f'v_cmp_eq_u32 s[{M_ODD}:{M_ODD+1}], 1, v33')
    a.emit('v_lshl_add_u32 v34, v2, 2, v33')
    a.emit('v_add_u32 v35, 2, v34')
    a.emit(f'v_cmp_gt_u32 s[{M_UPA}:{M_UPA+1}], v34, v3')
    a.emit(f'v_cmp_gt_u32 s[{M_UPB}:{M_UPB+1}], v35, v3')
    a.emit('v_mov_b32 v36, 0xffff')
    a.emit('v_mov_b32 v37, 0xffff0000')
    a.emit(f'v_cndmask_b32 v36, v36, v37, s[{M_ODD}:{M_ODD+1}]')
    a.emit(f's_add_u32 s10, s10, {640 + 64}')
    a.emit('v_lshl_add_u32 v34, v34, 2, s10')
    a.emit('v_lshl_add_u32 v35, v35, 2, s10')
    a.emit('v_subrev_u32 v38, 64, v34')
    a.emit('v_subrev_u32 v39, 64, v35')
    a.emit(f'v_cndmask_b32 v{VKA}, v34, v38, s[{M_UPA}:{M_UPA+1}]')
    a.emit(f'v_cndmask_b32 v{VKB}, v35, v39, s[{M_UPB}:{M_UPB+1}]')
    a.emit(f'v_cndmask_b32 v{MAP}, 0, v36, s[{M_UPA}:{M_UPA+1}]')
    a.emit(f'v_cndmask_b32 v{MBP}, 0, v36, s[{M_UPB}:{M_UPB+1}]')
    a.emit(f'v_xor_b32 v{MAC}, v{MAP}, v36')
    a.emit(f'v_xor_b32 v{MBC}, v{MBP}, v36')
    a.emit('s_cmp_eq_u32 s8, 0')
    a.emit(f's_cselect_b64 s[{M_FA}:{M_FA+1}], s[{M_UPA}:{M_UPA+1}], 0')
    a.emit(f's_cselect_b64 s[{M_FB}:{M_FB+1}], s[{M_UPB}:{M_UPB+1}], 0')
    if ot:
        a.emit(f's_cmp_lg_u32 s{S_LAYER}, 0')
        a.emit(f's_cbranch_scc1 L_{kind}_nozero')
    for i in list(range(122 if DS else 120, 236)) + ([] if XD else list(range(240, 256))): a.emit(f'v_mov_b32 v{i}, 0')
    if DS:
        a.emit('s_waitcnt lgkmcnt(0)')
        a.emit(f's_lshl_b32 s3, s{S_WN}, 5')
        a.emit('s_add_u32 s3, s3, s8')
        a.emit(f's_lshl_b32 s4, s{S_NT}, 14')
        a.emit('s_lshl3_add_u32 s3, s3, s4')
        a.emit('v_lshrrev_b32 v121, 1, v2')
        a.emit('v_lshl_add_u32 v121, v121, 4, v3')
        a.emit('v_and_b32 v120, 1, v2')
        a.emit('v_lshl_add_u32 v121, v121, 1, v120')
        a.emit('v_lshl_add_u32 v120, v121, 2, s3')
        srd(a, ST, 'ws0', WS_ST0, 16 * 16384)
        srd(a, SP, 'ws0', WS_FL, FLS)
        a.emit('s_lshl_b32 s3, s2, 11')
        if D2:
            a.emit(f's_cmp_lg_u32 s{S_WV}, 0')
            a.emit(f's_cbranch_scc1 L_{kind}_noclr')
            a.emit(f's_lshl_b32 s5, s{S_MT}, 10')
            a.emit('s_add_u32 s4, s4, s5')
            a.emit('v_lshlrev_b32 v121, 4, v1')
            for i in range(4): a.emit(f'v_mov_b32 v{40+i}, -1')
            a.emit(f'buffer_store_dwordx4 v[40:43], v121, s[{ST}:{ST+3}], s4 offen sc1')
            for i in range(2): a.emit(f'buffer_store_dwordx4 v[128:131], v121, s[{SP}:{SP+3}], s3 offen offset:{1024*i} sc1')
            if GM:
                a.emit('s_getreg_b32 s5, hwreg(HW_REG_XCC_ID, 0, 4)')
                if ENV('FB'): a.emit(f"s_and_b32 s5, s2, {ENV('FB')}")
                a.emit('v_lshl_or_b32 v126, s5, 1, 1')
            else: a.emit('v_mov_b32 v126, 1')
            a.label(f'L_{kind}_noclr')
        else:
            a.emit('v_lshlrev_b32 v121, 3, v0')
            a.emit(f'buffer_store_dwordx2 v[126:127], v121, s[{SP}:{SP+3}], s3 offen sc1')
            dbg_off(a, 121)
        a.emit(f's_and_b32 s{SC+1}, s{SC+1}, 0xffff')
        a.emit(f's_mov_b32 s{SC+2}, 256')
        a.emit(f's_mov_b32 s{SC+3}, 0x00020000')
        a.emit('s_mov_b32 s7, 0x3f803f80')
    if ot: a.label(f'L_{kind}_nozero')
    a.emit('s_waitcnt lgkmcnt(0)')
    if OH: srd(a, SO, 'ws', WS_H + OHO, 2048 * 7168 - OHO)
    else: srd(a, SO, 'ws', WS_O, 4 * MB)
    clear_flags(a, 0)
    if ENV('CTE', '1') == '0': code_touch(a, 'L_attn_c0', 'L_w2_c1', int(ENV('CTN', '320')))
    import pads
    CLQ = ENV('DX', '2') == '1' and ENV('CLP', 'e') == 'q'
    if CLQ:
        srd(a, ST, 'ws', WS_XP, 4 * MB)
        a.emit(f's_or_b32 s{ST+1}, s{ST+1}, 0x100000')
        a.emit(f's_mov_b32 s{ST+3}, 0x00800000')
        a.emit('s_and_b32 s3, s2, 3')
        a.emit(f's_and_b32 s4, s{S_CU}, 3')
        a.emit('s_lshl2_add_u32 s3, s3, s4')
        a.emit('s_bfe_u32 s4, s2, 0x10002')
        a.emit(f's_lshr_b32 s5, s{S_CU}, 2')
        a.emit('s_lshl1_add_u32 s4, s5, s4')
        a.emit('s_lshl4_add_u32 s3, s3, s4')
        a.emit(f's_lshl2_add_u32 s3, s3, s{S_WV}')
        a.emit(f's_lshl_b32 s{S_T}, s3, 12')
        for i in range(4): a.emit(f'v_mov_b32 v{116+i}, -1')
    def warm():
        a.emit(f's_cmp_lg_u32 s{S_LAYER}, 0')
        a.emit(f's_cbranch_scc1 L_{kind}_nowarm')
        a.emit('s_lshl_b32 s3, s2, 2')
        a.emit(f's_add_u32 s3, s3, s{S_WV}')
        srd(a, SX, 'xs', 0, 4 * MB); srd(a, SW, 'wqkv', 0, 6 * MB)
        a.emit('v_min_u32 v126, 31, v1')
        a.emit('v_min_u32 v127, 47, v1')
        a.emit('v_lshlrev_b32 v126, 7, v126')
        a.emit('v_lshlrev_b32 v127, 7, v127')
        a.emit('s_lshl_b32 s4, s3, 12')
        a.emit(f's_mul_i32 s5, s3, {48 * 128}')
        a.emit(f'buffer_load_dword v2, v126, s[{SX}:{SX+3}], s4 offen')
        a.emit(f'buffer_load_dword v3, v127, s[{SW}:{SW+3}], s5 offen')
        a.emit('v_mov_b32 v126, 0')
        a.emit('v_mov_b32 v127, 0')
        a.label(f'L_{kind}_nowarm')
    WARM = ENV('WARM', '0')
    if WARM == '1': warm()
    mid = []
    if ot: mid = a.lines[i0:]; del a.lines[i0:]
    def reads(s, ks, hl=True):
        o = []
        if 'noread' in DBG: return o
        for jm in range(4):
            o.append(f'ds_read_b128 v[{fx(s,jm)}:{fx(s,jm)+3}], v{VA+ks} offset:{jm*2048}')
        if hl: o.append(f'ds_read_b128 v[{fx(s,4)}:{fx(s,4)+3}], v{VA+4+ks}')
        for jn in range(6):
            for h in range(2):
                r = fw(s, jn) + 2 * h
                o.append(f'ds_read_b64_tr_b16 v[{r}:{r+1}], v{VA+2+(jn&1)} offset:{(jn>>1)*8192+ks*4096+h*512}')
        return o
    def mfma(c, x, y, cin=None):
        return f'v_mfma_f32_16x16x32_bf16 v[{c}:{c+3}], v[{x}:{x+3}], v[{y}:{y+3}], ' + (f'v[{c}:{c+3}]' if cin is None else cin)
    def mf(s):
        o = []
        if 'nomfma' in DBG: return ['s_nop 0']
        for jn, jm in mf_order(6, 5, lambda jn, jm: jm == 4 and jn & 1):
            if True:
                c = acc(jn, jm) if jm < 4 else HACC + (jn >> 1) * 4
                o.append(mfma(c, fw(s, jn), fx(s, jm)) if jn < 4 else mfma(c, fx(s, jm), fw(s, jn)))
        return o
    SA = [(240, 244), (248, 252), (120, 124)]
    def mfv(hh):
        def f(s):
            o = mf(s)
            ex = []
            for i, jm in enumerate([2 * hh, 2 * hh + 1] + ([4] if hh == 0 else [])):
                ex.append(mfma(SA[i][0], ONES, fx(s, jm)))
                ex.append(mfma(SA[i][1], fx(s, jm), fx(s, jm)))
            return o if 'nostat' in DBG else ex + o
        return f
    def select():
        if CLQ:
            for i in range(4): a.emit(f'buffer_store_dwordx4 v[116:119], off, s[{ST}:{ST+3}], s{S_T} offset:{1024*i} sc1')
        if WARM == '2': warm(); a.emit('s_nop 1')
        if not ot:
            a.emit(f's_cmp_lg_u32 s{S_LAYER}, 0')
            a.emit(f's_cbranch_scc1 L_{kind}_loop')
        if XD:
            for i in range(240, 256): a.emit(f'v_mov_b32 v{i}, 0')
        a.emit(f's_cmp_lg_u32 s{S_WN}, 0')
        a.emit(f's_cbranch_scc1 L_{kind}_loopb')
        clear_flags(a, 1, 4 if CLQ else 0)
    def post():
        a.emit('v_and_b32 v32, 3, v1')
        a.emit('v_cmp_eq_u32 s[4:5], 1, v32')
        a.emit('v_cmp_eq_u32 s[6:7], 2, v32')
        a.emit('v_cmp_eq_u32 s[8:9], 3, v32')
        a.emit('v_bfe_u32 v33, v1, 2, 2')
        a.emit('v_lshrrev_b32 v34, 4, v1')
        a.emit('v_cmp_eq_u32 s[10:11], v33, v34')
        a.emit(f's_lshl_b32 s3, s{S_WN}, 7')
        a.emit(f'v_add_u32 v35, s3, v{VS1}')
        a.emit('v_and_b32 v36, 15, v1')
        a.emit(f's_cmp_eq_u32 s{S_WV}, 0')
        a.emit('s_cselect_b32 s3, 0, 576')
        a.emit(f's_add_u32 s3, s3, {LST}')
        a.emit('v_lshl_add_u32 v36, v36, 2, s3')
        for (sm, sq) in SA:
            a.emit(f'v_cndmask_b32 v{sm+1}, v{sq}, v{sq+1}, s[4:5]')
        for (sm, sq) in SA:
            a.emit(f'v_cndmask_b32 v{sm+1}, v{sm+1}, v{sq+2}, s[6:7]')
        for (sm, sq) in SA:
            a.emit(f'v_cndmask_b32 v{sm+1}, v{sm+1}, v{sq+3}, s[8:9]')
        for (sm, sq) in SA: stats_finish(a, sm)
        a.emit('s_mov_b64 exec, s[10:11]')
        a.emit(f'ds_write2_b32 v35, v{SA[0][0]}, v{SA[0][0]+1} offset0:16 offset1:176')
        a.emit(f'ds_write2_b32 v35, v{SA[1][0]}, v{SA[1][0]+1} offset0:32 offset1:192')
        a.emit(f'ds_write2_b32 v36, v{SA[2][0]}, v{SA[2][0]+1} offset0:0 offset1:160')
        a.emit('s_mov_b64 exec, -1')
        if XD:
            res_addr(a, S_WV, SX, 32)
        a.emit('s_waitcnt lgkmcnt(0)')
        if XD:
            for i in range(4):
                a.emit(f'buffer_load_dwordx4 v[{240+4*i}:{243+4*i}], v32, s[{SX}:{SX+3}], s{3+(i>>1)} offen offset:{64*(i&1)}')
        a.emit('s_barrier')
    own = lambda s: [mfma(acc(jn, jm), *((fw(s, jn), fx(s, jm)) if jn < 4 else (fx(s, jm), fw(s, jn))), None if s else '0') for jn, jm in mf_order(6, 4)]
    hw = lambda ks, c: fw(1, 2 * c) if ks else fx(1, c)
    hal = ([f'v_mov_b32 v{fx(1,c)+i}, v{fw(0,2*c)+i}' for c in range(3) for i in range(4)],
           [f'ds_read_b128 v[{fx(1,3+ks)}:{fx(1,3+ks)+3}], v{VA+4+ks} offset:{HX - XH - STAGE}' for ks in range(2)],
           [mfma(HACC + 4 * c, *((hw(ks, c), fx(1, 3 + ks)) if c < 2 else (fx(1, 3 + ks), hw(ks, c))), None if ks else '0') for ks in range(2) for c in range(3)])
    hooks = None
    if DS:
        HK = [int(x) for x in ENV('HK', '-1,-2,-4,-5,11,13').split(',')]
        def dots(s):
            o = [f's_cmp_lg_u32 s{S_WN}, 0', f's_cbranch_scc1 L_{kind}_dot{s}']
            for hh in range(2):
                for j in range(8):
                    r = fx(s, 2 * hh) + (j >> 1) + 4 * (j & 1)
                    o += [f'v_dot2_f32_bf16 v{122+(j&1)}, v{r}, s7, v{122+(j&1)}', f'v_dot2_f32_bf16 v{124+(j&1)}, v{r}, v{r}, v{124+(j&1)}']
                o += [f'L_{kind}_dote{s}:'] if hh else [f's_branch L_{kind}_dote{s}', f'L_{kind}_dot{s}:']
            return o
        h1 = dots(1) + ['s_nop 2', 'v_permlane32_swap_b32 v122, v123', 'v_permlane32_swap_b32 v124, v125', 'v_add_f32 v122, v122, v123', 'v_add_f32 v124, v124, v125',
               'v_mov_b32 v126, 1', 's_nop 0', 'v_permlane16_swap_b32 v122, v124', 'v_add_f32 v122, v122, v124', f'buffer_store_dword v122, v120, s[{ST}:{ST+3}], 0 offen sc1']
        w0 = [f's_cmp_lg_u32 s{S_WV}, 0', f's_cbranch_scc1 L_{kind}_loop']
        pl = f'buffer_load_dword v127, v121, s[{SC}:{SC+3}], 0 offen sc1'
        b = Asm(); res_addr(b, S_WV, SX, 122); rs = [l.strip() for l in b.lines] + res_loads(240, 122, SX)
        hooks = list(zip(HK + [int(ENV('HKR', '14'))], [dots(0), h1, ['s_waitcnt vmcnt(0)'],
            w0 + [f's_lshl4_add_u32 s3, s{S_MT}, s{S_NT}', 's_mov_b64 exec, 1', f'buffer_store_byte v126, off, s[{SC}:{SC+3}], s3 sc1', 's_mov_b64 exec, -1'], w0 + [pl],
            w0 + ['s_mov_b32 s5, 0x100000', 'L_attn_chkl:', 's_waitcnt vmcnt(0)', 'v_cmp_ne_u32 vcc, 0x01010101, v127', f's_cbranch_vccz L_{kind}_loop',
                  pl, 's_sub_u32 s5, s5, 1', 's_cbranch_scc0 L_attn_chkl'], rs]))
        assert HK[:2] == [-1, -2]
        if D2: hooks = [(-1, dots(0) + pads.chain('h0') + w0 + hooks[2][1] + hooks[3][1][2:]), (-2, [x.replace('v_mov_b32 v126, 1', 's_nop 0') for x in h1] + pads.chain('h1')), hooks[-1]]
        if ENV('XSL'):
            xs = [int(x) for x in ENV('XSL').split(',')]
            hooks[1] = (hooks[1][0], hooks[1][1] + [f's_sleep {xs[0]}'])
            hooks[2] = (hooks[2][0], hooks[2][1] + [f's_sleep {xs[1]}'])
    assert ot or not DS
    big_loop(a, kind, N, S, STAGE, 6, VB, VA, reads, mf, variants=None if DS else {'a': mfv(0), 'b': mfv(1)}, select=select, post=post, mid=mid, hooks=hooks,
             ot=own if ot else None, halo=hal if ot else None)
    PR = 32
    CS = 48
    CV = 64
    MS = 66
    RK = 76
    M4 = 84
    R4 = 104
    VV = [4 if XD else 240, 224]
    for b in range(5):
        a.emit(f'ds_read2_b32 v[{MS+2*b}:{MS+2*b+1}], v{VS1} offset0:{16*b} offset1:{160+16*b}')
    for p in range(2):
        a.emit(f'ds_read2_b32 v[{RK+2*p}:{RK+2*p+1}], v{VKA} offset0:{32*p} offset1:{32*p+16}')
        a.emit(f'ds_read2_b32 v[{RK+4+2*p}:{RK+5+2*p}], v{VKB} offset0:{32*p} offset1:{32*p+16}')
    for c in range(3):
        a.emit(f'ds_write_b128 v{VXW}, v[{HACC+4*c}:{HACC+4*c+3}] offset:{2048*c}')
    a.emit(f's_cmp_eq_u32 s{S_WM}, 1')
    a.emit(f's_cbranch_scc1 L_{kind}_nop3')
    for t in range(2, 6):
        a.emit(f'ds_write_b128 v{VXW}, v[{acc(t,3)}:{acc(t,3)+3}] offset:{6144+1024*t}')
    a.label(f'L_{kind}_nop3')
    for b in range(5):
        a.emit(f'ds_read_b128 v[{M4+4*b}:{M4+4*b+3}], v{VS4} offset:{64*b}')
        a.emit(f'ds_read_b128 v[{R4+4*b}:{R4+4*b+3}], v{VS4} offset:{640+64*b}')
    a.emit('s_waitcnt lgkmcnt(10)')
    a.emit('s_barrier')
    for t in range(4):
        a.emit(f'ds_read_b128 v[{CS+4*t}:{CS+4*t+3}], v{VCO if t&1 else VCE} offset:{1024*t}')
    for t in range(2):
        a.emit(f'ds_read_b32 v{CV+t}, v{VVO if t else VVE} offset:{4096+1024*t}')
    for t in range(4):
        a.emit(f'ds_read_b128 v[{PR+4*t}:{PR+4*t+3}], v{VPO if t&1 else VPE} offset:{2048+1024*t}')
    sc = 32 ** -0.5 * 1.4426950408889634
    for b in range(4):
        a.emit(f'v_mul_f32 v{MS+2*b+3}, {f2u(sc):#x}, v{MS+2*b+3}')
    for b in range(4):
        a.emit(f'v_mul_f32 v{RK+b}, v{RK+b}, v{MS+2*b+3}')
        a.emit(f'v_mul_f32 v{RK+4+b}, v{RK+4+b}, v{MS+2*b+3}')
    a.emit('s_waitcnt lgkmcnt(6)')
    def qk(x, y, cs, b, d):
        m = f'v[{MS+2*b}:{MS+2*b+1}]'
        for (z, c) in ((x, cs), (y, cs + 4)):
            for h in range(2):
                a.emit(f'v_pk_fma_f32 v[{z+2*h}:{z+2*h+1}], v[{c+2*h}:{c+2*h+1}], {m}, v[{z+2*h}:{z+2*h+1}] op_sel:[0,0,0] op_sel_hi:[1,0,1] neg_lo:[0,1,0] neg_hi:[0,1,0]')
        a.emit(f'v_cvt_pk_bf16_f32 v{d}, v{x}, v{x+1}')
        a.emit(f'v_cvt_pk_bf16_f32 v{d+1}, v{x+2}, v{x+3}')
        a.emit(f'v_cvt_pk_bf16_f32 v{d+2}, v{y}, v{y+1}')
        a.emit(f'v_cvt_pk_bf16_f32 v{d+3}, v{y+2}, v{y+3}')
    Q = lambda b: acc(0, b); Kf = lambda b: acc(2, b) if b >= 0 else PR
    Sc = lambda b: acc(1, b); Sp = lambda b: acc(3, b)
    for b in range(4):
        qk(acc(0, b), acc(1, b), CS, b + 1, Q(b))
        qk(acc(2, b), acc(3, b), CS + 8, b + 1, Kf(b))
        if b == 3:
            a.emit('s_waitcnt lgkmcnt(0)')
            qk(PR, PR + 4, CS + 8, 0, PR)
        if b >= 1:
            a.emit(mfma(Sc(b - 1), Kf(b - 1), Q(b - 1), '0'))
            if b >= 2: a.emit(mfma(Sp(b - 1), Kf(b - 2), Q(b - 1), '0'))
    a.emit(mfma(Sc(3), Kf(3), Q(3), '0'))
    a.emit(mfma(Sp(3), Kf(2), Q(3), '0'))
    a.emit(mfma(Sp(0), Kf(-1), Q(0), '0'))
    def vconv(x, t, b):
        cv = f'v[{CV}:{CV+1}]'
        for h in range(2):
            a.emit(f'v_pk_fma_f32 v[{x+2*h}:{x+2*h+1}], v[{M4+4*b+2*h}:{M4+4*b+2*h+1}], {cv}, v[{x+2*h}:{x+2*h+1}] op_sel:[0,{t},0] op_sel_hi:[1,{t},1] neg_lo:[1,0,0] neg_hi:[1,0,0]')
        for h in range(2):
            a.emit(f'v_pk_mul_f32 v[{x+2*h}:{x+2*h+1}], v[{x+2*h}:{x+2*h+1}], v[{R4+4*b+2*h}:{R4+4*b+2*h+1}]')
        for h in range(2):
            a.emit(f'v_cvt_pk_bf16_f32 v{VV[t]+2*b+h}, v{x+2*h}, v{x+2*h+1}')
    for t in range(2):
        vconv(PR + 8 + 4 * t, t, 0)
        for b in range(4): vconv(acc(4 + t, b), t, b + 1)
    T = lambda b: 32 + 4 * b
    odd = f's[{M_ODD}:{M_ODD+1}]'
    for b in (1, 2, 3, 0):
        a.emit(f'v_cndmask_b32 v{Sc(b)}, v{Sc(b)}, v{Sc(b)+1}, {odd}')
        a.emit(f'v_cndmask_b32 v{Sp(b)}, v{Sp(b)}, v{Sp(b)+1}, {odd}')
        a.emit(f'v_cndmask_b32 v{Sc(b)+2}, v{Sc(b)+2}, v{Sc(b)+3}, {odd}')
        a.emit(f'v_cndmask_b32 v{Sp(b)+2}, v{Sp(b)+2}, v{Sp(b)+3}, {odd}')
        a.emit(f'v_cndmask_b32 v{T(b)}, v{Sc(b)}, v{Sp(b)}, s[{M_UPA}:{M_UPA+1}]')
        a.emit(f'v_cndmask_b32 v{T(b)+1}, v{Sc(b)+2}, v{Sp(b)+2}, s[{M_UPB}:{M_UPB+1}]')
        a.emit(f'v_mul_f32 v{T(b)}, v{T(b)}, v{RK+b}')
        a.emit(f'v_mul_f32 v{T(b)+1}, v{T(b)+1}, v{RK+4+b}')
    a.emit(f'v_mov_b32 v48, {f2u(-1e9 * 1.4426950408889634):#x}')
    a.emit(f'v_cndmask_b32 v{T(0)}, v{T(0)}, v48, s[{M_FA}:{M_FA+1}]')
    a.emit(f'v_cndmask_b32 v{T(0)+1}, v{T(0)+1}, v48, s[{M_FB}:{M_FB+1}]')
    for b in range(4): a.emit(f'v_max_f32 v{T(b)+2}, v{T(b)}, v{T(b)+1}')
    for op in ('32', '16'):
        for b in range(4): a.emit(f'v_mov_b32 v{T(b)+3}, v{T(b)+2}')
        for b in range(4): a.emit(f'v_permlane{op}_swap_b32 v{T(b)+2}, v{T(b)+3}')
        for b in range(4): a.emit(f'v_max_f32 v{T(b)+2}, v{T(b)+2}, v{T(b)+3}')
    for b in range(4):
        a.emit(f'v_sub_f32 v{T(b)}, v{T(b)}, v{T(b)+2}')
        a.emit(f'v_sub_f32 v{T(b)+1}, v{T(b)+1}, v{T(b)+2}')
    for b in range(4):
        a.emit(f'v_exp_f32 v{T(b)}, v{T(b)}')
        a.emit(f'v_exp_f32 v{T(b)+1}, v{T(b)+1}')
    P = lambda b: acc(0, b)
    for b in range(4):
        a.emit(f'v_cvt_pk_bf16_f32 v{T(b)}, v{T(b)}, v{T(b)}')
        a.emit(f'v_cvt_pk_bf16_f32 v{T(b)+1}, v{T(b)+1}, v{T(b)+1}')
        a.emit(f'v_and_b32 v{P(b)}, v{T(b)}, v{MAP}')
        a.emit(f'v_and_b32 v{P(b)+1}, v{T(b)+1}, v{MBP}')
        a.emit(f'v_and_b32 v{P(b)+2}, v{T(b)}, v{MAC}')
        a.emit(f'v_and_b32 v{P(b)+3}, v{T(b)+1}, v{MBC}')
        if b >= 1:
            q = b - 1
            a.emit(mfma(acc(1, q), ONES, P(q), '0'))
            a.emit(mfma(acc(4, q), VV[0] + 2 * q, P(q), '0'))
            a.emit(mfma(acc(5, q), VV[1] + 2 * q, P(q), '0'))
    q = 3
    a.emit(mfma(acc(1, q), ONES, P(q), '0'))
    a.emit(mfma(acc(4, q), VV[0] + 2 * q, P(q), '0'))
    a.emit(mfma(acc(5, q), VV[1] + 2 * q, P(q), '0'))
    if ENV('ES'): stamp(a, 1)
    no = 'wo' in NS
    if no:
        a.emit(f's_cmp_eq_u32 s{S_WM}, 1')
        a.emit(f's_cbranch_scc1 L_{kind}_out1')
    for w in range(2 if no else 1):
        if w: a.label(f'L_{kind}_out1')
        for b in range(4):
            r = acc(1, b); d = 48 + 4 * b
            a.emit(f'v_rcp_f32 v{r}, v{r}')
            a.emit(f's_mov_b32 s3, {b * 16 * (7168 if OH else 2048)}')
            for t in range(2):
                x = acc(4 + t, b)
                for h in range(2):
                    a.emit(f'v_pk_mul_f32 v[{x+2*h}:{x+2*h+1}], v[{x+2*h}:{x+2*h+1}], v[{r}:{r+1}] op_sel_hi:[1,0]')
            for t in range(2):
                x = acc(4 + t, b)
                for h in range(2):
                    a.emit(f'v_cvt_pk_bf16_f32 v{d+2*(t^w)+h}, v{x+2*h}, v{x+2*h+1}')
            if not no:
                a.emit('s_nop 1')
                a.emit(f'v_permlane16_swap_b32 v{d}, v{d+2}')
                a.emit(f'v_permlane16_swap_b32 v{d+1}, v{d+3}')
            a.emit(f'buffer_store_dwordx4 v[{d}:{d+3}], v{VO}, s[{SO}:{SO+3}], s3 offen{stf(kind)}')
        if no and not w: a.emit(f's_branch L_{kind}_out2')
    if no: a.label(f'L_{kind}_out2')
    compute_end(a, kind)
    a.label(f'L_{kind}_loader')
    L = Loader(a, kind, K, lda2, ldw2, [0, 2048, 4096], 128, S, STAGE, halo=XH, rot=int(ENV('ROT_QKV', '0')))
    L.skip = DS
    L.setup()
    a.emit('s_waitcnt lgkmcnt(0)')
    srd_xs(a, SX); srd(a, SW, 'wqkv', 0, 1024 * 6144)
    import sides
    fill = []
    if ENV('DX', '2') == '1' and ENV('CLP', 'e') == 'l':
        a.emit('s_and_b32 s3, s2, 3')
        a.emit(f's_and_b32 s4, s{S_CU}, 3')
        a.emit('s_lshl2_add_u32 s3, s3, s4')
        a.emit('s_bfe_u32 s4, s2, 0x10002')
        a.emit(f's_lshr_b32 s5, s{S_CU}, 2')
        a.emit('s_lshl1_add_u32 s4, s5, s4')
        a.emit('s_lshl4_add_u32 s3, s3, s4')
        a.emit(f's_and_b32 s4, s{S_WV}, 3')
        a.emit('s_lshl2_add_u32 s3, s3, s4')
        a.emit('s_lshl_b32 s3, s3, 12')
        srd(a, SB, 'ws', WS_XP, 0 if 'fill0' in DBG else 4096)
        if 'fillfl' in DBG:
            srd(a, SB, 'ws0', WS_FL + MB, 4096)
            a.emit('s_and_b32 s3, s3, 0xfffff')
        a.emit(f's_add_u32 s{SB}, s{SB}, s3')
        a.emit(f's_addc_u32 s{SB+1}, s{SB+1}, 0')
        FW_ = int(ENV('FILLW', '2'))
        a.emit(f'v_mul_u32_u24 v29, {4 * FW_}, v1')
        for i in range(4): a.emit(f'v_mov_b32 v{24+i}, -1')
        fill = [f'buffer_store_dword{"x" + str(FW_)} v[24:{23 + FW_}], v29, s[{SB}:{SB+3}], 0 offen' + ('' if 'fillwb' in DBG else ' sc1'), f'v_add_u32 v29, {256 * FW_}, v29']
        assert sides.STV[3] == 0
    a.emit(f's_cmp_lg_u32 s{S_LAYER}, 0')
    a.emit(f's_cbranch_scc1 L_{kind}_ld1')
    post = list(sides.stouch_post(a, kind)) + fill
    SPF = [int(x) for x in ENV('SPF', '0,0,2').split(',')]
    def spf():
        hs = range(SPF[2])
        return ([f's_buffer_load_dword s84, s[{SX}:{SX+3}], s85 offset:{2048*r+64*h}' for r in range(2) for h in hs] +
                [f's_buffer_load_dword s84, s[{SW}:{SW+3}], s86 offset:{2048*p+64*h}' for p in range(3) for h in hs] +
                ['s_add_u32 s85, s85, 128', f's_add_u32 s86, s86, {64*ldw2}'])
    def spf_start():
        if not SPF[1]: return
        a.emit(f's_and_b32 s3, s{S_WV}, 3')
        a.emit(f's_lshl2_add_u32 s3, s{S_CU}, s3')
        a.emit('s_and_b32 s4, s2, 1')
        a.emit('s_bfe_u32 s5, s2, 0x20001')
        a.emit('s_lshl2_add_u32 s85, s4, s5')
        a.emit('s_lshl_b32 s85, s85, 7')
        a.emit('s_add_u32 s85, s85, s3')
        a.emit('s_lshl_b32 s85, s85, 12')
        a.emit(f's_add_u32 s85, s85, {128*SPF[0]}')
        a.emit('s_lshl_b32 s4, s4, 5')
        a.emit(f's_add_u32 s4, s4, s{S_CU}')
        a.emit(f's_add_u32 s4, s4, {64*SPF[0]}')
        a.emit(f's_mul_i32 s86, s4, {ldw2}')
        a.emit('s_and_b32 s3, s3, 3')
        a.emit('s_lshl2_add_u32 s3, s5, s3')
        a.emit('s_lshl_b32 s3, s3, 7')
        a.emit('s_add_u32 s86, s86, s3')
        for i in range(SPF[0], SPF[1]):
            for x in spf(): a.emit(x)
    if SPF[1]: post += spf()
    VPF = [int(x) for x in ENV('VPF', '0,0,1').split(',')]
    def vpf():
        k0, nk, hs = VPF
        if not nk: return 0
        a.emit(f's_and_b32 s3, s{S_WV}, 3')
        a.emit(f's_lshl2_add_u32 s3, s{S_CU}, s3')
        a.emit('s_and_b32 s4, s2, 1')
        a.emit('s_bfe_u32 s5, s2, 0x20001')
        a.emit('s_lshl2_add_u32 s85, s4, s5')
        a.emit('s_lshl_b32 s85, s85, 7')
        a.emit('s_add_u32 s85, s85, s3')
        a.emit('s_lshl_b32 s85, s85, 12')
        a.emit('s_lshl_b32 s4, s4, 7')
        a.emit('s_add_u32 s4, s4, s3')
        a.emit(f's_add_u32 s4, s4, {64*k0}')
        a.emit(f's_mul_i32 s86, s4, {ldw2}')
        a.emit('s_lshl_b32 s5, s5, 9')
        a.emit('s_add_u32 s86, s86, s5')
        a.emit('v_and_b32 v2, 15, v1')
        a.emit(f'v_min_u32 v3, {nk-1}, v2')
        a.emit('v_and_b32 v22, 16, v1')
        a.emit('v_add_lshl_u32 v22, v22, v3, 7')
        a.emit('v_min_u32 v2, 11, v2')
        a.emit('v_lshrrev_b32 v3, 2, v2')
        a.emit('v_and_b32 v2, 3, v2')
        a.emit('v_lshl_add_u32 v2, v3, 4, v2')
        a.emit('v_lshrrev_b32 v3, 4, v1')
        a.emit(f'v_min_u32 v3, {nk//4-1}, v3')
        a.emit(f'v_mul_u32_u24 v3, {256*ldw2}, v3')
        a.emit('v_lshl_add_u32 v23, v2, 7, v3')
        for h in range(hs):
            a.emit(f'buffer_load_dword v24, v23, s[{SW}:{SW+3}], s86 offen offset:{64*h}')
            a.emit(f'buffer_load_dword v25, v22, s[{SX}:{SX+3}], s85 offen offset:{128*k0+64*h}')
        return 2 * hs
    TG_ = int(ENV('TLBG', '0'))
    if TG_:
        srd(a, SO, 'ws0', 0, 256 * MB)
        a.emit(f's_and_b32 s3, s{S_WV}, 3')
        a.emit(f's_lshl2_add_u32 s3, s{S_CU}, s3')
        a.emit(f's_lshl_b32 s86, s3, {TG_}')
        tl = [f's_buffer_load_dword s84, s[{SO}:{SO+3}], s86', f's_add_u32 s86, s86, {128 << TG_}']
        if TG_ < 21: post += tl
    extra = tail_parks('wo', SP, lambda b: srd(b, SP, 'wo', 0, 2 * MB))
    sch0 = [int(c) for c in ENV('TSO0', '00000')]
    extra0 = tail_parks('wo', SP, lambda b: srd(b, SP, 'wo', 0, 2 * MB), sch0 + [sum(TSCH['wo']) - sum(sch0)])
    npk = 2 * sum(TSCH['wo']) if XD else 0
    def start():
        sides.cls_touch(a)
        if TG_:
            for x in tl: a.emit(x)
            a.emit(f's_and_b32 s3, s{S_WV}, 3')
            a.emit(f's_lshl2_add_u32 s3, s{S_CU}, s3')
            for w, sz in (('out', 4 * MB), ('wo', 2 * MB), ('w1', 7 * MB), ('b1', 4096), ('b2', 2048)):
                srd(a, SC, w, 0, sz)
                a.emit(f's_mul_i32 s4, s3, {sz // 128}')
                a.emit(f's_buffer_load_dword s84, s[{SC}:{SC+3}], s4')
        if ENV('DX', '2') != '1' or ENV('CLP', 'e') != 's': return 0
        srd(a, ST, 'ws0', WS_XP, LSTR + 4 * MB)
        a.emit('s_and_b32 s3, s2, 3')
        a.emit(f's_and_b32 s4, s{S_CU}, 3')
        a.emit('s_lshl2_add_u32 s3, s3, s4')
        a.emit('s_bfe_u32 s4, s2, 0x10002')
        a.emit(f's_lshr_b32 s5, s{S_CU}, 2')
        a.emit('s_lshl1_add_u32 s4, s5, s4')
        a.emit('s_lshl4_add_u32 s3, s3, s4')
        a.emit(f's_and_b32 s4, s{S_WV}, 3')
        a.emit('s_lshl2_add_u32 s3, s3, s4')
        a.emit('s_lshl_b32 s3, s3, 12')
        a.emit(f's_add_u32 s4, s3, {LSTR}')
        a.emit('v_lshlrev_b32 v2, 4, v1')
        for i in range(4): a.emit(f'v_mov_b32 v{32+i}, -1')
        for i in range(8): a.emit(f'buffer_store_dwordx4 v[32:35], v2, s[{ST}:{ST+3}], s{3+(i>>2)} offen offset:{1024*(i&3)} sc1')
        return 8
    final0 = None
    TL0 = int(ENV('TL0', '1' if DS else '0'))
    if DS:
        STQ0 = int(ENV('STQ0', '14'))
        assert HK[-1] < STQ0 <= 13 + TL0
        def start():
            nv = vpf()
            if sides.CE:
                assert sum(sides.CE.values()) == 8
                sides.cs_setup(a, SB, 95, 26)
                for x in sides.cs_at(-1): a.emit(x)
                nv += sides.CE.get(-1, 0)
            spf_start()
            sides.cls_touch(a)
            srd(a, ST, 'ws0', WS_ST0, 16 * 16384)
            stats4_setup(a, True)
            if D2:
                if CF == 2: a.emit('v_lshlrev_b32 v20, 2, v1')
                else: dbg_off(a, 20)
                a.emit(f's_and_b32 s{SC+1}, s{SC+1}, 0xffff')
                a.emit(f's_mov_b32 s{SC+2}, 256')
                a.emit(f's_mov_b32 s{SC+3}, 0x00020000')
            for x in pads.chain(-1): a.emit(x)
            return nv
        pl2 = f'buffer_load_dword v21, v20, s[{SC}:{SC+3}], 0 offen sc1'
        ck2 = ['s_mov_b32 s5, 0x100000', 'L_attn_dchk:', 'v_or_b32 v13, 0xfefefefe, v21', 'v_cmp_ne_u32 vcc, -1, v13', 's_cbranch_vccz L_attn_dok', 's_sub_u32 s5, s5, 1\n  ' + pl2,
               's_waitcnt vmcnt(0)', 's_cbranch_scc0 L_attn_dchk', 'L_attn_dok:'] if D2 else []
        extra0 = lambda i: (ck2 + stats4_loads(32, True) if i == STQ0 else [pl2] if D2 and i == STQ0 - 3 else []) + sides.cs_at(i) + sides.cs_acc(i) + pads.chain(i)
        def chk0():
            a.emit('v_cmp_u_f32 vcc, v32, v33')
            a.emit('v_cmp_u_f32 s[4:5], v48, v49')
            a.emit('s_or_b64 s[4:5], vcc, s[4:5]')
            a.emit('s_cbranch_scc0 L_attn_sok')
            a.emit(f's_sub_u32 s{S_CNT}, s{S_CNT}, 1')
            a.emit('s_cbranch_scc1 L_attn_sok')
            for x in stats4_loads(32, True): a.emit(x + (' sc1' if x.startswith('buf') else ''))
            a.emit('s_waitcnt vmcnt(0)')
            a.emit('s_branch L_attn_schk')
            a.label('L_attn_sok')
        def final0():
            a.emit(f's_mov_b32 s{S_CNT}, 0x4000')
            a.emit(f"s_waitcnt vmcnt({side(Asm(), 0, 'issue') + sum(n for e, n in sides.CE.items() if e >= STQ0)})")
            if CF and ENV('CFP', 'a') == 'a': a.emit(sides.CS_ST)
            a.label('L_attn_schk')
            stats4_store(a, 32, LST, True, chk0 if D2 else None)
            if CF and ENV('CFP', 'a') == 'b': a.emit(sides.CS_ST)
            a.emit('s_waitcnt lgkmcnt(0)')
    L.run('0', tail_issue=lambda: side(a, 0, 'issue'), ntail_vm=side(Asm(), 0, 'issue'), post=post, start=start, extra=extra0, tail_late=TL0, final=final0, exfirst=True)
    if CF and ENV('CFP', 'a') == 'c': a.emit(sides.CS_ST)
    for i in (16,) if DS else (16, 17):
        if XD:
            for x in extra0(i): a.emit(x)
        if WE < 0: a.emit('s_barrier')
    if XD:
        for x in extra0(18): a.emit(x)
    if ONE:
        a.emit(f's_branch L_{kind}_ldend')
    else:
        side(a, 0, 'finish')
        a.emit('s_endpgm')
    a.label(f'L_{kind}_ld1')
    if ',' in L.kord():
        L.ktable(int(L.kord().split(',')[1]))
        L.ot = int(ot); L.hx = HX - XH
        for x in ([] if ot else L.knext()): a.emit(x)
    srd(a, ST, 'ws0', WS_ST2, 16 * 16384)
    n1 = side(Asm(), 1, 'issue')
    def tail1():
        stats_loads(a, 32, True)
        side(a, 1, 'issue')
    def final1():
        a.emit(f's_waitcnt vmcnt({n1 + npk})')
        stats_reduce_store(a, 32, LST)
        a.emit('s_waitcnt lgkmcnt(0)')
    if T4:
        stats4_setup(a, True)
        TL1 = int(ENV('TL1', '0'))
        def final4():
            a.emit(f"s_waitcnt vmcnt({n1 if int(ENV('STQ', '14')) < 13 + TL1 < 15 else 0})")
            stats4_store(a, 32, LST, True, nan_chk(a, 'L_attn_t', True) if SF else None)
            a.emit('s_waitcnt lgkmcnt(0)')
        if ZD:
            srd(a, SC, 'ws0', WS_FL, FLS)
            a.emit('v_and_b32 v30, 3, v1')
            a.emit('v_lshlrev_b32 v30, 6, v30')
            a.emit(f's_mov_b32 s{S_CNT}, 0x100000')
        def zbar():
            xpoll(a, 'L_attn_x', SC, S_Q, 30, 12)
            a.emit('s_barrier')
        def pref1():
            if ZD == 'b': zbar()
            a.emit('s_waitcnt vmcnt(0)')
        if ZD == 'a': zbar()
        L.run('1', tail_issue=lambda: side(a, 1, 'issue'), ntail_vm=n1, tail_late=TL1, final=final4, extra=lambda i: stats4_loads(32, True) if i == int(ENV('STQ', '14')) else [],
              post=fill, dep=lambda pf: dep_wait(a, kind, halo=True, postf=pf, pref=pref1 if ot else None))
    else: L.run('1', tail_issue=tail1, ntail_vm=16 + n1, final=final1, extra=extra, post=fill, dep=(lambda pf: dep_wait(a, kind, halo=True, postf=pf)) if MEGA else None)
    if WE < 0: a.emit('s_barrier')
    if not MEGA: side(a, 1, 'finish')
    a.label(f'L_{kind}_ldend')
    loader_end(a, kind, check=False)
    a.label(end)
    a.emit('s_endpgm')
    loader_first(a, kind)
    a(KD.format(name=f'{kind}l0_kernel'))
    if not MEGA:
        stub(a, f'{kind}l1_kernel', body, 1, tsidx + 4, False)
        a(KD.format(name=f'{kind}l1_kernel'))
    a.label(f'L_{kind}_c1')
    return LST + 1280
```

```python
from common import *
LM_WO = int(ENV('LM_WO', '2')); LM_W1 = int(ENV('LM_W1', '3')); LM_W2 = int(ENV('LM_W2', '2')); LM_QKV = int(ENV('LM_QKV', '3'))
PFW2 = int(ENV('PFW2', '0'))
PV = 96

def fin(a):
    a.emit('s_waitcnt vmcnt(0)')

def pf_wo(a):
    L = 1 << (5 - LM_WO)
    sh = 5 - LM_WO
    return pf_weights(a, SP, 'wo', 2 * MB, 2048, 32, sh, L, LM_WO, 128, max(1, (8 << sh) // 64), PV, pair=SPX)

PF1 = int(ENV('PF1', '0'))
def pf_w1(a, sd=SP):
    if not PF1: return 0
    lm = 2 if 'w1' in OT else LM_W1
    u = 1 << (5 - lm)
    sh = 7 - lm
    srd(a, sd, 'w1', 0, 1024 * 7168)
    a.emit(f's_and_b32 s3, s{S_WV}, 3')
    a.emit(f's_lshl2_add_u32 s3, s{S_CU}, s3')
    a.emit(f's_mul_i32 s3, s3, {64 >> sh}')
    a.emit(f"s_add_u32 s3, s3, {1024 - int(ENV('PF1B', '64'))}")
    a.emit(f'v_lshrrev_b32 v2, {sh}, v1')
    a.emit('v_add_u32 v12, s3, v2')
    a.emit(f'v_and_b32 v3, {4 * u - 1}, v1')
    a.emit(f'v_min_u32 v3, {7 * u // 2 - 1}, v3')
    a.emit('s_and_b32 s3, s2, 7')
    a.emit(f's_lshr_b32 s3, s3, {4 - lm}')
    a.emit(f's_mul_i32 s4, s3, {-(u // 2)}')
    a.emit(f's_add_u32 s4, s4, {16 - u}')
    a.emit(f's_mul_i32 s5, s3, {u}')
    a.emit(f's_add_u32 s5, s5, {24 - 3 * u // 2}')
    a.emit(f's_mul_i32 s3, s3, {u * 128}')
    a.emit(f'v_cmp_le_u32 vcc, {u}, v3')
    a.emit('v_mov_b32 v2, s4')
    a.emit('v_mov_b32 v13, s5')
    a.emit('v_cndmask_b32 v2, 0, v2, vcc')
    a.emit(f'v_cmp_le_u32 vcc, {3 * u // 2}, v3')
    a.emit('s_movk_i32 s4, 7168')
    a.emit('s_nop 0')
    a.emit('v_cndmask_b32 v2, v2, v13, vcc')
    a.emit('v_add_lshl_u32 v3, v3, v2, 7')
    for i in range(PF1):
        if i: a.emit(f'v_add_u32 v12, {128 * (64 >> sh)}, v12')
        a.emit('v_and_b32 v2, 1023, v12')
        a.emit('v_mad_u32_u24 v2, v2, s4, v3')
        a.emit(f'buffer_load_dword v{PV+4+i}, v2, s[{sd}:{sd+3}], s3 offen')
    return PF1

def touch(a, which, size, vd, l0only=True):
    if 'nopf' in DBG: return 0
    per = size // 128 // 1024
    assert per <= 64
    srd(a, SP, which, 0, size)
    a.emit(f's_and_b32 s3, s{S_WV}, 3')
    a.emit('s_lshl_b32 s4, s2, 2')
    a.emit('s_add_u32 s3, s3, s4')
    a.emit(f's_mul_i32 s3, s3, {per * 128}')
    a.emit(f'v_min_u32 v2, {per - 1}, v1')
    a.emit('v_lshlrev_b32 v2, 7, v2')
    if l0only:
        a.emit(f's_sub_u32 s4, s{S_LAYER}, 1')
        a.emit('v_and_b32 v2, s4, v2')
    a.emit(f'buffer_load_dword v{vd}, v2, s[{SP}:{SP+3}], s3 offen')
    return 1

def fill(a):
    if ENV('DX', '2') != '1' or ENV('CLP', 'e') != 't': return 0
    srd(a, SB, 'ws', WS_XP, 4 * MB)
    a.emit('s_and_b32 s3, s2, 3')
    a.emit(f's_and_b32 s4, s{S_CU}, 3')
    a.emit('s_lshl2_add_u32 s3, s3, s4')
    a.emit('s_bfe_u32 s4, s2, 0x10002')
    a.emit(f's_lshr_b32 s5, s{S_CU}, 2')
    a.emit('s_lshl1_add_u32 s4, s5, s4')
    a.emit('s_lshl4_add_u32 s3, s3, s4')
    a.emit(f's_and_b32 s4, s{S_WV}, 3')
    a.emit('s_lshl2_add_u32 s3, s3, s4')
    a.emit('s_lshl_b32 s3, s3, 12')
    a.emit('v_lshlrev_b32 v2, 4, v1')
    for i in range(4): a.emit(f'v_mov_b32 v{24+i}, -1')
    for i in range(4): a.emit(f'buffer_store_dwordx4 v[24:27], v2, s[{SB}:{SB+3}], s3 offen offset:{1024*i} sc1')
    return 4

CE = dict((int(x.split(':')[0]), int(x.split(':')[1])) for x in ENV('CE', '0:2,1:2,2:2,3:2').split(',') if x)
def cs_setup(a, sd, so, vo):
    srd(a, sd, 'w1', 0, 0 if 'nocs' in DBG else 1024 * 7168)
    a.emit('s_min_u32 s3, s2, 223')
    a.emit('s_mul_i32 s4, s3, 4682')
    a.emit('s_lshr_b32 s4, s4, 16')
    a.emit('s_mul_i32 s5, s4, 14')
    a.emit('s_sub_u32 s3, s3, s5')
    a.emit('s_lshl_b32 s3, s3, 2')
    a.emit(f's_and_b32 s5, s{S_WV}, 3')
    a.emit('s_add_u32 s3, s3, s5')
    a.emit(f's_mul_i32 s5, s4, {64 * 7168}')
    a.emit('s_lshl_b32 s8, s3, 7')
    a.emit(f's_add_u32 s{so}, s5, s8')
    a.emit('s_lshl_b32 s9, s4, 14')
    a.emit('s_lshl_b32 s8, s3, 8')
    a.emit('s_add_u32 s94, s9, s8')
    a.emit('v_lshrrev_b32 v2, 3, v1')
    a.emit('v_mul_u32_u24 v2, 7168, v2')
    a.emit('v_and_b32 v3, 7, v1')
    a.emit(f'v_lshl_add_u32 v{vo}, v3, 4, v2')
def cs_loads(sd, so, vo, js):
    o = []
    for j in js:
        o.append(f'buffer_load_dwordx4 v[{64+4*j}:{67+4*j}], v{vo}, s[{sd}:{sd+3}], s{so} offen')
        if j < 7: o.append(f's_add_u32 s{so}, s{so}, {8 * 7168}')
    return o
def cs_at(i):
    j0 = sum(n for e, n in CE.items() if e < i)
    return cs_loads(SB, 95, 26, range(j0, j0 + CE.get(i, 0)))

CFS = [int(x) for x in ENV('CFS', '14').split(',')]
def cs_acc(i):
    if not CF or i not in CFS: return []
    n = 8 // len(CFS); o = ['s_mov_b32 s5, 0xffff0000']
    for j in range(n * CFS.index(i), n * CFS.index(i) + n):
        for k in range(4):
            x = 64 + 4 * j + k; d = 100 + 2 * k
            if j: o += [f'v_lshlrev_b32 v108, 16, v{x}', f'v_and_b32 v{x}, s5, v{x}', f'v_add_f32 v{d}, v{d}, v108', f'v_add_f32 v{d+1}, v{d+1}, v{x}']
            else: o += [f'v_lshlrev_b32 v{d}, 16, v{x}', f'v_and_b32 v{d+1}, s5, v{x}']
    return o
def cs_out(a, r):
    srd(a, SB, 'ws0', WS_CS, 16 * 16384)
    for i in range(4): a.emit(f'v_permlane32_swap_b32 v{r+i}, v{r+4+i}')
    for i in range(4): a.emit(f'v_add_f32 v{r+i}, v{r+i}, v{r+4+i}')
    a.emit('v_and_b32 v2, 7, v1')
    a.emit('v_lshlrev_b32 v2, 5, v2')
    for i in range(2): a.emit(f'v_permlane16_swap_b32 v{r+i}, v{r+2+i}')
    for i in range(2): a.emit(f'v_add_f32 v{r+i}, v{r+i}, v{r+2+i}')
    a.emit('v_lshrrev_b32 v3, 4, v1')
    a.emit(f'v_lshl_add_u32 v{r+2}, v3, 3, v2')
    for i in range(2): a.emit(f'v_add_f32_dpp v{r+i}, v{r+i}, v{r+i} row_ror:8 row_mask:0xf bank_mask:0xf')
CS_ST = f'buffer_store_dwordx2 v[100:101], v102, s[{SB}:{SB+3}], s94 offen sc1'

def qkv(a, layer, phase, npre=0):
    if phase == 'issue':
        n = 0
        if layer == 0:
            if not CE:
                cs_setup(a, SC, 5, 2)
                for x in cs_loads(SC, 5, 2, range(8)): a.emit(x)
                n += 8
            from gemmw2 import zero_flags
            if not ONE: n += zero_flags(a)
            if ENV('TW2') == 'qkv': n += touch(a, 'w2', 3584 * 2048, PV + 2, False)
        if ENV('CLO', '0') == '1': n += fill(a)
        if ENV('PWO', 'v') == 'v': n += pf_wo(a)
        if str(layer) in ENV('PF1L', '01'): n += pf_w1(a)
        if ENV('CLO', '0') == '0': n += fill(a)
        if CF and layer == 0:
            cs_out(a, 100)
            if GM and CF == 2: l2_mode(a, 21)
        return n
    if layer == 0:
        a.emit(f's_waitcnt vmcnt({npre})')
        a.emit('s_mov_b32 s7, 0xffff0000')
        for i in range(4):
            a.emit(f'v_lshlrev_b32 v{32+2*i}, 16, v{64+i}')
            a.emit(f'v_and_b32 v{33+2*i}, s7, v{64+i}')
        for j in range(1, 8):
            for i in range(4):
                a.emit(f'v_lshlrev_b32 v40, 16, v{64+4*j+i}')
                a.emit(f'v_and_b32 v41, s7, v{64+4*j+i}')
                a.emit(f'v_pk_add_f32 v[{32+2*i}:{33+2*i}], v[{32+2*i}:{33+2*i}], v[40:41]')
        srd(a, SB, 'ws0', WS_CS, 16 * 16384)
        for i in range(4): a.emit(f'v_permlane32_swap_b32 v{32+i}, v{36+i}')
        for i in range(4): a.emit(f'v_add_f32 v{32+i}, v{32+i}, v{36+i}')
        a.emit('v_and_b32 v2, 7, v1')
        a.emit('v_lshlrev_b32 v2, 5, v2')
        for i in range(2): a.emit(f'v_permlane16_swap_b32 v{32+i}, v{34+i}')
        for i in range(2): a.emit(f'v_add_f32 v{32+i}, v{32+i}, v{34+i}')
        a.emit('v_lshrrev_b32 v3, 4, v1')
        a.emit('v_lshl_add_u32 v2, v3, 3, v2')
        for i in range(2): a.emit(f'v_add_f32_dpp v{32+i}, v{32+i}, v{32+i} row_ror:8 row_mask:0xf bank_mask:0xf')
        a.emit(f'buffer_store_dwordx2 v[32:33], v2, s[{SB}:{SB+3}], s94 offen sc1')
        if ONE and not SPX: a.emit('s_waitcnt vmcnt(0)')
    else:
        fin(a)

def wo(a, phase):
    if phase == 'issue':
        return touch(a, 'w2', 3584 * 2048, PV) if ENV('TW2') == 'wo' else 0
    fin(a)

SL = int(ENV('SL', '64'))
def stouch(a, which, size, sd, sreg, first, lps, pre=0, per=None):
    if lps == 0: return []
    srd(a, sd, which, 0, size)
    a.emit(f's_cmp_eq_u32 s{S_LAYER}, 0')
    a.emit(f's_cselect_b32 s{sd+2}, s{sd+2}, 0')
    a.emit(f's_and_b32 s3, s{S_WV}, 3')
    a.emit('s_lshl_b32 s4, s2, 2')
    a.emit('s_add_u32 s3, s3, s4')
    a.emit(f's_mul_i32 s{sreg}, s3, {per * SL // 64 if per else size // 1024}')
    if per:
        a.emit(f's_add_u32 s{sreg}, s{sreg}, {first * SL * 1024}')
        first = 0
    for i in range(pre): a.emit(f's_buffer_load_dword s84, s[{sd}:{sd+3}], s{sreg} offset:{SL*(first+i)}')
    return [f's_buffer_load_dword s84, s[{sd}:{sd+3}], s{sreg} offset:{SL*(first+pre+i)}' for i in range(lps)] + [f's_add_u32 s{sreg}, s{sreg}, {SL*lps}']

STV = [int(x) for x in ENV('STV', '4,0,4,0').split(',')]
def stouch_post(a, kind):
    if ENV('TW2', 's') != 's': return ()
    if kind == 'attn':
        n1 = int(ENV('STW1', '0'))
        return stouch(a, 'w1', 1024 * 7168, SB, 86, 0, n1, per=14 * 64 * n1) + stouch(a, 'w2', 3584 * 2048, SR, S_T, 0, STV[0], per=14 * 64 * STV[0]) + stouch(a, 'wo', 2 * MB, SB, 86, 0, STV[3], pre=max(0, 32 - 14 * STV[3]))
    if kind == 'wo': return stouch(a, 'w2', 3584 * 2048, SP, S_T, 14 * STV[0], STV[1])
    if kind == 'w1': return stouch(a, 'w2', 3584 * 2048, SP, S_T, 14 * STV[0], STV[2], per=14 * 64 * STV[2], pre=STV[2] if 'w1' in OT else 0)
    if kind == 'w2': return cls_w2(a)
    return ()

def cls_w2(a):
    P = int(ENV('CW2', '8'))
    if P == 0: return ()
    a.emit(f's_and_b32 s3, s{S_WV}, 3')
    a.emit(f's_lshl_b32 s4, s{S_CU}, 2')
    a.emit('s_add_u32 s3, s3, s4')
    a.emit('s_lshl_b32 s4, s3, 6')
    a.emit('s_and_b32 s4, s4, 64')
    a.emit('s_lshr_b32 s3, s3, 1')
    a.emit(f's_lshl_b32 s{S_T}, s3, 11')
    a.emit(f's_add_u32 s{S_T}, s{S_T}, s4')
    a.emit(f's_sub_u32 s4, 384, s{SW}')
    a.emit('s_and_b32 s4, s4, 0x380')
    a.emit(f's_add_u32 s{S_T}, s{S_T}, s4')
    a.emit(f's_lshl_b32 s4, s{S_NT}, 7')
    a.emit('s_and_b32 s4, s4, 1024')
    a.emit(f's_add_u32 s{S_T}, s{S_T}, s4')
    a.emit(f's_add_u32 s{S_T}, s{S_T}, {(30 if VW else 16 * max(1, PFW2) if XD else 4) * 131072}')
    o = [f's_buffer_load_dword s84, s[{SW}:{SW+3}], s{S_T}', f's_add_u32 s{S_T}, s{S_T}, 131072']
    if VW:
        for x in o * (P // 2): a.emit(x)
        return o * 2
    for i in range(P + 1):
        for x in o: a.emit(x)
    return o

def w1(a, phase):
    if phase == 'late' or (phase == 'issue' and ENV('PFL', '2') == '0'):
        NI = PFW2
        if phase == 'late' and ENV('PFL', '2') == '0': return
        if XD and NI: return pf_weights(a, SR, 'w2', 3584 * 2048, 2048, 32 * NI, 3, 8, 2, 128, NI, PV)
        return 0
    if phase == 'issue': return 0
    if not XD: fin(a)

def w2(a, phase):
    return 0

def cls_touch(a):
    m = ENV('CLS', 'w')
    if m == '0': return
    a.emit(f's_and_b32 s3, s{S_WV}, 3')
    a.emit('s_lshl_b32 s4, s2, 2')
    a.emit('s_add_u32 s3, s3, s4')
    a.emit(f's_sub_u32 s4, 384, s{SW}')
    a.emit('s_and_b32 s4, s4, 0x380')
    a.emit('s_mul_i32 s5, s3, 6144')
    a.emit('s_add_u32 s5, s5, s4')
    for j in range(6):
        for h in range(2): a.emit(f's_buffer_load_dword s84, s[{SW}:{SW+3}], s5 offset:{1024*j+64*h}')
    if m == 'wx':
        a.emit(f's_sub_u32 s4, 384, s{SX}')
        a.emit('s_and_b32 s4, s4, 0x380')
        a.emit('s_lshl_b32 s5, s3, 12')
        a.emit('s_add_u32 s5, s5, s4')
        for j in range(4):
            for h in range(2): a.emit(f's_buffer_load_dword s84, s[{SX}:{SX+3}], s5 offset:{1024*j+64*h}')
```

```python
from common import *

T4 = ENV('T4', '1') == '1'
OBAR = ENV('OBAR', '0') == '1'
def big_loop(a, tag, N, S, STAGE, naddr, VB, VA, reads, mf, variants=None, select=None, post=None, ot=None, mid=(), halo=None, hooks=None, tail=None):
    if tail: N -= 1
    def addr():
        o = [f'v_add_u32_e64 v{VA+i}, s{S_SLOT}, v{VB+i}' for i in range(naddr)]
        o += [f's_add_u32 s{S_SLOT}, s{S_SLOT}, {STAGE}', f's_cmp_eq_u32 s{S_SLOT}, {S*STAGE}', f's_cselect_b32 s{S_SLOT}, 0, s{S_SLOT}']
        return o
    a.emit(f's_mov_b32 s{S_SLOT}, 0')
    for x in addr(): a.emit(x)
    if halo:
        if hooks: own_pos(a, S_CNT)
        else: a.emit(f's_mov_b32 s{S_CNT}, {N}')
        if hooks: a.emit(f's_mul_i32 s{S_T}, s{S_LAYER}, {len(hooks)}')
        a.emit(f's_cmp_eq_u32 s{S_LAYER}, 0')
        a.emit(f's_cbranch_scc1 L_{tag}_nog')
    a.emit(f's_mov_b32 s{S_CNT}, {N - 1 if ot else N}')
    if ot:
        rd = (lambda s, ks: reads(s, ks, False)) if halo else reads
        for x in rd(0, 0): a.emit(x)
        a.emit('s_waitcnt lgkmcnt(0)')
        if LF1 and tag == 'w1':
            SH0, SH1 = [int(x) for x in ENV('SH', '18,3').split(',')]
            sd = rd(1, 1) + addr()
            for i, x in enumerate(ot(0)):
                a.emit(x)
                if i < len(sd): a.emit(sd[i])
                a.lines += ['@S'] * (1 if i < SH0 else SH1 if i >= len(sd) else 0)
            a.emit('s_waitcnt lgkmcnt(0)')
            for x in ot(1): a.emit(x); a.lines += ['@S'] * SH1
            assert mid[SH0].split()[0] not in ('s_addc_u32', 's_cselect_b32')
            while len(mid) > 1: a.lines[a.lines.index('@S')] = mid.pop(0)
        else:
            interleave(a, ot(0), rd(1, 1) + addr(), lead=1, per=1)
            a.emit('s_waitcnt lgkmcnt(0)')
            for x in ot(1): a.emit(x)
    if halo:
        a.emit('s_barrier')
        for x in halo[0]: a.emit(x)
        a.label(f'L_{tag}_nog')
    else:
        import pads
        for x in pads.chain('hv'): a.emit(x)
        MG = int(ENV('MG', '0'))
        if LF2 == 2: MG = len(mid) - 1
        a.lines += mid[:MG] + ['@W2G'] * (LF2 == 2); mid = mid[MG:]
        if ENV('S1') == 'a': stamp(a, 1)
        if not LF1: gbar(a, tag)
        if ENV('S1') == 'b': stamp(a, 1)
    a.lines += mid
    if ENV('S1') == 'c': stamp(a, 1)
    if halo: a.emit(f's_cmp_eq_u32 s{S_LAYER}, 0')
    a.emit('s_barrier')
    if not ENV('S1') or halo: stamp(a, 1)
    if halo:
        a.emit(f's_cbranch_scc1 L_{tag}_first')
        for x in halo[1] + reads(0, 0): a.emit(x)
        a.emit('s_waitcnt lgkmcnt(15)')
        for x in halo[2]: a.emit(x)
        a.emit('s_waitcnt lgkmcnt(0)')
        a.emit(f's_branch L_{tag}_loop')
        a.label(f'L_{tag}_first')
        if not DS: a.emit(f's_load_dwordx2 s[{SC}:{SC+1}], s[0:1], 72')
    for x in reads(0, 0): a.emit(x)
    a.emit('s_waitcnt lgkmcnt(0)')
    def loop(nm, m):
        la = int(ENV('LA_' + tag.upper(), '4'))
        w = a.lines.pop()
        assert w.split()[0] in ('s_waitcnt', 's_cbranch_scc1', 's_branch')
        a('.p2align 5')
        for _ in range(la - 1): a.emit('s_nop 0')
        a.lines.append(w)
        a.label(f'L_{tag}_loop{nm}')
        ad = addr()
        ad[-1] += f'\n  s_sub_u32 s{S_CNT}, s{S_CNT}, 1'
        interleave(a, m(0), reads(1, 1) + ad, lead=1, per=1)
        a.emit('s_waitcnt lgkmcnt(0)')
        a.emit('s_barrier')
        interleave(a, m(1), reads(0, 0) + [f's_cmp_lg_u32 s{S_CNT}, 0\n  s_nop 0'], lead=1, per=1)
        a.emit('s_waitcnt lgkmcnt(0)')
        a.emit(f's_cbranch_scc1 L_{tag}_loop{nm}')
    if variants:
        select()
        vs = list(variants.items())
        for i, (nm, m) in enumerate(vs):
            loop(nm, m)
            if i + 1 < len(vs): a.emit(f's_branch L_{tag}_post')
        a.label(f'L_{tag}_post')
        post()
        a.emit(f's_branch L_{tag}_exit')
    if hooks and PO0 == 0:
        a.emit(f's_cmp_eq_u32 s{S_CNT}, 0')
        a.emit(f's_cbranch_scc1 L_{tag}_lend')
    loop('', mf)
    a.label(f'L_{tag}_lend')
    if hooks:
        a.emit(f's_add_u32 s{S_T}, s{S_T}, 1')
        a.emit(f's_cmp_gt_u32 s{S_T}, {len(hooks)}')
        a.emit(f's_cbranch_scc1 L_{tag}_exit')
        for i, (t, code) in enumerate(hooks):
            if i + 1 < len(hooks):
                a.emit(f's_cmp_lg_u32 s{S_T}, {i + 1}')
                a.emit(f's_cbranch_scc1 L_{tag}_hook{i}')
            t2 = hooks[i + 1][0] if i + 1 < len(hooks) else N
            if t < 0 <= t2:
                own_pos(a, S_CNT)
                a.emit(f's_sub_u32 s{S_CNT}, {t2 + t + 1}, s{S_CNT}')
                assert t2 + t + 1 > PO0 + POM
            else: a.emit(f's_mov_b32 s{S_CNT}, {abs(t2 - t)}')
            for x in code: a.emit(x)
            a.emit(f's_branch L_{tag}_loop')
            if i + 1 < len(hooks): a.label(f'L_{tag}_hook{i}')
    a.label(f'L_{tag}_exit')
    if tail and tail[0] is not None:
        interleave(a, mf(0), reads(1, 1) + tail[0], lead=1, per=1)
        a.emit('s_waitcnt lgkmcnt(0)')
        a.emit('s_barrier')
    for x in tail[1] if tail else []: a.emit(x)
    stamp(a, 2)

def weave(ms, fill):
    return [x for i, m in enumerate(ms) for x in [m] + fill.get(i, [])]

def stats_loads(a, vd, halo):
    a.emit(f's_and_b32 s3, s{S_WV}, 3')
    a.emit(f's_lshl_b32 s4, s{S_MT}, 7')
    a.emit('s_lshl_b32 s5, s3, 6')
    a.emit('s_add_u32 s5, s5, s4')
    a.emit('v_add_u32 v2, s5, v1')
    a.emit('s_sub_u32 s4, s4, 16')
    a.emit('v_and_b32 v3, 15, v1')
    a.emit('v_add_u32 v3, s4, v3')
    a.emit('v_max_i32 v3, 0, v3')
    a.emit('s_cmp_ge_u32 s3, 2')
    a.emit('s_cselect_b64 vcc, -1, 0')
    a.emit('v_cndmask_b32 v2, v2, v3, vcc')
    a.emit('v_lshlrev_b32 v2, 3, v2')
    a.emit('s_mov_b32 s3, 0')
    for j in range(16):
        a.emit(f'buffer_load_dwordx2 v[{vd+2*j}:{vd+2*j+1}], v2, s[{ST}:{ST+3}], s3 offen')
        if j < 15: a.emit('s_add_u32 s3, s3, 16384')
    return 16

def stats_finish(a, vs):
    a.emit(f'v_mul_f32 v{vs}, 0x3a800000, v{vs}')
    a.emit(f'v_mul_f32 v{vs+1}, 0x3a800000, v{vs+1}')
    a.emit(f'v_fma_f32 v{vs+1}, -v{vs}, v{vs}, v{vs+1}')
    a.emit(f'v_max_f32 v{vs+1}, 0, v{vs+1}')
    a.emit(f'v_add_f32 v{vs+1}, 0x3727c5ac, v{vs+1}')
    a.emit(f'v_rsq_f32 v{vs+1}, v{vs+1}')
    a.emit('s_nop 0')

def stats_reduce_store(a, vd, LST):
    for j in range(1, 8):
        a.emit(f'v_add_f32 v{vd}, v{vd}, v{vd+2*j}')
        a.emit(f'v_add_f32 v{vd+1}, v{vd+1}, v{vd+2*j+1}')
        a.emit(f'v_add_f32 v{vd+16}, v{vd+16}, v{vd+16+2*j}')
        a.emit(f'v_add_f32 v{vd+17}, v{vd+17}, v{vd+17+2*j}')
    a.emit(f'v_add_f32 v{vd}, v{vd}, v{vd+16}')
    a.emit(f'v_add_f32 v{vd+1}, v{vd+1}, v{vd+17}')
    stats_finish(a, vd)
    a.emit(f's_and_b32 s3, s{S_WV}, 3')
    a.emit('s_lshl_b32 s5, s3, 6')
    a.emit('s_add_u32 s5, s5, 16')
    a.emit('v_add_u32 v2, s5, v1')
    a.emit('v_and_b32 v3, 15, v1')
    a.emit('s_cmp_ge_u32 s3, 2')
    a.emit('s_cselect_b64 vcc, -1, 0')
    a.emit('v_cndmask_b32 v2, v2, v3, vcc')
    a.emit('v_lshlrev_b32 v2, 2, v2')
    a.emit(f'v_add_u32 v2, {LST}, v2')
    a.emit(f'ds_write2_b32 v2, v{vd}, v{vd+1} offset0:0 offset1:160')

VST, VSH, VCS, VBI = 18, 19, 22, 23
def stats4_setup(a, halo):
    a.emit(f's_and_b32 s3, s{S_WV}, 3')
    a.emit(f's_lshl2_add_u32 s4, s{S_MT}, s3')
    a.emit('s_lshl_b32 s4, s4, 8')
    a.emit('v_lshrrev_b32 v2, 4, v1')
    a.emit('v_and_b32 v3, 15, v1')
    a.emit('v_lshl_add_u32 v3, v3, 4, s4')
    a.emit(f'v_lshl_add_u32 v{VST}, v2, 14, v3')
    if halo:
        a.emit(f's_lshl_b32 s4, s{S_MT}, 5')
        a.emit('s_add_u32 s4, s4, s3')
        a.emit('s_sub_u32 s4, s4, 4')
        a.emit('s_max_i32 s4, s4, 0')
        a.emit('s_lshl_b32 s4, s4, 5')
        a.emit('v_lshrrev_b32 v2, 2, v1')
        a.emit('v_and_b32 v3, 3, v1')
        a.emit('v_lshl_add_u32 v3, v3, 3, s4')
        a.emit(f'v_lshl_add_u32 v{VSH}, v2, 14, v3')

def quad_loads(vd, vo, sd):
    o = []
    for j in range(4):
        if j: o.append(f's_mov_b32 s3, {j << 16}')
        o.append(f'buffer_load_dwordx4 v[{vd+4*j}:{vd+4*j+3}], v{vo}, s[{sd}:{sd+3}], {"s3" if j else 0} offen')
    return o

def stats4_loads(vd, halo):
    return quad_loads(vd, VST, ST) + ([f'buffer_load_dwordx2 v[{vd+16}:{vd+17}], v{VSH}, s[{ST}:{ST+3}], 0 offen'] if halo else [])

def pkadd(a, d, s):
    if ENV('UPK', '1') == '1':
        for i in range(2): a.emit(f'v_add_f32 v{d+i}, v{d+i}, v{s+i}')
    else: a.emit(f'v_pk_add_f32 v[{d}:{d+1}], v[{d}:{d+1}], v[{s}:{s+1}]')

def quad_sum(a, vd):
    pk = lambda d, s: pkadd(a, d, s)
    pk(vd, vd + 4); pk(vd + 2, vd + 6); pk(vd + 8, vd + 12); pk(vd + 10, vd + 14); pk(vd, vd + 8); pk(vd + 2, vd + 10)
    a.emit('s_nop 1')
    a.emit(f'v_permlane32_swap_b32 v{vd}, v{vd+2}')
    a.emit(f'v_permlane32_swap_b32 v{vd+1}, v{vd+3}')
    pk(vd, vd + 2)

def nan_chk(a, lab, halo):
    def chk():
        a.emit('v_cmp_u_f32 vcc, v32, v33')
        if halo:
            a.emit('v_cmp_u_f32 s[4:5], v48, v49')
            a.emit('s_or_b64 s[4:5], vcc, s[4:5]')
            a.emit(f's_cbranch_scc0 {lab}ok')
        else: a.emit(f's_cbranch_vccz {lab}ok')
        a.emit(f's_sub_u32 s{S_CNT}, s{S_CNT}, 1')
        a.emit(f's_cbranch_scc1 {lab}ok')
        for x in stats4_loads(32, halo): a.emit(x + (' sc1' if x.startswith('buf') else ''))
        a.emit('s_waitcnt vmcnt(0)')
        a.emit(f's_branch {lab}chk')
        a.label(f'{lab}ok')
    a.emit(f's_mov_b32 s{S_CNT}, 0x4000')
    a.label(f'{lab}chk')
    return chk

def split3(a, x, d, t, row):
    a.emit(f'v_cvt_pk_bf16_f32 v{d}, v{x}, v{x}')
    a.emit(f'v_and_b32 v{t}, 0xffff0000, v{d}')
    a.emit(f'v_sub_f32 v{t}, v{x}, v{t}')
    a.emit(f'v_cvt_pk_bf16_f32 v{d+1}, v{t if row else x}, v{t}')
    a.emit(f'v_and_b32 v{d+2}, 0xffff0000, v{d+1}')
    a.emit(f'v_sub_f32 v{t}, v{t}, v{d+2}')
    a.emit(f'v_cvt_pk_bf16_f32 v{d+2}, v{x if row else t}, v{t if row else x}')
    if not row: a.emit(f'v_mov_b32 v{d}, v{d+1}')

def stats4_store(a, vd, LST, halo, chk=None, fin=None):
    quad_sum(a, vd)
    if chk: chk()
    def allsum(r, op):
        a.emit(f'v_mov_b32 v{r+2}, v{r}')
        a.emit(f'v_mov_b32 v{r+3}, v{r+1}')
        a.emit('s_nop 0')
        a.emit(f'v_permlane{op}_swap_b32 v{r}, v{r+2}')
        a.emit(f'v_permlane{op}_swap_b32 v{r+1}, v{r+3}')
        pkadd(a, r, r + 2)
    allsum(vd, 16)
    if fin: return fin()
    stats_finish(a, vd)
    a.emit(f's_and_b32 s3, s{S_WV}, 3')
    a.emit('s_lshl_b32 s5, s3, 7')
    a.emit(f's_add_u32 s5, s5, {LST + 64}')
    a.emit('v_and_b32 v3, 15, v1')
    a.emit('v_lshrrev_b32 v2, 5, v1')
    a.emit('v_lshl_add_u32 v2, v3, 1, v2')
    a.emit('v_lshl_add_u32 v2, v2, 2, s5')
    a.emit(f'ds_write2_b32 v2, v{vd}, v{vd+1} offset0:0 offset1:160')
    if halo:
        h = vd + 16
        allsum(h, 32); allsum(h, 16)
        for r in (8, 4):
            a.emit('s_nop 1')
            for i in range(2): a.emit(f'v_add_f32_dpp v{h+i}, v{h+i}, v{h+i} row_ror:{r} row_mask:0xf bank_mask:0xf')
        stats_finish(a, h)
        a.emit('s_lshl_b32 s5, s3, 4')
        a.emit(f's_add_u32 s5, s5, {LST}')
        a.emit('v_and_b32 v3, 3, v1')
        a.emit('v_lshl_add_u32 v2, v3, 2, s5')
        a.emit(f'ds_write2_b32 v2, v{h}, v{h+1} offset0:0 offset1:160')

def gen_w1(a, tsidx, side, cs=(16, 16384, 0)):
    kind = 'w1'
    K = 1024; lda2 = 2048; ldw2 = 7168; ldo2 = 7168
    ot = kind in OT
    S = 3; LM = int(ENV('LM_W1', '2' if ot else '3'))
    STAGE = 16384 + 4 * 8192
    o2 = 'w2' in OT
    assert LM == 2 or not o2
    LST = OHB - 4096 if o2 else S * STAGE
    LCS = LST + 1280
    if MF: LST = OHB - 8192; LCS = LST + 4096
    c0 = -2.0 * 0.7978845608028654 * 1.4426950408889634
    c1 = c0 * 0.044715
    N = 16
    body = f'L_{kind}_body'; end = f'L_{kind}_end'
    VB, VA, VO = 4, 20, 12
    F = [32, 80]; ACC = 128
    acc = lambda jn, jm: ACC + (jn * 4 + jm) * 4
    fx = lambda s, jm: F[s] + jm * 4
    fw = lambda s, jn: F[s] + 16 + jn * 4
    a.label(f'L_{kind}_c0')
    if not MEGA: stub(a, f'{kind}l0_kernel', body, 0, tsidx, True)
    a.label(body)
    tile_map(a, LM, end)
    a.emit(f's_cmp_ge_u32 s{S_WV}, 4')
    a.emit(f's_cbranch_scc1 L_{kind}_loader')
    if ot and OBAR: a.emit('s_barrier')
    if NV:
        from gemm64y import w2_pre, w2_early
        w2_pre(a)
        tile_map(a, LM, None)
    a.emit(f's_and_b32 s{S_WM}, s{S_WV}, 1')
    a.emit(f's_lshr_b32 s{S_WN}, s{S_WV}, 1')
    a.emit('v_and_b32 v3, 15, v1')
    a.emit('v_lshrrev_b32 v2, 4, v1')
    a.emit(f's_lshl_b32 s8, s{S_WM}, 13')
    a.emit(f'v_lshl_add_u32 v{VB}, v1, 4, s8')
    nr = kind in NS and NSR
    wbase(a, 13, 17, nr=nr)
    a.emit(f's_lshl_b32 s9, s{S_WN}, 6')
    a.emit('v_xor_b32 v13, s9, v13')
    a.emit(f'v_add_u32 v{VB+1}, 16384, v13')
    a.emit(f'v_xor_b32 v{VB+2}, 32, v{VB+1}')
    a.emit('v_and_b32 v16, 1, v2')
    a.emit('v_lshrrev_b32 v17, 1, v2')
    if nr: a.emit('v_lshrrev_b32 v13, 2, v1')
    else:
        a.emit('v_bfe_u32 v13, v1, 2, 2')
        a.emit('v_lshl_add_u32 v13, v16, 3, v13')
        a.emit('v_lshl_add_u32 v13, v17, 5, v13')
    n2 = 'w2' in NS
    if n2:
        a.emit('v_and_b32 v14, 1, v1')
        a.emit('v_lshl_add_u32 v13, v13, 1, v14')
        a.emit(f'v_xor_b32 v14, s{S_WN}, v16')
        a.emit('v_lshl_add_u32 v13, v13, 1, v14')
        a.emit('v_bfe_u32 v14, v1, 1, 1')
        a.emit('v_lshl_add_u32 v13, v13, 1, v14')
    else:
        a.emit(f'v_xor_b32 v14, s{S_WN}, v16')
        a.emit('v_lshl_add_u32 v13, v13, 1, v14')
        a.emit('v_and_b32 v14, 3, v1')
        a.emit('v_lshl_add_u32 v13, v13, 2, v14')
    a.emit('v_lshlrev_b32 v13, 3, v13')
    a.emit(f'v_add_u32 v{VB+3}, {16384 + 3 * 8192}, v13')
    i0 = len(a.lines)
    a.emit(f's_lshl_b32 s8, s{S_MT}, 7')
    a.emit(f's_lshl_b32 s9, s{S_WM}, 6')
    a.emit('s_add_u32 s8, s8, s9')
    a.emit(f's_mul_i32 s8, s8, {ldo2}')
    a.emit('v_lshlrev_b32 v14, 8, v17')
    a.emit('v_lshl_add_u32 v14, v3, 4, v14')
    if o2:
        a.emit(f's_lshl3_add_u32 s9, s{S_WM}, s{S_WN}')
        a.emit('s_lshl_b32 s9, s9, 10')
        a.emit(f's_add_u32 s9, s9, {OHB}')
        if n2: a.emit('v_lshl_add_u32 v18, v1, 4, s9')
        else:
            a.emit('v_lshl_add_u32 v18, v16, 9, v14')
            a.emit('v_add_u32 v18, s9, v18')
        srd(a, SB, 'b2', 0, 2048)
        a.emit(f's_lshr_b32 s9, s{S_NT}, 3')
        a.emit(f's_and_b32 s10, s{S_NT}, 7')
        a.emit('s_lshl1_add_u32 s9, s10, s9')
        a.emit('s_lshl_b32 s9, s9, 7')
        a.emit('v_lshl_add_u32 v19, v2, 3, s9')
    a.emit('v_add_u32 v14, s8, v14')
    a.emit(f's_lshl_b32 s10, s{S_NT}, 11')
    a.emit(f's_lshl_b32 s9, s{S_WN}, 10')
    a.emit('s_add_u32 s9, s9, s10')
    a.emit(f'v_lshl_add_u32 v{VO}, v1, 4, s8' if n2 else f'v_lshl_add_u32 v{VO}, v16, 9, v14')
    a.emit(f'v_add_u32 v{VO}, s9, v{VO}')
    if n2 and not MF: a.emit('v_lshl_add_u32 v17, v16, 2, v17')
    a.emit(f'v_mul_u32_u24 v16, {16*ldo2}, v16')
    a.emit('s_lshr_b32 s9, s9, 1')
    a.emit(f'v_add3_u32 v{VO+1}, v16, v14, s9')
    if MF:
        assert n2 and OH
        a.emit(f's_lshl_b32 s9, s{S_WM}, 10')
        a.emit(f's_add_u32 s9, s9, {LST}')
        a.emit('v_lshl_add_u32 v14, v3, 4, s9')
        a.emit(f's_lshl_b32 s9, s{S_WN}, 9')
        a.emit(f's_add_u32 s9, s9, {LCS}')
        a.emit('v_lshl_add_u32 v15, v3, 4, s9')
        a.emit('v_bfe_u32 v16, v1, 2, 1')
        a.emit('v_bfe_u32 v17, v1, 3, 1')
        a.emit('v_lshl_add_u32 v17, v16, 2, v17')
        a.emit('v_and_b32 v16, 3, v1')
        a.emit('v_lshl_add_u32 v17, v17, 2, v16')
        a.emit(f's_lshl_b32 s9, s{S_WN}, 7')
        a.emit(f's_add_u32 s9, s9, {LCS}')
        a.emit('v_lshl_add_u32 v16, v17, 4, s9')
        if MF == 2:
            a.emit('v_bfe_u32 v17, v1, 4, 1')
            for r in (14, 15, 16): a.emit(f'v_lshl_add_u32 v{r}, v17, 3, v{r}')
        a.emit(f'v_mov_b32 v17, {LST + 2048 + 12}')
    else:
        a.emit(f's_lshl_b32 s9, s{S_WM}, 8')
        a.emit(f's_add_u32 s9, s9, {LST + 64}')
        a.emit('v_lshl_add_u32 v14, v3, 2, s9')
        a.emit(f's_lshl_b32 s9, s{S_WN}, 7')
        a.emit(f's_add_u32 s9, s9, {LCS}')
        a.emit('v_lshl_add_u32 v15, v2, 4, s9')
        a.emit(f's_lshl_b32 s9, s{S_WN}, {5 if n2 else 6}')
        a.emit(f's_add_u32 s9, s9, {LCS}')
        a.emit(f'v_lshl_add_u32 v16, v{17 if n2 else 2}, 4, s9')
        if OH: a.emit(f'v_mov_b32 v17, {LST}')
    for i in range(0 if ot else 112): a.emit(f'v_mov_b32 v{ACC+i}, 0')
    if not MEGA: a.emit('s_waitcnt lgkmcnt(0)')
    srd(a, SO, ENV('HB', 'ws'), WS_H, 2048 * 7168)
    HC = ENV('HC', '')
    if HC:
        G_ = int(ENV('HCG', '6'))
        a.emit('v_lshrrev_b32 v26, 4, v1')
        a.emit(f'v_mul_u32_u24 v26, {16*ldo2}, v26')
        a.emit('v_lshl_add_u32 v26, v3, 6, v26')
        if G_ == 7: a.emit('v_and_b32 v26, 0xffffff80, v26')
        a.emit(f's_lshl1_add_u32 s3, s{S_NT}, s{S_WN}')
        a.emit('s_lshl_b32 s4, s3, 9')
        a.emit('s_add_u32 s4, s4, s8')
        a.emit('s_add_u32 s4, s4, 32768')
        a.emit('s_lshl_b32 s3, s3, 10')
        a.emit('s_add_u32 s3, s3, s10')
        a.emit('s_add_u32 s3, s3, s8')
        a.emit(f's_add_u32 s3, s3, {48 * 1024}')
        a.emit('v_and_b32 v27, 0xfffffdff, v26')
        op = 'load' if 'l' in HC else 'store'; fl = ' sc1' if '1' in HC else ''
        a.emit(f'buffer_{op}_dword v28, v26, s[{SO}:{SO+3}], s3 offen{fl}')
        a.emit(f'buffer_{op}_dword v29, v26, s[{SO}:{SO+3}], s3 offen offset:2048{fl}')
        a.emit(f'buffer_{op}_dword v30, v27, s[{SO}:{SO+3}], s4 offen{fl}')
    if ENV('HS'):
        a.emit(f"s_and_b32 s3, s2, {ENV('HS')}")
        a.emit(f's_cselect_b32 s{SO+2}, 0, s{SO+2}')
    if not ot: code_touch(a, 'L_w2_c0', 'L_w2_c1', 192 if SPX else 128)
    PW = LF2 == 2
    if PW: a.lines.append('@W2A')
    mid = []
    if ot: mid = a.lines[i0:]; del a.lines[i0:]
    def reads(s, ks):
        o = []
        if 'noread' in DBG: return o
        for jm in range(4):
            o.append(f'ds_read_b128 v[{fx(s,jm)}:{fx(s,jm)+3}], v{VA} offset:{jm*2048+ks*1024}')
        for jn in range(7):
            for h in range(2):
                r = fw(s, jn) + 2 * h
                o.append(f'ds_read_b64_tr_b16 v[{r}:{r+1}], v{VA+1+(jn&1 if jn < 6 else 2)} offset:{((jn>>1)*8192 if jn < 6 else 0)+h*(2048 if nr else 512 if jn < 6 else 256)+ks*4096}')
        return o
    def mf(s):
        o = []
        if 'nomfma' in DBG: return ['s_nop 0']
        for jn, jm in mf_order(7, 4):
            if True:
                c = acc(jn, jm)
                o.append(f'v_mfma_f32_16x16x32_bf16 v[{c}:{c+3}], v[{fw(s,jn)}:{fw(s,jn)+3}], v[{fx(s,jm)}:{fx(s,jm)+3}], v[{c}:{c+3}]')
        return o
    zc = lambda x: x[:x.rindex(',')] + ', 0'
    CS = 32; BI = 60; STT = 88; CK = 96; T = 100; D = 108
    KK = 76; FS = 4
    PT = int(ENV('PTW', '1')) if MF == 2 else 0
    if PT: BI = 46; KK = 56; FS = 2
    FW = 3 if MF == 1 else 1
    def fold(jn, jm): return f'v_mfma_f32_16x16x{16 * (FW + 1 >> 1)}_bf16 v[{acc(jn,jm)}:{acc(jn,jm)+3}], v[{CS+FS*jn}:{CS+FS*jn+FW}], v[{BI+FS*jm}:{BI+FS*jm+FW}], v[{acc(jn,jm)}:{acc(jn,jm)+3}]'
    bia = [f'buffer_load_dwordx2 v[{OBIA[jn]}:{OBIA[jn]+1}], v19, s[{SB}:{SB+3}], 0 offen offset:{jn*32}' for jn in range(4 if o2 else 0)]
    mode = [f's_cmp_lg_u32 s{S_T}, 0', f's_cselect_b32 s{S_T}, {HALT}, 0'] + [x for r in ((SO, SX, SC) if PW else (SO,)) for x in (f's_add_u32 s{r}, s{r}, s{S_T}', f's_addc_u32 s{r+1}, s{r+1}, 0')]
    tail = None
    if MF:
        TK = 76 if PT else T
        rr = lambda jm, k: f'ds_read_b128 v[{KK+4*jm}:{KK+4*jm+3}], v{14 if MF == 1 else TK} offset:{2048+256*jm}' if k else f'ds_read_b{32*FW+32} v[{BI+FS*jm}:{BI+FS*jm+FW}], v14 offset:{256*jm}'
        rc = lambda jn: f'ds_read_b{32*FW+32} v[{CS+FS*jn}:{CS+FS*jn+FW}], v{15 if jn < 6 else 16} offset:{(jn>>1)*1024+(jn&1)*256}'
        assert ENV('ORD', '0312')[0] == '0'
        hd = [rr(0, 0), rc(0), rc(1), rr(0, 1), 'ds_read_b32 v17, v17']
        tl = [rr(jm, k) for jm in (1, 2, 3) for k in (0, 1)] + [rc(jn) for jn in (6, 2, 3, 4, 5)]
        ak = [f'v_and_b32 v{TK}, -9, v14'] * (MF == 2)
    if PT:
        rd = hd + tl; fl = {i: rd[2*i:2*i+2] for i in range(8)}
        for i in range(4): fl[9 + i] = bia[i:i+1]
        fl[14] = ['s_waitcnt lgkmcnt(0)', fold(0, 0), f'v_readfirstlane_b32 s{S_T}, v17']
        for i in range(4): fl[16 + i] = mode[2*i:2*i+2]
        if PT == 2:
            fl = {i: rd[i:i+1] for i in range(16)}
            for i in range(4): fl[16 + i] = bia[i:i+1]
            fl[9] += ['s_waitcnt lgkmcnt(5)']; fl[10] += [f'v_readfirstlane_b32 s{S_T}, v17']
            fl[20] = ['s_waitcnt lgkmcnt(0)', fold(0, 0)]
            for i in range(4): fl[21 + i] = mode[2*i:2*i+2]
        tail = (ak, weave(mf(1), fl))
    big_loop(a, kind, N, S, STAGE, 4, VB, VA, reads, mf, ot=(lambda s: mf(1) if s else [zc(x) for x in mf(0)]) if ot else None, mid=mid, tail=tail)
    if ENV('XSE'): a.emit(f"s_sleep {ENV('XSE')}")
    if MF and not PT:
        for x in hd[:2] + ak + hd[2:] + tl: a.emit(x)
    for jm in range(0 if MF else 4):
        a.emit(f'ds_read2_b32 v[{STT+2*jm}:{STT+2*jm+1}], v14 offset0:{16*jm} offset1:{160+16*jm}')
    for jn in range(0 if 'nofold' in DBG or MF else 7):
        a.emit(f'ds_read_b128 v[{CS+4*jn}:{CS+4*jn+3}], v{15 if jn < 6 else 16} offset:{(jn>>1)*256+(jn&1)*64}')
        a.emit(f'ds_read_b128 v[{BI+4*jn}:{BI+4*jn+3}], v{15 if jn < 6 else 16} offset:{1024+(jn>>1)*256+(jn&1)*64}')
    if HC: a.emit('s_waitcnt vmcnt(0)')
    if not PT:
        if OH and not MF: a.emit('ds_read_b32 v17, v17')
        for x in bia: a.emit(x)
        if MF:
            a.emit(f's_waitcnt lgkmcnt({len(tl) + 3})')
            a.emit(fold(0, 0))
            a.emit(f's_waitcnt lgkmcnt({len(tl)})')
        else:
            a.emit(f'v_mov_b32 v{CK}, {f2u(c0):#x}')
            a.emit(f'v_mov_b32 v{CK+1}, {f2u(c1):#x}')
            a.emit(f'v_mov_b32 v{CK+2}, 1.0')
            a.emit('s_waitcnt lgkmcnt(0)')
        if OH: a.emit(f'v_readfirstlane_b32 s{S_T}, v17')
        for jm in range(0 if MF else 4):
            a.emit(f'v_mul_f32 v{STT+2*jm}, v{STT+2*jm}, v{STT+2*jm+1}')
        for x in mode if OH else []: a.emit(x)
    def tile_math(jn, jm, d):
        c = acc(jn, jm)
        seqs = []
        ST2 = f'v[{STT+2*jm}:{STT+2*jm+1}]'
        for q in range(2):
            x = c + 2 * q; t = T + 2 * q + 4 * (jn & 1)
            X = f'v[{x}:{x+1}]'; TT = f'v[{t}:{t+1}]'
            seqs.append([
              f'v_pk_fma_f32 {TT}, v[{CS+4*jn+2*q}:{CS+4*jn+2*q+1}], {ST2}, v[{BI+4*jn+2*q}:{BI+4*jn+2*q+1}] op_sel:[0,0,0] op_sel_hi:[1,0,1] neg_lo:[0,1,0] neg_hi:[0,1,0]',
              f'v_pk_fma_f32 {X}, {X}, {ST2}, {TT} op_sel:[0,1,0] op_sel_hi:[1,1,1]',
              f'v_pk_mul_f32 {TT}, {X}, {X}',
              f'v_pk_fma_f32 {TT}, {TT}, v[{CK}:{CK+1}], v[{CK}:{CK+1}] op_sel:[0,1,0] op_sel_hi:[1,1,0]',
              f'v_pk_mul_f32 {TT}, {TT}, {X}',
              f'v_exp_f32 v{t}, v{t}\n  v_exp_f32 v{t+1}, v{t+1}',
              f'v_pk_add_f32 {TT}, {TT}, v[{CK+2}:{CK+3}] op_sel_hi:[1,0]',
              f'v_rcp_f32 v{t}, v{t}\n  v_rcp_f32 v{t+1}, v{t+1}',
              f'v_pk_mul_f32 {X}, {X}, {TT}',
              f'v_cvt_pk_bf16_f32 v{d+q}, v{x}, v{x+1}'])
        if MF:
            k0 = f'v[{KK+4*jm}:{KK+4*jm+1}]'; k2 = f'v[{KK+4*jm+2}:{KK+4*jm+3}]'
            for q in seqs:
                TT = q[0].split()[1][:-1]
                q[3] = q[3].replace(f'v[{CK}:{CK+1}]', k0)
                q[6] = f'v_pk_fma_f32 {TT}, {TT}, {k2}, {k2} op_sel_hi:[1,0,0]'
                del q[:2]
            seqs[0][3] = '@MF\n  ' + seqs[0][3]
            tiles.append((jn, jm))
        if 'nofold' in DBG: seqs = [q[2:] for q in seqs]
        if 'nofold1' in DBG: seqs = [q[1:] for q in seqs]
        if 'nogelu' in DBG: seqs = [q[:2] + q[-1:] for q in seqs]
        if 'halfgelu' in DBG: seqs = [q[:2] + q[5:6] + q[-2:] for q in seqs]
        for ia, ib in zip(*seqs):
            a.emit(ia); a.emit(ib)
    cnt = [0]; tiles = []; e0 = len(a.lines)
    def pair(t0, t1, vo, soff, big=False):
        d = D + 4 * (cnt[0] % 4); cnt[0] += 1
        tile_math(*t0, d); tile_math(*t1, d + 2)
        a.emit(f's_add_u32 s3, s10, {soff}' if big else f's_mov_b32 s3, {soff}')
        if not n2 or t0[0] == 6:
            a.emit('s_nop 0')
            a.emit(f'v_permlane16_swap_b32 v{d}, v{d+2}')
            a.emit(f'v_permlane16_swap_b32 v{d+1}, v{d+3}')
        a.emit(f'buffer_store_dwordx4 v[{d}:{d+3}], v{vo}, s[{SO}:{SO+3}], s3 offen' + (stf(kind) if str(t0[0] // 2) in ENV('WTP', '013' if OH else '0123') else ' ' + ENV('WTQ', '')))
        if o2 and t0[0] < 6: a.emit(f'ds_write_b128 v18, v[{d}:{d+3}] offset:{(t0[0] // 2 + 2) % 3 * 16384 + t0[1] * 2048}')
    pr = lambda p, jm: pair((2 * p, jm), (2 * p + 1, jm), VO, jm * 16 * ldo2 + ((16 + 32 * p) if OH == 2 else (46 + 2 * p)) * 1024 * (p > 0), p > 0 and OH != 2)
    od = lambda jm: pair((6, jm), (6, jm + 1), VO + 1, jm * 16 * ldo2 + 32768)
    order = [lambda jm=jm: pr(0, jm) for jm in range(4)] + [lambda: od(0), lambda: od(2)] + [lambda jm=jm, p=p: pr(p, jm) for jm in range(4) for p in (1, 2)]
    if OH:
        order = []
        for c in ENV('ORD', '0312'): order += [lambda: od(0), lambda: od(2)] if c == '3' else [lambda jm=jm, p=int(c): pr(p, jm) for jm in range(4)]
    EW = int(ENV('EW', '10'))
    if EF: order = [lambda: od(0), lambda: od(2)] + [lambda jm=jm, p=p: pr(p, jm) for p in (1, 2, 0) for jm in range(4)]
    for i, f in enumerate(order):
        f()
        if NV and i + 1 == EX: w2_early(a)
        if (EARLY or EF) and i + 1 == EW:
            a.emit(f's_waitcnt vmcnt({EW - (6 if EF else EARLY // 4)})')
            a.emit('s_barrier')
    for i, j in enumerate(j for j in range(e0, len(a.lines)) if '@MF' in a.lines[j]):
        a.lines[j] = a.lines[j].replace('@MF\n  ', ('s_waitcnt lgkmcnt(0)\n  ' if i == 1 and not PT else '') + (fold(*tiles[i + 1]) + '\n  ' if i + 1 < len(tiles) else ''))
    if ENV('ES'): stamp(a, 1)
    compute_end(a, kind)
    a.label(f'L_{kind}_loader')
    L = Loader(a, kind, K, lda2, ldw2, [0, f's{S_HD}', 's_add_u32 s4, s4, 128'], 128, S, STAGE, rot=int(ENV('ROT_W1', '0')), xblk=True, half=2048)
    L.ot = int(ot); L.loc = bool(LF1)
    L.setup()
    a.emit('s_waitcnt lgkmcnt(0)')
    if WD: srd(a, SW, 'w1', 0, 1024 * 7168)
    iw0 = len(a.lines)
    if WD == 'b':
        a.emit('s_waitcnt vmcnt(7)')
        a.emit('s_barrier')
    if ot and ENV('CT2', 'l') == 'l': code_touch(a, 'L_w2_c0', 'L_w2_c1', 192, loader=True)
    srd(a, SX, 'ws', WS_X1, 4 * MB)
    if not WD: srd(a, SW, 'w1', 0, 1024 * 7168)
    srd(a, ST, 'ws', WS_ST, 16 * 16384); srd(a, SC, 'ws0', WS_CS, 16 * 16384); srd(a, SB, 'b1', 0, 7168)
    def tail():
        stats_loads(a, 32, False)
        a.emit(f's_lshl_b32 s4, s{S_NT}, 7')
        a.emit(f's_lshl_b32 s5, s{S_WV}, 6')
        a.emit('s_add_u32 s4, s4, s5')
        a.emit(f's_add_u32 s4, s4, {1472 - 256}')
        a.emit(f's_lshl_b32 s5, s{S_NT}, 6')
        a.emit(f's_cmp_eq_u32 s{S_WV}, 4')
        a.emit('s_cselect_b32 s4, s5, s4')
        a.emit('s_lshr_b32 s5, s5, 1')
        a.emit('s_add_u32 s5, s5, 1024')
        a.emit(f's_cmp_eq_u32 s{S_WV}, 7')
        a.emit('s_cselect_b32 s4, s5, s4')
        a.emit('v_add_u32 v3, s4, v1')
        a.emit('v_lshlrev_b32 v2, 2, v3')
        a.emit('v_lshlrev_b32 v3, 1, v3')
        a.emit(f's_mov_b32 s3, {cs[2]}')
        for j in range(16):
            if j < cs[0]:
                a.emit(f'buffer_load_dword v{64+j}, v2, s[{SC}:{SC+3}], s3 offen')
                if j < cs[0] - 1: a.emit(f's_add_u32 s3, s3, {cs[1]}')
            else:
                a.emit(f'v_mov_b32 v{64+j}, 0')
        a.emit(f'buffer_load_ushort v80, v3, s[{SB}:{SB+3}], 0 offen')
        side(a, 'issue')
    ns = side(Asm(), 'issue')
    extra = None
    if VW:
        assert int(ENV('LM_W2', '2')) == 2
        srd(a, SR, 'w2', 0, 3584 * 2048)
        a.emit('s_and_b32 s5, s2, 3')
        a.emit('s_lshl_b32 s5, s5, 2')
        a.emit(f's_and_b32 s6, s{S_CU}, 3')
        a.emit('s_add_u32 s5, s5, s6')
        a.emit('s_and_b32 s6, s2, 4')
        a.emit('s_lshl_b32 s6, s6, 1')
        a.emit(f's_lshr_b32 s7, s{S_CU}, 2')
        a.emit('s_add_u32 s6, s6, s7')
        rot_table(a, S_TB, 5, 6, 'w2')
        a.emit(f's_add_u32 s5, s5, s{S_WV}')
        a.emit('s_and_b32 s5, s5, 3')
        wvoff(a, 16, 5, 6, 2048)
        sched = [int(c) for c in ENV('PSCH', '0111111111111122')]
        assert sum(sched) >= NV1
        def extra(i):
            o = []
            for p in range(sum(sched[:i]), min(NV1, sum(sched[:i + 1]))): o += park(56, 2 * p, 128 + 8 * p, 16, SR)
            return o
        ns += sum(x.startswith('buffer_load') for i in (13, 14, 15) for x in extra(i))
    if XD:
        extra = tail_parks('w2', SR, lambda b: srd(b, SR, 'w2', 0, 3584 * 2048))
        ns += 2 * sum(TSCH['w2'])
    if XD and ENV('PFL', '2') == '3':
        b = Asm(); side(b, 'late'); pl = [l.strip() for l in b.lines]
        pl = [l.replace('v2,', 'v18,').replace(', v2', ', v18').replace('s3', 's93') for l in pl]
        i0 = min(i for i, l in enumerate(pl) if l.startswith('buffer_load'))
        for l in pl[:i0]: a.emit(l)
        st = [int(x) for x in ENV('PFS', '6,10').split(',')]
        extra = lambda i: pl[i0 + 2 * st.index(i):i0 + 2 * st.index(i) + 2] if i in st else []
    def final():
        a.emit(f's_waitcnt vmcnt({ns})')
        if ENV('PFL', '2') == '1': side(a, 'late')
        stats_reduce_store(a, 32, LST)
        for j in range(8): a.emit(f'v_add_f32 v{64+j}, v{64+j}, v{72+j}')
        for j in range(4): a.emit(f'v_add_f32 v{64+j}, v{64+j}, v{68+j}')
        a.emit('v_add_f32 v64, v64, v65')
        a.emit('v_add_f32 v66, v66, v67')
        a.emit('v_add_f32 v64, v64, v66')
        a.emit('v_lshlrev_b32 v80, 16, v80')
        a.emit('v_lshlrev_b32 v2, 2, v0')
        a.emit(f'v_add_u32 v2, {LCS - 1024}, v2')
        a.emit('ds_write_b32 v2, v64')
        a.emit('ds_write_b32 v2, v80 offset:1024')
        a.emit('s_waitcnt lgkmcnt(0)')
    import sides
    if T4:
        stats4_setup(a, False)
        a.emit(f's_lshl_b32 s4, s{S_NT}, 7')
        a.emit(f's_lshl_b32 s5, s{S_WV}, 6')
        a.emit('s_add_u32 s4, s4, s5')
        a.emit(f's_add_u32 s4, s4, {1472 - 256}')
        a.emit(f's_lshl_b32 s5, s{S_NT}, 6')
        a.emit(f's_cmp_eq_u32 s{S_WV}, 4')
        a.emit('s_cselect_b32 s4, s5, s4')
        a.emit('s_lshr_b32 s5, s5, 1')
        a.emit('s_add_u32 s5, s5, 1024')
        a.emit(f's_cmp_eq_u32 s{S_WV}, 7')
        a.emit('s_cselect_b32 s4, s5, s4')
        a.emit('v_and_b32 v3, 15, v1')
        a.emit('v_lshl_add_u32 v3, v3, 2, s4')
        a.emit('v_lshrrev_b32 v2, 4, v1')
        a.emit(f'v_add_lshl_u32 v{VBI}, v3, v2, 1')
        a.emit('v_lshlrev_b32 v3, 2, v3')
        a.emit(f'v_lshl_add_u32 v{VCS}, v2, 14, v3')
        CSI = int(ENV('CSI', '14')); STI = int(ENV('STI', '14'))
        LP2 = ENV('LP2', ''); LP0 = int(ENV('LP0', '5'))
        if LP2:
            a.emit(f's_and_b32 s3, s{S_MT}, 3')
            a.emit(f's_lshl2_add_u32 s3, s3, s{S_WV}')
            a.emit('s_sub_u32 s3, s3, 4')
            a.emit(f's_and_b32 s4, s{S_NT}, 7')
            a.emit('s_lshl_b32 s4, s4, 8')
            a.emit('s_lshl_b32 s5, s3, 14')
            a.emit('s_add_u32 s5, s5, s4')
            a.emit(f's_lshl_b32 s{SR}, s{S_NT}, 18')
            a.emit(f's_add_u32 s{SR}, s{SR}, {24 << 17}')
            a.emit(f's_add_u32 s{SR}, s{SR}, s5')
            a.emit(f's_and_b32 s{SR+1}, s{S_NT}, 8')
            a.emit(f's_lshl_b32 s{SR+1}, s{SR+1}, 16')
            a.emit(f's_add_u32 s{SR+1}, s{SR+1}, {16 << 17}')
            a.emit(f's_add_u32 s{SR+1}, s{SR+1}, s5')
            a.emit('s_lshr_b32 s5, s3, 1')
            a.emit(f's_lshl3_add_u32 s5, s{S_NT}, s5')
            a.emit('s_lshl_b32 s5, s5, 14')
            a.emit('s_and_b32 s3, s3, 1')
            a.emit('s_lshl_b32 s3, s3, 7')
            a.emit('s_add_u32 s4, s4, s3')
            a.emit(f's_add_u32 s{SR+2}, s5, s4')
            a.emit(f's_add_u32 s{SR+3}, s{SR+1}, {2 << 17}')
        HP = int(ENV('HP', '-1'))
        if HP >= 0:
            srd(a, SR, 'ws', WS_H, 2048 * 7168)
            a.emit(f's_and_b32 s3, s{S_WV}, 3')
            a.emit(f's_lshl2_add_u32 s3, s{S_MT}, s3')
            a.emit(f's_mul_i32 s3, s3, {32 * ldo2}')
            a.emit(f's_lshl_b32 s4, s{S_NT}, 12')
            a.emit('s_add_u32 s4, s4, s3')
            a.emit(f's_add_u32 s4, s4, {48 * 1024}')
            a.emit('v_lshl_add_u32 v24, v1, 6, s4')
            a.emit(f'v_add_u32 v25, {16 * ldo2}, v24')
            a.emit(f's_lshl_b32 s4, s{S_NT}, 10')
            a.emit('s_add_u32 s4, s4, s3')
            a.emit(f's_add_u32 s4, s4, {32 * 1024}')
            a.emit('v_and_b32 v3, 15, v1')
            a.emit('v_lshl_add_u32 v3, v3, 6, s4')
            a.emit('v_bfe_u32 v2, v1, 4, 1')
            a.emit(f'v_mul_u32_u24 v2, {16 * ldo2}, v2')
            a.emit('v_add_u32 v26, v2, v3')
            a.emit('v_and_b32 v3, 15, v1')
        CPI = int(ENV('CPI', '-1'))
        assert CPI < 0 or CPI >= CSI + 3 or (CSI, CPI, STI) == (13, 14, 14)
        LSK = int(ENV('LSK', '1')) if MF else 0; VC = 200
        def l0(o, lab, w):
            return [f's_cmp_lg_u32 s{S_LAYER}, 0', f's_cbranch_scc1 {lab}'] + o + ([f's_branch {lab}e', f'{lab}:', f's_waitcnt vmcnt({w})', f'{lab}e:'] if w >= 0 else [f'{lab}:']) if LSK else o
        def cols():
            b = Asm()
            b.emit(f's_and_b32 s3, s{S_WV}, 3')
            b.emit('s_lshl_b32 s5, s3, 9')
            b.emit(f's_add_u32 s5, s5, {LST}')
            b.emit('v_lshrrev_b32 v2, 5, v1')
            b.emit('v_and_b32 v3, 15, v1')
            b.emit('v_lshl_add_u32 v2, v3, 1, v2')
            b.emit(f'v_lshl_add_u32 v{VC+5}, v2, 4, s5')
            quad_sum(b, 64)
            b.emit(f'v_lshl_or_b32 v{VC+3}, v80, 16, v80')
            b.emit('s_lshl_b32 s5, s3, 10')
            b.emit(f's_add_u32 s5, s5, {LCS}')
            b.emit('v_permlane16_swap_b32 v64, v65')
            b.emit('v_lshrrev_b32 v2, 4, v1')
            b.emit('v_lshl_add_u32 v2, v3, 2, v2')
            b.emit(f'v_lshl_add_u32 v{VC+4}, v2, 4, s5')
            b.emit('v_add_f32 v64, v64, v65')
            split3(b, 64, VC, 65, False)
            return l0([l.strip() for l in b.lines], 'L_w1_cp', -1)
        def extra4(i):
            o = []
            if LP2 and i == LP0 - 1:
                b = Asm(); srd(b, SO, 'w2', 0, 3584 * 2048); o += [l.strip() for l in b.lines]
            if LP2 and LP0 <= i < LP0 + 8:
                for k, c in enumerate('ABCD'):
                    if c in LP2: o += [f's_buffer_load_dword s84, s[{SO}:{SO+3}], s{SR+k} offset:{64*j}' for j in range(2 if c == 'C' else 4)] + [f's_add_u32 s{SR+k}, s{SR+k}, 2048']
            if i == STI and LSK: o += stats4_loads(32, False)
            if i == CSI: o += l0(quad_loads(64, VCS, SC) + [f'buffer_load_ushort v80, v{VBI}, s[{SB}:{SB+3}], 0 offen'], 'L_w1_cl', 11 if CSI == 13 else 4)
            if i == STI and not LSK: o += stats4_loads(32, False)
            if MF and i == CPI: o += ['s_waitcnt vmcnt(4)'] * (CSI == 13) + cols()
            HPD = int(ENV('HPD', '0'))
            if HP >= 0: o += [f"buffer_{ENV('HPO', 'load')}_dword v{84+j}, v{24+j}, s[{SR}:{SR+3}], 0 offen {ENV('HPF', '')}" for j in range(3) if i == HP + j * HPD]
            return o
        def final5():
            def fin():
                a.emit('v_mul_f32 v32, 0x3a800000, v32')
                a.emit('v_mul_f32 v33, 0x3a800000, v33')
                a.emit('v_fma_f32 v33, -v32, v32, v33')
                a.emit('v_max_f32 v33, 0, v33')
                a.emit('v_add_f32 v33, 0x3727c5ac, v33')
                a.emit('v_rsq_f32 v34, v33')
                a.emit(f'v_mul_f32 v32, {-0.25 * MF}, v32')
                split3(a, 32, 36, 35, True)
                a.emit('v_mul_f32 v42, v33, v34')
                a.emit(f'v_mul_f32 v40, {f2u(c0):#x}, v34')
                a.emit('v_mul_f32 v34, v34, v34')
                a.emit(f'v_mul_f32 v33, {0.25 * MF}, v42')
                a.emit(f'v_mul_f32 v34, {f2u(0.044715):#x}, v34')
                a.emit('v_cvt_pk_bf16_f32 v35, v33, v33')
                a.emit('v_mul_f32 v41, v40, v34')
                a.emit('v_and_b32 v35, 0xffff0000, v35')
                if not GM: a.emit(f'v_xor_b32_dpp v43, v{VMD}, v{VMD} row_ror:2 row_mask:0xf bank_mask:0xf')
                a.emit('v_sub_f32 v35, v33, v35')
                if not GM: a.emit('v_cmp_ne_u32 vcc, 0, v43')
                a.emit('v_cvt_pk_bf16_f32 v39, v33, v35')
                if not GM: a.emit(f's_or_b32 s{S_MD}, vcc_lo, vcc_hi')
                a.emit(f'v_mov_b32 v43, s{S_MD}')
                a.emit(f'ds_write_b128 v{VC+5}, v[36:39]')
                a.emit(f'ds_write_b128 v{VC+5}, v[40:43] offset:2048')
            assert ENV('PW_W1', '4') == '4'
            for x in cols() if CPI < 0 else []: a.emit(x)
            a.emit(f'ds_write_b128 v{VC+4}, v[{VC}:{VC+3}]')
            assert CSI in (13, 14) and STI == 14 or not LSK
            stats4_store(a, 32, LST, False, fin=fin)
            a.emit('s_waitcnt lgkmcnt(0)')
        def final4():
            a.emit(f"s_waitcnt vmcnt({3 if HP >= 14 and ENV('HPO', 'load') == 'load' else 0})")
            if MF: return final5()
            stats4_store(a, 32, LST, False, nan_chk(a, 'L_w1_s', False) if SF else None)
            quad_sum(a, 64)
            a.emit('v_lshlrev_b32 v80, 16, v80')
            a.emit('s_lshl_b32 s5, s3, 8')
            a.emit(f's_add_u32 s5, s5, {LCS}')
            a.emit('v_permlane16_swap_b32 v64, v65')
            a.emit('v_lshrrev_b32 v2, 4, v1')
            a.emit('v_lshl_add_u32 v2, v3, 2, v2')
            a.emit('v_lshl_add_u32 v2, v2, 2, s5')
            a.emit('v_add_f32 v64, v64, v65')
            a.emit('ds_write2st64_b32 v2, v64, v80 offset0:0 offset1:4')
            if OH:
                assert ENV('PW_W1', '4') == '4'
                if GM: a.emit(f'v_mov_b32 v2, {LST}')
                else:
                    a.emit(f'v_xor_b32_dpp v64, v{VMD}, v{VMD} row_ror:2 row_mask:0xf bank_mask:0xf')
                    a.emit(f's_lshl2_add_u32 s5, s3, {LST}')
                    a.emit('v_cmp_ne_u32 vcc, 0, v64')
                    a.emit('v_mov_b32 v2, s5')
                    a.emit(f's_or_b32 s{S_MD}, vcc_lo, vcc_hi')
                a.emit(f'v_mov_b32 v64, s{S_MD}')
                a.emit('ds_write_b32 v2, v64')
            a.emit('s_waitcnt lgkmcnt(0)')
        assert ns == 0
        pst = sides.stouch_post(a, kind)
        if WD == 'c':
            a.emit('s_waitcnt vmcnt(0)')
            a.emit('s_barrier')
        elif WD: L.after_own = a.lines[iw0:]; del a.lines[iw0:]
        if LF1: L.run(final=final4, extra=extra4, post=pst, dep=lambda pf: dep_loc(a, kind, pf, lambda: a.emit(f's_waitcnt vmcnt({L.npre - 6})')))
        else: L.run(final=final4, extra=extra4, post=pst, dep=lambda pf: dep_wait(a, kind, postf=pf, obar=L.npre - 6 if ot and OBAR else 0, pref=(lambda: a.emit(f's_waitcnt vmcnt({L.npre - 7})')) if ot and not OBAR else None))
    else: L.run(tail_issue=tail, ntail_vm=17 + cs[0] + side(Asm(), 'issue'), final=final, extra=extra, post=sides.stouch_post(a, kind),
          dep=(lambda pf: dep_wait(a, kind, postf=pf)) if MEGA else None)
    if ENV('PFL', '2') == '2': side(a, 'late')
    if not VW: side(a, 'finish')
    loader_end(a, kind)
    a.label(end)
    a.emit('s_endpgm')
    loader_first(a, kind)
    if not MEGA:
        a(KD.format(name=f'{kind}l0_kernel'))
        stub(a, f'{kind}l1_kernel', body, 1, tsidx + 4, False)
        a(KD.format(name=f'{kind}l1_kernel'))
    a.label(f'L_{kind}_c1')
    return LCS + (4096 if MF else 2048)
```

```python
from common import *
from gemmw1 import *

def res_addr(a, swv, sd, v):
    assert int(ENV('LM_WO', '2')) == 2 and int(ENV('LM_W2', '2')) == 2
    srd(a, sd, 'A_x', 0, 4 * MB)
    a.emit('s_and_b32 s3, s2, 3')
    a.emit(f's_and_b32 s4, s{S_CU}, 3')
    a.emit('s_lshl2_add_u32 s3, s3, s4')
    a.emit(f's_lshl2_add_u32 s3, s3, s{swv}')
    a.emit('s_lshl_b32 s3, s3, 16')
    a.emit('s_bfe_u32 s4, s2, 0x10002' if SPX else 's_and_b32 s4, s2, 4')
    a.emit(f's_lshr_b32 s5, s{S_CU}, 2')
    a.emit('s_lshl1_add_u32 s4, s5, s4' if SPX else 's_lshl1_add_u32 s4, s4, s5')
    a.emit('s_lshl_b32 s4, s4, 7')
    a.emit('s_add_u32 s3, s3, s4')
    a.emit('s_add_u32 s4, s3, 32768')
    a.emit(f'v_and_b32 v{v}, 15, v1')
    a.emit(f'v_lshlrev_b32 v{v+1}, 1, v1')
    a.emit(f'v_and_b32 v{v+1}, 32, v{v+1}')
    a.emit(f'v_lshl_add_u32 v{v}, v{v}, 11, v{v+1}')
    a.emit(f'v_lshrrev_b32 v{v+1}, 1, v1')
    a.emit(f'v_and_b32 v{v+1}, 16, v{v+1}')
    a.emit(f'v_add_u32 v{v}, v{v}, v{v+1}')

def dbg_off(a, v):
    a.emit(f's_lshl_b32 s3, s{S_MT}, 2')
    a.emit('s_sub_u32 s3, s3, 4')
    a.emit(f'v_and_b32 v{v}, 7, v1')
    a.emit(f'v_add_u32 v{v}, s3, v{v}')
    a.emit(f'v_max_i32 v{v}, 0, v{v}')
    a.emit(f'v_lshlrev_b32 v{v}, 2, v{v}')

def res_loads(vd, v, sd):
    return [f'buffer_load_dwordx4 v[{vd+4*i}:{vd+3+4*i}], v{v}, s[{sd}:{sd+3}], s{3+(i>>1)} offen offset:{64*(i&1)}' for i in range(4)]

def gen_qkv(a, tsidx, side):
    kind = 'attn'
    K = 1024; lda2 = 2048; ldw2 = 6144
    S = 3; LM = int(ENV('LM_QKV', '3'))
    XH = 16384 + 6 * 4096
    STAGE = XH + 2048
    LST = S * STAGE
    PT = int(ENV('PTQ', '2'))
    EX = 1024 + (2 * STAGE if PT == 2 else 0)
    N = 16
    body = f'L_{kind}_body'; end = f'L_{kind}_end'
    VB, VA = 4, 10
    VXW, VPE, VPO, VCE, VCO, VVE, VVO, VS1, VS4, VKA, VKB, MAP, MAC, MBP, MBC, VO = range(16, 32)
    M_ODD, M_UPA, M_UPB, M_FA, M_FB = 48, 50, 52, 54, 14
    F = [32, 76]; ACC = 128; HACC = 224; ONES = 236
    acc = lambda jn, jm: ACC + (jn * 4 + jm) * 4
    fx = lambda s, jm: F[s] + jm * 4
    fw = lambda s, jn: F[s] + 20 + jn * 4
    a.label(f'L_{kind}_c0')
    stub(a, f'{kind}l0_kernel', body, 0, tsidx, True)
    a.label(body)
    ot = kind in OT
    HX = LST + 1280
    tile_map(a, LM, end)
    if ot and LM != 2:
        a.emit(f's_cmp_eq_u32 s{S_LAYER}, 0')
        a.emit(f's_cbranch_scc1 L_{kind}_map')
        tile_map(a, 2, None)
        a.label(f'L_{kind}_map')
    a.emit(f's_cmp_ge_u32 s{S_WV}, 4')
    a.emit(f's_cbranch_scc1 L_{kind}_loader')
    if ENV('CTE', '1') == '1': code_touch(a, 'L_attn_c0', 'L_w2_c1', int(ENV('CTN', '320')))
    a.emit(f's_and_b32 s{S_WM}, s{S_WV}, 1')
    a.emit(f's_lshr_b32 s{S_WN}, s{S_WV}, 1')
    a.emit('v_and_b32 v3, 31, v1')
    a.emit('v_lshlrev_b32 v3, 2, v3')
    a.emit(f'v_add_u32 v3, {XH}, v3')
    for i in range(4): a.emit(f'v_mov_b32 v{ONES+i}, 0x3f803f80')
    a.emit(f'ds_write_b32 v3, v{ONES}')
    a.emit(f'ds_write_b32 v3, v{ONES} offset:{STAGE}')
    a.emit(f'v_add_u32 v3, {2*STAGE}, v3')
    a.emit(f'ds_write_b32 v3, v{ONES}')
    if ot: a.emit(f'ds_write_b32 v3, v{ONES} offset:{HX - XH - 2 * STAGE}')
    a.emit('v_and_b32 v3, 15, v1')
    a.emit('v_lshrrev_b32 v2, 4, v1')
    a.emit('v_lshrrev_b32 v33, 1, v3')
    a.emit(f's_lshl_b32 s8, s{S_WM}, 13')
    for ks in range(2):
        if ks: a.emit(f'v_add_u32 v{VB+ks}, 4, v2')
        a.emit(f'v_xor_b32 v{VB+ks}, v{VB+ks if ks else 2}, v33')
        a.emit(f'v_lshlrev_b32 v{VB+ks}, 4, v{VB+ks}')
        a.emit(f'v_lshl_add_u32 v{VB+ks}, v3, 7, v{VB+ks}')
        a.emit(f'v_add_u32 v{VB+4+ks}, {XH}, v{VB+ks}')
        a.emit(f'v_add_u32 v{VB+ks}, s8, v{VB+ks}')
    wbase(a, 34, 33)
    a.emit(f's_lshl_b32 s8, s{S_WV}, 5')
    a.emit('v_xor_b32 v34, s8, v34')
    a.emit(f'v_add_u32 v{VB+2}, 16384, v34')
    a.emit(f'v_xor_b32 v{VB+3}, 32, v{VB+2}')
    i0 = len(a.lines)
    a.emit('v_and_b32 v35, 1, v2')
    a.emit(f'v_xor_b32 v35, s{S_WM}, v35')
    a.emit(f's_lshl_b32 s8, s{S_MT}, 7')
    a.emit(f's_lshl_b32 s9, s{S_WM}, 6')
    a.emit('s_add_u32 s8, s8, s9')
    if OH:
        a.emit('s_mul_i32 s10, s8, 7')
        a.emit(f's_lshl{3 - OH}_add_u32 s11, s{S_NT}, s{S_WN}')
        a.emit('s_add_u32 s10, s10, s11')
        a.emit('s_lshl_b32 s10, s10, 10')
    else:
        a.emit(f's_add_u32 s10, s8, s{S_NT}')
        a.emit('s_lshl_b32 s10, s10, 11')
        a.emit(f's_lshl_b32 s11, s{S_WN}, 10')
        a.emit('s_add_u32 s10, s10, s11')
    if 'wo' in NS: a.emit(f'v_lshl_add_u32 v{VO}, v1, 4, s10')
    else:
        a.emit('v_lshl_add_u32 v33, v3, 4, s10')
        a.emit('v_lshl_add_u32 v33, v35, 9, v33')
        a.emit('v_lshrrev_b32 v34, 1, v2')
        a.emit(f'v_lshl_add_u32 v{VO}, v34, 8, v33')
    a.emit(f's_mul_i32 s10, s{S_WN}, {14336 if XD else 24576}')
    a.emit(f's_add_u32 s10, s10, {EX}')
    a.emit(f's_lshl_b32 s11, s{S_WM}, 10')
    a.emit('s_add_u32 s4, s10, s11')
    a.emit('s_sub_u32 s5, s10, s11')
    a.emit(f's_mul_i32 s6, s{S_WM}, 6144')
    a.emit(f'v_lshl_add_u32 v{VXW}, v1, 4, s4')
    a.emit(f'v_add_u32 v{VPE}, s6, v{VXW}')
    a.emit(f'v_lshl_add_u32 v{VPO}, v1, 4, s5')
    a.emit(f'v_add_u32 v{VPO}, s6, v{VPO}')
    a.emit(f'v_lshl_add_u32 v{VCE}, v2, 8, s4')
    a.emit(f'v_lshl_add_u32 v{VCO}, v2, 8, s5')
    a.emit(f'v_lshl_add_u32 v{VVE}, v3, 4, s4')
    a.emit(f'v_lshl_add_u32 v{VVO}, v3, 4, s5')
    a.emit(f's_lshl_b32 s10, s{S_WM}, 8')
    a.emit(f's_add_u32 s10, s10, {LST}')
    a.emit(f'v_lshl_add_u32 v{VS1}, v3, 2, s10')
    a.emit(f'v_lshl_add_u32 v{VS4}, v2, 4, s10')
    a.emit('v_and_b32 v33, 1, v3')
    a.emit(f'v_cmp_eq_u32 s[{M_ODD}:{M_ODD+1}], 1, v33')
    a.emit('v_lshl_add_u32 v34, v2, 2, v33')
    a.emit('v_add_u32 v35, 2, v34')
    a.emit(f'v_cmp_gt_u32 s[{M_UPA}:{M_UPA+1}], v34, v3')
    a.emit(f'v_cmp_gt_u32 s[{M_UPB}:{M_UPB+1}], v35, v3')
    a.emit('v_mov_b32 v36, 0xffff')
    a.emit('v_mov_b32 v37, 0xffff0000')
    a.emit(f'v_cndmask_b32 v36, v36, v37, s[{M_ODD}:{M_ODD+1}]')
    a.emit(f's_add_u32 s10, s10, {640 + 64}')
    a.emit('v_lshl_add_u32 v34, v34, 2, s10')
    a.emit('v_lshl_add_u32 v35, v35, 2, s10')
    a.emit('v_subrev_u32 v38, 64, v34')
    a.emit('v_subrev_u32 v39, 64, v35')
    a.emit(f'v_cndmask_b32 v{VKA}, v34, v38, s[{M_UPA}:{M_UPA+1}]')
    a.emit(f'v_cndmask_b32 v{VKB}, v35, v39, s[{M_UPB}:{M_UPB+1}]')
    a.emit(f'v_cndmask_b32 v{MAP}, 0, v36, s[{M_UPA}:{M_UPA+1}]')
    a.emit(f'v_cndmask_b32 v{MBP}, 0, v36, s[{M_UPB}:{M_UPB+1}]')
    a.emit(f'v_xor_b32 v{MAC}, v{MAP}, v36')
    a.emit(f'v_xor_b32 v{MBC}, v{MBP}, v36')
    a.emit('s_cmp_eq_u32 s8, 0')
    a.emit(f's_cselect_b64 s[{M_FA}:{M_FA+1}], s[{M_UPA}:{M_UPA+1}], 0')
    a.emit(f's_cselect_b64 s[{M_FB}:{M_FB+1}], s[{M_UPB}:{M_UPB+1}], 0')
    if ot:
        a.emit(f's_cmp_lg_u32 s{S_LAYER}, 0')
        a.emit(f's_cbranch_scc1 L_{kind}_nozero')
    for i in list(range(122 if DS else 120, 236)) + ([] if XD else list(range(240, 256))): a.emit(f'v_mov_b32 v{i}, 0')
    if DS:
        a.emit('s_waitcnt lgkmcnt(0)')
        a.emit(f's_lshl_b32 s3, s{S_WN}, 5')
        a.emit('s_add_u32 s3, s3, s8')
        a.emit(f's_lshl_b32 s4, s{S_NT}, 14')
        a.emit('s_lshl3_add_u32 s3, s3, s4')
        a.emit('v_lshrrev_b32 v121, 1, v2')
        a.emit('v_lshl_add_u32 v121, v121, 4, v3')
        a.emit('v_and_b32 v120, 1, v2')
        a.emit('v_lshl_add_u32 v121, v121, 1, v120')
        a.emit('v_lshl_add_u32 v120, v121, 2, s3')
        srd(a, ST, 'ws0', WS_ST0, 16 * 16384)
        srd(a, SP, 'ws0', WS_FL, FLS)
        a.emit('s_lshl_b32 s3, s2, 11')
        if D2:
            a.emit(f's_cmp_lg_u32 s{S_WV}, 0')
            a.emit(f's_cbranch_scc1 L_{kind}_noclr')
            a.emit(f's_lshl_b32 s5, s{S_MT}, 10')
            a.emit('s_add_u32 s4, s4, s5')
            a.emit('v_lshlrev_b32 v121, 4, v1')
            for i in range(4): a.emit(f'v_mov_b32 v{40+i}, -1')
            a.emit(f'buffer_store_dwordx4 v[40:43], v121, s[{ST}:{ST+3}], s4 offen sc1')
            for i in range(2): a.emit(f'buffer_store_dwordx4 v[128:131], v121, s[{SP}:{SP+3}], s3 offen offset:{1024*i} sc1')
            if GM:
                a.emit('s_getreg_b32 s5, hwreg(HW_REG_XCC_ID, 0, 4)')
                if ENV('FB'): a.emit(f"s_and_b32 s5, s2, {ENV('FB')}")
                a.emit('v_lshl_or_b32 v126, s5, 1, 1')
            else: a.emit('v_mov_b32 v126, 1')
            a.label(f'L_{kind}_noclr')
        else:
            a.emit('v_lshlrev_b32 v121, 3, v0')
            a.emit(f'buffer_store_dwordx2 v[126:127], v121, s[{SP}:{SP+3}], s3 offen sc1')
            dbg_off(a, 121)
        a.emit(f's_and_b32 s{SC+1}, s{SC+1}, 0xffff')
        a.emit(f's_mov_b32 s{SC+2}, 256')
        a.emit(f's_mov_b32 s{SC+3}, 0x00020000')
        a.emit('s_mov_b32 s7, 0x3f803f80')
    if ot: a.label(f'L_{kind}_nozero')
    a.emit('s_waitcnt lgkmcnt(0)')
    if OH: srd(a, SO, 'ws', WS_H + OHO, 2048 * 7168 - OHO)
    else: srd(a, SO, 'ws', WS_O, 4 * MB)
    clear_flags(a, 0)
    if ENV('CTE', '1') == '0': code_touch(a, 'L_attn_c0', 'L_w2_c1', int(ENV('CTN', '320')))
    import pads
    CLQ = ENV('DX', '2') == '1' and ENV('CLP', 'e') == 'q'
    if CLQ:
        srd(a, ST, 'ws', WS_XP, 4 * MB)
        a.emit(f's_or_b32 s{ST+1}, s{ST+1}, 0x100000')
        a.emit(f's_mov_b32 s{ST+3}, 0x00800000')
        a.emit('s_and_b32 s3, s2, 3')
        a.emit(f's_and_b32 s4, s{S_CU}, 3')
        a.emit('s_lshl2_add_u32 s3, s3, s4')
        a.emit('s_bfe_u32 s4, s2, 0x10002')
        a.emit(f's_lshr_b32 s5, s{S_CU}, 2')
        a.emit('s_lshl1_add_u32 s4, s5, s4')
        a.emit('s_lshl4_add_u32 s3, s3, s4')
        a.emit(f's_lshl2_add_u32 s3, s3, s{S_WV}')
        a.emit(f's_lshl_b32 s{S_T}, s3, 12')
        for i in range(4): a.emit(f'v_mov_b32 v{116+i}, -1')
    def warm():
        a.emit(f's_cmp_lg_u32 s{S_LAYER}, 0')
        a.emit(f's_cbranch_scc1 L_{kind}_nowarm')
        a.emit('s_lshl_b32 s3, s2, 2')
        a.emit(f's_add_u32 s3, s3, s{S_WV}')
        srd(a, SX, 'xs', 0, 4 * MB); srd(a, SW, 'wqkv', 0, 6 * MB)
        a.emit('v_min_u32 v126, 31, v1')
        a.emit('v_min_u32 v127, 47, v1')
        a.emit('v_lshlrev_b32 v126, 7, v126')
        a.emit('v_lshlrev_b32 v127, 7, v127')
        a.emit('s_lshl_b32 s4, s3, 12')
        a.emit(f's_mul_i32 s5, s3, {48 * 128}')
        a.emit(f'buffer_load_dword v2, v126, s[{SX}:{SX+3}], s4 offen')
        a.emit(f'buffer_load_dword v3, v127, s[{SW}:{SW+3}], s5 offen')
        a.emit('v_mov_b32 v126, 0')
        a.emit('v_mov_b32 v127, 0')
        a.label(f'L_{kind}_nowarm')
    WARM = ENV('WARM', '0')
    if WARM == '1': warm()
    mid = []
    if ot: mid = a.lines[i0:]; del a.lines[i0:]
    def reads(s, ks, hl=True):
        o = []
        if 'noread' in DBG: return o
        for jm in range(4):
            o.append(f'ds_read_b128 v[{fx(s,jm)}:{fx(s,jm)+3}], v{VA+ks} offset:{jm*2048}')
        if hl: o.append(f'ds_read_b128 v[{fx(s,4)}:{fx(s,4)+3}], v{VA+4+ks}')
        for jn in range(6):
            for h in range(2):
                r = fw(s, jn) + 2 * h
                o.append(f'ds_read_b64_tr_b16 v[{r}:{r+1}], v{VA+2+(jn&1)} offset:{(jn>>1)*8192+ks*4096+h*512}')
        return o
    def mfma(c, x, y, cin=None):
        return f'v_mfma_f32_16x16x32_bf16 v[{c}:{c+3}], v[{x}:{x+3}], v[{y}:{y+3}], ' + (f'v[{c}:{c+3}]' if cin is None else cin)
    def mf(s):
        o = []
        if 'nomfma' in DBG: return ['s_nop 0']
        for jn, jm in mf_order(6, 5, lambda jn, jm: jm == 4 and jn & 1):
            if True:
                c = acc(jn, jm) if jm < 4 else HACC + (jn >> 1) * 4
                o.append(mfma(c, fw(s, jn), fx(s, jm)) if jn < 4 else mfma(c, fx(s, jm), fw(s, jn)))
        return o
    SA = [(240, 244), (248, 252), (120, 124)]
    def mfv(hh):
        def f(s):
            o = mf(s)
            ex = []
            for i, jm in enumerate([2 * hh, 2 * hh + 1] + ([4] if hh == 0 else [])):
                ex.append(mfma(SA[i][0], ONES, fx(s, jm)))
                ex.append(mfma(SA[i][1], fx(s, jm), fx(s, jm)))
            return o if 'nostat' in DBG else ex + o
        return f
    def select():
        if CLQ:
            for i in range(4): a.emit(f'buffer_store_dwordx4 v[116:119], off, s[{ST}:{ST+3}], s{S_T} offset:{1024*i} sc1')
        if WARM == '2': warm(); a.emit('s_nop 1')
        if not ot:
            a.emit(f's_cmp_lg_u32 s{S_LAYER}, 0')
            a.emit(f's_cbranch_scc1 L_{kind}_loop')
        if XD:
            for i in range(240, 256): a.emit(f'v_mov_b32 v{i}, 0')
        a.emit(f's_cmp_lg_u32 s{S_WN}, 0')
        a.emit(f's_cbranch_scc1 L_{kind}_loopb')
        clear_flags(a, 1, 4 if CLQ else 0)
    def post():
        a.emit('v_and_b32 v32, 3, v1')
        a.emit('v_cmp_eq_u32 s[4:5], 1, v32')
        a.emit('v_cmp_eq_u32 s[6:7], 2, v32')
        a.emit('v_cmp_eq_u32 s[8:9], 3, v32')
        a.emit('v_bfe_u32 v33, v1, 2, 2')
        a.emit('v_lshrrev_b32 v34, 4, v1')
        a.emit('v_cmp_eq_u32 s[10:11], v33, v34')
        a.emit(f's_lshl_b32 s3, s{S_WN}, 7')
        a.emit(f'v_add_u32 v35, s3, v{VS1}')
        a.emit('v_and_b32 v36, 15, v1')
        a.emit(f's_cmp_eq_u32 s{S_WV}, 0')
        a.emit('s_cselect_b32 s3, 0, 576')
        a.emit(f's_add_u32 s3, s3, {LST}')
        a.emit('v_lshl_add_u32 v36, v36, 2, s3')
        for (sm, sq) in SA:
            a.emit(f'v_cndmask_b32 v{sm+1}, v{sq}, v{sq+1}, s[4:5]')
        for (sm, sq) in SA:
            a.emit(f'v_cndmask_b32 v{sm+1}, v{sm+1}, v{sq+2}, s[6:7]')
        for (sm, sq) in SA:
            a.emit(f'v_cndmask_b32 v{sm+1}, v{sm+1}, v{sq+3}, s[8:9]')
        for (sm, sq) in SA: stats_finish(a, sm)
        a.emit('s_mov_b64 exec, s[10:11]')
        a.emit(f'ds_write2_b32 v35, v{SA[0][0]}, v{SA[0][0]+1} offset0:16 offset1:176')
        a.emit(f'ds_write2_b32 v35, v{SA[1][0]}, v{SA[1][0]+1} offset0:32 offset1:192')
        a.emit(f'ds_write2_b32 v36, v{SA[2][0]}, v{SA[2][0]+1} offset0:0 offset1:160')
        a.emit('s_mov_b64 exec, -1')
        if XD:
            res_addr(a, S_WV, SX, 32)
        a.emit('s_waitcnt lgkmcnt(0)')
        if XD:
            for i in range(4):
                a.emit(f'buffer_load_dwordx4 v[{240+4*i}:{243+4*i}], v32, s[{SX}:{SX+3}], s{3+(i>>1)} offen offset:{64*(i&1)}')
        a.emit('s_barrier')
    own = lambda s: [mfma(acc(jn, jm), *((fw(s, jn), fx(s, jm)) if jn < 4 else (fx(s, jm), fw(s, jn))), None if s else '0') for jn, jm in mf_order(6, 4)]
    hw = lambda ks, c: fw(1, 2 * c) if ks else fx(1, c)
    hal = ([f'v_mov_b32 v{fx(1,c)+i}, v{fw(0,2*c)+i}' for c in range(3) for i in range(4)],
           [f'ds_read_b128 v[{fx(1,3+ks)}:{fx(1,3+ks)+3}], v{VA+4+ks} offset:{HX - XH - STAGE}' for ks in range(2)],
           [mfma(HACC + 4 * c, *((hw(ks, c), fx(1, 3 + ks)) if c < 2 else (fx(1, 3 + ks), hw(ks, c))), None if ks else '0') for ks in range(2) for c in range(3)])
    hooks = None
    if DS:
        HK = [int(x) for x in ENV('HK', '-1,-2,-4,-5,11,13').split(',')]
        def dots(s):
            o = [f's_cmp_lg_u32 s{S_WN}, 0', f's_cbranch_scc1 L_{kind}_dot{s}']
            for hh in range(2):
                for j in range(8):
                    r = fx(s, 2 * hh) + (j >> 1) + 4 * (j & 1)
                    o += [f'v_dot2_f32_bf16 v{122+(j&1)}, v{r}, s7, v{122+(j&1)}', f'v_dot2_f32_bf16 v{124+(j&1)}, v{r}, v{r}, v{124+(j&1)}']
                o += [f'L_{kind}_dote{s}:'] if hh else [f's_branch L_{kind}_dote{s}', f'L_{kind}_dot{s}:']
            return o
        h1 = dots(1) + ['s_nop 2', 'v_permlane32_swap_b32 v122, v123', 'v_permlane32_swap_b32 v124, v125', 'v_add_f32 v122, v122, v123', 'v_add_f32 v124, v124, v125',
               'v_mov_b32 v126, 1', 's_nop 0', 'v_permlane16_swap_b32 v122, v124', 'v_add_f32 v122, v122, v124', f'buffer_store_dword v122, v120, s[{ST}:{ST+3}], 0 offen sc1']
        w0 = [f's_cmp_lg_u32 s{S_WV}, 0', f's_cbranch_scc1 L_{kind}_loop']
        pl = f'buffer_load_dword v127, v121, s[{SC}:{SC+3}], 0 offen sc1'
        b = Asm(); res_addr(b, S_WV, SX, 122); rs = [l.strip() for l in b.lines] + res_loads(240, 122, SX)
        hooks = list(zip(HK + [int(ENV('HKR', '14'))], [dots(0), h1, ['s_waitcnt vmcnt(0)'],
            w0 + [f's_lshl4_add_u32 s3, s{S_MT}, s{S_NT}', 's_mov_b64 exec, 1', f'buffer_store_byte v126, off, s[{SC}:{SC+3}], s3 sc1', 's_mov_b64 exec, -1'], w0 + [pl],
            w0 + ['s_mov_b32 s5, 0x100000', 'L_attn_chkl:', 's_waitcnt vmcnt(0)', 'v_cmp_ne_u32 vcc, 0x01010101, v127', f's_cbranch_vccz L_{kind}_loop',
                  pl, 's_sub_u32 s5, s5, 1', 's_cbranch_scc0 L_attn_chkl'], rs]))
        assert HK[:2] == [-1, -2]
        if D2: hooks = [(-1, dots(0) + pads.chain('h0') + w0 + hooks[2][1] + hooks[3][1][2:]), (-2, [x.replace('v_mov_b32 v126, 1', 's_nop 0') for x in h1] + pads.chain('h1')), hooks[-1]]
        if ENV('XSL'):
            xs = [int(x) for x in ENV('XSL').split(',')]
            hooks[1] = (hooks[1][0], hooks[1][1] + [f's_sleep {xs[0]}'])
            hooks[2] = (hooks[2][0], hooks[2][1] + [f's_sleep {xs[1]}'])
    assert ot or not DS
    PR = 32
    CS = 48
    CV = 64
    MS = 66
    RK = 76
    M4 = 84
    R4 = 104
    VV = [4 if XD else 240, 224]
    if PT: RK = 120; M4 = 76; R4 = 96
    sc = 32 ** -0.5 * 1.4426950408889634
    rms = [f'ds_read2_b32 v[{MS+2*b}:{MS+2*b+1}], v{VS1} offset0:{16*b} offset1:{160+16*b}' for b in range(5)]
    rrk = [f'ds_read2_b32 v[{RK+4*k+2*p}:{RK+4*k+2*p+1}], v{VKB if k else VKA} offset0:{32*p} offset1:{32*p+16}' for p in range(2) for k in range(2)]
    wh = [f'ds_write_b128 v{VXW}, v[{HACC+4*c}:{HACC+4*c+3}] offset:{2048*c}' for c in range(3)]
    wp = [f'ds_write_b128 v{VA if PT else VXW}, v[{acc(t,3)}:{acc(t,3)+3}] offset:{6144+1024*t}' for t in range(2, 6)]
    rm4 = [f'ds_read_b128 v[{r+4*b}:{r+4*b+3}], v{VS4} offset:{o+64*b}' for b in range(5) for r, o in ((M4, 0), (R4, 640))]
    rcs = [f'ds_read_b128 v[{CS+4*t}:{CS+4*t+3}], v{VCO if t&1 else VCE} offset:{1024*t}' for t in range(4)]
    rcv = [f'ds_read_b32 v{CV+t}, v{VVO if t else VVE} offset:{4096+1024*t}' for t in range(2)]
    rpr = [f'ds_read_b128 v[{PR+4*t}:{PR+4*t+3}], v{VPO if t&1 else VPE} offset:{2048+1024*t}' for t in range(4)]
    mul = [f'v_mul_f32 v{MS+2*b+3}, {f2u(sc):#x}, v{MS+2*b+3}' for b in range(4)] + [f'v_mul_f32 v{RK+4*k+b}, v{RK+4*k+b}, v{MS+2*b+3}' for b in range(4) for k in range(2)]
    tail = None
    if PT:
        assert WE < 0
        dst = lambda m: int(m.split('[')[1].split(':')[0])
        first = [HACC, HACC + 4, acc(2, 3), acc(3, 3), HACC + 8, acc(4, 3), acc(5, 3)]
        ms = sorted(mf(1), key=lambda m: first.index(dst(m)) if dst(m) in first else 9)
        wr = wh[:2] + wp[:2] + wh[2:] + wp[2:]
        XB_ = int(ENV('PTB', '16'))
        fl = {i: rms[i:i + 1] + rrk[i:i + 1] for i in range(5)}
        for i in range(7): fl[5 + i] = [wr[i]]
        fl[XB_] = ['s_waitcnt lgkmcnt(0)', 's_barrier']
        rest = rcs + rpr[:2] + rcv + rpr[2:] + mul
        for i in range(XB_ + 1, 27): fl[i] = rest[:2]; del rest[:2]
        tail = ([f'v_lshl_add_u32 v{VA}, s{S_WM}, 15, v{VXW}'], weave(ms, fl) + rest)
    if PT == 2:
        P0, W0, WS_, XB_ = [int(x) for x in ENV('PTP', '14,21,3,45').split(',')]
        m0 = sorted(mf(0), key=lambda m: first.index(dst(m)) if dst(m) in first else 9)
        ms = m0[:P0] + ms[:7] + m0[P0:] + ms[7:]
        r1 = reads(1, 1); r1 = r1[4:7] + r1[9:11] + r1[3:4] + r1[11:] + r1[:3] + r1[7:9]
        fl = {i: [r1[i]] for i in range(17)}
        fl[0] += [f's_mul_i32 s3, s{S_WM}, -32768']; fl[1] += [f'v_add_u32 v{VA}, s3, v{VXW}']
        fl[P0 - 1] = fl.get(P0 - 1, []) + [f's_waitcnt lgkmcnt({max(0, min(P0, 17) - 12)})']
        for i in range(7): fl[W0 + WS_ * i] = fl.get(W0 + WS_ * i, []) + [wr[i]]
        assert P0 >= 12 and W0 >= 17
        fl[33] = fl.get(33, []) + [f's_waitcnt lgkmcnt({sum(W0 + WS_ * i <= 33 for i in range(7))})']
        fl[XB_] = ['s_waitcnt lgkmcnt(0)', 's_barrier']
        rest = rcs[:2] + rms[1:2] + rcs[2:] + rms[2:] + rms[:1] + rpr + rcv + rrk
        NL = len(rest) - 5
        for i in range(XB_ + 1, 54): fl[i] = rest[:2]; del rest[:2]
        NL -= len(rest); rm4 = rest + rm4
        tail = (None, weave(ms, fl))
    big_loop(a, kind, N, S, STAGE, 6, VB, VA, reads, mf, variants=None if DS else {'a': mfv(0), 'b': mfv(1)}, select=select, post=post, mid=mid, hooks=hooks,
             ot=own if ot else None, halo=hal if ot else None, tail=tail)
    if not PT:
        for x in rms + rrk + wh: a.emit(x)
        a.emit(f's_cmp_eq_u32 s{S_WM}, 1')
        a.emit(f's_cbranch_scc1 L_{kind}_nop3')
        for x in wp: a.emit(x)
        a.label(f'L_{kind}_nop3')
        for x in rm4: a.emit(x)
        a.emit('s_waitcnt lgkmcnt(10)')
        a.emit('s_barrier')
        for x in rcs + rcv + rpr + mul: a.emit(x)
    a.emit(f's_waitcnt lgkmcnt({NL if PT == 2 else 6})')
    def qk(x, y, cs, b, d):
        m = f'v[{MS+2*b}:{MS+2*b+1}]'
        for (z, c) in ((x, cs), (y, cs + 4)):
            for h in range(2):
                a.emit(f'v_pk_fma_f32 v[{z+2*h}:{z+2*h+1}], v[{c+2*h}:{c+2*h+1}], {m}, v[{z+2*h}:{z+2*h+1}] op_sel:[0,0,0] op_sel_hi:[1,0,1] neg_lo:[0,1,0] neg_hi:[0,1,0]')
        a.emit(f'v_cvt_pk_bf16_f32 v{d}, v{x}, v{x+1}')
        a.emit(f'v_cvt_pk_bf16_f32 v{d+1}, v{x+2}, v{x+3}')
        a.emit(f'v_cvt_pk_bf16_f32 v{d+2}, v{y}, v{y+1}')
        a.emit(f'v_cvt_pk_bf16_f32 v{d+3}, v{y+2}, v{y+3}')
    Q = lambda b: acc(0, b); Kf = lambda b: acc(2, b) if b >= 0 else PR
    Sc = lambda b: acc(1, b); Sp = lambda b: acc(3, b)
    for b in range(4):
        qk(acc(0, b), acc(1, b), CS, b + 1, Q(b))
        nr = (len(rm4) + 5) // 6
        for x in rm4[2*nr*b:2*nr*b+nr] if PT else []: a.emit(x)
        qk(acc(2, b), acc(3, b), CS + 8, b + 1, Kf(b))
        if PT == 2 and b == 0:
            assert NL >= 3
            a.emit(f's_waitcnt lgkmcnt({NL - 3 + nr})')
        for x in rm4[2*nr*b+nr:2*nr*b+2*nr] if PT else []: a.emit(x)
        if b == 3:
            a.emit('s_waitcnt lgkmcnt(0)')
            qk(PR, PR + 4, CS + 8, 0, PR)
        if b >= 1:
            a.emit(mfma(Sc(b - 1), Kf(b - 1), Q(b - 1), '0'))
            if b >= 2: a.emit(mfma(Sp(b - 1), Kf(b - 2), Q(b - 1), '0'))
    a.emit(mfma(Sc(3), Kf(3), Q(3), '0'))
    a.emit(mfma(Sp(3), Kf(2), Q(3), '0'))
    a.emit(mfma(Sp(0), Kf(-1), Q(0), '0'))
    for x in mul if PT == 2 else []: a.emit(x)
    def vconv(x, t, b):
        cv = f'v[{CV}:{CV+1}]'
        for h in range(2):
            a.emit(f'v_pk_fma_f32 v[{x+2*h}:{x+2*h+1}], v[{M4+4*b+2*h}:{M4+4*b+2*h+1}], {cv}, v[{x+2*h}:{x+2*h+1}] op_sel:[0,{t},0] op_sel_hi:[1,{t},1] neg_lo:[1,0,0] neg_hi:[1,0,0]')
        for h in range(2):
            a.emit(f'v_pk_mul_f32 v[{x+2*h}:{x+2*h+1}], v[{x+2*h}:{x+2*h+1}], v[{R4+4*b+2*h}:{R4+4*b+2*h+1}]')
        for h in range(2):
            a.emit(f'v_cvt_pk_bf16_f32 v{VV[t]+2*b+h}, v{x+2*h}, v{x+2*h+1}')
    for t in range(2):
        vconv(PR + 8 + 4 * t, t, 0)
        for b in range(4): vconv(acc(4 + t, b), t, b + 1)
    T = lambda b: 32 + 4 * b
    odd = f's[{M_ODD}:{M_ODD+1}]'
    for b in (1, 2, 3, 0):
        a.emit(f'v_cndmask_b32 v{Sc(b)}, v{Sc(b)}, v{Sc(b)+1}, {odd}')
        a.emit(f'v_cndmask_b32 v{Sp(b)}, v{Sp(b)}, v{Sp(b)+1}, {odd}')
        a.emit(f'v_cndmask_b32 v{Sc(b)+2}, v{Sc(b)+2}, v{Sc(b)+3}, {odd}')
        a.emit(f'v_cndmask_b32 v{Sp(b)+2}, v{Sp(b)+2}, v{Sp(b)+3}, {odd}')
        a.emit(f'v_cndmask_b32 v{T(b)}, v{Sc(b)}, v{Sp(b)}, s[{M_UPA}:{M_UPA+1}]')
        a.emit(f'v_cndmask_b32 v{T(b)+1}, v{Sc(b)+2}, v{Sp(b)+2}, s[{M_UPB}:{M_UPB+1}]')
        a.emit(f'v_mul_f32 v{T(b)}, v{T(b)}, v{RK+b}')
        a.emit(f'v_mul_f32 v{T(b)+1}, v{T(b)+1}, v{RK+4+b}')
    a.emit(f'v_mov_b32 v48, {f2u(-1e9 * 1.4426950408889634):#x}')
    a.emit(f'v_cndmask_b32 v{T(0)}, v{T(0)}, v48, s[{M_FA}:{M_FA+1}]')
    a.emit(f'v_cndmask_b32 v{T(0)+1}, v{T(0)+1}, v48, s[{M_FB}:{M_FB+1}]')
    for b in range(4): a.emit(f'v_max_f32 v{T(b)+2}, v{T(b)}, v{T(b)+1}')
    for op in ('32', '16'):
        for b in range(4): a.emit(f'v_mov_b32 v{T(b)+3}, v{T(b)+2}')
        for b in range(4): a.emit(f'v_permlane{op}_swap_b32 v{T(b)+2}, v{T(b)+3}')
        for b in range(4): a.emit(f'v_max_f32 v{T(b)+2}, v{T(b)+2}, v{T(b)+3}')
    for b in range(4):
        a.emit(f'v_sub_f32 v{T(b)}, v{T(b)}, v{T(b)+2}')
        a.emit(f'v_sub_f32 v{T(b)+1}, v{T(b)+1}, v{T(b)+2}')
    for b in range(4):
        a.emit(f'v_exp_f32 v{T(b)}, v{T(b)}')
        a.emit(f'v_exp_f32 v{T(b)+1}, v{T(b)+1}')
    P = lambda b: acc(0, b)
    for b in range(4):
        a.emit(f'v_cvt_pk_bf16_f32 v{T(b)}, v{T(b)}, v{T(b)}')
        a.emit(f'v_cvt_pk_bf16_f32 v{T(b)+1}, v{T(b)+1}, v{T(b)+1}')
        a.emit(f'v_and_b32 v{P(b)}, v{T(b)}, v{MAP}')
        a.emit(f'v_and_b32 v{P(b)+1}, v{T(b)+1}, v{MBP}')
        a.emit(f'v_and_b32 v{P(b)+2}, v{T(b)}, v{MAC}')
        a.emit(f'v_and_b32 v{P(b)+3}, v{T(b)+1}, v{MBC}')
        if b >= 1:
            q = b - 1
            a.emit(mfma(acc(1, q), ONES, P(q), '0'))
            a.emit(mfma(acc(4, q), VV[0] + 2 * q, P(q), '0'))
            a.emit(mfma(acc(5, q), VV[1] + 2 * q, P(q), '0'))
    q = 3
    a.emit(mfma(acc(1, q), ONES, P(q), '0'))
    a.emit(mfma(acc(4, q), VV[0] + 2 * q, P(q), '0'))
    a.emit(mfma(acc(5, q), VV[1] + 2 * q, P(q), '0'))
    if ENV('ES'): stamp(a, 1)
    no = 'wo' in NS
    if no:
        a.emit(f's_cmp_eq_u32 s{S_WM}, 1')
        a.emit(f's_cbranch_scc1 L_{kind}_out1')
    for w in range(2 if no else 1):
        if w: a.label(f'L_{kind}_out1')
        for b in range(4):
            r = acc(1, b); d = 48 + 4 * b
            a.emit(f'v_rcp_f32 v{r}, v{r}')
            a.emit(f's_mov_b32 s3, {b * 16 * (7168 if OH else 2048)}')
            for t in range(2):
                x = acc(4 + t, b)
                for h in range(2):
                    a.emit(f'v_pk_mul_f32 v[{x+2*h}:{x+2*h+1}], v[{x+2*h}:{x+2*h+1}], v[{r}:{r+1}] op_sel_hi:[1,0]')
            for t in range(2):
                x = acc(4 + t, b)
                for h in range(2):
                    a.emit(f'v_cvt_pk_bf16_f32 v{d+2*(t^w)+h}, v{x+2*h}, v{x+2*h+1}')
            if not no:
                a.emit('s_nop 1')
                a.emit(f'v_permlane16_swap_b32 v{d}, v{d+2}')
                a.emit(f'v_permlane16_swap_b32 v{d+1}, v{d+3}')
            a.emit(f'buffer_store_dwordx4 v[{d}:{d+3}], v{VO}, s[{SO}:{SO+3}], s3 offen{stf(kind)}')
        if no and not w: a.emit(f's_branch L_{kind}_out2')
    if no: a.label(f'L_{kind}_out2')
    compute_end(a, kind)
    a.label(f'L_{kind}_loader')
    L = Loader(a, kind, K, lda2, ldw2, [0, 2048, 4096], 128, S, STAGE, halo=XH, rot=int(ENV('ROT_QKV', '0')))
    L.skip = DS
    L.setup()
    a.emit('s_waitcnt lgkmcnt(0)')
    srd_xs(a, SX); srd(a, SW, 'wqkv', 0, 1024 * 6144)
    import sides
    fill = []
    if ENV('DX', '2') == '1' and ENV('CLP', 'e') == 'l':
        a.emit('s_and_b32 s3, s2, 3')
        a.emit(f's_and_b32 s4, s{S_CU}, 3')
        a.emit('s_lshl2_add_u32 s3, s3, s4')
        a.emit('s_bfe_u32 s4, s2, 0x10002')
        a.emit(f's_lshr_b32 s5, s{S_CU}, 2')
        a.emit('s_lshl1_add_u32 s4, s5, s4')
        a.emit('s_lshl4_add_u32 s3, s3, s4')
        a.emit(f's_and_b32 s4, s{S_WV}, 3')
        a.emit('s_lshl2_add_u32 s3, s3, s4')
        a.emit('s_lshl_b32 s3, s3, 12')
        srd(a, SB, 'ws', WS_XP, 0 if 'fill0' in DBG else 4096)
        if 'fillfl' in DBG:
            srd(a, SB, 'ws0', WS_FL + MB, 4096)
            a.emit('s_and_b32 s3, s3, 0xfffff')
        a.emit(f's_add_u32 s{SB}, s{SB}, s3')
        a.emit(f's_addc_u32 s{SB+1}, s{SB+1}, 0')
        FW_ = int(ENV('FILLW', '2'))
        a.emit(f'v_mul_u32_u24 v29, {4 * FW_}, v1')
        for i in range(4): a.emit(f'v_mov_b32 v{24+i}, -1')
        fill = [f'buffer_store_dword{"x" + str(FW_)} v[24:{23 + FW_}], v29, s[{SB}:{SB+3}], 0 offen' + ('' if 'fillwb' in DBG else ' sc1'), f'v_add_u32 v29, {256 * FW_}, v29']
        assert sides.STV[3] == 0
    a.emit(f's_cmp_lg_u32 s{S_LAYER}, 0')
    a.emit(f's_cbranch_scc1 L_{kind}_ld1')
    post = list(sides.stouch_post(a, kind)) + fill
    SPF = [int(x) for x in ENV('SPF', '0,0,2').split(',')]
    def spf():
        hs = range(SPF[2])
        return ([f's_buffer_load_dword s84, s[{SX}:{SX+3}], s85 offset:{2048*r+64*h}' for r in range(2) for h in hs] +
                [f's_buffer_load_dword s84, s[{SW}:{SW+3}], s86 offset:{2048*p+64*h}' for p in range(3) for h in hs] +
                ['s_add_u32 s85, s85, 128', f's_add_u32 s86, s86, {64*ldw2}'])
    def spf_start():
        if not SPF[1]: return
        a.emit(f's_and_b32 s3, s{S_WV}, 3')
        a.emit(f's_lshl2_add_u32 s3, s{S_CU}, s3')
        a.emit('s_and_b32 s4, s2, 1')
        a.emit('s_bfe_u32 s5, s2, 0x20001')
        a.emit('s_lshl2_add_u32 s85, s4, s5')
        a.emit('s_lshl_b32 s85, s85, 7')
        a.emit('s_add_u32 s85, s85, s3')
        a.emit('s_lshl_b32 s85, s85, 12')
        a.emit(f's_add_u32 s85, s85, {128*SPF[0]}')
        a.emit('s_lshl_b32 s4, s4, 5')
        a.emit(f's_add_u32 s4, s4, s{S_CU}')
        a.emit(f's_add_u32 s4, s4, {64*SPF[0]}')
        a.emit(f's_mul_i32 s86, s4, {ldw2}')
        a.emit('s_and_b32 s3, s3, 3')
        a.emit('s_lshl2_add_u32 s3, s5, s3')
        a.emit('s_lshl_b32 s3, s3, 7')
        a.emit('s_add_u32 s86, s86, s3')
        for i in range(SPF[0], SPF[1]):
            for x in spf(): a.emit(x)
    if SPF[1]: post += spf()
    VPF = [int(x) for x in ENV('VPF', '0,0,1').split(',')]
    def vpf():
        k0, nk, hs = VPF
        if not nk: return 0
        a.emit(f's_and_b32 s3, s{S_WV}, 3')
        a.emit(f's_lshl2_add_u32 s3, s{S_CU}, s3')
        a.emit('s_and_b32 s4, s2, 1')
        a.emit('s_bfe_u32 s5, s2, 0x20001')
        a.emit('s_lshl2_add_u32 s85, s4, s5')
        a.emit('s_lshl_b32 s85, s85, 7')
        a.emit('s_add_u32 s85, s85, s3')
        a.emit('s_lshl_b32 s85, s85, 12')
        a.emit('s_lshl_b32 s4, s4, 7')
        a.emit('s_add_u32 s4, s4, s3')
        a.emit(f's_add_u32 s4, s4, {64*k0}')
        a.emit(f's_mul_i32 s86, s4, {ldw2}')
        a.emit('s_lshl_b32 s5, s5, 9')
        a.emit('s_add_u32 s86, s86, s5')
        a.emit('v_and_b32 v2, 15, v1')
        a.emit(f'v_min_u32 v3, {nk-1}, v2')
        a.emit('v_and_b32 v22, 16, v1')
        a.emit('v_add_lshl_u32 v22, v22, v3, 7')
        a.emit('v_min_u32 v2, 11, v2')
        a.emit('v_lshrrev_b32 v3, 2, v2')
        a.emit('v_and_b32 v2, 3, v2')
        a.emit('v_lshl_add_u32 v2, v3, 4, v2')
        a.emit('v_lshrrev_b32 v3, 4, v1')
        a.emit(f'v_min_u32 v3, {nk//4-1}, v3')
        a.emit(f'v_mul_u32_u24 v3, {256*ldw2}, v3')
        a.emit('v_lshl_add_u32 v23, v2, 7, v3')
        for h in range(hs):
            a.emit(f'buffer_load_dword v24, v23, s[{SW}:{SW+3}], s86 offen offset:{64*h}')
            a.emit(f'buffer_load_dword v25, v22, s[{SX}:{SX+3}], s85 offen offset:{128*k0+64*h}')
        return 2 * hs
    TG_ = int(ENV('TLBG', '0'))
    if TG_:
        srd(a, SO, 'ws0', 0, 256 * MB)
        a.emit(f's_and_b32 s3, s{S_WV}, 3')
        a.emit(f's_lshl2_add_u32 s3, s{S_CU}, s3')
        a.emit(f's_lshl_b32 s86, s3, {TG_}')
        tl = [f's_buffer_load_dword s84, s[{SO}:{SO+3}], s86', f's_add_u32 s86, s86, {128 << TG_}']
        if TG_ < 21: post += tl
    extra = tail_parks('wo', SP, lambda b: srd(b, SP, 'wo', 0, 2 * MB))
    sch0 = [int(c) for c in ENV('TSO0', '00000')]
    extra0 = tail_parks('wo', SP, lambda b: srd(b, SP, 'wo', 0, 2 * MB), sch0 + [sum(TSCH['wo']) - sum(sch0)])
    npk = 2 * sum(TSCH['wo']) if XD else 0
    def start():
        sides.cls_touch(a)
        if TG_:
            for x in tl: a.emit(x)
            a.emit(f's_and_b32 s3, s{S_WV}, 3')
            a.emit(f's_lshl2_add_u32 s3, s{S_CU}, s3')
            for w, sz in (('out', 4 * MB), ('wo', 2 * MB), ('w1', 7 * MB), ('b1', 4096), ('b2', 2048)):
                srd(a, SC, w, 0, sz)
                a.emit(f's_mul_i32 s4, s3, {sz // 128}')
                a.emit(f's_buffer_load_dword s84, s[{SC}:{SC+3}], s4')
        if ENV('DX', '2') != '1' or ENV('CLP', 'e') != 's': return 0
        srd(a, ST, 'ws0', WS_XP, LSTR + 4 * MB)
        a.emit('s_and_b32 s3, s2, 3')
        a.emit(f's_and_b32 s4, s{S_CU}, 3')
        a.emit('s_lshl2_add_u32 s3, s3, s4')
        a.emit('s_bfe_u32 s4, s2, 0x10002')
        a.emit(f's_lshr_b32 s5, s{S_CU}, 2')
        a.emit('s_lshl1_add_u32 s4, s5, s4')
        a.emit('s_lshl4_add_u32 s3, s3, s4')
        a.emit(f's_and_b32 s4, s{S_WV}, 3')
        a.emit('s_lshl2_add_u32 s3, s3, s4')
        a.emit('s_lshl_b32 s3, s3, 12')
        a.emit(f's_add_u32 s4, s3, {LSTR}')
        a.emit('v_lshlrev_b32 v2, 4, v1')
        for i in range(4): a.emit(f'v_mov_b32 v{32+i}, -1')
        for i in range(8): a.emit(f'buffer_store_dwordx4 v[32:35], v2, s[{ST}:{ST+3}], s{3+(i>>2)} offen offset:{1024*(i&3)} sc1')
        return 8
    final0 = None
    TL0 = int(ENV('TL0', '1' if DS else '0'))
    if DS:
        STQ0 = int(ENV('STQ0', '14'))
        assert HK[-1] < STQ0 <= 13 + TL0
        def start():
            nv = vpf()
            if sides.CE:
                assert sum(sides.CE.values()) == 8
                sides.cs_setup(a, SB, 95, 26)
                for x in sides.cs_at(-1): a.emit(x)
                nv += sides.CE.get(-1, 0)
            spf_start()
            sides.cls_touch(a)
            srd(a, ST, 'ws0', WS_ST0, 16 * 16384)
            stats4_setup(a, True)
            if D2:
                if CF == 2: a.emit('v_lshlrev_b32 v20, 2, v1')
                else: dbg_off(a, 20)
                a.emit(f's_and_b32 s{SC+1}, s{SC+1}, 0xffff')
                a.emit(f's_mov_b32 s{SC+2}, 256')
                a.emit(f's_mov_b32 s{SC+3}, 0x00020000')
            for x in pads.chain(-1): a.emit(x)
            return nv
        pl2 = f'buffer_load_dword v21, v20, s[{SC}:{SC+3}], 0 offen sc1'
        ck2 = ['s_mov_b32 s5, 0x100000', 'L_attn_dchk:', 'v_or_b32 v13, 0xfefefefe, v21', 'v_cmp_ne_u32 vcc, -1, v13', 's_cbranch_vccz L_attn_dok', 's_sub_u32 s5, s5, 1\n  ' + pl2,
               's_waitcnt vmcnt(0)', 's_cbranch_scc0 L_attn_dchk', 'L_attn_dok:'] if D2 else []
        extra0 = lambda i: (ck2 + stats4_loads(32, True) if i == STQ0 else [pl2] if D2 and i == STQ0 - 3 else []) + sides.cs_at(i) + sides.cs_acc(i) + pads.chain(i)
        def chk0():
            a.emit('v_cmp_u_f32 vcc, v32, v33')
            a.emit('v_cmp_u_f32 s[4:5], v48, v49')
            a.emit('s_or_b64 s[4:5], vcc, s[4:5]')
            a.emit('s_cbranch_scc0 L_attn_sok')
            a.emit(f's_sub_u32 s{S_CNT}, s{S_CNT}, 1')
            a.emit('s_cbranch_scc1 L_attn_sok')
            for x in stats4_loads(32, True): a.emit(x + (' sc1' if x.startswith('buf') else ''))
            a.emit('s_waitcnt vmcnt(0)')
            a.emit('s_branch L_attn_schk')
            a.label('L_attn_sok')
        def final0():
            a.emit(f's_mov_b32 s{S_CNT}, 0x4000')
            a.emit(f"s_waitcnt vmcnt({side(Asm(), 0, 'issue') + sum(n for e, n in sides.CE.items() if e >= STQ0)})")
            if CF and ENV('CFP', 'b') == 'a': a.emit(sides.CS_ST)
            a.label('L_attn_schk')
            stats4_store(a, 32, LST, True, chk0 if D2 else None)
            if CF and ENV('CFP', 'b') == 'b': a.emit(sides.CS_ST)
            a.emit('s_waitcnt lgkmcnt(0)')
    L.run('0', tail_issue=lambda: side(a, 0, 'issue'), ntail_vm=side(Asm(), 0, 'issue'), post=post, start=start, extra=extra0, tail_late=TL0, final=final0, exfirst=True)
    if CF and ENV('CFP', 'b') == 'c': a.emit(sides.CS_ST)
    for i in (16,) if DS else (16, 17):
        if XD:
            for x in extra0(i): a.emit(x)
        if WE < 0 and PT != 2: a.emit('s_barrier')
    if XD:
        for x in extra0(18): a.emit(x)
    if ONE:
        a.emit(f's_branch L_{kind}_ldend')
    else:
        side(a, 0, 'finish')
        a.emit('s_endpgm')
    a.label(f'L_{kind}_ld1')
    if ',' in L.kord():
        L.ktable(int(L.kord().split(',')[1]))
        L.ot = int(ot); L.hx = HX - XH
        for x in ([] if ot else L.knext()): a.emit(x)
    srd(a, ST, 'ws0', WS_ST2, 16 * 16384)
    n1 = side(Asm(), 1, 'issue')
    def tail1():
        stats_loads(a, 32, True)
        side(a, 1, 'issue')
    def final1():
        a.emit(f's_waitcnt vmcnt({n1 + npk})')
        stats_reduce_store(a, 32, LST)
        a.emit('s_waitcnt lgkmcnt(0)')
    if T4:
        stats4_setup(a, True)
        TL1 = int(ENV('TL1', '0'))
        def final4():
            a.emit(f"s_waitcnt vmcnt({n1 if int(ENV('STQ', '14')) < 13 + TL1 < 15 else 0})")
            stats4_store(a, 32, LST, True, nan_chk(a, 'L_attn_t', True) if SF else None)
            a.emit('s_waitcnt lgkmcnt(0)')
        if ZD:
            srd(a, SC, 'ws0', WS_FL, FLS)
            a.emit('v_and_b32 v30, 3, v1')
            a.emit('v_lshlrev_b32 v30, 6, v30')
            a.emit(f's_mov_b32 s{S_CNT}, 0x100000')
        def zbar():
            xpoll(a, 'L_attn_x', SC, S_Q, 30, 12)
            a.emit('s_barrier')
        def pref1():
            if ZD == 'b': zbar()
            a.emit('s_waitcnt vmcnt(0)')
        if ZD == 'a': zbar()
        L.run('1', tail_issue=lambda: side(a, 1, 'issue'), ntail_vm=n1, tail_late=TL1, final=final4, extra=lambda i: stats4_loads(32, True) if i == int(ENV('STQ', '14')) else [],
              post=fill, dep=lambda pf: dep_wait(a, kind, halo=True, postf=pf, pref=pref1 if ot else None))
    else: L.run('1', tail_issue=tail1, ntail_vm=16 + n1, final=final1, extra=extra, post=fill, dep=(lambda pf: dep_wait(a, kind, halo=True, postf=pf)) if MEGA else None)
    if WE < 0 and PT != 2: a.emit('s_barrier')
    if not MEGA: side(a, 1, 'finish')
    a.label(f'L_{kind}_ldend')
    loader_end(a, kind, check=False)
    a.label(end)
    a.emit('s_endpgm')
    loader_first(a, kind)
    a(KD.format(name=f'{kind}l0_kernel'))
    if not MEGA:
        stub(a, f'{kind}l1_kernel', body, 1, tsidx + 4, False)
        a(KD.format(name=f'{kind}l1_kernel'))
    a.label(f'L_{kind}_c1')
    return LST + 1280
```

```python
import sys, os, struct
sys.path.insert(0, os.path.join(os.path.dirname(os.path.abspath(__file__)), '..'))
from asmlib import Asm, check_offsets
MB = 1 << 20
WSB = int(os.environ.get('WSB', '0')) * MB
WS_O   = WSB
WS_X1  = WSB + 4 * MB
WS_H   = WSB + 8 * MB
WS_ST  = WSB + 23 * MB
WS_CS  = WSB + 23 * MB + 512 * 1024
WS_ST0 = WSB + 22 * MB + 512 * 1024
D2 = os.environ.get('DS', '2') == '2'
DS = os.environ.get('DS', '2') in '12'
WS_TS  = 60 * MB
MEGA = os.environ.get('MEGA', '2') in ('1', '2')
ONE = os.environ.get('MEGA', '2') == '2'
LSTR = int(os.environ.get('LSTR', '64')) * MB
WS_ST2 = WS_ST + 256 * 1024 if MEGA else WS_ST
WS_FL = WSB + 40 * MB
FLS = 524288
REP = int(os.environ.get('REP', '16'))
WS_XP = WSB + 24 * MB
WS_X2 = WSB + 32 * MB
XPAD = int(os.environ.get('XPAD', '128')) if MEGA else 0
f2u = lambda f: struct.unpack('<I', struct.pack('<f', f))[0]
ENV = os.environ.get
TS = ENV('TS', '')
TE = ENV('TE', '')
DBG = ENV('DBG', '').split(',')
EARLY = int(ENV('EARLY', '0')) if MEGA and ENV('SPLIT', '0') == '0' else 0
def stf(kind): return (' ' + ENV('WTF', 'sc1')) if kind in ENV('WT', 'attn,wo,w2,w1').split(',') else ''

KA = {'A_x': 0, 'wqkv': 8, 'wo': 16, 'w1': 32, 'b1': 40, 'w2': 48, 'b2': 56, 'out': 64, 'ws': 80}
P_IN = 16
P_OUT = 32; P_WS = 34
P_XS = 12
PTR = {'A_x': 16, 'wqkv': 18, 'wo': 20, 'w1': 24, 'b1': 26, 'w2': 28, 'b2': 30, 'out': 32, 'ws': 34, 'xs': 12, 'ws0': 22}
SX, SW, SO, SR, SB, ST, SP, SC = 36, 40, 44, 48, 52, 56, 60, 64
S_MT, S_NT, S_WV, S_WM, S_WN = 68, 69, 70, 71, 72
S_KX, S_KW, S_SLOT, S_XD, S_WD, S_HD, S_CNT = 73, 74, 75, 76, 77, 78, 79
S_LAYER = 96; S_TSI = 97; S_T = 98; S_CU = 99; S_XG = 100; S_KT = 101

KD = '''.section .rodata,"a"
.p2align 6
.amdhsa_kernel {name}
  .amdhsa_next_free_vgpr 256
  .amdhsa_next_free_sgpr 102
  .amdhsa_accum_offset 256
  .amdhsa_group_segment_fixed_size 0
  .amdhsa_kernarg_size 88
  .amdhsa_user_sgpr_count 2
  .amdhsa_user_sgpr_kernarg_segment_ptr 1
  .amdhsa_system_sgpr_workgroup_id_x 1
  .amdhsa_float_denorm_mode_32 3
  .amdhsa_float_denorm_mode_16_64 3
.end_amdhsa_kernel
.text
'''

def srd(a, sd, which, off, size):
    p = PTR[which]
    if off:
        a.emit(f's_add_u32 s{sd}, s{p}, {off}')
        a.emit(f's_addc_u32 s{sd+1}, s{p+1}, 0')
        a.emit(f's_and_b32 s{sd+1}, s{sd+1}, 0xffff')
    else:
        a.emit(f's_mov_b32 s{sd}, s{p}')
        a.emit(f's_and_b32 s{sd+1}, s{p+1}, 0xffff')
    a.emit(f's_mov_b32 s{sd+2}, {size}')
    a.emit(f's_mov_b32 s{sd+3}, 0x00020000')

def xpitch(a, sd, inv=False):
    a.emit(f's_cmp_eq_u32 s{S_LAYER}, {0 if inv else 1}')
    a.emit(f's_cselect_b32 s{sd}, {XPAD}, 0')
    a.emit(f's_add_u32 s{sd}, s{sd}, 2048')

def srd_xs(a, sd):
    srd(a, sd, 'xs', 0, 4 * MB)
    xpitch(a, sd + 2)
    a.emit(f's_lshl_b32 s{sd+2}, s{sd+2}, 11')

def stub(a, name, body, layer, tsidx, first):
    a(f'.text\n.globl {name}\n.p2align 8\n.type {name},@function\n{name}:')
    if TS:
        stamp(a, 0, nowait=True)
    if TE: a.emit('s_memrealtime s[94:95]')
    for x in ENV('PERM', '').split():
        a.emit(f"s_bitcmp1_b32 s2, {x.split(':')[0]}")
        a.emit(f"s_cselect_b32 s3, {x.split(':')[1]}, 0")
        a.emit('s_xor_b32 s2, s2, s3')
    a.emit('s_load_dwordx4 s[16:19], s[0:1], 0')
    a.emit('s_load_dwordx2 s[20:21], s[0:1], 16')
    a.emit('s_load_dwordx2 s[22:23], s[0:1], 80')
    a.emit('s_load_dwordx8 s[24:31], s[0:1], 32')
    a.emit('s_load_dwordx2 s[32:33], s[0:1], 64')
    a.emit('s_load_dwordx2 s[34:35], s[0:1], 80')
    a.emit(f's_load_dwordx2 s[12:13], s[0:1], {0 if layer == 0 else 64}')
    if DS: a.emit(f's_load_dwordx2 s[{SC}:{SC+1}], s[0:1], 72')
    a.emit(f's_mov_b32 s{S_LAYER}, {layer}')
    if ENV('PADS', '0') == '1': a.emit('s_mov_b64 exec, -1')
    a.emit(f's_mov_b32 s{S_TSI}, {tsidx}')
    if not first:
        a.emit(f's_branch {body}')

def stamp(a, n, nowait=False):
    if not TS: return
    a.emit(f's_memrealtime s[{80+4*n}:{81+4*n}]')
    a.emit(f's_memtime s[{82+4*n}:{83+4*n}]')
    if not nowait: a.emit('s_waitcnt lgkmcnt(0)')

def stamps_out(a, tag):
    if not TS: return
    if not MEGA: a.emit('s_waitcnt vmcnt(0)')
    stamp(a, 3)
    if MEGA and tag == 'w1':
        for i in range(16): a.emit(f'v_writelane_b32 v31, s{80+i}, {i}')
        return
    srd(a, SP, 'ws0', WS_TS, 1 << 20)
    a.emit('s_lshl_b32 s4, s2, 6')
    a.emit(f's_lshl_b32 s5, s{S_TSI}, 16')
    a.emit('s_add_u32 s4, s4, s5')
    if ENV('STR') == tag:
        a.emit('v_lshlrev_b32 v2, 2, v0')
        a.emit('v_cmp_gt_u32 vcc, 16, v0')
        a.emit('s_add_u32 s5, s4, 32768\n  s_nop 0')
        a.emit('v_cndmask_b32 v2, -1, v2, vcc')
        a.emit(f'buffer_store_dword v3, v2, s[{SP}:{SP+3}], s5 offen')
    a.emit('v_mov_b32 v1, s4')
    for i in range(16): a.emit(f'v_mov_b32 v{4+i}, s{80+i}')
    a.emit('v_cmp_eq_u32 vcc, 0, v0')
    a.emit('s_and_saveexec_b64 s[6:7], vcc')
    a.emit(f's_cbranch_execz L_tsskip_{tag}')
    for j in range(4):
        a.emit(f'buffer_store_dwordx4 v[{4+4*j}:{7+4*j}], v1, s[{SP}:{SP+3}], 0 offen offset:{16*j}' + (' sc1' if ENV('DIAG') else ''))
    if MEGA and tag == 'w2':
        a.emit('s_mov_b64 exec, 0xffff')
        a.emit('s_sub_u32 s4, s4, 0x10000')
        a.emit('v_lshlrev_b32 v1, 2, v0')
        a.emit(f'buffer_store_dword v31, v1, s[{SP}:{SP+3}], s4 offen' + (' sc1' if ENV('DIAG') else ''))
    a.label(f'L_tsskip_{tag}')
    a.emit('s_mov_b64 exec, -1')

SPX = ENV('SPX', '1') == '1'
OT = ENV('OT', 'w1,w2,attn').split(',')
S_T0 = 91
OHB = 114688; OBIA = [10, 24, 124, 126]
NV = int(ENV('NV', '0'))
EF = int(ENV('EF', '0'))
NS = ENV('NS', 'wo,w1,w2').split(',')
NSR = ENV('NSR', '1') == '1'
SKL = ENV('SKL', '1') == '1'
SF = ENV('SF', '0') == '1'
WD = ENV('WD', 'c')
ZD = ENV('ZD', 'a')
OH = int(ENV('OH', '1'))
OHO = (0, 51200, 81920)[OH]
HALT = 33 * MB
GM = ENV('GM', '0') == '1'
S_MD = 93 if GM else 92; VMD = 27
CF = int(ENV('CF', '1'))
WE = int(ENV('WE', '-1'))
LF1 = int(ENV('LF1', '0'))
MF = int(ENV('MF', '2'))
LF2 = int(ENV('LF2', '2'))
EX = int(ENV('EX', '14'))
LSTK = ENV('LSTK', 'w2')
LREG = [52, 54, 56, 58] if LSTK == 'w2' else [36, 38, 48, 50] if LSTK == 'wo' else [80, 82, 48, 50]
def lstamp(a, n, dep=False):
    if dep and (ENV('LST') == 'x' or LSTK != 'w2'): return
    if TS: a.emit(f's_memrealtime s[{LREG[n]}:{LREG[n]+1}]')

def lstamps_out(a, tag):
    if not TS: return
    a.emit(f"s_cmp_lg_u32 s{S_WV}, {ENV('PW_' + tag.upper(), '4')}")
    a.emit(f's_cbranch_scc1 L_ltsskip_{tag}')
    a.emit('s_waitcnt lgkmcnt(0)')
    srd(a, SP, 'ws0', WS_TS + 16384, 1 << 20)
    a.emit('s_lshl_b32 s4, s2, 6')
    a.emit(f's_lshl_b32 s5, s{S_TSI}, 16')
    a.emit('s_add_u32 s4, s4, s5')
    for i in range(8): a.emit(f'v_writelane_b32 v20, s{LREG[i>>1]+(i&1)}, {i}')
    a.emit('v_lshlrev_b32 v21, 2, v1')
    a.emit('s_mov_b64 exec, 0xff')
    a.emit(f'buffer_store_dword v20, v21, s[{SP}:{SP+3}], s4 offen')
    a.emit('s_mov_b64 exec, -1')
    a.label(f'L_ltsskip_{tag}')

def tile_map(a, LM, endlab, pair=False):
    if endlab:
        a.emit('s_cmp_ge_u32 s2, 256')
        a.emit(f's_cbranch_scc1 {endlab}')
        a.emit('v_lshrrev_b32 v2, 6, v0')
        a.emit('v_and_b32 v1, 63, v0')
        a.emit(f'v_readfirstlane_b32 s{S_WV}, v2')
    a.emit('s_and_b32 s3, s2, 7')
    if endlab: a.emit(f's_lshr_b32 s{S_CU}, s2, 3')
    if LM == 2 and ENV('MAP2', '0') == '1':
        a.emit('s_lshl_b32 s5, s3, 1')
        a.emit('s_lshr_b32 s6, s3, 1')
        a.emit('s_and_b32 s5, s5, 2')
        a.emit('s_and_b32 s6, s6, 1')
        a.emit('s_or_b32 s5, s5, s6')
    else: a.emit(f's_and_b32 s5, s3, {(1 << (4 - LM)) - 1}')
    a.emit(f's_lshl_b32 s5, s5, {LM}')
    a.emit(f's_and_b32 s6, s{S_CU}, {(1 << LM) - 1}')
    a.emit(f's_add_u32 s{S_MT}, s5, s6')
    a.emit(f's_lshr_b32 s5, s3, {4 - LM}')
    if pair:
        a.emit(f's_lshr_b32 s{S_HD}, s{S_CU}, {LM}')
        a.emit(f's_lshl1_add_u32 s{S_NT}, s{S_HD}, s5')
        return
    a.emit(f's_lshl_b32 s5, s5, {5 - LM}')
    a.emit(f's_lshr_b32 s6, s{S_CU}, {LM}')
    a.emit(f's_add_u32 s{S_NT}, s5, s6')
    if 'smallm' in DBG: a.emit(f's_and_b32 s{S_MT}, s{S_MT}, 1')
    if 'smalln' in DBG: a.emit(f's_and_b32 s{S_NT}, s{S_NT}, 1')

def interleave(a, main, side, lead=1, per=1):
    si = 0
    for i, m in enumerate(main):
        a.emit(m)
        if i + 1 >= lead:
            for _ in range(per):
                if si < len(side): a.emit(side[si]); si += 1
    while si < len(side): a.emit(side[si]); si += 1

QS = int(ENV('QS', '1'))
PO0, POM = [int(x) for x in ENV('PO', '1,3').split(',')]
KSH = int(ENV('KSH', '0')); LAT = int(ENV('LAT', '0'))
def own_pos(a, sd):
    a.emit(f's_and_b32 s{sd}, s{S_NT}, {POM}')
    a.emit(f's_add_u32 s{sd}, s{sd}, {PO0}')

class Loader:
    VXD = 4; VWD = 8; VXH = 28
    def __init__(self, a, tag, K, lda2, ldw2, panels, colbase, S, STAGE, halo=None, delta=0, rot=None, xblk=False, half=0):
        self.a = a; self.tag = tag; self.K = K; self.lda2 = lda2; self.ldw2 = ldw2; self.panels = panels
        self.colbase = colbase; self.S = S; self.STAGE = STAGE; self.halo = halo; self.delta = delta; self.xblk = xblk; self.rot = rot if rot is not None and rot >= 0 else None
        self.NSTEP = K // 64; self.half = half; self.ot = 0; self.skip = False; self.loc = False; self.pre = {}; self.pad = None
        self.per = 4 + 2 * len(panels) + (1 if halo is not None else 0)
    def setup(self):
        a = self.a
        if ENV('PRIO', '0') != '0': a.emit(f"s_setprio {ENV('PRIO')}")
        a.emit(f's_add_u32 s8, s{S_WV}, s{S_NT}')
        a.emit('s_and_b32 s8, s8, 3')
        a.emit(f's_add_u32 s9, s{S_WV}, s{S_MT}')
        a.emit('s_and_b32 s9, s9, 3')
        a.emit(f's_lshl_b32 s{S_XD}, s8, 12')
        a.emit(f's_lshl_b32 s{S_WD}, s9, 11')
        a.emit(f's_add_u32 s{S_WD}, s{S_WD}, 16384')
        a.emit(f's_lshl_b32 s11, s{S_MT}, 7')
        a.emit('v_and_b32 v10, 7, v1')
        if self.xblk: self.xoff_blk(self.lda2)
        else: self.xoff_rows(self.lda2)
        ns = self.tag in NS and not NSR; nr = self.tag in NS and NSR
        wrow(a, 9, ns)
        a.emit(f'v_mul_u32_u24 v3, {self.ldw2}, v3')
        a.emit('v_lshrrev_b32 v2, 3, v1')
        a.emit(f'v_and_b32 v2, {6 if nr else 2}, v2')
        a.emit('v_xor_b32 v2, v2, v10')
        a.emit(f's_mul_i32 s10, s{S_NT}, {self.colbase}')
        if 'noslow' in DBG and self.tag == 'attn':
            a.emit(f's_bitcmp1_b32 0x0808, s{S_NT}')
            a.emit('s_cselect_b32 s3, 512, 0')
            a.emit('s_add_u32 s10, s10, s3')
        if self.colbase & 127: a.emit('s_andn2_b32 s10, s10, 127')
        a.emit('v_add_u32 v3, s10, v3')
        a.emit(f'v_lshl_add_u32 v{self.VWD}, v2, 4, v3')
        if not nr: a.emit('v_xor_b32 v2, 4, v2')
        a.emit(f'v_add_u32 v3, {(4 if ns else 8)*self.ldw2}, v3')
        a.emit(f'v_lshl_add_u32 v{self.VWD+1}, v2, 4, v3')
        if self.half:
            if ns:
                a.emit('v_bfe_u32 v3, v1, 2, 2')
                a.emit('v_lshrrev_b32 v2, 5, v1')
                a.emit('v_lshl_add_u32 v3, v2, 2, v3')
                a.emit('v_and_b32 v2, 16, v1')
                a.emit('s_and_b32 s10, s9, 2')
                a.emit('s_add_u32 s10, s10, s9')
                a.emit('s_lshl_b32 s10, s10, 3')
                a.emit('v_add3_u32 v3, s10, v3, v2')
            else:
                a.emit('v_lshrrev_b32 v3, 2, v1')
                a.emit('s_lshl_b32 s10, s9, 4')
                a.emit('v_add_u32 v3, s10, v3')
            a.emit(f'v_mul_u32_u24 v3, {self.ldw2}, v3')
            if 'w2' in NS: a.emit(f'v_bfe_u32 v2, v1, {4 if nr else 5}, 1')
            else:
                a.emit(f'v_lshrrev_b32 v2, {3 if nr else 4}, v1')
                a.emit('v_and_b32 v2, 2, v2')
            a.emit('v_xor_b32 v2, v2, v1')
            a.emit('v_and_b32 v2, 3, v2')
            a.emit(f's_lshl_b32 s10, s{S_NT}, 6')
            a.emit(f's_add_u32 s10, s10, {self.half}')
            a.emit('v_add_u32 v3, s10, v3')
            a.emit(f'v_lshl_add_u32 v{self.VXH}, v2, 4, v3')
            a.emit(f's_lshl_b32 s{S_HD}, s{S_NT}, 7')
            a.emit(f's_add_u32 s{S_HD}, s{S_HD}, 3072')
        if self.halo is not None:
            a.emit(f's_and_b32 s10, s{S_WV}, 3')
            a.emit(f's_lshl_b32 s{S_HD}, s10, 9')
            a.emit(f's_add_u32 s{S_HD}, s{S_HD}, {self.halo}')
            a.emit('s_lshl_b32 s14, s10, 2')
            a.emit('s_add_u32 s14, s14, s11')
            a.emit('s_sub_u32 s14, s14, 16')
            a.emit('v_lshrrev_b32 v3, 3, v1')
            a.emit('v_add_u32 v3, s14, v3')
            a.emit('v_max_i32 v3, 0, v3')
            a.emit('v_mul_u32_u24 v3, s5, v3')
            a.emit('s_lshl_b32 s14, s10, 1')
            a.emit('v_lshrrev_b32 v2, 4, v1')
            a.emit('v_add_u32 v2, s14, v2')
            a.emit('v_and_b32 v2, 7, v2')
            a.emit('v_xor_b32 v2, v2, v10')
            a.emit(f'v_lshl_add_u32 v{self.VXH}, v2, 4, v3')
            a.emit('s_cmp_eq_u32 s10, 0')
            a.emit('s_cselect_b32 s14, 0xffffff00, -1')
            a.emit('s_mov_b32 s15, 0')
        a.emit(f's_mov_b32 s{S_SLOT}, 0')
        if self.rot is None:
            a.emit(f's_mov_b32 s{S_KX}, 0')
            a.emit(f's_mov_b32 s{S_KW}, 0')
        else:
            if not getattr(self, 'noxg', False): a.emit(f's_add_u32 s{S_XG}, s{S_MT}, s{S_NT}')
            a.emit(f's_mov_b32 s{S_KT}, {0 if EARLY and self.tag == "w2" else -1}')
            ko = int(ENV('KOFF_' + self.tag.upper(), '0'))
            if ko:
                a.emit(f"s_bitcmp1_b32 {ENV('KMSK_' + self.tag.upper(), '0x0808' if self.tag == 'attn' else '0x2aea')}, s{S_NT}")
                a.emit(f's_cselect_b32 s{S_KT}, {ko - 1}, s{S_KT}')
            if self.kord(): self.ktable()
            if self.skip:
                if LAT:
                    a.emit(f's_mul_i32 s3, s{S_MT}, {LAT}')
                    a.emit(f's_add_u32 s3, s3, s{S_NT}')
                    a.emit(f's_and_b32 s{S_T0}, s3, 15')
                elif KSH:
                    a.emit(f's_and_b32 s{S_T0}, s{S_NT}, 3')
                    a.emit(f's_and_b32 s93, s{S_NT}, 12')
                    if KSH == 2:
                        a.emit(f's_and_b32 s3, s{S_MT}, 8')
                        a.emit('s_add_u32 s93, s93, s3')
                else: a.emit(f's_mov_b32 s{S_T0}, s{S_NT}')
                own_pos(a, 92)
                for x in self.knext(): a.emit(x)
            elif not self.ot:
                for x in self.knext(): a.emit(x)
    def kord(self): return ENV('KORD_' + self.tag.upper(), {'w1': '2', 'attn': '0,2'}.get(self.tag, ''))
    def korder(self, g, start):
        D = int(ENV('ROTD_' + self.tag.upper(), ENV('ROTD', '2')))
        o = list(range(16))
        if start < 0:
            dl = {3: [3, -1, -1, -1], 2: [2, -1, -1, 0], 1: [1, -1, 0, 0]}[D]
            return [(t + dl[(t - g) & 3]) & 15 for t in range(16)]
        for t in range(start + g, 16 - D, 4): o[t:t + D + 1] = [t + D] + list(range(t, t + D))
        return o
    def ktable(self, start=None):
        a = self.a
        if start is None: start = int(self.kord().split(',')[0])
        a.emit(f's_add_u32 s3, s{S_MT}, s{S_NT}')
        a.emit('s_and_b32 s3, s3, 3')
        for g in range(4):
            v = sum((2 * (k & 7) + (k >> 3) if self.loc else k) << (4 * i) for i, k in enumerate(self.korder(g, start)))
            if self.loc: assert max(self.korder(g, start)[:6]) < 8
            if g: a.emit(f's_cmp_eq_u32 s3, {g}')
            for h in range(2):
                a.emit(f's_cselect_b32 s{S_XG+h}, {(v >> (32 * h)) & 0xffffffff:#x}, s{S_XG+h}' if g else f's_mov_b32 s{S_XG+h}, {(v >> (32 * h)) & 0xffffffff:#x}')
        if self.loc:
            a.emit(f's_bitcmp1_b32 s{S_NT}, 3')
            a.emit('s_cselect_b32 s3, 0x11111111, 0')
            for h in range(2): a.emit(f's_xor_b32 s{S_XG+h}, s{S_XG+h}, s3')
    def own(self):
        D = int(ENV('ROTD_' + self.tag.upper(), ENV('ROTD', '2')))
        dl = {3: [3, -1, -1, -1], 2: [2, -1, -1, 0], 1: [1, -1, 0, 0]}[D]
        tbl = sum(((-d) % 16) << (8 * ((r + d) & 3)) for r, d in enumerate(dl))
        assert self.rot == 0 and self.NSTEP == 16
        if self.kord():
            return [f's_lshr_b32 s3, s{S_NT}, 3', f's_and_b32 s{S_KX}, s{S_NT}, 7', f's_lshl1_add_u32 s{S_T0}, s{S_KX}, s3',
                    f's_mul_i32 s{S_KW}, s{S_T0}, {64*self.ldw2}', f's_lshl_b32 s{S_KX}, s{S_T0}, {11 if self.xblk else 7}']
        return [f's_lshr_b32 s3, s{S_NT}, 3', f's_and_b32 s{S_KX}, s{S_NT}, 7', f's_lshl1_add_u32 s{S_KX}, s{S_KX}, s3',
                f's_sub_u32 s3, s{S_KX}, s{S_XG}', 's_lshl_b32 s3, s3, 3', f's_lshr_b32 s3, {tbl:#x}, s3',
                f's_add_u32 s3, s3, s{S_KX}', f's_and_b32 s{S_T0}, s3, 15',
                f's_mul_i32 s{S_KW}, s{S_KX}, {64*self.ldw2}', f's_lshl_b32 s{S_KX}, s{S_KX}, {11 if self.xblk else 7}']
    def xoff_rows(self, ld):
        a = self.a
        a.emit('v_lshrrev_b32 v3, 3, v1')
        a.emit(f's_lshr_b32 s10, s{S_XD}, 7')
        a.emit(f's_lshl_b32 s3, s{S_MT}, 7')
        a.emit('s_add_u32 s10, s10, s3')
        a.emit('v_add_u32 v3, s10, v3')
        xpitch(a, 5)
        a.emit('s_lshl_b32 s6, s5, 3')
        a.emit('v_mul_u32_u24 v3, s5, v3')
        a.emit('v_lshrrev_b32 v2, 4, v1')
        for j in range(4):
            d = self.VXD + j
            if j & 1:
                a.emit(f'v_add_u32 v{d}, 4, v2')
                a.emit(f'v_xor_b32 v{d}, v{d}, v10')
            else:
                a.emit(f'v_xor_b32 v{d}, v2, v10')
            a.emit(f'v_lshl_add_u32 v{d}, v{d}, 4, v3')
            if j < 3: a.emit('v_add_u32 v3, s6, v3')
    def xoff_blk(self, ld):
        a = self.a
        a.emit(f's_lshr_b32 s10, s{S_XD}, 11')
        a.emit(f's_lshl_b32 s3, s{S_MT}, 3')
        a.emit('s_add_u32 s10, s10, s3')
        a.emit(f's_mul_i32 s10, s10, {16*ld}')
        a.emit(f'v_lshl_add_u32 v{self.VXD}, v1, 4, s10')
        a.emit(f'v_add_u32 v{self.VXD+1}, {16*ld}, v{self.VXD}')
    def xdma(self, base, imm, sd, soff, blk):
        o = []
        for j in range(4):
            if blk:
                if not j & 1: o += [f's_add_u32 m0, s{base}, {imm + j*1024}', 's_nop 0']
                o.append(f'buffer_load_dwordx4 v{self.VXD+(j>>1)}, s[{sd}:{sd+3}], s{soff} offen offset:{(j&1)*1024} lds')
            else:
                o += [f's_add_u32 m0, s{base}, {imm + j*1024}', 's_nop 0', f'buffer_load_dwordx4 v{self.VXD+j}, s[{sd}:{sd+3}], s{soff} offen lds']
        return o
    def knext(self):
        if self.rot is None:
            return [f's_add_u32 s{S_KX}, s{S_KX}, {2048 if self.xblk else 128}', f's_add_u32 s{S_KW}, s{S_KW}, {64*self.ldw2}']
        if self.kord():
            tb = f's[{S_XG}:{S_XG+1}]'
            o = [f's_and_b32 s{S_KX}, s{S_XG}, 15']
            if self.ot or self.skip: o += [f's_cmp_eq_u32 s{S_KX}, s{S_T0}', f's_cselect_b32 s{S_KW}, 4, 0', f's_lshr_b64 {tb}, {tb}, s{S_KW}', f's_and_b32 s{S_KX}, s{S_XG}, 15']
            if self.skip and not self.ot: o += ['s_sub_u32 s92, s92, 1', f's_cselect_b32 s{S_KX}, s{S_T0}, s{S_KX}', f's_cselect_b32 s{S_KW}, 0, 4'] + ([f's_add_u32 s{S_KX}, s{S_KX}, s93', f's_and_b32 s{S_KX}, s{S_KX}, 15'] if KSH else [])
            return o + [f's_lshr_b64 {tb}, {tb}, ' + (f's{S_KW}' if self.skip and not self.ot else '4'), f's_mul_i32 s{S_KW}, s{S_KX}, {64*self.ldw2}', f's_lshl_b32 s{S_KX}, s{S_KX}, {11 if self.xblk else 7}']
        lc = self.rot; C = 1 << lc; N = self.NSTEP
        o = [f's_add_u32 s{S_KT}, s{S_KT}, 1']
        if self.ot: o += [f's_cmp_eq_u32 s{S_KT}, s{S_T0}', f's_addc_u32 s{S_KT}, s{S_KT}, 0']
        D = int(ENV('ROTD_' + self.tag.upper(), ENV('ROTD', '2')))
        dl = {3: [3, -1, -1, -1], 2: [2, -1, -1, 0], 1: [1, -1, 0, 0]}[D]
        tbl = sum((((d * C) % N) << (8 * i)) for i, d in enumerate(dl))
        if lc: o += [f's_lshr_b32 s{S_KX}, s{S_KT}, {lc}', f's_sub_u32 s{S_KX}, s{S_KX}, s{S_XG}']
        else: o += [f's_sub_u32 s{S_KX}, s{S_KT}, s{S_XG}']
        o += [f's_lshl_b32 s{S_KX}, s{S_KX}, 3',
              f's_lshr_b32 s{S_KX}, {tbl:#x}, s{S_KX}',
              f's_and_b32 s{S_KX}, s{S_KX}, 255',
              f's_add_u32 s{S_KX}, s{S_KX}, s{S_KT}']
        if N & (N - 1) == 0: o += [f's_and_b32 s{S_KX}, s{S_KX}, {N - 1}']
        else: o += [f's_sub_u32 s{S_KW}, s{S_KX}, {N}', f's_cselect_b32 s{S_KX}, s{S_KX}, s{S_KW}']
        o += [f's_mul_i32 s{S_KW}, s{S_KX}, {64*self.ldw2}', f's_lshl_b32 s{S_KX}, s{S_KX}, {11 if self.xblk else 7}']
        return o
    def panels_of(self, t): return self.panels
    def issue_x(self, bx, bh, imm, kx):
        o = self.xdma(bx, imm, SX, kx, self.xblk)
        if self.halo is not None:
            o.append(f's_add_u32 m0, s{S_HD}, {bh}')
            o.append('s_mov_b64 exec, s[14:15]')
            o.append(f'buffer_load_dwordx4 v{self.VXH}, s[{SX}:{SX+3}], s{kx} offen lds')
            o.append('s_mov_b64 exec, -1')
        return o
    def issue_w(self, t, bw, imm):
        o = []
        for pn, goff in enumerate(self.panels_of(t)):
            for i in range(2):
                o.append(f's_add_u32 m0, s{bw}, {imm+pn*8192+i*1024}')
                o.append((goff if str(goff).startswith('s_') else f's_add_u32 s4, s{S_KW}, {goff}') if i == 0 else 's_nop 0')
                o.append(f'buffer_load_dwordx4 v{self.VWD+i}, s[{SW}:{SW+3}], s4 offen lds')
        if self.half:
            o += [f's_add_u32 m0, s{bw}, {imm+len(self.panels)*8192}', 's_nop 0',
                  f'buffer_load_dwordx4 v{self.VXH}, s[{SW}:{SW+3}], s{S_KW} offen lds']
        return o
    def issue(self, t):
        o = [f's_add_u32 s3, s{S_SLOT}, s{S_XD}']
        o += self.issue_x(3, f's{S_SLOT}', 0, S_KX)
        o.append(f's_add_u32 s3, s{S_SLOT}, s{S_WD}')
        o += self.issue_w(t, 3, 0)
        o += self.knext()
        o.append(f's_add_u32 s{S_SLOT}, s{S_SLOT}, {self.STAGE}')
        o.append(f's_cmp_eq_u32 s{S_SLOT}, {self.S*self.STAGE}')
        o.append(f's_cselect_b32 s{S_SLOT}, 0, s{S_SLOT}')
        return o
    def run(self, variant='', tail_issue=None, ntail_vm=0, final=None, post=(), dep=None, tail_late=0, start=None, extra=None, exfirst=False):
        a = self.a; N = self.NSTEP; d = self.S - 1
        tag = self.tag + variant
        nx = 4 + (1 if self.halo is not None else 0)
        nw = lambda t: 2 * len(self.panels_of(t)) + (1 if self.half else 0)
        seq = []
        early = EARLY and self.tag == 'w2'
        pchk = EARLY - 3 - d - 1; piss = pchk - d + 1 - int(ENV('PEARLY', '0'))
        if self.loc: pchk = 3; piss = 2
        def em(o):
            for x in o:
                if 'nodma' in DBG and x.endswith(' lds'): continue
                a.emit(x)
        def after(t): return len(seq) - 1 - max(i for i, x in enumerate(seq) if x == t)
        def wait(n):
            assert n <= 63, n
            a.emit(f's_waitcnt vmcnt({n})')
        if dep is None:
            for t in range(2): em(self.issue(t)); seq += [t] * (nx + nw(t))
            if start: seq += ['S'] * start()
            wait(after(0))
            a.emit('s_barrier')
            for t in range(2, d): em(self.issue(t)); seq += [t] * (nx + nw(t))
        else:
            prev = {'attn': 'w2', 'wo': 'attn', 'w1': 'wo', 'w2': 'w1'}[self.tag]
            assert 'attn' not in EBAR
            ot = self.ot
            if ot: em(self.own() + [f's_mov_b32 s88, s{S_KX}'] + [f's_mov_b32 s72, s{S_KW}'] * (self.tag + 'hit' in DBG) + self.issue_w(0, S_WD, 0) + self.knext()); seq.extend([0] * nw(0))
            a.lines += getattr(self, 'after_own', [])
            dep_pre(a, self.tag)
            if prev in EBAR: a.emit('s_barrier')
            xw = 1 if self.tag in ENV('XW', 'x').split(',') and not hasattr(self, 'P1') else 0
            def prew(ts):
                for t in ts:
                    a.emit(f's_mov_b32 s{88+t}, s{S_KX}')
                    if self.tag + 'hit' in DBG: a.emit(f's_mov_b32 s{S_KW}, s72')
                    em(self.issue_w(t, S_WD, t * self.STAGE) + self.knext()); seq.extend([t] * nw(t))
            late = int(ENV('LATE_' + self.tag.upper(), '2'))
            if ot: xw = 1
            prew(range(ot, d + xw - late))
            self.npre = len(seq)
            a.emit(f's_mov_b32 s{S_SLOT}, {0 if xw else d * self.STAGE}')
            wag = int(ENV('WAG_' + self.tag.upper(), '0'))
            dep((lambda: prew(range(d + xw - late, d + xw - wag))) if late else None)
            if ot and self.halo is not None: em(self.issue_x(S_XD, self.hx, 0, 88)[-4:]); seq.append(0)
            for t in range(ot, d + xw):
                if t >= d + xw - wag: prew([t])
                em(self.issue_x(S_XD, t * self.STAGE, t * self.STAGE, 88 + t)); seq += [t] * nx
            if ot and ENV('OPRIO'): a.emit('s_setprio 0')
            if self.loc: loc_flag(a, self.tag)
            wait(after(ot))
            if self.tag == 'w2': lstamp(a, 2)
            a.emit('s_barrier')
            if early: late_flag(a)
        ev = [None] * self.ot
        for i in range(self.ot, N):
            t = i + d
            if t in seq: t = N + 9
            early = early or self.loc
            if early and i == piss: seq += ['P']
            seq += ['P'] * len(self.pre.get(i, []))
            if t < N: seq += [t] * (nx + nw(t)) + ['Q'] * sum(x.startswith('buffer_') for x in post)
            ex = extra(i) if extra else []
            tl = tail_issue is not None and t == N - 1 + tail_late
            if exfirst: seq += ['E'] * sum(x.startswith('buffer_') for x in ex)
            if tl: seq += ['T'] * ntail_vm
            if not exfirst: seq += ['E'] * sum(x.startswith('buffer_') for x in ex)
            ev.append(((nw(t) if t < N else -1, after(i + 1) if i + 1 < N else -1, tl, early and i == piss, early and i == pchk, tuple(ex)), t))
        i = self.ot; nl = 0
        while i < N:
            j = i
            while j + 1 < N and ev[j + 1][0] == ev[i][0]: j += 1
            n = j - i + 1
            (k, w, tl, pi, pc, ex), t = ev[i]
            if n >= 3:
                nl += 1
                a.emit(f's_mov_b32 s{S_CNT}, {n}')
                a.label(f'L_{tag}_ld{nl}')
            else: j = i
            em(self.pre.get(i, []))
            if pi and self.loc: dep_late(a, self.tag, 0)
            elif pi: a.emit(f'buffer_load_dword v13, v12, s[{SO}:{SO+3}], s86 offen sc1')
            if t < N:
                em(self.issue(t)); em(post)
            if exfirst: em(ex)
            if tl and not ('notail' in DBG and self.tag == 'w1'):
                if ENV('FPRIO'): a.emit('s_setprio 3')
                tail_issue()
                if ENV('FPRIO'): a.emit('s_setprio 0')
            if not exfirst: em(ex)
            if w >= 0: wait(w)
            elif final and 'nofinal' not in DBG:
                if ENV('FPRIO'): a.emit('s_setprio 3')
                final()
                if ENV('FPRIO'): a.emit('s_setprio 0')
            if self.pad and self.pad[0] == i:
                x = a.lines.pop()
                a.emit('s_branch L_padl'); a(f'.fill {self.pad[1] // 4}, 4, 0xbf810000'); a.label('L_padl'); a.lines.append(x)
            if pc and self.loc: dep_late(a, self.tag, 1, w)
            elif pc: late_check(a)
            a.emit('s_barrier')
            if n >= 3:
                a.emit(f's_sub_u32 s{S_CNT}, s{S_CNT}, 1')
                a.emit(f's_cmp_lg_u32 s{S_CNT}, 0')
                a.emit(f's_cbranch_scc1 L_{tag}_ld{nl}')
            i = j + 1

XD = ONE and ENV('SPLIT', '0') == '0' and ENV('XD', '1') == '1'
VW = MEGA and ENV('SPLIT', '0') == '0' and ENV('VW', '0') == '1'
NV1 = int(ENV('NV1', '16')); NV2 = int(ENV('NV2', '12')); NVO = int(ENV('NVO', '11'))
S_TB = 85
def rot_table(a, sd, smt, snt, tag):
    D = int(ENV('ROTD_' + tag.upper(), ENV('ROTD', '2')))
    dl = {3: [3, -1, -1, -1], 2: [2, -1, -1, 0], 1: [1, -1, 0, 0], 0: [0, 0, 0, 0]}[D]
    tbl = sum((d & 255) << (8 * i) for i, d in enumerate(dl))
    a.emit(f's_add_u32 s3, s{smt}, s{snt}')
    a.emit('s_lshl_b32 s3, s3, 3')
    a.emit(f's_lshl_b32 s{sd}, {tbl:#x}, s3')
    a.emit('s_sub_u32 s3, 0, s3')
    a.emit(f's_lshr_b32 s3, {tbl:#x}, s3')
    a.emit(f's_or_b32 s{sd}, s{sd}, s3')

def kpos(N, t, sd, tb=S_TB, halves=True, q=None):
    H, p, add = (28, t >> 1, 28 * (t & 1)) if N == 56 and halves else (N, t, 0)
    o = [f's_bfe_i32 s{sd}, s{tb}, {0x80000 + 8 * (p & 3):#x}', f's_add_i32 s{sd}, s{sd}, {p + add}']
    if p == 0: o += [f's_cmp_lt_i32 s{sd}, {add}', f's_cselect_b32 s{sd}, {H - 1 + add}, s{sd}']
    if p + 3 >= H: o += [f's_sub_u32 s3, s{sd}, {H}', f's_cmp_ge_i32 s{sd}, {H + add}', f's_cselect_b32 s{sd}, s3, s{sd}']
    if q is not None:
        if N == 16 or 1 <= t <= 12: o += [f's_add_u32 s{sd}, s{sd}, s{q}', f's_and_b32 s{sd}, s{sd}, 15']
        elif t <= 16 or t + 3 >= N: o += [f's_add_u32 s3, s{sd}, s{q}', 's_and_b32 s3, s3, 15', f's_cmp_lt_u32 s{sd}, 16', f's_cselect_b32 s{sd}, s3, s{sd}']
    return o

S_Q = 86
MROT = ENV('MROT', '1') == '1'
def rot_q(a, sd, smt, sh=0):
    a.emit(f's_and_b32 s{sd}, s{smt}, {3 if MROT else 0}')
    a.emit(f's_lshl_b32 s{sd}, s{sd}, {2 + sh}')

TSCH = {'wo': [int(c) for c in ENV('TSO', '000')], 'w2': [int(c) for c in ENV('TS2', '000')]}
def tail_parks(nxt, sw, mk=None, sch=None):
    if not XD: return None
    sch = sch or TSCH[nxt]; N = 16 if nxt == 'wo' else 56
    def extra(i):
        if i < 13 or not sum(sch): return []
        a = Asm()
        if i == 13:
            if mk: mk(a)
            a.emit('s_and_b32 s5, s2, 3')
            a.emit('s_lshl_b32 s5, s5, 2')
            a.emit(f's_and_b32 s6, s{S_CU}, 3')
            a.emit('s_add_u32 s5, s5, s6')
            a.emit('s_and_b32 s6, s2, 4')
            a.emit('s_lshl_b32 s6, s6, 1')
            a.emit(f's_lshr_b32 s7, s{S_CU}, 2')
            a.emit('s_add_u32 s6, s6, s7')
            rot_table(a, S_TB, 5, 6, nxt)
            rot_q(a, S_Q, 5)
            a.emit(f's_add_u32 s5, s5, s{S_WV}')
            a.emit('s_and_b32 s5, s5, 3')
            wvoff(a, 16, 5, 6, 2048)
        o = [l.strip() for l in a.lines]
        for t in range(sum(sch[:i - 13]), sum(sch[:i - 12])):
            o += kpos(N, t, 4, S_TB, False, S_Q) + ['s_lshl_b32 s4, s4, 17']
            o += [f'buffer_load_dwordx4 v[{128+8*t+4*j}:{131+8*t+4*j}], v{16+j}, s[{sw}:{sw+3}], s4 offen' for j in range(2)]
        return o
    return extra

def vreg(tag, t):
    if tag == 'wo': return (128 + 8 * (t - 5), False) if 5 <= t < 5 + NVO else None
    if t & 1: return None
    p = t >> 1
    if p < NV1: return (128 + 8 * p, True)
    if p < NV1 + NV2: return (32 + 8 * (p - NV1), False)
    return None

def wrow(a, sqw, ns):
    if ns:
        a.emit('v_bfe_u32 v3, v1, 3, 2')
        a.emit('v_lshrrev_b32 v2, 5, v1')
        a.emit('v_lshl_add_u32 v3, v2, 4, v3')
        a.emit(f's_and_b32 s10, s{sqw}, 2')
        a.emit(f's_add_u32 s10, s10, s{sqw}')
        a.emit('v_lshl_add_u32 v3, s10, 3, v3')
    else:
        a.emit('v_lshrrev_b32 v3, 3, v1')
        a.emit(f's_lshl_b32 s10, s{sqw}, 4')
        a.emit('v_add_u32 v3, s10, v3')

def wvoff(a, vd, sqw, snt, ldw2, ns=False):
    nr = ns and NSR; ns = ns and not NSR
    wrow(a, sqw, ns)
    a.emit(f'v_mul_u32_u24 v3, {ldw2}, v3')
    a.emit('v_lshrrev_b32 v2, 3, v1')
    a.emit(f'v_and_b32 v2, {6 if nr else 2}, v2')
    a.emit('v_xor_b32 v2, v2, v10')
    a.emit(f's_lshl_b32 s10, s{snt}, 7')
    a.emit('v_add_u32 v3, s10, v3')
    a.emit(f'v_lshl_add_u32 v{vd}, v2, 4, v3')
    if not nr: a.emit('v_xor_b32 v2, 4, v2')
    a.emit(f'v_add_u32 v3, {(4 if ns else 8)*ldw2}, v3')
    a.emit(f'v_lshl_add_u32 v{vd+1}, v2, 4, v3')

def park(N, t, r, vo, sw):
    return kpos(N, t, 4) + ['s_lshl_b32 s4, s4, 17'] + [f'buffer_load_dwordx4 v[{r+4*i}:{r+4*i+3}], v{vo+i}, s[{sw}:{sw+3}], s4 offen' for i in range(2)]

class ULoader(Loader):
    def run(self, variant='', tail_issue=None, ntail_vm=0, final=None, post=(), dep=None):
        a = self.a; N = self.NSTEP; d = self.S - 1; tag = self.tag
        seq = []
        def em(o):
            for x in o:
                if 'nodma' in DBG and x.endswith(' lds'): continue
                a.emit(x)
        def after(t): return len(seq) - 1 - max(i for i, x in enumerate(seq) if x == t)
        def wait(n, lg=False):
            assert n <= 63, n
            a.emit(f's_waitcnt vmcnt({n})' + (' lgkmcnt(0)' if lg else ''))
        def iw(t):
            sl = (t % self.S) * self.STAGE; v = vreg(tag, t)
            if v:
                em([f'v_add_u32 v11, {sl}, v14'] + [f'ds_write_b128 v11, v[{v[0]+4*i}:{v[0]+4*i+3}] offset:{1024*i}' for i in range(2)])
            else:
                em([f's_lshl_b32 s{S_KW}, s{S_KX}, 17'] + [x for x in self.issue_w(t, S_WD, sl)])
                seq.extend([t] * 2)
        def ix(t, k):
            em(self.issue_x(S_XD, None, (t % self.S) * self.STAGE, k)); seq.extend([t] * 4)
        rot_table(a, S_TB, S_MT, S_NT, tag)
        a.emit(f'v_lshl_add_u32 v14, v1, 4, s{S_WD}')
        dep_pre(a, tag)
        for t in range(d):
            em(kpos(N, t, S_KX)); iw(t)
            a.emit(f's_lshl_b32 s{88+t}, s{S_KX}, 11')
        for t in range(d, N):
            v = vreg(tag, t)
            if v and not v[1]:
                em(park(N, t, v[0], self.VWD, SW)); seq.extend(['V'] * 2)
        self.npre = len(seq)
        dep()
        for t in range(d): ix(t, 88 + t)
        wait(after(0), True)
        if tag == 'w2': lstamp(a, 2)
        a.emit('s_barrier')
        for i in range(N):
            t = i + d
            if i % 4 == 0 and post and t < N:
                a.emit('s_waitcnt lgkmcnt(0)')
                em(post)
            if t < N:
                em(kpos(N, t, S_KX)); iw(t)
                a.emit(f's_lshl_b32 s{S_KX}, s{S_KX}, 11')
                ix(t, S_KX)
            if t == N - 1: tail_issue(); seq.extend(['T'] * ntail_vm)
            if i + 1 < N: wait(after(i + 1), not post or t == N)
            else: final()
            a.emit('s_barrier')

EBAR = ENV('EBAR', 'x').split(',')
S_FL = 87
def dep_pre(a, kind, part=None, n=0):
    if ONE and kind in (('w1',) if CF == 2 else ('wo', 'w1')):
        ld = f'buffer_load_dword v12, v17, s[{SC}:{SC+3}], 0 offen sc1' if kind == 'wo' else f'buffer_load_dwordx4 v[12:15], v17, s[{SO}:{SO+3}], s3 offen sc1'
        if part == 1: a.emit(f's_waitcnt vmcnt({n})')
        gm = GM and kind == 'wo'
        if gm: a.emit(f's_cmp_lg_u32 s{S_LAYER}, 0')
        else:
            a.emit(f's_add_u32 s3, s{S_LAYER}, s{S_WV}')
            a.emit('s_cmp_lg_u32 s3, 4')
        a.emit(f's_cbranch_scc1 L_{kind}_chk{part}' + 'e' * (gm and part == 1))
        def cmp():
            if gm:
                a.emit('v_or_b32 v13, 0xfefefefe, v12')
                a.emit('v_cmp_ne_u32 vcc, -1, v13')
            elif kind == 'wo': a.emit('v_cmp_ne_u32 vcc, 0x01010101, v12')
            else:
                a.emit('v_and_b32 v12, v12, v13')
                a.emit('v_and_b32 v14, v14, v15')
                a.emit('v_and_b32 v12, v12, v14')
                a.emit('v_cmp_ne_u32 vcc, 1, v12')
        if part == 1:
            cmp()
            a.emit(f's_cbranch_vccz L_{kind}_chk{part}')
        if True:
            if kind == 'wo': a.emit(f's_load_dwordx2 s[{SC}:{SC+1}], s[0:1], 72')
            else: srd(a, SO, 'ws0', WS_FL, FLS)
            if kind == 'wo':
                a.emit('s_waitcnt lgkmcnt(0)')
                a.emit(f's_and_b32 s{SC+1}, s{SC+1}, 0xffff')
                a.emit(f's_mov_b32 s{SC+2}, 256')
                a.emit(f's_mov_b32 s{SC+3}, 0x00020000')
                a.emit('v_lshlrev_b32 v17, 2, v1')
            else:
                a.emit('v_lshrrev_b32 v2, 2, v1')
                a.emit('v_and_b32 v3, 3, v1')
                a.emit('v_lshlrev_b32 v2, 11, v2')
                a.emit('v_lshl_add_u32 v17, v3, 4, v2')
                a.emit(f's_and_b32 s3, s{S_NT}, {REP - 1}')
                a.emit('s_lshl_b32 s3, s3, 7')
        if part == 0: a.emit(ld)
        else:
            a.emit(f's_mov_b32 s{S_CNT}, 0x100000')
            a.label(f'L_{kind}_chkl')
            a.emit(ld)
            a.emit(f's_sub_u32 s{S_CNT}, s{S_CNT}, 1')
            a.emit(f's_cbranch_scc1 L_{kind}_chk{part}')
            a.emit('s_waitcnt vmcnt(0)')
            cmp()
            a.emit(f's_cbranch_vccnz L_{kind}_chkl')
        a.label(f'L_{kind}_chk{part}')
        if gm and part == 1:
            l2_mode(a, 12)
            a.label(f'L_{kind}_chk{part}e')

def l2_mode(a, v):
    assert int(ENV('LM_QKV', '3')) == 3
    a.emit(f'v_mov_b32 v14, v{v}')
    a.emit(f'v_mov_b32 v15, v{v}')
    a.emit(f'v_alignbyte_b32 v13, v{v}, v{v}, 1')
    a.emit(f'v_xor_b32 v13, v13, v{v}')
    a.emit('v_permlane16_swap_b32 v14, v15')
    a.emit(f'v_xor_b32_dpp v12, v{v}, v{v} row_ror:4 row_mask:0xf bank_mask:0xf')
    a.emit('v_xor_b32 v14, v14, v15')
    a.emit('v_or3_b32 v13, v13, v12, v14')
    a.emit('v_cmp_ne_u32 vcc, 0, v13')
    a.emit(f's_or_b32 s{S_MD}, vcc_lo, vcc_hi')

def dep_wait(a, kind, halo=False, skip_first=False, first=None, preg=None, postf=None, pref=None, defer=False, obar=False):
    if skip_first and not ONE:
        a.emit(f's_cmp_eq_u32 s{S_TSI}, 1')
        a.emit(f's_cbranch_scc1 L_{kind}_dep')
    srd(a, SO, 'ws0', WS_FL, FLS)
    if ONE and kind == 'wo' and first:
        a.emit(f's_cmp_lg_u32 s{S_LAYER}, 0')
        a.emit(f's_cbranch_scc1 L_{kind}_nofirst')
        first()
        a.label(f'L_{kind}_nofirst')
    a.emit(f's_lshl4_add_u32 s3, s{S_TSI}, s{S_MT}')
    a.emit(f's_and_b32 s4, s{S_NT}, {REP - 1}')
    a.emit('s_lshl4_add_u32 s3, s3, s4')
    a.emit('s_lshl_b32 s3, s3, 7')
    a.emit('s_sub_u32 s3, s3, 32768')
    a.emit('v_lshlrev_b32 v11, 7, v1')
    if halo:
        a.emit(f's_cmp_eq_u32 s{S_MT}, 0')
        a.emit('s_cselect_b32 s4, 15, 31')
        a.emit('v_and_b32 v2, 16, v1')
        a.emit('v_lshl_add_u32 v11, v2, 2, v11')
        a.emit('v_and_b32 v2, s4, v1')
    else: a.emit('v_and_b32 v2, 15, v1')
    a.emit('v_lshlrev_b32 v2, 2, v2')
    xc = OH and kind == 'w1' and not GM
    if xc:
        a.emit('s_getreg_b32 s4, hwreg(HW_REG_XCC_ID, 0, 4)')
        if ENV('FB'): a.emit(f"s_and_b32 s4, s2, {ENV('FB')}")
        a.emit('v_add_u32 v3, 1, s4')
    else: a.emit('v_mov_b32 v3, 1')
    a.emit(f's_mov_b32 s{S_CNT}, 0x100000')
    if kind == LSTK == 'wo': lstamp(a, 2)
    if pref: pref()
    lf = LF2 and kind == 'w2'
    if lf:
        a.emit(f's_mov_b32 s{S_Q}, s3')
        a.emit('s_or_b32 s4, s2, 0xe0')
        a.emit(f's_lshl4_add_u32 s4, s4, s{S_LAYER}')
        a.emit('s_lshl_b32 s4, s4, 7')
        a.emit(f's_lshl2_add_u32 s93, s{S_HD}, s4')
        a.emit(f's_cmp_eq_u32 s{S_MD}, 0')
        a.emit('s_cselect_b32 s3, s4, s3')
        a.emit('s_cselect_b32 s4, 28, 60')
        a.emit('v_and_b32 v13, s4, v2')
        if ENV('LFT', '1') == '1':
            a.emit(f's_cmp_lg_u32 s{S_WV}, 4')
            a.emit('s_cbranch_scc1 L_w2_notch')
            a.emit(f'buffer_load_dword v12, v13, s[{SO}:{SO+3}], s3 offen sc1')
            a.label('L_w2_notch')
    if OH and kind == 'w2': a.emit(f'v_cmp_ne_u32 vcc, s{S_MD}, 0')
    a.emit(f's_cmp_lg_u32 s{S_WV}, 4')
    a.emit('s_barrier')
    if kind == 'w2': lstamp(a, 0, True)
    if kind == LSTK == 'w1': lstamp(a, 0)
    a.emit(f's_cbranch_scc1 L_{kind}_{"nofl" if postf else "dep"}')
    if OH and kind == 'w2':
        a.emit('s_cbranch_vccnz L_w2_wb')
        a.label('L_w2_wbd')
    if lf:
        a.emit('s_mov_b64 exec, 1')
        a.emit(f'buffer_store_dword v3, off, s[{SO}:{SO+3}], s93')
    a.emit(f's_mov_b32 exec_lo, {((1 << REP) - 1) * (0x10001 if halo else 1):#x}')
    a.emit('s_mov_b32 exec_hi, 0')
    a.emit(f'buffer_store_dword v3, v11, s[{SO}:{SO+3}], s{S_FL} offen sc1')
    a.emit('s_mov_b64 exec, -1')
    if lf and ENV('LFX'):
        a.label('L_w2_spoll')
        if ENV('LFX') == 's':
            a.emit(f's_buffer_load_dwordx8 s[4:11], s[{SO}:{SO+3}], s3 glc')
            a.emit(f's_sub_u32 s{S_CNT}, s{S_CNT}, 16')
            a.emit('s_cbranch_scc1 L_w2_spok')
            a.emit('s_waitcnt lgkmcnt(0)')
            a.emit('s_and_b64 s[4:5], s[4:5], s[6:7]')
            a.emit('s_and_b64 s[8:9], s[8:9], s[10:11]')
            a.emit('s_and_b64 s[4:5], s[4:5], s[8:9]')
            a.emit('s_and_b32 s4, s4, s5')
            a.emit('s_cbranch_scc0 L_w2_spoll')
        else:
            a.emit(f'buffer_load_dword v12, v13, s[{SO}:{SO+3}], s3 offen sc1')
            a.emit(f's_sub_u32 s{S_CNT}, s{S_CNT}, 16')
            a.emit('s_cbranch_scc1 L_w2_spok')
            a.emit('s_waitcnt vmcnt(0)')
            a.emit('v_cmp_ne_u32 vcc, 1, v12')
            a.emit('s_cbranch_vccnz L_w2_spoll')
        a.label('L_w2_spok')
        lstamp(a, 1, True)
        a.emit(f's_mov_b32 s{S_CNT}, 0x100000')
    PSP = int(ENV('PSP', '0'))
    if defer:
        a.label(f'L_{kind}_nofl')
        a.emit(f's_mov_b32 s{S_Q}, s3')
        postf()
        return
    if postf and PSP:
        a.label(f'L_{kind}_nofl')
        a.emit('s_mov_b32 s5, s3')
        i0 = len(a.lines); postf(); ls = a.lines[i0:]; del a.lines[i0:]
        dma = [i for i, l in enumerate(ls) if 'buffer_load' in l]
        poll = lambda k: f'buffer_load_dword v{24+k}, v2, s[{SO}:{SO+3}], s5 offen sc1'
        for i, l in enumerate(ls):
            a.lines.append(l)
            for k in range(3):
                if dma and i == dma[-1 - PSP * (3 - k)]: a.emit(poll(k))
        a.emit(f's_cmp_lg_u32 s{S_WV}, 4')
        a.emit(f's_cbranch_scc1 L_{kind}_dep')
        def chk(k, n, last=False):
            a.emit(poll((k + 3) & 3))
            a.emit(f's_waitcnt vmcnt({n})')
            a.emit(f'v_cmp_ne_u32 vcc, 1, v{24+k}')
            a.emit(f's_cbranch_vccnz L_{kind}_poll' if last else f's_cbranch_vccz L_{kind}_dep')
        for k in range(3): chk(k, 3 + PSP * (3 - k))
        a.label(f'L_{kind}_poll')
        a.emit(f's_sub_u32 s{S_CNT}, s{S_CNT}, 1')
        a.emit(f's_cbranch_scc1 L_{kind}_dep')
        for k in (3, 0, 1, 2): chk(k, 3, k == 2)
    else:
        if postf:
            if obar:
                a.emit(f's_waitcnt vmcnt({obar})')
                a.emit(f's_branch L_{kind}_obar')
            a.label(f'L_{kind}_nofl')
            if obar:
                a.emit(f's_waitcnt vmcnt({obar - 1})')
                a.label(f'L_{kind}_obar')
                a.emit('s_barrier')
                if ENV('OPRIO'): a.emit(f"s_setprio {ENV('OPRIO')}")
            a.emit('s_mov_b32 s5, s3')
            postf()
            a.emit('s_mov_b32 s3, s5')
            a.emit(f"s_cmp_lg_u32 s{S_WV}, {ENV('PW_' + kind.upper(), '4')}")
            a.emit(f's_cbranch_scc1 L_{kind}_dep')
        if kind == LSTK == 'w1': lstamp(a, 1)
        a.label(f'L_{kind}_poll')
        a.emit(f'buffer_load_dword v{VMD if xc else 3}, v{13 if lf else 2}, s[{SO}:{SO+3}], s3 offen sc1')
        a.emit(f's_sub_u32 s{S_CNT}, s{S_CNT}, 1')
        a.emit(f's_cbranch_scc1 L_{kind}_dep')
        a.emit('s_waitcnt vmcnt(0)')
        a.emit(f'v_cmp_eq_u32 vcc, 0, v{VMD}' if xc else 'v_cmp_ne_u32 vcc, 1, v3')
        a.emit(f's_cbranch_vccnz L_{kind}_poll')
    a.label(f'L_{kind}_dep')
    if kind == 'w2' and not ENV('LFX'): lstamp(a, 1, True)
    if kind == LSTK == 'wo': lstamp(a, 3)
    if kind == LSTK == 'w1':
        lstamp(a, 2)
        if TS: a.emit(f's_mov_b32 s50, s{S_CNT}')
    if preg: preg()
    if preg and kind == 'w2': lstamp(a, 2, True)
    a.emit('s_barrier')

def dep_loc(a, kind, postf, pref):
    srd(a, SO, 'ws0', WS_FL, FLS)
    a.emit(f's_lshl4_add_u32 s3, s{S_TSI}, s{S_MT}')
    a.emit(f's_and_b32 s4, s{S_NT}, {REP - 1}')
    a.emit('s_lshl4_add_u32 s3, s3, s4')
    a.emit('s_lshl_b32 s3, s3, 7')
    a.emit(f's_sub_u32 s{S_Q}, s3, 32768')
    a.emit('v_lshlrev_b32 v11, 7, v1')
    a.emit('v_and_b32 v2, 15, v1')
    a.emit('v_lshlrev_b32 v2, 2, v2')
    a.emit('v_mov_b32 v14, 1')
    a.emit(f's_mov_b32 s{S_CNT}, 0x100000')
    a.emit('s_or_b32 s4, s2, 0xe0')
    a.emit(f's_lshl4_add_u32 s4, s4, s{S_TSI}')
    a.emit('s_lshl_b32 s4, s4, 7')
    a.emit(f's_lshr_b32 s7, s{S_CU}, 2')
    a.emit('s_lshl2_add_u32 s7, s7, s4')
    a.emit(f's_cmp_eq_u32 s{S_MD}, 0')
    a.emit(f's_cselect_b32 s6, s4, s{S_Q}')
    a.emit('s_cselect_b32 s4, 28, 60')
    a.emit('v_and_b32 v13, s4, v2')
    a.emit(f'buffer_load_dword v12, v13, s[{SO}:{SO+3}], s6 offen sc1')
    pref()
    a.emit(f"s_setprio {ENV('LFP1', '3')}")
    a.emit(f's_cmp_lg_u32 s{S_WV}, 4')
    a.emit('s_barrier')
    if kind == LSTK: lstamp(a, 0)
    a.emit(f's_cbranch_scc1 L_{kind}_nofl')
    a.emit('s_mov_b64 exec, 1')
    a.emit(f'buffer_store_dword v14, off, s[{SO}:{SO+3}], s7')
    a.emit(f's_cmp_eq_u32 s{S_MD}, 0')
    a.emit(f's_cbranch_scc1 L_{kind}_nogl')
    a.emit(f's_mov_b64 exec, {(1 << REP) - 1:#x}')
    a.emit(f'buffer_store_dword v14, v11, s[{SO}:{SO+3}], s{S_FL} offen sc1')
    a.label(f'L_{kind}_nogl')
    a.emit('s_mov_b64 exec, -1')
    a.label(f'L_{kind}_nofl')
    if postf: postf()
    if kind == LSTK: lstamp(a, 1)
    a.label(f'L_{kind}_poll')
    a.emit(f'buffer_load_dword v12, v13, s[{SO}:{SO+3}], s6 offen sc1')
    a.emit(f's_sub_u32 s{S_CNT}, s{S_CNT}, 1')
    a.emit(f's_cbranch_scc1 L_{kind}_dep')
    a.emit('s_waitcnt vmcnt(0)')
    a.emit('v_cmp_ne_u32 vcc, 1, v12')
    a.emit(f's_cbranch_vccnz L_{kind}_poll')
    a.label(f'L_{kind}_dep')
    if kind == LSTK:
        lstamp(a, 2)
        if TS: a.emit(f's_mov_b32 s50, s{S_CNT}')

def loc_flag(a, kind):
    a.emit('s_setprio 0')
    a.emit(f's_cmp_lg_u32 s{S_WV}, 4')
    a.emit(f's_cbranch_scc1 L_{kind}_nogf')
    a.emit(f's_mov_b64 exec, {(1 << REP) - 1:#x}')
    a.emit(f'buffer_store_dword v14, v11, s[{SO}:{SO+3}], s{S_FL} offen sc1')
    a.emit('s_mov_b64 exec, -1')
    a.label(f'L_{kind}_nogf')

def dep_lf(a, w0, blk, w1):
    srd(a, SO, 'ws0', WS_FL, FLS)
    a.emit(f's_lshl4_add_u32 s3, s{S_TSI}, s{S_MT}')
    a.emit(f's_and_b32 s4, s{S_NT}, {REP - 1}')
    a.emit('s_lshl4_add_u32 s3, s3, s4')
    a.emit('s_lshl_b32 s3, s3, 7')
    a.emit(f's_sub_u32 s{S_Q}, s3, 32768')
    a.emit('v_lshlrev_b32 v11, 7, v1')
    a.emit('v_and_b32 v2, 15, v1')
    a.emit('v_lshlrev_b32 v2, 2, v2')
    a.emit(f's_cmp_lg_u32 s{S_WV}, 4')
    a.emit(f's_waitcnt vmcnt({w0})')
    a.emit('s_cbranch_scc1 L_w2_nofl')
    W4 = ENV('W4', 'a')
    if W4 == 'a': a.lines += blk
    a.emit('v_mov_b32 v3, 1')
    a.emit(f's_mov_b32 s{S_CNT}, 0x100000')
    a.emit('s_or_b32 s4, s2, 0xe0')
    a.emit(f's_lshl4_add_u32 s4, s4, s{S_TSI}')
    a.emit('s_lshl_b32 s4, s4, 7')
    a.emit(f's_lshl2_add_u32 s5, s{S_HD}, s4')
    a.emit(f's_cmp_eq_u32 s{S_MD}, 0')
    a.emit(f's_cselect_b32 s3, s4, s{S_Q}')
    a.emit('s_cselect_b32 s4, 28, 60')
    a.emit('v_and_b32 v13, s4, v2')
    a.emit(f'buffer_load_dword v12, v13, s[{SO}:{SO+3}], s3 offen sc1')
    a.emit(f"s_setprio {ENV('LFP', '3')}")
    a.emit('s_barrier')
    lstamp(a, 0, True)
    a.emit('s_cbranch_scc0 L_w2_wb')
    a.label('L_w2_wbd')
    a.emit('s_mov_b64 exec, 1')
    a.emit(f'buffer_store_dword v3, off, s[{SO}:{SO+3}], s5')
    a.emit('s_mov_b64 exec, -1')
    a.label('L_w2_poll')
    a.emit(f'buffer_load_dword v12, v13, s[{SO}:{SO+3}], s3 offen sc1')
    a.emit(f's_sub_u32 s{S_CNT}, s{S_CNT}, 1')
    a.emit('s_cbranch_scc1 L_w2_dep')
    a.emit('s_waitcnt vmcnt(0)')
    a.emit('v_cmp_ne_u32 vcc, 1, v12')
    a.emit('s_cbranch_vccnz L_w2_poll')
    a.label('L_w2_dep')
    lstamp(a, 1, True)
    a.emit('s_barrier')
    lstamp(a, 2, True)
    a.emit('s_setprio 0')
    if W4 != 'a': a.lines += blk
    a.emit(f's_mov_b64 exec, {(1 << REP) - 1:#x}')
    a.emit(f'buffer_store_dword v3, v11, s[{SO}:{SO+3}], s{S_FL} offen sc1')
    a.emit('s_mov_b64 exec, -1')
    a.emit('s_branch L_w2_go')
    a.label('L_w2_nofl')
    if W4 == 'c':
        a.emit('s_waitcnt vmcnt(0)')
        a.emit('s_barrier')
        a.emit('s_barrier')
        a.lines += blk
    else:
        a.emit('s_barrier')
        a.lines += blk
        a.emit(f's_waitcnt vmcnt({w1})')
        a.emit('s_barrier')
    a.label('L_w2_go')

def xpoll(a, lab, sd, so, v, vd):
    a.emit(f's_cmp_lg_u32 s{S_WV}, 4')
    a.emit(f's_cbranch_scc1 {lab}go')
    a.emit('s_setprio 3')
    a.label(f'{lab}poll')
    a.emit(f'buffer_load_dword v{vd}, v{v}, s[{sd}:{sd+3}], s{so} offen sc1')
    a.emit(f's_sub_u32 s{S_CNT}, s{S_CNT}, 1')
    a.emit(f's_cbranch_scc1 {lab}go')
    a.emit('s_waitcnt vmcnt(0)')
    a.emit(f'v_cmp_ne_u32 vcc, 1, v{vd}')
    a.emit(f's_cbranch_vccnz {lab}poll')
    a.label(f'{lab}go')
    a.emit('s_setprio 0')

def ef_poll(a, lab, v, prio=False):
    a.emit(f"s_cmp_lg_u32 s{S_WV}, {ENV('PW_W2', '4')}")
    a.emit(f's_cbranch_scc1 {lab}_ok')
    if prio: a.emit('s_setprio 3')
    a.emit(f's_mov_b32 s{S_CNT}, 0x100000')
    a.label(lab)
    a.emit(f'buffer_load_dword v3, v{v}, s[{SO}:{SO+3}], s{S_Q} offen sc1')
    a.emit(f's_sub_u32 s{S_CNT}, s{S_CNT}, 1')
    a.emit(f's_cbranch_scc1 {lab}_ok')
    a.emit('s_waitcnt vmcnt(0)')
    a.emit('v_cmp_ne_u32 vcc, 1, v3')
    a.emit(f's_cbranch_vccnz {lab}')
    a.label(f'{lab}_ok')
    if prio: a.emit('s_setprio 0')

def ef_flag(a, lab, off):
    a.emit(f's_cmp_lg_u32 s{S_WV}, 4')
    a.emit('s_barrier')
    a.emit(f's_cbranch_scc1 {lab}')
    a.emit(f's_mov_b64 exec, {(1 << REP) - 1:#x}')
    a.emit(f'buffer_store_dword v13, v11, s[{SO}:{SO+3}], s{S_FL} offen offset:{off} sc1')
    a.emit('s_mov_b64 exec, -1')
    a.label(lab)

def dep_ef(a, poste, preh, preg):
    srd(a, SO, 'ws0', WS_FL, FLS)
    a.emit(f's_lshl4_add_u32 s3, s{S_TSI}, s{S_MT}')
    a.emit(f's_and_b32 s4, s{S_NT}, {REP - 1}')
    a.emit('s_lshl4_add_u32 s3, s3, s4')
    a.emit('s_lshl_b32 s3, s3, 7')
    a.emit(f's_sub_u32 s{S_Q}, s3, 32768')
    a.emit('v_lshlrev_b32 v11, 7, v1')
    a.emit('v_and_b32 v2, 15, v1')
    a.emit('v_lshlrev_b32 v2, 2, v2')
    a.emit(f's_bitcmp1_b32 s{S_NT}, 0')
    a.emit('s_cselect_b32 s4, 96, 64')
    a.emit('v_and_b32 v12, 28, v2')
    a.emit('v_add_u32 v12, s4, v12')
    a.emit('v_mov_b32 v13, 1')
    ef_flag(a, 'L_w2_nofe', 64)
    lstamp(a, 0, True)
    poste()
    if ENV('EFP', '1') == '0': ef_poll(a, 'L_w2_pe', 12)
    preh()
    a.emit('s_barrier')
    if ENV('EFP', '1') != '0': ef_poll(a, 'L_w2_pe', 12, ENV('EFP') == '2')
    lstamp(a, 1, True)
    preg()
    ef_flag(a, 'L_w2_nofl', 0)

def dep_late(a, kind, part, n=0):
    ld = f'buffer_load_dword v3, v2, s[{SO}:{SO+3}], s{S_Q} offen sc1'
    if part == 0:
        a.emit(f's_cmp_eq_u32 s{S_WV}, 4')
        a.emit(f's_cselect_b32 s{SO+2}, s{SO+2}, 0')
        a.emit(ld)
        return
    if LF2:
        kind += 'l'
        a.emit(f's_mov_b32 s{S_CNT}, 0x100000')
    a.emit(f's_cmp_lg_u32 s{S_WV}, 4')
    a.emit(f's_cbranch_scc1 L_{kind}_dep')
    a.emit(f's_waitcnt vmcnt({n})')
    a.emit('v_cmp_ne_u32 vcc, 1, v3')
    a.emit(f's_cbranch_vccz L_{kind}_dep')
    a.label(f'L_{kind}_poll')
    a.emit(ld)
    a.emit(f's_sub_u32 s{S_CNT}, s{S_CNT}, 1')
    a.emit(f's_cbranch_scc1 L_{kind}_dep')
    a.emit('s_waitcnt vmcnt(0)')
    a.emit('v_cmp_ne_u32 vcc, 1, v3')
    a.emit(f's_cbranch_vccnz L_{kind}_poll')
    a.label(f'L_{kind}_dep')
    if LF2: return
    if not EF: lstamp(a, 1, True)
    lstamp(a, 2, True)
    if TS and ENV('LST') != 'x': a.emit(f's_mov_b32 s58, s{S_CNT}')

LGO = 163840 - 64
def dep_early(a):
    srd(a, SO, 'ws0', WS_FL, FLS)
    a.emit(f's_lshl_b32 s86, s{S_TSI}, 12')
    a.emit(f's_lshl_b32 s4, s{S_MT}, 8')
    a.emit('s_add_u32 s86, s86, s4')
    a.emit('s_sub_u32 s86, s86, 4096')
    a.emit('v_and_b32 v12, 15, v1')
    a.emit('v_lshlrev_b32 v12, 2, v12')
    a.emit('v_mov_b32 v3, 0')
    a.emit(f'v_mov_b32 v2, {LGO}')
    a.emit('ds_write_b32 v2, v3')
    a.emit('v_mov_b32 v13, 1')
    a.emit(f's_mov_b32 s{S_CNT}, 0x100000')
    a.emit(f's_cmp_lg_u32 s{S_WV}, 4')
    a.emit('s_waitcnt lgkmcnt(0)')
    a.emit('s_barrier')
    a.emit('s_cbranch_scc1 L_w2_go')
    lstamp(a, 0)
    a.emit('s_mov_b64 exec, 1')
    a.emit(f'buffer_store_dword v13, off, s[{SO}:{SO+3}], s{S_FL} sc1')
    a.emit('s_mov_b64 exec, -1')
    a.label('L_w2_poll')
    a.emit(f'buffer_load_dword v3, v12, s[{SO}:{SO+3}], s86 offen sc1')
    a.emit(f's_sub_u32 s{S_CNT}, s{S_CNT}, 1')
    a.emit('s_cbranch_scc1 L_w2_rel')
    a.emit('s_waitcnt vmcnt(0)')
    a.emit('v_cmp_eq_u32 vcc, 0, v3')
    a.emit('s_cbranch_vccnz L_w2_poll')
    a.label('L_w2_rel')
    a.emit('ds_write_b32 v2, v13')
    lstamp(a, 1)
    a.emit('s_branch L_w2_dep')
    a.label('L_w2_go')
    a.emit(f's_mov_b32 s{S_CNT}, 0x2000000')
    a.label('L_w2_gol')
    a.emit('ds_read_b32 v3, v2')
    a.emit(f's_sub_u32 s{S_CNT}, s{S_CNT}, 1')
    a.emit('s_cbranch_scc1 L_w2_dep')
    a.emit('s_waitcnt lgkmcnt(0)')
    a.emit('v_cmp_eq_u32 vcc, 0, v3')
    a.emit('s_cbranch_vccnz L_w2_gol')
    a.label('L_w2_dep')

def late_flag(a):
    a.emit(f's_cmp_lg_u32 s{S_WV}, 4')
    a.emit('s_cbranch_scc1 L_w2_nolate')
    a.emit('v_mov_b32 v3, 2')
    a.emit('s_mov_b64 exec, 1')
    a.emit(f'buffer_store_dword v3, off, s[{SO}:{SO+3}], s{S_FL} sc1')
    a.emit('s_mov_b64 exec, -1')
    a.label('L_w2_nolate')

def late_check(a):
    a.emit(f's_mov_b32 s{S_CNT}, 0x100000')
    a.label('L_w2_lchk')
    a.emit('v_cmp_ne_u32 vcc, 2, v13')
    a.emit('s_cbranch_vccz L_w2_lok')
    a.emit(f'buffer_load_dword v13, v12, s[{SO}:{SO+3}], s86 offen sc1')
    a.emit(f's_sub_u32 s{S_CNT}, s{S_CNT}, 1')
    a.emit('s_waitcnt vmcnt(0)')
    a.emit('s_cbranch_scc0 L_w2_lchk')
    a.label('L_w2_lok')
    if TS: a.emit(f's_mov_b32 s58, s{S_CNT}')
    lstamps_out(a, 'w2')

def gbar(a, kind):
    if not MEGA or (EARLY and kind == 'w2'): return
    if kind == 'attn':
        a.emit(f's_cmp_eq_u32 s{S_LAYER}, 0')
        a.emit('s_cbranch_scc1 L_attn_nog')
    a.emit('s_barrier')
    if kind == 'attn': a.label('L_attn_nog')

def next_phase(a, kind, comp=False):
    nxt = {'attn': 'wo', 'wo': 'w1', 'w1': 'w2', 'w2': 'attn'}[kind]
    if kind == 'w2':
        a.emit(f's_mov_b32 s{S_LAYER}, 1')
        a.emit(f's_add_u32 s12, s22, {WS_X2}')
        a.emit('s_addc_u32 s13, s23, 0')
        a.emit(f's_add_u32 s34, s22, {LSTR}')
        a.emit('s_addc_u32 s35, s23, 0')
    a.emit(f's_add_u32 s{S_TSI}, s{S_TSI}, 1')
    a.emit(f's_branch L_{nxt}_' + ('compute' if comp and (NV or LF2 == 2) and nxt == 'w2' else 'body'))

def last_check(a, kind):
    if kind == 'w2' or (kind == 'attn' and not ONE):
        a.emit(f's_cmp_eq_u32 s{S_LAYER}, {0 if kind == "attn" else 1}')
        a.emit(f's_cbranch_scc1 L_{kind}_end')

def compute_end(a, kind):
    if not MEGA:
        stamps_out(a, kind)
        a.emit('s_endpgm')
        return
    if not TS and not (SKL and kind == 'w2'): last_check(a, kind)
    if TE and kind == 'w2' and not SKL: a.lines[-1] = a.lines[-1].replace('L_w2_end', 'L_fin')
    if kind in EBAR: a.emit('s_barrier')
    import pads
    for x in pads.chain({'attn': 'he', 'wo': 'hw'}.get(kind)): a.emit(x)
    if LF2 == 2 and kind == 'w1': a.lines.append('@W2B')
    if not ((EARLY or NV) and kind == 'w1'):
        a.emit('s_waitcnt lgkmcnt(0)' if EF and kind == 'w1' else f"s_waitcnt vmcnt({int(SF and kind in ('wo', 'w2'))}) lgkmcnt(0)")
        a.emit('s_barrier')
    if TS:
        stamps_out(a, kind)
        if ENV('DIAG') and kind == 'w2': diag(a)
        last_check(a, kind)
    stamp(a, 0, nowait=True)
    next_phase(a, kind, True)

def fin(a):
    if not TE: return
    a.label('L_fin')
    a.emit('s_waitcnt vmcnt(0)')
    a.emit('s_memrealtime s[92:93]')
    srd(a, SP, 'ws0', WS_TS, 1 << 20)
    a.emit(f's_lshl2_add_u32 s4, s2, s{S_WV}')
    a.emit('s_lshl_b32 s4, s4, 3')
    a.emit('s_waitcnt lgkmcnt(0)')
    a.emit('v_mov_b32 v4, s94')
    a.emit('v_mov_b32 v5, s92')
    a.emit('s_mov_b64 exec, 1')
    a.emit(f'buffer_store_dwordx2 v[4:5], off, s[{SP}:{SP+3}], s4')
    a.emit('s_endpgm')

def diag(a):
    ph, j, K, C = [int(x) for x in ENV('DIAG').split(',')]
    a.emit(f's_lshl1_add_u32 s3, s{S_WV}, s{S_LAYER}')
    a.emit('s_cmp_lg_u32 s3, 1')
    a.emit('s_cbranch_scc1 L_diag_end')
    a.emit('s_waitcnt vmcnt(0)')
    a.emit('v_lshlrev_b32 v1, 6, v0')
    for i in range(4): a.emit(f's_mov_b32 s3, {4096*i}'); a.emit(f'buffer_load_dword v{4+i}, v1, s[{SP}:{SP+3}], s3 offen sc1')
    a.emit('s_lshl_b32 s4, s2, 6')
    a.emit(f's_add_u32 s4, s4, {(ph << 16) + 16 * j}')
    a.emit(f'buffer_load_dword v8, off, s[{SP}:{SP+3}], s4 sc1')
    a.emit('s_waitcnt vmcnt(0)')
    for i in range(4): a.emit(f'v_sub_u32 v{4+i}, v8, v{4+i}')
    a.emit('v_max_i32 v4, v4, v5'); a.emit('v_max_i32 v6, v6, v7'); a.emit('v_max_i32 v4, v4, v6')
    a.emit('s_mov_b32 s5, 0')
    a.emit('s_nop 1')
    for i in range(64):
        a.emit(f'v_readlane_b32 s3, v4, {i}')
        a.emit('s_max_i32 s5, s5, s3')
    if C: a.emit(f's_sub_u32 s5, {C}, s5'); a.emit('s_max_i32 s5, s5, 0')
    a.emit('s_min_u32 s5, s5, 15000')
    a.emit(f's_mul_i32 s5, s5, {K}')
    a.emit('s_memrealtime s[6:7]')
    a.emit('s_mov_b32 s4, 0x40000')
    a.emit('s_waitcnt lgkmcnt(0)')
    a.label('L_diag_l')
    a.emit('s_memrealtime s[8:9]')
    a.emit('s_sub_u32 s4, s4, 1')
    a.emit('s_cbranch_scc1 L_diag_end')
    a.emit('s_waitcnt lgkmcnt(0)')
    a.emit('s_sub_u32 s8, s8, s6')
    a.emit('s_cmp_lt_u32 s8, s5')
    a.emit('s_cbranch_scc1 L_diag_l')
    a.label('L_diag_end')

def loader_end(a, kind, check=True):
    if MEGA:
        if kind == LSTK and not EARLY: lstamps_out(a, kind)
        if check: last_check(a, kind)
        a.emit(f's_lshl_b32 s{S_FL}, s{S_TSI}, 15')
        a.emit(f's_lshl_b32 s4, s{S_MT}, 11')
        a.emit(f's_add_u32 s{S_FL}, s{S_FL}, s4')
        a.emit(f's_lshl_b32 s4, s{S_NT}, 2')
        a.emit(f's_add_u32 s{S_FL}, s{S_FL}, s4')
        next_phase(a, kind)

def pf_weights(a, sd, which, size, ldw2, R, sh, L, LMn, tilebytes, NI, vd, row0=0, qkv=False, pair=False):
    if 'nopf' in DBG: return 0
    srd(a, sd, which, 0, size)
    a.emit(f's_and_b32 s3, s{S_WV}, 3')
    a.emit(f's_mul_i32 s3, s3, {NI * (64 >> sh)}')
    a.emit(f's_mul_i32 s4, s{S_CU}, {R}')
    a.emit('s_add_u32 s3, s3, s4')
    if row0: a.emit(f's_add_u32 s3, s3, {row0}')
    a.emit(f'v_lshrrev_b32 v2, {sh}, v1')
    a.emit('v_add_u32 v2, s3, v2')
    a.emit(f'v_mul_u32_u24 v2, {ldw2}, v2')
    a.emit(f'v_and_b32 v3, {(1 << sh) - 1}, v1')
    if L < (1 << sh): a.emit(f'v_min_u32 v3, {L-1}, v3')
    if qkv:
        a.emit('v_lshrrev_b32 v12, 2, v3')
        a.emit('v_lshl_add_u32 v2, v12, 11, v2')
        a.emit('v_and_b32 v3, 3, v3')
    a.emit(f'v_lshl_add_u32 v2, v3, {8 if pair else 7}, v2')
    a.emit('s_and_b32 s3, s2, 7')
    a.emit(f's_lshr_b32 s3, s3, {4 - LMn}')
    a.emit(f's_mul_i32 s3, s3, {tilebytes if pair else (1 << (5 - LMn)) * tilebytes}')
    for i in range(NI):
        a.emit(f'buffer_load_dword v{vd+i}, v2, s[{sd}:{sd+3}], s3 offen')
        if i + 1 < NI: a.emit(f's_add_u32 s3, s3, {(64 >> sh) * ldw2}')
    return NI

_pfc = [0]
def pf_code(a, start, end, vd, forward=True):
    if 'nopfc' in DBG: return 0
    _pfc[0] += 1
    lab = f'L_pfc{_pfc[0]}'
    a.emit('s_getpc_b64 s[4:5]')
    a.label(lab)
    if forward:
        a.emit(f's_add_u32 s4, s4, {start}-{lab}')
        a.emit('s_addc_u32 s5, s5, 0')
    else:
        a.emit(f's_sub_u32 s4, s4, {lab}-{start}')
        a.emit('s_subb_u32 s5, s5, 0')
    a.emit(f's_and_b32 s3, s{S_WV}, 3')
    a.emit('s_lshl_b32 s3, s3, 13')
    a.emit('v_lshl_add_u32 v2, v1, 7, s3')
    a.emit(f'v_min_u32 v2, {end}-{start}-4, v2')
    a.emit(f'global_load_dword v{vd}, v2, s[4:5]')
    return 1

def wbase(a, vd, vt, g='v2', nr=False):
    if nr: a.emit(f'v_lshrrev_b32 v{vd}, 2, v1')
    else:
        a.emit(f'v_bfe_u32 v{vd}, v1, 2, 2')
        a.emit(f'v_lshl_add_u32 v{vd}, {g}, 3, v{vd}')
    a.emit(f'v_lshlrev_b32 v{vd}, 7, v{vd}')
    a.emit(f'v_and_b32 v{vt}, 3, v1')
    a.emit(f'v_lshl_add_u32 v{vd}, v{vt}, 3, v{vd}')
    a.emit(f'v_bfe_u32 v{vt}, v1, 3, 2')
    a.emit(f'v_lshl_add_u32 v{vd}, v{vt}, 5, v{vd}')


def code_touch(a, start, end, nb, sd=SX, loader=False):
    if ENV('CT', '1') == '0': return
    _pfc[0] += 1
    lab = f'L_pfc{_pfc[0]}'
    a.emit(f's_cmp_lg_u32 s{S_LAYER}, 0')
    a.emit(f's_cbranch_scc1 {lab}_skip')
    a.emit('s_getpc_b64 s[4:5]')
    a.label(lab)
    a.emit(f's_lshl_b32 s3, s{S_CU}, 2')
    a.emit(f's_add_u32 s3, s3, s{S_WV}')
    if loader: a.emit('s_sub_u32 s3, s3, 4')
    a.emit(f's_mul_i32 s3, s3, {nb}')
    a.emit(f's_min_u32 s3, s3, {end}-{start}-{nb}')
    a.emit(f's_add_i32 s3, s3, {start}-{lab}')
    a.emit('s_ashr_i32 s6, s3, 31')
    a.emit('s_add_u32 s4, s4, s3')
    a.emit('s_addc_u32 s5, s5, s6')
    for i in range(nb // 64):
        a.emit(f's_load_dword s{84 if loader else SW}, s[4:5], {64*i}')
    a.label(f'{lab}_skip')

def loader_first(a, kind):
    if ENV('LF', '1') == '0': return
    L = a.lines
    ib = max(i for i, l in enumerate(L) if l.strip() == f's_cbranch_scc1 L_{kind}_loader')
    il = L.index(f'L_{kind}_loader:')
    ie = L.index(f'L_{kind}_end:') + 2
    assert L[ie - 1].strip() == 's_endpgm' and L[ib - 1].strip().startswith('s_cmp_ge_u32')
    L[ib - 1] = L[ib - 1].replace('s_cmp_ge_u32', 's_cmp_lt_u32')
    L[ib] = f'  s_cbranch_scc1 L_{kind}_compute'
    a.lines = L[:ib + 1] + L[il:ie] + [f'L_{kind}_compute:'] + L[ib + 1:il] + L[ie:]

def clear_flags(a, part, n=0):
    if not ONE or DS: return
    if part == 0 and 'attn' not in OT: a.emit(f's_load_dwordx2 s[{SC}:{SC+1}], s[0:1], 72')
    a.emit(f's_or_b32 s3, s{S_LAYER}, s{S_WV}')
    a.emit(f's_cbranch_scc1 L_clr_skip{part}')
    if part == 0:
        srd(a, SP, 'ws0', WS_FL, FLS)
        a.emit('s_lshl_b32 s3, s2, 11')
        a.emit('v_lshlrev_b32 v2, 4, v1')
        a.emit(f'buffer_store_dwordx4 v[128:131], v2, s[{SP}:{SP+3}], s3 offen sc1')
        a.emit(f'buffer_store_dwordx4 v[128:131], v2, s[{SP}:{SP+3}], s3 offen offset:1024 sc1')
    else:
        a.emit('v_mov_b32 v3, 1')
        a.emit(f's_and_b32 s{SC+1}, s{SC+1}, 0xffff')
        a.emit(f's_mov_b32 s{SC+2}, 256')
        a.emit(f's_mov_b32 s{SC+3}, 0x00020000')
        a.emit('s_mov_b64 exec, 1')
        a.emit(f's_waitcnt vmcnt({n})')
        a.emit(f'buffer_store_byte v3, off, s[{SC}:{SC+3}], s2 sc1')
        a.emit('s_mov_b64 exec, -1')
    a.label(f'L_clr_skip{part}')

def mf_order(nn, nm, skip=lambda jn, jm: False):
    m = ENV(f'MFO{nn}', ENV('MFO', 's'))
    if m == 'n': o = [(jn, jm) for jn in range(nn) for jm in range(nm)]
    elif m == 's': o = [(jn, jm if not jn & 1 else nm - 1 - jm) for jn in range(nn) for jm in range(nm)]
    elif m == 'm': o = [(jn, jm) for jm in range(nm) for jn in range(nn)]
    elif m == 'z': o = [(jn if not jm & 1 else nn - 1 - jn, jm) for jm in range(nm) for jn in range(nn)]
    elif m == 'd': o = [(i % nn, (i // nn + i % nn) % nm) for i in range(nn * nm)]
    return [x for x in o if not skip(*x)]
```

```python
from common import *
import re

def ktab(a, vt, sh, P1, P2, tb):
    a.emit('v_and_b32 v2, 3, v1')
    a.emit('v_lshlrev_b32 v2, 3, v2')
    a.emit(f'v_bfe_i32 v{vt}, s{tb}, v2, 8')
    a.emit(f's_and_b32 s3, s{S_MT}, 3')
    a.emit(f's_mul_i32 s4, s3, {P2 // 4}')
    a.emit(f'v_add3_u32 v3, v{vt}, v1, s4')
    if P1 & (P2 - 1): a.emit(f'v_subrev_u32 v3, {P1}, v3')
    a.emit(f'v_and_b32 v3, {P2 - 1}, v3')
    if P1:
        MR = int(ENV('MR', '4'))
        if NV: a.emit(f'v_cmp_gt_u32 vcc, {NV}, v1')
        a.emit(f's_mul_i32 s3, s3, {MR // 4}')
        if NV:
            a.emit(f's_and_b32 s4, s{S_NT}, 1')
            a.emit(f'v_cndmask_b32_e64 v{vt+1}, {P1 - NV}, {NV}, vcc')
            a.emit(f'v_cndmask_b32_e64 v2, {P1 - 2 * NV}, {NV}, vcc')
            a.emit(f'v_add3_u32 v{vt}, v{vt}, v1, v2')
            for _ in range(2):
                a.emit(f'v_sub_u32 v2, v{vt}, v{vt+1}')
                a.emit(f'v_min_u32 v{vt}, v{vt}, v2')
            a.emit(f'v_cndmask_b32_e64 v2, {NV}, 0, vcc')
            a.emit(f'v_add_u32 v{vt}, v{vt}, v2')
        else:
            a.emit(f'v_add3_u32 v{vt}, v{vt}, v1, {P1}')
            a.emit(f's_bitcmp1_b32 s{S_NT}, 0')
            a.emit(f's_cselect_b32 s4, {P1}, 0')
            for _ in range(2):
                a.emit(f'v_subrev_u32 v2, {P1}, v{vt}')
                a.emit(f'v_min_u32 v{vt}, v{vt}, v2')
        if MR:
            a.emit(f'v_cmp_gt_u32 vcc, {MR}, v{vt}')
            a.emit(f'v_add_u32 v2, s3, v{vt}')
            a.emit(f'v_subrev_u32 v{vt+1}, {MR}, v2')
            a.emit(f'v_min_u32 v2, v{vt+1}, v2')
            a.emit(f'v_cndmask_b32 v{vt}, v{vt}, v2, vcc')
        a.emit(f'v_cmp_gt_u32 vcc, {P1}, v1')
        a.emit(f'v_lshl_add_u32 v{vt}, v{vt}, 1, s4' if NV else f'v_add_u32 v{vt}, s4, v{vt}')
        a.emit(f'v_add_u32 v3, {2 * P1}, v3')
        a.emit(f'v_cndmask_b32 v3, v3, v{vt}, vcc')
    a.emit(f'v_lshlrev_b32 v{vt}, {sh}, v3')

def ktab_ot(a, vt, sh, tb):
    KS = int(ENV('KS2', '2'))
    a.emit(f's_add_u32 s3, s{S_MT}, s{S_HD}')
    a.emit('s_and_b32 s3, s3, 3')
    for g in range(4):
        o = list(range(17))
        for t in range(KS + g, 14, 4): o[t:t + 3] = [t + 2, t, t + 1]
        assert o[0] == 0 and o[16] == 16
        v = sum(((t - o[t]) & 3) << (2 * t) for t in range(16))
        if g: a.emit(f's_cmp_eq_u32 s3, {g}')
        a.emit(f's_cselect_b32 s4, {v:#x}, s4' if g else f's_mov_b32 s4, {v:#x}')
    P1 = int(ENV('P1', '23')); P2 = 56 - 2 * P1
    a.emit('v_subrev_u32 v2, 3, v1')
    if P1 > 20: a.emit('v_min_u32 v2, 16, v2')
    a.emit('v_lshlrev_b32 v3, 1, v2')
    a.emit(f'v_bfe_i32 v{vt}, s4, v3, 2')
    a.emit(f'v_sub_u32 v{vt}, v1, v{vt}')
    a.emit(f'v_subrev_u32 v{vt}, {7 if P1 > 20 else 6}, v{vt}')
    if EF:
        a.emit(f'v_subrev_u32 v3, 7, v{vt}')
        a.emit(f'v_min_u32 v3, v3, v{vt}')
        a.emit(f'v_cmp_eq_u32 vcc, s{S_HD}, v3')
        a.emit(f's_and_b32 s3, s{S_NT}, 1')
        a.emit(f'v_cmp_lt_i32 s[4:5], 6, v{vt}')
        a.emit(f'v_cndmask_b32_e64 v3, v3, 7, vcc')
        a.emit('s_nop 0')
        a.emit('v_addc_co_u32 v2, vcc, v3, v3, s[4:5]')
    else:
        a.emit(f'v_ashrrev_i32 v3, 1, v{vt}')
        a.emit(f'v_cmp_eq_u32 vcc, s{S_HD}, v3')
        a.emit(f's_and_b32 s3, s{S_NT}, 1')
        a.emit(f'v_or_b32 v2, 14, v{vt}')
        a.emit(f'v_cndmask_b32 v2, v{vt}, v2, vcc')
    a.emit(f'v_cmp_gt_i32 vcc, 0, v{vt}')
    a.emit(f's_lshl2_add_u32 s4, s3, {20 if P1 > 20 else 19}')
    a.emit(f'v_add_u32 v{vt}, s4, v{vt}')
    a.emit('s_lshl4_add_u32 s4, s3, 24')
    a.emit('v_add_u32 v2, s4, v2')
    a.emit(f'v_cndmask_b32 v{vt}, v2, v{vt}, vcc')
    if P1 > 20:
        a.emit(f's_and_b32 s5, s{S_MT}, 3')
        a.emit(f"s_mul_i32 s5, s5, {ENV('RCM', '3')}")
        a.emit(f's_sub_u32 s5, s5, {P1}')
        a.emit('v_add_u32 v3, s5, v1')
        for _ in range(2):
            a.emit(f'v_subrev_u32 v2, {P2}, v3')
            a.emit('v_min_u32 v3, v3, v2')
        a.emit(f'v_cmp_gt_u32 vcc, {P1}, v1')
        a.emit(f's_sub_u32 s5, s3, {2 * P1}')
        a.emit('v_lshl_add_u32 v2, v1, 1, s5')
        a.emit('v_cndmask_b32 v3, v3, v2, vcc')
        a.emit(f's_add_u32 s5, s{S_HD}, {P1 - 20}')
        a.emit('v_ashrrev_i32 v2, 1, v3')
        a.emit('v_add_u32 v2, s5, v2')
        a.emit('v_and_b32 v2, 7, v2')
        a.emit('v_and_b32 v3, 1, v3')
        a.emit('v_cmp_gt_u32 vcc, 21, v1')
        a.emit('v_lshl_add_u32 v3, v3, 3, v2')
        a.emit(f's_lshl1_add_u32 s4, s{S_HD}, s4')
        a.emit(f's_lshl3_add_u32 s3, s3, s{S_HD}')
        a.emit(f'v_cndmask_b32 v3, v3, v{vt}, vcc')
        a.emit('v_writelane_b32 v3, s4, 0')
        a.emit('s_add_u32 s4, s4, 1')
        a.emit('v_writelane_b32 v3, s3, 2')
        a.emit('v_writelane_b32 v3, s4, 1')
        if OH == 2 and sh == 11:
            a.emit('v_cmp_lt_u32 vcc, 23, v3')
            a.emit('v_lshrrev_b32 v2, 1, v3')
            a.emit(f'v_and_b32 v{vt}, 1, v3')
            a.emit(f'v_lshl_add_u32 v2, v{vt}, 4, v2')
            a.emit('v_add_u32 v2, 12, v2')
            a.emit('v_cndmask_b32 v3, v3, v2, vcc')
        a.emit(f'v_lshlrev_b32 v{vt}, {sh}, v3')
        return
    a.emit('v_and_b32 v2, 3, v1')
    a.emit('v_lshlrev_b32 v2, 3, v2')
    a.emit(f'v_bfe_i32 v3, s{tb}, v2, 8')
    a.emit(f's_lshl2_add_u32 s5, s{S_MT}, 12')
    a.emit('v_add3_u32 v3, v3, v1, s5')
    a.emit('v_and_b32 v2, 7, v3')
    a.emit(f'v_cmp_eq_u32 vcc, s{S_HD}, v2')
    a.emit('v_bfe_u32 v2, v3, 3, 1')
    a.emit('v_lshl_add_u32 v2, v2, 2, 19')
    a.emit('v_and_b32 v3, 15, v3')
    a.emit('v_cndmask_b32 v3, v3, v2, vcc')
    a.emit('v_cmp_gt_u32 vcc, 20, v1')
    a.emit(f's_lshl1_add_u32 s4, s{S_HD}, s4')
    a.emit(f's_lshl3_add_u32 s3, s3, s{S_HD}')
    a.emit(f'v_cndmask_b32 v3, v3, v{vt}, vcc')
    a.emit('v_writelane_b32 v3, s4, 0')
    a.emit('s_add_u32 s4, s4, 1')
    a.emit('v_writelane_b32 v3, s3, 2')
    a.emit('v_writelane_b32 v3, s4, 1')
    a.emit(f'v_lshlrev_b32 v{vt}, {sh}, v3')

EVX, EVT, EVB = 24, 30, 27; EBIA = [4, 10, 124, 126]; ERING = [128, 144, 224, 64, 80, 240]
def w2_pre(a):
    P1 = int(ENV('P1', '23'))
    tile_map(a, 2, None, pair=True)
    rot_table(a, S_TB, S_MT, S_HD, 'w2')
    ktab(a, EVT, 11, P1, 56 - 2 * P1, S_TB)
    a.emit(f's_lshl_b32 s8, s{S_MT}, 7')
    a.emit(f's_lshl_b32 s9, s{S_WV}, 5')
    a.emit('s_add_u32 s8, s8, s9')
    a.emit('s_mul_i32 s9, s8, 7168')
    a.emit(f'v_lshl_add_u32 v{EVX}, v1, 4, s9')
    a.emit(f'v_add_u32 v{EVX+1}, {16*7168}, v{EVX}')
    a.emit('v_lshrrev_b32 v2, 4, v1')
    a.emit(f's_lshl_b32 s10, s{S_NT}, 7')
    a.emit(f'v_lshl_add_u32 v{EVB}, v2, 3, s10')

def w2_early(a):
    NG = int(ENV('NG2', '3'))
    for x in range(NG): a.emit(f'v_readlane_b32 s{SR+x}, v{EVT}, {x}')
    srd(a, SB, 'b2', 0, 2048)
    srd(a, SX, 'ws', WS_H, 2048 * 7168)
    for jn in range(4):
        a.emit(f'buffer_load_dwordx2 v[{EBIA[jn]}:{EBIA[jn]+1}], v{EVB}, s[{SB}:{SB+3}], 0 offen offset:{jn*32}')
    for x in range(NG):
        for ks in range(2):
            for jm in range(2):
                r = ERING[x] + (ks * 2 + jm) * 4
                a.emit(f'buffer_load_dwordx4 v[{r}:{r+3}], v{EVX+jm}, s[{SX}:{SX+3}], s{SR+x} offen offset:{ks*1024}')

def gen_gemm64y(a, kind, tsidx, side):
    K = 1024 if kind == 'wo' else 3584
    lda2 = 7168 if OH else K * 2; ldw2 = 2048
    N = K // 64
    P1 = int(ENV('P1', '23')) if kind == 'w2' else 0
    P2 = N - 2 * P1
    B16 = ENV('XB16', '1') == '1'
    NXC = 4 if B16 else 8; CH = NXC * 1024
    G0, GW = (131072, 28672) if kind == 'wo' else (0, 0)
    def slot(t):
        if kind == 'wo' and 'w1' in OT: return 28672 + 8192 * t + (4096 if t >= 12 else 0)
        g = G0 + (t >> 2) * 32768
        if g >= 163840: g = GW + (g - 163840) % (163840 - GW)
        return g + (t & 3) * 8192
    XB = 131072
    HR = int(ENV('HR', '6')) if P1 else 0
    sched = [(t >> 1, t & 1) for t in range(2 * (P1 - HR))] + [(x, u) for u in (0, 1) for x in range(P1 - HR, P1)] + [(x, 1) for x in range(P1, P1 + P2)]
    TU = 2 * P1 - max(HR, 1)
    NPRE = int(ENV('NPREO', '16')) if kind == 'wo' else int(ENV('NPRE', '20'))
    PSTEP = 64 if kind == 'w2' else 1024
    body = f'L_{kind}_body'; end = f'L_{kind}_end'
    VXO, VWB, VWA, VO, VT, VE = 4, 6, 26, 12, 15, 19
    XR = 32; FW = [160, 192]; ACC = [128, 96]; D = 240; BIA = 192
    SPC = NV if P1 else 0
    BIA = [BIA + 2 * jn for jn in range(4)]
    if SPC: VXO, VT, ACC, BIA = EVX, EVT, [32, 96], EBIA
    ot = kind == 'w2' and 'w2' in OT
    if ot: BIA = OBIA; assert P1 >= 20 and not SPC
    PW = ot and LF2 == 2
    SU = SW if PW else SO
    if PW: VT = 30
    acc = lambda jn, jm, u=1: ACC[u] + (jn * 2 + jm) * 4
    fx = lambda r, ks, jm: XR + 16 * r + (ks * 2 + jm) * 4
    fw = lambda s, ks, jn: FW[s] + (ks * 4 + jn) * 4
    a.label(f'L_{kind}_c0')
    a.label(body)
    tile_map(a, 2, end, pair=True)
    rot_table(a, S_TB, S_MT, S_HD, kind)
    a.emit(f's_cmp_ge_u32 s{S_WV}, 4')
    a.emit(f's_cbranch_scc1 L_{kind}_loader')
    iA = len(a.lines)
    ownx = [f'ds_read_b128 v[{32+4*i}:{35+4*i}], v2 offset:{(i>>2)*16384+(i&1)*2048+(i&2)*512}' for i in range(12)]
    if PW:
        a.emit(f's_lshr_b32 s3, s{S_NT}, 3')
        a.emit(f's_and_b32 s{S_HD}, s{S_NT}, 7')
        a.emit(f's_lshl1_add_u32 s{S_NT}, s{S_HD}, s3')
        ktab_ot(a, VT, 11, S_TB)
    elif ot:
        a.emit(f's_lshl_b32 s3, s{S_WV}, 12')
        a.emit(f's_add_u32 s3, s3, {OHB}')
        a.emit('v_lshl_add_u32 v2, v1, 4, s3')
        for i in range(12): a.emit(f'ds_read_b128 v[{32+4*i}:{35+4*i}], v2 offset:{(i>>2)*16384+(i&1)*2048+(i&2)*512}')
        ktab_ot(a, VT, 11, S_TB)
        if 'xhit' in DBG: a.emit(f'v_and_b32 v{VT}, 0x1800, v{VT}')
        if ENV('RE', '1') == '1' and not EF:
            a.emit('s_waitcnt lgkmcnt(0)')
            a.emit('s_barrier')
    elif SPC: tile_map(a, 2, None, pair=True)
    else: ktab(a, VT, 12 if OH == 1 else 11, P1, P2, S_TB)
    a.emit('v_and_b32 v3, 15, v1')
    a.emit('v_lshrrev_b32 v2, 4, v1')
    a.emit(f's_lshl_b32 s8, s{S_MT}, 7')
    a.emit(f's_lshl_b32 s9, s{S_WV}, 5')
    a.emit('s_add_u32 s8, s8, s9')
    a.emit(f's_mul_i32 s9, s8, {lda2}')
    if 'xsm' in DBG:
        a.emit('s_and_b32 s9, s8, 0x67f')
        a.emit(f's_mul_i32 s9, s9, {lda2}')
    if not SPC and ENV('TID', '1') != '1':
        a.emit(f'v_lshl_add_u32 v{VXO}, v1, 4, s9')
        a.emit(f'v_add_u32 v{VXO+1}, {16*lda2}, v{VXO}')
    E2 = ot and EF == 2
    if E2: xpitch(a, 7, True)
    iB = len(a.lines)
    a.emit('v_add_u32 v13, s8, v3')
    a.emit(f's_lshl_b32 s10, s{S_NT}, 7')
    a.emit('v_lshl_add_u32 v14, v2, 3, s10')
    a.emit('v_and_b32 v16, 1, v2')
    a.emit('v_lshrrev_b32 v17, 1, v2')
    F2 = ENV('FL', '2') == '2'
    if kind == 'w2' and F2:
        assert 'attn' in OT
        a.emit('v_lshlrev_b32 v4, 3, v3')
        a.emit('v_and_b32 v4, 0x70, v4')
        a.emit('v_lshlrev_b32 v16, 3, v2')
        a.emit('v_xor_b32 v4, v4, v16')
        a.emit('v_lshl_add_u32 v4, v3, 7, v4')
        a.emit(f's_lshl_b32 s3, s{S_WV}, 12')
        a.emit('v_add_u32 v4, s3, v4')
        a.emit('v_lshl_add_u32 v5, v1, 4, s3')
        if not E2: xpitch(a, 7, True)
        a.emit('v_xor_b32 v16, v1, v2')
        a.emit('v_and_b32 v16, 7, v16')
        a.emit('v_lshl_add_u32 v16, v16, 4, s10')
        a.emit('v_lshrrev_b32 v14, 3, v1')
        a.emit('v_add_u32 v14, s8, v14')
        a.emit(f'v_mad_u32_u24 v{VO}, v14, s7, v16')
        FL = False
    elif kind == 'w2':
        a.emit('v_lshlrev_b32 v16, 5, v16')
        a.emit('v_lshl_add_u32 v16, v17, 4, v16')
        if 'attn' in OT:
            a.emit('v_lshlrev_b32 v4, 3, v3')
            a.emit('v_and_b32 v4, 0x70, v4')
            a.emit('v_xor_b32 v4, v4, v16')
            a.emit('v_lshl_add_u32 v4, v3, 7, v4')
            a.emit(f's_lshl_b32 s3, s{S_WV}, 12')
            a.emit('v_add_u32 v4, s3, v4')
            a.emit('v_xor_b32 v5, 64, v4')
        a.emit('v_add_u32 v16, s10, v16')
        if not E2: xpitch(a, 7, True)
        FL = ENV('FL', '2') == '1'
        if FL:
            a.emit('v_and_b32 v14, 8, v3')
            a.emit('v_lshl_add_u32 v16, v14, 3, v16')
            a.emit('v_sub_u32 v14, v13, v14')
            assert ot
        a.emit(f'v_mad_u32_u24 v{VO}, v{14 if FL else 13}, s7, v16')
    else:
        if 'w1' in NS: a.emit('v_lshlrev_b32 v16, 4, v1')
        else:
            a.emit('v_lshl_add_u32 v16, v16, 1, v17')
            a.emit('v_lshlrev_b32 v16, 8, v16')
            a.emit('v_lshl_add_u32 v16, v3, 4, v16')
        a.emit(f's_add_u32 s9, s8, s{S_NT}')
        a.emit('s_lshl_b32 s9, s9, 11')
        a.emit(f'v_add_u32 v{VO}, s9, v16')
        if 'w1' in OT:
            a.emit(f's_lshl_b32 s9, s{S_WV}, 12')
            a.emit(f'v_add_u32 v{VE}, s9, v16')
    MS = int(ENV('MS', '1'))
    if MS:
        assert not SF
        a.emit('v_bfe_u32 v16, v1, 2, 2')
        a.emit('v_xor_b32 v16, v16, v2')
        a.emit('v_lshl_add_u32 v18, v16, 17, v13')
        a.emit(f's_lshl_b32 s10, s{S_NT}, 14')
        a.emit('v_lshl_add_u32 v18, v18, 3, s10')
    else:
        a.emit('v_lshl_add_u32 v18, v17, 4, v13')
        a.emit('v_lshlrev_b32 v18, 3, v18')
        a.emit('v_and_b32 v16, 1, v2')
        a.emit('v_lshl_add_u32 v18, v16, 2, v18')
        a.emit(f's_lshl_b32 s10, s{S_NT}, 14')
        a.emit('v_add_u32 v18, s10, v18')
    nr = kind in NS and NSR
    wbase(a, VWB, 17, nr=nr)
    for i in range(1, 1 if PW else 4): a.emit(f'v_xor_b32 v{VWB+i}, {32*i}, v{VWB}')
    a.emit('s_mov_b32 s11, 0xffff0000')
    if E2: bl = a.lines[iB:]; del a.lines[iB:]
    if kind == 'wo':
        srd(a, SX, 'ws', WS_H + OHO if OH else WS_O, 4 * MB)
        srd(a, SO, 'ws', WS_X1, 4 * MB)
    else:
        if not SPC:
            if not ot: srd(a, SB, 'b2', 0, 2048)
            for jn in range(0 if ot else 4):
                a.emit(f'buffer_load_dwordx2 v[{BIA[jn]}:{BIA[jn]+1}], v14, s[{SB}:{SB+3}], 0 offen offset:{jn*32}')
            srd(a, SX, ENV('HB', 'ws'), WS_H, 2048 * 7168)
        srd(a, SU, 'out', 0, 4 * MB)
        srd(a, SR, 'ws0', WS_X2, 4 * MB)
        a.emit(f's_cmp_eq_u32 s{S_LAYER}, 0')
        a.emit(f's_cselect_b64 s[{SU}:{SU+1}], s[{SR}:{SR+1}], s[{SU}:{SU+1}]')
        a.emit(f's_lshl_b32 s{SU+2}, s7, 11')
        if E2:
            for x in range(3, 5): a.emit(f'v_readlane_b32 s{SR+(x&3)}, v{VT}, {x}')
    if not E2: srd(a, ST, 'ws', WS_ST if kind == 'wo' else WS_ST2, 16 * 16384)
    TID = ENV('TID', '1') == '1'
    if TID:
        a.emit(f's_mul_i32 s9, s8, {lda2}')
        if OH and P1 and not PW: a.emit(f's_add_u32 s9, s9, s{S_T}')
        a.emit(f's_add_u32 s{SX}, s{SX}, s9')
        a.emit(f's_addc_u32 s{SX+1}, s{SX+1}, 0x100000')
        a.emit(f's_add_u32 s{SC}, s{SX}, {16 * lda2}')
        a.emit(f's_addc_u32 s{SC+1}, s{SX+1}, 0')
        for r in (SX, SC):
            a.emit(f"s_mov_b32 s{r+2}, {16 * lda2 - (OHO if kind == 'wo' else 0)}")
            a.emit(f's_mov_b32 s{r+3}, 0x00800000')
    if E2:
        RB = int(ENV('RB', '0'))
        a.lines += bl[:RB]
        a.emit('s_waitcnt vmcnt(0) lgkmcnt(0)')
        a.emit('s_barrier')
        iR = len(a.lines)
        a.lines += bl[RB:]
        srd(a, ST, 'ws', WS_ST2, 16 * 16384)
    if kind == 'wo':
        if ENV('CT2', 'l') == 'l': code_touch(a, 'L_w1_c0', 'L_w1_c1', 128, SW)
        elif ENV('CT2') == 'o': code_touch(a, 'L_w2_c0', 'L_w2_c1', 192, SW)
        else: code_touch(a, 'L_w1_c0', 'L_w2_c1', 320, SW)
    DX = int(ENV('DX', '2'))
    CLW = DX == 1 and not P1 and ENV('CLP', 'e') == 'w'
    if CLW:
        for i in range(4): a.emit(f'v_mov_b32 v{128+i}, -1')
    if (P1 and DX) or CLW:
        srd(a, SP, 'ws', WS_XP, 4 * MB)
        a.emit(f's_or_b32 s{SP+1}, s{SP+1}, 0x100000')
        a.emit(f's_mov_b32 s{SP+3}, 0x00800000')
        a.emit(f's_lshl4_add_u32 s4, s{S_MT}, s{S_NT}')
        a.emit(f's_lshl2_add_u32 s4, s4, s{S_WV}')
        if DX == 2:
            if not PW: srd(a, SB, 'ws0', WS_FL, FLS)
            a.emit(f's_add_u32 s6, s{S_LAYER}, 4')
            a.emit('s_lshl_b32 s6, s6, 10')
            a.emit('s_add_u32 s6, s6, s4')
            a.emit('s_lshl_b32 s6, s6, 6')
            if not PW: a.emit(f'v_mov_b32 v{VE}, 1')
        a.emit('s_lshl_b32 s4, s4, 12')
        a.emit('s_xor_b32 s5, s4, 16384')
    elif P1:
        a.emit(f's_mul_i32 s3, s{S_WV}, {CH}')
        a.emit(f's_add_u32 s3, s3, {XB}')
        a.emit(f'v_lshl_add_u32 v{VE}, v1, 4, s3')
    if P1 and not ot:
        for i in range(32): a.emit(f'v_mov_b32 v{ACC[0]+i}, 0')
    bases = []
    for t in sorted(range(min(N, 20)), key=slot):
        if not bases or slot(t) + 8191 - bases[-1] > 65535: bases.append(slot(t))
    VSET = [VWB, 20, 26]
    fil = [f'v_add_u32 v{VSET[k]+i}, {bases[k]}, v{VWB+i}' for k in (2, 1, 0) for i in range(4) if bases[k] or k]
    if not PW:
        for x in fil: a.emit(x)
    xof = lambda t: sched[t][0]
    NX = P1 + P2
    last = lambda x: sched.index((x, 1))
    def xl(x, reg):
        if TID: return [(f'buffer_load_dwordx4 v[{reg+(ks*2+jm)*4}:{reg+(ks*2+jm)*4+3}], off, s[{(SX, SC)[jm]}:{(SX, SC)[jm]+3}], s{SR+(x&3)} offset:{ks*1024}' + (ENV('XLF', ' sc1') if OH and P1 else ''), 'V', ('x', x, ks))
                for ks in range(2) for jm in range(2)]
        return [(f'buffer_load_dwordx4 v[{reg+(ks*2+jm)*4}:{reg+(ks*2+jm)*4+3}], v{VXO+jm}, s[{SX}:{SX+3}], s{SR+(x&3)} offen offset:{ks*1024}', 'V', ('x', x, ks))
                for ks in range(2) for jm in range(2)]
    def reads(t):
        o = []
        k = max(i for i, b in enumerate(bases) if b <= slot(t))
        for ks in range(2):
            for jn in range(4):
                for h in range(2):
                    d = fw(t & 1, ks, jn) + 2 * h
                    o.append((f'ds_read_b64_tr_b16 v[{d}:{d+1}], v{VSET[k]+jn} offset:{slot(t)-bases[k]+ks*4096+h*(2048 if nr else 512)}', 'L', ('w', t, ks)))
        return o
    xreg = {}
    def mf(t):
        o = []
        for ks in range(2):
            for jn, jm in [(i & 3, i >> 2) for i in range(8)] if MS and not P1 and t == N - 1 and ks else mf_order(4, 2):
                if True:
                    c = acc(jn, jm, sched[t][1]); x = xreg[xof(t)] + (ks * 2 + jm) * 4
                    o.append(f'v_mfma_f32_16x16x32_bf16 v[{c}:{c+3}], v[{fw(t&1,ks,jn)}:{fw(t&1,ks,jn)+3}], v[{x}:{x+3}], ' + ('0' if ot and t == ks == 0 else f'v[{c}:{c+3}]'))
        return o
    U = kind[1].upper()
    NG = int(ENV('NG' + U, '3'))
    ring = [32, 48, 64, 80, 224, 240][:int(ENV('RING' + U, '6' if P1 else '4'))]
    NB = 2 if E2 else int(ENV('NB', '3'))
    if SPC: ring = ERING
    elif ot:
        assert NG == 3
        for x in range(3, 3 if E2 else 3 + NB): a.emit(f'v_readlane_b32 s{SR+(x&3)}, v{VT}, {x}')
    else:
        for x in range(NG): a.emit(f'v_readlane_b32 s{SR+x}, v{VT}, {x}')
    if PW:
        assert F2 and DX == 2 and TID
        ren = {'v4': 'v26', 'v5': 'v27', 'v12': 'v28', 'v18': 'v29', 'v6': 'v8', 'v13': 'v76', 'v14': 'v77', 'v16': 'v78', 'v17': 'v79', 's10': 's14'}
        pa = [re.sub(r'\b[vs]\d+\b', lambda m: ren.get(m.group(0), m.group(0)), l) for l in a.lines[iA:]]
        del a.lines[iA:]
        for x in ('s_mul_i32 s9, s8, 7168', 'v_lshl_add_u32 v77, v2, 3, s14', 'v_and_b32 v78, 1, v2', f's_mov_b32 s{SX+2}, 14680064', f's_mov_b32 s{SX+3}, 0x00020000',
                  f's_mov_b32 s{SU+2}, 4194304', f's_mov_b32 s{SR+2}, 4194304', f's_mov_b32 s{SR+3}, 0x00020000', f's_mov_b32 s{SP+3}, 0x00020000',
                  'v_writelane_b32 v3, s4, 0', 's_add_u32 s4, s4, 1', 'v_writelane_b32 v3, s3, 2', 'v_writelane_b32 v3, s4, 1', f's_lshl1_add_u32 s4, s{S_HD}, s4', f's_lshl3_add_u32 s3, s3, s{S_HD}'):
            pa.remove('  ' + x)
        i = pa.index('  v_lshl_add_u32 v3, v3, 3, v2'); pa[i - 2], pa[i - 1] = pa[i - 1], pa[i - 2]
        while '@S' in a.lines:
            i = a.lines.index('@S'); a.lines[i:i + 1] = pa[:1]; del pa[:1]
        MA = int(ENV('MA', '50'))
        i = a.lines.index('@W2A'); a.lines[i:i + 1] = pa[MA:]
        i = a.lines.index('@W2G'); a.lines[i:i + 1] = pa[:MA]
        fil = [f'v_mov_b32 {k}, {ren[k]}' for k in ('v4', 'v5', 'v12', 'v18')] + [f'v_mov_b32 v{VE}, 1'] + fil[4:] + fil[:4]
        b = Asm(); srd(b, SB, 'ws0', WS_FL, FLS); fil += [l.strip() for l in b.lines]
    if kind == 'wo' and F2:
        a.emit(f's_cmp_lg_u32 s{S_LAYER}, 0')
        a.emit('s_cbranch_scc1 L_wo_nosw')
    for i in range(0 if kind == 'w2' and 'w1' in NS else 4):
        for h in range(2): a.emit(f'v_permlane16_swap_b32 v{D+4*i+h}, v{D+4*i+2+h}')
    if kind == 'wo' and F2: a.label('L_wo_nosw')
    TF = int(ENV('TF', '-1')); TG = int(ENV('TG', '15'))
    if SF:
        a.emit('v_mov_b32 v13, -1')
        a.emit(f'buffer_store_dword v13, v18, s[{ST}:{ST+3}], 0 offen sc1')
        assert not E2
    import pads
    for x in pads.chain('hg') if kind == 'wo' else []: a.emit(x)
    if not PW: a.emit('s_waitcnt lgkmcnt(0)' + (f' vmcnt({4 * NG + 4 if EX == 14 else 0})' if SPC and TF < 0 else ''))
    if not (ot and ENV('RE', '1') == '1'): a.emit('s_barrier')
    pre = []
    for x in range(NG):
        xreg[x] = ring[x]; pre += xl(x, ring[x])
    if SPC: pre = [('', k, tg) for _, k, tg in pre] + [('', 'V', 'st')] * (14 - EX)
    if ot: pre = [('', 'L', tg) for _, k, tg in pre] + [('', 'V', 'st')] * (EF == 1)
    if E2:
        xe = xl(3, ring[3]) + xl(4, ring[4])
        XD_ = int(ENV('XED', '8'))
        for i, y in enumerate(xe): a.lines.insert(iR + i * (XD_ + 1), '  ' + y[0])
        pre += [('', k, tg) for _, k, tg in xe]
    if PW:
        pre = [(y, 'L', p[2]) for y, p in zip(ownx, pre)]
        pre = pre[:2] + reads(0)[:8] + pre[2:4] + reads(0)[8:] + pre[4:]
    else: pre += reads(0)
    npre = len(pre)
    P = lambda x: (x, '', None)
    if kind == 'w2' and not ot: pre.append(P(f's_waitcnt vmcnt({len(pre) - 16})'))
    for jn in range(4):
        if kind == 'w2':
            for h in range(2):
                pre.append(P(f'v_lshlrev_b32 v{216+2*h}, 16, v{BIA[jn]+h}'))
                pre.append(P(f'v_and_b32 v{217+2*h}, s11, v{BIA[jn]+h}'))
        for jm in range(2):
            c = acc(jn, jm); r = D + (jm * 4 + jn) * 2
            for h in range(2):
                pre.append(P(f'v_lshlrev_b32 v{c+2*h}, 16, v{r+h}'))
                pre.append(P(f'v_and_b32 v{c+2*h+1}, s11, v{r+h}'))
                if kind == 'w2': pre.append(P(f'v_pk_add_f32 v[{c+2*h}:{c+2*h+1}], v[{c+2*h}:{c+2*h+1}], v[{216+2*h}:{217+2*h}]'))
    if PW:
        NI = int(ENV('NI', '64'))
        pb = [f'v_add_u32 v2, {OHB}, v27', 'v_mov_b32 v6, v8', 'v_xor_b32 v7, 32, v8', 'v_xor_b32 v9, 96, v8', 'v_xor_b32 v8, 64, v8', 's_waitcnt vmcnt(14)'] + [x[0] for x in pre[npre:npre + NI]]
        del pre[npre:npre + NI]
        i = a.lines.index('@W2B'); a.lines[i:i + 1] = ['  ' + x for x in pb]
    pre.append(('', 'W', [('w', 0, 0), ('x', 0, 0)]))
    if TS:
        b = Asm(); stamp(b, 1); pre += [P(l.strip()) for l in b.lines]
    gp = [[] for _ in range(16 * N + 1)]
    waits = {}
    for t in range(N):
        if t + 1 < N:
            for i, x in enumerate(reads(t + 1)): gp[16 * t + i].append(x)
        for g, tt, ks in ((16 * t + 7, t, 1), (16 * t + 15, t + 1, 0)):
            if tt < N:
                waits[g] = [('w', tt, ks), ('x', xof(tt), ks)]
                gp[g].append(('', 'W', waits[g]))
    def put(g, x, cap=2):
        while len(gp[g]) >= cap and g < 16 * N: g += 1
        gp[g].append(x); return g
    if PW:
        for x in fil: put(0, P(x))
    BP = int(ENV('BP', '4'))
    ZS = int(ENV('ZS', '50' if DX else '54')) if P1 else N - 1
    XS = int(ENV('XS', '43' if DX else '41'))
    PS = int(ENV('PS', '0'))
    bars = list(range(BP - 1, min(2 * P1, XS - 1), BP)) + [XS] + ([PS] if PS else []) + ([] if DX == 1 else [ZS]) if P1 else [int(x) for x in ENV('BWO', ('4,13' if WD == 'c' else '3,10') if 'w1' in OT else '3,7,12').split(',')]
    if SPC:
        bars = [TF] + [t for t in bars if t > TF + 1]
        assert TG in bars
        if EX < 14 and TF >= 0: waits[16 * TF + 7].append('st')
    if ot: bars = [int(x) for x in ENV('BW2', '1,7' if PW else ['2,7', '1,7', '3,7'][EF]).split(',')] + bars[2:]
    TG2 = int(ENV('TG2', '11'))
    if ot and EF == 1: waits[16 * bars[0] + 7].append('st')
    if ot and EF: assert TG2 in bars
    for t in bars:
        if t >= 0: gp[16 * t + 7].append(P('s_barrier'))
    G = ACC[0]; GI = G + 16 if B16 else G
    pool = [[r, -1 if i >= NG else 16 * last(i) + 15, N] for i, r in enumerate(ring)]
    if P1:
        for i in range(int(ENV('RINGX', '0'))): pool.append([G + 16 * i, 16 * XS + 7, ZS])
    SP1 = int(ENV('SP1', '6')); SP2 = int(ENV('SP2', '3'))
    g = 0
    for x in range(NG, NX):
        sl = min((p for p in pool if last(x) < p[2]), key=lambda p: p[1])
        xreg[x] = sl[0]
        if SPC and x == SPC: g = max(g, 16 * TG + 7)
        if ot and EF and x == 11: g = max(g, 16 * TG2 + 7)
        if E2 and x < 5:
            assert sl[0] == ring[x]
            sl[1] = 16 * last(x) + 15
            continue
        if ot and x < 3 + NB:
            g = 16 * bars[0] + 7
            gp[g] += xl(x, sl[0]); sl[1] = 16 * last(x) + 15; g += 3
            continue
        g = put(max(g - 2, sl[1] - 2, 0), P(f'v_readlane_b32 s{SR+(x&3)}, v{VT}, {x}')) + 3
        sp = SP1 if len(ring) + (int(ENV('CU2', '2')) if ot else 0) <= x and g < 16 * int(ENV('SPE', str(TU + 1))) else SP2
        sps = [int(c) for c in ENV('SP3', '4')] if P1 and 12 <= x and sp == SP2 else [sp]
        for i, y in enumerate(xl(x, sl[0])): g = put(max(g, sl[1] + 1), y) + sps[i % len(sps)]
        sl[1] = 16 * last(x) + 15
    for i in range(4): put(16 * (N - 1), P(f'v_mov_b32 v{20+i}, {0x3f803f80 if MS else 0:#x}'))
    msk = ['s_mov_b32 vcc_lo, 0xaaaaaaaa', 's_mov_b32 vcc_hi, vcc_lo', 's_mov_b32 s8, 0xcccccccc', 's_mov_b32 s9, s8']
    SQ = 48 if P1 else 128
    def smf(jm, p, k):
        c = SQ + 8 * jm + 4 * k; d = D + (jm * 2 + p) * 4; x = d if k else 20
        return f'v_mfma_f32_16x16x32_bf16 v[{c}:{c+3}], v[{x}:{x+3}], v[{d}:{d+3}], ' + (f'v[{c}:{c+3}]' if p else '0')
    def ssel(jm):
        c = SQ + 8 * jm
        return [f'v_cndmask_b32 v{c+4}, v{c+4}, v{c+5}, vcc', f'v_cndmask_b32 v{c+6}, v{c+6}, v{c+7}, vcc', f'v_cndmask_b32 v{c+1}, v{c+4}, v{c+6}, s[8:9]',
                f'buffer_store_dwordx2 v[{c}:{c+1}], v18, s[{ST}:{ST+3}], 0 offen offset:{128*jm}{stf(kind)}']
    if MS and not P1:
        assert 'w1' in NS and 'w1' in OT
        def outp(jm, p):
            d = D + (jm * 2 + p) * 4
            return [f'v_cvt_pk_bf16_f32 v{d+i}, v{acc(2*p+(i>>1),jm)+2*(i&1)}, v{acc(2*p+(i>>1),jm)+2*(i&1)+1}' for i in range(4)] + [
                f'buffer_store_dwordx4 v[{d}:{d+3}], v{VO}, s[{SO}:{SO+3}], {"s3" if jm else "0"} offen offset:{p*PSTEP}{stf(kind)}', f'ds_write_b128 v{VE}, v[{d}:{d+3}] offset:{jm*2048+p*1024}']
        ep = msk + [f's_mov_b32 s3, {16*2048}', ''] + outp(0, 0) + outp(0, 1) + outp(1, 0) + outp(1, 1)
        for g in range(16 * N - 8, 16 * N):
            assert not gp[g]
            gp[g] = [P(x) for x in ep[:2]]; del ep[:2]
        sm = [smf(0, 0, 1), smf(0, 0, 0), smf(0, 1, 1), smf(0, 1, 0), smf(1, 0, 1), smf(1, 0, 0), smf(1, 1, 1), smf(1, 1, 0)]
        for m in sm: gp[16 * N] += [P(x) for x in ep[:2] + [m]]; del ep[:2]
        gp[16 * N] += [P(x) for x in ssel(0) + ['s_nop 2'] + ssel(1)]
    if CLW:
        g = max(g, int(16 * float(ENV('CLG', '0'))))
        for i in range(4): g = put(g, (f'buffer_store_dwordx4 v[128:131], off, s[{SP}:{SP+3}], s4 offset:{1024*i} sc1', 'V', 'cl')) + int(ENV('CLD', '2'))
    def xld(i): return f'buffer_load_dwordx4 v[{GI+4*i}:{GI+4*i+3}], off, s[{SP}:{SP+3}], s5 offset:{1024*i} sc1'
    def vmax(d, r):
        return [f'v_max3_u32 v{d}, v{r}, v{r+1}, v{r+2}'] + [f'v_max3_u32 v{d}, v{d}, v{r+j}, v{r+j+1}' for j in range(3, 15, 2)] + [f'v_max_u32 v{d}, v{d}, v{r+15}', f'v_cmp_eq_u32 vcc, -1, v{d}']
    if P1 and DX:
        g = 16 * TU + 2
        for i in range(4):
            for j in range(4 * i, 4 * i + 4): g = put(g, P(f'v_cvt_pk_bf16_f32 v{G+j}, v{G+2*j}, v{G+2*j+1}'))
            put(max(g + 1, 16 * TU + 6 + i * int(ENV('XWS', '0'))), (f'buffer_store_dwordx4 v[{G+4*i}:{G+4*i+3}], off, s[{SP}:{SP+3}], s4 offset:{1024*i} sc1', 'V', 'xw'))
        g = int(16 * float(ENV('RS', '50')))
        if DX == 2:
            g = put(int(16 * float(ENV('FS', '44'))), ('', 'W', ['xw']))
            put(g, (f'buffer_store_dword v{VE}, off, s[{SB}:{SB+3}], s6 sc1', 'V', 'xf'))
            g = 16 * ZS + 8
        for i in range(4): g = put(g, (xld(i), 'V', 'xr')) + int(ENV('RSP', '2'))
        g = put(int(16 * float(ENV('VS', '53.5' if DX == 1 else '54'))), ('', 'W', ['xr']))
        if DX == 1:
            for y in vmax(VE, GI): g = put(g, P(y))
            g = put(g + 1, P(f's_cbranch_vccnz L_{kind}_xrt\nL_{kind}_xok:'))
        for i in range(16):
            g = put(g, P(f'v_lshlrev_b32 v{G+2*i}, 16, v{GI+i}'), 2 if g < 16 * (N - 1) else 3)
            g = put(g, P(f'v_and_b32 v{G+2*i+1}, s11, v{GI+i}'), 2 if g < 16 * (N - 1) else 3)
    elif P1:
        g = 16 * (2 * P1 - 1) + 2
        for i in range(NXC):
            if B16:
                for j in range(4 * i, 4 * i + 4): g = put(g, P(f'v_cvt_pk_bf16_f32 v{G+j}, v{G+2*j}, v{G+2*j+1}'))
            gw = put(max(g + 1, 16 * (2 * P1 - 1) + 8 + 2 * i), (f'ds_write_b128 v{VE}, v[{G+4*i}:{G+4*i+3}] offset:{1024*i}', 'L', 'xw'))
        assert gw < 16 * XS + 7
        waits[16 * XS + 7].append('xw')
        g = 16 * ZS + 8
        for i in range(NXC): g = put(g, (f'ds_read_b128 v[{GI+4*i}:{GI+4*i+3}], v{VE} offset:{1024*i}', 'L', 'xr')) + 1
        g = put(max(g + 6, 16 * (N - 1)), ('', 'W', ['xr']))
        if B16:
            for i in range(16):
                g = put(g, P(f'v_lshlrev_b32 v{G+2*i}, 16, v{GI+i}'), 3)
                g = put(g, P(f'v_and_b32 v{G+2*i+1}, s11, v{GI+i}'), 3)
    XG = int(ENV('XG', '1'))
    if XG:
        isr = lambda y: y[1] == 'L' and y[2][0] == 'w'
        for g in range(16 * N - 1):
            if len(gp[g]) == 2 and gp[g][1][1] == 'V' and isr(gp[g][0]):
                for d in ((1, -1) if XG == 1 else (-1, 1)):
                    if len(gp[g + d]) == 1 and isr(gp[g + d][0]) and (d > 0 or g & 15):
                        gp[g + d].insert(0 if d > 0 else 1, gp[g].pop(0)); break
    lin = list(pre)
    for t in range(N):
        for i, m in enumerate(mf(t)):
            lin.append(P(m)); lin += gp[16 * t + i]
        if TS and t == int(ENV('ST2', '99')):
            b = Asm(); stamp(b, 2); lin += [P(l.strip()) for l in b.lines]
    lin += gp[16 * N]
    nbc = [0]
    def nb2():
        nbc[0] += 1; return 2 < nbc[0] < len(bars)
    iss = {'L': [], 'V': []}; done = {'L': -1, 'V': -1}
    for txt, k, tag in lin:
        if k == 'W':
            o = []
            for c, nm, mx in (('V', 'vmcnt', 63), ('L', 'lgkmcnt', 15)):
                idx = [i for i, x in enumerate(iss[c]) if x in tag]
                if idx and max(idx) > done[c]:
                    n = min(mx, len(iss[c]) - 1 - max(idx)); done[c] = len(iss[c]) - 1 - n
                    o.append(f'{nm}({n})')
            assert all(x in iss['L'] or x in iss['V'] for x in tag), tag
            if o: a.emit('s_waitcnt ' + ' '.join(o))
            continue
        if k: iss[k].append(tag)
        if 'nox2' in DBG and P1 and k == 'V' and tag[0] == 'x' and len(tag) == 3: continue
        if 'nobar2' in DBG and P1 and txt == 's_barrier' and nb2(): continue
        if ('nox' in DBG and k == 'V') or ('nomfma' in DBG and 'mfma' in txt) or not txt: continue
        a.emit(txt)
    if int(ENV('ST2', '99')) >= N: stamp(a, 2)
    e0 = len(a.lines)
    a.emit(f's_mov_b32 s3, {16*2048}' if kind == 'wo' else 's_lshl_b32 s3, s7, 4')
    a.emit(msk[0] if MS else 's_mov_b32 s10, 0x3f803f80')
    FL = kind == 'w2' and FL; F2 = kind == 'w2' and F2
    if F2:
        a.emit('s_lshl_b32 s4, s7, 3')
        a.emit('s_add_u32 s5, s3, s4')
        for i in range(1, 4): a.emit(f'v_xor_b32 v{5+i}, {32*i}, v4')
        a.emit(f'v_xor_b32 v9, 64, v{VO}')
    elif FL:
        a.emit('s_lshl_b32 s4, s7, 3')
        a.emit('s_add_u32 s5, s3, s4')
        a.emit('s_mov_b32 vcc_lo, 0x00ff00ff')
        a.emit('s_mov_b32 vcc_hi, vcc_lo')
        a.emit('s_nop 0')
    else: a.emit('s_nop 4')
    for jm in range(2):
        for p in range(2):
            d = D + (jm * 2 + p) * 4
            for q in range(2):
                c = acc(2 * p + q, jm); g = acc(2 * p + q, jm, 0)
                if P1:
                    for h in range(2): a.emit(f'v_pk_add_f32 v[{c+2*h}:{c+2*h+1}], v[{c+2*h}:{c+2*h+1}], v[{g+2*h}:{g+2*h+1}]')
                a.emit(f'v_cvt_pk_bf16_f32 v{d+2*q}, v{c}, v{c+1}')
                a.emit(f'v_cvt_pk_bf16_f32 v{d+2*q+1}, v{c+2}, v{c+3}')
            if F2:
                for q in range(2): a.emit(f'ds_write_b64 v{(4, 6, 7, 8)[2*p+q]}, v[{d+2*q}:{d+2*q+1}] offset:{jm*2048}')
                for k in range(2 * p): a.emit(f'ds_read_b128 v[{32+8*jm+4*k}:{35+8*jm+4*k}], v5 offset:{jm*2048+k*1024}')
                continue
            if not (kind == 'wo' and 'w1' in NS):
                a.emit('s_nop 1')
                a.emit(f'v_permlane16_swap_b32 v{d}, v{d+2}')
                a.emit(f'v_permlane16_swap_b32 v{d+1}, v{d+3}')
            if not FL: a.emit(f'buffer_store_dwordx4 v[{d}:{d+3}], v{VO}, s[{SO}:{SO+3}], {"s3" if jm else "0"} offen offset:{p*PSTEP}{stf(kind)}')
            if kind == 'w2' and 'attn' in OT: a.emit(f'ds_write_b128 v{4+p}, v[{d}:{d+3}] offset:{jm*2048}')
            if FL and p:
                for k in ((0, 1), (1, 0))[jm]:
                    t = 32 + 8 * jm + 4 * k
                    if k == jm: a.emit('s_nop 0')
                    else: a.emit('s_not_b64 vcc, vcc')
                    for i in range(4): a.emit(f'v_cndmask_b32_dpp v{t+i}, v{d-4*k+i}, v{d-4+4*k+i}, vcc row_ror:8 row_mask:0xf bank_mask:0xf')
                    a.emit(f'buffer_store_dwordx4 v[{t}:{t+3}], v{VO}, s[{SO}:{SO+3}], {("0", "s4", "s3", "s5")[2*jm+k]} offen{stf(kind)}')
            if kind == 'wo' and 'w1' in OT: a.emit(f'ds_write_b128 v{VE}, v[{d}:{d+3}] offset:{jm*2048+p*1024}')
    if F2:
        for k in range(4):
            if MS and k == 2:
                for x in [smf(0, 0, 1), msk[1], smf(0, 0, 0), msk[2], smf(0, 1, 1), msk[3], smf(0, 1, 0), smf(1, 0, 1), smf(1, 0, 0)][:int(ENV('MSN', '7'))]: a.emit(x)
            a.emit(f's_waitcnt lgkmcnt({(7, 6, 1, 0)[k]})')
            a.emit(f'buffer_store_dwordx4 v[{32+4*k}:{35+4*k}], v{(VO, 9)[k&1]}, s[{SU}:{SU+3}], {("0", "s4", "s3", "s5")[k]} offen{stf(kind)}')
    if SKL and kind == 'w2' and not TS:
        last_check(a, kind)
        if TE: a.lines[-1] = a.lines[-1].replace('L_w2_end', 'L_fin')
    if MS and P1:
        for x in [smf(0, 0, 1), msk[1], smf(0, 0, 0), msk[2], smf(0, 1, 1), msk[3], smf(0, 1, 0), smf(1, 0, 1), smf(1, 0, 0)][int(ENV('MSN', '7')):] + [smf(1, 1, 1), smf(1, 1, 0)] + ssel(0) + ['s_nop 2'] + ssel(1): a.emit(x)
        e0 = len(a.lines)
    for jm in range(2):
        for i in range(8):
            d = D + jm * 8 + i
            a.emit(f'v_dot2_f32_bf16 v{20+jm}, v{d}, s10, v{20+jm}')
            a.emit(f'v_dot2_f32_bf16 v{22+jm}, v{d}, v{d}, v{22+jm}')
    a.emit('s_nop 2')
    a.emit('v_permlane32_swap_b32 v20, v21')
    a.emit('v_permlane32_swap_b32 v22, v23')
    a.emit('v_add_f32 v20, v20, v21')
    a.emit('v_add_f32 v22, v22, v23')
    a.emit('s_nop 1')
    a.emit('v_permlane16_swap_b32 v20, v22')
    a.emit('v_add_f32 v20, v20, v22')
    a.emit(f'buffer_store_dword v20, v18, s[{ST}:{ST+3}], 0 offen{stf(kind)}')
    if MS: del a.lines[e0:]
    compute_end(a, kind)
    if P1 and DX == 1:
        a.label(f'L_{kind}_xrt')
        a.emit('s_mov_b32 s6, 0x40000')
        a.label(f'L_{kind}_xrl')
        for i in range(4): a.emit(xld(i))
        a.emit('s_sub_u32 s6, s6, 1')
        a.emit('s_waitcnt vmcnt(0)')
        a.emit(f's_cbranch_scc1 L_{kind}_xok')
        for y in vmax(VE, GI): a.emit(y)
        a.emit(f's_cbranch_vccnz L_{kind}_xrl')
        a.emit(f's_branch L_{kind}_xok')
    a.label(f'L_{kind}_loader')
    VT = 16
    if ENV('LPRIO'): a.emit(f"s_setprio {ENV('LPRIO')}")
    if kind == 'wo':
        if LSTK == 'wo': lstamp(a, 0)
        import sides
        dep_pre(a, kind, 0)
        if not CF or ENV('CFK'):
            a.emit(f's_cmp_lg_u32 s{S_LAYER}, {7 if CF else 0}')
            a.emit(f's_cbranch_scc1 L_{kind}_nofirst')
            sides.qkv(a, 0, 'finish', 1)
            a.label(f'L_{kind}_nofirst')
    L = Loader(a, kind, K, lda2, ldw2, [0], 128, 2, 8192, xblk=True)
    L.panels_of = lambda t: [0] if sched[t][1] else [f's{S_XD}']
    if ot:
        ktab_ot(a, VT, 17, S_TB)
        if 'whit' in DBG: a.emit(f'v_and_b32 v{VT}, 0x60000, v{VT}')
    else: ktab(a, VT, 17, P1, P2, S_TB)
    a.emit(f's_add_u32 s9, s{S_WV}, s{S_MT}')
    a.emit('s_and_b32 s9, s9, 3')
    a.emit(f's_lshl_b32 s{S_WD}, s9, 11')
    a.emit('v_and_b32 v10, 7, v1')
    if 'wsm' in DBG:
        a.emit(f's_and_b32 s11, s{S_NT}, 1')
        wvoff(a, L.VWD, 9, 11, ldw2)
    elif 'noslow2' in DBG:
        a.emit(f's_bitcmp1_b32 0x0c0c, s{S_NT}')
        a.emit('s_cselect_b32 s11, 2, 0')
        a.emit(f's_add_u32 s11, s11, s{S_NT}')
        wvoff(a, L.VWD, 9, 11, ldw2)
    else: wvoff(a, L.VWD, 9, S_NT, ldw2, kind in NS)
    if kind == 'wo': srd(a, SW, 'wo', 0, 2 * MB)
    else:
        srd(a, SW, 'w2', 0, 3584 * 2048)
        a.emit(f's_bitcmp1_b32 s{S_NT}, 0')
        a.emit(f's_mov_b32 s{S_XD}, 128')
        a.emit(f's_cselect_b32 s{S_XD}, -128, s{S_XD}')
    NPF = int(ENV('NPF' + kind[1].upper(), '10'))
    assert NPRE - NPF <= 18
    seq = []
    def em(o):
        for x in o:
            if ('nodma' in DBG or ('nodma2' in DBG and len(seq) >= 40)) and x.endswith(' lds'): continue
            a.emit(x)
    def after(t): return len(seq) - 1 - max(i for i, x in enumerate(seq) if x == t)
    NPK = int(ENV('NPK', '0')) if P1 else 0
    PK0 = int(ENV('PK0', '20')); PKA = int(ENV('PKA', '0'))
    PKD = int(ENV('PKD', '1'))
    pks = [t for t in range(PK0, N) if ((t - PK0) >> 1) % PKD == 0][:NPK]
    pkr = lambda t: 256 - 8 * NPK + 8 * pks.index(t)
    assert 256 - 8 * NPK >= 48
    if NPK:
        a.emit(f'v_lshl_add_u32 v20, v1, 4, s{S_WD}')
        a.emit('v_add_u32 v21, 0x10000, v20')
        a.emit('v_add_u32 v22, 0x20000, v20')
    lastk = [None]
    def kw(t):
        x = xof(t)
        if lastk[0] != x: a.emit(f'v_readlane_b32 s{S_KW}, v{VT}, {x}')
        lastk[0] = x
    def pk(t):
        kw(t)
        a.emit(f's_add_u32 s4, s{S_KW}, {L.panels_of(t)[0]}')
        for i in range(2): a.emit(f'buffer_load_dwordx4 v[{pkr(t)+4*i}:{pkr(t)+4*i+3}], v{L.VWD+i}, s[{SW}:{SW+3}], s4 offen')
        seq.extend([('P', t)] * 2)
    vmdone = [-1]
    def iw(t):
        if t in pks:
            i = max(i for i, x in enumerate(seq) if x == ('P', t))
            if i > vmdone[0]:
                a.emit(f's_waitcnt vmcnt({min(63, len(seq) - 1 - i)})'); vmdone[0] = i
            for i in range(0 if 'nopw' in DBG else 2): a.emit(f'ds_write_b128 v{20+(slot(t)>>16)}, v[{pkr(t)+4*i}:{pkr(t)+4*i+3}] offset:{(slot(t)&65535)+1024*i}')
            return
        kw(t)
        em(L.issue_w(t, S_WD, slot(t)))
        seq.extend([t] * 2)
    if kind == LSTK == 'wo': lstamp(a, 1)
    CW = [int(x) for x in ENV('CW', '0').split(',')] if P1 else []
    cwk = list(range(NPRE // 2, P1)) + list(range(2 * P1, N)); cwn = [0]
    if sum(CW):
        srd(a, SR, 'w2', 0, 3584 * 2048)
        a.emit(f's_and_b32 s3, s{S_WV}, 3')
        a.emit(f's_lshl2_add_u32 s3, s{S_CU}, s3')
        a.emit('s_lshl_b32 s4, s3, 6')
        a.emit('s_and_b32 s4, s4, 64')
        a.emit('s_lshr_b32 s3, s3, 1')
        a.emit('s_lshl_b32 s3, s3, 11')
        a.emit('s_add_u32 s3, s3, s4')
        a.emit(f's_sub_u32 s4, 384, s{SW}')
        a.emit('s_and_b32 s4, s4, 0x380')
        a.emit(f's_add_u32 s{S_Q}, s3, s4')
        a.emit(f's_bitcmp1_b32 s{S_NT}, 0')
        a.emit(f's_cselect_b32 s3, {P1 << 17}, 0')
        a.emit(f's_add_u32 s{S_T}, s{S_Q}, s3')
        a.emit('s_lshr_b32 s4, s4, 7')
        a.emit(f's_xor_b32 s4, s4, s{S_NT}')
        a.emit('s_bitcmp1_b32 s4, 0')
        a.emit(f's_cselect_b32 s{SR+2}, 0, s{SR+2}')
    def cw(j):
        for k in cwk[cwn[0]:cwn[0] + (CW[j] if j < len(CW) else 0)]:
            a.emit(f's_add_u32 s3, s{S_T if k < P1 else S_Q}, {k << 17}')
            for i in range(2): a.emit(f's_buffer_load_dword s84, s[{SW if k < P1 else SR}:{(SW if k < P1 else SR)+3}], s3 offset:{1024*i}')
            cwn[0] += 1
    def clr(w):
        if DX != 1 or P1 or w != ENV('CLP', 'e'): return
        srd(a, SP, 'ws', WS_XP, 4 * MB)
        a.emit(f's_and_b32 s5, s{S_WV}, 3')
        a.emit(f's_lshl4_add_u32 s6, s{S_MT}, s{S_NT}')
        a.emit('s_lshl2_add_u32 s6, s6, s5')
        a.emit('s_lshl_b32 s6, s6, 12')
        a.emit('s_setprio 3')
        a.emit('v_lshlrev_b32 v3, 4, v1')
        for i in range(4): a.emit(f'v_mov_b32 v{24+i}, -1')
        for i in range(4): a.emit(f'buffer_store_dwordx4 v[24:27], v3, s[{SP}:{SP+3}], s6 offen offset:{1024*i} sc1')
        a.emit('s_setprio 0')
        seq.extend(['C'] * 4)
    clr('a')
    for t in range(NPRE - NPF):
        if kind == 'wo' and t == WE: a.emit('s_barrier')
        iw(t)
    assert kind != 'wo' or WE < NPRE - NPF
    assert kind != 'wo' or ENV('PTQ', '2') != '2' or slot(NPRE - NPF) <= 86016
    clr('b')
    PTH = ENV('PTH', '')
    for t in pks[:NPK - PKA]:
        pk(t)
        if PTH: a.emit(f's_waitcnt vmcnt({PTH})')
    cw(0)
    if kind == 'wo': dep_pre(a, kind, 1, len(seq))
    if kind == 'wo' and CF: a.emit(f's_waitcnt vmcnt({len(seq)})')
    N2 = NPRE - NPF; pref = None
    if SPC:
        N2 = max(N2, int(ENV('N2', '0')), bars[1] + 2); NPRE = int(ENV('N3', '20'))
        assert NPRE <= TF + 21
        def pref():
            a.emit('s_mov_b32 s5, s3')
            if TF >= 0:
                a.emit(f's_waitcnt vmcnt({after(TF + 1)})')
                a.emit('s_barrier')
            for t in range(len(seq) // 2, N2): iw(t)
            a.emit('s_mov_b32 s3, s5')
            a.emit(f's_waitcnt vmcnt({after(bars[1] + 1)})')
    def postf():
        for t in range(N2, NPRE):
            if ot and slot(t) == OHB:
                a.emit(f's_waitcnt vmcnt({after(bars[0] + 1)})')
                a.emit('s_barrier')
            iw(t)
        for t in pks[NPK - PKA:]: pk(t)
    if PW:
        NPRE = int(ENV('NE', '13'))
        assert slot(NPRE) <= OHB - ((8192 if MF else 4096) if ENV('W4', 'a') == 'a' else 0) and bars[1] + 1 < N2
        w0 = after(bars[0] + 1)
        i = len(a.lines)
        for t in range(N2, NPRE): iw(t)
        blk = a.lines[i:]; del a.lines[i:]
        dep_lf(a, w0, blk, after(bars[1] + 1))
    elif ot and EF:
        NE = int(ENV('NE', '14')); NH = int(ENV('NH', str(NE))); NPRE = int(ENV('NGB', '20' if E2 else str(NH)))
        assert slot(NH - 1) < OHB
        dep_ef(a, lambda: [iw(t) for t in range(N2, NE)], lambda: E2 or a.emit(f's_waitcnt vmcnt({after(bars[0] + 1)})'),
               lambda: [iw(t) for t in range(NE, NH)] + [a.emit(f's_waitcnt vmcnt({after(bars[0 if E2 else 1] + 1)}) lgkmcnt(0)')])
        a.emit(f's_mov_b32 s{S_CNT}, 0x100000')
        for t in range(NH, NPRE): iw(t)
    else: dep_wait(a, kind, skip_first=kind == 'wo', preg=lambda: a.emit(f's_waitcnt vmcnt({min(after(bars[2 if SPC else 1 if ot else 0] + 1), 63)}) lgkmcnt(0)'),
             postf=postf, pref=pref, defer=bool(SPC))
    nxt = NPRE
    reg = bars[:bars.index(XS)] if P1 and not DX else bars
    clr('g')
    for j, t in enumerate(reg):
        if (SPC or ot) and j < 1 and not E2: continue
        lim = min(N, (reg[j - 1] if j else -1) + 21)
        PACE = [int(c) for c in ENV('PACE', '064444449' if PW else '')] if P1 else []
        if j < len(PACE): lim = min(lim, nxt + PACE[j])
        PP = int(ENV('PP', '2'))
        pp = min(lim - 1, nxt + PP) if (SPC and t == TG) or (E2 and t == TG2) or (LF2 and P1 and t == int(ENV('TL2', '27'))) else -1
        pe = min(lim - 1, nxt + int(ENV('PE', '0'))) if ot and EF == 1 and t == TG2 else -1
        while nxt < lim:
            if nxt == pp: dep_late(a, kind, 0); seq.append('F')
            if nxt == pe:
                ef_poll(a, 'L_w2_pl', 2, True)
                lstamp(a, 2, True)
            iw(nxt); nxt += 1
            if nxt - 1 in pks: a.emit('s_waitcnt lgkmcnt(0)')
            elif nxt < lim: a.emit(f"s_waitcnt vmcnt({ENV('LTH2', '30') if PW and t >= int(ENV('LT2', '35')) else ENV('LTHR', '4')})")
        cw(j + 1)
        clr(str(j))
        need = [min(N - 1, bars[j + 1] + 1)] if j + 1 < len(bars) else []
        assert all(t < nxt for t in need)
        need = [max(x for x in range(t + 1) if x not in pks) for t in need]
        if P1 and not DX and j == len(reg) - 1:
            srd(a, SP, 'ws', WS_XP, 8 * MB)
            srd(a, SC, 'ws0', WS_FL, FLS)
            a.emit(f's_and_b32 s5, s{S_WV}, 3')
            a.emit(f's_lshl4_add_u32 s6, s{S_MT}, s{S_NT}')
            a.emit('s_lshl2_add_u32 s6, s6, s5')
            a.emit(f's_mul_i32 s8, s6, {CH}')
            a.emit('s_add_u32 s9, s8, 4096')
            a.emit(f's_add_u32 s7, s{S_LAYER}, 4')
            a.emit('s_lshl_b32 s7, s7, 10')
            a.emit('s_add_u32 s6, s6, s7')
            a.emit('s_lshl_b32 s6, s6, 6')
            a.emit('s_xor_b32 s7, s6, 256')
            a.emit(f's_mul_i32 s5, s5, {CH}')
            a.emit(f's_add_u32 s5, s5, {XB}')
            a.emit('v_lshlrev_b32 v3, 4, v1')
            a.emit('v_add_u32 v2, s5, v3')
            a.emit('v_mov_b32 v4, 1')
            a.emit(f's_mov_b32 s{S_CNT}, 0x100000')
        if pp >= 0: dep_late(a, kind, 1, after('F'))
        if P1 and DX == 2 and t == XS:
            srd(a, SC, 'ws0', WS_FL, FLS)
            a.emit(f's_lshl4_add_u32 s6, s{S_MT}, s{S_NT}')
            a.emit('s_xor_b32 s6, s6, 1')
            a.emit(f's_add_u32 s7, s{S_LAYER}, 4')
            a.emit('s_lshl_b32 s7, s7, 8')
            a.emit('s_add_u32 s6, s6, s7')
            a.emit(f's_lshl_b32 s{S_Q if ZD else 6}, s6, 8')
            a.emit('v_and_b32 v2, 3, v1')
            a.emit(f'v_lshlrev_b32 v{30 if ZD else 2}, 6, v2')
            a.emit(f's_mov_b32 s{S_CNT}, 0x100000')
            if ZD: need = []; assert nxt == N and (ZD == 'a' or XS >= 44)
        if P1 and DX == 2 and t == ZS:
            if ZD:
                if ENV('ZDP'): a.emit(f"s_setprio {ENV('ZDP')}")
                a.emit(f's_cmp_eq_u32 s{S_LAYER}, 0')
                a.emit(f's_cbranch_scc1 L_{kind}_zskip')
                if ENV('WBE'):
                    a.emit(f"s_and_b32 s3, s{S_CU}, {ENV('WBE')}")
                    a.emit(f's_lshl3_add_u32 s3, s3, s{S_WV}')
                    a.emit('s_cmp_lg_u32 s3, 5')
                    a.emit('s_cbranch_scc1 L_w2_nowbe')
                    a.emit('buffer_wbl2 sc1')
                    a.emit('s_barrier')
                    a.emit('s_endpgm')
                    a.label('L_w2_nowbe')
            xpoll(a, f'L_{kind}_x', SC, S_Q if ZD else 6, 30 if ZD else 2, 5)
        if kind == 'wo' and WD in ('b', 'c') and j == len(reg) - 1: assert reg[j - 1] >= 2; break
        a.emit(f's_waitcnt vmcnt({min(63, min(after(t) for t in need)) if need else 0})')
        if not ('nobar2' in DBG and P1 and 1 < j < len(bars) - 1): a.emit('s_barrier')
    if P1 and ZD: a.label(f'L_{kind}_zskip')
    assert nxt == N and (ENV('LATE_W1', '2') == '2' or (kind == 'w2' or bars[-1] >= 9) and 'w1' in OT) and ENV('LATE_ATTN', '2') == '2'
    clr('e')
    if not P1 and WD not in ('b', 'c'): a.emit('s_waitcnt vmcnt(0)')
    if P1 and not DX:
        XL = ENV('LST') == 'x'
        a.emit('s_setprio 3')
        a.emit('s_waitcnt vmcnt(0) lgkmcnt(0)')
        a.emit('s_barrier')
        for i in range(NXC): a.emit(f'ds_read_b128 v[{32+4*i}:{35+4*i}], v2 offset:{1024*i}')
        for i in range(NXC):
            a.emit(f's_waitcnt lgkmcnt({NXC-1-i})')
            if 'noxs' not in DBG: a.emit(f'buffer_store_dwordx4 v[{32+4*i}:{35+4*i}], v3, s[{SP}:{SP+3}], s{8+(i>>2)} offen offset:{1024*(i&3)} sc1')
        if XL: lstamp(a, 0)
        a.emit(f's_xor_b32 s8, s8, {4*CH}')
        a.emit(f's_xor_b32 s9, s9, {4*CH}')
        a.emit('s_mov_b64 exec, 1')
        a.emit('s_waitcnt vmcnt(0)')
        a.emit(f'buffer_store_dword v4, off, s[{SC}:{SC+3}], s6 sc1')
        if XL: lstamp(a, 1)
        if PS: a.emit('s_barrier')
        if 'nopoll' in DBG: a.emit(f's_branch L_{kind}_xgo')
        a.label(f'L_{kind}_xpoll')
        a.emit(f'buffer_load_dword v5, off, s[{SC}:{SC+3}], s7 sc1')
        a.emit(f's_sub_u32 s{S_CNT}, s{S_CNT}, 1')
        a.emit(f's_cbranch_scc1 L_{kind}_xgo')
        a.emit('s_waitcnt vmcnt(0)')
        a.emit('v_cmp_ne_u32 vcc, 1, v5')
        a.emit(f's_cbranch_vccnz L_{kind}_xpoll')
        a.label(f'L_{kind}_xgo')
        a.emit('s_mov_b64 exec, -1')
        a.emit('s_mov_b32 m0, s5')
        if XL: lstamp(a, 2)
        for i in range(NXC):
            if i == 4: a.emit('s_add_u32 m0, s5, 4096')
            if not i & 3: a.emit('s_nop 0')
            if 'noxl' not in DBG: a.emit(f'buffer_load_dwordx4 v3, s[{SP}:{SP+3}], s{8+(i>>2)} offen offset:{1024*(i&3)} lds')
        a.emit('s_waitcnt vmcnt(0)')
        if XL: lstamp(a, 3)
        a.emit('s_setprio 0')
        a.emit('s_barrier')
    loader_end(a, kind)
    if OH and P1:
        a.label('L_w2_wb')
        a.emit('buffer_wbl2 sc1')
        a.emit('s_waitcnt vmcnt(0)')
        if PW:
            a.emit(f's_mov_b64 exec, {(1 << REP) - 1:#x}')
            a.emit(f'buffer_store_dword v3, v11, s[{SO}:{SO+3}], s{S_FL} offen sc1')
        a.emit('s_branch L_w2_wbd')
    a.label(end)
    a.emit('s_endpgm')
    loader_first(a, kind)
    if SPC or PW:
        i = a.lines.index(f'  s_cbranch_scc1 L_{kind}_compute')
        del a.lines[i - 1:i + 1]
    a.label(f'L_{kind}_c1')
    return 163840
```

```python
from common import *

T4 = ENV('T4', '1') == '1'
OBAR = ENV('OBAR', '0') == '1'
WG = ENV('WG', '1') == '1' and not LF1
assert not WG or ENV('WAG_W1', '0') + ENV('WAG_ATTN', '0') + ENV('LATE_W1', '2') == '002'
def big_loop(a, tag, N, S, STAGE, naddr, VB, VA, reads, mf, variants=None, select=None, post=None, ot=None, mid=(), halo=None, hooks=None, tail=None):
    if tail: N -= 1
    def addr():
        o = [f'v_add_u32_e64 v{VA+i}, s{S_SLOT}, v{VB+i}' for i in range(naddr)]
        o += [f's_add_u32 s{S_SLOT}, s{S_SLOT}, {STAGE}', f's_cmp_eq_u32 s{S_SLOT}, {S*STAGE}', f's_cselect_b32 s{S_SLOT}, 0, s{S_SLOT}']
        return o
    a.emit(f's_mov_b32 s{S_SLOT}, 0')
    for x in addr(): a.emit(x)
    if halo:
        if hooks: own_pos(a, S_CNT)
        else: a.emit(f's_mov_b32 s{S_CNT}, {N}')
        if hooks: a.emit(f's_mul_i32 s{S_T}, s{S_LAYER}, {len(hooks)}')
        a.emit(f's_cmp_eq_u32 s{S_LAYER}, 0')
        a.emit(f's_cbranch_scc1 L_{tag}_nog')
    a.emit(f's_mov_b32 s{S_CNT}, {N - 1 if ot else N}')
    if ot:
        rd = (lambda s, ks: reads(s, ks, False)) if halo else reads
        for x in rd(0, 0): a.emit(x)
        a.emit('s_waitcnt lgkmcnt(0)')
        if LF1 and tag == 'w1':
            SH0, SH1 = [int(x) for x in ENV('SH', '18,3').split(',')]
            sd = rd(1, 1) + addr()
            for i, x in enumerate(ot(0)):
                a.emit(x)
                if i < len(sd): a.emit(sd[i])
                a.lines += ['@S'] * (1 if i < SH0 else SH1 if i >= len(sd) else 0)
            a.emit('s_waitcnt lgkmcnt(0)')
            for x in ot(1): a.emit(x); a.lines += ['@S'] * SH1
            assert mid[SH0].split()[0] not in ('s_addc_u32', 's_cselect_b32')
            while len(mid) > 1: a.lines[a.lines.index('@S')] = mid.pop(0)
        else:
            interleave(a, ot(0), rd(1, 1) + addr(), lead=1, per=1)
            a.emit('s_waitcnt lgkmcnt(0)')
            for x in ot(1): a.emit(x)
    rw = [x for x in reads(0, 0) if '_tr_' in x] if WG and ot else []
    rx = [x for x in reads(0, 0) if x not in rw]
    if halo:
        a.emit('s_barrier')
        for x in halo[0] + rw: a.emit(x)
        a.label(f'L_{tag}_nog')
    else:
        import pads
        for x in pads.chain('hv'): a.emit(x)
        MG = int(ENV('MG', '0'))
        if LF2 == 2: MG = len(mid) - 1
        a.lines += mid[:MG] + ['@W2G'] * (LF2 == 2); mid = mid[MG:]
        if ENV('S1') == 'a': stamp(a, 1)
        if not LF1: gbar(a, tag)
        for x in rw: a.emit(x)
        if ENV('S1') == 'b': stamp(a, 1)
    a.lines += mid
    if ENV('S1') == 'c': stamp(a, 1)
    if halo: a.emit(f's_cmp_eq_u32 s{S_LAYER}, 0')
    a.emit('s_barrier')
    if not ENV('S1') or halo: stamp(a, 1)
    if halo:
        a.emit(f's_cbranch_scc1 L_{tag}_first')
        for x in halo[1] + rx: a.emit(x)
        a.emit(f's_waitcnt lgkmcnt({min(15, len(rx))})')
        for x in halo[2]: a.emit(x)
        a.emit('s_waitcnt lgkmcnt(0)')
        a.emit(f's_branch L_{tag}_loop')
        a.label(f'L_{tag}_first')
        if not DS: a.emit(f's_load_dwordx2 s[{SC}:{SC+1}], s[0:1], 72')
    for x in reads(0, 0) if halo else rx: a.emit(x)
    a.emit('s_waitcnt lgkmcnt(0)')
    def loop(nm, m):
        la = int(ENV('LA_' + tag.upper(), '4'))
        w = a.lines.pop()
        assert w.split()[0] in ('s_waitcnt', 's_cbranch_scc1', 's_branch')
        a('.p2align 5')
        for _ in range(la - 1): a.emit('s_nop 0')
        a.lines.append(w)
        a.label(f'L_{tag}_loop{nm}')
        ad = addr()
        ad[-1] += f'\n  s_sub_u32 s{S_CNT}, s{S_CNT}, 1'
        interleave(a, m(0), reads(1, 1) + ad, lead=1, per=1)
        a.emit('s_waitcnt lgkmcnt(0)')
        a.emit('s_barrier')
        tr = bool(TS) and ENV('STR') == tag
        if tr: a.emit('s_memrealtime s[92:93]')
        interleave(a, m(1), reads(0, 0) + [f's_cmp_lg_u32 s{S_CNT}, 0\n  s_nop 0'] + ['v_mov_b32_dpp v3, v3 row_shr:1 row_mask:0xf bank_mask:0xf'] * tr, lead=1, per=1)
        a.emit('s_waitcnt lgkmcnt(0)')
        if tr: a.emit('v_writelane_b32 v3, s92, 0')
        a.emit(f's_cbranch_scc1 L_{tag}_loop{nm}')
    if variants:
        select()
        vs = list(variants.items())
        for i, (nm, m) in enumerate(vs):
            loop(nm, m)
            if i + 1 < len(vs): a.emit(f's_branch L_{tag}_post')
        a.label(f'L_{tag}_post')
        post()
        a.emit(f's_branch L_{tag}_exit')
    if hooks and PO0 == 0:
        a.emit(f's_cmp_eq_u32 s{S_CNT}, 0')
        a.emit(f's_cbranch_scc1 L_{tag}_lend')
    loop('', mf)
    a.label(f'L_{tag}_lend')
    if hooks:
        a.emit(f's_add_u32 s{S_T}, s{S_T}, 1')
        a.emit(f's_cmp_gt_u32 s{S_T}, {len(hooks)}')
        a.emit(f's_cbranch_scc1 L_{tag}_exit')
        for i, (t, code) in enumerate(hooks):
            if i + 1 < len(hooks):
                a.emit(f's_cmp_lg_u32 s{S_T}, {i + 1}')
                a.emit(f's_cbranch_scc1 L_{tag}_hook{i}')
            t2 = hooks[i + 1][0] if i + 1 < len(hooks) else N
            if t < 0 <= t2:
                own_pos(a, S_CNT)
                a.emit(f's_sub_u32 s{S_CNT}, {t2 + t + 1}, s{S_CNT}')
                assert t2 + t + 1 > PO0 + POM
            else: a.emit(f's_mov_b32 s{S_CNT}, {abs(t2 - t)}')
            for x in code: a.emit(x)
            a.emit(f's_branch L_{tag}_loop')
            if i + 1 < len(hooks): a.label(f'L_{tag}_hook{i}')
    a.label(f'L_{tag}_exit')
    if tail and tail[0] is not None:
        interleave(a, mf(0), reads(1, 1) + tail[0], lead=1, per=1)
        a.emit('s_waitcnt lgkmcnt(0)')
        a.emit('s_barrier')
    for x in tail[1] if tail else []: a.emit(x)
    stamp(a, 2)

def weave(ms, fill):
    return [x for i, m in enumerate(ms) for x in [m] + fill.get(i, [])]

def stats_loads(a, vd, halo):
    a.emit(f's_and_b32 s3, s{S_WV}, 3')
    a.emit(f's_lshl_b32 s4, s{S_MT}, 7')
    a.emit('s_lshl_b32 s5, s3, 6')
    a.emit('s_add_u32 s5, s5, s4')
    a.emit('v_add_u32 v2, s5, v1')
    a.emit('s_sub_u32 s4, s4, 16')
    a.emit('v_and_b32 v3, 15, v1')
    a.emit('v_add_u32 v3, s4, v3')
    a.emit('v_max_i32 v3, 0, v3')
    a.emit('s_cmp_ge_u32 s3, 2')
    a.emit('s_cselect_b64 vcc, -1, 0')
    a.emit('v_cndmask_b32 v2, v2, v3, vcc')
    a.emit('v_lshlrev_b32 v2, 3, v2')
    a.emit('s_mov_b32 s3, 0')
    for j in range(16):
        a.emit(f'buffer_load_dwordx2 v[{vd+2*j}:{vd+2*j+1}], v2, s[{ST}:{ST+3}], s3 offen')
        if j < 15: a.emit('s_add_u32 s3, s3, 16384')
    return 16

def stats_finish(a, vs):
    a.emit(f'v_mul_f32 v{vs}, 0x3a800000, v{vs}')
    a.emit(f'v_mul_f32 v{vs+1}, 0x3a800000, v{vs+1}')
    a.emit(f'v_fma_f32 v{vs+1}, -v{vs}, v{vs}, v{vs+1}')
    a.emit(f'v_max_f32 v{vs+1}, 0, v{vs+1}')
    a.emit(f'v_add_f32 v{vs+1}, 0x3727c5ac, v{vs+1}')
    a.emit(f'v_rsq_f32 v{vs+1}, v{vs+1}')
    a.emit('s_nop 0')

def stats_reduce_store(a, vd, LST):
    for j in range(1, 8):
        a.emit(f'v_add_f32 v{vd}, v{vd}, v{vd+2*j}')
        a.emit(f'v_add_f32 v{vd+1}, v{vd+1}, v{vd+2*j+1}')
        a.emit(f'v_add_f32 v{vd+16}, v{vd+16}, v{vd+16+2*j}')
        a.emit(f'v_add_f32 v{vd+17}, v{vd+17}, v{vd+17+2*j}')
    a.emit(f'v_add_f32 v{vd}, v{vd}, v{vd+16}')
    a.emit(f'v_add_f32 v{vd+1}, v{vd+1}, v{vd+17}')
    stats_finish(a, vd)
    a.emit(f's_and_b32 s3, s{S_WV}, 3')
    a.emit('s_lshl_b32 s5, s3, 6')
    a.emit('s_add_u32 s5, s5, 16')
    a.emit('v_add_u32 v2, s5, v1')
    a.emit('v_and_b32 v3, 15, v1')
    a.emit('s_cmp_ge_u32 s3, 2')
    a.emit('s_cselect_b64 vcc, -1, 0')
    a.emit('v_cndmask_b32 v2, v2, v3, vcc')
    a.emit('v_lshlrev_b32 v2, 2, v2')
    a.emit(f'v_add_u32 v2, {LST}, v2')
    a.emit(f'ds_write2_b32 v2, v{vd}, v{vd+1} offset0:0 offset1:160')

VST, VSH, VCS, VBI = 18, 19, 22, 23
def stats4_setup(a, halo):
    a.emit(f's_and_b32 s3, s{S_WV}, 3')
    a.emit(f's_lshl2_add_u32 s4, s{S_MT}, s3')
    a.emit('s_lshl_b32 s4, s4, 8')
    a.emit('v_lshrrev_b32 v2, 4, v1')
    a.emit('v_and_b32 v3, 15, v1')
    a.emit('v_lshl_add_u32 v3, v3, 4, s4')
    a.emit(f'v_lshl_add_u32 v{VST}, v2, 14, v3')
    if halo:
        a.emit(f's_lshl_b32 s4, s{S_MT}, 5')
        a.emit('s_add_u32 s4, s4, s3')
        a.emit('s_sub_u32 s4, s4, 4')
        a.emit('s_max_i32 s4, s4, 0')
        a.emit('s_lshl_b32 s4, s4, 5')
        a.emit('v_lshrrev_b32 v2, 2, v1')
        a.emit('v_and_b32 v3, 3, v1')
        a.emit('v_lshl_add_u32 v3, v3, 3, s4')
        a.emit(f'v_lshl_add_u32 v{VSH}, v2, 14, v3')

def quad_loads(vd, vo, sd):
    o = []
    for j in range(4):
        if j: o.append(f's_mov_b32 s3, {j << 16}')
        o.append(f'buffer_load_dwordx4 v[{vd+4*j}:{vd+4*j+3}], v{vo}, s[{sd}:{sd+3}], {"s3" if j else 0} offen')
    return o

def stats4_loads(vd, halo):
    return quad_loads(vd, VST, ST) + ([f'buffer_load_dwordx2 v[{vd+16}:{vd+17}], v{VSH}, s[{ST}:{ST+3}], 0 offen'] if halo else [])

def pkadd(a, d, s):
    if ENV('UPK', '1') == '1':
        for i in range(2): a.emit(f'v_add_f32 v{d+i}, v{d+i}, v{s+i}')
    else: a.emit(f'v_pk_add_f32 v[{d}:{d+1}], v[{d}:{d+1}], v[{s}:{s+1}]')

def quad_sum(a, vd):
    pk = lambda d, s: pkadd(a, d, s)
    pk(vd, vd + 4); pk(vd + 2, vd + 6); pk(vd + 8, vd + 12); pk(vd + 10, vd + 14); pk(vd, vd + 8); pk(vd + 2, vd + 10)
    a.emit('s_nop 1')
    a.emit(f'v_permlane32_swap_b32 v{vd}, v{vd+2}')
    a.emit(f'v_permlane32_swap_b32 v{vd+1}, v{vd+3}')
    pk(vd, vd + 2)

def nan_chk(a, lab, halo):
    def chk():
        a.emit('v_cmp_u_f32 vcc, v32, v33')
        if halo:
            a.emit('v_cmp_u_f32 s[4:5], v48, v49')
            a.emit('s_or_b64 s[4:5], vcc, s[4:5]')
            a.emit(f's_cbranch_scc0 {lab}ok')
        else: a.emit(f's_cbranch_vccz {lab}ok')
        a.emit(f's_sub_u32 s{S_CNT}, s{S_CNT}, 1')
        a.emit(f's_cbranch_scc1 {lab}ok')
        for x in stats4_loads(32, halo): a.emit(x + (' sc1' if x.startswith('buf') else ''))
        a.emit('s_waitcnt vmcnt(0)')
        a.emit(f's_branch {lab}chk')
        a.label(f'{lab}ok')
    a.emit(f's_mov_b32 s{S_CNT}, 0x4000')
    a.label(f'{lab}chk')
    return chk

def split3(a, x, d, t, row):
    a.emit(f'v_cvt_pk_bf16_f32 v{d}, v{x}, v{x}')
    a.emit(f'v_and_b32 v{t}, 0xffff0000, v{d}')
    a.emit(f'v_sub_f32 v{t}, v{x}, v{t}')
    a.emit(f'v_cvt_pk_bf16_f32 v{d+1}, v{t if row else x}, v{t}')
    a.emit(f'v_and_b32 v{d+2}, 0xffff0000, v{d+1}')
    a.emit(f'v_sub_f32 v{t}, v{t}, v{d+2}')
    a.emit(f'v_cvt_pk_bf16_f32 v{d+2}, v{x if row else t}, v{t if row else x}')
    if not row: a.emit(f'v_mov_b32 v{d}, v{d+1}')

def stats4_store(a, vd, LST, halo, chk=None, fin=None):
    quad_sum(a, vd)
    if chk: chk()
    def allsum(r, op):
        a.emit(f'v_mov_b32 v{r+2}, v{r}')
        a.emit(f'v_mov_b32 v{r+3}, v{r+1}')
        a.emit('s_nop 0')
        a.emit(f'v_permlane{op}_swap_b32 v{r}, v{r+2}')
        a.emit(f'v_permlane{op}_swap_b32 v{r+1}, v{r+3}')
        pkadd(a, r, r + 2)
    allsum(vd, 16)
    if fin: return fin()
    stats_finish(a, vd)
    a.emit(f's_and_b32 s3, s{S_WV}, 3')
    a.emit('s_lshl_b32 s5, s3, 7')
    a.emit(f's_add_u32 s5, s5, {LST + 64}')
    a.emit('v_and_b32 v3, 15, v1')
    a.emit('v_lshrrev_b32 v2, 5, v1')
    a.emit('v_lshl_add_u32 v2, v3, 1, v2')
    a.emit('v_lshl_add_u32 v2, v2, 2, s5')
    a.emit(f'ds_write2_b32 v2, v{vd}, v{vd+1} offset0:0 offset1:160')
    if halo:
        h = vd + 16
        allsum(h, 32); allsum(h, 16)
        for r in (8, 4):
            a.emit('s_nop 1')
            for i in range(2): a.emit(f'v_add_f32_dpp v{h+i}, v{h+i}, v{h+i} row_ror:{r} row_mask:0xf bank_mask:0xf')
        stats_finish(a, h)
        a.emit('s_lshl_b32 s5, s3, 4')
        a.emit(f's_add_u32 s5, s5, {LST}')
        a.emit('v_and_b32 v3, 3, v1')
        a.emit('v_lshl_add_u32 v2, v3, 2, s5')
        a.emit(f'ds_write2_b32 v2, v{h}, v{h+1} offset0:0 offset1:160')

def gen_w1(a, tsidx, side, cs=(16, 16384, 0)):
    kind = 'w1'
    K = 1024; lda2 = 2048; ldw2 = 7168; ldo2 = 7168
    ot = kind in OT
    S = 3; LM = int(ENV('LM_W1', '2' if ot else '3'))
    STAGE = 16384 + 4 * 8192
    o2 = 'w2' in OT
    assert LM == 2 or not o2
    LST = OHB - 4096 if o2 else S * STAGE
    LCS = LST + 1280
    if MF: LST = OHB - 8192; LCS = LST + 4096
    c0 = -2.0 * 0.7978845608028654 * 1.4426950408889634
    c1 = c0 * 0.044715
    N = 16
    body = f'L_{kind}_body'; end = f'L_{kind}_end'
    VB, VA, VO = 4, 20, 12
    F = [32, 80]; ACC = 128
    acc = lambda jn, jm: ACC + (jn * 4 + jm) * 4
    fx = lambda s, jm: F[s] + jm * 4
    fw = lambda s, jn: F[s] + 16 + jn * 4
    a.label(f'L_{kind}_c0')
    if not MEGA: stub(a, f'{kind}l0_kernel', body, 0, tsidx, True)
    a.label(body)
    tile_map(a, LM, end)
    a.emit(f's_cmp_ge_u32 s{S_WV}, 4')
    a.emit(f's_cbranch_scc1 L_{kind}_loader')
    if ot and OBAR: a.emit('s_barrier')
    if NV:
        from gemm64y import w2_pre, w2_early
        w2_pre(a)
        tile_map(a, LM, None)
    a.emit(f's_and_b32 s{S_WM}, s{S_WV}, 1')
    a.emit(f's_lshr_b32 s{S_WN}, s{S_WV}, 1')
    a.emit('v_and_b32 v3, 15, v1')
    a.emit('v_lshrrev_b32 v2, 4, v1')
    a.emit(f's_lshl_b32 s8, s{S_WM}, 13')
    a.emit(f'v_lshl_add_u32 v{VB}, v1, 4, s8')
    nr = kind in NS and NSR
    wbase(a, 13, 17, nr=nr)
    a.emit(f's_lshl_b32 s9, s{S_WN}, 6')
    a.emit('v_xor_b32 v13, s9, v13')
    a.emit(f'v_add_u32 v{VB+1}, 16384, v13')
    a.emit(f'v_xor_b32 v{VB+2}, 32, v{VB+1}')
    a.emit('v_and_b32 v16, 1, v2')
    a.emit('v_lshrrev_b32 v17, 1, v2')
    if nr: a.emit('v_lshrrev_b32 v13, 2, v1')
    else:
        a.emit('v_bfe_u32 v13, v1, 2, 2')
        a.emit('v_lshl_add_u32 v13, v16, 3, v13')
        a.emit('v_lshl_add_u32 v13, v17, 5, v13')
    n2 = 'w2' in NS
    if n2:
        a.emit('v_and_b32 v14, 1, v1')
        a.emit('v_lshl_add_u32 v13, v13, 1, v14')
        a.emit(f'v_xor_b32 v14, s{S_WN}, v16')
        a.emit('v_lshl_add_u32 v13, v13, 1, v14')
        a.emit('v_bfe_u32 v14, v1, 1, 1')
        a.emit('v_lshl_add_u32 v13, v13, 1, v14')
    else:
        a.emit(f'v_xor_b32 v14, s{S_WN}, v16')
        a.emit('v_lshl_add_u32 v13, v13, 1, v14')
        a.emit('v_and_b32 v14, 3, v1')
        a.emit('v_lshl_add_u32 v13, v13, 2, v14')
    a.emit('v_lshlrev_b32 v13, 3, v13')
    a.emit(f'v_add_u32 v{VB+3}, {16384 + 3 * 8192}, v13')
    i0 = len(a.lines)
    a.emit(f's_lshl_b32 s8, s{S_MT}, 7')
    a.emit(f's_lshl_b32 s9, s{S_WM}, 6')
    a.emit('s_add_u32 s8, s8, s9')
    a.emit(f's_mul_i32 s8, s8, {ldo2}')
    a.emit('v_lshlrev_b32 v14, 8, v17')
    a.emit('v_lshl_add_u32 v14, v3, 4, v14')
    if o2:
        a.emit(f's_lshl3_add_u32 s9, s{S_WM}, s{S_WN}')
        a.emit('s_lshl_b32 s9, s9, 10')
        a.emit(f's_add_u32 s9, s9, {OHB}')
        if n2: a.emit('v_lshl_add_u32 v18, v1, 4, s9')
        else:
            a.emit('v_lshl_add_u32 v18, v16, 9, v14')
            a.emit('v_add_u32 v18, s9, v18')
        srd(a, SB, 'b2', 0, 2048)
        a.emit(f's_lshr_b32 s9, s{S_NT}, 3')
        a.emit(f's_and_b32 s10, s{S_NT}, 7')
        a.emit('s_lshl1_add_u32 s9, s10, s9')
        a.emit('s_lshl_b32 s9, s9, 7')
        a.emit('v_lshl_add_u32 v19, v2, 3, s9')
    a.emit('v_add_u32 v14, s8, v14')
    a.emit(f's_lshl_b32 s10, s{S_NT}, 11')
    a.emit(f's_lshl_b32 s9, s{S_WN}, 10')
    a.emit('s_add_u32 s9, s9, s10')
    a.emit(f'v_lshl_add_u32 v{VO}, v1, 4, s8' if n2 else f'v_lshl_add_u32 v{VO}, v16, 9, v14')
    a.emit(f'v_add_u32 v{VO}, s9, v{VO}')
    if n2 and not MF: a.emit('v_lshl_add_u32 v17, v16, 2, v17')
    a.emit(f'v_mul_u32_u24 v16, {16*ldo2}, v16')
    a.emit('s_lshr_b32 s9, s9, 1')
    a.emit(f'v_add3_u32 v{VO+1}, v16, v14, s9')
    if MF:
        assert n2 and OH
        a.emit(f's_lshl_b32 s9, s{S_WM}, 10')
        a.emit(f's_add_u32 s9, s9, {LST}')
        a.emit('v_lshl_add_u32 v14, v3, 4, s9')
        a.emit(f's_lshl_b32 s9, s{S_WN}, 9')
        a.emit(f's_add_u32 s9, s9, {LCS}')
        a.emit('v_lshl_add_u32 v15, v3, 4, s9')
        a.emit('v_bfe_u32 v16, v1, 2, 1')
        a.emit('v_bfe_u32 v17, v1, 3, 1')
        a.emit('v_lshl_add_u32 v17, v16, 2, v17')
        a.emit('v_and_b32 v16, 3, v1')
        a.emit('v_lshl_add_u32 v17, v17, 2, v16')
        a.emit(f's_lshl_b32 s9, s{S_WN}, 7')
        a.emit(f's_add_u32 s9, s9, {LCS}')
        a.emit('v_lshl_add_u32 v16, v17, 4, s9')
        if MF == 2:
            a.emit('v_bfe_u32 v17, v1, 4, 1')
            for r in (14, 15, 16): a.emit(f'v_lshl_add_u32 v{r}, v17, 3, v{r}')
        a.emit(f'v_mov_b32 v17, {LST + 2048 + 12}')
    else:
        a.emit(f's_lshl_b32 s9, s{S_WM}, 8')
        a.emit(f's_add_u32 s9, s9, {LST + 64}')
        a.emit('v_lshl_add_u32 v14, v3, 2, s9')
        a.emit(f's_lshl_b32 s9, s{S_WN}, 7')
        a.emit(f's_add_u32 s9, s9, {LCS}')
        a.emit('v_lshl_add_u32 v15, v2, 4, s9')
        a.emit(f's_lshl_b32 s9, s{S_WN}, {5 if n2 else 6}')
        a.emit(f's_add_u32 s9, s9, {LCS}')
        a.emit(f'v_lshl_add_u32 v16, v{17 if n2 else 2}, 4, s9')
        if OH: a.emit(f'v_mov_b32 v17, {LST}')
    for i in range(0 if ot else 112): a.emit(f'v_mov_b32 v{ACC+i}, 0')
    if not MEGA: a.emit('s_waitcnt lgkmcnt(0)')
    srd(a, SO, ENV('HB', 'ws'), WS_H, 2048 * 7168)
    HC = ENV('HC', '')
    if HC:
        G_ = int(ENV('HCG', '6'))
        a.emit('v_lshrrev_b32 v26, 4, v1')
        a.emit(f'v_mul_u32_u24 v26, {16*ldo2}, v26')
        a.emit('v_lshl_add_u32 v26, v3, 6, v26')
        if G_ == 7: a.emit('v_and_b32 v26, 0xffffff80, v26')
        a.emit(f's_lshl1_add_u32 s3, s{S_NT}, s{S_WN}')
        a.emit('s_lshl_b32 s4, s3, 9')
        a.emit('s_add_u32 s4, s4, s8')
        a.emit('s_add_u32 s4, s4, 32768')
        a.emit('s_lshl_b32 s3, s3, 10')
        a.emit('s_add_u32 s3, s3, s10')
        a.emit('s_add_u32 s3, s3, s8')
        a.emit(f's_add_u32 s3, s3, {48 * 1024}')
        a.emit('v_and_b32 v27, 0xfffffdff, v26')
        op = 'load' if 'l' in HC else 'store'; fl = ' sc1' if '1' in HC else ''
        a.emit(f'buffer_{op}_dword v28, v26, s[{SO}:{SO+3}], s3 offen{fl}')
        a.emit(f'buffer_{op}_dword v29, v26, s[{SO}:{SO+3}], s3 offen offset:2048{fl}')
        a.emit(f'buffer_{op}_dword v30, v27, s[{SO}:{SO+3}], s4 offen{fl}')
    if ENV('HS'):
        a.emit(f"s_and_b32 s3, s2, {ENV('HS')}")
        a.emit(f's_cselect_b32 s{SO+2}, 0, s{SO+2}')
    if not ot: code_touch(a, 'L_w2_c0', 'L_w2_c1', 192 if SPX else 128)
    PW = LF2 == 2
    if PW: a.lines.append('@W2A')
    mid = []
    if ot: mid = a.lines[i0:]; del a.lines[i0:]
    def reads(s, ks):
        o = []
        if 'noread' in DBG: return o
        for jm in range(4):
            o.append(f'ds_read_b128 v[{fx(s,jm)}:{fx(s,jm)+3}], v{VA} offset:{jm*2048+ks*1024}')
        for jn in range(7):
            for h in range(2):
                r = fw(s, jn) + 2 * h
                o.append(f'ds_read_b64_tr_b16 v[{r}:{r+1}], v{VA+1+(jn&1 if jn < 6 else 2)} offset:{((jn>>1)*8192 if jn < 6 else 0)+h*(2048 if nr else 512 if jn < 6 else 256)+ks*4096}')
        return o
    def mf(s):
        o = []
        if 'nomfma' in DBG: return ['s_nop 0']
        for jn, jm in mf_order(7, 4):
            if True:
                c = acc(jn, jm)
                o.append(f'v_mfma_f32_16x16x32_bf16 v[{c}:{c+3}], v[{fw(s,jn)}:{fw(s,jn)+3}], v[{fx(s,jm)}:{fx(s,jm)+3}], v[{c}:{c+3}]')
        return o
    zc = lambda x: x[:x.rindex(',')] + ', 0'
    CS = 32; BI = 60; STT = 88; CK = 96; T = 100; D = 108
    KK = 76; FS = 4
    PT = int(ENV('PTW', '1')) if MF == 2 else 0
    if PT: BI = 46; KK = 56; FS = 2
    FW = 3 if MF == 1 else 1
    def fold(jn, jm): return f'v_mfma_f32_16x16x{16 * (FW + 1 >> 1)}_bf16 v[{acc(jn,jm)}:{acc(jn,jm)+3}], v[{CS+FS*jn}:{CS+FS*jn+FW}], v[{BI+FS*jm}:{BI+FS*jm+FW}], v[{acc(jn,jm)}:{acc(jn,jm)+3}]'
    bia = [f'buffer_load_dwordx2 v[{OBIA[jn]}:{OBIA[jn]+1}], v19, s[{SB}:{SB+3}], 0 offen offset:{jn*32}' for jn in range(4 if o2 else 0)]
    mode = [f's_cmp_lg_u32 s{S_T}, 0', f's_cselect_b32 s{S_T}, {HALT}, 0'] + [x for r in ((SO, SX, SC) if PW else (SO,)) for x in (f's_add_u32 s{r}, s{r}, s{S_T}', f's_addc_u32 s{r+1}, s{r+1}, 0')]
    tail = None
    if MF:
        TK = 76 if PT else T
        rr = lambda jm, k: f'ds_read_b128 v[{KK+4*jm}:{KK+4*jm+3}], v{14 if MF == 1 else TK} offset:{2048+256*jm}' if k else f'ds_read_b{32*FW+32} v[{BI+FS*jm}:{BI+FS*jm+FW}], v14 offset:{256*jm}'
        rc = lambda jn: f'ds_read_b{32*FW+32} v[{CS+FS*jn}:{CS+FS*jn+FW}], v{15 if jn < 6 else 16} offset:{(jn>>1)*1024+(jn&1)*256}'
        assert ENV('ORD', '0312')[0] == '0'
        hd = [rr(0, 0), rc(0), rc(1), rr(0, 1), 'ds_read_b32 v17, v17']
        tl = [rr(jm, k) for jm in (1, 2, 3) for k in (0, 1)] + [rc(jn) for jn in (6, 2, 3, 4, 5)]
        ak = [f'v_and_b32 v{TK}, -9, v14'] * (MF == 2)
    if PT:
        rd = hd + tl; fl = {i: rd[2*i:2*i+2] for i in range(8)}
        for i in range(4): fl[9 + i] = bia[i:i+1]
        fl[14] = ['s_waitcnt lgkmcnt(0)', fold(0, 0), f'v_readfirstlane_b32 s{S_T}, v17']
        for i in range(4): fl[16 + i] = mode[2*i:2*i+2]
        if PT == 2:
            fl = {i: rd[i:i+1] for i in range(16)}
            for i in range(4): fl[16 + i] = bia[i:i+1]
            fl[9] += ['s_waitcnt lgkmcnt(5)']; fl[10] += [f'v_readfirstlane_b32 s{S_T}, v17']
            fl[20] = ['s_waitcnt lgkmcnt(0)', fold(0, 0)]
            for i in range(4): fl[21 + i] = mode[2*i:2*i+2]
        tail = (ak, weave(mf(1), fl))
    big_loop(a, kind, N, S, STAGE, 4, VB, VA, reads, mf, ot=(lambda s: mf(1) if s else [zc(x) for x in mf(0)]) if ot else None, mid=mid, tail=tail)
    if ENV('XSE'): a.emit(f"s_sleep {ENV('XSE')}")
    if MF and not PT:
        for x in hd[:2] + ak + hd[2:] + tl: a.emit(x)
    for jm in range(0 if MF else 4):
        a.emit(f'ds_read2_b32 v[{STT+2*jm}:{STT+2*jm+1}], v14 offset0:{16*jm} offset1:{160+16*jm}')
    for jn in range(0 if 'nofold' in DBG or MF else 7):
        a.emit(f'ds_read_b128 v[{CS+4*jn}:{CS+4*jn+3}], v{15 if jn < 6 else 16} offset:{(jn>>1)*256+(jn&1)*64}')
        a.emit(f'ds_read_b128 v[{BI+4*jn}:{BI+4*jn+3}], v{15 if jn < 6 else 16} offset:{1024+(jn>>1)*256+(jn&1)*64}')
    if HC: a.emit('s_waitcnt vmcnt(0)')
    if not PT:
        if OH and not MF: a.emit('ds_read_b32 v17, v17')
        for x in bia: a.emit(x)
        if MF:
            a.emit(f's_waitcnt lgkmcnt({len(tl) + 3})')
            a.emit(fold(0, 0))
            a.emit(f's_waitcnt lgkmcnt({len(tl)})')
        else:
            a.emit(f'v_mov_b32 v{CK}, {f2u(c0):#x}')
            a.emit(f'v_mov_b32 v{CK+1}, {f2u(c1):#x}')
            a.emit(f'v_mov_b32 v{CK+2}, 1.0')
            a.emit('s_waitcnt lgkmcnt(0)')
        if OH: a.emit(f'v_readfirstlane_b32 s{S_T}, v17')
        for jm in range(0 if MF else 4):
            a.emit(f'v_mul_f32 v{STT+2*jm}, v{STT+2*jm}, v{STT+2*jm+1}')
        for x in mode if OH else []: a.emit(x)
    def tile_math(jn, jm, d):
        c = acc(jn, jm)
        seqs = []
        ST2 = f'v[{STT+2*jm}:{STT+2*jm+1}]'
        for q in range(2):
            x = c + 2 * q; t = T + 2 * q + 4 * (jn & 1)
            X = f'v[{x}:{x+1}]'; TT = f'v[{t}:{t+1}]'
            seqs.append([
              f'v_pk_fma_f32 {TT}, v[{CS+4*jn+2*q}:{CS+4*jn+2*q+1}], {ST2}, v[{BI+4*jn+2*q}:{BI+4*jn+2*q+1}] op_sel:[0,0,0] op_sel_hi:[1,0,1] neg_lo:[0,1,0] neg_hi:[0,1,0]',
              f'v_pk_fma_f32 {X}, {X}, {ST2}, {TT} op_sel:[0,1,0] op_sel_hi:[1,1,1]',
              f'v_pk_mul_f32 {TT}, {X}, {X}',
              f'v_pk_fma_f32 {TT}, {TT}, v[{CK}:{CK+1}], v[{CK}:{CK+1}] op_sel:[0,1,0] op_sel_hi:[1,1,0]',
              f'v_pk_mul_f32 {TT}, {TT}, {X}',
              f'v_exp_f32 v{t}, v{t}\n  v_exp_f32 v{t+1}, v{t+1}',
              f'v_pk_add_f32 {TT}, {TT}, v[{CK+2}:{CK+3}] op_sel_hi:[1,0]',
              f'v_rcp_f32 v{t}, v{t}\n  v_rcp_f32 v{t+1}, v{t+1}',
              f'v_pk_mul_f32 {X}, {X}, {TT}',
              f'v_cvt_pk_bf16_f32 v{d+q}, v{x}, v{x+1}'])
        if MF:
            k0 = f'v[{KK+4*jm}:{KK+4*jm+1}]'; k2 = f'v[{KK+4*jm+2}:{KK+4*jm+3}]'
            for q in seqs:
                TT = q[0].split()[1][:-1]
                q[3] = q[3].replace(f'v[{CK}:{CK+1}]', k0)
                q[6] = f'v_pk_fma_f32 {TT}, {TT}, {k2}, {k2} op_sel_hi:[1,0,0]'
                del q[:2]
            seqs[0][3] = '@MF\n  ' + seqs[0][3]
            tiles.append((jn, jm))
        if 'nofold' in DBG: seqs = [q[2:] for q in seqs]
        if 'nofold1' in DBG: seqs = [q[1:] for q in seqs]
        if 'nogelu' in DBG: seqs = [q[:2] + q[-1:] for q in seqs]
        if 'halfgelu' in DBG: seqs = [q[:2] + q[5:6] + q[-2:] for q in seqs]
        for ia, ib in zip(*seqs):
            a.emit(ia); a.emit(ib)
    cnt = [0]; tiles = []; e0 = len(a.lines)
    def pair(t0, t1, vo, soff, big=False):
        d = D + 4 * (cnt[0] % 4); cnt[0] += 1
        tile_math(*t0, d); tile_math(*t1, d + 2)
        a.emit(f's_add_u32 s3, s10, {soff}' if big else f's_mov_b32 s3, {soff}')
        if not n2 or t0[0] == 6:
            a.emit('s_nop 0')
            a.emit(f'v_permlane16_swap_b32 v{d}, v{d+2}')
            a.emit(f'v_permlane16_swap_b32 v{d+1}, v{d+3}')
        a.emit(f'buffer_store_dwordx4 v[{d}:{d+3}], v{vo}, s[{SO}:{SO+3}], s3 offen' + (stf(kind) if str(t0[0] // 2) in ENV('WTP', '013' if OH else '0123') else ' ' + ENV('WTQ', '')))
        if o2 and t0[0] < 6: a.emit(f'ds_write_b128 v18, v[{d}:{d+3}] offset:{(t0[0] // 2 + 2) % 3 * 16384 + t0[1] * 2048}')
    pr = lambda p, jm: pair((2 * p, jm), (2 * p + 1, jm), VO, jm * 16 * ldo2 + ((16 + 32 * p) if OH == 2 else (46 + 2 * p)) * 1024 * (p > 0), p > 0 and OH != 2)
    od = lambda jm: pair((6, jm), (6, jm + 1), VO + 1, jm * 16 * ldo2 + 32768)
    order = [lambda jm=jm: pr(0, jm) for jm in range(4)] + [lambda: od(0), lambda: od(2)] + [lambda jm=jm, p=p: pr(p, jm) for jm in range(4) for p in (1, 2)]
    if OH:
        order = []
        for c in ENV('ORD', '0312'): order += [lambda: od(0), lambda: od(2)] if c == '3' else [lambda jm=jm, p=int(c): pr(p, jm) for jm in range(4)]
    EW = int(ENV('EW', '10'))
    if EF: order = [lambda: od(0), lambda: od(2)] + [lambda jm=jm, p=p: pr(p, jm) for p in (1, 2, 0) for jm in range(4)]
    for i, f in enumerate(order):
        f()
        if NV and i + 1 == EX: w2_early(a)
        if (EARLY or EF) and i + 1 == EW:
            a.emit(f's_waitcnt vmcnt({EW - (6 if EF else EARLY // 4)})')
            a.emit('s_barrier')
    for i, j in enumerate(j for j in range(e0, len(a.lines)) if '@MF' in a.lines[j]):
        a.lines[j] = a.lines[j].replace('@MF\n  ', ('s_waitcnt lgkmcnt(0)\n  ' if i == 1 and not PT else '') + (fold(*tiles[i + 1]) + '\n  ' if i + 1 < len(tiles) else ''))
    if ENV('ES'): stamp(a, 1)
    compute_end(a, kind)
    a.label(f'L_{kind}_loader')
    L = Loader(a, kind, K, lda2, ldw2, [0, f's{S_HD}', 's_add_u32 s4, s4, 128'], 128, S, STAGE, rot=int(ENV('ROT_W1', '0')), xblk=True, half=2048)
    L.ot = int(ot); L.loc = bool(LF1)
    L.setup()
    a.emit('s_waitcnt lgkmcnt(0)')
    if WD: srd(a, SW, 'w1', 0, 1024 * 7168)
    iw0 = len(a.lines)
    if WD == 'b':
        a.emit('s_waitcnt vmcnt(7)')
        a.emit('s_barrier')
    if ot and ENV('CT2', 'l') == 'l': code_touch(a, 'L_w2_c0', 'L_w2_c1', 192, loader=True)
    srd(a, SX, 'ws', WS_X1, 4 * MB)
    if not WD: srd(a, SW, 'w1', 0, 1024 * 7168)
    srd(a, ST, 'ws', WS_ST, 16 * 16384); srd(a, SC, 'ws0', WS_CS, 16 * 16384); srd(a, SB, 'b1', 0, 7168)
    def tail():
        stats_loads(a, 32, False)
        a.emit(f's_lshl_b32 s4, s{S_NT}, 7')
        a.emit(f's_lshl_b32 s5, s{S_WV}, 6')
        a.emit('s_add_u32 s4, s4, s5')
        a.emit(f's_add_u32 s4, s4, {1472 - 256}')
        a.emit(f's_lshl_b32 s5, s{S_NT}, 6')
        a.emit(f's_cmp_eq_u32 s{S_WV}, 4')
        a.emit('s_cselect_b32 s4, s5, s4')
        a.emit('s_lshr_b32 s5, s5, 1')
        a.emit('s_add_u32 s5, s5, 1024')
        a.emit(f's_cmp_eq_u32 s{S_WV}, 7')
        a.emit('s_cselect_b32 s4, s5, s4')
        a.emit('v_add_u32 v3, s4, v1')
        a.emit('v_lshlrev_b32 v2, 2, v3')
        a.emit('v_lshlrev_b32 v3, 1, v3')
        a.emit(f's_mov_b32 s3, {cs[2]}')
        for j in range(16):
            if j < cs[0]:
                a.emit(f'buffer_load_dword v{64+j}, v2, s[{SC}:{SC+3}], s3 offen')
                if j < cs[0] - 1: a.emit(f's_add_u32 s3, s3, {cs[1]}')
            else:
                a.emit(f'v_mov_b32 v{64+j}, 0')
        a.emit(f'buffer_load_ushort v80, v3, s[{SB}:{SB+3}], 0 offen')
        side(a, 'issue')
    ns = side(Asm(), 'issue')
    extra = None
    if VW:
        assert int(ENV('LM_W2', '2')) == 2
        srd(a, SR, 'w2', 0, 3584 * 2048)
        a.emit('s_and_b32 s5, s2, 3')
        a.emit('s_lshl_b32 s5, s5, 2')
        a.emit(f's_and_b32 s6, s{S_CU}, 3')
        a.emit('s_add_u32 s5, s5, s6')
        a.emit('s_and_b32 s6, s2, 4')
        a.emit('s_lshl_b32 s6, s6, 1')
        a.emit(f's_lshr_b32 s7, s{S_CU}, 2')
        a.emit('s_add_u32 s6, s6, s7')
        rot_table(a, S_TB, 5, 6, 'w2')
        a.emit(f's_add_u32 s5, s5, s{S_WV}')
        a.emit('s_and_b32 s5, s5, 3')
        wvoff(a, 16, 5, 6, 2048)
        sched = [int(c) for c in ENV('PSCH', '0111111111111122')]
        assert sum(sched) >= NV1
        def extra(i):
            o = []
            for p in range(sum(sched[:i]), min(NV1, sum(sched[:i + 1]))): o += park(56, 2 * p, 128 + 8 * p, 16, SR)
            return o
        ns += sum(x.startswith('buffer_load') for i in (13, 14, 15) for x in extra(i))
    if XD:
        extra = tail_parks('w2', SR, lambda b: srd(b, SR, 'w2', 0, 3584 * 2048))
        ns += 2 * sum(TSCH['w2'])
    if XD and ENV('PFL', '2') == '3':
        b = Asm(); side(b, 'late'); pl = [l.strip() for l in b.lines]
        pl = [l.replace('v2,', 'v18,').replace(', v2', ', v18').replace('s3', 's93') for l in pl]
        i0 = min(i for i, l in enumerate(pl) if l.startswith('buffer_load'))
        for l in pl[:i0]: a.emit(l)
        st = [int(x) for x in ENV('PFS', '6,10').split(',')]
        extra = lambda i: pl[i0 + 2 * st.index(i):i0 + 2 * st.index(i) + 2] if i in st else []
    def final():
        a.emit(f's_waitcnt vmcnt({ns})')
        if ENV('PFL', '2') == '1': side(a, 'late')
        stats_reduce_store(a, 32, LST)
        for j in range(8): a.emit(f'v_add_f32 v{64+j}, v{64+j}, v{72+j}')
        for j in range(4): a.emit(f'v_add_f32 v{64+j}, v{64+j}, v{68+j}')
        a.emit('v_add_f32 v64, v64, v65')
        a.emit('v_add_f32 v66, v66, v67')
        a.emit('v_add_f32 v64, v64, v66')
        a.emit('v_lshlrev_b32 v80, 16, v80')
        a.emit('v_lshlrev_b32 v2, 2, v0')
        a.emit(f'v_add_u32 v2, {LCS - 1024}, v2')
        a.emit('ds_write_b32 v2, v64')
        a.emit('ds_write_b32 v2, v80 offset:1024')
        a.emit('s_waitcnt lgkmcnt(0)')
    import sides
    if T4:
        stats4_setup(a, False)
        a.emit(f's_lshl_b32 s4, s{S_NT}, 7')
        a.emit(f's_lshl_b32 s5, s{S_WV}, 6')
        a.emit('s_add_u32 s4, s4, s5')
        a.emit(f's_add_u32 s4, s4, {1472 - 256}')
        a.emit(f's_lshl_b32 s5, s{S_NT}, 6')
        a.emit(f's_cmp_eq_u32 s{S_WV}, 4')
        a.emit('s_cselect_b32 s4, s5, s4')
        a.emit('s_lshr_b32 s5, s5, 1')
        a.emit('s_add_u32 s5, s5, 1024')
        a.emit(f's_cmp_eq_u32 s{S_WV}, 7')
        a.emit('s_cselect_b32 s4, s5, s4')
        a.emit('v_and_b32 v3, 15, v1')
        a.emit('v_lshl_add_u32 v3, v3, 2, s4')
        a.emit('v_lshrrev_b32 v2, 4, v1')
        a.emit(f'v_add_lshl_u32 v{VBI}, v3, v2, 1')
        a.emit('v_lshlrev_b32 v3, 2, v3')
        a.emit(f'v_lshl_add_u32 v{VCS}, v2, 14, v3')
        CSI = int(ENV('CSI', '14')); STI = int(ENV('STI', '14'))
        LP2 = ENV('LP2', ''); LP0 = int(ENV('LP0', '5'))
        if LP2:
            a.emit(f's_and_b32 s3, s{S_MT}, 3')
            a.emit(f's_lshl2_add_u32 s3, s3, s{S_WV}')
            a.emit('s_sub_u32 s3, s3, 4')
            a.emit(f's_and_b32 s4, s{S_NT}, 7')
            a.emit('s_lshl_b32 s4, s4, 8')
            a.emit('s_lshl_b32 s5, s3, 14')
            a.emit('s_add_u32 s5, s5, s4')
            a.emit(f's_lshl_b32 s{SR}, s{S_NT}, 18')
            a.emit(f's_add_u32 s{SR}, s{SR}, {24 << 17}')
            a.emit(f's_add_u32 s{SR}, s{SR}, s5')
            a.emit(f's_and_b32 s{SR+1}, s{S_NT}, 8')
            a.emit(f's_lshl_b32 s{SR+1}, s{SR+1}, 16')
            a.emit(f's_add_u32 s{SR+1}, s{SR+1}, {16 << 17}')
            a.emit(f's_add_u32 s{SR+1}, s{SR+1}, s5')
            a.emit('s_lshr_b32 s5, s3, 1')
            a.emit(f's_lshl3_add_u32 s5, s{S_NT}, s5')
            a.emit('s_lshl_b32 s5, s5, 14')
            a.emit('s_and_b32 s3, s3, 1')
            a.emit('s_lshl_b32 s3, s3, 7')
            a.emit('s_add_u32 s4, s4, s3')
            a.emit(f's_add_u32 s{SR+2}, s5, s4')
            a.emit(f's_add_u32 s{SR+3}, s{SR+1}, {2 << 17}')
        HP = int(ENV('HP', '-1'))
        if HP >= 0:
            srd(a, SR, 'ws', WS_H, 2048 * 7168)
            a.emit(f's_and_b32 s3, s{S_WV}, 3')
            a.emit(f's_lshl2_add_u32 s3, s{S_MT}, s3')
            a.emit(f's_mul_i32 s3, s3, {32 * ldo2}')
            a.emit(f's_lshl_b32 s4, s{S_NT}, 12')
            a.emit('s_add_u32 s4, s4, s3')
            a.emit(f's_add_u32 s4, s4, {48 * 1024}')
            a.emit('v_lshl_add_u32 v24, v1, 6, s4')
            a.emit(f'v_add_u32 v25, {16 * ldo2}, v24')
            a.emit(f's_lshl_b32 s4, s{S_NT}, 10')
            a.emit('s_add_u32 s4, s4, s3')
            a.emit(f's_add_u32 s4, s4, {32 * 1024}')
            a.emit('v_and_b32 v3, 15, v1')
            a.emit('v_lshl_add_u32 v3, v3, 6, s4')
            a.emit('v_bfe_u32 v2, v1, 4, 1')
            a.emit(f'v_mul_u32_u24 v2, {16 * ldo2}, v2')
            a.emit('v_add_u32 v26, v2, v3')
            a.emit('v_and_b32 v3, 15, v1')
        CPI = int(ENV('CPI', '-1'))
        assert CPI < 0 or CPI >= CSI + 3 or (CSI, CPI, STI) == (13, 14, 14)
        LSK = int(ENV('LSK', '1')) if MF else 0; VC = 200
        def l0(o, lab, w):
            return [f's_cmp_lg_u32 s{S_LAYER}, 0', f's_cbranch_scc1 {lab}'] + o + ([f's_branch {lab}e', f'{lab}:', f's_waitcnt vmcnt({w})', f'{lab}e:'] if w >= 0 else [f'{lab}:']) if LSK else o
        def cols():
            b = Asm()
            b.emit(f's_and_b32 s3, s{S_WV}, 3')
            b.emit('s_lshl_b32 s5, s3, 9')
            b.emit(f's_add_u32 s5, s5, {LST}')
            b.emit('v_lshrrev_b32 v2, 5, v1')
            b.emit('v_and_b32 v3, 15, v1')
            b.emit('v_lshl_add_u32 v2, v3, 1, v2')
            b.emit(f'v_lshl_add_u32 v{VC+5}, v2, 4, s5')
            quad_sum(b, 64)
            b.emit(f'v_lshl_or_b32 v{VC+3}, v80, 16, v80')
            b.emit('s_lshl_b32 s5, s3, 10')
            b.emit(f's_add_u32 s5, s5, {LCS}')
            b.emit('v_permlane16_swap_b32 v64, v65')
            b.emit('v_lshrrev_b32 v2, 4, v1')
            b.emit('v_lshl_add_u32 v2, v3, 2, v2')
            b.emit(f'v_lshl_add_u32 v{VC+4}, v2, 4, s5')
            b.emit('v_add_f32 v64, v64, v65')
            split3(b, 64, VC, 65, False)
            return l0([l.strip() for l in b.lines], 'L_w1_cp', -1)
        def extra4(i):
            o = []
            if LP2 and i == LP0 - 1:
                b = Asm(); srd(b, SO, 'w2', 0, 3584 * 2048); o += [l.strip() for l in b.lines]
            if LP2 and LP0 <= i < LP0 + 8:
                for k, c in enumerate('ABCD'):
                    if c in LP2: o += [f's_buffer_load_dword s84, s[{SO}:{SO+3}], s{SR+k} offset:{64*j}' for j in range(2 if c == 'C' else 4)] + [f's_add_u32 s{SR+k}, s{SR+k}, 2048']
            if i == STI and LSK: o += stats4_loads(32, False)
            if i == CSI: o += l0(quad_loads(64, VCS, SC) + [f'buffer_load_ushort v80, v{VBI}, s[{SB}:{SB+3}], 0 offen'], 'L_w1_cl', 11 if CSI == 13 else 4)
            if i == STI and not LSK: o += stats4_loads(32, False)
            if MF and i == CPI: o += ['s_waitcnt vmcnt(4)'] * (CSI == 13) + cols()
            HPD = int(ENV('HPD', '0'))
            if HP >= 0: o += [f"buffer_{ENV('HPO', 'load')}_dword v{84+j}, v{24+j}, s[{SR}:{SR+3}], 0 offen {ENV('HPF', '')}" for j in range(3) if i == HP + j * HPD]
            return o
        def final5():
            def fin():
                a.emit('v_mul_f32 v32, 0x3a800000, v32')
                a.emit('v_mul_f32 v33, 0x3a800000, v33')
                a.emit('v_fma_f32 v33, -v32, v32, v33')
                a.emit('v_max_f32 v33, 0, v33')
                a.emit('v_add_f32 v33, 0x3727c5ac, v33')
                a.emit('v_rsq_f32 v34, v33')
                a.emit(f'v_mul_f32 v32, {-0.25 * MF}, v32')
                split3(a, 32, 36, 35, True)
                a.emit('v_mul_f32 v42, v33, v34')
                a.emit(f'v_mul_f32 v40, {f2u(c0):#x}, v34')
                a.emit('v_mul_f32 v34, v34, v34')
                a.emit(f'v_mul_f32 v33, {0.25 * MF}, v42')
                a.emit(f'v_mul_f32 v34, {f2u(0.044715):#x}, v34')
                a.emit('v_cvt_pk_bf16_f32 v35, v33, v33')
                a.emit('v_mul_f32 v41, v40, v34')
                a.emit('v_and_b32 v35, 0xffff0000, v35')
                if not GM: a.emit(f'v_xor_b32_dpp v43, v{VMD}, v{VMD} row_ror:2 row_mask:0xf bank_mask:0xf')
                a.emit('v_sub_f32 v35, v33, v35')
                if not GM: a.emit('v_cmp_ne_u32 vcc, 0, v43')
                a.emit('v_cvt_pk_bf16_f32 v39, v33, v35')
                if not GM: a.emit(f's_or_b32 s{S_MD}, vcc_lo, vcc_hi')
                a.emit(f'v_mov_b32 v43, s{S_MD}')
                a.emit(f'ds_write_b128 v{VC+5}, v[36:39]')
                a.emit(f'ds_write_b128 v{VC+5}, v[40:43] offset:2048')
            assert ENV('PW_W1', '4') == '4'
            for x in cols() if CPI < 0 else []: a.emit(x)
            a.emit(f'ds_write_b128 v{VC+4}, v[{VC}:{VC+3}]')
            assert CSI in (13, 14) and STI == 14 or not LSK
            stats4_store(a, 32, LST, False, fin=fin)
            a.emit('s_waitcnt lgkmcnt(0)')
        def final4():
            a.emit(f"s_waitcnt vmcnt({3 if HP >= 14 and ENV('HPO', 'load') == 'load' else 0})")
            if MF: return final5()
            stats4_store(a, 32, LST, False, nan_chk(a, 'L_w1_s', False) if SF else None)
            quad_sum(a, 64)
            a.emit('v_lshlrev_b32 v80, 16, v80')
            a.emit('s_lshl_b32 s5, s3, 8')
            a.emit(f's_add_u32 s5, s5, {LCS}')
            a.emit('v_permlane16_swap_b32 v64, v65')
            a.emit('v_lshrrev_b32 v2, 4, v1')
            a.emit('v_lshl_add_u32 v2, v3, 2, v2')
            a.emit('v_lshl_add_u32 v2, v2, 2, s5')
            a.emit('v_add_f32 v64, v64, v65')
            a.emit('ds_write2st64_b32 v2, v64, v80 offset0:0 offset1:4')
            if OH:
                assert ENV('PW_W1', '4') == '4'
                if GM: a.emit(f'v_mov_b32 v2, {LST}')
                else:
                    a.emit(f'v_xor_b32_dpp v64, v{VMD}, v{VMD} row_ror:2 row_mask:0xf bank_mask:0xf')
                    a.emit(f's_lshl2_add_u32 s5, s3, {LST}')
                    a.emit('v_cmp_ne_u32 vcc, 0, v64')
                    a.emit('v_mov_b32 v2, s5')
                    a.emit(f's_or_b32 s{S_MD}, vcc_lo, vcc_hi')
                a.emit(f'v_mov_b32 v64, s{S_MD}')
                a.emit('ds_write_b32 v2, v64')
            a.emit('s_waitcnt lgkmcnt(0)')
        assert ns == 0
        pst = sides.stouch_post(a, kind)
        if WD == 'c':
            a.emit('s_waitcnt vmcnt(0)')
            a.emit('s_barrier')
        elif WD: L.after_own = a.lines[iw0:]; del a.lines[iw0:]
        if LF1: L.run(final=final4, extra=extra4, post=pst, dep=lambda pf: dep_loc(a, kind, pf, lambda: a.emit(f's_waitcnt vmcnt({L.npre - 6})')))
        else: L.run(final=final4, extra=extra4, post=pst, dep=lambda pf: dep_wait(a, kind, postf=pf, preg=(lambda: a.emit('s_waitcnt vmcnt(7)')) if WG else None, obar=L.npre - 6 if ot and OBAR else 0, pref=(lambda: a.emit(f's_waitcnt vmcnt({L.npre - 7})')) if ot and not OBAR else None))
    else: L.run(tail_issue=tail, ntail_vm=17 + cs[0] + side(Asm(), 'issue'), final=final, extra=extra, post=sides.stouch_post(a, kind),
          dep=(lambda pf: dep_wait(a, kind, postf=pf)) if MEGA else None)
    if ENV('PFL', '2') == '2': side(a, 'late')
    if not VW: side(a, 'finish')
    loader_end(a, kind)
    a.label(end)
    a.emit('s_endpgm')
    loader_first(a, kind)
    if not MEGA:
        a(KD.format(name=f'{kind}l0_kernel'))
        stub(a, f'{kind}l1_kernel', body, 1, tsidx + 4, False)
        a(KD.format(name=f'{kind}l1_kernel'))
    a.label(f'L_{kind}_c1')
    return LCS + (4096 if MF else 2048)
```

```python
from common import *
from gemmw1 import *

def res_addr(a, swv, sd, v):
    assert int(ENV('LM_WO', '2')) == 2 and int(ENV('LM_W2', '2')) == 2
    srd(a, sd, 'A_x', 0, 4 * MB)
    a.emit('s_and_b32 s3, s2, 3')
    a.emit(f's_and_b32 s4, s{S_CU}, 3')
    a.emit('s_lshl2_add_u32 s3, s3, s4')
    a.emit(f's_lshl2_add_u32 s3, s3, s{swv}')
    a.emit('s_lshl_b32 s3, s3, 16')
    a.emit('s_bfe_u32 s4, s2, 0x10002' if SPX else 's_and_b32 s4, s2, 4')
    a.emit(f's_lshr_b32 s5, s{S_CU}, 2')
    a.emit('s_lshl1_add_u32 s4, s5, s4' if SPX else 's_lshl1_add_u32 s4, s4, s5')
    a.emit('s_lshl_b32 s4, s4, 7')
    a.emit('s_add_u32 s3, s3, s4')
    a.emit('s_add_u32 s4, s3, 32768')
    a.emit(f'v_and_b32 v{v}, 15, v1')
    a.emit(f'v_lshlrev_b32 v{v+1}, 1, v1')
    a.emit(f'v_and_b32 v{v+1}, 32, v{v+1}')
    a.emit(f'v_lshl_add_u32 v{v}, v{v}, 11, v{v+1}')
    a.emit(f'v_lshrrev_b32 v{v+1}, 1, v1')
    a.emit(f'v_and_b32 v{v+1}, 16, v{v+1}')
    a.emit(f'v_add_u32 v{v}, v{v}, v{v+1}')

def dbg_off(a, v):
    a.emit(f's_lshl_b32 s3, s{S_MT}, 2')
    a.emit('s_sub_u32 s3, s3, 4')
    a.emit(f'v_and_b32 v{v}, 7, v1')
    a.emit(f'v_add_u32 v{v}, s3, v{v}')
    a.emit(f'v_max_i32 v{v}, 0, v{v}')
    a.emit(f'v_lshlrev_b32 v{v}, 2, v{v}')

def res_loads(vd, v, sd):
    return [f'buffer_load_dwordx4 v[{vd+4*i}:{vd+3+4*i}], v{v}, s[{sd}:{sd+3}], s{3+(i>>1)} offen offset:{64*(i&1)}' for i in range(4)]

def gen_qkv(a, tsidx, side):
    kind = 'attn'
    K = 1024; lda2 = 2048; ldw2 = 6144
    S = 3; LM = int(ENV('LM_QKV', '3'))
    XH = 16384 + 6 * 4096
    STAGE = XH + 2048
    LST = S * STAGE
    PT = int(ENV('PTQ', '2'))
    EX = 1024 + (2 * STAGE if PT == 2 else 0)
    N = 16
    body = f'L_{kind}_body'; end = f'L_{kind}_end'
    VB, VA = 4, 10
    VXW, VPE, VPO, VCE, VCO, VVE, VVO, VS1, VS4, VKA, VKB, MAP, MAC, MBP, MBC, VO = range(16, 32)
    M_ODD, M_UPA, M_UPB, M_FA, M_FB = 48, 50, 52, 54, 14
    F = [32, 76]; ACC = 128; HACC = 224; ONES = 236
    acc = lambda jn, jm: ACC + (jn * 4 + jm) * 4
    fx = lambda s, jm: F[s] + jm * 4
    fw = lambda s, jn: F[s] + 20 + jn * 4
    a.label(f'L_{kind}_c0')
    stub(a, f'{kind}l0_kernel', body, 0, tsidx, True)
    a.label(body)
    ot = kind in OT
    HX = LST + 1280
    tile_map(a, LM, end)
    if ot and LM != 2:
        a.emit(f's_cmp_eq_u32 s{S_LAYER}, 0')
        a.emit(f's_cbranch_scc1 L_{kind}_map')
        tile_map(a, 2, None)
        a.label(f'L_{kind}_map')
    a.emit(f's_cmp_ge_u32 s{S_WV}, 4')
    a.emit(f's_cbranch_scc1 L_{kind}_loader')
    if ENV('CTE', '1') == '1': code_touch(a, 'L_attn_c0', 'L_w2_c1', int(ENV('CTN', '320')))
    a.emit(f's_and_b32 s{S_WM}, s{S_WV}, 1')
    a.emit(f's_lshr_b32 s{S_WN}, s{S_WV}, 1')
    a.emit('v_and_b32 v3, 31, v1')
    a.emit('v_lshlrev_b32 v3, 2, v3')
    a.emit(f'v_add_u32 v3, {XH}, v3')
    for i in range(4): a.emit(f'v_mov_b32 v{ONES+i}, 0x3f803f80')
    a.emit(f'ds_write_b32 v3, v{ONES}')
    a.emit(f'ds_write_b32 v3, v{ONES} offset:{STAGE}')
    a.emit(f'v_add_u32 v3, {2*STAGE}, v3')
    a.emit(f'ds_write_b32 v3, v{ONES}')
    if ot: a.emit(f'ds_write_b32 v3, v{ONES} offset:{HX - XH - 2 * STAGE}')
    a.emit('v_and_b32 v3, 15, v1')
    a.emit('v_lshrrev_b32 v2, 4, v1')
    a.emit('v_lshrrev_b32 v33, 1, v3')
    a.emit(f's_lshl_b32 s8, s{S_WM}, 13')
    for ks in range(2):
        if ks: a.emit(f'v_add_u32 v{VB+ks}, 4, v2')
        a.emit(f'v_xor_b32 v{VB+ks}, v{VB+ks if ks else 2}, v33')
        a.emit(f'v_lshlrev_b32 v{VB+ks}, 4, v{VB+ks}')
        a.emit(f'v_lshl_add_u32 v{VB+ks}, v3, 7, v{VB+ks}')
        a.emit(f'v_add_u32 v{VB+4+ks}, {XH}, v{VB+ks}')
        a.emit(f'v_add_u32 v{VB+ks}, s8, v{VB+ks}')
    wbase(a, 34, 33)
    a.emit(f's_lshl_b32 s8, s{S_WV}, 5')
    a.emit('v_xor_b32 v34, s8, v34')
    a.emit(f'v_add_u32 v{VB+2}, 16384, v34')
    a.emit(f'v_xor_b32 v{VB+3}, 32, v{VB+2}')
    i0 = len(a.lines)
    a.emit('v_and_b32 v35, 1, v2')
    a.emit(f'v_xor_b32 v35, s{S_WM}, v35')
    a.emit(f's_lshl_b32 s8, s{S_MT}, 7')
    a.emit(f's_lshl_b32 s9, s{S_WM}, 6')
    a.emit('s_add_u32 s8, s8, s9')
    if OH:
        a.emit('s_mul_i32 s10, s8, 7')
        a.emit(f's_lshl{3 - OH}_add_u32 s11, s{S_NT}, s{S_WN}')
        a.emit('s_add_u32 s10, s10, s11')
        a.emit('s_lshl_b32 s10, s10, 10')
    else:
        a.emit(f's_add_u32 s10, s8, s{S_NT}')
        a.emit('s_lshl_b32 s10, s10, 11')
        a.emit(f's_lshl_b32 s11, s{S_WN}, 10')
        a.emit('s_add_u32 s10, s10, s11')
    if 'wo' in NS: a.emit(f'v_lshl_add_u32 v{VO}, v1, 4, s10')
    else:
        a.emit('v_lshl_add_u32 v33, v3, 4, s10')
        a.emit('v_lshl_add_u32 v33, v35, 9, v33')
        a.emit('v_lshrrev_b32 v34, 1, v2')
        a.emit(f'v_lshl_add_u32 v{VO}, v34, 8, v33')
    a.emit(f's_mul_i32 s10, s{S_WN}, {14336 if XD else 24576}')
    a.emit(f's_add_u32 s10, s10, {EX}')
    a.emit(f's_lshl_b32 s11, s{S_WM}, 10')
    a.emit('s_add_u32 s4, s10, s11')
    a.emit('s_sub_u32 s5, s10, s11')
    a.emit(f's_mul_i32 s6, s{S_WM}, 6144')
    a.emit(f'v_lshl_add_u32 v{VXW}, v1, 4, s4')
    a.emit(f'v_add_u32 v{VPE}, s6, v{VXW}')
    a.emit(f'v_lshl_add_u32 v{VPO}, v1, 4, s5')
    a.emit(f'v_add_u32 v{VPO}, s6, v{VPO}')
    a.emit(f'v_lshl_add_u32 v{VCE}, v2, 8, s4')
    a.emit(f'v_lshl_add_u32 v{VCO}, v2, 8, s5')
    a.emit(f'v_lshl_add_u32 v{VVE}, v3, 4, s4')
    a.emit(f'v_lshl_add_u32 v{VVO}, v3, 4, s5')
    a.emit(f's_lshl_b32 s10, s{S_WM}, 8')
    a.emit(f's_add_u32 s10, s10, {LST}')
    a.emit(f'v_lshl_add_u32 v{VS1}, v3, 2, s10')
    a.emit(f'v_lshl_add_u32 v{VS4}, v2, 4, s10')
    a.emit('v_and_b32 v33, 1, v3')
    a.emit(f'v_cmp_eq_u32 s[{M_ODD}:{M_ODD+1}], 1, v33')
    a.emit('v_lshl_add_u32 v34, v2, 2, v33')
    a.emit('v_add_u32 v35, 2, v34')
    a.emit(f'v_cmp_gt_u32 s[{M_UPA}:{M_UPA+1}], v34, v3')
    a.emit(f'v_cmp_gt_u32 s[{M_UPB}:{M_UPB+1}], v35, v3')
    a.emit('v_mov_b32 v36, 0xffff')
    a.emit('v_mov_b32 v37, 0xffff0000')
    a.emit(f'v_cndmask_b32 v36, v36, v37, s[{M_ODD}:{M_ODD+1}]')
    a.emit(f's_add_u32 s10, s10, {640 + 64}')
    a.emit('v_lshl_add_u32 v34, v34, 2, s10')
    a.emit('v_lshl_add_u32 v35, v35, 2, s10')
    a.emit('v_subrev_u32 v38, 64, v34')
    a.emit('v_subrev_u32 v39, 64, v35')
    a.emit(f'v_cndmask_b32 v{VKA}, v34, v38, s[{M_UPA}:{M_UPA+1}]')
    a.emit(f'v_cndmask_b32 v{VKB}, v35, v39, s[{M_UPB}:{M_UPB+1}]')
    a.emit(f'v_cndmask_b32 v{MAP}, 0, v36, s[{M_UPA}:{M_UPA+1}]')
    a.emit(f'v_cndmask_b32 v{MBP}, 0, v36, s[{M_UPB}:{M_UPB+1}]')
    a.emit(f'v_xor_b32 v{MAC}, v{MAP}, v36')
    a.emit(f'v_xor_b32 v{MBC}, v{MBP}, v36')
    a.emit('s_cmp_eq_u32 s8, 0')
    a.emit(f's_cselect_b64 s[{M_FA}:{M_FA+1}], s[{M_UPA}:{M_UPA+1}], 0')
    a.emit(f's_cselect_b64 s[{M_FB}:{M_FB+1}], s[{M_UPB}:{M_UPB+1}], 0')
    if ot:
        a.emit(f's_cmp_lg_u32 s{S_LAYER}, 0')
        a.emit(f's_cbranch_scc1 L_{kind}_nozero')
    for i in list(range(122 if DS else 120, 236)) + ([] if XD else list(range(240, 256))): a.emit(f'v_mov_b32 v{i}, 0')
    if DS:
        a.emit('s_waitcnt lgkmcnt(0)')
        a.emit(f's_lshl_b32 s3, s{S_WN}, 5')
        a.emit('s_add_u32 s3, s3, s8')
        a.emit(f's_lshl_b32 s4, s{S_NT}, 14')
        a.emit('s_lshl3_add_u32 s3, s3, s4')
        a.emit('v_lshrrev_b32 v121, 1, v2')
        a.emit('v_lshl_add_u32 v121, v121, 4, v3')
        a.emit('v_and_b32 v120, 1, v2')
        a.emit('v_lshl_add_u32 v121, v121, 1, v120')
        a.emit('v_lshl_add_u32 v120, v121, 2, s3')
        srd(a, ST, 'ws0', WS_ST0, 16 * 16384)
        srd(a, SP, 'ws0', WS_FL, FLS)
        a.emit('s_lshl_b32 s3, s2, 11')
        if D2:
            a.emit(f's_cmp_lg_u32 s{S_WV}, 0')
            a.emit(f's_cbranch_scc1 L_{kind}_noclr')
            a.emit(f's_lshl_b32 s5, s{S_MT}, 10')
            a.emit('s_add_u32 s4, s4, s5')
            a.emit('v_lshlrev_b32 v121, 4, v1')
            for i in range(4): a.emit(f'v_mov_b32 v{40+i}, -1')
            a.emit(f'buffer_store_dwordx4 v[40:43], v121, s[{ST}:{ST+3}], s4 offen sc1')
            for i in range(2): a.emit(f'buffer_store_dwordx4 v[128:131], v121, s[{SP}:{SP+3}], s3 offen offset:{1024*i} sc1')
            if GM:
                a.emit('s_getreg_b32 s5, hwreg(HW_REG_XCC_ID, 0, 4)')
                if ENV('FB'): a.emit(f"s_and_b32 s5, s2, {ENV('FB')}")
                a.emit('v_lshl_or_b32 v126, s5, 1, 1')
            else: a.emit('v_mov_b32 v126, 1')
            a.label(f'L_{kind}_noclr')
        else:
            a.emit('v_lshlrev_b32 v121, 3, v0')
            a.emit(f'buffer_store_dwordx2 v[126:127], v121, s[{SP}:{SP+3}], s3 offen sc1')
            dbg_off(a, 121)
        a.emit(f's_and_b32 s{SC+1}, s{SC+1}, 0xffff')
        a.emit(f's_mov_b32 s{SC+2}, 256')
        a.emit(f's_mov_b32 s{SC+3}, 0x00020000')
        a.emit('s_mov_b32 s7, 0x3f803f80')
    if ot: a.label(f'L_{kind}_nozero')
    a.emit('s_waitcnt lgkmcnt(0)')
    RI = int(ENV('RI', '18')) if PT == 2 else -1
    if RI >= 0:
        b = Asm(); res_addr(b, S_WV, SX, 127)
        a.lines += [l.replace('v128', 'v33').replace('s_add_u32 s3, s3, s4', 's_add_u32 s42, s3, s4').replace('s4, s3, 32768', 's43, s42, 32768') for l in b.lines]
    if OH: srd(a, SO, 'ws', WS_H + OHO, 2048 * 7168 - OHO)
    else: srd(a, SO, 'ws', WS_O, 4 * MB)
    clear_flags(a, 0)
    if ENV('CTE', '1') == '0': code_touch(a, 'L_attn_c0', 'L_w2_c1', int(ENV('CTN', '320')))
    import pads
    CLQ = ENV('DX', '2') == '1' and ENV('CLP', 'e') == 'q'
    if CLQ:
        srd(a, ST, 'ws', WS_XP, 4 * MB)
        a.emit(f's_or_b32 s{ST+1}, s{ST+1}, 0x100000')
        a.emit(f's_mov_b32 s{ST+3}, 0x00800000')
        a.emit('s_and_b32 s3, s2, 3')
        a.emit(f's_and_b32 s4, s{S_CU}, 3')
        a.emit('s_lshl2_add_u32 s3, s3, s4')
        a.emit('s_bfe_u32 s4, s2, 0x10002')
        a.emit(f's_lshr_b32 s5, s{S_CU}, 2')
        a.emit('s_lshl1_add_u32 s4, s5, s4')
        a.emit('s_lshl4_add_u32 s3, s3, s4')
        a.emit(f's_lshl2_add_u32 s3, s3, s{S_WV}')
        a.emit(f's_lshl_b32 s{S_T}, s3, 12')
        for i in range(4): a.emit(f'v_mov_b32 v{116+i}, -1')
    def warm():
        a.emit(f's_cmp_lg_u32 s{S_LAYER}, 0')
        a.emit(f's_cbranch_scc1 L_{kind}_nowarm')
        a.emit('s_lshl_b32 s3, s2, 2')
        a.emit(f's_add_u32 s3, s3, s{S_WV}')
        srd(a, SX, 'xs', 0, 4 * MB); srd(a, SW, 'wqkv', 0, 6 * MB)
        a.emit('v_min_u32 v126, 31, v1')
        a.emit('v_min_u32 v127, 47, v1')
        a.emit('v_lshlrev_b32 v126, 7, v126')
        a.emit('v_lshlrev_b32 v127, 7, v127')
        a.emit('s_lshl_b32 s4, s3, 12')
        a.emit(f's_mul_i32 s5, s3, {48 * 128}')
        a.emit(f'buffer_load_dword v2, v126, s[{SX}:{SX+3}], s4 offen')
        a.emit(f'buffer_load_dword v3, v127, s[{SW}:{SW+3}], s5 offen')
        a.emit('v_mov_b32 v126, 0')
        a.emit('v_mov_b32 v127, 0')
        a.label(f'L_{kind}_nowarm')
    WARM = ENV('WARM', '0')
    if WARM == '1': warm()
    mid = []
    if ot: mid = a.lines[i0:]; del a.lines[i0:]
    def reads(s, ks, hl=True):
        o = []
        if 'noread' in DBG: return o
        for jm in range(4):
            o.append(f'ds_read_b128 v[{fx(s,jm)}:{fx(s,jm)+3}], v{VA+ks} offset:{jm*2048}')
        if hl: o.append(f'ds_read_b128 v[{fx(s,4)}:{fx(s,4)+3}], v{VA+4+ks}')
        for jn in range(6):
            for h in range(2):
                r = fw(s, jn) + 2 * h
                o.append(f'ds_read_b64_tr_b16 v[{r}:{r+1}], v{VA+2+(jn&1)} offset:{(jn>>1)*8192+ks*4096+h*512}')
        return o
    def mfma(c, x, y, cin=None):
        return f'v_mfma_f32_16x16x32_bf16 v[{c}:{c+3}], v[{x}:{x+3}], v[{y}:{y+3}], ' + (f'v[{c}:{c+3}]' if cin is None else cin)
    def mf(s):
        o = []
        if 'nomfma' in DBG: return ['s_nop 0']
        for jn, jm in mf_order(6, 5, lambda jn, jm: jm == 4 and jn & 1):
            if True:
                c = acc(jn, jm) if jm < 4 else HACC + (jn >> 1) * 4
                o.append(mfma(c, fw(s, jn), fx(s, jm)) if jn < 4 else mfma(c, fx(s, jm), fw(s, jn)))
        return o
    SA = [(240, 244), (248, 252), (120, 124)]
    def mfv(hh):
        def f(s):
            o = mf(s)
            ex = []
            for i, jm in enumerate([2 * hh, 2 * hh + 1] + ([4] if hh == 0 else [])):
                ex.append(mfma(SA[i][0], ONES, fx(s, jm)))
                ex.append(mfma(SA[i][1], fx(s, jm), fx(s, jm)))
            return o if 'nostat' in DBG else ex + o
        return f
    def select():
        if CLQ:
            for i in range(4): a.emit(f'buffer_store_dwordx4 v[116:119], off, s[{ST}:{ST+3}], s{S_T} offset:{1024*i} sc1')
        if WARM == '2': warm(); a.emit('s_nop 1')
        if not ot:
            a.emit(f's_cmp_lg_u32 s{S_LAYER}, 0')
            a.emit(f's_cbranch_scc1 L_{kind}_loop')
        if XD:
            for i in range(240, 256): a.emit(f'v_mov_b32 v{i}, 0')
        a.emit(f's_cmp_lg_u32 s{S_WN}, 0')
        a.emit(f's_cbranch_scc1 L_{kind}_loopb')
        clear_flags(a, 1, 4 if CLQ else 0)
    def post():
        a.emit('v_and_b32 v32, 3, v1')
        a.emit('v_cmp_eq_u32 s[4:5], 1, v32')
        a.emit('v_cmp_eq_u32 s[6:7], 2, v32')
        a.emit('v_cmp_eq_u32 s[8:9], 3, v32')
        a.emit('v_bfe_u32 v33, v1, 2, 2')
        a.emit('v_lshrrev_b32 v34, 4, v1')
        a.emit('v_cmp_eq_u32 s[10:11], v33, v34')
        a.emit(f's_lshl_b32 s3, s{S_WN}, 7')
        a.emit(f'v_add_u32 v35, s3, v{VS1}')
        a.emit('v_and_b32 v36, 15, v1')
        a.emit(f's_cmp_eq_u32 s{S_WV}, 0')
        a.emit('s_cselect_b32 s3, 0, 576')
        a.emit(f's_add_u32 s3, s3, {LST}')
        a.emit('v_lshl_add_u32 v36, v36, 2, s3')
        for (sm, sq) in SA:
            a.emit(f'v_cndmask_b32 v{sm+1}, v{sq}, v{sq+1}, s[4:5]')
        for (sm, sq) in SA:
            a.emit(f'v_cndmask_b32 v{sm+1}, v{sm+1}, v{sq+2}, s[6:7]')
        for (sm, sq) in SA:
            a.emit(f'v_cndmask_b32 v{sm+1}, v{sm+1}, v{sq+3}, s[8:9]')
        for (sm, sq) in SA: stats_finish(a, sm)
        a.emit('s_mov_b64 exec, s[10:11]')
        a.emit(f'ds_write2_b32 v35, v{SA[0][0]}, v{SA[0][0]+1} offset0:16 offset1:176')
        a.emit(f'ds_write2_b32 v35, v{SA[1][0]}, v{SA[1][0]+1} offset0:32 offset1:192')
        a.emit(f'ds_write2_b32 v36, v{SA[2][0]}, v{SA[2][0]+1} offset0:0 offset1:160')
        a.emit('s_mov_b64 exec, -1')
        if XD:
            res_addr(a, S_WV, SX, 32)
        a.emit('s_waitcnt lgkmcnt(0)')
        if XD:
            for i in range(4):
                a.emit(f'buffer_load_dwordx4 v[{240+4*i}:{243+4*i}], v32, s[{SX}:{SX+3}], s{3+(i>>1)} offen offset:{64*(i&1)}')
        a.emit('s_barrier')
    own = lambda s: [mfma(acc(jn, jm), *((fw(s, jn), fx(s, jm)) if jn < 4 else (fx(s, jm), fw(s, jn))), None if s else '0') for jn, jm in mf_order(6, 4)]
    hw = lambda ks, c: fw(1, 2 * c) if ks else fx(1, c)
    hal = ([f'v_mov_b32 v{fx(1,c)+i}, v{fw(0,2*c)+i}' for c in range(3) for i in range(4)],
           [f'ds_read_b128 v[{fx(1,3+ks)}:{fx(1,3+ks)+3}], v{VA+4+ks} offset:{HX - XH - STAGE}' for ks in range(2)],
           [mfma(HACC + 4 * c, *((hw(ks, c), fx(1, 3 + ks)) if c < 2 else (fx(1, 3 + ks), hw(ks, c))), None if ks else '0') for ks in range(2) for c in range(3)])
    hooks = None
    if DS:
        HK = [int(x) for x in ENV('HK', '-1,-2,-4,-5,11,13').split(',')]
        def dots(s):
            o = [f's_cmp_lg_u32 s{S_WN}, 0', f's_cbranch_scc1 L_{kind}_dot{s}']
            for hh in range(2):
                for j in range(8):
                    r = fx(s, 2 * hh) + (j >> 1) + 4 * (j & 1)
                    o += [f'v_dot2_f32_bf16 v{122+(j&1)}, v{r}, s7, v{122+(j&1)}', f'v_dot2_f32_bf16 v{124+(j&1)}, v{r}, v{r}, v{124+(j&1)}']
                o += [f'L_{kind}_dote{s}:'] if hh else [f's_branch L_{kind}_dote{s}', f'L_{kind}_dot{s}:']
            return o
        h1 = dots(1) + ['s_nop 2', 'v_permlane32_swap_b32 v122, v123', 'v_permlane32_swap_b32 v124, v125', 'v_add_f32 v122, v122, v123', 'v_add_f32 v124, v124, v125',
               'v_mov_b32 v126, 1', 's_nop 0', 'v_permlane16_swap_b32 v122, v124', 'v_add_f32 v122, v122, v124', f'buffer_store_dword v122, v120, s[{ST}:{ST+3}], 0 offen sc1']
        w0 = [f's_cmp_lg_u32 s{S_WV}, 0', f's_cbranch_scc1 L_{kind}_loop']
        pl = f'buffer_load_dword v127, v121, s[{SC}:{SC+3}], 0 offen sc1'
        b = Asm(); res_addr(b, S_WV, SX, 122); rs = [l.strip() for l in b.lines] + res_loads(240, 122, SX)
        hooks = list(zip(HK + [int(ENV('HKR', '14'))], [dots(0), h1, ['s_waitcnt vmcnt(0)'],
            w0 + [f's_lshl4_add_u32 s3, s{S_MT}, s{S_NT}', 's_mov_b64 exec, 1', f'buffer_store_byte v126, off, s[{SC}:{SC+3}], s3 sc1', 's_mov_b64 exec, -1'], w0 + [pl],
            w0 + ['s_mov_b32 s5, 0x100000', 'L_attn_chkl:', 's_waitcnt vmcnt(0)', 'v_cmp_ne_u32 vcc, 0x01010101, v127', f's_cbranch_vccz L_{kind}_loop',
                  pl, 's_sub_u32 s5, s5, 1', 's_cbranch_scc0 L_attn_chkl'], rs]))
        assert HK[:2] == [-1, -2]
        if D2: hooks = [(-1, dots(0) + pads.chain('h0') + w0 + hooks[2][1] + hooks[3][1][2:]), (-2, [x.replace('v_mov_b32 v126, 1', 's_nop 0') for x in h1] + pads.chain('h1')), hooks[-1]]
        if RI >= 0: del hooks[-1]
        if ENV('XSL'):
            xs = [int(x) for x in ENV('XSL').split(',')]
            hooks[1] = (hooks[1][0], hooks[1][1] + [f's_sleep {xs[0]}'])
            hooks[2] = (hooks[2][0], hooks[2][1] + [f's_sleep {xs[1]}'])
    assert ot or not DS
    PR = 32
    CS = 48
    CV = 64
    MS = 66
    RK = 76
    M4 = 84
    R4 = 104
    VV = [4 if XD else 240, 224]
    if PT: RK = 120; M4 = 76; R4 = 96
    sc = 32 ** -0.5 * 1.4426950408889634
    rms = [f'ds_read2_b32 v[{MS+2*b}:{MS+2*b+1}], v{VS1} offset0:{16*b} offset1:{160+16*b}' for b in range(5)]
    rrk = [f'ds_read2_b32 v[{RK+4*k+2*p}:{RK+4*k+2*p+1}], v{VKB if k else VKA} offset0:{32*p} offset1:{32*p+16}' for p in range(2) for k in range(2)]
    wh = [f'ds_write_b128 v{VXW}, v[{HACC+4*c}:{HACC+4*c+3}] offset:{2048*c}' for c in range(3)]
    wp = [f'ds_write_b128 v{VA if PT else VXW}, v[{acc(t,3)}:{acc(t,3)+3}] offset:{6144+1024*t}' for t in range(2, 6)]
    rm4 = [f'ds_read_b128 v[{r+4*b}:{r+4*b+3}], v{VS4} offset:{o+64*b}' for b in range(5) for r, o in ((M4, 0), (R4, 640))]
    rcs = [f'ds_read_b128 v[{CS+4*t}:{CS+4*t+3}], v{VCO if t&1 else VCE} offset:{1024*t}' for t in range(4)]
    rcv = [f'ds_read_b32 v{CV+t}, v{VVO if t else VVE} offset:{4096+1024*t}' for t in range(2)]
    rpr = [f'ds_read_b128 v[{PR+4*t}:{PR+4*t+3}], v{VPO if t&1 else VPE} offset:{2048+1024*t}' for t in range(4)]
    mul = [f'v_mul_f32 v{MS+2*b+3}, {f2u(sc):#x}, v{MS+2*b+3}' for b in range(4)] + [f'v_mul_f32 v{RK+4*k+b}, v{RK+4*k+b}, v{MS+2*b+3}' for b in range(4) for k in range(2)]
    tail = None
    if PT:
        assert WE < 0
        dst = lambda m: int(m.split('[')[1].split(':')[0])
        first = [HACC, HACC + 4, acc(2, 3), acc(3, 3), HACC + 8, acc(4, 3), acc(5, 3)]
        ms = sorted(mf(1), key=lambda m: first.index(dst(m)) if dst(m) in first else 9)
        wr = wh[:2] + wp[:2] + wh[2:] + wp[2:]
        XB_ = int(ENV('PTB', '16'))
        fl = {i: rms[i:i + 1] + rrk[i:i + 1] for i in range(5)}
        for i in range(7): fl[5 + i] = [wr[i]]
        fl[XB_] = ['s_waitcnt lgkmcnt(0)', 's_barrier']
        rest = rcs + rpr[:2] + rcv + rpr[2:] + mul
        for i in range(XB_ + 1, 27): fl[i] = rest[:2]; del rest[:2]
        tail = ([f'v_lshl_add_u32 v{VA}, s{S_WM}, 15, v{VXW}'], weave(ms, fl) + rest)
    if PT == 2:
        P0, W0, WS_, XB_ = [int(x) for x in ENV('PTP', '14,21,3,45').split(',')]
        m0 = sorted(mf(0), key=lambda m: first.index(dst(m)) if dst(m) in first else 9)
        ms = m0[:P0] + ms[:7] + m0[P0:] + ms[7:]
        r1 = reads(1, 1); r1 = r1[4:7] + r1[9:11] + r1[3:4] + r1[11:] + r1[:3] + r1[7:9]
        fl = {i: [r1[i]] for i in range(17)}
        fl[0] += [f's_mul_i32 s3, s{S_WM}, -32768']; fl[1] += [f'v_add_u32 v{VA}, s3, v{VXW}']
        fl[P0 - 1] = fl.get(P0 - 1, []) + [f's_waitcnt lgkmcnt({max(0, min(P0, 17) - 12)})']
        for i in range(7): fl[W0 + WS_ * i] = fl.get(W0 + WS_ * i, []) + [wr[i]]
        assert P0 >= 12 and W0 >= 17
        fl[33] = fl.get(33, []) + [f's_waitcnt lgkmcnt({sum(W0 + WS_ * i <= 33 for i in range(7))})']
        fl[XB_] = ['s_waitcnt lgkmcnt(0)', 's_barrier']
        if RI >= 0:
            fl[RI - 1] = fl.get(RI - 1, []) + [f's_cmp_lg_u32 s{S_LAYER}, 0']
            fl[RI] = fl.get(RI, []) + ['s_cbranch_scc1 L_attn_nores'] + [x.replace('s4 ', 's43 ').replace('s3 ', 's42 ') for x in res_loads(240, 127, SX)] + ['L_attn_nores:']
        rest = rcs[:2] + rms[1:2] + rcs[2:] + rms[2:] + rms[:1] + rpr + rcv + rrk
        NL = len(rest) - 5
        for i in range(XB_ + 1, 54): fl[i] = rest[:2]; del rest[:2]
        NL -= len(rest); rm4 = rest + rm4
        tail = (None, weave(ms, fl))
    big_loop(a, kind, N, S, STAGE, 6, VB, VA, reads, mf, variants=None if DS else {'a': mfv(0), 'b': mfv(1)}, select=select, post=post, mid=mid, hooks=hooks,
             ot=own if ot else None, halo=hal if ot else None, tail=tail)
    if not PT:
        for x in rms + rrk + wh: a.emit(x)
        a.emit(f's_cmp_eq_u32 s{S_WM}, 1')
        a.emit(f's_cbranch_scc1 L_{kind}_nop3')
        for x in wp: a.emit(x)
        a.label(f'L_{kind}_nop3')
        for x in rm4: a.emit(x)
        a.emit('s_waitcnt lgkmcnt(10)')
        a.emit('s_barrier')
        for x in rcs + rcv + rpr + mul: a.emit(x)
    a.emit(f's_waitcnt lgkmcnt({NL if PT == 2 else 6})')
    def qk(x, y, cs, b, d):
        m = f'v[{MS+2*b}:{MS+2*b+1}]'
        for (z, c) in ((x, cs), (y, cs + 4)):
            for h in range(2):
                a.emit(f'v_pk_fma_f32 v[{z+2*h}:{z+2*h+1}], v[{c+2*h}:{c+2*h+1}], {m}, v[{z+2*h}:{z+2*h+1}] op_sel:[0,0,0] op_sel_hi:[1,0,1] neg_lo:[0,1,0] neg_hi:[0,1,0]')
        a.emit(f'v_cvt_pk_bf16_f32 v{d}, v{x}, v{x+1}')
        a.emit(f'v_cvt_pk_bf16_f32 v{d+1}, v{x+2}, v{x+3}')
        a.emit(f'v_cvt_pk_bf16_f32 v{d+2}, v{y}, v{y+1}')
        a.emit(f'v_cvt_pk_bf16_f32 v{d+3}, v{y+2}, v{y+3}')
    Q = lambda b: acc(0, b); Kf = lambda b: acc(2, b) if b >= 0 else PR
    Sc = lambda b: acc(1, b); Sp = lambda b: acc(3, b)
    for b in range(4):
        qk(acc(0, b), acc(1, b), CS, b + 1, Q(b))
        nr = (len(rm4) + 5) // 6
        for x in rm4[2*nr*b:2*nr*b+nr] if PT else []: a.emit(x)
        qk(acc(2, b), acc(3, b), CS + 8, b + 1, Kf(b))
        if PT == 2 and b == 0:
            assert NL >= 3
            a.emit(f's_waitcnt lgkmcnt({NL - 3 + nr})')
        for x in rm4[2*nr*b+nr:2*nr*b+2*nr] if PT else []: a.emit(x)
        if b == 3:
            a.emit('s_waitcnt lgkmcnt(0)')
            qk(PR, PR + 4, CS + 8, 0, PR)
        if b >= 1:
            a.emit(mfma(Sc(b - 1), Kf(b - 1), Q(b - 1), '0'))
            if b >= 2: a.emit(mfma(Sp(b - 1), Kf(b - 2), Q(b - 1), '0'))
    a.emit(mfma(Sc(3), Kf(3), Q(3), '0'))
    a.emit(mfma(Sp(3), Kf(2), Q(3), '0'))
    a.emit(mfma(Sp(0), Kf(-1), Q(0), '0'))
    for x in mul if PT == 2 else []: a.emit(x)
    def vconv(x, t, b):
        cv = f'v[{CV}:{CV+1}]'
        for h in range(2):
            a.emit(f'v_pk_fma_f32 v[{x+2*h}:{x+2*h+1}], v[{M4+4*b+2*h}:{M4+4*b+2*h+1}], {cv}, v[{x+2*h}:{x+2*h+1}] op_sel:[0,{t},0] op_sel_hi:[1,{t},1] neg_lo:[1,0,0] neg_hi:[1,0,0]')
        for h in range(2):
            a.emit(f'v_pk_mul_f32 v[{x+2*h}:{x+2*h+1}], v[{x+2*h}:{x+2*h+1}], v[{R4+4*b+2*h}:{R4+4*b+2*h+1}]')
        for h in range(2):
            a.emit(f'v_cvt_pk_bf16_f32 v{VV[t]+2*b+h}, v{x+2*h}, v{x+2*h+1}')
    for t in range(2):
        vconv(PR + 8 + 4 * t, t, 0)
        for b in range(4): vconv(acc(4 + t, b), t, b + 1)
    T = lambda b: 32 + 4 * b
    odd = f's[{M_ODD}:{M_ODD+1}]'
    for b in (1, 2, 3, 0):
        a.emit(f'v_cndmask_b32 v{Sc(b)}, v{Sc(b)}, v{Sc(b)+1}, {odd}')
        a.emit(f'v_cndmask_b32 v{Sp(b)}, v{Sp(b)}, v{Sp(b)+1}, {odd}')
        a.emit(f'v_cndmask_b32 v{Sc(b)+2}, v{Sc(b)+2}, v{Sc(b)+3}, {odd}')
        a.emit(f'v_cndmask_b32 v{Sp(b)+2}, v{Sp(b)+2}, v{Sp(b)+3}, {odd}')
        a.emit(f'v_cndmask_b32 v{T(b)}, v{Sc(b)}, v{Sp(b)}, s[{M_UPA}:{M_UPA+1}]')
        a.emit(f'v_cndmask_b32 v{T(b)+1}, v{Sc(b)+2}, v{Sp(b)+2}, s[{M_UPB}:{M_UPB+1}]')
        a.emit(f'v_mul_f32 v{T(b)}, v{T(b)}, v{RK+b}')
        a.emit(f'v_mul_f32 v{T(b)+1}, v{T(b)+1}, v{RK+4+b}')
    a.emit(f'v_mov_b32 v48, {f2u(-1e9 * 1.4426950408889634):#x}')
    a.emit(f'v_cndmask_b32 v{T(0)}, v{T(0)}, v48, s[{M_FA}:{M_FA+1}]')
    a.emit(f'v_cndmask_b32 v{T(0)+1}, v{T(0)+1}, v48, s[{M_FB}:{M_FB+1}]')
    for b in range(4): a.emit(f'v_max_f32 v{T(b)+2}, v{T(b)}, v{T(b)+1}')
    for op in ('32', '16'):
        for b in range(4): a.emit(f'v_mov_b32 v{T(b)+3}, v{T(b)+2}')
        for b in range(4): a.emit(f'v_permlane{op}_swap_b32 v{T(b)+2}, v{T(b)+3}')
        for b in range(4): a.emit(f'v_max_f32 v{T(b)+2}, v{T(b)+2}, v{T(b)+3}')
    for b in range(4):
        a.emit(f'v_sub_f32 v{T(b)}, v{T(b)}, v{T(b)+2}')
        a.emit(f'v_sub_f32 v{T(b)+1}, v{T(b)+1}, v{T(b)+2}')
    for b in range(4):
        a.emit(f'v_exp_f32 v{T(b)}, v{T(b)}')
        a.emit(f'v_exp_f32 v{T(b)+1}, v{T(b)+1}')
    P = lambda b: acc(0, b)
    for b in range(4):
        a.emit(f'v_cvt_pk_bf16_f32 v{T(b)}, v{T(b)}, v{T(b)}')
        a.emit(f'v_cvt_pk_bf16_f32 v{T(b)+1}, v{T(b)+1}, v{T(b)+1}')
        a.emit(f'v_and_b32 v{P(b)}, v{T(b)}, v{MAP}')
        a.emit(f'v_and_b32 v{P(b)+1}, v{T(b)+1}, v{MBP}')
        a.emit(f'v_and_b32 v{P(b)+2}, v{T(b)}, v{MAC}')
        a.emit(f'v_and_b32 v{P(b)+3}, v{T(b)+1}, v{MBC}')
        if b >= 1:
            q = b - 1
            a.emit(mfma(acc(1, q), ONES, P(q), '0'))
            a.emit(mfma(acc(4, q), VV[0] + 2 * q, P(q), '0'))
            a.emit(mfma(acc(5, q), VV[1] + 2 * q, P(q), '0'))
    q = 3
    a.emit(mfma(acc(1, q), ONES, P(q), '0'))
    a.emit(mfma(acc(4, q), VV[0] + 2 * q, P(q), '0'))
    a.emit(mfma(acc(5, q), VV[1] + 2 * q, P(q), '0'))
    if ENV('ES'): stamp(a, 1)
    no = 'wo' in NS
    if no:
        a.emit(f's_cmp_eq_u32 s{S_WM}, 1')
        a.emit(f's_cbranch_scc1 L_{kind}_out1')
    for w in range(2 if no else 1):
        if w: a.label(f'L_{kind}_out1')
        for b in range(4):
            r = acc(1, b); d = 48 + 4 * b
            a.emit(f'v_rcp_f32 v{r}, v{r}')
            a.emit(f's_mov_b32 s3, {b * 16 * (7168 if OH else 2048)}')
            for t in range(2):
                x = acc(4 + t, b)
                for h in range(2):
                    a.emit(f'v_pk_mul_f32 v[{x+2*h}:{x+2*h+1}], v[{x+2*h}:{x+2*h+1}], v[{r}:{r+1}] op_sel_hi:[1,0]')
            for t in range(2):
                x = acc(4 + t, b)
                for h in range(2):
                    a.emit(f'v_cvt_pk_bf16_f32 v{d+2*(t^w)+h}, v{x+2*h}, v{x+2*h+1}')
            if not no:
                a.emit('s_nop 1')
                a.emit(f'v_permlane16_swap_b32 v{d}, v{d+2}')
                a.emit(f'v_permlane16_swap_b32 v{d+1}, v{d+3}')
            a.emit(f'buffer_store_dwordx4 v[{d}:{d+3}], v{VO}, s[{SO}:{SO+3}], s3 offen{stf(kind)}')
        if no and not w: a.emit(f's_branch L_{kind}_out2')
    if no: a.label(f'L_{kind}_out2')
    compute_end(a, kind)
    a.label(f'L_{kind}_loader')
    L = Loader(a, kind, K, lda2, ldw2, [0, 2048, 4096], 128, S, STAGE, halo=XH, rot=int(ENV('ROT_QKV', '0')))
    L.skip = DS
    L.setup()
    a.emit('s_waitcnt lgkmcnt(0)')
    srd_xs(a, SX); srd(a, SW, 'wqkv', 0, 1024 * 6144)
    import sides
    fill = []
    if ENV('DX', '2') == '1' and ENV('CLP', 'e') == 'l':
        a.emit('s_and_b32 s3, s2, 3')
        a.emit(f's_and_b32 s4, s{S_CU}, 3')
        a.emit('s_lshl2_add_u32 s3, s3, s4')
        a.emit('s_bfe_u32 s4, s2, 0x10002')
        a.emit(f's_lshr_b32 s5, s{S_CU}, 2')
        a.emit('s_lshl1_add_u32 s4, s5, s4')
        a.emit('s_lshl4_add_u32 s3, s3, s4')
        a.emit(f's_and_b32 s4, s{S_WV}, 3')
        a.emit('s_lshl2_add_u32 s3, s3, s4')
        a.emit('s_lshl_b32 s3, s3, 12')
        srd(a, SB, 'ws', WS_XP, 0 if 'fill0' in DBG else 4096)
        if 'fillfl' in DBG:
            srd(a, SB, 'ws0', WS_FL + MB, 4096)
            a.emit('s_and_b32 s3, s3, 0xfffff')
        a.emit(f's_add_u32 s{SB}, s{SB}, s3')
        a.emit(f's_addc_u32 s{SB+1}, s{SB+1}, 0')
        FW_ = int(ENV('FILLW', '2'))
        a.emit(f'v_mul_u32_u24 v29, {4 * FW_}, v1')
        for i in range(4): a.emit(f'v_mov_b32 v{24+i}, -1')
        fill = [f'buffer_store_dword{"x" + str(FW_)} v[24:{23 + FW_}], v29, s[{SB}:{SB+3}], 0 offen' + ('' if 'fillwb' in DBG else ' sc1'), f'v_add_u32 v29, {256 * FW_}, v29']
        assert sides.STV[3] == 0
    a.emit(f's_cmp_lg_u32 s{S_LAYER}, 0')
    a.emit(f's_cbranch_scc1 L_{kind}_ld1')
    post = list(sides.stouch_post(a, kind)) + fill
    SPF = [int(x) for x in ENV('SPF', '0,0,2').split(',')]
    def spf():
        hs = range(SPF[2])
        return ([f's_buffer_load_dword s84, s[{SX}:{SX+3}], s85 offset:{2048*r+64*h}' for r in range(2) for h in hs] +
                [f's_buffer_load_dword s84, s[{SW}:{SW+3}], s86 offset:{2048*p+64*h}' for p in range(3) for h in hs] +
                ['s_add_u32 s85, s85, 128', f's_add_u32 s86, s86, {64*ldw2}'])
    def spf_start():
        if not SPF[1]: return
        a.emit(f's_and_b32 s3, s{S_WV}, 3')
        a.emit(f's_lshl2_add_u32 s3, s{S_CU}, s3')
        a.emit('s_and_b32 s4, s2, 1')
        a.emit('s_bfe_u32 s5, s2, 0x20001')
        a.emit('s_lshl2_add_u32 s85, s4, s5')
        a.emit('s_lshl_b32 s85, s85, 7')
        a.emit('s_add_u32 s85, s85, s3')
        a.emit('s_lshl_b32 s85, s85, 12')
        a.emit(f's_add_u32 s85, s85, {128*SPF[0]}')
        a.emit('s_lshl_b32 s4, s4, 5')
        a.emit(f's_add_u32 s4, s4, s{S_CU}')
        a.emit(f's_add_u32 s4, s4, {64*SPF[0]}')
        a.emit(f's_mul_i32 s86, s4, {ldw2}')
        a.emit('s_and_b32 s3, s3, 3')
        a.emit('s_lshl2_add_u32 s3, s5, s3')
        a.emit('s_lshl_b32 s3, s3, 7')
        a.emit('s_add_u32 s86, s86, s3')
        for i in range(SPF[0], SPF[1]):
            for x in spf(): a.emit(x)
    if SPF[1]: post += spf()
    VPF = [int(x) for x in ENV('VPF', '0,0,1').split(',')]
    def vpf():
        k0, nk, hs = VPF
        if not nk: return 0
        a.emit(f's_and_b32 s3, s{S_WV}, 3')
        a.emit(f's_lshl2_add_u32 s3, s{S_CU}, s3')
        a.emit('s_and_b32 s4, s2, 1')
        a.emit('s_bfe_u32 s5, s2, 0x20001')
        a.emit('s_lshl2_add_u32 s85, s4, s5')
        a.emit('s_lshl_b32 s85, s85, 7')
        a.emit('s_add_u32 s85, s85, s3')
        a.emit('s_lshl_b32 s85, s85, 12')
        a.emit('s_lshl_b32 s4, s4, 7')
        a.emit('s_add_u32 s4, s4, s3')
        a.emit(f's_add_u32 s4, s4, {64*k0}')
        a.emit(f's_mul_i32 s86, s4, {ldw2}')
        a.emit('s_lshl_b32 s5, s5, 9')
        a.emit('s_add_u32 s86, s86, s5')
        a.emit('v_and_b32 v2, 15, v1')
        a.emit(f'v_min_u32 v3, {nk-1}, v2')
        a.emit('v_and_b32 v22, 16, v1')
        a.emit('v_add_lshl_u32 v22, v22, v3, 7')
        a.emit('v_min_u32 v2, 11, v2')
        a.emit('v_lshrrev_b32 v3, 2, v2')
        a.emit('v_and_b32 v2, 3, v2')
        a.emit('v_lshl_add_u32 v2, v3, 4, v2')
        a.emit('v_lshrrev_b32 v3, 4, v1')
        a.emit(f'v_min_u32 v3, {nk//4-1}, v3')
        a.emit(f'v_mul_u32_u24 v3, {256*ldw2}, v3')
        a.emit('v_lshl_add_u32 v23, v2, 7, v3')
        for h in range(hs):
            a.emit(f'buffer_load_dword v24, v23, s[{SW}:{SW+3}], s86 offen offset:{64*h}')
            a.emit(f'buffer_load_dword v25, v22, s[{SX}:{SX+3}], s85 offen offset:{128*k0+64*h}')
        return 2 * hs
    TG_ = int(ENV('TLBG', '0'))
    if TG_:
        srd(a, SO, 'ws0', 0, 256 * MB)
        a.emit(f's_and_b32 s3, s{S_WV}, 3')
        a.emit(f's_lshl2_add_u32 s3, s{S_CU}, s3')
        a.emit(f's_lshl_b32 s86, s3, {TG_}')
        tl = [f's_buffer_load_dword s84, s[{SO}:{SO+3}], s86', f's_add_u32 s86, s86, {128 << TG_}']
        if TG_ < 21: post += tl
    extra = tail_parks('wo', SP, lambda b: srd(b, SP, 'wo', 0, 2 * MB))
    sch0 = [int(c) for c in ENV('TSO0', '00000')]
    extra0 = tail_parks('wo', SP, lambda b: srd(b, SP, 'wo', 0, 2 * MB), sch0 + [sum(TSCH['wo']) - sum(sch0)])
    npk = 2 * sum(TSCH['wo']) if XD else 0
    def start():
        sides.cls_touch(a)
        if TG_:
            for x in tl: a.emit(x)
            a.emit(f's_and_b32 s3, s{S_WV}, 3')
            a.emit(f's_lshl2_add_u32 s3, s{S_CU}, s3')
            for w, sz in (('out', 4 * MB), ('wo', 2 * MB), ('w1', 7 * MB), ('b1', 4096), ('b2', 2048)):
                srd(a, SC, w, 0, sz)
                a.emit(f's_mul_i32 s4, s3, {sz // 128}')
                a.emit(f's_buffer_load_dword s84, s[{SC}:{SC+3}], s4')
        if ENV('DX', '2') != '1' or ENV('CLP', 'e') != 's': return 0
        srd(a, ST, 'ws0', WS_XP, LSTR + 4 * MB)
        a.emit('s_and_b32 s3, s2, 3')
        a.emit(f's_and_b32 s4, s{S_CU}, 3')
        a.emit('s_lshl2_add_u32 s3, s3, s4')
        a.emit('s_bfe_u32 s4, s2, 0x10002')
        a.emit(f's_lshr_b32 s5, s{S_CU}, 2')
        a.emit('s_lshl1_add_u32 s4, s5, s4')
        a.emit('s_lshl4_add_u32 s3, s3, s4')
        a.emit(f's_and_b32 s4, s{S_WV}, 3')
        a.emit('s_lshl2_add_u32 s3, s3, s4')
        a.emit('s_lshl_b32 s3, s3, 12')
        a.emit(f's_add_u32 s4, s3, {LSTR}')
        a.emit('v_lshlrev_b32 v2, 4, v1')
        for i in range(4): a.emit(f'v_mov_b32 v{32+i}, -1')
        for i in range(8): a.emit(f'buffer_store_dwordx4 v[32:35], v2, s[{ST}:{ST+3}], s{3+(i>>2)} offen offset:{1024*(i&3)} sc1')
        return 8
    final0 = None
    TL0 = int(ENV('TL0', '1' if DS else '0'))
    if DS:
        STQ0 = int(ENV('STQ0', '14'))
        assert HK[-1] < STQ0 <= 13 + TL0
        def start():
            nv = vpf()
            if sides.CE:
                assert sum(sides.CE.values()) == 8
                sides.cs_setup(a, SB, 95, 26)
                for x in sides.cs_at(-1): a.emit(x)
                nv += sides.CE.get(-1, 0)
            spf_start()
            sides.cls_touch(a)
            srd(a, ST, 'ws0', WS_ST0, 16 * 16384)
            stats4_setup(a, True)
            if D2:
                if CF == 2: a.emit('v_lshlrev_b32 v20, 2, v1')
                else: dbg_off(a, 20)
                a.emit(f's_and_b32 s{SC+1}, s{SC+1}, 0xffff')
                a.emit(f's_mov_b32 s{SC+2}, 256')
                a.emit(f's_mov_b32 s{SC+3}, 0x00020000')
            for x in pads.chain(-1): a.emit(x)
            return nv
        pl2 = f'buffer_load_dword v21, v20, s[{SC}:{SC+3}], 0 offen sc1'
        ck2 = ['s_mov_b32 s5, 0x100000', 'L_attn_dchk:', 'v_or_b32 v13, 0xfefefefe, v21', 'v_cmp_ne_u32 vcc, -1, v13', 's_cbranch_vccz L_attn_dok', 's_sub_u32 s5, s5, 1\n  ' + pl2,
               's_waitcnt vmcnt(0)', 's_cbranch_scc0 L_attn_dchk', 'L_attn_dok:'] if D2 else []
        PLS = int(ENV('PLS', '13'))
        if PLS > STQ0 - 3: ck2.insert(0, 's_waitcnt vmcnt(11)'); L.pre = {PLS: [pl2]}; assert PLS == 13
        extra0 = lambda i: (ck2 + stats4_loads(32, True) if i == STQ0 else [pl2] if D2 and i == PLS < 13 else []) + sides.cs_at(i) + sides.cs_acc(i) + pads.chain(i)
        def chk0():
            a.emit('v_cmp_u_f32 vcc, v32, v33')
            a.emit('v_cmp_u_f32 s[4:5], v48, v49')
            a.emit('s_or_b64 s[4:5], vcc, s[4:5]')
            a.emit('s_cbranch_scc0 L_attn_sok')
            a.emit(f's_sub_u32 s{S_CNT}, s{S_CNT}, 1')
            a.emit('s_cbranch_scc1 L_attn_sok')
            for x in stats4_loads(32, True): a.emit(x + (' sc1' if x.startswith('buf') else ''))
            a.emit('s_waitcnt vmcnt(0)')
            a.emit('s_branch L_attn_schk')
            a.label('L_attn_sok')
        def final0():
            a.emit(f's_mov_b32 s{S_CNT}, 0x4000')
            a.emit(f"s_waitcnt vmcnt({side(Asm(), 0, 'issue') + sum(n for e, n in sides.CE.items() if e >= STQ0)})")
            if CF and ENV('CFP', 'b') == 'a': a.emit(sides.CS_ST)
            a.label('L_attn_schk')
            stats4_store(a, 32, LST, True, chk0 if D2 else None)
            if CF and 15 in sides.CFS:
                for x in sides.cs_acc(15, True): a.emit(x)
                sides.cs_out(a, 100)
            if CF and ENV('CFP', 'b') == 'b': a.emit(sides.CS_ST)
            a.emit('s_waitcnt lgkmcnt(0)')
    if ENV('PDL', '1,800') != '0': L.pad = tuple(int(x) for x in ENV('PDL', '1,800').split(','))
    L.run('0', tail_issue=lambda: side(a, 0, 'issue'), ntail_vm=side(Asm(), 0, 'issue'), post=post, start=start, extra=extra0, tail_late=TL0, final=final0, exfirst=True)
    if CF and ENV('CFP', 'b') == 'c': a.emit(sides.CS_ST)
    for i in (16,) if DS else (16, 17):
        if XD:
            for x in extra0(i): a.emit(x)
        if WE < 0 and PT != 2: a.emit('s_barrier')
    if XD:
        for x in extra0(18): a.emit(x)
    if ONE:
        a.emit(f's_branch L_{kind}_ldend')
    else:
        side(a, 0, 'finish')
        a.emit('s_endpgm')
    L.pre = {}; L.pad = None
    a.label(f'L_{kind}_ld1')
    if ',' in L.kord():
        L.ktable(int(L.kord().split(',')[1]))
        L.ot = int(ot); L.hx = HX - XH
        for x in ([] if ot else L.knext()): a.emit(x)
    srd(a, ST, 'ws0', WS_ST2, 16 * 16384)
    n1 = side(Asm(), 1, 'issue')
    def tail1():
        stats_loads(a, 32, True)
        side(a, 1, 'issue')
    def final1():
        a.emit(f's_waitcnt vmcnt({n1 + npk})')
        stats_reduce_store(a, 32, LST)
        a.emit('s_waitcnt lgkmcnt(0)')
    if T4:
        stats4_setup(a, True)
        TL1 = int(ENV('TL1', '0'))
        def final4():
            a.emit(f"s_waitcnt vmcnt({n1 if int(ENV('STQ', '14')) < 13 + TL1 < 15 else 0})")
            stats4_store(a, 32, LST, True, nan_chk(a, 'L_attn_t', True) if SF else None)
            a.emit('s_waitcnt lgkmcnt(0)')
        if ZD:
            srd(a, SC, 'ws0', WS_FL, FLS)
            a.emit('v_and_b32 v30, 3, v1')
            a.emit('v_lshlrev_b32 v30, 6, v30')
            a.emit(f's_mov_b32 s{S_CNT}, 0x100000')
        def zbar():
            xpoll(a, 'L_attn_x', SC, S_Q, 30, 12)
            a.emit('s_barrier')
        def pref1():
            if ZD == 'b': zbar()
            a.emit('s_waitcnt vmcnt(0)')
        if ZD == 'a': zbar()
        L.run('1', tail_issue=lambda: side(a, 1, 'issue'), ntail_vm=n1, tail_late=TL1, final=final4, extra=lambda i: stats4_loads(32, True) if i == int(ENV('STQ', '14')) else [],
              post=fill, dep=lambda pf: dep_wait(a, kind, halo=True, postf=pf, pref=pref1 if ot else None, preg=(lambda: a.emit('s_waitcnt vmcnt(6)')) if WG else None))
    else: L.run('1', tail_issue=tail1, ntail_vm=16 + n1, final=final1, extra=extra, post=fill, dep=(lambda pf: dep_wait(a, kind, halo=True, postf=pf)) if MEGA else None)
    if WE < 0 and PT != 2: a.emit('s_barrier')
    if not MEGA: side(a, 1, 'finish')
    a.label(f'L_{kind}_ldend')
    loader_end(a, kind, check=False)
    a.label(end)
    a.emit('s_endpgm')
    loader_first(a, kind)
    a(KD.format(name=f'{kind}l0_kernel'))
    if not MEGA:
        stub(a, f'{kind}l1_kernel', body, 1, tsidx + 4, False)
        a(KD.format(name=f'{kind}l1_kernel'))
    a.label(f'L_{kind}_c1')
    return LST + 1280
```

```python
from common import *
LM_WO = int(ENV('LM_WO', '2')); LM_W1 = int(ENV('LM_W1', '3')); LM_W2 = int(ENV('LM_W2', '2')); LM_QKV = int(ENV('LM_QKV', '3'))
PFW2 = int(ENV('PFW2', '0'))
PV = 96

def fin(a):
    a.emit('s_waitcnt vmcnt(0)')

def pf_wo(a):
    L = 1 << (5 - LM_WO)
    sh = 5 - LM_WO
    return pf_weights(a, SP, 'wo', 2 * MB, 2048, 32, sh, L, LM_WO, 128, max(1, (8 << sh) // 64), PV, pair=SPX)

PF1 = int(ENV('PF1', '0'))
def pf_w1(a, sd=SP):
    if not PF1: return 0
    lm = 2 if 'w1' in OT else LM_W1
    u = 1 << (5 - lm)
    sh = 7 - lm
    srd(a, sd, 'w1', 0, 1024 * 7168)
    a.emit(f's_and_b32 s3, s{S_WV}, 3')
    a.emit(f's_lshl2_add_u32 s3, s{S_CU}, s3')
    a.emit(f's_mul_i32 s3, s3, {64 >> sh}')
    a.emit(f"s_add_u32 s3, s3, {1024 - int(ENV('PF1B', '64'))}")
    a.emit(f'v_lshrrev_b32 v2, {sh}, v1')
    a.emit('v_add_u32 v12, s3, v2')
    a.emit(f'v_and_b32 v3, {4 * u - 1}, v1')
    a.emit(f'v_min_u32 v3, {7 * u // 2 - 1}, v3')
    a.emit('s_and_b32 s3, s2, 7')
    a.emit(f's_lshr_b32 s3, s3, {4 - lm}')
    a.emit(f's_mul_i32 s4, s3, {-(u // 2)}')
    a.emit(f's_add_u32 s4, s4, {16 - u}')
    a.emit(f's_mul_i32 s5, s3, {u}')
    a.emit(f's_add_u32 s5, s5, {24 - 3 * u // 2}')
    a.emit(f's_mul_i32 s3, s3, {u * 128}')
    a.emit(f'v_cmp_le_u32 vcc, {u}, v3')
    a.emit('v_mov_b32 v2, s4')
    a.emit('v_mov_b32 v13, s5')
    a.emit('v_cndmask_b32 v2, 0, v2, vcc')
    a.emit(f'v_cmp_le_u32 vcc, {3 * u // 2}, v3')
    a.emit('s_movk_i32 s4, 7168')
    a.emit('s_nop 0')
    a.emit('v_cndmask_b32 v2, v2, v13, vcc')
    a.emit('v_add_lshl_u32 v3, v3, v2, 7')
    for i in range(PF1):
        if i: a.emit(f'v_add_u32 v12, {128 * (64 >> sh)}, v12')
        a.emit('v_and_b32 v2, 1023, v12')
        a.emit('v_mad_u32_u24 v2, v2, s4, v3')
        a.emit(f'buffer_load_dword v{PV+4+i}, v2, s[{sd}:{sd+3}], s3 offen')
    return PF1

def touch(a, which, size, vd, l0only=True):
    if 'nopf' in DBG: return 0
    per = size // 128 // 1024
    assert per <= 64
    srd(a, SP, which, 0, size)
    a.emit(f's_and_b32 s3, s{S_WV}, 3')
    a.emit('s_lshl_b32 s4, s2, 2')
    a.emit('s_add_u32 s3, s3, s4')
    a.emit(f's_mul_i32 s3, s3, {per * 128}')
    a.emit(f'v_min_u32 v2, {per - 1}, v1')
    a.emit('v_lshlrev_b32 v2, 7, v2')
    if l0only:
        a.emit(f's_sub_u32 s4, s{S_LAYER}, 1')
        a.emit('v_and_b32 v2, s4, v2')
    a.emit(f'buffer_load_dword v{vd}, v2, s[{SP}:{SP+3}], s3 offen')
    return 1

def fill(a):
    if ENV('DX', '2') != '1' or ENV('CLP', 'e') != 't': return 0
    srd(a, SB, 'ws', WS_XP, 4 * MB)
    a.emit('s_and_b32 s3, s2, 3')
    a.emit(f's_and_b32 s4, s{S_CU}, 3')
    a.emit('s_lshl2_add_u32 s3, s3, s4')
    a.emit('s_bfe_u32 s4, s2, 0x10002')
    a.emit(f's_lshr_b32 s5, s{S_CU}, 2')
    a.emit('s_lshl1_add_u32 s4, s5, s4')
    a.emit('s_lshl4_add_u32 s3, s3, s4')
    a.emit(f's_and_b32 s4, s{S_WV}, 3')
    a.emit('s_lshl2_add_u32 s3, s3, s4')
    a.emit('s_lshl_b32 s3, s3, 12')
    a.emit('v_lshlrev_b32 v2, 4, v1')
    for i in range(4): a.emit(f'v_mov_b32 v{24+i}, -1')
    for i in range(4): a.emit(f'buffer_store_dwordx4 v[24:27], v2, s[{SB}:{SB+3}], s3 offen offset:{1024*i} sc1')
    return 4

CE = dict((int(x.split(':')[0]), int(x.split(':')[1])) for x in ENV('CE', '0:2,1:2,2:2,3:2').split(',') if x)
def cs_setup(a, sd, so, vo):
    srd(a, sd, 'w1', 0, 0 if 'nocs' in DBG else 1024 * 7168)
    a.emit('s_min_u32 s3, s2, 223')
    a.emit('s_mul_i32 s4, s3, 4682')
    a.emit('s_lshr_b32 s4, s4, 16')
    a.emit('s_mul_i32 s5, s4, 14')
    a.emit('s_sub_u32 s3, s3, s5')
    a.emit('s_lshl_b32 s3, s3, 2')
    a.emit(f's_and_b32 s5, s{S_WV}, 3')
    a.emit('s_add_u32 s3, s3, s5')
    a.emit(f's_mul_i32 s5, s4, {64 * 7168}')
    a.emit('s_lshl_b32 s8, s3, 7')
    a.emit(f's_add_u32 s{so}, s5, s8')
    a.emit('s_lshl_b32 s9, s4, 14')
    a.emit('s_lshl_b32 s8, s3, 8')
    a.emit('s_add_u32 s94, s9, s8')
    a.emit('v_lshrrev_b32 v2, 3, v1')
    a.emit('v_mul_u32_u24 v2, 7168, v2')
    a.emit('v_and_b32 v3, 7, v1')
    a.emit(f'v_lshl_add_u32 v{vo}, v3, 4, v2')
def cs_loads(sd, so, vo, js):
    o = []
    for j in js:
        o.append(f'buffer_load_dwordx4 v[{64+4*j}:{67+4*j}], v{vo}, s[{sd}:{sd+3}], s{so} offen')
        if j < 7: o.append(f's_add_u32 s{so}, s{so}, {8 * 7168}')
    return o
def cs_at(i):
    j0 = sum(n for e, n in CE.items() if e < i)
    return cs_loads(SB, 95, 26, range(j0, j0 + CE.get(i, 0)))

CFS = [int(x) for x in ENV('CFS', '14,14,14,14,15,15,15,15').split(',')]
def cs_acc(i, fin=False):
    if not CF or i not in CFS or (i == 15 and not fin): return []
    o = ['s_mov_b32 s5, 0xffff0000']; C8 = CFS[:8] if len(CFS) >= 8 else [x for x in CFS for _ in range(8 // len(CFS))]
    for j in [j for j in range(8) if C8[j] == i]:
        for k in range(4):
            x = 64 + 4 * j + k; d = 100 + 2 * k
            if j: o += [f'v_lshlrev_b32 v108, 16, v{x}', f'v_and_b32 v{x}, s5, v{x}', f'v_add_f32 v{d}, v{d}, v108', f'v_add_f32 v{d+1}, v{d+1}, v{x}']
            else: o += [f'v_lshlrev_b32 v{d}, 16, v{x}', f'v_and_b32 v{d+1}, s5, v{x}']
    return o
def cs_out(a, r):
    srd(a, SB, 'ws0', WS_CS, 16 * 16384)
    for i in range(4): a.emit(f'v_permlane32_swap_b32 v{r+i}, v{r+4+i}')
    for i in range(4): a.emit(f'v_add_f32 v{r+i}, v{r+i}, v{r+4+i}')
    a.emit('v_and_b32 v2, 7, v1')
    a.emit('v_lshlrev_b32 v2, 5, v2')
    for i in range(2): a.emit(f'v_permlane16_swap_b32 v{r+i}, v{r+2+i}')
    for i in range(2): a.emit(f'v_add_f32 v{r+i}, v{r+i}, v{r+2+i}')
    a.emit('v_lshrrev_b32 v3, 4, v1')
    a.emit(f'v_lshl_add_u32 v{r+2}, v3, 3, v2')
    for i in range(2): a.emit(f'v_add_f32_dpp v{r+i}, v{r+i}, v{r+i} row_ror:8 row_mask:0xf bank_mask:0xf')
CS_ST = f'buffer_store_dwordx2 v[100:101], v102, s[{SB}:{SB+3}], s94 offen sc1'

def qkv(a, layer, phase, npre=0):
    if phase == 'issue':
        n = 0
        if layer == 0:
            if not CE:
                cs_setup(a, SC, 5, 2)
                for x in cs_loads(SC, 5, 2, range(8)): a.emit(x)
                n += 8
            from gemmw2 import zero_flags
            if not ONE: n += zero_flags(a)
            if ENV('TW2') == 'qkv': n += touch(a, 'w2', 3584 * 2048, PV + 2, False)
        if ENV('CLO', '0') == '1': n += fill(a)
        if ENV('PWO', 'v') == 'v': n += pf_wo(a)
        if str(layer) in ENV('PF1L', '01'): n += pf_w1(a)
        if ENV('CLO', '0') == '0': n += fill(a)
        if CF and layer == 0:
            if 15 not in CFS: cs_out(a, 100)
            if GM and CF == 2: l2_mode(a, 21)
        return n
    if layer == 0:
        a.emit(f's_waitcnt vmcnt({npre})')
        a.emit('s_mov_b32 s7, 0xffff0000')
        for i in range(4):
            a.emit(f'v_lshlrev_b32 v{32+2*i}, 16, v{64+i}')
            a.emit(f'v_and_b32 v{33+2*i}, s7, v{64+i}')
        for j in range(1, 8):
            for i in range(4):
                a.emit(f'v_lshlrev_b32 v40, 16, v{64+4*j+i}')
                a.emit(f'v_and_b32 v41, s7, v{64+4*j+i}')
                a.emit(f'v_pk_add_f32 v[{32+2*i}:{33+2*i}], v[{32+2*i}:{33+2*i}], v[40:41]')
        srd(a, SB, 'ws0', WS_CS, 16 * 16384)
        for i in range(4): a.emit(f'v_permlane32_swap_b32 v{32+i}, v{36+i}')
        for i in range(4): a.emit(f'v_add_f32 v{32+i}, v{32+i}, v{36+i}')
        a.emit('v_and_b32 v2, 7, v1')
        a.emit('v_lshlrev_b32 v2, 5, v2')
        for i in range(2): a.emit(f'v_permlane16_swap_b32 v{32+i}, v{34+i}')
        for i in range(2): a.emit(f'v_add_f32 v{32+i}, v{32+i}, v{34+i}')
        a.emit('v_lshrrev_b32 v3, 4, v1')
        a.emit('v_lshl_add_u32 v2, v3, 3, v2')
        for i in range(2): a.emit(f'v_add_f32_dpp v{32+i}, v{32+i}, v{32+i} row_ror:8 row_mask:0xf bank_mask:0xf')
        a.emit(f'buffer_store_dwordx2 v[32:33], v2, s[{SB}:{SB+3}], s94 offen sc1')
        if ONE and not SPX: a.emit('s_waitcnt vmcnt(0)')
    else:
        fin(a)

def wo(a, phase):
    if phase == 'issue':
        return touch(a, 'w2', 3584 * 2048, PV) if ENV('TW2') == 'wo' else 0
    fin(a)

SL = int(ENV('SL', '64'))
def stouch(a, which, size, sd, sreg, first, lps, pre=0, per=None):
    if lps == 0: return []
    srd(a, sd, which, 0, size)
    a.emit(f's_cmp_eq_u32 s{S_LAYER}, 0')
    a.emit(f's_cselect_b32 s{sd+2}, s{sd+2}, 0')
    a.emit(f's_and_b32 s3, s{S_WV}, 3')
    a.emit('s_lshl_b32 s4, s2, 2')
    a.emit('s_add_u32 s3, s3, s4')
    a.emit(f's_mul_i32 s{sreg}, s3, {per * SL // 64 if per else size // 1024}')
    if per:
        a.emit(f's_add_u32 s{sreg}, s{sreg}, {first * SL * 1024}')
        first = 0
    for i in range(pre): a.emit(f's_buffer_load_dword s84, s[{sd}:{sd+3}], s{sreg} offset:{SL*(first+i)}')
    return [f's_buffer_load_dword s84, s[{sd}:{sd+3}], s{sreg} offset:{SL*(first+pre+i)}' for i in range(lps)] + [f's_add_u32 s{sreg}, s{sreg}, {SL*lps}']

STV = [int(x) for x in ENV('STV', '4,0,4,0').split(',')]
STO = [int(x) for x in ENV('STO', '0,0,0,0').split(',')]
def stouch_post(a, kind):
    if ENV('TW2', 's') != 's': return ()
    if kind == 'attn':
        n1 = int(ENV('STW1', '0'))
        return stouch(a, 'w1', 1024 * 7168, SB, 86, 0, n1, per=14 * 64 * n1) + stouch(a, 'w2', 3584 * 2048, SR, S_T, 0, STV[0], per=14 * 64 * STV[0]) + stouch(a, 'wo', 2 * MB, SB, 86, 0, STV[3], pre=max(0, 32 - 14 * STV[3]))
    if kind == 'wo': return stouch(a, 'w2', 3584 * 2048, SP, S_T, 14 * STV[0], STV[1])
    if kind == 'w1': return stouch(a, 'w2', 3584 * 2048, SP, S_T, 14 * STV[0] + sum(STO), STV[2], per=14 * 64 * STV[2], pre=STV[2] if 'w1' in OT else 0)
    if kind == 'w2': return cls_w2(a)
    return ()

def cls_w2(a):
    P = int(ENV('CW2', '8'))
    if P == 0: return ()
    a.emit(f's_and_b32 s3, s{S_WV}, 3')
    a.emit(f's_lshl_b32 s4, s{S_CU}, 2')
    a.emit('s_add_u32 s3, s3, s4')
    a.emit('s_lshl_b32 s4, s3, 6')
    a.emit('s_and_b32 s4, s4, 64')
    a.emit('s_lshr_b32 s3, s3, 1')
    a.emit(f's_lshl_b32 s{S_T}, s3, 11')
    a.emit(f's_add_u32 s{S_T}, s{S_T}, s4')
    a.emit(f's_sub_u32 s4, 384, s{SW}')
    a.emit('s_and_b32 s4, s4, 0x380')
    a.emit(f's_add_u32 s{S_T}, s{S_T}, s4')
    a.emit(f's_lshl_b32 s4, s{S_NT}, 7')
    a.emit('s_and_b32 s4, s4, 1024')
    a.emit(f's_add_u32 s{S_T}, s{S_T}, s4')
    a.emit(f's_add_u32 s{S_T}, s{S_T}, {(30 if VW else 16 * max(1, PFW2) if XD else 4) * 131072}')
    o = [f's_buffer_load_dword s84, s[{SW}:{SW+3}], s{S_T}', f's_add_u32 s{S_T}, s{S_T}, 131072']
    if VW:
        for x in o * (P // 2): a.emit(x)
        return o * 2
    for i in range(P + 1):
        for x in o: a.emit(x)
    return o

def w1(a, phase):
    if phase == 'late' or (phase == 'issue' and ENV('PFL', '2') == '0'):
        NI = PFW2
        if phase == 'late' and ENV('PFL', '2') == '0': return
        if XD and NI: return pf_weights(a, SR, 'w2', 3584 * 2048, 2048, 32 * NI, 3, 8, 2, 128, NI, PV)
        return 0
    if phase == 'issue': return 0
    if not XD: fin(a)

def w2(a, phase):
    return 0

def cls_touch(a):
    m = ENV('CLS', 'w')
    if m == '0': return
    a.emit(f's_and_b32 s3, s{S_WV}, 3')
    a.emit('s_lshl_b32 s4, s2, 2')
    a.emit('s_add_u32 s3, s3, s4')
    a.emit(f's_sub_u32 s4, 384, s{SW}')
    a.emit('s_and_b32 s4, s4, 0x380')
    a.emit('s_mul_i32 s5, s3, 6144')
    a.emit('s_add_u32 s5, s5, s4')
    for j in range(6):
        for h in range(2): a.emit(f's_buffer_load_dword s84, s[{SW}:{SW+3}], s5 offset:{1024*j+64*h}')
    if m == 'wx':
        a.emit(f's_sub_u32 s4, 384, s{SX}')
        a.emit('s_and_b32 s4, s4, 0x380')
        a.emit('s_lshl_b32 s5, s3, 12')
        a.emit('s_add_u32 s5, s5, s4')
        for j in range(4):
            for h in range(2): a.emit(f's_buffer_load_dword s84, s[{SX}:{SX+3}], s5 offset:{1024*j+64*h}')
```

```python
from common import *

def ktab(a, vt, sh, P1, P2, tb):
    a.emit('v_and_b32 v2, 3, v1')
    a.emit('v_lshlrev_b32 v2, 3, v2')
    a.emit(f'v_bfe_i32 v{vt}, s{tb}, v2, 8')
    a.emit(f's_and_b32 s3, s{S_MT}, 3')
    a.emit(f's_mul_i32 s4, s3, {P2 // 4}')
    a.emit(f'v_add3_u32 v3, v{vt}, v1, s4')
    if P1 & (P2 - 1): a.emit(f'v_subrev_u32 v3, {P1}, v3')
    a.emit(f'v_and_b32 v3, {P2 - 1}, v3')
    if P1:
        MR = int(ENV('MR', '4'))
        if NV: a.emit(f'v_cmp_gt_u32 vcc, {NV}, v1')
        a.emit(f's_mul_i32 s3, s3, {MR // 4}')
        if NV:
            a.emit(f's_and_b32 s4, s{S_NT}, 1')
            a.emit(f'v_cndmask_b32_e64 v{vt+1}, {P1 - NV}, {NV}, vcc')
            a.emit(f'v_cndmask_b32_e64 v2, {P1 - 2 * NV}, {NV}, vcc')
            a.emit(f'v_add3_u32 v{vt}, v{vt}, v1, v2')
            for _ in range(2):
                a.emit(f'v_sub_u32 v2, v{vt}, v{vt+1}')
                a.emit(f'v_min_u32 v{vt}, v{vt}, v2')
            a.emit(f'v_cndmask_b32_e64 v2, {NV}, 0, vcc')
            a.emit(f'v_add_u32 v{vt}, v{vt}, v2')
        else:
            a.emit(f'v_add3_u32 v{vt}, v{vt}, v1, {P1}')
            a.emit(f's_bitcmp1_b32 s{S_NT}, 0')
            a.emit(f's_cselect_b32 s4, {P1}, 0')
            for _ in range(2):
                a.emit(f'v_subrev_u32 v2, {P1}, v{vt}')
                a.emit(f'v_min_u32 v{vt}, v{vt}, v2')
        if MR:
            a.emit(f'v_cmp_gt_u32 vcc, {MR}, v{vt}')
            a.emit(f'v_add_u32 v2, s3, v{vt}')
            a.emit(f'v_subrev_u32 v{vt+1}, {MR}, v2')
            a.emit(f'v_min_u32 v2, v{vt+1}, v2')
            a.emit(f'v_cndmask_b32 v{vt}, v{vt}, v2, vcc')
        a.emit(f'v_cmp_gt_u32 vcc, {P1}, v1')
        a.emit(f'v_lshl_add_u32 v{vt}, v{vt}, 1, s4' if NV else f'v_add_u32 v{vt}, s4, v{vt}')
        a.emit(f'v_add_u32 v3, {2 * P1}, v3')
        a.emit(f'v_cndmask_b32 v3, v3, v{vt}, vcc')
    a.emit(f'v_lshlrev_b32 v{vt}, {sh}, v3')

def ktab_ot(a, vt, sh, tb):
    KS = int(ENV('KS2', '2'))
    a.emit(f's_add_u32 s3, s{S_MT}, s{S_HD}')
    a.emit('s_and_b32 s3, s3, 3')
    for g in range(4):
        o = list(range(17))
        for t in range(KS + g, 14, 4): o[t:t + 3] = [t + 2, t, t + 1]
        assert o[0] == 0 and o[16] == 16
        v = sum(((t - o[t]) & 3) << (2 * t) for t in range(16))
        if g: a.emit(f's_cmp_eq_u32 s3, {g}')
        a.emit(f's_cselect_b32 s4, {v:#x}, s4' if g else f's_mov_b32 s4, {v:#x}')
    P1 = int(ENV('P1', '23')); P2 = 56 - 2 * P1
    a.emit('v_subrev_u32 v2, 3, v1')
    if P1 > 20: a.emit('v_min_u32 v2, 16, v2')
    a.emit('v_lshlrev_b32 v3, 1, v2')
    a.emit(f'v_bfe_i32 v{vt}, s4, v3, 2')
    a.emit(f'v_sub_u32 v{vt}, v1, v{vt}')
    a.emit(f'v_subrev_u32 v{vt}, {7 if P1 > 20 else 6}, v{vt}')
    if EF:
        a.emit(f'v_subrev_u32 v3, 7, v{vt}')
        a.emit(f'v_min_u32 v3, v3, v{vt}')
        a.emit(f'v_cmp_eq_u32 vcc, s{S_HD}, v3')
        a.emit(f's_and_b32 s3, s{S_NT}, 1')
        a.emit(f'v_cmp_lt_i32 s[4:5], 6, v{vt}')
        a.emit(f'v_cndmask_b32_e64 v3, v3, 7, vcc')
        a.emit('s_nop 0')
        a.emit('v_addc_co_u32 v2, vcc, v3, v3, s[4:5]')
    else:
        a.emit(f'v_ashrrev_i32 v3, 1, v{vt}')
        a.emit(f'v_cmp_eq_u32 vcc, s{S_HD}, v3')
        a.emit(f's_and_b32 s3, s{S_NT}, 1')
        a.emit(f'v_or_b32 v2, 14, v{vt}')
        a.emit(f'v_cndmask_b32 v2, v{vt}, v2, vcc')
    a.emit(f'v_cmp_gt_i32 vcc, 0, v{vt}')
    a.emit(f's_lshl2_add_u32 s4, s3, {20 if P1 > 20 else 19}')
    a.emit(f'v_add_u32 v{vt}, s4, v{vt}')
    a.emit('s_lshl4_add_u32 s4, s3, 24')
    a.emit('v_add_u32 v2, s4, v2')
    a.emit(f'v_cndmask_b32 v{vt}, v2, v{vt}, vcc')
    if P1 > 20:
        a.emit(f's_and_b32 s5, s{S_MT}, 3')
        a.emit(f"s_mul_i32 s5, s5, {ENV('RCM', '3')}")
        a.emit(f's_sub_u32 s5, s5, {P1}')
        a.emit('v_add_u32 v3, s5, v1')
        for _ in range(2):
            a.emit(f'v_subrev_u32 v2, {P2}, v3')
            a.emit('v_min_u32 v3, v3, v2')
        a.emit(f'v_cmp_gt_u32 vcc, {P1}, v1')
        a.emit(f's_sub_u32 s5, s3, {2 * P1}')
        a.emit('v_lshl_add_u32 v2, v1, 1, s5')
        a.emit('v_cndmask_b32 v3, v3, v2, vcc')
        a.emit(f's_add_u32 s5, s{S_HD}, {P1 - 20}')
        a.emit('v_ashrrev_i32 v2, 1, v3')
        a.emit('v_add_u32 v2, s5, v2')
        a.emit('v_and_b32 v2, 7, v2')
        a.emit('v_and_b32 v3, 1, v3')
        a.emit('v_cmp_gt_u32 vcc, 21, v1')
        a.emit('v_lshl_add_u32 v3, v3, 3, v2')
        a.emit(f's_lshl1_add_u32 s4, s{S_HD}, s4')
        a.emit(f's_lshl3_add_u32 s3, s3, s{S_HD}')
        a.emit(f'v_cndmask_b32 v3, v3, v{vt}, vcc')
        a.emit('v_writelane_b32 v3, s4, 0')
        a.emit('s_add_u32 s4, s4, 1')
        a.emit('v_writelane_b32 v3, s3, 2')
        a.emit('v_writelane_b32 v3, s4, 1')
        a.emit(f'v_lshlrev_b32 v{vt}, {sh}, v3')
        return
    a.emit('v_and_b32 v2, 3, v1')
    a.emit('v_lshlrev_b32 v2, 3, v2')
    a.emit(f'v_bfe_i32 v3, s{tb}, v2, 8')
    a.emit(f's_lshl2_add_u32 s5, s{S_MT}, 12')
    a.emit('v_add3_u32 v3, v3, v1, s5')
    a.emit('v_and_b32 v2, 7, v3')
    a.emit(f'v_cmp_eq_u32 vcc, s{S_HD}, v2')
    a.emit('v_bfe_u32 v2, v3, 3, 1')
    a.emit('v_lshl_add_u32 v2, v2, 2, 19')
    a.emit('v_and_b32 v3, 15, v3')
    a.emit('v_cndmask_b32 v3, v3, v2, vcc')
    a.emit('v_cmp_gt_u32 vcc, 20, v1')
    a.emit(f's_lshl1_add_u32 s4, s{S_HD}, s4')
    a.emit(f's_lshl3_add_u32 s3, s3, s{S_HD}')
    a.emit(f'v_cndmask_b32 v3, v3, v{vt}, vcc')
    a.emit('v_writelane_b32 v3, s4, 0')
    a.emit('s_add_u32 s4, s4, 1')
    a.emit('v_writelane_b32 v3, s3, 2')
    a.emit('v_writelane_b32 v3, s4, 1')
    a.emit(f'v_lshlrev_b32 v{vt}, {sh}, v3')

EVX, EVT, EVB = 24, 30, 27; EBIA = [4, 10, 124, 126]; ERING = [128, 144, 224, 64, 80, 240]
def w2_pre(a):
    P1 = int(ENV('P1', '23'))
    tile_map(a, 2, None, pair=True)
    rot_table(a, S_TB, S_MT, S_HD, 'w2')
    ktab(a, EVT, 11, P1, 56 - 2 * P1, S_TB)
    a.emit(f's_lshl_b32 s8, s{S_MT}, 7')
    a.emit(f's_lshl_b32 s9, s{S_WV}, 5')
    a.emit('s_add_u32 s8, s8, s9')
    a.emit('s_mul_i32 s9, s8, 7168')
    a.emit(f'v_lshl_add_u32 v{EVX}, v1, 4, s9')
    a.emit(f'v_add_u32 v{EVX+1}, {16*7168}, v{EVX}')
    a.emit('v_lshrrev_b32 v2, 4, v1')
    a.emit(f's_lshl_b32 s10, s{S_NT}, 7')
    a.emit(f'v_lshl_add_u32 v{EVB}, v2, 3, s10')

def w2_early(a):
    NG = int(ENV('NG2', '3'))
    for x in range(NG): a.emit(f'v_readlane_b32 s{SR+x}, v{EVT}, {x}')
    srd(a, SB, 'b2', 0, 2048)
    srd(a, SX, 'ws', WS_H, 2048 * 7168)
    for jn in range(4):
        a.emit(f'buffer_load_dwordx2 v[{EBIA[jn]}:{EBIA[jn]+1}], v{EVB}, s[{SB}:{SB+3}], 0 offen offset:{jn*32}')
    for x in range(NG):
        for ks in range(2):
            for jm in range(2):
                r = ERING[x] + (ks * 2 + jm) * 4
                a.emit(f'buffer_load_dwordx4 v[{r}:{r+3}], v{EVX+jm}, s[{SX}:{SX+3}], s{SR+x} offen offset:{ks*1024}')

def gen_gemm64y(a, kind, tsidx, side):
    K = 1024 if kind == 'wo' else 3584
    lda2 = K * 2; ldw2 = 2048
    N = K // 64
    P1 = int(ENV('P1', '23')) if kind == 'w2' else 0
    P2 = N - 2 * P1
    B16 = ENV('XB16', '1') == '1'
    NXC = 4 if B16 else 8; CH = NXC * 1024
    G0, GW = (131072, 28672) if kind == 'wo' else (0, 0)
    def slot(t):
        if kind == 'wo' and 'w1' in OT: return 28672 + 8192 * t + (4096 if t >= 12 else 0)
        g = G0 + (t >> 2) * 32768
        if g >= 163840: g = GW + (g - 163840) % (163840 - GW)
        return g + (t & 3) * 8192
    XB = 131072
    HR = int(ENV('HR', '6')) if P1 else 0
    sched = [(t >> 1, t & 1) for t in range(2 * (P1 - HR))] + [(x, u) for u in (0, 1) for x in range(P1 - HR, P1)] + [(x, 1) for x in range(P1, P1 + P2)]
    TU = 2 * P1 - max(HR, 1)
    NPRE = int(ENV('NPREO', '16')) if kind == 'wo' else int(ENV('NPRE', '20'))
    PSTEP = 64 if kind == 'w2' else 1024
    body = f'L_{kind}_body'; end = f'L_{kind}_end'
    VXO, VWB, VWA, VO, VT, VE = 4, 6, 26, 12, 15, 19
    XR = 32; FW = [160, 192]; ACC = [128, 96]; D = 240; BIA = 192
    SPC = NV if P1 else 0
    BIA = [BIA + 2 * jn for jn in range(4)]
    if SPC: VXO, VT, ACC, BIA = EVX, EVT, [32, 96], EBIA
    ot = kind == 'w2' and 'w2' in OT
    if ot: BIA = OBIA; assert P1 >= 20 and not SPC
    acc = lambda jn, jm, u=1: ACC[u] + (jn * 2 + jm) * 4
    fx = lambda r, ks, jm: XR + 16 * r + (ks * 2 + jm) * 4
    fw = lambda s, ks, jn: FW[s] + (ks * 4 + jn) * 4
    a.label(f'L_{kind}_c0')
    a.label(body)
    tile_map(a, 2, end, pair=True)
    rot_table(a, S_TB, S_MT, S_HD, kind)
    a.emit(f's_cmp_ge_u32 s{S_WV}, 4')
    a.emit(f's_cbranch_scc1 L_{kind}_loader')
    if ot:
        a.emit(f's_lshl_b32 s3, s{S_WV}, 12')
        a.emit(f's_add_u32 s3, s3, {OHB}')
        a.emit('v_lshl_add_u32 v2, v1, 4, s3')
        for i in range(12): a.emit(f'ds_read_b128 v[{32+4*i}:{35+4*i}], v2 offset:{(i>>2)*16384+(i&1)*2048+(i&2)*512}')
        ktab_ot(a, VT, 11, S_TB)
        if 'xhit' in DBG: a.emit(f'v_and_b32 v{VT}, 0x1800, v{VT}')
        if ENV('RE', '1') == '1' and not EF:
            a.emit('s_waitcnt lgkmcnt(0)')
            a.emit('s_barrier')
    elif SPC: tile_map(a, 2, None, pair=True)
    else: ktab(a, VT, 11, P1, P2, S_TB)
    a.emit('v_and_b32 v3, 15, v1')
    a.emit('v_lshrrev_b32 v2, 4, v1')
    a.emit(f's_lshl_b32 s8, s{S_MT}, 7')
    a.emit(f's_lshl_b32 s9, s{S_WV}, 5')
    a.emit('s_add_u32 s8, s8, s9')
    a.emit(f's_mul_i32 s9, s8, {lda2}')
    if 'xsm' in DBG:
        a.emit('s_and_b32 s9, s8, 0x67f')
        a.emit(f's_mul_i32 s9, s9, {lda2}')
    if not SPC and ENV('TID', '1') != '1':
        a.emit(f'v_lshl_add_u32 v{VXO}, v1, 4, s9')
        a.emit(f'v_add_u32 v{VXO+1}, {16*lda2}, v{VXO}')
    E2 = ot and EF == 2
    if E2: xpitch(a, 7, True)
    iB = len(a.lines)
    a.emit('v_add_u32 v13, s8, v3')
    a.emit(f's_lshl_b32 s10, s{S_NT}, 7')
    a.emit('v_lshl_add_u32 v14, v2, 3, s10')
    a.emit('v_and_b32 v16, 1, v2')
    a.emit('v_lshrrev_b32 v17, 1, v2')
    if kind == 'w2':
        a.emit('v_lshlrev_b32 v16, 5, v16')
        a.emit('v_lshl_add_u32 v16, v17, 4, v16')
        if 'attn' in OT:
            a.emit('v_lshlrev_b32 v4, 3, v3')
            a.emit('v_and_b32 v4, 0x70, v4')
            a.emit('v_xor_b32 v4, v4, v16')
            a.emit('v_lshl_add_u32 v4, v3, 7, v4')
            a.emit(f's_lshl_b32 s3, s{S_WV}, 12')
            a.emit('v_add_u32 v4, s3, v4')
            a.emit('v_xor_b32 v5, 64, v4')
        a.emit('v_add_u32 v16, s10, v16')
        if not E2: xpitch(a, 7, True)
        a.emit(f'v_mad_u32_u24 v{VO}, v13, s7, v16')
    else:
        if 'w1' in NS: a.emit('v_lshlrev_b32 v16, 4, v1')
        else:
            a.emit('v_lshl_add_u32 v16, v16, 1, v17')
            a.emit('v_lshlrev_b32 v16, 8, v16')
            a.emit('v_lshl_add_u32 v16, v3, 4, v16')
        a.emit(f's_add_u32 s9, s8, s{S_NT}')
        a.emit('s_lshl_b32 s9, s9, 11')
        a.emit(f'v_add_u32 v{VO}, s9, v16')
        if 'w1' in OT:
            a.emit(f's_lshl_b32 s9, s{S_WV}, 12')
            a.emit(f'v_add_u32 v{VE}, s9, v16')
    a.emit('v_lshl_add_u32 v18, v17, 4, v13')
    a.emit('v_lshlrev_b32 v18, 3, v18')
    a.emit('v_and_b32 v16, 1, v2')
    a.emit('v_lshl_add_u32 v18, v16, 2, v18')
    a.emit(f's_lshl_b32 s10, s{S_NT}, 14')
    a.emit('v_add_u32 v18, s10, v18')
    nr = kind in NS and NSR
    wbase(a, VWB, 17, nr=nr)
    for i in range(1, 4): a.emit(f'v_xor_b32 v{VWB+i}, {32*i}, v{VWB}')
    a.emit('s_mov_b32 s11, 0xffff0000')
    if E2: bl = a.lines[iB:]; del a.lines[iB:]
    if kind == 'wo':
        srd(a, SX, 'ws', WS_O, 4 * MB)
        srd(a, SO, 'ws', WS_X1, 4 * MB)
    else:
        if not SPC:
            if not ot: srd(a, SB, 'b2', 0, 2048)
            for jn in range(0 if ot else 4):
                a.emit(f'buffer_load_dwordx2 v[{BIA[jn]}:{BIA[jn]+1}], v14, s[{SB}:{SB+3}], 0 offen offset:{jn*32}')
            srd(a, SX, 'ws', WS_H, 2048 * 7168)
        srd(a, SO, 'out', 0, 4 * MB)
        srd(a, SR, 'ws0', WS_X2, 4 * MB)
        a.emit(f's_cmp_eq_u32 s{S_LAYER}, 0')
        a.emit(f's_cselect_b64 s[{SO}:{SO+1}], s[{SR}:{SR+1}], s[{SO}:{SO+1}]')
        a.emit(f's_lshl_b32 s{SO+2}, s7, 11')
        if E2:
            for x in range(3, 5): a.emit(f'v_readlane_b32 s{SR+(x&3)}, v{VT}, {x}')
    if not E2: srd(a, ST, 'ws', WS_ST if kind == 'wo' else WS_ST2, 16 * 16384)
    TID = ENV('TID', '1') == '1'
    if TID:
        a.emit(f's_mul_i32 s9, s8, {lda2}')
        a.emit(f's_add_u32 s{SX}, s{SX}, s9')
        a.emit(f's_addc_u32 s{SX+1}, s{SX+1}, 0x100000')
        a.emit(f's_add_u32 s{SC}, s{SX}, {16 * lda2}')
        a.emit(f's_addc_u32 s{SC+1}, s{SX+1}, 0')
        for r in (SX, SC):
            a.emit(f's_mov_b32 s{r+2}, {16 * lda2}')
            a.emit(f's_mov_b32 s{r+3}, 0x00800000')
    if E2:
        RB = int(ENV('RB', '0'))
        a.lines += bl[:RB]
        a.emit('s_waitcnt vmcnt(0) lgkmcnt(0)')
        a.emit('s_barrier')
        iR = len(a.lines)
        a.lines += bl[RB:]
        srd(a, ST, 'ws', WS_ST2, 16 * 16384)
    if kind == 'wo':
        if ENV('CT2', 'l') == 'l': code_touch(a, 'L_w1_c0', 'L_w1_c1', 128, SW)
        elif ENV('CT2') == 'o': code_touch(a, 'L_w2_c0', 'L_w2_c1', 192, SW)
        else: code_touch(a, 'L_w1_c0', 'L_w2_c1', 320, SW)
    DX = int(ENV('DX', '2'))
    CLW = DX == 1 and not P1 and ENV('CLP', 'e') == 'w'
    if CLW:
        for i in range(4): a.emit(f'v_mov_b32 v{128+i}, -1')
    if (P1 and DX) or CLW:
        srd(a, SP, 'ws', WS_XP, 4 * MB)
        a.emit(f's_or_b32 s{SP+1}, s{SP+1}, 0x100000')
        a.emit(f's_mov_b32 s{SP+3}, 0x00800000')
        a.emit(f's_lshl4_add_u32 s4, s{S_MT}, s{S_NT}')
        a.emit(f's_lshl2_add_u32 s4, s4, s{S_WV}')
        if DX == 2:
            srd(a, SB, 'ws0', WS_FL, FLS)
            a.emit(f's_add_u32 s6, s{S_LAYER}, 4')
            a.emit('s_lshl_b32 s6, s6, 10')
            a.emit('s_add_u32 s6, s6, s4')
            a.emit('s_lshl_b32 s6, s6, 6')
            a.emit(f'v_mov_b32 v{VE}, 1')
        a.emit('s_lshl_b32 s4, s4, 12')
        a.emit('s_xor_b32 s5, s4, 16384')
    elif P1:
        a.emit(f's_mul_i32 s3, s{S_WV}, {CH}')
        a.emit(f's_add_u32 s3, s3, {XB}')
        a.emit(f'v_lshl_add_u32 v{VE}, v1, 4, s3')
    if P1 and not ot:
        for i in range(32): a.emit(f'v_mov_b32 v{ACC[0]+i}, 0')
    bases = []
    for t in sorted(range(min(N, 20)), key=slot):
        if not bases or slot(t) + 8191 - bases[-1] > 65535: bases.append(slot(t))
    VSET = [VWB, 20, 26]
    for k in (2, 1, 0):
        for i in range(4):
            if bases[k] or k: a.emit(f'v_add_u32 v{VSET[k]+i}, {bases[k]}, v{VWB+i}')
    xof = lambda t: sched[t][0]
    NX = P1 + P2
    last = lambda x: sched.index((x, 1))
    def xl(x, reg):
        if TID: return [(f'buffer_load_dwordx4 v[{reg+(ks*2+jm)*4}:{reg+(ks*2+jm)*4+3}], off, s[{(SX, SC)[jm]}:{(SX, SC)[jm]+3}], s{SR+(x&3)} offset:{ks*1024}', 'V', ('x', x, ks))
                for ks in range(2) for jm in range(2)]
        return [(f'buffer_load_dwordx4 v[{reg+(ks*2+jm)*4}:{reg+(ks*2+jm)*4+3}], v{VXO+jm}, s[{SX}:{SX+3}], s{SR+(x&3)} offen offset:{ks*1024}', 'V', ('x', x, ks))
                for ks in range(2) for jm in range(2)]
    def reads(t):
        o = []
        k = max(i for i, b in enumerate(bases) if b <= slot(t))
        for ks in range(2):
            for jn in range(4):
                for h in range(2):
                    d = fw(t & 1, ks, jn) + 2 * h
                    o.append((f'ds_read_b64_tr_b16 v[{d}:{d+1}], v{VSET[k]+jn} offset:{slot(t)-bases[k]+ks*4096+h*(2048 if nr else 512)}', 'L', ('w', t, ks)))
        return o
    xreg = {}
    def mf(t):
        o = []
        for ks in range(2):
            for jn, jm in mf_order(4, 2):
                if True:
                    c = acc(jn, jm, sched[t][1]); x = xreg[xof(t)] + (ks * 2 + jm) * 4
                    o.append(f'v_mfma_f32_16x16x32_bf16 v[{c}:{c+3}], v[{fw(t&1,ks,jn)}:{fw(t&1,ks,jn)+3}], v[{x}:{x+3}], ' + ('0' if ot and t == ks == 0 else f'v[{c}:{c+3}]'))
        return o
    U = kind[1].upper()
    NG = int(ENV('NG' + U, '3'))
    ring = [32, 48, 64, 80, 224, 240][:int(ENV('RING' + U, '6' if P1 else '4'))]
    NB = 2 if E2 else int(ENV('NB', '3'))
    if SPC: ring = ERING
    elif ot:
        assert NG == 3
        for x in range(3, 3 if E2 else 3 + NB): a.emit(f'v_readlane_b32 s{SR+(x&3)}, v{VT}, {x}')
    else:
        for x in range(NG): a.emit(f'v_readlane_b32 s{SR+x}, v{VT}, {x}')
    for i in range(0 if kind == 'w2' and 'w1' in NS else 4):
        for h in range(2): a.emit(f'v_permlane16_swap_b32 v{D+4*i+h}, v{D+4*i+2+h}')
    TF = int(ENV('TF', '-1')); TG = int(ENV('TG', '15'))
    import pads
    for x in pads.chain('hg') if kind == 'wo' else []: a.emit(x)
    a.emit('s_waitcnt lgkmcnt(0)' + (f' vmcnt({4 * NG + 4 if EX == 14 else 0})' if SPC and TF < 0 else ''))
    if not (ot and ENV('RE', '1') == '1'): a.emit('s_barrier')
    pre = []
    for x in range(NG):
        xreg[x] = ring[x]; pre += xl(x, ring[x])
    if SPC: pre = [('', k, tg) for _, k, tg in pre] + [('', 'V', 'st')] * (14 - EX)
    if ot: pre = [('', 'L', tg) for _, k, tg in pre] + [('', 'V', 'st')] * (EF == 1)
    if E2:
        xe = xl(3, ring[3]) + xl(4, ring[4])
        XD_ = int(ENV('XED', '8'))
        for i, y in enumerate(xe): a.lines.insert(iR + i * (XD_ + 1), '  ' + y[0])
        pre += [('', k, tg) for _, k, tg in xe]
    pre += reads(0)
    P = lambda x: (x, '', None)
    if kind == 'w2' and not ot: pre.append(P(f's_waitcnt vmcnt({len(pre) - 16})'))
    for jn in range(4):
        if kind == 'w2':
            for h in range(2):
                pre.append(P(f'v_lshlrev_b32 v{216+2*h}, 16, v{BIA[jn]+h}'))
                pre.append(P(f'v_and_b32 v{217+2*h}, s11, v{BIA[jn]+h}'))
        for jm in range(2):
            c = acc(jn, jm); r = D + (jm * 4 + jn) * 2
            for h in range(2):
                pre.append(P(f'v_lshlrev_b32 v{c+2*h}, 16, v{r+h}'))
                pre.append(P(f'v_and_b32 v{c+2*h+1}, s11, v{r+h}'))
                if kind == 'w2': pre.append(P(f'v_pk_add_f32 v[{c+2*h}:{c+2*h+1}], v[{c+2*h}:{c+2*h+1}], v[{216+2*h}:{217+2*h}]'))
    pre.append(('', 'W', [('w', 0, 0), ('x', 0, 0)]))
    if TS:
        b = Asm(); stamp(b, 1); pre += [P(l.strip()) for l in b.lines]
    gp = [[] for _ in range(16 * N + 1)]
    waits = {}
    for t in range(N):
        if t + 1 < N:
            for i, x in enumerate(reads(t + 1)): gp[16 * t + i].append(x)
        for g, tt, ks in ((16 * t + 7, t, 1), (16 * t + 15, t + 1, 0)):
            if tt < N:
                waits[g] = [('w', tt, ks), ('x', xof(tt), ks)]
                gp[g].append(('', 'W', waits[g]))
    def put(g, x, cap=2):
        while len(gp[g]) >= cap and g < 16 * N: g += 1
        gp[g].append(x); return g
    BP = int(ENV('BP', '4'))
    ZS = int(ENV('ZS', '50' if DX else '54')) if P1 else N - 1
    XS = int(ENV('XS', '43' if DX else '41'))
    PS = int(ENV('PS', '0'))
    bars = list(range(BP - 1, min(2 * P1, XS), BP)) + [XS] + ([PS] if PS else []) + ([] if DX == 1 else [ZS]) if P1 else [int(x) for x in ENV('BWO', '3,10' if 'w1' in OT else '3,7,12').split(',')]
    if SPC:
        bars = [TF] + [t for t in bars if t > TF + 1]
        assert TG in bars
        if EX < 14 and TF >= 0: waits[16 * TF + 7].append('st')
    if ot: bars = [int(x) for x in ENV('BW2', ['2,7', '1,7', '3,7'][EF]).split(',')] + bars[2:]
    TG2 = int(ENV('TG2', '11'))
    if ot and EF == 1: waits[16 * bars[0] + 7].append('st')
    if ot and EF: assert TG2 in bars
    for t in bars:
        if t >= 0: gp[16 * t + 7].append(P('s_barrier'))
    G = ACC[0]; GI = G + 16 if B16 else G
    pool = [[r, -1 if i >= NG else 16 * last(i) + 15, N] for i, r in enumerate(ring)]
    if P1:
        for i in range(int(ENV('RINGX', '0'))): pool.append([G + 16 * i, 16 * XS + 7, ZS])
    SP1 = int(ENV('SP1', '6')); SP2 = int(ENV('SP2', '3'))
    g = 0
    for x in range(NG, NX):
        sl = min((p for p in pool if last(x) < p[2]), key=lambda p: p[1])
        xreg[x] = sl[0]
        if SPC and x == SPC: g = max(g, 16 * TG + 7)
        if ot and EF and x == 11: g = max(g, 16 * TG2 + 7)
        if E2 and x < 5:
            assert sl[0] == ring[x]
            sl[1] = 16 * last(x) + 15
            continue
        if ot and x < 3 + NB:
            g = 16 * bars[0] + 7
            gp[g] += xl(x, sl[0]); sl[1] = 16 * last(x) + 15; g += 3
            continue
        g = put(max(g - 2, sl[1] - 2, 0), P(f'v_readlane_b32 s{SR+(x&3)}, v{VT}, {x}')) + 3
        sp = SP1 if len(ring) + (int(ENV('CU2', '2')) if ot else 0) <= x and g < 16 * int(ENV('SPE', str(TU + 1))) else SP2
        sps = [int(c) for c in ENV('SP3', '4')] if P1 and 12 <= x and sp == SP2 else [sp]
        for i, y in enumerate(xl(x, sl[0])): g = put(max(g, sl[1] + 1), y) + sps[i % len(sps)]
        sl[1] = 16 * last(x) + 15
    for i in range(4): put(16 * (N - 1), P(f'v_mov_b32 v{20+i}, 0'))
    if CLW:
        g = max(g, int(16 * float(ENV('CLG', '0'))))
        for i in range(4): g = put(g, (f'buffer_store_dwordx4 v[128:131], off, s[{SP}:{SP+3}], s4 offset:{1024*i} sc1', 'V', 'cl')) + int(ENV('CLD', '2'))
    def xld(i): return f'buffer_load_dwordx4 v[{GI+4*i}:{GI+4*i+3}], off, s[{SP}:{SP+3}], s5 offset:{1024*i} sc1'
    def vmax(d, r):
        return [f'v_max3_u32 v{d}, v{r}, v{r+1}, v{r+2}'] + [f'v_max3_u32 v{d}, v{d}, v{r+j}, v{r+j+1}' for j in range(3, 15, 2)] + [f'v_max_u32 v{d}, v{d}, v{r+15}', f'v_cmp_eq_u32 vcc, -1, v{d}']
    if P1 and DX:
        g = 16 * TU + 2
        for i in range(4):
            for j in range(4 * i, 4 * i + 4): g = put(g, P(f'v_cvt_pk_bf16_f32 v{G+j}, v{G+2*j}, v{G+2*j+1}'))
            put(max(g + 1, 16 * TU + 6 + i * int(ENV('XWS', '0'))), (f'buffer_store_dwordx4 v[{G+4*i}:{G+4*i+3}], off, s[{SP}:{SP+3}], s4 offset:{1024*i} sc1', 'V', 'xw'))
        g = int(16 * float(ENV('RS', '50')))
        if DX == 2:
            g = put(int(16 * float(ENV('FS', '44'))), ('', 'W', ['xw']))
            put(g, (f'buffer_store_dword v{VE}, off, s[{SB}:{SB+3}], s6 sc1', 'V', 'xf'))
            g = 16 * ZS + 8
        for i in range(4): g = put(g, (xld(i), 'V', 'xr')) + int(ENV('RSP', '2'))
        g = put(int(16 * float(ENV('VS', '53.5' if DX == 1 else '54'))), ('', 'W', ['xr']))
        if DX == 1:
            for y in vmax(VE, GI): g = put(g, P(y))
            g = put(g + 1, P(f's_cbranch_vccnz L_{kind}_xrt\nL_{kind}_xok:'))
        for i in range(16):
            g = put(g, P(f'v_lshlrev_b32 v{G+2*i}, 16, v{GI+i}'), 2 if g < 16 * (N - 1) else 3)
            g = put(g, P(f'v_and_b32 v{G+2*i+1}, s11, v{GI+i}'), 2 if g < 16 * (N - 1) else 3)
    elif P1:
        g = 16 * (2 * P1 - 1) + 2
        for i in range(NXC):
            if B16:
                for j in range(4 * i, 4 * i + 4): g = put(g, P(f'v_cvt_pk_bf16_f32 v{G+j}, v{G+2*j}, v{G+2*j+1}'))
            gw = put(max(g + 1, 16 * (2 * P1 - 1) + 8 + 2 * i), (f'ds_write_b128 v{VE}, v[{G+4*i}:{G+4*i+3}] offset:{1024*i}', 'L', 'xw'))
        assert gw < 16 * XS + 7
        waits[16 * XS + 7].append('xw')
        g = 16 * ZS + 8
        for i in range(NXC): g = put(g, (f'ds_read_b128 v[{GI+4*i}:{GI+4*i+3}], v{VE} offset:{1024*i}', 'L', 'xr')) + 1
        g = put(max(g + 6, 16 * (N - 1)), ('', 'W', ['xr']))
        if B16:
            for i in range(16):
                g = put(g, P(f'v_lshlrev_b32 v{G+2*i}, 16, v{GI+i}'), 3)
                g = put(g, P(f'v_and_b32 v{G+2*i+1}, s11, v{GI+i}'), 3)
    XG = int(ENV('XG', '1'))
    if XG:
        isr = lambda y: y[1] == 'L' and y[2][0] == 'w'
        for g in range(16 * N - 1):
            if len(gp[g]) == 2 and gp[g][1][1] == 'V' and isr(gp[g][0]):
                for d in ((1, -1) if XG == 1 else (-1, 1)):
                    if len(gp[g + d]) == 1 and isr(gp[g + d][0]) and (d > 0 or g & 15):
                        gp[g + d].insert(0 if d > 0 else 1, gp[g].pop(0)); break
    lin = list(pre)
    for t in range(N):
        for i, m in enumerate(mf(t)):
            lin.append(P(m)); lin += gp[16 * t + i]
        if TS and t == int(ENV('ST2', '99')):
            b = Asm(); stamp(b, 2); lin += [P(l.strip()) for l in b.lines]
    lin += gp[16 * N]
    nbc = [0]
    def nb2():
        nbc[0] += 1; return 2 < nbc[0] < len(bars)
    iss = {'L': [], 'V': []}; done = {'L': -1, 'V': -1}
    for txt, k, tag in lin:
        if k == 'W':
            o = []
            for c, nm, mx in (('V', 'vmcnt', 63), ('L', 'lgkmcnt', 15)):
                idx = [i for i, x in enumerate(iss[c]) if x in tag]
                if idx and max(idx) > done[c]:
                    n = min(mx, len(iss[c]) - 1 - max(idx)); done[c] = len(iss[c]) - 1 - n
                    o.append(f'{nm}({n})')
            assert all(x in iss['L'] or x in iss['V'] for x in tag), tag
            if o: a.emit('s_waitcnt ' + ' '.join(o))
            continue
        if k: iss[k].append(tag)
        if 'nox2' in DBG and P1 and k == 'V' and tag[0] == 'x' and len(tag) == 3: continue
        if 'nobar2' in DBG and P1 and txt == 's_barrier' and nb2(): continue
        if ('nox' in DBG and k == 'V') or ('nomfma' in DBG and 'mfma' in txt) or not txt: continue
        a.emit(txt)
    if int(ENV('ST2', '99')) >= N: stamp(a, 2)
    a.emit(f's_mov_b32 s3, {16*2048}' if kind == 'wo' else 's_lshl_b32 s3, s7, 4')
    a.emit('s_mov_b32 s10, 0x3f803f80')
    a.emit('s_nop 4')
    for jm in range(2):
        for p in range(2):
            d = D + (jm * 2 + p) * 4
            for q in range(2):
                c = acc(2 * p + q, jm); g = acc(2 * p + q, jm, 0)
                if P1:
                    for h in range(2): a.emit(f'v_pk_add_f32 v[{c+2*h}:{c+2*h+1}], v[{c+2*h}:{c+2*h+1}], v[{g+2*h}:{g+2*h+1}]')
                a.emit(f'v_cvt_pk_bf16_f32 v{d+2*q}, v{c}, v{c+1}')
                a.emit(f'v_cvt_pk_bf16_f32 v{d+2*q+1}, v{c+2}, v{c+3}')
            if not (kind == 'wo' and 'w1' in NS):
                a.emit('s_nop 1')
                a.emit(f'v_permlane16_swap_b32 v{d}, v{d+2}')
                a.emit(f'v_permlane16_swap_b32 v{d+1}, v{d+3}')
            a.emit(f'buffer_store_dwordx4 v[{d}:{d+3}], v{VO}, s[{SO}:{SO+3}], {"s3" if jm else "0"} offen offset:{p*PSTEP}{stf(kind)}')
            if kind == 'w2' and 'attn' in OT: a.emit(f'ds_write_b128 v{4+p}, v[{d}:{d+3}] offset:{jm*2048}')
            if kind == 'wo' and 'w1' in OT: a.emit(f'ds_write_b128 v{VE}, v[{d}:{d+3}] offset:{jm*2048+p*1024}')
    for jm in range(2):
        for i in range(8):
            d = D + jm * 8 + i
            a.emit(f'v_dot2_f32_bf16 v{20+jm}, v{d}, s10, v{20+jm}')
            a.emit(f'v_dot2_f32_bf16 v{22+jm}, v{d}, v{d}, v{22+jm}')
    a.emit('s_nop 2')
    a.emit('v_permlane32_swap_b32 v20, v21')
    a.emit('v_permlane32_swap_b32 v22, v23')
    a.emit('v_add_f32 v20, v20, v21')
    a.emit('v_add_f32 v22, v22, v23')
    a.emit('s_nop 1')
    a.emit('v_permlane16_swap_b32 v20, v22')
    a.emit('v_add_f32 v20, v20, v22')
    a.emit(f'buffer_store_dword v20, v18, s[{ST}:{ST+3}], 0 offen{stf(kind)}')
    compute_end(a, kind)
    if P1 and DX == 1:
        a.label(f'L_{kind}_xrt')
        a.emit('s_mov_b32 s6, 0x40000')
        a.label(f'L_{kind}_xrl')
        for i in range(4): a.emit(xld(i))
        a.emit('s_sub_u32 s6, s6, 1')
        a.emit('s_waitcnt vmcnt(0)')
        a.emit(f's_cbranch_scc1 L_{kind}_xok')
        for y in vmax(VE, GI): a.emit(y)
        a.emit(f's_cbranch_vccnz L_{kind}_xrl')
        a.emit(f's_branch L_{kind}_xok')
    a.label(f'L_{kind}_loader')
    VT = 16
    if ENV('LPRIO'): a.emit(f"s_setprio {ENV('LPRIO')}")
    if kind == 'wo':
        if LSTK == 'wo': lstamp(a, 0)
        import sides
        dep_pre(a, kind, 0)
        a.emit(f's_cmp_lg_u32 s{S_LAYER}, 0')
        a.emit(f's_cbranch_scc1 L_{kind}_nofirst')
        sides.qkv(a, 0, 'finish', 1)
        a.label(f'L_{kind}_nofirst')
    L = Loader(a, kind, K, lda2, ldw2, [0], 128, 2, 8192, xblk=True)
    L.panels_of = lambda t: [0] if sched[t][1] else [f's{S_XD}']
    if ot:
        ktab_ot(a, VT, 17, S_TB)
        if 'whit' in DBG: a.emit(f'v_and_b32 v{VT}, 0x60000, v{VT}')
    else: ktab(a, VT, 17, P1, P2, S_TB)
    a.emit(f's_add_u32 s9, s{S_WV}, s{S_MT}')
    a.emit('s_and_b32 s9, s9, 3')
    a.emit(f's_lshl_b32 s{S_WD}, s9, 11')
    a.emit('v_and_b32 v10, 7, v1')
    if 'wsm' in DBG:
        a.emit(f's_and_b32 s11, s{S_NT}, 1')
        wvoff(a, L.VWD, 9, 11, ldw2)
    elif 'noslow2' in DBG:
        a.emit(f's_bitcmp1_b32 0x0c0c, s{S_NT}')
        a.emit('s_cselect_b32 s11, 2, 0')
        a.emit(f's_add_u32 s11, s11, s{S_NT}')
        wvoff(a, L.VWD, 9, 11, ldw2)
    else: wvoff(a, L.VWD, 9, S_NT, ldw2, kind in NS)
    if kind == 'wo': srd(a, SW, 'wo', 0, 2 * MB)
    else:
        srd(a, SW, 'w2', 0, 3584 * 2048)
        a.emit(f's_bitcmp1_b32 s{S_NT}, 0')
        a.emit(f's_mov_b32 s{S_XD}, 128')
        a.emit(f's_cselect_b32 s{S_XD}, -128, s{S_XD}')
    NPF = int(ENV('NPF' + kind[1].upper(), '10'))
    assert NPRE - NPF <= 18
    seq = []
    def em(o):
        for x in o:
            if ('nodma' in DBG or ('nodma2' in DBG and len(seq) >= 40)) and x.endswith(' lds'): continue
            a.emit(x)
    def after(t): return len(seq) - 1 - max(i for i, x in enumerate(seq) if x == t)
    NPK = int(ENV('NPK', '0')) if P1 else 0
    PK0 = int(ENV('PK0', '20')); PKA = int(ENV('PKA', '0'))
    PKD = int(ENV('PKD', '1'))
    pks = [t for t in range(PK0, N) if ((t - PK0) >> 1) % PKD == 0][:NPK]
    pkr = lambda t: 256 - 8 * NPK + 8 * pks.index(t)
    assert 256 - 8 * NPK >= 48
    if NPK:
        a.emit(f'v_lshl_add_u32 v20, v1, 4, s{S_WD}')
        a.emit('v_add_u32 v21, 0x10000, v20')
        a.emit('v_add_u32 v22, 0x20000, v20')
    lastk = [None]
    def kw(t):
        x = xof(t)
        if lastk[0] != x: a.emit(f'v_readlane_b32 s{S_KW}, v{VT}, {x}')
        lastk[0] = x
    def pk(t):
        kw(t)
        a.emit(f's_add_u32 s4, s{S_KW}, {L.panels_of(t)[0]}')
        for i in range(2): a.emit(f'buffer_load_dwordx4 v[{pkr(t)+4*i}:{pkr(t)+4*i+3}], v{L.VWD+i}, s[{SW}:{SW+3}], s4 offen')
        seq.extend([('P', t)] * 2)
    vmdone = [-1]
    def iw(t):
        if t in pks:
            i = max(i for i, x in enumerate(seq) if x == ('P', t))
            if i > vmdone[0]:
                a.emit(f's_waitcnt vmcnt({min(63, len(seq) - 1 - i)})'); vmdone[0] = i
            for i in range(0 if 'nopw' in DBG else 2): a.emit(f'ds_write_b128 v{20+(slot(t)>>16)}, v[{pkr(t)+4*i}:{pkr(t)+4*i+3}] offset:{(slot(t)&65535)+1024*i}')
            return
        kw(t)
        em(L.issue_w(t, S_WD, slot(t)))
        seq.extend([t] * 2)
    if kind == LSTK == 'wo': lstamp(a, 1)
    CW = [int(x) for x in ENV('CW', '0').split(',')] if P1 else []
    cwk = list(range(NPRE // 2, P1)) + list(range(2 * P1, N)); cwn = [0]
    if sum(CW):
        srd(a, SR, 'w2', 0, 3584 * 2048)
        a.emit(f's_and_b32 s3, s{S_WV}, 3')
        a.emit(f's_lshl2_add_u32 s3, s{S_CU}, s3')
        a.emit('s_lshl_b32 s4, s3, 6')
        a.emit('s_and_b32 s4, s4, 64')
        a.emit('s_lshr_b32 s3, s3, 1')
        a.emit('s_lshl_b32 s3, s3, 11')
        a.emit('s_add_u32 s3, s3, s4')
        a.emit(f's_sub_u32 s4, 384, s{SW}')
        a.emit('s_and_b32 s4, s4, 0x380')
        a.emit(f's_add_u32 s{S_Q}, s3, s4')
        a.emit(f's_bitcmp1_b32 s{S_NT}, 0')
        a.emit(f's_cselect_b32 s3, {P1 << 17}, 0')
        a.emit(f's_add_u32 s{S_T}, s{S_Q}, s3')
        a.emit('s_lshr_b32 s4, s4, 7')
        a.emit(f's_xor_b32 s4, s4, s{S_NT}')
        a.emit('s_bitcmp1_b32 s4, 0')
        a.emit(f's_cselect_b32 s{SR+2}, 0, s{SR+2}')
    def cw(j):
        for k in cwk[cwn[0]:cwn[0] + (CW[j] if j < len(CW) else 0)]:
            a.emit(f's_add_u32 s3, s{S_T if k < P1 else S_Q}, {k << 17}')
            for i in range(2): a.emit(f's_buffer_load_dword s84, s[{SW if k < P1 else SR}:{(SW if k < P1 else SR)+3}], s3 offset:{1024*i}')
            cwn[0] += 1
    def clr(w):
        if DX != 1 or P1 or w != ENV('CLP', 'e'): return
        srd(a, SP, 'ws', WS_XP, 4 * MB)
        a.emit(f's_and_b32 s5, s{S_WV}, 3')
        a.emit(f's_lshl4_add_u32 s6, s{S_MT}, s{S_NT}')
        a.emit('s_lshl2_add_u32 s6, s6, s5')
        a.emit('s_lshl_b32 s6, s6, 12')
        a.emit('s_setprio 3')
        a.emit('v_lshlrev_b32 v3, 4, v1')
        for i in range(4): a.emit(f'v_mov_b32 v{24+i}, -1')
        for i in range(4): a.emit(f'buffer_store_dwordx4 v[24:27], v3, s[{SP}:{SP+3}], s6 offen offset:{1024*i} sc1')
        a.emit('s_setprio 0')
        seq.extend(['C'] * 4)
    clr('a')
    for t in range(NPRE - NPF): iw(t)
    clr('b')
    PTH = ENV('PTH', '')
    for t in pks[:NPK - PKA]:
        pk(t)
        if PTH: a.emit(f's_waitcnt vmcnt({PTH})')
    cw(0)
    if kind == 'wo': dep_pre(a, kind, 1, len(seq))
    N2 = NPRE - NPF; pref = None
    if SPC:
        N2 = max(N2, int(ENV('N2', '0')), bars[1] + 2); NPRE = int(ENV('N3', '20'))
        assert NPRE <= TF + 21
        def pref():
            a.emit('s_mov_b32 s5, s3')
            if TF >= 0:
                a.emit(f's_waitcnt vmcnt({after(TF + 1)})')
                a.emit('s_barrier')
            for t in range(len(seq) // 2, N2): iw(t)
            a.emit('s_mov_b32 s3, s5')
            a.emit(f's_waitcnt vmcnt({after(bars[1] + 1)})')
    def postf():
        for t in range(N2, NPRE):
            if ot and slot(t) == OHB:
                a.emit(f's_waitcnt vmcnt({after(bars[0] + 1)})')
                a.emit('s_barrier')
            iw(t)
        for t in pks[NPK - PKA:]: pk(t)
    if ot and EF:
        NE = int(ENV('NE', '14')); NH = int(ENV('NH', str(NE))); NPRE = int(ENV('NGB', '20' if E2 else str(NH)))
        assert slot(NH - 1) < OHB
        dep_ef(a, lambda: [iw(t) for t in range(N2, NE)], lambda: E2 or a.emit(f's_waitcnt vmcnt({after(bars[0] + 1)})'),
               lambda: [iw(t) for t in range(NE, NH)] + [a.emit(f's_waitcnt vmcnt({after(bars[0 if E2 else 1] + 1)}) lgkmcnt(0)')])
        a.emit(f's_mov_b32 s{S_CNT}, 0x100000')
        for t in range(NH, NPRE): iw(t)
    else: dep_wait(a, kind, skip_first=kind == 'wo', preg=lambda: a.emit(f's_waitcnt vmcnt({min(after(bars[2 if SPC else 1 if ot else 0] + 1), 63)}) lgkmcnt(0)'),
             postf=postf, pref=pref, defer=bool(SPC))
    nxt = NPRE
    reg = bars[:bars.index(XS)] if P1 and not DX else bars
    clr('g')
    for j, t in enumerate(reg):
        if (SPC or ot) and j < 1 and not E2: continue
        lim = min(N, (reg[j - 1] if j else -1) + 21)
        PACE = [int(c) for c in ENV('PACE', '')] if P1 else []
        if j < len(PACE): lim = min(lim, nxt + PACE[j])
        PP = int(ENV('PP', '2'))
        pp = min(lim - 1, nxt + PP) if (SPC and t == TG) or (E2 and t == TG2) else -1
        pe = min(lim - 1, nxt + int(ENV('PE', '0'))) if ot and EF == 1 and t == TG2 else -1
        while nxt < lim:
            if nxt == pp: dep_late(a, kind, 0); seq.append('F')
            if nxt == pe:
                ef_poll(a, 'L_w2_pl', 2, True)
                lstamp(a, 2, True)
            iw(nxt); nxt += 1
            if nxt - 1 in pks: a.emit('s_waitcnt lgkmcnt(0)')
            elif nxt < lim: a.emit(f"s_waitcnt vmcnt({ENV('LTHR', '4')})")
        cw(j + 1)
        clr(str(j))
        need = [min(N - 1, bars[j + 1] + 1)] if j + 1 < len(bars) else []
        assert all(t < nxt for t in need)
        need = [max(x for x in range(t + 1) if x not in pks) for t in need]
        if P1 and not DX and j == len(reg) - 1:
            srd(a, SP, 'ws', WS_XP, 8 * MB)
            srd(a, SC, 'ws0', WS_FL, FLS)
            a.emit(f's_and_b32 s5, s{S_WV}, 3')
            a.emit(f's_lshl4_add_u32 s6, s{S_MT}, s{S_NT}')
            a.emit('s_lshl2_add_u32 s6, s6, s5')
            a.emit(f's_mul_i32 s8, s6, {CH}')
            a.emit('s_add_u32 s9, s8, 4096')
            a.emit(f's_add_u32 s7, s{S_LAYER}, 4')
            a.emit('s_lshl_b32 s7, s7, 10')
            a.emit('s_add_u32 s6, s6, s7')
            a.emit('s_lshl_b32 s6, s6, 6')
            a.emit('s_xor_b32 s7, s6, 256')
            a.emit(f's_mul_i32 s5, s5, {CH}')
            a.emit(f's_add_u32 s5, s5, {XB}')
            a.emit('v_lshlrev_b32 v3, 4, v1')
            a.emit('v_add_u32 v2, s5, v3')
            a.emit('v_mov_b32 v4, 1')
            a.emit(f's_mov_b32 s{S_CNT}, 0x100000')
        if pp >= 0: dep_late(a, kind, 1, after('F'))
        if P1 and DX == 2 and t == XS:
            srd(a, SC, 'ws0', WS_FL, FLS)
            a.emit(f's_lshl4_add_u32 s6, s{S_MT}, s{S_NT}')
            a.emit('s_xor_b32 s6, s6, 1')
            a.emit(f's_add_u32 s7, s{S_LAYER}, 4')
            a.emit('s_lshl_b32 s7, s7, 8')
            a.emit('s_add_u32 s6, s6, s7')
            a.emit('s_lshl_b32 s6, s6, 8')
            a.emit('v_and_b32 v2, 3, v1')
            a.emit('v_lshlrev_b32 v2, 6, v2')
            a.emit(f's_mov_b32 s{S_CNT}, 0x100000')
        if P1 and DX == 2 and t == ZS:
            a.emit(f's_cmp_lg_u32 s{S_WV}, 4')
            a.emit(f's_cbranch_scc1 L_{kind}_xgo')
            a.emit('s_setprio 3')
            a.label(f'L_{kind}_xpoll')
            a.emit(f'buffer_load_dword v5, v2, s[{SC}:{SC+3}], s6 offen sc1')
            a.emit(f's_sub_u32 s{S_CNT}, s{S_CNT}, 1')
            a.emit(f's_cbranch_scc1 L_{kind}_xgo')
            a.emit('s_waitcnt vmcnt(0)')
            a.emit('v_cmp_ne_u32 vcc, 1, v5')
            a.emit(f's_cbranch_vccnz L_{kind}_xpoll')
            a.label(f'L_{kind}_xgo')
            a.emit('s_setprio 0')
        a.emit(f's_waitcnt vmcnt({min(63, min(after(t) for t in need)) if need else 0})')
        if not ('nobar2' in DBG and P1 and 1 < j < len(bars) - 1): a.emit('s_barrier')
    assert nxt == N and (ENV('LATE_W1', '2') == '2' or (kind == 'w2' or bars[-1] >= 9) and 'w1' in OT) and ENV('LATE_ATTN', '2') == '2'
    clr('e')
    if not P1: a.emit('s_waitcnt vmcnt(0)')
    if P1 and not DX:
        XL = ENV('LST') == 'x'
        a.emit('s_setprio 3')
        a.emit('s_waitcnt vmcnt(0) lgkmcnt(0)')
        a.emit('s_barrier')
        for i in range(NXC): a.emit(f'ds_read_b128 v[{32+4*i}:{35+4*i}], v2 offset:{1024*i}')
        for i in range(NXC):
            a.emit(f's_waitcnt lgkmcnt({NXC-1-i})')
            if 'noxs' not in DBG: a.emit(f'buffer_store_dwordx4 v[{32+4*i}:{35+4*i}], v3, s[{SP}:{SP+3}], s{8+(i>>2)} offen offset:{1024*(i&3)} sc1')
        if XL: lstamp(a, 0)
        a.emit(f's_xor_b32 s8, s8, {4*CH}')
        a.emit(f's_xor_b32 s9, s9, {4*CH}')
        a.emit('s_mov_b64 exec, 1')
        a.emit('s_waitcnt vmcnt(0)')
        a.emit(f'buffer_store_dword v4, off, s[{SC}:{SC+3}], s6 sc1')
        if XL: lstamp(a, 1)
        if PS: a.emit('s_barrier')
        if 'nopoll' in DBG: a.emit(f's_branch L_{kind}_xgo')
        a.label(f'L_{kind}_xpoll')
        a.emit(f'buffer_load_dword v5, off, s[{SC}:{SC+3}], s7 sc1')
        a.emit(f's_sub_u32 s{S_CNT}, s{S_CNT}, 1')
        a.emit(f's_cbranch_scc1 L_{kind}_xgo')
        a.emit('s_waitcnt vmcnt(0)')
        a.emit('v_cmp_ne_u32 vcc, 1, v5')
        a.emit(f's_cbranch_vccnz L_{kind}_xpoll')
        a.label(f'L_{kind}_xgo')
        a.emit('s_mov_b64 exec, -1')
        a.emit('s_mov_b32 m0, s5')
        if XL: lstamp(a, 2)
        for i in range(NXC):
            if i == 4: a.emit('s_add_u32 m0, s5, 4096')
            if not i & 3: a.emit('s_nop 0')
            if 'noxl' not in DBG: a.emit(f'buffer_load_dwordx4 v3, s[{SP}:{SP+3}], s{8+(i>>2)} offen offset:{1024*(i&3)} lds')
        a.emit('s_waitcnt vmcnt(0)')
        if XL: lstamp(a, 3)
        a.emit('s_setprio 0')
        a.emit('s_barrier')
    loader_end(a, kind)
    a.label(end)
    a.emit('s_endpgm')
    loader_first(a, kind)
    if SPC:
        i = a.lines.index(f'  s_cbranch_scc1 L_{kind}_compute')
        del a.lines[i - 1:i + 1]
    a.label(f'L_{kind}_c1')
    return 163840
```

```python
from common import *

T4 = ENV('T4', '1') == '1'
OBAR = ENV('OBAR', '0') == '1'
WG = ENV('WG', '1') == '1' and not LF1
assert not WG or ENV('WAG_W1', '0') + ENV('WAG_ATTN', '0') + ENV('LATE_W1', '2') == '002'
def big_loop(a, tag, N, S, STAGE, naddr, VB, VA, reads, mf, variants=None, select=None, post=None, ot=None, mid=(), halo=None, hooks=None, tail=None):
    if tail: N -= 1
    def addr():
        o = [f'v_add_u32_e64 v{VA+i}, s{S_SLOT}, v{VB+i}' for i in range(naddr)]
        o += [f's_add_u32 s{S_SLOT}, s{S_SLOT}, {STAGE}', f's_cmp_eq_u32 s{S_SLOT}, {S*STAGE}', f's_cselect_b32 s{S_SLOT}, 0, s{S_SLOT}']
        return o
    a.emit(f's_mov_b32 s{S_SLOT}, 0')
    for x in addr(): a.emit(x)
    if halo:
        if QS: a.emit('s_mov_b32 vcc_hi, 0')
        if hooks: own_pos(a, S_CNT)
        else: a.emit(f's_mov_b32 s{S_CNT}, {N}')
        if hooks: a.emit(f's_mul_i32 s{S_T}, s{S_LAYER}, {len(hooks)}')
        a.emit(f's_cmp_eq_u32 s{S_LAYER}, 0')
        a.emit(f's_cbranch_scc1 L_{tag}_nog')
    a.emit(f's_mov_b32 s{S_CNT}, {N - 1 if ot else N}')
    if ot:
        rd = (lambda s, ks: reads(s, ks, False)) if halo else reads
        for x in rd(0, 0): a.emit(x)
        a.emit('s_waitcnt lgkmcnt(0)')
        if LF1 and tag == 'w1':
            SH0, SH1 = [int(x) for x in ENV('SH', '18,3').split(',')]
            sd = rd(1, 1) + addr()
            for i, x in enumerate(ot(0)):
                a.emit(x)
                if i < len(sd): a.emit(sd[i])
                a.lines += ['@S'] * (1 if i < SH0 else SH1 if i >= len(sd) else 0)
            a.emit('s_waitcnt lgkmcnt(0)')
            for x in ot(1): a.emit(x); a.lines += ['@S'] * SH1
            assert mid[SH0].split()[0] not in ('s_addc_u32', 's_cselect_b32')
            while len(mid) > 1: a.lines[a.lines.index('@S')] = mid.pop(0)
        else:
            interleave(a, ot(0), rd(1, 1) + addr(), lead=1, per=1)
            a.emit('s_waitcnt lgkmcnt(0)')
            for x in ot(1): a.emit(x)
    rw = [x for x in reads(0, 0) if '_tr_' in x] if WG and ot else []
    rx = [x for x in reads(0, 0) if x not in rw]
    if halo:
        a.emit('s_barrier')
        for x in halo[0] + rw: a.emit(x)
        a.label(f'L_{tag}_nog')
    else:
        import pads
        for x in pads.chain('hv'): a.emit(x)
        MG = int(ENV('MG', '0'))
        if LF2 == 2: MG = len(mid) - 1
        a.lines += mid[:MG] + ['@W2G'] * (LF2 == 2); mid = mid[MG:]
        if ENV('S1') == 'a': stamp(a, 1)
        if not LF1: gbar(a, tag)
        for x in rw: a.emit(x)
        if ENV('S1') == 'b': stamp(a, 1)
    a.lines += mid
    if ENV('S1') == 'c': stamp(a, 1)
    if halo: a.emit(f's_cmp_eq_u32 s{S_LAYER}, 0')
    a.emit('s_barrier')
    if not ENV('S1') or halo: stamp(a, 1)
    if halo:
        a.emit(f's_cbranch_scc1 L_{tag}_first')
        for x in halo[1] + rx: a.emit(x)
        a.emit(f's_waitcnt lgkmcnt({min(15, len(rx))})')
        for x in halo[2]: a.emit(x)
        a.emit('s_waitcnt lgkmcnt(0)')
        a.emit(f's_branch L_{tag}_loop' + '1' * QS)
        a.label(f'L_{tag}_first')
        if not DS: a.emit(f's_load_dwordx2 s[{SC}:{SC+1}], s[0:1], 72')
    for x in reads(0, 0) if halo else rx: a.emit(x)
    a.emit('s_waitcnt lgkmcnt(0)')
    def loop(nm, m):
        la = int(ENV('LA_' + tag.upper(), '4'))
        w = a.lines.pop()
        assert w.split()[0] in ('s_waitcnt', 's_cbranch_scc1', 's_branch')
        a('.p2align 5')
        for _ in range(la - 1): a.emit('s_nop 0')
        a.lines.append(w)
        a.label(f'L_{tag}_loop{nm}')
        ad = addr()
        ad[-1] += f'\n  s_sub_u32 s{S_CNT}, s{S_CNT}, 1'
        qs = QS and halo
        m0 = m(0); m1 = m(1)
        if qs: m0[0] += f'\nL_{tag}_loop1:'
        interleave(a, m0, reads(1, 1) + ad, lead=1, per=1)
        a.emit('s_waitcnt lgkmcnt(0)')
        a.emit('s_barrier')
        tr = bool(TS) and ENV('STR') == tag
        if tr: a.emit('s_memrealtime s[92:93]')
        interleave(a, m1[:-1] if qs else m1, reads(0, 0) + [f's_cmp_lg_u32 s{S_CNT}, 0\n  ' + (f's_cselect_b32 vcc_lo, s{S_LAYER}, 0' if qs else 's_nop 0')] + ['v_mov_b32_dpp v3, v3 row_shr:1 row_mask:0xf bank_mask:0xf'] * tr, lead=1, per=1)
        a.emit('s_waitcnt lgkmcnt(0)')
        if tr: a.emit('v_writelane_b32 v3, s92, 0')
        if qs:
            a.emit(f's_cbranch_vccnz L_{tag}_loop1')
            a.emit(m1[-1])
        a.emit(f's_cbranch_scc1 L_{tag}_loop{nm}')
    if variants:
        select()
        vs = list(variants.items())
        for i, (nm, m) in enumerate(vs):
            loop(nm, m)
            if i + 1 < len(vs): a.emit(f's_branch L_{tag}_post')
        a.label(f'L_{tag}_post')
        post()
        a.emit(f's_branch L_{tag}_exit')
    if hooks and PO0 == 0:
        a.emit(f's_cmp_eq_u32 s{S_CNT}, 0')
        a.emit(f's_cbranch_scc1 L_{tag}_lend')
    loop('', mf)
    a.label(f'L_{tag}_lend')
    if hooks:
        a.emit(f's_add_u32 s{S_T}, s{S_T}, 1')
        a.emit(f's_cmp_gt_u32 s{S_T}, {len(hooks)}')
        a.emit(f's_cbranch_scc1 L_{tag}_exit')
        for i, (t, code) in enumerate(hooks):
            if i + 1 < len(hooks):
                a.emit(f's_cmp_lg_u32 s{S_T}, {i + 1}')
                a.emit(f's_cbranch_scc1 L_{tag}_hook{i}')
            t2 = hooks[i + 1][0] if i + 1 < len(hooks) else N
            if t < 0 <= t2:
                own_pos(a, S_CNT)
                a.emit(f's_sub_u32 s{S_CNT}, {t2 + t + 1}, s{S_CNT}')
                assert t2 + t + 1 > PO0 + POM
            else: a.emit(f's_mov_b32 s{S_CNT}, {abs(t2 - t)}')
            for x in code: a.emit(x)
            a.emit(f's_branch L_{tag}_loop')
            if i + 1 < len(hooks): a.label(f'L_{tag}_hook{i}')
    a.label(f'L_{tag}_exit')
    if tail and tail[0] is not None:
        interleave(a, mf(0), reads(1, 1) + tail[0], lead=1, per=1)
        a.emit('s_waitcnt lgkmcnt(0)')
        a.emit('s_barrier')
    for x in tail[1] if tail else []: a.emit(x)
    stamp(a, 2)

def weave(ms, fill):
    return [x for i, m in enumerate(ms) for x in [m] + fill.get(i, [])]

def stats_loads(a, vd, halo):
    a.emit(f's_and_b32 s3, s{S_WV}, 3')
    a.emit(f's_lshl_b32 s4, s{S_MT}, 7')
    a.emit('s_lshl_b32 s5, s3, 6')
    a.emit('s_add_u32 s5, s5, s4')
    a.emit('v_add_u32 v2, s5, v1')
    a.emit('s_sub_u32 s4, s4, 16')
    a.emit('v_and_b32 v3, 15, v1')
    a.emit('v_add_u32 v3, s4, v3')
    a.emit('v_max_i32 v3, 0, v3')
    a.emit('s_cmp_ge_u32 s3, 2')
    a.emit('s_cselect_b64 vcc, -1, 0')
    a.emit('v_cndmask_b32 v2, v2, v3, vcc')
    a.emit('v_lshlrev_b32 v2, 3, v2')
    a.emit('s_mov_b32 s3, 0')
    for j in range(16):
        a.emit(f'buffer_load_dwordx2 v[{vd+2*j}:{vd+2*j+1}], v2, s[{ST}:{ST+3}], s3 offen')
        if j < 15: a.emit('s_add_u32 s3, s3, 16384')
    return 16

def stats_finish(a, vs):
    a.emit(f'v_mul_f32 v{vs}, 0x3a800000, v{vs}')
    a.emit(f'v_mul_f32 v{vs+1}, 0x3a800000, v{vs+1}')
    a.emit(f'v_fma_f32 v{vs+1}, -v{vs}, v{vs}, v{vs+1}')
    a.emit(f'v_max_f32 v{vs+1}, 0, v{vs+1}')
    a.emit(f'v_add_f32 v{vs+1}, 0x3727c5ac, v{vs+1}')
    a.emit(f'v_rsq_f32 v{vs+1}, v{vs+1}')
    a.emit('s_nop 0')

def stats_reduce_store(a, vd, LST):
    for j in range(1, 8):
        a.emit(f'v_add_f32 v{vd}, v{vd}, v{vd+2*j}')
        a.emit(f'v_add_f32 v{vd+1}, v{vd+1}, v{vd+2*j+1}')
        a.emit(f'v_add_f32 v{vd+16}, v{vd+16}, v{vd+16+2*j}')
        a.emit(f'v_add_f32 v{vd+17}, v{vd+17}, v{vd+17+2*j}')
    a.emit(f'v_add_f32 v{vd}, v{vd}, v{vd+16}')
    a.emit(f'v_add_f32 v{vd+1}, v{vd+1}, v{vd+17}')
    stats_finish(a, vd)
    a.emit(f's_and_b32 s3, s{S_WV}, 3')
    a.emit('s_lshl_b32 s5, s3, 6')
    a.emit('s_add_u32 s5, s5, 16')
    a.emit('v_add_u32 v2, s5, v1')
    a.emit('v_and_b32 v3, 15, v1')
    a.emit('s_cmp_ge_u32 s3, 2')
    a.emit('s_cselect_b64 vcc, -1, 0')
    a.emit('v_cndmask_b32 v2, v2, v3, vcc')
    a.emit('v_lshlrev_b32 v2, 2, v2')
    a.emit(f'v_add_u32 v2, {LST}, v2')
    a.emit(f'ds_write2_b32 v2, v{vd}, v{vd+1} offset0:0 offset1:160')

VST, VSH, VCS, VBI = 18, 19, 22, 23
def stats4_setup(a, halo):
    a.emit(f's_and_b32 s3, s{S_WV}, 3')
    a.emit(f's_lshl2_add_u32 s4, s{S_MT}, s3')
    a.emit('s_lshl_b32 s4, s4, 8')
    a.emit('v_lshrrev_b32 v2, 4, v1')
    a.emit('v_and_b32 v3, 15, v1')
    a.emit('v_lshl_add_u32 v3, v3, 4, s4')
    a.emit(f'v_lshl_add_u32 v{VST}, v2, 14, v3')
    if halo:
        a.emit(f's_lshl_b32 s4, s{S_MT}, 5')
        a.emit('s_add_u32 s4, s4, s3')
        a.emit('s_sub_u32 s4, s4, 4')
        a.emit('s_max_i32 s4, s4, 0')
        a.emit('s_lshl_b32 s4, s4, 5')
        a.emit('v_lshrrev_b32 v2, 2, v1')
        a.emit('v_and_b32 v3, 3, v1')
        a.emit('v_lshl_add_u32 v3, v3, 3, s4')
        a.emit(f'v_lshl_add_u32 v{VSH}, v2, 14, v3')

def quad_loads(vd, vo, sd):
    o = []
    for j in range(4):
        if j: o.append(f's_mov_b32 s3, {j << 16}')
        o.append(f'buffer_load_dwordx4 v[{vd+4*j}:{vd+4*j+3}], v{vo}, s[{sd}:{sd+3}], {"s3" if j else 0} offen')
    return o

def stats4_loads(vd, halo):
    return quad_loads(vd, VST, ST) + ([f'buffer_load_dwordx2 v[{vd+16}:{vd+17}], v{VSH}, s[{ST}:{ST+3}], 0 offen'] if halo else [])

def pkadd(a, d, s):
    if ENV('UPK', '1') == '1':
        for i in range(2): a.emit(f'v_add_f32 v{d+i}, v{d+i}, v{s+i}')
    else: a.emit(f'v_pk_add_f32 v[{d}:{d+1}], v[{d}:{d+1}], v[{s}:{s+1}]')

def quad_sum(a, vd):
    pk = lambda d, s: pkadd(a, d, s)
    pk(vd, vd + 4); pk(vd + 2, vd + 6); pk(vd + 8, vd + 12); pk(vd + 10, vd + 14); pk(vd, vd + 8); pk(vd + 2, vd + 10)
    a.emit('s_nop 1')
    a.emit(f'v_permlane32_swap_b32 v{vd}, v{vd+2}')
    a.emit(f'v_permlane32_swap_b32 v{vd+1}, v{vd+3}')
    pk(vd, vd + 2)

def nan_chk(a, lab, halo):
    def chk():
        a.emit('v_cmp_u_f32 vcc, v32, v33')
        if halo:
            a.emit('v_cmp_u_f32 s[4:5], v48, v49')
            a.emit('s_or_b64 s[4:5], vcc, s[4:5]')
            a.emit(f's_cbranch_scc0 {lab}ok')
        else: a.emit(f's_cbranch_vccz {lab}ok')
        a.emit(f's_sub_u32 s{S_CNT}, s{S_CNT}, 1')
        a.emit(f's_cbranch_scc1 {lab}ok')
        for x in stats4_loads(32, halo): a.emit(x + (' sc1' if x.startswith('buf') else ''))
        a.emit('s_waitcnt vmcnt(0)')
        a.emit(f's_branch {lab}chk')
        a.label(f'{lab}ok')
    a.emit(f's_mov_b32 s{S_CNT}, 0x4000')
    a.label(f'{lab}chk')
    return chk

def split3(a, x, d, t, row):
    a.emit(f'v_cvt_pk_bf16_f32 v{d}, v{x}, v{x}')
    a.emit(f'v_and_b32 v{t}, 0xffff0000, v{d}')
    a.emit(f'v_sub_f32 v{t}, v{x}, v{t}')
    a.emit(f'v_cvt_pk_bf16_f32 v{d+1}, v{t if row else x}, v{t}')
    a.emit(f'v_and_b32 v{d+2}, 0xffff0000, v{d+1}')
    a.emit(f'v_sub_f32 v{t}, v{t}, v{d+2}')
    a.emit(f'v_cvt_pk_bf16_f32 v{d+2}, v{x if row else t}, v{t if row else x}')
    if not row: a.emit(f'v_mov_b32 v{d}, v{d+1}')

def stats4_store(a, vd, LST, halo, chk=None, fin=None):
    quad_sum(a, vd)
    if chk: chk()
    def allsum(r, op):
        a.emit(f'v_mov_b32 v{r+2}, v{r}')
        a.emit(f'v_mov_b32 v{r+3}, v{r+1}')
        a.emit('s_nop 0')
        a.emit(f'v_permlane{op}_swap_b32 v{r}, v{r+2}')
        a.emit(f'v_permlane{op}_swap_b32 v{r+1}, v{r+3}')
        pkadd(a, r, r + 2)
    allsum(vd, 16)
    if fin: return fin()
    stats_finish(a, vd)
    a.emit(f's_and_b32 s3, s{S_WV}, 3')
    a.emit('s_lshl_b32 s5, s3, 7')
    a.emit(f's_add_u32 s5, s5, {LST + 64}')
    a.emit('v_and_b32 v3, 15, v1')
    a.emit('v_lshrrev_b32 v2, 5, v1')
    a.emit('v_lshl_add_u32 v2, v3, 1, v2')
    a.emit('v_lshl_add_u32 v2, v2, 2, s5')
    a.emit(f'ds_write2_b32 v2, v{vd}, v{vd+1} offset0:0 offset1:160')
    if halo:
        h = vd + 16
        allsum(h, 32); allsum(h, 16)
        for r in (8, 4):
            a.emit('s_nop 1')
            for i in range(2): a.emit(f'v_add_f32_dpp v{h+i}, v{h+i}, v{h+i} row_ror:{r} row_mask:0xf bank_mask:0xf')
        stats_finish(a, h)
        a.emit('s_lshl_b32 s5, s3, 4')
        a.emit(f's_add_u32 s5, s5, {LST}')
        a.emit('v_and_b32 v3, 3, v1')
        a.emit('v_lshl_add_u32 v2, v3, 2, s5')
        a.emit(f'ds_write2_b32 v2, v{h}, v{h+1} offset0:0 offset1:160')

def gen_w1(a, tsidx, side, cs=(16, 16384, 0)):
    kind = 'w1'
    K = 1024; lda2 = 2048; ldw2 = 7168; ldo2 = 7168
    ot = kind in OT
    S = 3; LM = int(ENV('LM_W1', '2' if ot else '3'))
    STAGE = 16384 + 4 * 8192
    o2 = 'w2' in OT
    assert LM == 2 or not o2
    LST = OHB - 4096 if o2 else S * STAGE
    LCS = LST + 1280
    if MF: LST = OHB - 8192; LCS = LST + 4096
    c0 = -2.0 * 0.7978845608028654 * 1.4426950408889634
    c1 = c0 * 0.044715
    N = 16
    body = f'L_{kind}_body'; end = f'L_{kind}_end'
    VB, VA, VO = 4, 20, 12
    F = [32, 80]; ACC = 128
    acc = lambda jn, jm: ACC + (jn * 4 + jm) * 4
    fx = lambda s, jm: F[s] + jm * 4
    fw = lambda s, jn: F[s] + 16 + jn * 4
    a.label(f'L_{kind}_c0')
    if not MEGA: stub(a, f'{kind}l0_kernel', body, 0, tsidx, True)
    a.label(body)
    tile_map(a, LM, end)
    a.emit(f's_cmp_ge_u32 s{S_WV}, 4')
    a.emit(f's_cbranch_scc1 L_{kind}_loader')
    if ot and OBAR: a.emit('s_barrier')
    if NV:
        from gemm64y import w2_pre, w2_early
        w2_pre(a)
        tile_map(a, LM, None)
    a.emit(f's_and_b32 s{S_WM}, s{S_WV}, 1')
    a.emit(f's_lshr_b32 s{S_WN}, s{S_WV}, 1')
    a.emit('v_and_b32 v3, 15, v1')
    a.emit('v_lshrrev_b32 v2, 4, v1')
    a.emit(f's_lshl_b32 s8, s{S_WM}, 13')
    a.emit(f'v_lshl_add_u32 v{VB}, v1, 4, s8')
    nr = kind in NS and NSR
    wbase(a, 13, 17, nr=nr)
    a.emit(f's_lshl_b32 s9, s{S_WN}, 6')
    a.emit('v_xor_b32 v13, s9, v13')
    a.emit(f'v_add_u32 v{VB+1}, 16384, v13')
    a.emit(f'v_xor_b32 v{VB+2}, 32, v{VB+1}')
    a.emit('v_and_b32 v16, 1, v2')
    a.emit('v_lshrrev_b32 v17, 1, v2')
    if nr: a.emit('v_lshrrev_b32 v13, 2, v1')
    else:
        a.emit('v_bfe_u32 v13, v1, 2, 2')
        a.emit('v_lshl_add_u32 v13, v16, 3, v13')
        a.emit('v_lshl_add_u32 v13, v17, 5, v13')
    n2 = 'w2' in NS
    if n2:
        a.emit('v_and_b32 v14, 1, v1')
        a.emit('v_lshl_add_u32 v13, v13, 1, v14')
        a.emit(f'v_xor_b32 v14, s{S_WN}, v16')
        a.emit('v_lshl_add_u32 v13, v13, 1, v14')
        a.emit('v_bfe_u32 v14, v1, 1, 1')
        a.emit('v_lshl_add_u32 v13, v13, 1, v14')
    else:
        a.emit(f'v_xor_b32 v14, s{S_WN}, v16')
        a.emit('v_lshl_add_u32 v13, v13, 1, v14')
        a.emit('v_and_b32 v14, 3, v1')
        a.emit('v_lshl_add_u32 v13, v13, 2, v14')
    a.emit('v_lshlrev_b32 v13, 3, v13')
    a.emit(f'v_add_u32 v{VB+3}, {16384 + 3 * 8192}, v13')
    i0 = len(a.lines)
    a.emit(f's_lshl_b32 s8, s{S_MT}, 7')
    a.emit(f's_lshl_b32 s9, s{S_WM}, 6')
    a.emit('s_add_u32 s8, s8, s9')
    a.emit(f's_mul_i32 s8, s8, {ldo2}')
    a.emit('v_lshlrev_b32 v14, 8, v17')
    a.emit('v_lshl_add_u32 v14, v3, 4, v14')
    if o2:
        a.emit(f's_lshl3_add_u32 s9, s{S_WM}, s{S_WN}')
        a.emit('s_lshl_b32 s9, s9, 10')
        a.emit(f's_add_u32 s9, s9, {OHB}')
        if n2: a.emit('v_lshl_add_u32 v18, v1, 4, s9')
        else:
            a.emit('v_lshl_add_u32 v18, v16, 9, v14')
            a.emit('v_add_u32 v18, s9, v18')
        srd(a, SB, 'b2', 0, 2048)
        a.emit(f's_lshr_b32 s9, s{S_NT}, 3')
        a.emit(f's_and_b32 s10, s{S_NT}, 7')
        a.emit('s_lshl1_add_u32 s9, s10, s9')
        a.emit('s_lshl_b32 s9, s9, 7')
        a.emit('v_lshl_add_u32 v19, v2, 3, s9')
    a.emit('v_add_u32 v14, s8, v14')
    a.emit(f's_lshl_b32 s10, s{S_NT}, 11')
    a.emit(f's_lshl_b32 s9, s{S_WN}, 10')
    a.emit('s_add_u32 s9, s9, s10')
    a.emit(f'v_lshl_add_u32 v{VO}, v1, 4, s8' if n2 else f'v_lshl_add_u32 v{VO}, v16, 9, v14')
    a.emit(f'v_add_u32 v{VO}, s9, v{VO}')
    if n2 and not MF: a.emit('v_lshl_add_u32 v17, v16, 2, v17')
    a.emit(f'v_mul_u32_u24 v16, {16*ldo2}, v16')
    a.emit('s_lshr_b32 s9, s9, 1')
    a.emit(f'v_add3_u32 v{VO+1}, v16, v14, s9')
    if MF:
        assert n2 and OH
        a.emit(f's_lshl_b32 s9, s{S_WM}, 10')
        a.emit(f's_add_u32 s9, s9, {LST}')
        a.emit('v_lshl_add_u32 v14, v3, 4, s9')
        a.emit(f's_lshl_b32 s9, s{S_WN}, 9')
        a.emit(f's_add_u32 s9, s9, {LCS}')
        a.emit('v_lshl_add_u32 v15, v3, 4, s9')
        a.emit('v_bfe_u32 v16, v1, 2, 1')
        a.emit('v_bfe_u32 v17, v1, 3, 1')
        a.emit('v_lshl_add_u32 v17, v16, 2, v17')
        a.emit('v_and_b32 v16, 3, v1')
        a.emit('v_lshl_add_u32 v17, v17, 2, v16')
        a.emit(f's_lshl_b32 s9, s{S_WN}, 7')
        a.emit(f's_add_u32 s9, s9, {LCS}')
        a.emit('v_lshl_add_u32 v16, v17, 4, s9')
        if MF == 2:
            a.emit('v_bfe_u32 v17, v1, 4, 1')
            for r in (14, 15, 16): a.emit(f'v_lshl_add_u32 v{r}, v17, 3, v{r}')
        a.emit(f'v_mov_b32 v17, {LST + 2048 + 12}')
    else:
        a.emit(f's_lshl_b32 s9, s{S_WM}, 8')
        a.emit(f's_add_u32 s9, s9, {LST + 64}')
        a.emit('v_lshl_add_u32 v14, v3, 2, s9')
        a.emit(f's_lshl_b32 s9, s{S_WN}, 7')
        a.emit(f's_add_u32 s9, s9, {LCS}')
        a.emit('v_lshl_add_u32 v15, v2, 4, s9')
        a.emit(f's_lshl_b32 s9, s{S_WN}, {5 if n2 else 6}')
        a.emit(f's_add_u32 s9, s9, {LCS}')
        a.emit(f'v_lshl_add_u32 v16, v{17 if n2 else 2}, 4, s9')
        if OH: a.emit(f'v_mov_b32 v17, {LST}')
    for i in range(0 if ot else 112): a.emit(f'v_mov_b32 v{ACC+i}, 0')
    if not MEGA: a.emit('s_waitcnt lgkmcnt(0)')
    srd(a, SO, ENV('HB', 'ws'), WS_H, 2048 * 7168)
    HC = ENV('HC', '')
    if HC:
        G_ = int(ENV('HCG', '6'))
        a.emit('v_lshrrev_b32 v26, 4, v1')
        a.emit(f'v_mul_u32_u24 v26, {16*ldo2}, v26')
        a.emit('v_lshl_add_u32 v26, v3, 6, v26')
        if G_ == 7: a.emit('v_and_b32 v26, 0xffffff80, v26')
        a.emit(f's_lshl1_add_u32 s3, s{S_NT}, s{S_WN}')
        a.emit('s_lshl_b32 s4, s3, 9')
        a.emit('s_add_u32 s4, s4, s8')
        a.emit('s_add_u32 s4, s4, 32768')
        a.emit('s_lshl_b32 s3, s3, 10')
        a.emit('s_add_u32 s3, s3, s10')
        a.emit('s_add_u32 s3, s3, s8')
        a.emit(f's_add_u32 s3, s3, {48 * 1024}')
        a.emit('v_and_b32 v27, 0xfffffdff, v26')
        op = 'load' if 'l' in HC else 'store'; fl = ' sc1' if '1' in HC else ''
        a.emit(f'buffer_{op}_dword v28, v26, s[{SO}:{SO+3}], s3 offen{fl}')
        a.emit(f'buffer_{op}_dword v29, v26, s[{SO}:{SO+3}], s3 offen offset:2048{fl}')
        a.emit(f'buffer_{op}_dword v30, v27, s[{SO}:{SO+3}], s4 offen{fl}')
    if ENV('HS'):
        a.emit(f"s_and_b32 s3, s2, {ENV('HS')}")
        a.emit(f's_cselect_b32 s{SO+2}, 0, s{SO+2}')
    if not ot: code_touch(a, 'L_w2_c0', 'L_w2_c1', 192 if SPX else 128)
    PW = LF2 == 2
    if PW: a.lines.append('@W2A')
    mid = []
    if ot: mid = a.lines[i0:]; del a.lines[i0:]
    def reads(s, ks):
        o = []
        if 'noread' in DBG: return o
        for jm in range(4):
            o.append(f'ds_read_b128 v[{fx(s,jm)}:{fx(s,jm)+3}], v{VA} offset:{jm*2048+ks*1024}')
        for jn in range(7):
            for h in range(2):
                r = fw(s, jn) + 2 * h
                o.append(f'ds_read_b64_tr_b16 v[{r}:{r+1}], v{VA+1+(jn&1 if jn < 6 else 2)} offset:{((jn>>1)*8192 if jn < 6 else 0)+h*(2048 if nr else 512 if jn < 6 else 256)+ks*4096}')
        return o
    def mf(s):
        o = []
        if 'nomfma' in DBG: return ['s_nop 0']
        for jn, jm in mf_order(7, 4):
            if True:
                c = acc(jn, jm)
                o.append(f'v_mfma_f32_16x16x32_bf16 v[{c}:{c+3}], v[{fw(s,jn)}:{fw(s,jn)+3}], v[{fx(s,jm)}:{fx(s,jm)+3}], v[{c}:{c+3}]')
        return o
    zc = lambda x: x[:x.rindex(',')] + ', 0'
    CS = 32; BI = 60; STT = 88; CK = 96; T = 100; D = 108
    KK = 76; FS = 4
    PT = int(ENV('PTW', '1')) if MF == 2 else 0
    if PT: BI = 46; KK = 56; FS = 2
    FW = 3 if MF == 1 else 1
    def fold(jn, jm): return f'v_mfma_f32_16x16x{16 * (FW + 1 >> 1)}_bf16 v[{acc(jn,jm)}:{acc(jn,jm)+3}], v[{CS+FS*jn}:{CS+FS*jn+FW}], v[{BI+FS*jm}:{BI+FS*jm+FW}], v[{acc(jn,jm)}:{acc(jn,jm)+3}]'
    bia = [f'buffer_load_dwordx2 v[{OBIA[jn]}:{OBIA[jn]+1}], v19, s[{SB}:{SB+3}], 0 offen offset:{jn*32}' for jn in range(4 if o2 else 0)]
    mode = [f's_cmp_lg_u32 s{S_T}, 0', f's_cselect_b32 s{S_T}, {HALT}, 0'] + [x for r in ((SO, SX, SC) if PW else (SO,)) for x in (f's_add_u32 s{r}, s{r}, s{S_T}', f's_addc_u32 s{r+1}, s{r+1}, 0')]
    tail = None
    if MF:
        TK = 76 if PT else T
        rr = lambda jm, k: f'ds_read_b128 v[{KK+4*jm}:{KK+4*jm+3}], v{14 if MF == 1 else TK} offset:{2048+256*jm}' if k else f'ds_read_b{32*FW+32} v[{BI+FS*jm}:{BI+FS*jm+FW}], v14 offset:{256*jm}'
        rc = lambda jn: f'ds_read_b{32*FW+32} v[{CS+FS*jn}:{CS+FS*jn+FW}], v{15 if jn < 6 else 16} offset:{(jn>>1)*1024+(jn&1)*256}'
        assert ENV('ORD', '0312')[0] == '0'
        hd = [rr(0, 0), rc(0), rc(1), rr(0, 1), 'ds_read_b32 v17, v17']
        tl = [rr(jm, k) for jm in (1, 2, 3) for k in (0, 1)] + [rc(jn) for jn in (6, 2, 3, 4, 5)]
        ak = [f'v_and_b32 v{TK}, -9, v14'] * (MF == 2)
    if PT:
        rd = hd + tl; fl = {i: rd[2*i:2*i+2] for i in range(8)}
        for i in range(4): fl[9 + i] = bia[i:i+1]
        fl[14] = ['s_waitcnt lgkmcnt(0)', fold(0, 0), f'v_readfirstlane_b32 s{S_T}, v17']
        for i in range(4): fl[16 + i] = mode[2*i:2*i+2]
        if PT == 2:
            fl = {i: rd[i:i+1] for i in range(16)}
            for i in range(4): fl[16 + i] = bia[i:i+1]
            fl[9] += ['s_waitcnt lgkmcnt(5)']; fl[10] += [f'v_readfirstlane_b32 s{S_T}, v17']
            fl[20] = ['s_waitcnt lgkmcnt(0)', fold(0, 0)]
            for i in range(4): fl[21 + i] = mode[2*i:2*i+2]
        tail = (ak, weave(mf(1), fl))
    big_loop(a, kind, N, S, STAGE, 4, VB, VA, reads, mf, ot=(lambda s: mf(1) if s else [zc(x) for x in mf(0)]) if ot else None, mid=mid, tail=tail)
    if ENV('XSE'): a.emit(f"s_sleep {ENV('XSE')}")
    if MF and not PT:
        for x in hd[:2] + ak + hd[2:] + tl: a.emit(x)
    for jm in range(0 if MF else 4):
        a.emit(f'ds_read2_b32 v[{STT+2*jm}:{STT+2*jm+1}], v14 offset0:{16*jm} offset1:{160+16*jm}')
    for jn in range(0 if 'nofold' in DBG or MF else 7):
        a.emit(f'ds_read_b128 v[{CS+4*jn}:{CS+4*jn+3}], v{15 if jn < 6 else 16} offset:{(jn>>1)*256+(jn&1)*64}')
        a.emit(f'ds_read_b128 v[{BI+4*jn}:{BI+4*jn+3}], v{15 if jn < 6 else 16} offset:{1024+(jn>>1)*256+(jn&1)*64}')
    if HC: a.emit('s_waitcnt vmcnt(0)')
    if not PT:
        if OH and not MF: a.emit('ds_read_b32 v17, v17')
        for x in bia: a.emit(x)
        if MF:
            a.emit(f's_waitcnt lgkmcnt({len(tl) + 3})')
            a.emit(fold(0, 0))
            a.emit(f's_waitcnt lgkmcnt({len(tl)})')
        else:
            a.emit(f'v_mov_b32 v{CK}, {f2u(c0):#x}')
            a.emit(f'v_mov_b32 v{CK+1}, {f2u(c1):#x}')
            a.emit(f'v_mov_b32 v{CK+2}, 1.0')
            a.emit('s_waitcnt lgkmcnt(0)')
        if OH: a.emit(f'v_readfirstlane_b32 s{S_T}, v17')
        for jm in range(0 if MF else 4):
            a.emit(f'v_mul_f32 v{STT+2*jm}, v{STT+2*jm}, v{STT+2*jm+1}')
        for x in mode if OH else []: a.emit(x)
    def tile_math(jn, jm, d):
        c = acc(jn, jm)
        seqs = []
        ST2 = f'v[{STT+2*jm}:{STT+2*jm+1}]'
        for q in range(2):
            x = c + 2 * q; t = T + 2 * q + 4 * (jn & 1)
            X = f'v[{x}:{x+1}]'; TT = f'v[{t}:{t+1}]'
            seqs.append([
              f'v_pk_fma_f32 {TT}, v[{CS+4*jn+2*q}:{CS+4*jn+2*q+1}], {ST2}, v[{BI+4*jn+2*q}:{BI+4*jn+2*q+1}] op_sel:[0,0,0] op_sel_hi:[1,0,1] neg_lo:[0,1,0] neg_hi:[0,1,0]',
              f'v_pk_fma_f32 {X}, {X}, {ST2}, {TT} op_sel:[0,1,0] op_sel_hi:[1,1,1]',
              f'v_pk_mul_f32 {TT}, {X}, {X}',
              f'v_pk_fma_f32 {TT}, {TT}, v[{CK}:{CK+1}], v[{CK}:{CK+1}] op_sel:[0,1,0] op_sel_hi:[1,1,0]',
              f'v_pk_mul_f32 {TT}, {TT}, {X}',
              f'v_exp_f32 v{t}, v{t}\n  v_exp_f32 v{t+1}, v{t+1}',
              f'v_pk_add_f32 {TT}, {TT}, v[{CK+2}:{CK+3}] op_sel_hi:[1,0]',
              f'v_rcp_f32 v{t}, v{t}\n  v_rcp_f32 v{t+1}, v{t+1}',
              f'v_pk_mul_f32 {X}, {X}, {TT}',
              f'v_cvt_pk_bf16_f32 v{d+q}, v{x}, v{x+1}'])
        if MF:
            k0 = f'v[{KK+4*jm}:{KK+4*jm+1}]'; k2 = f'v[{KK+4*jm+2}:{KK+4*jm+3}]'
            for q in seqs:
                TT = q[0].split()[1][:-1]
                q[3] = q[3].replace(f'v[{CK}:{CK+1}]', k0)
                q[6] = f'v_pk_fma_f32 {TT}, {TT}, {k2}, {k2} op_sel_hi:[1,0,0]'
                del q[:2]
            seqs[0][3] = '@MF\n  ' + seqs[0][3]
            tiles.append((jn, jm))
        if 'nofold' in DBG: seqs = [q[2:] for q in seqs]
        if 'nofold1' in DBG: seqs = [q[1:] for q in seqs]
        if 'nogelu' in DBG: seqs = [q[:2] + q[-1:] for q in seqs]
        if 'halfgelu' in DBG: seqs = [q[:2] + q[5:6] + q[-2:] for q in seqs]
        for ia, ib in zip(*seqs):
            a.emit(ia); a.emit(ib)
    cnt = [0]; tiles = []; e0 = len(a.lines)
    def pair(t0, t1, vo, soff, big=False):
        d = D + 4 * (cnt[0] % 4); cnt[0] += 1
        tile_math(*t0, d); tile_math(*t1, d + 2)
        a.emit(f's_add_u32 s3, s10, {soff}' if big else f's_mov_b32 s3, {soff}')
        if not n2 or t0[0] == 6:
            a.emit('s_nop 0')
            a.emit(f'v_permlane16_swap_b32 v{d}, v{d+2}')
            a.emit(f'v_permlane16_swap_b32 v{d+1}, v{d+3}')
        a.emit(f'buffer_store_dwordx4 v[{d}:{d+3}], v{vo}, s[{SO}:{SO+3}], s3 offen' + (stf(kind) if str(t0[0] // 2) in ENV('WTP', '013' if OH else '0123') else ' ' + ENV('WTQ', '')))
        if o2 and t0[0] < 6: a.emit(f'ds_write_b128 v18, v[{d}:{d+3}] offset:{(t0[0] // 2 + 2) % 3 * 16384 + t0[1] * 2048}')
    pr = lambda p, jm: pair((2 * p, jm), (2 * p + 1, jm), VO, jm * 16 * ldo2 + ((16 + 32 * p) if OH == 2 else (46 + 2 * p)) * 1024 * (p > 0), p > 0 and OH != 2)
    od = lambda jm: pair((6, jm), (6, jm + 1), VO + 1, jm * 16 * ldo2 + 32768)
    order = [lambda jm=jm: pr(0, jm) for jm in range(4)] + [lambda: od(0), lambda: od(2)] + [lambda jm=jm, p=p: pr(p, jm) for jm in range(4) for p in (1, 2)]
    if OH:
        order = []
        for c in ENV('ORD', '0312'): order += [lambda: od(0), lambda: od(2)] if c == '3' else [lambda jm=jm, p=int(c): pr(p, jm) for jm in range(4)]
    EW = int(ENV('EW', '10'))
    if EF: order = [lambda: od(0), lambda: od(2)] + [lambda jm=jm, p=p: pr(p, jm) for p in (1, 2, 0) for jm in range(4)]
    for i, f in enumerate(order):
        f()
        if NV and i + 1 == EX: w2_early(a)
        if (EARLY or EF) and i + 1 == EW:
            a.emit(f's_waitcnt vmcnt({EW - (6 if EF else EARLY // 4)})')
            a.emit('s_barrier')
    for i, j in enumerate(j for j in range(e0, len(a.lines)) if '@MF' in a.lines[j]):
        a.lines[j] = a.lines[j].replace('@MF\n  ', ('s_waitcnt lgkmcnt(0)\n  ' if i == 1 and not PT else '') + (fold(*tiles[i + 1]) + '\n  ' if i + 1 < len(tiles) else ''))
    if ENV('ES'): stamp(a, 1)
    compute_end(a, kind)
    a.label(f'L_{kind}_loader')
    L = Loader(a, kind, K, lda2, ldw2, [0, f's{S_HD}', 's_add_u32 s4, s4, 128'], 128, S, STAGE, rot=int(ENV('ROT_W1', '0')), xblk=True, half=2048)
    L.ot = int(ot); L.loc = bool(LF1)
    L.setup()
    a.emit('s_waitcnt lgkmcnt(0)')
    if WD: srd(a, SW, 'w1', 0, 1024 * 7168)
    iw0 = len(a.lines)
    if WD == 'b':
        a.emit('s_waitcnt vmcnt(7)')
        a.emit('s_barrier')
    if ot and ENV('CT2', 'l') == 'l': code_touch(a, 'L_w2_c0', 'L_w2_c1', 192, loader=True)
    srd(a, SX, 'ws', WS_X1, 4 * MB)
    if not WD: srd(a, SW, 'w1', 0, 1024 * 7168)
    srd(a, ST, 'ws', WS_ST, 16 * 16384); srd(a, SC, 'ws0', WS_CS, 16 * 16384); srd(a, SB, 'b1', 0, 7168)
    def tail():
        stats_loads(a, 32, False)
        a.emit(f's_lshl_b32 s4, s{S_NT}, 7')
        a.emit(f's_lshl_b32 s5, s{S_WV}, 6')
        a.emit('s_add_u32 s4, s4, s5')
        a.emit(f's_add_u32 s4, s4, {1472 - 256}')
        a.emit(f's_lshl_b32 s5, s{S_NT}, 6')
        a.emit(f's_cmp_eq_u32 s{S_WV}, 4')
        a.emit('s_cselect_b32 s4, s5, s4')
        a.emit('s_lshr_b32 s5, s5, 1')
        a.emit('s_add_u32 s5, s5, 1024')
        a.emit(f's_cmp_eq_u32 s{S_WV}, 7')
        a.emit('s_cselect_b32 s4, s5, s4')
        a.emit('v_add_u32 v3, s4, v1')
        a.emit('v_lshlrev_b32 v2, 2, v3')
        a.emit('v_lshlrev_b32 v3, 1, v3')
        a.emit(f's_mov_b32 s3, {cs[2]}')
        for j in range(16):
            if j < cs[0]:
                a.emit(f'buffer_load_dword v{64+j}, v2, s[{SC}:{SC+3}], s3 offen')
                if j < cs[0] - 1: a.emit(f's_add_u32 s3, s3, {cs[1]}')
            else:
                a.emit(f'v_mov_b32 v{64+j}, 0')
        a.emit(f'buffer_load_ushort v80, v3, s[{SB}:{SB+3}], 0 offen')
        side(a, 'issue')
    ns = side(Asm(), 'issue')
    extra = None
    if VW:
        assert int(ENV('LM_W2', '2')) == 2
        srd(a, SR, 'w2', 0, 3584 * 2048)
        a.emit('s_and_b32 s5, s2, 3')
        a.emit('s_lshl_b32 s5, s5, 2')
        a.emit(f's_and_b32 s6, s{S_CU}, 3')
        a.emit('s_add_u32 s5, s5, s6')
        a.emit('s_and_b32 s6, s2, 4')
        a.emit('s_lshl_b32 s6, s6, 1')
        a.emit(f's_lshr_b32 s7, s{S_CU}, 2')
        a.emit('s_add_u32 s6, s6, s7')
        rot_table(a, S_TB, 5, 6, 'w2')
        a.emit(f's_add_u32 s5, s5, s{S_WV}')
        a.emit('s_and_b32 s5, s5, 3')
        wvoff(a, 16, 5, 6, 2048)
        sched = [int(c) for c in ENV('PSCH', '0111111111111122')]
        assert sum(sched) >= NV1
        def extra(i):
            o = []
            for p in range(sum(sched[:i]), min(NV1, sum(sched[:i + 1]))): o += park(56, 2 * p, 128 + 8 * p, 16, SR)
            return o
        ns += sum(x.startswith('buffer_load') for i in (13, 14, 15) for x in extra(i))
    if XD:
        extra = tail_parks('w2', SR, lambda b: srd(b, SR, 'w2', 0, 3584 * 2048))
        ns += 2 * sum(TSCH['w2'])
    if XD and ENV('PFL', '2') == '3':
        b = Asm(); side(b, 'late'); pl = [l.strip() for l in b.lines]
        pl = [l.replace('v2,', 'v18,').replace(', v2', ', v18').replace('s3', 's93') for l in pl]
        i0 = min(i for i, l in enumerate(pl) if l.startswith('buffer_load'))
        for l in pl[:i0]: a.emit(l)
        st = [int(x) for x in ENV('PFS', '6,10').split(',')]
        extra = lambda i: pl[i0 + 2 * st.index(i):i0 + 2 * st.index(i) + 2] if i in st else []
    def final():
        a.emit(f's_waitcnt vmcnt({ns})')
        if ENV('PFL', '2') == '1': side(a, 'late')
        stats_reduce_store(a, 32, LST)
        for j in range(8): a.emit(f'v_add_f32 v{64+j}, v{64+j}, v{72+j}')
        for j in range(4): a.emit(f'v_add_f32 v{64+j}, v{64+j}, v{68+j}')
        a.emit('v_add_f32 v64, v64, v65')
        a.emit('v_add_f32 v66, v66, v67')
        a.emit('v_add_f32 v64, v64, v66')
        a.emit('v_lshlrev_b32 v80, 16, v80')
        a.emit('v_lshlrev_b32 v2, 2, v0')
        a.emit(f'v_add_u32 v2, {LCS - 1024}, v2')
        a.emit('ds_write_b32 v2, v64')
        a.emit('ds_write_b32 v2, v80 offset:1024')
        a.emit('s_waitcnt lgkmcnt(0)')
    import sides
    if T4:
        stats4_setup(a, False)
        a.emit(f's_lshl_b32 s4, s{S_NT}, 7')
        a.emit(f's_lshl_b32 s5, s{S_WV}, 6')
        a.emit('s_add_u32 s4, s4, s5')
        a.emit(f's_add_u32 s4, s4, {1472 - 256}')
        a.emit(f's_lshl_b32 s5, s{S_NT}, 6')
        a.emit(f's_cmp_eq_u32 s{S_WV}, 4')
        a.emit('s_cselect_b32 s4, s5, s4')
        a.emit('s_lshr_b32 s5, s5, 1')
        a.emit('s_add_u32 s5, s5, 1024')
        a.emit(f's_cmp_eq_u32 s{S_WV}, 7')
        a.emit('s_cselect_b32 s4, s5, s4')
        a.emit('v_and_b32 v3, 15, v1')
        a.emit('v_lshl_add_u32 v3, v3, 2, s4')
        a.emit('v_lshrrev_b32 v2, 4, v1')
        a.emit(f'v_add_lshl_u32 v{VBI}, v3, v2, 1')
        a.emit('v_lshlrev_b32 v3, 2, v3')
        a.emit(f'v_lshl_add_u32 v{VCS}, v2, 14, v3')
        CSI = int(ENV('CSI', '14')); STI = int(ENV('STI', '14'))
        LP2 = ENV('LP2', ''); LP0 = int(ENV('LP0', '5'))
        if LP2:
            a.emit(f's_and_b32 s3, s{S_MT}, 3')
            a.emit(f's_lshl2_add_u32 s3, s3, s{S_WV}')
            a.emit('s_sub_u32 s3, s3, 4')
            a.emit(f's_and_b32 s4, s{S_NT}, 7')
            a.emit('s_lshl_b32 s4, s4, 8')
            a.emit('s_lshl_b32 s5, s3, 14')
            a.emit('s_add_u32 s5, s5, s4')
            a.emit(f's_lshl_b32 s{SR}, s{S_NT}, 18')
            a.emit(f's_add_u32 s{SR}, s{SR}, {24 << 17}')
            a.emit(f's_add_u32 s{SR}, s{SR}, s5')
            a.emit(f's_and_b32 s{SR+1}, s{S_NT}, 8')
            a.emit(f's_lshl_b32 s{SR+1}, s{SR+1}, 16')
            a.emit(f's_add_u32 s{SR+1}, s{SR+1}, {16 << 17}')
            a.emit(f's_add_u32 s{SR+1}, s{SR+1}, s5')
            a.emit('s_lshr_b32 s5, s3, 1')
            a.emit(f's_lshl3_add_u32 s5, s{S_NT}, s5')
            a.emit('s_lshl_b32 s5, s5, 14')
            a.emit('s_and_b32 s3, s3, 1')
            a.emit('s_lshl_b32 s3, s3, 7')
            a.emit('s_add_u32 s4, s4, s3')
            a.emit(f's_add_u32 s{SR+2}, s5, s4')
            a.emit(f's_add_u32 s{SR+3}, s{SR+1}, {2 << 17}')
        HP = int(ENV('HP', '-1'))
        if HP >= 0:
            srd(a, SR, 'ws', WS_H, 2048 * 7168)
            a.emit(f's_and_b32 s3, s{S_WV}, 3')
            a.emit(f's_lshl2_add_u32 s3, s{S_MT}, s3')
            a.emit(f's_mul_i32 s3, s3, {32 * ldo2}')
            a.emit(f's_lshl_b32 s4, s{S_NT}, 12')
            a.emit('s_add_u32 s4, s4, s3')
            a.emit(f's_add_u32 s4, s4, {48 * 1024}')
            a.emit('v_lshl_add_u32 v24, v1, 6, s4')
            a.emit(f'v_add_u32 v25, {16 * ldo2}, v24')
            a.emit(f's_lshl_b32 s4, s{S_NT}, 10')
            a.emit('s_add_u32 s4, s4, s3')
            a.emit(f's_add_u32 s4, s4, {32 * 1024}')
            a.emit('v_and_b32 v3, 15, v1')
            a.emit('v_lshl_add_u32 v3, v3, 6, s4')
            a.emit('v_bfe_u32 v2, v1, 4, 1')
            a.emit(f'v_mul_u32_u24 v2, {16 * ldo2}, v2')
            a.emit('v_add_u32 v26, v2, v3')
            a.emit('v_and_b32 v3, 15, v1')
        CPI = int(ENV('CPI', '-1'))
        assert CPI < 0 or CPI >= CSI + 3 or (CSI, CPI, STI) == (13, 14, 14)
        LSK = int(ENV('LSK', '1')) if MF else 0; VC = 200
        def l0(o, lab, w):
            return [f's_cmp_lg_u32 s{S_LAYER}, 0', f's_cbranch_scc1 {lab}'] + o + ([f's_branch {lab}e', f'{lab}:', f's_waitcnt vmcnt({w})', f'{lab}e:'] if w >= 0 else [f'{lab}:']) if LSK else o
        def cols():
            b = Asm()
            b.emit(f's_and_b32 s3, s{S_WV}, 3')
            b.emit('s_lshl_b32 s5, s3, 9')
            b.emit(f's_add_u32 s5, s5, {LST}')
            b.emit('v_lshrrev_b32 v2, 5, v1')
            b.emit('v_and_b32 v3, 15, v1')
            b.emit('v_lshl_add_u32 v2, v3, 1, v2')
            b.emit(f'v_lshl_add_u32 v{VC+5}, v2, 4, s5')
            quad_sum(b, 64)
            b.emit(f'v_lshl_or_b32 v{VC+3}, v80, 16, v80')
            b.emit('s_lshl_b32 s5, s3, 10')
            b.emit(f's_add_u32 s5, s5, {LCS}')
            b.emit('v_permlane16_swap_b32 v64, v65')
            b.emit('v_lshrrev_b32 v2, 4, v1')
            b.emit('v_lshl_add_u32 v2, v3, 2, v2')
            b.emit(f'v_lshl_add_u32 v{VC+4}, v2, 4, s5')
            b.emit('v_add_f32 v64, v64, v65')
            split3(b, 64, VC, 65, False)
            return l0([l.strip() for l in b.lines], 'L_w1_cp', -1)
        def extra4(i):
            o = []
            if LP2 and i == LP0 - 1:
                b = Asm(); srd(b, SO, 'w2', 0, 3584 * 2048); o += [l.strip() for l in b.lines]
            if LP2 and LP0 <= i < LP0 + 8:
                for k, c in enumerate('ABCD'):
                    if c in LP2: o += [f's_buffer_load_dword s84, s[{SO}:{SO+3}], s{SR+k} offset:{64*j}' for j in range(2 if c == 'C' else 4)] + [f's_add_u32 s{SR+k}, s{SR+k}, 2048']
            if i == STI and LSK: o += stats4_loads(32, False)
            if i == CSI: o += l0(quad_loads(64, VCS, SC) + [f'buffer_load_ushort v80, v{VBI}, s[{SB}:{SB+3}], 0 offen'], 'L_w1_cl', 11 if CSI == 13 else 4)
            if i == STI and not LSK: o += stats4_loads(32, False)
            if MF and i == CPI: o += ['s_waitcnt vmcnt(4)'] * (CSI == 13) + cols()
            HPD = int(ENV('HPD', '0'))
            if HP >= 0: o += [f"buffer_{ENV('HPO', 'load')}_dword v{84+j}, v{24+j}, s[{SR}:{SR+3}], 0 offen {ENV('HPF', '')}" for j in range(3) if i == HP + j * HPD]
            return o
        def final5():
            def fin():
                a.emit('v_mul_f32 v32, 0x3a800000, v32')
                a.emit('v_mul_f32 v33, 0x3a800000, v33')
                a.emit('v_fma_f32 v33, -v32, v32, v33')
                a.emit('v_max_f32 v33, 0, v33')
                a.emit('v_add_f32 v33, 0x3727c5ac, v33')
                a.emit('v_rsq_f32 v34, v33')
                a.emit(f'v_mul_f32 v32, {-0.25 * MF}, v32')
                split3(a, 32, 36, 35, True)
                a.emit('v_mul_f32 v42, v33, v34')
                a.emit(f'v_mul_f32 v40, {f2u(c0):#x}, v34')
                a.emit('v_mul_f32 v34, v34, v34')
                a.emit(f'v_mul_f32 v33, {0.25 * MF}, v42')
                a.emit(f'v_mul_f32 v34, {f2u(0.044715):#x}, v34')
                a.emit('v_cvt_pk_bf16_f32 v35, v33, v33')
                a.emit('v_mul_f32 v41, v40, v34')
                a.emit('v_and_b32 v35, 0xffff0000, v35')
                if not GM: a.emit(f'v_xor_b32_dpp v43, v{VMD}, v{VMD} row_ror:2 row_mask:0xf bank_mask:0xf')
                a.emit('v_sub_f32 v35, v33, v35')
                if not GM: a.emit('v_cmp_ne_u32 vcc, 0, v43')
                a.emit('v_cvt_pk_bf16_f32 v39, v33, v35')
                if not GM: a.emit(f's_or_b32 s{S_MD}, vcc_lo, vcc_hi')
                a.emit(f'v_mov_b32 v43, s{S_MD}')
                a.emit(f'ds_write_b128 v{VC+5}, v[36:39]')
                a.emit(f'ds_write_b128 v{VC+5}, v[40:43] offset:2048')
            assert ENV('PW_W1', '4') == '4'
            for x in cols() if CPI < 0 else []: a.emit(x)
            a.emit(f'ds_write_b128 v{VC+4}, v[{VC}:{VC+3}]')
            assert CSI in (13, 14) and STI == 14 or not LSK
            stats4_store(a, 32, LST, False, fin=fin)
            a.emit('s_waitcnt lgkmcnt(0)')
        def final4():
            a.emit(f"s_waitcnt vmcnt({3 if HP >= 14 and ENV('HPO', 'load') == 'load' else 0})")
            if MF: return final5()
            stats4_store(a, 32, LST, False, nan_chk(a, 'L_w1_s', False) if SF else None)
            quad_sum(a, 64)
            a.emit('v_lshlrev_b32 v80, 16, v80')
            a.emit('s_lshl_b32 s5, s3, 8')
            a.emit(f's_add_u32 s5, s5, {LCS}')
            a.emit('v_permlane16_swap_b32 v64, v65')
            a.emit('v_lshrrev_b32 v2, 4, v1')
            a.emit('v_lshl_add_u32 v2, v3, 2, v2')
            a.emit('v_lshl_add_u32 v2, v2, 2, s5')
            a.emit('v_add_f32 v64, v64, v65')
            a.emit('ds_write2st64_b32 v2, v64, v80 offset0:0 offset1:4')
            if OH:
                assert ENV('PW_W1', '4') == '4'
                if GM: a.emit(f'v_mov_b32 v2, {LST}')
                else:
                    a.emit(f'v_xor_b32_dpp v64, v{VMD}, v{VMD} row_ror:2 row_mask:0xf bank_mask:0xf')
                    a.emit(f's_lshl2_add_u32 s5, s3, {LST}')
                    a.emit('v_cmp_ne_u32 vcc, 0, v64')
                    a.emit('v_mov_b32 v2, s5')
                    a.emit(f's_or_b32 s{S_MD}, vcc_lo, vcc_hi')
                a.emit(f'v_mov_b32 v64, s{S_MD}')
                a.emit('ds_write_b32 v2, v64')
            a.emit('s_waitcnt lgkmcnt(0)')
        assert ns == 0
        pst = sides.stouch_post(a, kind)
        if WD == 'c':
            a.emit('s_waitcnt vmcnt(0)')
            a.emit('s_barrier')
        elif WD: L.after_own = a.lines[iw0:]; del a.lines[iw0:]
        if LF1: L.run(final=final4, extra=extra4, post=pst, dep=lambda pf: dep_loc(a, kind, pf, lambda: a.emit(f's_waitcnt vmcnt({L.npre - 6})')))
        else: L.run(final=final4, extra=extra4, post=pst, dep=lambda pf: dep_wait(a, kind, postf=pf, preg=(lambda: a.emit('s_waitcnt vmcnt(7)')) if WG else None, obar=L.npre - 6 if ot and OBAR else 0, pref=(lambda: a.emit(f's_waitcnt vmcnt({L.npre - 7})')) if ot and not OBAR else None))
    else: L.run(tail_issue=tail, ntail_vm=17 + cs[0] + side(Asm(), 'issue'), final=final, extra=extra, post=sides.stouch_post(a, kind),
          dep=(lambda pf: dep_wait(a, kind, postf=pf)) if MEGA else None)
    if ENV('PFL', '2') == '2': side(a, 'late')
    if not VW: side(a, 'finish')
    loader_end(a, kind)
    a.label(end)
    a.emit('s_endpgm')
    loader_first(a, kind)
    if not MEGA:
        a(KD.format(name=f'{kind}l0_kernel'))
        stub(a, f'{kind}l1_kernel', body, 1, tsidx + 4, False)
        a(KD.format(name=f'{kind}l1_kernel'))
    a.label(f'L_{kind}_c1')
    return LCS + (4096 if MF else 2048)
```

```python
from common import *
from gemmw1 import *

def res_addr(a, swv, sd, v):
    assert int(ENV('LM_WO', '2')) == 2 and int(ENV('LM_W2', '2')) == 2
    srd(a, sd, 'A_x', 0, 4 * MB)
    a.emit('s_and_b32 s3, s2, 3')
    a.emit(f's_and_b32 s4, s{S_CU}, 3')
    a.emit('s_lshl2_add_u32 s3, s3, s4')
    a.emit(f's_lshl2_add_u32 s3, s3, s{swv}')
    a.emit('s_lshl_b32 s3, s3, 16')
    a.emit('s_bfe_u32 s4, s2, 0x10002' if SPX else 's_and_b32 s4, s2, 4')
    a.emit(f's_lshr_b32 s5, s{S_CU}, 2')
    a.emit('s_lshl1_add_u32 s4, s5, s4' if SPX else 's_lshl1_add_u32 s4, s4, s5')
    a.emit('s_lshl_b32 s4, s4, 7')
    a.emit('s_add_u32 s3, s3, s4')
    a.emit('s_add_u32 s4, s3, 32768')
    a.emit(f'v_and_b32 v{v}, 15, v1')
    a.emit(f'v_lshlrev_b32 v{v+1}, 1, v1')
    a.emit(f'v_and_b32 v{v+1}, 32, v{v+1}')
    a.emit(f'v_lshl_add_u32 v{v}, v{v}, 11, v{v+1}')
    a.emit(f'v_lshrrev_b32 v{v+1}, 1, v1')
    a.emit(f'v_and_b32 v{v+1}, 16, v{v+1}')
    a.emit(f'v_add_u32 v{v}, v{v}, v{v+1}')

def dbg_off(a, v):
    a.emit(f's_lshl_b32 s3, s{S_MT}, 2')
    a.emit('s_sub_u32 s3, s3, 4')
    a.emit(f'v_and_b32 v{v}, 7, v1')
    a.emit(f'v_add_u32 v{v}, s3, v{v}')
    a.emit(f'v_max_i32 v{v}, 0, v{v}')
    a.emit(f'v_lshlrev_b32 v{v}, 2, v{v}')

def res_loads(vd, v, sd):
    return [f'buffer_load_dwordx4 v[{vd+4*i}:{vd+3+4*i}], v{v}, s[{sd}:{sd+3}], s{3+(i>>1)} offen offset:{64*(i&1)}' for i in range(4)]

def gen_qkv(a, tsidx, side):
    kind = 'attn'
    K = 1024; lda2 = 2048; ldw2 = 6144
    S = 3; LM = int(ENV('LM_QKV', '3'))
    XH = 16384 + 6 * 4096
    STAGE = XH + 2048
    LST = S * STAGE
    PT = int(ENV('PTQ', '2'))
    EX = 1024 + (2 * STAGE if PT == 2 else 0)
    N = 16
    body = f'L_{kind}_body'; end = f'L_{kind}_end'
    VB, VA = 4, 10
    VXW, VPE, VPO, VCE, VCO, VVE, VVO, VS1, VS4, VKA, VKB, MAP, MAC, MBP, MBC, VO = range(16, 32)
    M_ODD, M_UPA, M_UPB, M_FA, M_FB = 48, 50, 52, 54, 14
    F = [32, 76]; ACC = 128; HACC = 224; ONES = 236
    acc = lambda jn, jm: ACC + (jn * 4 + jm) * 4
    fx = lambda s, jm: F[s] + jm * 4
    fw = lambda s, jn: F[s] + 20 + jn * 4
    a.label(f'L_{kind}_c0')
    stub(a, f'{kind}l0_kernel', body, 0, tsidx, True)
    a.label(body)
    ot = kind in OT
    HX = LST + 1280
    tile_map(a, LM, end)
    if ot and LM != 2:
        a.emit(f's_cmp_eq_u32 s{S_LAYER}, 0')
        a.emit(f's_cbranch_scc1 L_{kind}_map')
        tile_map(a, 2, None)
        a.label(f'L_{kind}_map')
    a.emit(f's_cmp_ge_u32 s{S_WV}, 4')
    a.emit(f's_cbranch_scc1 L_{kind}_loader')
    if ENV('CTE', '1') == '1': code_touch(a, 'L_attn_c0', 'L_w2_c1', int(ENV('CTN', '320')))
    a.emit(f's_and_b32 s{S_WM}, s{S_WV}, 1')
    a.emit(f's_lshr_b32 s{S_WN}, s{S_WV}, 1')
    a.emit('v_and_b32 v3, 31, v1')
    a.emit('v_lshlrev_b32 v3, 2, v3')
    a.emit(f'v_add_u32 v3, {XH}, v3')
    for i in range(4): a.emit(f'v_mov_b32 v{ONES+i}, 0x3f803f80')
    a.emit(f'ds_write_b32 v3, v{ONES}')
    a.emit(f'ds_write_b32 v3, v{ONES} offset:{STAGE}')
    a.emit(f'v_add_u32 v3, {2*STAGE}, v3')
    a.emit(f'ds_write_b32 v3, v{ONES}')
    if ot: a.emit(f'ds_write_b32 v3, v{ONES} offset:{HX - XH - 2 * STAGE}')
    a.emit('v_and_b32 v3, 15, v1')
    a.emit('v_lshrrev_b32 v2, 4, v1')
    a.emit('v_lshrrev_b32 v33, 1, v3')
    a.emit(f's_lshl_b32 s8, s{S_WM}, 13')
    for ks in range(2):
        if ks: a.emit(f'v_add_u32 v{VB+ks}, 4, v2')
        a.emit(f'v_xor_b32 v{VB+ks}, v{VB+ks if ks else 2}, v33')
        a.emit(f'v_lshlrev_b32 v{VB+ks}, 4, v{VB+ks}')
        a.emit(f'v_lshl_add_u32 v{VB+ks}, v3, 7, v{VB+ks}')
        a.emit(f'v_add_u32 v{VB+4+ks}, {XH}, v{VB+ks}')
        a.emit(f'v_add_u32 v{VB+ks}, s8, v{VB+ks}')
    wbase(a, 34, 33)
    a.emit(f's_lshl_b32 s8, s{S_WV}, 5')
    a.emit('v_xor_b32 v34, s8, v34')
    a.emit(f'v_add_u32 v{VB+2}, 16384, v34')
    a.emit(f'v_xor_b32 v{VB+3}, 32, v{VB+2}')
    i0 = len(a.lines)
    a.emit('v_and_b32 v35, 1, v2')
    a.emit(f'v_xor_b32 v35, s{S_WM}, v35')
    a.emit(f's_lshl_b32 s8, s{S_MT}, 7')
    a.emit(f's_lshl_b32 s9, s{S_WM}, 6')
    a.emit('s_add_u32 s8, s8, s9')
    if OH:
        a.emit('s_mul_i32 s10, s8, 7')
        a.emit(f's_lshl{3 - OH}_add_u32 s11, s{S_NT}, s{S_WN}')
        a.emit('s_add_u32 s10, s10, s11')
        a.emit('s_lshl_b32 s10, s10, 10')
    else:
        a.emit(f's_add_u32 s10, s8, s{S_NT}')
        a.emit('s_lshl_b32 s10, s10, 11')
        a.emit(f's_lshl_b32 s11, s{S_WN}, 10')
        a.emit('s_add_u32 s10, s10, s11')
    if 'wo' in NS: a.emit(f'v_lshl_add_u32 v{VO}, v1, 4, s10')
    else:
        a.emit('v_lshl_add_u32 v33, v3, 4, s10')
        a.emit('v_lshl_add_u32 v33, v35, 9, v33')
        a.emit('v_lshrrev_b32 v34, 1, v2')
        a.emit(f'v_lshl_add_u32 v{VO}, v34, 8, v33')
    a.emit(f's_mul_i32 s10, s{S_WN}, {14336 if XD else 24576}')
    a.emit(f's_add_u32 s10, s10, {EX}')
    a.emit(f's_lshl_b32 s11, s{S_WM}, 10')
    a.emit('s_add_u32 s4, s10, s11')
    a.emit('s_sub_u32 s5, s10, s11')
    a.emit(f's_mul_i32 s6, s{S_WM}, 6144')
    a.emit(f'v_lshl_add_u32 v{VXW}, v1, 4, s4')
    a.emit(f'v_add_u32 v{VPE}, s6, v{VXW}')
    a.emit(f'v_lshl_add_u32 v{VPO}, v1, 4, s5')
    a.emit(f'v_add_u32 v{VPO}, s6, v{VPO}')
    a.emit(f'v_lshl_add_u32 v{VCE}, v2, 8, s4')
    a.emit(f'v_lshl_add_u32 v{VCO}, v2, 8, s5')
    a.emit(f'v_lshl_add_u32 v{VVE}, v3, 4, s4')
    a.emit(f'v_lshl_add_u32 v{VVO}, v3, 4, s5')
    a.emit(f's_lshl_b32 s10, s{S_WM}, 8')
    a.emit(f's_add_u32 s10, s10, {LST}')
    a.emit(f'v_lshl_add_u32 v{VS1}, v3, 2, s10')
    a.emit(f'v_lshl_add_u32 v{VS4}, v2, 4, s10')
    a.emit('v_and_b32 v33, 1, v3')
    a.emit(f'v_cmp_eq_u32 s[{M_ODD}:{M_ODD+1}], 1, v33')
    a.emit('v_lshl_add_u32 v34, v2, 2, v33')
    a.emit('v_add_u32 v35, 2, v34')
    a.emit(f'v_cmp_gt_u32 s[{M_UPA}:{M_UPA+1}], v34, v3')
    a.emit(f'v_cmp_gt_u32 s[{M_UPB}:{M_UPB+1}], v35, v3')
    a.emit('v_mov_b32 v36, 0xffff')
    a.emit('v_mov_b32 v37, 0xffff0000')
    a.emit(f'v_cndmask_b32 v36, v36, v37, s[{M_ODD}:{M_ODD+1}]')
    a.emit(f's_add_u32 s10, s10, {640 + 64}')
    a.emit('v_lshl_add_u32 v34, v34, 2, s10')
    a.emit('v_lshl_add_u32 v35, v35, 2, s10')
    a.emit('v_subrev_u32 v38, 64, v34')
    a.emit('v_subrev_u32 v39, 64, v35')
    a.emit(f'v_cndmask_b32 v{VKA}, v34, v38, s[{M_UPA}:{M_UPA+1}]')
    a.emit(f'v_cndmask_b32 v{VKB}, v35, v39, s[{M_UPB}:{M_UPB+1}]')
    a.emit(f'v_cndmask_b32 v{MAP}, 0, v36, s[{M_UPA}:{M_UPA+1}]')
    a.emit(f'v_cndmask_b32 v{MBP}, 0, v36, s[{M_UPB}:{M_UPB+1}]')
    a.emit(f'v_xor_b32 v{MAC}, v{MAP}, v36')
    a.emit(f'v_xor_b32 v{MBC}, v{MBP}, v36')
    a.emit('s_cmp_eq_u32 s8, 0')
    a.emit(f's_cselect_b64 s[{M_FA}:{M_FA+1}], s[{M_UPA}:{M_UPA+1}], 0')
    a.emit(f's_cselect_b64 s[{M_FB}:{M_FB+1}], s[{M_UPB}:{M_UPB+1}], 0')
    if QS:
        a.emit('s_waitcnt lgkmcnt(0)')
        srd(a, ST, 'ws0', WS_ST0, 20 * 16384)
    if ot:
        a.emit(f's_cmp_lg_u32 s{S_LAYER}, 0')
        a.emit(f's_cbranch_scc1 L_{kind}_nozero')
    for i in list(range(122 if DS else 120, 236)) + ([] if XD else list(range(240, 256))): a.emit(f'v_mov_b32 v{i}, 0')
    if DS:
        a.emit('s_waitcnt lgkmcnt(0)')
        a.emit(f's_lshl_b32 s3, s{S_WN}, 5')
        a.emit('s_add_u32 s3, s3, s8')
        a.emit(f's_lshl_b32 s4, s{S_NT}, 14')
        a.emit('s_lshl3_add_u32 s3, s3, s4')
        a.emit('v_lshrrev_b32 v121, 1, v2')
        a.emit('v_lshl_add_u32 v121, v121, 4, v3')
        a.emit('v_and_b32 v120, 1, v2')
        a.emit('v_lshl_add_u32 v121, v121, 1, v120')
        a.emit('v_lshl_add_u32 v120, v121, 2, s3')
        if not QS: srd(a, ST, 'ws0', WS_ST0, 16 * 16384)
        srd(a, SP, 'ws0', WS_FL, FLS)
        a.emit('s_lshl_b32 s3, s2, 11')
        if D2:
            a.emit(f's_cmp_lg_u32 s{S_WV}, 0')
            a.emit(f's_cbranch_scc1 L_{kind}_noclr')
            a.emit(f's_lshl_b32 s5, s{S_MT}, 10')
            a.emit('s_add_u32 s4, s4, s5')
            a.emit('v_lshlrev_b32 v121, 4, v1')
            for i in range(4): a.emit(f'v_mov_b32 v{40+i}, -1')
            a.emit(f'buffer_store_dwordx4 v[40:43], v121, s[{ST}:{ST+3}], s4 offen sc1')
            for i in range(2): a.emit(f'buffer_store_dwordx4 v[128:131], v121, s[{SP}:{SP+3}], s3 offen offset:{1024*i} sc1')
            if GM:
                a.emit('s_getreg_b32 s5, hwreg(HW_REG_XCC_ID, 0, 4)')
                if ENV('FB'): a.emit(f"s_and_b32 s5, s2, {ENV('FB')}")
                a.emit('v_lshl_or_b32 v126, s5, 1, 1')
            else: a.emit('v_mov_b32 v126, 1')
            a.label(f'L_{kind}_noclr')
        else:
            a.emit('v_lshlrev_b32 v121, 3, v0')
            a.emit(f'buffer_store_dwordx2 v[126:127], v121, s[{SP}:{SP+3}], s3 offen sc1')
            dbg_off(a, 121)
        a.emit(f's_and_b32 s{SC+1}, s{SC+1}, 0xffff')
        a.emit(f's_mov_b32 s{SC+2}, 256')
        a.emit(f's_mov_b32 s{SC+3}, 0x00020000')
        a.emit('s_mov_b32 s7, 0x3f803f80')
    if ot: a.label(f'L_{kind}_nozero')
    a.emit('s_waitcnt lgkmcnt(0)')
    if QS:
        assert D2
        a.emit(f's_lshl4_add_u32 s3, s{S_MT}, s{S_NT}')
        a.emit(f's_lshl2_add_u32 s3, s3, s{S_WV}')
        a.emit('s_lshl2_add_u32 s3, s3, 0x4000')
        a.emit('v_lshl_add_u32 v121, v3, 16, v2')
        a.emit('v_add_lshl_u32 v121, v121, s3, 4')
    RI = int(ENV('RI', '18')) if PT == 2 else -1
    if RI >= 0:
        b = Asm(); res_addr(b, S_WV, SX, 127)
        a.lines += [l.replace('v128', 'v33').replace('s_add_u32 s3, s3, s4', 's_add_u32 s42, s3, s4').replace('s4, s3, 32768', 's43, s42, 32768') for l in b.lines]
    if OH: srd(a, SO, 'ws', WS_H + OHO, 2048 * 7168 - OHO)
    else: srd(a, SO, 'ws', WS_O, 4 * MB)
    clear_flags(a, 0)
    if ENV('CTE', '1') == '0': code_touch(a, 'L_attn_c0', 'L_w2_c1', int(ENV('CTN', '320')))
    import pads
    CLQ = ENV('DX', '2') == '1' and ENV('CLP', 'e') == 'q'
    if CLQ:
        srd(a, ST, 'ws', WS_XP, 4 * MB)
        a.emit(f's_or_b32 s{ST+1}, s{ST+1}, 0x100000')
        a.emit(f's_mov_b32 s{ST+3}, 0x00800000')
        a.emit('s_and_b32 s3, s2, 3')
        a.emit(f's_and_b32 s4, s{S_CU}, 3')
        a.emit('s_lshl2_add_u32 s3, s3, s4')
        a.emit('s_bfe_u32 s4, s2, 0x10002')
        a.emit(f's_lshr_b32 s5, s{S_CU}, 2')
        a.emit('s_lshl1_add_u32 s4, s5, s4')
        a.emit('s_lshl4_add_u32 s3, s3, s4')
        a.emit(f's_lshl2_add_u32 s3, s3, s{S_WV}')
        a.emit(f's_lshl_b32 s{S_T}, s3, 12')
        for i in range(4): a.emit(f'v_mov_b32 v{116+i}, -1')
    def warm():
        a.emit(f's_cmp_lg_u32 s{S_LAYER}, 0')
        a.emit(f's_cbranch_scc1 L_{kind}_nowarm')
        a.emit('s_lshl_b32 s3, s2, 2')
        a.emit(f's_add_u32 s3, s3, s{S_WV}')
        srd(a, SX, 'xs', 0, 4 * MB); srd(a, SW, 'wqkv', 0, 6 * MB)
        a.emit('v_min_u32 v126, 31, v1')
        a.emit('v_min_u32 v127, 47, v1')
        a.emit('v_lshlrev_b32 v126, 7, v126')
        a.emit('v_lshlrev_b32 v127, 7, v127')
        a.emit('s_lshl_b32 s4, s3, 12')
        a.emit(f's_mul_i32 s5, s3, {48 * 128}')
        a.emit(f'buffer_load_dword v2, v126, s[{SX}:{SX+3}], s4 offen')
        a.emit(f'buffer_load_dword v3, v127, s[{SW}:{SW+3}], s5 offen')
        a.emit('v_mov_b32 v126, 0')
        a.emit('v_mov_b32 v127, 0')
        a.label(f'L_{kind}_nowarm')
    WARM = ENV('WARM', '0')
    if WARM == '1': warm()
    mid = []
    if ot: mid = a.lines[i0:]; del a.lines[i0:]
    def reads(s, ks, hl=True):
        o = []
        if 'noread' in DBG: return o
        for jm in range(4):
            o.append(f'ds_read_b128 v[{fx(s,jm)}:{fx(s,jm)+3}], v{VA+ks} offset:{jm*2048}')
        if hl: o.append(f'ds_read_b128 v[{fx(s,4)}:{fx(s,4)+3}], v{VA+4+ks}')
        for jn in range(6):
            for h in range(2):
                r = fw(s, jn) + 2 * h
                o.append(f'ds_read_b64_tr_b16 v[{r}:{r+1}], v{VA+2+(jn&1)} offset:{(jn>>1)*8192+ks*4096+h*512}')
        return o
    def mfma(c, x, y, cin=None):
        return f'v_mfma_f32_16x16x32_bf16 v[{c}:{c+3}], v[{x}:{x+3}], v[{y}:{y+3}], ' + (f'v[{c}:{c+3}]' if cin is None else cin)
    def mf(s):
        o = []
        if 'nomfma' in DBG: return ['s_nop 0']
        od = mf_order(6, 5, lambda jn, jm: jm == 4 and jn & 1)
        if ENV('HO', '1') == '1':
            od = [x for jn, jm in mf_order(6, 4) for x in [(jn, jm)] + [(jn, 4)] * (jm == 0 and not jn & 1)]
            if QS: od.remove((0, 4)); od = od + [(0, 4)] if s else [(0, 4)] + od
        for jn, jm in od:
            if True:
                c = acc(jn, jm) if jm < 4 else HACC + (jn >> 1) * 4
                o.append(mfma(c, fw(s, jn), fx(s, jm)) if jn < 4 else mfma(c, fx(s, jm), fw(s, jn)))
        return o
    SA = [(240, 244), (248, 252), (120, 124)]
    def mfv(hh):
        def f(s):
            o = mf(s)
            ex = []
            for i, jm in enumerate([2 * hh, 2 * hh + 1] + ([4] if hh == 0 else [])):
                ex.append(mfma(SA[i][0], ONES, fx(s, jm)))
                ex.append(mfma(SA[i][1], fx(s, jm), fx(s, jm)))
            return o if 'nostat' in DBG else ex + o
        return f
    def select():
        if CLQ:
            for i in range(4): a.emit(f'buffer_store_dwordx4 v[116:119], off, s[{ST}:{ST+3}], s{S_T} offset:{1024*i} sc1')
        if WARM == '2': warm(); a.emit('s_nop 1')
        if not ot:
            a.emit(f's_cmp_lg_u32 s{S_LAYER}, 0')
            a.emit(f's_cbranch_scc1 L_{kind}_loop')
        if XD:
            for i in range(240, 256): a.emit(f'v_mov_b32 v{i}, 0')
        a.emit(f's_cmp_lg_u32 s{S_WN}, 0')
        a.emit(f's_cbranch_scc1 L_{kind}_loopb')
        clear_flags(a, 1, 4 if CLQ else 0)
    def post():
        a.emit('v_and_b32 v32, 3, v1')
        a.emit('v_cmp_eq_u32 s[4:5], 1, v32')
        a.emit('v_cmp_eq_u32 s[6:7], 2, v32')
        a.emit('v_cmp_eq_u32 s[8:9], 3, v32')
        a.emit('v_bfe_u32 v33, v1, 2, 2')
        a.emit('v_lshrrev_b32 v34, 4, v1')
        a.emit('v_cmp_eq_u32 s[10:11], v33, v34')
        a.emit(f's_lshl_b32 s3, s{S_WN}, 7')
        a.emit(f'v_add_u32 v35, s3, v{VS1}')
        a.emit('v_and_b32 v36, 15, v1')
        a.emit(f's_cmp_eq_u32 s{S_WV}, 0')
        a.emit('s_cselect_b32 s3, 0, 576')
        a.emit(f's_add_u32 s3, s3, {LST}')
        a.emit('v_lshl_add_u32 v36, v36, 2, s3')
        for (sm, sq) in SA:
            a.emit(f'v_cndmask_b32 v{sm+1}, v{sq}, v{sq+1}, s[4:5]')
        for (sm, sq) in SA:
            a.emit(f'v_cndmask_b32 v{sm+1}, v{sm+1}, v{sq+2}, s[6:7]')
        for (sm, sq) in SA:
            a.emit(f'v_cndmask_b32 v{sm+1}, v{sm+1}, v{sq+3}, s[8:9]')
        for (sm, sq) in SA: stats_finish(a, sm)
        a.emit('s_mov_b64 exec, s[10:11]')
        a.emit(f'ds_write2_b32 v35, v{SA[0][0]}, v{SA[0][0]+1} offset0:16 offset1:176')
        a.emit(f'ds_write2_b32 v35, v{SA[1][0]}, v{SA[1][0]+1} offset0:32 offset1:192')
        a.emit(f'ds_write2_b32 v36, v{SA[2][0]}, v{SA[2][0]+1} offset0:0 offset1:160')
        a.emit('s_mov_b64 exec, -1')
        if XD:
            res_addr(a, S_WV, SX, 32)
        a.emit('s_waitcnt lgkmcnt(0)')
        if XD:
            for i in range(4):
                a.emit(f'buffer_load_dwordx4 v[{240+4*i}:{243+4*i}], v32, s[{SX}:{SX+3}], s{3+(i>>1)} offen offset:{64*(i&1)}')
        a.emit('s_barrier')
    own = lambda s: [mfma(acc(jn, jm), *((fw(s, jn), fx(s, jm)) if jn < 4 else (fx(s, jm), fw(s, jn))), None if s else '0') for jn, jm in mf_order(6, 4)]
    hw = lambda ks, c: fw(1, 2 * c) if ks else fx(1, c)
    hal = ([f'v_mov_b32 v{fx(1,c)+i}, v{fw(0,2*c)+i}' for c in range(3) for i in range(4)],
           [f'ds_read_b128 v[{fx(1,3+ks)}:{fx(1,3+ks)+3}], v{VA+4+ks} offset:{HX - XH - STAGE}' for ks in range(2)],
           [mfma(HACC + 4 * c, *((hw(ks, c), fx(1, 3 + ks)) if c < 2 else (fx(1, 3 + ks), hw(ks, c))), None if ks else '0') for ks in range(2) for c in range(3)])
    if QS: hal = (hal[0][4:], hal[1] + [f'buffer_load_dwordx4 v[122:125], v121, s[{ST}:{ST+3}], 0 offen sc1'], hal[2][1:3] + hal[2][4:])
    hooks = None
    if DS:
        HK = [int(x) for x in ENV('HK', '-1,-2,-4,-5,11,13').split(',')]
        def dots(s):
            o = [f's_cmp_lg_u32 s{S_WN}, 0', f's_cbranch_scc1 L_{kind}_dot{s}']
            for hh in range(2):
                for j in range(8):
                    r = fx(s, 2 * hh) + (j >> 1) + 4 * (j & 1)
                    o += [f'v_dot2_f32_bf16 v{122+(j&1)}, v{r}, s7, v{122+(j&1)}', f'v_dot2_f32_bf16 v{124+(j&1)}, v{r}, v{r}, v{124+(j&1)}']
                o += [f'L_{kind}_dote{s}:'] if hh else [f's_branch L_{kind}_dote{s}', f'L_{kind}_dot{s}:']
            return o
        h1 = dots(1) + ['s_nop 2', 'v_permlane32_swap_b32 v122, v123', 'v_permlane32_swap_b32 v124, v125', 'v_add_f32 v122, v122, v123', 'v_add_f32 v124, v124, v125',
               'v_mov_b32 v126, 1', 's_nop 0', 'v_permlane16_swap_b32 v122, v124', 'v_add_f32 v122, v122, v124', f'buffer_store_dword v122, v120, s[{ST}:{ST+3}], 0 offen sc1']
        w0 = [f's_cmp_lg_u32 s{S_WV}, 0', f's_cbranch_scc1 L_{kind}_loop']
        pl = f'buffer_load_dword v127, v121, s[{SC}:{SC+3}], 0 offen sc1'
        b = Asm(); res_addr(b, S_WV, SX, 122); rs = [l.strip() for l in b.lines] + res_loads(240, 122, SX)
        hooks = list(zip(HK + [int(ENV('HKR', '14'))], [dots(0), h1, ['s_waitcnt vmcnt(0)'],
            w0 + [f's_lshl4_add_u32 s3, s{S_MT}, s{S_NT}', 's_mov_b64 exec, 1', f'buffer_store_byte v126, off, s[{SC}:{SC+3}], s3 sc1', 's_mov_b64 exec, -1'], w0 + [pl],
            w0 + ['s_mov_b32 s5, 0x100000', 'L_attn_chkl:', 's_waitcnt vmcnt(0)', 'v_cmp_ne_u32 vcc, 0x01010101, v127', f's_cbranch_vccz L_{kind}_loop',
                  pl, 's_sub_u32 s5, s5, 1', 's_cbranch_scc0 L_attn_chkl'], rs]))
        assert HK[:2] == [-1, -2]
        if D2: hooks = [(-1, dots(0) + pads.chain('h0') + w0 + hooks[2][1] + hooks[3][1][2:]), (-2, [x.replace('v_mov_b32 v126, 1', 's_nop 0') for x in h1] + pads.chain('h1')), hooks[-1]]
        if RI >= 0: del hooks[-1]
        if ENV('XSL'):
            xs = [int(x) for x in ENV('XSL').split(',')]
            hooks[1] = (hooks[1][0], hooks[1][1] + [f's_sleep {xs[0]}'])
            hooks[2] = (hooks[2][0], hooks[2][1] + [f's_sleep {xs[1]}'])
    assert ot or not DS
    PR = 32
    CS = 48
    CV = 64
    MS = 66
    RK = 76
    M4 = 84
    R4 = 104
    VV = [4 if XD else 240, 224]
    if PT: RK = 120; M4 = 76; R4 = 96
    sc = 32 ** -0.5 * 1.4426950408889634
    rms = [f'ds_read2_b32 v[{MS+2*b}:{MS+2*b+1}], v{VS1} offset0:{16*b} offset1:{160+16*b}' for b in range(5)]
    rrk = [f'ds_read2_b32 v[{RK+4*k+2*p}:{RK+4*k+2*p+1}], v{VKB if k else VKA} offset0:{32*p} offset1:{32*p+16}' for p in range(2) for k in range(2)]
    wh = [f'ds_write_b128 v{VXW}, v[{HACC+4*c}:{HACC+4*c+3}] offset:{2048*c}' for c in range(3)]
    if QS: wh[0] = f'ds_write_b128 v{VXW}, v[122:125]'
    wp = [f'ds_write_b128 v{VA if PT else VXW}, v[{acc(t,3)}:{acc(t,3)+3}] offset:{6144+1024*t}' for t in range(2, 6)]
    rm4 = [f'ds_read_b128 v[{r+4*b}:{r+4*b+3}], v{VS4} offset:{o+64*b}' for b in range(5) for r, o in ((M4, 0), (R4, 640))]
    rcs = [f'ds_read_b128 v[{CS+4*t}:{CS+4*t+3}], v{VCO if t&1 else VCE} offset:{1024*t}' for t in range(4)]
    rcv = [f'ds_read_b32 v{CV+t}, v{VVO if t else VVE} offset:{4096+1024*t}' for t in range(2)]
    rpr = [f'ds_read_b128 v[{PR+4*t}:{PR+4*t+3}], v{VPO if t&1 else VPE} offset:{2048+1024*t}' for t in range(4)]
    mul = [f'v_mul_f32 v{MS+2*b+3}, {f2u(sc):#x}, v{MS+2*b+3}' for b in range(4)] + [f'v_mul_f32 v{RK+4*k+b}, v{RK+4*k+b}, v{MS+2*b+3}' for b in range(4) for k in range(2)]
    tail = None
    if PT:
        assert WE < 0
        dst = lambda m: int(m.split('[')[1].split(':')[0])
        first = [HACC, HACC + 4, acc(2, 3), acc(3, 3), HACC + 8, acc(4, 3), acc(5, 3)]
        ms = sorted(mf(1), key=lambda m: first.index(dst(m)) if dst(m) in first else 9)
        wr = wh[:2] + wp[:2] + wh[2:] + wp[2:]
        XB_ = int(ENV('PTB', '16'))
        fl = {i: rms[i:i + 1] + rrk[i:i + 1] for i in range(5)}
        for i in range(7): fl[5 + i] = [wr[i]]
        fl[XB_] = ['s_waitcnt lgkmcnt(0)', 's_barrier']
        rest = rcs + rpr[:2] + rcv + rpr[2:] + mul
        for i in range(XB_ + 1, 27): fl[i] = rest[:2]; del rest[:2]
        tail = ([f'v_lshl_add_u32 v{VA}, s{S_WM}, 15, v{VXW}'], weave(ms, fl) + rest)
    if PT == 2:
        P0, W0, WS_, XB_ = [int(x) for x in ENV('PTP', '14,21,3,45').split(',')]
        m0 = sorted(mf(0), key=lambda m: first.index(dst(m)) if dst(m) in first else 9)
        ms = m0[:P0] + ms[:7] + m0[P0:] + ms[7:]
        r1 = reads(1, 1); r1 = r1[4:7] + r1[9:11] + r1[3:4] + r1[11:] + r1[:3] + r1[7:9]
        fl = {i: [r1[i]] for i in range(17)}
        fl[0] += [f's_mul_i32 s3, s{S_WM}, -32768']; fl[1] += [f'v_add_u32 v{VA}, s3, v{VXW}']
        fl[P0 - 1] = fl.get(P0 - 1, []) + [f's_waitcnt lgkmcnt({max(0, min(P0, 17) - 12)})']
        for i in range(7): fl[W0 + WS_ * i] = fl.get(W0 + WS_ * i, []) + [wr[i]]
        assert P0 >= 12 and W0 >= 17
        fl[33] = fl.get(33, []) + [f's_waitcnt lgkmcnt({sum(W0 + WS_ * i <= 33 for i in range(7))})']
        fl[XB_] = ['s_waitcnt lgkmcnt(0)', 's_barrier']
        if RI >= 0:
            fl[RI - 1] = fl.get(RI - 1, []) + [f's_cmp_lg_u32 s{S_LAYER}, 0'] + ['s_waitcnt vmcnt(0)'] * QS
            fl[RI] = fl.get(RI, []) + ['s_cbranch_scc1 L_attn_nores'] + [x.replace('s4 ', 's43 ').replace('s3 ', 's42 ') for x in res_loads(240, 127, SX)] + (
                [f'buffer_store_dwordx4 v[{HACC}:{HACC+3}], v121, s[{ST}:{ST+3}], 0 offen sc1'] + [f'v_mov_b32 v{122+i}, v{HACC+i}' for i in range(4)]) * QS + ['L_attn_nores:']
        rest = rcs[:2] + rms[1:2] + rcs[2:] + rms[2:] + rms[:1] + rpr + rcv + rrk
        NL = len(rest) - 5
        for i in range(XB_ + 1, 54): fl[i] = rest[:2]; del rest[:2]
        NL -= len(rest); rm4 = rest + rm4
        tail = (None, weave(ms, fl))
    big_loop(a, kind, N, S, STAGE, 6, VB, VA, reads, mf, variants=None if DS else {'a': mfv(0), 'b': mfv(1)}, select=select, post=post, mid=mid, hooks=hooks,
             ot=own if ot else None, halo=hal if ot else None, tail=tail)
    if not PT:
        for x in rms + rrk + wh: a.emit(x)
        a.emit(f's_cmp_eq_u32 s{S_WM}, 1')
        a.emit(f's_cbranch_scc1 L_{kind}_nop3')
        for x in wp: a.emit(x)
        a.label(f'L_{kind}_nop3')
        for x in rm4: a.emit(x)
        a.emit('s_waitcnt lgkmcnt(10)')
        a.emit('s_barrier')
        for x in rcs + rcv + rpr + mul: a.emit(x)
    a.emit(f's_waitcnt lgkmcnt({NL if PT == 2 else 6})')
    AE = int(ENV('AE', '7'))
    def qk(x, y, cs, b, d, mm=None):
        m = f'v[{MS+2*b}:{MS+2*b+1}]'
        for (z, c) in ((x, cs), (y, cs + 4)):
            for h in range(2):
                a.emit(f'v_pk_fma_f32 v[{z+2*h}:{z+2*h+1}], v[{c+2*h}:{c+2*h+1}], {m}, v[{z+2*h}:{z+2*h+1}] op_sel:[0,0,0] op_sel_hi:[1,0,1] neg_lo:[0,1,0] neg_hi:[0,1,0]')
        if mm and AE & 1: a.emit(mm)
        a.emit(f'v_cvt_pk_bf16_f32 v{d}, v{x}, v{x+1}')
        a.emit(f'v_cvt_pk_bf16_f32 v{d+1}, v{x+2}, v{x+3}')
        a.emit(f'v_cvt_pk_bf16_f32 v{d+2}, v{y}, v{y+1}')
        a.emit(f'v_cvt_pk_bf16_f32 v{d+3}, v{y+2}, v{y+3}')
    Q = lambda b: acc(0, b); Kf = lambda b: acc(2, b) if b >= 0 else PR
    Sc = lambda b: acc(1, b); Sp = lambda b: acc(3, (b - (AE & 1)) & 3)
    for b in range(4):
        qk(acc(0, b), acc(1, b), CS, b + 1, Q(b), b and mfma(Sc(b - 1), Kf(b - 1), Q(b - 1), '0'))
        nr = (len(rm4) + 5) // 6
        for x in rm4[2*nr*b:2*nr*b+nr] if PT else []: a.emit(x)
        qk(acc(2, b), acc(3, b), CS + 8, b + 1, Kf(b), b and mfma(Sp(b), Kf(b - 1), Q(b), '0'))
        if PT == 2 and b == 0:
            assert NL >= 3
            a.emit(f's_waitcnt lgkmcnt({NL - 3 + nr})')
        for x in rm4[2*nr*b+nr:2*nr*b+2*nr] if PT else []: a.emit(x)
        if b == 3:
            a.emit('s_waitcnt lgkmcnt(0)')
            qk(PR, PR + 4, CS + 8, 0, PR, mfma(Sc(3), Kf(3), Q(3), '0'))
        if b >= 1 and not AE & 1:
            a.emit(mfma(Sc(b - 1), Kf(b - 1), Q(b - 1), '0'))
            if b >= 2: a.emit(mfma(Sp(b - 1), Kf(b - 2), Q(b - 1), '0'))
    if AE & 1:
        for x in mul[:2]: a.emit(x)
        del mul[:2]
    else:
        a.emit(mfma(Sc(3), Kf(3), Q(3), '0'))
        a.emit(mfma(Sp(3), Kf(2), Q(3), '0'))
    a.emit(mfma(Sp(0), Kf(-1), Q(0), '0'))
    for x in mul if PT == 2 else []: a.emit(x)
    def vconv(x, t, b):
        cv = f'v[{CV}:{CV+1}]'
        for h in range(2):
            a.emit(f'v_pk_fma_f32 v[{x+2*h}:{x+2*h+1}], v[{M4+4*b+2*h}:{M4+4*b+2*h+1}], {cv}, v[{x+2*h}:{x+2*h+1}] op_sel:[0,{t},0] op_sel_hi:[1,{t},1] neg_lo:[1,0,0] neg_hi:[1,0,0]')
        for h in range(2):
            a.emit(f'v_pk_mul_f32 v[{x+2*h}:{x+2*h+1}], v[{x+2*h}:{x+2*h+1}], v[{R4+4*b+2*h}:{R4+4*b+2*h+1}]')
        for h in range(2):
            a.emit(f'v_cvt_pk_bf16_f32 v{VV[t]+2*b+h}, v{x+2*h}, v{x+2*h+1}')
    for t in range(2):
        vconv(PR + 8 + 4 * t, t, 0)
        for b in range(4): vconv(acc(4 + t, b), t, b + 1)
    if AE & 2: vf = a.lines[-12:]; del a.lines[-12:]
    T = lambda b: 32 + 4 * b
    odd = f's[{M_ODD}:{M_ODD+1}]'
    for b in (1, 2, 3, 0):
        a.emit(f'v_cndmask_b32 v{Sc(b)}, v{Sc(b)}, v{Sc(b)+1}, {odd}')
        a.emit(f'v_cndmask_b32 v{Sp(b)}, v{Sp(b)}, v{Sp(b)+1}, {odd}')
        a.emit(f'v_cndmask_b32 v{Sc(b)+2}, v{Sc(b)+2}, v{Sc(b)+3}, {odd}')
        a.emit(f'v_cndmask_b32 v{Sp(b)+2}, v{Sp(b)+2}, v{Sp(b)+3}, {odd}')
        a.emit(f'v_cndmask_b32 v{T(b)}, v{Sc(b)}, v{Sp(b)}, s[{M_UPA}:{M_UPA+1}]')
        a.emit(f'v_cndmask_b32 v{T(b)+1}, v{Sc(b)+2}, v{Sp(b)+2}, s[{M_UPB}:{M_UPB+1}]')
        a.emit(f'v_mul_f32 v{T(b)}, v{T(b)}, v{RK+b}')
        a.emit(f'v_mul_f32 v{T(b)+1}, v{T(b)+1}, v{RK+4+b}')
    a.emit(f'v_mov_b32 v48, {f2u(-1e9 * 1.4426950408889634):#x}')
    a.emit(f'v_cndmask_b32 v{T(0)}, v{T(0)}, v48, s[{M_FA}:{M_FA+1}]')
    a.emit(f'v_cndmask_b32 v{T(0)+1}, v{T(0)+1}, v48, s[{M_FB}:{M_FB+1}]')
    for b in (2, 3, 1, 0) if AE & 2 else range(4): a.emit(f'v_max_f32 v{T(b)+2}, v{T(b)}, v{T(b)+1}')
    if AE & 2:
        M = lambda b: T(b) + 2
        for x in [f'v_permlane32_swap_b32 v{M(2)}, v{M(3)}', 1, f'v_permlane32_swap_b32 v{M(0)}, v{M(1)}', f'v_max_f32 v{M(2)}, v{M(2)}, v{M(3)}', f'v_max_f32 v{M(0)}, v{M(0)}, v{M(1)}', 2,
                  f'v_permlane16_swap_b32 v{M(0)}, v{M(2)}', 1, f'v_max_f32 v{M(1)}, v{M(0)}, v{M(2)}', f'v_max_f32 v{M(3)}, v{M(0)}, v{M(2)}', 2,
                  f'v_permlane16_swap_b32 v{M(1)}, v{M(3)}', 1, f'v_mov_b32 v{M(0)}, v{M(1)}', f'v_mov_b32 v{M(2)}, v{M(3)}', 1,
                  f'v_permlane32_swap_b32 v{M(0)}, v{M(1)}', f'v_permlane32_swap_b32 v{M(2)}, v{M(3)}', 4]:
            if isinstance(x, int): a.lines += vf[:x]; del vf[:x]
            else: a.emit(x)
        assert not vf
    for op in () if AE & 2 else ('32', '16'):
        for b in range(4): a.emit(f'v_mov_b32 v{T(b)+3}, v{T(b)+2}')
        for b in range(4): a.emit(f'v_permlane{op}_swap_b32 v{T(b)+2}, v{T(b)+3}')
        for b in range(4): a.emit(f'v_max_f32 v{T(b)+2}, v{T(b)+2}, v{T(b)+3}')
    P = lambda b: acc(0, b)
    if AE & 4:
        for b in range(5):
            o = [f'v_sub_f32 v{T(b)+k}, v{T(b)+k}, v{T(b)+2}' for k in range(2)] + [f'v_exp_f32 v{T(b)+k}, v{T(b)+k}' for k in range(2)] + [f'v_cvt_pk_bf16_f32 v{T(b)+k}, v{T(b)+k}, v{T(b)+k}' for k in range(2)]
            o += [f'v_and_b32 v{P(b)+k}, v{T(b)+(k&1)}, v{(MAP, MBP, MAC, MBC)[k]}' for k in range(4)]
            if b == 4: o = [f'v_rcp_f32 v{acc(1,0)}, v{acc(1,0)}', f's_cmp_eq_u32 s{S_WM}, 1', f'v_rcp_f32 v{acc(1,1)}, v{acc(1,1)}', '', f'v_rcp_f32 v{acc(1,2)}, v{acc(1,2)}', '', '', '', '', '']
            q = b - 1
            ms = [mfma(acc(1, q), ONES, P(q), '0'), mfma(acc(4, q), VV[0] + 2 * q, P(q), '0'), mfma(acc(5, q), VV[1] + 2 * q, P(q), '0')] if b else ['', 's_nop 0', '']
            for x in o[:2] + ms[:1] + o[2:4] + ms[1:2] + o[4:7] + ms[2:] + o[7:]:
                if x: a.emit(x)
    else:
        for b in range(4):
            a.emit(f'v_sub_f32 v{T(b)}, v{T(b)}, v{T(b)+2}')
            a.emit(f'v_sub_f32 v{T(b)+1}, v{T(b)+1}, v{T(b)+2}')
        for b in range(4):
            a.emit(f'v_exp_f32 v{T(b)}, v{T(b)}')
            a.emit(f'v_exp_f32 v{T(b)+1}, v{T(b)+1}')
        P = lambda b: acc(0, b)
        for b in range(4):
            a.emit(f'v_cvt_pk_bf16_f32 v{T(b)}, v{T(b)}, v{T(b)}')
            a.emit(f'v_cvt_pk_bf16_f32 v{T(b)+1}, v{T(b)+1}, v{T(b)+1}')
            a.emit(f'v_and_b32 v{P(b)}, v{T(b)}, v{MAP}')
            a.emit(f'v_and_b32 v{P(b)+1}, v{T(b)+1}, v{MBP}')
            a.emit(f'v_and_b32 v{P(b)+2}, v{T(b)}, v{MAC}')
            a.emit(f'v_and_b32 v{P(b)+3}, v{T(b)+1}, v{MBC}')
            if b >= 1:
                q = b - 1
                a.emit(mfma(acc(1, q), ONES, P(q), '0'))
                a.emit(mfma(acc(4, q), VV[0] + 2 * q, P(q), '0'))
                a.emit(mfma(acc(5, q), VV[1] + 2 * q, P(q), '0'))
        q = 3
        a.emit(mfma(acc(1, q), ONES, P(q), '0'))
        a.emit(mfma(acc(4, q), VV[0] + 2 * q, P(q), '0'))
        a.emit(mfma(acc(5, q), VV[1] + 2 * q, P(q), '0'))
    if ENV('ES'): stamp(a, 1)
    no = 'wo' in NS
    if no:
        if not AE & 4: a.emit(f's_cmp_eq_u32 s{S_WM}, 1')
        a.emit(f's_cbranch_scc1 L_{kind}_out1')
    for w in range(2 if no else 1):
        if w: a.label(f'L_{kind}_out1')
        for b in range(4):
            r = acc(1, b); d = 48 + 4 * b
            if not AE & 4: a.emit(f'v_rcp_f32 v{r}, v{r}')
            elif b == 1: a.emit(f'v_rcp_f32 v{acc(1,3)}, v{acc(1,3)}')
            a.emit(f's_mov_b32 s3, {b * 16 * (7168 if OH else 2048)}')
            for t in range(2):
                x = acc(4 + t, b)
                for h in range(2):
                    a.emit(f'v_pk_mul_f32 v[{x+2*h}:{x+2*h+1}], v[{x+2*h}:{x+2*h+1}], v[{r}:{r+1}] op_sel_hi:[1,0]')
            for t in range(2):
                x = acc(4 + t, b)
                for h in range(2):
                    a.emit(f'v_cvt_pk_bf16_f32 v{d+2*(t^w)+h}, v{x+2*h}, v{x+2*h+1}')
            if not no:
                a.emit('s_nop 1')
                a.emit(f'v_permlane16_swap_b32 v{d}, v{d+2}')
                a.emit(f'v_permlane16_swap_b32 v{d+1}, v{d+3}')
            a.emit(f'buffer_store_dwordx4 v[{d}:{d+3}], v{VO}, s[{SO}:{SO+3}], s3 offen{stf(kind)}')
        if no and not w: a.emit(f's_branch L_{kind}_out2')
    if no: a.label(f'L_{kind}_out2')
    compute_end(a, kind)
    a.label(f'L_{kind}_loader')
    L = Loader(a, kind, K, lda2, ldw2, [0, 2048, 4096], 128, S, STAGE, halo=XH, rot=int(ENV('ROT_QKV', '0')))
    L.skip = DS
    L.setup()
    a.emit('s_waitcnt lgkmcnt(0)')
    srd_xs(a, SX); srd(a, SW, 'wqkv', 0, 1024 * 6144)
    import sides
    fill = []
    if ENV('DX', '2') == '1' and ENV('CLP', 'e') == 'l':
        a.emit('s_and_b32 s3, s2, 3')
        a.emit(f's_and_b32 s4, s{S_CU}, 3')
        a.emit('s_lshl2_add_u32 s3, s3, s4')
        a.emit('s_bfe_u32 s4, s2, 0x10002')
        a.emit(f's_lshr_b32 s5, s{S_CU}, 2')
        a.emit('s_lshl1_add_u32 s4, s5, s4')
        a.emit('s_lshl4_add_u32 s3, s3, s4')
        a.emit(f's_and_b32 s4, s{S_WV}, 3')
        a.emit('s_lshl2_add_u32 s3, s3, s4')
        a.emit('s_lshl_b32 s3, s3, 12')
        srd(a, SB, 'ws', WS_XP, 0 if 'fill0' in DBG else 4096)
        if 'fillfl' in DBG:
            srd(a, SB, 'ws0', WS_FL + MB, 4096)
            a.emit('s_and_b32 s3, s3, 0xfffff')
        a.emit(f's_add_u32 s{SB}, s{SB}, s3')
        a.emit(f's_addc_u32 s{SB+1}, s{SB+1}, 0')
        FW_ = int(ENV('FILLW', '2'))
        a.emit(f'v_mul_u32_u24 v29, {4 * FW_}, v1')
        for i in range(4): a.emit(f'v_mov_b32 v{24+i}, -1')
        fill = [f'buffer_store_dword{"x" + str(FW_)} v[24:{23 + FW_}], v29, s[{SB}:{SB+3}], 0 offen' + ('' if 'fillwb' in DBG else ' sc1'), f'v_add_u32 v29, {256 * FW_}, v29']
        assert sides.STV[3] == 0
    a.emit(f's_cmp_lg_u32 s{S_LAYER}, 0')
    a.emit(f's_cbranch_scc1 L_{kind}_ld1')
    post = list(sides.stouch_post(a, kind)) + fill
    SPF = [int(x) for x in ENV('SPF', '0,0,2').split(',')]
    def spf():
        hs = range(SPF[2])
        return ([f's_buffer_load_dword s84, s[{SX}:{SX+3}], s85 offset:{2048*r+64*h}' for r in range(2) for h in hs] +
                [f's_buffer_load_dword s84, s[{SW}:{SW+3}], s86 offset:{2048*p+64*h}' for p in range(3) for h in hs] +
                ['s_add_u32 s85, s85, 128', f's_add_u32 s86, s86, {64*ldw2}'])
    def spf_start():
        if not SPF[1]: return
        a.emit(f's_and_b32 s3, s{S_WV}, 3')
        a.emit(f's_lshl2_add_u32 s3, s{S_CU}, s3')
        a.emit('s_and_b32 s4, s2, 1')
        a.emit('s_bfe_u32 s5, s2, 0x20001')
        a.emit('s_lshl2_add_u32 s85, s4, s5')
        a.emit('s_lshl_b32 s85, s85, 7')
        a.emit('s_add_u32 s85, s85, s3')
        a.emit('s_lshl_b32 s85, s85, 12')
        a.emit(f's_add_u32 s85, s85, {128*SPF[0]}')
        a.emit('s_lshl_b32 s4, s4, 5')
        a.emit(f's_add_u32 s4, s4, s{S_CU}')
        a.emit(f's_add_u32 s4, s4, {64*SPF[0]}')
        a.emit(f's_mul_i32 s86, s4, {ldw2}')
        a.emit('s_and_b32 s3, s3, 3')
        a.emit('s_lshl2_add_u32 s3, s5, s3')
        a.emit('s_lshl_b32 s3, s3, 7')
        a.emit('s_add_u32 s86, s86, s3')
        for i in range(SPF[0], SPF[1]):
            for x in spf(): a.emit(x)
    if SPF[1]: post += spf()
    VPF = [int(x) for x in ENV('VPF', '0,0,1').split(',')]
    def vpf():
        k0, nk, hs = VPF
        if not nk: return 0
        a.emit(f's_and_b32 s3, s{S_WV}, 3')
        a.emit(f's_lshl2_add_u32 s3, s{S_CU}, s3')
        a.emit('s_and_b32 s4, s2, 1')
        a.emit('s_bfe_u32 s5, s2, 0x20001')
        a.emit('s_lshl2_add_u32 s85, s4, s5')
        a.emit('s_lshl_b32 s85, s85, 7')
        a.emit('s_add_u32 s85, s85, s3')
        a.emit('s_lshl_b32 s85, s85, 12')
        a.emit('s_lshl_b32 s4, s4, 7')
        a.emit('s_add_u32 s4, s4, s3')
        a.emit(f's_add_u32 s4, s4, {64*k0}')
        a.emit(f's_mul_i32 s86, s4, {ldw2}')
        a.emit('s_lshl_b32 s5, s5, 9')
        a.emit('s_add_u32 s86, s86, s5')
        a.emit('v_and_b32 v2, 15, v1')
        a.emit(f'v_min_u32 v3, {nk-1}, v2')
        a.emit('v_and_b32 v22, 16, v1')
        a.emit('v_add_lshl_u32 v22, v22, v3, 7')
        a.emit('v_min_u32 v2, 11, v2')
        a.emit('v_lshrrev_b32 v3, 2, v2')
        a.emit('v_and_b32 v2, 3, v2')
        a.emit('v_lshl_add_u32 v2, v3, 4, v2')
        a.emit('v_lshrrev_b32 v3, 4, v1')
        a.emit(f'v_min_u32 v3, {nk//4-1}, v3')
        a.emit(f'v_mul_u32_u24 v3, {256*ldw2}, v3')
        a.emit('v_lshl_add_u32 v23, v2, 7, v3')
        for h in range(hs):
            a.emit(f'buffer_load_dword v24, v23, s[{SW}:{SW+3}], s86 offen offset:{64*h}')
            a.emit(f'buffer_load_dword v25, v22, s[{SX}:{SX+3}], s85 offen offset:{128*k0+64*h}')
        return 2 * hs
    TG_ = int(ENV('TLBG', '0'))
    if TG_:
        srd(a, SO, 'ws0', 0, 256 * MB)
        a.emit(f's_and_b32 s3, s{S_WV}, 3')
        a.emit(f's_lshl2_add_u32 s3, s{S_CU}, s3')
        a.emit(f's_lshl_b32 s86, s3, {TG_}')
        tl = [f's_buffer_load_dword s84, s[{SO}:{SO+3}], s86', f's_add_u32 s86, s86, {128 << TG_}']
        if TG_ < 21: post += tl
    extra = tail_parks('wo', SP, lambda b: srd(b, SP, 'wo', 0, 2 * MB))
    sch0 = [int(c) for c in ENV('TSO0', '00000')]
    extra0 = tail_parks('wo', SP, lambda b: srd(b, SP, 'wo', 0, 2 * MB), sch0 + [sum(TSCH['wo']) - sum(sch0)])
    npk = 2 * sum(TSCH['wo']) if XD else 0
    def start():
        sides.cls_touch(a)
        if TG_:
            for x in tl: a.emit(x)
            a.emit(f's_and_b32 s3, s{S_WV}, 3')
            a.emit(f's_lshl2_add_u32 s3, s{S_CU}, s3')
            for w, sz in (('out', 4 * MB), ('wo', 2 * MB), ('w1', 7 * MB), ('b1', 4096), ('b2', 2048)):
                srd(a, SC, w, 0, sz)
                a.emit(f's_mul_i32 s4, s3, {sz // 128}')
                a.emit(f's_buffer_load_dword s84, s[{SC}:{SC+3}], s4')
        if ENV('DX', '2') != '1' or ENV('CLP', 'e') != 's': return 0
        srd(a, ST, 'ws0', WS_XP, LSTR + 4 * MB)
        a.emit('s_and_b32 s3, s2, 3')
        a.emit(f's_and_b32 s4, s{S_CU}, 3')
        a.emit('s_lshl2_add_u32 s3, s3, s4')
        a.emit('s_bfe_u32 s4, s2, 0x10002')
        a.emit(f's_lshr_b32 s5, s{S_CU}, 2')
        a.emit('s_lshl1_add_u32 s4, s5, s4')
        a.emit('s_lshl4_add_u32 s3, s3, s4')
        a.emit(f's_and_b32 s4, s{S_WV}, 3')
        a.emit('s_lshl2_add_u32 s3, s3, s4')
        a.emit('s_lshl_b32 s3, s3, 12')
        a.emit(f's_add_u32 s4, s3, {LSTR}')
        a.emit('v_lshlrev_b32 v2, 4, v1')
        for i in range(4): a.emit(f'v_mov_b32 v{32+i}, -1')
        for i in range(8): a.emit(f'buffer_store_dwordx4 v[32:35], v2, s[{ST}:{ST+3}], s{3+(i>>2)} offen offset:{1024*(i&3)} sc1')
        return 8
    final0 = None
    TL0 = int(ENV('TL0', '1' if DS else '0'))
    if DS:
        STQ0 = int(ENV('STQ0', '14'))
        assert HK[-1] < STQ0 <= 13 + TL0
        def start():
            nv = vpf()
            if sides.CE:
                assert sum(sides.CE.values()) == 8
                sides.cs_setup(a, SB, 95, 26)
                for x in sides.cs_at(-1): a.emit(x)
                nv += sides.CE.get(-1, 0)
            spf_start()
            sides.cls_touch(a)
            srd(a, ST, 'ws0', WS_ST0, 16 * 16384)
            stats4_setup(a, True)
            if D2:
                if CF == 2: a.emit('v_lshlrev_b32 v20, 2, v1')
                else: dbg_off(a, 20)
                a.emit(f's_and_b32 s{SC+1}, s{SC+1}, 0xffff')
                a.emit(f's_mov_b32 s{SC+2}, 256')
                a.emit(f's_mov_b32 s{SC+3}, 0x00020000')
            for x in pads.chain(-1): a.emit(x)
            return nv
        pl2 = f'buffer_load_dword v21, v20, s[{SC}:{SC+3}], 0 offen sc1'
        ck2 = ['s_mov_b32 s5, 0x100000', 'L_attn_dchk:', 'v_or_b32 v13, 0xfefefefe, v21', 'v_cmp_ne_u32 vcc, -1, v13', 's_cbranch_vccz L_attn_dok', 's_sub_u32 s5, s5, 1\n  ' + pl2,
               's_waitcnt vmcnt(0)', 's_cbranch_scc0 L_attn_dchk', 'L_attn_dok:'] if D2 else []
        PLS = int(ENV('PLS', '13'))
        if PLS > STQ0 - 3: ck2.insert(0, 's_waitcnt vmcnt(11)'); L.pre = {PLS: [pl2]}; assert PLS == 13
        extra0 = lambda i: (ck2 + stats4_loads(32, True) if i == STQ0 else [pl2] if D2 and i == PLS < 13 else []) + sides.cs_at(i) + sides.cs_acc(i) + pads.chain(i)
        def chk0():
            a.emit('v_cmp_u_f32 vcc, v32, v33')
            a.emit('v_cmp_u_f32 s[4:5], v48, v49')
            a.emit('s_or_b64 s[4:5], vcc, s[4:5]')
            a.emit('s_cbranch_scc0 L_attn_sok')
            a.emit(f's_sub_u32 s{S_CNT}, s{S_CNT}, 1')
            a.emit('s_cbranch_scc1 L_attn_sok')
            for x in stats4_loads(32, True): a.emit(x + (' sc1' if x.startswith('buf') else ''))
            a.emit('s_waitcnt vmcnt(0)')
            a.emit('s_branch L_attn_schk')
            a.label('L_attn_sok')
        def final0():
            a.emit(f's_mov_b32 s{S_CNT}, 0x4000')
            a.emit(f"s_waitcnt vmcnt({side(Asm(), 0, 'issue') + sum(n for e, n in sides.CE.items() if e >= STQ0)})")
            if CF and ENV('CFP', 'b') == 'a': a.emit(sides.CS_ST)
            a.label('L_attn_schk')
            stats4_store(a, 32, LST, True, chk0 if D2 else None)
            if CF and 15 in sides.CFS:
                for x in sides.cs_acc(15, True): a.emit(x)
                sides.cs_out(a, 100)
            if CF and ENV('CFP', 'b') == 'b': a.emit(sides.CS_ST)
            a.emit('s_waitcnt lgkmcnt(0)')
    if ENV('PDL', '1,800') != '0': L.pad = tuple(int(x) for x in ENV('PDL', '1,800').split(','))
    L.run('0', tail_issue=lambda: side(a, 0, 'issue'), ntail_vm=side(Asm(), 0, 'issue'), post=post, start=start, extra=extra0, tail_late=TL0, final=final0, exfirst=True)
    if CF and ENV('CFP', 'b') == 'c': a.emit(sides.CS_ST)
    for i in (16,) if DS else (16, 17):
        if XD:
            for x in extra0(i): a.emit(x)
        if WE < 0 and PT != 2: a.emit('s_barrier')
    if XD:
        for x in extra0(18): a.emit(x)
    if ONE:
        a.emit(f's_branch L_{kind}_ldend')
    else:
        side(a, 0, 'finish')
        a.emit('s_endpgm')
    L.pre = {}; L.pad = None
    a.label(f'L_{kind}_ld1')
    if ',' in L.kord():
        L.ktable(int(L.kord().split(',')[1]))
        L.ot = int(ot); L.hx = HX - XH
        for x in ([] if ot else L.knext()): a.emit(x)
    srd(a, ST, 'ws0', WS_ST2, 16 * 16384)
    n1 = side(Asm(), 1, 'issue')
    def tail1():
        stats_loads(a, 32, True)
        side(a, 1, 'issue')
    def final1():
        a.emit(f's_waitcnt vmcnt({n1 + npk})')
        stats_reduce_store(a, 32, LST)
        a.emit('s_waitcnt lgkmcnt(0)')
    if T4:
        stats4_setup(a, True)
        TL1 = int(ENV('TL1', '0'))
        def final4():
            a.emit(f"s_waitcnt vmcnt({n1 if int(ENV('STQ', '14')) < 13 + TL1 < 15 else 0})")
            stats4_store(a, 32, LST, True, nan_chk(a, 'L_attn_t', True) if SF else None)
            a.emit('s_waitcnt lgkmcnt(0)')
        if ZD:
            srd(a, SC, 'ws0', WS_FL, FLS)
            a.emit('v_and_b32 v30, 3, v1')
            a.emit('v_lshlrev_b32 v30, 6, v30')
            a.emit(f's_mov_b32 s{S_CNT}, 0x100000')
        def zbar():
            xpoll(a, 'L_attn_x', SC, S_Q, 30, 12)
            a.emit('s_barrier')
        def pref1():
            if ZD == 'b': zbar()
            a.emit('s_waitcnt vmcnt(0)')
        if ZD == 'a': zbar()
        L.run('1', tail_issue=lambda: side(a, 1, 'issue'), ntail_vm=n1, tail_late=TL1, final=final4, extra=lambda i: stats4_loads(32, True) if i == int(ENV('STQ', '14')) else [],
              post=fill, dep=lambda pf: dep_wait(a, kind, halo=True, postf=pf, pref=pref1 if ot else None, preg=(lambda: a.emit('s_waitcnt vmcnt(6)')) if WG else None))
    else: L.run('1', tail_issue=tail1, ntail_vm=16 + n1, final=final1, extra=extra, post=fill, dep=(lambda pf: dep_wait(a, kind, halo=True, postf=pf)) if MEGA else None)
    if WE < 0 and PT != 2: a.emit('s_barrier')
    if not MEGA: side(a, 1, 'finish')
    a.label(f'L_{kind}_ldend')
    loader_end(a, kind, check=False)
    a.label(end)
    a.emit('s_endpgm')
    loader_first(a, kind)
    a(KD.format(name=f'{kind}l0_kernel'))
    if not MEGA:
        stub(a, f'{kind}l1_kernel', body, 1, tsidx + 4, False)
        a(KD.format(name=f'{kind}l1_kernel'))
    a.label(f'L_{kind}_c1')
    return LST + 1280
```

```python
import sys, os, struct
sys.path.insert(0, os.path.join(os.path.dirname(os.path.abspath(__file__)), '..'))
from asmlib import Asm, check_offsets
MB = 1 << 20
WSB = int(os.environ.get('WSB', '0')) * MB
WS_O   = WSB
WS_X1  = WSB + 4 * MB
WS_H   = WSB + 8 * MB
WS_ST  = WSB + 23 * MB
WS_CS  = WSB + 23 * MB + 512 * 1024
WS_ST0 = WSB + 22 * MB + 512 * 1024
D2 = os.environ.get('DS', '2') == '2'
DS = os.environ.get('DS', '2') in '12'
WS_TS  = 60 * MB
MEGA = os.environ.get('MEGA', '2') in ('1', '2')
ONE = os.environ.get('MEGA', '2') == '2'
LSTR = int(os.environ.get('LSTR', '64')) * MB
WS_ST2 = WS_ST + 256 * 1024 if MEGA else WS_ST
WS_FL = WSB + 40 * MB
FLS = 524288
REP = int(os.environ.get('REP', '16'))
WS_XP = WSB + 24 * MB
WS_X2 = WSB + 32 * MB
XPAD = int(os.environ.get('XPAD', '128')) if MEGA else 0
f2u = lambda f: struct.unpack('<I', struct.pack('<f', f))[0]
ENV = os.environ.get
TS = ENV('TS', '')
TE = ENV('TE', '')
DBG = ENV('DBG', '').split(',')
EARLY = int(ENV('EARLY', '0')) if MEGA and ENV('SPLIT', '0') == '0' else 0
def stf(kind): return (' ' + ENV('WTF', 'sc1')) if kind in ENV('WT', 'attn,wo,w2,w1').split(',') else ''

KA = {'A_x': 0, 'wqkv': 8, 'wo': 16, 'w1': 32, 'b1': 40, 'w2': 48, 'b2': 56, 'out': 64, 'ws': 80}
P_IN = 16
P_OUT = 32; P_WS = 34
P_XS = 12
PTR = {'A_x': 16, 'wqkv': 18, 'wo': 20, 'w1': 24, 'b1': 26, 'w2': 28, 'b2': 30, 'out': 32, 'ws': 34, 'xs': 12, 'ws0': 22}
SX, SW, SO, SR, SB, ST, SP, SC = 36, 40, 44, 48, 52, 56, 60, 64
S_MT, S_NT, S_WV, S_WM, S_WN = 68, 69, 70, 71, 72
S_KX, S_KW, S_SLOT, S_XD, S_WD, S_HD, S_CNT = 73, 74, 75, 76, 77, 78, 79
S_LAYER = 96; S_TSI = 97; S_T = 98; S_CU = 99; S_XG = 100; S_KT = 101

KD = '''.section .rodata,"a"
.p2align 6
.amdhsa_kernel {name}
  .amdhsa_next_free_vgpr 256
  .amdhsa_next_free_sgpr 102
  .amdhsa_accum_offset 256
  .amdhsa_group_segment_fixed_size 0
  .amdhsa_kernarg_size 88
  .amdhsa_user_sgpr_count 2
  .amdhsa_user_sgpr_kernarg_segment_ptr 1
  .amdhsa_system_sgpr_workgroup_id_x 1
  .amdhsa_float_denorm_mode_32 3
  .amdhsa_float_denorm_mode_16_64 3
.end_amdhsa_kernel
.text
'''

def srd(a, sd, which, off, size):
    p = PTR[which]
    if off:
        a.emit(f's_add_u32 s{sd}, s{p}, {off}')
        a.emit(f's_addc_u32 s{sd+1}, s{p+1}, 0')
        a.emit(f's_and_b32 s{sd+1}, s{sd+1}, 0xffff')
    else:
        a.emit(f's_mov_b32 s{sd}, s{p}')
        a.emit(f's_and_b32 s{sd+1}, s{p+1}, 0xffff')
    a.emit(f's_mov_b32 s{sd+2}, {size}')
    a.emit(f's_mov_b32 s{sd+3}, 0x00020000')

def xpitch(a, sd, inv=False):
    a.emit(f's_cmp_eq_u32 s{S_LAYER}, {0 if inv else 1}')
    a.emit(f's_cselect_b32 s{sd}, {XPAD}, 0')
    a.emit(f's_add_u32 s{sd}, s{sd}, 2048')

def srd_xs(a, sd):
    srd(a, sd, 'xs', 0, 4 * MB)
    xpitch(a, sd + 2)
    a.emit(f's_lshl_b32 s{sd+2}, s{sd+2}, 11')

def stub(a, name, body, layer, tsidx, first):
    a(f'.text\n.globl {name}\n.p2align 8\n.type {name},@function\n{name}:')
    if TS:
        stamp(a, 0, nowait=True)
    if TE: a.emit('s_memrealtime s[94:95]')
    for x in ENV('PERM', '').split():
        a.emit(f"s_bitcmp1_b32 s2, {x.split(':')[0]}")
        a.emit(f"s_cselect_b32 s3, {x.split(':')[1]}, 0")
        a.emit('s_xor_b32 s2, s2, s3')
    a.emit('s_load_dwordx4 s[16:19], s[0:1], 0')
    a.emit('s_load_dwordx2 s[20:21], s[0:1], 16')
    a.emit('s_load_dwordx2 s[22:23], s[0:1], 80')
    a.emit('s_load_dwordx8 s[24:31], s[0:1], 32')
    a.emit('s_load_dwordx2 s[32:33], s[0:1], 64')
    a.emit('s_load_dwordx2 s[34:35], s[0:1], 80')
    a.emit(f's_load_dwordx2 s[12:13], s[0:1], {0 if layer == 0 else 64}')
    if DS: a.emit(f's_load_dwordx2 s[{SC}:{SC+1}], s[0:1], 72')
    a.emit(f's_mov_b32 s{S_LAYER}, {layer}')
    if ENV('PADS', '0') == '1': a.emit('s_mov_b64 exec, -1')
    a.emit(f's_mov_b32 s{S_TSI}, {tsidx}')
    if not first:
        a.emit(f's_branch {body}')

def stamp(a, n, nowait=False):
    if not TS: return
    a.emit(f's_memrealtime s[{80+4*n}:{81+4*n}]')
    a.emit(f's_memtime s[{82+4*n}:{83+4*n}]')
    if not nowait: a.emit('s_waitcnt lgkmcnt(0)')

def stamps_out(a, tag):
    if not TS: return
    if not MEGA: a.emit('s_waitcnt vmcnt(0)')
    stamp(a, 3)
    if MEGA and tag == 'w1':
        for i in range(16): a.emit(f'v_writelane_b32 v31, s{80+i}, {i}')
        return
    srd(a, SP, 'ws0', WS_TS, 1 << 20)
    a.emit('s_lshl_b32 s4, s2, 6')
    a.emit(f's_lshl_b32 s5, s{S_TSI}, 16')
    a.emit('s_add_u32 s4, s4, s5')
    if ENV('STR') == tag:
        a.emit('v_lshlrev_b32 v2, 2, v0')
        a.emit('v_cmp_gt_u32 vcc, 16, v0')
        a.emit('s_add_u32 s5, s4, 32768\n  s_nop 0')
        a.emit('v_cndmask_b32 v2, -1, v2, vcc')
        a.emit(f'buffer_store_dword v3, v2, s[{SP}:{SP+3}], s5 offen')
    a.emit('v_mov_b32 v1, s4')
    for i in range(16): a.emit(f'v_mov_b32 v{4+i}, s{80+i}')
    a.emit('v_cmp_eq_u32 vcc, 0, v0')
    a.emit('s_and_saveexec_b64 s[6:7], vcc')
    a.emit(f's_cbranch_execz L_tsskip_{tag}')
    for j in range(4):
        a.emit(f'buffer_store_dwordx4 v[{4+4*j}:{7+4*j}], v1, s[{SP}:{SP+3}], 0 offen offset:{16*j}' + (' sc1' if ENV('DIAG') else ''))
    if MEGA and tag == 'w2':
        a.emit('s_mov_b64 exec, 0xffff')
        a.emit('s_sub_u32 s4, s4, 0x10000')
        a.emit('v_lshlrev_b32 v1, 2, v0')
        a.emit(f'buffer_store_dword v31, v1, s[{SP}:{SP+3}], s4 offen' + (' sc1' if ENV('DIAG') else ''))
    a.label(f'L_tsskip_{tag}')
    a.emit('s_mov_b64 exec, -1')

SPX = ENV('SPX', '1') == '1'
OT = ENV('OT', 'w1,w2,attn').split(',')
S_T0 = 91
OHB = 114688; OBIA = [10, 24, 124, 126]
NV = int(ENV('NV', '0'))
EF = int(ENV('EF', '0'))
NS = ENV('NS', 'wo,w1,w2').split(',')
NSR = ENV('NSR', '1') == '1'
SKL = ENV('SKL', '1') == '1'
SF = ENV('SF', '0') == '1'
WD = ENV('WD', 'c')
ZD = ENV('ZD', 'a')
OH = int(ENV('OH', '1'))
OHO = (0, 51200, 81920)[OH]
HALT = 33 * MB
GM = ENV('GM', '0') == '1'
S_MD = 93 if GM else 92; VMD = 27
CF = int(ENV('CF', '1'))
WE = int(ENV('WE', '-1'))
LF1 = int(ENV('LF1', '0'))
MF = int(ENV('MF', '2'))
LF2 = int(ENV('LF2', '2'))
EX = int(ENV('EX', '14'))
LSTK = ENV('LSTK', 'w2')
LREG = [52, 54, 56, 58] if LSTK == 'w2' else [36, 38, 48, 50] if LSTK == 'wo' else [80, 82, 48, 50]
def lstamp(a, n, dep=False):
    if dep and (ENV('LST') == 'x' or LSTK != 'w2'): return
    if TS: a.emit(f's_memrealtime s[{LREG[n]}:{LREG[n]+1}]')

def lstamps_out(a, tag):
    if not TS: return
    a.emit(f"s_cmp_lg_u32 s{S_WV}, {ENV('PW_' + tag.upper(), '4')}")
    a.emit(f's_cbranch_scc1 L_ltsskip_{tag}')
    a.emit('s_waitcnt lgkmcnt(0)')
    srd(a, SP, 'ws0', WS_TS + 16384, 1 << 20)
    a.emit('s_lshl_b32 s4, s2, 6')
    a.emit(f's_lshl_b32 s5, s{S_TSI}, 16')
    a.emit('s_add_u32 s4, s4, s5')
    for i in range(8): a.emit(f'v_writelane_b32 v20, s{LREG[i>>1]+(i&1)}, {i}')
    a.emit('v_lshlrev_b32 v21, 2, v1')
    a.emit('s_mov_b64 exec, 0xff')
    a.emit(f'buffer_store_dword v20, v21, s[{SP}:{SP+3}], s4 offen')
    a.emit('s_mov_b64 exec, -1')
    a.label(f'L_ltsskip_{tag}')

def tile_map(a, LM, endlab, pair=False):
    if endlab:
        a.emit('s_cmp_ge_u32 s2, 256')
        a.emit(f's_cbranch_scc1 {endlab}')
        a.emit('v_lshrrev_b32 v2, 6, v0')
        a.emit('v_and_b32 v1, 63, v0')
        a.emit(f'v_readfirstlane_b32 s{S_WV}, v2')
    a.emit('s_and_b32 s3, s2, 7')
    if endlab: a.emit(f's_lshr_b32 s{S_CU}, s2, 3')
    if LM == 2 and ENV('MAP2', '0') == '1':
        a.emit('s_lshl_b32 s5, s3, 1')
        a.emit('s_lshr_b32 s6, s3, 1')
        a.emit('s_and_b32 s5, s5, 2')
        a.emit('s_and_b32 s6, s6, 1')
        a.emit('s_or_b32 s5, s5, s6')
    else: a.emit(f's_and_b32 s5, s3, {(1 << (4 - LM)) - 1}')
    a.emit(f's_lshl_b32 s5, s5, {LM}')
    a.emit(f's_and_b32 s6, s{S_CU}, {(1 << LM) - 1}')
    a.emit(f's_add_u32 s{S_MT}, s5, s6')
    a.emit(f's_lshr_b32 s5, s3, {4 - LM}')
    if pair:
        a.emit(f's_lshr_b32 s{S_HD}, s{S_CU}, {LM}')
        a.emit(f's_lshl1_add_u32 s{S_NT}, s{S_HD}, s5')
        return
    a.emit(f's_lshl_b32 s5, s5, {5 - LM}')
    a.emit(f's_lshr_b32 s6, s{S_CU}, {LM}')
    a.emit(f's_add_u32 s{S_NT}, s5, s6')
    if 'smallm' in DBG: a.emit(f's_and_b32 s{S_MT}, s{S_MT}, 1')
    if 'smalln' in DBG: a.emit(f's_and_b32 s{S_NT}, s{S_NT}, 1')

def interleave(a, main, side, lead=1, per=1):
    si = 0
    for i, m in enumerate(main):
        a.emit(m)
        if i + 1 >= lead:
            for _ in range(per):
                if si < len(side): a.emit(side[si]); si += 1
    while si < len(side): a.emit(side[si]); si += 1

CHN = ENV('CHN', 'w1,attn').split(',')
CKN = int(ENV('CKN', '1'))
def vregs(x):
    import re
    return [(int(p), int(q)) for p, q in re.findall(r'v\[(\d+):(\d+)\]', x)]
def uses(ms, rd):
    d = vregs(rd)[0][0]
    return [i for i, m in enumerate(ms) if any(p <= d <= q for p, q in vregs(m)[1:3])]
def waits_for(ms, fl, pend, skip=0):
    q = list(pend)
    for i in range(len(ms)):
        for x in fl.get(i, []):
            if x.startswith('ds_'): q.append(x)
            if x.startswith('s_waitcnt lgkmcnt('):
                n = int(x.split('(')[1].split(')')[0]); q = q[len(q) - n:] if n < len(q) else q
        nx = [ms[i + 1]] if i + 1 < len(ms) else ms[:skip + 1] if skip >= 0 else []
        nd = [j for j, x in enumerate(q) if 'read' in x and uses(nx, x)]
        if nd:
            n = min(15, len(q) - 1 - max(nd)); q = q[len(q) - n:]
            fl.setdefault(i, []).append(f's_waitcnt lgkmcnt({n})')
    return q
QS = int(ENV('QS', '1'))
PO0, POM = [int(x) for x in ENV('PO', '1,3').split(',')]
KSH = int(ENV('KSH', '0')); LAT = int(ENV('LAT', '0'))
def own_pos(a, sd):
    a.emit(f's_and_b32 s{sd}, s{S_NT}, {POM}')
    a.emit(f's_add_u32 s{sd}, s{sd}, {PO0}')

class Loader:
    VXD = 4; VWD = 8; VXH = 28
    def __init__(self, a, tag, K, lda2, ldw2, panels, colbase, S, STAGE, halo=None, delta=0, rot=None, xblk=False, half=0):
        self.a = a; self.tag = tag; self.K = K; self.lda2 = lda2; self.ldw2 = ldw2; self.panels = panels
        self.colbase = colbase; self.S = S; self.STAGE = STAGE; self.halo = halo; self.delta = delta; self.xblk = xblk; self.rot = rot if rot is not None and rot >= 0 else None
        self.NSTEP = K // 64; self.half = half; self.ot = 0; self.skip = False; self.loc = False; self.pre = {}; self.pad = None
        self.per = 4 + 2 * len(panels) + (1 if halo is not None else 0)
    def setup(self):
        a = self.a
        if ENV('PRIO', '0') != '0': a.emit(f"s_setprio {ENV('PRIO')}")
        a.emit(f's_add_u32 s8, s{S_WV}, s{S_NT}')
        a.emit('s_and_b32 s8, s8, 3')
        a.emit(f's_add_u32 s9, s{S_WV}, s{S_MT}')
        a.emit('s_and_b32 s9, s9, 3')
        a.emit(f's_lshl_b32 s{S_XD}, s8, 12')
        a.emit(f's_lshl_b32 s{S_WD}, s9, 11')
        a.emit(f's_add_u32 s{S_WD}, s{S_WD}, 16384')
        a.emit(f's_lshl_b32 s11, s{S_MT}, 7')
        a.emit('v_and_b32 v10, 7, v1')
        if self.xblk: self.xoff_blk(self.lda2)
        else: self.xoff_rows(self.lda2)
        ns = self.tag in NS and not NSR; nr = self.tag in NS and NSR
        wrow(a, 9, ns)
        a.emit(f'v_mul_u32_u24 v3, {self.ldw2}, v3')
        a.emit('v_lshrrev_b32 v2, 3, v1')
        a.emit(f'v_and_b32 v2, {6 if nr else 2}, v2')
        a.emit('v_xor_b32 v2, v2, v10')
        a.emit(f's_mul_i32 s10, s{S_NT}, {self.colbase}')
        if 'noslow' in DBG and self.tag == 'attn':
            a.emit(f's_bitcmp1_b32 0x0808, s{S_NT}')
            a.emit('s_cselect_b32 s3, 512, 0')
            a.emit('s_add_u32 s10, s10, s3')
        if self.colbase & 127: a.emit('s_andn2_b32 s10, s10, 127')
        a.emit('v_add_u32 v3, s10, v3')
        a.emit(f'v_lshl_add_u32 v{self.VWD}, v2, 4, v3')
        if not nr: a.emit('v_xor_b32 v2, 4, v2')
        a.emit(f'v_add_u32 v3, {(4 if ns else 8)*self.ldw2}, v3')
        a.emit(f'v_lshl_add_u32 v{self.VWD+1}, v2, 4, v3')
        if self.half:
            if ns:
                a.emit('v_bfe_u32 v3, v1, 2, 2')
                a.emit('v_lshrrev_b32 v2, 5, v1')
                a.emit('v_lshl_add_u32 v3, v2, 2, v3')
                a.emit('v_and_b32 v2, 16, v1')
                a.emit('s_and_b32 s10, s9, 2')
                a.emit('s_add_u32 s10, s10, s9')
                a.emit('s_lshl_b32 s10, s10, 3')
                a.emit('v_add3_u32 v3, s10, v3, v2')
            else:
                a.emit('v_lshrrev_b32 v3, 2, v1')
                a.emit('s_lshl_b32 s10, s9, 4')
                a.emit('v_add_u32 v3, s10, v3')
            a.emit(f'v_mul_u32_u24 v3, {self.ldw2}, v3')
            if 'w2' in NS: a.emit(f'v_bfe_u32 v2, v1, {4 if nr else 5}, 1')
            else:
                a.emit(f'v_lshrrev_b32 v2, {3 if nr else 4}, v1')
                a.emit('v_and_b32 v2, 2, v2')
            a.emit('v_xor_b32 v2, v2, v1')
            a.emit('v_and_b32 v2, 3, v2')
            a.emit(f's_lshl_b32 s10, s{S_NT}, 6')
            a.emit(f's_add_u32 s10, s10, {self.half}')
            a.emit('v_add_u32 v3, s10, v3')
            a.emit(f'v_lshl_add_u32 v{self.VXH}, v2, 4, v3')
            a.emit(f's_lshl_b32 s{S_HD}, s{S_NT}, 7')
            a.emit(f's_add_u32 s{S_HD}, s{S_HD}, 3072')
        if self.halo is not None:
            a.emit(f's_and_b32 s10, s{S_WV}, 3')
            a.emit(f's_lshl_b32 s{S_HD}, s10, 9')
            a.emit(f's_add_u32 s{S_HD}, s{S_HD}, {self.halo}')
            a.emit('s_lshl_b32 s14, s10, 2')
            a.emit('s_add_u32 s14, s14, s11')
            a.emit('s_sub_u32 s14, s14, 16')
            a.emit('v_lshrrev_b32 v3, 3, v1')
            a.emit('v_add_u32 v3, s14, v3')
            a.emit('v_max_i32 v3, 0, v3')
            a.emit('v_mul_u32_u24 v3, s5, v3')
            a.emit('s_lshl_b32 s14, s10, 1')
            a.emit('v_lshrrev_b32 v2, 4, v1')
            a.emit('v_add_u32 v2, s14, v2')
            a.emit('v_and_b32 v2, 7, v2')
            a.emit('v_xor_b32 v2, v2, v10')
            a.emit(f'v_lshl_add_u32 v{self.VXH}, v2, 4, v3')
            a.emit('s_cmp_eq_u32 s10, 0')
            a.emit('s_cselect_b32 s14, 0xffffff00, -1')
            a.emit('s_mov_b32 s15, 0')
        a.emit(f's_mov_b32 s{S_SLOT}, 0')
        if self.rot is None:
            a.emit(f's_mov_b32 s{S_KX}, 0')
            a.emit(f's_mov_b32 s{S_KW}, 0')
        else:
            if not getattr(self, 'noxg', False): a.emit(f's_add_u32 s{S_XG}, s{S_MT}, s{S_NT}')
            a.emit(f's_mov_b32 s{S_KT}, {0 if EARLY and self.tag == "w2" else -1}')
            ko = int(ENV('KOFF_' + self.tag.upper(), '0'))
            if ko:
                a.emit(f"s_bitcmp1_b32 {ENV('KMSK_' + self.tag.upper(), '0x0808' if self.tag == 'attn' else '0x2aea')}, s{S_NT}")
                a.emit(f's_cselect_b32 s{S_KT}, {ko - 1}, s{S_KT}')
            if self.kord(): self.ktable()
            if self.skip:
                if LAT:
                    a.emit(f's_mul_i32 s3, s{S_MT}, {LAT}')
                    a.emit(f's_add_u32 s3, s3, s{S_NT}')
                    a.emit(f's_and_b32 s{S_T0}, s3, 15')
                elif KSH:
                    a.emit(f's_and_b32 s{S_T0}, s{S_NT}, 3')
                    a.emit(f's_and_b32 s93, s{S_NT}, 12')
                    if KSH == 2:
                        a.emit(f's_and_b32 s3, s{S_MT}, 8')
                        a.emit('s_add_u32 s93, s93, s3')
                else: a.emit(f's_mov_b32 s{S_T0}, s{S_NT}')
                own_pos(a, 92)
                for x in self.knext(): a.emit(x)
            elif not self.ot:
                for x in self.knext(): a.emit(x)
    def kord(self): return ENV('KORD_' + self.tag.upper(), {'w1': '2', 'attn': '0,2'}.get(self.tag, ''))
    def korder(self, g, start):
        D = int(ENV('ROTD_' + self.tag.upper(), ENV('ROTD', '2')))
        o = list(range(16))
        if start < 0:
            dl = {3: [3, -1, -1, -1], 2: [2, -1, -1, 0], 1: [1, -1, 0, 0]}[D]
            return [(t + dl[(t - g) & 3]) & 15 for t in range(16)]
        for t in range(start + g, 16 - D, 4): o[t:t + D + 1] = [t + D] + list(range(t, t + D))
        return o
    def ktable(self, start=None):
        a = self.a
        if start is None: start = int(self.kord().split(',')[0])
        a.emit(f's_add_u32 s3, s{S_MT}, s{S_NT}')
        a.emit('s_and_b32 s3, s3, 3')
        for g in range(4):
            v = sum((2 * (k & 7) + (k >> 3) if self.loc else k) << (4 * i) for i, k in enumerate(self.korder(g, start)))
            if self.loc: assert max(self.korder(g, start)[:6]) < 8
            if g: a.emit(f's_cmp_eq_u32 s3, {g}')
            for h in range(2):
                a.emit(f's_cselect_b32 s{S_XG+h}, {(v >> (32 * h)) & 0xffffffff:#x}, s{S_XG+h}' if g else f's_mov_b32 s{S_XG+h}, {(v >> (32 * h)) & 0xffffffff:#x}')
        if self.loc:
            a.emit(f's_bitcmp1_b32 s{S_NT}, 3')
            a.emit('s_cselect_b32 s3, 0x11111111, 0')
            for h in range(2): a.emit(f's_xor_b32 s{S_XG+h}, s{S_XG+h}, s3')
    def own(self):
        D = int(ENV('ROTD_' + self.tag.upper(), ENV('ROTD', '2')))
        dl = {3: [3, -1, -1, -1], 2: [2, -1, -1, 0], 1: [1, -1, 0, 0]}[D]
        tbl = sum(((-d) % 16) << (8 * ((r + d) & 3)) for r, d in enumerate(dl))
        assert self.rot == 0 and self.NSTEP == 16
        if self.kord():
            return [f's_lshr_b32 s3, s{S_NT}, 3', f's_and_b32 s{S_KX}, s{S_NT}, 7', f's_lshl1_add_u32 s{S_T0}, s{S_KX}, s3',
                    f's_mul_i32 s{S_KW}, s{S_T0}, {64*self.ldw2}', f's_lshl_b32 s{S_KX}, s{S_T0}, {11 if self.xblk else 7}']
        return [f's_lshr_b32 s3, s{S_NT}, 3', f's_and_b32 s{S_KX}, s{S_NT}, 7', f's_lshl1_add_u32 s{S_KX}, s{S_KX}, s3',
                f's_sub_u32 s3, s{S_KX}, s{S_XG}', 's_lshl_b32 s3, s3, 3', f's_lshr_b32 s3, {tbl:#x}, s3',
                f's_add_u32 s3, s3, s{S_KX}', f's_and_b32 s{S_T0}, s3, 15',
                f's_mul_i32 s{S_KW}, s{S_KX}, {64*self.ldw2}', f's_lshl_b32 s{S_KX}, s{S_KX}, {11 if self.xblk else 7}']
    def xoff_rows(self, ld):
        a = self.a
        a.emit('v_lshrrev_b32 v3, 3, v1')
        a.emit(f's_lshr_b32 s10, s{S_XD}, 7')
        a.emit(f's_lshl_b32 s3, s{S_MT}, 7')
        a.emit('s_add_u32 s10, s10, s3')
        a.emit('v_add_u32 v3, s10, v3')
        xpitch(a, 5)
        a.emit('s_lshl_b32 s6, s5, 3')
        a.emit('v_mul_u32_u24 v3, s5, v3')
        a.emit('v_lshrrev_b32 v2, 4, v1')
        for j in range(4):
            d = self.VXD + j
            if j & 1:
                a.emit(f'v_add_u32 v{d}, 4, v2')
                a.emit(f'v_xor_b32 v{d}, v{d}, v10')
            else:
                a.emit(f'v_xor_b32 v{d}, v2, v10')
            a.emit(f'v_lshl_add_u32 v{d}, v{d}, 4, v3')
            if j < 3: a.emit('v_add_u32 v3, s6, v3')
    def xoff_blk(self, ld):
        a = self.a
        a.emit(f's_lshr_b32 s10, s{S_XD}, 11')
        a.emit(f's_lshl_b32 s3, s{S_MT}, 3')
        a.emit('s_add_u32 s10, s10, s3')
        a.emit(f's_mul_i32 s10, s10, {16*ld}')
        a.emit(f'v_lshl_add_u32 v{self.VXD}, v1, 4, s10')
        a.emit(f'v_add_u32 v{self.VXD+1}, {16*ld}, v{self.VXD}')
    def xdma(self, base, imm, sd, soff, blk):
        o = []
        for j in range(4):
            if blk:
                if not j & 1: o += [f's_add_u32 m0, s{base}, {imm + j*1024}', 's_nop 0']
                o.append(f'buffer_load_dwordx4 v{self.VXD+(j>>1)}, s[{sd}:{sd+3}], s{soff} offen offset:{(j&1)*1024} lds')
            else:
                o += [f's_add_u32 m0, s{base}, {imm + j*1024}', 's_nop 0', f'buffer_load_dwordx4 v{self.VXD+j}, s[{sd}:{sd+3}], s{soff} offen lds']
        return o
    def knext(self):
        if self.rot is None:
            return [f's_add_u32 s{S_KX}, s{S_KX}, {2048 if self.xblk else 128}', f's_add_u32 s{S_KW}, s{S_KW}, {64*self.ldw2}']
        if self.kord():
            tb = f's[{S_XG}:{S_XG+1}]'
            o = [f's_and_b32 s{S_KX}, s{S_XG}, 15']
            if self.ot or self.skip: o += [f's_cmp_eq_u32 s{S_KX}, s{S_T0}', f's_cselect_b32 s{S_KW}, 4, 0', f's_lshr_b64 {tb}, {tb}, s{S_KW}', f's_and_b32 s{S_KX}, s{S_XG}, 15']
            if self.skip and not self.ot: o += ['s_sub_u32 s92, s92, 1', f's_cselect_b32 s{S_KX}, s{S_T0}, s{S_KX}', f's_cselect_b32 s{S_KW}, 0, 4'] + ([f's_add_u32 s{S_KX}, s{S_KX}, s93', f's_and_b32 s{S_KX}, s{S_KX}, 15'] if KSH else [])
            return o + [f's_lshr_b64 {tb}, {tb}, ' + (f's{S_KW}' if self.skip and not self.ot else '4'), f's_mul_i32 s{S_KW}, s{S_KX}, {64*self.ldw2}', f's_lshl_b32 s{S_KX}, s{S_KX}, {11 if self.xblk else 7}']
        lc = self.rot; C = 1 << lc; N = self.NSTEP
        o = [f's_add_u32 s{S_KT}, s{S_KT}, 1']
        if self.ot: o += [f's_cmp_eq_u32 s{S_KT}, s{S_T0}', f's_addc_u32 s{S_KT}, s{S_KT}, 0']
        D = int(ENV('ROTD_' + self.tag.upper(), ENV('ROTD', '2')))
        dl = {3: [3, -1, -1, -1], 2: [2, -1, -1, 0], 1: [1, -1, 0, 0]}[D]
        tbl = sum((((d * C) % N) << (8 * i)) for i, d in enumerate(dl))
        if lc: o += [f's_lshr_b32 s{S_KX}, s{S_KT}, {lc}', f's_sub_u32 s{S_KX}, s{S_KX}, s{S_XG}']
        else: o += [f's_sub_u32 s{S_KX}, s{S_KT}, s{S_XG}']
        o += [f's_lshl_b32 s{S_KX}, s{S_KX}, 3',
              f's_lshr_b32 s{S_KX}, {tbl:#x}, s{S_KX}',
              f's_and_b32 s{S_KX}, s{S_KX}, 255',
              f's_add_u32 s{S_KX}, s{S_KX}, s{S_KT}']
        if N & (N - 1) == 0: o += [f's_and_b32 s{S_KX}, s{S_KX}, {N - 1}']
        else: o += [f's_sub_u32 s{S_KW}, s{S_KX}, {N}', f's_cselect_b32 s{S_KX}, s{S_KX}, s{S_KW}']
        o += [f's_mul_i32 s{S_KW}, s{S_KX}, {64*self.ldw2}', f's_lshl_b32 s{S_KX}, s{S_KX}, {11 if self.xblk else 7}']
        return o
    def panels_of(self, t): return self.panels
    def issue_x(self, bx, bh, imm, kx):
        o = self.xdma(bx, imm, SX, kx, self.xblk)
        if self.halo is not None:
            o.append(f's_add_u32 m0, s{S_HD}, {bh}')
            o.append('s_mov_b64 exec, s[14:15]')
            o.append(f'buffer_load_dwordx4 v{self.VXH}, s[{SX}:{SX+3}], s{kx} offen lds')
            o.append('s_mov_b64 exec, -1')
        return o
    def issue_w(self, t, bw, imm):
        o = []
        for pn, goff in enumerate(self.panels_of(t)):
            for i in range(2):
                o.append(f's_add_u32 m0, s{bw}, {imm+pn*8192+i*1024}')
                o.append((goff if str(goff).startswith('s_') else f's_add_u32 s4, s{S_KW}, {goff}') if i == 0 else 's_nop 0')
                o.append(f'buffer_load_dwordx4 v{self.VWD+i}, s[{SW}:{SW+3}], s4 offen lds')
        if self.half:
            o += [f's_add_u32 m0, s{bw}, {imm+len(self.panels)*8192}', 's_nop 0',
                  f'buffer_load_dwordx4 v{self.VXH}, s[{SW}:{SW+3}], s{S_KW} offen lds']
        return o
    def issue(self, t):
        o = [f's_add_u32 s3, s{S_SLOT}, s{S_XD}']
        o += self.issue_x(3, f's{S_SLOT}', 0, S_KX)
        o.append(f's_add_u32 s3, s{S_SLOT}, s{S_WD}')
        o += self.issue_w(t, 3, 0)
        o += self.knext()
        o.append(f's_add_u32 s{S_SLOT}, s{S_SLOT}, {self.STAGE}')
        o.append(f's_cmp_eq_u32 s{S_SLOT}, {self.S*self.STAGE}')
        o.append(f's_cselect_b32 s{S_SLOT}, 0, s{S_SLOT}')
        return o
    def run(self, variant='', tail_issue=None, ntail_vm=0, final=None, post=(), dep=None, tail_late=0, start=None, extra=None, exfirst=False):
        a = self.a; N = self.NSTEP; d = self.S - 1
        tag = self.tag + variant
        nx = 4 + (1 if self.halo is not None else 0)
        nw = lambda t: 2 * len(self.panels_of(t)) + (1 if self.half else 0)
        seq = []
        early = EARLY and self.tag == 'w2'
        pchk = EARLY - 3 - d - 1; piss = pchk - d + 1 - int(ENV('PEARLY', '0'))
        if self.loc: pchk = 3; piss = 2
        def em(o):
            for x in o:
                if 'nodma' in DBG and x.endswith(' lds'): continue
                a.emit(x)
        def after(t): return len(seq) - 1 - max(i for i, x in enumerate(seq) if x == t)
        def wait(n):
            assert n <= 63, n
            a.emit(f's_waitcnt vmcnt({n})')
        if dep is None:
            for t in range(2): em(self.issue(t)); seq += [t] * (nx + nw(t))
            if start: seq += ['S'] * start()
            wait(after(0))
            a.emit('s_barrier')
            for t in range(2, d): em(self.issue(t)); seq += [t] * (nx + nw(t))
        else:
            prev = {'attn': 'w2', 'wo': 'attn', 'w1': 'wo', 'w2': 'w1'}[self.tag]
            assert 'attn' not in EBAR
            ot = self.ot
            if ot: em(self.own() + [f's_mov_b32 s88, s{S_KX}'] + [f's_mov_b32 s72, s{S_KW}'] * (self.tag + 'hit' in DBG) + self.issue_w(0, S_WD, 0) + self.knext()); seq.extend([0] * nw(0))
            a.lines += getattr(self, 'after_own', [])
            dep_pre(a, self.tag)
            if prev in EBAR: a.emit('s_barrier')
            xw = 1 if self.tag in ENV('XW', 'x').split(',') and not hasattr(self, 'P1') else 0
            def prew(ts):
                for t in ts:
                    a.emit(f's_mov_b32 s{88+t}, s{S_KX}')
                    if self.tag + 'hit' in DBG: a.emit(f's_mov_b32 s{S_KW}, s72')
                    em(self.issue_w(t, S_WD, t * self.STAGE) + self.knext()); seq.extend([t] * nw(t))
            late = int(ENV('LATE_' + self.tag.upper(), '2'))
            if ot: xw = 1
            prew(range(ot, d + xw - late))
            self.npre = len(seq)
            a.emit(f's_mov_b32 s{S_SLOT}, {0 if xw else d * self.STAGE}')
            wag = int(ENV('WAG_' + self.tag.upper(), '0'))
            dep((lambda: prew(range(d + xw - late, d + xw - wag))) if late else None)
            if ot and self.halo is not None: em(self.issue_x(S_XD, self.hx, 0, 88)[-4:]); seq.append(0)
            for t in range(ot, d + xw):
                if t >= d + xw - wag: prew([t])
                em(self.issue_x(S_XD, t * self.STAGE, t * self.STAGE, 88 + t)); seq += [t] * nx
            if ot and ENV('OPRIO'): a.emit('s_setprio 0')
            if self.loc: loc_flag(a, self.tag)
            wait(after(ot))
            if self.tag == 'w2': lstamp(a, 2)
            a.emit('s_barrier')
            if early: late_flag(a)
        ev = [None] * self.ot
        for i in range(self.ot, N):
            t = i + d
            if t in seq: t = N + 9
            early = early or self.loc
            if early and i == piss: seq += ['P']
            seq += ['P'] * len(self.pre.get(i, []))
            if t < N: seq += [t] * (nx + nw(t)) + ['Q'] * sum(x.startswith('buffer_') for x in post)
            ex = extra(i) if extra else []
            tl = tail_issue is not None and t == N - 1 + tail_late
            if exfirst: seq += ['E'] * sum(x.startswith('buffer_') for x in ex)
            if tl: seq += ['T'] * ntail_vm
            if not exfirst: seq += ['E'] * sum(x.startswith('buffer_') for x in ex)
            ev.append(((nw(t) if t < N else -1, after(i + 1) if i + 1 < N else -1, tl, early and i == piss, early and i == pchk, tuple(ex)), t))
        i = self.ot; nl = 0
        while i < N:
            j = i
            while j + 1 < N and ev[j + 1][0] == ev[i][0]: j += 1
            n = j - i + 1
            (k, w, tl, pi, pc, ex), t = ev[i]
            if n >= 3:
                nl += 1
                a.emit(f's_mov_b32 s{S_CNT}, {n}')
                a.label(f'L_{tag}_ld{nl}')
            else: j = i
            em(self.pre.get(i, []))
            if pi and self.loc: dep_late(a, self.tag, 0)
            elif pi: a.emit(f'buffer_load_dword v13, v12, s[{SO}:{SO+3}], s86 offen sc1')
            if t < N:
                em(self.issue(t)); em(post)
            if exfirst: em(ex)
            if tl and not ('notail' in DBG and self.tag == 'w1'):
                if ENV('FPRIO'): a.emit('s_setprio 3')
                tail_issue()
                if ENV('FPRIO'): a.emit('s_setprio 0')
            if not exfirst: em(ex)
            if w >= 0: wait(w)
            elif final and 'nofinal' not in DBG:
                if ENV('FPRIO'): a.emit('s_setprio 3')
                final()
                if ENV('FPRIO'): a.emit('s_setprio 0')
            if self.pad and self.pad[0] == i:
                x = a.lines.pop()
                a.emit('s_branch L_padl'); a(f'.fill {self.pad[1] // 4}, 4, 0xbf810000'); a.label('L_padl'); a.lines.append(x)
            if pc and self.loc: dep_late(a, self.tag, 1, w)
            elif pc: late_check(a)
            a.emit('s_barrier')
            if n >= 3:
                a.emit(f's_sub_u32 s{S_CNT}, s{S_CNT}, 1')
                a.emit(f's_cmp_lg_u32 s{S_CNT}, 0')
                a.emit(f's_cbranch_scc1 L_{tag}_ld{nl}')
            i = j + 1

XD = ONE and ENV('SPLIT', '0') == '0' and ENV('XD', '1') == '1'
VW = MEGA and ENV('SPLIT', '0') == '0' and ENV('VW', '0') == '1'
NV1 = int(ENV('NV1', '16')); NV2 = int(ENV('NV2', '12')); NVO = int(ENV('NVO', '11'))
S_TB = 85
def rot_table(a, sd, smt, snt, tag):
    D = int(ENV('ROTD_' + tag.upper(), ENV('ROTD', '2')))
    dl = {3: [3, -1, -1, -1], 2: [2, -1, -1, 0], 1: [1, -1, 0, 0], 0: [0, 0, 0, 0]}[D]
    tbl = sum((d & 255) << (8 * i) for i, d in enumerate(dl))
    a.emit(f's_add_u32 s3, s{smt}, s{snt}')
    a.emit('s_lshl_b32 s3, s3, 3')
    a.emit(f's_lshl_b32 s{sd}, {tbl:#x}, s3')
    a.emit('s_sub_u32 s3, 0, s3')
    a.emit(f's_lshr_b32 s3, {tbl:#x}, s3')
    a.emit(f's_or_b32 s{sd}, s{sd}, s3')

def kpos(N, t, sd, tb=S_TB, halves=True, q=None):
    H, p, add = (28, t >> 1, 28 * (t & 1)) if N == 56 and halves else (N, t, 0)
    o = [f's_bfe_i32 s{sd}, s{tb}, {0x80000 + 8 * (p & 3):#x}', f's_add_i32 s{sd}, s{sd}, {p + add}']
    if p == 0: o += [f's_cmp_lt_i32 s{sd}, {add}', f's_cselect_b32 s{sd}, {H - 1 + add}, s{sd}']
    if p + 3 >= H: o += [f's_sub_u32 s3, s{sd}, {H}', f's_cmp_ge_i32 s{sd}, {H + add}', f's_cselect_b32 s{sd}, s3, s{sd}']
    if q is not None:
        if N == 16 or 1 <= t <= 12: o += [f's_add_u32 s{sd}, s{sd}, s{q}', f's_and_b32 s{sd}, s{sd}, 15']
        elif t <= 16 or t + 3 >= N: o += [f's_add_u32 s3, s{sd}, s{q}', 's_and_b32 s3, s3, 15', f's_cmp_lt_u32 s{sd}, 16', f's_cselect_b32 s{sd}, s3, s{sd}']
    return o

S_Q = 86
MROT = ENV('MROT', '1') == '1'
def rot_q(a, sd, smt, sh=0):
    a.emit(f's_and_b32 s{sd}, s{smt}, {3 if MROT else 0}')
    a.emit(f's_lshl_b32 s{sd}, s{sd}, {2 + sh}')

TSCH = {'wo': [int(c) for c in ENV('TSO', '000')], 'w2': [int(c) for c in ENV('TS2', '000')]}
def tail_parks(nxt, sw, mk=None, sch=None):
    if not XD: return None
    sch = sch or TSCH[nxt]; N = 16 if nxt == 'wo' else 56
    def extra(i):
        if i < 13 or not sum(sch): return []
        a = Asm()
        if i == 13:
            if mk: mk(a)
            a.emit('s_and_b32 s5, s2, 3')
            a.emit('s_lshl_b32 s5, s5, 2')
            a.emit(f's_and_b32 s6, s{S_CU}, 3')
            a.emit('s_add_u32 s5, s5, s6')
            a.emit('s_and_b32 s6, s2, 4')
            a.emit('s_lshl_b32 s6, s6, 1')
            a.emit(f's_lshr_b32 s7, s{S_CU}, 2')
            a.emit('s_add_u32 s6, s6, s7')
            rot_table(a, S_TB, 5, 6, nxt)
            rot_q(a, S_Q, 5)
            a.emit(f's_add_u32 s5, s5, s{S_WV}')
            a.emit('s_and_b32 s5, s5, 3')
            wvoff(a, 16, 5, 6, 2048)
        o = [l.strip() for l in a.lines]
        for t in range(sum(sch[:i - 13]), sum(sch[:i - 12])):
            o += kpos(N, t, 4, S_TB, False, S_Q) + ['s_lshl_b32 s4, s4, 17']
            o += [f'buffer_load_dwordx4 v[{128+8*t+4*j}:{131+8*t+4*j}], v{16+j}, s[{sw}:{sw+3}], s4 offen' for j in range(2)]
        return o
    return extra

def vreg(tag, t):
    if tag == 'wo': return (128 + 8 * (t - 5), False) if 5 <= t < 5 + NVO else None
    if t & 1: return None
    p = t >> 1
    if p < NV1: return (128 + 8 * p, True)
    if p < NV1 + NV2: return (32 + 8 * (p - NV1), False)
    return None

def wrow(a, sqw, ns):
    if ns:
        a.emit('v_bfe_u32 v3, v1, 3, 2')
        a.emit('v_lshrrev_b32 v2, 5, v1')
        a.emit('v_lshl_add_u32 v3, v2, 4, v3')
        a.emit(f's_and_b32 s10, s{sqw}, 2')
        a.emit(f's_add_u32 s10, s10, s{sqw}')
        a.emit('v_lshl_add_u32 v3, s10, 3, v3')
    else:
        a.emit('v_lshrrev_b32 v3, 3, v1')
        a.emit(f's_lshl_b32 s10, s{sqw}, 4')
        a.emit('v_add_u32 v3, s10, v3')

def wvoff(a, vd, sqw, snt, ldw2, ns=False):
    nr = ns and NSR; ns = ns and not NSR
    wrow(a, sqw, ns)
    a.emit(f'v_mul_u32_u24 v3, {ldw2}, v3')
    a.emit('v_lshrrev_b32 v2, 3, v1')
    a.emit(f'v_and_b32 v2, {6 if nr else 2}, v2')
    a.emit('v_xor_b32 v2, v2, v10')
    a.emit(f's_lshl_b32 s10, s{snt}, 7')
    a.emit('v_add_u32 v3, s10, v3')
    a.emit(f'v_lshl_add_u32 v{vd}, v2, 4, v3')
    if not nr: a.emit('v_xor_b32 v2, 4, v2')
    a.emit(f'v_add_u32 v3, {(4 if ns else 8)*ldw2}, v3')
    a.emit(f'v_lshl_add_u32 v{vd+1}, v2, 4, v3')

def park(N, t, r, vo, sw):
    return kpos(N, t, 4) + ['s_lshl_b32 s4, s4, 17'] + [f'buffer_load_dwordx4 v[{r+4*i}:{r+4*i+3}], v{vo+i}, s[{sw}:{sw+3}], s4 offen' for i in range(2)]

class ULoader(Loader):
    def run(self, variant='', tail_issue=None, ntail_vm=0, final=None, post=(), dep=None):
        a = self.a; N = self.NSTEP; d = self.S - 1; tag = self.tag
        seq = []
        def em(o):
            for x in o:
                if 'nodma' in DBG and x.endswith(' lds'): continue
                a.emit(x)
        def after(t): return len(seq) - 1 - max(i for i, x in enumerate(seq) if x == t)
        def wait(n, lg=False):
            assert n <= 63, n
            a.emit(f's_waitcnt vmcnt({n})' + (' lgkmcnt(0)' if lg else ''))
        def iw(t):
            sl = (t % self.S) * self.STAGE; v = vreg(tag, t)
            if v:
                em([f'v_add_u32 v11, {sl}, v14'] + [f'ds_write_b128 v11, v[{v[0]+4*i}:{v[0]+4*i+3}] offset:{1024*i}' for i in range(2)])
            else:
                em([f's_lshl_b32 s{S_KW}, s{S_KX}, 17'] + [x for x in self.issue_w(t, S_WD, sl)])
                seq.extend([t] * 2)
        def ix(t, k):
            em(self.issue_x(S_XD, None, (t % self.S) * self.STAGE, k)); seq.extend([t] * 4)
        rot_table(a, S_TB, S_MT, S_NT, tag)
        a.emit(f'v_lshl_add_u32 v14, v1, 4, s{S_WD}')
        dep_pre(a, tag)
        for t in range(d):
            em(kpos(N, t, S_KX)); iw(t)
            a.emit(f's_lshl_b32 s{88+t}, s{S_KX}, 11')
        for t in range(d, N):
            v = vreg(tag, t)
            if v and not v[1]:
                em(park(N, t, v[0], self.VWD, SW)); seq.extend(['V'] * 2)
        self.npre = len(seq)
        dep()
        for t in range(d): ix(t, 88 + t)
        wait(after(0), True)
        if tag == 'w2': lstamp(a, 2)
        a.emit('s_barrier')
        for i in range(N):
            t = i + d
            if i % 4 == 0 and post and t < N:
                a.emit('s_waitcnt lgkmcnt(0)')
                em(post)
            if t < N:
                em(kpos(N, t, S_KX)); iw(t)
                a.emit(f's_lshl_b32 s{S_KX}, s{S_KX}, 11')
                ix(t, S_KX)
            if t == N - 1: tail_issue(); seq.extend(['T'] * ntail_vm)
            if i + 1 < N: wait(after(i + 1), not post or t == N)
            else: final()
            a.emit('s_barrier')

EBAR = ENV('EBAR', 'x').split(',')
S_FL = 87
def dep_pre(a, kind, part=None, n=0):
    if ONE and kind in (('w1',) if CF == 2 else ('wo', 'w1')):
        ld = f'buffer_load_dword v12, v17, s[{SC}:{SC+3}], 0 offen sc1' if kind == 'wo' else f'buffer_load_dwordx4 v[12:15], v17, s[{SO}:{SO+3}], s3 offen sc1'
        if part == 1: a.emit(f's_waitcnt vmcnt({n})')
        gm = GM and kind == 'wo'
        if gm: a.emit(f's_cmp_lg_u32 s{S_LAYER}, 0')
        else:
            a.emit(f's_add_u32 s3, s{S_LAYER}, s{S_WV}')
            a.emit('s_cmp_lg_u32 s3, 4')
        a.emit(f's_cbranch_scc1 L_{kind}_chk{part}' + 'e' * (gm and part == 1))
        def cmp():
            if gm:
                a.emit('v_or_b32 v13, 0xfefefefe, v12')
                a.emit('v_cmp_ne_u32 vcc, -1, v13')
            elif kind == 'wo': a.emit('v_cmp_ne_u32 vcc, 0x01010101, v12')
            else:
                a.emit('v_and_b32 v12, v12, v13')
                a.emit('v_and_b32 v14, v14, v15')
                a.emit('v_and_b32 v12, v12, v14')
                a.emit('v_cmp_ne_u32 vcc, 1, v12')
        if part == 1:
            cmp()
            a.emit(f's_cbranch_vccz L_{kind}_chk{part}')
        if True:
            if kind == 'wo': a.emit(f's_load_dwordx2 s[{SC}:{SC+1}], s[0:1], 72')
            else: srd(a, SO, 'ws0', WS_FL, FLS)
            if kind == 'wo':
                a.emit('s_waitcnt lgkmcnt(0)')
                a.emit(f's_and_b32 s{SC+1}, s{SC+1}, 0xffff')
                a.emit(f's_mov_b32 s{SC+2}, 256')
                a.emit(f's_mov_b32 s{SC+3}, 0x00020000')
                a.emit('v_lshlrev_b32 v17, 2, v1')
            else:
                a.emit('v_lshrrev_b32 v2, 2, v1')
                a.emit('v_and_b32 v3, 3, v1')
                a.emit('v_lshlrev_b32 v2, 11, v2')
                a.emit('v_lshl_add_u32 v17, v3, 4, v2')
                a.emit(f's_and_b32 s3, s{S_NT}, {REP - 1}')
                a.emit('s_lshl_b32 s3, s3, 7')
        if part == 0: a.emit(ld)
        else:
            a.emit(f's_mov_b32 s{S_CNT}, 0x100000')
            a.label(f'L_{kind}_chkl')
            a.emit(ld)
            a.emit(f's_sub_u32 s{S_CNT}, s{S_CNT}, 1')
            a.emit(f's_cbranch_scc1 L_{kind}_chk{part}')
            a.emit('s_waitcnt vmcnt(0)')
            cmp()
            a.emit(f's_cbranch_vccnz L_{kind}_chkl')
        a.label(f'L_{kind}_chk{part}')
        if gm and part == 1:
            l2_mode(a, 12)
            a.label(f'L_{kind}_chk{part}e')

def l2_mode(a, v):
    assert int(ENV('LM_QKV', '3')) == 3
    a.emit(f'v_mov_b32 v14, v{v}')
    a.emit(f'v_mov_b32 v15, v{v}')
    a.emit(f'v_alignbyte_b32 v13, v{v}, v{v}, 1')
    a.emit(f'v_xor_b32 v13, v13, v{v}')
    a.emit('v_permlane16_swap_b32 v14, v15')
    a.emit(f'v_xor_b32_dpp v12, v{v}, v{v} row_ror:4 row_mask:0xf bank_mask:0xf')
    a.emit('v_xor_b32 v14, v14, v15')
    a.emit('v_or3_b32 v13, v13, v12, v14')
    a.emit('v_cmp_ne_u32 vcc, 0, v13')
    a.emit(f's_or_b32 s{S_MD}, vcc_lo, vcc_hi')

def dep_wait(a, kind, halo=False, skip_first=False, first=None, preg=None, postf=None, pref=None, defer=False, obar=False):
    if skip_first and not ONE:
        a.emit(f's_cmp_eq_u32 s{S_TSI}, 1')
        a.emit(f's_cbranch_scc1 L_{kind}_dep')
    srd(a, SO, 'ws0', WS_FL, FLS)
    if ONE and kind == 'wo' and first:
        a.emit(f's_cmp_lg_u32 s{S_LAYER}, 0')
        a.emit(f's_cbranch_scc1 L_{kind}_nofirst')
        first()
        a.label(f'L_{kind}_nofirst')
    a.emit(f's_lshl4_add_u32 s3, s{S_TSI}, s{S_MT}')
    a.emit(f's_and_b32 s4, s{S_NT}, {REP - 1}')
    a.emit('s_lshl4_add_u32 s3, s3, s4')
    a.emit('s_lshl_b32 s3, s3, 7')
    a.emit('s_sub_u32 s3, s3, 32768')
    a.emit('v_lshlrev_b32 v11, 7, v1')
    if halo:
        a.emit(f's_cmp_eq_u32 s{S_MT}, 0')
        a.emit('s_cselect_b32 s4, 15, 31')
        a.emit('v_and_b32 v2, 16, v1')
        a.emit('v_lshl_add_u32 v11, v2, 2, v11')
        a.emit('v_and_b32 v2, s4, v1')
    else: a.emit('v_and_b32 v2, 15, v1')
    a.emit('v_lshlrev_b32 v2, 2, v2')
    xc = OH and kind == 'w1' and not GM
    if xc:
        a.emit('s_getreg_b32 s4, hwreg(HW_REG_XCC_ID, 0, 4)')
        if ENV('FB'): a.emit(f"s_and_b32 s4, s2, {ENV('FB')}")
        a.emit('v_add_u32 v3, 1, s4')
    else: a.emit('v_mov_b32 v3, 1')
    a.emit(f's_mov_b32 s{S_CNT}, 0x100000')
    if kind == LSTK == 'wo': lstamp(a, 2)
    if pref: pref()
    lf = LF2 and kind == 'w2'
    if lf:
        a.emit(f's_mov_b32 s{S_Q}, s3')
        a.emit('s_or_b32 s4, s2, 0xe0')
        a.emit(f's_lshl4_add_u32 s4, s4, s{S_LAYER}')
        a.emit('s_lshl_b32 s4, s4, 7')
        a.emit(f's_lshl2_add_u32 s93, s{S_HD}, s4')
        a.emit(f's_cmp_eq_u32 s{S_MD}, 0')
        a.emit('s_cselect_b32 s3, s4, s3')
        a.emit('s_cselect_b32 s4, 28, 60')
        a.emit('v_and_b32 v13, s4, v2')
        if ENV('LFT', '1') == '1':
            a.emit(f's_cmp_lg_u32 s{S_WV}, 4')
            a.emit('s_cbranch_scc1 L_w2_notch')
            a.emit(f'buffer_load_dword v12, v13, s[{SO}:{SO+3}], s3 offen sc1')
            a.label('L_w2_notch')
    if OH and kind == 'w2': a.emit(f'v_cmp_ne_u32 vcc, s{S_MD}, 0')
    a.emit(f's_cmp_lg_u32 s{S_WV}, 4')
    a.emit('s_barrier')
    if kind == 'w2': lstamp(a, 0, True)
    if kind == LSTK == 'w1': lstamp(a, 0)
    a.emit(f's_cbranch_scc1 L_{kind}_{"nofl" if postf else "dep"}')
    if OH and kind == 'w2':
        a.emit('s_cbranch_vccnz L_w2_wb')
        a.label('L_w2_wbd')
    if lf:
        a.emit('s_mov_b64 exec, 1')
        a.emit(f'buffer_store_dword v3, off, s[{SO}:{SO+3}], s93')
    a.emit(f's_mov_b32 exec_lo, {((1 << REP) - 1) * (0x10001 if halo else 1):#x}')
    a.emit('s_mov_b32 exec_hi, 0')
    a.emit(f'buffer_store_dword v3, v11, s[{SO}:{SO+3}], s{S_FL} offen sc1')
    a.emit('s_mov_b64 exec, -1')
    if lf and ENV('LFX'):
        a.label('L_w2_spoll')
        if ENV('LFX') == 's':
            a.emit(f's_buffer_load_dwordx8 s[4:11], s[{SO}:{SO+3}], s3 glc')
            a.emit(f's_sub_u32 s{S_CNT}, s{S_CNT}, 16')
            a.emit('s_cbranch_scc1 L_w2_spok')
            a.emit('s_waitcnt lgkmcnt(0)')
            a.emit('s_and_b64 s[4:5], s[4:5], s[6:7]')
            a.emit('s_and_b64 s[8:9], s[8:9], s[10:11]')
            a.emit('s_and_b64 s[4:5], s[4:5], s[8:9]')
            a.emit('s_and_b32 s4, s4, s5')
            a.emit('s_cbranch_scc0 L_w2_spoll')
        else:
            a.emit(f'buffer_load_dword v12, v13, s[{SO}:{SO+3}], s3 offen sc1')
            a.emit(f's_sub_u32 s{S_CNT}, s{S_CNT}, 16')
            a.emit('s_cbranch_scc1 L_w2_spok')
            a.emit('s_waitcnt vmcnt(0)')
            a.emit('v_cmp_ne_u32 vcc, 1, v12')
            a.emit('s_cbranch_vccnz L_w2_spoll')
        a.label('L_w2_spok')
        lstamp(a, 1, True)
        a.emit(f's_mov_b32 s{S_CNT}, 0x100000')
    PSP = int(ENV('PSP', '0'))
    if defer:
        a.label(f'L_{kind}_nofl')
        a.emit(f's_mov_b32 s{S_Q}, s3')
        postf()
        return
    if postf and PSP:
        a.label(f'L_{kind}_nofl')
        a.emit('s_mov_b32 s5, s3')
        i0 = len(a.lines); postf(); ls = a.lines[i0:]; del a.lines[i0:]
        dma = [i for i, l in enumerate(ls) if 'buffer_load' in l]
        poll = lambda k: f'buffer_load_dword v{24+k}, v2, s[{SO}:{SO+3}], s5 offen sc1'
        for i, l in enumerate(ls):
            a.lines.append(l)
            for k in range(3):
                if dma and i == dma[-1 - PSP * (3 - k)]: a.emit(poll(k))
        a.emit(f's_cmp_lg_u32 s{S_WV}, 4')
        a.emit(f's_cbranch_scc1 L_{kind}_dep')
        def chk(k, n, last=False):
            a.emit(poll((k + 3) & 3))
            a.emit(f's_waitcnt vmcnt({n})')
            a.emit(f'v_cmp_ne_u32 vcc, 1, v{24+k}')
            a.emit(f's_cbranch_vccnz L_{kind}_poll' if last else f's_cbranch_vccz L_{kind}_dep')
        for k in range(3): chk(k, 3 + PSP * (3 - k))
        a.label(f'L_{kind}_poll')
        a.emit(f's_sub_u32 s{S_CNT}, s{S_CNT}, 1')
        a.emit(f's_cbranch_scc1 L_{kind}_dep')
        for k in (3, 0, 1, 2): chk(k, 3, k == 2)
    else:
        if postf:
            if obar:
                a.emit(f's_waitcnt vmcnt({obar})')
                a.emit(f's_branch L_{kind}_obar')
            a.label(f'L_{kind}_nofl')
            if obar:
                a.emit(f's_waitcnt vmcnt({obar - 1})')
                a.label(f'L_{kind}_obar')
                a.emit('s_barrier')
                if ENV('OPRIO'): a.emit(f"s_setprio {ENV('OPRIO')}")
            a.emit('s_mov_b32 s5, s3')
            postf()
            a.emit('s_mov_b32 s3, s5')
            a.emit(f"s_cmp_lg_u32 s{S_WV}, {ENV('PW_' + kind.upper(), '4')}")
            a.emit(f's_cbranch_scc1 L_{kind}_dep')
        if kind == LSTK == 'w1': lstamp(a, 1)
        a.label(f'L_{kind}_poll')
        a.emit(f'buffer_load_dword v{VMD if xc else 3}, v{13 if lf else 2}, s[{SO}:{SO+3}], s3 offen sc1')
        a.emit(f's_sub_u32 s{S_CNT}, s{S_CNT}, 1')
        a.emit(f's_cbranch_scc1 L_{kind}_dep')
        a.emit('s_waitcnt vmcnt(0)')
        a.emit(f'v_cmp_eq_u32 vcc, 0, v{VMD}' if xc else 'v_cmp_ne_u32 vcc, 1, v3')
        a.emit(f's_cbranch_vccnz L_{kind}_poll')
    a.label(f'L_{kind}_dep')
    if kind == 'w2' and not ENV('LFX'): lstamp(a, 1, True)
    if kind == LSTK == 'wo': lstamp(a, 3)
    if kind == LSTK == 'w1':
        lstamp(a, 2)
        if TS: a.emit(f's_mov_b32 s50, s{S_CNT}')
    if preg: preg()
    if preg and kind == 'w2': lstamp(a, 2, True)
    a.emit('s_barrier')

def dep_loc(a, kind, postf, pref):
    srd(a, SO, 'ws0', WS_FL, FLS)
    a.emit(f's_lshl4_add_u32 s3, s{S_TSI}, s{S_MT}')
    a.emit(f's_and_b32 s4, s{S_NT}, {REP - 1}')
    a.emit('s_lshl4_add_u32 s3, s3, s4')
    a.emit('s_lshl_b32 s3, s3, 7')
    a.emit(f's_sub_u32 s{S_Q}, s3, 32768')
    a.emit('v_lshlrev_b32 v11, 7, v1')
    a.emit('v_and_b32 v2, 15, v1')
    a.emit('v_lshlrev_b32 v2, 2, v2')
    a.emit('v_mov_b32 v14, 1')
    a.emit(f's_mov_b32 s{S_CNT}, 0x100000')
    a.emit('s_or_b32 s4, s2, 0xe0')
    a.emit(f's_lshl4_add_u32 s4, s4, s{S_TSI}')
    a.emit('s_lshl_b32 s4, s4, 7')
    a.emit(f's_lshr_b32 s7, s{S_CU}, 2')
    a.emit('s_lshl2_add_u32 s7, s7, s4')
    a.emit(f's_cmp_eq_u32 s{S_MD}, 0')
    a.emit(f's_cselect_b32 s6, s4, s{S_Q}')
    a.emit('s_cselect_b32 s4, 28, 60')
    a.emit('v_and_b32 v13, s4, v2')
    a.emit(f'buffer_load_dword v12, v13, s[{SO}:{SO+3}], s6 offen sc1')
    pref()
    a.emit(f"s_setprio {ENV('LFP1', '3')}")
    a.emit(f's_cmp_lg_u32 s{S_WV}, 4')
    a.emit('s_barrier')
    if kind == LSTK: lstamp(a, 0)
    a.emit(f's_cbranch_scc1 L_{kind}_nofl')
    a.emit('s_mov_b64 exec, 1')
    a.emit(f'buffer_store_dword v14, off, s[{SO}:{SO+3}], s7')
    a.emit(f's_cmp_eq_u32 s{S_MD}, 0')
    a.emit(f's_cbranch_scc1 L_{kind}_nogl')
    a.emit(f's_mov_b64 exec, {(1 << REP) - 1:#x}')
    a.emit(f'buffer_store_dword v14, v11, s[{SO}:{SO+3}], s{S_FL} offen sc1')
    a.label(f'L_{kind}_nogl')
    a.emit('s_mov_b64 exec, -1')
    a.label(f'L_{kind}_nofl')
    if postf: postf()
    if kind == LSTK: lstamp(a, 1)
    a.label(f'L_{kind}_poll')
    a.emit(f'buffer_load_dword v12, v13, s[{SO}:{SO+3}], s6 offen sc1')
    a.emit(f's_sub_u32 s{S_CNT}, s{S_CNT}, 1')
    a.emit(f's_cbranch_scc1 L_{kind}_dep')
    a.emit('s_waitcnt vmcnt(0)')
    a.emit('v_cmp_ne_u32 vcc, 1, v12')
    a.emit(f's_cbranch_vccnz L_{kind}_poll')
    a.label(f'L_{kind}_dep')
    if kind == LSTK:
        lstamp(a, 2)
        if TS: a.emit(f's_mov_b32 s50, s{S_CNT}')

def loc_flag(a, kind):
    a.emit('s_setprio 0')
    a.emit(f's_cmp_lg_u32 s{S_WV}, 4')
    a.emit(f's_cbranch_scc1 L_{kind}_nogf')
    a.emit(f's_mov_b64 exec, {(1 << REP) - 1:#x}')
    a.emit(f'buffer_store_dword v14, v11, s[{SO}:{SO+3}], s{S_FL} offen sc1')
    a.emit('s_mov_b64 exec, -1')
    a.label(f'L_{kind}_nogf')

def dep_lf(a, w0, blk, w1):
    srd(a, SO, 'ws0', WS_FL, FLS)
    a.emit(f's_lshl4_add_u32 s3, s{S_TSI}, s{S_MT}')
    a.emit(f's_and_b32 s4, s{S_NT}, {REP - 1}')
    a.emit('s_lshl4_add_u32 s3, s3, s4')
    a.emit('s_lshl_b32 s3, s3, 7')
    a.emit(f's_sub_u32 s{S_Q}, s3, 32768')
    a.emit('v_lshlrev_b32 v11, 7, v1')
    a.emit('v_and_b32 v2, 15, v1')
    a.emit('v_lshlrev_b32 v2, 2, v2')
    a.emit(f's_cmp_lg_u32 s{S_WV}, 4')
    a.emit(f's_waitcnt vmcnt({w0})')
    a.emit('s_cbranch_scc1 L_w2_nofl')
    W4 = ENV('W4', 'a')
    if W4 == 'a': a.lines += blk
    a.emit('v_mov_b32 v3, 1')
    a.emit(f's_mov_b32 s{S_CNT}, 0x100000')
    a.emit('s_or_b32 s4, s2, 0xe0')
    a.emit(f's_lshl4_add_u32 s4, s4, s{S_TSI}')
    a.emit('s_lshl_b32 s4, s4, 7')
    a.emit(f's_lshl2_add_u32 s5, s{S_HD}, s4')
    a.emit(f's_cmp_eq_u32 s{S_MD}, 0')
    a.emit(f's_cselect_b32 s3, s4, s{S_Q}')
    a.emit('s_cselect_b32 s4, 28, 60')
    a.emit('v_and_b32 v13, s4, v2')
    a.emit(f'buffer_load_dword v12, v13, s[{SO}:{SO+3}], s3 offen sc1')
    a.emit(f"s_setprio {ENV('LFP', '3')}")
    a.emit('s_barrier')
    lstamp(a, 0, True)
    a.emit('s_cbranch_scc0 L_w2_wb')
    a.label('L_w2_wbd')
    a.emit('s_mov_b64 exec, 1')
    a.emit(f'buffer_store_dword v3, off, s[{SO}:{SO+3}], s5')
    a.emit('s_mov_b64 exec, -1')
    a.label('L_w2_poll')
    a.emit(f'buffer_load_dword v12, v13, s[{SO}:{SO+3}], s3 offen sc1')
    a.emit(f's_sub_u32 s{S_CNT}, s{S_CNT}, 1')
    a.emit('s_cbranch_scc1 L_w2_dep')
    a.emit('s_waitcnt vmcnt(0)')
    a.emit('v_cmp_ne_u32 vcc, 1, v12')
    a.emit('s_cbranch_vccnz L_w2_poll')
    a.label('L_w2_dep')
    lstamp(a, 1, True)
    a.emit('s_barrier')
    lstamp(a, 2, True)
    a.emit('s_setprio 0')
    if W4 != 'a': a.lines += blk
    a.emit(f's_mov_b64 exec, {(1 << REP) - 1:#x}')
    a.emit(f'buffer_store_dword v3, v11, s[{SO}:{SO+3}], s{S_FL} offen sc1')
    a.emit('s_mov_b64 exec, -1')
    a.emit('s_branch L_w2_go')
    a.label('L_w2_nofl')
    if W4 == 'c':
        a.emit('s_waitcnt vmcnt(0)')
        a.emit('s_barrier')
        a.emit('s_barrier')
        a.lines += blk
    else:
        a.emit('s_barrier')
        a.lines += blk
        a.emit(f's_waitcnt vmcnt({w1})')
        a.emit('s_barrier')
    a.label('L_w2_go')

def xpoll(a, lab, sd, so, v, vd):
    a.emit(f's_cmp_lg_u32 s{S_WV}, 4')
    a.emit(f's_cbranch_scc1 {lab}go')
    a.emit('s_setprio 3')
    a.label(f'{lab}poll')
    a.emit(f'buffer_load_dword v{vd}, v{v}, s[{sd}:{sd+3}], s{so} offen sc1')
    a.emit(f's_sub_u32 s{S_CNT}, s{S_CNT}, 1')
    a.emit(f's_cbranch_scc1 {lab}go')
    a.emit('s_waitcnt vmcnt(0)')
    a.emit(f'v_cmp_ne_u32 vcc, 1, v{vd}')
    a.emit(f's_cbranch_vccnz {lab}poll')
    a.label(f'{lab}go')
    a.emit('s_setprio 0')

def ef_poll(a, lab, v, prio=False):
    a.emit(f"s_cmp_lg_u32 s{S_WV}, {ENV('PW_W2', '4')}")
    a.emit(f's_cbranch_scc1 {lab}_ok')
    if prio: a.emit('s_setprio 3')
    a.emit(f's_mov_b32 s{S_CNT}, 0x100000')
    a.label(lab)
    a.emit(f'buffer_load_dword v3, v{v}, s[{SO}:{SO+3}], s{S_Q} offen sc1')
    a.emit(f's_sub_u32 s{S_CNT}, s{S_CNT}, 1')
    a.emit(f's_cbranch_scc1 {lab}_ok')
    a.emit('s_waitcnt vmcnt(0)')
    a.emit('v_cmp_ne_u32 vcc, 1, v3')
    a.emit(f's_cbranch_vccnz {lab}')
    a.label(f'{lab}_ok')
    if prio: a.emit('s_setprio 0')

def ef_flag(a, lab, off):
    a.emit(f's_cmp_lg_u32 s{S_WV}, 4')
    a.emit('s_barrier')
    a.emit(f's_cbranch_scc1 {lab}')
    a.emit(f's_mov_b64 exec, {(1 << REP) - 1:#x}')
    a.emit(f'buffer_store_dword v13, v11, s[{SO}:{SO+3}], s{S_FL} offen offset:{off} sc1')
    a.emit('s_mov_b64 exec, -1')
    a.label(lab)

def dep_ef(a, poste, preh, preg):
    srd(a, SO, 'ws0', WS_FL, FLS)
    a.emit(f's_lshl4_add_u32 s3, s{S_TSI}, s{S_MT}')
    a.emit(f's_and_b32 s4, s{S_NT}, {REP - 1}')
    a.emit('s_lshl4_add_u32 s3, s3, s4')
    a.emit('s_lshl_b32 s3, s3, 7')
    a.emit(f's_sub_u32 s{S_Q}, s3, 32768')
    a.emit('v_lshlrev_b32 v11, 7, v1')
    a.emit('v_and_b32 v2, 15, v1')
    a.emit('v_lshlrev_b32 v2, 2, v2')
    a.emit(f's_bitcmp1_b32 s{S_NT}, 0')
    a.emit('s_cselect_b32 s4, 96, 64')
    a.emit('v_and_b32 v12, 28, v2')
    a.emit('v_add_u32 v12, s4, v12')
    a.emit('v_mov_b32 v13, 1')
    ef_flag(a, 'L_w2_nofe', 64)
    lstamp(a, 0, True)
    poste()
    if ENV('EFP', '1') == '0': ef_poll(a, 'L_w2_pe', 12)
    preh()
    a.emit('s_barrier')
    if ENV('EFP', '1') != '0': ef_poll(a, 'L_w2_pe', 12, ENV('EFP') == '2')
    lstamp(a, 1, True)
    preg()
    ef_flag(a, 'L_w2_nofl', 0)

def dep_late(a, kind, part, n=0):
    ld = f'buffer_load_dword v3, v2, s[{SO}:{SO+3}], s{S_Q} offen sc1'
    if part == 0:
        a.emit(f's_cmp_eq_u32 s{S_WV}, 4')
        a.emit(f's_cselect_b32 s{SO+2}, s{SO+2}, 0')
        a.emit(ld)
        return
    if LF2:
        kind += 'l'
        a.emit(f's_mov_b32 s{S_CNT}, 0x100000')
    a.emit(f's_cmp_lg_u32 s{S_WV}, 4')
    a.emit(f's_cbranch_scc1 L_{kind}_dep')
    a.emit(f's_waitcnt vmcnt({n})')
    a.emit('v_cmp_ne_u32 vcc, 1, v3')
    a.emit(f's_cbranch_vccz L_{kind}_dep')
    a.label(f'L_{kind}_poll')
    a.emit(ld)
    a.emit(f's_sub_u32 s{S_CNT}, s{S_CNT}, 1')
    a.emit(f's_cbranch_scc1 L_{kind}_dep')
    a.emit('s_waitcnt vmcnt(0)')
    a.emit('v_cmp_ne_u32 vcc, 1, v3')
    a.emit(f's_cbranch_vccnz L_{kind}_poll')
    a.label(f'L_{kind}_dep')
    if LF2: return
    if not EF: lstamp(a, 1, True)
    lstamp(a, 2, True)
    if TS and ENV('LST') != 'x': a.emit(f's_mov_b32 s58, s{S_CNT}')

LGO = 163840 - 64
def dep_early(a):
    srd(a, SO, 'ws0', WS_FL, FLS)
    a.emit(f's_lshl_b32 s86, s{S_TSI}, 12')
    a.emit(f's_lshl_b32 s4, s{S_MT}, 8')
    a.emit('s_add_u32 s86, s86, s4')
    a.emit('s_sub_u32 s86, s86, 4096')
    a.emit('v_and_b32 v12, 15, v1')
    a.emit('v_lshlrev_b32 v12, 2, v12')
    a.emit('v_mov_b32 v3, 0')
    a.emit(f'v_mov_b32 v2, {LGO}')
    a.emit('ds_write_b32 v2, v3')
    a.emit('v_mov_b32 v13, 1')
    a.emit(f's_mov_b32 s{S_CNT}, 0x100000')
    a.emit(f's_cmp_lg_u32 s{S_WV}, 4')
    a.emit('s_waitcnt lgkmcnt(0)')
    a.emit('s_barrier')
    a.emit('s_cbranch_scc1 L_w2_go')
    lstamp(a, 0)
    a.emit('s_mov_b64 exec, 1')
    a.emit(f'buffer_store_dword v13, off, s[{SO}:{SO+3}], s{S_FL} sc1')
    a.emit('s_mov_b64 exec, -1')
    a.label('L_w2_poll')
    a.emit(f'buffer_load_dword v3, v12, s[{SO}:{SO+3}], s86 offen sc1')
    a.emit(f's_sub_u32 s{S_CNT}, s{S_CNT}, 1')
    a.emit('s_cbranch_scc1 L_w2_rel')
    a.emit('s_waitcnt vmcnt(0)')
    a.emit('v_cmp_eq_u32 vcc, 0, v3')
    a.emit('s_cbranch_vccnz L_w2_poll')
    a.label('L_w2_rel')
    a.emit('ds_write_b32 v2, v13')
    lstamp(a, 1)
    a.emit('s_branch L_w2_dep')
    a.label('L_w2_go')
    a.emit(f's_mov_b32 s{S_CNT}, 0x2000000')
    a.label('L_w2_gol')
    a.emit('ds_read_b32 v3, v2')
    a.emit(f's_sub_u32 s{S_CNT}, s{S_CNT}, 1')
    a.emit('s_cbranch_scc1 L_w2_dep')
    a.emit('s_waitcnt lgkmcnt(0)')
    a.emit('v_cmp_eq_u32 vcc, 0, v3')
    a.emit('s_cbranch_vccnz L_w2_gol')
    a.label('L_w2_dep')

def late_flag(a):
    a.emit(f's_cmp_lg_u32 s{S_WV}, 4')
    a.emit('s_cbranch_scc1 L_w2_nolate')
    a.emit('v_mov_b32 v3, 2')
    a.emit('s_mov_b64 exec, 1')
    a.emit(f'buffer_store_dword v3, off, s[{SO}:{SO+3}], s{S_FL} sc1')
    a.emit('s_mov_b64 exec, -1')
    a.label('L_w2_nolate')

def late_check(a):
    a.emit(f's_mov_b32 s{S_CNT}, 0x100000')
    a.label('L_w2_lchk')
    a.emit('v_cmp_ne_u32 vcc, 2, v13')
    a.emit('s_cbranch_vccz L_w2_lok')
    a.emit(f'buffer_load_dword v13, v12, s[{SO}:{SO+3}], s86 offen sc1')
    a.emit(f's_sub_u32 s{S_CNT}, s{S_CNT}, 1')
    a.emit('s_waitcnt vmcnt(0)')
    a.emit('s_cbranch_scc0 L_w2_lchk')
    a.label('L_w2_lok')
    if TS: a.emit(f's_mov_b32 s58, s{S_CNT}')
    lstamps_out(a, 'w2')

def gbar(a, kind):
    if not MEGA or (EARLY and kind == 'w2'): return
    if kind == 'attn':
        a.emit(f's_cmp_eq_u32 s{S_LAYER}, 0')
        a.emit('s_cbranch_scc1 L_attn_nog')
    a.emit('s_barrier')
    if kind == 'attn': a.label('L_attn_nog')

def next_phase(a, kind, comp=False):
    nxt = {'attn': 'wo', 'wo': 'w1', 'w1': 'w2', 'w2': 'attn'}[kind]
    if kind == 'w2':
        a.emit(f's_mov_b32 s{S_LAYER}, 1')
        a.emit(f's_add_u32 s12, s22, {WS_X2}')
        a.emit('s_addc_u32 s13, s23, 0')
        a.emit(f's_add_u32 s34, s22, {LSTR}')
        a.emit('s_addc_u32 s35, s23, 0')
    a.emit(f's_add_u32 s{S_TSI}, s{S_TSI}, 1')
    a.emit(f's_branch L_{nxt}_' + ('compute' if comp and (NV or LF2 == 2) and nxt == 'w2' else 'body'))

def last_check(a, kind):
    if kind == 'w2' or (kind == 'attn' and not ONE):
        a.emit(f's_cmp_eq_u32 s{S_LAYER}, {0 if kind == "attn" else 1}')
        a.emit(f's_cbranch_scc1 L_{kind}_end')

def compute_end(a, kind):
    if not MEGA:
        stamps_out(a, kind)
        a.emit('s_endpgm')
        return
    if not TS and not (SKL and kind == 'w2'): last_check(a, kind)
    if TE and kind == 'w2' and not SKL: a.lines[-1] = a.lines[-1].replace('L_w2_end', 'L_fin')
    if kind in EBAR: a.emit('s_barrier')
    import pads
    for x in pads.chain({'attn': 'he', 'wo': 'hw'}.get(kind)): a.emit(x)
    if LF2 == 2 and kind == 'w1': a.lines.append('@W2B')
    if not ((EARLY or NV) and kind == 'w1'):
        a.emit('s_waitcnt lgkmcnt(0)' if EF and kind == 'w1' else f"s_waitcnt vmcnt({int(SF and kind in ('wo', 'w2'))}) lgkmcnt(0)")
        a.emit('s_barrier')
    if TS:
        stamps_out(a, kind)
        if ENV('DIAG') and kind == 'w2': diag(a)
        last_check(a, kind)
    stamp(a, 0, nowait=True)
    next_phase(a, kind, True)

def fin(a):
    if not TE: return
    a.label('L_fin')
    a.emit('s_waitcnt vmcnt(0)')
    a.emit('s_memrealtime s[92:93]')
    srd(a, SP, 'ws0', WS_TS, 1 << 20)
    a.emit(f's_lshl2_add_u32 s4, s2, s{S_WV}')
    a.emit('s_lshl_b32 s4, s4, 3')
    a.emit('s_waitcnt lgkmcnt(0)')
    a.emit('v_mov_b32 v4, s94')
    a.emit('v_mov_b32 v5, s92')
    a.emit('s_mov_b64 exec, 1')
    a.emit(f'buffer_store_dwordx2 v[4:5], off, s[{SP}:{SP+3}], s4')
    a.emit('s_endpgm')

def diag(a):
    ph, j, K, C = [int(x) for x in ENV('DIAG').split(',')]
    a.emit(f's_lshl1_add_u32 s3, s{S_WV}, s{S_LAYER}')
    a.emit('s_cmp_lg_u32 s3, 1')
    a.emit('s_cbranch_scc1 L_diag_end')
    a.emit('s_waitcnt vmcnt(0)')
    a.emit('v_lshlrev_b32 v1, 6, v0')
    for i in range(4): a.emit(f's_mov_b32 s3, {4096*i}'); a.emit(f'buffer_load_dword v{4+i}, v1, s[{SP}:{SP+3}], s3 offen sc1')
    a.emit('s_lshl_b32 s4, s2, 6')
    a.emit(f's_add_u32 s4, s4, {(ph << 16) + 16 * j}')
    a.emit(f'buffer_load_dword v8, off, s[{SP}:{SP+3}], s4 sc1')
    a.emit('s_waitcnt vmcnt(0)')
    for i in range(4): a.emit(f'v_sub_u32 v{4+i}, v8, v{4+i}')
    a.emit('v_max_i32 v4, v4, v5'); a.emit('v_max_i32 v6, v6, v7'); a.emit('v_max_i32 v4, v4, v6')
    a.emit('s_mov_b32 s5, 0')
    a.emit('s_nop 1')
    for i in range(64):
        a.emit(f'v_readlane_b32 s3, v4, {i}')
        a.emit('s_max_i32 s5, s5, s3')
    if C: a.emit(f's_sub_u32 s5, {C}, s5'); a.emit('s_max_i32 s5, s5, 0')
    a.emit('s_min_u32 s5, s5, 15000')
    a.emit(f's_mul_i32 s5, s5, {K}')
    a.emit('s_memrealtime s[6:7]')
    a.emit('s_mov_b32 s4, 0x40000')
    a.emit('s_waitcnt lgkmcnt(0)')
    a.label('L_diag_l')
    a.emit('s_memrealtime s[8:9]')
    a.emit('s_sub_u32 s4, s4, 1')
    a.emit('s_cbranch_scc1 L_diag_end')
    a.emit('s_waitcnt lgkmcnt(0)')
    a.emit('s_sub_u32 s8, s8, s6')
    a.emit('s_cmp_lt_u32 s8, s5')
    a.emit('s_cbranch_scc1 L_diag_l')
    a.label('L_diag_end')

def loader_end(a, kind, check=True):
    if MEGA:
        if kind == LSTK and not EARLY: lstamps_out(a, kind)
        if check: last_check(a, kind)
        a.emit(f's_lshl_b32 s{S_FL}, s{S_TSI}, 15')
        a.emit(f's_lshl_b32 s4, s{S_MT}, 11')
        a.emit(f's_add_u32 s{S_FL}, s{S_FL}, s4')
        a.emit(f's_lshl_b32 s4, s{S_NT}, 2')
        a.emit(f's_add_u32 s{S_FL}, s{S_FL}, s4')
        next_phase(a, kind)

def pf_weights(a, sd, which, size, ldw2, R, sh, L, LMn, tilebytes, NI, vd, row0=0, qkv=False, pair=False):
    if 'nopf' in DBG: return 0
    srd(a, sd, which, 0, size)
    a.emit(f's_and_b32 s3, s{S_WV}, 3')
    a.emit(f's_mul_i32 s3, s3, {NI * (64 >> sh)}')
    a.emit(f's_mul_i32 s4, s{S_CU}, {R}')
    a.emit('s_add_u32 s3, s3, s4')
    if row0: a.emit(f's_add_u32 s3, s3, {row0}')
    a.emit(f'v_lshrrev_b32 v2, {sh}, v1')
    a.emit('v_add_u32 v2, s3, v2')
    a.emit(f'v_mul_u32_u24 v2, {ldw2}, v2')
    a.emit(f'v_and_b32 v3, {(1 << sh) - 1}, v1')
    if L < (1 << sh): a.emit(f'v_min_u32 v3, {L-1}, v3')
    if qkv:
        a.emit('v_lshrrev_b32 v12, 2, v3')
        a.emit('v_lshl_add_u32 v2, v12, 11, v2')
        a.emit('v_and_b32 v3, 3, v3')
    a.emit(f'v_lshl_add_u32 v2, v3, {8 if pair else 7}, v2')
    a.emit('s_and_b32 s3, s2, 7')
    a.emit(f's_lshr_b32 s3, s3, {4 - LMn}')
    a.emit(f's_mul_i32 s3, s3, {tilebytes if pair else (1 << (5 - LMn)) * tilebytes}')
    for i in range(NI):
        a.emit(f'buffer_load_dword v{vd+i}, v2, s[{sd}:{sd+3}], s3 offen')
        if i + 1 < NI: a.emit(f's_add_u32 s3, s3, {(64 >> sh) * ldw2}')
    return NI

_pfc = [0]
def pf_code(a, start, end, vd, forward=True):
    if 'nopfc' in DBG: return 0
    _pfc[0] += 1
    lab = f'L_pfc{_pfc[0]}'
    a.emit('s_getpc_b64 s[4:5]')
    a.label(lab)
    if forward:
        a.emit(f's_add_u32 s4, s4, {start}-{lab}')
        a.emit('s_addc_u32 s5, s5, 0')
    else:
        a.emit(f's_sub_u32 s4, s4, {lab}-{start}')
        a.emit('s_subb_u32 s5, s5, 0')
    a.emit(f's_and_b32 s3, s{S_WV}, 3')
    a.emit('s_lshl_b32 s3, s3, 13')
    a.emit('v_lshl_add_u32 v2, v1, 7, s3')
    a.emit(f'v_min_u32 v2, {end}-{start}-4, v2')
    a.emit(f'global_load_dword v{vd}, v2, s[4:5]')
    return 1

def wbase(a, vd, vt, g='v2', nr=False):
    if nr: a.emit(f'v_lshrrev_b32 v{vd}, 2, v1')
    else:
        a.emit(f'v_bfe_u32 v{vd}, v1, 2, 2')
        a.emit(f'v_lshl_add_u32 v{vd}, {g}, 3, v{vd}')
    a.emit(f'v_lshlrev_b32 v{vd}, 7, v{vd}')
    a.emit(f'v_and_b32 v{vt}, 3, v1')
    a.emit(f'v_lshl_add_u32 v{vd}, v{vt}, 3, v{vd}')
    a.emit(f'v_bfe_u32 v{vt}, v1, 3, 2')
    a.emit(f'v_lshl_add_u32 v{vd}, v{vt}, 5, v{vd}')


def code_touch(a, start, end, nb, sd=SX, loader=False):
    if ENV('CT', '1') == '0': return
    _pfc[0] += 1
    lab = f'L_pfc{_pfc[0]}'
    a.emit(f's_cmp_lg_u32 s{S_LAYER}, 0')
    a.emit(f's_cbranch_scc1 {lab}_skip')
    a.emit('s_getpc_b64 s[4:5]')
    a.label(lab)
    a.emit(f's_lshl_b32 s3, s{S_CU}, 2')
    a.emit(f's_add_u32 s3, s3, s{S_WV}')
    if loader: a.emit('s_sub_u32 s3, s3, 4')
    a.emit(f's_mul_i32 s3, s3, {nb}')
    a.emit(f's_min_u32 s3, s3, {end}-{start}-{nb}')
    a.emit(f's_add_i32 s3, s3, {start}-{lab}')
    a.emit('s_ashr_i32 s6, s3, 31')
    a.emit('s_add_u32 s4, s4, s3')
    a.emit('s_addc_u32 s5, s5, s6')
    for i in range(nb // 64):
        a.emit(f's_load_dword s{84 if loader else SW}, s[4:5], {64*i}')
    a.label(f'{lab}_skip')

def loader_first(a, kind):
    if ENV('LF', '1') == '0': return
    L = a.lines
    ib = max(i for i, l in enumerate(L) if l.strip() == f's_cbranch_scc1 L_{kind}_loader')
    il = L.index(f'L_{kind}_loader:')
    ie = L.index(f'L_{kind}_end:') + 2
    assert L[ie - 1].strip() == 's_endpgm' and L[ib - 1].strip().startswith('s_cmp_ge_u32')
    L[ib - 1] = L[ib - 1].replace('s_cmp_ge_u32', 's_cmp_lt_u32')
    L[ib] = f'  s_cbranch_scc1 L_{kind}_compute'
    a.lines = L[:ib + 1] + L[il:ie] + [f'L_{kind}_compute:'] + L[ib + 1:il] + L[ie:]

def clear_flags(a, part, n=0):
    if not ONE or DS: return
    if part == 0 and 'attn' not in OT: a.emit(f's_load_dwordx2 s[{SC}:{SC+1}], s[0:1], 72')
    a.emit(f's_or_b32 s3, s{S_LAYER}, s{S_WV}')
    a.emit(f's_cbranch_scc1 L_clr_skip{part}')
    if part == 0:
        srd(a, SP, 'ws0', WS_FL, FLS)
        a.emit('s_lshl_b32 s3, s2, 11')
        a.emit('v_lshlrev_b32 v2, 4, v1')
        a.emit(f'buffer_store_dwordx4 v[128:131], v2, s[{SP}:{SP+3}], s3 offen sc1')
        a.emit(f'buffer_store_dwordx4 v[128:131], v2, s[{SP}:{SP+3}], s3 offen offset:1024 sc1')
    else:
        a.emit('v_mov_b32 v3, 1')
        a.emit(f's_and_b32 s{SC+1}, s{SC+1}, 0xffff')
        a.emit(f's_mov_b32 s{SC+2}, 256')
        a.emit(f's_mov_b32 s{SC+3}, 0x00020000')
        a.emit('s_mov_b64 exec, 1')
        a.emit(f's_waitcnt vmcnt({n})')
        a.emit(f'buffer_store_byte v3, off, s[{SC}:{SC+3}], s2 sc1')
        a.emit('s_mov_b64 exec, -1')
    a.label(f'L_clr_skip{part}')

def mf_order(nn, nm, skip=lambda jn, jm: False):
    m = ENV(f'MFO{nn}', ENV('MFO', 's'))
    if m == 'n': o = [(jn, jm) for jn in range(nn) for jm in range(nm)]
    elif m == 's': o = [(jn, jm if not jn & 1 else nm - 1 - jm) for jn in range(nn) for jm in range(nm)]
    elif m == 'm': o = [(jn, jm) for jm in range(nm) for jn in range(nn)]
    elif m == 'z': o = [(jn if not jm & 1 else nn - 1 - jn, jm) for jm in range(nm) for jn in range(nn)]
    elif m == 'd': o = [(i % nn, (i // nn + i % nn) % nm) for i in range(nn * nm)]
    return [x for x in o if not skip(*x)]
```

```python
from common import *

def ktab(a, vt, sh, P1, P2, tb):
    a.emit('v_and_b32 v2, 3, v1')
    a.emit('v_lshlrev_b32 v2, 3, v2')
    a.emit(f'v_bfe_i32 v{vt}, s{tb}, v2, 8')
    a.emit(f's_and_b32 s3, s{S_MT}, 3')
    a.emit(f's_mul_i32 s4, s3, {P2 // 4}')
    a.emit(f'v_add3_u32 v3, v{vt}, v1, s4')
    if P1 & (P2 - 1): a.emit(f'v_subrev_u32 v3, {P1}, v3')
    a.emit(f'v_and_b32 v3, {P2 - 1}, v3')
    if P1:
        MR = int(ENV('MR', '4'))
        if NV: a.emit(f'v_cmp_gt_u32 vcc, {NV}, v1')
        a.emit(f's_mul_i32 s3, s3, {MR // 4}')
        if NV:
            a.emit(f's_and_b32 s4, s{S_NT}, 1')
            a.emit(f'v_cndmask_b32_e64 v{vt+1}, {P1 - NV}, {NV}, vcc')
            a.emit(f'v_cndmask_b32_e64 v2, {P1 - 2 * NV}, {NV}, vcc')
            a.emit(f'v_add3_u32 v{vt}, v{vt}, v1, v2')
            for _ in range(2):
                a.emit(f'v_sub_u32 v2, v{vt}, v{vt+1}')
                a.emit(f'v_min_u32 v{vt}, v{vt}, v2')
            a.emit(f'v_cndmask_b32_e64 v2, {NV}, 0, vcc')
            a.emit(f'v_add_u32 v{vt}, v{vt}, v2')
        else:
            a.emit(f'v_add3_u32 v{vt}, v{vt}, v1, {P1}')
            a.emit(f's_bitcmp1_b32 s{S_NT}, 0')
            a.emit(f's_cselect_b32 s4, {P1}, 0')
            for _ in range(2):
                a.emit(f'v_subrev_u32 v2, {P1}, v{vt}')
                a.emit(f'v_min_u32 v{vt}, v{vt}, v2')
        if MR:
            a.emit(f'v_cmp_gt_u32 vcc, {MR}, v{vt}')
            a.emit(f'v_add_u32 v2, s3, v{vt}')
            a.emit(f'v_subrev_u32 v{vt+1}, {MR}, v2')
            a.emit(f'v_min_u32 v2, v{vt+1}, v2')
            a.emit(f'v_cndmask_b32 v{vt}, v{vt}, v2, vcc')
        a.emit(f'v_cmp_gt_u32 vcc, {P1}, v1')
        a.emit(f'v_lshl_add_u32 v{vt}, v{vt}, 1, s4' if NV else f'v_add_u32 v{vt}, s4, v{vt}')
        a.emit(f'v_add_u32 v3, {2 * P1}, v3')
        a.emit(f'v_cndmask_b32 v3, v3, v{vt}, vcc')
    a.emit(f'v_lshlrev_b32 v{vt}, {sh}, v3')

def ktab_ot(a, vt, sh, tb):
    KS = int(ENV('KS2', '2'))
    a.emit(f's_add_u32 s3, s{S_MT}, s{S_HD}')
    a.emit('s_and_b32 s3, s3, 3')
    for g in range(4):
        o = list(range(17))
        for t in range(KS + g, 14, 4): o[t:t + 3] = [t + 2, t, t + 1]
        assert o[0] == 0 and o[16] == 16
        v = sum(((t - o[t]) & 3) << (2 * t) for t in range(16))
        if g: a.emit(f's_cmp_eq_u32 s3, {g}')
        a.emit(f's_cselect_b32 s4, {v:#x}, s4' if g else f's_mov_b32 s4, {v:#x}')
    P1 = int(ENV('P1', '23')); P2 = 56 - 2 * P1
    a.emit('v_subrev_u32 v2, 3, v1')
    if P1 > 20: a.emit('v_min_u32 v2, 16, v2')
    a.emit('v_lshlrev_b32 v3, 1, v2')
    a.emit(f'v_bfe_i32 v{vt}, s4, v3, 2')
    a.emit(f'v_sub_u32 v{vt}, v1, v{vt}')
    a.emit(f'v_subrev_u32 v{vt}, {7 if P1 > 20 else 6}, v{vt}')
    if EF:
        a.emit(f'v_subrev_u32 v3, 7, v{vt}')
        a.emit(f'v_min_u32 v3, v3, v{vt}')
        a.emit(f'v_cmp_eq_u32 vcc, s{S_HD}, v3')
        a.emit(f's_and_b32 s3, s{S_NT}, 1')
        a.emit(f'v_cmp_lt_i32 s[4:5], 6, v{vt}')
        a.emit(f'v_cndmask_b32_e64 v3, v3, 7, vcc')
        a.emit('s_nop 0')
        a.emit('v_addc_co_u32 v2, vcc, v3, v3, s[4:5]')
    else:
        a.emit(f'v_ashrrev_i32 v3, 1, v{vt}')
        a.emit(f'v_cmp_eq_u32 vcc, s{S_HD}, v3')
        a.emit(f's_and_b32 s3, s{S_NT}, 1')
        a.emit(f'v_or_b32 v2, 14, v{vt}')
        a.emit(f'v_cndmask_b32 v2, v{vt}, v2, vcc')
    a.emit(f'v_cmp_gt_i32 vcc, 0, v{vt}')
    a.emit(f's_lshl2_add_u32 s4, s3, {20 if P1 > 20 else 19}')
    a.emit(f'v_add_u32 v{vt}, s4, v{vt}')
    a.emit('s_lshl4_add_u32 s4, s3, 24')
    a.emit('v_add_u32 v2, s4, v2')
    a.emit(f'v_cndmask_b32 v{vt}, v2, v{vt}, vcc')
    if P1 > 20:
        a.emit(f's_and_b32 s5, s{S_MT}, 3')
        a.emit(f"s_mul_i32 s5, s5, {ENV('RCM', '3')}")
        a.emit(f's_sub_u32 s5, s5, {P1}')
        a.emit('v_add_u32 v3, s5, v1')
        for _ in range(2):
            a.emit(f'v_subrev_u32 v2, {P2}, v3')
            a.emit('v_min_u32 v3, v3, v2')
        a.emit(f'v_cmp_gt_u32 vcc, {P1}, v1')
        a.emit(f's_sub_u32 s5, s3, {2 * P1}')
        a.emit('v_lshl_add_u32 v2, v1, 1, s5')
        a.emit('v_cndmask_b32 v3, v3, v2, vcc')
        a.emit(f's_add_u32 s5, s{S_HD}, {P1 - 20}')
        a.emit('v_ashrrev_i32 v2, 1, v3')
        a.emit('v_add_u32 v2, s5, v2')
        a.emit('v_and_b32 v2, 7, v2')
        a.emit('v_and_b32 v3, 1, v3')
        a.emit('v_cmp_gt_u32 vcc, 21, v1')
        a.emit('v_lshl_add_u32 v3, v3, 3, v2')
        a.emit(f's_lshl1_add_u32 s4, s{S_HD}, s4')
        a.emit(f's_lshl3_add_u32 s3, s3, s{S_HD}')
        a.emit(f'v_cndmask_b32 v3, v3, v{vt}, vcc')
        a.emit('v_writelane_b32 v3, s4, 0')
        a.emit('s_add_u32 s4, s4, 1')
        a.emit('v_writelane_b32 v3, s3, 2')
        a.emit('v_writelane_b32 v3, s4, 1')
        a.emit(f'v_lshlrev_b32 v{vt}, {sh}, v3')
        return
    a.emit('v_and_b32 v2, 3, v1')
    a.emit('v_lshlrev_b32 v2, 3, v2')
    a.emit(f'v_bfe_i32 v3, s{tb}, v2, 8')
    a.emit(f's_lshl2_add_u32 s5, s{S_MT}, 12')
    a.emit('v_add3_u32 v3, v3, v1, s5')
    a.emit('v_and_b32 v2, 7, v3')
    a.emit(f'v_cmp_eq_u32 vcc, s{S_HD}, v2')
    a.emit('v_bfe_u32 v2, v3, 3, 1')
    a.emit('v_lshl_add_u32 v2, v2, 2, 19')
    a.emit('v_and_b32 v3, 15, v3')
    a.emit('v_cndmask_b32 v3, v3, v2, vcc')
    a.emit('v_cmp_gt_u32 vcc, 20, v1')
    a.emit(f's_lshl1_add_u32 s4, s{S_HD}, s4')
    a.emit(f's_lshl3_add_u32 s3, s3, s{S_HD}')
    a.emit(f'v_cndmask_b32 v3, v3, v{vt}, vcc')
    a.emit('v_writelane_b32 v3, s4, 0')
    a.emit('s_add_u32 s4, s4, 1')
    a.emit('v_writelane_b32 v3, s3, 2')
    a.emit('v_writelane_b32 v3, s4, 1')
    a.emit(f'v_lshlrev_b32 v{vt}, {sh}, v3')

EVX, EVT, EVB = 24, 30, 27; EBIA = [4, 10, 124, 126]; ERING = [128, 144, 224, 64, 80, 240]
def w2_pre(a):
    P1 = int(ENV('P1', '23'))
    tile_map(a, 2, None, pair=True)
    rot_table(a, S_TB, S_MT, S_HD, 'w2')
    ktab(a, EVT, 11, P1, 56 - 2 * P1, S_TB)
    a.emit(f's_lshl_b32 s8, s{S_MT}, 7')
    a.emit(f's_lshl_b32 s9, s{S_WV}, 5')
    a.emit('s_add_u32 s8, s8, s9')
    a.emit('s_mul_i32 s9, s8, 7168')
    a.emit(f'v_lshl_add_u32 v{EVX}, v1, 4, s9')
    a.emit(f'v_add_u32 v{EVX+1}, {16*7168}, v{EVX}')
    a.emit('v_lshrrev_b32 v2, 4, v1')
    a.emit(f's_lshl_b32 s10, s{S_NT}, 7')
    a.emit(f'v_lshl_add_u32 v{EVB}, v2, 3, s10')

def w2_early(a):
    NG = int(ENV('NG2', '3'))
    for x in range(NG): a.emit(f'v_readlane_b32 s{SR+x}, v{EVT}, {x}')
    srd(a, SB, 'b2', 0, 2048)
    srd(a, SX, 'ws', WS_H, 2048 * 7168)
    for jn in range(4):
        a.emit(f'buffer_load_dwordx2 v[{EBIA[jn]}:{EBIA[jn]+1}], v{EVB}, s[{SB}:{SB+3}], 0 offen offset:{jn*32}')
    for x in range(NG):
        for ks in range(2):
            for jm in range(2):
                r = ERING[x] + (ks * 2 + jm) * 4
                a.emit(f'buffer_load_dwordx4 v[{r}:{r+3}], v{EVX+jm}, s[{SX}:{SX+3}], s{SR+x} offen offset:{ks*1024}')

def gen_gemm64y(a, kind, tsidx, side):
    K = 1024 if kind == 'wo' else 3584
    lda2 = K * 2; ldw2 = 2048
    N = K // 64
    P1 = int(ENV('P1', '23')) if kind == 'w2' else 0
    P2 = N - 2 * P1
    B16 = ENV('XB16', '1') == '1'
    NXC = 4 if B16 else 8; CH = NXC * 1024
    G0, GW = (131072, 28672) if kind == 'wo' else (0, 0)
    def slot(t):
        if kind == 'wo' and 'w1' in OT: return 28672 + 8192 * t + (4096 if t >= 12 else 0)
        g = G0 + (t >> 2) * 32768
        if g >= 163840: g = GW + (g - 163840) % (163840 - GW)
        return g + (t & 3) * 8192
    XB = 131072
    HR = int(ENV('HR', '6')) if P1 else 0
    sched = [(t >> 1, t & 1) for t in range(2 * (P1 - HR))] + [(x, u) for u in (0, 1) for x in range(P1 - HR, P1)] + [(x, 1) for x in range(P1, P1 + P2)]
    TU = 2 * P1 - max(HR, 1)
    NPRE = int(ENV('NPREO', '16')) if kind == 'wo' else int(ENV('NPRE', '20'))
    PSTEP = 64 if kind == 'w2' else 1024
    body = f'L_{kind}_body'; end = f'L_{kind}_end'
    VXO, VWB, VWA, VO, VT, VE = 4, 6, 26, 12, 15, 19
    XR = 32; FW = [160, 192]; ACC = [128, 96]; D = 240; BIA = 192
    SPC = NV if P1 else 0
    BIA = [BIA + 2 * jn for jn in range(4)]
    if SPC: VXO, VT, ACC, BIA = EVX, EVT, [32, 96], EBIA
    ot = kind == 'w2' and 'w2' in OT
    if ot: BIA = OBIA; assert P1 >= 20 and not SPC
    acc = lambda jn, jm, u=1: ACC[u] + (jn * 2 + jm) * 4
    fx = lambda r, ks, jm: XR + 16 * r + (ks * 2 + jm) * 4
    fw = lambda s, ks, jn: FW[s] + (ks * 4 + jn) * 4
    a.label(f'L_{kind}_c0')
    a.label(body)
    tile_map(a, 2, end, pair=True)
    rot_table(a, S_TB, S_MT, S_HD, kind)
    a.emit(f's_cmp_ge_u32 s{S_WV}, 4')
    a.emit(f's_cbranch_scc1 L_{kind}_loader')
    if ot:
        a.emit(f's_lshl_b32 s3, s{S_WV}, 12')
        a.emit(f's_add_u32 s3, s3, {OHB}')
        a.emit('v_lshl_add_u32 v2, v1, 4, s3')
        for i in range(12): a.emit(f'ds_read_b128 v[{32+4*i}:{35+4*i}], v2 offset:{(i>>2)*16384+(i&1)*2048+(i&2)*512}')
        ktab_ot(a, VT, 11, S_TB)
        if 'xhit' in DBG: a.emit(f'v_and_b32 v{VT}, 0x1800, v{VT}')
        if ENV('RE', '1') == '1' and not EF:
            a.emit('s_waitcnt lgkmcnt(0)')
            a.emit('s_barrier')
    elif SPC: tile_map(a, 2, None, pair=True)
    else: ktab(a, VT, 11, P1, P2, S_TB)
    a.emit('v_and_b32 v3, 15, v1')
    a.emit('v_lshrrev_b32 v2, 4, v1')
    a.emit(f's_lshl_b32 s8, s{S_MT}, 7')
    a.emit(f's_lshl_b32 s9, s{S_WV}, 5')
    a.emit('s_add_u32 s8, s8, s9')
    a.emit(f's_mul_i32 s9, s8, {lda2}')
    if 'xsm' in DBG:
        a.emit('s_and_b32 s9, s8, 0x67f')
        a.emit(f's_mul_i32 s9, s9, {lda2}')
    if not SPC and ENV('TID', '1') != '1':
        a.emit(f'v_lshl_add_u32 v{VXO}, v1, 4, s9')
        a.emit(f'v_add_u32 v{VXO+1}, {16*lda2}, v{VXO}')
    E2 = ot and EF == 2
    if E2: xpitch(a, 7, True)
    iB = len(a.lines)
    a.emit('v_add_u32 v13, s8, v3')
    a.emit(f's_lshl_b32 s10, s{S_NT}, 7')
    a.emit('v_lshl_add_u32 v14, v2, 3, s10')
    a.emit('v_and_b32 v16, 1, v2')
    a.emit('v_lshrrev_b32 v17, 1, v2')
    if kind == 'w2':
        a.emit('v_lshlrev_b32 v16, 5, v16')
        a.emit('v_lshl_add_u32 v16, v17, 4, v16')
        if 'attn' in OT:
            a.emit('v_lshlrev_b32 v4, 3, v3')
            a.emit('v_and_b32 v4, 0x70, v4')
            a.emit('v_xor_b32 v4, v4, v16')
            a.emit('v_lshl_add_u32 v4, v3, 7, v4')
            a.emit(f's_lshl_b32 s3, s{S_WV}, 12')
            a.emit('v_add_u32 v4, s3, v4')
            a.emit('v_xor_b32 v5, 64, v4')
        a.emit('v_add_u32 v16, s10, v16')
        if not E2: xpitch(a, 7, True)
        a.emit(f'v_mad_u32_u24 v{VO}, v13, s7, v16')
    else:
        if 'w1' in NS: a.emit('v_lshlrev_b32 v16, 4, v1')
        else:
            a.emit('v_lshl_add_u32 v16, v16, 1, v17')
            a.emit('v_lshlrev_b32 v16, 8, v16')
            a.emit('v_lshl_add_u32 v16, v3, 4, v16')
        a.emit(f's_add_u32 s9, s8, s{S_NT}')
        a.emit('s_lshl_b32 s9, s9, 11')
        a.emit(f'v_add_u32 v{VO}, s9, v16')
        if 'w1' in OT:
            a.emit(f's_lshl_b32 s9, s{S_WV}, 12')
            a.emit(f'v_add_u32 v{VE}, s9, v16')
    a.emit('v_lshl_add_u32 v18, v17, 4, v13')
    a.emit('v_lshlrev_b32 v18, 3, v18')
    a.emit('v_and_b32 v16, 1, v2')
    a.emit('v_lshl_add_u32 v18, v16, 2, v18')
    a.emit(f's_lshl_b32 s10, s{S_NT}, 14')
    a.emit('v_add_u32 v18, s10, v18')
    nr = kind in NS and NSR
    wbase(a, VWB, 17, nr=nr)
    for i in range(1, 4): a.emit(f'v_xor_b32 v{VWB+i}, {32*i}, v{VWB}')
    a.emit('s_mov_b32 s11, 0xffff0000')
    if E2: bl = a.lines[iB:]; del a.lines[iB:]
    if kind == 'wo':
        srd(a, SX, 'ws', WS_O, 4 * MB)
        srd(a, SO, 'ws', WS_X1, 4 * MB)
    else:
        if not SPC:
            if not ot: srd(a, SB, 'b2', 0, 2048)
            for jn in range(0 if ot else 4):
                a.emit(f'buffer_load_dwordx2 v[{BIA[jn]}:{BIA[jn]+1}], v14, s[{SB}:{SB+3}], 0 offen offset:{jn*32}')
            srd(a, SX, 'ws', WS_H, 2048 * 7168)
        srd(a, SO, 'out', 0, 4 * MB)
        srd(a, SR, 'ws0', WS_X2, 4 * MB)
        a.emit(f's_cmp_eq_u32 s{S_LAYER}, 0')
        a.emit(f's_cselect_b64 s[{SO}:{SO+1}], s[{SR}:{SR+1}], s[{SO}:{SO+1}]')
        a.emit(f's_lshl_b32 s{SO+2}, s7, 11')
        if E2:
            for x in range(3, 5): a.emit(f'v_readlane_b32 s{SR+(x&3)}, v{VT}, {x}')
    if not E2: srd(a, ST, 'ws', WS_ST if kind == 'wo' else WS_ST2, 16 * 16384)
    TID = ENV('TID', '1') == '1'
    if TID:
        a.emit(f's_mul_i32 s9, s8, {lda2}')
        a.emit(f's_add_u32 s{SX}, s{SX}, s9')
        a.emit(f's_addc_u32 s{SX+1}, s{SX+1}, 0x100000')
        a.emit(f's_add_u32 s{SC}, s{SX}, {16 * lda2}')
        a.emit(f's_addc_u32 s{SC+1}, s{SX+1}, 0')
        for r in (SX, SC):
            a.emit(f's_mov_b32 s{r+2}, {16 * lda2}')
            a.emit(f's_mov_b32 s{r+3}, 0x00800000')
    if E2:
        RB = int(ENV('RB', '0'))
        a.lines += bl[:RB]
        a.emit('s_waitcnt vmcnt(0) lgkmcnt(0)')
        a.emit('s_barrier')
        iR = len(a.lines)
        a.lines += bl[RB:]
        srd(a, ST, 'ws', WS_ST2, 16 * 16384)
    if kind == 'wo':
        if ENV('CT2', 'l') == 'l': code_touch(a, 'L_w1_c0', 'L_w1_c1', 128, SW)
        elif ENV('CT2') == 'o': code_touch(a, 'L_w2_c0', 'L_w2_c1', 192, SW)
        else: code_touch(a, 'L_w1_c0', 'L_w2_c1', 320, SW)
    DX = int(ENV('DX', '2'))
    CLW = DX == 1 and not P1 and ENV('CLP', 'e') == 'w'
    if CLW:
        for i in range(4): a.emit(f'v_mov_b32 v{128+i}, -1')
    if (P1 and DX) or CLW:
        srd(a, SP, 'ws', WS_XP, 4 * MB)
        a.emit(f's_or_b32 s{SP+1}, s{SP+1}, 0x100000')
        a.emit(f's_mov_b32 s{SP+3}, 0x00800000')
        a.emit(f's_lshl4_add_u32 s4, s{S_MT}, s{S_NT}')
        a.emit(f's_lshl2_add_u32 s4, s4, s{S_WV}')
        if DX == 2:
            srd(a, SB, 'ws0', WS_FL, FLS)
            a.emit(f's_add_u32 s6, s{S_LAYER}, 4')
            a.emit('s_lshl_b32 s6, s6, 10')
            a.emit('s_add_u32 s6, s6, s4')
            a.emit('s_lshl_b32 s6, s6, 6')
            a.emit(f'v_mov_b32 v{VE}, 1')
        a.emit('s_lshl_b32 s4, s4, 12')
        a.emit('s_xor_b32 s5, s4, 16384')
    elif P1:
        a.emit(f's_mul_i32 s3, s{S_WV}, {CH}')
        a.emit(f's_add_u32 s3, s3, {XB}')
        a.emit(f'v_lshl_add_u32 v{VE}, v1, 4, s3')
    if P1 and not ot:
        for i in range(32): a.emit(f'v_mov_b32 v{ACC[0]+i}, 0')
    bases = []
    for t in sorted(range(min(N, 20)), key=slot):
        if not bases or slot(t) + 8191 - bases[-1] > 65535: bases.append(slot(t))
    VSET = [VWB, 20, 26]
    for k in (2, 1, 0):
        for i in range(4):
            if bases[k] or k: a.emit(f'v_add_u32 v{VSET[k]+i}, {bases[k]}, v{VWB+i}')
    xof = lambda t: sched[t][0]
    NX = P1 + P2
    last = lambda x: sched.index((x, 1))
    def xl(x, reg):
        if TID: return [(f'buffer_load_dwordx4 v[{reg+(ks*2+jm)*4}:{reg+(ks*2+jm)*4+3}], off, s[{(SX, SC)[jm]}:{(SX, SC)[jm]+3}], s{SR+(x&3)} offset:{ks*1024}', 'V', ('x', x, ks))
                for ks in range(2) for jm in range(2)]
        return [(f'buffer_load_dwordx4 v[{reg+(ks*2+jm)*4}:{reg+(ks*2+jm)*4+3}], v{VXO+jm}, s[{SX}:{SX+3}], s{SR+(x&3)} offen offset:{ks*1024}', 'V', ('x', x, ks))
                for ks in range(2) for jm in range(2)]
    MC = int(ENV('MC', '1')) if P1 else int(ENV('MCO', '1'))
    def reads(t):
        o = []
        k = max(i for i, b in enumerate(bases) if b <= slot(t))
        for ks in range(2):
            for jn in range(4):
                for h in range(2):
                    d = fw(t & 1, ks, jn) + 2 * h
                    o.append((f'ds_read_b64_tr_b16 v[{d}:{d+1}], v{VSET[k]+jn} offset:{slot(t)-bases[k]+ks*4096+h*(2048 if nr else 512)}', 'L', ('w', t, jn >> 1 if MC else ks)))
        if MC: o.sort(key=lambda y: y[2][2])
        return o
    xreg = {}
    def mf(t):
        o = []
        if MC:
            od = [(0, 0, 0), (1, 0, 0), (1, 0, 1), (0, 0, 1), (0, 1, 1), (1, 1, 1), (1, 1, 0), (0, 1, 0)] if MC == 1 else [(0, 0, 0), (0, 0, 1), (0, 1, 1), (0, 1, 0), (1, 1, 0), (1, 1, 1), (1, 0, 1), (1, 0, 0)]
            seen = set()
            od += [(k, n + 2, m) for k, n, m in (od if MC == 1 else [(1 - k, n, m) for k, n, m in od])]
            if MS and not P1 and t == N - 1: od = [((i ^ k) & 1, n, m) for i, (n, m) in enumerate([(0, 0), (1, 0), (1, 1), (0, 1), (2, 0), (3, 0), (3, 1), (2, 1)]) for k in range(2)]
            for ks, jn, jm in od:
                c = acc(jn, jm, sched[t][1]); x = xreg[xof(t)] + (ks * 2 + jm) * 4
                o.append(f'v_mfma_f32_16x16x32_bf16 v[{c}:{c+3}], v[{fw(t&1,ks,jn)}:{fw(t&1,ks,jn)+3}], v[{x}:{x+3}], ' + ('0' if ot and t == 0 and c not in seen else f'v[{c}:{c+3}]'))
                seen.add(c)
            return o
        for ks in range(2):
            for jn, jm in mf_order(4, 2):
                if True:
                    c = acc(jn, jm, sched[t][1]); x = xreg[xof(t)] + (ks * 2 + jm) * 4
                    o.append(f'v_mfma_f32_16x16x32_bf16 v[{c}:{c+3}], v[{fw(t&1,ks,jn)}:{fw(t&1,ks,jn)+3}], v[{x}:{x+3}], ' + ('0' if ot and t == ks == 0 else f'v[{c}:{c+3}]'))
        return o
    U = kind[1].upper()
    NG = int(ENV('NG' + U, '3'))
    ring = [32, 48, 64, 80, 224, 240][:int(ENV('RING' + U, '6' if P1 else '4'))]
    NB = 2 if E2 else int(ENV('NB', '3'))
    if SPC: ring = ERING
    elif ot:
        assert NG == 3
        for x in range(3, 3 if E2 else 3 + NB): a.emit(f'v_readlane_b32 s{SR+(x&3)}, v{VT}, {x}')
    else:
        for x in range(NG): a.emit(f'v_readlane_b32 s{SR+x}, v{VT}, {x}')
    for i in range(0 if kind == 'w2' and 'w1' in NS else 4):
        for h in range(2): a.emit(f'v_permlane16_swap_b32 v{D+4*i+h}, v{D+4*i+2+h}')
    TF = int(ENV('TF', '-1')); TG = int(ENV('TG', '15'))
    import pads
    for x in pads.chain('hg') if kind == 'wo' else []: a.emit(x)
    a.emit('s_waitcnt lgkmcnt(0)' + (f' vmcnt({4 * NG + 4 if EX == 14 else 0})' if SPC and TF < 0 else ''))
    if not (ot and ENV('RE', '1') == '1'): a.emit('s_barrier')
    pre = []
    for x in range(NG):
        xreg[x] = ring[x]; pre += xl(x, ring[x])
    if SPC: pre = [('', k, tg) for _, k, tg in pre] + [('', 'V', 'st')] * (14 - EX)
    if ot: pre = [('', 'L', tg) for _, k, tg in pre] + [('', 'V', 'st')] * (EF == 1)
    if E2:
        xe = xl(3, ring[3]) + xl(4, ring[4])
        XD_ = int(ENV('XED', '8'))
        for i, y in enumerate(xe): a.lines.insert(iR + i * (XD_ + 1), '  ' + y[0])
        pre += [('', k, tg) for _, k, tg in xe]
    pre += reads(0)
    P = lambda x: (x, '', None)
    if kind == 'w2' and not ot: pre.append(P(f's_waitcnt vmcnt({len(pre) - 16})'))
    for jn in range(4):
        if kind == 'w2':
            for h in range(2):
                pre.append(P(f'v_lshlrev_b32 v{216+2*h}, 16, v{BIA[jn]+h}'))
                pre.append(P(f'v_and_b32 v{217+2*h}, s11, v{BIA[jn]+h}'))
        for jm in range(2):
            c = acc(jn, jm); r = D + (jm * 4 + jn) * 2
            for h in range(2):
                pre.append(P(f'v_lshlrev_b32 v{c+2*h}, 16, v{r+h}'))
                pre.append(P(f'v_and_b32 v{c+2*h+1}, s11, v{r+h}'))
                if kind == 'w2': pre.append(P(f'v_pk_add_f32 v[{c+2*h}:{c+2*h+1}], v[{c+2*h}:{c+2*h+1}], v[{216+2*h}:{217+2*h}]'))
    pre.append(('', 'W', [('w', 0, 0), ('x', 0, 0)] + [('x', 0, 1)] * bool(MC)))
    if TS:
        b = Asm(); stamp(b, 1); pre += [P(l.strip()) for l in b.lines]
    gp = [[] for _ in range(16 * N + 1)]
    waits = {}
    for t in range(N):
        if t + 1 < N:
            for i, x in enumerate(reads(t + 1)): gp[16 * t + i].append(x)
        for g, tt, ks in ((16 * t + 7, t, 1), (16 * t + 15, t + 1, 0)):
            if tt < N:
                waits[g] = [('w', tt, ks), ('x', xof(tt), 1 if MC else ks)]
                gp[g].append(('', 'W', waits[g]))
    def put(g, x, cap=2):
        while len(gp[g]) >= cap and g < 16 * N: g += 1
        gp[g].append(x); return g
    BP = int(ENV('BP', '4'))
    ZS = int(ENV('ZS', '50' if DX else '54')) if P1 else N - 1
    XS = int(ENV('XS', '43' if DX else '41'))
    PS = int(ENV('PS', '0'))
    bars = list(range(BP - 1, min(2 * P1, XS), BP)) + [XS] + ([PS] if PS else []) + ([] if DX == 1 else [ZS]) if P1 else [int(x) for x in ENV('BWO', '3,10' if 'w1' in OT else '3,7,12').split(',')]
    if SPC:
        bars = [TF] + [t for t in bars if t > TF + 1]
        assert TG in bars
        if EX < 14 and TF >= 0: waits[16 * TF + 7].append('st')
    if ot: bars = [int(x) for x in ENV('BW2', ['2,7', '1,7', '3,7'][EF]).split(',')] + bars[2:]
    TG2 = int(ENV('TG2', '11'))
    if ot and EF == 1: waits[16 * bars[0] + 7].append('st')
    if ot and EF: assert TG2 in bars
    for t in bars:
        if t >= 0: gp[16 * t + 7].append(P('s_barrier'))
    G = ACC[0]; GI = G + 16 if B16 else G
    pool = [[r, -1 if i >= NG else 16 * last(i) + 15, N] for i, r in enumerate(ring)]
    if P1:
        for i in range(int(ENV('RINGX', '0'))): pool.append([G + 16 * i, 16 * XS + 7, ZS])
    SP1 = int(ENV('SP1', '6')); SP2 = int(ENV('SP2', '3'))
    g = 0
    for x in range(NG, NX):
        sl = min((p for p in pool if last(x) < p[2]), key=lambda p: p[1])
        xreg[x] = sl[0]
        if SPC and x == SPC: g = max(g, 16 * TG + 7)
        if ot and EF and x == 11: g = max(g, 16 * TG2 + 7)
        if E2 and x < 5:
            assert sl[0] == ring[x]
            sl[1] = 16 * last(x) + 15
            continue
        if ot and x < 3 + NB:
            g = 16 * bars[0] + 7
            gp[g] += xl(x, sl[0]); sl[1] = 16 * last(x) + 15; g += 3
            continue
        g = put(max(g - 2, sl[1] - 2, 0), P(f'v_readlane_b32 s{SR+(x&3)}, v{VT}, {x}')) + 3
        sp = SP1 if len(ring) + (int(ENV('CU2', '2')) if ot else 0) <= x and g < 16 * int(ENV('SPE', str(TU + 1))) else SP2
        sps = [int(c) for c in ENV('SP3', '4')] if P1 and 12 <= x and sp == SP2 else [sp]
        for i, y in enumerate(xl(x, sl[0])): g = put(max(g, sl[1] + 1), y) + sps[i % len(sps)]
        sl[1] = 16 * last(x) + 15
    for i in range(4): put(16 * (N - 1), P(f'v_mov_b32 v{20+i}, 0'))
    if CLW:
        g = max(g, int(16 * float(ENV('CLG', '0'))))
        for i in range(4): g = put(g, (f'buffer_store_dwordx4 v[128:131], off, s[{SP}:{SP+3}], s4 offset:{1024*i} sc1', 'V', 'cl')) + int(ENV('CLD', '2'))
    def xld(i): return f'buffer_load_dwordx4 v[{GI+4*i}:{GI+4*i+3}], off, s[{SP}:{SP+3}], s5 offset:{1024*i} sc1'
    def vmax(d, r):
        return [f'v_max3_u32 v{d}, v{r}, v{r+1}, v{r+2}'] + [f'v_max3_u32 v{d}, v{d}, v{r+j}, v{r+j+1}' for j in range(3, 15, 2)] + [f'v_max_u32 v{d}, v{d}, v{r+15}', f'v_cmp_eq_u32 vcc, -1, v{d}']
    if P1 and DX:
        g = 16 * TU + 2
        for i in range(4):
            for j in range(4 * i, 4 * i + 4): g = put(g, P(f'v_cvt_pk_bf16_f32 v{G+j}, v{G+2*j}, v{G+2*j+1}'))
            put(max(g + 1, 16 * TU + 6 + i * int(ENV('XWS', '0'))), (f'buffer_store_dwordx4 v[{G+4*i}:{G+4*i+3}], off, s[{SP}:{SP+3}], s4 offset:{1024*i} sc1', 'V', 'xw'))
        g = int(16 * float(ENV('RS', '50')))
        if DX == 2:
            g = put(int(16 * float(ENV('FS', '44'))), ('', 'W', ['xw']))
            put(g, (f'buffer_store_dword v{VE}, off, s[{SB}:{SB+3}], s6 sc1', 'V', 'xf'))
            g = 16 * ZS + 8
        for i in range(4): g = put(g, (xld(i), 'V', 'xr')) + int(ENV('RSP', '2'))
        g = put(int(16 * float(ENV('VS', '53.5' if DX == 1 else '54'))), ('', 'W', ['xr']))
        if DX == 1:
            for y in vmax(VE, GI): g = put(g, P(y))
            g = put(g + 1, P(f's_cbranch_vccnz L_{kind}_xrt\nL_{kind}_xok:'))
        for i in range(16):
            g = put(g, P(f'v_lshlrev_b32 v{G+2*i}, 16, v{GI+i}'), 2 if g < 16 * (N - 1) else 3)
            g = put(g, P(f'v_and_b32 v{G+2*i+1}, s11, v{GI+i}'), 2 if g < 16 * (N - 1) else 3)
    elif P1:
        g = 16 * (2 * P1 - 1) + 2
        for i in range(NXC):
            if B16:
                for j in range(4 * i, 4 * i + 4): g = put(g, P(f'v_cvt_pk_bf16_f32 v{G+j}, v{G+2*j}, v{G+2*j+1}'))
            gw = put(max(g + 1, 16 * (2 * P1 - 1) + 8 + 2 * i), (f'ds_write_b128 v{VE}, v[{G+4*i}:{G+4*i+3}] offset:{1024*i}', 'L', 'xw'))
        assert gw < 16 * XS + 7
        waits[16 * XS + 7].append('xw')
        g = 16 * ZS + 8
        for i in range(NXC): g = put(g, (f'ds_read_b128 v[{GI+4*i}:{GI+4*i+3}], v{VE} offset:{1024*i}', 'L', 'xr')) + 1
        g = put(max(g + 6, 16 * (N - 1)), ('', 'W', ['xr']))
        if B16:
            for i in range(16):
                g = put(g, P(f'v_lshlrev_b32 v{G+2*i}, 16, v{GI+i}'), 3)
                g = put(g, P(f'v_and_b32 v{G+2*i+1}, s11, v{GI+i}'), 3)
    XG = int(ENV('XG', '1'))
    if XG:
        isr = lambda y: y[1] == 'L' and y[2][0] == 'w'
        for g in range(16 * N - 1):
            if len(gp[g]) == 2 and gp[g][1][1] == 'V' and isr(gp[g][0]):
                for d in ((1, -1) if XG == 1 else (-1, 1)):
                    if len(gp[g + d]) == 1 and isr(gp[g + d][0]) and (d > 0 or g & 15):
                        gp[g + d].insert(0 if d > 0 else 1, gp[g].pop(0)); break
    lin = list(pre)
    for t in range(N):
        for i, m in enumerate(mf(t)):
            lin.append(P(m)); lin += gp[16 * t + i]
        if TS and t == int(ENV('ST2', '99')):
            b = Asm(); stamp(b, 2); lin += [P(l.strip()) for l in b.lines]
    lin += gp[16 * N]
    nbc = [0]
    def nb2():
        nbc[0] += 1; return 2 < nbc[0] < len(bars)
    iss = {'L': [], 'V': []}; done = {'L': -1, 'V': -1}
    for txt, k, tag in lin:
        if k == 'W':
            o = []
            for c, nm, mx in (('V', 'vmcnt', 63), ('L', 'lgkmcnt', 15)):
                idx = [i for i, x in enumerate(iss[c]) if x in tag]
                if idx and max(idx) > done[c]:
                    n = min(mx, len(iss[c]) - 1 - max(idx)); done[c] = len(iss[c]) - 1 - n
                    o.append(f'{nm}({n})')
            assert all(x in iss['L'] or x in iss['V'] for x in tag), tag
            if o: a.emit('s_waitcnt ' + ' '.join(o))
            continue
        if k: iss[k].append(tag)
        if 'nox2' in DBG and P1 and k == 'V' and tag[0] == 'x' and len(tag) == 3: continue
        if 'nobar2' in DBG and P1 and txt == 's_barrier' and nb2(): continue
        if ('nox' in DBG and k == 'V') or ('nomfma' in DBG and 'mfma' in txt) or not txt: continue
        a.emit(txt)
    if int(ENV('ST2', '99')) >= N: stamp(a, 2)
    a.emit(f's_mov_b32 s3, {16*2048}' if kind == 'wo' else 's_lshl_b32 s3, s7, 4')
    a.emit('s_mov_b32 s10, 0x3f803f80')
    a.emit('s_nop 4')
    for jm in range(2):
        for p in range(2):
            d = D + (jm * 2 + p) * 4
            for q in range(2):
                c = acc(2 * p + q, jm); g = acc(2 * p + q, jm, 0)
                if P1:
                    for h in range(2): a.emit(f'v_pk_add_f32 v[{c+2*h}:{c+2*h+1}], v[{c+2*h}:{c+2*h+1}], v[{g+2*h}:{g+2*h+1}]')
                a.emit(f'v_cvt_pk_bf16_f32 v{d+2*q}, v{c}, v{c+1}')
                a.emit(f'v_cvt_pk_bf16_f32 v{d+2*q+1}, v{c+2}, v{c+3}')
            if not (kind == 'wo' and 'w1' in NS):
                a.emit('s_nop 1')
                a.emit(f'v_permlane16_swap_b32 v{d}, v{d+2}')
                a.emit(f'v_permlane16_swap_b32 v{d+1}, v{d+3}')
            a.emit(f'buffer_store_dwordx4 v[{d}:{d+3}], v{VO}, s[{SO}:{SO+3}], {"s3" if jm else "0"} offen offset:{p*PSTEP}{stf(kind)}')
            if kind == 'w2' and 'attn' in OT: a.emit(f'ds_write_b128 v{4+p}, v[{d}:{d+3}] offset:{jm*2048}')
            if kind == 'wo' and 'w1' in OT: a.emit(f'ds_write_b128 v{VE}, v[{d}:{d+3}] offset:{jm*2048+p*1024}')
    for jm in range(2):
        for i in range(8):
            d = D + jm * 8 + i
            a.emit(f'v_dot2_f32_bf16 v{20+jm}, v{d}, s10, v{20+jm}')
            a.emit(f'v_dot2_f32_bf16 v{22+jm}, v{d}, v{d}, v{22+jm}')
    a.emit('s_nop 2')
    a.emit('v_permlane32_swap_b32 v20, v21')
    a.emit('v_permlane32_swap_b32 v22, v23')
    a.emit('v_add_f32 v20, v20, v21')
    a.emit('v_add_f32 v22, v22, v23')
    a.emit('s_nop 1')
    a.emit('v_permlane16_swap_b32 v20, v22')
    a.emit('v_add_f32 v20, v20, v22')
    a.emit(f'buffer_store_dword v20, v18, s[{ST}:{ST+3}], 0 offen{stf(kind)}')
    compute_end(a, kind)
    if P1 and DX == 1:
        a.label(f'L_{kind}_xrt')
        a.emit('s_mov_b32 s6, 0x40000')
        a.label(f'L_{kind}_xrl')
        for i in range(4): a.emit(xld(i))
        a.emit('s_sub_u32 s6, s6, 1')
        a.emit('s_waitcnt vmcnt(0)')
        a.emit(f's_cbranch_scc1 L_{kind}_xok')
        for y in vmax(VE, GI): a.emit(y)
        a.emit(f's_cbranch_vccnz L_{kind}_xrl')
        a.emit(f's_branch L_{kind}_xok')
    a.label(f'L_{kind}_loader')
    VT = 16
    if ENV('LPRIO'): a.emit(f"s_setprio {ENV('LPRIO')}")
    if kind == 'wo':
        if LSTK == 'wo': lstamp(a, 0)
        import sides
        dep_pre(a, kind, 0)
        a.emit(f's_cmp_lg_u32 s{S_LAYER}, 0')
        a.emit(f's_cbranch_scc1 L_{kind}_nofirst')
        sides.qkv(a, 0, 'finish', 1)
        a.label(f'L_{kind}_nofirst')
    L = Loader(a, kind, K, lda2, ldw2, [0], 128, 2, 8192, xblk=True)
    L.panels_of = lambda t: [0] if sched[t][1] else [f's{S_XD}']
    if ot:
        ktab_ot(a, VT, 17, S_TB)
        if 'whit' in DBG: a.emit(f'v_and_b32 v{VT}, 0x60000, v{VT}')
    else: ktab(a, VT, 17, P1, P2, S_TB)
    a.emit(f's_add_u32 s9, s{S_WV}, s{S_MT}')
    a.emit('s_and_b32 s9, s9, 3')
    a.emit(f's_lshl_b32 s{S_WD}, s9, 11')
    a.emit('v_and_b32 v10, 7, v1')
    if 'wsm' in DBG:
        a.emit(f's_and_b32 s11, s{S_NT}, 1')
        wvoff(a, L.VWD, 9, 11, ldw2)
    elif 'noslow2' in DBG:
        a.emit(f's_bitcmp1_b32 0x0c0c, s{S_NT}')
        a.emit('s_cselect_b32 s11, 2, 0')
        a.emit(f's_add_u32 s11, s11, s{S_NT}')
        wvoff(a, L.VWD, 9, 11, ldw2)
    else: wvoff(a, L.VWD, 9, S_NT, ldw2, kind in NS)
    if kind == 'wo': srd(a, SW, 'wo', 0, 2 * MB)
    else:
        srd(a, SW, 'w2', 0, 3584 * 2048)
        a.emit(f's_bitcmp1_b32 s{S_NT}, 0')
        a.emit(f's_mov_b32 s{S_XD}, 128')
        a.emit(f's_cselect_b32 s{S_XD}, -128, s{S_XD}')
    NPF = int(ENV('NPF' + kind[1].upper(), '10'))
    assert NPRE - NPF <= 18
    seq = []
    def em(o):
        for x in o:
            if ('nodma' in DBG or ('nodma2' in DBG and len(seq) >= 40)) and x.endswith(' lds'): continue
            a.emit(x)
    def after(t): return len(seq) - 1 - max(i for i, x in enumerate(seq) if x == t)
    NPK = int(ENV('NPK', '0')) if P1 else 0
    PK0 = int(ENV('PK0', '20')); PKA = int(ENV('PKA', '0'))
    PKD = int(ENV('PKD', '1'))
    pks = [t for t in range(PK0, N) if ((t - PK0) >> 1) % PKD == 0][:NPK]
    pkr = lambda t: 256 - 8 * NPK + 8 * pks.index(t)
    assert 256 - 8 * NPK >= 48
    if NPK:
        a.emit(f'v_lshl_add_u32 v20, v1, 4, s{S_WD}')
        a.emit('v_add_u32 v21, 0x10000, v20')
        a.emit('v_add_u32 v22, 0x20000, v20')
    lastk = [None]
    def kw(t):
        x = xof(t)
        if lastk[0] != x: a.emit(f'v_readlane_b32 s{S_KW}, v{VT}, {x}')
        lastk[0] = x
    def pk(t):
        kw(t)
        a.emit(f's_add_u32 s4, s{S_KW}, {L.panels_of(t)[0]}')
        for i in range(2): a.emit(f'buffer_load_dwordx4 v[{pkr(t)+4*i}:{pkr(t)+4*i+3}], v{L.VWD+i}, s[{SW}:{SW+3}], s4 offen')
        seq.extend([('P', t)] * 2)
    vmdone = [-1]
    def iw(t):
        if t in pks:
            i = max(i for i, x in enumerate(seq) if x == ('P', t))
            if i > vmdone[0]:
                a.emit(f's_waitcnt vmcnt({min(63, len(seq) - 1 - i)})'); vmdone[0] = i
            for i in range(0 if 'nopw' in DBG else 2): a.emit(f'ds_write_b128 v{20+(slot(t)>>16)}, v[{pkr(t)+4*i}:{pkr(t)+4*i+3}] offset:{(slot(t)&65535)+1024*i}')
            return
        kw(t)
        em(L.issue_w(t, S_WD, slot(t)))
        seq.extend([t] * 2)
    if kind == LSTK == 'wo': lstamp(a, 1)
    CW = [int(x) for x in ENV('CW', '0').split(',')] if P1 else []
    cwk = list(range(NPRE // 2, P1)) + list(range(2 * P1, N)); cwn = [0]
    if sum(CW):
        srd(a, SR, 'w2', 0, 3584 * 2048)
        a.emit(f's_and_b32 s3, s{S_WV}, 3')
        a.emit(f's_lshl2_add_u32 s3, s{S_CU}, s3')
        a.emit('s_lshl_b32 s4, s3, 6')
        a.emit('s_and_b32 s4, s4, 64')
        a.emit('s_lshr_b32 s3, s3, 1')
        a.emit('s_lshl_b32 s3, s3, 11')
        a.emit('s_add_u32 s3, s3, s4')
        a.emit(f's_sub_u32 s4, 384, s{SW}')
        a.emit('s_and_b32 s4, s4, 0x380')
        a.emit(f's_add_u32 s{S_Q}, s3, s4')
        a.emit(f's_bitcmp1_b32 s{S_NT}, 0')
        a.emit(f's_cselect_b32 s3, {P1 << 17}, 0')
        a.emit(f's_add_u32 s{S_T}, s{S_Q}, s3')
        a.emit('s_lshr_b32 s4, s4, 7')
        a.emit(f's_xor_b32 s4, s4, s{S_NT}')
        a.emit('s_bitcmp1_b32 s4, 0')
        a.emit(f's_cselect_b32 s{SR+2}, 0, s{SR+2}')
    def cw(j):
        for k in cwk[cwn[0]:cwn[0] + (CW[j] if j < len(CW) else 0)]:
            a.emit(f's_add_u32 s3, s{S_T if k < P1 else S_Q}, {k << 17}')
            for i in range(2): a.emit(f's_buffer_load_dword s84, s[{SW if k < P1 else SR}:{(SW if k < P1 else SR)+3}], s3 offset:{1024*i}')
            cwn[0] += 1
    def clr(w):
        if DX != 1 or P1 or w != ENV('CLP', 'e'): return
        srd(a, SP, 'ws', WS_XP, 4 * MB)
        a.emit(f's_and_b32 s5, s{S_WV}, 3')
        a.emit(f's_lshl4_add_u32 s6, s{S_MT}, s{S_NT}')
        a.emit('s_lshl2_add_u32 s6, s6, s5')
        a.emit('s_lshl_b32 s6, s6, 12')
        a.emit('s_setprio 3')
        a.emit('v_lshlrev_b32 v3, 4, v1')
        for i in range(4): a.emit(f'v_mov_b32 v{24+i}, -1')
        for i in range(4): a.emit(f'buffer_store_dwordx4 v[24:27], v3, s[{SP}:{SP+3}], s6 offen offset:{1024*i} sc1')
        a.emit('s_setprio 0')
        seq.extend(['C'] * 4)
    clr('a')
    for t in range(NPRE - NPF): iw(t)
    clr('b')
    PTH = ENV('PTH', '')
    for t in pks[:NPK - PKA]:
        pk(t)
        if PTH: a.emit(f's_waitcnt vmcnt({PTH})')
    cw(0)
    if kind == 'wo': dep_pre(a, kind, 1, len(seq))
    N2 = NPRE - NPF; pref = None
    if SPC:
        N2 = max(N2, int(ENV('N2', '0')), bars[1] + 2); NPRE = int(ENV('N3', '20'))
        assert NPRE <= TF + 21
        def pref():
            a.emit('s_mov_b32 s5, s3')
            if TF >= 0:
                a.emit(f's_waitcnt vmcnt({after(TF + 1)})')
                a.emit('s_barrier')
            for t in range(len(seq) // 2, N2): iw(t)
            a.emit('s_mov_b32 s3, s5')
            a.emit(f's_waitcnt vmcnt({after(bars[1] + 1)})')
    def postf():
        for t in range(N2, NPRE):
            if ot and slot(t) == OHB:
                a.emit(f's_waitcnt vmcnt({after(bars[0] + 1)})')
                a.emit('s_barrier')
            iw(t)
        for t in pks[NPK - PKA:]: pk(t)
    if ot and EF:
        NE = int(ENV('NE', '14')); NH = int(ENV('NH', str(NE))); NPRE = int(ENV('NGB', '20' if E2 else str(NH)))
        assert slot(NH - 1) < OHB
        dep_ef(a, lambda: [iw(t) for t in range(N2, NE)], lambda: E2 or a.emit(f's_waitcnt vmcnt({after(bars[0] + 1)})'),
               lambda: [iw(t) for t in range(NE, NH)] + [a.emit(f's_waitcnt vmcnt({after(bars[0 if E2 else 1] + 1)}) lgkmcnt(0)')])
        a.emit(f's_mov_b32 s{S_CNT}, 0x100000')
        for t in range(NH, NPRE): iw(t)
    else: dep_wait(a, kind, skip_first=kind == 'wo', preg=lambda: a.emit(f's_waitcnt vmcnt({min(after(bars[2 if SPC else 1 if ot else 0] + 1), 63)}) lgkmcnt(0)'),
             postf=postf, pref=pref, defer=bool(SPC))
    nxt = NPRE
    reg = bars[:bars.index(XS)] if P1 and not DX else bars
    clr('g')
    for j, t in enumerate(reg):
        if (SPC or ot) and j < 1 and not E2: continue
        lim = min(N, (reg[j - 1] if j else -1) + 21)
        PACE = [int(c) for c in ENV('PACE', '')] if P1 else []
        if j < len(PACE): lim = min(lim, nxt + PACE[j])
        PP = int(ENV('PP', '2'))
        pp = min(lim - 1, nxt + PP) if (SPC and t == TG) or (E2 and t == TG2) else -1
        pe = min(lim - 1, nxt + int(ENV('PE', '0'))) if ot and EF == 1 and t == TG2 else -1
        while nxt < lim:
            if nxt == pp: dep_late(a, kind, 0); seq.append('F')
            if nxt == pe:
                ef_poll(a, 'L_w2_pl', 2, True)
                lstamp(a, 2, True)
            iw(nxt); nxt += 1
            if nxt - 1 in pks: a.emit('s_waitcnt lgkmcnt(0)')
            elif nxt < lim: a.emit(f"s_waitcnt vmcnt({ENV('LTHR', '4')})")
        cw(j + 1)
        clr(str(j))
        need = [min(N - 1, bars[j + 1] + 1)] if j + 1 < len(bars) else []
        assert all(t < nxt for t in need)
        need = [max(x for x in range(t + 1) if x not in pks) for t in need]
        if P1 and not DX and j == len(reg) - 1:
            srd(a, SP, 'ws', WS_XP, 8 * MB)
            srd(a, SC, 'ws0', WS_FL, FLS)
            a.emit(f's_and_b32 s5, s{S_WV}, 3')
            a.emit(f's_lshl4_add_u32 s6, s{S_MT}, s{S_NT}')
            a.emit('s_lshl2_add_u32 s6, s6, s5')
            a.emit(f's_mul_i32 s8, s6, {CH}')
            a.emit('s_add_u32 s9, s8, 4096')
            a.emit(f's_add_u32 s7, s{S_LAYER}, 4')
            a.emit('s_lshl_b32 s7, s7, 10')
            a.emit('s_add_u32 s6, s6, s7')
            a.emit('s_lshl_b32 s6, s6, 6')
            a.emit('s_xor_b32 s7, s6, 256')
            a.emit(f's_mul_i32 s5, s5, {CH}')
            a.emit(f's_add_u32 s5, s5, {XB}')
            a.emit('v_lshlrev_b32 v3, 4, v1')
            a.emit('v_add_u32 v2, s5, v3')
            a.emit('v_mov_b32 v4, 1')
            a.emit(f's_mov_b32 s{S_CNT}, 0x100000')
        if pp >= 0: dep_late(a, kind, 1, after('F'))
        if P1 and DX == 2 and t == XS:
            srd(a, SC, 'ws0', WS_FL, FLS)
            a.emit(f's_lshl4_add_u32 s6, s{S_MT}, s{S_NT}')
            a.emit('s_xor_b32 s6, s6, 1')
            a.emit(f's_add_u32 s7, s{S_LAYER}, 4')
            a.emit('s_lshl_b32 s7, s7, 8')
            a.emit('s_add_u32 s6, s6, s7')
            a.emit('s_lshl_b32 s6, s6, 8')
            a.emit('v_and_b32 v2, 3, v1')
            a.emit('v_lshlrev_b32 v2, 6, v2')
            a.emit(f's_mov_b32 s{S_CNT}, 0x100000')
        if P1 and DX == 2 and t == ZS:
            a.emit(f's_cmp_lg_u32 s{S_WV}, 4')
            a.emit(f's_cbranch_scc1 L_{kind}_xgo')
            a.emit('s_setprio 3')
            a.label(f'L_{kind}_xpoll')
            a.emit(f'buffer_load_dword v5, v2, s[{SC}:{SC+3}], s6 offen sc1')
            a.emit(f's_sub_u32 s{S_CNT}, s{S_CNT}, 1')
            a.emit(f's_cbranch_scc1 L_{kind}_xgo')
            a.emit('s_waitcnt vmcnt(0)')
            a.emit('v_cmp_ne_u32 vcc, 1, v5')
            a.emit(f's_cbranch_vccnz L_{kind}_xpoll')
            a.label(f'L_{kind}_xgo')
            a.emit('s_setprio 0')
        a.emit(f's_waitcnt vmcnt({min(63, min(after(t) for t in need)) if need else 0})')
        if not ('nobar2' in DBG and P1 and 1 < j < len(bars) - 1): a.emit('s_barrier')
    assert nxt == N and (ENV('LATE_W1', '2') == '2' or (kind == 'w2' or bars[-1] >= 9) and 'w1' in OT) and ENV('LATE_ATTN', '2') == '2'
    clr('e')
    if not P1: a.emit('s_waitcnt vmcnt(0)')
    if P1 and not DX:
        XL = ENV('LST') == 'x'
        a.emit('s_setprio 3')
        a.emit('s_waitcnt vmcnt(0) lgkmcnt(0)')
        a.emit('s_barrier')
        for i in range(NXC): a.emit(f'ds_read_b128 v[{32+4*i}:{35+4*i}], v2 offset:{1024*i}')
        for i in range(NXC):
            a.emit(f's_waitcnt lgkmcnt({NXC-1-i})')
            if 'noxs' not in DBG: a.emit(f'buffer_store_dwordx4 v[{32+4*i}:{35+4*i}], v3, s[{SP}:{SP+3}], s{8+(i>>2)} offen offset:{1024*(i&3)} sc1')
        if XL: lstamp(a, 0)
        a.emit(f's_xor_b32 s8, s8, {4*CH}')
        a.emit(f's_xor_b32 s9, s9, {4*CH}')
        a.emit('s_mov_b64 exec, 1')
        a.emit('s_waitcnt vmcnt(0)')
        a.emit(f'buffer_store_dword v4, off, s[{SC}:{SC+3}], s6 sc1')
        if XL: lstamp(a, 1)
        if PS: a.emit('s_barrier')
        if 'nopoll' in DBG: a.emit(f's_branch L_{kind}_xgo')
        a.label(f'L_{kind}_xpoll')
        a.emit(f'buffer_load_dword v5, off, s[{SC}:{SC+3}], s7 sc1')
        a.emit(f's_sub_u32 s{S_CNT}, s{S_CNT}, 1')
        a.emit(f's_cbranch_scc1 L_{kind}_xgo')
        a.emit('s_waitcnt vmcnt(0)')
        a.emit('v_cmp_ne_u32 vcc, 1, v5')
        a.emit(f's_cbranch_vccnz L_{kind}_xpoll')
        a.label(f'L_{kind}_xgo')
        a.emit('s_mov_b64 exec, -1')
        a.emit('s_mov_b32 m0, s5')
        if XL: lstamp(a, 2)
        for i in range(NXC):
            if i == 4: a.emit('s_add_u32 m0, s5, 4096')
            if not i & 3: a.emit('s_nop 0')
            if 'noxl' not in DBG: a.emit(f'buffer_load_dwordx4 v3, s[{SP}:{SP+3}], s{8+(i>>2)} offen offset:{1024*(i&3)} lds')
        a.emit('s_waitcnt vmcnt(0)')
        if XL: lstamp(a, 3)
        a.emit('s_setprio 0')
        a.emit('s_barrier')
    loader_end(a, kind)
    a.label(end)
    a.emit('s_endpgm')
    loader_first(a, kind)
    if SPC:
        i = a.lines.index(f'  s_cbranch_scc1 L_{kind}_compute')
        del a.lines[i - 1:i + 1]
    a.label(f'L_{kind}_c1')
    return 163840
```

```python
from common import *

T4 = ENV('T4', '1') == '1'
OBAR = ENV('OBAR', '0') == '1'
WG = ENV('WG', '1') == '1' and not LF1
assert not WG or ENV('WAG_W1', '0') + ENV('WAG_ATTN', '0') + ENV('LATE_W1', '2') == '002'
def big_loop(a, tag, N, S, STAGE, naddr, VB, VA, reads, mf, variants=None, select=None, post=None, ot=None, mid=(), halo=None, hooks=None, tail=None, ch=None):
    if tail: N -= 1
    def addr():
        o = [f'v_add_u32_e64 v{VA+i}, s{S_SLOT}, v{VB+i}' for i in range(naddr)]
        o += [f's_add_u32 s{S_SLOT}, s{S_SLOT}, {STAGE}', f's_cmp_eq_u32 s{S_SLOT}, {S*STAGE}', f's_cselect_b32 s{S_SLOT}, 0, s{S_SLOT}']
        return o
    a.emit(f's_mov_b32 s{S_SLOT}, 0')
    for x in addr(): a.emit(x)
    if halo:
        if QS: a.emit('s_mov_b32 vcc_hi, 0')
        if hooks: own_pos(a, S_CNT)
        else: a.emit(f's_mov_b32 s{S_CNT}, {N}')
        if hooks: a.emit(f's_mul_i32 s{S_T}, s{S_LAYER}, {len(hooks)}')
        a.emit(f's_cmp_eq_u32 s{S_LAYER}, 0')
        a.emit(f's_cbranch_scc1 L_{tag}_nog')
    a.emit(f's_mov_b32 s{S_CNT}, {N - 1 if ot else N}')
    if ot:
        rd = (lambda s, ks: reads(s, ks, False)) if halo else reads
        for x in rd(0, 0): a.emit(x)
        a.emit('s_waitcnt lgkmcnt(0)')
        if LF1 and tag == 'w1':
            SH0, SH1 = [int(x) for x in ENV('SH', '18,3').split(',')]
            sd = rd(1, 1) + addr()
            for i, x in enumerate(ot(0)):
                a.emit(x)
                if i < len(sd): a.emit(sd[i])
                a.lines += ['@S'] * (1 if i < SH0 else SH1 if i >= len(sd) else 0)
            a.emit('s_waitcnt lgkmcnt(0)')
            for x in ot(1): a.emit(x); a.lines += ['@S'] * SH1
            assert mid[SH0].split()[0] not in ('s_addc_u32', 's_cselect_b32')
            while len(mid) > 1: a.lines[a.lines.index('@S')] = mid.pop(0)
        else:
            interleave(a, ot(0), rd(1, 1) + addr(), lead=1, per=1)
            a.emit('s_waitcnt lgkmcnt(0)')
            for x in ot(1): a.emit(x)
    rw = [x for x in reads(0, 0) if '_tr_' in x] if WG and ot else []
    rx = [x for x in reads(0, 0) if x not in rw]
    if ch:
        rw = [x for x in ch['r0'] if '_tr_' in x]; rx = sorted((x for x in ch['r0'] if x not in rw), key=lambda x: uses(ch['ms'], x)[0])
        assert WG and ot
    if halo:
        a.emit('s_barrier')
        for x in halo[0] + rw: a.emit(x)
        a.label(f'L_{tag}_nog')
    else:
        import pads
        for x in pads.chain('hv'): a.emit(x)
        MG = int(ENV('MG', '0'))
        if LF2 == 2: MG = len(mid) - 1
        a.lines += mid[:MG] + ['@W2G'] * (LF2 == 2); mid = mid[MG:]
        if ENV('S1') == 'a': stamp(a, 1)
        if not LF1: gbar(a, tag)
        for x in rw: a.emit(x)
        if ENV('S1') == 'b': stamp(a, 1)
    a.lines += mid
    if ENV('S1') == 'c': stamp(a, 1)
    if halo: a.emit(f's_cmp_eq_u32 s{S_LAYER}, 0')
    a.emit('s_barrier')
    if not ENV('S1') or halo: stamp(a, 1)
    if halo:
        a.emit(f's_cbranch_scc1 L_{tag}_first')
        for x in halo[1] + rx: a.emit(x)
        a.emit(f's_waitcnt lgkmcnt({min(15, len(rx))})')
        for x in halo[2]: a.emit(x)
        a.emit('s_waitcnt lgkmcnt(0)')
        a.emit(f's_branch L_{tag}_loop' + '1' * QS)
        a.label(f'L_{tag}_first')
        if not DS: a.emit(f's_load_dwordx2 s[{SC}:{SC+1}], s[0:1], 72')
    for x in (rw + rx if ch else reads(0, 0)) if halo else rx: a.emit(x)
    a.emit('s_waitcnt lgkmcnt(0)')
    def loop(nm, m):
        la = int(ENV('LA_' + tag.upper(), '4'))
        w = a.lines.pop()
        assert w.split()[0] in ('s_waitcnt', 's_cbranch_scc1', 's_branch')
        a('.p2align 5')
        for _ in range(la - 1): a.emit('s_nop 0')
        a.lines.append(w)
        a.label(f'L_{tag}_loop{nm}')
        ad = addr()
        ad[-1] += f'\n  s_sub_u32 s{S_CNT}, s{S_CNT}, 1'
        qs = QS and halo
        if ch:
            ms = list(ch['ms']); sk = 2 if qs else 0; BP = ch['bar']
            fl = {sk + i - (sk > 0): [x] for i, x in enumerate(ch['r1'])}
            ad = addr()
            g = max(fl) + 1
            for x in ad[:-1]: fl[g] = [x]; g += 1
            fl[g] = [ad[-1], f's_sub_u32 s{S_CNT}, s{S_CNT}, 1']
            assert g <= BP
            fl.setdefault(BP, [])
            fl[BP] += ['s_waitcnt lgkmcnt(0)', 's_barrier']
            todo = list(ch['r0'])
            for g in range(BP + 1, len(ms)):
                rdy = sorted((x for x in todo if uses(ms, x)[-1] <= g), key=lambda x: uses(ms, x)[0])
                if rdy: fl[g] = rdy[:1]; todo.remove(rdy[0])
            assert not todo
            g = min(g for g in range(BP + 1, len(ms)) if g not in fl)
            fl[g] = [f's_cmp_lg_u32 s{S_CNT}, 0', f's_cselect_b32 vcc_lo, s{S_LAYER}, 0' if qs else 's_nop 0']
            e = waits_for(ms, {k: list(v) for k, v in fl.items()}, [], sk)
            ch['pend'] = waits_for(ms, fl, e, sk)
            assert e == ch['pend']
            for g in range(len(ms) - 1):
                if g != BP and fl.get(g, ['-'])[-1].startswith('s_waitcnt'): fl[g].append('s_nop 0')
            if qs: ms[1] += f'\nL_{tag}_loop1:'
            for x in weave(ms, fl): a.emit(x)
            if qs: a.emit(f's_cbranch_vccnz L_{tag}_loop1')
            a.emit(f's_cbranch_scc1 L_{tag}_loop{nm}')
            return
        m0 = m(0); m1 = m(1)
        if qs: m0[0] += f'\nL_{tag}_loop1:'
        interleave(a, m0, reads(1, 1) + ad, lead=1, per=1)
        a.emit('s_waitcnt lgkmcnt(0)')
        a.emit('s_barrier')
        tr = bool(TS) and ENV('STR') == tag
        if tr: a.emit('s_memrealtime s[92:93]')
        interleave(a, m1[:-1] if qs else m1, reads(0, 0) + [f's_cmp_lg_u32 s{S_CNT}, 0\n  ' + (f's_cselect_b32 vcc_lo, s{S_LAYER}, 0' if qs else 's_nop 0')] + ['v_mov_b32_dpp v3, v3 row_shr:1 row_mask:0xf bank_mask:0xf'] * tr, lead=1, per=1)
        a.emit('s_waitcnt lgkmcnt(0)')
        if tr: a.emit('v_writelane_b32 v3, s92, 0')
        if qs:
            a.emit(f's_cbranch_vccnz L_{tag}_loop1')
            a.emit(m1[-1])
        a.emit(f's_cbranch_scc1 L_{tag}_loop{nm}')
    if variants:
        select()
        vs = list(variants.items())
        for i, (nm, m) in enumerate(vs):
            loop(nm, m)
            if i + 1 < len(vs): a.emit(f's_branch L_{tag}_post')
        a.label(f'L_{tag}_post')
        post()
        a.emit(f's_branch L_{tag}_exit')
    if hooks and PO0 == 0:
        a.emit(f's_cmp_eq_u32 s{S_CNT}, 0')
        a.emit(f's_cbranch_scc1 L_{tag}_lend')
    loop('', mf)
    a.label(f'L_{tag}_lend')
    if hooks:
        a.emit(f's_add_u32 s{S_T}, s{S_T}, 1')
        a.emit(f's_cmp_gt_u32 s{S_T}, {len(hooks)}')
        a.emit(f's_cbranch_scc1 L_{tag}_exit')
        for i, (t, code) in enumerate(hooks):
            if i + 1 < len(hooks):
                a.emit(f's_cmp_lg_u32 s{S_T}, {i + 1}')
                a.emit(f's_cbranch_scc1 L_{tag}_hook{i}')
            t2 = hooks[i + 1][0] if i + 1 < len(hooks) else N
            if t < 0 <= t2:
                own_pos(a, S_CNT)
                a.emit(f's_sub_u32 s{S_CNT}, {t2 + t + 1}, s{S_CNT}')
                assert t2 + t + 1 > PO0 + POM
            else: a.emit(f's_mov_b32 s{S_CNT}, {abs(t2 - t)}')
            for x in code: a.emit(x)
            a.emit(f's_branch L_{tag}_loop')
            if i + 1 < len(hooks): a.label(f'L_{tag}_hook{i}')
    a.label(f'L_{tag}_exit')
    if ch and tail[0] is not None:
        r1 = sorted(ch['r1'], key=lambda x: not uses(mf(0), x))
        late = lambda m: max([0] + [1 + i for i, x in enumerate(ch['pend'] + r1) if uses([m], x)])
        ms = sorted(mf(0), key=late)
        fl = {i: [x] for i, x in enumerate(r1 + tail[0])}
        waits_for(ms, fl, ch['pend'], -1)
        for x in weave(ms, fl) + ['s_waitcnt lgkmcnt(0)', 's_barrier']: a.emit(x)
    elif ch: tail = (None, tail[1](ch['pend']))
    elif tail and tail[0] is not None:
        interleave(a, mf(0), reads(1, 1) + tail[0], lead=1, per=1)
        a.emit('s_waitcnt lgkmcnt(0)')
        a.emit('s_barrier')
    for x in tail[1] if tail else []: a.emit(x)
    stamp(a, 2)

def weave(ms, fill):
    return [x for i, m in enumerate(ms) for x in [m] + fill.get(i, [])]

def stats_loads(a, vd, halo):
    a.emit(f's_and_b32 s3, s{S_WV}, 3')
    a.emit(f's_lshl_b32 s4, s{S_MT}, 7')
    a.emit('s_lshl_b32 s5, s3, 6')
    a.emit('s_add_u32 s5, s5, s4')
    a.emit('v_add_u32 v2, s5, v1')
    a.emit('s_sub_u32 s4, s4, 16')
    a.emit('v_and_b32 v3, 15, v1')
    a.emit('v_add_u32 v3, s4, v3')
    a.emit('v_max_i32 v3, 0, v3')
    a.emit('s_cmp_ge_u32 s3, 2')
    a.emit('s_cselect_b64 vcc, -1, 0')
    a.emit('v_cndmask_b32 v2, v2, v3, vcc')
    a.emit('v_lshlrev_b32 v2, 3, v2')
    a.emit('s_mov_b32 s3, 0')
    for j in range(16):
        a.emit(f'buffer_load_dwordx2 v[{vd+2*j}:{vd+2*j+1}], v2, s[{ST}:{ST+3}], s3 offen')
        if j < 15: a.emit('s_add_u32 s3, s3, 16384')
    return 16

def stats_finish(a, vs):
    a.emit(f'v_mul_f32 v{vs}, 0x3a800000, v{vs}')
    a.emit(f'v_mul_f32 v{vs+1}, 0x3a800000, v{vs+1}')
    a.emit(f'v_fma_f32 v{vs+1}, -v{vs}, v{vs}, v{vs+1}')
    a.emit(f'v_max_f32 v{vs+1}, 0, v{vs+1}')
    a.emit(f'v_add_f32 v{vs+1}, 0x3727c5ac, v{vs+1}')
    a.emit(f'v_rsq_f32 v{vs+1}, v{vs+1}')
    a.emit('s_nop 0')

def stats_reduce_store(a, vd, LST):
    for j in range(1, 8):
        a.emit(f'v_add_f32 v{vd}, v{vd}, v{vd+2*j}')
        a.emit(f'v_add_f32 v{vd+1}, v{vd+1}, v{vd+2*j+1}')
        a.emit(f'v_add_f32 v{vd+16}, v{vd+16}, v{vd+16+2*j}')
        a.emit(f'v_add_f32 v{vd+17}, v{vd+17}, v{vd+17+2*j}')
    a.emit(f'v_add_f32 v{vd}, v{vd}, v{vd+16}')
    a.emit(f'v_add_f32 v{vd+1}, v{vd+1}, v{vd+17}')
    stats_finish(a, vd)
    a.emit(f's_and_b32 s3, s{S_WV}, 3')
    a.emit('s_lshl_b32 s5, s3, 6')
    a.emit('s_add_u32 s5, s5, 16')
    a.emit('v_add_u32 v2, s5, v1')
    a.emit('v_and_b32 v3, 15, v1')
    a.emit('s_cmp_ge_u32 s3, 2')
    a.emit('s_cselect_b64 vcc, -1, 0')
    a.emit('v_cndmask_b32 v2, v2, v3, vcc')
    a.emit('v_lshlrev_b32 v2, 2, v2')
    a.emit(f'v_add_u32 v2, {LST}, v2')
    a.emit(f'ds_write2_b32 v2, v{vd}, v{vd+1} offset0:0 offset1:160')

VST, VSH, VCS, VBI = 18, 19, 22, 23
def stats4_setup(a, halo):
    a.emit(f's_and_b32 s3, s{S_WV}, 3')
    a.emit(f's_lshl2_add_u32 s4, s{S_MT}, s3')
    a.emit('s_lshl_b32 s4, s4, 8')
    a.emit('v_lshrrev_b32 v2, 4, v1')
    a.emit('v_and_b32 v3, 15, v1')
    a.emit('v_lshl_add_u32 v3, v3, 4, s4')
    a.emit(f'v_lshl_add_u32 v{VST}, v2, 14, v3')
    if halo:
        a.emit(f's_lshl_b32 s4, s{S_MT}, 5')
        a.emit('s_add_u32 s4, s4, s3')
        a.emit('s_sub_u32 s4, s4, 4')
        a.emit('s_max_i32 s4, s4, 0')
        a.emit('s_lshl_b32 s4, s4, 5')
        a.emit('v_lshrrev_b32 v2, 2, v1')
        a.emit('v_and_b32 v3, 3, v1')
        a.emit('v_lshl_add_u32 v3, v3, 3, s4')
        a.emit(f'v_lshl_add_u32 v{VSH}, v2, 14, v3')

def quad_loads(vd, vo, sd):
    o = []
    for j in range(4):
        if j: o.append(f's_mov_b32 s3, {j << 16}')
        o.append(f'buffer_load_dwordx4 v[{vd+4*j}:{vd+4*j+3}], v{vo}, s[{sd}:{sd+3}], {"s3" if j else 0} offen')
    return o

def stats4_loads(vd, halo):
    return quad_loads(vd, VST, ST) + ([f'buffer_load_dwordx2 v[{vd+16}:{vd+17}], v{VSH}, s[{ST}:{ST+3}], 0 offen'] if halo else [])

def pkadd(a, d, s):
    if ENV('UPK', '1') == '1':
        for i in range(2): a.emit(f'v_add_f32 v{d+i}, v{d+i}, v{s+i}')
    else: a.emit(f'v_pk_add_f32 v[{d}:{d+1}], v[{d}:{d+1}], v[{s}:{s+1}]')

def quad_sum(a, vd):
    pk = lambda d, s: pkadd(a, d, s)
    pk(vd, vd + 4); pk(vd + 2, vd + 6); pk(vd + 8, vd + 12); pk(vd + 10, vd + 14); pk(vd, vd + 8); pk(vd + 2, vd + 10)
    a.emit('s_nop 1')
    a.emit(f'v_permlane32_swap_b32 v{vd}, v{vd+2}')
    a.emit(f'v_permlane32_swap_b32 v{vd+1}, v{vd+3}')
    pk(vd, vd + 2)

def nan_chk(a, lab, halo):
    def chk():
        a.emit('v_cmp_u_f32 vcc, v32, v33')
        if halo:
            a.emit('v_cmp_u_f32 s[4:5], v48, v49')
            a.emit('s_or_b64 s[4:5], vcc, s[4:5]')
            a.emit(f's_cbranch_scc0 {lab}ok')
        else: a.emit(f's_cbranch_vccz {lab}ok')
        a.emit(f's_sub_u32 s{S_CNT}, s{S_CNT}, 1')
        a.emit(f's_cbranch_scc1 {lab}ok')
        for x in stats4_loads(32, halo): a.emit(x + (' sc1' if x.startswith('buf') else ''))
        a.emit('s_waitcnt vmcnt(0)')
        a.emit(f's_branch {lab}chk')
        a.label(f'{lab}ok')
    a.emit(f's_mov_b32 s{S_CNT}, 0x4000')
    a.label(f'{lab}chk')
    return chk

def split3(a, x, d, t, row):
    a.emit(f'v_cvt_pk_bf16_f32 v{d}, v{x}, v{x}')
    a.emit(f'v_and_b32 v{t}, 0xffff0000, v{d}')
    a.emit(f'v_sub_f32 v{t}, v{x}, v{t}')
    a.emit(f'v_cvt_pk_bf16_f32 v{d+1}, v{t if row else x}, v{t}')
    a.emit(f'v_and_b32 v{d+2}, 0xffff0000, v{d+1}')
    a.emit(f'v_sub_f32 v{t}, v{t}, v{d+2}')
    a.emit(f'v_cvt_pk_bf16_f32 v{d+2}, v{x if row else t}, v{t if row else x}')
    if not row: a.emit(f'v_mov_b32 v{d}, v{d+1}')

def stats4_store(a, vd, LST, halo, chk=None, fin=None):
    quad_sum(a, vd)
    if chk: chk()
    def allsum(r, op):
        a.emit(f'v_mov_b32 v{r+2}, v{r}')
        a.emit(f'v_mov_b32 v{r+3}, v{r+1}')
        a.emit('s_nop 0')
        a.emit(f'v_permlane{op}_swap_b32 v{r}, v{r+2}')
        a.emit(f'v_permlane{op}_swap_b32 v{r+1}, v{r+3}')
        pkadd(a, r, r + 2)
    allsum(vd, 16)
    if fin: return fin()
    stats_finish(a, vd)
    a.emit(f's_and_b32 s3, s{S_WV}, 3')
    a.emit('s_lshl_b32 s5, s3, 7')
    a.emit(f's_add_u32 s5, s5, {LST + 64}')
    a.emit('v_and_b32 v3, 15, v1')
    a.emit('v_lshrrev_b32 v2, 5, v1')
    a.emit('v_lshl_add_u32 v2, v3, 1, v2')
    a.emit('v_lshl_add_u32 v2, v2, 2, s5')
    a.emit(f'ds_write2_b32 v2, v{vd}, v{vd+1} offset0:0 offset1:160')
    if halo:
        h = vd + 16
        allsum(h, 32); allsum(h, 16)
        for r in (8, 4):
            a.emit('s_nop 1')
            for i in range(2): a.emit(f'v_add_f32_dpp v{h+i}, v{h+i}, v{h+i} row_ror:{r} row_mask:0xf bank_mask:0xf')
        stats_finish(a, h)
        a.emit('s_lshl_b32 s5, s3, 4')
        a.emit(f's_add_u32 s5, s5, {LST}')
        a.emit('v_and_b32 v3, 3, v1')
        a.emit('v_lshl_add_u32 v2, v3, 2, s5')
        a.emit(f'ds_write2_b32 v2, v{h}, v{h+1} offset0:0 offset1:160')

def gen_w1(a, tsidx, side, cs=(16, 16384, 0)):
    kind = 'w1'
    K = 1024; lda2 = 2048; ldw2 = 7168; ldo2 = 7168
    ot = kind in OT
    S = 3; LM = int(ENV('LM_W1', '2' if ot else '3'))
    STAGE = 16384 + 4 * 8192
    o2 = 'w2' in OT
    assert LM == 2 or not o2
    LST = OHB - 4096 if o2 else S * STAGE
    LCS = LST + 1280
    if MF: LST = OHB - 8192; LCS = LST + 4096
    c0 = -2.0 * 0.7978845608028654 * 1.4426950408889634
    c1 = c0 * 0.044715
    N = 16
    body = f'L_{kind}_body'; end = f'L_{kind}_end'
    VB, VA, VO = 4, 20, 12
    F = [32, 80]; ACC = 128
    acc = lambda jn, jm: ACC + (jn * 4 + jm) * 4
    fx = lambda s, jm: F[s] + jm * 4
    fw = lambda s, jn: F[s] + 16 + jn * 4
    a.label(f'L_{kind}_c0')
    if not MEGA: stub(a, f'{kind}l0_kernel', body, 0, tsidx, True)
    a.label(body)
    tile_map(a, LM, end)
    a.emit(f's_cmp_ge_u32 s{S_WV}, 4')
    a.emit(f's_cbranch_scc1 L_{kind}_loader')
    if ot and OBAR: a.emit('s_barrier')
    if NV:
        from gemm64y import w2_pre, w2_early
        w2_pre(a)
        tile_map(a, LM, None)
    a.emit(f's_and_b32 s{S_WM}, s{S_WV}, 1')
    a.emit(f's_lshr_b32 s{S_WN}, s{S_WV}, 1')
    a.emit('v_and_b32 v3, 15, v1')
    a.emit('v_lshrrev_b32 v2, 4, v1')
    a.emit(f's_lshl_b32 s8, s{S_WM}, 13')
    a.emit(f'v_lshl_add_u32 v{VB}, v1, 4, s8')
    nr = kind in NS and NSR
    wbase(a, 13, 17, nr=nr)
    a.emit(f's_lshl_b32 s9, s{S_WN}, 6')
    a.emit('v_xor_b32 v13, s9, v13')
    a.emit(f'v_add_u32 v{VB+1}, 16384, v13')
    a.emit(f'v_xor_b32 v{VB+2}, 32, v{VB+1}')
    a.emit('v_and_b32 v16, 1, v2')
    a.emit('v_lshrrev_b32 v17, 1, v2')
    if nr: a.emit('v_lshrrev_b32 v13, 2, v1')
    else:
        a.emit('v_bfe_u32 v13, v1, 2, 2')
        a.emit('v_lshl_add_u32 v13, v16, 3, v13')
        a.emit('v_lshl_add_u32 v13, v17, 5, v13')
    n2 = 'w2' in NS
    if n2:
        a.emit('v_and_b32 v14, 1, v1')
        a.emit('v_lshl_add_u32 v13, v13, 1, v14')
        a.emit(f'v_xor_b32 v14, s{S_WN}, v16')
        a.emit('v_lshl_add_u32 v13, v13, 1, v14')
        a.emit('v_bfe_u32 v14, v1, 1, 1')
        a.emit('v_lshl_add_u32 v13, v13, 1, v14')
    else:
        a.emit(f'v_xor_b32 v14, s{S_WN}, v16')
        a.emit('v_lshl_add_u32 v13, v13, 1, v14')
        a.emit('v_and_b32 v14, 3, v1')
        a.emit('v_lshl_add_u32 v13, v13, 2, v14')
    a.emit('v_lshlrev_b32 v13, 3, v13')
    a.emit(f'v_add_u32 v{VB+3}, {16384 + 3 * 8192}, v13')
    i0 = len(a.lines)
    a.emit(f's_lshl_b32 s8, s{S_MT}, 7')
    a.emit(f's_lshl_b32 s9, s{S_WM}, 6')
    a.emit('s_add_u32 s8, s8, s9')
    a.emit(f's_mul_i32 s8, s8, {ldo2}')
    a.emit('v_lshlrev_b32 v14, 8, v17')
    a.emit('v_lshl_add_u32 v14, v3, 4, v14')
    if o2:
        a.emit(f's_lshl3_add_u32 s9, s{S_WM}, s{S_WN}')
        a.emit('s_lshl_b32 s9, s9, 10')
        a.emit(f's_add_u32 s9, s9, {OHB}')
        if n2: a.emit('v_lshl_add_u32 v18, v1, 4, s9')
        else:
            a.emit('v_lshl_add_u32 v18, v16, 9, v14')
            a.emit('v_add_u32 v18, s9, v18')
        srd(a, SB, 'b2', 0, 2048)
        a.emit(f's_lshr_b32 s9, s{S_NT}, 3')
        a.emit(f's_and_b32 s10, s{S_NT}, 7')
        a.emit('s_lshl1_add_u32 s9, s10, s9')
        a.emit('s_lshl_b32 s9, s9, 7')
        a.emit('v_lshl_add_u32 v19, v2, 3, s9')
    a.emit('v_add_u32 v14, s8, v14')
    a.emit(f's_lshl_b32 s10, s{S_NT}, 11')
    a.emit(f's_lshl_b32 s9, s{S_WN}, 10')
    a.emit('s_add_u32 s9, s9, s10')
    a.emit(f'v_lshl_add_u32 v{VO}, v1, 4, s8' if n2 else f'v_lshl_add_u32 v{VO}, v16, 9, v14')
    a.emit(f'v_add_u32 v{VO}, s9, v{VO}')
    if n2 and not MF: a.emit('v_lshl_add_u32 v17, v16, 2, v17')
    a.emit(f'v_mul_u32_u24 v16, {16*ldo2}, v16')
    a.emit('s_lshr_b32 s9, s9, 1')
    a.emit(f'v_add3_u32 v{VO+1}, v16, v14, s9')
    if MF:
        assert n2 and OH
        a.emit(f's_lshl_b32 s9, s{S_WM}, 10')
        a.emit(f's_add_u32 s9, s9, {LST}')
        a.emit('v_lshl_add_u32 v14, v3, 4, s9')
        a.emit(f's_lshl_b32 s9, s{S_WN}, 9')
        a.emit(f's_add_u32 s9, s9, {LCS}')
        a.emit('v_lshl_add_u32 v15, v3, 4, s9')
        a.emit('v_bfe_u32 v16, v1, 2, 1')
        a.emit('v_bfe_u32 v17, v1, 3, 1')
        a.emit('v_lshl_add_u32 v17, v16, 2, v17')
        a.emit('v_and_b32 v16, 3, v1')
        a.emit('v_lshl_add_u32 v17, v17, 2, v16')
        a.emit(f's_lshl_b32 s9, s{S_WN}, 7')
        a.emit(f's_add_u32 s9, s9, {LCS}')
        a.emit('v_lshl_add_u32 v16, v17, 4, s9')
        if MF == 2:
            a.emit('v_bfe_u32 v17, v1, 4, 1')
            for r in (14, 15, 16): a.emit(f'v_lshl_add_u32 v{r}, v17, 3, v{r}')
        a.emit(f'v_mov_b32 v17, {LST + 2048 + 12}')
    else:
        a.emit(f's_lshl_b32 s9, s{S_WM}, 8')
        a.emit(f's_add_u32 s9, s9, {LST + 64}')
        a.emit('v_lshl_add_u32 v14, v3, 2, s9')
        a.emit(f's_lshl_b32 s9, s{S_WN}, 7')
        a.emit(f's_add_u32 s9, s9, {LCS}')
        a.emit('v_lshl_add_u32 v15, v2, 4, s9')
        a.emit(f's_lshl_b32 s9, s{S_WN}, {5 if n2 else 6}')
        a.emit(f's_add_u32 s9, s9, {LCS}')
        a.emit(f'v_lshl_add_u32 v16, v{17 if n2 else 2}, 4, s9')
        if OH: a.emit(f'v_mov_b32 v17, {LST}')
    for i in range(0 if ot else 112): a.emit(f'v_mov_b32 v{ACC+i}, 0')
    if not MEGA: a.emit('s_waitcnt lgkmcnt(0)')
    srd(a, SO, ENV('HB', 'ws'), WS_H, 2048 * 7168)
    HC = ENV('HC', '')
    if HC:
        G_ = int(ENV('HCG', '6'))
        a.emit('v_lshrrev_b32 v26, 4, v1')
        a.emit(f'v_mul_u32_u24 v26, {16*ldo2}, v26')
        a.emit('v_lshl_add_u32 v26, v3, 6, v26')
        if G_ == 7: a.emit('v_and_b32 v26, 0xffffff80, v26')
        a.emit(f's_lshl1_add_u32 s3, s{S_NT}, s{S_WN}')
        a.emit('s_lshl_b32 s4, s3, 9')
        a.emit('s_add_u32 s4, s4, s8')
        a.emit('s_add_u32 s4, s4, 32768')
        a.emit('s_lshl_b32 s3, s3, 10')
        a.emit('s_add_u32 s3, s3, s10')
        a.emit('s_add_u32 s3, s3, s8')
        a.emit(f's_add_u32 s3, s3, {48 * 1024}')
        a.emit('v_and_b32 v27, 0xfffffdff, v26')
        op = 'load' if 'l' in HC else 'store'; fl = ' sc1' if '1' in HC else ''
        a.emit(f'buffer_{op}_dword v28, v26, s[{SO}:{SO+3}], s3 offen{fl}')
        a.emit(f'buffer_{op}_dword v29, v26, s[{SO}:{SO+3}], s3 offen offset:2048{fl}')
        a.emit(f'buffer_{op}_dword v30, v27, s[{SO}:{SO+3}], s4 offen{fl}')
    if ENV('HS'):
        a.emit(f"s_and_b32 s3, s2, {ENV('HS')}")
        a.emit(f's_cselect_b32 s{SO+2}, 0, s{SO+2}')
    if not ot: code_touch(a, 'L_w2_c0', 'L_w2_c1', 192 if SPX else 128)
    PW = LF2 == 2
    if PW: a.lines.append('@W2A')
    mid = []
    if ot: mid = a.lines[i0:]; del a.lines[i0:]
    def reads(s, ks):
        o = []
        if 'noread' in DBG: return o
        for jm in range(4):
            o.append(f'ds_read_b128 v[{fx(s,jm)}:{fx(s,jm)+3}], v{VA} offset:{jm*2048+ks*1024}')
        for jn in range(7):
            for h in range(2):
                r = fw(s, jn) + 2 * h
                o.append(f'ds_read_b64_tr_b16 v[{r}:{r+1}], v{VA+1+(jn&1 if jn < 6 else 2)} offset:{((jn>>1)*8192 if jn < 6 else 0)+h*(2048 if nr else 512 if jn < 6 else 256)+ks*4096}')
        return o
    def mf(s):
        o = []
        if 'nomfma' in DBG: return ['s_nop 0']
        for jn, jm in mf_order(7, 4):
            if True:
                c = acc(jn, jm)
                o.append(f'v_mfma_f32_16x16x32_bf16 v[{c}:{c+3}], v[{fw(s,jn)}:{fw(s,jn)+3}], v[{fx(s,jm)}:{fx(s,jm)+3}], v[{c}:{c+3}]')
        return o
    zc = lambda x: x[:x.rindex(',')] + ', 0'
    CS = 32; BI = 60; STT = 88; CK = 96; T = 100; D = 108
    KK = 76; FS = 4
    PT = int(ENV('PTW', '1')) if MF == 2 else 0
    if PT: BI = 46; KK = 56; FS = 2
    FW = 3 if MF == 1 else 1
    def fold(jn, jm): return f'v_mfma_f32_16x16x{16 * (FW + 1 >> 1)}_bf16 v[{acc(jn,jm)}:{acc(jn,jm)+3}], v[{CS+FS*jn}:{CS+FS*jn+FW}], v[{BI+FS*jm}:{BI+FS*jm+FW}], v[{acc(jn,jm)}:{acc(jn,jm)+3}]'
    bia = [f'buffer_load_dwordx2 v[{OBIA[jn]}:{OBIA[jn]+1}], v19, s[{SB}:{SB+3}], 0 offen offset:{jn*32}' for jn in range(4 if o2 else 0)]
    mode = [f's_cmp_lg_u32 s{S_T}, 0', f's_cselect_b32 s{S_T}, {HALT}, 0'] + [x for r in ((SO, SX, SC) if PW else (SO,)) for x in (f's_add_u32 s{r}, s{r}, s{S_T}', f's_addc_u32 s{r+1}, s{r+1}, 0')]
    tail = None
    SG = ENV('SG', '1' * 14) if PT == 1 and OH == 1 else ''
    if MF:
        TK = 76 if PT else T
        rr = lambda jm, k: f'ds_read_b128 v[{KK+4*jm}:{KK+4*jm+3}], v{14 if MF == 1 else TK} offset:{2048+256*jm}' if k else f'ds_read_b{32*FW+32} v[{BI+FS*jm}:{BI+FS*jm+FW}], v14 offset:{256*jm}'
        rc = lambda jn: f'ds_read_b{32*FW+32} v[{CS+FS*jn}:{CS+FS*jn+FW}], v{15 if jn < 6 else 16} offset:{(jn>>1)*1024+(jn&1)*256}'
        assert ENV('ORD', '0312')[0] == '0'
        hd = [rr(0, 0), rc(0), rc(1), rr(0, 1), 'ds_read_b32 v17, v17']
        tl = [rr(jm, k) for jm in (1, 2, 3) for k in (0, 1)] + [rc(jn) for jn in (6, 2, 3, 4, 5)]
        ak = [f'v_and_b32 v{TK}, -9, v14'] * (MF == 2)
    if PT:
        rd = hd + tl; fl = {i: rd[2*i:2*i+2] for i in range(8)}
        for i in range(4): fl[9 + i] = bia[i:i+1]
        fl[14] = ['s_waitcnt lgkmcnt(0)', fold(0, 0), f'v_readfirstlane_b32 s{S_T}, v17']
        for i in range(4): fl[16 + i] = mode[2*i:2*i+2]
        if SG:
            sg = [f's_mov_b32 s3, {16*ldo2}', f's_mov_b32 s8, {32*ldo2}', f's_mov_b32 s9, {48*ldo2}', 's_add_u32 s10, s10, 49152', f'v_add_u32 v17, s10, v{VO}', f'v_add_u32 v{VO+1}, 0x8000, v{VO+1}']
            for i in range(3): fl[20 + i] = sg[2*i:2*i+2]
        if PT == 2:
            fl = {i: rd[i:i+1] for i in range(16)}
            for i in range(4): fl[16 + i] = bia[i:i+1]
            fl[9] += ['s_waitcnt lgkmcnt(5)']; fl[10] += [f'v_readfirstlane_b32 s{S_T}, v17']
            fl[20] = ['s_waitcnt lgkmcnt(0)', fold(0, 0)]
            for i in range(4): fl[21 + i] = mode[2*i:2*i+2]
        tail = (ak, weave(mf(1), fl))
    ch = None
    if kind in CHN:
        sn = lambda p, q: [((p, q)[(i + 1 >> 1) & 1], i >> 1) for i in range(8)]
        od = sn(0, 1) + [(jn, jm if jn & 1 else 3 - jm) for jn in (2, 3, 4) for jm in range(4)] + sn(5, 6)
        ms = [f'v_mfma_f32_16x16x32_bf16 v[{acc(jn,jm)}:{acc(jn,jm)+3}], v[{fw(s,jn)}:{fw(s,jn)+3}], v[{fx(s,jm)}:{fx(s,jm)+3}], v[{acc(jn,jm)}:{acc(jn,jm)+3}]' for i, (jn, jm) in enumerate(od) for s in (i & CKN, 1 - (i & CKN))]
        ra = sorted(reads(0, 0) + reads(1, 1), key=lambda x: uses(ms, x)[0])
        CB, CL = [int(x) for x in ENV('CHW', '27,38').split(',')]
        r1 = [x for x in ra if uses(ms, x)[-1] >= (CL if '_tr_' in x else 52)]
        r1[:2] = r1[1::-1]
        ch = dict(ms=ms, r1=r1, r0=[x for x in ra if x not in r1], bar=CB)
    big_loop(a, kind, N, S, STAGE, 4, VB, VA, reads, mf, ot=(lambda s: mf(1) if s else [zc(x) for x in mf(0)]) if ot else None, mid=mid, tail=tail, ch=ch)
    if ENV('XSE'): a.emit(f"s_sleep {ENV('XSE')}")
    if MF and not PT:
        for x in hd[:2] + ak + hd[2:] + tl: a.emit(x)
    for jm in range(0 if MF else 4):
        a.emit(f'ds_read2_b32 v[{STT+2*jm}:{STT+2*jm+1}], v14 offset0:{16*jm} offset1:{160+16*jm}')
    for jn in range(0 if 'nofold' in DBG or MF else 7):
        a.emit(f'ds_read_b128 v[{CS+4*jn}:{CS+4*jn+3}], v{15 if jn < 6 else 16} offset:{(jn>>1)*256+(jn&1)*64}')
        a.emit(f'ds_read_b128 v[{BI+4*jn}:{BI+4*jn+3}], v{15 if jn < 6 else 16} offset:{1024+(jn>>1)*256+(jn&1)*64}')
    if HC: a.emit('s_waitcnt vmcnt(0)')
    if not PT:
        if OH and not MF: a.emit('ds_read_b32 v17, v17')
        for x in bia: a.emit(x)
        if MF:
            a.emit(f's_waitcnt lgkmcnt({len(tl) + 3})')
            a.emit(fold(0, 0))
            a.emit(f's_waitcnt lgkmcnt({len(tl)})')
        else:
            a.emit(f'v_mov_b32 v{CK}, {f2u(c0):#x}')
            a.emit(f'v_mov_b32 v{CK+1}, {f2u(c1):#x}')
            a.emit(f'v_mov_b32 v{CK+2}, 1.0')
            a.emit('s_waitcnt lgkmcnt(0)')
        if OH: a.emit(f'v_readfirstlane_b32 s{S_T}, v17')
        for jm in range(0 if MF else 4):
            a.emit(f'v_mul_f32 v{STT+2*jm}, v{STT+2*jm}, v{STT+2*jm+1}')
        for x in mode if OH else []: a.emit(x)
    def tile_math(jn, jm, d):
        c = acc(jn, jm)
        seqs = []
        ST2 = f'v[{STT+2*jm}:{STT+2*jm+1}]'
        for q in range(2):
            x = c + 2 * q; t = T + 2 * q + 4 * (jn & 1)
            X = f'v[{x}:{x+1}]'; TT = f'v[{t}:{t+1}]'
            seqs.append([
              f'v_pk_fma_f32 {TT}, v[{CS+4*jn+2*q}:{CS+4*jn+2*q+1}], {ST2}, v[{BI+4*jn+2*q}:{BI+4*jn+2*q+1}] op_sel:[0,0,0] op_sel_hi:[1,0,1] neg_lo:[0,1,0] neg_hi:[0,1,0]',
              f'v_pk_fma_f32 {X}, {X}, {ST2}, {TT} op_sel:[0,1,0] op_sel_hi:[1,1,1]',
              f'v_pk_mul_f32 {TT}, {X}, {X}',
              f'v_pk_fma_f32 {TT}, {TT}, v[{CK}:{CK+1}], v[{CK}:{CK+1}] op_sel:[0,1,0] op_sel_hi:[1,1,0]',
              f'v_pk_mul_f32 {TT}, {TT}, {X}',
              f'v_exp_f32 v{t}, v{t}\n  v_exp_f32 v{t+1}, v{t+1}',
              f'v_pk_add_f32 {TT}, {TT}, v[{CK+2}:{CK+3}] op_sel_hi:[1,0]',
              f'v_rcp_f32 v{t}, v{t}\n  v_rcp_f32 v{t+1}, v{t+1}',
              f'v_pk_mul_f32 {X}, {X}, {TT}',
              f'v_cvt_pk_bf16_f32 v{d+q}, v{x}, v{x+1}'])
        if MF:
            k0 = f'v[{KK+4*jm}:{KK+4*jm+1}]'; k2 = f'v[{KK+4*jm+2}:{KK+4*jm+3}]'
            for q in seqs:
                TT = q[0].split()[1][:-1]
                q[3] = q[3].replace(f'v[{CK}:{CK+1}]', k0)
                q[6] = f'v_pk_fma_f32 {TT}, {TT}, {k2}, {k2} op_sel_hi:[1,0,0]'
                del q[:2]
            seqs[0][3] = '@MF\n  ' + seqs[0][3]
            tiles.append((jn, jm))
        if 'nofold' in DBG: seqs = [q[2:] for q in seqs]
        if 'nofold1' in DBG: seqs = [q[1:] for q in seqs]
        if 'nogelu' in DBG: seqs = [q[:2] + q[-1:] for q in seqs]
        if 'halfgelu' in DBG: seqs = [q[:2] + q[5:6] + q[-2:] for q in seqs]
        for ia, ib in zip(*seqs):
            a.emit(ia); a.emit(ib)
    cnt = [0]; tiles = []; e0 = len(a.lines); pend = []; grp = list(SG)
    def pair(t0, t1, vo, soff, big=False):
        d = D + 4 * (cnt[0] % 4); cnt[0] += 1
        tile_math(*t0, d); tile_math(*t1, d + 2)
        i0 = len(a.lines)
        a.emit(f's_add_u32 s3, s10, {soff}' if big else f's_mov_b32 s3, {soff}')
        if not n2 or t0[0] == 6:
            a.emit('s_nop 0')
            a.emit(f'v_permlane16_swap_b32 v{d}, v{d+2}')
            a.emit(f'v_permlane16_swap_b32 v{d+1}, v{d+3}')
        a.emit(f'buffer_store_dwordx4 v[{d}:{d+3}], v{vo}, s[{SO}:{SO+3}], s3 offen' + (stf(kind) if str(t0[0] // 2) in ENV('WTP', '013' if OH else '0123') else ' ' + ENV('WTQ', '')))
        if o2 and t0[0] < 6: a.emit(f'ds_write_b128 v18, v[{d}:{d+3}] offset:{(t0[0] // 2 + 2) % 3 * 16384 + t0[1] * 2048}')
        if SG:
            o = [x.replace('s3 offen', ('0', 's3', 's8', 's9')[t0[1]] + ' offen' + ' offset:2048' * (t0[0] == 4)).replace(f', v{VO},', ', v17,' if big else f', v{VO},') for x in a.lines[i0 + 1:] if 's_nop' not in x]
            del a.lines[i0:]
            pend.append(o)
            if len(pend) == int(grp[0]):
                if 'swap' in pend[0][0] and len(pend) == 1: a.emit('s_nop 1')
                a.lines += [x for y in pend for x in y if 'swap' in x] + [x for y in pend for x in y if 'swap' not in x]
                del pend[:], grp[0]
    pr = lambda p, jm: pair((2 * p, jm), (2 * p + 1, jm), VO, jm * 16 * ldo2 + ((16 + 32 * p) if OH == 2 else (46 + 2 * p)) * 1024 * (p > 0), p > 0 and OH != 2)
    od = lambda jm: pair((6, jm), (6, jm + 1), VO + 1, jm * 16 * ldo2 + 32768)
    order = [lambda jm=jm: pr(0, jm) for jm in range(4)] + [lambda: od(0), lambda: od(2)] + [lambda jm=jm, p=p: pr(p, jm) for jm in range(4) for p in (1, 2)]
    if OH:
        order = []
        for c in ENV('ORD', '0312'): order += [lambda: od(0), lambda: od(2)] if c == '3' else [lambda jm=jm, p=int(c): pr(p, jm) for jm in range(4)]
    EW = int(ENV('EW', '10'))
    if EF: order = [lambda: od(0), lambda: od(2)] + [lambda jm=jm, p=p: pr(p, jm) for p in (1, 2, 0) for jm in range(4)]
    for i, f in enumerate(order):
        f()
        if NV and i + 1 == EX: w2_early(a)
        if (EARLY or EF) and i + 1 == EW:
            a.emit(f's_waitcnt vmcnt({EW - (6 if EF else EARLY // 4)})')
            a.emit('s_barrier')
    for i, j in enumerate(j for j in range(e0, len(a.lines)) if '@MF' in a.lines[j]):
        a.lines[j] = a.lines[j].replace('@MF\n  ', ('s_waitcnt lgkmcnt(0)\n  ' if i == 1 and not PT else '') + (fold(*tiles[i + 1]) + '\n  ' if i + 1 < len(tiles) else ''))
    if ENV('ES'): stamp(a, 1)
    compute_end(a, kind)
    a.label(f'L_{kind}_loader')
    L = Loader(a, kind, K, lda2, ldw2, [0, f's{S_HD}', 's_add_u32 s4, s4, 128'], 128, S, STAGE, rot=int(ENV('ROT_W1', '0')), xblk=True, half=2048)
    L.ot = int(ot); L.loc = bool(LF1)
    L.setup()
    a.emit('s_waitcnt lgkmcnt(0)')
    if WD: srd(a, SW, 'w1', 0, 1024 * 7168)
    iw0 = len(a.lines)
    if WD == 'b':
        a.emit('s_waitcnt vmcnt(7)')
        a.emit('s_barrier')
    if ot and ENV('CT2', 'l') == 'l': code_touch(a, 'L_w2_c0', 'L_w2_c1', 192, loader=True)
    srd(a, SX, 'ws', WS_X1, 4 * MB)
    if not WD: srd(a, SW, 'w1', 0, 1024 * 7168)
    srd(a, ST, 'ws', WS_ST, 16 * 16384); srd(a, SC, 'ws0', WS_CS, 16 * 16384); srd(a, SB, 'b1', 0, 7168)
    def tail():
        stats_loads(a, 32, False)
        a.emit(f's_lshl_b32 s4, s{S_NT}, 7')
        a.emit(f's_lshl_b32 s5, s{S_WV}, 6')
        a.emit('s_add_u32 s4, s4, s5')
        a.emit(f's_add_u32 s4, s4, {1472 - 256}')
        a.emit(f's_lshl_b32 s5, s{S_NT}, 6')
        a.emit(f's_cmp_eq_u32 s{S_WV}, 4')
        a.emit('s_cselect_b32 s4, s5, s4')
        a.emit('s_lshr_b32 s5, s5, 1')
        a.emit('s_add_u32 s5, s5, 1024')
        a.emit(f's_cmp_eq_u32 s{S_WV}, 7')
        a.emit('s_cselect_b32 s4, s5, s4')
        a.emit('v_add_u32 v3, s4, v1')
        a.emit('v_lshlrev_b32 v2, 2, v3')
        a.emit('v_lshlrev_b32 v3, 1, v3')
        a.emit(f's_mov_b32 s3, {cs[2]}')
        for j in range(16):
            if j < cs[0]:
                a.emit(f'buffer_load_dword v{64+j}, v2, s[{SC}:{SC+3}], s3 offen')
                if j < cs[0] - 1: a.emit(f's_add_u32 s3, s3, {cs[1]}')
            else:
                a.emit(f'v_mov_b32 v{64+j}, 0')
        a.emit(f'buffer_load_ushort v80, v3, s[{SB}:{SB+3}], 0 offen')
        side(a, 'issue')
    ns = side(Asm(), 'issue')
    extra = None
    if VW:
        assert int(ENV('LM_W2', '2')) == 2
        srd(a, SR, 'w2', 0, 3584 * 2048)
        a.emit('s_and_b32 s5, s2, 3')
        a.emit('s_lshl_b32 s5, s5, 2')
        a.emit(f's_and_b32 s6, s{S_CU}, 3')
        a.emit('s_add_u32 s5, s5, s6')
        a.emit('s_and_b32 s6, s2, 4')
        a.emit('s_lshl_b32 s6, s6, 1')
        a.emit(f's_lshr_b32 s7, s{S_CU}, 2')
        a.emit('s_add_u32 s6, s6, s7')
        rot_table(a, S_TB, 5, 6, 'w2')
        a.emit(f's_add_u32 s5, s5, s{S_WV}')
        a.emit('s_and_b32 s5, s5, 3')
        wvoff(a, 16, 5, 6, 2048)
        sched = [int(c) for c in ENV('PSCH', '0111111111111122')]
        assert sum(sched) >= NV1
        def extra(i):
            o = []
            for p in range(sum(sched[:i]), min(NV1, sum(sched[:i + 1]))): o += park(56, 2 * p, 128 + 8 * p, 16, SR)
            return o
        ns += sum(x.startswith('buffer_load') for i in (13, 14, 15) for x in extra(i))
    if XD:
        extra = tail_parks('w2', SR, lambda b: srd(b, SR, 'w2', 0, 3584 * 2048))
        ns += 2 * sum(TSCH['w2'])
    if XD and ENV('PFL', '2') == '3':
        b = Asm(); side(b, 'late'); pl = [l.strip() for l in b.lines]
        pl = [l.replace('v2,', 'v18,').replace(', v2', ', v18').replace('s3', 's93') for l in pl]
        i0 = min(i for i, l in enumerate(pl) if l.startswith('buffer_load'))
        for l in pl[:i0]: a.emit(l)
        st = [int(x) for x in ENV('PFS', '6,10').split(',')]
        extra = lambda i: pl[i0 + 2 * st.index(i):i0 + 2 * st.index(i) + 2] if i in st else []
    def final():
        a.emit(f's_waitcnt vmcnt({ns})')
        if ENV('PFL', '2') == '1': side(a, 'late')
        stats_reduce_store(a, 32, LST)
        for j in range(8): a.emit(f'v_add_f32 v{64+j}, v{64+j}, v{72+j}')
        for j in range(4): a.emit(f'v_add_f32 v{64+j}, v{64+j}, v{68+j}')
        a.emit('v_add_f32 v64, v64, v65')
        a.emit('v_add_f32 v66, v66, v67')
        a.emit('v_add_f32 v64, v64, v66')
        a.emit('v_lshlrev_b32 v80, 16, v80')
        a.emit('v_lshlrev_b32 v2, 2, v0')
        a.emit(f'v_add_u32 v2, {LCS - 1024}, v2')
        a.emit('ds_write_b32 v2, v64')
        a.emit('ds_write_b32 v2, v80 offset:1024')
        a.emit('s_waitcnt lgkmcnt(0)')
    import sides
    if T4:
        stats4_setup(a, False)
        a.emit(f's_lshl_b32 s4, s{S_NT}, 7')
        a.emit(f's_lshl_b32 s5, s{S_WV}, 6')
        a.emit('s_add_u32 s4, s4, s5')
        a.emit(f's_add_u32 s4, s4, {1472 - 256}')
        a.emit(f's_lshl_b32 s5, s{S_NT}, 6')
        a.emit(f's_cmp_eq_u32 s{S_WV}, 4')
        a.emit('s_cselect_b32 s4, s5, s4')
        a.emit('s_lshr_b32 s5, s5, 1')
        a.emit('s_add_u32 s5, s5, 1024')
        a.emit(f's_cmp_eq_u32 s{S_WV}, 7')
        a.emit('s_cselect_b32 s4, s5, s4')
        a.emit('v_and_b32 v3, 15, v1')
        a.emit('v_lshl_add_u32 v3, v3, 2, s4')
        a.emit('v_lshrrev_b32 v2, 4, v1')
        a.emit(f'v_add_lshl_u32 v{VBI}, v3, v2, 1')
        a.emit('v_lshlrev_b32 v3, 2, v3')
        a.emit(f'v_lshl_add_u32 v{VCS}, v2, 14, v3')
        CSI = int(ENV('CSI', '14')); STI = int(ENV('STI', '14'))
        LP2 = ENV('LP2', ''); LP0 = int(ENV('LP0', '5'))
        if LP2:
            a.emit(f's_and_b32 s3, s{S_MT}, 3')
            a.emit(f's_lshl2_add_u32 s3, s3, s{S_WV}')
            a.emit('s_sub_u32 s3, s3, 4')
            a.emit(f's_and_b32 s4, s{S_NT}, 7')
            a.emit('s_lshl_b32 s4, s4, 8')
            a.emit('s_lshl_b32 s5, s3, 14')
            a.emit('s_add_u32 s5, s5, s4')
            a.emit(f's_lshl_b32 s{SR}, s{S_NT}, 18')
            a.emit(f's_add_u32 s{SR}, s{SR}, {24 << 17}')
            a.emit(f's_add_u32 s{SR}, s{SR}, s5')
            a.emit(f's_and_b32 s{SR+1}, s{S_NT}, 8')
            a.emit(f's_lshl_b32 s{SR+1}, s{SR+1}, 16')
            a.emit(f's_add_u32 s{SR+1}, s{SR+1}, {16 << 17}')
            a.emit(f's_add_u32 s{SR+1}, s{SR+1}, s5')
            a.emit('s_lshr_b32 s5, s3, 1')
            a.emit(f's_lshl3_add_u32 s5, s{S_NT}, s5')
            a.emit('s_lshl_b32 s5, s5, 14')
            a.emit('s_and_b32 s3, s3, 1')
            a.emit('s_lshl_b32 s3, s3, 7')
            a.emit('s_add_u32 s4, s4, s3')
            a.emit(f's_add_u32 s{SR+2}, s5, s4')
            a.emit(f's_add_u32 s{SR+3}, s{SR+1}, {2 << 17}')
        HP = int(ENV('HP', '-1'))
        if HP >= 0:
            srd(a, SR, 'ws', WS_H, 2048 * 7168)
            a.emit(f's_and_b32 s3, s{S_WV}, 3')
            a.emit(f's_lshl2_add_u32 s3, s{S_MT}, s3')
            a.emit(f's_mul_i32 s3, s3, {32 * ldo2}')
            a.emit(f's_lshl_b32 s4, s{S_NT}, 12')
            a.emit('s_add_u32 s4, s4, s3')
            a.emit(f's_add_u32 s4, s4, {48 * 1024}')
            a.emit('v_lshl_add_u32 v24, v1, 6, s4')
            a.emit(f'v_add_u32 v25, {16 * ldo2}, v24')
            a.emit(f's_lshl_b32 s4, s{S_NT}, 10')
            a.emit('s_add_u32 s4, s4, s3')
            a.emit(f's_add_u32 s4, s4, {32 * 1024}')
            a.emit('v_and_b32 v3, 15, v1')
            a.emit('v_lshl_add_u32 v3, v3, 6, s4')
            a.emit('v_bfe_u32 v2, v1, 4, 1')
            a.emit(f'v_mul_u32_u24 v2, {16 * ldo2}, v2')
            a.emit('v_add_u32 v26, v2, v3')
            a.emit('v_and_b32 v3, 15, v1')
        CPI = int(ENV('CPI', '-1'))
        assert CPI < 0 or CPI >= CSI + 3 or (CSI, CPI, STI) == (13, 14, 14)
        LSK = int(ENV('LSK', '1')) if MF else 0; VC = 200
        def l0(o, lab, w):
            return [f's_cmp_lg_u32 s{S_LAYER}, 0', f's_cbranch_scc1 {lab}'] + o + ([f's_branch {lab}e', f'{lab}:', f's_waitcnt vmcnt({w})', f'{lab}e:'] if w >= 0 else [f'{lab}:']) if LSK else o
        def cols():
            b = Asm()
            b.emit(f's_and_b32 s3, s{S_WV}, 3')
            b.emit('s_lshl_b32 s5, s3, 9')
            b.emit(f's_add_u32 s5, s5, {LST}')
            b.emit('v_lshrrev_b32 v2, 5, v1')
            b.emit('v_and_b32 v3, 15, v1')
            b.emit('v_lshl_add_u32 v2, v3, 1, v2')
            b.emit(f'v_lshl_add_u32 v{VC+5}, v2, 4, s5')
            quad_sum(b, 64)
            b.emit(f'v_lshl_or_b32 v{VC+3}, v80, 16, v80')
            b.emit('s_lshl_b32 s5, s3, 10')
            b.emit(f's_add_u32 s5, s5, {LCS}')
            b.emit('v_permlane16_swap_b32 v64, v65')
            b.emit('v_lshrrev_b32 v2, 4, v1')
            b.emit('v_lshl_add_u32 v2, v3, 2, v2')
            b.emit(f'v_lshl_add_u32 v{VC+4}, v2, 4, s5')
            b.emit('v_add_f32 v64, v64, v65')
            split3(b, 64, VC, 65, False)
            return l0([l.strip() for l in b.lines], 'L_w1_cp', -1)
        def extra4(i):
            o = []
            if LP2 and i == LP0 - 1:
                b = Asm(); srd(b, SO, 'w2', 0, 3584 * 2048); o += [l.strip() for l in b.lines]
            if LP2 and LP0 <= i < LP0 + 8:
                for k, c in enumerate('ABCD'):
                    if c in LP2: o += [f's_buffer_load_dword s84, s[{SO}:{SO+3}], s{SR+k} offset:{64*j}' for j in range(2 if c == 'C' else 4)] + [f's_add_u32 s{SR+k}, s{SR+k}, 2048']
            if i == STI and LSK: o += stats4_loads(32, False)
            if i == CSI: o += l0(quad_loads(64, VCS, SC) + [f'buffer_load_ushort v80, v{VBI}, s[{SB}:{SB+3}], 0 offen'], 'L_w1_cl', 11 if CSI == 13 else 4)
            if i == STI and not LSK: o += stats4_loads(32, False)
            if MF and i == CPI: o += ['s_waitcnt vmcnt(4)'] * (CSI == 13) + cols()
            HPD = int(ENV('HPD', '0'))
            if HP >= 0: o += [f"buffer_{ENV('HPO', 'load')}_dword v{84+j}, v{24+j}, s[{SR}:{SR+3}], 0 offen {ENV('HPF', '')}" for j in range(3) if i == HP + j * HPD]
            return o
        def final5():
            def fin():
                a.emit('v_mul_f32 v32, 0x3a800000, v32')
                a.emit('v_mul_f32 v33, 0x3a800000, v33')
                a.emit('v_fma_f32 v33, -v32, v32, v33')
                a.emit('v_max_f32 v33, 0, v33')
                a.emit('v_add_f32 v33, 0x3727c5ac, v33')
                a.emit('v_rsq_f32 v34, v33')
                a.emit(f'v_mul_f32 v32, {-0.25 * MF}, v32')
                split3(a, 32, 36, 35, True)
                a.emit('v_mul_f32 v42, v33, v34')
                a.emit(f'v_mul_f32 v40, {f2u(c0):#x}, v34')
                a.emit('v_mul_f32 v34, v34, v34')
                a.emit(f'v_mul_f32 v33, {0.25 * MF}, v42')
                a.emit(f'v_mul_f32 v34, {f2u(0.044715):#x}, v34')
                a.emit('v_cvt_pk_bf16_f32 v35, v33, v33')
                a.emit('v_mul_f32 v41, v40, v34')
                a.emit('v_and_b32 v35, 0xffff0000, v35')
                if not GM: a.emit(f'v_xor_b32_dpp v43, v{VMD}, v{VMD} row_ror:2 row_mask:0xf bank_mask:0xf')
                a.emit('v_sub_f32 v35, v33, v35')
                if not GM: a.emit('v_cmp_ne_u32 vcc, 0, v43')
                a.emit('v_cvt_pk_bf16_f32 v39, v33, v35')
                if not GM: a.emit(f's_or_b32 s{S_MD}, vcc_lo, vcc_hi')
                a.emit(f'v_mov_b32 v43, s{S_MD}')
                a.emit(f'ds_write_b128 v{VC+5}, v[36:39]')
                a.emit(f'ds_write_b128 v{VC+5}, v[40:43] offset:2048')
            assert ENV('PW_W1', '4') == '4'
            for x in cols() if CPI < 0 else []: a.emit(x)
            a.emit(f'ds_write_b128 v{VC+4}, v[{VC}:{VC+3}]')
            assert CSI in (13, 14) and STI == 14 or not LSK
            stats4_store(a, 32, LST, False, fin=fin)
            a.emit('s_waitcnt lgkmcnt(0)')
        def final4():
            a.emit(f"s_waitcnt vmcnt({3 if HP >= 14 and ENV('HPO', 'load') == 'load' else 0})")
            if MF: return final5()
            stats4_store(a, 32, LST, False, nan_chk(a, 'L_w1_s', False) if SF else None)
            quad_sum(a, 64)
            a.emit('v_lshlrev_b32 v80, 16, v80')
            a.emit('s_lshl_b32 s5, s3, 8')
            a.emit(f's_add_u32 s5, s5, {LCS}')
            a.emit('v_permlane16_swap_b32 v64, v65')
            a.emit('v_lshrrev_b32 v2, 4, v1')
            a.emit('v_lshl_add_u32 v2, v3, 2, v2')
            a.emit('v_lshl_add_u32 v2, v2, 2, s5')
            a.emit('v_add_f32 v64, v64, v65')
            a.emit('ds_write2st64_b32 v2, v64, v80 offset0:0 offset1:4')
            if OH:
                assert ENV('PW_W1', '4') == '4'
                if GM: a.emit(f'v_mov_b32 v2, {LST}')
                else:
                    a.emit(f'v_xor_b32_dpp v64, v{VMD}, v{VMD} row_ror:2 row_mask:0xf bank_mask:0xf')
                    a.emit(f's_lshl2_add_u32 s5, s3, {LST}')
                    a.emit('v_cmp_ne_u32 vcc, 0, v64')
                    a.emit('v_mov_b32 v2, s5')
                    a.emit(f's_or_b32 s{S_MD}, vcc_lo, vcc_hi')
                a.emit(f'v_mov_b32 v64, s{S_MD}')
                a.emit('ds_write_b32 v2, v64')
            a.emit('s_waitcnt lgkmcnt(0)')
        assert ns == 0
        pst = sides.stouch_post(a, kind)
        if WD == 'c':
            a.emit('s_waitcnt vmcnt(0)')
            a.emit('s_barrier')
        elif WD: L.after_own = a.lines[iw0:]; del a.lines[iw0:]
        if LF1: L.run(final=final4, extra=extra4, post=pst, dep=lambda pf: dep_loc(a, kind, pf, lambda: a.emit(f's_waitcnt vmcnt({L.npre - 6})')))
        else: L.run(final=final4, extra=extra4, post=pst, dep=lambda pf: dep_wait(a, kind, postf=pf, preg=(lambda: a.emit('s_waitcnt vmcnt(7)')) if WG else None, obar=L.npre - 6 if ot and OBAR else 0, pref=(lambda: a.emit(f's_waitcnt vmcnt({L.npre - 7})')) if ot and not OBAR else None))
    else: L.run(tail_issue=tail, ntail_vm=17 + cs[0] + side(Asm(), 'issue'), final=final, extra=extra, post=sides.stouch_post(a, kind),
          dep=(lambda pf: dep_wait(a, kind, postf=pf)) if MEGA else None)
    if ENV('PFL', '2') == '2': side(a, 'late')
    if not VW: side(a, 'finish')
    loader_end(a, kind)
    a.label(end)
    a.emit('s_endpgm')
    loader_first(a, kind)
    if not MEGA:
        a(KD.format(name=f'{kind}l0_kernel'))
        stub(a, f'{kind}l1_kernel', body, 1, tsidx + 4, False)
        a(KD.format(name=f'{kind}l1_kernel'))
    a.label(f'L_{kind}_c1')
    return LCS + (4096 if MF else 2048)
```

```python
from common import *
from gemmw1 import *

def res_addr(a, swv, sd, v):
    assert int(ENV('LM_WO', '2')) == 2 and int(ENV('LM_W2', '2')) == 2
    srd(a, sd, 'A_x', 0, 4 * MB)
    a.emit('s_and_b32 s3, s2, 3')
    a.emit(f's_and_b32 s4, s{S_CU}, 3')
    a.emit('s_lshl2_add_u32 s3, s3, s4')
    a.emit(f's_lshl2_add_u32 s3, s3, s{swv}')
    a.emit('s_lshl_b32 s3, s3, 16')
    a.emit('s_bfe_u32 s4, s2, 0x10002' if SPX else 's_and_b32 s4, s2, 4')
    a.emit(f's_lshr_b32 s5, s{S_CU}, 2')
    a.emit('s_lshl1_add_u32 s4, s5, s4' if SPX else 's_lshl1_add_u32 s4, s4, s5')
    a.emit('s_lshl_b32 s4, s4, 7')
    a.emit('s_add_u32 s3, s3, s4')
    a.emit('s_add_u32 s4, s3, 32768')
    a.emit(f'v_and_b32 v{v}, 15, v1')
    a.emit(f'v_lshlrev_b32 v{v+1}, 1, v1')
    a.emit(f'v_and_b32 v{v+1}, 32, v{v+1}')
    a.emit(f'v_lshl_add_u32 v{v}, v{v}, 11, v{v+1}')
    a.emit(f'v_lshrrev_b32 v{v+1}, 1, v1')
    a.emit(f'v_and_b32 v{v+1}, 16, v{v+1}')
    a.emit(f'v_add_u32 v{v}, v{v}, v{v+1}')

def dbg_off(a, v):
    a.emit(f's_lshl_b32 s3, s{S_MT}, 2')
    a.emit('s_sub_u32 s3, s3, 4')
    a.emit(f'v_and_b32 v{v}, 7, v1')
    a.emit(f'v_add_u32 v{v}, s3, v{v}')
    a.emit(f'v_max_i32 v{v}, 0, v{v}')
    a.emit(f'v_lshlrev_b32 v{v}, 2, v{v}')

def res_loads(vd, v, sd):
    return [f'buffer_load_dwordx4 v[{vd+4*i}:{vd+3+4*i}], v{v}, s[{sd}:{sd+3}], s{3+(i>>1)} offen offset:{64*(i&1)}' for i in range(4)]

def gen_qkv(a, tsidx, side):
    kind = 'attn'
    K = 1024; lda2 = 2048; ldw2 = 6144
    S = 3; LM = int(ENV('LM_QKV', '3'))
    XH = 16384 + 6 * 4096
    STAGE = XH + 2048
    LST = S * STAGE
    PT = int(ENV('PTQ', '2'))
    EX = 1024 + (2 * STAGE if PT == 2 else 0)
    N = 16
    body = f'L_{kind}_body'; end = f'L_{kind}_end'
    VB, VA = 4, 10
    VXW, VPE, VPO, VCE, VCO, VVE, VVO, VS1, VS4, VKA, VKB, MAP, MAC, MBP, MBC, VO = range(16, 32)
    M_ODD, M_UPA, M_UPB, M_FA, M_FB = 48, 50, 52, 54, 14
    F = [32, 76]; ACC = 128; HACC = 224; ONES = 236
    acc = lambda jn, jm: ACC + (jn * 4 + jm) * 4
    fx = lambda s, jm: F[s] + jm * 4
    fw = lambda s, jn: F[s] + 20 + jn * 4
    a.label(f'L_{kind}_c0')
    stub(a, f'{kind}l0_kernel', body, 0, tsidx, True)
    a.label(body)
    ot = kind in OT
    HX = LST + 1280
    tile_map(a, LM, end)
    if ot and LM != 2:
        a.emit(f's_cmp_eq_u32 s{S_LAYER}, 0')
        a.emit(f's_cbranch_scc1 L_{kind}_map')
        tile_map(a, 2, None)
        a.label(f'L_{kind}_map')
    a.emit(f's_cmp_ge_u32 s{S_WV}, 4')
    a.emit(f's_cbranch_scc1 L_{kind}_loader')
    if ENV('CTE', '1') == '1': code_touch(a, 'L_attn_c0', 'L_w2_c1', int(ENV('CTN', '320')))
    a.emit(f's_and_b32 s{S_WM}, s{S_WV}, 1')
    a.emit(f's_lshr_b32 s{S_WN}, s{S_WV}, 1')
    a.emit('v_and_b32 v3, 31, v1')
    a.emit('v_lshlrev_b32 v3, 2, v3')
    a.emit(f'v_add_u32 v3, {XH}, v3')
    for i in range(4): a.emit(f'v_mov_b32 v{ONES+i}, 0x3f803f80')
    a.emit(f'ds_write_b32 v3, v{ONES}')
    a.emit(f'ds_write_b32 v3, v{ONES} offset:{STAGE}')
    a.emit(f'v_add_u32 v3, {2*STAGE}, v3')
    a.emit(f'ds_write_b32 v3, v{ONES}')
    if ot: a.emit(f'ds_write_b32 v3, v{ONES} offset:{HX - XH - 2 * STAGE}')
    a.emit('v_and_b32 v3, 15, v1')
    a.emit('v_lshrrev_b32 v2, 4, v1')
    a.emit('v_lshrrev_b32 v33, 1, v3')
    a.emit(f's_lshl_b32 s8, s{S_WM}, 13')
    for ks in range(2):
        if ks: a.emit(f'v_add_u32 v{VB+ks}, 4, v2')
        a.emit(f'v_xor_b32 v{VB+ks}, v{VB+ks if ks else 2}, v33')
        a.emit(f'v_lshlrev_b32 v{VB+ks}, 4, v{VB+ks}')
        a.emit(f'v_lshl_add_u32 v{VB+ks}, v3, 7, v{VB+ks}')
        a.emit(f'v_add_u32 v{VB+4+ks}, {XH}, v{VB+ks}')
        a.emit(f'v_add_u32 v{VB+ks}, s8, v{VB+ks}')
    wbase(a, 34, 33)
    a.emit(f's_lshl_b32 s8, s{S_WV}, 5')
    a.emit('v_xor_b32 v34, s8, v34')
    a.emit(f'v_add_u32 v{VB+2}, 16384, v34')
    a.emit(f'v_xor_b32 v{VB+3}, 32, v{VB+2}')
    i0 = len(a.lines)
    a.emit('v_and_b32 v35, 1, v2')
    a.emit(f'v_xor_b32 v35, s{S_WM}, v35')
    a.emit(f's_lshl_b32 s8, s{S_MT}, 7')
    a.emit(f's_lshl_b32 s9, s{S_WM}, 6')
    a.emit('s_add_u32 s8, s8, s9')
    if OH:
        a.emit('s_mul_i32 s10, s8, 7')
        a.emit(f's_lshl{3 - OH}_add_u32 s11, s{S_NT}, s{S_WN}')
        a.emit('s_add_u32 s10, s10, s11')
        a.emit('s_lshl_b32 s10, s10, 10')
    else:
        a.emit(f's_add_u32 s10, s8, s{S_NT}')
        a.emit('s_lshl_b32 s10, s10, 11')
        a.emit(f's_lshl_b32 s11, s{S_WN}, 10')
        a.emit('s_add_u32 s10, s10, s11')
    if 'wo' in NS: a.emit(f'v_lshl_add_u32 v{VO}, v1, 4, s10')
    else:
        a.emit('v_lshl_add_u32 v33, v3, 4, s10')
        a.emit('v_lshl_add_u32 v33, v35, 9, v33')
        a.emit('v_lshrrev_b32 v34, 1, v2')
        a.emit(f'v_lshl_add_u32 v{VO}, v34, 8, v33')
    a.emit(f's_mul_i32 s10, s{S_WN}, {14336 if XD else 24576}')
    a.emit(f's_add_u32 s10, s10, {EX}')
    a.emit(f's_lshl_b32 s11, s{S_WM}, 10')
    a.emit('s_add_u32 s4, s10, s11')
    a.emit('s_sub_u32 s5, s10, s11')
    a.emit(f's_mul_i32 s6, s{S_WM}, 6144')
    a.emit(f'v_lshl_add_u32 v{VXW}, v1, 4, s4')
    a.emit(f'v_add_u32 v{VPE}, s6, v{VXW}')
    a.emit(f'v_lshl_add_u32 v{VPO}, v1, 4, s5')
    a.emit(f'v_add_u32 v{VPO}, s6, v{VPO}')
    a.emit(f'v_lshl_add_u32 v{VCE}, v2, 8, s4')
    a.emit(f'v_lshl_add_u32 v{VCO}, v2, 8, s5')
    a.emit(f'v_lshl_add_u32 v{VVE}, v3, 4, s4')
    a.emit(f'v_lshl_add_u32 v{VVO}, v3, 4, s5')
    a.emit(f's_lshl_b32 s10, s{S_WM}, 8')
    a.emit(f's_add_u32 s10, s10, {LST}')
    a.emit(f'v_lshl_add_u32 v{VS1}, v3, 2, s10')
    a.emit(f'v_lshl_add_u32 v{VS4}, v2, 4, s10')
    a.emit('v_and_b32 v33, 1, v3')
    a.emit(f'v_cmp_eq_u32 s[{M_ODD}:{M_ODD+1}], 1, v33')
    a.emit('v_lshl_add_u32 v34, v2, 2, v33')
    a.emit('v_add_u32 v35, 2, v34')
    a.emit(f'v_cmp_gt_u32 s[{M_UPA}:{M_UPA+1}], v34, v3')
    a.emit(f'v_cmp_gt_u32 s[{M_UPB}:{M_UPB+1}], v35, v3')
    a.emit('v_mov_b32 v36, 0xffff')
    a.emit('v_mov_b32 v37, 0xffff0000')
    a.emit(f'v_cndmask_b32 v36, v36, v37, s[{M_ODD}:{M_ODD+1}]')
    a.emit(f's_add_u32 s10, s10, {640 + 64}')
    a.emit('v_lshl_add_u32 v34, v34, 2, s10')
    a.emit('v_lshl_add_u32 v35, v35, 2, s10')
    a.emit('v_subrev_u32 v38, 64, v34')
    a.emit('v_subrev_u32 v39, 64, v35')
    a.emit(f'v_cndmask_b32 v{VKA}, v34, v38, s[{M_UPA}:{M_UPA+1}]')
    a.emit(f'v_cndmask_b32 v{VKB}, v35, v39, s[{M_UPB}:{M_UPB+1}]')
    a.emit(f'v_cndmask_b32 v{MAP}, 0, v36, s[{M_UPA}:{M_UPA+1}]')
    a.emit(f'v_cndmask_b32 v{MBP}, 0, v36, s[{M_UPB}:{M_UPB+1}]')
    a.emit(f'v_xor_b32 v{MAC}, v{MAP}, v36')
    a.emit(f'v_xor_b32 v{MBC}, v{MBP}, v36')
    a.emit('s_cmp_eq_u32 s8, 0')
    a.emit(f's_cselect_b64 s[{M_FA}:{M_FA+1}], s[{M_UPA}:{M_UPA+1}], 0')
    a.emit(f's_cselect_b64 s[{M_FB}:{M_FB+1}], s[{M_UPB}:{M_UPB+1}], 0')
    if QS:
        a.emit('s_waitcnt lgkmcnt(0)')
        srd(a, ST, 'ws0', WS_ST0, 20 * 16384)
    if ot:
        a.emit(f's_cmp_lg_u32 s{S_LAYER}, 0')
        a.emit(f's_cbranch_scc1 L_{kind}_nozero')
    for i in list(range(122 if DS else 120, 236)) + ([] if XD else list(range(240, 256))): a.emit(f'v_mov_b32 v{i}, 0')
    if DS:
        a.emit('s_waitcnt lgkmcnt(0)')
        a.emit(f's_lshl_b32 s3, s{S_WN}, 5')
        a.emit('s_add_u32 s3, s3, s8')
        a.emit(f's_lshl_b32 s4, s{S_NT}, 14')
        a.emit('s_lshl3_add_u32 s3, s3, s4')
        a.emit('v_lshrrev_b32 v121, 1, v2')
        a.emit('v_lshl_add_u32 v121, v121, 4, v3')
        a.emit('v_and_b32 v120, 1, v2')
        a.emit('v_lshl_add_u32 v121, v121, 1, v120')
        a.emit('v_lshl_add_u32 v120, v121, 2, s3')
        if not QS: srd(a, ST, 'ws0', WS_ST0, 16 * 16384)
        srd(a, SP, 'ws0', WS_FL, FLS)
        a.emit('s_lshl_b32 s3, s2, 11')
        if D2:
            a.emit(f's_cmp_lg_u32 s{S_WV}, 0')
            a.emit(f's_cbranch_scc1 L_{kind}_noclr')
            a.emit(f's_lshl_b32 s5, s{S_MT}, 10')
            a.emit('s_add_u32 s4, s4, s5')
            a.emit('v_lshlrev_b32 v121, 4, v1')
            for i in range(4): a.emit(f'v_mov_b32 v{40+i}, -1')
            a.emit(f'buffer_store_dwordx4 v[40:43], v121, s[{ST}:{ST+3}], s4 offen sc1')
            for i in range(2): a.emit(f'buffer_store_dwordx4 v[128:131], v121, s[{SP}:{SP+3}], s3 offen offset:{1024*i} sc1')
            if GM:
                a.emit('s_getreg_b32 s5, hwreg(HW_REG_XCC_ID, 0, 4)')
                if ENV('FB'): a.emit(f"s_and_b32 s5, s2, {ENV('FB')}")
                a.emit('v_lshl_or_b32 v126, s5, 1, 1')
            else: a.emit('v_mov_b32 v126, 1')
            a.label(f'L_{kind}_noclr')
        else:
            a.emit('v_lshlrev_b32 v121, 3, v0')
            a.emit(f'buffer_store_dwordx2 v[126:127], v121, s[{SP}:{SP+3}], s3 offen sc1')
            dbg_off(a, 121)
        a.emit(f's_and_b32 s{SC+1}, s{SC+1}, 0xffff')
        a.emit(f's_mov_b32 s{SC+2}, 256')
        a.emit(f's_mov_b32 s{SC+3}, 0x00020000')
        a.emit('s_mov_b32 s7, 0x3f803f80')
    if ot: a.label(f'L_{kind}_nozero')
    a.emit('s_waitcnt lgkmcnt(0)')
    if QS:
        assert D2
        a.emit(f's_lshl4_add_u32 s3, s{S_MT}, s{S_NT}')
        a.emit(f's_lshl2_add_u32 s3, s3, s{S_WV}')
        a.emit('s_lshl2_add_u32 s3, s3, 0x4000')
        a.emit('v_lshl_add_u32 v121, v3, 16, v2')
        a.emit('v_add_lshl_u32 v121, v121, s3, 4')
    RI = int(ENV('RI', '18')) if PT == 2 else -1
    if RI >= 0:
        b = Asm(); res_addr(b, S_WV, SX, 127)
        a.lines += [l.replace('v128', 'v33').replace('s_add_u32 s3, s3, s4', 's_add_u32 s42, s3, s4').replace('s4, s3, 32768', 's43, s42, 32768') for l in b.lines]
    if OH: srd(a, SO, 'ws', WS_H + OHO, 2048 * 7168 - OHO)
    else: srd(a, SO, 'ws', WS_O, 4 * MB)
    clear_flags(a, 0)
    if ENV('CTE', '1') == '0': code_touch(a, 'L_attn_c0', 'L_w2_c1', int(ENV('CTN', '320')))
    import pads
    CLQ = ENV('DX', '2') == '1' and ENV('CLP', 'e') == 'q'
    if CLQ:
        srd(a, ST, 'ws', WS_XP, 4 * MB)
        a.emit(f's_or_b32 s{ST+1}, s{ST+1}, 0x100000')
        a.emit(f's_mov_b32 s{ST+3}, 0x00800000')
        a.emit('s_and_b32 s3, s2, 3')
        a.emit(f's_and_b32 s4, s{S_CU}, 3')
        a.emit('s_lshl2_add_u32 s3, s3, s4')
        a.emit('s_bfe_u32 s4, s2, 0x10002')
        a.emit(f's_lshr_b32 s5, s{S_CU}, 2')
        a.emit('s_lshl1_add_u32 s4, s5, s4')
        a.emit('s_lshl4_add_u32 s3, s3, s4')
        a.emit(f's_lshl2_add_u32 s3, s3, s{S_WV}')
        a.emit(f's_lshl_b32 s{S_T}, s3, 12')
        for i in range(4): a.emit(f'v_mov_b32 v{116+i}, -1')
    def warm():
        a.emit(f's_cmp_lg_u32 s{S_LAYER}, 0')
        a.emit(f's_cbranch_scc1 L_{kind}_nowarm')
        a.emit('s_lshl_b32 s3, s2, 2')
        a.emit(f's_add_u32 s3, s3, s{S_WV}')
        srd(a, SX, 'xs', 0, 4 * MB); srd(a, SW, 'wqkv', 0, 6 * MB)
        a.emit('v_min_u32 v126, 31, v1')
        a.emit('v_min_u32 v127, 47, v1')
        a.emit('v_lshlrev_b32 v126, 7, v126')
        a.emit('v_lshlrev_b32 v127, 7, v127')
        a.emit('s_lshl_b32 s4, s3, 12')
        a.emit(f's_mul_i32 s5, s3, {48 * 128}')
        a.emit(f'buffer_load_dword v2, v126, s[{SX}:{SX+3}], s4 offen')
        a.emit(f'buffer_load_dword v3, v127, s[{SW}:{SW+3}], s5 offen')
        a.emit('v_mov_b32 v126, 0')
        a.emit('v_mov_b32 v127, 0')
        a.label(f'L_{kind}_nowarm')
    WARM = ENV('WARM', '0')
    if WARM == '1': warm()
    mid = []
    if ot: mid = a.lines[i0:]; del a.lines[i0:]
    def reads(s, ks, hl=True):
        o = []
        if 'noread' in DBG: return o
        for jm in range(4):
            o.append(f'ds_read_b128 v[{fx(s,jm)}:{fx(s,jm)+3}], v{VA+ks} offset:{jm*2048}')
        if hl: o.append(f'ds_read_b128 v[{fx(s,4)}:{fx(s,4)+3}], v{VA+4+ks}')
        for jn in range(6):
            for h in range(2):
                r = fw(s, jn) + 2 * h
                o.append(f'ds_read_b64_tr_b16 v[{r}:{r+1}], v{VA+2+(jn&1)} offset:{(jn>>1)*8192+ks*4096+h*512}')
        return o
    def mfma(c, x, y, cin=None):
        return f'v_mfma_f32_16x16x32_bf16 v[{c}:{c+3}], v[{x}:{x+3}], v[{y}:{y+3}], ' + (f'v[{c}:{c+3}]' if cin is None else cin)
    def mf(s):
        o = []
        if 'nomfma' in DBG: return ['s_nop 0']
        od = mf_order(6, 5, lambda jn, jm: jm == 4 and jn & 1)
        if ENV('HO', '1') == '1':
            od = [x for jn, jm in mf_order(6, 4) for x in [(jn, jm)] + [(jn, 4)] * (jm == 0 and not jn & 1)]
            if QS: od.remove((0, 4)); od = od + [(0, 4)] if s else [(0, 4)] + od
        for jn, jm in od:
            if True:
                c = acc(jn, jm) if jm < 4 else HACC + (jn >> 1) * 4
                o.append(mfma(c, fw(s, jn), fx(s, jm)) if jn < 4 else mfma(c, fx(s, jm), fw(s, jn)))
        return o
    SA = [(240, 244), (248, 252), (120, 124)]
    def mfv(hh):
        def f(s):
            o = mf(s)
            ex = []
            for i, jm in enumerate([2 * hh, 2 * hh + 1] + ([4] if hh == 0 else [])):
                ex.append(mfma(SA[i][0], ONES, fx(s, jm)))
                ex.append(mfma(SA[i][1], fx(s, jm), fx(s, jm)))
            return o if 'nostat' in DBG else ex + o
        return f
    def select():
        if CLQ:
            for i in range(4): a.emit(f'buffer_store_dwordx4 v[116:119], off, s[{ST}:{ST+3}], s{S_T} offset:{1024*i} sc1')
        if WARM == '2': warm(); a.emit('s_nop 1')
        if not ot:
            a.emit(f's_cmp_lg_u32 s{S_LAYER}, 0')
            a.emit(f's_cbranch_scc1 L_{kind}_loop')
        if XD:
            for i in range(240, 256): a.emit(f'v_mov_b32 v{i}, 0')
        a.emit(f's_cmp_lg_u32 s{S_WN}, 0')
        a.emit(f's_cbranch_scc1 L_{kind}_loopb')
        clear_flags(a, 1, 4 if CLQ else 0)
    def post():
        a.emit('v_and_b32 v32, 3, v1')
        a.emit('v_cmp_eq_u32 s[4:5], 1, v32')
        a.emit('v_cmp_eq_u32 s[6:7], 2, v32')
        a.emit('v_cmp_eq_u32 s[8:9], 3, v32')
        a.emit('v_bfe_u32 v33, v1, 2, 2')
        a.emit('v_lshrrev_b32 v34, 4, v1')
        a.emit('v_cmp_eq_u32 s[10:11], v33, v34')
        a.emit(f's_lshl_b32 s3, s{S_WN}, 7')
        a.emit(f'v_add_u32 v35, s3, v{VS1}')
        a.emit('v_and_b32 v36, 15, v1')
        a.emit(f's_cmp_eq_u32 s{S_WV}, 0')
        a.emit('s_cselect_b32 s3, 0, 576')
        a.emit(f's_add_u32 s3, s3, {LST}')
        a.emit('v_lshl_add_u32 v36, v36, 2, s3')
        for (sm, sq) in SA:
            a.emit(f'v_cndmask_b32 v{sm+1}, v{sq}, v{sq+1}, s[4:5]')
        for (sm, sq) in SA:
            a.emit(f'v_cndmask_b32 v{sm+1}, v{sm+1}, v{sq+2}, s[6:7]')
        for (sm, sq) in SA:
            a.emit(f'v_cndmask_b32 v{sm+1}, v{sm+1}, v{sq+3}, s[8:9]')
        for (sm, sq) in SA: stats_finish(a, sm)
        a.emit('s_mov_b64 exec, s[10:11]')
        a.emit(f'ds_write2_b32 v35, v{SA[0][0]}, v{SA[0][0]+1} offset0:16 offset1:176')
        a.emit(f'ds_write2_b32 v35, v{SA[1][0]}, v{SA[1][0]+1} offset0:32 offset1:192')
        a.emit(f'ds_write2_b32 v36, v{SA[2][0]}, v{SA[2][0]+1} offset0:0 offset1:160')
        a.emit('s_mov_b64 exec, -1')
        if XD:
            res_addr(a, S_WV, SX, 32)
        a.emit('s_waitcnt lgkmcnt(0)')
        if XD:
            for i in range(4):
                a.emit(f'buffer_load_dwordx4 v[{240+4*i}:{243+4*i}], v32, s[{SX}:{SX+3}], s{3+(i>>1)} offen offset:{64*(i&1)}')
        a.emit('s_barrier')
    own = lambda s: [mfma(acc(jn, jm), *((fw(s, jn), fx(s, jm)) if jn < 4 else (fx(s, jm), fw(s, jn))), None if s else '0') for jn, jm in mf_order(6, 4)]
    hw = lambda ks, c: fw(1, 2 * c) if ks else fx(1, c)
    hal = ([f'v_mov_b32 v{fx(1,c)+i}, v{fw(0,2*c)+i}' for c in range(3) for i in range(4)],
           [f'ds_read_b128 v[{fx(1,3+ks)}:{fx(1,3+ks)+3}], v{VA+4+ks} offset:{HX - XH - STAGE}' for ks in range(2)],
           [mfma(HACC + 4 * c, *((hw(ks, c), fx(1, 3 + ks)) if c < 2 else (fx(1, 3 + ks), hw(ks, c))), None if ks else '0') for ks in range(2) for c in range(3)])
    if QS: hal = (hal[0][4:], hal[1] + [f'buffer_load_dwordx4 v[122:125], v121, s[{ST}:{ST+3}], 0 offen sc1'], hal[2][1:3] + hal[2][4:])
    ch = None
    if kind in CHN:
        assert QS and PT == 2 and D2
        def tm(jn, jm, s, cin=None):
            return mfma(acc(jn, jm) if jm < 4 else HACC + (jn >> 1) * 4, *((fw(s, jn), fx(s, jm)) if jn < 4 else (fx(s, jm), fw(s, jn))), cin)
        chn = lambda od: [tm(jn, jm, s) for i, (jn, jm) in enumerate(od) for s in (i & CKN, 1 - (i & CKN))]
        sn = lambda p, q: [((p, q)[(i + 1 >> 1) & 1], i >> 1) for i in range(8)]
        cms = chn([(0, 4)] + sn(0, 1) + [(3, 3 - jm) for jm in range(4)] + [(2, jm) for jm in range(5)] + [(4, 4)] + sn(4, 5))
        ra = sorted(reads(0, 0) + reads(1, 1), key=lambda x: uses(cms, x)[0])
        r1 = [x for x in ra if uses(cms, x)[-1] >= (34 if '_tr_' in x else 50)]
        r1[:2] = r1[1::-1]
        ch = dict(ms=cms, r1=r1, r0=[x for x in ra if x not in r1], bar=int(ENV('CHQ', '23')))
        hal = ([], [f'ds_read_b128 v[{fx(ks,3)}:{fx(ks,3)+3}], v{VA+4+ks} offset:{HX - XH - STAGE}' for ks in range(2)] + hal[1][2:],
               [mfma(HACC + 2 * jn, *((fw(s, jn), fx(s, 3)) if jn < 4 else (fx(s, 3), fw(s, jn))), None if s else '0') for jn in (2, 4) for s in range(2)])
    hooks = None
    if DS:
        HK = [int(x) for x in ENV('HK', '-1,-2,-4,-5,11,13').split(',')]
        def dots(s):
            o = [f's_cmp_lg_u32 s{S_WN}, 0', f's_cbranch_scc1 L_{kind}_dot{s}']
            if ch:
                dd = lambda jm: [x for j in range(8) for r in [fx(j >> 2, jm) + (j & 3)] for x in (f'v_dot2_f32_bf16 v{122+(jm&1)}, v{r}, s7, v{122+(jm&1)}', f'v_dot2_f32_bf16 v{124+(jm&1)}, v{r}, v{r}, v{124+(jm&1)}')]
                if s: return [f's_cmp_eq_u32 s{S_WN}, 0', f's_cbranch_scc1 L_{kind}_dot1'] + dd(3) + [f'L_{kind}_dot1:']
                return ['s_waitcnt lgkmcnt(0)'] + o + [x for p in zip(dd(0), dd(1)) for x in p] + [f's_branch L_{kind}_dote0', f'L_{kind}_dot0:'] + dd(2) + [f'L_{kind}_dote0:']
            for hh in range(2):
                for j in range(8):
                    r = fx(s, 2 * hh) + (j >> 1) + 4 * (j & 1)
                    o += [f'v_dot2_f32_bf16 v{122+(j&1)}, v{r}, s7, v{122+(j&1)}', f'v_dot2_f32_bf16 v{124+(j&1)}, v{r}, v{r}, v{124+(j&1)}']
                o += [f'L_{kind}_dote{s}:'] if hh else [f's_branch L_{kind}_dote{s}', f'L_{kind}_dot{s}:']
            return o
        h1 = dots(1) + ['s_nop 2', 'v_permlane32_swap_b32 v122, v123', 'v_permlane32_swap_b32 v124, v125', 'v_add_f32 v122, v122, v123', 'v_add_f32 v124, v124, v125',
               'v_mov_b32 v126, 1', 's_nop 0', 'v_permlane16_swap_b32 v122, v124', 'v_add_f32 v122, v122, v124', f'buffer_store_dword v122, v120, s[{ST}:{ST+3}], 0 offen sc1']
        w0 = [f's_cmp_lg_u32 s{S_WV}, 0', f's_cbranch_scc1 L_{kind}_loop']
        pl = f'buffer_load_dword v127, v121, s[{SC}:{SC+3}], 0 offen sc1'
        b = Asm(); res_addr(b, S_WV, SX, 122); rs = [l.strip() for l in b.lines] + res_loads(240, 122, SX)
        hooks = list(zip(HK + [int(ENV('HKR', '14'))], [dots(0), h1, ['s_waitcnt vmcnt(0)'],
            w0 + [f's_lshl4_add_u32 s3, s{S_MT}, s{S_NT}', 's_mov_b64 exec, 1', f'buffer_store_byte v126, off, s[{SC}:{SC+3}], s3 sc1', 's_mov_b64 exec, -1'], w0 + [pl],
            w0 + ['s_mov_b32 s5, 0x100000', 'L_attn_chkl:', 's_waitcnt vmcnt(0)', 'v_cmp_ne_u32 vcc, 0x01010101, v127', f's_cbranch_vccz L_{kind}_loop',
                  pl, 's_sub_u32 s5, s5, 1', 's_cbranch_scc0 L_attn_chkl'], rs]))
        assert HK[:2] == [-1, -2]
        if D2: hooks = [(-1, dots(0) + pads.chain('h0') + w0 + hooks[2][1] + hooks[3][1][2:]), (-2, [x.replace('v_mov_b32 v126, 1', 's_nop 0') for x in h1] + pads.chain('h1')), hooks[-1]]
        if RI >= 0: del hooks[-1]
        if ENV('XSL'):
            xs = [int(x) for x in ENV('XSL').split(',')]
            hooks[1] = (hooks[1][0], hooks[1][1] + [f's_sleep {xs[0]}'])
            hooks[2] = (hooks[2][0], hooks[2][1] + [f's_sleep {xs[1]}'])
    assert ot or not DS
    PR = 32
    CS = 48
    CV = 64
    MS = 66
    RK = 76
    M4 = 84
    R4 = 104
    VV = [4 if XD else 240, 224]
    if PT: RK = 120; M4 = 76; R4 = 96
    sc = 32 ** -0.5 * 1.4426950408889634
    rms = [f'ds_read2_b32 v[{MS+2*b}:{MS+2*b+1}], v{VS1} offset0:{16*b} offset1:{160+16*b}' for b in range(5)]
    rrk = [f'ds_read2_b32 v[{RK+4*k+2*p}:{RK+4*k+2*p+1}], v{VKB if k else VKA} offset0:{32*p} offset1:{32*p+16}' for p in range(2) for k in range(2)]
    wh = [f'ds_write_b128 v{VXW}, v[{HACC+4*c}:{HACC+4*c+3}] offset:{2048*c}' for c in range(3)]
    if QS: wh[0] = f'ds_write_b128 v{VXW}, v[122:125]'
    wp = [f'ds_write_b128 v{VA if PT else VXW}, v[{acc(t,3)}:{acc(t,3)+3}] offset:{6144+1024*t}' for t in range(2, 6)]
    rm4 = [f'ds_read_b128 v[{r+4*b}:{r+4*b+3}], v{VS4} offset:{o+64*b}' for b in range(5) for r, o in ((M4, 0), (R4, 640))]
    rcs = [f'ds_read_b128 v[{CS+4*t}:{CS+4*t+3}], v{VCO if t&1 else VCE} offset:{1024*t}' for t in range(4)]
    rcv = [f'ds_read_b32 v{CV+t}, v{VVO if t else VVE} offset:{4096+1024*t}' for t in range(2)]
    rpr = [f'ds_read_b128 v[{PR+4*t}:{PR+4*t+3}], v{VPO if t&1 else VPE} offset:{2048+1024*t}' for t in range(4)]
    mul = [f'v_mul_f32 v{MS+2*b+3}, {f2u(sc):#x}, v{MS+2*b+3}' for b in range(4)] + [f'v_mul_f32 v{RK+4*k+b}, v{RK+4*k+b}, v{MS+2*b+3}' for b in range(4) for k in range(2)]
    tail = None
    if PT:
        assert WE < 0
        dst = lambda m: int(m.split('[')[1].split(':')[0])
        first = [HACC, HACC + 4, acc(2, 3), acc(3, 3), HACC + 8, acc(4, 3), acc(5, 3)]
        ms = sorted(mf(1), key=lambda m: first.index(dst(m)) if dst(m) in first else 9)
        wr = wh[:2] + wp[:2] + wh[2:] + wp[2:]
        XB_ = int(ENV('PTB', '16'))
        fl = {i: rms[i:i + 1] + rrk[i:i + 1] for i in range(5)}
        for i in range(7): fl[5 + i] = [wr[i]]
        fl[XB_] = ['s_waitcnt lgkmcnt(0)', 's_barrier']
        rest = rcs + rpr[:2] + rcv + rpr[2:] + mul
        for i in range(XB_ + 1, 27): fl[i] = rest[:2]; del rest[:2]
        tail = ([f'v_lshl_add_u32 v{VA}, s{S_WM}, 15, v{VXW}'], weave(ms, fl) + rest)
    if PT == 2:
        P0, W0, WS_, XB_ = [int(x) for x in ENV('PTP', '14,20,4,45').split(',')]
        m0 = sorted(mf(0), key=lambda m: first.index(dst(m)) if dst(m) in first else 9)
        ms = m0[:P0] + ms[:7] + m0[P0:] + ms[7:]
        r1 = reads(1, 1); r1 = r1[4:7] + r1[9:11] + r1[3:4] + r1[11:] + r1[:3] + r1[7:9]
        if ch:
            le = [(0, 3), (1, 3)] + sn(4, 5)[:6]
            ms = chn([(0, 4)] + sn(0, 1)[:6] + [(2, 4), (2, 3), (3, 3), (4, 4), (4, 3), (5, 3), (3, 2), (3, 1), (3, 0), (2, 0), (2, 1), (2, 2)]) + [tm(*t, s) for s in range(2) for t in le]
            r1 = sorted(ch['r1'], key=lambda x: uses(ms, x)[0])
            assert XB_ >= 45
        fl = {i: [x] for i, x in enumerate(r1)}
        fl[0] += [f's_mul_i32 s3, s{S_WM}, -32768']; fl[7 if ch else 1] += [f'v_add_u32 v{VA}, s3, v{VXW}']
        if ch: fl[13] += ['s_waitcnt lgkmcnt(8)']; fl[19] = ['s_waitcnt lgkmcnt(0)']; assert W0 > 19
        if not ch: fl[P0 - 1] = fl.get(P0 - 1, []) + [f's_waitcnt lgkmcnt({max(0, min(P0, 17) - 12)})']
        for i in range(7): fl[W0 + WS_ * i] = fl.get(W0 + WS_ * i, []) + [wr[i]]
        assert P0 >= 12 and W0 >= 17
        if not ch: fl[33] = fl.get(33, []) + [f's_waitcnt lgkmcnt({sum(W0 + WS_ * i <= 33 for i in range(7))})']
        fl[XB_] = ['s_waitcnt lgkmcnt(0)', 's_barrier']
        if RI >= 0:
            fl[RI - 1] = fl.get(RI - 1, []) + [f's_cmp_lg_u32 s{S_LAYER}, 0'] + ['s_waitcnt vmcnt(0)'] * QS
            fl[RI] = fl.get(RI, []) + ['s_cbranch_scc1 L_attn_nores'] + [x.replace('s4 ', 's43 ').replace('s3 ', 's42 ') for x in res_loads(240, 127, SX)] + (
                [f'buffer_store_dwordx4 v[{HACC}:{HACC+3}], v121, s[{ST}:{ST+3}], 0 offen sc1'] + [f'v_mov_b32 v{122+i}, v{HACC+i}' for i in range(4)]) * QS + ['L_attn_nores:']
        rest = rcs[:2] + rms[1:2] + rcs[2:] + rms[2:] + rms[:1] + rpr + rcv + rrk
        NL = len(rest) - 5
        for i in range(XB_ + 1, 54): fl[i] = rest[:2]; del rest[:2]
        NL -= len(rest); rm4 = rest + rm4
        tail = (None, weave(ms, fl))
        if ch: tail = (None, lambda pend: (waits_for(ms[:XB_ + 1], fl, pend, -1), weave(ms, fl))[1])
    big_loop(a, kind, N, S, STAGE, 6, VB, VA, reads, mf, variants=None if DS else {'a': mfv(0), 'b': mfv(1)}, select=select, post=post, mid=mid, hooks=hooks,
             ot=own if ot else None, halo=hal if ot else None, tail=tail, ch=ch)
    if not PT:
        for x in rms + rrk + wh: a.emit(x)
        a.emit(f's_cmp_eq_u32 s{S_WM}, 1')
        a.emit(f's_cbranch_scc1 L_{kind}_nop3')
        for x in wp: a.emit(x)
        a.label(f'L_{kind}_nop3')
        for x in rm4: a.emit(x)
        a.emit('s_waitcnt lgkmcnt(10)')
        a.emit('s_barrier')
        for x in rcs + rcv + rpr + mul: a.emit(x)
    a.emit(f's_waitcnt lgkmcnt({NL if PT == 2 else 6})')
    AE = int(ENV('AE', '7'))
    def qk(x, y, cs, b, d, mm=None):
        m = f'v[{MS+2*b}:{MS+2*b+1}]'
        for (z, c) in ((x, cs), (y, cs + 4)):
            for h in range(2):
                a.emit(f'v_pk_fma_f32 v[{z+2*h}:{z+2*h+1}], v[{c+2*h}:{c+2*h+1}], {m}, v[{z+2*h}:{z+2*h+1}] op_sel:[0,0,0] op_sel_hi:[1,0,1] neg_lo:[0,1,0] neg_hi:[0,1,0]')
        if mm and AE & 1: a.emit(mm)
        a.emit(f'v_cvt_pk_bf16_f32 v{d}, v{x}, v{x+1}')
        a.emit(f'v_cvt_pk_bf16_f32 v{d+1}, v{x+2}, v{x+3}')
        a.emit(f'v_cvt_pk_bf16_f32 v{d+2}, v{y}, v{y+1}')
        a.emit(f'v_cvt_pk_bf16_f32 v{d+3}, v{y+2}, v{y+3}')
    Q = lambda b: acc(0, b); Kf = lambda b: acc(2, b) if b >= 0 else PR
    Sc = lambda b: acc(1, b); Sp = lambda b: acc(3, (b - (AE & 1)) & 3)
    for b in range(4):
        qk(acc(0, b), acc(1, b), CS, b + 1, Q(b), b and mfma(Sc(b - 1), Kf(b - 1), Q(b - 1), '0'))
        nr = (len(rm4) + 5) // 6
        for x in rm4[2*nr*b:2*nr*b+nr] if PT else []: a.emit(x)
        qk(acc(2, b), acc(3, b), CS + 8, b + 1, Kf(b), b and mfma(Sp(b), Kf(b - 1), Q(b), '0'))
        if PT == 2 and b == 0:
            assert NL >= 3
            a.emit(f's_waitcnt lgkmcnt({NL - 3 + nr})')
        for x in rm4[2*nr*b+nr:2*nr*b+2*nr] if PT else []: a.emit(x)
        if b == 3:
            a.emit('s_waitcnt lgkmcnt(0)')
            qk(PR, PR + 4, CS + 8, 0, PR, mfma(Sc(3), Kf(3), Q(3), '0'))
        if b >= 1 and not AE & 1:
            a.emit(mfma(Sc(b - 1), Kf(b - 1), Q(b - 1), '0'))
            if b >= 2: a.emit(mfma(Sp(b - 1), Kf(b - 2), Q(b - 1), '0'))
    if AE & 1:
        for x in mul[:2]: a.emit(x)
        del mul[:2]
    else:
        a.emit(mfma(Sc(3), Kf(3), Q(3), '0'))
        a.emit(mfma(Sp(3), Kf(2), Q(3), '0'))
    a.emit(mfma(Sp(0), Kf(-1), Q(0), '0'))
    for x in mul if PT == 2 else []: a.emit(x)
    def vconv(x, t, b):
        cv = f'v[{CV}:{CV+1}]'
        for h in range(2):
            a.emit(f'v_pk_fma_f32 v[{x+2*h}:{x+2*h+1}], v[{M4+4*b+2*h}:{M4+4*b+2*h+1}], {cv}, v[{x+2*h}:{x+2*h+1}] op_sel:[0,{t},0] op_sel_hi:[1,{t},1] neg_lo:[1,0,0] neg_hi:[1,0,0]')
        for h in range(2):
            a.emit(f'v_pk_mul_f32 v[{x+2*h}:{x+2*h+1}], v[{x+2*h}:{x+2*h+1}], v[{R4+4*b+2*h}:{R4+4*b+2*h+1}]')
        for h in range(2):
            a.emit(f'v_cvt_pk_bf16_f32 v{VV[t]+2*b+h}, v{x+2*h}, v{x+2*h+1}')
    for t in range(2):
        vconv(PR + 8 + 4 * t, t, 0)
        for b in range(4): vconv(acc(4 + t, b), t, b + 1)
    if AE & 2: vf = a.lines[-12:]; del a.lines[-12:]
    T = lambda b: 32 + 4 * b
    odd = f's[{M_ODD}:{M_ODD+1}]'
    for b in (1, 2, 3, 0):
        a.emit(f'v_cndmask_b32 v{Sc(b)}, v{Sc(b)}, v{Sc(b)+1}, {odd}')
        a.emit(f'v_cndmask_b32 v{Sp(b)}, v{Sp(b)}, v{Sp(b)+1}, {odd}')
        a.emit(f'v_cndmask_b32 v{Sc(b)+2}, v{Sc(b)+2}, v{Sc(b)+3}, {odd}')
        a.emit(f'v_cndmask_b32 v{Sp(b)+2}, v{Sp(b)+2}, v{Sp(b)+3}, {odd}')
        a.emit(f'v_cndmask_b32 v{T(b)}, v{Sc(b)}, v{Sp(b)}, s[{M_UPA}:{M_UPA+1}]')
        a.emit(f'v_cndmask_b32 v{T(b)+1}, v{Sc(b)+2}, v{Sp(b)+2}, s[{M_UPB}:{M_UPB+1}]')
        a.emit(f'v_mul_f32 v{T(b)}, v{T(b)}, v{RK+b}')
        a.emit(f'v_mul_f32 v{T(b)+1}, v{T(b)+1}, v{RK+4+b}')
    a.emit(f'v_mov_b32 v48, {f2u(-1e9 * 1.4426950408889634):#x}')
    a.emit(f'v_cndmask_b32 v{T(0)}, v{T(0)}, v48, s[{M_FA}:{M_FA+1}]')
    a.emit(f'v_cndmask_b32 v{T(0)+1}, v{T(0)+1}, v48, s[{M_FB}:{M_FB+1}]')
    for b in (2, 3, 1, 0) if AE & 2 else range(4): a.emit(f'v_max_f32 v{T(b)+2}, v{T(b)}, v{T(b)+1}')
    if AE & 2:
        M = lambda b: T(b) + 2
        for x in [f'v_permlane32_swap_b32 v{M(2)}, v{M(3)}', 1, f'v_permlane32_swap_b32 v{M(0)}, v{M(1)}', f'v_max_f32 v{M(2)}, v{M(2)}, v{M(3)}', f'v_max_f32 v{M(0)}, v{M(0)}, v{M(1)}', 2,
                  f'v_permlane16_swap_b32 v{M(0)}, v{M(2)}', 1, f'v_max_f32 v{M(1)}, v{M(0)}, v{M(2)}', f'v_max_f32 v{M(3)}, v{M(0)}, v{M(2)}', 2,
                  f'v_permlane16_swap_b32 v{M(1)}, v{M(3)}', 1, f'v_mov_b32 v{M(0)}, v{M(1)}', f'v_mov_b32 v{M(2)}, v{M(3)}', 1,
                  f'v_permlane32_swap_b32 v{M(0)}, v{M(1)}', f'v_permlane32_swap_b32 v{M(2)}, v{M(3)}', 4]:
            if isinstance(x, int): a.lines += vf[:x]; del vf[:x]
            else: a.emit(x)
        assert not vf
    for op in () if AE & 2 else ('32', '16'):
        for b in range(4): a.emit(f'v_mov_b32 v{T(b)+3}, v{T(b)+2}')
        for b in range(4): a.emit(f'v_permlane{op}_swap_b32 v{T(b)+2}, v{T(b)+3}')
        for b in range(4): a.emit(f'v_max_f32 v{T(b)+2}, v{T(b)+2}, v{T(b)+3}')
    P = lambda b: acc(0, b)
    if AE & 4:
        for b in range(5):
            o = [f'v_sub_f32 v{T(b)+k}, v{T(b)+k}, v{T(b)+2}' for k in range(2)] + [f'v_exp_f32 v{T(b)+k}, v{T(b)+k}' for k in range(2)] + [f'v_cvt_pk_bf16_f32 v{T(b)+k}, v{T(b)+k}, v{T(b)+k}' for k in range(2)]
            o += [f'v_and_b32 v{P(b)+k}, v{T(b)+(k&1)}, v{(MAP, MBP, MAC, MBC)[k]}' for k in range(4)]
            if b == 4: o = [f'v_rcp_f32 v{acc(1,0)}, v{acc(1,0)}', f's_cmp_eq_u32 s{S_WM}, 1', f'v_rcp_f32 v{acc(1,1)}, v{acc(1,1)}', '', f'v_rcp_f32 v{acc(1,2)}, v{acc(1,2)}', '', '', '', '', '']
            q = b - 1
            ms = [mfma(acc(1, q), ONES, P(q), '0'), mfma(acc(4, q), VV[0] + 2 * q, P(q), '0'), mfma(acc(5, q), VV[1] + 2 * q, P(q), '0')] if b else ['', 's_nop 0', '']
            for x in o[:2] + ms[:1] + o[2:4] + ms[1:2] + o[4:7] + ms[2:] + o[7:]:
                if x: a.emit(x)
    else:
        for b in range(4):
            a.emit(f'v_sub_f32 v{T(b)}, v{T(b)}, v{T(b)+2}')
            a.emit(f'v_sub_f32 v{T(b)+1}, v{T(b)+1}, v{T(b)+2}')
        for b in range(4):
            a.emit(f'v_exp_f32 v{T(b)}, v{T(b)}')
            a.emit(f'v_exp_f32 v{T(b)+1}, v{T(b)+1}')
        P = lambda b: acc(0, b)
        for b in range(4):
            a.emit(f'v_cvt_pk_bf16_f32 v{T(b)}, v{T(b)}, v{T(b)}')
            a.emit(f'v_cvt_pk_bf16_f32 v{T(b)+1}, v{T(b)+1}, v{T(b)+1}')
            a.emit(f'v_and_b32 v{P(b)}, v{T(b)}, v{MAP}')
            a.emit(f'v_and_b32 v{P(b)+1}, v{T(b)+1}, v{MBP}')
            a.emit(f'v_and_b32 v{P(b)+2}, v{T(b)}, v{MAC}')
            a.emit(f'v_and_b32 v{P(b)+3}, v{T(b)+1}, v{MBC}')
            if b >= 1:
                q = b - 1
                a.emit(mfma(acc(1, q), ONES, P(q), '0'))
                a.emit(mfma(acc(4, q), VV[0] + 2 * q, P(q), '0'))
                a.emit(mfma(acc(5, q), VV[1] + 2 * q, P(q), '0'))
        q = 3
        a.emit(mfma(acc(1, q), ONES, P(q), '0'))
        a.emit(mfma(acc(4, q), VV[0] + 2 * q, P(q), '0'))
        a.emit(mfma(acc(5, q), VV[1] + 2 * q, P(q), '0'))
    if ENV('ES'): stamp(a, 1)
    no = 'wo' in NS
    if no:
        if not AE & 4: a.emit(f's_cmp_eq_u32 s{S_WM}, 1')
        a.emit(f's_cbranch_scc1 L_{kind}_out1')
    for w in range(2 if no else 1):
        if w: a.label(f'L_{kind}_out1')
        for b in range(4):
            r = acc(1, b); d = 48 + 4 * b
            if not AE & 4: a.emit(f'v_rcp_f32 v{r}, v{r}')
            elif b == 1: a.emit(f'v_rcp_f32 v{acc(1,3)}, v{acc(1,3)}')
            a.emit(f's_mov_b32 s3, {b * 16 * (7168 if OH else 2048)}')
            for t in range(2):
                x = acc(4 + t, b)
                for h in range(2):
                    a.emit(f'v_pk_mul_f32 v[{x+2*h}:{x+2*h+1}], v[{x+2*h}:{x+2*h+1}], v[{r}:{r+1}] op_sel_hi:[1,0]')
            for t in range(2):
                x = acc(4 + t, b)
                for h in range(2):
                    a.emit(f'v_cvt_pk_bf16_f32 v{d+2*(t^w)+h}, v{x+2*h}, v{x+2*h+1}')
            if not no:
                a.emit('s_nop 1')
                a.emit(f'v_permlane16_swap_b32 v{d}, v{d+2}')
                a.emit(f'v_permlane16_swap_b32 v{d+1}, v{d+3}')
            a.emit(f'buffer_store_dwordx4 v[{d}:{d+3}], v{VO}, s[{SO}:{SO+3}], s3 offen{stf(kind)}')
        if no and not w: a.emit(f's_branch L_{kind}_out2')
    if no: a.label(f'L_{kind}_out2')
    compute_end(a, kind)
    a.label(f'L_{kind}_loader')
    L = Loader(a, kind, K, lda2, ldw2, [0, 2048, 4096], 128, S, STAGE, halo=XH, rot=int(ENV('ROT_QKV', '0')))
    L.skip = DS
    L.setup()
    a.emit('s_waitcnt lgkmcnt(0)')
    srd_xs(a, SX); srd(a, SW, 'wqkv', 0, 1024 * 6144)
    import sides
    fill = []
    if ENV('DX', '2') == '1' and ENV('CLP', 'e') == 'l':
        a.emit('s_and_b32 s3, s2, 3')
        a.emit(f's_and_b32 s4, s{S_CU}, 3')
        a.emit('s_lshl2_add_u32 s3, s3, s4')
        a.emit('s_bfe_u32 s4, s2, 0x10002')
        a.emit(f's_lshr_b32 s5, s{S_CU}, 2')
        a.emit('s_lshl1_add_u32 s4, s5, s4')
        a.emit('s_lshl4_add_u32 s3, s3, s4')
        a.emit(f's_and_b32 s4, s{S_WV}, 3')
        a.emit('s_lshl2_add_u32 s3, s3, s4')
        a.emit('s_lshl_b32 s3, s3, 12')
        srd(a, SB, 'ws', WS_XP, 0 if 'fill0' in DBG else 4096)
        if 'fillfl' in DBG:
            srd(a, SB, 'ws0', WS_FL + MB, 4096)
            a.emit('s_and_b32 s3, s3, 0xfffff')
        a.emit(f's_add_u32 s{SB}, s{SB}, s3')
        a.emit(f's_addc_u32 s{SB+1}, s{SB+1}, 0')
        FW_ = int(ENV('FILLW', '2'))
        a.emit(f'v_mul_u32_u24 v29, {4 * FW_}, v1')
        for i in range(4): a.emit(f'v_mov_b32 v{24+i}, -1')
        fill = [f'buffer_store_dword{"x" + str(FW_)} v[24:{23 + FW_}], v29, s[{SB}:{SB+3}], 0 offen' + ('' if 'fillwb' in DBG else ' sc1'), f'v_add_u32 v29, {256 * FW_}, v29']
        assert sides.STV[3] == 0
    a.emit(f's_cmp_lg_u32 s{S_LAYER}, 0')
    a.emit(f's_cbranch_scc1 L_{kind}_ld1')
    post = list(sides.stouch_post(a, kind)) + fill
    SPF = [int(x) for x in ENV('SPF', '0,0,2').split(',')]
    def spf():
        hs = range(SPF[2])
        return ([f's_buffer_load_dword s84, s[{SX}:{SX+3}], s85 offset:{2048*r+64*h}' for r in range(2) for h in hs] +
                [f's_buffer_load_dword s84, s[{SW}:{SW+3}], s86 offset:{2048*p+64*h}' for p in range(3) for h in hs] +
                ['s_add_u32 s85, s85, 128', f's_add_u32 s86, s86, {64*ldw2}'])
    def spf_start():
        if not SPF[1]: return
        a.emit(f's_and_b32 s3, s{S_WV}, 3')
        a.emit(f's_lshl2_add_u32 s3, s{S_CU}, s3')
        a.emit('s_and_b32 s4, s2, 1')
        a.emit('s_bfe_u32 s5, s2, 0x20001')
        a.emit('s_lshl2_add_u32 s85, s4, s5')
        a.emit('s_lshl_b32 s85, s85, 7')
        a.emit('s_add_u32 s85, s85, s3')
        a.emit('s_lshl_b32 s85, s85, 12')
        a.emit(f's_add_u32 s85, s85, {128*SPF[0]}')
        a.emit('s_lshl_b32 s4, s4, 5')
        a.emit(f's_add_u32 s4, s4, s{S_CU}')
        a.emit(f's_add_u32 s4, s4, {64*SPF[0]}')
        a.emit(f's_mul_i32 s86, s4, {ldw2}')
        a.emit('s_and_b32 s3, s3, 3')
        a.emit('s_lshl2_add_u32 s3, s5, s3')
        a.emit('s_lshl_b32 s3, s3, 7')
        a.emit('s_add_u32 s86, s86, s3')
        for i in range(SPF[0], SPF[1]):
            for x in spf(): a.emit(x)
    if SPF[1]: post += spf()
    VPF = [int(x) for x in ENV('VPF', '0,0,1').split(',')]
    def vpf():
        k0, nk, hs = VPF
        if not nk: return 0
        a.emit(f's_and_b32 s3, s{S_WV}, 3')
        a.emit(f's_lshl2_add_u32 s3, s{S_CU}, s3')
        a.emit('s_and_b32 s4, s2, 1')
        a.emit('s_bfe_u32 s5, s2, 0x20001')
        a.emit('s_lshl2_add_u32 s85, s4, s5')
        a.emit('s_lshl_b32 s85, s85, 7')
        a.emit('s_add_u32 s85, s85, s3')
        a.emit('s_lshl_b32 s85, s85, 12')
        a.emit('s_lshl_b32 s4, s4, 7')
        a.emit('s_add_u32 s4, s4, s3')
        a.emit(f's_add_u32 s4, s4, {64*k0}')
        a.emit(f's_mul_i32 s86, s4, {ldw2}')
        a.emit('s_lshl_b32 s5, s5, 9')
        a.emit('s_add_u32 s86, s86, s5')
        a.emit('v_and_b32 v2, 15, v1')
        a.emit(f'v_min_u32 v3, {nk-1}, v2')
        a.emit('v_and_b32 v22, 16, v1')
        a.emit('v_add_lshl_u32 v22, v22, v3, 7')
        a.emit('v_min_u32 v2, 11, v2')
        a.emit('v_lshrrev_b32 v3, 2, v2')
        a.emit('v_and_b32 v2, 3, v2')
        a.emit('v_lshl_add_u32 v2, v3, 4, v2')
        a.emit('v_lshrrev_b32 v3, 4, v1')
        a.emit(f'v_min_u32 v3, {nk//4-1}, v3')
        a.emit(f'v_mul_u32_u24 v3, {256*ldw2}, v3')
        a.emit('v_lshl_add_u32 v23, v2, 7, v3')
        for h in range(hs):
            a.emit(f'buffer_load_dword v24, v23, s[{SW}:{SW+3}], s86 offen offset:{64*h}')
            a.emit(f'buffer_load_dword v25, v22, s[{SX}:{SX+3}], s85 offen offset:{128*k0+64*h}')
        return 2 * hs
    TG_ = int(ENV('TLBG', '0'))
    if TG_:
        srd(a, SO, 'ws0', 0, 256 * MB)
        a.emit(f's_and_b32 s3, s{S_WV}, 3')
        a.emit(f's_lshl2_add_u32 s3, s{S_CU}, s3')
        a.emit(f's_lshl_b32 s86, s3, {TG_}')
        tl = [f's_buffer_load_dword s84, s[{SO}:{SO+3}], s86', f's_add_u32 s86, s86, {128 << TG_}']
        if TG_ < 21: post += tl
    extra = tail_parks('wo', SP, lambda b: srd(b, SP, 'wo', 0, 2 * MB))
    sch0 = [int(c) for c in ENV('TSO0', '00000')]
    extra0 = tail_parks('wo', SP, lambda b: srd(b, SP, 'wo', 0, 2 * MB), sch0 + [sum(TSCH['wo']) - sum(sch0)])
    npk = 2 * sum(TSCH['wo']) if XD else 0
    def start():
        sides.cls_touch(a)
        if TG_:
            for x in tl: a.emit(x)
            a.emit(f's_and_b32 s3, s{S_WV}, 3')
            a.emit(f's_lshl2_add_u32 s3, s{S_CU}, s3')
            for w, sz in (('out', 4 * MB), ('wo', 2 * MB), ('w1', 7 * MB), ('b1', 4096), ('b2', 2048)):
                srd(a, SC, w, 0, sz)
                a.emit(f's_mul_i32 s4, s3, {sz // 128}')
                a.emit(f's_buffer_load_dword s84, s[{SC}:{SC+3}], s4')
        if ENV('DX', '2') != '1' or ENV('CLP', 'e') != 's': return 0
        srd(a, ST, 'ws0', WS_XP, LSTR + 4 * MB)
        a.emit('s_and_b32 s3, s2, 3')
        a.emit(f's_and_b32 s4, s{S_CU}, 3')
        a.emit('s_lshl2_add_u32 s3, s3, s4')
        a.emit('s_bfe_u32 s4, s2, 0x10002')
        a.emit(f's_lshr_b32 s5, s{S_CU}, 2')
        a.emit('s_lshl1_add_u32 s4, s5, s4')
        a.emit('s_lshl4_add_u32 s3, s3, s4')
        a.emit(f's_and_b32 s4, s{S_WV}, 3')
        a.emit('s_lshl2_add_u32 s3, s3, s4')
        a.emit('s_lshl_b32 s3, s3, 12')
        a.emit(f's_add_u32 s4, s3, {LSTR}')
        a.emit('v_lshlrev_b32 v2, 4, v1')
        for i in range(4): a.emit(f'v_mov_b32 v{32+i}, -1')
        for i in range(8): a.emit(f'buffer_store_dwordx4 v[32:35], v2, s[{ST}:{ST+3}], s{3+(i>>2)} offen offset:{1024*(i&3)} sc1')
        return 8
    final0 = None
    TL0 = int(ENV('TL0', '1' if DS else '0'))
    if DS:
        STQ0 = int(ENV('STQ0', '14'))
        assert HK[-1] < STQ0 <= 13 + TL0
        def start():
            nv = vpf()
            if sides.CE:
                assert sum(sides.CE.values()) == 8
                sides.cs_setup(a, SB, 95, 26)
                for x in sides.cs_at(-1): a.emit(x)
                nv += sides.CE.get(-1, 0)
            spf_start()
            sides.cls_touch(a)
            srd(a, ST, 'ws0', WS_ST0, 16 * 16384)
            stats4_setup(a, True)
            if D2:
                if CF == 2: a.emit('v_lshlrev_b32 v20, 2, v1')
                else: dbg_off(a, 20)
                a.emit(f's_and_b32 s{SC+1}, s{SC+1}, 0xffff')
                a.emit(f's_mov_b32 s{SC+2}, 256')
                a.emit(f's_mov_b32 s{SC+3}, 0x00020000')
            for x in pads.chain(-1): a.emit(x)
            return nv
        pl2 = f'buffer_load_dword v21, v20, s[{SC}:{SC+3}], 0 offen sc1'
        ck2 = ['s_mov_b32 s5, 0x100000', 'L_attn_dchk:', 'v_or_b32 v13, 0xfefefefe, v21', 'v_cmp_ne_u32 vcc, -1, v13', 's_cbranch_vccz L_attn_dok', 's_sub_u32 s5, s5, 1\n  ' + pl2,
               's_waitcnt vmcnt(0)', 's_cbranch_scc0 L_attn_dchk', 'L_attn_dok:'] if D2 else []
        PLS = int(ENV('PLS', '13'))
        if PLS > STQ0 - 3: ck2.insert(0, 's_waitcnt vmcnt(11)'); L.pre = {PLS: [pl2]}; assert PLS == 13
        extra0 = lambda i: (ck2 + stats4_loads(32, True) if i == STQ0 else [pl2] if D2 and i == PLS < 13 else []) + sides.cs_at(i) + sides.cs_acc(i) + pads.chain(i)
        def chk0():
            a.emit('v_cmp_u_f32 vcc, v32, v33')
            a.emit('v_cmp_u_f32 s[4:5], v48, v49')
            a.emit('s_or_b64 s[4:5], vcc, s[4:5]')
            a.emit('s_cbranch_scc0 L_attn_sok')
            a.emit(f's_sub_u32 s{S_CNT}, s{S_CNT}, 1')
            a.emit('s_cbranch_scc1 L_attn_sok')
            for x in stats4_loads(32, True): a.emit(x + (' sc1' if x.startswith('buf') else ''))
            a.emit('s_waitcnt vmcnt(0)')
            a.emit('s_branch L_attn_schk')
            a.label('L_attn_sok')
        def final0():
            a.emit(f's_mov_b32 s{S_CNT}, 0x4000')
            a.emit(f"s_waitcnt vmcnt({side(Asm(), 0, 'issue') + sum(n for e, n in sides.CE.items() if e >= STQ0)})")
            if CF and ENV('CFP', 'b') == 'a': a.emit(sides.CS_ST)
            a.label('L_attn_schk')
            stats4_store(a, 32, LST, True, chk0 if D2 else None)
            if CF and 15 in sides.CFS:
                for x in sides.cs_acc(15, True): a.emit(x)
                sides.cs_out(a, 100)
            if CF and ENV('CFP', 'b') == 'b': a.emit(sides.CS_ST)
            a.emit('s_waitcnt lgkmcnt(0)')
    L.pf0 = sides.PF0
    if ENV('PDL', '1,800') != '0': L.pad = tuple(int(x) for x in ENV('PDL', '1,800').split(','))
    L.run('0', tail_issue=lambda: side(a, 0, 'issue'), ntail_vm=side(Asm(), 0, 'issue'), post=post, start=start, extra=extra0, tail_late=TL0, final=final0, exfirst=True)
    if CF and ENV('CFP', 'b') == 'c': a.emit(sides.CS_ST)
    for i in (16,) if DS else (16, 17):
        if XD:
            for x in extra0(i): a.emit(x)
        if WE < 0 and PT != 2: a.emit('s_barrier')
    if XD:
        for x in extra0(18): a.emit(x)
    if ONE:
        a.emit(f's_branch L_{kind}_ldend')
    else:
        side(a, 0, 'finish')
        a.emit('s_endpgm')
    L.pre = {}; L.pad = None; L.pf0 = 0
    a.label(f'L_{kind}_ld1')
    if ',' in L.kord():
        L.ktable(int(L.kord().split(',')[1]))
        L.ot = int(ot); L.hx = HX - XH
        for x in ([] if ot else L.knext()): a.emit(x)
    srd(a, ST, 'ws0', WS_ST2, 16 * 16384)
    n1 = side(Asm(), 1, 'issue')
    def tail1():
        stats_loads(a, 32, True)
        side(a, 1, 'issue')
    def final1():
        a.emit(f's_waitcnt vmcnt({n1 + npk})')
        stats_reduce_store(a, 32, LST)
        a.emit('s_waitcnt lgkmcnt(0)')
    if T4:
        stats4_setup(a, True)
        TL1 = int(ENV('TL1', '0'))
        def final4():
            a.emit(f"s_waitcnt vmcnt({n1 if int(ENV('STQ', '14')) < 13 + TL1 < 15 else 0})")
            stats4_store(a, 32, LST, True, nan_chk(a, 'L_attn_t', True) if SF else None)
            a.emit('s_waitcnt lgkmcnt(0)')
        if ZD:
            srd(a, SC, 'ws0', WS_FL, FLS)
            a.emit('v_and_b32 v30, 3, v1')
            a.emit('v_lshlrev_b32 v30, 6, v30')
            a.emit(f's_mov_b32 s{S_CNT}, 0x100000')
        def zbar():
            xpoll(a, 'L_attn_x', SC, S_Q, 30, 12)
            a.emit('s_barrier')
        def pref1():
            if ZD == 'b': zbar()
            a.emit('s_waitcnt vmcnt(0)')
        if ZD == 'a': zbar()
        L.run('1', tail_issue=lambda: side(a, 1, 'issue'), ntail_vm=n1, tail_late=TL1, final=final4, extra=lambda i: stats4_loads(32, True) if i == int(ENV('STQ', '14')) else [],
              post=fill, dep=lambda pf: dep_wait(a, kind, halo=True, postf=pf, pref=pref1 if ot else None, preg=(lambda: a.emit('s_waitcnt vmcnt(6)')) if WG else None))
    else: L.run('1', tail_issue=tail1, ntail_vm=16 + n1, final=final1, extra=extra, post=fill, dep=(lambda pf: dep_wait(a, kind, halo=True, postf=pf)) if MEGA else None)
    if WE < 0 and PT != 2: a.emit('s_barrier')
    if not MEGA: side(a, 1, 'finish')
    a.label(f'L_{kind}_ldend')
    loader_end(a, kind, check=False)
    a.label(end)
    a.emit('s_endpgm')
    loader_first(a, kind)
    a(KD.format(name=f'{kind}l0_kernel'))
    if not MEGA:
        stub(a, f'{kind}l1_kernel', body, 1, tsidx + 4, False)
        a(KD.format(name=f'{kind}l1_kernel'))
    a.label(f'L_{kind}_c1')
    return LST + 1280
```

```python
from common import *

def ktab(a, vt, sh, P1, P2, tb):
    a.emit('v_and_b32 v2, 3, v1')
    a.emit('v_lshlrev_b32 v2, 3, v2')
    a.emit(f'v_bfe_i32 v{vt}, s{tb}, v2, 8')
    a.emit(f's_and_b32 s3, s{S_MT}, 3')
    a.emit(f's_mul_i32 s4, s3, {P2 // 4}')
    a.emit(f'v_add3_u32 v3, v{vt}, v1, s4')
    if P1 & (P2 - 1): a.emit(f'v_subrev_u32 v3, {P1}, v3')
    a.emit(f'v_and_b32 v3, {P2 - 1}, v3')
    if P1:
        MR = int(ENV('MR', '4'))
        if NV: a.emit(f'v_cmp_gt_u32 vcc, {NV}, v1')
        a.emit(f's_mul_i32 s3, s3, {MR // 4}')
        if NV:
            a.emit(f's_and_b32 s4, s{S_NT}, 1')
            a.emit(f'v_cndmask_b32_e64 v{vt+1}, {P1 - NV}, {NV}, vcc')
            a.emit(f'v_cndmask_b32_e64 v2, {P1 - 2 * NV}, {NV}, vcc')
            a.emit(f'v_add3_u32 v{vt}, v{vt}, v1, v2')
            for _ in range(2):
                a.emit(f'v_sub_u32 v2, v{vt}, v{vt+1}')
                a.emit(f'v_min_u32 v{vt}, v{vt}, v2')
            a.emit(f'v_cndmask_b32_e64 v2, {NV}, 0, vcc')
            a.emit(f'v_add_u32 v{vt}, v{vt}, v2')
        else:
            a.emit(f'v_add3_u32 v{vt}, v{vt}, v1, {P1}')
            a.emit(f's_bitcmp1_b32 s{S_NT}, 0')
            a.emit(f's_cselect_b32 s4, {P1}, 0')
            for _ in range(2):
                a.emit(f'v_subrev_u32 v2, {P1}, v{vt}')
                a.emit(f'v_min_u32 v{vt}, v{vt}, v2')
        if MR:
            a.emit(f'v_cmp_gt_u32 vcc, {MR}, v{vt}')
            a.emit(f'v_add_u32 v2, s3, v{vt}')
            a.emit(f'v_subrev_u32 v{vt+1}, {MR}, v2')
            a.emit(f'v_min_u32 v2, v{vt+1}, v2')
            a.emit(f'v_cndmask_b32 v{vt}, v{vt}, v2, vcc')
        a.emit(f'v_cmp_gt_u32 vcc, {P1}, v1')
        a.emit(f'v_lshl_add_u32 v{vt}, v{vt}, 1, s4' if NV else f'v_add_u32 v{vt}, s4, v{vt}')
        a.emit(f'v_add_u32 v3, {2 * P1}, v3')
        a.emit(f'v_cndmask_b32 v3, v3, v{vt}, vcc')
    a.emit(f'v_lshlrev_b32 v{vt}, {sh}, v3')

def ktab_ot(a, vt, sh, tb):
    KS = int(ENV('KS2', '2'))
    a.emit(f's_add_u32 s3, s{S_MT}, s{S_HD}')
    a.emit('s_and_b32 s3, s3, 3')
    for g in range(4):
        o = list(range(17))
        for t in range(KS + g, 14, 4): o[t:t + 3] = [t + 2, t, t + 1]
        assert o[0] == 0 and o[16] == 16
        v = sum(((t - o[t]) & 3) << (2 * t) for t in range(16))
        if g: a.emit(f's_cmp_eq_u32 s3, {g}')
        a.emit(f's_cselect_b32 s4, {v:#x}, s4' if g else f's_mov_b32 s4, {v:#x}')
    P1 = int(ENV('P1', '23')); P2 = 56 - 2 * P1
    a.emit('v_subrev_u32 v2, 3, v1')
    if P1 > 20: a.emit('v_min_u32 v2, 16, v2')
    a.emit('v_lshlrev_b32 v3, 1, v2')
    a.emit(f'v_bfe_i32 v{vt}, s4, v3, 2')
    a.emit(f'v_sub_u32 v{vt}, v1, v{vt}')
    a.emit(f'v_subrev_u32 v{vt}, {7 if P1 > 20 else 6}, v{vt}')
    if EF:
        a.emit(f'v_subrev_u32 v3, 7, v{vt}')
        a.emit(f'v_min_u32 v3, v3, v{vt}')
        a.emit(f'v_cmp_eq_u32 vcc, s{S_HD}, v3')
        a.emit(f's_and_b32 s3, s{S_NT}, 1')
        a.emit(f'v_cmp_lt_i32 s[4:5], 6, v{vt}')
        a.emit(f'v_cndmask_b32_e64 v3, v3, 7, vcc')
        a.emit('s_nop 0')
        a.emit('v_addc_co_u32 v2, vcc, v3, v3, s[4:5]')
    else:
        a.emit(f'v_ashrrev_i32 v3, 1, v{vt}')
        a.emit(f'v_cmp_eq_u32 vcc, s{S_HD}, v3')
        a.emit(f's_and_b32 s3, s{S_NT}, 1')
        a.emit(f'v_or_b32 v2, 14, v{vt}')
        a.emit(f'v_cndmask_b32 v2, v{vt}, v2, vcc')
    a.emit(f'v_cmp_gt_i32 vcc, 0, v{vt}')
    a.emit(f's_lshl2_add_u32 s4, s3, {20 if P1 > 20 else 19}')
    a.emit(f'v_add_u32 v{vt}, s4, v{vt}')
    a.emit('s_lshl4_add_u32 s4, s3, 24')
    a.emit('v_add_u32 v2, s4, v2')
    a.emit(f'v_cndmask_b32 v{vt}, v2, v{vt}, vcc')
    if P1 > 20:
        a.emit(f's_and_b32 s5, s{S_MT}, 3')
        a.emit(f"s_mul_i32 s5, s5, {ENV('RCM', '3')}")
        a.emit(f's_sub_u32 s5, s5, {P1}')
        a.emit('v_add_u32 v3, s5, v1')
        for _ in range(2):
            a.emit(f'v_subrev_u32 v2, {P2}, v3')
            a.emit('v_min_u32 v3, v3, v2')
        a.emit(f'v_cmp_gt_u32 vcc, {P1}, v1')
        a.emit(f's_sub_u32 s5, s3, {2 * P1}')
        a.emit('v_lshl_add_u32 v2, v1, 1, s5')
        a.emit('v_cndmask_b32 v3, v3, v2, vcc')
        a.emit(f's_add_u32 s5, s{S_HD}, {P1 - 20}')
        a.emit('v_ashrrev_i32 v2, 1, v3')
        a.emit('v_add_u32 v2, s5, v2')
        a.emit('v_and_b32 v2, 7, v2')
        a.emit('v_and_b32 v3, 1, v3')
        a.emit('v_cmp_gt_u32 vcc, 21, v1')
        a.emit('v_lshl_add_u32 v3, v3, 3, v2')
        a.emit(f's_lshl1_add_u32 s4, s{S_HD}, s4')
        a.emit(f's_lshl3_add_u32 s3, s3, s{S_HD}')
        a.emit(f'v_cndmask_b32 v3, v3, v{vt}, vcc')
        a.emit('v_writelane_b32 v3, s4, 0')
        a.emit('s_add_u32 s4, s4, 1')
        a.emit('v_writelane_b32 v3, s3, 2')
        a.emit('v_writelane_b32 v3, s4, 1')
        a.emit(f'v_lshlrev_b32 v{vt}, {sh}, v3')
        return
    a.emit('v_and_b32 v2, 3, v1')
    a.emit('v_lshlrev_b32 v2, 3, v2')
    a.emit(f'v_bfe_i32 v3, s{tb}, v2, 8')
    a.emit(f's_lshl2_add_u32 s5, s{S_MT}, 12')
    a.emit('v_add3_u32 v3, v3, v1, s5')
    a.emit('v_and_b32 v2, 7, v3')
    a.emit(f'v_cmp_eq_u32 vcc, s{S_HD}, v2')
    a.emit('v_bfe_u32 v2, v3, 3, 1')
    a.emit('v_lshl_add_u32 v2, v2, 2, 19')
    a.emit('v_and_b32 v3, 15, v3')
    a.emit('v_cndmask_b32 v3, v3, v2, vcc')
    a.emit('v_cmp_gt_u32 vcc, 20, v1')
    a.emit(f's_lshl1_add_u32 s4, s{S_HD}, s4')
    a.emit(f's_lshl3_add_u32 s3, s3, s{S_HD}')
    a.emit(f'v_cndmask_b32 v3, v3, v{vt}, vcc')
    a.emit('v_writelane_b32 v3, s4, 0')
    a.emit('s_add_u32 s4, s4, 1')
    a.emit('v_writelane_b32 v3, s3, 2')
    a.emit('v_writelane_b32 v3, s4, 1')
    a.emit(f'v_lshlrev_b32 v{vt}, {sh}, v3')

EVX, EVT, EVB = 24, 30, 27; EBIA = [4, 10, 124, 126]; ERING = [128, 144, 224, 64, 80, 240]
def w2_pre(a):
    P1 = int(ENV('P1', '23'))
    tile_map(a, 2, None, pair=True)
    rot_table(a, S_TB, S_MT, S_HD, 'w2')
    ktab(a, EVT, 11, P1, 56 - 2 * P1, S_TB)
    a.emit(f's_lshl_b32 s8, s{S_MT}, 7')
    a.emit(f's_lshl_b32 s9, s{S_WV}, 5')
    a.emit('s_add_u32 s8, s8, s9')
    a.emit('s_mul_i32 s9, s8, 7168')
    a.emit(f'v_lshl_add_u32 v{EVX}, v1, 4, s9')
    a.emit(f'v_add_u32 v{EVX+1}, {16*7168}, v{EVX}')
    a.emit('v_lshrrev_b32 v2, 4, v1')
    a.emit(f's_lshl_b32 s10, s{S_NT}, 7')
    a.emit(f'v_lshl_add_u32 v{EVB}, v2, 3, s10')

def w2_early(a):
    NG = int(ENV('NG2', '3'))
    for x in range(NG): a.emit(f'v_readlane_b32 s{SR+x}, v{EVT}, {x}')
    srd(a, SB, 'b2', 0, 2048)
    srd(a, SX, 'ws', WS_H, 2048 * 7168)
    for jn in range(4):
        a.emit(f'buffer_load_dwordx2 v[{EBIA[jn]}:{EBIA[jn]+1}], v{EVB}, s[{SB}:{SB+3}], 0 offen offset:{jn*32}')
    for x in range(NG):
        for ks in range(2):
            for jm in range(2):
                r = ERING[x] + (ks * 2 + jm) * 4
                a.emit(f'buffer_load_dwordx4 v[{r}:{r+3}], v{EVX+jm}, s[{SX}:{SX+3}], s{SR+x} offen offset:{ks*1024}')

def gen_gemm64y(a, kind, tsidx, side):
    K = 1024 if kind == 'wo' else 3584
    lda2 = K * 2; ldw2 = 2048
    N = K // 64
    P1 = int(ENV('P1', '23')) if kind == 'w2' else 0
    P2 = N - 2 * P1
    B16 = ENV('XB16', '1') == '1'
    NXC = 4 if B16 else 8; CH = NXC * 1024
    G0, GW = (131072, 28672) if kind == 'wo' else (0, 0)
    def slot(t):
        if kind == 'wo' and 'w1' in OT: return 28672 + 8192 * t + (4096 if t >= 12 else 0)
        g = G0 + (t >> 2) * 32768
        if g >= 163840: g = GW + (g - 163840) % (163840 - GW)
        return g + (t & 3) * 8192
    XB = 131072
    HR = int(ENV('HR', '6')) if P1 else 0
    sched = [(t >> 1, t & 1) for t in range(2 * (P1 - HR))] + [(x, u) for u in (0, 1) for x in range(P1 - HR, P1)] + [(x, 1) for x in range(P1, P1 + P2)]
    MC = int(ENV('MC', '1')) if P1 else int(ENV('MCO', '1'))
    prd = set()
    if MC == 4:
        sg = [int(c) for c in ENV('SG4', '0').split(',')] if P1 else []
        x = 0
        while x < P1 - HR:
            if x not in sg: sched[2 * x + 1], sched[2 * x + 2] = sched[2 * x + 2], sched[2 * x + 1]; prd |= set(range(2 * x, 2 * x + 4)); x += 1
            x += 1
        assert x == P1 - HR and not HR & 1
        prd |= set(range(2 * x + int(ENV('PA4' + kind[1].upper(), '0')), N - int(ENV('PE4' + kind[1].upper(), '0' if P1 else '2'))))
    up = lambda t: t | 1 if t in prd else t
    TU = 2 * P1 - max(HR, 1)
    NPRE = int(ENV('NPREO', '16')) if kind == 'wo' else int(ENV('NPRE', '20'))
    PSTEP = 64 if kind == 'w2' else 1024
    body = f'L_{kind}_body'; end = f'L_{kind}_end'
    VXO, VWB, VWA, VO, VT, VE = 4, 6, 26, 12, 15, 19
    XR = 32; FW = [160, 192]; ACC = [128, 96]; D = 240; BIA = 192
    SPC = NV if P1 else 0
    BIA = [BIA + 2 * jn for jn in range(4)]
    if SPC: VXO, VT, ACC, BIA = EVX, EVT, [32, 96], EBIA
    ot = kind == 'w2' and 'w2' in OT
    if ot: BIA = OBIA; assert P1 >= 20 and not SPC
    acc = lambda jn, jm, u=1: ACC[u] + (jn * 2 + jm) * 4
    fx = lambda r, ks, jm: XR + 16 * r + (ks * 2 + jm) * 4
    fw = lambda s, ks, jn: FW[s] + (ks * 4 + jn) * 4
    a.label(f'L_{kind}_c0')
    a.label(body)
    tile_map(a, 2, end, pair=True)
    rot_table(a, S_TB, S_MT, S_HD, kind)
    a.emit(f's_cmp_ge_u32 s{S_WV}, 4')
    a.emit(f's_cbranch_scc1 L_{kind}_loader')
    if ot:
        a.emit(f's_lshl_b32 s3, s{S_WV}, 12')
        a.emit(f's_add_u32 s3, s3, {OHB}')
        a.emit('v_lshl_add_u32 v2, v1, 4, s3')
        for i in range(12): a.emit(f'ds_read_b128 v[{32+4*i}:{35+4*i}], v2 offset:{(i>>2)*16384+(i&1)*2048+(i&2)*512}')
        ktab_ot(a, VT, 11, S_TB)
        if 'xhit' in DBG: a.emit(f'v_and_b32 v{VT}, 0x1800, v{VT}')
        if ENV('RE', '1') == '1' and not EF:
            a.emit('s_waitcnt lgkmcnt(0)')
            a.emit('s_barrier')
    elif SPC: tile_map(a, 2, None, pair=True)
    else: ktab(a, VT, 11, P1, P2, S_TB)
    a.emit('v_and_b32 v3, 15, v1')
    a.emit('v_lshrrev_b32 v2, 4, v1')
    a.emit(f's_lshl_b32 s8, s{S_MT}, 7')
    a.emit(f's_lshl_b32 s9, s{S_WV}, 5')
    a.emit('s_add_u32 s8, s8, s9')
    a.emit(f's_mul_i32 s9, s8, {lda2}')
    if 'xsm' in DBG:
        a.emit('s_and_b32 s9, s8, 0x67f')
        a.emit(f's_mul_i32 s9, s9, {lda2}')
    if not SPC and ENV('TID', '1') != '1':
        a.emit(f'v_lshl_add_u32 v{VXO}, v1, 4, s9')
        a.emit(f'v_add_u32 v{VXO+1}, {16*lda2}, v{VXO}')
    E2 = ot and EF == 2
    if E2: xpitch(a, 7, True)
    iB = len(a.lines)
    a.emit('v_add_u32 v13, s8, v3')
    a.emit(f's_lshl_b32 s10, s{S_NT}, 7')
    a.emit('v_lshl_add_u32 v14, v2, 3, s10')
    a.emit('v_and_b32 v16, 1, v2')
    a.emit('v_lshrrev_b32 v17, 1, v2')
    if kind == 'w2':
        a.emit('v_lshlrev_b32 v16, 5, v16')
        a.emit('v_lshl_add_u32 v16, v17, 4, v16')
        if 'attn' in OT:
            a.emit('v_lshlrev_b32 v4, 3, v3')
            a.emit('v_and_b32 v4, 0x70, v4')
            a.emit('v_xor_b32 v4, v4, v16')
            a.emit('v_lshl_add_u32 v4, v3, 7, v4')
            a.emit(f's_lshl_b32 s3, s{S_WV}, 12')
            a.emit('v_add_u32 v4, s3, v4')
            a.emit('v_xor_b32 v5, 64, v4')
        a.emit('v_add_u32 v16, s10, v16')
        if not E2: xpitch(a, 7, True)
        a.emit(f'v_mad_u32_u24 v{VO}, v13, s7, v16')
    else:
        if 'w1' in NS: a.emit('v_lshlrev_b32 v16, 4, v1')
        else:
            a.emit('v_lshl_add_u32 v16, v16, 1, v17')
            a.emit('v_lshlrev_b32 v16, 8, v16')
            a.emit('v_lshl_add_u32 v16, v3, 4, v16')
        a.emit(f's_add_u32 s9, s8, s{S_NT}')
        a.emit('s_lshl_b32 s9, s9, 11')
        a.emit(f'v_add_u32 v{VO}, s9, v16')
        if 'w1' in OT:
            a.emit(f's_lshl_b32 s9, s{S_WV}, 12')
            a.emit(f'v_add_u32 v{VE}, s9, v16')
    a.emit('v_lshl_add_u32 v18, v17, 4, v13')
    a.emit('v_lshlrev_b32 v18, 3, v18')
    a.emit('v_and_b32 v16, 1, v2')
    a.emit('v_lshl_add_u32 v18, v16, 2, v18')
    a.emit(f's_lshl_b32 s10, s{S_NT}, 14')
    a.emit('v_add_u32 v18, s10, v18')
    nr = kind in NS and NSR
    wbase(a, VWB, 17, nr=nr)
    for i in range(1, 4): a.emit(f'v_xor_b32 v{VWB+i}, {32*i}, v{VWB}')
    a.emit('s_mov_b32 s11, 0xffff0000')
    if E2: bl = a.lines[iB:]; del a.lines[iB:]
    if kind == 'wo':
        srd(a, SX, 'ws', WS_O, 4 * MB)
        srd(a, SO, 'ws', WS_X1, 4 * MB)
    else:
        if not SPC:
            if not ot: srd(a, SB, 'b2', 0, 2048)
            for jn in range(0 if ot else 4):
                a.emit(f'buffer_load_dwordx2 v[{BIA[jn]}:{BIA[jn]+1}], v14, s[{SB}:{SB+3}], 0 offen offset:{jn*32}')
            srd(a, SX, 'ws', WS_H, 2048 * 7168)
        srd(a, SO, 'out', 0, 4 * MB)
        srd(a, SR, 'ws0', WS_X2, 4 * MB)
        a.emit(f's_cmp_eq_u32 s{S_LAYER}, 0')
        a.emit(f's_cselect_b64 s[{SO}:{SO+1}], s[{SR}:{SR+1}], s[{SO}:{SO+1}]')
        a.emit(f's_lshl_b32 s{SO+2}, s7, 11')
        if E2:
            for x in range(3, 5): a.emit(f'v_readlane_b32 s{SR+(x&3)}, v{VT}, {x}')
    if not E2: srd(a, ST, 'ws', WS_ST if kind == 'wo' else WS_ST2, 16 * 16384)
    TID = ENV('TID', '1') == '1'
    if TID:
        a.emit(f's_mul_i32 s9, s8, {lda2}')
        a.emit(f's_add_u32 s{SX}, s{SX}, s9')
        a.emit(f's_addc_u32 s{SX+1}, s{SX+1}, 0x100000')
        a.emit(f's_add_u32 s{SC}, s{SX}, {16 * lda2}')
        a.emit(f's_addc_u32 s{SC+1}, s{SX+1}, 0')
        for r in (SX, SC):
            a.emit(f's_mov_b32 s{r+2}, {16 * lda2}')
            a.emit(f's_mov_b32 s{r+3}, 0x00800000')
    if E2:
        RB = int(ENV('RB', '0'))
        a.lines += bl[:RB]
        a.emit('s_waitcnt vmcnt(0) lgkmcnt(0)')
        a.emit('s_barrier')
        iR = len(a.lines)
        a.lines += bl[RB:]
        srd(a, ST, 'ws', WS_ST2, 16 * 16384)
    if kind == 'wo':
        if ENV('CT2', 'l') == 'l': code_touch(a, 'L_w1_c0', 'L_w1_c1', 128, SW)
        elif ENV('CT2') == 'o': code_touch(a, 'L_w2_c0', 'L_w2_c1', 192, SW)
        else: code_touch(a, 'L_w1_c0', 'L_w2_c1', 320, SW)
    DX = int(ENV('DX', '2'))
    CLW = DX == 1 and not P1 and ENV('CLP', 'e') == 'w'
    if CLW:
        for i in range(4): a.emit(f'v_mov_b32 v{128+i}, -1')
    if (P1 and DX) or CLW:
        srd(a, SP, 'ws', WS_XP, 4 * MB)
        a.emit(f's_or_b32 s{SP+1}, s{SP+1}, 0x100000')
        a.emit(f's_mov_b32 s{SP+3}, 0x00800000')
        a.emit(f's_lshl4_add_u32 s4, s{S_MT}, s{S_NT}')
        a.emit(f's_lshl2_add_u32 s4, s4, s{S_WV}')
        if DX == 2:
            srd(a, SB, 'ws0', WS_FL, FLS)
            a.emit(f's_add_u32 s6, s{S_LAYER}, 4')
            a.emit('s_lshl_b32 s6, s6, 10')
            a.emit('s_add_u32 s6, s6, s4')
            a.emit('s_lshl_b32 s6, s6, 6')
            a.emit(f'v_mov_b32 v{VE}, 1')
        a.emit('s_lshl_b32 s4, s4, 12')
        a.emit('s_xor_b32 s5, s4, 16384')
    elif P1:
        a.emit(f's_mul_i32 s3, s{S_WV}, {CH}')
        a.emit(f's_add_u32 s3, s3, {XB}')
        a.emit(f'v_lshl_add_u32 v{VE}, v1, 4, s3')
    if P1 and not ot:
        for i in range(32): a.emit(f'v_mov_b32 v{ACC[0]+i}, 0')
    bases = []
    for t in sorted(range(min(N, 20)), key=slot):
        if not bases or slot(t) + 8191 - bases[-1] > 65535: bases.append(slot(t))
    VSET = [VWB, 20, 26]
    for k in (2, 1, 0):
        for i in range(4):
            if bases[k] or k: a.emit(f'v_add_u32 v{VSET[k]+i}, {bases[k]}, v{VWB+i}')
    xof = lambda t: sched[t][0]
    NX = P1 + P2
    last = lambda x: up(sched.index((x, 1)))
    def xl(x, reg):
        if TID: return [(f'buffer_load_dwordx4 v[{reg+(ks*2+jm)*4}:{reg+(ks*2+jm)*4+3}], off, s[{(SX, SC)[jm]}:{(SX, SC)[jm]+3}], s{SR+(x&3)} offset:{ks*1024}', 'V', ('x', x, ks))
                for ks in range(2) for jm in range(2)]
        return [(f'buffer_load_dwordx4 v[{reg+(ks*2+jm)*4}:{reg+(ks*2+jm)*4+3}], v{VXO+jm}, s[{SX}:{SX+3}], s{SR+(x&3)} offen offset:{ks*1024}', 'V', ('x', x, ks))
                for ks in range(2) for jm in range(2)]
    def reads(t):
        o = []
        if t in prd:
            for j in range(2):
                for q in range(4):
                    sl = slot((t & ~1) + (q >> 1)); k = max(i for i, b in enumerate(bases) if b <= sl)
                    for h in range(2):
                        d = fw(t & 1, j, q) + 2 * h
                        o.append((f'ds_read_b64_tr_b16 v[{d}:{d+1}], v{VSET[k]+2*(t&1)+j} offset:{sl-bases[k]+(q&1)*4096+h*(2048 if nr else 512)}', 'L', ('w', t, j)))
            return o
        k = max(i for i, b in enumerate(bases) if b <= slot(t))
        for ks in range(2):
            for jn in range(4):
                for h in range(2):
                    d = fw(t & 1, ks, jn) + 2 * h
                    o.append((f'ds_read_b64_tr_b16 v[{d}:{d+1}], v{VSET[k]+jn} offset:{slot(t)-bases[k]+ks*4096+h*(2048 if nr else 512)}', 'L', ('w', t, jn >> 1 if MC else ks)))
        if MC: o.sort(key=lambda y: y[2][2])
        return o
    xreg = {}
    def mf(t):
        o = []
        if t in prd:
            for j in range(2):
                for i in range(8):
                    q = i if i < 4 else 7 - i; jm = (i >> 2) ^ j
                    c = acc(2 * (t & 1) + j, jm, sched[t][1]); x = xreg[xof((t & ~1) + (q >> 1))] + ((q & 1) * 2 + jm) * 4
                    o.append(f'v_mfma_f32_16x16x32_bf16 v[{c}:{c+3}], v[{fw(t&1,j,q)}:{fw(t&1,j,q)+3}], v[{x}:{x+3}], v[{c}:{c+3}]')
            return o
        if MC:
            od = [(0, 0, 0), (1, 0, 0), (1, 0, 1), (0, 0, 1), (0, 1, 1), (1, 1, 1), (1, 1, 0), (0, 1, 0)] if MC != 2 else [(0, 0, 0), (0, 0, 1), (0, 1, 1), (0, 1, 0), (1, 1, 0), (1, 1, 1), (1, 0, 1), (1, 0, 0)]
            seen = set()
            if not CKN: od = [(i & 1, n, m) for i, (k, n, m) in enumerate(od)]
            od += [(k, n + 2, m) for k, n, m in (od if MC != 2 else [(1 - k, n, m) for k, n, m in od])]
            if MS and not P1 and t == N - 1: od = [((i ^ k) & 1, n, m) for i, (n, m) in enumerate([(0, 0), (1, 0), (1, 1), (0, 1), (2, 0), (3, 0), (3, 1), (2, 1)]) for k in range(2)]
            for ks, jn, jm in od:
                c = acc(jn, jm, sched[t][1]); x = xreg[xof(t)] + (ks * 2 + jm) * 4
                o.append(f'v_mfma_f32_16x16x32_bf16 v[{c}:{c+3}], v[{fw(t&1,ks,jn)}:{fw(t&1,ks,jn)+3}], v[{x}:{x+3}], ' + ('0' if ot and t == 0 and c not in seen else f'v[{c}:{c+3}]'))
                seen.add(c)
            return o
        for ks in range(2):
            for jn, jm in mf_order(4, 2):
                if True:
                    c = acc(jn, jm, sched[t][1]); x = xreg[xof(t)] + (ks * 2 + jm) * 4
                    o.append(f'v_mfma_f32_16x16x32_bf16 v[{c}:{c+3}], v[{fw(t&1,ks,jn)}:{fw(t&1,ks,jn)+3}], v[{x}:{x+3}], ' + ('0' if ot and t == ks == 0 else f'v[{c}:{c+3}]'))
        return o
    U = kind[1].upper()
    NG = int(ENV('NG' + U, '3'))
    ring = [32, 48, 64, 80, 224, 240][:int(ENV('RING' + U, '6' if P1 else '4'))]
    NB = 2 if E2 else int(ENV('NB', '3'))
    if SPC: ring = ERING
    elif ot:
        assert NG == 3
        for x in range(3, 3 if E2 else 3 + NB): a.emit(f'v_readlane_b32 s{SR+(x&3)}, v{VT}, {x}')
    else:
        for x in range(NG): a.emit(f'v_readlane_b32 s{SR+x}, v{VT}, {x}')
    for i in range(0 if kind == 'w2' and 'w1' in NS else 4):
        for h in range(2): a.emit(f'v_permlane16_swap_b32 v{D+4*i+h}, v{D+4*i+2+h}')
    TF = int(ENV('TF', '-1')); TG = int(ENV('TG', '15'))
    import pads
    for x in pads.chain('hg') if kind == 'wo' else []: a.emit(x)
    a.emit('s_waitcnt lgkmcnt(0)' + (f' vmcnt({4 * NG + 4 if EX == 14 else 0})' if SPC and TF < 0 else ''))
    if not (ot and ENV('RE', '1') == '1'): a.emit('s_barrier')
    pre = []
    for x in range(NG):
        xreg[x] = ring[x]; pre += xl(x, ring[x])
    if SPC: pre = [('', k, tg) for _, k, tg in pre] + [('', 'V', 'st')] * (14 - EX)
    if ot: pre = [('', 'L', tg) for _, k, tg in pre] + [('', 'V', 'st')] * (EF == 1)
    if E2:
        xe = xl(3, ring[3]) + xl(4, ring[4])
        XD_ = int(ENV('XED', '8'))
        for i, y in enumerate(xe): a.lines.insert(iR + i * (XD_ + 1), '  ' + y[0])
        pre += [('', k, tg) for _, k, tg in xe]
    pre += reads(0)
    P = lambda x: (x, '', None)
    if kind == 'w2' and not ot: pre.append(P(f's_waitcnt vmcnt({len(pre) - 16})'))
    for jn in range(4):
        if kind == 'w2':
            for h in range(2):
                pre.append(P(f'v_lshlrev_b32 v{216+2*h}, 16, v{BIA[jn]+h}'))
                pre.append(P(f'v_and_b32 v{217+2*h}, s11, v{BIA[jn]+h}'))
        for jm in range(2):
            c = acc(jn, jm); r = D + (jm * 4 + jn) * 2
            for h in range(2):
                pre.append(P(f'v_lshlrev_b32 v{c+2*h}, 16, v{r+h}'))
                pre.append(P(f'v_and_b32 v{c+2*h+1}, s11, v{r+h}'))
                if kind == 'w2': pre.append(P(f'v_pk_add_f32 v[{c+2*h}:{c+2*h+1}], v[{c+2*h}:{c+2*h+1}], v[{216+2*h}:{217+2*h}]'))
    pre.append(('', 'W', [('w', 0, 0), ('x', 0, 0)] + [('x', xof(up(0)), 1)] * bool(MC)))
    if TS:
        b = Asm(); stamp(b, 1); pre += [P(l.strip()) for l in b.lines]
    gp = [[] for _ in range(16 * N + 1)]
    waits = {}
    for t in range(N):
        if t + 1 < N:
            for i, x in enumerate(reads(t + 1)): gp[16 * t + i].append(x)
        for g, tt, ks in ((16 * t + 7, t, 1), (16 * t + 15, t + 1, 0)):
            if tt < N:
                waits[g] = [('w', tt, ks), ('x', xof(up(tt)), 1 if MC else ks)]
                gp[g].append(('', 'W', waits[g]))
    def put(g, x, cap=2):
        while len(gp[g]) >= cap and g < 16 * N: g += 1
        gp[g].append(x); return g
    BP = int(ENV('BP', '4'))
    ZS = int(ENV('ZS', '50' if DX else '54')) if P1 else N - 1
    XS = int(ENV('XS', '43' if DX else '41'))
    PS = int(ENV('PS', '0'))
    bars = list(range(BP - 1, min(2 * P1, XS), BP)) + [XS] + ([PS] if PS else []) + ([] if DX == 1 else [ZS]) if P1 else [int(x) for x in ENV('BWO', '3,10' if 'w1' in OT else '3,7,12').split(',')]
    if SPC:
        bars = [TF] + [t for t in bars if t > TF + 1]
        assert TG in bars
        if EX < 14 and TF >= 0: waits[16 * TF + 7].append('st')
    if ot: bars = [int(x) for x in ENV('BW2', ['2,7', '1,7', '3,7'][EF]).split(',')] + bars[2:]
    TG2 = int(ENV('TG2', '11'))
    if ot and EF == 1: waits[16 * bars[0] + 7].append('st')
    if ot and EF: assert TG2 in bars
    for t in bars:
        if t >= 0: gp[16 * t + 7].append(P('s_barrier'))
    G = ACC[0]; GI = G + 16 if B16 else G
    pool = [[r, -1 if i >= NG else 16 * last(i) + 15, N] for i, r in enumerate(ring)]
    if P1:
        for i in range(int(ENV('RINGX', '0'))): pool.append([G + 16 * i, 16 * XS + 7, ZS])
    SP1 = int(ENV('SP1', '6')); SP2 = int(ENV('SP2', '3'))
    g = 0
    for x in range(NG, NX):
        sl = min((p for p in pool if last(x) < p[2]), key=lambda p: p[1])
        xreg[x] = sl[0]
        if SPC and x == SPC: g = max(g, 16 * TG + 7)
        if ot and EF and x == 11: g = max(g, 16 * TG2 + 7)
        if E2 and x < 5:
            assert sl[0] == ring[x]
            sl[1] = 16 * last(x) + 15
            continue
        if ot and x < 3 + NB:
            g = 16 * bars[0] + 7
            gp[g] += xl(x, sl[0]); sl[1] = 16 * last(x) + 15; g += 3
            continue
        g = put(max(g - 2, sl[1] - 2, 0), P(f'v_readlane_b32 s{SR+(x&3)}, v{VT}, {x}')) + 3
        sp = SP1 if len(ring) + (int(ENV('CU2', '2')) if ot else 0) <= x and g < 16 * int(ENV('SPE', str(TU + 1))) else SP2
        sps = [int(c) for c in ENV('SP3', '4')] if P1 and 12 <= x and sp == SP2 else [sp]
        for i, y in enumerate(xl(x, sl[0])): g = put(max(g, sl[1] + 1), y) + sps[i % len(sps)]
        sl[1] = 16 * last(x) + 15
    for i in range(4): put(16 * (N - 1), P(f'v_mov_b32 v{20+i}, 0'))
    if CLW:
        g = max(g, int(16 * float(ENV('CLG', '0'))))
        for i in range(4): g = put(g, (f'buffer_store_dwordx4 v[128:131], off, s[{SP}:{SP+3}], s4 offset:{1024*i} sc1', 'V', 'cl')) + int(ENV('CLD', '2'))
    def xld(i): return f'buffer_load_dwordx4 v[{GI+4*i}:{GI+4*i+3}], off, s[{SP}:{SP+3}], s5 offset:{1024*i} sc1'
    def vmax(d, r):
        return [f'v_max3_u32 v{d}, v{r}, v{r+1}, v{r+2}'] + [f'v_max3_u32 v{d}, v{d}, v{r+j}, v{r+j+1}' for j in range(3, 15, 2)] + [f'v_max_u32 v{d}, v{d}, v{r+15}', f'v_cmp_eq_u32 vcc, -1, v{d}']
    if P1 and DX:
        g = 16 * TU + 2
        for i in range(4):
            for j in range(4 * i, 4 * i + 4): g = put(g, P(f'v_cvt_pk_bf16_f32 v{G+j}, v{G+2*j}, v{G+2*j+1}'))
            put(max(g + 1, 16 * TU + 6 + i * int(ENV('XWS', '0'))), (f'buffer_store_dwordx4 v[{G+4*i}:{G+4*i+3}], off, s[{SP}:{SP+3}], s4 offset:{1024*i} sc1', 'V', 'xw'))
        g = int(16 * float(ENV('RS', '50')))
        if DX == 2:
            g = put(int(16 * float(ENV('FS', '44'))), ('', 'W', ['xw']))
            put(g, (f'buffer_store_dword v{VE}, off, s[{SB}:{SB+3}], s6 sc1', 'V', 'xf'))
            g = 16 * ZS + 8
        for i in range(4): g = put(g, (xld(i), 'V', 'xr')) + int(ENV('RSP', '2'))
        g = put(int(16 * float(ENV('VS', '53.5' if DX == 1 else '54'))), ('', 'W', ['xr']))
        if DX == 1:
            for y in vmax(VE, GI): g = put(g, P(y))
            g = put(g + 1, P(f's_cbranch_vccnz L_{kind}_xrt\nL_{kind}_xok:'))
        for i in range(16):
            g = put(g, P(f'v_lshlrev_b32 v{G+2*i}, 16, v{GI+i}'), 2 if g < 16 * (N - 1) else 3)
            g = put(g, P(f'v_and_b32 v{G+2*i+1}, s11, v{GI+i}'), 2 if g < 16 * (N - 1) else 3)
    elif P1:
        g = 16 * (2 * P1 - 1) + 2
        for i in range(NXC):
            if B16:
                for j in range(4 * i, 4 * i + 4): g = put(g, P(f'v_cvt_pk_bf16_f32 v{G+j}, v{G+2*j}, v{G+2*j+1}'))
            gw = put(max(g + 1, 16 * (2 * P1 - 1) + 8 + 2 * i), (f'ds_write_b128 v{VE}, v[{G+4*i}:{G+4*i+3}] offset:{1024*i}', 'L', 'xw'))
        assert gw < 16 * XS + 7
        waits[16 * XS + 7].append('xw')
        g = 16 * ZS + 8
        for i in range(NXC): g = put(g, (f'ds_read_b128 v[{GI+4*i}:{GI+4*i+3}], v{VE} offset:{1024*i}', 'L', 'xr')) + 1
        g = put(max(g + 6, 16 * (N - 1)), ('', 'W', ['xr']))
        if B16:
            for i in range(16):
                g = put(g, P(f'v_lshlrev_b32 v{G+2*i}, 16, v{GI+i}'), 3)
                g = put(g, P(f'v_and_b32 v{G+2*i+1}, s11, v{GI+i}'), 3)
    XG = int(ENV('XG', '1'))
    if XG:
        isr = lambda y: y[1] == 'L' and y[2][0] == 'w'
        for g in range(16 * N - 1):
            if len(gp[g]) == 2 and gp[g][1][1] == 'V' and isr(gp[g][0]):
                for d in ((1, -1) if XG == 1 else (-1, 1)):
                    if len(gp[g + d]) == 1 and isr(gp[g + d][0]) and (d > 0 or g & 15):
                        gp[g + d].insert(0 if d > 0 else 1, gp[g].pop(0)); break
    lin = list(pre)
    for t in range(N):
        for i, m in enumerate(mf(t)):
            lin.append(P(m)); lin += gp[16 * t + i]
        if TS and t == int(ENV('ST2', '99')):
            b = Asm(); stamp(b, 2); lin += [P(l.strip()) for l in b.lines]
    lin += gp[16 * N]
    nbc = [0]
    def nb2():
        nbc[0] += 1; return 2 < nbc[0] < len(bars)
    iss = {'L': [], 'V': []}; done = {'L': -1, 'V': -1}
    for txt, k, tag in lin:
        if k == 'W':
            o = []
            for c, nm, mx in (('V', 'vmcnt', 63), ('L', 'lgkmcnt', 15)):
                idx = [i for i, x in enumerate(iss[c]) if x in tag]
                if idx and max(idx) > done[c]:
                    n = min(mx, len(iss[c]) - 1 - max(idx)); done[c] = len(iss[c]) - 1 - n
                    o.append(f'{nm}({n})')
            assert all(x in iss['L'] or x in iss['V'] for x in tag), tag
            if o: a.emit('s_waitcnt ' + ' '.join(o))
            continue
        if k: iss[k].append(tag)
        if 'nox2' in DBG and P1 and k == 'V' and tag[0] == 'x' and len(tag) == 3: continue
        if 'nobar2' in DBG and P1 and txt == 's_barrier' and nb2(): continue
        if ('nox' in DBG and k == 'V') or ('nomfma' in DBG and 'mfma' in txt) or not txt: continue
        a.emit(txt)
    if int(ENV('ST2', '99')) >= N: stamp(a, 2)
    a.emit(f's_mov_b32 s3, {16*2048}' if kind == 'wo' else 's_lshl_b32 s3, s7, 4')
    a.emit('s_mov_b32 s10, 0x3f803f80')
    a.emit('s_nop 4')
    for jm in range(2):
        for p in range(2):
            d = D + (jm * 2 + p) * 4
            for q in range(2):
                c = acc(2 * p + q, jm); g = acc(2 * p + q, jm, 0)
                if P1:
                    for h in range(2): a.emit(f'v_pk_add_f32 v[{c+2*h}:{c+2*h+1}], v[{c+2*h}:{c+2*h+1}], v[{g+2*h}:{g+2*h+1}]')
                a.emit(f'v_cvt_pk_bf16_f32 v{d+2*q}, v{c}, v{c+1}')
                a.emit(f'v_cvt_pk_bf16_f32 v{d+2*q+1}, v{c+2}, v{c+3}')
            if not (kind == 'wo' and 'w1' in NS):
                a.emit('s_nop 1')
                a.emit(f'v_permlane16_swap_b32 v{d}, v{d+2}')
                a.emit(f'v_permlane16_swap_b32 v{d+1}, v{d+3}')
            a.emit(f'buffer_store_dwordx4 v[{d}:{d+3}], v{VO}, s[{SO}:{SO+3}], {"s3" if jm else "0"} offen offset:{p*PSTEP}{stf(kind)}')
            if kind == 'w2' and 'attn' in OT: a.emit(f'ds_write_b128 v{4+p}, v[{d}:{d+3}] offset:{jm*2048}')
            if kind == 'wo' and 'w1' in OT: a.emit(f'ds_write_b128 v{VE}, v[{d}:{d+3}] offset:{jm*2048+p*1024}')
    for jm in range(2):
        for i in range(8):
            d = D + jm * 8 + i
            a.emit(f'v_dot2_f32_bf16 v{20+jm}, v{d}, s10, v{20+jm}')
            a.emit(f'v_dot2_f32_bf16 v{22+jm}, v{d}, v{d}, v{22+jm}')
    a.emit('s_nop 2')
    a.emit('v_permlane32_swap_b32 v20, v21')
    a.emit('v_permlane32_swap_b32 v22, v23')
    a.emit('v_add_f32 v20, v20, v21')
    a.emit('v_add_f32 v22, v22, v23')
    a.emit('s_nop 1')
    a.emit('v_permlane16_swap_b32 v20, v22')
    a.emit('v_add_f32 v20, v20, v22')
    a.emit(f'buffer_store_dword v20, v18, s[{ST}:{ST+3}], 0 offen{stf(kind)}')
    compute_end(a, kind)
    if P1 and DX == 1:
        a.label(f'L_{kind}_xrt')
        a.emit('s_mov_b32 s6, 0x40000')
        a.label(f'L_{kind}_xrl')
        for i in range(4): a.emit(xld(i))
        a.emit('s_sub_u32 s6, s6, 1')
        a.emit('s_waitcnt vmcnt(0)')
        a.emit(f's_cbranch_scc1 L_{kind}_xok')
        for y in vmax(VE, GI): a.emit(y)
        a.emit(f's_cbranch_vccnz L_{kind}_xrl')
        a.emit(f's_branch L_{kind}_xok')
    a.label(f'L_{kind}_loader')
    VT = 16
    if ENV('LPRIO'): a.emit(f"s_setprio {ENV('LPRIO')}")
    if kind == 'wo':
        if LSTK == 'wo': lstamp(a, 0)
        import sides
        dep_pre(a, kind, 0)
        a.emit(f's_cmp_lg_u32 s{S_LAYER}, 0')
        a.emit(f's_cbranch_scc1 L_{kind}_nofirst')
        sides.qkv(a, 0, 'finish', 1)
        a.label(f'L_{kind}_nofirst')
    L = Loader(a, kind, K, lda2, ldw2, [0], 128, 2, 8192, xblk=True)
    L.panels_of = lambda t: [0] if sched[t][1] else [f's{S_XD}']
    if ot:
        ktab_ot(a, VT, 17, S_TB)
        if 'whit' in DBG: a.emit(f'v_and_b32 v{VT}, 0x60000, v{VT}')
    else: ktab(a, VT, 17, P1, P2, S_TB)
    a.emit(f's_add_u32 s9, s{S_WV}, s{S_MT}')
    a.emit('s_and_b32 s9, s9, 3')
    a.emit(f's_lshl_b32 s{S_WD}, s9, 11')
    a.emit('v_and_b32 v10, 7, v1')
    if 'wsm' in DBG:
        a.emit(f's_and_b32 s11, s{S_NT}, 1')
        wvoff(a, L.VWD, 9, 11, ldw2)
    elif 'noslow2' in DBG:
        a.emit(f's_bitcmp1_b32 0x0c0c, s{S_NT}')
        a.emit('s_cselect_b32 s11, 2, 0')
        a.emit(f's_add_u32 s11, s11, s{S_NT}')
        wvoff(a, L.VWD, 9, 11, ldw2)
    else: wvoff(a, L.VWD, 9, S_NT, ldw2, kind in NS)
    if kind == 'wo': srd(a, SW, 'wo', 0, 2 * MB)
    else:
        srd(a, SW, 'w2', 0, 3584 * 2048)
        a.emit(f's_bitcmp1_b32 s{S_NT}, 0')
        a.emit(f's_mov_b32 s{S_XD}, 128')
        a.emit(f's_cselect_b32 s{S_XD}, -128, s{S_XD}')
    NPF = int(ENV('NPF' + kind[1].upper(), '10'))
    assert NPRE - NPF <= 18
    seq = []
    def em(o):
        for x in o:
            if ('nodma' in DBG or ('nodma2' in DBG and len(seq) >= 40)) and x.endswith(' lds'): continue
            a.emit(x)
    def after(t): return len(seq) - 1 - max(i for i, x in enumerate(seq) if x == t)
    NPK = int(ENV('NPK', '0')) if P1 else 0
    PK0 = int(ENV('PK0', '20')); PKA = int(ENV('PKA', '0'))
    PKD = int(ENV('PKD', '1'))
    pks = [t for t in range(PK0, N) if ((t - PK0) >> 1) % PKD == 0][:NPK]
    pkr = lambda t: 256 - 8 * NPK + 8 * pks.index(t)
    assert 256 - 8 * NPK >= 48
    if NPK:
        a.emit(f'v_lshl_add_u32 v20, v1, 4, s{S_WD}')
        a.emit('v_add_u32 v21, 0x10000, v20')
        a.emit('v_add_u32 v22, 0x20000, v20')
    lastk = [None]
    def kw(t):
        x = xof(t)
        if lastk[0] != x: a.emit(f'v_readlane_b32 s{S_KW}, v{VT}, {x}')
        lastk[0] = x
    def pk(t):
        kw(t)
        a.emit(f's_add_u32 s4, s{S_KW}, {L.panels_of(t)[0]}')
        for i in range(2): a.emit(f'buffer_load_dwordx4 v[{pkr(t)+4*i}:{pkr(t)+4*i+3}], v{L.VWD+i}, s[{SW}:{SW+3}], s4 offen')
        seq.extend([('P', t)] * 2)
    vmdone = [-1]
    def iw(t):
        if t in pks:
            i = max(i for i, x in enumerate(seq) if x == ('P', t))
            if i > vmdone[0]:
                a.emit(f's_waitcnt vmcnt({min(63, len(seq) - 1 - i)})'); vmdone[0] = i
            for i in range(0 if 'nopw' in DBG else 2): a.emit(f'ds_write_b128 v{20+(slot(t)>>16)}, v[{pkr(t)+4*i}:{pkr(t)+4*i+3}] offset:{(slot(t)&65535)+1024*i}')
            return
        kw(t)
        em(L.issue_w(t, S_WD, slot(t)))
        seq.extend([t] * 2)
    if kind == LSTK == 'wo': lstamp(a, 1)
    CW = [int(x) for x in ENV('CW', '0').split(',')] if P1 else []
    cwk = list(range(NPRE // 2, P1)) + list(range(2 * P1, N)); cwn = [0]
    if sum(CW):
        srd(a, SR, 'w2', 0, 3584 * 2048)
        a.emit(f's_and_b32 s3, s{S_WV}, 3')
        a.emit(f's_lshl2_add_u32 s3, s{S_CU}, s3')
        a.emit('s_lshl_b32 s4, s3, 6')
        a.emit('s_and_b32 s4, s4, 64')
        a.emit('s_lshr_b32 s3, s3, 1')
        a.emit('s_lshl_b32 s3, s3, 11')
        a.emit('s_add_u32 s3, s3, s4')
        a.emit(f's_sub_u32 s4, 384, s{SW}')
        a.emit('s_and_b32 s4, s4, 0x380')
        a.emit(f's_add_u32 s{S_Q}, s3, s4')
        a.emit(f's_bitcmp1_b32 s{S_NT}, 0')
        a.emit(f's_cselect_b32 s3, {P1 << 17}, 0')
        a.emit(f's_add_u32 s{S_T}, s{S_Q}, s3')
        a.emit('s_lshr_b32 s4, s4, 7')
        a.emit(f's_xor_b32 s4, s4, s{S_NT}')
        a.emit('s_bitcmp1_b32 s4, 0')
        a.emit(f's_cselect_b32 s{SR+2}, 0, s{SR+2}')
    def cw(j):
        for k in cwk[cwn[0]:cwn[0] + (CW[j] if j < len(CW) else 0)]:
            a.emit(f's_add_u32 s3, s{S_T if k < P1 else S_Q}, {k << 17}')
            for i in range(2): a.emit(f's_buffer_load_dword s84, s[{SW if k < P1 else SR}:{(SW if k < P1 else SR)+3}], s3 offset:{1024*i}')
            cwn[0] += 1
    def clr(w):
        if DX != 1 or P1 or w != ENV('CLP', 'e'): return
        srd(a, SP, 'ws', WS_XP, 4 * MB)
        a.emit(f's_and_b32 s5, s{S_WV}, 3')
        a.emit(f's_lshl4_add_u32 s6, s{S_MT}, s{S_NT}')
        a.emit('s_lshl2_add_u32 s6, s6, s5')
        a.emit('s_lshl_b32 s6, s6, 12')
        a.emit('s_setprio 3')
        a.emit('v_lshlrev_b32 v3, 4, v1')
        for i in range(4): a.emit(f'v_mov_b32 v{24+i}, -1')
        for i in range(4): a.emit(f'buffer_store_dwordx4 v[24:27], v3, s[{SP}:{SP+3}], s6 offen offset:{1024*i} sc1')
        a.emit('s_setprio 0')
        seq.extend(['C'] * 4)
    clr('a')
    for t in range(NPRE - NPF): iw(t)
    clr('b')
    PTH = ENV('PTH', '')
    for t in pks[:NPK - PKA]:
        pk(t)
        if PTH: a.emit(f's_waitcnt vmcnt({PTH})')
    cw(0)
    if kind == 'wo': dep_pre(a, kind, 1, len(seq))
    N2 = NPRE - NPF; pref = None
    import sides
    STO = sides.STO if kind == 'wo' else [0] * 4
    def sto(k):
        if STO[k] and k: a.emit('s_waitcnt lgkmcnt(0)')
        for x in tch[sum(STO[:k]):sum(STO[:k + 1])]: a.emit(x)
    tch = sides.stouch(a, 'w2', 3584 * 2048, SP, S_T, 14 * sides.STV[0], sum(STO[:3]), per=64 * sum(STO[:3]))
    sto(0)
    if SPC:
        N2 = max(N2, int(ENV('N2', '0')), bars[1] + 2); NPRE = int(ENV('N3', '20'))
        assert NPRE <= TF + 21
        def pref():
            a.emit('s_mov_b32 s5, s3')
            if TF >= 0:
                a.emit(f's_waitcnt vmcnt({after(TF + 1)})')
                a.emit('s_barrier')
            for t in range(len(seq) // 2, N2): iw(t)
            a.emit('s_mov_b32 s3, s5')
            a.emit(f's_waitcnt vmcnt({after(up(bars[1] + 1))})')
    def postf():
        for t in range(N2, NPRE):
            if ot and slot(t) == OHB:
                a.emit(f's_waitcnt vmcnt({after(up(bars[0] + 1))})')
                a.emit('s_barrier')
            iw(t)
        for t in pks[NPK - PKA:]: pk(t)
    if ot and EF:
        NE = int(ENV('NE', '14')); NH = int(ENV('NH', str(NE))); NPRE = int(ENV('NGB', '20' if E2 else str(NH)))
        assert slot(NH - 1) < OHB
        dep_ef(a, lambda: [iw(t) for t in range(N2, NE)], lambda: E2 or a.emit(f's_waitcnt vmcnt({after(up(bars[0] + 1))})'),
               lambda: [iw(t) for t in range(NE, NH)] + [a.emit(f's_waitcnt vmcnt({after(bars[0 if E2 else 1] + 1)}) lgkmcnt(0)')])
        a.emit(f's_mov_b32 s{S_CNT}, 0x100000')
        for t in range(NH, NPRE): iw(t)
    else: dep_wait(a, kind, skip_first=kind == 'wo', preg=lambda: a.emit(f's_waitcnt vmcnt({min(after(up(bars[2 if SPC else 1 if ot else 0] + 1)), 63)})' + ' lgkmcnt(0)' * (not sum(STO))),
             postf=postf, pref=pref, defer=bool(SPC))
    nxt = NPRE
    reg = bars[:bars.index(XS)] if P1 and not DX else bars
    clr('g')
    sto(2)
    for j, t in enumerate(reg):
        if (SPC or ot) and j < 1 and not E2: continue
        lim = min(N, (reg[j - 1] if j else -1) + 21)
        PACE = [int(c) for c in ENV('PACE', '')] if P1 else []
        if j < len(PACE): lim = min(lim, nxt + PACE[j])
        PP = int(ENV('PP', '2'))
        pp = min(lim - 1, nxt + PP) if (SPC and t == TG) or (E2 and t == TG2) else -1
        pe = min(lim - 1, nxt + int(ENV('PE', '0'))) if ot and EF == 1 and t == TG2 else -1
        while nxt < lim:
            if nxt == pp: dep_late(a, kind, 0); seq.append('F')
            if nxt == pe:
                ef_poll(a, 'L_w2_pl', 2, True)
                lstamp(a, 2, True)
            iw(nxt); nxt += 1
            if nxt - 1 in pks: a.emit('s_waitcnt lgkmcnt(0)')
            elif nxt < lim: a.emit(f"s_waitcnt vmcnt({ENV('LTHR', '4')})")
        cw(j + 1)
        clr(str(j))
        assert t == up(t) or nxt == N
        need = [up(min(N - 1, bars[j + 1] + 1))] if j + 1 < len(bars) else []
        assert all(t < nxt for t in need)
        need = [max(x for x in range(t + 1) if x not in pks) for t in need]
        if P1 and not DX and j == len(reg) - 1:
            srd(a, SP, 'ws', WS_XP, 8 * MB)
            srd(a, SC, 'ws0', WS_FL, FLS)
            a.emit(f's_and_b32 s5, s{S_WV}, 3')
            a.emit(f's_lshl4_add_u32 s6, s{S_MT}, s{S_NT}')
            a.emit('s_lshl2_add_u32 s6, s6, s5')
            a.emit(f's_mul_i32 s8, s6, {CH}')
            a.emit('s_add_u32 s9, s8, 4096')
            a.emit(f's_add_u32 s7, s{S_LAYER}, 4')
            a.emit('s_lshl_b32 s7, s7, 10')
            a.emit('s_add_u32 s6, s6, s7')
            a.emit('s_lshl_b32 s6, s6, 6')
            a.emit('s_xor_b32 s7, s6, 256')
            a.emit(f's_mul_i32 s5, s5, {CH}')
            a.emit(f's_add_u32 s5, s5, {XB}')
            a.emit('v_lshlrev_b32 v3, 4, v1')
            a.emit('v_add_u32 v2, s5, v3')
            a.emit('v_mov_b32 v4, 1')
            a.emit(f's_mov_b32 s{S_CNT}, 0x100000')
        if pp >= 0: dep_late(a, kind, 1, after('F'))
        if P1 and DX == 2 and t == XS:
            srd(a, SC, 'ws0', WS_FL, FLS)
            a.emit(f's_lshl4_add_u32 s6, s{S_MT}, s{S_NT}')
            a.emit('s_xor_b32 s6, s6, 1')
            a.emit(f's_add_u32 s7, s{S_LAYER}, 4')
            a.emit('s_lshl_b32 s7, s7, 8')
            a.emit('s_add_u32 s6, s6, s7')
            a.emit('s_lshl_b32 s6, s6, 8')
            a.emit('v_and_b32 v2, 3, v1')
            a.emit('v_lshlrev_b32 v2, 6, v2')
            a.emit(f's_mov_b32 s{S_CNT}, 0x100000')
        if P1 and DX == 2 and t == ZS:
            a.emit(f's_cmp_lg_u32 s{S_WV}, 4')
            a.emit(f's_cbranch_scc1 L_{kind}_xgo')
            a.emit('s_setprio 3')
            a.label(f'L_{kind}_xpoll')
            a.emit(f'buffer_load_dword v5, v2, s[{SC}:{SC+3}], s6 offen sc1')
            a.emit(f's_sub_u32 s{S_CNT}, s{S_CNT}, 1')
            a.emit(f's_cbranch_scc1 L_{kind}_xgo')
            a.emit('s_waitcnt vmcnt(0)')
            a.emit('v_cmp_ne_u32 vcc, 1, v5')
            a.emit(f's_cbranch_vccnz L_{kind}_xpoll')
            a.label(f'L_{kind}_xgo')
            a.emit('s_setprio 0')
        a.emit(f's_waitcnt vmcnt({min(63, min(after(t) for t in need)) if need else 0})')
        if not ('nobar2' in DBG and P1 and 1 < j < len(bars) - 1): a.emit('s_barrier')
    assert nxt == N and (ENV('LATE_W1', '2') == '2' or (kind == 'w2' or bars[-1] >= 9) and 'w1' in OT) and ENV('LATE_ATTN', '2') == '2'
    clr('e')
    if not P1: a.emit('s_waitcnt vmcnt(0)')
    if P1 and not DX:
        XL = ENV('LST') == 'x'
        a.emit('s_setprio 3')
        a.emit('s_waitcnt vmcnt(0) lgkmcnt(0)')
        a.emit('s_barrier')
        for i in range(NXC): a.emit(f'ds_read_b128 v[{32+4*i}:{35+4*i}], v2 offset:{1024*i}')
        for i in range(NXC):
            a.emit(f's_waitcnt lgkmcnt({NXC-1-i})')
            if 'noxs' not in DBG: a.emit(f'buffer_store_dwordx4 v[{32+4*i}:{35+4*i}], v3, s[{SP}:{SP+3}], s{8+(i>>2)} offen offset:{1024*(i&3)} sc1')
        if XL: lstamp(a, 0)
        a.emit(f's_xor_b32 s8, s8, {4*CH}')
        a.emit(f's_xor_b32 s9, s9, {4*CH}')
        a.emit('s_mov_b64 exec, 1')
        a.emit('s_waitcnt vmcnt(0)')
        a.emit(f'buffer_store_dword v4, off, s[{SC}:{SC+3}], s6 sc1')
        if XL: lstamp(a, 1)
        if PS: a.emit('s_barrier')
        if 'nopoll' in DBG: a.emit(f's_branch L_{kind}_xgo')
        a.label(f'L_{kind}_xpoll')
        a.emit(f'buffer_load_dword v5, off, s[{SC}:{SC+3}], s7 sc1')
        a.emit(f's_sub_u32 s{S_CNT}, s{S_CNT}, 1')
        a.emit(f's_cbranch_scc1 L_{kind}_xgo')
        a.emit('s_waitcnt vmcnt(0)')
        a.emit('v_cmp_ne_u32 vcc, 1, v5')
        a.emit(f's_cbranch_vccnz L_{kind}_xpoll')
        a.label(f'L_{kind}_xgo')
        a.emit('s_mov_b64 exec, -1')
        a.emit('s_mov_b32 m0, s5')
        if XL: lstamp(a, 2)
        for i in range(NXC):
            if i == 4: a.emit('s_add_u32 m0, s5, 4096')
            if not i & 3: a.emit('s_nop 0')
            if 'noxl' not in DBG: a.emit(f'buffer_load_dwordx4 v3, s[{SP}:{SP+3}], s{8+(i>>2)} offen offset:{1024*(i&3)} lds')
        a.emit('s_waitcnt vmcnt(0)')
        if XL: lstamp(a, 3)
        a.emit('s_setprio 0')
        a.emit('s_barrier')
    loader_end(a, kind)
    a.label(end)
    a.emit('s_endpgm')
    loader_first(a, kind)
    if SPC:
        i = a.lines.index(f'  s_cbranch_scc1 L_{kind}_compute')
        del a.lines[i - 1:i + 1]
    a.label(f'L_{kind}_c1')
    return 163840
```

```python
import sys, os, struct
sys.path.insert(0, os.path.join(os.path.dirname(os.path.abspath(__file__)), '..'))
from asmlib import Asm, check_offsets
MB = 1 << 20
WSB = int(os.environ.get('WSB', '0')) * MB
WS_O   = WSB
WS_X1  = WSB + 4 * MB
WS_H   = WSB + 8 * MB
WS_ST  = WSB + 23 * MB
WS_CS  = WSB + 23 * MB + 512 * 1024
WS_ST0 = WSB + 22 * MB + 512 * 1024
D2 = os.environ.get('DS', '2') == '2'
DS = os.environ.get('DS', '2') in '12'
WS_TS  = 60 * MB
MEGA = os.environ.get('MEGA', '2') in ('1', '2')
ONE = os.environ.get('MEGA', '2') == '2'
LSTR = int(os.environ.get('LSTR', '64')) * MB
WS_ST2 = WS_ST + 256 * 1024 if MEGA else WS_ST
WS_FL = WSB + 40 * MB
FLS = 524288
REP = int(os.environ.get('REP', '16'))
WS_XP = WSB + 24 * MB
WS_X2 = WSB + 32 * MB
XPAD = int(os.environ.get('XPAD', '128')) if MEGA else 0
f2u = lambda f: struct.unpack('<I', struct.pack('<f', f))[0]
ENV = os.environ.get
TS = ENV('TS', '')
TE = ENV('TE', '')
DBG = ENV('DBG', '').split(',')
EARLY = int(ENV('EARLY', '0')) if MEGA and ENV('SPLIT', '0') == '0' else 0
def stf(kind): return (' ' + ENV('WTF', 'sc1')) if kind in ENV('WT', 'attn,wo,w2,w1').split(',') else ''

KA = {'A_x': 0, 'wqkv': 8, 'wo': 16, 'w1': 32, 'b1': 40, 'w2': 48, 'b2': 56, 'out': 64, 'ws': 80}
P_IN = 16
P_OUT = 32; P_WS = 34
P_XS = 12
PTR = {'A_x': 16, 'wqkv': 18, 'wo': 20, 'w1': 24, 'b1': 26, 'w2': 28, 'b2': 30, 'out': 32, 'ws': 34, 'xs': 12, 'ws0': 22}
SX, SW, SO, SR, SB, ST, SP, SC = 36, 40, 44, 48, 52, 56, 60, 64
S_MT, S_NT, S_WV, S_WM, S_WN = 68, 69, 70, 71, 72
S_KX, S_KW, S_SLOT, S_XD, S_WD, S_HD, S_CNT = 73, 74, 75, 76, 77, 78, 79
S_LAYER = 96; S_TSI = 97; S_T = 98; S_CU = 99; S_XG = 100; S_KT = 101

KD = '''.section .rodata,"a"
.p2align 6
.amdhsa_kernel {name}
  .amdhsa_next_free_vgpr 256
  .amdhsa_next_free_sgpr 102
  .amdhsa_accum_offset 256
  .amdhsa_group_segment_fixed_size 0
  .amdhsa_kernarg_size 88
  .amdhsa_user_sgpr_count 2
  .amdhsa_user_sgpr_kernarg_segment_ptr 1
  .amdhsa_system_sgpr_workgroup_id_x 1
  .amdhsa_float_denorm_mode_32 3
  .amdhsa_float_denorm_mode_16_64 3
.end_amdhsa_kernel
.text
'''

def srd(a, sd, which, off, size):
    p = PTR[which]
    if off:
        a.emit(f's_add_u32 s{sd}, s{p}, {off}')
        a.emit(f's_addc_u32 s{sd+1}, s{p+1}, 0')
        a.emit(f's_and_b32 s{sd+1}, s{sd+1}, 0xffff')
    else:
        a.emit(f's_mov_b32 s{sd}, s{p}')
        a.emit(f's_and_b32 s{sd+1}, s{p+1}, 0xffff')
    a.emit(f's_mov_b32 s{sd+2}, {size}')
    a.emit(f's_mov_b32 s{sd+3}, 0x00020000')

def xpitch(a, sd, inv=False):
    a.emit(f's_cmp_eq_u32 s{S_LAYER}, {0 if inv else 1}')
    a.emit(f's_cselect_b32 s{sd}, {XPAD}, 0')
    a.emit(f's_add_u32 s{sd}, s{sd}, 2048')

def srd_xs(a, sd):
    srd(a, sd, 'xs', 0, 4 * MB)
    xpitch(a, sd + 2)
    a.emit(f's_lshl_b32 s{sd+2}, s{sd+2}, 11')

def stub(a, name, body, layer, tsidx, first):
    a(f'.text\n.globl {name}\n.p2align 8\n.type {name},@function\n{name}:')
    if TS:
        stamp(a, 0, nowait=True)
    if TE: a.emit('s_memrealtime s[94:95]')
    for x in ENV('PERM', '').split():
        a.emit(f"s_bitcmp1_b32 s2, {x.split(':')[0]}")
        a.emit(f"s_cselect_b32 s3, {x.split(':')[1]}, 0")
        a.emit('s_xor_b32 s2, s2, s3')
    a.emit('s_load_dwordx4 s[16:19], s[0:1], 0')
    a.emit('s_load_dwordx2 s[20:21], s[0:1], 16')
    a.emit('s_load_dwordx2 s[22:23], s[0:1], 80')
    a.emit('s_load_dwordx8 s[24:31], s[0:1], 32')
    a.emit('s_load_dwordx2 s[32:33], s[0:1], 64')
    a.emit('s_load_dwordx2 s[34:35], s[0:1], 80')
    a.emit(f's_load_dwordx2 s[12:13], s[0:1], {0 if layer == 0 else 64}')
    if DS: a.emit(f's_load_dwordx2 s[{SC}:{SC+1}], s[0:1], 72')
    a.emit(f's_mov_b32 s{S_LAYER}, {layer}')
    if ENV('PADS', '0') == '1': a.emit('s_mov_b64 exec, -1')
    a.emit(f's_mov_b32 s{S_TSI}, {tsidx}')
    if not first:
        a.emit(f's_branch {body}')

def stamp(a, n, nowait=False):
    if not TS: return
    a.emit(f's_memrealtime s[{80+4*n}:{81+4*n}]')
    a.emit(f's_memtime s[{82+4*n}:{83+4*n}]')
    if not nowait: a.emit('s_waitcnt lgkmcnt(0)')

def stamps_out(a, tag):
    if not TS: return
    if not MEGA: a.emit('s_waitcnt vmcnt(0)')
    stamp(a, 3)
    if MEGA and tag == 'w1':
        for i in range(16): a.emit(f'v_writelane_b32 v31, s{80+i}, {i}')
        return
    srd(a, SP, 'ws0', WS_TS, 1 << 20)
    a.emit('s_lshl_b32 s4, s2, 6')
    a.emit(f's_lshl_b32 s5, s{S_TSI}, 16')
    a.emit('s_add_u32 s4, s4, s5')
    if ENV('STR') == tag:
        a.emit('v_lshlrev_b32 v2, 2, v0')
        a.emit('v_cmp_gt_u32 vcc, 16, v0')
        a.emit('s_add_u32 s5, s4, 32768\n  s_nop 0')
        a.emit('v_cndmask_b32 v2, -1, v2, vcc')
        a.emit(f'buffer_store_dword v3, v2, s[{SP}:{SP+3}], s5 offen')
    a.emit('v_mov_b32 v1, s4')
    for i in range(16): a.emit(f'v_mov_b32 v{4+i}, s{80+i}')
    a.emit('v_cmp_eq_u32 vcc, 0, v0')
    a.emit('s_and_saveexec_b64 s[6:7], vcc')
    a.emit(f's_cbranch_execz L_tsskip_{tag}')
    for j in range(4):
        a.emit(f'buffer_store_dwordx4 v[{4+4*j}:{7+4*j}], v1, s[{SP}:{SP+3}], 0 offen offset:{16*j}' + (' sc1' if ENV('DIAG') else ''))
    if MEGA and tag == 'w2':
        a.emit('s_mov_b64 exec, 0xffff')
        a.emit('s_sub_u32 s4, s4, 0x10000')
        a.emit('v_lshlrev_b32 v1, 2, v0')
        a.emit(f'buffer_store_dword v31, v1, s[{SP}:{SP+3}], s4 offen' + (' sc1' if ENV('DIAG') else ''))
    a.label(f'L_tsskip_{tag}')
    a.emit('s_mov_b64 exec, -1')

SPX = ENV('SPX', '1') == '1'
OT = ENV('OT', 'w1,w2,attn').split(',')
S_T0 = 91
OHB = 114688; OBIA = [10, 24, 124, 126]
NV = int(ENV('NV', '0'))
EF = int(ENV('EF', '0'))
NS = ENV('NS', 'wo,w1,w2').split(',')
NSR = ENV('NSR', '1') == '1'
SKL = ENV('SKL', '1') == '1'
SF = ENV('SF', '0') == '1'
WD = ENV('WD', 'c')
ZD = ENV('ZD', 'a')
OH = int(ENV('OH', '1'))
OHO = (0, 51200, 81920)[OH]
HALT = 33 * MB
GM = ENV('GM', '0') == '1'
S_MD = 93 if GM else 92; VMD = 27
CF = int(ENV('CF', '1'))
WE = int(ENV('WE', '-1'))
LF1 = int(ENV('LF1', '0'))
MF = int(ENV('MF', '2'))
LF2 = int(ENV('LF2', '2'))
EX = int(ENV('EX', '14'))
LSTK = ENV('LSTK', 'w2')
LREG = [52, 54, 56, 58] if LSTK == 'w2' else [36, 38, 48, 50] if LSTK == 'wo' else [80, 82, 48, 50]
def lstamp(a, n, dep=False):
    if dep and (ENV('LST') == 'x' or LSTK != 'w2'): return
    if TS: a.emit(f's_memrealtime s[{LREG[n]}:{LREG[n]+1}]')

def lstamps_out(a, tag):
    if not TS: return
    a.emit(f"s_cmp_lg_u32 s{S_WV}, {ENV('PW_' + tag.upper(), '4')}")
    a.emit(f's_cbranch_scc1 L_ltsskip_{tag}')
    a.emit('s_waitcnt lgkmcnt(0)')
    srd(a, SP, 'ws0', WS_TS + 16384, 1 << 20)
    a.emit('s_lshl_b32 s4, s2, 6')
    a.emit(f's_lshl_b32 s5, s{S_TSI}, 16')
    a.emit('s_add_u32 s4, s4, s5')
    for i in range(8): a.emit(f'v_writelane_b32 v20, s{LREG[i>>1]+(i&1)}, {i}')
    a.emit('v_lshlrev_b32 v21, 2, v1')
    a.emit('s_mov_b64 exec, 0xff')
    a.emit(f'buffer_store_dword v20, v21, s[{SP}:{SP+3}], s4 offen')
    a.emit('s_mov_b64 exec, -1')
    a.label(f'L_ltsskip_{tag}')

def tile_map(a, LM, endlab, pair=False):
    if endlab:
        a.emit('s_cmp_ge_u32 s2, 256')
        a.emit(f's_cbranch_scc1 {endlab}')
        a.emit('v_lshrrev_b32 v2, 6, v0')
        a.emit('v_and_b32 v1, 63, v0')
        a.emit(f'v_readfirstlane_b32 s{S_WV}, v2')
    a.emit('s_and_b32 s3, s2, 7')
    if endlab: a.emit(f's_lshr_b32 s{S_CU}, s2, 3')
    if LM == 2 and ENV('MAP2', '0') == '1':
        a.emit('s_lshl_b32 s5, s3, 1')
        a.emit('s_lshr_b32 s6, s3, 1')
        a.emit('s_and_b32 s5, s5, 2')
        a.emit('s_and_b32 s6, s6, 1')
        a.emit('s_or_b32 s5, s5, s6')
    else: a.emit(f's_and_b32 s5, s3, {(1 << (4 - LM)) - 1}')
    a.emit(f's_lshl_b32 s5, s5, {LM}')
    a.emit(f's_and_b32 s6, s{S_CU}, {(1 << LM) - 1}')
    a.emit(f's_add_u32 s{S_MT}, s5, s6')
    a.emit(f's_lshr_b32 s5, s3, {4 - LM}')
    if pair:
        a.emit(f's_lshr_b32 s{S_HD}, s{S_CU}, {LM}')
        a.emit(f's_lshl1_add_u32 s{S_NT}, s{S_HD}, s5')
        return
    a.emit(f's_lshl_b32 s5, s5, {5 - LM}')
    a.emit(f's_lshr_b32 s6, s{S_CU}, {LM}')
    a.emit(f's_add_u32 s{S_NT}, s5, s6')
    if 'smallm' in DBG: a.emit(f's_and_b32 s{S_MT}, s{S_MT}, 1')
    if 'smalln' in DBG: a.emit(f's_and_b32 s{S_NT}, s{S_NT}, 1')

def interleave(a, main, side, lead=1, per=1):
    si = 0
    for i, m in enumerate(main):
        a.emit(m)
        if i + 1 >= lead:
            for _ in range(per):
                if si < len(side): a.emit(side[si]); si += 1
    while si < len(side): a.emit(side[si]); si += 1

CHN = ENV('CHN', 'w1,attn').split(',')
CKN = int(ENV('CKN', '1'))
def vregs(x):
    import re
    return [(int(p), int(q)) for p, q in re.findall(r'v\[(\d+):(\d+)\]', x)]
def uses(ms, rd):
    d = vregs(rd)[0][0]
    return [i for i, m in enumerate(ms) if any(p <= d <= q for p, q in vregs(m)[1:3])]
def waits_for(ms, fl, pend, skip=0):
    q = list(pend)
    for i in range(len(ms)):
        for x in fl.get(i, []):
            if x.startswith('ds_'): q.append(x)
            if x.startswith('s_waitcnt lgkmcnt('):
                n = int(x.split('(')[1].split(')')[0]); q = q[len(q) - n:] if n < len(q) else q
        nx = [ms[i + 1]] if i + 1 < len(ms) else ms[:skip + 1] if skip >= 0 else []
        nd = [j for j, x in enumerate(q) if 'read' in x and uses(nx, x)]
        if nd:
            n = min(15, len(q) - 1 - max(nd)); q = q[len(q) - n:]
            fl.setdefault(i, []).append(f's_waitcnt lgkmcnt({n})')
    return q
QS = int(ENV('QS', '1'))
PO0, POM = [int(x) for x in ENV('PO', '1,3').split(',')]
KSH = int(ENV('KSH', '0')); LAT = int(ENV('LAT', '0'))
def own_pos(a, sd):
    a.emit(f's_and_b32 s{sd}, s{S_NT}, {POM}')
    a.emit(f's_add_u32 s{sd}, s{sd}, {PO0}')

class Loader:
    VXD = 4; VWD = 8; VXH = 28
    def __init__(self, a, tag, K, lda2, ldw2, panels, colbase, S, STAGE, halo=None, delta=0, rot=None, xblk=False, half=0):
        self.a = a; self.tag = tag; self.K = K; self.lda2 = lda2; self.ldw2 = ldw2; self.panels = panels
        self.colbase = colbase; self.S = S; self.STAGE = STAGE; self.halo = halo; self.delta = delta; self.xblk = xblk; self.rot = rot if rot is not None and rot >= 0 else None
        self.NSTEP = K // 64; self.half = half; self.ot = 0; self.skip = False; self.loc = False; self.pre = {}; self.pad = None; self.pf0 = 0; self.pfs = 0; self.post0 = []
        self.per = 4 + 2 * len(panels) + (1 if halo is not None else 0)
    def setup(self):
        a = self.a
        if ENV('PRIO', '0') != '0': a.emit(f"s_setprio {ENV('PRIO')}")
        a.emit(f's_add_u32 s8, s{S_WV}, s{S_NT}')
        a.emit('s_and_b32 s8, s8, 3')
        a.emit(f's_add_u32 s9, s{S_WV}, s{S_MT}')
        a.emit('s_and_b32 s9, s9, 3')
        a.emit(f's_lshl_b32 s{S_XD}, s8, 12')
        a.emit(f's_lshl_b32 s{S_WD}, s9, 11')
        a.emit(f's_add_u32 s{S_WD}, s{S_WD}, 16384')
        a.emit(f's_lshl_b32 s11, s{S_MT}, 7')
        a.emit('v_and_b32 v10, 7, v1')
        if self.xblk: self.xoff_blk(self.lda2)
        else: self.xoff_rows(self.lda2)
        ns = self.tag in NS and not NSR; nr = self.tag in NS and NSR
        wrow(a, 9, ns)
        a.emit(f'v_mul_u32_u24 v3, {self.ldw2}, v3')
        a.emit('v_lshrrev_b32 v2, 3, v1')
        a.emit(f'v_and_b32 v2, {6 if nr else 2}, v2')
        a.emit('v_xor_b32 v2, v2, v10')
        a.emit(f's_mul_i32 s10, s{S_NT}, {self.colbase}')
        if 'noslow' in DBG and self.tag == 'attn':
            a.emit(f's_bitcmp1_b32 0x0808, s{S_NT}')
            a.emit('s_cselect_b32 s3, 512, 0')
            a.emit('s_add_u32 s10, s10, s3')
        if self.colbase & 127: a.emit('s_andn2_b32 s10, s10, 127')
        a.emit('v_add_u32 v3, s10, v3')
        a.emit(f'v_lshl_add_u32 v{self.VWD}, v2, 4, v3')
        if not nr: a.emit('v_xor_b32 v2, 4, v2')
        a.emit(f'v_add_u32 v3, {(4 if ns else 8)*self.ldw2}, v3')
        a.emit(f'v_lshl_add_u32 v{self.VWD+1}, v2, 4, v3')
        if self.half:
            if ns:
                a.emit('v_bfe_u32 v3, v1, 2, 2')
                a.emit('v_lshrrev_b32 v2, 5, v1')
                a.emit('v_lshl_add_u32 v3, v2, 2, v3')
                a.emit('v_and_b32 v2, 16, v1')
                a.emit('s_and_b32 s10, s9, 2')
                a.emit('s_add_u32 s10, s10, s9')
                a.emit('s_lshl_b32 s10, s10, 3')
                a.emit('v_add3_u32 v3, s10, v3, v2')
            else:
                a.emit('v_lshrrev_b32 v3, 2, v1')
                a.emit('s_lshl_b32 s10, s9, 4')
                a.emit('v_add_u32 v3, s10, v3')
            a.emit(f'v_mul_u32_u24 v3, {self.ldw2}, v3')
            if 'w2' in NS: a.emit(f'v_bfe_u32 v2, v1, {4 if nr else 5}, 1')
            else:
                a.emit(f'v_lshrrev_b32 v2, {3 if nr else 4}, v1')
                a.emit('v_and_b32 v2, 2, v2')
            a.emit('v_xor_b32 v2, v2, v1')
            a.emit('v_and_b32 v2, 3, v2')
            a.emit(f's_lshl_b32 s10, s{S_NT}, 6')
            a.emit(f's_add_u32 s10, s10, {self.half}')
            a.emit('v_add_u32 v3, s10, v3')
            a.emit(f'v_lshl_add_u32 v{self.VXH}, v2, 4, v3')
            a.emit(f's_lshl_b32 s{S_HD}, s{S_NT}, 7')
            a.emit(f's_add_u32 s{S_HD}, s{S_HD}, 3072')
        if self.halo is not None:
            a.emit(f's_and_b32 s10, s{S_WV}, 3')
            a.emit(f's_lshl_b32 s{S_HD}, s10, 9')
            a.emit(f's_add_u32 s{S_HD}, s{S_HD}, {self.halo}')
            a.emit('s_lshl_b32 s14, s10, 2')
            a.emit('s_add_u32 s14, s14, s11')
            a.emit('s_sub_u32 s14, s14, 16')
            a.emit('v_lshrrev_b32 v3, 3, v1')
            a.emit('v_add_u32 v3, s14, v3')
            a.emit('v_max_i32 v3, 0, v3')
            a.emit('v_mul_u32_u24 v3, s5, v3')
            a.emit('s_lshl_b32 s14, s10, 1')
            a.emit('v_lshrrev_b32 v2, 4, v1')
            a.emit('v_add_u32 v2, s14, v2')
            a.emit('v_and_b32 v2, 7, v2')
            a.emit('v_xor_b32 v2, v2, v10')
            a.emit(f'v_lshl_add_u32 v{self.VXH}, v2, 4, v3')
            a.emit('s_cmp_eq_u32 s10, 0')
            a.emit('s_cselect_b32 s14, 0xffffff00, -1')
            a.emit('s_mov_b32 s15, 0')
        a.emit(f's_mov_b32 s{S_SLOT}, 0')
        if self.rot is None:
            a.emit(f's_mov_b32 s{S_KX}, 0')
            a.emit(f's_mov_b32 s{S_KW}, 0')
        else:
            if not getattr(self, 'noxg', False): a.emit(f's_add_u32 s{S_XG}, s{S_MT}, s{S_NT}')
            a.emit(f's_mov_b32 s{S_KT}, {0 if EARLY and self.tag == "w2" else -1}')
            ko = int(ENV('KOFF_' + self.tag.upper(), '0'))
            if ko:
                a.emit(f"s_bitcmp1_b32 {ENV('KMSK_' + self.tag.upper(), '0x0808' if self.tag == 'attn' else '0x2aea')}, s{S_NT}")
                a.emit(f's_cselect_b32 s{S_KT}, {ko - 1}, s{S_KT}')
            if self.kord(): self.ktable()
            if self.skip:
                if LAT:
                    a.emit(f's_mul_i32 s3, s{S_MT}, {LAT}')
                    a.emit(f's_add_u32 s3, s3, s{S_NT}')
                    a.emit(f's_and_b32 s{S_T0}, s3, 15')
                elif KSH:
                    a.emit(f's_and_b32 s{S_T0}, s{S_NT}, 3')
                    a.emit(f's_and_b32 s93, s{S_NT}, 12')
                    if KSH == 2:
                        a.emit(f's_and_b32 s3, s{S_MT}, 8')
                        a.emit('s_add_u32 s93, s93, s3')
                else: a.emit(f's_mov_b32 s{S_T0}, s{S_NT}')
                own_pos(a, 92)
                for x in self.knext(): a.emit(x)
            elif not self.ot:
                for x in self.knext(): a.emit(x)
    def kord(self): return ENV('KORD_' + self.tag.upper(), {'w1': '2', 'attn': '0,2'}.get(self.tag, ''))
    def korder(self, g, start):
        D = int(ENV('ROTD_' + self.tag.upper(), ENV('ROTD', '2')))
        o = list(range(16))
        if start < 0:
            dl = {3: [3, -1, -1, -1], 2: [2, -1, -1, 0], 1: [1, -1, 0, 0]}[D]
            return [(t + dl[(t - g) & 3]) & 15 for t in range(16)]
        for t in range(start + g, 16 - D, 4): o[t:t + D + 1] = [t + D] + list(range(t, t + D))
        return o
    def ktable(self, start=None):
        a = self.a
        if start is None: start = int(self.kord().split(',')[0])
        a.emit(f's_add_u32 s3, s{S_MT}, s{S_NT}')
        a.emit('s_and_b32 s3, s3, 3')
        for g in range(4):
            v = sum((2 * (k & 7) + (k >> 3) if self.loc else k) << (4 * i) for i, k in enumerate(self.korder(g, start)))
            if self.loc: assert max(self.korder(g, start)[:6]) < 8
            if g: a.emit(f's_cmp_eq_u32 s3, {g}')
            for h in range(2):
                a.emit(f's_cselect_b32 s{S_XG+h}, {(v >> (32 * h)) & 0xffffffff:#x}, s{S_XG+h}' if g else f's_mov_b32 s{S_XG+h}, {(v >> (32 * h)) & 0xffffffff:#x}')
        if self.loc:
            a.emit(f's_bitcmp1_b32 s{S_NT}, 3')
            a.emit('s_cselect_b32 s3, 0x11111111, 0')
            for h in range(2): a.emit(f's_xor_b32 s{S_XG+h}, s{S_XG+h}, s3')
    def own(self):
        D = int(ENV('ROTD_' + self.tag.upper(), ENV('ROTD', '2')))
        dl = {3: [3, -1, -1, -1], 2: [2, -1, -1, 0], 1: [1, -1, 0, 0]}[D]
        tbl = sum(((-d) % 16) << (8 * ((r + d) & 3)) for r, d in enumerate(dl))
        assert self.rot == 0 and self.NSTEP == 16
        if self.kord():
            return [f's_lshr_b32 s3, s{S_NT}, 3', f's_and_b32 s{S_KX}, s{S_NT}, 7', f's_lshl1_add_u32 s{S_T0}, s{S_KX}, s3',
                    f's_mul_i32 s{S_KW}, s{S_T0}, {64*self.ldw2}', f's_lshl_b32 s{S_KX}, s{S_T0}, {11 if self.xblk else 7}']
        return [f's_lshr_b32 s3, s{S_NT}, 3', f's_and_b32 s{S_KX}, s{S_NT}, 7', f's_lshl1_add_u32 s{S_KX}, s{S_KX}, s3',
                f's_sub_u32 s3, s{S_KX}, s{S_XG}', 's_lshl_b32 s3, s3, 3', f's_lshr_b32 s3, {tbl:#x}, s3',
                f's_add_u32 s3, s3, s{S_KX}', f's_and_b32 s{S_T0}, s3, 15',
                f's_mul_i32 s{S_KW}, s{S_KX}, {64*self.ldw2}', f's_lshl_b32 s{S_KX}, s{S_KX}, {11 if self.xblk else 7}']
    def xoff_rows(self, ld):
        a = self.a
        a.emit('v_lshrrev_b32 v3, 3, v1')
        a.emit(f's_lshr_b32 s10, s{S_XD}, 7')
        a.emit(f's_lshl_b32 s3, s{S_MT}, 7')
        a.emit('s_add_u32 s10, s10, s3')
        a.emit('v_add_u32 v3, s10, v3')
        xpitch(a, 5)
        a.emit('s_lshl_b32 s6, s5, 3')
        a.emit('v_mul_u32_u24 v3, s5, v3')
        a.emit('v_lshrrev_b32 v2, 4, v1')
        for j in range(4):
            d = self.VXD + j
            if j & 1:
                a.emit(f'v_add_u32 v{d}, 4, v2')
                a.emit(f'v_xor_b32 v{d}, v{d}, v10')
            else:
                a.emit(f'v_xor_b32 v{d}, v2, v10')
            a.emit(f'v_lshl_add_u32 v{d}, v{d}, 4, v3')
            if j < 3: a.emit('v_add_u32 v3, s6, v3')
    def xoff_blk(self, ld):
        a = self.a
        a.emit(f's_lshr_b32 s10, s{S_XD}, 11')
        a.emit(f's_lshl_b32 s3, s{S_MT}, 3')
        a.emit('s_add_u32 s10, s10, s3')
        a.emit(f's_mul_i32 s10, s10, {16*ld}')
        a.emit(f'v_lshl_add_u32 v{self.VXD}, v1, 4, s10')
        a.emit(f'v_add_u32 v{self.VXD+1}, {16*ld}, v{self.VXD}')
    def xdma(self, base, imm, sd, soff, blk):
        o = []
        for j in range(4):
            if blk:
                if not j & 1: o += [f's_add_u32 m0, s{base}, {imm + j*1024}', 's_nop 0']
                o.append(f'buffer_load_dwordx4 v{self.VXD+(j>>1)}, s[{sd}:{sd+3}], s{soff} offen offset:{(j&1)*1024} lds')
            else:
                o += [f's_add_u32 m0, s{base}, {imm + j*1024}', 's_nop 0', f'buffer_load_dwordx4 v{self.VXD+j}, s[{sd}:{sd+3}], s{soff} offen lds']
        return o
    def knext(self):
        if self.rot is None:
            return [f's_add_u32 s{S_KX}, s{S_KX}, {2048 if self.xblk else 128}', f's_add_u32 s{S_KW}, s{S_KW}, {64*self.ldw2}']
        if self.kord():
            tb = f's[{S_XG}:{S_XG+1}]'
            o = [f's_and_b32 s{S_KX}, s{S_XG}, 15']
            if self.ot or self.skip: o += [f's_cmp_eq_u32 s{S_KX}, s{S_T0}', f's_cselect_b32 s{S_KW}, 4, 0', f's_lshr_b64 {tb}, {tb}, s{S_KW}', f's_and_b32 s{S_KX}, s{S_XG}, 15']
            if self.skip and not self.ot: o += ['s_sub_u32 s92, s92, 1', f's_cselect_b32 s{S_KX}, s{S_T0}, s{S_KX}', f's_cselect_b32 s{S_KW}, 0, 4'] + ([f's_add_u32 s{S_KX}, s{S_KX}, s93', f's_and_b32 s{S_KX}, s{S_KX}, 15'] if KSH else [])
            return o + [f's_lshr_b64 {tb}, {tb}, ' + (f's{S_KW}' if self.skip and not self.ot else '4'), f's_mul_i32 s{S_KW}, s{S_KX}, {64*self.ldw2}', f's_lshl_b32 s{S_KX}, s{S_KX}, {11 if self.xblk else 7}']
        lc = self.rot; C = 1 << lc; N = self.NSTEP
        o = [f's_add_u32 s{S_KT}, s{S_KT}, 1']
        if self.ot: o += [f's_cmp_eq_u32 s{S_KT}, s{S_T0}', f's_addc_u32 s{S_KT}, s{S_KT}, 0']
        D = int(ENV('ROTD_' + self.tag.upper(), ENV('ROTD', '2')))
        dl = {3: [3, -1, -1, -1], 2: [2, -1, -1, 0], 1: [1, -1, 0, 0]}[D]
        tbl = sum((((d * C) % N) << (8 * i)) for i, d in enumerate(dl))
        if lc: o += [f's_lshr_b32 s{S_KX}, s{S_KT}, {lc}', f's_sub_u32 s{S_KX}, s{S_KX}, s{S_XG}']
        else: o += [f's_sub_u32 s{S_KX}, s{S_KT}, s{S_XG}']
        o += [f's_lshl_b32 s{S_KX}, s{S_KX}, 3',
              f's_lshr_b32 s{S_KX}, {tbl:#x}, s{S_KX}',
              f's_and_b32 s{S_KX}, s{S_KX}, 255',
              f's_add_u32 s{S_KX}, s{S_KX}, s{S_KT}']
        if N & (N - 1) == 0: o += [f's_and_b32 s{S_KX}, s{S_KX}, {N - 1}']
        else: o += [f's_sub_u32 s{S_KW}, s{S_KX}, {N}', f's_cselect_b32 s{S_KX}, s{S_KX}, s{S_KW}']
        o += [f's_mul_i32 s{S_KW}, s{S_KX}, {64*self.ldw2}', f's_lshl_b32 s{S_KX}, s{S_KX}, {11 if self.xblk else 7}']
        return o
    def panels_of(self, t): return self.panels
    def issue_x(self, bx, bh, imm, kx):
        o = self.xdma(bx, imm, SX, kx, self.xblk)
        if self.halo is not None:
            o.append(f's_add_u32 m0, s{S_HD}, {bh}')
            o.append('s_mov_b64 exec, s[14:15]')
            o.append(f'buffer_load_dwordx4 v{self.VXH}, s[{SX}:{SX+3}], s{kx} offen lds')
            o.append('s_mov_b64 exec, -1')
        return o
    def issue_w(self, t, bw, imm):
        o = []
        for pn, goff in enumerate(self.panels_of(t)):
            for i in range(2):
                o.append(f's_add_u32 m0, s{bw}, {imm+pn*8192+i*1024}')
                o.append((goff if str(goff).startswith('s_') else f's_add_u32 s4, s{S_KW}, {goff}') if i == 0 else 's_nop 0')
                o.append(f'buffer_load_dwordx4 v{self.VWD+i}, s[{SW}:{SW+3}], s4 offen lds')
        if self.half:
            o += [f's_add_u32 m0, s{bw}, {imm+len(self.panels)*8192}', 's_nop 0',
                  f'buffer_load_dwordx4 v{self.VXH}, s[{SW}:{SW+3}], s{S_KW} offen lds']
        return o
    def issue(self, t):
        o = [f's_add_u32 s3, s{S_SLOT}, s{S_XD}']
        o += self.issue_x(3, f's{S_SLOT}', 0, S_KX)
        o.append(f's_add_u32 s3, s{S_SLOT}, s{S_WD}')
        o += self.issue_w(t, 3, 0)
        o += self.knext()
        o.append(f's_add_u32 s{S_SLOT}, s{S_SLOT}, {self.STAGE}')
        o.append(f's_cmp_eq_u32 s{S_SLOT}, {self.S*self.STAGE}')
        o.append(f's_cselect_b32 s{S_SLOT}, 0, s{S_SLOT}')
        return o
    def run(self, variant='', tail_issue=None, ntail_vm=0, final=None, post=(), dep=None, tail_late=0, start=None, extra=None, exfirst=False):
        a = self.a; N = self.NSTEP; d = self.S - 1
        tag = self.tag + variant
        nx = 4 + (1 if self.halo is not None else 0)
        nw = lambda t: 2 * len(self.panels_of(t)) + (1 if self.half else 0)
        seq = []
        early = EARLY and self.tag == 'w2'
        pchk = EARLY - 3 - d - 1; piss = pchk - d + 1 - int(ENV('PEARLY', '0'))
        if self.loc: pchk = 3; piss = 2
        def em(o):
            for x in o:
                if 'nodma' in DBG and x.endswith(' lds'): continue
                a.emit(x)
        def after(t): return len(seq) - 1 - max(i for i, x in enumerate(seq) if x == t)
        def wait(n):
            assert n <= 63, n
            a.emit(f's_waitcnt vmcnt({n})')
        if dep is None:
            for t in range(2): em(self.issue(t)); seq += [t] * (nx + nw(t))
            if start: seq += ['S'] * start()
            wait(after(0))
            a.emit('s_barrier')
            for t in range(2, d): em(self.issue(t)); seq += [t] * (nx + nw(t))
        else:
            prev = {'attn': 'w2', 'wo': 'attn', 'w1': 'wo', 'w2': 'w1'}[self.tag]
            assert 'attn' not in EBAR
            ot = self.ot
            if ot: em(self.own() + [f's_mov_b32 s88, s{S_KX}'] + [f's_mov_b32 s72, s{S_KW}'] * (self.tag + 'hit' in DBG) + self.issue_w(0, S_WD, 0) + self.knext()); seq.extend([0] * nw(0))
            a.lines += getattr(self, 'after_own', [])
            dep_pre(a, self.tag)
            if prev in EBAR: a.emit('s_barrier')
            xw = 1 if self.tag in ENV('XW', 'x').split(',') and not hasattr(self, 'P1') else 0
            def prew(ts):
                for t in ts:
                    a.emit(f's_mov_b32 s{88+t}, s{S_KX}')
                    if self.tag + 'hit' in DBG: a.emit(f's_mov_b32 s{S_KW}, s72')
                    em(self.issue_w(t, S_WD, t * self.STAGE) + self.knext()); seq.extend([t] * nw(t))
            late = int(ENV('LATE_' + self.tag.upper(), '2'))
            if ot: xw = 1
            prew(range(ot, d + xw - late))
            self.npre = len(seq)
            a.emit(f's_mov_b32 s{S_SLOT}, {0 if xw else d * self.STAGE}')
            wag = int(ENV('WAG_' + self.tag.upper(), '0'))
            dep((lambda: prew(range(d + xw - late, d + xw - wag))) if late else None)
            if ot and self.halo is not None: em(self.issue_x(S_XD, self.hx, 0, 88)[-4:]); seq.append(0)
            for t in range(ot, d + xw):
                if t >= d + xw - wag: prew([t])
                em(self.issue_x(S_XD, t * self.STAGE, t * self.STAGE, 88 + t)); seq += [t] * nx
            if ot and ENV('OPRIO'): a.emit('s_setprio 0')
            if self.loc: loc_flag(a, self.tag)
            wait(after(ot))
            if self.tag == 'w2': lstamp(a, 2)
            a.emit('s_barrier')
            if early: late_flag(a)
        ev = [None] * self.ot
        for i in range(self.ot, N):
            t = i + d
            if t in seq: t = N + 9
            early = early or self.loc
            if early and i == piss: seq += ['P']
            seq += ['P'] * len(self.pre.get(i, []))
            if t < N: seq += [t] * (nx + nw(t)) + ['Q'] * sum(x.startswith('buffer_') for x in post)
            ex = extra(i) if extra else []
            tl = tail_issue is not None and t == N - 1 + tail_late
            if exfirst: seq += ['E'] * sum(x.startswith('buffer_') for x in ex)
            if tl: seq += ['T'] * ntail_vm
            if not exfirst: seq += ['E'] * sum(x.startswith('buffer_') for x in ex)
            ev.append(((nw(t) if t < N else -1, after(i + 1) if i + 1 < N else -1, tl, early and i == piss, early and i == pchk, tuple(ex), 2 if i >= self.pf0 else 1 if self.post0 and i >= self.pfs else 0), t))
        i = self.ot; nl = 0
        while i < N:
            j = i
            while j + 1 < N and ev[j + 1][0] == ev[i][0]: j += 1
            n = j - i + 1
            (k, w, tl, pi, pc, ex, po), t = ev[i]
            if n >= 3:
                nl += 1
                a.emit(f's_mov_b32 s{S_CNT}, {n}')
                a.label(f'L_{tag}_ld{nl}')
            else: j = i
            em(self.pre.get(i, []))
            if pi and self.loc: dep_late(a, self.tag, 0)
            elif pi: a.emit(f'buffer_load_dword v13, v12, s[{SO}:{SO+3}], s86 offen sc1')
            if t < N:
                em(self.issue(t)); em(post if po == 2 else self.post0 if po else [])
            if exfirst: em(ex)
            if tl and not ('notail' in DBG and self.tag == 'w1'):
                if ENV('FPRIO'): a.emit('s_setprio 3')
                tail_issue()
                if ENV('FPRIO'): a.emit('s_setprio 0')
            if not exfirst: em(ex)
            if w >= 0: wait(w)
            elif final and 'nofinal' not in DBG:
                if ENV('FPRIO'): a.emit('s_setprio 3')
                final()
                if ENV('FPRIO'): a.emit('s_setprio 0')
            if self.pad and self.pad[0] == i:
                x = a.lines.pop()
                a.emit('s_branch L_padl'); a(f'.fill {self.pad[1] // 4}, 4, 0xbf810000'); a.label('L_padl'); a.lines.append(x)
            if pc and self.loc: dep_late(a, self.tag, 1, w)
            elif pc: late_check(a)
            a.emit('s_barrier')
            if n >= 3:
                a.emit(f's_sub_u32 s{S_CNT}, s{S_CNT}, 1')
                a.emit(f's_cmp_lg_u32 s{S_CNT}, 0')
                a.emit(f's_cbranch_scc1 L_{tag}_ld{nl}')
            i = j + 1

XD = ONE and ENV('SPLIT', '0') == '0' and ENV('XD', '1') == '1'
VW = MEGA and ENV('SPLIT', '0') == '0' and ENV('VW', '0') == '1'
NV1 = int(ENV('NV1', '16')); NV2 = int(ENV('NV2', '12')); NVO = int(ENV('NVO', '11'))
S_TB = 85
def rot_table(a, sd, smt, snt, tag):
    D = int(ENV('ROTD_' + tag.upper(), ENV('ROTD', '2')))
    dl = {3: [3, -1, -1, -1], 2: [2, -1, -1, 0], 1: [1, -1, 0, 0], 0: [0, 0, 0, 0]}[D]
    tbl = sum((d & 255) << (8 * i) for i, d in enumerate(dl))
    a.emit(f's_add_u32 s3, s{smt}, s{snt}')
    a.emit('s_lshl_b32 s3, s3, 3')
    a.emit(f's_lshl_b32 s{sd}, {tbl:#x}, s3')
    a.emit('s_sub_u32 s3, 0, s3')
    a.emit(f's_lshr_b32 s3, {tbl:#x}, s3')
    a.emit(f's_or_b32 s{sd}, s{sd}, s3')

def kpos(N, t, sd, tb=S_TB, halves=True, q=None):
    H, p, add = (28, t >> 1, 28 * (t & 1)) if N == 56 and halves else (N, t, 0)
    o = [f's_bfe_i32 s{sd}, s{tb}, {0x80000 + 8 * (p & 3):#x}', f's_add_i32 s{sd}, s{sd}, {p + add}']
    if p == 0: o += [f's_cmp_lt_i32 s{sd}, {add}', f's_cselect_b32 s{sd}, {H - 1 + add}, s{sd}']
    if p + 3 >= H: o += [f's_sub_u32 s3, s{sd}, {H}', f's_cmp_ge_i32 s{sd}, {H + add}', f's_cselect_b32 s{sd}, s3, s{sd}']
    if q is not None:
        if N == 16 or 1 <= t <= 12: o += [f's_add_u32 s{sd}, s{sd}, s{q}', f's_and_b32 s{sd}, s{sd}, 15']
        elif t <= 16 or t + 3 >= N: o += [f's_add_u32 s3, s{sd}, s{q}', 's_and_b32 s3, s3, 15', f's_cmp_lt_u32 s{sd}, 16', f's_cselect_b32 s{sd}, s3, s{sd}']
    return o

S_Q = 86
MROT = ENV('MROT', '1') == '1'
def rot_q(a, sd, smt, sh=0):
    a.emit(f's_and_b32 s{sd}, s{smt}, {3 if MROT else 0}')
    a.emit(f's_lshl_b32 s{sd}, s{sd}, {2 + sh}')

TSCH = {'wo': [int(c) for c in ENV('TSO', '000')], 'w2': [int(c) for c in ENV('TS2', '000')]}
def tail_parks(nxt, sw, mk=None, sch=None):
    if not XD: return None
    sch = sch or TSCH[nxt]; N = 16 if nxt == 'wo' else 56
    def extra(i):
        if i < 13 or not sum(sch): return []
        a = Asm()
        if i == 13:
            if mk: mk(a)
            a.emit('s_and_b32 s5, s2, 3')
            a.emit('s_lshl_b32 s5, s5, 2')
            a.emit(f's_and_b32 s6, s{S_CU}, 3')
            a.emit('s_add_u32 s5, s5, s6')
            a.emit('s_and_b32 s6, s2, 4')
            a.emit('s_lshl_b32 s6, s6, 1')
            a.emit(f's_lshr_b32 s7, s{S_CU}, 2')
            a.emit('s_add_u32 s6, s6, s7')
            rot_table(a, S_TB, 5, 6, nxt)
            rot_q(a, S_Q, 5)
            a.emit(f's_add_u32 s5, s5, s{S_WV}')
            a.emit('s_and_b32 s5, s5, 3')
            wvoff(a, 16, 5, 6, 2048)
        o = [l.strip() for l in a.lines]
        for t in range(sum(sch[:i - 13]), sum(sch[:i - 12])):
            o += kpos(N, t, 4, S_TB, False, S_Q) + ['s_lshl_b32 s4, s4, 17']
            o += [f'buffer_load_dwordx4 v[{128+8*t+4*j}:{131+8*t+4*j}], v{16+j}, s[{sw}:{sw+3}], s4 offen' for j in range(2)]
        return o
    return extra

def vreg(tag, t):
    if tag == 'wo': return (128 + 8 * (t - 5), False) if 5 <= t < 5 + NVO else None
    if t & 1: return None
    p = t >> 1
    if p < NV1: return (128 + 8 * p, True)
    if p < NV1 + NV2: return (32 + 8 * (p - NV1), False)
    return None

def wrow(a, sqw, ns):
    if ns:
        a.emit('v_bfe_u32 v3, v1, 3, 2')
        a.emit('v_lshrrev_b32 v2, 5, v1')
        a.emit('v_lshl_add_u32 v3, v2, 4, v3')
        a.emit(f's_and_b32 s10, s{sqw}, 2')
        a.emit(f's_add_u32 s10, s10, s{sqw}')
        a.emit('v_lshl_add_u32 v3, s10, 3, v3')
    else:
        a.emit('v_lshrrev_b32 v3, 3, v1')
        a.emit(f's_lshl_b32 s10, s{sqw}, 4')
        a.emit('v_add_u32 v3, s10, v3')

def wvoff(a, vd, sqw, snt, ldw2, ns=False):
    nr = ns and NSR; ns = ns and not NSR
    wrow(a, sqw, ns)
    a.emit(f'v_mul_u32_u24 v3, {ldw2}, v3')
    a.emit('v_lshrrev_b32 v2, 3, v1')
    a.emit(f'v_and_b32 v2, {6 if nr else 2}, v2')
    a.emit('v_xor_b32 v2, v2, v10')
    a.emit(f's_lshl_b32 s10, s{snt}, 7')
    a.emit('v_add_u32 v3, s10, v3')
    a.emit(f'v_lshl_add_u32 v{vd}, v2, 4, v3')
    if not nr: a.emit('v_xor_b32 v2, 4, v2')
    a.emit(f'v_add_u32 v3, {(4 if ns else 8)*ldw2}, v3')
    a.emit(f'v_lshl_add_u32 v{vd+1}, v2, 4, v3')

def park(N, t, r, vo, sw):
    return kpos(N, t, 4) + ['s_lshl_b32 s4, s4, 17'] + [f'buffer_load_dwordx4 v[{r+4*i}:{r+4*i+3}], v{vo+i}, s[{sw}:{sw+3}], s4 offen' for i in range(2)]

class ULoader(Loader):
    def run(self, variant='', tail_issue=None, ntail_vm=0, final=None, post=(), dep=None):
        a = self.a; N = self.NSTEP; d = self.S - 1; tag = self.tag
        seq = []
        def em(o):
            for x in o:
                if 'nodma' in DBG and x.endswith(' lds'): continue
                a.emit(x)
        def after(t): return len(seq) - 1 - max(i for i, x in enumerate(seq) if x == t)
        def wait(n, lg=False):
            assert n <= 63, n
            a.emit(f's_waitcnt vmcnt({n})' + (' lgkmcnt(0)' if lg else ''))
        def iw(t):
            sl = (t % self.S) * self.STAGE; v = vreg(tag, t)
            if v:
                em([f'v_add_u32 v11, {sl}, v14'] + [f'ds_write_b128 v11, v[{v[0]+4*i}:{v[0]+4*i+3}] offset:{1024*i}' for i in range(2)])
            else:
                em([f's_lshl_b32 s{S_KW}, s{S_KX}, 17'] + [x for x in self.issue_w(t, S_WD, sl)])
                seq.extend([t] * 2)
        def ix(t, k):
            em(self.issue_x(S_XD, None, (t % self.S) * self.STAGE, k)); seq.extend([t] * 4)
        rot_table(a, S_TB, S_MT, S_NT, tag)
        a.emit(f'v_lshl_add_u32 v14, v1, 4, s{S_WD}')
        dep_pre(a, tag)
        for t in range(d):
            em(kpos(N, t, S_KX)); iw(t)
            a.emit(f's_lshl_b32 s{88+t}, s{S_KX}, 11')
        for t in range(d, N):
            v = vreg(tag, t)
            if v and not v[1]:
                em(park(N, t, v[0], self.VWD, SW)); seq.extend(['V'] * 2)
        self.npre = len(seq)
        dep()
        for t in range(d): ix(t, 88 + t)
        wait(after(0), True)
        if tag == 'w2': lstamp(a, 2)
        a.emit('s_barrier')
        for i in range(N):
            t = i + d
            if i % 4 == 0 and post and t < N:
                a.emit('s_waitcnt lgkmcnt(0)')
                em(post)
            if t < N:
                em(kpos(N, t, S_KX)); iw(t)
                a.emit(f's_lshl_b32 s{S_KX}, s{S_KX}, 11')
                ix(t, S_KX)
            if t == N - 1: tail_issue(); seq.extend(['T'] * ntail_vm)
            if i + 1 < N: wait(after(i + 1), not post or t == N)
            else: final()
            a.emit('s_barrier')

EBAR = ENV('EBAR', 'x').split(',')
S_FL = 87
def dep_pre(a, kind, part=None, n=0):
    if ONE and kind in (('w1',) if CF == 2 else ('wo', 'w1')):
        ld = f'buffer_load_dword v12, v17, s[{SC}:{SC+3}], 0 offen sc1' if kind == 'wo' else f'buffer_load_dwordx4 v[12:15], v17, s[{SO}:{SO+3}], s3 offen sc1'
        if part == 1: a.emit(f's_waitcnt vmcnt({n})')
        gm = GM and kind == 'wo'
        if gm: a.emit(f's_cmp_lg_u32 s{S_LAYER}, 0')
        else:
            a.emit(f's_add_u32 s3, s{S_LAYER}, s{S_WV}')
            a.emit('s_cmp_lg_u32 s3, 4')
        a.emit(f's_cbranch_scc1 L_{kind}_chk{part}' + 'e' * (gm and part == 1))
        def cmp():
            if gm:
                a.emit('v_or_b32 v13, 0xfefefefe, v12')
                a.emit('v_cmp_ne_u32 vcc, -1, v13')
            elif kind == 'wo': a.emit('v_cmp_ne_u32 vcc, 0x01010101, v12')
            else:
                a.emit('v_and_b32 v12, v12, v13')
                a.emit('v_and_b32 v14, v14, v15')
                a.emit('v_and_b32 v12, v12, v14')
                a.emit('v_cmp_ne_u32 vcc, 1, v12')
        if part == 1:
            cmp()
            a.emit(f's_cbranch_vccz L_{kind}_chk{part}')
        if True:
            if kind == 'wo': a.emit(f's_load_dwordx2 s[{SC}:{SC+1}], s[0:1], 72')
            else: srd(a, SO, 'ws0', WS_FL, FLS)
            if kind == 'wo':
                a.emit('s_waitcnt lgkmcnt(0)')
                a.emit(f's_and_b32 s{SC+1}, s{SC+1}, 0xffff')
                a.emit(f's_mov_b32 s{SC+2}, 256')
                a.emit(f's_mov_b32 s{SC+3}, 0x00020000')
                a.emit('v_lshlrev_b32 v17, 2, v1')
            else:
                a.emit('v_lshrrev_b32 v2, 2, v1')
                a.emit('v_and_b32 v3, 3, v1')
                a.emit('v_lshlrev_b32 v2, 11, v2')
                a.emit('v_lshl_add_u32 v17, v3, 4, v2')
                a.emit(f's_and_b32 s3, s{S_NT}, {REP - 1}')
                a.emit('s_lshl_b32 s3, s3, 7')
        if part == 0: a.emit(ld)
        else:
            a.emit(f's_mov_b32 s{S_CNT}, 0x100000')
            a.label(f'L_{kind}_chkl')
            a.emit(ld)
            a.emit(f's_sub_u32 s{S_CNT}, s{S_CNT}, 1')
            a.emit(f's_cbranch_scc1 L_{kind}_chk{part}')
            a.emit('s_waitcnt vmcnt(0)')
            cmp()
            a.emit(f's_cbranch_vccnz L_{kind}_chkl')
        a.label(f'L_{kind}_chk{part}')
        if gm and part == 1:
            l2_mode(a, 12)
            a.label(f'L_{kind}_chk{part}e')

def l2_mode(a, v):
    assert int(ENV('LM_QKV', '3')) == 3
    a.emit(f'v_mov_b32 v14, v{v}')
    a.emit(f'v_mov_b32 v15, v{v}')
    a.emit(f'v_alignbyte_b32 v13, v{v}, v{v}, 1')
    a.emit(f'v_xor_b32 v13, v13, v{v}')
    a.emit('v_permlane16_swap_b32 v14, v15')
    a.emit(f'v_xor_b32_dpp v12, v{v}, v{v} row_ror:4 row_mask:0xf bank_mask:0xf')
    a.emit('v_xor_b32 v14, v14, v15')
    a.emit('v_or3_b32 v13, v13, v12, v14')
    a.emit('v_cmp_ne_u32 vcc, 0, v13')
    a.emit(f's_or_b32 s{S_MD}, vcc_lo, vcc_hi')

def dep_wait(a, kind, halo=False, skip_first=False, first=None, preg=None, postf=None, pref=None, defer=False, obar=False):
    if skip_first and not ONE:
        a.emit(f's_cmp_eq_u32 s{S_TSI}, 1')
        a.emit(f's_cbranch_scc1 L_{kind}_dep')
    srd(a, SO, 'ws0', WS_FL, FLS)
    if ONE and kind == 'wo' and first:
        a.emit(f's_cmp_lg_u32 s{S_LAYER}, 0')
        a.emit(f's_cbranch_scc1 L_{kind}_nofirst')
        first()
        a.label(f'L_{kind}_nofirst')
    a.emit(f's_lshl4_add_u32 s3, s{S_TSI}, s{S_MT}')
    a.emit(f's_and_b32 s4, s{S_NT}, {REP - 1}')
    a.emit('s_lshl4_add_u32 s3, s3, s4')
    a.emit('s_lshl_b32 s3, s3, 7')
    a.emit('s_sub_u32 s3, s3, 32768')
    a.emit('v_lshlrev_b32 v11, 7, v1')
    if halo:
        a.emit(f's_cmp_eq_u32 s{S_MT}, 0')
        a.emit('s_cselect_b32 s4, 15, 31')
        a.emit('v_and_b32 v2, 16, v1')
        a.emit('v_lshl_add_u32 v11, v2, 2, v11')
        a.emit('v_and_b32 v2, s4, v1')
    else: a.emit('v_and_b32 v2, 15, v1')
    a.emit('v_lshlrev_b32 v2, 2, v2')
    xc = OH and kind == 'w1' and not GM
    if xc:
        a.emit('s_getreg_b32 s4, hwreg(HW_REG_XCC_ID, 0, 4)')
        if ENV('FB'): a.emit(f"s_and_b32 s4, s2, {ENV('FB')}")
        a.emit('v_add_u32 v3, 1, s4')
    else: a.emit('v_mov_b32 v3, 1')
    a.emit(f's_mov_b32 s{S_CNT}, 0x100000')
    if kind == LSTK == 'wo': lstamp(a, 2)
    if pref: pref()
    lf = LF2 and kind == 'w2'
    if lf:
        a.emit(f's_mov_b32 s{S_Q}, s3')
        a.emit('s_or_b32 s4, s2, 0xe0')
        a.emit(f's_lshl4_add_u32 s4, s4, s{S_LAYER}')
        a.emit('s_lshl_b32 s4, s4, 7')
        a.emit(f's_lshl2_add_u32 s93, s{S_HD}, s4')
        a.emit(f's_cmp_eq_u32 s{S_MD}, 0')
        a.emit('s_cselect_b32 s3, s4, s3')
        a.emit('s_cselect_b32 s4, 28, 60')
        a.emit('v_and_b32 v13, s4, v2')
        if ENV('LFT', '1') == '1':
            a.emit(f's_cmp_lg_u32 s{S_WV}, 4')
            a.emit('s_cbranch_scc1 L_w2_notch')
            a.emit(f'buffer_load_dword v12, v13, s[{SO}:{SO+3}], s3 offen sc1')
            a.label('L_w2_notch')
    if OH and kind == 'w2': a.emit(f'v_cmp_ne_u32 vcc, s{S_MD}, 0')
    a.emit(f's_cmp_lg_u32 s{S_WV}, 4')
    a.emit('s_barrier')
    if kind == 'w2': lstamp(a, 0, True)
    if kind == LSTK == 'w1': lstamp(a, 0)
    a.emit(f's_cbranch_scc1 L_{kind}_{"nofl" if postf else "dep"}')
    if OH and kind == 'w2':
        a.emit('s_cbranch_vccnz L_w2_wb')
        a.label('L_w2_wbd')
    if lf:
        a.emit('s_mov_b64 exec, 1')
        a.emit(f'buffer_store_dword v3, off, s[{SO}:{SO+3}], s93')
    a.emit(f's_mov_b32 exec_lo, {((1 << REP) - 1) * (0x10001 if halo else 1):#x}')
    a.emit('s_mov_b32 exec_hi, 0')
    a.emit(f'buffer_store_dword v3, v11, s[{SO}:{SO+3}], s{S_FL} offen sc1')
    a.emit('s_mov_b64 exec, -1')
    if lf and ENV('LFX'):
        a.label('L_w2_spoll')
        if ENV('LFX') == 's':
            a.emit(f's_buffer_load_dwordx8 s[4:11], s[{SO}:{SO+3}], s3 glc')
            a.emit(f's_sub_u32 s{S_CNT}, s{S_CNT}, 16')
            a.emit('s_cbranch_scc1 L_w2_spok')
            a.emit('s_waitcnt lgkmcnt(0)')
            a.emit('s_and_b64 s[4:5], s[4:5], s[6:7]')
            a.emit('s_and_b64 s[8:9], s[8:9], s[10:11]')
            a.emit('s_and_b64 s[4:5], s[4:5], s[8:9]')
            a.emit('s_and_b32 s4, s4, s5')
            a.emit('s_cbranch_scc0 L_w2_spoll')
        else:
            a.emit(f'buffer_load_dword v12, v13, s[{SO}:{SO+3}], s3 offen sc1')
            a.emit(f's_sub_u32 s{S_CNT}, s{S_CNT}, 16')
            a.emit('s_cbranch_scc1 L_w2_spok')
            a.emit('s_waitcnt vmcnt(0)')
            a.emit('v_cmp_ne_u32 vcc, 1, v12')
            a.emit('s_cbranch_vccnz L_w2_spoll')
        a.label('L_w2_spok')
        lstamp(a, 1, True)
        a.emit(f's_mov_b32 s{S_CNT}, 0x100000')
    PSP = int(ENV('PSP', '0'))
    if defer:
        a.label(f'L_{kind}_nofl')
        a.emit(f's_mov_b32 s{S_Q}, s3')
        postf()
        return
    if postf and PSP:
        a.label(f'L_{kind}_nofl')
        a.emit('s_mov_b32 s5, s3')
        i0 = len(a.lines); postf(); ls = a.lines[i0:]; del a.lines[i0:]
        dma = [i for i, l in enumerate(ls) if 'buffer_load' in l]
        poll = lambda k: f'buffer_load_dword v{24+k}, v2, s[{SO}:{SO+3}], s5 offen sc1'
        for i, l in enumerate(ls):
            a.lines.append(l)
            for k in range(3):
                if dma and i == dma[-1 - PSP * (3 - k)]: a.emit(poll(k))
        a.emit(f's_cmp_lg_u32 s{S_WV}, 4')
        a.emit(f's_cbranch_scc1 L_{kind}_dep')
        def chk(k, n, last=False):
            a.emit(poll((k + 3) & 3))
            a.emit(f's_waitcnt vmcnt({n})')
            a.emit(f'v_cmp_ne_u32 vcc, 1, v{24+k}')
            a.emit(f's_cbranch_vccnz L_{kind}_poll' if last else f's_cbranch_vccz L_{kind}_dep')
        for k in range(3): chk(k, 3 + PSP * (3 - k))
        a.label(f'L_{kind}_poll')
        a.emit(f's_sub_u32 s{S_CNT}, s{S_CNT}, 1')
        a.emit(f's_cbranch_scc1 L_{kind}_dep')
        for k in (3, 0, 1, 2): chk(k, 3, k == 2)
    else:
        if postf:
            if obar:
                a.emit(f's_waitcnt vmcnt({obar})')
                a.emit(f's_branch L_{kind}_obar')
            a.label(f'L_{kind}_nofl')
            if obar:
                a.emit(f's_waitcnt vmcnt({obar - 1})')
                a.label(f'L_{kind}_obar')
                a.emit('s_barrier')
                if ENV('OPRIO'): a.emit(f"s_setprio {ENV('OPRIO')}")
            a.emit('s_mov_b32 s5, s3')
            postf()
            a.emit('s_mov_b32 s3, s5')
            a.emit(f"s_cmp_lg_u32 s{S_WV}, {ENV('PW_' + kind.upper(), '4')}")
            a.emit(f's_cbranch_scc1 L_{kind}_dep')
        if kind == LSTK == 'w1': lstamp(a, 1)
        a.label(f'L_{kind}_poll')
        a.emit(f'buffer_load_dword v{VMD if xc else 3}, v{13 if lf else 2}, s[{SO}:{SO+3}], s3 offen sc1')
        a.emit(f's_sub_u32 s{S_CNT}, s{S_CNT}, 1')
        a.emit(f's_cbranch_scc1 L_{kind}_dep')
        a.emit('s_waitcnt vmcnt(0)')
        a.emit(f'v_cmp_eq_u32 vcc, 0, v{VMD}' if xc else 'v_cmp_ne_u32 vcc, 1, v3')
        a.emit(f's_cbranch_vccnz L_{kind}_poll')
    a.label(f'L_{kind}_dep')
    if kind == 'w2' and not ENV('LFX'): lstamp(a, 1, True)
    if kind == LSTK == 'wo': lstamp(a, 3)
    if kind == LSTK == 'w1':
        lstamp(a, 2)
        if TS: a.emit(f's_mov_b32 s50, s{S_CNT}')
    if preg: preg()
    if preg and kind == 'w2': lstamp(a, 2, True)
    a.emit('s_barrier')

def dep_loc(a, kind, postf, pref):
    srd(a, SO, 'ws0', WS_FL, FLS)
    a.emit(f's_lshl4_add_u32 s3, s{S_TSI}, s{S_MT}')
    a.emit(f's_and_b32 s4, s{S_NT}, {REP - 1}')
    a.emit('s_lshl4_add_u32 s3, s3, s4')
    a.emit('s_lshl_b32 s3, s3, 7')
    a.emit(f's_sub_u32 s{S_Q}, s3, 32768')
    a.emit('v_lshlrev_b32 v11, 7, v1')
    a.emit('v_and_b32 v2, 15, v1')
    a.emit('v_lshlrev_b32 v2, 2, v2')
    a.emit('v_mov_b32 v14, 1')
    a.emit(f's_mov_b32 s{S_CNT}, 0x100000')
    a.emit('s_or_b32 s4, s2, 0xe0')
    a.emit(f's_lshl4_add_u32 s4, s4, s{S_TSI}')
    a.emit('s_lshl_b32 s4, s4, 7')
    a.emit(f's_lshr_b32 s7, s{S_CU}, 2')
    a.emit('s_lshl2_add_u32 s7, s7, s4')
    a.emit(f's_cmp_eq_u32 s{S_MD}, 0')
    a.emit(f's_cselect_b32 s6, s4, s{S_Q}')
    a.emit('s_cselect_b32 s4, 28, 60')
    a.emit('v_and_b32 v13, s4, v2')
    a.emit(f'buffer_load_dword v12, v13, s[{SO}:{SO+3}], s6 offen sc1')
    pref()
    a.emit(f"s_setprio {ENV('LFP1', '3')}")
    a.emit(f's_cmp_lg_u32 s{S_WV}, 4')
    a.emit('s_barrier')
    if kind == LSTK: lstamp(a, 0)
    a.emit(f's_cbranch_scc1 L_{kind}_nofl')
    a.emit('s_mov_b64 exec, 1')
    a.emit(f'buffer_store_dword v14, off, s[{SO}:{SO+3}], s7')
    a.emit(f's_cmp_eq_u32 s{S_MD}, 0')
    a.emit(f's_cbranch_scc1 L_{kind}_nogl')
    a.emit(f's_mov_b64 exec, {(1 << REP) - 1:#x}')
    a.emit(f'buffer_store_dword v14, v11, s[{SO}:{SO+3}], s{S_FL} offen sc1')
    a.label(f'L_{kind}_nogl')
    a.emit('s_mov_b64 exec, -1')
    a.label(f'L_{kind}_nofl')
    if postf: postf()
    if kind == LSTK: lstamp(a, 1)
    a.label(f'L_{kind}_poll')
    a.emit(f'buffer_load_dword v12, v13, s[{SO}:{SO+3}], s6 offen sc1')
    a.emit(f's_sub_u32 s{S_CNT}, s{S_CNT}, 1')
    a.emit(f's_cbranch_scc1 L_{kind}_dep')
    a.emit('s_waitcnt vmcnt(0)')
    a.emit('v_cmp_ne_u32 vcc, 1, v12')
    a.emit(f's_cbranch_vccnz L_{kind}_poll')
    a.label(f'L_{kind}_dep')
    if kind == LSTK:
        lstamp(a, 2)
        if TS: a.emit(f's_mov_b32 s50, s{S_CNT}')

def loc_flag(a, kind):
    a.emit('s_setprio 0')
    a.emit(f's_cmp_lg_u32 s{S_WV}, 4')
    a.emit(f's_cbranch_scc1 L_{kind}_nogf')
    a.emit(f's_mov_b64 exec, {(1 << REP) - 1:#x}')
    a.emit(f'buffer_store_dword v14, v11, s[{SO}:{SO+3}], s{S_FL} offen sc1')
    a.emit('s_mov_b64 exec, -1')
    a.label(f'L_{kind}_nogf')

def dep_lf(a, w0, blk, w1):
    srd(a, SO, 'ws0', WS_FL, FLS)
    a.emit(f's_lshl4_add_u32 s3, s{S_TSI}, s{S_MT}')
    a.emit(f's_and_b32 s4, s{S_NT}, {REP - 1}')
    a.emit('s_lshl4_add_u32 s3, s3, s4')
    a.emit('s_lshl_b32 s3, s3, 7')
    a.emit(f's_sub_u32 s{S_Q}, s3, 32768')
    a.emit('v_lshlrev_b32 v11, 7, v1')
    a.emit('v_and_b32 v2, 15, v1')
    a.emit('v_lshlrev_b32 v2, 2, v2')
    a.emit(f's_cmp_lg_u32 s{S_WV}, 4')
    a.emit(f's_waitcnt vmcnt({w0})')
    a.emit('s_cbranch_scc1 L_w2_nofl')
    W4 = ENV('W4', 'a')
    if W4 == 'a': a.lines += blk
    a.emit('v_mov_b32 v3, 1')
    a.emit(f's_mov_b32 s{S_CNT}, 0x100000')
    a.emit('s_or_b32 s4, s2, 0xe0')
    a.emit(f's_lshl4_add_u32 s4, s4, s{S_TSI}')
    a.emit('s_lshl_b32 s4, s4, 7')
    a.emit(f's_lshl2_add_u32 s5, s{S_HD}, s4')
    a.emit(f's_cmp_eq_u32 s{S_MD}, 0')
    a.emit(f's_cselect_b32 s3, s4, s{S_Q}')
    a.emit('s_cselect_b32 s4, 28, 60')
    a.emit('v_and_b32 v13, s4, v2')
    a.emit(f'buffer_load_dword v12, v13, s[{SO}:{SO+3}], s3 offen sc1')
    a.emit(f"s_setprio {ENV('LFP', '3')}")
    a.emit('s_barrier')
    lstamp(a, 0, True)
    a.emit('s_cbranch_scc0 L_w2_wb')
    a.label('L_w2_wbd')
    a.emit('s_mov_b64 exec, 1')
    a.emit(f'buffer_store_dword v3, off, s[{SO}:{SO+3}], s5')
    a.emit('s_mov_b64 exec, -1')
    a.label('L_w2_poll')
    a.emit(f'buffer_load_dword v12, v13, s[{SO}:{SO+3}], s3 offen sc1')
    a.emit(f's_sub_u32 s{S_CNT}, s{S_CNT}, 1')
    a.emit('s_cbranch_scc1 L_w2_dep')
    a.emit('s_waitcnt vmcnt(0)')
    a.emit('v_cmp_ne_u32 vcc, 1, v12')
    a.emit('s_cbranch_vccnz L_w2_poll')
    a.label('L_w2_dep')
    lstamp(a, 1, True)
    a.emit('s_barrier')
    lstamp(a, 2, True)
    a.emit('s_setprio 0')
    if W4 != 'a': a.lines += blk
    a.emit(f's_mov_b64 exec, {(1 << REP) - 1:#x}')
    a.emit(f'buffer_store_dword v3, v11, s[{SO}:{SO+3}], s{S_FL} offen sc1')
    a.emit('s_mov_b64 exec, -1')
    a.emit('s_branch L_w2_go')
    a.label('L_w2_nofl')
    if W4 == 'c':
        a.emit('s_waitcnt vmcnt(0)')
        a.emit('s_barrier')
        a.emit('s_barrier')
        a.lines += blk
    else:
        a.emit('s_barrier')
        a.lines += blk
        a.emit(f's_waitcnt vmcnt({w1})')
        a.emit('s_barrier')
    a.label('L_w2_go')

def xpoll(a, lab, sd, so, v, vd):
    a.emit(f's_cmp_lg_u32 s{S_WV}, 4')
    a.emit(f's_cbranch_scc1 {lab}go')
    a.emit('s_setprio 3')
    a.label(f'{lab}poll')
    a.emit(f'buffer_load_dword v{vd}, v{v}, s[{sd}:{sd+3}], s{so} offen sc1')
    a.emit(f's_sub_u32 s{S_CNT}, s{S_CNT}, 1')
    a.emit(f's_cbranch_scc1 {lab}go')
    a.emit('s_waitcnt vmcnt(0)')
    a.emit(f'v_cmp_ne_u32 vcc, 1, v{vd}')
    a.emit(f's_cbranch_vccnz {lab}poll')
    a.label(f'{lab}go')
    a.emit('s_setprio 0')

def ef_poll(a, lab, v, prio=False):
    a.emit(f"s_cmp_lg_u32 s{S_WV}, {ENV('PW_W2', '4')}")
    a.emit(f's_cbranch_scc1 {lab}_ok')
    if prio: a.emit('s_setprio 3')
    a.emit(f's_mov_b32 s{S_CNT}, 0x100000')
    a.label(lab)
    a.emit(f'buffer_load_dword v3, v{v}, s[{SO}:{SO+3}], s{S_Q} offen sc1')
    a.emit(f's_sub_u32 s{S_CNT}, s{S_CNT}, 1')
    a.emit(f's_cbranch_scc1 {lab}_ok')
    a.emit('s_waitcnt vmcnt(0)')
    a.emit('v_cmp_ne_u32 vcc, 1, v3')
    a.emit(f's_cbranch_vccnz {lab}')
    a.label(f'{lab}_ok')
    if prio: a.emit('s_setprio 0')

def ef_flag(a, lab, off):
    a.emit(f's_cmp_lg_u32 s{S_WV}, 4')
    a.emit('s_barrier')
    a.emit(f's_cbranch_scc1 {lab}')
    a.emit(f's_mov_b64 exec, {(1 << REP) - 1:#x}')
    a.emit(f'buffer_store_dword v13, v11, s[{SO}:{SO+3}], s{S_FL} offen offset:{off} sc1')
    a.emit('s_mov_b64 exec, -1')
    a.label(lab)

def dep_ef(a, poste, preh, preg):
    srd(a, SO, 'ws0', WS_FL, FLS)
    a.emit(f's_lshl4_add_u32 s3, s{S_TSI}, s{S_MT}')
    a.emit(f's_and_b32 s4, s{S_NT}, {REP - 1}')
    a.emit('s_lshl4_add_u32 s3, s3, s4')
    a.emit('s_lshl_b32 s3, s3, 7')
    a.emit(f's_sub_u32 s{S_Q}, s3, 32768')
    a.emit('v_lshlrev_b32 v11, 7, v1')
    a.emit('v_and_b32 v2, 15, v1')
    a.emit('v_lshlrev_b32 v2, 2, v2')
    a.emit(f's_bitcmp1_b32 s{S_NT}, 0')
    a.emit('s_cselect_b32 s4, 96, 64')
    a.emit('v_and_b32 v12, 28, v2')
    a.emit('v_add_u32 v12, s4, v12')
    a.emit('v_mov_b32 v13, 1')
    ef_flag(a, 'L_w2_nofe', 64)
    lstamp(a, 0, True)
    poste()
    if ENV('EFP', '1') == '0': ef_poll(a, 'L_w2_pe', 12)
    preh()
    a.emit('s_barrier')
    if ENV('EFP', '1') != '0': ef_poll(a, 'L_w2_pe', 12, ENV('EFP') == '2')
    lstamp(a, 1, True)
    preg()
    ef_flag(a, 'L_w2_nofl', 0)

def dep_late(a, kind, part, n=0):
    ld = f'buffer_load_dword v3, v2, s[{SO}:{SO+3}], s{S_Q} offen sc1'
    if part == 0:
        a.emit(f's_cmp_eq_u32 s{S_WV}, 4')
        a.emit(f's_cselect_b32 s{SO+2}, s{SO+2}, 0')
        a.emit(ld)
        return
    if LF2:
        kind += 'l'
        a.emit(f's_mov_b32 s{S_CNT}, 0x100000')
    a.emit(f's_cmp_lg_u32 s{S_WV}, 4')
    a.emit(f's_cbranch_scc1 L_{kind}_dep')
    a.emit(f's_waitcnt vmcnt({n})')
    a.emit('v_cmp_ne_u32 vcc, 1, v3')
    a.emit(f's_cbranch_vccz L_{kind}_dep')
    a.label(f'L_{kind}_poll')
    a.emit(ld)
    a.emit(f's_sub_u32 s{S_CNT}, s{S_CNT}, 1')
    a.emit(f's_cbranch_scc1 L_{kind}_dep')
    a.emit('s_waitcnt vmcnt(0)')
    a.emit('v_cmp_ne_u32 vcc, 1, v3')
    a.emit(f's_cbranch_vccnz L_{kind}_poll')
    a.label(f'L_{kind}_dep')
    if LF2: return
    if not EF: lstamp(a, 1, True)
    lstamp(a, 2, True)
    if TS and ENV('LST') != 'x': a.emit(f's_mov_b32 s58, s{S_CNT}')

LGO = 163840 - 64
def dep_early(a):
    srd(a, SO, 'ws0', WS_FL, FLS)
    a.emit(f's_lshl_b32 s86, s{S_TSI}, 12')
    a.emit(f's_lshl_b32 s4, s{S_MT}, 8')
    a.emit('s_add_u32 s86, s86, s4')
    a.emit('s_sub_u32 s86, s86, 4096')
    a.emit('v_and_b32 v12, 15, v1')
    a.emit('v_lshlrev_b32 v12, 2, v12')
    a.emit('v_mov_b32 v3, 0')
    a.emit(f'v_mov_b32 v2, {LGO}')
    a.emit('ds_write_b32 v2, v3')
    a.emit('v_mov_b32 v13, 1')
    a.emit(f's_mov_b32 s{S_CNT}, 0x100000')
    a.emit(f's_cmp_lg_u32 s{S_WV}, 4')
    a.emit('s_waitcnt lgkmcnt(0)')
    a.emit('s_barrier')
    a.emit('s_cbranch_scc1 L_w2_go')
    lstamp(a, 0)
    a.emit('s_mov_b64 exec, 1')
    a.emit(f'buffer_store_dword v13, off, s[{SO}:{SO+3}], s{S_FL} sc1')
    a.emit('s_mov_b64 exec, -1')
    a.label('L_w2_poll')
    a.emit(f'buffer_load_dword v3, v12, s[{SO}:{SO+3}], s86 offen sc1')
    a.emit(f's_sub_u32 s{S_CNT}, s{S_CNT}, 1')
    a.emit('s_cbranch_scc1 L_w2_rel')
    a.emit('s_waitcnt vmcnt(0)')
    a.emit('v_cmp_eq_u32 vcc, 0, v3')
    a.emit('s_cbranch_vccnz L_w2_poll')
    a.label('L_w2_rel')
    a.emit('ds_write_b32 v2, v13')
    lstamp(a, 1)
    a.emit('s_branch L_w2_dep')
    a.label('L_w2_go')
    a.emit(f's_mov_b32 s{S_CNT}, 0x2000000')
    a.label('L_w2_gol')
    a.emit('ds_read_b32 v3, v2')
    a.emit(f's_sub_u32 s{S_CNT}, s{S_CNT}, 1')
    a.emit('s_cbranch_scc1 L_w2_dep')
    a.emit('s_waitcnt lgkmcnt(0)')
    a.emit('v_cmp_eq_u32 vcc, 0, v3')
    a.emit('s_cbranch_vccnz L_w2_gol')
    a.label('L_w2_dep')

def late_flag(a):
    a.emit(f's_cmp_lg_u32 s{S_WV}, 4')
    a.emit('s_cbranch_scc1 L_w2_nolate')
    a.emit('v_mov_b32 v3, 2')
    a.emit('s_mov_b64 exec, 1')
    a.emit(f'buffer_store_dword v3, off, s[{SO}:{SO+3}], s{S_FL} sc1')
    a.emit('s_mov_b64 exec, -1')
    a.label('L_w2_nolate')

def late_check(a):
    a.emit(f's_mov_b32 s{S_CNT}, 0x100000')
    a.label('L_w2_lchk')
    a.emit('v_cmp_ne_u32 vcc, 2, v13')
    a.emit('s_cbranch_vccz L_w2_lok')
    a.emit(f'buffer_load_dword v13, v12, s[{SO}:{SO+3}], s86 offen sc1')
    a.emit(f's_sub_u32 s{S_CNT}, s{S_CNT}, 1')
    a.emit('s_waitcnt vmcnt(0)')
    a.emit('s_cbranch_scc0 L_w2_lchk')
    a.label('L_w2_lok')
    if TS: a.emit(f's_mov_b32 s58, s{S_CNT}')
    lstamps_out(a, 'w2')

def gbar(a, kind):
    if not MEGA or (EARLY and kind == 'w2'): return
    if kind == 'attn':
        a.emit(f's_cmp_eq_u32 s{S_LAYER}, 0')
        a.emit('s_cbranch_scc1 L_attn_nog')
    a.emit('s_barrier')
    if kind == 'attn': a.label('L_attn_nog')

def next_phase(a, kind, comp=False):
    nxt = {'attn': 'wo', 'wo': 'w1', 'w1': 'w2', 'w2': 'attn'}[kind]
    if kind == 'w2':
        a.emit(f's_mov_b32 s{S_LAYER}, 1')
        a.emit(f's_add_u32 s12, s22, {WS_X2}')
        a.emit('s_addc_u32 s13, s23, 0')
        a.emit(f's_add_u32 s34, s22, {LSTR}')
        a.emit('s_addc_u32 s35, s23, 0')
    a.emit(f's_add_u32 s{S_TSI}, s{S_TSI}, 1')
    a.emit(f's_branch L_{nxt}_' + ('compute' if comp and (NV or LF2 == 2) and nxt == 'w2' else 'body'))

def last_check(a, kind):
    if kind == 'w2' or (kind == 'attn' and not ONE):
        a.emit(f's_cmp_eq_u32 s{S_LAYER}, {0 if kind == "attn" else 1}')
        a.emit(f's_cbranch_scc1 L_{kind}_end')

def compute_end(a, kind):
    if not MEGA:
        stamps_out(a, kind)
        a.emit('s_endpgm')
        return
    if not TS and not (SKL and kind == 'w2'): last_check(a, kind)
    if TE and kind == 'w2' and not SKL: a.lines[-1] = a.lines[-1].replace('L_w2_end', 'L_fin')
    if kind in EBAR: a.emit('s_barrier')
    import pads
    for x in pads.chain({'attn': 'he', 'wo': 'hw'}.get(kind)): a.emit(x)
    if LF2 == 2 and kind == 'w1': a.lines.append('@W2B')
    if not ((EARLY or NV) and kind == 'w1'):
        a.emit('s_waitcnt lgkmcnt(0)' if EF and kind == 'w1' else f"s_waitcnt vmcnt({int(SF and kind in ('wo', 'w2'))}) lgkmcnt(0)")
        a.emit('s_barrier')
    if TS:
        stamps_out(a, kind)
        if ENV('DIAG') and kind == 'w2': diag(a)
        last_check(a, kind)
    stamp(a, 0, nowait=True)
    next_phase(a, kind, True)

def fin(a):
    if not TE: return
    a.label('L_fin')
    a.emit('s_waitcnt vmcnt(0)')
    a.emit('s_memrealtime s[92:93]')
    srd(a, SP, 'ws0', WS_TS, 1 << 20)
    a.emit(f's_lshl2_add_u32 s4, s2, s{S_WV}')
    a.emit('s_lshl_b32 s4, s4, 3')
    a.emit('s_waitcnt lgkmcnt(0)')
    a.emit('v_mov_b32 v4, s94')
    a.emit('v_mov_b32 v5, s92')
    a.emit('s_mov_b64 exec, 1')
    a.emit(f'buffer_store_dwordx2 v[4:5], off, s[{SP}:{SP+3}], s4')
    a.emit('s_endpgm')

def diag(a):
    ph, j, K, C = [int(x) for x in ENV('DIAG').split(',')]
    a.emit(f's_lshl1_add_u32 s3, s{S_WV}, s{S_LAYER}')
    a.emit('s_cmp_lg_u32 s3, 1')
    a.emit('s_cbranch_scc1 L_diag_end')
    a.emit('s_waitcnt vmcnt(0)')
    a.emit('v_lshlrev_b32 v1, 6, v0')
    for i in range(4): a.emit(f's_mov_b32 s3, {4096*i}'); a.emit(f'buffer_load_dword v{4+i}, v1, s[{SP}:{SP+3}], s3 offen sc1')
    a.emit('s_lshl_b32 s4, s2, 6')
    a.emit(f's_add_u32 s4, s4, {(ph << 16) + 16 * j}')
    a.emit(f'buffer_load_dword v8, off, s[{SP}:{SP+3}], s4 sc1')
    a.emit('s_waitcnt vmcnt(0)')
    for i in range(4): a.emit(f'v_sub_u32 v{4+i}, v8, v{4+i}')
    a.emit('v_max_i32 v4, v4, v5'); a.emit('v_max_i32 v6, v6, v7'); a.emit('v_max_i32 v4, v4, v6')
    a.emit('s_mov_b32 s5, 0')
    a.emit('s_nop 1')
    for i in range(64):
        a.emit(f'v_readlane_b32 s3, v4, {i}')
        a.emit('s_max_i32 s5, s5, s3')
    if C: a.emit(f's_sub_u32 s5, {C}, s5'); a.emit('s_max_i32 s5, s5, 0')
    a.emit('s_min_u32 s5, s5, 15000')
    a.emit(f's_mul_i32 s5, s5, {K}')
    a.emit('s_memrealtime s[6:7]')
    a.emit('s_mov_b32 s4, 0x40000')
    a.emit('s_waitcnt lgkmcnt(0)')
    a.label('L_diag_l')
    a.emit('s_memrealtime s[8:9]')
    a.emit('s_sub_u32 s4, s4, 1')
    a.emit('s_cbranch_scc1 L_diag_end')
    a.emit('s_waitcnt lgkmcnt(0)')
    a.emit('s_sub_u32 s8, s8, s6')
    a.emit('s_cmp_lt_u32 s8, s5')
    a.emit('s_cbranch_scc1 L_diag_l')
    a.label('L_diag_end')

def loader_end(a, kind, check=True):
    if MEGA:
        if kind == LSTK and not EARLY: lstamps_out(a, kind)
        if check: last_check(a, kind)
        a.emit(f's_lshl_b32 s{S_FL}, s{S_TSI}, 15')
        a.emit(f's_lshl_b32 s4, s{S_MT}, 11')
        a.emit(f's_add_u32 s{S_FL}, s{S_FL}, s4')
        a.emit(f's_lshl_b32 s4, s{S_NT}, 2')
        a.emit(f's_add_u32 s{S_FL}, s{S_FL}, s4')
        next_phase(a, kind)

def pf_weights(a, sd, which, size, ldw2, R, sh, L, LMn, tilebytes, NI, vd, row0=0, qkv=False, pair=False):
    if 'nopf' in DBG: return 0
    srd(a, sd, which, 0, size)
    a.emit(f's_and_b32 s3, s{S_WV}, 3')
    a.emit(f's_mul_i32 s3, s3, {NI * (64 >> sh)}')
    a.emit(f's_mul_i32 s4, s{S_CU}, {R}')
    a.emit('s_add_u32 s3, s3, s4')
    if row0: a.emit(f's_add_u32 s3, s3, {row0}')
    a.emit(f'v_lshrrev_b32 v2, {sh}, v1')
    a.emit('v_add_u32 v2, s3, v2')
    a.emit(f'v_mul_u32_u24 v2, {ldw2}, v2')
    a.emit(f'v_and_b32 v3, {(1 << sh) - 1}, v1')
    if L < (1 << sh): a.emit(f'v_min_u32 v3, {L-1}, v3')
    if qkv:
        a.emit('v_lshrrev_b32 v12, 2, v3')
        a.emit('v_lshl_add_u32 v2, v12, 11, v2')
        a.emit('v_and_b32 v3, 3, v3')
    a.emit(f'v_lshl_add_u32 v2, v3, {8 if pair else 7}, v2')
    a.emit('s_and_b32 s3, s2, 7')
    a.emit(f's_lshr_b32 s3, s3, {4 - LMn}')
    a.emit(f's_mul_i32 s3, s3, {tilebytes if pair else (1 << (5 - LMn)) * tilebytes}')
    for i in range(NI):
        a.emit(f'buffer_load_dword v{vd+i}, v2, s[{sd}:{sd+3}], s3 offen')
        if i + 1 < NI: a.emit(f's_add_u32 s3, s3, {(64 >> sh) * ldw2}')
    return NI

_pfc = [0]
def pf_code(a, start, end, vd, forward=True):
    if 'nopfc' in DBG: return 0
    _pfc[0] += 1
    lab = f'L_pfc{_pfc[0]}'
    a.emit('s_getpc_b64 s[4:5]')
    a.label(lab)
    if forward:
        a.emit(f's_add_u32 s4, s4, {start}-{lab}')
        a.emit('s_addc_u32 s5, s5, 0')
    else:
        a.emit(f's_sub_u32 s4, s4, {lab}-{start}')
        a.emit('s_subb_u32 s5, s5, 0')
    a.emit(f's_and_b32 s3, s{S_WV}, 3')
    a.emit('s_lshl_b32 s3, s3, 13')
    a.emit('v_lshl_add_u32 v2, v1, 7, s3')
    a.emit(f'v_min_u32 v2, {end}-{start}-4, v2')
    a.emit(f'global_load_dword v{vd}, v2, s[4:5]')
    return 1

def wbase(a, vd, vt, g='v2', nr=False):
    if nr: a.emit(f'v_lshrrev_b32 v{vd}, 2, v1')
    else:
        a.emit(f'v_bfe_u32 v{vd}, v1, 2, 2')
        a.emit(f'v_lshl_add_u32 v{vd}, {g}, 3, v{vd}')
    a.emit(f'v_lshlrev_b32 v{vd}, 7, v{vd}')
    a.emit(f'v_and_b32 v{vt}, 3, v1')
    a.emit(f'v_lshl_add_u32 v{vd}, v{vt}, 3, v{vd}')
    a.emit(f'v_bfe_u32 v{vt}, v1, 3, 2')
    a.emit(f'v_lshl_add_u32 v{vd}, v{vt}, 5, v{vd}')


def code_touch(a, start, end, nb, sd=SX, loader=False):
    if ENV('CT', '1') == '0': return
    _pfc[0] += 1
    lab = f'L_pfc{_pfc[0]}'
    a.emit(f's_cmp_lg_u32 s{S_LAYER}, 0')
    a.emit(f's_cbranch_scc1 {lab}_skip')
    a.emit('s_getpc_b64 s[4:5]')
    a.label(lab)
    a.emit(f's_lshl_b32 s3, s{S_CU}, 2')
    a.emit(f's_add_u32 s3, s3, s{S_WV}')
    if loader: a.emit('s_sub_u32 s3, s3, 4')
    a.emit(f's_mul_i32 s3, s3, {nb}')
    a.emit(f's_min_u32 s3, s3, {end}-{start}-{nb}')
    a.emit(f's_add_i32 s3, s3, {start}-{lab}')
    a.emit('s_ashr_i32 s6, s3, 31')
    a.emit('s_add_u32 s4, s4, s3')
    a.emit('s_addc_u32 s5, s5, s6')
    for i in range(nb // 64):
        a.emit(f's_load_dword s{84 if loader else SW}, s[4:5], {64*i}')
    a.label(f'{lab}_skip')

def loader_first(a, kind):
    if ENV('LF', '1') == '0': return
    L = a.lines
    ib = max(i for i, l in enumerate(L) if l.strip() == f's_cbranch_scc1 L_{kind}_loader')
    il = L.index(f'L_{kind}_loader:')
    ie = L.index(f'L_{kind}_end:') + 2
    assert L[ie - 1].strip() == 's_endpgm' and L[ib - 1].strip().startswith('s_cmp_ge_u32')
    L[ib - 1] = L[ib - 1].replace('s_cmp_ge_u32', 's_cmp_lt_u32')
    L[ib] = f'  s_cbranch_scc1 L_{kind}_compute'
    a.lines = L[:ib + 1] + L[il:ie] + [f'L_{kind}_compute:'] + L[ib + 1:il] + L[ie:]

def clear_flags(a, part, n=0):
    if not ONE or DS: return
    if part == 0 and 'attn' not in OT: a.emit(f's_load_dwordx2 s[{SC}:{SC+1}], s[0:1], 72')
    a.emit(f's_or_b32 s3, s{S_LAYER}, s{S_WV}')
    a.emit(f's_cbranch_scc1 L_clr_skip{part}')
    if part == 0:
        srd(a, SP, 'ws0', WS_FL, FLS)
        a.emit('s_lshl_b32 s3, s2, 11')
        a.emit('v_lshlrev_b32 v2, 4, v1')
        a.emit(f'buffer_store_dwordx4 v[128:131], v2, s[{SP}:{SP+3}], s3 offen sc1')
        a.emit(f'buffer_store_dwordx4 v[128:131], v2, s[{SP}:{SP+3}], s3 offen offset:1024 sc1')
    else:
        a.emit('v_mov_b32 v3, 1')
        a.emit(f's_and_b32 s{SC+1}, s{SC+1}, 0xffff')
        a.emit(f's_mov_b32 s{SC+2}, 256')
        a.emit(f's_mov_b32 s{SC+3}, 0x00020000')
        a.emit('s_mov_b64 exec, 1')
        a.emit(f's_waitcnt vmcnt({n})')
        a.emit(f'buffer_store_byte v3, off, s[{SC}:{SC+3}], s2 sc1')
        a.emit('s_mov_b64 exec, -1')
    a.label(f'L_clr_skip{part}')

def mf_order(nn, nm, skip=lambda jn, jm: False):
    m = ENV(f'MFO{nn}', ENV('MFO', 's'))
    if m == 'n': o = [(jn, jm) for jn in range(nn) for jm in range(nm)]
    elif m == 's': o = [(jn, jm if not jn & 1 else nm - 1 - jm) for jn in range(nn) for jm in range(nm)]
    elif m == 'm': o = [(jn, jm) for jm in range(nm) for jn in range(nn)]
    elif m == 'z': o = [(jn if not jm & 1 else nn - 1 - jn, jm) for jm in range(nm) for jn in range(nn)]
    elif m == 'd': o = [(i % nn, (i // nn + i % nn) % nm) for i in range(nn * nm)]
    return [x for x in o if not skip(*x)]
```

```python
from common import *
LM_WO = int(ENV('LM_WO', '2')); LM_W1 = int(ENV('LM_W1', '3')); LM_W2 = int(ENV('LM_W2', '2')); LM_QKV = int(ENV('LM_QKV', '3'))
PFW2 = int(ENV('PFW2', '0'))
PV = 96

def fin(a):
    a.emit('s_waitcnt vmcnt(0)')

def pf_wo(a):
    L = 1 << (5 - LM_WO)
    sh = 5 - LM_WO
    return pf_weights(a, SP, 'wo', 2 * MB, 2048, 32, sh, L, LM_WO, 128, max(1, (8 << sh) // 64), PV, pair=SPX)

PF1 = int(ENV('PF1', '0'))
def pf_w1(a, sd=SP):
    if not PF1: return 0
    lm = 2 if 'w1' in OT else LM_W1
    u = 1 << (5 - lm)
    sh = 7 - lm
    srd(a, sd, 'w1', 0, 1024 * 7168)
    a.emit(f's_and_b32 s3, s{S_WV}, 3')
    a.emit(f's_lshl2_add_u32 s3, s{S_CU}, s3')
    a.emit(f's_mul_i32 s3, s3, {64 >> sh}')
    a.emit(f"s_add_u32 s3, s3, {1024 - int(ENV('PF1B', '64'))}")
    a.emit(f'v_lshrrev_b32 v2, {sh}, v1')
    a.emit('v_add_u32 v12, s3, v2')
    a.emit(f'v_and_b32 v3, {4 * u - 1}, v1')
    a.emit(f'v_min_u32 v3, {7 * u // 2 - 1}, v3')
    a.emit('s_and_b32 s3, s2, 7')
    a.emit(f's_lshr_b32 s3, s3, {4 - lm}')
    a.emit(f's_mul_i32 s4, s3, {-(u // 2)}')
    a.emit(f's_add_u32 s4, s4, {16 - u}')
    a.emit(f's_mul_i32 s5, s3, {u}')
    a.emit(f's_add_u32 s5, s5, {24 - 3 * u // 2}')
    a.emit(f's_mul_i32 s3, s3, {u * 128}')
    a.emit(f'v_cmp_le_u32 vcc, {u}, v3')
    a.emit('v_mov_b32 v2, s4')
    a.emit('v_mov_b32 v13, s5')
    a.emit('v_cndmask_b32 v2, 0, v2, vcc')
    a.emit(f'v_cmp_le_u32 vcc, {3 * u // 2}, v3')
    a.emit('s_movk_i32 s4, 7168')
    a.emit('s_nop 0')
    a.emit('v_cndmask_b32 v2, v2, v13, vcc')
    a.emit('v_add_lshl_u32 v3, v3, v2, 7')
    for i in range(PF1):
        if i: a.emit(f'v_add_u32 v12, {128 * (64 >> sh)}, v12')
        a.emit('v_and_b32 v2, 1023, v12')
        a.emit('v_mad_u32_u24 v2, v2, s4, v3')
        a.emit(f'buffer_load_dword v{PV+4+i}, v2, s[{sd}:{sd+3}], s3 offen')
    return PF1

def touch(a, which, size, vd, l0only=True):
    if 'nopf' in DBG: return 0
    per = size // 128 // 1024
    assert per <= 64
    srd(a, SP, which, 0, size)
    a.emit(f's_and_b32 s3, s{S_WV}, 3')
    a.emit('s_lshl_b32 s4, s2, 2')
    a.emit('s_add_u32 s3, s3, s4')
    a.emit(f's_mul_i32 s3, s3, {per * 128}')
    a.emit(f'v_min_u32 v2, {per - 1}, v1')
    a.emit('v_lshlrev_b32 v2, 7, v2')
    if l0only:
        a.emit(f's_sub_u32 s4, s{S_LAYER}, 1')
        a.emit('v_and_b32 v2, s4, v2')
    a.emit(f'buffer_load_dword v{vd}, v2, s[{SP}:{SP+3}], s3 offen')
    return 1

def fill(a):
    if ENV('DX', '2') != '1' or ENV('CLP', 'e') != 't': return 0
    srd(a, SB, 'ws', WS_XP, 4 * MB)
    a.emit('s_and_b32 s3, s2, 3')
    a.emit(f's_and_b32 s4, s{S_CU}, 3')
    a.emit('s_lshl2_add_u32 s3, s3, s4')
    a.emit('s_bfe_u32 s4, s2, 0x10002')
    a.emit(f's_lshr_b32 s5, s{S_CU}, 2')
    a.emit('s_lshl1_add_u32 s4, s5, s4')
    a.emit('s_lshl4_add_u32 s3, s3, s4')
    a.emit(f's_and_b32 s4, s{S_WV}, 3')
    a.emit('s_lshl2_add_u32 s3, s3, s4')
    a.emit('s_lshl_b32 s3, s3, 12')
    a.emit('v_lshlrev_b32 v2, 4, v1')
    for i in range(4): a.emit(f'v_mov_b32 v{24+i}, -1')
    for i in range(4): a.emit(f'buffer_store_dwordx4 v[24:27], v2, s[{SB}:{SB+3}], s3 offen offset:{1024*i} sc1')
    return 4

CE = dict((int(x.split(':')[0]), int(x.split(':')[1])) for x in ENV('CE', '0:2,1:2,2:2,3:2').split(',') if x)
def cs_setup(a, sd, so, vo):
    srd(a, sd, 'w1', 0, 0 if 'nocs' in DBG else 1024 * 7168)
    a.emit('s_min_u32 s3, s2, 223')
    a.emit('s_mul_i32 s4, s3, 4682')
    a.emit('s_lshr_b32 s4, s4, 16')
    a.emit('s_mul_i32 s5, s4, 14')
    a.emit('s_sub_u32 s3, s3, s5')
    a.emit('s_lshl_b32 s3, s3, 2')
    a.emit(f's_and_b32 s5, s{S_WV}, 3')
    a.emit('s_add_u32 s3, s3, s5')
    a.emit(f's_mul_i32 s5, s4, {64 * 7168}')
    a.emit('s_lshl_b32 s8, s3, 7')
    a.emit(f's_add_u32 s{so}, s5, s8')
    a.emit('s_lshl_b32 s9, s4, 14')
    a.emit('s_lshl_b32 s8, s3, 8')
    a.emit('s_add_u32 s94, s9, s8')
    a.emit('v_lshrrev_b32 v2, 3, v1')
    a.emit('v_mul_u32_u24 v2, 7168, v2')
    a.emit('v_and_b32 v3, 7, v1')
    a.emit(f'v_lshl_add_u32 v{vo}, v3, 4, v2')
def cs_loads(sd, so, vo, js):
    o = []
    for j in js:
        o.append(f'buffer_load_dwordx4 v[{64+4*j}:{67+4*j}], v{vo}, s[{sd}:{sd+3}], s{so} offen')
        if j < 7: o.append(f's_add_u32 s{so}, s{so}, {8 * 7168}')
    return o
def cs_at(i):
    j0 = sum(n for e, n in CE.items() if e < i)
    return cs_loads(SB, 95, 26, range(j0, j0 + CE.get(i, 0)))

CFS = [int(x) for x in ENV('CFS', '14,14,14,14,15,15,15,15').split(',')]
def cs_acc(i, fin=False):
    if not CF or i not in CFS or (i == 15 and not fin): return []
    o = ['s_mov_b32 s5, 0xffff0000']; C8 = CFS[:8] if len(CFS) >= 8 else [x for x in CFS for _ in range(8 // len(CFS))]
    for j in [j for j in range(8) if C8[j] == i]:
        for k in range(4):
            x = 64 + 4 * j + k; d = 100 + 2 * k
            if j: o += [f'v_lshlrev_b32 v108, 16, v{x}', f'v_and_b32 v{x}, s5, v{x}', f'v_add_f32 v{d}, v{d}, v108', f'v_add_f32 v{d+1}, v{d+1}, v{x}']
            else: o += [f'v_lshlrev_b32 v{d}, 16, v{x}', f'v_and_b32 v{d+1}, s5, v{x}']
    return o
def cs_out(a, r):
    srd(a, SB, 'ws0', WS_CS, 16 * 16384)
    for i in range(4): a.emit(f'v_permlane32_swap_b32 v{r+i}, v{r+4+i}')
    for i in range(4): a.emit(f'v_add_f32 v{r+i}, v{r+i}, v{r+4+i}')
    a.emit('v_and_b32 v2, 7, v1')
    a.emit('v_lshlrev_b32 v2, 5, v2')
    for i in range(2): a.emit(f'v_permlane16_swap_b32 v{r+i}, v{r+2+i}')
    for i in range(2): a.emit(f'v_add_f32 v{r+i}, v{r+i}, v{r+2+i}')
    a.emit('v_lshrrev_b32 v3, 4, v1')
    a.emit(f'v_lshl_add_u32 v{r+2}, v3, 3, v2')
    for i in range(2): a.emit(f'v_add_f32_dpp v{r+i}, v{r+i}, v{r+i} row_ror:8 row_mask:0xf bank_mask:0xf')
CS_ST = f'buffer_store_dwordx2 v[100:101], v102, s[{SB}:{SB+3}], s94 offen sc1'

def qkv(a, layer, phase, npre=0):
    if phase == 'issue':
        n = 0
        if layer == 0:
            if not CE:
                cs_setup(a, SC, 5, 2)
                for x in cs_loads(SC, 5, 2, range(8)): a.emit(x)
                n += 8
            from gemmw2 import zero_flags
            if not ONE: n += zero_flags(a)
            if ENV('TW2') == 'qkv': n += touch(a, 'w2', 3584 * 2048, PV + 2, False)
        if ENV('CLO', '0') == '1': n += fill(a)
        if ENV('PWO', 'v') == 'v': n += pf_wo(a)
        if str(layer) in ENV('PF1L', '01'): n += pf_w1(a)
        if ENV('CLO', '0') == '0': n += fill(a)
        if CF and layer == 0:
            if 15 not in CFS: cs_out(a, 100)
            if GM and CF == 2: l2_mode(a, 21)
        return n
    if layer == 0:
        a.emit(f's_waitcnt vmcnt({npre})')
        a.emit('s_mov_b32 s7, 0xffff0000')
        for i in range(4):
            a.emit(f'v_lshlrev_b32 v{32+2*i}, 16, v{64+i}')
            a.emit(f'v_and_b32 v{33+2*i}, s7, v{64+i}')
        for j in range(1, 8):
            for i in range(4):
                a.emit(f'v_lshlrev_b32 v40, 16, v{64+4*j+i}')
                a.emit(f'v_and_b32 v41, s7, v{64+4*j+i}')
                a.emit(f'v_pk_add_f32 v[{32+2*i}:{33+2*i}], v[{32+2*i}:{33+2*i}], v[40:41]')
        srd(a, SB, 'ws0', WS_CS, 16 * 16384)
        for i in range(4): a.emit(f'v_permlane32_swap_b32 v{32+i}, v{36+i}')
        for i in range(4): a.emit(f'v_add_f32 v{32+i}, v{32+i}, v{36+i}')
        a.emit('v_and_b32 v2, 7, v1')
        a.emit('v_lshlrev_b32 v2, 5, v2')
        for i in range(2): a.emit(f'v_permlane16_swap_b32 v{32+i}, v{34+i}')
        for i in range(2): a.emit(f'v_add_f32 v{32+i}, v{32+i}, v{34+i}')
        a.emit('v_lshrrev_b32 v3, 4, v1')
        a.emit('v_lshl_add_u32 v2, v3, 3, v2')
        for i in range(2): a.emit(f'v_add_f32_dpp v{32+i}, v{32+i}, v{32+i} row_ror:8 row_mask:0xf bank_mask:0xf')
        a.emit(f'buffer_store_dwordx2 v[32:33], v2, s[{SB}:{SB+3}], s94 offen sc1')
        if ONE and not SPX: a.emit('s_waitcnt vmcnt(0)')
    else:
        fin(a)

def wo(a, phase):
    if phase == 'issue':
        return touch(a, 'w2', 3584 * 2048, PV) if ENV('TW2') == 'wo' else 0
    fin(a)

SL = int(ENV('SL', '64'))
def stouch(a, which, size, sd, sreg, first, lps, pre=0, per=None):
    if lps == 0: return []
    srd(a, sd, which, 0, size)
    a.emit(f's_cmp_eq_u32 s{S_LAYER}, 0')
    a.emit(f's_cselect_b32 s{sd+2}, s{sd+2}, 0')
    a.emit(f's_and_b32 s3, s{S_WV}, 3')
    a.emit('s_lshl_b32 s4, s2, 2')
    a.emit('s_add_u32 s3, s3, s4')
    if per and ENV('STC', '0') == '1':
        a.emit(f's_mul_i32 s{sreg}, s3, {lps * SL}')
        a.emit(f's_add_u32 s{sreg}, s{sreg}, {first * SL * 1024}')
        o = [f's_buffer_load_dword s84, s[{sd}:{sd+3}], s{sreg} offset:{SL*i}' for i in range(lps)] + [f's_add_u32 s{sreg}, s{sreg}, {SL*lps*1024}']
        assert pre in (0, lps)
        for x in o if pre else []: a.emit(x)
        return o
    a.emit(f's_mul_i32 s{sreg}, s3, {per * SL // 64 if per else size // 1024}')
    if per:
        a.emit(f's_add_u32 s{sreg}, s{sreg}, {first * SL * 1024}')
        first = 0
    for i in range(pre): a.emit(f's_buffer_load_dword s84, s[{sd}:{sd+3}], s{sreg} offset:{SL*(first+i)}')
    return [f's_buffer_load_dword s84, s[{sd}:{sd+3}], s{sreg} offset:{SL*(first+pre+i)}' for i in range(lps)] + [f's_add_u32 s{sreg}, s{sreg}, {SL*lps}']

STV = [int(x) for x in ENV('STV', '4,0,4,0').split(',')]
PF0 = int(ENV('PF0', '0')); NQ = 14 - PF0
STO = [int(x) for x in ENV('STO', '0,0,0,0').split(',')]
def stouch_post(a, kind):
    if ENV('TW2', 's') != 's': return ()
    if kind == 'attn':
        n1 = int(ENV('STW1', '0'))
        return stouch(a, 'w1', 1024 * 7168, SB, 86, 0, n1, per=14 * 64 * n1) + stouch(a, 'w2', 3584 * 2048, SR, S_T, 0, STV[0], per=NQ * 64 * STV[0]) + stouch(a, 'wo', 2 * MB, SB, 86, 0, STV[3], pre=max(0, 32 - 14 * STV[3]))
    if kind == 'wo': return stouch(a, 'w2', 3584 * 2048, SP, S_T, 14 * STV[0], STV[1])
    if kind == 'w1': return stouch(a, 'w2', 3584 * 2048, SP, S_T, NQ * STV[0] + sum(STO), STV[2], per=14 * 64 * STV[2], pre=STV[2] if 'w1' in OT else 0)
    if kind == 'w2': return cls_w2(a)
    return ()

def cls_w2(a):
    P = int(ENV('CW2', '8'))
    if P == 0: return ()
    a.emit(f's_and_b32 s3, s{S_WV}, 3')
    a.emit(f's_lshl_b32 s4, s{S_CU}, 2')
    a.emit('s_add_u32 s3, s3, s4')
    a.emit('s_lshl_b32 s4, s3, 6')
    a.emit('s_and_b32 s4, s4, 64')
    a.emit('s_lshr_b32 s3, s3, 1')
    a.emit(f's_lshl_b32 s{S_T}, s3, 11')
    a.emit(f's_add_u32 s{S_T}, s{S_T}, s4')
    a.emit(f's_sub_u32 s4, 384, s{SW}')
    a.emit('s_and_b32 s4, s4, 0x380')
    a.emit(f's_add_u32 s{S_T}, s{S_T}, s4')
    a.emit(f's_lshl_b32 s4, s{S_NT}, 7')
    a.emit('s_and_b32 s4, s4, 1024')
    a.emit(f's_add_u32 s{S_T}, s{S_T}, s4')
    a.emit(f's_add_u32 s{S_T}, s{S_T}, {(30 if VW else 16 * max(1, PFW2) if XD else 4) * 131072}')
    o = [f's_buffer_load_dword s84, s[{SW}:{SW+3}], s{S_T}', f's_add_u32 s{S_T}, s{S_T}, 131072']
    if VW:
        for x in o * (P // 2): a.emit(x)
        return o * 2
    for i in range(P + 1):
        for x in o: a.emit(x)
    return o

def w1(a, phase):
    if phase == 'late' or (phase == 'issue' and ENV('PFL', '2') == '0'):
        NI = PFW2
        if phase == 'late' and ENV('PFL', '2') == '0': return
        if XD and NI: return pf_weights(a, SR, 'w2', 3584 * 2048, 2048, 32 * NI, 3, 8, 2, 128, NI, PV)
        return 0
    if phase == 'issue': return 0
    if not XD: fin(a)

def w2(a, phase):
    return 0

def cls_touch(a):
    m = ENV('CLS', 'w')
    if m == '0': return
    a.emit(f's_and_b32 s3, s{S_WV}, 3')
    a.emit('s_lshl_b32 s4, s2, 2')
    a.emit('s_add_u32 s3, s3, s4')
    a.emit(f's_sub_u32 s4, 384, s{SW}')
    a.emit('s_and_b32 s4, s4, 0x380')
    a.emit('s_mul_i32 s5, s3, 6144')
    a.emit('s_add_u32 s5, s5, s4')
    for j in range(6):
        for h in range(2): a.emit(f's_buffer_load_dword s84, s[{SW}:{SW+3}], s5 offset:{1024*j+64*h}')
    if m == 'wx':
        a.emit(f's_sub_u32 s4, 384, s{SX}')
        a.emit('s_and_b32 s4, s4, 0x380')
        a.emit('s_lshl_b32 s5, s3, 12')
        a.emit('s_add_u32 s5, s5, s4')
        for j in range(4):
            for h in range(2): a.emit(f's_buffer_load_dword s84, s[{SX}:{SX+3}], s5 offset:{1024*j+64*h}')
```

```python
from common import *
from gemmw1 import *

def res_addr(a, swv, sd, v):
    assert int(ENV('LM_WO', '2')) == 2 and int(ENV('LM_W2', '2')) == 2
    srd(a, sd, 'A_x', 0, 4 * MB)
    a.emit('s_and_b32 s3, s2, 3')
    a.emit(f's_and_b32 s4, s{S_CU}, 3')
    a.emit('s_lshl2_add_u32 s3, s3, s4')
    a.emit(f's_lshl2_add_u32 s3, s3, s{swv}')
    a.emit('s_lshl_b32 s3, s3, 16')
    a.emit('s_bfe_u32 s4, s2, 0x10002' if SPX else 's_and_b32 s4, s2, 4')
    a.emit(f's_lshr_b32 s5, s{S_CU}, 2')
    a.emit('s_lshl1_add_u32 s4, s5, s4' if SPX else 's_lshl1_add_u32 s4, s4, s5')
    a.emit('s_lshl_b32 s4, s4, 7')
    a.emit('s_add_u32 s3, s3, s4')
    a.emit('s_add_u32 s4, s3, 32768')
    a.emit(f'v_and_b32 v{v}, 15, v1')
    a.emit(f'v_lshlrev_b32 v{v+1}, 1, v1')
    a.emit(f'v_and_b32 v{v+1}, 32, v{v+1}')
    a.emit(f'v_lshl_add_u32 v{v}, v{v}, 11, v{v+1}')
    a.emit(f'v_lshrrev_b32 v{v+1}, 1, v1')
    a.emit(f'v_and_b32 v{v+1}, 16, v{v+1}')
    a.emit(f'v_add_u32 v{v}, v{v}, v{v+1}')

def dbg_off(a, v):
    a.emit(f's_lshl_b32 s3, s{S_MT}, 2')
    a.emit('s_sub_u32 s3, s3, 4')
    a.emit(f'v_and_b32 v{v}, 7, v1')
    a.emit(f'v_add_u32 v{v}, s3, v{v}')
    a.emit(f'v_max_i32 v{v}, 0, v{v}')
    a.emit(f'v_lshlrev_b32 v{v}, 2, v{v}')

def res_loads(vd, v, sd):
    return [f'buffer_load_dwordx4 v[{vd+4*i}:{vd+3+4*i}], v{v}, s[{sd}:{sd+3}], s{3+(i>>1)} offen offset:{64*(i&1)}' for i in range(4)]

def gen_qkv(a, tsidx, side):
    kind = 'attn'
    K = 1024; lda2 = 2048; ldw2 = 6144
    S = 3; LM = int(ENV('LM_QKV', '3'))
    XH = 16384 + 6 * 4096
    STAGE = XH + 2048
    LST = S * STAGE
    PT = int(ENV('PTQ', '2'))
    EX = 1024 + (2 * STAGE if PT == 2 else 0)
    N = 16
    body = f'L_{kind}_body'; end = f'L_{kind}_end'
    VB, VA = 4, 10
    VXW, VPE, VPO, VCE, VCO, VVE, VVO, VS1, VS4, VKA, VKB, MAP, MAC, MBP, MBC, VO = range(16, 32)
    M_ODD, M_UPA, M_UPB, M_FA, M_FB = 48, 50, 52, 54, 14
    F = [32, 76]; ACC = 128; HACC = 224; ONES = 236
    acc = lambda jn, jm: ACC + (jn * 4 + jm) * 4
    fx = lambda s, jm: F[s] + jm * 4
    fw = lambda s, jn: F[s] + 20 + jn * 4
    a.label(f'L_{kind}_c0')
    stub(a, f'{kind}l0_kernel', body, 0, tsidx, True)
    a.label(body)
    ot = kind in OT
    HX = LST + 1280
    tile_map(a, LM, end)
    if ot and LM != 2:
        a.emit(f's_cmp_eq_u32 s{S_LAYER}, 0')
        a.emit(f's_cbranch_scc1 L_{kind}_map')
        tile_map(a, 2, None)
        a.label(f'L_{kind}_map')
    a.emit(f's_cmp_ge_u32 s{S_WV}, 4')
    a.emit(f's_cbranch_scc1 L_{kind}_loader')
    if ENV('CTE', '1') == '1': code_touch(a, 'L_attn_c0', 'L_w2_c1', int(ENV('CTN', '320')))
    a.emit(f's_and_b32 s{S_WM}, s{S_WV}, 1')
    a.emit(f's_lshr_b32 s{S_WN}, s{S_WV}, 1')
    a.emit('v_and_b32 v3, 31, v1')
    a.emit('v_lshlrev_b32 v3, 2, v3')
    a.emit(f'v_add_u32 v3, {XH}, v3')
    for i in range(4): a.emit(f'v_mov_b32 v{ONES+i}, 0x3f803f80')
    a.emit(f'ds_write_b32 v3, v{ONES}')
    a.emit(f'ds_write_b32 v3, v{ONES} offset:{STAGE}')
    a.emit(f'v_add_u32 v3, {2*STAGE}, v3')
    a.emit(f'ds_write_b32 v3, v{ONES}')
    if ot: a.emit(f'ds_write_b32 v3, v{ONES} offset:{HX - XH - 2 * STAGE}')
    a.emit('v_and_b32 v3, 15, v1')
    a.emit('v_lshrrev_b32 v2, 4, v1')
    a.emit('v_lshrrev_b32 v33, 1, v3')
    a.emit(f's_lshl_b32 s8, s{S_WM}, 13')
    for ks in range(2):
        if ks: a.emit(f'v_add_u32 v{VB+ks}, 4, v2')
        a.emit(f'v_xor_b32 v{VB+ks}, v{VB+ks if ks else 2}, v33')
        a.emit(f'v_lshlrev_b32 v{VB+ks}, 4, v{VB+ks}')
        a.emit(f'v_lshl_add_u32 v{VB+ks}, v3, 7, v{VB+ks}')
        a.emit(f'v_add_u32 v{VB+4+ks}, {XH}, v{VB+ks}')
        a.emit(f'v_add_u32 v{VB+ks}, s8, v{VB+ks}')
    wbase(a, 34, 33)
    a.emit(f's_lshl_b32 s8, s{S_WV}, 5')
    a.emit('v_xor_b32 v34, s8, v34')
    a.emit(f'v_add_u32 v{VB+2}, 16384, v34')
    a.emit(f'v_xor_b32 v{VB+3}, 32, v{VB+2}')
    i0 = len(a.lines)
    a.emit('v_and_b32 v35, 1, v2')
    a.emit(f'v_xor_b32 v35, s{S_WM}, v35')
    a.emit(f's_lshl_b32 s8, s{S_MT}, 7')
    a.emit(f's_lshl_b32 s9, s{S_WM}, 6')
    a.emit('s_add_u32 s8, s8, s9')
    if OH:
        a.emit('s_mul_i32 s10, s8, 7')
        a.emit(f's_lshl{3 - OH}_add_u32 s11, s{S_NT}, s{S_WN}')
        a.emit('s_add_u32 s10, s10, s11')
        a.emit('s_lshl_b32 s10, s10, 10')
    else:
        a.emit(f's_add_u32 s10, s8, s{S_NT}')
        a.emit('s_lshl_b32 s10, s10, 11')
        a.emit(f's_lshl_b32 s11, s{S_WN}, 10')
        a.emit('s_add_u32 s10, s10, s11')
    if 'wo' in NS: a.emit(f'v_lshl_add_u32 v{VO}, v1, 4, s10')
    else:
        a.emit('v_lshl_add_u32 v33, v3, 4, s10')
        a.emit('v_lshl_add_u32 v33, v35, 9, v33')
        a.emit('v_lshrrev_b32 v34, 1, v2')
        a.emit(f'v_lshl_add_u32 v{VO}, v34, 8, v33')
    a.emit(f's_mul_i32 s10, s{S_WN}, {14336 if XD else 24576}')
    a.emit(f's_add_u32 s10, s10, {EX}')
    a.emit(f's_lshl_b32 s11, s{S_WM}, 10')
    a.emit('s_add_u32 s4, s10, s11')
    a.emit('s_sub_u32 s5, s10, s11')
    a.emit(f's_mul_i32 s6, s{S_WM}, 6144')
    a.emit(f'v_lshl_add_u32 v{VXW}, v1, 4, s4')
    a.emit(f'v_add_u32 v{VPE}, s6, v{VXW}')
    a.emit(f'v_lshl_add_u32 v{VPO}, v1, 4, s5')
    a.emit(f'v_add_u32 v{VPO}, s6, v{VPO}')
    a.emit(f'v_lshl_add_u32 v{VCE}, v2, 8, s4')
    a.emit(f'v_lshl_add_u32 v{VCO}, v2, 8, s5')
    a.emit(f'v_lshl_add_u32 v{VVE}, v3, 4, s4')
    a.emit(f'v_lshl_add_u32 v{VVO}, v3, 4, s5')
    a.emit(f's_lshl_b32 s10, s{S_WM}, 8')
    a.emit(f's_add_u32 s10, s10, {LST}')
    a.emit(f'v_lshl_add_u32 v{VS1}, v3, 2, s10')
    a.emit(f'v_lshl_add_u32 v{VS4}, v2, 4, s10')
    a.emit('v_and_b32 v33, 1, v3')
    a.emit(f'v_cmp_eq_u32 s[{M_ODD}:{M_ODD+1}], 1, v33')
    a.emit('v_lshl_add_u32 v34, v2, 2, v33')
    a.emit('v_add_u32 v35, 2, v34')
    a.emit(f'v_cmp_gt_u32 s[{M_UPA}:{M_UPA+1}], v34, v3')
    a.emit(f'v_cmp_gt_u32 s[{M_UPB}:{M_UPB+1}], v35, v3')
    a.emit('v_mov_b32 v36, 0xffff')
    a.emit('v_mov_b32 v37, 0xffff0000')
    a.emit(f'v_cndmask_b32 v36, v36, v37, s[{M_ODD}:{M_ODD+1}]')
    a.emit(f's_add_u32 s10, s10, {640 + 64}')
    a.emit('v_lshl_add_u32 v34, v34, 2, s10')
    a.emit('v_lshl_add_u32 v35, v35, 2, s10')
    a.emit('v_subrev_u32 v38, 64, v34')
    a.emit('v_subrev_u32 v39, 64, v35')
    a.emit(f'v_cndmask_b32 v{VKA}, v34, v38, s[{M_UPA}:{M_UPA+1}]')
    a.emit(f'v_cndmask_b32 v{VKB}, v35, v39, s[{M_UPB}:{M_UPB+1}]')
    a.emit(f'v_cndmask_b32 v{MAP}, 0, v36, s[{M_UPA}:{M_UPA+1}]')
    a.emit(f'v_cndmask_b32 v{MBP}, 0, v36, s[{M_UPB}:{M_UPB+1}]')
    a.emit(f'v_xor_b32 v{MAC}, v{MAP}, v36')
    a.emit(f'v_xor_b32 v{MBC}, v{MBP}, v36')
    a.emit('s_cmp_eq_u32 s8, 0')
    a.emit(f's_cselect_b64 s[{M_FA}:{M_FA+1}], s[{M_UPA}:{M_UPA+1}], 0')
    a.emit(f's_cselect_b64 s[{M_FB}:{M_FB+1}], s[{M_UPB}:{M_UPB+1}], 0')
    if QS:
        a.emit('s_waitcnt lgkmcnt(0)')
        srd(a, ST, 'ws0', WS_ST0, 20 * 16384)
    if ot:
        a.emit(f's_cmp_lg_u32 s{S_LAYER}, 0')
        a.emit(f's_cbranch_scc1 L_{kind}_nozero')
    for i in list(range(122 if DS else 120, 236)) + ([] if XD else list(range(240, 256))): a.emit(f'v_mov_b32 v{i}, 0')
    if DS:
        a.emit('s_waitcnt lgkmcnt(0)')
        a.emit(f's_lshl_b32 s3, s{S_WN}, 5')
        a.emit('s_add_u32 s3, s3, s8')
        a.emit(f's_lshl_b32 s4, s{S_NT}, 14')
        a.emit('s_lshl3_add_u32 s3, s3, s4')
        a.emit('v_lshrrev_b32 v121, 1, v2')
        a.emit('v_lshl_add_u32 v121, v121, 4, v3')
        a.emit('v_and_b32 v120, 1, v2')
        a.emit('v_lshl_add_u32 v121, v121, 1, v120')
        a.emit('v_lshl_add_u32 v120, v121, 2, s3')
        if not QS: srd(a, ST, 'ws0', WS_ST0, 16 * 16384)
        srd(a, SP, 'ws0', WS_FL, FLS)
        a.emit('s_lshl_b32 s3, s2, 11')
        if D2:
            a.emit(f's_cmp_lg_u32 s{S_WV}, 0')
            a.emit(f's_cbranch_scc1 L_{kind}_noclr')
            a.emit(f's_lshl_b32 s5, s{S_MT}, 10')
            a.emit('s_add_u32 s4, s4, s5')
            a.emit('v_lshlrev_b32 v121, 4, v1')
            for i in range(4): a.emit(f'v_mov_b32 v{40+i}, -1')
            a.emit(f'buffer_store_dwordx4 v[40:43], v121, s[{ST}:{ST+3}], s4 offen sc1')
            for i in range(2): a.emit(f'buffer_store_dwordx4 v[128:131], v121, s[{SP}:{SP+3}], s3 offen offset:{1024*i} sc1')
            if GM:
                a.emit('s_getreg_b32 s5, hwreg(HW_REG_XCC_ID, 0, 4)')
                if ENV('FB'): a.emit(f"s_and_b32 s5, s2, {ENV('FB')}")
                a.emit('v_lshl_or_b32 v126, s5, 1, 1')
            else: a.emit('v_mov_b32 v126, 1')
            a.label(f'L_{kind}_noclr')
        else:
            a.emit('v_lshlrev_b32 v121, 3, v0')
            a.emit(f'buffer_store_dwordx2 v[126:127], v121, s[{SP}:{SP+3}], s3 offen sc1')
            dbg_off(a, 121)
        a.emit(f's_and_b32 s{SC+1}, s{SC+1}, 0xffff')
        a.emit(f's_mov_b32 s{SC+2}, 256')
        a.emit(f's_mov_b32 s{SC+3}, 0x00020000')
        a.emit('s_mov_b32 s7, 0x3f803f80')
    if ot: a.label(f'L_{kind}_nozero')
    a.emit('s_waitcnt lgkmcnt(0)')
    if QS:
        assert D2
        a.emit(f's_lshl4_add_u32 s3, s{S_MT}, s{S_NT}')
        a.emit(f's_lshl2_add_u32 s3, s3, s{S_WV}')
        a.emit('s_lshl2_add_u32 s3, s3, 0x4000')
        a.emit('v_lshl_add_u32 v121, v3, 16, v2')
        a.emit('v_add_lshl_u32 v121, v121, s3, 4')
    RI = int(ENV('RI', '18')) if PT == 2 else -1
    if RI >= 0:
        b = Asm(); res_addr(b, S_WV, SX, 127)
        a.lines += [l.replace('v128', 'v33').replace('s_add_u32 s3, s3, s4', 's_add_u32 s42, s3, s4').replace('s4, s3, 32768', 's43, s42, 32768') for l in b.lines]
    if OH: srd(a, SO, 'ws', WS_H + OHO, 2048 * 7168 - OHO)
    else: srd(a, SO, 'ws', WS_O, 4 * MB)
    clear_flags(a, 0)
    if ENV('CTE', '1') == '0': code_touch(a, 'L_attn_c0', 'L_w2_c1', int(ENV('CTN', '320')))
    import pads
    CLQ = ENV('DX', '2') == '1' and ENV('CLP', 'e') == 'q'
    if CLQ:
        srd(a, ST, 'ws', WS_XP, 4 * MB)
        a.emit(f's_or_b32 s{ST+1}, s{ST+1}, 0x100000')
        a.emit(f's_mov_b32 s{ST+3}, 0x00800000')
        a.emit('s_and_b32 s3, s2, 3')
        a.emit(f's_and_b32 s4, s{S_CU}, 3')
        a.emit('s_lshl2_add_u32 s3, s3, s4')
        a.emit('s_bfe_u32 s4, s2, 0x10002')
        a.emit(f's_lshr_b32 s5, s{S_CU}, 2')
        a.emit('s_lshl1_add_u32 s4, s5, s4')
        a.emit('s_lshl4_add_u32 s3, s3, s4')
        a.emit(f's_lshl2_add_u32 s3, s3, s{S_WV}')
        a.emit(f's_lshl_b32 s{S_T}, s3, 12')
        for i in range(4): a.emit(f'v_mov_b32 v{116+i}, -1')
    def warm():
        a.emit(f's_cmp_lg_u32 s{S_LAYER}, 0')
        a.emit(f's_cbranch_scc1 L_{kind}_nowarm')
        a.emit('s_lshl_b32 s3, s2, 2')
        a.emit(f's_add_u32 s3, s3, s{S_WV}')
        srd(a, SX, 'xs', 0, 4 * MB); srd(a, SW, 'wqkv', 0, 6 * MB)
        a.emit('v_min_u32 v126, 31, v1')
        a.emit('v_min_u32 v127, 47, v1')
        a.emit('v_lshlrev_b32 v126, 7, v126')
        a.emit('v_lshlrev_b32 v127, 7, v127')
        a.emit('s_lshl_b32 s4, s3, 12')
        a.emit(f's_mul_i32 s5, s3, {48 * 128}')
        a.emit(f'buffer_load_dword v2, v126, s[{SX}:{SX+3}], s4 offen')
        a.emit(f'buffer_load_dword v3, v127, s[{SW}:{SW+3}], s5 offen')
        a.emit('v_mov_b32 v126, 0')
        a.emit('v_mov_b32 v127, 0')
        a.label(f'L_{kind}_nowarm')
    WARM = ENV('WARM', '0')
    if WARM == '1': warm()
    mid = []
    if ot: mid = a.lines[i0:]; del a.lines[i0:]
    def reads(s, ks, hl=True):
        o = []
        if 'noread' in DBG: return o
        for jm in range(4):
            o.append(f'ds_read_b128 v[{fx(s,jm)}:{fx(s,jm)+3}], v{VA+ks} offset:{jm*2048}')
        if hl: o.append(f'ds_read_b128 v[{fx(s,4)}:{fx(s,4)+3}], v{VA+4+ks}')
        for jn in range(6):
            for h in range(2):
                r = fw(s, jn) + 2 * h
                o.append(f'ds_read_b64_tr_b16 v[{r}:{r+1}], v{VA+2+(jn&1)} offset:{(jn>>1)*8192+ks*4096+h*512}')
        return o
    def mfma(c, x, y, cin=None):
        return f'v_mfma_f32_16x16x32_bf16 v[{c}:{c+3}], v[{x}:{x+3}], v[{y}:{y+3}], ' + (f'v[{c}:{c+3}]' if cin is None else cin)
    def mf(s):
        o = []
        if 'nomfma' in DBG: return ['s_nop 0']
        od = mf_order(6, 5, lambda jn, jm: jm == 4 and jn & 1)
        if ENV('HO', '1') == '1':
            od = [x for jn, jm in mf_order(6, 4) for x in [(jn, jm)] + [(jn, 4)] * (jm == 0 and not jn & 1)]
            if QS: od.remove((0, 4)); od = od + [(0, 4)] if s else [(0, 4)] + od
        for jn, jm in od:
            if True:
                c = acc(jn, jm) if jm < 4 else HACC + (jn >> 1) * 4
                o.append(mfma(c, fw(s, jn), fx(s, jm)) if jn < 4 else mfma(c, fx(s, jm), fw(s, jn)))
        return o
    SA = [(240, 244), (248, 252), (120, 124)]
    def mfv(hh):
        def f(s):
            o = mf(s)
            ex = []
            for i, jm in enumerate([2 * hh, 2 * hh + 1] + ([4] if hh == 0 else [])):
                ex.append(mfma(SA[i][0], ONES, fx(s, jm)))
                ex.append(mfma(SA[i][1], fx(s, jm), fx(s, jm)))
            return o if 'nostat' in DBG else ex + o
        return f
    def select():
        if CLQ:
            for i in range(4): a.emit(f'buffer_store_dwordx4 v[116:119], off, s[{ST}:{ST+3}], s{S_T} offset:{1024*i} sc1')
        if WARM == '2': warm(); a.emit('s_nop 1')
        if not ot:
            a.emit(f's_cmp_lg_u32 s{S_LAYER}, 0')
            a.emit(f's_cbranch_scc1 L_{kind}_loop')
        if XD:
            for i in range(240, 256): a.emit(f'v_mov_b32 v{i}, 0')
        a.emit(f's_cmp_lg_u32 s{S_WN}, 0')
        a.emit(f's_cbranch_scc1 L_{kind}_loopb')
        clear_flags(a, 1, 4 if CLQ else 0)
    def post():
        a.emit('v_and_b32 v32, 3, v1')
        a.emit('v_cmp_eq_u32 s[4:5], 1, v32')
        a.emit('v_cmp_eq_u32 s[6:7], 2, v32')
        a.emit('v_cmp_eq_u32 s[8:9], 3, v32')
        a.emit('v_bfe_u32 v33, v1, 2, 2')
        a.emit('v_lshrrev_b32 v34, 4, v1')
        a.emit('v_cmp_eq_u32 s[10:11], v33, v34')
        a.emit(f's_lshl_b32 s3, s{S_WN}, 7')
        a.emit(f'v_add_u32 v35, s3, v{VS1}')
        a.emit('v_and_b32 v36, 15, v1')
        a.emit(f's_cmp_eq_u32 s{S_WV}, 0')
        a.emit('s_cselect_b32 s3, 0, 576')
        a.emit(f's_add_u32 s3, s3, {LST}')
        a.emit('v_lshl_add_u32 v36, v36, 2, s3')
        for (sm, sq) in SA:
            a.emit(f'v_cndmask_b32 v{sm+1}, v{sq}, v{sq+1}, s[4:5]')
        for (sm, sq) in SA:
            a.emit(f'v_cndmask_b32 v{sm+1}, v{sm+1}, v{sq+2}, s[6:7]')
        for (sm, sq) in SA:
            a.emit(f'v_cndmask_b32 v{sm+1}, v{sm+1}, v{sq+3}, s[8:9]')
        for (sm, sq) in SA: stats_finish(a, sm)
        a.emit('s_mov_b64 exec, s[10:11]')
        a.emit(f'ds_write2_b32 v35, v{SA[0][0]}, v{SA[0][0]+1} offset0:16 offset1:176')
        a.emit(f'ds_write2_b32 v35, v{SA[1][0]}, v{SA[1][0]+1} offset0:32 offset1:192')
        a.emit(f'ds_write2_b32 v36, v{SA[2][0]}, v{SA[2][0]+1} offset0:0 offset1:160')
        a.emit('s_mov_b64 exec, -1')
        if XD:
            res_addr(a, S_WV, SX, 32)
        a.emit('s_waitcnt lgkmcnt(0)')
        if XD:
            for i in range(4):
                a.emit(f'buffer_load_dwordx4 v[{240+4*i}:{243+4*i}], v32, s[{SX}:{SX+3}], s{3+(i>>1)} offen offset:{64*(i&1)}')
        a.emit('s_barrier')
    own = lambda s: [mfma(acc(jn, jm), *((fw(s, jn), fx(s, jm)) if jn < 4 else (fx(s, jm), fw(s, jn))), None if s else '0') for jn, jm in mf_order(6, 4)]
    hw = lambda ks, c: fw(1, 2 * c) if ks else fx(1, c)
    hal = ([f'v_mov_b32 v{fx(1,c)+i}, v{fw(0,2*c)+i}' for c in range(3) for i in range(4)],
           [f'ds_read_b128 v[{fx(1,3+ks)}:{fx(1,3+ks)+3}], v{VA+4+ks} offset:{HX - XH - STAGE}' for ks in range(2)],
           [mfma(HACC + 4 * c, *((hw(ks, c), fx(1, 3 + ks)) if c < 2 else (fx(1, 3 + ks), hw(ks, c))), None if ks else '0') for ks in range(2) for c in range(3)])
    if QS: hal = (hal[0][4:], hal[1] + [f'buffer_load_dwordx4 v[122:125], v121, s[{ST}:{ST+3}], 0 offen sc1'], hal[2][1:3] + hal[2][4:])
    ch = None
    if kind in CHN:
        assert QS and PT == 2 and D2
        def tm(jn, jm, s, cin=None):
            return mfma(acc(jn, jm) if jm < 4 else HACC + (jn >> 1) * 4, *((fw(s, jn), fx(s, jm)) if jn < 4 else (fx(s, jm), fw(s, jn))), cin)
        chn = lambda od: [tm(jn, jm, s) for i, (jn, jm) in enumerate(od) for s in (i & CKN, 1 - (i & CKN))]
        sn = lambda p, q: [((p, q)[(i + 1 >> 1) & 1], i >> 1) for i in range(8)]
        cms = chn([(0, 4)] + sn(0, 1) + [(3, 3 - jm) for jm in range(4)] + [(2, jm) for jm in range(5)] + [(4, 4)] + sn(4, 5))
        ra = sorted(reads(0, 0) + reads(1, 1), key=lambda x: uses(cms, x)[0])
        r1 = [x for x in ra if uses(cms, x)[-1] >= (34 if '_tr_' in x else 50)]
        r1[:2] = r1[1::-1]
        ch = dict(ms=cms, r1=r1, r0=[x for x in ra if x not in r1], bar=int(ENV('CHQ', '23')))
        hal = ([], [f'ds_read_b128 v[{fx(ks,3)}:{fx(ks,3)+3}], v{VA+4+ks} offset:{HX - XH - STAGE}' for ks in range(2)] + hal[1][2:],
               [mfma(HACC + 2 * jn, *((fw(s, jn), fx(s, 3)) if jn < 4 else (fx(s, 3), fw(s, jn))), None if s else '0') for jn in (2, 4) for s in range(2)])
    hooks = None
    if DS:
        HK = [int(x) for x in ENV('HK', '-1,-2,-4,-5,11,13').split(',')]
        def dots(s):
            o = [f's_cmp_lg_u32 s{S_WN}, 0', f's_cbranch_scc1 L_{kind}_dot{s}']
            if ch:
                dd = lambda jm: [x for j in range(8) for r in [fx(j >> 2, jm) + (j & 3)] for x in (f'v_dot2_f32_bf16 v{122+(jm&1)}, v{r}, s7, v{122+(jm&1)}', f'v_dot2_f32_bf16 v{124+(jm&1)}, v{r}, v{r}, v{124+(jm&1)}')]
                if s: return [f's_cmp_eq_u32 s{S_WN}, 0', f's_cbranch_scc1 L_{kind}_dot1'] + dd(3) + [f'L_{kind}_dot1:']
                return ['s_waitcnt lgkmcnt(0)'] + o + [x for p in zip(dd(0), dd(1)) for x in p] + [f's_branch L_{kind}_dote0', f'L_{kind}_dot0:'] + dd(2) + [f'L_{kind}_dote0:']
            for hh in range(2):
                for j in range(8):
                    r = fx(s, 2 * hh) + (j >> 1) + 4 * (j & 1)
                    o += [f'v_dot2_f32_bf16 v{122+(j&1)}, v{r}, s7, v{122+(j&1)}', f'v_dot2_f32_bf16 v{124+(j&1)}, v{r}, v{r}, v{124+(j&1)}']
                o += [f'L_{kind}_dote{s}:'] if hh else [f's_branch L_{kind}_dote{s}', f'L_{kind}_dot{s}:']
            return o
        h1 = dots(1) + ['s_nop 2', 'v_permlane32_swap_b32 v122, v123', 'v_permlane32_swap_b32 v124, v125', 'v_add_f32 v122, v122, v123', 'v_add_f32 v124, v124, v125',
               'v_mov_b32 v126, 1', 's_nop 0', 'v_permlane16_swap_b32 v122, v124', 'v_add_f32 v122, v122, v124', f'buffer_store_dword v122, v120, s[{ST}:{ST+3}], 0 offen sc1']
        w0 = [f's_cmp_lg_u32 s{S_WV}, 0', f's_cbranch_scc1 L_{kind}_loop']
        pl = f'buffer_load_dword v127, v121, s[{SC}:{SC+3}], 0 offen sc1'
        b = Asm(); res_addr(b, S_WV, SX, 122); rs = [l.strip() for l in b.lines] + res_loads(240, 122, SX)
        hooks = list(zip(HK + [int(ENV('HKR', '14'))], [dots(0), h1, ['s_waitcnt vmcnt(0)'],
            w0 + [f's_lshl4_add_u32 s3, s{S_MT}, s{S_NT}', 's_mov_b64 exec, 1', f'buffer_store_byte v126, off, s[{SC}:{SC+3}], s3 sc1', 's_mov_b64 exec, -1'], w0 + [pl],
            w0 + ['s_mov_b32 s5, 0x100000', 'L_attn_chkl:', 's_waitcnt vmcnt(0)', 'v_cmp_ne_u32 vcc, 0x01010101, v127', f's_cbranch_vccz L_{kind}_loop',
                  pl, 's_sub_u32 s5, s5, 1', 's_cbranch_scc0 L_attn_chkl'], rs]))
        assert HK[:2] == [-1, -2]
        if D2: hooks = [(-1, dots(0) + pads.chain('h0') + w0 + hooks[2][1] + hooks[3][1][2:]), (-2, [x.replace('v_mov_b32 v126, 1', 's_nop 0') for x in h1] + pads.chain('h1')), hooks[-1]]
        if RI >= 0: del hooks[-1]
        if ENV('XSL'):
            xs = [int(x) for x in ENV('XSL').split(',')]
            hooks[1] = (hooks[1][0], hooks[1][1] + [f's_sleep {xs[0]}'])
            hooks[2] = (hooks[2][0], hooks[2][1] + [f's_sleep {xs[1]}'])
    assert ot or not DS
    PR = 32
    CS = 48
    CV = 64
    MS = 66
    RK = 76
    M4 = 84
    R4 = 104
    VV = [4 if XD else 240, 224]
    if PT: RK = 120; M4 = 76; R4 = 96
    sc = 32 ** -0.5 * 1.4426950408889634
    rms = [f'ds_read2_b32 v[{MS+2*b}:{MS+2*b+1}], v{VS1} offset0:{16*b} offset1:{160+16*b}' for b in range(5)]
    rrk = [f'ds_read2_b32 v[{RK+4*k+2*p}:{RK+4*k+2*p+1}], v{VKB if k else VKA} offset0:{32*p} offset1:{32*p+16}' for p in range(2) for k in range(2)]
    wh = [f'ds_write_b128 v{VXW}, v[{HACC+4*c}:{HACC+4*c+3}] offset:{2048*c}' for c in range(3)]
    if QS: wh[0] = f'ds_write_b128 v{VXW}, v[122:125]'
    wp = [f'ds_write_b128 v{VA if PT else VXW}, v[{acc(t,3)}:{acc(t,3)+3}] offset:{6144+1024*t}' for t in range(2, 6)]
    rm4 = [f'ds_read_b128 v[{r+4*b}:{r+4*b+3}], v{VS4} offset:{o+64*b}' for b in range(5) for r, o in ((M4, 0), (R4, 640))]
    rcs = [f'ds_read_b128 v[{CS+4*t}:{CS+4*t+3}], v{VCO if t&1 else VCE} offset:{1024*t}' for t in range(4)]
    rcv = [f'ds_read_b32 v{CV+t}, v{VVO if t else VVE} offset:{4096+1024*t}' for t in range(2)]
    rpr = [f'ds_read_b128 v[{PR+4*t}:{PR+4*t+3}], v{VPO if t&1 else VPE} offset:{2048+1024*t}' for t in range(4)]
    mul = [f'v_mul_f32 v{MS+2*b+3}, {f2u(sc):#x}, v{MS+2*b+3}' for b in range(4)] + [f'v_mul_f32 v{RK+4*k+b}, v{RK+4*k+b}, v{MS+2*b+3}' for b in range(4) for k in range(2)]
    tail = None
    if PT:
        assert WE < 0
        dst = lambda m: int(m.split('[')[1].split(':')[0])
        first = [HACC, HACC + 4, acc(2, 3), acc(3, 3), HACC + 8, acc(4, 3), acc(5, 3)]
        ms = sorted(mf(1), key=lambda m: first.index(dst(m)) if dst(m) in first else 9)
        wr = wh[:2] + wp[:2] + wh[2:] + wp[2:]
        XB_ = int(ENV('PTB', '16'))
        fl = {i: rms[i:i + 1] + rrk[i:i + 1] for i in range(5)}
        for i in range(7): fl[5 + i] = [wr[i]]
        fl[XB_] = ['s_waitcnt lgkmcnt(0)', 's_barrier']
        rest = rcs + rpr[:2] + rcv + rpr[2:] + mul
        for i in range(XB_ + 1, 27): fl[i] = rest[:2]; del rest[:2]
        tail = ([f'v_lshl_add_u32 v{VA}, s{S_WM}, 15, v{VXW}'], weave(ms, fl) + rest)
    if PT == 2:
        P0, W0, WS_, XB_ = [int(x) for x in ENV('PTP', '14,20,4,45').split(',')]
        m0 = sorted(mf(0), key=lambda m: first.index(dst(m)) if dst(m) in first else 9)
        ms = m0[:P0] + ms[:7] + m0[P0:] + ms[7:]
        r1 = reads(1, 1); r1 = r1[4:7] + r1[9:11] + r1[3:4] + r1[11:] + r1[:3] + r1[7:9]
        if ch:
            le = [(0, 3), (1, 3)] + sn(4, 5)[:6]
            ms = chn([(0, 4)] + sn(0, 1)[:6] + [(2, 4), (2, 3), (3, 3), (4, 4), (4, 3), (5, 3), (3, 2), (3, 1), (3, 0), (2, 0), (2, 1), (2, 2)]) + [tm(*t, s) for s in range(2) for t in le]
            r1 = sorted(ch['r1'], key=lambda x: uses(ms, x)[0])
            assert XB_ >= 45
        fl = {i: [x] for i, x in enumerate(r1)}
        fl[0] += [f's_mul_i32 s3, s{S_WM}, -32768']; fl[7 if ch else 1] += [f'v_add_u32 v{VA}, s3, v{VXW}']
        if ch: fl[13] += ['s_waitcnt lgkmcnt(8)']; fl[19] = ['s_waitcnt lgkmcnt(0)']; assert W0 > 19
        if not ch: fl[P0 - 1] = fl.get(P0 - 1, []) + [f's_waitcnt lgkmcnt({max(0, min(P0, 17) - 12)})']
        for i in range(7): fl[W0 + WS_ * i] = fl.get(W0 + WS_ * i, []) + [wr[i]]
        assert P0 >= 12 and W0 >= 17
        if not ch: fl[33] = fl.get(33, []) + [f's_waitcnt lgkmcnt({sum(W0 + WS_ * i <= 33 for i in range(7))})']
        fl[XB_] = ['s_waitcnt lgkmcnt(0)', 's_barrier']
        if RI >= 0:
            fl[RI - 1] = fl.get(RI - 1, []) + [f's_cmp_lg_u32 s{S_LAYER}, 0'] + ['s_waitcnt vmcnt(0)'] * QS
            fl[RI] = fl.get(RI, []) + ['s_cbranch_scc1 L_attn_nores'] + [x.replace('s4 ', 's43 ').replace('s3 ', 's42 ') for x in res_loads(240, 127, SX)] + (
                [f'buffer_store_dwordx4 v[{HACC}:{HACC+3}], v121, s[{ST}:{ST+3}], 0 offen sc1'] + [f'v_mov_b32 v{122+i}, v{HACC+i}' for i in range(4)]) * QS + ['L_attn_nores:']
        rest = rcs[:2] + rms[1:2] + rcs[2:] + rms[2:] + rms[:1] + rpr + rcv + rrk
        NL = len(rest) - 5
        for i in range(XB_ + 1, 54): fl[i] = rest[:2]; del rest[:2]
        NL -= len(rest); rm4 = rest + rm4
        tail = (None, weave(ms, fl))
        if ch: tail = (None, lambda pend: (waits_for(ms[:XB_ + 1], fl, pend, -1), weave(ms, fl))[1])
    big_loop(a, kind, N, S, STAGE, 6, VB, VA, reads, mf, variants=None if DS else {'a': mfv(0), 'b': mfv(1)}, select=select, post=post, mid=mid, hooks=hooks,
             ot=own if ot else None, halo=hal if ot else None, tail=tail, ch=ch)
    if not PT:
        for x in rms + rrk + wh: a.emit(x)
        a.emit(f's_cmp_eq_u32 s{S_WM}, 1')
        a.emit(f's_cbranch_scc1 L_{kind}_nop3')
        for x in wp: a.emit(x)
        a.label(f'L_{kind}_nop3')
        for x in rm4: a.emit(x)
        a.emit('s_waitcnt lgkmcnt(10)')
        a.emit('s_barrier')
        for x in rcs + rcv + rpr + mul: a.emit(x)
    a.emit(f's_waitcnt lgkmcnt({NL if PT == 2 else 6})')
    AE = int(ENV('AE', '7'))
    def qk(x, y, cs, b, d, mm=None):
        m = f'v[{MS+2*b}:{MS+2*b+1}]'
        for (z, c) in ((x, cs), (y, cs + 4)):
            for h in range(2):
                a.emit(f'v_pk_fma_f32 v[{z+2*h}:{z+2*h+1}], v[{c+2*h}:{c+2*h+1}], {m}, v[{z+2*h}:{z+2*h+1}] op_sel:[0,0,0] op_sel_hi:[1,0,1] neg_lo:[0,1,0] neg_hi:[0,1,0]')
        if mm and AE & 1: a.emit(mm)
        a.emit(f'v_cvt_pk_bf16_f32 v{d}, v{x}, v{x+1}')
        a.emit(f'v_cvt_pk_bf16_f32 v{d+1}, v{x+2}, v{x+3}')
        a.emit(f'v_cvt_pk_bf16_f32 v{d+2}, v{y}, v{y+1}')
        a.emit(f'v_cvt_pk_bf16_f32 v{d+3}, v{y+2}, v{y+3}')
    Q = lambda b: acc(0, b); Kf = lambda b: acc(2, b) if b >= 0 else PR
    Sc = lambda b: acc(1, b); Sp = lambda b: acc(3, (b - (AE & 1)) & 3)
    for b in range(4):
        qk(acc(0, b), acc(1, b), CS, b + 1, Q(b), b and mfma(Sc(b - 1), Kf(b - 1), Q(b - 1), '0'))
        nr = (len(rm4) + 5) // 6
        for x in rm4[2*nr*b:2*nr*b+nr] if PT else []: a.emit(x)
        qk(acc(2, b), acc(3, b), CS + 8, b + 1, Kf(b), b and mfma(Sp(b), Kf(b - 1), Q(b), '0'))
        if PT == 2 and b == 0:
            assert NL >= 3
            a.emit(f's_waitcnt lgkmcnt({NL - 3 + nr})')
        for x in rm4[2*nr*b+nr:2*nr*b+2*nr] if PT else []: a.emit(x)
        if b == 3:
            a.emit('s_waitcnt lgkmcnt(0)')
            qk(PR, PR + 4, CS + 8, 0, PR, mfma(Sc(3), Kf(3), Q(3), '0'))
        if b >= 1 and not AE & 1:
            a.emit(mfma(Sc(b - 1), Kf(b - 1), Q(b - 1), '0'))
            if b >= 2: a.emit(mfma(Sp(b - 1), Kf(b - 2), Q(b - 1), '0'))
    if AE & 1:
        for x in mul[:2]: a.emit(x)
        del mul[:2]
    else:
        a.emit(mfma(Sc(3), Kf(3), Q(3), '0'))
        a.emit(mfma(Sp(3), Kf(2), Q(3), '0'))
    a.emit(mfma(Sp(0), Kf(-1), Q(0), '0'))
    for x in mul if PT == 2 else []: a.emit(x)
    def vconv(x, t, b):
        cv = f'v[{CV}:{CV+1}]'
        for h in range(2):
            a.emit(f'v_pk_fma_f32 v[{x+2*h}:{x+2*h+1}], v[{M4+4*b+2*h}:{M4+4*b+2*h+1}], {cv}, v[{x+2*h}:{x+2*h+1}] op_sel:[0,{t},0] op_sel_hi:[1,{t},1] neg_lo:[1,0,0] neg_hi:[1,0,0]')
        for h in range(2):
            a.emit(f'v_pk_mul_f32 v[{x+2*h}:{x+2*h+1}], v[{x+2*h}:{x+2*h+1}], v[{R4+4*b+2*h}:{R4+4*b+2*h+1}]')
        for h in range(2):
            a.emit(f'v_cvt_pk_bf16_f32 v{VV[t]+2*b+h}, v{x+2*h}, v{x+2*h+1}')
    for t in range(2):
        vconv(PR + 8 + 4 * t, t, 0)
        for b in range(4): vconv(acc(4 + t, b), t, b + 1)
    if AE & 2: vf = a.lines[-12:]; del a.lines[-12:]
    T = lambda b: 32 + 4 * b
    odd = f's[{M_ODD}:{M_ODD+1}]'
    for b in (1, 2, 3, 0):
        a.emit(f'v_cndmask_b32 v{Sc(b)}, v{Sc(b)}, v{Sc(b)+1}, {odd}')
        a.emit(f'v_cndmask_b32 v{Sp(b)}, v{Sp(b)}, v{Sp(b)+1}, {odd}')
        a.emit(f'v_cndmask_b32 v{Sc(b)+2}, v{Sc(b)+2}, v{Sc(b)+3}, {odd}')
        a.emit(f'v_cndmask_b32 v{Sp(b)+2}, v{Sp(b)+2}, v{Sp(b)+3}, {odd}')
        a.emit(f'v_cndmask_b32 v{T(b)}, v{Sc(b)}, v{Sp(b)}, s[{M_UPA}:{M_UPA+1}]')
        a.emit(f'v_cndmask_b32 v{T(b)+1}, v{Sc(b)+2}, v{Sp(b)+2}, s[{M_UPB}:{M_UPB+1}]')
        a.emit(f'v_mul_f32 v{T(b)}, v{T(b)}, v{RK+b}')
        a.emit(f'v_mul_f32 v{T(b)+1}, v{T(b)+1}, v{RK+4+b}')
    a.emit(f'v_mov_b32 v48, {f2u(-1e9 * 1.4426950408889634):#x}')
    a.emit(f'v_cndmask_b32 v{T(0)}, v{T(0)}, v48, s[{M_FA}:{M_FA+1}]')
    a.emit(f'v_cndmask_b32 v{T(0)+1}, v{T(0)+1}, v48, s[{M_FB}:{M_FB+1}]')
    for b in (2, 3, 1, 0) if AE & 2 else range(4): a.emit(f'v_max_f32 v{T(b)+2}, v{T(b)}, v{T(b)+1}')
    if AE & 2:
        M = lambda b: T(b) + 2
        for x in [f'v_permlane32_swap_b32 v{M(2)}, v{M(3)}', 1, f'v_permlane32_swap_b32 v{M(0)}, v{M(1)}', f'v_max_f32 v{M(2)}, v{M(2)}, v{M(3)}', f'v_max_f32 v{M(0)}, v{M(0)}, v{M(1)}', 2,
                  f'v_permlane16_swap_b32 v{M(0)}, v{M(2)}', 1, f'v_max_f32 v{M(1)}, v{M(0)}, v{M(2)}', f'v_max_f32 v{M(3)}, v{M(0)}, v{M(2)}', 2,
                  f'v_permlane16_swap_b32 v{M(1)}, v{M(3)}', 1, f'v_mov_b32 v{M(0)}, v{M(1)}', f'v_mov_b32 v{M(2)}, v{M(3)}', 1,
                  f'v_permlane32_swap_b32 v{M(0)}, v{M(1)}', f'v_permlane32_swap_b32 v{M(2)}, v{M(3)}', 4]:
            if isinstance(x, int): a.lines += vf[:x]; del vf[:x]
            else: a.emit(x)
        assert not vf
    for op in () if AE & 2 else ('32', '16'):
        for b in range(4): a.emit(f'v_mov_b32 v{T(b)+3}, v{T(b)+2}')
        for b in range(4): a.emit(f'v_permlane{op}_swap_b32 v{T(b)+2}, v{T(b)+3}')
        for b in range(4): a.emit(f'v_max_f32 v{T(b)+2}, v{T(b)+2}, v{T(b)+3}')
    P = lambda b: acc(0, b)
    if AE & 4:
        for b in range(5):
            o = [f'v_sub_f32 v{T(b)+k}, v{T(b)+k}, v{T(b)+2}' for k in range(2)] + [f'v_exp_f32 v{T(b)+k}, v{T(b)+k}' for k in range(2)] + [f'v_cvt_pk_bf16_f32 v{T(b)+k}, v{T(b)+k}, v{T(b)+k}' for k in range(2)]
            o += [f'v_and_b32 v{P(b)+k}, v{T(b)+(k&1)}, v{(MAP, MBP, MAC, MBC)[k]}' for k in range(4)]
            if b == 4: o = [f'v_rcp_f32 v{acc(1,0)}, v{acc(1,0)}', f's_cmp_eq_u32 s{S_WM}, 1', f'v_rcp_f32 v{acc(1,1)}, v{acc(1,1)}', '', f'v_rcp_f32 v{acc(1,2)}, v{acc(1,2)}', '', '', '', '', '']
            q = b - 1
            ms = [mfma(acc(1, q), ONES, P(q), '0'), mfma(acc(4, q), VV[0] + 2 * q, P(q), '0'), mfma(acc(5, q), VV[1] + 2 * q, P(q), '0')] if b else ['', 's_nop 0', '']
            for x in o[:2] + ms[:1] + o[2:4] + ms[1:2] + o[4:7] + ms[2:] + o[7:]:
                if x: a.emit(x)
    else:
        for b in range(4):
            a.emit(f'v_sub_f32 v{T(b)}, v{T(b)}, v{T(b)+2}')
            a.emit(f'v_sub_f32 v{T(b)+1}, v{T(b)+1}, v{T(b)+2}')
        for b in range(4):
            a.emit(f'v_exp_f32 v{T(b)}, v{T(b)}')
            a.emit(f'v_exp_f32 v{T(b)+1}, v{T(b)+1}')
        P = lambda b: acc(0, b)
        for b in range(4):
            a.emit(f'v_cvt_pk_bf16_f32 v{T(b)}, v{T(b)}, v{T(b)}')
            a.emit(f'v_cvt_pk_bf16_f32 v{T(b)+1}, v{T(b)+1}, v{T(b)+1}')
            a.emit(f'v_and_b32 v{P(b)}, v{T(b)}, v{MAP}')
            a.emit(f'v_and_b32 v{P(b)+1}, v{T(b)+1}, v{MBP}')
            a.emit(f'v_and_b32 v{P(b)+2}, v{T(b)}, v{MAC}')
            a.emit(f'v_and_b32 v{P(b)+3}, v{T(b)+1}, v{MBC}')
            if b >= 1:
                q = b - 1
                a.emit(mfma(acc(1, q), ONES, P(q), '0'))
                a.emit(mfma(acc(4, q), VV[0] + 2 * q, P(q), '0'))
                a.emit(mfma(acc(5, q), VV[1] + 2 * q, P(q), '0'))
        q = 3
        a.emit(mfma(acc(1, q), ONES, P(q), '0'))
        a.emit(mfma(acc(4, q), VV[0] + 2 * q, P(q), '0'))
        a.emit(mfma(acc(5, q), VV[1] + 2 * q, P(q), '0'))
    if ENV('ES'): stamp(a, 1)
    no = 'wo' in NS
    if no:
        if not AE & 4: a.emit(f's_cmp_eq_u32 s{S_WM}, 1')
        a.emit(f's_cbranch_scc1 L_{kind}_out1')
    for w in range(2 if no else 1):
        if w: a.label(f'L_{kind}_out1')
        for b in range(4):
            r = acc(1, b); d = 48 + 4 * b
            if not AE & 4: a.emit(f'v_rcp_f32 v{r}, v{r}')
            elif b == 1: a.emit(f'v_rcp_f32 v{acc(1,3)}, v{acc(1,3)}')
            a.emit(f's_mov_b32 s3, {b * 16 * (7168 if OH else 2048)}')
            for t in range(2):
                x = acc(4 + t, b)
                for h in range(2):
                    a.emit(f'v_pk_mul_f32 v[{x+2*h}:{x+2*h+1}], v[{x+2*h}:{x+2*h+1}], v[{r}:{r+1}] op_sel_hi:[1,0]')
            for t in range(2):
                x = acc(4 + t, b)
                for h in range(2):
                    a.emit(f'v_cvt_pk_bf16_f32 v{d+2*(t^w)+h}, v{x+2*h}, v{x+2*h+1}')
            if not no:
                a.emit('s_nop 1')
                a.emit(f'v_permlane16_swap_b32 v{d}, v{d+2}')
                a.emit(f'v_permlane16_swap_b32 v{d+1}, v{d+3}')
            a.emit(f'buffer_store_dwordx4 v[{d}:{d+3}], v{VO}, s[{SO}:{SO+3}], s3 offen{stf(kind)}')
        if no and not w: a.emit(f's_branch L_{kind}_out2')
    if no: a.label(f'L_{kind}_out2')
    compute_end(a, kind)
    a.label(f'L_{kind}_loader')
    L = Loader(a, kind, K, lda2, ldw2, [0, 2048, 4096], 128, S, STAGE, halo=XH, rot=int(ENV('ROT_QKV', '0')))
    L.skip = DS
    L.setup()
    a.emit('s_waitcnt lgkmcnt(0)')
    srd_xs(a, SX); srd(a, SW, 'wqkv', 0, 1024 * 6144)
    import sides
    fill = []
    if ENV('DX', '2') == '1' and ENV('CLP', 'e') == 'l':
        a.emit('s_and_b32 s3, s2, 3')
        a.emit(f's_and_b32 s4, s{S_CU}, 3')
        a.emit('s_lshl2_add_u32 s3, s3, s4')
        a.emit('s_bfe_u32 s4, s2, 0x10002')
        a.emit(f's_lshr_b32 s5, s{S_CU}, 2')
        a.emit('s_lshl1_add_u32 s4, s5, s4')
        a.emit('s_lshl4_add_u32 s3, s3, s4')
        a.emit(f's_and_b32 s4, s{S_WV}, 3')
        a.emit('s_lshl2_add_u32 s3, s3, s4')
        a.emit('s_lshl_b32 s3, s3, 12')
        srd(a, SB, 'ws', WS_XP, 0 if 'fill0' in DBG else 4096)
        if 'fillfl' in DBG:
            srd(a, SB, 'ws0', WS_FL + MB, 4096)
            a.emit('s_and_b32 s3, s3, 0xfffff')
        a.emit(f's_add_u32 s{SB}, s{SB}, s3')
        a.emit(f's_addc_u32 s{SB+1}, s{SB+1}, 0')
        FW_ = int(ENV('FILLW', '2'))
        a.emit(f'v_mul_u32_u24 v29, {4 * FW_}, v1')
        for i in range(4): a.emit(f'v_mov_b32 v{24+i}, -1')
        fill = [f'buffer_store_dword{"x" + str(FW_)} v[24:{23 + FW_}], v29, s[{SB}:{SB+3}], 0 offen' + ('' if 'fillwb' in DBG else ' sc1'), f'v_add_u32 v29, {256 * FW_}, v29']
        assert sides.STV[3] == 0
    a.emit(f's_cmp_lg_u32 s{S_LAYER}, 0')
    a.emit(f's_cbranch_scc1 L_{kind}_ld1')
    post = list(sides.stouch_post(a, kind)) + fill
    ST0 = [int(x) for x in ENV('ST0', '0,0').split(',')]
    post0 = sides.stouch(a, 'w1', 1024 * 7168, SB, 86, 0, ST0[0], per=1, xl=sides.CSM == 4)
    SPF = [int(x) for x in ENV('SPF', '0,0,2').split(',')]
    def spf():
        hs = range(SPF[2])
        return ([f's_buffer_load_dword s84, s[{SX}:{SX+3}], s85 offset:{2048*r+64*h}' for r in range(2) for h in hs] +
                [f's_buffer_load_dword s84, s[{SW}:{SW+3}], s86 offset:{2048*p+64*h}' for p in range(3) for h in hs] +
                ['s_add_u32 s85, s85, 128', f's_add_u32 s86, s86, {64*ldw2}'])
    def spf_start():
        if not SPF[1]: return
        a.emit(f's_and_b32 s3, s{S_WV}, 3')
        a.emit(f's_lshl2_add_u32 s3, s{S_CU}, s3')
        a.emit('s_and_b32 s4, s2, 1')
        a.emit('s_bfe_u32 s5, s2, 0x20001')
        a.emit('s_lshl2_add_u32 s85, s4, s5')
        a.emit('s_lshl_b32 s85, s85, 7')
        a.emit('s_add_u32 s85, s85, s3')
        a.emit('s_lshl_b32 s85, s85, 12')
        a.emit(f's_add_u32 s85, s85, {128*SPF[0]}')
        a.emit('s_lshl_b32 s4, s4, 5')
        a.emit(f's_add_u32 s4, s4, s{S_CU}')
        a.emit(f's_add_u32 s4, s4, {64*SPF[0]}')
        a.emit(f's_mul_i32 s86, s4, {ldw2}')
        a.emit('s_and_b32 s3, s3, 3')
        a.emit('s_lshl2_add_u32 s3, s5, s3')
        a.emit('s_lshl_b32 s3, s3, 7')
        a.emit('s_add_u32 s86, s86, s3')
        for i in range(SPF[0], SPF[1]):
            for x in spf(): a.emit(x)
    if SPF[1]: post += spf()
    VPF = [int(x) for x in ENV('VPF', '0,0,1').split(',')]
    def vpf():
        k0, nk, hs = VPF
        if not nk: return 0
        a.emit(f's_and_b32 s3, s{S_WV}, 3')
        a.emit(f's_lshl2_add_u32 s3, s{S_CU}, s3')
        a.emit('s_and_b32 s4, s2, 1')
        a.emit('s_bfe_u32 s5, s2, 0x20001')
        a.emit('s_lshl2_add_u32 s85, s4, s5')
        a.emit('s_lshl_b32 s85, s85, 7')
        a.emit('s_add_u32 s85, s85, s3')
        a.emit('s_lshl_b32 s85, s85, 12')
        a.emit('s_lshl_b32 s4, s4, 7')
        a.emit('s_add_u32 s4, s4, s3')
        a.emit(f's_add_u32 s4, s4, {64*k0}')
        a.emit(f's_mul_i32 s86, s4, {ldw2}')
        a.emit('s_lshl_b32 s5, s5, 9')
        a.emit('s_add_u32 s86, s86, s5')
        a.emit('v_and_b32 v2, 15, v1')
        a.emit(f'v_min_u32 v3, {nk-1}, v2')
        a.emit('v_and_b32 v22, 16, v1')
        a.emit('v_add_lshl_u32 v22, v22, v3, 7')
        a.emit('v_min_u32 v2, 11, v2')
        a.emit('v_lshrrev_b32 v3, 2, v2')
        a.emit('v_and_b32 v2, 3, v2')
        a.emit('v_lshl_add_u32 v2, v3, 4, v2')
        a.emit('v_lshrrev_b32 v3, 4, v1')
        a.emit(f'v_min_u32 v3, {nk//4-1}, v3')
        a.emit(f'v_mul_u32_u24 v3, {256*ldw2}, v3')
        a.emit('v_lshl_add_u32 v23, v2, 7, v3')
        for h in range(hs):
            a.emit(f'buffer_load_dword v24, v23, s[{SW}:{SW+3}], s86 offen offset:{64*h}')
            a.emit(f'buffer_load_dword v25, v22, s[{SX}:{SX+3}], s85 offen offset:{128*k0+64*h}')
        return 2 * hs
    TG_ = int(ENV('TLBG', '0'))
    if TG_:
        srd(a, SO, 'ws0', 0, 256 * MB)
        a.emit(f's_and_b32 s3, s{S_WV}, 3')
        a.emit(f's_lshl2_add_u32 s3, s{S_CU}, s3')
        a.emit(f's_lshl_b32 s86, s3, {TG_}')
        tl = [f's_buffer_load_dword s84, s[{SO}:{SO+3}], s86', f's_add_u32 s86, s86, {128 << TG_}']
        if TG_ < 21: post += tl
    extra = tail_parks('wo', SP, lambda b: srd(b, SP, 'wo', 0, 2 * MB))
    sch0 = [int(c) for c in ENV('TSO0', '00000')]
    extra0 = tail_parks('wo', SP, lambda b: srd(b, SP, 'wo', 0, 2 * MB), sch0 + [sum(TSCH['wo']) - sum(sch0)])
    npk = 2 * sum(TSCH['wo']) if XD else 0
    def start():
        sides.cls_touch(a)
        if TG_:
            for x in tl: a.emit(x)
            a.emit(f's_and_b32 s3, s{S_WV}, 3')
            a.emit(f's_lshl2_add_u32 s3, s{S_CU}, s3')
            for w, sz in (('out', 4 * MB), ('wo', 2 * MB), ('w1', 7 * MB), ('b1', 4096), ('b2', 2048)):
                srd(a, SC, w, 0, sz)
                a.emit(f's_mul_i32 s4, s3, {sz // 128}')
                a.emit(f's_buffer_load_dword s84, s[{SC}:{SC+3}], s4')
        if ENV('DX', '2') != '1' or ENV('CLP', 'e') != 's': return 0
        srd(a, ST, 'ws0', WS_XP, LSTR + 4 * MB)
        a.emit('s_and_b32 s3, s2, 3')
        a.emit(f's_and_b32 s4, s{S_CU}, 3')
        a.emit('s_lshl2_add_u32 s3, s3, s4')
        a.emit('s_bfe_u32 s4, s2, 0x10002')
        a.emit(f's_lshr_b32 s5, s{S_CU}, 2')
        a.emit('s_lshl1_add_u32 s4, s5, s4')
        a.emit('s_lshl4_add_u32 s3, s3, s4')
        a.emit(f's_and_b32 s4, s{S_WV}, 3')
        a.emit('s_lshl2_add_u32 s3, s3, s4')
        a.emit('s_lshl_b32 s3, s3, 12')
        a.emit(f's_add_u32 s4, s3, {LSTR}')
        a.emit('v_lshlrev_b32 v2, 4, v1')
        for i in range(4): a.emit(f'v_mov_b32 v{32+i}, -1')
        for i in range(8): a.emit(f'buffer_store_dwordx4 v[32:35], v2, s[{ST}:{ST+3}], s{3+(i>>2)} offen offset:{1024*(i&3)} sc1')
        return 8
    final0 = None
    TL0 = int(ENV('TL0', '1' if DS else '0'))
    if DS:
        STQ0 = int(ENV('STQ0', '14'))
        assert HK[-1] < STQ0 <= 13 + TL0
        def start():
            nv = vpf()
            if sides.CE:
                assert sum(sides.CE.values()) == 8
                sides.cs_setup(a, SB, 95, 26)
                for x in sides.cs_at(-1): a.emit(x)
                nv += sides.CE.get(-1, 0)
            spf_start()
            sides.cls_touch(a)
            srd(a, ST, 'ws0', WS_ST0, 16 * 16384)
            stats4_setup(a, True)
            if D2:
                if CF == 2: a.emit('v_lshlrev_b32 v20, 2, v1')
                else: dbg_off(a, 20)
                a.emit(f's_and_b32 s{SC+1}, s{SC+1}, 0xffff')
                a.emit(f's_mov_b32 s{SC+2}, 256')
                a.emit(f's_mov_b32 s{SC+3}, 0x00020000')
            for x in pads.chain(-1): a.emit(x)
            return nv
        pl2 = f'buffer_load_dword v21, v20, s[{SC}:{SC+3}], 0 offen sc1'
        ck2 = ['s_mov_b32 s5, 0x100000', 'L_attn_dchk:', 'v_or_b32 v13, 0xfefefefe, v21', 'v_cmp_ne_u32 vcc, -1, v13', 's_cbranch_vccz L_attn_dok', 's_sub_u32 s5, s5, 1\n  ' + pl2,
               's_waitcnt vmcnt(0)', 's_cbranch_scc0 L_attn_dchk', 'L_attn_dok:'] if D2 else []
        PLS = int(ENV('PLS', '13'))
        if PLS > STQ0 - 3: ck2.insert(0, 's_waitcnt vmcnt(11)'); L.pre = {PLS: [pl2]}; assert PLS == 13
        extra0 = lambda i: (ck2 + stats4_loads(32, True) if i == STQ0 else [pl2] if D2 and i == PLS < 13 else []) + sides.cs_at(i) + sides.cs_acc(i) + pads.chain(i)
        def chk0():
            a.emit('v_cmp_u_f32 vcc, v32, v33')
            a.emit('v_cmp_u_f32 s[4:5], v48, v49')
            a.emit('s_or_b64 s[4:5], vcc, s[4:5]')
            a.emit('s_cbranch_scc0 L_attn_sok')
            a.emit(f's_sub_u32 s{S_CNT}, s{S_CNT}, 1')
            a.emit('s_cbranch_scc1 L_attn_sok')
            for x in stats4_loads(32, True): a.emit(x + (' sc1' if x.startswith('buf') else ''))
            a.emit('s_waitcnt vmcnt(0)')
            a.emit('s_branch L_attn_schk')
            a.label('L_attn_sok')
        def final0():
            a.emit(f's_mov_b32 s{S_CNT}, 0x4000')
            a.emit(f"s_waitcnt vmcnt({side(Asm(), 0, 'issue') + sum(n for e, n in sides.CE.items() if e >= STQ0)})")
            if CF and ENV('CFP', 'b') == 'a': a.emit(sides.CS_ST)
            a.label('L_attn_schk')
            stats4_store(a, 32, LST, True, chk0 if D2 else None)
            if CF and 15 in sides.CFS:
                for x in sides.cs_acc(15, True): a.emit(x)
                sides.cs_out(a, 100)
            if CF and ENV('CFP', 'b') == 'b': a.emit(sides.CS_ST)
            a.emit('s_waitcnt lgkmcnt(0)')
    L.pf0 = sides.PF0; L.post0 = post0; L.pfs = ST0[1]
    if ENV('PDL', '1,880') != '0': L.pad = tuple(int(x) for x in ENV('PDL', '1,880').split(','))
    L.run('0', tail_issue=lambda: side(a, 0, 'issue'), ntail_vm=side(Asm(), 0, 'issue'), post=post, start=start, extra=extra0, tail_late=TL0, final=final0, exfirst=True)
    if CF and ENV('CFP', 'b') == 'c': a.emit(sides.CS_ST)
    for i in (16,) if DS else (16, 17):
        if XD:
            for x in extra0(i): a.emit(x)
        if WE < 0 and PT != 2: a.emit('s_barrier')
    if XD:
        for x in extra0(18): a.emit(x)
    if ONE:
        a.emit(f's_branch L_{kind}_ldend')
    else:
        side(a, 0, 'finish')
        a.emit('s_endpgm')
    L.pre = {}; L.pad = None; L.pf0 = 0; L.post0 = []
    a.label(f'L_{kind}_ld1')
    if ',' in L.kord():
        L.ktable(int(L.kord().split(',')[1]))
        L.ot = int(ot); L.hx = HX - XH
        for x in ([] if ot else L.knext()): a.emit(x)
    srd(a, ST, 'ws0', WS_ST2, 16 * 16384)
    n1 = side(Asm(), 1, 'issue')
    def tail1():
        stats_loads(a, 32, True)
        side(a, 1, 'issue')
    def final1():
        a.emit(f's_waitcnt vmcnt({n1 + npk})')
        stats_reduce_store(a, 32, LST)
        a.emit('s_waitcnt lgkmcnt(0)')
    if T4:
        stats4_setup(a, True)
        TL1 = int(ENV('TL1', '0'))
        def final4():
            a.emit(f"s_waitcnt vmcnt({n1 if int(ENV('STQ', '14')) < 13 + TL1 < 15 else 0})")
            stats4_store(a, 32, LST, True, nan_chk(a, 'L_attn_t', True) if SF else None)
            a.emit('s_waitcnt lgkmcnt(0)')
        if ZD:
            srd(a, SC, 'ws0', WS_FL, FLS)
            a.emit('v_and_b32 v30, 3, v1')
            a.emit('v_lshlrev_b32 v30, 6, v30')
            a.emit(f's_mov_b32 s{S_CNT}, 0x100000')
        def zbar():
            xpoll(a, 'L_attn_x', SC, S_Q, 30, 12)
            a.emit('s_barrier')
        def pref1():
            if ZD == 'b': zbar()
            a.emit('s_waitcnt vmcnt(0)')
        if ZD == 'a': zbar()
        L.run('1', tail_issue=lambda: side(a, 1, 'issue'), ntail_vm=n1, tail_late=TL1, final=final4, extra=lambda i: stats4_loads(32, True) if i == int(ENV('STQ', '14')) else [],
              post=fill, dep=lambda pf: dep_wait(a, kind, halo=True, postf=pf, pref=pref1 if ot else None, preg=(lambda: a.emit('s_waitcnt vmcnt(6)')) if WG else None))
    else: L.run('1', tail_issue=tail1, ntail_vm=16 + n1, final=final1, extra=extra, post=fill, dep=(lambda pf: dep_wait(a, kind, halo=True, postf=pf)) if MEGA else None)
    if WE < 0 and PT != 2: a.emit('s_barrier')
    if not MEGA: side(a, 1, 'finish')
    a.label(f'L_{kind}_ldend')
    loader_end(a, kind, check=False)
    a.label(end)
    a.emit('s_endpgm')
    loader_first(a, kind)
    a(KD.format(name=f'{kind}l0_kernel'))
    if not MEGA:
        stub(a, f'{kind}l1_kernel', body, 1, tsidx + 4, False)
        a(KD.format(name=f'{kind}l1_kernel'))
    a.label(f'L_{kind}_c1')
    return LST + 1280
```

```python
from common import *
LM_WO = int(ENV('LM_WO', '2')); LM_W1 = int(ENV('LM_W1', '3')); LM_W2 = int(ENV('LM_W2', '2')); LM_QKV = int(ENV('LM_QKV', '3'))
PFW2 = int(ENV('PFW2', '0'))
PV = 96

def fin(a):
    a.emit('s_waitcnt vmcnt(0)')

def pf_wo(a):
    L = 1 << (5 - LM_WO)
    sh = 5 - LM_WO
    return pf_weights(a, SP, 'wo', 2 * MB, 2048, 32, sh, L, LM_WO, 128, max(1, (8 << sh) // 64), PV, pair=SPX)

PF1 = int(ENV('PF1', '0'))
def pf_w1(a, sd=SP):
    if not PF1: return 0
    lm = 2 if 'w1' in OT else LM_W1
    u = 1 << (5 - lm)
    sh = 7 - lm
    srd(a, sd, 'w1', 0, 1024 * 7168)
    a.emit(f's_and_b32 s3, s{S_WV}, 3')
    a.emit(f's_lshl2_add_u32 s3, s{S_CU}, s3')
    a.emit(f's_mul_i32 s3, s3, {64 >> sh}')
    a.emit(f"s_add_u32 s3, s3, {1024 - int(ENV('PF1B', '64'))}")
    a.emit(f'v_lshrrev_b32 v2, {sh}, v1')
    a.emit('v_add_u32 v12, s3, v2')
    a.emit(f'v_and_b32 v3, {4 * u - 1}, v1')
    a.emit(f'v_min_u32 v3, {7 * u // 2 - 1}, v3')
    a.emit('s_and_b32 s3, s2, 7')
    a.emit(f's_lshr_b32 s3, s3, {4 - lm}')
    a.emit(f's_mul_i32 s4, s3, {-(u // 2)}')
    a.emit(f's_add_u32 s4, s4, {16 - u}')
    a.emit(f's_mul_i32 s5, s3, {u}')
    a.emit(f's_add_u32 s5, s5, {24 - 3 * u // 2}')
    a.emit(f's_mul_i32 s3, s3, {u * 128}')
    a.emit(f'v_cmp_le_u32 vcc, {u}, v3')
    a.emit('v_mov_b32 v2, s4')
    a.emit('v_mov_b32 v13, s5')
    a.emit('v_cndmask_b32 v2, 0, v2, vcc')
    a.emit(f'v_cmp_le_u32 vcc, {3 * u // 2}, v3')
    a.emit('s_movk_i32 s4, 7168')
    a.emit('s_nop 0')
    a.emit('v_cndmask_b32 v2, v2, v13, vcc')
    a.emit('v_add_lshl_u32 v3, v3, v2, 7')
    for i in range(PF1):
        if i: a.emit(f'v_add_u32 v12, {128 * (64 >> sh)}, v12')
        a.emit('v_and_b32 v2, 1023, v12')
        a.emit('v_mad_u32_u24 v2, v2, s4, v3')
        a.emit(f'buffer_load_dword v{PV+4+i}, v2, s[{sd}:{sd+3}], s3 offen')
    return PF1

def touch(a, which, size, vd, l0only=True):
    if 'nopf' in DBG: return 0
    per = size // 128 // 1024
    assert per <= 64
    srd(a, SP, which, 0, size)
    a.emit(f's_and_b32 s3, s{S_WV}, 3')
    a.emit('s_lshl_b32 s4, s2, 2')
    a.emit('s_add_u32 s3, s3, s4')
    a.emit(f's_mul_i32 s3, s3, {per * 128}')
    a.emit(f'v_min_u32 v2, {per - 1}, v1')
    a.emit('v_lshlrev_b32 v2, 7, v2')
    if l0only:
        a.emit(f's_sub_u32 s4, s{S_LAYER}, 1')
        a.emit('v_and_b32 v2, s4, v2')
    a.emit(f'buffer_load_dword v{vd}, v2, s[{SP}:{SP+3}], s3 offen')
    return 1

def fill(a):
    if ENV('DX', '2') != '1' or ENV('CLP', 'e') != 't': return 0
    srd(a, SB, 'ws', WS_XP, 4 * MB)
    a.emit('s_and_b32 s3, s2, 3')
    a.emit(f's_and_b32 s4, s{S_CU}, 3')
    a.emit('s_lshl2_add_u32 s3, s3, s4')
    a.emit('s_bfe_u32 s4, s2, 0x10002')
    a.emit(f's_lshr_b32 s5, s{S_CU}, 2')
    a.emit('s_lshl1_add_u32 s4, s5, s4')
    a.emit('s_lshl4_add_u32 s3, s3, s4')
    a.emit(f's_and_b32 s4, s{S_WV}, 3')
    a.emit('s_lshl2_add_u32 s3, s3, s4')
    a.emit('s_lshl_b32 s3, s3, 12')
    a.emit('v_lshlrev_b32 v2, 4, v1')
    for i in range(4): a.emit(f'v_mov_b32 v{24+i}, -1')
    for i in range(4): a.emit(f'buffer_store_dwordx4 v[24:27], v2, s[{SB}:{SB+3}], s3 offen offset:{1024*i} sc1')
    return 4

CE = dict((int(x.split(':')[0]), int(x.split(':')[1])) for x in ENV('CE', '0:2,1:2,2:2,3:2').split(',') if x)
CSM = int(ENV('CSM', '0'))
def cs_idle(a, sd):
    if CSM in (1, 2):
        a.emit('s_cmp_lt_u32 s2, 224')
        a.emit(f's_cselect_b32 s{sd+2}, s{sd+2}, 0')
def cs_setup(a, sd, so, vo):
    srd(a, sd, 'w1', 0, 0 if 'nocs' in DBG else 1024 * 7168)
    cs_idle(a, sd)
    if CSM >= 2:
        a.emit('s_lshr_b32 s3, s2, 3')
        a.emit('s_min_u32 s3, s3, 27')
        a.emit('s_and_b32 s4, s2, 7')
        a.emit('s_mul_i32 s4, s4, 28')
        a.emit('s_add_u32 s3, s3, s4')
    else: a.emit('s_min_u32 s3, s2, 223')
    a.emit('s_mul_i32 s4, s3, 4682')
    a.emit('s_lshr_b32 s4, s4, 16')
    a.emit('s_mul_i32 s5, s4, 14')
    a.emit('s_sub_u32 s3, s3, s5')
    a.emit('s_lshl_b32 s3, s3, 2')
    a.emit(f's_and_b32 s5, s{S_WV}, 3')
    a.emit('s_add_u32 s3, s3, s5')
    a.emit(f's_mul_i32 s5, s4, {64 * 7168}')
    a.emit('s_lshl_b32 s8, s3, 7')
    a.emit(f's_add_u32 s{so}, s5, s8')
    a.emit('s_lshl_b32 s9, s4, 14')
    a.emit('s_lshl_b32 s8, s3, 8')
    a.emit('s_add_u32 s94, s9, s8')
    a.emit('v_lshrrev_b32 v2, 3, v1')
    a.emit('v_mul_u32_u24 v2, 7168, v2')
    a.emit('v_and_b32 v3, 7, v1')
    a.emit(f'v_lshl_add_u32 v{vo}, v3, 4, v2')
def cs_loads(sd, so, vo, js):
    o = []
    for j in js:
        o.append(f'buffer_load_dwordx4 v[{64+4*j}:{67+4*j}], v{vo}, s[{sd}:{sd+3}], s{so} offen')
        if j < 7: o.append(f's_add_u32 s{so}, s{so}, {8 * 7168}')
    return o
def cs_at(i):
    j0 = sum(n for e, n in CE.items() if e < i)
    return cs_loads(SB, 95, 26, range(j0, j0 + CE.get(i, 0)))

CFS = [int(x) for x in ENV('CFS', '14,14,14,14,15,15,15,15').split(',')]
def cs_acc(i, fin=False):
    if not CF or i not in CFS or (i == 15 and not fin): return []
    o = ['s_mov_b32 s5, 0xffff0000']; C8 = CFS[:8] if len(CFS) >= 8 else [x for x in CFS for _ in range(8 // len(CFS))]
    for j in [j for j in range(8) if C8[j] == i]:
        for k in range(4):
            x = 64 + 4 * j + k; d = 100 + 2 * k
            if j: o += [f'v_lshlrev_b32 v108, 16, v{x}', f'v_and_b32 v{x}, s5, v{x}', f'v_add_f32 v{d}, v{d}, v108', f'v_add_f32 v{d+1}, v{d+1}, v{x}']
            else: o += [f'v_lshlrev_b32 v{d}, 16, v{x}', f'v_and_b32 v{d+1}, s5, v{x}']
    return o
def cs_out(a, r):
    srd(a, SB, 'ws0', WS_CS, 16 * 16384)
    cs_idle(a, SB)
    for i in range(4): a.emit(f'v_permlane32_swap_b32 v{r+i}, v{r+4+i}')
    for i in range(4): a.emit(f'v_add_f32 v{r+i}, v{r+i}, v{r+4+i}')
    a.emit('v_and_b32 v2, 7, v1')
    a.emit('v_lshlrev_b32 v2, 5, v2')
    for i in range(2): a.emit(f'v_permlane16_swap_b32 v{r+i}, v{r+2+i}')
    for i in range(2): a.emit(f'v_add_f32 v{r+i}, v{r+i}, v{r+2+i}')
    a.emit('v_lshrrev_b32 v3, 4, v1')
    a.emit(f'v_lshl_add_u32 v{r+2}, v3, 3, v2')
    for i in range(2): a.emit(f'v_add_f32_dpp v{r+i}, v{r+i}, v{r+i} row_ror:8 row_mask:0xf bank_mask:0xf')
CS_ST = f'buffer_store_dwordx2 v[100:101], v102, s[{SB}:{SB+3}], s94 offen sc1'

def qkv(a, layer, phase, npre=0):
    if phase == 'issue':
        n = 0
        if layer == 0:
            if not CE:
                cs_setup(a, SC, 5, 2)
                for x in cs_loads(SC, 5, 2, range(8)): a.emit(x)
                n += 8
            from gemmw2 import zero_flags
            if not ONE: n += zero_flags(a)
            if ENV('TW2') == 'qkv': n += touch(a, 'w2', 3584 * 2048, PV + 2, False)
        if ENV('CLO', '0') == '1': n += fill(a)
        if ENV('PWO', 'v') == 'v': n += pf_wo(a)
        if str(layer) in ENV('PF1L', '01'): n += pf_w1(a)
        if ENV('CLO', '0') == '0': n += fill(a)
        if CF and layer == 0:
            if 15 not in CFS: cs_out(a, 100)
            if GM and CF == 2: l2_mode(a, 21)
        return n
    if layer == 0:
        a.emit(f's_waitcnt vmcnt({npre})')
        a.emit('s_mov_b32 s7, 0xffff0000')
        for i in range(4):
            a.emit(f'v_lshlrev_b32 v{32+2*i}, 16, v{64+i}')
            a.emit(f'v_and_b32 v{33+2*i}, s7, v{64+i}')
        for j in range(1, 8):
            for i in range(4):
                a.emit(f'v_lshlrev_b32 v40, 16, v{64+4*j+i}')
                a.emit(f'v_and_b32 v41, s7, v{64+4*j+i}')
                a.emit(f'v_pk_add_f32 v[{32+2*i}:{33+2*i}], v[{32+2*i}:{33+2*i}], v[40:41]')
        srd(a, SB, 'ws0', WS_CS, 16 * 16384)
        for i in range(4): a.emit(f'v_permlane32_swap_b32 v{32+i}, v{36+i}')
        for i in range(4): a.emit(f'v_add_f32 v{32+i}, v{32+i}, v{36+i}')
        a.emit('v_and_b32 v2, 7, v1')
        a.emit('v_lshlrev_b32 v2, 5, v2')
        for i in range(2): a.emit(f'v_permlane16_swap_b32 v{32+i}, v{34+i}')
        for i in range(2): a.emit(f'v_add_f32 v{32+i}, v{32+i}, v{34+i}')
        a.emit('v_lshrrev_b32 v3, 4, v1')
        a.emit('v_lshl_add_u32 v2, v3, 3, v2')
        for i in range(2): a.emit(f'v_add_f32_dpp v{32+i}, v{32+i}, v{32+i} row_ror:8 row_mask:0xf bank_mask:0xf')
        a.emit(f'buffer_store_dwordx2 v[32:33], v2, s[{SB}:{SB+3}], s94 offen sc1')
        if ONE and not SPX: a.emit('s_waitcnt vmcnt(0)')
    else:
        fin(a)

def wo(a, phase):
    if phase == 'issue':
        return touch(a, 'w2', 3584 * 2048, PV) if ENV('TW2') == 'wo' else 0
    fin(a)

SL = int(ENV('SL', '64'))
def stouch(a, which, size, sd, sreg, first, lps, pre=0, per=None, xl=False):
    if lps == 0: return []
    srd(a, sd, which, 0, size)
    a.emit(f's_cmp_eq_u32 s{S_LAYER}, 0')
    a.emit(f's_cselect_b32 s{sd+2}, s{sd+2}, 0')
    a.emit(f's_and_b32 s3, s{S_WV}, 3')
    if xl:
        a.emit('s_lshr_b32 s4, s2, 3')
        a.emit('s_lshl_b32 s4, s4, 2')
        a.emit('s_add_u32 s3, s3, s4')
        a.emit(f's_mul_i32 s{sreg}, s3, {lps * SL}')
        a.emit('s_and_b32 s4, s2, 7')
        a.emit(f's_mul_i32 s4, s4, {size // 8}')
        a.emit(f's_add_u32 s{sreg}, s{sreg}, s4')
        return [f's_buffer_load_dword s84, s[{sd}:{sd+3}], s{sreg} offset:{SL*i}' for i in range(lps)] + [f's_add_u32 s{sreg}, s{sreg}, {SL*lps*128}']
    a.emit('s_lshl_b32 s4, s2, 2')
    a.emit('s_add_u32 s3, s3, s4')
    if per and ENV('STC', '1') == '1':
        a.emit(f's_mul_i32 s{sreg}, s3, {lps * SL}')
        a.emit(f's_add_u32 s{sreg}, s{sreg}, {first * SL * 1024}')
        o = [f's_buffer_load_dword s84, s[{sd}:{sd+3}], s{sreg} offset:{SL*i}' for i in range(lps)] + [f's_add_u32 s{sreg}, s{sreg}, {SL*lps*1024}']
        assert pre in (0, lps)
        for x in o if pre else []: a.emit(x)
        return o
    a.emit(f's_mul_i32 s{sreg}, s3, {per * SL // 64 if per else size // 1024}')
    if per:
        a.emit(f's_add_u32 s{sreg}, s{sreg}, {first * SL * 1024}')
        first = 0
    for i in range(pre): a.emit(f's_buffer_load_dword s84, s[{sd}:{sd+3}], s{sreg} offset:{SL*(first+i)}')
    return [f's_buffer_load_dword s84, s[{sd}:{sd+3}], s{sreg} offset:{SL*(first+pre+i)}' for i in range(lps)] + [f's_add_u32 s{sreg}, s{sreg}, {SL*lps}']

STV = [int(x) for x in ENV('STV', '7,0,4,0').split(',')]
PF0 = int(ENV('PF0', '5')); NQ = 14 - PF0
STO = [int(x) for x in ENV('STO', '0,0,0,0').split(',')]
def stouch_post(a, kind):
    if ENV('TW2', 's') != 's': return ()
    if kind == 'attn':
        n1 = int(ENV('STW1', '0'))
        return stouch(a, 'w1', 1024 * 7168, SB, 86, 0, n1, per=14 * 64 * n1) + stouch(a, 'w2', 3584 * 2048, SR, S_T, 0, STV[0], per=NQ * 64 * STV[0]) + stouch(a, 'wo', 2 * MB, SB, 86, 0, STV[3], pre=max(0, 32 - 14 * STV[3]))
    if kind == 'wo': return stouch(a, 'w2', 3584 * 2048, SP, S_T, 14 * STV[0], STV[1])
    if kind == 'w1': return stouch(a, 'w2', 3584 * 2048, SP, S_T, NQ * STV[0] + sum(STO), STV[2], per=14 * 64 * STV[2], pre=STV[2] if 'w1' in OT else 0)
    if kind == 'w2': return cls_w2(a)
    return ()

def cls_w2(a):
    P = int(ENV('CW2', '8'))
    if P == 0: return ()
    a.emit(f's_and_b32 s3, s{S_WV}, 3')
    a.emit(f's_lshl_b32 s4, s{S_CU}, 2')
    a.emit('s_add_u32 s3, s3, s4')
    a.emit('s_lshl_b32 s4, s3, 6')
    a.emit('s_and_b32 s4, s4, 64')
    a.emit('s_lshr_b32 s3, s3, 1')
    a.emit(f's_lshl_b32 s{S_T}, s3, 11')
    a.emit(f's_add_u32 s{S_T}, s{S_T}, s4')
    a.emit(f's_sub_u32 s4, 384, s{SW}')
    a.emit('s_and_b32 s4, s4, 0x380')
    a.emit(f's_add_u32 s{S_T}, s{S_T}, s4')
    a.emit(f's_lshl_b32 s4, s{S_NT}, 7')
    a.emit('s_and_b32 s4, s4, 1024')
    a.emit(f's_add_u32 s{S_T}, s{S_T}, s4')
    a.emit(f's_add_u32 s{S_T}, s{S_T}, {(30 if VW else 16 * max(1, PFW2) if XD else 4) * 131072}')
    o = [f's_buffer_load_dword s84, s[{SW}:{SW+3}], s{S_T}', f's_add_u32 s{S_T}, s{S_T}, 131072']
    if VW:
        for x in o * (P // 2): a.emit(x)
        return o * 2
    for i in range(P + 1):
        for x in o: a.emit(x)
    return o

def w1(a, phase):
    if phase == 'late' or (phase == 'issue' and ENV('PFL', '2') == '0'):
        NI = PFW2
        if phase == 'late' and ENV('PFL', '2') == '0': return
        if XD and NI: return pf_weights(a, SR, 'w2', 3584 * 2048, 2048, 32 * NI, 3, 8, 2, 128, NI, PV)
        return 0
    if phase == 'issue': return 0
    if not XD: fin(a)

def w2(a, phase):
    return 0

def cls_touch(a):
    m = ENV('CLS', 'w')
    if m == '0': return
    a.emit(f's_and_b32 s3, s{S_WV}, 3')
    a.emit('s_lshl_b32 s4, s2, 2')
    a.emit('s_add_u32 s3, s3, s4')
    a.emit(f's_sub_u32 s4, 384, s{SW}')
    a.emit('s_and_b32 s4, s4, 0x380')
    a.emit('s_mul_i32 s5, s3, 6144')
    a.emit('s_add_u32 s5, s5, s4')
    for j in range(6):
        for h in range(2): a.emit(f's_buffer_load_dword s84, s[{SW}:{SW+3}], s5 offset:{1024*j+64*h}')
    if m == 'wx':
        a.emit(f's_sub_u32 s4, 384, s{SX}')
        a.emit('s_and_b32 s4, s4, 0x380')
        a.emit('s_lshl_b32 s5, s3, 12')
        a.emit('s_add_u32 s5, s5, s4')
        for j in range(4):
            for h in range(2): a.emit(f's_buffer_load_dword s84, s[{SX}:{SX+3}], s5 offset:{1024*j+64*h}')
```
